```python
import torch

def _softmax(x, axis=-1):
    return torch.softmax(x, dim=axis)

def _gelu(x):
    return torch.nn.functional.gelu(x, approximate='tanh')

def _silu(x):
    return torch.nn.functional.silu(x)

def _sigmoid(x):
    return torch.sigmoid(x)

def _layernorm(x, axis=-1, eps=1e-05):
    m = x.mean(dim=axis, keepdim=True)
    v = x.var(dim=axis, keepdim=True, unbiased=False)
    return (x - m) / torch.sqrt(v + eps)

def _scatter_add(tgt, idx, src, axis=0):
    return tgt.clone().index_add_(axis, idx, src)

def _segment_sum(src, seg, n):
    out = torch.zeros((n,) + src.shape[1:], dtype=src.dtype)
    return out.index_add_(0, seg, src)

def _pad(x, pw):
    flat = tuple((v for pair in reversed(pw) for v in pair))
    return torch.nn.functional.pad(x, flat)
kernel_name = 'adaLN_cond__linear_kernel_hedgehog__glu_gated_swiglu__prompt'

def setup_inputs():

    _w = lambda a: (lambda t: t.to(torch.bfloat16) if t.is_floating_point() else t)(torch.as_tensor(a))

    def _A_setup():
        B, S, D, H = (1, 2048, 1024, 32)
        Dh = D // H
        return {'x': _w((lambda *s: torch.randn(*s, dtype=torch.bfloat16) * 0.05)(B, S, D)), 'wqkv': _w((lambda *s: torch.randn(*s, dtype=torch.bfloat16) * 0.4)(D, 3 * D)), 'w_phi': _w((lambda *s: torch.randn(*s, dtype=torch.bfloat16) * 0.4)(H, Dh, Dh) * Dh ** (-0.5)), 'wo': _w((lambda *s: torch.randn(*s, dtype=torch.bfloat16) * 0.1)(D, D))}
    _A_in = _A_setup()

    def _B_setup():
        B, S, D, F = (1, 2048, 1024, 3584)
        return {'x': _w((lambda *s: torch.randn(*s, dtype=torch.bfloat16) * 0.05)(B, S, D)), 'w1': _w((lambda *s: torch.randn(*s, dtype=torch.bfloat16) * 1.6)(D, F) * (2.0 / D) ** 0.5), 'w3': _w((lambda *s: torch.randn(*s, dtype=torch.bfloat16) * 1.6)(D, F) * (2.0 / D) ** 0.5), 'w2': _w((lambda *s: torch.randn(*s, dtype=torch.bfloat16) * 1.6)(F, D) * (2.0 / F) ** 0.5)}
    _B_in = _B_setup()
    return {'A_x': _A_in['x'], 'A_wqkv': _A_in['wqkv'], 'A_w_phi': _A_in['w_phi'], 'A_wo': _A_in['wo'], 'B_x': _B_in['x'], 'B_w1': _B_in['w1'], 'B_w3': _B_in['w3'], 'B_w2': _B_in['w2'], 'c': _w((lambda *s: torch.randn(*s, dtype=torch.bfloat16) * 0.1)(1, 1024) * 8.0), 'w_mod': _w((lambda *s: torch.randn(*s, dtype=torch.bfloat16) * 0.1)(1024, 6 * 1024) * 1024 ** (-0.5) * 8.0)}

def reference(A_x, A_wqkv, A_w_phi, A_wo, B_x, B_w1, B_w3, B_w2, c, w_mod):

    def _A_ref(x, wqkv, w_phi, wo):
        B, S, D = x.shape
        H = 32
        Dh = D // H
        qkv = (lambda x, *d: x.permute(*d))((x @ wqkv).reshape(B, S, 3, H, Dh), 2, 0, 3, 1, 4)
        q, k, v = (qkv[0], qkv[1], qkv[2])
        pq = torch.einsum('bhsd,hdf->bhsf', q, w_phi)
        pk = torch.einsum('bhsd,hdf->bhsf', k, w_phi)
        phi_q = torch.concatenate([_softmax(pq, axis=-1), _softmax(-pq, axis=-1)], axis=-1)
        phi_k = torch.concatenate([_softmax(pk, axis=-1), _softmax(-pk, axis=-1)], axis=-1)
        kv = torch.einsum('bhsf,bhsd->bhfd', phi_k, v)
        z = torch.einsum('bhsf->bhf', phi_k)
        num = torch.einsum('bhqf,bhfd->bhqd', phi_q, kv)
        den = torch.einsum('bhqf,bhf->bhq', phi_q, z)[..., None] + 1e-06
        o = num / den
        return (lambda x, *d: x.permute(*d))(o, 0, 2, 1, 3).reshape(B, S, D) @ wo

    def _B_ref(x, w1, w3, w2):
        gate = torch.einsum('bsd,df->bsf', x, w1)
        up = torch.einsum('bsd,df->bsf', x, w3)
        h = _silu(gate) * up
        out = torch.einsum('bsf,fd->bsd', h, w2)
        return out
    x = A_x
    mod = (_silu(c) @ w_mod).reshape(c.shape[0], 6, 1, -1)
    sa, ca, ga, sb, cb, gb = (mod[:, 0].clone(), mod[:, 1].clone(), mod[:, 2].clone(), mod[:, 3].clone(), mod[:, 4].clone(), mod[:, 5].clone())
    h = _layernorm(x, axis=-1) * (1 + ca) + sa
    x = x + ga * _A_ref(h, A_wqkv, A_w_phi, A_wo)
    h = _layernorm(x, axis=-1) * (1 + cb) + sb
    x = x + gb * _B_ref(h, B_w1, B_w3, B_w2)
    return x
```

```python
class Kernel:
    def __init__(self, name, grid, block, lds, vgpr=256, agpr=0, sgpr=102):
        self.name = name; self.grid = grid; self.block = block; self.lds = lds
        self.vgpr = vgpr; self.agpr = agpr; self.sgpr = sgpr
        self.L = []
        self._lab = 0
    def __call__(self, s):
        for l in s.split("\n"):
            l = l.strip()
            if l: self.L.append(l)
    def label(self, base):
        self._lab += 1
        return f"L_{self.name}_{base}_{self._lab}"
    def launch_line(self):
        g, b = self.grid, self.block
        return f"; @launch kernel={self.name} grid=({g},1,1) block=({b},1,1) lds={self.lds}"
    def text(self):
        body = "\n".join(("" if l.endswith(":") else "  ") + l for l in self.L)
        return f".globl {self.name}\n.p2align 8\n.type {self.name},@function\n{self.name}:\n{body}\n"
    def desc(self):
        acc = (self.vgpr + 3) // 4 * 4
        nfv = acc + self.agpr if self.agpr else self.vgpr
        return f""".p2align 6
.amdhsa_kernel {self.name}
  .amdhsa_next_free_vgpr {nfv}
  .amdhsa_next_free_sgpr {self.sgpr}
  .amdhsa_accum_offset {acc}
  .amdhsa_group_segment_fixed_size 0
  .amdhsa_kernarg_size 104
  .amdhsa_user_sgpr_count 2
  .amdhsa_user_sgpr_kernarg_segment_ptr 1
  .amdhsa_system_sgpr_workgroup_id_x 1
  .amdhsa_float_denorm_mode_32 3
.end_amdhsa_kernel
"""

def build_file(kernels, header=""):
    out = header
    out += "\n".join(k.launch_line() for k in kernels) + "\n"
    out += '.amdgcn_target "amdgcn-amd-amdhsa--gfx950"\n.text\n'
    seen = []
    for k in kernels:
        if k.name not in [s.name for s in seen]: seen.append(k)
    out += "".join(k.text() for k in seen)
    out += '.section .rodata,"a"\n'
    out += "".join(k.desc() for k in seen)
    return out

def srd(k, d, base, nbytes, off=0):
    if off:
        k(f"s_add_u32 s{d}, s{base}, {off}")
        k(f"s_addc_u32 s{d+1}, s{base+1}, 0")
    else:
        k(f"s_mov_b32 s{d}, s{base}")
        k(f"s_mov_b32 s{d+1}, s{base+1}")
    k(f"s_mov_b32 s{d+2}, {nbytes}")
    k(f"s_mov_b32 s{d+3}, 0x20000")

def vr(b, n): return f"v[{b}:{b+n-1}]" if n > 1 else f"v{b}"
def ar(b, n): return f"a[{b}:{b+n-1}]" if n > 1 else f"a{b}"
def sr(b, n): return f"s[{b}:{b+n-1}]" if n > 1 else f"s{b}"

WS_DBG = 200 << 20
def stamp_txt(i):
    return f"s_memtime s[{90+2*i}:{91+2*i}]\ns_memrealtime s[{72+2*i}:{73+2*i}]"
def stamp(k, i):
    if getattr(k, "instr", False):
        k(stamp_txt(i))
def stamp_flush(k, ws_base, n, vtmp, slot=0):
    if not getattr(k, "instr", False): return
    k("s_waitcnt lgkmcnt(0)")
    k(f"s_add_u32 s84, s{ws_base}, {WS_DBG + slot*(1<<20)}")
    k(f"s_addc_u32 s85, s{ws_base+1}, 0")
    k("s_mov_b32 s86, 0x100000\ns_mov_b32 s87, 0x20000")
    k(f"s_lshl_b32 s88, s2, 4\ns_add_u32 s88, s88, s{k.s_wave}\ns_lshl_b32 s88, s88, 6")
    k(f"v_mov_b32 v{vtmp+1}, s88")
    for i in range(n):
        k(f"v_mov_b32 v{vtmp}, s{90+2*i}")
        k(f"buffer_store_dword v{vtmp}, v{vtmp+1}, s[84:87], 0 offen offset:{4*i}")
        k(f"v_mov_b32 v{vtmp+2}, s{72+2*i}")
        k(f"buffer_store_dword v{vtmp+2}, v{vtmp+1}, s[84:87], 0 offen offset:{32+4*i}")
```

```python
from asmlib import *

class Item:
    __slots__ = ("kind", "txt", "key", "lgkm")
    def __init__(self, kind, txt=None, key=None, lgkm=None):
        self.kind = kind; self.txt = txt; self.key = key; self.lgkm = lgkm
def T(txt): return Item("txt", txt)
def VM(txt, key): return Item("vm", txt, key)
def WVM(key, lgkm=None): return Item("wvm", None, key, lgkm)

class Cfg:
    shape = 16
    loop_head_txt = ""
    pre_loop_txt = ()
    extra_vm = ()
    W = 1
    P = 0
    pro_units = None
    ramp_rate = None
    read_margin = 8
    step_extra = None
    PT = 0
    late_vm = None
    last_reads = ()

def gemm_main(k, c):
    NB, TB, KS, SPK, KT, NS, R, U = c.NB, c.TB, c.KS, c.SPK, c.KT, c.NS, c.R, c.U
    NSTEP = KT * SPK
    BODY = U * SPK
    assert BODY % R == 0 and BODY % 2 == 0 and c.P % BODY == 0 and c.PT % BODY == 0 and (NSTEP - c.P - c.PT) % BODY == 0
    op = "v_mfma_f32_16x16x32_bf16" if c.shape == 16 else "v_mfma_f32_32x32x16_bf16"
    ndma = len(c.dma)
    sub_per_tile = SPK * KS

    def adv_rot(s_cnt, s_off, stride, oob):
        o = [f"s_add_u32 s{s_cnt}, s{s_cnt}, 1"]
        if c.W > 1:
            o += [f"s_add_u32 s{c.s_tmp}, s{s_cnt}, s{c.s_rot}",
                  f"s_and_b32 s{c.s_tmp}, s{c.s_tmp}, {c.W-1}",
                  f"s_andn2_b32 s{s_off}, s{s_cnt}, {c.W-1}",
                  f"s_or_b32 s{s_off}, s{s_off}, s{c.s_tmp}",
                  f"s_mul_i32 s{s_off}, s{s_off}, {stride}"]
        else:
            o += [f"s_mul_i32 s{s_off}, s{s_cnt}, {stride}"]
        if oob:
            o += [f"s_cmp_ge_u32 s{s_cnt}, {KT}", f"s_cselect_b32 s{s_off}, 0x40000000, s{s_off}"]
        return [T(x) for x in o]

    def dma_unit(st, i):
        vo, loff, goff = c.dma[i]
        g = [T(f"s_add_u32 m0, s{c.s_wr}, {loff - goff}"),
             VM(f"buffer_load_dwordx4 v{vo}, {sr(c.srd_w,4)}, s{c.s_koff} offen" + (f" offset:{goff}" if goff else "") + " lds", ("dma", st))]
        if i == ndma - 1:
            g += adv_rot(c.s_kcnt, c.s_koff, c.w_ktile_stride, False)
            g += [T(f"s_add_u32 s{c.s_wr}, s{c.s_wr}, {c.stage_bytes}"),
                  T(f"s_cmp_eq_u32 s{c.s_wr}, s{c.s_wr_end}"),
                  T(f"s_cselect_b32 s{c.s_wr}, s{c.s_wr0}, s{c.s_wr}")]
        return g
    def tok_unit(step, j):
        ks, t = divmod(j, TB)
        sp = step % SPK
        sub = sp * KS + ks
        assert sub * 1024 < 4096
        g = [VM(f"buffer_load_dwordx4 {ar(c.tf(step % R, ks, t),4)}, v{c.v_tok[t]}, {sr(c.srd_t,4)}, s{c.s_tokoff} offen offset:{sub*1024}", ("tok", step))]
        if sp == SPK - 1 and j == KS * TB - 1:
            g += adv_rot(c.s_tcnt, c.s_tokoff, sub_per_tile * 1024, True)
        return g

    units = []
    for st in range(KT + NS + 1):
        for i in range(ndma):
            gi = i * SPK // ndma
            s = (st - NS) * SPK + SPK - 1 + gi
            units.append((st * SPK - 1, s, "dma", st, i))
    for step in range(NSTEP + R):
        for j in range(KS * TB):
            units.append((step, step - (R - 1), "tok", step, j))
    units.sort(key=lambda u: (u[0], 0 if u[2] == "dma" else 1, u[3], u[4]))
    issue = {}
    early = [u for u in units if u[1] < c.P]
    if c.P == 0:
        for u in units: issue.setdefault(max(-1, u[1]), []).append(u)
    else:
        pos, cnt = -1, 0
        cap = c.pro_units
        pend = list(early)
        while pend:
            took = False
            for u in pend:
                if u[1] <= pos and cnt < cap:
                    first = next(x for x in pend if x[2] == u[2])
                    if first is not u: continue
                    issue.setdefault(pos, []).append(u); pend.remove(u); cnt += 1; took = True
                    break
            if not took:
                pos += 1; cnt = 0; cap = c.ramp_rate
                assert pos < c.P, "ramp does not finish inside the peeled steps"
        for u in units:
            if u[1] >= c.P: issue.setdefault(u[1], []).append(u)
        for u in early:
            st = next(s for s, l in issue.items() if u in l)
            assert st < u[0] or (u[2] == "dma" and st <= u[0] and st == -1), (u, st)
    def unit_items(u):
        return dma_unit(u[3], u[4]) if u[2] == "dma" else tok_unit(u[3], u[4])

    def read_items(step):
        out = []
        buf = step % 2
        sp = step % SPK
        for ks in range(KS):
            for b in range(NB):
                for r in range(2):
                    va, off = c.tr_addr(b, sp*KS+ks, r)
                    out.append(T(f"ds_read_b64_tr_b16 {ar(c.wf(buf, ks, b)+2*r,2)}, v{va} offset:{off}"))
        return out
    def bar_head(stage):
        g = [WVM(("dma", stage)), T("s_barrier")]
        for vd, vl in c.v_rd:
            g.append(T(f"v_add_u32 v{vd}, s{c.s_rd}, v{vl}"))
        return g
    def bar_tail():
        return [T(f"s_add_u32 s{c.s_rd}, s{c.s_rd}, {c.stage_bytes}"),
                T(f"s_cmp_eq_u32 s{c.s_rd}, {c.lds_base + NS*c.stage_bytes}"),
                T(f"s_cselect_b32 s{c.s_rd}, {c.lds_base}, s{c.s_rd}")]

    pro = []
    def with_nop(items):
        out = []
        for x in items:
            if x.kind == "vm" and x.txt.endswith("lds"): out.append(T("s_nop 0"))
            out.append(x)
        return out
    for u in issue.get(-1, []): pro += with_nop(unit_items(u))
    for x in c.extra_vm:
        pro.append(VM(x, ("extra", 0)) if x.startswith("buffer_") else T(x))
    for x in c.pre_loop_txt:
        pro.append(WVM(("extra", 0)) if x == "@wait_extra" else T(x))
    pro += bar_head(0) + bar_tail() + read_items(0)
    pro.append(T(f"s_mov_b32 s{c.s_it}, 0"))
    if c.loop_head_txt: pro.append(T(c.loop_head_txt))

    def make_step(step):
        sp = step % SPK
        out = [WVM(("tok", step), lgkm=0)]
        mf = []
        for ks in range(KS):
            for b in range(NB):
                ts = range(TB) if b % 2 == 0 else range(TB - 1, -1, -1)
                for t in ts:
                    mf.append(T(f"{op} {c.acc(b,t)}, {ar(c.wf(step%2, ks, b),4)}, {ar(c.tf(step%R, ks, t),4)}, {c.acc(b,t)}"))
        n = len(mf)
        gaps = [[] for _ in range(n)]
        g0 = 0
        B = []
        tail = step >= NSTEP - c.PT
        if sp == SPK - 1 and not (tail and step // SPK + 1 >= KT):
            gaps[0] += bar_head(step // SPK + 1)
            g0 = 1
            B += bar_tail()
        us = issue.get(step, [])
        if tail: us = [u for u in us if u[3] < (KT if u[2] == "dma" else NSTEP)]
        a = [u for u in us if u[2] == "dma"]; b_ = [u for u in us if u[2] == "tok"]
        if step < c.P:
            seq = us
        else:
            seq = []
            while a or b_:
                if a: seq.append(a.pop(0))
                if b_: seq.append(b_.pop(0))
        for u in seq: B += unit_items(u)
        if c.late_vm and step in c.late_vm:
            for x in c.late_vm[step]:
                B.append(VM(x, ("extra", 0)) if x.startswith("buffer_") else T(x))
        A = read_items(step + 1) if step + 1 < NSTEP or c.PT == 0 else [T(x) for x in c.last_reads]
        X = [T(x) for x in (c.step_extra(step) if c.step_extra else [])]
        want = []
        ra = max(1, n - c.read_margin - g0)
        for i, x in enumerate(A): want.append((g0 + i * ra / len(A), 0, i, x))
        rb = n - g0
        for i, x in enumerate(B): want.append((g0 + (i + 0.5) * rb / len(B), 1, i, x))
        for i, x in enumerate(X): want.append((g0 + (i + 0.25) * (n - g0) / len(X), 2, i, x))
        want.sort(key=lambda w: (w[0], w[1], w[2]))
        tot = len(want)
        for j, (pos, _, _, x) in enumerate(want):
            gaps[min(n - 1, g0 + j * (n - g0) // max(tot, 1), ) if tot >= (n - g0) else min(n - 1, max(int(pos), g0))].append(x)
        if tot < (n - g0):
            for i in range(g0, n - 1):
                while len(gaps[i]) > 1 and len(gaps[i + 1]) == 0:
                    gaps[i + 1].insert(0, gaps[i].pop())
        for i in range(n):
            out.append(mf[i])
            prev = None
            for x in gaps[i]:
                if x.kind == "vm" and x.txt.endswith("lds") and prev is not None and prev.txt and (prev.txt.startswith("s_add_u32 m0") or prev.txt.startswith("s_mov_b32 m0")):
                    out.append(T("s_nop 0"))
                out.append(x); prev = x
        return out

    steps = [make_step(s) for s in range(NSTEP)]
    issued = []
    def valid(key):
        return key[0] == "extra" or key[1] < (NSTEP if key[0] == "tok" else KT)
    def run(items):
        res = []
        for x in items:
            if x.kind == "vm": issued.append(x.key)
            elif x.kind == "wvm":
                if valid(x.key):
                    last = max(i for i, kk in enumerate(issued) if kk == x.key)
                    res.append(min(63, len(issued) - 1 - last))
                else: res.append(63)
        return res
    def emit(items, ns):
        ns = list(ns)
        for x in items:
            if x.kind == "wvm":
                n = ns.pop(0)
                k(f"s_waitcnt vmcnt({n})" + (f" lgkmcnt({x.lgkm})" if x.lgkm is not None else ""))
            else: k(x.txt)
    emit(pro, run(pro))
    res = [run(s) for s in steps]
    for s in range(c.P): emit(steps[s], res[s])
    lab = k.label("loop")
    k(f"{lab}:")
    lo, hi = c.P, NSTEP - c.PT
    txt = lambda s: [x.txt for x in steps[s]]
    for j in range(BODY):
        inst = list(range(lo + j, hi, BODY))
        for s in inst: assert txt(s) == txt(inst[0]), "loop body not periodic"
        ns = [min(res[s][w] for s in inst) for w in range(len(res[inst[0]]))]
        emit(steps[inst[0]], ns)
    k(f"s_add_u32 s{c.s_it}, s{c.s_it}, 1\ns_cmp_lt_u32 s{c.s_it}, {(hi-lo)//BODY}\ns_cbranch_scc1 {lab}")
    for s in range(hi, NSTEP): emit(steps[s], res[s])
```

```python
from asmlib import *
from layout import *

def gemv_part(k, nld, s_base, s_crow, V_W, V_C, ACC, VO_W, VO_C, srd_w, srd_c):
    for i in range(nld):
        k(f"buffer_load_ushort v{V_C+i}, v{VO_C}, {sr(srd_c,4)}, s{s_crow} offen offset:{i*16}")
    for i in range(nld):
        k(f"buffer_load_dwordx4 {vr(V_W+4*i,4)}, v{VO_W}, {sr(srd_w,4)}, s{s_base} offen")
        if i < nld - 1: k(f"s_add_u32 s{s_base}, s{s_base}, {8*12288}")

def silu_bf16(k, v, t):
    k(f"v_lshlrev_b32 v{v}, 16, v{v}")
    k(f"v_mul_f32 v{t}, {-1.4426950408889634!r}, v{v}")
    k(f"v_exp_f32 v{t}, v{t}")
    k("s_nop 0")
    k(f"v_add_f32 v{t}, 1.0, v{t}")
    k(f"v_rcp_f32 v{t}, v{t}")
    k("s_nop 0")
    k(f"v_mul_f32 v{v}, v{v}, v{t}")
    k(f"v_cvt_pk_bf16_f32 v{v}, v{v}, v{v}")
    k(f"v_and_b32 v{v}, 0xffff0000, v{v}")

def gemv_compute(k, nld, V_W, V_C, ACC, T, after):
    k(f"s_waitcnt vmcnt({after + nld})")
    for i in range(nld): silu_bf16(k, V_C + i, T)
    for j in range(8): k(f"v_mov_b32 v{ACC+j}, 0")
    for i in range(nld):
        k(f"s_waitcnt vmcnt({after + nld - 1 - i})")
        for d in range(4):
            k(f"v_lshlrev_b32 v{T}, 16, v{V_W+4*i+d}")
            k(f"v_and_b32 v{T+1}, 0xffff0000, v{V_W+4*i+d}")
            k(f"v_fmac_f32 v{ACC+2*d}, v{T}, v{V_C+i}")
            k(f"v_fmac_f32 v{ACC+2*d+1}, v{T+1}, v{V_C+i}")
    k("s_nop 1")
    for j in range(4): k(f"v_permlane32_swap_b32 v{ACC+j}, v{ACC+j+4}")
    k("s_nop 1")
    for j in range(4): k(f"v_add_f32 v{ACC+j}, v{ACC+j}, v{ACC+j+4}")
    k("s_nop 1")
    for j in range(2): k(f"v_permlane16_swap_b32 v{ACC+j}, v{ACC+j+2}")
    k("s_nop 1")
    for j in range(2): k(f"v_add_f32 v{ACC+j}, v{ACC+j}, v{ACC+j+2}")
    k("s_nop 1")
    for j in range(2): k(f"v_add_f32_dpp v{ACC+j}, v{ACC+j}, v{ACC+j} row_ror:8 row_mask:0xf bank_mask:0xf")

def build_k0(name="mod_kernel", instr=False, slot=0):
    k = Kernel(name, 256, 256, 4096, vgpr=96, sgpr=102)
    k.instr = instr; k.s_wave = 13
    stamp(k, 0)
    end = k.label("end")
    k(f"s_cmp_ge_u32 s2, 256\ns_cbranch_scc1 {end}")
    k(f"s_load_dwordx4 s[4:7], s[0:1], {KA['c']}")
    k(f"s_load_dwordx2 s[8:9], s[0:1], {KA['ws']}")
    LANE, VO_W, VO_C, T, LA = 1, 2, 3, 4, 6
    k(f"v_lshrrev_b32 v{T}, 6, v0\nv_and_b32 v{LANE}, 63, v0")
    k(f"v_lshrrev_b32 v{T+1}, 3, v{LANE}")
    k(f"v_readfirstlane_b32 s13, v{T}")
    k(f"v_mul_u32_u24 v{VO_W}, 12288, v{T+1}")
    k(f"v_and_b32 v{T}, 7, v{LANE}\nv_lshl_add_u32 v{VO_W}, v{T}, 4, v{VO_W}")
    k(f"v_lshlrev_b32 v{VO_C}, 1, v{T+1}")
    k(f"v_lshlrev_b32 v{LA}, 5, v{T}")
    k(f"v_lshrrev_b32 v{T}, 5, v{LANE}\nv_lshl_add_u32 v{LA}, v{T}, 4, v{LA}")
    k(f"v_bfe_u32 v{T}, v{LANE}, 4, 1\nv_lshl_add_u32 v{LA}, v{T}, 3, v{LA}")
    k("s_lshl_b32 s14, s13, 8")
    k(f"v_add_u32 v{LA}, s14, v{LA}")
    k("s_and_b32 s15, s2, 31\ns_lshr_b32 s16, s2, 5")
    k("s_lshl_b32 s17, s16, 7\ns_lshl_b32 s18, s13, 5\ns_add_u32 s17, s17, s18")
    k("s_mul_i32 s40, s17, 12288\ns_lshl_b32 s18, s15, 7\ns_add_u32 s40, s40, s18")
    k("s_lshl_b32 s41, s17, 1")
    k("s_lshl_b32 s44, s16, 13\ns_lshl_b32 s18, s15, 8\ns_add_u32 s44, s44, s18")
    k("s_and_b32 s15, s2, 63\ns_lshr_b32 s16, s2, 6")
    k("s_lshl_b32 s17, s16, 8\ns_lshl_b32 s18, s13, 6\ns_add_u32 s17, s17, s18")
    k("s_mul_i32 s42, s17, 12288\ns_lshl_b32 s18, s15, 7\ns_add_u32 s42, s42, s18\ns_add_u32 s42, s42, 4096")
    k("s_lshl_b32 s43, s17, 1")
    k("s_lshl_b32 s45, s16, 14\ns_lshl_b32 s18, s15, 8\ns_add_u32 s45, s45, s18\ns_add_u32 s45, s45, 65536")
    k("s_waitcnt lgkmcnt(0)")
    srd(k, 20, 6, D * 6 * D * 2)
    srd(k, 24, 4, D * 2)
    srd(k, 28, 8, 131072, WS_MODP)
    WA, CA, WB, CB, ACC = 16, 8, 48, 80, 88
    srd(k, 32, 8, 16384, WS_FLAG)
    k("v_mov_b32 v88, 0\nv_mov_b32 v89, 0\nv_mov_b32 v90, 0\nv_mov_b32 v91, 0\nv_lshlrev_b32 v92, 4, v0\ns_lshl_b32 s46, s2, 12")
    k("buffer_store_dwordx4 v[88:91], v92, s[32:35], s46 offen")
    gemv_part(k, 4, 40, 41, WA, CA, ACC, VO_W, VO_C, 20, 24)
    gemv_part(k, 8, 42, 43, WB, CB, ACC, VO_W, VO_C, 20, 24)
    stamp(k, 1)
    for part, (nld, W_, C_, after, so, lo) in enumerate(((4, WA, CA, 16, 44, 0), (8, WB, CB, 1, 45, 1024))):
        gemv_compute(k, nld, W_, C_, ACC, T, after if part == 0 else 0)
        k(f"ds_write_b64 v{LA}, {vr(ACC,2)} offset:{lo}")
        k("s_waitcnt lgkmcnt(0)\ns_barrier")
        skip = k.label("skip")
        k(f"s_cmp_lg_u32 s13, {part}\ns_cbranch_scc1 {skip}")
        k(f"v_lshlrev_b32 v{T}, 2, v{LANE}")
        for w in range(4): k(f"ds_read_b32 v{ACC+w}, v{T} offset:{lo + w*256}")
        k("s_waitcnt lgkmcnt(0)")
        k(f"v_add_f32 v{ACC}, v{ACC}, v{ACC+1}\nv_add_f32 v{ACC+2}, v{ACC+2}, v{ACC+3}\nv_add_f32 v{ACC}, v{ACC}, v{ACC+2}")
        k(f"buffer_store_dword v{ACC}, v{T}, s[28:31], s{so} offen")
        k("s_nop 1")
        k(f"{skip}:")
        if part == 0: stamp(k, 2)
    stamp(k, 3)
    if instr: k("s_waitcnt vmcnt(0)")
    stamp(k, 4)
    stamp_flush(k, 8, 5, 4, slot=slot)
    k(f"{end}:\ns_endpgm")
    return k

def red8(k, x, t):
    k("s_nop 1")
    k(f"v_add_f32_dpp v{x}, v{x}, v{x} quad_perm:[1,0,3,2] row_mask:0xf bank_mask:0xf")
    k("s_nop 1")
    k(f"v_add_f32_dpp v{x}, v{x}, v{x} quad_perm:[2,3,0,1] row_mask:0xf bank_mask:0xf")
    k("s_nop 1")
    k(f"v_add_f32_dpp v{x}, v{x}, v{x} row_half_mirror row_mask:0xf bank_mask:0xf")

def build_k1(name="h_kernel", instr=False, slot=0):
    k = Kernel(name, 256, 256, 8192 + 512, vgpr=160, sgpr=102)
    k.instr = instr; k.s_wave = 13
    stamp(k, 0)
    end = k.label("end")
    k(f"s_cmp_ge_u32 s2, 256\ns_cbranch_scc1 {end}")
    k(f"s_load_dwordx2 s[4:5], s[0:1], {KA['x']}")
    k(f"s_load_dwordx2 s[8:9], s[0:1], {KA['ws']}")
    LANE, T, VX, VP, VS, VL = 1, 2, 6, 7, 8, 9
    X = 16
    PR = 32
    XF = 96
    M = 128
    k(f"v_lshrrev_b32 v{T}, 6, v0\nv_and_b32 v{LANE}, 63, v0")
    k(f"v_lshrrev_b32 v{T+1}, 3, v{LANE}\nv_and_b32 v{T+2}, 7, v{LANE}")
    k(f"v_readfirstlane_b32 s13, v{T}")
    k(f"v_lshlrev_b32 v{VX}, 11, v{T+1}\nv_lshl_add_u32 v{VX}, v{T+2}, 4, v{VX}")
    k("s_lshl_b32 s14, s2, 14\ns_lshl_b32 s15, s13, 9\ns_add_u32 s14, s14, s15")
    k(f"v_lshlrev_b32 v{VP}, 5, v0")
    k(f"v_lshrrev_b32 v{VS}, 2, v{T+2}\nv_lshlrev_b32 v{VS}, 10, v{VS}")
    k(f"v_and_b32 v{T+3}, 3, v{T+2}\nv_lshl_add_u32 v{VS}, v{T+3}, 8, v{VS}")
    k(f"v_lshl_add_u32 v{VS}, v{T+1}, 4, v{VS}")
    k("s_lshr_b32 s16, s2, 1\ns_lshl_b32 s16, s16, 15\ns_lshl_b32 s17, s13, 13\ns_add_u32 s16, s16, s17")
    k("s_and_b32 s17, s2, 1\ns_lshl_b32 s17, s17, 7\ns_add_u32 s16, s16, s17\ns_add_u32 s17, s16, 4096")
    k(f"v_lshlrev_b32 v{VL}, 5, v{T+2}\ns_lshl_b32 s18, s13, 10\nv_add_u32 v{VL}, s18, v{VL}")
    k("s_waitcnt lgkmcnt(0)")
    srd(k, 20, 4, S * D * 2)
    srd(k, 24, 8, 131072, WS_MODP)
    srd(k, 28, 8, S * D * 2, WS_H)
    srd(k, 32, 8, 6 * 4096, WS_MOD)
    for i in range(4): k(f"buffer_load_dwordx4 {vr(X+4*i,4)}, v{VX}, s[20:23], s14 offen offset:{i*128}")
    for p in range(8):
        k(f"s_mov_b32 s19, {p*8192}")
        for h in range(2): k(f"buffer_load_dwordx4 {vr(PR+8*p+4*h,4)}, v{VP}, s[24:27], s19 offen offset:{h*16}")
    stamp(k, 1)
    k("s_waitcnt vmcnt(16)")
    for d in range(16):
        k(f"v_lshlrev_b32 v{XF+2*d}, 16, v{X+d}\nv_and_b32 v{XF+2*d+1}, 0xffff0000, v{X+d}")
    SU = 10
    k(f"v_pk_add_f32 {vr(SU,2)}, {vr(XF,2)}, {vr(XF+2,2)}")
    for d in range(2, 16): k(f"v_pk_add_f32 {vr(SU,2)}, {vr(SU,2)}, {vr(XF+2*d,2)}")
    k(f"v_add_f32 v{SU}, v{SU}, v{SU+1}")
    red8(k, SU, T)
    k(f"v_lshlrev_b32 v{T+3}, 4, v{T+1}\ns_lshl_b32 s18, s13, 2\nv_add_u32 v{T}, s18, v{T+3}")
    k(f"ds_write_b32 v{T}, v{SU} offset:8192")
    k("s_waitcnt lgkmcnt(0)\ns_barrier")
    k(f"ds_read_b128 {vr(12,4)}, v{T+3} offset:8192")
    k("s_waitcnt lgkmcnt(0)")
    k(f"v_add_f32 v12, v12, v13\nv_add_f32 v14, v14, v15\nv_add_f32 v12, v12, v14")
    k(f"v_mul_f32 v12, {-1.0/1024!r}, v12\nv_mov_b32 v13, v12")
    k(f"v_mov_b32 v{SU}, 0\nv_mov_b32 v{SU+1}, 0")
    for d in range(16):
        k(f"v_pk_add_f32 {vr(XF+2*d,2)}, {vr(XF+2*d,2)}, {vr(12,2)}")
        k(f"v_pk_fma_f32 {vr(SU,2)}, {vr(XF+2*d,2)}, {vr(XF+2*d,2)}, {vr(SU,2)}")
    k(f"v_add_f32 v{SU}, v{SU}, v{SU+1}")
    red8(k, SU, T)
    k(f"ds_write_b32 v{T}, v{SU} offset:{8192+256}")
    k("s_waitcnt vmcnt(0)")
    for p in range(1, 8):
        for j in range(4): k(f"v_pk_add_f32 {vr(PR+2*j,2)}, {vr(PR+2*j,2)}, {vr(PR+8*p+2*j,2)}")
    for j in range(4):
        k(f"v_cvt_pk_bf16_f32 v{PR+8+j}, v{PR+2*j}, v{PR+2*j+1}")
    for j in range(4):
        k(f"v_lshlrev_b32 v{PR+2*j}, 16, v{PR+8+j}\nv_and_b32 v{PR+2*j+1}, 0xffff0000, v{PR+8+j}")
    sk = k.label("noca")
    k(f"s_cmp_lt_u32 s13, 2\ns_cbranch_scc1 {sk}")
    for j in range(8): k(f"v_add_f32 v{PR+j}, 1.0, v{PR+j}")
    for j in range(4): k(f"v_cvt_pk_bf16_f32 v{PR+8+j}, v{PR+2*j}, v{PR+2*j+1}")
    for j in range(4): k(f"v_lshlrev_b32 v{PR+2*j}, 16, v{PR+8+j}\nv_and_b32 v{PR+2*j+1}, 0xffff0000, v{PR+8+j}")
    k(f"{sk}:")
    k(f"ds_write_b128 v{VP}, {vr(PR,4)}\nds_write_b128 v{VP}, {vr(PR+4,4)} offset:16")
    k("s_waitcnt lgkmcnt(0)\ns_barrier")
    k(f"ds_read_b128 {vr(12,4)}, v{T+3} offset:{8192+256}")
    k("s_waitcnt lgkmcnt(0)")
    k(f"v_add_f32 v12, v12, v13\nv_add_f32 v14, v14, v15\nv_add_f32 v12, v12, v14")
    k(f"v_mov_b32 v13, 0x3727c5ac\nv_fmac_f32 v13, {1.0/1024!r}, v12\nv_rsq_f32 v12, v13\ns_nop 0\nv_mov_b32 v13, v12")
    stamp(k, 2)
    for i in range(4):
        for h in range(2):
            k(f"ds_read_b128 {vr(M+4*h,4)}, v{VL} offset:{i*256+h*16}")
            k(f"ds_read_b128 {vr(M+8+4*h,4)}, v{VL} offset:{4096+i*256+h*16}")
        for j in range(4): k(f"v_pk_mul_f32 {vr(XF+8*i+2*j,2)}, {vr(XF+8*i+2*j,2)}, {vr(12,2)}")
        k("s_waitcnt lgkmcnt(0)")
        for j in range(4): k(f"v_pk_fma_f32 {vr(XF+8*i+2*j,2)}, {vr(XF+8*i+2*j,2)}, {vr(M+8+2*j,2)}, {vr(M+2*j,2)}")
        for j in range(4): k(f"v_cvt_pk_bf16_f32 v{X+4*i+j}, v{XF+8*i+2*j}, v{XF+8*i+2*j+1}")
        k(f"buffer_store_dwordx4 {vr(X+4*i,4)}, v{VS}, s[28:31], s{16 + i//2} offen offset:{(i%2)*2048}")
    fin = k.label("fin")
    k(f"s_cmp_ge_u32 s2, 16\ns_cbranch_scc1 {fin}")
    k(f"v_lshlrev_b32 v{T}, 2, v0\ns_lshl_b32 s18, s2, 10\ns_add_u32 s19, s18, 65536")
    for p in range(4):
        k(f"buffer_load_dword v{PR+p}, v{T}, s[24:27], s19 offen\ns_add_u32 s19, s19, 16384")
    k("s_waitcnt vmcnt(0)")
    k(f"v_add_f32 v{PR}, v{PR}, v{PR+1}\nv_add_f32 v{PR+2}, v{PR+2}, v{PR+3}\nv_add_f32 v{PR}, v{PR}, v{PR+2}")
    k(f"v_cvt_pk_bf16_f32 v{PR}, v{PR}, v{PR}\nv_and_b32 v{PR}, 0xffff0000, v{PR}")
    nc = k.label("nocb")
    k(f"s_lshr_b32 s19, s2, 2\ns_cmp_lg_u32 s19, 2\ns_cbranch_scc1 {nc}")
    k(f"v_add_f32 v{PR}, 1.0, v{PR}\nv_cvt_pk_bf16_f32 v{PR}, v{PR}, v{PR}\nv_and_b32 v{PR}, 0xffff0000, v{PR}")
    k(f"{nc}:")
    k("s_add_u32 s18, s18, 8192")
    k(f"buffer_store_dword v{PR}, v{T}, s[32:35], s18 offen")
    k(f"{fin}:")
    stamp(k, 3)
    if instr: k("s_waitcnt vmcnt(0)")
    stamp(k, 4)
    stamp_flush(k, 8, 5, 2, slot=slot)
    k(f"{end}:\ns_endpgm")
    return k

if __name__ == "__main__":
    open("front.s", "w").write(build_file([build_k0(instr=True, slot=0), build_k1(instr=True, slot=1)]))

def lane_reduce8(k, ACC):
    k("s_nop 1")
    for j in range(4): k(f"v_permlane32_swap_b32 v{ACC+j}, v{ACC+j+4}")
    k("s_nop 1")
    for j in range(4): k(f"v_add_f32 v{ACC+j}, v{ACC+j}, v{ACC+j+4}")
    k("s_nop 1")
    for j in range(2): k(f"v_permlane16_swap_b32 v{ACC+j}, v{ACC+j+2}")
    k("s_nop 1")
    for j in range(2): k(f"v_add_f32 v{ACC+j}, v{ACC+j}, v{ACC+j+2}")
    k("s_nop 1")
    for j in range(2): k(f"v_add_f32_dpp v{ACC+j}, v{ACC+j}, v{ACC+j} row_ror:8 row_mask:0xf bank_mask:0xf")

def build_ut(name="ut_kernel", instr=False, slot=0):
    k = Kernel(name, 448, 256, 4096, vgpr=96, sgpr=102)
    k.instr = instr; k.s_wave = 13
    stamp(k, 0)
    end = k.label("end")
    k(f"s_cmp_ge_u32 s2, 448\ns_cbranch_scc1 {end}")
    k(f"s_load_dwordx4 s[4:7], s[0:1], {KA['w1']}")
    k(f"s_load_dwordx2 s[8:9], s[0:1], {KA['ws']}")
    LANE, VO_W, VO_C, T, LA = 1, 2, 3, 4, 6
    k(f"v_lshrrev_b32 v{T}, 6, v0\nv_and_b32 v{LANE}, 63, v0")
    k(f"v_lshrrev_b32 v{T+1}, 3, v{LANE}")
    k(f"v_readfirstlane_b32 s13, v{T}")
    k(f"v_mul_u32_u24 v{VO_W}, 7168, v{T+1}")
    k(f"v_and_b32 v{T}, 7, v{LANE}\nv_lshl_add_u32 v{VO_W}, v{T}, 4, v{VO_W}")
    k(f"v_lshlrev_b32 v{VO_C}, 2, v{T+1}")
    k(f"v_lshlrev_b32 v{LA}, 5, v{T}")
    k(f"v_lshrrev_b32 v{T}, 5, v{LANE}\nv_lshl_add_u32 v{LA}, v{T}, 4, v{LA}")
    k(f"v_bfe_u32 v{T}, v{LANE}, 4, 1\nv_lshl_add_u32 v{LA}, v{T}, 3, v{LA}")
    k("s_lshl_b32 s14, s13, 8")
    k(f"v_add_u32 v{LA}, s14, v{LA}")
    k("s_mul_i32 s15, s2, 586\ns_lshr_b32 s15, s15, 16")
    k("s_mul_i32 s16, s15, 112\ns_sub_u32 s16, s2, s16")
    k("s_cmp_ge_u32 s16, 56\ns_cselect_b32 s17, 1, 0")
    k("s_mul_i32 s18, s17, 56\ns_sub_u32 s16, s16, s18")
    k("s_lshl_b32 s18, s15, 8\ns_lshl_b32 s19, s13, 6\ns_add_u32 s18, s18, s19")
    k("s_mul_i32 s40, s18, 7168\ns_lshl_b32 s19, s16, 7\ns_add_u32 s40, s40, s19")
    k(f"s_lshl_b32 s41, s18, 2\ns_add_u32 s42, s41, {3*4096}\ns_add_u32 s41, s41, {4*4096}")
    k("s_waitcnt lgkmcnt(0)")
    k("s_cmp_eq_u32 s17, 0\ns_cselect_b32 s20, s4, s6\ns_cselect_b32 s21, s5, s7")
    k(f"s_mov_b32 s22, {D*F*2}\ns_mov_b32 s23, 0x20000")
    srd(k, 24, 8, 6 * 4096, WS_MOD)
    srd(k, 28, 8, 32 * 14336, WS_UT)
    W_, CU, CT, AU, AT = 16, 48, 56, 64, 72
    for i in range(8):
        k(f"buffer_load_dwordx4 {vr(W_+4*i,4)}, v{VO_W}, s[20:23], s40 offen")
        if i < 7: k(f"s_add_u32 s40, s40, {8*7168}")
    for i in range(8):
        k(f"buffer_load_dword v{CU+i}, v{VO_C}, s[24:27], s41 offen offset:{i*32}")
        k(f"buffer_load_dword v{CT+i}, v{VO_C}, s[24:27], s42 offen offset:{i*32}")
    for j in range(16): k(f"v_mov_b32 v{AU+j}, 0")
    k("s_waitcnt vmcnt(0)")
    for i in range(8):
        for d in range(4):
            k(f"v_lshlrev_b32 v{T}, 16, v{W_+4*i+d}")
            k(f"v_and_b32 v{T+1}, 0xffff0000, v{W_+4*i+d}")
            k(f"v_fmac_f32 v{AU+2*d}, v{T}, v{CU+i}\nv_fmac_f32 v{AU+2*d+1}, v{T+1}, v{CU+i}")
            k(f"v_fmac_f32 v{AT+2*d}, v{T}, v{CT+i}\nv_fmac_f32 v{AT+2*d+1}, v{T+1}, v{CT+i}")
    lane_reduce8(k, AU); lane_reduce8(k, AT)
    k(f"ds_write_b64 v{LA}, {vr(AU,2)}\nds_write_b64 v{LA}, {vr(AT,2)} offset:1024")
    k("s_waitcnt lgkmcnt(0)\ns_barrier")
    k(f"s_cmp_lg_u32 s13, 0\ns_cbranch_scc1 {end}")
    k(f"v_lshlrev_b32 v{T}, 2, v{LANE}")
    for w in range(4):
        k(f"ds_read_b32 v{AU+w}, v{T} offset:{w*256}\nds_read_b32 v{AT+w}, v{T} offset:{1024+w*256}")
    k(f"s_lshl_b32 s19, s16, 6\nv_add_u32 v10, s19, v{LANE}")
    k("v_mul_u32_u24 v11, 9363, v10\nv_lshrrev_b32 v11, 20, v11")
    k("v_mul_u32_u24 v12, 112, v11\nv_sub_u32 v12, v10, v12")
    k("v_lshrrev_b32 v13, 4, v12\nv_and_b32 v14, 1, v11\nv_sub_u32 v13, v13, v14\nv_min_u32 v13, 6, v13")
    k("v_mul_u32_u24 v11, 14336, v11\nv_lshl_add_u32 v11, v13, 11, v11")
    k("v_and_b32 v12, 15, v12\nv_lshl_add_u32 v11, v12, 4, v11")
    k("s_lshl_b32 s19, s17, 10\ns_lshl_b32 s18, s15, 8\ns_add_u32 s19, s19, s18")
    k("s_waitcnt lgkmcnt(0)")
    for A_ in (AU, AT):
        k(f"v_add_f32 v{A_}, v{A_}, v{A_+1}\nv_add_f32 v{A_+2}, v{A_+2}, v{A_+3}\nv_add_f32 v{A_}, v{A_}, v{A_+2}")
        k(f"v_cvt_pk_bf16_f32 v{A_+1}, v{A_}, v{A_}\nv_and_b32 v{A_+1}, 0xffff0000, v{A_+1}\nv_sub_f32 v{A_+1}, v{A_}, v{A_+1}")
    k(f"v_cvt_pk_bf16_f32 v16, v{AU}, v{AU+1}\nv_cvt_pk_bf16_f32 v17, v{AU}, v{AT}\nv_cvt_pk_bf16_f32 v18, v{AT+1}, v{AT}\nv_mov_b32 v19, 0")
    k("buffer_store_dwordx4 v[16:19], v11, s[28:31], s19 offen")
    k(f"{end}:\ns_endpgm")
    return k
```

```python
from asmlib import *
from gemm import *
from layout import *
LOG2E = 1.4426950408889634

def treduce4(k, op, A, T):
    a, b, c, d = A
    k("s_nop 1")
    k(f"v_permlane32_swap_b32 v{a}, v{b}\nv_permlane32_swap_b32 v{c}, v{d}")
    k("s_nop 1")
    k(f"{op} v{a}, v{a}, v{b}\n{op} v{c}, v{c}, v{d}")
    k("s_nop 1")
    k(f"v_permlane16_swap_b32 v{a}, v{c}")
    k("s_nop 1")
    k(f"{op} v{a}, v{a}, v{c}")
    k(f"v_mov_b32 v{c}, v{a}")
    k("s_nop 1")
    k(f"v_permlane16_swap_b32 v{a}, v{c}")
    k("s_nop 1")
    k(f"v_mov_b32 v{b}, v{a}\nv_mov_b32 v{d}, v{c}")
    k("s_nop 1")
    k(f"v_permlane32_swap_b32 v{a}, v{b}\nv_permlane32_swap_b32 v{c}, v{d}")
    k("s_nop 1")

def build_gemm1(name="gemm1_kernel", NS=3, R=4, U=2, instr=False, W=8, P=4, pro_units=8, ramp_rate=12, read_margin=6, slot=0):
    NB, TB = 12, 2
    STAGE = 25344
    PHK = NS * STAGE
    VV = PHK + 2 * 17408
    WPH = VV + 2 * 9216
    lds = WPH + 4096
    A_WF, A_TF = 0, 96
    A_PH = 128
    assert A_TF + R * 8 <= A_PH
    k = Kernel(name, 256, 256, lds, vgpr=256, agpr=A_PH + 16, sgpr=102)
    k.instr = instr; k.s_wave = 13
    stamp(k, 0)
    V_RD, V_RDL, V_DMA, V_TOK, LANE, L16 = 96, 97, 98, 102, 104, 105
    VT = 106
    end = k.label("end")
    k(f"s_cmp_ge_u32 s2, 256\ns_cbranch_scc1 {end}")
    k(f"s_load_dwordx4 s[4:7], s[0:1], {KA['wqkv']}")
    k(f"s_load_dwordx2 s[8:9], s[0:1], {KA['ws']}")
    k("s_and_b32 s3, s2, 7\ns_lshr_b32 s10, s2, 3")
    k("s_and_b32 s12, s3, 1\ns_lshl_b32 s12, s12, 3\ns_lshr_b32 s14, s10, 2\ns_add_u32 s12, s12, s14")
    k("s_lshr_b32 s11, s3, 1\ns_lshl_b32 s11, s11, 2\ns_and_b32 s15, s10, 3\ns_add_u32 s11, s11, s15")
    k(f"v_lshrrev_b32 v{VT}, 6, v0\nv_and_b32 v{LANE}, 63, v0")
    k(f"s_lshl_b32 s55, s15, 1\ns_add_u32 s55, s55, s14\ns_and_b32 s55, s55, {W-1}")
    k(f"v_readfirstlane_b32 s13, v{VT}")
    k(f"v_lshlrev_b32 v{L16}, 4, v{LANE}")
    k("s_lshr_b32 s14, s13, 1\ns_and_b32 s15, s13, 1")
    k(f"v_lshrrev_b32 v{VT+1}, 3, v{LANE}")
    k(f"v_and_b32 v{VT+2}, 4, v{VT+1}")
    k(f"v_bfe_u32 v{VT+3}, v{VT+1}, 1, 1\nv_or_b32 v{VT+2}, v{VT+2}, v{VT+3}")
    k(f"v_and_b32 v{VT+3}, 1, v{VT+1}\nv_lshl_or_b32 v{VT+2}, v{VT+3}, 1, v{VT+2}")
    k(f"v_mul_u32_u24 v{VT+2}, {4*6144}, v{VT+2}")
    k(f"v_and_b32 v{VT+3}, 7, v{LANE}\nv_lshl_add_u32 v{VT+2}, v{VT+3}, 4, v{VT+2}")
    k("s_lshl_b32 s16, s14, 5\ns_lshl_b32 s17, s15, 1\ns_add_u32 s16, s16, s17\ns_mul_i32 s16, s16, 6144")
    k("s_lshl_b32 s17, s11, 7\ns_add_u32 s16, s16, s17")
    k(f"v_add_u32 v{V_DMA}, s16, v{VT+2}")
    k(f"v_add_u32 v{V_DMA+1}, 6144, v{V_DMA}\nv_add_u32 v{V_DMA+2}, 4096, v{V_DMA}\nv_add_u32 v{V_DMA+3}, {6144+4096}, v{V_DMA}")
    k(f"v_bfe_u32 v{VT+1}, v{LANE}, 2, 2\nv_mul_u32_u24 v{VT+1}, 1056, v{VT+1}")
    k(f"v_lshrrev_b32 v{VT+2}, 5, v{LANE}\nv_lshl_add_u32 v{VT+1}, v{VT+2}, 9, v{VT+1}")
    k(f"v_bfe_u32 v{VT+2}, v{LANE}, 4, 1\nv_lshl_add_u32 v{VT+1}, v{VT+2}, 7, v{VT+1}")
    k(f"v_and_b32 v{VT+3}, 3, v{LANE}\nv_lshl_add_u32 v{V_RDL}, v{VT+3}, 3, v{VT+1}")
    k("s_lshl_b32 s18, s12, 3\ns_lshl_b32 s19, s13, 1\ns_add_u32 s18, s18, s19")
    k("s_lshl_b32 s19, s18, 15")
    k(f"v_add_u32 v{V_TOK}, s19, v{L16}\nv_add_u32 v{V_TOK+1}, 0x8000, v{V_TOK}")
    k("s_mul_i32 s45, s14, 4224\ns_mul_i32 s46, s15, 2112\ns_add_u32 s45, s45, s46")
    k(f"s_mov_b32 s44, s45\ns_add_u32 s46, s45, {NS*STAGE}")
    k(f"s_mul_i32 s47, s55, {64*6144}\ns_lshl_b32 s48, s55, 11\ns_mov_b32 s49, 0\ns_mov_b32 s56, 0\ns_mov_b32 s57, 0")
    k(f"s_lshl_b32 s40, s11, 12\ns_lshl_b32 s41, s13, 10\ns_add_u32 s40, s40, s41\ns_add_u32 s41, s41, {WPH}")
    k("s_waitcnt lgkmcnt(0)")
    srd(k, 20, 4, D * 3 * D * 2)
    srd(k, 24, 8, S * D * 2, WS_H)
    c = Cfg()
    c.NB, c.TB, c.KS, c.SPK, c.KT, c.NS, c.R, c.U = NB, TB, 1, 2, 16, NS, R, U
    c.acc = lambda b, t: vr((b * TB + t) * 4, 4)
    c.wf = lambda buf, ks, b: A_WF + (buf * NB + b) * 4
    c.tf = lambda slot, ks, t: A_TF + (slot * TB + t) * 4
    c.v_rd = [(V_RD, V_RDL)]
    c.tr_addr = lambda b, sub, r: (V_RD, (b // 4) * 8448 + sub * 4224 + r * 256 + (b % 4) * 32)
    c.stage_bytes, c.lds_base = STAGE, 0
    c.dma = [(V_DMA, 0, 0), (V_DMA + 1, 1056, 0), (V_DMA, 8448, 2048), (V_DMA + 1, 8448 + 1056, 2048), (V_DMA + 2, 16896, 0), (V_DMA + 3, 16896 + 1056, 0)]
    c.srd_w, c.srd_t = 20, 24
    c.v_tok = [V_TOK, V_TOK + 1]
    c.s_wr, c.s_wr0, c.s_wr_end, c.s_koff, c.s_tokoff, c.s_rd, c.s_it = 44, 45, 46, 47, 48, 49, 50
    c.s_rot, c.s_kcnt, c.s_tcnt, c.s_tmp = 55, 56, 57, 58
    c.w_ktile_stride = 64 * 6144
    c.W, c.P, c.pro_units, c.ramp_rate, c.read_margin = W, P, pro_units, ramp_rate, read_margin
    c.PT = U * 2
    class Pp:
        def __init__(self): self.L = []
        def __call__(self, s): self.L += [x for x in s.split("\n") if x.strip()]
    p = Pp()
    srd(p, 28, 6, H * 2048)
    srd(p, 32, 8, 2 << 20, WS_KVP)
    srd(p, 36, 8, 128 << 10, WS_ZP)
    srd(p, 60, 8, 16384, WS_FLAG)
    srd(p, 64, 8, S * D * 2, WS_O)
    for i in range(96): p(f"v_mov_b32 v{i}, 0")
    A_PW, A_VW, A_PR, A_VR, A_WR = 110, 111, 112, 113, 114
    p(f"v_and_b32 v{VT}, 15, v{LANE}\ns_lshl_b32 s42, s13, 5\nv_add_u32 v{VT}, s42, v{VT}")
    p(f"v_lshrrev_b32 v{VT+1}, 4, v{LANE}\nv_lshlrev_b32 v{VT+1}, 3, v{VT+1}")
    p(f"v_mul_u32_u24 v{A_PW}, 136, v{VT}\nv_add_u32 v{A_PW}, v{A_PW}, v{VT+1}\nv_add_u32 v{A_PW}, {PHK}, v{A_PW}")
    p(f"v_mul_u32_u24 v{A_VW}, 72, v{VT}\nv_add_u32 v{A_VW}, v{A_VW}, v{VT+1}\nv_add_u32 v{A_VW}, {VV}, v{A_VW}")
    p(f"v_lshrrev_b32 v{VT}, 2, v{LANE}\nv_and_b32 v{VT+1}, 3, v{LANE}\nv_lshlrev_b32 v{VT+1}, 3, v{VT+1}")
    p(f"s_mul_i32 s42, s14, 17408\ns_lshl_b32 s43, s15, 6\ns_add_u32 s42, s42, s43\ns_add_u32 s42, s42, {PHK}")
    p(f"v_mul_u32_u24 v{A_PR}, 136, v{VT}\nv_add_u32 v{A_PR}, v{A_PR}, v{VT+1}\nv_add_u32 v{A_PR}, s42, v{A_PR}")
    p(f"s_mul_i32 s42, s14, 9216\ns_add_u32 s42, s42, {VV}")
    p(f"v_mul_u32_u24 v{A_VR}, 72, v{VT}\nv_add_u32 v{A_VR}, v{A_VR}, v{VT+1}\nv_add_u32 v{A_VR}, s42, v{A_VR}")
    p(f"v_lshl_add_u32 v{A_WR}, v{VT}, 6, v{VT+1}\nv_add_u32 v{A_WR}, {WPH}, v{A_WR}")
    ONES, SEL = 116, 120
    for j in range(4): p(f"v_mov_b32 v{ONES+j}, 0x3f803f80")
    p(f"v_bfe_u32 v{VT}, v{LANE}, 2, 2\nv_lshrrev_b32 v{VT+1}, 4, v{LANE}")
    p(f"v_cmp_eq_u32 vcc, v{VT}, v{VT+1}")
    p(f"v_and_b32 v{VT}, 1, v{LANE}\nv_lshlrev_b32 v{VT}, 4, v{VT}\nv_mov_b32 v{VT+1}, 0x3f80\nv_lshlrev_b32 v{VT+1}, v{VT}, v{VT+1}")
    p(f"v_cndmask_b32 v{VT+1}, 0, v{VT+1}, vcc")
    p(f"v_and_b32 v{VT}, 2, v{LANE}\nv_cmp_eq_u32 vcc, 0, v{VT}")
    for j in (0, 1, 4, 5): p(f"v_mov_b32 v{SEL+j}, 0")
    p(f"v_cndmask_b32 v{SEL+2}, 0, v{VT+1}, vcc\nv_cndmask_b32 v{SEL+3}, v{VT+1}, 0, vcc")
    p(f"s_mov_b32 s52, {LOG2E!r}\ns_mov_b32 s53, {LOG2E!r}")
    c.pre_loop_txt = p.L
    c.late_vm = {P - 1: ["s_mov_b32 m0, s41", f"buffer_load_dwordx4 v{L16}, s[28:31], s40 offen lds"]}
    c.last_reads = [f"ds_read_b64_tr_b16 {ar(A_PH+(hh*2+fb)*4+2*r,2)}, v{A_WR} offset:{hh*2048+r*1024+fb*32}" for hh in range(2) for fb in range(2) for r in range(2)]
    c.loop_head_txt = stamp_txt(1) if instr else ""
    gemm_main(k, c)
    stamp(k, 2)
    A = lambda b, t: (b * TB + t) * 4
    BF, P1, P2, MX, MN = 128, 144, 176, 208, 216
    EK = 224
    mf = "v_mfma_f32_16x16x32_bf16"
    groups = [(hh, t) for hh in range(2) for t in range(2)]
    def fm_part1(seg):
        for g, (hh, t) in enumerate(groups):
            for db in range(2):
                a = A(seg * 4 + hh * 2 + db, t)
                k(f"v_cvt_pk_bf16_f32 v{BF+g*4+db*2}, v{a}, v{a+1}\nv_cvt_pk_bf16_f32 v{BF+g*4+db*2+1}, v{a+2}, v{a+3}")
        k("s_nop 1")
        for g, (hh, t) in enumerate(groups):
            for fb in range(2):
                k(f"{mf} {vr(P1+g*8+fb*4,4)}, {ar(A_PH+(hh*2+fb)*4,4)}, {vr(BF+g*4,4)}, 0")
    def fm_part2():
        for op3, op2, M in (("v_max3_f32", "v_max_f32", MX), ("v_min3_f32", "v_min_f32", MN)):
            for g in range(4):
                b = P1 + g * 8
                k(f"{op3} v{M+2*g}, v{b}, v{b+1}, v{b+2}\n{op3} v{M+2*g}, v{M+2*g}, v{b+3}, v{b+4}\n{op3} v{M+2*g}, v{M+2*g}, v{b+5}, v{b+6}\n{op2} v{M+2*g}, v{M+2*g}, v{b+7}")
            treduce4(k, op2, [M + 2 * g for g in range(4)], None)
        for g in range(4):
            k(f"v_mul_f32 v{MX+2*g}, {-LOG2E!r}, v{MX+2*g}\nv_mul_f32 v{MN+2*g}, {LOG2E!r}, v{MN+2*g}")
    def fm_part3(E):
        for g in range(4):
            for j in range(4):
                b = g * 8 + 2 * j
                k(f"v_pk_fma_f32 {vr(P2+b,2)}, {vr(P1+b,2)}, s[52:53], {vr(MN+2*g,2)} op_sel_hi:[1,1,0] neg_lo:[1,0,0] neg_hi:[1,0,0]")
                k(f"v_pk_fma_f32 {vr(P1+b,2)}, {vr(P1+b,2)}, s[52:53], {vr(MX+2*g,2)} op_sel_hi:[1,1,0]")
            for j in range(8): k(f"v_exp_f32 v{P1+g*8+j}, v{P1+g*8+j}")
            for j in range(8): k(f"v_exp_f32 v{P2+g*8+j}, v{P2+g*8+j}")
            k("s_nop 0")
            for sg, PP in enumerate((P1, P2)):
                for j in range(4): k(f"v_cvt_pk_bf16_f32 v{E+(g*2+sg)*4+j}, v{PP+g*8+2*j}, v{PP+g*8+2*j+1}")
    k("s_waitcnt lgkmcnt(0)\ns_nop 7")
    fm_part1(1)
    for g, (hh, t) in enumerate(groups):
        for db in range(2):
            a = A(8 + hh * 2 + db, t)
            k(f"v_cvt_pk_bf16_f32 v{a}, v{a}, v{a+1}\nv_cvt_pk_bf16_f32 v{a+1}, v{a+2}, v{a+3}")
            k(f"ds_write_b64 v{A_VW}, {vr(a,2)} offset:{hh*9216 + t*16*72 + db*32}")
    fm_part2()
    fm_part3(EK)
    SM = 32
    k("s_nop 1")
    for i in range(8): k(f"{mf} {vr(SM+4*i,4)}, {vr(ONES,4)}, {vr(EK+4*i,4)}, 0")
    k("s_nop 7")
    for i in range(8): k(f"v_rcp_f32 v{SM+4*i}, v{SM+4*i}")
    for g, (hh, t) in enumerate(groups):
        for sg, PP in enumerate((P1, P2)):
            for j in range(4):
                k(f"v_pk_mul_f32 {vr(PP+g*8+2*j,2)}, {vr(PP+g*8+2*j,2)}, {vr(SM+(g*2+sg)*4,2)} op_sel_hi:[1,0]")
            for fb in range(2):
                b = PP + g * 8 + fb * 4
                k(f"v_cvt_pk_bf16_f32 v{b}, v{b}, v{b+1}\nv_cvt_pk_bf16_f32 v{b+1}, v{b+2}, v{b+3}")
                k(f"ds_write_b64 v{A_PW}, {vr(b,2)} offset:{hh*17408 + t*16*136 + sg*64 + fb*32}")
    k("s_waitcnt lgkmcnt(0)\ns_barrier")
    for s_ in range(4):
        for r in range(2):
            for fb in range(2): k(f"ds_read_b64_tr_b16 {ar(s_*16+fb*4+2*r,2)}, v{A_PR} offset:{(32*s_+16*r)*136 + fb*32}")
            for db in range(2): k(f"ds_read_b64_tr_b16 {ar(s_*16+8+db*4+2*r,2)}, v{A_VR} offset:{(32*s_+16*r)*72 + db*32}")
    fm_part1(0)
    KV, ZZ = 64, 80
    for s_ in range(4):
        k(f"s_waitcnt lgkmcnt({min(15, 24 - 8*s_)})")
        for fb in range(2):
            for db in range(2):
                d = vr(KV + (db * 2 + fb) * 4, 4)
                k(f"{mf} {d}, {ar(s_*16+fb*4,4)}, {ar(s_*16+8+db*4,4)}, {'0' if s_ == 0 else d}")
            d = vr(ZZ + fb * 4, 4)
            k(f"{mf} {d}, {ar(s_*16+fb*4,4)}, {vr(ONES,4)}, {'0' if s_ == 0 else d}")
    k("s_lshl_b32 s42, s11, 2\ns_add_u32 s42, s42, s13")
    k("s_lshl_b32 s43, s42, 15")
    k("s_lshl_b32 s51, s12, 10\ns_add_u32 s51, s51, s43")
    k("s_add_u32 s54, s51, 16384")
    k("s_lshl_b32 s59, s42, 11")
    k("s_lshl_b32 s68, s42, 6\ns_lshl_b32 s69, s12, 2\ns_add_u32 s69, s69, s68")
    k(f"v_and_b32 v{VT}, 15, v{LANE}\nv_cmp_eq_u32 vcc, s12, v{VT}")
    k("s_nop 2")
    for db in range(2):
        for j in range(4): k(f"v_cvt_pk_bf16_f32 v{88+db*4+j}, v{KV+db*8+2*j}, v{KV+db*8+2*j+1}")
    k(f"buffer_store_dwordx4 {vr(88,4)}, v{L16}, s[32:35], s51 offen sc1")
    k(f"buffer_store_dwordx4 {vr(92,4)}, v{L16}, s[32:35], s54 offen sc1")
    k("s_and_saveexec_b64 s[70:71], vcc")
    k(f"buffer_store_dwordx4 {vr(ZZ,4)}, v{L16}, s[36:39], s59 offen sc1")
    k(f"buffer_store_dwordx4 {vr(ZZ+4,4)}, v{L16}, s[36:39], s59 offen offset:1024 sc1")
    k("s_mov_b64 exec, s[70:71]")
    fm_part2()
    k("s_waitcnt vmcnt(0)")
    k(f"v_mov_b32 v{VT+1}, 1\nv_mov_b32 v{VT+2}, 0")
    k("s_mov_b64 exec, 1")
    k(f"buffer_store_dword v{VT+1}, v{VT+2}, s[60:63], s69 offen sc1")
    k("s_mov_b64 exec, -1")
    fm_part3(EK)
    stamp(k, 3)
    k(f"v_lshlrev_b32 v{VT}, 2, v{VT}")
    poll = k.label("poll"); ok = k.label("ok")
    k("s_mov_b32 s70, 0")
    k(f"{poll}:")
    k(f"buffer_load_dword v{VT+1}, v{VT}, s[60:63], s68 offen sc1")
    k("s_waitcnt vmcnt(0)")
    k(f"v_cmp_eq_u32 vcc, 0, v{VT+1}")
    k("s_add_u32 s70, s70, 1")
    k(f"s_cmp_eq_u64 vcc, 0\ns_cbranch_scc1 {ok}")
    k(f"s_sleep 2\ns_cmp_lt_u32 s70, 0x40000\ns_cbranch_scc1 {poll}")
    k(f"{ok}:")
    k(f"buffer_load_dwordx4 {vr(ZZ,4)}, v{L16}, s[36:39], s59 offen sc1")
    k(f"buffer_load_dwordx4 {vr(ZZ+4,4)}, v{L16}, s[36:39], s59 offen offset:1024 sc1")
    for i in range(32):
        if i % 4 == 0 and i: k("s_add_u32 s43, s43, 4096")
        k(f"buffer_load_dwordx4 {ar(4*i,4)}, v{L16}, s[32:35], s43 offen offset:{(i%4)*1024} sc1")
    k("s_waitcnt vmcnt(32)")
    for sh in (8, 4, 2, 1):
        for j in range(8): k(f"v_add_f32_dpp v{ZZ+j}, v{ZZ+j}, v{ZZ+j} row_ror:{sh} row_mask:0xf bank_mask:0xf")
    k(f"v_and_b32 v{VT+1}, 1, v{LANE}\nv_cmp_eq_u32 vcc, 0, v{VT+1}")
    for j in range(4): k(f"v_cvt_pk_bf16_f32 v{BF+8+j}, v{ZZ+2*j}, v{ZZ+2*j+1}")
    for j in range(4): k(f"v_cndmask_b32 v{BF+8+j}, v{ONES}, v{BF+8+j}, vcc")
    for i in range(32):
        db, pp = divmod(i, 16)
        if i % 2 == 0: k(f"s_waitcnt vmcnt({30 - i})")
        for fb in range(2):
            d = vr(KV + (db * 2 + fb) * 4, 4)
            k(f"{mf} {d}, {vr(SEL + (2 if fb == 0 else 0), 4)}, {ar(4*i,4)}, {'0' if pp == 0 else d}")
    k("s_mul_i32 s42, s13, 3072")
    k(f"v_add_u32 v{VT+1}, s42, v{L16}")
    k("s_nop 6")
    for db in range(2):
        for j in range(4): k(f"v_cvt_pk_bf16_f32 v{BF+db*4+j}, v{KV+db*8+2*j}, v{KV+db*8+2*j+1}")
    for j in range(3): k(f"ds_write_b128 v{VT+1}, {vr(BF+4*j,4)} offset:{j*1024}")
    k("s_waitcnt lgkmcnt(0)\ns_barrier")
    for i in range(12): k(f"ds_read_b128 {ar(4*i,4)}, v{L16} offset:{i*1024}")
    k("s_lshl_b32 s42, s18, 15\ns_lshl_b32 s43, s11, 11\ns_add_u32 s42, s42, s43\ns_add_u32 s43, s42, 0x8000")
    k("s_waitcnt lgkmcnt(0)")
    N = 0
    for g, (hh, t) in enumerate(groups):
        for sg in range(2):
            for j in range(3):
                k(f"{mf} {vr(N+(g*2+sg)*12+4*j,4)}, {ar(((hh*2+sg)*3+j)*4,4)}, {vr(EK+(g*2+sg)*4,4)}, 0")
    k("s_nop 7")
    for g, (hh, t) in enumerate(groups):
        n1, n2 = N + g * 24, N + g * 24 + 12
        D1, S1, D2, S2 = n1 + 8, n1 + 9, n2 + 8, n2 + 9
        k(f"v_mul_f32 v{n1+10}, v{S1}, v{S2}")
        k(f"v_mul_f32 v{n1+10}, 0x358637bd, v{n1+10}")
        k(f"v_fmac_f32 v{n1+10}, v{D1}, v{S2}\nv_fmac_f32 v{n1+10}, v{D2}, v{S1}")
        k(f"v_rcp_f32 v{n1+10}, v{n1+10}")
        k("s_nop 0")
        k(f"v_mul_f32 v{D1}, v{S2}, v{n1+10}\nv_mul_f32 v{D2}, v{S1}, v{n1+10}")
        for j in range(4):
            k(f"v_pk_mul_f32 {vr(n1+2*j,2)}, {vr(n1+2*j,2)}, {vr(D1,2)} op_sel_hi:[1,0]")
        for j in range(4):
            k(f"v_pk_fma_f32 {vr(n1+2*j,2)}, {vr(n2+2*j,2)}, {vr(D2,2)}, {vr(n1+2*j,2)} op_sel_hi:[1,0,1]")
        for j in range(4): k(f"v_cvt_pk_bf16_f32 v{n2+j}, v{n1+2*j}, v{n1+2*j+1}")
        k(f"buffer_store_dwordx4 {vr(n2,4)}, v{L16}, s[64:67], s{42+t} offen offset:{hh*1024}")
    if instr: k("s_waitcnt vmcnt(0)")
    stamp(k, 4)
    stamp_flush(k, 8, 5, 100, slot=slot)
    k(f"{end}:\ns_endpgm")
    return k
```

```python
from asmlib import *
from gemm import *
from layout import *
from k_gemm3 import allreduce_q

def build_gemm24(which, name=None, NS=4, R=4, U=4, instr=False, W=8, P=4, pro_units=8, ramp_rate=12, read_margin=4, slot=0):
    name = name or f"gemm{which}_kernel"
    K = 1024 if which == 2 else 3584
    KT = K // 64
    NB, TB, KS = 4, 2, 2
    STAGE = 8448
    lds = NS * STAGE + 1024
    A_WF = 0; A_TF = 64
    k = Kernel(name, 256, 256, lds, vgpr=128, agpr=A_TF + R * 16, sgpr=102)
    k.instr = instr; k.s_wave = 13
    stamp(k, 0)
    V_RD, V_RDL, V_DMA, V_TOK, LANE, L16 = 32, 33, 34, 35, 37, 38
    VT = 40
    V_X = 48
    V_G = 64
    V_C = 80
    end = k.label("end")
    k(f"s_cmp_ge_u32 s2, 256\ns_cbranch_scc1 {end}")
    k(f"s_load_dwordx2 s[4:5], s[0:1], {KA['wo' if which == 2 else 'w2']}")
    k(f"s_load_dwordx2 s[6:7], s[0:1], {KA['x' if which == 2 else 'out']}")
    k(f"s_load_dwordx2 s[8:9], s[0:1], {KA['ws']}")
    k("s_and_b32 s3, s2, 7\ns_lshr_b32 s10, s2, 3")
    k("s_lshr_b32 s12, s3, 1\ns_lshl_b32 s12, s12, 2\ns_lshr_b32 s14, s10, 3\ns_add_u32 s12, s12, s14")
    k("s_and_b32 s11, s3, 1\ns_lshl_b32 s11, s11, 3\ns_and_b32 s15, s10, 7\ns_add_u32 s11, s11, s15")
    k(f"v_lshrrev_b32 v{VT}, 6, v0\nv_and_b32 v{LANE}, 63, v0")
    k(f"s_lshl_b32 s55, s14, 1\ns_add_u32 s55, s55, s15\ns_and_b32 s55, s55, {W-1}")
    k(f"v_readfirstlane_b32 s13, v{VT}")
    k(f"v_lshlrev_b32 v{L16}, 4, v{LANE}")
    k("s_lshr_b32 s14, s13, 1\ns_and_b32 s15, s13, 1")
    k("s_lshl_b32 s16, s14, 5\ns_lshl_b32 s17, s15, 1\ns_add_u32 s16, s16, s17\ns_lshl_b32 s16, s16, 11")
    k("s_lshl_b32 s17, s11, 7\ns_add_u32 s16, s16, s17")
    k(f"v_lshrrev_b32 v{VT+1}, 3, v{LANE}\nv_lshlrev_b32 v{VT+1}, 13, v{VT+1}")
    k(f"v_and_b32 v{VT+2}, 7, v{LANE}\nv_lshl_add_u32 v{VT+1}, v{VT+2}, 4, v{VT+1}")
    k(f"v_add_u32 v{V_DMA}, s16, v{VT+1}")
    k(f"v_bfe_u32 v{VT+1}, v{LANE}, 2, 2\nv_mul_u32_u24 v{VT+1}, 1056, v{VT+1}")
    k(f"v_lshrrev_b32 v{VT+2}, 4, v{LANE}\nv_lshl_add_u32 v{VT+1}, v{VT+2}, 7, v{VT+1}")
    k(f"v_and_b32 v{VT+3}, 3, v{LANE}\nv_lshl_add_u32 v{V_RDL}, v{VT+3}, 3, v{VT+1}")
    k("s_lshl_b32 s18, s12, 3\ns_lshl_b32 s19, s13, 1\ns_add_u32 s18, s18, s19")
    k(f"s_mul_i32 s19, s18, {K//32*1024}")
    k(f"v_add_u32 v{V_TOK}, s19, v{L16}\nv_add_u32 v{V_TOK+1}, {K//32*1024}, v{V_TOK}")
    k("s_mul_i32 s45, s14, 4224\ns_mul_i32 s46, s15, 2112\ns_add_u32 s45, s45, s46\ns_add_u32 s45, s45, 1024")
    k(f"s_mov_b32 s44, s45\ns_add_u32 s46, s45, {NS*STAGE}")
    k(f"s_lshl_b32 s47, s55, 17\ns_lshl_b32 s48, s55, 11\ns_mov_b32 s49, 1024\ns_mov_b32 s56, 0\ns_mov_b32 s57, 0")
    V_GA, V_XA, V_FA = 44, 45, 46
    k(f"v_lshlrev_b32 v{V_GA}, 4, v{VT+2}")
    k("s_lshl_b32 s40, s11, 8")
    k("s_lshl_b32 s41, s18, 15\ns_lshl_b32 s42, s11, 11\ns_add_u32 s41, s41, s42")
    k(f"v_add_u32 v{V_FA}, s41, v{L16}")
    k(f"v_and_b32 v{VT+1}, 15, v{LANE}\nv_lshlrev_b32 v{VT+1}, 11, v{VT+1}")
    k("s_lshl_b32 s42, s18, 15\ns_add_u32 s42, s42, s17")
    if which == 2:
        k(f"v_lshl_add_u32 v{V_XA}, v{VT+2}, 3, v{VT+1}")
    else:
        k(f"v_and_b32 v{VT+3}, 1, v{VT+2}\nv_lshl_add_u32 v{VT+1}, v{VT+3}, 5, v{VT+1}")
        k(f"v_lshrrev_b32 v{VT+3}, 1, v{VT+2}\nv_lshl_add_u32 v{V_XA}, v{VT+3}, 4, v{VT+1}")
    k(f"v_add_u32 v{V_XA}, s42, v{V_XA}")
    k("s_waitcnt lgkmcnt(0)")
    srd(k, 20, 4, K * D * 2)
    srd(k, 24, 8, S * K * 2, WS_O if which == 2 else WS_HH)
    c = Cfg()
    c.NB, c.TB, c.KS, c.SPK, c.KT, c.NS, c.R, c.U = NB, TB, KS, 1, KT, NS, R, U
    c.acc = lambda b, t: vr((b * TB + t) * 4, 4)
    c.wf = lambda buf, ks, b: A_WF + ((buf * KS + ks) * NB + b) * 4
    c.tf = lambda slot, ks, t: A_TF + ((slot * KS + ks) * TB + t) * 4
    c.v_rd = [(V_RD, V_RDL)]
    c.tr_addr = lambda b, sub, r: (V_RD, sub * 4224 + r * 512 + b * 32)
    c.stage_bytes, c.lds_base = STAGE, 1024
    c.dma = [(V_DMA, 0, 0), (V_DMA, 1056, 2048)]
    c.srd_w, c.srd_t = 20, 24
    c.v_tok = [V_TOK, V_TOK + 1]
    c.s_wr, c.s_wr0, c.s_wr_end, c.s_koff, c.s_tokoff, c.s_rd, c.s_it = 44, 45, 46, 47, 48, 49, 50
    c.s_rot, c.s_kcnt, c.s_tcnt, c.s_tmp = 55, 56, 57, 58
    c.w_ktile_stride = 64 * 2048
    c.W, c.P, c.pro_units, c.ramp_rate, c.read_margin = W, P, pro_units, ramp_rate, read_margin
    c.PT = U
    class Pp:
        def __init__(self): self.L = []
        def __call__(self, s): self.L += [x for x in s.split("\n") if x.strip()]
    p = Pp()
    srd(p, 28, 8, 6 * 4096, WS_MOD)
    srd(p, 32, 6, S * D * 2)
    srd(p, 36, 8, S * D * 2, WS_X1)
    if which == 2:
        srd(p, 60, 8, S * D * 2, WS_Y)
        srd(p, 64, 8, S * 128, WS_STAT)
    for i in range(32): p(f"v_mov_b32 v{i}, 0")
    c.pre_loop_txt = p.L
    late = []
    gi = 2 if which == 2 else 5
    late.append(f"s_add_u32 s43, s40, {gi*4096}")
    for b in range(NB): late.append(f"buffer_load_dwordx4 {vr(V_G+4*b,4)}, v{V_GA}, s[28:31], s43 offen offset:{b*64}")
    if which == 2:
        late.append(f"s_add_u32 s43, s40, {4*4096}")
        for b in range(NB): late.append(f"buffer_load_dwordx4 {vr(V_C+4*b,4)}, v{V_GA}, s[28:31], s43 offen offset:{b*64}")
        late.append("s_mov_b32 s43, 32768")
        for t in range(TB):
            for b in range(NB):
                late.append(f"buffer_load_dwordx2 {vr(V_X+(t*NB+b)*2,2)}, v{V_XA}, s[32:35], {'0' if t == 0 else 's43'} offen offset:{b*32}")
    else:
        late.append("s_mov_b32 s43, 32768")
        for t in range(TB):
            for s_ in range(2):
                late.append(f"buffer_load_dwordx4 {vr(V_X+(t*2+s_)*4,4)}, v{V_FA}, s[36:39], {'0' if t == 0 else 's43'} offen offset:{s_*1024}")
    c.late_vm = {P - 1: late}
    c.loop_head_txt = stamp_txt(1) if instr else ""
    gemm_main(k, c)
    stamp(k, 2)
    k("s_waitcnt vmcnt(0)")
    k("s_nop 7")
    A = lambda b, t: (b * TB + t) * 4
    XT = 96
    for t in range(TB):
        soff = "0" if t == 0 else "s43"
        for b in range(NB):
            xr = V_X + (t * NB + b) * 2
            for h in range(2):
                k(f"v_lshlrev_b32 v{XT+2*h}, 16, v{xr+h}\nv_and_b32 v{XT+2*h+1}, 0xffff0000, v{xr+h}")
            for h in range(2):
                k(f"v_pk_fma_f32 {vr(A(b,t)+2*h,2)}, {vr(A(b,t)+2*h,2)}, {vr(V_G+4*b+2*h,2)}, {vr(XT+2*h,2)}")
        PK = XT + 4 + t * 8
        for b in range(NB):
            k(f"v_cvt_pk_bf16_f32 v{PK+2*b}, v{A(b,t)}, v{A(b,t)+1}\nv_cvt_pk_bf16_f32 v{PK+2*b+1}, v{A(b,t)+2}, v{A(b,t)+3}")
        if which == 4:
            k("s_nop 1")
            for s_ in range(2):
                k(f"v_permlane16_swap_b32 v{PK+4*s_}, v{PK+4*s_+2}\nv_permlane16_swap_b32 v{PK+4*s_+1}, v{PK+4*s_+3}")
            for s_ in range(2):
                k(f"buffer_store_dwordx4 {vr(PK+4*s_,4)}, v{V_XA}, s[32:35], {soff} offen offset:{s_*64}")
        else:
            for s_ in range(2):
                k(f"buffer_store_dwordx4 {vr(PK+4*s_,4)}, v{V_FA}, s[36:39], {soff} offen offset:{s_*1024}")
            for b in range(NB):
                for h in range(2):
                    k(f"v_lshlrev_b32 v{A(b,t)+2*h}, 16, v{PK+2*b+h}\nv_and_b32 v{A(b,t)+2*h+1}, 0xffff0000, v{PK+2*b+h}")
            YK = V_X + t * 8
            for b in range(NB):
                for h in range(2):
                    k(f"v_pk_mul_f32 {vr(XT+2*h,2)}, {vr(A(b,t)+2*h,2)}, {vr(V_C+4*b+2*h,2)}")
                k(f"v_cvt_pk_bf16_f32 v{YK+2*b}, v{XT}, v{XT+1}\nv_cvt_pk_bf16_f32 v{YK+2*b+1}, v{XT+2}, v{XT+3}")
            for s_ in range(2):
                k(f"buffer_store_dwordx4 {vr(YK+4*s_,4)}, v{V_FA}, s[60:63], {soff} offen offset:{s_*1024}")
            SU, M2, TM = XT + 20 + 2 * t, XT + 21 + 2 * t, XT + 24
            k(f"v_pk_add_f32 {vr(XT,2)}, {vr(A(0,t),2)}, {vr(A(0,t)+2,2)}")
            for b in range(1, NB):
                for h in range(2): k(f"v_pk_add_f32 {vr(XT,2)}, {vr(XT,2)}, {vr(A(b,t)+2*h,2)}")
            k(f"v_add_f32 v{SU}, v{XT}, v{XT+1}")
            allreduce_q(k, "v_add_f32", SU, TM)
            k(f"v_mul_f32 v{XT+2}, {-1.0/64!r}, v{SU}\nv_mov_b32 v{XT+3}, v{XT+2}")
            k(f"v_mov_b32 v{XT}, 0\nv_mov_b32 v{XT+1}, 0")
            for b in range(NB):
                for h in range(2):
                    k(f"v_pk_add_f32 {vr(A(b,t)+2*h,2)}, {vr(A(b,t)+2*h,2)}, {vr(XT+2,2)}")
                    k(f"v_pk_fma_f32 {vr(XT,2)}, {vr(A(b,t)+2*h,2)}, {vr(A(b,t)+2*h,2)}, {vr(XT,2)}")
            k(f"v_add_f32 v{M2}, v{XT}, v{XT+1}")
            allreduce_q(k, "v_add_f32", M2, TM)
    if which == 2:
        k(f"v_cmp_gt_u32 vcc, 16, v{LANE}")
        k("s_lshr_b32 s51, s11, 2\ns_lshl_b32 s51, s51, 8")
        k("s_bfe_u32 s52, s11, 0x10001\ns_lshl_b32 s52, s52, 10\ns_add_u32 s51, s51, s52")
        k("s_and_b32 s52, s11, 1\ns_lshl_b32 s52, s52, 3\ns_add_u32 s51, s51, s52")
        k("s_lshl_b32 s52, s18, 11\ns_add_u32 s51, s51, s52")
        k(f"v_cndmask_b32 v{XT}, v{XT+22}, v{XT+20}, vcc\nv_cndmask_b32 v{XT+1}, v{XT+23}, v{XT+21}, vcc")
        k(f"v_and_b32 v{XT+2}, 15, v{LANE}\nv_lshlrev_b32 v{XT+2}, 4, v{XT+2}")
        k(f"v_lshrrev_b32 v{XT+3}, 4, v{LANE}\nv_lshl_add_u32 v{XT+2}, v{XT+3}, 11, v{XT+2}")
        k(f"v_cmp_gt_u32 vcc, 32, v{LANE}\ns_and_saveexec_b64 s[68:69], vcc")
        k(f"buffer_store_dwordx2 {vr(XT,2)}, v{XT+2}, s[64:67], s51 offen")
        k("s_mov_b64 exec, s[68:69]")
    stamp(k, 3)
    if instr: k("s_waitcnt vmcnt(0)")
    stamp(k, 4)
    stamp_flush(k, 8, 5, 40, slot=slot)
    k(f"{end}:\ns_endpgm")
    return k

if __name__ == "__main__":
    def w(n, which, **kw): open(f"work/{n}.s", "w").write(build_file([build_gemm24(which, instr=True, **kw)]))
    w("g4", 4)
    w("g4b", 4, W=1)
    w("g4c", 4, NS=8, R=8, U=8, P=8)
    w("g4d", 4, W=4)
    w("g2", 2)
    w("g2b", 2, W=1)
```

```python
from asmlib import *
from gemm import *
from layout import *

def allreduce_q(k, op, x, tmp):
    k(f"v_mov_b32 v{tmp}, v{x}\ns_nop 1")
    k(f"v_permlane32_swap_b32 v{x}, v{tmp}")
    k(f"s_nop 1\n{op} v{x}, v{x}, v{tmp}")
    k(f"v_mov_b32 v{tmp}, v{x}\ns_nop 1")
    k(f"v_permlane16_swap_b32 v{x}, v{tmp}")
    k(f"s_nop 1\n{op} v{x}, v{x}, v{tmp}")

def build_gemm3(name="gemm3_kernel", NS=4, R=4, U=2, instr=False, W=8, P=4, pro_units=15, ramp_rate=15, read_margin=8, slot=0):
    NB, TB = 14, 4
    STAGE = 28672
    UT_OFF = NS * STAGE
    lds = UT_OFF + 16384
    A_WF, A_TF = 0, 112
    A_BF = A_TF + R * TB * 4
    A_ST = A_BF + 16
    k = Kernel(name, 256, 256, lds, vgpr=256, agpr=A_ST + 32, sgpr=102)
    k.instr = instr; k.s_wave = 13
    stamp(k, 0)
    V_RD, V_RDL, V_DMA, V_TOK = 224, 225, 226, 233
    C1, C2 = 238, 242
    LANE = 237
    VT = 246
    end = k.label("end")
    k(f"s_cmp_ge_u32 s2, 256\ns_cbranch_scc1 {end}")
    k(f"s_load_dwordx4 s[4:7], s[0:1], {KA['w1']}")
    k(f"s_load_dwordx2 s[8:9], s[0:1], {KA['ws']}")
    k("s_and_b32 s3, s2, 7\ns_lshr_b32 s10, s2, 3")
    k("s_and_b32 s11, s10, 3\ns_lshl_b32 s3, s3, 2\ns_add_u32 s11, s11, s3")
    k("s_lshr_b32 s12, s10, 2")
    k(f"v_lshrrev_b32 v{VT}, 6, v0\nv_and_b32 v{LANE}, 63, v0")
    k("s_and_b32 s51, s11, 1")
    k(f"v_readfirstlane_b32 s13, v{VT}")
    k("s_lshl_b32 s52, s51, 1")
    k("s_lshr_b32 s14, s13, 1")
    k("s_and_b32 s15, s13, 1")
    k("s_mul_i32 s16, s14, %d" % (32 * 7168))
    k("s_mul_i32 s17, s11, 224")
    k("s_add_u32 s16, s16, s17")
    for i in range(7):
        k(f"v_add_u32 v{VT+2}, {i*64}, v{LANE}")
        k(f"v_mul_u32_u24 v{VT+3}, 4682, v{VT+2}")
        k(f"v_lshrrev_b32 v{VT+3}, 16, v{VT+3}")
        k(f"v_mul_u32_u24 v{VT+4}, 14, v{VT+3}")
        k(f"v_sub_u32 v{VT+4}, v{VT+2}, v{VT+4}")
        k(f"v_add_u32 v{VT+4}, s52, v{VT+4}")
        k(f"v_subrev_u32 v{VT+5}, 14, v{VT+4}")
        k(f"v_min_u32 v{VT+4}, v{VT+4}, v{VT+5}")
        k(f"v_mul_u32_u24 v{VT+3}, 7168, v{VT+3}")
        k(f"v_lshl_add_u32 v{VT+3}, v{VT+4}, 4, v{VT+3}")
        k(f"v_add_u32 v{V_DMA+i}, s16, v{VT+3}")
    k(f"v_lshrrev_b32 v{VT+3}, 2, v{LANE}")
    k(f"v_mul_u32_u24 v{VT+3}, 224, v{VT+3}")
    k(f"v_and_b32 v{VT+4}, 3, v{LANE}")
    k(f"v_lshl_add_u32 v{V_RDL}, v{VT+4}, 3, v{VT+3}")
    k("s_lshl_b32 s18, s12, 4\ns_lshl_b32 s19, s13, 2\ns_add_u32 s18, s18, s19")
    k("s_lshl_b32 s19, s18, 15")
    k(f"v_lshlrev_b32 v{VT+2}, 4, v{LANE}")
    k(f"v_add_u32 v{V_TOK}, s19, v{VT+2}")
    for t in range(1, 4):
        k(f"v_add_u32 v{V_TOK+t}, {t*0x8000}, v{V_TOK}")
    k("s_mul_i32 s45, s15, 14336\ns_mul_i32 s46, s14, 7168\ns_add_u32 s45, s45, s46")
    k(f"s_mov_b32 s44, s45\ns_add_u32 s46, s45, {NS*STAGE}")
    k("s_and_b32 s55, s10, 3\ns_lshl_b32 s55, s55, 1\ns_add_u32 s55, s55, s12")
    k(f"s_and_b32 s55, s55, {W-1}")
    k(f"s_mul_i32 s47, s55, {64*7168}\ns_lshl_b32 s48, s55, 11\ns_mov_b32 s49, 0\ns_mov_b32 s56, 0\ns_mov_b32 s57, 0")
    k("s_mul_i32 s40, s11, 14336\ns_lshl_b32 s41, s13, 12\ns_add_u32 s40, s40, s41")
    k(f"s_add_u32 s41, s41, {UT_OFF}")
    k("s_lshl_b32 s42, s18, 11")
    k("s_add_u32 s43, s42, 4096")
    k("s_waitcnt lgkmcnt(0)")
    k("s_cmp_eq_u32 s15, 0\ns_cselect_b32 s20, s4, s6\ns_cselect_b32 s21, s5, s7")
    k(f"s_mov_b32 s22, {D*F*2}\ns_mov_b32 s23, 0x20000")
    srd(k, 24, 8, S * D * 2, WS_Y)
    srd(k, 32, 8, S * 128, WS_STAT)
    srd(k, 28, 8, 32 * 14336, WS_UT)
    srd(k, 36, 8, S * F * 2, WS_HH)
    c = Cfg()
    c.NB, c.TB, c.KS, c.SPK, c.KT, c.NS, c.R, c.U = NB, TB, 1, 2, 16, NS, R, U
    c.acc = lambda b, t: vr((b * TB + t) * 4, 4)
    c.wf = lambda buf, ks, b: A_WF + (buf * NB + b) * 4
    c.tf = lambda slot, ks, t: A_TF + (slot * TB + t) * 4
    c.v_rd = [(V_RD, V_RDL)]
    c.tr_addr = lambda b, sub, r: (V_RD, (b % 2) * 14336 + (32 * sub + 16 * r) * 224 + 32 * (b // 2))
    c.stage_bytes, c.lds_base = STAGE, 0
    c.dma = [(V_DMA + i, i * 1024, 0) for i in range(7)]
    c.srd_w, c.srd_t = 20, 24
    c.v_tok = [V_TOK + t for t in range(4)]
    c.s_wr, c.s_wr0, c.s_wr_end, c.s_koff, c.s_tokoff, c.s_rd, c.s_it = 44, 45, 46, 47, 48, 49, 50
    c.w_ktile_stride = 64 * 7168
    c.s_rot, c.s_kcnt, c.s_tcnt, c.s_tmp = 55, 56, 57, 58
    c.W, c.P, c.pro_units, c.ramp_rate, c.read_margin = W, P, pro_units, ramp_rate, read_margin
    late = [f"buffer_load_dwordx4 {ar(A_ST+t*8+hf*4,4)}, v{VT+2}, s[32:35], s{42+t//2} offen offset:{(t%2)*2048+hf*1024}" for t in range(4) for hf in range(2)]
    late += ["s_mov_b32 m0, s41"] + [f"buffer_load_dwordx4 v{VT+2}, s[28:31], s40 offen offset:{j*1024} lds" for j in range(4)]
    c.late_vm = {P - 1: late}
    class P:
        def __init__(self): self.L = []
        def __call__(self, s): self.L += [x for x in s.split("\n") if x.strip()]
    c.pre_loop_txt = [f"v_mov_b32 v{i}, 0" for i in range(224)]
    def stat_code(t):
        p = P()
        b = 226
        X, Y, Z = 249, 250, 251
        for j in range(8): p(f"v_accvgpr_read_b32 v{b+j}, a{A_ST+t*8+j}")
        p(f"v_add_f32 v{X}, v{b}, v{b+2}\nv_add_f32 v{Y}, v{b+4}, v{b+6}\nv_add_f32 v{X}, v{X}, v{Y}")
        allreduce_q(p, "v_add_f32", X, Y)
        p(f"v_mul_f32 v{X}, {-1.0/1024!r}, v{X}")
        p(f"v_add_f32 v{Z}, v{b+1}, v{b+3}\nv_add_f32 v{Y}, v{b+5}, v{b+7}\nv_add_f32 v{Z}, v{Z}, v{Y}")
        for j in range(4):
            p(f"v_fmamk_f32 v{b+2*j}, v{b+2*j}, {1.0/64!r}, v{X}")
            p(f"v_mul_f32 v{b+2*j}, v{b+2*j}, v{b+2*j}")
            p(f"v_fmac_f32 v{Z}, 0x42800000, v{b+2*j}")
        allreduce_q(p, "v_add_f32", Z, Y)
        p(f"v_mov_b32 v{C2+t}, 0x3727c5ac")
        p(f"v_fmac_f32 v{C2+t}, {1.0/1024!r}, v{Z}")
        p(f"v_rsq_f32 v{Y}, v{C2+t}")
        p(f"v_sqrt_f32 v{Z}, v{C2+t}")
        p(f"v_mul_f32 v{C1+t}, {-1.4426950408889634!r}, v{Y}")
        p(f"v_cvt_pk_bf16_f32 v{b}, v{X}, v{X}")
        p(f"v_cvt_pk_bf16_f32 v{b+4}, v{Z}, v{Z}")
        p(f"v_and_b32 v{b+5}, 0xffff0000, v{b}\nv_sub_f32 v{b+5}, v{X}, v{b+5}")
        p(f"v_and_b32 v{b+6}, 0xffff0000, v{b+4}\nv_sub_f32 v{b+6}, v{Z}, v{b+6}")
        p(f"v_cvt_pk_bf16_f32 v{b+1}, v{b+5}, v{Z}")
        p(f"v_cvt_pk_bf16_f32 v{b+2}, v{Z}, v{b+6}")
        for j in range(3): p(f"v_accvgpr_write_b32 a{A_BF+t*4+j}, v{b+j}")
        p(f"v_accvgpr_write_b32 a{A_BF+t*4+3}, 0")
        return p.L
    c.PT = c.U * c.SPK
    NSTEP = 32
    assert NS >= 3 and R >= 4
    def step_extra(step):
        j = step - (NSTEP - 4)
        if j < 0: return []
        L = []
        if j == 0: L += [f"v_add_u32 v{VT}, {UT_OFF}, v{VT+2}"]
        if j == 1: L += stat_code(0) + stat_code(1)[:30]
        if j == 2: L += stat_code(1)[30:] + stat_code(2)
        if j == 3: L += stat_code(3)
        return L
    c.step_extra = step_extra
    c.last_reads = [f"ds_read_b128 {ar(A_WF+4*b,4)}, v{VT} offset:{b*1024}" for b in range(NB)]
    c.loop_head_txt = stamp_txt(1) if instr else ""
    gemm_main(k, c)
    stamp(k, 2)
    k("s_mul_i32 s52, s11, 7\ns_add_u32 s52, s52, s51\ns_lshr_b32 s52, s52, 1")
    k("s_mul_i32 s53, s18, 112\ns_add_u32 s52, s52, s53\ns_lshl_b32 s52, s52, 10")
    k("s_mul_i32 s53, s51, -4088\ns_add_u32 s53, s53, 3072\ns_add_u32 s53, s53, s52")
    SA, SB = 224, 225
    k(f"v_add_u32 v{SA}, s52, v{VT+2}\nv_add_u32 v{SB}, s53, v{VT+2}")
    CP1, CP2 = 226, 248
    for t in range(4):
        k(f"v_mov_b32 v{CP1+2*t}, v{C1+t}\nv_mov_b32 v{CP1+2*t+1}, v{C1+t}")
    for t in range(4):
        k(f"v_mov_b32 v{CP2+2*t}, v{C2+t}\nv_mov_b32 v{CP2+2*t+1}, v{C2+t}")
    k("s_waitcnt lgkmcnt(0)")
    for b in range(NB):
        for t in range(TB):
            k(f"v_mfma_f32_16x16x32_bf16 {c.acc(b,t)}, {ar(A_WF+4*b,4)}, {ar(A_BF+4*t,4)}, {c.acc(b,t)}")
    def G(s, t): return ((2 * s) * TB + t) * 4
    def Uu(s, t): return ((2 * s + 1) * TB + t) * 4
    def act(slots, t):
        for s in slots:
            for h in range(2):
                k(f"v_pk_mul_f32 {vr(Uu(s,t)+2*h,2)}, {vr(G(s,t)+2*h,2)}, {vr(Uu(s,t)+2*h,2)}")
                k(f"v_pk_mul_f32 {vr(G(s,t)+2*h,2)}, {vr(G(s,t)+2*h,2)}, {vr(CP1+2*t,2)}")
        for s in slots:
            for r in range(4): k(f"v_exp_f32 v{G(s,t)+r}, v{G(s,t)+r}")
        for s in slots:
            for h in range(2): k(f"v_pk_fma_f32 {vr(G(s,t)+2*h,2)}, {vr(G(s,t)+2*h,2)}, {vr(CP2+2*t,2)}, {vr(CP2+2*t,2)}")
        for s in slots:
            for r in range(4): k(f"v_rcp_f32 v{G(s,t)+r}, v{G(s,t)+r}")
        for s in slots:
            for h in range(2): k(f"v_pk_mul_f32 {vr(Uu(s,t)+2*h,2)}, {vr(Uu(s,t)+2*h,2)}, {vr(G(s,t)+2*h,2)}")
    first = True
    for pr in range(3):
        for t in range(TB):
            s0, s1 = 2 * pr, 2 * pr + 1
            act([s0, s1], t)
            d = G(s0, t)
            k(f"v_cvt_pk_bf16_f32 v{d}, v{Uu(s0,t)}, v{Uu(s0,t)+1}")
            k(f"v_cvt_pk_bf16_f32 v{d+1}, v{Uu(s0,t)+2}, v{Uu(s0,t)+3}")
            k(f"v_cvt_pk_bf16_f32 v{d+2}, v{Uu(s1,t)}, v{Uu(s1,t)+1}")
            k(f"v_cvt_pk_bf16_f32 v{d+3}, v{Uu(s1,t)+2}, v{Uu(s1,t)+3}")
            k(f"s_mov_b32 s54, {t*112*1024}")
            k(f"buffer_store_dwordx4 {vr(d,4)}, v{SA}, s[36:39], s54 offen offset:{pr*1024}")
    for t in range(TB):
        act([6], t)
        d = G(6, t)
        k(f"v_cvt_pk_bf16_f32 v{d}, v{Uu(6,t)}, v{Uu(6,t)+1}")
        k(f"v_cvt_pk_bf16_f32 v{d+1}, v{Uu(6,t)+2}, v{Uu(6,t)+3}")
        k(f"s_mov_b32 s54, {t*112*1024}")
        k(f"buffer_store_dwordx2 {vr(d,2)}, v{SB}, s[36:39], s54 offen")
    stamp(k, 3)
    if instr: k("s_waitcnt vmcnt(0)")
    stamp(k, 4)
    stamp_flush(k, 8, 5, 240, slot=slot)
    k(f"{end}:\ns_endpgm")
    return k

if __name__ == "__main__":
    import sys
    def w(n, **kw): open(f"work/{n}.s", "w").write(build_file([build_gemm3(instr=True, **kw)]))
    w("g3")
    w("g3b", W=1)
    w("g3c", NS=5, R=4, U=2, P=4, pro_units=11, ramp_rate=17)
    w("g3d", NS=3, R=4, U=2, P=4, pro_units=11, ramp_rate=14)
```

```python
S, D, H, F = 2048, 1024, 32, 3584
MB = 1 << 20
WS_MODP = 0
WS_UT   = 1 * MB
WS_STAT = 2 * MB
WS_KVP  = 4 * MB
WS_H    = 16 * MB
WS_PHIQ = 24 * MB
WS_O    = 32 * MB
WS_X1   = 40 * MB
WS_Y    = 48 * MB
WS_HH   = 64 * MB
KA = dict(x=0, wqkv=8, wphi=16, wo=24, bx=32, w1=40, w3=48, w2=56, c=64, wmod=72, out=80, dbg=88, ws=96)
WS_MOD = 3 * MB
WS_FLAG = 3 * MB + 512 * 1024
WS_ZP   = 8 * MB
```

```python
import sys
from asmlib import *
from layout import *
from k_front import *
from k_gemm1 import build_gemm1
from k_gemm3 import build_gemm3
from k_gemm24 import build_gemm24
instr = len(sys.argv) > 1 and sys.argv[1] == "instr"
ks = [build_k0(instr=instr, slot=0), build_k1(instr=instr, slot=1), build_ut(), build_gemm1(instr=instr, slot=2), build_gemm24(2, instr=instr, slot=3), build_gemm3(instr=instr, slot=4), build_gemm24(4, instr=instr, slot=5)]
if instr:
    b = Kernel("block_kernel", 8, 64, 0, vgpr=8, sgpr=16)
    b("s_mov_b32 s4, 0\nL_blk:\ns_sleep 127\ns_add_u32 s4, s4, 1\ns_cmp_lt_u32 s4, 100\ns_cbranch_scc1 L_blk\ns_endpgm")
    open("full1i.s", "w").write(build_file([b] + ks))
else:
    hdr = open("adaLN_cond__linear_kernel_hedgehog__glu_gated_swiglu__prompt.s.ref").read().split("; Override")[0]
    open("adaLN_cond__linear_kernel_hedgehog__glu_gated_swiglu__prompt.s", "w").write(build_file(ks, hdr))
```

```python
from asmlib import *
MF = "v_mfma_f32_16x16x32_bf16"

class Item:
    __slots__ = ("kind", "txt", "key", "lgkm")
    def __init__(self, kind, txt=None, key=None, lgkm=None):
        self.kind = kind; self.txt = txt; self.key = key; self.lgkm = lgkm
def T(txt): return Item("txt", txt)
def VM(txt, key): return Item("vm", txt, key)
def WVM(keys, lgkm=None): return Item("wvm", None, keys, lgkm)
def is_vm(x): return x.startswith("buffer_") or x.startswith("global_")

class Txt:
    def __init__(self): self.L = []
    def __call__(self, s): self.L += [x.strip() for x in s.split("\n") if x.strip()]

def win_mask(sizes):
    out, b = [], 0
    for w in sizes:
        out += [(b, w - 1)] * w; b += w
    return out

class Sched:
    pro_units = 0; ramp_rate = 99; read_margin = 8; lookahead = 99
    step_extra = None; late = None; last_reads = (); pre_loop_txt = (); drop = ()
    pre_dma = 0
    def __init__(self):
        self.steps = []; self.stage_units = {}; self.stage_slot = {}; self.tok_units = {}; self.tok_slot = {}
        self.late = {}
    def pos_items(self, s_dst, kt, stride, add=0):
        base, mask = self.wins[kt]
        if mask == 0: return [T(f"s_mov_b32 s{s_dst}, {base*stride+add}")]
        o = [T(f"s_add_u32 s{s_dst}, s{self.s_rot if mask > 3 else self.s_rot2}, {kt - base}"), T(f"s_and_b32 s{s_dst}, s{s_dst}, {mask}"), T(f"s_mul_i32 s{s_dst}, s{s_dst}, {stride}")]
        if base * stride + add: o.append(T(f"s_add_u32 s{s_dst}, s{s_dst}, {base*stride+add}"))
        return o
    def _dma_list(self):
        return [(s, i) for s in sorted(self.stage_units) for i in range(len(self.stage_units[s]))]
    def prefetch(self, k, n):
        for s, i in self._dma_list()[self.pre_dma:self.pre_dma + n]:
            for x in self.stage_units[s][i]:
                if x.kind == "vm": k("s_nop 0")
                k(x.txt)
        self.pre_dma += n
    def prefetch_txt(self, n):
        t = Txt(); self.prefetch(t, n); return [x for x in t.L if x != "s_nop 0"]

    def run(self, k):
        c = self
        N = len(c.steps)
        sfirst, slast, tfirst, tlast = {}, {}, {}, {}
        for i, st in enumerate(c.steps):
            for s in st["stages"]: sfirst.setdefault(s, i); slast[s] = i
            for t in st["toks"]: tfirst.setdefault(t, i); tlast[t] = i
        bars = {}
        for s, f in sfirst.items(): bars.setdefault(f - 1, []).append(s)
        barsteps = sorted(bars)
        units = {"dma": [], "tok": []}
        prev = {}
        skip = c.pre_dma
        for s in sorted(c.stage_units):
            sl = c.stage_slot[s]
            e = -1 if sl not in prev else min(b for b in barsteps if b >= slast[prev[sl]])
            prev[sl] = s
            for i, u in enumerate(c.stage_units[s]):
                if skip: skip -= 1; assert e == -1; continue
                units["dma"].append((sfirst[s] - 1, e, "dma", u))
        prev = {}
        for key in sorted(c.tok_units, key=lambda q: (tfirst[q], q)):
            sl = c.tok_slot[key]
            e = -1 if sl not in prev else tlast[prev[sl]] + 1
            e = max(e, tfirst[key] - c.lookahead, -1)
            prev[sl] = key
            for u in c.tok_units[key]: units["tok"].append((tfirst[key], e, "tok", u))
        issue = {}
        pos, cnt, cap = -1, 0, c.pro_units
        rate = c.ramp_rate if callable(c.ramp_rate) else (lambda s: c.ramp_rate)
        while units["dma"] or units["tok"]:
            cand = [q[0] for q in units.values() if q and q[0][1] <= pos]
            if cand and cnt < cap:
                u = min(cand, key=lambda u: (u[0], 0 if u[2] == "dma" else 1))
                issue.setdefault(pos, []).append(u); units[u[2]].pop(0); cnt += 1
                assert pos < u[0] or pos == -1, ("late unit", u[:3], pos)
            else:
                pos += 1; cnt = 0; cap = rate(pos)
        def read_items(step):
            out = []
            for j, (va, o0, o1, _) in enumerate(c.steps[step]["frags"]):
                for r, off in enumerate((o0, o1)):
                    assert 0 <= off < 65536, off
                    out.append(T(f"ds_read_b64_tr_b16 {ar(c.wf(step % 2, j)+2*r,2)}, v{va} offset:{off}"))
            return out
        def bar(step): return [WVM([("dma", s) for s in bars[step]]), T("s_barrier")]
        def conv(x):
            if isinstance(x, Item): return x
            return VM(x, ("extra", 0)) if is_vm(x) else T(x)
        pro = []
        for u in issue.get(-1, []):
            for x in u[3]:
                if x.kind == "vm" and x.txt.endswith("lds"): pro.append(T("s_nop 0"))
                pro.append(x)
        pro += [conv(x) for x in c.pre_loop_txt]
        pro += bar(-1) + read_items(0)
        touched = set(c.acc_init) if hasattr(c, "acc_init") else set()
        def make_step(step):
            st = c.steps[step]
            newt = [("tok", t) for t in st["toks"] if tfirst[t] == step]
            out = [WVM(newt, lgkm=0)]
            mf = []
            for j, (_, _, _, ms) in enumerate(st["frags"]):
                for acc, tr in (ms if j % 2 == 0 else ms[::-1]):
                    cin = acc if acc in touched else "0"
                    touched.add(acc)
                    mf.append(T(f"{MF} {acc}, {ar(c.wf(step%2, j),4)}, {ar(tr,4)}, {cin}"))
            n = len(mf)
            gaps = [[] for _ in range(n)]
            g0 = 0
            if step in bars: gaps[0] += bar(step); g0 = 1
            us = issue.get(step, [])
            a = [u for u in us if u[2] == "dma"]; b_ = [u for u in us if u[2] == "tok"]
            if us and min(u[0] for u in us) > step + 1:
                seq = []
                while a or b_:
                    if b_: seq.append(b_.pop(0))
                    if a: seq.append(a.pop(0))
            else: seq = us
            B = []
            for u in seq: B += u[3]
            B += [conv(x) for x in c.late.get(step, [])]
            A = read_items(step + 1) if step + 1 < N else [T(x) for x in c.last_reads]
            X = [T(x) for x in (c.step_extra(step) if c.step_extra else [])]
            want = []
            ra = max(1, n - c.read_margin - g0)
            for i, x in enumerate(A): want.append((g0 + i * ra / len(A), 0, i, x))
            for i, x in enumerate(B): want.append((g0 + (i + 0.5) * (n - g0) / len(B), 1, i, x))
            for i, x in enumerate(X): want.append((g0 + (i + 0.25) * (n - g0) / len(X), 2, i, x))
            want.sort(key=lambda w: (w[0], w[1], w[2]))
            cap = max(1, -(-len(want) // (n - g0)))
            g = g0
            for pos_, _, _, x in want:
                g = max(g, min(n - 1, int(pos_)))
                while g < n - 1 and len(gaps[g]) >= cap: g += 1
                gaps[g].append(x)
            for i in range(n):
                out.append(mf[i])
                prev = None
                for x in gaps[i]:
                    if x.kind == "vm" and x.txt.endswith("lds") and prev is not None and prev.txt and " m0," in prev.txt:
                        out.append(T("s_nop 0"))
                    out.append(x); prev = x
            return out
        issued = []
        def emit(items):
            for x in items:
                if x.kind == "wvm":
                    n = 63
                    for key in x.key:
                        idx = [i for i, kk in enumerate(issued) if kk == key]
                        n = min(n, len(issued) - 1 - idx[-1] if idx else len(issued))
                    parts = ([f"vmcnt({n})"] if x.key else []) + ([f"lgkmcnt({x.lgkm})"] if x.lgkm is not None else [])
                    k("s_waitcnt " + " ".join(parts))
                else:
                    if x.kind == "vm": issued.append(x.key)
                    if any(d in x.txt for d in c.drop): continue
                    k(x.txt)
        emit(pro)
        for s in range(N): emit(make_step(s))

def std_sched(c):
    NB, TB, KS, SPK, KT, NS, R = c.NB, c.TB, c.KS, c.SPK, c.KT, c.NS, c.R
    for kt in range(KT):
        us = []
        sw = c.s_kw + kt % 2
        for i, (vo, loff, goff) in enumerate(c.dma):
            g = c.pos_items(sw, kt, c.w_stride) if i == 0 else []
            g += [T(f"s_add_u32 m0, s{c.s_wbase}, {c.slot_addr(kt % NS) + loff - goff}"),
                  VM(f"buffer_load_dwordx4 v{vo}, {sr(c.srd_w,4)}, s{sw} offen" + (f" offset:{goff}" if goff else "") + " lds", ("dma", kt))]
            us.append(g)
        c.stage_units[kt] = us; c.stage_slot[kt] = kt % NS
        for sp in range(SPK):
            step = kt * SPK + sp
            us = []
            st_ = c.s_kt + kt % 2
            for ks in range(KS):
                for t in range(TB):
                    g = c.pos_items(st_, kt, SPK * KS * 1024) if (sp == 0 and ks == 0 and t == 0) else []
                    g.append(VM(f"buffer_load_dwordx4 {ar(c.tf(step % R, ks, t),4)}, v{c.v_tok[t]}, {sr(c.srd_t,4)}, s{st_} offen offset:{(sp*KS+ks)*1024} sc1", ("tok", step)))
                    us.append(g)
            c.tok_units[step] = us; c.tok_slot[step] = step % R
            frags = []
            for ks in range(KS):
                for b in range(NB):
                    va, o0 = c.rd(kt % NS, b, sp * KS + ks, 0); _, o1 = c.rd(kt % NS, b, sp * KS + ks, 1)
                    frags.append((va, o0, o1, [(c.acc(b, t), c.tf(step % R, ks, t)) for t in range(TB)]))
            c.steps.append(dict(frags=frags, stages=[kt], toks=[step]))
    c.wf = lambda buf, j: (buf * NB * KS + j) * 4
```

```python
from asmlib import *
from layout import *

def gemv_part(k, nld, s_base, s_crow, V_W, V_C, ACC, VO_W, VO_C, srd_w, srd_c):
    for i in range(nld):
        k(f"buffer_load_ushort v{V_C+i}, v{VO_C}, {sr(srd_c,4)}, s{s_crow} offen offset:{i*16}")
    for i in range(nld):
        k(f"buffer_load_dwordx4 {vr(V_W+4*i,4)}, v{VO_W}, {sr(srd_w,4)}, s{s_base} offen")
        if i < nld - 1: k(f"s_add_u32 s{s_base}, s{s_base}, {8*12288}")

def silu_bf16(k, v, t):
    k(f"v_lshlrev_b32 v{v}, 16, v{v}")
    k(f"v_mul_f32 v{t}, {-1.4426950408889634!r}, v{v}")
    k(f"v_exp_f32 v{t}, v{t}")
    k("s_nop 0")
    k(f"v_add_f32 v{t}, 1.0, v{t}")
    k(f"v_rcp_f32 v{t}, v{t}")
    k("s_nop 0")
    k(f"v_mul_f32 v{v}, v{v}, v{t}")
    k(f"v_cvt_pk_bf16_f32 v{v}, v{v}, v{v}")
    k(f"v_and_b32 v{v}, 0xffff0000, v{v}")

def gemv_compute(k, nld, V_W, V_C, ACC, T, after):
    k(f"s_waitcnt vmcnt({after + nld})")
    for i in range(nld): silu_bf16(k, V_C + i, T)
    for j in range(8): k(f"v_mov_b32 v{ACC+j}, 0")
    for i in range(nld):
        k(f"s_waitcnt vmcnt({after + nld - 1 - i})")
        for d in range(4):
            k(f"v_lshlrev_b32 v{T}, 16, v{V_W+4*i+d}")
            k(f"v_and_b32 v{T+1}, 0xffff0000, v{V_W+4*i+d}")
            k(f"v_fmac_f32 v{ACC+2*d}, v{T}, v{V_C+i}")
            k(f"v_fmac_f32 v{ACC+2*d+1}, v{T+1}, v{V_C+i}")
    k("s_nop 1")
    for j in range(4): k(f"v_permlane32_swap_b32 v{ACC+j}, v{ACC+j+4}")
    k("s_nop 1")
    for j in range(4): k(f"v_add_f32 v{ACC+j}, v{ACC+j}, v{ACC+j+4}")
    k("s_nop 1")
    for j in range(2): k(f"v_permlane16_swap_b32 v{ACC+j}, v{ACC+j+2}")
    k("s_nop 1")
    for j in range(2): k(f"v_add_f32 v{ACC+j}, v{ACC+j}, v{ACC+j+2}")
    k("s_nop 1")
    for j in range(2): k(f"v_add_f32_dpp v{ACC+j}, v{ACC+j}, v{ACC+j} row_ror:8 row_mask:0xf bank_mask:0xf")

def build_k0(name="mod_kernel", instr=False, slot=0, mega="mega_kernel", opt=None):
    opt = opt or {}
    k = Kernel(name, 256, 256, 4096, vgpr=64, sgpr=102)
    k.instr = instr; k.s_wave = 13
    stamp(k, 0)
    end = k.label("end")
    k(f"s_cmp_ge_u32 s2, 256\ns_cbranch_scc1 {end}")
    k(f"s_load_dwordx4 s[4:7], s[0:1], {KA['c']}")
    k(f"s_load_dwordx2 s[8:9], s[0:1], {KA['ws']}")
    k(f"s_load_dwordx4 s[48:51], s[0:1], {KA['x']}")
    LANE, VO_W, VO_C, T, LA = 1, 2, 3, 4, 6
    k(f"v_lshrrev_b32 v{T}, 6, v0\nv_and_b32 v{LANE}, 63, v0")
    k(f"v_lshrrev_b32 v{T+1}, 3, v{LANE}")
    k(f"v_readfirstlane_b32 s13, v{T}")
    k(f"v_mul_u32_u24 v{VO_W}, 12288, v{T+1}")
    k(f"v_and_b32 v{T}, 7, v{LANE}\nv_lshl_add_u32 v{VO_W}, v{T}, 4, v{VO_W}")
    k(f"v_lshlrev_b32 v{VO_C}, 1, v{T+1}")
    k("s_and_b32 s15, s2, 31\ns_lshr_b32 s16, s2, 5")
    k("s_lshl_b32 s17, s16, 7\ns_lshl_b32 s18, s13, 5\ns_add_u32 s17, s17, s18")
    k("s_mul_i32 s40, s17, 12288\ns_lshl_b32 s18, s15, 7\ns_add_u32 s40, s40, s18")
    k("s_lshl_b32 s41, s17, 1")
    k("s_waitcnt lgkmcnt(0)")
    srd(k, 20, 6, D * 6 * D * 2)
    srd(k, 24, 4, D * 2)
    WA, CA, ACC = 16, 8, 40
    gemv_part(k, 4, 40, 41, WA, CA, ACC, VO_W, VO_C, 20, 24)
    stamp(k, 1)
    nafter = 0
    if opt.get("k0_touch", 1):
        lab = k.label("pc")
        k(f"s_getpc_b64 s[52:53]\n{lab}:")
        k(f"s_add_u32 s52, s52, {mega}-{lab}\ns_addc_u32 s53, s53, 0")
        k("s_lshr_b32 s54, s2, 3\ns_lshl_b32 s55, s54, 2\ns_add_u32 s55, s55, s13\ns_lshl_b32 s55, s55, 10")
        k(f"v_lshlrev_b32 v50, 4, v{LANE}\nv_add_u32 v51, s55, v50\nv_min_u32 v51, {mega}_end-{mega}-4, v51")
        k("global_load_dword v51, v51, s[52:53]")
        k("s_and_b32 s55, s2, 1\ns_lshl_b32 s55, s55, 3\ns_lshr_b32 s56, s54, 2\ns_add_u32 s55, s55, s56\ns_lshl_b32 s55, s55, 4")
        k("s_bfe_u32 s56, s2, 0x20001\ns_lshl_b32 s56, s56, 2\ns_add_u32 s55, s55, s56\ns_and_b32 s56, s54, 3\ns_add_u32 s55, s55, s56")
        k("s_lshl_b32 s55, s55, 14\ns_lshl_b32 s56, s13, 12\ns_add_u32 s55, s55, s56")
        k(f"v_lshlrev_b32 v52, 6, v{LANE}\nv_add_u32 v52, s55, v52")
        k("global_load_dword v52, v52, s[48:49]")
        nafter += 2
        nq = opt.get("k0_wq", 16)
        if nq:
            k(f"s_lshl_b32 s55, s2, 2\ns_add_u32 s55, s55, s13\ns_mul_i32 s55, s55, {nq*128}")
            k(f"v_min_u32 v53, {nq-1}, v{LANE}\nv_lshlrev_b32 v53, 7, v53\nv_add_u32 v53, s55, v53")
            k("global_load_dword v53, v53, s[50:51]")
            nafter += 1
    srd(k, 32, 8, FLAG_BYTES, WS_FLAG)
    srd(k, 36, 8, 65536, WS_MODP + 65536)
    srd(k, 44, 8, S * 128, WS_STAT)
    k("v_mov_b32 v56, 0\nv_lshlrev_b32 v57, 2, v0\ns_lshl_b32 s57, s2, 10")
    k("buffer_store_dword v56, v57, s[32:35], s57 offen")
    k("buffer_store_dword v56, v57, s[36:39], s57 offen")
    k("buffer_store_dword v56, v57, s[44:47], s57 offen")
    nafter += 3
    srd(k, 28, 8, 65536, WS_MODP)
    k(f"v_and_b32 v{T}, 7, v{LANE}\nv_lshlrev_b32 v{LA}, 5, v{T}")
    k(f"v_lshrrev_b32 v{T}, 5, v{LANE}\nv_lshl_add_u32 v{LA}, v{T}, 4, v{LA}")
    k(f"v_bfe_u32 v{T}, v{LANE}, 4, 1\nv_lshl_add_u32 v{LA}, v{T}, 3, v{LA}")
    k("s_lshl_b32 s14, s13, 8")
    k(f"v_add_u32 v{LA}, s14, v{LA}")
    k("s_lshl_b32 s58, s16, 13\ns_lshl_b32 s18, s15, 8\ns_add_u32 s58, s58, s18")
    gemv_compute(k, 4, WA, CA, ACC, T, nafter)
    k(f"ds_write_b64 v{LA}, {vr(ACC,2)}")
    k("s_waitcnt lgkmcnt(0)\ns_barrier")
    stamp(k, 2)
    skip = k.label("skip")
    k(f"s_cmp_lg_u32 s13, 0\ns_cbranch_scc1 {skip}")
    k(f"v_lshlrev_b32 v{T}, 2, v{LANE}")
    for w in range(4): k(f"ds_read_b32 v{ACC+w}, v{T} offset:{w*256}")
    k("s_waitcnt lgkmcnt(0)")
    k(f"v_add_f32 v{ACC}, v{ACC}, v{ACC+1}\nv_add_f32 v{ACC+2}, v{ACC+2}, v{ACC+3}\nv_add_f32 v{ACC}, v{ACC}, v{ACC+2}")
    k(f"buffer_store_dword v{ACC}, v{T}, s[28:31], s58 offen")
    k(f"{skip}:")
    stamp(k, 3)
    if instr: k("s_waitcnt vmcnt(0)")
    stamp(k, 4)
    stamp_flush(k, 8, 5, 4, slot=slot)
    k(f"{end}:\ns_endpgm")
    return k

def red8(k, x, t):
    k("s_nop 1")
    k(f"v_add_f32_dpp v{x}, v{x}, v{x} quad_perm:[1,0,3,2] row_mask:0xf bank_mask:0xf")
    k("s_nop 1")
    k(f"v_add_f32_dpp v{x}, v{x}, v{x} quad_perm:[2,3,0,1] row_mask:0xf bank_mask:0xf")
    k("s_nop 1")
    k(f"v_add_f32_dpp v{x}, v{x}, v{x} row_half_mirror row_mask:0xf bank_mask:0xf")

def build_k1(name="h_kernel", instr=False, slot=0):
    k = Kernel(name, 256, 256, 8192 + 512, vgpr=160, sgpr=102)
    k.instr = instr; k.s_wave = 13
    stamp(k, 0)
    end = k.label("end")
    k(f"s_cmp_ge_u32 s2, 256\ns_cbranch_scc1 {end}")
    k(f"s_load_dwordx2 s[4:5], s[0:1], {KA['x']}")
    k(f"s_load_dwordx2 s[8:9], s[0:1], {KA['ws']}")
    LANE, T, VX, VP, VS, VL = 1, 2, 6, 7, 8, 9
    X = 16
    PR = 32
    XF = 96
    M = 128
    k(f"v_lshrrev_b32 v{T}, 6, v0\nv_and_b32 v{LANE}, 63, v0")
    k(f"v_lshrrev_b32 v{T+1}, 3, v{LANE}\nv_and_b32 v{T+2}, 7, v{LANE}")
    k(f"v_readfirstlane_b32 s13, v{T}")
    k(f"v_lshlrev_b32 v{VX}, 11, v{T+1}\nv_lshl_add_u32 v{VX}, v{T+2}, 4, v{VX}")
    k("s_lshl_b32 s14, s2, 14\ns_lshl_b32 s15, s13, 9\ns_add_u32 s14, s14, s15")
    k(f"v_lshlrev_b32 v{VP}, 5, v0")
    k(f"v_lshrrev_b32 v{VS}, 2, v{T+2}\nv_lshlrev_b32 v{VS}, 10, v{VS}")
    k(f"v_and_b32 v{T+3}, 3, v{T+2}\nv_lshl_add_u32 v{VS}, v{T+3}, 8, v{VS}")
    k(f"v_lshl_add_u32 v{VS}, v{T+1}, 4, v{VS}")
    k("s_lshr_b32 s16, s2, 1\ns_lshl_b32 s16, s16, 15\ns_lshl_b32 s17, s13, 13\ns_add_u32 s16, s16, s17")
    k("s_and_b32 s17, s2, 1\ns_lshl_b32 s17, s17, 7\ns_add_u32 s16, s16, s17\ns_add_u32 s17, s16, 4096")
    k(f"v_lshlrev_b32 v{VL}, 5, v{T+2}\ns_lshl_b32 s18, s13, 10\nv_add_u32 v{VL}, s18, v{VL}")
    k("s_waitcnt lgkmcnt(0)")
    srd(k, 20, 4, S * D * 2)
    srd(k, 24, 8, 131072, WS_MODP)
    srd(k, 28, 8, S * D * 2, WS_H)
    srd(k, 32, 8, 6 * 4096, WS_MOD)
    for i in range(4): k(f"buffer_load_dwordx4 {vr(X+4*i,4)}, v{VX}, s[20:23], s14 offen offset:{i*128}")
    for p in range(8):
        k(f"s_mov_b32 s19, {p*8192}")
        for h in range(2): k(f"buffer_load_dwordx4 {vr(PR+8*p+4*h,4)}, v{VP}, s[24:27], s19 offen offset:{h*16}")
    stamp(k, 1)
    k("s_waitcnt vmcnt(16)")
    for d in range(16):
        k(f"v_lshlrev_b32 v{XF+2*d}, 16, v{X+d}\nv_and_b32 v{XF+2*d+1}, 0xffff0000, v{X+d}")
    SU = 10
    k(f"v_pk_add_f32 {vr(SU,2)}, {vr(XF,2)}, {vr(XF+2,2)}")
    for d in range(2, 16): k(f"v_pk_add_f32 {vr(SU,2)}, {vr(SU,2)}, {vr(XF+2*d,2)}")
    k(f"v_add_f32 v{SU}, v{SU}, v{SU+1}")
    red8(k, SU, T)
    k(f"v_lshlrev_b32 v{T+3}, 4, v{T+1}\ns_lshl_b32 s18, s13, 2\nv_add_u32 v{T}, s18, v{T+3}")
    k(f"ds_write_b32 v{T}, v{SU} offset:8192")
    k("s_waitcnt lgkmcnt(0)\ns_barrier")
    k(f"ds_read_b128 {vr(12,4)}, v{T+3} offset:8192")
    k("s_waitcnt lgkmcnt(0)")
    k(f"v_add_f32 v12, v12, v13\nv_add_f32 v14, v14, v15\nv_add_f32 v12, v12, v14")
    k(f"v_mul_f32 v12, {-1.0/1024!r}, v12\nv_mov_b32 v13, v12")
    k(f"v_mov_b32 v{SU}, 0\nv_mov_b32 v{SU+1}, 0")
    for d in range(16):
        k(f"v_pk_add_f32 {vr(XF+2*d,2)}, {vr(XF+2*d,2)}, {vr(12,2)}")
        k(f"v_pk_fma_f32 {vr(SU,2)}, {vr(XF+2*d,2)}, {vr(XF+2*d,2)}, {vr(SU,2)}")
    k(f"v_add_f32 v{SU}, v{SU}, v{SU+1}")
    red8(k, SU, T)
    k(f"ds_write_b32 v{T}, v{SU} offset:{8192+256}")
    k("s_waitcnt vmcnt(0)")
    for p in range(1, 8):
        for j in range(4): k(f"v_pk_add_f32 {vr(PR+2*j,2)}, {vr(PR+2*j,2)}, {vr(PR+8*p+2*j,2)}")
    for j in range(4):
        k(f"v_cvt_pk_bf16_f32 v{PR+8+j}, v{PR+2*j}, v{PR+2*j+1}")
    for j in range(4):
        k(f"v_lshlrev_b32 v{PR+2*j}, 16, v{PR+8+j}\nv_and_b32 v{PR+2*j+1}, 0xffff0000, v{PR+8+j}")
    sk = k.label("noca")
    k(f"s_cmp_lt_u32 s13, 2\ns_cbranch_scc1 {sk}")
    for j in range(8): k(f"v_add_f32 v{PR+j}, 1.0, v{PR+j}")
    for j in range(4): k(f"v_cvt_pk_bf16_f32 v{PR+8+j}, v{PR+2*j}, v{PR+2*j+1}")
    for j in range(4): k(f"v_lshlrev_b32 v{PR+2*j}, 16, v{PR+8+j}\nv_and_b32 v{PR+2*j+1}, 0xffff0000, v{PR+8+j}")
    k(f"{sk}:")
    k(f"ds_write_b128 v{VP}, {vr(PR,4)}\nds_write_b128 v{VP}, {vr(PR+4,4)} offset:16")
    k("s_waitcnt lgkmcnt(0)\ns_barrier")
    k(f"ds_read_b128 {vr(12,4)}, v{T+3} offset:{8192+256}")
    k("s_waitcnt lgkmcnt(0)")
    k(f"v_add_f32 v12, v12, v13\nv_add_f32 v14, v14, v15\nv_add_f32 v12, v12, v14")
    k(f"v_mov_b32 v13, 0x3727c5ac\nv_fmac_f32 v13, {1.0/1024!r}, v12\nv_rsq_f32 v12, v13\ns_nop 0\nv_mov_b32 v13, v12")
    stamp(k, 2)
    for i in range(4):
        for h in range(2):
            k(f"ds_read_b128 {vr(M+4*h,4)}, v{VL} offset:{i*256+h*16}")
            k(f"ds_read_b128 {vr(M+8+4*h,4)}, v{VL} offset:{4096+i*256+h*16}")
        for j in range(4): k(f"v_pk_mul_f32 {vr(XF+8*i+2*j,2)}, {vr(XF+8*i+2*j,2)}, {vr(12,2)}")
        k("s_waitcnt lgkmcnt(0)")
        for j in range(4): k(f"v_pk_fma_f32 {vr(XF+8*i+2*j,2)}, {vr(XF+8*i+2*j,2)}, {vr(M+8+2*j,2)}, {vr(M+2*j,2)}")
        for j in range(4): k(f"v_cvt_pk_bf16_f32 v{X+4*i+j}, v{XF+8*i+2*j}, v{XF+8*i+2*j+1}")
        k(f"buffer_store_dwordx4 {vr(X+4*i,4)}, v{VS}, s[28:31], s{16 + i//2} offen offset:{(i%2)*2048}")
    fin = k.label("fin")
    k(f"s_cmp_ge_u32 s2, 16\ns_cbranch_scc1 {fin}")
    k(f"v_lshlrev_b32 v{T}, 2, v0\ns_lshl_b32 s18, s2, 10\ns_add_u32 s19, s18, 65536")
    for p in range(4):
        k(f"buffer_load_dword v{PR+p}, v{T}, s[24:27], s19 offen\ns_add_u32 s19, s19, 16384")
    k("s_waitcnt vmcnt(0)")
    k(f"v_add_f32 v{PR}, v{PR}, v{PR+1}\nv_add_f32 v{PR+2}, v{PR+2}, v{PR+3}\nv_add_f32 v{PR}, v{PR}, v{PR+2}")
    k(f"v_cvt_pk_bf16_f32 v{PR}, v{PR}, v{PR}\nv_and_b32 v{PR}, 0xffff0000, v{PR}")
    nc = k.label("nocb")
    k(f"s_lshr_b32 s19, s2, 2\ns_cmp_lg_u32 s19, 2\ns_cbranch_scc1 {nc}")
    k(f"v_add_f32 v{PR}, 1.0, v{PR}\nv_cvt_pk_bf16_f32 v{PR}, v{PR}, v{PR}\nv_and_b32 v{PR}, 0xffff0000, v{PR}")
    k(f"{nc}:")
    k("s_add_u32 s18, s18, 8192")
    k(f"buffer_store_dword v{PR}, v{T}, s[32:35], s18 offen")
    k(f"{fin}:")
    stamp(k, 3)
    if instr: k("s_waitcnt vmcnt(0)")
    stamp(k, 4)
    stamp_flush(k, 8, 5, 2, slot=slot)
    k(f"{end}:\ns_endpgm")
    return k

if __name__ == "__main__":
    open("front.s", "w").write(build_file([build_k0(instr=True, slot=0), build_k1(instr=True, slot=1)]))

def lane_reduce8(k, ACC):
    k("s_nop 1")
    for j in range(4): k(f"v_permlane32_swap_b32 v{ACC+j}, v{ACC+j+4}")
    k("s_nop 1")
    for j in range(4): k(f"v_add_f32 v{ACC+j}, v{ACC+j}, v{ACC+j+4}")
    k("s_nop 1")
    for j in range(2): k(f"v_permlane16_swap_b32 v{ACC+j}, v{ACC+j+2}")
    k("s_nop 1")
    for j in range(2): k(f"v_add_f32 v{ACC+j}, v{ACC+j}, v{ACC+j+2}")
    k("s_nop 1")
    for j in range(2): k(f"v_add_f32_dpp v{ACC+j}, v{ACC+j}, v{ACC+j} row_ror:8 row_mask:0xf bank_mask:0xf")

def build_ut(name="ut_kernel", instr=False, slot=0):
    k = Kernel(name, 448, 256, 4096, vgpr=96, sgpr=102)
    k.instr = instr; k.s_wave = 13
    stamp(k, 0)
    end = k.label("end")
    k(f"s_cmp_ge_u32 s2, 448\ns_cbranch_scc1 {end}")
    k(f"s_load_dwordx4 s[4:7], s[0:1], {KA['w1']}")
    k(f"s_load_dwordx2 s[8:9], s[0:1], {KA['ws']}")
    LANE, VO_W, VO_C, T, LA = 1, 2, 3, 4, 6
    k(f"v_lshrrev_b32 v{T}, 6, v0\nv_and_b32 v{LANE}, 63, v0")
    k(f"v_lshrrev_b32 v{T+1}, 3, v{LANE}")
    k(f"v_readfirstlane_b32 s13, v{T}")
    k(f"v_mul_u32_u24 v{VO_W}, 7168, v{T+1}")
    k(f"v_and_b32 v{T}, 7, v{LANE}\nv_lshl_add_u32 v{VO_W}, v{T}, 4, v{VO_W}")
    k(f"v_lshlrev_b32 v{VO_C}, 2, v{T+1}")
    k(f"v_lshlrev_b32 v{LA}, 5, v{T}")
    k(f"v_lshrrev_b32 v{T}, 5, v{LANE}\nv_lshl_add_u32 v{LA}, v{T}, 4, v{LA}")
    k(f"v_bfe_u32 v{T}, v{LANE}, 4, 1\nv_lshl_add_u32 v{LA}, v{T}, 3, v{LA}")
    k("s_lshl_b32 s14, s13, 8")
    k(f"v_add_u32 v{LA}, s14, v{LA}")
    k("s_mul_i32 s15, s2, 586\ns_lshr_b32 s15, s15, 16")
    k("s_mul_i32 s16, s15, 112\ns_sub_u32 s16, s2, s16")
    k("s_cmp_ge_u32 s16, 56\ns_cselect_b32 s17, 1, 0")
    k("s_mul_i32 s18, s17, 56\ns_sub_u32 s16, s16, s18")
    k("s_lshl_b32 s18, s15, 8\ns_lshl_b32 s19, s13, 6\ns_add_u32 s18, s18, s19")
    k("s_mul_i32 s40, s18, 7168\ns_lshl_b32 s19, s16, 7\ns_add_u32 s40, s40, s19")
    k(f"s_lshl_b32 s41, s18, 2\ns_add_u32 s42, s41, {3*4096}\ns_add_u32 s41, s41, {4*4096}")
    k("s_waitcnt lgkmcnt(0)")
    k("s_cmp_eq_u32 s17, 0\ns_cselect_b32 s20, s4, s6\ns_cselect_b32 s21, s5, s7")
    k(f"s_mov_b32 s22, {D*F*2}\ns_mov_b32 s23, 0x20000")
    srd(k, 24, 8, 6 * 4096, WS_MOD)
    srd(k, 28, 8, 32 * 14336, WS_UT)
    W_, CU, CT, AU, AT = 16, 48, 56, 64, 72
    for i in range(8):
        k(f"buffer_load_dwordx4 {vr(W_+4*i,4)}, v{VO_W}, s[20:23], s40 offen")
        if i < 7: k(f"s_add_u32 s40, s40, {8*7168}")
    for i in range(8):
        k(f"buffer_load_dword v{CU+i}, v{VO_C}, s[24:27], s41 offen offset:{i*32}")
        k(f"buffer_load_dword v{CT+i}, v{VO_C}, s[24:27], s42 offen offset:{i*32}")
    for j in range(16): k(f"v_mov_b32 v{AU+j}, 0")
    k("s_waitcnt vmcnt(0)")
    for i in range(8):
        for d in range(4):
            k(f"v_lshlrev_b32 v{T}, 16, v{W_+4*i+d}")
            k(f"v_and_b32 v{T+1}, 0xffff0000, v{W_+4*i+d}")
            k(f"v_fmac_f32 v{AU+2*d}, v{T}, v{CU+i}\nv_fmac_f32 v{AU+2*d+1}, v{T+1}, v{CU+i}")
            k(f"v_fmac_f32 v{AT+2*d}, v{T}, v{CT+i}\nv_fmac_f32 v{AT+2*d+1}, v{T+1}, v{CT+i}")
    lane_reduce8(k, AU); lane_reduce8(k, AT)
    k(f"ds_write_b64 v{LA}, {vr(AU,2)}\nds_write_b64 v{LA}, {vr(AT,2)} offset:1024")
    k("s_waitcnt lgkmcnt(0)\ns_barrier")
    k(f"s_cmp_lg_u32 s13, 0\ns_cbranch_scc1 {end}")
    k(f"v_lshlrev_b32 v{T}, 2, v{LANE}")
    for w in range(4):
        k(f"ds_read_b32 v{AU+w}, v{T} offset:{w*256}\nds_read_b32 v{AT+w}, v{T} offset:{1024+w*256}")
    k(f"s_lshl_b32 s19, s16, 6\nv_add_u32 v10, s19, v{LANE}")
    k("v_mul_u32_u24 v11, 9363, v10\nv_lshrrev_b32 v11, 20, v11")
    k("v_mul_u32_u24 v12, 112, v11\nv_sub_u32 v12, v10, v12")
    k("v_lshrrev_b32 v13, 4, v12\nv_and_b32 v14, 1, v11\nv_sub_u32 v13, v13, v14\nv_min_u32 v13, 6, v13")
    k("v_mul_u32_u24 v11, 14336, v11\nv_lshl_add_u32 v11, v13, 11, v11")
    k("v_and_b32 v12, 15, v12\nv_lshl_add_u32 v11, v12, 4, v11")
    k("s_lshl_b32 s19, s17, 10\ns_lshl_b32 s18, s15, 8\ns_add_u32 s19, s19, s18")
    k("s_waitcnt lgkmcnt(0)")
    for A_ in (AU, AT):
        k(f"v_add_f32 v{A_}, v{A_}, v{A_+1}\nv_add_f32 v{A_+2}, v{A_+2}, v{A_+3}\nv_add_f32 v{A_}, v{A_}, v{A_+2}")
        k(f"v_cvt_pk_bf16_f32 v{A_+1}, v{A_}, v{A_}\nv_and_b32 v{A_+1}, 0xffff0000, v{A_+1}\nv_sub_f32 v{A_+1}, v{A_}, v{A_+1}")
    k(f"v_cvt_pk_bf16_f32 v16, v{AU}, v{AU+1}\nv_cvt_pk_bf16_f32 v17, v{AU}, v{AT}\nv_cvt_pk_bf16_f32 v18, v{AT+1}, v{AT}\nv_mov_b32 v19, 0")
    k("buffer_store_dwordx4 v[16:19], v11, s[28:31], s19 offen")
    k(f"{end}:\ns_endpgm")
    return k
```

```python
S, D, H, F = 2048, 1024, 32, 3584
MB = 1 << 20
WS_MODP = 0
WS_UT   = 1 * MB
WS_STAT = 2 * MB
WS_KVP  = 4 * MB
WS_H    = 16 * MB
WS_PHIQ = 24 * MB
WS_O    = 32 * MB
WS_X1   = 40 * MB
WS_Y    = 48 * MB
WS_HH   = 64 * MB
KA = dict(x=0, wqkv=8, wphi=16, wo=24, bx=32, w1=40, w3=48, w2=56, c=64, wmod=72, out=80, dbg=88, ws=96)
WS_MOD = 3 * MB
WS_FLAG = 3 * MB + 512 * 1024
WS_ZP   = 8 * MB
F_H, F_KV, F_O, F_Y, F_HH, F_UT, F_P4 = 0, 8192, 16384, 24576, 32768, 40960, 45056
FLAG_BYTES = 65536
```

```python
import sys
from asmlib import *
from gemm import *
from layout import *
LOG2E = 1.4426950408889634
P_X, P_WQKV, P_WPHI, P_WO, P_W1, P_W3, P_W2, P_OUT, P_WS = 4, 6, 8, 10, 14, 16, 18, 24, 28
P_C, P_WMOD = 12, 98
S_WAVE, S_XCD, S_IDX = 3, 30, 31
SRD_W, SRD_T, SRD_A, SRD_B, SRD_C, SRD_D, SRD_F = 32, 36, 40, 44, 48, 52, 56
S_KW, S_KT, S_WB, S_ROT, S_TMP, S_ROT2 = 60, 62, 76, 77, 78, 79
S_RB1, S_HP, S_RB2, S_NT, S_RB3, S_FT = 26, 27, 20, 21, 22, 23
VSTAMP = 255
L_WPH, L_UTC = 101376, 105472
L_UT3, L_MV, L_R2 = 114688, 128000, 129792
LDS_TOTAL = 163584

class Mega(Kernel):
    nst = 0
    def stamp(self, name=""):
        if not self.instr: return
        self("s_waitcnt lgkmcnt(0)\ns_memrealtime s[0:1]\ns_waitcnt lgkmcnt(0)")
        self(f"v_writelane_b32 v{VSTAMP}, s0, {self.nst}")
        self.names.append(name); self.nst += 1

def lane_id(k, v):
    k(f"v_mbcnt_lo_u32_b32 v{v}, -1, 0\nv_mbcnt_hi_u32_b32 v{v}, -1, v{v}")

def code_prefetch_setup(k, name, s_pc=100):
    lab = k.label("pc")
    k(f"s_getpc_b64 s[{s_pc}:{s_pc+1}]")
    k(f"{lab}:")
    k(f"s_sub_u32 s{s_pc}, s{s_pc}, {lab}-{name}\ns_subb_u32 s{s_pc+1}, s{s_pc+1}, 0")
def code_prefetch_txt(name, v_l16, vt, s_tmp, s_idx=S_IDX, s_wave=S_WAVE, s_pc=100):
    return [f"s_lshl_b32 s{s_tmp}, s{s_idx}, 2", f"s_add_u32 s{s_tmp}, s{s_tmp}, s{s_wave}", f"s_lshl_b32 s{s_tmp}, s{s_tmp}, 10",
            f"v_add_u32 v{vt}, s{s_tmp}, v{v_l16}", f"v_min_u32 v{vt}, {name}_end-{name}-4, v{vt}",
            f"global_load_dword v{vt}, v{vt}, s[{s_pc}:{s_pc+1}]"]

def publish(k, s_off, vt):
    k(f"v_mov_b32 v{vt}, 1\nv_mov_b32 v{vt+1}, 0")
    k("s_waitcnt vmcnt(0)")
    k(f"buffer_store_dword v{vt}, v{vt+1}, {sr(SRD_F,4)}, s{s_off} offen sc1")

def spin(k, loads, regs, vt, s_cnt=96):
    top, ok = k.label("poll"), k.label("ok")
    k(f"s_mov_b32 s{s_cnt}, 0")
    k(f"{top}:")
    for x in loads: k(x)
    k("s_waitcnt vmcnt(0)")
    if len(regs) == 1: k(f"v_cmp_eq_u32 vcc, 0, v{regs[0]}")
    else:
        k(f"v_min_u32 v{vt}, v{regs[0]}, v{regs[1]}")
        for x in regs[2:]: k(f"v_min_u32 v{vt}, v{vt}, v{x}")
        k(f"v_cmp_eq_u32 vcc, 0, v{vt}")
    k(f"s_add_u32 s{s_cnt}, s{s_cnt}, 1")
    k(f"s_cmp_eq_u64 vcc, 0\ns_cbranch_scc1 {ok}")
    k(f"s_sleep 1\ns_cmp_lt_u32 s{s_cnt}, 0x40000\ns_cbranch_scc1 {top}")
    k(f"{ok}:")

def wait_flags(k, polls, vt, s_cnt=96):
    top, ok = k.label("poll"), k.label("ok")
    k(f"s_mov_b32 s{s_cnt}, 0")
    k(f"{top}:")
    r = vt
    regs = []
    for va, so, ndw in polls:
        if ndw == 4: r = (r + 1) // 2 * 2
        k(f"buffer_load_dword{'x4' if ndw == 4 else ''} {vr(r,ndw)}, v{va}, {sr(SRD_F,4)}, s{so} offen sc1")
        regs += list(range(r, r + ndw)); r += ndw
    k("s_waitcnt vmcnt(0)")
    for x in regs[1:]: k(f"v_min_u32 v{regs[0]}, v{regs[0]}, v{x}")
    k(f"v_cmp_eq_u32 vcc, 0, v{regs[0]}")
    k(f"s_add_u32 s{s_cnt}, s{s_cnt}, 1")
    k(f"s_cmp_eq_u64 vcc, 0\ns_cbranch_scc1 {ok}")
    k(f"s_sleep 1\ns_cmp_lt_u32 s{s_cnt}, 0x40000\ns_cbranch_scc1 {top}")
    k(f"{ok}:")

def allreduce_q(k, op, x, tmp):
    k(f"v_mov_b32 v{tmp}, v{x}\ns_nop 1")
    k(f"v_permlane32_swap_b32 v{x}, v{tmp}")
    k(f"s_nop 1\n{op} v{x}, v{x}, v{tmp}")
    k(f"v_mov_b32 v{tmp}, v{x}\ns_nop 1")
    k(f"v_permlane16_swap_b32 v{x}, v{tmp}")
    k(f"s_nop 1\n{op} v{x}, v{x}, v{tmp}")

def treduce4(k, op, A):
    a, b, c, d = A
    k("s_nop 1")
    k(f"v_permlane32_swap_b32 v{a}, v{b}\nv_permlane32_swap_b32 v{c}, v{d}")
    k("s_nop 1")
    k(f"{op} v{a}, v{a}, v{b}\n{op} v{c}, v{c}, v{d}")
    k("s_nop 1")
    k(f"v_permlane16_swap_b32 v{a}, v{c}")
    k("s_nop 1")
    k(f"{op} v{a}, v{a}, v{c}")
    k(f"v_mov_b32 v{c}, v{a}")
    k("s_nop 1")
    k(f"v_permlane16_swap_b32 v{a}, v{c}")
    k("s_nop 1")
    k(f"v_mov_b32 v{b}, v{a}\nv_mov_b32 v{d}, v{c}")
    k("s_nop 1")
    k(f"v_permlane32_swap_b32 v{a}, v{b}\nv_permlane32_swap_b32 v{c}, v{d}")
    k("s_nop 1")

def red8(k, x):
    for m in ("quad_perm:[1,0,3,2]", "quad_perm:[2,3,0,1]", "row_half_mirror"):
        k(f"s_nop 1\nv_add_f32_dpp v{x}, v{x}, v{x} {m} row_mask:0xf bank_mask:0xf")

def round_bf16(k, v):
    k(f"v_cvt_pk_bf16_f32 v{v}, v{v}, v{v}\nv_and_b32 v{v}, 0xffff0000, v{v}")

def common_gemm(c):
    c.srd_w, c.srd_t = SRD_W, SRD_T
    c.s_kw, c.s_kt, c.s_wbase, c.s_rot, c.s_rot2 = S_KW, S_KT, S_WB, S_ROT, S_ROT2

def setup_gemm1(k, opt):
    c = Sched(); common_gemm(c)
    NS, R = opt.get("g1_NS", 4), opt.get("g1_R", 4)
    STAGE = 25344
    c.V_RD, c.V_DMA, c.V_TOK, c.LANE, c.L16, c.VT = 96, 98, 102, 104, 105, 106
    V_RD, V_DMA, V_TOK, LANE, L16, VT = c.V_RD, c.V_DMA, c.V_TOK, c.LANE, c.L16, c.VT
    k(f"v_and_b32 v{LANE}, 63, v0")
    k(f"v_lshlrev_b32 v{L16}, 4, v{LANE}")
    k(f"s_and_b32 s80, s{S_IDX}, 3\ns_lshl_b32 s80, s80, 1\ns_lshr_b32 s81, s{S_IDX}, 2\ns_add_u32 s{S_ROT}, s80, s81\ns_add_u32 s{S_ROT2}, s81, s{S_IDX}")
    k(f"s_lshr_b32 s80, s{S_WAVE}, 1\ns_and_b32 s81, s{S_WAVE}, 1")
    k(f"v_lshrrev_b32 v{VT+1}, 3, v{LANE}")
    k(f"v_and_b32 v{VT+2}, 4, v{VT+1}")
    k(f"v_bfe_u32 v{VT+3}, v{VT+1}, 1, 1\nv_or_b32 v{VT+2}, v{VT+2}, v{VT+3}")
    k(f"v_and_b32 v{VT+3}, 1, v{VT+1}\nv_lshl_or_b32 v{VT+2}, v{VT+3}, 1, v{VT+2}")
    k(f"v_mul_u32_u24 v{VT+2}, {4*6144}, v{VT+2}")
    k(f"v_and_b32 v{VT+3}, 7, v{LANE}\nv_lshl_add_u32 v{VT+2}, v{VT+3}, 4, v{VT+2}")
    k("s_lshl_b32 s82, s80, 5\ns_lshl_b32 s83, s81, 1\ns_add_u32 s82, s82, s83\ns_mul_i32 s82, s82, 6144")
    k(f"s_lshl_b32 s83, s{S_HP}, 7\ns_add_u32 s82, s82, s83")
    k(f"v_add_u32 v{V_DMA}, s82, v{VT+2}")
    k(f"v_add_u32 v{V_DMA+1}, 6144, v{V_DMA}\nv_add_u32 v{V_DMA+2}, 4096, v{V_DMA}\nv_add_u32 v{V_DMA+3}, {6144+4096}, v{V_DMA}")
    k(f"v_bfe_u32 v{VT+1}, v{LANE}, 2, 2\nv_mul_u32_u24 v{VT+1}, 1056, v{VT+1}")
    k(f"v_lshrrev_b32 v{VT+2}, 5, v{LANE}\nv_lshl_add_u32 v{VT+1}, v{VT+2}, 9, v{VT+1}")
    k(f"v_bfe_u32 v{VT+2}, v{LANE}, 4, 1\nv_lshl_add_u32 v{VT+1}, v{VT+2}, 7, v{VT+1}")
    k(f"v_and_b32 v{VT+3}, 3, v{LANE}\nv_lshl_add_u32 v{V_RD}, v{VT+3}, 3, v{VT+1}")
    k(f"v_add_u32 v{V_RD+1}, {2*STAGE}, v{V_RD}")
    k(f"s_lshl_b32 s82, s{S_RB1}, 3\ns_lshl_b32 s83, s{S_WAVE}, 1\ns_add_u32 s82, s82, s83\ns_lshl_b32 s82, s82, 15")
    k(f"v_add_u32 v{V_TOK}, s82, v{L16}\nv_add_u32 v{V_TOK+1}, 0x8000, v{V_TOK}")
    k(f"s_mul_i32 s{S_WB}, s80, 4224\ns_mul_i32 s82, s81, 2112\ns_add_u32 s{S_WB}, s{S_WB}, s82")
    c.NB, c.TB, c.KS, c.SPK, c.KT, c.NS, c.R = 12, 2, 1, 2, 16, NS, R
    c.acc = lambda b, t: vr((b * 2 + t) * 4, 4)
    c.tf = lambda slot, ks, t: 96 + (slot * 2 + t) * 4
    c.rd = lambda sl, b, sub, r: (V_RD + sl // 2, (sl % 2) * STAGE + (b // 4) * 8448 + sub * 4224 + r * 256 + (b % 4) * 32)
    c.slot_addr = lambda sl: sl * STAGE
    c.dma = [(V_DMA, 0, 0), (V_DMA + 1, 1056, 0), (V_DMA, 8448, 2048), (V_DMA + 1, 8448 + 1056, 2048), (V_DMA + 2, 16896, 0), (V_DMA + 3, 16896 + 1056, 0)]
    c.v_tok = [V_TOK, V_TOK + 1]
    c.w_stride = 64 * 6144
    c.wins = win_mask(opt.get("g1_wins", [1, 1, 2, 4, 8])); c.drop = opt.get("g1_drop", ())
    c.pro_units, c.ramp_rate, c.read_margin = opt.get("g1_pro", 6), opt.get("g1_ramp", 6), opt.get("g1_rm", 6)
    std_sched(c)
    return c

def phase_h(k, g1, opt):
    LANE = g1.LANE
    T, VX, VP, VS, VL, SU = 48, 52, 53, 54, 55, 56
    X, PR, XF, M = 128, 144, 0, 32
    HL = 2 * 25344
    k(f"v_lshrrev_b32 v{T+1}, 3, v{LANE}\nv_and_b32 v{T+2}, 7, v{LANE}")
    k(f"v_lshlrev_b32 v{VX}, 11, v{T+1}\nv_lshl_add_u32 v{VX}, v{T+2}, 4, v{VX}")
    k(f"s_lshl_b32 s84, s{S_RB1}, 4\ns_add_u32 s84, s84, s{S_HP}")
    k(f"s_lshl_b32 s85, s84, 14\ns_lshl_b32 s86, s{S_WAVE}, 9\ns_add_u32 s85, s85, s86")
    k(f"v_and_b32 v{VP}, 255, v0\nv_lshlrev_b32 v{VP}, 5, v{VP}")
    k("s_waitcnt lgkmcnt(0)")
    srd(k, SRD_A, P_X, S * D * 2)
    srd(k, SRD_B, P_WS, 131072, WS_MODP)
    for i in range(4): k(f"buffer_load_dwordx4 {vr(X+4*i,4)}, v{VX}, {sr(SRD_A,4)}, s85 offen offset:{i*128}")
    for p in range(8):
        k(f"s_mov_b32 s89, {p*8192}")
        for h in range(2): k(f"buffer_load_dwordx4 {vr(PR+8*p+4*h,4)}, v{VP}, {sr(SRD_B,4)}, s89 offen offset:{h*16}")
    srd(k, SRD_W, P_WQKV, D * 3 * D * 2)
    n0 = opt.get("h_pre0", 6)
    g1.prefetch(k, n0)
    srd(k, SRD_T, P_WS, S * D * 2, WS_H)
    srd(k, SRD_F, P_WS, FLAG_BYTES, WS_FLAG)
    k(f"v_lshrrev_b32 v{VS}, 2, v{T+2}\nv_lshlrev_b32 v{VS}, 10, v{VS}")
    k(f"v_and_b32 v{T+3}, 3, v{T+2}\nv_lshl_add_u32 v{VS}, v{T+3}, 8, v{VS}")
    k(f"v_lshl_add_u32 v{VS}, v{T+1}, 4, v{VS}")
    k(f"s_lshr_b32 s86, s84, 1\ns_lshl_b32 s86, s86, 15\ns_lshl_b32 s87, s{S_WAVE}, 13\ns_add_u32 s86, s86, s87")
    k("s_and_b32 s87, s84, 1\ns_lshl_b32 s87, s87, 7\ns_add_u32 s86, s86, s87\ns_add_u32 s87, s86, 4096")
    k(f"v_lshlrev_b32 v{VL}, 5, v{T+2}\ns_lshl_b32 s88, s{S_WAVE}, 10\nv_add_u32 v{VL}, s88, v{VL}")
    k(f"s_waitcnt vmcnt({16+n0})")
    for d in range(16):
        k(f"v_lshlrev_b32 v{XF+2*d}, 16, v{X+d}\nv_and_b32 v{XF+2*d+1}, 0xffff0000, v{X+d}")
    k(f"v_pk_add_f32 {vr(SU,2)}, {vr(XF,2)}, {vr(XF+2,2)}")
    for d in range(2, 16): k(f"v_pk_add_f32 {vr(SU,2)}, {vr(SU,2)}, {vr(XF+2*d,2)}")
    k(f"v_add_f32 v{SU}, v{SU}, v{SU+1}")
    red8(k, SU)
    k(f"v_lshlrev_b32 v{T+3}, 4, v{T+1}\ns_lshl_b32 s88, s{S_WAVE}, 2\nv_add_u32 v{T}, s88, v{T+3}")
    k(f"ds_write_b32 v{T}, v{SU} offset:{HL+8192}")
    k("s_waitcnt lgkmcnt(0)\ns_barrier")
    Q = 60
    k(f"ds_read_b128 {vr(Q,4)}, v{T+3} offset:{HL+8192}")
    k("s_waitcnt lgkmcnt(0)")
    k(f"v_add_f32 v{Q}, v{Q}, v{Q+1}\nv_add_f32 v{Q+2}, v{Q+2}, v{Q+3}\nv_add_f32 v{Q}, v{Q}, v{Q+2}")
    k(f"v_mul_f32 v{Q}, {-1.0/1024!r}, v{Q}")
    k(f"v_mov_b32 v{SU}, 0\nv_mov_b32 v{SU+1}, 0")
    for d in range(16):
        k(f"v_pk_add_f32 {vr(XF+2*d,2)}, {vr(XF+2*d,2)}, {vr(Q,2)} op_sel_hi:[1,0]")
        k(f"v_pk_fma_f32 {vr(SU,2)}, {vr(XF+2*d,2)}, {vr(XF+2*d,2)}, {vr(SU,2)}")
    k(f"v_add_f32 v{SU}, v{SU}, v{SU+1}")
    red8(k, SU)
    k(f"ds_write_b32 v{T}, v{SU} offset:{HL+8192+256}")
    k(f"s_waitcnt vmcnt({n0})")
    for p in range(1, 8):
        for j in range(4): k(f"v_pk_add_f32 {vr(PR+2*j,2)}, {vr(PR+2*j,2)}, {vr(PR+8*p+2*j,2)}")
    for j in range(4): k(f"v_cvt_pk_bf16_f32 v{PR+8+j}, v{PR+2*j}, v{PR+2*j+1}")
    for j in range(4): k(f"v_lshlrev_b32 v{PR+2*j}, 16, v{PR+8+j}\nv_and_b32 v{PR+2*j+1}, 0xffff0000, v{PR+8+j}")
    sk = k.label("noca")
    k(f"s_cmp_lt_u32 s{S_WAVE}, 2\ns_cbranch_scc1 {sk}")
    for j in range(8): k(f"v_add_f32 v{PR+j}, 1.0, v{PR+j}")
    for j in range(4): k(f"v_cvt_pk_bf16_f32 v{PR+8+j}, v{PR+2*j}, v{PR+2*j+1}")
    for j in range(4): k(f"v_lshlrev_b32 v{PR+2*j}, 16, v{PR+8+j}\nv_and_b32 v{PR+2*j+1}, 0xffff0000, v{PR+8+j}")
    k(f"{sk}:")
    k(f"ds_write_b128 v{VP}, {vr(PR,4)} offset:{HL}\nds_write_b128 v{VP}, {vr(PR+4,4)} offset:{HL+16}")
    k("s_waitcnt lgkmcnt(0)\ns_barrier")
    k(f"ds_read_b128 {vr(Q,4)}, v{T+3} offset:{HL+8192+256}")
    for i in range(4):
        for h in range(2):
            k(f"ds_read_b128 {vr(PR+16*i+4*h,4)}, v{VL} offset:{HL+i*256+h*16}")
            k(f"ds_read_b128 {vr(PR+16*i+8+4*h,4)}, v{VL} offset:{HL+4096+i*256+h*16}")
    k("s_waitcnt lgkmcnt(15)")
    k(f"v_add_f32 v{Q}, v{Q}, v{Q+1}\nv_add_f32 v{Q+2}, v{Q+2}, v{Q+3}\nv_add_f32 v{Q}, v{Q}, v{Q+2}")
    k(f"v_mov_b32 v{Q+1}, 0x3727c5ac\nv_fmac_f32 v{Q+1}, {1.0/1024!r}, v{Q}\nv_rsq_f32 v{Q}, v{Q+1}\ns_nop 0")
    for i in range(4):
        for j in range(4): k(f"v_pk_mul_f32 {vr(XF+8*i+2*j,2)}, {vr(XF+8*i+2*j,2)}, {vr(Q,2)} op_sel_hi:[1,0]")
        k(f"s_waitcnt lgkmcnt({12-4*i})")
        for j in range(4): k(f"v_pk_fma_f32 {vr(XF+8*i+2*j,2)}, {vr(XF+8*i+2*j,2)}, {vr(PR+16*i+8+2*j,2)}, {vr(PR+16*i+2*j,2)}")
        for j in range(4): k(f"v_cvt_pk_bf16_f32 v{X+4*i+j}, v{XF+8*i+2*j}, v{XF+8*i+2*j+1}")
        k(f"buffer_store_dwordx4 {vr(X+4*i,4)}, v{VS}, {sr(SRD_T,4)}, s{86 + i//2} offen offset:{(i%2)*2048} sc1")
    k(f"s_lshr_b32 s88, s84, 2\ns_lshl_b32 s88, s88, 7\ns_and_b32 s89, s84, 3\ns_lshl_b32 s89, s89, 2\ns_add_u32 s89, s89, s{S_WAVE}")
    k(f"s_lshl_b32 s89, s89, 2\ns_add_u32 s88, s88, s89\ns_add_u32 s88, s88, {F_H}")
    k.stamp("h computed")
    publish(k, 88, T)
    k.stamp("h published")
    k("s_barrier")
    g1.prefetch(k, opt.get("h_pre1", 12))
    k.g3 = setup_gemm3_early(k, opt, LANE, 56)
    k(f"v_and_b32 v{T}, 15, v{LANE}\nv_lshlrev_b32 v{T}, 2, v{T}")
    k(f"s_lshl_b32 s88, s{S_RB1}, 2\ns_add_u32 s88, s88, s{S_WAVE}\ns_lshl_b32 s88, s88, 7\ns_add_u32 s88, s88, {F_H}")
    wait_flags(k, [(T, 88, 1)], T + 2)
    k.stamp("h ready")

def setup_gemm24(k, which, opt, base):
    c = Sched(); common_gemm(c)
    K = 1024 if which == 2 else 3584
    NS, R = 4, opt.get(f"g{which}_R", 4)
    STAGE = 8448
    V_RD, V_DMA, V_TOK, LANE, L16, VT = base, base + 1, base + 2, base + 4, base + 5, base + 6
    c.LANE, c.L16 = LANE, L16
    lane_id(k, LANE)
    k(f"v_lshlrev_b32 v{L16}, 4, v{LANE}")
    k(f"s_lshr_b32 s80, s{S_IDX}, 3\ns_add_u32 s{S_ROT2}, s80, s{S_IDX}\ns_lshl_b32 s80, s80, 1\ns_add_u32 s{S_ROT}, s80, s{S_IDX}")
    k(f"s_lshr_b32 s80, s{S_WAVE}, 1\ns_and_b32 s81, s{S_WAVE}, 1")
    k("s_lshl_b32 s82, s80, 5\ns_lshl_b32 s83, s81, 1\ns_add_u32 s82, s82, s83\ns_lshl_b32 s82, s82, 11")
    k(f"s_lshl_b32 s83, s{S_NT}, 7\ns_add_u32 s82, s82, s83")
    k(f"v_lshrrev_b32 v{VT}, 3, v{LANE}\nv_lshlrev_b32 v{VT}, 13, v{VT}")
    k(f"v_and_b32 v{VT+1}, 7, v{LANE}\nv_lshl_add_u32 v{VT}, v{VT+1}, 4, v{VT}")
    k(f"v_add_u32 v{V_DMA}, s82, v{VT}")
    k(f"v_bfe_u32 v{VT}, v{LANE}, 2, 2\nv_mul_u32_u24 v{VT}, 1056, v{VT}")
    k(f"v_lshrrev_b32 v{VT+1}, 4, v{LANE}\nv_lshl_add_u32 v{VT}, v{VT+1}, 7, v{VT}")
    k(f"v_and_b32 v{VT+1}, 3, v{LANE}\nv_lshl_add_u32 v{V_RD}, v{VT+1}, 3, v{VT}")
    k(f"v_add_u32 v{V_RD}, {L_R2}, v{V_RD}")
    k(f"s_lshl_b32 s82, s{S_RB2}, 3\ns_lshl_b32 s83, s{S_WAVE}, 1\ns_add_u32 s82, s82, s83\ns_mul_i32 s82, s82, {K//32*1024}")
    k(f"v_add_u32 v{V_TOK}, s82, v{L16}\nv_add_u32 v{V_TOK+1}, {K//32*1024}, v{V_TOK}")
    k(f"s_mul_i32 s{S_WB}, s80, 4224\ns_mul_i32 s82, s81, 2112\ns_add_u32 s{S_WB}, s{S_WB}, s82\ns_add_u32 s{S_WB}, s{S_WB}, {L_R2}")
    srd(k, SRD_W, P_WO if which == 2 else P_W2, K * D * 2)
    c.NB, c.TB, c.KS, c.SPK, c.KT, c.NS, c.R = 4, 2, 2, 1, K // 64, NS, R
    c.acc = lambda b, t: vr((b * 2 + t) * 4, 4)
    c.tf = lambda slot, ks, t: 64 + ((slot * 2 + ks) * 2 + t) * 4
    c.rd = lambda sl, b, sub, r: (V_RD, sl * STAGE + sub * 4224 + r * 512 + b * 32)
    c.slot_addr = lambda sl: sl * STAGE
    c.dma = [(V_DMA, 0, 0), (V_DMA, 1056, 2048)]
    c.v_tok = [V_TOK, V_TOK + 1]
    c.w_stride = 64 * 2048
    c.wins = win_mask(opt.get(f"g{which}_wins", [8] * (K // 512))); c.drop = opt.get(f"g{which}_drop", ())
    c.pro_units, c.ramp_rate, c.read_margin = opt.get(f"g{which}_pro", 12), opt.get(f"g{which}_ramp", 6), 4
    std_sched(c)
    return c

def phase_gemm1(k, c, opt):
    LANE, L16, VT = c.LANE, c.L16, c.VT
    PHK, VV, SH, UTX = 0, 34816, 114688, 126976
    A_PH, A_UT = 160, 176
    p = Txt()
    srd(p, SRD_A, P_WPHI, H * 2048)
    srd(p, SRD_B, P_WS, 2 << 20, WS_KVP)
    srd(p, SRD_C, P_WS, 128 << 10, WS_ZP)
    A_PW, A_VW, A_PR, A_VR, A_WR = 110, 111, 112, 113, 114
    p(f"s_lshr_b32 s80, s{S_WAVE}, 1\ns_and_b32 s81, s{S_WAVE}, 1")
    p(f"v_and_b32 v{VT}, 15, v{LANE}\ns_lshl_b32 s82, s{S_WAVE}, 5\nv_add_u32 v{VT}, s82, v{VT}")
    p(f"v_lshrrev_b32 v{VT+1}, 4, v{LANE}\nv_lshlrev_b32 v{VT+1}, 3, v{VT+1}")
    p(f"v_mul_u32_u24 v{A_PW}, 136, v{VT}\nv_add_u32 v{A_PW}, v{A_PW}, v{VT+1}")
    p(f"v_mul_u32_u24 v{A_VW}, 72, v{VT}\nv_add_u32 v{A_VW}, v{A_VW}, v{VT+1}")
    p(f"v_lshrrev_b32 v{VT}, 2, v{LANE}\nv_and_b32 v{VT+1}, 3, v{LANE}\nv_lshlrev_b32 v{VT+1}, 3, v{VT+1}")
    p(f"s_mul_i32 s82, s80, 17408\ns_lshl_b32 s83, s81, 6\ns_add_u32 s82, s82, s83")
    p(f"v_mul_u32_u24 v{A_PR}, 136, v{VT}\nv_add_u32 v{A_PR}, v{A_PR}, v{VT+1}\nv_add_u32 v{A_PR}, s82, v{A_PR}")
    p(f"s_mul_i32 s82, s80, 9216")
    p(f"v_mul_u32_u24 v{A_VR}, 72, v{VT}\nv_add_u32 v{A_VR}, v{A_VR}, v{VT+1}\nv_add_u32 v{A_VR}, s82, v{A_VR}")
    p(f"v_lshl_add_u32 v{A_WR}, v{VT}, 6, v{VT+1}\nv_add_u32 v{A_WR}, {L_WPH}, v{A_WR}")
    ONES, SEL = 116, 120
    for j in range(4): p(f"v_mov_b32 v{ONES+j}, 0x3f803f80")
    p(f"v_bfe_u32 v{VT}, v{LANE}, 2, 2\nv_lshrrev_b32 v{VT+1}, 4, v{LANE}")
    p(f"v_cmp_eq_u32 vcc, v{VT}, v{VT+1}")
    p(f"v_and_b32 v{VT}, 1, v{LANE}\nv_lshlrev_b32 v{VT}, 4, v{VT}\nv_mov_b32 v{VT+1}, 0x3f80\nv_lshlrev_b32 v{VT+1}, v{VT}, v{VT+1}")
    p(f"v_cndmask_b32 v{VT+1}, 0, v{VT+1}, vcc")
    p(f"v_and_b32 v{VT}, 2, v{LANE}\nv_cmp_eq_u32 vcc, 0, v{VT}")
    for j in (0, 1, 4, 5): p(f"v_mov_b32 v{SEL+j}, 0")
    p(f"v_cndmask_b32 v{SEL+2}, 0, v{VT+1}, vcc\nv_cndmask_b32 v{SEL+3}, v{VT+1}, 0, vcc")
    p(f"s_mov_b32 s94, {LOG2E!r}\ns_mov_b32 s95, {LOG2E!r}")
    p(f"s_lshl_b32 s84, s{S_HP}, 12\ns_lshl_b32 s85, s{S_WAVE}, 10\ns_add_u32 s84, s84, s85\ns_add_u32 s85, s85, {L_WPH}")
    V_UT, V_UC = 115, 109
    p(f"s_mov_b32 s{SRD_D}, s{P_WMOD}\ns_mov_b32 s{SRD_D+1}, s{P_WMOD+1}\ns_mov_b32 s{SRD_D+2}, {D*6*D*2}\ns_mov_b32 s{SRD_D+3}, 0x20000")
    p(f"s_and_b32 s86, s2, 63\ns_lshr_b32 s87, s2, 6")
    p(f"s_lshl_b32 s88, s87, 8\ns_lshl_b32 s89, s{S_WAVE}, 6\ns_add_u32 s88, s88, s89")
    p("s_mul_i32 s89, s88, 12288\ns_lshl_b32 s90, s86, 7\ns_add_u32 s89, s89, s90\ns_add_u32 s89, s89, 4096")
    p(f"v_lshrrev_b32 v{VT}, 3, v{LANE}\nv_mul_u32_u24 v{V_UT}, 12288, v{VT}\nv_and_b32 v{VT+1}, 7, v{LANE}\nv_lshl_add_u32 v{V_UT}, v{VT+1}, 4, v{V_UT}")
    p(f"v_add_u32 v{V_UC}, s88, v{VT}\nv_lshlrev_b32 v{V_UC}, 1, v{V_UC}")
    p("s_lshl_b32 s87, s87, 14\ns_lshl_b32 s86, s86, 8\ns_add_u32 s86, s86, s87\ns_add_u32 s86, s86, 65536")
    c.pre_loop_txt = p.L
    c.late = {4: ["s_mov_b32 m0, s85", f"buffer_load_dwordx4 v{L16}, {sr(SRD_A,4)}, s84 offen lds"]}
    if opt.get("cpf", 1): c.late[22] = code_prefetch_txt(k.name, L16, 254, 80)
    first = opt.get("modb_step", 20)
    for i in range(8):
        c.late.setdefault(first + i, []).extend([f"buffer_load_dwordx4 {ar(A_UT+4*i,4)}, v{V_UT}, {sr(SRD_D,4)}, s89 offen", f"s_add_u32 s89, s89, {8*12288}",
             f"global_load_ushort {ar(A_UT+32+i,1)}, v{V_UC}, s[{P_C}:{P_C+1}] offset:{i*16}"])
    c.last_reads = [f"ds_read_b64_tr_b16 {ar(A_PH+(hh*2+fb)*4+2*r,2)}, v{A_WR} offset:{hh*2048+r*1024+fb*32}" for hh in range(2) for fb in range(2) for r in range(2)]
    c.run(k)
    k.stamp("g1 loop done")
    A = lambda b, t: (b * 2 + t) * 4
    BF, P1, P2, MX, MN, EK = 126, 142, 174, 206, 214, 222
    groups = [(hh, t) for hh in range(2) for t in range(2)]
    def fm_part1(seg):
        for g, (hh, t) in enumerate(groups):
            for db in range(2):
                a = A(seg * 4 + hh * 2 + db, t)
                k(f"v_cvt_pk_bf16_f32 v{BF+g*4+db*2}, v{a}, v{a+1}\nv_cvt_pk_bf16_f32 v{BF+g*4+db*2+1}, v{a+2}, v{a+3}")
        k("s_nop 1")
        for g, (hh, t) in enumerate(groups):
            for fb in range(2):
                k(f"{MF} {vr(P1+g*8+fb*4,4)}, {ar(A_PH+(hh*2+fb)*4,4)}, {vr(BF+g*4,4)}, 0")
    def fm_part2():
        for op3, op2, M in (("v_max3_f32", "v_max_f32", MX), ("v_min3_f32", "v_min_f32", MN)):
            for g in range(4):
                b = P1 + g * 8
                k(f"{op3} v{M+2*g}, v{b}, v{b+1}, v{b+2}\n{op3} v{M+2*g}, v{M+2*g}, v{b+3}, v{b+4}\n{op3} v{M+2*g}, v{M+2*g}, v{b+5}, v{b+6}\n{op2} v{M+2*g}, v{M+2*g}, v{b+7}")
            treduce4(k, op2, [M + 2 * g for g in range(4)])
        for g in range(4):
            k(f"v_mul_f32 v{MX+2*g}, {-LOG2E!r}, v{MX+2*g}\nv_mul_f32 v{MN+2*g}, {LOG2E!r}, v{MN+2*g}")
    def fm_part3(E):
        for g in range(4):
            for j in range(4):
                b = g * 8 + 2 * j
                k(f"v_pk_fma_f32 {vr(P2+b,2)}, {vr(P1+b,2)}, s[94:95], {vr(MN+2*g,2)} op_sel_hi:[1,1,0] neg_lo:[1,0,0] neg_hi:[1,0,0]")
                k(f"v_pk_fma_f32 {vr(P1+b,2)}, {vr(P1+b,2)}, s[94:95], {vr(MX+2*g,2)} op_sel_hi:[1,1,0]")
            for j in range(8): k(f"v_exp_f32 v{P1+g*8+j}, v{P1+g*8+j}")
            for j in range(8): k(f"v_exp_f32 v{P2+g*8+j}, v{P2+g*8+j}")
            k("s_nop 0")
            for sg, PP in enumerate((P1, P2)):
                for j in range(4): k(f"v_cvt_pk_bf16_f32 v{E+(g*2+sg)*4+j}, v{PP+g*8+2*j}, v{PP+g*8+2*j+1}")
    k("s_waitcnt lgkmcnt(0)\ns_nop 7")
    fm_part1(1)
    k("s_barrier")
    mark0 = len(k.L)
    for g, (hh, t) in enumerate(groups):
        for db in range(2):
            a = A(8 + hh * 2 + db, t)
            k(f"v_cvt_pk_bf16_f32 v{a}, v{a}, v{a+1}\nv_cvt_pk_bf16_f32 v{a+1}, v{a+2}, v{a+3}")
            k(f"ds_write_b64 v{A_VW}, {vr(a,2)} offset:{VV + hh*9216 + t*16*72 + db*32}")
    fm_part2()
    fm_part3(EK)
    SM = 32
    k("s_nop 1")
    for i in range(8): k(f"{MF} {vr(SM+4*i,4)}, {vr(ONES,4)}, {vr(EK+4*i,4)}, 0")
    k("s_nop 7")
    for i in range(8): k(f"v_rcp_f32 v{SM+4*i}, v{SM+4*i}")
    for g, (hh, t) in enumerate(groups):
        for sg, PP in enumerate((P1, P2)):
            for j in range(4):
                k(f"v_pk_mul_f32 {vr(PP+g*8+2*j,2)}, {vr(PP+g*8+2*j,2)}, {vr(SM+(g*2+sg)*4,2)} op_sel_hi:[1,0]")
            for fb in range(2):
                b = PP + g * 8 + fb * 4
                k(f"v_cvt_pk_bf16_f32 v{b}, v{b}, v{b+1}\nv_cvt_pk_bf16_f32 v{b+1}, v{b+2}, v{b+3}")
                k(f"ds_write_b64 v{A_PW}, {vr(b,2)} offset:{PHK + hh*17408 + t*16*136 + sg*64 + fb*32}")
    sprinkle(k, mark0, g3_early_units(k.g3, opt.get("g3_e1", 14), 254))
    k("s_waitcnt lgkmcnt(0)\ns_barrier")
    for s_ in range(4):
        for r in range(2):
            for fb in range(2): k(f"ds_read_b64_tr_b16 {ar(s_*16+fb*4+2*r,2)}, v{A_PR} offset:{PHK + (32*s_+16*r)*136 + fb*32}")
            for db in range(2): k(f"ds_read_b64_tr_b16 {ar(s_*16+8+db*4+2*r,2)}, v{A_VR} offset:{VV + (32*s_+16*r)*72 + db*32}")
    fm_part1(0)
    KV, ZZ = 64, 80
    for s_ in range(4):
        k(f"s_waitcnt lgkmcnt({min(15, 24 - 8*s_)})")
        for fb in range(2):
            for db in range(2):
                d = vr(KV + (db * 2 + fb) * 4, 4)
                k(f"{MF} {d}, {ar(s_*16+fb*4,4)}, {ar(s_*16+8+db*4,4)}, {'0' if s_ == 0 else d}")
            d = vr(ZZ + fb * 4, 4)
            k(f"{MF} {d}, {ar(s_*16+fb*4,4)}, {vr(ONES,4)}, {'0' if s_ == 0 else d}")
    k(f"s_lshl_b32 s82, s{S_HP}, 2\ns_add_u32 s82, s82, s{S_WAVE}")
    k("s_lshl_b32 s83, s82, 15")
    k(f"s_lshl_b32 s84, s{S_RB1}, 10\ns_add_u32 s84, s84, s83\ns_add_u32 s85, s84, 16384")
    k("s_lshl_b32 s90, s82, 11")
    k(f"s_lshl_b32 s91, s82, 7\ns_add_u32 s91, s91, {F_KV}\ns_lshl_b32 s92, s{S_RB1}, 2\ns_add_u32 s92, s92, s91")
    k(f"v_and_b32 v{VT}, 15, v{LANE}\nv_cmp_eq_u32 vcc, s{S_RB1}, v{VT}")
    k("s_nop 2")
    for db in range(2):
        for j in range(4): k(f"v_cvt_pk_bf16_f32 v{88+db*4+j}, v{KV+db*8+2*j}, v{KV+db*8+2*j+1}")
    k(f"buffer_store_dwordx4 {vr(88,4)}, v{L16}, {sr(SRD_B,4)}, s84 offen sc1")
    k(f"buffer_store_dwordx4 {vr(92,4)}, v{L16}, {sr(SRD_B,4)}, s85 offen sc1")
    k("s_and_saveexec_b64 s[96:97], vcc")
    k(f"buffer_store_dwordx4 {vr(ZZ,4)}, v{L16}, {sr(SRD_C,4)}, s90 offen sc1")
    k(f"buffer_store_dwordx4 {vr(ZZ+4,4)}, v{L16}, {sr(SRD_C,4)}, s90 offen offset:1024 sc1")
    k("s_mov_b64 exec, s[96:97]")
    k.stamp("kv stored")
    fm_part2()
    publish(k, 92, VT + 1)
    k.stamp("kv published")
    k("s_mov_b32 s93, s83")
    g2 = setup_gemm24(k, 2, opt, 96)
    k("s_mov_b32 s83, s93")
    g2.prefetch(k, 8)
    fm_part3(EK)
    k.stamp("q done")
    k(f"v_lshlrev_b32 v{VT}, 2, v{VT}")
    wait_flags(k, [(VT, 91, 1)], VT + 1)
    k.stamp("kv ready")
    k(f"buffer_load_dwordx4 {vr(ZZ,4)}, v{L16}, {sr(SRD_C,4)}, s90 offen sc1")
    k(f"buffer_load_dwordx4 {vr(ZZ+4,4)}, v{L16}, {sr(SRD_C,4)}, s90 offen offset:1024 sc1")
    for i in range(32):
        if i % 4 == 0 and i: k("s_add_u32 s83, s83, 4096")
        k(f"buffer_load_dwordx4 {ar(4*i,4)}, v{L16}, {sr(SRD_B,4)}, s83 offen offset:{(i%4)*1024} sc1")
    srd(k, SRD_T, P_WS, S * D * 2, WS_O)
    k("s_waitcnt vmcnt(32)")
    for sh in (8, 4, 2, 1):
        for j in range(8): k(f"v_add_f32_dpp v{ZZ+j}, v{ZZ+j}, v{ZZ+j} row_ror:{sh} row_mask:0xf bank_mask:0xf")
    k(f"v_and_b32 v{VT+1}, 1, v{LANE}\nv_cmp_eq_u32 vcc, 0, v{VT+1}")
    for j in range(4): k(f"v_cvt_pk_bf16_f32 v{BF+8+j}, v{ZZ+2*j}, v{ZZ+2*j+1}")
    for j in range(4): k(f"v_cndmask_b32 v{BF+8+j}, v{ONES}, v{BF+8+j}, vcc")
    for i in range(32):
        db, pp = divmod(i, 16)
        if i % 2 == 0: k(f"s_waitcnt vmcnt({30 - i})")
        for fb in range(2):
            d = vr(KV + (db * 2 + fb) * 4, 4)
            k(f"{MF} {d}, {vr(SEL + (2 if fb == 0 else 0), 4)}, {ar(4*i,4)}, {'0' if pp == 0 else d}")
    k(f"s_mul_i32 s82, s{S_WAVE}, 3072\ns_add_u32 s82, s82, {SH}")
    k(f"v_add_u32 v{VT+1}, s82, v{L16}\nv_add_u32 v{VT+2}, {SH}, v{L16}")
    k("s_nop 6")
    for db in range(2):
        for j in range(4): k(f"v_cvt_pk_bf16_f32 v{BF+db*4+j}, v{KV+db*8+2*j}, v{KV+db*8+2*j+1}")
    for j in range(3): k(f"ds_write_b128 v{VT+1}, {vr(BF+4*j,4)} offset:{j*1024}")
    k("s_waitcnt lgkmcnt(0)\ns_barrier")
    for i in range(12): k(f"ds_read_b128 {ar(4*i,4)}, v{VT+2} offset:{i*1024}")
    k(f"s_lshl_b32 s82, s{S_RB1}, 3\ns_lshl_b32 s83, s{S_WAVE}, 1\ns_add_u32 s82, s82, s83\ns_lshl_b32 s82, s82, 15")
    k(f"s_lshl_b32 s83, s{S_HP}, 11\ns_add_u32 s82, s82, s83\ns_add_u32 s83, s82, 0x8000")
    k(f"s_lshl_b32 s84, s{S_RB1}, 2\ns_add_u32 s84, s84, s{S_WAVE}\ns_lshl_b32 s84, s84, 7\ns_lshl_b32 s85, s{S_HP}, 2\ns_add_u32 s84, s84, s85\ns_add_u32 s84, s84, {F_O}")
    k("s_waitcnt lgkmcnt(0)")
    for g, (hh, t) in enumerate(groups):
        for sg in range(2):
            for j in range(3):
                k(f"{MF} {vr((g*2+sg)*12+4*j,4)}, {ar(((hh*2+sg)*3+j)*4,4)}, {vr(EK+(g*2+sg)*4,4)}, 0")
    k("s_nop 7")
    for g, (hh, t) in enumerate(groups):
        n1, n2 = g * 24, g * 24 + 12
        D1, S1, D2, S2 = n1 + 8, n1 + 9, n2 + 8, n2 + 9
        k(f"v_mul_f32 v{n1+10}, v{S1}, v{S2}")
        k(f"v_mul_f32 v{n1+10}, 0x358637bd, v{n1+10}")
        k(f"v_fmac_f32 v{n1+10}, v{D1}, v{S2}\nv_fmac_f32 v{n1+10}, v{D2}, v{S1}")
        k(f"v_rcp_f32 v{n1+10}, v{n1+10}")
        k("s_nop 0")
        k(f"v_mul_f32 v{D1}, v{S2}, v{n1+10}\nv_mul_f32 v{D2}, v{S1}, v{n1+10}")
        for j in range(4): k(f"v_pk_mul_f32 {vr(n1+2*j,2)}, {vr(n1+2*j,2)}, {vr(D1,2)} op_sel_hi:[1,0]")
        for j in range(4): k(f"v_pk_fma_f32 {vr(n1+2*j,2)}, {vr(n2+2*j,2)}, {vr(D2,2)}, {vr(n1+2*j,2)} op_sel_hi:[1,0,1]")
        for j in range(4): k(f"v_cvt_pk_bf16_f32 v{n2+j}, v{n1+2*j}, v{n1+2*j+1}")
        k(f"buffer_store_dwordx4 {vr(n2,4)}, v{L16}, {sr(SRD_T,4)}, s{82+t} offen offset:{hh*1024} sc1")
    k.stamp("o stored")
    CU, AU, WW, TT = 128, 144, 152, 156
    for i in range(8): k(f"v_accvgpr_read_b32 v{CU+2*i}, a{A_UT+32+i}")
    for i in range(8):
        v = CU + 2 * i
        k(f"v_lshlrev_b32 v{v}, 16, v{v}\nv_mul_f32 v{v+1}, {-LOG2E!r}, v{v}")
    for i in range(8): k(f"v_exp_f32 v{CU+2*i+1}, v{CU+2*i+1}")
    for i in range(8): k(f"v_add_f32 v{CU+2*i+1}, 1.0, v{CU+2*i+1}")
    for i in range(8): k(f"v_rcp_f32 v{CU+2*i+1}, v{CU+2*i+1}")
    for i in range(8):
        k(f"v_mul_f32 v{CU+2*i}, v{CU+2*i}, v{CU+2*i+1}"); round_bf16(k, CU + 2 * i)
    publish(k, 84, VT + 2)
    k.stamp("o published")
    g2.V_X = 48
    srd(k, SRD_A, P_X, S * D * 2)
    V_XA = 47
    k(f"v_lshrrev_b32 v{VT+1}, 4, v{LANE}")
    k(f"v_and_b32 v{VT+2}, 15, v{LANE}\nv_lshlrev_b32 v{VT+2}, 11, v{VT+2}\nv_lshl_add_u32 v{V_XA}, v{VT+1}, 3, v{VT+2}")
    k(f"s_lshl_b32 s82, s{S_RB2}, 3\ns_lshl_b32 s83, s{S_WAVE}, 1\ns_add_u32 s82, s82, s83\ns_lshl_b32 s82, s82, 15\ns_lshl_b32 s83, s{S_NT}, 7\ns_add_u32 s82, s82, s83\ns_add_u32 s83, s82, 32768")
    for t in range(2):
        for b in range(4):
            k(f"buffer_load_dwordx2 {vr(g2.V_X+(t*4+b)*2,2)}, v{V_XA}, {sr(SRD_A,4)}, s{82+t} offen offset:{b*32}")
    mark1 = len(k.L)
    for j in range(8): k(f"v_mov_b32 v{AU+j}, 0")
    for i in range(8):
        for d in range(4): k(f"v_accvgpr_read_b32 v{WW+d}, a{A_UT+4*i+d}")
        for d in range(4):
            k(f"v_lshlrev_b32 v{TT}, 16, v{WW+d}\nv_and_b32 v{TT+1}, 0xffff0000, v{WW+d}")
            k(f"v_pk_fma_f32 {vr(AU+2*d,2)}, {vr(TT,2)}, {vr(CU+2*i,2)}, {vr(AU+2*d,2)} op_sel_hi:[1,0,1]")
    k("s_nop 1")
    for j in range(4): k(f"v_permlane32_swap_b32 v{AU+j}, v{AU+j+4}")
    k("s_nop 1")
    for j in range(4): k(f"v_add_f32 v{AU+j}, v{AU+j}, v{AU+j+4}")
    k("s_nop 1")
    for j in range(2): k(f"v_permlane16_swap_b32 v{AU+j}, v{AU+j+2}")
    k("s_nop 1")
    for j in range(2): k(f"v_add_f32 v{AU+j}, v{AU+j}, v{AU+j+2}")
    k("s_nop 1")
    for j in range(2): k(f"v_add_f32_dpp v{AU+j}, v{AU+j}, v{AU+j} row_ror:8 row_mask:0xf bank_mask:0xf")
    sprinkle(k, mark1, g3_early_units(k.g3, opt.get("g3_e2", 7), 254), skip=0)
    k(f"v_and_b32 v{TT}, 7, v{LANE}\nv_lshlrev_b32 v{TT}, 5, v{TT}\nv_lshrrev_b32 v{TT+1}, 5, v{LANE}\nv_lshl_add_u32 v{TT}, v{TT+1}, 4, v{TT}")
    k(f"v_bfe_u32 v{TT+1}, v{LANE}, 4, 1\nv_lshl_add_u32 v{TT}, v{TT+1}, 3, v{TT}\ns_lshl_b32 s85, s{S_WAVE}, 8\ns_add_u32 s85, s85, {UTX}\nv_add_u32 v{TT}, s85, v{TT}")
    k(f"ds_write_b64 v{TT}, {vr(AU,2)}")
    k("s_waitcnt lgkmcnt(0)\ns_barrier")
    noUT = k.label("nomodb")
    k(f"s_cmp_lg_u32 s{S_WAVE}, 0\ns_cbranch_scc1 {noUT}")
    k(f"v_lshlrev_b32 v{TT}, 2, v{LANE}\nv_add_u32 v{TT+1}, {UTX}, v{TT}")
    for w in range(4): k(f"ds_read_b32 v{AU+w}, v{TT+1} offset:{w*256}")
    srd(k, SRD_D, P_WS, 131072, WS_MODP)
    k("s_waitcnt lgkmcnt(0)")
    k(f"v_add_f32 v{AU}, v{AU}, v{AU+1}\nv_add_f32 v{AU+2}, v{AU+2}, v{AU+3}\nv_add_f32 v{AU}, v{AU}, v{AU+2}")
    k(f"v_or_b32 v{AU}, 1, v{AU}")
    k(f"buffer_store_dword v{AU}, v{TT}, {sr(SRD_D,4)}, s86 offen sc1")
    k(f"{noUT}:")
    k.stamp("modb done")
    return g2

A_PARK = 224
S3_SRD, S3_WB, S3_KW = 64, 68, 69
S3_ROT, S3_ROT2 = 71, 72
def setup_gemm3_early(k, opt, LANE, VT):
    c = Sched(); common_gemm(c)
    NS, R = 4, 4
    STAGE = 28672
    V_RD, V_DMA, V_TOK = 224, 226, 233
    c.V_RD, c.V_DMA, c.V_TOK, c.LANE, c.L16, c.VT = V_RD, V_DMA, V_TOK, 237, 238, 248
    c.srd_w, c.s_wbase, c.s_kw, c.s_rot, c.s_rot2 = S3_SRD, S3_WB, S3_KW, S3_ROT, S3_ROT2
    k(f"s_and_b32 s80, s{S_IDX}, 3\ns_lshl_b32 s80, s80, 1\ns_add_u32 s{S3_ROT}, s80, s{S_RB3}\ns_add_u32 s{S3_ROT2}, s{S_RB3}, s{S_IDX}")
    k(f"s_and_b32 s82, s{S_FT}, 1\ns_lshl_b32 s82, s82, 1")
    k(f"s_lshr_b32 s80, s{S_WAVE}, 1\ns_and_b32 s81, s{S_WAVE}, 1")
    k(f"s_mul_i32 s83, s80, {32*7168}\ns_mul_i32 s{S_TMP}, s{S_FT}, 224\ns_add_u32 s83, s83, s{S_TMP}")
    for i in range(7):
        k(f"v_add_u32 v{VT+2}, {i*64}, v{LANE}")
        k(f"v_mul_u32_u24 v{VT+3}, 4682, v{VT+2}")
        k(f"v_lshrrev_b32 v{VT+3}, 16, v{VT+3}")
        k(f"v_mul_u32_u24 v{VT+4}, 14, v{VT+3}")
        k(f"v_sub_u32 v{VT+4}, v{VT+2}, v{VT+4}")
        k(f"v_add_u32 v{VT+4}, s82, v{VT+4}")
        k(f"v_subrev_u32 v{VT+5}, 14, v{VT+4}")
        k(f"v_min_u32 v{VT+4}, v{VT+4}, v{VT+5}")
        k(f"v_mul_u32_u24 v{VT+3}, 7168, v{VT+3}")
        k(f"v_lshl_add_u32 v{VT+3}, v{VT+4}, 4, v{VT+3}")
        k(f"v_add_u32 v{VT+3}, s83, v{VT+3}")
        k(f"v_accvgpr_write_b32 a{A_PARK+i}, v{VT+3}")
    k(f"s_mul_i32 s{S3_WB}, s81, 14336\ns_mul_i32 s82, s80, 7168\ns_add_u32 s{S3_WB}, s{S3_WB}, s82")
    k(f"s_cmp_eq_u32 s81, 0\ns_cselect_b32 s{S3_SRD}, s{P_W1}, s{P_W3}\ns_cselect_b32 s{S3_SRD+1}, s{P_W1+1}, s{P_W3+1}")
    k(f"s_mov_b32 s{S3_SRD+2}, {D*F*2}\ns_mov_b32 s{S3_SRD+3}, 0x20000")
    c.NB, c.TB, c.KS, c.SPK, c.KT, c.NS, c.R = 14, 4, 1, 2, 16, NS, R
    c.acc = lambda b, t: vr((b * 4 + t) * 4, 4)
    c.tf = lambda slot, ks, t: 112 + (slot * 4 + t) * 4
    ph = lambda sl: 3 - sl
    c.rd = lambda sl, b, sub, r: (V_RD + ph(sl) // 2, (ph(sl) % 2) * STAGE + (b % 2) * 14336 + (32 * sub + 16 * r) * 224 + 32 * (b // 2))
    c.slot_addr = lambda sl: ph(sl) * STAGE
    c.dma = [(V_DMA + i, i * 1024, 0) for i in range(7)]
    c.v_tok = [V_TOK + t for t in range(4)]
    c.w_stride = 64 * 7168
    c.wins = win_mask(opt.get("g3_wins", [1, 1, 2, 4, 8])); c.drop = opt.get("g3_drop", ())
    c.pro_units, c.ramp_rate, c.read_margin = opt.get("g3_pro", 12), (lambda st: opt.get("g3_ramp", 12) if st < 6 else 8), 8
    std_sched(c)
    return c
def g3_early_units(c, n, vtmp):
    out = []
    for j in range(n):
        t = c.prefetch_txt(1)
        i = (c.pre_dma - 1) % 7
        ld = t[-1].replace(f"v{c.V_DMA+i},", f"v{vtmp},")
        out.append(t[:-1] + [f"v_accvgpr_read_b32 v{vtmp}, a{A_PARK+i}", ld])
    return out
def setup_gemm3_late(k, c):
    V_RD, V_DMA, V_TOK, LANE, L16, VT = c.V_RD, c.V_DMA, c.V_TOK, c.LANE, c.L16, c.VT
    lane_id(k, LANE)
    k(f"v_lshlrev_b32 v{L16}, 4, v{LANE}")
    for i in range(7): k(f"v_accvgpr_read_b32 v{V_DMA+i}, a{A_PARK+i}")
    k(f"v_lshrrev_b32 v{VT+3}, 2, v{LANE}\nv_mul_u32_u24 v{VT+3}, 224, v{VT+3}")
    k(f"v_and_b32 v{VT+4}, 3, v{LANE}\nv_lshl_add_u32 v{V_RD}, v{VT+4}, 3, v{VT+3}")
    k(f"v_add_u32 v{V_RD+1}, {2*28672}, v{V_RD}")
    k(f"s_lshl_b32 s82, s{S_RB3}, 4\ns_lshl_b32 s83, s{S_WAVE}, 2\ns_add_u32 s82, s82, s83\ns_lshl_b32 s82, s82, 15")
    k(f"v_add_u32 v{V_TOK}, s82, v{L16}")
    for t in range(1, 4): k(f"v_add_u32 v{V_TOK+t}, {t*0x8000}, v{V_TOK}")

def sprinkle(k, mark, groups, skip=4):
    if not groups: return
    seg = k.L[mark:]
    stepn = max(1, (len(seg) - skip) // len(groups))
    out, q = [], list(groups)
    for i, x in enumerate(seg):
        out.append(x)
        if q and i >= skip and (i - skip) % stepn == 0:
            assert not x.startswith("s_cmp") and not x.startswith("s_and_saveexec")
            out += q.pop(0)
    for g in q: out += g
    k.L[mark:] = out

A_X1 = 240
def phase_gemm2(k, c, opt):
    LANE, L16 = c.LANE, c.L16
    VT = 40
    k(f"v_and_b32 v{VT}, 15, v{LANE}\nv_lshlrev_b32 v{VT}, 2, v{VT}")
    k(f"s_lshl_b32 s84, s{S_RB2}, 2\ns_add_u32 s84, s84, s{S_WAVE}\ns_lshl_b32 s84, s84, 7\ns_add_u32 s85, s84, {F_O}")
    wait_flags(k, [(VT, 85, 1)], VT + 1)
    k.stamp("o ready")
    V_G, V_C, V_S, V_GA = 64, 80, 136, 44
    p = Txt()
    srd(p, SRD_A, P_WS, S * D * 2, WS_Y)
    srd(p, SRD_B, P_WS, S * 128, WS_STAT)
    srd(p, SRD_D, P_WS, 131072, WS_MODP)
    p(f"v_lshrrev_b32 v{V_GA}, 4, v{LANE}\nv_lshlrev_b32 v{V_GA}, 4, v{V_GA}\nv_add_u32 v{V_GA}, {L_MV}, v{V_GA}")
    p(f"s_lshl_b32 s86, s{S_RB2}, 3\ns_lshl_b32 s87, s{S_WAVE}, 1\ns_add_u32 s86, s86, s87")
    p(f"s_lshl_b32 s88, s86, 15\ns_lshl_b32 s87, s{S_NT}, 11\ns_add_u32 s88, s88, s87\ns_add_u32 s89, s88, 32768")
    p(f"s_lshl_b32 s87, s{S_NT}, 2\ns_add_u32 s84, s84, s87\ns_add_u32 s84, s84, {F_Y}")
    p(f"s_lshr_b32 s90, s{S_NT}, 2\ns_lshl_b32 s90, s90, 8")
    p(f"s_bfe_u32 s91, s{S_NT}, 0x10001\ns_lshl_b32 s91, s91, 10\ns_add_u32 s90, s90, s91")
    p(f"s_and_b32 s91, s{S_NT}, 1\ns_lshl_b32 s91, s91, 3\ns_add_u32 s90, s90, s91")
    p("s_lshl_b32 s91, s86, 11\ns_add_u32 s90, s90, s91")
    p(f"s_lshl_b32 s92, s{S_WAVE}, 12\ns_lshl_b32 s93, s{S_NT}, 8\ns_add_u32 s92, s92, s93\ns_add_u32 s92, s92, 65536")
    p("s_add_u32 s93, s92, 16384\ns_add_u32 s94, s92, 32768\ns_add_u32 s95, s92, 49152")
    p(f"v_lshlrev_b32 v{VT}, 2, v{LANE}")
    c.pre_loop_txt = p.L
    c.late = {}
    if opt.get("cpf", 1): c.late[6] = code_prefetch_txt(k.name, L16, 254, 80)
    m = Txt(); m.label = k.label
    MB_ = 32
    spin(m, [f"buffer_load_dword v{MB_+j}, v{VT}, {sr(SRD_D,4)}, s{92+j} offen sc1" for j in range(4)], [MB_ + j for j in range(4)], MB_ + 4)
    m(f"v_add_f32 v{MB_}, v{MB_}, v{MB_+1}\nv_add_f32 v{MB_+2}, v{MB_+2}, v{MB_+3}\nv_add_f32 v{MB_}, v{MB_}, v{MB_+2}")
    round_bf16(m, MB_)
    m(f"v_add_f32 v{MB_+1}, 1.0, v{MB_}"); round_bf16(m, MB_ + 1)
    m(f"s_cmp_eq_u32 s{S_WAVE}, 2\ns_cselect_b64 vcc, -1, 0")
    m(f"v_cndmask_b32 v{MB_}, v{MB_}, v{MB_+1}, vcc")
    m(f"s_lshl_b32 s92, s{S_WAVE}, 8\ns_add_u32 s92, s92, {L_MV}\nv_add_u32 v{VT}, s92, v{VT}")
    m(f"ds_write_b32 v{VT}, v{MB_}")
    c.late[opt.get("g2_modstep", 13)] = ["\n".join(m.L)]
    c.last_reads = ([f"ds_read_b128 {vr(V_G+4*b,4)}, v{V_GA} offset:{b*64}" for b in range(4)] + [f"ds_read_b128 {vr(V_C+4*b,4)}, v{V_GA} offset:{512+b*64}" for b in range(4)]
                    + [f"ds_read_b128 {vr(V_S+4*b,4)}, v{V_GA} offset:{256+b*64}" for b in range(4)])
    c.run(k)
    k.stamp("g2 loop done")
    k("s_waitcnt lgkmcnt(0)\ns_nop 7")
    A = lambda b, t: (b * 2 + t) * 4
    XT = 104; V_X = c.V_X
    for t in range(2):
        for b in range(4):
            xr = V_X + (t * 4 + b) * 2
            for h in range(2): k(f"v_lshlrev_b32 v{XT+2*h}, 16, v{xr+h}\nv_and_b32 v{XT+2*h+1}, 0xffff0000, v{xr+h}")
            for h in range(2): k(f"v_pk_fma_f32 {vr(A(b,t)+2*h,2)}, {vr(A(b,t)+2*h,2)}, {vr(V_G+4*b+2*h,2)}, {vr(XT+2*h,2)}")
        PK = XT + 4 + t * 8
        for b in range(4): k(f"v_cvt_pk_bf16_f32 v{PK+2*b}, v{A(b,t)}, v{A(b,t)+1}\nv_cvt_pk_bf16_f32 v{PK+2*b+1}, v{A(b,t)+2}, v{A(b,t)+3}")
        for b in range(4):
            for h in range(2): k(f"v_lshlrev_b32 v{A(b,t)+2*h}, 16, v{PK+2*b+h}\nv_and_b32 v{A(b,t)+2*h+1}, 0xffff0000, v{PK+2*b+h}")
    SU = [XT + 20, XT + 22]; M2 = [XT + 21, XT + 23]; TM = [XT + 24, XT + 25]; AC = [XT, XT + 2]; NM = [XT + 26, XT + 28]; DF = 32
    for t in range(2): k(f"v_pk_add_f32 {vr(AC[t],2)}, {vr(A(0,t),2)}, {vr(A(0,t)+2,2)}")
    for b in range(1, 4):
        for h in range(2):
            for t in range(2): k(f"v_pk_add_f32 {vr(AC[t],2)}, {vr(AC[t],2)}, {vr(A(b,t)+2*h,2)}")
    def allred2(X):
        for sw in ("v_permlane32_swap_b32", "v_permlane16_swap_b32"):
            for t in range(2): k(f"v_mov_b32 v{TM[t]}, v{X[t]}")
            k("s_nop 0")
            for t in range(2): k(f"{sw} v{X[t]}, v{TM[t]}")
            k("s_nop 0")
            for t in range(2): k(f"v_add_f32 v{X[t]}, v{X[t]}, v{TM[t]}")
    for t in range(2): k(f"v_add_f32 v{SU[t]}, v{AC[t]}, v{AC[t]+1}")
    allred2(SU)
    for t in range(2): k(f"v_mul_f32 v{NM[t]}, {-1.0/64!r}, v{SU[t]}\nv_mov_b32 v{AC[t]}, 0\nv_mov_b32 v{AC[t]+1}, 0")
    for b in range(4):
        for h in range(2):
            for t in range(2): k(f"v_pk_add_f32 {vr(DF+2*t,2)}, {vr(A(b,t)+2*h,2)}, {vr(NM[t],2)} op_sel_hi:[1,0]")
            for t in range(2): k(f"v_pk_fma_f32 {vr(AC[t],2)}, {vr(DF+2*t,2)}, {vr(DF+2*t,2)}, {vr(AC[t],2)}")
    for t in range(2): k(f"v_add_f32 v{M2[t]}, v{AC[t]}, v{AC[t]+1}")
    allred2(M2)
    k(f"v_cmp_gt_u32 vcc, 16, v{LANE}")
    k(f"v_and_b32 v{XT+2}, 15, v{LANE}\nv_lshlrev_b32 v{XT+2}, 4, v{XT+2}")
    k(f"v_cndmask_b32 v{XT}, v{SU[1]}, v{SU[0]}, vcc\nv_cndmask_b32 v{XT+1}, v{M2[1]}, v{M2[0]}, vcc")
    k(f"v_bfe_u32 v{XT+3}, v{LANE}, 4, 1\nv_lshl_add_u32 v{XT+2}, v{XT+3}, 11, v{XT+2}")
    k(f"v_or_b32 v{XT+1}, 1, v{XT+1}")
    k(f"v_cmp_gt_u32 vcc, 32, v{LANE}\ns_and_saveexec_b64 s[96:97], vcc")
    k(f"buffer_store_dwordx2 {vr(XT,2)}, v{XT+2}, {sr(SRD_B,4)}, s90 offen sc1")
    k("s_mov_b64 exec, s[96:97]")
    k.stamp("stat stored")
    for t in range(2):
        for b in range(4):
            for h in range(2): k(f"v_pk_mul_f32 {vr(A(b,t)+2*h,2)}, {vr(A(b,t)+2*h,2)}, {vr(V_C+4*b+2*h,2)}")
    for j in range(16): k(f"v_accvgpr_write_b32 a{A_X1+j}, v{XT+4+j}")
    g3 = k.g3
    setup_gemm3_late(k, g3)
    g3.prefetch(k, opt.get("g3_pre0", 0))
    ST = 48
    spin(k, [f"buffer_load_dwordx4 {vr(ST+t*8+hf*4,4)}, v{L16}, {sr(SRD_B,4)}, s91 offen offset:{t*2048+hf*1024} sc1" for t in range(2) for hf in range(2)],
         [ST + 2 * j + 1 for j in range(8)], XT)
    k.stamp("stat ready")
    for t in range(2):
        b = ST + t * 8
        k(f"v_add_f32 v{SU[t]}, v{b}, v{b+2}\nv_add_f32 v{TM[t]}, v{b+4}, v{b+6}\nv_add_f32 v{SU[t]}, v{SU[t]}, v{TM[t]}")
        k(f"v_add_f32 v{M2[t]}, v{b+1}, v{b+3}\nv_add_f32 v{TM[t]}, v{b+5}, v{b+7}\nv_add_f32 v{M2[t]}, v{M2[t]}, v{TM[t]}")
    allred2(SU)
    for t in range(2): k(f"v_mul_f32 v{SU[t]}, {-1.0/1024!r}, v{SU[t]}")
    for j in range(4):
        for t in range(2): k(f"v_fmamk_f32 v{ST+t*8+2*j}, v{ST+t*8+2*j}, {1.0/64!r}, v{SU[t]}")
        for t in range(2): k(f"v_mul_f32 v{ST+t*8+2*j}, v{ST+t*8+2*j}, v{ST+t*8+2*j}")
        for t in range(2): k(f"v_fmac_f32 v{M2[t]}, 0x42800000, v{ST+t*8+2*j}")
    allred2(M2)
    for t in range(2): k(f"v_mov_b32 v{TM[t]}, 0x3727c5ac\nv_fmac_f32 v{TM[t]}, {1.0/1024!r}, v{M2[t]}")
    for t in range(2): k(f"v_rsq_f32 v{NM[t]}, v{TM[t]}")
    k("s_nop 0")
    for t in range(2): k(f"v_mul_f32 v{NM[t]+1}, v{SU[t]}, v{NM[t]}")
    for t in range(2):
        YK = ST + t * 8
        for b in range(4):
            for h in range(2): k(f"v_pk_fma_f32 {vr(XT+2*h,2)}, {vr(V_C+4*b+2*h,2)}, {vr(NM[t],2)}, {vr(V_S+4*b+2*h,2)} op_sel:[0,1,0] op_sel_hi:[1,1,1]")
            for h in range(2): k(f"v_pk_fma_f32 {vr(XT+2*h,2)}, {vr(A(b,t)+2*h,2)}, {vr(NM[t],2)}, {vr(XT+2*h,2)} op_sel_hi:[1,0,1]")
            k(f"v_cvt_pk_bf16_f32 v{YK+2*b}, v{XT}, v{XT+1}\nv_cvt_pk_bf16_f32 v{YK+2*b+1}, v{XT+2}, v{XT+3}")
        for s_ in range(2): k(f"buffer_store_dwordx4 {vr(YK+4*s_,4)}, v{L16}, {sr(SRD_A,4)}, s{88+t} offen offset:{s_*1024} sc1")
    k.stamp("y stored")
    publish(k, 84, 40)
    k.stamp("y published")
    g3.prefetch(k, opt.get("g3_pre", 0))
    return g3

def phase_gemm3(k, c, opt):
    LANE, L16, VT = c.LANE, c.L16, c.VT
    NB, TB = 14, 4
    srd(k, SRD_T, P_WS, S * D * 2, WS_Y)
    srd(k, SRD_C, P_WS, S * F * 2, WS_HH)
    k(f"v_bfe_u32 v{VT}, v{LANE}, 4, 1\nv_lshlrev_b32 v{VT}, 7, v{VT}\nv_and_b32 v{VT+1}, 15, v{LANE}\nv_lshl_add_u32 v{VT}, v{VT+1}, 2, v{VT}")
    k(f"s_lshl_b32 s84, s{S_RB3}, 2\ns_add_u32 s84, s84, s{S_WAVE}")
    k(f"s_lshl_b32 s85, s84, 8\ns_add_u32 s85, s85, {F_Y}")
    wait_flags(k, [(VT, 85, 1)], 0)
    k.stamp("y ready")
    p = Txt()
    p(f"s_and_b32 s90, s{S_FT}, 1")
    p(f"s_mul_i32 s91, s{S_FT}, 7\ns_add_u32 s91, s91, s90\ns_lshr_b32 s91, s91, 1")
    p("s_mul_i32 s92, s84, 448\ns_add_u32 s91, s91, s92\ns_lshl_b32 s91, s91, 10")
    p("s_mul_i32 s92, s90, -4088\ns_add_u32 s92, s92, 3072\ns_add_u32 s92, s92, s91")
    p(f"s_lshl_b32 s93, s84, 7\ns_lshl_b32 s94, s{S_FT}, 2\ns_add_u32 s93, s93, s94\ns_add_u32 s93, s93, {F_HH}")
    p(f"s_mov_b32 s86, {-LOG2E!r}\ns_mov_b32 s87, {-LOG2E!r}")
    SA, SB = 240, 241
    p(f"v_add_u32 v{SA}, s91, v{L16}\nv_add_u32 v{SB}, s92, v{L16}")
    c.pre_loop_txt = p.L
    c.late = {}
    if opt.get("cpf", 1):
        c.late[6] = code_prefetch_txt(k.name, L16, 254, 80)
        c.late[24] = code_prefetch_txt(k.name, L16, 254, 80)
    if opt.get("w2touch", 1):
        c.late[18] = [f"s_lshl_b32 s80, s2, 2", f"s_add_u32 s80, s80, s{S_WAVE}", "s_mul_i32 s80, s80, 7168",
                      f"v_min_u32 v253, 55, v{LANE}", "v_lshlrev_b32 v253, 7, v253", "v_add_u32 v253, s80, v253",
                      f"global_load_dword v253, v253, s[{P_W2}:{P_W2+1}]"]
    t4 = Txt()
    g4 = setup_gemm24(t4, 4, opt, 242)
    half = len(t4.L) // 2
    c.late[29] = t4.L[:half]; c.late[30] = t4.L[half:]
    c.late[31] = g4.prefetch_txt(8)
    c.run(k)
    k.stamp("g3 loop done")
    k("s_nop 7")
    def G(s, t): return ((2 * s) * TB + t) * 4
    def Uu(s, t): return ((2 * s + 1) * TB + t) * 4
    def act(slots, t):
        for s in slots:
            for h in range(2):
                k(f"v_pk_mul_f32 {vr(Uu(s,t)+2*h,2)}, {vr(G(s,t)+2*h,2)}, {vr(Uu(s,t)+2*h,2)}")
                k(f"v_pk_mul_f32 {vr(G(s,t)+2*h,2)}, {vr(G(s,t)+2*h,2)}, s[86:87]")
        for s in slots:
            for r in range(4): k(f"v_exp_f32 v{G(s,t)+r}, v{G(s,t)+r}")
        for s in slots:
            for h in range(2): k(f"v_pk_add_f32 {vr(G(s,t)+2*h,2)}, {vr(G(s,t)+2*h,2)}, 1.0 op_sel_hi:[1,0]")
        for s in slots:
            for r in range(4): k(f"v_rcp_f32 v{G(s,t)+r}, v{G(s,t)+r}")
        for s in slots:
            for h in range(2): k(f"v_pk_mul_f32 {vr(Uu(s,t)+2*h,2)}, {vr(Uu(s,t)+2*h,2)}, {vr(G(s,t)+2*h,2)}")
    for pr in range(3):
        for t in range(TB):
            s0, s1 = 2 * pr, 2 * pr + 1
            act([s0, s1], t)
            d = G(s0, t)
            k(f"v_cvt_pk_bf16_f32 v{d}, v{Uu(s0,t)}, v{Uu(s0,t)+1}\nv_cvt_pk_bf16_f32 v{d+1}, v{Uu(s0,t)+2}, v{Uu(s0,t)+3}")
            k(f"v_cvt_pk_bf16_f32 v{d+2}, v{Uu(s1,t)}, v{Uu(s1,t)+1}\nv_cvt_pk_bf16_f32 v{d+3}, v{Uu(s1,t)+2}, v{Uu(s1,t)+3}")
            k(f"s_mov_b32 s94, {t*112*1024}")
            k(f"buffer_store_dwordx4 {vr(d,4)}, v{SA}, {sr(SRD_C,4)}, s94 offen offset:{pr*1024} sc1")
    for t in range(TB):
        act([6], t)
        d = G(6, t)
        k(f"v_cvt_pk_bf16_f32 v{d}, v{Uu(6,t)}, v{Uu(6,t)+1}\nv_cvt_pk_bf16_f32 v{d+1}, v{Uu(6,t)+2}, v{Uu(6,t)+3}")
        k(f"s_mov_b32 s94, {t*112*1024}")
        k(f"buffer_store_dwordx2 {vr(d,2)}, v{SB}, {sr(SRD_C,4)}, s94 offen sc1")
    k.stamp("hh stored")
    publish(k, 93, 252)
    k.stamp("hh published")
    return g4

def phase_gemm4(k, c, opt):
    LANE, L16 = c.LANE, c.L16
    VT = 40
    srd(k, SRD_T, P_WS, S * F * 2, WS_HH)
    srd(k, SRD_A, P_OUT, S * D * 2)
    k(f"v_and_b32 v{VT}, 31, v{LANE}\nv_lshlrev_b32 v{VT}, 2, v{VT}")
    k(f"s_lshl_b32 s84, s{S_RB2}, 1\ns_lshr_b32 s85, s{S_WAVE}, 1\ns_add_u32 s84, s84, s85\ns_lshl_b32 s84, s84, 7\ns_add_u32 s84, s84, {F_HH}")
    wait_flags(k, [(VT, 84, 1)], VT + 1)
    k.stamp("hh ready")
    V_G, V_GA, V_XA, V_X = 64, 44, 45, 48
    p = Txt()
    p(f"v_lshrrev_b32 v{VT}, 4, v{LANE}\nv_lshlrev_b32 v{V_GA}, 4, v{VT}\nv_add_u32 v{V_GA}, {L_MV}, v{V_GA}")
    p(f"v_and_b32 v{VT+1}, 15, v{LANE}\nv_lshlrev_b32 v{VT+1}, 11, v{VT+1}")
    p(f"v_and_b32 v{VT+2}, 1, v{VT}\nv_lshl_add_u32 v{VT+1}, v{VT+2}, 5, v{VT+1}")
    p(f"v_lshrrev_b32 v{VT+2}, 1, v{VT}\nv_lshl_add_u32 v{V_XA}, v{VT+2}, 4, v{VT+1}")
    p(f"s_lshl_b32 s86, s{S_RB2}, 3\ns_lshl_b32 s87, s{S_WAVE}, 1\ns_add_u32 s86, s86, s87\ns_lshl_b32 s86, s86, 15\ns_lshl_b32 s87, s{S_NT}, 7\ns_add_u32 s86, s86, s87\ns_add_u32 s87, s86, 32768")
    for j in range(16): p(f"v_accvgpr_read_b32 v{V_X+j}, a{A_X1+j}")
    c.pre_loop_txt = p.L
    c.last_reads = [f"ds_read_b128 {vr(V_G+4*b,4)}, v{V_GA} offset:{768+b*64}" for b in range(4)]
    c.run(k)
    k.stamp("g4 loop done")
    k("s_waitcnt lgkmcnt(0)\ns_nop 7")
    A = lambda b, t: (b * 2 + t) * 4
    XT = 96
    for t in range(2):
        for b in range(4):
            xr = V_X + (t * 4 + b) * 2
            for h in range(2): k(f"v_lshlrev_b32 v{XT+2*h}, 16, v{xr+h}\nv_and_b32 v{XT+2*h+1}, 0xffff0000, v{xr+h}")
            for h in range(2): k(f"v_pk_fma_f32 {vr(A(b,t)+2*h,2)}, {vr(A(b,t)+2*h,2)}, {vr(V_G+4*b+2*h,2)}, {vr(XT+2*h,2)}")
        PK = XT + 4 + t * 8
        for b in range(4): k(f"v_cvt_pk_bf16_f32 v{PK+2*b}, v{A(b,t)}, v{A(b,t)+1}\nv_cvt_pk_bf16_f32 v{PK+2*b+1}, v{A(b,t)+2}, v{A(b,t)+3}")
        k("s_nop 1")
        for s_ in range(2): k(f"v_permlane16_swap_b32 v{PK+4*s_}, v{PK+4*s_+2}\nv_permlane16_swap_b32 v{PK+4*s_+1}, v{PK+4*s_+3}")
        for s_ in range(2): k(f"buffer_store_dwordx4 {vr(PK+4*s_,4)}, v{V_XA}, {sr(SRD_A,4)}, s{86+t} offen offset:{s_*64}")

def build_mega(instr=False, opt=None, name="mega_kernel"):
    opt = opt or {}
    k = Mega(name, 256, 256, LDS_TOTAL, vgpr=256, agpr=256, sgpr=102)
    k.instr = instr; k.names = []
    end = k.label("end")
    far = k.label("go")
    k(f"s_cmp_lt_u32 s2, 256\ns_cbranch_scc1 {far}\ns_endpgm\n{far}:")
    k("s_load_dwordx8 s[4:11], s[0:1], 0")
    k("s_load_dwordx2 s[12:13], s[0:1], 64")
    k("s_load_dwordx2 s[14:15], s[0:1], 40")
    k("s_load_dwordx4 s[16:19], s[0:1], 48")
    k("s_load_dwordx2 s[98:99], s[0:1], 72")
    k("s_load_dwordx2 s[24:25], s[0:1], 80")
    k("s_load_dwordx2 s[28:29], s[0:1], 96")
    if instr: k(f"v_mov_b32 v{VSTAMP}, 0")
    k("v_lshrrev_b32 v1, 6, v0")
    k(f"s_and_b32 s{S_XCD}, s2, 7\ns_lshr_b32 s{S_IDX}, s2, 3")
    k(f"v_readfirstlane_b32 s{S_WAVE}, v1")
    k(f"s_lshr_b32 s{S_RB2}, s{S_XCD}, 1\ns_lshl_b32 s{S_RB2}, s{S_RB2}, 2\ns_lshr_b32 s80, s{S_IDX}, 3\ns_add_u32 s{S_RB2}, s{S_RB2}, s80")
    k(f"s_and_b32 s{S_NT}, s{S_XCD}, 1\ns_lshl_b32 s{S_NT}, s{S_NT}, 3\ns_and_b32 s80, s{S_IDX}, 7\ns_add_u32 s{S_NT}, s{S_NT}, s80")
    k(f"s_and_b32 s80, s{S_IDX}, 3\ns_lshl_b32 s{S_FT}, s{S_XCD}, 2\ns_add_u32 s{S_FT}, s{S_FT}, s80\ns_lshr_b32 s{S_RB3}, s{S_IDX}, 2")
    k.stamp("start")
    k(f"s_and_b32 s{S_RB1}, s{S_XCD}, 1\ns_lshl_b32 s{S_RB1}, s{S_RB1}, 3\ns_lshr_b32 s80, s{S_IDX}, 2\ns_add_u32 s{S_RB1}, s{S_RB1}, s80")
    k(f"s_lshr_b32 s{S_HP}, s{S_XCD}, 1\ns_lshl_b32 s{S_HP}, s{S_HP}, 2\ns_and_b32 s80, s{S_IDX}, 3\ns_add_u32 s{S_HP}, s{S_HP}, s80")
    code_prefetch_setup(k, name)
    g1 = setup_gemm1(k, opt)
    if opt.get("cpf", 1):
        for x in code_prefetch_txt(name, g1.L16, 254, 80): k(x)
    phase_h(k, g1, opt)
    g2 = phase_gemm1(k, g1, opt)
    g3 = phase_gemm2(k, g2, opt)
    g4 = phase_gemm3(k, g3, opt)
    phase_gemm4(k, g4, opt)
    if instr:
        k("s_waitcnt vmcnt(0)")
        k.stamp("end")
        k(f"s_add_u32 s84, s{P_WS}, {WS_DBG}\ns_addc_u32 s85, s{P_WS+1}, 0\ns_mov_b32 s86, 0x100000\ns_mov_b32 s87, 0x20000")
        k(f"s_lshl_b32 s88, s2, 2\ns_add_u32 s88, s88, s{S_WAVE}\ns_lshl_b32 s88, s88, 8")
        lane_id(k, 1)
        k("v_lshlrev_b32 v1, 2, v1")
        k(f"buffer_store_dword v{VSTAMP}, v1, s[84:87], s88 offen")
    k("s_endpgm")
    k(f"{name}_end:")
    return k
```

```python
import sys, json
from asmlib import *
from layout import *
from mega import build_mega, build_k0
def make(path, instr, opt=None, hdr=""):
    m = build_mega(instr=instr, opt=opt)
    ks = [build_k0(instr=instr, opt=opt), m]
    if instr:
        b = Kernel("block_kernel", 8, 64, 0, vgpr=8, sgpr=16)
        b("s_mov_b32 s4, 0\nL_blk:\ns_sleep 127\ns_add_u32 s4, s4, 1\ns_cmp_lt_u32 s4, 100\ns_cbranch_scc1 L_blk\ns_endpgm")
        ks = [b] + ks
        json.dump(m.names, open(path.replace(".s", ".json"), "w"))
    open(path, "w").write(build_file(ks, hdr))
if __name__ == "__main__":
    variants = json.loads(sys.argv[1]) if len(sys.argv) > 1 else {}
    for n, o in variants.items(): make(f"mv_{n}.s", True, o)
    if len(sys.argv) > 2 and sys.argv[2] == "only": sys.exit(0)
    make("mega_i.s", True)
    hdr = open("adaLN_cond__linear_kernel_hedgehog__glu_gated_swiglu__prompt.s.ref").read().split("; Override")[0]
    make("mega.s", False, hdr=hdr)
```

```python
from asmlib import *
MF = "v_mfma_f32_16x16x32_bf16"

class Item:
    __slots__ = ("kind", "txt", "key", "lgkm")
    def __init__(self, kind, txt=None, key=None, lgkm=None):
        self.kind = kind; self.txt = txt; self.key = key; self.lgkm = lgkm
def T(txt): return Item("txt", txt)
def VM(txt, key): return Item("vm", txt, key)
def WVM(keys, lgkm=None): return Item("wvm", None, keys, lgkm)
def is_vm(x): return x.startswith("buffer_") or x.startswith("global_")

class Txt:
    def __init__(self): self.L = []
    def __call__(self, s): self.L += [x.strip() for x in s.split("\n") if x.strip()]

def win_mask(sizes):
    out, b = [], 0
    for w in sizes:
        out += [(b, w - 1)] * w; b += w
    return out

class Sched:
    pro_units = 0; ramp_rate = 99; read_margin = 8; lookahead = 99
    step_extra = None; late = None; last_reads = (); pre_loop_txt = (); drop = ()
    pre_dma = 0
    def __init__(self):
        self.steps = []; self.stage_units = {}; self.stage_slot = {}; self.tok_units = {}; self.tok_slot = {}
        self.late = {}
    lead_D = None
    s_start = None
    gates = ()
    tile_of = staticmethod(lambda key: key)
    def lead_init(self, k, s_r, s_tmp):
        D = self.lead_D
        for m in range(4):
            d = self.s_dl + m
            k(f"s_sub_u32 s{s_tmp}, {m}, s{s_r}\ns_and_b32 s{s_tmp}, s{s_tmp}, 3")
            k(f"s_cmp_eq_u32 s{s_tmp}, 1\ns_cselect_b32 s{d}, {2+D}, {1+D}")
            k(f"s_cmp_eq_u32 s{s_tmp}, 0\ns_cselect_b32 s{d}, 0, s{d}")
    def pos_txt(self, s_dst, kt):
        KT = self.KT
        pow2 = KT & (KT - 1) == 0
        if self.lead_D is not None:
            assert self.s_start is None
            if kt < 2 + self.lead_D:
                return [f"s_sub_u32 s{s_dst}, {kt + KT}, s{self.s_dl + kt % 4}", f"s_sub_u32 s{self.s_ptmp}, s{s_dst}, {KT}", f"s_min_u32 s{s_dst}, s{s_dst}, s{self.s_ptmp}"]
            return [f"s_sub_u32 s{s_dst}, {kt}, s{self.s_dl + kt % 4}"]
        base, mask = self.wins[kt]
        if mask == 0:
            if self.s_start is None: return [f"s_mov_b32 s{s_dst}, {base}"]
            o = [f"s_add_u32 s{s_dst}, s{self.s_start}, {base}"]
        else:
            o = [f"s_add_u32 s{s_dst}, s{self.s_rot if mask > 3 else self.s_rot2}, {kt - base}", f"s_and_b32 s{s_dst}, s{s_dst}, {mask}"]
            if base: o.append(f"s_add_u32 s{s_dst}, s{s_dst}, {base}")
            if self.s_start is None: return o
            o.append(f"s_add_u32 s{s_dst}, s{s_dst}, s{self.s_start}")
        if pow2: o.append(f"s_and_b32 s{s_dst}, s{s_dst}, {KT-1}")
        else: o += [f"s_sub_u32 s{self.s_ptmp}, s{s_dst}, {KT}", f"s_min_u32 s{s_dst}, s{s_dst}, s{self.s_ptmp}"]
        return o
    def pos_items(self, s_dst, kt, stride):
        return [T(x) for x in self.pos_txt(s_dst, kt)] + [T(f"s_mul_i32 s{s_dst}, s{s_dst}, {stride}")]
    def _dma_list(self):
        return [(s, i) for s in sorted(self.stage_units) for i in range(len(self.stage_units[s]))]
    def prefetch(self, k, n):
        for s, i in self._dma_list()[self.pre_dma:self.pre_dma + n]:
            for x in self.stage_units[s][i]:
                if x.kind == "vm": k("s_nop 0")
                k(x.txt)
        self.pre_dma += n
    def prefetch_txt(self, n):
        t = Txt(); self.prefetch(t, n); return [x for x in t.L if x != "s_nop 0"]

    def run(self, k):
        c = self
        N = len(c.steps)
        sfirst, slast, tfirst, tlast = {}, {}, {}, {}
        for i, st in enumerate(c.steps):
            for s in st["stages"]: sfirst.setdefault(s, i); slast[s] = i
            for t in st["toks"]: tfirst.setdefault(t, i); tlast[t] = i
        bars = {}
        for s, f in sfirst.items(): bars.setdefault(f - 1, []).append(s)
        barsteps = sorted(bars)
        units = {"dma": [], "tok": []}
        prev = {}
        skip = c.pre_dma
        for s in sorted(c.stage_units):
            sl = c.stage_slot[s]
            e = -1 if sl not in prev else min(b for b in barsteps if b >= slast[prev[sl]])
            prev[sl] = s
            for i, u in enumerate(c.stage_units[s]):
                if skip: skip -= 1; assert e == -1; continue
                units["dma"].append((sfirst[s] - 1, e, "dma", u))
        prev = {}
        for key in sorted(c.tok_units, key=lambda q: (tfirst[q], q)):
            sl = c.tok_slot[key]
            e = -1 if sl not in prev else tlast[prev[sl]] + 1
            e = max(e, tfirst[key] - c.lookahead, -1)
            prev[sl] = key
            for u in c.tok_units[key]: units["tok"].append((tfirst[key], e, "tok", u, c.tile_of(key)))
        issue = {}
        pos, cnt, cap = -1, 0, c.pro_units
        rate = c.ramp_rate if callable(c.ramp_rate) else (lambda s: c.ramp_rate)
        while units["dma"] or units["tok"]:
            cand = [q[0] for q in units.values() if q and q[0][1] <= pos]
            if cand and cnt < cap:
                u = min(cand, key=lambda u: (u[0], 0 if u[2] == "dma" else 1))
                issue.setdefault(pos, []).append(u); units[u[2]].pop(0); cnt += 1
                assert pos < u[0] or pos == -1, ("late unit", u[:3], pos)
            else:
                pos += 1; cnt = 0; cap = rate(pos)
        gate_at = {}
        for gt, gp, gi in c.gates:
            gs_ = min(st for st, us in issue.items() if any(u[2] == "tok" and u[4] >= gt for u in us))
            assert gs_ >= 1 and gs_ not in gate_at, gs_
            gate_at[gs_] = (gp, gi)
        def read_items(step):
            out = []
            for j, (va, o0, o1, _) in enumerate(c.steps[step]["frags"]):
                for r, off in enumerate((o0, o1)):
                    assert 0 <= off < 65536, off
                    out.append(T(f"ds_read_b64_tr_b16 {ar(c.wf(step % 2, j)+2*r,2)}, v{va} offset:{off}"))
            return out
        def bar(step): return [WVM([("dma", s) for s in bars[step]]), T("s_barrier")]
        def conv(x):
            if isinstance(x, Item): return x
            return VM(x, ("extra", 0)) if is_vm(x) else T(x)
        pro = []
        for u in issue.get(-1, []):
            for x in u[3]:
                if x.kind == "vm" and x.txt.endswith("lds"): pro.append(T("s_nop 0"))
                pro.append(x)
        pro += [conv(x) for x in c.pre_loop_txt]
        pro += bar(-1) + read_items(0)
        touched = set(c.acc_init) if hasattr(c, "acc_init") else set()
        def make_step(step):
            st = c.steps[step]
            newt = [("tok", t) for t in st["toks"] if tfirst[t] == step]
            out = [WVM(newt, lgkm=0)]
            mf = []
            for j, (_, _, _, ms) in enumerate(st["frags"]):
                for acc, tr in (ms if j % 2 == 0 else ms[::-1]):
                    cin = acc if acc in touched else "0"
                    touched.add(acc)
                    mf.append(T(f"{MF} {acc}, {ar(c.wf(step%2, j),4)}, {ar(tr,4)}, {cin}"))
            n = len(mf)
            gaps = [[] for _ in range(n)]
            g0 = 0
            if step in bars: gaps[0] += bar(step); g0 = 1
            us = issue.get(step, [])
            a = [u for u in us if u[2] == "dma"]; b_ = [u for u in us if u[2] == "tok"]
            if us and min(u[0] for u in us) > step + 1:
                seq = []
                while a or b_:
                    if b_: seq.append(b_.pop(0))
                    if a: seq.append(a.pop(0))
            else: seq = us
            B = []
            if step in gate_at: B += [conv(x) for x in gate_at[step][1]]
            for u in seq: B += u[3]
            B += [conv(x) for x in c.late.get(step, [])]
            if step + 1 in gate_at: B = B[:len(gate_at[step][1]) if step in gate_at else 0] + [conv(x) for x in gate_at[step + 1][0]] + B[len(gate_at[step][1]) if step in gate_at else 0:]
            A = read_items(step + 1) if step + 1 < N else [T(x) for x in c.last_reads]
            X = [conv(x) for x in (c.step_extra(step) if c.step_extra else [])]
            want = []
            ra = max(1, n - c.read_margin - g0)
            for i, x in enumerate(A): want.append((g0 + i * ra / len(A), 0, i, x))
            for i, x in enumerate(B): want.append((g0 + (i + 0.5) * (n - g0) / len(B), 1, i, x))
            for i, x in enumerate(X): want.append((g0 + (i + 0.25) * (n - g0) / len(X), 2, i, x))
            want.sort(key=lambda w: (w[0], w[1], w[2]))
            cap = max(1, -(-len(want) // (n - g0)))
            g = g0
            for pos_, _, _, x in want:
                g = max(g, min(n - 1, int(pos_)))
                while g < n - 1 and len(gaps[g]) >= cap: g += 1
                gaps[g].append(x)
            for i in range(n):
                out.append(mf[i])
                prev = None
                for x in gaps[i]:
                    if x.kind == "vm" and x.txt.endswith("lds") and prev is not None and prev.txt and " m0," in prev.txt:
                        out.append(T("s_nop 0"))
                    out.append(x); prev = x
            return out
        issued = []
        def emit(items):
            for x in items:
                if x.kind == "wvm":
                    n = 63
                    for key in x.key:
                        idx = [i for i, kk in enumerate(issued) if kk == key]
                        n = min(n, len(issued) - 1 - idx[-1] if idx else len(issued))
                    parts = ([f"vmcnt({n})"] if x.key else []) + ([f"lgkmcnt({x.lgkm})"] if x.lgkm is not None else [])
                    k("s_waitcnt " + " ".join(parts))
                else:
                    if x.kind == "vm": issued.append(x.key)
                    if any(d in x.txt for d in c.drop): continue
                    k(x.txt)
        emit(pro)
        for s in range(N): emit(make_step(s))

def std_sched(c):
    NB, TB, KS, SPK, KT, NS, R = c.NB, c.TB, c.KS, c.SPK, c.KT, c.NS, c.R
    for kt in range(KT):
        us = []
        sw = c.s_kw + kt % 2
        for i, (vo, loff, goff) in enumerate(c.dma):
            g = c.pos_items(sw, kt, c.w_stride) if i == 0 else []
            g += [T(f"s_add_u32 m0, s{c.s_wbase}, {c.slot_addr(kt % NS) + loff - goff}"),
                  VM(f"buffer_load_dwordx4 v{vo}, {sr(c.srd_w,4)}, s{sw} offen" + (f" offset:{goff}" if goff else "") + " lds", ("dma", kt))]
            us.append(g)
        c.stage_units[kt] = us; c.stage_slot[kt] = kt % NS
        for sp in range(SPK):
            step = kt * SPK + sp
            us = []
            st_ = c.s_kt + kt % 2
            for ks in range(KS):
                for t in range(TB):
                    g = c.pos_items(st_, kt, SPK * KS * 1024) if (sp == 0 and ks == 0 and t == 0) else []
                    g.append(VM(f"buffer_load_dwordx4 {ar(c.tf(step % R, ks, t),4)}, v{c.v_tok[t]}, {sr(c.srd_t,4)}, s{st_} offen offset:{(sp*KS+ks)*1024} sc1", ("tok", step)))
                    us.append(g)
            c.tok_units[step] = us; c.tok_slot[step] = step % R
            frags = []
            for ks in range(KS):
                for b in range(NB):
                    va, o0 = c.rd(kt % NS, b, sp * KS + ks, 0); _, o1 = c.rd(kt % NS, b, sp * KS + ks, 1)
                    frags.append((va, o0, o1, [(c.acc(b, t), c.tf(step % R, ks, t)) for t in range(TB)]))
            c.steps.append(dict(frags=frags, stages=[kt], toks=[step]))
    c.wf = lambda buf, j: (buf * NB * KS + j) * 4
    c.tile_of = lambda key: key // SPK
```

```python
S, D, H, F = 2048, 1024, 32, 3584
MB = 1 << 20
WS_MODP = 0
WS_UT   = 1 * MB
WS_STAT = 2 * MB
WS_KVP  = 4 * MB
WS_H    = 16 * MB
WS_PHIQ = 24 * MB
WS_O    = 32 * MB
WS_X1   = 40 * MB
WS_Y    = 48 * MB
WS_HH   = 64 * MB
KA = dict(x=0, wqkv=8, wphi=16, wo=24, bx=32, w1=40, w3=48, w2=56, c=64, wmod=72, out=80, dbg=88, ws=96)
WS_MOD = 3 * MB
WS_FLAG = 3 * MB + 512 * 1024
WS_ZP   = 8 * MB
F_H, F_KV, F_O, F_Y, F_HH, F_UT, F_P4 = 0, 8192, 16384, 24576, 32768, 40960, 45056
FLAG_BYTES = 65536
WS_P4 = 24 * MB
MP_A, MP_B, MP_RS = 0, 131072, 393216
MP_BYTES = 393216 + 16384
import os
FS = int(os.environ.get("FS", "6"))
SLEEP = int(os.environ.get("SLEEP", "2"))
F_H, F_KV, F_O, F_Y, F_HH, F_P4, F_HB, F_O2, F_S0 = [i * (1024 << FS) for i in range(9)]
FLAG_BYTES = 9 * (1024 << FS)
WS_FLAG = 10 * MB
```

```python
import sys
from asmlib import *
from gemm import *
from layout import *
LOG2E = 1.4426950408889634
P_X, P_WQKV, P_WPHI, P_WO, P_W1, P_W3, P_W2, P_OUT, P_WS = 4, 6, 8, 10, 14, 16, 18, 24, 28
P_DBG, S_MB, S_MO = 96, 77, 79
P_C, P_WMOD = 12, 98
S_WAVE, S_XCD, S_IDX = 3, 30, 31
SRD_W, SRD_T, SRD_A, SRD_B, SRD_C, SRD_D, SRD_F = 32, 36, 40, 44, 48, 52, 56
S_KW, S_KT, S_WB, S_ROT, S_TMP, S_ROT2 = 60, 62, 76, 77, 78, 79
S_RB1, S_HP, S_RB2, S_NT, S_RB3, S_FT = 26, 27, 26, 27, 22, 23
S_R8, S_R4 = 20, 21
VSTAMP = 255
L_WPH, L_UTC = 101376, 105472
L_UT3, L_MV, L_R2 = 114688, 128000, 129792
LDS_TOTAL = 163584

class Mega(Kernel):
    nst = 0
    def stamp(self, name=""):
        if not self.instr: return
        self("s_waitcnt lgkmcnt(0)\ns_memrealtime s[0:1]\ns_waitcnt lgkmcnt(0)")
        self(f"v_writelane_b32 v{VSTAMP}, s0, {self.nst}")
        self("s_nop 3\ns_memtime s[0:1]\ns_waitcnt lgkmcnt(0)")
        self(f"v_writelane_b32 v{VSTAMP}, s0, {self.nst + 32}")
        self.names.append(name); self.nst += 1

def lane_id(k, v):
    k(f"v_mbcnt_lo_u32_b32 v{v}, -1, 0\nv_mbcnt_hi_u32_b32 v{v}, -1, v{v}")

def code_prefetch_setup(k, name, s_pc=100):
    lab = k.label("pc")
    k(f"s_getpc_b64 s[{s_pc}:{s_pc+1}]")
    k(f"{lab}:")
    k(f"s_sub_u32 s{s_pc}, s{s_pc}, {lab}-{name}\ns_subb_u32 s{s_pc+1}, s{s_pc+1}, 0")
def code_prefetch_txt(name, v_l16, vt, s_tmp, s_idx=S_IDX, s_wave=S_WAVE, s_pc=100):
    return [f"s_lshl_b32 s{s_tmp}, s{s_idx}, 2", f"s_add_u32 s{s_tmp}, s{s_tmp}, s{s_wave}", f"s_lshl_b32 s{s_tmp}, s{s_tmp}, 10",
            f"v_add_u32 v{vt}, s{s_tmp}, v{v_l16}", f"v_min_u32 v{vt}, {name}_end-{name}-4, v{vt}",
            f"global_load_dword v{vt}, v{vt}, s[{s_pc}:{s_pc+1}]"]

def publish(k, s_off, vt):
    k(f"v_mov_b32 v{vt}, 1\nv_mov_b32 v{vt+1}, 0")
    k("s_waitcnt vmcnt(0)")
    k(f"buffer_store_dword v{vt}, v{vt+1}, {sr(SRD_F,4)}, s{s_off} offen sc1")

def spin(k, loads, regs, vt, s_cnt=96):
    top, ok = k.label("poll"), k.label("ok")
    k(f"s_mov_b32 s{s_cnt}, 0")
    k(f"{top}:")
    for x in loads: k(x)
    k("s_waitcnt vmcnt(0)")
    if len(regs) == 1: k(f"v_cmp_eq_u32 vcc, 0, v{regs[0]}")
    else:
        k(f"v_min_u32 v{vt}, v{regs[0]}, v{regs[1]}")
        for x in regs[2:]: k(f"v_min_u32 v{vt}, v{vt}, v{x}")
        k(f"v_cmp_eq_u32 vcc, 0, v{vt}")
    k(f"s_add_u32 s{s_cnt}, s{s_cnt}, 1")
    k(f"s_cmp_eq_u64 vcc, 0\ns_cbranch_scc1 {ok}")
    k(f"s_sleep {SLEEP}\ns_cmp_lt_u32 s{s_cnt}, 0x40000\ns_cbranch_scc1 {top}")
    k(f"{ok}:")

def wait_flags(k, polls, vt, s_cnt=96):
    top, ok = k.label("poll"), k.label("ok")
    k(f"s_mov_b32 s{s_cnt}, 0")
    k(f"{top}:")
    r = vt
    regs = []
    for va, so, ndw in polls:
        if ndw == 4: r = (r + 1) // 2 * 2
        k(f"buffer_load_dword{'x4' if ndw == 4 else ''} {vr(r,ndw)}, v{va}, {sr(SRD_F,4)}, s{so} offen sc1")
        regs += list(range(r, r + ndw)); r += ndw
    k("s_waitcnt vmcnt(0)")
    for x in regs[1:]: k(f"v_min_u32 v{regs[0]}, v{regs[0]}, v{x}")
    k(f"v_cmp_eq_u32 vcc, 0, v{regs[0]}")
    k(f"s_add_u32 s{s_cnt}, s{s_cnt}, 1")
    k(f"s_cmp_eq_u64 vcc, 0\ns_cbranch_scc1 {ok}")
    k(f"s_sleep {SLEEP}\ns_cmp_lt_u32 s{s_cnt}, 0x40000\ns_cbranch_scc1 {top}")
    k(f"{ok}:")

def staged_wait(k, c, T_, v_addr, s_off, vf, prod_of, dup16=False, skip_first=0, s_m=97):
    ld = f"buffer_load_dword v{vf}, v{v_addr}, {sr(SRD_F,4)}, s{s_off} offen sc1"
    if T_ is None:
        spin(k, [ld], [vf], 0); return
    k(f"s_mov_b32 s{s_m}, 0")
    for kt in range(skip_first, T_):
        for x in c.pos_txt(80, kt): k(x)
        for x in prod_of(80, 81): k(x)
        k(f"s_or_b32 s{s_m}, s{s_m}, s81")
    if dup16: k(f"s_lshl_b32 s81, s{s_m}, 16\ns_or_b32 s{s_m}, s{s_m}, s81")
    top, ok = k.label("poll"), k.label("ok")
    k(f"s_mov_b32 s96, 0\n{top}:")
    k(ld)
    k("s_waitcnt vmcnt(0)")
    k(f"v_cmp_eq_u32 vcc, 0, v{vf}")
    k("s_add_u32 s96, s96, 1")
    k(f"s_and_b32 s81, vcc_lo, s{s_m}\ns_cbranch_scc0 {ok}")
    k(f"s_sleep {SLEEP}\ns_cmp_lt_u32 s96, 0x40000\ns_cbranch_scc1 {top}")
    k(f"{ok}:")
    add_gate(k, c, T_, ld, vf)
def add_gate(k, c, tile, ld, vf):
    m = Txt(); m.label = k.label
    okl = k.label("gok")
    m(f"v_cmp_eq_u32 vcc, 0, v{vf}\ns_cmp_eq_u64 vcc, 0\ns_cbranch_scc1 {okl}")
    spin(m, [ld], [vf], 0)
    m(f"{okl}:")
    c.gates = list(c.gates) + [(tile, [VM(ld, ("gate", tile))], [WVM([("gate", tile)]), T("\n".join(m.L))])]
one_prod = lambda sp, st: [f"s_lshl_b32 s{st}, 1, s{sp}"]

def allreduce_q(k, op, x, tmp):
    k(f"v_mov_b32 v{tmp}, v{x}\ns_nop 1")
    k(f"v_permlane32_swap_b32 v{x}, v{tmp}")
    k(f"s_nop 1\n{op} v{x}, v{x}, v{tmp}")
    k(f"v_mov_b32 v{tmp}, v{x}\ns_nop 1")
    k(f"v_permlane16_swap_b32 v{x}, v{tmp}")
    k(f"s_nop 1\n{op} v{x}, v{x}, v{tmp}")

def treduce4(k, op, A):
    a, b, c, d = A
    k("s_nop 1")
    k(f"v_permlane32_swap_b32 v{a}, v{b}\nv_permlane32_swap_b32 v{c}, v{d}")
    k("s_nop 1")
    k(f"{op} v{a}, v{a}, v{b}\n{op} v{c}, v{c}, v{d}")
    k("s_nop 1")
    k(f"v_permlane16_swap_b32 v{a}, v{c}")
    k("s_nop 1")
    k(f"{op} v{a}, v{a}, v{c}")
    k(f"v_mov_b32 v{c}, v{a}")
    k("s_nop 1")
    k(f"v_permlane16_swap_b32 v{a}, v{c}")
    k("s_nop 1")
    k(f"v_mov_b32 v{b}, v{a}\nv_mov_b32 v{d}, v{c}")
    k("s_nop 1")
    k(f"v_permlane32_swap_b32 v{a}, v{b}\nv_permlane32_swap_b32 v{c}, v{d}")
    k("s_nop 1")

def red8(k, x):
    for m in ("quad_perm:[1,0,3,2]", "quad_perm:[2,3,0,1]", "row_half_mirror"):
        k(f"s_nop 1\nv_add_f32_dpp v{x}, v{x}, v{x} {m} row_mask:0xf bank_mask:0xf")

def round_bf16(k, v):
    k(f"v_cvt_pk_bf16_f32 v{v}, v{v}, v{v}\nv_and_b32 v{v}, 0xffff0000, v{v}")

S_DLA, S_DLB, S_PTMP = 71, 6, 75
def order(c, k, opt, tag, default):
    o = opt.get(tag + "_ord", default)
    c.s_rot, c.s_rot2 = S_R8, S_R4
    if o[0] == "lead":
        c.lead_D, c.s_dl = o[1], S_DLA
    else:
        c.wins = win_mask(o[1])
        if o[2]:
            c.s_start = S_HP
            c.s_rot = c.s_rot2 = S_RB3
def common_gemm(c):
    c.srd_w, c.srd_t = SRD_W, SRD_T
    c.s_kw, c.s_kt, c.s_wbase, c.s_ptmp = S_KW, S_KT, S_WB, S_PTMP

def setup_gemm1(k, opt):
    c = Sched(); common_gemm(c)
    NS, R = opt.get("g1_NS", 4), opt.get("g1_R", 4)
    STAGE = 25344
    c.V_RD, c.V_DMA, c.V_TOK, c.LANE, c.L16, c.VT = 96, 98, 102, 104, 105, 106
    V_RD, V_DMA, V_TOK, LANE, L16, VT = c.V_RD, c.V_DMA, c.V_TOK, c.LANE, c.L16, 110
    k(f"v_and_b32 v{LANE}, 63, v0")
    k(f"v_lshlrev_b32 v{L16}, 4, v{LANE}")
    c.lead_D, c.s_dl = opt.get("D", 0), S_DLA
    c.lead_init(k, S_R4, 81)
    c.lead_D = None
    order(c, k, opt, "g1", ["win", [1, 1, 2, 4, 8], 1])
    k(f"s_lshr_b32 s80, s{S_WAVE}, 1\ns_and_b32 s81, s{S_WAVE}, 1")
    k(f"v_lshrrev_b32 v{VT+1}, 3, v{LANE}")
    k(f"v_and_b32 v{VT+2}, 4, v{VT+1}")
    k(f"v_bfe_u32 v{VT+3}, v{VT+1}, 1, 1\nv_or_b32 v{VT+2}, v{VT+2}, v{VT+3}")
    k(f"v_and_b32 v{VT+3}, 1, v{VT+1}\nv_lshl_or_b32 v{VT+2}, v{VT+3}, 1, v{VT+2}")
    k(f"v_mul_u32_u24 v{VT+2}, {4*6144}, v{VT+2}")
    k(f"v_and_b32 v{VT+3}, 7, v{LANE}\nv_lshl_add_u32 v{VT+2}, v{VT+3}, 4, v{VT+2}")
    k("s_lshl_b32 s82, s80, 5\ns_lshl_b32 s83, s81, 1\ns_add_u32 s82, s82, s83\ns_mul_i32 s82, s82, 6144")
    k(f"s_lshl_b32 s83, s{S_HP}, 7\ns_add_u32 s82, s82, s83")
    k(f"v_add_u32 v{V_DMA}, s82, v{VT+2}")
    k(f"v_add_u32 v{V_DMA+1}, 6144, v{V_DMA}\nv_add_u32 v{V_DMA+2}, 4096, v{V_DMA}\nv_add_u32 v{V_DMA+3}, {6144+4096}, v{V_DMA}")
    k(f"v_bfe_u32 v{VT+1}, v{LANE}, 2, 2\nv_mul_u32_u24 v{VT+1}, 1056, v{VT+1}")
    k(f"v_lshrrev_b32 v{VT+2}, 5, v{LANE}\nv_lshl_add_u32 v{VT+1}, v{VT+2}, 9, v{VT+1}")
    k(f"v_bfe_u32 v{VT+2}, v{LANE}, 4, 1\nv_lshl_add_u32 v{VT+1}, v{VT+2}, 7, v{VT+1}")
    k(f"v_and_b32 v{VT+3}, 3, v{LANE}\nv_lshl_add_u32 v{V_RD}, v{VT+3}, 3, v{VT+1}")
    k(f"v_add_u32 v{V_RD+1}, {2*STAGE}, v{V_RD}")
    k(f"s_lshl_b32 s82, s{S_RB1}, 3\ns_lshl_b32 s83, s{S_WAVE}, 1\ns_add_u32 s82, s82, s83\ns_lshl_b32 s82, s82, 15")
    k(f"v_add_u32 v{V_TOK}, s82, v{L16}\nv_add_u32 v{V_TOK+1}, 0x8000, v{V_TOK}")
    k(f"s_mul_i32 s{S_WB}, s80, 4224\ns_mul_i32 s82, s81, 2112\ns_add_u32 s{S_WB}, s{S_WB}, s82")
    c.NB, c.TB, c.KS, c.SPK, c.KT, c.NS, c.R = 12, 2, 1, 2, 16, NS, R
    c.acc = lambda b, t: vr((b * 2 + t) * 4, 4)
    c.tf = lambda slot, ks, t: 96 + (slot * 2 + t) * 4
    c.rd = lambda sl, b, sub, r: (V_RD + sl // 2, (sl % 2) * STAGE + (b // 4) * 8448 + sub * 4224 + r * 256 + (b % 4) * 32)
    c.slot_addr = lambda sl: sl * STAGE
    c.dma = [(V_DMA, 0, 0), (V_DMA + 1, 1056, 0), (V_DMA, 8448, 2048), (V_DMA + 1, 8448 + 1056, 2048), (V_DMA + 2, 16896, 0), (V_DMA + 3, 16896 + 1056, 0)]
    c.v_tok = [V_TOK, V_TOK + 1]
    c.w_stride = 64 * 6144
    c.drop = opt.get("g1_drop", ())
    c.pro_units, c.ramp_rate, c.read_margin = opt.get("g1_pro", 6), opt.get("g1_ramp", 6), opt.get("g1_rm", 6)
    std_sched(c)
    return c

A_UT = 176
def silu_block(k, regs):
    for v in regs: k(f"v_lshlrev_b32 v{v}, 16, v{v}\nv_mul_f32 v{v+1}, {-LOG2E!r}, v{v}")
    for v in regs: k(f"v_exp_f32 v{v+1}, v{v+1}")
    k("s_nop 0")
    for v in regs: k(f"v_add_f32 v{v+1}, 1.0, v{v+1}")
    for v in regs: k(f"v_rcp_f32 v{v+1}, v{v+1}")
    k("s_nop 0")
    for v in regs:
        k(f"v_mul_f32 v{v}, v{v}, v{v+1}"); round_bf16(k, v)

def modb_loads(s_off, v_w, v_c):
    out = []
    for i in range(8):
        out.append([f"buffer_load_dwordx4 {ar(A_UT+4*i,4)}, v{v_w}, {sr(SRD_D,4)}, s{s_off} offen", f"s_add_u32 s{s_off}, s{s_off}, {8*12288}"])
    return out

def red32(k, x, t):
    red8(k, x)
    k(f"s_nop 1\nv_add_f32_dpp v{x}, v{x}, v{x} row_mirror row_mask:0xf bank_mask:0xf")
    k(f"v_mov_b32 v{t}, v{x}\ns_nop 1\nv_permlane16_swap_b32 v{x}, v{t}\ns_nop 1\nv_add_f32 v{x}, v{x}, v{t}")

def ids(k):
    k("v_lshrrev_b32 v1, 6, v0")
    k(f"s_and_b32 s{S_XCD}, s2, 7\ns_lshr_b32 s{S_IDX}, s2, 3")
    k(f"v_readfirstlane_b32 s{S_WAVE}, v1")
    k(f"s_bfe_u32 s{S_RB1}, s{S_XCD}, 0x10001\ns_lshl_b32 s{S_RB1}, s{S_RB1}, 3\ns_lshr_b32 s80, s{S_IDX}, 2\ns_add_u32 s{S_RB1}, s{S_RB1}, s80")
    k(f"s_lshr_b32 s{S_HP}, s{S_XCD}, 2\ns_lshl_b32 s{S_HP}, s{S_HP}, 2\ns_and_b32 s80, s{S_IDX}, 3\ns_add_u32 s{S_HP}, s{S_HP}, s80\ns_lshl_b32 s{S_HP}, s{S_HP}, 1\ns_and_b32 s80, s{S_XCD}, 1\ns_add_u32 s{S_HP}, s{S_HP}, s80")

def build_k0(instr=False, opt=None, name="mod_kernel", mega="mega_kernel"):
    opt = opt or {}
    k = Kernel(name, 256, 256, 4096, vgpr=128, sgpr=102)
    k.instr = instr; k.s_wave = S_WAVE
    stamp(k, 0)
    end = k.label("end")
    k(f"s_cmp_ge_u32 s2, 256\ns_cbranch_scc1 {end}")
    k("s_load_dwordx4 s[12:15], s[0:1], 64")
    k("s_load_dwordx8 s[4:11], s[0:1], 0")
    k("s_load_dwordx2 s[28:29], s[0:1], 96")
    ids(k)
    LANE, T, V_W = 104, 48, 105
    WA, CA, XR, XF, A0, SU = 64, 80, 84, 0, 32, 100
    k(f"v_and_b32 v{LANE}, 63, v0")
    k(f"v_lshrrev_b32 v{T+1}, 3, v{LANE}\nv_and_b32 v{T+2}, 7, v{LANE}")
    k(f"v_mul_u32_u24 v{V_W}, 12288, v{T+1}\nv_lshl_add_u32 v{V_W}, v{T+2}, 4, v{V_W}")
    k(f"s_lshl_b32 s64, s{S_RB1}, 6\ns_lshl_b32 s65, s{S_WAVE}, 4\ns_add_u32 s64, s64, s65")
    k(f"v_add_u32 v{T+3}, s64, v{T+1}\nv_lshlrev_b32 v{T+3}, 1, v{T+3}")
    k(f"s_mul_i32 s67, s64, 12288\ns_lshl_b32 s66, s{S_HP}, 7\ns_add_u32 s67, s67, s66\ns_add_u32 s68, s67, {8*12288}")
    k(f"v_lshrrev_b32 v{T+4}, 5, v{LANE}\nv_lshlrev_b32 v{T+4}, 11, v{T+4}\nv_and_b32 v{T+5}, 31, v{LANE}\nv_lshl_add_u32 v{T+4}, v{T+5}, 4, v{T+4}")
    k(f"s_lshl_b32 s69, s{S_RB1}, 4\ns_add_u32 s69, s69, s{S_HP}")
    k(f"s_lshl_b32 s70, s69, 14\ns_lshl_b32 s71, s{S_WAVE}, 12\ns_add_u32 s70, s70, s71")
    k("s_waitcnt lgkmcnt(0)")
    srd(k, SRD_D, 14, D * 6 * D * 2)
    srd(k, SRD_A, P_X, S * D * 2)
    for i in range(2): k(f"global_load_ushort v{CA+2*i}, v{T+3}, s[12:13] offset:{i*16}")
    for i in range(2):
        for v in range(2): k(f"buffer_load_dwordx4 {vr(WA+(i*2+v)*4,4)}, v{V_W}, {sr(SRD_D,4)}, s{67+i} offen offset:{v*2048}")
    for i in range(4): k(f"buffer_load_dwordx4 {vr(XR+4*i,4)}, v{T+4}, {sr(SRD_A,4)}, s70 offen offset:{i*512}")
    stamp(k, 1)
    lab = k.label("pc")
    k(f"s_getpc_b64 s[60:61]\n{lab}:")
    k(f"s_add_u32 s60, s60, {mega}-{lab}\ns_addc_u32 s61, s61, 0")
    k(f"v_lshlrev_b32 v{T+6}, 4, v{LANE}")
    for x in code_prefetch_txt(mega, T + 6, T + 7, 62, s_pc=60): k(x)
    srd(k, SRD_B, P_WS, MP_BYTES, WS_MODP)
    srd(k, SRD_F, P_WS, FLAG_BYTES, WS_FLAG)
    srd(k, SRD_C, P_WS, S * 128, WS_STAT)
    k(f"v_mov_b32 v{T+8}, 0\nv_lshlrev_b32 v{T+9}, 2, v0\ns_lshl_b32 s62, s2, 10\ns_add_u32 s63, s62, {MP_B}")
    k(f"v_lshlrev_b32 v{T+10}, {FS}, v0\ns_lshl_b32 s66, s2, {FS+8}")
    k(f"buffer_store_dword v{T+8}, v{T+10}, {sr(SRD_F,4)}, s66 offen")
    k(f"buffer_store_dword v{T+8}, v{T+9}, {sr(SRD_C,4)}, s62 offen")
    k(f"buffer_store_dword v{T+8}, v{T+9}, {sr(SRD_B,4)}, s63 offen")
    young = 4
    k(f"s_lshl_b32 s62, s2, 2\ns_add_u32 s62, s62, s{S_WAVE}")
    for ptr, per, tag in ((P_WQKV, 6, "t_wq"), (P_WO, 2, "t_wo"), (14, 12, "t_wm")):
        if not opt.get(tag, 1): continue
        k(f"s_mul_i32 s63, s62, {per*1024}\ns_add_u32 s63, s63, 384")
        k(f"v_min_u32 v{T+14}, {per-1}, v{LANE}\nv_lshlrev_b32 v{T+14}, 10, v{T+14}\nv_add_u32 v{T+14}, s63, v{T+14}")
        k(f"global_load_dword v{T+14}, v{T+14}, s[{ptr}:{ptr+1}]")
        young += 1
    k(f"s_waitcnt vmcnt({young + 8})")
    silu_block(k, [CA, CA + 2])
    k(f"s_waitcnt vmcnt({young + 4})")
    for i in range(2):
        for v in range(2):
            for d in range(4):
                w_ = WA + (i * 2 + v) * 4 + d
                k(f"v_lshlrev_b32 v{T+10}, 16, v{w_}\nv_and_b32 v{T+11}, 0xffff0000, v{w_}")
                if i == 0: k(f"v_pk_mul_f32 {vr(A0+v*8+2*d,2)}, {vr(T+10,2)}, {vr(CA,2)} op_sel_hi:[1,0]")
                else: k(f"v_pk_fma_f32 {vr(A0+v*8+2*d,2)}, {vr(T+10,2)}, {vr(CA+2,2)}, {vr(A0+v*8+2*d,2)} op_sel_hi:[1,0,1]")
    k("s_nop 1")
    for j in range(8): k(f"v_permlane32_swap_b32 v{A0+j}, v{A0+8+j}")
    k("s_nop 1")
    for j in range(8): k(f"v_add_f32 v{A0+j}, v{A0+j}, v{A0+8+j}")
    k("s_nop 1")
    for j in range(4): k(f"v_permlane16_swap_b32 v{A0+j}, v{A0+4+j}")
    k("s_nop 1")
    for j in range(4): k(f"v_add_f32 v{A0+j}, v{A0+j}, v{A0+4+j}")
    k("s_nop 1")
    for j in range(4): k(f"v_add_f32_dpp v{A0+j}, v{A0+j}, v{A0+j} row_ror:8 row_mask:0xf bank_mask:0xf")
    k(f"v_lshrrev_b32 v{T+12}, 5, v{LANE}\nv_lshlrev_b32 v{T+13}, 8, v{T+12}\nv_lshl_add_u32 v{T+13}, v{T+2}, 5, v{T+13}")
    k(f"v_bfe_u32 v{T+10}, v{LANE}, 4, 1\nv_lshl_add_u32 v{T+13}, v{T+10}, 4, v{T+13}\ns_lshl_b32 s62, s{S_WAVE}, 9\nv_add_u32 v{T+13}, s62, v{T+13}")
    k(f"ds_write_b128 v{T+13}, {vr(A0,4)}")
    k("s_waitcnt lgkmcnt(0)\ns_barrier")
    nw0 = k.label("notw0")
    k(f"s_cmp_lg_u32 s{S_WAVE}, 0\ns_cbranch_scc1 {nw0}")
    k(f"v_lshlrev_b32 v{T+13}, 3, v{LANE}")
    for w in range(4): k(f"ds_read_b64 {vr(A0+2*w,2)}, v{T+13} offset:{w*512}")
    k(f"s_lshl_b32 s62, s{S_HP}, 13\ns_lshl_b32 s63, s{S_RB1}, 9\ns_add_u32 s63, s63, s62")
    k("s_waitcnt lgkmcnt(0)")
    k(f"v_pk_add_f32 {vr(A0,2)}, {vr(A0,2)}, {vr(A0+2,2)}\nv_pk_add_f32 {vr(A0+4,2)}, {vr(A0+4,2)}, {vr(A0+6,2)}\nv_pk_add_f32 {vr(A0,2)}, {vr(A0,2)}, {vr(A0+4,2)}")
    k(f"buffer_store_dwordx2 {vr(A0,2)}, v{T+13}, {sr(SRD_B,4)}, s63 offen")
    k(f"{nw0}:")
    stamp(k, 2)
    k(f"s_waitcnt vmcnt({young})")
    for d in range(16): k(f"v_lshlrev_b32 v{XF+2*d}, 16, v{XR+d}\nv_and_b32 v{XF+2*d+1}, 0xffff0000, v{XR+d}")
    k(f"v_pk_add_f32 {vr(SU,2)}, {vr(XF,2)}, {vr(XF+2,2)}")
    for d in range(2, 16): k(f"v_pk_add_f32 {vr(SU,2)}, {vr(SU,2)}, {vr(XF+2*d,2)}")
    k(f"v_add_f32 v{SU}, v{SU}, v{SU+1}")
    red32(k, SU, SU + 1)
    k(f"v_mul_f32 v{SU+2}, {-1.0/1024!r}, v{SU}")
    k(f"v_mov_b32 v{SU}, 0\nv_mov_b32 v{SU+1}, 0")
    for d in range(16):
        k(f"v_pk_add_f32 {vr(XF+2*d,2)}, {vr(XF+2*d,2)}, {vr(SU+2,2)} op_sel_hi:[1,0]")
        k(f"v_pk_fma_f32 {vr(SU,2)}, {vr(XF+2*d,2)}, {vr(XF+2*d,2)}, {vr(SU,2)}")
    k(f"v_add_f32 v{SU}, v{SU}, v{SU+1}")
    red32(k, SU, SU + 1)
    k(f"v_mov_b32 v{SU+1}, 0x3727c5ac\nv_fmac_f32 v{SU+1}, {1.0/1024!r}, v{SU}\nv_rsq_f32 v{SU+3}, v{SU+1}")
    k(f"s_lshl_b32 s62, s69, 6\ns_lshl_b32 s63, s{S_WAVE}, 4\ns_add_u32 s62, s62, s63\ns_add_u32 s62, s62, {MP_RS}\nv_lshlrev_b32 v{T+12}, 3, v{T+12}")
    k(f"buffer_store_dwordx2 {vr(SU+2,2)}, v{T+12}, {sr(SRD_B,4)}, s62 offen")
    stamp(k, 3)
    if instr: k("s_waitcnt vmcnt(0)")
    stamp(k, 4)
    stamp_flush(k, 28, 5, 4, slot=1)
    k(f"{end}:\ns_endpgm")
    return k

def phase_front(k, opt, name):
    LANE, L16 = 104, 105
    T = 48
    V_W, V_C = 115, 109
    RS, XR, XT_, XF, G, M = 64, 128, 144, 0, 160, 32
    HL = 2 * 25344
    k(f"v_and_b32 v{LANE}, 63, v0")
    k(f"v_lshrrev_b32 v{T+1}, 3, v{LANE}\nv_and_b32 v{T+2}, 7, v{LANE}")
    k(f"v_lshlrev_b32 v{T+5}, 11, v{T+1}\nv_lshl_add_u32 v{T+5}, v{T+2}, 4, v{T+5}")
    k(f"s_lshl_b32 s91, s{S_RB1}, 18\ns_lshl_b32 s92, s{S_WAVE}, 16\ns_add_u32 s91, s91, s92\ns_lshl_b32 s92, s{S_HP}, 7\ns_add_u32 s91, s91, s92")
    k(f"v_lshlrev_b32 v{T+8}, 3, v{LANE}\nv_lshlrev_b32 v{T+6}, 3, v{T+1}")
    k(f"s_lshl_b32 s94, s{S_HP}, 13\ns_add_u32 s95, s94, 4096")
    k(f"s_lshl_b32 s90, s{S_RB1}, 10\ns_lshl_b32 s93, s{S_WAVE}, 8\ns_add_u32 s90, s90, s93\ns_add_u32 s90, s90, {MP_RS}")
    k("s_waitcnt lgkmcnt(0)")
    srd(k, SRD_B, P_WS, MP_BYTES, WS_MODP)
    srd(k, SRD_A, P_X, S * D * 2)
    for p_ in range(16): k(f"buffer_load_dwordx2 {vr(G+2*p_,2)}, v{T+8}, {sr(SRD_B,4)}, s{94+p_//8} offen offset:{(p_%8)*512}")
    for i in range(4): k(f"buffer_load_dwordx2 {vr(RS+2*i,2)}, v{T+6}, {sr(SRD_B,4)}, s90 offen offset:{i*64}")
    for i in range(4):
        k(f"buffer_load_dwordx4 {vr(XT_+4*i,4)}, v{T+5}, {sr(SRD_A,4)}, s91 offen")
        if i < 3: k("s_add_u32 s91, s91, 16384")
    k.stamp("loads issued")
    def touch(ptr, per, vt, off=0):
        k(f"s_lshl_b32 s80, s2, 2\ns_add_u32 s80, s80, s{S_WAVE}\ns_mul_i32 s80, s80, {per*128}")
        if off: k(f"s_add_u32 s80, s80, {off}")
        k(f"v_min_u32 v{vt}, {per-1}, v{LANE}\nv_lshlrev_b32 v{vt}, 7, v{vt}\nv_add_u32 v{vt}, s80, v{vt}")
        k(f"global_load_dword v{vt}, v{vt}, s[{ptr}:{ptr+1}]")
    nt0 = 0
    if opt.get("m_touch", 0) == 1: touch(P_WQKV, 48, 254); nt0 = 1
    g1 = setup_gemm1(k, opt)
    srd(k, SRD_W, P_WQKV, D * 3 * D * 2)
    n0 = opt.get("h_pre0", 6)
    g1.prefetch(k, n0)
    n0 += nt0
    srd(k, SRD_F, P_WS, FLAG_BYTES, WS_FLAG)
    srd(k, SRD_T, P_WS, S * D * 2, WS_H)
    VS = T + 4
    k(f"v_lshrrev_b32 v{VS}, 2, v{T+2}\nv_lshlrev_b32 v{VS}, 10, v{VS}")
    k(f"v_and_b32 v{T+3}, 3, v{T+2}\nv_lshl_add_u32 v{VS}, v{T+3}, 8, v{VS}\nv_lshl_add_u32 v{VS}, v{T+1}, 4, v{VS}")
    k(f"s_lshl_b32 s86, s{S_RB1}, 3\ns_lshl_b32 s87, s{S_WAVE}, 1\ns_add_u32 s86, s86, s87\ns_lshl_b32 s86, s86, 15\ns_lshl_b32 s87, s{S_HP}, 11\ns_add_u32 s86, s86, s87\ns_add_u32 s87, s86, 0x8000")
    k(f"s_lshl_b32 s88, s{S_WAVE}, 9\nv_add_u32 v{T+8}, s88, v{T+8}\nv_lshlrev_b32 v{T+5}, 5, v{T+2}\nv_add_u32 v{T+5}, s88, v{T+5}")
    k(f"s_lshl_b32 s88, s{S_RB1}, 2\ns_add_u32 s88, s88, s{S_WAVE}\ns_lshl_b32 s88, s88, {FS+4}\ns_add_u32 s88, s88, {F_H}\ns_lshl_b32 s89, s{S_HP}, {FS}\ns_add_u32 s89, s89, s88")
    k(f"v_cmp_lt_u32 vcc, 31, v{LANE}")
    k(f"s_waitcnt vmcnt({8 + n0})")
    for st in (8, 4, 2, 1):
        for j in range(st): k(f"v_pk_add_f32 {vr(G+2*j,2)}, {vr(G+2*j,2)}, {vr(G+2*(j+st),2)}")
    k(f"v_cvt_pk_bf16_f32 v{G+2}, v{G}, v{G+1}\nv_lshlrev_b32 v{G}, 16, v{G+2}\nv_and_b32 v{G+1}, 0xffff0000, v{G+2}")
    k(f"v_pk_add_f32 {vr(G+4,2)}, {vr(G,2)}, 1.0 op_sel_hi:[1,0]")
    k(f"v_cvt_pk_bf16_f32 v{G+2}, v{G+4}, v{G+5}\nv_lshlrev_b32 v{G+4}, 16, v{G+2}\nv_and_b32 v{G+5}, 0xffff0000, v{G+2}")
    k(f"v_cndmask_b32 v{G}, v{G}, v{G+4}, vcc\nv_cndmask_b32 v{G+1}, v{G+1}, v{G+5}, vcc")
    k(f"ds_write_b64 v{T+8}, {vr(G,2)} offset:{HL}")
    k("s_waitcnt lgkmcnt(0)")
    for h in range(2): k(f"ds_read_b128 {vr(M+4*h,4)}, v{T+5} offset:{HL+h*16}\nds_read_b128 {vr(M+8+4*h,4)}, v{T+5} offset:{HL+256+h*16}")
    for i in range(4):
        k(f"s_waitcnt vmcnt({3 - i + n0})")
        for d in range(4): k(f"v_lshlrev_b32 v{XF+8*i+2*d}, 16, v{XT_+4*i+d}\nv_and_b32 v{XF+8*i+2*d+1}, 0xffff0000, v{XT_+4*i+d}")
        for j in range(4): k(f"v_pk_add_f32 {vr(XF+8*i+2*j,2)}, {vr(XF+8*i+2*j,2)}, {vr(RS+2*i,2)} op_sel_hi:[1,0]")
        for j in range(4): k(f"v_pk_mul_f32 {vr(XF+8*i+2*j,2)}, {vr(XF+8*i+2*j,2)}, {vr(RS+2*i,2)} op_sel:[0,1] op_sel_hi:[1,1]")
    k("s_waitcnt lgkmcnt(0)")
    for i in range(4):
        for j in range(4): k(f"v_pk_fma_f32 {vr(XF+8*i+2*j,2)}, {vr(XF+8*i+2*j,2)}, {vr(M+8+2*j,2)}, {vr(M+2*j,2)}")
        for j in range(4): k(f"v_cvt_pk_bf16_f32 v{XR+4*i+j}, v{XF+8*i+2*j}, v{XF+8*i+2*j+1}")
        k(f"buffer_store_dwordx4 {vr(XR+4*i,4)}, v{VS}, {sr(SRD_T,4)}, s{86 + i//2} offen offset:{(i%2)*128} sc1")
    k.stamp("h computed")
    code_prefetch_setup(k, name)
    srd(k, SRD_D, P_WMOD, D * 6 * D * 2)
    k(f"v_mul_u32_u24 v{V_W}, 12288, v{T+1}\nv_lshl_add_u32 v{V_W}, v{T+2}, 4, v{V_W}")
    k(f"s_lshl_b32 s84, s{S_RB1}, 6\nv_add_u32 v{V_C}, s84, v{T+1}\nv_lshlrev_b32 v{V_C}, 1, v{V_C}")
    k(f"s_mul_i32 s86, s84, 12288\ns_lshl_b32 s87, s{S_HP}, 7\ns_add_u32 s86, s86, s87")
    k(f"s_lshl_b32 s94, s{S_WAVE}, 11\ns_add_u32 s{S_MB}, s86, s94\ns_add_u32 s{S_MB}, s{S_MB}, 4096")
    k(f"s_lshl_b32 s94, s{S_WAVE}, 16\ns_lshl_b32 s95, s{S_HP}, 12\ns_add_u32 s94, s94, s95\ns_lshl_b32 s95, s{S_RB1}, 8\ns_add_u32 s94, s94, s95\ns_add_u32 s{S_MO}, s94, {MP_B}")
    k.g3 = setup_gemm3_early(k, opt, LANE, 56)
    publish(k, 89, T)
    k.stamp("h published")
    if opt.get("m_touch", 0) == 2: touch(P_WQKV, 48, 254)
    k("s_barrier")
    g1.prefetch(k, opt.get("h_pre1", 12))
    for i in range(8): k(f"global_load_ushort {ar(A_UT+32+i,1)}, v{V_C}, s[{P_C}:{P_C+1}] offset:{i*16}")
    k(f"v_and_b32 v252, 15, v{LANE}\nv_lshlrev_b32 v252, {FS}, v252\ns_mov_b32 s93, s88")
    staged_wait(k, g1, opt.get("g1_T", 4), 252, 93, 253, one_prod)
    k.stamp("h ready")
    return g1

def setup_gemm24(k, which, opt, base):
    c = Sched(); common_gemm(c)
    K = 1024 if which == 2 else 3584
    NS, R = 4, opt.get(f"g{which}_R", 4)
    STAGE = 8448
    V_RD, V_DMA, V_TOK, LANE, L16, VT = base, base + 1, base + 2, base + 4, base + 5, base + 6
    c.LANE, c.L16 = LANE, L16
    lane_id(k, LANE)
    k(f"v_lshlrev_b32 v{L16}, 4, v{LANE}")
    order(c, k, opt, "g2", ["win", [1, 1, 2, 4, 8], 1])
    k(f"s_lshr_b32 s80, s{S_WAVE}, 1\ns_and_b32 s81, s{S_WAVE}, 1")
    k("s_lshl_b32 s82, s80, 5\ns_lshl_b32 s83, s81, 1\ns_add_u32 s82, s82, s83\ns_lshl_b32 s82, s82, 11")
    k(f"s_lshl_b32 s83, s{S_NT}, 7\ns_add_u32 s82, s82, s83")
    k(f"v_lshrrev_b32 v{VT}, 3, v{LANE}\nv_lshlrev_b32 v{VT}, 13, v{VT}")
    k(f"v_and_b32 v{VT+1}, 7, v{LANE}\nv_lshl_add_u32 v{VT}, v{VT+1}, 4, v{VT}")
    k(f"v_add_u32 v{V_DMA}, s82, v{VT}")
    k(f"v_bfe_u32 v{VT}, v{LANE}, 2, 2\nv_mul_u32_u24 v{VT}, 1056, v{VT}")
    k(f"v_lshrrev_b32 v{VT+1}, 4, v{LANE}\nv_lshl_add_u32 v{VT}, v{VT+1}, 7, v{VT}")
    k(f"v_and_b32 v{VT+1}, 3, v{LANE}\nv_lshl_add_u32 v{V_RD}, v{VT+1}, 3, v{VT}")
    k(f"v_add_u32 v{V_RD}, {L_R2}, v{V_RD}")
    k(f"s_lshl_b32 s82, s{S_RB2}, 3\ns_lshl_b32 s83, s{S_WAVE}, 1\ns_add_u32 s82, s82, s83\ns_mul_i32 s82, s82, {K//32*1024}")
    k(f"v_add_u32 v{V_TOK}, s82, v{L16}\nv_add_u32 v{V_TOK+1}, {K//32*1024}, v{V_TOK}")
    k(f"s_mul_i32 s{S_WB}, s80, 4224\ns_mul_i32 s82, s81, 2112\ns_add_u32 s{S_WB}, s{S_WB}, s82\ns_add_u32 s{S_WB}, s{S_WB}, {L_R2}")
    srd(k, SRD_W, P_WO if which == 2 else P_W2, K * D * 2)
    c.NB, c.TB, c.KS, c.SPK, c.KT, c.NS, c.R = 4, 2, 2, 1, K // 64, NS, R
    c.acc = lambda b, t: vr((b * 2 + t) * 4, 4)
    c.tf = lambda slot, ks, t: 64 + ((slot * 2 + ks) * 2 + t) * 4
    c.rd = lambda sl, b, sub, r: (V_RD, sl * STAGE + sub * 4224 + r * 512 + b * 32)
    c.slot_addr = lambda sl: sl * STAGE
    c.dma = [(V_DMA, 0, 0), (V_DMA, 1056, 2048)]
    c.v_tok = [V_TOK, V_TOK + 1]
    c.w_stride = 64 * 2048
    c.drop = opt.get(f"g{which}_drop", ())
    c.pro_units, c.ramp_rate, c.read_margin = opt.get(f"g{which}_pro", 12), opt.get(f"g{which}_ramp", 6), 4
    std_sched(c)
    return c

S_G80, S_G192 = 6, 7
def setup_gemm4p(k, opt, base):
    c = Sched(); common_gemm(c)
    HS = 8448; STAGE = 2 * HS
    L = 12; KT = 28; MAIN = KT - L
    V_RD, V_DE, V_DK, V_TOK, LANE, L16, VT = base, base + 2, base + 3, base + 4, base + 6, base + 7, base + 8
    c.LANE, c.L16, c.V_DE, c.V_DK, c.V_TOK = LANE, L16, V_DE, V_DK, V_TOK
    lane_id(k, LANE)
    k(f"v_lshlrev_b32 v{L16}, 4, v{LANE}")
    c.KT = KT
    order(c, k, opt, "g4", ["win", [4, 4, 8, 8, 4], 0])
    k(f"s_lshr_b32 s80, s{S_WAVE}, 1\ns_and_b32 s81, s{S_WAVE}, 1")
    k(f"s_mul_i32 s{S_G80}, s80, {80*2048}\ns_mul_i32 s{S_G192}, s80, {192*2048}")
    k("s_lshl_b32 s82, s80, 5\ns_lshl_b32 s83, s81, 1\ns_add_u32 s82, s82, s83")
    k(f"s_and_b32 s{S_TMP}, s{S_NT}, 1\ns_mul_i32 s83, s{S_TMP}, 1792\ns_add_u32 s82, s82, s83\ns_lshl_b32 s82, s82, 11")
    k(f"v_lshrrev_b32 v{VT}, 3, v{LANE}\nv_lshlrev_b32 v{VT}, 13, v{VT}")
    k(f"v_and_b32 v{VT+1}, 7, v{LANE}\nv_lshl_add_u32 v{VT}, v{VT+1}, 4, v{VT}")
    k(f"v_add_u32 v{VT}, s82, v{VT}")
    k(f"s_lshl_b32 s83, s{S_NT}, 7\nv_add_u32 v{V_DK}, s83, v{VT}\nv_xor_b32 v{V_DE}, 128, v{V_DK}")
    k(f"v_bfe_u32 v{VT}, v{LANE}, 2, 2\nv_mul_u32_u24 v{VT}, 1056, v{VT}")
    k(f"v_lshrrev_b32 v{VT+1}, 4, v{LANE}\nv_lshl_add_u32 v{VT}, v{VT+1}, 7, v{VT}")
    k(f"v_and_b32 v{VT+1}, 3, v{LANE}\nv_lshl_add_u32 v{V_RD+1}, v{VT+1}, 3, v{VT}")
    k(f"v_add_u32 v{V_RD}, {L_R2}, v{V_RD+1}")
    k(f"s_lshl_b32 s82, s{S_RB2}, 3\ns_lshl_b32 s83, s{S_WAVE}, 1\ns_add_u32 s82, s82, s83\ns_mul_i32 s82, s82, {112*1024}")
    k(f"s_mul_i32 s83, s{S_TMP}, {56*1024}\ns_add_u32 s82, s82, s83")
    k(f"v_add_u32 v{V_TOK}, s82, v{L16}\nv_add_u32 v{V_TOK+1}, {112*1024}, v{V_TOK}")
    k(f"s_mul_i32 s{S_WB}, s80, 4224\ns_mul_i32 s82, s81, 2112\ns_add_u32 s{S_WB}, s{S_WB}, s82")
    srd(k, SRD_W, P_W2, F * D * 2)
    c.drop = opt.get("g4_drop", ())
    V2E, V2K, V2T = 200, 201, 202
    c.V2 = (V2E, V2K, V2T)
    slot_addr = [L_R2, L_R2 + STAGE, 1024, 1024 + STAGE]
    def rd(sl, half, b, sub, r):
        off = half * HS + sub * 4224 + r * 512 + b * 32
        return (V_RD, (sl % 2) * STAGE + off) if sl < 2 else (V_RD + 1, slot_addr[sl] + off)
    NT_ = 2 * L
    tf = lambda kt, sub, t: 64 + (((kt * 2 + sub) % NT_) * 2 + t) * 4
    acc = lambda b, t: vr((b * 2 + t) * 4, 4)
    c.wf = lambda buf, j: (buf * 8 + j) * 4
    typ = lambda kt: "A" if kt < 16 else ("B1" if kt < 24 else "B2")
    def w_off(sd, kt):
        o = [T(x) for x in c.pos_txt(sd, kt)]
        if typ(kt) == "A": o.append(T(f"s_mul_i32 s{sd}, s{sd}, {112*2048}"))
        elif typ(kt) == "B1": o += [T(f"s_mul_i32 s{sd}, s{sd}, {224*2048}"), T(f"s_add_u32 s{sd}, s{sd}, {(64 - 16*224)*2048}"), T(f"s_add_u32 s{sd}, s{sd}, s{S_G80}")]
        else: o += [T(f"s_mul_i32 s{sd}, s{sd}, {448*2048}"), T(f"s_add_u32 s{sd}, s{sd}, {(96 - 24*448)*2048}"), T(f"s_add_u32 s{sd}, s{sd}, s{S_G192}")]
        return o
    halves = [[("E", kt), ("K", kt)] for kt in range(MAIN)]
    halves += [[("E", MAIN + 2 * j), ("E", MAIN + 2 * j + 1)] for j in range(L // 2)]
    halves += [[("K", MAIN + 2 * j), ("K", MAIN + 2 * j + 1)] for j in range(L // 2)]
    cur = None; flip = 0
    for st, hv in enumerate(halves):
        us = []
        for h, (kind, kt) in enumerate(hv):
            pre = []
            if cur != kt:
                flip ^= 1; cur = kt; pre = w_off(c.s_kw + flip, kt)
            vo = (V2E if kind == 'E' else V2K) if typ(kt) == "B2" else (V_DE if kind == 'E' else V_DK)
            for i, goff in enumerate((0, 2048)):
                us.append((pre if i == 0 else []) + [T(f"s_add_u32 m0, s{S_WB}, {slot_addr[st % 4] + h * HS + i * 1056 - goff}"),
                          VM(f"buffer_load_dwordx4 v{vo}, {sr(SRD_W,4)}, s{c.s_kw + flip} offen" + (f" offset:{goff}" if goff else "") + " lds", ("dma", st))])
        c.stage_units[st] = us; c.stage_slot[st] = st % 4
        for j in range(2):
            frags = []; toks = []
            parts = [(0, j), (1, j)] if st < MAIN else [(j, 0), (j, 1)]
            for h, sub in parts:
                kind, kt = hv[h]
                if (kt, sub) not in toks: toks.append((kt, sub))
                for b in range(4):
                    va, o0 = rd(st % 4, h, b, sub, 0); _, o1 = rd(st % 4, h, b, sub, 1)
                    frags.append((va, o0, o1, [(acc(b + (0 if kind == 'E' else 4), t), tf(kt, sub, t)) for t in range(2)]))
            c.steps.append(dict(frags=frags, stages=[st], toks=toks))
    for kt in range(KT):
        sd = c.s_kt + kt % 2
        for sub in range(2):
            us = []
            for t in range(2):
                g = []
                if sub == 0 and t == 0:
                    g = [T(x) for x in c.pos_txt(sd, kt)]
                    if typ(kt) == "A": g.append(T(f"s_mul_i32 s{sd}, s{sd}, 3584"))
                    elif typ(kt) == "B1": g += [T(f"s_mul_i32 s{sd}, s{sd}, 7168"), T(f"s_add_u32 s{sd}, s{sd}, {2048 - 16*7168}")]
                    else: g += [T(f"s_mul_i32 s{sd}, s{sd}, 14336"), T(f"s_add_u32 s{sd}, s{sd}, {3072 - 24*14336}")]
                key = ("tok", (kt, sub))
                if typ(kt) == "B2":
                    if sub == 1 and t == 0: g.append(T(f"s_add_u32 s{sd}, s{sd}, 7168"))
                    g.append(VM(f"buffer_load_dwordx2 {ar(tf(kt, sub, t),2)}, v{V2T+t}, {sr(SRD_T,4)}, s{sd} offen sc1", key))
                    g.append(VM(f"buffer_load_dwordx2 {ar(tf(kt, sub, t)+2,2)}, v{V2T+t}, {sr(SRD_T,4)}, s{sd} offen offset:3584 sc1", key))
                else:
                    g.append(VM(f"buffer_load_dwordx4 {ar(tf(kt, sub, t),4)}, v{V_TOK+t}, {sr(SRD_T,4)}, s{sd} offen offset:{sub*(1024 if typ(kt) == 'A' else 3584)} sc1", key))
                us.append(g)
            c.tok_units[(kt, sub)] = us; c.tok_slot[(kt, sub)] = (kt * 2 + sub) % NT_
    c.pro_units, c.ramp_rate, c.read_margin, c.lookahead = opt.get("g4_pro", 12), opt.get("g4_ramp", 6), 4, opt.get("g4_la", 7)
    c.MAIN, c.L = MAIN, L
    return c

def phase_gemm4p(k, c, opt):
    LANE, L16 = c.LANE, c.L16
    VT = 72
    srd(k, SRD_T, P_WS, S * F * 2, WS_HH)
    srd(k, SRD_A, P_OUT, S * D * 2)
    srd(k, SRD_B, P_WS, 8 << 20, WS_P4)
    V_G, V_GA, V_XA, V_X, IMP, VF = 96, 76, 77, 80, 128, 78
    for j in range(16): k(f"v_accvgpr_read_b32 v{V_X+j}, a{A_X1+j}")
    k(f"v_and_b32 v{VT}, 15, v{LANE}\nv_lshlrev_b32 v{VT}, {FS}, v{VT}")
    k(f"s_lshl_b32 s84, s{S_RB2}, 1\ns_lshr_b32 s85, s{S_WAVE}, 1\ns_add_u32 s84, s84, s85\ns_lshl_b32 s84, s84, {FS+5}\ns_add_u32 s84, s84, {F_HH}")
    k(f"s_and_b32 s85, s{S_NT}, 1\ns_lshl_b32 s85, s85, {FS+4}\ns_add_u32 s84, s84, s85")
    k(f"v_mov_b32 v252, v{VT}")
    c.tile_of = lambda key: key[0]
    k(f"s_add_u32 s85, s84, {F_HB - F_HH}")
    staged_wait(k, c, opt.get("g4_T", 6), 252, 84, 253, one_prod)
    add_gate(k, c, 16, f"buffer_load_dword v253, v252, {sr(SRD_F,4)}, s85 offen sc1", 253)
    k.stamp("hh ready")
    p = Txt()
    p(f"v_lshrrev_b32 v{VT}, 4, v{LANE}\nv_lshlrev_b32 v{V_GA}, 4, v{VT}\nv_add_u32 v{V_GA}, {L_MV}, v{V_GA}")
    p(f"v_and_b32 v{VT+1}, 15, v{LANE}\nv_lshlrev_b32 v{VT+1}, 11, v{VT+1}")
    p(f"v_and_b32 v{VT+2}, 1, v{VT}\nv_lshl_add_u32 v{VT+1}, v{VT+2}, 5, v{VT+1}")
    p(f"v_lshrrev_b32 v{VT+2}, 1, v{VT}\nv_lshl_add_u32 v{V_XA}, v{VT+2}, 4, v{VT+1}")
    p(f"s_lshl_b32 s86, s{S_RB2}, 3\ns_lshl_b32 s87, s{S_WAVE}, 1\ns_add_u32 s86, s86, s87\ns_lshl_b32 s86, s86, 15\ns_lshl_b32 s87, s{S_NT}, 7\ns_add_u32 s86, s86, s87\ns_add_u32 s87, s86, 32768")
    p(f"s_lshl_b32 s88, s{S_RB2}, 4\ns_add_u32 s88, s88, s{S_NT}\ns_lshl_b32 s88, s88, 2\ns_add_u32 s88, s88, s{S_WAVE}")
    p("s_xor_b32 s89, s88, 4")
    p(f"s_lshl_b32 s90, s88, 13\ns_add_u32 s91, s90, 4096\ns_lshl_b32 s92, s89, 13\ns_add_u32 s93, s92, 4096")
    p(f"s_lshl_b32 s88, s88, {FS}\ns_add_u32 s88, s88, {F_P4}\ns_lshl_b32 s89, s89, {FS}\ns_add_u32 s89, s89, {F_P4}")
    V2E, V2K, V2T = c.V2
    p(f"v_lshrrev_b32 v{VT}, 5, v{LANE}\nv_mul_u32_u24 v{VT}, {96*2048}, v{VT}\nv_add_u32 v{V2E}, v{c.V_DE}, v{VT}\nv_add_u32 v{V2K}, v{c.V_DK}, v{VT}")
    p(f"v_lshrrev_b32 v{VT}, 1, v{L16}\nv_sub_u32 v{V2T}, v{c.V_TOK}, v{VT}\nv_sub_u32 v{V2T+1}, v{c.V_TOK+1}, v{VT}")
    p(f"v_mov_b32 v{VT}, 1\nv_mov_b32 v{VT+1}, 0")
    c.pre_loop_txt = p.L
    N = len(c.steps); p2 = N - c.L
    c.late[p2 + 1] = [VM(f"buffer_store_dwordx4 {vr(4*j,4)}, v{L16}, {sr(SRD_B,4)}, s{90 + j//4} offen offset:{(j%4)*1024} sc1", ("exp", 0)) for j in range(8)]
    c.late[p2 + opt.get("g4_fs", 6)] = ["s_waitcnt vmcnt(0)", f"buffer_store_dword v{VT}, v{VT+1}, {sr(SRD_F,4)}, s88 offen sc1"]
    c.late[N - 3] = [VM(f"buffer_load_dword v{VF}, v{VT+1}, {sr(SRD_F,4)}, s89 offen sc1", ("pf", 0))]
    c.last_reads = [f"ds_read_b128 {vr(V_G+4*b,4)}, v{V_GA} offset:{768+b*64}" for b in range(4)]
    m = Txt(); m.label = k.label
    okl = k.label("pok")
    m(f"v_cmp_eq_u32 vcc, 0, v{VF}\ns_cmp_eq_u64 vcc, 0\ns_cbranch_scc1 {okl}")
    spin(m, [f"buffer_load_dword v{VF}, v{VT+1}, {sr(SRD_F,4)}, s89 offen sc1"], [VF], 0)
    m(f"{okl}:")
    c.late[N - 1] = [WVM([("pf", 0)]), T("\n".join(m.L))] + [f"buffer_load_dwordx4 {vr(IMP+4*j,4)}, v{L16}, {sr(SRD_B,4)}, s{92 + j//4} offen offset:{(j%4)*1024} sc1" for j in range(8)]
    c.run(k)
    k.stamp("g4 loop done")
    A = lambda b, t: 32 + (b * 2 + t) * 4
    XT = 112
    XF = 160
    for j in range(16): k(f"v_lshlrev_b32 v{XF+2*j}, 16, v{V_X+j}\nv_and_b32 v{XF+2*j+1}, 0xffff0000, v{V_X+j}")
    k("s_waitcnt vmcnt(0) lgkmcnt(0)")
    for t in range(2):
        for b in range(4):
            for h in range(2): k(f"v_pk_add_f32 {vr(A(b,t)+2*h,2)}, {vr(A(b,t)+2*h,2)}, {vr(IMP+(b*2+t)*4+2*h,2)}")
            for h in range(2): k(f"v_pk_fma_f32 {vr(A(b,t)+2*h,2)}, {vr(A(b,t)+2*h,2)}, {vr(V_G+4*b+2*h,2)}, {vr(XF+(t*4+b)*4+2*h,2)}")
        PK = XT + t * 8
        for b in range(4): k(f"v_cvt_pk_bf16_f32 v{PK+2*b}, v{A(b,t)}, v{A(b,t)+1}\nv_cvt_pk_bf16_f32 v{PK+2*b+1}, v{A(b,t)+2}, v{A(b,t)+3}")
        k("s_nop 1")
        for s_ in range(2): k(f"v_permlane16_swap_b32 v{PK+4*s_}, v{PK+4*s_+2}\nv_permlane16_swap_b32 v{PK+4*s_+1}, v{PK+4*s_+3}")
        for s_ in range(2): k(f"buffer_store_dwordx4 {vr(PK+4*s_,4)}, v{V_XA}, {sr(SRD_A,4)}, s{86+t} offen offset:{s_*64}")

def phase_gemm1(k, c, opt):
    LANE, L16, VT = c.LANE, c.L16, c.VT
    PHK, VV, SH, UTX = 0, 34816, 114688, 126976
    A_PH = 160
    p = Txt()
    srd(p, SRD_A, P_WPHI, H * 2048)
    srd(p, SRD_B, P_WS, 2 << 20, WS_KVP)
    srd(p, SRD_C, P_WS, 128 << 10, WS_ZP)
    A_PW, A_VW, A_PR, A_VR, A_WR = 110, 111, 112, 113, 114
    p(f"s_lshr_b32 s80, s{S_WAVE}, 1\ns_and_b32 s81, s{S_WAVE}, 1")
    p(f"v_and_b32 v{VT}, 15, v{LANE}\ns_lshl_b32 s82, s{S_WAVE}, 5\nv_add_u32 v{VT}, s82, v{VT}")
    p(f"v_lshrrev_b32 v{VT+1}, 4, v{LANE}\nv_lshlrev_b32 v{VT+1}, 3, v{VT+1}")
    p(f"v_mul_u32_u24 v{A_PW}, 136, v{VT}\nv_add_u32 v{A_PW}, v{A_PW}, v{VT+1}")
    p(f"v_mul_u32_u24 v{A_VW}, 72, v{VT}\nv_add_u32 v{A_VW}, v{A_VW}, v{VT+1}")
    p(f"v_lshrrev_b32 v{VT}, 2, v{LANE}\nv_and_b32 v{VT+1}, 3, v{LANE}\nv_lshlrev_b32 v{VT+1}, 3, v{VT+1}")
    p(f"s_mul_i32 s82, s80, 17408\ns_lshl_b32 s83, s81, 6\ns_add_u32 s82, s82, s83")
    p(f"v_mul_u32_u24 v{A_PR}, 136, v{VT}\nv_add_u32 v{A_PR}, v{A_PR}, v{VT+1}\nv_add_u32 v{A_PR}, s82, v{A_PR}")
    p(f"s_mul_i32 s82, s80, 9216")
    p(f"v_mul_u32_u24 v{A_VR}, 72, v{VT}\nv_add_u32 v{A_VR}, v{A_VR}, v{VT+1}\nv_add_u32 v{A_VR}, s82, v{A_VR}")
    p(f"v_lshl_add_u32 v{A_WR}, v{VT}, 6, v{VT+1}\nv_add_u32 v{A_WR}, {L_WPH}, v{A_WR}")
    ONES, SEL = 116, 120
    for j in range(4): p(f"v_mov_b32 v{ONES+j}, 0x3f803f80")
    p(f"v_bfe_u32 v{VT}, v{LANE}, 2, 2\nv_lshrrev_b32 v{VT+1}, 4, v{LANE}")
    p(f"v_cmp_eq_u32 vcc, v{VT}, v{VT+1}")
    p(f"v_and_b32 v{VT}, 1, v{LANE}\nv_lshlrev_b32 v{VT}, 4, v{VT}\nv_mov_b32 v{VT+1}, 0x3f80\nv_lshlrev_b32 v{VT+1}, v{VT}, v{VT+1}")
    p(f"v_cndmask_b32 v{VT+1}, 0, v{VT+1}, vcc")
    p(f"v_and_b32 v{VT}, 2, v{LANE}\nv_cmp_eq_u32 vcc, 0, v{VT}")
    for j in (0, 1, 4, 5): p(f"v_mov_b32 v{SEL+j}, 0")
    p(f"v_cndmask_b32 v{SEL+2}, 0, v{VT+1}, vcc\nv_cndmask_b32 v{SEL+3}, v{VT+1}, 0, vcc")
    p(f"s_mov_b32 s94, {LOG2E!r}\ns_mov_b32 s95, {LOG2E!r}")
    p(f"s_lshl_b32 s84, s{S_HP}, 12\ns_lshl_b32 s85, s{S_WAVE}, 10\ns_add_u32 s84, s84, s85\ns_add_u32 s85, s85, {L_WPH}")
    c.pre_loop_txt = p.L
    c.late = {4: ["s_mov_b32 m0, s85", f"buffer_load_dwordx4 v{L16}, {sr(SRD_A,4)}, s84 offen lds"]}
    if opt.get("cpf", 1): c.late[22] = code_prefetch_txt(k.name, L16, 254, 80)
    ml = modb_loads(S_MB, 115, 109)
    ms = opt.get("modb_steps", [16] * 8)
    for st_, g in zip(ms, ml): c.late.setdefault(st_, []).extend(g)
    ml = ml[len(ms):]
    c.last_reads = [f"ds_read_b64_tr_b16 {ar(A_PH+(hh*2+fb)*4+2*r,2)}, v{A_WR} offset:{hh*2048+r*1024+fb*32}" for hh in range(2) for fb in range(2) for r in range(2)]
    c.run(k)
    k.stamp("g1 loop done")
    A = lambda b, t: (b * 2 + t) * 4
    BF, P1, P2, MX, MN, EK = 126, 142, 174, 206, 214, 222
    groups = [(hh, t) for hh in range(2) for t in range(2)]
    def fm_part1(seg):
        for g, (hh, t) in enumerate(groups):
            for db in range(2):
                a = A(seg * 4 + hh * 2 + db, t)
                k(f"v_cvt_pk_bf16_f32 v{BF+g*4+db*2}, v{a}, v{a+1}\nv_cvt_pk_bf16_f32 v{BF+g*4+db*2+1}, v{a+2}, v{a+3}")
        k("s_nop 1")
        for g, (hh, t) in enumerate(groups):
            for fb in range(2):
                k(f"{MF} {vr(P1+g*8+fb*4,4)}, {ar(A_PH+(hh*2+fb)*4,4)}, {vr(BF+g*4,4)}, 0")
    def fm_part2():
        for op3, op2, M in (("v_max3_f32", "v_max_f32", MX), ("v_min3_f32", "v_min_f32", MN)):
            for g in range(4):
                b = P1 + g * 8
                k(f"{op3} v{M+2*g}, v{b}, v{b+1}, v{b+2}\n{op3} v{M+2*g}, v{M+2*g}, v{b+3}, v{b+4}\n{op3} v{M+2*g}, v{M+2*g}, v{b+5}, v{b+6}\n{op2} v{M+2*g}, v{M+2*g}, v{b+7}")
            treduce4(k, op2, [M + 2 * g for g in range(4)])
        for g in range(4):
            k(f"v_mul_f32 v{MX+2*g}, {-LOG2E!r}, v{MX+2*g}\nv_mul_f32 v{MN+2*g}, {LOG2E!r}, v{MN+2*g}")
    def fm_part3(E):
        for g in range(4):
            for j in range(4):
                b = g * 8 + 2 * j
                k(f"v_pk_fma_f32 {vr(P2+b,2)}, {vr(P1+b,2)}, s[94:95], {vr(MN+2*g,2)} op_sel_hi:[1,1,0] neg_lo:[1,0,0] neg_hi:[1,0,0]")
                k(f"v_pk_fma_f32 {vr(P1+b,2)}, {vr(P1+b,2)}, s[94:95], {vr(MX+2*g,2)} op_sel_hi:[1,1,0]")
            for j in range(8): k(f"v_exp_f32 v{P1+g*8+j}, v{P1+g*8+j}")
            for j in range(8): k(f"v_exp_f32 v{P2+g*8+j}, v{P2+g*8+j}")
            k("s_nop 0")
            for sg, PP in enumerate((P1, P2)):
                for j in range(4): k(f"v_cvt_pk_bf16_f32 v{E+(g*2+sg)*4+j}, v{PP+g*8+2*j}, v{PP+g*8+2*j+1}")
    for g in ml:
        for x in g: k(x)
    k("s_waitcnt lgkmcnt(0)\ns_nop 7")
    fm_part1(1)
    k("s_barrier")
    mark0 = len(k.L)
    for g, (hh, t) in enumerate(groups):
        for db in range(2):
            a = A(8 + hh * 2 + db, t)
            k(f"v_cvt_pk_bf16_f32 v{a}, v{a}, v{a+1}\nv_cvt_pk_bf16_f32 v{a+1}, v{a+2}, v{a+3}")
            k(f"ds_write_b64 v{A_VW}, {vr(a,2)} offset:{VV + hh*9216 + t*16*72 + db*32}")
    fm_part2()
    fm_part3(EK)
    SM = 32
    k("s_nop 1")
    for i in range(8): k(f"{MF} {vr(SM+4*i,4)}, {vr(ONES,4)}, {vr(EK+4*i,4)}, 0")
    k("s_nop 7")
    for i in range(8): k(f"v_rcp_f32 v{SM+4*i}, v{SM+4*i}")
    for g, (hh, t) in enumerate(groups):
        for sg, PP in enumerate((P1, P2)):
            for j in range(4):
                k(f"v_pk_mul_f32 {vr(PP+g*8+2*j,2)}, {vr(PP+g*8+2*j,2)}, {vr(SM+(g*2+sg)*4,2)} op_sel_hi:[1,0]")
            for fb in range(2):
                b = PP + g * 8 + fb * 4
                k(f"v_cvt_pk_bf16_f32 v{b}, v{b}, v{b+1}\nv_cvt_pk_bf16_f32 v{b+1}, v{b+2}, v{b+3}")
                k(f"ds_write_b64 v{A_PW}, {vr(b,2)} offset:{PHK + hh*17408 + t*16*136 + sg*64 + fb*32}")
    sprinkle(k, mark0, g3_early_units(k.g3, opt.get("g3_e1", 14), 254))
    k("s_waitcnt lgkmcnt(0)\ns_barrier")
    for s_ in range(4):
        for r in range(2):
            for fb in range(2): k(f"ds_read_b64_tr_b16 {ar(s_*16+fb*4+2*r,2)}, v{A_PR} offset:{PHK + (32*s_+16*r)*136 + fb*32}")
            for db in range(2): k(f"ds_read_b64_tr_b16 {ar(s_*16+8+db*4+2*r,2)}, v{A_VR} offset:{VV + (32*s_+16*r)*72 + db*32}")
    fm_part1(0)
    KV, ZZ = 64, 80
    for s_ in range(4):
        k(f"s_waitcnt lgkmcnt({min(15, 24 - 8*s_)})")
        for fb in range(2):
            for db in range(2):
                d = vr(KV + (db * 2 + fb) * 4, 4)
                k(f"{MF} {d}, {ar(s_*16+fb*4,4)}, {ar(s_*16+8+db*4,4)}, {'0' if s_ == 0 else d}")
            d = vr(ZZ + fb * 4, 4)
            k(f"{MF} {d}, {ar(s_*16+fb*4,4)}, {vr(ONES,4)}, {'0' if s_ == 0 else d}")
    k(f"s_lshl_b32 s82, s{S_HP}, 2\ns_add_u32 s82, s82, s{S_WAVE}")
    k("s_lshl_b32 s83, s82, 15")
    k(f"s_lshl_b32 s84, s{S_RB1}, 10\ns_add_u32 s84, s84, s83\ns_add_u32 s85, s84, 16384")
    k("s_lshl_b32 s90, s82, 11")
    k(f"s_lshl_b32 s91, s82, {FS+4}\ns_add_u32 s91, s91, {F_KV}\ns_lshl_b32 s92, s{S_RB1}, {FS}\ns_add_u32 s92, s92, s91")
    k(f"v_and_b32 v{VT}, 15, v{LANE}\nv_cmp_eq_u32 vcc, s{S_RB1}, v{VT}")
    k("s_nop 2")
    for db in range(2):
        for j in range(4): k(f"v_cvt_pk_bf16_f32 v{88+db*4+j}, v{KV+db*8+2*j}, v{KV+db*8+2*j+1}")
    k(f"buffer_store_dwordx4 {vr(88,4)}, v{L16}, {sr(SRD_B,4)}, s84 offen sc1")
    k(f"buffer_store_dwordx4 {vr(92,4)}, v{L16}, {sr(SRD_B,4)}, s85 offen sc1")
    k("s_and_saveexec_b64 s[96:97], vcc")
    k(f"buffer_store_dwordx4 {vr(ZZ,4)}, v{L16}, {sr(SRD_C,4)}, s90 offen sc1")
    k(f"buffer_store_dwordx4 {vr(ZZ+4,4)}, v{L16}, {sr(SRD_C,4)}, s90 offen offset:1024 sc1")
    k("s_mov_b64 exec, s[96:97]")
    k.stamp("kv stored")
    fm_part2()
    publish(k, 92, VT + 1)
    k.stamp("kv published")
    k("s_mov_b32 s93, s83")
    g2 = setup_gemm24(k, 2, opt, 96)
    k("s_mov_b32 s83, s93")
    g2.prefetch(k, 8)
    fm_part3(EK)
    k.stamp("q done")
    k(f"v_lshlrev_b32 v{VT}, {FS}, v{VT}")
    wait_flags(k, [(VT, 91, 1)], VT + 1)
    k.stamp("kv ready")
    k(f"buffer_load_dwordx4 {vr(ZZ,4)}, v{L16}, {sr(SRD_C,4)}, s90 offen sc1")
    k(f"buffer_load_dwordx4 {vr(ZZ+4,4)}, v{L16}, {sr(SRD_C,4)}, s90 offen offset:1024 sc1")
    for i in range(32):
        if i % 4 == 0 and i: k("s_add_u32 s83, s83, 4096")
        k(f"buffer_load_dwordx4 {ar(4*i,4)}, v{L16}, {sr(SRD_B,4)}, s83 offen offset:{(i%4)*1024} sc1")
    srd(k, SRD_T, P_WS, S * D * 2, WS_O)
    k("s_waitcnt vmcnt(32)")
    for sh in (8, 4, 2, 1):
        for j in range(8): k(f"v_add_f32_dpp v{ZZ+j}, v{ZZ+j}, v{ZZ+j} row_ror:{sh} row_mask:0xf bank_mask:0xf")
    k(f"v_and_b32 v{VT+1}, 1, v{LANE}\nv_cmp_eq_u32 vcc, 0, v{VT+1}")
    for j in range(4): k(f"v_cvt_pk_bf16_f32 v{BF+8+j}, v{ZZ+2*j}, v{ZZ+2*j+1}")
    for j in range(4): k(f"v_cndmask_b32 v{BF+8+j}, v{ONES}, v{BF+8+j}, vcc")
    for i in range(32):
        db, pp = divmod(i, 16)
        if i % 2 == 0: k(f"s_waitcnt vmcnt({30 - i})")
        for fb in range(2):
            d = vr(KV + (db * 2 + fb) * 4, 4)
            k(f"{MF} {d}, {vr(SEL + (2 if fb == 0 else 0), 4)}, {ar(4*i,4)}, {'0' if pp == 0 else d}")
    k(f"s_mul_i32 s82, s{S_WAVE}, 3072\ns_add_u32 s82, s82, {SH}")
    k(f"v_add_u32 v{VT+1}, s82, v{L16}\nv_add_u32 v{VT+2}, {SH}, v{L16}")
    k("s_nop 6")
    for db in range(2):
        for j in range(4): k(f"v_cvt_pk_bf16_f32 v{BF+db*4+j}, v{KV+db*8+2*j}, v{KV+db*8+2*j+1}")
    for j in range(3): k(f"ds_write_b128 v{VT+1}, {vr(BF+4*j,4)} offset:{j*1024}")
    k("s_waitcnt lgkmcnt(0)\ns_barrier")
    for i in range(12): k(f"ds_read_b128 {ar(4*i,4)}, v{VT+2} offset:{i*1024}")
    k(f"s_lshl_b32 s82, s{S_RB1}, 3\ns_lshl_b32 s83, s{S_WAVE}, 1\ns_add_u32 s82, s82, s83\ns_lshl_b32 s82, s82, 15")
    k(f"s_lshl_b32 s83, s{S_HP}, 11\ns_add_u32 s82, s82, s83\ns_add_u32 s83, s82, 0x8000")
    k(f"s_lshl_b32 s84, s{S_RB1}, 2\ns_add_u32 s84, s84, s{S_WAVE}\ns_lshl_b32 s84, s84, {FS+4}\ns_lshl_b32 s85, s{S_HP}, {FS}\ns_add_u32 s84, s84, s85\ns_add_u32 s84, s84, {F_O}")
    k("s_waitcnt lgkmcnt(0)")
    for g, (hh, t) in enumerate(groups):
        for sg in range(2):
            for j in range(3):
                k(f"{MF} {vr((g*2+sg)*12+4*j,4)}, {ar(((hh*2+sg)*3+j)*4,4)}, {vr(EK+(g*2+sg)*4,4)}, 0")
    k("s_nop 7")
    for g, (hh, t) in enumerate(groups):
        n1, n2 = g * 24, g * 24 + 12
        D1, S1, D2, S2 = n1 + 8, n1 + 9, n2 + 8, n2 + 9
        k(f"v_mul_f32 v{n1+10}, v{S1}, v{S2}")
        k(f"v_mul_f32 v{n1+10}, 0x358637bd, v{n1+10}")
        k(f"v_fmac_f32 v{n1+10}, v{D1}, v{S2}\nv_fmac_f32 v{n1+10}, v{D2}, v{S1}")
        k(f"v_rcp_f32 v{n1+10}, v{n1+10}")
        k("s_nop 0")
        k(f"v_mul_f32 v{D1}, v{S2}, v{n1+10}\nv_mul_f32 v{D2}, v{S1}, v{n1+10}")
        for j in range(4): k(f"v_pk_mul_f32 {vr(n1+2*j,2)}, {vr(n1+2*j,2)}, {vr(D1,2)} op_sel_hi:[1,0]")
        for j in range(4): k(f"v_pk_fma_f32 {vr(n1+2*j,2)}, {vr(n2+2*j,2)}, {vr(D2,2)}, {vr(n1+2*j,2)} op_sel_hi:[1,0,1]")
        for j in range(4): k(f"v_cvt_pk_bf16_f32 v{n2+j}, v{n1+2*j}, v{n1+2*j+1}")
        k(f"buffer_store_dwordx4 {vr(n2,4)}, v{L16}, {sr(SRD_T,4)}, s{82+t} offen offset:{hh*1024} sc1")
    k.stamp("o stored")
    CU, AU, WW, TT = 128, 144, 152, 156
    for i in range(8): k(f"v_accvgpr_read_b32 v{CU+2*i}, a{A_UT+32+i}")
    silu_block(k, [CU + 2 * i for i in range(8)])
    publish(k, 84, VT + 2)
    k.stamp("o published")
    g2.V_X = 48
    srd(k, SRD_A, P_X, S * D * 2)
    V_XA = 47
    k(f"v_lshrrev_b32 v{VT+1}, 4, v{LANE}")
    k(f"v_and_b32 v{VT+2}, 15, v{LANE}\nv_lshlrev_b32 v{VT+2}, 11, v{VT+2}\nv_lshl_add_u32 v{V_XA}, v{VT+1}, 3, v{VT+2}")
    k(f"s_lshl_b32 s82, s{S_RB2}, 3\ns_lshl_b32 s83, s{S_WAVE}, 1\ns_add_u32 s82, s82, s83\ns_lshl_b32 s82, s82, 15\ns_lshl_b32 s83, s{S_NT}, 7\ns_add_u32 s82, s82, s83\ns_add_u32 s83, s82, 32768")
    for t in range(2):
        for b in range(4):
            k(f"buffer_load_dwordx2 {vr(g2.V_X+(t*4+b)*2,2)}, v{V_XA}, {sr(SRD_A,4)}, s{82+t} offen offset:{b*32}")
    mark1 = len(k.L)
    for j in range(8): k(f"v_mov_b32 v{AU+j}, 0")
    for i in range(8):
        for d in range(4): k(f"v_accvgpr_read_b32 v{WW+d}, a{A_UT+4*i+d}")
        for d in range(4):
            k(f"v_lshlrev_b32 v{TT}, 16, v{WW+d}\nv_and_b32 v{TT+1}, 0xffff0000, v{WW+d}")
            k(f"v_pk_fma_f32 {vr(AU+2*d,2)}, {vr(TT,2)}, {vr(CU+2*i,2)}, {vr(AU+2*d,2)} op_sel_hi:[1,0,1]")
    k("s_nop 1")
    for j in range(4): k(f"v_permlane32_swap_b32 v{AU+j}, v{AU+j+4}")
    k("s_nop 1")
    for j in range(4): k(f"v_add_f32 v{AU+j}, v{AU+j}, v{AU+j+4}")
    k("s_nop 1")
    for j in range(2): k(f"v_permlane16_swap_b32 v{AU+j}, v{AU+j+2}")
    k("s_nop 1")
    for j in range(2): k(f"v_add_f32 v{AU+j}, v{AU+j}, v{AU+j+2}")
    k("s_nop 1")
    for j in range(2): k(f"v_add_f32_dpp v{AU+j}, v{AU+j}, v{AU+j} row_ror:8 row_mask:0xf bank_mask:0xf")
    sprinkle(k, mark1, g3_early_units(k.g3, opt.get("g3_e2", 7), 254), skip=0)
    k(f"v_and_b32 v{TT}, 7, v{LANE}\nv_lshlrev_b32 v{TT}, 5, v{TT}\nv_lshrrev_b32 v{TT+1}, 5, v{LANE}\nv_lshl_add_u32 v{TT}, v{TT+1}, 4, v{TT}")
    k(f"v_bfe_u32 v{TT+1}, v{LANE}, 4, 1\nv_lshl_add_u32 v{TT}, v{TT+1}, 3, v{TT}")
    srd(k, SRD_D, P_WS, MP_BYTES, WS_MODP)
    k(f"v_or_b32 v{AU}, 1, v{AU}\nv_or_b32 v{AU+1}, 1, v{AU+1}")
    k(f"buffer_store_dwordx2 {vr(AU,2)}, v{TT}, {sr(SRD_D,4)}, s{S_MO} offen sc1")
    k.stamp("modb done")
    return g2

A_PARK = 224
S3_SRD, S3_WB, S3_KW = 64, 68, 69
def setup_gemm3_early(k, opt, LANE, VT):
    c = Sched(); common_gemm(c)
    NS, R = 4, 8
    STAGE = 28672
    V_RD, V_DMA, V_TOK = 224, 226, 233
    c.V_RD, c.V_DMA, c.V_TOK, c.LANE, c.L16, c.VT = V_RD, V_DMA, V_TOK, 237, 238, 248
    c.srd_w, c.s_wbase, c.s_kw = S3_SRD, S3_WB, S3_KW
    order(c, k, opt, 'g3', ['win', [4, 4, 8], 0])
    k(f"s_lshr_b32 s80, s{S_WAVE}, 1\ns_and_b32 s81, s{S_WAVE}, 1")
    k(f"s_mul_i32 s83, s80, {32*7168}\ns_mul_i32 s{S_TMP}, s{S_FT}, 224\ns_add_u32 s83, s83, s{S_TMP}")
    for i in range(7):
        k(f"v_add_u32 v{VT+2}, {i*64}, v{LANE}")
        k(f"v_mul_u32_u24 v{VT+3}, 4682, v{VT+2}")
        k(f"v_lshrrev_b32 v{VT+3}, 16, v{VT+3}")
        k(f"v_mul_u32_u24 v{VT+4}, 14, v{VT+3}")
        k(f"v_sub_u32 v{VT+4}, v{VT+2}, v{VT+4}")
        k(f"v_mul_u32_u24 v{VT+3}, 7168, v{VT+3}")
        k(f"v_lshl_add_u32 v{VT+3}, v{VT+4}, 4, v{VT+3}")
        k(f"v_add_u32 v{VT+3}, s83, v{VT+3}")
        k(f"v_accvgpr_write_b32 a{A_PARK+i}, v{VT+3}")
    k(f"s_mul_i32 s{S3_WB}, s81, 14336\ns_mul_i32 s82, s80, 7168\ns_add_u32 s{S3_WB}, s{S3_WB}, s82")
    k(f"s_cmp_eq_u32 s81, 0\ns_cselect_b32 s{S3_SRD}, s{P_W1}, s{P_W3}\ns_cselect_b32 s{S3_SRD+1}, s{P_W1+1}, s{P_W3+1}")
    k(f"s_mov_b32 s{S3_SRD+2}, {D*F*2}\ns_mov_b32 s{S3_SRD+3}, 0x20000")
    c.NB, c.TB, c.KS, c.SPK, c.KT, c.NS, c.R = 14, 4, 1, 2, 16, NS, R
    c.acc = lambda b, t: vr((b * 4 + t) * 4, 4)
    c.tf = lambda slot, ks, t: 112 + (slot * 4 + t) * 4
    ph = lambda sl: 3 - sl
    c.rd = lambda sl, b, sub, r: (V_RD + ph(sl) // 2, (ph(sl) % 2) * STAGE + (b % 2) * 14336 + (32 * sub + 16 * r) * 224 + 32 * (b // 2))
    c.slot_addr = lambda sl: ph(sl) * STAGE
    c.dma = [(V_DMA + i, i * 1024, 0) for i in range(7)]
    c.v_tok = [V_TOK + t for t in range(4)]
    c.w_stride = 64 * 7168
    c.drop = opt.get("g3_drop", ())
    c.pro_units, c.ramp_rate, c.read_margin = opt.get("g3_pro", 12), (lambda st: opt.get("g3_ramp", 12) if st < 6 else 8), 8
    c.lookahead = opt.get("g3_la", 4)
    std_sched(c)
    TL = c.TL = opt.get("g3_tail", 0)
    if TL:
        tail = c.steps[32 - TL:]
        c.steps = c.steps[:32 - TL] + [dict(st, frags=st["frags"][:8]) for st in tail] + [dict(st, frags=st["frags"][8:]) for st in tail]
    return c
def g3_early_units(c, n, vtmp):
    out = []
    for j in range(n):
        t = c.prefetch_txt(1)
        i = (c.pre_dma - 1) % 7
        ld = t[-1].replace(f"v{c.V_DMA+i},", f"v{vtmp},")
        out.append(t[:-1] + [f"v_accvgpr_read_b32 v{vtmp}, a{A_PARK+i}", ld])
    return out
def setup_gemm3_late(k, c):
    V_RD, V_DMA, V_TOK, LANE, L16, VT = c.V_RD, c.V_DMA, c.V_TOK, c.LANE, c.L16, c.VT
    lane_id(k, LANE)
    k(f"v_lshlrev_b32 v{L16}, 4, v{LANE}")
    for i in range(7): k(f"v_accvgpr_read_b32 v{V_DMA+i}, a{A_PARK+i}")
    k(f"v_lshrrev_b32 v{VT+3}, 2, v{LANE}\nv_mul_u32_u24 v{VT+3}, 224, v{VT+3}")
    k(f"v_and_b32 v{VT+4}, 3, v{LANE}\nv_lshl_add_u32 v{V_RD}, v{VT+4}, 3, v{VT+3}")
    k(f"v_add_u32 v{V_RD+1}, {2*28672}, v{V_RD}")
    k(f"s_lshl_b32 s82, s{S_RB3}, 4\ns_lshl_b32 s83, s{S_WAVE}, 2\ns_add_u32 s82, s82, s83\ns_lshl_b32 s82, s82, 15")
    k(f"v_add_u32 v{V_TOK}, s82, v{L16}")
    for t in range(1, 4): k(f"v_add_u32 v{V_TOK+t}, {t*0x8000}, v{V_TOK}")

def sprinkle(k, mark, groups, skip=4):
    if not groups: return
    seg = k.L[mark:]
    stepn = max(1, (len(seg) - skip) // len(groups))
    out, q = [], list(groups)
    for i, x in enumerate(seg):
        out.append(x)
        if q and i >= skip and (i - skip) % stepn == 0:
            assert not x.startswith("s_cmp") and not x.startswith("s_and_saveexec")
            out += q.pop(0)
    for g in q: out += g
    k.L[mark:] = out

A_X1 = 240
def phase_gemm2(k, c, opt):
    LANE, L16 = c.LANE, c.L16
    VT = 40
    k(f"v_and_b32 v252, 15, v{LANE}\nv_lshlrev_b32 v252, {FS}, v252")
    k(f"s_lshl_b32 s84, s{S_RB2}, 2\ns_add_u32 s84, s84, s{S_WAVE}\ns_lshl_b32 s84, s84, {FS+4}\ns_add_u32 s85, s84, {F_O}")
    staged_wait(k, c, opt.get("g2_T", 6), 252, 85, 253, one_prod)
    k.stamp("o ready")
    V_G, V_C, V_S, V_GA = 64, 80, 136, 44
    p = Txt()
    srd(p, SRD_A, P_WS, S * D * 2, WS_Y)
    srd(p, SRD_B, P_WS, S * 128, WS_STAT)
    srd(p, SRD_D, P_WS, MP_BYTES, WS_MODP)
    p(f"v_lshrrev_b32 v{V_GA}, 4, v{LANE}\nv_lshlrev_b32 v{V_GA}, 4, v{V_GA}\nv_add_u32 v{V_GA}, {L_MV}, v{V_GA}")
    p(f"s_lshl_b32 s86, s{S_RB2}, 3\ns_lshl_b32 s87, s{S_WAVE}, 1\ns_add_u32 s86, s86, s87")
    p(f"s_lshl_b32 s88, s86, 15\ns_lshl_b32 s87, s{S_NT}, 11\ns_add_u32 s88, s88, s87\ns_add_u32 s89, s88, 32768")
    p(f"s_lshl_b32 s87, s{S_NT}, {FS}\ns_add_u32 s84, s84, s87\ns_add_u32 s84, s84, {F_Y}")
    p(f"s_lshl_b32 s91, s86, 11\ns_lshl_b32 s90, s{S_NT}, 8\ns_add_u32 s90, s90, s91")
    p(f"s_lshl_b32 s92, s{S_WAVE}, 16\ns_lshl_b32 s93, s{S_NT}, 12\ns_add_u32 s92, s92, s93\ns_add_u32 s92, s92, {MP_B}")
    p(f"v_lshlrev_b32 v{VT}, 2, v{LANE}")
    c.pre_loop_txt = p.L
    c.late = {}
    if opt.get("cpf", 1): c.late[6] = code_prefetch_txt(k.name, L16, 254, 80)
    m = Txt(); m.label = k.label
    MB_ = 160
    spin(m, [f"buffer_load_dword v{MB_+j}, v{VT}, {sr(SRD_D,4)}, s92 offen offset:{j*256} sc1" for j in range(16)], [MB_ + j for j in range(16)], MB_ + 16)
    for st in (4, 2, 1):
        for j in range(st): m(f"v_pk_add_f32 {vr(MB_+2*j,2)}, {vr(MB_+2*j,2)}, {vr(MB_+2*(j+st),2)}")
    m(f"v_add_f32 v{MB_}, v{MB_}, v{MB_+1}")
    round_bf16(m, MB_)
    m(f"v_add_f32 v{MB_+1}, 1.0, v{MB_}"); round_bf16(m, MB_ + 1)
    m(f"s_cmp_eq_u32 s{S_WAVE}, 2\ns_cselect_b64 vcc, -1, 0")
    m(f"v_cndmask_b32 v{MB_}, v{MB_}, v{MB_+1}, vcc")
    m(f"s_lshl_b32 s92, s{S_WAVE}, 8\ns_add_u32 s92, s92, {L_MV}\nv_add_u32 v{VT}, s92, v{VT}")
    m(f"ds_write_b32 v{VT}, v{MB_}")
    c.late[opt.get("g2_modstep", 13)] = ["\n".join(m.L)]
    c.last_reads = ([f"ds_read_b128 {vr(V_G+4*b,4)}, v{V_GA} offset:{b*64}" for b in range(4)] + [f"ds_read_b128 {vr(V_C+4*b,4)}, v{V_GA} offset:{512+b*64}" for b in range(4)]
                    + [f"ds_read_b128 {vr(V_S+4*b,4)}, v{V_GA} offset:{256+b*64}" for b in range(4)])
    c.run(k)
    k.stamp("g2 loop done")
    k("s_waitcnt lgkmcnt(0)\ns_nop 7")
    A = lambda b, t: (b * 2 + t) * 4
    XT = 104; V_X = c.V_X
    for t in range(2):
        for b in range(4):
            xr = V_X + (t * 4 + b) * 2
            for h in range(2): k(f"v_lshlrev_b32 v{XT+2*h}, 16, v{xr+h}\nv_and_b32 v{XT+2*h+1}, 0xffff0000, v{xr+h}")
            for h in range(2): k(f"v_pk_fma_f32 {vr(A(b,t)+2*h,2)}, {vr(A(b,t)+2*h,2)}, {vr(V_G+4*b+2*h,2)}, {vr(XT+2*h,2)}")
        PK = XT + 4 + t * 8
        for b in range(4): k(f"v_cvt_pk_bf16_f32 v{PK+2*b}, v{A(b,t)}, v{A(b,t)+1}\nv_cvt_pk_bf16_f32 v{PK+2*b+1}, v{A(b,t)+2}, v{A(b,t)+3}")
        for b in range(4):
            for h in range(2): k(f"v_lshlrev_b32 v{A(b,t)+2*h}, 16, v{PK+2*b+h}\nv_and_b32 v{A(b,t)+2*h+1}, 0xffff0000, v{PK+2*b+h}")
    SU = [XT + 20, XT + 22]; M2 = [XT + 21, XT + 23]; TM = [XT + 24, XT + 25]; AC = [XT, XT + 2]; NM = [XT + 26, XT + 28]; DF = 32
    for t in range(2): k(f"v_pk_add_f32 {vr(AC[t],2)}, {vr(A(0,t),2)}, {vr(A(0,t)+2,2)}")
    for b in range(1, 4):
        for h in range(2):
            for t in range(2): k(f"v_pk_add_f32 {vr(AC[t],2)}, {vr(AC[t],2)}, {vr(A(b,t)+2*h,2)}")
    def allred2(X):
        for sw in ("v_permlane32_swap_b32", "v_permlane16_swap_b32"):
            for t in range(2): k(f"v_mov_b32 v{TM[t]}, v{X[t]}")
            k("s_nop 0")
            for t in range(2): k(f"{sw} v{X[t]}, v{TM[t]}")
            k("s_nop 0")
            for t in range(2): k(f"v_add_f32 v{X[t]}, v{X[t]}, v{TM[t]}")
    for t in range(2): k(f"v_add_f32 v{SU[t]}, v{AC[t]}, v{AC[t]+1}")
    allred2(SU)
    for t in range(2): k(f"v_mul_f32 v{NM[t]}, {-1.0/64!r}, v{SU[t]}\nv_mov_b32 v{AC[t]}, 0\nv_mov_b32 v{AC[t]+1}, 0")
    for b in range(4):
        for h in range(2):
            for t in range(2): k(f"v_pk_add_f32 {vr(DF+2*t,2)}, {vr(A(b,t)+2*h,2)}, {vr(NM[t],2)} op_sel_hi:[1,0]")
            for t in range(2): k(f"v_pk_fma_f32 {vr(AC[t],2)}, {vr(DF+2*t,2)}, {vr(DF+2*t,2)}, {vr(AC[t],2)}")
    for t in range(2): k(f"v_add_f32 v{M2[t]}, v{AC[t]}, v{AC[t]+1}")
    allred2(M2)
    k(f"v_cmp_gt_u32 vcc, 16, v{LANE}")
    k(f"v_lshlrev_b32 v{XT+2}, 3, v{LANE}\nv_lshrrev_b32 v{XT+3}, 4, v{LANE}")
    k(f"v_cndmask_b32 v{XT}, v{SU[1]}, v{SU[0]}, vcc\nv_cndmask_b32 v{XT+1}, v{M2[1]}, v{M2[0]}, vcc")
    k(f"v_and_b32 v45, 0x78, v{XT+2}\nv_lshl_add_u32 v45, v{XT+3}, 10, v45")
    k(f"v_or_b32 v{XT+1}, 1, v{XT+1}")
    k(f"v_cmp_gt_u32 vcc, 32, v{LANE}\ns_and_saveexec_b64 s[96:97], vcc")
    k(f"buffer_store_dwordx2 {vr(XT,2)}, v{XT+2}, {sr(SRD_B,4)}, s90 offen sc1")
    k("s_mov_b64 exec, s[96:97]")
    k.stamp("stat stored")
    for t in range(2):
        for b in range(4):
            for h in range(2): k(f"v_pk_mul_f32 {vr(A(b,t)+2*h,2)}, {vr(A(b,t)+2*h,2)}, {vr(V_C+4*b+2*h,2)}")
    for j in range(16): k(f"v_accvgpr_write_b32 a{A_X1+j}, v{XT+4+j}")
    g3 = k.g3
    setup_gemm3_late(k, g3)
    g3.prefetch(k, opt.get("g3_pre0", 0))
    ST = 48
    spin(k, [f"buffer_load_dwordx2 {vr(ST+t*8+j*2,2)}, v45, {sr(SRD_B,4)}, s91 offen offset:{t*128+j*256} sc1" for t in range(2) for j in range(4)],
         [ST + 2 * j + 1 for j in range(8)], XT)
    k.stamp("stat ready")
    for t in range(2):
        b = ST + t * 8
        k(f"v_add_f32 v{SU[t]}, v{b}, v{b+2}\nv_add_f32 v{TM[t]}, v{b+4}, v{b+6}\nv_add_f32 v{SU[t]}, v{SU[t]}, v{TM[t]}")
        k(f"v_add_f32 v{M2[t]}, v{b+1}, v{b+3}\nv_add_f32 v{TM[t]}, v{b+5}, v{b+7}\nv_add_f32 v{M2[t]}, v{M2[t]}, v{TM[t]}")
    allred2(SU)
    for t in range(2): k(f"v_mul_f32 v{SU[t]}, {-1.0/1024!r}, v{SU[t]}")
    for j in range(4):
        for t in range(2): k(f"v_fmamk_f32 v{ST+t*8+2*j}, v{ST+t*8+2*j}, {1.0/64!r}, v{SU[t]}")
        for t in range(2): k(f"v_mul_f32 v{ST+t*8+2*j}, v{ST+t*8+2*j}, v{ST+t*8+2*j}")
        for t in range(2): k(f"v_fmac_f32 v{M2[t]}, 0x42800000, v{ST+t*8+2*j}")
    allred2(M2)
    for t in range(2): k(f"v_mov_b32 v{TM[t]}, 0x3727c5ac\nv_fmac_f32 v{TM[t]}, {1.0/1024!r}, v{M2[t]}")
    for t in range(2): k(f"v_rsq_f32 v{NM[t]}, v{TM[t]}")
    k("s_nop 0")
    for t in range(2): k(f"v_mul_f32 v{NM[t]+1}, v{SU[t]}, v{NM[t]}")
    for t in range(2):
        YK = ST + t * 8
        for b in range(4):
            for h in range(2): k(f"v_pk_fma_f32 {vr(XT+2*h,2)}, {vr(V_C+4*b+2*h,2)}, {vr(NM[t],2)}, {vr(V_S+4*b+2*h,2)} op_sel:[0,1,0] op_sel_hi:[1,1,1]")
            for h in range(2): k(f"v_pk_fma_f32 {vr(XT+2*h,2)}, {vr(A(b,t)+2*h,2)}, {vr(NM[t],2)}, {vr(XT+2*h,2)} op_sel_hi:[1,0,1]")
            k(f"v_cvt_pk_bf16_f32 v{YK+2*b}, v{XT}, v{XT+1}\nv_cvt_pk_bf16_f32 v{YK+2*b+1}, v{XT+2}, v{XT+3}")
        for s_ in range(2): k(f"buffer_store_dwordx4 {vr(YK+4*s_,4)}, v{L16}, {sr(SRD_A,4)}, s{88+t} offen offset:{s_*1024} sc1")
    k.stamp("y stored")
    publish(k, 84, 40)
    k.stamp("y published")
    g3.prefetch(k, opt.get("g3_pre", 0))
    return g3

def phase_gemm3(k, c, opt):
    LANE, L16, VT = c.LANE, c.L16, c.VT
    NB, TB = 14, 4
    srd(k, SRD_T, P_WS, S * D * 2, WS_Y)
    srd(k, SRD_C, P_WS, S * F * 2, WS_HH)
    k(f"v_and_b32 v{VT}, 31, v{LANE}\nv_lshlrev_b32 v{VT}, {FS}, v{VT}")
    k(f"s_lshl_b32 s84, s{S_RB3}, 2\ns_add_u32 s84, s84, s{S_WAVE}")
    k(f"s_lshl_b32 s85, s84, {FS+5}\ns_add_u32 s85, s85, {F_Y}")
    staged_wait(k, c, opt.get("g3_T", 3), VT, 85, VT + 1, one_prod, dup16=True)
    k.stamp("y ready")
    p = Txt()
    p(f"s_mul_i32 s88, s84, {448*1024}\ns_mul_i32 s92, s{S_FT}, 3584\ns_add_u32 s88, s88, s92")
    for t in range(1, 4): p(f"s_add_u32 s{88+t}, s88, {t*112*1024}")
    p(f"s_lshl_b32 s93, s84, {FS+5}\ns_lshl_b32 s94, s{S_FT}, {FS}\ns_add_u32 s93, s93, s94\ns_add_u32 s94, s93, {F_HB}\ns_add_u32 s93, s93, {F_HH}")
    p(f"s_mov_b32 s86, {-LOG2E!r}\ns_mov_b32 s87, {-LOG2E!r}")
    SB = 241
    p(f"v_lshrrev_b32 v{SB}, 1, v{L16}")
    c.pre_loop_txt = p.L
    if opt.get("cpf", 1):
        c.late[6] = code_prefetch_txt(k.name, L16, 254, 80)
        c.late[22] = code_prefetch_txt(k.name, L16, 254, 80)
    if opt.get("w2touch", 1):
        c.late[16] = [f"s_lshl_b32 s80, s2, 2", f"s_add_u32 s80, s80, s{S_WAVE}", "s_mul_i32 s80, s80, 7168",
                      f"v_min_u32 v253, 55, v{LANE}", "v_lshlrev_b32 v253, 7, v253", "v_add_u32 v253, s80, v253",
                      f"global_load_dword v253, v253, s[{P_W2}:{P_W2+1}]"]
    t4 = Txt()
    g4 = setup_gemm4p(t4, opt, 242)
    half = len(t4.L) // 2
    c.late[19] = t4.L[:half]; c.late[20] = t4.L[half:]
    pf = g4.prefetch_txt(4); c.late[29] = pf
    pf = g4.prefetch_txt(4); c.late[30] = pf
    def G(s, t): return ((2 * s) * TB + t) * 4
    def Uu(s, t): return ((2 * s + 1) * TB + t) * 4
    def act(k, slots, t, scalar=False):
        if scalar:
            for s in slots:
                for r in range(4):
                    k(f"v_mul_f32 v{Uu(s,t)+r}, v{G(s,t)+r}, v{Uu(s,t)+r}")
                    k(f"v_mul_f32 v{G(s,t)+r}, s86, v{G(s,t)+r}")
            rs = [(s, r) for s in slots for r in range(4)]
            for i, (s, r) in enumerate(rs): k(f"v_exp_f32 v{G(s,t)+r}, v{G(s,t)+r}")
            for i, (s, r) in enumerate(rs): k(f"v_add_f32 v{G(s,t)+r}, 1.0, v{G(s,t)+r}")
            for i, (s, r) in enumerate(rs): k(f"v_rcp_f32 v{G(s,t)+r}, v{G(s,t)+r}")
            for i, (s, r) in enumerate(rs): k(f"v_mul_f32 v{Uu(s,t)+r}, v{Uu(s,t)+r}, v{G(s,t)+r}")
            return
        for s in slots:
            for h in range(2):
                k(f"v_pk_mul_f32 {vr(Uu(s,t)+2*h,2)}, {vr(G(s,t)+2*h,2)}, {vr(Uu(s,t)+2*h,2)}")
                k(f"v_pk_mul_f32 {vr(G(s,t)+2*h,2)}, {vr(G(s,t)+2*h,2)}, s[86:87]")
        for s in slots:
            for r in range(4): k(f"v_exp_f32 v{G(s,t)+r}, v{G(s,t)+r}")
        for s in slots:
            for h in range(2): k(f"v_pk_add_f32 {vr(G(s,t)+2*h,2)}, {vr(G(s,t)+2*h,2)}, 1.0 op_sel_hi:[1,0]")
        for s in slots:
            for r in range(4): k(f"v_rcp_f32 v{G(s,t)+r}, v{G(s,t)+r}")
        for s in slots:
            for h in range(2): k(f"v_pk_mul_f32 {vr(Uu(s,t)+2*h,2)}, {vr(Uu(s,t)+2*h,2)}, {vr(G(s,t)+2*h,2)}")
    def pair(k, pr, t, scalar=False):
        s0, s1 = 2 * pr, 2 * pr + 1
        act(k, [s0, s1], t, scalar)
        d = G(s0, t)
        k(f"v_cvt_pk_bf16_f32 v{d}, v{Uu(s0,t)}, v{Uu(s0,t)+1}\nv_cvt_pk_bf16_f32 v{d+1}, v{Uu(s0,t)+2}, v{Uu(s0,t)+3}")
        k(f"v_cvt_pk_bf16_f32 v{d+2}, v{Uu(s1,t)}, v{Uu(s1,t)+1}\nv_cvt_pk_bf16_f32 v{d+3}, v{Uu(s1,t)+2}, v{Uu(s1,t)+3}")
        k(f"buffer_store_dwordx4 {vr(d,4)}, v{L16}, {sr(SRD_C,4)}, s{88+t} offen offset:{pr*1024} sc1")
    ea = Txt(); eb = Txt()
    nin = opt.get("g3_nin", 8) if c.TL else 0
    for i, (pr, t) in enumerate([(pr, t) for pr in range(2) for t in range(TB)]):
        if i < nin: pair(ea, pr, t, opt.get("g3_scalar", 0))
        else: pair(eb, pr, t)
    if c.TL:
        nst = opt.get("g3_east", c.TL - 1)
        per = -(-len(ea.L) // nst)
        c.step_extra = lambda st: ea.L[(st - 32) * per:(st - 31) * per] if st >= 32 else []
    c.run(k)
    k.stamp("g3 loop done")
    if not c.TL: k("s_nop 7")
    for x in eb.L: k(x)
    publish(k, 93, 252)
    k.stamp("hA published")
    k("s_nop 4\ns_barrier")
    mark3 = len(k.L)
    for t in range(TB): pair(k, 2, t)
    grp = []
    for j in range(8):
        t_ = g4.prefetch_txt(1); grp.append(t_[:-1] + ["s_nop 0", t_[-1]])
    sprinkle(k, mark3, grp)
    for t in range(TB):
        act(k, [6], t)
        d = G(6, t)
        k(f"v_cvt_pk_bf16_f32 v{d}, v{Uu(6,t)}, v{Uu(6,t)+1}\nv_cvt_pk_bf16_f32 v{d+1}, v{Uu(6,t)+2}, v{Uu(6,t)+3}")
        k(f"buffer_store_dwordx2 {vr(d,2)}, v{SB}, {sr(SRD_C,4)}, s{88+t} offen offset:3072 sc1")
    k.stamp("hh stored")
    publish(k, 94, 252)
    k.stamp("hh published")
    return g4

def phase_gemm4(k, c, opt):
    LANE, L16 = c.LANE, c.L16
    VT = 40
    srd(k, SRD_T, P_WS, S * F * 2, WS_HH)
    srd(k, SRD_A, P_OUT, S * D * 2)
    k(f"v_and_b32 v{VT}, 31, v{LANE}\nv_lshlrev_b32 v{VT}, 2, v{VT}")
    k(f"s_lshl_b32 s84, s{S_RB2}, 1\ns_lshr_b32 s85, s{S_WAVE}, 1\ns_add_u32 s84, s84, s85\ns_lshl_b32 s84, s84, {FS+5}\ns_add_u32 s84, s84, {F_HH}")
    wait_flags(k, [(VT, 84, 1)], VT + 1)
    k.stamp("hh ready")
    V_G, V_GA, V_XA, V_X = 64, 44, 45, 48
    p = Txt()
    p(f"v_lshrrev_b32 v{VT}, 4, v{LANE}\nv_lshlrev_b32 v{V_GA}, 4, v{VT}\nv_add_u32 v{V_GA}, {L_MV}, v{V_GA}")
    p(f"v_and_b32 v{VT+1}, 15, v{LANE}\nv_lshlrev_b32 v{VT+1}, 11, v{VT+1}")
    p(f"v_and_b32 v{VT+2}, 1, v{VT}\nv_lshl_add_u32 v{VT+1}, v{VT+2}, 5, v{VT+1}")
    p(f"v_lshrrev_b32 v{VT+2}, 1, v{VT}\nv_lshl_add_u32 v{V_XA}, v{VT+2}, 4, v{VT+1}")
    p(f"s_lshl_b32 s86, s{S_RB2}, 3\ns_lshl_b32 s87, s{S_WAVE}, 1\ns_add_u32 s86, s86, s87\ns_lshl_b32 s86, s86, 15\ns_lshl_b32 s87, s{S_NT}, 7\ns_add_u32 s86, s86, s87\ns_add_u32 s87, s86, 32768")
    for j in range(16): p(f"v_accvgpr_read_b32 v{V_X+j}, a{A_X1+j}")
    c.pre_loop_txt = p.L
    c.last_reads = [f"ds_read_b128 {vr(V_G+4*b,4)}, v{V_GA} offset:{768+b*64}" for b in range(4)]
    c.run(k)
    k.stamp("g4 loop done")
    k("s_waitcnt lgkmcnt(0)\ns_nop 7")
    A = lambda b, t: (b * 2 + t) * 4
    XT = 96
    for t in range(2):
        for b in range(4):
            xr = V_X + (t * 4 + b) * 2
            for h in range(2): k(f"v_lshlrev_b32 v{XT+2*h}, 16, v{xr+h}\nv_and_b32 v{XT+2*h+1}, 0xffff0000, v{xr+h}")
            for h in range(2): k(f"v_pk_fma_f32 {vr(A(b,t)+2*h,2)}, {vr(A(b,t)+2*h,2)}, {vr(V_G+4*b+2*h,2)}, {vr(XT+2*h,2)}")
        PK = XT + 4 + t * 8
        for b in range(4): k(f"v_cvt_pk_bf16_f32 v{PK+2*b}, v{A(b,t)}, v{A(b,t)+1}\nv_cvt_pk_bf16_f32 v{PK+2*b+1}, v{A(b,t)+2}, v{A(b,t)+3}")
        k("s_nop 1")
        for s_ in range(2): k(f"v_permlane16_swap_b32 v{PK+4*s_}, v{PK+4*s_+2}\nv_permlane16_swap_b32 v{PK+4*s_+1}, v{PK+4*s_+3}")
        for s_ in range(2): k(f"buffer_store_dwordx4 {vr(PK+4*s_,4)}, v{V_XA}, {sr(SRD_A,4)}, s{86+t} offen offset:{s_*64}")

def build_mega(instr=False, opt=None, name="mega_kernel"):
    opt = opt or {}
    k = Mega(name, 256, 256, LDS_TOTAL, vgpr=256, agpr=256, sgpr=102)
    k.instr = instr; k.names = []
    end = k.label("end")
    far = k.label("go")
    k(f"s_cmp_lt_u32 s2, 256\ns_cbranch_scc1 {far}\ns_endpgm\n{far}:")
    k("s_load_dwordx8 s[4:11], s[0:1], 0")
    k("s_load_dwordx2 s[12:13], s[0:1], 64")
    k("s_load_dwordx2 s[14:15], s[0:1], 40")
    k("s_load_dwordx4 s[16:19], s[0:1], 48")
    k("s_load_dwordx2 s[98:99], s[0:1], 72")
    k("s_load_dwordx2 s[24:25], s[0:1], 80")
    k("s_load_dwordx2 s[28:29], s[0:1], 96")
    if instr: k(f"v_mov_b32 v{VSTAMP}, 0")
    ids(k)
    k(f"s_lshr_b32 s80, s{S_IDX}, 2\ns_add_u32 s{S_R4}, s80, s{S_IDX}\ns_and_b32 s81, s{S_IDX}, 3\ns_lshl_b32 s81, s81, 1\ns_add_u32 s{S_R8}, s80, s81")
    k(f"s_and_b32 s80, s{S_IDX}, 3\ns_lshl_b32 s{S_FT}, s{S_XCD}, 2\ns_add_u32 s{S_FT}, s{S_FT}, s80\ns_lshr_b32 s{S_RB3}, s{S_IDX}, 2")
    k.stamp("start")
    g1 = phase_front(k, opt, name)
    g2 = phase_gemm1(k, g1, opt)
    g3 = phase_gemm2(k, g2, opt)
    g4 = phase_gemm3(k, g3, opt)
    (phase_gemm4p if opt.get('g4_pair', 1) else phase_gemm4)(k, g4, opt)
    if instr:
        k("s_waitcnt vmcnt(0)")
        k.stamp("end")
        k(f"s_add_u32 s84, s{P_WS}, {WS_DBG}\ns_addc_u32 s85, s{P_WS+1}, 0\ns_mov_b32 s86, 0x100000\ns_mov_b32 s87, 0x20000")
        k(f"s_lshl_b32 s88, s2, 2\ns_add_u32 s88, s88, s{S_WAVE}\ns_lshl_b32 s88, s88, 8")
        lane_id(k, 1)
        k("v_lshlrev_b32 v1, 2, v1")
        k(f"buffer_store_dword v{VSTAMP}, v1, s[84:87], s88 offen")
    k("s_endpgm")
    k(f"{name}_end:")
    return k
```

```python
from asmlib import *
MF = "v_mfma_f32_16x16x32_bf16"

class Item:
    __slots__ = ("kind", "txt", "key", "lgkm")
    def __init__(self, kind, txt=None, key=None, lgkm=None):
        self.kind = kind; self.txt = txt; self.key = key; self.lgkm = lgkm
def T(txt): return Item("txt", txt)
def VM(txt, key): return Item("vm", txt, key)
def WVM(keys, lgkm=None): return Item("wvm", None, keys, lgkm)
def is_vm(x): return x.startswith("buffer_") or x.startswith("global_")

class Txt:
    def __init__(self): self.L = []
    def __call__(self, s): self.L += [x.strip() for x in s.split("\n") if x.strip()]

def win_mask(sizes):
    out, b = [], 0
    for w in sizes:
        out += [(b, w - 1)] * w; b += w
    return out

class Sched:
    pro_units = 0; ramp_rate = 99; read_margin = 8; lookahead = 99
    step_extra = None; late = None; last_reads = (); pre_loop_txt = (); drop = ()
    pre_dma = 0
    fine = 0
    bar_frac = 0.3
    stamp_every = 0; tag = ''
    def __init__(self):
        self.steps = []; self.stage_units = {}; self.stage_slot = {}; self.tok_units = {}; self.tok_slot = {}
        self.late = {}
    lead_D = None
    s_start = None
    gates = ()
    tile_of = staticmethod(lambda key: key)
    def lead_init(self, k, s_r, s_tmp):
        D = self.lead_D
        for m in range(4):
            d = self.s_dl + m
            k(f"s_sub_u32 s{s_tmp}, {m}, s{s_r}\ns_and_b32 s{s_tmp}, s{s_tmp}, 3")
            k(f"s_cmp_eq_u32 s{s_tmp}, 1\ns_cselect_b32 s{d}, {2+D}, {1+D}")
            k(f"s_cmp_eq_u32 s{s_tmp}, 0\ns_cselect_b32 s{d}, 0, s{d}")
    def pos_txt(self, s_dst, kt):
        KT = self.KT
        pow2 = KT & (KT - 1) == 0
        if self.lead_D is not None:
            assert self.s_start is None
            if kt < 2 + self.lead_D:
                return [f"s_sub_u32 s{s_dst}, {kt + KT}, s{self.s_dl + kt % 4}", f"s_sub_u32 s{self.s_ptmp}, s{s_dst}, {KT}", f"s_min_u32 s{s_dst}, s{s_dst}, s{self.s_ptmp}"]
            return [f"s_sub_u32 s{s_dst}, {kt}, s{self.s_dl + kt % 4}"]
        base, mask = self.wins[kt]
        if mask == 0:
            if self.s_start is None: return [f"s_mov_b32 s{s_dst}, {base}"]
            o = [f"s_add_u32 s{s_dst}, s{self.s_start}, {base}"]
        else:
            o = [f"s_add_u32 s{s_dst}, s{self.s_rot if mask > 3 else self.s_rot2}, {kt - base}", f"s_and_b32 s{s_dst}, s{s_dst}, {mask}"]
            if base: o.append(f"s_add_u32 s{s_dst}, s{s_dst}, {base}")
            if self.s_start is None: return o
            o.append(f"s_add_u32 s{s_dst}, s{s_dst}, s{self.s_start}")
        if pow2: o.append(f"s_and_b32 s{s_dst}, s{s_dst}, {KT-1}")
        else: o += [f"s_sub_u32 s{self.s_ptmp}, s{s_dst}, {KT}", f"s_min_u32 s{s_dst}, s{s_dst}, s{self.s_ptmp}"]
        return o
    def pos_items(self, s_dst, kt, stride):
        return [T(x) for x in self.pos_txt(s_dst, kt)] + [T(f"s_mul_i32 s{s_dst}, s{s_dst}, {stride}")]
    def _dma_list(self):
        return [(s, i) for s in sorted(self.stage_units) for i in range(len(self.stage_units[s]))]
    def prefetch(self, k, n):
        for s, i in self._dma_list()[self.pre_dma:self.pre_dma + n]:
            for x in self.stage_units[s][i]:
                if x.kind == "vm": k("s_nop 0")
                k(x.txt)
        self.pre_dma += n
    def prefetch_txt(self, n):
        t = Txt(); self.prefetch(t, n); return [x for x in t.L if x != "s_nop 0"]

    def run(self, k):
        c = self
        N = len(c.steps)
        sfirst, slast, tfirst, tlast = {}, {}, {}, {}
        for i, st in enumerate(c.steps):
            for s in st["stages"]: sfirst.setdefault(s, i); slast[s] = i
            for t in st["toks"]: tfirst.setdefault(t, i); tlast[t] = i
        bars = {}
        for s, f in sfirst.items(): bars.setdefault(f - 1, []).append(s)
        barsteps = sorted(bars)
        units = {"dma": [], "tok": []}
        prev = {}
        skip = c.pre_dma
        for s in sorted(c.stage_units):
            sl = c.stage_slot[s]
            e = -1 if sl not in prev else min(b for b in barsteps if b >= slast[prev[sl]])
            prev[sl] = s
            for i, u in enumerate(c.stage_units[s]):
                if skip: skip -= 1; assert e == -1; continue
                units["dma"].append((sfirst[s] - 1, e, "dma", u))
        prev = {}
        for key in sorted(c.tok_units, key=lambda q: (tfirst[q], q)):
            sl = c.tok_slot[key]
            e = -1 if sl not in prev else tlast[prev[sl]] + 1
            e = max(e, tfirst[key] - c.lookahead, -1)
            prev[sl] = key
            for u in c.tok_units[key]: units["tok"].append((tfirst[key], e, "tok", u, c.tile_of(key)))
        issue = {}
        pos, cnt, cap = -1, 0, c.pro_units
        rate = c.ramp_rate if callable(c.ramp_rate) else (lambda s: c.ramp_rate)
        while units["dma"] or units["tok"]:
            cand = [q[0] for q in units.values() if q and q[0][1] <= pos]
            if cand and cnt < cap:
                u = min(cand, key=lambda u: (u[0], 0 if u[2] == "dma" else 1))
                issue.setdefault(pos, []).append(u); units[u[2]].pop(0); cnt += 1
                assert pos < u[0] or pos == -1, ("late unit", u[:3], pos)
            else:
                pos += 1; cnt = 0; cap = rate(pos)
        gate_at = {}
        for gt, gp, gi in c.gates:
            gs_ = min(st for st, us in issue.items() if any(u[2] == "tok" and u[4] >= gt for u in us))
            assert gs_ >= 1 and gs_ not in gate_at, gs_
            gate_at[gs_] = (gp, gi)
        def read_items(step):
            out = []
            for j, (va, o0, o1, _) in enumerate(c.steps[step]["frags"]):
                for r, off in enumerate((o0, o1)):
                    assert 0 <= off < 65536, off
                    out.append(Item("ds", f"ds_read_b64_tr_b16 {ar(c.wf(step % 2, j)+2*r,2)}, v{va} offset:{off}", (step, j)))
            return out
        def bar(step): return [WVM([("dma", s) for s in bars[step]], lgkm=(0 if c.fine else None)), T("s_barrier")]
        def conv(x):
            if isinstance(x, Item): return x
            return VM(x, ("extra", 0)) if is_vm(x) else T(x)
        pro = []
        for u in issue.get(-1, []):
            for x in u[3]:
                if x.kind == "vm" and x.txt.endswith("lds"): pro.append(T("s_nop 0"))
                pro.append(x)
        pro += [conv(x) for x in c.pre_loop_txt]
        pro += bar(-1) + read_items(0)
        touched = set(c.acc_init) if hasattr(c, "acc_init") else set()
        def make_step(step):
            st = c.steps[step]
            newt = [("tok", t) for t in st["toks"] if tfirst[t] == step]
            out = [WVM(newt, lgkm=0)] if not c.fine else ([WVM(newt)] if newt else [])
            mf = []
            pre = {}
            nf = len(st["frags"])
            for j, (_, _, _, ms) in enumerate(st["frags"]):
                if c.fine and j % c.fine == 0: pre[len(mf)] = Item("wds", None, (step, min(nf - 1, j + c.fine - 1)))
                for acc, tr in (ms if j % 2 == 0 else ms[::-1]):
                    cin = acc if acc in touched else "0"
                    touched.add(acc)
                    mf.append(T(f"{MF} {acc}, {ar(c.wf(step%2, j),4)}, {ar(tr,4)}, {cin}"))
            n = len(mf)
            gaps = [[] for _ in range(n)]
            g0 = 0
            if step in bars:
                gb = int(n * c.bar_frac) if c.fine else 0
                gaps[gb] += bar(step); g0 = gb + 1
            us = issue.get(step, [])
            a = [u for u in us if u[2] == "dma"]; b_ = [u for u in us if u[2] == "tok"]
            if us and min(u[0] for u in us) > step + 1:
                seq = []
                while a or b_:
                    if b_: seq.append(b_.pop(0))
                    if a: seq.append(a.pop(0))
            else: seq = us
            B = []
            if step in gate_at: B += [conv(x) for x in gate_at[step][1]]
            for u in seq: B += u[3]
            B += [conv(x) for x in c.late.get(step, [])]
            if step + 1 in gate_at: B = B[:len(gate_at[step][1]) if step in gate_at else 0] + [conv(x) for x in gate_at[step + 1][0]] + B[len(gate_at[step][1]) if step in gate_at else 0:]
            A = read_items(step + 1) if step + 1 < N else [T(x) for x in c.last_reads]
            X = [conv(x) for x in (c.step_extra(step) if c.step_extra else [])]
            want = []
            ra = max(1, n - (0 if c.fine else c.read_margin) - g0)
            for i, x in enumerate(A): want.append((g0 + i * ra / len(A), 0, i, x))
            for i, x in enumerate(B): want.append((g0 + (i + 0.5) * (n - g0) / len(B), 1, i, x))
            for i, x in enumerate(X): want.append((g0 + (i + 0.25) * (n - g0) / len(X), 2, i, x))
            want.sort(key=lambda w: (w[0], w[1], w[2]))
            cap = max(1, -(-len(want) // (n - g0)))
            g = g0
            for pos_, _, _, x in want:
                g = max(g, min(n - 1, int(pos_)))
                while g < n - 1 and len(gaps[g]) >= cap: g += 1
                gaps[g].append(x)
            for i in range(n):
                if i in pre: out.append(pre[i])
                out.append(mf[i])
                prev = None
                for x in gaps[i]:
                    if x.kind == "vm" and x.txt.endswith("lds") and prev is not None and prev.txt and " m0," in prev.txt:
                        out.append(T("s_nop 0"))
                    out.append(x); prev = x
            return out
        issued = []
        ds = []
        def emit(items):
            for x in items:
                if x.kind == "wds":
                    idx = [i for i, kk in enumerate(ds) if kk == x.key]
                    if idx:
                        n = min(15, len(ds) - 1 - idx[-1])
                        k(f"s_waitcnt lgkmcnt({n})")
                        del ds[:len(ds) - n]
                elif x.kind == "wvm":
                    if x.lgkm == 0: ds.clear()
                    n = 63
                    for key in x.key:
                        idx = [i for i, kk in enumerate(issued) if kk == key]
                        n = min(n, len(issued) - 1 - idx[-1] if idx else len(issued))
                    parts = ([f"vmcnt({n})"] if x.key else []) + ([f"lgkmcnt({x.lgkm})"] if x.lgkm is not None else [])
                    k("s_waitcnt " + " ".join(parts))
                else:
                    if x.kind == "vm": issued.append(x.key)
                    if x.kind == "ds": ds.append(x.key)
                    if any(d in x.txt for d in c.drop): continue
                    k(x.txt)
        emit(pro)
        for s in range(N):
            if c.stamp_every and s % c.stamp_every == 0: k.stamp(f"{c.tag} step {s}")
            emit(make_step(s))

def std_sched(c):
    NB, TB, KS, SPK, KT, NS, R = c.NB, c.TB, c.KS, c.SPK, c.KT, c.NS, c.R
    for kt in range(KT):
        us = []
        sw = c.s_kw + kt % 2
        for i, (vo, loff, goff) in enumerate(c.dma):
            g = c.pos_items(sw, kt, c.w_stride) if i == 0 else []
            g += [T(f"s_add_u32 m0, s{c.s_wbase}, {c.slot_addr(kt % NS) + loff - goff}"),
                  VM(f"buffer_load_dwordx4 v{vo}, {sr(c.srd_w,4)}, s{sw} offen" + (f" offset:{goff}" if goff else "") + " lds", ("dma", kt))]
            us.append(g)
        c.stage_units[kt] = us; c.stage_slot[kt] = kt % NS
        for sp in range(SPK):
            step = kt * SPK + sp
            us = []
            st_ = c.s_kt + kt % 2
            for ks in range(KS):
                for t in range(TB):
                    g = c.pos_items(st_, kt, SPK * KS * 1024) if (sp == 0 and ks == 0 and t == 0) else []
                    g.append(VM(f"buffer_load_dwordx4 {ar(c.tf(step % R, ks, t),4)}, v{c.v_tok[t]}, {sr(c.srd_t,4)}, s{st_} offen offset:{(sp*KS+ks)*1024} sc1", ("tok", step)))
                    us.append(g)
            c.tok_units[step] = us; c.tok_slot[step] = step % R
            frags = []
            for ks in range(KS):
                for b in range(NB):
                    va, o0 = c.rd(kt % NS, b, sp * KS + ks, 0); _, o1 = c.rd(kt % NS, b, sp * KS + ks, 1)
                    frags.append((va, o0, o1, [(c.acc(b, t), c.tf(step % R, ks, t)) for t in range(TB)]))
            c.steps.append(dict(frags=frags, stages=[kt], toks=[step]))
    c.wf = lambda buf, j: (buf * NB * KS + j) * 4
    c.tile_of = lambda key: key // SPK
```

```python
import sys
from asmlib import *
from gemm import *
from layout import *
LOG2E = 1.4426950408889634
P_X, P_WQKV, P_WPHI, P_WO, P_W1, P_W3, P_W2, P_OUT, P_WS = 4, 6, 8, 10, 14, 16, 18, 24, 28
P_DBG, S_MB, S_MO = 96, 77, 79
P_C, P_WMOD = 12, 98
S_WAVE, S_XCD, S_IDX = 3, 30, 31
SRD_W, SRD_T, SRD_A, SRD_B, SRD_C, SRD_D, SRD_F = 32, 36, 40, 44, 48, 52, 56
S_KW, S_KT, S_WB, S_ROT, S_TMP, S_ROT2 = 60, 62, 76, 77, 78, 79
S_RB1, S_HP, S_RB2, S_NT, S_RB3, S_FT = 26, 27, 26, 27, 22, 23
S_R8, S_R4 = 20, 21
VSTAMP = 255
L_WPH, L_UTC = 101376, 105472
L_UT3, L_MV, L_R2 = 114688, 128000, 129792
LDS_TOTAL = 163584

class Mega(Kernel):
    nst = 0
    only = None
    def stamp(self, name=""):
        if not self.instr: return
        if self.only is not None and not any(name.startswith(o) for o in self.only): return
        self("s_waitcnt lgkmcnt(0)\ns_memrealtime s[0:1]\ns_waitcnt lgkmcnt(0)")
        self(f"v_writelane_b32 v{VSTAMP}, s0, {self.nst}")
        self("s_nop 3\ns_memtime s[0:1]\ns_waitcnt lgkmcnt(0)")
        self(f"v_writelane_b32 v{VSTAMP}, s0, {self.nst + 32}")
        self.names.append(name); self.nst += 1

def lane_id(k, v):
    k(f"v_mbcnt_lo_u32_b32 v{v}, -1, 0\nv_mbcnt_hi_u32_b32 v{v}, -1, v{v}")

def code_prefetch_setup(k, name, s_pc=100):
    lab = k.label("pc")
    k(f"s_getpc_b64 s[{s_pc}:{s_pc+1}]")
    k(f"{lab}:")
    k(f"s_sub_u32 s{s_pc}, s{s_pc}, {lab}-{name}\ns_subb_u32 s{s_pc+1}, s{s_pc+1}, 0")
def code_prefetch_txt(name, v_l16, vt, s_tmp, s_idx=S_IDX, s_wave=S_WAVE, s_pc=100, junk="a232"):
    return [f"s_lshl_b32 s{s_tmp}, s{s_idx}, 2", f"s_add_u32 s{s_tmp}, s{s_tmp}, s{s_wave}", f"s_lshl_b32 s{s_tmp}, s{s_tmp}, 10",
            f"v_add_u32 v{vt}, s{s_tmp}, v{v_l16}", f"v_min_u32 v{vt}, {name}_end-{name}-4, v{vt}",
            f"global_load_dword {junk}, v{vt}, s[{s_pc}:{s_pc+1}]"]

def count_vm(k, mark):
    return sum(1 for x in k.L[mark:] if is_vm(x))
def publish(k, s_off, vt, mark=None):
    k(f"v_mov_b32 v{vt}, 1\nv_mov_b32 v{vt+1}, 0")
    n = 0 if mark is None else count_vm(k, mark)
    assert n < 64
    k(f"s_waitcnt vmcnt({n})")
    k(f"buffer_store_dword v{vt}, v{vt+1}, {sr(SRD_F,4)}, s{s_off} offen sc1")

def spin(k, loads, regs, vt, s_cnt=96):
    top, ok = k.label("poll"), k.label("ok")
    k(f"s_mov_b32 s{s_cnt}, 0")
    k(f"{top}:")
    for x in loads: k(x)
    k("s_waitcnt vmcnt(0)")
    if len(regs) == 1: k(f"v_cmp_eq_u32 vcc, 0, v{regs[0]}")
    else:
        k(f"v_min_u32 v{vt}, v{regs[0]}, v{regs[1]}")
        for x in regs[2:]: k(f"v_min_u32 v{vt}, v{vt}, v{x}")
        k(f"v_cmp_eq_u32 vcc, 0, v{vt}")
    k(f"s_add_u32 s{s_cnt}, s{s_cnt}, 1")
    k(f"s_cmp_eq_u64 vcc, 0\ns_cbranch_scc1 {ok}")
    k(f"s_sleep {SLEEP}\ns_cmp_lt_u32 s{s_cnt}, 0x40000\ns_cbranch_scc1 {top}")
    k(f"{ok}:")

def wait_flags(k, polls, vt, s_cnt=96):
    top, ok = k.label("poll"), k.label("ok")
    k(f"s_mov_b32 s{s_cnt}, 0")
    k(f"{top}:")
    r = vt
    regs = []
    for va, so, ndw in polls:
        if ndw == 4: r = (r + 1) // 2 * 2
        k(f"buffer_load_dword{'x4' if ndw == 4 else ''} {vr(r,ndw)}, v{va}, {sr(SRD_F,4)}, s{so} offen sc1")
        regs += list(range(r, r + ndw)); r += ndw
    k("s_waitcnt vmcnt(0)")
    for x in regs[1:]: k(f"v_min_u32 v{regs[0]}, v{regs[0]}, v{x}")
    k(f"v_cmp_eq_u32 vcc, 0, v{regs[0]}")
    k(f"s_add_u32 s{s_cnt}, s{s_cnt}, 1")
    k(f"s_cmp_eq_u64 vcc, 0\ns_cbranch_scc1 {ok}")
    k(f"s_sleep {SLEEP}\ns_cmp_lt_u32 s{s_cnt}, 0x40000\ns_cbranch_scc1 {top}")
    k(f"{ok}:")

def staged_wait(k, c, T_, v_addr, s_off, vf, prod_of, dup16=False, skip_first=0, s_m=97, pub=None):
    ld = f"buffer_load_dword v{vf}, v{v_addr}, {sr(SRD_F,4)}, s{s_off} offen sc1"
    if T_ is None:
        spin(k, [ld], [vf], 0); return
    k(f"s_mov_b32 s{s_m}, 0")
    for kt in range(skip_first, T_):
        for x in c.pos_txt(80, kt): k(x)
        for x in prod_of(80, 81): k(x)
        k(f"s_or_b32 s{s_m}, s{s_m}, s81")
    if dup16: k(f"s_lshl_b32 s81, s{s_m}, 16\ns_or_b32 s{s_m}, s{s_m}, s81")
    top, ok = k.label("poll"), k.label("ok")
    if pub:
        mk = len(k.L); k(ld); publish(k, pub[0], pub[1], mk)
        k("s_waitcnt vmcnt(1)")
        k(f"v_cmp_eq_u32 vcc, 0, v{vf}\ns_nop 0")
        k(f"s_and_b32 s81, vcc_lo, s{s_m}\ns_cbranch_scc0 {ok}")
    k(f"s_mov_b32 s96, 0\n{top}:")
    k(ld)
    k("s_waitcnt vmcnt(0)")
    k(f"v_cmp_eq_u32 vcc, 0, v{vf}")
    k("s_add_u32 s96, s96, 1")
    k(f"s_and_b32 s81, vcc_lo, s{s_m}\ns_cbranch_scc0 {ok}")
    k(f"s_sleep {SLEEP}\ns_cmp_lt_u32 s96, 0x40000\ns_cbranch_scc1 {top}")
    k(f"{ok}:")
    add_gate(k, c, T_, ld, vf)
def add_gate(k, c, tile, ld, vf):
    m = Txt(); m.label = k.label
    okl = k.label("gok")
    m(f"v_cmp_eq_u32 vcc, 0, v{vf}\ns_cmp_eq_u64 vcc, 0\ns_cbranch_scc1 {okl}")
    spin(m, [ld], [vf], 0)
    m(f"{okl}:")
    c.gates = list(c.gates) + [(tile, [VM(ld, ("gate", tile))], [WVM([("gate", tile)]), T("\n".join(m.L))])]
one_prod = lambda sp, st: [f"s_lshl_b32 s{st}, 1, s{sp}"]

def allreduce_q(k, op, x, tmp):
    k(f"v_mov_b32 v{tmp}, v{x}\ns_nop 1")
    k(f"v_permlane32_swap_b32 v{x}, v{tmp}")
    k(f"s_nop 1\n{op} v{x}, v{x}, v{tmp}")
    k(f"v_mov_b32 v{tmp}, v{x}\ns_nop 1")
    k(f"v_permlane16_swap_b32 v{x}, v{tmp}")
    k(f"s_nop 1\n{op} v{x}, v{x}, v{tmp}")

def treduce4(k, op, A):
    a, b, c, d = A
    k("s_nop 1")
    k(f"v_permlane32_swap_b32 v{a}, v{b}\nv_permlane32_swap_b32 v{c}, v{d}")
    k("s_nop 1")
    k(f"{op} v{a}, v{a}, v{b}\n{op} v{c}, v{c}, v{d}")
    k("s_nop 1")
    k(f"v_permlane16_swap_b32 v{a}, v{c}")
    k("s_nop 1")
    k(f"{op} v{a}, v{a}, v{c}")
    k(f"v_mov_b32 v{c}, v{a}")
    k("s_nop 1")
    k(f"v_permlane16_swap_b32 v{a}, v{c}")
    k("s_nop 1")
    k(f"v_mov_b32 v{b}, v{a}\nv_mov_b32 v{d}, v{c}")
    k("s_nop 1")
    k(f"v_permlane32_swap_b32 v{a}, v{b}\nv_permlane32_swap_b32 v{c}, v{d}")
    k("s_nop 1")

def red8(k, x):
    for m in ("quad_perm:[1,0,3,2]", "quad_perm:[2,3,0,1]", "row_half_mirror"):
        k(f"s_nop 1\nv_add_f32_dpp v{x}, v{x}, v{x} {m} row_mask:0xf bank_mask:0xf")

def round_bf16(k, v):
    k(f"v_cvt_pk_bf16_f32 v{v}, v{v}, v{v}\nv_and_b32 v{v}, 0xffff0000, v{v}")

S_DLA, S_DLB, S_PTMP = 71, 6, 75
def order(c, k, opt, tag, default):
    o = opt.get(tag + "_ord", default)
    c.tag = tag; c.stamp_every = opt.get(tag + "_se", 0)
    c.fine = opt.get(tag + "_fine", opt.get("fine", 0)); c.bar_frac = opt.get("bar_frac", 0.3)
    c.s_rot, c.s_rot2 = S_R8, S_R4
    if o[0] == "lead":
        c.lead_D, c.s_dl = o[1], S_DLA
    else:
        c.wins = win_mask(o[1])
        if o[2]:
            c.s_start = S_HP
            c.s_rot = c.s_rot2 = S_RB3
def common_gemm(c):
    c.srd_w, c.srd_t = SRD_W, SRD_T
    c.s_kw, c.s_kt, c.s_wbase, c.s_ptmp = S_KW, S_KT, S_WB, S_PTMP

def setup_gemm1(k, opt):
    c = Sched(); common_gemm(c)
    NS, R = opt.get("g1_NS", 4), opt.get("g1_R", 4)
    STAGE = 25344
    c.V_RD, c.V_DMA, c.V_TOK, c.LANE, c.L16, c.VT = 96, 98, 102, 104, 105, 106
    V_RD, V_DMA, V_TOK, LANE, L16, VT = c.V_RD, c.V_DMA, c.V_TOK, c.LANE, c.L16, 110
    k(f"v_lshlrev_b32 v{L16}, 4, v{LANE}")
    c.lead_D, c.s_dl = opt.get("D", 0), S_DLA
    if opt.get("uselead", 0): c.lead_init(k, S_R4, 81)
    c.lead_D = None
    order(c, k, opt, "g1", ["win", [8, 8], 0])
    k(f"s_lshr_b32 s80, s{S_WAVE}, 1\ns_and_b32 s81, s{S_WAVE}, 1")
    k(f"v_lshrrev_b32 v{VT+1}, 3, v{LANE}")
    k(f"v_and_b32 v{VT+2}, 4, v{VT+1}")
    k(f"v_bfe_u32 v{VT+3}, v{VT+1}, 1, 1\nv_or_b32 v{VT+2}, v{VT+2}, v{VT+3}")
    k(f"v_and_b32 v{VT+3}, 1, v{VT+1}\nv_lshl_or_b32 v{VT+2}, v{VT+3}, 1, v{VT+2}")
    k(f"v_mul_u32_u24 v{VT+2}, {4*6144}, v{VT+2}")
    k(f"v_and_b32 v{VT+3}, 7, v{LANE}\nv_lshl_add_u32 v{VT+2}, v{VT+3}, 4, v{VT+2}")
    k("s_lshl_b32 s82, s80, 5\ns_lshl_b32 s83, s81, 1\ns_add_u32 s82, s82, s83\ns_mul_i32 s82, s82, 6144")
    k(f"s_lshl_b32 s83, s{S_HP}, 7\ns_add_u32 s82, s82, s83")
    k(f"v_add_u32 v{V_DMA}, s82, v{VT+2}")
    k(f"v_add_u32 v{V_DMA+1}, 6144, v{V_DMA}\nv_add_u32 v{V_DMA+2}, 4096, v{V_DMA}\nv_add_u32 v{V_DMA+3}, {6144+4096}, v{V_DMA}")
    k(f"v_bfe_u32 v{VT+1}, v{LANE}, 2, 2\nv_mul_u32_u24 v{VT+1}, 1056, v{VT+1}")
    k(f"v_lshrrev_b32 v{VT+2}, 5, v{LANE}\nv_lshl_add_u32 v{VT+1}, v{VT+2}, 9, v{VT+1}")
    k(f"v_bfe_u32 v{VT+2}, v{LANE}, 4, 1\nv_lshl_add_u32 v{VT+1}, v{VT+2}, 7, v{VT+1}")
    k(f"v_and_b32 v{VT+3}, 3, v{LANE}\nv_lshl_add_u32 v{V_RD}, v{VT+3}, 3, v{VT+1}")
    k(f"v_add_u32 v{V_RD+1}, {2*STAGE}, v{V_RD}")
    k(f"s_lshl_b32 s82, s{S_RB1}, 3\ns_lshl_b32 s83, s{S_WAVE}, 1\ns_add_u32 s82, s82, s83\ns_lshl_b32 s82, s82, 15")
    k(f"v_add_u32 v{V_TOK}, s82, v{L16}\nv_add_u32 v{V_TOK+1}, 0x8000, v{V_TOK}")
    k(f"s_mul_i32 s{S_WB}, s80, 4224\ns_mul_i32 s82, s81, 2112\ns_add_u32 s{S_WB}, s{S_WB}, s82")
    c.NB, c.TB, c.KS, c.SPK, c.KT, c.NS, c.R = 12, 2, 1, 2, 16, NS, R
    c.acc = lambda b, t: vr((b * 2 + t) * 4, 4)
    c.tf = lambda slot, ks, t: 96 + (slot * 2 + t) * 4
    c.rd = lambda sl, b, sub, r: (V_RD + sl // 2, (sl % 2) * STAGE + (b // 4) * 8448 + sub * 4224 + r * 256 + (b % 4) * 32)
    c.slot_addr = lambda sl: sl * STAGE
    c.dma = [(V_DMA, 0, 0), (V_DMA + 1, 1056, 0), (V_DMA, 8448, 2048), (V_DMA + 1, 8448 + 1056, 2048), (V_DMA + 2, 16896, 0), (V_DMA + 3, 16896 + 1056, 0)]
    c.v_tok = [V_TOK, V_TOK + 1]
    c.w_stride = 64 * 6144
    c.drop = opt.get("g1_drop", ())
    c.pro_units, c.ramp_rate, c.read_margin = opt.get("g1_pro", 6), opt.get("g1_ramp", 6), opt.get("g1_rm", 6)
    std_sched(c)
    return c

A_UT = 176
def silu_block(k, regs):
    for v in regs: k(f"v_lshlrev_b32 v{v}, 16, v{v}\nv_mul_f32 v{v+1}, {-LOG2E!r}, v{v}")
    for v in regs: k(f"v_exp_f32 v{v+1}, v{v+1}")
    k("s_nop 0")
    for v in regs: k(f"v_add_f32 v{v+1}, 1.0, v{v+1}")
    for v in regs: k(f"v_rcp_f32 v{v+1}, v{v+1}")
    k("s_nop 0")
    for v in regs:
        k(f"v_mul_f32 v{v}, v{v}, v{v+1}"); round_bf16(k, v)

def modb_loads(s_off, v_w, v_c):
    out = []
    for i in range(8):
        out.append([f"buffer_load_dwordx4 {ar(A_UT+4*i,4)}, v{v_w}, {sr(SRD_D,4)}, s{s_off} offen", f"s_add_u32 s{s_off}, s{s_off}, {8*12288}"])
    return out

def red32(k, x, t):
    red8(k, x)
    k(f"s_nop 1\nv_add_f32_dpp v{x}, v{x}, v{x} row_mirror row_mask:0xf bank_mask:0xf")
    k(f"v_mov_b32 v{t}, v{x}\ns_nop 1\nv_permlane16_swap_b32 v{x}, v{t}\ns_nop 1\nv_add_f32 v{x}, v{x}, v{t}")

def ids(k):
    k("v_lshrrev_b32 v1, 6, v0")
    k(f"s_and_b32 s{S_XCD}, s2, 7\ns_lshr_b32 s{S_IDX}, s2, 3")
    k(f"v_readfirstlane_b32 s{S_WAVE}, v1")
    k(f"s_bfe_u32 s{S_RB1}, s{S_XCD}, 0x10001\ns_lshl_b32 s{S_RB1}, s{S_RB1}, 3\ns_lshr_b32 s80, s{S_IDX}, 2\ns_add_u32 s{S_RB1}, s{S_RB1}, s80")
    k(f"s_lshr_b32 s{S_HP}, s{S_XCD}, 2\ns_lshl_b32 s{S_HP}, s{S_HP}, 2\ns_and_b32 s80, s{S_IDX}, 3\ns_add_u32 s{S_HP}, s{S_HP}, s80\ns_lshl_b32 s{S_HP}, s{S_HP}, 1\ns_and_b32 s80, s{S_XCD}, 1\ns_add_u32 s{S_HP}, s{S_HP}, s80")

def build_k0(instr=False, opt=None, name="mod_kernel", mega="mega_kernel"):
    opt = opt or {}
    k = Kernel(name, 256, 256, 4096, vgpr=128, sgpr=102)
    k.instr = instr; k.s_wave = S_WAVE
    stamp(k, 0)
    end = k.label("end")
    k(f"s_cmp_ge_u32 s2, 256\ns_cbranch_scc1 {end}")
    k("s_load_dwordx4 s[12:15], s[0:1], 64")
    k("s_load_dwordx8 s[4:11], s[0:1], 0")
    k("s_load_dwordx2 s[28:29], s[0:1], 96")
    ids(k)
    LANE, T, V_W = 104, 48, 105
    WA, CA, XR, XF, A0, SU = 64, 80, 84, 0, 32, 100
    k(f"v_and_b32 v{LANE}, 63, v0")
    k(f"v_lshrrev_b32 v{T+1}, 3, v{LANE}\nv_and_b32 v{T+2}, 7, v{LANE}")
    k(f"v_mul_u32_u24 v{V_W}, 12288, v{T+1}\nv_lshl_add_u32 v{V_W}, v{T+2}, 4, v{V_W}")
    k(f"s_lshl_b32 s64, s{S_RB1}, 6\ns_lshl_b32 s65, s{S_WAVE}, 4\ns_add_u32 s64, s64, s65")
    k(f"v_add_u32 v{T+3}, s64, v{T+1}\nv_lshlrev_b32 v{T+3}, 1, v{T+3}")
    k(f"s_mul_i32 s67, s64, 12288\ns_lshl_b32 s66, s{S_HP}, 7\ns_add_u32 s67, s67, s66\ns_add_u32 s68, s67, {8*12288}")
    k(f"v_lshrrev_b32 v{T+4}, 5, v{LANE}\nv_lshlrev_b32 v{T+4}, 11, v{T+4}\nv_and_b32 v{T+5}, 31, v{LANE}\nv_lshl_add_u32 v{T+4}, v{T+5}, 4, v{T+4}")
    k(f"s_lshl_b32 s69, s{S_RB1}, 4\ns_add_u32 s69, s69, s{S_HP}")
    k(f"s_lshl_b32 s70, s69, 14\ns_lshl_b32 s71, s{S_WAVE}, 12\ns_add_u32 s70, s70, s71")
    k("s_waitcnt lgkmcnt(0)")
    srd(k, SRD_D, 14, D * 6 * D * 2)
    srd(k, SRD_A, P_X, S * D * 2)
    for i in range(2): k(f"global_load_ushort v{CA+2*i}, v{T+3}, s[12:13] offset:{i*16}")
    for i in range(2):
        for v in range(2): k(f"buffer_load_dwordx4 {vr(WA+(i*2+v)*4,4)}, v{V_W}, {sr(SRD_D,4)}, s{67+i} offen offset:{v*2048}")
    for i in range(4): k(f"buffer_load_dwordx4 {vr(XR+4*i,4)}, v{T+4}, {sr(SRD_A,4)}, s70 offen offset:{i*512}")
    stamp(k, 1)
    lab = k.label("pc")
    k(f"s_getpc_b64 s[60:61]\n{lab}:")
    k(f"s_add_u32 s60, s60, {mega}-{lab}\ns_addc_u32 s61, s61, 0")
    k(f"v_lshlrev_b32 v{T+6}, 4, v{LANE}")
    for x in code_prefetch_txt(mega, T + 6, T + 7, 62, s_pc=60, junk="v110"): k(x)
    srd(k, SRD_B, P_WS, MP_BYTES, WS_MODP)
    srd(k, SRD_F, P_WS, FLAG_BYTES, WS_FLAG)
    srd(k, SRD_C, P_WS, S * 128, WS_STAT)
    k(f"v_mov_b32 v{T+8}, 0\nv_lshlrev_b32 v{T+9}, 2, v0\ns_lshl_b32 s62, s2, 10\ns_add_u32 s63, s62, {MP_B}")
    k(f"v_lshlrev_b32 v{T+10}, {FS}, v0\ns_lshl_b32 s66, s2, {FS+8}")
    k(f"buffer_store_dword v{T+8}, v{T+10}, {sr(SRD_F,4)}, s66 offen")
    k(f"buffer_store_dword v{T+8}, v{T+9}, {sr(SRD_C,4)}, s62 offen")
    k(f"buffer_store_dword v{T+8}, v{T+9}, {sr(SRD_B,4)}, s63 offen")
    young = 4
    k(f"s_lshl_b32 s62, s2, 2\ns_add_u32 s62, s62, s{S_WAVE}")
    for ptr, per, tag in ((P_WQKV, 6, "t_wq"), (P_WO, 2, "t_wo"), (14, 12, "t_wm")):
        if not opt.get(tag, 1): continue
        k(f"s_mul_i32 s63, s62, {per*1024}\ns_add_u32 s63, s63, 384")
        k(f"v_min_u32 v{T+14}, {per-1}, v{LANE}\nv_lshlrev_b32 v{T+14}, 10, v{T+14}\nv_add_u32 v{T+14}, s63, v{T+14}")
        k(f"global_load_dword v110, v{T+14}, s[{ptr}:{ptr+1}]")
        young += 1
    k(f"s_waitcnt vmcnt({young + 8})")
    silu_block(k, [CA, CA + 2])
    k(f"s_waitcnt vmcnt({young + 4})")
    for i in range(2):
        for v in range(2):
            for d in range(4):
                w_ = WA + (i * 2 + v) * 4 + d
                k(f"v_lshlrev_b32 v{T+10}, 16, v{w_}\nv_and_b32 v{T+11}, 0xffff0000, v{w_}")
                if i == 0: k(f"v_pk_mul_f32 {vr(A0+v*8+2*d,2)}, {vr(T+10,2)}, {vr(CA,2)} op_sel_hi:[1,0]")
                else: k(f"v_pk_fma_f32 {vr(A0+v*8+2*d,2)}, {vr(T+10,2)}, {vr(CA+2,2)}, {vr(A0+v*8+2*d,2)} op_sel_hi:[1,0,1]")
    k("s_nop 1")
    for j in range(8): k(f"v_permlane32_swap_b32 v{A0+j}, v{A0+8+j}")
    k("s_nop 1")
    for j in range(8): k(f"v_add_f32 v{A0+j}, v{A0+j}, v{A0+8+j}")
    k("s_nop 1")
    for j in range(4): k(f"v_permlane16_swap_b32 v{A0+j}, v{A0+4+j}")
    k("s_nop 1")
    for j in range(4): k(f"v_add_f32 v{A0+j}, v{A0+j}, v{A0+4+j}")
    k("s_nop 1")
    for j in range(4): k(f"v_add_f32_dpp v{A0+j}, v{A0+j}, v{A0+j} row_ror:8 row_mask:0xf bank_mask:0xf")
    k(f"v_lshrrev_b32 v{T+12}, 5, v{LANE}\nv_lshlrev_b32 v{T+13}, 8, v{T+12}\nv_lshl_add_u32 v{T+13}, v{T+2}, 5, v{T+13}")
    k(f"v_bfe_u32 v{T+10}, v{LANE}, 4, 1\nv_lshl_add_u32 v{T+13}, v{T+10}, 4, v{T+13}\ns_lshl_b32 s62, s{S_WAVE}, 9\nv_add_u32 v{T+13}, s62, v{T+13}")
    k(f"ds_write_b128 v{T+13}, {vr(A0,4)}")
    k("s_waitcnt lgkmcnt(0)\ns_barrier")
    nw0 = k.label("notw0")
    k(f"s_cmp_lg_u32 s{S_WAVE}, 0\ns_cbranch_scc1 {nw0}")
    k(f"v_lshlrev_b32 v{T+13}, 3, v{LANE}")
    for w in range(4): k(f"ds_read_b64 {vr(A0+2*w,2)}, v{T+13} offset:{w*512}")
    k(f"s_lshl_b32 s62, s{S_HP}, 13\ns_lshl_b32 s63, s{S_RB1}, 9\ns_add_u32 s63, s63, s62")
    k("s_waitcnt lgkmcnt(0)")
    k(f"v_pk_add_f32 {vr(A0,2)}, {vr(A0,2)}, {vr(A0+2,2)}\nv_pk_add_f32 {vr(A0+4,2)}, {vr(A0+4,2)}, {vr(A0+6,2)}\nv_pk_add_f32 {vr(A0,2)}, {vr(A0,2)}, {vr(A0+4,2)}")
    k(f"buffer_store_dwordx2 {vr(A0,2)}, v{T+13}, {sr(SRD_B,4)}, s63 offen")
    k(f"{nw0}:")
    stamp(k, 2)
    k(f"s_waitcnt vmcnt({young})")
    for d in range(16): k(f"v_lshlrev_b32 v{XF+2*d}, 16, v{XR+d}\nv_and_b32 v{XF+2*d+1}, 0xffff0000, v{XR+d}")
    k(f"v_pk_add_f32 {vr(SU,2)}, {vr(XF,2)}, {vr(XF+2,2)}")
    for d in range(2, 16): k(f"v_pk_add_f32 {vr(SU,2)}, {vr(SU,2)}, {vr(XF+2*d,2)}")
    k(f"v_add_f32 v{SU}, v{SU}, v{SU+1}")
    red32(k, SU, SU + 1)
    k(f"v_mul_f32 v{SU+2}, {-1.0/1024!r}, v{SU}")
    k(f"v_mov_b32 v{SU}, 0\nv_mov_b32 v{SU+1}, 0")
    for d in range(16):
        k(f"v_pk_add_f32 {vr(XF+2*d,2)}, {vr(XF+2*d,2)}, {vr(SU+2,2)} op_sel_hi:[1,0]")
        k(f"v_pk_fma_f32 {vr(SU,2)}, {vr(XF+2*d,2)}, {vr(XF+2*d,2)}, {vr(SU,2)}")
    k(f"v_add_f32 v{SU}, v{SU}, v{SU+1}")
    red32(k, SU, SU + 1)
    k(f"v_mov_b32 v{SU+1}, 0x3727c5ac\nv_fmac_f32 v{SU+1}, {1.0/1024!r}, v{SU}\nv_rsq_f32 v{SU+3}, v{SU+1}")
    k(f"s_lshl_b32 s62, s69, 6\ns_lshl_b32 s63, s{S_WAVE}, 4\ns_add_u32 s62, s62, s63\ns_add_u32 s62, s62, {MP_RS}\nv_lshlrev_b32 v{T+12}, 3, v{T+12}")
    k(f"buffer_store_dwordx2 {vr(SU+2,2)}, v{T+12}, {sr(SRD_B,4)}, s62 offen")
    stamp(k, 3)
    if instr: k("s_waitcnt vmcnt(0)")
    stamp(k, 4)
    stamp_flush(k, 28, 5, 4, slot=1)
    k(f"{end}:\ns_endpgm")
    return k

def phase_front_fused(k, opt, name):
    LANE, L16 = 104, 105
    T = 48
    V_W, V_C = 115, 109
    WA, CA, XR, XT_, XF, A0, SU, G, M, RS = 64, 80, 128, 144, 0, 200, 216, 160, 32, 84
    HL = 2 * 25344
    k(f"v_lshrrev_b32 v{T+1}, 3, v{LANE}\nv_and_b32 v{T+2}, 7, v{LANE}")
    k(f"v_mul_u32_u24 v{V_W}, 12288, v{T+1}\nv_lshl_add_u32 v{V_W}, v{T+2}, 4, v{V_W}")
    k(f"s_lshl_b32 s84, s{S_RB1}, 6")
    k(f"v_add_u32 v{V_C}, s84, v{T+1}\nv_lshlrev_b32 v{V_C}, 1, v{V_C}")
    k(f"s_lshl_b32 s85, s{S_WAVE}, 5\nv_add_u32 v{T+3}, s85, v{V_C}")
    k(f"s_mul_i32 s86, s84, 12288\ns_lshl_b32 s87, s{S_HP}, 7\ns_add_u32 s86, s86, s87")
    k(f"s_mul_i32 s87, s{S_WAVE}, {16*12288}\ns_add_u32 s87, s87, s86\ns_add_u32 s88, s87, {8*12288}")
    k(f"v_lshrrev_b32 v{T+4}, 5, v{LANE}\nv_lshlrev_b32 v{T+4}, 11, v{T+4}\nv_and_b32 v{T+5}, 31, v{LANE}\nv_lshl_add_u32 v{T+4}, v{T+5}, 4, v{T+4}")
    k(f"s_lshl_b32 s89, s{S_RB1}, 4\ns_add_u32 s89, s89, s{S_HP}")
    k(f"s_lshl_b32 s90, s89, 14\ns_lshl_b32 s91, s{S_WAVE}, 12\ns_add_u32 s90, s90, s91")
    k(f"v_mov_b32 v{T+8}, 0\nv_mov_b32 v{T+9}, 0\nv_mov_b32 v{T+10}, 0\nv_mov_b32 v{T+11}, 0\nv_mov_b32 v{T+12}, 1")
    k(f"v_lshlrev_b32 v{T+7}, {FS}, v{LANE}")
    k(f"s_lshl_b32 s93, s2, {FS+6}\ns_add_u32 s93, s93, {F_S0}\ns_cmp_lt_u32 s2, 4\ns_cselect_b32 s93, s93, 0x7ff00000\ns_cmp_eq_u32 s{S_WAVE}, 3\ns_cselect_b32 s93, s93, 0x7ff00000")
    k("s_waitcnt lgkmcnt(0)")
    srd(k, SRD_F, P_WS, FLAG_BYTES, WS_FLAG)
    k(f"buffer_store_dword v{T+8}, v{T+7}, {sr(SRD_F,4)}, s93 offen sc1")
    k(f"s_mov_b32 s{SRD_T}, s{P_DBG}\ns_mov_b32 s{SRD_T+1}, s{P_DBG+1}\ns_mov_b32 s{SRD_T+2}, 256\ns_mov_b32 s{SRD_T+3}, 0x20000")
    k("s_mov_b32 s95, s93")
    srd(k, SRD_D, P_WMOD, D * 6 * D * 2)
    srd(k, SRD_A, P_X, S * D * 2)
    for i in range(2): k(f"global_load_ushort v{CA+2*i}, v{T+3}, s[{P_C}:{P_C+1}] offset:{i*16}")
    for i in range(2):
        for v in range(2): k(f"buffer_load_dwordx4 {vr(WA+(i*2+v)*4,4)}, v{V_W}, {sr(SRD_D,4)}, s{87+i} offen offset:{v*2048}")
    for i in range(4): k(f"buffer_load_dwordx4 {vr(XR+4*i,4)}, v{T+4}, {sr(SRD_A,4)}, s90 offen offset:{i*512}")
    k.stamp("loads issued")
    srd(k, SRD_B, P_WS, MP_BYTES, WS_MODP)
    srd(k, SRD_C, P_WS, S * 128, WS_STAT)
    w3, jn = k.label("w3"), k.label("join")
    k(f"s_cmp_eq_u32 s{S_WAVE}, 3\ns_cbranch_scc1 {w3}")
    k(f"s_lshl_b32 s92, s2, 1\ns_add_u32 s92, s92, s{S_WAVE}\ns_sub_u32 s92, s92, 1")
    nt_ = k.label("notouch")
    k("s_mov_b32 s93, 0x7ff00000")
    for i in range(2): k(f"buffer_load_dword a233, v{V_W}, {sr(SRD_D,4)}, s93 offen")
    k(f"s_cmp_eq_u32 s{S_WAVE}, 0\ns_cbranch_scc1 {nt_}")
    for ptr, per in ((P_WQKV, 12), (P_WO, 4), (P_WMOD, 24)):
        k(f"s_mul_i32 s93, s92, {per}\nv_min_u32 v{T+14}, {per-1}, v{LANE}\nv_add_u32 v{T+14}, s93, v{T+14}")
        k(f"v_lshlrev_b32 v{T+14}, 10, v{T+14}")
        k(f"global_load_dword a232, v{T+14}, s[{ptr}:{ptr+1}] offset:384")
    k(f"s_branch {jn}")
    k(f"{nt_}:")
    for i in range(3): k(f"buffer_load_dword a233, v{V_W}, {sr(SRD_D,4)}, s93 offen")
    k(f"s_branch {jn}")
    k(f"{w3}:")
    nb = k.label("nboot")
    k(f"s_cmp_eq_u32 s95, 0x7ff00000\ns_cbranch_scc1 {nb}")
    k("s_lshl_b32 s93, s2, 2\ns_waitcnt vmcnt(10)")
    k(f"buffer_store_dword v{T+12}, v{T+8}, {sr(SRD_T,4)}, s93 offen sc1")
    k(f"{nb}:")
    k(f"v_and_b32 v{T+14}, 3, v{LANE}\nv_lshlrev_b32 v{T+14}, 4, v{T+14}")
    k(f"s_lshl_b32 s93, s{S_RB1}, 6\ns_add_u32 s93, s93, s{S_HP}\nv_add_u32 v{T+15}, s93, v{T+14}")
    k(f"s_lshl_b32 s93, s{S_HP}, 6\ns_add_u32 s93, s93, s{S_RB1}\ns_add_u32 s93, s93, 1024\nv_add_u32 v{T+14}, s93, v{T+14}")
    k(f"v_cmp_gt_u32 vcc, 4, v{LANE}\ns_mul_i32 s93, s2, 20\ns_add_u32 s93, s93, 2040")
    k(f"v_cndmask_b32 v{T+14}, v{T+14}, v{T+15}, vcc\nv_add_u32 v{T+15}, s93, v{LANE}")
    k(f"v_cmp_gt_u32 vcc, 8, v{LANE}\ns_nop 1\nv_cndmask_b32 v{T+14}, v{T+15}, v{T+14}, vcc")
    k(f"v_cmp_gt_u32 vcc, 28, v{LANE}\nv_mov_b32 v{T+15}, 0x100000\ns_nop 0\nv_cndmask_b32 v{T+14}, v{T+15}, v{T+14}, vcc")
    k(f"v_lshlrev_b32 v{T+14}, {FS}, v{T+14}")
    k(f"buffer_store_dword v{T+8}, v{T+14}, {sr(SRD_F,4)}, 0 offen sc1")
    k("s_mov_b32 s93, 0x7ff00000")
    for i in range(2): k(f"buffer_load_dword a233, v{V_W}, {sr(SRD_D,4)}, s93 offen")
    k("s_lshl_b32 s93, s2, 10")
    k(f"buffer_store_dwordx4 {vr(T+8,4)}, v{L16}, {sr(SRD_C,4)}, s93 offen sc1")
    k(f"s_add_u32 s93, s93, {MP_B}")
    k(f"buffer_store_dwordx4 {vr(T+8,4)}, v{L16}, {sr(SRD_B,4)}, s93 offen sc1")
    k(f"{jn}:")
    k(f"v_lshlrev_b32 v{T+5}, 11, v{T+1}\nv_lshl_add_u32 v{T+5}, v{T+2}, 4, v{T+5}")
    k(f"s_lshl_b32 s91, s{S_RB1}, 18\ns_lshl_b32 s92, s{S_WAVE}, 16\ns_add_u32 s91, s91, s92\ns_lshl_b32 s92, s{S_HP}, 7\ns_add_u32 s91, s91, s92")
    for i in range(4):
        k(f"buffer_load_dwordx4 {vr(XT_+4*i,4)}, v{T+5}, {sr(SRD_A,4)}, s91 offen")
        if i < 3: k("s_add_u32 s91, s91, 16384")
    k(f"s_lshl_b32 s94, s{S_WAVE}, 11\ns_add_u32 s{S_MB}, s86, s94\ns_add_u32 s{S_MB}, s{S_MB}, 4096")
    k(f"s_lshl_b32 s94, s{S_WAVE}, 16\ns_lshl_b32 s95, s{S_HP}, 12\ns_add_u32 s94, s94, s95\ns_lshl_b32 s95, s{S_RB1}, 8\ns_add_u32 s94, s94, s95\ns_add_u32 s{S_MO}, s94, {MP_B}")
    young = 9
    k.stamp("all issued")
    k(f"s_waitcnt vmcnt({young + 8})")
    k.stamp("c ready")
    silu_block(k, [CA, CA + 2])
    k(f"s_waitcnt vmcnt({young + 4})")
    k.stamp("w ready")
    for i in range(2):
        for v in range(2):
            for d in range(4):
                w_ = WA + (i * 2 + v) * 4 + d
                k(f"v_lshlrev_b32 v{T+14}, 16, v{w_}\nv_and_b32 v{T+15}, 0xffff0000, v{w_}")
                if i == 0: k(f"v_pk_mul_f32 {vr(A0+v*8+2*d,2)}, {vr(T+14,2)}, {vr(CA,2)} op_sel_hi:[1,0]")
                else: k(f"v_pk_fma_f32 {vr(A0+v*8+2*d,2)}, {vr(T+14,2)}, {vr(CA+2,2)}, {vr(A0+v*8+2*d,2)} op_sel_hi:[1,0,1]")
    k("s_nop 1")
    for j in range(8): k(f"v_permlane32_swap_b32 v{A0+j}, v{A0+8+j}")
    k("s_nop 1")
    for j in range(8): k(f"v_add_f32 v{A0+j}, v{A0+j}, v{A0+8+j}")
    k("s_nop 1")
    for j in range(4): k(f"v_permlane16_swap_b32 v{A0+j}, v{A0+4+j}")
    k("s_nop 1")
    for j in range(4): k(f"v_add_f32 v{A0+j}, v{A0+j}, v{A0+4+j}")
    k("s_nop 1")
    for j in range(4): k(f"v_add_f32_dpp v{A0+j}, v{A0+j}, v{A0+j} row_ror:8 row_mask:0xf bank_mask:0xf")
    k(f"v_lshrrev_b32 v{T+13}, 5, v{LANE}\nv_lshlrev_b32 v{T+14}, 8, v{T+13}\nv_lshl_add_u32 v{T+14}, v{T+2}, 5, v{T+14}")
    k(f"v_bfe_u32 v{T+15}, v{LANE}, 4, 1\nv_lshl_add_u32 v{T+14}, v{T+15}, 4, v{T+14}\ns_lshl_b32 s94, s{S_WAVE}, 9\nv_add_u32 v{T+14}, s94, v{T+14}")
    k(f"ds_write_b128 v{T+14}, {vr(A0,4)} offset:{HL}")
    k(f"s_waitcnt vmcnt({young})")
    for d in range(16): k(f"v_lshlrev_b32 v{XF+2*d}, 16, v{XR+d}\nv_and_b32 v{XF+2*d+1}, 0xffff0000, v{XR+d}")
    k(f"v_pk_add_f32 {vr(SU,2)}, {vr(XF,2)}, {vr(XF+2,2)}")
    for d in range(2, 16): k(f"v_pk_add_f32 {vr(SU,2)}, {vr(SU,2)}, {vr(XF+2*d,2)}")
    k(f"v_add_f32 v{SU}, v{SU}, v{SU+1}")
    red32(k, SU, SU + 1)
    k(f"v_mul_f32 v{SU+2}, {-1.0/1024!r}, v{SU}")
    k(f"v_mov_b32 v{SU}, 0\nv_mov_b32 v{SU+1}, 0")
    for d in range(16):
        k(f"v_pk_add_f32 {vr(XF+2*d,2)}, {vr(XF+2*d,2)}, {vr(SU+2,2)} op_sel_hi:[1,0]")
        k(f"v_pk_fma_f32 {vr(SU,2)}, {vr(XF+2*d,2)}, {vr(XF+2*d,2)}, {vr(SU,2)}")
    k(f"v_add_f32 v{SU}, v{SU}, v{SU+1}")
    red32(k, SU, SU + 1)
    k(f"v_mov_b32 v{SU+1}, 0x3727c5ac\nv_fmac_f32 v{SU+1}, {1.0/1024!r}, v{SU}\nv_rsq_f32 v{SU+3}, v{SU+1}")
    k(f"s_lshl_b32 s94, s{S_WAVE}, 4\nv_lshlrev_b32 v{T+13}, 3, v{T+13}\nv_add_u32 v{T+13}, s94, v{T+13}")
    k(f"ds_write_b64 v{T+13}, {vr(SU+2,2)} offset:{HL+2048}")
    n3 = k.label("not3")
    k(f"s_cmp_lg_u32 s{S_WAVE}, 3\ns_cbranch_scc1 {n3}")
    k(f"v_and_b32 v{T+14}, 3, v{LANE}\nv_lshlrev_b32 v{T+14}, 2, v{T+14}")
    spin(k, [f"buffer_load_dword v{T+13}, v{T+14}, {sr(SRD_T,4)}, 0 offen sc1"], [T + 13], 0)
    k(f"{n3}:")
    k("s_waitcnt lgkmcnt(0)\ns_barrier")
    k.stamp("partials")
    nw0 = k.label("notw0")
    k(f"v_lshlrev_b32 v{T+6}, 3, v{LANE}")
    k(f"s_cmp_lg_u32 s{S_WAVE}, 0\ns_cbranch_scc1 {nw0}")
    for w in range(4): k(f"ds_read_b64 {vr(A0+2*w,2)}, v{T+6} offset:{HL+w*512}")
    k(f"v_and_b32 v{T+9}, 0x38, v{T+6}")
    k(f"ds_read_b64 {vr(A0+8,2)}, v{T+9} offset:{HL+2048}")
    k(f"s_lshl_b32 s94, s{S_HP}, 13\ns_lshl_b32 s95, s{S_RB1}, 9\ns_add_u32 s95, s95, s94")
    k(f"s_lshl_b32 s90, s89, 6\ns_add_u32 s90, s90, {MP_RS}")
    k("s_waitcnt lgkmcnt(0)")
    k(f"v_pk_add_f32 {vr(A0,2)}, {vr(A0,2)}, {vr(A0+2,2)}\nv_pk_add_f32 {vr(A0+4,2)}, {vr(A0+4,2)}, {vr(A0+6,2)}\nv_pk_add_f32 {vr(A0,2)}, {vr(A0,2)}, {vr(A0+4,2)}")
    k(f"buffer_store_dwordx2 {vr(A0,2)}, v{T+6}, {sr(SRD_B,4)}, s95 offen sc1")
    k(f"buffer_store_dwordx2 {vr(A0+8,2)}, v{T+9}, {sr(SRD_B,4)}, s90 offen sc1")
    k(f"s_lshl_b32 s90, s89, {FS}\ns_add_u32 s90, s90, {F_S0}")
    k("s_waitcnt vmcnt(0)")
    k(f"buffer_store_dword v{T+12}, v{T+8}, {sr(SRD_F,4)}, s90 offen sc1")
    if opt.get("modb_front", 0):
        sk_ = k.label("skmf")
        k(f"s_branch {sk_}")
        k(f"{nw0}:")
        k("s_waitcnt vmcnt(0)")
        for g in modb_loads(S_MB, V_W, V_C):
            for x in g: k(x)
        k(f"s_mov_b32 s{S_MB}, 0x7ff00000")
        k(f"{sk_}:")
    else:
        k(f"{nw0}:")
    k.stamp("s0 published")
    g1 = setup_gemm1(k, opt)
    srd(k, SRD_W, P_WQKV, D * 3 * D * 2)
    if not opt.get("modb_front", 0):
        k("s_waitcnt vmcnt(1)")
        k(f"s_cmp_eq_u32 s{S_WAVE}, 0\ns_cbranch_scc1 1\ns_waitcnt vmcnt(0)")
    for d in range(16): k(f"v_lshlrev_b32 v{XF+2*d}, 16, v{XT_+d}\nv_and_b32 v{XF+2*d+1}, 0xffff0000, v{XT_+d}")
    VS = T + 4
    k(f"v_lshrrev_b32 v{VS}, 2, v{T+2}\nv_lshlrev_b32 v{VS}, 10, v{VS}")
    k(f"v_and_b32 v{T+3}, 3, v{T+2}\nv_lshl_add_u32 v{VS}, v{T+3}, 8, v{VS}\nv_lshl_add_u32 v{VS}, v{T+1}, 4, v{VS}")
    k(f"s_lshl_b32 s86, s{S_RB1}, 3\ns_lshl_b32 s87, s{S_WAVE}, 1\ns_add_u32 s86, s86, s87\ns_lshl_b32 s86, s86, 15\ns_lshl_b32 s87, s{S_HP}, 11\ns_add_u32 s86, s86, s87\ns_add_u32 s87, s86, 0x8000")
    k(f"s_lshl_b32 s88, s{S_RB1}, 2\ns_add_u32 s88, s88, s{S_WAVE}\ns_lshl_b32 s88, s88, {FS+4}\ns_add_u32 s88, s88, {F_H}\ns_lshl_b32 s89, s{S_HP}, {FS}\ns_add_u32 s89, s89, s88")
    k(f"v_lshlrev_b32 v{T+5}, 5, v{T+2}")
    k(f"s_lshl_b32 s92, s{S_WAVE}, 8\nv_lshlrev_b32 v{T+7}, 3, v{T+1}\nv_add_u32 v{T+7}, s92, v{T+7}")
    nw1 = k.label("notw0b")
    k(f"s_cmp_lg_u32 s{S_WAVE}, 0\ns_cbranch_scc1 {nw1}")
    k(f"v_and_b32 v{T+9}, 15, v{LANE}\ns_lshl_b32 s92, s{S_RB1}, 4\nv_add_u32 v{T+10}, s92, v{T+9}\nv_lshlrev_b32 v{T+9}, 4, v{T+9}\nv_add_u32 v{T+9}, s{S_HP}, v{T+9}")
    k(f"v_and_b32 v{T+11}, 16, v{LANE}\nv_cmp_eq_u32 vcc, 0, v{T+11}\ns_mov_b32 s92, {F_S0}\ns_nop 0")
    k(f"v_cndmask_b32 v{T+9}, v{T+9}, v{T+10}, vcc\nv_lshlrev_b32 v{T+9}, {FS}, v{T+9}")
    spin(k, [f"buffer_load_dword v{T+13}, v{T+9}, {sr(SRD_F,4)}, s92 offen sc1"], [T + 13], 0)
    k(f"s_lshl_b32 s94, s{S_HP}, 13\ns_add_u32 s95, s94, 4096")
    for p_ in range(16): k(f"buffer_load_dwordx2 {vr(G+2*p_,2)}, v{T+6}, {sr(SRD_B,4)}, s{94+p_//8} offen offset:{(p_%8)*512} sc1")
    k(f"s_lshl_b32 s90, s{S_RB1}, 10\ns_add_u32 s90, s90, {MP_RS}")
    k(f"buffer_load_dwordx4 {vr(A0+8,4)}, v{L16}, {sr(SRD_B,4)}, s90 offen sc1")
    k(f"v_cmp_lt_u32 vcc, 31, v{LANE}")
    k("s_waitcnt vmcnt(1)")
    for st in (8, 4, 2, 1):
        for j in range(st): k(f"v_pk_add_f32 {vr(G+2*j,2)}, {vr(G+2*j,2)}, {vr(G+2*(j+st),2)}")
    k(f"v_cvt_pk_bf16_f32 v{G+2}, v{G}, v{G+1}\nv_lshlrev_b32 v{G}, 16, v{G+2}\nv_and_b32 v{G+1}, 0xffff0000, v{G+2}")
    k(f"v_pk_add_f32 {vr(G+4,2)}, {vr(G,2)}, 1.0 op_sel_hi:[1,0]")
    k(f"v_cvt_pk_bf16_f32 v{G+2}, v{G+4}, v{G+5}\nv_lshlrev_b32 v{G+4}, 16, v{G+2}\nv_and_b32 v{G+5}, 0xffff0000, v{G+2}")
    k(f"v_cndmask_b32 v{G}, v{G}, v{G+4}, vcc\nv_cndmask_b32 v{G+1}, v{G+1}, v{G+5}, vcc")
    k(f"ds_write_b64 v{T+6}, {vr(G,2)} offset:{HL+4096}")
    k("s_waitcnt vmcnt(0)")
    k(f"ds_write_b128 v{L16}, {vr(A0+8,4)} offset:{HL+5120}")
    k("s_waitcnt lgkmcnt(0)")
    k(f"{nw1}:")
    g1.prefetch(k, opt.get("h_pre0", 0))
    srd(k, SRD_T, P_WS, S * D * 2, WS_H)
    k("s_barrier")
    k.stamp("s0 ready")
    for h in range(2): k(f"ds_read_b128 {vr(M+4*h,4)}, v{T+5} offset:{HL+4096+h*16}\nds_read_b128 {vr(M+8+4*h,4)}, v{T+5} offset:{HL+4096+256+h*16}")
    for i in range(4): k(f"ds_read_b64 {vr(RS+2*i,2)}, v{T+7} offset:{HL+5120+i*64}")
    k("s_waitcnt lgkmcnt(0)")
    for i in range(4):
        for j in range(4): k(f"v_pk_add_f32 {vr(XF+8*i+2*j,2)}, {vr(XF+8*i+2*j,2)}, {vr(RS+2*i,2)} op_sel_hi:[1,0]")
        for j in range(4): k(f"v_pk_mul_f32 {vr(XF+8*i+2*j,2)}, {vr(XF+8*i+2*j,2)}, {vr(RS+2*i,2)} op_sel:[0,1] op_sel_hi:[1,1]")
        for j in range(4): k(f"v_pk_fma_f32 {vr(XF+8*i+2*j,2)}, {vr(XF+8*i+2*j,2)}, {vr(M+8+2*j,2)}, {vr(M+2*j,2)}")
        for j in range(4): k(f"v_cvt_pk_bf16_f32 v{XR+4*i+j}, v{XF+8*i+2*j}, v{XF+8*i+2*j+1}")
        k(f"buffer_store_dwordx4 {vr(XR+4*i,4)}, v{VS}, {sr(SRD_T,4)}, s{86 + i//2} offen offset:{(i%2)*128} sc1")
    k.stamp("h computed")
    mk = len(k.L)
    g1.prefetch(k, opt.get("h_pre1a", 6))
    publish(k, 89, T, mk)
    k.stamp("h published")
    g1.prefetch(k, opt.get("h_pre1", 6))
    k.g3 = setup_gemm3_early(k, opt, LANE, 56)
    for i in range(8): k(f"global_load_ushort {ar(A_UT+32+i,1)}, v{V_C}, s[{P_C}:{P_C+1}] offset:{i*16}")
    k(f"v_and_b32 v252, 15, v{LANE}\nv_lshlrev_b32 v252, {FS}, v252\ns_mov_b32 s93, s88")
    staged_wait(k, g1, opt.get("g1_T", 4), 252, 93, 253, one_prod)
    k.stamp("h ready")
    return g1

def phase_front(k, opt, name):
    LANE, L16 = 104, 105
    T = 48
    V_W, V_C = 115, 109
    RS, XR, XT_, XF, G, M = 64, 128, 144, 0, 160, 32
    HL = 2 * 25344
    k(f"v_and_b32 v{LANE}, 63, v0")
    k(f"v_lshrrev_b32 v{T+1}, 3, v{LANE}\nv_and_b32 v{T+2}, 7, v{LANE}")
    k(f"v_lshlrev_b32 v{T+5}, 11, v{T+1}\nv_lshl_add_u32 v{T+5}, v{T+2}, 4, v{T+5}")
    k(f"s_lshl_b32 s91, s{S_RB1}, 18\ns_lshl_b32 s92, s{S_WAVE}, 16\ns_add_u32 s91, s91, s92\ns_lshl_b32 s92, s{S_HP}, 7\ns_add_u32 s91, s91, s92")
    k(f"v_lshlrev_b32 v{T+8}, 3, v{LANE}\nv_lshlrev_b32 v{T+6}, 3, v{T+1}")
    k(f"s_lshl_b32 s94, s{S_HP}, 13\ns_add_u32 s95, s94, 4096")
    k(f"s_lshl_b32 s90, s{S_RB1}, 10\ns_lshl_b32 s93, s{S_WAVE}, 8\ns_add_u32 s90, s90, s93\ns_add_u32 s90, s90, {MP_RS}")
    k("s_waitcnt lgkmcnt(0)")
    srd(k, SRD_B, P_WS, MP_BYTES, WS_MODP)
    srd(k, SRD_A, P_X, S * D * 2)
    for p_ in range(16): k(f"buffer_load_dwordx2 {vr(G+2*p_,2)}, v{T+8}, {sr(SRD_B,4)}, s{94+p_//8} offen offset:{(p_%8)*512}")
    for i in range(4): k(f"buffer_load_dwordx2 {vr(RS+2*i,2)}, v{T+6}, {sr(SRD_B,4)}, s90 offen offset:{i*64}")
    for i in range(4):
        k(f"buffer_load_dwordx4 {vr(XT_+4*i,4)}, v{T+5}, {sr(SRD_A,4)}, s91 offen")
        if i < 3: k("s_add_u32 s91, s91, 16384")
    k.stamp("loads issued")
    def touch(ptr, per, vt, off=0):
        k(f"s_lshl_b32 s80, s2, 2\ns_add_u32 s80, s80, s{S_WAVE}\ns_mul_i32 s80, s80, {per*128}")
        if off: k(f"s_add_u32 s80, s80, {off}")
        k(f"v_min_u32 v{vt}, {per-1}, v{LANE}\nv_lshlrev_b32 v{vt}, 7, v{vt}\nv_add_u32 v{vt}, s80, v{vt}")
        k(f"global_load_dword a232, v{vt}, s[{ptr}:{ptr+1}]")
    nt0 = 0
    if opt.get("m_touch", 0) == 1: touch(P_WQKV, 48, 254); nt0 = 1
    g1 = setup_gemm1(k, opt)
    srd(k, SRD_W, P_WQKV, D * 3 * D * 2)
    n0 = opt.get("h_pre0", 6)
    g1.prefetch(k, n0)
    n0 += nt0
    srd(k, SRD_F, P_WS, FLAG_BYTES, WS_FLAG)
    srd(k, SRD_T, P_WS, S * D * 2, WS_H)
    VS = T + 4
    k(f"v_lshrrev_b32 v{VS}, 2, v{T+2}\nv_lshlrev_b32 v{VS}, 10, v{VS}")
    k(f"v_and_b32 v{T+3}, 3, v{T+2}\nv_lshl_add_u32 v{VS}, v{T+3}, 8, v{VS}\nv_lshl_add_u32 v{VS}, v{T+1}, 4, v{VS}")
    k(f"s_lshl_b32 s86, s{S_RB1}, 3\ns_lshl_b32 s87, s{S_WAVE}, 1\ns_add_u32 s86, s86, s87\ns_lshl_b32 s86, s86, 15\ns_lshl_b32 s87, s{S_HP}, 11\ns_add_u32 s86, s86, s87\ns_add_u32 s87, s86, 0x8000")
    k(f"s_lshl_b32 s88, s{S_WAVE}, 9\nv_add_u32 v{T+8}, s88, v{T+8}\nv_lshlrev_b32 v{T+5}, 5, v{T+2}\nv_add_u32 v{T+5}, s88, v{T+5}")
    k(f"s_lshl_b32 s88, s{S_RB1}, 2\ns_add_u32 s88, s88, s{S_WAVE}\ns_lshl_b32 s88, s88, {FS+4}\ns_add_u32 s88, s88, {F_H}\ns_lshl_b32 s89, s{S_HP}, {FS}\ns_add_u32 s89, s89, s88")
    k(f"v_cmp_lt_u32 vcc, 31, v{LANE}")
    k(f"s_waitcnt vmcnt({8 + n0})")
    for st in (8, 4, 2, 1):
        for j in range(st): k(f"v_pk_add_f32 {vr(G+2*j,2)}, {vr(G+2*j,2)}, {vr(G+2*(j+st),2)}")
    k(f"v_cvt_pk_bf16_f32 v{G+2}, v{G}, v{G+1}\nv_lshlrev_b32 v{G}, 16, v{G+2}\nv_and_b32 v{G+1}, 0xffff0000, v{G+2}")
    k(f"v_pk_add_f32 {vr(G+4,2)}, {vr(G,2)}, 1.0 op_sel_hi:[1,0]")
    k(f"v_cvt_pk_bf16_f32 v{G+2}, v{G+4}, v{G+5}\nv_lshlrev_b32 v{G+4}, 16, v{G+2}\nv_and_b32 v{G+5}, 0xffff0000, v{G+2}")
    k(f"v_cndmask_b32 v{G}, v{G}, v{G+4}, vcc\nv_cndmask_b32 v{G+1}, v{G+1}, v{G+5}, vcc")
    k(f"ds_write_b64 v{T+8}, {vr(G,2)} offset:{HL}")
    k("s_waitcnt lgkmcnt(0)")
    for h in range(2): k(f"ds_read_b128 {vr(M+4*h,4)}, v{T+5} offset:{HL+h*16}\nds_read_b128 {vr(M+8+4*h,4)}, v{T+5} offset:{HL+256+h*16}")
    for i in range(4):
        k(f"s_waitcnt vmcnt({3 - i + n0})")
        for d in range(4): k(f"v_lshlrev_b32 v{XF+8*i+2*d}, 16, v{XT_+4*i+d}\nv_and_b32 v{XF+8*i+2*d+1}, 0xffff0000, v{XT_+4*i+d}")
        for j in range(4): k(f"v_pk_add_f32 {vr(XF+8*i+2*j,2)}, {vr(XF+8*i+2*j,2)}, {vr(RS+2*i,2)} op_sel_hi:[1,0]")
        for j in range(4): k(f"v_pk_mul_f32 {vr(XF+8*i+2*j,2)}, {vr(XF+8*i+2*j,2)}, {vr(RS+2*i,2)} op_sel:[0,1] op_sel_hi:[1,1]")
    k("s_waitcnt lgkmcnt(0)")
    for i in range(4):
        for j in range(4): k(f"v_pk_fma_f32 {vr(XF+8*i+2*j,2)}, {vr(XF+8*i+2*j,2)}, {vr(M+8+2*j,2)}, {vr(M+2*j,2)}")
        for j in range(4): k(f"v_cvt_pk_bf16_f32 v{XR+4*i+j}, v{XF+8*i+2*j}, v{XF+8*i+2*j+1}")
        k(f"buffer_store_dwordx4 {vr(XR+4*i,4)}, v{VS}, {sr(SRD_T,4)}, s{86 + i//2} offen offset:{(i%2)*128} sc1")
    k.stamp("h computed")
    code_prefetch_setup(k, name)
    srd(k, SRD_D, P_WMOD, D * 6 * D * 2)
    k(f"v_mul_u32_u24 v{V_W}, 12288, v{T+1}\nv_lshl_add_u32 v{V_W}, v{T+2}, 4, v{V_W}")
    k(f"s_lshl_b32 s84, s{S_RB1}, 6\nv_add_u32 v{V_C}, s84, v{T+1}\nv_lshlrev_b32 v{V_C}, 1, v{V_C}")
    k(f"s_mul_i32 s86, s84, 12288\ns_lshl_b32 s87, s{S_HP}, 7\ns_add_u32 s86, s86, s87")
    k(f"s_lshl_b32 s94, s{S_WAVE}, 11\ns_add_u32 s{S_MB}, s86, s94\ns_add_u32 s{S_MB}, s{S_MB}, 4096")
    k(f"s_lshl_b32 s94, s{S_WAVE}, 16\ns_lshl_b32 s95, s{S_HP}, 12\ns_add_u32 s94, s94, s95\ns_lshl_b32 s95, s{S_RB1}, 8\ns_add_u32 s94, s94, s95\ns_add_u32 s{S_MO}, s94, {MP_B}")
    k.g3 = setup_gemm3_early(k, opt, LANE, 56)
    publish(k, 89, T)
    k.stamp("h published")
    if opt.get("m_touch", 0) == 2: touch(P_WQKV, 48, 254)
    k("s_barrier")
    g1.prefetch(k, opt.get("h_pre1", 12))
    for i in range(8): k(f"global_load_ushort {ar(A_UT+32+i,1)}, v{V_C}, s[{P_C}:{P_C+1}] offset:{i*16}")
    k(f"v_and_b32 v252, 15, v{LANE}\nv_lshlrev_b32 v252, {FS}, v252\ns_mov_b32 s93, s88")
    staged_wait(k, g1, opt.get("g1_T", 4), 252, 93, 253, one_prod)
    k.stamp("h ready")
    return g1

def setup_gemm24(k, which, opt, base):
    c = Sched(); common_gemm(c)
    K = 1024 if which == 2 else 3584
    NS, R = 4, opt.get(f"g{which}_R", 4)
    STAGE = 8448
    V_RD, V_DMA, V_TOK, LANE, L16, VT = base, base + 1, base + 2, base + 4, base + 5, base + 6
    c.LANE, c.L16 = LANE, L16
    lane_id(k, LANE)
    k(f"v_lshlrev_b32 v{L16}, 4, v{LANE}")
    order(c, k, opt, "g2", ["win", [1, 1, 2, 4, 8], 1])
    k(f"s_lshr_b32 s80, s{S_WAVE}, 1\ns_and_b32 s81, s{S_WAVE}, 1")
    k("s_lshl_b32 s82, s80, 5\ns_lshl_b32 s83, s81, 1\ns_add_u32 s82, s82, s83\ns_lshl_b32 s82, s82, 11")
    k(f"s_lshl_b32 s83, s{S_NT}, 7\ns_add_u32 s82, s82, s83")
    k(f"v_lshrrev_b32 v{VT}, 3, v{LANE}\nv_lshlrev_b32 v{VT}, 13, v{VT}")
    k(f"v_and_b32 v{VT+1}, 7, v{LANE}\nv_lshl_add_u32 v{VT}, v{VT+1}, 4, v{VT}")
    k(f"v_add_u32 v{V_DMA}, s82, v{VT}")
    k(f"v_bfe_u32 v{VT}, v{LANE}, 2, 2\nv_mul_u32_u24 v{VT}, 1056, v{VT}")
    k(f"v_lshrrev_b32 v{VT+1}, 4, v{LANE}\nv_lshl_add_u32 v{VT}, v{VT+1}, 7, v{VT}")
    k(f"v_and_b32 v{VT+1}, 3, v{LANE}\nv_lshl_add_u32 v{V_RD}, v{VT+1}, 3, v{VT}")
    k(f"v_add_u32 v{V_RD}, {L_R2}, v{V_RD}")
    k(f"s_lshl_b32 s82, s{S_RB2}, 3\ns_lshl_b32 s83, s{S_WAVE}, 1\ns_add_u32 s82, s82, s83\ns_mul_i32 s82, s82, {K//32*1024}")
    k(f"v_add_u32 v{V_TOK}, s82, v{L16}\nv_add_u32 v{V_TOK+1}, {K//32*1024}, v{V_TOK}")
    k(f"s_mul_i32 s{S_WB}, s80, 4224\ns_mul_i32 s82, s81, 2112\ns_add_u32 s{S_WB}, s{S_WB}, s82\ns_add_u32 s{S_WB}, s{S_WB}, {L_R2}")
    srd(k, SRD_W, P_WO if which == 2 else P_W2, K * D * 2)
    c.NB, c.TB, c.KS, c.SPK, c.KT, c.NS, c.R = 4, 2, 2, 1, K // 64, NS, R
    c.acc = lambda b, t: vr((b * 2 + t) * 4, 4)
    c.tf = lambda slot, ks, t: 64 + ((slot * 2 + ks) * 2 + t) * 4
    c.rd = lambda sl, b, sub, r: (V_RD, sl * STAGE + sub * 4224 + r * 512 + b * 32)
    c.slot_addr = lambda sl: sl * STAGE
    c.dma = [(V_DMA, 0, 0), (V_DMA, 1056, 2048)]
    c.v_tok = [V_TOK, V_TOK + 1]
    c.w_stride = 64 * 2048
    c.drop = opt.get(f"g{which}_drop", ())
    c.pro_units, c.ramp_rate, c.read_margin = opt.get(f"g{which}_pro", 12), opt.get(f"g{which}_ramp", 6), 4
    std_sched(c)
    return c

S_G80, S_G192 = 6, 7
def setup_gemm4p(k, opt, base):
    c = Sched(); common_gemm(c)
    HS = 8448; STAGE = 2 * HS
    L = 12; KT = 28; MAIN = KT - L
    V_RD, V_DE, V_DK, V_TOK, LANE, L16, VT = base, base + 2, base + 3, base + 4, base + 6, base + 7, base + 8
    c.LANE, c.L16, c.V_DE, c.V_DK, c.V_TOK = LANE, L16, V_DE, V_DK, V_TOK
    lane_id(k, LANE)
    k(f"v_lshlrev_b32 v{L16}, 4, v{LANE}")
    c.KT = KT
    order(c, k, opt, "g4", ["win", [4, 4, 8, 8, 4], 0])
    k(f"s_lshr_b32 s80, s{S_WAVE}, 1\ns_and_b32 s81, s{S_WAVE}, 1")
    k(f"s_mul_i32 s{S_G80}, s80, {80*2048}\ns_mul_i32 s{S_G192}, s80, {192*2048}")
    k("s_lshl_b32 s82, s80, 5\ns_lshl_b32 s83, s81, 1\ns_add_u32 s82, s82, s83")
    k(f"s_and_b32 s{S_TMP}, s{S_NT}, 1\ns_mul_i32 s83, s{S_TMP}, 1792\ns_add_u32 s82, s82, s83\ns_lshl_b32 s82, s82, 11")
    k(f"v_lshrrev_b32 v{VT}, 3, v{LANE}\nv_lshlrev_b32 v{VT}, 13, v{VT}")
    k(f"v_and_b32 v{VT+1}, 7, v{LANE}\nv_lshl_add_u32 v{VT}, v{VT+1}, 4, v{VT}")
    k(f"v_add_u32 v{VT}, s82, v{VT}")
    k(f"s_lshl_b32 s83, s{S_NT}, 7\nv_add_u32 v{V_DK}, s83, v{VT}\nv_xor_b32 v{V_DE}, 128, v{V_DK}")
    k(f"v_bfe_u32 v{VT}, v{LANE}, 2, 2\nv_mul_u32_u24 v{VT}, 1056, v{VT}")
    k(f"v_lshrrev_b32 v{VT+1}, 4, v{LANE}\nv_lshl_add_u32 v{VT}, v{VT+1}, 7, v{VT}")
    k(f"v_and_b32 v{VT+1}, 3, v{LANE}\nv_lshl_add_u32 v{V_RD+1}, v{VT+1}, 3, v{VT}")
    k(f"v_add_u32 v{V_RD}, {L_R2}, v{V_RD+1}")
    k(f"s_lshl_b32 s82, s{S_RB2}, 3\ns_lshl_b32 s83, s{S_WAVE}, 1\ns_add_u32 s82, s82, s83\ns_mul_i32 s82, s82, {112*1024}")
    k(f"s_mul_i32 s83, s{S_TMP}, {56*1024}\ns_add_u32 s82, s82, s83")
    k(f"v_add_u32 v{V_TOK}, s82, v{L16}\nv_add_u32 v{V_TOK+1}, {112*1024}, v{V_TOK}")
    k(f"s_mul_i32 s{S_WB}, s80, 4224\ns_mul_i32 s82, s81, 2112\ns_add_u32 s{S_WB}, s{S_WB}, s82")
    srd(k, SRD_W, P_W2, F * D * 2)
    c.drop = opt.get("g4_drop", ())
    V2E, V2K, V2T = 200, 201, 202
    c.V2 = (V2E, V2K, V2T)
    slot_addr = [L_R2, L_R2 + STAGE, 1024, 1024 + STAGE]
    def rd(sl, half, b, sub, r):
        off = half * HS + sub * 4224 + r * 512 + b * 32
        return (V_RD, (sl % 2) * STAGE + off) if sl < 2 else (V_RD + 1, slot_addr[sl] + off)
    NT_ = 2 * L
    tf = lambda kt, sub, t: 64 + (((kt * 2 + sub) % NT_) * 2 + t) * 4
    acc = lambda b, t: vr((b * 2 + t) * 4, 4)
    c.wf = lambda buf, j: (buf * 8 + j) * 4
    typ = lambda kt: "A" if kt < 16 else ("B1" if kt < 24 else "B2")
    def w_off(sd, kt):
        o = [T(x) for x in c.pos_txt(sd, kt)]
        if typ(kt) == "A": o.append(T(f"s_mul_i32 s{sd}, s{sd}, {112*2048}"))
        elif typ(kt) == "B1": o += [T(f"s_mul_i32 s{sd}, s{sd}, {224*2048}"), T(f"s_add_u32 s{sd}, s{sd}, {(64 - 16*224)*2048}"), T(f"s_add_u32 s{sd}, s{sd}, s{S_G80}")]
        else: o += [T(f"s_mul_i32 s{sd}, s{sd}, {448*2048}"), T(f"s_add_u32 s{sd}, s{sd}, {(96 - 24*448)*2048}"), T(f"s_add_u32 s{sd}, s{sd}, s{S_G192}")]
        return o
    halves = [[("E", kt), ("K", kt)] for kt in range(MAIN)]
    halves += [[("E", MAIN + 2 * j), ("E", MAIN + 2 * j + 1)] for j in range(L // 2)]
    halves += [[("K", MAIN + 2 * j), ("K", MAIN + 2 * j + 1)] for j in range(L // 2)]
    cur = None; flip = 0
    for st, hv in enumerate(halves):
        us = []
        for h, (kind, kt) in enumerate(hv):
            pre = []
            if cur != kt:
                flip ^= 1; cur = kt; pre = w_off(c.s_kw + flip, kt)
            vo = (V2E if kind == 'E' else V2K) if typ(kt) == "B2" else (V_DE if kind == 'E' else V_DK)
            for i, goff in enumerate((0, 2048)):
                us.append((pre if i == 0 else []) + [T(f"s_add_u32 m0, s{S_WB}, {slot_addr[st % 4] + h * HS + i * 1056 - goff}"),
                          VM(f"buffer_load_dwordx4 v{vo}, {sr(SRD_W,4)}, s{c.s_kw + flip} offen" + (f" offset:{goff}" if goff else "") + " lds", ("dma", st))])
        c.stage_units[st] = us; c.stage_slot[st] = st % 4
        for j in range(2):
            frags = []; toks = []
            parts = [(0, j), (1, j)] if st < MAIN else [(j, 0), (j, 1)]
            for h, sub in parts:
                kind, kt = hv[h]
                if (kt, sub) not in toks: toks.append((kt, sub))
                for b in range(4):
                    va, o0 = rd(st % 4, h, b, sub, 0); _, o1 = rd(st % 4, h, b, sub, 1)
                    frags.append((va, o0, o1, [(acc(b + (0 if kind == 'E' else 4), t), tf(kt, sub, t)) for t in range(2)]))
            c.steps.append(dict(frags=frags, stages=[st], toks=toks))
    for kt in range(KT):
        sd = c.s_kt + kt % 2
        for sub in range(2):
            us = []
            for t in range(2):
                g = []
                if sub == 0 and t == 0:
                    g = [T(x) for x in c.pos_txt(sd, kt)]
                    if typ(kt) == "A": g.append(T(f"s_mul_i32 s{sd}, s{sd}, 3584"))
                    elif typ(kt) == "B1": g += [T(f"s_mul_i32 s{sd}, s{sd}, 7168"), T(f"s_add_u32 s{sd}, s{sd}, {2048 - 16*7168}")]
                    else: g += [T(f"s_mul_i32 s{sd}, s{sd}, 14336"), T(f"s_add_u32 s{sd}, s{sd}, {3072 - 24*14336}")]
                key = ("tok", (kt, sub))
                if typ(kt) == "B2":
                    if sub == 1 and t == 0: g.append(T(f"s_add_u32 s{sd}, s{sd}, 7168"))
                    g.append(VM(f"buffer_load_dwordx2 {ar(tf(kt, sub, t),2)}, v{V2T+t}, {sr(SRD_T,4)}, s{sd} offen sc1", key))
                    g.append(VM(f"buffer_load_dwordx2 {ar(tf(kt, sub, t)+2,2)}, v{V2T+t}, {sr(SRD_T,4)}, s{sd} offen offset:3584 sc1", key))
                else:
                    g.append(VM(f"buffer_load_dwordx4 {ar(tf(kt, sub, t),4)}, v{V_TOK+t}, {sr(SRD_T,4)}, s{sd} offen offset:{sub*(1024 if typ(kt) == 'A' else 3584)} sc1", key))
                us.append(g)
            c.tok_units[(kt, sub)] = us; c.tok_slot[(kt, sub)] = (kt * 2 + sub) % NT_
    c.pro_units, c.ramp_rate, c.read_margin, c.lookahead = opt.get("g4_pro", 12), opt.get("g4_ramp", 6), 4, opt.get("g4_la", 7)
    c.MAIN, c.L = MAIN, L
    return c

def phase_gemm4p(k, c, opt):
    LANE, L16 = c.LANE, c.L16
    VT = 72
    srd(k, SRD_T, P_WS, S * F * 2, WS_HH)
    srd(k, SRD_A, P_OUT, S * D * 2)
    srd(k, SRD_B, P_WS, 8 << 20, WS_P4)
    V_G, V_GA, V_XA, V_X, IMP, VF = 96, 76, 77, 80, 128, 78
    for j in range(16): k(f"v_accvgpr_read_b32 v{V_X+j}, a{A_X1+j}")
    k(f"v_and_b32 v{VT}, 15, v{LANE}\nv_lshlrev_b32 v{VT}, {FS}, v{VT}")
    k(f"s_lshl_b32 s84, s{S_RB2}, 1\ns_lshr_b32 s85, s{S_WAVE}, 1\ns_add_u32 s84, s84, s85\ns_lshl_b32 s84, s84, {FS+5}\ns_add_u32 s84, s84, {F_HH}")
    k(f"s_and_b32 s85, s{S_NT}, 1\ns_lshl_b32 s85, s85, {FS+4}\ns_add_u32 s84, s84, s85")
    k(f"v_mov_b32 v252, v{VT}")
    c.tile_of = lambda key: key[0]
    k(f"s_add_u32 s85, s84, {F_HB - F_HH}")
    staged_wait(k, c, opt.get("g4_T", 6), 252, 84, 253, one_prod, pub=(94, 204))
    add_gate(k, c, 16, f"buffer_load_dword v253, v252, {sr(SRD_F,4)}, s85 offen sc1", 253)
    k.stamp("hh ready")
    p = Txt()
    p(f"v_lshrrev_b32 v{VT}, 4, v{LANE}\nv_lshlrev_b32 v{V_GA}, 4, v{VT}\nv_add_u32 v{V_GA}, {L_MV}, v{V_GA}")
    p(f"v_and_b32 v{VT+1}, 15, v{LANE}\nv_lshlrev_b32 v{VT+1}, 11, v{VT+1}")
    p(f"v_and_b32 v{VT+2}, 1, v{VT}\nv_lshl_add_u32 v{VT+1}, v{VT+2}, 5, v{VT+1}")
    p(f"v_lshrrev_b32 v{VT+2}, 1, v{VT}\nv_lshl_add_u32 v{V_XA}, v{VT+2}, 4, v{VT+1}")
    p(f"s_lshl_b32 s86, s{S_RB2}, 3\ns_lshl_b32 s87, s{S_WAVE}, 1\ns_add_u32 s86, s86, s87\ns_lshl_b32 s86, s86, 15\ns_lshl_b32 s87, s{S_NT}, 7\ns_add_u32 s86, s86, s87\ns_add_u32 s87, s86, 32768")
    p(f"s_lshl_b32 s88, s{S_RB2}, 4\ns_add_u32 s88, s88, s{S_NT}\ns_lshl_b32 s88, s88, 2\ns_add_u32 s88, s88, s{S_WAVE}")
    p("s_xor_b32 s89, s88, 4")
    p(f"s_lshl_b32 s90, s88, 13\ns_add_u32 s91, s90, 4096\ns_lshl_b32 s92, s89, 13\ns_add_u32 s93, s92, 4096")
    p(f"s_lshl_b32 s88, s88, {FS}\ns_add_u32 s88, s88, {F_P4}\ns_lshl_b32 s89, s89, {FS}\ns_add_u32 s89, s89, {F_P4}")
    V2E, V2K, V2T = c.V2
    p(f"v_lshrrev_b32 v{VT}, 5, v{LANE}\nv_mul_u32_u24 v{VT}, {96*2048}, v{VT}\nv_add_u32 v{V2E}, v{c.V_DE}, v{VT}\nv_add_u32 v{V2K}, v{c.V_DK}, v{VT}")
    p(f"v_lshrrev_b32 v{VT}, 1, v{L16}\nv_sub_u32 v{V2T}, v{c.V_TOK}, v{VT}\nv_sub_u32 v{V2T+1}, v{c.V_TOK+1}, v{VT}")
    p(f"v_mov_b32 v{VT}, 1\nv_mov_b32 v{VT+1}, 0")
    c.pre_loop_txt = p.L
    N = len(c.steps); p2 = N - c.L
    c.late[p2 + 1] = [VM(f"buffer_store_dwordx4 {vr(4*j,4)}, v{L16}, {sr(SRD_B,4)}, s{90 + j//4} offen offset:{(j%4)*1024} sc1", ("exp", 0)) for j in range(8)]
    c.late[p2 + opt.get("g4_fs", 6)] = [WVM([("exp", 0)]), f"buffer_store_dword v{VT}, v{VT+1}, {sr(SRD_F,4)}, s88 offen sc1"]
    c.late[N - 3] = [VM(f"buffer_load_dword v{VF}, v{VT+1}, {sr(SRD_F,4)}, s89 offen sc1", ("pf", 0))]
    c.last_reads = [f"ds_read_b128 {vr(V_G+4*b,4)}, v{V_GA} offset:{768+b*64}" for b in range(4)]
    m = Txt(); m.label = k.label
    okl = k.label("pok")
    m(f"v_cmp_eq_u32 vcc, 0, v{VF}\ns_cmp_eq_u64 vcc, 0\ns_cbranch_scc1 {okl}")
    spin(m, [f"buffer_load_dword v{VF}, v{VT+1}, {sr(SRD_F,4)}, s89 offen sc1"], [VF], 0)
    m(f"{okl}:")
    c.late[N - 1] = [WVM([("pf", 0)]), T("\n".join(m.L))] + [f"buffer_load_dwordx4 {vr(IMP+4*j,4)}, v{L16}, {sr(SRD_B,4)}, s{92 + j//4} offen offset:{(j%4)*1024} sc1" for j in range(8)]
    c.run(k)
    k.stamp("g4 loop done")
    A = lambda b, t: 32 + (b * 2 + t) * 4
    XT = 112
    XF = 160
    for j in range(16): k(f"v_lshlrev_b32 v{XF+2*j}, 16, v{V_X+j}\nv_and_b32 v{XF+2*j+1}, 0xffff0000, v{V_X+j}")
    k("s_waitcnt vmcnt(0) lgkmcnt(0)")
    for t in range(2):
        for b in range(4):
            for h in range(2): k(f"v_pk_add_f32 {vr(A(b,t)+2*h,2)}, {vr(A(b,t)+2*h,2)}, {vr(IMP+(b*2+t)*4+2*h,2)}")
            for h in range(2): k(f"v_pk_fma_f32 {vr(A(b,t)+2*h,2)}, {vr(A(b,t)+2*h,2)}, {vr(V_G+4*b+2*h,2)}, {vr(XF+(t*4+b)*4+2*h,2)}")
        PK = XT + t * 8
        for b in range(4): k(f"v_cvt_pk_bf16_f32 v{PK+2*b}, v{A(b,t)}, v{A(b,t)+1}\nv_cvt_pk_bf16_f32 v{PK+2*b+1}, v{A(b,t)+2}, v{A(b,t)+3}")
        k("s_nop 1")
        for s_ in range(2): k(f"v_permlane16_swap_b32 v{PK+4*s_}, v{PK+4*s_+2}\nv_permlane16_swap_b32 v{PK+4*s_+1}, v{PK+4*s_+3}")
        for s_ in range(2): k(f"buffer_store_dwordx4 {vr(PK+4*s_,4)}, v{V_XA}, {sr(SRD_A,4)}, s{86+t} offen offset:{s_*64}")

def phase_gemm1(k, c, opt):
    LANE, L16, VT = c.LANE, c.L16, c.VT
    PHK, VV, SH, UTX = 0, 34816, 114688, 126976
    A_PH = 160
    p = Txt()
    srd(p, SRD_A, P_WPHI, H * 2048)
    srd(p, SRD_B, P_WS, 2 << 20, WS_KVP)
    srd(p, SRD_C, P_WS, 128 << 10, WS_ZP)
    A_PW, A_VW, A_PR, A_VR, A_WR = 110, 111, 112, 113, 114
    p(f"s_lshr_b32 s80, s{S_WAVE}, 1\ns_and_b32 s81, s{S_WAVE}, 1")
    p(f"v_and_b32 v{VT}, 15, v{LANE}\ns_lshl_b32 s82, s{S_WAVE}, 5\nv_add_u32 v{VT}, s82, v{VT}")
    p(f"v_lshrrev_b32 v{VT+1}, 4, v{LANE}\nv_lshlrev_b32 v{VT+1}, 3, v{VT+1}")
    p(f"v_mul_u32_u24 v{A_PW}, 136, v{VT}\nv_add_u32 v{A_PW}, v{A_PW}, v{VT+1}")
    p(f"v_mul_u32_u24 v{A_VW}, 72, v{VT}\nv_add_u32 v{A_VW}, v{A_VW}, v{VT+1}")
    p(f"v_lshrrev_b32 v{VT}, 2, v{LANE}\nv_and_b32 v{VT+1}, 3, v{LANE}\nv_lshlrev_b32 v{VT+1}, 3, v{VT+1}")
    p(f"s_mul_i32 s82, s80, 17408\ns_lshl_b32 s83, s81, 6\ns_add_u32 s82, s82, s83")
    p(f"v_mul_u32_u24 v{A_PR}, 136, v{VT}\nv_add_u32 v{A_PR}, v{A_PR}, v{VT+1}\nv_add_u32 v{A_PR}, s82, v{A_PR}")
    p(f"s_mul_i32 s82, s80, 9216")
    p(f"v_mul_u32_u24 v{A_VR}, 72, v{VT}\nv_add_u32 v{A_VR}, v{A_VR}, v{VT+1}\nv_add_u32 v{A_VR}, s82, v{A_VR}")
    p(f"v_lshl_add_u32 v{A_WR}, v{VT}, 6, v{VT+1}\nv_add_u32 v{A_WR}, {L_WPH}, v{A_WR}")
    ONES, SEL = 116, 120
    for j in range(4): p(f"v_mov_b32 v{ONES+j}, 0x3f803f80")
    p(f"v_bfe_u32 v{VT}, v{LANE}, 2, 2\nv_lshrrev_b32 v{VT+1}, 4, v{LANE}")
    p(f"v_cmp_eq_u32 vcc, v{VT}, v{VT+1}")
    p(f"v_and_b32 v{VT}, 1, v{LANE}\nv_lshlrev_b32 v{VT}, 4, v{VT}\nv_mov_b32 v{VT+1}, 0x3f80\nv_lshlrev_b32 v{VT+1}, v{VT}, v{VT+1}")
    p(f"v_cndmask_b32 v{VT+1}, 0, v{VT+1}, vcc")
    p(f"v_and_b32 v{VT}, 2, v{LANE}\nv_cmp_eq_u32 vcc, 0, v{VT}")
    for j in (0, 1, 4, 5): p(f"v_mov_b32 v{SEL+j}, 0")
    p(f"v_cndmask_b32 v{SEL+2}, 0, v{VT+1}, vcc\nv_cndmask_b32 v{SEL+3}, v{VT+1}, 0, vcc")
    p(f"s_mov_b32 s94, {LOG2E!r}\ns_mov_b32 s95, {LOG2E!r}")
    p(f"s_lshl_b32 s84, s{S_HP}, 12\ns_lshl_b32 s85, s{S_WAVE}, 10\ns_add_u32 s84, s84, s85\ns_add_u32 s85, s85, {L_WPH}")
    c.pre_loop_txt = p.L
    c.late = {4: ["s_mov_b32 m0, s85", f"buffer_load_dwordx4 v{L16}, {sr(SRD_A,4)}, s84 offen lds"]}
    if opt.get("cpf", 1): c.late[22] = code_prefetch_txt(k.name, L16, 254, 80)
    ml = modb_loads(S_MB, 115, 109)
    ms = opt.get("modb_steps", [16] * 8)
    if opt.get("modb_front", 0):
        lb = k.label("skw0")
        c.late.setdefault(ms[0], []).append(T("\n".join([f"s_cmp_lg_u32 s{S_WAVE}, 0", f"s_cbranch_scc1 {lb}"] + [x for g in ml for x in g] + [f"{lb}:"])))
        ml = []
    else:
        for st_, g in zip(ms, ml): c.late.setdefault(st_, []).extend(g)
        ml = ml[len(ms):]
    c.last_reads = [f"ds_read_b64_tr_b16 {ar(A_PH+(hh*2+fb)*4+2*r,2)}, v{A_WR} offset:{hh*2048+r*1024+fb*32}" for hh in range(2) for fb in range(2) for r in range(2)]
    c.run(k)
    k.stamp("g1 loop done")
    A = lambda b, t: (b * 2 + t) * 4
    BF, P1, P2, MX, MN, EK = 126, 142, 174, 206, 214, 222
    groups = [(hh, t) for hh in range(2) for t in range(2)]
    def fm_part1(seg):
        for g, (hh, t) in enumerate(groups):
            for db in range(2):
                a = A(seg * 4 + hh * 2 + db, t)
                k(f"v_cvt_pk_bf16_f32 v{BF+g*4+db*2}, v{a}, v{a+1}\nv_cvt_pk_bf16_f32 v{BF+g*4+db*2+1}, v{a+2}, v{a+3}")
        k("s_nop 1")
        for g, (hh, t) in enumerate(groups):
            for fb in range(2):
                k(f"{MF} {vr(P1+g*8+fb*4,4)}, {ar(A_PH+(hh*2+fb)*4,4)}, {vr(BF+g*4,4)}, 0")
    def fm_part2():
        for op3, op2, M in (("v_max3_f32", "v_max_f32", MX), ("v_min3_f32", "v_min_f32", MN)):
            for g in range(4):
                b = P1 + g * 8
                k(f"{op3} v{M+2*g}, v{b}, v{b+1}, v{b+2}\n{op3} v{M+2*g}, v{M+2*g}, v{b+3}, v{b+4}\n{op3} v{M+2*g}, v{M+2*g}, v{b+5}, v{b+6}\n{op2} v{M+2*g}, v{M+2*g}, v{b+7}")
            treduce4(k, op2, [M + 2 * g for g in range(4)])
        for g in range(4):
            k(f"v_mul_f32 v{MX+2*g}, {-LOG2E!r}, v{MX+2*g}\nv_mul_f32 v{MN+2*g}, {LOG2E!r}, v{MN+2*g}")
    def fm_part3(E):
        for g in range(4):
            for j in range(4):
                b = g * 8 + 2 * j
                k(f"v_pk_fma_f32 {vr(P2+b,2)}, {vr(P1+b,2)}, s[94:95], {vr(MN+2*g,2)} op_sel_hi:[1,1,0] neg_lo:[1,0,0] neg_hi:[1,0,0]")
                k(f"v_pk_fma_f32 {vr(P1+b,2)}, {vr(P1+b,2)}, s[94:95], {vr(MX+2*g,2)} op_sel_hi:[1,1,0]")
            for j in range(8): k(f"v_exp_f32 v{P1+g*8+j}, v{P1+g*8+j}")
            for j in range(8): k(f"v_exp_f32 v{P2+g*8+j}, v{P2+g*8+j}")
            k("s_nop 0")
            for sg, PP in enumerate((P1, P2)):
                for j in range(4): k(f"v_cvt_pk_bf16_f32 v{E+(g*2+sg)*4+j}, v{PP+g*8+2*j}, v{PP+g*8+2*j+1}")
    for g in ml:
        for x in g: k(x)
    k("s_waitcnt lgkmcnt(0)\ns_nop 7")
    fm_part1(1)
    k("s_barrier")
    mark0 = len(k.L)
    for g, (hh, t) in enumerate(groups):
        for db in range(2):
            a = A(8 + hh * 2 + db, t)
            k(f"v_cvt_pk_bf16_f32 v{a}, v{a}, v{a+1}\nv_cvt_pk_bf16_f32 v{a+1}, v{a+2}, v{a+3}")
            k(f"ds_write_b64 v{A_VW}, {vr(a,2)} offset:{VV + hh*9216 + t*16*72 + db*32}")
    fm_part2()
    fm_part3(EK)
    SM = 32
    k("s_nop 1")
    for i in range(8): k(f"{MF} {vr(SM+4*i,4)}, {vr(ONES,4)}, {vr(EK+4*i,4)}, 0")
    k("s_nop 7")
    for i in range(8): k(f"v_rcp_f32 v{SM+4*i}, v{SM+4*i}")
    for g, (hh, t) in enumerate(groups):
        for sg, PP in enumerate((P1, P2)):
            for j in range(4):
                k(f"v_pk_mul_f32 {vr(PP+g*8+2*j,2)}, {vr(PP+g*8+2*j,2)}, {vr(SM+(g*2+sg)*4,2)} op_sel_hi:[1,0]")
            for fb in range(2):
                b = PP + g * 8 + fb * 4
                k(f"v_cvt_pk_bf16_f32 v{b}, v{b}, v{b+1}\nv_cvt_pk_bf16_f32 v{b+1}, v{b+2}, v{b+3}")
                k(f"ds_write_b64 v{A_PW}, {vr(b,2)} offset:{PHK + hh*17408 + t*16*136 + sg*64 + fb*32}")
    sprinkle(k, mark0, g3_early_units(k.g3, opt.get("g3_e1", 14), 254))
    k("s_waitcnt lgkmcnt(0)\ns_barrier")
    for s_ in range(4):
        for r in range(2):
            for fb in range(2): k(f"ds_read_b64_tr_b16 {ar(s_*16+fb*4+2*r,2)}, v{A_PR} offset:{PHK + (32*s_+16*r)*136 + fb*32}")
            for db in range(2): k(f"ds_read_b64_tr_b16 {ar(s_*16+8+db*4+2*r,2)}, v{A_VR} offset:{VV + (32*s_+16*r)*72 + db*32}")
    fm_part1(0)
    KV, ZZ = 64, 80
    for s_ in range(4):
        k(f"s_waitcnt lgkmcnt({min(15, 24 - 8*s_)})")
        for fb in range(2):
            for db in range(2):
                d = vr(KV + (db * 2 + fb) * 4, 4)
                k(f"{MF} {d}, {ar(s_*16+fb*4,4)}, {ar(s_*16+8+db*4,4)}, {'0' if s_ == 0 else d}")
            d = vr(ZZ + fb * 4, 4)
            k(f"{MF} {d}, {ar(s_*16+fb*4,4)}, {vr(ONES,4)}, {'0' if s_ == 0 else d}")
    k(f"s_lshl_b32 s82, s{S_HP}, 2\ns_add_u32 s82, s82, s{S_WAVE}")
    k("s_lshl_b32 s83, s82, 15")
    k(f"s_lshl_b32 s84, s{S_RB1}, 10\ns_add_u32 s84, s84, s83\ns_add_u32 s85, s84, 16384")
    k("s_lshl_b32 s90, s82, 11")
    k(f"s_lshl_b32 s91, s82, {FS+4}\ns_add_u32 s91, s91, {F_KV}\ns_lshl_b32 s92, s{S_RB1}, {FS}\ns_add_u32 s92, s92, s91")
    k(f"v_and_b32 v{VT}, 15, v{LANE}\nv_cmp_eq_u32 vcc, s{S_RB1}, v{VT}")
    k("s_nop 2")
    for db in range(2):
        for j in range(4): k(f"v_cvt_pk_bf16_f32 v{88+db*4+j}, v{KV+db*8+2*j}, v{KV+db*8+2*j+1}")
    k(f"buffer_store_dwordx4 {vr(88,4)}, v{L16}, {sr(SRD_B,4)}, s84 offen sc1")
    k(f"buffer_store_dwordx4 {vr(92,4)}, v{L16}, {sr(SRD_B,4)}, s85 offen sc1")
    k("s_and_saveexec_b64 s[96:97], vcc")
    k(f"buffer_store_dwordx4 {vr(ZZ,4)}, v{L16}, {sr(SRD_C,4)}, s90 offen sc1")
    k(f"buffer_store_dwordx4 {vr(ZZ+4,4)}, v{L16}, {sr(SRD_C,4)}, s90 offen offset:1024 sc1")
    k("s_mov_b64 exec, s[96:97]")
    k.stamp("kv stored")
    fm_part2()
    publish(k, 92, VT + 1)
    k.stamp("kv published")
    k("s_mov_b32 s93, s83")
    g2 = setup_gemm24(k, 2, opt, 96)
    k("s_mov_b32 s83, s93")
    g2.prefetch(k, 8)
    fm_part3(EK)
    k(f"v_lshlrev_b32 v{VT}, {FS}, v{VT}")
    wait_flags(k, [(VT, 91, 1)], VT + 1)
    k.stamp("kv ready")
    k(f"buffer_load_dwordx4 {vr(ZZ,4)}, v{L16}, {sr(SRD_C,4)}, s90 offen sc1")
    k(f"buffer_load_dwordx4 {vr(ZZ+4,4)}, v{L16}, {sr(SRD_C,4)}, s90 offen offset:1024 sc1")
    for i in range(32):
        if i % 4 == 0 and i: k("s_add_u32 s83, s83, 4096")
        k(f"buffer_load_dwordx4 {ar(4*i,4)}, v{L16}, {sr(SRD_B,4)}, s83 offen offset:{(i%4)*1024} sc1")
    srd(k, SRD_T, P_WS, S * D * 2, WS_O)
    k("s_waitcnt vmcnt(32)")
    for sh in (8, 4, 2, 1):
        for j in range(8): k(f"v_add_f32_dpp v{ZZ+j}, v{ZZ+j}, v{ZZ+j} row_ror:{sh} row_mask:0xf bank_mask:0xf")
    k(f"v_and_b32 v{VT+1}, 1, v{LANE}\nv_cmp_eq_u32 vcc, 0, v{VT+1}")
    for j in range(4): k(f"v_cvt_pk_bf16_f32 v{BF+8+j}, v{ZZ+2*j}, v{ZZ+2*j+1}")
    for j in range(4): k(f"v_cndmask_b32 v{BF+8+j}, v{ONES}, v{BF+8+j}, vcc")
    for i in range(32):
        db, pp = divmod(i, 16)
        if i % 2 == 0: k(f"s_waitcnt vmcnt({30 - i})")
        for fb in range(2):
            d = vr(KV + (db * 2 + fb) * 4, 4)
            k(f"{MF} {d}, {vr(SEL + (2 if fb == 0 else 0), 4)}, {ar(4*i,4)}, {'0' if pp == 0 else d}")
    k(f"s_mul_i32 s82, s{S_WAVE}, 3072\ns_add_u32 s82, s82, {SH}")
    k(f"v_add_u32 v{VT+1}, s82, v{L16}\nv_add_u32 v{VT+2}, {SH}, v{L16}")
    k("s_nop 6")
    for db in range(2):
        for j in range(4): k(f"v_cvt_pk_bf16_f32 v{BF+db*4+j}, v{KV+db*8+2*j}, v{KV+db*8+2*j+1}")
    for j in range(3): k(f"ds_write_b128 v{VT+1}, {vr(BF+4*j,4)} offset:{j*1024}")
    k("s_waitcnt lgkmcnt(0)\ns_barrier")
    for i in range(12): k(f"ds_read_b128 {ar(4*i,4)}, v{VT+2} offset:{i*1024}")
    k(f"s_lshl_b32 s82, s{S_RB1}, 3\ns_lshl_b32 s83, s{S_WAVE}, 1\ns_add_u32 s82, s82, s83\ns_lshl_b32 s82, s82, 15")
    k(f"s_lshl_b32 s83, s{S_HP}, 11\ns_add_u32 s82, s82, s83\ns_add_u32 s83, s82, 0x8000")
    k(f"s_lshl_b32 s84, s{S_RB1}, 2\ns_add_u32 s84, s84, s{S_WAVE}\ns_lshl_b32 s84, s84, {FS+4}\ns_lshl_b32 s85, s{S_HP}, {FS}\ns_add_u32 s84, s84, s85\ns_add_u32 s84, s84, {F_O}")
    k("s_waitcnt lgkmcnt(0)")
    for g, (hh, t) in enumerate(groups):
        for sg in range(2):
            for j in range(3):
                k(f"{MF} {vr((g*2+sg)*12+4*j,4)}, {ar(((hh*2+sg)*3+j)*4,4)}, {vr(EK+(g*2+sg)*4,4)}, 0")
    k("s_nop 7")
    for g, (hh, t) in enumerate(groups):
        n1, n2 = g * 24, g * 24 + 12
        D1, S1, D2, S2 = n1 + 8, n1 + 9, n2 + 8, n2 + 9
        k(f"v_mul_f32 v{n1+10}, v{S1}, v{S2}")
        k(f"v_mul_f32 v{n1+10}, 0x358637bd, v{n1+10}")
        k(f"v_fmac_f32 v{n1+10}, v{D1}, v{S2}\nv_fmac_f32 v{n1+10}, v{D2}, v{S1}")
        k(f"v_rcp_f32 v{n1+10}, v{n1+10}")
        k("s_nop 0")
        k(f"v_mul_f32 v{D1}, v{S2}, v{n1+10}\nv_mul_f32 v{D2}, v{S1}, v{n1+10}")
        for j in range(4): k(f"v_pk_mul_f32 {vr(n1+2*j,2)}, {vr(n1+2*j,2)}, {vr(D1,2)} op_sel_hi:[1,0]")
        for j in range(4): k(f"v_pk_fma_f32 {vr(n1+2*j,2)}, {vr(n2+2*j,2)}, {vr(D2,2)}, {vr(n1+2*j,2)} op_sel_hi:[1,0,1]")
        for j in range(4): k(f"v_cvt_pk_bf16_f32 v{n2+j}, v{n1+2*j}, v{n1+2*j+1}")
        k(f"buffer_store_dwordx4 {vr(n2,4)}, v{L16}, {sr(SRD_T,4)}, s{82+t} offen offset:{hh*1024} sc1")
    k.stamp("o stored")
    CU, AU, WW, TT = 128, 144, 152, 156
    for i in range(8): k(f"v_accvgpr_read_b32 v{CU+2*i}, a{A_UT+32+i}")
    silu_block(k, [CU + 2 * i for i in range(8)])
    mko = len(k.L)
    g2.V_X = 48
    srd(k, SRD_A, P_X, S * D * 2)
    V_XA = 47
    k(f"v_lshrrev_b32 v{VT+1}, 4, v{LANE}")
    k(f"v_and_b32 v{VT+2}, 15, v{LANE}\nv_lshlrev_b32 v{VT+2}, 11, v{VT+2}\nv_lshl_add_u32 v{V_XA}, v{VT+1}, 3, v{VT+2}")
    k(f"s_lshl_b32 s82, s{S_RB2}, 3\ns_lshl_b32 s83, s{S_WAVE}, 1\ns_add_u32 s82, s82, s83\ns_lshl_b32 s82, s82, 15\ns_lshl_b32 s83, s{S_NT}, 7\ns_add_u32 s82, s82, s83\ns_add_u32 s83, s82, 32768")
    for t in range(2):
        for b in range(4):
            k(f"buffer_load_dwordx2 {vr(g2.V_X+(t*4+b)*2,2)}, v{V_XA}, {sr(SRD_A,4)}, s{82+t} offen offset:{b*32}")
    publish(k, 84, VT + 2, mko)
    k.stamp("o published")
    mark1 = len(k.L)
    for j in range(8): k(f"v_mov_b32 v{AU+j}, 0")
    for i in range(8):
        for d in range(4): k(f"v_accvgpr_read_b32 v{WW+d}, a{A_UT+4*i+d}")
        for d in range(4):
            k(f"v_lshlrev_b32 v{TT}, 16, v{WW+d}\nv_and_b32 v{TT+1}, 0xffff0000, v{WW+d}")
            k(f"v_pk_fma_f32 {vr(AU+2*d,2)}, {vr(TT,2)}, {vr(CU+2*i,2)}, {vr(AU+2*d,2)} op_sel_hi:[1,0,1]")
    k("s_nop 1")
    for j in range(4): k(f"v_permlane32_swap_b32 v{AU+j}, v{AU+j+4}")
    k("s_nop 1")
    for j in range(4): k(f"v_add_f32 v{AU+j}, v{AU+j}, v{AU+j+4}")
    k("s_nop 1")
    for j in range(2): k(f"v_permlane16_swap_b32 v{AU+j}, v{AU+j+2}")
    k("s_nop 1")
    for j in range(2): k(f"v_add_f32 v{AU+j}, v{AU+j}, v{AU+j+2}")
    k("s_nop 1")
    for j in range(2): k(f"v_add_f32_dpp v{AU+j}, v{AU+j}, v{AU+j} row_ror:8 row_mask:0xf bank_mask:0xf")
    sprinkle(k, mark1, g3_early_units(k.g3, opt.get("g3_e2", 7), 254), skip=0)
    k(f"v_and_b32 v{TT}, 7, v{LANE}\nv_lshlrev_b32 v{TT}, 5, v{TT}\nv_lshrrev_b32 v{TT+1}, 5, v{LANE}\nv_lshl_add_u32 v{TT}, v{TT+1}, 4, v{TT}")
    k(f"v_bfe_u32 v{TT+1}, v{LANE}, 4, 1\nv_lshl_add_u32 v{TT}, v{TT+1}, 3, v{TT}")
    srd(k, SRD_D, P_WS, MP_BYTES, WS_MODP)
    k(f"v_or_b32 v{AU}, 1, v{AU}\nv_or_b32 v{AU+1}, 1, v{AU+1}")
    k(f"buffer_store_dwordx2 {vr(AU,2)}, v{TT}, {sr(SRD_D,4)}, s{S_MO} offen sc1")
    return g2

A_PARK = 224
S3_SRD, S3_WB, S3_KW = 64, 68, 69
def setup_gemm3_early(k, opt, LANE, VT):
    c = Sched(); common_gemm(c)
    NS, R = 4, 8
    STAGE = 28672
    V_RD, V_DMA, V_TOK = 224, 226, 233
    c.V_RD, c.V_DMA, c.V_TOK, c.LANE, c.L16, c.VT = V_RD, V_DMA, V_TOK, 237, 238, 248
    c.srd_w, c.s_wbase, c.s_kw = S3_SRD, S3_WB, S3_KW
    order(c, k, opt, 'g3', ['win', [4, 4, 8], 0])
    k(f"s_lshr_b32 s80, s{S_WAVE}, 1\ns_and_b32 s81, s{S_WAVE}, 1")
    k(f"s_mul_i32 s83, s80, {32*7168}\ns_mul_i32 s{S_TMP}, s{S_FT}, 224\ns_add_u32 s83, s83, s{S_TMP}")
    for i in range(7):
        k(f"v_add_u32 v{VT+2}, {i*64}, v{LANE}")
        k(f"v_mul_u32_u24 v{VT+3}, 4682, v{VT+2}")
        k(f"v_lshrrev_b32 v{VT+3}, 16, v{VT+3}")
        k(f"v_mul_u32_u24 v{VT+4}, 14, v{VT+3}")
        k(f"v_sub_u32 v{VT+4}, v{VT+2}, v{VT+4}")
        k(f"v_mul_u32_u24 v{VT+3}, 7168, v{VT+3}")
        k(f"v_lshl_add_u32 v{VT+3}, v{VT+4}, 4, v{VT+3}")
        k(f"v_add_u32 v{VT+3}, s83, v{VT+3}")
        k(f"v_accvgpr_write_b32 a{A_PARK+i}, v{VT+3}")
    k(f"s_mul_i32 s{S3_WB}, s81, 14336\ns_mul_i32 s82, s80, 7168\ns_add_u32 s{S3_WB}, s{S3_WB}, s82")
    k(f"s_cmp_eq_u32 s81, 0\ns_cselect_b32 s{S3_SRD}, s{P_W1}, s{P_W3}\ns_cselect_b32 s{S3_SRD+1}, s{P_W1+1}, s{P_W3+1}")
    k(f"s_mov_b32 s{S3_SRD+2}, {D*F*2}\ns_mov_b32 s{S3_SRD+3}, 0x20000")
    c.NB, c.TB, c.KS, c.SPK, c.KT, c.NS, c.R = 14, 4, 1, 2, 16, NS, R
    c.acc = lambda b, t: vr((b * 4 + t) * 4, 4)
    c.tf = lambda slot, ks, t: 112 + (slot * 4 + t) * 4
    ph = lambda sl: 3 - sl
    c.rd = lambda sl, b, sub, r: (V_RD + ph(sl) // 2, (ph(sl) % 2) * STAGE + (b % 2) * 14336 + (32 * sub + 16 * r) * 224 + 32 * (b // 2))
    c.slot_addr = lambda sl: ph(sl) * STAGE
    c.dma = [(V_DMA + i, i * 1024, 0) for i in range(7)]
    c.v_tok = [V_TOK + t for t in range(4)]
    c.w_stride = 64 * 7168
    c.drop = opt.get("g3_drop", ())
    c.pro_units, c.ramp_rate, c.read_margin = opt.get("g3_pro", 12), (lambda st: opt.get("g3_ramp", 12) if st < 6 else 8), 8
    c.lookahead = opt.get("g3_la", 4)
    std_sched(c)
    TL = c.TL = opt.get("g3_tail", 0)
    if TL:
        tail = c.steps[32 - TL:]
        c.steps = c.steps[:32 - TL] + [dict(st, frags=st["frags"][:8]) for st in tail] + [dict(st, frags=st["frags"][8:]) for st in tail]
    return c
def g3_early_units(c, n, vtmp):
    out = []
    for j in range(n):
        t = c.prefetch_txt(1)
        i = (c.pre_dma - 1) % 7
        ld = t[-1].replace(f"v{c.V_DMA+i},", f"v{vtmp},")
        out.append(t[:-1] + [f"v_accvgpr_read_b32 v{vtmp}, a{A_PARK+i}", ld])
    return out
def setup_gemm3_late(k, c):
    V_RD, V_DMA, V_TOK, LANE, L16, VT = c.V_RD, c.V_DMA, c.V_TOK, c.LANE, c.L16, c.VT
    lane_id(k, LANE)
    k(f"v_lshlrev_b32 v{L16}, 4, v{LANE}")
    for i in range(7): k(f"v_accvgpr_read_b32 v{V_DMA+i}, a{A_PARK+i}")
    k(f"v_lshrrev_b32 v{VT+3}, 2, v{LANE}\nv_mul_u32_u24 v{VT+3}, 224, v{VT+3}")
    k(f"v_and_b32 v{VT+4}, 3, v{LANE}\nv_lshl_add_u32 v{V_RD}, v{VT+4}, 3, v{VT+3}")
    k(f"v_add_u32 v{V_RD+1}, {2*28672}, v{V_RD}")
    k(f"s_lshl_b32 s82, s{S_RB3}, 4\ns_lshl_b32 s83, s{S_WAVE}, 2\ns_add_u32 s82, s82, s83\ns_lshl_b32 s82, s82, 15")
    k(f"v_add_u32 v{V_TOK}, s82, v{L16}")
    for t in range(1, 4): k(f"v_add_u32 v{V_TOK+t}, {t*0x8000}, v{V_TOK}")

def sprinkle(k, mark, groups, skip=4):
    if not groups: return
    seg = k.L[mark:]
    stepn = max(1, (len(seg) - skip) // len(groups))
    out, q = [], list(groups)
    for i, x in enumerate(seg):
        out.append(x)
        if q and i >= skip and (i - skip) % stepn == 0:
            assert not x.startswith("s_cmp") and not x.startswith("s_and_saveexec")
            out += q.pop(0)
    for g in q: out += g
    k.L[mark:] = out

A_X1 = 240
def phase_gemm2(k, c, opt):
    LANE, L16 = c.LANE, c.L16
    VT = 40
    k(f"v_and_b32 v252, 15, v{LANE}\nv_lshlrev_b32 v252, {FS}, v252")
    k(f"s_lshl_b32 s84, s{S_RB2}, 2\ns_add_u32 s84, s84, s{S_WAVE}\ns_lshl_b32 s84, s84, {FS+4}\ns_add_u32 s85, s84, {F_O}")
    staged_wait(k, c, opt.get("g2_T", 6), 252, 85, 253, one_prod)
    k.stamp("o ready")
    V_G, V_C, V_S, V_GA = 64, 80, 136, 44
    p = Txt()
    srd(p, SRD_A, P_WS, S * D * 2, WS_Y)
    srd(p, SRD_B, P_WS, S * 128, WS_STAT)
    srd(p, SRD_D, P_WS, MP_BYTES, WS_MODP)
    p(f"v_lshrrev_b32 v{V_GA}, 4, v{LANE}\nv_lshlrev_b32 v{V_GA}, 4, v{V_GA}\nv_add_u32 v{V_GA}, {L_MV}, v{V_GA}")
    p(f"s_lshl_b32 s86, s{S_RB2}, 3\ns_lshl_b32 s87, s{S_WAVE}, 1\ns_add_u32 s86, s86, s87")
    p(f"s_lshl_b32 s88, s86, 15\ns_lshl_b32 s87, s{S_NT}, 11\ns_add_u32 s88, s88, s87\ns_add_u32 s89, s88, 32768")
    p(f"s_lshl_b32 s87, s{S_NT}, {FS}\ns_add_u32 s84, s84, s87\ns_add_u32 s84, s84, {F_Y}")
    p(f"s_lshl_b32 s91, s86, 11\ns_lshl_b32 s90, s{S_NT}, 8\ns_add_u32 s90, s90, s91")
    p(f"s_lshl_b32 s92, s{S_WAVE}, 16\ns_lshl_b32 s93, s{S_NT}, 12\ns_add_u32 s92, s92, s93\ns_add_u32 s92, s92, {MP_B}")
    p(f"v_lshlrev_b32 v{VT}, 2, v{LANE}")
    c.pre_loop_txt = p.L
    c.late = {}
    if opt.get("cpf", 1): c.late[6] = code_prefetch_txt(k.name, L16, 254, 80)
    m = Txt(); m.label = k.label
    MB_ = 160
    spin(m, [f"buffer_load_dword v{MB_+j}, v{VT}, {sr(SRD_D,4)}, s92 offen offset:{j*256} sc1" for j in range(16)], [MB_ + j for j in range(16)], MB_ + 16)
    for st in (4, 2, 1):
        for j in range(st): m(f"v_pk_add_f32 {vr(MB_+2*j,2)}, {vr(MB_+2*j,2)}, {vr(MB_+2*(j+st),2)}")
    m(f"v_add_f32 v{MB_}, v{MB_}, v{MB_+1}")
    round_bf16(m, MB_)
    m(f"v_add_f32 v{MB_+1}, 1.0, v{MB_}"); round_bf16(m, MB_ + 1)
    m(f"s_cmp_eq_u32 s{S_WAVE}, 2\ns_cselect_b64 vcc, -1, 0")
    m(f"v_cndmask_b32 v{MB_}, v{MB_}, v{MB_+1}, vcc")
    m(f"s_lshl_b32 s92, s{S_WAVE}, 8\ns_add_u32 s92, s92, {L_MV}\nv_add_u32 v{VT}, s92, v{VT}")
    m(f"ds_write_b32 v{VT}, v{MB_}")
    c.late[opt.get("g2_modstep", 13)] = ["\n".join(m.L)]
    c.last_reads = ([f"ds_read_b128 {vr(V_G+4*b,4)}, v{V_GA} offset:{b*64}" for b in range(4)] + [f"ds_read_b128 {vr(V_C+4*b,4)}, v{V_GA} offset:{512+b*64}" for b in range(4)]
                    + [f"ds_read_b128 {vr(V_S+4*b,4)}, v{V_GA} offset:{256+b*64}" for b in range(4)])
    c.run(k)
    k.stamp("g2 loop done")
    k("s_waitcnt lgkmcnt(0)\ns_nop 7")
    A = lambda b, t: (b * 2 + t) * 4
    XT = 104; V_X = c.V_X
    for t in range(2):
        for b in range(4):
            xr = V_X + (t * 4 + b) * 2
            for h in range(2): k(f"v_lshlrev_b32 v{XT+2*h}, 16, v{xr+h}\nv_and_b32 v{XT+2*h+1}, 0xffff0000, v{xr+h}")
            for h in range(2): k(f"v_pk_fma_f32 {vr(A(b,t)+2*h,2)}, {vr(A(b,t)+2*h,2)}, {vr(V_G+4*b+2*h,2)}, {vr(XT+2*h,2)}")
        PK = XT + 4 + t * 8
        for b in range(4): k(f"v_cvt_pk_bf16_f32 v{PK+2*b}, v{A(b,t)}, v{A(b,t)+1}\nv_cvt_pk_bf16_f32 v{PK+2*b+1}, v{A(b,t)+2}, v{A(b,t)+3}")
        for b in range(4):
            for h in range(2): k(f"v_lshlrev_b32 v{A(b,t)+2*h}, 16, v{PK+2*b+h}\nv_and_b32 v{A(b,t)+2*h+1}, 0xffff0000, v{PK+2*b+h}")
    SU = [XT + 20, XT + 22]; M2 = [XT + 21, XT + 23]; TM = [XT + 24, XT + 25]; AC = [XT, XT + 2]; NM = [XT + 26, XT + 28]; DF = 32
    for t in range(2): k(f"v_pk_add_f32 {vr(AC[t],2)}, {vr(A(0,t),2)}, {vr(A(0,t)+2,2)}")
    for b in range(1, 4):
        for h in range(2):
            for t in range(2): k(f"v_pk_add_f32 {vr(AC[t],2)}, {vr(AC[t],2)}, {vr(A(b,t)+2*h,2)}")
    def allred2(X):
        for sw in ("v_permlane32_swap_b32", "v_permlane16_swap_b32"):
            for t in range(2): k(f"v_mov_b32 v{TM[t]}, v{X[t]}")
            k("s_nop 0")
            for t in range(2): k(f"{sw} v{X[t]}, v{TM[t]}")
            k("s_nop 0")
            for t in range(2): k(f"v_add_f32 v{X[t]}, v{X[t]}, v{TM[t]}")
    for t in range(2): k(f"v_add_f32 v{SU[t]}, v{AC[t]}, v{AC[t]+1}")
    allred2(SU)
    for t in range(2): k(f"v_mul_f32 v{NM[t]}, {-1.0/64!r}, v{SU[t]}\nv_mov_b32 v{AC[t]}, 0\nv_mov_b32 v{AC[t]+1}, 0")
    for b in range(4):
        for h in range(2):
            for t in range(2): k(f"v_pk_add_f32 {vr(DF+2*t,2)}, {vr(A(b,t)+2*h,2)}, {vr(NM[t],2)} op_sel_hi:[1,0]")
            for t in range(2): k(f"v_pk_fma_f32 {vr(AC[t],2)}, {vr(DF+2*t,2)}, {vr(DF+2*t,2)}, {vr(AC[t],2)}")
    for t in range(2): k(f"v_add_f32 v{M2[t]}, v{AC[t]}, v{AC[t]+1}")
    allred2(M2)
    k(f"v_cmp_gt_u32 vcc, 16, v{LANE}")
    k(f"v_lshlrev_b32 v{XT+2}, 3, v{LANE}\nv_lshrrev_b32 v{XT+3}, 4, v{LANE}")
    k(f"v_cndmask_b32 v{XT}, v{SU[1]}, v{SU[0]}, vcc\nv_cndmask_b32 v{XT+1}, v{M2[1]}, v{M2[0]}, vcc")
    k(f"v_and_b32 v45, 0x78, v{XT+2}\nv_lshl_add_u32 v45, v{XT+3}, 10, v45")
    k(f"v_or_b32 v{XT+1}, 1, v{XT+1}")
    k(f"v_cmp_gt_u32 vcc, 32, v{LANE}\ns_and_saveexec_b64 s[96:97], vcc")
    k(f"buffer_store_dwordx2 {vr(XT,2)}, v{XT+2}, {sr(SRD_B,4)}, s90 offen sc1")
    k("s_mov_b64 exec, s[96:97]")
    k.stamp("stat stored")
    for t in range(2):
        for b in range(4):
            for h in range(2): k(f"v_pk_mul_f32 {vr(A(b,t)+2*h,2)}, {vr(A(b,t)+2*h,2)}, {vr(V_C+4*b+2*h,2)}")
    for j in range(16): k(f"v_accvgpr_write_b32 a{A_X1+j}, v{XT+4+j}")
    g3 = k.g3
    setup_gemm3_late(k, g3)
    g3.prefetch(k, opt.get("g3_pre0", 0))
    ST = 48
    spin(k, [f"buffer_load_dwordx2 {vr(ST+t*8+j*2,2)}, v45, {sr(SRD_B,4)}, s91 offen offset:{t*128+j*256} sc1" for t in range(2) for j in range(4)],
         [ST + 2 * j + 1 for j in range(8)], XT)
    k.stamp("stat ready")
    for t in range(2):
        b = ST + t * 8
        k(f"v_add_f32 v{SU[t]}, v{b}, v{b+2}\nv_add_f32 v{TM[t]}, v{b+4}, v{b+6}\nv_add_f32 v{SU[t]}, v{SU[t]}, v{TM[t]}")
        k(f"v_add_f32 v{M2[t]}, v{b+1}, v{b+3}\nv_add_f32 v{TM[t]}, v{b+5}, v{b+7}\nv_add_f32 v{M2[t]}, v{M2[t]}, v{TM[t]}")
    allred2(SU)
    for t in range(2): k(f"v_mul_f32 v{SU[t]}, {-1.0/1024!r}, v{SU[t]}")
    for j in range(4):
        for t in range(2): k(f"v_fmamk_f32 v{ST+t*8+2*j}, v{ST+t*8+2*j}, {1.0/64!r}, v{SU[t]}")
        for t in range(2): k(f"v_mul_f32 v{ST+t*8+2*j}, v{ST+t*8+2*j}, v{ST+t*8+2*j}")
        for t in range(2): k(f"v_fmac_f32 v{M2[t]}, 0x42800000, v{ST+t*8+2*j}")
    allred2(M2)
    for t in range(2): k(f"v_mov_b32 v{TM[t]}, 0x3727c5ac\nv_fmac_f32 v{TM[t]}, {1.0/1024!r}, v{M2[t]}")
    for t in range(2): k(f"v_rsq_f32 v{NM[t]}, v{TM[t]}")
    k("s_nop 0")
    for t in range(2): k(f"v_mul_f32 v{NM[t]+1}, v{SU[t]}, v{NM[t]}")
    for t in range(2):
        YK = ST + t * 8
        for b in range(4):
            for h in range(2): k(f"v_pk_fma_f32 {vr(XT+2*h,2)}, {vr(V_C+4*b+2*h,2)}, {vr(NM[t],2)}, {vr(V_S+4*b+2*h,2)} op_sel:[0,1,0] op_sel_hi:[1,1,1]")
            for h in range(2): k(f"v_pk_fma_f32 {vr(XT+2*h,2)}, {vr(A(b,t)+2*h,2)}, {vr(NM[t],2)}, {vr(XT+2*h,2)} op_sel_hi:[1,0,1]")
            k(f"v_cvt_pk_bf16_f32 v{YK+2*b}, v{XT}, v{XT+1}\nv_cvt_pk_bf16_f32 v{YK+2*b+1}, v{XT+2}, v{XT+3}")
        for s_ in range(2): k(f"buffer_store_dwordx4 {vr(YK+4*s_,4)}, v{L16}, {sr(SRD_A,4)}, s{88+t} offen offset:{s_*1024} sc1")
    publish(k, 84, 40)
    k.stamp("y published")
    g3.prefetch(k, opt.get("g3_pre", 0))
    return g3

def phase_gemm3(k, c, opt):
    LANE, L16, VT = c.LANE, c.L16, c.VT
    NB, TB = 14, 4
    srd(k, SRD_T, P_WS, S * D * 2, WS_Y)
    srd(k, SRD_C, P_WS, S * F * 2, WS_HH)
    k(f"v_and_b32 v{VT}, 31, v{LANE}\nv_lshlrev_b32 v{VT}, {FS}, v{VT}")
    k(f"s_lshl_b32 s84, s{S_RB3}, 2\ns_add_u32 s84, s84, s{S_WAVE}")
    k(f"s_lshl_b32 s85, s84, {FS+5}\ns_add_u32 s85, s85, {F_Y}")
    staged_wait(k, c, opt.get("g3_T", 3), VT, 85, VT + 1, one_prod, dup16=True)
    k.stamp("y ready")
    p = Txt()
    p(f"s_mul_i32 s88, s84, {448*1024}\ns_mul_i32 s92, s{S_FT}, 3584\ns_add_u32 s88, s88, s92")
    for t in range(1, 4): p(f"s_add_u32 s{88+t}, s88, {t*112*1024}")
    p(f"s_lshl_b32 s93, s84, {FS+5}\ns_lshl_b32 s94, s{S_FT}, {FS}\ns_add_u32 s93, s93, s94\ns_add_u32 s94, s93, {F_HB}\ns_add_u32 s93, s93, {F_HH}")
    p(f"s_mov_b32 s86, {-LOG2E!r}\ns_mov_b32 s87, {-LOG2E!r}")
    SB = 241
    p(f"v_lshrrev_b32 v{SB}, 1, v{L16}")
    c.pre_loop_txt = p.L
    if opt.get("cpf", 1):
        c.late[6] = code_prefetch_txt(k.name, L16, 254, 80, junk="v240")
        c.late[22] = code_prefetch_txt(k.name, L16, 254, 80, junk="v240")
    if opt.get("w2touch", 1):
        c.late[opt.get("w2step", 16)] = [f"s_lshl_b32 s80, s2, 2", f"s_add_u32 s80, s80, s{S_WAVE}", "s_mul_i32 s80, s80, 7168",
                      f"v_min_u32 v253, 55, v{LANE}", "v_lshlrev_b32 v253, 7, v253", "v_add_u32 v253, s80, v253",
                      f"global_load_dword v240, v253, s[{P_W2}:{P_W2+1}]"]
    t4 = Txt()
    g4 = setup_gemm4p(t4, opt, 242)
    half = len(t4.L) // 2
    c.late[19] = t4.L[:half]; c.late[20] = t4.L[half:]
    pf = g4.prefetch_txt(4); c.late[29] = pf
    pf = g4.prefetch_txt(4); c.late[30] = pf
    def G(s, t): return ((2 * s) * TB + t) * 4
    def Uu(s, t): return ((2 * s + 1) * TB + t) * 4
    def act(k, slots, t, scalar=False):
        if scalar:
            for s in slots:
                for r in range(4):
                    k(f"v_mul_f32 v{Uu(s,t)+r}, v{G(s,t)+r}, v{Uu(s,t)+r}")
                    k(f"v_mul_f32 v{G(s,t)+r}, s86, v{G(s,t)+r}")
            rs = [(s, r) for s in slots for r in range(4)]
            for i, (s, r) in enumerate(rs): k(f"v_exp_f32 v{G(s,t)+r}, v{G(s,t)+r}")
            for i, (s, r) in enumerate(rs): k(f"v_add_f32 v{G(s,t)+r}, 1.0, v{G(s,t)+r}")
            for i, (s, r) in enumerate(rs): k(f"v_rcp_f32 v{G(s,t)+r}, v{G(s,t)+r}")
            for i, (s, r) in enumerate(rs): k(f"v_mul_f32 v{Uu(s,t)+r}, v{Uu(s,t)+r}, v{G(s,t)+r}")
            return
        for s in slots:
            for h in range(2):
                k(f"v_pk_mul_f32 {vr(Uu(s,t)+2*h,2)}, {vr(G(s,t)+2*h,2)}, {vr(Uu(s,t)+2*h,2)}")
                k(f"v_pk_mul_f32 {vr(G(s,t)+2*h,2)}, {vr(G(s,t)+2*h,2)}, s[86:87]")
        for s in slots:
            for r in range(4): k(f"v_exp_f32 v{G(s,t)+r}, v{G(s,t)+r}")
        for s in slots:
            for h in range(2): k(f"v_pk_add_f32 {vr(G(s,t)+2*h,2)}, {vr(G(s,t)+2*h,2)}, 1.0 op_sel_hi:[1,0]")
        for s in slots:
            for r in range(4): k(f"v_rcp_f32 v{G(s,t)+r}, v{G(s,t)+r}")
        for s in slots:
            for h in range(2): k(f"v_pk_mul_f32 {vr(Uu(s,t)+2*h,2)}, {vr(Uu(s,t)+2*h,2)}, {vr(G(s,t)+2*h,2)}")
    def pair(k, pr, t, scalar=False):
        s0, s1 = 2 * pr, 2 * pr + 1
        act(k, [s0, s1], t, scalar)
        d = G(s0, t)
        k(f"v_cvt_pk_bf16_f32 v{d}, v{Uu(s0,t)}, v{Uu(s0,t)+1}\nv_cvt_pk_bf16_f32 v{d+1}, v{Uu(s0,t)+2}, v{Uu(s0,t)+3}")
        k(f"v_cvt_pk_bf16_f32 v{d+2}, v{Uu(s1,t)}, v{Uu(s1,t)+1}\nv_cvt_pk_bf16_f32 v{d+3}, v{Uu(s1,t)+2}, v{Uu(s1,t)+3}")
        k(f"buffer_store_dwordx4 {vr(d,4)}, v{L16}, {sr(SRD_C,4)}, s{88+t} offen offset:{pr*1024} sc1")
    ea = Txt(); eb = Txt()
    nin = opt.get("g3_nin", 8) if c.TL else 0
    for i, (pr, t) in enumerate([(pr, t) for pr in range(2) for t in range(TB)]):
        if i < nin: pair(ea, pr, t, opt.get("g3_scalar", 0))
        else: pair(eb, pr, t)
    if c.TL:
        nst = opt.get("g3_east", c.TL - 1)
        per = -(-len(ea.L) // nst)
        c.step_extra = lambda st: ea.L[(st - 32) * per:(st - 31) * per] if st >= 32 else []
    c.run(k)
    k.stamp("g3 loop done")
    if not c.TL: k("s_nop 7")
    for x in eb.L: k(x)
    mkA = len(k.L)
    k("s_nop 4\ns_barrier")
    na = opt.get("g3_pubA", 2)
    for t in range(na): pair(k, 2, t)
    publish(k, 93, 252, mkA)
    k.stamp("hA published")
    mark3 = len(k.L)
    for t in range(na, TB): pair(k, 2, t)
    grp = []
    for j in range(8):
        t_ = g4.prefetch_txt(1); grp.append(t_[:-1] + ["s_nop 0", t_[-1]])
    sprinkle(k, mark3, grp)
    for t in range(TB):
        act(k, [6], t)
        d = G(6, t)
        k(f"v_cvt_pk_bf16_f32 v{d}, v{Uu(6,t)}, v{Uu(6,t)+1}\nv_cvt_pk_bf16_f32 v{d+1}, v{Uu(6,t)+2}, v{Uu(6,t)+3}")
        k(f"buffer_store_dwordx2 {vr(d,2)}, v{SB}, {sr(SRD_C,4)}, s{88+t} offen offset:3072 sc1")
    k.stamp("hh stored")
    return g4

def phase_gemm4(k, c, opt):
    LANE, L16 = c.LANE, c.L16
    VT = 40
    srd(k, SRD_T, P_WS, S * F * 2, WS_HH)
    srd(k, SRD_A, P_OUT, S * D * 2)
    k(f"v_and_b32 v{VT}, 31, v{LANE}\nv_lshlrev_b32 v{VT}, 2, v{VT}")
    k(f"s_lshl_b32 s84, s{S_RB2}, 1\ns_lshr_b32 s85, s{S_WAVE}, 1\ns_add_u32 s84, s84, s85\ns_lshl_b32 s84, s84, {FS+5}\ns_add_u32 s84, s84, {F_HH}")
    wait_flags(k, [(VT, 84, 1)], VT + 1)
    k.stamp("hh ready")
    V_G, V_GA, V_XA, V_X = 64, 44, 45, 48
    p = Txt()
    p(f"v_lshrrev_b32 v{VT}, 4, v{LANE}\nv_lshlrev_b32 v{V_GA}, 4, v{VT}\nv_add_u32 v{V_GA}, {L_MV}, v{V_GA}")
    p(f"v_and_b32 v{VT+1}, 15, v{LANE}\nv_lshlrev_b32 v{VT+1}, 11, v{VT+1}")
    p(f"v_and_b32 v{VT+2}, 1, v{VT}\nv_lshl_add_u32 v{VT+1}, v{VT+2}, 5, v{VT+1}")
    p(f"v_lshrrev_b32 v{VT+2}, 1, v{VT}\nv_lshl_add_u32 v{V_XA}, v{VT+2}, 4, v{VT+1}")
    p(f"s_lshl_b32 s86, s{S_RB2}, 3\ns_lshl_b32 s87, s{S_WAVE}, 1\ns_add_u32 s86, s86, s87\ns_lshl_b32 s86, s86, 15\ns_lshl_b32 s87, s{S_NT}, 7\ns_add_u32 s86, s86, s87\ns_add_u32 s87, s86, 32768")
    for j in range(16): p(f"v_accvgpr_read_b32 v{V_X+j}, a{A_X1+j}")
    c.pre_loop_txt = p.L
    c.last_reads = [f"ds_read_b128 {vr(V_G+4*b,4)}, v{V_GA} offset:{768+b*64}" for b in range(4)]
    c.run(k)
    k.stamp("g4 loop done")
    k("s_waitcnt lgkmcnt(0)\ns_nop 7")
    A = lambda b, t: (b * 2 + t) * 4
    XT = 96
    for t in range(2):
        for b in range(4):
            xr = V_X + (t * 4 + b) * 2
            for h in range(2): k(f"v_lshlrev_b32 v{XT+2*h}, 16, v{xr+h}\nv_and_b32 v{XT+2*h+1}, 0xffff0000, v{xr+h}")
            for h in range(2): k(f"v_pk_fma_f32 {vr(A(b,t)+2*h,2)}, {vr(A(b,t)+2*h,2)}, {vr(V_G+4*b+2*h,2)}, {vr(XT+2*h,2)}")
        PK = XT + 4 + t * 8
        for b in range(4): k(f"v_cvt_pk_bf16_f32 v{PK+2*b}, v{A(b,t)}, v{A(b,t)+1}\nv_cvt_pk_bf16_f32 v{PK+2*b+1}, v{A(b,t)+2}, v{A(b,t)+3}")
        k("s_nop 1")
        for s_ in range(2): k(f"v_permlane16_swap_b32 v{PK+4*s_}, v{PK+4*s_+2}\nv_permlane16_swap_b32 v{PK+4*s_+1}, v{PK+4*s_+3}")
        for s_ in range(2): k(f"buffer_store_dwordx4 {vr(PK+4*s_,4)}, v{V_XA}, {sr(SRD_A,4)}, s{86+t} offen offset:{s_*64}")

def build_mega(instr=False, opt=None, name="mega_kernel"):
    opt = opt or {}
    k = Mega(name, 256, 256, LDS_TOTAL, vgpr=256, agpr=256, sgpr=102)
    k.instr = instr; k.names = []; k.only = opt.get("only")
    end = k.label("end")
    far = k.label("go")
    k(f"s_cmp_lt_u32 s2, 256\ns_cbranch_scc1 {far}\ns_endpgm\n{far}:")
    if opt.get("fused", 1):
        code_prefetch_setup(k, name)
        k("v_and_b32 v104, 63, v0\nv_lshlrev_b32 v105, 4, v104\nv_lshlrev_b32 v254, 5, v0")
        k("global_load_dword a232, v254, s[100:101]")
        k("s_load_dwordx2 s[96:97], s[0:1], 88")
    k("s_load_dwordx8 s[4:11], s[0:1], 0")
    k("s_load_dwordx2 s[12:13], s[0:1], 64")
    k("s_load_dwordx2 s[14:15], s[0:1], 40")
    k("s_load_dwordx4 s[16:19], s[0:1], 48")
    k("s_load_dwordx2 s[98:99], s[0:1], 72")
    k("s_load_dwordx2 s[24:25], s[0:1], 80")
    k("s_load_dwordx2 s[28:29], s[0:1], 96")
    if instr: k(f"v_mov_b32 v{VSTAMP}, 0")
    ids(k)
    k(f"s_lshr_b32 s80, s{S_IDX}, 2\ns_add_u32 s{S_R4}, s80, s{S_IDX}\ns_and_b32 s81, s{S_IDX}, 3\ns_lshl_b32 s81, s81, 1\ns_add_u32 s{S_R8}, s80, s81")
    k(f"s_and_b32 s80, s{S_IDX}, 3\ns_lshl_b32 s{S_FT}, s{S_XCD}, 2\ns_add_u32 s{S_FT}, s{S_FT}, s80\ns_lshr_b32 s{S_RB3}, s{S_IDX}, 2")
    if opt.get("fused", 1):
        for x in code_prefetch_txt(name, 105, 254, 80): k(x)
    k.stamp("start")
    g1 = (phase_front_fused if opt.get("fused", 1) else phase_front)(k, opt, name)
    g2 = phase_gemm1(k, g1, opt)
    g3 = phase_gemm2(k, g2, opt)
    g4 = phase_gemm3(k, g3, opt)
    (phase_gemm4p if opt.get('g4_pair', 1) else phase_gemm4)(k, g4, opt)
    if instr:
        k("s_waitcnt vmcnt(0)")
        k.stamp("end")
        k(f"s_add_u32 s84, s{P_WS}, {WS_DBG}\ns_addc_u32 s85, s{P_WS+1}, 0\ns_mov_b32 s86, 0x100000\ns_mov_b32 s87, 0x20000")
        k(f"s_lshl_b32 s88, s2, 2\ns_add_u32 s88, s88, s{S_WAVE}\ns_lshl_b32 s88, s88, 8")
        lane_id(k, 1)
        k("v_lshlrev_b32 v1, 2, v1")
        k(f"buffer_store_dword v{VSTAMP}, v1, s[84:87], s88 offen")
    k("s_endpgm")
    k(f"{name}_end:")
    return k
```

```python
import sys, json
from asmlib import *
from mega import build_mega
NAME = "adaLN_cond__linear_kernel_hedgehog__glu_gated_swiglu__prompt"
opt = json.loads(sys.argv[1]) if len(sys.argv) > 1 else {}
out = sys.argv[2] if len(sys.argv) > 2 else f"cdna_kernels/{NAME}.s"
hdr = open(f"cdna_kernels/{NAME}.s.ref").read().split("; Override")[0]
m = build_mega(instr=bool(opt.get('dbgout') or opt.get('diag')), opt=opt, name=NAME + "_kernel")
txt = build_file([m], hdr).replace(f"; @launch kernel={NAME}_kernel ", "; @launch ")
txt = txt.replace(f"L_{NAME}_kernel_", "L_")
from build import postproc
txt = postproc(txt, opt)
if opt.get('trim', 0):
    from trim import trim_nops
    txt, sv = trim_nops(txt); print('nop states saved', sv)
if opt.get('align', 1):
    from align import align
    txt, nw, nn = align(txt, NAME + '_kernel'); print('aligned', nw, nn)
doc = """; One persistent kernel, 256 workgroups x 4 waves (one per CU), generated by own scripts. Phases, linked by
"""
txt = txt.replace('.amdgcn_target', doc + '.amdgcn_target', 1)
open(out, "w").write(txt)
print(m.names)
```

```python
import sys
from asmlib import *
from gemm import *
from layout import *
LOG2E = 1.4426950408889634
P_X, P_WQKV, P_WPHI, P_WO, P_W1, P_W3, P_W2, P_OUT, P_WS = 4, 6, 8, 10, 14, 16, 18, 24, 28
P_DBG, S_MB, S_MO = 96, 77, 79
P_C, P_WMOD = 12, 98
S_WAVE, S_XCD, S_IDX = 3, 30, 31
SRD_W, SRD_T, SRD_A, SRD_B, SRD_C, SRD_D, SRD_F = 32, 36, 40, 44, 48, 52, 56
S_KW, S_KT, S_WB, S_ROT, S_TMP, S_ROT2 = 60, 62, 76, 77, 78, 79
S_RB1, S_HP, S_RB2, S_NT, S_RB3, S_FT = 26, 27, 26, 27, 22, 23
S_R8, S_R4 = 20, 21
VSTAMP = 255
L_WPH, L_UTC = 101376, 105472
L_UT3, L_MV, L_R2 = 114688, 128000, 129792
LDS_TOTAL = 163584

class Mega(Kernel):
    nst = 0
    only = None
    def stamp(self, name=""):
        if not self.instr: return
        if self.only is not None and not any(name.startswith(o) for o in self.only): return
        self("s_waitcnt lgkmcnt(0)\ns_memrealtime s[0:1]\ns_waitcnt lgkmcnt(0)")
        self(f"v_writelane_b32 v{VSTAMP}, s0, {self.nst}")
        self("s_nop 3\ns_memtime s[0:1]\ns_waitcnt lgkmcnt(0)")
        self(f"v_writelane_b32 v{VSTAMP}, s0, {self.nst + 32}")
        self.names.append(name); self.nst += 1

def lane_id(k, v):
    k(f"v_mbcnt_lo_u32_b32 v{v}, -1, 0\nv_mbcnt_hi_u32_b32 v{v}, -1, v{v}")

def code_prefetch_setup(k, name, s_pc=100):
    lab = k.label("pc")
    k(f"s_getpc_b64 s[{s_pc}:{s_pc+1}]")
    k(f"{lab}:")
    k(f"s_sub_u32 s{s_pc}, s{s_pc}, {lab}-{name}\ns_subb_u32 s{s_pc+1}, s{s_pc+1}, 0")
def code_prefetch_txt(name, v_l16, vt, s_tmp, s_idx=S_IDX, s_wave=S_WAVE, s_pc=100, junk="a232"):
    return [f"s_lshl_b32 s{s_tmp}, s{s_idx}, 2", f"s_add_u32 s{s_tmp}, s{s_tmp}, s{s_wave}", f"s_lshl_b32 s{s_tmp}, s{s_tmp}, 10",
            f"v_add_u32 v{vt}, s{s_tmp}, v{v_l16}", f"v_min_u32 v{vt}, {name}_end-{name}-4, v{vt}",
            f"global_load_dword {junk}, v{vt}, s[{s_pc}:{s_pc+1}]"]

def count_vm(k, mark):
    return sum(1 for x in k.L[mark:] if is_vm(x))
def publish(k, s_off, vt, mark=None):
    k(f"v_mov_b32 v{vt}, 1\nv_mov_b32 v{vt+1}, 0")
    n = 0 if mark is None else count_vm(k, mark)
    assert n < 64
    k(f"s_waitcnt vmcnt({n})")
    k(f"buffer_store_dword v{vt}, v{vt+1}, {sr(SRD_F,4)}, s{s_off} offen sc1")

def spin(k, loads, regs, vt, s_cnt=96):
    top, ok = k.label("poll"), k.label("ok")
    k(f"s_mov_b32 s{s_cnt}, 0")
    k(f"{top}:")
    for x in loads: k(x)
    k("s_waitcnt vmcnt(0)")
    if len(regs) == 1: k(f"v_cmp_eq_u32 vcc, 0, v{regs[0]}")
    else:
        k(f"v_min_u32 v{vt}, v{regs[0]}, v{regs[1]}")
        for x in regs[2:]: k(f"v_min_u32 v{vt}, v{vt}, v{x}")
        k(f"v_cmp_eq_u32 vcc, 0, v{vt}")
    k(f"s_add_u32 s{s_cnt}, s{s_cnt}, 1")
    k(f"s_cmp_eq_u64 vcc, 0\ns_cbranch_scc1 {ok}")
    k(f"s_sleep {SLEEP}\ns_cmp_lt_u32 s{s_cnt}, 0x40000\ns_cbranch_scc1 {top}")
    k(f"{ok}:")

def wait_flags(k, polls, vt, s_cnt=96):
    top, ok = k.label("poll"), k.label("ok")
    k(f"s_mov_b32 s{s_cnt}, 0")
    k(f"{top}:")
    r = vt
    regs = []
    for va, so, ndw in polls:
        if ndw == 4: r = (r + 1) // 2 * 2
        k(f"buffer_load_dword{'x4' if ndw == 4 else ''} {vr(r,ndw)}, v{va}, {sr(SRD_F,4)}, s{so} offen sc1")
        regs += list(range(r, r + ndw)); r += ndw
    k("s_waitcnt vmcnt(0)")
    for x in regs[1:]: k(f"v_min_u32 v{regs[0]}, v{regs[0]}, v{x}")
    k(f"v_cmp_eq_u32 vcc, 0, v{regs[0]}")
    k(f"s_add_u32 s{s_cnt}, s{s_cnt}, 1")
    k(f"s_cmp_eq_u64 vcc, 0\ns_cbranch_scc1 {ok}")
    k(f"s_sleep {SLEEP}\ns_cmp_lt_u32 s{s_cnt}, 0x40000\ns_cbranch_scc1 {top}")
    k(f"{ok}:")

def staged_wait(k, c, T_, v_addr, s_off, vf, prod_of, dup16=False, skip_first=0, s_m=97, pub=None):
    ld = f"buffer_load_dword v{vf}, v{v_addr}, {sr(SRD_F,4)}, s{s_off} offen sc1"
    if T_ is None:
        spin(k, [ld], [vf], 0); return
    k(f"s_mov_b32 s{s_m}, 0")
    for kt in range(skip_first, T_):
        for x in c.pos_txt(80, kt): k(x)
        for x in prod_of(80, 81): k(x)
        k(f"s_or_b32 s{s_m}, s{s_m}, s81")
    if dup16: k(f"s_lshl_b32 s81, s{s_m}, 16\ns_or_b32 s{s_m}, s{s_m}, s81")
    top, ok = k.label("poll"), k.label("ok")
    if pub:
        mk = len(k.L); k(ld); publish(k, pub[0], pub[1], mk)
        k("s_waitcnt vmcnt(1)")
        k(f"v_cmp_eq_u32 vcc, 0, v{vf}\ns_nop 0")
        k(f"s_and_b32 s81, vcc_lo, s{s_m}\ns_cbranch_scc0 {ok}")
    k(f"s_mov_b32 s96, 0\n{top}:")
    k(ld)
    k("s_waitcnt vmcnt(0)")
    k(f"v_cmp_eq_u32 vcc, 0, v{vf}")
    k("s_add_u32 s96, s96, 1")
    k(f"s_and_b32 s81, vcc_lo, s{s_m}\ns_cbranch_scc0 {ok}")
    k(f"s_sleep {SLEEP}\ns_cmp_lt_u32 s96, 0x40000\ns_cbranch_scc1 {top}")
    k(f"{ok}:")
    add_gate(k, c, T_, ld, vf)
def add_gate(k, c, tile, ld, vf):
    m = Txt(); m.label = k.label
    okl = k.label("gok")
    m(f"v_cmp_eq_u32 vcc, 0, v{vf}\ns_cmp_eq_u64 vcc, 0\ns_cbranch_scc1 {okl}")
    spin(m, [ld], [vf], 0)
    m(f"{okl}:")
    c.gates = list(c.gates) + [(tile, [VM(ld, ("gate", tile))], [WVM([("gate", tile)]), T("\n".join(m.L))])]
one_prod = lambda sp, st: [f"s_lshl_b32 s{st}, 1, s{sp}"]

def allreduce_q(k, op, x, tmp):
    k(f"v_mov_b32 v{tmp}, v{x}\ns_nop 1")
    k(f"v_permlane32_swap_b32 v{x}, v{tmp}")
    k(f"s_nop 1\n{op} v{x}, v{x}, v{tmp}")
    k(f"v_mov_b32 v{tmp}, v{x}\ns_nop 1")
    k(f"v_permlane16_swap_b32 v{x}, v{tmp}")
    k(f"s_nop 1\n{op} v{x}, v{x}, v{tmp}")

def treduce4(k, op, A):
    a, b, c, d = A
    k("s_nop 1")
    k(f"v_permlane32_swap_b32 v{a}, v{b}\nv_permlane32_swap_b32 v{c}, v{d}")
    k("s_nop 1")
    k(f"{op} v{a}, v{a}, v{b}\n{op} v{c}, v{c}, v{d}")
    k("s_nop 1")
    k(f"v_permlane16_swap_b32 v{a}, v{c}")
    k("s_nop 1")
    k(f"{op} v{a}, v{a}, v{c}")
    k(f"v_mov_b32 v{c}, v{a}")
    k("s_nop 1")
    k(f"v_permlane16_swap_b32 v{a}, v{c}")
    k("s_nop 1")
    k(f"v_mov_b32 v{b}, v{a}\nv_mov_b32 v{d}, v{c}")
    k("s_nop 1")
    k(f"v_permlane32_swap_b32 v{a}, v{b}\nv_permlane32_swap_b32 v{c}, v{d}")
    k("s_nop 1")

def red8(k, x):
    for m in ("quad_perm:[1,0,3,2]", "quad_perm:[2,3,0,1]", "row_half_mirror"):
        k(f"s_nop 1\nv_add_f32_dpp v{x}, v{x}, v{x} {m} row_mask:0xf bank_mask:0xf")

def round_bf16(k, v):
    k(f"v_cvt_pk_bf16_f32 v{v}, v{v}, v{v}\nv_and_b32 v{v}, 0xffff0000, v{v}")

S_DLA, S_DLB, S_PTMP = 71, 6, 75
def order(c, k, opt, tag, default):
    o = opt.get(tag + "_ord", default)
    c.tag = tag; c.stamp_every = opt.get(tag + "_se", 0)
    c.fine = opt.get(tag + "_fine", opt.get("fine", 0)); c.bar_frac = opt.get("bar_frac", 0.3)
    c.s_rot, c.s_rot2 = S_R8, S_R4
    if o[0] == "lead":
        c.lead_D, c.s_dl = o[1], S_DLA
    else:
        c.wins = win_mask(o[1])
        if o[2]:
            c.s_start = S_HP
            c.s_rot = c.s_rot2 = S_RB3
def common_gemm(c):
    c.srd_w, c.srd_t = SRD_W, SRD_T
    c.s_kw, c.s_kt, c.s_wbase, c.s_ptmp = S_KW, S_KT, S_WB, S_PTMP

def setup_gemm1(k, opt):
    c = Sched(); common_gemm(c)
    NS, R = opt.get("g1_NS", 4), opt.get("g1_R", 4)
    STAGE = 25344
    c.V_RD, c.V_DMA, c.V_TOK, c.LANE, c.L16, c.VT = 96, 98, 102, 104, 105, 106
    V_RD, V_DMA, V_TOK, LANE, L16, VT = c.V_RD, c.V_DMA, c.V_TOK, c.LANE, c.L16, 110
    k(f"v_lshlrev_b32 v{L16}, 4, v{LANE}")
    c.lead_D, c.s_dl = opt.get("D", 0), S_DLA
    if opt.get("uselead", 0): c.lead_init(k, S_R4, 81)
    c.lead_D = None
    order(c, k, opt, "g1", ["win", [8, 8], 0])
    k(f"s_lshr_b32 s80, s{S_WAVE}, 1\ns_and_b32 s81, s{S_WAVE}, 1")
    k(f"v_lshrrev_b32 v{VT+1}, 3, v{LANE}")
    k(f"v_and_b32 v{VT+2}, 4, v{VT+1}")
    k(f"v_bfe_u32 v{VT+3}, v{VT+1}, 1, 1\nv_or_b32 v{VT+2}, v{VT+2}, v{VT+3}")
    k(f"v_and_b32 v{VT+3}, 1, v{VT+1}\nv_lshl_or_b32 v{VT+2}, v{VT+3}, 1, v{VT+2}")
    k(f"v_mul_u32_u24 v{VT+2}, {4*6144}, v{VT+2}")
    k(f"v_and_b32 v{VT+3}, 7, v{LANE}\nv_lshl_add_u32 v{VT+2}, v{VT+3}, 4, v{VT+2}")
    k("s_lshl_b32 s82, s80, 5\ns_lshl_b32 s83, s81, 1\ns_add_u32 s82, s82, s83\ns_mul_i32 s82, s82, 6144")
    k(f"s_lshl_b32 s83, s{S_HP}, 7\ns_add_u32 s82, s82, s83")
    k(f"v_add_u32 v{V_DMA}, s82, v{VT+2}")
    k(f"v_add_u32 v{V_DMA+1}, 6144, v{V_DMA}\nv_add_u32 v{V_DMA+2}, 4096, v{V_DMA}\nv_add_u32 v{V_DMA+3}, {6144+4096}, v{V_DMA}")
    k(f"v_bfe_u32 v{VT+1}, v{LANE}, 2, 2\nv_mul_u32_u24 v{VT+1}, 1056, v{VT+1}")
    k(f"v_lshrrev_b32 v{VT+2}, 5, v{LANE}\nv_lshl_add_u32 v{VT+1}, v{VT+2}, 9, v{VT+1}")
    k(f"v_bfe_u32 v{VT+2}, v{LANE}, 4, 1\nv_lshl_add_u32 v{VT+1}, v{VT+2}, 7, v{VT+1}")
    k(f"v_and_b32 v{VT+3}, 3, v{LANE}\nv_lshl_add_u32 v{V_RD}, v{VT+3}, 3, v{VT+1}")
    k(f"v_add_u32 v{V_RD+1}, {2*STAGE}, v{V_RD}")
    k(f"s_lshl_b32 s82, s{S_RB1}, 3\ns_lshl_b32 s83, s{S_WAVE}, 1\ns_add_u32 s82, s82, s83\ns_lshl_b32 s82, s82, 15")
    k(f"v_add_u32 v{V_TOK}, s82, v{L16}\nv_add_u32 v{V_TOK+1}, 0x8000, v{V_TOK}")
    k(f"s_mul_i32 s{S_WB}, s80, 4224\ns_mul_i32 s82, s81, 2112\ns_add_u32 s{S_WB}, s{S_WB}, s82")
    c.NB, c.TB, c.KS, c.SPK, c.KT, c.NS, c.R = 12, 2, 1, 2, 16, NS, R
    c.acc = lambda b, t: vr((b * 2 + t) * 4, 4)
    c.tf = lambda slot, ks, t: 96 + (slot * 2 + t) * 4
    c.rd = lambda sl, b, sub, r: (V_RD + sl // 2, (sl % 2) * STAGE + (b // 4) * 8448 + sub * 4224 + r * 256 + (b % 4) * 32)
    c.slot_addr = lambda sl: sl * STAGE
    c.dma = [(V_DMA, 0, 0), (V_DMA + 1, 1056, 0), (V_DMA, 8448, 2048), (V_DMA + 1, 8448 + 1056, 2048), (V_DMA + 2, 16896, 0), (V_DMA + 3, 16896 + 1056, 0)]
    c.v_tok = [V_TOK, V_TOK + 1]
    c.w_stride = 64 * 6144
    c.drop = opt.get("g1_drop", ())
    c.pro_units, c.ramp_rate, c.read_margin = opt.get("g1_pro", 6), opt.get("g1_ramp", 6), opt.get("g1_rm", 6)
    std_sched(c)
    return c

A_UT = 176
def silu_block(k, regs):
    for v in regs: k(f"v_lshlrev_b32 v{v}, 16, v{v}\nv_mul_f32 v{v+1}, {-LOG2E!r}, v{v}")
    for v in regs: k(f"v_exp_f32 v{v+1}, v{v+1}")
    k("s_nop 0")
    for v in regs: k(f"v_add_f32 v{v+1}, 1.0, v{v+1}")
    for v in regs: k(f"v_rcp_f32 v{v+1}, v{v+1}")
    k("s_nop 0")
    for v in regs:
        k(f"v_mul_f32 v{v}, v{v}, v{v+1}"); round_bf16(k, v)

def modb_loads(s_off, v_w, v_c):
    out = []
    for i in range(8):
        out.append([f"buffer_load_dwordx4 {ar(A_UT+4*i,4)}, v{v_w}, {sr(SRD_D,4)}, s{s_off} offen", f"s_add_u32 s{s_off}, s{s_off}, {8*12288}"])
    return out

def red32(k, x, t):
    red8(k, x)
    k(f"s_nop 1\nv_add_f32_dpp v{x}, v{x}, v{x} row_mirror row_mask:0xf bank_mask:0xf")
    k(f"v_mov_b32 v{t}, v{x}\ns_nop 1\nv_permlane16_swap_b32 v{x}, v{t}\ns_nop 1\nv_add_f32 v{x}, v{x}, v{t}")

def ids(k):
    k("v_lshrrev_b32 v1, 6, v0")
    k(f"s_and_b32 s{S_XCD}, s2, 7\ns_lshr_b32 s{S_IDX}, s2, 3")
    k(f"v_readfirstlane_b32 s{S_WAVE}, v1")
    k(f"s_bfe_u32 s{S_RB1}, s{S_XCD}, 0x10001\ns_lshl_b32 s{S_RB1}, s{S_RB1}, 3\ns_lshr_b32 s80, s{S_IDX}, 2\ns_add_u32 s{S_RB1}, s{S_RB1}, s80")
    k(f"s_lshr_b32 s{S_HP}, s{S_XCD}, 2\ns_lshl_b32 s{S_HP}, s{S_HP}, 2\ns_and_b32 s80, s{S_IDX}, 3\ns_add_u32 s{S_HP}, s{S_HP}, s80\ns_lshl_b32 s{S_HP}, s{S_HP}, 1\ns_and_b32 s80, s{S_XCD}, 1\ns_add_u32 s{S_HP}, s{S_HP}, s80")

def build_k0(instr=False, opt=None, name="mod_kernel", mega="mega_kernel"):
    opt = opt or {}
    k = Kernel(name, 256, 256, 4096, vgpr=128, sgpr=102)
    k.instr = instr; k.s_wave = S_WAVE
    stamp(k, 0)
    end = k.label("end")
    k(f"s_cmp_ge_u32 s2, 256\ns_cbranch_scc1 {end}")
    k("s_load_dwordx4 s[12:15], s[0:1], 64")
    k("s_load_dwordx8 s[4:11], s[0:1], 0")
    k("s_load_dwordx2 s[28:29], s[0:1], 96")
    ids(k)
    LANE, T, V_W = 104, 48, 105
    WA, CA, XR, XF, A0, SU = 64, 80, 84, 0, 32, 100
    k(f"v_and_b32 v{LANE}, 63, v0")
    k(f"v_lshrrev_b32 v{T+1}, 3, v{LANE}\nv_and_b32 v{T+2}, 7, v{LANE}")
    k(f"v_mul_u32_u24 v{V_W}, 12288, v{T+1}\nv_lshl_add_u32 v{V_W}, v{T+2}, 4, v{V_W}")
    k(f"s_lshl_b32 s64, s{S_RB1}, 6\ns_lshl_b32 s65, s{S_WAVE}, 4\ns_add_u32 s64, s64, s65")
    k(f"v_add_u32 v{T+3}, s64, v{T+1}\nv_lshlrev_b32 v{T+3}, 1, v{T+3}")
    k(f"s_mul_i32 s67, s64, 12288\ns_lshl_b32 s66, s{S_HP}, 7\ns_add_u32 s67, s67, s66\ns_add_u32 s68, s67, {8*12288}")
    k(f"v_lshrrev_b32 v{T+4}, 5, v{LANE}\nv_lshlrev_b32 v{T+4}, 11, v{T+4}\nv_and_b32 v{T+5}, 31, v{LANE}\nv_lshl_add_u32 v{T+4}, v{T+5}, 4, v{T+4}")
    k(f"s_lshl_b32 s69, s{S_RB1}, 4\ns_add_u32 s69, s69, s{S_HP}")
    k(f"s_lshl_b32 s70, s69, 14\ns_lshl_b32 s71, s{S_WAVE}, 12\ns_add_u32 s70, s70, s71")
    k("s_waitcnt lgkmcnt(0)")
    srd(k, SRD_D, 14, D * 6 * D * 2)
    srd(k, SRD_A, P_X, S * D * 2)
    for i in range(2): k(f"global_load_ushort v{CA+2*i}, v{T+3}, s[12:13] offset:{i*16}")
    for i in range(2):
        for v in range(2): k(f"buffer_load_dwordx4 {vr(WA+(i*2+v)*4,4)}, v{V_W}, {sr(SRD_D,4)}, s{67+i} offen offset:{v*2048}")
    for i in range(4): k(f"buffer_load_dwordx4 {vr(XR+4*i,4)}, v{T+4}, {sr(SRD_A,4)}, s70 offen offset:{i*512}")
    stamp(k, 1)
    lab = k.label("pc")
    k(f"s_getpc_b64 s[60:61]\n{lab}:")
    k(f"s_add_u32 s60, s60, {mega}-{lab}\ns_addc_u32 s61, s61, 0")
    k(f"v_lshlrev_b32 v{T+6}, 4, v{LANE}")
    for x in code_prefetch_txt(mega, T + 6, T + 7, 62, s_pc=60, junk="v110"): k(x)
    srd(k, SRD_B, P_WS, MP_BYTES, WS_MODP)
    srd(k, SRD_F, P_WS, FLAG_BYTES, WS_FLAG)
    srd(k, SRD_C, P_WS, S * 128, WS_STAT)
    k(f"v_mov_b32 v{T+8}, 0\nv_lshlrev_b32 v{T+9}, 2, v0\ns_lshl_b32 s62, s2, 10\ns_add_u32 s63, s62, {MP_B}")
    k(f"v_lshlrev_b32 v{T+10}, {FS}, v0\ns_lshl_b32 s66, s2, {FS+8}")
    k(f"buffer_store_dword v{T+8}, v{T+10}, {sr(SRD_F,4)}, s66 offen")
    k(f"buffer_store_dword v{T+8}, v{T+9}, {sr(SRD_C,4)}, s62 offen")
    k(f"buffer_store_dword v{T+8}, v{T+9}, {sr(SRD_B,4)}, s63 offen")
    young = 4
    k(f"s_lshl_b32 s62, s2, 2\ns_add_u32 s62, s62, s{S_WAVE}")
    for ptr, per, tag in ((P_WQKV, 6, "t_wq"), (P_WO, 2, "t_wo"), (14, 12, "t_wm")):
        if not opt.get(tag, 1): continue
        k(f"s_mul_i32 s63, s62, {per*1024}\ns_add_u32 s63, s63, 384")
        k(f"v_min_u32 v{T+14}, {per-1}, v{LANE}\nv_lshlrev_b32 v{T+14}, 10, v{T+14}\nv_add_u32 v{T+14}, s63, v{T+14}")
        k(f"global_load_dword v110, v{T+14}, s[{ptr}:{ptr+1}]")
        young += 1
    k(f"s_waitcnt vmcnt({young + 8})")
    silu_block(k, [CA, CA + 2])
    k(f"s_waitcnt vmcnt({young + 4})")
    for i in range(2):
        for v in range(2):
            for d in range(4):
                w_ = WA + (i * 2 + v) * 4 + d
                k(f"v_lshlrev_b32 v{T+10}, 16, v{w_}\nv_and_b32 v{T+11}, 0xffff0000, v{w_}")
                if i == 0: k(f"v_pk_mul_f32 {vr(A0+v*8+2*d,2)}, {vr(T+10,2)}, {vr(CA,2)} op_sel_hi:[1,0]")
                else: k(f"v_pk_fma_f32 {vr(A0+v*8+2*d,2)}, {vr(T+10,2)}, {vr(CA+2,2)}, {vr(A0+v*8+2*d,2)} op_sel_hi:[1,0,1]")
    k("s_nop 1")
    for j in range(8): k(f"v_permlane32_swap_b32 v{A0+j}, v{A0+8+j}")
    k("s_nop 1")
    for j in range(8): k(f"v_add_f32 v{A0+j}, v{A0+j}, v{A0+8+j}")
    k("s_nop 1")
    for j in range(4): k(f"v_permlane16_swap_b32 v{A0+j}, v{A0+4+j}")
    k("s_nop 1")
    for j in range(4): k(f"v_add_f32 v{A0+j}, v{A0+j}, v{A0+4+j}")
    k("s_nop 1")
    for j in range(4): k(f"v_add_f32_dpp v{A0+j}, v{A0+j}, v{A0+j} row_ror:8 row_mask:0xf bank_mask:0xf")
    k(f"v_lshrrev_b32 v{T+12}, 5, v{LANE}\nv_lshlrev_b32 v{T+13}, 8, v{T+12}\nv_lshl_add_u32 v{T+13}, v{T+2}, 5, v{T+13}")
    k(f"v_bfe_u32 v{T+10}, v{LANE}, 4, 1\nv_lshl_add_u32 v{T+13}, v{T+10}, 4, v{T+13}\ns_lshl_b32 s62, s{S_WAVE}, 9\nv_add_u32 v{T+13}, s62, v{T+13}")
    k(f"ds_write_b128 v{T+13}, {vr(A0,4)}")
    k("s_waitcnt lgkmcnt(0)\ns_barrier")
    nw0 = k.label("notw0")
    k(f"s_cmp_lg_u32 s{S_WAVE}, 0\ns_cbranch_scc1 {nw0}")
    k(f"v_lshlrev_b32 v{T+13}, 3, v{LANE}")
    for w in range(4): k(f"ds_read_b64 {vr(A0+2*w,2)}, v{T+13} offset:{w*512}")
    k(f"s_lshl_b32 s62, s{S_HP}, 13\ns_lshl_b32 s63, s{S_RB1}, 9\ns_add_u32 s63, s63, s62")
    k("s_waitcnt lgkmcnt(0)")
    k(f"v_pk_add_f32 {vr(A0,2)}, {vr(A0,2)}, {vr(A0+2,2)}\nv_pk_add_f32 {vr(A0+4,2)}, {vr(A0+4,2)}, {vr(A0+6,2)}\nv_pk_add_f32 {vr(A0,2)}, {vr(A0,2)}, {vr(A0+4,2)}")
    k(f"buffer_store_dwordx2 {vr(A0,2)}, v{T+13}, {sr(SRD_B,4)}, s63 offen")
    k(f"{nw0}:")
    stamp(k, 2)
    k(f"s_waitcnt vmcnt({young})")
    for d in range(16): k(f"v_lshlrev_b32 v{XF+2*d}, 16, v{XR+d}\nv_and_b32 v{XF+2*d+1}, 0xffff0000, v{XR+d}")
    k(f"v_pk_add_f32 {vr(SU,2)}, {vr(XF,2)}, {vr(XF+2,2)}")
    for d in range(2, 16): k(f"v_pk_add_f32 {vr(SU,2)}, {vr(SU,2)}, {vr(XF+2*d,2)}")
    k(f"v_add_f32 v{SU}, v{SU}, v{SU+1}")
    red32(k, SU, SU + 1)
    k(f"v_mul_f32 v{SU+2}, {-1.0/1024!r}, v{SU}")
    k(f"v_mov_b32 v{SU}, 0\nv_mov_b32 v{SU+1}, 0")
    for d in range(16):
        k(f"v_pk_add_f32 {vr(XF+2*d,2)}, {vr(XF+2*d,2)}, {vr(SU+2,2)} op_sel_hi:[1,0]")
        k(f"v_pk_fma_f32 {vr(SU,2)}, {vr(XF+2*d,2)}, {vr(XF+2*d,2)}, {vr(SU,2)}")
    k(f"v_add_f32 v{SU}, v{SU}, v{SU+1}")
    red32(k, SU, SU + 1)
    k(f"v_mov_b32 v{SU+1}, 0x3727c5ac\nv_fmac_f32 v{SU+1}, {1.0/1024!r}, v{SU}\nv_rsq_f32 v{SU+3}, v{SU+1}")
    k(f"s_lshl_b32 s62, s69, 6\ns_lshl_b32 s63, s{S_WAVE}, 4\ns_add_u32 s62, s62, s63\ns_add_u32 s62, s62, {MP_RS}\nv_lshlrev_b32 v{T+12}, 3, v{T+12}")
    k(f"buffer_store_dwordx2 {vr(SU+2,2)}, v{T+12}, {sr(SRD_B,4)}, s62 offen")
    stamp(k, 3)
    if instr: k("s_waitcnt vmcnt(0)")
    stamp(k, 4)
    stamp_flush(k, 28, 5, 4, slot=1)
    k(f"{end}:\ns_endpgm")
    return k

def phase_front_fused(k, opt, name):
    LANE, L16 = 104, 105
    T = 48
    V_W, V_C = 115, 109
    WA, CA, XR, XT_, XF, A0, SU, G, M, RS = 64, 80, 128, 144, 0, 200, 216, 160, 32, 84
    HL = 2 * 25344
    k(f"v_lshrrev_b32 v{T+1}, 3, v{LANE}\nv_and_b32 v{T+2}, 7, v{LANE}")
    k(f"v_mul_u32_u24 v{V_W}, 12288, v{T+1}\nv_lshl_add_u32 v{V_W}, v{T+2}, 4, v{V_W}")
    k(f"s_lshl_b32 s84, s{S_RB1}, 6")
    k(f"v_add_u32 v{V_C}, s84, v{T+1}\nv_lshlrev_b32 v{V_C}, 1, v{V_C}")
    k(f"s_lshl_b32 s85, s{S_WAVE}, 5\nv_add_u32 v{T+3}, s85, v{V_C}")
    k(f"s_mul_i32 s86, s84, 12288\ns_lshl_b32 s87, s{S_HP}, 7\ns_add_u32 s86, s86, s87")
    k(f"s_mul_i32 s87, s{S_WAVE}, {16*12288}\ns_add_u32 s87, s87, s86\ns_add_u32 s88, s87, {8*12288}")
    k(f"v_lshrrev_b32 v{T+4}, 5, v{LANE}\nv_lshlrev_b32 v{T+4}, 11, v{T+4}\nv_and_b32 v{T+5}, 31, v{LANE}\nv_lshl_add_u32 v{T+4}, v{T+5}, 4, v{T+4}")
    k(f"s_lshl_b32 s89, s{S_RB1}, 4\ns_add_u32 s89, s89, s{S_HP}")
    k(f"s_lshl_b32 s90, s89, 14\ns_lshl_b32 s91, s{S_WAVE}, 12\ns_add_u32 s90, s90, s91")
    k(f"v_mov_b32 v{T+8}, 0\nv_mov_b32 v{T+9}, 0\nv_mov_b32 v{T+10}, 0\nv_mov_b32 v{T+11}, 0\nv_mov_b32 v{T+12}, 1")
    k(f"v_lshlrev_b32 v{T+7}, {FS}, v{LANE}")
    k(f"s_lshl_b32 s93, s2, {FS+6}\ns_add_u32 s93, s93, {F_S0}\ns_cmp_lt_u32 s2, 4\ns_cselect_b32 s93, s93, 0x7ff00000\ns_cmp_eq_u32 s{S_WAVE}, 3\ns_cselect_b32 s93, s93, 0x7ff00000")
    k("s_waitcnt lgkmcnt(0)")
    srd(k, SRD_F, P_WS, FLAG_BYTES, WS_FLAG)
    k(f"buffer_store_dword v{T+8}, v{T+7}, {sr(SRD_F,4)}, s93 offen sc1")
    k(f"s_mov_b32 s{SRD_T}, s{P_DBG}\ns_mov_b32 s{SRD_T+1}, s{P_DBG+1}\ns_mov_b32 s{SRD_T+2}, 256\ns_mov_b32 s{SRD_T+3}, 0x20000")
    k("s_mov_b32 s95, s93")
    srd(k, SRD_D, P_WMOD, D * 6 * D * 2)
    srd(k, SRD_A, P_X, S * D * 2)
    for i in range(2): k(f"global_load_ushort v{CA+2*i}, v{T+3}, s[{P_C}:{P_C+1}] offset:{i*16}")
    for i in range(2):
        for v in range(2): k(f"buffer_load_dwordx4 {vr(WA+(i*2+v)*4,4)}, v{V_W}, {sr(SRD_D,4)}, s{87+i} offen offset:{v*2048}")
    for i in range(4): k(f"buffer_load_dwordx4 {vr(XR+4*i,4)}, v{T+4}, {sr(SRD_A,4)}, s90 offen offset:{i*512}")
    k.stamp("loads issued")
    srd(k, SRD_B, P_WS, MP_BYTES, WS_MODP)
    srd(k, SRD_C, P_WS, S * 128, WS_STAT)
    w3, jn = k.label("w3"), k.label("join")
    k(f"s_cmp_eq_u32 s{S_WAVE}, 3\ns_cbranch_scc1 {w3}")
    k(f"s_lshl_b32 s92, s2, 1\ns_add_u32 s92, s92, s{S_WAVE}\ns_sub_u32 s92, s92, 1")
    nt_ = k.label("notouch")
    k("s_mov_b32 s93, 0x7ff00000")
    for i in range(2): k(f"buffer_load_dword a233, v{V_W}, {sr(SRD_D,4)}, s93 offen")
    k(f"s_cmp_eq_u32 s{S_WAVE}, 0\ns_cbranch_scc1 {nt_}")
    for ptr, per in ((P_WQKV, 12), (P_WO, 4), (P_WMOD, 24)):
        k(f"s_mul_i32 s93, s92, {per}\nv_min_u32 v{T+14}, {per-1}, v{LANE}\nv_add_u32 v{T+14}, s93, v{T+14}")
        k(f"v_lshlrev_b32 v{T+14}, 10, v{T+14}")
        k(f"global_load_dword a232, v{T+14}, s[{ptr}:{ptr+1}] offset:384")
    k(f"s_branch {jn}")
    k(f"{nt_}:")
    for i in range(3): k(f"buffer_load_dword a233, v{V_W}, {sr(SRD_D,4)}, s93 offen")
    k(f"s_branch {jn}")
    k(f"{w3}:")
    nb = k.label("nboot")
    k(f"s_cmp_eq_u32 s95, 0x7ff00000\ns_cbranch_scc1 {nb}")
    k("s_lshl_b32 s93, s2, 2\ns_waitcnt vmcnt(10)")
    k(f"buffer_store_dword v{T+12}, v{T+8}, {sr(SRD_T,4)}, s93 offen sc1")
    k(f"{nb}:")
    k(f"v_and_b32 v{T+14}, 3, v{LANE}\nv_lshlrev_b32 v{T+14}, 4, v{T+14}")
    k(f"s_lshl_b32 s93, s{S_RB1}, 6\ns_add_u32 s93, s93, s{S_HP}\nv_add_u32 v{T+15}, s93, v{T+14}")
    k(f"s_lshl_b32 s93, s{S_HP}, 6\ns_add_u32 s93, s93, s{S_RB1}\ns_add_u32 s93, s93, 1024\nv_add_u32 v{T+14}, s93, v{T+14}")
    k(f"v_cmp_gt_u32 vcc, 4, v{LANE}\ns_mul_i32 s93, s2, 20\ns_add_u32 s93, s93, 2040")
    k(f"v_cndmask_b32 v{T+14}, v{T+14}, v{T+15}, vcc\nv_add_u32 v{T+15}, s93, v{LANE}")
    k(f"v_cmp_gt_u32 vcc, 8, v{LANE}\ns_nop 1\nv_cndmask_b32 v{T+14}, v{T+15}, v{T+14}, vcc")
    k(f"v_cmp_gt_u32 vcc, 28, v{LANE}\nv_mov_b32 v{T+15}, 0x100000\ns_nop 0\nv_cndmask_b32 v{T+14}, v{T+15}, v{T+14}, vcc")
    k(f"v_lshlrev_b32 v{T+14}, {FS}, v{T+14}")
    k(f"buffer_store_dword v{T+8}, v{T+14}, {sr(SRD_F,4)}, 0 offen sc1")
    k("s_mov_b32 s93, 0x7ff00000")
    for i in range(2): k(f"buffer_load_dword a233, v{V_W}, {sr(SRD_D,4)}, s93 offen")
    k("s_lshl_b32 s93, s2, 10")
    k(f"buffer_store_dwordx4 {vr(T+8,4)}, v{L16}, {sr(SRD_C,4)}, s93 offen sc1")
    k(f"s_add_u32 s93, s93, {MP_B}")
    k(f"buffer_store_dwordx4 {vr(T+8,4)}, v{L16}, {sr(SRD_B,4)}, s93 offen sc1")
    k(f"{jn}:")
    k(f"v_lshlrev_b32 v{T+5}, 11, v{T+1}\nv_lshl_add_u32 v{T+5}, v{T+2}, 4, v{T+5}")
    k(f"s_lshl_b32 s91, s{S_RB1}, 18\ns_lshl_b32 s92, s{S_WAVE}, 16\ns_add_u32 s91, s91, s92\ns_lshl_b32 s92, s{S_HP}, 7\ns_add_u32 s91, s91, s92")
    for i in range(4):
        k(f"buffer_load_dwordx4 {vr(XT_+4*i,4)}, v{T+5}, {sr(SRD_A,4)}, s91 offen")
        if i < 3: k("s_add_u32 s91, s91, 16384")
    k(f"s_lshl_b32 s94, s{S_WAVE}, 11\ns_add_u32 s{S_MB}, s86, s94\ns_add_u32 s{S_MB}, s{S_MB}, 4096")
    k(f"s_lshl_b32 s94, s{S_WAVE}, 16\ns_lshl_b32 s95, s{S_HP}, 12\ns_add_u32 s94, s94, s95\ns_lshl_b32 s95, s{S_RB1}, 8\ns_add_u32 s94, s94, s95\ns_add_u32 s{S_MO}, s94, {MP_B}")
    young = 9
    k.stamp("all issued")
    k(f"s_waitcnt vmcnt({young + 8})")
    k.stamp("c ready")
    silu_block(k, [CA, CA + 2])
    k(f"s_waitcnt vmcnt({young + 4})")
    k.stamp("w ready")
    for i in range(2):
        for v in range(2):
            for d in range(4):
                w_ = WA + (i * 2 + v) * 4 + d
                k(f"v_lshlrev_b32 v{T+14}, 16, v{w_}\nv_and_b32 v{T+15}, 0xffff0000, v{w_}")
                if i == 0: k(f"v_pk_mul_f32 {vr(A0+v*8+2*d,2)}, {vr(T+14,2)}, {vr(CA,2)} op_sel_hi:[1,0]")
                else: k(f"v_pk_fma_f32 {vr(A0+v*8+2*d,2)}, {vr(T+14,2)}, {vr(CA+2,2)}, {vr(A0+v*8+2*d,2)} op_sel_hi:[1,0,1]")
    k("s_nop 1")
    for j in range(8): k(f"v_permlane32_swap_b32 v{A0+j}, v{A0+8+j}")
    k("s_nop 1")
    for j in range(8): k(f"v_add_f32 v{A0+j}, v{A0+j}, v{A0+8+j}")
    k("s_nop 1")
    for j in range(4): k(f"v_permlane16_swap_b32 v{A0+j}, v{A0+4+j}")
    k("s_nop 1")
    for j in range(4): k(f"v_add_f32 v{A0+j}, v{A0+j}, v{A0+4+j}")
    k("s_nop 1")
    for j in range(4): k(f"v_add_f32_dpp v{A0+j}, v{A0+j}, v{A0+j} row_ror:8 row_mask:0xf bank_mask:0xf")
    k(f"v_lshrrev_b32 v{T+13}, 5, v{LANE}\nv_lshlrev_b32 v{T+14}, 8, v{T+13}\nv_lshl_add_u32 v{T+14}, v{T+2}, 5, v{T+14}")
    k(f"v_bfe_u32 v{T+15}, v{LANE}, 4, 1\nv_lshl_add_u32 v{T+14}, v{T+15}, 4, v{T+14}\ns_lshl_b32 s94, s{S_WAVE}, 9\nv_add_u32 v{T+14}, s94, v{T+14}")
    k(f"ds_write_b128 v{T+14}, {vr(A0,4)} offset:{HL}")
    k(f"s_waitcnt vmcnt({young})")
    for d in range(16): k(f"v_lshlrev_b32 v{XF+2*d}, 16, v{XR+d}\nv_and_b32 v{XF+2*d+1}, 0xffff0000, v{XR+d}")
    k(f"v_pk_add_f32 {vr(SU,2)}, {vr(XF,2)}, {vr(XF+2,2)}")
    for d in range(2, 16): k(f"v_pk_add_f32 {vr(SU,2)}, {vr(SU,2)}, {vr(XF+2*d,2)}")
    k(f"v_add_f32 v{SU}, v{SU}, v{SU+1}")
    red32(k, SU, SU + 1)
    k(f"v_mul_f32 v{SU+2}, {-1.0/1024!r}, v{SU}")
    k(f"v_mov_b32 v{SU}, 0\nv_mov_b32 v{SU+1}, 0")
    for d in range(16):
        k(f"v_pk_add_f32 {vr(XF+2*d,2)}, {vr(XF+2*d,2)}, {vr(SU+2,2)} op_sel_hi:[1,0]")
        k(f"v_pk_fma_f32 {vr(SU,2)}, {vr(XF+2*d,2)}, {vr(XF+2*d,2)}, {vr(SU,2)}")
    k(f"v_add_f32 v{SU}, v{SU}, v{SU+1}")
    red32(k, SU, SU + 1)
    k(f"v_mov_b32 v{SU+1}, 0x3727c5ac\nv_fmac_f32 v{SU+1}, {1.0/1024!r}, v{SU}\nv_rsq_f32 v{SU+3}, v{SU+1}")
    k(f"s_lshl_b32 s94, s{S_WAVE}, 4\nv_lshlrev_b32 v{T+13}, 3, v{T+13}\nv_add_u32 v{T+13}, s94, v{T+13}")
    k(f"ds_write_b64 v{T+13}, {vr(SU+2,2)} offset:{HL+2048}")
    n3 = k.label("not3")
    k(f"s_cmp_lg_u32 s{S_WAVE}, 3\ns_cbranch_scc1 {n3}")
    k(f"v_and_b32 v{T+14}, 3, v{LANE}\nv_lshlrev_b32 v{T+14}, 2, v{T+14}")
    spin(k, [f"buffer_load_dword v{T+13}, v{T+14}, {sr(SRD_T,4)}, 0 offen sc1"], [T + 13], 0)
    k(f"{n3}:")
    k("s_waitcnt lgkmcnt(0)\ns_barrier")
    k.stamp("partials")
    nw0 = k.label("notw0")
    k(f"v_lshlrev_b32 v{T+6}, 3, v{LANE}")
    k(f"s_cmp_lg_u32 s{S_WAVE}, 0\ns_cbranch_scc1 {nw0}")
    for w in range(4): k(f"ds_read_b64 {vr(A0+2*w,2)}, v{T+6} offset:{HL+w*512}")
    k(f"v_and_b32 v{T+9}, 0x38, v{T+6}")
    k(f"ds_read_b64 {vr(A0+8,2)}, v{T+9} offset:{HL+2048}")
    k(f"s_lshl_b32 s94, s{S_HP}, 13\ns_lshl_b32 s95, s{S_RB1}, 9\ns_add_u32 s95, s95, s94")
    k(f"s_lshl_b32 s90, s89, 6\ns_add_u32 s90, s90, {MP_RS}")
    k("s_waitcnt lgkmcnt(0)")
    k(f"v_pk_add_f32 {vr(A0,2)}, {vr(A0,2)}, {vr(A0+2,2)}\nv_pk_add_f32 {vr(A0+4,2)}, {vr(A0+4,2)}, {vr(A0+6,2)}\nv_pk_add_f32 {vr(A0,2)}, {vr(A0,2)}, {vr(A0+4,2)}")
    k(f"buffer_store_dwordx2 {vr(A0,2)}, v{T+6}, {sr(SRD_B,4)}, s95 offen sc1")
    k(f"buffer_store_dwordx2 {vr(A0+8,2)}, v{T+9}, {sr(SRD_B,4)}, s90 offen sc1")
    k(f"s_lshl_b32 s90, s89, {FS}\ns_add_u32 s90, s90, {F_S0}")
    k("s_waitcnt vmcnt(0)")
    k(f"buffer_store_dword v{T+12}, v{T+8}, {sr(SRD_F,4)}, s90 offen sc1")
    if opt.get("modb_front", 0):
        sk_ = k.label("skmf")
        k(f"s_branch {sk_}")
        k(f"{nw0}:")
        k("s_waitcnt vmcnt(0)")
        for g in modb_loads(S_MB, V_W, V_C):
            for x in g: k(x)
        k(f"s_mov_b32 s{S_MB}, 0x7ff00000")
        k(f"{sk_}:")
    else:
        k(f"{nw0}:")
    k.stamp("s0 published")
    g1 = setup_gemm1(k, opt)
    srd(k, SRD_W, P_WQKV, D * 3 * D * 2)
    if not opt.get("modb_front", 0):
        k("s_waitcnt vmcnt(1)")
        k(f"s_cmp_eq_u32 s{S_WAVE}, 0\ns_cbranch_scc1 1\ns_waitcnt vmcnt(0)")
    for d in range(16): k(f"v_lshlrev_b32 v{XF+2*d}, 16, v{XT_+d}\nv_and_b32 v{XF+2*d+1}, 0xffff0000, v{XT_+d}")
    VS = T + 4
    k(f"v_lshrrev_b32 v{VS}, 2, v{T+2}\nv_lshlrev_b32 v{VS}, 10, v{VS}")
    k(f"v_and_b32 v{T+3}, 3, v{T+2}\nv_lshl_add_u32 v{VS}, v{T+3}, 8, v{VS}\nv_lshl_add_u32 v{VS}, v{T+1}, 4, v{VS}")
    k(f"s_lshl_b32 s86, s{S_RB1}, 3\ns_lshl_b32 s87, s{S_WAVE}, 1\ns_add_u32 s86, s86, s87\ns_lshl_b32 s86, s86, 15\ns_lshl_b32 s87, s{S_HP}, 11\ns_add_u32 s86, s86, s87\ns_add_u32 s87, s86, 0x8000")
    k(f"s_lshl_b32 s88, s{S_RB1}, 2\ns_add_u32 s88, s88, s{S_WAVE}\ns_lshl_b32 s88, s88, {FS+4}\ns_add_u32 s88, s88, {F_H}\ns_lshl_b32 s89, s{S_HP}, {FS}\ns_add_u32 s89, s89, s88")
    k(f"v_lshlrev_b32 v{T+5}, 5, v{T+2}")
    k(f"s_lshl_b32 s92, s{S_WAVE}, 8\nv_lshlrev_b32 v{T+7}, 3, v{T+1}\nv_add_u32 v{T+7}, s92, v{T+7}")
    nw1 = k.label("notw0b")
    k(f"s_cmp_lg_u32 s{S_WAVE}, 0\ns_cbranch_scc1 {nw1}")
    k(f"v_and_b32 v{T+9}, 15, v{LANE}\ns_lshl_b32 s92, s{S_RB1}, 4\nv_add_u32 v{T+10}, s92, v{T+9}\nv_lshlrev_b32 v{T+9}, 4, v{T+9}\nv_add_u32 v{T+9}, s{S_HP}, v{T+9}")
    k(f"v_and_b32 v{T+11}, 16, v{LANE}\nv_cmp_eq_u32 vcc, 0, v{T+11}\ns_mov_b32 s92, {F_S0}\ns_nop 0")
    k(f"v_cndmask_b32 v{T+9}, v{T+9}, v{T+10}, vcc\nv_lshlrev_b32 v{T+9}, {FS}, v{T+9}")
    spin(k, [f"buffer_load_dword v{T+13}, v{T+9}, {sr(SRD_F,4)}, s92 offen sc1"], [T + 13], 0)
    k(f"s_lshl_b32 s94, s{S_HP}, 13\ns_add_u32 s95, s94, 4096")
    for p_ in range(16): k(f"buffer_load_dwordx2 {vr(G+2*p_,2)}, v{T+6}, {sr(SRD_B,4)}, s{94+p_//8} offen offset:{(p_%8)*512} sc1")
    k(f"s_lshl_b32 s90, s{S_RB1}, 10\ns_add_u32 s90, s90, {MP_RS}")
    k(f"buffer_load_dwordx4 {vr(A0+8,4)}, v{L16}, {sr(SRD_B,4)}, s90 offen sc1")
    k(f"v_cmp_lt_u32 vcc, 31, v{LANE}")
    k("s_waitcnt vmcnt(1)")
    for st in (8, 4, 2, 1):
        for j in range(st): k(f"v_pk_add_f32 {vr(G+2*j,2)}, {vr(G+2*j,2)}, {vr(G+2*(j+st),2)}")
    k(f"v_cvt_pk_bf16_f32 v{G+2}, v{G}, v{G+1}\nv_lshlrev_b32 v{G}, 16, v{G+2}\nv_and_b32 v{G+1}, 0xffff0000, v{G+2}")
    k(f"v_pk_add_f32 {vr(G+4,2)}, {vr(G,2)}, 1.0 op_sel_hi:[1,0]")
    k(f"v_cvt_pk_bf16_f32 v{G+2}, v{G+4}, v{G+5}\nv_lshlrev_b32 v{G+4}, 16, v{G+2}\nv_and_b32 v{G+5}, 0xffff0000, v{G+2}")
    k(f"v_cndmask_b32 v{G}, v{G}, v{G+4}, vcc\nv_cndmask_b32 v{G+1}, v{G+1}, v{G+5}, vcc")
    k(f"ds_write_b64 v{T+6}, {vr(G,2)} offset:{HL+4096}")
    k("s_waitcnt vmcnt(0)")
    k(f"ds_write_b128 v{L16}, {vr(A0+8,4)} offset:{HL+5120}")
    k("s_waitcnt lgkmcnt(0)")
    k(f"{nw1}:")
    g1.prefetch(k, opt.get("h_pre0", 0))
    srd(k, SRD_T, P_WS, S * D * 2, WS_H)
    k("s_barrier")
    k.stamp("s0 ready")
    for h in range(2): k(f"ds_read_b128 {vr(M+4*h,4)}, v{T+5} offset:{HL+4096+h*16}\nds_read_b128 {vr(M+8+4*h,4)}, v{T+5} offset:{HL+4096+256+h*16}")
    for i in range(4): k(f"ds_read_b64 {vr(RS+2*i,2)}, v{T+7} offset:{HL+5120+i*64}")
    k("s_waitcnt lgkmcnt(0)")
    for i in range(4):
        for j in range(4): k(f"v_pk_add_f32 {vr(XF+8*i+2*j,2)}, {vr(XF+8*i+2*j,2)}, {vr(RS+2*i,2)} op_sel_hi:[1,0]")
        for j in range(4): k(f"v_pk_mul_f32 {vr(XF+8*i+2*j,2)}, {vr(XF+8*i+2*j,2)}, {vr(RS+2*i,2)} op_sel:[0,1] op_sel_hi:[1,1]")
        for j in range(4): k(f"v_pk_fma_f32 {vr(XF+8*i+2*j,2)}, {vr(XF+8*i+2*j,2)}, {vr(M+8+2*j,2)}, {vr(M+2*j,2)}")
        for j in range(4): k(f"v_cvt_pk_bf16_f32 v{XR+4*i+j}, v{XF+8*i+2*j}, v{XF+8*i+2*j+1}")
        k(f"buffer_store_dwordx4 {vr(XR+4*i,4)}, v{VS}, {sr(SRD_T,4)}, s{86 + i//2} offen offset:{(i%2)*128} sc1")
    k.stamp("h computed")
    mk = len(k.L)
    g1.prefetch(k, opt.get("h_pre1a", 6))
    publish(k, 89, T, mk)
    k.stamp("h published")
    g1.prefetch(k, opt.get("h_pre1", 6))
    k.g3 = setup_gemm3_early(k, opt, LANE, 56)
    for i in range(8): k(f"global_load_ushort {ar(A_UT+32+i,1)}, v{V_C}, s[{P_C}:{P_C+1}] offset:{i*16}")
    k(f"v_and_b32 v252, 15, v{LANE}\nv_lshlrev_b32 v252, {FS}, v252\ns_mov_b32 s93, s88")
    staged_wait(k, g1, opt.get("g1_T", 4), 252, 93, 253, one_prod)
    k.stamp("h ready")
    return g1

def phase_front(k, opt, name):
    LANE, L16 = 104, 105
    T = 48
    V_W, V_C = 115, 109
    RS, XR, XT_, XF, G, M = 64, 128, 144, 0, 160, 32
    HL = 2 * 25344
    k(f"v_and_b32 v{LANE}, 63, v0")
    k(f"v_lshrrev_b32 v{T+1}, 3, v{LANE}\nv_and_b32 v{T+2}, 7, v{LANE}")
    k(f"v_lshlrev_b32 v{T+5}, 11, v{T+1}\nv_lshl_add_u32 v{T+5}, v{T+2}, 4, v{T+5}")
    k(f"s_lshl_b32 s91, s{S_RB1}, 18\ns_lshl_b32 s92, s{S_WAVE}, 16\ns_add_u32 s91, s91, s92\ns_lshl_b32 s92, s{S_HP}, 7\ns_add_u32 s91, s91, s92")
    k(f"v_lshlrev_b32 v{T+8}, 3, v{LANE}\nv_lshlrev_b32 v{T+6}, 3, v{T+1}")
    k(f"s_lshl_b32 s94, s{S_HP}, 13\ns_add_u32 s95, s94, 4096")
    k(f"s_lshl_b32 s90, s{S_RB1}, 10\ns_lshl_b32 s93, s{S_WAVE}, 8\ns_add_u32 s90, s90, s93\ns_add_u32 s90, s90, {MP_RS}")
    k("s_waitcnt lgkmcnt(0)")
    srd(k, SRD_B, P_WS, MP_BYTES, WS_MODP)
    srd(k, SRD_A, P_X, S * D * 2)
    for p_ in range(16): k(f"buffer_load_dwordx2 {vr(G+2*p_,2)}, v{T+8}, {sr(SRD_B,4)}, s{94+p_//8} offen offset:{(p_%8)*512}")
    for i in range(4): k(f"buffer_load_dwordx2 {vr(RS+2*i,2)}, v{T+6}, {sr(SRD_B,4)}, s90 offen offset:{i*64}")
    for i in range(4):
        k(f"buffer_load_dwordx4 {vr(XT_+4*i,4)}, v{T+5}, {sr(SRD_A,4)}, s91 offen")
        if i < 3: k("s_add_u32 s91, s91, 16384")
    k.stamp("loads issued")
    def touch(ptr, per, vt, off=0):
        k(f"s_lshl_b32 s80, s2, 2\ns_add_u32 s80, s80, s{S_WAVE}\ns_mul_i32 s80, s80, {per*128}")
        if off: k(f"s_add_u32 s80, s80, {off}")
        k(f"v_min_u32 v{vt}, {per-1}, v{LANE}\nv_lshlrev_b32 v{vt}, 7, v{vt}\nv_add_u32 v{vt}, s80, v{vt}")
        k(f"global_load_dword a232, v{vt}, s[{ptr}:{ptr+1}]")
    nt0 = 0
    if opt.get("m_touch", 0) == 1: touch(P_WQKV, 48, 254); nt0 = 1
    g1 = setup_gemm1(k, opt)
    srd(k, SRD_W, P_WQKV, D * 3 * D * 2)
    n0 = opt.get("h_pre0", 6)
    g1.prefetch(k, n0)
    n0 += nt0
    srd(k, SRD_F, P_WS, FLAG_BYTES, WS_FLAG)
    srd(k, SRD_T, P_WS, S * D * 2, WS_H)
    VS = T + 4
    k(f"v_lshrrev_b32 v{VS}, 2, v{T+2}\nv_lshlrev_b32 v{VS}, 10, v{VS}")
    k(f"v_and_b32 v{T+3}, 3, v{T+2}\nv_lshl_add_u32 v{VS}, v{T+3}, 8, v{VS}\nv_lshl_add_u32 v{VS}, v{T+1}, 4, v{VS}")
    k(f"s_lshl_b32 s86, s{S_RB1}, 3\ns_lshl_b32 s87, s{S_WAVE}, 1\ns_add_u32 s86, s86, s87\ns_lshl_b32 s86, s86, 15\ns_lshl_b32 s87, s{S_HP}, 11\ns_add_u32 s86, s86, s87\ns_add_u32 s87, s86, 0x8000")
    k(f"s_lshl_b32 s88, s{S_WAVE}, 9\nv_add_u32 v{T+8}, s88, v{T+8}\nv_lshlrev_b32 v{T+5}, 5, v{T+2}\nv_add_u32 v{T+5}, s88, v{T+5}")
    k(f"s_lshl_b32 s88, s{S_RB1}, 2\ns_add_u32 s88, s88, s{S_WAVE}\ns_lshl_b32 s88, s88, {FS+4}\ns_add_u32 s88, s88, {F_H}\ns_lshl_b32 s89, s{S_HP}, {FS}\ns_add_u32 s89, s89, s88")
    k(f"v_cmp_lt_u32 vcc, 31, v{LANE}")
    k(f"s_waitcnt vmcnt({8 + n0})")
    for st in (8, 4, 2, 1):
        for j in range(st): k(f"v_pk_add_f32 {vr(G+2*j,2)}, {vr(G+2*j,2)}, {vr(G+2*(j+st),2)}")
    k(f"v_cvt_pk_bf16_f32 v{G+2}, v{G}, v{G+1}\nv_lshlrev_b32 v{G}, 16, v{G+2}\nv_and_b32 v{G+1}, 0xffff0000, v{G+2}")
    k(f"v_pk_add_f32 {vr(G+4,2)}, {vr(G,2)}, 1.0 op_sel_hi:[1,0]")
    k(f"v_cvt_pk_bf16_f32 v{G+2}, v{G+4}, v{G+5}\nv_lshlrev_b32 v{G+4}, 16, v{G+2}\nv_and_b32 v{G+5}, 0xffff0000, v{G+2}")
    k(f"v_cndmask_b32 v{G}, v{G}, v{G+4}, vcc\nv_cndmask_b32 v{G+1}, v{G+1}, v{G+5}, vcc")
    k(f"ds_write_b64 v{T+8}, {vr(G,2)} offset:{HL}")
    k("s_waitcnt lgkmcnt(0)")
    for h in range(2): k(f"ds_read_b128 {vr(M+4*h,4)}, v{T+5} offset:{HL+h*16}\nds_read_b128 {vr(M+8+4*h,4)}, v{T+5} offset:{HL+256+h*16}")
    for i in range(4):
        k(f"s_waitcnt vmcnt({3 - i + n0})")
        for d in range(4): k(f"v_lshlrev_b32 v{XF+8*i+2*d}, 16, v{XT_+4*i+d}\nv_and_b32 v{XF+8*i+2*d+1}, 0xffff0000, v{XT_+4*i+d}")
        for j in range(4): k(f"v_pk_add_f32 {vr(XF+8*i+2*j,2)}, {vr(XF+8*i+2*j,2)}, {vr(RS+2*i,2)} op_sel_hi:[1,0]")
        for j in range(4): k(f"v_pk_mul_f32 {vr(XF+8*i+2*j,2)}, {vr(XF+8*i+2*j,2)}, {vr(RS+2*i,2)} op_sel:[0,1] op_sel_hi:[1,1]")
    k("s_waitcnt lgkmcnt(0)")
    for i in range(4):
        for j in range(4): k(f"v_pk_fma_f32 {vr(XF+8*i+2*j,2)}, {vr(XF+8*i+2*j,2)}, {vr(M+8+2*j,2)}, {vr(M+2*j,2)}")
        for j in range(4): k(f"v_cvt_pk_bf16_f32 v{XR+4*i+j}, v{XF+8*i+2*j}, v{XF+8*i+2*j+1}")
        k(f"buffer_store_dwordx4 {vr(XR+4*i,4)}, v{VS}, {sr(SRD_T,4)}, s{86 + i//2} offen offset:{(i%2)*128} sc1")
    k.stamp("h computed")
    code_prefetch_setup(k, name)
    srd(k, SRD_D, P_WMOD, D * 6 * D * 2)
    k(f"v_mul_u32_u24 v{V_W}, 12288, v{T+1}\nv_lshl_add_u32 v{V_W}, v{T+2}, 4, v{V_W}")
    k(f"s_lshl_b32 s84, s{S_RB1}, 6\nv_add_u32 v{V_C}, s84, v{T+1}\nv_lshlrev_b32 v{V_C}, 1, v{V_C}")
    k(f"s_mul_i32 s86, s84, 12288\ns_lshl_b32 s87, s{S_HP}, 7\ns_add_u32 s86, s86, s87")
    k(f"s_lshl_b32 s94, s{S_WAVE}, 11\ns_add_u32 s{S_MB}, s86, s94\ns_add_u32 s{S_MB}, s{S_MB}, 4096")
    k(f"s_lshl_b32 s94, s{S_WAVE}, 16\ns_lshl_b32 s95, s{S_HP}, 12\ns_add_u32 s94, s94, s95\ns_lshl_b32 s95, s{S_RB1}, 8\ns_add_u32 s94, s94, s95\ns_add_u32 s{S_MO}, s94, {MP_B}")
    k.g3 = setup_gemm3_early(k, opt, LANE, 56)
    publish(k, 89, T)
    k.stamp("h published")
    if opt.get("m_touch", 0) == 2: touch(P_WQKV, 48, 254)
    k("s_barrier")
    g1.prefetch(k, opt.get("h_pre1", 12))
    for i in range(8): k(f"global_load_ushort {ar(A_UT+32+i,1)}, v{V_C}, s[{P_C}:{P_C+1}] offset:{i*16}")
    k(f"v_and_b32 v252, 15, v{LANE}\nv_lshlrev_b32 v252, {FS}, v252\ns_mov_b32 s93, s88")
    staged_wait(k, g1, opt.get("g1_T", 4), 252, 93, 253, one_prod)
    k.stamp("h ready")
    return g1

def setup_gemm24(k, which, opt, base):
    c = Sched(); common_gemm(c)
    K = 1024 if which == 2 else 3584
    NS, R = 4, opt.get(f"g{which}_R", 4)
    STAGE = 8448
    V_RD, V_DMA, V_TOK, LANE, L16, VT = base, base + 1, base + 2, base + 4, base + 5, base + 6
    c.LANE, c.L16 = LANE, L16
    lane_id(k, LANE)
    k(f"v_lshlrev_b32 v{L16}, 4, v{LANE}")
    order(c, k, opt, "g2", ["win", [1, 1, 2, 4, 8], 1])
    k(f"s_lshr_b32 s80, s{S_WAVE}, 1\ns_and_b32 s81, s{S_WAVE}, 1")
    k("s_lshl_b32 s82, s80, 5\ns_lshl_b32 s83, s81, 1\ns_add_u32 s82, s82, s83\ns_lshl_b32 s82, s82, 11")
    k(f"s_lshl_b32 s83, s{S_NT}, 7\ns_add_u32 s82, s82, s83")
    k(f"v_lshrrev_b32 v{VT}, 3, v{LANE}\nv_lshlrev_b32 v{VT}, 13, v{VT}")
    k(f"v_and_b32 v{VT+1}, 7, v{LANE}\nv_lshl_add_u32 v{VT}, v{VT+1}, 4, v{VT}")
    k(f"v_add_u32 v{V_DMA}, s82, v{VT}")
    k(f"v_bfe_u32 v{VT}, v{LANE}, 2, 2\nv_mul_u32_u24 v{VT}, 1056, v{VT}")
    k(f"v_lshrrev_b32 v{VT+1}, 4, v{LANE}\nv_lshl_add_u32 v{VT}, v{VT+1}, 7, v{VT}")
    k(f"v_and_b32 v{VT+1}, 3, v{LANE}\nv_lshl_add_u32 v{V_RD}, v{VT+1}, 3, v{VT}")
    k(f"v_add_u32 v{V_RD}, {L_R2}, v{V_RD}")
    k(f"s_lshl_b32 s82, s{S_RB2}, 3\ns_lshl_b32 s83, s{S_WAVE}, 1\ns_add_u32 s82, s82, s83\ns_mul_i32 s82, s82, {K//32*1024}")
    k(f"v_add_u32 v{V_TOK}, s82, v{L16}\nv_add_u32 v{V_TOK+1}, {K//32*1024}, v{V_TOK}")
    k(f"s_mul_i32 s{S_WB}, s80, 4224\ns_mul_i32 s82, s81, 2112\ns_add_u32 s{S_WB}, s{S_WB}, s82\ns_add_u32 s{S_WB}, s{S_WB}, {L_R2}")
    srd(k, SRD_W, P_WO if which == 2 else P_W2, K * D * 2)
    c.NB, c.TB, c.KS, c.SPK, c.KT, c.NS, c.R = 4, 2, 2, 1, K // 64, NS, R
    c.acc = lambda b, t: vr((b * 2 + t) * 4, 4)
    c.tf = lambda slot, ks, t: 64 + ((slot * 2 + ks) * 2 + t) * 4
    c.rd = lambda sl, b, sub, r: (V_RD, sl * STAGE + sub * 4224 + r * 512 + b * 32)
    c.slot_addr = lambda sl: sl * STAGE
    c.dma = [(V_DMA, 0, 0), (V_DMA, 1056, 2048)]
    c.v_tok = [V_TOK, V_TOK + 1]
    c.w_stride = 64 * 2048
    c.drop = opt.get(f"g{which}_drop", ())
    c.pro_units, c.ramp_rate, c.read_margin = opt.get(f"g{which}_pro", 12), opt.get(f"g{which}_ramp", 6), 4
    std_sched(c)
    return c

S_G80, S_G192 = 6, 7
def setup_gemm4p(k, opt, base):
    c = Sched(); common_gemm(c)
    HS = 8448; STAGE = 2 * HS
    L = 12; KT = 28; MAIN = KT - L
    V_RD, V_DE, V_DK, V_TOK, LANE, L16, VT = base, base + 2, base + 3, base + 4, base + 6, base + 7, base + 8
    c.LANE, c.L16, c.V_DE, c.V_DK, c.V_TOK = LANE, L16, V_DE, V_DK, V_TOK
    lane_id(k, LANE)
    k(f"v_lshlrev_b32 v{L16}, 4, v{LANE}")
    c.KT = KT
    order(c, k, opt, "g4", ["win", [4, 4, 8, 8, 4], 0])
    k(f"s_lshr_b32 s80, s{S_WAVE}, 1\ns_and_b32 s81, s{S_WAVE}, 1")
    k(f"s_mul_i32 s{S_G80}, s80, {80*2048}\ns_mul_i32 s{S_G192}, s80, {192*2048}")
    k("s_lshl_b32 s82, s80, 5\ns_lshl_b32 s83, s81, 1\ns_add_u32 s82, s82, s83")
    k(f"s_and_b32 s{S_TMP}, s{S_NT}, 1\ns_mul_i32 s83, s{S_TMP}, 1792\ns_add_u32 s82, s82, s83\ns_lshl_b32 s82, s82, 11")
    k(f"v_lshrrev_b32 v{VT}, 3, v{LANE}\nv_lshlrev_b32 v{VT}, 13, v{VT}")
    k(f"v_and_b32 v{VT+1}, 7, v{LANE}\nv_lshl_add_u32 v{VT}, v{VT+1}, 4, v{VT}")
    k(f"v_add_u32 v{VT}, s82, v{VT}")
    k(f"s_lshl_b32 s83, s{S_NT}, 7\nv_add_u32 v{V_DK}, s83, v{VT}\nv_xor_b32 v{V_DE}, 128, v{V_DK}")
    k(f"v_bfe_u32 v{VT}, v{LANE}, 2, 2\nv_mul_u32_u24 v{VT}, 1056, v{VT}")
    k(f"v_lshrrev_b32 v{VT+1}, 4, v{LANE}\nv_lshl_add_u32 v{VT}, v{VT+1}, 7, v{VT}")
    k(f"v_and_b32 v{VT+1}, 3, v{LANE}\nv_lshl_add_u32 v{V_RD+1}, v{VT+1}, 3, v{VT}")
    k(f"v_add_u32 v{V_RD}, {L_R2}, v{V_RD+1}")
    k(f"s_lshl_b32 s82, s{S_RB2}, 3\ns_lshl_b32 s83, s{S_WAVE}, 1\ns_add_u32 s82, s82, s83\ns_mul_i32 s82, s82, {112*1024}")
    k(f"s_mul_i32 s83, s{S_TMP}, {56*1024}\ns_add_u32 s82, s82, s83")
    k(f"v_add_u32 v{V_TOK}, s82, v{L16}\nv_add_u32 v{V_TOK+1}, {112*1024}, v{V_TOK}")
    k(f"s_mul_i32 s{S_WB}, s80, 4224\ns_mul_i32 s82, s81, 2112\ns_add_u32 s{S_WB}, s{S_WB}, s82")
    srd(k, SRD_W, P_W2, F * D * 2)
    c.drop = opt.get("g4_drop", ())
    V2E, V2K, V2T = 200, 201, 202
    c.V2 = (V2E, V2K, V2T)
    slot_addr = [L_R2, L_R2 + STAGE, 1024, 1024 + STAGE]
    def rd(sl, half, b, sub, r):
        off = half * HS + sub * 4224 + r * 512 + b * 32
        return (V_RD, (sl % 2) * STAGE + off) if sl < 2 else (V_RD + 1, slot_addr[sl] + off)
    NT_ = 2 * L
    tf = lambda kt, sub, t: 64 + (((kt * 2 + sub) % NT_) * 2 + t) * 4
    acc = lambda b, t: vr((b * 2 + t) * 4, 4)
    c.wf = lambda buf, j: (buf * 8 + j) * 4
    typ = lambda kt: "A" if kt < 16 else ("B1" if kt < 24 else "B2")
    def w_off(sd, kt):
        o = [T(x) for x in c.pos_txt(sd, kt)]
        if typ(kt) == "A": o.append(T(f"s_mul_i32 s{sd}, s{sd}, {112*2048}"))
        elif typ(kt) == "B1": o += [T(f"s_mul_i32 s{sd}, s{sd}, {224*2048}"), T(f"s_add_u32 s{sd}, s{sd}, {(64 - 16*224)*2048}"), T(f"s_add_u32 s{sd}, s{sd}, s{S_G80}")]
        else: o += [T(f"s_mul_i32 s{sd}, s{sd}, {448*2048}"), T(f"s_add_u32 s{sd}, s{sd}, {(96 - 24*448)*2048}"), T(f"s_add_u32 s{sd}, s{sd}, s{S_G192}")]
        return o
    halves = [[("E", kt), ("K", kt)] for kt in range(MAIN)]
    halves += [[("E", MAIN + 2 * j), ("E", MAIN + 2 * j + 1)] for j in range(L // 2)]
    halves += [[("K", MAIN + 2 * j), ("K", MAIN + 2 * j + 1)] for j in range(L // 2)]
    cur = None; flip = 0
    for st, hv in enumerate(halves):
        us = []
        for h, (kind, kt) in enumerate(hv):
            pre = []
            if cur != kt:
                flip ^= 1; cur = kt; pre = w_off(c.s_kw + flip, kt)
            vo = (V2E if kind == 'E' else V2K) if typ(kt) == "B2" else (V_DE if kind == 'E' else V_DK)
            for i, goff in enumerate((0, 2048)):
                us.append((pre if i == 0 else []) + [T(f"s_add_u32 m0, s{S_WB}, {slot_addr[st % 4] + h * HS + i * 1056 - goff}"),
                          VM(f"buffer_load_dwordx4 v{vo}, {sr(SRD_W,4)}, s{c.s_kw + flip} offen" + (f" offset:{goff}" if goff else "") + " lds", ("dma", st))])
        c.stage_units[st] = us; c.stage_slot[st] = st % 4
        for j in range(2):
            frags = []; toks = []
            parts = [(0, j), (1, j)] if st < MAIN else [(j, 0), (j, 1)]
            for h, sub in parts:
                kind, kt = hv[h]
                if (kt, sub) not in toks: toks.append((kt, sub))
                for b in range(4):
                    va, o0 = rd(st % 4, h, b, sub, 0); _, o1 = rd(st % 4, h, b, sub, 1)
                    frags.append((va, o0, o1, [(acc(b + (0 if kind == 'E' else 4), t), tf(kt, sub, t)) for t in range(2)]))
            c.steps.append(dict(frags=frags, stages=[st], toks=toks))
    for kt in range(KT):
        sd = c.s_kt + kt % 2
        for sub in range(2):
            us = []
            for t in range(2):
                g = []
                if sub == 0 and t == 0:
                    g = [T(x) for x in c.pos_txt(sd, kt)]
                    if typ(kt) == "A": g.append(T(f"s_mul_i32 s{sd}, s{sd}, 3584"))
                    elif typ(kt) == "B1": g += [T(f"s_mul_i32 s{sd}, s{sd}, 7168"), T(f"s_add_u32 s{sd}, s{sd}, {2048 - 16*7168}")]
                    else: g += [T(f"s_mul_i32 s{sd}, s{sd}, 14336"), T(f"s_add_u32 s{sd}, s{sd}, {3072 - 24*14336}")]
                key = ("tok", (kt, sub))
                if typ(kt) == "B2":
                    if sub == 1 and t == 0: g.append(T(f"s_add_u32 s{sd}, s{sd}, 7168"))
                    g.append(VM(f"buffer_load_dwordx2 {ar(tf(kt, sub, t),2)}, v{V2T+t}, {sr(SRD_T,4)}, s{sd} offen sc1", key))
                    g.append(VM(f"buffer_load_dwordx2 {ar(tf(kt, sub, t)+2,2)}, v{V2T+t}, {sr(SRD_T,4)}, s{sd} offen offset:3584 sc1", key))
                else:
                    g.append(VM(f"buffer_load_dwordx4 {ar(tf(kt, sub, t),4)}, v{V_TOK+t}, {sr(SRD_T,4)}, s{sd} offen offset:{sub*(1024 if typ(kt) == 'A' else 3584)} sc1", key))
                us.append(g)
            c.tok_units[(kt, sub)] = us; c.tok_slot[(kt, sub)] = (kt * 2 + sub) % NT_
    c.pro_units, c.ramp_rate, c.read_margin, c.lookahead = opt.get("g4_pro", 12), opt.get("g4_ramp", 6), 4, opt.get("g4_la", 7)
    c.MAIN, c.L = MAIN, L
    return c

def phase_gemm4p(k, c, opt):
    LANE, L16 = c.LANE, c.L16
    VT = 72
    srd(k, SRD_T, P_WS, S * F * 2, WS_HH)
    srd(k, SRD_A, P_OUT, S * D * 2)
    srd(k, SRD_B, P_WS, 8 << 20, WS_P4)
    V_G, V_GA, V_XA, V_X, IMP, VF = 96, 76, 77, 80, 128, 78
    for j in range(16): k(f"v_accvgpr_read_b32 v{V_X+j}, a{A_X1+j}")
    k(f"v_and_b32 v{VT}, 15, v{LANE}\nv_lshlrev_b32 v{VT}, {FS}, v{VT}")
    k(f"s_lshl_b32 s84, s{S_RB2}, 1\ns_lshr_b32 s85, s{S_WAVE}, 1\ns_add_u32 s84, s84, s85\ns_lshl_b32 s84, s84, {FS+5}\ns_add_u32 s84, s84, {F_HH}")
    k(f"s_and_b32 s85, s{S_NT}, 1\ns_lshl_b32 s85, s85, {FS+4}\ns_add_u32 s84, s84, s85")
    k(f"v_mov_b32 v252, v{VT}")
    c.tile_of = lambda key: key[0]
    k(f"s_add_u32 s85, s84, {F_HB - F_HH}")
    staged_wait(k, c, opt.get("g4_T", 6), 252, 84, 253, one_prod, pub=(94, 204))
    add_gate(k, c, 16, f"buffer_load_dword v253, v252, {sr(SRD_F,4)}, s85 offen sc1", 253)
    k.stamp("hh ready")
    p = Txt()
    p(f"v_lshrrev_b32 v{VT}, 4, v{LANE}\nv_lshlrev_b32 v{V_GA}, 4, v{VT}\nv_add_u32 v{V_GA}, {L_MV}, v{V_GA}")
    p(f"v_and_b32 v{VT+1}, 15, v{LANE}\nv_lshlrev_b32 v{VT+1}, 11, v{VT+1}")
    p(f"v_and_b32 v{VT+2}, 1, v{VT}\nv_lshl_add_u32 v{VT+1}, v{VT+2}, 5, v{VT+1}")
    p(f"v_lshrrev_b32 v{VT+2}, 1, v{VT}\nv_lshl_add_u32 v{V_XA}, v{VT+2}, 4, v{VT+1}")
    p(f"s_lshl_b32 s86, s{S_RB2}, 3\ns_lshl_b32 s87, s{S_WAVE}, 1\ns_add_u32 s86, s86, s87\ns_lshl_b32 s86, s86, 15\ns_lshl_b32 s87, s{S_NT}, 7\ns_add_u32 s86, s86, s87\ns_add_u32 s87, s86, 32768")
    p(f"s_lshl_b32 s88, s{S_RB2}, 4\ns_add_u32 s88, s88, s{S_NT}\ns_lshl_b32 s88, s88, 2\ns_add_u32 s88, s88, s{S_WAVE}")
    p("s_xor_b32 s89, s88, 4")
    p(f"s_lshl_b32 s90, s88, 13\ns_add_u32 s91, s90, 4096\ns_lshl_b32 s92, s89, 13\ns_add_u32 s93, s92, 4096")
    p(f"s_lshl_b32 s88, s88, {FS}\ns_add_u32 s88, s88, {F_P4}\ns_lshl_b32 s89, s89, {FS}\ns_add_u32 s89, s89, {F_P4}")
    V2E, V2K, V2T = c.V2
    p(f"v_lshrrev_b32 v{VT}, 5, v{LANE}\nv_mul_u32_u24 v{VT}, {96*2048}, v{VT}\nv_add_u32 v{V2E}, v{c.V_DE}, v{VT}\nv_add_u32 v{V2K}, v{c.V_DK}, v{VT}")
    p(f"v_lshrrev_b32 v{VT}, 1, v{L16}\nv_sub_u32 v{V2T}, v{c.V_TOK}, v{VT}\nv_sub_u32 v{V2T+1}, v{c.V_TOK+1}, v{VT}")
    p(f"v_mov_b32 v{VT}, 1\nv_mov_b32 v{VT+1}, 0")
    c.pre_loop_txt = p.L
    N = len(c.steps); p2 = N - c.L
    c.late[p2 + 1] = [VM(f"buffer_store_dwordx4 {vr(4*j,4)}, v{L16}, {sr(SRD_B,4)}, s{90 + j//4} offen offset:{(j%4)*1024} sc1", ("exp", 0)) for j in range(8)]
    c.late[p2 + opt.get("g4_fs", 6)] = [WVM([("exp", 0)]), f"buffer_store_dword v{VT}, v{VT+1}, {sr(SRD_F,4)}, s88 offen sc1"]
    c.late[N - 3] = [VM(f"buffer_load_dword v{VF}, v{VT+1}, {sr(SRD_F,4)}, s89 offen sc1", ("pf", 0))]
    c.last_reads = [f"ds_read_b128 {vr(V_G+4*b,4)}, v{V_GA} offset:{768+b*64}" for b in range(4)]
    m = Txt(); m.label = k.label
    okl = k.label("pok")
    m(f"v_cmp_eq_u32 vcc, 0, v{VF}\ns_cmp_eq_u64 vcc, 0\ns_cbranch_scc1 {okl}")
    spin(m, [f"buffer_load_dword v{VF}, v{VT+1}, {sr(SRD_F,4)}, s89 offen sc1"], [VF], 0)
    m(f"{okl}:")
    c.late[N - 1] = [WVM([("pf", 0)]), T("\n".join(m.L))] + [f"buffer_load_dwordx4 {vr(IMP+4*j,4)}, v{L16}, {sr(SRD_B,4)}, s{92 + j//4} offen offset:{(j%4)*1024} sc1" for j in range(8)]
    c.run(k)
    k.stamp("g4 loop done")
    A = lambda b, t: 32 + (b * 2 + t) * 4
    XT = 112
    XF = 160
    for j in range(16): k(f"v_lshlrev_b32 v{XF+2*j}, 16, v{V_X+j}\nv_and_b32 v{XF+2*j+1}, 0xffff0000, v{V_X+j}")
    k("s_waitcnt vmcnt(0) lgkmcnt(0)")
    for t in range(2):
        for b in range(4):
            for h in range(2): k(f"v_pk_add_f32 {vr(A(b,t)+2*h,2)}, {vr(A(b,t)+2*h,2)}, {vr(IMP+(b*2+t)*4+2*h,2)}")
            for h in range(2): k(f"v_pk_fma_f32 {vr(A(b,t)+2*h,2)}, {vr(A(b,t)+2*h,2)}, {vr(V_G+4*b+2*h,2)}, {vr(XF+(t*4+b)*4+2*h,2)}")
        PK = XT + t * 8
        for b in range(4): k(f"v_cvt_pk_bf16_f32 v{PK+2*b}, v{A(b,t)}, v{A(b,t)+1}\nv_cvt_pk_bf16_f32 v{PK+2*b+1}, v{A(b,t)+2}, v{A(b,t)+3}")
        k("s_nop 1")
        for s_ in range(2): k(f"v_permlane16_swap_b32 v{PK+4*s_}, v{PK+4*s_+2}\nv_permlane16_swap_b32 v{PK+4*s_+1}, v{PK+4*s_+3}")
        for s_ in range(2): k(f"buffer_store_dwordx4 {vr(PK+4*s_,4)}, v{V_XA}, {sr(SRD_A,4)}, s{86+t} offen offset:{s_*64}")

def phase_gemm1(k, c, opt):
    LANE, L16, VT = c.LANE, c.L16, c.VT
    PHK, VV, SH, UTX = 0, 34816, 114688, 126976
    A_PH = 160
    p = Txt()
    srd(p, SRD_A, P_WPHI, H * 2048)
    srd(p, SRD_B, P_WS, 2 << 20, WS_KVP)
    srd(p, SRD_C, P_WS, 128 << 10, WS_ZP)
    A_PW, A_VW, A_PR, A_VR, A_WR = 110, 111, 112, 113, 114
    p(f"s_lshr_b32 s80, s{S_WAVE}, 1\ns_and_b32 s81, s{S_WAVE}, 1")
    p(f"v_and_b32 v{VT}, 15, v{LANE}\ns_lshl_b32 s82, s{S_WAVE}, 5\nv_add_u32 v{VT}, s82, v{VT}")
    p(f"v_lshrrev_b32 v{VT+1}, 4, v{LANE}\nv_lshlrev_b32 v{VT+1}, 3, v{VT+1}")
    p(f"v_mul_u32_u24 v{A_PW}, 136, v{VT}\nv_add_u32 v{A_PW}, v{A_PW}, v{VT+1}")
    p(f"v_mul_u32_u24 v{A_VW}, 72, v{VT}\nv_add_u32 v{A_VW}, v{A_VW}, v{VT+1}")
    p(f"v_lshrrev_b32 v{VT}, 2, v{LANE}\nv_and_b32 v{VT+1}, 3, v{LANE}\nv_lshlrev_b32 v{VT+1}, 3, v{VT+1}")
    p(f"s_mul_i32 s82, s80, 17408\ns_lshl_b32 s83, s81, 6\ns_add_u32 s82, s82, s83")
    p(f"v_mul_u32_u24 v{A_PR}, 136, v{VT}\nv_add_u32 v{A_PR}, v{A_PR}, v{VT+1}\nv_add_u32 v{A_PR}, s82, v{A_PR}")
    p(f"s_mul_i32 s82, s80, 9216")
    p(f"v_mul_u32_u24 v{A_VR}, 72, v{VT}\nv_add_u32 v{A_VR}, v{A_VR}, v{VT+1}\nv_add_u32 v{A_VR}, s82, v{A_VR}")
    p(f"v_lshl_add_u32 v{A_WR}, v{VT}, 6, v{VT+1}\nv_add_u32 v{A_WR}, {L_WPH}, v{A_WR}")
    ONES, SEL = 116, 120
    for j in range(4): p(f"v_mov_b32 v{ONES+j}, 0x3f803f80")
    p(f"v_bfe_u32 v{VT}, v{LANE}, 2, 2\nv_lshrrev_b32 v{VT+1}, 4, v{LANE}")
    p(f"v_cmp_eq_u32 vcc, v{VT}, v{VT+1}")
    p(f"v_and_b32 v{VT}, 1, v{LANE}\nv_lshlrev_b32 v{VT}, 4, v{VT}\nv_mov_b32 v{VT+1}, 0x3f80\nv_lshlrev_b32 v{VT+1}, v{VT}, v{VT+1}")
    p(f"v_cndmask_b32 v{VT+1}, 0, v{VT+1}, vcc")
    p(f"v_and_b32 v{VT}, 2, v{LANE}\nv_cmp_eq_u32 vcc, 0, v{VT}")
    for j in (0, 1, 4, 5): p(f"v_mov_b32 v{SEL+j}, 0")
    p(f"v_cndmask_b32 v{SEL+2}, 0, v{VT+1}, vcc\nv_cndmask_b32 v{SEL+3}, v{VT+1}, 0, vcc")
    p(f"s_mov_b32 s94, {LOG2E!r}\ns_mov_b32 s95, {LOG2E!r}")
    p(f"s_lshl_b32 s84, s{S_HP}, 12\ns_lshl_b32 s85, s{S_WAVE}, 10\ns_add_u32 s84, s84, s85\ns_add_u32 s85, s85, {L_WPH}")
    c.pre_loop_txt = p.L
    c.late = {4: ["s_mov_b32 m0, s85", f"buffer_load_dwordx4 v{L16}, {sr(SRD_A,4)}, s84 offen lds"]}
    if opt.get("cpf", 1): c.late[22] = code_prefetch_txt(k.name, L16, 254, 80)
    ml = modb_loads(S_MB, 115, 109)
    ms = opt.get("modb_steps", [16] * 8)
    if opt.get("modb_front", 0):
        lb = k.label("skw0")
        c.late.setdefault(ms[0], []).append(T("\n".join([f"s_cmp_lg_u32 s{S_WAVE}, 0", f"s_cbranch_scc1 {lb}"] + [x for g in ml for x in g] + [f"{lb}:"])))
        ml = []
    else:
        for st_, g in zip(ms, ml): c.late.setdefault(st_, []).extend(g)
        ml = ml[len(ms):]
    c.last_reads = [f"ds_read_b64_tr_b16 {ar(A_PH+(hh*2+fb)*4+2*r,2)}, v{A_WR} offset:{hh*2048+r*1024+fb*32}" for hh in range(2) for fb in range(2) for r in range(2)]
    c.run(k)
    k.stamp("g1 loop done")
    A = lambda b, t: (b * 2 + t) * 4
    BF, P1, P2, MX, MN, EK = 126, 142, 174, 206, 214, 222
    groups = [(hh, t) for hh in range(2) for t in range(2)]
    def fm_part1(seg):
        for g, (hh, t) in enumerate(groups):
            for db in range(2):
                a = A(seg * 4 + hh * 2 + db, t)
                k(f"v_cvt_pk_bf16_f32 v{BF+g*4+db*2}, v{a}, v{a+1}\nv_cvt_pk_bf16_f32 v{BF+g*4+db*2+1}, v{a+2}, v{a+3}")
        k("s_nop 1")
        for g, (hh, t) in enumerate(groups):
            for fb in range(2):
                k(f"{MF} {vr(P1+g*8+fb*4,4)}, {ar(A_PH+(hh*2+fb)*4,4)}, {vr(BF+g*4,4)}, 0")
    def fm_part2():
        for op3, op2, M in (("v_max3_f32", "v_max_f32", MX), ("v_min3_f32", "v_min_f32", MN)):
            for g in range(4):
                b = P1 + g * 8
                k(f"{op3} v{M+2*g}, v{b}, v{b+1}, v{b+2}\n{op3} v{M+2*g}, v{M+2*g}, v{b+3}, v{b+4}\n{op3} v{M+2*g}, v{M+2*g}, v{b+5}, v{b+6}\n{op2} v{M+2*g}, v{M+2*g}, v{b+7}")
            treduce4(k, op2, [M + 2 * g for g in range(4)])
        for g in range(4):
            k(f"v_mul_f32 v{MX+2*g}, {-LOG2E!r}, v{MX+2*g}\nv_mul_f32 v{MN+2*g}, {LOG2E!r}, v{MN+2*g}")
    def fm_part3(E):
        for g in range(4):
            for j in range(4):
                b = g * 8 + 2 * j
                k(f"v_pk_fma_f32 {vr(P2+b,2)}, {vr(P1+b,2)}, s[94:95], {vr(MN+2*g,2)} op_sel_hi:[1,1,0] neg_lo:[1,0,0] neg_hi:[1,0,0]")
                k(f"v_pk_fma_f32 {vr(P1+b,2)}, {vr(P1+b,2)}, s[94:95], {vr(MX+2*g,2)} op_sel_hi:[1,1,0]")
            for j in range(8): k(f"v_exp_f32 v{P1+g*8+j}, v{P1+g*8+j}")
            for j in range(8): k(f"v_exp_f32 v{P2+g*8+j}, v{P2+g*8+j}")
            k("s_nop 0")
            for sg, PP in enumerate((P1, P2)):
                for j in range(4): k(f"v_cvt_pk_bf16_f32 v{E+(g*2+sg)*4+j}, v{PP+g*8+2*j}, v{PP+g*8+2*j+1}")
    for g in ml:
        for x in g: k(x)
    k("s_waitcnt lgkmcnt(0)\ns_nop 7")
    fm_part1(1)
    k("s_barrier")
    mark0 = len(k.L)
    for g, (hh, t) in enumerate(groups):
        for db in range(2):
            a = A(8 + hh * 2 + db, t)
            k(f"v_cvt_pk_bf16_f32 v{a}, v{a}, v{a+1}\nv_cvt_pk_bf16_f32 v{a+1}, v{a+2}, v{a+3}")
            k(f"ds_write_b64 v{A_VW}, {vr(a,2)} offset:{VV + hh*9216 + t*16*72 + db*32}")
    fm_part2()
    fm_part3(EK)
    SM = 32
    k("s_nop 1")
    for i in range(8): k(f"{MF} {vr(SM+4*i,4)}, {vr(ONES,4)}, {vr(EK+4*i,4)}, 0")
    k("s_nop 7")
    for i in range(8): k(f"v_rcp_f32 v{SM+4*i}, v{SM+4*i}")
    for g, (hh, t) in enumerate(groups):
        for sg, PP in enumerate((P1, P2)):
            for j in range(4):
                k(f"v_pk_mul_f32 {vr(PP+g*8+2*j,2)}, {vr(PP+g*8+2*j,2)}, {vr(SM+(g*2+sg)*4,2)} op_sel_hi:[1,0]")
            for fb in range(2):
                b = PP + g * 8 + fb * 4
                k(f"v_cvt_pk_bf16_f32 v{b}, v{b}, v{b+1}\nv_cvt_pk_bf16_f32 v{b+1}, v{b+2}, v{b+3}")
                k(f"ds_write_b64 v{A_PW}, {vr(b,2)} offset:{PHK + hh*17408 + t*16*136 + sg*64 + fb*32}")
    sprinkle(k, mark0, g3_early_units(k.g3, opt.get("g3_e1", 14), 254))
    k("s_waitcnt lgkmcnt(0)\ns_barrier")
    for s_ in range(4):
        for r in range(2):
            for fb in range(2): k(f"ds_read_b64_tr_b16 {ar(s_*16+fb*4+2*r,2)}, v{A_PR} offset:{PHK + (32*s_+16*r)*136 + fb*32}")
            for db in range(2): k(f"ds_read_b64_tr_b16 {ar(s_*16+8+db*4+2*r,2)}, v{A_VR} offset:{VV + (32*s_+16*r)*72 + db*32}")
    fm_part1(0)
    KV, ZZ = 64, 80
    for s_ in range(4):
        k(f"s_waitcnt lgkmcnt({min(15, 24 - 8*s_)})")
        for fb in range(2):
            for db in range(2):
                d = vr(KV + (db * 2 + fb) * 4, 4)
                k(f"{MF} {d}, {ar(s_*16+fb*4,4)}, {ar(s_*16+8+db*4,4)}, {'0' if s_ == 0 else d}")
            d = vr(ZZ + fb * 4, 4)
            k(f"{MF} {d}, {ar(s_*16+fb*4,4)}, {vr(ONES,4)}, {'0' if s_ == 0 else d}")
    k(f"s_lshl_b32 s82, s{S_HP}, 2\ns_add_u32 s82, s82, s{S_WAVE}")
    k("s_lshl_b32 s83, s82, 15")
    k(f"s_lshl_b32 s84, s{S_RB1}, 10\ns_add_u32 s84, s84, s83\ns_add_u32 s85, s84, 16384")
    k("s_lshl_b32 s90, s82, 11")
    k(f"s_lshl_b32 s91, s82, {FS+4}\ns_add_u32 s91, s91, {F_KV}\ns_lshl_b32 s92, s{S_RB1}, {FS}\ns_add_u32 s92, s92, s91")
    k(f"v_and_b32 v{VT}, 15, v{LANE}\nv_cmp_eq_u32 vcc, s{S_RB1}, v{VT}")
    k("s_nop 2")
    for db in range(2):
        for j in range(4): k(f"v_cvt_pk_bf16_f32 v{88+db*4+j}, v{KV+db*8+2*j}, v{KV+db*8+2*j+1}")
    k(f"buffer_store_dwordx4 {vr(88,4)}, v{L16}, {sr(SRD_B,4)}, s84 offen sc1")
    k(f"buffer_store_dwordx4 {vr(92,4)}, v{L16}, {sr(SRD_B,4)}, s85 offen sc1")
    k("s_and_saveexec_b64 s[96:97], vcc")
    k(f"buffer_store_dwordx4 {vr(ZZ,4)}, v{L16}, {sr(SRD_C,4)}, s90 offen sc1")
    k(f"buffer_store_dwordx4 {vr(ZZ+4,4)}, v{L16}, {sr(SRD_C,4)}, s90 offen offset:1024 sc1")
    k("s_mov_b64 exec, s[96:97]")
    k.stamp("kv stored")
    fm_part2()
    publish(k, 92, VT + 1)
    k.stamp("kv published")
    k("s_mov_b32 s93, s83")
    g2 = setup_gemm24(k, 2, opt, 96)
    k("s_mov_b32 s83, s93")
    g2.prefetch(k, 8)
    fm_part3(EK)
    k(f"v_lshlrev_b32 v{VT}, {FS}, v{VT}")
    wait_flags(k, [(VT, 91, 1)], VT + 1)
    k.stamp("kv ready")
    k(f"buffer_load_dwordx4 {vr(ZZ,4)}, v{L16}, {sr(SRD_C,4)}, s90 offen sc1")
    k(f"buffer_load_dwordx4 {vr(ZZ+4,4)}, v{L16}, {sr(SRD_C,4)}, s90 offen offset:1024 sc1")
    for i in range(32):
        if i % 4 == 0 and i: k("s_add_u32 s83, s83, 4096")
        k(f"buffer_load_dwordx4 {ar(4*i,4)}, v{L16}, {sr(SRD_B,4)}, s83 offen offset:{(i%4)*1024} sc1")
    srd(k, SRD_T, P_WS, S * D * 2, WS_O)
    k("s_waitcnt vmcnt(32)")
    for sh in (8, 4, 2, 1):
        for j in range(8): k(f"v_add_f32_dpp v{ZZ+j}, v{ZZ+j}, v{ZZ+j} row_ror:{sh} row_mask:0xf bank_mask:0xf")
    k(f"v_and_b32 v{VT+1}, 1, v{LANE}\nv_cmp_eq_u32 vcc, 0, v{VT+1}")
    for j in range(4): k(f"v_cvt_pk_bf16_f32 v{BF+8+j}, v{ZZ+2*j}, v{ZZ+2*j+1}")
    for j in range(4): k(f"v_cndmask_b32 v{BF+8+j}, v{ONES}, v{BF+8+j}, vcc")
    for i in range(32):
        db, pp = divmod(i, 16)
        if i % 2 == 0: k(f"s_waitcnt vmcnt({30 - i})")
        for fb in range(2):
            d = vr(KV + (db * 2 + fb) * 4, 4)
            k(f"{MF} {d}, {vr(SEL + (2 if fb == 0 else 0), 4)}, {ar(4*i,4)}, {'0' if pp == 0 else d}")
    k(f"s_mul_i32 s82, s{S_WAVE}, 3072\ns_add_u32 s82, s82, {SH}")
    k(f"v_add_u32 v{VT+1}, s82, v{L16}\nv_add_u32 v{VT+2}, {SH}, v{L16}")
    k("s_nop 6")
    for db in range(2):
        for j in range(4): k(f"v_cvt_pk_bf16_f32 v{BF+db*4+j}, v{KV+db*8+2*j}, v{KV+db*8+2*j+1}")
    for j in range(3): k(f"ds_write_b128 v{VT+1}, {vr(BF+4*j,4)} offset:{j*1024}")
    k("s_waitcnt lgkmcnt(0)\ns_barrier")
    for i in range(12): k(f"ds_read_b128 {ar(4*i,4)}, v{VT+2} offset:{i*1024}")
    k(f"s_lshl_b32 s82, s{S_RB1}, 3\ns_lshl_b32 s83, s{S_WAVE}, 1\ns_add_u32 s82, s82, s83\ns_lshl_b32 s82, s82, 15")
    k(f"s_lshl_b32 s83, s{S_HP}, 11\ns_add_u32 s82, s82, s83\ns_add_u32 s83, s82, 0x8000")
    k(f"s_lshl_b32 s84, s{S_RB1}, 2\ns_add_u32 s84, s84, s{S_WAVE}\ns_lshl_b32 s84, s84, {FS+4}\ns_lshl_b32 s85, s{S_HP}, {FS}\ns_add_u32 s84, s84, s85\ns_add_u32 s84, s84, {F_O}")
    k("s_waitcnt lgkmcnt(0)")
    for g, (hh, t) in enumerate(groups):
        for sg in range(2):
            for j in range(3):
                k(f"{MF} {vr((g*2+sg)*12+4*j,4)}, {ar(((hh*2+sg)*3+j)*4,4)}, {vr(EK+(g*2+sg)*4,4)}, 0")
    k("s_nop 7")
    for g, (hh, t) in enumerate(groups):
        n1, n2 = g * 24, g * 24 + 12
        D1, S1, D2, S2 = n1 + 8, n1 + 9, n2 + 8, n2 + 9
        k(f"v_mul_f32 v{n1+10}, v{S1}, v{S2}")
        k(f"v_mul_f32 v{n1+10}, 0x358637bd, v{n1+10}")
        k(f"v_fmac_f32 v{n1+10}, v{D1}, v{S2}\nv_fmac_f32 v{n1+10}, v{D2}, v{S1}")
        k(f"v_rcp_f32 v{n1+10}, v{n1+10}")
        k("s_nop 0")
        k(f"v_mul_f32 v{D1}, v{S2}, v{n1+10}\nv_mul_f32 v{D2}, v{S1}, v{n1+10}")
        for j in range(4): k(f"v_pk_mul_f32 {vr(n1+2*j,2)}, {vr(n1+2*j,2)}, {vr(D1,2)} op_sel_hi:[1,0]")
        for j in range(4): k(f"v_pk_fma_f32 {vr(n1+2*j,2)}, {vr(n2+2*j,2)}, {vr(D2,2)}, {vr(n1+2*j,2)} op_sel_hi:[1,0,1]")
        for j in range(4): k(f"v_cvt_pk_bf16_f32 v{n2+j}, v{n1+2*j}, v{n1+2*j+1}")
        k(f"buffer_store_dwordx4 {vr(n2,4)}, v{L16}, {sr(SRD_T,4)}, s{82+t} offen offset:{hh*1024} sc1")
    k.stamp("o stored")
    CU, AU, WW, TT = 128, 144, 152, 156
    for i in range(8): k(f"v_accvgpr_read_b32 v{CU+2*i}, a{A_UT+32+i}")
    silu_block(k, [CU + 2 * i for i in range(8)])
    mko = len(k.L)
    g2.V_X = 48
    srd(k, SRD_A, P_X, S * D * 2)
    V_XA = 47
    k(f"v_lshrrev_b32 v{VT+1}, 4, v{LANE}")
    k(f"v_and_b32 v{VT+2}, 15, v{LANE}\nv_lshlrev_b32 v{VT+2}, 11, v{VT+2}\nv_lshl_add_u32 v{V_XA}, v{VT+1}, 3, v{VT+2}")
    k(f"s_lshl_b32 s82, s{S_RB2}, 3\ns_lshl_b32 s83, s{S_WAVE}, 1\ns_add_u32 s82, s82, s83\ns_lshl_b32 s82, s82, 15\ns_lshl_b32 s83, s{S_NT}, 7\ns_add_u32 s82, s82, s83\ns_add_u32 s83, s82, 32768")
    for t in range(2):
        for b in range(4):
            k(f"buffer_load_dwordx2 {vr(g2.V_X+(t*4+b)*2,2)}, v{V_XA}, {sr(SRD_A,4)}, s{82+t} offen offset:{b*32}")
    publish(k, 84, VT + 2, mko)
    k.stamp("o published")
    mark1 = len(k.L)
    for j in range(8): k(f"v_mov_b32 v{AU+j}, 0")
    for i in range(8):
        for d in range(4): k(f"v_accvgpr_read_b32 v{WW+d}, a{A_UT+4*i+d}")
        for d in range(4):
            k(f"v_lshlrev_b32 v{TT}, 16, v{WW+d}\nv_and_b32 v{TT+1}, 0xffff0000, v{WW+d}")
            k(f"v_pk_fma_f32 {vr(AU+2*d,2)}, {vr(TT,2)}, {vr(CU+2*i,2)}, {vr(AU+2*d,2)} op_sel_hi:[1,0,1]")
    k("s_nop 1")
    for j in range(4): k(f"v_permlane32_swap_b32 v{AU+j}, v{AU+j+4}")
    k("s_nop 1")
    for j in range(4): k(f"v_add_f32 v{AU+j}, v{AU+j}, v{AU+j+4}")
    k("s_nop 1")
    for j in range(2): k(f"v_permlane16_swap_b32 v{AU+j}, v{AU+j+2}")
    k("s_nop 1")
    for j in range(2): k(f"v_add_f32 v{AU+j}, v{AU+j}, v{AU+j+2}")
    k("s_nop 1")
    for j in range(2): k(f"v_add_f32_dpp v{AU+j}, v{AU+j}, v{AU+j} row_ror:8 row_mask:0xf bank_mask:0xf")
    sprinkle(k, mark1, g3_early_units(k.g3, opt.get("g3_e2", 7), 254), skip=0)
    k(f"v_and_b32 v{TT}, 7, v{LANE}\nv_lshlrev_b32 v{TT}, 5, v{TT}\nv_lshrrev_b32 v{TT+1}, 5, v{LANE}\nv_lshl_add_u32 v{TT}, v{TT+1}, 4, v{TT}")
    k(f"v_bfe_u32 v{TT+1}, v{LANE}, 4, 1\nv_lshl_add_u32 v{TT}, v{TT+1}, 3, v{TT}")
    srd(k, SRD_D, P_WS, MP_BYTES, WS_MODP)
    k(f"v_or_b32 v{AU}, 1, v{AU}\nv_or_b32 v{AU+1}, 1, v{AU+1}")
    k(f"buffer_store_dwordx2 {vr(AU,2)}, v{TT}, {sr(SRD_D,4)}, s{S_MO} offen sc1")
    return g2

A_PARK = 224
S3_SRD, S3_WB, S3_KW = 64, 68, 69
def setup_gemm3_early(k, opt, LANE, VT):
    c = Sched(); common_gemm(c)
    NS, R = 4, 8
    STAGE = 28672
    V_RD, V_DMA, V_TOK = 224, 226, 233
    c.V_RD, c.V_DMA, c.V_TOK, c.LANE, c.L16, c.VT = V_RD, V_DMA, V_TOK, 237, 238, 248
    c.srd_w, c.s_wbase, c.s_kw = S3_SRD, S3_WB, S3_KW
    order(c, k, opt, 'g3', ['win', [4, 4, 8], 0])
    k(f"s_lshr_b32 s80, s{S_WAVE}, 1\ns_and_b32 s81, s{S_WAVE}, 1")
    k(f"s_mul_i32 s83, s80, {32*7168}\ns_mul_i32 s{S_TMP}, s{S_FT}, 224\ns_add_u32 s83, s83, s{S_TMP}")
    for i in range(7):
        k(f"v_add_u32 v{VT+2}, {i*64}, v{LANE}")
        k(f"v_mul_u32_u24 v{VT+3}, 4682, v{VT+2}")
        k(f"v_lshrrev_b32 v{VT+3}, 16, v{VT+3}")
        k(f"v_mul_u32_u24 v{VT+4}, 14, v{VT+3}")
        k(f"v_sub_u32 v{VT+4}, v{VT+2}, v{VT+4}")
        k(f"v_mul_u32_u24 v{VT+3}, 7168, v{VT+3}")
        k(f"v_lshl_add_u32 v{VT+3}, v{VT+4}, 4, v{VT+3}")
        k(f"v_add_u32 v{VT+3}, s83, v{VT+3}")
        k(f"v_accvgpr_write_b32 a{A_PARK+i}, v{VT+3}")
    k(f"s_mul_i32 s{S3_WB}, s81, 14336\ns_mul_i32 s82, s80, 7168\ns_add_u32 s{S3_WB}, s{S3_WB}, s82")
    k(f"s_cmp_eq_u32 s81, 0\ns_cselect_b32 s{S3_SRD}, s{P_W1}, s{P_W3}\ns_cselect_b32 s{S3_SRD+1}, s{P_W1+1}, s{P_W3+1}")
    k(f"s_mov_b32 s{S3_SRD+2}, {D*F*2}\ns_mov_b32 s{S3_SRD+3}, 0x20000")
    c.NB, c.TB, c.KS, c.SPK, c.KT, c.NS, c.R = 14, 4, 1, 2, 16, NS, R
    c.acc = lambda b, t: vr((b * 4 + t) * 4, 4)
    c.tf = lambda slot, ks, t: 112 + (slot * 4 + t) * 4
    ph = lambda sl: 3 - sl
    c.rd = lambda sl, b, sub, r: (V_RD + ph(sl) // 2, (ph(sl) % 2) * STAGE + (b % 2) * 14336 + (32 * sub + 16 * r) * 224 + 32 * (b // 2))
    c.slot_addr = lambda sl: ph(sl) * STAGE
    c.dma = [(V_DMA + i, i * 1024, 0) for i in range(7)]
    c.v_tok = [V_TOK + t for t in range(4)]
    c.w_stride = 64 * 7168
    c.drop = opt.get("g3_drop", ())
    c.pro_units, c.ramp_rate, c.read_margin = opt.get("g3_pro", 12), (lambda st: opt.get("g3_ramp", 12) if st < 6 else 8), 8
    c.lookahead = opt.get("g3_la", 4)
    std_sched(c)
    TL = c.TL = opt.get("g3_tail", 0)
    if TL:
        tail = c.steps[32 - TL:]
        c.steps = c.steps[:32 - TL] + [dict(st, frags=st["frags"][:8]) for st in tail] + [dict(st, frags=st["frags"][8:]) for st in tail]
    return c
def g3_early_units(c, n, vtmp):
    out = []
    for j in range(n):
        t = c.prefetch_txt(1)
        i = (c.pre_dma - 1) % 7
        ld = t[-1].replace(f"v{c.V_DMA+i},", f"v{vtmp},")
        out.append(t[:-1] + [f"v_accvgpr_read_b32 v{vtmp}, a{A_PARK+i}", ld])
    return out
def setup_gemm3_late(k, c):
    V_RD, V_DMA, V_TOK, LANE, L16, VT = c.V_RD, c.V_DMA, c.V_TOK, c.LANE, c.L16, c.VT
    lane_id(k, LANE)
    k(f"v_lshlrev_b32 v{L16}, 4, v{LANE}")
    for i in range(7): k(f"v_accvgpr_read_b32 v{V_DMA+i}, a{A_PARK+i}")
    k(f"v_lshrrev_b32 v{VT+3}, 2, v{LANE}\nv_mul_u32_u24 v{VT+3}, 224, v{VT+3}")
    k(f"v_and_b32 v{VT+4}, 3, v{LANE}\nv_lshl_add_u32 v{V_RD}, v{VT+4}, 3, v{VT+3}")
    k(f"v_add_u32 v{V_RD+1}, {2*28672}, v{V_RD}")
    k(f"s_lshl_b32 s82, s{S_RB3}, 4\ns_lshl_b32 s83, s{S_WAVE}, 2\ns_add_u32 s82, s82, s83\ns_lshl_b32 s82, s82, 15")
    k(f"v_add_u32 v{V_TOK}, s82, v{L16}")
    for t in range(1, 4): k(f"v_add_u32 v{V_TOK+t}, {t*0x8000}, v{V_TOK}")

def sprinkle(k, mark, groups, skip=4):
    if not groups: return
    seg = k.L[mark:]
    stepn = max(1, (len(seg) - skip) // len(groups))
    out, q = [], list(groups)
    for i, x in enumerate(seg):
        out.append(x)
        if q and i >= skip and (i - skip) % stepn == 0:
            assert not x.startswith("s_cmp") and not x.startswith("s_and_saveexec")
            out += q.pop(0)
    for g in q: out += g
    k.L[mark:] = out

A_X1 = 240
def phase_gemm2(k, c, opt):
    LANE, L16 = c.LANE, c.L16
    VT = 40
    k(f"v_and_b32 v252, 15, v{LANE}\nv_lshlrev_b32 v252, {FS}, v252")
    k(f"s_lshl_b32 s84, s{S_RB2}, 2\ns_add_u32 s84, s84, s{S_WAVE}\ns_lshl_b32 s84, s84, {FS+4}\ns_add_u32 s85, s84, {F_O}")
    staged_wait(k, c, opt.get("g2_T", 6), 252, 85, 253, one_prod)
    k.stamp("o ready")
    V_G, V_C, V_S, V_GA = 64, 80, 136, 44
    p = Txt()
    srd(p, SRD_A, P_WS, S * D * 2, WS_Y)
    srd(p, SRD_B, P_WS, S * 128, WS_STAT)
    srd(p, SRD_D, P_WS, MP_BYTES, WS_MODP)
    p(f"v_lshrrev_b32 v{V_GA}, 4, v{LANE}\nv_lshlrev_b32 v{V_GA}, 4, v{V_GA}\nv_add_u32 v{V_GA}, {L_MV}, v{V_GA}")
    p(f"s_lshl_b32 s86, s{S_RB2}, 3\ns_lshl_b32 s87, s{S_WAVE}, 1\ns_add_u32 s86, s86, s87")
    p(f"s_lshl_b32 s88, s86, 15\ns_lshl_b32 s87, s{S_NT}, 11\ns_add_u32 s88, s88, s87\ns_add_u32 s89, s88, 32768")
    p(f"s_lshl_b32 s87, s{S_NT}, {FS}\ns_add_u32 s84, s84, s87\ns_add_u32 s84, s84, {F_Y}")
    p(f"s_lshl_b32 s91, s86, 11\ns_lshl_b32 s90, s{S_NT}, 8\ns_add_u32 s90, s90, s91")
    p(f"s_lshl_b32 s92, s{S_WAVE}, 16\ns_lshl_b32 s93, s{S_NT}, 12\ns_add_u32 s92, s92, s93\ns_add_u32 s92, s92, {MP_B}")
    p(f"v_lshlrev_b32 v{VT}, 2, v{LANE}")
    c.pre_loop_txt = p.L
    c.late = {}
    if opt.get("cpf", 1): c.late[6] = code_prefetch_txt(k.name, L16, 254, 80)
    m = Txt(); m.label = k.label
    MB_ = 160
    spin(m, [f"buffer_load_dword v{MB_+j}, v{VT}, {sr(SRD_D,4)}, s92 offen offset:{j*256} sc1" for j in range(16)], [MB_ + j for j in range(16)], MB_ + 16)
    for st in (4, 2, 1):
        for j in range(st): m(f"v_pk_add_f32 {vr(MB_+2*j,2)}, {vr(MB_+2*j,2)}, {vr(MB_+2*(j+st),2)}")
    m(f"v_add_f32 v{MB_}, v{MB_}, v{MB_+1}")
    round_bf16(m, MB_)
    m(f"v_add_f32 v{MB_+1}, 1.0, v{MB_}"); round_bf16(m, MB_ + 1)
    m(f"s_cmp_eq_u32 s{S_WAVE}, 2\ns_cselect_b64 vcc, -1, 0")
    m(f"v_cndmask_b32 v{MB_}, v{MB_}, v{MB_+1}, vcc")
    m(f"s_lshl_b32 s92, s{S_WAVE}, 8\ns_add_u32 s92, s92, {L_MV}\nv_add_u32 v{VT}, s92, v{VT}")
    m(f"ds_write_b32 v{VT}, v{MB_}")
    c.late[opt.get("g2_modstep", 13)] = ["\n".join(m.L)]
    c.last_reads = ([f"ds_read_b128 {vr(V_G+4*b,4)}, v{V_GA} offset:{b*64}" for b in range(4)] + [f"ds_read_b128 {vr(V_C+4*b,4)}, v{V_GA} offset:{512+b*64}" for b in range(4)]
                    + [f"ds_read_b128 {vr(V_S+4*b,4)}, v{V_GA} offset:{256+b*64}" for b in range(4)])
    c.run(k)
    k.stamp("g2 loop done")
    k("s_waitcnt lgkmcnt(0)\ns_nop 7")
    A = lambda b, t: (b * 2 + t) * 4
    XT = 104; V_X = c.V_X
    for t in range(2):
        for b in range(4):
            xr = V_X + (t * 4 + b) * 2
            for h in range(2): k(f"v_lshlrev_b32 v{XT+2*h}, 16, v{xr+h}\nv_and_b32 v{XT+2*h+1}, 0xffff0000, v{xr+h}")
            for h in range(2): k(f"v_pk_fma_f32 {vr(A(b,t)+2*h,2)}, {vr(A(b,t)+2*h,2)}, {vr(V_G+4*b+2*h,2)}, {vr(XT+2*h,2)}")
        PK = XT + 4 + t * 8
        for b in range(4): k(f"v_cvt_pk_bf16_f32 v{PK+2*b}, v{A(b,t)}, v{A(b,t)+1}\nv_cvt_pk_bf16_f32 v{PK+2*b+1}, v{A(b,t)+2}, v{A(b,t)+3}")
        for b in range(4):
            for h in range(2): k(f"v_lshlrev_b32 v{A(b,t)+2*h}, 16, v{PK+2*b+h}\nv_and_b32 v{A(b,t)+2*h+1}, 0xffff0000, v{PK+2*b+h}")
    SU = [XT + 20, XT + 22]; M2 = [XT + 21, XT + 23]; TM = [XT + 24, XT + 25]; AC = [XT, XT + 2]; NM = [XT + 26, XT + 28]; DF = 32
    for t in range(2): k(f"v_pk_add_f32 {vr(AC[t],2)}, {vr(A(0,t),2)}, {vr(A(0,t)+2,2)}")
    for b in range(1, 4):
        for h in range(2):
            for t in range(2): k(f"v_pk_add_f32 {vr(AC[t],2)}, {vr(AC[t],2)}, {vr(A(b,t)+2*h,2)}")
    def allred2(X):
        for sw in ("v_permlane32_swap_b32", "v_permlane16_swap_b32"):
            for t in range(2): k(f"v_mov_b32 v{TM[t]}, v{X[t]}")
            k("s_nop 0")
            for t in range(2): k(f"{sw} v{X[t]}, v{TM[t]}")
            k("s_nop 0")
            for t in range(2): k(f"v_add_f32 v{X[t]}, v{X[t]}, v{TM[t]}")
    for t in range(2): k(f"v_add_f32 v{SU[t]}, v{AC[t]}, v{AC[t]+1}")
    allred2(SU)
    for t in range(2): k(f"v_mul_f32 v{NM[t]}, {-1.0/64!r}, v{SU[t]}\nv_mov_b32 v{AC[t]}, 0\nv_mov_b32 v{AC[t]+1}, 0")
    for b in range(4):
        for h in range(2):
            for t in range(2): k(f"v_pk_add_f32 {vr(DF+2*t,2)}, {vr(A(b,t)+2*h,2)}, {vr(NM[t],2)} op_sel_hi:[1,0]")
            for t in range(2): k(f"v_pk_fma_f32 {vr(AC[t],2)}, {vr(DF+2*t,2)}, {vr(DF+2*t,2)}, {vr(AC[t],2)}")
    for t in range(2): k(f"v_add_f32 v{M2[t]}, v{AC[t]}, v{AC[t]+1}")
    allred2(M2)
    k(f"v_cmp_gt_u32 vcc, 16, v{LANE}")
    k(f"v_lshlrev_b32 v{XT+2}, 3, v{LANE}\nv_lshrrev_b32 v{XT+3}, 4, v{LANE}")
    k(f"v_cndmask_b32 v{XT}, v{SU[1]}, v{SU[0]}, vcc\nv_cndmask_b32 v{XT+1}, v{M2[1]}, v{M2[0]}, vcc")
    k(f"v_and_b32 v45, 0x78, v{XT+2}\nv_lshl_add_u32 v45, v{XT+3}, 10, v45")
    k(f"v_or_b32 v{XT+1}, 1, v{XT+1}")
    k(f"v_cmp_gt_u32 vcc, 32, v{LANE}\ns_and_saveexec_b64 s[96:97], vcc")
    k(f"buffer_store_dwordx2 {vr(XT,2)}, v{XT+2}, {sr(SRD_B,4)}, s90 offen sc1")
    k("s_mov_b64 exec, s[96:97]")
    k.stamp("stat stored")
    for t in range(2):
        for b in range(4):
            for h in range(2): k(f"v_pk_mul_f32 {vr(A(b,t)+2*h,2)}, {vr(A(b,t)+2*h,2)}, {vr(V_C+4*b+2*h,2)}")
    for j in range(16): k(f"v_accvgpr_write_b32 a{A_X1+j}, v{XT+4+j}")
    g3 = k.g3
    setup_gemm3_late(k, g3)
    g3.prefetch(k, opt.get("g3_pre0", 0))
    ST = 48
    spin(k, [f"buffer_load_dwordx2 {vr(ST+t*8+j*2,2)}, v45, {sr(SRD_B,4)}, s91 offen offset:{t*128+j*256} sc1" for t in range(2) for j in range(4)],
         [ST + 2 * j + 1 for j in range(8)], XT)
    k.stamp("stat ready")
    for t in range(2):
        b = ST + t * 8
        k(f"v_add_f32 v{SU[t]}, v{b}, v{b+2}\nv_add_f32 v{TM[t]}, v{b+4}, v{b+6}\nv_add_f32 v{SU[t]}, v{SU[t]}, v{TM[t]}")
        k(f"v_add_f32 v{M2[t]}, v{b+1}, v{b+3}\nv_add_f32 v{TM[t]}, v{b+5}, v{b+7}\nv_add_f32 v{M2[t]}, v{M2[t]}, v{TM[t]}")
    allred2(SU)
    for t in range(2): k(f"v_mul_f32 v{SU[t]}, {-1.0/1024!r}, v{SU[t]}")
    for j in range(4):
        for t in range(2): k(f"v_fmamk_f32 v{ST+t*8+2*j}, v{ST+t*8+2*j}, {1.0/64!r}, v{SU[t]}")
        for t in range(2): k(f"v_mul_f32 v{ST+t*8+2*j}, v{ST+t*8+2*j}, v{ST+t*8+2*j}")
        for t in range(2): k(f"v_fmac_f32 v{M2[t]}, 0x42800000, v{ST+t*8+2*j}")
    allred2(M2)
    for t in range(2): k(f"v_mov_b32 v{TM[t]}, 0x3727c5ac\nv_fmac_f32 v{TM[t]}, {1.0/1024!r}, v{M2[t]}")
    for t in range(2): k(f"v_rsq_f32 v{NM[t]}, v{TM[t]}")
    k("s_nop 0")
    for t in range(2): k(f"v_mul_f32 v{NM[t]+1}, v{SU[t]}, v{NM[t]}")
    for t in range(2):
        YK = ST + t * 8
        for b in range(4):
            for h in range(2): k(f"v_pk_fma_f32 {vr(XT+2*h,2)}, {vr(V_C+4*b+2*h,2)}, {vr(NM[t],2)}, {vr(V_S+4*b+2*h,2)} op_sel:[0,1,0] op_sel_hi:[1,1,1]")
            for h in range(2): k(f"v_pk_fma_f32 {vr(XT+2*h,2)}, {vr(A(b,t)+2*h,2)}, {vr(NM[t],2)}, {vr(XT+2*h,2)} op_sel_hi:[1,0,1]")
            k(f"v_cvt_pk_bf16_f32 v{YK+2*b}, v{XT}, v{XT+1}\nv_cvt_pk_bf16_f32 v{YK+2*b+1}, v{XT+2}, v{XT+3}")
        for s_ in range(2): k(f"buffer_store_dwordx4 {vr(YK+4*s_,4)}, v{L16}, {sr(SRD_A,4)}, s{88+t} offen offset:{s_*1024} sc1")
    publish(k, 84, 40)
    k.stamp("y published")
    g3.prefetch(k, opt.get("g3_pre", 0))
    return g3

def phase_gemm3(k, c, opt):
    LANE, L16, VT = c.LANE, c.L16, c.VT
    NB, TB = 14, 4
    srd(k, SRD_T, P_WS, S * D * 2, WS_Y)
    srd(k, SRD_C, P_WS, S * F * 2, WS_HH)
    k(f"v_and_b32 v{VT}, 31, v{LANE}\nv_lshlrev_b32 v{VT}, {FS}, v{VT}")
    k(f"s_lshl_b32 s84, s{S_RB3}, 2\ns_add_u32 s84, s84, s{S_WAVE}")
    k(f"s_lshl_b32 s85, s84, {FS+5}\ns_add_u32 s85, s85, {F_Y}")
    staged_wait(k, c, opt.get("g3_T", 3), VT, 85, VT + 1, one_prod, dup16=True)
    k.stamp("y ready")
    p = Txt()
    p(f"s_mul_i32 s88, s84, {448*1024}\ns_mul_i32 s92, s{S_FT}, 3584\ns_add_u32 s88, s88, s92")
    for t in range(1, 4): p(f"s_add_u32 s{88+t}, s88, {t*112*1024}")
    p(f"s_lshl_b32 s93, s84, {FS+5}\ns_lshl_b32 s94, s{S_FT}, {FS}\ns_add_u32 s93, s93, s94\ns_add_u32 s94, s93, {F_HB}\ns_add_u32 s93, s93, {F_HH}")
    p(f"s_mov_b32 s86, {-LOG2E!r}\ns_mov_b32 s87, {-LOG2E!r}")
    SB = 241
    p(f"v_lshrrev_b32 v{SB}, 1, v{L16}")
    c.pre_loop_txt = p.L
    if opt.get("cpf", 1):
        c.late[6] = code_prefetch_txt(k.name, L16, 254, 80, junk="v240")
        c.late[22] = code_prefetch_txt(k.name, L16, 254, 80, junk="v240")
    if opt.get("w2touch", 1):
        c.late[opt.get("w2step", 16)] = [f"s_lshl_b32 s80, s2, 2", f"s_add_u32 s80, s80, s{S_WAVE}", "s_mul_i32 s80, s80, 7168",
                      f"v_min_u32 v253, 55, v{LANE}", "v_lshlrev_b32 v253, 7, v253", "v_add_u32 v253, s80, v253",
                      f"global_load_dword v240, v253, s[{P_W2}:{P_W2+1}]"]
    t4 = Txt()
    g4 = setup_gemm4p(t4, opt, 242)
    half = len(t4.L) // 2
    c.late[19] = t4.L[:half]; c.late[20] = t4.L[half:]
    pf = g4.prefetch_txt(4); c.late[29] = pf
    pf = g4.prefetch_txt(4); c.late[30] = pf
    def G(s, t): return ((2 * s) * TB + t) * 4
    def Uu(s, t): return ((2 * s + 1) * TB + t) * 4
    def act(k, slots, t, scalar=False):
        if scalar:
            for s in slots:
                for r in range(4):
                    k(f"v_mul_f32 v{Uu(s,t)+r}, v{G(s,t)+r}, v{Uu(s,t)+r}")
                    k(f"v_mul_f32 v{G(s,t)+r}, s86, v{G(s,t)+r}")
            rs = [(s, r) for s in slots for r in range(4)]
            for i, (s, r) in enumerate(rs): k(f"v_exp_f32 v{G(s,t)+r}, v{G(s,t)+r}")
            for i, (s, r) in enumerate(rs): k(f"v_add_f32 v{G(s,t)+r}, 1.0, v{G(s,t)+r}")
            for i, (s, r) in enumerate(rs): k(f"v_rcp_f32 v{G(s,t)+r}, v{G(s,t)+r}")
            for i, (s, r) in enumerate(rs): k(f"v_mul_f32 v{Uu(s,t)+r}, v{Uu(s,t)+r}, v{G(s,t)+r}")
            return
        for s in slots:
            for h in range(2):
                k(f"v_pk_mul_f32 {vr(Uu(s,t)+2*h,2)}, {vr(G(s,t)+2*h,2)}, {vr(Uu(s,t)+2*h,2)}")
                k(f"v_pk_mul_f32 {vr(G(s,t)+2*h,2)}, {vr(G(s,t)+2*h,2)}, s[86:87]")
        for s in slots:
            for r in range(4): k(f"v_exp_f32 v{G(s,t)+r}, v{G(s,t)+r}")
        for s in slots:
            for h in range(2): k(f"v_pk_add_f32 {vr(G(s,t)+2*h,2)}, {vr(G(s,t)+2*h,2)}, 1.0 op_sel_hi:[1,0]")
        for s in slots:
            for r in range(4): k(f"v_rcp_f32 v{G(s,t)+r}, v{G(s,t)+r}")
        for s in slots:
            for h in range(2): k(f"v_pk_mul_f32 {vr(Uu(s,t)+2*h,2)}, {vr(Uu(s,t)+2*h,2)}, {vr(G(s,t)+2*h,2)}")
    def pair(k, pr, t, scalar=False):
        s0, s1 = 2 * pr, 2 * pr + 1
        act(k, [s0, s1], t, scalar)
        d = G(s0, t)
        k(f"v_cvt_pk_bf16_f32 v{d}, v{Uu(s0,t)}, v{Uu(s0,t)+1}\nv_cvt_pk_bf16_f32 v{d+1}, v{Uu(s0,t)+2}, v{Uu(s0,t)+3}")
        k(f"v_cvt_pk_bf16_f32 v{d+2}, v{Uu(s1,t)}, v{Uu(s1,t)+1}\nv_cvt_pk_bf16_f32 v{d+3}, v{Uu(s1,t)+2}, v{Uu(s1,t)+3}")
        k(f"buffer_store_dwordx4 {vr(d,4)}, v{L16}, {sr(SRD_C,4)}, s{88+t} offen offset:{pr*1024} sc1")
    ea = Txt(); eb = Txt()
    nin = opt.get("g3_nin", 8) if c.TL else 0
    for i, (pr, t) in enumerate([(pr, t) for pr in range(2) for t in range(TB)]):
        if i < nin: pair(ea, pr, t, opt.get("g3_scalar", 0))
        else: pair(eb, pr, t)
    if c.TL:
        nst = opt.get("g3_east", c.TL - 1)
        per = -(-len(ea.L) // nst)
        c.step_extra = lambda st: ea.L[(st - 32) * per:(st - 31) * per] if st >= 32 else []
    c.run(k)
    k.stamp("g3 loop done")
    if not c.TL: k("s_nop 7")
    for x in eb.L: k(x)
    mkA = len(k.L)
    k("s_nop 4\ns_barrier")
    na = opt.get("g3_pubA", 2)
    for t in range(na): pair(k, 2, t)
    publish(k, 93, 252, mkA)
    k.stamp("hA published")
    mark3 = len(k.L)
    for t in range(na, TB): pair(k, 2, t)
    grp = []
    for j in range(8):
        t_ = g4.prefetch_txt(1); grp.append(t_[:-1] + ["s_nop 0", t_[-1]])
    sprinkle(k, mark3, grp)
    for t in range(TB):
        act(k, [6], t)
        d = G(6, t)
        k(f"v_cvt_pk_bf16_f32 v{d}, v{Uu(6,t)}, v{Uu(6,t)+1}\nv_cvt_pk_bf16_f32 v{d+1}, v{Uu(6,t)+2}, v{Uu(6,t)+3}")
        k(f"buffer_store_dwordx2 {vr(d,2)}, v{SB}, {sr(SRD_C,4)}, s{88+t} offen offset:3072 sc1")
    k.stamp("hh stored")
    return g4

def phase_gemm4(k, c, opt):
    LANE, L16 = c.LANE, c.L16
    VT = 40
    srd(k, SRD_T, P_WS, S * F * 2, WS_HH)
    srd(k, SRD_A, P_OUT, S * D * 2)
    k(f"v_and_b32 v{VT}, 31, v{LANE}\nv_lshlrev_b32 v{VT}, 2, v{VT}")
    k(f"s_lshl_b32 s84, s{S_RB2}, 1\ns_lshr_b32 s85, s{S_WAVE}, 1\ns_add_u32 s84, s84, s85\ns_lshl_b32 s84, s84, {FS+5}\ns_add_u32 s84, s84, {F_HH}")
    wait_flags(k, [(VT, 84, 1)], VT + 1)
    k.stamp("hh ready")
    V_G, V_GA, V_XA, V_X = 64, 44, 45, 48
    p = Txt()
    p(f"v_lshrrev_b32 v{VT}, 4, v{LANE}\nv_lshlrev_b32 v{V_GA}, 4, v{VT}\nv_add_u32 v{V_GA}, {L_MV}, v{V_GA}")
    p(f"v_and_b32 v{VT+1}, 15, v{LANE}\nv_lshlrev_b32 v{VT+1}, 11, v{VT+1}")
    p(f"v_and_b32 v{VT+2}, 1, v{VT}\nv_lshl_add_u32 v{VT+1}, v{VT+2}, 5, v{VT+1}")
    p(f"v_lshrrev_b32 v{VT+2}, 1, v{VT}\nv_lshl_add_u32 v{V_XA}, v{VT+2}, 4, v{VT+1}")
    p(f"s_lshl_b32 s86, s{S_RB2}, 3\ns_lshl_b32 s87, s{S_WAVE}, 1\ns_add_u32 s86, s86, s87\ns_lshl_b32 s86, s86, 15\ns_lshl_b32 s87, s{S_NT}, 7\ns_add_u32 s86, s86, s87\ns_add_u32 s87, s86, 32768")
    for j in range(16): p(f"v_accvgpr_read_b32 v{V_X+j}, a{A_X1+j}")
    c.pre_loop_txt = p.L
    c.last_reads = [f"ds_read_b128 {vr(V_G+4*b,4)}, v{V_GA} offset:{768+b*64}" for b in range(4)]
    c.run(k)
    k.stamp("g4 loop done")
    k("s_waitcnt lgkmcnt(0)\ns_nop 7")
    A = lambda b, t: (b * 2 + t) * 4
    XT = 96
    for t in range(2):
        for b in range(4):
            xr = V_X + (t * 4 + b) * 2
            for h in range(2): k(f"v_lshlrev_b32 v{XT+2*h}, 16, v{xr+h}\nv_and_b32 v{XT+2*h+1}, 0xffff0000, v{xr+h}")
            for h in range(2): k(f"v_pk_fma_f32 {vr(A(b,t)+2*h,2)}, {vr(A(b,t)+2*h,2)}, {vr(V_G+4*b+2*h,2)}, {vr(XT+2*h,2)}")
        PK = XT + 4 + t * 8
        for b in range(4): k(f"v_cvt_pk_bf16_f32 v{PK+2*b}, v{A(b,t)}, v{A(b,t)+1}\nv_cvt_pk_bf16_f32 v{PK+2*b+1}, v{A(b,t)+2}, v{A(b,t)+3}")
        k("s_nop 1")
        for s_ in range(2): k(f"v_permlane16_swap_b32 v{PK+4*s_}, v{PK+4*s_+2}\nv_permlane16_swap_b32 v{PK+4*s_+1}, v{PK+4*s_+3}")
        for s_ in range(2): k(f"buffer_store_dwordx4 {vr(PK+4*s_,4)}, v{V_XA}, {sr(SRD_A,4)}, s{86+t} offen offset:{s_*64}")

def build_mega(instr=False, opt=None, name="mega_kernel"):
    opt = opt or {}
    k = Mega(name, 256, 256, LDS_TOTAL, vgpr=256, agpr=256, sgpr=102)
    k.instr = instr; k.names = []; k.only = opt.get("only")
    end = k.label("end")
    far = k.label("go")
    k(f"s_cmp_lt_u32 s2, 256\ns_cbranch_scc1 {far}\ns_endpgm\n{far}:")
    if opt.get("fused", 1):
        code_prefetch_setup(k, name)
        k("v_and_b32 v104, 63, v0\nv_lshlrev_b32 v105, 4, v104\nv_lshlrev_b32 v254, 5, v0")
        k("global_load_dword a232, v254, s[100:101]")
        k("s_load_dwordx2 s[96:97], s[0:1], 88")
        if opt.get("dbgout"): k("s_load_dwordx2 s[72:73], s[0:1], 88")
    k("s_load_dwordx8 s[4:11], s[0:1], 0")
    k("s_load_dwordx2 s[12:13], s[0:1], 64")
    k("s_load_dwordx2 s[14:15], s[0:1], 40")
    k("s_load_dwordx4 s[16:19], s[0:1], 48")
    k("s_load_dwordx2 s[98:99], s[0:1], 72")
    k("s_load_dwordx2 s[24:25], s[0:1], 80")
    k("s_load_dwordx2 s[28:29], s[0:1], 96")
    if instr: k(f"v_mov_b32 v{VSTAMP}, 0")
    ids(k)
    k(f"s_lshr_b32 s80, s{S_IDX}, 2\ns_add_u32 s{S_R4}, s80, s{S_IDX}\ns_and_b32 s81, s{S_IDX}, 3\ns_lshl_b32 s81, s81, 1\ns_add_u32 s{S_R8}, s80, s81")
    k(f"s_and_b32 s80, s{S_IDX}, 3\ns_lshl_b32 s{S_FT}, s{S_XCD}, 2\ns_add_u32 s{S_FT}, s{S_FT}, s80\ns_lshr_b32 s{S_RB3}, s{S_IDX}, 2")
    if opt.get("fused", 1):
        for x in code_prefetch_txt(name, 105, 254, 80): k(x)
    k.stamp("start")
    g1 = (phase_front_fused if opt.get("fused", 1) else phase_front)(k, opt, name)
    g2 = phase_gemm1(k, g1, opt)
    g3 = phase_gemm2(k, g2, opt)
    g4 = phase_gemm3(k, g3, opt)
    (phase_gemm4p if opt.get('g4_pair', 1) else phase_gemm4)(k, g4, opt)
    if instr:
        k("s_waitcnt vmcnt(0)")
        k.stamp("end")
        k(f"s_add_u32 s84, s{P_WS}, {WS_DBG}\ns_addc_u32 s85, s{P_WS+1}, 0\ns_mov_b32 s86, 0x100000\ns_mov_b32 s87, 0x20000")
        k(f"s_lshl_b32 s88, s2, 2\ns_add_u32 s88, s88, s{S_WAVE}\ns_lshl_b32 s88, s88, 8")
        lane_id(k, 1)
        k("v_lshlrev_b32 v1, 2, v1")
        k(f"buffer_store_dword v{VSTAMP}, v1, s[84:87], s88 offen")
        if opt.get("dbgout"):
            sk = k.label("nodbg")
            k(f"s_lshl_b32 s88, s2, 2\ns_add_u32 s88, s88, s{S_WAVE}\ns_cmp_lg_u32 s88, {opt['dbgout']*4}\ns_cbranch_scc1 {sk}")
            k("s_mov_b32 s84, s72\ns_mov_b32 s85, s73\ns_mov_b32 s86, 64\ns_mov_b32 s87, 0x20000")
            k(f"v_readlane_b32 s89, v{VSTAMP}, 0\ns_nop 3\nv_subrev_u32 v2, s89, v{VSTAMP}")
            k("buffer_store_dword v2, v1, s[84:87], 0 offen offset:12")
            k(f"{sk}:")
    k("s_endpgm")
    k(f"{name}_end:")
    return k
```

```python
from asmlib import *
MF = "v_mfma_f32_16x16x32_bf16"

class Item:
    __slots__ = ("kind", "txt", "key", "lgkm")
    def __init__(self, kind, txt=None, key=None, lgkm=None):
        self.kind = kind; self.txt = txt; self.key = key; self.lgkm = lgkm
def T(txt): return Item("txt", txt)
def VM(txt, key): return Item("vm", txt, key)
def WVM(keys, lgkm=None): return Item("wvm", None, keys, lgkm)
def is_vm(x): return x.startswith("buffer_") or x.startswith("global_")

class Txt:
    def __init__(self): self.L = []
    def __call__(self, s): self.L += [x.strip() for x in s.split("\n") if x.strip()]

def win_mask(sizes):
    out, b = [], 0
    for w in sizes:
        out += [(b, w - 1)] * w; b += w
    return out

class Sched:
    pro_units = 0; ramp_rate = 99; read_margin = 8; lookahead = 99
    step_extra = None; late = None; last_reads = (); pre_loop_txt = (); drop = ()
    pre_dma = 0
    wreg = staticmethod(ar); wbase = 0
    pub0 = ()
    fine = 0
    bar_frac = 0.3
    stamp_every = 0; tag = ''
    def __init__(self):
        self.steps = []; self.stage_units = {}; self.stage_slot = {}; self.tok_units = {}; self.tok_slot = {}
        self.late = {}
    lead_D = None
    s_start = None
    gates = ()
    tile_of = staticmethod(lambda key: key)
    def lead_init(self, k, s_r, s_tmp):
        D = self.lead_D
        for m in range(4):
            d = self.s_dl + m
            k(f"s_sub_u32 s{s_tmp}, {m}, s{s_r}\ns_and_b32 s{s_tmp}, s{s_tmp}, 3")
            k(f"s_cmp_eq_u32 s{s_tmp}, 1\ns_cselect_b32 s{d}, {2+D}, {1+D}")
            k(f"s_cmp_eq_u32 s{s_tmp}, 0\ns_cselect_b32 s{d}, 0, s{d}")
    def pos_txt(self, s_dst, kt):
        KT = self.KT
        pow2 = KT & (KT - 1) == 0
        if self.lead_D is not None:
            assert self.s_start is None
            if kt < 2 + self.lead_D:
                return [f"s_sub_u32 s{s_dst}, {kt + KT}, s{self.s_dl + kt % 4}", f"s_sub_u32 s{self.s_ptmp}, s{s_dst}, {KT}", f"s_min_u32 s{s_dst}, s{s_dst}, s{self.s_ptmp}"]
            return [f"s_sub_u32 s{s_dst}, {kt}, s{self.s_dl + kt % 4}"]
        base, mask = self.wins[kt]
        if mask == 0:
            if self.s_start is None: return [f"s_mov_b32 s{s_dst}, {base}"]
            o = [f"s_add_u32 s{s_dst}, s{self.s_start}, {base}"]
        else:
            o = [f"s_add_u32 s{s_dst}, s{self.s_rot if mask > 3 else self.s_rot2}, {kt - base}", f"s_and_b32 s{s_dst}, s{s_dst}, {mask}"]
            if base: o.append(f"s_add_u32 s{s_dst}, s{s_dst}, {base}")
            if self.s_start is None: return o
            o.append(f"s_add_u32 s{s_dst}, s{s_dst}, s{self.s_start}")
        if pow2: o.append(f"s_and_b32 s{s_dst}, s{s_dst}, {KT-1}")
        else: o += [f"s_sub_u32 s{self.s_ptmp}, s{s_dst}, {KT}", f"s_min_u32 s{s_dst}, s{s_dst}, s{self.s_ptmp}"]
        return o
    def pos_items(self, s_dst, kt, stride):
        return [T(x) for x in self.pos_txt(s_dst, kt)] + [T(f"s_mul_i32 s{s_dst}, s{s_dst}, {stride}")]
    def _dma_list(self):
        return [(s, i) for s in sorted(self.stage_units) for i in range(len(self.stage_units[s]))]
    def prefetch(self, k, n):
        for s, i in self._dma_list()[self.pre_dma:self.pre_dma + n]:
            for x in self.stage_units[s][i]:
                if x.kind == "vm": k("s_nop 0")
                k(x.txt)
        self.pre_dma += n
    def prefetch_txt(self, n):
        t = Txt(); self.prefetch(t, n); return [x for x in t.L if x != "s_nop 0"]

    def run(self, k):
        c = self
        N = len(c.steps)
        sfirst, slast, tfirst, tlast = {}, {}, {}, {}
        for i, st in enumerate(c.steps):
            for s in st["stages"]: sfirst.setdefault(s, i); slast[s] = i
            for t in st["toks"]: tfirst.setdefault(t, i); tlast[t] = i
        bars = {}
        for s, f in sfirst.items():
            if s not in c.pub0: bars.setdefault(f - 1, []).append(s)
        barsteps = sorted(bars)
        units = {"dma": [], "tok": []}
        prev = {}
        skip = c.pre_dma
        for s in sorted(c.stage_units):
            sl = c.stage_slot[s]
            e = -1 if sl not in prev else min(b for b in barsteps if b >= slast[prev[sl]])
            prev[sl] = s
            for i, u in enumerate(c.stage_units[s]):
                if skip: skip -= 1; assert e == -1; continue
                units["dma"].append((sfirst[s] - 1, e, "dma", u))
        prev = {}
        for key in sorted(c.tok_units, key=lambda q: (tfirst[q], q)):
            sl = c.tok_slot[key]
            e = -1 if sl not in prev else tlast[prev[sl]] + 1
            e = max(e, tfirst[key] - c.lookahead, -1)
            prev[sl] = key
            for u in c.tok_units[key]: units["tok"].append((tfirst[key], e, "tok", u, c.tile_of(key)))
        issue = {}
        pos, cnt, cap = -1, 0, c.pro_units
        rate = c.ramp_rate if callable(c.ramp_rate) else (lambda s: c.ramp_rate)
        while units["dma"] or units["tok"]:
            cand = [q[0] for q in units.values() if q and q[0][1] <= pos]
            if cand and cnt < cap:
                u = min(cand, key=lambda u: (u[0], 0 if u[2] == "dma" else 1))
                issue.setdefault(pos, []).append(u); units[u[2]].pop(0); cnt += 1
                assert pos < u[0] or pos == -1, ("late unit", u[:3], pos)
            else:
                pos += 1; cnt = 0; cap = rate(pos)
        gate_at = {}
        for gt, gp, gi in c.gates:
            gs_ = min(st for st, us in issue.items() if any(u[2] == "tok" and u[4] >= gt for u in us))
            assert gs_ >= 1 and gs_ not in gate_at, gs_
            gate_at[gs_] = (gp, gi)
        def read_items(step):
            out = []
            for j, (va, o0, o1, _) in enumerate(c.steps[step]["frags"]):
                for r, off in enumerate((o0, o1)):
                    assert 0 <= off < 65536, off
                    out.append(Item("ds", f"ds_read_b64_tr_b16 {c.wreg(c.wbase+c.wf(step % 2, j)+2*r,2)}, v{va} offset:{off}", (step, j)))
            return out
        def bar(step): return [WVM([("dma", s) for s in bars[step]], lgkm=(0 if c.fine else None)), T("s_barrier")]
        def conv(x):
            if isinstance(x, Item): return x
            return VM(x, ("extra", 0)) if is_vm(x) else T(x)
        pro = []
        for u in issue.get(-1, []):
            for x in u[3]:
                if x.kind == "vm" and x.txt.endswith("lds"): pro.append(T("s_nop 0"))
                pro.append(x)
        pro += [conv(x) for x in c.pre_loop_txt]
        pro += (bar(-1) if -1 in bars else []) + read_items(0)
        touched = set(c.acc_init) if hasattr(c, "acc_init") else set()
        def make_step(step):
            st = c.steps[step]
            newt = [("tok", t) for t in st["toks"] if tfirst[t] == step]
            out = [WVM(newt, lgkm=0)] if not c.fine else ([WVM(newt)] if newt else [])
            mf = []
            pre = {}
            nf = len(st["frags"])
            for j, (_, _, _, ms) in enumerate(st["frags"]):
                if c.fine and j % c.fine == 0: pre[len(mf)] = Item("wds", None, (step, min(nf - 1, j + c.fine - 1)))
                for acc, tr in (ms if j % 2 == 0 else ms[::-1]):
                    cin = acc if acc in touched else "0"
                    touched.add(acc)
                    mf.append(T(f"{MF} {acc}, {c.wreg(c.wbase+c.wf(step%2, j),4)}, {ar(tr,4)}, {cin}"))
            n = len(mf)
            gaps = [[] for _ in range(n)]
            g0 = 0
            if step in bars:
                gb = int(n * c.bar_frac) if c.fine else 0
                gaps[gb] += bar(step); g0 = gb + 1
            us = issue.get(step, [])
            a = [u for u in us if u[2] == "dma"]; b_ = [u for u in us if u[2] == "tok"]
            if us and min(u[0] for u in us) > step + 1:
                seq = []
                while a or b_:
                    if b_: seq.append(b_.pop(0))
                    if a: seq.append(a.pop(0))
            else: seq = us
            B = []
            if step in gate_at: B += [conv(x) for x in gate_at[step][1]]
            for u in seq: B += u[3]
            B += [conv(x) for x in c.late.get(step, [])]
            if step + 1 in gate_at: B = B[:len(gate_at[step][1]) if step in gate_at else 0] + [conv(x) for x in gate_at[step + 1][0]] + B[len(gate_at[step][1]) if step in gate_at else 0:]
            A = read_items(step + 1) if step + 1 < N else [T(x) for x in c.last_reads]
            X = [conv(x) for x in (c.step_extra(step) if c.step_extra else [])]
            want = []
            ra = max(1, n - (0 if c.fine else c.read_margin) - g0)
            for i, x in enumerate(A): want.append((g0 + i * ra / len(A), 0, i, x))
            for i, x in enumerate(B): want.append((g0 + (i + 0.5) * (n - g0) / len(B), 1, i, x))
            for i, x in enumerate(X): want.append((g0 + (i + 0.25) * (n - g0) / len(X), 2, i, x))
            want.sort(key=lambda w: (w[0], w[1], w[2]))
            cap = max(1, -(-len(want) // (n - g0)))
            g = g0
            for pos_, _, _, x in want:
                g = max(g, min(n - 1, int(pos_)))
                while g < n - 1 and len(gaps[g]) >= cap: g += 1
                gaps[g].append(x)
            for i in range(n):
                if i in pre: out.append(pre[i])
                out.append(mf[i])
                prev = None
                for x in gaps[i]:
                    if x.kind == "vm" and x.txt.endswith("lds") and prev is not None and prev.txt and " m0," in prev.txt:
                        out.append(T("s_nop 0"))
                    out.append(x); prev = x
            return out
        issued = []
        ds = []
        def emit(items):
            for x in items:
                if x.kind == "wds":
                    idx = [i for i, kk in enumerate(ds) if kk == x.key]
                    if idx:
                        n = min(15, len(ds) - 1 - idx[-1])
                        k(f"s_waitcnt lgkmcnt({n})")
                        del ds[:len(ds) - n]
                elif x.kind == "wvm":
                    if x.lgkm == 0: ds.clear()
                    n = 63
                    for key in x.key:
                        idx = [i for i, kk in enumerate(issued) if kk == key]
                        n = min(n, len(issued) - 1 - idx[-1] if idx else len(issued))
                    parts = ([f"vmcnt({n})"] if x.key else []) + ([f"lgkmcnt({x.lgkm})"] if x.lgkm is not None else [])
                    k("s_waitcnt " + " ".join(parts))
                else:
                    if x.kind == "vm": issued.append(x.key)
                    if x.kind == "ds": ds.append(x.key)
                    if any(d in x.txt for d in c.drop): continue
                    k(x.txt)
        emit(pro)
        for s in range(N):
            if c.stamp_every and s % c.stamp_every == 0: k.stamp(f"{c.tag} step {s}")
            emit(make_step(s))

def std_sched(c):
    NB, TB, KS, SPK, KT, NS, R = c.NB, c.TB, c.KS, c.SPK, c.KT, c.NS, c.R
    for kt in range(KT):
        us = []
        sw = c.s_kw + kt % 2
        for i, (vo, loff, goff) in enumerate(c.dma):
            g = c.pos_items(sw, kt, c.w_stride) if i == 0 else []
            g += [T(f"s_add_u32 m0, s{c.s_wbase}, {c.slot_addr(kt % NS) + loff - goff}"),
                  VM(f"buffer_load_dwordx4 v{vo}, {sr(c.srd_w,4)}, s{sw} offen" + (f" offset:{goff}" if goff else "") + " lds", ("dma", kt))]
            us.append(g)
        c.stage_units[kt] = us; c.stage_slot[kt] = kt % NS
        for sp in range(SPK):
            step = kt * SPK + sp
            us = []
            st_ = c.s_kt + kt % 2
            for ks in range(KS):
                for t in range(TB):
                    g = c.pos_items(st_, kt, SPK * KS * 1024) if (sp == 0 and ks == 0 and t == 0) else []
                    g.append(VM(f"buffer_load_dwordx4 {ar(c.tf(step % R, ks, t),4)}, v{c.v_tok[t]}, {sr(c.srd_t,4)}, s{st_} offen offset:{(sp*KS+ks)*1024} sc1", ("tok", step)))
                    us.append(g)
            c.tok_units[step] = us; c.tok_slot[step] = step % R
            frags = []
            for ks in range(KS):
                for b in range(NB):
                    va, o0 = c.rd(kt % NS, b, sp * KS + ks, 0); _, o1 = c.rd(kt % NS, b, sp * KS + ks, 1)
                    frags.append((va, o0, o1, [(c.acc(b, t), c.tf(step % R, ks, t)) for t in range(TB)]))
            c.steps.append(dict(frags=frags, stages=[kt], toks=[step]))
    c.wf = lambda buf, j: (buf * NB * KS + j) * 4
    c.tile_of = lambda key: key // SPK
```

```python
import sys
from asmlib import *
from gemm import *
from layout import *
LOG2E = 1.4426950408889634
P_X, P_WQKV, P_WPHI, P_WO, P_W1, P_W3, P_W2, P_OUT, P_WS = 4, 6, 8, 10, 14, 16, 18, 24, 28
P_DBG, S_MB, S_MO = 96, 77, 79
P_C, P_WMOD = 12, 98
S_WAVE, S_XCD, S_IDX = 3, 30, 31
SRD_W, SRD_T, SRD_A, SRD_B, SRD_C, SRD_D, SRD_F = 32, 36, 40, 44, 48, 52, 56
S_KW, S_KT, S_WB, S_ROT, S_TMP, S_ROT2 = 60, 62, 76, 77, 78, 79
S_RB1, S_HP, S_RB2, S_NT, S_RB3, S_FT = 26, 27, 26, 27, 22, 23
S_R8, S_R4 = 20, 21
VSTAMP = 255
L_WPH, L_UTC = 110592, 105472
L_UT3, L_MV, L_R2 = 114688, 128000, 129792
LDS_TOTAL = 163584

class Mega(Kernel):
    nst = 0
    only = None
    def stamp(self, name=""):
        if not self.instr: return
        if self.only is not None and not any(name.startswith(o) for o in self.only): return
        self("s_waitcnt lgkmcnt(0)\ns_memrealtime s[0:1]\ns_waitcnt lgkmcnt(0)")
        self(f"v_writelane_b32 v{VSTAMP}, s0, {self.nst}")
        self("s_nop 3\ns_memtime s[0:1]\ns_waitcnt lgkmcnt(0)")
        self(f"v_writelane_b32 v{VSTAMP}, s0, {self.nst + 32}")
        self.names.append(name); self.nst += 1

def lane_id(k, v):
    k(f"v_mbcnt_lo_u32_b32 v{v}, -1, 0\nv_mbcnt_hi_u32_b32 v{v}, -1, v{v}")

def code_prefetch_setup(k, name, s_pc=100):
    lab = k.label("pc")
    k(f"s_getpc_b64 s[{s_pc}:{s_pc+1}]")
    k(f"{lab}:")
    k(f"s_sub_u32 s{s_pc}, s{s_pc}, {lab}-{name}\ns_subb_u32 s{s_pc+1}, s{s_pc+1}, 0")
def code_prefetch_txt(name, v_l16, vt, s_tmp, s_idx=S_IDX, s_wave=S_WAVE, s_pc=100, junk="a232"):
    return [f"s_lshl_b32 s{s_tmp}, s{s_idx}, 2", f"s_add_u32 s{s_tmp}, s{s_tmp}, s{s_wave}", f"s_lshl_b32 s{s_tmp}, s{s_tmp}, 10",
            f"v_add_u32 v{vt}, s{s_tmp}, v{v_l16}", f"v_min_u32 v{vt}, {name}_end-{name}-4, v{vt}",
            f"global_load_dword {junk}, v{vt}, s[{s_pc}:{s_pc+1}]"]

def count_vm(k, mark):
    return sum(1 for x in k.L[mark:] if is_vm(x))
def publish(k, s_off, vt, mark=None):
    k(f"v_mov_b32 v{vt}, 1\nv_mov_b32 v{vt+1}, 0")
    n = 0 if mark is None else count_vm(k, mark)
    assert n < 64
    k(f"s_waitcnt vmcnt({n})")
    k(f"buffer_store_dword v{vt}, v{vt+1}, {sr(SRD_F,4)}, s{s_off} offen sc1")

def spin(k, loads, regs, vt, s_cnt=96):
    top, ok = k.label("poll"), k.label("ok")
    k(f"s_mov_b32 s{s_cnt}, 0")
    k(f"{top}:")
    for x in loads: k(x)
    k("s_waitcnt vmcnt(0)")
    if len(regs) == 1: k(f"v_cmp_eq_u32 vcc, 0, v{regs[0]}")
    else:
        k(f"v_min_u32 v{vt}, v{regs[0]}, v{regs[1]}")
        for x in regs[2:]: k(f"v_min_u32 v{vt}, v{vt}, v{x}")
        k(f"v_cmp_eq_u32 vcc, 0, v{vt}")
    k(f"s_add_u32 s{s_cnt}, s{s_cnt}, 1")
    k(f"s_cmp_eq_u64 vcc, 0\ns_cbranch_scc1 {ok}")
    k(f"s_sleep {SLEEP}\ns_cmp_lt_u32 s{s_cnt}, 0x40000\ns_cbranch_scc1 {top}")
    k(f"{ok}:")

def wait_flags(k, polls, vt, s_cnt=96):
    top, ok = k.label("poll"), k.label("ok")
    k(f"s_mov_b32 s{s_cnt}, 0")
    k(f"{top}:")
    r = vt
    regs = []
    for va, so, ndw in polls:
        if ndw == 4: r = (r + 1) // 2 * 2
        k(f"buffer_load_dword{'x4' if ndw == 4 else ''} {vr(r,ndw)}, v{va}, {sr(SRD_F,4)}, s{so} offen sc1")
        regs += list(range(r, r + ndw)); r += ndw
    k("s_waitcnt vmcnt(0)")
    for x in regs[1:]: k(f"v_min_u32 v{regs[0]}, v{regs[0]}, v{x}")
    k(f"v_cmp_eq_u32 vcc, 0, v{regs[0]}")
    k(f"s_add_u32 s{s_cnt}, s{s_cnt}, 1")
    k(f"s_cmp_eq_u64 vcc, 0\ns_cbranch_scc1 {ok}")
    k(f"s_sleep {SLEEP}\ns_cmp_lt_u32 s{s_cnt}, 0x40000\ns_cbranch_scc1 {top}")
    k(f"{ok}:")

def staged_wait(k, c, T_, v_addr, s_off, vf, prod_of, dup16=False, skip_first=0, s_m=97, pub=None):
    ld = f"buffer_load_dword v{vf}, v{v_addr}, {sr(SRD_F,4)}, s{s_off} offen sc1"
    if T_ is None:
        spin(k, [ld], [vf], 0); return
    k(f"s_mov_b32 s{s_m}, 0")
    for kt in range(skip_first, T_):
        for x in c.pos_txt(80, kt): k(x)
        for x in prod_of(80, 81): k(x)
        k(f"s_or_b32 s{s_m}, s{s_m}, s81")
    if dup16: k(f"s_lshl_b32 s81, s{s_m}, 16\ns_or_b32 s{s_m}, s{s_m}, s81")
    top, ok = k.label("poll"), k.label("ok")
    if pub:
        mk = len(k.L); k(ld); publish(k, pub[0], pub[1], mk)
        k("s_waitcnt vmcnt(1)")
        k(f"v_cmp_eq_u32 vcc, 0, v{vf}\ns_nop 0")
        k(f"s_and_b32 s81, vcc_lo, s{s_m}\ns_cbranch_scc0 {ok}")
    k(f"s_mov_b32 s96, 0\n{top}:")
    k(ld)
    k("s_waitcnt vmcnt(0)")
    k(f"v_cmp_eq_u32 vcc, 0, v{vf}")
    k("s_add_u32 s96, s96, 1")
    k(f"s_and_b32 s81, vcc_lo, s{s_m}\ns_cbranch_scc0 {ok}")
    k(f"s_sleep {SLEEP}\ns_cmp_lt_u32 s96, 0x40000\ns_cbranch_scc1 {top}")
    k(f"{ok}:")
    add_gate(k, c, T_, ld, vf)
def add_gate(k, c, tile, ld, vf):
    m = Txt(); m.label = k.label
    okl = k.label("gok")
    m(f"v_cmp_eq_u32 vcc, 0, v{vf}\ns_cmp_eq_u64 vcc, 0\ns_cbranch_scc1 {okl}")
    spin(m, [ld], [vf], 0)
    m(f"{okl}:")
    c.gates = list(c.gates) + [(tile, [VM(ld, ("gate", tile))], [WVM([("gate", tile)]), T("\n".join(m.L))])]
one_prod = lambda sp, st: [f"s_lshl_b32 s{st}, 1, s{sp}"]

def allreduce_q(k, op, x, tmp):
    k(f"v_mov_b32 v{tmp}, v{x}\ns_nop 1")
    k(f"v_permlane32_swap_b32 v{x}, v{tmp}")
    k(f"s_nop 1\n{op} v{x}, v{x}, v{tmp}")
    k(f"v_mov_b32 v{tmp}, v{x}\ns_nop 1")
    k(f"v_permlane16_swap_b32 v{x}, v{tmp}")
    k(f"s_nop 1\n{op} v{x}, v{x}, v{tmp}")

def treduce4(k, op, A):
    a, b, c, d = A
    k("s_nop 1")
    k(f"v_permlane32_swap_b32 v{a}, v{b}\nv_permlane32_swap_b32 v{c}, v{d}")
    k("s_nop 1")
    k(f"{op} v{a}, v{a}, v{b}\n{op} v{c}, v{c}, v{d}")
    k("s_nop 1")
    k(f"v_permlane16_swap_b32 v{a}, v{c}")
    k("s_nop 1")
    k(f"{op} v{a}, v{a}, v{c}")
    k(f"v_mov_b32 v{c}, v{a}")
    k("s_nop 1")
    k(f"v_permlane16_swap_b32 v{a}, v{c}")
    k("s_nop 1")
    k(f"v_mov_b32 v{b}, v{a}\nv_mov_b32 v{d}, v{c}")
    k("s_nop 1")
    k(f"v_permlane32_swap_b32 v{a}, v{b}\nv_permlane32_swap_b32 v{c}, v{d}")
    k("s_nop 1")

def red8(k, x):
    for m in ("quad_perm:[1,0,3,2]", "quad_perm:[2,3,0,1]", "row_half_mirror"):
        k(f"s_nop 1\nv_add_f32_dpp v{x}, v{x}, v{x} {m} row_mask:0xf bank_mask:0xf")

def round_bf16(k, v):
    k(f"v_cvt_pk_bf16_f32 v{v}, v{v}, v{v}\nv_and_b32 v{v}, 0xffff0000, v{v}")

S_DLA, S_DLB, S_PTMP = 71, 6, 75
def order(c, k, opt, tag, default):
    o = opt.get(tag + "_ord", default)
    c.tag = tag; c.stamp_every = opt.get(tag + "_se", 0)
    c.fine = opt.get(tag + "_fine", opt.get("fine", 0)); c.bar_frac = opt.get("bar_frac", 0.3)
    c.s_rot, c.s_rot2 = S_R8, S_R4
    if o[0] == "lead":
        c.lead_D, c.s_dl = o[1], S_DLA
    else:
        c.wins = win_mask(o[1])
        if o[2]:
            c.s_start = S_HP
            c.s_rot = c.s_rot2 = S_RB3
def common_gemm(c):
    c.srd_w, c.srd_t = SRD_W, SRD_T
    c.s_kw, c.s_kt, c.s_wbase, c.s_ptmp = S_KW, S_KT, S_WB, S_PTMP

def setup_gemm1(k, opt):
    c = Sched(); common_gemm(c)
    NS, R = opt.get("g1_NS", 4), opt.get("g1_R", 4)
    STAGE = 25344
    c.V_RD, c.V_DMA, c.V_TOK, c.LANE, c.L16, c.VT = 96, 98, 102, 104, 105, 106
    V_RD, V_DMA, V_TOK, LANE, L16, VT = c.V_RD, c.V_DMA, c.V_TOK, c.LANE, c.L16, 110
    k(f"v_lshlrev_b32 v{L16}, 4, v{LANE}")
    c.lead_D, c.s_dl = opt.get("D", 0), S_DLA
    if opt.get("uselead", 0): c.lead_init(k, S_R4, 81)
    c.lead_D = None
    order(c, k, opt, "g1", ["win", [8, 8], 0])
    k(f"s_lshr_b32 s80, s{S_WAVE}, 1\ns_and_b32 s81, s{S_WAVE}, 1")
    k(f"v_lshrrev_b32 v{VT+1}, 3, v{LANE}")
    k(f"v_and_b32 v{VT+2}, 4, v{VT+1}")
    k(f"v_bfe_u32 v{VT+3}, v{VT+1}, 1, 1\nv_or_b32 v{VT+2}, v{VT+2}, v{VT+3}")
    k(f"v_and_b32 v{VT+3}, 1, v{VT+1}\nv_lshl_or_b32 v{VT+2}, v{VT+3}, 1, v{VT+2}")
    k(f"v_mul_u32_u24 v{VT+2}, {4*6144}, v{VT+2}")
    k(f"v_and_b32 v{VT+3}, 7, v{LANE}\nv_lshl_add_u32 v{VT+2}, v{VT+3}, 4, v{VT+2}")
    k("s_lshl_b32 s82, s80, 5\ns_lshl_b32 s83, s81, 1\ns_add_u32 s82, s82, s83\ns_mul_i32 s82, s82, 6144")
    k(f"s_lshl_b32 s83, s{S_HP}, 7\ns_add_u32 s82, s82, s83")
    k(f"v_add_u32 v{V_DMA}, s82, v{VT+2}")
    k(f"v_add_u32 v{V_DMA+1}, 6144, v{V_DMA}\nv_add_u32 v{V_DMA+2}, 4096, v{V_DMA}\nv_add_u32 v{V_DMA+3}, {6144+4096}, v{V_DMA}")
    k(f"v_bfe_u32 v{VT+1}, v{LANE}, 2, 2\nv_mul_u32_u24 v{VT+1}, 1056, v{VT+1}")
    k(f"v_lshrrev_b32 v{VT+2}, 5, v{LANE}\nv_lshl_add_u32 v{VT+1}, v{VT+2}, 9, v{VT+1}")
    k(f"v_bfe_u32 v{VT+2}, v{LANE}, 4, 1\nv_lshl_add_u32 v{VT+1}, v{VT+2}, 7, v{VT+1}")
    k(f"v_and_b32 v{VT+3}, 3, v{LANE}\nv_lshl_add_u32 v{V_RD}, v{VT+3}, 3, v{VT+1}")
    k(f"v_add_u32 v{V_RD+1}, {2*STAGE}, v{V_RD}")
    k(f"s_lshl_b32 s82, s{S_RB1}, 3\ns_lshl_b32 s83, s{S_WAVE}, 1\ns_add_u32 s82, s82, s83\ns_lshl_b32 s82, s82, 15")
    k(f"v_add_u32 v{V_TOK}, s82, v{L16}\nv_add_u32 v{V_TOK+1}, 0x8000, v{V_TOK}")
    k(f"s_mul_i32 s{S_WB}, s80, 4224\ns_mul_i32 s82, s81, 2112\ns_add_u32 s{S_WB}, s{S_WB}, s82")
    c.NB, c.TB, c.KS, c.SPK, c.KT, c.NS, c.R = 12, 2, 1, 2, 16, NS, R
    c.acc = lambda b, t: vr((b * 2 + t) * 4, 4)
    c.tf = lambda slot, ks, t: 96 + (slot * 2 + t) * 4
    c.rd = lambda sl, b, sub, r: (V_RD + sl // 2, (sl % 2) * STAGE + (b // 4) * 8448 + sub * 4224 + r * 256 + (b % 4) * 32)
    c.slot_addr = lambda sl: sl * STAGE
    c.dma = [(V_DMA, 0, 0), (V_DMA + 1, 1056, 0), (V_DMA, 8448, 2048), (V_DMA + 1, 8448 + 1056, 2048), (V_DMA + 2, 16896, 0), (V_DMA + 3, 16896 + 1056, 0)]
    c.v_tok = [V_TOK, V_TOK + 1]
    c.w_stride = 64 * 6144
    c.drop = opt.get("g1_drop", ())
    c.pro_units, c.ramp_rate, c.read_margin = opt.get("g1_pro", 6), opt.get("g1_ramp", 6), opt.get("g1_rm", 6)
    std_sched(c)
    return c

def setup_gemm1s(k, opt):
    c = Sched(); common_gemm(c)
    HS = 8448; STAGE = 2 * HS
    c.V_RD, c.V_DMA, c.V_TOK, c.LANE, c.L16, c.VT = 96, 98, 102, 104, 105, 106
    V_RD, V_DMA, V_TOK, LANE, L16, VT = c.V_RD, c.V_DMA, c.V_TOK, c.LANE, c.L16, 110
    k(f"v_lshlrev_b32 v{L16}, 4, v{LANE}")
    order(c, k, opt, "g1", ["win", [8, 8], 0])
    k(f"s_lshr_b32 s80, s{S_WAVE}, 1\ns_and_b32 s81, s{S_WAVE}, 1")
    k(f"v_lshrrev_b32 v{VT+1}, 3, v{LANE}")
    k(f"v_and_b32 v{VT+2}, 4, v{VT+1}")
    k(f"v_bfe_u32 v{VT+3}, v{VT+1}, 1, 1\nv_or_b32 v{VT+2}, v{VT+2}, v{VT+3}")
    k(f"v_and_b32 v{VT+3}, 1, v{VT+1}\nv_lshl_or_b32 v{VT+2}, v{VT+3}, 1, v{VT+2}")
    k(f"v_mul_u32_u24 v{VT+2}, {4*6144}, v{VT+2}")
    k(f"v_and_b32 v{VT+3}, 7, v{LANE}\nv_lshl_add_u32 v{VT+2}, v{VT+3}, 4, v{VT+2}")
    k("s_lshl_b32 s82, s80, 5\ns_lshl_b32 s83, s81, 1\ns_add_u32 s82, s82, s83\ns_mul_i32 s82, s82, 6144")
    k(f"s_lshl_b32 s83, s{S_HP}, 7\ns_add_u32 s82, s82, s83")
    k(f"v_add_u32 v{V_DMA}, s82, v{VT+2}")
    k(f"v_add_u32 v{V_DMA+1}, 6144, v{V_DMA}\nv_add_u32 v{V_DMA+2}, 2048, v{V_DMA}\nv_add_u32 v{V_DMA+3}, {6144+2048}, v{V_DMA}")
    k(f"v_bfe_u32 v{VT+1}, v{LANE}, 2, 2\nv_mul_u32_u24 v{VT+1}, 1056, v{VT+1}")
    k(f"v_lshrrev_b32 v{VT+2}, 5, v{LANE}\nv_lshl_add_u32 v{VT+1}, v{VT+2}, 9, v{VT+1}")
    k(f"v_bfe_u32 v{VT+2}, v{LANE}, 4, 1\nv_lshl_add_u32 v{VT+1}, v{VT+2}, 7, v{VT+1}")
    k(f"v_and_b32 v{VT+3}, 3, v{LANE}\nv_lshl_add_u32 v{V_RD}, v{VT+3}, 3, v{VT+1}")
    k(f"v_add_u32 v{V_RD+1}, {2*STAGE}, v{V_RD}")
    k(f"s_lshl_b32 s82, s{S_RB1}, 3\ns_lshl_b32 s83, s{S_WAVE}, 1\ns_add_u32 s82, s82, s83\ns_lshl_b32 s82, s82, 15")
    k(f"v_add_u32 v{V_TOK}, s82, v{L16}\nv_add_u32 v{V_TOK+1}, 0x8000, v{V_TOK}")
    k(f"s_mul_i32 s{S_WB}, s80, 4224\ns_mul_i32 s82, s81, 2112\ns_add_u32 s{S_WB}, s{S_WB}, s82")
    c.NB, c.TB, c.KS, c.SPK, c.KT, c.NS, c.R = 8, 2, 1, 2, 16, 4, 32
    c.acc = lambda b, t: vr(32 + (b * 2 + t) * 4, 4)
    c.tf = lambda slot, ks, t: (slot * 2 + t) * 4
    c.rd = lambda sl, b, sub, r: (V_RD + sl // 2, (sl % 2) * STAGE + (b // 4) * HS + sub * 4224 + r * 256 + (b % 4) * 32)
    c.slot_addr = lambda sl: sl * STAGE
    c.dma = [(V_DMA + 2, 0, 0), (V_DMA + 3, 1056, 0), (V_DMA + 2, HS, 2048), (V_DMA + 3, HS + 1056, 2048)]
    c.v_tok = [V_TOK, V_TOK + 1]
    c.w_stride = 64 * 6144
    c.drop = opt.get("g1_drop", ())
    c.pro_units, c.ramp_rate, c.read_margin, c.lookahead = opt.get("g1_pro", 8), opt.get("g1_ramp", 5), 4, opt.get("g1_la", 6)
    c.wreg, c.wbase = vr, 128
    std_sched(c)
    q = Sched(); common_gemm(q)
    q.KT = 16; order(q, k, opt, "g1", ["win", [8, 8], 0]); q.tag = "g1b"; q.stamp_every = opt.get("g1b_se", 0)
    q.s_kw = 70
    QS = [67584 + i * HS for i in range(5)] + [L_R2 + i * HS for i in range(4)] + [i * HS for i in range(7)]
    q.Q1, q.Q2 = V_RD + 1, V_TOK
    def base(kt): return (q.Q1, 67584) if kt < 5 else ((q.Q2, L_R2) if kt < 9 else (V_RD, 0))
    for kt in range(16):
        sw = q.s_kw + kt % 2
        q.stage_units[kt] = [q.pos_items(sw, kt, c.w_stride) + [T(f"s_add_u32 m0, s{S_WB}, {QS[kt]}"), VM(f"buffer_load_dwordx4 v{V_DMA}, {sr(SRD_W,4)}, s{sw} offen lds", ("dma", kt))],
                             [T(f"s_add_u32 m0, s{S_WB}, {QS[kt] + 1056}"), VM(f"buffer_load_dwordx4 v{V_DMA+1}, {sr(SRD_W,4)}, s{sw} offen lds", ("dma", kt))]]
        q.stage_slot[kt] = kt
        va, b0 = base(kt)
        frags = [(va, QS[kt] - b0 + sub * 4224 + b * 32, QS[kt] - b0 + sub * 4224 + 256 + b * 32, [(vr((b * 2 + t) * 4, 4), ((kt * 2 + sub) * 2 + t) * 4) for t in range(2)]) for sub in range(2) for b in range(4)]
        q.steps.append(dict(frags=frags, stages=[kt] if kt != 9 else list(range(9, 16)), toks=[]))
    q.wf = lambda buf, j: (buf * 8 + j) * 4
    q.wreg, q.wbase = vr, 128
    q.pub0 = set(range(9)); q.pro_units = opt.get('q_pro', 2); q.ramp_rate = opt.get('q_ramp', 3); q.read_margin = 4; q.drop = c.drop
    c.q = q
    return c

def merge(a, b, ratio):
    out, b = [], list(b)
    for i, x in enumerate(a):
        out.append(x)
        if b and i % ratio == ratio - 1: out.append(b.pop(0))
    return out + b

def phase_gemm1s(k, c, opt):
    LANE, L16, VT = c.LANE, c.L16, c.VT
    q = c.q
    PHK, VV, SH = 0, 34816, 114688
    p = Txt()
    srd(p, SRD_A, P_WPHI, H * 2048)
    srd(p, SRD_B, P_WS, 2 << 20, WS_KVP)
    srd(p, SRD_C, P_WS, 128 << 10, WS_ZP)
    A_PW, A_VW, A_PR, A_VR, A_WR = 110, 111, 112, 113, 114
    p(f"s_lshr_b32 s80, s{S_WAVE}, 1\ns_and_b32 s81, s{S_WAVE}, 1")
    p(f"v_and_b32 v{VT}, 15, v{LANE}\ns_lshl_b32 s82, s{S_WAVE}, 5\nv_add_u32 v{VT}, s82, v{VT}")
    p(f"v_lshrrev_b32 v{VT+1}, 4, v{LANE}\nv_lshlrev_b32 v{VT+1}, 3, v{VT+1}")
    p(f"v_mul_u32_u24 v{A_PW}, 136, v{VT}\nv_add_u32 v{A_PW}, v{A_PW}, v{VT+1}")
    p(f"v_mul_u32_u24 v{A_VW}, 72, v{VT}\nv_add_u32 v{A_VW}, v{A_VW}, v{VT+1}")
    p(f"v_lshrrev_b32 v{VT}, 2, v{LANE}\nv_and_b32 v{VT+1}, 3, v{LANE}\nv_lshlrev_b32 v{VT+1}, 3, v{VT+1}")
    p(f"s_mul_i32 s82, s80, 17408\ns_lshl_b32 s83, s81, 6\ns_add_u32 s82, s82, s83")
    p(f"v_mul_u32_u24 v{A_PR}, 136, v{VT}\nv_add_u32 v{A_PR}, v{A_PR}, v{VT+1}\nv_add_u32 v{A_PR}, s82, v{A_PR}")
    p(f"s_mul_i32 s82, s80, 9216")
    p(f"v_mul_u32_u24 v{A_VR}, 72, v{VT}\nv_add_u32 v{A_VR}, v{A_VR}, v{VT+1}\nv_add_u32 v{A_VR}, s82, v{A_VR}")
    p(f"v_lshl_add_u32 v{A_WR}, v{VT}, 6, v{VT+1}\nv_add_u32 v{A_WR}, {L_WPH}, v{A_WR}")
    ONES, SEL = 116, 120
    for j in range(4): p(f"v_mov_b32 v{ONES+j}, 0x3f803f80")
    p(f"v_bfe_u32 v{VT}, v{LANE}, 2, 2\nv_lshrrev_b32 v{VT+1}, 4, v{LANE}")
    p(f"v_cmp_eq_u32 vcc, v{VT}, v{VT+1}")
    p(f"v_and_b32 v{VT}, 1, v{LANE}\nv_lshlrev_b32 v{VT}, 4, v{VT}\nv_mov_b32 v{VT+1}, 0x3f80\nv_lshlrev_b32 v{VT+1}, v{VT}, v{VT+1}")
    p(f"v_cndmask_b32 v{VT+1}, 0, v{VT+1}, vcc")
    p(f"v_and_b32 v{VT}, 2, v{LANE}\nv_cmp_eq_u32 vcc, 0, v{VT}")
    for j in (0, 1, 4, 5): p(f"v_mov_b32 v{SEL+j}, 0")
    p(f"v_cndmask_b32 v{SEL+2}, 0, v{VT+1}, vcc\nv_cndmask_b32 v{SEL+3}, v{VT+1}, 0, vcc")
    p(f"s_mov_b32 s94, {LOG2E!r}\ns_mov_b32 s95, {LOG2E!r}")
    p(f"s_lshl_b32 s84, s{S_HP}, 12\ns_lshl_b32 s85, s{S_WAVE}, 10\ns_add_u32 s84, s84, s85\ns_add_u32 s85, s85, {L_WPH}")
    c.pre_loop_txt = p.L
    c.late[4] = ["s_mov_b32 m0, s85", f"buffer_load_dwordx4 v{L16}, {sr(SRD_A,4)}, s84 offen lds"]
    c.late[20] = code_prefetch_txt(k.name, L16, 254, 80, junk="v31")
    ts = opt.get("mt_step", None)
    if ts is not None:
        c.late.setdefault(ts, []).extend([f"v_mul_u32_u24 v254, 12288, v{LANE}", f"buffer_load_dword v31, v254, {sr(SRD_D,4)}, s{S_MB} offen"])
        if opt.get("wo_touch", 1):
            c.late[ts].extend([f"s_lshl_b32 s80, s2, 2", f"s_add_u32 s80, s80, s{S_WAVE}", "s_lshl_b32 s80, s80, 11",
                               f"v_and_b32 v254, 15, v{LANE}", "v_lshlrev_b32 v254, 7, v254", "v_add_u32 v254, s80, v254", f"global_load_dword v31, v254, s[{P_WO}:{P_WO+1}]"])
    nq = opt.get("q_in", 10)
    for j in range(nq // 2): c.late.setdefault(32 - nq // 2 + j, []).extend(q.prefetch_txt(2))
    wph_reads = lambda reg, b0: [f"ds_read_b64_tr_b16 {reg(b0+(hh*2+fb)*4+2*r,2)}, v{A_WR} offset:{hh*2048+r*1024+fb*32}" for hh in range(2) for fb in range(2) for r in range(2)]
    c.last_reads = wph_reads(vr, 0)
    c.run(k)
    k.stamp("g1 loop done")
    A = lambda b, t: (b * 2 + t) * 4
    BF, P1, P2, MX, MN, EK = 126, 142, 174, 206, 214, 222
    groups = [(hh, t) for hh in range(2) for t in range(2)]
    def fm_part1(k, seg, ph):
        for g, (hh, t) in enumerate(groups):
            for db in range(2):
                a = A(seg * 4 + hh * 2 + db, t)
                k(f"v_cvt_pk_bf16_f32 v{BF+g*4+db*2}, v{a}, v{a+1}\nv_cvt_pk_bf16_f32 v{BF+g*4+db*2+1}, v{a+2}, v{a+3}")
        k("s_nop 1")
        for g, (hh, t) in enumerate(groups):
            for fb in range(2):
                k(f"{MF} {vr(P1+g*8+fb*4,4)}, {ph(hh*2+fb)}, {vr(BF+g*4,4)}, 0")
    def fm_part2(k):
        for op3, op2, M in (("v_max3_f32", "v_max_f32", MX), ("v_min3_f32", "v_min_f32", MN)):
            for g in range(4):
                b = P1 + g * 8
                k(f"{op3} v{M+2*g}, v{b}, v{b+1}, v{b+2}\n{op3} v{M+2*g}, v{M+2*g}, v{b+3}, v{b+4}\n{op3} v{M+2*g}, v{M+2*g}, v{b+5}, v{b+6}\n{op2} v{M+2*g}, v{M+2*g}, v{b+7}")
            treduce4(k, op2, [M + 2 * g for g in range(4)])
        for g in range(4):
            k(f"v_mul_f32 v{MX+2*g}, {-LOG2E!r}, v{MX+2*g}\nv_mul_f32 v{MN+2*g}, {LOG2E!r}, v{MN+2*g}")
    def fm_part3(k, E):
        for g in range(4):
            for j in range(4):
                b = g * 8 + 2 * j
                k(f"v_pk_fma_f32 {vr(P2+b,2)}, {vr(P1+b,2)}, s[94:95], {vr(MN+2*g,2)} op_sel_hi:[1,1,0] neg_lo:[1,0,0] neg_hi:[1,0,0]")
                k(f"v_pk_fma_f32 {vr(P1+b,2)}, {vr(P1+b,2)}, s[94:95], {vr(MX+2*g,2)} op_sel_hi:[1,1,0]")
            for j in range(8): k(f"v_exp_f32 v{P1+g*8+j}, v{P1+g*8+j}")
            for j in range(8): k(f"v_exp_f32 v{P2+g*8+j}, v{P2+g*8+j}")
            k("s_nop 0")
            for sg, PP in enumerate((P1, P2)):
                for j in range(4): k(f"v_cvt_pk_bf16_f32 v{E+(g*2+sg)*4+j}, v{PP+g*8+2*j}, v{PP+g*8+2*j+1}")
    mark0 = len(k.L)
    k("s_waitcnt lgkmcnt(0)\ns_nop 7")
    fm_part1(k, 1, lambda i: vr(i * 4, 4))
    k("s_barrier")
    for g, (hh, t) in enumerate(groups):
        for db in range(2):
            a = A(8 + hh * 2 + db, t)
            k(f"v_cvt_pk_bf16_f32 v{a}, v{a}, v{a+1}\nv_cvt_pk_bf16_f32 v{a+1}, v{a+2}, v{a+3}")
            k(f"ds_write_b64 v{A_VW}, {vr(a,2)} offset:{VV + hh*9216 + t*16*72 + db*32}")
    fm_part2(k)
    grp = []
    for j in range(18 - q.pre_dma):
        t_ = q.prefetch_txt(1); grp.append(t_[:-1] + ["s_nop 0", t_[-1]])
    sprinkle(k, mark0, grp, skip=12)
    fm_part3(k, EK)
    SM = 32
    k("s_nop 1")
    for i in range(8): k(f"{MF} {vr(SM+4*i,4)}, {vr(ONES,4)}, {vr(EK+4*i,4)}, 0")
    k(f"v_add_u32 v{q.Q1}, 67584, v{c.V_RD}\nv_add_u32 v{q.Q2}, {L_R2}, v{c.V_RD}")
    k("s_nop 5")
    for i in range(8): k(f"v_rcp_f32 v{SM+4*i}, v{SM+4*i}")
    for g, (hh, t) in enumerate(groups):
        for sg, PP in enumerate((P1, P2)):
            for j in range(4):
                k(f"v_pk_mul_f32 {vr(PP+g*8+2*j,2)}, {vr(PP+g*8+2*j,2)}, {vr(SM+(g*2+sg)*4,2)} op_sel_hi:[1,0]")
            for fb in range(2):
                b = PP + g * 8 + fb * 4
                k(f"v_cvt_pk_bf16_f32 v{b}, v{b}, v{b+1}\nv_cvt_pk_bf16_f32 v{b+1}, v{b+2}, v{b+3}")
                k(f"ds_write_b64 v{A_PW}, {vr(b,2)} offset:{PHK + hh*17408 + t*16*136 + sg*64 + fb*32}")
    k("s_waitcnt lgkmcnt(0)\ns_barrier")
    FR = 190
    for s_ in range(4):
        for r in range(2):
            for fb in range(2): k(f"ds_read_b64_tr_b16 {vr(FR+s_*16+fb*4+2*r,2)}, v{A_PR} offset:{PHK + (32*s_+16*r)*136 + fb*32}")
            for db in range(2): k(f"ds_read_b64_tr_b16 {vr(FR+s_*16+8+db*4+2*r,2)}, v{A_VR} offset:{VV + (32*s_+16*r)*72 + db*32}")
    k(f"s_lshl_b32 s82, s{S_HP}, 2\ns_add_u32 s82, s82, s{S_WAVE}")
    k("s_lshl_b32 s86, s82, 15")
    k(f"s_lshl_b32 s84, s{S_RB1}, 10\ns_add_u32 s84, s84, s86\ns_add_u32 s85, s84, 16384")
    k("s_lshl_b32 s90, s82, 11")
    k(f"s_lshl_b32 s91, s82, {FS+4}\ns_add_u32 s91, s91, {F_KV}\ns_lshl_b32 s92, s{S_RB1}, {FS}\ns_add_u32 s92, s92, s91")
    k(f"v_and_b32 v{VT}, 15, v{LANE}\nv_cmp_eq_u32 vcc, s{S_RB1}, v{VT}")
    KV, ZZ = 64, 80
    for s_ in range(4):
        k(f"s_waitcnt lgkmcnt({min(15, 24 - 8*s_)})" if s_ < 3 else "s_waitcnt vmcnt(0) lgkmcnt(0)\ns_barrier")
        for fb in range(2):
            for db in range(2):
                d = vr(KV + (db * 2 + fb) * 4, 4)
                k(f"{MF} {d}, {vr(FR+s_*16+fb*4,4)}, {vr(FR+s_*16+8+db*4,4)}, {'0' if s_ == 0 else d}")
            d = vr(ZZ + fb * 4, 4)
            k(f"{MF} {d}, {vr(FR+s_*16+fb*4,4)}, {vr(ONES,4)}, {'0' if s_ == 0 else d}")
    k(f"v_lshlrev_b32 v{VT}, {FS}, v{VT}\nv_mov_b32 v{VT+1}, 1\nv_mov_b32 v{VT+2}, 0")
    k("s_nop 5")
    for db in range(2):
        for j in range(4): k(f"v_cvt_pk_bf16_f32 v{88+db*4+j}, v{KV+db*8+2*j}, v{KV+db*8+2*j+1}")
    k(f"buffer_store_dwordx4 {vr(88,4)}, v{L16}, {sr(SRD_B,4)}, s84 offen sc1")
    k(f"buffer_store_dwordx4 {vr(92,4)}, v{L16}, {sr(SRD_B,4)}, s85 offen sc1")
    k("s_and_saveexec_b64 s[96:97], vcc")
    k(f"buffer_store_dwordx4 {vr(ZZ,4)}, v{L16}, {sr(SRD_C,4)}, s90 offen sc1")
    k(f"buffer_store_dwordx4 {vr(ZZ+4,4)}, v{L16}, {sr(SRD_C,4)}, s90 offen offset:1024 sc1")
    k("s_mov_b64 exec, s[96:97]")
    k.stamp("kv stored")
    KV, ZZ, MW, MC = 72, 88, 32, 64
    q.late[opt.get("kv_ps", 1)] = [WVM([("pre", 0)]), f"buffer_store_dword v{VT+1}, v{VT+2}, {sr(SRD_F,4)}, s92 offen sc1"]
    gs = opt.get("kv_gs", 9)
    ld = f"buffer_load_dword v253, v{VT}, {sr(SRD_F,4)}, s91 offen sc1"
    m = Txt(); m.label = k.label
    okl = k.label("gok")
    m(f"v_cmp_eq_u32 vcc, 0, v253\ns_cmp_eq_u64 vcc, 0\ns_cbranch_scc1 {okl}")
    spin(m, [ld], [253], 0)
    m(f"{okl}:")
    q.late[gs - 2] = [VM(ld, ("kvf", 0))]
    gl = [f"buffer_load_dwordx4 {vr(ZZ,4)}, v{L16}, {sr(SRD_C,4)}, s90 offen sc1", f"buffer_load_dwordx4 {vr(ZZ+4,4)}, v{L16}, {sr(SRD_C,4)}, s90 offen offset:1024 sc1"]
    for i in range(32):
        if i % 4 == 0 and i: gl.append("s_add_u32 s86, s86, 4096")
        gl.append(f"buffer_load_dwordx4 {ar(4*i,4)}, v{L16}, {sr(SRD_B,4)}, s86 offen offset:{(i%4)*1024} sc1")
    n3 = -(-len(gl) // 3)
    q.late[gs] = [WVM([("kvf", 0)]), T("\n".join(m.L))] + gl[:n3]
    q.late[gs + 1] = gl[n3:2*n3]; q.late[gs + 2] = gl[2*n3:]
    t2 = Txt()
    g2 = setup_gemm24(t2, 2, opt, (110, 111, 112, LANE, L16, 98))
    q.late[5] = t2.L[:len(t2.L)//2]; q.late[6] = t2.L[len(t2.L)//2:] + [f"global_load_ushort v{MC+i}, v109, s[{P_C}:{P_C+1}] offset:{i*16}" for i in range(8)]
    assert gs - 2 > 6
    younger = []
    younger += g2.prefetch_txt(8)
    mbl = []
    for i in range(8): mbl += [f"buffer_load_dwordx4 {vr(MW+4*i,4)}, v115, {sr(SRD_D,4)}, s{S_MB} offen", f"s_add_u32 s{S_MB}, s{S_MB}, {8*12288}"]
    mpos = opt.get("mpos", "tail")
    if mpos == "tail": younger += mbl
    ny = sum(1 for x in younger if is_vm(x))
    rest = list(range(gs + 3, 16)); per = -(-len(younger) // len(rest))
    for j, st_ in enumerate(rest): q.late[st_] = younger[j*per:(j+1)*per]
    A_PH = 128
    q.last_reads = wph_reads(ar, A_PH)
    q.run(k)
    k.stamp("g1b done")
    srd(k, SRD_T, P_WS, S * D * 2, WS_O)
    k("s_waitcnt lgkmcnt(0)\ns_nop 3")
    qa = Txt(); fm_part1(qa, 0, lambda i: ar(A_PH + i * 4, 4))
    qa(f"s_waitcnt vmcnt({min(63, ny + 32)})")
    for sh in (8, 4, 2, 1):
        for j in range(8): qa(f"v_add_f32_dpp v{ZZ+j}, v{ZZ+j}, v{ZZ+j} row_ror:{sh} row_mask:0xf bank_mask:0xf")
    for x in qa.L: k(x)
    qb = Txt(); fm_part2(qb); fm_part3(qb, EK)
    red = []
    for i in range(32):
        db, pp = divmod(i, 16)
        for fb in range(2):
            d = vr(KV + (db * 2 + fb) * 4, 4)
            red.append((f"s_waitcnt vmcnt({ny + 28 - i})\n" if (i % 4 == 0 and fb == 0) else "") + f"{MF} {d}, {vr(SEL + (2 if fb == 0 else 0), 4)}, {ar(4*i,4)}, {'0' if pp == 0 else d}")
    cut = opt.get("q_cut", 150)
    for x in merge(qb.L[:cut], red, 2): k(x)
    k(f"s_mul_i32 s82, s{S_WAVE}, 3072\ns_add_u32 s82, s82, {SH}")
    k(f"v_add_u32 v{VT+1}, s82, v{L16}\nv_add_u32 v{VT+2}, {SH}, v{L16}")
    k(f"v_and_b32 v{VT}, 1, v{LANE}\nv_cmp_eq_u32 vcc, 0, v{VT}")
    k("s_nop 4")
    for j in range(12): k(f"v_cvt_pk_bf16_f32 v{KV+j}, v{KV+2*j}, v{KV+2*j+1}")
    for j in range(4): k(f"v_cndmask_b32 v{KV+8+j}, v{ONES}, v{KV+8+j}, vcc")
    for j in range(3): k(f"ds_write_b128 v{VT+1}, {vr(KV+4*j,4)} offset:{j*1024}")
    for x in (merge(qb.L[cut:], mbl, 2) if mpos == "q" else qb.L[cut:]): k(x)
    k("s_waitcnt lgkmcnt(0)\ns_barrier")
    for i in range(12): k(f"ds_read_b128 {ar(4*i,4)}, v{VT+2} offset:{i*1024}")
    k(f"s_lshl_b32 s82, s{S_RB1}, 3\ns_lshl_b32 s83, s{S_WAVE}, 1\ns_add_u32 s82, s82, s83\ns_lshl_b32 s82, s82, 15")
    k(f"s_lshl_b32 s83, s{S_HP}, 11\ns_add_u32 s82, s82, s83\ns_add_u32 s83, s82, 0x8000")
    k(f"s_lshl_b32 s84, s{S_RB1}, 2\ns_add_u32 s84, s84, s{S_WAVE}\ns_lshl_b32 s84, s84, {FS+4}\ns_lshl_b32 s85, s{S_HP}, {FS}\ns_add_u32 s84, s84, s85\ns_add_u32 s84, s84, {F_O}")
    k("s_waitcnt lgkmcnt(0)")
    NB_ = 126
    for g, (hh, t) in enumerate(groups):
        for sg in range(2):
            for j in range(3):
                k(f"{MF} {vr(NB_+(g*2+sg)*12+4*j,4)}, {ar(((hh*2+sg)*3+j)*4,4)}, {vr(EK+(g*2+sg)*4,4)}, 0")
    k("s_nop 7")
    for g, (hh, t) in enumerate(groups):
        n1, n2 = NB_ + g * 24, NB_ + g * 24 + 12
        D1, S1, D2, S2 = n1 + 8, n1 + 9, n2 + 8, n2 + 9
        k(f"v_mul_f32 v{n1+10}, v{S1}, v{S2}")
        k(f"v_mul_f32 v{n1+10}, 0x358637bd, v{n1+10}")
        k(f"v_fmac_f32 v{n1+10}, v{D1}, v{S2}\nv_fmac_f32 v{n1+10}, v{D2}, v{S1}")
        k(f"v_rcp_f32 v{n1+10}, v{n1+10}")
        k("s_nop 0")
        k(f"v_mul_f32 v{D1}, v{S2}, v{n1+10}\nv_mul_f32 v{D2}, v{S1}, v{n1+10}")
        for j in range(4): k(f"v_pk_mul_f32 {vr(n1+2*j,2)}, {vr(n1+2*j,2)}, {vr(D1,2)} op_sel_hi:[1,0]")
        for j in range(4): k(f"v_pk_fma_f32 {vr(n1+2*j,2)}, {vr(n2+2*j,2)}, {vr(D2,2)}, {vr(n1+2*j,2)} op_sel_hi:[1,0,1]")
        for j in range(4): k(f"v_cvt_pk_bf16_f32 v{n2+j}, v{n1+2*j}, v{n1+2*j+1}")
        k(f"buffer_store_dwordx4 {vr(n2,4)}, v{L16}, {sr(SRD_T,4)}, s{82+t} offen offset:{hh*1024} sc1")
    k.stamp("o stored")
    mko = len(k.L)
    g2.V_X = 178
    srd(k, SRD_A, P_X, S * D * 2)
    V_XA = 100
    k(f"v_lshrrev_b32 v{VT+1}, 4, v{LANE}")
    k(f"v_and_b32 v{VT+2}, 15, v{LANE}\nv_lshlrev_b32 v{VT+2}, 11, v{VT+2}\nv_lshl_add_u32 v{V_XA}, v{VT+1}, 3, v{VT+2}")
    k(f"s_lshl_b32 s82, s{S_RB2}, 3\ns_lshl_b32 s83, s{S_WAVE}, 1\ns_add_u32 s82, s82, s83\ns_lshl_b32 s82, s82, 15\ns_lshl_b32 s83, s{S_NT}, 7\ns_add_u32 s82, s82, s83\ns_add_u32 s83, s82, 32768")
    for t in range(2):
        for b in range(4):
            k(f"buffer_load_dwordx2 {vr(g2.V_X+(t*4+b)*2,2)}, v{V_XA}, {sr(SRD_A,4)}, s{82+t} offen offset:{b*32}")
    k.g3 = setup_gemm3_early(k, opt, LANE, 20)
    publish(k, 84, VT + 1, mko)
    k.stamp("o published")
    mark1 = len(k.L)
    CU, AU, TT = 0, 16, 24
    for i in range(8): k(f"v_mov_b32 v{CU+2*i}, v{MC+i}")
    silu_block(k, [CU + 2 * i for i in range(8)])
    for i in range(8):
        for d in range(4):
            k(f"v_lshlrev_b32 v{TT}, 16, v{MW+4*i+d}\nv_and_b32 v{TT+1}, 0xffff0000, v{MW+4*i+d}")
            if i == 0: k(f"v_pk_mul_f32 {vr(AU+2*d,2)}, {vr(TT,2)}, {vr(CU,2)} op_sel_hi:[1,0]")
            else: k(f"v_pk_fma_f32 {vr(AU+2*d,2)}, {vr(TT,2)}, {vr(CU+2*i,2)}, {vr(AU+2*d,2)} op_sel_hi:[1,0,1]")
    k("s_nop 1")
    for j in range(4): k(f"v_permlane32_swap_b32 v{AU+j}, v{AU+j+4}")
    k("s_nop 1")
    for j in range(4): k(f"v_add_f32 v{AU+j}, v{AU+j}, v{AU+j+4}")
    k("s_nop 1")
    for j in range(2): k(f"v_permlane16_swap_b32 v{AU+j}, v{AU+j+2}")
    k("s_nop 1")
    for j in range(2): k(f"v_add_f32 v{AU+j}, v{AU+j}, v{AU+j+2}")
    k("s_nop 1")
    for j in range(2): k(f"v_add_f32_dpp v{AU+j}, v{AU+j}, v{AU+j} row_ror:8 row_mask:0xf bank_mask:0xf")
    sprinkle(k, mark1, g3_early_units(k.g3, opt.get("g3_e2", 0), 254), skip=0)
    k(f"v_and_b32 v{TT}, 7, v{LANE}\nv_lshlrev_b32 v{TT}, 5, v{TT}\nv_lshrrev_b32 v{TT+1}, 5, v{LANE}\nv_lshl_add_u32 v{TT}, v{TT+1}, 4, v{TT}")
    k(f"v_bfe_u32 v{TT+1}, v{LANE}, 4, 1\nv_lshl_add_u32 v{TT}, v{TT+1}, 3, v{TT}")
    srd(k, SRD_D, P_WS, MP_BYTES, WS_MODP)
    k(f"v_or_b32 v{AU}, 1, v{AU}\nv_or_b32 v{AU+1}, 1, v{AU+1}")
    k(f"buffer_store_dwordx2 {vr(AU,2)}, v{TT}, {sr(SRD_D,4)}, s{S_MO} offen sc1")
    return g2

A_UT = 176
def silu_block(k, regs):
    for v in regs: k(f"v_lshlrev_b32 v{v}, 16, v{v}\nv_mul_f32 v{v+1}, {-LOG2E!r}, v{v}")
    for v in regs: k(f"v_exp_f32 v{v+1}, v{v+1}")
    k("s_nop 0")
    for v in regs: k(f"v_add_f32 v{v+1}, 1.0, v{v+1}")
    for v in regs: k(f"v_rcp_f32 v{v+1}, v{v+1}")
    k("s_nop 0")
    for v in regs:
        k(f"v_mul_f32 v{v}, v{v}, v{v+1}"); round_bf16(k, v)

def modb_loads(s_off, v_w, v_c):
    out = []
    for i in range(8):
        out.append([f"buffer_load_dwordx4 {ar(A_UT+4*i,4)}, v{v_w}, {sr(SRD_D,4)}, s{s_off} offen", f"s_add_u32 s{s_off}, s{s_off}, {8*12288}"])
    return out

def red32(k, x, t):
    red8(k, x)
    k(f"s_nop 1\nv_add_f32_dpp v{x}, v{x}, v{x} row_mirror row_mask:0xf bank_mask:0xf")
    k(f"v_mov_b32 v{t}, v{x}\ns_nop 1\nv_permlane16_swap_b32 v{x}, v{t}\ns_nop 1\nv_add_f32 v{x}, v{x}, v{t}")

def ids(k):
    k("v_lshrrev_b32 v1, 6, v0")
    k(f"s_and_b32 s{S_XCD}, s2, 7\ns_lshr_b32 s{S_IDX}, s2, 3")
    k(f"v_readfirstlane_b32 s{S_WAVE}, v1")
    k(f"s_bfe_u32 s{S_RB1}, s{S_XCD}, 0x10001\ns_lshl_b32 s{S_RB1}, s{S_RB1}, 3\ns_lshr_b32 s80, s{S_IDX}, 2\ns_add_u32 s{S_RB1}, s{S_RB1}, s80")
    k(f"s_lshr_b32 s{S_HP}, s{S_XCD}, 2\ns_lshl_b32 s{S_HP}, s{S_HP}, 2\ns_and_b32 s80, s{S_IDX}, 3\ns_add_u32 s{S_HP}, s{S_HP}, s80\ns_lshl_b32 s{S_HP}, s{S_HP}, 1\ns_and_b32 s80, s{S_XCD}, 1\ns_add_u32 s{S_HP}, s{S_HP}, s80")

def build_k0(instr=False, opt=None, name="mod_kernel", mega="mega_kernel"):
    opt = opt or {}
    k = Kernel(name, 256, 256, 4096, vgpr=128, sgpr=102)
    k.instr = instr; k.s_wave = S_WAVE
    stamp(k, 0)
    end = k.label("end")
    k(f"s_cmp_ge_u32 s2, 256\ns_cbranch_scc1 {end}")
    k("s_load_dwordx4 s[12:15], s[0:1], 64")
    k("s_load_dwordx8 s[4:11], s[0:1], 0")
    k("s_load_dwordx2 s[28:29], s[0:1], 96")
    ids(k)
    LANE, T, V_W = 104, 48, 105
    WA, CA, XR, XF, A0, SU = 64, 80, 84, 0, 32, 100
    k(f"v_and_b32 v{LANE}, 63, v0")
    k(f"v_lshrrev_b32 v{T+1}, 3, v{LANE}\nv_and_b32 v{T+2}, 7, v{LANE}")
    k(f"v_mul_u32_u24 v{V_W}, 12288, v{T+1}\nv_lshl_add_u32 v{V_W}, v{T+2}, 4, v{V_W}")
    k(f"s_lshl_b32 s64, s{S_RB1}, 6\ns_lshl_b32 s65, s{S_WAVE}, 4\ns_add_u32 s64, s64, s65")
    k(f"v_add_u32 v{T+3}, s64, v{T+1}\nv_lshlrev_b32 v{T+3}, 1, v{T+3}")
    k(f"s_mul_i32 s67, s64, 12288\ns_lshl_b32 s66, s{S_HP}, 7\ns_add_u32 s67, s67, s66\ns_add_u32 s68, s67, {8*12288}")
    k(f"v_lshrrev_b32 v{T+4}, 5, v{LANE}\nv_lshlrev_b32 v{T+4}, 11, v{T+4}\nv_and_b32 v{T+5}, 31, v{LANE}\nv_lshl_add_u32 v{T+4}, v{T+5}, 4, v{T+4}")
    k(f"s_lshl_b32 s69, s{S_RB1}, 4\ns_add_u32 s69, s69, s{S_HP}")
    k(f"s_lshl_b32 s70, s69, 14\ns_lshl_b32 s71, s{S_WAVE}, 12\ns_add_u32 s70, s70, s71")
    k("s_waitcnt lgkmcnt(0)")
    srd(k, SRD_D, 14, D * 6 * D * 2)
    srd(k, SRD_A, P_X, S * D * 2)
    for i in range(2): k(f"global_load_ushort v{CA+2*i}, v{T+3}, s[12:13] offset:{i*16}")
    for i in range(2):
        for v in range(2): k(f"buffer_load_dwordx4 {vr(WA+(i*2+v)*4,4)}, v{V_W}, {sr(SRD_D,4)}, s{67+i} offen offset:{v*2048}")
    for i in range(4): k(f"buffer_load_dwordx4 {vr(XR+4*i,4)}, v{T+4}, {sr(SRD_A,4)}, s70 offen offset:{i*512}")
    stamp(k, 1)
    lab = k.label("pc")
    k(f"s_getpc_b64 s[60:61]\n{lab}:")
    k(f"s_add_u32 s60, s60, {mega}-{lab}\ns_addc_u32 s61, s61, 0")
    k(f"v_lshlrev_b32 v{T+6}, 4, v{LANE}")
    for x in code_prefetch_txt(mega, T + 6, T + 7, 62, s_pc=60, junk="v110"): k(x)
    srd(k, SRD_B, P_WS, MP_BYTES, WS_MODP)
    srd(k, SRD_F, P_WS, FLAG_BYTES, WS_FLAG)
    srd(k, SRD_C, P_WS, S * 128, WS_STAT)
    k(f"v_mov_b32 v{T+8}, 0\nv_lshlrev_b32 v{T+9}, 2, v0\ns_lshl_b32 s62, s2, 10\ns_add_u32 s63, s62, {MP_B}")
    k(f"v_lshlrev_b32 v{T+10}, {FS}, v0\ns_lshl_b32 s66, s2, {FS+8}")
    k(f"buffer_store_dword v{T+8}, v{T+10}, {sr(SRD_F,4)}, s66 offen")
    k(f"buffer_store_dword v{T+8}, v{T+9}, {sr(SRD_C,4)}, s62 offen")
    k(f"buffer_store_dword v{T+8}, v{T+9}, {sr(SRD_B,4)}, s63 offen")
    young = 4
    k(f"s_lshl_b32 s62, s2, 2\ns_add_u32 s62, s62, s{S_WAVE}")
    for ptr, per, tag in ((P_WQKV, 6, "t_wq"), (P_WO, 2, "t_wo"), (14, 12, "t_wm")):
        if not opt.get(tag, 1): continue
        k(f"s_mul_i32 s63, s62, {per*1024}\ns_add_u32 s63, s63, 384")
        k(f"v_min_u32 v{T+14}, {per-1}, v{LANE}\nv_lshlrev_b32 v{T+14}, 10, v{T+14}\nv_add_u32 v{T+14}, s63, v{T+14}")
        k(f"global_load_dword v110, v{T+14}, s[{ptr}:{ptr+1}]")
        young += 1
    k(f"s_waitcnt vmcnt({young + 8})")
    silu_block(k, [CA, CA + 2])
    k(f"s_waitcnt vmcnt({young + 4})")
    for i in range(2):
        for v in range(2):
            for d in range(4):
                w_ = WA + (i * 2 + v) * 4 + d
                k(f"v_lshlrev_b32 v{T+10}, 16, v{w_}\nv_and_b32 v{T+11}, 0xffff0000, v{w_}")
                if i == 0: k(f"v_pk_mul_f32 {vr(A0+v*8+2*d,2)}, {vr(T+10,2)}, {vr(CA,2)} op_sel_hi:[1,0]")
                else: k(f"v_pk_fma_f32 {vr(A0+v*8+2*d,2)}, {vr(T+10,2)}, {vr(CA+2,2)}, {vr(A0+v*8+2*d,2)} op_sel_hi:[1,0,1]")
    k("s_nop 1")
    for j in range(8): k(f"v_permlane32_swap_b32 v{A0+j}, v{A0+8+j}")
    k("s_nop 1")
    for j in range(8): k(f"v_add_f32 v{A0+j}, v{A0+j}, v{A0+8+j}")
    k("s_nop 1")
    for j in range(4): k(f"v_permlane16_swap_b32 v{A0+j}, v{A0+4+j}")
    k("s_nop 1")
    for j in range(4): k(f"v_add_f32 v{A0+j}, v{A0+j}, v{A0+4+j}")
    k("s_nop 1")
    for j in range(4): k(f"v_add_f32_dpp v{A0+j}, v{A0+j}, v{A0+j} row_ror:8 row_mask:0xf bank_mask:0xf")
    k(f"v_lshrrev_b32 v{T+12}, 5, v{LANE}\nv_lshlrev_b32 v{T+13}, 8, v{T+12}\nv_lshl_add_u32 v{T+13}, v{T+2}, 5, v{T+13}")
    k(f"v_bfe_u32 v{T+10}, v{LANE}, 4, 1\nv_lshl_add_u32 v{T+13}, v{T+10}, 4, v{T+13}\ns_lshl_b32 s62, s{S_WAVE}, 9\nv_add_u32 v{T+13}, s62, v{T+13}")
    k(f"ds_write_b128 v{T+13}, {vr(A0,4)}")
    k("s_waitcnt lgkmcnt(0)\ns_barrier")
    nw0 = k.label("notw0")
    k(f"s_cmp_lg_u32 s{S_WAVE}, 0\ns_cbranch_scc1 {nw0}")
    k(f"v_lshlrev_b32 v{T+13}, 3, v{LANE}")
    for w in range(4): k(f"ds_read_b64 {vr(A0+2*w,2)}, v{T+13} offset:{w*512}")
    k(f"s_lshl_b32 s62, s{S_HP}, 13\ns_lshl_b32 s63, s{S_RB1}, 9\ns_add_u32 s63, s63, s62")
    k("s_waitcnt lgkmcnt(0)")
    k(f"v_pk_add_f32 {vr(A0,2)}, {vr(A0,2)}, {vr(A0+2,2)}\nv_pk_add_f32 {vr(A0+4,2)}, {vr(A0+4,2)}, {vr(A0+6,2)}\nv_pk_add_f32 {vr(A0,2)}, {vr(A0,2)}, {vr(A0+4,2)}")
    k(f"buffer_store_dwordx2 {vr(A0,2)}, v{T+13}, {sr(SRD_B,4)}, s63 offen")
    k(f"{nw0}:")
    stamp(k, 2)
    k(f"s_waitcnt vmcnt({young})")
    for d in range(16): k(f"v_lshlrev_b32 v{XF+2*d}, 16, v{XR+d}\nv_and_b32 v{XF+2*d+1}, 0xffff0000, v{XR+d}")
    k(f"v_pk_add_f32 {vr(SU,2)}, {vr(XF,2)}, {vr(XF+2,2)}")
    for d in range(2, 16): k(f"v_pk_add_f32 {vr(SU,2)}, {vr(SU,2)}, {vr(XF+2*d,2)}")
    k(f"v_add_f32 v{SU}, v{SU}, v{SU+1}")
    red32(k, SU, SU + 1)
    k(f"v_mul_f32 v{SU+2}, {-1.0/1024!r}, v{SU}")
    k(f"v_mov_b32 v{SU}, 0\nv_mov_b32 v{SU+1}, 0")
    for d in range(16):
        k(f"v_pk_add_f32 {vr(XF+2*d,2)}, {vr(XF+2*d,2)}, {vr(SU+2,2)} op_sel_hi:[1,0]")
        k(f"v_pk_fma_f32 {vr(SU,2)}, {vr(XF+2*d,2)}, {vr(XF+2*d,2)}, {vr(SU,2)}")
    k(f"v_add_f32 v{SU}, v{SU}, v{SU+1}")
    red32(k, SU, SU + 1)
    k(f"v_mov_b32 v{SU+1}, 0x3727c5ac\nv_fmac_f32 v{SU+1}, {1.0/1024!r}, v{SU}\nv_rsq_f32 v{SU+3}, v{SU+1}")
    k(f"s_lshl_b32 s62, s69, 6\ns_lshl_b32 s63, s{S_WAVE}, 4\ns_add_u32 s62, s62, s63\ns_add_u32 s62, s62, {MP_RS}\nv_lshlrev_b32 v{T+12}, 3, v{T+12}")
    k(f"buffer_store_dwordx2 {vr(SU+2,2)}, v{T+12}, {sr(SRD_B,4)}, s62 offen")
    stamp(k, 3)
    if instr: k("s_waitcnt vmcnt(0)")
    stamp(k, 4)
    stamp_flush(k, 28, 5, 4, slot=1)
    k(f"{end}:\ns_endpgm")
    return k

def phase_front_fused(k, opt, name):
    LANE, L16 = 104, 105
    T = 48
    V_W, V_C = 115, 109
    WA, CA, XR, XT_, XF, A0, SU, G, M, RS = 64, 80, 128, 144, 0, 200, 216, 160, 32, 84
    HL = 2 * 25344
    k(f"v_lshrrev_b32 v{T+1}, 3, v{LANE}\nv_and_b32 v{T+2}, 7, v{LANE}")
    k(f"v_mul_u32_u24 v{V_W}, 12288, v{T+1}\nv_lshl_add_u32 v{V_W}, v{T+2}, 4, v{V_W}")
    k(f"s_lshl_b32 s84, s{S_RB1}, 6")
    k(f"v_add_u32 v{V_C}, s84, v{T+1}\nv_lshlrev_b32 v{V_C}, 1, v{V_C}")
    k(f"s_lshl_b32 s85, s{S_WAVE}, 5\nv_add_u32 v{T+3}, s85, v{V_C}")
    k(f"s_mul_i32 s86, s84, 12288\ns_lshl_b32 s87, s{S_HP}, 7\ns_add_u32 s86, s86, s87")
    k(f"s_mul_i32 s87, s{S_WAVE}, {16*12288}\ns_add_u32 s87, s87, s86\ns_add_u32 s88, s87, {8*12288}")
    k(f"v_lshrrev_b32 v{T+4}, 5, v{LANE}\nv_lshlrev_b32 v{T+4}, 11, v{T+4}\nv_and_b32 v{T+5}, 31, v{LANE}\nv_lshl_add_u32 v{T+4}, v{T+5}, 4, v{T+4}")
    k(f"s_lshl_b32 s89, s{S_RB1}, 4\ns_add_u32 s89, s89, s{S_HP}")
    k(f"s_lshl_b32 s90, s89, 14\ns_lshl_b32 s91, s{S_WAVE}, 12\ns_add_u32 s90, s90, s91")
    k(f"v_mov_b32 v{T+8}, 0\nv_mov_b32 v{T+9}, 0\nv_mov_b32 v{T+10}, 0\nv_mov_b32 v{T+11}, 0\nv_mov_b32 v{T+12}, 1")
    k(f"v_lshlrev_b32 v{T+7}, {FS}, v{LANE}")
    k(f"s_lshl_b32 s93, s2, {FS+6}\ns_add_u32 s93, s93, {F_S0}\ns_cmp_lt_u32 s2, 4\ns_cselect_b32 s93, s93, 0x7ff00000\ns_cmp_eq_u32 s{S_WAVE}, 3\ns_cselect_b32 s93, s93, 0x7ff00000")
    k("s_waitcnt lgkmcnt(0)")
    srd(k, SRD_F, P_WS, FLAG_BYTES, WS_FLAG)
    k(f"buffer_store_dword v{T+8}, v{T+7}, {sr(SRD_F,4)}, s93 offen sc1")
    k(f"s_mov_b32 s{SRD_T}, s{P_DBG}\ns_mov_b32 s{SRD_T+1}, s{P_DBG+1}\ns_mov_b32 s{SRD_T+2}, 256\ns_mov_b32 s{SRD_T+3}, 0x20000")
    k("s_mov_b32 s95, s93")
    srd(k, SRD_D, P_WMOD, D * 6 * D * 2)
    srd(k, SRD_A, P_X, S * D * 2)
    for i in range(2): k(f"global_load_ushort v{CA+2*i}, v{T+3}, s[{P_C}:{P_C+1}] offset:{i*16}")
    for i in range(2):
        for v in range(2): k(f"buffer_load_dwordx4 {vr(WA+(i*2+v)*4,4)}, v{V_W}, {sr(SRD_D,4)}, s{87+i} offen offset:{v*2048}")
    for i in range(4): k(f"buffer_load_dwordx4 {vr(XR+4*i,4)}, v{T+4}, {sr(SRD_A,4)}, s90 offen offset:{i*512}")
    k.stamp("loads issued")
    srd(k, SRD_B, P_WS, MP_BYTES, WS_MODP)
    srd(k, SRD_C, P_WS, S * 128, WS_STAT)
    w3, jn = k.label("w3"), k.label("join")
    k(f"s_cmp_eq_u32 s{S_WAVE}, 3\ns_cbranch_scc1 {w3}")
    k(f"s_lshl_b32 s92, s2, 1\ns_add_u32 s92, s92, s{S_WAVE}\ns_sub_u32 s92, s92, 1")
    nt_ = k.label("notouch")
    k("s_mov_b32 s93, 0x7ff00000")
    for i in range(2): k(f"buffer_load_dword a233, v{V_W}, {sr(SRD_D,4)}, s93 offen")
    k(f"s_cmp_eq_u32 s{S_WAVE}, 0\ns_cbranch_scc1 {nt_}")
    for ptr, per in ((P_WQKV, 12), (P_WO, 4), (P_WMOD, 24)):
        k(f"s_mul_i32 s93, s92, {per}\nv_min_u32 v{T+14}, {per-1}, v{LANE}\nv_add_u32 v{T+14}, s93, v{T+14}")
        k(f"v_lshlrev_b32 v{T+14}, 10, v{T+14}")
        k(f"global_load_dword a232, v{T+14}, s[{ptr}:{ptr+1}] offset:384")
    k(f"s_branch {jn}")
    k(f"{nt_}:")
    for i in range(3): k(f"buffer_load_dword a233, v{V_W}, {sr(SRD_D,4)}, s93 offen")
    k(f"s_branch {jn}")
    k(f"{w3}:")
    nb = k.label("nboot")
    k(f"s_cmp_eq_u32 s95, 0x7ff00000\ns_cbranch_scc1 {nb}")
    k("s_lshl_b32 s93, s2, 2\ns_waitcnt vmcnt(10)")
    k(f"buffer_store_dword v{T+12}, v{T+8}, {sr(SRD_T,4)}, s93 offen sc1")
    k(f"{nb}:")
    k(f"v_and_b32 v{T+14}, 3, v{LANE}\nv_lshlrev_b32 v{T+14}, 4, v{T+14}")
    k(f"s_lshl_b32 s93, s{S_RB1}, 6\ns_add_u32 s93, s93, s{S_HP}\nv_add_u32 v{T+15}, s93, v{T+14}")
    k(f"s_lshl_b32 s93, s{S_HP}, 6\ns_add_u32 s93, s93, s{S_RB1}\ns_add_u32 s93, s93, 1024\nv_add_u32 v{T+14}, s93, v{T+14}")
    k(f"v_cmp_gt_u32 vcc, 4, v{LANE}\ns_mul_i32 s93, s2, 20\ns_add_u32 s93, s93, 2040")
    k(f"v_cndmask_b32 v{T+14}, v{T+14}, v{T+15}, vcc\nv_add_u32 v{T+15}, s93, v{LANE}")
    k(f"v_cmp_gt_u32 vcc, 8, v{LANE}\ns_nop 1\nv_cndmask_b32 v{T+14}, v{T+15}, v{T+14}, vcc")
    k(f"v_cmp_gt_u32 vcc, 28, v{LANE}\nv_mov_b32 v{T+15}, 0x100000\ns_nop 0\nv_cndmask_b32 v{T+14}, v{T+15}, v{T+14}, vcc")
    k(f"v_lshlrev_b32 v{T+14}, {FS}, v{T+14}")
    k(f"buffer_store_dword v{T+8}, v{T+14}, {sr(SRD_F,4)}, 0 offen sc1")
    k("s_mov_b32 s93, 0x7ff00000")
    for i in range(2): k(f"buffer_load_dword a233, v{V_W}, {sr(SRD_D,4)}, s93 offen")
    k("s_lshl_b32 s93, s2, 10")
    k(f"buffer_store_dwordx4 {vr(T+8,4)}, v{L16}, {sr(SRD_C,4)}, s93 offen sc1")
    k(f"s_add_u32 s93, s93, {MP_B}")
    k(f"buffer_store_dwordx4 {vr(T+8,4)}, v{L16}, {sr(SRD_B,4)}, s93 offen sc1")
    k(f"{jn}:")
    k(f"v_lshlrev_b32 v{T+5}, 11, v{T+1}\nv_lshl_add_u32 v{T+5}, v{T+2}, 4, v{T+5}")
    k(f"s_lshl_b32 s91, s{S_RB1}, 18\ns_lshl_b32 s92, s{S_WAVE}, 16\ns_add_u32 s91, s91, s92\ns_lshl_b32 s92, s{S_HP}, 7\ns_add_u32 s91, s91, s92")
    for i in range(4):
        k(f"buffer_load_dwordx4 {vr(XT_+4*i,4)}, v{T+5}, {sr(SRD_A,4)}, s91 offen")
        if i < 3: k("s_add_u32 s91, s91, 16384")
    k(f"s_lshl_b32 s94, s{S_WAVE}, 11\ns_add_u32 s{S_MB}, s86, s94\ns_add_u32 s{S_MB}, s{S_MB}, 4096")
    k(f"s_lshl_b32 s94, s{S_WAVE}, 16\ns_lshl_b32 s95, s{S_HP}, 12\ns_add_u32 s94, s94, s95\ns_lshl_b32 s95, s{S_RB1}, 8\ns_add_u32 s94, s94, s95\ns_add_u32 s{S_MO}, s94, {MP_B}")
    young = 9
    k.stamp("all issued")
    k(f"s_waitcnt vmcnt({young + 8})")
    k.stamp("c ready")
    silu_block(k, [CA, CA + 2])
    k(f"s_waitcnt vmcnt({young + 4})")
    k.stamp("w ready")
    for i in range(2):
        for v in range(2):
            for d in range(4):
                w_ = WA + (i * 2 + v) * 4 + d
                k(f"v_lshlrev_b32 v{T+14}, 16, v{w_}\nv_and_b32 v{T+15}, 0xffff0000, v{w_}")
                if i == 0: k(f"v_pk_mul_f32 {vr(A0+v*8+2*d,2)}, {vr(T+14,2)}, {vr(CA,2)} op_sel_hi:[1,0]")
                else: k(f"v_pk_fma_f32 {vr(A0+v*8+2*d,2)}, {vr(T+14,2)}, {vr(CA+2,2)}, {vr(A0+v*8+2*d,2)} op_sel_hi:[1,0,1]")
    k("s_nop 1")
    for j in range(8): k(f"v_permlane32_swap_b32 v{A0+j}, v{A0+8+j}")
    k("s_nop 1")
    for j in range(8): k(f"v_add_f32 v{A0+j}, v{A0+j}, v{A0+8+j}")
    k("s_nop 1")
    for j in range(4): k(f"v_permlane16_swap_b32 v{A0+j}, v{A0+4+j}")
    k("s_nop 1")
    for j in range(4): k(f"v_add_f32 v{A0+j}, v{A0+j}, v{A0+4+j}")
    k("s_nop 1")
    for j in range(4): k(f"v_add_f32_dpp v{A0+j}, v{A0+j}, v{A0+j} row_ror:8 row_mask:0xf bank_mask:0xf")
    k(f"v_lshrrev_b32 v{T+13}, 5, v{LANE}\nv_lshlrev_b32 v{T+14}, 8, v{T+13}\nv_lshl_add_u32 v{T+14}, v{T+2}, 5, v{T+14}")
    k(f"v_bfe_u32 v{T+15}, v{LANE}, 4, 1\nv_lshl_add_u32 v{T+14}, v{T+15}, 4, v{T+14}\ns_lshl_b32 s94, s{S_WAVE}, 9\nv_add_u32 v{T+14}, s94, v{T+14}")
    k(f"ds_write_b128 v{T+14}, {vr(A0,4)} offset:{HL}")
    k(f"s_waitcnt vmcnt({young})")
    for d in range(16): k(f"v_lshlrev_b32 v{XF+2*d}, 16, v{XR+d}\nv_and_b32 v{XF+2*d+1}, 0xffff0000, v{XR+d}")
    k(f"v_pk_add_f32 {vr(SU,2)}, {vr(XF,2)}, {vr(XF+2,2)}")
    for d in range(2, 16): k(f"v_pk_add_f32 {vr(SU,2)}, {vr(SU,2)}, {vr(XF+2*d,2)}")
    k(f"v_add_f32 v{SU}, v{SU}, v{SU+1}")
    red32(k, SU, SU + 1)
    k(f"v_mul_f32 v{SU+2}, {-1.0/1024!r}, v{SU}")
    k(f"v_mov_b32 v{SU}, 0\nv_mov_b32 v{SU+1}, 0")
    for d in range(16):
        k(f"v_pk_add_f32 {vr(XF+2*d,2)}, {vr(XF+2*d,2)}, {vr(SU+2,2)} op_sel_hi:[1,0]")
        k(f"v_pk_fma_f32 {vr(SU,2)}, {vr(XF+2*d,2)}, {vr(XF+2*d,2)}, {vr(SU,2)}")
    k(f"v_add_f32 v{SU}, v{SU}, v{SU+1}")
    red32(k, SU, SU + 1)
    k(f"v_mov_b32 v{SU+1}, 0x3727c5ac\nv_fmac_f32 v{SU+1}, {1.0/1024!r}, v{SU}\nv_rsq_f32 v{SU+3}, v{SU+1}")
    k(f"s_lshl_b32 s94, s{S_WAVE}, 4\nv_lshlrev_b32 v{T+13}, 3, v{T+13}\nv_add_u32 v{T+13}, s94, v{T+13}")
    k(f"ds_write_b64 v{T+13}, {vr(SU+2,2)} offset:{HL+2048}")
    n3 = k.label("not3")
    k(f"s_cmp_lg_u32 s{S_WAVE}, 3\ns_cbranch_scc1 {n3}")
    k(f"v_and_b32 v{T+14}, 3, v{LANE}\nv_lshlrev_b32 v{T+14}, 2, v{T+14}")
    spin(k, [f"buffer_load_dword v{T+13}, v{T+14}, {sr(SRD_T,4)}, 0 offen sc1"], [T + 13], 0)
    k(f"{n3}:")
    k("s_waitcnt lgkmcnt(0)\ns_barrier")
    k.stamp("partials")
    nw0 = k.label("notw0")
    k(f"v_lshlrev_b32 v{T+6}, 3, v{LANE}")
    k(f"s_cmp_lg_u32 s{S_WAVE}, 0\ns_cbranch_scc1 {nw0}")
    for w in range(4): k(f"ds_read_b64 {vr(A0+2*w,2)}, v{T+6} offset:{HL+w*512}")
    k(f"v_and_b32 v{T+9}, 0x38, v{T+6}")
    k(f"ds_read_b64 {vr(A0+8,2)}, v{T+9} offset:{HL+2048}")
    k(f"s_lshl_b32 s94, s{S_HP}, 13\ns_lshl_b32 s95, s{S_RB1}, 9\ns_add_u32 s95, s95, s94")
    k(f"s_lshl_b32 s90, s89, 6\ns_add_u32 s90, s90, {MP_RS}")
    k("s_waitcnt lgkmcnt(0)")
    k(f"v_pk_add_f32 {vr(A0,2)}, {vr(A0,2)}, {vr(A0+2,2)}\nv_pk_add_f32 {vr(A0+4,2)}, {vr(A0+4,2)}, {vr(A0+6,2)}\nv_pk_add_f32 {vr(A0,2)}, {vr(A0,2)}, {vr(A0+4,2)}")
    k(f"buffer_store_dwordx2 {vr(A0,2)}, v{T+6}, {sr(SRD_B,4)}, s95 offen sc1")
    k(f"buffer_store_dwordx2 {vr(A0+8,2)}, v{T+9}, {sr(SRD_B,4)}, s90 offen sc1")
    k(f"s_lshl_b32 s90, s89, {FS}\ns_add_u32 s90, s90, {F_S0}")
    k("s_waitcnt vmcnt(0)")
    k(f"buffer_store_dword v{T+12}, v{T+8}, {sr(SRD_F,4)}, s90 offen sc1")
    if opt.get("modb_front", 0):
        sk_ = k.label("skmf")
        k(f"s_branch {sk_}")
        k(f"{nw0}:")
        k("s_waitcnt vmcnt(0)")
        for g in modb_loads(S_MB, V_W, V_C):
            for x in g: k(x)
        k(f"s_mov_b32 s{S_MB}, 0x7ff00000")
        k(f"{sk_}:")
    else:
        k(f"{nw0}:")
    k.stamp("s0 published")
    split = opt.get("split", 1)
    g1 = (setup_gemm1s if split else setup_gemm1)(k, opt)
    srd(k, SRD_W, P_WQKV, D * 3 * D * 2)
    if not opt.get("modb_front", 0):
        k("s_waitcnt vmcnt(1)")
        k(f"s_cmp_eq_u32 s{S_WAVE}, 0\ns_cbranch_scc1 1\ns_waitcnt vmcnt(0)")
    for d in range(16): k(f"v_lshlrev_b32 v{XF+2*d}, 16, v{XT_+d}\nv_and_b32 v{XF+2*d+1}, 0xffff0000, v{XT_+d}")
    VS = T + 4
    k(f"v_lshrrev_b32 v{VS}, 2, v{T+2}\nv_lshlrev_b32 v{VS}, 10, v{VS}")
    k(f"v_and_b32 v{T+3}, 3, v{T+2}\nv_lshl_add_u32 v{VS}, v{T+3}, 8, v{VS}\nv_lshl_add_u32 v{VS}, v{T+1}, 4, v{VS}")
    k(f"s_lshl_b32 s86, s{S_RB1}, 3\ns_lshl_b32 s87, s{S_WAVE}, 1\ns_add_u32 s86, s86, s87\ns_lshl_b32 s86, s86, 15\ns_lshl_b32 s87, s{S_HP}, 11\ns_add_u32 s86, s86, s87\ns_add_u32 s87, s86, 0x8000")
    k(f"s_lshl_b32 s88, s{S_RB1}, 2\ns_add_u32 s88, s88, s{S_WAVE}\ns_lshl_b32 s88, s88, {FS+4}\ns_add_u32 s88, s88, {F_H}\ns_lshl_b32 s89, s{S_HP}, {FS}\ns_add_u32 s89, s89, s88")
    k(f"v_lshlrev_b32 v{T+5}, 5, v{T+2}")
    k(f"s_lshl_b32 s92, s{S_WAVE}, 8\nv_lshlrev_b32 v{T+7}, 3, v{T+1}\nv_add_u32 v{T+7}, s92, v{T+7}")
    nw1 = k.label("notw0b")
    k(f"s_cmp_lg_u32 s{S_WAVE}, 0\ns_cbranch_scc1 {nw1}")
    k(f"v_and_b32 v{T+9}, 15, v{LANE}\ns_lshl_b32 s92, s{S_RB1}, 4\nv_add_u32 v{T+10}, s92, v{T+9}\nv_lshlrev_b32 v{T+9}, 4, v{T+9}\nv_add_u32 v{T+9}, s{S_HP}, v{T+9}")
    k(f"v_and_b32 v{T+11}, 16, v{LANE}\nv_cmp_eq_u32 vcc, 0, v{T+11}\ns_mov_b32 s92, {F_S0}\ns_nop 0")
    k(f"v_cndmask_b32 v{T+9}, v{T+9}, v{T+10}, vcc\nv_lshlrev_b32 v{T+9}, {FS}, v{T+9}")
    spin(k, [f"buffer_load_dword v{T+13}, v{T+9}, {sr(SRD_F,4)}, s92 offen sc1"], [T + 13], 0)
    k(f"s_lshl_b32 s94, s{S_HP}, 13\ns_add_u32 s95, s94, 4096")
    for p_ in range(16): k(f"buffer_load_dwordx2 {vr(G+2*p_,2)}, v{T+6}, {sr(SRD_B,4)}, s{94+p_//8} offen offset:{(p_%8)*512} sc1")
    k(f"s_lshl_b32 s90, s{S_RB1}, 10\ns_add_u32 s90, s90, {MP_RS}")
    k(f"buffer_load_dwordx4 {vr(A0+8,4)}, v{L16}, {sr(SRD_B,4)}, s90 offen sc1")
    k(f"v_cmp_lt_u32 vcc, 31, v{LANE}")
    k("s_waitcnt vmcnt(1)")
    for st in (8, 4, 2, 1):
        for j in range(st): k(f"v_pk_add_f32 {vr(G+2*j,2)}, {vr(G+2*j,2)}, {vr(G+2*(j+st),2)}")
    k(f"v_cvt_pk_bf16_f32 v{G+2}, v{G}, v{G+1}\nv_lshlrev_b32 v{G}, 16, v{G+2}\nv_and_b32 v{G+1}, 0xffff0000, v{G+2}")
    k(f"v_pk_add_f32 {vr(G+4,2)}, {vr(G,2)}, 1.0 op_sel_hi:[1,0]")
    k(f"v_cvt_pk_bf16_f32 v{G+2}, v{G+4}, v{G+5}\nv_lshlrev_b32 v{G+4}, 16, v{G+2}\nv_and_b32 v{G+5}, 0xffff0000, v{G+2}")
    k(f"v_cndmask_b32 v{G}, v{G}, v{G+4}, vcc\nv_cndmask_b32 v{G+1}, v{G+1}, v{G+5}, vcc")
    k(f"ds_write_b64 v{T+6}, {vr(G,2)} offset:{HL+4096}")
    k("s_waitcnt vmcnt(0)")
    k(f"ds_write_b128 v{L16}, {vr(A0+8,4)} offset:{HL+5120}")
    k("s_waitcnt lgkmcnt(0)")
    k(f"{nw1}:")
    g1.prefetch(k, opt.get("h_pre0", 0))
    srd(k, SRD_T, P_WS, S * D * 2, WS_H)
    k("s_barrier")
    k.stamp("s0 ready")
    for h in range(2): k(f"ds_read_b128 {vr(M+4*h,4)}, v{T+5} offset:{HL+4096+h*16}\nds_read_b128 {vr(M+8+4*h,4)}, v{T+5} offset:{HL+4096+256+h*16}")
    for i in range(4): k(f"ds_read_b64 {vr(RS+2*i,2)}, v{T+7} offset:{HL+5120+i*64}")
    k("s_waitcnt lgkmcnt(0)")
    for i in range(4):
        for j in range(4): k(f"v_pk_add_f32 {vr(XF+8*i+2*j,2)}, {vr(XF+8*i+2*j,2)}, {vr(RS+2*i,2)} op_sel_hi:[1,0]")
        for j in range(4): k(f"v_pk_mul_f32 {vr(XF+8*i+2*j,2)}, {vr(XF+8*i+2*j,2)}, {vr(RS+2*i,2)} op_sel:[0,1] op_sel_hi:[1,1]")
        for j in range(4): k(f"v_pk_fma_f32 {vr(XF+8*i+2*j,2)}, {vr(XF+8*i+2*j,2)}, {vr(M+8+2*j,2)}, {vr(M+2*j,2)}")
        for j in range(4): k(f"v_cvt_pk_bf16_f32 v{XR+4*i+j}, v{XF+8*i+2*j}, v{XF+8*i+2*j+1}")
        k(f"buffer_store_dwordx4 {vr(XR+4*i,4)}, v{VS}, {sr(SRD_T,4)}, s{86 + i//2} offen offset:{(i%2)*128} sc1")
    k.stamp("h computed")
    mk = len(k.L)
    g1.prefetch(k, opt.get("h_pre1a", 4 if split else 6))
    publish(k, 89, T, mk)
    k.stamp("h published")
    g1.prefetch(k, opt.get("h_pre1", 8 if split else 6))
    if not split:
        k.g3 = setup_gemm3_early(k, opt, LANE, 56)
        for i in range(8): k(f"global_load_ushort {ar(A_UT+32+i,1)}, v{V_C}, s[{P_C}:{P_C+1}] offset:{i*16}")
    k(f"v_and_b32 v252, 15, v{LANE}\nv_lshlrev_b32 v252, {FS}, v252\ns_mov_b32 s93, s88")
    staged_wait(k, g1, opt.get("g1_T", 5 if split else 4), 252, 93, 253, one_prod)
    k.stamp("h ready")
    return g1

def phase_front(k, opt, name):
    LANE, L16 = 104, 105
    T = 48
    V_W, V_C = 115, 109
    RS, XR, XT_, XF, G, M = 64, 128, 144, 0, 160, 32
    HL = 2 * 25344
    k(f"v_and_b32 v{LANE}, 63, v0")
    k(f"v_lshrrev_b32 v{T+1}, 3, v{LANE}\nv_and_b32 v{T+2}, 7, v{LANE}")
    k(f"v_lshlrev_b32 v{T+5}, 11, v{T+1}\nv_lshl_add_u32 v{T+5}, v{T+2}, 4, v{T+5}")
    k(f"s_lshl_b32 s91, s{S_RB1}, 18\ns_lshl_b32 s92, s{S_WAVE}, 16\ns_add_u32 s91, s91, s92\ns_lshl_b32 s92, s{S_HP}, 7\ns_add_u32 s91, s91, s92")
    k(f"v_lshlrev_b32 v{T+8}, 3, v{LANE}\nv_lshlrev_b32 v{T+6}, 3, v{T+1}")
    k(f"s_lshl_b32 s94, s{S_HP}, 13\ns_add_u32 s95, s94, 4096")
    k(f"s_lshl_b32 s90, s{S_RB1}, 10\ns_lshl_b32 s93, s{S_WAVE}, 8\ns_add_u32 s90, s90, s93\ns_add_u32 s90, s90, {MP_RS}")
    k("s_waitcnt lgkmcnt(0)")
    srd(k, SRD_B, P_WS, MP_BYTES, WS_MODP)
    srd(k, SRD_A, P_X, S * D * 2)
    for p_ in range(16): k(f"buffer_load_dwordx2 {vr(G+2*p_,2)}, v{T+8}, {sr(SRD_B,4)}, s{94+p_//8} offen offset:{(p_%8)*512}")
    for i in range(4): k(f"buffer_load_dwordx2 {vr(RS+2*i,2)}, v{T+6}, {sr(SRD_B,4)}, s90 offen offset:{i*64}")
    for i in range(4):
        k(f"buffer_load_dwordx4 {vr(XT_+4*i,4)}, v{T+5}, {sr(SRD_A,4)}, s91 offen")
        if i < 3: k("s_add_u32 s91, s91, 16384")
    k.stamp("loads issued")
    def touch(ptr, per, vt, off=0):
        k(f"s_lshl_b32 s80, s2, 2\ns_add_u32 s80, s80, s{S_WAVE}\ns_mul_i32 s80, s80, {per*128}")
        if off: k(f"s_add_u32 s80, s80, {off}")
        k(f"v_min_u32 v{vt}, {per-1}, v{LANE}\nv_lshlrev_b32 v{vt}, 7, v{vt}\nv_add_u32 v{vt}, s80, v{vt}")
        k(f"global_load_dword a232, v{vt}, s[{ptr}:{ptr+1}]")
    nt0 = 0
    if opt.get("m_touch", 0) == 1: touch(P_WQKV, 48, 254); nt0 = 1
    g1 = setup_gemm1(k, opt)
    srd(k, SRD_W, P_WQKV, D * 3 * D * 2)
    n0 = opt.get("h_pre0", 6)
    g1.prefetch(k, n0)
    n0 += nt0
    srd(k, SRD_F, P_WS, FLAG_BYTES, WS_FLAG)
    srd(k, SRD_T, P_WS, S * D * 2, WS_H)
    VS = T + 4
    k(f"v_lshrrev_b32 v{VS}, 2, v{T+2}\nv_lshlrev_b32 v{VS}, 10, v{VS}")
    k(f"v_and_b32 v{T+3}, 3, v{T+2}\nv_lshl_add_u32 v{VS}, v{T+3}, 8, v{VS}\nv_lshl_add_u32 v{VS}, v{T+1}, 4, v{VS}")
    k(f"s_lshl_b32 s86, s{S_RB1}, 3\ns_lshl_b32 s87, s{S_WAVE}, 1\ns_add_u32 s86, s86, s87\ns_lshl_b32 s86, s86, 15\ns_lshl_b32 s87, s{S_HP}, 11\ns_add_u32 s86, s86, s87\ns_add_u32 s87, s86, 0x8000")
    k(f"s_lshl_b32 s88, s{S_WAVE}, 9\nv_add_u32 v{T+8}, s88, v{T+8}\nv_lshlrev_b32 v{T+5}, 5, v{T+2}\nv_add_u32 v{T+5}, s88, v{T+5}")
    k(f"s_lshl_b32 s88, s{S_RB1}, 2\ns_add_u32 s88, s88, s{S_WAVE}\ns_lshl_b32 s88, s88, {FS+4}\ns_add_u32 s88, s88, {F_H}\ns_lshl_b32 s89, s{S_HP}, {FS}\ns_add_u32 s89, s89, s88")
    k(f"v_cmp_lt_u32 vcc, 31, v{LANE}")
    k(f"s_waitcnt vmcnt({8 + n0})")
    for st in (8, 4, 2, 1):
        for j in range(st): k(f"v_pk_add_f32 {vr(G+2*j,2)}, {vr(G+2*j,2)}, {vr(G+2*(j+st),2)}")
    k(f"v_cvt_pk_bf16_f32 v{G+2}, v{G}, v{G+1}\nv_lshlrev_b32 v{G}, 16, v{G+2}\nv_and_b32 v{G+1}, 0xffff0000, v{G+2}")
    k(f"v_pk_add_f32 {vr(G+4,2)}, {vr(G,2)}, 1.0 op_sel_hi:[1,0]")
    k(f"v_cvt_pk_bf16_f32 v{G+2}, v{G+4}, v{G+5}\nv_lshlrev_b32 v{G+4}, 16, v{G+2}\nv_and_b32 v{G+5}, 0xffff0000, v{G+2}")
    k(f"v_cndmask_b32 v{G}, v{G}, v{G+4}, vcc\nv_cndmask_b32 v{G+1}, v{G+1}, v{G+5}, vcc")
    k(f"ds_write_b64 v{T+8}, {vr(G,2)} offset:{HL}")
    k("s_waitcnt lgkmcnt(0)")
    for h in range(2): k(f"ds_read_b128 {vr(M+4*h,4)}, v{T+5} offset:{HL+h*16}\nds_read_b128 {vr(M+8+4*h,4)}, v{T+5} offset:{HL+256+h*16}")
    for i in range(4):
        k(f"s_waitcnt vmcnt({3 - i + n0})")
        for d in range(4): k(f"v_lshlrev_b32 v{XF+8*i+2*d}, 16, v{XT_+4*i+d}\nv_and_b32 v{XF+8*i+2*d+1}, 0xffff0000, v{XT_+4*i+d}")
        for j in range(4): k(f"v_pk_add_f32 {vr(XF+8*i+2*j,2)}, {vr(XF+8*i+2*j,2)}, {vr(RS+2*i,2)} op_sel_hi:[1,0]")
        for j in range(4): k(f"v_pk_mul_f32 {vr(XF+8*i+2*j,2)}, {vr(XF+8*i+2*j,2)}, {vr(RS+2*i,2)} op_sel:[0,1] op_sel_hi:[1,1]")
    k("s_waitcnt lgkmcnt(0)")
    for i in range(4):
        for j in range(4): k(f"v_pk_fma_f32 {vr(XF+8*i+2*j,2)}, {vr(XF+8*i+2*j,2)}, {vr(M+8+2*j,2)}, {vr(M+2*j,2)}")
        for j in range(4): k(f"v_cvt_pk_bf16_f32 v{XR+4*i+j}, v{XF+8*i+2*j}, v{XF+8*i+2*j+1}")
        k(f"buffer_store_dwordx4 {vr(XR+4*i,4)}, v{VS}, {sr(SRD_T,4)}, s{86 + i//2} offen offset:{(i%2)*128} sc1")
    k.stamp("h computed")
    code_prefetch_setup(k, name)
    srd(k, SRD_D, P_WMOD, D * 6 * D * 2)
    k(f"v_mul_u32_u24 v{V_W}, 12288, v{T+1}\nv_lshl_add_u32 v{V_W}, v{T+2}, 4, v{V_W}")
    k(f"s_lshl_b32 s84, s{S_RB1}, 6\nv_add_u32 v{V_C}, s84, v{T+1}\nv_lshlrev_b32 v{V_C}, 1, v{V_C}")
    k(f"s_mul_i32 s86, s84, 12288\ns_lshl_b32 s87, s{S_HP}, 7\ns_add_u32 s86, s86, s87")
    k(f"s_lshl_b32 s94, s{S_WAVE}, 11\ns_add_u32 s{S_MB}, s86, s94\ns_add_u32 s{S_MB}, s{S_MB}, 4096")
    k(f"s_lshl_b32 s94, s{S_WAVE}, 16\ns_lshl_b32 s95, s{S_HP}, 12\ns_add_u32 s94, s94, s95\ns_lshl_b32 s95, s{S_RB1}, 8\ns_add_u32 s94, s94, s95\ns_add_u32 s{S_MO}, s94, {MP_B}")
    k.g3 = setup_gemm3_early(k, opt, LANE, 56)
    publish(k, 89, T)
    k.stamp("h published")
    if opt.get("m_touch", 0) == 2: touch(P_WQKV, 48, 254)
    k("s_barrier")
    g1.prefetch(k, opt.get("h_pre1", 12))
    for i in range(8): k(f"global_load_ushort {ar(A_UT+32+i,1)}, v{V_C}, s[{P_C}:{P_C+1}] offset:{i*16}")
    k(f"v_and_b32 v252, 15, v{LANE}\nv_lshlrev_b32 v252, {FS}, v252\ns_mov_b32 s93, s88")
    staged_wait(k, g1, opt.get("g1_T", 4), 252, 93, 253, one_prod)
    k.stamp("h ready")
    return g1

def setup_gemm24(k, which, opt, base):
    c = Sched(); common_gemm(c)
    K = 1024 if which == 2 else 3584
    NS, R = 4, opt.get(f"g{which}_R", 4)
    STAGE = 8448
    if isinstance(base, tuple): V_RD, V_DMA, V_TOK, LANE, L16, VT = base
    else:
        V_RD, V_DMA, V_TOK, LANE, L16, VT = base, base + 1, base + 2, base + 4, base + 5, base + 6
        lane_id(k, LANE)
        k(f"v_lshlrev_b32 v{L16}, 4, v{LANE}")
    c.LANE, c.L16 = LANE, L16
    order(c, k, opt, "g2", ["win", [1, 1, 2, 4, 8], 1])
    k(f"s_lshr_b32 s80, s{S_WAVE}, 1\ns_and_b32 s81, s{S_WAVE}, 1")
    k("s_lshl_b32 s82, s80, 5\ns_lshl_b32 s83, s81, 1\ns_add_u32 s82, s82, s83\ns_lshl_b32 s82, s82, 11")
    k(f"s_lshl_b32 s83, s{S_NT}, 7\ns_add_u32 s82, s82, s83")
    k(f"v_lshrrev_b32 v{VT}, 3, v{LANE}\nv_lshlrev_b32 v{VT}, 13, v{VT}")
    k(f"v_and_b32 v{VT+1}, 7, v{LANE}\nv_lshl_add_u32 v{VT}, v{VT+1}, 4, v{VT}")
    k(f"v_add_u32 v{V_DMA}, s82, v{VT}")
    k(f"v_bfe_u32 v{VT}, v{LANE}, 2, 2\nv_mul_u32_u24 v{VT}, 1056, v{VT}")
    k(f"v_lshrrev_b32 v{VT+1}, 4, v{LANE}\nv_lshl_add_u32 v{VT}, v{VT+1}, 7, v{VT}")
    k(f"v_and_b32 v{VT+1}, 3, v{LANE}\nv_lshl_add_u32 v{V_RD}, v{VT+1}, 3, v{VT}")
    k(f"v_add_u32 v{V_RD}, {L_R2}, v{V_RD}")
    k(f"s_lshl_b32 s82, s{S_RB2}, 3\ns_lshl_b32 s83, s{S_WAVE}, 1\ns_add_u32 s82, s82, s83\ns_mul_i32 s82, s82, {K//32*1024}")
    k(f"v_add_u32 v{V_TOK}, s82, v{L16}\nv_add_u32 v{V_TOK+1}, {K//32*1024}, v{V_TOK}")
    k(f"s_mul_i32 s{S_WB}, s80, 4224\ns_mul_i32 s82, s81, 2112\ns_add_u32 s{S_WB}, s{S_WB}, s82\ns_add_u32 s{S_WB}, s{S_WB}, {L_R2}")
    srd(k, SRD_W, P_WO if which == 2 else P_W2, K * D * 2)
    c.NB, c.TB, c.KS, c.SPK, c.KT, c.NS, c.R = 4, 2, 2, 1, K // 64, NS, R
    c.acc = lambda b, t: vr((b * 2 + t) * 4, 4)
    c.tf = lambda slot, ks, t: 64 + ((slot * 2 + ks) * 2 + t) * 4
    c.rd = lambda sl, b, sub, r: (V_RD, sl * STAGE + sub * 4224 + r * 512 + b * 32)
    c.slot_addr = lambda sl: sl * STAGE
    c.dma = [(V_DMA, 0, 0), (V_DMA, 1056, 2048)]
    c.v_tok = [V_TOK, V_TOK + 1]
    c.w_stride = 64 * 2048
    c.drop = opt.get(f"g{which}_drop", ())
    c.pro_units, c.ramp_rate, c.read_margin = opt.get(f"g{which}_pro", 12), opt.get(f"g{which}_ramp", 6), 4
    std_sched(c)
    return c

S_G80, S_G192 = 6, 7
def setup_gemm4p(k, opt, base):
    c = Sched(); common_gemm(c)
    HS = 8448; STAGE = 2 * HS
    L = 12; KT = 28; MAIN = KT - L
    V_RD, V_DE, V_DK, V_TOK, LANE, L16, VT = base, base + 2, base + 3, base + 4, base + 6, base + 7, base + 8
    c.LANE, c.L16, c.V_DE, c.V_DK, c.V_TOK = LANE, L16, V_DE, V_DK, V_TOK
    lane_id(k, LANE)
    k(f"v_lshlrev_b32 v{L16}, 4, v{LANE}")
    c.KT = KT
    order(c, k, opt, "g4", ["win", [4, 4, 8, 8, 4], 0])
    k(f"s_lshr_b32 s80, s{S_WAVE}, 1\ns_and_b32 s81, s{S_WAVE}, 1")
    k(f"s_mul_i32 s{S_G80}, s80, {80*2048}\ns_mul_i32 s{S_G192}, s80, {192*2048}")
    k("s_lshl_b32 s82, s80, 5\ns_lshl_b32 s83, s81, 1\ns_add_u32 s82, s82, s83")
    k(f"s_and_b32 s{S_TMP}, s{S_NT}, 1\ns_mul_i32 s83, s{S_TMP}, 1792\ns_add_u32 s82, s82, s83\ns_lshl_b32 s82, s82, 11")
    k(f"v_lshrrev_b32 v{VT}, 3, v{LANE}\nv_lshlrev_b32 v{VT}, 13, v{VT}")
    k(f"v_and_b32 v{VT+1}, 7, v{LANE}\nv_lshl_add_u32 v{VT}, v{VT+1}, 4, v{VT}")
    k(f"v_add_u32 v{VT}, s82, v{VT}")
    k(f"s_lshl_b32 s83, s{S_NT}, 7\nv_add_u32 v{V_DK}, s83, v{VT}\nv_xor_b32 v{V_DE}, 128, v{V_DK}")
    k(f"v_bfe_u32 v{VT}, v{LANE}, 2, 2\nv_mul_u32_u24 v{VT}, 1056, v{VT}")
    k(f"v_lshrrev_b32 v{VT+1}, 4, v{LANE}\nv_lshl_add_u32 v{VT}, v{VT+1}, 7, v{VT}")
    k(f"v_and_b32 v{VT+1}, 3, v{LANE}\nv_lshl_add_u32 v{V_RD+1}, v{VT+1}, 3, v{VT}")
    k(f"v_add_u32 v{V_RD}, {L_R2}, v{V_RD+1}")
    k(f"s_lshl_b32 s82, s{S_RB2}, 3\ns_lshl_b32 s83, s{S_WAVE}, 1\ns_add_u32 s82, s82, s83\ns_mul_i32 s82, s82, {112*1024}")
    k(f"s_mul_i32 s83, s{S_TMP}, {56*1024}\ns_add_u32 s82, s82, s83")
    k(f"v_add_u32 v{V_TOK}, s82, v{L16}\nv_add_u32 v{V_TOK+1}, {112*1024}, v{V_TOK}")
    k(f"s_mul_i32 s{S_WB}, s80, 4224\ns_mul_i32 s82, s81, 2112\ns_add_u32 s{S_WB}, s{S_WB}, s82")
    srd(k, SRD_W, P_W2, F * D * 2)
    c.drop = opt.get("g4_drop", ())
    V2E, V2K, V2T = 200, 201, 202
    c.V2 = (V2E, V2K, V2T)
    slot_addr = [L_R2, L_R2 + STAGE, 1024, 1024 + STAGE]
    def rd(sl, half, b, sub, r):
        off = half * HS + sub * 4224 + r * 512 + b * 32
        return (V_RD, (sl % 2) * STAGE + off) if sl < 2 else (V_RD + 1, slot_addr[sl] + off)
    NT_ = 2 * L
    tf = lambda kt, sub, t: 64 + (((kt * 2 + sub) % NT_) * 2 + t) * 4
    acc = lambda b, t: vr((b * 2 + t) * 4, 4)
    c.wf = lambda buf, j: (buf * 8 + j) * 4
    typ = lambda kt: "A" if kt < 16 else ("B1" if kt < 24 else "B2")
    def w_off(sd, kt):
        o = [T(x) for x in c.pos_txt(sd, kt)]
        if typ(kt) == "A": o.append(T(f"s_mul_i32 s{sd}, s{sd}, {112*2048}"))
        elif typ(kt) == "B1": o += [T(f"s_mul_i32 s{sd}, s{sd}, {224*2048}"), T(f"s_add_u32 s{sd}, s{sd}, {(64 - 16*224)*2048}"), T(f"s_add_u32 s{sd}, s{sd}, s{S_G80}")]
        else: o += [T(f"s_mul_i32 s{sd}, s{sd}, {448*2048}"), T(f"s_add_u32 s{sd}, s{sd}, {(96 - 24*448)*2048}"), T(f"s_add_u32 s{sd}, s{sd}, s{S_G192}")]
        return o
    halves = [[("E", kt), ("K", kt)] for kt in range(MAIN)]
    halves += [[("E", MAIN + 2 * j), ("E", MAIN + 2 * j + 1)] for j in range(L // 2)]
    halves += [[("K", MAIN + 2 * j), ("K", MAIN + 2 * j + 1)] for j in range(L // 2)]
    cur = None; flip = 0
    for st, hv in enumerate(halves):
        us = []
        for h, (kind, kt) in enumerate(hv):
            pre = []
            if cur != kt:
                flip ^= 1; cur = kt; pre = w_off(c.s_kw + flip, kt)
            vo = (V2E if kind == 'E' else V2K) if typ(kt) == "B2" else (V_DE if kind == 'E' else V_DK)
            for i, goff in enumerate((0, 2048)):
                us.append((pre if i == 0 else []) + [T(f"s_add_u32 m0, s{S_WB}, {slot_addr[st % 4] + h * HS + i * 1056 - goff}"),
                          VM(f"buffer_load_dwordx4 v{vo}, {sr(SRD_W,4)}, s{c.s_kw + flip} offen" + (f" offset:{goff}" if goff else "") + " lds", ("dma", st))])
        c.stage_units[st] = us; c.stage_slot[st] = st % 4
        for j in range(2):
            frags = []; toks = []
            parts = [(0, j), (1, j)] if st < MAIN else [(j, 0), (j, 1)]
            for h, sub in parts:
                kind, kt = hv[h]
                if (kt, sub) not in toks: toks.append((kt, sub))
                for b in range(4):
                    va, o0 = rd(st % 4, h, b, sub, 0); _, o1 = rd(st % 4, h, b, sub, 1)
                    frags.append((va, o0, o1, [(acc(b + (0 if kind == 'E' else 4), t), tf(kt, sub, t)) for t in range(2)]))
            c.steps.append(dict(frags=frags, stages=[st], toks=toks))
    for kt in range(KT):
        sd = c.s_kt + kt % 2
        for sub in range(2):
            us = []
            for t in range(2):
                g = []
                if sub == 0 and t == 0:
                    g = [T(x) for x in c.pos_txt(sd, kt)]
                    if typ(kt) == "A": g.append(T(f"s_mul_i32 s{sd}, s{sd}, 3584"))
                    elif typ(kt) == "B1": g += [T(f"s_mul_i32 s{sd}, s{sd}, 7168"), T(f"s_add_u32 s{sd}, s{sd}, {2048 - 16*7168}")]
                    else: g += [T(f"s_mul_i32 s{sd}, s{sd}, 14336"), T(f"s_add_u32 s{sd}, s{sd}, {3072 - 24*14336}")]
                key = ("tok", (kt, sub))
                if typ(kt) == "B2":
                    if sub == 1 and t == 0: g.append(T(f"s_add_u32 s{sd}, s{sd}, 7168"))
                    g.append(VM(f"buffer_load_dwordx2 {ar(tf(kt, sub, t),2)}, v{V2T+t}, {sr(SRD_T,4)}, s{sd} offen sc1", key))
                    g.append(VM(f"buffer_load_dwordx2 {ar(tf(kt, sub, t)+2,2)}, v{V2T+t}, {sr(SRD_T,4)}, s{sd} offen offset:3584 sc1", key))
                else:
                    g.append(VM(f"buffer_load_dwordx4 {ar(tf(kt, sub, t),4)}, v{V_TOK+t}, {sr(SRD_T,4)}, s{sd} offen offset:{sub*(1024 if typ(kt) == 'A' else 3584)} sc1", key))
                us.append(g)
            c.tok_units[(kt, sub)] = us; c.tok_slot[(kt, sub)] = (kt * 2 + sub) % NT_
    c.pro_units, c.ramp_rate, c.read_margin, c.lookahead = opt.get("g4_pro", 12), opt.get("g4_ramp", 6), 4, opt.get("g4_la", 7)
    c.MAIN, c.L = MAIN, L
    return c

def phase_gemm4p(k, c, opt):
    LANE, L16 = c.LANE, c.L16
    VT = 72
    srd(k, SRD_T, P_WS, S * F * 2, WS_HH)
    srd(k, SRD_A, P_OUT, S * D * 2)
    srd(k, SRD_B, P_WS, 8 << 20, WS_P4)
    V_G, V_GA, V_XA, V_X, IMP, VF = 96, 76, 77, 80, 128, 78
    for j in range(16): k(f"v_accvgpr_read_b32 v{V_X+j}, a{A_X1+j}")
    k(f"v_and_b32 v{VT}, 15, v{LANE}\nv_lshlrev_b32 v{VT}, {FS}, v{VT}")
    k(f"s_lshl_b32 s84, s{S_RB2}, 1\ns_lshr_b32 s85, s{S_WAVE}, 1\ns_add_u32 s84, s84, s85\ns_lshl_b32 s84, s84, {FS+5}\ns_add_u32 s84, s84, {F_HH}")
    k(f"s_and_b32 s85, s{S_NT}, 1\ns_lshl_b32 s85, s85, {FS+4}\ns_add_u32 s84, s84, s85")
    k(f"v_mov_b32 v252, v{VT}")
    c.tile_of = lambda key: key[0]
    k(f"s_add_u32 s85, s84, {F_HB - F_HH}")
    staged_wait(k, c, opt.get("g4_T", 6), 252, 84, 253, one_prod, pub=(94, 204))
    add_gate(k, c, 16, f"buffer_load_dword v253, v252, {sr(SRD_F,4)}, s85 offen sc1", 253)
    k.stamp("hh ready")
    p = Txt()
    p(f"v_lshrrev_b32 v{VT}, 4, v{LANE}\nv_lshlrev_b32 v{V_GA}, 4, v{VT}\nv_add_u32 v{V_GA}, {L_MV}, v{V_GA}")
    p(f"v_and_b32 v{VT+1}, 15, v{LANE}\nv_lshlrev_b32 v{VT+1}, 11, v{VT+1}")
    p(f"v_and_b32 v{VT+2}, 1, v{VT}\nv_lshl_add_u32 v{VT+1}, v{VT+2}, 5, v{VT+1}")
    p(f"v_lshrrev_b32 v{VT+2}, 1, v{VT}\nv_lshl_add_u32 v{V_XA}, v{VT+2}, 4, v{VT+1}")
    p(f"s_lshl_b32 s86, s{S_RB2}, 3\ns_lshl_b32 s87, s{S_WAVE}, 1\ns_add_u32 s86, s86, s87\ns_lshl_b32 s86, s86, 15\ns_lshl_b32 s87, s{S_NT}, 7\ns_add_u32 s86, s86, s87\ns_add_u32 s87, s86, 32768")
    p(f"s_lshl_b32 s88, s{S_RB2}, 4\ns_add_u32 s88, s88, s{S_NT}\ns_lshl_b32 s88, s88, 2\ns_add_u32 s88, s88, s{S_WAVE}")
    p("s_xor_b32 s89, s88, 4")
    p(f"s_lshl_b32 s90, s88, 13\ns_add_u32 s91, s90, 4096\ns_lshl_b32 s92, s89, 13\ns_add_u32 s93, s92, 4096")
    p(f"s_lshl_b32 s88, s88, {FS}\ns_add_u32 s88, s88, {F_P4}\ns_lshl_b32 s89, s89, {FS}\ns_add_u32 s89, s89, {F_P4}")
    V2E, V2K, V2T = c.V2
    p(f"v_lshrrev_b32 v{VT}, 5, v{LANE}\nv_mul_u32_u24 v{VT}, {96*2048}, v{VT}\nv_add_u32 v{V2E}, v{c.V_DE}, v{VT}\nv_add_u32 v{V2K}, v{c.V_DK}, v{VT}")
    p(f"v_lshrrev_b32 v{VT}, 1, v{L16}\nv_sub_u32 v{V2T}, v{c.V_TOK}, v{VT}\nv_sub_u32 v{V2T+1}, v{c.V_TOK+1}, v{VT}")
    p(f"v_mov_b32 v{VT}, 1\nv_mov_b32 v{VT+1}, 0")
    c.pre_loop_txt = p.L
    N = len(c.steps); p2 = N - c.L
    c.late[p2 + 1] = [VM(f"buffer_store_dwordx4 {vr(4*j,4)}, v{L16}, {sr(SRD_B,4)}, s{90 + j//4} offen offset:{(j%4)*1024} sc1", ("exp", 0)) for j in range(8)]
    c.late[p2 + opt.get("g4_fs", 6)] = [WVM([("exp", 0)]), f"buffer_store_dword v{VT}, v{VT+1}, {sr(SRD_F,4)}, s88 offen sc1"]
    c.late[N - 3] = [VM(f"buffer_load_dword v{VF}, v{VT+1}, {sr(SRD_F,4)}, s89 offen sc1", ("pf", 0))]
    c.last_reads = [f"ds_read_b128 {vr(V_G+4*b,4)}, v{V_GA} offset:{768+b*64}" for b in range(4)]
    m = Txt(); m.label = k.label
    okl = k.label("pok")
    m(f"v_cmp_eq_u32 vcc, 0, v{VF}\ns_cmp_eq_u64 vcc, 0\ns_cbranch_scc1 {okl}")
    spin(m, [f"buffer_load_dword v{VF}, v{VT+1}, {sr(SRD_F,4)}, s89 offen sc1"], [VF], 0)
    m(f"{okl}:")
    c.late[N - 1] = [WVM([("pf", 0)]), T("\n".join(m.L))] + [f"buffer_load_dwordx4 {vr(IMP+4*j,4)}, v{L16}, {sr(SRD_B,4)}, s{92 + j//4} offen offset:{(j%4)*1024} sc1" for j in range(8)]
    c.run(k)
    k.stamp("g4 loop done")
    A = lambda b, t: 32 + (b * 2 + t) * 4
    XT = 112
    XF = 160
    for j in range(16): k(f"v_lshlrev_b32 v{XF+2*j}, 16, v{V_X+j}\nv_and_b32 v{XF+2*j+1}, 0xffff0000, v{V_X+j}")
    k("s_waitcnt vmcnt(0) lgkmcnt(0)")
    for t in range(2):
        for b in range(4):
            for h in range(2): k(f"v_pk_add_f32 {vr(A(b,t)+2*h,2)}, {vr(A(b,t)+2*h,2)}, {vr(IMP+(b*2+t)*4+2*h,2)}")
            for h in range(2): k(f"v_pk_fma_f32 {vr(A(b,t)+2*h,2)}, {vr(A(b,t)+2*h,2)}, {vr(V_G+4*b+2*h,2)}, {vr(XF+(t*4+b)*4+2*h,2)}")
        PK = XT + t * 8
        for b in range(4): k(f"v_cvt_pk_bf16_f32 v{PK+2*b}, v{A(b,t)}, v{A(b,t)+1}\nv_cvt_pk_bf16_f32 v{PK+2*b+1}, v{A(b,t)+2}, v{A(b,t)+3}")
        k("s_nop 1")
        for s_ in range(2): k(f"v_permlane16_swap_b32 v{PK+4*s_}, v{PK+4*s_+2}\nv_permlane16_swap_b32 v{PK+4*s_+1}, v{PK+4*s_+3}")
        for s_ in range(2): k(f"buffer_store_dwordx4 {vr(PK+4*s_,4)}, v{V_XA}, {sr(SRD_A,4)}, s{86+t} offen offset:{s_*64}")

def phase_gemm1(k, c, opt):
    LANE, L16, VT = c.LANE, c.L16, c.VT
    PHK, VV, SH, UTX = 0, 34816, 114688, 126976
    A_PH = 160
    p = Txt()
    srd(p, SRD_A, P_WPHI, H * 2048)
    srd(p, SRD_B, P_WS, 2 << 20, WS_KVP)
    srd(p, SRD_C, P_WS, 128 << 10, WS_ZP)
    A_PW, A_VW, A_PR, A_VR, A_WR = 110, 111, 112, 113, 114
    p(f"s_lshr_b32 s80, s{S_WAVE}, 1\ns_and_b32 s81, s{S_WAVE}, 1")
    p(f"v_and_b32 v{VT}, 15, v{LANE}\ns_lshl_b32 s82, s{S_WAVE}, 5\nv_add_u32 v{VT}, s82, v{VT}")
    p(f"v_lshrrev_b32 v{VT+1}, 4, v{LANE}\nv_lshlrev_b32 v{VT+1}, 3, v{VT+1}")
    p(f"v_mul_u32_u24 v{A_PW}, 136, v{VT}\nv_add_u32 v{A_PW}, v{A_PW}, v{VT+1}")
    p(f"v_mul_u32_u24 v{A_VW}, 72, v{VT}\nv_add_u32 v{A_VW}, v{A_VW}, v{VT+1}")
    p(f"v_lshrrev_b32 v{VT}, 2, v{LANE}\nv_and_b32 v{VT+1}, 3, v{LANE}\nv_lshlrev_b32 v{VT+1}, 3, v{VT+1}")
    p(f"s_mul_i32 s82, s80, 17408\ns_lshl_b32 s83, s81, 6\ns_add_u32 s82, s82, s83")
    p(f"v_mul_u32_u24 v{A_PR}, 136, v{VT}\nv_add_u32 v{A_PR}, v{A_PR}, v{VT+1}\nv_add_u32 v{A_PR}, s82, v{A_PR}")
    p(f"s_mul_i32 s82, s80, 9216")
    p(f"v_mul_u32_u24 v{A_VR}, 72, v{VT}\nv_add_u32 v{A_VR}, v{A_VR}, v{VT+1}\nv_add_u32 v{A_VR}, s82, v{A_VR}")
    p(f"v_lshl_add_u32 v{A_WR}, v{VT}, 6, v{VT+1}\nv_add_u32 v{A_WR}, {L_WPH}, v{A_WR}")
    ONES, SEL = 116, 120
    for j in range(4): p(f"v_mov_b32 v{ONES+j}, 0x3f803f80")
    p(f"v_bfe_u32 v{VT}, v{LANE}, 2, 2\nv_lshrrev_b32 v{VT+1}, 4, v{LANE}")
    p(f"v_cmp_eq_u32 vcc, v{VT}, v{VT+1}")
    p(f"v_and_b32 v{VT}, 1, v{LANE}\nv_lshlrev_b32 v{VT}, 4, v{VT}\nv_mov_b32 v{VT+1}, 0x3f80\nv_lshlrev_b32 v{VT+1}, v{VT}, v{VT+1}")
    p(f"v_cndmask_b32 v{VT+1}, 0, v{VT+1}, vcc")
    p(f"v_and_b32 v{VT}, 2, v{LANE}\nv_cmp_eq_u32 vcc, 0, v{VT}")
    for j in (0, 1, 4, 5): p(f"v_mov_b32 v{SEL+j}, 0")
    p(f"v_cndmask_b32 v{SEL+2}, 0, v{VT+1}, vcc\nv_cndmask_b32 v{SEL+3}, v{VT+1}, 0, vcc")
    p(f"s_mov_b32 s94, {LOG2E!r}\ns_mov_b32 s95, {LOG2E!r}")
    p(f"s_lshl_b32 s84, s{S_HP}, 12\ns_lshl_b32 s85, s{S_WAVE}, 10\ns_add_u32 s84, s84, s85\ns_add_u32 s85, s85, {L_WPH}")
    c.pre_loop_txt = p.L
    c.late = {4: ["s_mov_b32 m0, s85", f"buffer_load_dwordx4 v{L16}, {sr(SRD_A,4)}, s84 offen lds"]}
    if opt.get("cpf", 1): c.late[22] = code_prefetch_txt(k.name, L16, 254, 80)
    ml = modb_loads(S_MB, 115, 109)
    ms = opt.get("modb_steps", [16] * 8)
    if opt.get("modb_front", 0):
        lb = k.label("skw0")
        c.late.setdefault(ms[0], []).append(T("\n".join([f"s_cmp_lg_u32 s{S_WAVE}, 0", f"s_cbranch_scc1 {lb}"] + [x for g in ml for x in g] + [f"{lb}:"])))
        ml = []
    else:
        for st_, g in zip(ms, ml): c.late.setdefault(st_, []).extend(g)
        ml = ml[len(ms):]
    c.last_reads = [f"ds_read_b64_tr_b16 {ar(A_PH+(hh*2+fb)*4+2*r,2)}, v{A_WR} offset:{hh*2048+r*1024+fb*32}" for hh in range(2) for fb in range(2) for r in range(2)]
    c.run(k)
    k.stamp("g1 loop done")
    A = lambda b, t: (b * 2 + t) * 4
    BF, P1, P2, MX, MN, EK = 126, 142, 174, 206, 214, 222
    groups = [(hh, t) for hh in range(2) for t in range(2)]
    def fm_part1(seg):
        for g, (hh, t) in enumerate(groups):
            for db in range(2):
                a = A(seg * 4 + hh * 2 + db, t)
                k(f"v_cvt_pk_bf16_f32 v{BF+g*4+db*2}, v{a}, v{a+1}\nv_cvt_pk_bf16_f32 v{BF+g*4+db*2+1}, v{a+2}, v{a+3}")
        k("s_nop 1")
        for g, (hh, t) in enumerate(groups):
            for fb in range(2):
                k(f"{MF} {vr(P1+g*8+fb*4,4)}, {ar(A_PH+(hh*2+fb)*4,4)}, {vr(BF+g*4,4)}, 0")
    def fm_part2():
        for op3, op2, M in (("v_max3_f32", "v_max_f32", MX), ("v_min3_f32", "v_min_f32", MN)):
            for g in range(4):
                b = P1 + g * 8
                k(f"{op3} v{M+2*g}, v{b}, v{b+1}, v{b+2}\n{op3} v{M+2*g}, v{M+2*g}, v{b+3}, v{b+4}\n{op3} v{M+2*g}, v{M+2*g}, v{b+5}, v{b+6}\n{op2} v{M+2*g}, v{M+2*g}, v{b+7}")
            treduce4(k, op2, [M + 2 * g for g in range(4)])
        for g in range(4):
            k(f"v_mul_f32 v{MX+2*g}, {-LOG2E!r}, v{MX+2*g}\nv_mul_f32 v{MN+2*g}, {LOG2E!r}, v{MN+2*g}")
    def fm_part3(E):
        for g in range(4):
            for j in range(4):
                b = g * 8 + 2 * j
                k(f"v_pk_fma_f32 {vr(P2+b,2)}, {vr(P1+b,2)}, s[94:95], {vr(MN+2*g,2)} op_sel_hi:[1,1,0] neg_lo:[1,0,0] neg_hi:[1,0,0]")
                k(f"v_pk_fma_f32 {vr(P1+b,2)}, {vr(P1+b,2)}, s[94:95], {vr(MX+2*g,2)} op_sel_hi:[1,1,0]")
            for j in range(8): k(f"v_exp_f32 v{P1+g*8+j}, v{P1+g*8+j}")
            for j in range(8): k(f"v_exp_f32 v{P2+g*8+j}, v{P2+g*8+j}")
            k("s_nop 0")
            for sg, PP in enumerate((P1, P2)):
                for j in range(4): k(f"v_cvt_pk_bf16_f32 v{E+(g*2+sg)*4+j}, v{PP+g*8+2*j}, v{PP+g*8+2*j+1}")
    for g in ml:
        for x in g: k(x)
    k("s_waitcnt lgkmcnt(0)\ns_nop 7")
    fm_part1(1)
    k("s_barrier")
    mark0 = len(k.L)
    for g, (hh, t) in enumerate(groups):
        for db in range(2):
            a = A(8 + hh * 2 + db, t)
            k(f"v_cvt_pk_bf16_f32 v{a}, v{a}, v{a+1}\nv_cvt_pk_bf16_f32 v{a+1}, v{a+2}, v{a+3}")
            k(f"ds_write_b64 v{A_VW}, {vr(a,2)} offset:{VV + hh*9216 + t*16*72 + db*32}")
    fm_part2()
    fm_part3(EK)
    SM = 32
    k("s_nop 1")
    for i in range(8): k(f"{MF} {vr(SM+4*i,4)}, {vr(ONES,4)}, {vr(EK+4*i,4)}, 0")
    k("s_nop 7")
    for i in range(8): k(f"v_rcp_f32 v{SM+4*i}, v{SM+4*i}")
    for g, (hh, t) in enumerate(groups):
        for sg, PP in enumerate((P1, P2)):
            for j in range(4):
                k(f"v_pk_mul_f32 {vr(PP+g*8+2*j,2)}, {vr(PP+g*8+2*j,2)}, {vr(SM+(g*2+sg)*4,2)} op_sel_hi:[1,0]")
            for fb in range(2):
                b = PP + g * 8 + fb * 4
                k(f"v_cvt_pk_bf16_f32 v{b}, v{b}, v{b+1}\nv_cvt_pk_bf16_f32 v{b+1}, v{b+2}, v{b+3}")
                k(f"ds_write_b64 v{A_PW}, {vr(b,2)} offset:{PHK + hh*17408 + t*16*136 + sg*64 + fb*32}")
    sprinkle(k, mark0, g3_early_units(k.g3, opt.get("g3_e1", 14), 254))
    k("s_waitcnt lgkmcnt(0)\ns_barrier")
    for s_ in range(4):
        for r in range(2):
            for fb in range(2): k(f"ds_read_b64_tr_b16 {ar(s_*16+fb*4+2*r,2)}, v{A_PR} offset:{PHK + (32*s_+16*r)*136 + fb*32}")
            for db in range(2): k(f"ds_read_b64_tr_b16 {ar(s_*16+8+db*4+2*r,2)}, v{A_VR} offset:{VV + (32*s_+16*r)*72 + db*32}")
    fm_part1(0)
    KV, ZZ = 64, 80
    for s_ in range(4):
        k(f"s_waitcnt lgkmcnt({min(15, 24 - 8*s_)})")
        for fb in range(2):
            for db in range(2):
                d = vr(KV + (db * 2 + fb) * 4, 4)
                k(f"{MF} {d}, {ar(s_*16+fb*4,4)}, {ar(s_*16+8+db*4,4)}, {'0' if s_ == 0 else d}")
            d = vr(ZZ + fb * 4, 4)
            k(f"{MF} {d}, {ar(s_*16+fb*4,4)}, {vr(ONES,4)}, {'0' if s_ == 0 else d}")
    k(f"s_lshl_b32 s82, s{S_HP}, 2\ns_add_u32 s82, s82, s{S_WAVE}")
    k("s_lshl_b32 s83, s82, 15")
    k(f"s_lshl_b32 s84, s{S_RB1}, 10\ns_add_u32 s84, s84, s83\ns_add_u32 s85, s84, 16384")
    k("s_lshl_b32 s90, s82, 11")
    k(f"s_lshl_b32 s91, s82, {FS+4}\ns_add_u32 s91, s91, {F_KV}\ns_lshl_b32 s92, s{S_RB1}, {FS}\ns_add_u32 s92, s92, s91")
    k(f"v_and_b32 v{VT}, 15, v{LANE}\nv_cmp_eq_u32 vcc, s{S_RB1}, v{VT}")
    k("s_nop 2")
    for db in range(2):
        for j in range(4): k(f"v_cvt_pk_bf16_f32 v{88+db*4+j}, v{KV+db*8+2*j}, v{KV+db*8+2*j+1}")
    k(f"buffer_store_dwordx4 {vr(88,4)}, v{L16}, {sr(SRD_B,4)}, s84 offen sc1")
    k(f"buffer_store_dwordx4 {vr(92,4)}, v{L16}, {sr(SRD_B,4)}, s85 offen sc1")
    k("s_and_saveexec_b64 s[96:97], vcc")
    k(f"buffer_store_dwordx4 {vr(ZZ,4)}, v{L16}, {sr(SRD_C,4)}, s90 offen sc1")
    k(f"buffer_store_dwordx4 {vr(ZZ+4,4)}, v{L16}, {sr(SRD_C,4)}, s90 offen offset:1024 sc1")
    k("s_mov_b64 exec, s[96:97]")
    k.stamp("kv stored")
    fm_part2()
    publish(k, 92, VT + 1)
    k.stamp("kv published")
    k("s_mov_b32 s93, s83")
    g2 = setup_gemm24(k, 2, opt, 96)
    k("s_mov_b32 s83, s93")
    g2.prefetch(k, 8)
    fm_part3(EK)
    k(f"v_lshlrev_b32 v{VT}, {FS}, v{VT}")
    wait_flags(k, [(VT, 91, 1)], VT + 1)
    k.stamp("kv ready")
    k(f"buffer_load_dwordx4 {vr(ZZ,4)}, v{L16}, {sr(SRD_C,4)}, s90 offen sc1")
    k(f"buffer_load_dwordx4 {vr(ZZ+4,4)}, v{L16}, {sr(SRD_C,4)}, s90 offen offset:1024 sc1")
    for i in range(32):
        if i % 4 == 0 and i: k("s_add_u32 s83, s83, 4096")
        k(f"buffer_load_dwordx4 {ar(4*i,4)}, v{L16}, {sr(SRD_B,4)}, s83 offen offset:{(i%4)*1024} sc1")
    srd(k, SRD_T, P_WS, S * D * 2, WS_O)
    k("s_waitcnt vmcnt(32)")
    for sh in (8, 4, 2, 1):
        for j in range(8): k(f"v_add_f32_dpp v{ZZ+j}, v{ZZ+j}, v{ZZ+j} row_ror:{sh} row_mask:0xf bank_mask:0xf")
    k(f"v_and_b32 v{VT+1}, 1, v{LANE}\nv_cmp_eq_u32 vcc, 0, v{VT+1}")
    for j in range(4): k(f"v_cvt_pk_bf16_f32 v{BF+8+j}, v{ZZ+2*j}, v{ZZ+2*j+1}")
    for j in range(4): k(f"v_cndmask_b32 v{BF+8+j}, v{ONES}, v{BF+8+j}, vcc")
    for i in range(32):
        db, pp = divmod(i, 16)
        if i % 2 == 0: k(f"s_waitcnt vmcnt({30 - i})")
        for fb in range(2):
            d = vr(KV + (db * 2 + fb) * 4, 4)
            k(f"{MF} {d}, {vr(SEL + (2 if fb == 0 else 0), 4)}, {ar(4*i,4)}, {'0' if pp == 0 else d}")
    k(f"s_mul_i32 s82, s{S_WAVE}, 3072\ns_add_u32 s82, s82, {SH}")
    k(f"v_add_u32 v{VT+1}, s82, v{L16}\nv_add_u32 v{VT+2}, {SH}, v{L16}")
    k("s_nop 6")
    for db in range(2):
        for j in range(4): k(f"v_cvt_pk_bf16_f32 v{BF+db*4+j}, v{KV+db*8+2*j}, v{KV+db*8+2*j+1}")
    for j in range(3): k(f"ds_write_b128 v{VT+1}, {vr(BF+4*j,4)} offset:{j*1024}")
    k("s_waitcnt lgkmcnt(0)\ns_barrier")
    for i in range(12): k(f"ds_read_b128 {ar(4*i,4)}, v{VT+2} offset:{i*1024}")
    k(f"s_lshl_b32 s82, s{S_RB1}, 3\ns_lshl_b32 s83, s{S_WAVE}, 1\ns_add_u32 s82, s82, s83\ns_lshl_b32 s82, s82, 15")
    k(f"s_lshl_b32 s83, s{S_HP}, 11\ns_add_u32 s82, s82, s83\ns_add_u32 s83, s82, 0x8000")
    k(f"s_lshl_b32 s84, s{S_RB1}, 2\ns_add_u32 s84, s84, s{S_WAVE}\ns_lshl_b32 s84, s84, {FS+4}\ns_lshl_b32 s85, s{S_HP}, {FS}\ns_add_u32 s84, s84, s85\ns_add_u32 s84, s84, {F_O}")
    k("s_waitcnt lgkmcnt(0)")
    for g, (hh, t) in enumerate(groups):
        for sg in range(2):
            for j in range(3):
                k(f"{MF} {vr((g*2+sg)*12+4*j,4)}, {ar(((hh*2+sg)*3+j)*4,4)}, {vr(EK+(g*2+sg)*4,4)}, 0")
    k("s_nop 7")
    for g, (hh, t) in enumerate(groups):
        n1, n2 = g * 24, g * 24 + 12
        D1, S1, D2, S2 = n1 + 8, n1 + 9, n2 + 8, n2 + 9
        k(f"v_mul_f32 v{n1+10}, v{S1}, v{S2}")
        k(f"v_mul_f32 v{n1+10}, 0x358637bd, v{n1+10}")
        k(f"v_fmac_f32 v{n1+10}, v{D1}, v{S2}\nv_fmac_f32 v{n1+10}, v{D2}, v{S1}")
        k(f"v_rcp_f32 v{n1+10}, v{n1+10}")
        k("s_nop 0")
        k(f"v_mul_f32 v{D1}, v{S2}, v{n1+10}\nv_mul_f32 v{D2}, v{S1}, v{n1+10}")
        for j in range(4): k(f"v_pk_mul_f32 {vr(n1+2*j,2)}, {vr(n1+2*j,2)}, {vr(D1,2)} op_sel_hi:[1,0]")
        for j in range(4): k(f"v_pk_fma_f32 {vr(n1+2*j,2)}, {vr(n2+2*j,2)}, {vr(D2,2)}, {vr(n1+2*j,2)} op_sel_hi:[1,0,1]")
        for j in range(4): k(f"v_cvt_pk_bf16_f32 v{n2+j}, v{n1+2*j}, v{n1+2*j+1}")
        k(f"buffer_store_dwordx4 {vr(n2,4)}, v{L16}, {sr(SRD_T,4)}, s{82+t} offen offset:{hh*1024} sc1")
    k.stamp("o stored")
    CU, AU, WW, TT = 128, 144, 152, 156
    for i in range(8): k(f"v_accvgpr_read_b32 v{CU+2*i}, a{A_UT+32+i}")
    silu_block(k, [CU + 2 * i for i in range(8)])
    mko = len(k.L)
    g2.V_X = 48
    srd(k, SRD_A, P_X, S * D * 2)
    V_XA = 47
    k(f"v_lshrrev_b32 v{VT+1}, 4, v{LANE}")
    k(f"v_and_b32 v{VT+2}, 15, v{LANE}\nv_lshlrev_b32 v{VT+2}, 11, v{VT+2}\nv_lshl_add_u32 v{V_XA}, v{VT+1}, 3, v{VT+2}")
    k(f"s_lshl_b32 s82, s{S_RB2}, 3\ns_lshl_b32 s83, s{S_WAVE}, 1\ns_add_u32 s82, s82, s83\ns_lshl_b32 s82, s82, 15\ns_lshl_b32 s83, s{S_NT}, 7\ns_add_u32 s82, s82, s83\ns_add_u32 s83, s82, 32768")
    for t in range(2):
        for b in range(4):
            k(f"buffer_load_dwordx2 {vr(g2.V_X+(t*4+b)*2,2)}, v{V_XA}, {sr(SRD_A,4)}, s{82+t} offen offset:{b*32}")
    publish(k, 84, VT + 2, mko)
    k.stamp("o published")
    mark1 = len(k.L)
    for j in range(8): k(f"v_mov_b32 v{AU+j}, 0")
    for i in range(8):
        for d in range(4): k(f"v_accvgpr_read_b32 v{WW+d}, a{A_UT+4*i+d}")
        for d in range(4):
            k(f"v_lshlrev_b32 v{TT}, 16, v{WW+d}\nv_and_b32 v{TT+1}, 0xffff0000, v{WW+d}")
            k(f"v_pk_fma_f32 {vr(AU+2*d,2)}, {vr(TT,2)}, {vr(CU+2*i,2)}, {vr(AU+2*d,2)} op_sel_hi:[1,0,1]")
    k("s_nop 1")
    for j in range(4): k(f"v_permlane32_swap_b32 v{AU+j}, v{AU+j+4}")
    k("s_nop 1")
    for j in range(4): k(f"v_add_f32 v{AU+j}, v{AU+j}, v{AU+j+4}")
    k("s_nop 1")
    for j in range(2): k(f"v_permlane16_swap_b32 v{AU+j}, v{AU+j+2}")
    k("s_nop 1")
    for j in range(2): k(f"v_add_f32 v{AU+j}, v{AU+j}, v{AU+j+2}")
    k("s_nop 1")
    for j in range(2): k(f"v_add_f32_dpp v{AU+j}, v{AU+j}, v{AU+j} row_ror:8 row_mask:0xf bank_mask:0xf")
    sprinkle(k, mark1, g3_early_units(k.g3, opt.get("g3_e2", 7), 254), skip=0)
    k(f"v_and_b32 v{TT}, 7, v{LANE}\nv_lshlrev_b32 v{TT}, 5, v{TT}\nv_lshrrev_b32 v{TT+1}, 5, v{LANE}\nv_lshl_add_u32 v{TT}, v{TT+1}, 4, v{TT}")
    k(f"v_bfe_u32 v{TT+1}, v{LANE}, 4, 1\nv_lshl_add_u32 v{TT}, v{TT+1}, 3, v{TT}")
    srd(k, SRD_D, P_WS, MP_BYTES, WS_MODP)
    k(f"v_or_b32 v{AU}, 1, v{AU}\nv_or_b32 v{AU+1}, 1, v{AU+1}")
    k(f"buffer_store_dwordx2 {vr(AU,2)}, v{TT}, {sr(SRD_D,4)}, s{S_MO} offen sc1")
    return g2

A_PARK = 224
S3_SRD, S3_WB, S3_KW = 64, 68, 69
def setup_gemm3_early(k, opt, LANE, VT):
    c = Sched(); common_gemm(c)
    NS, R = 4, 8
    STAGE = 28672
    V_RD, V_DMA, V_TOK = 224, 226, 233
    c.V_RD, c.V_DMA, c.V_TOK, c.LANE, c.L16, c.VT = V_RD, V_DMA, V_TOK, 237, 238, 248
    c.srd_w, c.s_wbase, c.s_kw = S3_SRD, S3_WB, S3_KW
    order(c, k, opt, 'g3', ['win', [4, 4, 8], 0])
    k(f"s_lshr_b32 s80, s{S_WAVE}, 1\ns_and_b32 s81, s{S_WAVE}, 1")
    k(f"s_mul_i32 s83, s80, {32*7168}\ns_mul_i32 s{S_TMP}, s{S_FT}, 224\ns_add_u32 s83, s83, s{S_TMP}")
    for i in range(7):
        k(f"v_add_u32 v{VT+2}, {i*64}, v{LANE}")
        k(f"v_mul_u32_u24 v{VT+3}, 4682, v{VT+2}")
        k(f"v_lshrrev_b32 v{VT+3}, 16, v{VT+3}")
        k(f"v_mul_u32_u24 v{VT+4}, 14, v{VT+3}")
        k(f"v_sub_u32 v{VT+4}, v{VT+2}, v{VT+4}")
        k(f"v_mul_u32_u24 v{VT+3}, 7168, v{VT+3}")
        k(f"v_lshl_add_u32 v{VT+3}, v{VT+4}, 4, v{VT+3}")
        k(f"v_add_u32 v{VT+3}, s83, v{VT+3}")
        k(f"v_accvgpr_write_b32 a{A_PARK+i}, v{VT+3}")
    k(f"s_mul_i32 s{S3_WB}, s81, 14336\ns_mul_i32 s82, s80, 7168\ns_add_u32 s{S3_WB}, s{S3_WB}, s82")
    k(f"s_cmp_eq_u32 s81, 0\ns_cselect_b32 s{S3_SRD}, s{P_W1}, s{P_W3}\ns_cselect_b32 s{S3_SRD+1}, s{P_W1+1}, s{P_W3+1}")
    k(f"s_mov_b32 s{S3_SRD+2}, {D*F*2}\ns_mov_b32 s{S3_SRD+3}, 0x20000")
    c.NB, c.TB, c.KS, c.SPK, c.KT, c.NS, c.R = 14, 4, 1, 2, 16, NS, R
    c.acc = lambda b, t: vr((b * 4 + t) * 4, 4)
    c.tf = lambda slot, ks, t: 112 + (slot * 4 + t) * 4
    ph = lambda sl: 3 - sl
    c.rd = lambda sl, b, sub, r: (V_RD + ph(sl) // 2, (ph(sl) % 2) * STAGE + (b % 2) * 14336 + (32 * sub + 16 * r) * 224 + 32 * (b // 2))
    c.slot_addr = lambda sl: ph(sl) * STAGE
    c.dma = [(V_DMA + i, i * 1024, 0) for i in range(7)]
    c.v_tok = [V_TOK + t for t in range(4)]
    c.w_stride = 64 * 7168
    c.drop = opt.get("g3_drop", ())
    c.pro_units, c.ramp_rate, c.read_margin = opt.get("g3_pro", 12), (lambda st: opt.get("g3_ramp", 12) if st < 6 else 8), 8
    c.lookahead = opt.get("g3_la", 4)
    std_sched(c)
    TL = c.TL = opt.get("g3_tail", 0)
    if TL:
        tail = c.steps[32 - TL:]
        c.steps = c.steps[:32 - TL] + [dict(st, frags=st["frags"][:8]) for st in tail] + [dict(st, frags=st["frags"][8:]) for st in tail]
    return c
def g3_early_units(c, n, vtmp):
    out = []
    for j in range(n):
        t = c.prefetch_txt(1)
        i = (c.pre_dma - 1) % 7
        ld = t[-1].replace(f"v{c.V_DMA+i},", f"v{vtmp},")
        out.append(t[:-1] + [f"v_accvgpr_read_b32 v{vtmp}, a{A_PARK+i}", ld])
    return out
def setup_gemm3_late(k, c):
    V_RD, V_DMA, V_TOK, LANE, L16, VT = c.V_RD, c.V_DMA, c.V_TOK, c.LANE, c.L16, c.VT
    lane_id(k, LANE)
    k(f"v_lshlrev_b32 v{L16}, 4, v{LANE}")
    for i in range(7): k(f"v_accvgpr_read_b32 v{V_DMA+i}, a{A_PARK+i}")
    k(f"v_lshrrev_b32 v{VT+3}, 2, v{LANE}\nv_mul_u32_u24 v{VT+3}, 224, v{VT+3}")
    k(f"v_and_b32 v{VT+4}, 3, v{LANE}\nv_lshl_add_u32 v{V_RD}, v{VT+4}, 3, v{VT+3}")
    k(f"v_add_u32 v{V_RD+1}, {2*28672}, v{V_RD}")
    k(f"s_lshl_b32 s82, s{S_RB3}, 4\ns_lshl_b32 s83, s{S_WAVE}, 2\ns_add_u32 s82, s82, s83\ns_lshl_b32 s82, s82, 15")
    k(f"v_add_u32 v{V_TOK}, s82, v{L16}")
    for t in range(1, 4): k(f"v_add_u32 v{V_TOK+t}, {t*0x8000}, v{V_TOK}")

def sprinkle(k, mark, groups, skip=4):
    if not groups: return
    seg = k.L[mark:]
    stepn = max(1, (len(seg) - skip) // len(groups))
    out, q = [], list(groups)
    for i, x in enumerate(seg):
        out.append(x)
        if q and i >= skip and (i - skip) % stepn == 0:
            assert not x.startswith("s_cmp") and not x.startswith("s_and_saveexec")
            out += q.pop(0)
    for g in q: out += g
    k.L[mark:] = out

A_X1 = 240
def phase_gemm2(k, c, opt):
    LANE, L16 = c.LANE, c.L16
    VT = 40
    k(f"v_and_b32 v252, 15, v{LANE}\nv_lshlrev_b32 v252, {FS}, v252")
    k(f"s_lshl_b32 s84, s{S_RB2}, 2\ns_add_u32 s84, s84, s{S_WAVE}\ns_lshl_b32 s84, s84, {FS+4}\ns_add_u32 s85, s84, {F_O}")
    staged_wait(k, c, opt.get("g2_T", 6), 252, 85, 253, one_prod)
    k.stamp("o ready")
    V_G, V_C, V_S, V_GA = 64, 80, 136, 44
    p = Txt()
    srd(p, SRD_A, P_WS, S * D * 2, WS_Y)
    srd(p, SRD_B, P_WS, S * 128, WS_STAT)
    srd(p, SRD_D, P_WS, MP_BYTES, WS_MODP)
    p(f"v_lshrrev_b32 v{V_GA}, 4, v{LANE}\nv_lshlrev_b32 v{V_GA}, 4, v{V_GA}\nv_add_u32 v{V_GA}, {L_MV}, v{V_GA}")
    p(f"s_lshl_b32 s86, s{S_RB2}, 3\ns_lshl_b32 s87, s{S_WAVE}, 1\ns_add_u32 s86, s86, s87")
    p(f"s_lshl_b32 s88, s86, 15\ns_lshl_b32 s87, s{S_NT}, 11\ns_add_u32 s88, s88, s87\ns_add_u32 s89, s88, 32768")
    p(f"s_lshl_b32 s87, s{S_NT}, {FS}\ns_add_u32 s84, s84, s87\ns_add_u32 s84, s84, {F_Y}")
    p(f"s_lshl_b32 s91, s86, 11\ns_lshl_b32 s90, s{S_NT}, 8\ns_add_u32 s90, s90, s91")
    p(f"s_lshl_b32 s92, s{S_WAVE}, 16\ns_lshl_b32 s93, s{S_NT}, 12\ns_add_u32 s92, s92, s93\ns_add_u32 s92, s92, {MP_B}")
    p(f"v_lshlrev_b32 v{VT}, 2, v{LANE}")
    c.pre_loop_txt = p.L
    c.late = {}
    if opt.get("cpf", 1): c.late[6] = code_prefetch_txt(k.name, L16, 254, 80)
    m = Txt(); m.label = k.label
    MB_ = 160
    spin(m, [f"buffer_load_dword v{MB_+j}, v{VT}, {sr(SRD_D,4)}, s92 offen offset:{j*256} sc1" for j in range(16)], [MB_ + j for j in range(16)], MB_ + 16)
    for st in (4, 2, 1):
        for j in range(st): m(f"v_pk_add_f32 {vr(MB_+2*j,2)}, {vr(MB_+2*j,2)}, {vr(MB_+2*(j+st),2)}")
    m(f"v_add_f32 v{MB_}, v{MB_}, v{MB_+1}")
    round_bf16(m, MB_)
    m(f"v_add_f32 v{MB_+1}, 1.0, v{MB_}"); round_bf16(m, MB_ + 1)
    m(f"s_cmp_eq_u32 s{S_WAVE}, 2\ns_cselect_b64 vcc, -1, 0")
    m(f"v_cndmask_b32 v{MB_}, v{MB_}, v{MB_+1}, vcc")
    m(f"s_lshl_b32 s92, s{S_WAVE}, 8\ns_add_u32 s92, s92, {L_MV}\nv_add_u32 v{VT}, s92, v{VT}")
    m(f"ds_write_b32 v{VT}, v{MB_}")
    c.late[opt.get("g2_modstep", 13)] = ["\n".join(m.L)]
    ne = opt.get("g3_e3", 7 if opt.get("split", 1) else 0)
    eu = [x for g in g3_early_units(k.g3, ne, 254) for x in g]
    c.late.setdefault(14, []).extend(eu[:len(eu)//2 // 1]); c.late.setdefault(15, []).extend(eu[len(eu)//2:])
    c.last_reads = ([f"ds_read_b128 {vr(V_G+4*b,4)}, v{V_GA} offset:{b*64}" for b in range(4)] + [f"ds_read_b128 {vr(V_C+4*b,4)}, v{V_GA} offset:{512+b*64}" for b in range(4)]
                    + [f"ds_read_b128 {vr(V_S+4*b,4)}, v{V_GA} offset:{256+b*64}" for b in range(4)])
    c.run(k)
    k.stamp("g2 loop done")
    k("s_waitcnt lgkmcnt(0)\ns_nop 7")
    A = lambda b, t: (b * 2 + t) * 4
    XT = 194; V_X = c.V_X
    for t in range(2):
        for b in range(4):
            xr = V_X + (t * 4 + b) * 2
            for h in range(2): k(f"v_lshlrev_b32 v{XT+2*h}, 16, v{xr+h}\nv_and_b32 v{XT+2*h+1}, 0xffff0000, v{xr+h}")
            for h in range(2): k(f"v_pk_fma_f32 {vr(A(b,t)+2*h,2)}, {vr(A(b,t)+2*h,2)}, {vr(V_G+4*b+2*h,2)}, {vr(XT+2*h,2)}")
        PK = XT + 4 + t * 8
        for b in range(4): k(f"v_cvt_pk_bf16_f32 v{PK+2*b}, v{A(b,t)}, v{A(b,t)+1}\nv_cvt_pk_bf16_f32 v{PK+2*b+1}, v{A(b,t)+2}, v{A(b,t)+3}")
        for b in range(4):
            for h in range(2): k(f"v_lshlrev_b32 v{A(b,t)+2*h}, 16, v{PK+2*b+h}\nv_and_b32 v{A(b,t)+2*h+1}, 0xffff0000, v{PK+2*b+h}")
    SU = [XT + 20, XT + 22]; M2 = [XT + 21, XT + 23]; TM = [XT + 24, XT + 25]; AC = [XT, XT + 2]; NM = [XT + 26, XT + 28]; DF = 32
    for t in range(2): k(f"v_pk_add_f32 {vr(AC[t],2)}, {vr(A(0,t),2)}, {vr(A(0,t)+2,2)}")
    for b in range(1, 4):
        for h in range(2):
            for t in range(2): k(f"v_pk_add_f32 {vr(AC[t],2)}, {vr(AC[t],2)}, {vr(A(b,t)+2*h,2)}")
    def allred2(X):
        for sw in ("v_permlane32_swap_b32", "v_permlane16_swap_b32"):
            for t in range(2): k(f"v_mov_b32 v{TM[t]}, v{X[t]}")
            k("s_nop 0")
            for t in range(2): k(f"{sw} v{X[t]}, v{TM[t]}")
            k("s_nop 0")
            for t in range(2): k(f"v_add_f32 v{X[t]}, v{X[t]}, v{TM[t]}")
    for t in range(2): k(f"v_add_f32 v{SU[t]}, v{AC[t]}, v{AC[t]+1}")
    allred2(SU)
    for t in range(2): k(f"v_mul_f32 v{NM[t]}, {-1.0/64!r}, v{SU[t]}\nv_mov_b32 v{AC[t]}, 0\nv_mov_b32 v{AC[t]+1}, 0")
    for b in range(4):
        for h in range(2):
            for t in range(2): k(f"v_pk_add_f32 {vr(DF+2*t,2)}, {vr(A(b,t)+2*h,2)}, {vr(NM[t],2)} op_sel_hi:[1,0]")
            for t in range(2): k(f"v_pk_fma_f32 {vr(AC[t],2)}, {vr(DF+2*t,2)}, {vr(DF+2*t,2)}, {vr(AC[t],2)}")
    for t in range(2): k(f"v_add_f32 v{M2[t]}, v{AC[t]}, v{AC[t]+1}")
    allred2(M2)
    k(f"v_cmp_gt_u32 vcc, 16, v{LANE}")
    k(f"v_lshlrev_b32 v{XT+2}, 3, v{LANE}\nv_lshrrev_b32 v{XT+3}, 4, v{LANE}")
    k(f"v_cndmask_b32 v{XT}, v{SU[1]}, v{SU[0]}, vcc\nv_cndmask_b32 v{XT+1}, v{M2[1]}, v{M2[0]}, vcc")
    k(f"v_and_b32 v45, 0x78, v{XT+2}\nv_lshl_add_u32 v45, v{XT+3}, 10, v45")
    k(f"v_or_b32 v{XT+1}, 1, v{XT+1}")
    k(f"v_cmp_gt_u32 vcc, 32, v{LANE}\ns_and_saveexec_b64 s[96:97], vcc")
    k(f"buffer_store_dwordx2 {vr(XT,2)}, v{XT+2}, {sr(SRD_B,4)}, s90 offen sc1")
    k("s_mov_b64 exec, s[96:97]")
    k.stamp("stat stored")
    for t in range(2):
        for b in range(4):
            for h in range(2): k(f"v_pk_mul_f32 {vr(A(b,t)+2*h,2)}, {vr(A(b,t)+2*h,2)}, {vr(V_C+4*b+2*h,2)}")
    for j in range(16): k(f"v_accvgpr_write_b32 a{A_X1+j}, v{XT+4+j}")
    g3 = k.g3
    setup_gemm3_late(k, g3)
    g3.prefetch(k, opt.get("g3_pre0", 0))
    ST = 48
    spin(k, [f"buffer_load_dwordx2 {vr(ST+t*8+j*2,2)}, v45, {sr(SRD_B,4)}, s91 offen offset:{t*128+j*256} sc1" for t in range(2) for j in range(4)],
         [ST + 2 * j + 1 for j in range(8)], XT)
    k.stamp("stat ready")
    for t in range(2):
        b = ST + t * 8
        k(f"v_add_f32 v{SU[t]}, v{b}, v{b+2}\nv_add_f32 v{TM[t]}, v{b+4}, v{b+6}\nv_add_f32 v{SU[t]}, v{SU[t]}, v{TM[t]}")
        k(f"v_add_f32 v{M2[t]}, v{b+1}, v{b+3}\nv_add_f32 v{TM[t]}, v{b+5}, v{b+7}\nv_add_f32 v{M2[t]}, v{M2[t]}, v{TM[t]}")
    allred2(SU)
    for t in range(2): k(f"v_mul_f32 v{SU[t]}, {-1.0/1024!r}, v{SU[t]}")
    for j in range(4):
        for t in range(2): k(f"v_fmamk_f32 v{ST+t*8+2*j}, v{ST+t*8+2*j}, {1.0/64!r}, v{SU[t]}")
        for t in range(2): k(f"v_mul_f32 v{ST+t*8+2*j}, v{ST+t*8+2*j}, v{ST+t*8+2*j}")
        for t in range(2): k(f"v_fmac_f32 v{M2[t]}, 0x42800000, v{ST+t*8+2*j}")
    allred2(M2)
    for t in range(2): k(f"v_mov_b32 v{TM[t]}, 0x3727c5ac\nv_fmac_f32 v{TM[t]}, {1.0/1024!r}, v{M2[t]}")
    for t in range(2): k(f"v_rsq_f32 v{NM[t]}, v{TM[t]}")
    k("s_nop 0")
    for t in range(2): k(f"v_mul_f32 v{NM[t]+1}, v{SU[t]}, v{NM[t]}")
    for t in range(2):
        YK = ST + t * 8
        for b in range(4):
            for h in range(2): k(f"v_pk_fma_f32 {vr(XT+2*h,2)}, {vr(V_C+4*b+2*h,2)}, {vr(NM[t],2)}, {vr(V_S+4*b+2*h,2)} op_sel:[0,1,0] op_sel_hi:[1,1,1]")
            for h in range(2): k(f"v_pk_fma_f32 {vr(XT+2*h,2)}, {vr(A(b,t)+2*h,2)}, {vr(NM[t],2)}, {vr(XT+2*h,2)} op_sel_hi:[1,0,1]")
            k(f"v_cvt_pk_bf16_f32 v{YK+2*b}, v{XT}, v{XT+1}\nv_cvt_pk_bf16_f32 v{YK+2*b+1}, v{XT+2}, v{XT+3}")
        for s_ in range(2): k(f"buffer_store_dwordx4 {vr(YK+4*s_,4)}, v{L16}, {sr(SRD_A,4)}, s{88+t} offen offset:{s_*1024} sc1")
    publish(k, 84, 40)
    k.stamp("y published")
    g3.prefetch(k, opt.get("g3_pre", 7 if opt.get("split", 1) else 0))
    return g3

def phase_gemm3(k, c, opt):
    LANE, L16, VT = c.LANE, c.L16, c.VT
    NB, TB = 14, 4
    srd(k, SRD_T, P_WS, S * D * 2, WS_Y)
    srd(k, SRD_C, P_WS, S * F * 2, WS_HH)
    k(f"v_and_b32 v{VT}, 31, v{LANE}\nv_lshlrev_b32 v{VT}, {FS}, v{VT}")
    k(f"s_lshl_b32 s84, s{S_RB3}, 2\ns_add_u32 s84, s84, s{S_WAVE}")
    k(f"s_lshl_b32 s85, s84, {FS+5}\ns_add_u32 s85, s85, {F_Y}")
    staged_wait(k, c, opt.get("g3_T", 3), VT, 85, VT + 1, one_prod, dup16=True)
    k.stamp("y ready")
    p = Txt()
    p(f"s_mul_i32 s88, s84, {448*1024}\ns_mul_i32 s92, s{S_FT}, 3584\ns_add_u32 s88, s88, s92")
    for t in range(1, 4): p(f"s_add_u32 s{88+t}, s88, {t*112*1024}")
    p(f"s_lshl_b32 s93, s84, {FS+5}\ns_lshl_b32 s94, s{S_FT}, {FS}\ns_add_u32 s93, s93, s94\ns_add_u32 s94, s93, {F_HB}\ns_add_u32 s93, s93, {F_HH}")
    p(f"s_mov_b32 s86, {-LOG2E!r}\ns_mov_b32 s87, {-LOG2E!r}")
    SB = 241
    p(f"v_lshrrev_b32 v{SB}, 1, v{L16}")
    c.pre_loop_txt = p.L
    if opt.get("cpf", 1):
        c.late[6] = code_prefetch_txt(k.name, L16, 254, 80, junk="v240")
        c.late[22] = code_prefetch_txt(k.name, L16, 254, 80, junk="v240")
    if opt.get("w2touch", 1):
        c.late[opt.get("w2step", 16)] = [f"s_lshl_b32 s80, s2, 2", f"s_add_u32 s80, s80, s{S_WAVE}", "s_mul_i32 s80, s80, 7168",
                      f"v_min_u32 v253, 55, v{LANE}", "v_lshlrev_b32 v253, 7, v253", "v_add_u32 v253, s80, v253",
                      f"global_load_dword v240, v253, s[{P_W2}:{P_W2+1}]"]
    t4 = Txt()
    g4 = setup_gemm4p(t4, opt, 242)
    half = len(t4.L) // 2
    c.late[19] = t4.L[:half]; c.late[20] = t4.L[half:]
    pf = g4.prefetch_txt(4); c.late[29] = pf
    pf = g4.prefetch_txt(4); c.late[30] = pf
    def G(s, t): return ((2 * s) * TB + t) * 4
    def Uu(s, t): return ((2 * s + 1) * TB + t) * 4
    def act(k, slots, t, scalar=False):
        if scalar:
            for s in slots:
                for r in range(4):
                    k(f"v_mul_f32 v{Uu(s,t)+r}, v{G(s,t)+r}, v{Uu(s,t)+r}")
                    k(f"v_mul_f32 v{G(s,t)+r}, s86, v{G(s,t)+r}")
            rs = [(s, r) for s in slots for r in range(4)]
            for i, (s, r) in enumerate(rs): k(f"v_exp_f32 v{G(s,t)+r}, v{G(s,t)+r}")
            for i, (s, r) in enumerate(rs): k(f"v_add_f32 v{G(s,t)+r}, 1.0, v{G(s,t)+r}")
            for i, (s, r) in enumerate(rs): k(f"v_rcp_f32 v{G(s,t)+r}, v{G(s,t)+r}")
            for i, (s, r) in enumerate(rs): k(f"v_mul_f32 v{Uu(s,t)+r}, v{Uu(s,t)+r}, v{G(s,t)+r}")
            return
        for s in slots:
            for h in range(2):
                k(f"v_pk_mul_f32 {vr(Uu(s,t)+2*h,2)}, {vr(G(s,t)+2*h,2)}, {vr(Uu(s,t)+2*h,2)}")
                k(f"v_pk_mul_f32 {vr(G(s,t)+2*h,2)}, {vr(G(s,t)+2*h,2)}, s[86:87]")
        for s in slots:
            for r in range(4): k(f"v_exp_f32 v{G(s,t)+r}, v{G(s,t)+r}")
        for s in slots:
            for h in range(2): k(f"v_pk_add_f32 {vr(G(s,t)+2*h,2)}, {vr(G(s,t)+2*h,2)}, 1.0 op_sel_hi:[1,0]")
        for s in slots:
            for r in range(4): k(f"v_rcp_f32 v{G(s,t)+r}, v{G(s,t)+r}")
        for s in slots:
            for h in range(2): k(f"v_pk_mul_f32 {vr(Uu(s,t)+2*h,2)}, {vr(Uu(s,t)+2*h,2)}, {vr(G(s,t)+2*h,2)}")
    def pair(k, pr, t, scalar=False):
        s0, s1 = 2 * pr, 2 * pr + 1
        act(k, [s0, s1], t, scalar)
        d = G(s0, t)
        k(f"v_cvt_pk_bf16_f32 v{d}, v{Uu(s0,t)}, v{Uu(s0,t)+1}\nv_cvt_pk_bf16_f32 v{d+1}, v{Uu(s0,t)+2}, v{Uu(s0,t)+3}")
        k(f"v_cvt_pk_bf16_f32 v{d+2}, v{Uu(s1,t)}, v{Uu(s1,t)+1}\nv_cvt_pk_bf16_f32 v{d+3}, v{Uu(s1,t)+2}, v{Uu(s1,t)+3}")
        k(f"buffer_store_dwordx4 {vr(d,4)}, v{L16}, {sr(SRD_C,4)}, s{88+t} offen offset:{pr*1024} sc1")
    ea = Txt(); eb = Txt()
    nin = opt.get("g3_nin", 8) if c.TL else 0
    for i, (pr, t) in enumerate([(pr, t) for pr in range(2) for t in range(TB)]):
        if i < nin: pair(ea, pr, t, opt.get("g3_scalar", 0))
        else: pair(eb, pr, t)
    if c.TL:
        nst = opt.get("g3_east", c.TL - 1)
        per = -(-len(ea.L) // nst)
        c.step_extra = lambda st: ea.L[(st - 32) * per:(st - 31) * per] if st >= 32 else []
    c.run(k)
    k.stamp("g3 loop done")
    if not c.TL: k("s_nop 7")
    for x in eb.L: k(x)
    mkA = len(k.L)
    k("s_nop 4\ns_barrier")
    na = opt.get("g3_pubA", 2)
    for t in range(na): pair(k, 2, t)
    publish(k, 93, 252, mkA)
    k.stamp("hA published")
    mark3 = len(k.L)
    for t in range(na, TB): pair(k, 2, t)
    grp = []
    for j in range(8):
        t_ = g4.prefetch_txt(1); grp.append(t_[:-1] + ["s_nop 0", t_[-1]])
    sprinkle(k, mark3, grp)
    for t in range(TB):
        act(k, [6], t)
        d = G(6, t)
        k(f"v_cvt_pk_bf16_f32 v{d}, v{Uu(6,t)}, v{Uu(6,t)+1}\nv_cvt_pk_bf16_f32 v{d+1}, v{Uu(6,t)+2}, v{Uu(6,t)+3}")
        k(f"buffer_store_dwordx2 {vr(d,2)}, v{SB}, {sr(SRD_C,4)}, s{88+t} offen offset:3072 sc1")
    k.stamp("hh stored")
    return g4

def phase_gemm4(k, c, opt):
    LANE, L16 = c.LANE, c.L16
    VT = 40
    srd(k, SRD_T, P_WS, S * F * 2, WS_HH)
    srd(k, SRD_A, P_OUT, S * D * 2)
    k(f"v_and_b32 v{VT}, 31, v{LANE}\nv_lshlrev_b32 v{VT}, 2, v{VT}")
    k(f"s_lshl_b32 s84, s{S_RB2}, 1\ns_lshr_b32 s85, s{S_WAVE}, 1\ns_add_u32 s84, s84, s85\ns_lshl_b32 s84, s84, {FS+5}\ns_add_u32 s84, s84, {F_HH}")
    wait_flags(k, [(VT, 84, 1)], VT + 1)
    k.stamp("hh ready")
    V_G, V_GA, V_XA, V_X = 64, 44, 45, 48
    p = Txt()
    p(f"v_lshrrev_b32 v{VT}, 4, v{LANE}\nv_lshlrev_b32 v{V_GA}, 4, v{VT}\nv_add_u32 v{V_GA}, {L_MV}, v{V_GA}")
    p(f"v_and_b32 v{VT+1}, 15, v{LANE}\nv_lshlrev_b32 v{VT+1}, 11, v{VT+1}")
    p(f"v_and_b32 v{VT+2}, 1, v{VT}\nv_lshl_add_u32 v{VT+1}, v{VT+2}, 5, v{VT+1}")
    p(f"v_lshrrev_b32 v{VT+2}, 1, v{VT}\nv_lshl_add_u32 v{V_XA}, v{VT+2}, 4, v{VT+1}")
    p(f"s_lshl_b32 s86, s{S_RB2}, 3\ns_lshl_b32 s87, s{S_WAVE}, 1\ns_add_u32 s86, s86, s87\ns_lshl_b32 s86, s86, 15\ns_lshl_b32 s87, s{S_NT}, 7\ns_add_u32 s86, s86, s87\ns_add_u32 s87, s86, 32768")
    for j in range(16): p(f"v_accvgpr_read_b32 v{V_X+j}, a{A_X1+j}")
    c.pre_loop_txt = p.L
    c.last_reads = [f"ds_read_b128 {vr(V_G+4*b,4)}, v{V_GA} offset:{768+b*64}" for b in range(4)]
    c.run(k)
    k.stamp("g4 loop done")
    k("s_waitcnt lgkmcnt(0)\ns_nop 7")
    A = lambda b, t: (b * 2 + t) * 4
    XT = 96
    for t in range(2):
        for b in range(4):
            xr = V_X + (t * 4 + b) * 2
            for h in range(2): k(f"v_lshlrev_b32 v{XT+2*h}, 16, v{xr+h}\nv_and_b32 v{XT+2*h+1}, 0xffff0000, v{xr+h}")
            for h in range(2): k(f"v_pk_fma_f32 {vr(A(b,t)+2*h,2)}, {vr(A(b,t)+2*h,2)}, {vr(V_G+4*b+2*h,2)}, {vr(XT+2*h,2)}")
        PK = XT + 4 + t * 8
        for b in range(4): k(f"v_cvt_pk_bf16_f32 v{PK+2*b}, v{A(b,t)}, v{A(b,t)+1}\nv_cvt_pk_bf16_f32 v{PK+2*b+1}, v{A(b,t)+2}, v{A(b,t)+3}")
        k("s_nop 1")
        for s_ in range(2): k(f"v_permlane16_swap_b32 v{PK+4*s_}, v{PK+4*s_+2}\nv_permlane16_swap_b32 v{PK+4*s_+1}, v{PK+4*s_+3}")
        for s_ in range(2): k(f"buffer_store_dwordx4 {vr(PK+4*s_,4)}, v{V_XA}, {sr(SRD_A,4)}, s{86+t} offen offset:{s_*64}")

def build_mega(instr=False, opt=None, name="mega_kernel"):
    opt = opt or {}
    k = Mega(name, 256, 256, LDS_TOTAL, vgpr=256, agpr=256, sgpr=102)
    k.instr = instr; k.names = []; k.only = opt.get("only")
    end = k.label("end")
    far = k.label("go")
    k(f"s_cmp_lt_u32 s2, 256\ns_cbranch_scc1 {far}\ns_endpgm\n{far}:")
    if opt.get("fused", 1):
        code_prefetch_setup(k, name)
        k("v_and_b32 v104, 63, v0\nv_lshlrev_b32 v105, 4, v104\nv_lshlrev_b32 v254, 5, v0")
        k("global_load_dword a232, v254, s[100:101]")
        k("s_load_dwordx2 s[96:97], s[0:1], 88")
        if opt.get("dbgout"): k("s_load_dwordx2 s[72:73], s[0:1], 88")
    k("s_load_dwordx8 s[4:11], s[0:1], 0")
    k("s_load_dwordx2 s[12:13], s[0:1], 64")
    k("s_load_dwordx2 s[14:15], s[0:1], 40")
    k("s_load_dwordx4 s[16:19], s[0:1], 48")
    k("s_load_dwordx2 s[98:99], s[0:1], 72")
    k("s_load_dwordx2 s[24:25], s[0:1], 80")
    k("s_load_dwordx2 s[28:29], s[0:1], 96")
    if instr: k(f"v_mov_b32 v{VSTAMP}, 0")
    ids(k)
    k(f"s_lshr_b32 s80, s{S_IDX}, 2\ns_add_u32 s{S_R4}, s80, s{S_IDX}\ns_and_b32 s81, s{S_IDX}, 3\ns_lshl_b32 s81, s81, 1\ns_add_u32 s{S_R8}, s80, s81")
    k(f"s_and_b32 s80, s{S_IDX}, 3\ns_lshl_b32 s{S_FT}, s{S_XCD}, 2\ns_add_u32 s{S_FT}, s{S_FT}, s80\ns_lshr_b32 s{S_RB3}, s{S_IDX}, 2")
    if opt.get("fused", 1):
        for x in code_prefetch_txt(name, 105, 254, 80): k(x)
    k.stamp("start")
    g1 = (phase_front_fused if opt.get("fused", 1) else phase_front)(k, opt, name)
    g2 = (phase_gemm1s if opt.get('split', 1) else phase_gemm1)(k, g1, opt)
    g3 = phase_gemm2(k, g2, opt)
    g4 = phase_gemm3(k, g3, opt)
    (phase_gemm4p if opt.get('g4_pair', 1) else phase_gemm4)(k, g4, opt)
    if instr:
        k("s_waitcnt vmcnt(0)")
        k.stamp("end")
        k(f"s_add_u32 s84, s{P_WS}, {WS_DBG}\ns_addc_u32 s85, s{P_WS+1}, 0\ns_mov_b32 s86, 0x100000\ns_mov_b32 s87, 0x20000")
        k(f"s_lshl_b32 s88, s2, 2\ns_add_u32 s88, s88, s{S_WAVE}\ns_lshl_b32 s88, s88, 8")
        lane_id(k, 1)
        k("v_lshlrev_b32 v1, 2, v1")
        k(f"buffer_store_dword v{VSTAMP}, v1, s[84:87], s88 offen")
        if opt.get("dbgout"):
            sk = k.label("nodbg")
            k(f"s_lshl_b32 s88, s2, 2\ns_add_u32 s88, s88, s{S_WAVE}\ns_cmp_lg_u32 s88, {opt['dbgout']*4}\ns_cbranch_scc1 {sk}")
            k("s_mov_b32 s84, s72\ns_mov_b32 s85, s73\ns_mov_b32 s86, 64\ns_mov_b32 s87, 0x20000")
            k(f"v_readlane_b32 s89, v{VSTAMP}, 0\ns_nop 3\nv_subrev_u32 v2, s89, v{VSTAMP}")
            k("buffer_store_dword v2, v1, s[84:87], 0 offen offset:12")
            k(f"{sk}:")
    k("s_endpgm")
    k(f"{name}_end:")
    return k
```

```python
import sys, json
from asmlib import *
from layout import *
from mega import build_mega, build_k0
import re
def postproc(txt, opt):
    nt = opt.get("nt", ["mod"])
    out = []
    for l in txt.split("\n"):
        if "buffer_load_dwordx4" in l and " sc1" not in l:
            if "g3" in nt and "s[64:67]" in l: l = l.replace(" lds", " nt lds")
            if "w" in nt and "s[32:35]" in l: l = l.replace(" lds", " nt lds")
            if "mod" in nt and "s[52:55]" in l: l = l + " nt"
            if "x" in nt and "s[40:43]" in l and not l.endswith("lds"): l = l + " nt"
        if opt.get("plain_tok") and "buffer_load_dwordx" in l and "s[36:39]" in l: l = l.replace(" sc1", opt["plain_tok"].replace("_", " ").rstrip())
        if opt.get("out_flag") and "buffer_store_dwordx4" in l and "s[40:43]" in l and "sc1" not in l: l = l + opt["out_flag"]
        if opt.get("no_c3") and "v_lshlrev_b32 v62, 10, v62" in l: l = "  v_mov_b32 v62, 0"
        if opt.get("no_code") and "v_min_u32 v254," in l and "_end" in l: l = "  v_mov_b32 v254, 0"
        if opt.get("no_code") and "v_lshlrev_b32 v254, 5, v0" in l: l = "  v_mov_b32 v254, 0"
        out.append(l)
    return "\n".join(out)
def make(path, instr, opt=None, hdr=""):
    m = build_mega(instr=instr, opt=opt)
    ks = [m] if (opt or {}).get('fused', 1) else [build_k0(instr=instr, opt=opt), m]
    if instr:
        b = Kernel("block_kernel", 8, 64, 0, vgpr=8, sgpr=16)
        b("s_mov_b32 s4, 0\nL_blk:\ns_sleep 127\ns_add_u32 s4, s4, 1\ns_cmp_lt_u32 s4, 100\ns_cbranch_scc1 L_blk\ns_endpgm")
        ks = [b] + ks
        json.dump(m.names, open(path.replace(".s", ".json"), "w"))
    txt = build_file(ks, hdr)
    txt = postproc(txt, opt or {})
    if (opt or {}).get('trim', 0) and not instr:
        from trim import trim_nops
        txt, sv = trim_nops(txt)
    if (opt or {}).get('align', 1):
        from align import align
        txt, nw, nn = align(txt, 'mega_kernel')
    open(path, "w").write(txt)
if __name__ == "__main__":
    variants = json.loads(sys.argv[1]) if len(sys.argv) > 1 else {}
    for n, o in variants.items(): make(f"mv_{n}.s", True, o)
    if len(sys.argv) > 2 and sys.argv[2] == "only": sys.exit(0)
    make("mega_i.s", True)
    hdr = open("adaLN_cond__linear_kernel_hedgehog__glu_gated_swiglu__prompt.s.ref").read().split("; Override")[0]
    make("mega.s", False, hdr=hdr)
```

```python
from asmlib import *
MF = "v_mfma_f32_16x16x32_bf16"

class Item:
    __slots__ = ("kind", "txt", "key", "lgkm")
    def __init__(self, kind, txt=None, key=None, lgkm=None):
        self.kind = kind; self.txt = txt; self.key = key; self.lgkm = lgkm
def T(txt): return Item("txt", txt)
def VM(txt, key): return Item("vm", txt, key)
def WVM(keys, lgkm=None): return Item("wvm", None, keys, lgkm)
def is_vm(x): return x.startswith("buffer_") or x.startswith("global_")

class Txt:
    def __init__(self): self.L = []
    def __call__(self, s): self.L += [x.strip() for x in s.split("\n") if x.strip()]

def win_mask(sizes):
    out, b = [], 0
    for w in sizes:
        out += [(b, w - 1)] * w; b += w
    return out

class Sched:
    pro_units = 0; ramp_rate = 99; read_margin = 8; lookahead = 99
    step_extra = None; late = None; last_reads = (); pre_loop_txt = (); drop = ()
    pre_dma = 0
    w_off = None; t_off = None; sub_stride = 1024
    first_flag = ''
    wreg = staticmethod(ar); wbase = 0
    pub0 = ()
    fine = 0
    bar_frac = 0.3
    stamp_every = 0; tag = ''
    def __init__(self):
        self.steps = []; self.stage_units = {}; self.stage_slot = {}; self.tok_units = {}; self.tok_slot = {}
        self.late = {}
    lead_D = None
    s_start = None
    gates = ()
    tile_of = staticmethod(lambda key: key)
    def lead_init(self, k, s_r, s_tmp):
        D = self.lead_D
        for m in range(4):
            d = self.s_dl + m
            k(f"s_sub_u32 s{s_tmp}, {m}, s{s_r}\ns_and_b32 s{s_tmp}, s{s_tmp}, 3")
            k(f"s_cmp_eq_u32 s{s_tmp}, 1\ns_cselect_b32 s{d}, {2+D}, {1+D}")
            k(f"s_cmp_eq_u32 s{s_tmp}, 0\ns_cselect_b32 s{d}, 0, s{d}")
    def pos_txt(self, s_dst, kt):
        KT = self.KT
        pow2 = KT & (KT - 1) == 0
        if self.lead_D is not None:
            assert self.s_start is None
            if kt < 2 + self.lead_D:
                return [f"s_sub_u32 s{s_dst}, {kt + KT}, s{self.s_dl + kt % 4}", f"s_sub_u32 s{self.s_ptmp}, s{s_dst}, {KT}", f"s_min_u32 s{s_dst}, s{s_dst}, s{self.s_ptmp}"]
            return [f"s_sub_u32 s{s_dst}, {kt}, s{self.s_dl + kt % 4}"]
        base, mask = self.wins[kt]
        if mask == 0:
            if self.s_start is None: return [f"s_mov_b32 s{s_dst}, {base}"]
            o = [f"s_add_u32 s{s_dst}, s{self.s_start}, {base}"]
        else:
            o = [f"s_add_u32 s{s_dst}, s{self.s_rot if mask > 3 else self.s_rot2}, {kt - base}", f"s_and_b32 s{s_dst}, s{s_dst}, {mask}"]
            if base: o.append(f"s_add_u32 s{s_dst}, s{s_dst}, {base}")
            if self.s_start is None: return o
            o.append(f"s_add_u32 s{s_dst}, s{s_dst}, s{self.s_start}")
        if pow2: o.append(f"s_and_b32 s{s_dst}, s{s_dst}, {KT-1}")
        else: o += [f"s_sub_u32 s{self.s_ptmp}, s{s_dst}, {KT}", f"s_min_u32 s{s_dst}, s{s_dst}, s{self.s_ptmp}"]
        return o
    def pos_items(self, s_dst, kt, stride):
        return [T(x) for x in self.pos_txt(s_dst, kt)] + [T(f"s_mul_i32 s{s_dst}, s{s_dst}, {stride}")]
    def _dma_list(self):
        return [(s, i) for s in sorted(self.stage_units) for i in range(len(self.stage_units[s]))]
    def prefetch(self, k, n):
        for s, i in self._dma_list()[self.pre_dma:self.pre_dma + n]:
            for x in self.stage_units[s][i]:
                if x.kind == "vm": k("s_nop 0")
                k(x.txt)
        self.pre_dma += n
    def prefetch_txt(self, n):
        t = Txt(); self.prefetch(t, n); return [x for x in t.L if x != "s_nop 0"]

    def run(self, k):
        c = self
        N = len(c.steps)
        sfirst, slast, tfirst, tlast = {}, {}, {}, {}
        for i, st in enumerate(c.steps):
            for s in st["stages"]: sfirst.setdefault(s, i); slast[s] = i
            for t in st["toks"]: tfirst.setdefault(t, i); tlast[t] = i
        bars = {}
        for s, f in sfirst.items():
            if s not in c.pub0: bars.setdefault(f - 1, []).append(s)
        barsteps = sorted(bars)
        units = {"dma": [], "tok": []}
        prev = {}
        skip = c.pre_dma
        for s in sorted(c.stage_units):
            sl = c.stage_slot[s]
            e = -1 if sl not in prev else min(b for b in barsteps if b >= slast[prev[sl]])
            prev[sl] = s
            for i, u in enumerate(c.stage_units[s]):
                if skip: skip -= 1; assert e == -1; continue
                units["dma"].append((sfirst[s] - 1, e, "dma", u))
        prev = {}
        for key in sorted(c.tok_units, key=lambda q: (tfirst[q], q)):
            sl = c.tok_slot[key]
            e = -1 if sl not in prev else tlast[prev[sl]] + 1
            e = max(e, tfirst[key] - c.lookahead, -1)
            prev[sl] = key
            for u in c.tok_units[key]: units["tok"].append((tfirst[key], e, "tok", u, c.tile_of(key)))
        issue = {}
        pos, cnt, cap = -1, 0, c.pro_units
        rate = c.ramp_rate if callable(c.ramp_rate) else (lambda s: c.ramp_rate)
        while units["dma"] or units["tok"]:
            cand = [q[0] for q in units.values() if q and q[0][1] <= pos]
            if cand and cnt < cap:
                u = min(cand, key=lambda u: (u[0], 0 if u[2] == "dma" else 1))
                issue.setdefault(pos, []).append(u); units[u[2]].pop(0); cnt += 1
                assert pos < u[0] or pos == -1, ("late unit", u[:3], pos)
            else:
                pos += 1; cnt = 0; cap = rate(pos)
        gate_at = {}
        for gt, gp, gi in c.gates:
            gs_ = min(st for st, us in issue.items() if any(u[2] == "tok" and u[4] >= gt for u in us))
            assert gs_ >= 1 and gs_ not in gate_at, gs_
            gate_at[gs_] = (gp, gi)
        def read_items(step):
            out = []
            for j, (va, o0, o1, _) in enumerate(c.steps[step]["frags"]):
                for r, off in enumerate((o0, o1)):
                    assert 0 <= off < 65536, off
                    out.append(Item("ds", f"ds_read_b64_tr_b16 {c.wreg(c.wbase+c.wf(step % 2, j)+2*r,2)}, v{va} offset:{off}", (step, j)))
            return out
        def bar(step): return [WVM([("dma", s) for s in bars[step]], lgkm=(0 if c.fine else None)), T("s_barrier")]
        def conv(x):
            if isinstance(x, Item): return x
            return VM(x, ("extra", 0)) if is_vm(x) else T(x)
        pro = []
        for u in issue.get(-1, []):
            for x in u[3]:
                if x.kind == "vm" and x.txt.endswith("lds"): pro.append(T("s_nop 0"))
                pro.append(x)
        pro += [conv(x) for x in c.pre_loop_txt]
        pro += (bar(-1) if -1 in bars else []) + read_items(0)
        touched = set(c.acc_init) if hasattr(c, "acc_init") else set()
        def make_step(step):
            st = c.steps[step]
            newt = [("tok", t) for t in st["toks"] if tfirst[t] == step]
            out = [WVM(newt, lgkm=0)] if not c.fine else ([WVM(newt)] if newt else [])
            mf = []
            pre = {}
            nf = len(st["frags"])
            for j, (_, _, _, ms) in enumerate(st["frags"]):
                if c.fine and j % c.fine == 0: pre[len(mf)] = Item("wds", None, (step, min(nf - 1, j + c.fine - 1)))
                for acc, tr in (ms if j % 2 == 0 else ms[::-1]):
                    cin = acc if acc in touched else "0"
                    touched.add(acc)
                    mf.append(T(f"{MF} {acc}, {c.wreg(c.wbase+c.wf(step%2, j),4)}, {ar(tr,4)}, {cin}"))
            n = len(mf)
            gaps = [[] for _ in range(n)]
            g0 = 0
            if step in bars:
                gb = int(n * c.bar_frac) if c.fine else 0
                gaps[gb] += bar(step); g0 = gb + 1
            us = issue.get(step, [])
            a = [u for u in us if u[2] == "dma"]; b_ = [u for u in us if u[2] == "tok"]
            if us and min(u[0] for u in us) > step + 1:
                seq = []
                while a or b_:
                    if b_: seq.append(b_.pop(0))
                    if a: seq.append(a.pop(0))
            else: seq = us
            B = []
            if step in gate_at: B += [conv(x) for x in gate_at[step][1]]
            for u in seq: B += u[3]
            B += [conv(x) for x in c.late.get(step, [])]
            if step + 1 in gate_at: B = B[:len(gate_at[step][1]) if step in gate_at else 0] + [conv(x) for x in gate_at[step + 1][0]] + B[len(gate_at[step][1]) if step in gate_at else 0:]
            A = read_items(step + 1) if step + 1 < N else [T(x) for x in c.last_reads]
            X = [conv(x) for x in (c.step_extra(step) if c.step_extra else [])]
            want = []
            ra = max(1, n - (0 if c.fine else c.read_margin) - g0)
            for i, x in enumerate(A): want.append((g0 + i * ra / len(A), 0, i, x))
            for i, x in enumerate(B): want.append((g0 + (i + 0.5) * (n - g0) / len(B), 1, i, x))
            for i, x in enumerate(X): want.append((g0 + (i + 0.25) * (n - g0) / len(X), 2, i, x))
            want.sort(key=lambda w: (w[0], w[1], w[2]))
            cap = max(1, -(-len(want) // (n - g0)))
            g = g0
            for pos_, _, _, x in want:
                g = max(g, min(n - 1, int(pos_)))
                while g < n - 1 and len(gaps[g]) >= cap: g += 1
                gaps[g].append(x)
            for i in range(n):
                if i in pre: out.append(pre[i])
                out.append(mf[i])
                prev = None
                for x in gaps[i]:
                    if x.kind == "vm" and x.txt.endswith("lds") and prev is not None and prev.txt and " m0," in prev.txt:
                        out.append(T("s_nop 0"))
                    out.append(x); prev = x
            return out
        issued = []
        ds = []
        def emit(items):
            for x in items:
                if x.kind == "wds":
                    idx = [i for i, kk in enumerate(ds) if kk == x.key]
                    if idx:
                        n = min(15, len(ds) - 1 - idx[-1])
                        k(f"s_waitcnt lgkmcnt({n})")
                        del ds[:len(ds) - n]
                elif x.kind == "wvm":
                    if x.lgkm == 0: ds.clear()
                    n = 63
                    for key in x.key:
                        idx = [i for i, kk in enumerate(issued) if kk == key]
                        n = min(n, len(issued) - 1 - idx[-1] if idx else len(issued))
                    parts = ([f"vmcnt({n})"] if x.key else []) + ([f"lgkmcnt({x.lgkm})"] if x.lgkm is not None else [])
                    k("s_waitcnt " + " ".join(parts))
                else:
                    if x.kind == "vm": issued.append(x.key)
                    if x.kind == "ds": ds.append(x.key)
                    if any(d in x.txt for d in c.drop): continue
                    k(x.txt)
        emit(pro)
        for s in range(N):
            if c.stamp_every and s % c.stamp_every == 0: k.stamp(f"{c.tag} step {s}")
            emit(make_step(s))

def std_sched(c):
    NB, TB, KS, SPK, KT, NS, R = c.NB, c.TB, c.KS, c.SPK, c.KT, c.NS, c.R
    for kt in range(KT):
        us = []
        sw = c.s_kw + kt % 2
        for i, (vo, loff, goff) in enumerate(c.dma):
            g = (c.w_off(sw, kt) if c.w_off else c.pos_items(sw, kt, c.w_stride)) if i == 0 else []
            g += [T(f"s_add_u32 m0, s{c.s_wbase}, {c.slot_addr(kt % NS) + loff - goff}"),
                  VM(f"buffer_load_dwordx4 v{vo}, {sr(c.srd_w,4)}, s{sw} offen" + (f" offset:{goff}" if goff else "") + (c.first_flag if c.wins[kt][0] == kt else "") + " lds", ("dma", kt))]
            us.append(g)
        c.stage_units[kt] = us; c.stage_slot[kt] = kt % NS
        for sp in range(SPK):
            step = kt * SPK + sp
            us = []
            st_ = c.s_kt + kt % 2
            for ks in range(KS):
                for t in range(TB):
                    g = (c.t_off(st_, kt) if c.t_off else c.pos_items(st_, kt, SPK * KS * 1024)) if (sp == 0 and ks == 0 and t == 0) else []
                    g.append(VM(f"buffer_load_dwordx4 {ar(c.tf(step % R, ks, t),4)}, v{c.v_tok[t]}, {sr(c.srd_t,4)}, s{st_} offen offset:{(sp*KS+ks)*c.sub_stride} sc1", ("tok", step)))
                    us.append(g)
            c.tok_units[step] = us; c.tok_slot[step] = step % R
            frags = []
            for ks in range(KS):
                for b in range(NB):
                    va, o0 = c.rd(kt % NS, b, sp * KS + ks, 0); _, o1 = c.rd(kt % NS, b, sp * KS + ks, 1)
                    frags.append((va, o0, o1, [(c.acc(b, t), c.tf(step % R, ks, t)) for t in range(TB)]))
            c.steps.append(dict(frags=frags, stages=[kt], toks=[step]))
    c.wf = lambda buf, j: (buf * NB * KS + j) * 4
    c.tile_of = lambda key: key // SPK
```

```python
import sys
from asmlib import *
from gemm import *
from layout import *
LOG2E = 1.4426950408889634
P_X, P_WQKV, P_WPHI, P_WO, P_W1, P_W3, P_W2, P_OUT, P_WS = 4, 6, 8, 10, 14, 16, 18, 24, 28
P_DBG, S_MB, S_MO = 96, 77, 79
P_C, P_WMOD = 12, 98
S_WAVE, S_XCD, S_IDX = 3, 30, 31
SRD_W, SRD_T, SRD_A, SRD_B, SRD_C, SRD_D, SRD_F = 32, 36, 40, 44, 48, 52, 56
S_KW, S_KT, S_WB, S_ROT, S_TMP, S_ROT2 = 60, 62, 76, 77, 78, 79
S_RB1, S_HP, S_RB2, S_NT, S_RB3, S_FT = 26, 27, 26, 27, 22, 23
S_R8, S_R4 = 20, 21
VSTAMP = 255
L_WPH, L_UTC = 110592, 105472
L_UT3, L_MV, L_R2 = 114688, 128000, 129792
LDS_TOTAL = 163584

class Mega(Kernel):
    nst = 0
    only = None
    def stamp(self, name=""):
        if not self.instr: return
        if self.only is not None and not any(name.startswith(o) for o in self.only): return
        if self.only is None and name[:3] in ("kp ", "qp "): return
        self("s_waitcnt lgkmcnt(0)\ns_memrealtime s[0:1]\ns_waitcnt lgkmcnt(0)")
        self(f"v_writelane_b32 v{VSTAMP}, s0, {self.nst}")
        self("s_nop 3\ns_memtime s[0:1]\ns_waitcnt lgkmcnt(0)")
        self(f"v_writelane_b32 v{VSTAMP}, s0, {self.nst + 32}")
        self.names.append(name); self.nst += 1

def lane_id(k, v):
    k(f"v_mbcnt_lo_u32_b32 v{v}, -1, 0\nv_mbcnt_hi_u32_b32 v{v}, -1, v{v}")

def code_prefetch_setup(k, name, s_pc=100):
    lab = k.label("pc")
    k(f"s_getpc_b64 s[{s_pc}:{s_pc+1}]")
    k(f"{lab}:")
    k(f"s_sub_u32 s{s_pc}, s{s_pc}, {lab}-{name}\ns_subb_u32 s{s_pc+1}, s{s_pc+1}, 0")
def code_prefetch_txt(name, v_l16, vt, s_tmp, s_idx=S_IDX, s_wave=S_WAVE, s_pc=100, junk="a232"):
    return [f"s_lshl_b32 s{s_tmp}, s{s_idx}, 2", f"s_add_u32 s{s_tmp}, s{s_tmp}, s{s_wave}", f"s_lshl_b32 s{s_tmp}, s{s_tmp}, 10",
            f"v_add_u32 v{vt}, s{s_tmp}, v{v_l16}", f"v_min_u32 v{vt}, {name}_end-{name}-4, v{vt}",
            f"global_load_dword {junk}, v{vt}, s[{s_pc}:{s_pc+1}]"]

def count_vm(k, mark):
    return sum(1 for x in k.L[mark:] if is_vm(x))
def publish(k, s_off, vt, mark=None):
    k(f"v_mov_b32 v{vt}, 1\nv_mov_b32 v{vt+1}, 0")
    n = 0 if mark is None else count_vm(k, mark)
    assert n < 64
    k(f"s_waitcnt vmcnt({n})")
    k(f"buffer_store_dword v{vt}, v{vt+1}, {sr(SRD_F,4)}, s{s_off} offen sc1")

def spin(k, loads, regs, vt, s_cnt=96):
    top, ok = k.label("poll"), k.label("ok")
    k(f"s_mov_b32 s{s_cnt}, 0")
    k(f"{top}:")
    for x in loads: k(x)
    k("s_waitcnt vmcnt(0)")
    if len(regs) == 1: k(f"v_cmp_eq_u32 vcc, 0, v{regs[0]}")
    else:
        k(f"v_min_u32 v{vt}, v{regs[0]}, v{regs[1]}")
        for x in regs[2:]: k(f"v_min_u32 v{vt}, v{vt}, v{x}")
        k(f"v_cmp_eq_u32 vcc, 0, v{vt}")
    k(f"s_add_u32 s{s_cnt}, s{s_cnt}, 1")
    k(f"s_cmp_eq_u64 vcc, 0\ns_cbranch_scc1 {ok}")
    k(f"s_sleep {SLEEP}\ns_cmp_lt_u32 s{s_cnt}, 0x40000\ns_cbranch_scc1 {top}")
    k(f"{ok}:")

def wait_flags(k, polls, vt, s_cnt=96):
    top, ok = k.label("poll"), k.label("ok")
    k(f"s_mov_b32 s{s_cnt}, 0")
    k(f"{top}:")
    r = vt
    regs = []
    for va, so, ndw in polls:
        if ndw == 4: r = (r + 1) // 2 * 2
        k(f"buffer_load_dword{'x4' if ndw == 4 else ''} {vr(r,ndw)}, v{va}, {sr(SRD_F,4)}, s{so} offen sc1")
        regs += list(range(r, r + ndw)); r += ndw
    k("s_waitcnt vmcnt(0)")
    for x in regs[1:]: k(f"v_min_u32 v{regs[0]}, v{regs[0]}, v{x}")
    k(f"v_cmp_eq_u32 vcc, 0, v{regs[0]}")
    k(f"s_add_u32 s{s_cnt}, s{s_cnt}, 1")
    k(f"s_cmp_eq_u64 vcc, 0\ns_cbranch_scc1 {ok}")
    k(f"s_sleep {SLEEP}\ns_cmp_lt_u32 s{s_cnt}, 0x40000\ns_cbranch_scc1 {top}")
    k(f"{ok}:")

def staged_wait(k, c, T_, v_addr, s_off, vf, prod_of, dup16=False, skip_first=0, s_m=97, pub=None):
    ld = f"buffer_load_dword v{vf}, v{v_addr}, {sr(SRD_F,4)}, s{s_off} offen sc1"
    if T_ is None:
        spin(k, [ld], [vf], 0); return
    k(f"s_mov_b32 s{s_m}, 0")
    for kt in range(skip_first, T_):
        for x in c.pos_txt(80, kt): k(x)
        for x in prod_of(80, 81): k(x)
        k(f"s_or_b32 s{s_m}, s{s_m}, s81")
    if dup16: k(f"s_lshl_b32 s81, s{s_m}, 16\ns_or_b32 s{s_m}, s{s_m}, s81")
    top, ok = k.label("poll"), k.label("ok")
    if pub:
        mk = len(k.L); k(ld); publish(k, pub[0], pub[1], mk)
        k("s_waitcnt vmcnt(1)")
        k(f"v_cmp_eq_u32 vcc, 0, v{vf}\ns_nop 0")
        k(f"s_and_b32 s81, vcc_lo, s{s_m}\ns_cbranch_scc0 {ok}")
    k(f"s_mov_b32 s96, 0\n{top}:")
    k(ld)
    k("s_waitcnt vmcnt(0)")
    k(f"v_cmp_eq_u32 vcc, 0, v{vf}")
    k("s_add_u32 s96, s96, 1")
    k(f"s_and_b32 s81, vcc_lo, s{s_m}\ns_cbranch_scc0 {ok}")
    k(f"s_sleep {SLEEP}\ns_cmp_lt_u32 s96, 0x40000\ns_cbranch_scc1 {top}")
    k(f"{ok}:")
    add_gate(k, c, T_, ld, vf)
def add_gate(k, c, tile, ld, vf):
    m = Txt(); m.label = k.label
    okl = k.label("gok")
    m(f"v_cmp_eq_u32 vcc, 0, v{vf}\ns_cmp_eq_u64 vcc, 0\ns_cbranch_scc1 {okl}")
    spin(m, [ld], [vf], 0)
    m(f"{okl}:")
    c.gates = list(c.gates) + [(tile, [VM(ld, ("gate", tile))], [WVM([("gate", tile)]), T("\n".join(m.L))])]
one_prod = lambda sp, st: [f"s_lshl_b32 s{st}, 1, s{sp}"]

def allreduce_q(k, op, x, tmp):
    k(f"v_mov_b32 v{tmp}, v{x}\ns_nop 1")
    k(f"v_permlane32_swap_b32 v{x}, v{tmp}")
    k(f"s_nop 1\n{op} v{x}, v{x}, v{tmp}")
    k(f"v_mov_b32 v{tmp}, v{x}\ns_nop 1")
    k(f"v_permlane16_swap_b32 v{x}, v{tmp}")
    k(f"s_nop 1\n{op} v{x}, v{x}, v{tmp}")

def treduce4(k, op, A):
    a, b, c, d = A
    k("s_nop 1")
    k(f"v_permlane32_swap_b32 v{a}, v{b}\nv_permlane32_swap_b32 v{c}, v{d}")
    k("s_nop 1")
    k(f"{op} v{a}, v{a}, v{b}\n{op} v{c}, v{c}, v{d}")
    k("s_nop 1")
    k(f"v_permlane16_swap_b32 v{a}, v{c}")
    k("s_nop 1")
    k(f"{op} v{a}, v{a}, v{c}")
    k(f"v_mov_b32 v{c}, v{a}")
    k("s_nop 1")
    k(f"v_permlane16_swap_b32 v{a}, v{c}")
    k("s_nop 1")
    k(f"v_mov_b32 v{b}, v{a}\nv_mov_b32 v{d}, v{c}")
    k("s_nop 1")
    k(f"v_permlane32_swap_b32 v{a}, v{b}\nv_permlane32_swap_b32 v{c}, v{d}")
    k("s_nop 1")

def treduce4x2(k, ops, As):
    A, B = Txt(), Txt()
    treduce4(A, ops[0], As[0]); treduce4(B, ops[1], As[1])
    def split(L):
        out, cur = [], []
        for x in L:
            if x.startswith("s_nop"): out.append(cur); cur = []
            else: cur.append(x)
        out.append(cur); return out
    for a, b in zip(split(A.L), split(B.L)):
        for x in a + b: k(x)
        k("s_nop 0" if len(a) >= 1 else "s_nop 1")

def red8(k, x):
    for m in ("quad_perm:[1,0,3,2]", "quad_perm:[2,3,0,1]", "row_half_mirror"):
        k(f"s_nop 1\nv_add_f32_dpp v{x}, v{x}, v{x} {m} row_mask:0xf bank_mask:0xf")

def round_bf16(k, v):
    k(f"v_cvt_pk_bf16_f32 v{v}, v{v}, v{v}\nv_and_b32 v{v}, 0xffff0000, v{v}")

S_DLA, S_DLB, S_PTMP = 71, 6, 75
def order(c, k, opt, tag, default):
    o = opt.get(tag + "_ord", default)
    c.first_flag = opt.get(tag + "_ff", "")
    c.tag = tag; c.stamp_every = opt.get(tag + "_se", 0)
    c.fine = opt.get(tag + "_fine", opt.get("fine", 0)); c.bar_frac = opt.get("bar_frac", 0.3)
    c.s_rot, c.s_rot2 = S_R8, S_R4
    if o[0] == "lead":
        c.lead_D, c.s_dl = o[1], S_DLA
    else:
        c.wins = win_mask(o[1])
        if o[2]:
            c.s_start = S_HP
            c.s_rot = c.s_rot2 = S_RB3
def common_gemm(c):
    c.srd_w, c.srd_t = SRD_W, SRD_T
    c.s_kw, c.s_kt, c.s_wbase, c.s_ptmp = S_KW, S_KT, S_WB, S_PTMP

def setup_gemm1(k, opt):
    c = Sched(); common_gemm(c)
    NS, R = opt.get("g1_NS", 4), opt.get("g1_R", 4)
    STAGE = 25344
    c.V_RD, c.V_DMA, c.V_TOK, c.LANE, c.L16, c.VT = 96, 98, 102, 104, 105, 106
    V_RD, V_DMA, V_TOK, LANE, L16, VT = c.V_RD, c.V_DMA, c.V_TOK, c.LANE, c.L16, 110
    k(f"v_lshlrev_b32 v{L16}, 4, v{LANE}")
    c.lead_D, c.s_dl = opt.get("D", 0), S_DLA
    if opt.get("uselead", 0): c.lead_init(k, S_R4, 81)
    c.lead_D = None
    order(c, k, opt, "g1", ["win", [8, 8], 0])
    k(f"s_lshr_b32 s80, s{S_WAVE}, 1\ns_and_b32 s81, s{S_WAVE}, 1")
    k(f"v_lshrrev_b32 v{VT+1}, 3, v{LANE}")
    k(f"v_and_b32 v{VT+2}, 4, v{VT+1}")
    k(f"v_bfe_u32 v{VT+3}, v{VT+1}, 1, 1\nv_or_b32 v{VT+2}, v{VT+2}, v{VT+3}")
    k(f"v_and_b32 v{VT+3}, 1, v{VT+1}\nv_lshl_or_b32 v{VT+2}, v{VT+3}, 1, v{VT+2}")
    k(f"v_mul_u32_u24 v{VT+2}, {4*6144}, v{VT+2}")
    k(f"v_and_b32 v{VT+3}, 7, v{LANE}\nv_lshl_add_u32 v{VT+2}, v{VT+3}, 4, v{VT+2}")
    k("s_lshl_b32 s82, s80, 5\ns_lshl_b32 s83, s81, 1\ns_add_u32 s82, s82, s83\ns_mul_i32 s82, s82, 6144")
    k(f"s_lshl_b32 s83, s{S_HP}, 7\ns_add_u32 s82, s82, s83")
    k(f"v_add_u32 v{V_DMA}, s82, v{VT+2}")
    k(f"v_add_u32 v{V_DMA+1}, 6144, v{V_DMA}\nv_add_u32 v{V_DMA+2}, 4096, v{V_DMA}\nv_add_u32 v{V_DMA+3}, {6144+4096}, v{V_DMA}")
    k(f"v_bfe_u32 v{VT+1}, v{LANE}, 2, 2\nv_mul_u32_u24 v{VT+1}, 1056, v{VT+1}")
    k(f"v_lshrrev_b32 v{VT+2}, 5, v{LANE}\nv_lshl_add_u32 v{VT+1}, v{VT+2}, 9, v{VT+1}")
    k(f"v_bfe_u32 v{VT+2}, v{LANE}, 4, 1\nv_lshl_add_u32 v{VT+1}, v{VT+2}, 7, v{VT+1}")
    k(f"v_and_b32 v{VT+3}, 3, v{LANE}\nv_lshl_add_u32 v{V_RD}, v{VT+3}, 3, v{VT+1}")
    k(f"v_add_u32 v{V_RD+1}, {2*STAGE}, v{V_RD}")
    k(f"s_lshl_b32 s82, s{S_RB1}, 3\ns_lshl_b32 s83, s{S_WAVE}, 1\ns_add_u32 s82, s82, s83\ns_lshl_b32 s82, s82, 15")
    k(f"v_add_u32 v{V_TOK}, s82, v{L16}\nv_add_u32 v{V_TOK+1}, 0x8000, v{V_TOK}")
    k(f"s_mul_i32 s{S_WB}, s80, 4224\ns_mul_i32 s82, s81, 2112\ns_add_u32 s{S_WB}, s{S_WB}, s82")
    c.NB, c.TB, c.KS, c.SPK, c.KT, c.NS, c.R = 12, 2, 1, 2, 16, NS, R
    c.acc = lambda b, t: vr((b * 2 + t) * 4, 4)
    c.tf = lambda slot, ks, t: 96 + (slot * 2 + t) * 4
    c.rd = lambda sl, b, sub, r: (V_RD + sl // 2, (sl % 2) * STAGE + (b // 4) * 8448 + sub * 4224 + r * 256 + (b % 4) * 32)
    c.slot_addr = lambda sl: sl * STAGE
    c.dma = [(V_DMA, 0, 0), (V_DMA + 1, 1056, 0), (V_DMA, 8448, 2048), (V_DMA + 1, 8448 + 1056, 2048), (V_DMA + 2, 16896, 0), (V_DMA + 3, 16896 + 1056, 0)]
    c.v_tok = [V_TOK, V_TOK + 1]
    c.w_stride = 64 * 6144
    c.drop = opt.get("g1_drop", ())
    c.pro_units, c.ramp_rate, c.read_margin = opt.get("g1_pro", 6), opt.get("g1_ramp", 6), opt.get("g1_rm", 6)
    std_sched(c)
    return c

def setup_gemm1s(k, opt):
    c = Sched(); common_gemm(c)
    HS = 8448; STAGE = 2 * HS
    c.V_RD, c.V_DMA, c.V_TOK, c.LANE, c.L16, c.VT = 96, 98, 102, 104, 105, 106
    V_RD, V_DMA, V_TOK, LANE, L16, VT = c.V_RD, c.V_DMA, c.V_TOK, c.LANE, c.L16, 110
    k(f"v_lshlrev_b32 v{L16}, 4, v{LANE}")
    order(c, k, opt, "g1", ["win", [8, 8], 0])
    k(f"s_lshr_b32 s80, s{S_WAVE}, 1\ns_and_b32 s81, s{S_WAVE}, 1")
    k(f"v_lshrrev_b32 v{VT+1}, 3, v{LANE}")
    k(f"v_and_b32 v{VT+2}, 4, v{VT+1}")
    k(f"v_bfe_u32 v{VT+3}, v{VT+1}, 1, 1\nv_or_b32 v{VT+2}, v{VT+2}, v{VT+3}")
    k(f"v_and_b32 v{VT+3}, 1, v{VT+1}\nv_lshl_or_b32 v{VT+2}, v{VT+3}, 1, v{VT+2}")
    k(f"v_mul_u32_u24 v{VT+2}, {4*6144}, v{VT+2}")
    k(f"v_and_b32 v{VT+3}, 7, v{LANE}\nv_lshl_add_u32 v{VT+2}, v{VT+3}, 4, v{VT+2}")
    k("s_lshl_b32 s82, s80, 5\ns_lshl_b32 s83, s81, 1\ns_add_u32 s82, s82, s83\ns_mul_i32 s82, s82, 6144")
    k(f"s_lshl_b32 s83, s{S_HP}, 7\ns_add_u32 s82, s82, s83")
    k(f"v_add_u32 v{V_DMA}, s82, v{VT+2}")
    k(f"v_add_u32 v{V_DMA+1}, 6144, v{V_DMA}\nv_add_u32 v{V_DMA+2}, 2048, v{V_DMA}\nv_add_u32 v{V_DMA+3}, {6144+2048}, v{V_DMA}")
    k(f"v_bfe_u32 v{VT+1}, v{LANE}, 2, 2\nv_mul_u32_u24 v{VT+1}, 1056, v{VT+1}")
    k(f"v_lshrrev_b32 v{VT+2}, 5, v{LANE}\nv_lshl_add_u32 v{VT+1}, v{VT+2}, 9, v{VT+1}")
    k(f"v_bfe_u32 v{VT+2}, v{LANE}, 4, 1\nv_lshl_add_u32 v{VT+1}, v{VT+2}, 7, v{VT+1}")
    k(f"v_and_b32 v{VT+3}, 3, v{LANE}\nv_lshl_add_u32 v{V_RD}, v{VT+3}, 3, v{VT+1}")
    k(f"v_add_u32 v{V_RD+1}, {2*STAGE}, v{V_RD}")
    k(f"s_lshl_b32 s82, s{S_RB1}, 3\ns_lshl_b32 s83, s{S_WAVE}, 1\ns_add_u32 s82, s82, s83\ns_lshl_b32 s82, s82, 15")
    k(f"v_add_u32 v{V_TOK}, s82, v{L16}\nv_add_u32 v{V_TOK+1}, 0x8000, v{V_TOK}")
    k(f"s_mul_i32 s{S_WB}, s80, 4224\ns_mul_i32 s82, s81, 2112\ns_add_u32 s{S_WB}, s{S_WB}, s82")
    c.NB, c.TB, c.KS, c.SPK, c.KT, c.NS, c.R = 8, 2, 1, 2, 16, 4, 32
    c.acc = lambda b, t: vr(32 + (b * 2 + t) * 4, 4)
    c.tf = lambda slot, ks, t: (slot * 2 + t) * 4
    c.rd = lambda sl, b, sub, r: (V_RD + sl // 2, (sl % 2) * STAGE + (b // 4) * HS + sub * 4224 + r * 256 + (b % 4) * 32)
    c.slot_addr = lambda sl: sl * STAGE
    c.dma = [(V_DMA + 2, 0, 0), (V_DMA + 3, 1056, 0), (V_DMA + 2, HS, 2048), (V_DMA + 3, HS + 1056, 2048)]
    c.v_tok = [V_TOK, V_TOK + 1]
    c.w_stride = 64 * 6144
    c.drop = opt.get("g1_drop", ())
    c.pro_units, c.ramp_rate, c.read_margin, c.lookahead = opt.get("g1_pro", 8), opt.get("g1_ramp", 5), 4, opt.get("g1_la", 6)
    c.wreg, c.wbase = vr, 128
    std_sched(c)
    q = Sched(); common_gemm(q)
    q.KT = 16; order(q, k, opt, "g1", ["win", [8, 8], 0]); q.tag = "g1b"; q.stamp_every = opt.get("g1b_se", 0)
    q.s_kw = 70
    QS = [67584 + i * HS for i in range(5)] + [L_R2 + i * HS for i in range(4)] + [i * HS for i in range(7)]
    q.Q1, q.Q2 = V_RD + 1, V_TOK
    def base(kt): return (q.Q1, 67584) if kt < 5 else ((q.Q2, L_R2) if kt < 9 else (V_RD, 0))
    for kt in range(16):
        sw = q.s_kw + kt % 2
        q.stage_units[kt] = [q.pos_items(sw, kt, c.w_stride) + [T(f"s_add_u32 m0, s{S_WB}, {QS[kt]}"), VM(f"buffer_load_dwordx4 v{V_DMA}, {sr(SRD_W,4)}, s{sw} offen lds", ("dma", kt))],
                             [T(f"s_add_u32 m0, s{S_WB}, {QS[kt] + 1056}"), VM(f"buffer_load_dwordx4 v{V_DMA+1}, {sr(SRD_W,4)}, s{sw} offen lds", ("dma", kt))]]
        q.stage_slot[kt] = kt
        va, b0 = base(kt)
        frags = [(va, QS[kt] - b0 + sub * 4224 + b * 32, QS[kt] - b0 + sub * 4224 + 256 + b * 32, [(vr((b * 2 + t) * 4, 4), ((kt * 2 + sub) * 2 + t) * 4) for t in range(2)]) for sub in range(2) for b in range(4)]
        q.steps.append(dict(frags=frags, stages=[kt] if kt != 9 else list(range(9, 16)), toks=[]))
    q.wf = lambda buf, j: (buf * 8 + j) * 4
    q.wreg, q.wbase = vr, 128
    q.pub0 = set(range(9)); q.pro_units = opt.get('q_pro', 2); q.ramp_rate = opt.get('q_ramp', 3); q.read_margin = 4; q.drop = c.drop
    c.q = q
    return c

def merge(a, b, ratio):
    out, b = [], list(b)
    for i, x in enumerate(a):
        out.append(x)
        if b and i % ratio == ratio - 1: out.append(b.pop(0))
    return out + b

def phase_gemm1s(k, c, opt):
    LANE, L16, VT = c.LANE, c.L16, c.VT
    q = c.q
    PHK, VV, SH = 0, 34816, 114688
    p = Txt()
    srd(p, SRD_A, P_WPHI, H * 2048)
    srd(p, SRD_B, P_WS, 2 << 20, WS_KVP)
    srd(p, SRD_C, P_WS, 128 << 10, WS_ZP)
    A_PW, A_VW, A_PR, A_VR, A_WR = 110, 111, 112, 113, 114
    p(f"s_lshr_b32 s80, s{S_WAVE}, 1\ns_and_b32 s81, s{S_WAVE}, 1")
    p(f"v_and_b32 v{VT}, 15, v{LANE}\ns_lshl_b32 s82, s{S_WAVE}, 5\nv_add_u32 v{VT}, s82, v{VT}")
    p(f"v_lshrrev_b32 v{VT+1}, 4, v{LANE}\nv_lshlrev_b32 v{VT+1}, 3, v{VT+1}")
    p(f"v_mul_u32_u24 v{A_PW}, 136, v{VT}\nv_add_u32 v{A_PW}, v{A_PW}, v{VT+1}")
    p(f"v_mul_u32_u24 v{A_VW}, 72, v{VT}\nv_add_u32 v{A_VW}, v{A_VW}, v{VT+1}")
    p(f"v_lshrrev_b32 v{VT}, 2, v{LANE}\nv_and_b32 v{VT+1}, 3, v{LANE}\nv_lshlrev_b32 v{VT+1}, 3, v{VT+1}")
    p(f"s_mul_i32 s82, s80, 17408\ns_lshl_b32 s83, s81, 6\ns_add_u32 s82, s82, s83")
    p(f"v_mul_u32_u24 v{A_PR}, 136, v{VT}\nv_add_u32 v{A_PR}, v{A_PR}, v{VT+1}\nv_add_u32 v{A_PR}, s82, v{A_PR}")
    p(f"s_mul_i32 s82, s80, 9216")
    p(f"v_mul_u32_u24 v{A_VR}, 72, v{VT}\nv_add_u32 v{A_VR}, v{A_VR}, v{VT+1}\nv_add_u32 v{A_VR}, s82, v{A_VR}")
    p(f"v_lshl_add_u32 v{A_WR}, v{VT}, 6, v{VT+1}\nv_add_u32 v{A_WR}, {L_WPH}, v{A_WR}")
    ONES, SEL = 116, 120
    for j in range(4): p(f"v_mov_b32 v{ONES+j}, 0x3f803f80")
    p(f"v_bfe_u32 v{VT}, v{LANE}, 2, 2\nv_lshrrev_b32 v{VT+1}, 4, v{LANE}")
    p(f"v_cmp_eq_u32 vcc, v{VT}, v{VT+1}")
    p(f"v_and_b32 v{VT}, 1, v{LANE}\nv_lshlrev_b32 v{VT}, 4, v{VT}\nv_mov_b32 v{VT+1}, 0x3f80\nv_lshlrev_b32 v{VT+1}, v{VT}, v{VT+1}")
    p(f"v_cndmask_b32 v{VT+1}, 0, v{VT+1}, vcc")
    p(f"v_and_b32 v{VT}, 2, v{LANE}\nv_cmp_eq_u32 vcc, 0, v{VT}")
    for j in (0, 1, 4, 5): p(f"v_mov_b32 v{SEL+j}, 0")
    p(f"v_cndmask_b32 v{SEL+2}, 0, v{VT+1}, vcc\nv_cndmask_b32 v{SEL+3}, v{VT+1}, 0, vcc")
    p(f"s_mov_b32 s94, {LOG2E!r}\ns_mov_b32 s95, {LOG2E!r}")
    p(f"s_lshl_b32 s84, s{S_HP}, 12\ns_lshl_b32 s85, s{S_WAVE}, 10\ns_add_u32 s84, s84, s85\ns_add_u32 s85, s85, {L_WPH}")
    c.pre_loop_txt = p.L
    c.late[4] = ["s_mov_b32 m0, s85", f"buffer_load_dwordx4 v{L16}, {sr(SRD_A,4)}, s84 offen lds"]
    c.late[20] = code_prefetch_txt(k.name, L16, 254, 80, junk="v31")
    ts = opt.get("mt_step", None)
    if ts is not None:
        c.late.setdefault(ts, []).extend([f"v_mul_u32_u24 v254, 12288, v{LANE}", f"buffer_load_dword v31, v254, {sr(SRD_D,4)}, s{S_MB} offen"])
        if opt.get("wo_touch", 1):
            c.late[ts].extend([f"s_lshl_b32 s80, s2, 2", f"s_add_u32 s80, s80, s{S_WAVE}", "s_lshl_b32 s80, s80, 11",
                               f"v_and_b32 v254, 15, v{LANE}", "v_lshlrev_b32 v254, 7, v254", "v_add_u32 v254, s80, v254", f"global_load_dword v31, v254, s[{P_WO}:{P_WO+1}]"])
    nq = opt.get("q_in", 10)
    for j in range(nq // 2): c.late.setdefault(32 - nq // 2 + j, []).extend(q.prefetch_txt(2))
    wph_reads = lambda reg, b0: [f"ds_read_b64_tr_b16 {reg(b0+(hh*2+fb)*4+2*r,2)}, v{A_WR} offset:{hh*2048+r*1024+fb*32}" for hh in range(2) for fb in range(2) for r in range(2)]
    c.last_reads = wph_reads(vr, 0)
    c.run(k)
    k.stamp("g1 loop done")
    A = lambda b, t: (b * 2 + t) * 4
    BF, P1, P2, MX, MN, EK = 126, 142, 174, 206, 214, 222
    groups = [(hh, t) for hh in range(2) for t in range(2)]
    def fm_part1(k, seg, ph):
        for g, (hh, t) in enumerate(groups):
            for db in range(2):
                a = A(seg * 4 + hh * 2 + db, t)
                k(f"v_cvt_pk_bf16_f32 v{BF+g*4+db*2}, v{a}, v{a+1}\nv_cvt_pk_bf16_f32 v{BF+g*4+db*2+1}, v{a+2}, v{a+3}")
        k("s_nop 1")
        for g, (hh, t) in enumerate(groups):
            for fb in range(2):
                k(f"{MF} {vr(P1+g*8+fb*4,4)}, {ph(hh*2+fb)}, {vr(BF+g*4,4)}, 0")
    def fm_part2(k):
        for op3, op2, M in (("v_max3_f32", "v_max_f32", MX), ("v_min3_f32", "v_min_f32", MN)):
            for g in range(4):
                b = P1 + g * 8
                k(f"{op3} v{M+2*g}, v{b}, v{b+1}, v{b+2}\n{op3} v{M+2*g}, v{M+2*g}, v{b+3}, v{b+4}\n{op3} v{M+2*g}, v{M+2*g}, v{b+5}, v{b+6}\n{op2} v{M+2*g}, v{M+2*g}, v{b+7}")
        treduce4x2(k, ("v_max_f32", "v_min_f32"), ([MX + 2 * g for g in range(4)], [MN + 2 * g for g in range(4)]))
        for g in range(4):
            k(f"v_mul_f32 v{MX+2*g}, {-LOG2E!r}, v{MX+2*g}\nv_mul_f32 v{MN+2*g}, {LOG2E!r}, v{MN+2*g}")
    def fm_part3(k, E, gs_=range(4)):
        for g in gs_:
            for j in range(4):
                b = g * 8 + 2 * j
                k(f"v_pk_fma_f32 {vr(P2+b,2)}, {vr(P1+b,2)}, s[94:95], {vr(MN+2*g,2)} op_sel_hi:[1,1,0] neg_lo:[1,0,0] neg_hi:[1,0,0]")
                k(f"v_pk_fma_f32 {vr(P1+b,2)}, {vr(P1+b,2)}, s[94:95], {vr(MX+2*g,2)} op_sel_hi:[1,1,0]")
            for j in range(8): k(f"v_exp_f32 v{P1+g*8+j}, v{P1+g*8+j}")
            for j in range(8): k(f"v_exp_f32 v{P2+g*8+j}, v{P2+g*8+j}")
            k("s_nop 0")
            for sg, PP in enumerate((P1, P2)):
                for j in range(4): k(f"v_cvt_pk_bf16_f32 v{E+(g*2+sg)*4+j}, v{PP+g*8+2*j}, v{PP+g*8+2*j+1}")
    mark0 = len(k.L)
    k("s_waitcnt lgkmcnt(0)\ns_nop 7")
    fm_part1(k, 1, lambda i: vr(i * 4, 4))
    k("s_barrier")
    for g, (hh, t) in enumerate(groups):
        for db in range(2):
            a = A(8 + hh * 2 + db, t)
            k(f"v_cvt_pk_bf16_f32 v{a}, v{a}, v{a+1}\nv_cvt_pk_bf16_f32 v{a+1}, v{a+2}, v{a+3}")
            k(f"ds_write_b64 v{A_VW}, {vr(a,2)} offset:{VV + hh*9216 + t*16*72 + db*32}")
    fm_part2(k)
    grp = []
    for j in range(18 - q.pre_dma):
        t_ = q.prefetch_txt(1); grp.append(t_[:-1] + ["s_nop 0", t_[-1]])
    sprinkle(k, mark0, grp, skip=12)
    k.stamp("kp part2")
    fm_part3(k, EK)
    k.stamp("kp part3")
    SM = 32
    k("s_nop 1")
    for i in range(8): k(f"{MF} {vr(SM+4*i,4)}, {vr(ONES,4)}, {vr(EK+4*i,4)}, 0")
    k(f"v_add_u32 v{q.Q1}, 67584, v{c.V_RD}\nv_add_u32 v{q.Q2}, {L_R2}, v{c.V_RD}")
    k("s_nop 5")
    for i in range(8): k(f"v_rcp_f32 v{SM+4*i}, v{SM+4*i}")
    for g, (hh, t) in enumerate(groups):
        for sg, PP in enumerate((P1, P2)):
            for j in range(4):
                k(f"v_pk_mul_f32 {vr(PP+g*8+2*j,2)}, {vr(PP+g*8+2*j,2)}, {vr(SM+(g*2+sg)*4,2)} op_sel_hi:[1,0]")
            for fb in range(2):
                b = PP + g * 8 + fb * 4
                k(f"v_cvt_pk_bf16_f32 v{b}, v{b}, v{b+1}\nv_cvt_pk_bf16_f32 v{b+1}, v{b+2}, v{b+3}")
                k(f"ds_write_b64 v{A_PW}, {vr(b,2)} offset:{PHK + hh*17408 + t*16*136 + sg*64 + fb*32}")
    k.stamp("kp norm")
    k("s_waitcnt lgkmcnt(0)\ns_barrier")
    k.stamp("kp bar")
    FR = 190
    for s_ in range(4):
        for r in range(2):
            for fb in range(2): k(f"ds_read_b64_tr_b16 {vr(FR+s_*16+fb*4+2*r,2)}, v{A_PR} offset:{PHK + (32*s_+16*r)*136 + fb*32}")
            for db in range(2): k(f"ds_read_b64_tr_b16 {vr(FR+s_*16+8+db*4+2*r,2)}, v{A_VR} offset:{VV + (32*s_+16*r)*72 + db*32}")
    k(f"s_lshl_b32 s82, s{S_HP}, 2\ns_add_u32 s82, s82, s{S_WAVE}")
    k("s_lshl_b32 s86, s82, 15")
    k(f"s_lshl_b32 s84, s{S_RB1}, 10\ns_add_u32 s84, s84, s86\ns_add_u32 s85, s84, 16384")
    k("s_lshl_b32 s90, s82, 11")
    k(f"s_lshl_b32 s91, s82, {FS+4}\ns_add_u32 s91, s91, {F_KV}\ns_lshl_b32 s92, s{S_RB1}, {FS}\ns_add_u32 s92, s92, s91")
    k(f"v_and_b32 v{VT}, 15, v{LANE}\nv_cmp_eq_u32 vcc, s{S_RB1}, v{VT}")
    KV, ZZ = 64, 80
    for s_ in range(4):
        k(f"s_waitcnt lgkmcnt({min(15, 24 - 8*s_)})" if s_ < 3 else "s_waitcnt vmcnt(0) lgkmcnt(0)\ns_barrier")
        for fb in range(2):
            for db in range(2):
                d = vr(KV + (db * 2 + fb) * 4, 4)
                k(f"{MF} {d}, {vr(FR+s_*16+fb*4,4)}, {vr(FR+s_*16+8+db*4,4)}, {'0' if s_ == 0 else d}")
            d = vr(ZZ + fb * 4, 4)
            k(f"{MF} {d}, {vr(FR+s_*16+fb*4,4)}, {vr(ONES,4)}, {'0' if s_ == 0 else d}")
    k(f"v_lshlrev_b32 v{VT}, {FS}, v{VT}\nv_mov_b32 v{VT+1}, 1\nv_mov_b32 v{VT+2}, 0")
    k("s_nop 5")
    for db in range(2):
        for j in range(4): k(f"v_cvt_pk_bf16_f32 v{88+db*4+j}, v{KV+db*8+2*j}, v{KV+db*8+2*j+1}")
    k(f"buffer_store_dwordx4 {vr(88,4)}, v{L16}, {sr(SRD_B,4)}, s84 offen sc1")
    k(f"buffer_store_dwordx4 {vr(92,4)}, v{L16}, {sr(SRD_B,4)}, s85 offen sc1")
    k("s_and_saveexec_b64 s[96:97], vcc")
    k(f"buffer_store_dwordx4 {vr(ZZ,4)}, v{L16}, {sr(SRD_C,4)}, s90 offen sc1")
    k(f"buffer_store_dwordx4 {vr(ZZ+4,4)}, v{L16}, {sr(SRD_C,4)}, s90 offen offset:1024 sc1")
    k("s_mov_b64 exec, s[96:97]")
    k.stamp("kv stored")
    KV, ZZ, MW, MC = 72, 88, 32, 64
    q.late[opt.get("kv_ps", 1)] = [WVM([("pre", 0)]), f"buffer_store_dword v{VT+1}, v{VT+2}, {sr(SRD_F,4)}, s92 offen sc1"]
    gs = opt.get("kv_gs", 9)
    ld = f"buffer_load_dword v253, v{VT}, {sr(SRD_F,4)}, s91 offen sc1"
    m = Txt(); m.label = k.label
    okl = k.label("gok")
    m(f"v_cmp_eq_u32 vcc, 0, v253\ns_cmp_eq_u64 vcc, 0\ns_cbranch_scc1 {okl}")
    spin(m, [ld], [253], 0)
    m(f"{okl}:")
    q.late[gs - 2] = [VM(ld, ("kvf", 0))]
    gl = [f"buffer_load_dwordx4 {vr(ZZ,4)}, v{L16}, {sr(SRD_C,4)}, s90 offen sc1", f"buffer_load_dwordx4 {vr(ZZ+4,4)}, v{L16}, {sr(SRD_C,4)}, s90 offen offset:1024 sc1"]
    for i in range(32):
        if i % 4 == 0 and i: gl.append("s_add_u32 s86, s86, 4096")
        gl.append(f"buffer_load_dwordx4 {ar(4*i,4)}, v{L16}, {sr(SRD_B,4)}, s86 offen offset:{(i%4)*1024} sc1")
    n3 = -(-len(gl) // 3)
    q.late[gs] = [WVM([("kvf", 0)]), T("\n".join(m.L))] + gl[:n3]
    q.late[gs + 1] = gl[n3:2*n3]; q.late[gs + 2] = gl[2*n3:]
    t2 = Txt()
    g2 = setup_gemm24(t2, 2, opt, (110, 111, 112, LANE, L16, 98))
    q.late[5] = t2.L[:len(t2.L)//2]; q.late[6] = t2.L[len(t2.L)//2:] + [f"global_load_ushort v{MC+i}, v109, s[{P_C}:{P_C+1}] offset:{i*16}" for i in range(8)]
    assert gs - 2 > 6
    younger = []
    younger += g2.prefetch_txt(8)
    mbl = []
    for i in range(8): mbl += [f"buffer_load_dwordx4 {vr(MW+4*i,4)}, v115, {sr(SRD_D,4)}, s{S_MB} offen", f"s_add_u32 s{S_MB}, s{S_MB}, {8*12288}"]
    mpos = opt.get("mpos", "tail")
    if mpos == "tail": younger += mbl
    ny = sum(1 for x in younger if is_vm(x))
    rest = list(range(gs + 3, 16)); per = -(-len(younger) // len(rest))
    for j, st_ in enumerate(rest): q.late[st_] = younger[j*per:(j+1)*per]
    A_PH = 128
    q.last_reads = wph_reads(ar, A_PH)
    q.run(k)
    k.stamp("g1b done")
    srd(k, SRD_T, P_WS, S * D * 2, WS_O)
    k("s_waitcnt lgkmcnt(0)\ns_nop 3")
    qa = Txt(); fm_part1(qa, 0, lambda i: ar(A_PH + i * 4, 4))
    qa(f"s_waitcnt vmcnt({min(63, ny + 32)})")
    for sh in (8, 4, 2, 1):
        for j in range(8): qa(f"v_add_f32_dpp v{ZZ+j}, v{ZZ+j}, v{ZZ+j} row_ror:{sh} row_mask:0xf bank_mask:0xf")
    for x in qa.L: k(x)
    k.stamp("qp a")
    hs = g2.hs
    qb = Txt(); fm_part2(qb); fm_part3(qb, EK, range(2) if hs else range(4))
    red = []
    for i in range(32):
        db, pp = divmod(i, 16)
        for fb in range(2):
            d = vr(KV + (db * 2 + fb) * 4, 4)
            red.append((f"s_waitcnt vmcnt({ny + 28 - i})\n" if (i % 4 == 0 and fb == 0) else "") + f"{MF} {d}, {vr(SEL + (2 if fb == 0 else 0), 4)}, {ar(4*i,4)}, {'0' if pp == 0 else d}")
    cut = opt.get("q_cut", 150) if not hs else len(qb.L)
    for x in merge(qb.L[:cut], red, 2): k(x)
    if hs:
        k("s_nop 3")
        qb = Txt(); fm_part3(qb, EK, [2]); cut = 0
    k.stamp("qp merged")
    k(f"s_mul_i32 s82, s{S_WAVE}, 3072\ns_add_u32 s82, s82, {SH}")
    k(f"v_add_u32 v{VT+1}, s82, v{L16}\nv_add_u32 v{VT+2}, {SH}, v{L16}")
    k(f"v_and_b32 v{VT}, 1, v{LANE}\nv_cmp_eq_u32 vcc, 0, v{VT}")
    k("s_nop 4")
    for j in range(12): k(f"v_cvt_pk_bf16_f32 v{KV+j}, v{KV+2*j}, v{KV+2*j+1}")
    for j in range(4): k(f"v_cndmask_b32 v{KV+8+j}, v{ONES}, v{KV+8+j}, vcc")
    for j in range(3): k(f"ds_write_b128 v{VT+1}, {vr(KV+4*j,4)} offset:{j*1024}")
    for x in (merge(qb.L[cut:], mbl, 2) if mpos == "q" else qb.L[cut:]): k(x)
    k.stamp("qp rest")
    k("s_waitcnt lgkmcnt(0)\ns_barrier")
    k.stamp("qp bar")
    for i in range(12): k(f"ds_read_b128 {ar(4*i,4)}, v{VT+2} offset:{i*1024}")
    k(f"s_lshl_b32 s82, s{S_RB1}, 3\ns_lshl_b32 s83, s{S_WAVE}, 1\ns_add_u32 s82, s82, s83\ns_lshl_b32 s82, s82, 15")
    k(f"s_lshl_b32 s83, s{S_HP}, 11\ns_add_u32 s82, s82, s83\ns_add_u32 s83, s82, 0x8000")
    k(f"s_lshl_b32 s84, s{S_RB1}, 2\ns_add_u32 s84, s84, s{S_WAVE}\ns_lshl_b32 s84, s84, {FS+4}\ns_lshl_b32 s85, s{S_HP}, {FS}\ns_add_u32 s84, s84, s85\ns_add_u32 s84, s84, {F_O}")
    k("s_waitcnt lgkmcnt(0)")
    NB_ = 126
    def nbase(g): return NB_ + g * 24 if (not hs or g >= 2) else None
    def oregs(g):
        if hs and g < 2: return (0, 12) if g == 0 else (72, 84)
        return (NB_ + g * 24, NB_ + g * 24 + 12)
    def o_mfma(gl):
        for g in gl:
            hh, t = groups[g]
            for sg in range(2):
                for j in range(3):
                    k(f"{MF} {vr(oregs(g)[sg]+4*j,4)}, {ar(((hh*2+sg)*3+j)*4,4)}, {vr(EK+(g*2+sg)*4,4)}, 0")
    def o_fin(gl):
        for g in gl:
            hh, t = groups[g]
            n1, n2 = oregs(g)
            D1, S1, D2, S2 = n1 + 8, n1 + 9, n2 + 8, n2 + 9
            k(f"v_mul_f32 v{n1+10}, v{S1}, v{S2}")
            k(f"v_mul_f32 v{n1+10}, 0x358637bd, v{n1+10}")
            k(f"v_fmac_f32 v{n1+10}, v{D1}, v{S2}\nv_fmac_f32 v{n1+10}, v{D2}, v{S1}")
            k(f"v_rcp_f32 v{n1+10}, v{n1+10}")
            k("s_nop 0")
            k(f"v_mul_f32 v{D1}, v{S2}, v{n1+10}\nv_mul_f32 v{D2}, v{S1}, v{n1+10}")
            for j in range(4): k(f"v_pk_mul_f32 {vr(n1+2*j,2)}, {vr(n1+2*j,2)}, {vr(D1,2)} op_sel_hi:[1,0]")
            for j in range(4): k(f"v_pk_fma_f32 {vr(n1+2*j,2)}, {vr(n2+2*j,2)}, {vr(D2,2)}, {vr(n1+2*j,2)} op_sel_hi:[1,0,1]")
            for j in range(4): k(f"v_cvt_pk_bf16_f32 v{n2+j}, v{n1+2*j}, v{n1+2*j+1}")
            k(f"buffer_store_dwordx4 {vr(n2,4)}, v{L16}, {sr(SRD_T,4)}, s{82+t} offen offset:{hh*1024} sc1")
    if hs:
        o_mfma([0, 1]); k("s_nop 7"); o_fin([0, 1])
        mk0 = len(k.L)
        fm_part3(k, EK, [3])
        k("s_nop 1")
        o_mfma([2, 3]); k("s_nop 7")
        publish(k, 84, VT + 1, mk0)
        k(f"s_add_u32 s95, s84, {F_O2 - F_O}")
        o_fin([2, 3])
    else:
        o_mfma(range(4)); k("s_nop 7"); o_fin(range(4))
    k.stamp("o stored")
    mko = len(k.L)
    g2.V_X = 178
    srd(k, SRD_A, P_X, S * D * 2)
    V_XA = 100
    k(f"v_lshrrev_b32 v{VT+1}, 4, v{LANE}")
    k(f"v_and_b32 v{VT+2}, 15, v{LANE}\nv_lshlrev_b32 v{VT+2}, 11, v{VT+2}\nv_lshl_add_u32 v{V_XA}, v{VT+1}, 3, v{VT+2}")
    k(f"s_lshl_b32 s82, s{S_RB2}, 3\ns_lshl_b32 s83, s{S_WAVE}, 1\ns_add_u32 s82, s82, s83\ns_lshl_b32 s82, s82, 15\ns_lshl_b32 s83, s{S_NT}, 7\ns_add_u32 s82, s82, s83\ns_add_u32 s83, s82, 32768")
    for t in range(2):
        for b in range(4):
            k(f"buffer_load_dwordx2 {vr(g2.V_X+(t*4+b)*2,2)}, v{V_XA}, {sr(SRD_A,4)}, s{82+t} offen offset:{b*32}")
    k.g3 = setup_gemm3_early(k, opt, LANE, 20)
    if not hs: publish(k, 84, VT + 1, mko)
    k.stamp("o published")
    mark1 = len(k.L)
    CU, AU, TT = 0, 16, 24
    for i in range(8): k(f"v_mov_b32 v{CU+2*i}, v{MC+i}")
    silu_block(k, [CU + 2 * i for i in range(8)])
    for i in range(8):
        for d in range(4):
            k(f"v_lshlrev_b32 v{TT}, 16, v{MW+4*i+d}\nv_and_b32 v{TT+1}, 0xffff0000, v{MW+4*i+d}")
            if i == 0: k(f"v_pk_mul_f32 {vr(AU+2*d,2)}, {vr(TT,2)}, {vr(CU,2)} op_sel_hi:[1,0]")
            else: k(f"v_pk_fma_f32 {vr(AU+2*d,2)}, {vr(TT,2)}, {vr(CU+2*i,2)}, {vr(AU+2*d,2)} op_sel_hi:[1,0,1]")
    k("s_nop 1")
    for j in range(4): k(f"v_permlane32_swap_b32 v{AU+j}, v{AU+j+4}")
    k("s_nop 1")
    for j in range(4): k(f"v_add_f32 v{AU+j}, v{AU+j}, v{AU+j+4}")
    k("s_nop 1")
    for j in range(2): k(f"v_permlane16_swap_b32 v{AU+j}, v{AU+j+2}")
    k("s_nop 1")
    for j in range(2): k(f"v_add_f32 v{AU+j}, v{AU+j}, v{AU+j+2}")
    k("s_nop 1")
    for j in range(2): k(f"v_add_f32_dpp v{AU+j}, v{AU+j}, v{AU+j} row_ror:8 row_mask:0xf bank_mask:0xf")
    sprinkle(k, mark1, g3_early_units(k.g3, opt.get("g3_e2", 7), 254), skip=0)
    k(f"v_and_b32 v{TT}, 7, v{LANE}\nv_lshlrev_b32 v{TT}, 5, v{TT}\nv_lshrrev_b32 v{TT+1}, 5, v{LANE}\nv_lshl_add_u32 v{TT}, v{TT+1}, 4, v{TT}")
    k(f"v_bfe_u32 v{TT+1}, v{LANE}, 4, 1\nv_lshl_add_u32 v{TT}, v{TT+1}, 3, v{TT}")
    srd(k, SRD_D, P_WS, MP_BYTES, WS_MODP)
    k(f"v_or_b32 v{AU}, 1, v{AU}\nv_or_b32 v{AU+1}, 1, v{AU+1}")
    k(f"buffer_store_dwordx2 {vr(AU,2)}, v{TT}, {sr(SRD_D,4)}, s{S_MO} offen sc1")
    return g2

A_UT = 176
def silu_block(k, regs):
    for v in regs: k(f"v_lshlrev_b32 v{v}, 16, v{v}\nv_mul_f32 v{v+1}, {-LOG2E!r}, v{v}")
    for v in regs: k(f"v_exp_f32 v{v+1}, v{v+1}")
    k("s_nop 0")
    for v in regs: k(f"v_add_f32 v{v+1}, 1.0, v{v+1}")
    for v in regs: k(f"v_rcp_f32 v{v+1}, v{v+1}")
    k("s_nop 0")
    for v in regs:
        k(f"v_mul_f32 v{v}, v{v}, v{v+1}"); round_bf16(k, v)

def modb_loads(s_off, v_w, v_c):
    out = []
    for i in range(8):
        out.append([f"buffer_load_dwordx4 {ar(A_UT+4*i,4)}, v{v_w}, {sr(SRD_D,4)}, s{s_off} offen", f"s_add_u32 s{s_off}, s{s_off}, {8*12288}"])
    return out

def red32(k, x, t):
    red8(k, x)
    k(f"s_nop 1\nv_add_f32_dpp v{x}, v{x}, v{x} row_mirror row_mask:0xf bank_mask:0xf")
    k(f"v_mov_b32 v{t}, v{x}\ns_nop 1\nv_permlane16_swap_b32 v{x}, v{t}\ns_nop 1\nv_add_f32 v{x}, v{x}, v{t}")

def ids(k):
    k("v_lshrrev_b32 v1, 6, v0")
    k(f"s_and_b32 s{S_XCD}, s2, 7\ns_lshr_b32 s{S_IDX}, s2, 3")
    k(f"v_readfirstlane_b32 s{S_WAVE}, v1")
    k(f"s_bfe_u32 s{S_RB1}, s{S_XCD}, 0x10001\ns_lshl_b32 s{S_RB1}, s{S_RB1}, 3\ns_lshr_b32 s80, s{S_IDX}, 2\ns_add_u32 s{S_RB1}, s{S_RB1}, s80")
    k(f"s_lshr_b32 s{S_HP}, s{S_XCD}, 2\ns_lshl_b32 s{S_HP}, s{S_HP}, 2\ns_and_b32 s80, s{S_IDX}, 3\ns_add_u32 s{S_HP}, s{S_HP}, s80\ns_lshl_b32 s{S_HP}, s{S_HP}, 1\ns_and_b32 s80, s{S_XCD}, 1\ns_add_u32 s{S_HP}, s{S_HP}, s80")

def build_k0(instr=False, opt=None, name="mod_kernel", mega="mega_kernel"):
    opt = opt or {}
    k = Kernel(name, 256, 256, 4096, vgpr=128, sgpr=102)
    k.instr = instr; k.s_wave = S_WAVE
    stamp(k, 0)
    end = k.label("end")
    k(f"s_cmp_ge_u32 s2, 256\ns_cbranch_scc1 {end}")
    k("s_load_dwordx4 s[12:15], s[0:1], 64")
    k("s_load_dwordx8 s[4:11], s[0:1], 0")
    k("s_load_dwordx2 s[28:29], s[0:1], 96")
    ids(k)
    LANE, T, V_W = 104, 48, 105
    WA, CA, XR, XF, A0, SU = 64, 80, 84, 0, 32, 100
    k(f"v_and_b32 v{LANE}, 63, v0")
    k(f"v_lshrrev_b32 v{T+1}, 3, v{LANE}\nv_and_b32 v{T+2}, 7, v{LANE}")
    k(f"v_mul_u32_u24 v{V_W}, 12288, v{T+1}\nv_lshl_add_u32 v{V_W}, v{T+2}, 4, v{V_W}")
    k(f"s_lshl_b32 s64, s{S_RB1}, 6\ns_lshl_b32 s65, s{S_WAVE}, 4\ns_add_u32 s64, s64, s65")
    k(f"v_add_u32 v{T+3}, s64, v{T+1}\nv_lshlrev_b32 v{T+3}, 1, v{T+3}")
    k(f"s_mul_i32 s67, s64, 12288\ns_lshl_b32 s66, s{S_HP}, 7\ns_add_u32 s67, s67, s66\ns_add_u32 s68, s67, {8*12288}")
    k(f"v_lshrrev_b32 v{T+4}, 5, v{LANE}\nv_lshlrev_b32 v{T+4}, 11, v{T+4}\nv_and_b32 v{T+5}, 31, v{LANE}\nv_lshl_add_u32 v{T+4}, v{T+5}, 4, v{T+4}")
    k(f"s_lshl_b32 s69, s{S_RB1}, 4\ns_add_u32 s69, s69, s{S_HP}")
    k(f"s_lshl_b32 s70, s69, 14\ns_lshl_b32 s71, s{S_WAVE}, 12\ns_add_u32 s70, s70, s71")
    k("s_waitcnt lgkmcnt(0)")
    srd(k, SRD_D, 14, D * 6 * D * 2)
    srd(k, SRD_A, P_X, S * D * 2)
    for i in range(2): k(f"global_load_ushort v{CA+2*i}, v{T+3}, s[12:13] offset:{i*16}")
    for i in range(2):
        for v in range(2): k(f"buffer_load_dwordx4 {vr(WA+(i*2+v)*4,4)}, v{V_W}, {sr(SRD_D,4)}, s{67+i} offen offset:{v*2048}")
    for i in range(4): k(f"buffer_load_dwordx4 {vr(XR+4*i,4)}, v{T+4}, {sr(SRD_A,4)}, s70 offen offset:{i*512}")
    stamp(k, 1)
    lab = k.label("pc")
    k(f"s_getpc_b64 s[60:61]\n{lab}:")
    k(f"s_add_u32 s60, s60, {mega}-{lab}\ns_addc_u32 s61, s61, 0")
    k(f"v_lshlrev_b32 v{T+6}, 4, v{LANE}")
    for x in code_prefetch_txt(mega, T + 6, T + 7, 62, s_pc=60, junk="v110"): k(x)
    srd(k, SRD_B, P_WS, MP_BYTES, WS_MODP)
    srd(k, SRD_F, P_WS, FLAG_BYTES, WS_FLAG)
    srd(k, SRD_C, P_WS, S * 128, WS_STAT)
    k(f"v_mov_b32 v{T+8}, 0\nv_lshlrev_b32 v{T+9}, 2, v0\ns_lshl_b32 s62, s2, 10\ns_add_u32 s63, s62, {MP_B}")
    k(f"v_lshlrev_b32 v{T+10}, {FS}, v0\ns_lshl_b32 s66, s2, {FS+8}")
    k(f"buffer_store_dword v{T+8}, v{T+10}, {sr(SRD_F,4)}, s66 offen")
    k(f"buffer_store_dword v{T+8}, v{T+9}, {sr(SRD_C,4)}, s62 offen")
    k(f"buffer_store_dword v{T+8}, v{T+9}, {sr(SRD_B,4)}, s63 offen")
    young = 4
    k(f"s_lshl_b32 s62, s2, 2\ns_add_u32 s62, s62, s{S_WAVE}")
    for ptr, per, tag in ((P_WQKV, 6, "t_wq"), (P_WO, 2, "t_wo"), (14, 12, "t_wm")):
        if not opt.get(tag, 1): continue
        k(f"s_mul_i32 s63, s62, {per*1024}\ns_add_u32 s63, s63, 384")
        k(f"v_min_u32 v{T+14}, {per-1}, v{LANE}\nv_lshlrev_b32 v{T+14}, 10, v{T+14}\nv_add_u32 v{T+14}, s63, v{T+14}")
        k(f"global_load_dword v110, v{T+14}, s[{ptr}:{ptr+1}]")
        young += 1
    k(f"s_waitcnt vmcnt({young + 8})")
    silu_block(k, [CA, CA + 2])
    k(f"s_waitcnt vmcnt({young + 4})")
    for i in range(2):
        for v in range(2):
            for d in range(4):
                w_ = WA + (i * 2 + v) * 4 + d
                k(f"v_lshlrev_b32 v{T+10}, 16, v{w_}\nv_and_b32 v{T+11}, 0xffff0000, v{w_}")
                if i == 0: k(f"v_pk_mul_f32 {vr(A0+v*8+2*d,2)}, {vr(T+10,2)}, {vr(CA,2)} op_sel_hi:[1,0]")
                else: k(f"v_pk_fma_f32 {vr(A0+v*8+2*d,2)}, {vr(T+10,2)}, {vr(CA+2,2)}, {vr(A0+v*8+2*d,2)} op_sel_hi:[1,0,1]")
    k("s_nop 1")
    for j in range(8): k(f"v_permlane32_swap_b32 v{A0+j}, v{A0+8+j}")
    k("s_nop 1")
    for j in range(8): k(f"v_add_f32 v{A0+j}, v{A0+j}, v{A0+8+j}")
    k("s_nop 1")
    for j in range(4): k(f"v_permlane16_swap_b32 v{A0+j}, v{A0+4+j}")
    k("s_nop 1")
    for j in range(4): k(f"v_add_f32 v{A0+j}, v{A0+j}, v{A0+4+j}")
    k("s_nop 1")
    for j in range(4): k(f"v_add_f32_dpp v{A0+j}, v{A0+j}, v{A0+j} row_ror:8 row_mask:0xf bank_mask:0xf")
    k(f"v_lshrrev_b32 v{T+12}, 5, v{LANE}\nv_lshlrev_b32 v{T+13}, 8, v{T+12}\nv_lshl_add_u32 v{T+13}, v{T+2}, 5, v{T+13}")
    k(f"v_bfe_u32 v{T+10}, v{LANE}, 4, 1\nv_lshl_add_u32 v{T+13}, v{T+10}, 4, v{T+13}\ns_lshl_b32 s62, s{S_WAVE}, 9\nv_add_u32 v{T+13}, s62, v{T+13}")
    k(f"ds_write_b128 v{T+13}, {vr(A0,4)}")
    k("s_waitcnt lgkmcnt(0)\ns_barrier")
    nw0 = k.label("notw0")
    k(f"s_cmp_lg_u32 s{S_WAVE}, 0\ns_cbranch_scc1 {nw0}")
    k(f"v_lshlrev_b32 v{T+13}, 3, v{LANE}")
    for w in range(4): k(f"ds_read_b64 {vr(A0+2*w,2)}, v{T+13} offset:{w*512}")
    k(f"s_lshl_b32 s62, s{S_HP}, 13\ns_lshl_b32 s63, s{S_RB1}, 9\ns_add_u32 s63, s63, s62")
    k("s_waitcnt lgkmcnt(0)")
    k(f"v_pk_add_f32 {vr(A0,2)}, {vr(A0,2)}, {vr(A0+2,2)}\nv_pk_add_f32 {vr(A0+4,2)}, {vr(A0+4,2)}, {vr(A0+6,2)}\nv_pk_add_f32 {vr(A0,2)}, {vr(A0,2)}, {vr(A0+4,2)}")
    k(f"buffer_store_dwordx2 {vr(A0,2)}, v{T+13}, {sr(SRD_B,4)}, s63 offen")
    k(f"{nw0}:")
    stamp(k, 2)
    k(f"s_waitcnt vmcnt({young})")
    for d in range(16): k(f"v_lshlrev_b32 v{XF+2*d}, 16, v{XR+d}\nv_and_b32 v{XF+2*d+1}, 0xffff0000, v{XR+d}")
    k(f"v_pk_add_f32 {vr(SU,2)}, {vr(XF,2)}, {vr(XF+2,2)}")
    for d in range(2, 16): k(f"v_pk_add_f32 {vr(SU,2)}, {vr(SU,2)}, {vr(XF+2*d,2)}")
    k(f"v_add_f32 v{SU}, v{SU}, v{SU+1}")
    red32(k, SU, SU + 1)
    k(f"v_mul_f32 v{SU+2}, {-1.0/1024!r}, v{SU}")
    k(f"v_mov_b32 v{SU}, 0\nv_mov_b32 v{SU+1}, 0")
    for d in range(16):
        k(f"v_pk_add_f32 {vr(XF+2*d,2)}, {vr(XF+2*d,2)}, {vr(SU+2,2)} op_sel_hi:[1,0]")
        k(f"v_pk_fma_f32 {vr(SU,2)}, {vr(XF+2*d,2)}, {vr(XF+2*d,2)}, {vr(SU,2)}")
    k(f"v_add_f32 v{SU}, v{SU}, v{SU+1}")
    red32(k, SU, SU + 1)
    k(f"v_mov_b32 v{SU+1}, 0x3727c5ac\nv_fmac_f32 v{SU+1}, {1.0/1024!r}, v{SU}\nv_rsq_f32 v{SU+3}, v{SU+1}")
    k(f"s_lshl_b32 s62, s69, 6\ns_lshl_b32 s63, s{S_WAVE}, 4\ns_add_u32 s62, s62, s63\ns_add_u32 s62, s62, {MP_RS}\nv_lshlrev_b32 v{T+12}, 3, v{T+12}")
    k(f"buffer_store_dwordx2 {vr(SU+2,2)}, v{T+12}, {sr(SRD_B,4)}, s62 offen")
    stamp(k, 3)
    if instr: k("s_waitcnt vmcnt(0)")
    stamp(k, 4)
    stamp_flush(k, 28, 5, 4, slot=1)
    k(f"{end}:\ns_endpgm")
    return k

def phase_front_fused(k, opt, name):
    LANE, L16 = 104, 105
    T = 48
    V_W, V_C = 115, 109
    WA, CA, XR, XT_, XF, A0, SU, G, M, RS = 64, 80, 128, 144, 0, 200, 216, 160, 32, 84
    HL = 2 * 25344
    k(f"v_lshrrev_b32 v{T+1}, 3, v{LANE}\nv_and_b32 v{T+2}, 7, v{LANE}")
    k(f"v_mul_u32_u24 v{V_W}, 12288, v{T+1}\nv_lshl_add_u32 v{V_W}, v{T+2}, 4, v{V_W}")
    k(f"s_lshl_b32 s84, s{S_RB1}, 6")
    k(f"v_add_u32 v{V_C}, s84, v{T+1}\nv_lshlrev_b32 v{V_C}, 1, v{V_C}")
    k(f"s_lshl_b32 s85, s{S_WAVE}, 5\nv_add_u32 v{T+3}, s85, v{V_C}")
    k(f"s_mul_i32 s86, s84, 12288\ns_lshl_b32 s87, s{S_HP}, 7\ns_add_u32 s86, s86, s87")
    k(f"s_mul_i32 s87, s{S_WAVE}, {16*12288}\ns_add_u32 s87, s87, s86\ns_add_u32 s88, s87, {8*12288}")
    k(f"v_lshrrev_b32 v{T+4}, 5, v{LANE}\nv_lshlrev_b32 v{T+4}, 11, v{T+4}\nv_and_b32 v{T+5}, 31, v{LANE}\nv_lshl_add_u32 v{T+4}, v{T+5}, 4, v{T+4}")
    k(f"s_lshl_b32 s89, s{S_RB1}, 4\ns_add_u32 s89, s89, s{S_HP}")
    k(f"s_lshl_b32 s90, s89, 14\ns_lshl_b32 s91, s{S_WAVE}, 12\ns_add_u32 s90, s90, s91")
    k(f"v_mov_b32 v{T+8}, 0\nv_mov_b32 v{T+9}, 0\nv_mov_b32 v{T+10}, 0\nv_mov_b32 v{T+11}, 0\nv_mov_b32 v{T+12}, 1")
    k(f"v_lshlrev_b32 v{T+7}, {FS}, v{LANE}")
    k(f"s_lshl_b32 s93, s2, {FS+6}\ns_add_u32 s93, s93, {F_S0}\ns_cmp_lt_u32 s2, 4\ns_cselect_b32 s93, s93, 0x7ff00000\ns_cmp_eq_u32 s{S_WAVE}, 3\ns_cselect_b32 s93, s93, 0x7ff00000")
    k("s_waitcnt lgkmcnt(0)")
    srd(k, SRD_F, P_WS, FLAG_BYTES, WS_FLAG)
    k(f"buffer_store_dword v{T+8}, v{T+7}, {sr(SRD_F,4)}, s93 offen sc1")
    k(f"s_mov_b32 s{SRD_T}, s{P_DBG}\ns_mov_b32 s{SRD_T+1}, s{P_DBG+1}\ns_mov_b32 s{SRD_T+2}, 256\ns_mov_b32 s{SRD_T+3}, 0x20000")
    k("s_mov_b32 s95, s93")
    srd(k, SRD_D, P_WMOD, D * 6 * D * 2)
    srd(k, SRD_A, P_X, S * D * 2)
    for i in range(2): k(f"global_load_ushort v{CA+2*i}, v{T+3}, s[{P_C}:{P_C+1}] offset:{i*16}")
    for i in range(2):
        for v in range(2): k(f"buffer_load_dwordx4 {vr(WA+(i*2+v)*4,4)}, v{V_W}, {sr(SRD_D,4)}, s{87+i} offen offset:{v*2048}")
    for i in range(4): k(f"buffer_load_dwordx4 {vr(XR+4*i,4)}, v{T+4}, {sr(SRD_A,4)}, s90 offen offset:{i*512}")
    k.stamp("loads issued")
    srd(k, SRD_B, P_WS, MP_BYTES, WS_MODP)
    srd(k, SRD_C, P_WS, S * 128, WS_STAT)
    w3, jn = k.label("w3"), k.label("join")
    k(f"s_cmp_eq_u32 s{S_WAVE}, 3\ns_cbranch_scc1 {w3}")
    k(f"s_lshl_b32 s92, s2, 1\ns_add_u32 s92, s92, s{S_WAVE}\ns_sub_u32 s92, s92, 1")
    nt_ = k.label("notouch")
    k("s_mov_b32 s93, 0x7ff00000")
    for i in range(2): k(f"buffer_load_dword a233, v{V_W}, {sr(SRD_D,4)}, s93 offen")
    k(f"s_cmp_eq_u32 s{S_WAVE}, 0\ns_cbranch_scc1 {nt_}")
    for ptr, per in ((P_WQKV, 12), (P_WO, 4), (P_WMOD, 24)):
        k(f"s_mul_i32 s93, s92, {per}\nv_min_u32 v{T+14}, {per-1}, v{LANE}\nv_add_u32 v{T+14}, s93, v{T+14}")
        k(f"v_lshlrev_b32 v{T+14}, 10, v{T+14}")
        k(f"global_load_dword a232, v{T+14}, s[{ptr}:{ptr+1}] offset:384")
    k(f"s_branch {jn}")
    k(f"{nt_}:")
    for i in range(3): k(f"buffer_load_dword a233, v{V_W}, {sr(SRD_D,4)}, s93 offen")
    k(f"s_branch {jn}")
    k(f"{w3}:")
    nb = k.label("nboot")
    k(f"s_cmp_eq_u32 s95, 0x7ff00000\ns_cbranch_scc1 {nb}")
    k("s_lshl_b32 s93, s2, 2\ns_waitcnt vmcnt(10)")
    k(f"buffer_store_dword v{T+12}, v{T+8}, {sr(SRD_T,4)}, s93 offen sc1")
    k(f"{nb}:")
    k(f"v_and_b32 v{T+14}, 3, v{LANE}\nv_lshlrev_b32 v{T+14}, 4, v{T+14}")
    k(f"s_lshl_b32 s93, s{S_RB1}, 6\ns_add_u32 s93, s93, s{S_HP}\nv_add_u32 v{T+15}, s93, v{T+14}")
    k(f"s_lshl_b32 s93, s{S_HP}, 6\ns_add_u32 s93, s93, s{S_RB1}\ns_add_u32 s93, s93, 1024\nv_add_u32 v{T+14}, s93, v{T+14}")
    k(f"v_cmp_gt_u32 vcc, 4, v{LANE}\ns_mul_i32 s93, s2, 24\ns_add_u32 s93, s93, 2040")
    k(f"v_cndmask_b32 v{T+14}, v{T+14}, v{T+15}, vcc\nv_add_u32 v{T+15}, s93, v{LANE}")
    k(f"v_cmp_gt_u32 vcc, 8, v{LANE}\ns_nop 1\nv_cndmask_b32 v{T+14}, v{T+15}, v{T+14}, vcc")
    k(f"v_cmp_gt_u32 vcc, 32, v{LANE}\nv_mov_b32 v{T+15}, 0x100000\ns_nop 0\nv_cndmask_b32 v{T+14}, v{T+15}, v{T+14}, vcc")
    k(f"v_lshlrev_b32 v{T+14}, {FS}, v{T+14}")
    k(f"buffer_store_dword v{T+8}, v{T+14}, {sr(SRD_F,4)}, 0 offen sc1")
    k("s_mov_b32 s93, 0x7ff00000")
    for i in range(2): k(f"buffer_load_dword a233, v{V_W}, {sr(SRD_D,4)}, s93 offen")
    k("s_lshl_b32 s93, s2, 10")
    k(f"buffer_store_dwordx4 {vr(T+8,4)}, v{L16}, {sr(SRD_C,4)}, s93 offen sc1")
    k(f"s_add_u32 s93, s93, {MP_B}")
    k(f"buffer_store_dwordx4 {vr(T+8,4)}, v{L16}, {sr(SRD_B,4)}, s93 offen sc1")
    k(f"{jn}:")
    k(f"v_lshlrev_b32 v{T+5}, 11, v{T+1}\nv_lshl_add_u32 v{T+5}, v{T+2}, 4, v{T+5}")
    k(f"s_lshl_b32 s91, s{S_RB1}, 18\ns_lshl_b32 s92, s{S_WAVE}, 16\ns_add_u32 s91, s91, s92\ns_lshl_b32 s92, s{S_HP}, 7\ns_add_u32 s91, s91, s92")
    for i in range(4):
        k(f"buffer_load_dwordx4 {vr(XT_+4*i,4)}, v{T+5}, {sr(SRD_A,4)}, s91 offen")
        if i < 3: k("s_add_u32 s91, s91, 16384")
    k(f"s_lshl_b32 s94, s{S_WAVE}, 11\ns_add_u32 s{S_MB}, s86, s94\ns_add_u32 s{S_MB}, s{S_MB}, 4096")
    k(f"s_lshl_b32 s94, s{S_WAVE}, 16\ns_lshl_b32 s95, s{S_HP}, 12\ns_add_u32 s94, s94, s95\ns_lshl_b32 s95, s{S_RB1}, 8\ns_add_u32 s94, s94, s95\ns_add_u32 s{S_MO}, s94, {MP_B}")
    young = 9
    k.stamp("all issued")
    k(f"s_waitcnt vmcnt({young + 8})")
    k.stamp("c ready")
    silu_block(k, [CA, CA + 2])
    k(f"s_waitcnt vmcnt({young + 4})")
    k.stamp("w ready")
    for i in range(2):
        for v in range(2):
            for d in range(4):
                w_ = WA + (i * 2 + v) * 4 + d
                k(f"v_lshlrev_b32 v{T+14}, 16, v{w_}\nv_and_b32 v{T+15}, 0xffff0000, v{w_}")
                if i == 0: k(f"v_pk_mul_f32 {vr(A0+v*8+2*d,2)}, {vr(T+14,2)}, {vr(CA,2)} op_sel_hi:[1,0]")
                else: k(f"v_pk_fma_f32 {vr(A0+v*8+2*d,2)}, {vr(T+14,2)}, {vr(CA+2,2)}, {vr(A0+v*8+2*d,2)} op_sel_hi:[1,0,1]")
    k("s_nop 1")
    for j in range(8): k(f"v_permlane32_swap_b32 v{A0+j}, v{A0+8+j}")
    k("s_nop 1")
    for j in range(8): k(f"v_add_f32 v{A0+j}, v{A0+j}, v{A0+8+j}")
    k("s_nop 1")
    for j in range(4): k(f"v_permlane16_swap_b32 v{A0+j}, v{A0+4+j}")
    k("s_nop 1")
    for j in range(4): k(f"v_add_f32 v{A0+j}, v{A0+j}, v{A0+4+j}")
    k("s_nop 1")
    for j in range(4): k(f"v_add_f32_dpp v{A0+j}, v{A0+j}, v{A0+j} row_ror:8 row_mask:0xf bank_mask:0xf")
    k(f"v_lshrrev_b32 v{T+13}, 5, v{LANE}\nv_lshlrev_b32 v{T+14}, 8, v{T+13}\nv_lshl_add_u32 v{T+14}, v{T+2}, 5, v{T+14}")
    k(f"v_bfe_u32 v{T+15}, v{LANE}, 4, 1\nv_lshl_add_u32 v{T+14}, v{T+15}, 4, v{T+14}\ns_lshl_b32 s94, s{S_WAVE}, 9\nv_add_u32 v{T+14}, s94, v{T+14}")
    k(f"ds_write_b128 v{T+14}, {vr(A0,4)} offset:{HL}")
    k(f"s_waitcnt vmcnt({young})")
    for d in range(16): k(f"v_lshlrev_b32 v{XF+2*d}, 16, v{XR+d}\nv_and_b32 v{XF+2*d+1}, 0xffff0000, v{XR+d}")
    k(f"v_pk_add_f32 {vr(SU,2)}, {vr(XF,2)}, {vr(XF+2,2)}")
    for d in range(2, 16): k(f"v_pk_add_f32 {vr(SU,2)}, {vr(SU,2)}, {vr(XF+2*d,2)}")
    k(f"v_add_f32 v{SU}, v{SU}, v{SU+1}")
    red32(k, SU, SU + 1)
    k(f"v_mul_f32 v{SU+2}, {-1.0/1024!r}, v{SU}")
    k(f"v_mov_b32 v{SU}, 0\nv_mov_b32 v{SU+1}, 0")
    for d in range(16):
        k(f"v_pk_add_f32 {vr(XF+2*d,2)}, {vr(XF+2*d,2)}, {vr(SU+2,2)} op_sel_hi:[1,0]")
        k(f"v_pk_fma_f32 {vr(SU,2)}, {vr(XF+2*d,2)}, {vr(XF+2*d,2)}, {vr(SU,2)}")
    k(f"v_add_f32 v{SU}, v{SU}, v{SU+1}")
    red32(k, SU, SU + 1)
    k(f"v_mov_b32 v{SU+1}, 0x3727c5ac\nv_fmac_f32 v{SU+1}, {1.0/1024!r}, v{SU}\nv_rsq_f32 v{SU+3}, v{SU+1}")
    k(f"s_lshl_b32 s94, s{S_WAVE}, 4\nv_lshlrev_b32 v{T+13}, 3, v{T+13}\nv_add_u32 v{T+13}, s94, v{T+13}")
    k(f"ds_write_b64 v{T+13}, {vr(SU+2,2)} offset:{HL+2048}")
    n3 = k.label("not3")
    k(f"s_cmp_lg_u32 s{S_WAVE}, 3\ns_cbranch_scc1 {n3}")
    k(f"v_and_b32 v{T+14}, 3, v{LANE}\nv_lshlrev_b32 v{T+14}, 2, v{T+14}")
    spin(k, [f"buffer_load_dword v{T+13}, v{T+14}, {sr(SRD_T,4)}, 0 offen sc1"], [T + 13], 0)
    k(f"{n3}:")
    k("s_waitcnt lgkmcnt(0)\ns_barrier")
    k.stamp("partials")
    nw0 = k.label("notw0")
    k(f"v_lshlrev_b32 v{T+6}, 3, v{LANE}")
    k(f"s_cmp_lg_u32 s{S_WAVE}, 0\ns_cbranch_scc1 {nw0}")
    for w in range(4): k(f"ds_read_b64 {vr(A0+2*w,2)}, v{T+6} offset:{HL+w*512}")
    k(f"v_and_b32 v{T+9}, 0x38, v{T+6}")
    k(f"ds_read_b64 {vr(A0+8,2)}, v{T+9} offset:{HL+2048}")
    k(f"s_lshl_b32 s94, s{S_HP}, 13\ns_lshl_b32 s95, s{S_RB1}, 9\ns_add_u32 s95, s95, s94")
    k(f"s_lshl_b32 s90, s89, 6\ns_add_u32 s90, s90, {MP_RS}")
    k("s_waitcnt lgkmcnt(0)")
    k(f"v_pk_add_f32 {vr(A0,2)}, {vr(A0,2)}, {vr(A0+2,2)}\nv_pk_add_f32 {vr(A0+4,2)}, {vr(A0+4,2)}, {vr(A0+6,2)}\nv_pk_add_f32 {vr(A0,2)}, {vr(A0,2)}, {vr(A0+4,2)}")
    k(f"buffer_store_dwordx2 {vr(A0,2)}, v{T+6}, {sr(SRD_B,4)}, s95 offen sc1")
    k(f"buffer_store_dwordx2 {vr(A0+8,2)}, v{T+9}, {sr(SRD_B,4)}, s90 offen sc1")
    k(f"s_lshl_b32 s90, s89, {FS}\ns_add_u32 s90, s90, {F_S0}")
    k("s_waitcnt vmcnt(0)")
    k(f"buffer_store_dword v{T+12}, v{T+8}, {sr(SRD_F,4)}, s90 offen sc1")
    if opt.get("modb_front", 0):
        sk_ = k.label("skmf")
        k(f"s_branch {sk_}")
        k(f"{nw0}:")
        k("s_waitcnt vmcnt(0)")
        for g in modb_loads(S_MB, V_W, V_C):
            for x in g: k(x)
        k(f"s_mov_b32 s{S_MB}, 0x7ff00000")
        k(f"{sk_}:")
    else:
        k(f"{nw0}:")
    k.stamp("s0 published")
    split = opt.get("split", 1)
    g1 = (setup_gemm1s if split else setup_gemm1)(k, opt)
    srd(k, SRD_W, P_WQKV, D * 3 * D * 2)
    if not opt.get("modb_front", 0):
        k("s_waitcnt vmcnt(1)")
        k(f"s_cmp_eq_u32 s{S_WAVE}, 0\ns_cbranch_scc1 1\ns_waitcnt vmcnt(0)")
    for d in range(16): k(f"v_lshlrev_b32 v{XF+2*d}, 16, v{XT_+d}\nv_and_b32 v{XF+2*d+1}, 0xffff0000, v{XT_+d}")
    VS = T + 4
    k(f"v_lshrrev_b32 v{VS}, 2, v{T+2}\nv_lshlrev_b32 v{VS}, 10, v{VS}")
    k(f"v_and_b32 v{T+3}, 3, v{T+2}\nv_lshl_add_u32 v{VS}, v{T+3}, 8, v{VS}\nv_lshl_add_u32 v{VS}, v{T+1}, 4, v{VS}")
    k(f"s_lshl_b32 s86, s{S_RB1}, 3\ns_lshl_b32 s87, s{S_WAVE}, 1\ns_add_u32 s86, s86, s87\ns_lshl_b32 s86, s86, 15\ns_lshl_b32 s87, s{S_HP}, 11\ns_add_u32 s86, s86, s87\ns_add_u32 s87, s86, 0x8000")
    k(f"s_lshl_b32 s88, s{S_RB1}, 2\ns_add_u32 s88, s88, s{S_WAVE}\ns_lshl_b32 s88, s88, {FS+4}\ns_add_u32 s88, s88, {F_H}\ns_lshl_b32 s89, s{S_HP}, {FS}\ns_add_u32 s89, s89, s88")
    k(f"v_lshlrev_b32 v{T+5}, 5, v{T+2}")
    k(f"s_lshl_b32 s92, s{S_WAVE}, 8\nv_lshlrev_b32 v{T+7}, 3, v{T+1}\nv_add_u32 v{T+7}, s92, v{T+7}")
    nw1 = k.label("notw0b")
    k(f"s_cmp_lg_u32 s{S_WAVE}, 0\ns_cbranch_scc1 {nw1}")
    k(f"v_and_b32 v{T+9}, 15, v{LANE}\ns_lshl_b32 s92, s{S_RB1}, 4\nv_add_u32 v{T+10}, s92, v{T+9}\nv_lshlrev_b32 v{T+9}, 4, v{T+9}\nv_add_u32 v{T+9}, s{S_HP}, v{T+9}")
    k(f"v_and_b32 v{T+11}, 16, v{LANE}\nv_cmp_eq_u32 vcc, 0, v{T+11}\ns_mov_b32 s92, {F_S0}\ns_nop 0")
    k(f"v_cndmask_b32 v{T+9}, v{T+9}, v{T+10}, vcc\nv_lshlrev_b32 v{T+9}, {FS}, v{T+9}")
    spin(k, [f"buffer_load_dword v{T+13}, v{T+9}, {sr(SRD_F,4)}, s92 offen sc1"], [T + 13], 0)
    k(f"s_lshl_b32 s94, s{S_HP}, 13\ns_add_u32 s95, s94, 4096")
    for p_ in range(16): k(f"buffer_load_dwordx2 {vr(G+2*p_,2)}, v{T+6}, {sr(SRD_B,4)}, s{94+p_//8} offen offset:{(p_%8)*512} sc1")
    k(f"s_lshl_b32 s90, s{S_RB1}, 10\ns_add_u32 s90, s90, {MP_RS}")
    k(f"buffer_load_dwordx4 {vr(A0+8,4)}, v{L16}, {sr(SRD_B,4)}, s90 offen sc1")
    k(f"v_cmp_lt_u32 vcc, 31, v{LANE}")
    k("s_waitcnt vmcnt(1)")
    for st in (8, 4, 2, 1):
        for j in range(st): k(f"v_pk_add_f32 {vr(G+2*j,2)}, {vr(G+2*j,2)}, {vr(G+2*(j+st),2)}")
    k(f"v_cvt_pk_bf16_f32 v{G+2}, v{G}, v{G+1}\nv_lshlrev_b32 v{G}, 16, v{G+2}\nv_and_b32 v{G+1}, 0xffff0000, v{G+2}")
    k(f"v_pk_add_f32 {vr(G+4,2)}, {vr(G,2)}, 1.0 op_sel_hi:[1,0]")
    k(f"v_cvt_pk_bf16_f32 v{G+2}, v{G+4}, v{G+5}\nv_lshlrev_b32 v{G+4}, 16, v{G+2}\nv_and_b32 v{G+5}, 0xffff0000, v{G+2}")
    k(f"v_cndmask_b32 v{G}, v{G}, v{G+4}, vcc\nv_cndmask_b32 v{G+1}, v{G+1}, v{G+5}, vcc")
    k(f"ds_write_b64 v{T+6}, {vr(G,2)} offset:{HL+4096}")
    k("s_waitcnt vmcnt(0)")
    k(f"ds_write_b128 v{L16}, {vr(A0+8,4)} offset:{HL+5120}")
    k("s_waitcnt lgkmcnt(0)")
    k(f"{nw1}:")
    g1.prefetch(k, opt.get("h_pre0", 0))
    srd(k, SRD_T, P_WS, S * D * 2, WS_H)
    k("s_barrier")
    k.stamp("s0 ready")
    for h in range(2): k(f"ds_read_b128 {vr(M+4*h,4)}, v{T+5} offset:{HL+4096+h*16}\nds_read_b128 {vr(M+8+4*h,4)}, v{T+5} offset:{HL+4096+256+h*16}")
    for i in range(4): k(f"ds_read_b64 {vr(RS+2*i,2)}, v{T+7} offset:{HL+5120+i*64}")
    k("s_waitcnt lgkmcnt(0)")
    for i in range(4):
        for j in range(4): k(f"v_pk_add_f32 {vr(XF+8*i+2*j,2)}, {vr(XF+8*i+2*j,2)}, {vr(RS+2*i,2)} op_sel_hi:[1,0]")
        for j in range(4): k(f"v_pk_mul_f32 {vr(XF+8*i+2*j,2)}, {vr(XF+8*i+2*j,2)}, {vr(RS+2*i,2)} op_sel:[0,1] op_sel_hi:[1,1]")
        for j in range(4): k(f"v_pk_fma_f32 {vr(XF+8*i+2*j,2)}, {vr(XF+8*i+2*j,2)}, {vr(M+8+2*j,2)}, {vr(M+2*j,2)}")
        for j in range(4): k(f"v_cvt_pk_bf16_f32 v{XR+4*i+j}, v{XF+8*i+2*j}, v{XF+8*i+2*j+1}")
        k(f"buffer_store_dwordx4 {vr(XR+4*i,4)}, v{VS}, {sr(SRD_T,4)}, s{86 + i//2} offen offset:{(i%2)*128} sc1")
    k.stamp("h computed")
    mk = len(k.L)
    g1.prefetch(k, opt.get("h_pre1a", 4 if split else 6))
    publish(k, 89, T, mk)
    k.stamp("h published")
    g1.prefetch(k, opt.get("h_pre1", 8 if split else 6))
    if not split:
        k.g3 = setup_gemm3_early(k, opt, LANE, 56)
        for i in range(8): k(f"global_load_ushort {ar(A_UT+32+i,1)}, v{V_C}, s[{P_C}:{P_C+1}] offset:{i*16}")
    k(f"v_and_b32 v252, 15, v{LANE}\nv_lshlrev_b32 v252, {FS}, v252\ns_mov_b32 s93, s88")
    staged_wait(k, g1, opt.get("g1_T", 5 if split else 4), 252, 93, 253, one_prod)
    k.stamp("h ready")
    return g1

def phase_front(k, opt, name):
    LANE, L16 = 104, 105
    T = 48
    V_W, V_C = 115, 109
    RS, XR, XT_, XF, G, M = 64, 128, 144, 0, 160, 32
    HL = 2 * 25344
    k(f"v_and_b32 v{LANE}, 63, v0")
    k(f"v_lshrrev_b32 v{T+1}, 3, v{LANE}\nv_and_b32 v{T+2}, 7, v{LANE}")
    k(f"v_lshlrev_b32 v{T+5}, 11, v{T+1}\nv_lshl_add_u32 v{T+5}, v{T+2}, 4, v{T+5}")
    k(f"s_lshl_b32 s91, s{S_RB1}, 18\ns_lshl_b32 s92, s{S_WAVE}, 16\ns_add_u32 s91, s91, s92\ns_lshl_b32 s92, s{S_HP}, 7\ns_add_u32 s91, s91, s92")
    k(f"v_lshlrev_b32 v{T+8}, 3, v{LANE}\nv_lshlrev_b32 v{T+6}, 3, v{T+1}")
    k(f"s_lshl_b32 s94, s{S_HP}, 13\ns_add_u32 s95, s94, 4096")
    k(f"s_lshl_b32 s90, s{S_RB1}, 10\ns_lshl_b32 s93, s{S_WAVE}, 8\ns_add_u32 s90, s90, s93\ns_add_u32 s90, s90, {MP_RS}")
    k("s_waitcnt lgkmcnt(0)")
    srd(k, SRD_B, P_WS, MP_BYTES, WS_MODP)
    srd(k, SRD_A, P_X, S * D * 2)
    for p_ in range(16): k(f"buffer_load_dwordx2 {vr(G+2*p_,2)}, v{T+8}, {sr(SRD_B,4)}, s{94+p_//8} offen offset:{(p_%8)*512}")
    for i in range(4): k(f"buffer_load_dwordx2 {vr(RS+2*i,2)}, v{T+6}, {sr(SRD_B,4)}, s90 offen offset:{i*64}")
    for i in range(4):
        k(f"buffer_load_dwordx4 {vr(XT_+4*i,4)}, v{T+5}, {sr(SRD_A,4)}, s91 offen")
        if i < 3: k("s_add_u32 s91, s91, 16384")
    k.stamp("loads issued")
    def touch(ptr, per, vt, off=0):
        k(f"s_lshl_b32 s80, s2, 2\ns_add_u32 s80, s80, s{S_WAVE}\ns_mul_i32 s80, s80, {per*128}")
        if off: k(f"s_add_u32 s80, s80, {off}")
        k(f"v_min_u32 v{vt}, {per-1}, v{LANE}\nv_lshlrev_b32 v{vt}, 7, v{vt}\nv_add_u32 v{vt}, s80, v{vt}")
        k(f"global_load_dword a232, v{vt}, s[{ptr}:{ptr+1}]")
    nt0 = 0
    if opt.get("m_touch", 0) == 1: touch(P_WQKV, 48, 254); nt0 = 1
    g1 = setup_gemm1(k, opt)
    srd(k, SRD_W, P_WQKV, D * 3 * D * 2)
    n0 = opt.get("h_pre0", 6)
    g1.prefetch(k, n0)
    n0 += nt0
    srd(k, SRD_F, P_WS, FLAG_BYTES, WS_FLAG)
    srd(k, SRD_T, P_WS, S * D * 2, WS_H)
    VS = T + 4
    k(f"v_lshrrev_b32 v{VS}, 2, v{T+2}\nv_lshlrev_b32 v{VS}, 10, v{VS}")
    k(f"v_and_b32 v{T+3}, 3, v{T+2}\nv_lshl_add_u32 v{VS}, v{T+3}, 8, v{VS}\nv_lshl_add_u32 v{VS}, v{T+1}, 4, v{VS}")
    k(f"s_lshl_b32 s86, s{S_RB1}, 3\ns_lshl_b32 s87, s{S_WAVE}, 1\ns_add_u32 s86, s86, s87\ns_lshl_b32 s86, s86, 15\ns_lshl_b32 s87, s{S_HP}, 11\ns_add_u32 s86, s86, s87\ns_add_u32 s87, s86, 0x8000")
    k(f"s_lshl_b32 s88, s{S_WAVE}, 9\nv_add_u32 v{T+8}, s88, v{T+8}\nv_lshlrev_b32 v{T+5}, 5, v{T+2}\nv_add_u32 v{T+5}, s88, v{T+5}")
    k(f"s_lshl_b32 s88, s{S_RB1}, 2\ns_add_u32 s88, s88, s{S_WAVE}\ns_lshl_b32 s88, s88, {FS+4}\ns_add_u32 s88, s88, {F_H}\ns_lshl_b32 s89, s{S_HP}, {FS}\ns_add_u32 s89, s89, s88")
    k(f"v_cmp_lt_u32 vcc, 31, v{LANE}")
    k(f"s_waitcnt vmcnt({8 + n0})")
    for st in (8, 4, 2, 1):
        for j in range(st): k(f"v_pk_add_f32 {vr(G+2*j,2)}, {vr(G+2*j,2)}, {vr(G+2*(j+st),2)}")
    k(f"v_cvt_pk_bf16_f32 v{G+2}, v{G}, v{G+1}\nv_lshlrev_b32 v{G}, 16, v{G+2}\nv_and_b32 v{G+1}, 0xffff0000, v{G+2}")
    k(f"v_pk_add_f32 {vr(G+4,2)}, {vr(G,2)}, 1.0 op_sel_hi:[1,0]")
    k(f"v_cvt_pk_bf16_f32 v{G+2}, v{G+4}, v{G+5}\nv_lshlrev_b32 v{G+4}, 16, v{G+2}\nv_and_b32 v{G+5}, 0xffff0000, v{G+2}")
    k(f"v_cndmask_b32 v{G}, v{G}, v{G+4}, vcc\nv_cndmask_b32 v{G+1}, v{G+1}, v{G+5}, vcc")
    k(f"ds_write_b64 v{T+8}, {vr(G,2)} offset:{HL}")
    k("s_waitcnt lgkmcnt(0)")
    for h in range(2): k(f"ds_read_b128 {vr(M+4*h,4)}, v{T+5} offset:{HL+h*16}\nds_read_b128 {vr(M+8+4*h,4)}, v{T+5} offset:{HL+256+h*16}")
    for i in range(4):
        k(f"s_waitcnt vmcnt({3 - i + n0})")
        for d in range(4): k(f"v_lshlrev_b32 v{XF+8*i+2*d}, 16, v{XT_+4*i+d}\nv_and_b32 v{XF+8*i+2*d+1}, 0xffff0000, v{XT_+4*i+d}")
        for j in range(4): k(f"v_pk_add_f32 {vr(XF+8*i+2*j,2)}, {vr(XF+8*i+2*j,2)}, {vr(RS+2*i,2)} op_sel_hi:[1,0]")
        for j in range(4): k(f"v_pk_mul_f32 {vr(XF+8*i+2*j,2)}, {vr(XF+8*i+2*j,2)}, {vr(RS+2*i,2)} op_sel:[0,1] op_sel_hi:[1,1]")
    k("s_waitcnt lgkmcnt(0)")
    for i in range(4):
        for j in range(4): k(f"v_pk_fma_f32 {vr(XF+8*i+2*j,2)}, {vr(XF+8*i+2*j,2)}, {vr(M+8+2*j,2)}, {vr(M+2*j,2)}")
        for j in range(4): k(f"v_cvt_pk_bf16_f32 v{XR+4*i+j}, v{XF+8*i+2*j}, v{XF+8*i+2*j+1}")
        k(f"buffer_store_dwordx4 {vr(XR+4*i,4)}, v{VS}, {sr(SRD_T,4)}, s{86 + i//2} offen offset:{(i%2)*128} sc1")
    k.stamp("h computed")
    code_prefetch_setup(k, name)
    srd(k, SRD_D, P_WMOD, D * 6 * D * 2)
    k(f"v_mul_u32_u24 v{V_W}, 12288, v{T+1}\nv_lshl_add_u32 v{V_W}, v{T+2}, 4, v{V_W}")
    k(f"s_lshl_b32 s84, s{S_RB1}, 6\nv_add_u32 v{V_C}, s84, v{T+1}\nv_lshlrev_b32 v{V_C}, 1, v{V_C}")
    k(f"s_mul_i32 s86, s84, 12288\ns_lshl_b32 s87, s{S_HP}, 7\ns_add_u32 s86, s86, s87")
    k(f"s_lshl_b32 s94, s{S_WAVE}, 11\ns_add_u32 s{S_MB}, s86, s94\ns_add_u32 s{S_MB}, s{S_MB}, 4096")
    k(f"s_lshl_b32 s94, s{S_WAVE}, 16\ns_lshl_b32 s95, s{S_HP}, 12\ns_add_u32 s94, s94, s95\ns_lshl_b32 s95, s{S_RB1}, 8\ns_add_u32 s94, s94, s95\ns_add_u32 s{S_MO}, s94, {MP_B}")
    k.g3 = setup_gemm3_early(k, opt, LANE, 56)
    publish(k, 89, T)
    k.stamp("h published")
    if opt.get("m_touch", 0) == 2: touch(P_WQKV, 48, 254)
    k("s_barrier")
    g1.prefetch(k, opt.get("h_pre1", 12))
    for i in range(8): k(f"global_load_ushort {ar(A_UT+32+i,1)}, v{V_C}, s[{P_C}:{P_C+1}] offset:{i*16}")
    k(f"v_and_b32 v252, 15, v{LANE}\nv_lshlrev_b32 v252, {FS}, v252\ns_mov_b32 s93, s88")
    staged_wait(k, g1, opt.get("g1_T", 4), 252, 93, 253, one_prod)
    k.stamp("h ready")
    return g1

def setup_gemm24(k, which, opt, base):
    c = Sched(); common_gemm(c)
    K = 1024 if which == 2 else 3584
    NS, R = 4, opt.get(f"g{which}_R", 4)
    STAGE = 8448
    if isinstance(base, tuple): V_RD, V_DMA, V_TOK, LANE, L16, VT = base
    else:
        V_RD, V_DMA, V_TOK, LANE, L16, VT = base, base + 1, base + 2, base + 4, base + 5, base + 6
        lane_id(k, LANE)
        k(f"v_lshlrev_b32 v{L16}, 4, v{LANE}")
    c.LANE, c.L16 = LANE, L16
    hs = c.hs = opt.get("hsplit", 1) and opt.get("split", 1)
    order(c, k, opt, "g2", ["win", [8, 8], 0] if hs else ["win", [1, 1, 2, 4, 8], 1])
    if hs:
        c.w_off = lambda sd, kt: [T(x) for x in c.pos_txt(sd, kt)] + [T(f"s_mul_i32 s{sd}, s{sd}, {128*2048}")] + ([T(f"s_add_u32 s{sd}, s{sd}, {(32 - 8*128)*2048}")] if kt >= 8 else [])
        c.t_off = lambda sd, kt: [T(x) for x in c.pos_txt(sd, kt)] + [T(f"s_lshl_b32 s{sd}, s{sd}, 12")] + ([T(f"s_add_u32 s{sd}, s{sd}, {1024 - 8*4096}")] if kt >= 8 else [])
        c.sub_stride = 2048
    k(f"s_lshr_b32 s80, s{S_WAVE}, 1\ns_and_b32 s81, s{S_WAVE}, 1")
    k(f"s_lshl_b32 s82, s80, {6 if hs else 5}\ns_lshl_b32 s83, s81, 1\ns_add_u32 s82, s82, s83\ns_lshl_b32 s82, s82, 11")
    k(f"s_lshl_b32 s83, s{S_NT}, 7\ns_add_u32 s82, s82, s83")
    k(f"v_lshrrev_b32 v{VT}, 3, v{LANE}\nv_lshlrev_b32 v{VT}, 13, v{VT}")
    k(f"v_and_b32 v{VT+1}, 7, v{LANE}\nv_lshl_add_u32 v{VT}, v{VT+1}, 4, v{VT}")
    k(f"v_add_u32 v{V_DMA}, s82, v{VT}")
    k(f"v_bfe_u32 v{VT}, v{LANE}, 2, 2\nv_mul_u32_u24 v{VT}, 1056, v{VT}")
    k(f"v_lshrrev_b32 v{VT+1}, 4, v{LANE}\nv_lshl_add_u32 v{VT}, v{VT+1}, 7, v{VT}")
    k(f"v_and_b32 v{VT+1}, 3, v{LANE}\nv_lshl_add_u32 v{V_RD}, v{VT+1}, 3, v{VT}")
    k(f"v_add_u32 v{V_RD}, {L_R2}, v{V_RD}")
    k(f"s_lshl_b32 s82, s{S_RB2}, 3\ns_lshl_b32 s83, s{S_WAVE}, 1\ns_add_u32 s82, s82, s83\ns_mul_i32 s82, s82, {K//32*1024}")
    k(f"v_add_u32 v{V_TOK}, s82, v{L16}\nv_add_u32 v{V_TOK+1}, {K//32*1024}, v{V_TOK}")
    k(f"s_mul_i32 s{S_WB}, s80, 4224\ns_mul_i32 s82, s81, 2112\ns_add_u32 s{S_WB}, s{S_WB}, s82\ns_add_u32 s{S_WB}, s{S_WB}, {L_R2}")
    srd(k, SRD_W, P_WO if which == 2 else P_W2, K * D * 2)
    c.NB, c.TB, c.KS, c.SPK, c.KT, c.NS, c.R = 4, 2, 2, 1, K // 64, NS, R
    c.acc = lambda b, t: vr((b * 2 + t) * 4, 4)
    c.tf = lambda slot, ks, t: 64 + ((slot * 2 + ks) * 2 + t) * 4
    c.rd = lambda sl, b, sub, r: (V_RD, sl * STAGE + sub * 4224 + r * 512 + b * 32)
    c.slot_addr = lambda sl: sl * STAGE
    c.dma = [(V_DMA, 0, 0), (V_DMA, 1056, 2048)]
    c.v_tok = [V_TOK, V_TOK + 1]
    c.w_stride = 64 * 2048
    c.drop = opt.get(f"g{which}_drop", ())
    c.pro_units, c.ramp_rate, c.read_margin = opt.get(f"g{which}_pro", 12), opt.get(f"g{which}_ramp", 6), 4
    std_sched(c)
    return c

S_G80, S_G192 = 6, 7
def setup_gemm4p(k, opt, base):
    c = Sched(); common_gemm(c)
    HS = 8448; STAGE = 2 * HS
    L = 12; KT = 28; MAIN = KT - L
    V_RD, V_DE, V_DK, V_TOK, LANE, L16, VT = base, base + 2, base + 3, base + 4, base + 6, base + 7, base + 8
    c.LANE, c.L16, c.V_DE, c.V_DK, c.V_TOK = LANE, L16, V_DE, V_DK, V_TOK
    lane_id(k, LANE)
    k(f"v_lshlrev_b32 v{L16}, 4, v{LANE}")
    c.KT = KT
    order(c, k, opt, "g4", ["win", [4, 4, 8, 8, 4], 0])
    k(f"s_lshr_b32 s80, s{S_WAVE}, 1\ns_and_b32 s81, s{S_WAVE}, 1")
    k(f"s_mul_i32 s{S_G80}, s80, {80*2048}\ns_mul_i32 s{S_G192}, s80, {192*2048}")
    k("s_lshl_b32 s82, s80, 5\ns_lshl_b32 s83, s81, 1\ns_add_u32 s82, s82, s83")
    k(f"s_and_b32 s{S_TMP}, s{S_NT}, 1\ns_mul_i32 s83, s{S_TMP}, 1792\ns_add_u32 s82, s82, s83\ns_lshl_b32 s82, s82, 11")
    k(f"v_lshrrev_b32 v{VT}, 3, v{LANE}\nv_lshlrev_b32 v{VT}, 13, v{VT}")
    k(f"v_and_b32 v{VT+1}, 7, v{LANE}\nv_lshl_add_u32 v{VT}, v{VT+1}, 4, v{VT}")
    k(f"v_add_u32 v{VT}, s82, v{VT}")
    k(f"s_lshl_b32 s83, s{S_NT}, 7\nv_add_u32 v{V_DK}, s83, v{VT}\nv_xor_b32 v{V_DE}, 128, v{V_DK}")
    k(f"v_bfe_u32 v{VT}, v{LANE}, 2, 2\nv_mul_u32_u24 v{VT}, 1056, v{VT}")
    k(f"v_lshrrev_b32 v{VT+1}, 4, v{LANE}\nv_lshl_add_u32 v{VT}, v{VT+1}, 7, v{VT}")
    k(f"v_and_b32 v{VT+1}, 3, v{LANE}\nv_lshl_add_u32 v{V_RD+1}, v{VT+1}, 3, v{VT}")
    k(f"v_add_u32 v{V_RD}, {L_R2}, v{V_RD+1}")
    k(f"s_lshl_b32 s82, s{S_RB2}, 3\ns_lshl_b32 s83, s{S_WAVE}, 1\ns_add_u32 s82, s82, s83\ns_mul_i32 s82, s82, {112*1024}")
    k(f"s_mul_i32 s83, s{S_TMP}, {56*1024}\ns_add_u32 s82, s82, s83")
    k(f"v_add_u32 v{V_TOK}, s82, v{L16}\nv_add_u32 v{V_TOK+1}, {112*1024}, v{V_TOK}")
    k(f"s_mul_i32 s{S_WB}, s80, 4224\ns_mul_i32 s82, s81, 2112\ns_add_u32 s{S_WB}, s{S_WB}, s82")
    srd(k, SRD_W, P_W2, F * D * 2)
    c.drop = opt.get("g4_drop", ())
    V2E, V2K, V2T = 200, 201, 202
    c.V2 = (V2E, V2K, V2T)
    slot_addr = [L_R2, L_R2 + STAGE, 1024, 1024 + STAGE]
    def rd(sl, half, b, sub, r):
        off = half * HS + sub * 4224 + r * 512 + b * 32
        return (V_RD, (sl % 2) * STAGE + off) if sl < 2 else (V_RD + 1, slot_addr[sl] + off)
    NT_ = 2 * L
    tf = lambda kt, sub, t: 64 + (((kt * 2 + sub) % NT_) * 2 + t) * 4
    acc = lambda b, t: vr((b * 2 + t) * 4, 4)
    c.wf = lambda buf, j: (buf * 8 + j) * 4
    typ = lambda kt: "A" if kt < 16 else ("B1" if kt < 24 else "B2")
    def w_off(sd, kt):
        o = [T(x) for x in c.pos_txt(sd, kt)]
        if typ(kt) == "A": o.append(T(f"s_mul_i32 s{sd}, s{sd}, {112*2048}"))
        elif typ(kt) == "B1": o += [T(f"s_mul_i32 s{sd}, s{sd}, {224*2048}"), T(f"s_add_u32 s{sd}, s{sd}, {(64 - 16*224)*2048}"), T(f"s_add_u32 s{sd}, s{sd}, s{S_G80}")]
        else: o += [T(f"s_mul_i32 s{sd}, s{sd}, {448*2048}"), T(f"s_add_u32 s{sd}, s{sd}, {(96 - 24*448)*2048}"), T(f"s_add_u32 s{sd}, s{sd}, s{S_G192}")]
        return o
    halves = [[("E", kt), ("K", kt)] for kt in range(MAIN)]
    halves += [[("E", MAIN + 2 * j), ("E", MAIN + 2 * j + 1)] for j in range(L // 2)]
    halves += [[("K", MAIN + 2 * j), ("K", MAIN + 2 * j + 1)] for j in range(L // 2)]
    cur = None; flip = 0
    for st, hv in enumerate(halves):
        us = []
        for h, (kind, kt) in enumerate(hv):
            pre = []
            if cur != kt:
                flip ^= 1; cur = kt; pre = w_off(c.s_kw + flip, kt)
            vo = (V2E if kind == 'E' else V2K) if typ(kt) == "B2" else (V_DE if kind == 'E' else V_DK)
            for i, goff in enumerate((0, 2048)):
                us.append((pre if i == 0 else []) + [T(f"s_add_u32 m0, s{S_WB}, {slot_addr[st % 4] + h * HS + i * 1056 - goff}"),
                          VM(f"buffer_load_dwordx4 v{vo}, {sr(SRD_W,4)}, s{c.s_kw + flip} offen" + (f" offset:{goff}" if goff else "") + " lds", ("dma", st))])
        c.stage_units[st] = us; c.stage_slot[st] = st % 4
        for j in range(2):
            frags = []; toks = []
            parts = [(0, j), (1, j)] if st < MAIN else [(j, 0), (j, 1)]
            for h, sub in parts:
                kind, kt = hv[h]
                if (kt, sub) not in toks: toks.append((kt, sub))
                for b in range(4):
                    va, o0 = rd(st % 4, h, b, sub, 0); _, o1 = rd(st % 4, h, b, sub, 1)
                    frags.append((va, o0, o1, [(acc(b + (0 if kind == 'E' else 4), t), tf(kt, sub, t)) for t in range(2)]))
            c.steps.append(dict(frags=frags, stages=[st], toks=toks))
    for kt in range(KT):
        sd = c.s_kt + kt % 2
        for sub in range(2):
            us = []
            for t in range(2):
                g = []
                if sub == 0 and t == 0:
                    g = [T(x) for x in c.pos_txt(sd, kt)]
                    if typ(kt) == "A": g.append(T(f"s_mul_i32 s{sd}, s{sd}, 3584"))
                    elif typ(kt) == "B1": g += [T(f"s_mul_i32 s{sd}, s{sd}, 7168"), T(f"s_add_u32 s{sd}, s{sd}, {2048 - 16*7168}")]
                    else: g += [T(f"s_mul_i32 s{sd}, s{sd}, 14336"), T(f"s_add_u32 s{sd}, s{sd}, {3072 - 24*14336}")]
                key = ("tok", (kt, sub))
                if typ(kt) == "B2":
                    if sub == 1 and t == 0: g.append(T(f"s_add_u32 s{sd}, s{sd}, 7168"))
                    g.append(VM(f"buffer_load_dwordx2 {ar(tf(kt, sub, t),2)}, v{V2T+t}, {sr(SRD_T,4)}, s{sd} offen sc1", key))
                    g.append(VM(f"buffer_load_dwordx2 {ar(tf(kt, sub, t)+2,2)}, v{V2T+t}, {sr(SRD_T,4)}, s{sd} offen offset:3584 sc1", key))
                else:
                    g.append(VM(f"buffer_load_dwordx4 {ar(tf(kt, sub, t),4)}, v{V_TOK+t}, {sr(SRD_T,4)}, s{sd} offen offset:{sub*(1024 if typ(kt) == 'A' else 3584)} sc1", key))
                us.append(g)
            c.tok_units[(kt, sub)] = us; c.tok_slot[(kt, sub)] = (kt * 2 + sub) % NT_
    c.pro_units, c.ramp_rate, c.read_margin, c.lookahead = opt.get("g4_pro", 12), opt.get("g4_ramp", 6), 4, opt.get("g4_la", 7)
    c.MAIN, c.L = MAIN, L
    return c

def phase_gemm4p(k, c, opt):
    LANE, L16 = c.LANE, c.L16
    VT = 72
    srd(k, SRD_T, P_WS, S * F * 2, WS_HH)
    srd(k, SRD_A, P_OUT, S * D * 2)
    srd(k, SRD_B, P_WS, 8 << 20, WS_P4)
    V_G, V_GA, V_XA, V_X, IMP, VF = 96, 76, 77, 80, 128, 78
    for j in range(16): k(f"v_accvgpr_read_b32 v{V_X+j}, a{A_X1+j}")
    k(f"v_and_b32 v{VT}, 15, v{LANE}\nv_lshlrev_b32 v{VT}, {FS}, v{VT}")
    k(f"s_lshl_b32 s84, s{S_RB2}, 1\ns_lshr_b32 s85, s{S_WAVE}, 1\ns_add_u32 s84, s84, s85\ns_lshl_b32 s84, s84, {FS+5}\ns_add_u32 s84, s84, {F_HH}")
    k(f"s_and_b32 s85, s{S_NT}, 1\ns_lshl_b32 s85, s85, {FS+4}\ns_add_u32 s84, s84, s85")
    k(f"v_mov_b32 v252, v{VT}")
    c.tile_of = lambda key: key[0]
    k(f"s_add_u32 s85, s84, {F_HB - F_HH}")
    staged_wait(k, c, opt.get("g4_T", 6), 252, 84, 253, one_prod, pub=(94, 204))
    add_gate(k, c, 16, f"buffer_load_dword v253, v252, {sr(SRD_F,4)}, s85 offen sc1", 253)
    k.stamp("hh ready")
    p = Txt()
    p(f"v_lshrrev_b32 v{VT}, 4, v{LANE}\nv_lshlrev_b32 v{V_GA}, 4, v{VT}\nv_add_u32 v{V_GA}, {L_MV}, v{V_GA}")
    p(f"v_and_b32 v{VT+1}, 15, v{LANE}\nv_lshlrev_b32 v{VT+1}, 11, v{VT+1}")
    p(f"v_and_b32 v{VT+2}, 1, v{VT}\nv_lshl_add_u32 v{VT+1}, v{VT+2}, 5, v{VT+1}")
    p(f"v_lshrrev_b32 v{VT+2}, 1, v{VT}\nv_lshl_add_u32 v{V_XA}, v{VT+2}, 4, v{VT+1}")
    p(f"s_lshl_b32 s86, s{S_RB2}, 3\ns_lshl_b32 s87, s{S_WAVE}, 1\ns_add_u32 s86, s86, s87\ns_lshl_b32 s86, s86, 15\ns_lshl_b32 s87, s{S_NT}, 7\ns_add_u32 s86, s86, s87\ns_add_u32 s87, s86, 32768")
    p(f"s_lshl_b32 s88, s{S_RB2}, 4\ns_add_u32 s88, s88, s{S_NT}\ns_lshl_b32 s88, s88, 2\ns_add_u32 s88, s88, s{S_WAVE}")
    p("s_xor_b32 s89, s88, 4")
    p(f"s_lshl_b32 s90, s88, 13\ns_add_u32 s91, s90, 4096\ns_lshl_b32 s92, s89, 13\ns_add_u32 s93, s92, 4096")
    p(f"s_lshl_b32 s88, s88, {FS}\ns_add_u32 s88, s88, {F_P4}\ns_lshl_b32 s89, s89, {FS}\ns_add_u32 s89, s89, {F_P4}")
    V2E, V2K, V2T = c.V2
    p(f"v_lshrrev_b32 v{VT}, 5, v{LANE}\nv_mul_u32_u24 v{VT}, {96*2048}, v{VT}\nv_add_u32 v{V2E}, v{c.V_DE}, v{VT}\nv_add_u32 v{V2K}, v{c.V_DK}, v{VT}")
    p(f"v_lshrrev_b32 v{VT}, 1, v{L16}\nv_sub_u32 v{V2T}, v{c.V_TOK}, v{VT}\nv_sub_u32 v{V2T+1}, v{c.V_TOK+1}, v{VT}")
    p(f"v_mov_b32 v{VT}, 1\nv_mov_b32 v{VT+1}, 0")
    c.pre_loop_txt = p.L
    N = len(c.steps); p2 = N - c.L
    ex = [VM(f"buffer_store_dwordx4 {vr(4*j,4)}, v{L16}, {sr(SRD_B,4)}, s{90 + j//4} offen offset:{(j%4)*1024} sc1", ("exp", 0)) for j in range(8)]
    ne_ = opt.get("g4_ne", 2)
    for j in range(ne_): c.late[p2 + 1 + j] = ex[j * 8 // ne_:(j + 1) * 8 // ne_]
    c.late[p2 + opt.get("g4_fs", 6)] = [WVM([("exp", 0)]), f"buffer_store_dword v{VT}, v{VT+1}, {sr(SRD_F,4)}, s88 offen sc1"]
    c.late[N - 3] = [VM(f"buffer_load_dword v{VF}, v{VT+1}, {sr(SRD_F,4)}, s89 offen sc1", ("pf", 0))]
    c.last_reads = [f"ds_read_b128 {vr(V_G+4*b,4)}, v{V_GA} offset:{768+b*64}" for b in range(4)]
    m = Txt(); m.label = k.label
    okl = k.label("pok")
    m(f"v_cmp_eq_u32 vcc, 0, v{VF}\ns_cmp_eq_u64 vcc, 0\ns_cbranch_scc1 {okl}")
    spin(m, [f"buffer_load_dword v{VF}, v{VT+1}, {sr(SRD_F,4)}, s89 offen sc1"], [VF], 0)
    m(f"{okl}:")
    c.late[N - 1] = [WVM([("pf", 0)]), T("\n".join(m.L))] + [f"buffer_load_dwordx4 {vr(IMP+4*j,4)}, v{L16}, {sr(SRD_B,4)}, s{92 + j//4} offen offset:{(j%4)*1024} sc1" for j in range(8)]
    c.run(k)
    k.stamp("g4 loop done")
    A = lambda b, t: 32 + (b * 2 + t) * 4
    XT = 112
    XF = 160
    for j in range(16): k(f"v_lshlrev_b32 v{XF+2*j}, 16, v{V_X+j}\nv_and_b32 v{XF+2*j+1}, 0xffff0000, v{V_X+j}")
    k("s_waitcnt vmcnt(0) lgkmcnt(0)")
    for t in range(2):
        for b in range(4):
            for h in range(2): k(f"v_pk_add_f32 {vr(A(b,t)+2*h,2)}, {vr(A(b,t)+2*h,2)}, {vr(IMP+(b*2+t)*4+2*h,2)}")
            for h in range(2): k(f"v_pk_fma_f32 {vr(A(b,t)+2*h,2)}, {vr(A(b,t)+2*h,2)}, {vr(V_G+4*b+2*h,2)}, {vr(XF+(t*4+b)*4+2*h,2)}")
        PK = XT + t * 8
        for b in range(4): k(f"v_cvt_pk_bf16_f32 v{PK+2*b}, v{A(b,t)}, v{A(b,t)+1}\nv_cvt_pk_bf16_f32 v{PK+2*b+1}, v{A(b,t)+2}, v{A(b,t)+3}")
        k("s_nop 1")
        for s_ in range(2): k(f"v_permlane16_swap_b32 v{PK+4*s_}, v{PK+4*s_+2}\nv_permlane16_swap_b32 v{PK+4*s_+1}, v{PK+4*s_+3}")
        for s_ in range(2): k(f"buffer_store_dwordx4 {vr(PK+4*s_,4)}, v{V_XA}, {sr(SRD_A,4)}, s{86+t} offen offset:{s_*64}")

def phase_gemm1(k, c, opt):
    LANE, L16, VT = c.LANE, c.L16, c.VT
    PHK, VV, SH, UTX = 0, 34816, 114688, 126976
    A_PH = 160
    p = Txt()
    srd(p, SRD_A, P_WPHI, H * 2048)
    srd(p, SRD_B, P_WS, 2 << 20, WS_KVP)
    srd(p, SRD_C, P_WS, 128 << 10, WS_ZP)
    A_PW, A_VW, A_PR, A_VR, A_WR = 110, 111, 112, 113, 114
    p(f"s_lshr_b32 s80, s{S_WAVE}, 1\ns_and_b32 s81, s{S_WAVE}, 1")
    p(f"v_and_b32 v{VT}, 15, v{LANE}\ns_lshl_b32 s82, s{S_WAVE}, 5\nv_add_u32 v{VT}, s82, v{VT}")
    p(f"v_lshrrev_b32 v{VT+1}, 4, v{LANE}\nv_lshlrev_b32 v{VT+1}, 3, v{VT+1}")
    p(f"v_mul_u32_u24 v{A_PW}, 136, v{VT}\nv_add_u32 v{A_PW}, v{A_PW}, v{VT+1}")
    p(f"v_mul_u32_u24 v{A_VW}, 72, v{VT}\nv_add_u32 v{A_VW}, v{A_VW}, v{VT+1}")
    p(f"v_lshrrev_b32 v{VT}, 2, v{LANE}\nv_and_b32 v{VT+1}, 3, v{LANE}\nv_lshlrev_b32 v{VT+1}, 3, v{VT+1}")
    p(f"s_mul_i32 s82, s80, 17408\ns_lshl_b32 s83, s81, 6\ns_add_u32 s82, s82, s83")
    p(f"v_mul_u32_u24 v{A_PR}, 136, v{VT}\nv_add_u32 v{A_PR}, v{A_PR}, v{VT+1}\nv_add_u32 v{A_PR}, s82, v{A_PR}")
    p(f"s_mul_i32 s82, s80, 9216")
    p(f"v_mul_u32_u24 v{A_VR}, 72, v{VT}\nv_add_u32 v{A_VR}, v{A_VR}, v{VT+1}\nv_add_u32 v{A_VR}, s82, v{A_VR}")
    p(f"v_lshl_add_u32 v{A_WR}, v{VT}, 6, v{VT+1}\nv_add_u32 v{A_WR}, {L_WPH}, v{A_WR}")
    ONES, SEL = 116, 120
    for j in range(4): p(f"v_mov_b32 v{ONES+j}, 0x3f803f80")
    p(f"v_bfe_u32 v{VT}, v{LANE}, 2, 2\nv_lshrrev_b32 v{VT+1}, 4, v{LANE}")
    p(f"v_cmp_eq_u32 vcc, v{VT}, v{VT+1}")
    p(f"v_and_b32 v{VT}, 1, v{LANE}\nv_lshlrev_b32 v{VT}, 4, v{VT}\nv_mov_b32 v{VT+1}, 0x3f80\nv_lshlrev_b32 v{VT+1}, v{VT}, v{VT+1}")
    p(f"v_cndmask_b32 v{VT+1}, 0, v{VT+1}, vcc")
    p(f"v_and_b32 v{VT}, 2, v{LANE}\nv_cmp_eq_u32 vcc, 0, v{VT}")
    for j in (0, 1, 4, 5): p(f"v_mov_b32 v{SEL+j}, 0")
    p(f"v_cndmask_b32 v{SEL+2}, 0, v{VT+1}, vcc\nv_cndmask_b32 v{SEL+3}, v{VT+1}, 0, vcc")
    p(f"s_mov_b32 s94, {LOG2E!r}\ns_mov_b32 s95, {LOG2E!r}")
    p(f"s_lshl_b32 s84, s{S_HP}, 12\ns_lshl_b32 s85, s{S_WAVE}, 10\ns_add_u32 s84, s84, s85\ns_add_u32 s85, s85, {L_WPH}")
    c.pre_loop_txt = p.L
    c.late = {4: ["s_mov_b32 m0, s85", f"buffer_load_dwordx4 v{L16}, {sr(SRD_A,4)}, s84 offen lds"]}
    if opt.get("cpf", 1): c.late[22] = code_prefetch_txt(k.name, L16, 254, 80)
    ml = modb_loads(S_MB, 115, 109)
    ms = opt.get("modb_steps", [16] * 8)
    if opt.get("modb_front", 0):
        lb = k.label("skw0")
        c.late.setdefault(ms[0], []).append(T("\n".join([f"s_cmp_lg_u32 s{S_WAVE}, 0", f"s_cbranch_scc1 {lb}"] + [x for g in ml for x in g] + [f"{lb}:"])))
        ml = []
    else:
        for st_, g in zip(ms, ml): c.late.setdefault(st_, []).extend(g)
        ml = ml[len(ms):]
    c.last_reads = [f"ds_read_b64_tr_b16 {ar(A_PH+(hh*2+fb)*4+2*r,2)}, v{A_WR} offset:{hh*2048+r*1024+fb*32}" for hh in range(2) for fb in range(2) for r in range(2)]
    c.run(k)
    k.stamp("g1 loop done")
    A = lambda b, t: (b * 2 + t) * 4
    BF, P1, P2, MX, MN, EK = 126, 142, 174, 206, 214, 222
    groups = [(hh, t) for hh in range(2) for t in range(2)]
    def fm_part1(seg):
        for g, (hh, t) in enumerate(groups):
            for db in range(2):
                a = A(seg * 4 + hh * 2 + db, t)
                k(f"v_cvt_pk_bf16_f32 v{BF+g*4+db*2}, v{a}, v{a+1}\nv_cvt_pk_bf16_f32 v{BF+g*4+db*2+1}, v{a+2}, v{a+3}")
        k("s_nop 1")
        for g, (hh, t) in enumerate(groups):
            for fb in range(2):
                k(f"{MF} {vr(P1+g*8+fb*4,4)}, {ar(A_PH+(hh*2+fb)*4,4)}, {vr(BF+g*4,4)}, 0")
    def fm_part2():
        for op3, op2, M in (("v_max3_f32", "v_max_f32", MX), ("v_min3_f32", "v_min_f32", MN)):
            for g in range(4):
                b = P1 + g * 8
                k(f"{op3} v{M+2*g}, v{b}, v{b+1}, v{b+2}\n{op3} v{M+2*g}, v{M+2*g}, v{b+3}, v{b+4}\n{op3} v{M+2*g}, v{M+2*g}, v{b+5}, v{b+6}\n{op2} v{M+2*g}, v{M+2*g}, v{b+7}")
            treduce4(k, op2, [M + 2 * g for g in range(4)])
        for g in range(4):
            k(f"v_mul_f32 v{MX+2*g}, {-LOG2E!r}, v{MX+2*g}\nv_mul_f32 v{MN+2*g}, {LOG2E!r}, v{MN+2*g}")
    def fm_part3(E):
        for g in range(4):
            for j in range(4):
                b = g * 8 + 2 * j
                k(f"v_pk_fma_f32 {vr(P2+b,2)}, {vr(P1+b,2)}, s[94:95], {vr(MN+2*g,2)} op_sel_hi:[1,1,0] neg_lo:[1,0,0] neg_hi:[1,0,0]")
                k(f"v_pk_fma_f32 {vr(P1+b,2)}, {vr(P1+b,2)}, s[94:95], {vr(MX+2*g,2)} op_sel_hi:[1,1,0]")
            for j in range(8): k(f"v_exp_f32 v{P1+g*8+j}, v{P1+g*8+j}")
            for j in range(8): k(f"v_exp_f32 v{P2+g*8+j}, v{P2+g*8+j}")
            k("s_nop 0")
            for sg, PP in enumerate((P1, P2)):
                for j in range(4): k(f"v_cvt_pk_bf16_f32 v{E+(g*2+sg)*4+j}, v{PP+g*8+2*j}, v{PP+g*8+2*j+1}")
    for g in ml:
        for x in g: k(x)
    k("s_waitcnt lgkmcnt(0)\ns_nop 7")
    fm_part1(1)
    k("s_barrier")
    mark0 = len(k.L)
    for g, (hh, t) in enumerate(groups):
        for db in range(2):
            a = A(8 + hh * 2 + db, t)
            k(f"v_cvt_pk_bf16_f32 v{a}, v{a}, v{a+1}\nv_cvt_pk_bf16_f32 v{a+1}, v{a+2}, v{a+3}")
            k(f"ds_write_b64 v{A_VW}, {vr(a,2)} offset:{VV + hh*9216 + t*16*72 + db*32}")
    fm_part2()
    fm_part3(EK)
    SM = 32
    k("s_nop 1")
    for i in range(8): k(f"{MF} {vr(SM+4*i,4)}, {vr(ONES,4)}, {vr(EK+4*i,4)}, 0")
    k("s_nop 7")
    for i in range(8): k(f"v_rcp_f32 v{SM+4*i}, v{SM+4*i}")
    for g, (hh, t) in enumerate(groups):
        for sg, PP in enumerate((P1, P2)):
            for j in range(4):
                k(f"v_pk_mul_f32 {vr(PP+g*8+2*j,2)}, {vr(PP+g*8+2*j,2)}, {vr(SM+(g*2+sg)*4,2)} op_sel_hi:[1,0]")
            for fb in range(2):
                b = PP + g * 8 + fb * 4
                k(f"v_cvt_pk_bf16_f32 v{b}, v{b}, v{b+1}\nv_cvt_pk_bf16_f32 v{b+1}, v{b+2}, v{b+3}")
                k(f"ds_write_b64 v{A_PW}, {vr(b,2)} offset:{PHK + hh*17408 + t*16*136 + sg*64 + fb*32}")
    sprinkle(k, mark0, g3_early_units(k.g3, opt.get("g3_e1", 14), 254))
    k("s_waitcnt lgkmcnt(0)\ns_barrier")
    for s_ in range(4):
        for r in range(2):
            for fb in range(2): k(f"ds_read_b64_tr_b16 {ar(s_*16+fb*4+2*r,2)}, v{A_PR} offset:{PHK + (32*s_+16*r)*136 + fb*32}")
            for db in range(2): k(f"ds_read_b64_tr_b16 {ar(s_*16+8+db*4+2*r,2)}, v{A_VR} offset:{VV + (32*s_+16*r)*72 + db*32}")
    fm_part1(0)
    KV, ZZ = 64, 80
    for s_ in range(4):
        k(f"s_waitcnt lgkmcnt({min(15, 24 - 8*s_)})")
        for fb in range(2):
            for db in range(2):
                d = vr(KV + (db * 2 + fb) * 4, 4)
                k(f"{MF} {d}, {ar(s_*16+fb*4,4)}, {ar(s_*16+8+db*4,4)}, {'0' if s_ == 0 else d}")
            d = vr(ZZ + fb * 4, 4)
            k(f"{MF} {d}, {ar(s_*16+fb*4,4)}, {vr(ONES,4)}, {'0' if s_ == 0 else d}")
    k(f"s_lshl_b32 s82, s{S_HP}, 2\ns_add_u32 s82, s82, s{S_WAVE}")
    k("s_lshl_b32 s83, s82, 15")
    k(f"s_lshl_b32 s84, s{S_RB1}, 10\ns_add_u32 s84, s84, s83\ns_add_u32 s85, s84, 16384")
    k("s_lshl_b32 s90, s82, 11")
    k(f"s_lshl_b32 s91, s82, {FS+4}\ns_add_u32 s91, s91, {F_KV}\ns_lshl_b32 s92, s{S_RB1}, {FS}\ns_add_u32 s92, s92, s91")
    k(f"v_and_b32 v{VT}, 15, v{LANE}\nv_cmp_eq_u32 vcc, s{S_RB1}, v{VT}")
    k("s_nop 2")
    for db in range(2):
        for j in range(4): k(f"v_cvt_pk_bf16_f32 v{88+db*4+j}, v{KV+db*8+2*j}, v{KV+db*8+2*j+1}")
    k(f"buffer_store_dwordx4 {vr(88,4)}, v{L16}, {sr(SRD_B,4)}, s84 offen sc1")
    k(f"buffer_store_dwordx4 {vr(92,4)}, v{L16}, {sr(SRD_B,4)}, s85 offen sc1")
    k("s_and_saveexec_b64 s[96:97], vcc")
    k(f"buffer_store_dwordx4 {vr(ZZ,4)}, v{L16}, {sr(SRD_C,4)}, s90 offen sc1")
    k(f"buffer_store_dwordx4 {vr(ZZ+4,4)}, v{L16}, {sr(SRD_C,4)}, s90 offen offset:1024 sc1")
    k("s_mov_b64 exec, s[96:97]")
    k.stamp("kv stored")
    fm_part2()
    publish(k, 92, VT + 1)
    k.stamp("kv published")
    k("s_mov_b32 s93, s83")
    g2 = setup_gemm24(k, 2, opt, 96)
    k("s_mov_b32 s83, s93")
    g2.prefetch(k, 8)
    fm_part3(EK)
    k(f"v_lshlrev_b32 v{VT}, {FS}, v{VT}")
    wait_flags(k, [(VT, 91, 1)], VT + 1)
    k.stamp("kv ready")
    k(f"buffer_load_dwordx4 {vr(ZZ,4)}, v{L16}, {sr(SRD_C,4)}, s90 offen sc1")
    k(f"buffer_load_dwordx4 {vr(ZZ+4,4)}, v{L16}, {sr(SRD_C,4)}, s90 offen offset:1024 sc1")
    for i in range(32):
        if i % 4 == 0 and i: k("s_add_u32 s83, s83, 4096")
        k(f"buffer_load_dwordx4 {ar(4*i,4)}, v{L16}, {sr(SRD_B,4)}, s83 offen offset:{(i%4)*1024} sc1")
    srd(k, SRD_T, P_WS, S * D * 2, WS_O)
    k("s_waitcnt vmcnt(32)")
    for sh in (8, 4, 2, 1):
        for j in range(8): k(f"v_add_f32_dpp v{ZZ+j}, v{ZZ+j}, v{ZZ+j} row_ror:{sh} row_mask:0xf bank_mask:0xf")
    k(f"v_and_b32 v{VT+1}, 1, v{LANE}\nv_cmp_eq_u32 vcc, 0, v{VT+1}")
    for j in range(4): k(f"v_cvt_pk_bf16_f32 v{BF+8+j}, v{ZZ+2*j}, v{ZZ+2*j+1}")
    for j in range(4): k(f"v_cndmask_b32 v{BF+8+j}, v{ONES}, v{BF+8+j}, vcc")
    for i in range(32):
        db, pp = divmod(i, 16)
        if i % 2 == 0: k(f"s_waitcnt vmcnt({30 - i})")
        for fb in range(2):
            d = vr(KV + (db * 2 + fb) * 4, 4)
            k(f"{MF} {d}, {vr(SEL + (2 if fb == 0 else 0), 4)}, {ar(4*i,4)}, {'0' if pp == 0 else d}")
    k(f"s_mul_i32 s82, s{S_WAVE}, 3072\ns_add_u32 s82, s82, {SH}")
    k(f"v_add_u32 v{VT+1}, s82, v{L16}\nv_add_u32 v{VT+2}, {SH}, v{L16}")
    k("s_nop 6")
    for db in range(2):
        for j in range(4): k(f"v_cvt_pk_bf16_f32 v{BF+db*4+j}, v{KV+db*8+2*j}, v{KV+db*8+2*j+1}")
    for j in range(3): k(f"ds_write_b128 v{VT+1}, {vr(BF+4*j,4)} offset:{j*1024}")
    k("s_waitcnt lgkmcnt(0)\ns_barrier")
    for i in range(12): k(f"ds_read_b128 {ar(4*i,4)}, v{VT+2} offset:{i*1024}")
    k(f"s_lshl_b32 s82, s{S_RB1}, 3\ns_lshl_b32 s83, s{S_WAVE}, 1\ns_add_u32 s82, s82, s83\ns_lshl_b32 s82, s82, 15")
    k(f"s_lshl_b32 s83, s{S_HP}, 11\ns_add_u32 s82, s82, s83\ns_add_u32 s83, s82, 0x8000")
    k(f"s_lshl_b32 s84, s{S_RB1}, 2\ns_add_u32 s84, s84, s{S_WAVE}\ns_lshl_b32 s84, s84, {FS+4}\ns_lshl_b32 s85, s{S_HP}, {FS}\ns_add_u32 s84, s84, s85\ns_add_u32 s84, s84, {F_O}")
    k("s_waitcnt lgkmcnt(0)")
    for g, (hh, t) in enumerate(groups):
        for sg in range(2):
            for j in range(3):
                k(f"{MF} {vr((g*2+sg)*12+4*j,4)}, {ar(((hh*2+sg)*3+j)*4,4)}, {vr(EK+(g*2+sg)*4,4)}, 0")
    k("s_nop 7")
    for g, (hh, t) in enumerate(groups):
        n1, n2 = g * 24, g * 24 + 12
        D1, S1, D2, S2 = n1 + 8, n1 + 9, n2 + 8, n2 + 9
        k(f"v_mul_f32 v{n1+10}, v{S1}, v{S2}")
        k(f"v_mul_f32 v{n1+10}, 0x358637bd, v{n1+10}")
        k(f"v_fmac_f32 v{n1+10}, v{D1}, v{S2}\nv_fmac_f32 v{n1+10}, v{D2}, v{S1}")
        k(f"v_rcp_f32 v{n1+10}, v{n1+10}")
        k("s_nop 0")
        k(f"v_mul_f32 v{D1}, v{S2}, v{n1+10}\nv_mul_f32 v{D2}, v{S1}, v{n1+10}")
        for j in range(4): k(f"v_pk_mul_f32 {vr(n1+2*j,2)}, {vr(n1+2*j,2)}, {vr(D1,2)} op_sel_hi:[1,0]")
        for j in range(4): k(f"v_pk_fma_f32 {vr(n1+2*j,2)}, {vr(n2+2*j,2)}, {vr(D2,2)}, {vr(n1+2*j,2)} op_sel_hi:[1,0,1]")
        for j in range(4): k(f"v_cvt_pk_bf16_f32 v{n2+j}, v{n1+2*j}, v{n1+2*j+1}")
        k(f"buffer_store_dwordx4 {vr(n2,4)}, v{L16}, {sr(SRD_T,4)}, s{82+t} offen offset:{hh*1024} sc1")
    k.stamp("o stored")
    CU, AU, WW, TT = 128, 144, 152, 156
    for i in range(8): k(f"v_accvgpr_read_b32 v{CU+2*i}, a{A_UT+32+i}")
    silu_block(k, [CU + 2 * i for i in range(8)])
    mko = len(k.L)
    g2.V_X = 48
    srd(k, SRD_A, P_X, S * D * 2)
    V_XA = 47
    k(f"v_lshrrev_b32 v{VT+1}, 4, v{LANE}")
    k(f"v_and_b32 v{VT+2}, 15, v{LANE}\nv_lshlrev_b32 v{VT+2}, 11, v{VT+2}\nv_lshl_add_u32 v{V_XA}, v{VT+1}, 3, v{VT+2}")
    k(f"s_lshl_b32 s82, s{S_RB2}, 3\ns_lshl_b32 s83, s{S_WAVE}, 1\ns_add_u32 s82, s82, s83\ns_lshl_b32 s82, s82, 15\ns_lshl_b32 s83, s{S_NT}, 7\ns_add_u32 s82, s82, s83\ns_add_u32 s83, s82, 32768")
    for t in range(2):
        for b in range(4):
            k(f"buffer_load_dwordx2 {vr(g2.V_X+(t*4+b)*2,2)}, v{V_XA}, {sr(SRD_A,4)}, s{82+t} offen offset:{b*32}")
    publish(k, 84, VT + 2, mko)
    k.stamp("o published")
    mark1 = len(k.L)
    for j in range(8): k(f"v_mov_b32 v{AU+j}, 0")
    for i in range(8):
        for d in range(4): k(f"v_accvgpr_read_b32 v{WW+d}, a{A_UT+4*i+d}")
        for d in range(4):
            k(f"v_lshlrev_b32 v{TT}, 16, v{WW+d}\nv_and_b32 v{TT+1}, 0xffff0000, v{WW+d}")
            k(f"v_pk_fma_f32 {vr(AU+2*d,2)}, {vr(TT,2)}, {vr(CU+2*i,2)}, {vr(AU+2*d,2)} op_sel_hi:[1,0,1]")
    k("s_nop 1")
    for j in range(4): k(f"v_permlane32_swap_b32 v{AU+j}, v{AU+j+4}")
    k("s_nop 1")
    for j in range(4): k(f"v_add_f32 v{AU+j}, v{AU+j}, v{AU+j+4}")
    k("s_nop 1")
    for j in range(2): k(f"v_permlane16_swap_b32 v{AU+j}, v{AU+j+2}")
    k("s_nop 1")
    for j in range(2): k(f"v_add_f32 v{AU+j}, v{AU+j}, v{AU+j+2}")
    k("s_nop 1")
    for j in range(2): k(f"v_add_f32_dpp v{AU+j}, v{AU+j}, v{AU+j} row_ror:8 row_mask:0xf bank_mask:0xf")
    sprinkle(k, mark1, g3_early_units(k.g3, opt.get("g3_e2", 7), 254), skip=0)
    k(f"v_and_b32 v{TT}, 7, v{LANE}\nv_lshlrev_b32 v{TT}, 5, v{TT}\nv_lshrrev_b32 v{TT+1}, 5, v{LANE}\nv_lshl_add_u32 v{TT}, v{TT+1}, 4, v{TT}")
    k(f"v_bfe_u32 v{TT+1}, v{LANE}, 4, 1\nv_lshl_add_u32 v{TT}, v{TT+1}, 3, v{TT}")
    srd(k, SRD_D, P_WS, MP_BYTES, WS_MODP)
    k(f"v_or_b32 v{AU}, 1, v{AU}\nv_or_b32 v{AU+1}, 1, v{AU+1}")
    k(f"buffer_store_dwordx2 {vr(AU,2)}, v{TT}, {sr(SRD_D,4)}, s{S_MO} offen sc1")
    return g2

A_PARK = 224
S3_SRD, S3_WB, S3_KW = 64, 68, 69
def setup_gemm3_early(k, opt, LANE, VT):
    c = Sched(); common_gemm(c)
    NS, R = 4, 8
    STAGE = 28672
    V_RD, V_DMA, V_TOK = 224, 226, 233
    c.V_RD, c.V_DMA, c.V_TOK, c.LANE, c.L16, c.VT = V_RD, V_DMA, V_TOK, 237, 238, 248
    c.srd_w, c.s_wbase, c.s_kw = S3_SRD, S3_WB, S3_KW
    order(c, k, opt, 'g3', ['win', [4, 4, 8], 0])
    k(f"s_lshr_b32 s80, s{S_WAVE}, 1\ns_and_b32 s81, s{S_WAVE}, 1")
    k(f"s_mul_i32 s83, s80, {32*7168}\ns_mul_i32 s{S_TMP}, s{S_FT}, 224\ns_add_u32 s83, s83, s{S_TMP}")
    for i in range(7):
        k(f"v_add_u32 v{VT+2}, {i*64}, v{LANE}")
        k(f"v_mul_u32_u24 v{VT+3}, 4682, v{VT+2}")
        k(f"v_lshrrev_b32 v{VT+3}, 16, v{VT+3}")
        k(f"v_mul_u32_u24 v{VT+4}, 14, v{VT+3}")
        k(f"v_sub_u32 v{VT+4}, v{VT+2}, v{VT+4}")
        k(f"v_mul_u32_u24 v{VT+3}, 7168, v{VT+3}")
        k(f"v_lshl_add_u32 v{VT+3}, v{VT+4}, 4, v{VT+3}")
        k(f"v_add_u32 v{VT+3}, s83, v{VT+3}")
        k(f"v_accvgpr_write_b32 a{A_PARK+i}, v{VT+3}")
    k(f"s_mul_i32 s{S3_WB}, s81, 14336\ns_mul_i32 s82, s80, 7168\ns_add_u32 s{S3_WB}, s{S3_WB}, s82")
    k(f"s_cmp_eq_u32 s81, 0\ns_cselect_b32 s{S3_SRD}, s{P_W1}, s{P_W3}\ns_cselect_b32 s{S3_SRD+1}, s{P_W1+1}, s{P_W3+1}")
    k(f"s_mov_b32 s{S3_SRD+2}, {D*F*2}\ns_mov_b32 s{S3_SRD+3}, 0x20000")
    c.NB, c.TB, c.KS, c.SPK, c.KT, c.NS, c.R = 14, 4, 1, 2, 16, NS, R
    c.acc = lambda b, t: vr((b * 4 + t) * 4, 4)
    c.tf = lambda slot, ks, t: 112 + (slot * 4 + t) * 4
    ph = lambda sl: 3 - sl
    c.rd = lambda sl, b, sub, r: (V_RD + ph(sl) // 2, (ph(sl) % 2) * STAGE + (b % 2) * 14336 + (32 * sub + 16 * r) * 224 + 32 * (b // 2))
    c.slot_addr = lambda sl: ph(sl) * STAGE
    c.dma = [(V_DMA + i, i * 1024, 0) for i in range(7)]
    c.v_tok = [V_TOK + t for t in range(4)]
    c.w_stride = 64 * 7168
    c.drop = opt.get("g3_drop", ())
    c.pro_units, c.ramp_rate, c.read_margin = opt.get("g3_pro", 12), (lambda st: opt.get("g3_ramp", 12) if st < 6 else 8), 8
    c.lookahead = opt.get("g3_la", 4)
    std_sched(c)
    TL = c.TL = opt.get("g3_tail", 0)
    if TL:
        tail = c.steps[32 - TL:]
        c.steps = c.steps[:32 - TL] + [dict(st, frags=st["frags"][:8]) for st in tail] + [dict(st, frags=st["frags"][8:]) for st in tail]
    return c
def g3_early_units(c, n, vtmp):
    out = []
    for j in range(n):
        t = c.prefetch_txt(1)
        i = (c.pre_dma - 1) % 7
        ld = t[-1].replace(f"v{c.V_DMA+i},", f"v{vtmp},")
        out.append(t[:-1] + [f"v_accvgpr_read_b32 v{vtmp}, a{A_PARK+i}", ld])
    return out
def setup_gemm3_late(k, c):
    V_RD, V_DMA, V_TOK, LANE, L16, VT = c.V_RD, c.V_DMA, c.V_TOK, c.LANE, c.L16, c.VT
    lane_id(k, LANE)
    k(f"v_lshlrev_b32 v{L16}, 4, v{LANE}")
    for i in range(7): k(f"v_accvgpr_read_b32 v{V_DMA+i}, a{A_PARK+i}")
    k(f"v_lshrrev_b32 v{VT+3}, 2, v{LANE}\nv_mul_u32_u24 v{VT+3}, 224, v{VT+3}")
    k(f"v_and_b32 v{VT+4}, 3, v{LANE}\nv_lshl_add_u32 v{V_RD}, v{VT+4}, 3, v{VT+3}")
    k(f"v_add_u32 v{V_RD+1}, {2*28672}, v{V_RD}")
    k(f"s_lshl_b32 s82, s{S_RB3}, 4\ns_lshl_b32 s83, s{S_WAVE}, 2\ns_add_u32 s82, s82, s83\ns_lshl_b32 s82, s82, 15")
    k(f"v_add_u32 v{V_TOK}, s82, v{L16}")
    for t in range(1, 4): k(f"v_add_u32 v{V_TOK+t}, {t*0x8000}, v{V_TOK}")

def sprinkle(k, mark, groups, skip=4):
    if not groups: return
    seg = k.L[mark:]
    stepn = max(1, (len(seg) - skip) // len(groups))
    out, q = [], list(groups)
    for i, x in enumerate(seg):
        out.append(x)
        if q and i >= skip and (i - skip) % stepn == 0:
            assert not x.startswith("s_cmp") and not x.startswith("s_and_saveexec")
            out += q.pop(0)
    for g in q: out += g
    k.L[mark:] = out

A_X1 = 240
def phase_gemm2(k, c, opt):
    LANE, L16 = c.LANE, c.L16
    VT = 40
    k(f"v_and_b32 v252, 15, v{LANE}\nv_lshlrev_b32 v252, {FS}, v252")
    k(f"s_lshl_b32 s84, s{S_RB2}, 2\ns_add_u32 s84, s84, s{S_WAVE}\ns_lshl_b32 s84, s84, {FS+4}\ns_add_u32 s85, s84, {F_O}")
    if c.hs:
        k(f"s_add_u32 s94, s85, {F_O2 - F_O}")
        staged_wait(k, c, opt.get("g2_T", 5), 252, 85, 253, lambda sp, st: [f"s_lshl_b32 s{st}, s{sp}, 1", f"s_lshl_b32 s{st}, 3, s{st}"], pub=(95, 26))
        add_gate(k, c, 8, f"buffer_load_dword v253, v252, {sr(SRD_F,4)}, s94 offen sc1", 253)
    else:
        staged_wait(k, c, opt.get("g2_T", 6), 252, 85, 253, one_prod)
    k.stamp("o ready")
    V_G, V_C, V_S, V_GA = 64, 80, 136, 44
    p = Txt()
    srd(p, SRD_A, P_WS, S * D * 2, WS_Y)
    srd(p, SRD_B, P_WS, S * 128, WS_STAT)
    srd(p, SRD_D, P_WS, MP_BYTES, WS_MODP)
    p(f"v_lshrrev_b32 v{V_GA}, 4, v{LANE}\nv_lshlrev_b32 v{V_GA}, 4, v{V_GA}\nv_add_u32 v{V_GA}, {L_MV}, v{V_GA}")
    p(f"s_lshl_b32 s86, s{S_RB2}, 3\ns_lshl_b32 s87, s{S_WAVE}, 1\ns_add_u32 s86, s86, s87")
    p(f"s_lshl_b32 s88, s86, 15\ns_lshl_b32 s87, s{S_NT}, 11\ns_add_u32 s88, s88, s87\ns_add_u32 s89, s88, 32768")
    p(f"s_lshl_b32 s87, s{S_NT}, {FS}\ns_add_u32 s84, s84, s87\ns_add_u32 s84, s84, {F_Y}")
    p(f"s_lshl_b32 s91, s86, 11\ns_lshl_b32 s90, s{S_NT}, 8\ns_add_u32 s90, s90, s91")
    p(f"s_lshl_b32 s92, s{S_WAVE}, 16\ns_lshl_b32 s93, s{S_NT}, 12\ns_add_u32 s92, s92, s93\ns_add_u32 s92, s92, {MP_B}")
    p(f"v_lshlrev_b32 v{VT}, 2, v{LANE}")
    c.pre_loop_txt = p.L
    c.late = {}
    if opt.get("cpf", 1): c.late[6] = code_prefetch_txt(k.name, L16, 254, 80)
    m = Txt(); m.label = k.label
    MB_ = 160
    mld = [f"buffer_load_dword v{MB_+j}, v{VT}, {sr(SRD_D,4)}, s92 offen offset:{j*256} sc1" for j in range(16)]
    okm = k.label("mok")
    m(f"v_min_u32 v{MB_+16}, v{MB_}, v{MB_+1}")
    for j in range(2, 16, 2): m(f"v_min3_u32 v{MB_+16}, v{MB_+16}, v{MB_+j}, v{MB_+j+1}")
    m(f"v_cmp_eq_u32 vcc, 0, v{MB_+16}\ns_cmp_eq_u64 vcc, 0\ns_cbranch_scc1 {okm}")
    spin(m, mld, [MB_ + j for j in range(16)], MB_ + 16)
    m(f"{okm}:")
    mchk = "\n".join(m.L); m.L = []
    for st in (4, 2, 1):
        for j in range(st): m(f"v_pk_add_f32 {vr(MB_+2*j,2)}, {vr(MB_+2*j,2)}, {vr(MB_+2*(j+st),2)}")
    m(f"v_add_f32 v{MB_}, v{MB_}, v{MB_+1}")
    round_bf16(m, MB_)
    m(f"v_add_f32 v{MB_+1}, 1.0, v{MB_}"); round_bf16(m, MB_ + 1)
    m(f"s_cmp_eq_u32 s{S_WAVE}, 2\ns_cselect_b64 vcc, -1, 0")
    m(f"v_cndmask_b32 v{MB_}, v{MB_}, v{MB_+1}, vcc")
    m(f"s_lshl_b32 s92, s{S_WAVE}, 8\ns_add_u32 s92, s92, {L_MV}\nv_add_u32 v{VT}, s92, v{VT}")
    m(f"ds_write_b32 v{VT}, v{MB_}")
    ms_ = opt.get("g2_modstep", 13)
    c.late.setdefault(ms_ - 2, []).extend([VM(x, ("mv", 0)) for x in mld])
    k_ = [x for x in m.L]
    i_ = next(i for i, x in enumerate(k_) if x.startswith("s_cmp_eq_u32"))
    c.late[ms_] = [WVM([("mv", 0)]), T(mchk)] + k_[:i_] + ["\n".join(k_[i_:])]
    ne = opt.get("g3_e3", 7 if opt.get("split", 1) else 0)
    eu = [x for g in g3_early_units(k.g3, ne, 254) for x in g]
    c.late.setdefault(14, []).extend(eu[:len(eu)//2 // 1]); c.late.setdefault(15, []).extend(eu[len(eu)//2:])
    c.last_reads = ([f"ds_read_b128 {vr(V_G+4*b,4)}, v{V_GA} offset:{b*64}" for b in range(4)] + [f"ds_read_b128 {vr(V_C+4*b,4)}, v{V_GA} offset:{512+b*64}" for b in range(4)]
                    + [f"ds_read_b128 {vr(V_S+4*b,4)}, v{V_GA} offset:{256+b*64}" for b in range(4)])
    c.run(k)
    k.stamp("g2 loop done")
    k("s_waitcnt lgkmcnt(0)\ns_nop 7")
    A = lambda b, t: (b * 2 + t) * 4
    XT = 194; V_X = c.V_X
    for t in range(2):
        for b in range(4):
            xr = V_X + (t * 4 + b) * 2
            for h in range(2): k(f"v_lshlrev_b32 v{XT+2*h}, 16, v{xr+h}\nv_and_b32 v{XT+2*h+1}, 0xffff0000, v{xr+h}")
            for h in range(2): k(f"v_pk_fma_f32 {vr(A(b,t)+2*h,2)}, {vr(A(b,t)+2*h,2)}, {vr(V_G+4*b+2*h,2)}, {vr(XT+2*h,2)}")
        PK = XT + 4 + t * 8
        for b in range(4): k(f"v_cvt_pk_bf16_f32 v{PK+2*b}, v{A(b,t)}, v{A(b,t)+1}\nv_cvt_pk_bf16_f32 v{PK+2*b+1}, v{A(b,t)+2}, v{A(b,t)+3}")
        for b in range(4):
            for h in range(2): k(f"v_lshlrev_b32 v{A(b,t)+2*h}, 16, v{PK+2*b+h}\nv_and_b32 v{A(b,t)+2*h+1}, 0xffff0000, v{PK+2*b+h}")
    SU = [XT + 20, XT + 22]; M2 = [XT + 21, XT + 23]; TM = [XT + 24, XT + 25]; AC = [XT, XT + 2]; NM = [XT + 26, XT + 28]; DF = 32
    for t in range(2): k(f"v_pk_add_f32 {vr(AC[t],2)}, {vr(A(0,t),2)}, {vr(A(0,t)+2,2)}")
    for b in range(1, 4):
        for h in range(2):
            for t in range(2): k(f"v_pk_add_f32 {vr(AC[t],2)}, {vr(AC[t],2)}, {vr(A(b,t)+2*h,2)}")
    def allred2(X):
        for sw in ("v_permlane32_swap_b32", "v_permlane16_swap_b32"):
            for t in range(2): k(f"v_mov_b32 v{TM[t]}, v{X[t]}")
            k("s_nop 0")
            for t in range(2): k(f"{sw} v{X[t]}, v{TM[t]}")
            k("s_nop 0")
            for t in range(2): k(f"v_add_f32 v{X[t]}, v{X[t]}, v{TM[t]}")
    for t in range(2): k(f"v_add_f32 v{SU[t]}, v{AC[t]}, v{AC[t]+1}")
    allred2(SU)
    for t in range(2): k(f"v_mul_f32 v{NM[t]}, {-1.0/64!r}, v{SU[t]}\nv_mov_b32 v{AC[t]}, 0\nv_mov_b32 v{AC[t]+1}, 0")
    for b in range(4):
        for h in range(2):
            for t in range(2): k(f"v_pk_add_f32 {vr(DF+2*t,2)}, {vr(A(b,t)+2*h,2)}, {vr(NM[t],2)} op_sel_hi:[1,0]")
            for t in range(2): k(f"v_pk_fma_f32 {vr(AC[t],2)}, {vr(DF+2*t,2)}, {vr(DF+2*t,2)}, {vr(AC[t],2)}")
    for t in range(2): k(f"v_add_f32 v{M2[t]}, v{AC[t]}, v{AC[t]+1}")
    allred2(M2)
    k(f"v_cmp_gt_u32 vcc, 16, v{LANE}")
    k(f"v_lshlrev_b32 v{XT+2}, 3, v{LANE}\nv_lshrrev_b32 v{XT+3}, 4, v{LANE}")
    k(f"v_cndmask_b32 v{XT}, v{SU[1]}, v{SU[0]}, vcc\nv_cndmask_b32 v{XT+1}, v{M2[1]}, v{M2[0]}, vcc")
    k(f"v_and_b32 v45, 0x78, v{XT+2}\nv_lshl_add_u32 v45, v{XT+3}, 10, v45")
    k(f"v_or_b32 v{XT+1}, 1, v{XT+1}")
    k(f"v_cmp_gt_u32 vcc, 32, v{LANE}\ns_and_saveexec_b64 s[96:97], vcc")
    k(f"buffer_store_dwordx2 {vr(XT,2)}, v{XT+2}, {sr(SRD_B,4)}, s90 offen sc1")
    k("s_mov_b64 exec, s[96:97]")
    k.stamp("stat stored")
    for t in range(2):
        for b in range(4):
            for h in range(2): k(f"v_pk_mul_f32 {vr(A(b,t)+2*h,2)}, {vr(A(b,t)+2*h,2)}, {vr(V_C+4*b+2*h,2)}")
    for j in range(16): k(f"v_accvgpr_write_b32 a{A_X1+j}, v{XT+4+j}")
    g3 = k.g3
    setup_gemm3_late(k, g3)
    g3.prefetch(k, opt.get("g3_pre0", 0))
    ST = 48
    spin(k, [f"buffer_load_dwordx2 {vr(ST+t*8+j*2,2)}, v45, {sr(SRD_B,4)}, s91 offen offset:{t*128+j*256} sc1" for t in range(2) for j in range(4)],
         [ST + 2 * j + 1 for j in range(8)], XT)
    k.stamp("stat ready")
    for t in range(2):
        b = ST + t * 8
        k(f"v_add_f32 v{SU[t]}, v{b}, v{b+2}\nv_add_f32 v{TM[t]}, v{b+4}, v{b+6}\nv_add_f32 v{SU[t]}, v{SU[t]}, v{TM[t]}")
        k(f"v_add_f32 v{M2[t]}, v{b+1}, v{b+3}\nv_add_f32 v{TM[t]}, v{b+5}, v{b+7}\nv_add_f32 v{M2[t]}, v{M2[t]}, v{TM[t]}")
    allred2(SU)
    for t in range(2): k(f"v_mul_f32 v{SU[t]}, {-1.0/1024!r}, v{SU[t]}")
    for j in range(4):
        for t in range(2): k(f"v_fmamk_f32 v{ST+t*8+2*j}, v{ST+t*8+2*j}, {1.0/64!r}, v{SU[t]}")
        for t in range(2): k(f"v_mul_f32 v{ST+t*8+2*j}, v{ST+t*8+2*j}, v{ST+t*8+2*j}")
        for t in range(2): k(f"v_fmac_f32 v{M2[t]}, 0x42800000, v{ST+t*8+2*j}")
    allred2(M2)
    for t in range(2): k(f"v_mov_b32 v{TM[t]}, 0x3727c5ac\nv_fmac_f32 v{TM[t]}, {1.0/1024!r}, v{M2[t]}")
    for t in range(2): k(f"v_rsq_f32 v{NM[t]}, v{TM[t]}")
    k("s_nop 0")
    for t in range(2): k(f"v_mul_f32 v{NM[t]+1}, v{SU[t]}, v{NM[t]}")
    for t in range(2):
        YK = ST + t * 8
        for b in range(4):
            for h in range(2): k(f"v_pk_fma_f32 {vr(XT+2*h,2)}, {vr(V_C+4*b+2*h,2)}, {vr(NM[t],2)}, {vr(V_S+4*b+2*h,2)} op_sel:[0,1,0] op_sel_hi:[1,1,1]")
            for h in range(2): k(f"v_pk_fma_f32 {vr(XT+2*h,2)}, {vr(A(b,t)+2*h,2)}, {vr(NM[t],2)}, {vr(XT+2*h,2)} op_sel_hi:[1,0,1]")
            k(f"v_cvt_pk_bf16_f32 v{YK+2*b}, v{XT}, v{XT+1}\nv_cvt_pk_bf16_f32 v{YK+2*b+1}, v{XT+2}, v{XT+3}")
        for s_ in range(2): k(f"buffer_store_dwordx4 {vr(YK+4*s_,4)}, v{L16}, {sr(SRD_A,4)}, s{88+t} offen offset:{s_*1024} sc1")
    publish(k, 84, 40)
    k.stamp("y published")
    g3.prefetch(k, opt.get("g3_pre", 0))
    return g3

def phase_gemm3(k, c, opt):
    LANE, L16, VT = c.LANE, c.L16, c.VT
    NB, TB = 14, 4
    srd(k, SRD_T, P_WS, S * D * 2, WS_Y)
    srd(k, SRD_C, P_WS, S * F * 2, WS_HH)
    k(f"v_and_b32 v{VT}, 31, v{LANE}\nv_lshlrev_b32 v{VT}, {FS}, v{VT}")
    k(f"s_lshl_b32 s84, s{S_RB3}, 2\ns_add_u32 s84, s84, s{S_WAVE}")
    k(f"s_lshl_b32 s85, s84, {FS+5}\ns_add_u32 s85, s85, {F_Y}")
    staged_wait(k, c, opt.get("g3_T", 3), VT, 85, VT + 1, one_prod, dup16=True)
    k.stamp("y ready")
    p = Txt()
    p(f"s_mul_i32 s88, s84, {448*1024}\ns_mul_i32 s92, s{S_FT}, 3584\ns_add_u32 s88, s88, s92")
    for t in range(1, 4): p(f"s_add_u32 s{88+t}, s88, {t*112*1024}")
    p(f"s_lshl_b32 s93, s84, {FS+5}\ns_lshl_b32 s94, s{S_FT}, {FS}\ns_add_u32 s93, s93, s94\ns_add_u32 s94, s93, {F_HB}\ns_add_u32 s93, s93, {F_HH}")
    p(f"s_mov_b32 s86, {-LOG2E!r}\ns_mov_b32 s87, {-LOG2E!r}")
    SB = 241
    p(f"v_lshrrev_b32 v{SB}, 1, v{L16}")
    c.pre_loop_txt = p.L
    if opt.get("cpf", 1):
        c.late[6] = code_prefetch_txt(k.name, L16, 254, 80, junk="v240")
        c.late[22] = code_prefetch_txt(k.name, L16, 254, 80, junk="v240")
    if opt.get("w2touch", 1):
        ws_ = opt.get("w2steps", [16]); per = 56 // len(ws_)
        for j, st_ in enumerate(ws_):
            c.late.setdefault(st_, []).extend([f"s_lshl_b32 s80, s2, 2", f"s_add_u32 s80, s80, s{S_WAVE}", "s_mul_i32 s80, s80, 7168", f"s_add_u32 s80, s80, {j*per*128}",
                      f"v_min_u32 v253, {per-1}, v{LANE}", "v_lshlrev_b32 v253, 7, v253", "v_add_u32 v253, s80, v253",
                      f"global_load_dword v240, v253, s[{P_W2}:{P_W2+1}]"])
    t4 = Txt()
    g4 = setup_gemm4p(t4, opt, 242)
    half = len(t4.L) // 2
    c.late[19] = t4.L[:half]; c.late[20] = t4.L[half:]
    pf = g4.prefetch_txt(4); c.late[29] = pf
    pf = g4.prefetch_txt(4); c.late[30] = pf
    def G(s, t): return ((2 * s) * TB + t) * 4
    def Uu(s, t): return ((2 * s + 1) * TB + t) * 4
    def act(k, slots, t, scalar=False):
        if scalar:
            for s in slots:
                for r in range(4):
                    k(f"v_mul_f32 v{Uu(s,t)+r}, v{G(s,t)+r}, v{Uu(s,t)+r}")
                    k(f"v_mul_f32 v{G(s,t)+r}, s86, v{G(s,t)+r}")
            rs = [(s, r) for s in slots for r in range(4)]
            for i, (s, r) in enumerate(rs): k(f"v_exp_f32 v{G(s,t)+r}, v{G(s,t)+r}")
            for i, (s, r) in enumerate(rs): k(f"v_add_f32 v{G(s,t)+r}, 1.0, v{G(s,t)+r}")
            for i, (s, r) in enumerate(rs): k(f"v_rcp_f32 v{G(s,t)+r}, v{G(s,t)+r}")
            for i, (s, r) in enumerate(rs): k(f"v_mul_f32 v{Uu(s,t)+r}, v{Uu(s,t)+r}, v{G(s,t)+r}")
            return
        for s in slots:
            for h in range(2):
                k(f"v_pk_mul_f32 {vr(Uu(s,t)+2*h,2)}, {vr(G(s,t)+2*h,2)}, {vr(Uu(s,t)+2*h,2)}")
                k(f"v_pk_mul_f32 {vr(G(s,t)+2*h,2)}, {vr(G(s,t)+2*h,2)}, s[86:87]")
        for s in slots:
            for r in range(4): k(f"v_exp_f32 v{G(s,t)+r}, v{G(s,t)+r}")
        for s in slots:
            for h in range(2): k(f"v_pk_add_f32 {vr(G(s,t)+2*h,2)}, {vr(G(s,t)+2*h,2)}, 1.0 op_sel_hi:[1,0]")
        for s in slots:
            for r in range(4): k(f"v_rcp_f32 v{G(s,t)+r}, v{G(s,t)+r}")
        for s in slots:
            for h in range(2): k(f"v_pk_mul_f32 {vr(Uu(s,t)+2*h,2)}, {vr(Uu(s,t)+2*h,2)}, {vr(G(s,t)+2*h,2)}")
    def pair(k, pr, t, scalar=False):
        s0, s1 = 2 * pr, 2 * pr + 1
        act(k, [s0, s1], t, scalar)
        d = G(s0, t)
        k(f"v_cvt_pk_bf16_f32 v{d}, v{Uu(s0,t)}, v{Uu(s0,t)+1}\nv_cvt_pk_bf16_f32 v{d+1}, v{Uu(s0,t)+2}, v{Uu(s0,t)+3}")
        k(f"v_cvt_pk_bf16_f32 v{d+2}, v{Uu(s1,t)}, v{Uu(s1,t)+1}\nv_cvt_pk_bf16_f32 v{d+3}, v{Uu(s1,t)+2}, v{Uu(s1,t)+3}")
        k(f"buffer_store_dwordx4 {vr(d,4)}, v{L16}, {sr(SRD_C,4)}, s{88+t} offen offset:{pr*1024} sc1")
    ea = Txt(); eb = Txt()
    nin = opt.get("g3_nin", 8) if c.TL else 0
    for i, (pr, t) in enumerate([(pr, t) for pr in range(2) for t in range(TB)]):
        if i < nin: pair(ea, pr, t, opt.get("g3_scalar", 0))
        else: pair(eb, pr, t)
    if c.TL:
        nst = opt.get("g3_east", c.TL - 1)
        per = -(-len(ea.L) // nst)
        c.step_extra = lambda st: ea.L[(st - 32) * per:(st - 31) * per] if st >= 32 else []
    c.run(k)
    k.stamp("g3 loop done")
    if not c.TL: k("s_nop 7")
    for x in eb.L: k(x)
    mkA = len(k.L)
    k("s_nop 4\ns_barrier")
    na = opt.get("g3_pubA", 2)
    for t in range(na): pair(k, 2, t)
    publish(k, 93, 252, mkA)
    k.stamp("hA published")
    mark3 = len(k.L)
    for t in range(na, TB): pair(k, 2, t)
    grp = []
    for j in range(8):
        t_ = g4.prefetch_txt(1); grp.append(t_[:-1] + ["s_nop 0", t_[-1]])
    sprinkle(k, mark3, grp)
    for t in range(TB):
        act(k, [6], t)
        d = G(6, t)
        k(f"v_cvt_pk_bf16_f32 v{d}, v{Uu(6,t)}, v{Uu(6,t)+1}\nv_cvt_pk_bf16_f32 v{d+1}, v{Uu(6,t)+2}, v{Uu(6,t)+3}")
        k(f"buffer_store_dwordx2 {vr(d,2)}, v{SB}, {sr(SRD_C,4)}, s{88+t} offen offset:3072 sc1")
    k.stamp("hh stored")
    return g4

def phase_gemm4(k, c, opt):
    LANE, L16 = c.LANE, c.L16
    VT = 40
    srd(k, SRD_T, P_WS, S * F * 2, WS_HH)
    srd(k, SRD_A, P_OUT, S * D * 2)
    k(f"v_and_b32 v{VT}, 31, v{LANE}\nv_lshlrev_b32 v{VT}, 2, v{VT}")
    k(f"s_lshl_b32 s84, s{S_RB2}, 1\ns_lshr_b32 s85, s{S_WAVE}, 1\ns_add_u32 s84, s84, s85\ns_lshl_b32 s84, s84, {FS+5}\ns_add_u32 s84, s84, {F_HH}")
    wait_flags(k, [(VT, 84, 1)], VT + 1)
    k.stamp("hh ready")
    V_G, V_GA, V_XA, V_X = 64, 44, 45, 48
    p = Txt()
    p(f"v_lshrrev_b32 v{VT}, 4, v{LANE}\nv_lshlrev_b32 v{V_GA}, 4, v{VT}\nv_add_u32 v{V_GA}, {L_MV}, v{V_GA}")
    p(f"v_and_b32 v{VT+1}, 15, v{LANE}\nv_lshlrev_b32 v{VT+1}, 11, v{VT+1}")
    p(f"v_and_b32 v{VT+2}, 1, v{VT}\nv_lshl_add_u32 v{VT+1}, v{VT+2}, 5, v{VT+1}")
    p(f"v_lshrrev_b32 v{VT+2}, 1, v{VT}\nv_lshl_add_u32 v{V_XA}, v{VT+2}, 4, v{VT+1}")
    p(f"s_lshl_b32 s86, s{S_RB2}, 3\ns_lshl_b32 s87, s{S_WAVE}, 1\ns_add_u32 s86, s86, s87\ns_lshl_b32 s86, s86, 15\ns_lshl_b32 s87, s{S_NT}, 7\ns_add_u32 s86, s86, s87\ns_add_u32 s87, s86, 32768")
    for j in range(16): p(f"v_accvgpr_read_b32 v{V_X+j}, a{A_X1+j}")
    c.pre_loop_txt = p.L
    c.last_reads = [f"ds_read_b128 {vr(V_G+4*b,4)}, v{V_GA} offset:{768+b*64}" for b in range(4)]
    c.run(k)
    k.stamp("g4 loop done")
    k("s_waitcnt lgkmcnt(0)\ns_nop 7")
    A = lambda b, t: (b * 2 + t) * 4
    XT = 96
    for t in range(2):
        for b in range(4):
            xr = V_X + (t * 4 + b) * 2
            for h in range(2): k(f"v_lshlrev_b32 v{XT+2*h}, 16, v{xr+h}\nv_and_b32 v{XT+2*h+1}, 0xffff0000, v{xr+h}")
            for h in range(2): k(f"v_pk_fma_f32 {vr(A(b,t)+2*h,2)}, {vr(A(b,t)+2*h,2)}, {vr(V_G+4*b+2*h,2)}, {vr(XT+2*h,2)}")
        PK = XT + 4 + t * 8
        for b in range(4): k(f"v_cvt_pk_bf16_f32 v{PK+2*b}, v{A(b,t)}, v{A(b,t)+1}\nv_cvt_pk_bf16_f32 v{PK+2*b+1}, v{A(b,t)+2}, v{A(b,t)+3}")
        k("s_nop 1")
        for s_ in range(2): k(f"v_permlane16_swap_b32 v{PK+4*s_}, v{PK+4*s_+2}\nv_permlane16_swap_b32 v{PK+4*s_+1}, v{PK+4*s_+3}")
        for s_ in range(2): k(f"buffer_store_dwordx4 {vr(PK+4*s_,4)}, v{V_XA}, {sr(SRD_A,4)}, s{86+t} offen offset:{s_*64}")

def build_mega(instr=False, opt=None, name="mega_kernel"):
    opt = opt or {}
    k = Mega(name, 256, 256, LDS_TOTAL, vgpr=256, agpr=256, sgpr=102)
    k.instr = instr; k.names = []; k.only = opt.get("only")
    end = k.label("end")
    far = k.label("go")
    k(f"s_cmp_lt_u32 s2, 256\ns_cbranch_scc1 {far}\ns_endpgm\n{far}:")
    if opt.get("fused", 1):
        code_prefetch_setup(k, name)
        k("v_and_b32 v104, 63, v0\nv_lshlrev_b32 v105, 4, v104\nv_lshlrev_b32 v254, 5, v0")
        k("global_load_dword a232, v254, s[100:101]")
        k("s_load_dwordx2 s[96:97], s[0:1], 88")
        if opt.get("dbgout"): k("s_load_dwordx2 s[72:73], s[0:1], 88")
    k("s_load_dwordx8 s[4:11], s[0:1], 0")
    k("s_load_dwordx2 s[12:13], s[0:1], 64")
    k("s_load_dwordx2 s[14:15], s[0:1], 40")
    k("s_load_dwordx4 s[16:19], s[0:1], 48")
    k("s_load_dwordx2 s[98:99], s[0:1], 72")
    k("s_load_dwordx2 s[24:25], s[0:1], 80")
    k("s_load_dwordx2 s[28:29], s[0:1], 96")
    if instr: k(f"v_mov_b32 v{VSTAMP}, 0")
    ids(k)
    k(f"s_lshr_b32 s80, s{S_IDX}, 2\ns_add_u32 s{S_R4}, s80, s{S_IDX}\ns_and_b32 s81, s{S_IDX}, 3\ns_lshl_b32 s81, s81, 1\ns_add_u32 s{S_R8}, s80, s81")
    k(f"s_and_b32 s80, s{S_IDX}, 3\ns_lshl_b32 s{S_FT}, s{S_XCD}, 2\ns_add_u32 s{S_FT}, s{S_FT}, s80\ns_lshr_b32 s{S_RB3}, s{S_IDX}, 2")
    if opt.get("fused", 1):
        for x in code_prefetch_txt(name, 105, 254, 80): k(x)
    k.stamp("start")
    g1 = (phase_front_fused if opt.get("fused", 1) else phase_front)(k, opt, name)
    g2 = (phase_gemm1s if opt.get('split', 1) else phase_gemm1)(k, g1, opt)
    g3 = phase_gemm2(k, g2, opt)
    g4 = phase_gemm3(k, g3, opt)
    (phase_gemm4p if opt.get('g4_pair', 1) else phase_gemm4)(k, g4, opt)
    if instr:
        k("s_waitcnt vmcnt(0)")
        k.stamp("end")
        k(f"s_add_u32 s84, s{P_WS}, {WS_DBG}\ns_addc_u32 s85, s{P_WS+1}, 0\ns_mov_b32 s86, 0x100000\ns_mov_b32 s87, 0x20000")
        k(f"s_lshl_b32 s88, s2, 2\ns_add_u32 s88, s88, s{S_WAVE}\ns_lshl_b32 s88, s88, 8")
        lane_id(k, 1)
        k("v_lshlrev_b32 v1, 2, v1")
        k(f"buffer_store_dword v{VSTAMP}, v1, s[84:87], s88 offen")
        if opt.get("dbgout"):
            sk = k.label("nodbg")
            k(f"s_lshl_b32 s88, s2, 2\ns_add_u32 s88, s88, s{S_WAVE}\ns_cmp_lg_u32 s88, {opt['dbgout']*4}\ns_cbranch_scc1 {sk}")
            k("s_mov_b32 s84, s72\ns_mov_b32 s85, s73\ns_mov_b32 s86, 64\ns_mov_b32 s87, 0x20000")
            k(f"v_readlane_b32 s89, v{VSTAMP}, 0\ns_nop 3\nv_subrev_u32 v2, s89, v{VSTAMP}")
            k("buffer_store_dword v2, v1, s[84:87], 0 offen offset:12")
            k(f"{sk}:")
    k("s_endpgm")
    k(f"{name}_end:")
    return k
```

```python
import sys
from asmlib import *
from gemm import *
from layout import *
LOG2E = 1.4426950408889634
P_X, P_WQKV, P_WPHI, P_WO, P_W1, P_W3, P_W2, P_OUT, P_WS = 4, 6, 8, 10, 14, 16, 18, 24, 28
P_DBG, S_MB, S_MO = 96, 77, 79
P_C, P_WMOD = 12, 98
S_WAVE, S_XCD, S_IDX = 3, 30, 31
SRD_W, SRD_T, SRD_A, SRD_B, SRD_C, SRD_D, SRD_F = 32, 36, 40, 44, 48, 52, 56
S_KW, S_KT, S_WB, S_ROT, S_TMP, S_ROT2 = 60, 62, 76, 77, 78, 79
S_RB1, S_HP, S_RB2, S_NT, S_RB3, S_FT = 26, 27, 26, 27, 22, 23
S_R8, S_R4 = 20, 21
VSTAMP = 255
L_WPH, L_UTC = 110592, 105472
L_UT3, L_MV, L_R2 = 114688, 128000, 129792
LDS_TOTAL = 163584

class Mega(Kernel):
    nst = 0
    only = None
    def stamp(self, name=""):
        if not self.instr: return
        if self.only is not None and not any(name.startswith(o) for o in self.only): return
        if self.only is None and name[:3] in ("kp ", "qp "): return
        self("s_waitcnt lgkmcnt(0)\ns_memrealtime s[0:1]\ns_waitcnt lgkmcnt(0)")
        self(f"v_writelane_b32 v{VSTAMP}, s0, {self.nst}")
        self("s_nop 3\ns_memtime s[0:1]\ns_waitcnt lgkmcnt(0)")
        self(f"v_writelane_b32 v{VSTAMP}, s0, {self.nst + 32}")
        self.names.append(name); self.nst += 1

def lane_id(k, v):
    k(f"v_mbcnt_lo_u32_b32 v{v}, -1, 0\nv_mbcnt_hi_u32_b32 v{v}, -1, v{v}")

def code_prefetch_setup(k, name, s_pc=100):
    lab = k.label("pc")
    k(f"s_getpc_b64 s[{s_pc}:{s_pc+1}]")
    k(f"{lab}:")
    k(f"s_sub_u32 s{s_pc}, s{s_pc}, {lab}-{name}\ns_subb_u32 s{s_pc+1}, s{s_pc+1}, 0")
def code_prefetch_txt(name, v_l16, vt, s_tmp, s_idx=S_IDX, s_wave=S_WAVE, s_pc=100, junk="a232"):
    return [f"s_lshl_b32 s{s_tmp}, s{s_idx}, 2", f"s_add_u32 s{s_tmp}, s{s_tmp}, s{s_wave}", f"s_lshl_b32 s{s_tmp}, s{s_tmp}, 10",
            f"v_add_u32 v{vt}, s{s_tmp}, v{v_l16}", f"v_min_u32 v{vt}, {name}_end-{name}-4, v{vt}",
            f"global_load_dword {junk}, v{vt}, s[{s_pc}:{s_pc+1}]"]

def count_vm(k, mark):
    return sum(1 for x in k.L[mark:] if is_vm(x))
def publish(k, s_off, vt, mark=None):
    k(f"v_mov_b32 v{vt}, 1\nv_mov_b32 v{vt+1}, 0")
    n = 0 if mark is None else count_vm(k, mark)
    assert n < 64
    k(f"s_waitcnt vmcnt({n})")
    k(f"buffer_store_dword v{vt}, v{vt+1}, {sr(SRD_F,4)}, s{s_off} offen sc1")

def spin(k, loads, regs, vt, s_cnt=96):
    top, ok = k.label("poll"), k.label("ok")
    k(f"s_mov_b32 s{s_cnt}, 0")
    k(f"{top}:")
    for x in loads: k(x)
    k("s_waitcnt vmcnt(0)")
    if len(regs) == 1: k(f"v_cmp_eq_u32 vcc, 0, v{regs[0]}")
    else:
        k(f"v_min_u32 v{vt}, v{regs[0]}, v{regs[1]}")
        for x in regs[2:]: k(f"v_min_u32 v{vt}, v{vt}, v{x}")
        k(f"v_cmp_eq_u32 vcc, 0, v{vt}")
    k(f"s_add_u32 s{s_cnt}, s{s_cnt}, 1")
    k(f"s_cmp_eq_u64 vcc, 0\ns_cbranch_scc1 {ok}")
    k(f"s_sleep {SLEEP}\ns_cmp_lt_u32 s{s_cnt}, 0x40000\ns_cbranch_scc1 {top}")
    k(f"{ok}:")

def wait_flags(k, polls, vt, s_cnt=96):
    top, ok = k.label("poll"), k.label("ok")
    k(f"s_mov_b32 s{s_cnt}, 0")
    k(f"{top}:")
    r = vt
    regs = []
    for va, so, ndw in polls:
        if ndw == 4: r = (r + 1) // 2 * 2
        k(f"buffer_load_dword{'x4' if ndw == 4 else ''} {vr(r,ndw)}, v{va}, {sr(SRD_F,4)}, s{so} offen sc1")
        regs += list(range(r, r + ndw)); r += ndw
    k("s_waitcnt vmcnt(0)")
    for x in regs[1:]: k(f"v_min_u32 v{regs[0]}, v{regs[0]}, v{x}")
    k(f"v_cmp_eq_u32 vcc, 0, v{regs[0]}")
    k(f"s_add_u32 s{s_cnt}, s{s_cnt}, 1")
    k(f"s_cmp_eq_u64 vcc, 0\ns_cbranch_scc1 {ok}")
    k(f"s_sleep {SLEEP}\ns_cmp_lt_u32 s{s_cnt}, 0x40000\ns_cbranch_scc1 {top}")
    k(f"{ok}:")

def staged_wait(k, c, T_, v_addr, s_off, vf, prod_of, dup16=False, skip_first=0, s_m=97, pub=None):
    ld = f"buffer_load_dword v{vf}, v{v_addr}, {sr(SRD_F,4)}, s{s_off} offen sc1"
    if T_ is None:
        spin(k, [ld], [vf], 0); return
    k(f"s_mov_b32 s{s_m}, 0")
    for kt in range(skip_first, T_):
        for x in c.pos_txt(80, kt): k(x)
        for x in prod_of(80, 81): k(x)
        k(f"s_or_b32 s{s_m}, s{s_m}, s81")
    if dup16: k(f"s_lshl_b32 s81, s{s_m}, 16\ns_or_b32 s{s_m}, s{s_m}, s81")
    top, ok = k.label("poll"), k.label("ok")
    if pub:
        mk = len(k.L); k(ld); publish(k, pub[0], pub[1], mk)
        k("s_waitcnt vmcnt(1)")
        k(f"v_cmp_eq_u32 vcc, 0, v{vf}\ns_nop 0")
        k(f"s_and_b32 s81, vcc_lo, s{s_m}\ns_cbranch_scc0 {ok}")
    k(f"s_mov_b32 s96, 0\n{top}:")
    k(ld)
    k("s_waitcnt vmcnt(0)")
    k(f"v_cmp_eq_u32 vcc, 0, v{vf}")
    k("s_add_u32 s96, s96, 1")
    k(f"s_and_b32 s81, vcc_lo, s{s_m}\ns_cbranch_scc0 {ok}")
    k(f"s_sleep {SLEEP}\ns_cmp_lt_u32 s96, 0x40000\ns_cbranch_scc1 {top}")
    k(f"{ok}:")
    add_gate(k, c, T_, ld, vf)
def add_gate(k, c, tile, ld, vf):
    m = Txt(); m.label = k.label
    okl = k.label("gok")
    m(f"v_cmp_eq_u32 vcc, 0, v{vf}\ns_cmp_eq_u64 vcc, 0\ns_cbranch_scc1 {okl}")
    spin(m, [ld], [vf], 0)
    m(f"{okl}:")
    c.gates = list(c.gates) + [(tile, [VM(ld, ("gate", tile))], [WVM([("gate", tile)]), T("\n".join(m.L))])]
one_prod = lambda sp, st: [f"s_lshl_b32 s{st}, 1, s{sp}"]

def allreduce_q(k, op, x, tmp):
    k(f"v_mov_b32 v{tmp}, v{x}\ns_nop 1")
    k(f"v_permlane32_swap_b32 v{x}, v{tmp}")
    k(f"s_nop 1\n{op} v{x}, v{x}, v{tmp}")
    k(f"v_mov_b32 v{tmp}, v{x}\ns_nop 1")
    k(f"v_permlane16_swap_b32 v{x}, v{tmp}")
    k(f"s_nop 1\n{op} v{x}, v{x}, v{tmp}")

def treduce4(k, op, A):
    a, b, c, d = A
    k("s_nop 1")
    k(f"v_permlane32_swap_b32 v{a}, v{b}\nv_permlane32_swap_b32 v{c}, v{d}")
    k("s_nop 1")
    k(f"{op} v{a}, v{a}, v{b}\n{op} v{c}, v{c}, v{d}")
    k("s_nop 1")
    k(f"v_permlane16_swap_b32 v{a}, v{c}")
    k("s_nop 1")
    k(f"{op} v{a}, v{a}, v{c}")
    k(f"v_mov_b32 v{c}, v{a}")
    k("s_nop 1")
    k(f"v_permlane16_swap_b32 v{a}, v{c}")
    k("s_nop 1")
    k(f"v_mov_b32 v{b}, v{a}\nv_mov_b32 v{d}, v{c}")
    k("s_nop 1")
    k(f"v_permlane32_swap_b32 v{a}, v{b}\nv_permlane32_swap_b32 v{c}, v{d}")
    k("s_nop 1")

def treduce4x2(k, ops, As):
    A, B = Txt(), Txt()
    treduce4(A, ops[0], As[0]); treduce4(B, ops[1], As[1])
    def split(L):
        out, cur = [], []
        for x in L:
            if x.startswith("s_nop"): out.append(cur); cur = []
            else: cur.append(x)
        out.append(cur); return out
    for a, b in zip(split(A.L), split(B.L)):
        for x in a + b: k(x)
        k("s_nop 0" if len(a) >= 1 else "s_nop 1")

def red8(k, x):
    for m in ("quad_perm:[1,0,3,2]", "quad_perm:[2,3,0,1]", "row_half_mirror"):
        k(f"s_nop 1\nv_add_f32_dpp v{x}, v{x}, v{x} {m} row_mask:0xf bank_mask:0xf")

def round_bf16(k, v):
    k(f"v_cvt_pk_bf16_f32 v{v}, v{v}, v{v}\nv_and_b32 v{v}, 0xffff0000, v{v}")

S_DLA, S_DLB, S_PTMP = 71, 6, 75
def order(c, k, opt, tag, default):
    o = opt.get(tag + "_ord", default)
    c.first_flag = opt.get(tag + "_ff", "")
    c.tag = tag; c.stamp_every = opt.get(tag + "_se", 0)
    c.fine = opt.get(tag + "_fine", opt.get("fine", 0)); c.bar_frac = opt.get("bar_frac", 0.3)
    c.s_rot, c.s_rot2 = S_R8, S_R4
    if o[0] == "lead":
        c.lead_D, c.s_dl = o[1], S_DLA
    else:
        c.wins = win_mask(o[1])
        if o[2]:
            c.s_start = S_HP
            c.s_rot = c.s_rot2 = S_RB3
def common_gemm(c):
    c.srd_w, c.srd_t = SRD_W, SRD_T
    c.s_kw, c.s_kt, c.s_wbase, c.s_ptmp = S_KW, S_KT, S_WB, S_PTMP

def setup_gemm1(k, opt):
    c = Sched(); common_gemm(c)
    NS, R = opt.get("g1_NS", 4), opt.get("g1_R", 4)
    STAGE = 25344
    c.V_RD, c.V_DMA, c.V_TOK, c.LANE, c.L16, c.VT = 96, 98, 102, 104, 105, 106
    V_RD, V_DMA, V_TOK, LANE, L16, VT = c.V_RD, c.V_DMA, c.V_TOK, c.LANE, c.L16, 110
    k(f"v_lshlrev_b32 v{L16}, 4, v{LANE}")
    c.lead_D, c.s_dl = opt.get("D", 0), S_DLA
    if opt.get("uselead", 0): c.lead_init(k, S_R4, 81)
    c.lead_D = None
    order(c, k, opt, "g1", ["win", [8, 8], 0])
    k(f"s_lshr_b32 s80, s{S_WAVE}, 1\ns_and_b32 s81, s{S_WAVE}, 1")
    k(f"v_lshrrev_b32 v{VT+1}, 3, v{LANE}")
    k(f"v_and_b32 v{VT+2}, 4, v{VT+1}")
    k(f"v_bfe_u32 v{VT+3}, v{VT+1}, 1, 1\nv_or_b32 v{VT+2}, v{VT+2}, v{VT+3}")
    k(f"v_and_b32 v{VT+3}, 1, v{VT+1}\nv_lshl_or_b32 v{VT+2}, v{VT+3}, 1, v{VT+2}")
    k(f"v_mul_u32_u24 v{VT+2}, {4*6144}, v{VT+2}")
    k(f"v_and_b32 v{VT+3}, 7, v{LANE}\nv_lshl_add_u32 v{VT+2}, v{VT+3}, 4, v{VT+2}")
    k("s_lshl_b32 s82, s80, 5\ns_lshl_b32 s83, s81, 1\ns_add_u32 s82, s82, s83\ns_mul_i32 s82, s82, 6144")
    k(f"s_lshl_b32 s83, s{S_HP}, 7\ns_add_u32 s82, s82, s83")
    k(f"v_add_u32 v{V_DMA}, s82, v{VT+2}")
    k(f"v_add_u32 v{V_DMA+1}, 6144, v{V_DMA}\nv_add_u32 v{V_DMA+2}, 4096, v{V_DMA}\nv_add_u32 v{V_DMA+3}, {6144+4096}, v{V_DMA}")
    k(f"v_bfe_u32 v{VT+1}, v{LANE}, 2, 2\nv_mul_u32_u24 v{VT+1}, 1056, v{VT+1}")
    k(f"v_lshrrev_b32 v{VT+2}, 5, v{LANE}\nv_lshl_add_u32 v{VT+1}, v{VT+2}, 9, v{VT+1}")
    k(f"v_bfe_u32 v{VT+2}, v{LANE}, 4, 1\nv_lshl_add_u32 v{VT+1}, v{VT+2}, 7, v{VT+1}")
    k(f"v_and_b32 v{VT+3}, 3, v{LANE}\nv_lshl_add_u32 v{V_RD}, v{VT+3}, 3, v{VT+1}")
    k(f"v_add_u32 v{V_RD+1}, {2*STAGE}, v{V_RD}")
    k(f"s_lshl_b32 s82, s{S_RB1}, 3\ns_lshl_b32 s83, s{S_WAVE}, 1\ns_add_u32 s82, s82, s83\ns_lshl_b32 s82, s82, 15")
    k(f"v_add_u32 v{V_TOK}, s82, v{L16}\nv_add_u32 v{V_TOK+1}, 0x8000, v{V_TOK}")
    k(f"s_mul_i32 s{S_WB}, s80, 4224\ns_mul_i32 s82, s81, 2112\ns_add_u32 s{S_WB}, s{S_WB}, s82")
    c.NB, c.TB, c.KS, c.SPK, c.KT, c.NS, c.R = 12, 2, 1, 2, 16, NS, R
    c.acc = lambda b, t: vr((b * 2 + t) * 4, 4)
    c.tf = lambda slot, ks, t: 96 + (slot * 2 + t) * 4
    c.rd = lambda sl, b, sub, r: (V_RD + sl // 2, (sl % 2) * STAGE + (b // 4) * 8448 + sub * 4224 + r * 256 + (b % 4) * 32)
    c.slot_addr = lambda sl: sl * STAGE
    c.dma = [(V_DMA, 0, 0), (V_DMA + 1, 1056, 0), (V_DMA, 8448, 2048), (V_DMA + 1, 8448 + 1056, 2048), (V_DMA + 2, 16896, 0), (V_DMA + 3, 16896 + 1056, 0)]
    c.v_tok = [V_TOK, V_TOK + 1]
    c.w_stride = 64 * 6144
    c.drop = opt.get("g1_drop", ())
    c.pro_units, c.ramp_rate, c.read_margin = opt.get("g1_pro", 6), opt.get("g1_ramp", 6), opt.get("g1_rm", 6)
    std_sched(c)
    return c

def setup_gemm1s(k, opt):
    c = Sched(); common_gemm(c)
    HS = 8448; STAGE = 2 * HS
    c.V_RD, c.V_DMA, c.V_TOK, c.LANE, c.L16, c.VT = 96, 98, 102, 104, 105, 106
    V_RD, V_DMA, V_TOK, LANE, L16, VT = c.V_RD, c.V_DMA, c.V_TOK, c.LANE, c.L16, 110
    k(f"v_lshlrev_b32 v{L16}, 4, v{LANE}")
    order(c, k, opt, "g1", ["win", [8, 8], 0])
    k(f"s_lshr_b32 s80, s{S_WAVE}, 1\ns_and_b32 s81, s{S_WAVE}, 1")
    k(f"v_lshrrev_b32 v{VT+1}, 3, v{LANE}")
    k(f"v_and_b32 v{VT+2}, 4, v{VT+1}")
    k(f"v_bfe_u32 v{VT+3}, v{VT+1}, 1, 1\nv_or_b32 v{VT+2}, v{VT+2}, v{VT+3}")
    k(f"v_and_b32 v{VT+3}, 1, v{VT+1}\nv_lshl_or_b32 v{VT+2}, v{VT+3}, 1, v{VT+2}")
    k(f"v_mul_u32_u24 v{VT+2}, {4*6144}, v{VT+2}")
    k(f"v_and_b32 v{VT+3}, 7, v{LANE}\nv_lshl_add_u32 v{VT+2}, v{VT+3}, 4, v{VT+2}")
    k("s_lshl_b32 s82, s80, 5\ns_lshl_b32 s83, s81, 1\ns_add_u32 s82, s82, s83\ns_mul_i32 s82, s82, 6144")
    k(f"s_lshl_b32 s83, s{S_HP}, 7\ns_add_u32 s82, s82, s83")
    k(f"v_add_u32 v{V_DMA}, s82, v{VT+2}")
    k(f"v_add_u32 v{V_DMA+1}, 6144, v{V_DMA}\nv_add_u32 v{V_DMA+2}, 2048, v{V_DMA}\nv_add_u32 v{V_DMA+3}, {6144+2048}, v{V_DMA}")
    k(f"v_bfe_u32 v{VT+1}, v{LANE}, 2, 2\nv_mul_u32_u24 v{VT+1}, 1056, v{VT+1}")
    k(f"v_lshrrev_b32 v{VT+2}, 5, v{LANE}\nv_lshl_add_u32 v{VT+1}, v{VT+2}, 9, v{VT+1}")
    k(f"v_bfe_u32 v{VT+2}, v{LANE}, 4, 1\nv_lshl_add_u32 v{VT+1}, v{VT+2}, 7, v{VT+1}")
    k(f"v_and_b32 v{VT+3}, 3, v{LANE}\nv_lshl_add_u32 v{V_RD}, v{VT+3}, 3, v{VT+1}")
    k(f"v_add_u32 v{V_RD+1}, {2*STAGE}, v{V_RD}")
    k(f"s_lshl_b32 s82, s{S_RB1}, 3\ns_lshl_b32 s83, s{S_WAVE}, 1\ns_add_u32 s82, s82, s83\ns_lshl_b32 s82, s82, 15")
    k(f"v_add_u32 v{V_TOK}, s82, v{L16}\nv_add_u32 v{V_TOK+1}, 0x8000, v{V_TOK}")
    k(f"s_mul_i32 s{S_WB}, s80, 4224\ns_mul_i32 s82, s81, 2112\ns_add_u32 s{S_WB}, s{S_WB}, s82")
    c.NB, c.TB, c.KS, c.SPK, c.KT, c.NS, c.R = 8, 2, 1, 2, 16, 4, 32
    c.acc = lambda b, t: vr(32 + (b * 2 + t) * 4, 4)
    c.tf = lambda slot, ks, t: (slot * 2 + t) * 4
    c.rd = lambda sl, b, sub, r: (V_RD + sl // 2, (sl % 2) * STAGE + (b // 4) * HS + sub * 4224 + r * 256 + (b % 4) * 32)
    c.slot_addr = lambda sl: sl * STAGE
    c.dma = [(V_DMA + 2, 0, 0), (V_DMA + 3, 1056, 0), (V_DMA + 2, HS, 2048), (V_DMA + 3, HS + 1056, 2048)]
    c.v_tok = [V_TOK, V_TOK + 1]
    c.w_stride = 64 * 6144
    c.drop = opt.get("g1_drop", ())
    c.pro_units, c.ramp_rate, c.read_margin, c.lookahead = opt.get("g1_pro", 8), opt.get("g1_ramp", 5), 4, opt.get("g1_la", 6)
    c.wreg, c.wbase = vr, 128
    std_sched(c)
    q = Sched(); common_gemm(q)
    q.KT = 16; order(q, k, opt, "g1", ["win", [8, 8], 0]); q.tag = "g1b"; q.stamp_every = opt.get("g1b_se", 0)
    q.s_kw = 70
    QS = [67584 + i * HS for i in range(5)] + [L_R2 + i * HS for i in range(4)] + [i * HS for i in range(7)]
    q.Q1, q.Q2 = V_RD + 1, V_TOK
    def base(kt): return (q.Q1, 67584) if kt < 5 else ((q.Q2, L_R2) if kt < 9 else (V_RD, 0))
    for kt in range(16):
        sw = q.s_kw + kt % 2
        q.stage_units[kt] = [q.pos_items(sw, kt, c.w_stride) + [T(f"s_add_u32 m0, s{S_WB}, {QS[kt]}"), VM(f"buffer_load_dwordx4 v{V_DMA}, {sr(SRD_W,4)}, s{sw} offen lds", ("dma", kt))],
                             [T(f"s_add_u32 m0, s{S_WB}, {QS[kt] + 1056}"), VM(f"buffer_load_dwordx4 v{V_DMA+1}, {sr(SRD_W,4)}, s{sw} offen lds", ("dma", kt))]]
        q.stage_slot[kt] = kt
        va, b0 = base(kt)
        frags = [(va, QS[kt] - b0 + sub * 4224 + b * 32, QS[kt] - b0 + sub * 4224 + 256 + b * 32, [(vr((b * 2 + t) * 4, 4), ((kt * 2 + sub) * 2 + t) * 4) for t in range(2)]) for sub in range(2) for b in range(4)]
        q.steps.append(dict(frags=frags, stages=[kt] if kt != 9 else list(range(9, 16)), toks=[]))
    q.wf = lambda buf, j: (buf * 8 + j) * 4
    q.wreg, q.wbase = vr, 128
    q.pub0 = set(range(9)); q.pro_units = opt.get('q_pro', 2); q.ramp_rate = opt.get('q_ramp', 3); q.read_margin = 4; q.drop = c.drop
    c.q = q
    return c

def merge(a, b, ratio):
    out, b = [], list(b)
    for i, x in enumerate(a):
        out.append(x)
        if b and i % ratio == ratio - 1: out.append(b.pop(0))
    return out + b

def phase_gemm1s(k, c, opt):
    LANE, L16, VT = c.LANE, c.L16, c.VT
    q = c.q
    PHK, VV, SH = 0, 34816, 114688
    p = Txt()
    srd(p, SRD_A, P_WPHI, H * 2048)
    srd(p, SRD_B, P_WS, 2 << 20, WS_KVP)
    srd(p, SRD_C, P_WS, 128 << 10, WS_ZP)
    A_PW, A_VW, A_PR, A_VR, A_WR = 110, 111, 112, 113, 114
    p(f"s_lshr_b32 s80, s{S_WAVE}, 1\ns_and_b32 s81, s{S_WAVE}, 1")
    p(f"v_and_b32 v{VT}, 15, v{LANE}\ns_lshl_b32 s82, s{S_WAVE}, 5\nv_add_u32 v{VT}, s82, v{VT}")
    p(f"v_lshrrev_b32 v{VT+1}, 4, v{LANE}\nv_lshlrev_b32 v{VT+1}, 3, v{VT+1}")
    p(f"v_mul_u32_u24 v{A_PW}, 136, v{VT}\nv_add_u32 v{A_PW}, v{A_PW}, v{VT+1}")
    p(f"v_mul_u32_u24 v{A_VW}, 72, v{VT}\nv_add_u32 v{A_VW}, v{A_VW}, v{VT+1}")
    p(f"v_lshrrev_b32 v{VT}, 2, v{LANE}\nv_and_b32 v{VT+1}, 3, v{LANE}\nv_lshlrev_b32 v{VT+1}, 3, v{VT+1}")
    p(f"s_mul_i32 s82, s80, 17408\ns_lshl_b32 s83, s81, 6\ns_add_u32 s82, s82, s83")
    p(f"v_mul_u32_u24 v{A_PR}, 136, v{VT}\nv_add_u32 v{A_PR}, v{A_PR}, v{VT+1}\nv_add_u32 v{A_PR}, s82, v{A_PR}")
    p(f"s_mul_i32 s82, s80, 9216")
    p(f"v_mul_u32_u24 v{A_VR}, 72, v{VT}\nv_add_u32 v{A_VR}, v{A_VR}, v{VT+1}\nv_add_u32 v{A_VR}, s82, v{A_VR}")
    p(f"v_lshl_add_u32 v{A_WR}, v{VT}, 6, v{VT+1}\nv_add_u32 v{A_WR}, {L_WPH}, v{A_WR}")
    ONES, SEL = 116, 120
    for j in range(4): p(f"v_mov_b32 v{ONES+j}, 0x3f803f80")
    p(f"v_bfe_u32 v{VT}, v{LANE}, 2, 2\nv_lshrrev_b32 v{VT+1}, 4, v{LANE}")
    p(f"v_cmp_eq_u32 vcc, v{VT}, v{VT+1}")
    p(f"v_and_b32 v{VT}, 1, v{LANE}\nv_lshlrev_b32 v{VT}, 4, v{VT}\nv_mov_b32 v{VT+1}, 0x3f80\nv_lshlrev_b32 v{VT+1}, v{VT}, v{VT+1}")
    p(f"v_cndmask_b32 v{VT+1}, 0, v{VT+1}, vcc")
    p(f"v_and_b32 v{VT}, 2, v{LANE}\nv_cmp_eq_u32 vcc, 0, v{VT}")
    for j in (0, 1, 4, 5): p(f"v_mov_b32 v{SEL+j}, 0")
    p(f"v_cndmask_b32 v{SEL+2}, 0, v{VT+1}, vcc\nv_cndmask_b32 v{SEL+3}, v{VT+1}, 0, vcc")
    p(f"s_mov_b32 s94, {LOG2E!r}\ns_mov_b32 s95, {LOG2E!r}")
    p(f"s_lshl_b32 s84, s{S_HP}, 12\ns_lshl_b32 s85, s{S_WAVE}, 10\ns_add_u32 s84, s84, s85\ns_add_u32 s85, s85, {L_WPH}")
    c.pre_loop_txt = p.L
    c.late[4] = ["s_mov_b32 m0, s85", f"buffer_load_dwordx4 v{L16}, {sr(SRD_A,4)}, s84 offen lds"]
    for st_ in opt.get("cp1", [20]): c.late.setdefault(st_, []).extend(code_prefetch_txt(k.name, L16, 254, 80, junk="v31"))
    for st_ in opt.get("cp1b", []): q.late.setdefault(st_, []).extend(code_prefetch_txt(k.name, L16, 254, 80, junk="v252"))
    ts = opt.get("mt_step", None)
    if ts is not None:
        c.late.setdefault(ts, []).extend([f"v_mul_u32_u24 v254, 12288, v{LANE}", f"buffer_load_dword v31, v254, {sr(SRD_D,4)}, s{S_MB} offen"])
        if opt.get("wo_touch", 1):
            c.late[ts].extend([f"s_lshl_b32 s80, s2, 2", f"s_add_u32 s80, s80, s{S_WAVE}", "s_lshl_b32 s80, s80, 11",
                               f"v_and_b32 v254, 15, v{LANE}", "v_lshlrev_b32 v254, 7, v254", "v_add_u32 v254, s80, v254", f"global_load_dword v31, v254, s[{P_WO}:{P_WO+1}]"])
    nq = opt.get("q_in", 10)
    for j in range(nq // 2): c.late.setdefault(32 - nq // 2 + j, []).extend(q.prefetch_txt(2))
    wph_reads = lambda reg, b0: [f"ds_read_b64_tr_b16 {reg(b0+(hh*2+fb)*4+2*r,2)}, v{A_WR} offset:{hh*2048+r*1024+fb*32}" for hh in range(2) for fb in range(2) for r in range(2)]
    c.last_reads = wph_reads(vr, 0)
    c.run(k)
    k.stamp("g1 loop done")
    A = lambda b, t: (b * 2 + t) * 4
    BF, P1, P2, MX, MN, EK = 126, 142, 174, 206, 214, 222
    groups = [(hh, t) for hh in range(2) for t in range(2)]
    def fm_part1(k, seg, ph):
        for g, (hh, t) in enumerate(groups):
            for db in range(2):
                a = A(seg * 4 + hh * 2 + db, t)
                k(f"v_cvt_pk_bf16_f32 v{BF+g*4+db*2}, v{a}, v{a+1}\nv_cvt_pk_bf16_f32 v{BF+g*4+db*2+1}, v{a+2}, v{a+3}")
        k("s_nop 1")
        for g, (hh, t) in enumerate(groups):
            for fb in range(2):
                k(f"{MF} {vr(P1+g*8+fb*4,4)}, {ph(hh*2+fb)}, {vr(BF+g*4,4)}, 0")
    def fm_part2(k):
        for op3, op2, M in (("v_max3_f32", "v_max_f32", MX), ("v_min3_f32", "v_min_f32", MN)):
            for g in range(4):
                b = P1 + g * 8
                k(f"{op3} v{M+2*g}, v{b}, v{b+1}, v{b+2}\n{op3} v{M+2*g}, v{M+2*g}, v{b+3}, v{b+4}\n{op3} v{M+2*g}, v{M+2*g}, v{b+5}, v{b+6}\n{op2} v{M+2*g}, v{M+2*g}, v{b+7}")
        treduce4x2(k, ("v_max_f32", "v_min_f32"), ([MX + 2 * g for g in range(4)], [MN + 2 * g for g in range(4)]))
        for g in range(4):
            k(f"v_mul_f32 v{MX+2*g}, {-LOG2E!r}, v{MX+2*g}\nv_mul_f32 v{MN+2*g}, {LOG2E!r}, v{MN+2*g}")
    def fm_part3(k, E, gs_=range(4)):
        for g in gs_:
            for j in range(4):
                b = g * 8 + 2 * j
                k(f"v_pk_fma_f32 {vr(P2+b,2)}, {vr(P1+b,2)}, s[94:95], {vr(MN+2*g,2)} op_sel_hi:[1,1,0] neg_lo:[1,0,0] neg_hi:[1,0,0]")
                k(f"v_pk_fma_f32 {vr(P1+b,2)}, {vr(P1+b,2)}, s[94:95], {vr(MX+2*g,2)} op_sel_hi:[1,1,0]")
            for j in range(8): k(f"v_exp_f32 v{P1+g*8+j}, v{P1+g*8+j}")
            for j in range(8): k(f"v_exp_f32 v{P2+g*8+j}, v{P2+g*8+j}")
            k("s_nop 0")
            for sg, PP in enumerate((P1, P2)):
                for j in range(4): k(f"v_cvt_pk_bf16_f32 v{E+(g*2+sg)*4+j}, v{PP+g*8+2*j}, v{PP+g*8+2*j+1}")
    mark0 = len(k.L)
    k("s_waitcnt lgkmcnt(0)\ns_nop 7")
    fm_part1(k, 1, lambda i: vr(i * 4, 4))
    k("s_barrier")
    for g, (hh, t) in enumerate(groups):
        for db in range(2):
            a = A(8 + hh * 2 + db, t)
            k(f"v_cvt_pk_bf16_f32 v{a}, v{a}, v{a+1}\nv_cvt_pk_bf16_f32 v{a+1}, v{a+2}, v{a+3}")
            k(f"ds_write_b64 v{A_VW}, {vr(a,2)} offset:{VV + hh*9216 + t*16*72 + db*32}")
    fm_part2(k)
    grp = []
    for j in range(18 - q.pre_dma):
        t_ = q.prefetch_txt(1); grp.append(t_[:-1] + ["s_nop 0", t_[-1]])
    sprinkle(k, mark0, grp, skip=12)
    k.stamp("kp part2")
    fm_part3(k, EK)
    k.stamp("kp part3")
    SM = 32
    k("s_nop 1")
    for i in range(8): k(f"{MF} {vr(SM+4*i,4)}, {vr(ONES,4)}, {vr(EK+4*i,4)}, 0")
    k(f"v_add_u32 v{q.Q1}, 67584, v{c.V_RD}\nv_add_u32 v{q.Q2}, {L_R2}, v{c.V_RD}")
    k("s_nop 5")
    for i in range(8): k(f"v_rcp_f32 v{SM+4*i}, v{SM+4*i}")
    for g, (hh, t) in enumerate(groups):
        for sg, PP in enumerate((P1, P2)):
            for j in range(4):
                k(f"v_pk_mul_f32 {vr(PP+g*8+2*j,2)}, {vr(PP+g*8+2*j,2)}, {vr(SM+(g*2+sg)*4,2)} op_sel_hi:[1,0]")
            for fb in range(2):
                b = PP + g * 8 + fb * 4
                k(f"v_cvt_pk_bf16_f32 v{b}, v{b}, v{b+1}\nv_cvt_pk_bf16_f32 v{b+1}, v{b+2}, v{b+3}")
                k(f"ds_write_b64 v{A_PW}, {vr(b,2)} offset:{PHK + hh*17408 + t*16*136 + sg*64 + fb*32}")
    k.stamp("kp norm")
    k("s_waitcnt lgkmcnt(0)\ns_barrier")
    k.stamp("kp bar")
    FR = 190
    for s_ in range(4):
        for r in range(2):
            for fb in range(2): k(f"ds_read_b64_tr_b16 {vr(FR+s_*16+fb*4+2*r,2)}, v{A_PR} offset:{PHK + (32*s_+16*r)*136 + fb*32}")
            for db in range(2): k(f"ds_read_b64_tr_b16 {vr(FR+s_*16+8+db*4+2*r,2)}, v{A_VR} offset:{VV + (32*s_+16*r)*72 + db*32}")
    k(f"s_lshl_b32 s82, s{S_HP}, 2\ns_add_u32 s82, s82, s{S_WAVE}")
    k("s_lshl_b32 s86, s82, 15")
    k(f"s_lshl_b32 s84, s{S_RB1}, 10\ns_add_u32 s84, s84, s86\ns_add_u32 s85, s84, 16384")
    k("s_lshl_b32 s90, s82, 11")
    k(f"s_lshl_b32 s91, s82, {FS+4}\ns_add_u32 s91, s91, {F_KV}\ns_lshl_b32 s92, s{S_RB1}, {FS}\ns_add_u32 s92, s92, s91")
    k(f"v_and_b32 v{VT}, 15, v{LANE}\nv_cmp_eq_u32 vcc, s{S_RB1}, v{VT}")
    KV, ZZ = 64, 80
    for s_ in range(4):
        k(f"s_waitcnt lgkmcnt({min(15, 24 - 8*s_)})" if s_ < 3 else "s_waitcnt vmcnt(0) lgkmcnt(0)\ns_barrier")
        for fb in range(2):
            for db in range(2):
                d = vr(KV + (db * 2 + fb) * 4, 4)
                k(f"{MF} {d}, {vr(FR+s_*16+fb*4,4)}, {vr(FR+s_*16+8+db*4,4)}, {'0' if s_ == 0 else d}")
            d = vr(ZZ + fb * 4, 4)
            k(f"{MF} {d}, {vr(FR+s_*16+fb*4,4)}, {vr(ONES,4)}, {'0' if s_ == 0 else d}")
    k(f"v_lshlrev_b32 v{VT}, {FS}, v{VT}\nv_mov_b32 v{VT+1}, 1\nv_mov_b32 v{VT+2}, 0")
    k("s_nop 5")
    for db in range(2):
        for j in range(4): k(f"v_cvt_pk_bf16_f32 v{88+db*4+j}, v{KV+db*8+2*j}, v{KV+db*8+2*j+1}")
    k(f"buffer_store_dwordx4 {vr(88,4)}, v{L16}, {sr(SRD_B,4)}, s84 offen sc1")
    k(f"buffer_store_dwordx4 {vr(92,4)}, v{L16}, {sr(SRD_B,4)}, s85 offen sc1")
    k("s_and_saveexec_b64 s[96:97], vcc")
    k(f"buffer_store_dwordx4 {vr(ZZ,4)}, v{L16}, {sr(SRD_C,4)}, s90 offen sc1")
    k(f"buffer_store_dwordx4 {vr(ZZ+4,4)}, v{L16}, {sr(SRD_C,4)}, s90 offen offset:1024 sc1")
    k("s_mov_b64 exec, s[96:97]")
    k.stamp("kv stored")
    KV, ZZ, MW, MC = 72, 88, 32, 64
    q.late[opt.get("kv_ps", 1)] = [WVM([("pre", 0)]), f"buffer_store_dword v{VT+1}, v{VT+2}, {sr(SRD_F,4)}, s92 offen sc1"]
    gs = opt.get("kv_gs", 9)
    ld = f"buffer_load_dword v253, v{VT}, {sr(SRD_F,4)}, s91 offen sc1"
    m = Txt(); m.label = k.label
    okl = k.label("gok")
    m(f"v_cmp_eq_u32 vcc, 0, v253\ns_cmp_eq_u64 vcc, 0\ns_cbranch_scc1 {okl}")
    spin(m, [ld], [253], 0)
    m(f"{okl}:")
    q.late[gs - 2] = [VM(ld, ("kvf", 0))]
    gl = [f"buffer_load_dwordx4 {vr(ZZ,4)}, v{L16}, {sr(SRD_C,4)}, s90 offen sc1", f"buffer_load_dwordx4 {vr(ZZ+4,4)}, v{L16}, {sr(SRD_C,4)}, s90 offen offset:1024 sc1"]
    for i in range(32):
        if i % 4 == 0 and i: gl.append("s_add_u32 s86, s86, 4096")
        gl.append(f"buffer_load_dwordx4 {ar(4*i,4)}, v{L16}, {sr(SRD_B,4)}, s86 offen offset:{(i%4)*1024} sc1")
    n3 = -(-len(gl) // 3)
    q.late[gs] = [WVM([("kvf", 0)]), T("\n".join(m.L))] + gl[:n3]
    q.late[gs + 1] = gl[n3:2*n3]; q.late[gs + 2] = gl[2*n3:]
    t2 = Txt()
    g2 = setup_gemm24(t2, 2, opt, (110, 111, 112, LANE, L16, 98))
    q.late[5] = t2.L[:len(t2.L)//2]; q.late[6] = t2.L[len(t2.L)//2:] + [f"global_load_ushort v{MC+i}, v109, s[{P_C}:{P_C+1}] offset:{i*16}" for i in range(8)]
    assert gs - 2 > 6
    younger = []
    younger += g2.prefetch_txt(8)
    mbl = []
    for i in range(8): mbl += [f"buffer_load_dwordx4 {vr(MW+4*i,4)}, v115, {sr(SRD_D,4)}, s{S_MB} offen", f"s_add_u32 s{S_MB}, s{S_MB}, {8*12288}"]
    mpos = opt.get("mpos", "tail")
    if mpos == "tail": younger += mbl
    ny = sum(1 for x in younger if is_vm(x))
    rest = list(range(gs + 3, 16)); per = -(-len(younger) // len(rest))
    for j, st_ in enumerate(rest): q.late[st_] = younger[j*per:(j+1)*per]
    A_PH = 128
    q.last_reads = wph_reads(ar, A_PH)
    q.run(k)
    k.stamp("g1b done")
    srd(k, SRD_T, P_WS, S * D * 2, WS_O)
    k("s_waitcnt lgkmcnt(0)\ns_nop 3")
    qa = Txt(); fm_part1(qa, 0, lambda i: ar(A_PH + i * 4, 4))
    qa(f"s_waitcnt vmcnt({min(63, ny + 32)})")
    for sh in (8, 4, 2, 1):
        for j in range(8): qa(f"v_add_f32_dpp v{ZZ+j}, v{ZZ+j}, v{ZZ+j} row_ror:{sh} row_mask:0xf bank_mask:0xf")
    for x in qa.L: k(x)
    k.stamp("qp a")
    hs = g2.hs
    qb = Txt(); fm_part2(qb); fm_part3(qb, EK, range(2) if hs else range(4))
    red = []
    for i in range(32):
        db, pp = divmod(i, 16)
        for fb in range(2):
            d = vr(KV + (db * 2 + fb) * 4, 4)
            red.append((f"s_waitcnt vmcnt({ny + 28 - i})\n" if (i % 4 == 0 and fb == 0) else "") + f"{MF} {d}, {vr(SEL + (2 if fb == 0 else 0), 4)}, {ar(4*i,4)}, {'0' if pp == 0 else d}")
    cut = opt.get("q_cut", 150) if not hs else len(qb.L)
    for x in merge(qb.L[:cut], red, 2): k(x)
    if hs:
        k("s_nop 3")
        qb = Txt(); fm_part3(qb, EK, [2]); cut = 0
    k.stamp("qp merged")
    k(f"s_mul_i32 s82, s{S_WAVE}, 3072\ns_add_u32 s82, s82, {SH}")
    k(f"v_add_u32 v{VT+1}, s82, v{L16}\nv_add_u32 v{VT+2}, {SH}, v{L16}")
    k(f"v_and_b32 v{VT}, 1, v{LANE}\nv_cmp_eq_u32 vcc, 0, v{VT}")
    k("s_nop 4")
    for j in range(12): k(f"v_cvt_pk_bf16_f32 v{KV+j}, v{KV+2*j}, v{KV+2*j+1}")
    for j in range(4): k(f"v_cndmask_b32 v{KV+8+j}, v{ONES}, v{KV+8+j}, vcc")
    for j in range(3): k(f"ds_write_b128 v{VT+1}, {vr(KV+4*j,4)} offset:{j*1024}")
    for x in (merge(qb.L[cut:], mbl, 2) if mpos == "q" else qb.L[cut:]): k(x)
    k.stamp("qp rest")
    k("s_waitcnt lgkmcnt(0)\ns_barrier")
    k.stamp("qp bar")
    for i in range(12): k(f"ds_read_b128 {ar(4*i,4)}, v{VT+2} offset:{i*1024}")
    k(f"s_lshl_b32 s82, s{S_RB1}, 3\ns_lshl_b32 s83, s{S_WAVE}, 1\ns_add_u32 s82, s82, s83\ns_lshl_b32 s82, s82, 15")
    k(f"s_lshl_b32 s83, s{S_HP}, 11\ns_add_u32 s82, s82, s83\ns_add_u32 s83, s82, 0x8000")
    k(f"s_lshl_b32 s84, s{S_RB1}, 2\ns_add_u32 s84, s84, s{S_WAVE}\ns_lshl_b32 s84, s84, {FS+4}\ns_lshl_b32 s85, s{S_HP}, {FS}\ns_add_u32 s84, s84, s85\ns_add_u32 s84, s84, {F_O}")
    k("s_waitcnt lgkmcnt(0)")
    NB_ = 126
    def nbase(g): return NB_ + g * 24 if (not hs or g >= 2) else None
    def oregs(g):
        if hs and g < 2: return (0, 12) if g == 0 else (72, 84)
        return (NB_ + g * 24, NB_ + g * 24 + 12)
    def o_mfma(gl):
        for g in gl:
            hh, t = groups[g]
            for sg in range(2):
                for j in range(3):
                    k(f"{MF} {vr(oregs(g)[sg]+4*j,4)}, {ar(((hh*2+sg)*3+j)*4,4)}, {vr(EK+(g*2+sg)*4,4)}, 0")
    def o_fin(gl):
        for g in gl:
            hh, t = groups[g]
            n1, n2 = oregs(g)
            D1, S1, D2, S2 = n1 + 8, n1 + 9, n2 + 8, n2 + 9
            k(f"v_mul_f32 v{n1+10}, v{S1}, v{S2}")
            k(f"v_mul_f32 v{n1+10}, 0x358637bd, v{n1+10}")
            k(f"v_fmac_f32 v{n1+10}, v{D1}, v{S2}\nv_fmac_f32 v{n1+10}, v{D2}, v{S1}")
            k(f"v_rcp_f32 v{n1+10}, v{n1+10}")
            k("s_nop 0")
            k(f"v_mul_f32 v{D1}, v{S2}, v{n1+10}\nv_mul_f32 v{D2}, v{S1}, v{n1+10}")
            for j in range(4): k(f"v_pk_mul_f32 {vr(n1+2*j,2)}, {vr(n1+2*j,2)}, {vr(D1,2)} op_sel_hi:[1,0]")
            for j in range(4): k(f"v_pk_fma_f32 {vr(n1+2*j,2)}, {vr(n2+2*j,2)}, {vr(D2,2)}, {vr(n1+2*j,2)} op_sel_hi:[1,0,1]")
            for j in range(4): k(f"v_cvt_pk_bf16_f32 v{n2+j}, v{n1+2*j}, v{n1+2*j+1}")
            k(f"buffer_store_dwordx4 {vr(n2,4)}, v{L16}, {sr(SRD_T,4)}, s{82+t} offen offset:{hh*1024} sc1")
    if hs:
        o_mfma([0, 1]); k("s_nop 7"); o_fin([0, 1])
        mk0 = len(k.L)
        fm_part3(k, EK, [3])
        k("s_nop 1")
        o_mfma([2, 3]); k("s_nop 7")
        publish(k, 84, VT + 1, mk0)
        k(f"s_add_u32 s95, s84, {F_O2 - F_O}")
        o_fin([2, 3])
    else:
        o_mfma(range(4)); k("s_nop 7"); o_fin(range(4))
    k.stamp("o stored")
    mko = len(k.L)
    g2.V_X = 178
    srd(k, SRD_A, P_X, S * D * 2)
    V_XA = 100
    k(f"v_lshrrev_b32 v{VT+1}, 4, v{LANE}")
    k(f"v_and_b32 v{VT+2}, 15, v{LANE}\nv_lshlrev_b32 v{VT+2}, 11, v{VT+2}\nv_lshl_add_u32 v{V_XA}, v{VT+1}, 3, v{VT+2}")
    k(f"s_lshl_b32 s82, s{S_RB2}, 3\ns_lshl_b32 s83, s{S_WAVE}, 1\ns_add_u32 s82, s82, s83\ns_lshl_b32 s82, s82, 15\ns_lshl_b32 s83, s{S_NT}, 7\ns_add_u32 s82, s82, s83\ns_add_u32 s83, s82, 32768")
    for t in range(2):
        for b in range(4):
            k(f"buffer_load_dwordx2 {vr(g2.V_X+(t*4+b)*2,2)}, v{V_XA}, {sr(SRD_A,4)}, s{82+t} offen offset:{b*32}")
    k.g3 = setup_gemm3_early(k, opt, LANE, 20)
    if not hs: publish(k, 84, VT + 1, mko)
    k.stamp("o published")
    mark1 = len(k.L)
    CU, AU, TT = 0, 16, 24
    for i in range(8): k(f"v_mov_b32 v{CU+2*i}, v{MC+i}")
    silu_block(k, [CU + 2 * i for i in range(8)])
    for i in range(8):
        for d in range(4):
            k(f"v_lshlrev_b32 v{TT}, 16, v{MW+4*i+d}\nv_and_b32 v{TT+1}, 0xffff0000, v{MW+4*i+d}")
            if i == 0: k(f"v_pk_mul_f32 {vr(AU+2*d,2)}, {vr(TT,2)}, {vr(CU,2)} op_sel_hi:[1,0]")
            else: k(f"v_pk_fma_f32 {vr(AU+2*d,2)}, {vr(TT,2)}, {vr(CU+2*i,2)}, {vr(AU+2*d,2)} op_sel_hi:[1,0,1]")
    k("s_nop 1")
    for j in range(4): k(f"v_permlane32_swap_b32 v{AU+j}, v{AU+j+4}")
    k("s_nop 1")
    for j in range(4): k(f"v_add_f32 v{AU+j}, v{AU+j}, v{AU+j+4}")
    k("s_nop 1")
    for j in range(2): k(f"v_permlane16_swap_b32 v{AU+j}, v{AU+j+2}")
    k("s_nop 1")
    for j in range(2): k(f"v_add_f32 v{AU+j}, v{AU+j}, v{AU+j+2}")
    k("s_nop 1")
    for j in range(2): k(f"v_add_f32_dpp v{AU+j}, v{AU+j}, v{AU+j} row_ror:8 row_mask:0xf bank_mask:0xf")
    sprinkle(k, mark1, g3_early_units(k.g3, opt.get("g3_e2", 7), 254), skip=0)
    k(f"v_and_b32 v{TT}, 7, v{LANE}\nv_lshlrev_b32 v{TT}, 5, v{TT}\nv_lshrrev_b32 v{TT+1}, 5, v{LANE}\nv_lshl_add_u32 v{TT}, v{TT+1}, 4, v{TT}")
    k(f"v_bfe_u32 v{TT+1}, v{LANE}, 4, 1\nv_lshl_add_u32 v{TT}, v{TT+1}, 3, v{TT}")
    srd(k, SRD_D, P_WS, MP_BYTES, WS_MODP)
    k(f"v_or_b32 v{AU}, 1, v{AU}\nv_or_b32 v{AU+1}, 1, v{AU+1}")
    k(f"buffer_store_dwordx2 {vr(AU,2)}, v{TT}, {sr(SRD_D,4)}, s{S_MO} offen sc1")
    return g2

A_UT = 176
def silu_block(k, regs):
    for v in regs: k(f"v_lshlrev_b32 v{v}, 16, v{v}\nv_mul_f32 v{v+1}, {-LOG2E!r}, v{v}")
    for v in regs: k(f"v_exp_f32 v{v+1}, v{v+1}")
    k("s_nop 0")
    for v in regs: k(f"v_add_f32 v{v+1}, 1.0, v{v+1}")
    for v in regs: k(f"v_rcp_f32 v{v+1}, v{v+1}")
    k("s_nop 0")
    for v in regs:
        k(f"v_mul_f32 v{v}, v{v}, v{v+1}"); round_bf16(k, v)

def modb_loads(s_off, v_w, v_c):
    out = []
    for i in range(8):
        out.append([f"buffer_load_dwordx4 {ar(A_UT+4*i,4)}, v{v_w}, {sr(SRD_D,4)}, s{s_off} offen", f"s_add_u32 s{s_off}, s{s_off}, {8*12288}"])
    return out

def red32(k, x, t):
    red8(k, x)
    k(f"s_nop 1\nv_add_f32_dpp v{x}, v{x}, v{x} row_mirror row_mask:0xf bank_mask:0xf")
    k(f"v_mov_b32 v{t}, v{x}\ns_nop 1\nv_permlane16_swap_b32 v{x}, v{t}\ns_nop 1\nv_add_f32 v{x}, v{x}, v{t}")

def ids(k):
    k("v_lshrrev_b32 v1, 6, v0")
    k(f"s_and_b32 s{S_XCD}, s2, 7\ns_lshr_b32 s{S_IDX}, s2, 3")
    k(f"v_readfirstlane_b32 s{S_WAVE}, v1")
    k(f"s_bfe_u32 s{S_RB1}, s{S_XCD}, 0x10001\ns_lshl_b32 s{S_RB1}, s{S_RB1}, 3\ns_lshr_b32 s80, s{S_IDX}, 2\ns_add_u32 s{S_RB1}, s{S_RB1}, s80")
    k(f"s_lshr_b32 s{S_HP}, s{S_XCD}, 2\ns_lshl_b32 s{S_HP}, s{S_HP}, 2\ns_and_b32 s80, s{S_IDX}, 3\ns_add_u32 s{S_HP}, s{S_HP}, s80\ns_lshl_b32 s{S_HP}, s{S_HP}, 1\ns_and_b32 s80, s{S_XCD}, 1\ns_add_u32 s{S_HP}, s{S_HP}, s80")

def build_k0(instr=False, opt=None, name="mod_kernel", mega="mega_kernel"):
    opt = opt or {}
    k = Kernel(name, 256, 256, 4096, vgpr=128, sgpr=102)
    k.instr = instr; k.s_wave = S_WAVE
    stamp(k, 0)
    end = k.label("end")
    k(f"s_cmp_ge_u32 s2, 256\ns_cbranch_scc1 {end}")
    k("s_load_dwordx4 s[12:15], s[0:1], 64")
    k("s_load_dwordx8 s[4:11], s[0:1], 0")
    k("s_load_dwordx2 s[28:29], s[0:1], 96")
    ids(k)
    LANE, T, V_W = 104, 48, 105
    WA, CA, XR, XF, A0, SU = 64, 80, 84, 0, 32, 100
    k(f"v_and_b32 v{LANE}, 63, v0")
    k(f"v_lshrrev_b32 v{T+1}, 3, v{LANE}\nv_and_b32 v{T+2}, 7, v{LANE}")
    k(f"v_mul_u32_u24 v{V_W}, 12288, v{T+1}\nv_lshl_add_u32 v{V_W}, v{T+2}, 4, v{V_W}")
    k(f"s_lshl_b32 s64, s{S_RB1}, 6\ns_lshl_b32 s65, s{S_WAVE}, 4\ns_add_u32 s64, s64, s65")
    k(f"v_add_u32 v{T+3}, s64, v{T+1}\nv_lshlrev_b32 v{T+3}, 1, v{T+3}")
    k(f"s_mul_i32 s67, s64, 12288\ns_lshl_b32 s66, s{S_HP}, 7\ns_add_u32 s67, s67, s66\ns_add_u32 s68, s67, {8*12288}")
    k(f"v_lshrrev_b32 v{T+4}, 5, v{LANE}\nv_lshlrev_b32 v{T+4}, 11, v{T+4}\nv_and_b32 v{T+5}, 31, v{LANE}\nv_lshl_add_u32 v{T+4}, v{T+5}, 4, v{T+4}")
    k(f"s_lshl_b32 s69, s{S_RB1}, 4\ns_add_u32 s69, s69, s{S_HP}")
    k(f"s_lshl_b32 s70, s69, 14\ns_lshl_b32 s71, s{S_WAVE}, 12\ns_add_u32 s70, s70, s71")
    k("s_waitcnt lgkmcnt(0)")
    srd(k, SRD_D, 14, D * 6 * D * 2)
    srd(k, SRD_A, P_X, S * D * 2)
    for i in range(2): k(f"global_load_ushort v{CA+2*i}, v{T+3}, s[12:13] offset:{i*16}")
    for i in range(2):
        for v in range(2): k(f"buffer_load_dwordx4 {vr(WA+(i*2+v)*4,4)}, v{V_W}, {sr(SRD_D,4)}, s{67+i} offen offset:{v*2048}")
    for i in range(4): k(f"buffer_load_dwordx4 {vr(XR+4*i,4)}, v{T+4}, {sr(SRD_A,4)}, s70 offen offset:{i*512}")
    stamp(k, 1)
    lab = k.label("pc")
    k(f"s_getpc_b64 s[60:61]\n{lab}:")
    k(f"s_add_u32 s60, s60, {mega}-{lab}\ns_addc_u32 s61, s61, 0")
    k(f"v_lshlrev_b32 v{T+6}, 4, v{LANE}")
    for x in code_prefetch_txt(mega, T + 6, T + 7, 62, s_pc=60, junk="v110"): k(x)
    srd(k, SRD_B, P_WS, MP_BYTES, WS_MODP)
    srd(k, SRD_F, P_WS, FLAG_BYTES, WS_FLAG)
    srd(k, SRD_C, P_WS, S * 128, WS_STAT)
    k(f"v_mov_b32 v{T+8}, 0\nv_lshlrev_b32 v{T+9}, 2, v0\ns_lshl_b32 s62, s2, 10\ns_add_u32 s63, s62, {MP_B}")
    k(f"v_lshlrev_b32 v{T+10}, {FS}, v0\ns_lshl_b32 s66, s2, {FS+8}")
    k(f"buffer_store_dword v{T+8}, v{T+10}, {sr(SRD_F,4)}, s66 offen")
    k(f"buffer_store_dword v{T+8}, v{T+9}, {sr(SRD_C,4)}, s62 offen")
    k(f"buffer_store_dword v{T+8}, v{T+9}, {sr(SRD_B,4)}, s63 offen")
    young = 4
    k(f"s_lshl_b32 s62, s2, 2\ns_add_u32 s62, s62, s{S_WAVE}")
    for ptr, per, tag in ((P_WQKV, 6, "t_wq"), (P_WO, 2, "t_wo"), (14, 12, "t_wm")):
        if not opt.get(tag, 1): continue
        k(f"s_mul_i32 s63, s62, {per*1024}\ns_add_u32 s63, s63, 384")
        k(f"v_min_u32 v{T+14}, {per-1}, v{LANE}\nv_lshlrev_b32 v{T+14}, 10, v{T+14}\nv_add_u32 v{T+14}, s63, v{T+14}")
        k(f"global_load_dword v110, v{T+14}, s[{ptr}:{ptr+1}]")
        young += 1
    k(f"s_waitcnt vmcnt({young + 8})")
    silu_block(k, [CA, CA + 2])
    k(f"s_waitcnt vmcnt({young + 4})")
    for i in range(2):
        for v in range(2):
            for d in range(4):
                w_ = WA + (i * 2 + v) * 4 + d
                k(f"v_lshlrev_b32 v{T+10}, 16, v{w_}\nv_and_b32 v{T+11}, 0xffff0000, v{w_}")
                if i == 0: k(f"v_pk_mul_f32 {vr(A0+v*8+2*d,2)}, {vr(T+10,2)}, {vr(CA,2)} op_sel_hi:[1,0]")
                else: k(f"v_pk_fma_f32 {vr(A0+v*8+2*d,2)}, {vr(T+10,2)}, {vr(CA+2,2)}, {vr(A0+v*8+2*d,2)} op_sel_hi:[1,0,1]")
    k("s_nop 1")
    for j in range(8): k(f"v_permlane32_swap_b32 v{A0+j}, v{A0+8+j}")
    k("s_nop 1")
    for j in range(8): k(f"v_add_f32 v{A0+j}, v{A0+j}, v{A0+8+j}")
    k("s_nop 1")
    for j in range(4): k(f"v_permlane16_swap_b32 v{A0+j}, v{A0+4+j}")
    k("s_nop 1")
    for j in range(4): k(f"v_add_f32 v{A0+j}, v{A0+j}, v{A0+4+j}")
    k("s_nop 1")
    for j in range(4): k(f"v_add_f32_dpp v{A0+j}, v{A0+j}, v{A0+j} row_ror:8 row_mask:0xf bank_mask:0xf")
    k(f"v_lshrrev_b32 v{T+12}, 5, v{LANE}\nv_lshlrev_b32 v{T+13}, 8, v{T+12}\nv_lshl_add_u32 v{T+13}, v{T+2}, 5, v{T+13}")
    k(f"v_bfe_u32 v{T+10}, v{LANE}, 4, 1\nv_lshl_add_u32 v{T+13}, v{T+10}, 4, v{T+13}\ns_lshl_b32 s62, s{S_WAVE}, 9\nv_add_u32 v{T+13}, s62, v{T+13}")
    k(f"ds_write_b128 v{T+13}, {vr(A0,4)}")
    k("s_waitcnt lgkmcnt(0)\ns_barrier")
    nw0 = k.label("notw0")
    k(f"s_cmp_lg_u32 s{S_WAVE}, 0\ns_cbranch_scc1 {nw0}")
    k(f"v_lshlrev_b32 v{T+13}, 3, v{LANE}")
    for w in range(4): k(f"ds_read_b64 {vr(A0+2*w,2)}, v{T+13} offset:{w*512}")
    k(f"s_lshl_b32 s62, s{S_HP}, 13\ns_lshl_b32 s63, s{S_RB1}, 9\ns_add_u32 s63, s63, s62")
    k("s_waitcnt lgkmcnt(0)")
    k(f"v_pk_add_f32 {vr(A0,2)}, {vr(A0,2)}, {vr(A0+2,2)}\nv_pk_add_f32 {vr(A0+4,2)}, {vr(A0+4,2)}, {vr(A0+6,2)}\nv_pk_add_f32 {vr(A0,2)}, {vr(A0,2)}, {vr(A0+4,2)}")
    k(f"buffer_store_dwordx2 {vr(A0,2)}, v{T+13}, {sr(SRD_B,4)}, s63 offen")
    k(f"{nw0}:")
    stamp(k, 2)
    k(f"s_waitcnt vmcnt({young})")
    for d in range(16): k(f"v_lshlrev_b32 v{XF+2*d}, 16, v{XR+d}\nv_and_b32 v{XF+2*d+1}, 0xffff0000, v{XR+d}")
    k(f"v_pk_add_f32 {vr(SU,2)}, {vr(XF,2)}, {vr(XF+2,2)}")
    for d in range(2, 16): k(f"v_pk_add_f32 {vr(SU,2)}, {vr(SU,2)}, {vr(XF+2*d,2)}")
    k(f"v_add_f32 v{SU}, v{SU}, v{SU+1}")
    red32(k, SU, SU + 1)
    k(f"v_mul_f32 v{SU+2}, {-1.0/1024!r}, v{SU}")
    k(f"v_mov_b32 v{SU}, 0\nv_mov_b32 v{SU+1}, 0")
    for d in range(16):
        k(f"v_pk_add_f32 {vr(XF+2*d,2)}, {vr(XF+2*d,2)}, {vr(SU+2,2)} op_sel_hi:[1,0]")
        k(f"v_pk_fma_f32 {vr(SU,2)}, {vr(XF+2*d,2)}, {vr(XF+2*d,2)}, {vr(SU,2)}")
    k(f"v_add_f32 v{SU}, v{SU}, v{SU+1}")
    red32(k, SU, SU + 1)
    k(f"v_mov_b32 v{SU+1}, 0x3727c5ac\nv_fmac_f32 v{SU+1}, {1.0/1024!r}, v{SU}\nv_rsq_f32 v{SU+3}, v{SU+1}")
    k(f"s_lshl_b32 s62, s69, 6\ns_lshl_b32 s63, s{S_WAVE}, 4\ns_add_u32 s62, s62, s63\ns_add_u32 s62, s62, {MP_RS}\nv_lshlrev_b32 v{T+12}, 3, v{T+12}")
    k(f"buffer_store_dwordx2 {vr(SU+2,2)}, v{T+12}, {sr(SRD_B,4)}, s62 offen")
    stamp(k, 3)
    if instr: k("s_waitcnt vmcnt(0)")
    stamp(k, 4)
    stamp_flush(k, 28, 5, 4, slot=1)
    k(f"{end}:\ns_endpgm")
    return k

def phase_front_fused(k, opt, name):
    LANE, L16 = 104, 105
    T = 48
    V_W, V_C = 115, 109
    WA, CA, XR, XT_, XF, A0, SU, G, M, RS = 64, 80, 128, 144, 0, 200, 216, 160, 32, 84
    HL = 2 * 25344
    k(f"v_lshrrev_b32 v{T+1}, 3, v{LANE}\nv_and_b32 v{T+2}, 7, v{LANE}")
    k(f"v_mul_u32_u24 v{V_W}, 12288, v{T+1}\nv_lshl_add_u32 v{V_W}, v{T+2}, 4, v{V_W}")
    k(f"s_lshl_b32 s84, s{S_RB1}, 6")
    k(f"v_add_u32 v{V_C}, s84, v{T+1}\nv_lshlrev_b32 v{V_C}, 1, v{V_C}")
    k(f"s_lshl_b32 s85, s{S_WAVE}, 5\nv_add_u32 v{T+3}, s85, v{V_C}")
    k(f"s_mul_i32 s86, s84, 12288\ns_lshl_b32 s87, s{S_HP}, 7\ns_add_u32 s86, s86, s87")
    k(f"s_mul_i32 s87, s{S_WAVE}, {16*12288}\ns_add_u32 s87, s87, s86\ns_add_u32 s88, s87, {8*12288}")
    k(f"v_lshrrev_b32 v{T+4}, 5, v{LANE}\nv_lshlrev_b32 v{T+4}, 11, v{T+4}\nv_and_b32 v{T+5}, 31, v{LANE}\nv_lshl_add_u32 v{T+4}, v{T+5}, 4, v{T+4}")
    k(f"s_lshl_b32 s89, s{S_RB1}, 4\ns_add_u32 s89, s89, s{S_HP}")
    k(f"s_lshl_b32 s90, s89, 14\ns_lshl_b32 s91, s{S_WAVE}, 12\ns_add_u32 s90, s90, s91")
    k(f"v_mov_b32 v{T+8}, 0\nv_mov_b32 v{T+9}, 0\nv_mov_b32 v{T+10}, 0\nv_mov_b32 v{T+11}, 0\nv_mov_b32 v{T+12}, 1")
    k(f"v_lshlrev_b32 v{T+7}, {FS}, v{LANE}")
    k(f"s_lshl_b32 s93, s2, {FS+6}\ns_add_u32 s93, s93, {F_S0}\ns_cmp_lt_u32 s2, 4\ns_cselect_b32 s93, s93, 0x7ff00000\ns_cmp_eq_u32 s{S_WAVE}, 3\ns_cselect_b32 s93, s93, 0x7ff00000")
    k("s_waitcnt lgkmcnt(0)")
    srd(k, SRD_F, P_WS, FLAG_BYTES, WS_FLAG)
    k(f"buffer_store_dword v{T+8}, v{T+7}, {sr(SRD_F,4)}, s93 offen sc1")
    k(f"s_mov_b32 s{SRD_T}, s{P_DBG}\ns_mov_b32 s{SRD_T+1}, s{P_DBG+1}\ns_mov_b32 s{SRD_T+2}, 256\ns_mov_b32 s{SRD_T+3}, 0x20000")
    k("s_mov_b32 s95, s93")
    srd(k, SRD_D, P_WMOD, D * 6 * D * 2)
    srd(k, SRD_A, P_X, S * D * 2)
    for i in range(2): k(f"global_load_ushort v{CA+2*i}, v{T+3}, s[{P_C}:{P_C+1}] offset:{i*16}")
    for i in range(2):
        for v in range(2): k(f"buffer_load_dwordx4 {vr(WA+(i*2+v)*4,4)}, v{V_W}, {sr(SRD_D,4)}, s{87+i} offen offset:{v*2048}")
    for i in range(4): k(f"buffer_load_dwordx4 {vr(XR+4*i,4)}, v{T+4}, {sr(SRD_A,4)}, s90 offen offset:{i*512}")
    k.stamp("loads issued")
    srd(k, SRD_B, P_WS, MP_BYTES, WS_MODP)
    srd(k, SRD_C, P_WS, S * 128, WS_STAT)
    w3, jn = k.label("w3"), k.label("join")
    k(f"s_cmp_eq_u32 s{S_WAVE}, 3\ns_cbranch_scc1 {w3}")
    k(f"s_lshl_b32 s92, s2, 1\ns_add_u32 s92, s92, s{S_WAVE}\ns_sub_u32 s92, s92, 1")
    nt_ = k.label("notouch")
    k("s_mov_b32 s93, 0x7ff00000")
    for i in range(2): k(f"buffer_load_dword a233, v{V_W}, {sr(SRD_D,4)}, s93 offen")
    k(f"s_cmp_eq_u32 s{S_WAVE}, 0\ns_cbranch_scc1 {nt_}")
    for ptr, per in ((P_WQKV, 12), (P_WO, 4), (P_WMOD, 24)):
        k(f"s_mul_i32 s93, s92, {per}\nv_min_u32 v{T+14}, {per-1}, v{LANE}\nv_add_u32 v{T+14}, s93, v{T+14}")
        k(f"v_lshlrev_b32 v{T+14}, 10, v{T+14}")
        k(f"global_load_dword a232, v{T+14}, s[{ptr}:{ptr+1}] offset:384")
    k(f"s_branch {jn}")
    k(f"{nt_}:")
    for i in range(3): k(f"buffer_load_dword a233, v{V_W}, {sr(SRD_D,4)}, s93 offen")
    k(f"s_branch {jn}")
    k(f"{w3}:")
    nb = k.label("nboot")
    k(f"s_cmp_eq_u32 s95, 0x7ff00000\ns_cbranch_scc1 {nb}")
    k("s_lshl_b32 s93, s2, 2\ns_waitcnt vmcnt(10)")
    k(f"buffer_store_dword v{T+12}, v{T+8}, {sr(SRD_T,4)}, s93 offen sc1")
    k(f"{nb}:")
    k(f"v_and_b32 v{T+14}, 3, v{LANE}\nv_lshlrev_b32 v{T+14}, 4, v{T+14}")
    k(f"s_lshl_b32 s93, s{S_RB1}, 6\ns_add_u32 s93, s93, s{S_HP}\nv_add_u32 v{T+15}, s93, v{T+14}")
    k(f"s_lshl_b32 s93, s{S_HP}, 6\ns_add_u32 s93, s93, s{S_RB1}\ns_add_u32 s93, s93, 1024\nv_add_u32 v{T+14}, s93, v{T+14}")
    k(f"v_cmp_gt_u32 vcc, 4, v{LANE}\ns_mul_i32 s93, s2, 24\ns_add_u32 s93, s93, 2040")
    k(f"v_cndmask_b32 v{T+14}, v{T+14}, v{T+15}, vcc\nv_add_u32 v{T+15}, s93, v{LANE}")
    k(f"v_cmp_gt_u32 vcc, 8, v{LANE}\ns_nop 1\nv_cndmask_b32 v{T+14}, v{T+15}, v{T+14}, vcc")
    k(f"v_cmp_gt_u32 vcc, 32, v{LANE}\nv_mov_b32 v{T+15}, 0x100000\ns_nop 0\nv_cndmask_b32 v{T+14}, v{T+15}, v{T+14}, vcc")
    k(f"v_lshlrev_b32 v{T+14}, {FS}, v{T+14}")
    k(f"buffer_store_dword v{T+8}, v{T+14}, {sr(SRD_F,4)}, 0 offen sc1")
    k("s_mov_b32 s93, 0x7ff00000")
    for i in range(2): k(f"buffer_load_dword a233, v{V_W}, {sr(SRD_D,4)}, s93 offen")
    k("s_lshl_b32 s93, s2, 10")
    k(f"buffer_store_dwordx4 {vr(T+8,4)}, v{L16}, {sr(SRD_C,4)}, s93 offen sc1")
    k(f"s_add_u32 s93, s93, {MP_B}")
    k(f"buffer_store_dwordx4 {vr(T+8,4)}, v{L16}, {sr(SRD_B,4)}, s93 offen sc1")
    k(f"{jn}:")
    k(f"v_lshlrev_b32 v{T+5}, 11, v{T+1}\nv_lshl_add_u32 v{T+5}, v{T+2}, 4, v{T+5}")
    k(f"s_lshl_b32 s91, s{S_RB1}, 18\ns_lshl_b32 s92, s{S_WAVE}, 16\ns_add_u32 s91, s91, s92\ns_lshl_b32 s92, s{S_HP}, 7\ns_add_u32 s91, s91, s92")
    for i in range(4):
        k(f"buffer_load_dwordx4 {vr(XT_+4*i,4)}, v{T+5}, {sr(SRD_A,4)}, s91 offen")
        if i < 3: k("s_add_u32 s91, s91, 16384")
    k(f"s_lshl_b32 s94, s{S_WAVE}, 11\ns_add_u32 s{S_MB}, s86, s94\ns_add_u32 s{S_MB}, s{S_MB}, 4096")
    k(f"s_lshl_b32 s94, s{S_WAVE}, 16\ns_lshl_b32 s95, s{S_HP}, 12\ns_add_u32 s94, s94, s95\ns_lshl_b32 s95, s{S_RB1}, 8\ns_add_u32 s94, s94, s95\ns_add_u32 s{S_MO}, s94, {MP_B}")
    young = 9
    k.stamp("all issued")
    k(f"s_waitcnt vmcnt({young + 8})")
    k.stamp("c ready")
    silu_block(k, [CA, CA + 2])
    k(f"s_waitcnt vmcnt({young + 4})")
    k.stamp("w ready")
    for i in range(2):
        for v in range(2):
            for d in range(4):
                w_ = WA + (i * 2 + v) * 4 + d
                k(f"v_lshlrev_b32 v{T+14}, 16, v{w_}\nv_and_b32 v{T+15}, 0xffff0000, v{w_}")
                if i == 0: k(f"v_pk_mul_f32 {vr(A0+v*8+2*d,2)}, {vr(T+14,2)}, {vr(CA,2)} op_sel_hi:[1,0]")
                else: k(f"v_pk_fma_f32 {vr(A0+v*8+2*d,2)}, {vr(T+14,2)}, {vr(CA+2,2)}, {vr(A0+v*8+2*d,2)} op_sel_hi:[1,0,1]")
    k("s_nop 1")
    for j in range(8): k(f"v_permlane32_swap_b32 v{A0+j}, v{A0+8+j}")
    k("s_nop 1")
    for j in range(8): k(f"v_add_f32 v{A0+j}, v{A0+j}, v{A0+8+j}")
    k("s_nop 1")
    for j in range(4): k(f"v_permlane16_swap_b32 v{A0+j}, v{A0+4+j}")
    k("s_nop 1")
    for j in range(4): k(f"v_add_f32 v{A0+j}, v{A0+j}, v{A0+4+j}")
    k("s_nop 1")
    for j in range(4): k(f"v_add_f32_dpp v{A0+j}, v{A0+j}, v{A0+j} row_ror:8 row_mask:0xf bank_mask:0xf")
    k(f"v_lshrrev_b32 v{T+13}, 5, v{LANE}\nv_lshlrev_b32 v{T+14}, 8, v{T+13}\nv_lshl_add_u32 v{T+14}, v{T+2}, 5, v{T+14}")
    k(f"v_bfe_u32 v{T+15}, v{LANE}, 4, 1\nv_lshl_add_u32 v{T+14}, v{T+15}, 4, v{T+14}\ns_lshl_b32 s94, s{S_WAVE}, 9\nv_add_u32 v{T+14}, s94, v{T+14}")
    k(f"ds_write_b128 v{T+14}, {vr(A0,4)} offset:{HL}")
    k(f"s_waitcnt vmcnt({young})")
    for d in range(16): k(f"v_lshlrev_b32 v{XF+2*d}, 16, v{XR+d}\nv_and_b32 v{XF+2*d+1}, 0xffff0000, v{XR+d}")
    k(f"v_pk_add_f32 {vr(SU,2)}, {vr(XF,2)}, {vr(XF+2,2)}")
    for d in range(2, 16): k(f"v_pk_add_f32 {vr(SU,2)}, {vr(SU,2)}, {vr(XF+2*d,2)}")
    k(f"v_add_f32 v{SU}, v{SU}, v{SU+1}")
    red32(k, SU, SU + 1)
    k(f"v_mul_f32 v{SU+2}, {-1.0/1024!r}, v{SU}")
    k(f"v_mov_b32 v{SU}, 0\nv_mov_b32 v{SU+1}, 0")
    for d in range(16):
        k(f"v_pk_add_f32 {vr(XF+2*d,2)}, {vr(XF+2*d,2)}, {vr(SU+2,2)} op_sel_hi:[1,0]")
        k(f"v_pk_fma_f32 {vr(SU,2)}, {vr(XF+2*d,2)}, {vr(XF+2*d,2)}, {vr(SU,2)}")
    k(f"v_add_f32 v{SU}, v{SU}, v{SU+1}")
    red32(k, SU, SU + 1)
    k(f"v_mov_b32 v{SU+1}, 0x3727c5ac\nv_fmac_f32 v{SU+1}, {1.0/1024!r}, v{SU}\nv_rsq_f32 v{SU+3}, v{SU+1}")
    k(f"s_lshl_b32 s94, s{S_WAVE}, 4\nv_lshlrev_b32 v{T+13}, 3, v{T+13}\nv_add_u32 v{T+13}, s94, v{T+13}")
    k(f"ds_write_b64 v{T+13}, {vr(SU+2,2)} offset:{HL+2048}")
    n3 = k.label("not3")
    k(f"s_cmp_lg_u32 s{S_WAVE}, 3\ns_cbranch_scc1 {n3}")
    k(f"v_and_b32 v{T+14}, 3, v{LANE}\nv_lshlrev_b32 v{T+14}, 2, v{T+14}")
    spin(k, [f"buffer_load_dword v{T+13}, v{T+14}, {sr(SRD_T,4)}, 0 offen sc1"], [T + 13], 0)
    k(f"{n3}:")
    k("s_waitcnt lgkmcnt(0)\ns_barrier")
    k.stamp("partials")
    nw0 = k.label("notw0")
    k(f"v_lshlrev_b32 v{T+6}, 3, v{LANE}")
    k(f"s_cmp_lg_u32 s{S_WAVE}, 0\ns_cbranch_scc1 {nw0}")
    for w in range(4): k(f"ds_read_b64 {vr(A0+2*w,2)}, v{T+6} offset:{HL+w*512}")
    k(f"v_and_b32 v{T+9}, 0x38, v{T+6}")
    k(f"ds_read_b64 {vr(A0+8,2)}, v{T+9} offset:{HL+2048}")
    k(f"s_lshl_b32 s94, s{S_HP}, 13\ns_lshl_b32 s95, s{S_RB1}, 9\ns_add_u32 s95, s95, s94")
    k(f"s_lshl_b32 s90, s89, 6\ns_add_u32 s90, s90, {MP_RS}")
    k("s_waitcnt lgkmcnt(0)")
    k(f"v_pk_add_f32 {vr(A0,2)}, {vr(A0,2)}, {vr(A0+2,2)}\nv_pk_add_f32 {vr(A0+4,2)}, {vr(A0+4,2)}, {vr(A0+6,2)}\nv_pk_add_f32 {vr(A0,2)}, {vr(A0,2)}, {vr(A0+4,2)}")
    k(f"buffer_store_dwordx2 {vr(A0,2)}, v{T+6}, {sr(SRD_B,4)}, s95 offen sc1")
    k(f"buffer_store_dwordx2 {vr(A0+8,2)}, v{T+9}, {sr(SRD_B,4)}, s90 offen sc1")
    k(f"s_lshl_b32 s90, s89, {FS}\ns_add_u32 s90, s90, {F_S0}")
    k("s_waitcnt vmcnt(0)")
    k(f"buffer_store_dword v{T+12}, v{T+8}, {sr(SRD_F,4)}, s90 offen sc1")
    if opt.get("modb_front", 0):
        sk_ = k.label("skmf")
        k(f"s_branch {sk_}")
        k(f"{nw0}:")
        k("s_waitcnt vmcnt(0)")
        for g in modb_loads(S_MB, V_W, V_C):
            for x in g: k(x)
        k(f"s_mov_b32 s{S_MB}, 0x7ff00000")
        k(f"{sk_}:")
    else:
        k(f"{nw0}:")
    k.stamp("s0 published")
    split = opt.get("split", 1)
    g1 = (setup_gemm1s if split else setup_gemm1)(k, opt)
    srd(k, SRD_W, P_WQKV, D * 3 * D * 2)
    if not opt.get("modb_front", 0):
        k("s_waitcnt vmcnt(1)")
        k(f"s_cmp_eq_u32 s{S_WAVE}, 0\ns_cbranch_scc1 1\ns_waitcnt vmcnt(0)")
    for d in range(16): k(f"v_lshlrev_b32 v{XF+2*d}, 16, v{XT_+d}\nv_and_b32 v{XF+2*d+1}, 0xffff0000, v{XT_+d}")
    VS = T + 4
    k(f"v_lshrrev_b32 v{VS}, 2, v{T+2}\nv_lshlrev_b32 v{VS}, 10, v{VS}")
    k(f"v_and_b32 v{T+3}, 3, v{T+2}\nv_lshl_add_u32 v{VS}, v{T+3}, 8, v{VS}\nv_lshl_add_u32 v{VS}, v{T+1}, 4, v{VS}")
    k(f"s_lshl_b32 s86, s{S_RB1}, 3\ns_lshl_b32 s87, s{S_WAVE}, 1\ns_add_u32 s86, s86, s87\ns_lshl_b32 s86, s86, 15\ns_lshl_b32 s87, s{S_HP}, 11\ns_add_u32 s86, s86, s87\ns_add_u32 s87, s86, 0x8000")
    k(f"s_lshl_b32 s88, s{S_RB1}, 2\ns_add_u32 s88, s88, s{S_WAVE}\ns_lshl_b32 s88, s88, {FS+4}\ns_add_u32 s88, s88, {F_H}\ns_lshl_b32 s89, s{S_HP}, {FS}\ns_add_u32 s89, s89, s88")
    k(f"v_lshlrev_b32 v{T+5}, 5, v{T+2}")
    k(f"s_lshl_b32 s92, s{S_WAVE}, 8\nv_lshlrev_b32 v{T+7}, 3, v{T+1}\nv_add_u32 v{T+7}, s92, v{T+7}")
    nw1 = k.label("notw0b")
    k(f"s_cmp_lg_u32 s{S_WAVE}, 0\ns_cbranch_scc1 {nw1}")
    k(f"v_and_b32 v{T+9}, 15, v{LANE}\ns_lshl_b32 s92, s{S_RB1}, 4\nv_add_u32 v{T+10}, s92, v{T+9}\nv_lshlrev_b32 v{T+9}, 4, v{T+9}\nv_add_u32 v{T+9}, s{S_HP}, v{T+9}")
    k(f"v_and_b32 v{T+11}, 16, v{LANE}\nv_cmp_eq_u32 vcc, 0, v{T+11}\ns_mov_b32 s92, {F_S0}\ns_nop 0")
    k(f"v_cndmask_b32 v{T+9}, v{T+9}, v{T+10}, vcc\nv_lshlrev_b32 v{T+9}, {FS}, v{T+9}")
    spin(k, [f"buffer_load_dword v{T+13}, v{T+9}, {sr(SRD_F,4)}, s92 offen sc1"], [T + 13], 0)
    k(f"s_lshl_b32 s94, s{S_HP}, 13\ns_add_u32 s95, s94, 4096")
    for p_ in range(16): k(f"buffer_load_dwordx2 {vr(G+2*p_,2)}, v{T+6}, {sr(SRD_B,4)}, s{94+p_//8} offen offset:{(p_%8)*512} sc1")
    k(f"s_lshl_b32 s90, s{S_RB1}, 10\ns_add_u32 s90, s90, {MP_RS}")
    k(f"buffer_load_dwordx4 {vr(A0+8,4)}, v{L16}, {sr(SRD_B,4)}, s90 offen sc1")
    k(f"v_cmp_lt_u32 vcc, 31, v{LANE}")
    k("s_waitcnt vmcnt(1)")
    for st in (8, 4, 2, 1):
        for j in range(st): k(f"v_pk_add_f32 {vr(G+2*j,2)}, {vr(G+2*j,2)}, {vr(G+2*(j+st),2)}")
    k(f"v_cvt_pk_bf16_f32 v{G+2}, v{G}, v{G+1}\nv_lshlrev_b32 v{G}, 16, v{G+2}\nv_and_b32 v{G+1}, 0xffff0000, v{G+2}")
    k(f"v_pk_add_f32 {vr(G+4,2)}, {vr(G,2)}, 1.0 op_sel_hi:[1,0]")
    k(f"v_cvt_pk_bf16_f32 v{G+2}, v{G+4}, v{G+5}\nv_lshlrev_b32 v{G+4}, 16, v{G+2}\nv_and_b32 v{G+5}, 0xffff0000, v{G+2}")
    k(f"v_cndmask_b32 v{G}, v{G}, v{G+4}, vcc\nv_cndmask_b32 v{G+1}, v{G+1}, v{G+5}, vcc")
    k(f"ds_write_b64 v{T+6}, {vr(G,2)} offset:{HL+4096}")
    k("s_waitcnt vmcnt(0)")
    k(f"ds_write_b128 v{L16}, {vr(A0+8,4)} offset:{HL+5120}")
    k("s_waitcnt lgkmcnt(0)")
    k(f"{nw1}:")
    g1.prefetch(k, opt.get("h_pre0", 0))
    srd(k, SRD_T, P_WS, S * D * 2, WS_H)
    k("s_barrier")
    k.stamp("s0 ready")
    for h in range(2): k(f"ds_read_b128 {vr(M+4*h,4)}, v{T+5} offset:{HL+4096+h*16}\nds_read_b128 {vr(M+8+4*h,4)}, v{T+5} offset:{HL+4096+256+h*16}")
    for i in range(4): k(f"ds_read_b64 {vr(RS+2*i,2)}, v{T+7} offset:{HL+5120+i*64}")
    k("s_waitcnt lgkmcnt(0)")
    for i in range(4):
        for j in range(4): k(f"v_pk_add_f32 {vr(XF+8*i+2*j,2)}, {vr(XF+8*i+2*j,2)}, {vr(RS+2*i,2)} op_sel_hi:[1,0]")
        for j in range(4): k(f"v_pk_mul_f32 {vr(XF+8*i+2*j,2)}, {vr(XF+8*i+2*j,2)}, {vr(RS+2*i,2)} op_sel:[0,1] op_sel_hi:[1,1]")
        for j in range(4): k(f"v_pk_fma_f32 {vr(XF+8*i+2*j,2)}, {vr(XF+8*i+2*j,2)}, {vr(M+8+2*j,2)}, {vr(M+2*j,2)}")
        for j in range(4): k(f"v_cvt_pk_bf16_f32 v{XR+4*i+j}, v{XF+8*i+2*j}, v{XF+8*i+2*j+1}")
        k(f"buffer_store_dwordx4 {vr(XR+4*i,4)}, v{VS}, {sr(SRD_T,4)}, s{86 + i//2} offen offset:{(i%2)*128} sc1")
    k.stamp("h computed")
    mk = len(k.L)
    g1.prefetch(k, opt.get("h_pre1a", 4 if split else 6))
    publish(k, 89, T, mk)
    k.stamp("h published")
    g1.prefetch(k, opt.get("h_pre1", 8 if split else 6))
    if not split:
        k.g3 = setup_gemm3_early(k, opt, LANE, 56)
        for i in range(8): k(f"global_load_ushort {ar(A_UT+32+i,1)}, v{V_C}, s[{P_C}:{P_C+1}] offset:{i*16}")
    k(f"v_and_b32 v252, 15, v{LANE}\nv_lshlrev_b32 v252, {FS}, v252\ns_mov_b32 s93, s88")
    staged_wait(k, g1, opt.get("g1_T", 5 if split else 4), 252, 93, 253, one_prod)
    k.stamp("h ready")
    return g1

def phase_front(k, opt, name):
    LANE, L16 = 104, 105
    T = 48
    V_W, V_C = 115, 109
    RS, XR, XT_, XF, G, M = 64, 128, 144, 0, 160, 32
    HL = 2 * 25344
    k(f"v_and_b32 v{LANE}, 63, v0")
    k(f"v_lshrrev_b32 v{T+1}, 3, v{LANE}\nv_and_b32 v{T+2}, 7, v{LANE}")
    k(f"v_lshlrev_b32 v{T+5}, 11, v{T+1}\nv_lshl_add_u32 v{T+5}, v{T+2}, 4, v{T+5}")
    k(f"s_lshl_b32 s91, s{S_RB1}, 18\ns_lshl_b32 s92, s{S_WAVE}, 16\ns_add_u32 s91, s91, s92\ns_lshl_b32 s92, s{S_HP}, 7\ns_add_u32 s91, s91, s92")
    k(f"v_lshlrev_b32 v{T+8}, 3, v{LANE}\nv_lshlrev_b32 v{T+6}, 3, v{T+1}")
    k(f"s_lshl_b32 s94, s{S_HP}, 13\ns_add_u32 s95, s94, 4096")
    k(f"s_lshl_b32 s90, s{S_RB1}, 10\ns_lshl_b32 s93, s{S_WAVE}, 8\ns_add_u32 s90, s90, s93\ns_add_u32 s90, s90, {MP_RS}")
    k("s_waitcnt lgkmcnt(0)")
    srd(k, SRD_B, P_WS, MP_BYTES, WS_MODP)
    srd(k, SRD_A, P_X, S * D * 2)
    for p_ in range(16): k(f"buffer_load_dwordx2 {vr(G+2*p_,2)}, v{T+8}, {sr(SRD_B,4)}, s{94+p_//8} offen offset:{(p_%8)*512}")
    for i in range(4): k(f"buffer_load_dwordx2 {vr(RS+2*i,2)}, v{T+6}, {sr(SRD_B,4)}, s90 offen offset:{i*64}")
    for i in range(4):
        k(f"buffer_load_dwordx4 {vr(XT_+4*i,4)}, v{T+5}, {sr(SRD_A,4)}, s91 offen")
        if i < 3: k("s_add_u32 s91, s91, 16384")
    k.stamp("loads issued")
    def touch(ptr, per, vt, off=0):
        k(f"s_lshl_b32 s80, s2, 2\ns_add_u32 s80, s80, s{S_WAVE}\ns_mul_i32 s80, s80, {per*128}")
        if off: k(f"s_add_u32 s80, s80, {off}")
        k(f"v_min_u32 v{vt}, {per-1}, v{LANE}\nv_lshlrev_b32 v{vt}, 7, v{vt}\nv_add_u32 v{vt}, s80, v{vt}")
        k(f"global_load_dword a232, v{vt}, s[{ptr}:{ptr+1}]")
    nt0 = 0
    if opt.get("m_touch", 0) == 1: touch(P_WQKV, 48, 254); nt0 = 1
    g1 = setup_gemm1(k, opt)
    srd(k, SRD_W, P_WQKV, D * 3 * D * 2)
    n0 = opt.get("h_pre0", 6)
    g1.prefetch(k, n0)
    n0 += nt0
    srd(k, SRD_F, P_WS, FLAG_BYTES, WS_FLAG)
    srd(k, SRD_T, P_WS, S * D * 2, WS_H)
    VS = T + 4
    k(f"v_lshrrev_b32 v{VS}, 2, v{T+2}\nv_lshlrev_b32 v{VS}, 10, v{VS}")
    k(f"v_and_b32 v{T+3}, 3, v{T+2}\nv_lshl_add_u32 v{VS}, v{T+3}, 8, v{VS}\nv_lshl_add_u32 v{VS}, v{T+1}, 4, v{VS}")
    k(f"s_lshl_b32 s86, s{S_RB1}, 3\ns_lshl_b32 s87, s{S_WAVE}, 1\ns_add_u32 s86, s86, s87\ns_lshl_b32 s86, s86, 15\ns_lshl_b32 s87, s{S_HP}, 11\ns_add_u32 s86, s86, s87\ns_add_u32 s87, s86, 0x8000")
    k(f"s_lshl_b32 s88, s{S_WAVE}, 9\nv_add_u32 v{T+8}, s88, v{T+8}\nv_lshlrev_b32 v{T+5}, 5, v{T+2}\nv_add_u32 v{T+5}, s88, v{T+5}")
    k(f"s_lshl_b32 s88, s{S_RB1}, 2\ns_add_u32 s88, s88, s{S_WAVE}\ns_lshl_b32 s88, s88, {FS+4}\ns_add_u32 s88, s88, {F_H}\ns_lshl_b32 s89, s{S_HP}, {FS}\ns_add_u32 s89, s89, s88")
    k(f"v_cmp_lt_u32 vcc, 31, v{LANE}")
    k(f"s_waitcnt vmcnt({8 + n0})")
    for st in (8, 4, 2, 1):
        for j in range(st): k(f"v_pk_add_f32 {vr(G+2*j,2)}, {vr(G+2*j,2)}, {vr(G+2*(j+st),2)}")
    k(f"v_cvt_pk_bf16_f32 v{G+2}, v{G}, v{G+1}\nv_lshlrev_b32 v{G}, 16, v{G+2}\nv_and_b32 v{G+1}, 0xffff0000, v{G+2}")
    k(f"v_pk_add_f32 {vr(G+4,2)}, {vr(G,2)}, 1.0 op_sel_hi:[1,0]")
    k(f"v_cvt_pk_bf16_f32 v{G+2}, v{G+4}, v{G+5}\nv_lshlrev_b32 v{G+4}, 16, v{G+2}\nv_and_b32 v{G+5}, 0xffff0000, v{G+2}")
    k(f"v_cndmask_b32 v{G}, v{G}, v{G+4}, vcc\nv_cndmask_b32 v{G+1}, v{G+1}, v{G+5}, vcc")
    k(f"ds_write_b64 v{T+8}, {vr(G,2)} offset:{HL}")
    k("s_waitcnt lgkmcnt(0)")
    for h in range(2): k(f"ds_read_b128 {vr(M+4*h,4)}, v{T+5} offset:{HL+h*16}\nds_read_b128 {vr(M+8+4*h,4)}, v{T+5} offset:{HL+256+h*16}")
    for i in range(4):
        k(f"s_waitcnt vmcnt({3 - i + n0})")
        for d in range(4): k(f"v_lshlrev_b32 v{XF+8*i+2*d}, 16, v{XT_+4*i+d}\nv_and_b32 v{XF+8*i+2*d+1}, 0xffff0000, v{XT_+4*i+d}")
        for j in range(4): k(f"v_pk_add_f32 {vr(XF+8*i+2*j,2)}, {vr(XF+8*i+2*j,2)}, {vr(RS+2*i,2)} op_sel_hi:[1,0]")
        for j in range(4): k(f"v_pk_mul_f32 {vr(XF+8*i+2*j,2)}, {vr(XF+8*i+2*j,2)}, {vr(RS+2*i,2)} op_sel:[0,1] op_sel_hi:[1,1]")
    k("s_waitcnt lgkmcnt(0)")
    for i in range(4):
        for j in range(4): k(f"v_pk_fma_f32 {vr(XF+8*i+2*j,2)}, {vr(XF+8*i+2*j,2)}, {vr(M+8+2*j,2)}, {vr(M+2*j,2)}")
        for j in range(4): k(f"v_cvt_pk_bf16_f32 v{XR+4*i+j}, v{XF+8*i+2*j}, v{XF+8*i+2*j+1}")
        k(f"buffer_store_dwordx4 {vr(XR+4*i,4)}, v{VS}, {sr(SRD_T,4)}, s{86 + i//2} offen offset:{(i%2)*128} sc1")
    k.stamp("h computed")
    code_prefetch_setup(k, name)
    srd(k, SRD_D, P_WMOD, D * 6 * D * 2)
    k(f"v_mul_u32_u24 v{V_W}, 12288, v{T+1}\nv_lshl_add_u32 v{V_W}, v{T+2}, 4, v{V_W}")
    k(f"s_lshl_b32 s84, s{S_RB1}, 6\nv_add_u32 v{V_C}, s84, v{T+1}\nv_lshlrev_b32 v{V_C}, 1, v{V_C}")
    k(f"s_mul_i32 s86, s84, 12288\ns_lshl_b32 s87, s{S_HP}, 7\ns_add_u32 s86, s86, s87")
    k(f"s_lshl_b32 s94, s{S_WAVE}, 11\ns_add_u32 s{S_MB}, s86, s94\ns_add_u32 s{S_MB}, s{S_MB}, 4096")
    k(f"s_lshl_b32 s94, s{S_WAVE}, 16\ns_lshl_b32 s95, s{S_HP}, 12\ns_add_u32 s94, s94, s95\ns_lshl_b32 s95, s{S_RB1}, 8\ns_add_u32 s94, s94, s95\ns_add_u32 s{S_MO}, s94, {MP_B}")
    k.g3 = setup_gemm3_early(k, opt, LANE, 56)
    publish(k, 89, T)
    k.stamp("h published")
    if opt.get("m_touch", 0) == 2: touch(P_WQKV, 48, 254)
    k("s_barrier")
    g1.prefetch(k, opt.get("h_pre1", 12))
    for i in range(8): k(f"global_load_ushort {ar(A_UT+32+i,1)}, v{V_C}, s[{P_C}:{P_C+1}] offset:{i*16}")
    k(f"v_and_b32 v252, 15, v{LANE}\nv_lshlrev_b32 v252, {FS}, v252\ns_mov_b32 s93, s88")
    staged_wait(k, g1, opt.get("g1_T", 4), 252, 93, 253, one_prod)
    k.stamp("h ready")
    return g1

def setup_gemm24(k, which, opt, base):
    c = Sched(); common_gemm(c)
    K = 1024 if which == 2 else 3584
    NS, R = 4, opt.get(f"g{which}_R", 4)
    STAGE = 8448
    if isinstance(base, tuple): V_RD, V_DMA, V_TOK, LANE, L16, VT = base
    else:
        V_RD, V_DMA, V_TOK, LANE, L16, VT = base, base + 1, base + 2, base + 4, base + 5, base + 6
        lane_id(k, LANE)
        k(f"v_lshlrev_b32 v{L16}, 4, v{LANE}")
    c.LANE, c.L16 = LANE, L16
    hs = c.hs = opt.get("hsplit", 1) and opt.get("split", 1)
    order(c, k, opt, "g2", ["win", [8, 8], 0] if hs else ["win", [1, 1, 2, 4, 8], 1])
    if hs:
        c.w_off = lambda sd, kt: [T(x) for x in c.pos_txt(sd, kt)] + [T(f"s_mul_i32 s{sd}, s{sd}, {128*2048}")] + ([T(f"s_add_u32 s{sd}, s{sd}, {(32 - 8*128)*2048}")] if kt >= 8 else [])
        c.t_off = lambda sd, kt: [T(x) for x in c.pos_txt(sd, kt)] + [T(f"s_lshl_b32 s{sd}, s{sd}, 12")] + ([T(f"s_add_u32 s{sd}, s{sd}, {1024 - 8*4096}")] if kt >= 8 else [])
        c.sub_stride = 2048
    k(f"s_lshr_b32 s80, s{S_WAVE}, 1\ns_and_b32 s81, s{S_WAVE}, 1")
    k(f"s_lshl_b32 s82, s80, {6 if hs else 5}\ns_lshl_b32 s83, s81, 1\ns_add_u32 s82, s82, s83\ns_lshl_b32 s82, s82, 11")
    k(f"s_lshl_b32 s83, s{S_NT}, 7\ns_add_u32 s82, s82, s83")
    k(f"v_lshrrev_b32 v{VT}, 3, v{LANE}\nv_lshlrev_b32 v{VT}, 13, v{VT}")
    k(f"v_and_b32 v{VT+1}, 7, v{LANE}\nv_lshl_add_u32 v{VT}, v{VT+1}, 4, v{VT}")
    k(f"v_add_u32 v{V_DMA}, s82, v{VT}")
    k(f"v_bfe_u32 v{VT}, v{LANE}, 2, 2\nv_mul_u32_u24 v{VT}, 1056, v{VT}")
    k(f"v_lshrrev_b32 v{VT+1}, 4, v{LANE}\nv_lshl_add_u32 v{VT}, v{VT+1}, 7, v{VT}")
    k(f"v_and_b32 v{VT+1}, 3, v{LANE}\nv_lshl_add_u32 v{V_RD}, v{VT+1}, 3, v{VT}")
    k(f"v_add_u32 v{V_RD}, {L_R2}, v{V_RD}")
    k(f"s_lshl_b32 s82, s{S_RB2}, 3\ns_lshl_b32 s83, s{S_WAVE}, 1\ns_add_u32 s82, s82, s83\ns_mul_i32 s82, s82, {K//32*1024}")
    k(f"v_add_u32 v{V_TOK}, s82, v{L16}\nv_add_u32 v{V_TOK+1}, {K//32*1024}, v{V_TOK}")
    k(f"s_mul_i32 s{S_WB}, s80, 4224\ns_mul_i32 s82, s81, 2112\ns_add_u32 s{S_WB}, s{S_WB}, s82\ns_add_u32 s{S_WB}, s{S_WB}, {L_R2}")
    srd(k, SRD_W, P_WO if which == 2 else P_W2, K * D * 2)
    c.NB, c.TB, c.KS, c.SPK, c.KT, c.NS, c.R = 4, 2, 2, 1, K // 64, NS, R
    c.acc = lambda b, t: vr((b * 2 + t) * 4, 4)
    c.tf = lambda slot, ks, t: 64 + ((slot * 2 + ks) * 2 + t) * 4
    c.rd = lambda sl, b, sub, r: (V_RD, sl * STAGE + sub * 4224 + r * 512 + b * 32)
    c.slot_addr = lambda sl: sl * STAGE
    c.dma = [(V_DMA, 0, 0), (V_DMA, 1056, 2048)]
    c.v_tok = [V_TOK, V_TOK + 1]
    c.w_stride = 64 * 2048
    c.drop = opt.get(f"g{which}_drop", ())
    c.pro_units, c.ramp_rate, c.read_margin = opt.get(f"g{which}_pro", 12), opt.get(f"g{which}_ramp", 6), 4
    std_sched(c)
    return c

S_G80, S_G192 = 6, 7
def setup_gemm4p(k, opt, base):
    c = Sched(); common_gemm(c)
    HS = 8448; STAGE = 2 * HS
    L = 12; KT = 28; MAIN = KT - L
    V_RD, V_DE, V_DK, V_TOK, LANE, L16, VT = base, base + 2, base + 3, base + 4, base + 6, base + 7, base + 8
    c.LANE, c.L16, c.V_DE, c.V_DK, c.V_TOK = LANE, L16, V_DE, V_DK, V_TOK
    lane_id(k, LANE)
    k(f"v_lshlrev_b32 v{L16}, 4, v{LANE}")
    c.KT = KT
    order(c, k, opt, "g4", ["win", [4, 4, 8, 8, 4], 0])
    k(f"s_lshr_b32 s80, s{S_WAVE}, 1\ns_and_b32 s81, s{S_WAVE}, 1")
    k(f"s_mul_i32 s{S_G80}, s80, {80*2048}\ns_mul_i32 s{S_G192}, s80, {192*2048}")
    k("s_lshl_b32 s82, s80, 5\ns_lshl_b32 s83, s81, 1\ns_add_u32 s82, s82, s83")
    k(f"s_and_b32 s{S_TMP}, s{S_NT}, 1\ns_mul_i32 s83, s{S_TMP}, 1792\ns_add_u32 s82, s82, s83\ns_lshl_b32 s82, s82, 11")
    k(f"v_lshrrev_b32 v{VT}, 3, v{LANE}\nv_lshlrev_b32 v{VT}, 13, v{VT}")
    k(f"v_and_b32 v{VT+1}, 7, v{LANE}\nv_lshl_add_u32 v{VT}, v{VT+1}, 4, v{VT}")
    k(f"v_add_u32 v{VT}, s82, v{VT}")
    k(f"s_lshl_b32 s83, s{S_NT}, 7\nv_add_u32 v{V_DK}, s83, v{VT}\nv_xor_b32 v{V_DE}, 128, v{V_DK}")
    k(f"v_bfe_u32 v{VT}, v{LANE}, 2, 2\nv_mul_u32_u24 v{VT}, 1056, v{VT}")
    k(f"v_lshrrev_b32 v{VT+1}, 4, v{LANE}\nv_lshl_add_u32 v{VT}, v{VT+1}, 7, v{VT}")
    k(f"v_and_b32 v{VT+1}, 3, v{LANE}\nv_lshl_add_u32 v{V_RD+1}, v{VT+1}, 3, v{VT}")
    k(f"v_add_u32 v{V_RD}, {L_R2}, v{V_RD+1}")
    k(f"s_lshl_b32 s82, s{S_RB2}, 3\ns_lshl_b32 s83, s{S_WAVE}, 1\ns_add_u32 s82, s82, s83\ns_mul_i32 s82, s82, {112*1024}")
    k(f"s_mul_i32 s83, s{S_TMP}, {56*1024}\ns_add_u32 s82, s82, s83")
    k(f"v_add_u32 v{V_TOK}, s82, v{L16}\nv_add_u32 v{V_TOK+1}, {112*1024}, v{V_TOK}")
    k(f"s_mul_i32 s{S_WB}, s80, 4224\ns_mul_i32 s82, s81, 2112\ns_add_u32 s{S_WB}, s{S_WB}, s82")
    srd(k, SRD_W, P_W2, F * D * 2)
    c.drop = opt.get("g4_drop", ())
    V2E, V2K, V2T = 200, 201, 202
    c.V2 = (V2E, V2K, V2T)
    slot_addr = [L_R2, L_R2 + STAGE, 1024, 1024 + STAGE]
    def rd(sl, half, b, sub, r):
        off = half * HS + sub * 4224 + r * 512 + b * 32
        return (V_RD, (sl % 2) * STAGE + off) if sl < 2 else (V_RD + 1, slot_addr[sl] + off)
    NT_ = 2 * L
    tf = lambda kt, sub, t: 64 + (((kt * 2 + sub) % NT_) * 2 + t) * 4
    acc = lambda b, t: vr((b * 2 + t) * 4, 4)
    c.wf = lambda buf, j: (buf * 8 + j) * 4
    typ = lambda kt: "A" if kt < 16 else ("B1" if kt < 24 else "B2")
    def w_off(sd, kt):
        o = [T(x) for x in c.pos_txt(sd, kt)]
        if typ(kt) == "A": o.append(T(f"s_mul_i32 s{sd}, s{sd}, {112*2048}"))
        elif typ(kt) == "B1": o += [T(f"s_mul_i32 s{sd}, s{sd}, {224*2048}"), T(f"s_add_u32 s{sd}, s{sd}, {(64 - 16*224)*2048}"), T(f"s_add_u32 s{sd}, s{sd}, s{S_G80}")]
        else: o += [T(f"s_mul_i32 s{sd}, s{sd}, {448*2048}"), T(f"s_add_u32 s{sd}, s{sd}, {(96 - 24*448)*2048}"), T(f"s_add_u32 s{sd}, s{sd}, s{S_G192}")]
        return o
    halves = [[("E", kt), ("K", kt)] for kt in range(MAIN)]
    halves += [[("E", MAIN + 2 * j), ("E", MAIN + 2 * j + 1)] for j in range(L // 2)]
    halves += [[("K", MAIN + 2 * j), ("K", MAIN + 2 * j + 1)] for j in range(L // 2)]
    cur = None; flip = 0
    for st, hv in enumerate(halves):
        us = []
        for h, (kind, kt) in enumerate(hv):
            pre = []
            if cur != kt:
                flip ^= 1; cur = kt; pre = w_off(c.s_kw + flip, kt)
            vo = (V2E if kind == 'E' else V2K) if typ(kt) == "B2" else (V_DE if kind == 'E' else V_DK)
            for i, goff in enumerate((0, 2048)):
                us.append((pre if i == 0 else []) + [T(f"s_add_u32 m0, s{S_WB}, {slot_addr[st % 4] + h * HS + i * 1056 - goff}"),
                          VM(f"buffer_load_dwordx4 v{vo}, {sr(SRD_W,4)}, s{c.s_kw + flip} offen" + (f" offset:{goff}" if goff else "") + " lds", ("dma", st))])
        c.stage_units[st] = us; c.stage_slot[st] = st % 4
        for j in range(2):
            frags = []; toks = []
            parts = [(0, j), (1, j)] if st < MAIN else [(j, 0), (j, 1)]
            for h, sub in parts:
                kind, kt = hv[h]
                if (kt, sub) not in toks: toks.append((kt, sub))
                for b in range(4):
                    va, o0 = rd(st % 4, h, b, sub, 0); _, o1 = rd(st % 4, h, b, sub, 1)
                    frags.append((va, o0, o1, [(acc(b + (0 if kind == 'E' else 4), t), tf(kt, sub, t)) for t in range(2)]))
            c.steps.append(dict(frags=frags, stages=[st], toks=toks))
    for kt in range(KT):
        sd = c.s_kt + kt % 2
        for sub in range(2):
            us = []
            for t in range(2):
                g = []
                if sub == 0 and t == 0:
                    g = [T(x) for x in c.pos_txt(sd, kt)]
                    if typ(kt) == "A": g.append(T(f"s_mul_i32 s{sd}, s{sd}, 3584"))
                    elif typ(kt) == "B1": g += [T(f"s_mul_i32 s{sd}, s{sd}, 7168"), T(f"s_add_u32 s{sd}, s{sd}, {2048 - 16*7168}")]
                    else: g += [T(f"s_mul_i32 s{sd}, s{sd}, 14336"), T(f"s_add_u32 s{sd}, s{sd}, {3072 - 24*14336}")]
                key = ("tok", (kt, sub))
                if typ(kt) == "B2":
                    if sub == 1 and t == 0: g.append(T(f"s_add_u32 s{sd}, s{sd}, 7168"))
                    g.append(VM(f"buffer_load_dwordx2 {ar(tf(kt, sub, t),2)}, v{V2T+t}, {sr(SRD_T,4)}, s{sd} offen sc1", key))
                    g.append(VM(f"buffer_load_dwordx2 {ar(tf(kt, sub, t)+2,2)}, v{V2T+t}, {sr(SRD_T,4)}, s{sd} offen offset:3584 sc1", key))
                else:
                    g.append(VM(f"buffer_load_dwordx4 {ar(tf(kt, sub, t),4)}, v{V_TOK+t}, {sr(SRD_T,4)}, s{sd} offen offset:{sub*(1024 if typ(kt) == 'A' else 3584)} sc1", key))
                us.append(g)
            c.tok_units[(kt, sub)] = us; c.tok_slot[(kt, sub)] = (kt * 2 + sub) % NT_
    c.pro_units, c.ramp_rate, c.read_margin, c.lookahead = opt.get("g4_pro", 12), opt.get("g4_ramp", 6), 4, opt.get("g4_la", 7)
    c.MAIN, c.L = MAIN, L
    return c

def phase_gemm4p(k, c, opt):
    LANE, L16 = c.LANE, c.L16
    VT = 72
    srd(k, SRD_T, P_WS, S * F * 2, WS_HH)
    srd(k, SRD_A, P_OUT, S * D * 2)
    srd(k, SRD_B, P_WS, 8 << 20, WS_P4)
    V_G, V_GA, V_XA, V_X, IMP, VF = 96, 76, 77, 80, 128, 78
    for j in range(16): k(f"v_accvgpr_read_b32 v{V_X+j}, a{A_X1+j}")
    k(f"v_and_b32 v{VT}, 15, v{LANE}\nv_lshlrev_b32 v{VT}, {FS}, v{VT}")
    k(f"s_lshl_b32 s84, s{S_RB2}, 1\ns_lshr_b32 s85, s{S_WAVE}, 1\ns_add_u32 s84, s84, s85\ns_lshl_b32 s84, s84, {FS+5}\ns_add_u32 s84, s84, {F_HH}")
    k(f"s_and_b32 s85, s{S_NT}, 1\ns_lshl_b32 s85, s85, {FS+4}\ns_add_u32 s84, s84, s85")
    k(f"v_mov_b32 v252, v{VT}")
    c.tile_of = lambda key: key[0]
    k(f"s_add_u32 s85, s84, {F_HB - F_HH}")
    staged_wait(k, c, opt.get("g4_T", 6), 252, 84, 253, one_prod, pub=(94, 204))
    add_gate(k, c, 16, f"buffer_load_dword v253, v252, {sr(SRD_F,4)}, s85 offen sc1", 253)
    k.stamp("hh ready")
    p = Txt()
    p(f"v_lshrrev_b32 v{VT}, 4, v{LANE}\nv_lshlrev_b32 v{V_GA}, 4, v{VT}\nv_add_u32 v{V_GA}, {L_MV}, v{V_GA}")
    p(f"v_and_b32 v{VT+1}, 15, v{LANE}\nv_lshlrev_b32 v{VT+1}, 11, v{VT+1}")
    p(f"v_and_b32 v{VT+2}, 1, v{VT}\nv_lshl_add_u32 v{VT+1}, v{VT+2}, 5, v{VT+1}")
    p(f"v_lshrrev_b32 v{VT+2}, 1, v{VT}\nv_lshl_add_u32 v{V_XA}, v{VT+2}, 4, v{VT+1}")
    p(f"s_lshl_b32 s86, s{S_RB2}, 3\ns_lshl_b32 s87, s{S_WAVE}, 1\ns_add_u32 s86, s86, s87\ns_lshl_b32 s86, s86, 15\ns_lshl_b32 s87, s{S_NT}, 7\ns_add_u32 s86, s86, s87\ns_add_u32 s87, s86, 32768")
    p(f"s_lshl_b32 s88, s{S_RB2}, 4\ns_add_u32 s88, s88, s{S_NT}\ns_lshl_b32 s88, s88, 2\ns_add_u32 s88, s88, s{S_WAVE}")
    p("s_xor_b32 s89, s88, 4")
    p(f"s_lshl_b32 s90, s88, 13\ns_add_u32 s91, s90, 4096\ns_lshl_b32 s92, s89, 13\ns_add_u32 s93, s92, 4096")
    p(f"s_lshl_b32 s88, s88, {FS}\ns_add_u32 s88, s88, {F_P4}\ns_lshl_b32 s89, s89, {FS}\ns_add_u32 s89, s89, {F_P4}")
    V2E, V2K, V2T = c.V2
    p(f"v_lshrrev_b32 v{VT}, 5, v{LANE}\nv_mul_u32_u24 v{VT}, {96*2048}, v{VT}\nv_add_u32 v{V2E}, v{c.V_DE}, v{VT}\nv_add_u32 v{V2K}, v{c.V_DK}, v{VT}")
    p(f"v_lshrrev_b32 v{VT}, 1, v{L16}\nv_sub_u32 v{V2T}, v{c.V_TOK}, v{VT}\nv_sub_u32 v{V2T+1}, v{c.V_TOK+1}, v{VT}")
    p(f"v_mov_b32 v{VT}, 1\nv_mov_b32 v{VT+1}, 0")
    c.pre_loop_txt = p.L
    N = len(c.steps); p2 = N - c.L
    for st_ in opt.get("cp4", []): c.late.setdefault(st_, []).extend(code_prefetch_txt(k.name, L16, 254, 80, junk="v240"))
    ex = [VM(f"buffer_store_dwordx4 {vr(4*j,4)}, v{L16}, {sr(SRD_B,4)}, s{90 + j//4} offen offset:{(j%4)*1024} sc1", ("exp", 0)) for j in range(8)]
    ne_ = opt.get("g4_ne", 2)
    for j in range(ne_): c.late[p2 + 1 + j] = ex[j * 8 // ne_:(j + 1) * 8 // ne_]
    c.late[p2 + opt.get("g4_fs", 6)] = [WVM([("exp", 0)]), f"buffer_store_dword v{VT}, v{VT+1}, {sr(SRD_F,4)}, s88 offen sc1"]
    c.late[N - 3] = [VM(f"buffer_load_dword v{VF}, v{VT+1}, {sr(SRD_F,4)}, s89 offen sc1", ("pf", 0))]
    c.last_reads = [f"ds_read_b128 {vr(V_G+4*b,4)}, v{V_GA} offset:{768+b*64}" for b in range(4)]
    m = Txt(); m.label = k.label
    okl = k.label("pok")
    m(f"v_cmp_eq_u32 vcc, 0, v{VF}\ns_cmp_eq_u64 vcc, 0\ns_cbranch_scc1 {okl}")
    spin(m, [f"buffer_load_dword v{VF}, v{VT+1}, {sr(SRD_F,4)}, s89 offen sc1"], [VF], 0)
    m(f"{okl}:")
    c.late[N - 1] = [WVM([("pf", 0)]), T("\n".join(m.L))] + [f"buffer_load_dwordx4 {vr(IMP+4*j,4)}, v{L16}, {sr(SRD_B,4)}, s{92 + j//4} offen offset:{(j%4)*1024} sc1" for j in range(8)]
    c.run(k)
    k.stamp("g4 loop done")
    A = lambda b, t: 32 + (b * 2 + t) * 4
    XT = 112
    XF = 160
    for j in range(16): k(f"v_lshlrev_b32 v{XF+2*j}, 16, v{V_X+j}\nv_and_b32 v{XF+2*j+1}, 0xffff0000, v{V_X+j}")
    k("s_waitcnt vmcnt(0) lgkmcnt(0)")
    for t in range(2):
        for b in range(4):
            for h in range(2): k(f"v_pk_add_f32 {vr(A(b,t)+2*h,2)}, {vr(A(b,t)+2*h,2)}, {vr(IMP+(b*2+t)*4+2*h,2)}")
            for h in range(2): k(f"v_pk_fma_f32 {vr(A(b,t)+2*h,2)}, {vr(A(b,t)+2*h,2)}, {vr(V_G+4*b+2*h,2)}, {vr(XF+(t*4+b)*4+2*h,2)}")
        PK = XT + t * 8
        for b in range(4): k(f"v_cvt_pk_bf16_f32 v{PK+2*b}, v{A(b,t)}, v{A(b,t)+1}\nv_cvt_pk_bf16_f32 v{PK+2*b+1}, v{A(b,t)+2}, v{A(b,t)+3}")
        k("s_nop 1")
        for s_ in range(2): k(f"v_permlane16_swap_b32 v{PK+4*s_}, v{PK+4*s_+2}\nv_permlane16_swap_b32 v{PK+4*s_+1}, v{PK+4*s_+3}")
        for s_ in range(2): k(f"buffer_store_dwordx4 {vr(PK+4*s_,4)}, v{V_XA}, {sr(SRD_A,4)}, s{86+t} offen offset:{s_*64}")

def phase_gemm1(k, c, opt):
    LANE, L16, VT = c.LANE, c.L16, c.VT
    PHK, VV, SH, UTX = 0, 34816, 114688, 126976
    A_PH = 160
    p = Txt()
    srd(p, SRD_A, P_WPHI, H * 2048)
    srd(p, SRD_B, P_WS, 2 << 20, WS_KVP)
    srd(p, SRD_C, P_WS, 128 << 10, WS_ZP)
    A_PW, A_VW, A_PR, A_VR, A_WR = 110, 111, 112, 113, 114
    p(f"s_lshr_b32 s80, s{S_WAVE}, 1\ns_and_b32 s81, s{S_WAVE}, 1")
    p(f"v_and_b32 v{VT}, 15, v{LANE}\ns_lshl_b32 s82, s{S_WAVE}, 5\nv_add_u32 v{VT}, s82, v{VT}")
    p(f"v_lshrrev_b32 v{VT+1}, 4, v{LANE}\nv_lshlrev_b32 v{VT+1}, 3, v{VT+1}")
    p(f"v_mul_u32_u24 v{A_PW}, 136, v{VT}\nv_add_u32 v{A_PW}, v{A_PW}, v{VT+1}")
    p(f"v_mul_u32_u24 v{A_VW}, 72, v{VT}\nv_add_u32 v{A_VW}, v{A_VW}, v{VT+1}")
    p(f"v_lshrrev_b32 v{VT}, 2, v{LANE}\nv_and_b32 v{VT+1}, 3, v{LANE}\nv_lshlrev_b32 v{VT+1}, 3, v{VT+1}")
    p(f"s_mul_i32 s82, s80, 17408\ns_lshl_b32 s83, s81, 6\ns_add_u32 s82, s82, s83")
    p(f"v_mul_u32_u24 v{A_PR}, 136, v{VT}\nv_add_u32 v{A_PR}, v{A_PR}, v{VT+1}\nv_add_u32 v{A_PR}, s82, v{A_PR}")
    p(f"s_mul_i32 s82, s80, 9216")
    p(f"v_mul_u32_u24 v{A_VR}, 72, v{VT}\nv_add_u32 v{A_VR}, v{A_VR}, v{VT+1}\nv_add_u32 v{A_VR}, s82, v{A_VR}")
    p(f"v_lshl_add_u32 v{A_WR}, v{VT}, 6, v{VT+1}\nv_add_u32 v{A_WR}, {L_WPH}, v{A_WR}")
    ONES, SEL = 116, 120
    for j in range(4): p(f"v_mov_b32 v{ONES+j}, 0x3f803f80")
    p(f"v_bfe_u32 v{VT}, v{LANE}, 2, 2\nv_lshrrev_b32 v{VT+1}, 4, v{LANE}")
    p(f"v_cmp_eq_u32 vcc, v{VT}, v{VT+1}")
    p(f"v_and_b32 v{VT}, 1, v{LANE}\nv_lshlrev_b32 v{VT}, 4, v{VT}\nv_mov_b32 v{VT+1}, 0x3f80\nv_lshlrev_b32 v{VT+1}, v{VT}, v{VT+1}")
    p(f"v_cndmask_b32 v{VT+1}, 0, v{VT+1}, vcc")
    p(f"v_and_b32 v{VT}, 2, v{LANE}\nv_cmp_eq_u32 vcc, 0, v{VT}")
    for j in (0, 1, 4, 5): p(f"v_mov_b32 v{SEL+j}, 0")
    p(f"v_cndmask_b32 v{SEL+2}, 0, v{VT+1}, vcc\nv_cndmask_b32 v{SEL+3}, v{VT+1}, 0, vcc")
    p(f"s_mov_b32 s94, {LOG2E!r}\ns_mov_b32 s95, {LOG2E!r}")
    p(f"s_lshl_b32 s84, s{S_HP}, 12\ns_lshl_b32 s85, s{S_WAVE}, 10\ns_add_u32 s84, s84, s85\ns_add_u32 s85, s85, {L_WPH}")
    c.pre_loop_txt = p.L
    c.late = {4: ["s_mov_b32 m0, s85", f"buffer_load_dwordx4 v{L16}, {sr(SRD_A,4)}, s84 offen lds"]}
    if opt.get("cpf", 1): c.late[22] = code_prefetch_txt(k.name, L16, 254, 80)
    ml = modb_loads(S_MB, 115, 109)
    ms = opt.get("modb_steps", [16] * 8)
    if opt.get("modb_front", 0):
        lb = k.label("skw0")
        c.late.setdefault(ms[0], []).append(T("\n".join([f"s_cmp_lg_u32 s{S_WAVE}, 0", f"s_cbranch_scc1 {lb}"] + [x for g in ml for x in g] + [f"{lb}:"])))
        ml = []
    else:
        for st_, g in zip(ms, ml): c.late.setdefault(st_, []).extend(g)
        ml = ml[len(ms):]
    c.last_reads = [f"ds_read_b64_tr_b16 {ar(A_PH+(hh*2+fb)*4+2*r,2)}, v{A_WR} offset:{hh*2048+r*1024+fb*32}" for hh in range(2) for fb in range(2) for r in range(2)]
    c.run(k)
    k.stamp("g1 loop done")
    A = lambda b, t: (b * 2 + t) * 4
    BF, P1, P2, MX, MN, EK = 126, 142, 174, 206, 214, 222
    groups = [(hh, t) for hh in range(2) for t in range(2)]
    def fm_part1(seg):
        for g, (hh, t) in enumerate(groups):
            for db in range(2):
                a = A(seg * 4 + hh * 2 + db, t)
                k(f"v_cvt_pk_bf16_f32 v{BF+g*4+db*2}, v{a}, v{a+1}\nv_cvt_pk_bf16_f32 v{BF+g*4+db*2+1}, v{a+2}, v{a+3}")
        k("s_nop 1")
        for g, (hh, t) in enumerate(groups):
            for fb in range(2):
                k(f"{MF} {vr(P1+g*8+fb*4,4)}, {ar(A_PH+(hh*2+fb)*4,4)}, {vr(BF+g*4,4)}, 0")
    def fm_part2():
        for op3, op2, M in (("v_max3_f32", "v_max_f32", MX), ("v_min3_f32", "v_min_f32", MN)):
            for g in range(4):
                b = P1 + g * 8
                k(f"{op3} v{M+2*g}, v{b}, v{b+1}, v{b+2}\n{op3} v{M+2*g}, v{M+2*g}, v{b+3}, v{b+4}\n{op3} v{M+2*g}, v{M+2*g}, v{b+5}, v{b+6}\n{op2} v{M+2*g}, v{M+2*g}, v{b+7}")
            treduce4(k, op2, [M + 2 * g for g in range(4)])
        for g in range(4):
            k(f"v_mul_f32 v{MX+2*g}, {-LOG2E!r}, v{MX+2*g}\nv_mul_f32 v{MN+2*g}, {LOG2E!r}, v{MN+2*g}")
    def fm_part3(E):
        for g in range(4):
            for j in range(4):
                b = g * 8 + 2 * j
                k(f"v_pk_fma_f32 {vr(P2+b,2)}, {vr(P1+b,2)}, s[94:95], {vr(MN+2*g,2)} op_sel_hi:[1,1,0] neg_lo:[1,0,0] neg_hi:[1,0,0]")
                k(f"v_pk_fma_f32 {vr(P1+b,2)}, {vr(P1+b,2)}, s[94:95], {vr(MX+2*g,2)} op_sel_hi:[1,1,0]")
            for j in range(8): k(f"v_exp_f32 v{P1+g*8+j}, v{P1+g*8+j}")
            for j in range(8): k(f"v_exp_f32 v{P2+g*8+j}, v{P2+g*8+j}")
            k("s_nop 0")
            for sg, PP in enumerate((P1, P2)):
                for j in range(4): k(f"v_cvt_pk_bf16_f32 v{E+(g*2+sg)*4+j}, v{PP+g*8+2*j}, v{PP+g*8+2*j+1}")
    for g in ml:
        for x in g: k(x)
    k("s_waitcnt lgkmcnt(0)\ns_nop 7")
    fm_part1(1)
    k("s_barrier")
    mark0 = len(k.L)
    for g, (hh, t) in enumerate(groups):
        for db in range(2):
            a = A(8 + hh * 2 + db, t)
            k(f"v_cvt_pk_bf16_f32 v{a}, v{a}, v{a+1}\nv_cvt_pk_bf16_f32 v{a+1}, v{a+2}, v{a+3}")
            k(f"ds_write_b64 v{A_VW}, {vr(a,2)} offset:{VV + hh*9216 + t*16*72 + db*32}")
    fm_part2()
    fm_part3(EK)
    SM = 32
    k("s_nop 1")
    for i in range(8): k(f"{MF} {vr(SM+4*i,4)}, {vr(ONES,4)}, {vr(EK+4*i,4)}, 0")
    k("s_nop 7")
    for i in range(8): k(f"v_rcp_f32 v{SM+4*i}, v{SM+4*i}")
    for g, (hh, t) in enumerate(groups):
        for sg, PP in enumerate((P1, P2)):
            for j in range(4):
                k(f"v_pk_mul_f32 {vr(PP+g*8+2*j,2)}, {vr(PP+g*8+2*j,2)}, {vr(SM+(g*2+sg)*4,2)} op_sel_hi:[1,0]")
            for fb in range(2):
                b = PP + g * 8 + fb * 4
                k(f"v_cvt_pk_bf16_f32 v{b}, v{b}, v{b+1}\nv_cvt_pk_bf16_f32 v{b+1}, v{b+2}, v{b+3}")
                k(f"ds_write_b64 v{A_PW}, {vr(b,2)} offset:{PHK + hh*17408 + t*16*136 + sg*64 + fb*32}")
    sprinkle(k, mark0, g3_early_units(k.g3, opt.get("g3_e1", 14), 254))
    k("s_waitcnt lgkmcnt(0)\ns_barrier")
    for s_ in range(4):
        for r in range(2):
            for fb in range(2): k(f"ds_read_b64_tr_b16 {ar(s_*16+fb*4+2*r,2)}, v{A_PR} offset:{PHK + (32*s_+16*r)*136 + fb*32}")
            for db in range(2): k(f"ds_read_b64_tr_b16 {ar(s_*16+8+db*4+2*r,2)}, v{A_VR} offset:{VV + (32*s_+16*r)*72 + db*32}")
    fm_part1(0)
    KV, ZZ = 64, 80
    for s_ in range(4):
        k(f"s_waitcnt lgkmcnt({min(15, 24 - 8*s_)})")
        for fb in range(2):
            for db in range(2):
                d = vr(KV + (db * 2 + fb) * 4, 4)
                k(f"{MF} {d}, {ar(s_*16+fb*4,4)}, {ar(s_*16+8+db*4,4)}, {'0' if s_ == 0 else d}")
            d = vr(ZZ + fb * 4, 4)
            k(f"{MF} {d}, {ar(s_*16+fb*4,4)}, {vr(ONES,4)}, {'0' if s_ == 0 else d}")
    k(f"s_lshl_b32 s82, s{S_HP}, 2\ns_add_u32 s82, s82, s{S_WAVE}")
    k("s_lshl_b32 s83, s82, 15")
    k(f"s_lshl_b32 s84, s{S_RB1}, 10\ns_add_u32 s84, s84, s83\ns_add_u32 s85, s84, 16384")
    k("s_lshl_b32 s90, s82, 11")
    k(f"s_lshl_b32 s91, s82, {FS+4}\ns_add_u32 s91, s91, {F_KV}\ns_lshl_b32 s92, s{S_RB1}, {FS}\ns_add_u32 s92, s92, s91")
    k(f"v_and_b32 v{VT}, 15, v{LANE}\nv_cmp_eq_u32 vcc, s{S_RB1}, v{VT}")
    k("s_nop 2")
    for db in range(2):
        for j in range(4): k(f"v_cvt_pk_bf16_f32 v{88+db*4+j}, v{KV+db*8+2*j}, v{KV+db*8+2*j+1}")
    k(f"buffer_store_dwordx4 {vr(88,4)}, v{L16}, {sr(SRD_B,4)}, s84 offen sc1")
    k(f"buffer_store_dwordx4 {vr(92,4)}, v{L16}, {sr(SRD_B,4)}, s85 offen sc1")
    k("s_and_saveexec_b64 s[96:97], vcc")
    k(f"buffer_store_dwordx4 {vr(ZZ,4)}, v{L16}, {sr(SRD_C,4)}, s90 offen sc1")
    k(f"buffer_store_dwordx4 {vr(ZZ+4,4)}, v{L16}, {sr(SRD_C,4)}, s90 offen offset:1024 sc1")
    k("s_mov_b64 exec, s[96:97]")
    k.stamp("kv stored")
    fm_part2()
    publish(k, 92, VT + 1)
    k.stamp("kv published")
    k("s_mov_b32 s93, s83")
    g2 = setup_gemm24(k, 2, opt, 96)
    k("s_mov_b32 s83, s93")
    g2.prefetch(k, 8)
    fm_part3(EK)
    k(f"v_lshlrev_b32 v{VT}, {FS}, v{VT}")
    wait_flags(k, [(VT, 91, 1)], VT + 1)
    k.stamp("kv ready")
    k(f"buffer_load_dwordx4 {vr(ZZ,4)}, v{L16}, {sr(SRD_C,4)}, s90 offen sc1")
    k(f"buffer_load_dwordx4 {vr(ZZ+4,4)}, v{L16}, {sr(SRD_C,4)}, s90 offen offset:1024 sc1")
    for i in range(32):
        if i % 4 == 0 and i: k("s_add_u32 s83, s83, 4096")
        k(f"buffer_load_dwordx4 {ar(4*i,4)}, v{L16}, {sr(SRD_B,4)}, s83 offen offset:{(i%4)*1024} sc1")
    srd(k, SRD_T, P_WS, S * D * 2, WS_O)
    k("s_waitcnt vmcnt(32)")
    for sh in (8, 4, 2, 1):
        for j in range(8): k(f"v_add_f32_dpp v{ZZ+j}, v{ZZ+j}, v{ZZ+j} row_ror:{sh} row_mask:0xf bank_mask:0xf")
    k(f"v_and_b32 v{VT+1}, 1, v{LANE}\nv_cmp_eq_u32 vcc, 0, v{VT+1}")
    for j in range(4): k(f"v_cvt_pk_bf16_f32 v{BF+8+j}, v{ZZ+2*j}, v{ZZ+2*j+1}")
    for j in range(4): k(f"v_cndmask_b32 v{BF+8+j}, v{ONES}, v{BF+8+j}, vcc")
    for i in range(32):
        db, pp = divmod(i, 16)
        if i % 2 == 0: k(f"s_waitcnt vmcnt({30 - i})")
        for fb in range(2):
            d = vr(KV + (db * 2 + fb) * 4, 4)
            k(f"{MF} {d}, {vr(SEL + (2 if fb == 0 else 0), 4)}, {ar(4*i,4)}, {'0' if pp == 0 else d}")
    k(f"s_mul_i32 s82, s{S_WAVE}, 3072\ns_add_u32 s82, s82, {SH}")
    k(f"v_add_u32 v{VT+1}, s82, v{L16}\nv_add_u32 v{VT+2}, {SH}, v{L16}")
    k("s_nop 6")
    for db in range(2):
        for j in range(4): k(f"v_cvt_pk_bf16_f32 v{BF+db*4+j}, v{KV+db*8+2*j}, v{KV+db*8+2*j+1}")
    for j in range(3): k(f"ds_write_b128 v{VT+1}, {vr(BF+4*j,4)} offset:{j*1024}")
    k("s_waitcnt lgkmcnt(0)\ns_barrier")
    for i in range(12): k(f"ds_read_b128 {ar(4*i,4)}, v{VT+2} offset:{i*1024}")
    k(f"s_lshl_b32 s82, s{S_RB1}, 3\ns_lshl_b32 s83, s{S_WAVE}, 1\ns_add_u32 s82, s82, s83\ns_lshl_b32 s82, s82, 15")
    k(f"s_lshl_b32 s83, s{S_HP}, 11\ns_add_u32 s82, s82, s83\ns_add_u32 s83, s82, 0x8000")
    k(f"s_lshl_b32 s84, s{S_RB1}, 2\ns_add_u32 s84, s84, s{S_WAVE}\ns_lshl_b32 s84, s84, {FS+4}\ns_lshl_b32 s85, s{S_HP}, {FS}\ns_add_u32 s84, s84, s85\ns_add_u32 s84, s84, {F_O}")
    k("s_waitcnt lgkmcnt(0)")
    for g, (hh, t) in enumerate(groups):
        for sg in range(2):
            for j in range(3):
                k(f"{MF} {vr((g*2+sg)*12+4*j,4)}, {ar(((hh*2+sg)*3+j)*4,4)}, {vr(EK+(g*2+sg)*4,4)}, 0")
    k("s_nop 7")
    for g, (hh, t) in enumerate(groups):
        n1, n2 = g * 24, g * 24 + 12
        D1, S1, D2, S2 = n1 + 8, n1 + 9, n2 + 8, n2 + 9
        k(f"v_mul_f32 v{n1+10}, v{S1}, v{S2}")
        k(f"v_mul_f32 v{n1+10}, 0x358637bd, v{n1+10}")
        k(f"v_fmac_f32 v{n1+10}, v{D1}, v{S2}\nv_fmac_f32 v{n1+10}, v{D2}, v{S1}")
        k(f"v_rcp_f32 v{n1+10}, v{n1+10}")
        k("s_nop 0")
        k(f"v_mul_f32 v{D1}, v{S2}, v{n1+10}\nv_mul_f32 v{D2}, v{S1}, v{n1+10}")
        for j in range(4): k(f"v_pk_mul_f32 {vr(n1+2*j,2)}, {vr(n1+2*j,2)}, {vr(D1,2)} op_sel_hi:[1,0]")
        for j in range(4): k(f"v_pk_fma_f32 {vr(n1+2*j,2)}, {vr(n2+2*j,2)}, {vr(D2,2)}, {vr(n1+2*j,2)} op_sel_hi:[1,0,1]")
        for j in range(4): k(f"v_cvt_pk_bf16_f32 v{n2+j}, v{n1+2*j}, v{n1+2*j+1}")
        k(f"buffer_store_dwordx4 {vr(n2,4)}, v{L16}, {sr(SRD_T,4)}, s{82+t} offen offset:{hh*1024} sc1")
    k.stamp("o stored")
    CU, AU, WW, TT = 128, 144, 152, 156
    for i in range(8): k(f"v_accvgpr_read_b32 v{CU+2*i}, a{A_UT+32+i}")
    silu_block(k, [CU + 2 * i for i in range(8)])
    mko = len(k.L)
    g2.V_X = 48
    srd(k, SRD_A, P_X, S * D * 2)
    V_XA = 47
    k(f"v_lshrrev_b32 v{VT+1}, 4, v{LANE}")
    k(f"v_and_b32 v{VT+2}, 15, v{LANE}\nv_lshlrev_b32 v{VT+2}, 11, v{VT+2}\nv_lshl_add_u32 v{V_XA}, v{VT+1}, 3, v{VT+2}")
    k(f"s_lshl_b32 s82, s{S_RB2}, 3\ns_lshl_b32 s83, s{S_WAVE}, 1\ns_add_u32 s82, s82, s83\ns_lshl_b32 s82, s82, 15\ns_lshl_b32 s83, s{S_NT}, 7\ns_add_u32 s82, s82, s83\ns_add_u32 s83, s82, 32768")
    for t in range(2):
        for b in range(4):
            k(f"buffer_load_dwordx2 {vr(g2.V_X+(t*4+b)*2,2)}, v{V_XA}, {sr(SRD_A,4)}, s{82+t} offen offset:{b*32}")
    publish(k, 84, VT + 2, mko)
    k.stamp("o published")
    mark1 = len(k.L)
    for j in range(8): k(f"v_mov_b32 v{AU+j}, 0")
    for i in range(8):
        for d in range(4): k(f"v_accvgpr_read_b32 v{WW+d}, a{A_UT+4*i+d}")
        for d in range(4):
            k(f"v_lshlrev_b32 v{TT}, 16, v{WW+d}\nv_and_b32 v{TT+1}, 0xffff0000, v{WW+d}")
            k(f"v_pk_fma_f32 {vr(AU+2*d,2)}, {vr(TT,2)}, {vr(CU+2*i,2)}, {vr(AU+2*d,2)} op_sel_hi:[1,0,1]")
    k("s_nop 1")
    for j in range(4): k(f"v_permlane32_swap_b32 v{AU+j}, v{AU+j+4}")
    k("s_nop 1")
    for j in range(4): k(f"v_add_f32 v{AU+j}, v{AU+j}, v{AU+j+4}")
    k("s_nop 1")
    for j in range(2): k(f"v_permlane16_swap_b32 v{AU+j}, v{AU+j+2}")
    k("s_nop 1")
    for j in range(2): k(f"v_add_f32 v{AU+j}, v{AU+j}, v{AU+j+2}")
    k("s_nop 1")
    for j in range(2): k(f"v_add_f32_dpp v{AU+j}, v{AU+j}, v{AU+j} row_ror:8 row_mask:0xf bank_mask:0xf")
    sprinkle(k, mark1, g3_early_units(k.g3, opt.get("g3_e2", 7), 254), skip=0)
    k(f"v_and_b32 v{TT}, 7, v{LANE}\nv_lshlrev_b32 v{TT}, 5, v{TT}\nv_lshrrev_b32 v{TT+1}, 5, v{LANE}\nv_lshl_add_u32 v{TT}, v{TT+1}, 4, v{TT}")
    k(f"v_bfe_u32 v{TT+1}, v{LANE}, 4, 1\nv_lshl_add_u32 v{TT}, v{TT+1}, 3, v{TT}")
    srd(k, SRD_D, P_WS, MP_BYTES, WS_MODP)
    k(f"v_or_b32 v{AU}, 1, v{AU}\nv_or_b32 v{AU+1}, 1, v{AU+1}")
    k(f"buffer_store_dwordx2 {vr(AU,2)}, v{TT}, {sr(SRD_D,4)}, s{S_MO} offen sc1")
    return g2

A_PARK = 224
S3_SRD, S3_WB, S3_KW = 64, 68, 69
def setup_gemm3_early(k, opt, LANE, VT):
    c = Sched(); common_gemm(c)
    NS, R = 4, 8
    STAGE = 28672
    V_RD, V_DMA, V_TOK = 224, 226, 233
    c.V_RD, c.V_DMA, c.V_TOK, c.LANE, c.L16, c.VT = V_RD, V_DMA, V_TOK, 237, 238, 248
    c.srd_w, c.s_wbase, c.s_kw = S3_SRD, S3_WB, S3_KW
    order(c, k, opt, 'g3', ['win', [4, 4, 8], 0])
    k(f"s_lshr_b32 s80, s{S_WAVE}, 1\ns_and_b32 s81, s{S_WAVE}, 1")
    k(f"s_mul_i32 s83, s80, {32*7168}\ns_mul_i32 s{S_TMP}, s{S_FT}, 224\ns_add_u32 s83, s83, s{S_TMP}")
    for i in range(7):
        k(f"v_add_u32 v{VT+2}, {i*64}, v{LANE}")
        k(f"v_mul_u32_u24 v{VT+3}, 4682, v{VT+2}")
        k(f"v_lshrrev_b32 v{VT+3}, 16, v{VT+3}")
        k(f"v_mul_u32_u24 v{VT+4}, 14, v{VT+3}")
        k(f"v_sub_u32 v{VT+4}, v{VT+2}, v{VT+4}")
        k(f"v_mul_u32_u24 v{VT+3}, 7168, v{VT+3}")
        k(f"v_lshl_add_u32 v{VT+3}, v{VT+4}, 4, v{VT+3}")
        k(f"v_add_u32 v{VT+3}, s83, v{VT+3}")
        k(f"v_accvgpr_write_b32 a{A_PARK+i}, v{VT+3}")
    k(f"s_mul_i32 s{S3_WB}, s81, 14336\ns_mul_i32 s82, s80, 7168\ns_add_u32 s{S3_WB}, s{S3_WB}, s82")
    k(f"s_cmp_eq_u32 s81, 0\ns_cselect_b32 s{S3_SRD}, s{P_W1}, s{P_W3}\ns_cselect_b32 s{S3_SRD+1}, s{P_W1+1}, s{P_W3+1}")
    k(f"s_mov_b32 s{S3_SRD+2}, {D*F*2}\ns_mov_b32 s{S3_SRD+3}, 0x20000")
    c.NB, c.TB, c.KS, c.SPK, c.KT, c.NS, c.R = 14, 4, 1, 2, 16, NS, R
    c.acc = lambda b, t: vr((b * 4 + t) * 4, 4)
    c.tf = lambda slot, ks, t: 112 + (slot * 4 + t) * 4
    ph = lambda sl: 3 - sl
    c.rd = lambda sl, b, sub, r: (V_RD + ph(sl) // 2, (ph(sl) % 2) * STAGE + (b % 2) * 14336 + (32 * sub + 16 * r) * 224 + 32 * (b // 2))
    c.slot_addr = lambda sl: ph(sl) * STAGE
    c.dma = [(V_DMA + i, i * 1024, 0) for i in range(7)]
    c.v_tok = [V_TOK + t for t in range(4)]
    c.w_stride = 64 * 7168
    c.drop = opt.get("g3_drop", ())
    c.pro_units, c.ramp_rate, c.read_margin = opt.get("g3_pro", 12), (lambda st: opt.get("g3_ramp", 12) if st < 6 else 8), 8
    c.lookahead = opt.get("g3_la", 4)
    std_sched(c)
    TL = c.TL = opt.get("g3_tail", 0)
    if TL:
        tail = c.steps[32 - TL:]
        c.steps = c.steps[:32 - TL] + [dict(st, frags=st["frags"][:8]) for st in tail] + [dict(st, frags=st["frags"][8:]) for st in tail]
    return c
def g3_early_units(c, n, vtmp):
    out = []
    for j in range(n):
        t = c.prefetch_txt(1)
        i = (c.pre_dma - 1) % 7
        ld = t[-1].replace(f"v{c.V_DMA+i},", f"v{vtmp},")
        out.append(t[:-1] + [f"v_accvgpr_read_b32 v{vtmp}, a{A_PARK+i}", ld])
    return out
def setup_gemm3_late(k, c):
    V_RD, V_DMA, V_TOK, LANE, L16, VT = c.V_RD, c.V_DMA, c.V_TOK, c.LANE, c.L16, c.VT
    lane_id(k, LANE)
    k(f"v_lshlrev_b32 v{L16}, 4, v{LANE}")
    for i in range(7): k(f"v_accvgpr_read_b32 v{V_DMA+i}, a{A_PARK+i}")
    k(f"v_lshrrev_b32 v{VT+3}, 2, v{LANE}\nv_mul_u32_u24 v{VT+3}, 224, v{VT+3}")
    k(f"v_and_b32 v{VT+4}, 3, v{LANE}\nv_lshl_add_u32 v{V_RD}, v{VT+4}, 3, v{VT+3}")
    k(f"v_add_u32 v{V_RD+1}, {2*28672}, v{V_RD}")
    k(f"s_lshl_b32 s82, s{S_RB3}, 4\ns_lshl_b32 s83, s{S_WAVE}, 2\ns_add_u32 s82, s82, s83\ns_lshl_b32 s82, s82, 15")
    k(f"v_add_u32 v{V_TOK}, s82, v{L16}")
    for t in range(1, 4): k(f"v_add_u32 v{V_TOK+t}, {t*0x8000}, v{V_TOK}")

def sprinkle(k, mark, groups, skip=4):
    if not groups: return
    seg = k.L[mark:]
    stepn = max(1, (len(seg) - skip) // len(groups))
    out, q = [], list(groups)
    for i, x in enumerate(seg):
        out.append(x)
        if q and i >= skip and (i - skip) % stepn == 0:
            assert not x.startswith("s_cmp") and not x.startswith("s_and_saveexec")
            out += q.pop(0)
    for g in q: out += g
    k.L[mark:] = out

A_X1 = 240
def phase_gemm2(k, c, opt):
    LANE, L16 = c.LANE, c.L16
    VT = 40
    k(f"v_and_b32 v252, 15, v{LANE}\nv_lshlrev_b32 v252, {FS}, v252")
    k(f"s_lshl_b32 s84, s{S_RB2}, 2\ns_add_u32 s84, s84, s{S_WAVE}\ns_lshl_b32 s84, s84, {FS+4}\ns_add_u32 s85, s84, {F_O}")
    if c.hs:
        k(f"s_add_u32 s94, s85, {F_O2 - F_O}")
        staged_wait(k, c, opt.get("g2_T", 5), 252, 85, 253, lambda sp, st: [f"s_lshl_b32 s{st}, s{sp}, 1", f"s_lshl_b32 s{st}, 3, s{st}"], pub=(95, 26))
        add_gate(k, c, 8, f"buffer_load_dword v253, v252, {sr(SRD_F,4)}, s94 offen sc1", 253)
    else:
        staged_wait(k, c, opt.get("g2_T", 6), 252, 85, 253, one_prod)
    k.stamp("o ready")
    V_G, V_C, V_S, V_GA = 64, 80, 136, 44
    p = Txt()
    srd(p, SRD_A, P_WS, S * D * 2, WS_Y)
    srd(p, SRD_B, P_WS, S * 128, WS_STAT)
    srd(p, SRD_D, P_WS, MP_BYTES, WS_MODP)
    p(f"v_lshrrev_b32 v{V_GA}, 4, v{LANE}\nv_lshlrev_b32 v{V_GA}, 4, v{V_GA}\nv_add_u32 v{V_GA}, {L_MV}, v{V_GA}")
    p(f"s_lshl_b32 s86, s{S_RB2}, 3\ns_lshl_b32 s87, s{S_WAVE}, 1\ns_add_u32 s86, s86, s87")
    p(f"s_lshl_b32 s88, s86, 15\ns_lshl_b32 s87, s{S_NT}, 11\ns_add_u32 s88, s88, s87\ns_add_u32 s89, s88, 32768")
    p(f"s_lshl_b32 s87, s{S_NT}, {FS}\ns_add_u32 s84, s84, s87\ns_add_u32 s84, s84, {F_Y}")
    p(f"s_lshl_b32 s91, s86, 11\ns_lshl_b32 s90, s{S_NT}, 8\ns_add_u32 s90, s90, s91")
    p(f"s_lshl_b32 s92, s{S_WAVE}, 16\ns_lshl_b32 s93, s{S_NT}, 12\ns_add_u32 s92, s92, s93\ns_add_u32 s92, s92, {MP_B}")
    p(f"v_lshlrev_b32 v{VT}, 2, v{LANE}")
    c.pre_loop_txt = p.L
    c.late = {}
    if opt.get("cpf", 1): c.late[6] = code_prefetch_txt(k.name, L16, 254, 80)
    m = Txt(); m.label = k.label
    MB_ = 160
    mld = [f"buffer_load_dword v{MB_+j}, v{VT}, {sr(SRD_D,4)}, s92 offen offset:{j*256} sc1" for j in range(16)]
    okm = k.label("mok")
    m(f"v_min_u32 v{MB_+16}, v{MB_}, v{MB_+1}")
    for j in range(2, 16, 2): m(f"v_min3_u32 v{MB_+16}, v{MB_+16}, v{MB_+j}, v{MB_+j+1}")
    m(f"v_cmp_eq_u32 vcc, 0, v{MB_+16}\ns_cmp_eq_u64 vcc, 0\ns_cbranch_scc1 {okm}")
    spin(m, mld, [MB_ + j for j in range(16)], MB_ + 16)
    m(f"{okm}:")
    mchk = "\n".join(m.L); m.L = []
    for st in (4, 2, 1):
        for j in range(st): m(f"v_pk_add_f32 {vr(MB_+2*j,2)}, {vr(MB_+2*j,2)}, {vr(MB_+2*(j+st),2)}")
    m(f"v_add_f32 v{MB_}, v{MB_}, v{MB_+1}")
    round_bf16(m, MB_)
    m(f"v_add_f32 v{MB_+1}, 1.0, v{MB_}"); round_bf16(m, MB_ + 1)
    m(f"s_cmp_eq_u32 s{S_WAVE}, 2\ns_cselect_b64 vcc, -1, 0")
    m(f"v_cndmask_b32 v{MB_}, v{MB_}, v{MB_+1}, vcc")
    m(f"s_lshl_b32 s92, s{S_WAVE}, 8\ns_add_u32 s92, s92, {L_MV}\nv_add_u32 v{VT}, s92, v{VT}")
    m(f"ds_write_b32 v{VT}, v{MB_}")
    ms_ = opt.get("g2_modstep", 13)
    c.late.setdefault(ms_ - 2, []).extend([VM(x, ("mv", 0)) for x in mld])
    k_ = [x for x in m.L]
    i_ = next(i for i, x in enumerate(k_) if x.startswith("s_cmp_eq_u32"))
    c.late[ms_] = [WVM([("mv", 0)]), T(mchk)] + k_[:i_] + ["\n".join(k_[i_:])]
    ne = opt.get("g3_e3", 7 if opt.get("split", 1) else 0)
    eu = [x for g in g3_early_units(k.g3, ne, 254) for x in g]
    c.late.setdefault(14, []).extend(eu[:len(eu)//2 // 1]); c.late.setdefault(15, []).extend(eu[len(eu)//2:])
    c.last_reads = ([f"ds_read_b128 {vr(V_G+4*b,4)}, v{V_GA} offset:{b*64}" for b in range(4)] + [f"ds_read_b128 {vr(V_C+4*b,4)}, v{V_GA} offset:{512+b*64}" for b in range(4)]
                    + [f"ds_read_b128 {vr(V_S+4*b,4)}, v{V_GA} offset:{256+b*64}" for b in range(4)])
    c.run(k)
    k.stamp("g2 loop done")
    k("s_waitcnt lgkmcnt(0)\ns_nop 7")
    A = lambda b, t: (b * 2 + t) * 4
    XT = 194; V_X = c.V_X
    for t in range(2):
        for b in range(4):
            xr = V_X + (t * 4 + b) * 2
            for h in range(2): k(f"v_lshlrev_b32 v{XT+2*h}, 16, v{xr+h}\nv_and_b32 v{XT+2*h+1}, 0xffff0000, v{xr+h}")
            for h in range(2): k(f"v_pk_fma_f32 {vr(A(b,t)+2*h,2)}, {vr(A(b,t)+2*h,2)}, {vr(V_G+4*b+2*h,2)}, {vr(XT+2*h,2)}")
        PK = XT + 4 + t * 8
        for b in range(4): k(f"v_cvt_pk_bf16_f32 v{PK+2*b}, v{A(b,t)}, v{A(b,t)+1}\nv_cvt_pk_bf16_f32 v{PK+2*b+1}, v{A(b,t)+2}, v{A(b,t)+3}")
        for b in range(4):
            for h in range(2): k(f"v_lshlrev_b32 v{A(b,t)+2*h}, 16, v{PK+2*b+h}\nv_and_b32 v{A(b,t)+2*h+1}, 0xffff0000, v{PK+2*b+h}")
    SU = [XT + 20, XT + 22]; M2 = [XT + 21, XT + 23]; TM = [XT + 24, XT + 25]; AC = [XT, XT + 2]; NM = [XT + 26, XT + 28]; DF = 32
    for t in range(2): k(f"v_pk_add_f32 {vr(AC[t],2)}, {vr(A(0,t),2)}, {vr(A(0,t)+2,2)}")
    for b in range(1, 4):
        for h in range(2):
            for t in range(2): k(f"v_pk_add_f32 {vr(AC[t],2)}, {vr(AC[t],2)}, {vr(A(b,t)+2*h,2)}")
    def allred2(X):
        for sw in ("v_permlane32_swap_b32", "v_permlane16_swap_b32"):
            for t in range(2): k(f"v_mov_b32 v{TM[t]}, v{X[t]}")
            k("s_nop 0")
            for t in range(2): k(f"{sw} v{X[t]}, v{TM[t]}")
            k("s_nop 0")
            for t in range(2): k(f"v_add_f32 v{X[t]}, v{X[t]}, v{TM[t]}")
    for t in range(2): k(f"v_add_f32 v{SU[t]}, v{AC[t]}, v{AC[t]+1}")
    allred2(SU)
    for t in range(2): k(f"v_mul_f32 v{NM[t]}, {-1.0/64!r}, v{SU[t]}\nv_mov_b32 v{AC[t]}, 0\nv_mov_b32 v{AC[t]+1}, 0")
    for b in range(4):
        for h in range(2):
            for t in range(2): k(f"v_pk_add_f32 {vr(DF+2*t,2)}, {vr(A(b,t)+2*h,2)}, {vr(NM[t],2)} op_sel_hi:[1,0]")
            for t in range(2): k(f"v_pk_fma_f32 {vr(AC[t],2)}, {vr(DF+2*t,2)}, {vr(DF+2*t,2)}, {vr(AC[t],2)}")
    for t in range(2): k(f"v_add_f32 v{M2[t]}, v{AC[t]}, v{AC[t]+1}")
    allred2(M2)
    k(f"v_cmp_gt_u32 vcc, 16, v{LANE}")
    k(f"v_lshlrev_b32 v{XT+2}, 3, v{LANE}\nv_lshrrev_b32 v{XT+3}, 4, v{LANE}")
    k(f"v_cndmask_b32 v{XT}, v{SU[1]}, v{SU[0]}, vcc\nv_cndmask_b32 v{XT+1}, v{M2[1]}, v{M2[0]}, vcc")
    k(f"v_and_b32 v45, 0x78, v{XT+2}\nv_lshl_add_u32 v45, v{XT+3}, 10, v45")
    k(f"v_or_b32 v{XT+1}, 1, v{XT+1}")
    k(f"v_cmp_gt_u32 vcc, 32, v{LANE}\ns_and_saveexec_b64 s[96:97], vcc")
    k(f"buffer_store_dwordx2 {vr(XT,2)}, v{XT+2}, {sr(SRD_B,4)}, s90 offen sc1")
    k("s_mov_b64 exec, s[96:97]")
    k.stamp("stat stored")
    for t in range(2):
        for b in range(4):
            for h in range(2): k(f"v_pk_mul_f32 {vr(A(b,t)+2*h,2)}, {vr(A(b,t)+2*h,2)}, {vr(V_C+4*b+2*h,2)}")
    for j in range(16): k(f"v_accvgpr_write_b32 a{A_X1+j}, v{XT+4+j}")
    g3 = k.g3
    setup_gemm3_late(k, g3)
    g3.prefetch(k, opt.get("g3_pre0", 0))
    ST = 48
    spin(k, [f"buffer_load_dwordx2 {vr(ST+t*8+j*2,2)}, v45, {sr(SRD_B,4)}, s91 offen offset:{t*128+j*256} sc1" for t in range(2) for j in range(4)],
         [ST + 2 * j + 1 for j in range(8)], XT)
    k.stamp("stat ready")
    for t in range(2):
        b = ST + t * 8
        k(f"v_add_f32 v{SU[t]}, v{b}, v{b+2}\nv_add_f32 v{TM[t]}, v{b+4}, v{b+6}\nv_add_f32 v{SU[t]}, v{SU[t]}, v{TM[t]}")
        k(f"v_add_f32 v{M2[t]}, v{b+1}, v{b+3}\nv_add_f32 v{TM[t]}, v{b+5}, v{b+7}\nv_add_f32 v{M2[t]}, v{M2[t]}, v{TM[t]}")
    allred2(SU)
    for t in range(2): k(f"v_mul_f32 v{SU[t]}, {-1.0/1024!r}, v{SU[t]}")
    for j in range(4):
        for t in range(2): k(f"v_fmamk_f32 v{ST+t*8+2*j}, v{ST+t*8+2*j}, {1.0/64!r}, v{SU[t]}")
        for t in range(2): k(f"v_mul_f32 v{ST+t*8+2*j}, v{ST+t*8+2*j}, v{ST+t*8+2*j}")
        for t in range(2): k(f"v_fmac_f32 v{M2[t]}, 0x42800000, v{ST+t*8+2*j}")
    allred2(M2)
    for t in range(2): k(f"v_mov_b32 v{TM[t]}, 0x3727c5ac\nv_fmac_f32 v{TM[t]}, {1.0/1024!r}, v{M2[t]}")
    for t in range(2): k(f"v_rsq_f32 v{NM[t]}, v{TM[t]}")
    k("s_nop 0")
    for t in range(2): k(f"v_mul_f32 v{NM[t]+1}, v{SU[t]}, v{NM[t]}")
    for t in range(2):
        YK = ST + t * 8
        for b in range(4):
            for h in range(2): k(f"v_pk_fma_f32 {vr(XT+2*h,2)}, {vr(V_C+4*b+2*h,2)}, {vr(NM[t],2)}, {vr(V_S+4*b+2*h,2)} op_sel:[0,1,0] op_sel_hi:[1,1,1]")
            for h in range(2): k(f"v_pk_fma_f32 {vr(XT+2*h,2)}, {vr(A(b,t)+2*h,2)}, {vr(NM[t],2)}, {vr(XT+2*h,2)} op_sel_hi:[1,0,1]")
            k(f"v_cvt_pk_bf16_f32 v{YK+2*b}, v{XT}, v{XT+1}\nv_cvt_pk_bf16_f32 v{YK+2*b+1}, v{XT+2}, v{XT+3}")
        for s_ in range(2): k(f"buffer_store_dwordx4 {vr(YK+4*s_,4)}, v{L16}, {sr(SRD_A,4)}, s{88+t} offen offset:{s_*1024} sc1")
    publish(k, 84, 40)
    k.stamp("y published")
    g3.prefetch(k, opt.get("g3_pre", 0))
    return g3

def phase_gemm3(k, c, opt):
    LANE, L16, VT = c.LANE, c.L16, c.VT
    NB, TB = 14, 4
    srd(k, SRD_T, P_WS, S * D * 2, WS_Y)
    srd(k, SRD_C, P_WS, S * F * 2, WS_HH)
    k(f"v_and_b32 v{VT}, 31, v{LANE}\nv_lshlrev_b32 v{VT}, {FS}, v{VT}")
    k(f"s_lshl_b32 s84, s{S_RB3}, 2\ns_add_u32 s84, s84, s{S_WAVE}")
    k(f"s_lshl_b32 s85, s84, {FS+5}\ns_add_u32 s85, s85, {F_Y}")
    staged_wait(k, c, opt.get("g3_T", 3), VT, 85, VT + 1, one_prod, dup16=True)
    k.stamp("y ready")
    p = Txt()
    p(f"s_mul_i32 s88, s84, {448*1024}\ns_mul_i32 s92, s{S_FT}, 3584\ns_add_u32 s88, s88, s92")
    for t in range(1, 4): p(f"s_add_u32 s{88+t}, s88, {t*112*1024}")
    p(f"s_lshl_b32 s93, s84, {FS+5}\ns_lshl_b32 s94, s{S_FT}, {FS}\ns_add_u32 s93, s93, s94\ns_add_u32 s94, s93, {F_HB}\ns_add_u32 s93, s93, {F_HH}")
    p(f"s_mov_b32 s86, {-LOG2E!r}\ns_mov_b32 s87, {-LOG2E!r}")
    SB = 241
    p(f"v_lshrrev_b32 v{SB}, 1, v{L16}")
    c.pre_loop_txt = p.L
    if opt.get("cpf", 1):
        for st_ in opt.get("cp3", [6, 22]): c.late.setdefault(st_, []).extend(code_prefetch_txt(k.name, L16, 254, 80, junk="v240"))
    if opt.get("w2touch", 1):
        ws_ = opt.get("w2steps", [16]); per = 56 // len(ws_)
        for j, st_ in enumerate(ws_):
            c.late.setdefault(st_, []).extend([f"s_lshl_b32 s80, s2, 2", f"s_add_u32 s80, s80, s{S_WAVE}", "s_mul_i32 s80, s80, 7168", f"s_add_u32 s80, s80, {j*per*128}",
                      f"v_min_u32 v253, {per-1}, v{LANE}", "v_lshlrev_b32 v253, 7, v253", "v_add_u32 v253, s80, v253",
                      f"global_load_dword v240, v253, s[{P_W2}:{P_W2+1}]"])
    t4 = Txt()
    g4 = setup_gemm4p(t4, opt, 242)
    half = len(t4.L) // 2
    c.late[19] = t4.L[:half]; c.late[20] = t4.L[half:]
    pf = g4.prefetch_txt(4); c.late[29] = pf
    pf = g4.prefetch_txt(4); c.late[30] = pf
    def G(s, t): return ((2 * s) * TB + t) * 4
    def Uu(s, t): return ((2 * s + 1) * TB + t) * 4
    def act(k, slots, t, scalar=False):
        if scalar:
            for s in slots:
                for r in range(4):
                    k(f"v_mul_f32 v{Uu(s,t)+r}, v{G(s,t)+r}, v{Uu(s,t)+r}")
                    k(f"v_mul_f32 v{G(s,t)+r}, s86, v{G(s,t)+r}")
            rs = [(s, r) for s in slots for r in range(4)]
            for i, (s, r) in enumerate(rs): k(f"v_exp_f32 v{G(s,t)+r}, v{G(s,t)+r}")
            for i, (s, r) in enumerate(rs): k(f"v_add_f32 v{G(s,t)+r}, 1.0, v{G(s,t)+r}")
            for i, (s, r) in enumerate(rs): k(f"v_rcp_f32 v{G(s,t)+r}, v{G(s,t)+r}")
            for i, (s, r) in enumerate(rs): k(f"v_mul_f32 v{Uu(s,t)+r}, v{Uu(s,t)+r}, v{G(s,t)+r}")
            return
        for s in slots:
            for h in range(2):
                k(f"v_pk_mul_f32 {vr(Uu(s,t)+2*h,2)}, {vr(G(s,t)+2*h,2)}, {vr(Uu(s,t)+2*h,2)}")
                k(f"v_pk_mul_f32 {vr(G(s,t)+2*h,2)}, {vr(G(s,t)+2*h,2)}, s[86:87]")
        for s in slots:
            for r in range(4): k(f"v_exp_f32 v{G(s,t)+r}, v{G(s,t)+r}")
        for s in slots:
            for h in range(2): k(f"v_pk_add_f32 {vr(G(s,t)+2*h,2)}, {vr(G(s,t)+2*h,2)}, 1.0 op_sel_hi:[1,0]")
        for s in slots:
            for r in range(4): k(f"v_rcp_f32 v{G(s,t)+r}, v{G(s,t)+r}")
        for s in slots:
            for h in range(2): k(f"v_pk_mul_f32 {vr(Uu(s,t)+2*h,2)}, {vr(Uu(s,t)+2*h,2)}, {vr(G(s,t)+2*h,2)}")
    def pair(k, pr, t, scalar=False):
        s0, s1 = 2 * pr, 2 * pr + 1
        act(k, [s0, s1], t, scalar)
        d = G(s0, t)
        k(f"v_cvt_pk_bf16_f32 v{d}, v{Uu(s0,t)}, v{Uu(s0,t)+1}\nv_cvt_pk_bf16_f32 v{d+1}, v{Uu(s0,t)+2}, v{Uu(s0,t)+3}")
        k(f"v_cvt_pk_bf16_f32 v{d+2}, v{Uu(s1,t)}, v{Uu(s1,t)+1}\nv_cvt_pk_bf16_f32 v{d+3}, v{Uu(s1,t)+2}, v{Uu(s1,t)+3}")
        k(f"buffer_store_dwordx4 {vr(d,4)}, v{L16}, {sr(SRD_C,4)}, s{88+t} offen offset:{pr*1024} sc1")
    ea = Txt(); eb = Txt()
    nin = opt.get("g3_nin", 8) if c.TL else 0
    for i, (pr, t) in enumerate([(pr, t) for pr in range(2) for t in range(TB)]):
        if i < nin: pair(ea, pr, t, opt.get("g3_scalar", 0))
        else: pair(eb, pr, t)
    if c.TL:
        nst = opt.get("g3_east", c.TL - 1)
        per = -(-len(ea.L) // nst)
        c.step_extra = lambda st: ea.L[(st - 32) * per:(st - 31) * per] if st >= 32 else []
    c.run(k)
    k.stamp("g3 loop done")
    if not c.TL: k("s_nop 7")
    for x in eb.L: k(x)
    mkA = len(k.L)
    k("s_nop 4\ns_barrier")
    na = opt.get("g3_pubA", 2)
    for t in range(na): pair(k, 2, t)
    publish(k, 93, 252, mkA)
    k.stamp("hA published")
    mark3 = len(k.L)
    for t in range(na, TB): pair(k, 2, t)
    grp = []
    for j in range(8):
        t_ = g4.prefetch_txt(1); grp.append(t_[:-1] + ["s_nop 0", t_[-1]])
    sprinkle(k, mark3, grp)
    for t in range(TB):
        act(k, [6], t)
        d = G(6, t)
        k(f"v_cvt_pk_bf16_f32 v{d}, v{Uu(6,t)}, v{Uu(6,t)+1}\nv_cvt_pk_bf16_f32 v{d+1}, v{Uu(6,t)+2}, v{Uu(6,t)+3}")
        k(f"buffer_store_dwordx2 {vr(d,2)}, v{SB}, {sr(SRD_C,4)}, s{88+t} offen offset:3072 sc1")
    k.stamp("hh stored")
    return g4

def phase_gemm4(k, c, opt):
    LANE, L16 = c.LANE, c.L16
    VT = 40
    srd(k, SRD_T, P_WS, S * F * 2, WS_HH)
    srd(k, SRD_A, P_OUT, S * D * 2)
    k(f"v_and_b32 v{VT}, 31, v{LANE}\nv_lshlrev_b32 v{VT}, 2, v{VT}")
    k(f"s_lshl_b32 s84, s{S_RB2}, 1\ns_lshr_b32 s85, s{S_WAVE}, 1\ns_add_u32 s84, s84, s85\ns_lshl_b32 s84, s84, {FS+5}\ns_add_u32 s84, s84, {F_HH}")
    wait_flags(k, [(VT, 84, 1)], VT + 1)
    k.stamp("hh ready")
    V_G, V_GA, V_XA, V_X = 64, 44, 45, 48
    p = Txt()
    p(f"v_lshrrev_b32 v{VT}, 4, v{LANE}\nv_lshlrev_b32 v{V_GA}, 4, v{VT}\nv_add_u32 v{V_GA}, {L_MV}, v{V_GA}")
    p(f"v_and_b32 v{VT+1}, 15, v{LANE}\nv_lshlrev_b32 v{VT+1}, 11, v{VT+1}")
    p(f"v_and_b32 v{VT+2}, 1, v{VT}\nv_lshl_add_u32 v{VT+1}, v{VT+2}, 5, v{VT+1}")
    p(f"v_lshrrev_b32 v{VT+2}, 1, v{VT}\nv_lshl_add_u32 v{V_XA}, v{VT+2}, 4, v{VT+1}")
    p(f"s_lshl_b32 s86, s{S_RB2}, 3\ns_lshl_b32 s87, s{S_WAVE}, 1\ns_add_u32 s86, s86, s87\ns_lshl_b32 s86, s86, 15\ns_lshl_b32 s87, s{S_NT}, 7\ns_add_u32 s86, s86, s87\ns_add_u32 s87, s86, 32768")
    for j in range(16): p(f"v_accvgpr_read_b32 v{V_X+j}, a{A_X1+j}")
    c.pre_loop_txt = p.L
    c.last_reads = [f"ds_read_b128 {vr(V_G+4*b,4)}, v{V_GA} offset:{768+b*64}" for b in range(4)]
    c.run(k)
    k.stamp("g4 loop done")
    k("s_waitcnt lgkmcnt(0)\ns_nop 7")
    A = lambda b, t: (b * 2 + t) * 4
    XT = 96
    for t in range(2):
        for b in range(4):
            xr = V_X + (t * 4 + b) * 2
            for h in range(2): k(f"v_lshlrev_b32 v{XT+2*h}, 16, v{xr+h}\nv_and_b32 v{XT+2*h+1}, 0xffff0000, v{xr+h}")
            for h in range(2): k(f"v_pk_fma_f32 {vr(A(b,t)+2*h,2)}, {vr(A(b,t)+2*h,2)}, {vr(V_G+4*b+2*h,2)}, {vr(XT+2*h,2)}")
        PK = XT + 4 + t * 8
        for b in range(4): k(f"v_cvt_pk_bf16_f32 v{PK+2*b}, v{A(b,t)}, v{A(b,t)+1}\nv_cvt_pk_bf16_f32 v{PK+2*b+1}, v{A(b,t)+2}, v{A(b,t)+3}")
        k("s_nop 1")
        for s_ in range(2): k(f"v_permlane16_swap_b32 v{PK+4*s_}, v{PK+4*s_+2}\nv_permlane16_swap_b32 v{PK+4*s_+1}, v{PK+4*s_+3}")
        for s_ in range(2): k(f"buffer_store_dwordx4 {vr(PK+4*s_,4)}, v{V_XA}, {sr(SRD_A,4)}, s{86+t} offen offset:{s_*64}")

def build_mega(instr=False, opt=None, name="mega_kernel"):
    opt = opt or {}
    k = Mega(name, 256, 256, LDS_TOTAL, vgpr=256, agpr=256, sgpr=102)
    k.instr = instr; k.names = []; k.only = opt.get("only")
    end = k.label("end")
    far = k.label("go")
    k(f"s_cmp_lt_u32 s2, 256\ns_cbranch_scc1 {far}\ns_endpgm\n{far}:")
    if opt.get("fused", 1):
        code_prefetch_setup(k, name)
        k("v_and_b32 v104, 63, v0\nv_lshlrev_b32 v105, 4, v104\nv_lshlrev_b32 v254, 5, v0")
        k("global_load_dword a232, v254, s[100:101]")
        k("s_load_dwordx2 s[96:97], s[0:1], 88")
        if opt.get("dbgout"): k("s_load_dwordx2 s[72:73], s[0:1], 88")
    k("s_load_dwordx8 s[4:11], s[0:1], 0")
    k("s_load_dwordx2 s[12:13], s[0:1], 64")
    k("s_load_dwordx2 s[14:15], s[0:1], 40")
    k("s_load_dwordx4 s[16:19], s[0:1], 48")
    k("s_load_dwordx2 s[98:99], s[0:1], 72")
    k("s_load_dwordx2 s[24:25], s[0:1], 80")
    k("s_load_dwordx2 s[28:29], s[0:1], 96")
    if instr: k(f"v_mov_b32 v{VSTAMP}, 0")
    ids(k)
    k(f"s_lshr_b32 s80, s{S_IDX}, 2\ns_add_u32 s{S_R4}, s80, s{S_IDX}\ns_and_b32 s81, s{S_IDX}, 3\ns_lshl_b32 s81, s81, 1\ns_add_u32 s{S_R8}, s80, s81")
    k(f"s_and_b32 s80, s{S_IDX}, 3\ns_lshl_b32 s{S_FT}, s{S_XCD}, 2\ns_add_u32 s{S_FT}, s{S_FT}, s80\ns_lshr_b32 s{S_RB3}, s{S_IDX}, 2")
    if opt.get("fused", 1):
        for x in code_prefetch_txt(name, 105, 254, 80): k(x)
    k.stamp("start")
    g1 = (phase_front_fused if opt.get("fused", 1) else phase_front)(k, opt, name)
    g2 = (phase_gemm1s if opt.get('split', 1) else phase_gemm1)(k, g1, opt)
    g3 = phase_gemm2(k, g2, opt)
    g4 = phase_gemm3(k, g3, opt)
    (phase_gemm4p if opt.get('g4_pair', 1) else phase_gemm4)(k, g4, opt)
    if instr:
        k("s_waitcnt vmcnt(0)")
        k.stamp("end")
        k(f"s_add_u32 s84, s{P_WS}, {WS_DBG}\ns_addc_u32 s85, s{P_WS+1}, 0\ns_mov_b32 s86, 0x100000\ns_mov_b32 s87, 0x20000")
        k(f"s_lshl_b32 s88, s2, 2\ns_add_u32 s88, s88, s{S_WAVE}\ns_lshl_b32 s88, s88, 8")
        lane_id(k, 1)
        k("v_lshlrev_b32 v1, 2, v1")
        k(f"buffer_store_dword v{VSTAMP}, v1, s[84:87], s88 offen")
        if opt.get("dbgout"):
            sk = k.label("nodbg")
            k(f"s_lshl_b32 s88, s2, 2\ns_add_u32 s88, s88, s{S_WAVE}\ns_cmp_lg_u32 s88, {opt['dbgout']*4}\ns_cbranch_scc1 {sk}")
            k("s_mov_b32 s84, s72\ns_mov_b32 s85, s73\ns_mov_b32 s86, 64\ns_mov_b32 s87, 0x20000")
            k(f"v_readlane_b32 s89, v{VSTAMP}, 0\ns_nop 3\nv_subrev_u32 v2, s89, v{VSTAMP}")
            k("buffer_store_dword v2, v1, s[84:87], 0 offen offset:12")
            k(f"{sk}:")
    k("s_endpgm")
    k(f"{name}_end:")
    return k
```

```python
import sys
from asmlib import *
from gemm import *
from layout import *
LOG2E = 1.4426950408889634
P_X, P_WQKV, P_WPHI, P_WO, P_W1, P_W3, P_W2, P_OUT, P_WS = 4, 6, 8, 10, 14, 16, 18, 24, 28
P_DBG, S_MB, S_MO = 96, 77, 79
P_C, P_WMOD = 12, 98
S_WAVE, S_XCD, S_IDX = 3, 30, 31
SRD_W, SRD_T, SRD_A, SRD_B, SRD_C, SRD_D, SRD_F = 32, 36, 40, 44, 48, 52, 56
S_KW, S_KT, S_WB, S_ROT, S_TMP, S_ROT2 = 60, 62, 76, 77, 78, 79
S_RB1, S_HP, S_RB2, S_NT, S_RB3, S_FT = 26, 27, 26, 27, 22, 23
S_R8, S_R4 = 20, 21
VSTAMP = 255
L_WPH, L_UTC = 110592, 105472
L_UT3, L_MV, L_R2 = 114688, 128000, 129792
LDS_TOTAL = 163584

class Mega(Kernel):
    nst = 0
    only = None
    def stamp(self, name=""):
        if not self.instr: return
        if self.only is not None and not any(name.startswith(o) for o in self.only): return
        if self.only is None and name[:3] in ("kp ", "qp "): return
        self("s_waitcnt lgkmcnt(0)\ns_memrealtime s[0:1]\ns_waitcnt lgkmcnt(0)")
        self(f"v_writelane_b32 v{VSTAMP}, s0, {self.nst}")
        self("s_nop 3\ns_memtime s[0:1]\ns_waitcnt lgkmcnt(0)")
        self(f"v_writelane_b32 v{VSTAMP}, s0, {self.nst + 32}")
        self.names.append(name); self.nst += 1

def lane_id(k, v):
    k(f"v_mbcnt_lo_u32_b32 v{v}, -1, 0\nv_mbcnt_hi_u32_b32 v{v}, -1, v{v}")

def code_prefetch_setup(k, name, s_pc=100):
    lab = k.label("pc")
    k(f"s_getpc_b64 s[{s_pc}:{s_pc+1}]")
    k(f"{lab}:")
    k(f"s_sub_u32 s{s_pc}, s{s_pc}, {lab}-{name}\ns_subb_u32 s{s_pc+1}, s{s_pc+1}, 0")
def code_prefetch_txt(name, v_l16, vt, s_tmp, s_idx=S_IDX, s_wave=S_WAVE, s_pc=100, junk="a232"):
    return [f"s_lshl_b32 s{s_tmp}, s{s_idx}, 2", f"s_add_u32 s{s_tmp}, s{s_tmp}, s{s_wave}", f"s_lshl_b32 s{s_tmp}, s{s_tmp}, 10",
            f"v_add_u32 v{vt}, s{s_tmp}, v{v_l16}", f"v_min_u32 v{vt}, {name}_end-{name}-4, v{vt}",
            f"global_load_dword {junk}, v{vt}, s[{s_pc}:{s_pc+1}]"]

def count_vm(k, mark):
    return sum(1 for x in k.L[mark:] if is_vm(x))
def publish(k, s_off, vt, mark=None):
    k(f"v_mov_b32 v{vt}, 1\nv_mov_b32 v{vt+1}, 0")
    n = 0 if mark is None else count_vm(k, mark)
    assert n < 64
    k(f"s_waitcnt vmcnt({n})")
    k(f"buffer_store_dword v{vt}, v{vt+1}, {sr(SRD_F,4)}, s{s_off} offen sc1")

def spin(k, loads, regs, vt, s_cnt=96):
    top, ok = k.label("poll"), k.label("ok")
    k(f"s_mov_b32 s{s_cnt}, 0")
    k(f"{top}:")
    for x in loads: k(x)
    k("s_waitcnt vmcnt(0)")
    if len(regs) == 1: k(f"v_cmp_eq_u32 vcc, 0, v{regs[0]}")
    else:
        k(f"v_min_u32 v{vt}, v{regs[0]}, v{regs[1]}")
        for x in regs[2:]: k(f"v_min_u32 v{vt}, v{vt}, v{x}")
        k(f"v_cmp_eq_u32 vcc, 0, v{vt}")
    k(f"s_add_u32 s{s_cnt}, s{s_cnt}, 1")
    k(f"s_cmp_eq_u64 vcc, 0\ns_cbranch_scc1 {ok}")
    k(f"s_sleep {SLEEP}\ns_cmp_lt_u32 s{s_cnt}, 0x40000\ns_cbranch_scc1 {top}")
    k(f"{ok}:")

def wait_flags(k, polls, vt, s_cnt=96):
    top, ok = k.label("poll"), k.label("ok")
    k(f"s_mov_b32 s{s_cnt}, 0")
    k(f"{top}:")
    r = vt
    regs = []
    for va, so, ndw in polls:
        if ndw == 4: r = (r + 1) // 2 * 2
        k(f"buffer_load_dword{'x4' if ndw == 4 else ''} {vr(r,ndw)}, v{va}, {sr(SRD_F,4)}, s{so} offen sc1")
        regs += list(range(r, r + ndw)); r += ndw
    k("s_waitcnt vmcnt(0)")
    for x in regs[1:]: k(f"v_min_u32 v{regs[0]}, v{regs[0]}, v{x}")
    k(f"v_cmp_eq_u32 vcc, 0, v{regs[0]}")
    k(f"s_add_u32 s{s_cnt}, s{s_cnt}, 1")
    k(f"s_cmp_eq_u64 vcc, 0\ns_cbranch_scc1 {ok}")
    k(f"s_sleep {SLEEP}\ns_cmp_lt_u32 s{s_cnt}, 0x40000\ns_cbranch_scc1 {top}")
    k(f"{ok}:")

def staged_wait(k, c, T_, v_addr, s_off, vf, prod_of, dup16=False, skip_first=0, s_m=97, pub=None):
    ld = f"buffer_load_dword v{vf}, v{v_addr}, {sr(SRD_F,4)}, s{s_off} offen sc1"
    if T_ is None:
        spin(k, [ld], [vf], 0); return
    k(f"s_mov_b32 s{s_m}, 0")
    for kt in range(skip_first, T_):
        for x in c.pos_txt(80, kt): k(x)
        for x in prod_of(80, 81): k(x)
        k(f"s_or_b32 s{s_m}, s{s_m}, s81")
    if dup16: k(f"s_lshl_b32 s81, s{s_m}, 16\ns_or_b32 s{s_m}, s{s_m}, s81")
    top, ok = k.label("poll"), k.label("ok")
    if pub:
        mk = len(k.L); k(ld); publish(k, pub[0], pub[1], mk)
        k("s_waitcnt vmcnt(1)")
        k(f"v_cmp_eq_u32 vcc, 0, v{vf}\ns_nop 0")
        k(f"s_and_b32 s81, vcc_lo, s{s_m}\ns_cbranch_scc0 {ok}")
    k(f"s_mov_b32 s96, 0\n{top}:")
    k(ld)
    k("s_waitcnt vmcnt(0)")
    k(f"v_cmp_eq_u32 vcc, 0, v{vf}")
    k("s_add_u32 s96, s96, 1")
    k(f"s_and_b32 s81, vcc_lo, s{s_m}\ns_cbranch_scc0 {ok}")
    k(f"s_sleep {SLEEP}\ns_cmp_lt_u32 s96, 0x40000\ns_cbranch_scc1 {top}")
    k(f"{ok}:")
    add_gate(k, c, T_, ld, vf)
def add_gate(k, c, tile, ld, vf):
    m = Txt(); m.label = k.label
    okl = k.label("gok")
    m(f"v_cmp_eq_u32 vcc, 0, v{vf}\ns_cmp_eq_u64 vcc, 0\ns_cbranch_scc1 {okl}")
    spin(m, [ld], [vf], 0)
    m(f"{okl}:")
    c.gates = list(c.gates) + [(tile, [VM(ld, ("gate", tile))], [WVM([("gate", tile)]), T("\n".join(m.L))])]
one_prod = lambda sp, st: [f"s_lshl_b32 s{st}, 1, s{sp}"]

def allreduce_q(k, op, x, tmp):
    k(f"v_mov_b32 v{tmp}, v{x}\ns_nop 1")
    k(f"v_permlane32_swap_b32 v{x}, v{tmp}")
    k(f"s_nop 1\n{op} v{x}, v{x}, v{tmp}")
    k(f"v_mov_b32 v{tmp}, v{x}\ns_nop 1")
    k(f"v_permlane16_swap_b32 v{x}, v{tmp}")
    k(f"s_nop 1\n{op} v{x}, v{x}, v{tmp}")

def treduce4(k, op, A):
    a, b, c, d = A
    k("s_nop 1")
    k(f"v_permlane32_swap_b32 v{a}, v{b}\nv_permlane32_swap_b32 v{c}, v{d}")
    k("s_nop 1")
    k(f"{op} v{a}, v{a}, v{b}\n{op} v{c}, v{c}, v{d}")
    k("s_nop 1")
    k(f"v_permlane16_swap_b32 v{a}, v{c}")
    k("s_nop 1")
    k(f"{op} v{a}, v{a}, v{c}")
    k(f"v_mov_b32 v{c}, v{a}")
    k("s_nop 1")
    k(f"v_permlane16_swap_b32 v{a}, v{c}")
    k("s_nop 1")
    k(f"v_mov_b32 v{b}, v{a}\nv_mov_b32 v{d}, v{c}")
    k("s_nop 1")
    k(f"v_permlane32_swap_b32 v{a}, v{b}\nv_permlane32_swap_b32 v{c}, v{d}")
    k("s_nop 1")

def treduce4x2(k, ops, As):
    A, B = Txt(), Txt()
    treduce4(A, ops[0], As[0]); treduce4(B, ops[1], As[1])
    def split(L):
        out, cur = [], []
        for x in L:
            if x.startswith("s_nop"): out.append(cur); cur = []
            else: cur.append(x)
        out.append(cur); return out
    for a, b in zip(split(A.L), split(B.L)):
        for x in a + b: k(x)
        k("s_nop 0" if len(a) >= 1 else "s_nop 1")

def red8(k, x):
    for m in ("quad_perm:[1,0,3,2]", "quad_perm:[2,3,0,1]", "row_half_mirror"):
        k(f"s_nop 1\nv_add_f32_dpp v{x}, v{x}, v{x} {m} row_mask:0xf bank_mask:0xf")

def round_bf16(k, v):
    k(f"v_cvt_pk_bf16_f32 v{v}, v{v}, v{v}\nv_and_b32 v{v}, 0xffff0000, v{v}")

S_DLA, S_DLB, S_PTMP = 71, 6, 75
def order(c, k, opt, tag, default):
    o = opt.get(tag + "_ord", default)
    c.first_flag = opt.get(tag + "_ff", "")
    c.tag = tag; c.stamp_every = opt.get(tag + "_se", 0)
    c.fine = opt.get(tag + "_fine", opt.get("fine", 0)); c.bar_frac = opt.get("bar_frac", 0.3)
    c.s_rot, c.s_rot2 = S_R8, S_R4
    if o[0] == "lead":
        c.lead_D, c.s_dl = o[1], S_DLA
    else:
        c.wins = win_mask(o[1])
        if o[2]:
            c.s_start = S_HP
            c.s_rot = c.s_rot2 = S_RB3
def common_gemm(c):
    c.srd_w, c.srd_t = SRD_W, SRD_T
    c.s_kw, c.s_kt, c.s_wbase, c.s_ptmp = S_KW, S_KT, S_WB, S_PTMP

def setup_gemm1(k, opt):
    c = Sched(); common_gemm(c)
    NS, R = opt.get("g1_NS", 4), opt.get("g1_R", 4)
    STAGE = 25344
    c.V_RD, c.V_DMA, c.V_TOK, c.LANE, c.L16, c.VT = 96, 98, 102, 104, 105, 106
    V_RD, V_DMA, V_TOK, LANE, L16, VT = c.V_RD, c.V_DMA, c.V_TOK, c.LANE, c.L16, 110
    k(f"v_lshlrev_b32 v{L16}, 4, v{LANE}")
    c.lead_D, c.s_dl = opt.get("D", 0), S_DLA
    if opt.get("uselead", 0): c.lead_init(k, S_R4, 81)
    c.lead_D = None
    order(c, k, opt, "g1", ["win", [8, 8], 0])
    k(f"s_lshr_b32 s80, s{S_WAVE}, 1\ns_and_b32 s81, s{S_WAVE}, 1")
    k(f"v_lshrrev_b32 v{VT+1}, 3, v{LANE}")
    k(f"v_and_b32 v{VT+2}, 4, v{VT+1}")
    k(f"v_bfe_u32 v{VT+3}, v{VT+1}, 1, 1\nv_or_b32 v{VT+2}, v{VT+2}, v{VT+3}")
    k(f"v_and_b32 v{VT+3}, 1, v{VT+1}\nv_lshl_or_b32 v{VT+2}, v{VT+3}, 1, v{VT+2}")
    k(f"v_mul_u32_u24 v{VT+2}, {4*6144}, v{VT+2}")
    k(f"v_and_b32 v{VT+3}, 7, v{LANE}\nv_lshl_add_u32 v{VT+2}, v{VT+3}, 4, v{VT+2}")
    k("s_lshl_b32 s82, s80, 5\ns_lshl_b32 s83, s81, 1\ns_add_u32 s82, s82, s83\ns_mul_i32 s82, s82, 6144")
    k(f"s_lshl_b32 s83, s{S_HP}, 7\ns_add_u32 s82, s82, s83")
    k(f"v_add_u32 v{V_DMA}, s82, v{VT+2}")
    k(f"v_add_u32 v{V_DMA+1}, 6144, v{V_DMA}\nv_add_u32 v{V_DMA+2}, 4096, v{V_DMA}\nv_add_u32 v{V_DMA+3}, {6144+4096}, v{V_DMA}")
    k(f"v_bfe_u32 v{VT+1}, v{LANE}, 2, 2\nv_mul_u32_u24 v{VT+1}, 1056, v{VT+1}")
    k(f"v_lshrrev_b32 v{VT+2}, 5, v{LANE}\nv_lshl_add_u32 v{VT+1}, v{VT+2}, 9, v{VT+1}")
    k(f"v_bfe_u32 v{VT+2}, v{LANE}, 4, 1\nv_lshl_add_u32 v{VT+1}, v{VT+2}, 7, v{VT+1}")
    k(f"v_and_b32 v{VT+3}, 3, v{LANE}\nv_lshl_add_u32 v{V_RD}, v{VT+3}, 3, v{VT+1}")
    k(f"v_add_u32 v{V_RD+1}, {2*STAGE}, v{V_RD}")
    k(f"s_lshl_b32 s82, s{S_RB1}, 3\ns_lshl_b32 s83, s{S_WAVE}, 1\ns_add_u32 s82, s82, s83\ns_lshl_b32 s82, s82, 15")
    k(f"v_add_u32 v{V_TOK}, s82, v{L16}\nv_add_u32 v{V_TOK+1}, 0x8000, v{V_TOK}")
    k(f"s_mul_i32 s{S_WB}, s80, 4224\ns_mul_i32 s82, s81, 2112\ns_add_u32 s{S_WB}, s{S_WB}, s82")
    c.NB, c.TB, c.KS, c.SPK, c.KT, c.NS, c.R = 12, 2, 1, 2, 16, NS, R
    c.acc = lambda b, t: vr((b * 2 + t) * 4, 4)
    c.tf = lambda slot, ks, t: 96 + (slot * 2 + t) * 4
    c.rd = lambda sl, b, sub, r: (V_RD + sl // 2, (sl % 2) * STAGE + (b // 4) * 8448 + sub * 4224 + r * 256 + (b % 4) * 32)
    c.slot_addr = lambda sl: sl * STAGE
    c.dma = [(V_DMA, 0, 0), (V_DMA + 1, 1056, 0), (V_DMA, 8448, 2048), (V_DMA + 1, 8448 + 1056, 2048), (V_DMA + 2, 16896, 0), (V_DMA + 3, 16896 + 1056, 0)]
    c.v_tok = [V_TOK, V_TOK + 1]
    c.w_stride = 64 * 6144
    c.drop = opt.get("g1_drop", ())
    c.pro_units, c.ramp_rate, c.read_margin = opt.get("g1_pro", 6), opt.get("g1_ramp", 6), opt.get("g1_rm", 6)
    std_sched(c)
    return c

def setup_gemm1s(k, opt):
    c = Sched(); common_gemm(c)
    HS = 8448; STAGE = 2 * HS
    c.V_RD, c.V_DMA, c.V_TOK, c.LANE, c.L16, c.VT = 96, 98, 102, 104, 105, 106
    V_RD, V_DMA, V_TOK, LANE, L16, VT = c.V_RD, c.V_DMA, c.V_TOK, c.LANE, c.L16, 110
    k(f"v_lshlrev_b32 v{L16}, 4, v{LANE}")
    order(c, k, opt, "g1", ["win", [8, 8], 0])
    k(f"s_lshr_b32 s80, s{S_WAVE}, 1\ns_and_b32 s81, s{S_WAVE}, 1")
    k(f"v_lshrrev_b32 v{VT+1}, 3, v{LANE}")
    k(f"v_and_b32 v{VT+2}, 4, v{VT+1}")
    k(f"v_bfe_u32 v{VT+3}, v{VT+1}, 1, 1\nv_or_b32 v{VT+2}, v{VT+2}, v{VT+3}")
    k(f"v_and_b32 v{VT+3}, 1, v{VT+1}\nv_lshl_or_b32 v{VT+2}, v{VT+3}, 1, v{VT+2}")
    k(f"v_mul_u32_u24 v{VT+2}, {4*6144}, v{VT+2}")
    k(f"v_and_b32 v{VT+3}, 7, v{LANE}\nv_lshl_add_u32 v{VT+2}, v{VT+3}, 4, v{VT+2}")
    k("s_lshl_b32 s82, s80, 5\ns_lshl_b32 s83, s81, 1\ns_add_u32 s82, s82, s83\ns_mul_i32 s82, s82, 6144")
    k(f"s_lshl_b32 s83, s{S_HP}, 7\ns_add_u32 s82, s82, s83")
    k(f"v_add_u32 v{V_DMA}, s82, v{VT+2}")
    k(f"v_add_u32 v{V_DMA+1}, 6144, v{V_DMA}\nv_add_u32 v{V_DMA+2}, 2048, v{V_DMA}\nv_add_u32 v{V_DMA+3}, {6144+2048}, v{V_DMA}")
    k(f"v_bfe_u32 v{VT+1}, v{LANE}, 2, 2\nv_mul_u32_u24 v{VT+1}, 1056, v{VT+1}")
    k(f"v_lshrrev_b32 v{VT+2}, 5, v{LANE}\nv_lshl_add_u32 v{VT+1}, v{VT+2}, 9, v{VT+1}")
    k(f"v_bfe_u32 v{VT+2}, v{LANE}, 4, 1\nv_lshl_add_u32 v{VT+1}, v{VT+2}, 7, v{VT+1}")
    k(f"v_and_b32 v{VT+3}, 3, v{LANE}\nv_lshl_add_u32 v{V_RD}, v{VT+3}, 3, v{VT+1}")
    k(f"v_add_u32 v{V_RD+1}, {2*STAGE}, v{V_RD}")
    k(f"s_lshl_b32 s82, s{S_RB1}, 3\ns_lshl_b32 s83, s{S_WAVE}, 1\ns_add_u32 s82, s82, s83\ns_lshl_b32 s82, s82, 15")
    k(f"v_add_u32 v{V_TOK}, s82, v{L16}\nv_add_u32 v{V_TOK+1}, 0x8000, v{V_TOK}")
    k(f"s_mul_i32 s{S_WB}, s80, 4224\ns_mul_i32 s82, s81, 2112\ns_add_u32 s{S_WB}, s{S_WB}, s82")
    c.NB, c.TB, c.KS, c.SPK, c.KT, c.NS, c.R = 8, 2, 1, 2, 16, 4, 32
    c.acc = lambda b, t: vr(32 + (b * 2 + t) * 4, 4)
    c.tf = lambda slot, ks, t: (slot * 2 + t) * 4
    c.rd = lambda sl, b, sub, r: (V_RD + sl // 2, (sl % 2) * STAGE + (b // 4) * HS + sub * 4224 + r * 256 + (b % 4) * 32)
    c.slot_addr = lambda sl: sl * STAGE
    c.dma = [(V_DMA + 2, 0, 0), (V_DMA + 3, 1056, 0), (V_DMA + 2, HS, 2048), (V_DMA + 3, HS + 1056, 2048)]
    c.v_tok = [V_TOK, V_TOK + 1]
    c.w_stride = 64 * 6144
    c.drop = opt.get("g1_drop", ())
    c.pro_units, c.ramp_rate, c.read_margin, c.lookahead = opt.get("g1_pro", 8), opt.get("g1_ramp", 5), 4, opt.get("g1_la", 6)
    c.wreg, c.wbase = vr, 128
    std_sched(c)
    q = Sched(); common_gemm(q)
    q.KT = 16; order(q, k, opt, "g1", ["win", [8, 8], 0]); q.tag = "g1b"; q.stamp_every = opt.get("g1b_se", 0)
    q.s_kw = 70
    QS = [67584 + i * HS for i in range(5)] + [L_R2 + i * HS for i in range(4)] + [i * HS for i in range(7)]
    q.Q1, q.Q2 = V_RD + 1, V_TOK
    def base(kt): return (q.Q1, 67584) if kt < 5 else ((q.Q2, L_R2) if kt < 9 else (V_RD, 0))
    for kt in range(16):
        sw = q.s_kw + kt % 2
        q.stage_units[kt] = [q.pos_items(sw, kt, c.w_stride) + [T(f"s_add_u32 m0, s{S_WB}, {QS[kt]}"), VM(f"buffer_load_dwordx4 v{V_DMA}, {sr(SRD_W,4)}, s{sw} offen lds", ("dma", kt))],
                             [T(f"s_add_u32 m0, s{S_WB}, {QS[kt] + 1056}"), VM(f"buffer_load_dwordx4 v{V_DMA+1}, {sr(SRD_W,4)}, s{sw} offen lds", ("dma", kt))]]
        q.stage_slot[kt] = kt
        va, b0 = base(kt)
        frags = [(va, QS[kt] - b0 + sub * 4224 + b * 32, QS[kt] - b0 + sub * 4224 + 256 + b * 32, [(vr((b * 2 + t) * 4, 4), ((kt * 2 + sub) * 2 + t) * 4) for t in range(2)]) for sub in range(2) for b in range(4)]
        q.steps.append(dict(frags=frags, stages=[kt] if kt != 9 else list(range(9, 16)), toks=[]))
    q.wf = lambda buf, j: (buf * 8 + j) * 4
    q.wreg, q.wbase = vr, 128
    q.pub0 = set(range(9)); q.pro_units = opt.get('q_pro', 2); q.ramp_rate = opt.get('q_ramp', 3); q.read_margin = 4; q.drop = c.drop
    c.q = q
    return c

def merge(a, b, ratio):
    out, b = [], list(b)
    for i, x in enumerate(a):
        out.append(x)
        if b and i % ratio == ratio - 1: out.append(b.pop(0))
    return out + b

def phase_gemm1s(k, c, opt):
    LANE, L16, VT = c.LANE, c.L16, c.VT
    q = c.q
    PHK, VV, SH = 0, 34816, 114688
    p = Txt()
    srd(p, SRD_A, P_WPHI, H * 2048)
    srd(p, SRD_B, P_WS, 2 << 20, WS_KVP)
    srd(p, SRD_C, P_WS, 128 << 10, WS_ZP)
    A_PW, A_VW, A_PR, A_VR, A_WR = 110, 111, 112, 113, 114
    p(f"s_lshr_b32 s80, s{S_WAVE}, 1\ns_and_b32 s81, s{S_WAVE}, 1")
    p(f"v_and_b32 v{VT}, 15, v{LANE}\ns_lshl_b32 s82, s{S_WAVE}, 5\nv_add_u32 v{VT}, s82, v{VT}")
    p(f"v_lshrrev_b32 v{VT+1}, 4, v{LANE}\nv_lshlrev_b32 v{VT+1}, 3, v{VT+1}")
    p(f"v_mul_u32_u24 v{A_PW}, 136, v{VT}\nv_add_u32 v{A_PW}, v{A_PW}, v{VT+1}")
    p(f"v_mul_u32_u24 v{A_VW}, 72, v{VT}\nv_add_u32 v{A_VW}, v{A_VW}, v{VT+1}")
    p(f"v_lshrrev_b32 v{VT}, 2, v{LANE}\nv_and_b32 v{VT+1}, 3, v{LANE}\nv_lshlrev_b32 v{VT+1}, 3, v{VT+1}")
    p(f"s_mul_i32 s82, s80, 17408\ns_lshl_b32 s83, s81, 6\ns_add_u32 s82, s82, s83")
    p(f"v_mul_u32_u24 v{A_PR}, 136, v{VT}\nv_add_u32 v{A_PR}, v{A_PR}, v{VT+1}\nv_add_u32 v{A_PR}, s82, v{A_PR}")
    p(f"s_mul_i32 s82, s80, 9216")
    p(f"v_mul_u32_u24 v{A_VR}, 72, v{VT}\nv_add_u32 v{A_VR}, v{A_VR}, v{VT+1}\nv_add_u32 v{A_VR}, s82, v{A_VR}")
    p(f"v_lshl_add_u32 v{A_WR}, v{VT}, 6, v{VT+1}\nv_add_u32 v{A_WR}, {L_WPH}, v{A_WR}")
    ONES, SEL = 116, 120
    for j in range(4): p(f"v_mov_b32 v{ONES+j}, 0x3f803f80")
    p(f"v_bfe_u32 v{VT}, v{LANE}, 2, 2\nv_lshrrev_b32 v{VT+1}, 4, v{LANE}")
    p(f"v_cmp_eq_u32 vcc, v{VT}, v{VT+1}")
    p(f"v_and_b32 v{VT}, 1, v{LANE}\nv_lshlrev_b32 v{VT}, 4, v{VT}\nv_mov_b32 v{VT+1}, 0x3f80\nv_lshlrev_b32 v{VT+1}, v{VT}, v{VT+1}")
    p(f"v_cndmask_b32 v{VT+1}, 0, v{VT+1}, vcc")
    p(f"v_and_b32 v{VT}, 2, v{LANE}\nv_cmp_eq_u32 vcc, 0, v{VT}")
    for j in (0, 1, 4, 5): p(f"v_mov_b32 v{SEL+j}, 0")
    p(f"v_cndmask_b32 v{SEL+2}, 0, v{VT+1}, vcc\nv_cndmask_b32 v{SEL+3}, v{VT+1}, 0, vcc")
    p(f"s_mov_b32 s94, {LOG2E!r}\ns_mov_b32 s95, {LOG2E!r}")
    p(f"s_lshl_b32 s84, s{S_HP}, 12\ns_lshl_b32 s85, s{S_WAVE}, 10\ns_add_u32 s84, s84, s85\ns_add_u32 s85, s85, {L_WPH}")
    c.pre_loop_txt = p.L
    c.late[4] = ["s_mov_b32 m0, s85", f"buffer_load_dwordx4 v{L16}, {sr(SRD_A,4)}, s84 offen lds"]
    for st_ in opt.get("cp1", [20]): c.late.setdefault(st_, []).extend(code_prefetch_txt(k.name, L16, 254, 80, junk="v31"))
    for st_ in opt.get("cp1b", []): q.late.setdefault(st_, []).extend(code_prefetch_txt(k.name, L16, 254, 80, junk="v252"))
    ts = opt.get("mt_step", None)
    if ts is not None:
        c.late.setdefault(ts, []).extend([f"v_mul_u32_u24 v254, 12288, v{LANE}", f"buffer_load_dword v31, v254, {sr(SRD_D,4)}, s{S_MB} offen"])
        if opt.get("wo_touch", 1):
            c.late[ts].extend([f"s_lshl_b32 s80, s2, 2", f"s_add_u32 s80, s80, s{S_WAVE}", "s_lshl_b32 s80, s80, 11",
                               f"v_and_b32 v254, 15, v{LANE}", "v_lshlrev_b32 v254, 7, v254", "v_add_u32 v254, s80, v254", f"global_load_dword v31, v254, s[{P_WO}:{P_WO+1}]"])
    nq = opt.get("q_in", 10)
    for j in range(nq // 2): c.late.setdefault(32 - nq // 2 + j, []).extend(q.prefetch_txt(2))
    wph_reads = lambda reg, b0: [f"ds_read_b64_tr_b16 {reg(b0+(hh*2+fb)*4+2*r,2)}, v{A_WR} offset:{hh*2048+r*1024+fb*32}" for hh in range(2) for fb in range(2) for r in range(2)]
    c.last_reads = wph_reads(vr, 0)
    c.run(k)
    k.stamp("g1 loop done")
    A = lambda b, t: (b * 2 + t) * 4
    BF, P1, P2, MX, MN, EK = 126, 142, 174, 206, 214, 222
    groups = [(hh, t) for hh in range(2) for t in range(2)]
    def fm_part1(k, seg, ph):
        for g, (hh, t) in enumerate(groups):
            for db in range(2):
                a = A(seg * 4 + hh * 2 + db, t)
                k(f"v_cvt_pk_bf16_f32 v{BF+g*4+db*2}, v{a}, v{a+1}\nv_cvt_pk_bf16_f32 v{BF+g*4+db*2+1}, v{a+2}, v{a+3}")
        k("s_nop 1")
        for g, (hh, t) in enumerate(groups):
            for fb in range(2):
                k(f"{MF} {vr(P1+g*8+fb*4,4)}, {ph(hh*2+fb)}, {vr(BF+g*4,4)}, 0")
    def fm_part2(k):
        for op3, op2, M in (("v_max3_f32", "v_max_f32", MX), ("v_min3_f32", "v_min_f32", MN)):
            for g in range(4):
                b = P1 + g * 8
                k(f"{op3} v{M+2*g}, v{b}, v{b+1}, v{b+2}\n{op3} v{M+2*g}, v{M+2*g}, v{b+3}, v{b+4}\n{op3} v{M+2*g}, v{M+2*g}, v{b+5}, v{b+6}\n{op2} v{M+2*g}, v{M+2*g}, v{b+7}")
        treduce4x2(k, ("v_max_f32", "v_min_f32"), ([MX + 2 * g for g in range(4)], [MN + 2 * g for g in range(4)]))
        for g in range(4):
            k(f"v_mul_f32 v{MX+2*g}, {-LOG2E!r}, v{MX+2*g}\nv_mul_f32 v{MN+2*g}, {LOG2E!r}, v{MN+2*g}")
    def fm_part3(k, E, gs_=range(4)):
        for g in gs_:
            for j in range(4):
                b = g * 8 + 2 * j
                k(f"v_pk_fma_f32 {vr(P2+b,2)}, {vr(P1+b,2)}, s[94:95], {vr(MN+2*g,2)} op_sel_hi:[1,1,0] neg_lo:[1,0,0] neg_hi:[1,0,0]")
                k(f"v_pk_fma_f32 {vr(P1+b,2)}, {vr(P1+b,2)}, s[94:95], {vr(MX+2*g,2)} op_sel_hi:[1,1,0]")
            for j in range(8): k(f"v_exp_f32 v{P1+g*8+j}, v{P1+g*8+j}")
            for j in range(8): k(f"v_exp_f32 v{P2+g*8+j}, v{P2+g*8+j}")
            k("s_nop 0")
            for sg, PP in enumerate((P1, P2)):
                for j in range(4): k(f"v_cvt_pk_bf16_f32 v{E+(g*2+sg)*4+j}, v{PP+g*8+2*j}, v{PP+g*8+2*j+1}")
    mark0 = len(k.L)
    k("s_waitcnt lgkmcnt(0)\ns_nop 7")
    fm_part1(k, 1, lambda i: vr(i * 4, 4))
    k("s_barrier")
    for g, (hh, t) in enumerate(groups):
        for db in range(2):
            a = A(8 + hh * 2 + db, t)
            k(f"v_cvt_pk_bf16_f32 v{a}, v{a}, v{a+1}\nv_cvt_pk_bf16_f32 v{a+1}, v{a+2}, v{a+3}")
            k(f"ds_write_b64 v{A_VW}, {vr(a,2)} offset:{VV + hh*9216 + t*16*72 + db*32}")
    fm_part2(k)
    grp = []
    for j in range(18 - q.pre_dma):
        t_ = q.prefetch_txt(1); grp.append(t_[:-1] + ["s_nop 0", t_[-1]])
    sprinkle(k, mark0, grp, skip=12)
    k.stamp("kp part2")
    fm_part3(k, EK)
    k.stamp("kp part3")
    SM = 32
    k("s_nop 1")
    for i in range(8): k(f"{MF} {vr(SM+4*i,4)}, {vr(ONES,4)}, {vr(EK+4*i,4)}, 0")
    k(f"v_add_u32 v{q.Q1}, 67584, v{c.V_RD}\nv_add_u32 v{q.Q2}, {L_R2}, v{c.V_RD}")
    k("s_nop 5")
    for i in range(8): k(f"v_rcp_f32 v{SM+4*i}, v{SM+4*i}")
    for g, (hh, t) in enumerate(groups):
        for sg, PP in enumerate((P1, P2)):
            for j in range(4):
                k(f"v_pk_mul_f32 {vr(PP+g*8+2*j,2)}, {vr(PP+g*8+2*j,2)}, {vr(SM+(g*2+sg)*4,2)} op_sel_hi:[1,0]")
            for fb in range(2):
                b = PP + g * 8 + fb * 4
                k(f"v_cvt_pk_bf16_f32 v{b}, v{b}, v{b+1}\nv_cvt_pk_bf16_f32 v{b+1}, v{b+2}, v{b+3}")
                k(f"ds_write_b64 v{A_PW}, {vr(b,2)} offset:{PHK + hh*17408 + t*16*136 + sg*64 + fb*32}")
    k.stamp("kp norm")
    k("s_waitcnt lgkmcnt(0)\ns_barrier")
    k.stamp("kp bar")
    FR = 190
    for s_ in range(4):
        for r in range(2):
            for fb in range(2): k(f"ds_read_b64_tr_b16 {vr(FR+s_*16+fb*4+2*r,2)}, v{A_PR} offset:{PHK + (32*s_+16*r)*136 + fb*32}")
            for db in range(2): k(f"ds_read_b64_tr_b16 {vr(FR+s_*16+8+db*4+2*r,2)}, v{A_VR} offset:{VV + (32*s_+16*r)*72 + db*32}")
    k(f"s_lshl_b32 s82, s{S_HP}, 2\ns_add_u32 s82, s82, s{S_WAVE}")
    k("s_lshl_b32 s86, s82, 15")
    k(f"s_lshl_b32 s84, s{S_RB1}, 10\ns_add_u32 s84, s84, s86\ns_add_u32 s85, s84, 16384")
    k("s_lshl_b32 s90, s82, 11")
    k(f"s_lshl_b32 s91, s82, {FS+4}\ns_add_u32 s91, s91, {F_KV}\ns_lshl_b32 s92, s{S_RB1}, {FS}\ns_add_u32 s92, s92, s91")
    k(f"v_and_b32 v{VT}, 15, v{LANE}\nv_cmp_eq_u32 vcc, s{S_RB1}, v{VT}")
    KV, ZZ = 64, 80
    for s_ in range(4):
        k(f"s_waitcnt lgkmcnt({min(15, 24 - 8*s_)})" if s_ < 3 else "s_waitcnt vmcnt(0) lgkmcnt(0)\ns_barrier")
        for fb in range(2):
            for db in range(2):
                d = vr(KV + (db * 2 + fb) * 4, 4)
                k(f"{MF} {d}, {vr(FR+s_*16+fb*4,4)}, {vr(FR+s_*16+8+db*4,4)}, {'0' if s_ == 0 else d}")
            d = vr(ZZ + fb * 4, 4)
            k(f"{MF} {d}, {vr(FR+s_*16+fb*4,4)}, {vr(ONES,4)}, {'0' if s_ == 0 else d}")
    k(f"v_lshlrev_b32 v{VT}, {FS}, v{VT}\nv_mov_b32 v{VT+1}, 1\nv_mov_b32 v{VT+2}, 0")
    k("s_nop 5")
    for db in range(2):
        for j in range(4): k(f"v_cvt_pk_bf16_f32 v{88+db*4+j}, v{KV+db*8+2*j}, v{KV+db*8+2*j+1}")
    k(f"buffer_store_dwordx4 {vr(88,4)}, v{L16}, {sr(SRD_B,4)}, s84 offen sc1")
    k(f"buffer_store_dwordx4 {vr(92,4)}, v{L16}, {sr(SRD_B,4)}, s85 offen sc1")
    k("s_and_saveexec_b64 s[96:97], vcc")
    k(f"buffer_store_dwordx4 {vr(ZZ,4)}, v{L16}, {sr(SRD_C,4)}, s90 offen sc1")
    k(f"buffer_store_dwordx4 {vr(ZZ+4,4)}, v{L16}, {sr(SRD_C,4)}, s90 offen offset:1024 sc1")
    k("s_mov_b64 exec, s[96:97]")
    k.stamp("kv stored")
    KV, ZZ, MW, MC = 72, 88, 32, 64
    q.late[opt.get("kv_ps", 1)] = [WVM([("pre", 0)]), f"buffer_store_dword v{VT+1}, v{VT+2}, {sr(SRD_F,4)}, s92 offen sc1"]
    gs = opt.get("kv_gs", 9)
    ld = f"buffer_load_dword v253, v{VT}, {sr(SRD_F,4)}, s91 offen sc1"
    m = Txt(); m.label = k.label
    okl = k.label("gok")
    m(f"v_cmp_eq_u32 vcc, 0, v253\ns_cmp_eq_u64 vcc, 0\ns_cbranch_scc1 {okl}")
    spin(m, [ld], [253], 0)
    m(f"{okl}:")
    q.late[gs - 2] = [VM(ld, ("kvf", 0))]
    gl = [f"buffer_load_dwordx4 {vr(ZZ,4)}, v{L16}, {sr(SRD_C,4)}, s90 offen sc1", f"buffer_load_dwordx4 {vr(ZZ+4,4)}, v{L16}, {sr(SRD_C,4)}, s90 offen offset:1024 sc1"]
    for i in range(32):
        if i % 4 == 0 and i: gl.append("s_add_u32 s86, s86, 4096")
        gl.append(f"buffer_load_dwordx4 {ar(4*i,4)}, v{L16}, {sr(SRD_B,4)}, s86 offen offset:{(i%4)*1024} sc1")
    n3 = -(-len(gl) // 3)
    q.late[gs] = [WVM([("kvf", 0)]), T("\n".join(m.L))] + gl[:n3]
    q.late[gs + 1] = gl[n3:2*n3]; q.late[gs + 2] = gl[2*n3:]
    t2 = Txt()
    g2 = setup_gemm24(t2, 2, opt, (110, 111, 112, LANE, L16, 98))
    q.late[5] = t2.L[:len(t2.L)//2]; q.late[6] = t2.L[len(t2.L)//2:] + [f"global_load_ushort v{MC+i}, v109, s[{P_C}:{P_C+1}] offset:{i*16}" for i in range(8)]
    assert gs - 2 > 6
    younger = []
    younger += g2.prefetch_txt(8)
    mbl = []
    for i in range(8): mbl += [f"buffer_load_dwordx4 {vr(MW+4*i,4)}, v115, {sr(SRD_D,4)}, s{S_MB} offen", f"s_add_u32 s{S_MB}, s{S_MB}, {8*12288}"]
    mpos = opt.get("mpos", "tail")
    if mpos == "tail": younger += mbl
    ny = sum(1 for x in younger if is_vm(x))
    rest = list(range(gs + 3, 16)); per = -(-len(younger) // len(rest))
    for j, st_ in enumerate(rest): q.late[st_] = younger[j*per:(j+1)*per]
    A_PH = 128
    q.last_reads = wph_reads(ar, A_PH)
    q.run(k)
    k.stamp("g1b done")
    srd(k, SRD_T, P_WS, S * D * 2, WS_O)
    k("s_waitcnt lgkmcnt(0)\ns_nop 3")
    qa = Txt(); fm_part1(qa, 0, lambda i: ar(A_PH + i * 4, 4))
    qa(f"s_waitcnt vmcnt({min(63, ny + 32)})")
    for sh in (8, 4, 2, 1):
        for j in range(8): qa(f"v_add_f32_dpp v{ZZ+j}, v{ZZ+j}, v{ZZ+j} row_ror:{sh} row_mask:0xf bank_mask:0xf")
    for x in qa.L: k(x)
    k.stamp("qp a")
    hs = g2.hs
    qb = Txt(); fm_part2(qb); fm_part3(qb, EK, range(2) if hs else range(4))
    red = []
    for i in range(32):
        db, pp = divmod(i, 16)
        for fb in range(2):
            d = vr(KV + (db * 2 + fb) * 4, 4)
            red.append((f"s_waitcnt vmcnt({ny + 28 - i})\n" if (i % 4 == 0 and fb == 0) else "") + f"{MF} {d}, {vr(SEL + (2 if fb == 0 else 0), 4)}, {ar(4*i,4)}, {'0' if pp == 0 else d}")
    cut = opt.get("q_cut", 150) if not hs else len(qb.L)
    for x in merge(qb.L[:cut], red, 2): k(x)
    if hs:
        k("s_nop 3")
        qb = Txt(); fm_part3(qb, EK, [2]); cut = 0
    k.stamp("qp merged")
    k(f"s_mul_i32 s82, s{S_WAVE}, 3072\ns_add_u32 s82, s82, {SH}")
    k(f"v_add_u32 v{VT+1}, s82, v{L16}\nv_add_u32 v{VT+2}, {SH}, v{L16}")
    k(f"v_and_b32 v{VT}, 1, v{LANE}\nv_cmp_eq_u32 vcc, 0, v{VT}")
    k("s_nop 4")
    for j in range(12): k(f"v_cvt_pk_bf16_f32 v{KV+j}, v{KV+2*j}, v{KV+2*j+1}")
    for j in range(4): k(f"v_cndmask_b32 v{KV+8+j}, v{ONES}, v{KV+8+j}, vcc")
    for j in range(3): k(f"ds_write_b128 v{VT+1}, {vr(KV+4*j,4)} offset:{j*1024}")
    for x in (merge(qb.L[cut:], mbl, 2) if mpos == "q" else qb.L[cut:]): k(x)
    k.stamp("qp rest")
    k("s_waitcnt lgkmcnt(0)\ns_barrier")
    k.stamp("qp bar")
    for i in range(12): k(f"ds_read_b128 {ar(4*i,4)}, v{VT+2} offset:{i*1024}")
    k(f"s_lshl_b32 s82, s{S_RB1}, 3\ns_lshl_b32 s83, s{S_WAVE}, 1\ns_add_u32 s82, s82, s83\ns_lshl_b32 s82, s82, 15")
    k(f"s_lshl_b32 s83, s{S_HP}, 11\ns_add_u32 s82, s82, s83\ns_add_u32 s83, s82, 0x8000")
    k(f"s_lshl_b32 s84, s{S_RB1}, 2\ns_add_u32 s84, s84, s{S_WAVE}\ns_lshl_b32 s84, s84, {FS+4}\ns_lshl_b32 s85, s{S_HP}, {FS}\ns_add_u32 s84, s84, s85\ns_add_u32 s84, s84, {F_O}")
    k("s_waitcnt lgkmcnt(0)")
    NB_ = 126
    def nbase(g): return NB_ + g * 24 if (not hs or g >= 2) else None
    def oregs(g):
        if hs and g < 2: return (0, 12) if g == 0 else (72, 84)
        return (NB_ + g * 24, NB_ + g * 24 + 12)
    def o_mfma(gl):
        for g in gl:
            hh, t = groups[g]
            for sg in range(2):
                for j in range(3):
                    k(f"{MF} {vr(oregs(g)[sg]+4*j,4)}, {ar(((hh*2+sg)*3+j)*4,4)}, {vr(EK+(g*2+sg)*4,4)}, 0")
    def o_fin(gl):
        for g in gl:
            hh, t = groups[g]
            n1, n2 = oregs(g)
            D1, S1, D2, S2 = n1 + 8, n1 + 9, n2 + 8, n2 + 9
            k(f"v_mul_f32 v{n1+10}, v{S1}, v{S2}")
            k(f"v_mul_f32 v{n1+10}, 0x358637bd, v{n1+10}")
            k(f"v_fmac_f32 v{n1+10}, v{D1}, v{S2}\nv_fmac_f32 v{n1+10}, v{D2}, v{S1}")
            k(f"v_rcp_f32 v{n1+10}, v{n1+10}")
            k("s_nop 0")
            k(f"v_mul_f32 v{D1}, v{S2}, v{n1+10}\nv_mul_f32 v{D2}, v{S1}, v{n1+10}")
            for j in range(4): k(f"v_pk_mul_f32 {vr(n1+2*j,2)}, {vr(n1+2*j,2)}, {vr(D1,2)} op_sel_hi:[1,0]")
            for j in range(4): k(f"v_pk_fma_f32 {vr(n1+2*j,2)}, {vr(n2+2*j,2)}, {vr(D2,2)}, {vr(n1+2*j,2)} op_sel_hi:[1,0,1]")
            for j in range(4): k(f"v_cvt_pk_bf16_f32 v{n2+j}, v{n1+2*j}, v{n1+2*j+1}")
            k(f"buffer_store_dwordx4 {vr(n2,4)}, v{L16}, {sr(SRD_T,4)}, s{82+t} offen offset:{hh*1024} sc1")
    if hs:
        o_mfma([0, 1]); k("s_nop 7"); o_fin([0, 1])
        mk0 = len(k.L)
        fm_part3(k, EK, [3])
        k("s_nop 1")
        o_mfma([2, 3]); k("s_nop 7")
        publish(k, 84, VT + 1, mk0)
        k(f"s_add_u32 s95, s84, {F_O2 - F_O}")
        o_fin([2, 3])
    else:
        o_mfma(range(4)); k("s_nop 7"); o_fin(range(4))
    k.stamp("o stored")
    mko = len(k.L)
    g2.V_X = 178
    srd(k, SRD_A, P_X, S * D * 2)
    V_XA = 100
    k(f"v_lshrrev_b32 v{VT+1}, 4, v{LANE}")
    k(f"v_and_b32 v{VT+2}, 15, v{LANE}\nv_lshlrev_b32 v{VT+2}, 11, v{VT+2}\nv_lshl_add_u32 v{V_XA}, v{VT+1}, 3, v{VT+2}")
    k(f"s_lshl_b32 s82, s{S_RB2}, 3\ns_lshl_b32 s83, s{S_WAVE}, 1\ns_add_u32 s82, s82, s83\ns_lshl_b32 s82, s82, 15\ns_lshl_b32 s83, s{S_NT}, 7\ns_add_u32 s82, s82, s83\ns_add_u32 s83, s82, 32768")
    for t in range(2):
        for b in range(4):
            k(f"buffer_load_dwordx2 {vr(g2.V_X+(t*4+b)*2,2)}, v{V_XA}, {sr(SRD_A,4)}, s{82+t} offen offset:{b*32}")
    k.g3 = setup_gemm3_early(k, opt, LANE, 20)
    if not hs: publish(k, 84, VT + 1, mko)
    k.stamp("o published")
    mark1 = len(k.L)
    CU, AU, TT = 0, 16, 24
    for i in range(8): k(f"v_mov_b32 v{CU+2*i}, v{MC+i}")
    silu_block(k, [CU + 2 * i for i in range(8)])
    for i in range(8):
        for d in range(4):
            k(f"v_lshlrev_b32 v{TT}, 16, v{MW+4*i+d}\nv_and_b32 v{TT+1}, 0xffff0000, v{MW+4*i+d}")
            if i == 0: k(f"v_pk_mul_f32 {vr(AU+2*d,2)}, {vr(TT,2)}, {vr(CU,2)} op_sel_hi:[1,0]")
            else: k(f"v_pk_fma_f32 {vr(AU+2*d,2)}, {vr(TT,2)}, {vr(CU+2*i,2)}, {vr(AU+2*d,2)} op_sel_hi:[1,0,1]")
    k("s_nop 1")
    for j in range(4): k(f"v_permlane32_swap_b32 v{AU+j}, v{AU+j+4}")
    k("s_nop 1")
    for j in range(4): k(f"v_add_f32 v{AU+j}, v{AU+j}, v{AU+j+4}")
    k("s_nop 1")
    for j in range(2): k(f"v_permlane16_swap_b32 v{AU+j}, v{AU+j+2}")
    k("s_nop 1")
    for j in range(2): k(f"v_add_f32 v{AU+j}, v{AU+j}, v{AU+j+2}")
    k("s_nop 1")
    for j in range(2): k(f"v_add_f32_dpp v{AU+j}, v{AU+j}, v{AU+j} row_ror:8 row_mask:0xf bank_mask:0xf")
    sprinkle(k, mark1, g3_early_units(k.g3, opt.get("g3_e2", 7), 254), skip=0)
    k(f"v_and_b32 v{TT}, 7, v{LANE}\nv_lshlrev_b32 v{TT}, 5, v{TT}\nv_lshrrev_b32 v{TT+1}, 5, v{LANE}\nv_lshl_add_u32 v{TT}, v{TT+1}, 4, v{TT}")
    k(f"v_bfe_u32 v{TT+1}, v{LANE}, 4, 1\nv_lshl_add_u32 v{TT}, v{TT+1}, 3, v{TT}")
    srd(k, SRD_D, P_WS, MP_BYTES, WS_MODP)
    k(f"v_or_b32 v{AU}, 1, v{AU}\nv_or_b32 v{AU+1}, 1, v{AU+1}")
    k(f"buffer_store_dwordx2 {vr(AU,2)}, v{TT}, {sr(SRD_D,4)}, s{S_MO} offen sc1")
    return g2

A_UT = 176
def silu_block(k, regs):
    for v in regs: k(f"v_lshlrev_b32 v{v}, 16, v{v}\nv_mul_f32 v{v+1}, {-LOG2E!r}, v{v}")
    for v in regs: k(f"v_exp_f32 v{v+1}, v{v+1}")
    k("s_nop 0")
    for v in regs: k(f"v_add_f32 v{v+1}, 1.0, v{v+1}")
    for v in regs: k(f"v_rcp_f32 v{v+1}, v{v+1}")
    k("s_nop 0")
    for v in regs:
        k(f"v_mul_f32 v{v}, v{v}, v{v+1}"); round_bf16(k, v)

def modb_loads(s_off, v_w, v_c):
    out = []
    for i in range(8):
        out.append([f"buffer_load_dwordx4 {ar(A_UT+4*i,4)}, v{v_w}, {sr(SRD_D,4)}, s{s_off} offen", f"s_add_u32 s{s_off}, s{s_off}, {8*12288}"])
    return out

def red32(k, x, t):
    red8(k, x)
    k(f"s_nop 1\nv_add_f32_dpp v{x}, v{x}, v{x} row_mirror row_mask:0xf bank_mask:0xf")
    k(f"v_mov_b32 v{t}, v{x}\ns_nop 1\nv_permlane16_swap_b32 v{x}, v{t}\ns_nop 1\nv_add_f32 v{x}, v{x}, v{t}")

def ids(k):
    k("v_lshrrev_b32 v1, 6, v0")
    k(f"s_and_b32 s{S_XCD}, s2, 7\ns_lshr_b32 s{S_IDX}, s2, 3")
    k(f"v_readfirstlane_b32 s{S_WAVE}, v1")
    k(f"s_bfe_u32 s{S_RB1}, s{S_XCD}, 0x10001\ns_lshl_b32 s{S_RB1}, s{S_RB1}, 3\ns_lshr_b32 s80, s{S_IDX}, 2\ns_add_u32 s{S_RB1}, s{S_RB1}, s80")
    k(f"s_lshr_b32 s{S_HP}, s{S_XCD}, 2\ns_lshl_b32 s{S_HP}, s{S_HP}, 2\ns_and_b32 s80, s{S_IDX}, 3\ns_add_u32 s{S_HP}, s{S_HP}, s80\ns_lshl_b32 s{S_HP}, s{S_HP}, 1\ns_and_b32 s80, s{S_XCD}, 1\ns_add_u32 s{S_HP}, s{S_HP}, s80")

def build_k0(instr=False, opt=None, name="mod_kernel", mega="mega_kernel"):
    opt = opt or {}
    k = Kernel(name, 256, 256, 4096, vgpr=128, sgpr=102)
    k.instr = instr; k.s_wave = S_WAVE
    stamp(k, 0)
    end = k.label("end")
    k(f"s_cmp_ge_u32 s2, 256\ns_cbranch_scc1 {end}")
    k("s_load_dwordx4 s[12:15], s[0:1], 64")
    k("s_load_dwordx8 s[4:11], s[0:1], 0")
    k("s_load_dwordx2 s[28:29], s[0:1], 96")
    ids(k)
    LANE, T, V_W = 104, 48, 105
    WA, CA, XR, XF, A0, SU = 64, 80, 84, 0, 32, 100
    k(f"v_and_b32 v{LANE}, 63, v0")
    k(f"v_lshrrev_b32 v{T+1}, 3, v{LANE}\nv_and_b32 v{T+2}, 7, v{LANE}")
    k(f"v_mul_u32_u24 v{V_W}, 12288, v{T+1}\nv_lshl_add_u32 v{V_W}, v{T+2}, 4, v{V_W}")
    k(f"s_lshl_b32 s64, s{S_RB1}, 6\ns_lshl_b32 s65, s{S_WAVE}, 4\ns_add_u32 s64, s64, s65")
    k(f"v_add_u32 v{T+3}, s64, v{T+1}\nv_lshlrev_b32 v{T+3}, 1, v{T+3}")
    k(f"s_mul_i32 s67, s64, 12288\ns_lshl_b32 s66, s{S_HP}, 7\ns_add_u32 s67, s67, s66\ns_add_u32 s68, s67, {8*12288}")
    k(f"v_lshrrev_b32 v{T+4}, 5, v{LANE}\nv_lshlrev_b32 v{T+4}, 11, v{T+4}\nv_and_b32 v{T+5}, 31, v{LANE}\nv_lshl_add_u32 v{T+4}, v{T+5}, 4, v{T+4}")
    k(f"s_lshl_b32 s69, s{S_RB1}, 4\ns_add_u32 s69, s69, s{S_HP}")
    k(f"s_lshl_b32 s70, s69, 14\ns_lshl_b32 s71, s{S_WAVE}, 12\ns_add_u32 s70, s70, s71")
    k("s_waitcnt lgkmcnt(0)")
    srd(k, SRD_D, 14, D * 6 * D * 2)
    srd(k, SRD_A, P_X, S * D * 2)
    for i in range(2): k(f"global_load_ushort v{CA+2*i}, v{T+3}, s[12:13] offset:{i*16}")
    for i in range(2):
        for v in range(2): k(f"buffer_load_dwordx4 {vr(WA+(i*2+v)*4,4)}, v{V_W}, {sr(SRD_D,4)}, s{67+i} offen offset:{v*2048}")
    for i in range(4): k(f"buffer_load_dwordx4 {vr(XR+4*i,4)}, v{T+4}, {sr(SRD_A,4)}, s70 offen offset:{i*512}")
    stamp(k, 1)
    lab = k.label("pc")
    k(f"s_getpc_b64 s[60:61]\n{lab}:")
    k(f"s_add_u32 s60, s60, {mega}-{lab}\ns_addc_u32 s61, s61, 0")
    k(f"v_lshlrev_b32 v{T+6}, 4, v{LANE}")
    for x in code_prefetch_txt(mega, T + 6, T + 7, 62, s_pc=60, junk="v110"): k(x)
    srd(k, SRD_B, P_WS, MP_BYTES, WS_MODP)
    srd(k, SRD_F, P_WS, FLAG_BYTES, WS_FLAG)
    srd(k, SRD_C, P_WS, S * 128, WS_STAT)
    k(f"v_mov_b32 v{T+8}, 0\nv_lshlrev_b32 v{T+9}, 2, v0\ns_lshl_b32 s62, s2, 10\ns_add_u32 s63, s62, {MP_B}")
    k(f"v_lshlrev_b32 v{T+10}, {FS}, v0\ns_lshl_b32 s66, s2, {FS+8}")
    k(f"buffer_store_dword v{T+8}, v{T+10}, {sr(SRD_F,4)}, s66 offen")
    k(f"buffer_store_dword v{T+8}, v{T+9}, {sr(SRD_C,4)}, s62 offen")
    k(f"buffer_store_dword v{T+8}, v{T+9}, {sr(SRD_B,4)}, s63 offen")
    young = 4
    k(f"s_lshl_b32 s62, s2, 2\ns_add_u32 s62, s62, s{S_WAVE}")
    for ptr, per, tag in ((P_WQKV, 6, "t_wq"), (P_WO, 2, "t_wo"), (14, 12, "t_wm")):
        if not opt.get(tag, 1): continue
        k(f"s_mul_i32 s63, s62, {per*1024}\ns_add_u32 s63, s63, 384")
        k(f"v_min_u32 v{T+14}, {per-1}, v{LANE}\nv_lshlrev_b32 v{T+14}, 10, v{T+14}\nv_add_u32 v{T+14}, s63, v{T+14}")
        k(f"global_load_dword v110, v{T+14}, s[{ptr}:{ptr+1}]")
        young += 1
    k(f"s_waitcnt vmcnt({young + 8})")
    silu_block(k, [CA, CA + 2])
    k(f"s_waitcnt vmcnt({young + 4})")
    for i in range(2):
        for v in range(2):
            for d in range(4):
                w_ = WA + (i * 2 + v) * 4 + d
                k(f"v_lshlrev_b32 v{T+10}, 16, v{w_}\nv_and_b32 v{T+11}, 0xffff0000, v{w_}")
                if i == 0: k(f"v_pk_mul_f32 {vr(A0+v*8+2*d,2)}, {vr(T+10,2)}, {vr(CA,2)} op_sel_hi:[1,0]")
                else: k(f"v_pk_fma_f32 {vr(A0+v*8+2*d,2)}, {vr(T+10,2)}, {vr(CA+2,2)}, {vr(A0+v*8+2*d,2)} op_sel_hi:[1,0,1]")
    k("s_nop 1")
    for j in range(8): k(f"v_permlane32_swap_b32 v{A0+j}, v{A0+8+j}")
    k("s_nop 1")
    for j in range(8): k(f"v_add_f32 v{A0+j}, v{A0+j}, v{A0+8+j}")
    k("s_nop 1")
    for j in range(4): k(f"v_permlane16_swap_b32 v{A0+j}, v{A0+4+j}")
    k("s_nop 1")
    for j in range(4): k(f"v_add_f32 v{A0+j}, v{A0+j}, v{A0+4+j}")
    k("s_nop 1")
    for j in range(4): k(f"v_add_f32_dpp v{A0+j}, v{A0+j}, v{A0+j} row_ror:8 row_mask:0xf bank_mask:0xf")
    k(f"v_lshrrev_b32 v{T+12}, 5, v{LANE}\nv_lshlrev_b32 v{T+13}, 8, v{T+12}\nv_lshl_add_u32 v{T+13}, v{T+2}, 5, v{T+13}")
    k(f"v_bfe_u32 v{T+10}, v{LANE}, 4, 1\nv_lshl_add_u32 v{T+13}, v{T+10}, 4, v{T+13}\ns_lshl_b32 s62, s{S_WAVE}, 9\nv_add_u32 v{T+13}, s62, v{T+13}")
    k(f"ds_write_b128 v{T+13}, {vr(A0,4)}")
    k("s_waitcnt lgkmcnt(0)\ns_barrier")
    nw0 = k.label("notw0")
    k(f"s_cmp_lg_u32 s{S_WAVE}, 0\ns_cbranch_scc1 {nw0}")
    k(f"v_lshlrev_b32 v{T+13}, 3, v{LANE}")
    for w in range(4): k(f"ds_read_b64 {vr(A0+2*w,2)}, v{T+13} offset:{w*512}")
    k(f"s_lshl_b32 s62, s{S_HP}, 13\ns_lshl_b32 s63, s{S_RB1}, 9\ns_add_u32 s63, s63, s62")
    k("s_waitcnt lgkmcnt(0)")
    k(f"v_pk_add_f32 {vr(A0,2)}, {vr(A0,2)}, {vr(A0+2,2)}\nv_pk_add_f32 {vr(A0+4,2)}, {vr(A0+4,2)}, {vr(A0+6,2)}\nv_pk_add_f32 {vr(A0,2)}, {vr(A0,2)}, {vr(A0+4,2)}")
    k(f"buffer_store_dwordx2 {vr(A0,2)}, v{T+13}, {sr(SRD_B,4)}, s63 offen")
    k(f"{nw0}:")
    stamp(k, 2)
    k(f"s_waitcnt vmcnt({young})")
    for d in range(16): k(f"v_lshlrev_b32 v{XF+2*d}, 16, v{XR+d}\nv_and_b32 v{XF+2*d+1}, 0xffff0000, v{XR+d}")
    k(f"v_pk_add_f32 {vr(SU,2)}, {vr(XF,2)}, {vr(XF+2,2)}")
    for d in range(2, 16): k(f"v_pk_add_f32 {vr(SU,2)}, {vr(SU,2)}, {vr(XF+2*d,2)}")
    k(f"v_add_f32 v{SU}, v{SU}, v{SU+1}")
    red32(k, SU, SU + 1)
    k(f"v_mul_f32 v{SU+2}, {-1.0/1024!r}, v{SU}")
    k(f"v_mov_b32 v{SU}, 0\nv_mov_b32 v{SU+1}, 0")
    for d in range(16):
        k(f"v_pk_add_f32 {vr(XF+2*d,2)}, {vr(XF+2*d,2)}, {vr(SU+2,2)} op_sel_hi:[1,0]")
        k(f"v_pk_fma_f32 {vr(SU,2)}, {vr(XF+2*d,2)}, {vr(XF+2*d,2)}, {vr(SU,2)}")
    k(f"v_add_f32 v{SU}, v{SU}, v{SU+1}")
    red32(k, SU, SU + 1)
    k(f"v_mov_b32 v{SU+1}, 0x3727c5ac\nv_fmac_f32 v{SU+1}, {1.0/1024!r}, v{SU}\nv_rsq_f32 v{SU+3}, v{SU+1}")
    k(f"s_lshl_b32 s62, s69, 6\ns_lshl_b32 s63, s{S_WAVE}, 4\ns_add_u32 s62, s62, s63\ns_add_u32 s62, s62, {MP_RS}\nv_lshlrev_b32 v{T+12}, 3, v{T+12}")
    k(f"buffer_store_dwordx2 {vr(SU+2,2)}, v{T+12}, {sr(SRD_B,4)}, s62 offen")
    stamp(k, 3)
    if instr: k("s_waitcnt vmcnt(0)")
    stamp(k, 4)
    stamp_flush(k, 28, 5, 4, slot=1)
    k(f"{end}:\ns_endpgm")
    return k

def phase_front_fused(k, opt, name):
    LANE, L16 = 104, 105
    T = 48
    V_W, V_C = 115, 109
    WA, CA, XR, XT_, XF, A0, SU, G, M, RS = 64, 80, 128, 144, 0, 200, 216, 160, 32, 84
    HL = 2 * 25344
    k(f"v_lshrrev_b32 v{T+1}, 3, v{LANE}\nv_and_b32 v{T+2}, 7, v{LANE}")
    k(f"v_mul_u32_u24 v{V_W}, 12288, v{T+1}\nv_lshl_add_u32 v{V_W}, v{T+2}, 4, v{V_W}")
    k(f"s_lshl_b32 s84, s{S_RB1}, 6")
    k(f"v_add_u32 v{V_C}, s84, v{T+1}\nv_lshlrev_b32 v{V_C}, 1, v{V_C}")
    k(f"s_lshl_b32 s85, s{S_WAVE}, 5\nv_add_u32 v{T+3}, s85, v{V_C}")
    k(f"s_mul_i32 s86, s84, 12288\ns_lshl_b32 s87, s{S_HP}, 7\ns_add_u32 s86, s86, s87")
    k(f"s_mul_i32 s87, s{S_WAVE}, {16*12288}\ns_add_u32 s87, s87, s86\ns_add_u32 s88, s87, {8*12288}")
    k(f"v_lshrrev_b32 v{T+4}, 5, v{LANE}\nv_lshlrev_b32 v{T+4}, 11, v{T+4}\nv_and_b32 v{T+5}, 31, v{LANE}\nv_lshl_add_u32 v{T+4}, v{T+5}, 4, v{T+4}")
    k(f"s_lshl_b32 s89, s{S_RB1}, 4\ns_add_u32 s89, s89, s{S_HP}")
    k(f"s_lshl_b32 s90, s89, 14\ns_lshl_b32 s91, s{S_WAVE}, 12\ns_add_u32 s90, s90, s91")
    k(f"v_mov_b32 v{T+8}, 0\nv_mov_b32 v{T+9}, 0\nv_mov_b32 v{T+10}, 0\nv_mov_b32 v{T+11}, 0\nv_mov_b32 v{T+12}, 1")
    k(f"v_lshlrev_b32 v{T+7}, {FS}, v{LANE}")
    k(f"s_lshl_b32 s93, s2, {FS+6}\ns_add_u32 s93, s93, {F_S0}\ns_cmp_lt_u32 s2, 4\ns_cselect_b32 s93, s93, 0x7ff00000\ns_cmp_eq_u32 s{S_WAVE}, 3\ns_cselect_b32 s93, s93, 0x7ff00000")
    k("s_waitcnt lgkmcnt(0)")
    srd(k, SRD_F, P_WS, FLAG_BYTES, WS_FLAG)
    k(f"buffer_store_dword v{T+8}, v{T+7}, {sr(SRD_F,4)}, s93 offen sc1")
    k(f"s_mov_b32 s{SRD_T}, s{P_DBG}\ns_mov_b32 s{SRD_T+1}, s{P_DBG+1}\ns_mov_b32 s{SRD_T+2}, 256\ns_mov_b32 s{SRD_T+3}, 0x20000")
    k("s_mov_b32 s95, s93")
    srd(k, SRD_D, P_WMOD, D * 6 * D * 2)
    srd(k, SRD_A, P_X, S * D * 2)
    for i in range(2): k(f"global_load_ushort v{CA+2*i}, v{T+3}, s[{P_C}:{P_C+1}] offset:{i*16}")
    for i in range(2):
        for v in range(2): k(f"buffer_load_dwordx4 {vr(WA+(i*2+v)*4,4)}, v{V_W}, {sr(SRD_D,4)}, s{87+i} offen offset:{v*2048}")
    for i in range(4): k(f"buffer_load_dwordx4 {vr(XR+4*i,4)}, v{T+4}, {sr(SRD_A,4)}, s90 offen offset:{i*512}")
    k.stamp("loads issued")
    srd(k, SRD_B, P_WS, MP_BYTES, WS_MODP)
    srd(k, SRD_C, P_WS, S * 128, WS_STAT)
    w3, jn = k.label("w3"), k.label("join")
    k(f"s_cmp_eq_u32 s{S_WAVE}, 3\ns_cbranch_scc1 {w3}")
    k(f"s_lshl_b32 s92, s2, 1\ns_add_u32 s92, s92, s{S_WAVE}\ns_sub_u32 s92, s92, 1")
    nt_ = k.label("notouch")
    k("s_mov_b32 s93, 0x7ff00000")
    for i in range(2): k(f"buffer_load_dword a233, v{V_W}, {sr(SRD_D,4)}, s93 offen")
    k(f"s_cmp_eq_u32 s{S_WAVE}, 0\ns_cbranch_scc1 {nt_}")
    for ptr, per in ((P_WQKV, 12), (P_WO, 4), (P_WMOD, 24)):
        k(f"s_mul_i32 s93, s92, {per}\nv_min_u32 v{T+14}, {per-1}, v{LANE}\nv_add_u32 v{T+14}, s93, v{T+14}")
        k(f"v_lshlrev_b32 v{T+14}, 10, v{T+14}")
        k(f"global_load_dword a232, v{T+14}, s[{ptr}:{ptr+1}] offset:384")
    k(f"s_branch {jn}")
    k(f"{nt_}:")
    for i in range(3): k(f"buffer_load_dword a233, v{V_W}, {sr(SRD_D,4)}, s93 offen")
    k(f"s_branch {jn}")
    k(f"{w3}:")
    nb = k.label("nboot")
    k(f"s_cmp_eq_u32 s95, 0x7ff00000\ns_cbranch_scc1 {nb}")
    k("s_lshl_b32 s93, s2, 2\ns_waitcnt vmcnt(10)")
    k(f"buffer_store_dword v{T+12}, v{T+8}, {sr(SRD_T,4)}, s93 offen sc1")
    k(f"{nb}:")
    k(f"v_and_b32 v{T+14}, 3, v{LANE}\nv_lshlrev_b32 v{T+14}, 4, v{T+14}")
    k(f"s_lshl_b32 s93, s{S_RB1}, 6\ns_add_u32 s93, s93, s{S_HP}\nv_add_u32 v{T+15}, s93, v{T+14}")
    k(f"s_lshl_b32 s93, s{S_HP}, 6\ns_add_u32 s93, s93, s{S_RB1}\ns_add_u32 s93, s93, 1024\nv_add_u32 v{T+14}, s93, v{T+14}")
    k(f"v_cmp_gt_u32 vcc, 4, v{LANE}\ns_mul_i32 s93, s2, 24\ns_add_u32 s93, s93, 2040")
    k(f"v_cndmask_b32 v{T+14}, v{T+14}, v{T+15}, vcc\nv_add_u32 v{T+15}, s93, v{LANE}")
    k(f"v_cmp_gt_u32 vcc, 8, v{LANE}\ns_nop 1\nv_cndmask_b32 v{T+14}, v{T+15}, v{T+14}, vcc")
    k(f"v_cmp_gt_u32 vcc, 32, v{LANE}\nv_mov_b32 v{T+15}, 0x100000\ns_nop 0\nv_cndmask_b32 v{T+14}, v{T+15}, v{T+14}, vcc")
    k(f"v_lshlrev_b32 v{T+14}, {FS}, v{T+14}")
    k(f"buffer_store_dword v{T+8}, v{T+14}, {sr(SRD_F,4)}, 0 offen sc1")
    k("s_mov_b32 s93, 0x7ff00000")
    for i in range(2): k(f"buffer_load_dword a233, v{V_W}, {sr(SRD_D,4)}, s93 offen")
    k("s_lshl_b32 s93, s2, 10")
    k(f"buffer_store_dwordx4 {vr(T+8,4)}, v{L16}, {sr(SRD_C,4)}, s93 offen sc1")
    k(f"s_add_u32 s93, s93, {MP_B}")
    k(f"buffer_store_dwordx4 {vr(T+8,4)}, v{L16}, {sr(SRD_B,4)}, s93 offen sc1")
    k(f"{jn}:")
    k(f"v_lshlrev_b32 v{T+5}, 11, v{T+1}\nv_lshl_add_u32 v{T+5}, v{T+2}, 4, v{T+5}")
    k(f"s_lshl_b32 s91, s{S_RB1}, 18\ns_lshl_b32 s92, s{S_WAVE}, 16\ns_add_u32 s91, s91, s92\ns_lshl_b32 s92, s{S_HP}, 7\ns_add_u32 s91, s91, s92")
    for i in range(4):
        k(f"buffer_load_dwordx4 {vr(XT_+4*i,4)}, v{T+5}, {sr(SRD_A,4)}, s91 offen")
        if i < 3: k("s_add_u32 s91, s91, 16384")
    k(f"s_lshl_b32 s94, s{S_WAVE}, 11\ns_add_u32 s{S_MB}, s86, s94\ns_add_u32 s{S_MB}, s{S_MB}, 4096")
    k(f"s_lshl_b32 s94, s{S_WAVE}, 16\ns_lshl_b32 s95, s{S_HP}, 12\ns_add_u32 s94, s94, s95\ns_lshl_b32 s95, s{S_RB1}, 8\ns_add_u32 s94, s94, s95\ns_add_u32 s{S_MO}, s94, {MP_B}")
    young = 9
    k.stamp("all issued")
    k(f"s_waitcnt vmcnt({young + 8})")
    k.stamp("c ready")
    silu_block(k, [CA, CA + 2])
    k(f"s_waitcnt vmcnt({young + 4})")
    k.stamp("w ready")
    for i in range(2):
        for v in range(2):
            for d in range(4):
                w_ = WA + (i * 2 + v) * 4 + d
                k(f"v_lshlrev_b32 v{T+14}, 16, v{w_}\nv_and_b32 v{T+15}, 0xffff0000, v{w_}")
                if i == 0: k(f"v_pk_mul_f32 {vr(A0+v*8+2*d,2)}, {vr(T+14,2)}, {vr(CA,2)} op_sel_hi:[1,0]")
                else: k(f"v_pk_fma_f32 {vr(A0+v*8+2*d,2)}, {vr(T+14,2)}, {vr(CA+2,2)}, {vr(A0+v*8+2*d,2)} op_sel_hi:[1,0,1]")
    k("s_nop 1")
    for j in range(8): k(f"v_permlane32_swap_b32 v{A0+j}, v{A0+8+j}")
    k("s_nop 1")
    for j in range(8): k(f"v_add_f32 v{A0+j}, v{A0+j}, v{A0+8+j}")
    k("s_nop 1")
    for j in range(4): k(f"v_permlane16_swap_b32 v{A0+j}, v{A0+4+j}")
    k("s_nop 1")
    for j in range(4): k(f"v_add_f32 v{A0+j}, v{A0+j}, v{A0+4+j}")
    k("s_nop 1")
    for j in range(4): k(f"v_add_f32_dpp v{A0+j}, v{A0+j}, v{A0+j} row_ror:8 row_mask:0xf bank_mask:0xf")
    k(f"v_lshrrev_b32 v{T+13}, 5, v{LANE}\nv_lshlrev_b32 v{T+14}, 8, v{T+13}\nv_lshl_add_u32 v{T+14}, v{T+2}, 5, v{T+14}")
    k(f"v_bfe_u32 v{T+15}, v{LANE}, 4, 1\nv_lshl_add_u32 v{T+14}, v{T+15}, 4, v{T+14}\ns_lshl_b32 s94, s{S_WAVE}, 9\nv_add_u32 v{T+14}, s94, v{T+14}")
    k(f"ds_write_b128 v{T+14}, {vr(A0,4)} offset:{HL}")
    k(f"s_waitcnt vmcnt({young})")
    for d in range(16): k(f"v_lshlrev_b32 v{XF+2*d}, 16, v{XR+d}\nv_and_b32 v{XF+2*d+1}, 0xffff0000, v{XR+d}")
    k(f"v_pk_add_f32 {vr(SU,2)}, {vr(XF,2)}, {vr(XF+2,2)}")
    for d in range(2, 16): k(f"v_pk_add_f32 {vr(SU,2)}, {vr(SU,2)}, {vr(XF+2*d,2)}")
    k(f"v_add_f32 v{SU}, v{SU}, v{SU+1}")
    red32(k, SU, SU + 1)
    k(f"v_mul_f32 v{SU+2}, {-1.0/1024!r}, v{SU}")
    k(f"v_mov_b32 v{SU}, 0\nv_mov_b32 v{SU+1}, 0")
    for d in range(16):
        k(f"v_pk_add_f32 {vr(XF+2*d,2)}, {vr(XF+2*d,2)}, {vr(SU+2,2)} op_sel_hi:[1,0]")
        k(f"v_pk_fma_f32 {vr(SU,2)}, {vr(XF+2*d,2)}, {vr(XF+2*d,2)}, {vr(SU,2)}")
    k(f"v_add_f32 v{SU}, v{SU}, v{SU+1}")
    red32(k, SU, SU + 1)
    k(f"v_mov_b32 v{SU+1}, 0x3727c5ac\nv_fmac_f32 v{SU+1}, {1.0/1024!r}, v{SU}\nv_rsq_f32 v{SU+3}, v{SU+1}")
    k(f"s_lshl_b32 s94, s{S_WAVE}, 4\nv_lshlrev_b32 v{T+13}, 3, v{T+13}\nv_add_u32 v{T+13}, s94, v{T+13}")
    k(f"ds_write_b64 v{T+13}, {vr(SU+2,2)} offset:{HL+2048}")
    n3 = k.label("not3")
    k(f"s_cmp_lg_u32 s{S_WAVE}, 3\ns_cbranch_scc1 {n3}")
    k(f"v_and_b32 v{T+14}, 3, v{LANE}\nv_lshlrev_b32 v{T+14}, 2, v{T+14}")
    spin(k, [f"buffer_load_dword v{T+13}, v{T+14}, {sr(SRD_T,4)}, 0 offen sc1"], [T + 13], 0)
    k(f"{n3}:")
    k("s_waitcnt lgkmcnt(0)\ns_barrier")
    k.stamp("partials")
    nw0 = k.label("notw0")
    k(f"v_lshlrev_b32 v{T+6}, 3, v{LANE}")
    k(f"s_cmp_lg_u32 s{S_WAVE}, 0\ns_cbranch_scc1 {nw0}")
    for w in range(4): k(f"ds_read_b64 {vr(A0+2*w,2)}, v{T+6} offset:{HL+w*512}")
    k(f"v_and_b32 v{T+9}, 0x38, v{T+6}")
    k(f"ds_read_b64 {vr(A0+8,2)}, v{T+9} offset:{HL+2048}")
    k(f"s_lshl_b32 s94, s{S_HP}, 13\ns_lshl_b32 s95, s{S_RB1}, 9\ns_add_u32 s95, s95, s94")
    k(f"s_lshl_b32 s90, s89, 6\ns_add_u32 s90, s90, {MP_RS}")
    k("s_waitcnt lgkmcnt(0)")
    k(f"v_pk_add_f32 {vr(A0,2)}, {vr(A0,2)}, {vr(A0+2,2)}\nv_pk_add_f32 {vr(A0+4,2)}, {vr(A0+4,2)}, {vr(A0+6,2)}\nv_pk_add_f32 {vr(A0,2)}, {vr(A0,2)}, {vr(A0+4,2)}")
    k(f"buffer_store_dwordx2 {vr(A0,2)}, v{T+6}, {sr(SRD_B,4)}, s95 offen sc1")
    k(f"buffer_store_dwordx2 {vr(A0+8,2)}, v{T+9}, {sr(SRD_B,4)}, s90 offen sc1")
    k(f"s_lshl_b32 s90, s89, {FS}\ns_add_u32 s90, s90, {F_S0}")
    k("s_waitcnt vmcnt(0)")
    k(f"buffer_store_dword v{T+12}, v{T+8}, {sr(SRD_F,4)}, s90 offen sc1")
    if opt.get("modb_front", 0):
        sk_ = k.label("skmf")
        k(f"s_branch {sk_}")
        k(f"{nw0}:")
        k("s_waitcnt vmcnt(0)")
        for g in modb_loads(S_MB, V_W, V_C):
            for x in g: k(x)
        k(f"s_mov_b32 s{S_MB}, 0x7ff00000")
        k(f"{sk_}:")
    else:
        k(f"{nw0}:")
    k.stamp("s0 published")
    split = opt.get("split", 1)
    g1 = (setup_gemm1s if split else setup_gemm1)(k, opt)
    srd(k, SRD_W, P_WQKV, D * 3 * D * 2)
    if not opt.get("modb_front", 0):
        k("s_waitcnt vmcnt(1)")
        k(f"s_cmp_eq_u32 s{S_WAVE}, 0\ns_cbranch_scc1 1\ns_waitcnt vmcnt(0)")
    for d in range(16): k(f"v_lshlrev_b32 v{XF+2*d}, 16, v{XT_+d}\nv_and_b32 v{XF+2*d+1}, 0xffff0000, v{XT_+d}")
    VS = T + 4
    k(f"v_lshrrev_b32 v{VS}, 2, v{T+2}\nv_lshlrev_b32 v{VS}, 10, v{VS}")
    k(f"v_and_b32 v{T+3}, 3, v{T+2}\nv_lshl_add_u32 v{VS}, v{T+3}, 8, v{VS}\nv_lshl_add_u32 v{VS}, v{T+1}, 4, v{VS}")
    k(f"s_lshl_b32 s86, s{S_RB1}, 3\ns_lshl_b32 s87, s{S_WAVE}, 1\ns_add_u32 s86, s86, s87\ns_lshl_b32 s86, s86, 15\ns_lshl_b32 s87, s{S_HP}, 11\ns_add_u32 s86, s86, s87\ns_add_u32 s87, s86, 0x8000")
    k(f"s_lshl_b32 s88, s{S_RB1}, 2\ns_add_u32 s88, s88, s{S_WAVE}\ns_lshl_b32 s88, s88, {FS+4}\ns_add_u32 s88, s88, {F_H}\ns_lshl_b32 s89, s{S_HP}, {FS}\ns_add_u32 s89, s89, s88")
    k(f"v_lshlrev_b32 v{T+5}, 5, v{T+2}")
    k(f"s_lshl_b32 s92, s{S_WAVE}, 8\nv_lshlrev_b32 v{T+7}, 3, v{T+1}\nv_add_u32 v{T+7}, s92, v{T+7}")
    nw1 = k.label("notw0b")
    k(f"s_cmp_lg_u32 s{S_WAVE}, 0\ns_cbranch_scc1 {nw1}")
    k(f"v_and_b32 v{T+9}, 15, v{LANE}\ns_lshl_b32 s92, s{S_RB1}, 4\nv_add_u32 v{T+10}, s92, v{T+9}\nv_lshlrev_b32 v{T+9}, 4, v{T+9}\nv_add_u32 v{T+9}, s{S_HP}, v{T+9}")
    k(f"v_and_b32 v{T+11}, 16, v{LANE}\nv_cmp_eq_u32 vcc, 0, v{T+11}\ns_mov_b32 s92, {F_S0}\ns_nop 0")
    k(f"v_cndmask_b32 v{T+9}, v{T+9}, v{T+10}, vcc\nv_lshlrev_b32 v{T+9}, {FS}, v{T+9}")
    spin(k, [f"buffer_load_dword v{T+13}, v{T+9}, {sr(SRD_F,4)}, s92 offen sc1"], [T + 13], 0)
    k(f"s_lshl_b32 s94, s{S_HP}, 13\ns_add_u32 s95, s94, 4096")
    for p_ in range(16): k(f"buffer_load_dwordx2 {vr(G+2*p_,2)}, v{T+6}, {sr(SRD_B,4)}, s{94+p_//8} offen offset:{(p_%8)*512} sc1")
    k(f"s_lshl_b32 s90, s{S_RB1}, 10\ns_add_u32 s90, s90, {MP_RS}")
    k(f"buffer_load_dwordx4 {vr(A0+8,4)}, v{L16}, {sr(SRD_B,4)}, s90 offen sc1")
    k(f"v_cmp_lt_u32 vcc, 31, v{LANE}")
    k("s_waitcnt vmcnt(1)")
    for st in (8, 4, 2, 1):
        for j in range(st): k(f"v_pk_add_f32 {vr(G+2*j,2)}, {vr(G+2*j,2)}, {vr(G+2*(j+st),2)}")
    k(f"v_cvt_pk_bf16_f32 v{G+2}, v{G}, v{G+1}\nv_lshlrev_b32 v{G}, 16, v{G+2}\nv_and_b32 v{G+1}, 0xffff0000, v{G+2}")
    k(f"v_pk_add_f32 {vr(G+4,2)}, {vr(G,2)}, 1.0 op_sel_hi:[1,0]")
    k(f"v_cvt_pk_bf16_f32 v{G+2}, v{G+4}, v{G+5}\nv_lshlrev_b32 v{G+4}, 16, v{G+2}\nv_and_b32 v{G+5}, 0xffff0000, v{G+2}")
    k(f"v_cndmask_b32 v{G}, v{G}, v{G+4}, vcc\nv_cndmask_b32 v{G+1}, v{G+1}, v{G+5}, vcc")
    k(f"ds_write_b64 v{T+6}, {vr(G,2)} offset:{HL+4096}")
    k("s_waitcnt vmcnt(0)")
    k(f"ds_write_b128 v{L16}, {vr(A0+8,4)} offset:{HL+5120}")
    k("s_waitcnt lgkmcnt(0)")
    k(f"{nw1}:")
    g1.prefetch(k, opt.get("h_pre0", 0))
    srd(k, SRD_T, P_WS, S * D * 2, WS_H)
    k("s_barrier")
    k.stamp("s0 ready")
    for h in range(2): k(f"ds_read_b128 {vr(M+4*h,4)}, v{T+5} offset:{HL+4096+h*16}\nds_read_b128 {vr(M+8+4*h,4)}, v{T+5} offset:{HL+4096+256+h*16}")
    for i in range(4): k(f"ds_read_b64 {vr(RS+2*i,2)}, v{T+7} offset:{HL+5120+i*64}")
    k("s_waitcnt lgkmcnt(0)")
    for i in range(4):
        for j in range(4): k(f"v_pk_add_f32 {vr(XF+8*i+2*j,2)}, {vr(XF+8*i+2*j,2)}, {vr(RS+2*i,2)} op_sel_hi:[1,0]")
        for j in range(4): k(f"v_pk_mul_f32 {vr(XF+8*i+2*j,2)}, {vr(XF+8*i+2*j,2)}, {vr(RS+2*i,2)} op_sel:[0,1] op_sel_hi:[1,1]")
        for j in range(4): k(f"v_pk_fma_f32 {vr(XF+8*i+2*j,2)}, {vr(XF+8*i+2*j,2)}, {vr(M+8+2*j,2)}, {vr(M+2*j,2)}")
        for j in range(4): k(f"v_cvt_pk_bf16_f32 v{XR+4*i+j}, v{XF+8*i+2*j}, v{XF+8*i+2*j+1}")
        k(f"buffer_store_dwordx4 {vr(XR+4*i,4)}, v{VS}, {sr(SRD_T,4)}, s{86 + i//2} offen offset:{(i%2)*128} sc1")
    k.stamp("h computed")
    mk = len(k.L)
    g1.prefetch(k, opt.get("h_pre1a", 4 if split else 6))
    publish(k, 89, T, mk)
    k.stamp("h published")
    g1.prefetch(k, opt.get("h_pre1", 8 if split else 6))
    if not split:
        k.g3 = setup_gemm3_early(k, opt, LANE, 56)
        for i in range(8): k(f"global_load_ushort {ar(A_UT+32+i,1)}, v{V_C}, s[{P_C}:{P_C+1}] offset:{i*16}")
    k(f"v_and_b32 v252, 15, v{LANE}\nv_lshlrev_b32 v252, {FS}, v252\ns_mov_b32 s93, s88")
    staged_wait(k, g1, opt.get("g1_T", 5 if split else 4), 252, 93, 253, one_prod)
    k.stamp("h ready")
    return g1

def phase_front(k, opt, name):
    LANE, L16 = 104, 105
    T = 48
    V_W, V_C = 115, 109
    RS, XR, XT_, XF, G, M = 64, 128, 144, 0, 160, 32
    HL = 2 * 25344
    k(f"v_and_b32 v{LANE}, 63, v0")
    k(f"v_lshrrev_b32 v{T+1}, 3, v{LANE}\nv_and_b32 v{T+2}, 7, v{LANE}")
    k(f"v_lshlrev_b32 v{T+5}, 11, v{T+1}\nv_lshl_add_u32 v{T+5}, v{T+2}, 4, v{T+5}")
    k(f"s_lshl_b32 s91, s{S_RB1}, 18\ns_lshl_b32 s92, s{S_WAVE}, 16\ns_add_u32 s91, s91, s92\ns_lshl_b32 s92, s{S_HP}, 7\ns_add_u32 s91, s91, s92")
    k(f"v_lshlrev_b32 v{T+8}, 3, v{LANE}\nv_lshlrev_b32 v{T+6}, 3, v{T+1}")
    k(f"s_lshl_b32 s94, s{S_HP}, 13\ns_add_u32 s95, s94, 4096")
    k(f"s_lshl_b32 s90, s{S_RB1}, 10\ns_lshl_b32 s93, s{S_WAVE}, 8\ns_add_u32 s90, s90, s93\ns_add_u32 s90, s90, {MP_RS}")
    k("s_waitcnt lgkmcnt(0)")
    srd(k, SRD_B, P_WS, MP_BYTES, WS_MODP)
    srd(k, SRD_A, P_X, S * D * 2)
    for p_ in range(16): k(f"buffer_load_dwordx2 {vr(G+2*p_,2)}, v{T+8}, {sr(SRD_B,4)}, s{94+p_//8} offen offset:{(p_%8)*512}")
    for i in range(4): k(f"buffer_load_dwordx2 {vr(RS+2*i,2)}, v{T+6}, {sr(SRD_B,4)}, s90 offen offset:{i*64}")
    for i in range(4):
        k(f"buffer_load_dwordx4 {vr(XT_+4*i,4)}, v{T+5}, {sr(SRD_A,4)}, s91 offen")
        if i < 3: k("s_add_u32 s91, s91, 16384")
    k.stamp("loads issued")
    def touch(ptr, per, vt, off=0):
        k(f"s_lshl_b32 s80, s2, 2\ns_add_u32 s80, s80, s{S_WAVE}\ns_mul_i32 s80, s80, {per*128}")
        if off: k(f"s_add_u32 s80, s80, {off}")
        k(f"v_min_u32 v{vt}, {per-1}, v{LANE}\nv_lshlrev_b32 v{vt}, 7, v{vt}\nv_add_u32 v{vt}, s80, v{vt}")
        k(f"global_load_dword a232, v{vt}, s[{ptr}:{ptr+1}]")
    nt0 = 0
    if opt.get("m_touch", 0) == 1: touch(P_WQKV, 48, 254); nt0 = 1
    g1 = setup_gemm1(k, opt)
    srd(k, SRD_W, P_WQKV, D * 3 * D * 2)
    n0 = opt.get("h_pre0", 6)
    g1.prefetch(k, n0)
    n0 += nt0
    srd(k, SRD_F, P_WS, FLAG_BYTES, WS_FLAG)
    srd(k, SRD_T, P_WS, S * D * 2, WS_H)
    VS = T + 4
    k(f"v_lshrrev_b32 v{VS}, 2, v{T+2}\nv_lshlrev_b32 v{VS}, 10, v{VS}")
    k(f"v_and_b32 v{T+3}, 3, v{T+2}\nv_lshl_add_u32 v{VS}, v{T+3}, 8, v{VS}\nv_lshl_add_u32 v{VS}, v{T+1}, 4, v{VS}")
    k(f"s_lshl_b32 s86, s{S_RB1}, 3\ns_lshl_b32 s87, s{S_WAVE}, 1\ns_add_u32 s86, s86, s87\ns_lshl_b32 s86, s86, 15\ns_lshl_b32 s87, s{S_HP}, 11\ns_add_u32 s86, s86, s87\ns_add_u32 s87, s86, 0x8000")
    k(f"s_lshl_b32 s88, s{S_WAVE}, 9\nv_add_u32 v{T+8}, s88, v{T+8}\nv_lshlrev_b32 v{T+5}, 5, v{T+2}\nv_add_u32 v{T+5}, s88, v{T+5}")
    k(f"s_lshl_b32 s88, s{S_RB1}, 2\ns_add_u32 s88, s88, s{S_WAVE}\ns_lshl_b32 s88, s88, {FS+4}\ns_add_u32 s88, s88, {F_H}\ns_lshl_b32 s89, s{S_HP}, {FS}\ns_add_u32 s89, s89, s88")
    k(f"v_cmp_lt_u32 vcc, 31, v{LANE}")
    k(f"s_waitcnt vmcnt({8 + n0})")
    for st in (8, 4, 2, 1):
        for j in range(st): k(f"v_pk_add_f32 {vr(G+2*j,2)}, {vr(G+2*j,2)}, {vr(G+2*(j+st),2)}")
    k(f"v_cvt_pk_bf16_f32 v{G+2}, v{G}, v{G+1}\nv_lshlrev_b32 v{G}, 16, v{G+2}\nv_and_b32 v{G+1}, 0xffff0000, v{G+2}")
    k(f"v_pk_add_f32 {vr(G+4,2)}, {vr(G,2)}, 1.0 op_sel_hi:[1,0]")
    k(f"v_cvt_pk_bf16_f32 v{G+2}, v{G+4}, v{G+5}\nv_lshlrev_b32 v{G+4}, 16, v{G+2}\nv_and_b32 v{G+5}, 0xffff0000, v{G+2}")
    k(f"v_cndmask_b32 v{G}, v{G}, v{G+4}, vcc\nv_cndmask_b32 v{G+1}, v{G+1}, v{G+5}, vcc")
    k(f"ds_write_b64 v{T+8}, {vr(G,2)} offset:{HL}")
    k("s_waitcnt lgkmcnt(0)")
    for h in range(2): k(f"ds_read_b128 {vr(M+4*h,4)}, v{T+5} offset:{HL+h*16}\nds_read_b128 {vr(M+8+4*h,4)}, v{T+5} offset:{HL+256+h*16}")
    for i in range(4):
        k(f"s_waitcnt vmcnt({3 - i + n0})")
        for d in range(4): k(f"v_lshlrev_b32 v{XF+8*i+2*d}, 16, v{XT_+4*i+d}\nv_and_b32 v{XF+8*i+2*d+1}, 0xffff0000, v{XT_+4*i+d}")
        for j in range(4): k(f"v_pk_add_f32 {vr(XF+8*i+2*j,2)}, {vr(XF+8*i+2*j,2)}, {vr(RS+2*i,2)} op_sel_hi:[1,0]")
        for j in range(4): k(f"v_pk_mul_f32 {vr(XF+8*i+2*j,2)}, {vr(XF+8*i+2*j,2)}, {vr(RS+2*i,2)} op_sel:[0,1] op_sel_hi:[1,1]")
    k("s_waitcnt lgkmcnt(0)")
    for i in range(4):
        for j in range(4): k(f"v_pk_fma_f32 {vr(XF+8*i+2*j,2)}, {vr(XF+8*i+2*j,2)}, {vr(M+8+2*j,2)}, {vr(M+2*j,2)}")
        for j in range(4): k(f"v_cvt_pk_bf16_f32 v{XR+4*i+j}, v{XF+8*i+2*j}, v{XF+8*i+2*j+1}")
        k(f"buffer_store_dwordx4 {vr(XR+4*i,4)}, v{VS}, {sr(SRD_T,4)}, s{86 + i//2} offen offset:{(i%2)*128} sc1")
    k.stamp("h computed")
    code_prefetch_setup(k, name)
    srd(k, SRD_D, P_WMOD, D * 6 * D * 2)
    k(f"v_mul_u32_u24 v{V_W}, 12288, v{T+1}\nv_lshl_add_u32 v{V_W}, v{T+2}, 4, v{V_W}")
    k(f"s_lshl_b32 s84, s{S_RB1}, 6\nv_add_u32 v{V_C}, s84, v{T+1}\nv_lshlrev_b32 v{V_C}, 1, v{V_C}")
    k(f"s_mul_i32 s86, s84, 12288\ns_lshl_b32 s87, s{S_HP}, 7\ns_add_u32 s86, s86, s87")
    k(f"s_lshl_b32 s94, s{S_WAVE}, 11\ns_add_u32 s{S_MB}, s86, s94\ns_add_u32 s{S_MB}, s{S_MB}, 4096")
    k(f"s_lshl_b32 s94, s{S_WAVE}, 16\ns_lshl_b32 s95, s{S_HP}, 12\ns_add_u32 s94, s94, s95\ns_lshl_b32 s95, s{S_RB1}, 8\ns_add_u32 s94, s94, s95\ns_add_u32 s{S_MO}, s94, {MP_B}")
    k.g3 = setup_gemm3_early(k, opt, LANE, 56)
    publish(k, 89, T)
    k.stamp("h published")
    if opt.get("m_touch", 0) == 2: touch(P_WQKV, 48, 254)
    k("s_barrier")
    g1.prefetch(k, opt.get("h_pre1", 12))
    for i in range(8): k(f"global_load_ushort {ar(A_UT+32+i,1)}, v{V_C}, s[{P_C}:{P_C+1}] offset:{i*16}")
    k(f"v_and_b32 v252, 15, v{LANE}\nv_lshlrev_b32 v252, {FS}, v252\ns_mov_b32 s93, s88")
    staged_wait(k, g1, opt.get("g1_T", 4), 252, 93, 253, one_prod)
    k.stamp("h ready")
    return g1

def setup_gemm24(k, which, opt, base):
    c = Sched(); common_gemm(c)
    K = 1024 if which == 2 else 3584
    NS, R = 4, opt.get(f"g{which}_R", 4)
    STAGE = 8448
    if isinstance(base, tuple): V_RD, V_DMA, V_TOK, LANE, L16, VT = base
    else:
        V_RD, V_DMA, V_TOK, LANE, L16, VT = base, base + 1, base + 2, base + 4, base + 5, base + 6
        lane_id(k, LANE)
        k(f"v_lshlrev_b32 v{L16}, 4, v{LANE}")
    c.LANE, c.L16 = LANE, L16
    hs = c.hs = opt.get("hsplit", 1) and opt.get("split", 1)
    order(c, k, opt, "g2", ["win", [8, 8], 0] if hs else ["win", [1, 1, 2, 4, 8], 1])
    if hs:
        c.w_off = lambda sd, kt: [T(x) for x in c.pos_txt(sd, kt)] + [T(f"s_mul_i32 s{sd}, s{sd}, {128*2048}")] + ([T(f"s_add_u32 s{sd}, s{sd}, {(32 - 8*128)*2048}")] if kt >= 8 else [])
        c.t_off = lambda sd, kt: [T(x) for x in c.pos_txt(sd, kt)] + [T(f"s_lshl_b32 s{sd}, s{sd}, 12")] + ([T(f"s_add_u32 s{sd}, s{sd}, {1024 - 8*4096}")] if kt >= 8 else [])
        c.sub_stride = 2048
    k(f"s_lshr_b32 s80, s{S_WAVE}, 1\ns_and_b32 s81, s{S_WAVE}, 1")
    k(f"s_lshl_b32 s82, s80, {6 if hs else 5}\ns_lshl_b32 s83, s81, 1\ns_add_u32 s82, s82, s83\ns_lshl_b32 s82, s82, 11")
    k(f"s_lshl_b32 s83, s{S_NT}, 7\ns_add_u32 s82, s82, s83")
    k(f"v_lshrrev_b32 v{VT}, 3, v{LANE}\nv_lshlrev_b32 v{VT}, 13, v{VT}")
    k(f"v_and_b32 v{VT+1}, 7, v{LANE}\nv_lshl_add_u32 v{VT}, v{VT+1}, 4, v{VT}")
    k(f"v_add_u32 v{V_DMA}, s82, v{VT}")
    k(f"v_bfe_u32 v{VT}, v{LANE}, 2, 2\nv_mul_u32_u24 v{VT}, 1056, v{VT}")
    k(f"v_lshrrev_b32 v{VT+1}, 4, v{LANE}\nv_lshl_add_u32 v{VT}, v{VT+1}, 7, v{VT}")
    k(f"v_and_b32 v{VT+1}, 3, v{LANE}\nv_lshl_add_u32 v{V_RD}, v{VT+1}, 3, v{VT}")
    k(f"v_add_u32 v{V_RD}, {L_R2}, v{V_RD}")
    k(f"s_lshl_b32 s82, s{S_RB2}, 3\ns_lshl_b32 s83, s{S_WAVE}, 1\ns_add_u32 s82, s82, s83\ns_mul_i32 s82, s82, {K//32*1024}")
    k(f"v_add_u32 v{V_TOK}, s82, v{L16}\nv_add_u32 v{V_TOK+1}, {K//32*1024}, v{V_TOK}")
    k(f"s_mul_i32 s{S_WB}, s80, 4224\ns_mul_i32 s82, s81, 2112\ns_add_u32 s{S_WB}, s{S_WB}, s82\ns_add_u32 s{S_WB}, s{S_WB}, {L_R2}")
    srd(k, SRD_W, P_WO if which == 2 else P_W2, K * D * 2)
    c.NB, c.TB, c.KS, c.SPK, c.KT, c.NS, c.R = 4, 2, 2, 1, K // 64, NS, R
    c.acc = lambda b, t: vr((b * 2 + t) * 4, 4)
    c.tf = lambda slot, ks, t: 64 + ((slot * 2 + ks) * 2 + t) * 4
    c.rd = lambda sl, b, sub, r: (V_RD, sl * STAGE + sub * 4224 + r * 512 + b * 32)
    c.slot_addr = lambda sl: sl * STAGE
    c.dma = [(V_DMA, 0, 0), (V_DMA, 1056, 2048)]
    c.v_tok = [V_TOK, V_TOK + 1]
    c.w_stride = 64 * 2048
    c.drop = opt.get(f"g{which}_drop", ())
    c.pro_units, c.ramp_rate, c.read_margin = opt.get(f"g{which}_pro", 12), opt.get(f"g{which}_ramp", 6), 4
    std_sched(c)
    return c

S_G80, S_G192 = 6, 7
def setup_gemm4p(k, opt, base):
    c = Sched(); common_gemm(c)
    HS = 8448; STAGE = 2 * HS
    L = 12; KT = 28; MAIN = KT - L
    V_RD, V_DE, V_DK, V_TOK, LANE, L16, VT = base, base + 2, base + 3, base + 4, base + 6, base + 7, base + 8
    c.LANE, c.L16, c.V_DE, c.V_DK, c.V_TOK = LANE, L16, V_DE, V_DK, V_TOK
    lane_id(k, LANE)
    k(f"v_lshlrev_b32 v{L16}, 4, v{LANE}")
    c.KT = KT
    order(c, k, opt, "g4", ["win", [4, 4, 8, 8, 4], 0])
    k(f"s_lshr_b32 s80, s{S_WAVE}, 1\ns_and_b32 s81, s{S_WAVE}, 1")
    k(f"s_mul_i32 s{S_G80}, s80, {80*2048}\ns_mul_i32 s{S_G192}, s80, {192*2048}")
    k("s_lshl_b32 s82, s80, 5\ns_lshl_b32 s83, s81, 1\ns_add_u32 s82, s82, s83")
    k(f"s_and_b32 s{S_TMP}, s{S_NT}, 1\ns_mul_i32 s83, s{S_TMP}, 1792\ns_add_u32 s82, s82, s83\ns_lshl_b32 s82, s82, 11")
    k(f"v_lshrrev_b32 v{VT}, 3, v{LANE}\nv_lshlrev_b32 v{VT}, 13, v{VT}")
    k(f"v_and_b32 v{VT+1}, 7, v{LANE}\nv_lshl_add_u32 v{VT}, v{VT+1}, 4, v{VT}")
    k(f"v_add_u32 v{VT}, s82, v{VT}")
    k(f"s_lshl_b32 s83, s{S_NT}, 7\nv_add_u32 v{V_DK}, s83, v{VT}\nv_xor_b32 v{V_DE}, 128, v{V_DK}")
    k(f"v_bfe_u32 v{VT}, v{LANE}, 2, 2\nv_mul_u32_u24 v{VT}, 1056, v{VT}")
    k(f"v_lshrrev_b32 v{VT+1}, 4, v{LANE}\nv_lshl_add_u32 v{VT}, v{VT+1}, 7, v{VT}")
    k(f"v_and_b32 v{VT+1}, 3, v{LANE}\nv_lshl_add_u32 v{V_RD+1}, v{VT+1}, 3, v{VT}")
    k(f"v_add_u32 v{V_RD}, {L_R2}, v{V_RD+1}")
    k(f"s_lshl_b32 s82, s{S_RB2}, 3\ns_lshl_b32 s83, s{S_WAVE}, 1\ns_add_u32 s82, s82, s83\ns_mul_i32 s82, s82, {112*1024}")
    k(f"s_mul_i32 s83, s{S_TMP}, {56*1024}\ns_add_u32 s82, s82, s83")
    k(f"v_add_u32 v{V_TOK}, s82, v{L16}\nv_add_u32 v{V_TOK+1}, {112*1024}, v{V_TOK}")
    k(f"s_mul_i32 s{S_WB}, s80, 4224\ns_mul_i32 s82, s81, 2112\ns_add_u32 s{S_WB}, s{S_WB}, s82")
    srd(k, SRD_W, P_W2, F * D * 2)
    c.drop = opt.get("g4_drop", ())
    V2E, V2K, V2T = 200, 201, 202
    c.V2 = (V2E, V2K, V2T)
    slot_addr = [L_R2, L_R2 + STAGE, 1024, 1024 + STAGE]
    def rd(sl, half, b, sub, r):
        off = half * HS + sub * 4224 + r * 512 + b * 32
        return (V_RD, (sl % 2) * STAGE + off) if sl < 2 else (V_RD + 1, slot_addr[sl] + off)
    NT_ = 2 * L
    tf = lambda kt, sub, t: 64 + (((kt * 2 + sub) % NT_) * 2 + t) * 4
    acc = lambda b, t: vr((b * 2 + t) * 4, 4)
    c.wf = lambda buf, j: (buf * 8 + j) * 4
    typ = lambda kt: "A" if kt < 16 else ("B1" if kt < 24 else "B2")
    if opt.get("g4_fast", 0):
        base_pos = c.pos_txt
        def pos2(sd, kt):
            o = base_pos(sd, kt)
            if kt >= 16: return o
            t_ = S_PTMP
            o += [f"s_and_b32 s{t_}, s{sd}, 1", f"s_and_b32 s{sd}, s{sd}, 6", f"s_lshl_b32 s{sd}, s{sd}, 1"]
            o += [f"s_mul_i32 s{t_}, s{t_}, 3"] if kt < 8 else [f"s_add_u32 s{t_}, s{t_}, 1"]
            o += [f"s_add_u32 s{sd}, s{sd}, s{t_}"]
            return o
        c.pos_txt = pos2
    def w_off(sd, kt):
        o = [T(x) for x in c.pos_txt(sd, kt)]
        if typ(kt) == "A": o.append(T(f"s_mul_i32 s{sd}, s{sd}, {112*2048}"))
        elif typ(kt) == "B1": o += [T(f"s_mul_i32 s{sd}, s{sd}, {224*2048}"), T(f"s_add_u32 s{sd}, s{sd}, {(64 - 16*224)*2048}"), T(f"s_add_u32 s{sd}, s{sd}, s{S_G80}")]
        else: o += [T(f"s_mul_i32 s{sd}, s{sd}, {448*2048}"), T(f"s_add_u32 s{sd}, s{sd}, {(96 - 24*448)*2048}"), T(f"s_add_u32 s{sd}, s{sd}, s{S_G192}")]
        return o
    halves = [[("E", kt), ("K", kt)] for kt in range(MAIN)]
    halves += [[("E", MAIN + 2 * j), ("E", MAIN + 2 * j + 1)] for j in range(L // 2)]
    halves += [[("K", MAIN + 2 * j), ("K", MAIN + 2 * j + 1)] for j in range(L // 2)]
    cur = None; flip = 0
    for st, hv in enumerate(halves):
        us = []
        for h, (kind, kt) in enumerate(hv):
            pre = []
            if cur != kt:
                flip ^= 1; cur = kt; pre = w_off(c.s_kw + flip, kt)
            vo = (V2E if kind == 'E' else V2K) if typ(kt) == "B2" else (V_DE if kind == 'E' else V_DK)
            for i, goff in enumerate((0, 2048)):
                us.append((pre if i == 0 else []) + [T(f"s_add_u32 m0, s{S_WB}, {slot_addr[st % 4] + h * HS + i * 1056 - goff}"),
                          VM(f"buffer_load_dwordx4 v{vo}, {sr(SRD_W,4)}, s{c.s_kw + flip} offen" + (f" offset:{goff}" if goff else "") + " lds", ("dma", st))])
        c.stage_units[st] = us; c.stage_slot[st] = st % 4
        for j in range(2):
            frags = []; toks = []
            parts = [(0, j), (1, j)] if st < MAIN else [(j, 0), (j, 1)]
            for h, sub in parts:
                kind, kt = hv[h]
                if (kt, sub) not in toks: toks.append((kt, sub))
                for b in range(4):
                    va, o0 = rd(st % 4, h, b, sub, 0); _, o1 = rd(st % 4, h, b, sub, 1)
                    frags.append((va, o0, o1, [(acc(b + (0 if kind == 'E' else 4), t), tf(kt, sub, t)) for t in range(2)]))
            c.steps.append(dict(frags=frags, stages=[st], toks=toks))
    for kt in range(KT):
        sd = c.s_kt + kt % 2
        for sub in range(2):
            us = []
            for t in range(2):
                g = []
                if sub == 0 and t == 0:
                    g = [T(x) for x in c.pos_txt(sd, kt)]
                    if typ(kt) == "A": g.append(T(f"s_mul_i32 s{sd}, s{sd}, 3584"))
                    elif typ(kt) == "B1": g += [T(f"s_mul_i32 s{sd}, s{sd}, 7168"), T(f"s_add_u32 s{sd}, s{sd}, {2048 - 16*7168}")]
                    else: g += [T(f"s_mul_i32 s{sd}, s{sd}, 14336"), T(f"s_add_u32 s{sd}, s{sd}, {3072 - 24*14336}")]
                key = ("tok", (kt, sub))
                if typ(kt) == "B2":
                    if sub == 1 and t == 0: g.append(T(f"s_add_u32 s{sd}, s{sd}, 7168"))
                    g.append(VM(f"buffer_load_dwordx2 {ar(tf(kt, sub, t),2)}, v{V2T+t}, {sr(SRD_T,4)}, s{sd} offen sc1", key))
                    g.append(VM(f"buffer_load_dwordx2 {ar(tf(kt, sub, t)+2,2)}, v{V2T+t}, {sr(SRD_T,4)}, s{sd} offen offset:3584 sc1", key))
                else:
                    g.append(VM(f"buffer_load_dwordx4 {ar(tf(kt, sub, t),4)}, v{V_TOK+t}, {sr(SRD_T,4)}, s{sd} offen offset:{sub*(1024 if typ(kt) == 'A' else 3584)} sc1", key))
                us.append(g)
            c.tok_units[(kt, sub)] = us; c.tok_slot[(kt, sub)] = (kt * 2 + sub) % NT_
    c.pro_units, c.ramp_rate, c.read_margin, c.lookahead = opt.get("g4_pro", 12), opt.get("g4_ramp", 6), 4, opt.get("g4_la", 7)
    c.MAIN, c.L = MAIN, L
    return c

def phase_gemm4p(k, c, opt):
    LANE, L16 = c.LANE, c.L16
    VT = 72
    srd(k, SRD_T, P_WS, S * F * 2, WS_HH)
    srd(k, SRD_A, P_OUT, S * D * 2)
    srd(k, SRD_B, P_WS, 8 << 20, WS_P4)
    V_G, V_GA, V_XA, V_X, IMP, VF = 96, 76, 77, 80, 128, 78
    for j in range(16): k(f"v_accvgpr_read_b32 v{V_X+j}, a{A_X1+j}")
    k(f"v_and_b32 v{VT}, 15, v{LANE}\nv_lshlrev_b32 v{VT}, {FS}, v{VT}")
    k(f"s_lshl_b32 s84, s{S_RB2}, 1\ns_lshr_b32 s85, s{S_WAVE}, 1\ns_add_u32 s84, s84, s85\ns_lshl_b32 s84, s84, {FS+5}\ns_add_u32 s84, s84, {F_HH}")
    k(f"s_and_b32 s85, s{S_NT}, 1\ns_lshl_b32 s85, s85, {FS+4}\ns_add_u32 s84, s84, s85")
    k(f"v_mov_b32 v252, v{VT}")
    c.tile_of = lambda key: key[0]
    k(f"s_add_u32 s85, s84, {F_HB - F_HH}")
    staged_wait(k, c, opt.get("g4_T", 6), 252, 84, 253, one_prod, pub=(94, 204))
    add_gate(k, c, 16, f"buffer_load_dword v253, v252, {sr(SRD_F,4)}, s85 offen sc1", 253)
    k.stamp("hh ready")
    p = Txt()
    p(f"v_lshrrev_b32 v{VT}, 4, v{LANE}\nv_lshlrev_b32 v{V_GA}, 4, v{VT}\nv_add_u32 v{V_GA}, {L_MV}, v{V_GA}")
    p(f"v_and_b32 v{VT+1}, 15, v{LANE}\nv_lshlrev_b32 v{VT+1}, 11, v{VT+1}")
    p(f"v_and_b32 v{VT+2}, 1, v{VT}\nv_lshl_add_u32 v{VT+1}, v{VT+2}, 5, v{VT+1}")
    p(f"v_lshrrev_b32 v{VT+2}, 1, v{VT}\nv_lshl_add_u32 v{V_XA}, v{VT+2}, 4, v{VT+1}")
    p(f"s_lshl_b32 s86, s{S_RB2}, 3\ns_lshl_b32 s87, s{S_WAVE}, 1\ns_add_u32 s86, s86, s87\ns_lshl_b32 s86, s86, 15\ns_lshl_b32 s87, s{S_NT}, 7\ns_add_u32 s86, s86, s87\ns_add_u32 s87, s86, 32768")
    p(f"s_lshl_b32 s88, s{S_RB2}, 4\ns_add_u32 s88, s88, s{S_NT}\ns_lshl_b32 s88, s88, 2\ns_add_u32 s88, s88, s{S_WAVE}")
    p("s_xor_b32 s89, s88, 4")
    p(f"s_lshl_b32 s90, s88, 13\ns_add_u32 s91, s90, 4096\ns_lshl_b32 s92, s89, 13\ns_add_u32 s93, s92, 4096")
    p(f"s_lshl_b32 s88, s88, {FS}\ns_add_u32 s88, s88, {F_P4}\ns_lshl_b32 s89, s89, {FS}\ns_add_u32 s89, s89, {F_P4}")
    V2E, V2K, V2T = c.V2
    p(f"v_lshrrev_b32 v{VT}, 5, v{LANE}\nv_mul_u32_u24 v{VT}, {96*2048}, v{VT}\nv_add_u32 v{V2E}, v{c.V_DE}, v{VT}\nv_add_u32 v{V2K}, v{c.V_DK}, v{VT}")
    p(f"v_lshrrev_b32 v{VT}, 1, v{L16}\nv_sub_u32 v{V2T}, v{c.V_TOK}, v{VT}\nv_sub_u32 v{V2T+1}, v{c.V_TOK+1}, v{VT}")
    p(f"v_mov_b32 v{VT}, 1\nv_mov_b32 v{VT+1}, 0")
    c.pre_loop_txt = p.L
    N = len(c.steps); p2 = N - c.L
    for st_ in opt.get("cp4", []): c.late.setdefault(st_, []).extend(code_prefetch_txt(k.name, L16, 254, 80, junk="v240"))
    ex = [VM(f"buffer_store_dwordx4 {vr(4*j,4)}, v{L16}, {sr(SRD_B,4)}, s{90 + j//4} offen offset:{(j%4)*1024} sc1", ("exp", 0)) for j in range(8)]
    ne_ = opt.get("g4_ne", 2)
    for j in range(ne_): c.late[p2 + 1 + j] = ex[j * 8 // ne_:(j + 1) * 8 // ne_]
    c.late[p2 + opt.get("g4_fs", 6)] = [WVM([("exp", 0)]), f"buffer_store_dword v{VT}, v{VT+1}, {sr(SRD_F,4)}, s88 offen sc1"]
    c.late[N - 3] = [VM(f"buffer_load_dword v{VF}, v{VT+1}, {sr(SRD_F,4)}, s89 offen sc1", ("pf", 0))]
    c.last_reads = [f"ds_read_b128 {vr(V_G+4*b,4)}, v{V_GA} offset:{768+b*64}" for b in range(4)]
    m = Txt(); m.label = k.label
    okl = k.label("pok")
    m(f"v_cmp_eq_u32 vcc, 0, v{VF}\ns_cmp_eq_u64 vcc, 0\ns_cbranch_scc1 {okl}")
    spin(m, [f"buffer_load_dword v{VF}, v{VT+1}, {sr(SRD_F,4)}, s89 offen sc1"], [VF], 0)
    m(f"{okl}:")
    c.late[N - 1] = [WVM([("pf", 0)]), T("\n".join(m.L))] + [f"buffer_load_dwordx4 {vr(IMP+4*j,4)}, v{L16}, {sr(SRD_B,4)}, s{92 + j//4} offen offset:{(j%4)*1024} sc1" for j in range(8)]
    c.run(k)
    k.stamp("g4 loop done")
    A = lambda b, t: 32 + (b * 2 + t) * 4
    XT = 112
    XF = 160
    for j in range(16): k(f"v_lshlrev_b32 v{XF+2*j}, 16, v{V_X+j}\nv_and_b32 v{XF+2*j+1}, 0xffff0000, v{V_X+j}")
    k("s_waitcnt vmcnt(0) lgkmcnt(0)")
    for t in range(2):
        for b in range(4):
            for h in range(2): k(f"v_pk_add_f32 {vr(A(b,t)+2*h,2)}, {vr(A(b,t)+2*h,2)}, {vr(IMP+(b*2+t)*4+2*h,2)}")
            for h in range(2): k(f"v_pk_fma_f32 {vr(A(b,t)+2*h,2)}, {vr(A(b,t)+2*h,2)}, {vr(V_G+4*b+2*h,2)}, {vr(XF+(t*4+b)*4+2*h,2)}")
        PK = XT + t * 8
        for b in range(4): k(f"v_cvt_pk_bf16_f32 v{PK+2*b}, v{A(b,t)}, v{A(b,t)+1}\nv_cvt_pk_bf16_f32 v{PK+2*b+1}, v{A(b,t)+2}, v{A(b,t)+3}")
        k("s_nop 1")
        for s_ in range(2): k(f"v_permlane16_swap_b32 v{PK+4*s_}, v{PK+4*s_+2}\nv_permlane16_swap_b32 v{PK+4*s_+1}, v{PK+4*s_+3}")
        for s_ in range(2): k(f"buffer_store_dwordx4 {vr(PK+4*s_,4)}, v{V_XA}, {sr(SRD_A,4)}, s{86+t} offen offset:{s_*64}")

def phase_gemm1(k, c, opt):
    LANE, L16, VT = c.LANE, c.L16, c.VT
    PHK, VV, SH, UTX = 0, 34816, 114688, 126976
    A_PH = 160
    p = Txt()
    srd(p, SRD_A, P_WPHI, H * 2048)
    srd(p, SRD_B, P_WS, 2 << 20, WS_KVP)
    srd(p, SRD_C, P_WS, 128 << 10, WS_ZP)
    A_PW, A_VW, A_PR, A_VR, A_WR = 110, 111, 112, 113, 114
    p(f"s_lshr_b32 s80, s{S_WAVE}, 1\ns_and_b32 s81, s{S_WAVE}, 1")
    p(f"v_and_b32 v{VT}, 15, v{LANE}\ns_lshl_b32 s82, s{S_WAVE}, 5\nv_add_u32 v{VT}, s82, v{VT}")
    p(f"v_lshrrev_b32 v{VT+1}, 4, v{LANE}\nv_lshlrev_b32 v{VT+1}, 3, v{VT+1}")
    p(f"v_mul_u32_u24 v{A_PW}, 136, v{VT}\nv_add_u32 v{A_PW}, v{A_PW}, v{VT+1}")
    p(f"v_mul_u32_u24 v{A_VW}, 72, v{VT}\nv_add_u32 v{A_VW}, v{A_VW}, v{VT+1}")
    p(f"v_lshrrev_b32 v{VT}, 2, v{LANE}\nv_and_b32 v{VT+1}, 3, v{LANE}\nv_lshlrev_b32 v{VT+1}, 3, v{VT+1}")
    p(f"s_mul_i32 s82, s80, 17408\ns_lshl_b32 s83, s81, 6\ns_add_u32 s82, s82, s83")
    p(f"v_mul_u32_u24 v{A_PR}, 136, v{VT}\nv_add_u32 v{A_PR}, v{A_PR}, v{VT+1}\nv_add_u32 v{A_PR}, s82, v{A_PR}")
    p(f"s_mul_i32 s82, s80, 9216")
    p(f"v_mul_u32_u24 v{A_VR}, 72, v{VT}\nv_add_u32 v{A_VR}, v{A_VR}, v{VT+1}\nv_add_u32 v{A_VR}, s82, v{A_VR}")
    p(f"v_lshl_add_u32 v{A_WR}, v{VT}, 6, v{VT+1}\nv_add_u32 v{A_WR}, {L_WPH}, v{A_WR}")
    ONES, SEL = 116, 120
    for j in range(4): p(f"v_mov_b32 v{ONES+j}, 0x3f803f80")
    p(f"v_bfe_u32 v{VT}, v{LANE}, 2, 2\nv_lshrrev_b32 v{VT+1}, 4, v{LANE}")
    p(f"v_cmp_eq_u32 vcc, v{VT}, v{VT+1}")
    p(f"v_and_b32 v{VT}, 1, v{LANE}\nv_lshlrev_b32 v{VT}, 4, v{VT}\nv_mov_b32 v{VT+1}, 0x3f80\nv_lshlrev_b32 v{VT+1}, v{VT}, v{VT+1}")
    p(f"v_cndmask_b32 v{VT+1}, 0, v{VT+1}, vcc")
    p(f"v_and_b32 v{VT}, 2, v{LANE}\nv_cmp_eq_u32 vcc, 0, v{VT}")
    for j in (0, 1, 4, 5): p(f"v_mov_b32 v{SEL+j}, 0")
    p(f"v_cndmask_b32 v{SEL+2}, 0, v{VT+1}, vcc\nv_cndmask_b32 v{SEL+3}, v{VT+1}, 0, vcc")
    p(f"s_mov_b32 s94, {LOG2E!r}\ns_mov_b32 s95, {LOG2E!r}")
    p(f"s_lshl_b32 s84, s{S_HP}, 12\ns_lshl_b32 s85, s{S_WAVE}, 10\ns_add_u32 s84, s84, s85\ns_add_u32 s85, s85, {L_WPH}")
    c.pre_loop_txt = p.L
    c.late = {4: ["s_mov_b32 m0, s85", f"buffer_load_dwordx4 v{L16}, {sr(SRD_A,4)}, s84 offen lds"]}
    if opt.get("cpf", 1): c.late[22] = code_prefetch_txt(k.name, L16, 254, 80)
    ml = modb_loads(S_MB, 115, 109)
    ms = opt.get("modb_steps", [16] * 8)
    if opt.get("modb_front", 0):
        lb = k.label("skw0")
        c.late.setdefault(ms[0], []).append(T("\n".join([f"s_cmp_lg_u32 s{S_WAVE}, 0", f"s_cbranch_scc1 {lb}"] + [x for g in ml for x in g] + [f"{lb}:"])))
        ml = []
    else:
        for st_, g in zip(ms, ml): c.late.setdefault(st_, []).extend(g)
        ml = ml[len(ms):]
    c.last_reads = [f"ds_read_b64_tr_b16 {ar(A_PH+(hh*2+fb)*4+2*r,2)}, v{A_WR} offset:{hh*2048+r*1024+fb*32}" for hh in range(2) for fb in range(2) for r in range(2)]
    c.run(k)
    k.stamp("g1 loop done")
    A = lambda b, t: (b * 2 + t) * 4
    BF, P1, P2, MX, MN, EK = 126, 142, 174, 206, 214, 222
    groups = [(hh, t) for hh in range(2) for t in range(2)]
    def fm_part1(seg):
        for g, (hh, t) in enumerate(groups):
            for db in range(2):
                a = A(seg * 4 + hh * 2 + db, t)
                k(f"v_cvt_pk_bf16_f32 v{BF+g*4+db*2}, v{a}, v{a+1}\nv_cvt_pk_bf16_f32 v{BF+g*4+db*2+1}, v{a+2}, v{a+3}")
        k("s_nop 1")
        for g, (hh, t) in enumerate(groups):
            for fb in range(2):
                k(f"{MF} {vr(P1+g*8+fb*4,4)}, {ar(A_PH+(hh*2+fb)*4,4)}, {vr(BF+g*4,4)}, 0")
    def fm_part2():
        for op3, op2, M in (("v_max3_f32", "v_max_f32", MX), ("v_min3_f32", "v_min_f32", MN)):
            for g in range(4):
                b = P1 + g * 8
                k(f"{op3} v{M+2*g}, v{b}, v{b+1}, v{b+2}\n{op3} v{M+2*g}, v{M+2*g}, v{b+3}, v{b+4}\n{op3} v{M+2*g}, v{M+2*g}, v{b+5}, v{b+6}\n{op2} v{M+2*g}, v{M+2*g}, v{b+7}")
            treduce4(k, op2, [M + 2 * g for g in range(4)])
        for g in range(4):
            k(f"v_mul_f32 v{MX+2*g}, {-LOG2E!r}, v{MX+2*g}\nv_mul_f32 v{MN+2*g}, {LOG2E!r}, v{MN+2*g}")
    def fm_part3(E):
        for g in range(4):
            for j in range(4):
                b = g * 8 + 2 * j
                k(f"v_pk_fma_f32 {vr(P2+b,2)}, {vr(P1+b,2)}, s[94:95], {vr(MN+2*g,2)} op_sel_hi:[1,1,0] neg_lo:[1,0,0] neg_hi:[1,0,0]")
                k(f"v_pk_fma_f32 {vr(P1+b,2)}, {vr(P1+b,2)}, s[94:95], {vr(MX+2*g,2)} op_sel_hi:[1,1,0]")
            for j in range(8): k(f"v_exp_f32 v{P1+g*8+j}, v{P1+g*8+j}")
            for j in range(8): k(f"v_exp_f32 v{P2+g*8+j}, v{P2+g*8+j}")
            k("s_nop 0")
            for sg, PP in enumerate((P1, P2)):
                for j in range(4): k(f"v_cvt_pk_bf16_f32 v{E+(g*2+sg)*4+j}, v{PP+g*8+2*j}, v{PP+g*8+2*j+1}")
    for g in ml:
        for x in g: k(x)
    k("s_waitcnt lgkmcnt(0)\ns_nop 7")
    fm_part1(1)
    k("s_barrier")
    mark0 = len(k.L)
    for g, (hh, t) in enumerate(groups):
        for db in range(2):
            a = A(8 + hh * 2 + db, t)
            k(f"v_cvt_pk_bf16_f32 v{a}, v{a}, v{a+1}\nv_cvt_pk_bf16_f32 v{a+1}, v{a+2}, v{a+3}")
            k(f"ds_write_b64 v{A_VW}, {vr(a,2)} offset:{VV + hh*9216 + t*16*72 + db*32}")
    fm_part2()
    fm_part3(EK)
    SM = 32
    k("s_nop 1")
    for i in range(8): k(f"{MF} {vr(SM+4*i,4)}, {vr(ONES,4)}, {vr(EK+4*i,4)}, 0")
    k("s_nop 7")
    for i in range(8): k(f"v_rcp_f32 v{SM+4*i}, v{SM+4*i}")
    for g, (hh, t) in enumerate(groups):
        for sg, PP in enumerate((P1, P2)):
            for j in range(4):
                k(f"v_pk_mul_f32 {vr(PP+g*8+2*j,2)}, {vr(PP+g*8+2*j,2)}, {vr(SM+(g*2+sg)*4,2)} op_sel_hi:[1,0]")
            for fb in range(2):
                b = PP + g * 8 + fb * 4
                k(f"v_cvt_pk_bf16_f32 v{b}, v{b}, v{b+1}\nv_cvt_pk_bf16_f32 v{b+1}, v{b+2}, v{b+3}")
                k(f"ds_write_b64 v{A_PW}, {vr(b,2)} offset:{PHK + hh*17408 + t*16*136 + sg*64 + fb*32}")
    sprinkle(k, mark0, g3_early_units(k.g3, opt.get("g3_e1", 14), 254))
    k("s_waitcnt lgkmcnt(0)\ns_barrier")
    for s_ in range(4):
        for r in range(2):
            for fb in range(2): k(f"ds_read_b64_tr_b16 {ar(s_*16+fb*4+2*r,2)}, v{A_PR} offset:{PHK + (32*s_+16*r)*136 + fb*32}")
            for db in range(2): k(f"ds_read_b64_tr_b16 {ar(s_*16+8+db*4+2*r,2)}, v{A_VR} offset:{VV + (32*s_+16*r)*72 + db*32}")
    fm_part1(0)
    KV, ZZ = 64, 80
    for s_ in range(4):
        k(f"s_waitcnt lgkmcnt({min(15, 24 - 8*s_)})")
        for fb in range(2):
            for db in range(2):
                d = vr(KV + (db * 2 + fb) * 4, 4)
                k(f"{MF} {d}, {ar(s_*16+fb*4,4)}, {ar(s_*16+8+db*4,4)}, {'0' if s_ == 0 else d}")
            d = vr(ZZ + fb * 4, 4)
            k(f"{MF} {d}, {ar(s_*16+fb*4,4)}, {vr(ONES,4)}, {'0' if s_ == 0 else d}")
    k(f"s_lshl_b32 s82, s{S_HP}, 2\ns_add_u32 s82, s82, s{S_WAVE}")
    k("s_lshl_b32 s83, s82, 15")
    k(f"s_lshl_b32 s84, s{S_RB1}, 10\ns_add_u32 s84, s84, s83\ns_add_u32 s85, s84, 16384")
    k("s_lshl_b32 s90, s82, 11")
    k(f"s_lshl_b32 s91, s82, {FS+4}\ns_add_u32 s91, s91, {F_KV}\ns_lshl_b32 s92, s{S_RB1}, {FS}\ns_add_u32 s92, s92, s91")
    k(f"v_and_b32 v{VT}, 15, v{LANE}\nv_cmp_eq_u32 vcc, s{S_RB1}, v{VT}")
    k("s_nop 2")
    for db in range(2):
        for j in range(4): k(f"v_cvt_pk_bf16_f32 v{88+db*4+j}, v{KV+db*8+2*j}, v{KV+db*8+2*j+1}")
    k(f"buffer_store_dwordx4 {vr(88,4)}, v{L16}, {sr(SRD_B,4)}, s84 offen sc1")
    k(f"buffer_store_dwordx4 {vr(92,4)}, v{L16}, {sr(SRD_B,4)}, s85 offen sc1")
    k("s_and_saveexec_b64 s[96:97], vcc")
    k(f"buffer_store_dwordx4 {vr(ZZ,4)}, v{L16}, {sr(SRD_C,4)}, s90 offen sc1")
    k(f"buffer_store_dwordx4 {vr(ZZ+4,4)}, v{L16}, {sr(SRD_C,4)}, s90 offen offset:1024 sc1")
    k("s_mov_b64 exec, s[96:97]")
    k.stamp("kv stored")
    fm_part2()
    publish(k, 92, VT + 1)
    k.stamp("kv published")
    k("s_mov_b32 s93, s83")
    g2 = setup_gemm24(k, 2, opt, 96)
    k("s_mov_b32 s83, s93")
    g2.prefetch(k, 8)
    fm_part3(EK)
    k(f"v_lshlrev_b32 v{VT}, {FS}, v{VT}")
    wait_flags(k, [(VT, 91, 1)], VT + 1)
    k.stamp("kv ready")
    k(f"buffer_load_dwordx4 {vr(ZZ,4)}, v{L16}, {sr(SRD_C,4)}, s90 offen sc1")
    k(f"buffer_load_dwordx4 {vr(ZZ+4,4)}, v{L16}, {sr(SRD_C,4)}, s90 offen offset:1024 sc1")
    for i in range(32):
        if i % 4 == 0 and i: k("s_add_u32 s83, s83, 4096")
        k(f"buffer_load_dwordx4 {ar(4*i,4)}, v{L16}, {sr(SRD_B,4)}, s83 offen offset:{(i%4)*1024} sc1")
    srd(k, SRD_T, P_WS, S * D * 2, WS_O)
    k("s_waitcnt vmcnt(32)")
    for sh in (8, 4, 2, 1):
        for j in range(8): k(f"v_add_f32_dpp v{ZZ+j}, v{ZZ+j}, v{ZZ+j} row_ror:{sh} row_mask:0xf bank_mask:0xf")
    k(f"v_and_b32 v{VT+1}, 1, v{LANE}\nv_cmp_eq_u32 vcc, 0, v{VT+1}")
    for j in range(4): k(f"v_cvt_pk_bf16_f32 v{BF+8+j}, v{ZZ+2*j}, v{ZZ+2*j+1}")
    for j in range(4): k(f"v_cndmask_b32 v{BF+8+j}, v{ONES}, v{BF+8+j}, vcc")
    for i in range(32):
        db, pp = divmod(i, 16)
        if i % 2 == 0: k(f"s_waitcnt vmcnt({30 - i})")
        for fb in range(2):
            d = vr(KV + (db * 2 + fb) * 4, 4)
            k(f"{MF} {d}, {vr(SEL + (2 if fb == 0 else 0), 4)}, {ar(4*i,4)}, {'0' if pp == 0 else d}")
    k(f"s_mul_i32 s82, s{S_WAVE}, 3072\ns_add_u32 s82, s82, {SH}")
    k(f"v_add_u32 v{VT+1}, s82, v{L16}\nv_add_u32 v{VT+2}, {SH}, v{L16}")
    k("s_nop 6")
    for db in range(2):
        for j in range(4): k(f"v_cvt_pk_bf16_f32 v{BF+db*4+j}, v{KV+db*8+2*j}, v{KV+db*8+2*j+1}")
    for j in range(3): k(f"ds_write_b128 v{VT+1}, {vr(BF+4*j,4)} offset:{j*1024}")
    k("s_waitcnt lgkmcnt(0)\ns_barrier")
    for i in range(12): k(f"ds_read_b128 {ar(4*i,4)}, v{VT+2} offset:{i*1024}")
    k(f"s_lshl_b32 s82, s{S_RB1}, 3\ns_lshl_b32 s83, s{S_WAVE}, 1\ns_add_u32 s82, s82, s83\ns_lshl_b32 s82, s82, 15")
    k(f"s_lshl_b32 s83, s{S_HP}, 11\ns_add_u32 s82, s82, s83\ns_add_u32 s83, s82, 0x8000")
    k(f"s_lshl_b32 s84, s{S_RB1}, 2\ns_add_u32 s84, s84, s{S_WAVE}\ns_lshl_b32 s84, s84, {FS+4}\ns_lshl_b32 s85, s{S_HP}, {FS}\ns_add_u32 s84, s84, s85\ns_add_u32 s84, s84, {F_O}")
    k("s_waitcnt lgkmcnt(0)")
    for g, (hh, t) in enumerate(groups):
        for sg in range(2):
            for j in range(3):
                k(f"{MF} {vr((g*2+sg)*12+4*j,4)}, {ar(((hh*2+sg)*3+j)*4,4)}, {vr(EK+(g*2+sg)*4,4)}, 0")
    k("s_nop 7")
    for g, (hh, t) in enumerate(groups):
        n1, n2 = g * 24, g * 24 + 12
        D1, S1, D2, S2 = n1 + 8, n1 + 9, n2 + 8, n2 + 9
        k(f"v_mul_f32 v{n1+10}, v{S1}, v{S2}")
        k(f"v_mul_f32 v{n1+10}, 0x358637bd, v{n1+10}")
        k(f"v_fmac_f32 v{n1+10}, v{D1}, v{S2}\nv_fmac_f32 v{n1+10}, v{D2}, v{S1}")
        k(f"v_rcp_f32 v{n1+10}, v{n1+10}")
        k("s_nop 0")
        k(f"v_mul_f32 v{D1}, v{S2}, v{n1+10}\nv_mul_f32 v{D2}, v{S1}, v{n1+10}")
        for j in range(4): k(f"v_pk_mul_f32 {vr(n1+2*j,2)}, {vr(n1+2*j,2)}, {vr(D1,2)} op_sel_hi:[1,0]")
        for j in range(4): k(f"v_pk_fma_f32 {vr(n1+2*j,2)}, {vr(n2+2*j,2)}, {vr(D2,2)}, {vr(n1+2*j,2)} op_sel_hi:[1,0,1]")
        for j in range(4): k(f"v_cvt_pk_bf16_f32 v{n2+j}, v{n1+2*j}, v{n1+2*j+1}")
        k(f"buffer_store_dwordx4 {vr(n2,4)}, v{L16}, {sr(SRD_T,4)}, s{82+t} offen offset:{hh*1024} sc1")
    k.stamp("o stored")
    CU, AU, WW, TT = 128, 144, 152, 156
    for i in range(8): k(f"v_accvgpr_read_b32 v{CU+2*i}, a{A_UT+32+i}")
    silu_block(k, [CU + 2 * i for i in range(8)])
    mko = len(k.L)
    g2.V_X = 48
    srd(k, SRD_A, P_X, S * D * 2)
    V_XA = 47
    k(f"v_lshrrev_b32 v{VT+1}, 4, v{LANE}")
    k(f"v_and_b32 v{VT+2}, 15, v{LANE}\nv_lshlrev_b32 v{VT+2}, 11, v{VT+2}\nv_lshl_add_u32 v{V_XA}, v{VT+1}, 3, v{VT+2}")
    k(f"s_lshl_b32 s82, s{S_RB2}, 3\ns_lshl_b32 s83, s{S_WAVE}, 1\ns_add_u32 s82, s82, s83\ns_lshl_b32 s82, s82, 15\ns_lshl_b32 s83, s{S_NT}, 7\ns_add_u32 s82, s82, s83\ns_add_u32 s83, s82, 32768")
    for t in range(2):
        for b in range(4):
            k(f"buffer_load_dwordx2 {vr(g2.V_X+(t*4+b)*2,2)}, v{V_XA}, {sr(SRD_A,4)}, s{82+t} offen offset:{b*32}")
    publish(k, 84, VT + 2, mko)
    k.stamp("o published")
    mark1 = len(k.L)
    for j in range(8): k(f"v_mov_b32 v{AU+j}, 0")
    for i in range(8):
        for d in range(4): k(f"v_accvgpr_read_b32 v{WW+d}, a{A_UT+4*i+d}")
        for d in range(4):
            k(f"v_lshlrev_b32 v{TT}, 16, v{WW+d}\nv_and_b32 v{TT+1}, 0xffff0000, v{WW+d}")
            k(f"v_pk_fma_f32 {vr(AU+2*d,2)}, {vr(TT,2)}, {vr(CU+2*i,2)}, {vr(AU+2*d,2)} op_sel_hi:[1,0,1]")
    k("s_nop 1")
    for j in range(4): k(f"v_permlane32_swap_b32 v{AU+j}, v{AU+j+4}")
    k("s_nop 1")
    for j in range(4): k(f"v_add_f32 v{AU+j}, v{AU+j}, v{AU+j+4}")
    k("s_nop 1")
    for j in range(2): k(f"v_permlane16_swap_b32 v{AU+j}, v{AU+j+2}")
    k("s_nop 1")
    for j in range(2): k(f"v_add_f32 v{AU+j}, v{AU+j}, v{AU+j+2}")
    k("s_nop 1")
    for j in range(2): k(f"v_add_f32_dpp v{AU+j}, v{AU+j}, v{AU+j} row_ror:8 row_mask:0xf bank_mask:0xf")
    sprinkle(k, mark1, g3_early_units(k.g3, opt.get("g3_e2", 7), 254), skip=0)
    k(f"v_and_b32 v{TT}, 7, v{LANE}\nv_lshlrev_b32 v{TT}, 5, v{TT}\nv_lshrrev_b32 v{TT+1}, 5, v{LANE}\nv_lshl_add_u32 v{TT}, v{TT+1}, 4, v{TT}")
    k(f"v_bfe_u32 v{TT+1}, v{LANE}, 4, 1\nv_lshl_add_u32 v{TT}, v{TT+1}, 3, v{TT}")
    srd(k, SRD_D, P_WS, MP_BYTES, WS_MODP)
    k(f"v_or_b32 v{AU}, 1, v{AU}\nv_or_b32 v{AU+1}, 1, v{AU+1}")
    k(f"buffer_store_dwordx2 {vr(AU,2)}, v{TT}, {sr(SRD_D,4)}, s{S_MO} offen sc1")
    return g2

A_PARK = 224
S3_SRD, S3_WB, S3_KW = 64, 68, 69
def setup_gemm3_early(k, opt, LANE, VT):
    c = Sched(); common_gemm(c)
    NS, R = 4, 8
    STAGE = 28672
    V_RD, V_DMA, V_TOK = 224, 226, 233
    c.V_RD, c.V_DMA, c.V_TOK, c.LANE, c.L16, c.VT = V_RD, V_DMA, V_TOK, 237, 238, 248
    c.srd_w, c.s_wbase, c.s_kw = S3_SRD, S3_WB, S3_KW
    order(c, k, opt, 'g3', ['win', [4, 4, 8], 0])
    k(f"s_lshr_b32 s80, s{S_WAVE}, 1\ns_and_b32 s81, s{S_WAVE}, 1")
    k(f"s_mul_i32 s83, s80, {32*7168}\ns_mul_i32 s{S_TMP}, s{S_FT}, 224\ns_add_u32 s83, s83, s{S_TMP}")
    for i in range(7):
        k(f"v_add_u32 v{VT+2}, {i*64}, v{LANE}")
        k(f"v_mul_u32_u24 v{VT+3}, 4682, v{VT+2}")
        k(f"v_lshrrev_b32 v{VT+3}, 16, v{VT+3}")
        k(f"v_mul_u32_u24 v{VT+4}, 14, v{VT+3}")
        k(f"v_sub_u32 v{VT+4}, v{VT+2}, v{VT+4}")
        k(f"v_mul_u32_u24 v{VT+3}, 7168, v{VT+3}")
        k(f"v_lshl_add_u32 v{VT+3}, v{VT+4}, 4, v{VT+3}")
        k(f"v_add_u32 v{VT+3}, s83, v{VT+3}")
        k(f"v_accvgpr_write_b32 a{A_PARK+i}, v{VT+3}")
    k(f"s_mul_i32 s{S3_WB}, s81, 14336\ns_mul_i32 s82, s80, 7168\ns_add_u32 s{S3_WB}, s{S3_WB}, s82")
    k(f"s_cmp_eq_u32 s81, 0\ns_cselect_b32 s{S3_SRD}, s{P_W1}, s{P_W3}\ns_cselect_b32 s{S3_SRD+1}, s{P_W1+1}, s{P_W3+1}")
    k(f"s_mov_b32 s{S3_SRD+2}, {D*F*2}\ns_mov_b32 s{S3_SRD+3}, 0x20000")
    c.NB, c.TB, c.KS, c.SPK, c.KT, c.NS, c.R = 14, 4, 1, 2, 16, NS, R
    c.acc = lambda b, t: vr((b * 4 + t) * 4, 4)
    c.tf = lambda slot, ks, t: 112 + (slot * 4 + t) * 4
    ph = lambda sl: 3 - sl
    c.rd = lambda sl, b, sub, r: (V_RD + ph(sl) // 2, (ph(sl) % 2) * STAGE + (b % 2) * 14336 + (32 * sub + 16 * r) * 224 + 32 * (b // 2))
    c.slot_addr = lambda sl: ph(sl) * STAGE
    c.dma = [(V_DMA + i, i * 1024, 0) for i in range(7)]
    c.v_tok = [V_TOK + t for t in range(4)]
    c.w_stride = 64 * 7168
    c.drop = opt.get("g3_drop", ())
    c.pro_units, c.ramp_rate, c.read_margin = opt.get("g3_pro", 12), (lambda st: opt.get("g3_ramp", 12) if st < 6 else 8), 8
    c.lookahead = opt.get("g3_la", 4)
    std_sched(c)
    TL = c.TL = opt.get("g3_tail", 0)
    if TL:
        tail = c.steps[32 - TL:]
        c.steps = c.steps[:32 - TL] + [dict(st, frags=st["frags"][:8]) for st in tail] + [dict(st, frags=st["frags"][8:]) for st in tail]
    return c
def g3_early_units(c, n, vtmp):
    out = []
    for j in range(n):
        t = c.prefetch_txt(1)
        i = (c.pre_dma - 1) % 7
        ld = t[-1].replace(f"v{c.V_DMA+i},", f"v{vtmp},")
        out.append(t[:-1] + [f"v_accvgpr_read_b32 v{vtmp}, a{A_PARK+i}", ld])
    return out
def setup_gemm3_late(k, c):
    V_RD, V_DMA, V_TOK, LANE, L16, VT = c.V_RD, c.V_DMA, c.V_TOK, c.LANE, c.L16, c.VT
    lane_id(k, LANE)
    k(f"v_lshlrev_b32 v{L16}, 4, v{LANE}")
    for i in range(7): k(f"v_accvgpr_read_b32 v{V_DMA+i}, a{A_PARK+i}")
    k(f"v_lshrrev_b32 v{VT+3}, 2, v{LANE}\nv_mul_u32_u24 v{VT+3}, 224, v{VT+3}")
    k(f"v_and_b32 v{VT+4}, 3, v{LANE}\nv_lshl_add_u32 v{V_RD}, v{VT+4}, 3, v{VT+3}")
    k(f"v_add_u32 v{V_RD+1}, {2*28672}, v{V_RD}")
    k(f"s_lshl_b32 s82, s{S_RB3}, 4\ns_lshl_b32 s83, s{S_WAVE}, 2\ns_add_u32 s82, s82, s83\ns_lshl_b32 s82, s82, 15")
    k(f"v_add_u32 v{V_TOK}, s82, v{L16}")
    for t in range(1, 4): k(f"v_add_u32 v{V_TOK+t}, {t*0x8000}, v{V_TOK}")

def sprinkle(k, mark, groups, skip=4):
    if not groups: return
    seg = k.L[mark:]
    stepn = max(1, (len(seg) - skip) // len(groups))
    out, q = [], list(groups)
    for i, x in enumerate(seg):
        out.append(x)
        if q and i >= skip and (i - skip) % stepn == 0:
            assert not x.startswith("s_cmp") and not x.startswith("s_and_saveexec")
            out += q.pop(0)
    for g in q: out += g
    k.L[mark:] = out

A_X1 = 240
def phase_gemm2(k, c, opt):
    LANE, L16 = c.LANE, c.L16
    VT = 40
    k(f"v_and_b32 v252, 15, v{LANE}\nv_lshlrev_b32 v252, {FS}, v252")
    k(f"s_lshl_b32 s84, s{S_RB2}, 2\ns_add_u32 s84, s84, s{S_WAVE}\ns_lshl_b32 s84, s84, {FS+4}\ns_add_u32 s85, s84, {F_O}")
    if c.hs:
        k(f"s_add_u32 s94, s85, {F_O2 - F_O}")
        staged_wait(k, c, opt.get("g2_T", 5), 252, 85, 253, lambda sp, st: [f"s_lshl_b32 s{st}, s{sp}, 1", f"s_lshl_b32 s{st}, 3, s{st}"], pub=(95, 26))
        add_gate(k, c, 8, f"buffer_load_dword v253, v252, {sr(SRD_F,4)}, s94 offen sc1", 253)
    else:
        staged_wait(k, c, opt.get("g2_T", 6), 252, 85, 253, one_prod)
    k.stamp("o ready")
    V_G, V_C, V_S, V_GA = 64, 80, 136, 44
    p = Txt()
    srd(p, SRD_A, P_WS, S * D * 2, WS_Y)
    srd(p, SRD_B, P_WS, S * 128, WS_STAT)
    srd(p, SRD_D, P_WS, MP_BYTES, WS_MODP)
    p(f"v_lshrrev_b32 v{V_GA}, 4, v{LANE}\nv_lshlrev_b32 v{V_GA}, 4, v{V_GA}\nv_add_u32 v{V_GA}, {L_MV}, v{V_GA}")
    p(f"s_lshl_b32 s86, s{S_RB2}, 3\ns_lshl_b32 s87, s{S_WAVE}, 1\ns_add_u32 s86, s86, s87")
    p(f"s_lshl_b32 s88, s86, 15\ns_lshl_b32 s87, s{S_NT}, 11\ns_add_u32 s88, s88, s87\ns_add_u32 s89, s88, 32768")
    p(f"s_lshl_b32 s87, s{S_NT}, {FS}\ns_add_u32 s84, s84, s87\ns_add_u32 s84, s84, {F_Y}")
    p(f"s_lshl_b32 s91, s86, 11\ns_lshl_b32 s90, s{S_NT}, 8\ns_add_u32 s90, s90, s91")
    p(f"s_lshl_b32 s92, s{S_WAVE}, 16\ns_lshl_b32 s93, s{S_NT}, 12\ns_add_u32 s92, s92, s93\ns_add_u32 s92, s92, {MP_B}")
    p(f"v_lshlrev_b32 v{VT}, 2, v{LANE}")
    c.pre_loop_txt = p.L
    c.late = {}
    if opt.get("cpf", 1): c.late[6] = code_prefetch_txt(k.name, L16, 254, 80)
    m = Txt(); m.label = k.label
    MB_ = 160
    mld = [f"buffer_load_dword v{MB_+j}, v{VT}, {sr(SRD_D,4)}, s92 offen offset:{j*256} sc1" for j in range(16)]
    okm = k.label("mok")
    m(f"v_min_u32 v{MB_+16}, v{MB_}, v{MB_+1}")
    for j in range(2, 16, 2): m(f"v_min3_u32 v{MB_+16}, v{MB_+16}, v{MB_+j}, v{MB_+j+1}")
    m(f"v_cmp_eq_u32 vcc, 0, v{MB_+16}\ns_cmp_eq_u64 vcc, 0\ns_cbranch_scc1 {okm}")
    spin(m, mld, [MB_ + j for j in range(16)], MB_ + 16)
    m(f"{okm}:")
    mchk = "\n".join(m.L); m.L = []
    for st in (4, 2, 1):
        for j in range(st): m(f"v_pk_add_f32 {vr(MB_+2*j,2)}, {vr(MB_+2*j,2)}, {vr(MB_+2*(j+st),2)}")
    m(f"v_add_f32 v{MB_}, v{MB_}, v{MB_+1}")
    round_bf16(m, MB_)
    m(f"v_add_f32 v{MB_+1}, 1.0, v{MB_}"); round_bf16(m, MB_ + 1)
    m(f"s_cmp_eq_u32 s{S_WAVE}, 2\ns_cselect_b64 vcc, -1, 0")
    m(f"v_cndmask_b32 v{MB_}, v{MB_}, v{MB_+1}, vcc")
    m(f"s_lshl_b32 s92, s{S_WAVE}, 8\ns_add_u32 s92, s92, {L_MV}\nv_add_u32 v{VT}, s92, v{VT}")
    m(f"ds_write_b32 v{VT}, v{MB_}")
    ms_ = opt.get("g2_modstep", 13)
    c.late.setdefault(ms_ - 2, []).extend([VM(x, ("mv", 0)) for x in mld])
    k_ = [x for x in m.L]
    i_ = next(i for i, x in enumerate(k_) if x.startswith("s_cmp_eq_u32"))
    c.late[ms_] = [WVM([("mv", 0)]), T(mchk)] + k_[:i_] + ["\n".join(k_[i_:])]
    ne = opt.get("g3_e3", 7 if opt.get("split", 1) else 0)
    eu = [x for g in g3_early_units(k.g3, ne, 254) for x in g]
    c.late.setdefault(14, []).extend(eu[:len(eu)//2 // 1]); c.late.setdefault(15, []).extend(eu[len(eu)//2:])
    c.last_reads = ([f"ds_read_b128 {vr(V_G+4*b,4)}, v{V_GA} offset:{b*64}" for b in range(4)] + [f"ds_read_b128 {vr(V_C+4*b,4)}, v{V_GA} offset:{512+b*64}" for b in range(4)]
                    + [f"ds_read_b128 {vr(V_S+4*b,4)}, v{V_GA} offset:{256+b*64}" for b in range(4)])
    c.run(k)
    k.stamp("g2 loop done")
    k("s_waitcnt lgkmcnt(0)\ns_nop 7")
    A = lambda b, t: (b * 2 + t) * 4
    XT = 194; V_X = c.V_X
    for t in range(2):
        for b in range(4):
            xr = V_X + (t * 4 + b) * 2
            for h in range(2): k(f"v_lshlrev_b32 v{XT+2*h}, 16, v{xr+h}\nv_and_b32 v{XT+2*h+1}, 0xffff0000, v{xr+h}")
            for h in range(2): k(f"v_pk_fma_f32 {vr(A(b,t)+2*h,2)}, {vr(A(b,t)+2*h,2)}, {vr(V_G+4*b+2*h,2)}, {vr(XT+2*h,2)}")
        PK = XT + 4 + t * 8
        for b in range(4): k(f"v_cvt_pk_bf16_f32 v{PK+2*b}, v{A(b,t)}, v{A(b,t)+1}\nv_cvt_pk_bf16_f32 v{PK+2*b+1}, v{A(b,t)+2}, v{A(b,t)+3}")
        for b in range(4):
            for h in range(2): k(f"v_lshlrev_b32 v{A(b,t)+2*h}, 16, v{PK+2*b+h}\nv_and_b32 v{A(b,t)+2*h+1}, 0xffff0000, v{PK+2*b+h}")
    SU = [XT + 20, XT + 22]; M2 = [XT + 21, XT + 23]; TM = [XT + 24, XT + 25]; AC = [XT, XT + 2]; NM = [XT + 26, XT + 28]; DF = 32
    for t in range(2): k(f"v_pk_add_f32 {vr(AC[t],2)}, {vr(A(0,t),2)}, {vr(A(0,t)+2,2)}")
    for b in range(1, 4):
        for h in range(2):
            for t in range(2): k(f"v_pk_add_f32 {vr(AC[t],2)}, {vr(AC[t],2)}, {vr(A(b,t)+2*h,2)}")
    def allred2(X):
        for sw in ("v_permlane32_swap_b32", "v_permlane16_swap_b32"):
            for t in range(2): k(f"v_mov_b32 v{TM[t]}, v{X[t]}")
            k("s_nop 0")
            for t in range(2): k(f"{sw} v{X[t]}, v{TM[t]}")
            k("s_nop 0")
            for t in range(2): k(f"v_add_f32 v{X[t]}, v{X[t]}, v{TM[t]}")
    for t in range(2): k(f"v_add_f32 v{SU[t]}, v{AC[t]}, v{AC[t]+1}")
    allred2(SU)
    for t in range(2): k(f"v_mul_f32 v{NM[t]}, {-1.0/64!r}, v{SU[t]}\nv_mov_b32 v{AC[t]}, 0\nv_mov_b32 v{AC[t]+1}, 0")
    for b in range(4):
        for h in range(2):
            for t in range(2): k(f"v_pk_add_f32 {vr(DF+2*t,2)}, {vr(A(b,t)+2*h,2)}, {vr(NM[t],2)} op_sel_hi:[1,0]")
            for t in range(2): k(f"v_pk_fma_f32 {vr(AC[t],2)}, {vr(DF+2*t,2)}, {vr(DF+2*t,2)}, {vr(AC[t],2)}")
    for t in range(2): k(f"v_add_f32 v{M2[t]}, v{AC[t]}, v{AC[t]+1}")
    allred2(M2)
    k(f"v_cmp_gt_u32 vcc, 16, v{LANE}")
    k(f"v_lshlrev_b32 v{XT+2}, 3, v{LANE}\nv_lshrrev_b32 v{XT+3}, 4, v{LANE}")
    k(f"v_cndmask_b32 v{XT}, v{SU[1]}, v{SU[0]}, vcc\nv_cndmask_b32 v{XT+1}, v{M2[1]}, v{M2[0]}, vcc")
    k(f"v_and_b32 v45, 0x78, v{XT+2}\nv_lshl_add_u32 v45, v{XT+3}, 10, v45")
    k(f"v_or_b32 v{XT+1}, 1, v{XT+1}")
    k(f"v_cmp_gt_u32 vcc, 32, v{LANE}\ns_and_saveexec_b64 s[96:97], vcc")
    k(f"buffer_store_dwordx2 {vr(XT,2)}, v{XT+2}, {sr(SRD_B,4)}, s90 offen sc1")
    k("s_mov_b64 exec, s[96:97]")
    k.stamp("stat stored")
    for t in range(2):
        for b in range(4):
            for h in range(2): k(f"v_pk_mul_f32 {vr(A(b,t)+2*h,2)}, {vr(A(b,t)+2*h,2)}, {vr(V_C+4*b+2*h,2)}")
    for j in range(16): k(f"v_accvgpr_write_b32 a{A_X1+j}, v{XT+4+j}")
    g3 = k.g3
    setup_gemm3_late(k, g3)
    g3.prefetch(k, opt.get("g3_pre0", 0))
    ST = 48
    spin(k, [f"buffer_load_dwordx2 {vr(ST+t*8+j*2,2)}, v45, {sr(SRD_B,4)}, s91 offen offset:{t*128+j*256} sc1" for t in range(2) for j in range(4)],
         [ST + 2 * j + 1 for j in range(8)], XT)
    k.stamp("stat ready")
    for t in range(2):
        b = ST + t * 8
        k(f"v_add_f32 v{SU[t]}, v{b}, v{b+2}\nv_add_f32 v{TM[t]}, v{b+4}, v{b+6}\nv_add_f32 v{SU[t]}, v{SU[t]}, v{TM[t]}")
        k(f"v_add_f32 v{M2[t]}, v{b+1}, v{b+3}\nv_add_f32 v{TM[t]}, v{b+5}, v{b+7}\nv_add_f32 v{M2[t]}, v{M2[t]}, v{TM[t]}")
    allred2(SU)
    for t in range(2): k(f"v_mul_f32 v{SU[t]}, {-1.0/1024!r}, v{SU[t]}")
    for j in range(4):
        for t in range(2): k(f"v_fmamk_f32 v{ST+t*8+2*j}, v{ST+t*8+2*j}, {1.0/64!r}, v{SU[t]}")
        for t in range(2): k(f"v_mul_f32 v{ST+t*8+2*j}, v{ST+t*8+2*j}, v{ST+t*8+2*j}")
        for t in range(2): k(f"v_fmac_f32 v{M2[t]}, 0x42800000, v{ST+t*8+2*j}")
    allred2(M2)
    for t in range(2): k(f"v_mov_b32 v{TM[t]}, 0x3727c5ac\nv_fmac_f32 v{TM[t]}, {1.0/1024!r}, v{M2[t]}")
    for t in range(2): k(f"v_rsq_f32 v{NM[t]}, v{TM[t]}")
    k("s_nop 0")
    for t in range(2): k(f"v_mul_f32 v{NM[t]+1}, v{SU[t]}, v{NM[t]}")
    for t in range(2):
        YK = ST + t * 8
        for b in range(4):
            for h in range(2): k(f"v_pk_fma_f32 {vr(XT+2*h,2)}, {vr(V_C+4*b+2*h,2)}, {vr(NM[t],2)}, {vr(V_S+4*b+2*h,2)} op_sel:[0,1,0] op_sel_hi:[1,1,1]")
            for h in range(2): k(f"v_pk_fma_f32 {vr(XT+2*h,2)}, {vr(A(b,t)+2*h,2)}, {vr(NM[t],2)}, {vr(XT+2*h,2)} op_sel_hi:[1,0,1]")
            k(f"v_cvt_pk_bf16_f32 v{YK+2*b}, v{XT}, v{XT+1}\nv_cvt_pk_bf16_f32 v{YK+2*b+1}, v{XT+2}, v{XT+3}")
        for s_ in range(2): k(f"buffer_store_dwordx4 {vr(YK+4*s_,4)}, v{L16}, {sr(SRD_A,4)}, s{88+t} offen offset:{s_*1024} sc1")
    publish(k, 84, 40)
    k.stamp("y published")
    g3.prefetch(k, opt.get("g3_pre", 0))
    return g3

def phase_gemm3(k, c, opt):
    LANE, L16, VT = c.LANE, c.L16, c.VT
    NB, TB = 14, 4
    srd(k, SRD_T, P_WS, S * D * 2, WS_Y)
    srd(k, SRD_C, P_WS, S * F * 2, WS_HH)
    k(f"v_and_b32 v{VT}, 31, v{LANE}\nv_lshlrev_b32 v{VT}, {FS}, v{VT}")
    k(f"s_lshl_b32 s84, s{S_RB3}, 2\ns_add_u32 s84, s84, s{S_WAVE}")
    k(f"s_lshl_b32 s85, s84, {FS+5}\ns_add_u32 s85, s85, {F_Y}")
    staged_wait(k, c, opt.get("g3_T", 3), VT, 85, VT + 1, one_prod, dup16=True)
    k.stamp("y ready")
    p = Txt()
    p(f"s_mul_i32 s88, s84, {448*1024}\ns_mul_i32 s92, s{S_FT}, 3584\ns_add_u32 s88, s88, s92")
    for t in range(1, 4): p(f"s_add_u32 s{88+t}, s88, {t*112*1024}")
    p(f"s_lshl_b32 s93, s84, {FS+5}\ns_lshl_b32 s94, s{S_FT}, {FS}\ns_add_u32 s93, s93, s94\ns_add_u32 s94, s93, {F_HB}\ns_add_u32 s93, s93, {F_HH}")
    p(f"s_mov_b32 s86, {-LOG2E!r}\ns_mov_b32 s87, {-LOG2E!r}")
    SB = 241
    p(f"v_lshrrev_b32 v{SB}, 1, v{L16}")
    c.pre_loop_txt = p.L
    if opt.get("cpf", 1):
        for st_ in opt.get("cp3", [6, 22]): c.late.setdefault(st_, []).extend(code_prefetch_txt(k.name, L16, 254, 80, junk="v240"))
    if opt.get("w2touch", 1):
        ws_ = opt.get("w2steps", [16]); per = 56 // len(ws_)
        for j, st_ in enumerate(ws_):
            c.late.setdefault(st_, []).extend([f"s_lshl_b32 s80, s2, 2", f"s_add_u32 s80, s80, s{S_WAVE}", "s_mul_i32 s80, s80, 7168", f"s_add_u32 s80, s80, {j*per*128}",
                      f"v_min_u32 v253, {per-1}, v{LANE}", "v_lshlrev_b32 v253, 7, v253", "v_add_u32 v253, s80, v253",
                      f"global_load_dword v240, v253, s[{P_W2}:{P_W2+1}]"])
    t4 = Txt()
    g4 = setup_gemm4p(t4, opt, 242)
    half = len(t4.L) // 2
    c.late[19] = t4.L[:half]; c.late[20] = t4.L[half:]
    pf = g4.prefetch_txt(4); c.late[29] = pf
    pf = g4.prefetch_txt(4); c.late[30] = pf
    def G(s, t): return ((2 * s) * TB + t) * 4
    def Uu(s, t): return ((2 * s + 1) * TB + t) * 4
    def act(k, slots, t, scalar=False):
        if scalar:
            for s in slots:
                for r in range(4):
                    k(f"v_mul_f32 v{Uu(s,t)+r}, v{G(s,t)+r}, v{Uu(s,t)+r}")
                    k(f"v_mul_f32 v{G(s,t)+r}, s86, v{G(s,t)+r}")
            rs = [(s, r) for s in slots for r in range(4)]
            for i, (s, r) in enumerate(rs): k(f"v_exp_f32 v{G(s,t)+r}, v{G(s,t)+r}")
            for i, (s, r) in enumerate(rs): k(f"v_add_f32 v{G(s,t)+r}, 1.0, v{G(s,t)+r}")
            for i, (s, r) in enumerate(rs): k(f"v_rcp_f32 v{G(s,t)+r}, v{G(s,t)+r}")
            for i, (s, r) in enumerate(rs): k(f"v_mul_f32 v{Uu(s,t)+r}, v{Uu(s,t)+r}, v{G(s,t)+r}")
            return
        for s in slots:
            for h in range(2):
                k(f"v_pk_mul_f32 {vr(Uu(s,t)+2*h,2)}, {vr(G(s,t)+2*h,2)}, {vr(Uu(s,t)+2*h,2)}")
                k(f"v_pk_mul_f32 {vr(G(s,t)+2*h,2)}, {vr(G(s,t)+2*h,2)}, s[86:87]")
        for s in slots:
            for r in range(4): k(f"v_exp_f32 v{G(s,t)+r}, v{G(s,t)+r}")
        for s in slots:
            for h in range(2): k(f"v_pk_add_f32 {vr(G(s,t)+2*h,2)}, {vr(G(s,t)+2*h,2)}, 1.0 op_sel_hi:[1,0]")
        for s in slots:
            for r in range(4): k(f"v_rcp_f32 v{G(s,t)+r}, v{G(s,t)+r}")
        for s in slots:
            for h in range(2): k(f"v_pk_mul_f32 {vr(Uu(s,t)+2*h,2)}, {vr(Uu(s,t)+2*h,2)}, {vr(G(s,t)+2*h,2)}")
    def pair(k, pr, t, scalar=False):
        s0, s1 = 2 * pr, 2 * pr + 1
        act(k, [s0, s1], t, scalar)
        d = G(s0, t)
        k(f"v_cvt_pk_bf16_f32 v{d}, v{Uu(s0,t)}, v{Uu(s0,t)+1}\nv_cvt_pk_bf16_f32 v{d+1}, v{Uu(s0,t)+2}, v{Uu(s0,t)+3}")
        k(f"v_cvt_pk_bf16_f32 v{d+2}, v{Uu(s1,t)}, v{Uu(s1,t)+1}\nv_cvt_pk_bf16_f32 v{d+3}, v{Uu(s1,t)+2}, v{Uu(s1,t)+3}")
        k(f"buffer_store_dwordx4 {vr(d,4)}, v{L16}, {sr(SRD_C,4)}, s{88+t} offen offset:{pr*1024} sc1")
    ea = Txt(); eb = Txt()
    nin = opt.get("g3_nin", 8) if c.TL else 0
    for i, (pr, t) in enumerate([(pr, t) for pr in range(2) for t in range(TB)]):
        if i < nin: pair(ea, pr, t, opt.get("g3_scalar", 0))
        else: pair(eb, pr, t)
    if c.TL:
        nst = opt.get("g3_east", c.TL - 1)
        per = -(-len(ea.L) // nst)
        c.step_extra = lambda st: ea.L[(st - 32) * per:(st - 31) * per] if st >= 32 else []
    c.run(k)
    k.stamp("g3 loop done")
    if not c.TL: k("s_nop 7")
    for x in eb.L: k(x)
    mkA = len(k.L)
    k("s_nop 4\ns_barrier")
    na = opt.get("g3_pubA", 2)
    for t in range(na): pair(k, 2, t)
    publish(k, 93, 252, mkA)
    k.stamp("hA published")
    mark3 = len(k.L)
    for t in range(na, TB): pair(k, 2, t)
    grp = []
    for j in range(8):
        t_ = g4.prefetch_txt(1); grp.append(t_[:-1] + ["s_nop 0", t_[-1]])
    sprinkle(k, mark3, grp)
    for t in range(TB):
        act(k, [6], t)
        d = G(6, t)
        k(f"v_cvt_pk_bf16_f32 v{d}, v{Uu(6,t)}, v{Uu(6,t)+1}\nv_cvt_pk_bf16_f32 v{d+1}, v{Uu(6,t)+2}, v{Uu(6,t)+3}")
        k(f"buffer_store_dwordx2 {vr(d,2)}, v{SB}, {sr(SRD_C,4)}, s{88+t} offen offset:3072 sc1")
    k.stamp("hh stored")
    return g4

def phase_gemm4(k, c, opt):
    LANE, L16 = c.LANE, c.L16
    VT = 40
    srd(k, SRD_T, P_WS, S * F * 2, WS_HH)
    srd(k, SRD_A, P_OUT, S * D * 2)
    k(f"v_and_b32 v{VT}, 31, v{LANE}\nv_lshlrev_b32 v{VT}, 2, v{VT}")
    k(f"s_lshl_b32 s84, s{S_RB2}, 1\ns_lshr_b32 s85, s{S_WAVE}, 1\ns_add_u32 s84, s84, s85\ns_lshl_b32 s84, s84, {FS+5}\ns_add_u32 s84, s84, {F_HH}")
    wait_flags(k, [(VT, 84, 1)], VT + 1)
    k.stamp("hh ready")
    V_G, V_GA, V_XA, V_X = 64, 44, 45, 48
    p = Txt()
    p(f"v_lshrrev_b32 v{VT}, 4, v{LANE}\nv_lshlrev_b32 v{V_GA}, 4, v{VT}\nv_add_u32 v{V_GA}, {L_MV}, v{V_GA}")
    p(f"v_and_b32 v{VT+1}, 15, v{LANE}\nv_lshlrev_b32 v{VT+1}, 11, v{VT+1}")
    p(f"v_and_b32 v{VT+2}, 1, v{VT}\nv_lshl_add_u32 v{VT+1}, v{VT+2}, 5, v{VT+1}")
    p(f"v_lshrrev_b32 v{VT+2}, 1, v{VT}\nv_lshl_add_u32 v{V_XA}, v{VT+2}, 4, v{VT+1}")
    p(f"s_lshl_b32 s86, s{S_RB2}, 3\ns_lshl_b32 s87, s{S_WAVE}, 1\ns_add_u32 s86, s86, s87\ns_lshl_b32 s86, s86, 15\ns_lshl_b32 s87, s{S_NT}, 7\ns_add_u32 s86, s86, s87\ns_add_u32 s87, s86, 32768")
    for j in range(16): p(f"v_accvgpr_read_b32 v{V_X+j}, a{A_X1+j}")
    c.pre_loop_txt = p.L
    c.last_reads = [f"ds_read_b128 {vr(V_G+4*b,4)}, v{V_GA} offset:{768+b*64}" for b in range(4)]
    c.run(k)
    k.stamp("g4 loop done")
    k("s_waitcnt lgkmcnt(0)\ns_nop 7")
    A = lambda b, t: (b * 2 + t) * 4
    XT = 96
    for t in range(2):
        for b in range(4):
            xr = V_X + (t * 4 + b) * 2
            for h in range(2): k(f"v_lshlrev_b32 v{XT+2*h}, 16, v{xr+h}\nv_and_b32 v{XT+2*h+1}, 0xffff0000, v{xr+h}")
            for h in range(2): k(f"v_pk_fma_f32 {vr(A(b,t)+2*h,2)}, {vr(A(b,t)+2*h,2)}, {vr(V_G+4*b+2*h,2)}, {vr(XT+2*h,2)}")
        PK = XT + 4 + t * 8
        for b in range(4): k(f"v_cvt_pk_bf16_f32 v{PK+2*b}, v{A(b,t)}, v{A(b,t)+1}\nv_cvt_pk_bf16_f32 v{PK+2*b+1}, v{A(b,t)+2}, v{A(b,t)+3}")
        k("s_nop 1")
        for s_ in range(2): k(f"v_permlane16_swap_b32 v{PK+4*s_}, v{PK+4*s_+2}\nv_permlane16_swap_b32 v{PK+4*s_+1}, v{PK+4*s_+3}")
        for s_ in range(2): k(f"buffer_store_dwordx4 {vr(PK+4*s_,4)}, v{V_XA}, {sr(SRD_A,4)}, s{86+t} offen offset:{s_*64}")

def build_mega(instr=False, opt=None, name="mega_kernel"):
    opt = opt or {}
    k = Mega(name, 256, 256, LDS_TOTAL, vgpr=256, agpr=256, sgpr=102)
    k.instr = instr; k.names = []; k.only = opt.get("only")
    end = k.label("end")
    far = k.label("go")
    k(f"s_cmp_lt_u32 s2, 256\ns_cbranch_scc1 {far}\ns_endpgm\n{far}:")
    if opt.get("fused", 1):
        code_prefetch_setup(k, name)
        k("v_and_b32 v104, 63, v0\nv_lshlrev_b32 v105, 4, v104\nv_lshlrev_b32 v254, 5, v0")
        k("global_load_dword a232, v254, s[100:101]")
        k("s_load_dwordx2 s[96:97], s[0:1], 88")
        if opt.get("dbgout"): k("s_load_dwordx2 s[72:73], s[0:1], 88")
    k("s_load_dwordx8 s[4:11], s[0:1], 0")
    k("s_load_dwordx2 s[12:13], s[0:1], 64")
    k("s_load_dwordx2 s[14:15], s[0:1], 40")
    k("s_load_dwordx4 s[16:19], s[0:1], 48")
    k("s_load_dwordx2 s[98:99], s[0:1], 72")
    k("s_load_dwordx2 s[24:25], s[0:1], 80")
    k("s_load_dwordx2 s[28:29], s[0:1], 96")
    if instr: k(f"v_mov_b32 v{VSTAMP}, 0")
    ids(k)
    k(f"s_lshr_b32 s80, s{S_IDX}, 2\ns_add_u32 s{S_R4}, s80, s{S_IDX}\ns_and_b32 s81, s{S_IDX}, 3\ns_lshl_b32 s81, s81, 1\ns_add_u32 s{S_R8}, s80, s81")
    k(f"s_and_b32 s80, s{S_IDX}, 3\ns_lshl_b32 s{S_FT}, s{S_XCD}, 2\ns_add_u32 s{S_FT}, s{S_FT}, s80\ns_lshr_b32 s{S_RB3}, s{S_IDX}, 2")
    if opt.get("fused", 1):
        for x in code_prefetch_txt(name, 105, 254, 80): k(x)
    k.stamp("start")
    g1 = (phase_front_fused if opt.get("fused", 1) else phase_front)(k, opt, name)
    g2 = (phase_gemm1s if opt.get('split', 1) else phase_gemm1)(k, g1, opt)
    g3 = phase_gemm2(k, g2, opt)
    g4 = phase_gemm3(k, g3, opt)
    (phase_gemm4p if opt.get('g4_pair', 1) else phase_gemm4)(k, g4, opt)
    if instr:
        k("s_waitcnt vmcnt(0)")
        k.stamp("end")
        k(f"s_add_u32 s84, s{P_WS}, {WS_DBG}\ns_addc_u32 s85, s{P_WS+1}, 0\ns_mov_b32 s86, 0x100000\ns_mov_b32 s87, 0x20000")
        k(f"s_lshl_b32 s88, s2, 2\ns_add_u32 s88, s88, s{S_WAVE}\ns_lshl_b32 s88, s88, 8")
        lane_id(k, 1)
        k("v_lshlrev_b32 v1, 2, v1")
        k(f"buffer_store_dword v{VSTAMP}, v1, s[84:87], s88 offen")
        if opt.get("dbgout"):
            sk = k.label("nodbg")
            k(f"s_lshl_b32 s88, s2, 2\ns_add_u32 s88, s88, s{S_WAVE}\ns_cmp_lg_u32 s88, {opt['dbgout']*4}\ns_cbranch_scc1 {sk}")
            k("s_mov_b32 s84, s72\ns_mov_b32 s85, s73\ns_mov_b32 s86, 64\ns_mov_b32 s87, 0x20000")
            k(f"v_readlane_b32 s89, v{VSTAMP}, 0\ns_nop 3\nv_subrev_u32 v2, s89, v{VSTAMP}")
            k("buffer_store_dword v2, v1, s[84:87], 0 offen offset:12")
            k(f"{sk}:")
    k("s_endpgm")
    k(f"{name}_end:")
    return k
```

```python
import sys
from asmlib import *
from gemm import *
from layout import *
LOG2E = 1.4426950408889634
P_X, P_WQKV, P_WPHI, P_WO, P_W1, P_W3, P_W2, P_OUT, P_WS = 4, 6, 8, 10, 14, 16, 18, 24, 28
P_DBG, S_MB, S_MO = 96, 77, 79
P_C, P_WMOD = 12, 98
S_WAVE, S_XCD, S_IDX = 3, 30, 31
SRD_W, SRD_T, SRD_A, SRD_B, SRD_C, SRD_D, SRD_F = 32, 36, 40, 44, 48, 52, 56
S_KW, S_KT, S_WB, S_ROT, S_TMP, S_ROT2 = 60, 62, 76, 77, 78, 79
S_RB1, S_HP, S_RB2, S_NT, S_RB3, S_FT = 26, 27, 26, 27, 22, 23
S_R8, S_R4 = 20, 21
VSTAMP = 255
L_WPH, L_UTC = 110592, 105472
L_UT3, L_MV, L_R2 = 114688, 128000, 129792
LDS_TOTAL = 163584

class Mega(Kernel):
    nst = 0
    only = None
    def stamp(self, name=""):
        if not self.instr: return
        if self.only is not None and not any(name.startswith(o) for o in self.only): return
        if self.only is None and name[:3] in ("kp ", "qp "): return
        self("s_waitcnt lgkmcnt(0)\ns_memrealtime s[0:1]\ns_waitcnt lgkmcnt(0)")
        self(f"v_writelane_b32 v{VSTAMP}, s0, {self.nst}")
        self("s_nop 3\ns_memtime s[0:1]\ns_waitcnt lgkmcnt(0)")
        self(f"v_writelane_b32 v{VSTAMP}, s0, {self.nst + 32}")
        self.names.append(name); self.nst += 1

def lane_id(k, v):
    k(f"v_mbcnt_lo_u32_b32 v{v}, -1, 0\nv_mbcnt_hi_u32_b32 v{v}, -1, v{v}")

def code_prefetch_setup(k, name, s_pc=100):
    lab = k.label("pc")
    k(f"s_getpc_b64 s[{s_pc}:{s_pc+1}]")
    k(f"{lab}:")
    k(f"s_sub_u32 s{s_pc}, s{s_pc}, {lab}-{name}\ns_subb_u32 s{s_pc+1}, s{s_pc+1}, 0")
def code_prefetch_txt(name, v_l16, vt, s_tmp, s_idx=S_IDX, s_wave=S_WAVE, s_pc=100, junk="a232"):
    return [f"s_lshl_b32 s{s_tmp}, s{s_idx}, 2", f"s_add_u32 s{s_tmp}, s{s_tmp}, s{s_wave}", f"s_lshl_b32 s{s_tmp}, s{s_tmp}, 10",
            f"v_add_u32 v{vt}, s{s_tmp}, v{v_l16}", f"v_min_u32 v{vt}, {name}_end-{name}-4, v{vt}",
            f"global_load_dword {junk}, v{vt}, s[{s_pc}:{s_pc+1}]"]

def count_vm(k, mark):
    return sum(1 for x in k.L[mark:] if is_vm(x))
def publish(k, s_off, vt, mark=None):
    k(f"v_mov_b32 v{vt}, 1\nv_mov_b32 v{vt+1}, 0")
    n = 0 if mark is None else count_vm(k, mark)
    assert n < 64
    k(f"s_waitcnt vmcnt({n})")
    k(f"buffer_store_dword v{vt}, v{vt+1}, {sr(SRD_F,4)}, s{s_off} offen sc1")

def spin(k, loads, regs, vt, s_cnt=96):
    top, ok = k.label("poll"), k.label("ok")
    k(f"s_mov_b32 s{s_cnt}, 0")
    k(f"{top}:")
    for x in loads: k(x)
    k("s_waitcnt vmcnt(0)")
    if len(regs) == 1: k(f"v_cmp_eq_u32 vcc, 0, v{regs[0]}")
    else:
        k(f"v_min_u32 v{vt}, v{regs[0]}, v{regs[1]}")
        for x in regs[2:]: k(f"v_min_u32 v{vt}, v{vt}, v{x}")
        k(f"v_cmp_eq_u32 vcc, 0, v{vt}")
    k(f"s_add_u32 s{s_cnt}, s{s_cnt}, 1")
    k(f"s_cmp_eq_u64 vcc, 0\ns_cbranch_scc1 {ok}")
    k(f"s_sleep {SLEEP}\ns_cmp_lt_u32 s{s_cnt}, 0x40000\ns_cbranch_scc1 {top}")
    k(f"{ok}:")

def wait_flags(k, polls, vt, s_cnt=96):
    top, ok = k.label("poll"), k.label("ok")
    k(f"s_mov_b32 s{s_cnt}, 0")
    k(f"{top}:")
    r = vt
    regs = []
    for va, so, ndw in polls:
        if ndw == 4: r = (r + 1) // 2 * 2
        k(f"buffer_load_dword{'x4' if ndw == 4 else ''} {vr(r,ndw)}, v{va}, {sr(SRD_F,4)}, s{so} offen sc1")
        regs += list(range(r, r + ndw)); r += ndw
    k("s_waitcnt vmcnt(0)")
    for x in regs[1:]: k(f"v_min_u32 v{regs[0]}, v{regs[0]}, v{x}")
    k(f"v_cmp_eq_u32 vcc, 0, v{regs[0]}")
    k(f"s_add_u32 s{s_cnt}, s{s_cnt}, 1")
    k(f"s_cmp_eq_u64 vcc, 0\ns_cbranch_scc1 {ok}")
    k(f"s_sleep {SLEEP}\ns_cmp_lt_u32 s{s_cnt}, 0x40000\ns_cbranch_scc1 {top}")
    k(f"{ok}:")

def staged_wait(k, c, T_, v_addr, s_off, vf, prod_of, dup16=False, skip_first=0, s_m=97, pub=None):
    ld = f"buffer_load_dword v{vf}, v{v_addr}, {sr(SRD_F,4)}, s{s_off} offen sc1"
    if T_ is None:
        spin(k, [ld], [vf], 0); return
    k(f"s_mov_b32 s{s_m}, 0")
    for kt in range(skip_first, T_):
        for x in c.pos_txt(80, kt): k(x)
        for x in prod_of(80, 81): k(x)
        k(f"s_or_b32 s{s_m}, s{s_m}, s81")
    if dup16: k(f"s_lshl_b32 s81, s{s_m}, 16\ns_or_b32 s{s_m}, s{s_m}, s81")
    top, ok = k.label("poll"), k.label("ok")
    if pub:
        mk = len(k.L); k(ld); publish(k, pub[0], pub[1], mk)
        k("s_waitcnt vmcnt(1)")
        k(f"v_cmp_eq_u32 vcc, 0, v{vf}\ns_nop 0")
        k(f"s_and_b32 s81, vcc_lo, s{s_m}\ns_cbranch_scc0 {ok}")
    k(f"s_mov_b32 s96, 0\n{top}:")
    k(ld)
    k("s_waitcnt vmcnt(0)")
    k(f"v_cmp_eq_u32 vcc, 0, v{vf}")
    k("s_add_u32 s96, s96, 1")
    k(f"s_and_b32 s81, vcc_lo, s{s_m}\ns_cbranch_scc0 {ok}")
    k(f"s_sleep {SLEEP}\ns_cmp_lt_u32 s96, 0x40000\ns_cbranch_scc1 {top}")
    k(f"{ok}:")
    add_gate(k, c, T_, ld, vf)
def add_gate(k, c, tile, ld, vf):
    m = Txt(); m.label = k.label
    okl = k.label("gok")
    m(f"v_cmp_eq_u32 vcc, 0, v{vf}\ns_cmp_eq_u64 vcc, 0\ns_cbranch_scc1 {okl}")
    spin(m, [ld], [vf], 0)
    m(f"{okl}:")
    c.gates = list(c.gates) + [(tile, [VM(ld, ("gate", tile))], [WVM([("gate", tile)]), T("\n".join(m.L))])]
one_prod = lambda sp, st: [f"s_lshl_b32 s{st}, 1, s{sp}"]

def allreduce_q(k, op, x, tmp):
    k(f"v_mov_b32 v{tmp}, v{x}\ns_nop 1")
    k(f"v_permlane32_swap_b32 v{x}, v{tmp}")
    k(f"s_nop 1\n{op} v{x}, v{x}, v{tmp}")
    k(f"v_mov_b32 v{tmp}, v{x}\ns_nop 1")
    k(f"v_permlane16_swap_b32 v{x}, v{tmp}")
    k(f"s_nop 1\n{op} v{x}, v{x}, v{tmp}")

def treduce4(k, op, A):
    a, b, c, d = A
    k("s_nop 1")
    k(f"v_permlane32_swap_b32 v{a}, v{b}\nv_permlane32_swap_b32 v{c}, v{d}")
    k("s_nop 1")
    k(f"{op} v{a}, v{a}, v{b}\n{op} v{c}, v{c}, v{d}")
    k("s_nop 1")
    k(f"v_permlane16_swap_b32 v{a}, v{c}")
    k("s_nop 1")
    k(f"{op} v{a}, v{a}, v{c}")
    k(f"v_mov_b32 v{c}, v{a}")
    k("s_nop 1")
    k(f"v_permlane16_swap_b32 v{a}, v{c}")
    k("s_nop 1")
    k(f"v_mov_b32 v{b}, v{a}\nv_mov_b32 v{d}, v{c}")
    k("s_nop 1")
    k(f"v_permlane32_swap_b32 v{a}, v{b}\nv_permlane32_swap_b32 v{c}, v{d}")
    k("s_nop 1")

def treduce4x2(k, ops, As):
    A, B = Txt(), Txt()
    treduce4(A, ops[0], As[0]); treduce4(B, ops[1], As[1])
    def split(L):
        out, cur = [], []
        for x in L:
            if x.startswith("s_nop"): out.append(cur); cur = []
            else: cur.append(x)
        out.append(cur); return out
    for a, b in zip(split(A.L), split(B.L)):
        for x in a + b: k(x)
        k("s_nop 0" if len(a) >= 1 else "s_nop 1")

def red8(k, x):
    for m in ("quad_perm:[1,0,3,2]", "quad_perm:[2,3,0,1]", "row_half_mirror"):
        k(f"s_nop 1\nv_add_f32_dpp v{x}, v{x}, v{x} {m} row_mask:0xf bank_mask:0xf")

def round_bf16(k, v):
    k(f"v_cvt_pk_bf16_f32 v{v}, v{v}, v{v}\nv_and_b32 v{v}, 0xffff0000, v{v}")

S_DLA, S_DLB, S_PTMP = 71, 6, 75
def order(c, k, opt, tag, default):
    o = opt.get(tag + "_ord", default)
    c.first_flag = opt.get(tag + "_ff", "")
    c.tag = tag; c.stamp_every = opt.get(tag + "_se", 0)
    c.fine = opt.get(tag + "_fine", opt.get("fine", 0)); c.bar_frac = opt.get("bar_frac", 0.3)
    c.s_rot, c.s_rot2 = S_R8, S_R4
    if o[0] == "lead":
        c.lead_D, c.s_dl = o[1], S_DLA
    else:
        c.wins = win_mask(o[1])
        if o[2]:
            c.s_start = S_HP
            c.s_rot = c.s_rot2 = S_RB3
def common_gemm(c):
    c.srd_w, c.srd_t = SRD_W, SRD_T
    c.s_kw, c.s_kt, c.s_wbase, c.s_ptmp = S_KW, S_KT, S_WB, S_PTMP

def setup_gemm1(k, opt):
    c = Sched(); common_gemm(c)
    NS, R = opt.get("g1_NS", 4), opt.get("g1_R", 4)
    STAGE = 25344
    c.V_RD, c.V_DMA, c.V_TOK, c.LANE, c.L16, c.VT = 96, 98, 102, 104, 105, 106
    V_RD, V_DMA, V_TOK, LANE, L16, VT = c.V_RD, c.V_DMA, c.V_TOK, c.LANE, c.L16, 110
    k(f"v_lshlrev_b32 v{L16}, 4, v{LANE}")
    c.lead_D, c.s_dl = opt.get("D", 0), S_DLA
    if opt.get("uselead", 0): c.lead_init(k, S_R4, 81)
    c.lead_D = None
    order(c, k, opt, "g1", ["win", [8, 8], 0])
    k(f"s_lshr_b32 s80, s{S_WAVE}, 1\ns_and_b32 s81, s{S_WAVE}, 1")
    k(f"v_lshrrev_b32 v{VT+1}, 3, v{LANE}")
    k(f"v_and_b32 v{VT+2}, 4, v{VT+1}")
    k(f"v_bfe_u32 v{VT+3}, v{VT+1}, 1, 1\nv_or_b32 v{VT+2}, v{VT+2}, v{VT+3}")
    k(f"v_and_b32 v{VT+3}, 1, v{VT+1}\nv_lshl_or_b32 v{VT+2}, v{VT+3}, 1, v{VT+2}")
    k(f"v_mul_u32_u24 v{VT+2}, {4*6144}, v{VT+2}")
    k(f"v_and_b32 v{VT+3}, 7, v{LANE}\nv_lshl_add_u32 v{VT+2}, v{VT+3}, 4, v{VT+2}")
    k("s_lshl_b32 s82, s80, 5\ns_lshl_b32 s83, s81, 1\ns_add_u32 s82, s82, s83\ns_mul_i32 s82, s82, 6144")
    k(f"s_lshl_b32 s83, s{S_HP}, 7\ns_add_u32 s82, s82, s83")
    k(f"v_add_u32 v{V_DMA}, s82, v{VT+2}")
    k(f"v_add_u32 v{V_DMA+1}, 6144, v{V_DMA}\nv_add_u32 v{V_DMA+2}, 4096, v{V_DMA}\nv_add_u32 v{V_DMA+3}, {6144+4096}, v{V_DMA}")
    k(f"v_bfe_u32 v{VT+1}, v{LANE}, 2, 2\nv_mul_u32_u24 v{VT+1}, 1056, v{VT+1}")
    k(f"v_lshrrev_b32 v{VT+2}, 5, v{LANE}\nv_lshl_add_u32 v{VT+1}, v{VT+2}, 9, v{VT+1}")
    k(f"v_bfe_u32 v{VT+2}, v{LANE}, 4, 1\nv_lshl_add_u32 v{VT+1}, v{VT+2}, 7, v{VT+1}")
    k(f"v_and_b32 v{VT+3}, 3, v{LANE}\nv_lshl_add_u32 v{V_RD}, v{VT+3}, 3, v{VT+1}")
    k(f"v_add_u32 v{V_RD+1}, {2*STAGE}, v{V_RD}")
    k(f"s_lshl_b32 s82, s{S_RB1}, 3\ns_lshl_b32 s83, s{S_WAVE}, 1\ns_add_u32 s82, s82, s83\ns_lshl_b32 s82, s82, 15")
    k(f"v_add_u32 v{V_TOK}, s82, v{L16}\nv_add_u32 v{V_TOK+1}, 0x8000, v{V_TOK}")
    k(f"s_mul_i32 s{S_WB}, s80, 4224\ns_mul_i32 s82, s81, 2112\ns_add_u32 s{S_WB}, s{S_WB}, s82")
    c.NB, c.TB, c.KS, c.SPK, c.KT, c.NS, c.R = 12, 2, 1, 2, 16, NS, R
    c.acc = lambda b, t: vr((b * 2 + t) * 4, 4)
    c.tf = lambda slot, ks, t: 96 + (slot * 2 + t) * 4
    c.rd = lambda sl, b, sub, r: (V_RD + sl // 2, (sl % 2) * STAGE + (b // 4) * 8448 + sub * 4224 + r * 256 + (b % 4) * 32)
    c.slot_addr = lambda sl: sl * STAGE
    c.dma = [(V_DMA, 0, 0), (V_DMA + 1, 1056, 0), (V_DMA, 8448, 2048), (V_DMA + 1, 8448 + 1056, 2048), (V_DMA + 2, 16896, 0), (V_DMA + 3, 16896 + 1056, 0)]
    c.v_tok = [V_TOK, V_TOK + 1]
    c.w_stride = 64 * 6144
    c.drop = opt.get("g1_drop", ())
    c.pro_units, c.ramp_rate, c.read_margin = opt.get("g1_pro", 6), opt.get("g1_ramp", 6), opt.get("g1_rm", 6)
    std_sched(c)
    return c

def setup_gemm1s(k, opt):
    c = Sched(); common_gemm(c)
    HS = 8448; STAGE = 2 * HS
    c.V_RD, c.V_DMA, c.V_TOK, c.LANE, c.L16, c.VT = 96, 98, 102, 104, 105, 106
    V_RD, V_DMA, V_TOK, LANE, L16, VT = c.V_RD, c.V_DMA, c.V_TOK, c.LANE, c.L16, 110
    k(f"v_lshlrev_b32 v{L16}, 4, v{LANE}")
    order(c, k, opt, "g1", ["win", [8, 8], 0])
    k(f"s_lshr_b32 s80, s{S_WAVE}, 1\ns_and_b32 s81, s{S_WAVE}, 1")
    k(f"v_lshrrev_b32 v{VT+1}, 3, v{LANE}")
    k(f"v_and_b32 v{VT+2}, 4, v{VT+1}")
    k(f"v_bfe_u32 v{VT+3}, v{VT+1}, 1, 1\nv_or_b32 v{VT+2}, v{VT+2}, v{VT+3}")
    k(f"v_and_b32 v{VT+3}, 1, v{VT+1}\nv_lshl_or_b32 v{VT+2}, v{VT+3}, 1, v{VT+2}")
    k(f"v_mul_u32_u24 v{VT+2}, {4*6144}, v{VT+2}")
    k(f"v_and_b32 v{VT+3}, 7, v{LANE}\nv_lshl_add_u32 v{VT+2}, v{VT+3}, 4, v{VT+2}")
    k("s_lshl_b32 s82, s80, 5\ns_lshl_b32 s83, s81, 1\ns_add_u32 s82, s82, s83\ns_mul_i32 s82, s82, 6144")
    k(f"s_lshl_b32 s83, s{S_HP}, 7\ns_add_u32 s82, s82, s83")
    k(f"v_add_u32 v{V_DMA}, s82, v{VT+2}")
    k(f"v_add_u32 v{V_DMA+1}, 6144, v{V_DMA}\nv_add_u32 v{V_DMA+2}, 2048, v{V_DMA}\nv_add_u32 v{V_DMA+3}, {6144+2048}, v{V_DMA}")
    k(f"v_bfe_u32 v{VT+1}, v{LANE}, 2, 2\nv_mul_u32_u24 v{VT+1}, 1056, v{VT+1}")
    k(f"v_lshrrev_b32 v{VT+2}, 5, v{LANE}\nv_lshl_add_u32 v{VT+1}, v{VT+2}, 9, v{VT+1}")
    k(f"v_bfe_u32 v{VT+2}, v{LANE}, 4, 1\nv_lshl_add_u32 v{VT+1}, v{VT+2}, 7, v{VT+1}")
    k(f"v_and_b32 v{VT+3}, 3, v{LANE}\nv_lshl_add_u32 v{V_RD}, v{VT+3}, 3, v{VT+1}")
    k(f"v_add_u32 v{V_RD+1}, {2*STAGE}, v{V_RD}")
    k(f"s_lshl_b32 s82, s{S_RB1}, 3\ns_lshl_b32 s83, s{S_WAVE}, 1\ns_add_u32 s82, s82, s83\ns_lshl_b32 s82, s82, 15")
    k(f"v_add_u32 v{V_TOK}, s82, v{L16}\nv_add_u32 v{V_TOK+1}, 0x8000, v{V_TOK}")
    k(f"s_mul_i32 s{S_WB}, s80, 4224\ns_mul_i32 s82, s81, 2112\ns_add_u32 s{S_WB}, s{S_WB}, s82")
    c.NB, c.TB, c.KS, c.SPK, c.KT, c.NS, c.R = 8, 2, 1, 2, 16, 4, 32
    c.acc = lambda b, t: vr(32 + (b * 2 + t) * 4, 4)
    c.tf = lambda slot, ks, t: (slot * 2 + t) * 4
    c.rd = lambda sl, b, sub, r: (V_RD + sl // 2, (sl % 2) * STAGE + (b // 4) * HS + sub * 4224 + r * 256 + (b % 4) * 32)
    c.slot_addr = lambda sl: sl * STAGE
    c.dma = [(V_DMA + 2, 0, 0), (V_DMA + 3, 1056, 0), (V_DMA + 2, HS, 2048), (V_DMA + 3, HS + 1056, 2048)]
    c.v_tok = [V_TOK, V_TOK + 1]
    c.w_stride = 64 * 6144
    c.drop = opt.get("g1_drop", ())
    c.pro_units, c.ramp_rate, c.read_margin, c.lookahead = opt.get("g1_pro", 8), opt.get("g1_ramp", 5), 4, opt.get("g1_la", 6)
    c.wreg, c.wbase = vr, 128
    std_sched(c)
    q = Sched(); common_gemm(q)
    q.KT = 16; order(q, k, opt, "g1", ["win", [8, 8], 0]); q.tag = "g1b"; q.stamp_every = opt.get("g1b_se", 0)
    q.s_kw = 70
    QS = [67584 + i * HS for i in range(5)] + [L_R2 + i * HS for i in range(4)] + [i * HS for i in range(7)]
    q.Q1, q.Q2 = V_RD + 1, V_TOK
    def base(kt): return (q.Q1, 67584) if kt < 5 else ((q.Q2, L_R2) if kt < 9 else (V_RD, 0))
    for kt in range(16):
        sw = q.s_kw + kt % 2
        q.stage_units[kt] = [q.pos_items(sw, kt, c.w_stride) + [T(f"s_add_u32 m0, s{S_WB}, {QS[kt]}"), VM(f"buffer_load_dwordx4 v{V_DMA}, {sr(SRD_W,4)}, s{sw} offen lds", ("dma", kt))],
                             [T(f"s_add_u32 m0, s{S_WB}, {QS[kt] + 1056}"), VM(f"buffer_load_dwordx4 v{V_DMA+1}, {sr(SRD_W,4)}, s{sw} offen lds", ("dma", kt))]]
        q.stage_slot[kt] = kt
        va, b0 = base(kt)
        frags = [(va, QS[kt] - b0 + sub * 4224 + b * 32, QS[kt] - b0 + sub * 4224 + 256 + b * 32, [(vr((b * 2 + t) * 4, 4), ((kt * 2 + sub) * 2 + t) * 4) for t in range(2)]) for sub in range(2) for b in range(4)]
        q.steps.append(dict(frags=frags, stages=[kt] if kt != 9 else list(range(9, 16)), toks=[]))
    q.wf = lambda buf, j: (buf * 8 + j) * 4
    q.wreg, q.wbase = vr, 128
    q.pub0 = set(range(9)); q.pro_units = opt.get('q_pro', 2); q.ramp_rate = opt.get('q_ramp', 3); q.read_margin = 4; q.drop = c.drop
    c.q = q
    return c

def merge(a, b, ratio):
    out, b = [], list(b)
    for i, x in enumerate(a):
        out.append(x)
        if b and i % ratio == ratio - 1: out.append(b.pop(0))
    return out + b

def phase_gemm1s(k, c, opt):
    LANE, L16, VT = c.LANE, c.L16, c.VT
    q = c.q
    PHK, VV, SH = 0, 34816, 114688
    p = Txt()
    srd(p, SRD_A, P_WPHI, H * 2048)
    srd(p, SRD_B, P_WS, 2 << 20, WS_KVP)
    srd(p, SRD_C, P_WS, 128 << 10, WS_ZP)
    A_PW, A_VW, A_PR, A_VR, A_WR = 110, 111, 112, 113, 114
    p(f"s_lshr_b32 s80, s{S_WAVE}, 1\ns_and_b32 s81, s{S_WAVE}, 1")
    p(f"v_and_b32 v{VT}, 15, v{LANE}\ns_lshl_b32 s82, s{S_WAVE}, 5\nv_add_u32 v{VT}, s82, v{VT}")
    p(f"v_lshrrev_b32 v{VT+1}, 4, v{LANE}\nv_lshlrev_b32 v{VT+1}, 3, v{VT+1}")
    p(f"v_mul_u32_u24 v{A_PW}, 136, v{VT}\nv_add_u32 v{A_PW}, v{A_PW}, v{VT+1}")
    p(f"v_mul_u32_u24 v{A_VW}, 72, v{VT}\nv_add_u32 v{A_VW}, v{A_VW}, v{VT+1}")
    p(f"v_lshrrev_b32 v{VT}, 2, v{LANE}\nv_and_b32 v{VT+1}, 3, v{LANE}\nv_lshlrev_b32 v{VT+1}, 3, v{VT+1}")
    p(f"s_mul_i32 s82, s80, 17408\ns_lshl_b32 s83, s81, 6\ns_add_u32 s82, s82, s83")
    p(f"v_mul_u32_u24 v{A_PR}, 136, v{VT}\nv_add_u32 v{A_PR}, v{A_PR}, v{VT+1}\nv_add_u32 v{A_PR}, s82, v{A_PR}")
    p(f"s_mul_i32 s82, s80, 9216")
    p(f"v_mul_u32_u24 v{A_VR}, 72, v{VT}\nv_add_u32 v{A_VR}, v{A_VR}, v{VT+1}\nv_add_u32 v{A_VR}, s82, v{A_VR}")
    p(f"v_lshl_add_u32 v{A_WR}, v{VT}, 6, v{VT+1}\nv_add_u32 v{A_WR}, {L_WPH}, v{A_WR}")
    ONES, SEL = 116, 120
    for j in range(4): p(f"v_mov_b32 v{ONES+j}, 0x3f803f80")
    p(f"v_bfe_u32 v{VT}, v{LANE}, 2, 2\nv_lshrrev_b32 v{VT+1}, 4, v{LANE}")
    p(f"v_cmp_eq_u32 vcc, v{VT}, v{VT+1}")
    p(f"v_and_b32 v{VT}, 1, v{LANE}\nv_lshlrev_b32 v{VT}, 4, v{VT}\nv_mov_b32 v{VT+1}, 0x3f80\nv_lshlrev_b32 v{VT+1}, v{VT}, v{VT+1}")
    p(f"v_cndmask_b32 v{VT+1}, 0, v{VT+1}, vcc")
    p(f"v_and_b32 v{VT}, 2, v{LANE}\nv_cmp_eq_u32 vcc, 0, v{VT}")
    for j in (0, 1, 4, 5): p(f"v_mov_b32 v{SEL+j}, 0")
    p(f"v_cndmask_b32 v{SEL+2}, 0, v{VT+1}, vcc\nv_cndmask_b32 v{SEL+3}, v{VT+1}, 0, vcc")
    p(f"s_mov_b32 s94, {LOG2E!r}\ns_mov_b32 s95, {LOG2E!r}")
    p(f"s_lshl_b32 s84, s{S_HP}, 12\ns_lshl_b32 s85, s{S_WAVE}, 10\ns_add_u32 s84, s84, s85\ns_add_u32 s85, s85, {L_WPH}")
    c.pre_loop_txt = p.L
    c.late[4] = ["s_mov_b32 m0, s85", f"buffer_load_dwordx4 v{L16}, {sr(SRD_A,4)}, s84 offen lds"]
    for st_ in opt.get("cp1", [20]): c.late.setdefault(st_, []).extend(code_prefetch_txt(k.name, L16, 254, 80, junk="v31"))
    for st_ in opt.get("cp1b", []): q.late.setdefault(st_, []).extend(code_prefetch_txt(k.name, L16, 254, 80, junk="v252"))
    ts = opt.get("mt_step", None)
    if ts is not None:
        c.late.setdefault(ts, []).extend([f"v_mul_u32_u24 v254, 12288, v{LANE}", f"buffer_load_dword v31, v254, {sr(SRD_D,4)}, s{S_MB} offen"])
        if opt.get("wo_touch", 1):
            c.late[ts].extend([f"s_lshl_b32 s80, s2, 2", f"s_add_u32 s80, s80, s{S_WAVE}", "s_lshl_b32 s80, s80, 11",
                               f"v_and_b32 v254, 15, v{LANE}", "v_lshlrev_b32 v254, 7, v254", "v_add_u32 v254, s80, v254", f"global_load_dword v31, v254, s[{P_WO}:{P_WO+1}]"])
    nq = opt.get("q_in", 10)
    for j in range(nq // 2): c.late.setdefault(32 - nq // 2 + j, []).extend(q.prefetch_txt(2))
    wph_reads = lambda reg, b0: [f"ds_read_b64_tr_b16 {reg(b0+(hh*2+fb)*4+2*r,2)}, v{A_WR} offset:{hh*2048+r*1024+fb*32}" for hh in range(2) for fb in range(2) for r in range(2)]
    c.last_reads = wph_reads(vr, 0)
    c.run(k)
    k.stamp("g1 loop done")
    A = lambda b, t: (b * 2 + t) * 4
    BF, P1, P2, MX, MN, EK = 126, 142, 174, 206, 214, 222
    groups = [(hh, t) for hh in range(2) for t in range(2)]
    def fm_part1(k, seg, ph):
        for g, (hh, t) in enumerate(groups):
            for db in range(2):
                a = A(seg * 4 + hh * 2 + db, t)
                k(f"v_cvt_pk_bf16_f32 v{BF+g*4+db*2}, v{a}, v{a+1}\nv_cvt_pk_bf16_f32 v{BF+g*4+db*2+1}, v{a+2}, v{a+3}")
        k("s_nop 1")
        for g, (hh, t) in enumerate(groups):
            for fb in range(2):
                k(f"{MF} {vr(P1+g*8+fb*4,4)}, {ph(hh*2+fb)}, {vr(BF+g*4,4)}, 0")
    def fm_part2(k):
        for op3, op2, M in (("v_max3_f32", "v_max_f32", MX), ("v_min3_f32", "v_min_f32", MN)):
            for g in range(4):
                b = P1 + g * 8
                k(f"{op3} v{M+2*g}, v{b}, v{b+1}, v{b+2}\n{op3} v{M+2*g}, v{M+2*g}, v{b+3}, v{b+4}\n{op3} v{M+2*g}, v{M+2*g}, v{b+5}, v{b+6}\n{op2} v{M+2*g}, v{M+2*g}, v{b+7}")
        treduce4x2(k, ("v_max_f32", "v_min_f32"), ([MX + 2 * g for g in range(4)], [MN + 2 * g for g in range(4)]))
        for g in range(4):
            k(f"v_mul_f32 v{MX+2*g}, {-LOG2E!r}, v{MX+2*g}\nv_mul_f32 v{MN+2*g}, {LOG2E!r}, v{MN+2*g}")
    def fm_part3(k, E, gs_=range(4)):
        for g in gs_:
            for j in range(4):
                b = g * 8 + 2 * j
                k(f"v_pk_fma_f32 {vr(P2+b,2)}, {vr(P1+b,2)}, s[94:95], {vr(MN+2*g,2)} op_sel_hi:[1,1,0] neg_lo:[1,0,0] neg_hi:[1,0,0]")
                k(f"v_pk_fma_f32 {vr(P1+b,2)}, {vr(P1+b,2)}, s[94:95], {vr(MX+2*g,2)} op_sel_hi:[1,1,0]")
            for j in range(8): k(f"v_exp_f32 v{P1+g*8+j}, v{P1+g*8+j}")
            for j in range(8): k(f"v_exp_f32 v{P2+g*8+j}, v{P2+g*8+j}")
            k("s_nop 0")
            for sg, PP in enumerate((P1, P2)):
                for j in range(4): k(f"v_cvt_pk_bf16_f32 v{E+(g*2+sg)*4+j}, v{PP+g*8+2*j}, v{PP+g*8+2*j+1}")
    mark0 = len(k.L)
    k("s_waitcnt lgkmcnt(0)\ns_nop 7")
    fm_part1(k, 1, lambda i: vr(i * 4, 4))
    k("s_barrier")
    for g, (hh, t) in enumerate(groups):
        for db in range(2):
            a = A(8 + hh * 2 + db, t)
            k(f"v_cvt_pk_bf16_f32 v{a}, v{a}, v{a+1}\nv_cvt_pk_bf16_f32 v{a+1}, v{a+2}, v{a+3}")
            k(f"ds_write_b64 v{A_VW}, {vr(a,2)} offset:{VV + hh*9216 + t*16*72 + db*32}")
    fm_part2(k)
    grp = []
    for j in range(18 - q.pre_dma):
        t_ = q.prefetch_txt(1); grp.append(t_[:-1] + ["s_nop 0", t_[-1]])
    sprinkle(k, mark0, grp, skip=12)
    k.stamp("kp part2")
    fm_part3(k, EK)
    k.stamp("kp part3")
    SM = 32
    k("s_nop 1")
    for i in range(8): k(f"{MF} {vr(SM+4*i,4)}, {vr(ONES,4)}, {vr(EK+4*i,4)}, 0")
    k(f"v_add_u32 v{q.Q1}, 67584, v{c.V_RD}\nv_add_u32 v{q.Q2}, {L_R2}, v{c.V_RD}")
    k("s_nop 5")
    for i in range(8): k(f"v_rcp_f32 v{SM+4*i}, v{SM+4*i}")
    for g, (hh, t) in enumerate(groups):
        for sg, PP in enumerate((P1, P2)):
            for j in range(4):
                k(f"v_pk_mul_f32 {vr(PP+g*8+2*j,2)}, {vr(PP+g*8+2*j,2)}, {vr(SM+(g*2+sg)*4,2)} op_sel_hi:[1,0]")
            for fb in range(2):
                b = PP + g * 8 + fb * 4
                k(f"v_cvt_pk_bf16_f32 v{b}, v{b}, v{b+1}\nv_cvt_pk_bf16_f32 v{b+1}, v{b+2}, v{b+3}")
                k(f"ds_write_b64 v{A_PW}, {vr(b,2)} offset:{PHK + hh*17408 + t*16*136 + sg*64 + fb*32}")
    k.stamp("kp norm")
    k("s_waitcnt lgkmcnt(0)\ns_barrier")
    k.stamp("kp bar")
    FR = 190
    for s_ in range(4):
        for r in range(2):
            for fb in range(2): k(f"ds_read_b64_tr_b16 {vr(FR+s_*16+fb*4+2*r,2)}, v{A_PR} offset:{PHK + (32*s_+16*r)*136 + fb*32}")
            for db in range(2): k(f"ds_read_b64_tr_b16 {vr(FR+s_*16+8+db*4+2*r,2)}, v{A_VR} offset:{VV + (32*s_+16*r)*72 + db*32}")
    k(f"s_lshl_b32 s82, s{S_HP}, 2\ns_add_u32 s82, s82, s{S_WAVE}")
    k("s_lshl_b32 s86, s82, 15")
    k(f"s_lshl_b32 s84, s{S_RB1}, 10\ns_add_u32 s84, s84, s86\ns_add_u32 s85, s84, 16384")
    k("s_lshl_b32 s90, s82, 11")
    k(f"s_lshl_b32 s91, s82, {FS+4}\ns_add_u32 s91, s91, {F_KV}\ns_lshl_b32 s92, s{S_RB1}, {FS}\ns_add_u32 s92, s92, s91")
    k(f"v_and_b32 v{VT}, 15, v{LANE}\nv_cmp_eq_u32 vcc, s{S_RB1}, v{VT}")
    KV, ZZ = 64, 80
    for s_ in range(4):
        k(f"s_waitcnt lgkmcnt({min(15, 24 - 8*s_)})" if s_ < 3 else "s_waitcnt vmcnt(0) lgkmcnt(0)\ns_barrier")
        for fb in range(2):
            for db in range(2):
                d = vr(KV + (db * 2 + fb) * 4, 4)
                k(f"{MF} {d}, {vr(FR+s_*16+fb*4,4)}, {vr(FR+s_*16+8+db*4,4)}, {'0' if s_ == 0 else d}")
            d = vr(ZZ + fb * 4, 4)
            k(f"{MF} {d}, {vr(FR+s_*16+fb*4,4)}, {vr(ONES,4)}, {'0' if s_ == 0 else d}")
    k(f"v_lshlrev_b32 v{VT}, {FS}, v{VT}\nv_mov_b32 v{VT+1}, 1\nv_mov_b32 v{VT+2}, 0")
    k("s_nop 5")
    for db in range(2):
        for j in range(4): k(f"v_cvt_pk_bf16_f32 v{88+db*4+j}, v{KV+db*8+2*j}, v{KV+db*8+2*j+1}")
    k(f"buffer_store_dwordx4 {vr(88,4)}, v{L16}, {sr(SRD_B,4)}, s84 offen sc1")
    k(f"buffer_store_dwordx4 {vr(92,4)}, v{L16}, {sr(SRD_B,4)}, s85 offen sc1")
    k("s_and_saveexec_b64 s[96:97], vcc")
    k(f"buffer_store_dwordx4 {vr(ZZ,4)}, v{L16}, {sr(SRD_C,4)}, s90 offen sc1")
    k(f"buffer_store_dwordx4 {vr(ZZ+4,4)}, v{L16}, {sr(SRD_C,4)}, s90 offen offset:1024 sc1")
    k("s_mov_b64 exec, s[96:97]")
    k.stamp("kv stored")
    KV, ZZ, MW, MC = 72, 88, 32, 64
    q.late[opt.get("kv_ps", 1)] = [WVM([("pre", 0)]), f"buffer_store_dword v{VT+1}, v{VT+2}, {sr(SRD_F,4)}, s92 offen sc1"]
    gs = opt.get("kv_gs", 9)
    ld = f"buffer_load_dword v253, v{VT}, {sr(SRD_F,4)}, s91 offen sc1"
    m = Txt(); m.label = k.label
    okl = k.label("gok")
    m(f"v_cmp_eq_u32 vcc, 0, v253\ns_cmp_eq_u64 vcc, 0\ns_cbranch_scc1 {okl}")
    spin(m, [ld], [253], 0)
    m(f"{okl}:")
    q.late[gs - 2] = [VM(ld, ("kvf", 0))]
    gl = [f"buffer_load_dwordx4 {vr(ZZ,4)}, v{L16}, {sr(SRD_C,4)}, s90 offen sc1", f"buffer_load_dwordx4 {vr(ZZ+4,4)}, v{L16}, {sr(SRD_C,4)}, s90 offen offset:1024 sc1"]
    for i in range(32):
        if i % 4 == 0 and i: gl.append("s_add_u32 s86, s86, 4096")
        gl.append(f"buffer_load_dwordx4 {ar(4*i,4)}, v{L16}, {sr(SRD_B,4)}, s86 offen offset:{(i%4)*1024} sc1")
    n3 = -(-len(gl) // 3)
    q.late[gs] = [WVM([("kvf", 0)]), T("\n".join(m.L))] + gl[:n3]
    q.late[gs + 1] = gl[n3:2*n3]; q.late[gs + 2] = gl[2*n3:]
    t2 = Txt()
    g2 = setup_gemm24(t2, 2, opt, (110, 111, 112, LANE, L16, 98))
    q.late[5] = t2.L[:len(t2.L)//2]; q.late[6] = t2.L[len(t2.L)//2:] + [f"global_load_ushort v{MC+i}, v109, s[{P_C}:{P_C+1}] offset:{i*16}" for i in range(8)]
    assert gs - 2 > 6
    younger = []
    younger += g2.prefetch_txt(8)
    mbl = []
    for i in range(8): mbl += [f"buffer_load_dwordx4 {vr(MW+4*i,4)}, v115, {sr(SRD_D,4)}, s{S_MB} offen", f"s_add_u32 s{S_MB}, s{S_MB}, {8*12288}"]
    mpos = opt.get("mpos", "tail")
    if mpos == "tail": younger += mbl
    ny = sum(1 for x in younger if is_vm(x))
    rest = list(range(gs + 3, 16)); per = -(-len(younger) // len(rest))
    for j, st_ in enumerate(rest): q.late[st_] = younger[j*per:(j+1)*per]
    A_PH = 128
    q.last_reads = wph_reads(ar, A_PH)
    q.run(k)
    k.stamp("g1b done")
    srd(k, SRD_T, P_WS, S * D * 2, WS_O)
    k("s_waitcnt lgkmcnt(0)\ns_nop 3")
    qa = Txt(); fm_part1(qa, 0, lambda i: ar(A_PH + i * 4, 4))
    qa(f"s_waitcnt vmcnt({min(63, ny + 32)})")
    for sh in (8, 4, 2, 1):
        for j in range(8): qa(f"v_add_f32_dpp v{ZZ+j}, v{ZZ+j}, v{ZZ+j} row_ror:{sh} row_mask:0xf bank_mask:0xf")
    for x in qa.L: k(x)
    k.stamp("qp a")
    hs = g2.hs
    qb = Txt(); fm_part2(qb); fm_part3(qb, EK, range(2) if hs else range(4))
    red = []
    for i in range(32):
        db, pp = divmod(i, 16)
        for fb in range(2):
            d = vr(KV + (db * 2 + fb) * 4, 4)
            red.append((f"s_waitcnt vmcnt({ny + 28 - i})\n" if (i % 4 == 0 and fb == 0) else "") + f"{MF} {d}, {vr(SEL + (2 if fb == 0 else 0), 4)}, {ar(4*i,4)}, {'0' if pp == 0 else d}")
    cut = opt.get("q_cut", 150) if not hs else len(qb.L)
    for x in merge(qb.L[:cut], red, 2): k(x)
    if hs:
        k("s_nop 3")
        qb = Txt(); fm_part3(qb, EK, [2]); cut = 0
    k.stamp("qp merged")
    k(f"s_mul_i32 s82, s{S_WAVE}, 3072\ns_add_u32 s82, s82, {SH}")
    k(f"v_add_u32 v{VT+1}, s82, v{L16}\nv_add_u32 v{VT+2}, {SH}, v{L16}")
    k(f"v_and_b32 v{VT}, 1, v{LANE}\nv_cmp_eq_u32 vcc, 0, v{VT}")
    k("s_nop 4")
    for j in range(12): k(f"v_cvt_pk_bf16_f32 v{KV+j}, v{KV+2*j}, v{KV+2*j+1}")
    for j in range(4): k(f"v_cndmask_b32 v{KV+8+j}, v{ONES}, v{KV+8+j}, vcc")
    for j in range(3): k(f"ds_write_b128 v{VT+1}, {vr(KV+4*j,4)} offset:{j*1024}")
    for x in (merge(qb.L[cut:], mbl, 2) if mpos == "q" else qb.L[cut:]): k(x)
    k.stamp("qp rest")
    k("s_waitcnt lgkmcnt(0)\ns_barrier")
    k.stamp("qp bar")
    for i in range(12): k(f"ds_read_b128 {ar(4*i,4)}, v{VT+2} offset:{i*1024}")
    k(f"s_lshl_b32 s82, s{S_RB1}, 3\ns_lshl_b32 s83, s{S_WAVE}, 1\ns_add_u32 s82, s82, s83\ns_lshl_b32 s82, s82, 15")
    k(f"s_lshl_b32 s83, s{S_HP}, 11\ns_add_u32 s82, s82, s83\ns_add_u32 s83, s82, 0x8000")
    k(f"s_lshl_b32 s84, s{S_RB1}, 2\ns_add_u32 s84, s84, s{S_WAVE}\ns_lshl_b32 s84, s84, {FS+4}\ns_lshl_b32 s85, s{S_HP}, {FS}\ns_add_u32 s84, s84, s85\ns_add_u32 s84, s84, {F_O}")
    k("s_waitcnt lgkmcnt(0)")
    NB_ = 126
    def nbase(g): return NB_ + g * 24 if (not hs or g >= 2) else None
    def oregs(g):
        if hs and g < 2: return (0, 12) if g == 0 else (72, 84)
        return (NB_ + g * 24, NB_ + g * 24 + 12)
    def o_mfma(gl):
        for g in gl:
            hh, t = groups[g]
            for sg in range(2):
                for j in range(3):
                    k(f"{MF} {vr(oregs(g)[sg]+4*j,4)}, {ar(((hh*2+sg)*3+j)*4,4)}, {vr(EK+(g*2+sg)*4,4)}, 0")
    def o_fin(gl):
        for g in gl:
            hh, t = groups[g]
            n1, n2 = oregs(g)
            D1, S1, D2, S2 = n1 + 8, n1 + 9, n2 + 8, n2 + 9
            k(f"v_mul_f32 v{n1+10}, v{S1}, v{S2}")
            k(f"v_mul_f32 v{n1+10}, 0x358637bd, v{n1+10}")
            k(f"v_fmac_f32 v{n1+10}, v{D1}, v{S2}\nv_fmac_f32 v{n1+10}, v{D2}, v{S1}")
            k(f"v_rcp_f32 v{n1+10}, v{n1+10}")
            k("s_nop 0")
            k(f"v_mul_f32 v{D1}, v{S2}, v{n1+10}\nv_mul_f32 v{D2}, v{S1}, v{n1+10}")
            for j in range(4): k(f"v_pk_mul_f32 {vr(n1+2*j,2)}, {vr(n1+2*j,2)}, {vr(D1,2)} op_sel_hi:[1,0]")
            for j in range(4): k(f"v_pk_fma_f32 {vr(n1+2*j,2)}, {vr(n2+2*j,2)}, {vr(D2,2)}, {vr(n1+2*j,2)} op_sel_hi:[1,0,1]")
            for j in range(4): k(f"v_cvt_pk_bf16_f32 v{n2+j}, v{n1+2*j}, v{n1+2*j+1}")
            k(f"buffer_store_dwordx4 {vr(n2,4)}, v{L16}, {sr(SRD_T,4)}, s{82+t} offen offset:{hh*1024} sc1")
    if hs:
        o_mfma([0, 1]); k("s_nop 7"); o_fin([0, 1])
        mk0 = len(k.L)
        fm_part3(k, EK, [3])
        k("s_nop 1")
        o_mfma([2, 3]); k("s_nop 7")
        publish(k, 84, VT + 1, mk0)
        k(f"s_add_u32 s95, s84, {F_O2 - F_O}")
        o_fin([2, 3])
    else:
        o_mfma(range(4)); k("s_nop 7"); o_fin(range(4))
    k.stamp("o stored")
    mko = len(k.L)
    g2.V_X = 178
    srd(k, SRD_A, P_X, S * D * 2)
    V_XA = 100
    k(f"v_lshrrev_b32 v{VT+1}, 4, v{LANE}")
    k(f"v_and_b32 v{VT+2}, 15, v{LANE}\nv_lshlrev_b32 v{VT+2}, 11, v{VT+2}\nv_lshl_add_u32 v{V_XA}, v{VT+1}, 3, v{VT+2}")
    k(f"s_lshl_b32 s82, s{S_RB2}, 3\ns_lshl_b32 s83, s{S_WAVE}, 1\ns_add_u32 s82, s82, s83\ns_lshl_b32 s82, s82, 15\ns_lshl_b32 s83, s{S_NT}, 7\ns_add_u32 s82, s82, s83\ns_add_u32 s83, s82, 32768")
    for t in range(2):
        for b in range(4):
            k(f"buffer_load_dwordx2 {vr(g2.V_X+(t*4+b)*2,2)}, v{V_XA}, {sr(SRD_A,4)}, s{82+t} offen offset:{b*32}")
    k.g3 = setup_gemm3_early(k, opt, LANE, 20)
    if not hs: publish(k, 84, VT + 1, mko)
    k.stamp("o published")
    mark1 = len(k.L)
    CU, AU, TT = 0, 16, 24
    for i in range(8): k(f"v_mov_b32 v{CU+2*i}, v{MC+i}")
    silu_block(k, [CU + 2 * i for i in range(8)])
    for i in range(8):
        for d in range(4):
            k(f"v_lshlrev_b32 v{TT}, 16, v{MW+4*i+d}\nv_and_b32 v{TT+1}, 0xffff0000, v{MW+4*i+d}")
            if i == 0: k(f"v_pk_mul_f32 {vr(AU+2*d,2)}, {vr(TT,2)}, {vr(CU,2)} op_sel_hi:[1,0]")
            else: k(f"v_pk_fma_f32 {vr(AU+2*d,2)}, {vr(TT,2)}, {vr(CU+2*i,2)}, {vr(AU+2*d,2)} op_sel_hi:[1,0,1]")
    k("s_nop 1")
    for j in range(4): k(f"v_permlane32_swap_b32 v{AU+j}, v{AU+j+4}")
    k("s_nop 1")
    for j in range(4): k(f"v_add_f32 v{AU+j}, v{AU+j}, v{AU+j+4}")
    k("s_nop 1")
    for j in range(2): k(f"v_permlane16_swap_b32 v{AU+j}, v{AU+j+2}")
    k("s_nop 1")
    for j in range(2): k(f"v_add_f32 v{AU+j}, v{AU+j}, v{AU+j+2}")
    k("s_nop 1")
    for j in range(2): k(f"v_add_f32_dpp v{AU+j}, v{AU+j}, v{AU+j} row_ror:8 row_mask:0xf bank_mask:0xf")
    sprinkle(k, mark1, g3_early_units(k.g3, opt.get("g3_e2", 7), 254), skip=0)
    k(f"v_and_b32 v{TT}, 7, v{LANE}\nv_lshlrev_b32 v{TT}, 5, v{TT}\nv_lshrrev_b32 v{TT+1}, 5, v{LANE}\nv_lshl_add_u32 v{TT}, v{TT+1}, 4, v{TT}")
    k(f"v_bfe_u32 v{TT+1}, v{LANE}, 4, 1\nv_lshl_add_u32 v{TT}, v{TT+1}, 3, v{TT}")
    srd(k, SRD_D, P_WS, MP_BYTES, WS_MODP)
    k(f"v_or_b32 v{AU}, 1, v{AU}\nv_or_b32 v{AU+1}, 1, v{AU+1}")
    k(f"buffer_store_dwordx2 {vr(AU,2)}, v{TT}, {sr(SRD_D,4)}, s{S_MO} offen sc1")
    return g2

A_UT = 176
def silu_block(k, regs):
    for v in regs: k(f"v_lshlrev_b32 v{v}, 16, v{v}\nv_mul_f32 v{v+1}, {-LOG2E!r}, v{v}")
    for v in regs: k(f"v_exp_f32 v{v+1}, v{v+1}")
    k("s_nop 0")
    for v in regs: k(f"v_add_f32 v{v+1}, 1.0, v{v+1}")
    for v in regs: k(f"v_rcp_f32 v{v+1}, v{v+1}")
    k("s_nop 0")
    for v in regs:
        k(f"v_mul_f32 v{v}, v{v}, v{v+1}"); round_bf16(k, v)

def modb_loads(s_off, v_w, v_c):
    out = []
    for i in range(8):
        out.append([f"buffer_load_dwordx4 {ar(A_UT+4*i,4)}, v{v_w}, {sr(SRD_D,4)}, s{s_off} offen", f"s_add_u32 s{s_off}, s{s_off}, {8*12288}"])
    return out

def red32(k, x, t):
    red8(k, x)
    k(f"s_nop 1\nv_add_f32_dpp v{x}, v{x}, v{x} row_mirror row_mask:0xf bank_mask:0xf")
    k(f"v_mov_b32 v{t}, v{x}\ns_nop 1\nv_permlane16_swap_b32 v{x}, v{t}\ns_nop 1\nv_add_f32 v{x}, v{x}, v{t}")

def ids(k):
    k("v_lshrrev_b32 v1, 6, v0")
    k(f"s_and_b32 s{S_XCD}, s2, 7\ns_lshr_b32 s{S_IDX}, s2, 3")
    k(f"v_readfirstlane_b32 s{S_WAVE}, v1")
    k(f"s_bfe_u32 s{S_RB1}, s{S_XCD}, 0x10001\ns_lshl_b32 s{S_RB1}, s{S_RB1}, 3\ns_lshr_b32 s80, s{S_IDX}, 2\ns_add_u32 s{S_RB1}, s{S_RB1}, s80")
    k(f"s_lshr_b32 s{S_HP}, s{S_XCD}, 2\ns_lshl_b32 s{S_HP}, s{S_HP}, 2\ns_and_b32 s80, s{S_IDX}, 3\ns_add_u32 s{S_HP}, s{S_HP}, s80\ns_lshl_b32 s{S_HP}, s{S_HP}, 1\ns_and_b32 s80, s{S_XCD}, 1\ns_add_u32 s{S_HP}, s{S_HP}, s80")

def build_k0(instr=False, opt=None, name="mod_kernel", mega="mega_kernel"):
    opt = opt or {}
    k = Kernel(name, 256, 256, 4096, vgpr=128, sgpr=102)
    k.instr = instr; k.s_wave = S_WAVE
    stamp(k, 0)
    end = k.label("end")
    k(f"s_cmp_ge_u32 s2, 256\ns_cbranch_scc1 {end}")
    k("s_load_dwordx4 s[12:15], s[0:1], 64")
    k("s_load_dwordx8 s[4:11], s[0:1], 0")
    k("s_load_dwordx2 s[28:29], s[0:1], 96")
    ids(k)
    LANE, T, V_W = 104, 48, 105
    WA, CA, XR, XF, A0, SU = 64, 80, 84, 0, 32, 100
    k(f"v_and_b32 v{LANE}, 63, v0")
    k(f"v_lshrrev_b32 v{T+1}, 3, v{LANE}\nv_and_b32 v{T+2}, 7, v{LANE}")
    k(f"v_mul_u32_u24 v{V_W}, 12288, v{T+1}\nv_lshl_add_u32 v{V_W}, v{T+2}, 4, v{V_W}")
    k(f"s_lshl_b32 s64, s{S_RB1}, 6\ns_lshl_b32 s65, s{S_WAVE}, 4\ns_add_u32 s64, s64, s65")
    k(f"v_add_u32 v{T+3}, s64, v{T+1}\nv_lshlrev_b32 v{T+3}, 1, v{T+3}")
    k(f"s_mul_i32 s67, s64, 12288\ns_lshl_b32 s66, s{S_HP}, 7\ns_add_u32 s67, s67, s66\ns_add_u32 s68, s67, {8*12288}")
    k(f"v_lshrrev_b32 v{T+4}, 5, v{LANE}\nv_lshlrev_b32 v{T+4}, 11, v{T+4}\nv_and_b32 v{T+5}, 31, v{LANE}\nv_lshl_add_u32 v{T+4}, v{T+5}, 4, v{T+4}")
    k(f"s_lshl_b32 s69, s{S_RB1}, 4\ns_add_u32 s69, s69, s{S_HP}")
    k(f"s_lshl_b32 s70, s69, 14\ns_lshl_b32 s71, s{S_WAVE}, 12\ns_add_u32 s70, s70, s71")
    k("s_waitcnt lgkmcnt(0)")
    srd(k, SRD_D, 14, D * 6 * D * 2)
    srd(k, SRD_A, P_X, S * D * 2)
    for i in range(2): k(f"global_load_ushort v{CA+2*i}, v{T+3}, s[12:13] offset:{i*16}")
    for i in range(2):
        for v in range(2): k(f"buffer_load_dwordx4 {vr(WA+(i*2+v)*4,4)}, v{V_W}, {sr(SRD_D,4)}, s{67+i} offen offset:{v*2048}")
    for i in range(4): k(f"buffer_load_dwordx4 {vr(XR+4*i,4)}, v{T+4}, {sr(SRD_A,4)}, s70 offen offset:{i*512}")
    stamp(k, 1)
    lab = k.label("pc")
    k(f"s_getpc_b64 s[60:61]\n{lab}:")
    k(f"s_add_u32 s60, s60, {mega}-{lab}\ns_addc_u32 s61, s61, 0")
    k(f"v_lshlrev_b32 v{T+6}, 4, v{LANE}")
    for x in code_prefetch_txt(mega, T + 6, T + 7, 62, s_pc=60, junk="v110"): k(x)
    srd(k, SRD_B, P_WS, MP_BYTES, WS_MODP)
    srd(k, SRD_F, P_WS, FLAG_BYTES, WS_FLAG)
    srd(k, SRD_C, P_WS, S * 128, WS_STAT)
    k(f"v_mov_b32 v{T+8}, 0\nv_lshlrev_b32 v{T+9}, 2, v0\ns_lshl_b32 s62, s2, 10\ns_add_u32 s63, s62, {MP_B}")
    k(f"v_lshlrev_b32 v{T+10}, {FS}, v0\ns_lshl_b32 s66, s2, {FS+8}")
    k(f"buffer_store_dword v{T+8}, v{T+10}, {sr(SRD_F,4)}, s66 offen")
    k(f"buffer_store_dword v{T+8}, v{T+9}, {sr(SRD_C,4)}, s62 offen")
    k(f"buffer_store_dword v{T+8}, v{T+9}, {sr(SRD_B,4)}, s63 offen")
    young = 4
    k(f"s_lshl_b32 s62, s2, 2\ns_add_u32 s62, s62, s{S_WAVE}")
    for ptr, per, tag in ((P_WQKV, 6, "t_wq"), (P_WO, 2, "t_wo"), (14, 12, "t_wm")):
        if not opt.get(tag, 1): continue
        k(f"s_mul_i32 s63, s62, {per*1024}\ns_add_u32 s63, s63, 384")
        k(f"v_min_u32 v{T+14}, {per-1}, v{LANE}\nv_lshlrev_b32 v{T+14}, 10, v{T+14}\nv_add_u32 v{T+14}, s63, v{T+14}")
        k(f"global_load_dword v110, v{T+14}, s[{ptr}:{ptr+1}]")
        young += 1
    k(f"s_waitcnt vmcnt({young + 8})")
    silu_block(k, [CA, CA + 2])
    k(f"s_waitcnt vmcnt({young + 4})")
    for i in range(2):
        for v in range(2):
            for d in range(4):
                w_ = WA + (i * 2 + v) * 4 + d
                k(f"v_lshlrev_b32 v{T+10}, 16, v{w_}\nv_and_b32 v{T+11}, 0xffff0000, v{w_}")
                if i == 0: k(f"v_pk_mul_f32 {vr(A0+v*8+2*d,2)}, {vr(T+10,2)}, {vr(CA,2)} op_sel_hi:[1,0]")
                else: k(f"v_pk_fma_f32 {vr(A0+v*8+2*d,2)}, {vr(T+10,2)}, {vr(CA+2,2)}, {vr(A0+v*8+2*d,2)} op_sel_hi:[1,0,1]")
    k("s_nop 1")
    for j in range(8): k(f"v_permlane32_swap_b32 v{A0+j}, v{A0+8+j}")
    k("s_nop 1")
    for j in range(8): k(f"v_add_f32 v{A0+j}, v{A0+j}, v{A0+8+j}")
    k("s_nop 1")
    for j in range(4): k(f"v_permlane16_swap_b32 v{A0+j}, v{A0+4+j}")
    k("s_nop 1")
    for j in range(4): k(f"v_add_f32 v{A0+j}, v{A0+j}, v{A0+4+j}")
    k("s_nop 1")
    for j in range(4): k(f"v_add_f32_dpp v{A0+j}, v{A0+j}, v{A0+j} row_ror:8 row_mask:0xf bank_mask:0xf")
    k(f"v_lshrrev_b32 v{T+12}, 5, v{LANE}\nv_lshlrev_b32 v{T+13}, 8, v{T+12}\nv_lshl_add_u32 v{T+13}, v{T+2}, 5, v{T+13}")
    k(f"v_bfe_u32 v{T+10}, v{LANE}, 4, 1\nv_lshl_add_u32 v{T+13}, v{T+10}, 4, v{T+13}\ns_lshl_b32 s62, s{S_WAVE}, 9\nv_add_u32 v{T+13}, s62, v{T+13}")
    k(f"ds_write_b128 v{T+13}, {vr(A0,4)}")
    k("s_waitcnt lgkmcnt(0)\ns_barrier")
    nw0 = k.label("notw0")
    k(f"s_cmp_lg_u32 s{S_WAVE}, 0\ns_cbranch_scc1 {nw0}")
    k(f"v_lshlrev_b32 v{T+13}, 3, v{LANE}")
    for w in range(4): k(f"ds_read_b64 {vr(A0+2*w,2)}, v{T+13} offset:{w*512}")
    k(f"s_lshl_b32 s62, s{S_HP}, 13\ns_lshl_b32 s63, s{S_RB1}, 9\ns_add_u32 s63, s63, s62")
    k("s_waitcnt lgkmcnt(0)")
    k(f"v_pk_add_f32 {vr(A0,2)}, {vr(A0,2)}, {vr(A0+2,2)}\nv_pk_add_f32 {vr(A0+4,2)}, {vr(A0+4,2)}, {vr(A0+6,2)}\nv_pk_add_f32 {vr(A0,2)}, {vr(A0,2)}, {vr(A0+4,2)}")
    k(f"buffer_store_dwordx2 {vr(A0,2)}, v{T+13}, {sr(SRD_B,4)}, s63 offen")
    k(f"{nw0}:")
    stamp(k, 2)
    k(f"s_waitcnt vmcnt({young})")
    for d in range(16): k(f"v_lshlrev_b32 v{XF+2*d}, 16, v{XR+d}\nv_and_b32 v{XF+2*d+1}, 0xffff0000, v{XR+d}")
    k(f"v_pk_add_f32 {vr(SU,2)}, {vr(XF,2)}, {vr(XF+2,2)}")
    for d in range(2, 16): k(f"v_pk_add_f32 {vr(SU,2)}, {vr(SU,2)}, {vr(XF+2*d,2)}")
    k(f"v_add_f32 v{SU}, v{SU}, v{SU+1}")
    red32(k, SU, SU + 1)
    k(f"v_mul_f32 v{SU+2}, {-1.0/1024!r}, v{SU}")
    k(f"v_mov_b32 v{SU}, 0\nv_mov_b32 v{SU+1}, 0")
    for d in range(16):
        k(f"v_pk_add_f32 {vr(XF+2*d,2)}, {vr(XF+2*d,2)}, {vr(SU+2,2)} op_sel_hi:[1,0]")
        k(f"v_pk_fma_f32 {vr(SU,2)}, {vr(XF+2*d,2)}, {vr(XF+2*d,2)}, {vr(SU,2)}")
    k(f"v_add_f32 v{SU}, v{SU}, v{SU+1}")
    red32(k, SU, SU + 1)
    k(f"v_mov_b32 v{SU+1}, 0x3727c5ac\nv_fmac_f32 v{SU+1}, {1.0/1024!r}, v{SU}\nv_rsq_f32 v{SU+3}, v{SU+1}")
    k(f"s_lshl_b32 s62, s69, 6\ns_lshl_b32 s63, s{S_WAVE}, 4\ns_add_u32 s62, s62, s63\ns_add_u32 s62, s62, {MP_RS}\nv_lshlrev_b32 v{T+12}, 3, v{T+12}")
    k(f"buffer_store_dwordx2 {vr(SU+2,2)}, v{T+12}, {sr(SRD_B,4)}, s62 offen")
    stamp(k, 3)
    if instr: k("s_waitcnt vmcnt(0)")
    stamp(k, 4)
    stamp_flush(k, 28, 5, 4, slot=1)
    k(f"{end}:\ns_endpgm")
    return k

def phase_front_fused(k, opt, name):
    LANE, L16 = 104, 105
    T = 48
    V_W, V_C = 115, 109
    WA, CA, XR, XT_, XF, A0, SU, G, M, RS = 64, 80, 128, 144, 0, 200, 216, 160, 32, 84
    HL = 2 * 25344
    k(f"v_lshrrev_b32 v{T+1}, 3, v{LANE}\nv_and_b32 v{T+2}, 7, v{LANE}")
    k(f"v_mul_u32_u24 v{V_W}, 12288, v{T+1}\nv_lshl_add_u32 v{V_W}, v{T+2}, 4, v{V_W}")
    k(f"s_lshl_b32 s84, s{S_RB1}, 6")
    k(f"v_add_u32 v{V_C}, s84, v{T+1}\nv_lshlrev_b32 v{V_C}, 1, v{V_C}")
    k(f"s_lshl_b32 s85, s{S_WAVE}, 5\nv_add_u32 v{T+3}, s85, v{V_C}")
    k(f"s_mul_i32 s86, s84, 12288\ns_lshl_b32 s87, s{S_HP}, 7\ns_add_u32 s86, s86, s87")
    k(f"s_mul_i32 s87, s{S_WAVE}, {16*12288}\ns_add_u32 s87, s87, s86\ns_add_u32 s88, s87, {8*12288}")
    k(f"v_lshrrev_b32 v{T+4}, 5, v{LANE}\nv_lshlrev_b32 v{T+4}, 11, v{T+4}\nv_and_b32 v{T+5}, 31, v{LANE}\nv_lshl_add_u32 v{T+4}, v{T+5}, 4, v{T+4}")
    k(f"s_lshl_b32 s89, s{S_RB1}, 4\ns_add_u32 s89, s89, s{S_HP}")
    k(f"s_lshl_b32 s90, s89, 14\ns_lshl_b32 s91, s{S_WAVE}, 12\ns_add_u32 s90, s90, s91")
    k(f"v_mov_b32 v{T+8}, 0\nv_mov_b32 v{T+9}, 0\nv_mov_b32 v{T+10}, 0\nv_mov_b32 v{T+11}, 0\nv_mov_b32 v{T+12}, 1")
    k(f"v_lshlrev_b32 v{T+7}, {FS}, v{LANE}")
    k(f"s_lshl_b32 s93, s2, {FS+6}\ns_add_u32 s93, s93, {F_S0}\ns_cmp_lt_u32 s2, 4\ns_cselect_b32 s93, s93, 0x7ff00000\ns_cmp_eq_u32 s{S_WAVE}, 3\ns_cselect_b32 s93, s93, 0x7ff00000")
    k("s_waitcnt lgkmcnt(0)")
    srd(k, SRD_F, P_WS, FLAG_BYTES, WS_FLAG)
    k(f"buffer_store_dword v{T+8}, v{T+7}, {sr(SRD_F,4)}, s93 offen sc1")
    k(f"s_mov_b32 s{SRD_T}, s{P_DBG}\ns_mov_b32 s{SRD_T+1}, s{P_DBG+1}\ns_mov_b32 s{SRD_T+2}, 256\ns_mov_b32 s{SRD_T+3}, 0x20000")
    k("s_mov_b32 s95, s93")
    srd(k, SRD_D, P_WMOD, D * 6 * D * 2)
    srd(k, SRD_A, P_X, S * D * 2)
    for i in range(2): k(f"global_load_ushort v{CA+2*i}, v{T+3}, s[{P_C}:{P_C+1}] offset:{i*16}")
    for i in range(2):
        for v in range(2): k(f"buffer_load_dwordx4 {vr(WA+(i*2+v)*4,4)}, v{V_W}, {sr(SRD_D,4)}, s{87+i} offen offset:{v*2048}")
    for i in range(4): k(f"buffer_load_dwordx4 {vr(XR+4*i,4)}, v{T+4}, {sr(SRD_A,4)}, s90 offen offset:{i*512}")
    k.stamp("loads issued")
    srd(k, SRD_B, P_WS, MP_BYTES, WS_MODP)
    srd(k, SRD_C, P_WS, S * 128, WS_STAT)
    w3, jn = k.label("w3"), k.label("join")
    k(f"s_cmp_eq_u32 s{S_WAVE}, 3\ns_cbranch_scc1 {w3}")
    k(f"s_lshl_b32 s92, s2, 1\ns_add_u32 s92, s92, s{S_WAVE}\ns_sub_u32 s92, s92, 1")
    nt_ = k.label("notouch")
    k("s_mov_b32 s93, 0x7ff00000")
    for i in range(2): k(f"buffer_load_dword a233, v{V_W}, {sr(SRD_D,4)}, s93 offen")
    k(f"s_cmp_eq_u32 s{S_WAVE}, 0\ns_cbranch_scc1 {nt_}")
    for ptr, per in ((P_WQKV, 12), (P_WO, 4), (P_WMOD, 24)):
        k(f"s_mul_i32 s93, s92, {per}\nv_min_u32 v{T+14}, {per-1}, v{LANE}\nv_add_u32 v{T+14}, s93, v{T+14}")
        k(f"v_lshlrev_b32 v{T+14}, 10, v{T+14}")
        k(f"global_load_dword a232, v{T+14}, s[{ptr}:{ptr+1}] offset:384")
    k(f"s_branch {jn}")
    k(f"{nt_}:")
    for i in range(3): k(f"buffer_load_dword a233, v{V_W}, {sr(SRD_D,4)}, s93 offen")
    k(f"s_branch {jn}")
    k(f"{w3}:")
    nb = k.label("nboot")
    k(f"s_cmp_eq_u32 s95, 0x7ff00000\ns_cbranch_scc1 {nb}")
    k("s_lshl_b32 s93, s2, 2\ns_waitcnt vmcnt(10)")
    k(f"buffer_store_dword v{T+12}, v{T+8}, {sr(SRD_T,4)}, s93 offen sc1")
    k(f"{nb}:")
    k(f"v_and_b32 v{T+14}, 3, v{LANE}\nv_lshlrev_b32 v{T+14}, 4, v{T+14}")
    k(f"s_lshl_b32 s93, s{S_RB1}, 6\ns_add_u32 s93, s93, s{S_HP}\nv_add_u32 v{T+15}, s93, v{T+14}")
    k(f"s_lshl_b32 s93, s{S_HP}, 6\ns_add_u32 s93, s93, s{S_RB1}\ns_add_u32 s93, s93, 1024\nv_add_u32 v{T+14}, s93, v{T+14}")
    k(f"v_cmp_gt_u32 vcc, 4, v{LANE}\ns_mul_i32 s93, s2, 24\ns_add_u32 s93, s93, 2040")
    k(f"v_cndmask_b32 v{T+14}, v{T+14}, v{T+15}, vcc\nv_add_u32 v{T+15}, s93, v{LANE}")
    k(f"v_cmp_gt_u32 vcc, 8, v{LANE}\ns_nop 1\nv_cndmask_b32 v{T+14}, v{T+15}, v{T+14}, vcc")
    k(f"v_cmp_gt_u32 vcc, 32, v{LANE}\nv_mov_b32 v{T+15}, 0x100000\ns_nop 0\nv_cndmask_b32 v{T+14}, v{T+15}, v{T+14}, vcc")
    k(f"v_lshlrev_b32 v{T+14}, {FS}, v{T+14}")
    k(f"buffer_store_dword v{T+8}, v{T+14}, {sr(SRD_F,4)}, 0 offen sc1")
    k("s_mov_b32 s93, 0x7ff00000")
    for i in range(2): k(f"buffer_load_dword a233, v{V_W}, {sr(SRD_D,4)}, s93 offen")
    k("s_lshl_b32 s93, s2, 10")
    k(f"buffer_store_dwordx4 {vr(T+8,4)}, v{L16}, {sr(SRD_C,4)}, s93 offen sc1")
    k(f"s_add_u32 s93, s93, {MP_B}")
    k(f"buffer_store_dwordx4 {vr(T+8,4)}, v{L16}, {sr(SRD_B,4)}, s93 offen sc1")
    k(f"{jn}:")
    k(f"v_lshlrev_b32 v{T+5}, 11, v{T+1}\nv_lshl_add_u32 v{T+5}, v{T+2}, 4, v{T+5}")
    k(f"s_lshl_b32 s91, s{S_RB1}, 18\ns_lshl_b32 s92, s{S_WAVE}, 16\ns_add_u32 s91, s91, s92\ns_lshl_b32 s92, s{S_HP}, 7\ns_add_u32 s91, s91, s92")
    for i in range(4):
        k(f"buffer_load_dwordx4 {vr(XT_+4*i,4)}, v{T+5}, {sr(SRD_A,4)}, s91 offen")
        if i < 3: k("s_add_u32 s91, s91, 16384")
    k(f"s_lshl_b32 s94, s{S_WAVE}, 11\ns_add_u32 s{S_MB}, s86, s94\ns_add_u32 s{S_MB}, s{S_MB}, 4096")
    k(f"s_lshl_b32 s94, s{S_WAVE}, 16\ns_lshl_b32 s95, s{S_HP}, 12\ns_add_u32 s94, s94, s95\ns_lshl_b32 s95, s{S_RB1}, 8\ns_add_u32 s94, s94, s95\ns_add_u32 s{S_MO}, s94, {MP_B}")
    young = 9
    k.stamp("all issued")
    k(f"s_waitcnt vmcnt({young + 8})")
    k.stamp("c ready")
    silu_block(k, [CA, CA + 2])
    k(f"s_waitcnt vmcnt({young + 4})")
    k.stamp("w ready")
    for i in range(2):
        for v in range(2):
            for d in range(4):
                w_ = WA + (i * 2 + v) * 4 + d
                k(f"v_lshlrev_b32 v{T+14}, 16, v{w_}\nv_and_b32 v{T+15}, 0xffff0000, v{w_}")
                if i == 0: k(f"v_pk_mul_f32 {vr(A0+v*8+2*d,2)}, {vr(T+14,2)}, {vr(CA,2)} op_sel_hi:[1,0]")
                else: k(f"v_pk_fma_f32 {vr(A0+v*8+2*d,2)}, {vr(T+14,2)}, {vr(CA+2,2)}, {vr(A0+v*8+2*d,2)} op_sel_hi:[1,0,1]")
    k("s_nop 1")
    for j in range(8): k(f"v_permlane32_swap_b32 v{A0+j}, v{A0+8+j}")
    k("s_nop 1")
    for j in range(8): k(f"v_add_f32 v{A0+j}, v{A0+j}, v{A0+8+j}")
    k("s_nop 1")
    for j in range(4): k(f"v_permlane16_swap_b32 v{A0+j}, v{A0+4+j}")
    k("s_nop 1")
    for j in range(4): k(f"v_add_f32 v{A0+j}, v{A0+j}, v{A0+4+j}")
    k("s_nop 1")
    for j in range(4): k(f"v_add_f32_dpp v{A0+j}, v{A0+j}, v{A0+j} row_ror:8 row_mask:0xf bank_mask:0xf")
    k(f"v_lshrrev_b32 v{T+13}, 5, v{LANE}\nv_lshlrev_b32 v{T+14}, 8, v{T+13}\nv_lshl_add_u32 v{T+14}, v{T+2}, 5, v{T+14}")
    k(f"v_bfe_u32 v{T+15}, v{LANE}, 4, 1\nv_lshl_add_u32 v{T+14}, v{T+15}, 4, v{T+14}\ns_lshl_b32 s94, s{S_WAVE}, 9\nv_add_u32 v{T+14}, s94, v{T+14}")
    k(f"ds_write_b128 v{T+14}, {vr(A0,4)} offset:{HL}")
    k(f"s_waitcnt vmcnt({young})")
    for d in range(16): k(f"v_lshlrev_b32 v{XF+2*d}, 16, v{XR+d}\nv_and_b32 v{XF+2*d+1}, 0xffff0000, v{XR+d}")
    k(f"v_pk_add_f32 {vr(SU,2)}, {vr(XF,2)}, {vr(XF+2,2)}")
    for d in range(2, 16): k(f"v_pk_add_f32 {vr(SU,2)}, {vr(SU,2)}, {vr(XF+2*d,2)}")
    k(f"v_add_f32 v{SU}, v{SU}, v{SU+1}")
    red32(k, SU, SU + 1)
    k(f"v_mul_f32 v{SU+2}, {-1.0/1024!r}, v{SU}")
    k(f"v_mov_b32 v{SU}, 0\nv_mov_b32 v{SU+1}, 0")
    for d in range(16):
        k(f"v_pk_add_f32 {vr(XF+2*d,2)}, {vr(XF+2*d,2)}, {vr(SU+2,2)} op_sel_hi:[1,0]")
        k(f"v_pk_fma_f32 {vr(SU,2)}, {vr(XF+2*d,2)}, {vr(XF+2*d,2)}, {vr(SU,2)}")
    k(f"v_add_f32 v{SU}, v{SU}, v{SU+1}")
    red32(k, SU, SU + 1)
    k(f"v_mov_b32 v{SU+1}, 0x3727c5ac\nv_fmac_f32 v{SU+1}, {1.0/1024!r}, v{SU}\nv_rsq_f32 v{SU+3}, v{SU+1}")
    k(f"s_lshl_b32 s94, s{S_WAVE}, 4\nv_lshlrev_b32 v{T+13}, 3, v{T+13}\nv_add_u32 v{T+13}, s94, v{T+13}")
    k(f"ds_write_b64 v{T+13}, {vr(SU+2,2)} offset:{HL+2048}")
    n3 = k.label("not3")
    k(f"s_cmp_lg_u32 s{S_WAVE}, 3\ns_cbranch_scc1 {n3}")
    k(f"v_and_b32 v{T+14}, 3, v{LANE}\nv_lshlrev_b32 v{T+14}, 2, v{T+14}")
    spin(k, [f"buffer_load_dword v{T+13}, v{T+14}, {sr(SRD_T,4)}, 0 offen sc1"], [T + 13], 0)
    k(f"{n3}:")
    k("s_waitcnt lgkmcnt(0)\ns_barrier")
    k.stamp("partials")
    nw0 = k.label("notw0")
    k(f"v_lshlrev_b32 v{T+6}, 3, v{LANE}")
    k(f"s_cmp_lg_u32 s{S_WAVE}, 0\ns_cbranch_scc1 {nw0}")
    for w in range(4): k(f"ds_read_b64 {vr(A0+2*w,2)}, v{T+6} offset:{HL+w*512}")
    k(f"v_and_b32 v{T+9}, 0x38, v{T+6}")
    k(f"ds_read_b64 {vr(A0+8,2)}, v{T+9} offset:{HL+2048}")
    k(f"s_lshl_b32 s94, s{S_HP}, 13\ns_lshl_b32 s95, s{S_RB1}, 9\ns_add_u32 s95, s95, s94")
    k(f"s_lshl_b32 s90, s89, 6\ns_add_u32 s90, s90, {MP_RS}")
    k("s_waitcnt lgkmcnt(0)")
    k(f"v_pk_add_f32 {vr(A0,2)}, {vr(A0,2)}, {vr(A0+2,2)}\nv_pk_add_f32 {vr(A0+4,2)}, {vr(A0+4,2)}, {vr(A0+6,2)}\nv_pk_add_f32 {vr(A0,2)}, {vr(A0,2)}, {vr(A0+4,2)}")
    k(f"buffer_store_dwordx2 {vr(A0,2)}, v{T+6}, {sr(SRD_B,4)}, s95 offen sc1")
    k(f"buffer_store_dwordx2 {vr(A0+8,2)}, v{T+9}, {sr(SRD_B,4)}, s90 offen sc1")
    k(f"s_lshl_b32 s90, s89, {FS}\ns_add_u32 s90, s90, {F_S0}")
    k("s_waitcnt vmcnt(0)")
    k(f"buffer_store_dword v{T+12}, v{T+8}, {sr(SRD_F,4)}, s90 offen sc1")
    if opt.get("modb_front", 0):
        sk_ = k.label("skmf")
        k(f"s_branch {sk_}")
        k(f"{nw0}:")
        k("s_waitcnt vmcnt(0)")
        for g in modb_loads(S_MB, V_W, V_C):
            for x in g: k(x)
        k(f"s_mov_b32 s{S_MB}, 0x7ff00000")
        k(f"{sk_}:")
    else:
        k(f"{nw0}:")
    k.stamp("s0 published")
    split = opt.get("split", 1)
    g1 = (setup_gemm1s if split else setup_gemm1)(k, opt)
    srd(k, SRD_W, P_WQKV, D * 3 * D * 2)
    if not opt.get("modb_front", 0):
        k("s_waitcnt vmcnt(1)")
        k(f"s_cmp_eq_u32 s{S_WAVE}, 0\ns_cbranch_scc1 1\ns_waitcnt vmcnt(0)")
    for d in range(16): k(f"v_lshlrev_b32 v{XF+2*d}, 16, v{XT_+d}\nv_and_b32 v{XF+2*d+1}, 0xffff0000, v{XT_+d}")
    VS = T + 4
    k(f"v_lshrrev_b32 v{VS}, 2, v{T+2}\nv_lshlrev_b32 v{VS}, 10, v{VS}")
    k(f"v_and_b32 v{T+3}, 3, v{T+2}\nv_lshl_add_u32 v{VS}, v{T+3}, 8, v{VS}\nv_lshl_add_u32 v{VS}, v{T+1}, 4, v{VS}")
    k(f"s_lshl_b32 s86, s{S_RB1}, 3\ns_lshl_b32 s87, s{S_WAVE}, 1\ns_add_u32 s86, s86, s87\ns_lshl_b32 s86, s86, 15\ns_lshl_b32 s87, s{S_HP}, 11\ns_add_u32 s86, s86, s87\ns_add_u32 s87, s86, 0x8000")
    k(f"s_lshl_b32 s88, s{S_RB1}, 2\ns_add_u32 s88, s88, s{S_WAVE}\ns_lshl_b32 s88, s88, {FS+4}\ns_add_u32 s88, s88, {F_H}\ns_lshl_b32 s89, s{S_HP}, {FS}\ns_add_u32 s89, s89, s88")
    k(f"v_lshlrev_b32 v{T+5}, 5, v{T+2}")
    k(f"s_lshl_b32 s92, s{S_WAVE}, 8\nv_lshlrev_b32 v{T+7}, 3, v{T+1}\nv_add_u32 v{T+7}, s92, v{T+7}")
    nw1 = k.label("notw0b")
    k(f"s_cmp_lg_u32 s{S_WAVE}, 0\ns_cbranch_scc1 {nw1}")
    k(f"v_and_b32 v{T+9}, 15, v{LANE}\ns_lshl_b32 s92, s{S_RB1}, 4\nv_add_u32 v{T+10}, s92, v{T+9}\nv_lshlrev_b32 v{T+9}, 4, v{T+9}\nv_add_u32 v{T+9}, s{S_HP}, v{T+9}")
    k(f"v_and_b32 v{T+11}, 16, v{LANE}\nv_cmp_eq_u32 vcc, 0, v{T+11}\ns_mov_b32 s92, {F_S0}\ns_nop 0")
    k(f"v_cndmask_b32 v{T+9}, v{T+9}, v{T+10}, vcc\nv_lshlrev_b32 v{T+9}, {FS}, v{T+9}")
    spin(k, [f"buffer_load_dword v{T+13}, v{T+9}, {sr(SRD_F,4)}, s92 offen sc1"], [T + 13], 0)
    k(f"s_lshl_b32 s94, s{S_HP}, 13\ns_add_u32 s95, s94, 4096")
    for p_ in range(16): k(f"buffer_load_dwordx2 {vr(G+2*p_,2)}, v{T+6}, {sr(SRD_B,4)}, s{94+p_//8} offen offset:{(p_%8)*512} sc1")
    k(f"s_lshl_b32 s90, s{S_RB1}, 10\ns_add_u32 s90, s90, {MP_RS}")
    k(f"buffer_load_dwordx4 {vr(A0+8,4)}, v{L16}, {sr(SRD_B,4)}, s90 offen sc1")
    k(f"v_cmp_lt_u32 vcc, 31, v{LANE}")
    k("s_waitcnt vmcnt(1)")
    for st in (8, 4, 2, 1):
        for j in range(st): k(f"v_pk_add_f32 {vr(G+2*j,2)}, {vr(G+2*j,2)}, {vr(G+2*(j+st),2)}")
    k(f"v_cvt_pk_bf16_f32 v{G+2}, v{G}, v{G+1}\nv_lshlrev_b32 v{G}, 16, v{G+2}\nv_and_b32 v{G+1}, 0xffff0000, v{G+2}")
    k(f"v_pk_add_f32 {vr(G+4,2)}, {vr(G,2)}, 1.0 op_sel_hi:[1,0]")
    k(f"v_cvt_pk_bf16_f32 v{G+2}, v{G+4}, v{G+5}\nv_lshlrev_b32 v{G+4}, 16, v{G+2}\nv_and_b32 v{G+5}, 0xffff0000, v{G+2}")
    k(f"v_cndmask_b32 v{G}, v{G}, v{G+4}, vcc\nv_cndmask_b32 v{G+1}, v{G+1}, v{G+5}, vcc")
    k(f"ds_write_b64 v{T+6}, {vr(G,2)} offset:{HL+4096}")
    k("s_waitcnt vmcnt(0)")
    k(f"ds_write_b128 v{L16}, {vr(A0+8,4)} offset:{HL+5120}")
    k("s_waitcnt lgkmcnt(0)")
    k(f"{nw1}:")
    g1.prefetch(k, opt.get("h_pre0", 0))
    srd(k, SRD_T, P_WS, S * D * 2, WS_H)
    k("s_barrier")
    k.stamp("s0 ready")
    for h in range(2): k(f"ds_read_b128 {vr(M+4*h,4)}, v{T+5} offset:{HL+4096+h*16}\nds_read_b128 {vr(M+8+4*h,4)}, v{T+5} offset:{HL+4096+256+h*16}")
    for i in range(4): k(f"ds_read_b64 {vr(RS+2*i,2)}, v{T+7} offset:{HL+5120+i*64}")
    k("s_waitcnt lgkmcnt(0)")
    for i in range(4):
        for j in range(4): k(f"v_pk_add_f32 {vr(XF+8*i+2*j,2)}, {vr(XF+8*i+2*j,2)}, {vr(RS+2*i,2)} op_sel_hi:[1,0]")
        for j in range(4): k(f"v_pk_mul_f32 {vr(XF+8*i+2*j,2)}, {vr(XF+8*i+2*j,2)}, {vr(RS+2*i,2)} op_sel:[0,1] op_sel_hi:[1,1]")
        for j in range(4): k(f"v_pk_fma_f32 {vr(XF+8*i+2*j,2)}, {vr(XF+8*i+2*j,2)}, {vr(M+8+2*j,2)}, {vr(M+2*j,2)}")
        for j in range(4): k(f"v_cvt_pk_bf16_f32 v{XR+4*i+j}, v{XF+8*i+2*j}, v{XF+8*i+2*j+1}")
        k(f"buffer_store_dwordx4 {vr(XR+4*i,4)}, v{VS}, {sr(SRD_T,4)}, s{86 + i//2} offen offset:{(i%2)*128} sc1")
    k.stamp("h computed")
    mk = len(k.L)
    g1.prefetch(k, opt.get("h_pre1a", 4 if split else 6))
    publish(k, 89, T, mk)
    k.stamp("h published")
    g1.prefetch(k, opt.get("h_pre1", 8 if split else 6))
    if not split:
        k.g3 = setup_gemm3_early(k, opt, LANE, 56)
        for i in range(8): k(f"global_load_ushort {ar(A_UT+32+i,1)}, v{V_C}, s[{P_C}:{P_C+1}] offset:{i*16}")
    k(f"v_and_b32 v252, 15, v{LANE}\nv_lshlrev_b32 v252, {FS}, v252\ns_mov_b32 s93, s88")
    staged_wait(k, g1, opt.get("g1_T", 5 if split else 4), 252, 93, 253, one_prod)
    k.stamp("h ready")
    return g1

def phase_front(k, opt, name):
    LANE, L16 = 104, 105
    T = 48
    V_W, V_C = 115, 109
    RS, XR, XT_, XF, G, M = 64, 128, 144, 0, 160, 32
    HL = 2 * 25344
    k(f"v_and_b32 v{LANE}, 63, v0")
    k(f"v_lshrrev_b32 v{T+1}, 3, v{LANE}\nv_and_b32 v{T+2}, 7, v{LANE}")
    k(f"v_lshlrev_b32 v{T+5}, 11, v{T+1}\nv_lshl_add_u32 v{T+5}, v{T+2}, 4, v{T+5}")
    k(f"s_lshl_b32 s91, s{S_RB1}, 18\ns_lshl_b32 s92, s{S_WAVE}, 16\ns_add_u32 s91, s91, s92\ns_lshl_b32 s92, s{S_HP}, 7\ns_add_u32 s91, s91, s92")
    k(f"v_lshlrev_b32 v{T+8}, 3, v{LANE}\nv_lshlrev_b32 v{T+6}, 3, v{T+1}")
    k(f"s_lshl_b32 s94, s{S_HP}, 13\ns_add_u32 s95, s94, 4096")
    k(f"s_lshl_b32 s90, s{S_RB1}, 10\ns_lshl_b32 s93, s{S_WAVE}, 8\ns_add_u32 s90, s90, s93\ns_add_u32 s90, s90, {MP_RS}")
    k("s_waitcnt lgkmcnt(0)")
    srd(k, SRD_B, P_WS, MP_BYTES, WS_MODP)
    srd(k, SRD_A, P_X, S * D * 2)
    for p_ in range(16): k(f"buffer_load_dwordx2 {vr(G+2*p_,2)}, v{T+8}, {sr(SRD_B,4)}, s{94+p_//8} offen offset:{(p_%8)*512}")
    for i in range(4): k(f"buffer_load_dwordx2 {vr(RS+2*i,2)}, v{T+6}, {sr(SRD_B,4)}, s90 offen offset:{i*64}")
    for i in range(4):
        k(f"buffer_load_dwordx4 {vr(XT_+4*i,4)}, v{T+5}, {sr(SRD_A,4)}, s91 offen")
        if i < 3: k("s_add_u32 s91, s91, 16384")
    k.stamp("loads issued")
    def touch(ptr, per, vt, off=0):
        k(f"s_lshl_b32 s80, s2, 2\ns_add_u32 s80, s80, s{S_WAVE}\ns_mul_i32 s80, s80, {per*128}")
        if off: k(f"s_add_u32 s80, s80, {off}")
        k(f"v_min_u32 v{vt}, {per-1}, v{LANE}\nv_lshlrev_b32 v{vt}, 7, v{vt}\nv_add_u32 v{vt}, s80, v{vt}")
        k(f"global_load_dword a232, v{vt}, s[{ptr}:{ptr+1}]")
    nt0 = 0
    if opt.get("m_touch", 0) == 1: touch(P_WQKV, 48, 254); nt0 = 1
    g1 = setup_gemm1(k, opt)
    srd(k, SRD_W, P_WQKV, D * 3 * D * 2)
    n0 = opt.get("h_pre0", 6)
    g1.prefetch(k, n0)
    n0 += nt0
    srd(k, SRD_F, P_WS, FLAG_BYTES, WS_FLAG)
    srd(k, SRD_T, P_WS, S * D * 2, WS_H)
    VS = T + 4
    k(f"v_lshrrev_b32 v{VS}, 2, v{T+2}\nv_lshlrev_b32 v{VS}, 10, v{VS}")
    k(f"v_and_b32 v{T+3}, 3, v{T+2}\nv_lshl_add_u32 v{VS}, v{T+3}, 8, v{VS}\nv_lshl_add_u32 v{VS}, v{T+1}, 4, v{VS}")
    k(f"s_lshl_b32 s86, s{S_RB1}, 3\ns_lshl_b32 s87, s{S_WAVE}, 1\ns_add_u32 s86, s86, s87\ns_lshl_b32 s86, s86, 15\ns_lshl_b32 s87, s{S_HP}, 11\ns_add_u32 s86, s86, s87\ns_add_u32 s87, s86, 0x8000")
    k(f"s_lshl_b32 s88, s{S_WAVE}, 9\nv_add_u32 v{T+8}, s88, v{T+8}\nv_lshlrev_b32 v{T+5}, 5, v{T+2}\nv_add_u32 v{T+5}, s88, v{T+5}")
    k(f"s_lshl_b32 s88, s{S_RB1}, 2\ns_add_u32 s88, s88, s{S_WAVE}\ns_lshl_b32 s88, s88, {FS+4}\ns_add_u32 s88, s88, {F_H}\ns_lshl_b32 s89, s{S_HP}, {FS}\ns_add_u32 s89, s89, s88")
    k(f"v_cmp_lt_u32 vcc, 31, v{LANE}")
    k(f"s_waitcnt vmcnt({8 + n0})")
    for st in (8, 4, 2, 1):
        for j in range(st): k(f"v_pk_add_f32 {vr(G+2*j,2)}, {vr(G+2*j,2)}, {vr(G+2*(j+st),2)}")
    k(f"v_cvt_pk_bf16_f32 v{G+2}, v{G}, v{G+1}\nv_lshlrev_b32 v{G}, 16, v{G+2}\nv_and_b32 v{G+1}, 0xffff0000, v{G+2}")
    k(f"v_pk_add_f32 {vr(G+4,2)}, {vr(G,2)}, 1.0 op_sel_hi:[1,0]")
    k(f"v_cvt_pk_bf16_f32 v{G+2}, v{G+4}, v{G+5}\nv_lshlrev_b32 v{G+4}, 16, v{G+2}\nv_and_b32 v{G+5}, 0xffff0000, v{G+2}")
    k(f"v_cndmask_b32 v{G}, v{G}, v{G+4}, vcc\nv_cndmask_b32 v{G+1}, v{G+1}, v{G+5}, vcc")
    k(f"ds_write_b64 v{T+8}, {vr(G,2)} offset:{HL}")
    k("s_waitcnt lgkmcnt(0)")
    for h in range(2): k(f"ds_read_b128 {vr(M+4*h,4)}, v{T+5} offset:{HL+h*16}\nds_read_b128 {vr(M+8+4*h,4)}, v{T+5} offset:{HL+256+h*16}")
    for i in range(4):
        k(f"s_waitcnt vmcnt({3 - i + n0})")
        for d in range(4): k(f"v_lshlrev_b32 v{XF+8*i+2*d}, 16, v{XT_+4*i+d}\nv_and_b32 v{XF+8*i+2*d+1}, 0xffff0000, v{XT_+4*i+d}")
        for j in range(4): k(f"v_pk_add_f32 {vr(XF+8*i+2*j,2)}, {vr(XF+8*i+2*j,2)}, {vr(RS+2*i,2)} op_sel_hi:[1,0]")
        for j in range(4): k(f"v_pk_mul_f32 {vr(XF+8*i+2*j,2)}, {vr(XF+8*i+2*j,2)}, {vr(RS+2*i,2)} op_sel:[0,1] op_sel_hi:[1,1]")
    k("s_waitcnt lgkmcnt(0)")
    for i in range(4):
        for j in range(4): k(f"v_pk_fma_f32 {vr(XF+8*i+2*j,2)}, {vr(XF+8*i+2*j,2)}, {vr(M+8+2*j,2)}, {vr(M+2*j,2)}")
        for j in range(4): k(f"v_cvt_pk_bf16_f32 v{XR+4*i+j}, v{XF+8*i+2*j}, v{XF+8*i+2*j+1}")
        k(f"buffer_store_dwordx4 {vr(XR+4*i,4)}, v{VS}, {sr(SRD_T,4)}, s{86 + i//2} offen offset:{(i%2)*128} sc1")
    k.stamp("h computed")
    code_prefetch_setup(k, name)
    srd(k, SRD_D, P_WMOD, D * 6 * D * 2)
    k(f"v_mul_u32_u24 v{V_W}, 12288, v{T+1}\nv_lshl_add_u32 v{V_W}, v{T+2}, 4, v{V_W}")
    k(f"s_lshl_b32 s84, s{S_RB1}, 6\nv_add_u32 v{V_C}, s84, v{T+1}\nv_lshlrev_b32 v{V_C}, 1, v{V_C}")
    k(f"s_mul_i32 s86, s84, 12288\ns_lshl_b32 s87, s{S_HP}, 7\ns_add_u32 s86, s86, s87")
    k(f"s_lshl_b32 s94, s{S_WAVE}, 11\ns_add_u32 s{S_MB}, s86, s94\ns_add_u32 s{S_MB}, s{S_MB}, 4096")
    k(f"s_lshl_b32 s94, s{S_WAVE}, 16\ns_lshl_b32 s95, s{S_HP}, 12\ns_add_u32 s94, s94, s95\ns_lshl_b32 s95, s{S_RB1}, 8\ns_add_u32 s94, s94, s95\ns_add_u32 s{S_MO}, s94, {MP_B}")
    k.g3 = setup_gemm3_early(k, opt, LANE, 56)
    publish(k, 89, T)
    k.stamp("h published")
    if opt.get("m_touch", 0) == 2: touch(P_WQKV, 48, 254)
    k("s_barrier")
    g1.prefetch(k, opt.get("h_pre1", 12))
    for i in range(8): k(f"global_load_ushort {ar(A_UT+32+i,1)}, v{V_C}, s[{P_C}:{P_C+1}] offset:{i*16}")
    k(f"v_and_b32 v252, 15, v{LANE}\nv_lshlrev_b32 v252, {FS}, v252\ns_mov_b32 s93, s88")
    staged_wait(k, g1, opt.get("g1_T", 4), 252, 93, 253, one_prod)
    k.stamp("h ready")
    return g1

def setup_gemm24(k, which, opt, base):
    c = Sched(); common_gemm(c)
    K = 1024 if which == 2 else 3584
    NS, R = 4, opt.get(f"g{which}_R", 4)
    STAGE = 8448
    if isinstance(base, tuple): V_RD, V_DMA, V_TOK, LANE, L16, VT = base
    else:
        V_RD, V_DMA, V_TOK, LANE, L16, VT = base, base + 1, base + 2, base + 4, base + 5, base + 6
        lane_id(k, LANE)
        k(f"v_lshlrev_b32 v{L16}, 4, v{LANE}")
    c.LANE, c.L16 = LANE, L16
    hs = c.hs = opt.get("hsplit", 1) and opt.get("split", 1)
    order(c, k, opt, "g2", ["win", [8, 8], 0] if hs else ["win", [1, 1, 2, 4, 8], 1])
    if hs:
        c.w_off = lambda sd, kt: [T(x) for x in c.pos_txt(sd, kt)] + [T(f"s_mul_i32 s{sd}, s{sd}, {128*2048}")] + ([T(f"s_add_u32 s{sd}, s{sd}, {(32 - 8*128)*2048}")] if kt >= 8 else [])
        c.t_off = lambda sd, kt: [T(x) for x in c.pos_txt(sd, kt)] + [T(f"s_lshl_b32 s{sd}, s{sd}, 12")] + ([T(f"s_add_u32 s{sd}, s{sd}, {1024 - 8*4096}")] if kt >= 8 else [])
        c.sub_stride = 2048
    k(f"s_lshr_b32 s80, s{S_WAVE}, 1\ns_and_b32 s81, s{S_WAVE}, 1")
    k(f"s_lshl_b32 s82, s80, {6 if hs else 5}\ns_lshl_b32 s83, s81, 1\ns_add_u32 s82, s82, s83\ns_lshl_b32 s82, s82, 11")
    k(f"s_lshl_b32 s83, s{S_NT}, 7\ns_add_u32 s82, s82, s83")
    k(f"v_lshrrev_b32 v{VT}, 3, v{LANE}\nv_lshlrev_b32 v{VT}, 13, v{VT}")
    k(f"v_and_b32 v{VT+1}, 7, v{LANE}\nv_lshl_add_u32 v{VT}, v{VT+1}, 4, v{VT}")
    k(f"v_add_u32 v{V_DMA}, s82, v{VT}")
    k(f"v_bfe_u32 v{VT}, v{LANE}, 2, 2\nv_mul_u32_u24 v{VT}, 1056, v{VT}")
    k(f"v_lshrrev_b32 v{VT+1}, 4, v{LANE}\nv_lshl_add_u32 v{VT}, v{VT+1}, 7, v{VT}")
    k(f"v_and_b32 v{VT+1}, 3, v{LANE}\nv_lshl_add_u32 v{V_RD}, v{VT+1}, 3, v{VT}")
    k(f"v_add_u32 v{V_RD}, {L_R2}, v{V_RD}")
    k(f"s_lshl_b32 s82, s{S_RB2}, 3\ns_lshl_b32 s83, s{S_WAVE}, 1\ns_add_u32 s82, s82, s83\ns_mul_i32 s82, s82, {K//32*1024}")
    k(f"v_add_u32 v{V_TOK}, s82, v{L16}\nv_add_u32 v{V_TOK+1}, {K//32*1024}, v{V_TOK}")
    k(f"s_mul_i32 s{S_WB}, s80, 4224\ns_mul_i32 s82, s81, 2112\ns_add_u32 s{S_WB}, s{S_WB}, s82\ns_add_u32 s{S_WB}, s{S_WB}, {L_R2}")
    srd(k, SRD_W, P_WO if which == 2 else P_W2, K * D * 2)
    c.NB, c.TB, c.KS, c.SPK, c.KT, c.NS, c.R = 4, 2, 2, 1, K // 64, NS, R
    c.acc = lambda b, t: vr((b * 2 + t) * 4, 4)
    c.tf = lambda slot, ks, t: 64 + ((slot * 2 + ks) * 2 + t) * 4
    c.rd = lambda sl, b, sub, r: (V_RD, sl * STAGE + sub * 4224 + r * 512 + b * 32)
    c.slot_addr = lambda sl: sl * STAGE
    c.dma = [(V_DMA, 0, 0), (V_DMA, 1056, 2048)]
    c.v_tok = [V_TOK, V_TOK + 1]
    c.w_stride = 64 * 2048
    c.drop = opt.get(f"g{which}_drop", ())
    c.pro_units, c.ramp_rate, c.read_margin = opt.get(f"g{which}_pro", 12), opt.get(f"g{which}_ramp", 6), 4
    std_sched(c)
    return c

S_G80, S_G192 = 6, 7
def setup_gemm4p(k, opt, base):
    c = Sched(); common_gemm(c)
    HS = 8448; STAGE = 2 * HS
    L = 12; KT = 28; MAIN = KT - L
    V_RD, V_DE, V_DK, V_TOK, LANE, L16, VT = base, base + 2, base + 3, base + 4, base + 6, base + 7, base + 8
    c.LANE, c.L16, c.V_DE, c.V_DK, c.V_TOK = LANE, L16, V_DE, V_DK, V_TOK
    lane_id(k, LANE)
    k(f"v_lshlrev_b32 v{L16}, 4, v{LANE}")
    c.KT = KT
    order(c, k, opt, "g4", ["win", [4, 4, 8, 8, 4], 0])
    k(f"s_lshr_b32 s80, s{S_WAVE}, 1\ns_and_b32 s81, s{S_WAVE}, 1")
    k(f"s_mul_i32 s{S_G80}, s80, {80*2048}\ns_mul_i32 s{S_G192}, s80, {192*2048}")
    k("s_lshl_b32 s82, s80, 5\ns_lshl_b32 s83, s81, 1\ns_add_u32 s82, s82, s83")
    k(f"s_and_b32 s{S_TMP}, s{S_NT}, 1\ns_mul_i32 s83, s{S_TMP}, 1792\ns_add_u32 s82, s82, s83\ns_lshl_b32 s82, s82, 11")
    k(f"v_lshrrev_b32 v{VT}, 3, v{LANE}\nv_lshlrev_b32 v{VT}, 13, v{VT}")
    k(f"v_and_b32 v{VT+1}, 7, v{LANE}\nv_lshl_add_u32 v{VT}, v{VT+1}, 4, v{VT}")
    k(f"v_add_u32 v{VT}, s82, v{VT}")
    k(f"s_lshl_b32 s83, s{S_NT}, 7\nv_add_u32 v{V_DK}, s83, v{VT}\nv_xor_b32 v{V_DE}, 128, v{V_DK}")
    k(f"v_bfe_u32 v{VT}, v{LANE}, 2, 2\nv_mul_u32_u24 v{VT}, 1056, v{VT}")
    k(f"v_lshrrev_b32 v{VT+1}, 4, v{LANE}\nv_lshl_add_u32 v{VT}, v{VT+1}, 7, v{VT}")
    k(f"v_and_b32 v{VT+1}, 3, v{LANE}\nv_lshl_add_u32 v{V_RD+1}, v{VT+1}, 3, v{VT}")
    k(f"v_add_u32 v{V_RD}, {L_R2}, v{V_RD+1}")
    k(f"s_lshl_b32 s82, s{S_RB2}, 3\ns_lshl_b32 s83, s{S_WAVE}, 1\ns_add_u32 s82, s82, s83\ns_mul_i32 s82, s82, {112*1024}")
    k(f"s_mul_i32 s83, s{S_TMP}, {56*1024}\ns_add_u32 s82, s82, s83")
    k(f"v_add_u32 v{V_TOK}, s82, v{L16}\nv_add_u32 v{V_TOK+1}, {112*1024}, v{V_TOK}")
    k(f"s_mul_i32 s{S_WB}, s80, 4224\ns_mul_i32 s82, s81, 2112\ns_add_u32 s{S_WB}, s{S_WB}, s82")
    srd(k, SRD_W, P_W2, F * D * 2)
    c.drop = opt.get("g4_drop", ())
    V2E, V2K, V2T = 200, 201, 202
    c.V2 = (V2E, V2K, V2T)
    slot_addr = [L_R2, L_R2 + STAGE, 1024, 1024 + STAGE]
    def rd(sl, half, b, sub, r):
        off = half * HS + sub * 4224 + r * 512 + b * 32
        return (V_RD, (sl % 2) * STAGE + off) if sl < 2 else (V_RD + 1, slot_addr[sl] + off)
    NT_ = 2 * L
    tf = lambda kt, sub, t: 64 + (((kt * 2 + sub) % NT_) * 2 + t) * 4
    acc = lambda b, t: vr((b * 2 + t) * 4, 4)
    c.wf = lambda buf, j: (buf * 8 + j) * 4
    typ = lambda kt: "A" if kt < 16 else ("B1" if kt < 24 else "B2")
    if opt.get("g4_fast", 0):
        base_pos = c.pos_txt
        def pos2(sd, kt):
            o = base_pos(sd, kt)
            if kt >= 16: return o
            t_ = S_PTMP
            o += [f"s_and_b32 s{t_}, s{sd}, 1", f"s_and_b32 s{sd}, s{sd}, 6", f"s_lshl_b32 s{sd}, s{sd}, 1"]
            o += [f"s_mul_i32 s{t_}, s{t_}, 3"] if kt < 8 else [f"s_add_u32 s{t_}, s{t_}, 1"]
            o += [f"s_add_u32 s{sd}, s{sd}, s{t_}"]
            return o
        c.pos_txt = pos2
    def w_off(sd, kt):
        o = [T(x) for x in c.pos_txt(sd, kt)]
        if typ(kt) == "A": o.append(T(f"s_mul_i32 s{sd}, s{sd}, {112*2048}"))
        elif typ(kt) == "B1": o += [T(f"s_mul_i32 s{sd}, s{sd}, {224*2048}"), T(f"s_add_u32 s{sd}, s{sd}, {(64 - 16*224)*2048}"), T(f"s_add_u32 s{sd}, s{sd}, s{S_G80}")]
        else: o += [T(f"s_mul_i32 s{sd}, s{sd}, {448*2048}"), T(f"s_add_u32 s{sd}, s{sd}, {(96 - 24*448)*2048}"), T(f"s_add_u32 s{sd}, s{sd}, s{S_G192}")]
        return o
    halves = [[("E", kt), ("K", kt)] for kt in range(MAIN)]
    halves += [[("E", MAIN + 2 * j), ("E", MAIN + 2 * j + 1)] for j in range(L // 2)]
    halves += [[("K", MAIN + 2 * j), ("K", MAIN + 2 * j + 1)] for j in range(L // 2)]
    cur = None; flip = 0
    for st, hv in enumerate(halves):
        us = []
        for h, (kind, kt) in enumerate(hv):
            pre = []
            if cur != kt:
                flip ^= 1; cur = kt; pre = w_off(c.s_kw + flip, kt)
            vo = (V2E if kind == 'E' else V2K) if typ(kt) == "B2" else (V_DE if kind == 'E' else V_DK)
            for i, goff in enumerate((0, 2048)):
                us.append((pre if i == 0 else []) + [T(f"s_add_u32 m0, s{S_WB}, {slot_addr[st % 4] + h * HS + i * 1056 - goff}"),
                          VM(f"buffer_load_dwordx4 v{vo}, {sr(SRD_W,4)}, s{c.s_kw + flip} offen" + (f" offset:{goff}" if goff else "") + " lds", ("dma", st))])
        c.stage_units[st] = us; c.stage_slot[st] = st % 4
        for j in range(2):
            frags = []; toks = []
            parts = [(0, j), (1, j)] if st < MAIN else [(j, 0), (j, 1)]
            for h, sub in parts:
                kind, kt = hv[h]
                if (kt, sub) not in toks: toks.append((kt, sub))
                for b in range(4):
                    va, o0 = rd(st % 4, h, b, sub, 0); _, o1 = rd(st % 4, h, b, sub, 1)
                    frags.append((va, o0, o1, [(acc(b + (0 if kind == 'E' else 4), t), tf(kt, sub, t)) for t in range(2)]))
            c.steps.append(dict(frags=frags, stages=[st], toks=toks))
    for kt in range(KT):
        sd = c.s_kt + kt % 2
        for sub in range(2):
            us = []
            for t in range(2):
                g = []
                if sub == 0 and t == 0:
                    g = [T(x) for x in c.pos_txt(sd, kt)]
                    if typ(kt) == "A": g.append(T(f"s_mul_i32 s{sd}, s{sd}, 3584"))
                    elif typ(kt) == "B1": g += [T(f"s_mul_i32 s{sd}, s{sd}, 7168"), T(f"s_add_u32 s{sd}, s{sd}, {2048 - 16*7168}")]
                    else: g += [T(f"s_mul_i32 s{sd}, s{sd}, 14336"), T(f"s_add_u32 s{sd}, s{sd}, {3072 - 24*14336}")]
                key = ("tok", (kt, sub))
                if typ(kt) == "B2":
                    if sub == 1 and t == 0: g.append(T(f"s_add_u32 s{sd}, s{sd}, 7168"))
                    g.append(VM(f"buffer_load_dwordx2 {ar(tf(kt, sub, t),2)}, v{V2T+t}, {sr(SRD_T,4)}, s{sd} offen sc1", key))
                    g.append(VM(f"buffer_load_dwordx2 {ar(tf(kt, sub, t)+2,2)}, v{V2T+t}, {sr(SRD_T,4)}, s{sd} offen offset:3584 sc1", key))
                else:
                    g.append(VM(f"buffer_load_dwordx4 {ar(tf(kt, sub, t),4)}, v{V_TOK+t}, {sr(SRD_T,4)}, s{sd} offen offset:{sub*(1024 if typ(kt) == 'A' else 3584)} sc1", key))
                us.append(g)
            c.tok_units[(kt, sub)] = us; c.tok_slot[(kt, sub)] = (kt * 2 + sub) % NT_
    c.pro_units, c.ramp_rate, c.read_margin, c.lookahead = opt.get("g4_pro", 12), opt.get("g4_ramp", 6), 4, opt.get("g4_la", 7)
    c.MAIN, c.L = MAIN, L
    return c

def phase_gemm4p(k, c, opt):
    LANE, L16 = c.LANE, c.L16
    VT = 72
    srd(k, SRD_T, P_WS, S * F * 2, WS_HH)
    srd(k, SRD_A, P_OUT, S * D * 2)
    srd(k, SRD_B, P_WS, 8 << 20, WS_P4)
    V_G, V_GA, V_XA, V_X, IMP, VF = 96, 76, 77, 80, 128, 78
    for j in range(16): k(f"v_accvgpr_read_b32 v{V_X+j}, a{A_X1+j}")
    k(f"v_and_b32 v{VT}, 15, v{LANE}\nv_lshlrev_b32 v{VT}, {FS}, v{VT}")
    k(f"s_lshl_b32 s84, s{S_RB2}, 1\ns_lshr_b32 s85, s{S_WAVE}, 1\ns_add_u32 s84, s84, s85\ns_lshl_b32 s84, s84, {FS+5}\ns_add_u32 s84, s84, {F_HH}")
    k(f"s_and_b32 s85, s{S_NT}, 1\ns_lshl_b32 s85, s85, {FS+4}\ns_add_u32 s84, s84, s85")
    k(f"v_mov_b32 v252, v{VT}")
    c.tile_of = lambda key: key[0]
    k(f"s_add_u32 s85, s84, {F_HB - F_HH}")
    staged_wait(k, c, opt.get("g4_T", 6), 252, 84, 253, one_prod, pub=(94, 204))
    add_gate(k, c, 16, f"buffer_load_dword v253, v252, {sr(SRD_F,4)}, s85 offen sc1", 253)
    k.stamp("hh ready")
    p = Txt()
    p(f"v_lshrrev_b32 v{VT}, 4, v{LANE}\nv_lshlrev_b32 v{V_GA}, 4, v{VT}\nv_add_u32 v{V_GA}, {L_MV}, v{V_GA}")
    p(f"v_and_b32 v{VT+1}, 15, v{LANE}\nv_lshlrev_b32 v{VT+1}, 11, v{VT+1}")
    p(f"v_and_b32 v{VT+2}, 1, v{VT}\nv_lshl_add_u32 v{VT+1}, v{VT+2}, 5, v{VT+1}")
    p(f"v_lshrrev_b32 v{VT+2}, 1, v{VT}\nv_lshl_add_u32 v{V_XA}, v{VT+2}, 4, v{VT+1}")
    p(f"s_lshl_b32 s86, s{S_RB2}, 3\ns_lshl_b32 s87, s{S_WAVE}, 1\ns_add_u32 s86, s86, s87\ns_lshl_b32 s86, s86, 15\ns_lshl_b32 s87, s{S_NT}, 7\ns_add_u32 s86, s86, s87\ns_add_u32 s87, s86, 32768")
    p(f"s_lshl_b32 s88, s{S_RB2}, 4\ns_add_u32 s88, s88, s{S_NT}\ns_lshl_b32 s88, s88, 2\ns_add_u32 s88, s88, s{S_WAVE}")
    p("s_xor_b32 s89, s88, 4")
    p(f"s_lshl_b32 s90, s88, 13\ns_add_u32 s91, s90, 4096\ns_lshl_b32 s92, s89, 13\ns_add_u32 s93, s92, 4096")
    p(f"s_lshl_b32 s88, s88, {FS}\ns_add_u32 s88, s88, {F_P4}\ns_lshl_b32 s89, s89, {FS}\ns_add_u32 s89, s89, {F_P4}")
    V2E, V2K, V2T = c.V2
    p(f"v_lshrrev_b32 v{VT}, 5, v{LANE}\nv_mul_u32_u24 v{VT}, {96*2048}, v{VT}\nv_add_u32 v{V2E}, v{c.V_DE}, v{VT}\nv_add_u32 v{V2K}, v{c.V_DK}, v{VT}")
    p(f"v_lshrrev_b32 v{VT}, 1, v{L16}\nv_sub_u32 v{V2T}, v{c.V_TOK}, v{VT}\nv_sub_u32 v{V2T+1}, v{c.V_TOK+1}, v{VT}")
    p(f"v_mov_b32 v{VT}, 1\nv_mov_b32 v{VT+1}, 0")
    c.pre_loop_txt = p.L
    N = len(c.steps); p2 = N - c.L
    for st_ in opt.get("cp4", []): c.late.setdefault(st_, []).extend(code_prefetch_txt(k.name, L16, 254, 80, junk="v240"))
    ex = [VM(f"buffer_store_dwordx4 {vr(4*j,4)}, v{L16}, {sr(SRD_B,4)}, s{90 + j//4} offen offset:{(j%4)*1024} sc1", ("exp", 0)) for j in range(8)]
    ne_ = opt.get("g4_ne", 2)
    for j in range(ne_): c.late[p2 + 1 + j] = ex[j * 8 // ne_:(j + 1) * 8 // ne_]
    c.late[p2 + opt.get("g4_fs", 6)] = [WVM([("exp", 0)]), f"buffer_store_dword v{VT}, v{VT+1}, {sr(SRD_F,4)}, s88 offen sc1"]
    c.late[N - 3] = [VM(f"buffer_load_dword v{VF}, v{VT+1}, {sr(SRD_F,4)}, s89 offen sc1", ("pf", 0))]
    c.last_reads = [f"ds_read_b128 {vr(V_G+4*b,4)}, v{V_GA} offset:{768+b*64}" for b in range(4)]
    m = Txt(); m.label = k.label
    okl = k.label("pok")
    m(f"v_cmp_eq_u32 vcc, 0, v{VF}\ns_cmp_eq_u64 vcc, 0\ns_cbranch_scc1 {okl}")
    spin(m, [f"buffer_load_dword v{VF}, v{VT+1}, {sr(SRD_F,4)}, s89 offen sc1"], [VF], 0)
    m(f"{okl}:")
    c.late[N - 1] = [WVM([("pf", 0)]), T("\n".join(m.L))] + [f"buffer_load_dwordx4 {vr(IMP+4*j,4)}, v{L16}, {sr(SRD_B,4)}, s{92 + j//4} offen offset:{(j%4)*1024} sc1" for j in range(8)]
    c.run(k)
    k.stamp("g4 loop done")
    A = lambda b, t: 32 + (b * 2 + t) * 4
    XT = 112
    XF = 160
    for j in range(16): k(f"v_lshlrev_b32 v{XF+2*j}, 16, v{V_X+j}\nv_and_b32 v{XF+2*j+1}, 0xffff0000, v{V_X+j}")
    k("s_waitcnt vmcnt(0) lgkmcnt(0)")
    for t in range(2):
        for b in range(4):
            for h in range(2): k(f"v_pk_add_f32 {vr(A(b,t)+2*h,2)}, {vr(A(b,t)+2*h,2)}, {vr(IMP+(b*2+t)*4+2*h,2)}")
            for h in range(2): k(f"v_pk_fma_f32 {vr(A(b,t)+2*h,2)}, {vr(A(b,t)+2*h,2)}, {vr(V_G+4*b+2*h,2)}, {vr(XF+(t*4+b)*4+2*h,2)}")
        PK = XT + t * 8
        for b in range(4): k(f"v_cvt_pk_bf16_f32 v{PK+2*b}, v{A(b,t)}, v{A(b,t)+1}\nv_cvt_pk_bf16_f32 v{PK+2*b+1}, v{A(b,t)+2}, v{A(b,t)+3}")
        k("s_nop 1")
        for s_ in range(2): k(f"v_permlane16_swap_b32 v{PK+4*s_}, v{PK+4*s_+2}\nv_permlane16_swap_b32 v{PK+4*s_+1}, v{PK+4*s_+3}")
        for s_ in range(2): k(f"buffer_store_dwordx4 {vr(PK+4*s_,4)}, v{V_XA}, {sr(SRD_A,4)}, s{86+t} offen offset:{s_*64}")

def phase_gemm1(k, c, opt):
    LANE, L16, VT = c.LANE, c.L16, c.VT
    PHK, VV, SH, UTX = 0, 34816, 114688, 126976
    A_PH = 160
    p = Txt()
    srd(p, SRD_A, P_WPHI, H * 2048)
    srd(p, SRD_B, P_WS, 2 << 20, WS_KVP)
    srd(p, SRD_C, P_WS, 128 << 10, WS_ZP)
    A_PW, A_VW, A_PR, A_VR, A_WR = 110, 111, 112, 113, 114
    p(f"s_lshr_b32 s80, s{S_WAVE}, 1\ns_and_b32 s81, s{S_WAVE}, 1")
    p(f"v_and_b32 v{VT}, 15, v{LANE}\ns_lshl_b32 s82, s{S_WAVE}, 5\nv_add_u32 v{VT}, s82, v{VT}")
    p(f"v_lshrrev_b32 v{VT+1}, 4, v{LANE}\nv_lshlrev_b32 v{VT+1}, 3, v{VT+1}")
    p(f"v_mul_u32_u24 v{A_PW}, 136, v{VT}\nv_add_u32 v{A_PW}, v{A_PW}, v{VT+1}")
    p(f"v_mul_u32_u24 v{A_VW}, 72, v{VT}\nv_add_u32 v{A_VW}, v{A_VW}, v{VT+1}")
    p(f"v_lshrrev_b32 v{VT}, 2, v{LANE}\nv_and_b32 v{VT+1}, 3, v{LANE}\nv_lshlrev_b32 v{VT+1}, 3, v{VT+1}")
    p(f"s_mul_i32 s82, s80, 17408\ns_lshl_b32 s83, s81, 6\ns_add_u32 s82, s82, s83")
    p(f"v_mul_u32_u24 v{A_PR}, 136, v{VT}\nv_add_u32 v{A_PR}, v{A_PR}, v{VT+1}\nv_add_u32 v{A_PR}, s82, v{A_PR}")
    p(f"s_mul_i32 s82, s80, 9216")
    p(f"v_mul_u32_u24 v{A_VR}, 72, v{VT}\nv_add_u32 v{A_VR}, v{A_VR}, v{VT+1}\nv_add_u32 v{A_VR}, s82, v{A_VR}")
    p(f"v_lshl_add_u32 v{A_WR}, v{VT}, 6, v{VT+1}\nv_add_u32 v{A_WR}, {L_WPH}, v{A_WR}")
    ONES, SEL = 116, 120
    for j in range(4): p(f"v_mov_b32 v{ONES+j}, 0x3f803f80")
    p(f"v_bfe_u32 v{VT}, v{LANE}, 2, 2\nv_lshrrev_b32 v{VT+1}, 4, v{LANE}")
    p(f"v_cmp_eq_u32 vcc, v{VT}, v{VT+1}")
    p(f"v_and_b32 v{VT}, 1, v{LANE}\nv_lshlrev_b32 v{VT}, 4, v{VT}\nv_mov_b32 v{VT+1}, 0x3f80\nv_lshlrev_b32 v{VT+1}, v{VT}, v{VT+1}")
    p(f"v_cndmask_b32 v{VT+1}, 0, v{VT+1}, vcc")
    p(f"v_and_b32 v{VT}, 2, v{LANE}\nv_cmp_eq_u32 vcc, 0, v{VT}")
    for j in (0, 1, 4, 5): p(f"v_mov_b32 v{SEL+j}, 0")
    p(f"v_cndmask_b32 v{SEL+2}, 0, v{VT+1}, vcc\nv_cndmask_b32 v{SEL+3}, v{VT+1}, 0, vcc")
    p(f"s_mov_b32 s94, {LOG2E!r}\ns_mov_b32 s95, {LOG2E!r}")
    p(f"s_lshl_b32 s84, s{S_HP}, 12\ns_lshl_b32 s85, s{S_WAVE}, 10\ns_add_u32 s84, s84, s85\ns_add_u32 s85, s85, {L_WPH}")
    c.pre_loop_txt = p.L
    c.late = {4: ["s_mov_b32 m0, s85", f"buffer_load_dwordx4 v{L16}, {sr(SRD_A,4)}, s84 offen lds"]}
    if opt.get("cpf", 1): c.late[22] = code_prefetch_txt(k.name, L16, 254, 80)
    ml = modb_loads(S_MB, 115, 109)
    ms = opt.get("modb_steps", [16] * 8)
    if opt.get("modb_front", 0):
        lb = k.label("skw0")
        c.late.setdefault(ms[0], []).append(T("\n".join([f"s_cmp_lg_u32 s{S_WAVE}, 0", f"s_cbranch_scc1 {lb}"] + [x for g in ml for x in g] + [f"{lb}:"])))
        ml = []
    else:
        for st_, g in zip(ms, ml): c.late.setdefault(st_, []).extend(g)
        ml = ml[len(ms):]
    c.last_reads = [f"ds_read_b64_tr_b16 {ar(A_PH+(hh*2+fb)*4+2*r,2)}, v{A_WR} offset:{hh*2048+r*1024+fb*32}" for hh in range(2) for fb in range(2) for r in range(2)]
    c.run(k)
    k.stamp("g1 loop done")
    A = lambda b, t: (b * 2 + t) * 4
    BF, P1, P2, MX, MN, EK = 126, 142, 174, 206, 214, 222
    groups = [(hh, t) for hh in range(2) for t in range(2)]
    def fm_part1(seg):
        for g, (hh, t) in enumerate(groups):
            for db in range(2):
                a = A(seg * 4 + hh * 2 + db, t)
                k(f"v_cvt_pk_bf16_f32 v{BF+g*4+db*2}, v{a}, v{a+1}\nv_cvt_pk_bf16_f32 v{BF+g*4+db*2+1}, v{a+2}, v{a+3}")
        k("s_nop 1")
        for g, (hh, t) in enumerate(groups):
            for fb in range(2):
                k(f"{MF} {vr(P1+g*8+fb*4,4)}, {ar(A_PH+(hh*2+fb)*4,4)}, {vr(BF+g*4,4)}, 0")
    def fm_part2():
        for op3, op2, M in (("v_max3_f32", "v_max_f32", MX), ("v_min3_f32", "v_min_f32", MN)):
            for g in range(4):
                b = P1 + g * 8
                k(f"{op3} v{M+2*g}, v{b}, v{b+1}, v{b+2}\n{op3} v{M+2*g}, v{M+2*g}, v{b+3}, v{b+4}\n{op3} v{M+2*g}, v{M+2*g}, v{b+5}, v{b+6}\n{op2} v{M+2*g}, v{M+2*g}, v{b+7}")
            treduce4(k, op2, [M + 2 * g for g in range(4)])
        for g in range(4):
            k(f"v_mul_f32 v{MX+2*g}, {-LOG2E!r}, v{MX+2*g}\nv_mul_f32 v{MN+2*g}, {LOG2E!r}, v{MN+2*g}")
    def fm_part3(E):
        for g in range(4):
            for j in range(4):
                b = g * 8 + 2 * j
                k(f"v_pk_fma_f32 {vr(P2+b,2)}, {vr(P1+b,2)}, s[94:95], {vr(MN+2*g,2)} op_sel_hi:[1,1,0] neg_lo:[1,0,0] neg_hi:[1,0,0]")
                k(f"v_pk_fma_f32 {vr(P1+b,2)}, {vr(P1+b,2)}, s[94:95], {vr(MX+2*g,2)} op_sel_hi:[1,1,0]")
            for j in range(8): k(f"v_exp_f32 v{P1+g*8+j}, v{P1+g*8+j}")
            for j in range(8): k(f"v_exp_f32 v{P2+g*8+j}, v{P2+g*8+j}")
            k("s_nop 0")
            for sg, PP in enumerate((P1, P2)):
                for j in range(4): k(f"v_cvt_pk_bf16_f32 v{E+(g*2+sg)*4+j}, v{PP+g*8+2*j}, v{PP+g*8+2*j+1}")
    for g in ml:
        for x in g: k(x)
    k("s_waitcnt lgkmcnt(0)\ns_nop 7")
    fm_part1(1)
    k("s_barrier")
    mark0 = len(k.L)
    for g, (hh, t) in enumerate(groups):
        for db in range(2):
            a = A(8 + hh * 2 + db, t)
            k(f"v_cvt_pk_bf16_f32 v{a}, v{a}, v{a+1}\nv_cvt_pk_bf16_f32 v{a+1}, v{a+2}, v{a+3}")
            k(f"ds_write_b64 v{A_VW}, {vr(a,2)} offset:{VV + hh*9216 + t*16*72 + db*32}")
    fm_part2()
    fm_part3(EK)
    SM = 32
    k("s_nop 1")
    for i in range(8): k(f"{MF} {vr(SM+4*i,4)}, {vr(ONES,4)}, {vr(EK+4*i,4)}, 0")
    k("s_nop 7")
    for i in range(8): k(f"v_rcp_f32 v{SM+4*i}, v{SM+4*i}")
    for g, (hh, t) in enumerate(groups):
        for sg, PP in enumerate((P1, P2)):
            for j in range(4):
                k(f"v_pk_mul_f32 {vr(PP+g*8+2*j,2)}, {vr(PP+g*8+2*j,2)}, {vr(SM+(g*2+sg)*4,2)} op_sel_hi:[1,0]")
            for fb in range(2):
                b = PP + g * 8 + fb * 4
                k(f"v_cvt_pk_bf16_f32 v{b}, v{b}, v{b+1}\nv_cvt_pk_bf16_f32 v{b+1}, v{b+2}, v{b+3}")
                k(f"ds_write_b64 v{A_PW}, {vr(b,2)} offset:{PHK + hh*17408 + t*16*136 + sg*64 + fb*32}")
    sprinkle(k, mark0, g3_early_units(k.g3, opt.get("g3_e1", 14), 254))
    k("s_waitcnt lgkmcnt(0)\ns_barrier")
    for s_ in range(4):
        for r in range(2):
            for fb in range(2): k(f"ds_read_b64_tr_b16 {ar(s_*16+fb*4+2*r,2)}, v{A_PR} offset:{PHK + (32*s_+16*r)*136 + fb*32}")
            for db in range(2): k(f"ds_read_b64_tr_b16 {ar(s_*16+8+db*4+2*r,2)}, v{A_VR} offset:{VV + (32*s_+16*r)*72 + db*32}")
    fm_part1(0)
    KV, ZZ = 64, 80
    for s_ in range(4):
        k(f"s_waitcnt lgkmcnt({min(15, 24 - 8*s_)})")
        for fb in range(2):
            for db in range(2):
                d = vr(KV + (db * 2 + fb) * 4, 4)
                k(f"{MF} {d}, {ar(s_*16+fb*4,4)}, {ar(s_*16+8+db*4,4)}, {'0' if s_ == 0 else d}")
            d = vr(ZZ + fb * 4, 4)
            k(f"{MF} {d}, {ar(s_*16+fb*4,4)}, {vr(ONES,4)}, {'0' if s_ == 0 else d}")
    k(f"s_lshl_b32 s82, s{S_HP}, 2\ns_add_u32 s82, s82, s{S_WAVE}")
    k("s_lshl_b32 s83, s82, 15")
    k(f"s_lshl_b32 s84, s{S_RB1}, 10\ns_add_u32 s84, s84, s83\ns_add_u32 s85, s84, 16384")
    k("s_lshl_b32 s90, s82, 11")
    k(f"s_lshl_b32 s91, s82, {FS+4}\ns_add_u32 s91, s91, {F_KV}\ns_lshl_b32 s92, s{S_RB1}, {FS}\ns_add_u32 s92, s92, s91")
    k(f"v_and_b32 v{VT}, 15, v{LANE}\nv_cmp_eq_u32 vcc, s{S_RB1}, v{VT}")
    k("s_nop 2")
    for db in range(2):
        for j in range(4): k(f"v_cvt_pk_bf16_f32 v{88+db*4+j}, v{KV+db*8+2*j}, v{KV+db*8+2*j+1}")
    k(f"buffer_store_dwordx4 {vr(88,4)}, v{L16}, {sr(SRD_B,4)}, s84 offen sc1")
    k(f"buffer_store_dwordx4 {vr(92,4)}, v{L16}, {sr(SRD_B,4)}, s85 offen sc1")
    k("s_and_saveexec_b64 s[96:97], vcc")
    k(f"buffer_store_dwordx4 {vr(ZZ,4)}, v{L16}, {sr(SRD_C,4)}, s90 offen sc1")
    k(f"buffer_store_dwordx4 {vr(ZZ+4,4)}, v{L16}, {sr(SRD_C,4)}, s90 offen offset:1024 sc1")
    k("s_mov_b64 exec, s[96:97]")
    k.stamp("kv stored")
    fm_part2()
    publish(k, 92, VT + 1)
    k.stamp("kv published")
    k("s_mov_b32 s93, s83")
    g2 = setup_gemm24(k, 2, opt, 96)
    k("s_mov_b32 s83, s93")
    g2.prefetch(k, 8)
    fm_part3(EK)
    k(f"v_lshlrev_b32 v{VT}, {FS}, v{VT}")
    wait_flags(k, [(VT, 91, 1)], VT + 1)
    k.stamp("kv ready")
    k(f"buffer_load_dwordx4 {vr(ZZ,4)}, v{L16}, {sr(SRD_C,4)}, s90 offen sc1")
    k(f"buffer_load_dwordx4 {vr(ZZ+4,4)}, v{L16}, {sr(SRD_C,4)}, s90 offen offset:1024 sc1")
    for i in range(32):
        if i % 4 == 0 and i: k("s_add_u32 s83, s83, 4096")
        k(f"buffer_load_dwordx4 {ar(4*i,4)}, v{L16}, {sr(SRD_B,4)}, s83 offen offset:{(i%4)*1024} sc1")
    srd(k, SRD_T, P_WS, S * D * 2, WS_O)
    k("s_waitcnt vmcnt(32)")
    for sh in (8, 4, 2, 1):
        for j in range(8): k(f"v_add_f32_dpp v{ZZ+j}, v{ZZ+j}, v{ZZ+j} row_ror:{sh} row_mask:0xf bank_mask:0xf")
    k(f"v_and_b32 v{VT+1}, 1, v{LANE}\nv_cmp_eq_u32 vcc, 0, v{VT+1}")
    for j in range(4): k(f"v_cvt_pk_bf16_f32 v{BF+8+j}, v{ZZ+2*j}, v{ZZ+2*j+1}")
    for j in range(4): k(f"v_cndmask_b32 v{BF+8+j}, v{ONES}, v{BF+8+j}, vcc")
    for i in range(32):
        db, pp = divmod(i, 16)
        if i % 2 == 0: k(f"s_waitcnt vmcnt({30 - i})")
        for fb in range(2):
            d = vr(KV + (db * 2 + fb) * 4, 4)
            k(f"{MF} {d}, {vr(SEL + (2 if fb == 0 else 0), 4)}, {ar(4*i,4)}, {'0' if pp == 0 else d}")
    k(f"s_mul_i32 s82, s{S_WAVE}, 3072\ns_add_u32 s82, s82, {SH}")
    k(f"v_add_u32 v{VT+1}, s82, v{L16}\nv_add_u32 v{VT+2}, {SH}, v{L16}")
    k("s_nop 6")
    for db in range(2):
        for j in range(4): k(f"v_cvt_pk_bf16_f32 v{BF+db*4+j}, v{KV+db*8+2*j}, v{KV+db*8+2*j+1}")
    for j in range(3): k(f"ds_write_b128 v{VT+1}, {vr(BF+4*j,4)} offset:{j*1024}")
    k("s_waitcnt lgkmcnt(0)\ns_barrier")
    for i in range(12): k(f"ds_read_b128 {ar(4*i,4)}, v{VT+2} offset:{i*1024}")
    k(f"s_lshl_b32 s82, s{S_RB1}, 3\ns_lshl_b32 s83, s{S_WAVE}, 1\ns_add_u32 s82, s82, s83\ns_lshl_b32 s82, s82, 15")
    k(f"s_lshl_b32 s83, s{S_HP}, 11\ns_add_u32 s82, s82, s83\ns_add_u32 s83, s82, 0x8000")
    k(f"s_lshl_b32 s84, s{S_RB1}, 2\ns_add_u32 s84, s84, s{S_WAVE}\ns_lshl_b32 s84, s84, {FS+4}\ns_lshl_b32 s85, s{S_HP}, {FS}\ns_add_u32 s84, s84, s85\ns_add_u32 s84, s84, {F_O}")
    k("s_waitcnt lgkmcnt(0)")
    for g, (hh, t) in enumerate(groups):
        for sg in range(2):
            for j in range(3):
                k(f"{MF} {vr((g*2+sg)*12+4*j,4)}, {ar(((hh*2+sg)*3+j)*4,4)}, {vr(EK+(g*2+sg)*4,4)}, 0")
    k("s_nop 7")
    for g, (hh, t) in enumerate(groups):
        n1, n2 = g * 24, g * 24 + 12
        D1, S1, D2, S2 = n1 + 8, n1 + 9, n2 + 8, n2 + 9
        k(f"v_mul_f32 v{n1+10}, v{S1}, v{S2}")
        k(f"v_mul_f32 v{n1+10}, 0x358637bd, v{n1+10}")
        k(f"v_fmac_f32 v{n1+10}, v{D1}, v{S2}\nv_fmac_f32 v{n1+10}, v{D2}, v{S1}")
        k(f"v_rcp_f32 v{n1+10}, v{n1+10}")
        k("s_nop 0")
        k(f"v_mul_f32 v{D1}, v{S2}, v{n1+10}\nv_mul_f32 v{D2}, v{S1}, v{n1+10}")
        for j in range(4): k(f"v_pk_mul_f32 {vr(n1+2*j,2)}, {vr(n1+2*j,2)}, {vr(D1,2)} op_sel_hi:[1,0]")
        for j in range(4): k(f"v_pk_fma_f32 {vr(n1+2*j,2)}, {vr(n2+2*j,2)}, {vr(D2,2)}, {vr(n1+2*j,2)} op_sel_hi:[1,0,1]")
        for j in range(4): k(f"v_cvt_pk_bf16_f32 v{n2+j}, v{n1+2*j}, v{n1+2*j+1}")
        k(f"buffer_store_dwordx4 {vr(n2,4)}, v{L16}, {sr(SRD_T,4)}, s{82+t} offen offset:{hh*1024} sc1")
    k.stamp("o stored")
    CU, AU, WW, TT = 128, 144, 152, 156
    for i in range(8): k(f"v_accvgpr_read_b32 v{CU+2*i}, a{A_UT+32+i}")
    silu_block(k, [CU + 2 * i for i in range(8)])
    mko = len(k.L)
    g2.V_X = 48
    srd(k, SRD_A, P_X, S * D * 2)
    V_XA = 47
    k(f"v_lshrrev_b32 v{VT+1}, 4, v{LANE}")
    k(f"v_and_b32 v{VT+2}, 15, v{LANE}\nv_lshlrev_b32 v{VT+2}, 11, v{VT+2}\nv_lshl_add_u32 v{V_XA}, v{VT+1}, 3, v{VT+2}")
    k(f"s_lshl_b32 s82, s{S_RB2}, 3\ns_lshl_b32 s83, s{S_WAVE}, 1\ns_add_u32 s82, s82, s83\ns_lshl_b32 s82, s82, 15\ns_lshl_b32 s83, s{S_NT}, 7\ns_add_u32 s82, s82, s83\ns_add_u32 s83, s82, 32768")
    for t in range(2):
        for b in range(4):
            k(f"buffer_load_dwordx2 {vr(g2.V_X+(t*4+b)*2,2)}, v{V_XA}, {sr(SRD_A,4)}, s{82+t} offen offset:{b*32}")
    publish(k, 84, VT + 2, mko)
    k.stamp("o published")
    mark1 = len(k.L)
    for j in range(8): k(f"v_mov_b32 v{AU+j}, 0")
    for i in range(8):
        for d in range(4): k(f"v_accvgpr_read_b32 v{WW+d}, a{A_UT+4*i+d}")
        for d in range(4):
            k(f"v_lshlrev_b32 v{TT}, 16, v{WW+d}\nv_and_b32 v{TT+1}, 0xffff0000, v{WW+d}")
            k(f"v_pk_fma_f32 {vr(AU+2*d,2)}, {vr(TT,2)}, {vr(CU+2*i,2)}, {vr(AU+2*d,2)} op_sel_hi:[1,0,1]")
    k("s_nop 1")
    for j in range(4): k(f"v_permlane32_swap_b32 v{AU+j}, v{AU+j+4}")
    k("s_nop 1")
    for j in range(4): k(f"v_add_f32 v{AU+j}, v{AU+j}, v{AU+j+4}")
    k("s_nop 1")
    for j in range(2): k(f"v_permlane16_swap_b32 v{AU+j}, v{AU+j+2}")
    k("s_nop 1")
    for j in range(2): k(f"v_add_f32 v{AU+j}, v{AU+j}, v{AU+j+2}")
    k("s_nop 1")
    for j in range(2): k(f"v_add_f32_dpp v{AU+j}, v{AU+j}, v{AU+j} row_ror:8 row_mask:0xf bank_mask:0xf")
    sprinkle(k, mark1, g3_early_units(k.g3, opt.get("g3_e2", 7), 254), skip=0)
    k(f"v_and_b32 v{TT}, 7, v{LANE}\nv_lshlrev_b32 v{TT}, 5, v{TT}\nv_lshrrev_b32 v{TT+1}, 5, v{LANE}\nv_lshl_add_u32 v{TT}, v{TT+1}, 4, v{TT}")
    k(f"v_bfe_u32 v{TT+1}, v{LANE}, 4, 1\nv_lshl_add_u32 v{TT}, v{TT+1}, 3, v{TT}")
    srd(k, SRD_D, P_WS, MP_BYTES, WS_MODP)
    k(f"v_or_b32 v{AU}, 1, v{AU}\nv_or_b32 v{AU+1}, 1, v{AU+1}")
    k(f"buffer_store_dwordx2 {vr(AU,2)}, v{TT}, {sr(SRD_D,4)}, s{S_MO} offen sc1")
    return g2

A_PARK = 224
S3_SRD, S3_WB, S3_KW = 64, 68, 69
def setup_gemm3_early(k, opt, LANE, VT):
    c = Sched(); common_gemm(c)
    NS, R = 4, 8
    STAGE = 28672
    V_RD, V_DMA, V_TOK = 224, 226, 233
    c.V_RD, c.V_DMA, c.V_TOK, c.LANE, c.L16, c.VT = V_RD, V_DMA, V_TOK, 237, 238, 248
    c.srd_w, c.s_wbase, c.s_kw = S3_SRD, S3_WB, S3_KW
    order(c, k, opt, 'g3', ['win', [4, 4, 8], 0])
    k(f"s_lshr_b32 s80, s{S_WAVE}, 1\ns_and_b32 s81, s{S_WAVE}, 1")
    k(f"s_mul_i32 s83, s80, {32*7168}\ns_mul_i32 s{S_TMP}, s{S_FT}, 224\ns_add_u32 s83, s83, s{S_TMP}")
    for i in range(7):
        k(f"v_add_u32 v{VT+2}, {i*64}, v{LANE}")
        k(f"v_mul_u32_u24 v{VT+3}, 4682, v{VT+2}")
        k(f"v_lshrrev_b32 v{VT+3}, 16, v{VT+3}")
        k(f"v_mul_u32_u24 v{VT+4}, 14, v{VT+3}")
        k(f"v_sub_u32 v{VT+4}, v{VT+2}, v{VT+4}")
        k(f"v_mul_u32_u24 v{VT+3}, 7168, v{VT+3}")
        k(f"v_lshl_add_u32 v{VT+3}, v{VT+4}, 4, v{VT+3}")
        k(f"v_add_u32 v{VT+3}, s83, v{VT+3}")
        k(f"v_accvgpr_write_b32 a{A_PARK+i}, v{VT+3}")
    k(f"s_mul_i32 s{S3_WB}, s81, 14336\ns_mul_i32 s82, s80, 7168\ns_add_u32 s{S3_WB}, s{S3_WB}, s82")
    k(f"s_cmp_eq_u32 s81, 0\ns_cselect_b32 s{S3_SRD}, s{P_W1}, s{P_W3}\ns_cselect_b32 s{S3_SRD+1}, s{P_W1+1}, s{P_W3+1}")
    k(f"s_mov_b32 s{S3_SRD+2}, {D*F*2}\ns_mov_b32 s{S3_SRD+3}, 0x20000")
    c.NB, c.TB, c.KS, c.SPK, c.KT, c.NS, c.R = 14, 4, 1, 2, 16, NS, R
    c.acc = lambda b, t: vr((b * 4 + t) * 4, 4)
    c.tf = lambda slot, ks, t: 112 + (slot * 4 + t) * 4
    ph = lambda sl: 3 - sl
    c.rd = lambda sl, b, sub, r: (V_RD + ph(sl) // 2, (ph(sl) % 2) * STAGE + (b % 2) * 14336 + (32 * sub + 16 * r) * 224 + 32 * (b // 2))
    c.slot_addr = lambda sl: ph(sl) * STAGE
    c.dma = [(V_DMA + i, i * 1024, 0) for i in range(7)]
    c.v_tok = [V_TOK + t for t in range(4)]
    c.w_stride = 64 * 7168
    c.drop = opt.get("g3_drop", ())
    c.pro_units, c.ramp_rate, c.read_margin = opt.get("g3_pro", 12), (lambda st: opt.get("g3_ramp", 12) if st < 6 else 8), 8
    c.lookahead = opt.get("g3_la", 4)
    std_sched(c)
    TL = c.TL = opt.get("g3_tail", 0)
    if TL:
        tail = c.steps[32 - TL:]
        c.steps = c.steps[:32 - TL] + [dict(st, frags=st["frags"][:8]) for st in tail] + [dict(st, frags=st["frags"][8:]) for st in tail]
    return c
def g3_early_units(c, n, vtmp):
    out = []
    for j in range(n):
        t = c.prefetch_txt(1)
        i = (c.pre_dma - 1) % 7
        ld = t[-1].replace(f"v{c.V_DMA+i},", f"v{vtmp},")
        out.append(t[:-1] + [f"v_accvgpr_read_b32 v{vtmp}, a{A_PARK+i}", ld])
    return out
def setup_gemm3_late(k, c):
    V_RD, V_DMA, V_TOK, LANE, L16, VT = c.V_RD, c.V_DMA, c.V_TOK, c.LANE, c.L16, c.VT
    lane_id(k, LANE)
    k(f"v_lshlrev_b32 v{L16}, 4, v{LANE}")
    for i in range(7): k(f"v_accvgpr_read_b32 v{V_DMA+i}, a{A_PARK+i}")
    k(f"v_lshrrev_b32 v{VT+3}, 2, v{LANE}\nv_mul_u32_u24 v{VT+3}, 224, v{VT+3}")
    k(f"v_and_b32 v{VT+4}, 3, v{LANE}\nv_lshl_add_u32 v{V_RD}, v{VT+4}, 3, v{VT+3}")
    k(f"v_add_u32 v{V_RD+1}, {2*28672}, v{V_RD}")
    k(f"s_lshl_b32 s82, s{S_RB3}, 4\ns_lshl_b32 s83, s{S_WAVE}, 2\ns_add_u32 s82, s82, s83\ns_lshl_b32 s82, s82, 15")
    k(f"v_add_u32 v{V_TOK}, s82, v{L16}")
    for t in range(1, 4): k(f"v_add_u32 v{V_TOK+t}, {t*0x8000}, v{V_TOK}")

def sprinkle(k, mark, groups, skip=4):
    if not groups: return
    seg = k.L[mark:]
    stepn = max(1, (len(seg) - skip) // len(groups))
    out, q = [], list(groups)
    for i, x in enumerate(seg):
        out.append(x)
        if q and i >= skip and (i - skip) % stepn == 0:
            assert not x.startswith("s_cmp") and not x.startswith("s_and_saveexec")
            out += q.pop(0)
    for g in q: out += g
    k.L[mark:] = out

A_X1 = 240
def phase_gemm2(k, c, opt):
    LANE, L16 = c.LANE, c.L16
    VT = 40
    k(f"v_and_b32 v252, 15, v{LANE}\nv_lshlrev_b32 v252, {FS}, v252")
    k(f"s_lshl_b32 s84, s{S_RB2}, 2\ns_add_u32 s84, s84, s{S_WAVE}\ns_lshl_b32 s84, s84, {FS+4}\ns_add_u32 s85, s84, {F_O}")
    if c.hs:
        k(f"s_add_u32 s94, s85, {F_O2 - F_O}")
        staged_wait(k, c, opt.get("g2_T", 5), 252, 85, 253, lambda sp, st: [f"s_lshl_b32 s{st}, s{sp}, 1", f"s_lshl_b32 s{st}, 3, s{st}"], pub=(95, 26))
        add_gate(k, c, 8, f"buffer_load_dword v253, v252, {sr(SRD_F,4)}, s94 offen sc1", 253)
    else:
        staged_wait(k, c, opt.get("g2_T", 6), 252, 85, 253, one_prod)
    k.stamp("o ready")
    V_G, V_C, V_S, V_GA = 64, 80, 136, 44
    p = Txt()
    srd(p, SRD_A, P_WS, S * D * 2, WS_Y)
    srd(p, SRD_B, P_WS, S * 128, WS_STAT)
    srd(p, SRD_D, P_WS, MP_BYTES, WS_MODP)
    p(f"v_lshrrev_b32 v{V_GA}, 4, v{LANE}\nv_lshlrev_b32 v{V_GA}, 4, v{V_GA}\nv_add_u32 v{V_GA}, {L_MV}, v{V_GA}")
    p(f"s_lshl_b32 s86, s{S_RB2}, 3\ns_lshl_b32 s87, s{S_WAVE}, 1\ns_add_u32 s86, s86, s87")
    p(f"s_lshl_b32 s88, s86, 15\ns_lshl_b32 s87, s{S_NT}, 11\ns_add_u32 s88, s88, s87\ns_add_u32 s89, s88, 32768")
    p(f"s_lshl_b32 s87, s{S_NT}, {FS}\ns_add_u32 s84, s84, s87\ns_add_u32 s84, s84, {F_Y}")
    p(f"s_lshl_b32 s91, s86, 11\ns_lshl_b32 s90, s{S_NT}, 8\ns_add_u32 s90, s90, s91")
    p(f"s_lshl_b32 s92, s{S_WAVE}, 16\ns_lshl_b32 s93, s{S_NT}, 12\ns_add_u32 s92, s92, s93\ns_add_u32 s92, s92, {MP_B}")
    p(f"v_lshlrev_b32 v{VT}, 2, v{LANE}")
    c.pre_loop_txt = p.L
    c.late = {}
    if opt.get("cpf", 1): c.late[6] = code_prefetch_txt(k.name, L16, 254, 80)
    m = Txt(); m.label = k.label
    MB_ = 160
    mld = [f"buffer_load_dword v{MB_+j}, v{VT}, {sr(SRD_D,4)}, s92 offen offset:{j*256} sc1" for j in range(16)]
    okm = k.label("mok")
    m(f"v_min_u32 v{MB_+16}, v{MB_}, v{MB_+1}")
    for j in range(2, 16, 2): m(f"v_min3_u32 v{MB_+16}, v{MB_+16}, v{MB_+j}, v{MB_+j+1}")
    m(f"v_cmp_eq_u32 vcc, 0, v{MB_+16}\ns_cmp_eq_u64 vcc, 0\ns_cbranch_scc1 {okm}")
    spin(m, mld, [MB_ + j for j in range(16)], MB_ + 16)
    m(f"{okm}:")
    mchk = "\n".join(m.L); m.L = []
    for st in (4, 2, 1):
        for j in range(st): m(f"v_pk_add_f32 {vr(MB_+2*j,2)}, {vr(MB_+2*j,2)}, {vr(MB_+2*(j+st),2)}")
    m(f"v_add_f32 v{MB_}, v{MB_}, v{MB_+1}")
    round_bf16(m, MB_)
    m(f"v_add_f32 v{MB_+1}, 1.0, v{MB_}"); round_bf16(m, MB_ + 1)
    m(f"s_cmp_eq_u32 s{S_WAVE}, 2\ns_cselect_b64 vcc, -1, 0")
    m(f"v_cndmask_b32 v{MB_}, v{MB_}, v{MB_+1}, vcc")
    m(f"s_lshl_b32 s92, s{S_WAVE}, 8\ns_add_u32 s92, s92, {L_MV}\nv_add_u32 v{VT}, s92, v{VT}")
    m(f"ds_write_b32 v{VT}, v{MB_}")
    ms_ = opt.get("g2_modstep", 13)
    c.late.setdefault(ms_ - 2, []).extend([VM(x, ("mv", 0)) for x in mld])
    k_ = [x for x in m.L]
    i_ = next(i for i, x in enumerate(k_) if x.startswith("s_cmp_eq_u32"))
    c.late[ms_] = [WVM([("mv", 0)]), T(mchk)] + k_[:i_] + ["\n".join(k_[i_:])]
    ne = opt.get("g3_e3", 7 if opt.get("split", 1) else 0)
    eu = [x for g in g3_early_units(k.g3, ne, 254) for x in g]
    c.late.setdefault(14, []).extend(eu[:len(eu)//2 // 1]); c.late.setdefault(15, []).extend(eu[len(eu)//2:])
    c.last_reads = ([f"ds_read_b128 {vr(V_G+4*b,4)}, v{V_GA} offset:{b*64}" for b in range(4)] + [f"ds_read_b128 {vr(V_C+4*b,4)}, v{V_GA} offset:{512+b*64}" for b in range(4)]
                    + [f"ds_read_b128 {vr(V_S+4*b,4)}, v{V_GA} offset:{256+b*64}" for b in range(4)])
    c.run(k)
    k.stamp("g2 loop done")
    k("s_waitcnt lgkmcnt(0)\ns_nop 7")
    A = lambda b, t: (b * 2 + t) * 4
    XT = 194; V_X = c.V_X
    for t in range(2):
        for b in range(4):
            xr = V_X + (t * 4 + b) * 2
            for h in range(2): k(f"v_lshlrev_b32 v{XT+2*h}, 16, v{xr+h}\nv_and_b32 v{XT+2*h+1}, 0xffff0000, v{xr+h}")
            for h in range(2): k(f"v_pk_fma_f32 {vr(A(b,t)+2*h,2)}, {vr(A(b,t)+2*h,2)}, {vr(V_G+4*b+2*h,2)}, {vr(XT+2*h,2)}")
        PK = XT + 4 + t * 8
        for b in range(4): k(f"v_cvt_pk_bf16_f32 v{PK+2*b}, v{A(b,t)}, v{A(b,t)+1}\nv_cvt_pk_bf16_f32 v{PK+2*b+1}, v{A(b,t)+2}, v{A(b,t)+3}")
        for b in range(4):
            for h in range(2): k(f"v_lshlrev_b32 v{A(b,t)+2*h}, 16, v{PK+2*b+h}\nv_and_b32 v{A(b,t)+2*h+1}, 0xffff0000, v{PK+2*b+h}")
    SU = [XT + 20, XT + 22]; M2 = [XT + 21, XT + 23]; TM = [XT + 24, XT + 25]; AC = [XT, XT + 2]; NM = [XT + 26, XT + 28]; DF = 32
    for t in range(2): k(f"v_pk_add_f32 {vr(AC[t],2)}, {vr(A(0,t),2)}, {vr(A(0,t)+2,2)}")
    for b in range(1, 4):
        for h in range(2):
            for t in range(2): k(f"v_pk_add_f32 {vr(AC[t],2)}, {vr(AC[t],2)}, {vr(A(b,t)+2*h,2)}")
    def allred2(X):
        for sw in ("v_permlane32_swap_b32", "v_permlane16_swap_b32"):
            for t in range(2): k(f"v_mov_b32 v{TM[t]}, v{X[t]}")
            k("s_nop 0")
            for t in range(2): k(f"{sw} v{X[t]}, v{TM[t]}")
            k("s_nop 0")
            for t in range(2): k(f"v_add_f32 v{X[t]}, v{X[t]}, v{TM[t]}")
    for t in range(2): k(f"v_add_f32 v{SU[t]}, v{AC[t]}, v{AC[t]+1}")
    allred2(SU)
    for t in range(2): k(f"v_mul_f32 v{NM[t]}, {-1.0/64!r}, v{SU[t]}\nv_mov_b32 v{AC[t]}, 0\nv_mov_b32 v{AC[t]+1}, 0")
    for b in range(4):
        for h in range(2):
            for t in range(2): k(f"v_pk_add_f32 {vr(DF+2*t,2)}, {vr(A(b,t)+2*h,2)}, {vr(NM[t],2)} op_sel_hi:[1,0]")
            for t in range(2): k(f"v_pk_fma_f32 {vr(AC[t],2)}, {vr(DF+2*t,2)}, {vr(DF+2*t,2)}, {vr(AC[t],2)}")
    for t in range(2): k(f"v_add_f32 v{M2[t]}, v{AC[t]}, v{AC[t]+1}")
    allred2(M2)
    k(f"v_cmp_gt_u32 vcc, 16, v{LANE}")
    k(f"v_lshlrev_b32 v{XT+2}, 3, v{LANE}\nv_lshrrev_b32 v{XT+3}, 4, v{LANE}")
    k(f"v_cndmask_b32 v{XT}, v{SU[1]}, v{SU[0]}, vcc\nv_cndmask_b32 v{XT+1}, v{M2[1]}, v{M2[0]}, vcc")
    k(f"v_and_b32 v45, 0x78, v{XT+2}\nv_lshl_add_u32 v45, v{XT+3}, 10, v45")
    k(f"v_or_b32 v{XT+1}, 1, v{XT+1}")
    k(f"v_cmp_gt_u32 vcc, 32, v{LANE}\ns_and_saveexec_b64 s[96:97], vcc")
    k(f"buffer_store_dwordx2 {vr(XT,2)}, v{XT+2}, {sr(SRD_B,4)}, s90 offen sc1")
    k("s_mov_b64 exec, s[96:97]")
    k.stamp("stat stored")
    for t in range(2):
        for b in range(4):
            for h in range(2): k(f"v_pk_mul_f32 {vr(A(b,t)+2*h,2)}, {vr(A(b,t)+2*h,2)}, {vr(V_C+4*b+2*h,2)}")
    for j in range(16): k(f"v_accvgpr_write_b32 a{A_X1+j}, v{XT+4+j}")
    g3 = k.g3
    setup_gemm3_late(k, g3)
    g3.prefetch(k, opt.get("g3_pre0", 0))
    ST = 48
    spin(k, [f"buffer_load_dwordx2 {vr(ST+t*8+j*2,2)}, v45, {sr(SRD_B,4)}, s91 offen offset:{t*128+j*256} sc1" for t in range(2) for j in range(4)],
         [ST + 2 * j + 1 for j in range(8)], XT)
    k.stamp("stat ready")
    for t in range(2):
        b = ST + t * 8
        k(f"v_add_f32 v{SU[t]}, v{b}, v{b+2}\nv_add_f32 v{TM[t]}, v{b+4}, v{b+6}\nv_add_f32 v{SU[t]}, v{SU[t]}, v{TM[t]}")
        k(f"v_add_f32 v{M2[t]}, v{b+1}, v{b+3}\nv_add_f32 v{TM[t]}, v{b+5}, v{b+7}\nv_add_f32 v{M2[t]}, v{M2[t]}, v{TM[t]}")
    allred2(SU)
    for t in range(2): k(f"v_mul_f32 v{SU[t]}, {-1.0/1024!r}, v{SU[t]}")
    for j in range(4):
        for t in range(2): k(f"v_fmamk_f32 v{ST+t*8+2*j}, v{ST+t*8+2*j}, {1.0/64!r}, v{SU[t]}")
        for t in range(2): k(f"v_mul_f32 v{ST+t*8+2*j}, v{ST+t*8+2*j}, v{ST+t*8+2*j}")
        for t in range(2): k(f"v_fmac_f32 v{M2[t]}, 0x42800000, v{ST+t*8+2*j}")
    allred2(M2)
    for t in range(2): k(f"v_mov_b32 v{TM[t]}, 0x3727c5ac\nv_fmac_f32 v{TM[t]}, {1.0/1024!r}, v{M2[t]}")
    for t in range(2): k(f"v_rsq_f32 v{NM[t]}, v{TM[t]}")
    k("s_nop 0")
    for t in range(2): k(f"v_mul_f32 v{NM[t]+1}, v{SU[t]}, v{NM[t]}")
    for t in range(2):
        YK = ST + t * 8
        for b in range(4):
            for h in range(2): k(f"v_pk_fma_f32 {vr(XT+2*h,2)}, {vr(V_C+4*b+2*h,2)}, {vr(NM[t],2)}, {vr(V_S+4*b+2*h,2)} op_sel:[0,1,0] op_sel_hi:[1,1,1]")
            for h in range(2): k(f"v_pk_fma_f32 {vr(XT+2*h,2)}, {vr(A(b,t)+2*h,2)}, {vr(NM[t],2)}, {vr(XT+2*h,2)} op_sel_hi:[1,0,1]")
            k(f"v_cvt_pk_bf16_f32 v{YK+2*b}, v{XT}, v{XT+1}\nv_cvt_pk_bf16_f32 v{YK+2*b+1}, v{XT+2}, v{XT+3}")
        for s_ in range(2): k(f"buffer_store_dwordx4 {vr(YK+4*s_,4)}, v{L16}, {sr(SRD_A,4)}, s{88+t} offen offset:{s_*1024} sc1")
    publish(k, 84, 40)
    k.stamp("y published")
    g3.prefetch(k, opt.get("g3_pre", 0))
    return g3

def phase_gemm3(k, c, opt):
    LANE, L16, VT = c.LANE, c.L16, c.VT
    NB, TB = 14, 4
    srd(k, SRD_T, P_WS, S * D * 2, WS_Y)
    srd(k, SRD_C, P_WS, S * F * 2, WS_HH)
    k(f"v_and_b32 v{VT}, 31, v{LANE}\nv_lshlrev_b32 v{VT}, {FS}, v{VT}")
    k(f"s_lshl_b32 s84, s{S_RB3}, 2\ns_add_u32 s84, s84, s{S_WAVE}")
    k(f"s_lshl_b32 s85, s84, {FS+5}\ns_add_u32 s85, s85, {F_Y}")
    staged_wait(k, c, opt.get("g3_T", 3), VT, 85, VT + 1, one_prod, dup16=True)
    k.stamp("y ready")
    p = Txt()
    p(f"s_mul_i32 s88, s84, {448*1024}\ns_mul_i32 s92, s{S_FT}, 3584\ns_add_u32 s88, s88, s92")
    for t in range(1, 4): p(f"s_add_u32 s{88+t}, s88, {t*112*1024}")
    p(f"s_lshl_b32 s93, s84, {FS+5}\ns_lshl_b32 s94, s{S_FT}, {FS}\ns_add_u32 s93, s93, s94\ns_add_u32 s94, s93, {F_HB}\ns_add_u32 s93, s93, {F_HH}")
    p(f"s_mov_b32 s86, {-LOG2E!r}\ns_mov_b32 s87, {-LOG2E!r}")
    SB = 241
    p(f"v_lshrrev_b32 v{SB}, 1, v{L16}")
    c.pre_loop_txt = p.L
    if opt.get("cpf", 1):
        for st_ in opt.get("cp3", [6, 22]): c.late.setdefault(st_, []).extend(code_prefetch_txt(k.name, L16, 254, 80, junk="v240"))
    if opt.get("w2touch", 1):
        ws_ = opt.get("w2steps", [16]); per = 56 // len(ws_)
        for j, st_ in enumerate(ws_):
            c.late.setdefault(st_, []).extend([f"s_lshl_b32 s80, s2, 2", f"s_add_u32 s80, s80, s{S_WAVE}", "s_mul_i32 s80, s80, 7168", f"s_add_u32 s80, s80, {j*per*128}",
                      f"v_min_u32 v253, {per-1}, v{LANE}", "v_lshlrev_b32 v253, 7, v253", "v_add_u32 v253, s80, v253",
                      f"global_load_dword v240, v253, s[{P_W2}:{P_W2+1}]"])
    t4 = Txt()
    g4 = setup_gemm4p(t4, opt, 242)
    half = len(t4.L) // 2
    c.late[19] = t4.L[:half]; c.late[20] = t4.L[half:]
    pf = g4.prefetch_txt(4); c.late[29] = pf
    pf = g4.prefetch_txt(4); c.late[30] = pf
    def G(s, t): return ((2 * s) * TB + t) * 4
    def Uu(s, t): return ((2 * s + 1) * TB + t) * 4
    def act(k, slots, t, scalar=False):
        if scalar:
            for s in slots:
                for r in range(4):
                    k(f"v_mul_f32 v{Uu(s,t)+r}, v{G(s,t)+r}, v{Uu(s,t)+r}")
                    k(f"v_mul_f32 v{G(s,t)+r}, s86, v{G(s,t)+r}")
            rs = [(s, r) for s in slots for r in range(4)]
            for i, (s, r) in enumerate(rs): k(f"v_exp_f32 v{G(s,t)+r}, v{G(s,t)+r}")
            for i, (s, r) in enumerate(rs): k(f"v_add_f32 v{G(s,t)+r}, 1.0, v{G(s,t)+r}")
            for i, (s, r) in enumerate(rs): k(f"v_rcp_f32 v{G(s,t)+r}, v{G(s,t)+r}")
            for i, (s, r) in enumerate(rs): k(f"v_mul_f32 v{Uu(s,t)+r}, v{Uu(s,t)+r}, v{G(s,t)+r}")
            return
        for s in slots:
            for h in range(2):
                k(f"v_pk_mul_f32 {vr(Uu(s,t)+2*h,2)}, {vr(G(s,t)+2*h,2)}, {vr(Uu(s,t)+2*h,2)}")
                k(f"v_pk_mul_f32 {vr(G(s,t)+2*h,2)}, {vr(G(s,t)+2*h,2)}, s[86:87]")
        for s in slots:
            for r in range(4): k(f"v_exp_f32 v{G(s,t)+r}, v{G(s,t)+r}")
        for s in slots:
            for h in range(2): k(f"v_pk_add_f32 {vr(G(s,t)+2*h,2)}, {vr(G(s,t)+2*h,2)}, 1.0 op_sel_hi:[1,0]")
        for s in slots:
            for r in range(4): k(f"v_rcp_f32 v{G(s,t)+r}, v{G(s,t)+r}")
        for s in slots:
            for h in range(2): k(f"v_pk_mul_f32 {vr(Uu(s,t)+2*h,2)}, {vr(Uu(s,t)+2*h,2)}, {vr(G(s,t)+2*h,2)}")
    def pair(k, pr, t, scalar=False):
        s0, s1 = 2 * pr, 2 * pr + 1
        act(k, [s0, s1], t, scalar)
        d = G(s0, t)
        k(f"v_cvt_pk_bf16_f32 v{d}, v{Uu(s0,t)}, v{Uu(s0,t)+1}\nv_cvt_pk_bf16_f32 v{d+1}, v{Uu(s0,t)+2}, v{Uu(s0,t)+3}")
        k(f"v_cvt_pk_bf16_f32 v{d+2}, v{Uu(s1,t)}, v{Uu(s1,t)+1}\nv_cvt_pk_bf16_f32 v{d+3}, v{Uu(s1,t)+2}, v{Uu(s1,t)+3}")
        k(f"buffer_store_dwordx4 {vr(d,4)}, v{L16}, {sr(SRD_C,4)}, s{88+t} offen offset:{pr*1024} sc1")
    ea = Txt(); eb = Txt()
    nin = opt.get("g3_nin", 8) if c.TL else 0
    for i, (pr, t) in enumerate([(pr, t) for pr in range(2) for t in range(TB)]):
        if i < nin: pair(ea, pr, t, opt.get("g3_scalar", 0))
        else: pair(eb, pr, t)
    if c.TL:
        nst = opt.get("g3_east", c.TL - 1)
        per = -(-len(ea.L) // nst)
        c.step_extra = lambda st: ea.L[(st - 32) * per:(st - 31) * per] if st >= 32 else []
    c.run(k)
    k.stamp("g3 loop done")
    if not c.TL: k("s_nop 7")
    for x in eb.L: k(x)
    mkA = len(k.L)
    k("s_nop 4\ns_barrier")
    na = opt.get("g3_pubA", 2)
    for t in range(na): pair(k, 2, t)
    publish(k, 93, 252, mkA)
    k.stamp("hA published")
    mark3 = len(k.L)
    for t in range(na, TB): pair(k, 2, t)
    grp = []
    for j in range(8):
        t_ = g4.prefetch_txt(1); grp.append(t_[:-1] + ["s_nop 0", t_[-1]])
    sprinkle(k, mark3, grp)
    for t in range(TB):
        act(k, [6], t)
        d = G(6, t)
        k(f"v_cvt_pk_bf16_f32 v{d}, v{Uu(6,t)}, v{Uu(6,t)+1}\nv_cvt_pk_bf16_f32 v{d+1}, v{Uu(6,t)+2}, v{Uu(6,t)+3}")
        k(f"buffer_store_dwordx2 {vr(d,2)}, v{SB}, {sr(SRD_C,4)}, s{88+t} offen offset:3072 sc1")
    k.stamp("hh stored")
    return g4

def phase_gemm4(k, c, opt):
    LANE, L16 = c.LANE, c.L16
    VT = 40
    srd(k, SRD_T, P_WS, S * F * 2, WS_HH)
    srd(k, SRD_A, P_OUT, S * D * 2)
    k(f"v_and_b32 v{VT}, 31, v{LANE}\nv_lshlrev_b32 v{VT}, 2, v{VT}")
    k(f"s_lshl_b32 s84, s{S_RB2}, 1\ns_lshr_b32 s85, s{S_WAVE}, 1\ns_add_u32 s84, s84, s85\ns_lshl_b32 s84, s84, {FS+5}\ns_add_u32 s84, s84, {F_HH}")
    wait_flags(k, [(VT, 84, 1)], VT + 1)
    k.stamp("hh ready")
    V_G, V_GA, V_XA, V_X = 64, 44, 45, 48
    p = Txt()
    p(f"v_lshrrev_b32 v{VT}, 4, v{LANE}\nv_lshlrev_b32 v{V_GA}, 4, v{VT}\nv_add_u32 v{V_GA}, {L_MV}, v{V_GA}")
    p(f"v_and_b32 v{VT+1}, 15, v{LANE}\nv_lshlrev_b32 v{VT+1}, 11, v{VT+1}")
    p(f"v_and_b32 v{VT+2}, 1, v{VT}\nv_lshl_add_u32 v{VT+1}, v{VT+2}, 5, v{VT+1}")
    p(f"v_lshrrev_b32 v{VT+2}, 1, v{VT}\nv_lshl_add_u32 v{V_XA}, v{VT+2}, 4, v{VT+1}")
    p(f"s_lshl_b32 s86, s{S_RB2}, 3\ns_lshl_b32 s87, s{S_WAVE}, 1\ns_add_u32 s86, s86, s87\ns_lshl_b32 s86, s86, 15\ns_lshl_b32 s87, s{S_NT}, 7\ns_add_u32 s86, s86, s87\ns_add_u32 s87, s86, 32768")
    for j in range(16): p(f"v_accvgpr_read_b32 v{V_X+j}, a{A_X1+j}")
    c.pre_loop_txt = p.L
    c.last_reads = [f"ds_read_b128 {vr(V_G+4*b,4)}, v{V_GA} offset:{768+b*64}" for b in range(4)]
    c.run(k)
    k.stamp("g4 loop done")
    k("s_waitcnt lgkmcnt(0)\ns_nop 7")
    A = lambda b, t: (b * 2 + t) * 4
    XT = 96
    for t in range(2):
        for b in range(4):
            xr = V_X + (t * 4 + b) * 2
            for h in range(2): k(f"v_lshlrev_b32 v{XT+2*h}, 16, v{xr+h}\nv_and_b32 v{XT+2*h+1}, 0xffff0000, v{xr+h}")
            for h in range(2): k(f"v_pk_fma_f32 {vr(A(b,t)+2*h,2)}, {vr(A(b,t)+2*h,2)}, {vr(V_G+4*b+2*h,2)}, {vr(XT+2*h,2)}")
        PK = XT + 4 + t * 8
        for b in range(4): k(f"v_cvt_pk_bf16_f32 v{PK+2*b}, v{A(b,t)}, v{A(b,t)+1}\nv_cvt_pk_bf16_f32 v{PK+2*b+1}, v{A(b,t)+2}, v{A(b,t)+3}")
        k("s_nop 1")
        for s_ in range(2): k(f"v_permlane16_swap_b32 v{PK+4*s_}, v{PK+4*s_+2}\nv_permlane16_swap_b32 v{PK+4*s_+1}, v{PK+4*s_+3}")
        for s_ in range(2): k(f"buffer_store_dwordx4 {vr(PK+4*s_,4)}, v{V_XA}, {sr(SRD_A,4)}, s{86+t} offen offset:{s_*64}")

def build_mega(instr=False, opt=None, name="mega_kernel"):
    opt = opt or {}
    k = Mega(name, 256, 256, LDS_TOTAL, vgpr=256, agpr=256, sgpr=102)
    k.instr = instr; k.names = []; k.only = opt.get("only")
    end = k.label("end")
    far = k.label("go")
    k(f"s_cmp_lt_u32 s2, 256\ns_cbranch_scc1 {far}\ns_endpgm\n{far}:")
    if opt.get("fused", 1):
        code_prefetch_setup(k, name)
        k("v_and_b32 v104, 63, v0\nv_lshlrev_b32 v105, 4, v104\nv_lshlrev_b32 v254, 5, v0")
        k("global_load_dword a232, v254, s[100:101]")
        k("s_load_dwordx2 s[96:97], s[0:1], 88")
        if opt.get("dbgout"): k("s_load_dwordx2 s[72:73], s[0:1], 88")
    k("s_load_dwordx8 s[4:11], s[0:1], 0")
    k("s_load_dwordx2 s[12:13], s[0:1], 64")
    k("s_load_dwordx2 s[14:15], s[0:1], 40")
    k("s_load_dwordx4 s[16:19], s[0:1], 48")
    k("s_load_dwordx2 s[98:99], s[0:1], 72")
    k("s_load_dwordx2 s[24:25], s[0:1], 80")
    k("s_load_dwordx2 s[28:29], s[0:1], 96")
    if instr: k(f"v_mov_b32 v{VSTAMP}, 0")
    ids(k)
    k(f"s_lshr_b32 s80, s{S_IDX}, 2\ns_add_u32 s{S_R4}, s80, s{S_IDX}\ns_and_b32 s81, s{S_IDX}, 3\ns_lshl_b32 s81, s81, 1\ns_add_u32 s{S_R8}, s80, s81")
    k(f"s_and_b32 s80, s{S_IDX}, 3\ns_lshl_b32 s{S_FT}, s{S_XCD}, 2\ns_add_u32 s{S_FT}, s{S_FT}, s80\ns_lshr_b32 s{S_RB3}, s{S_IDX}, 2")
    if opt.get("fused", 1):
        for x in code_prefetch_txt(name, 105, 254, 80): k(x)
    k.stamp("start")
    g1 = (phase_front_fused if opt.get("fused", 1) else phase_front)(k, opt, name)
    g2 = (phase_gemm1s if opt.get('split', 1) else phase_gemm1)(k, g1, opt)
    g3 = phase_gemm2(k, g2, opt)
    g4 = phase_gemm3(k, g3, opt)
    (phase_gemm4p if opt.get('g4_pair', 1) else phase_gemm4)(k, g4, opt)
    if opt.get("diag"):
        a_, b_ = opt["diag"]
        k(f"v_readlane_b32 s84, v{VSTAMP}, 0\nv_readlane_b32 s85, v{VSTAMP}, {a_}\nv_readlane_b32 s86, v{VSTAMP}, {b_}\ns_nop 3")
        k("s_sub_u32 s86, s86, s85\ns_add_u32 s86, s86, 10000")
        lp = k.label("dg")
        k(f"{lp}:\ns_memrealtime s[0:1]\ns_waitcnt lgkmcnt(0)\ns_sub_u32 s87, s0, s84\ns_cmp_lt_u32 s87, s86\ns_cbranch_scc1 {lp}")
    elif instr:
        k("s_waitcnt vmcnt(0)")
        k.stamp("end")
        k(f"s_add_u32 s84, s{P_WS}, {WS_DBG}\ns_addc_u32 s85, s{P_WS+1}, 0\ns_mov_b32 s86, 0x100000\ns_mov_b32 s87, 0x20000")
        k(f"s_lshl_b32 s88, s2, 2\ns_add_u32 s88, s88, s{S_WAVE}\ns_lshl_b32 s88, s88, 8")
        lane_id(k, 1)
        k("v_lshlrev_b32 v1, 2, v1")
        k(f"buffer_store_dword v{VSTAMP}, v1, s[84:87], s88 offen")
        if opt.get("dbgout"):
            sk = k.label("nodbg")
            k(f"s_lshl_b32 s88, s2, 2\ns_add_u32 s88, s88, s{S_WAVE}\ns_cmp_lg_u32 s88, {opt['dbgout']*4}\ns_cbranch_scc1 {sk}")
            k("s_mov_b32 s84, s72\ns_mov_b32 s85, s73\ns_mov_b32 s86, 64\ns_mov_b32 s87, 0x20000")
            k(f"v_readlane_b32 s89, v{VSTAMP}, 0\ns_nop 3\nv_subrev_u32 v2, s89, v{VSTAMP}")
            k("buffer_store_dword v2, v1, s[84:87], 0 offen offset:12")
            k(f"{sk}:")
    k("s_endpgm")
    k(f"{name}_end:")
    return k
```

```python
import sys
from asmlib import *
from gemm import *
from layout import *
LOG2E = 1.4426950408889634
P_X, P_WQKV, P_WPHI, P_WO, P_W1, P_W3, P_W2, P_OUT, P_WS = 4, 6, 8, 10, 14, 16, 18, 24, 28
P_DBG, S_MB, S_MO = 96, 77, 79
P_C, P_WMOD = 12, 98
S_WAVE, S_XCD, S_IDX = 3, 30, 31
SRD_W, SRD_T, SRD_A, SRD_B, SRD_C, SRD_D, SRD_F = 32, 36, 40, 44, 48, 52, 56
S_KW, S_KT, S_WB, S_ROT, S_TMP, S_ROT2 = 60, 62, 76, 77, 78, 79
S_RB1, S_HP, S_RB2, S_NT, S_RB3, S_FT = 26, 27, 26, 27, 22, 23
S_R8, S_R4 = 20, 21
VSTAMP = 255
L_WPH, L_UTC = 110592, 105472
L_UT3, L_MV, L_R2 = 114688, 128000, 129792
LDS_TOTAL = 163584

class Mega(Kernel):
    nst = 0
    only = None
    def stamp(self, name=""):
        if not self.instr: return
        if self.only is not None and not any(name.startswith(o) for o in self.only): return
        if self.only is None and name[:3] in ("kp ", "qp "): return
        self("s_waitcnt lgkmcnt(0)\ns_memrealtime s[0:1]\ns_waitcnt lgkmcnt(0)")
        self(f"v_writelane_b32 v{VSTAMP}, s0, {self.nst}")
        self("s_nop 3\ns_memtime s[0:1]\ns_waitcnt lgkmcnt(0)")
        self(f"v_writelane_b32 v{VSTAMP}, s0, {self.nst + 32}")
        self.names.append(name); self.nst += 1

def lane_id(k, v):
    k(f"v_mbcnt_lo_u32_b32 v{v}, -1, 0\nv_mbcnt_hi_u32_b32 v{v}, -1, v{v}")

def code_prefetch_setup(k, name, s_pc=100):
    lab = k.label("pc")
    k(f"s_getpc_b64 s[{s_pc}:{s_pc+1}]")
    k(f"{lab}:")
    k(f"s_sub_u32 s{s_pc}, s{s_pc}, {lab}-{name}\ns_subb_u32 s{s_pc+1}, s{s_pc+1}, 0")
def code_prefetch_txt(name, v_l16, vt, s_tmp, s_idx=S_IDX, s_wave=S_WAVE, s_pc=100, junk="a232"):
    return [f"s_lshl_b32 s{s_tmp}, s{s_idx}, 2", f"s_add_u32 s{s_tmp}, s{s_tmp}, s{s_wave}", f"s_lshl_b32 s{s_tmp}, s{s_tmp}, 10",
            f"v_add_u32 v{vt}, s{s_tmp}, v{v_l16}", f"v_min_u32 v{vt}, {name}_end-{name}-4, v{vt}",
            f"global_load_dword {junk}, v{vt}, s[{s_pc}:{s_pc+1}]"]

def count_vm(k, mark):
    return sum(1 for x in k.L[mark:] if is_vm(x))
def publish(k, s_off, vt, mark=None):
    k(f"v_mov_b32 v{vt}, 1\nv_mov_b32 v{vt+1}, 0")
    n = 0 if mark is None else count_vm(k, mark)
    assert n < 64
    k(f"s_waitcnt vmcnt({n})")
    k(f"buffer_store_dword v{vt}, v{vt+1}, {sr(SRD_F,4)}, s{s_off} offen sc1")

def spin(k, loads, regs, vt, s_cnt=96):
    top, ok = k.label("poll"), k.label("ok")
    k(f"s_mov_b32 s{s_cnt}, 0")
    k(f"{top}:")
    for x in loads: k(x)
    k("s_waitcnt vmcnt(0)")
    if len(regs) == 1: k(f"v_cmp_eq_u32 vcc, 0, v{regs[0]}")
    else:
        k(f"v_min_u32 v{vt}, v{regs[0]}, v{regs[1]}")
        for x in regs[2:]: k(f"v_min_u32 v{vt}, v{vt}, v{x}")
        k(f"v_cmp_eq_u32 vcc, 0, v{vt}")
    k(f"s_add_u32 s{s_cnt}, s{s_cnt}, 1")
    k(f"s_cmp_eq_u64 vcc, 0\ns_cbranch_scc1 {ok}")
    k(f"s_sleep {SLEEP}\ns_cmp_lt_u32 s{s_cnt}, 0x40000\ns_cbranch_scc1 {top}")
    k(f"{ok}:")

def wait_flags(k, polls, vt, s_cnt=96):
    top, ok = k.label("poll"), k.label("ok")
    k(f"s_mov_b32 s{s_cnt}, 0")
    k(f"{top}:")
    r = vt
    regs = []
    for va, so, ndw in polls:
        if ndw == 4: r = (r + 1) // 2 * 2
        k(f"buffer_load_dword{'x4' if ndw == 4 else ''} {vr(r,ndw)}, v{va}, {sr(SRD_F,4)}, s{so} offen sc1")
        regs += list(range(r, r + ndw)); r += ndw
    k("s_waitcnt vmcnt(0)")
    for x in regs[1:]: k(f"v_min_u32 v{regs[0]}, v{regs[0]}, v{x}")
    k(f"v_cmp_eq_u32 vcc, 0, v{regs[0]}")
    k(f"s_add_u32 s{s_cnt}, s{s_cnt}, 1")
    k(f"s_cmp_eq_u64 vcc, 0\ns_cbranch_scc1 {ok}")
    k(f"s_sleep {SLEEP}\ns_cmp_lt_u32 s{s_cnt}, 0x40000\ns_cbranch_scc1 {top}")
    k(f"{ok}:")

def staged_wait(k, c, T_, v_addr, s_off, vf, prod_of, dup16=False, skip_first=0, s_m=97, pub=None):
    ld = f"buffer_load_dword v{vf}, v{v_addr}, {sr(SRD_F,4)}, s{s_off} offen sc1"
    if T_ is None:
        spin(k, [ld], [vf], 0); return
    k(f"s_mov_b32 s{s_m}, 0")
    for kt in range(skip_first, T_):
        for x in c.pos_txt(80, kt): k(x)
        for x in prod_of(80, 81): k(x)
        k(f"s_or_b32 s{s_m}, s{s_m}, s81")
    if dup16: k(f"s_lshl_b32 s81, s{s_m}, 16\ns_or_b32 s{s_m}, s{s_m}, s81")
    top, ok = k.label("poll"), k.label("ok")
    if pub:
        mk = len(k.L); k(ld); publish(k, pub[0], pub[1], mk)
        k("s_waitcnt vmcnt(1)")
        k(f"v_cmp_eq_u32 vcc, 0, v{vf}\ns_nop 0")
        k(f"s_and_b32 s81, vcc_lo, s{s_m}\ns_cbranch_scc0 {ok}")
    k(f"s_mov_b32 s96, 0\n{top}:")
    k(ld)
    k("s_waitcnt vmcnt(0)")
    k(f"v_cmp_eq_u32 vcc, 0, v{vf}")
    k("s_add_u32 s96, s96, 1")
    k(f"s_and_b32 s81, vcc_lo, s{s_m}\ns_cbranch_scc0 {ok}")
    k(f"s_sleep {SLEEP}\ns_cmp_lt_u32 s96, 0x40000\ns_cbranch_scc1 {top}")
    k(f"{ok}:")
    add_gate(k, c, T_, ld, vf)
def add_gate(k, c, tile, ld, vf):
    m = Txt(); m.label = k.label
    okl = k.label("gok")
    m(f"v_cmp_eq_u32 vcc, 0, v{vf}\ns_cmp_eq_u64 vcc, 0\ns_cbranch_scc1 {okl}")
    spin(m, [ld], [vf], 0)
    m(f"{okl}:")
    c.gates = list(c.gates) + [(tile, [VM(ld, ("gate", tile))], [WVM([("gate", tile)]), T("\n".join(m.L))])]
one_prod = lambda sp, st: [f"s_lshl_b32 s{st}, 1, s{sp}"]

def allreduce_q(k, op, x, tmp):
    k(f"v_mov_b32 v{tmp}, v{x}\ns_nop 1")
    k(f"v_permlane32_swap_b32 v{x}, v{tmp}")
    k(f"s_nop 1\n{op} v{x}, v{x}, v{tmp}")
    k(f"v_mov_b32 v{tmp}, v{x}\ns_nop 1")
    k(f"v_permlane16_swap_b32 v{x}, v{tmp}")
    k(f"s_nop 1\n{op} v{x}, v{x}, v{tmp}")

def treduce4(k, op, A):
    a, b, c, d = A
    k("s_nop 1")
    k(f"v_permlane32_swap_b32 v{a}, v{b}\nv_permlane32_swap_b32 v{c}, v{d}")
    k("s_nop 1")
    k(f"{op} v{a}, v{a}, v{b}\n{op} v{c}, v{c}, v{d}")
    k("s_nop 1")
    k(f"v_permlane16_swap_b32 v{a}, v{c}")
    k("s_nop 1")
    k(f"{op} v{a}, v{a}, v{c}")
    k(f"v_mov_b32 v{c}, v{a}")
    k("s_nop 1")
    k(f"v_permlane16_swap_b32 v{a}, v{c}")
    k("s_nop 1")
    k(f"v_mov_b32 v{b}, v{a}\nv_mov_b32 v{d}, v{c}")
    k("s_nop 1")
    k(f"v_permlane32_swap_b32 v{a}, v{b}\nv_permlane32_swap_b32 v{c}, v{d}")
    k("s_nop 1")

def treduce4x2(k, ops, As):
    A, B = Txt(), Txt()
    treduce4(A, ops[0], As[0]); treduce4(B, ops[1], As[1])
    def split(L):
        out, cur = [], []
        for x in L:
            if x.startswith("s_nop"): out.append(cur); cur = []
            else: cur.append(x)
        out.append(cur); return out
    for a, b in zip(split(A.L), split(B.L)):
        for x in a + b: k(x)
        k("s_nop 0" if len(a) >= 1 else "s_nop 1")

def red8(k, x):
    for m in ("quad_perm:[1,0,3,2]", "quad_perm:[2,3,0,1]", "row_half_mirror"):
        k(f"s_nop 1\nv_add_f32_dpp v{x}, v{x}, v{x} {m} row_mask:0xf bank_mask:0xf")

def round_bf16(k, v):
    k(f"v_cvt_pk_bf16_f32 v{v}, v{v}, v{v}\nv_and_b32 v{v}, 0xffff0000, v{v}")

S_DLA, S_DLB, S_PTMP = 71, 6, 75
def order(c, k, opt, tag, default):
    o = opt.get(tag + "_ord", default)
    c.first_flag = opt.get(tag + "_ff", "")
    c.tag = tag; c.stamp_every = opt.get(tag + "_se", 0)
    c.fine = opt.get(tag + "_fine", opt.get("fine", 0)); c.bar_frac = opt.get("bar_frac", 0.3)
    c.s_rot, c.s_rot2 = S_R8, S_R4
    if o[0] == "lead":
        c.lead_D, c.s_dl = o[1], S_DLA
    else:
        c.wins = win_mask(o[1])
        if o[2]:
            c.s_start = S_HP
            c.s_rot = c.s_rot2 = S_RB3
def common_gemm(c):
    c.srd_w, c.srd_t = SRD_W, SRD_T
    c.s_kw, c.s_kt, c.s_wbase, c.s_ptmp = S_KW, S_KT, S_WB, S_PTMP

def setup_gemm1(k, opt):
    c = Sched(); common_gemm(c)
    NS, R = opt.get("g1_NS", 4), opt.get("g1_R", 4)
    STAGE = 25344
    c.V_RD, c.V_DMA, c.V_TOK, c.LANE, c.L16, c.VT = 96, 98, 102, 104, 105, 106
    V_RD, V_DMA, V_TOK, LANE, L16, VT = c.V_RD, c.V_DMA, c.V_TOK, c.LANE, c.L16, 110
    k(f"v_lshlrev_b32 v{L16}, 4, v{LANE}")
    c.lead_D, c.s_dl = opt.get("D", 0), S_DLA
    if opt.get("uselead", 0): c.lead_init(k, S_R4, 81)
    c.lead_D = None
    order(c, k, opt, "g1", ["win", [8, 8], 0])
    k(f"s_lshr_b32 s80, s{S_WAVE}, 1\ns_and_b32 s81, s{S_WAVE}, 1")
    k(f"v_lshrrev_b32 v{VT+1}, 3, v{LANE}")
    k(f"v_and_b32 v{VT+2}, 4, v{VT+1}")
    k(f"v_bfe_u32 v{VT+3}, v{VT+1}, 1, 1\nv_or_b32 v{VT+2}, v{VT+2}, v{VT+3}")
    k(f"v_and_b32 v{VT+3}, 1, v{VT+1}\nv_lshl_or_b32 v{VT+2}, v{VT+3}, 1, v{VT+2}")
    k(f"v_mul_u32_u24 v{VT+2}, {4*6144}, v{VT+2}")
    k(f"v_and_b32 v{VT+3}, 7, v{LANE}\nv_lshl_add_u32 v{VT+2}, v{VT+3}, 4, v{VT+2}")
    k("s_lshl_b32 s82, s80, 5\ns_lshl_b32 s83, s81, 1\ns_add_u32 s82, s82, s83\ns_mul_i32 s82, s82, 6144")
    k(f"s_lshl_b32 s83, s{S_HP}, 7\ns_add_u32 s82, s82, s83")
    k(f"v_add_u32 v{V_DMA}, s82, v{VT+2}")
    k(f"v_add_u32 v{V_DMA+1}, 6144, v{V_DMA}\nv_add_u32 v{V_DMA+2}, 4096, v{V_DMA}\nv_add_u32 v{V_DMA+3}, {6144+4096}, v{V_DMA}")
    k(f"v_bfe_u32 v{VT+1}, v{LANE}, 2, 2\nv_mul_u32_u24 v{VT+1}, 1056, v{VT+1}")
    k(f"v_lshrrev_b32 v{VT+2}, 5, v{LANE}\nv_lshl_add_u32 v{VT+1}, v{VT+2}, 9, v{VT+1}")
    k(f"v_bfe_u32 v{VT+2}, v{LANE}, 4, 1\nv_lshl_add_u32 v{VT+1}, v{VT+2}, 7, v{VT+1}")
    k(f"v_and_b32 v{VT+3}, 3, v{LANE}\nv_lshl_add_u32 v{V_RD}, v{VT+3}, 3, v{VT+1}")
    k(f"v_add_u32 v{V_RD+1}, {2*STAGE}, v{V_RD}")
    k(f"s_lshl_b32 s82, s{S_RB1}, 3\ns_lshl_b32 s83, s{S_WAVE}, 1\ns_add_u32 s82, s82, s83\ns_lshl_b32 s82, s82, 15")
    k(f"v_add_u32 v{V_TOK}, s82, v{L16}\nv_add_u32 v{V_TOK+1}, 0x8000, v{V_TOK}")
    k(f"s_mul_i32 s{S_WB}, s80, 4224\ns_mul_i32 s82, s81, 2112\ns_add_u32 s{S_WB}, s{S_WB}, s82")
    c.NB, c.TB, c.KS, c.SPK, c.KT, c.NS, c.R = 12, 2, 1, 2, 16, NS, R
    c.acc = lambda b, t: vr((b * 2 + t) * 4, 4)
    c.tf = lambda slot, ks, t: 96 + (slot * 2 + t) * 4
    c.rd = lambda sl, b, sub, r: (V_RD + sl // 2, (sl % 2) * STAGE + (b // 4) * 8448 + sub * 4224 + r * 256 + (b % 4) * 32)
    c.slot_addr = lambda sl: sl * STAGE
    c.dma = [(V_DMA, 0, 0), (V_DMA + 1, 1056, 0), (V_DMA, 8448, 2048), (V_DMA + 1, 8448 + 1056, 2048), (V_DMA + 2, 16896, 0), (V_DMA + 3, 16896 + 1056, 0)]
    c.v_tok = [V_TOK, V_TOK + 1]
    c.w_stride = 64 * 6144
    c.drop = opt.get("g1_drop", ())
    c.pro_units, c.ramp_rate, c.read_margin = opt.get("g1_pro", 6), opt.get("g1_ramp", 6), opt.get("g1_rm", 6)
    std_sched(c)
    return c

def setup_gemm1s(k, opt):
    c = Sched(); common_gemm(c)
    HS = 8448; STAGE = 2 * HS
    c.V_RD, c.V_DMA, c.V_TOK, c.LANE, c.L16, c.VT = 96, 98, 102, 104, 105, 106
    V_RD, V_DMA, V_TOK, LANE, L16, VT = c.V_RD, c.V_DMA, c.V_TOK, c.LANE, c.L16, 110
    k(f"v_lshlrev_b32 v{L16}, 4, v{LANE}")
    order(c, k, opt, "g1", ["win", [8, 8], 0])
    k(f"s_lshr_b32 s80, s{S_WAVE}, 1\ns_and_b32 s81, s{S_WAVE}, 1")
    k(f"v_lshrrev_b32 v{VT+1}, 3, v{LANE}")
    k(f"v_and_b32 v{VT+2}, 4, v{VT+1}")
    k(f"v_bfe_u32 v{VT+3}, v{VT+1}, 1, 1\nv_or_b32 v{VT+2}, v{VT+2}, v{VT+3}")
    k(f"v_and_b32 v{VT+3}, 1, v{VT+1}\nv_lshl_or_b32 v{VT+2}, v{VT+3}, 1, v{VT+2}")
    k(f"v_mul_u32_u24 v{VT+2}, {4*6144}, v{VT+2}")
    k(f"v_and_b32 v{VT+3}, 7, v{LANE}\nv_lshl_add_u32 v{VT+2}, v{VT+3}, 4, v{VT+2}")
    k("s_lshl_b32 s82, s80, 5\ns_lshl_b32 s83, s81, 1\ns_add_u32 s82, s82, s83\ns_mul_i32 s82, s82, 6144")
    k(f"s_lshl_b32 s83, s{S_HP}, 7\ns_add_u32 s82, s82, s83")
    k(f"v_add_u32 v{V_DMA}, s82, v{VT+2}")
    k(f"v_add_u32 v{V_DMA+1}, 6144, v{V_DMA}\nv_add_u32 v{V_DMA+2}, 2048, v{V_DMA}\nv_add_u32 v{V_DMA+3}, {6144+2048}, v{V_DMA}")
    k(f"v_bfe_u32 v{VT+1}, v{LANE}, 2, 2\nv_mul_u32_u24 v{VT+1}, 1056, v{VT+1}")
    k(f"v_lshrrev_b32 v{VT+2}, 5, v{LANE}\nv_lshl_add_u32 v{VT+1}, v{VT+2}, 9, v{VT+1}")
    k(f"v_bfe_u32 v{VT+2}, v{LANE}, 4, 1\nv_lshl_add_u32 v{VT+1}, v{VT+2}, 7, v{VT+1}")
    k(f"v_and_b32 v{VT+3}, 3, v{LANE}\nv_lshl_add_u32 v{V_RD}, v{VT+3}, 3, v{VT+1}")
    k(f"v_add_u32 v{V_RD+1}, {2*STAGE}, v{V_RD}")
    k(f"s_lshl_b32 s82, s{S_RB1}, 3\ns_lshl_b32 s83, s{S_WAVE}, 1\ns_add_u32 s82, s82, s83\ns_lshl_b32 s82, s82, 15")
    k(f"v_add_u32 v{V_TOK}, s82, v{L16}\nv_add_u32 v{V_TOK+1}, 0x8000, v{V_TOK}")
    k(f"s_mul_i32 s{S_WB}, s80, 4224\ns_mul_i32 s82, s81, 2112\ns_add_u32 s{S_WB}, s{S_WB}, s82")
    c.NB, c.TB, c.KS, c.SPK, c.KT, c.NS, c.R = 8, 2, 1, 2, 16, 4, 32
    c.acc = lambda b, t: vr(32 + (b * 2 + t) * 4, 4)
    c.tf = lambda slot, ks, t: (slot * 2 + t) * 4
    c.rd = lambda sl, b, sub, r: (V_RD + sl // 2, (sl % 2) * STAGE + (b // 4) * HS + sub * 4224 + r * 256 + (b % 4) * 32)
    c.slot_addr = lambda sl: sl * STAGE
    c.dma = [(V_DMA + 2, 0, 0), (V_DMA + 3, 1056, 0), (V_DMA + 2, HS, 2048), (V_DMA + 3, HS + 1056, 2048)]
    c.v_tok = [V_TOK, V_TOK + 1]
    c.w_stride = 64 * 6144
    c.drop = opt.get("g1_drop", ())
    c.pro_units, c.ramp_rate, c.read_margin, c.lookahead = opt.get("g1_pro", 8), opt.get("g1_ramp", 5), 4, opt.get("g1_la", 6)
    c.wreg, c.wbase = vr, 128
    std_sched(c)
    q = Sched(); common_gemm(q)
    q.KT = 16; order(q, k, opt, "g1", ["win", [8, 8], 0]); q.tag = "g1b"; q.stamp_every = opt.get("g1b_se", 0)
    q.s_kw = 70
    QS = [67584 + i * HS for i in range(5)] + [L_R2 + i * HS for i in range(4)] + [i * HS for i in range(7)]
    q.Q1, q.Q2 = V_RD + 1, V_TOK
    def base(kt): return (q.Q1, 67584) if kt < 5 else ((q.Q2, L_R2) if kt < 9 else (V_RD, 0))
    for kt in range(16):
        sw = q.s_kw + kt % 2
        q.stage_units[kt] = [q.pos_items(sw, kt, c.w_stride) + [T(f"s_add_u32 m0, s{S_WB}, {QS[kt]}"), VM(f"buffer_load_dwordx4 v{V_DMA}, {sr(SRD_W,4)}, s{sw} offen lds", ("dma", kt))],
                             [T(f"s_add_u32 m0, s{S_WB}, {QS[kt] + 1056}"), VM(f"buffer_load_dwordx4 v{V_DMA+1}, {sr(SRD_W,4)}, s{sw} offen lds", ("dma", kt))]]
        q.stage_slot[kt] = kt
        va, b0 = base(kt)
        frags = [(va, QS[kt] - b0 + sub * 4224 + b * 32, QS[kt] - b0 + sub * 4224 + 256 + b * 32, [(vr((b * 2 + t) * 4, 4), ((kt * 2 + sub) * 2 + t) * 4) for t in range(2)]) for sub in range(2) for b in range(4)]
        q.steps.append(dict(frags=frags, stages=[kt] if kt != 9 else list(range(9, 16)), toks=[]))
    q.wf = lambda buf, j: (buf * 8 + j) * 4
    q.wreg, q.wbase = vr, 128
    q.pub0 = set(range(9)); q.pro_units = opt.get('q_pro', 2); q.ramp_rate = opt.get('q_ramp', 3); q.read_margin = 4; q.drop = c.drop
    c.q = q
    return c

def merge(a, b, ratio):
    out, b = [], list(b)
    for i, x in enumerate(a):
        out.append(x)
        if b and i % ratio == ratio - 1: out.append(b.pop(0))
    return out + b

def phase_gemm1s(k, c, opt):
    LANE, L16, VT = c.LANE, c.L16, c.VT
    q = c.q
    PHK, VV, SH = 0, 34816, 114688
    p = Txt()
    srd(p, SRD_A, P_WPHI, H * 2048)
    srd(p, SRD_B, P_WS, 2 << 20, WS_KVP)
    srd(p, SRD_C, P_WS, 128 << 10, WS_ZP)
    A_PW, A_VW, A_PR, A_VR, A_WR = 110, 111, 112, 113, 114
    p(f"s_lshr_b32 s80, s{S_WAVE}, 1\ns_and_b32 s81, s{S_WAVE}, 1")
    p(f"v_and_b32 v{VT}, 15, v{LANE}\ns_lshl_b32 s82, s{S_WAVE}, 5\nv_add_u32 v{VT}, s82, v{VT}")
    p(f"v_lshrrev_b32 v{VT+1}, 4, v{LANE}\nv_lshlrev_b32 v{VT+1}, 3, v{VT+1}")
    p(f"v_mul_u32_u24 v{A_PW}, 136, v{VT}\nv_add_u32 v{A_PW}, v{A_PW}, v{VT+1}")
    p(f"v_mul_u32_u24 v{A_VW}, 72, v{VT}\nv_add_u32 v{A_VW}, v{A_VW}, v{VT+1}")
    p(f"v_lshrrev_b32 v{VT}, 2, v{LANE}\nv_and_b32 v{VT+1}, 3, v{LANE}\nv_lshlrev_b32 v{VT+1}, 3, v{VT+1}")
    p(f"s_mul_i32 s82, s80, 17408\ns_lshl_b32 s83, s81, 6\ns_add_u32 s82, s82, s83")
    p(f"v_mul_u32_u24 v{A_PR}, 136, v{VT}\nv_add_u32 v{A_PR}, v{A_PR}, v{VT+1}\nv_add_u32 v{A_PR}, s82, v{A_PR}")
    p(f"s_mul_i32 s82, s80, 9216")
    p(f"v_mul_u32_u24 v{A_VR}, 72, v{VT}\nv_add_u32 v{A_VR}, v{A_VR}, v{VT+1}\nv_add_u32 v{A_VR}, s82, v{A_VR}")
    p(f"v_lshl_add_u32 v{A_WR}, v{VT}, 6, v{VT+1}\nv_add_u32 v{A_WR}, {L_WPH}, v{A_WR}")
    ONES, SEL = 116, 120
    for j in range(4): p(f"v_mov_b32 v{ONES+j}, 0x3f803f80")
    p(f"v_bfe_u32 v{VT}, v{LANE}, 2, 2\nv_lshrrev_b32 v{VT+1}, 4, v{LANE}")
    p(f"v_cmp_eq_u32 vcc, v{VT}, v{VT+1}")
    p(f"v_and_b32 v{VT}, 1, v{LANE}\nv_lshlrev_b32 v{VT}, 4, v{VT}\nv_mov_b32 v{VT+1}, 0x3f80\nv_lshlrev_b32 v{VT+1}, v{VT}, v{VT+1}")
    p(f"v_cndmask_b32 v{VT+1}, 0, v{VT+1}, vcc")
    p(f"v_and_b32 v{VT}, 2, v{LANE}\nv_cmp_eq_u32 vcc, 0, v{VT}")
    for j in (0, 1, 4, 5): p(f"v_mov_b32 v{SEL+j}, 0")
    p(f"v_cndmask_b32 v{SEL+2}, 0, v{VT+1}, vcc\nv_cndmask_b32 v{SEL+3}, v{VT+1}, 0, vcc")
    p(f"s_mov_b32 s94, {LOG2E!r}\ns_mov_b32 s95, {LOG2E!r}")
    p(f"s_lshl_b32 s84, s{S_HP}, 12\ns_lshl_b32 s85, s{S_WAVE}, 10\ns_add_u32 s84, s84, s85\ns_add_u32 s85, s85, {L_WPH}")
    c.pre_loop_txt = p.L
    c.late[4] = ["s_mov_b32 m0, s85", f"buffer_load_dwordx4 v{L16}, {sr(SRD_A,4)}, s84 offen lds"]
    for st_ in opt.get("cp1", [20]): c.late.setdefault(st_, []).extend(code_prefetch_txt(k.name, L16, 254, 80, junk="v31"))
    for st_ in opt.get("cp1b", []): q.late.setdefault(st_, []).extend(code_prefetch_txt(k.name, L16, 254, 80, junk="v252"))
    ts = opt.get("mt_step", None)
    if ts is not None:
        c.late.setdefault(ts, []).extend([f"v_mul_u32_u24 v254, 12288, v{LANE}", f"buffer_load_dword v31, v254, {sr(SRD_D,4)}, s{S_MB} offen"])
        if opt.get("wo_touch", 1):
            c.late[ts].extend([f"s_lshl_b32 s80, s2, 2", f"s_add_u32 s80, s80, s{S_WAVE}", "s_lshl_b32 s80, s80, 11",
                               f"v_and_b32 v254, 15, v{LANE}", "v_lshlrev_b32 v254, 7, v254", "v_add_u32 v254, s80, v254", f"global_load_dword v31, v254, s[{P_WO}:{P_WO+1}]"])
    nq = opt.get("q_in", 10)
    for j in range(nq // 2): c.late.setdefault(32 - nq // 2 + j, []).extend(q.prefetch_txt(2))
    wph_reads = lambda reg, b0: [f"ds_read_b64_tr_b16 {reg(b0+(hh*2+fb)*4+2*r,2)}, v{A_WR} offset:{hh*2048+r*1024+fb*32}" for hh in range(2) for fb in range(2) for r in range(2)]
    c.last_reads = wph_reads(vr, 0)
    c.run(k)
    k.stamp("g1 loop done")
    A = lambda b, t: (b * 2 + t) * 4
    BF, P1, P2, MX, MN, EK = 126, 142, 174, 206, 214, 222
    groups = [(hh, t) for hh in range(2) for t in range(2)]
    def fm_part1(k, seg, ph):
        for g, (hh, t) in enumerate(groups):
            for db in range(2):
                a = A(seg * 4 + hh * 2 + db, t)
                k(f"v_cvt_pk_bf16_f32 v{BF+g*4+db*2}, v{a}, v{a+1}\nv_cvt_pk_bf16_f32 v{BF+g*4+db*2+1}, v{a+2}, v{a+3}")
        k("s_nop 1")
        for g, (hh, t) in enumerate(groups):
            for fb in range(2):
                k(f"{MF} {vr(P1+g*8+fb*4,4)}, {ph(hh*2+fb)}, {vr(BF+g*4,4)}, 0")
    def fm_part2(k):
        for op3, op2, M in (("v_max3_f32", "v_max_f32", MX), ("v_min3_f32", "v_min_f32", MN)):
            for g in range(4):
                b = P1 + g * 8
                k(f"{op3} v{M+2*g}, v{b}, v{b+1}, v{b+2}\n{op3} v{M+2*g}, v{M+2*g}, v{b+3}, v{b+4}\n{op3} v{M+2*g}, v{M+2*g}, v{b+5}, v{b+6}\n{op2} v{M+2*g}, v{M+2*g}, v{b+7}")
        treduce4x2(k, ("v_max_f32", "v_min_f32"), ([MX + 2 * g for g in range(4)], [MN + 2 * g for g in range(4)]))
        for g in range(4):
            k(f"v_mul_f32 v{MX+2*g}, {-LOG2E!r}, v{MX+2*g}\nv_mul_f32 v{MN+2*g}, {LOG2E!r}, v{MN+2*g}")
    def fm_part3(k, E, gs_=range(4)):
        for g in gs_:
            for j in range(4):
                b = g * 8 + 2 * j
                k(f"v_pk_fma_f32 {vr(P2+b,2)}, {vr(P1+b,2)}, s[94:95], {vr(MN+2*g,2)} op_sel_hi:[1,1,0] neg_lo:[1,0,0] neg_hi:[1,0,0]")
                k(f"v_pk_fma_f32 {vr(P1+b,2)}, {vr(P1+b,2)}, s[94:95], {vr(MX+2*g,2)} op_sel_hi:[1,1,0]")
            for j in range(8): k(f"v_exp_f32 v{P1+g*8+j}, v{P1+g*8+j}")
            for j in range(8): k(f"v_exp_f32 v{P2+g*8+j}, v{P2+g*8+j}")
            k("s_nop 0")
            for sg, PP in enumerate((P1, P2)):
                for j in range(4): k(f"v_cvt_pk_bf16_f32 v{E+(g*2+sg)*4+j}, v{PP+g*8+2*j}, v{PP+g*8+2*j+1}")
    mark0 = len(k.L)
    k("s_waitcnt lgkmcnt(0)\ns_nop 7")
    fm_part1(k, 1, lambda i: vr(i * 4, 4))
    k("s_barrier")
    for g, (hh, t) in enumerate(groups):
        for db in range(2):
            a = A(8 + hh * 2 + db, t)
            k(f"v_cvt_pk_bf16_f32 v{a}, v{a}, v{a+1}\nv_cvt_pk_bf16_f32 v{a+1}, v{a+2}, v{a+3}")
            k(f"ds_write_b64 v{A_VW}, {vr(a,2)} offset:{VV + hh*9216 + t*16*72 + db*32}")
    fm_part2(k)
    grp = []
    for j in range(18 - q.pre_dma):
        t_ = q.prefetch_txt(1); grp.append(t_[:-1] + ["s_nop 0", t_[-1]])
    sprinkle(k, mark0, grp, skip=12)
    k.stamp("kp part2")
    fm_part3(k, EK)
    k.stamp("kp part3")
    SM = 32
    k("s_nop 1")
    for i in range(8): k(f"{MF} {vr(SM+4*i,4)}, {vr(ONES,4)}, {vr(EK+4*i,4)}, 0")
    k(f"v_add_u32 v{q.Q1}, 67584, v{c.V_RD}\nv_add_u32 v{q.Q2}, {L_R2}, v{c.V_RD}")
    k("s_nop 5")
    for i in range(8): k(f"v_rcp_f32 v{SM+4*i}, v{SM+4*i}")
    for g, (hh, t) in enumerate(groups):
        for sg, PP in enumerate((P1, P2)):
            for j in range(4):
                k(f"v_pk_mul_f32 {vr(PP+g*8+2*j,2)}, {vr(PP+g*8+2*j,2)}, {vr(SM+(g*2+sg)*4,2)} op_sel_hi:[1,0]")
            for fb in range(2):
                b = PP + g * 8 + fb * 4
                k(f"v_cvt_pk_bf16_f32 v{b}, v{b}, v{b+1}\nv_cvt_pk_bf16_f32 v{b+1}, v{b+2}, v{b+3}")
                k(f"ds_write_b64 v{A_PW}, {vr(b,2)} offset:{PHK + hh*17408 + t*16*136 + sg*64 + fb*32}")
    k.stamp("kp norm")
    k("s_waitcnt lgkmcnt(0)\ns_barrier")
    k.stamp("kp bar")
    FR = 190
    for s_ in range(4):
        for r in range(2):
            for fb in range(2): k(f"ds_read_b64_tr_b16 {vr(FR+s_*16+fb*4+2*r,2)}, v{A_PR} offset:{PHK + (32*s_+16*r)*136 + fb*32}")
            for db in range(2): k(f"ds_read_b64_tr_b16 {vr(FR+s_*16+8+db*4+2*r,2)}, v{A_VR} offset:{VV + (32*s_+16*r)*72 + db*32}")
    k(f"s_lshl_b32 s82, s{S_HP}, 2\ns_add_u32 s82, s82, s{S_WAVE}")
    k("s_lshl_b32 s86, s82, 15")
    k(f"s_lshl_b32 s84, s{S_RB1}, 10\ns_add_u32 s84, s84, s86\ns_add_u32 s85, s84, 16384")
    k("s_lshl_b32 s90, s82, 11")
    k(f"s_lshl_b32 s91, s82, {FS+4}\ns_add_u32 s91, s91, {F_KV}\ns_lshl_b32 s92, s{S_RB1}, {FS}\ns_add_u32 s92, s92, s91")
    k(f"v_and_b32 v{VT}, 15, v{LANE}\nv_cmp_eq_u32 vcc, s{S_RB1}, v{VT}")
    KV, ZZ = 64, 80
    for s_ in range(4):
        k(f"s_waitcnt lgkmcnt({min(15, 24 - 8*s_)})" if s_ < 3 else "s_waitcnt vmcnt(0) lgkmcnt(0)\ns_barrier")
        for fb in range(2):
            for db in range(2):
                d = vr(KV + (db * 2 + fb) * 4, 4)
                k(f"{MF} {d}, {vr(FR+s_*16+fb*4,4)}, {vr(FR+s_*16+8+db*4,4)}, {'0' if s_ == 0 else d}")
            d = vr(ZZ + fb * 4, 4)
            k(f"{MF} {d}, {vr(FR+s_*16+fb*4,4)}, {vr(ONES,4)}, {'0' if s_ == 0 else d}")
    k(f"v_lshlrev_b32 v{VT}, {FS}, v{VT}\nv_mov_b32 v{VT+1}, 1\nv_mov_b32 v{VT+2}, 0")
    k("s_nop 5")
    for db in range(2):
        for j in range(4): k(f"v_cvt_pk_bf16_f32 v{88+db*4+j}, v{KV+db*8+2*j}, v{KV+db*8+2*j+1}")
    k(f"buffer_store_dwordx4 {vr(88,4)}, v{L16}, {sr(SRD_B,4)}, s84 offen sc1")
    k(f"buffer_store_dwordx4 {vr(92,4)}, v{L16}, {sr(SRD_B,4)}, s85 offen sc1")
    k("s_and_saveexec_b64 s[96:97], vcc")
    k(f"buffer_store_dwordx4 {vr(ZZ,4)}, v{L16}, {sr(SRD_C,4)}, s90 offen sc1")
    k(f"buffer_store_dwordx4 {vr(ZZ+4,4)}, v{L16}, {sr(SRD_C,4)}, s90 offen offset:1024 sc1")
    k("s_mov_b64 exec, s[96:97]")
    k.stamp("kv stored")
    KV, ZZ, MW, MC = 72, 88, 32, 64
    q.late[opt.get("kv_ps", 1)] = [WVM([("pre", 0)]), f"buffer_store_dword v{VT+1}, v{VT+2}, {sr(SRD_F,4)}, s92 offen sc1"]
    gs = opt.get("kv_gs", 9)
    ld = f"buffer_load_dword v253, v{VT}, {sr(SRD_F,4)}, s91 offen sc1"
    m = Txt(); m.label = k.label
    okl = k.label("gok")
    m(f"v_cmp_eq_u32 vcc, 0, v253\ns_cmp_eq_u64 vcc, 0\ns_cbranch_scc1 {okl}")
    spin(m, [ld], [253], 0)
    m(f"{okl}:")
    q.late[gs - 2] = [VM(ld, ("kvf", 0))]
    gl = [f"buffer_load_dwordx4 {vr(ZZ,4)}, v{L16}, {sr(SRD_C,4)}, s90 offen sc1", f"buffer_load_dwordx4 {vr(ZZ+4,4)}, v{L16}, {sr(SRD_C,4)}, s90 offen offset:1024 sc1"]
    for i in range(32):
        if i % 4 == 0 and i: gl.append("s_add_u32 s86, s86, 4096")
        gl.append(f"buffer_load_dwordx4 {ar(4*i,4)}, v{L16}, {sr(SRD_B,4)}, s86 offen offset:{(i%4)*1024} sc1")
    n3 = -(-len(gl) // 3)
    q.late[gs] = [WVM([("kvf", 0)]), T("\n".join(m.L))] + gl[:n3]
    q.late[gs + 1] = gl[n3:2*n3]; q.late[gs + 2] = gl[2*n3:]
    t2 = Txt()
    g2 = setup_gemm24(t2, 2, opt, (110, 111, 112, LANE, L16, 98))
    q.late[5] = t2.L[:len(t2.L)//2]; q.late[6] = t2.L[len(t2.L)//2:] + [f"global_load_ushort v{MC+i}, v109, s[{P_C}:{P_C+1}] offset:{i*16}" for i in range(8)]
    assert gs - 2 > 6
    younger = []
    younger += g2.prefetch_txt(8)
    mbl = []
    for i in range(8): mbl += [f"buffer_load_dwordx4 {vr(MW+4*i,4)}, v115, {sr(SRD_D,4)}, s{S_MB} offen", f"s_add_u32 s{S_MB}, s{S_MB}, {8*12288}"]
    mpos = opt.get("mpos", "tail")
    if mpos == "tail": younger += mbl
    ny = sum(1 for x in younger if is_vm(x))
    rest = list(range(gs + 3, 16)); per = -(-len(younger) // len(rest))
    for j, st_ in enumerate(rest): q.late[st_] = younger[j*per:(j+1)*per]
    A_PH = 128
    q.last_reads = wph_reads(ar, A_PH)
    q.run(k)
    k.stamp("g1b done")
    srd(k, SRD_T, P_WS, S * D * 2, WS_O)
    k("s_waitcnt lgkmcnt(0)\ns_nop 3")
    qa = Txt(); fm_part1(qa, 0, lambda i: ar(A_PH + i * 4, 4))
    qa(f"s_waitcnt vmcnt({min(63, ny + 32)})")
    for sh in (8, 4, 2, 1):
        for j in range(8): qa(f"v_add_f32_dpp v{ZZ+j}, v{ZZ+j}, v{ZZ+j} row_ror:{sh} row_mask:0xf bank_mask:0xf")
    for x in qa.L: k(x)
    k.stamp("qp a")
    hs = g2.hs
    qb = Txt(); fm_part2(qb); fm_part3(qb, EK, range(2) if hs else range(4))
    red = []
    for i in range(32):
        db, pp = divmod(i, 16)
        for fb in range(2):
            d = vr(KV + (db * 2 + fb) * 4, 4)
            red.append((f"s_waitcnt vmcnt({ny + 28 - i})\n" if (i % 4 == 0 and fb == 0) else "") + f"{MF} {d}, {vr(SEL + (2 if fb == 0 else 0), 4)}, {ar(4*i,4)}, {'0' if pp == 0 else d}")
    cut = opt.get("q_cut", 150) if not hs else len(qb.L)
    for x in merge(qb.L[:cut], red, 2): k(x)
    if hs:
        k("s_nop 3")
        qb = Txt(); fm_part3(qb, EK, [2]); cut = 0
    k.stamp("qp merged")
    k(f"s_mul_i32 s82, s{S_WAVE}, 3072\ns_add_u32 s82, s82, {SH}")
    k(f"v_add_u32 v{VT+1}, s82, v{L16}\nv_add_u32 v{VT+2}, {SH}, v{L16}")
    k(f"v_and_b32 v{VT}, 1, v{LANE}\nv_cmp_eq_u32 vcc, 0, v{VT}")
    k("s_nop 4")
    for j in range(12): k(f"v_cvt_pk_bf16_f32 v{KV+j}, v{KV+2*j}, v{KV+2*j+1}")
    for j in range(4): k(f"v_cndmask_b32 v{KV+8+j}, v{ONES}, v{KV+8+j}, vcc")
    for j in range(3): k(f"ds_write_b128 v{VT+1}, {vr(KV+4*j,4)} offset:{j*1024}")
    for x in (merge(qb.L[cut:], mbl, 2) if mpos == "q" else qb.L[cut:]): k(x)
    k.stamp("qp rest")
    k("s_waitcnt lgkmcnt(0)\ns_barrier")
    k.stamp("qp bar")
    for i in range(12): k(f"ds_read_b128 {ar(4*i,4)}, v{VT+2} offset:{i*1024}")
    k(f"s_lshl_b32 s82, s{S_RB1}, 3\ns_lshl_b32 s83, s{S_WAVE}, 1\ns_add_u32 s82, s82, s83\ns_lshl_b32 s82, s82, 15")
    k(f"s_lshl_b32 s83, s{S_HP}, 11\ns_add_u32 s82, s82, s83\ns_add_u32 s83, s82, 0x8000")
    k(f"s_lshl_b32 s84, s{S_RB1}, 2\ns_add_u32 s84, s84, s{S_WAVE}\ns_lshl_b32 s84, s84, {FS+4}\ns_lshl_b32 s85, s{S_HP}, {FS}\ns_add_u32 s84, s84, s85\ns_add_u32 s84, s84, {F_O}")
    k("s_waitcnt lgkmcnt(0)")
    NB_ = 126
    def nbase(g): return NB_ + g * 24 if (not hs or g >= 2) else None
    def oregs(g):
        if hs and g < 2: return (0, 12) if g == 0 else (72, 84)
        return (NB_ + g * 24, NB_ + g * 24 + 12)
    def o_mfma(gl):
        for g in gl:
            hh, t = groups[g]
            for sg in range(2):
                for j in range(3):
                    k(f"{MF} {vr(oregs(g)[sg]+4*j,4)}, {ar(((hh*2+sg)*3+j)*4,4)}, {vr(EK+(g*2+sg)*4,4)}, 0")
    def o_fin(gl):
        for g in gl:
            hh, t = groups[g]
            n1, n2 = oregs(g)
            D1, S1, D2, S2 = n1 + 8, n1 + 9, n2 + 8, n2 + 9
            k(f"v_mul_f32 v{n1+10}, v{S1}, v{S2}")
            k(f"v_mul_f32 v{n1+10}, 0x358637bd, v{n1+10}")
            k(f"v_fmac_f32 v{n1+10}, v{D1}, v{S2}\nv_fmac_f32 v{n1+10}, v{D2}, v{S1}")
            k(f"v_rcp_f32 v{n1+10}, v{n1+10}")
            k("s_nop 0")
            k(f"v_mul_f32 v{D1}, v{S2}, v{n1+10}\nv_mul_f32 v{D2}, v{S1}, v{n1+10}")
            for j in range(4): k(f"v_pk_mul_f32 {vr(n1+2*j,2)}, {vr(n1+2*j,2)}, {vr(D1,2)} op_sel_hi:[1,0]")
            for j in range(4): k(f"v_pk_fma_f32 {vr(n1+2*j,2)}, {vr(n2+2*j,2)}, {vr(D2,2)}, {vr(n1+2*j,2)} op_sel_hi:[1,0,1]")
            for j in range(4): k(f"v_cvt_pk_bf16_f32 v{n2+j}, v{n1+2*j}, v{n1+2*j+1}")
            k(f"buffer_store_dwordx4 {vr(n2,4)}, v{L16}, {sr(SRD_T,4)}, s{82+t} offen offset:{hh*1024} sc1")
    if hs:
        o_mfma([0, 1]); k("s_nop 7"); o_fin([0, 1])
        mk0 = len(k.L)
        fm_part3(k, EK, [3])
        k("s_nop 1")
        o_mfma([2, 3]); k("s_nop 7")
        publish(k, 84, VT + 1, mk0)
        k(f"s_add_u32 s95, s84, {F_O2 - F_O}")
        o_fin([2, 3])
    else:
        o_mfma(range(4)); k("s_nop 7"); o_fin(range(4))
    k.stamp("o stored")
    mko = len(k.L)
    g2.V_X = 178
    srd(k, SRD_A, P_X, S * D * 2)
    V_XA = 100
    k(f"v_lshrrev_b32 v{VT+1}, 4, v{LANE}")
    k(f"v_and_b32 v{VT+2}, 15, v{LANE}\nv_lshlrev_b32 v{VT+2}, 11, v{VT+2}\nv_lshl_add_u32 v{V_XA}, v{VT+1}, 3, v{VT+2}")
    k(f"s_lshl_b32 s82, s{S_RB2}, 3\ns_lshl_b32 s83, s{S_WAVE}, 1\ns_add_u32 s82, s82, s83\ns_lshl_b32 s82, s82, 15\ns_lshl_b32 s83, s{S_NT}, 7\ns_add_u32 s82, s82, s83\ns_add_u32 s83, s82, 32768")
    for t in range(2):
        for b in range(4):
            k(f"buffer_load_dwordx2 {vr(g2.V_X+(t*4+b)*2,2)}, v{V_XA}, {sr(SRD_A,4)}, s{82+t} offen offset:{b*32}")
    k.g3 = setup_gemm3_early(k, opt, LANE, 20)
    if not hs: publish(k, 84, VT + 1, mko)
    k.stamp("o published")
    mark1 = len(k.L)
    CU, AU, TT = 0, 16, 24
    for i in range(8): k(f"v_mov_b32 v{CU+2*i}, v{MC+i}")
    silu_block(k, [CU + 2 * i for i in range(8)])
    for i in range(8):
        for d in range(4):
            k(f"v_lshlrev_b32 v{TT}, 16, v{MW+4*i+d}\nv_and_b32 v{TT+1}, 0xffff0000, v{MW+4*i+d}")
            if i == 0: k(f"v_pk_mul_f32 {vr(AU+2*d,2)}, {vr(TT,2)}, {vr(CU,2)} op_sel_hi:[1,0]")
            else: k(f"v_pk_fma_f32 {vr(AU+2*d,2)}, {vr(TT,2)}, {vr(CU+2*i,2)}, {vr(AU+2*d,2)} op_sel_hi:[1,0,1]")
    k("s_nop 1")
    for j in range(4): k(f"v_permlane32_swap_b32 v{AU+j}, v{AU+j+4}")
    k("s_nop 1")
    for j in range(4): k(f"v_add_f32 v{AU+j}, v{AU+j}, v{AU+j+4}")
    k("s_nop 1")
    for j in range(2): k(f"v_permlane16_swap_b32 v{AU+j}, v{AU+j+2}")
    k("s_nop 1")
    for j in range(2): k(f"v_add_f32 v{AU+j}, v{AU+j}, v{AU+j+2}")
    k("s_nop 1")
    for j in range(2): k(f"v_add_f32_dpp v{AU+j}, v{AU+j}, v{AU+j} row_ror:8 row_mask:0xf bank_mask:0xf")
    sprinkle(k, mark1, g3_early_units(k.g3, opt.get("g3_e2", 7), 254), skip=0)
    k(f"v_and_b32 v{TT}, 7, v{LANE}\nv_lshlrev_b32 v{TT}, 5, v{TT}\nv_lshrrev_b32 v{TT+1}, 5, v{LANE}\nv_lshl_add_u32 v{TT}, v{TT+1}, 4, v{TT}")
    k(f"v_bfe_u32 v{TT+1}, v{LANE}, 4, 1\nv_lshl_add_u32 v{TT}, v{TT+1}, 3, v{TT}")
    srd(k, SRD_D, P_WS, MP_BYTES, WS_MODP)
    k(f"v_or_b32 v{AU}, 1, v{AU}\nv_or_b32 v{AU+1}, 1, v{AU+1}")
    k(f"buffer_store_dwordx2 {vr(AU,2)}, v{TT}, {sr(SRD_D,4)}, s{S_MO} offen sc1")
    return g2

A_UT = 176
def silu_block(k, regs):
    for v in regs: k(f"v_lshlrev_b32 v{v}, 16, v{v}\nv_mul_f32 v{v+1}, {-LOG2E!r}, v{v}")
    for v in regs: k(f"v_exp_f32 v{v+1}, v{v+1}")
    k("s_nop 0")
    for v in regs: k(f"v_add_f32 v{v+1}, 1.0, v{v+1}")
    for v in regs: k(f"v_rcp_f32 v{v+1}, v{v+1}")
    k("s_nop 0")
    for v in regs:
        k(f"v_mul_f32 v{v}, v{v}, v{v+1}"); round_bf16(k, v)

def modb_loads(s_off, v_w, v_c):
    out = []
    for i in range(8):
        out.append([f"buffer_load_dwordx4 {ar(A_UT+4*i,4)}, v{v_w}, {sr(SRD_D,4)}, s{s_off} offen", f"s_add_u32 s{s_off}, s{s_off}, {8*12288}"])
    return out

def red32(k, x, t):
    red8(k, x)
    k(f"s_nop 1\nv_add_f32_dpp v{x}, v{x}, v{x} row_mirror row_mask:0xf bank_mask:0xf")
    k(f"v_mov_b32 v{t}, v{x}\ns_nop 1\nv_permlane16_swap_b32 v{x}, v{t}\ns_nop 1\nv_add_f32 v{x}, v{x}, v{t}")

def ids(k):
    k("v_lshrrev_b32 v1, 6, v0")
    k(f"s_and_b32 s{S_XCD}, s2, 7\ns_lshr_b32 s{S_IDX}, s2, 3")
    k(f"v_readfirstlane_b32 s{S_WAVE}, v1")
    k(f"s_bfe_u32 s{S_RB1}, s{S_XCD}, 0x10001\ns_lshl_b32 s{S_RB1}, s{S_RB1}, 3\ns_lshr_b32 s80, s{S_IDX}, 2\ns_add_u32 s{S_RB1}, s{S_RB1}, s80")
    k(f"s_lshr_b32 s{S_HP}, s{S_XCD}, 2\ns_lshl_b32 s{S_HP}, s{S_HP}, 2\ns_and_b32 s80, s{S_IDX}, 3\ns_add_u32 s{S_HP}, s{S_HP}, s80\ns_lshl_b32 s{S_HP}, s{S_HP}, 1\ns_and_b32 s80, s{S_XCD}, 1\ns_add_u32 s{S_HP}, s{S_HP}, s80")

def build_k0(instr=False, opt=None, name="mod_kernel", mega="mega_kernel"):
    opt = opt or {}
    k = Kernel(name, 256, 256, 4096, vgpr=128, sgpr=102)
    k.instr = instr; k.s_wave = S_WAVE
    stamp(k, 0)
    end = k.label("end")
    k(f"s_cmp_ge_u32 s2, 256\ns_cbranch_scc1 {end}")
    k("s_load_dwordx4 s[12:15], s[0:1], 64")
    k("s_load_dwordx8 s[4:11], s[0:1], 0")
    k("s_load_dwordx2 s[28:29], s[0:1], 96")
    ids(k)
    LANE, T, V_W = 104, 48, 105
    WA, CA, XR, XF, A0, SU = 64, 80, 84, 0, 32, 100
    k(f"v_and_b32 v{LANE}, 63, v0")
    k(f"v_lshrrev_b32 v{T+1}, 3, v{LANE}\nv_and_b32 v{T+2}, 7, v{LANE}")
    k(f"v_mul_u32_u24 v{V_W}, 12288, v{T+1}\nv_lshl_add_u32 v{V_W}, v{T+2}, 4, v{V_W}")
    k(f"s_lshl_b32 s64, s{S_RB1}, 6\ns_lshl_b32 s65, s{S_WAVE}, 4\ns_add_u32 s64, s64, s65")
    k(f"v_add_u32 v{T+3}, s64, v{T+1}\nv_lshlrev_b32 v{T+3}, 1, v{T+3}")
    k(f"s_mul_i32 s67, s64, 12288\ns_lshl_b32 s66, s{S_HP}, 7\ns_add_u32 s67, s67, s66\ns_add_u32 s68, s67, {8*12288}")
    k(f"v_lshrrev_b32 v{T+4}, 5, v{LANE}\nv_lshlrev_b32 v{T+4}, 11, v{T+4}\nv_and_b32 v{T+5}, 31, v{LANE}\nv_lshl_add_u32 v{T+4}, v{T+5}, 4, v{T+4}")
    k(f"s_lshl_b32 s69, s{S_RB1}, 4\ns_add_u32 s69, s69, s{S_HP}")
    k(f"s_lshl_b32 s70, s69, 14\ns_lshl_b32 s71, s{S_WAVE}, 12\ns_add_u32 s70, s70, s71")
    k("s_waitcnt lgkmcnt(0)")
    srd(k, SRD_D, 14, D * 6 * D * 2)
    srd(k, SRD_A, P_X, S * D * 2)
    for i in range(2): k(f"global_load_ushort v{CA+2*i}, v{T+3}, s[12:13] offset:{i*16}")
    for i in range(2):
        for v in range(2): k(f"buffer_load_dwordx4 {vr(WA+(i*2+v)*4,4)}, v{V_W}, {sr(SRD_D,4)}, s{67+i} offen offset:{v*2048}")
    for i in range(4): k(f"buffer_load_dwordx4 {vr(XR+4*i,4)}, v{T+4}, {sr(SRD_A,4)}, s70 offen offset:{i*512}")
    stamp(k, 1)
    lab = k.label("pc")
    k(f"s_getpc_b64 s[60:61]\n{lab}:")
    k(f"s_add_u32 s60, s60, {mega}-{lab}\ns_addc_u32 s61, s61, 0")
    k(f"v_lshlrev_b32 v{T+6}, 4, v{LANE}")
    for x in code_prefetch_txt(mega, T + 6, T + 7, 62, s_pc=60, junk="v110"): k(x)
    srd(k, SRD_B, P_WS, MP_BYTES, WS_MODP)
    srd(k, SRD_F, P_WS, FLAG_BYTES, WS_FLAG)
    srd(k, SRD_C, P_WS, S * 128, WS_STAT)
    k(f"v_mov_b32 v{T+8}, 0\nv_lshlrev_b32 v{T+9}, 2, v0\ns_lshl_b32 s62, s2, 10\ns_add_u32 s63, s62, {MP_B}")
    k(f"v_lshlrev_b32 v{T+10}, {FS}, v0\ns_lshl_b32 s66, s2, {FS+8}")
    k(f"buffer_store_dword v{T+8}, v{T+10}, {sr(SRD_F,4)}, s66 offen")
    k(f"buffer_store_dword v{T+8}, v{T+9}, {sr(SRD_C,4)}, s62 offen")
    k(f"buffer_store_dword v{T+8}, v{T+9}, {sr(SRD_B,4)}, s63 offen")
    young = 4
    k(f"s_lshl_b32 s62, s2, 2\ns_add_u32 s62, s62, s{S_WAVE}")
    for ptr, per, tag in ((P_WQKV, 6, "t_wq"), (P_WO, 2, "t_wo"), (14, 12, "t_wm")):
        if not opt.get(tag, 1): continue
        k(f"s_mul_i32 s63, s62, {per*1024}\ns_add_u32 s63, s63, 384")
        k(f"v_min_u32 v{T+14}, {per-1}, v{LANE}\nv_lshlrev_b32 v{T+14}, 10, v{T+14}\nv_add_u32 v{T+14}, s63, v{T+14}")
        k(f"global_load_dword v110, v{T+14}, s[{ptr}:{ptr+1}]")
        young += 1
    k(f"s_waitcnt vmcnt({young + 8})")
    silu_block(k, [CA, CA + 2])
    k(f"s_waitcnt vmcnt({young + 4})")
    for i in range(2):
        for v in range(2):
            for d in range(4):
                w_ = WA + (i * 2 + v) * 4 + d
                k(f"v_lshlrev_b32 v{T+10}, 16, v{w_}\nv_and_b32 v{T+11}, 0xffff0000, v{w_}")
                if i == 0: k(f"v_pk_mul_f32 {vr(A0+v*8+2*d,2)}, {vr(T+10,2)}, {vr(CA,2)} op_sel_hi:[1,0]")
                else: k(f"v_pk_fma_f32 {vr(A0+v*8+2*d,2)}, {vr(T+10,2)}, {vr(CA+2,2)}, {vr(A0+v*8+2*d,2)} op_sel_hi:[1,0,1]")
    k("s_nop 1")
    for j in range(8): k(f"v_permlane32_swap_b32 v{A0+j}, v{A0+8+j}")
    k("s_nop 1")
    for j in range(8): k(f"v_add_f32 v{A0+j}, v{A0+j}, v{A0+8+j}")
    k("s_nop 1")
    for j in range(4): k(f"v_permlane16_swap_b32 v{A0+j}, v{A0+4+j}")
    k("s_nop 1")
    for j in range(4): k(f"v_add_f32 v{A0+j}, v{A0+j}, v{A0+4+j}")
    k("s_nop 1")
    for j in range(4): k(f"v_add_f32_dpp v{A0+j}, v{A0+j}, v{A0+j} row_ror:8 row_mask:0xf bank_mask:0xf")
    k(f"v_lshrrev_b32 v{T+12}, 5, v{LANE}\nv_lshlrev_b32 v{T+13}, 8, v{T+12}\nv_lshl_add_u32 v{T+13}, v{T+2}, 5, v{T+13}")
    k(f"v_bfe_u32 v{T+10}, v{LANE}, 4, 1\nv_lshl_add_u32 v{T+13}, v{T+10}, 4, v{T+13}\ns_lshl_b32 s62, s{S_WAVE}, 9\nv_add_u32 v{T+13}, s62, v{T+13}")
    k(f"ds_write_b128 v{T+13}, {vr(A0,4)}")
    k("s_waitcnt lgkmcnt(0)\ns_barrier")
    nw0 = k.label("notw0")
    k(f"s_cmp_lg_u32 s{S_WAVE}, 0\ns_cbranch_scc1 {nw0}")
    k(f"v_lshlrev_b32 v{T+13}, 3, v{LANE}")
    for w in range(4): k(f"ds_read_b64 {vr(A0+2*w,2)}, v{T+13} offset:{w*512}")
    k(f"s_lshl_b32 s62, s{S_HP}, 13\ns_lshl_b32 s63, s{S_RB1}, 9\ns_add_u32 s63, s63, s62")
    k("s_waitcnt lgkmcnt(0)")
    k(f"v_pk_add_f32 {vr(A0,2)}, {vr(A0,2)}, {vr(A0+2,2)}\nv_pk_add_f32 {vr(A0+4,2)}, {vr(A0+4,2)}, {vr(A0+6,2)}\nv_pk_add_f32 {vr(A0,2)}, {vr(A0,2)}, {vr(A0+4,2)}")
    k(f"buffer_store_dwordx2 {vr(A0,2)}, v{T+13}, {sr(SRD_B,4)}, s63 offen")
    k(f"{nw0}:")
    stamp(k, 2)
    k(f"s_waitcnt vmcnt({young})")
    for d in range(16): k(f"v_lshlrev_b32 v{XF+2*d}, 16, v{XR+d}\nv_and_b32 v{XF+2*d+1}, 0xffff0000, v{XR+d}")
    k(f"v_pk_add_f32 {vr(SU,2)}, {vr(XF,2)}, {vr(XF+2,2)}")
    for d in range(2, 16): k(f"v_pk_add_f32 {vr(SU,2)}, {vr(SU,2)}, {vr(XF+2*d,2)}")
    k(f"v_add_f32 v{SU}, v{SU}, v{SU+1}")
    red32(k, SU, SU + 1)
    k(f"v_mul_f32 v{SU+2}, {-1.0/1024!r}, v{SU}")
    k(f"v_mov_b32 v{SU}, 0\nv_mov_b32 v{SU+1}, 0")
    for d in range(16):
        k(f"v_pk_add_f32 {vr(XF+2*d,2)}, {vr(XF+2*d,2)}, {vr(SU+2,2)} op_sel_hi:[1,0]")
        k(f"v_pk_fma_f32 {vr(SU,2)}, {vr(XF+2*d,2)}, {vr(XF+2*d,2)}, {vr(SU,2)}")
    k(f"v_add_f32 v{SU}, v{SU}, v{SU+1}")
    red32(k, SU, SU + 1)
    k(f"v_mov_b32 v{SU+1}, 0x3727c5ac\nv_fmac_f32 v{SU+1}, {1.0/1024!r}, v{SU}\nv_rsq_f32 v{SU+3}, v{SU+1}")
    k(f"s_lshl_b32 s62, s69, 6\ns_lshl_b32 s63, s{S_WAVE}, 4\ns_add_u32 s62, s62, s63\ns_add_u32 s62, s62, {MP_RS}\nv_lshlrev_b32 v{T+12}, 3, v{T+12}")
    k(f"buffer_store_dwordx2 {vr(SU+2,2)}, v{T+12}, {sr(SRD_B,4)}, s62 offen")
    stamp(k, 3)
    if instr: k("s_waitcnt vmcnt(0)")
    stamp(k, 4)
    stamp_flush(k, 28, 5, 4, slot=1)
    k(f"{end}:\ns_endpgm")
    return k

def phase_front_fused(k, opt, name):
    LANE, L16 = 104, 105
    T = 48
    V_W, V_C = 115, 109
    WA, CA, XR, XT_, XF, A0, SU, G, M, RS = 64, 80, 128, 144, 0, 200, 216, 160, 32, 84
    HL = 2 * 25344
    k(f"v_lshrrev_b32 v{T+1}, 3, v{LANE}\nv_and_b32 v{T+2}, 7, v{LANE}")
    k(f"v_mul_u32_u24 v{V_W}, 12288, v{T+1}\nv_lshl_add_u32 v{V_W}, v{T+2}, 4, v{V_W}")
    k(f"s_lshl_b32 s84, s{S_RB1}, 6")
    k(f"v_add_u32 v{V_C}, s84, v{T+1}\nv_lshlrev_b32 v{V_C}, 1, v{V_C}")
    k(f"s_lshl_b32 s85, s{S_WAVE}, 5\nv_add_u32 v{T+3}, s85, v{V_C}")
    k(f"s_mul_i32 s86, s84, 12288\ns_lshl_b32 s87, s{S_HP}, 7\ns_add_u32 s86, s86, s87")
    k(f"s_mul_i32 s87, s{S_WAVE}, {16*12288}\ns_add_u32 s87, s87, s86\ns_add_u32 s88, s87, {8*12288}")
    k(f"v_lshrrev_b32 v{T+4}, 5, v{LANE}\nv_lshlrev_b32 v{T+4}, 11, v{T+4}\nv_and_b32 v{T+5}, 31, v{LANE}\nv_lshl_add_u32 v{T+4}, v{T+5}, 4, v{T+4}")
    k(f"s_lshl_b32 s89, s{S_RB1}, 4\ns_add_u32 s89, s89, s{S_HP}")
    k(f"s_lshl_b32 s90, s89, 14\ns_lshl_b32 s91, s{S_WAVE}, 12\ns_add_u32 s90, s90, s91")
    k(f"v_mov_b32 v{T+8}, 0\nv_mov_b32 v{T+9}, 0\nv_mov_b32 v{T+10}, 0\nv_mov_b32 v{T+11}, 0\nv_mov_b32 v{T+12}, 1")
    k(f"v_lshlrev_b32 v{T+7}, {FS}, v{LANE}")
    k(f"s_lshl_b32 s93, s2, {FS+6}\ns_add_u32 s93, s93, {F_S0}\ns_cmp_lt_u32 s2, 4\ns_cselect_b32 s93, s93, 0x7ff00000\ns_cmp_eq_u32 s{S_WAVE}, 3\ns_cselect_b32 s93, s93, 0x7ff00000")
    k("s_waitcnt lgkmcnt(0)")
    srd(k, SRD_F, P_WS, FLAG_BYTES, WS_FLAG)
    k(f"buffer_store_dword v{T+8}, v{T+7}, {sr(SRD_F,4)}, s93 offen sc1")
    k(f"s_mov_b32 s{SRD_T}, s{P_DBG}\ns_mov_b32 s{SRD_T+1}, s{P_DBG+1}\ns_mov_b32 s{SRD_T+2}, 256\ns_mov_b32 s{SRD_T+3}, 0x20000")
    k("s_mov_b32 s95, s93")
    srd(k, SRD_D, P_WMOD, D * 6 * D * 2)
    srd(k, SRD_A, P_X, S * D * 2)
    for i in range(2): k(f"global_load_ushort v{CA+2*i}, v{T+3}, s[{P_C}:{P_C+1}] offset:{i*16}")
    for i in range(2):
        for v in range(2): k(f"buffer_load_dwordx4 {vr(WA+(i*2+v)*4,4)}, v{V_W}, {sr(SRD_D,4)}, s{87+i} offen offset:{v*2048}")
    for i in range(4): k(f"buffer_load_dwordx4 {vr(XR+4*i,4)}, v{T+4}, {sr(SRD_A,4)}, s90 offen offset:{i*512}")
    k.stamp("loads issued")
    srd(k, SRD_B, P_WS, MP_BYTES, WS_MODP)
    srd(k, SRD_C, P_WS, S * 128, WS_STAT)
    w3, jn = k.label("w3"), k.label("join")
    k(f"s_cmp_eq_u32 s{S_WAVE}, 3\ns_cbranch_scc1 {w3}")
    k(f"s_lshl_b32 s92, s2, 1\ns_add_u32 s92, s92, s{S_WAVE}\ns_sub_u32 s92, s92, 1")
    nt_ = k.label("notouch")
    k("s_mov_b32 s93, 0x7ff00000")
    for i in range(2): k(f"buffer_load_dword a233, v{V_W}, {sr(SRD_D,4)}, s93 offen")
    k(f"s_cmp_eq_u32 s{S_WAVE}, 0\ns_cbranch_scc1 {nt_}")
    for ptr, per in ((P_WQKV, 12), (P_WO, 4), (P_WMOD, 24)):
        k(f"s_mul_i32 s93, s92, {per}\nv_min_u32 v{T+14}, {per-1}, v{LANE}\nv_add_u32 v{T+14}, s93, v{T+14}")
        k(f"v_lshlrev_b32 v{T+14}, 10, v{T+14}")
        k(f"global_load_dword a232, v{T+14}, s[{ptr}:{ptr+1}] offset:384")
    k(f"s_branch {jn}")
    k(f"{nt_}:")
    for i in range(3): k(f"buffer_load_dword a233, v{V_W}, {sr(SRD_D,4)}, s93 offen")
    k(f"s_branch {jn}")
    k(f"{w3}:")
    nb = k.label("nboot")
    k(f"s_cmp_eq_u32 s95, 0x7ff00000\ns_cbranch_scc1 {nb}")
    k("s_lshl_b32 s93, s2, 2\ns_waitcnt vmcnt(10)")
    k(f"buffer_store_dword v{T+12}, v{T+8}, {sr(SRD_T,4)}, s93 offen sc1")
    k(f"{nb}:")
    k(f"v_and_b32 v{T+14}, 3, v{LANE}\nv_lshlrev_b32 v{T+14}, 4, v{T+14}")
    k(f"s_lshl_b32 s93, s{S_RB1}, 6\ns_add_u32 s93, s93, s{S_HP}\nv_add_u32 v{T+15}, s93, v{T+14}")
    k(f"s_lshl_b32 s93, s{S_HP}, 6\ns_add_u32 s93, s93, s{S_RB1}\ns_add_u32 s93, s93, 1024\nv_add_u32 v{T+14}, s93, v{T+14}")
    k(f"v_cmp_gt_u32 vcc, 4, v{LANE}\ns_mul_i32 s93, s2, 24\ns_add_u32 s93, s93, 2040")
    k(f"v_cndmask_b32 v{T+14}, v{T+14}, v{T+15}, vcc\nv_add_u32 v{T+15}, s93, v{LANE}")
    k(f"v_cmp_gt_u32 vcc, 8, v{LANE}\ns_nop 1\nv_cndmask_b32 v{T+14}, v{T+15}, v{T+14}, vcc")
    k(f"v_cmp_gt_u32 vcc, 32, v{LANE}\nv_mov_b32 v{T+15}, 0x100000\ns_nop 0\nv_cndmask_b32 v{T+14}, v{T+15}, v{T+14}, vcc")
    k(f"v_lshlrev_b32 v{T+14}, {FS}, v{T+14}")
    k(f"buffer_store_dword v{T+8}, v{T+14}, {sr(SRD_F,4)}, 0 offen sc1")
    k("s_mov_b32 s93, 0x7ff00000")
    for i in range(2): k(f"buffer_load_dword a233, v{V_W}, {sr(SRD_D,4)}, s93 offen")
    k("s_lshl_b32 s93, s2, 10")
    k(f"buffer_store_dwordx4 {vr(T+8,4)}, v{L16}, {sr(SRD_C,4)}, s93 offen sc1")
    k(f"s_add_u32 s93, s93, {MP_B}")
    k(f"buffer_store_dwordx4 {vr(T+8,4)}, v{L16}, {sr(SRD_B,4)}, s93 offen sc1")
    k(f"{jn}:")
    k(f"v_lshlrev_b32 v{T+5}, 11, v{T+1}\nv_lshl_add_u32 v{T+5}, v{T+2}, 4, v{T+5}")
    k(f"s_lshl_b32 s91, s{S_RB1}, 18\ns_lshl_b32 s92, s{S_WAVE}, 16\ns_add_u32 s91, s91, s92\ns_lshl_b32 s92, s{S_HP}, 7\ns_add_u32 s91, s91, s92")
    for i in range(4):
        k(f"buffer_load_dwordx4 {vr(XT_+4*i,4)}, v{T+5}, {sr(SRD_A,4)}, s91 offen")
        if i < 3: k("s_add_u32 s91, s91, 16384")
    k(f"s_lshl_b32 s94, s{S_WAVE}, 11\ns_add_u32 s{S_MB}, s86, s94\ns_add_u32 s{S_MB}, s{S_MB}, 4096")
    k(f"s_lshl_b32 s94, s{S_WAVE}, 16\ns_lshl_b32 s95, s{S_HP}, 12\ns_add_u32 s94, s94, s95\ns_lshl_b32 s95, s{S_RB1}, 8\ns_add_u32 s94, s94, s95\ns_add_u32 s{S_MO}, s94, {MP_B}")
    young = 9
    k.stamp("all issued")
    k(f"s_waitcnt vmcnt({young + 8})")
    k.stamp("c ready")
    silu_block(k, [CA, CA + 2])
    k(f"s_waitcnt vmcnt({young + 4})")
    k.stamp("w ready")
    for i in range(2):
        for v in range(2):
            for d in range(4):
                w_ = WA + (i * 2 + v) * 4 + d
                k(f"v_lshlrev_b32 v{T+14}, 16, v{w_}\nv_and_b32 v{T+15}, 0xffff0000, v{w_}")
                if i == 0: k(f"v_pk_mul_f32 {vr(A0+v*8+2*d,2)}, {vr(T+14,2)}, {vr(CA,2)} op_sel_hi:[1,0]")
                else: k(f"v_pk_fma_f32 {vr(A0+v*8+2*d,2)}, {vr(T+14,2)}, {vr(CA+2,2)}, {vr(A0+v*8+2*d,2)} op_sel_hi:[1,0,1]")
    k("s_nop 1")
    for j in range(8): k(f"v_permlane32_swap_b32 v{A0+j}, v{A0+8+j}")
    k("s_nop 1")
    for j in range(8): k(f"v_add_f32 v{A0+j}, v{A0+j}, v{A0+8+j}")
    k("s_nop 1")
    for j in range(4): k(f"v_permlane16_swap_b32 v{A0+j}, v{A0+4+j}")
    k("s_nop 1")
    for j in range(4): k(f"v_add_f32 v{A0+j}, v{A0+j}, v{A0+4+j}")
    k("s_nop 1")
    for j in range(4): k(f"v_add_f32_dpp v{A0+j}, v{A0+j}, v{A0+j} row_ror:8 row_mask:0xf bank_mask:0xf")
    k(f"v_lshrrev_b32 v{T+13}, 5, v{LANE}\nv_lshlrev_b32 v{T+14}, 8, v{T+13}\nv_lshl_add_u32 v{T+14}, v{T+2}, 5, v{T+14}")
    k(f"v_bfe_u32 v{T+15}, v{LANE}, 4, 1\nv_lshl_add_u32 v{T+14}, v{T+15}, 4, v{T+14}\ns_lshl_b32 s94, s{S_WAVE}, 9\nv_add_u32 v{T+14}, s94, v{T+14}")
    k(f"ds_write_b128 v{T+14}, {vr(A0,4)} offset:{HL}")
    k(f"s_waitcnt vmcnt({young})")
    for d in range(16): k(f"v_lshlrev_b32 v{XF+2*d}, 16, v{XR+d}\nv_and_b32 v{XF+2*d+1}, 0xffff0000, v{XR+d}")
    k(f"v_pk_add_f32 {vr(SU,2)}, {vr(XF,2)}, {vr(XF+2,2)}")
    for d in range(2, 16): k(f"v_pk_add_f32 {vr(SU,2)}, {vr(SU,2)}, {vr(XF+2*d,2)}")
    k(f"v_add_f32 v{SU}, v{SU}, v{SU+1}")
    red32(k, SU, SU + 1)
    k(f"v_mul_f32 v{SU+2}, {-1.0/1024!r}, v{SU}")
    k(f"v_mov_b32 v{SU}, 0\nv_mov_b32 v{SU+1}, 0")
    for d in range(16):
        k(f"v_pk_add_f32 {vr(XF+2*d,2)}, {vr(XF+2*d,2)}, {vr(SU+2,2)} op_sel_hi:[1,0]")
        k(f"v_pk_fma_f32 {vr(SU,2)}, {vr(XF+2*d,2)}, {vr(XF+2*d,2)}, {vr(SU,2)}")
    k(f"v_add_f32 v{SU}, v{SU}, v{SU+1}")
    red32(k, SU, SU + 1)
    k(f"v_mov_b32 v{SU+1}, 0x3727c5ac\nv_fmac_f32 v{SU+1}, {1.0/1024!r}, v{SU}\nv_rsq_f32 v{SU+3}, v{SU+1}")
    k(f"s_lshl_b32 s94, s{S_WAVE}, 4\nv_lshlrev_b32 v{T+13}, 3, v{T+13}\nv_add_u32 v{T+13}, s94, v{T+13}")
    k(f"ds_write_b64 v{T+13}, {vr(SU+2,2)} offset:{HL+2048}")
    n3 = k.label("not3")
    k(f"s_cmp_lg_u32 s{S_WAVE}, 3\ns_cbranch_scc1 {n3}")
    k(f"v_and_b32 v{T+14}, 3, v{LANE}\nv_lshlrev_b32 v{T+14}, 2, v{T+14}")
    spin(k, [f"buffer_load_dword v{T+13}, v{T+14}, {sr(SRD_T,4)}, 0 offen sc1"], [T + 13], 0)
    k(f"{n3}:")
    k("s_waitcnt lgkmcnt(0)\ns_barrier")
    k.stamp("partials")
    nw0 = k.label("notw0")
    k(f"v_lshlrev_b32 v{T+6}, 3, v{LANE}")
    k(f"s_cmp_lg_u32 s{S_WAVE}, 0\ns_cbranch_scc1 {nw0}")
    for w in range(4): k(f"ds_read_b64 {vr(A0+2*w,2)}, v{T+6} offset:{HL+w*512}")
    k(f"v_and_b32 v{T+9}, 0x38, v{T+6}")
    k(f"ds_read_b64 {vr(A0+8,2)}, v{T+9} offset:{HL+2048}")
    k(f"s_lshl_b32 s94, s{S_HP}, 13\ns_lshl_b32 s95, s{S_RB1}, 9\ns_add_u32 s95, s95, s94")
    k(f"s_lshl_b32 s90, s89, 6\ns_add_u32 s90, s90, {MP_RS}")
    k("s_waitcnt lgkmcnt(0)")
    k(f"v_pk_add_f32 {vr(A0,2)}, {vr(A0,2)}, {vr(A0+2,2)}\nv_pk_add_f32 {vr(A0+4,2)}, {vr(A0+4,2)}, {vr(A0+6,2)}\nv_pk_add_f32 {vr(A0,2)}, {vr(A0,2)}, {vr(A0+4,2)}")
    k(f"buffer_store_dwordx2 {vr(A0,2)}, v{T+6}, {sr(SRD_B,4)}, s95 offen sc1")
    k(f"buffer_store_dwordx2 {vr(A0+8,2)}, v{T+9}, {sr(SRD_B,4)}, s90 offen sc1")
    k(f"s_lshl_b32 s90, s89, {FS}\ns_add_u32 s90, s90, {F_S0}")
    k("s_waitcnt vmcnt(0)")
    k(f"buffer_store_dword v{T+12}, v{T+8}, {sr(SRD_F,4)}, s90 offen sc1")
    if opt.get("modb_front", 0):
        sk_ = k.label("skmf")
        k(f"s_branch {sk_}")
        k(f"{nw0}:")
        k("s_waitcnt vmcnt(0)")
        for g in modb_loads(S_MB, V_W, V_C):
            for x in g: k(x)
        k(f"s_mov_b32 s{S_MB}, 0x7ff00000")
        k(f"{sk_}:")
    else:
        k(f"{nw0}:")
    k.stamp("s0 published")
    split = opt.get("split", 1)
    g1 = (setup_gemm1s if split else setup_gemm1)(k, opt)
    srd(k, SRD_W, P_WQKV, D * 3 * D * 2)
    if not opt.get("modb_front", 0):
        k("s_waitcnt vmcnt(1)")
        k(f"s_cmp_eq_u32 s{S_WAVE}, 0\ns_cbranch_scc1 1\ns_waitcnt vmcnt(0)")
    for d in range(16): k(f"v_lshlrev_b32 v{XF+2*d}, 16, v{XT_+d}\nv_and_b32 v{XF+2*d+1}, 0xffff0000, v{XT_+d}")
    VS = T + 4
    k(f"v_lshrrev_b32 v{VS}, 2, v{T+2}\nv_lshlrev_b32 v{VS}, 10, v{VS}")
    k(f"v_and_b32 v{T+3}, 3, v{T+2}\nv_lshl_add_u32 v{VS}, v{T+3}, 8, v{VS}\nv_lshl_add_u32 v{VS}, v{T+1}, 4, v{VS}")
    k(f"s_lshl_b32 s86, s{S_RB1}, 3\ns_lshl_b32 s87, s{S_WAVE}, 1\ns_add_u32 s86, s86, s87\ns_lshl_b32 s86, s86, 15\ns_lshl_b32 s87, s{S_HP}, 11\ns_add_u32 s86, s86, s87\ns_add_u32 s87, s86, 0x8000")
    k(f"s_lshl_b32 s88, s{S_RB1}, 2\ns_add_u32 s88, s88, s{S_WAVE}\ns_lshl_b32 s88, s88, {FS+4}\ns_add_u32 s88, s88, {F_H}\ns_lshl_b32 s89, s{S_HP}, {FS}\ns_add_u32 s89, s89, s88")
    k(f"v_lshlrev_b32 v{T+5}, 5, v{T+2}")
    k(f"s_lshl_b32 s92, s{S_WAVE}, 8\nv_lshlrev_b32 v{T+7}, 3, v{T+1}\nv_add_u32 v{T+7}, s92, v{T+7}")
    nw1 = k.label("notw0b")
    k(f"s_cmp_lg_u32 s{S_WAVE}, 0\ns_cbranch_scc1 {nw1}")
    k(f"v_and_b32 v{T+9}, 15, v{LANE}\ns_lshl_b32 s92, s{S_RB1}, 4\nv_add_u32 v{T+10}, s92, v{T+9}\nv_lshlrev_b32 v{T+9}, 4, v{T+9}\nv_add_u32 v{T+9}, s{S_HP}, v{T+9}")
    k(f"v_and_b32 v{T+11}, 16, v{LANE}\nv_cmp_eq_u32 vcc, 0, v{T+11}\ns_mov_b32 s92, {F_S0}\ns_nop 0")
    k(f"v_cndmask_b32 v{T+9}, v{T+9}, v{T+10}, vcc\nv_lshlrev_b32 v{T+9}, {FS}, v{T+9}")
    spin(k, [f"buffer_load_dword v{T+13}, v{T+9}, {sr(SRD_F,4)}, s92 offen sc1"], [T + 13], 0)
    k(f"s_lshl_b32 s94, s{S_HP}, 13\ns_add_u32 s95, s94, 4096")
    for p_ in range(16): k(f"buffer_load_dwordx2 {vr(G+2*p_,2)}, v{T+6}, {sr(SRD_B,4)}, s{94+p_//8} offen offset:{(p_%8)*512} sc1")
    k(f"s_lshl_b32 s90, s{S_RB1}, 10\ns_add_u32 s90, s90, {MP_RS}")
    k(f"buffer_load_dwordx4 {vr(A0+8,4)}, v{L16}, {sr(SRD_B,4)}, s90 offen sc1")
    k(f"v_cmp_lt_u32 vcc, 31, v{LANE}")
    k("s_waitcnt vmcnt(1)")
    for st in (8, 4, 2, 1):
        for j in range(st): k(f"v_pk_add_f32 {vr(G+2*j,2)}, {vr(G+2*j,2)}, {vr(G+2*(j+st),2)}")
    k(f"v_cvt_pk_bf16_f32 v{G+2}, v{G}, v{G+1}\nv_lshlrev_b32 v{G}, 16, v{G+2}\nv_and_b32 v{G+1}, 0xffff0000, v{G+2}")
    k(f"v_pk_add_f32 {vr(G+4,2)}, {vr(G,2)}, 1.0 op_sel_hi:[1,0]")
    k(f"v_cvt_pk_bf16_f32 v{G+2}, v{G+4}, v{G+5}\nv_lshlrev_b32 v{G+4}, 16, v{G+2}\nv_and_b32 v{G+5}, 0xffff0000, v{G+2}")
    k(f"v_cndmask_b32 v{G}, v{G}, v{G+4}, vcc\nv_cndmask_b32 v{G+1}, v{G+1}, v{G+5}, vcc")
    k(f"ds_write_b64 v{T+6}, {vr(G,2)} offset:{HL+4096}")
    k("s_waitcnt vmcnt(0)")
    k(f"ds_write_b128 v{L16}, {vr(A0+8,4)} offset:{HL+5120}")
    k("s_waitcnt lgkmcnt(0)")
    k(f"{nw1}:")
    g1.prefetch(k, opt.get("h_pre0", 0))
    srd(k, SRD_T, P_WS, S * D * 2, WS_H)
    k("s_barrier")
    k.stamp("s0 ready")
    for h in range(2): k(f"ds_read_b128 {vr(M+4*h,4)}, v{T+5} offset:{HL+4096+h*16}\nds_read_b128 {vr(M+8+4*h,4)}, v{T+5} offset:{HL+4096+256+h*16}")
    for i in range(4): k(f"ds_read_b64 {vr(RS+2*i,2)}, v{T+7} offset:{HL+5120+i*64}")
    k("s_waitcnt lgkmcnt(0)")
    for i in range(4):
        for j in range(4): k(f"v_pk_add_f32 {vr(XF+8*i+2*j,2)}, {vr(XF+8*i+2*j,2)}, {vr(RS+2*i,2)} op_sel_hi:[1,0]")
        for j in range(4): k(f"v_pk_mul_f32 {vr(XF+8*i+2*j,2)}, {vr(XF+8*i+2*j,2)}, {vr(RS+2*i,2)} op_sel:[0,1] op_sel_hi:[1,1]")
        for j in range(4): k(f"v_pk_fma_f32 {vr(XF+8*i+2*j,2)}, {vr(XF+8*i+2*j,2)}, {vr(M+8+2*j,2)}, {vr(M+2*j,2)}")
        for j in range(4): k(f"v_cvt_pk_bf16_f32 v{XR+4*i+j}, v{XF+8*i+2*j}, v{XF+8*i+2*j+1}")
        k(f"buffer_store_dwordx4 {vr(XR+4*i,4)}, v{VS}, {sr(SRD_T,4)}, s{86 + i//2} offen offset:{(i%2)*128} sc1")
    k.stamp("h computed")
    mk = len(k.L)
    g1.prefetch(k, opt.get("h_pre1a", 4 if split else 6))
    publish(k, 89, T, mk)
    k.stamp("h published")
    g1.prefetch(k, opt.get("h_pre1", 8 if split else 6))
    if not split:
        k.g3 = setup_gemm3_early(k, opt, LANE, 56)
        for i in range(8): k(f"global_load_ushort {ar(A_UT+32+i,1)}, v{V_C}, s[{P_C}:{P_C+1}] offset:{i*16}")
    k(f"v_and_b32 v252, 15, v{LANE}\nv_lshlrev_b32 v252, {FS}, v252\ns_mov_b32 s93, s88")
    staged_wait(k, g1, opt.get("g1_T", 5 if split else 4), 252, 93, 253, one_prod)
    k.stamp("h ready")
    return g1

def phase_front(k, opt, name):
    LANE, L16 = 104, 105
    T = 48
    V_W, V_C = 115, 109
    RS, XR, XT_, XF, G, M = 64, 128, 144, 0, 160, 32
    HL = 2 * 25344
    k(f"v_and_b32 v{LANE}, 63, v0")
    k(f"v_lshrrev_b32 v{T+1}, 3, v{LANE}\nv_and_b32 v{T+2}, 7, v{LANE}")
    k(f"v_lshlrev_b32 v{T+5}, 11, v{T+1}\nv_lshl_add_u32 v{T+5}, v{T+2}, 4, v{T+5}")
    k(f"s_lshl_b32 s91, s{S_RB1}, 18\ns_lshl_b32 s92, s{S_WAVE}, 16\ns_add_u32 s91, s91, s92\ns_lshl_b32 s92, s{S_HP}, 7\ns_add_u32 s91, s91, s92")
    k(f"v_lshlrev_b32 v{T+8}, 3, v{LANE}\nv_lshlrev_b32 v{T+6}, 3, v{T+1}")
    k(f"s_lshl_b32 s94, s{S_HP}, 13\ns_add_u32 s95, s94, 4096")
    k(f"s_lshl_b32 s90, s{S_RB1}, 10\ns_lshl_b32 s93, s{S_WAVE}, 8\ns_add_u32 s90, s90, s93\ns_add_u32 s90, s90, {MP_RS}")
    k("s_waitcnt lgkmcnt(0)")
    srd(k, SRD_B, P_WS, MP_BYTES, WS_MODP)
    srd(k, SRD_A, P_X, S * D * 2)
    for p_ in range(16): k(f"buffer_load_dwordx2 {vr(G+2*p_,2)}, v{T+8}, {sr(SRD_B,4)}, s{94+p_//8} offen offset:{(p_%8)*512}")
    for i in range(4): k(f"buffer_load_dwordx2 {vr(RS+2*i,2)}, v{T+6}, {sr(SRD_B,4)}, s90 offen offset:{i*64}")
    for i in range(4):
        k(f"buffer_load_dwordx4 {vr(XT_+4*i,4)}, v{T+5}, {sr(SRD_A,4)}, s91 offen")
        if i < 3: k("s_add_u32 s91, s91, 16384")
    k.stamp("loads issued")
    def touch(ptr, per, vt, off=0):
        k(f"s_lshl_b32 s80, s2, 2\ns_add_u32 s80, s80, s{S_WAVE}\ns_mul_i32 s80, s80, {per*128}")
        if off: k(f"s_add_u32 s80, s80, {off}")
        k(f"v_min_u32 v{vt}, {per-1}, v{LANE}\nv_lshlrev_b32 v{vt}, 7, v{vt}\nv_add_u32 v{vt}, s80, v{vt}")
        k(f"global_load_dword a232, v{vt}, s[{ptr}:{ptr+1}]")
    nt0 = 0
    if opt.get("m_touch", 0) == 1: touch(P_WQKV, 48, 254); nt0 = 1
    g1 = setup_gemm1(k, opt)
    srd(k, SRD_W, P_WQKV, D * 3 * D * 2)
    n0 = opt.get("h_pre0", 6)
    g1.prefetch(k, n0)
    n0 += nt0
    srd(k, SRD_F, P_WS, FLAG_BYTES, WS_FLAG)
    srd(k, SRD_T, P_WS, S * D * 2, WS_H)
    VS = T + 4
    k(f"v_lshrrev_b32 v{VS}, 2, v{T+2}\nv_lshlrev_b32 v{VS}, 10, v{VS}")
    k(f"v_and_b32 v{T+3}, 3, v{T+2}\nv_lshl_add_u32 v{VS}, v{T+3}, 8, v{VS}\nv_lshl_add_u32 v{VS}, v{T+1}, 4, v{VS}")
    k(f"s_lshl_b32 s86, s{S_RB1}, 3\ns_lshl_b32 s87, s{S_WAVE}, 1\ns_add_u32 s86, s86, s87\ns_lshl_b32 s86, s86, 15\ns_lshl_b32 s87, s{S_HP}, 11\ns_add_u32 s86, s86, s87\ns_add_u32 s87, s86, 0x8000")
    k(f"s_lshl_b32 s88, s{S_WAVE}, 9\nv_add_u32 v{T+8}, s88, v{T+8}\nv_lshlrev_b32 v{T+5}, 5, v{T+2}\nv_add_u32 v{T+5}, s88, v{T+5}")
    k(f"s_lshl_b32 s88, s{S_RB1}, 2\ns_add_u32 s88, s88, s{S_WAVE}\ns_lshl_b32 s88, s88, {FS+4}\ns_add_u32 s88, s88, {F_H}\ns_lshl_b32 s89, s{S_HP}, {FS}\ns_add_u32 s89, s89, s88")
    k(f"v_cmp_lt_u32 vcc, 31, v{LANE}")
    k(f"s_waitcnt vmcnt({8 + n0})")
    for st in (8, 4, 2, 1):
        for j in range(st): k(f"v_pk_add_f32 {vr(G+2*j,2)}, {vr(G+2*j,2)}, {vr(G+2*(j+st),2)}")
    k(f"v_cvt_pk_bf16_f32 v{G+2}, v{G}, v{G+1}\nv_lshlrev_b32 v{G}, 16, v{G+2}\nv_and_b32 v{G+1}, 0xffff0000, v{G+2}")
    k(f"v_pk_add_f32 {vr(G+4,2)}, {vr(G,2)}, 1.0 op_sel_hi:[1,0]")
    k(f"v_cvt_pk_bf16_f32 v{G+2}, v{G+4}, v{G+5}\nv_lshlrev_b32 v{G+4}, 16, v{G+2}\nv_and_b32 v{G+5}, 0xffff0000, v{G+2}")
    k(f"v_cndmask_b32 v{G}, v{G}, v{G+4}, vcc\nv_cndmask_b32 v{G+1}, v{G+1}, v{G+5}, vcc")
    k(f"ds_write_b64 v{T+8}, {vr(G,2)} offset:{HL}")
    k("s_waitcnt lgkmcnt(0)")
    for h in range(2): k(f"ds_read_b128 {vr(M+4*h,4)}, v{T+5} offset:{HL+h*16}\nds_read_b128 {vr(M+8+4*h,4)}, v{T+5} offset:{HL+256+h*16}")
    for i in range(4):
        k(f"s_waitcnt vmcnt({3 - i + n0})")
        for d in range(4): k(f"v_lshlrev_b32 v{XF+8*i+2*d}, 16, v{XT_+4*i+d}\nv_and_b32 v{XF+8*i+2*d+1}, 0xffff0000, v{XT_+4*i+d}")
        for j in range(4): k(f"v_pk_add_f32 {vr(XF+8*i+2*j,2)}, {vr(XF+8*i+2*j,2)}, {vr(RS+2*i,2)} op_sel_hi:[1,0]")
        for j in range(4): k(f"v_pk_mul_f32 {vr(XF+8*i+2*j,2)}, {vr(XF+8*i+2*j,2)}, {vr(RS+2*i,2)} op_sel:[0,1] op_sel_hi:[1,1]")
    k("s_waitcnt lgkmcnt(0)")
    for i in range(4):
        for j in range(4): k(f"v_pk_fma_f32 {vr(XF+8*i+2*j,2)}, {vr(XF+8*i+2*j,2)}, {vr(M+8+2*j,2)}, {vr(M+2*j,2)}")
        for j in range(4): k(f"v_cvt_pk_bf16_f32 v{XR+4*i+j}, v{XF+8*i+2*j}, v{XF+8*i+2*j+1}")
        k(f"buffer_store_dwordx4 {vr(XR+4*i,4)}, v{VS}, {sr(SRD_T,4)}, s{86 + i//2} offen offset:{(i%2)*128} sc1")
    k.stamp("h computed")
    code_prefetch_setup(k, name)
    srd(k, SRD_D, P_WMOD, D * 6 * D * 2)
    k(f"v_mul_u32_u24 v{V_W}, 12288, v{T+1}\nv_lshl_add_u32 v{V_W}, v{T+2}, 4, v{V_W}")
    k(f"s_lshl_b32 s84, s{S_RB1}, 6\nv_add_u32 v{V_C}, s84, v{T+1}\nv_lshlrev_b32 v{V_C}, 1, v{V_C}")
    k(f"s_mul_i32 s86, s84, 12288\ns_lshl_b32 s87, s{S_HP}, 7\ns_add_u32 s86, s86, s87")
    k(f"s_lshl_b32 s94, s{S_WAVE}, 11\ns_add_u32 s{S_MB}, s86, s94\ns_add_u32 s{S_MB}, s{S_MB}, 4096")
    k(f"s_lshl_b32 s94, s{S_WAVE}, 16\ns_lshl_b32 s95, s{S_HP}, 12\ns_add_u32 s94, s94, s95\ns_lshl_b32 s95, s{S_RB1}, 8\ns_add_u32 s94, s94, s95\ns_add_u32 s{S_MO}, s94, {MP_B}")
    k.g3 = setup_gemm3_early(k, opt, LANE, 56)
    publish(k, 89, T)
    k.stamp("h published")
    if opt.get("m_touch", 0) == 2: touch(P_WQKV, 48, 254)
    k("s_barrier")
    g1.prefetch(k, opt.get("h_pre1", 12))
    for i in range(8): k(f"global_load_ushort {ar(A_UT+32+i,1)}, v{V_C}, s[{P_C}:{P_C+1}] offset:{i*16}")
    k(f"v_and_b32 v252, 15, v{LANE}\nv_lshlrev_b32 v252, {FS}, v252\ns_mov_b32 s93, s88")
    staged_wait(k, g1, opt.get("g1_T", 4), 252, 93, 253, one_prod)
    k.stamp("h ready")
    return g1

def setup_gemm24(k, which, opt, base):
    c = Sched(); common_gemm(c)
    K = 1024 if which == 2 else 3584
    NS, R = 4, opt.get(f"g{which}_R", 4)
    STAGE = 8448
    if isinstance(base, tuple): V_RD, V_DMA, V_TOK, LANE, L16, VT = base
    else:
        V_RD, V_DMA, V_TOK, LANE, L16, VT = base, base + 1, base + 2, base + 4, base + 5, base + 6
        lane_id(k, LANE)
        k(f"v_lshlrev_b32 v{L16}, 4, v{LANE}")
    c.LANE, c.L16 = LANE, L16
    hs = c.hs = opt.get("hsplit", 1) and opt.get("split", 1)
    order(c, k, opt, "g2", ["win", [8, 8], 0] if hs else ["win", [1, 1, 2, 4, 8], 1])
    if hs:
        c.w_off = lambda sd, kt: [T(x) for x in c.pos_txt(sd, kt)] + [T(f"s_mul_i32 s{sd}, s{sd}, {128*2048}")] + ([T(f"s_add_u32 s{sd}, s{sd}, {(32 - 8*128)*2048}")] if kt >= 8 else [])
        c.t_off = lambda sd, kt: [T(x) for x in c.pos_txt(sd, kt)] + [T(f"s_lshl_b32 s{sd}, s{sd}, 12")] + ([T(f"s_add_u32 s{sd}, s{sd}, {1024 - 8*4096}")] if kt >= 8 else [])
        c.sub_stride = 2048
    k(f"s_lshr_b32 s80, s{S_WAVE}, 1\ns_and_b32 s81, s{S_WAVE}, 1")
    k(f"s_lshl_b32 s82, s80, {6 if hs else 5}\ns_lshl_b32 s83, s81, 1\ns_add_u32 s82, s82, s83\ns_lshl_b32 s82, s82, 11")
    k(f"s_lshl_b32 s83, s{S_NT}, 7\ns_add_u32 s82, s82, s83")
    k(f"v_lshrrev_b32 v{VT}, 3, v{LANE}\nv_lshlrev_b32 v{VT}, 13, v{VT}")
    k(f"v_and_b32 v{VT+1}, 7, v{LANE}\nv_lshl_add_u32 v{VT}, v{VT+1}, 4, v{VT}")
    k(f"v_add_u32 v{V_DMA}, s82, v{VT}")
    k(f"v_bfe_u32 v{VT}, v{LANE}, 2, 2\nv_mul_u32_u24 v{VT}, 1056, v{VT}")
    k(f"v_lshrrev_b32 v{VT+1}, 4, v{LANE}\nv_lshl_add_u32 v{VT}, v{VT+1}, 7, v{VT}")
    k(f"v_and_b32 v{VT+1}, 3, v{LANE}\nv_lshl_add_u32 v{V_RD}, v{VT+1}, 3, v{VT}")
    k(f"v_add_u32 v{V_RD}, {L_R2}, v{V_RD}")
    k(f"s_lshl_b32 s82, s{S_RB2}, 3\ns_lshl_b32 s83, s{S_WAVE}, 1\ns_add_u32 s82, s82, s83\ns_mul_i32 s82, s82, {K//32*1024}")
    k(f"v_add_u32 v{V_TOK}, s82, v{L16}\nv_add_u32 v{V_TOK+1}, {K//32*1024}, v{V_TOK}")
    k(f"s_mul_i32 s{S_WB}, s80, 4224\ns_mul_i32 s82, s81, 2112\ns_add_u32 s{S_WB}, s{S_WB}, s82\ns_add_u32 s{S_WB}, s{S_WB}, {L_R2}")
    srd(k, SRD_W, P_WO if which == 2 else P_W2, K * D * 2)
    c.NB, c.TB, c.KS, c.SPK, c.KT, c.NS, c.R = 4, 2, 2, 1, K // 64, NS, R
    c.acc = lambda b, t: vr((b * 2 + t) * 4, 4)
    c.tf = lambda slot, ks, t: 64 + ((slot * 2 + ks) * 2 + t) * 4
    c.rd = lambda sl, b, sub, r: (V_RD, sl * STAGE + sub * 4224 + r * 512 + b * 32)
    c.slot_addr = lambda sl: sl * STAGE
    c.dma = [(V_DMA, 0, 0), (V_DMA, 1056, 2048)]
    c.v_tok = [V_TOK, V_TOK + 1]
    c.w_stride = 64 * 2048
    c.drop = opt.get(f"g{which}_drop", ())
    c.pro_units, c.ramp_rate, c.read_margin = opt.get(f"g{which}_pro", 12), opt.get(f"g{which}_ramp", 6), 4
    std_sched(c)
    return c

S_G80, S_G192 = 6, 7
def setup_gemm4p(k, opt, base):
    c = Sched(); common_gemm(c)
    HS = 8448; STAGE = 2 * HS
    L = 12; KT = 28; MAIN = KT - L
    V_RD, V_DE, V_DK, V_TOK, LANE, L16, VT = base, base + 2, base + 3, base + 4, base + 6, base + 7, base + 8
    c.LANE, c.L16, c.V_DE, c.V_DK, c.V_TOK = LANE, L16, V_DE, V_DK, V_TOK
    lane_id(k, LANE)
    k(f"v_lshlrev_b32 v{L16}, 4, v{LANE}")
    c.KT = KT
    order(c, k, opt, "g4", ["win", [4, 4, 8, 8, 4], 0])
    k(f"s_lshr_b32 s80, s{S_WAVE}, 1\ns_and_b32 s81, s{S_WAVE}, 1")
    k(f"s_mul_i32 s{S_G80}, s80, {80*2048}\ns_mul_i32 s{S_G192}, s80, {192*2048}")
    k("s_lshl_b32 s82, s80, 5\ns_lshl_b32 s83, s81, 1\ns_add_u32 s82, s82, s83")
    k(f"s_and_b32 s{S_TMP}, s{S_NT}, 1\ns_mul_i32 s83, s{S_TMP}, 1792\ns_add_u32 s82, s82, s83\ns_lshl_b32 s82, s82, 11")
    k(f"v_lshrrev_b32 v{VT}, 3, v{LANE}\nv_lshlrev_b32 v{VT}, 13, v{VT}")
    k(f"v_and_b32 v{VT+1}, 7, v{LANE}\nv_lshl_add_u32 v{VT}, v{VT+1}, 4, v{VT}")
    k(f"v_add_u32 v{VT}, s82, v{VT}")
    k(f"s_lshl_b32 s83, s{S_NT}, 7\nv_add_u32 v{V_DK}, s83, v{VT}\nv_xor_b32 v{V_DE}, 128, v{V_DK}")
    k(f"v_bfe_u32 v{VT}, v{LANE}, 2, 2\nv_mul_u32_u24 v{VT}, 1056, v{VT}")
    k(f"v_lshrrev_b32 v{VT+1}, 4, v{LANE}\nv_lshl_add_u32 v{VT}, v{VT+1}, 7, v{VT}")
    k(f"v_and_b32 v{VT+1}, 3, v{LANE}\nv_lshl_add_u32 v{V_RD+1}, v{VT+1}, 3, v{VT}")
    k(f"v_add_u32 v{V_RD}, {L_R2}, v{V_RD+1}")
    k(f"s_lshl_b32 s82, s{S_RB2}, 3\ns_lshl_b32 s83, s{S_WAVE}, 1\ns_add_u32 s82, s82, s83\ns_mul_i32 s82, s82, {112*1024}")
    k(f"s_mul_i32 s83, s{S_TMP}, {56*1024}\ns_add_u32 s82, s82, s83")
    k(f"v_add_u32 v{V_TOK}, s82, v{L16}\nv_add_u32 v{V_TOK+1}, {112*1024}, v{V_TOK}")
    k(f"s_mul_i32 s{S_WB}, s80, 4224\ns_mul_i32 s82, s81, 2112\ns_add_u32 s{S_WB}, s{S_WB}, s82")
    srd(k, SRD_W, P_W2, F * D * 2)
    c.drop = opt.get("g4_drop", ())
    V2E, V2K, V2T = 200, 201, 202
    c.V2 = (V2E, V2K, V2T)
    slot_addr = [L_R2, L_R2 + STAGE, 1024, 1024 + STAGE]
    def rd(sl, half, b, sub, r):
        off = half * HS + sub * 4224 + r * 512 + b * 32
        return (V_RD, (sl % 2) * STAGE + off) if sl < 2 else (V_RD + 1, slot_addr[sl] + off)
    NT_ = 2 * L
    tf = lambda kt, sub, t: 64 + (((kt * 2 + sub) % NT_) * 2 + t) * 4
    acc = lambda b, t: vr((b * 2 + t) * 4, 4)
    c.wf = lambda buf, j: (buf * 8 + j) * 4
    typ = lambda kt: "A" if kt < 16 else ("B1" if kt < 24 else "B2")
    if opt.get("g4_fast", 0):
        base_pos = c.pos_txt
        def pos2(sd, kt):
            o = base_pos(sd, kt)
            if kt >= 16: return o
            t_ = S_PTMP
            o += [f"s_and_b32 s{t_}, s{sd}, 1", f"s_and_b32 s{sd}, s{sd}, 6", f"s_lshl_b32 s{sd}, s{sd}, 1"]
            o += [f"s_mul_i32 s{t_}, s{t_}, 3"] if kt < 8 else [f"s_add_u32 s{t_}, s{t_}, 1"]
            o += [f"s_add_u32 s{sd}, s{sd}, s{t_}"]
            return o
        c.pos_txt = pos2
    def w_off(sd, kt):
        o = [T(x) for x in c.pos_txt(sd, kt)]
        if typ(kt) == "A": o.append(T(f"s_mul_i32 s{sd}, s{sd}, {112*2048}"))
        elif typ(kt) == "B1": o += [T(f"s_mul_i32 s{sd}, s{sd}, {224*2048}"), T(f"s_add_u32 s{sd}, s{sd}, {(64 - 16*224)*2048}"), T(f"s_add_u32 s{sd}, s{sd}, s{S_G80}")]
        else: o += [T(f"s_mul_i32 s{sd}, s{sd}, {448*2048}"), T(f"s_add_u32 s{sd}, s{sd}, {(96 - 24*448)*2048}"), T(f"s_add_u32 s{sd}, s{sd}, s{S_G192}")]
        return o
    halves = [[("E", kt), ("K", kt)] for kt in range(MAIN)]
    halves += [[("E", MAIN + 2 * j), ("E", MAIN + 2 * j + 1)] for j in range(L // 2)]
    halves += [[("K", MAIN + 2 * j), ("K", MAIN + 2 * j + 1)] for j in range(L // 2)]
    cur = None; flip = 0
    for st, hv in enumerate(halves):
        us = []
        for h, (kind, kt) in enumerate(hv):
            pre = []
            if cur != kt:
                flip ^= 1; cur = kt; pre = w_off(c.s_kw + flip, kt)
            vo = (V2E if kind == 'E' else V2K) if typ(kt) == "B2" else (V_DE if kind == 'E' else V_DK)
            for i, goff in enumerate((0, 2048)):
                us.append((pre if i == 0 else []) + [T(f"s_add_u32 m0, s{S_WB}, {slot_addr[st % 4] + h * HS + i * 1056 - goff}"),
                          VM(f"buffer_load_dwordx4 v{vo}, {sr(SRD_W,4)}, s{c.s_kw + flip} offen" + (f" offset:{goff}" if goff else "") + " lds", ("dma", st))])
        c.stage_units[st] = us; c.stage_slot[st] = st % 4
        for j in range(2):
            frags = []; toks = []
            parts = [(0, j), (1, j)] if st < MAIN else [(j, 0), (j, 1)]
            for h, sub in parts:
                kind, kt = hv[h]
                if (kt, sub) not in toks: toks.append((kt, sub))
                for b in range(4):
                    va, o0 = rd(st % 4, h, b, sub, 0); _, o1 = rd(st % 4, h, b, sub, 1)
                    frags.append((va, o0, o1, [(acc(b + (0 if kind == 'E' else 4), t), tf(kt, sub, t)) for t in range(2)]))
            c.steps.append(dict(frags=frags, stages=[st], toks=toks))
    for kt in range(KT):
        sd = c.s_kt + kt % 2
        for sub in range(2):
            us = []
            for t in range(2):
                g = []
                if sub == 0 and t == 0:
                    g = [T(x) for x in c.pos_txt(sd, kt)]
                    if typ(kt) == "A": g.append(T(f"s_mul_i32 s{sd}, s{sd}, 3584"))
                    elif typ(kt) == "B1": g += [T(f"s_mul_i32 s{sd}, s{sd}, 7168"), T(f"s_add_u32 s{sd}, s{sd}, {2048 - 16*7168}")]
                    else: g += [T(f"s_mul_i32 s{sd}, s{sd}, 14336"), T(f"s_add_u32 s{sd}, s{sd}, {3072 - 24*14336}")]
                key = ("tok", (kt, sub))
                if typ(kt) == "B2":
                    if sub == 1 and t == 0: g.append(T(f"s_add_u32 s{sd}, s{sd}, 7168"))
                    g.append(VM(f"buffer_load_dwordx2 {ar(tf(kt, sub, t),2)}, v{V2T+t}, {sr(SRD_T,4)}, s{sd} offen sc1", key))
                    g.append(VM(f"buffer_load_dwordx2 {ar(tf(kt, sub, t)+2,2)}, v{V2T+t}, {sr(SRD_T,4)}, s{sd} offen offset:3584 sc1", key))
                else:
                    g.append(VM(f"buffer_load_dwordx4 {ar(tf(kt, sub, t),4)}, v{V_TOK+t}, {sr(SRD_T,4)}, s{sd} offen offset:{sub*(1024 if typ(kt) == 'A' else 3584)} sc1", key))
                us.append(g)
            c.tok_units[(kt, sub)] = us; c.tok_slot[(kt, sub)] = (kt * 2 + sub) % NT_
    c.pro_units, c.ramp_rate, c.read_margin, c.lookahead = opt.get("g4_pro", 12), opt.get("g4_ramp", 6), 4, opt.get("g4_la", 7)
    c.MAIN, c.L = MAIN, L
    return c

def phase_gemm4p(k, c, opt):
    LANE, L16 = c.LANE, c.L16
    VT = 72
    srd(k, SRD_T, P_WS, S * F * 2, WS_HH)
    srd(k, SRD_A, P_OUT, S * D * 2)
    srd(k, SRD_B, P_WS, 8 << 20, WS_P4)
    V_G, V_GA, V_XA, V_X, IMP, VF = 96, 76, 77, 80, 128, 78
    for j in range(16): k(f"v_accvgpr_read_b32 v{V_X+j}, a{A_X1+j}")
    k(f"v_and_b32 v{VT}, 15, v{LANE}\nv_lshlrev_b32 v{VT}, {FS}, v{VT}")
    k(f"s_lshl_b32 s84, s{S_RB2}, 1\ns_lshr_b32 s85, s{S_WAVE}, 1\ns_add_u32 s84, s84, s85\ns_lshl_b32 s84, s84, {FS+5}\ns_add_u32 s84, s84, {F_HH}")
    k(f"s_and_b32 s85, s{S_NT}, 1\ns_lshl_b32 s85, s85, {FS+4}\ns_add_u32 s84, s84, s85")
    k(f"v_mov_b32 v252, v{VT}")
    c.tile_of = lambda key: key[0]
    k(f"s_add_u32 s85, s84, {F_HB - F_HH}")
    staged_wait(k, c, opt.get("g4_T", 6), 252, 84, 253, one_prod, pub=(94, 204))
    add_gate(k, c, 16, f"buffer_load_dword v253, v252, {sr(SRD_F,4)}, s85 offen sc1", 253)
    k.stamp("hh ready")
    p = Txt()
    p(f"v_lshrrev_b32 v{VT}, 4, v{LANE}\nv_lshlrev_b32 v{V_GA}, 4, v{VT}\nv_add_u32 v{V_GA}, {L_MV}, v{V_GA}")
    p(f"v_and_b32 v{VT+1}, 15, v{LANE}\nv_lshlrev_b32 v{VT+1}, 11, v{VT+1}")
    p(f"v_and_b32 v{VT+2}, 1, v{VT}\nv_lshl_add_u32 v{VT+1}, v{VT+2}, 5, v{VT+1}")
    p(f"v_lshrrev_b32 v{VT+2}, 1, v{VT}\nv_lshl_add_u32 v{V_XA}, v{VT+2}, 4, v{VT+1}")
    p(f"s_lshl_b32 s86, s{S_RB2}, 3\ns_lshl_b32 s87, s{S_WAVE}, 1\ns_add_u32 s86, s86, s87\ns_lshl_b32 s86, s86, 15\ns_lshl_b32 s87, s{S_NT}, 7\ns_add_u32 s86, s86, s87\ns_add_u32 s87, s86, 32768")
    p(f"s_lshl_b32 s88, s{S_RB2}, 4\ns_add_u32 s88, s88, s{S_NT}\ns_lshl_b32 s88, s88, 2\ns_add_u32 s88, s88, s{S_WAVE}")
    p("s_xor_b32 s89, s88, 4")
    p(f"s_lshl_b32 s90, s88, 13\ns_add_u32 s91, s90, 4096\ns_lshl_b32 s92, s89, 13\ns_add_u32 s93, s92, 4096")
    p(f"s_lshl_b32 s88, s88, {FS}\ns_add_u32 s88, s88, {F_P4}\ns_lshl_b32 s89, s89, {FS}\ns_add_u32 s89, s89, {F_P4}")
    V2E, V2K, V2T = c.V2
    p(f"v_lshrrev_b32 v{VT}, 5, v{LANE}\nv_mul_u32_u24 v{VT}, {96*2048}, v{VT}\nv_add_u32 v{V2E}, v{c.V_DE}, v{VT}\nv_add_u32 v{V2K}, v{c.V_DK}, v{VT}")
    p(f"v_lshrrev_b32 v{VT}, 1, v{L16}\nv_sub_u32 v{V2T}, v{c.V_TOK}, v{VT}\nv_sub_u32 v{V2T+1}, v{c.V_TOK+1}, v{VT}")
    p(f"v_mov_b32 v{VT}, 1\nv_mov_b32 v{VT+1}, 0")
    c.pre_loop_txt = p.L
    N = len(c.steps); p2 = N - c.L
    for st_ in opt.get("cp4", []): c.late.setdefault(st_, []).extend(code_prefetch_txt(k.name, L16, 254, 80, junk="v240"))
    ex = [VM(f"buffer_store_dwordx4 {vr(4*j,4)}, v{L16}, {sr(SRD_B,4)}, s{90 + j//4} offen offset:{(j%4)*1024} sc1", ("exp", 0)) for j in range(8)]
    ne_ = opt.get("g4_ne", 2)
    for j in range(ne_): c.late[p2 + 1 + j] = ex[j * 8 // ne_:(j + 1) * 8 // ne_]
    c.late[p2 + opt.get("g4_fs", 6)] = [WVM([("exp", 0)]), f"buffer_store_dword v{VT}, v{VT+1}, {sr(SRD_F,4)}, s88 offen sc1"]
    c.late[N - 3] = [VM(f"buffer_load_dword v{VF}, v{VT+1}, {sr(SRD_F,4)}, s89 offen sc1", ("pf", 0))]
    c.last_reads = [f"ds_read_b128 {vr(V_G+4*b,4)}, v{V_GA} offset:{768+b*64}" for b in range(4)]
    m = Txt(); m.label = k.label
    okl = k.label("pok")
    m(f"v_cmp_eq_u32 vcc, 0, v{VF}\ns_cmp_eq_u64 vcc, 0\ns_cbranch_scc1 {okl}")
    spin(m, [f"buffer_load_dword v{VF}, v{VT+1}, {sr(SRD_F,4)}, s89 offen sc1"], [VF], 0)
    m(f"{okl}:")
    c.late[N - 1] = [WVM([("pf", 0)]), T("\n".join(m.L))] + [f"buffer_load_dwordx4 {vr(IMP+4*j,4)}, v{L16}, {sr(SRD_B,4)}, s{92 + j//4} offen offset:{(j%4)*1024} sc1" for j in range(8)]
    c.run(k)
    k.stamp("g4 loop done")
    A = lambda b, t: 32 + (b * 2 + t) * 4
    XT = 112
    XF = 160
    for j in range(16): k(f"v_lshlrev_b32 v{XF+2*j}, 16, v{V_X+j}\nv_and_b32 v{XF+2*j+1}, 0xffff0000, v{V_X+j}")
    k("s_waitcnt vmcnt(0) lgkmcnt(0)")
    for t in range(2):
        for b in range(4):
            for h in range(2): k(f"v_pk_add_f32 {vr(A(b,t)+2*h,2)}, {vr(A(b,t)+2*h,2)}, {vr(IMP+(b*2+t)*4+2*h,2)}")
            for h in range(2): k(f"v_pk_fma_f32 {vr(A(b,t)+2*h,2)}, {vr(A(b,t)+2*h,2)}, {vr(V_G+4*b+2*h,2)}, {vr(XF+(t*4+b)*4+2*h,2)}")
        PK = XT + t * 8
        for b in range(4): k(f"v_cvt_pk_bf16_f32 v{PK+2*b}, v{A(b,t)}, v{A(b,t)+1}\nv_cvt_pk_bf16_f32 v{PK+2*b+1}, v{A(b,t)+2}, v{A(b,t)+3}")
        k("s_nop 1")
        for s_ in range(2): k(f"v_permlane16_swap_b32 v{PK+4*s_}, v{PK+4*s_+2}\nv_permlane16_swap_b32 v{PK+4*s_+1}, v{PK+4*s_+3}")
        for s_ in range(2): k(f"buffer_store_dwordx4 {vr(PK+4*s_,4)}, v{V_XA}, {sr(SRD_A,4)}, s{86+t} offen offset:{s_*64}")

def phase_gemm1(k, c, opt):
    LANE, L16, VT = c.LANE, c.L16, c.VT
    PHK, VV, SH, UTX = 0, 34816, 114688, 126976
    A_PH = 160
    p = Txt()
    srd(p, SRD_A, P_WPHI, H * 2048)
    srd(p, SRD_B, P_WS, 2 << 20, WS_KVP)
    srd(p, SRD_C, P_WS, 128 << 10, WS_ZP)
    A_PW, A_VW, A_PR, A_VR, A_WR = 110, 111, 112, 113, 114
    p(f"s_lshr_b32 s80, s{S_WAVE}, 1\ns_and_b32 s81, s{S_WAVE}, 1")
    p(f"v_and_b32 v{VT}, 15, v{LANE}\ns_lshl_b32 s82, s{S_WAVE}, 5\nv_add_u32 v{VT}, s82, v{VT}")
    p(f"v_lshrrev_b32 v{VT+1}, 4, v{LANE}\nv_lshlrev_b32 v{VT+1}, 3, v{VT+1}")
    p(f"v_mul_u32_u24 v{A_PW}, 136, v{VT}\nv_add_u32 v{A_PW}, v{A_PW}, v{VT+1}")
    p(f"v_mul_u32_u24 v{A_VW}, 72, v{VT}\nv_add_u32 v{A_VW}, v{A_VW}, v{VT+1}")
    p(f"v_lshrrev_b32 v{VT}, 2, v{LANE}\nv_and_b32 v{VT+1}, 3, v{LANE}\nv_lshlrev_b32 v{VT+1}, 3, v{VT+1}")
    p(f"s_mul_i32 s82, s80, 17408\ns_lshl_b32 s83, s81, 6\ns_add_u32 s82, s82, s83")
    p(f"v_mul_u32_u24 v{A_PR}, 136, v{VT}\nv_add_u32 v{A_PR}, v{A_PR}, v{VT+1}\nv_add_u32 v{A_PR}, s82, v{A_PR}")
    p(f"s_mul_i32 s82, s80, 9216")
    p(f"v_mul_u32_u24 v{A_VR}, 72, v{VT}\nv_add_u32 v{A_VR}, v{A_VR}, v{VT+1}\nv_add_u32 v{A_VR}, s82, v{A_VR}")
    p(f"v_lshl_add_u32 v{A_WR}, v{VT}, 6, v{VT+1}\nv_add_u32 v{A_WR}, {L_WPH}, v{A_WR}")
    ONES, SEL = 116, 120
    for j in range(4): p(f"v_mov_b32 v{ONES+j}, 0x3f803f80")
    p(f"v_bfe_u32 v{VT}, v{LANE}, 2, 2\nv_lshrrev_b32 v{VT+1}, 4, v{LANE}")
    p(f"v_cmp_eq_u32 vcc, v{VT}, v{VT+1}")
    p(f"v_and_b32 v{VT}, 1, v{LANE}\nv_lshlrev_b32 v{VT}, 4, v{VT}\nv_mov_b32 v{VT+1}, 0x3f80\nv_lshlrev_b32 v{VT+1}, v{VT}, v{VT+1}")
    p(f"v_cndmask_b32 v{VT+1}, 0, v{VT+1}, vcc")
    p(f"v_and_b32 v{VT}, 2, v{LANE}\nv_cmp_eq_u32 vcc, 0, v{VT}")
    for j in (0, 1, 4, 5): p(f"v_mov_b32 v{SEL+j}, 0")
    p(f"v_cndmask_b32 v{SEL+2}, 0, v{VT+1}, vcc\nv_cndmask_b32 v{SEL+3}, v{VT+1}, 0, vcc")
    p(f"s_mov_b32 s94, {LOG2E!r}\ns_mov_b32 s95, {LOG2E!r}")
    p(f"s_lshl_b32 s84, s{S_HP}, 12\ns_lshl_b32 s85, s{S_WAVE}, 10\ns_add_u32 s84, s84, s85\ns_add_u32 s85, s85, {L_WPH}")
    c.pre_loop_txt = p.L
    c.late = {4: ["s_mov_b32 m0, s85", f"buffer_load_dwordx4 v{L16}, {sr(SRD_A,4)}, s84 offen lds"]}
    if opt.get("cpf", 1): c.late[22] = code_prefetch_txt(k.name, L16, 254, 80)
    ml = modb_loads(S_MB, 115, 109)
    ms = opt.get("modb_steps", [16] * 8)
    if opt.get("modb_front", 0):
        lb = k.label("skw0")
        c.late.setdefault(ms[0], []).append(T("\n".join([f"s_cmp_lg_u32 s{S_WAVE}, 0", f"s_cbranch_scc1 {lb}"] + [x for g in ml for x in g] + [f"{lb}:"])))
        ml = []
    else:
        for st_, g in zip(ms, ml): c.late.setdefault(st_, []).extend(g)
        ml = ml[len(ms):]
    c.last_reads = [f"ds_read_b64_tr_b16 {ar(A_PH+(hh*2+fb)*4+2*r,2)}, v{A_WR} offset:{hh*2048+r*1024+fb*32}" for hh in range(2) for fb in range(2) for r in range(2)]
    c.run(k)
    k.stamp("g1 loop done")
    A = lambda b, t: (b * 2 + t) * 4
    BF, P1, P2, MX, MN, EK = 126, 142, 174, 206, 214, 222
    groups = [(hh, t) for hh in range(2) for t in range(2)]
    def fm_part1(seg):
        for g, (hh, t) in enumerate(groups):
            for db in range(2):
                a = A(seg * 4 + hh * 2 + db, t)
                k(f"v_cvt_pk_bf16_f32 v{BF+g*4+db*2}, v{a}, v{a+1}\nv_cvt_pk_bf16_f32 v{BF+g*4+db*2+1}, v{a+2}, v{a+3}")
        k("s_nop 1")
        for g, (hh, t) in enumerate(groups):
            for fb in range(2):
                k(f"{MF} {vr(P1+g*8+fb*4,4)}, {ar(A_PH+(hh*2+fb)*4,4)}, {vr(BF+g*4,4)}, 0")
    def fm_part2():
        for op3, op2, M in (("v_max3_f32", "v_max_f32", MX), ("v_min3_f32", "v_min_f32", MN)):
            for g in range(4):
                b = P1 + g * 8
                k(f"{op3} v{M+2*g}, v{b}, v{b+1}, v{b+2}\n{op3} v{M+2*g}, v{M+2*g}, v{b+3}, v{b+4}\n{op3} v{M+2*g}, v{M+2*g}, v{b+5}, v{b+6}\n{op2} v{M+2*g}, v{M+2*g}, v{b+7}")
            treduce4(k, op2, [M + 2 * g for g in range(4)])
        for g in range(4):
            k(f"v_mul_f32 v{MX+2*g}, {-LOG2E!r}, v{MX+2*g}\nv_mul_f32 v{MN+2*g}, {LOG2E!r}, v{MN+2*g}")
    def fm_part3(E):
        for g in range(4):
            for j in range(4):
                b = g * 8 + 2 * j
                k(f"v_pk_fma_f32 {vr(P2+b,2)}, {vr(P1+b,2)}, s[94:95], {vr(MN+2*g,2)} op_sel_hi:[1,1,0] neg_lo:[1,0,0] neg_hi:[1,0,0]")
                k(f"v_pk_fma_f32 {vr(P1+b,2)}, {vr(P1+b,2)}, s[94:95], {vr(MX+2*g,2)} op_sel_hi:[1,1,0]")
            for j in range(8): k(f"v_exp_f32 v{P1+g*8+j}, v{P1+g*8+j}")
            for j in range(8): k(f"v_exp_f32 v{P2+g*8+j}, v{P2+g*8+j}")
            k("s_nop 0")
            for sg, PP in enumerate((P1, P2)):
                for j in range(4): k(f"v_cvt_pk_bf16_f32 v{E+(g*2+sg)*4+j}, v{PP+g*8+2*j}, v{PP+g*8+2*j+1}")
    for g in ml:
        for x in g: k(x)
    k("s_waitcnt lgkmcnt(0)\ns_nop 7")
    fm_part1(1)
    k("s_barrier")
    mark0 = len(k.L)
    for g, (hh, t) in enumerate(groups):
        for db in range(2):
            a = A(8 + hh * 2 + db, t)
            k(f"v_cvt_pk_bf16_f32 v{a}, v{a}, v{a+1}\nv_cvt_pk_bf16_f32 v{a+1}, v{a+2}, v{a+3}")
            k(f"ds_write_b64 v{A_VW}, {vr(a,2)} offset:{VV + hh*9216 + t*16*72 + db*32}")
    fm_part2()
    fm_part3(EK)
    SM = 32
    k("s_nop 1")
    for i in range(8): k(f"{MF} {vr(SM+4*i,4)}, {vr(ONES,4)}, {vr(EK+4*i,4)}, 0")
    k("s_nop 7")
    for i in range(8): k(f"v_rcp_f32 v{SM+4*i}, v{SM+4*i}")
    for g, (hh, t) in enumerate(groups):
        for sg, PP in enumerate((P1, P2)):
            for j in range(4):
                k(f"v_pk_mul_f32 {vr(PP+g*8+2*j,2)}, {vr(PP+g*8+2*j,2)}, {vr(SM+(g*2+sg)*4,2)} op_sel_hi:[1,0]")
            for fb in range(2):
                b = PP + g * 8 + fb * 4
                k(f"v_cvt_pk_bf16_f32 v{b}, v{b}, v{b+1}\nv_cvt_pk_bf16_f32 v{b+1}, v{b+2}, v{b+3}")
                k(f"ds_write_b64 v{A_PW}, {vr(b,2)} offset:{PHK + hh*17408 + t*16*136 + sg*64 + fb*32}")
    sprinkle(k, mark0, g3_early_units(k.g3, opt.get("g3_e1", 14), 254))
    k("s_waitcnt lgkmcnt(0)\ns_barrier")
    for s_ in range(4):
        for r in range(2):
            for fb in range(2): k(f"ds_read_b64_tr_b16 {ar(s_*16+fb*4+2*r,2)}, v{A_PR} offset:{PHK + (32*s_+16*r)*136 + fb*32}")
            for db in range(2): k(f"ds_read_b64_tr_b16 {ar(s_*16+8+db*4+2*r,2)}, v{A_VR} offset:{VV + (32*s_+16*r)*72 + db*32}")
    fm_part1(0)
    KV, ZZ = 64, 80
    for s_ in range(4):
        k(f"s_waitcnt lgkmcnt({min(15, 24 - 8*s_)})")
        for fb in range(2):
            for db in range(2):
                d = vr(KV + (db * 2 + fb) * 4, 4)
                k(f"{MF} {d}, {ar(s_*16+fb*4,4)}, {ar(s_*16+8+db*4,4)}, {'0' if s_ == 0 else d}")
            d = vr(ZZ + fb * 4, 4)
            k(f"{MF} {d}, {ar(s_*16+fb*4,4)}, {vr(ONES,4)}, {'0' if s_ == 0 else d}")
    k(f"s_lshl_b32 s82, s{S_HP}, 2\ns_add_u32 s82, s82, s{S_WAVE}")
    k("s_lshl_b32 s83, s82, 15")
    k(f"s_lshl_b32 s84, s{S_RB1}, 10\ns_add_u32 s84, s84, s83\ns_add_u32 s85, s84, 16384")
    k("s_lshl_b32 s90, s82, 11")
    k(f"s_lshl_b32 s91, s82, {FS+4}\ns_add_u32 s91, s91, {F_KV}\ns_lshl_b32 s92, s{S_RB1}, {FS}\ns_add_u32 s92, s92, s91")
    k(f"v_and_b32 v{VT}, 15, v{LANE}\nv_cmp_eq_u32 vcc, s{S_RB1}, v{VT}")
    k("s_nop 2")
    for db in range(2):
        for j in range(4): k(f"v_cvt_pk_bf16_f32 v{88+db*4+j}, v{KV+db*8+2*j}, v{KV+db*8+2*j+1}")
    k(f"buffer_store_dwordx4 {vr(88,4)}, v{L16}, {sr(SRD_B,4)}, s84 offen sc1")
    k(f"buffer_store_dwordx4 {vr(92,4)}, v{L16}, {sr(SRD_B,4)}, s85 offen sc1")
    k("s_and_saveexec_b64 s[96:97], vcc")
    k(f"buffer_store_dwordx4 {vr(ZZ,4)}, v{L16}, {sr(SRD_C,4)}, s90 offen sc1")
    k(f"buffer_store_dwordx4 {vr(ZZ+4,4)}, v{L16}, {sr(SRD_C,4)}, s90 offen offset:1024 sc1")
    k("s_mov_b64 exec, s[96:97]")
    k.stamp("kv stored")
    fm_part2()
    publish(k, 92, VT + 1)
    k.stamp("kv published")
    k("s_mov_b32 s93, s83")
    g2 = setup_gemm24(k, 2, opt, 96)
    k("s_mov_b32 s83, s93")
    g2.prefetch(k, 8)
    fm_part3(EK)
    k(f"v_lshlrev_b32 v{VT}, {FS}, v{VT}")
    wait_flags(k, [(VT, 91, 1)], VT + 1)
    k.stamp("kv ready")
    k(f"buffer_load_dwordx4 {vr(ZZ,4)}, v{L16}, {sr(SRD_C,4)}, s90 offen sc1")
    k(f"buffer_load_dwordx4 {vr(ZZ+4,4)}, v{L16}, {sr(SRD_C,4)}, s90 offen offset:1024 sc1")
    for i in range(32):
        if i % 4 == 0 and i: k("s_add_u32 s83, s83, 4096")
        k(f"buffer_load_dwordx4 {ar(4*i,4)}, v{L16}, {sr(SRD_B,4)}, s83 offen offset:{(i%4)*1024} sc1")
    srd(k, SRD_T, P_WS, S * D * 2, WS_O)
    k("s_waitcnt vmcnt(32)")
    for sh in (8, 4, 2, 1):
        for j in range(8): k(f"v_add_f32_dpp v{ZZ+j}, v{ZZ+j}, v{ZZ+j} row_ror:{sh} row_mask:0xf bank_mask:0xf")
    k(f"v_and_b32 v{VT+1}, 1, v{LANE}\nv_cmp_eq_u32 vcc, 0, v{VT+1}")
    for j in range(4): k(f"v_cvt_pk_bf16_f32 v{BF+8+j}, v{ZZ+2*j}, v{ZZ+2*j+1}")
    for j in range(4): k(f"v_cndmask_b32 v{BF+8+j}, v{ONES}, v{BF+8+j}, vcc")
    for i in range(32):
        db, pp = divmod(i, 16)
        if i % 2 == 0: k(f"s_waitcnt vmcnt({30 - i})")
        for fb in range(2):
            d = vr(KV + (db * 2 + fb) * 4, 4)
            k(f"{MF} {d}, {vr(SEL + (2 if fb == 0 else 0), 4)}, {ar(4*i,4)}, {'0' if pp == 0 else d}")
    k(f"s_mul_i32 s82, s{S_WAVE}, 3072\ns_add_u32 s82, s82, {SH}")
    k(f"v_add_u32 v{VT+1}, s82, v{L16}\nv_add_u32 v{VT+2}, {SH}, v{L16}")
    k("s_nop 6")
    for db in range(2):
        for j in range(4): k(f"v_cvt_pk_bf16_f32 v{BF+db*4+j}, v{KV+db*8+2*j}, v{KV+db*8+2*j+1}")
    for j in range(3): k(f"ds_write_b128 v{VT+1}, {vr(BF+4*j,4)} offset:{j*1024}")
    k("s_waitcnt lgkmcnt(0)\ns_barrier")
    for i in range(12): k(f"ds_read_b128 {ar(4*i,4)}, v{VT+2} offset:{i*1024}")
    k(f"s_lshl_b32 s82, s{S_RB1}, 3\ns_lshl_b32 s83, s{S_WAVE}, 1\ns_add_u32 s82, s82, s83\ns_lshl_b32 s82, s82, 15")
    k(f"s_lshl_b32 s83, s{S_HP}, 11\ns_add_u32 s82, s82, s83\ns_add_u32 s83, s82, 0x8000")
    k(f"s_lshl_b32 s84, s{S_RB1}, 2\ns_add_u32 s84, s84, s{S_WAVE}\ns_lshl_b32 s84, s84, {FS+4}\ns_lshl_b32 s85, s{S_HP}, {FS}\ns_add_u32 s84, s84, s85\ns_add_u32 s84, s84, {F_O}")
    k("s_waitcnt lgkmcnt(0)")
    for g, (hh, t) in enumerate(groups):
        for sg in range(2):
            for j in range(3):
                k(f"{MF} {vr((g*2+sg)*12+4*j,4)}, {ar(((hh*2+sg)*3+j)*4,4)}, {vr(EK+(g*2+sg)*4,4)}, 0")
    k("s_nop 7")
    for g, (hh, t) in enumerate(groups):
        n1, n2 = g * 24, g * 24 + 12
        D1, S1, D2, S2 = n1 + 8, n1 + 9, n2 + 8, n2 + 9
        k(f"v_mul_f32 v{n1+10}, v{S1}, v{S2}")
        k(f"v_mul_f32 v{n1+10}, 0x358637bd, v{n1+10}")
        k(f"v_fmac_f32 v{n1+10}, v{D1}, v{S2}\nv_fmac_f32 v{n1+10}, v{D2}, v{S1}")
        k(f"v_rcp_f32 v{n1+10}, v{n1+10}")
        k("s_nop 0")
        k(f"v_mul_f32 v{D1}, v{S2}, v{n1+10}\nv_mul_f32 v{D2}, v{S1}, v{n1+10}")
        for j in range(4): k(f"v_pk_mul_f32 {vr(n1+2*j,2)}, {vr(n1+2*j,2)}, {vr(D1,2)} op_sel_hi:[1,0]")
        for j in range(4): k(f"v_pk_fma_f32 {vr(n1+2*j,2)}, {vr(n2+2*j,2)}, {vr(D2,2)}, {vr(n1+2*j,2)} op_sel_hi:[1,0,1]")
        for j in range(4): k(f"v_cvt_pk_bf16_f32 v{n2+j}, v{n1+2*j}, v{n1+2*j+1}")
        k(f"buffer_store_dwordx4 {vr(n2,4)}, v{L16}, {sr(SRD_T,4)}, s{82+t} offen offset:{hh*1024} sc1")
    k.stamp("o stored")
    CU, AU, WW, TT = 128, 144, 152, 156
    for i in range(8): k(f"v_accvgpr_read_b32 v{CU+2*i}, a{A_UT+32+i}")
    silu_block(k, [CU + 2 * i for i in range(8)])
    mko = len(k.L)
    g2.V_X = 48
    srd(k, SRD_A, P_X, S * D * 2)
    V_XA = 47
    k(f"v_lshrrev_b32 v{VT+1}, 4, v{LANE}")
    k(f"v_and_b32 v{VT+2}, 15, v{LANE}\nv_lshlrev_b32 v{VT+2}, 11, v{VT+2}\nv_lshl_add_u32 v{V_XA}, v{VT+1}, 3, v{VT+2}")
    k(f"s_lshl_b32 s82, s{S_RB2}, 3\ns_lshl_b32 s83, s{S_WAVE}, 1\ns_add_u32 s82, s82, s83\ns_lshl_b32 s82, s82, 15\ns_lshl_b32 s83, s{S_NT}, 7\ns_add_u32 s82, s82, s83\ns_add_u32 s83, s82, 32768")
    for t in range(2):
        for b in range(4):
            k(f"buffer_load_dwordx2 {vr(g2.V_X+(t*4+b)*2,2)}, v{V_XA}, {sr(SRD_A,4)}, s{82+t} offen offset:{b*32}")
    publish(k, 84, VT + 2, mko)
    k.stamp("o published")
    mark1 = len(k.L)
    for j in range(8): k(f"v_mov_b32 v{AU+j}, 0")
    for i in range(8):
        for d in range(4): k(f"v_accvgpr_read_b32 v{WW+d}, a{A_UT+4*i+d}")
        for d in range(4):
            k(f"v_lshlrev_b32 v{TT}, 16, v{WW+d}\nv_and_b32 v{TT+1}, 0xffff0000, v{WW+d}")
            k(f"v_pk_fma_f32 {vr(AU+2*d,2)}, {vr(TT,2)}, {vr(CU+2*i,2)}, {vr(AU+2*d,2)} op_sel_hi:[1,0,1]")
    k("s_nop 1")
    for j in range(4): k(f"v_permlane32_swap_b32 v{AU+j}, v{AU+j+4}")
    k("s_nop 1")
    for j in range(4): k(f"v_add_f32 v{AU+j}, v{AU+j}, v{AU+j+4}")
    k("s_nop 1")
    for j in range(2): k(f"v_permlane16_swap_b32 v{AU+j}, v{AU+j+2}")
    k("s_nop 1")
    for j in range(2): k(f"v_add_f32 v{AU+j}, v{AU+j}, v{AU+j+2}")
    k("s_nop 1")
    for j in range(2): k(f"v_add_f32_dpp v{AU+j}, v{AU+j}, v{AU+j} row_ror:8 row_mask:0xf bank_mask:0xf")
    sprinkle(k, mark1, g3_early_units(k.g3, opt.get("g3_e2", 7), 254), skip=0)
    k(f"v_and_b32 v{TT}, 7, v{LANE}\nv_lshlrev_b32 v{TT}, 5, v{TT}\nv_lshrrev_b32 v{TT+1}, 5, v{LANE}\nv_lshl_add_u32 v{TT}, v{TT+1}, 4, v{TT}")
    k(f"v_bfe_u32 v{TT+1}, v{LANE}, 4, 1\nv_lshl_add_u32 v{TT}, v{TT+1}, 3, v{TT}")
    srd(k, SRD_D, P_WS, MP_BYTES, WS_MODP)
    k(f"v_or_b32 v{AU}, 1, v{AU}\nv_or_b32 v{AU+1}, 1, v{AU+1}")
    k(f"buffer_store_dwordx2 {vr(AU,2)}, v{TT}, {sr(SRD_D,4)}, s{S_MO} offen sc1")
    return g2

A_PARK = 224
S3_SRD, S3_WB, S3_KW = 64, 68, 69
def setup_gemm3_early(k, opt, LANE, VT):
    c = Sched(); common_gemm(c)
    NS, R = 4, 8
    STAGE = 28672
    V_RD, V_DMA, V_TOK = 224, 226, 233
    c.V_RD, c.V_DMA, c.V_TOK, c.LANE, c.L16, c.VT = V_RD, V_DMA, V_TOK, 237, 238, 248
    c.srd_w, c.s_wbase, c.s_kw = S3_SRD, S3_WB, S3_KW
    order(c, k, opt, 'g3', ['win', [4, 4, 8], 0])
    k(f"s_lshr_b32 s80, s{S_WAVE}, 1\ns_and_b32 s81, s{S_WAVE}, 1")
    k(f"s_mul_i32 s83, s80, {32*7168}\ns_mul_i32 s{S_TMP}, s{S_FT}, 224\ns_add_u32 s83, s83, s{S_TMP}")
    for i in range(7):
        k(f"v_add_u32 v{VT+2}, {i*64}, v{LANE}")
        k(f"v_mul_u32_u24 v{VT+3}, 4682, v{VT+2}")
        k(f"v_lshrrev_b32 v{VT+3}, 16, v{VT+3}")
        k(f"v_mul_u32_u24 v{VT+4}, 14, v{VT+3}")
        k(f"v_sub_u32 v{VT+4}, v{VT+2}, v{VT+4}")
        k(f"v_mul_u32_u24 v{VT+3}, 7168, v{VT+3}")
        k(f"v_lshl_add_u32 v{VT+3}, v{VT+4}, 4, v{VT+3}")
        k(f"v_add_u32 v{VT+3}, s83, v{VT+3}")
        k(f"v_accvgpr_write_b32 a{A_PARK+i}, v{VT+3}")
    k(f"s_mul_i32 s{S3_WB}, s81, 14336\ns_mul_i32 s82, s80, 7168\ns_add_u32 s{S3_WB}, s{S3_WB}, s82")
    k(f"s_cmp_eq_u32 s81, 0\ns_cselect_b32 s{S3_SRD}, s{P_W1}, s{P_W3}\ns_cselect_b32 s{S3_SRD+1}, s{P_W1+1}, s{P_W3+1}")
    k(f"s_mov_b32 s{S3_SRD+2}, {D*F*2}\ns_mov_b32 s{S3_SRD+3}, 0x20000")
    c.NB, c.TB, c.KS, c.SPK, c.KT, c.NS, c.R = 14, 4, 1, 2, 16, NS, R
    c.acc = lambda b, t: vr((b * 4 + t) * 4, 4)
    c.tf = lambda slot, ks, t: 112 + (slot * 4 + t) * 4
    ph = lambda sl: 3 - sl
    c.rd = lambda sl, b, sub, r: (V_RD + ph(sl) // 2, (ph(sl) % 2) * STAGE + (b % 2) * 14336 + (32 * sub + 16 * r) * 224 + 32 * (b // 2))
    c.slot_addr = lambda sl: ph(sl) * STAGE
    c.dma = [(V_DMA + i, i * 1024, 0) for i in range(7)]
    c.v_tok = [V_TOK + t for t in range(4)]
    c.w_stride = 64 * 7168
    c.drop = opt.get("g3_drop", ())
    c.pro_units, c.ramp_rate, c.read_margin = opt.get("g3_pro", 12), (lambda st: opt.get("g3_ramp", 12) if st < 6 else 8), 8
    c.lookahead = opt.get("g3_la", 4)
    std_sched(c)
    TL = c.TL = opt.get("g3_tail", 0)
    if TL:
        tail = c.steps[32 - TL:]
        c.steps = c.steps[:32 - TL] + [dict(st, frags=st["frags"][:8]) for st in tail] + [dict(st, frags=st["frags"][8:]) for st in tail]
    return c
def g3_early_units(c, n, vtmp):
    out = []
    for j in range(n):
        t = c.prefetch_txt(1)
        i = (c.pre_dma - 1) % 7
        ld = t[-1].replace(f"v{c.V_DMA+i},", f"v{vtmp},")
        out.append(t[:-1] + [f"v_accvgpr_read_b32 v{vtmp}, a{A_PARK+i}", ld])
    return out
def setup_gemm3_late(k, c):
    V_RD, V_DMA, V_TOK, LANE, L16, VT = c.V_RD, c.V_DMA, c.V_TOK, c.LANE, c.L16, c.VT
    lane_id(k, LANE)
    k(f"v_lshlrev_b32 v{L16}, 4, v{LANE}")
    for i in range(7): k(f"v_accvgpr_read_b32 v{V_DMA+i}, a{A_PARK+i}")
    k(f"v_lshrrev_b32 v{VT+3}, 2, v{LANE}\nv_mul_u32_u24 v{VT+3}, 224, v{VT+3}")
    k(f"v_and_b32 v{VT+4}, 3, v{LANE}\nv_lshl_add_u32 v{V_RD}, v{VT+4}, 3, v{VT+3}")
    k(f"v_add_u32 v{V_RD+1}, {2*28672}, v{V_RD}")
    k(f"s_lshl_b32 s82, s{S_RB3}, 4\ns_lshl_b32 s83, s{S_WAVE}, 2\ns_add_u32 s82, s82, s83\ns_lshl_b32 s82, s82, 15")
    k(f"v_add_u32 v{V_TOK}, s82, v{L16}")
    for t in range(1, 4): k(f"v_add_u32 v{V_TOK+t}, {t*0x8000}, v{V_TOK}")

def sprinkle(k, mark, groups, skip=4):
    if not groups: return
    seg = k.L[mark:]
    stepn = max(1, (len(seg) - skip) // len(groups))
    out, q = [], list(groups)
    for i, x in enumerate(seg):
        out.append(x)
        if q and i >= skip and (i - skip) % stepn == 0:
            assert not x.startswith("s_cmp") and not x.startswith("s_and_saveexec")
            out += q.pop(0)
    for g in q: out += g
    k.L[mark:] = out

A_X1 = 240
def phase_gemm2(k, c, opt):
    LANE, L16 = c.LANE, c.L16
    VT = 40
    k(f"v_and_b32 v252, 15, v{LANE}\nv_lshlrev_b32 v252, {FS}, v252")
    k(f"s_lshl_b32 s84, s{S_RB2}, 2\ns_add_u32 s84, s84, s{S_WAVE}\ns_lshl_b32 s84, s84, {FS+4}\ns_add_u32 s85, s84, {F_O}")
    if c.hs:
        k(f"s_add_u32 s94, s85, {F_O2 - F_O}")
        staged_wait(k, c, opt.get("g2_T", 5), 252, 85, 253, lambda sp, st: [f"s_lshl_b32 s{st}, s{sp}, 1", f"s_lshl_b32 s{st}, 3, s{st}"], pub=(95, 26))
        add_gate(k, c, 8, f"buffer_load_dword v253, v252, {sr(SRD_F,4)}, s94 offen sc1", 253)
    else:
        staged_wait(k, c, opt.get("g2_T", 6), 252, 85, 253, one_prod)
    k.stamp("o ready")
    V_G, V_C, V_S, V_GA = 64, 80, 136, 44
    p = Txt()
    srd(p, SRD_A, P_WS, S * D * 2, WS_Y)
    srd(p, SRD_B, P_WS, S * 128, WS_STAT)
    srd(p, SRD_D, P_WS, MP_BYTES, WS_MODP)
    p(f"v_lshrrev_b32 v{V_GA}, 4, v{LANE}\nv_lshlrev_b32 v{V_GA}, 4, v{V_GA}\nv_add_u32 v{V_GA}, {L_MV}, v{V_GA}")
    p(f"s_lshl_b32 s86, s{S_RB2}, 3\ns_lshl_b32 s87, s{S_WAVE}, 1\ns_add_u32 s86, s86, s87")
    p(f"s_lshl_b32 s88, s86, 15\ns_lshl_b32 s87, s{S_NT}, 11\ns_add_u32 s88, s88, s87\ns_add_u32 s89, s88, 32768")
    p(f"s_lshl_b32 s87, s{S_NT}, {FS}\ns_add_u32 s84, s84, s87\ns_add_u32 s84, s84, {F_Y}")
    p(f"s_lshl_b32 s91, s86, 11\ns_lshl_b32 s90, s{S_NT}, 8\ns_add_u32 s90, s90, s91")
    p(f"s_lshl_b32 s92, s{S_WAVE}, 16\ns_lshl_b32 s93, s{S_NT}, 12\ns_add_u32 s92, s92, s93\ns_add_u32 s92, s92, {MP_B}")
    p(f"v_lshlrev_b32 v{VT}, 2, v{LANE}")
    c.pre_loop_txt = p.L
    c.late = {}
    if opt.get("cpf", 1): c.late[6] = code_prefetch_txt(k.name, L16, 254, 80)
    m = Txt(); m.label = k.label
    MB_ = 160
    mld = [f"buffer_load_dword v{MB_+j}, v{VT}, {sr(SRD_D,4)}, s92 offen offset:{j*256} sc1" for j in range(16)]
    okm = k.label("mok")
    m(f"v_min_u32 v{MB_+16}, v{MB_}, v{MB_+1}")
    for j in range(2, 16, 2): m(f"v_min3_u32 v{MB_+16}, v{MB_+16}, v{MB_+j}, v{MB_+j+1}")
    m(f"v_cmp_eq_u32 vcc, 0, v{MB_+16}\ns_cmp_eq_u64 vcc, 0\ns_cbranch_scc1 {okm}")
    spin(m, mld, [MB_ + j for j in range(16)], MB_ + 16)
    m(f"{okm}:")
    mchk = "\n".join(m.L); m.L = []
    for st in (4, 2, 1):
        for j in range(st): m(f"v_pk_add_f32 {vr(MB_+2*j,2)}, {vr(MB_+2*j,2)}, {vr(MB_+2*(j+st),2)}")
    m(f"v_add_f32 v{MB_}, v{MB_}, v{MB_+1}")
    round_bf16(m, MB_)
    m(f"v_add_f32 v{MB_+1}, 1.0, v{MB_}"); round_bf16(m, MB_ + 1)
    m(f"s_cmp_eq_u32 s{S_WAVE}, 2\ns_cselect_b64 vcc, -1, 0")
    m(f"v_cndmask_b32 v{MB_}, v{MB_}, v{MB_+1}, vcc")
    m(f"s_lshl_b32 s92, s{S_WAVE}, 8\ns_add_u32 s92, s92, {L_MV}\nv_add_u32 v{VT}, s92, v{VT}")
    m(f"ds_write_b32 v{VT}, v{MB_}")
    ms_ = opt.get("g2_modstep", 13)
    c.late.setdefault(ms_ - 2, []).extend([VM(x, ("mv", 0)) for x in mld])
    k_ = [x for x in m.L]
    i_ = next(i for i, x in enumerate(k_) if x.startswith("s_cmp_eq_u32"))
    c.late[ms_] = [WVM([("mv", 0)]), T(mchk)] + k_[:i_] + ["\n".join(k_[i_:])]
    ne = opt.get("g3_e3", 7 if opt.get("split", 1) else 0)
    eu = [x for g in g3_early_units(k.g3, ne, 254) for x in g]
    c.late.setdefault(14, []).extend(eu[:len(eu)//2 // 1]); c.late.setdefault(15, []).extend(eu[len(eu)//2:])
    c.last_reads = ([f"ds_read_b128 {vr(V_G+4*b,4)}, v{V_GA} offset:{b*64}" for b in range(4)] + [f"ds_read_b128 {vr(V_C+4*b,4)}, v{V_GA} offset:{512+b*64}" for b in range(4)]
                    + [f"ds_read_b128 {vr(V_S+4*b,4)}, v{V_GA} offset:{256+b*64}" for b in range(4)])
    c.run(k)
    k.stamp("g2 loop done")
    k("s_waitcnt lgkmcnt(0)\ns_nop 7")
    A = lambda b, t: (b * 2 + t) * 4
    XT = 194; V_X = c.V_X
    for t in range(2):
        for b in range(4):
            xr = V_X + (t * 4 + b) * 2
            for h in range(2): k(f"v_lshlrev_b32 v{XT+2*h}, 16, v{xr+h}\nv_and_b32 v{XT+2*h+1}, 0xffff0000, v{xr+h}")
            for h in range(2): k(f"v_pk_fma_f32 {vr(A(b,t)+2*h,2)}, {vr(A(b,t)+2*h,2)}, {vr(V_G+4*b+2*h,2)}, {vr(XT+2*h,2)}")
        PK = XT + 4 + t * 8
        for b in range(4): k(f"v_cvt_pk_bf16_f32 v{PK+2*b}, v{A(b,t)}, v{A(b,t)+1}\nv_cvt_pk_bf16_f32 v{PK+2*b+1}, v{A(b,t)+2}, v{A(b,t)+3}")
        for b in range(4):
            for h in range(2): k(f"v_lshlrev_b32 v{A(b,t)+2*h}, 16, v{PK+2*b+h}\nv_and_b32 v{A(b,t)+2*h+1}, 0xffff0000, v{PK+2*b+h}")
    SU = [XT + 20, XT + 22]; M2 = [XT + 21, XT + 23]; TM = [XT + 24, XT + 25]; AC = [XT, XT + 2]; NM = [XT + 26, XT + 28]; DF = 32
    for t in range(2): k(f"v_pk_add_f32 {vr(AC[t],2)}, {vr(A(0,t),2)}, {vr(A(0,t)+2,2)}")
    for b in range(1, 4):
        for h in range(2):
            for t in range(2): k(f"v_pk_add_f32 {vr(AC[t],2)}, {vr(AC[t],2)}, {vr(A(b,t)+2*h,2)}")
    def allred2(X):
        for sw in ("v_permlane32_swap_b32", "v_permlane16_swap_b32"):
            for t in range(2): k(f"v_mov_b32 v{TM[t]}, v{X[t]}")
            k("s_nop 0")
            for t in range(2): k(f"{sw} v{X[t]}, v{TM[t]}")
            k("s_nop 0")
            for t in range(2): k(f"v_add_f32 v{X[t]}, v{X[t]}, v{TM[t]}")
    for t in range(2): k(f"v_add_f32 v{SU[t]}, v{AC[t]}, v{AC[t]+1}")
    allred2(SU)
    for t in range(2): k(f"v_mul_f32 v{NM[t]}, {-1.0/64!r}, v{SU[t]}\nv_mov_b32 v{AC[t]}, 0\nv_mov_b32 v{AC[t]+1}, 0")
    for b in range(4):
        for h in range(2):
            for t in range(2): k(f"v_pk_add_f32 {vr(DF+2*t,2)}, {vr(A(b,t)+2*h,2)}, {vr(NM[t],2)} op_sel_hi:[1,0]")
            for t in range(2): k(f"v_pk_fma_f32 {vr(AC[t],2)}, {vr(DF+2*t,2)}, {vr(DF+2*t,2)}, {vr(AC[t],2)}")
    for t in range(2): k(f"v_add_f32 v{M2[t]}, v{AC[t]}, v{AC[t]+1}")
    allred2(M2)
    k(f"v_cmp_gt_u32 vcc, 16, v{LANE}")
    k(f"v_lshlrev_b32 v{XT+2}, 3, v{LANE}\nv_lshrrev_b32 v{XT+3}, 4, v{LANE}")
    k(f"v_cndmask_b32 v{XT}, v{SU[1]}, v{SU[0]}, vcc\nv_cndmask_b32 v{XT+1}, v{M2[1]}, v{M2[0]}, vcc")
    k(f"v_and_b32 v45, 0x78, v{XT+2}\nv_lshl_add_u32 v45, v{XT+3}, 10, v45")
    k(f"v_or_b32 v{XT+1}, 1, v{XT+1}")
    k(f"v_cmp_gt_u32 vcc, 32, v{LANE}\ns_and_saveexec_b64 s[96:97], vcc")
    k(f"buffer_store_dwordx2 {vr(XT,2)}, v{XT+2}, {sr(SRD_B,4)}, s90 offen sc1")
    k("s_mov_b64 exec, s[96:97]")
    k.stamp("stat stored")
    for t in range(2):
        for b in range(4):
            for h in range(2): k(f"v_pk_mul_f32 {vr(A(b,t)+2*h,2)}, {vr(A(b,t)+2*h,2)}, {vr(V_C+4*b+2*h,2)}")
    for j in range(16): k(f"v_accvgpr_write_b32 a{A_X1+j}, v{XT+4+j}")
    g3 = k.g3
    setup_gemm3_late(k, g3)
    g3.prefetch(k, opt.get("g3_pre0", 0))
    ST = 48
    spin(k, [f"buffer_load_dwordx2 {vr(ST+t*8+j*2,2)}, v45, {sr(SRD_B,4)}, s91 offen offset:{t*128+j*256} sc1" for t in range(2) for j in range(4)],
         [ST + 2 * j + 1 for j in range(8)], XT)
    k.stamp("stat ready")
    for t in range(2):
        b = ST + t * 8
        k(f"v_add_f32 v{SU[t]}, v{b}, v{b+2}\nv_add_f32 v{TM[t]}, v{b+4}, v{b+6}\nv_add_f32 v{SU[t]}, v{SU[t]}, v{TM[t]}")
        k(f"v_add_f32 v{M2[t]}, v{b+1}, v{b+3}\nv_add_f32 v{TM[t]}, v{b+5}, v{b+7}\nv_add_f32 v{M2[t]}, v{M2[t]}, v{TM[t]}")
    allred2(SU)
    for t in range(2): k(f"v_mul_f32 v{SU[t]}, {-1.0/1024!r}, v{SU[t]}")
    for j in range(4):
        for t in range(2): k(f"v_fmamk_f32 v{ST+t*8+2*j}, v{ST+t*8+2*j}, {1.0/64!r}, v{SU[t]}")
        for t in range(2): k(f"v_mul_f32 v{ST+t*8+2*j}, v{ST+t*8+2*j}, v{ST+t*8+2*j}")
        for t in range(2): k(f"v_fmac_f32 v{M2[t]}, 0x42800000, v{ST+t*8+2*j}")
    allred2(M2)
    for t in range(2): k(f"v_mov_b32 v{TM[t]}, 0x3727c5ac\nv_fmac_f32 v{TM[t]}, {1.0/1024!r}, v{M2[t]}")
    for t in range(2): k(f"v_rsq_f32 v{NM[t]}, v{TM[t]}")
    k("s_nop 0")
    for t in range(2): k(f"v_mul_f32 v{NM[t]+1}, v{SU[t]}, v{NM[t]}")
    for t in range(2):
        YK = ST + t * 8
        for b in range(4):
            for h in range(2): k(f"v_pk_fma_f32 {vr(XT+2*h,2)}, {vr(V_C+4*b+2*h,2)}, {vr(NM[t],2)}, {vr(V_S+4*b+2*h,2)} op_sel:[0,1,0] op_sel_hi:[1,1,1]")
            for h in range(2): k(f"v_pk_fma_f32 {vr(XT+2*h,2)}, {vr(A(b,t)+2*h,2)}, {vr(NM[t],2)}, {vr(XT+2*h,2)} op_sel_hi:[1,0,1]")
            k(f"v_cvt_pk_bf16_f32 v{YK+2*b}, v{XT}, v{XT+1}\nv_cvt_pk_bf16_f32 v{YK+2*b+1}, v{XT+2}, v{XT+3}")
        for s_ in range(2): k(f"buffer_store_dwordx4 {vr(YK+4*s_,4)}, v{L16}, {sr(SRD_A,4)}, s{88+t} offen offset:{s_*1024} sc1")
    publish(k, 84, 40)
    k.stamp("y published")
    g3.prefetch(k, opt.get("g3_pre", 0))
    return g3

def phase_gemm3(k, c, opt):
    LANE, L16, VT = c.LANE, c.L16, c.VT
    NB, TB = 14, 4
    srd(k, SRD_T, P_WS, S * D * 2, WS_Y)
    srd(k, SRD_C, P_WS, S * F * 2, WS_HH)
    k(f"v_and_b32 v{VT}, 31, v{LANE}\nv_lshlrev_b32 v{VT}, {FS}, v{VT}")
    k(f"s_lshl_b32 s84, s{S_RB3}, 2\ns_add_u32 s84, s84, s{S_WAVE}")
    k(f"s_lshl_b32 s85, s84, {FS+5}\ns_add_u32 s85, s85, {F_Y}")
    staged_wait(k, c, opt.get("g3_T", 3), VT, 85, VT + 1, one_prod, dup16=True)
    k.stamp("y ready")
    p = Txt()
    p(f"s_mul_i32 s88, s84, {448*1024}\ns_mul_i32 s92, s{S_FT}, 3584\ns_add_u32 s88, s88, s92")
    for t in range(1, 4): p(f"s_add_u32 s{88+t}, s88, {t*112*1024}")
    p(f"s_lshl_b32 s93, s84, {FS+5}\ns_lshl_b32 s94, s{S_FT}, {FS}\ns_add_u32 s93, s93, s94\ns_add_u32 s94, s93, {F_HB}\ns_add_u32 s93, s93, {F_HH}")
    p(f"s_mov_b32 s86, {-LOG2E!r}\ns_mov_b32 s87, {-LOG2E!r}")
    SB = 241
    p(f"v_lshrrev_b32 v{SB}, 1, v{L16}")
    c.pre_loop_txt = p.L
    if opt.get("cpf", 1):
        for st_ in opt.get("cp3", [6, 22]): c.late.setdefault(st_, []).extend(code_prefetch_txt(k.name, L16, 254, 80, junk="v240"))
    if opt.get("w2touch", 1):
        ws_ = opt.get("w2steps", [16]); per = 56 // len(ws_)
        for j, st_ in enumerate(ws_):
            c.late.setdefault(st_, []).extend([f"s_lshl_b32 s80, s2, 2", f"s_add_u32 s80, s80, s{S_WAVE}", "s_mul_i32 s80, s80, 7168", f"s_add_u32 s80, s80, {j*per*128}",
                      f"v_min_u32 v253, {per-1}, v{LANE}", "v_lshlrev_b32 v253, 7, v253", "v_add_u32 v253, s80, v253",
                      f"global_load_dword v240, v253, s[{P_W2}:{P_W2+1}]"])
    t4 = Txt()
    g4 = setup_gemm4p(t4, opt, 242)
    half = len(t4.L) // 2
    c.late[19] = t4.L[:half]; c.late[20] = t4.L[half:]
    pf = g4.prefetch_txt(4); c.late[29] = pf
    pf = g4.prefetch_txt(4); c.late[30] = pf
    def G(s, t): return ((2 * s) * TB + t) * 4
    def Uu(s, t): return ((2 * s + 1) * TB + t) * 4
    def act(k, slots, t, scalar=False):
        if scalar:
            for s in slots:
                for r in range(4):
                    k(f"v_mul_f32 v{Uu(s,t)+r}, v{G(s,t)+r}, v{Uu(s,t)+r}")
                    k(f"v_mul_f32 v{G(s,t)+r}, s86, v{G(s,t)+r}")
            rs = [(s, r) for s in slots for r in range(4)]
            for i, (s, r) in enumerate(rs): k(f"v_exp_f32 v{G(s,t)+r}, v{G(s,t)+r}")
            for i, (s, r) in enumerate(rs): k(f"v_add_f32 v{G(s,t)+r}, 1.0, v{G(s,t)+r}")
            for i, (s, r) in enumerate(rs): k(f"v_rcp_f32 v{G(s,t)+r}, v{G(s,t)+r}")
            for i, (s, r) in enumerate(rs): k(f"v_mul_f32 v{Uu(s,t)+r}, v{Uu(s,t)+r}, v{G(s,t)+r}")
            return
        for s in slots:
            for h in range(2):
                k(f"v_pk_mul_f32 {vr(Uu(s,t)+2*h,2)}, {vr(G(s,t)+2*h,2)}, {vr(Uu(s,t)+2*h,2)}")
                k(f"v_pk_mul_f32 {vr(G(s,t)+2*h,2)}, {vr(G(s,t)+2*h,2)}, s[86:87]")
        for s in slots:
            for r in range(4): k(f"v_exp_f32 v{G(s,t)+r}, v{G(s,t)+r}")
        for s in slots:
            for h in range(2): k(f"v_pk_add_f32 {vr(G(s,t)+2*h,2)}, {vr(G(s,t)+2*h,2)}, 1.0 op_sel_hi:[1,0]")
        for s in slots:
            for r in range(4): k(f"v_rcp_f32 v{G(s,t)+r}, v{G(s,t)+r}")
        for s in slots:
            for h in range(2): k(f"v_pk_mul_f32 {vr(Uu(s,t)+2*h,2)}, {vr(Uu(s,t)+2*h,2)}, {vr(G(s,t)+2*h,2)}")
    def pair(k, pr, t, scalar=False):
        s0, s1 = 2 * pr, 2 * pr + 1
        act(k, [s0, s1], t, scalar)
        d = G(s0, t)
        k(f"v_cvt_pk_bf16_f32 v{d}, v{Uu(s0,t)}, v{Uu(s0,t)+1}\nv_cvt_pk_bf16_f32 v{d+1}, v{Uu(s0,t)+2}, v{Uu(s0,t)+3}")
        k(f"v_cvt_pk_bf16_f32 v{d+2}, v{Uu(s1,t)}, v{Uu(s1,t)+1}\nv_cvt_pk_bf16_f32 v{d+3}, v{Uu(s1,t)+2}, v{Uu(s1,t)+3}")
        k(f"buffer_store_dwordx4 {vr(d,4)}, v{L16}, {sr(SRD_C,4)}, s{88+t} offen offset:{pr*1024} sc1")
    ea = Txt(); eb = Txt()
    nin = opt.get("g3_nin", 8) if c.TL else 0
    for i, (pr, t) in enumerate([(pr, t) for pr in range(2) for t in range(TB)]):
        if i < nin: pair(ea, pr, t, opt.get("g3_scalar", 0))
        else: pair(eb, pr, t)
    if c.TL:
        nst = opt.get("g3_east", c.TL - 1)
        per = -(-len(ea.L) // nst)
        c.step_extra = lambda st: ea.L[(st - 32) * per:(st - 31) * per] if st >= 32 else []
    c.run(k)
    k.stamp("g3 loop done")
    if not c.TL: k("s_nop 7")
    for x in eb.L: k(x)
    mkA = len(k.L)
    k("s_nop 4\ns_barrier")
    na = opt.get("g3_pubA", 2)
    for t in range(na): pair(k, 2, t)
    publish(k, 93, 252, mkA)
    k.stamp("hA published")
    mark3 = len(k.L)
    for t in range(na, TB): pair(k, 2, t)
    grp = []
    for j in range(8):
        t_ = g4.prefetch_txt(1); grp.append(t_[:-1] + ["s_nop 0", t_[-1]])
    sprinkle(k, mark3, grp)
    for t in range(TB):
        act(k, [6], t)
        d = G(6, t)
        k(f"v_cvt_pk_bf16_f32 v{d}, v{Uu(6,t)}, v{Uu(6,t)+1}\nv_cvt_pk_bf16_f32 v{d+1}, v{Uu(6,t)+2}, v{Uu(6,t)+3}")
        k(f"buffer_store_dwordx2 {vr(d,2)}, v{SB}, {sr(SRD_C,4)}, s{88+t} offen offset:3072 sc1")
    k.stamp("hh stored")
    return g4

def phase_gemm4(k, c, opt):
    LANE, L16 = c.LANE, c.L16
    VT = 40
    srd(k, SRD_T, P_WS, S * F * 2, WS_HH)
    srd(k, SRD_A, P_OUT, S * D * 2)
    k(f"v_and_b32 v{VT}, 31, v{LANE}\nv_lshlrev_b32 v{VT}, 2, v{VT}")
    k(f"s_lshl_b32 s84, s{S_RB2}, 1\ns_lshr_b32 s85, s{S_WAVE}, 1\ns_add_u32 s84, s84, s85\ns_lshl_b32 s84, s84, {FS+5}\ns_add_u32 s84, s84, {F_HH}")
    wait_flags(k, [(VT, 84, 1)], VT + 1)
    k.stamp("hh ready")
    V_G, V_GA, V_XA, V_X = 64, 44, 45, 48
    p = Txt()
    p(f"v_lshrrev_b32 v{VT}, 4, v{LANE}\nv_lshlrev_b32 v{V_GA}, 4, v{VT}\nv_add_u32 v{V_GA}, {L_MV}, v{V_GA}")
    p(f"v_and_b32 v{VT+1}, 15, v{LANE}\nv_lshlrev_b32 v{VT+1}, 11, v{VT+1}")
    p(f"v_and_b32 v{VT+2}, 1, v{VT}\nv_lshl_add_u32 v{VT+1}, v{VT+2}, 5, v{VT+1}")
    p(f"v_lshrrev_b32 v{VT+2}, 1, v{VT}\nv_lshl_add_u32 v{V_XA}, v{VT+2}, 4, v{VT+1}")
    p(f"s_lshl_b32 s86, s{S_RB2}, 3\ns_lshl_b32 s87, s{S_WAVE}, 1\ns_add_u32 s86, s86, s87\ns_lshl_b32 s86, s86, 15\ns_lshl_b32 s87, s{S_NT}, 7\ns_add_u32 s86, s86, s87\ns_add_u32 s87, s86, 32768")
    for j in range(16): p(f"v_accvgpr_read_b32 v{V_X+j}, a{A_X1+j}")
    c.pre_loop_txt = p.L
    c.last_reads = [f"ds_read_b128 {vr(V_G+4*b,4)}, v{V_GA} offset:{768+b*64}" for b in range(4)]
    c.run(k)
    k.stamp("g4 loop done")
    k("s_waitcnt lgkmcnt(0)\ns_nop 7")
    A = lambda b, t: (b * 2 + t) * 4
    XT = 96
    for t in range(2):
        for b in range(4):
            xr = V_X + (t * 4 + b) * 2
            for h in range(2): k(f"v_lshlrev_b32 v{XT+2*h}, 16, v{xr+h}\nv_and_b32 v{XT+2*h+1}, 0xffff0000, v{xr+h}")
            for h in range(2): k(f"v_pk_fma_f32 {vr(A(b,t)+2*h,2)}, {vr(A(b,t)+2*h,2)}, {vr(V_G+4*b+2*h,2)}, {vr(XT+2*h,2)}")
        PK = XT + 4 + t * 8
        for b in range(4): k(f"v_cvt_pk_bf16_f32 v{PK+2*b}, v{A(b,t)}, v{A(b,t)+1}\nv_cvt_pk_bf16_f32 v{PK+2*b+1}, v{A(b,t)+2}, v{A(b,t)+3}")
        k("s_nop 1")
        for s_ in range(2): k(f"v_permlane16_swap_b32 v{PK+4*s_}, v{PK+4*s_+2}\nv_permlane16_swap_b32 v{PK+4*s_+1}, v{PK+4*s_+3}")
        for s_ in range(2): k(f"buffer_store_dwordx4 {vr(PK+4*s_,4)}, v{V_XA}, {sr(SRD_A,4)}, s{86+t} offen offset:{s_*64}")

def build_mega(instr=False, opt=None, name="mega_kernel"):
    opt = opt or {}
    k = Mega(name, 256, 256, LDS_TOTAL, vgpr=256, agpr=256, sgpr=102)
    k.instr = instr; k.names = []; k.only = opt.get("only")
    end = k.label("end")
    far = k.label("go")
    if opt.get("diag2") is not None: k("s_memrealtime s[72:73]")
    k(f"s_cmp_lt_u32 s2, 256\ns_cbranch_scc1 {far}\ns_endpgm\n{far}:")
    if opt.get("fused", 1):
        code_prefetch_setup(k, name)
        k("v_and_b32 v104, 63, v0\nv_lshlrev_b32 v105, 4, v104\nv_lshlrev_b32 v254, 5, v0")
        k("global_load_dword a232, v254, s[100:101]")
        k("s_load_dwordx2 s[96:97], s[0:1], 88")
        if opt.get("dbgout"): k("s_load_dwordx2 s[72:73], s[0:1], 88")
    k("s_load_dwordx8 s[4:11], s[0:1], 0")
    k("s_load_dwordx2 s[12:13], s[0:1], 64")
    k("s_load_dwordx2 s[14:15], s[0:1], 40")
    k("s_load_dwordx4 s[16:19], s[0:1], 48")
    k("s_load_dwordx2 s[98:99], s[0:1], 72")
    k("s_load_dwordx2 s[24:25], s[0:1], 80")
    k("s_load_dwordx2 s[28:29], s[0:1], 96")
    if instr: k(f"v_mov_b32 v{VSTAMP}, 0")
    ids(k)
    k(f"s_lshr_b32 s80, s{S_IDX}, 2\ns_add_u32 s{S_R4}, s80, s{S_IDX}\ns_and_b32 s81, s{S_IDX}, 3\ns_lshl_b32 s81, s81, 1\ns_add_u32 s{S_R8}, s80, s81")
    k(f"s_and_b32 s80, s{S_IDX}, 3\ns_lshl_b32 s{S_FT}, s{S_XCD}, 2\ns_add_u32 s{S_FT}, s{S_FT}, s80\ns_lshr_b32 s{S_RB3}, s{S_IDX}, 2")
    if opt.get("fused", 1):
        for x in code_prefetch_txt(name, 105, 254, 80): k(x)
    k.stamp("start")
    g1 = (phase_front_fused if opt.get("fused", 1) else phase_front)(k, opt, name)
    g2 = (phase_gemm1s if opt.get('split', 1) else phase_gemm1)(k, g1, opt)
    g3 = phase_gemm2(k, g2, opt)
    g4 = phase_gemm3(k, g3, opt)
    (phase_gemm4p if opt.get('g4_pair', 1) else phase_gemm4)(k, g4, opt)
    if opt.get("diag2") is not None:
        lp, sk = k.label("dg"), k.label("dgs")
        if opt["diag2"] >= 0: k(f"s_cmp_lg_u32 s2, {opt['diag2']}\ns_cbranch_scc1 {sk}")
        k(f"{lp}:\ns_memrealtime s[0:1]\ns_waitcnt lgkmcnt(0)\ns_sub_u32 s87, s0, s72\ns_cmp_lt_u32 s87, 10000\ns_cbranch_scc1 {lp}\n{sk}:")
    elif opt.get("diag"):
        a_, b_ = opt["diag"]
        k(f"v_readlane_b32 s84, v{VSTAMP}, 0\nv_readlane_b32 s85, v{VSTAMP}, {a_}\nv_readlane_b32 s86, v{VSTAMP}, {b_}\ns_nop 3")
        k("s_sub_u32 s86, s86, s85\ns_add_u32 s86, s86, 10000")
        lp = k.label("dg")
        k(f"{lp}:\ns_memrealtime s[0:1]\ns_waitcnt lgkmcnt(0)\ns_sub_u32 s87, s0, s84\ns_cmp_lt_u32 s87, s86\ns_cbranch_scc1 {lp}")
    elif instr:
        k("s_waitcnt vmcnt(0)")
        k.stamp("end")
        k(f"s_add_u32 s84, s{P_WS}, {WS_DBG}\ns_addc_u32 s85, s{P_WS+1}, 0\ns_mov_b32 s86, 0x100000\ns_mov_b32 s87, 0x20000")
        k(f"s_lshl_b32 s88, s2, 2\ns_add_u32 s88, s88, s{S_WAVE}\ns_lshl_b32 s88, s88, 8")
        lane_id(k, 1)
        k("v_lshlrev_b32 v1, 2, v1")
        k(f"buffer_store_dword v{VSTAMP}, v1, s[84:87], s88 offen")
        if opt.get("dbgout"):
            sk = k.label("nodbg")
            k(f"s_lshl_b32 s88, s2, 2\ns_add_u32 s88, s88, s{S_WAVE}\ns_cmp_lg_u32 s88, {opt['dbgout']*4}\ns_cbranch_scc1 {sk}")
            k("s_mov_b32 s84, s72\ns_mov_b32 s85, s73\ns_mov_b32 s86, 64\ns_mov_b32 s87, 0x20000")
            k(f"v_readlane_b32 s89, v{VSTAMP}, 0\ns_nop 3\nv_subrev_u32 v2, s89, v{VSTAMP}")
            k("buffer_store_dword v2, v1, s[84:87], 0 offen offset:12")
            k(f"{sk}:")
    k("s_endpgm")
    k(f"{name}_end:")
    return k
```

```python
import sys
from asmlib import *
from gemm import *
from layout import *
LOG2E = 1.4426950408889634
P_X, P_WQKV, P_WPHI, P_WO, P_W1, P_W3, P_W2, P_OUT, P_WS = 4, 6, 8, 10, 14, 16, 18, 24, 28
P_DBG, S_MB, S_MO = 96, 77, 79
P_C, P_WMOD = 12, 98
S_WAVE, S_XCD, S_IDX = 3, 30, 31
SRD_W, SRD_T, SRD_A, SRD_B, SRD_C, SRD_D, SRD_F = 32, 36, 40, 44, 48, 52, 56
S_KW, S_KT, S_WB, S_ROT, S_TMP, S_ROT2 = 60, 62, 76, 77, 78, 79
S_RB1, S_HP, S_RB2, S_NT, S_RB3, S_FT = 26, 27, 26, 27, 22, 23
S_R8, S_R4 = 20, 21
VSTAMP = 255
L_WPH, L_UTC = 110592, 105472
L_UT3, L_MV, L_R2 = 114688, 128000, 129792
LDS_TOTAL = 163584

class Mega(Kernel):
    nst = 0
    only = None
    def stamp(self, name=""):
        if not self.instr: return
        if self.only is not None and not any(name.startswith(o) for o in self.only): return
        if self.only is None and name[:3] in ("kp ", "qp "): return
        self("s_waitcnt lgkmcnt(0)\ns_memrealtime s[0:1]\ns_waitcnt lgkmcnt(0)")
        self(f"v_writelane_b32 v{VSTAMP}, s0, {self.nst}")
        self("s_nop 3\ns_memtime s[0:1]\ns_waitcnt lgkmcnt(0)")
        self(f"v_writelane_b32 v{VSTAMP}, s0, {self.nst + 32}")
        self.names.append(name); self.nst += 1

def lane_id(k, v):
    k(f"v_mbcnt_lo_u32_b32 v{v}, -1, 0\nv_mbcnt_hi_u32_b32 v{v}, -1, v{v}")

def code_prefetch_setup(k, name, s_pc=100):
    lab = k.label("pc")
    k(f"s_getpc_b64 s[{s_pc}:{s_pc+1}]")
    k(f"{lab}:")
    k(f"s_sub_u32 s{s_pc}, s{s_pc}, {lab}-{name}\ns_subb_u32 s{s_pc+1}, s{s_pc+1}, 0")
def code_prefetch_txt(name, v_l16, vt, s_tmp, s_idx=S_IDX, s_wave=S_WAVE, s_pc=100, junk="a232"):
    return [f"s_lshl_b32 s{s_tmp}, s{s_idx}, 2", f"s_add_u32 s{s_tmp}, s{s_tmp}, s{s_wave}", f"s_lshl_b32 s{s_tmp}, s{s_tmp}, 10",
            f"v_add_u32 v{vt}, s{s_tmp}, v{v_l16}", f"v_min_u32 v{vt}, {name}_end-{name}-4, v{vt}",
            f"global_load_dword {junk}, v{vt}, s[{s_pc}:{s_pc+1}]"]

def count_vm(k, mark):
    return sum(1 for x in k.L[mark:] if is_vm(x))
def publish(k, s_off, vt, mark=None):
    k(f"v_mov_b32 v{vt}, 1\nv_mov_b32 v{vt+1}, 0")
    n = 0 if mark is None else count_vm(k, mark)
    assert n < 64
    k(f"s_waitcnt vmcnt({n})")
    k(f"buffer_store_dword v{vt}, v{vt+1}, {sr(SRD_F,4)}, s{s_off} offen sc1")

def spin(k, loads, regs, vt, s_cnt=96):
    top, ok = k.label("poll"), k.label("ok")
    k(f"s_mov_b32 s{s_cnt}, 0")
    k(f"{top}:")
    for x in loads: k(x)
    k("s_waitcnt vmcnt(0)")
    if len(regs) == 1: k(f"v_cmp_eq_u32 vcc, 0, v{regs[0]}")
    else:
        k(f"v_min_u32 v{vt}, v{regs[0]}, v{regs[1]}")
        for x in regs[2:]: k(f"v_min_u32 v{vt}, v{vt}, v{x}")
        k(f"v_cmp_eq_u32 vcc, 0, v{vt}")
    k(f"s_add_u32 s{s_cnt}, s{s_cnt}, 1")
    k(f"s_cmp_eq_u64 vcc, 0\ns_cbranch_scc1 {ok}")
    k(f"s_sleep {SLEEP}\ns_cmp_lt_u32 s{s_cnt}, 0x40000\ns_cbranch_scc1 {top}")
    k(f"{ok}:")

def wait_flags(k, polls, vt, s_cnt=96):
    top, ok = k.label("poll"), k.label("ok")
    k(f"s_mov_b32 s{s_cnt}, 0")
    k(f"{top}:")
    r = vt
    regs = []
    for va, so, ndw in polls:
        if ndw == 4: r = (r + 1) // 2 * 2
        k(f"buffer_load_dword{'x4' if ndw == 4 else ''} {vr(r,ndw)}, v{va}, {sr(SRD_F,4)}, s{so} offen sc1")
        regs += list(range(r, r + ndw)); r += ndw
    k("s_waitcnt vmcnt(0)")
    for x in regs[1:]: k(f"v_min_u32 v{regs[0]}, v{regs[0]}, v{x}")
    k(f"v_cmp_eq_u32 vcc, 0, v{regs[0]}")
    k(f"s_add_u32 s{s_cnt}, s{s_cnt}, 1")
    k(f"s_cmp_eq_u64 vcc, 0\ns_cbranch_scc1 {ok}")
    k(f"s_sleep {SLEEP}\ns_cmp_lt_u32 s{s_cnt}, 0x40000\ns_cbranch_scc1 {top}")
    k(f"{ok}:")

def staged_wait(k, c, T_, v_addr, s_off, vf, prod_of, dup16=False, skip_first=0, s_m=97, pub=None):
    ld = f"buffer_load_dword v{vf}, v{v_addr}, {sr(SRD_F,4)}, s{s_off} offen sc1"
    if T_ is None:
        spin(k, [ld], [vf], 0); return
    k(f"s_mov_b32 s{s_m}, 0")
    for kt in range(skip_first, T_):
        for x in c.pos_txt(80, kt): k(x)
        for x in prod_of(80, 81): k(x)
        k(f"s_or_b32 s{s_m}, s{s_m}, s81")
    if dup16: k(f"s_lshl_b32 s81, s{s_m}, 16\ns_or_b32 s{s_m}, s{s_m}, s81")
    top, ok = k.label("poll"), k.label("ok")
    if pub:
        mk = len(k.L); k(ld); publish(k, pub[0], pub[1], mk)
        k("s_waitcnt vmcnt(1)")
        k(f"v_cmp_eq_u32 vcc, 0, v{vf}\ns_nop 0")
        k(f"s_and_b32 s81, vcc_lo, s{s_m}\ns_cbranch_scc0 {ok}")
    k(f"s_mov_b32 s96, 0\n{top}:")
    k(ld)
    k("s_waitcnt vmcnt(0)")
    k(f"v_cmp_eq_u32 vcc, 0, v{vf}")
    k("s_add_u32 s96, s96, 1")
    k(f"s_and_b32 s81, vcc_lo, s{s_m}\ns_cbranch_scc0 {ok}")
    k(f"s_sleep {SLEEP}\ns_cmp_lt_u32 s96, 0x40000\ns_cbranch_scc1 {top}")
    k(f"{ok}:")
    add_gate(k, c, T_, ld, vf)
def add_gate(k, c, tile, ld, vf):
    m = Txt(); m.label = k.label
    okl = k.label("gok")
    m(f"v_cmp_eq_u32 vcc, 0, v{vf}\ns_cmp_eq_u64 vcc, 0\ns_cbranch_scc1 {okl}")
    spin(m, [ld], [vf], 0)
    m(f"{okl}:")
    c.gates = list(c.gates) + [(tile, [VM(ld, ("gate", tile))], [WVM([("gate", tile)]), T("\n".join(m.L))])]
one_prod = lambda sp, st: [f"s_lshl_b32 s{st}, 1, s{sp}"]

def allreduce_q(k, op, x, tmp):
    k(f"v_mov_b32 v{tmp}, v{x}\ns_nop 1")
    k(f"v_permlane32_swap_b32 v{x}, v{tmp}")
    k(f"s_nop 1\n{op} v{x}, v{x}, v{tmp}")
    k(f"v_mov_b32 v{tmp}, v{x}\ns_nop 1")
    k(f"v_permlane16_swap_b32 v{x}, v{tmp}")
    k(f"s_nop 1\n{op} v{x}, v{x}, v{tmp}")

def treduce4(k, op, A):
    a, b, c, d = A
    k("s_nop 1")
    k(f"v_permlane32_swap_b32 v{a}, v{b}\nv_permlane32_swap_b32 v{c}, v{d}")
    k("s_nop 1")
    k(f"{op} v{a}, v{a}, v{b}\n{op} v{c}, v{c}, v{d}")
    k("s_nop 1")
    k(f"v_permlane16_swap_b32 v{a}, v{c}")
    k("s_nop 1")
    k(f"{op} v{a}, v{a}, v{c}")
    k(f"v_mov_b32 v{c}, v{a}")
    k("s_nop 1")
    k(f"v_permlane16_swap_b32 v{a}, v{c}")
    k("s_nop 1")
    k(f"v_mov_b32 v{b}, v{a}\nv_mov_b32 v{d}, v{c}")
    k("s_nop 1")
    k(f"v_permlane32_swap_b32 v{a}, v{b}\nv_permlane32_swap_b32 v{c}, v{d}")
    k("s_nop 1")

def treduce4x2(k, ops, As):
    A, B = Txt(), Txt()
    treduce4(A, ops[0], As[0]); treduce4(B, ops[1], As[1])
    def split(L):
        out, cur = [], []
        for x in L:
            if x.startswith("s_nop"): out.append(cur); cur = []
            else: cur.append(x)
        out.append(cur); return out
    for a, b in zip(split(A.L), split(B.L)):
        for x in a + b: k(x)
        k("s_nop 0" if len(a) >= 1 else "s_nop 1")

def red8(k, x):
    for m in ("quad_perm:[1,0,3,2]", "quad_perm:[2,3,0,1]", "row_half_mirror"):
        k(f"s_nop 1\nv_add_f32_dpp v{x}, v{x}, v{x} {m} row_mask:0xf bank_mask:0xf")

def round_bf16(k, v):
    k(f"v_cvt_pk_bf16_f32 v{v}, v{v}, v{v}\nv_and_b32 v{v}, 0xffff0000, v{v}")

S_DLA, S_DLB, S_PTMP = 71, 6, 75
def order(c, k, opt, tag, default):
    o = opt.get(tag + "_ord", default)
    c.first_flag = opt.get(tag + "_ff", "")
    c.tag = tag; c.stamp_every = opt.get(tag + "_se", 0)
    c.fine = opt.get(tag + "_fine", opt.get("fine", 0)); c.bar_frac = opt.get("bar_frac", 0.3)
    c.s_rot, c.s_rot2 = S_R8, S_R4
    if o[0] == "lead":
        c.lead_D, c.s_dl = o[1], S_DLA
    else:
        c.wins = win_mask(o[1])
        if o[2]:
            c.s_start = S_HP
            c.s_rot = c.s_rot2 = S_RB3
def common_gemm(c):
    c.srd_w, c.srd_t = SRD_W, SRD_T
    c.s_kw, c.s_kt, c.s_wbase, c.s_ptmp = S_KW, S_KT, S_WB, S_PTMP

def setup_gemm1(k, opt):
    c = Sched(); common_gemm(c)
    NS, R = opt.get("g1_NS", 4), opt.get("g1_R", 4)
    STAGE = 25344
    c.V_RD, c.V_DMA, c.V_TOK, c.LANE, c.L16, c.VT = 96, 98, 102, 104, 105, 106
    V_RD, V_DMA, V_TOK, LANE, L16, VT = c.V_RD, c.V_DMA, c.V_TOK, c.LANE, c.L16, 110
    k(f"v_lshlrev_b32 v{L16}, 4, v{LANE}")
    c.lead_D, c.s_dl = opt.get("D", 0), S_DLA
    if opt.get("uselead", 0): c.lead_init(k, S_R4, 81)
    c.lead_D = None
    order(c, k, opt, "g1", ["win", [8, 8], 0])
    k(f"s_lshr_b32 s80, s{S_WAVE}, 1\ns_and_b32 s81, s{S_WAVE}, 1")
    k(f"v_lshrrev_b32 v{VT+1}, 3, v{LANE}")
    k(f"v_and_b32 v{VT+2}, 4, v{VT+1}")
    k(f"v_bfe_u32 v{VT+3}, v{VT+1}, 1, 1\nv_or_b32 v{VT+2}, v{VT+2}, v{VT+3}")
    k(f"v_and_b32 v{VT+3}, 1, v{VT+1}\nv_lshl_or_b32 v{VT+2}, v{VT+3}, 1, v{VT+2}")
    k(f"v_mul_u32_u24 v{VT+2}, {4*6144}, v{VT+2}")
    k(f"v_and_b32 v{VT+3}, 7, v{LANE}\nv_lshl_add_u32 v{VT+2}, v{VT+3}, 4, v{VT+2}")
    k("s_lshl_b32 s82, s80, 5\ns_lshl_b32 s83, s81, 1\ns_add_u32 s82, s82, s83\ns_mul_i32 s82, s82, 6144")
    k(f"s_lshl_b32 s83, s{S_HP}, 7\ns_add_u32 s82, s82, s83")
    k(f"v_add_u32 v{V_DMA}, s82, v{VT+2}")
    k(f"v_add_u32 v{V_DMA+1}, 6144, v{V_DMA}\nv_add_u32 v{V_DMA+2}, 4096, v{V_DMA}\nv_add_u32 v{V_DMA+3}, {6144+4096}, v{V_DMA}")
    k(f"v_bfe_u32 v{VT+1}, v{LANE}, 2, 2\nv_mul_u32_u24 v{VT+1}, 1056, v{VT+1}")
    k(f"v_lshrrev_b32 v{VT+2}, 5, v{LANE}\nv_lshl_add_u32 v{VT+1}, v{VT+2}, 9, v{VT+1}")
    k(f"v_bfe_u32 v{VT+2}, v{LANE}, 4, 1\nv_lshl_add_u32 v{VT+1}, v{VT+2}, 7, v{VT+1}")
    k(f"v_and_b32 v{VT+3}, 3, v{LANE}\nv_lshl_add_u32 v{V_RD}, v{VT+3}, 3, v{VT+1}")
    k(f"v_add_u32 v{V_RD+1}, {2*STAGE}, v{V_RD}")
    k(f"s_lshl_b32 s82, s{S_RB1}, 3\ns_lshl_b32 s83, s{S_WAVE}, 1\ns_add_u32 s82, s82, s83\ns_lshl_b32 s82, s82, 15")
    k(f"v_add_u32 v{V_TOK}, s82, v{L16}\nv_add_u32 v{V_TOK+1}, 0x8000, v{V_TOK}")
    k(f"s_mul_i32 s{S_WB}, s80, 4224\ns_mul_i32 s82, s81, 2112\ns_add_u32 s{S_WB}, s{S_WB}, s82")
    c.NB, c.TB, c.KS, c.SPK, c.KT, c.NS, c.R = 12, 2, 1, 2, 16, NS, R
    c.acc = lambda b, t: vr((b * 2 + t) * 4, 4)
    c.tf = lambda slot, ks, t: 96 + (slot * 2 + t) * 4
    c.rd = lambda sl, b, sub, r: (V_RD + sl // 2, (sl % 2) * STAGE + (b // 4) * 8448 + sub * 4224 + r * 256 + (b % 4) * 32)
    c.slot_addr = lambda sl: sl * STAGE
    c.dma = [(V_DMA, 0, 0), (V_DMA + 1, 1056, 0), (V_DMA, 8448, 2048), (V_DMA + 1, 8448 + 1056, 2048), (V_DMA + 2, 16896, 0), (V_DMA + 3, 16896 + 1056, 0)]
    c.v_tok = [V_TOK, V_TOK + 1]
    c.w_stride = 64 * 6144
    c.drop = opt.get("g1_drop", ())
    c.pro_units, c.ramp_rate, c.read_margin = opt.get("g1_pro", 6), opt.get("g1_ramp", 6), opt.get("g1_rm", 6)
    std_sched(c)
    return c

def setup_gemm1s(k, opt):
    c = Sched(); common_gemm(c)
    HS = 8448; STAGE = 2 * HS
    c.V_RD, c.V_DMA, c.V_TOK, c.LANE, c.L16, c.VT = 96, 98, 102, 104, 105, 106
    V_RD, V_DMA, V_TOK, LANE, L16, VT = c.V_RD, c.V_DMA, c.V_TOK, c.LANE, c.L16, 110
    k(f"v_lshlrev_b32 v{L16}, 4, v{LANE}")
    order(c, k, opt, "g1", ["win", [8, 8], 0])
    k(f"s_lshr_b32 s80, s{S_WAVE}, 1\ns_and_b32 s81, s{S_WAVE}, 1")
    k(f"v_lshrrev_b32 v{VT+1}, 3, v{LANE}")
    k(f"v_and_b32 v{VT+2}, 4, v{VT+1}")
    k(f"v_bfe_u32 v{VT+3}, v{VT+1}, 1, 1\nv_or_b32 v{VT+2}, v{VT+2}, v{VT+3}")
    k(f"v_and_b32 v{VT+3}, 1, v{VT+1}\nv_lshl_or_b32 v{VT+2}, v{VT+3}, 1, v{VT+2}")
    k(f"v_mul_u32_u24 v{VT+2}, {4*6144}, v{VT+2}")
    k(f"v_and_b32 v{VT+3}, 7, v{LANE}\nv_lshl_add_u32 v{VT+2}, v{VT+3}, 4, v{VT+2}")
    k("s_lshl_b32 s82, s80, 5\ns_lshl_b32 s83, s81, 1\ns_add_u32 s82, s82, s83\ns_mul_i32 s82, s82, 6144")
    k(f"s_lshl_b32 s83, s{S_HP}, 7\ns_add_u32 s82, s82, s83")
    k(f"v_add_u32 v{V_DMA}, s82, v{VT+2}")
    k(f"v_add_u32 v{V_DMA+1}, 6144, v{V_DMA}\nv_add_u32 v{V_DMA+2}, 2048, v{V_DMA}\nv_add_u32 v{V_DMA+3}, {6144+2048}, v{V_DMA}")
    k(f"v_bfe_u32 v{VT+1}, v{LANE}, 2, 2\nv_mul_u32_u24 v{VT+1}, 1056, v{VT+1}")
    k(f"v_lshrrev_b32 v{VT+2}, 5, v{LANE}\nv_lshl_add_u32 v{VT+1}, v{VT+2}, 9, v{VT+1}")
    k(f"v_bfe_u32 v{VT+2}, v{LANE}, 4, 1\nv_lshl_add_u32 v{VT+1}, v{VT+2}, 7, v{VT+1}")
    k(f"v_and_b32 v{VT+3}, 3, v{LANE}\nv_lshl_add_u32 v{V_RD}, v{VT+3}, 3, v{VT+1}")
    k(f"v_add_u32 v{V_RD+1}, {2*STAGE}, v{V_RD}")
    k(f"s_lshl_b32 s82, s{S_RB1}, 3\ns_lshl_b32 s83, s{S_WAVE}, 1\ns_add_u32 s82, s82, s83\ns_lshl_b32 s82, s82, 15")
    k(f"v_add_u32 v{V_TOK}, s82, v{L16}\nv_add_u32 v{V_TOK+1}, 0x8000, v{V_TOK}")
    k(f"s_mul_i32 s{S_WB}, s80, 4224\ns_mul_i32 s82, s81, 2112\ns_add_u32 s{S_WB}, s{S_WB}, s82")
    c.NB, c.TB, c.KS, c.SPK, c.KT, c.NS, c.R = 8, 2, 1, 2, 16, 4, 32
    c.acc = lambda b, t: vr(32 + (b * 2 + t) * 4, 4)
    c.tf = lambda slot, ks, t: (slot * 2 + t) * 4
    c.rd = lambda sl, b, sub, r: (V_RD + sl // 2, (sl % 2) * STAGE + (b // 4) * HS + sub * 4224 + r * 256 + (b % 4) * 32)
    c.slot_addr = lambda sl: sl * STAGE
    c.dma = [(V_DMA + 2, 0, 0), (V_DMA + 3, 1056, 0), (V_DMA + 2, HS, 2048), (V_DMA + 3, HS + 1056, 2048)]
    c.v_tok = [V_TOK, V_TOK + 1]
    c.w_stride = 64 * 6144
    c.drop = opt.get("g1_drop", ())
    c.pro_units, c.ramp_rate, c.read_margin, c.lookahead = opt.get("g1_pro", 8), opt.get("g1_ramp", 5), 4, opt.get("g1_la", 6)
    c.wreg, c.wbase = vr, 128
    std_sched(c)
    q = Sched(); common_gemm(q)
    q.KT = 16; order(q, k, opt, "g1", ["win", [8, 8], 0]); q.tag = "g1b"; q.stamp_every = opt.get("g1b_se", 0)
    q.s_kw = 70
    QS = [67584 + i * HS for i in range(5)] + [L_R2 + i * HS for i in range(4)] + [i * HS for i in range(7)]
    q.Q1, q.Q2 = V_RD + 1, V_TOK
    def base(kt): return (q.Q1, 67584) if kt < 5 else ((q.Q2, L_R2) if kt < 9 else (V_RD, 0))
    for kt in range(16):
        sw = q.s_kw + kt % 2
        q.stage_units[kt] = [q.pos_items(sw, kt, c.w_stride) + [T(f"s_add_u32 m0, s{S_WB}, {QS[kt]}"), VM(f"buffer_load_dwordx4 v{V_DMA}, {sr(SRD_W,4)}, s{sw} offen lds", ("dma", kt))],
                             [T(f"s_add_u32 m0, s{S_WB}, {QS[kt] + 1056}"), VM(f"buffer_load_dwordx4 v{V_DMA+1}, {sr(SRD_W,4)}, s{sw} offen lds", ("dma", kt))]]
        q.stage_slot[kt] = kt
        va, b0 = base(kt)
        frags = [(va, QS[kt] - b0 + sub * 4224 + b * 32, QS[kt] - b0 + sub * 4224 + 256 + b * 32, [(vr((b * 2 + t) * 4, 4), ((kt * 2 + sub) * 2 + t) * 4) for t in range(2)]) for sub in range(2) for b in range(4)]
        q.steps.append(dict(frags=frags, stages=[kt] if kt != 9 else list(range(9, 16)), toks=[]))
    q.wf = lambda buf, j: (buf * 8 + j) * 4
    q.wreg, q.wbase = vr, 128
    q.pub0 = set(range(9)); q.pro_units = opt.get('q_pro', 2); q.ramp_rate = opt.get('q_ramp', 3); q.read_margin = 4; q.drop = c.drop
    c.q = q
    return c

def merge(a, b, ratio):
    out, b = [], list(b)
    for i, x in enumerate(a):
        out.append(x)
        if b and i % ratio == ratio - 1: out.append(b.pop(0))
    return out + b

def phase_gemm1s(k, c, opt):
    LANE, L16, VT = c.LANE, c.L16, c.VT
    q = c.q
    PHK, VV, SH = 0, 34816, 114688
    p = Txt()
    srd(p, SRD_A, P_WPHI, H * 2048)
    srd(p, SRD_B, P_WS, 2 << 20, WS_KVP)
    srd(p, SRD_C, P_WS, 128 << 10, WS_ZP)
    A_PW, A_VW, A_PR, A_VR, A_WR = 110, 111, 112, 113, 114
    p(f"s_lshr_b32 s80, s{S_WAVE}, 1\ns_and_b32 s81, s{S_WAVE}, 1")
    p(f"v_and_b32 v{VT}, 15, v{LANE}\ns_lshl_b32 s82, s{S_WAVE}, 5\nv_add_u32 v{VT}, s82, v{VT}")
    p(f"v_lshrrev_b32 v{VT+1}, 4, v{LANE}\nv_lshlrev_b32 v{VT+1}, 3, v{VT+1}")
    p(f"v_mul_u32_u24 v{A_PW}, 136, v{VT}\nv_add_u32 v{A_PW}, v{A_PW}, v{VT+1}")
    p(f"v_mul_u32_u24 v{A_VW}, 72, v{VT}\nv_add_u32 v{A_VW}, v{A_VW}, v{VT+1}")
    p(f"v_lshrrev_b32 v{VT}, 2, v{LANE}\nv_and_b32 v{VT+1}, 3, v{LANE}\nv_lshlrev_b32 v{VT+1}, 3, v{VT+1}")
    p(f"s_mul_i32 s82, s80, 17408\ns_lshl_b32 s83, s81, 6\ns_add_u32 s82, s82, s83")
    p(f"v_mul_u32_u24 v{A_PR}, 136, v{VT}\nv_add_u32 v{A_PR}, v{A_PR}, v{VT+1}\nv_add_u32 v{A_PR}, s82, v{A_PR}")
    p(f"s_mul_i32 s82, s80, 9216")
    p(f"v_mul_u32_u24 v{A_VR}, 72, v{VT}\nv_add_u32 v{A_VR}, v{A_VR}, v{VT+1}\nv_add_u32 v{A_VR}, s82, v{A_VR}")
    p(f"v_lshl_add_u32 v{A_WR}, v{VT}, 6, v{VT+1}\nv_add_u32 v{A_WR}, {L_WPH}, v{A_WR}")
    ONES, SEL = 116, 120
    for j in range(4): p(f"v_mov_b32 v{ONES+j}, 0x3f803f80")
    p(f"v_bfe_u32 v{VT}, v{LANE}, 2, 2\nv_lshrrev_b32 v{VT+1}, 4, v{LANE}")
    p(f"v_cmp_eq_u32 vcc, v{VT}, v{VT+1}")
    p(f"v_and_b32 v{VT}, 1, v{LANE}\nv_lshlrev_b32 v{VT}, 4, v{VT}\nv_mov_b32 v{VT+1}, 0x3f80\nv_lshlrev_b32 v{VT+1}, v{VT}, v{VT+1}")
    p(f"v_cndmask_b32 v{VT+1}, 0, v{VT+1}, vcc")
    p(f"v_and_b32 v{VT}, 2, v{LANE}\nv_cmp_eq_u32 vcc, 0, v{VT}")
    for j in (0, 1, 4, 5): p(f"v_mov_b32 v{SEL+j}, 0")
    p(f"v_cndmask_b32 v{SEL+2}, 0, v{VT+1}, vcc\nv_cndmask_b32 v{SEL+3}, v{VT+1}, 0, vcc")
    p(f"s_mov_b32 s94, {LOG2E!r}\ns_mov_b32 s95, {LOG2E!r}")
    p(f"s_lshl_b32 s84, s{S_HP}, 12\ns_lshl_b32 s85, s{S_WAVE}, 10\ns_add_u32 s84, s84, s85\ns_add_u32 s85, s85, {L_WPH}")
    c.pre_loop_txt = p.L
    c.late[4] = ["s_mov_b32 m0, s85", f"buffer_load_dwordx4 v{L16}, {sr(SRD_A,4)}, s84 offen lds"]
    for st_ in opt.get("cp1", [20]): c.late.setdefault(st_, []).extend(code_prefetch_txt(k.name, L16, 254, 80, junk="v31"))
    for st_ in opt.get("cp1b", []): q.late.setdefault(st_, []).extend(code_prefetch_txt(k.name, L16, 254, 80, junk="v252"))
    ts = opt.get("mt_step", None)
    if ts is not None:
        c.late.setdefault(ts, []).extend([f"v_mul_u32_u24 v254, 12288, v{LANE}", f"buffer_load_dword v31, v254, {sr(SRD_D,4)}, s{S_MB} offen"])
        if opt.get("wo_touch", 1):
            c.late[ts].extend([f"s_lshl_b32 s80, s2, 2", f"s_add_u32 s80, s80, s{S_WAVE}", "s_lshl_b32 s80, s80, 11",
                               f"v_and_b32 v254, 15, v{LANE}", "v_lshlrev_b32 v254, 7, v254", "v_add_u32 v254, s80, v254", f"global_load_dword v31, v254, s[{P_WO}:{P_WO+1}]"])
    nq = opt.get("q_in", 10)
    for j in range(nq // 2): c.late.setdefault(32 - nq // 2 + j, []).extend(q.prefetch_txt(2))
    wph_reads = lambda reg, b0: [f"ds_read_b64_tr_b16 {reg(b0+(hh*2+fb)*4+2*r,2)}, v{A_WR} offset:{hh*2048+r*1024+fb*32}" for hh in range(2) for fb in range(2) for r in range(2)]
    c.last_reads = wph_reads(vr, 0)
    c.run(k)
    k.stamp("g1 loop done")
    A = lambda b, t: (b * 2 + t) * 4
    BF, P1, P2, MX, MN, EK = 126, 142, 174, 206, 214, 222
    groups = [(hh, t) for hh in range(2) for t in range(2)]
    def fm_part1(k, seg, ph):
        for g, (hh, t) in enumerate(groups):
            for db in range(2):
                a = A(seg * 4 + hh * 2 + db, t)
                k(f"v_cvt_pk_bf16_f32 v{BF+g*4+db*2}, v{a}, v{a+1}\nv_cvt_pk_bf16_f32 v{BF+g*4+db*2+1}, v{a+2}, v{a+3}")
        k("s_nop 1")
        for g, (hh, t) in enumerate(groups):
            for fb in range(2):
                k(f"{MF} {vr(P1+g*8+fb*4,4)}, {ph(hh*2+fb)}, {vr(BF+g*4,4)}, 0")
    def fm_part2(k):
        for op3, op2, M in (("v_max3_f32", "v_max_f32", MX), ("v_min3_f32", "v_min_f32", MN)):
            for g in range(4):
                b = P1 + g * 8
                k(f"{op3} v{M+2*g}, v{b}, v{b+1}, v{b+2}\n{op3} v{M+2*g}, v{M+2*g}, v{b+3}, v{b+4}\n{op3} v{M+2*g}, v{M+2*g}, v{b+5}, v{b+6}\n{op2} v{M+2*g}, v{M+2*g}, v{b+7}")
        treduce4x2(k, ("v_max_f32", "v_min_f32"), ([MX + 2 * g for g in range(4)], [MN + 2 * g for g in range(4)]))
        for g in range(4):
            k(f"v_mul_f32 v{MX+2*g}, {-LOG2E!r}, v{MX+2*g}\nv_mul_f32 v{MN+2*g}, {LOG2E!r}, v{MN+2*g}")
    def fm_part3(k, E, gs_=range(4)):
        for g in gs_:
            for j in range(4):
                b = g * 8 + 2 * j
                k(f"v_pk_fma_f32 {vr(P2+b,2)}, {vr(P1+b,2)}, s[94:95], {vr(MN+2*g,2)} op_sel_hi:[1,1,0] neg_lo:[1,0,0] neg_hi:[1,0,0]")
                k(f"v_pk_fma_f32 {vr(P1+b,2)}, {vr(P1+b,2)}, s[94:95], {vr(MX+2*g,2)} op_sel_hi:[1,1,0]")
            for j in range(8): k(f"v_exp_f32 v{P1+g*8+j}, v{P1+g*8+j}")
            for j in range(8): k(f"v_exp_f32 v{P2+g*8+j}, v{P2+g*8+j}")
            k("s_nop 0")
            for sg, PP in enumerate((P1, P2)):
                for j in range(4): k(f"v_cvt_pk_bf16_f32 v{E+(g*2+sg)*4+j}, v{PP+g*8+2*j}, v{PP+g*8+2*j+1}")
    mark0 = len(k.L)
    k("s_waitcnt lgkmcnt(0)\ns_nop 7")
    fm_part1(k, 1, lambda i: vr(i * 4, 4))
    k("s_barrier")
    for g, (hh, t) in enumerate(groups):
        for db in range(2):
            a = A(8 + hh * 2 + db, t)
            k(f"v_cvt_pk_bf16_f32 v{a}, v{a}, v{a+1}\nv_cvt_pk_bf16_f32 v{a+1}, v{a+2}, v{a+3}")
            k(f"ds_write_b64 v{A_VW}, {vr(a,2)} offset:{VV + hh*9216 + t*16*72 + db*32}")
    fm_part2(k)
    grp = []
    for j in range(18 - q.pre_dma):
        t_ = q.prefetch_txt(1); grp.append(t_[:-1] + ["s_nop 0", t_[-1]])
    sprinkle(k, mark0, grp, skip=12)
    k.stamp("kp part2")
    fm_part3(k, EK)
    k.stamp("kp part3")
    SM = 32
    k("s_nop 1")
    for i in range(8): k(f"{MF} {vr(SM+4*i,4)}, {vr(ONES,4)}, {vr(EK+4*i,4)}, 0")
    k(f"v_add_u32 v{q.Q1}, 67584, v{c.V_RD}\nv_add_u32 v{q.Q2}, {L_R2}, v{c.V_RD}")
    k("s_nop 5")
    for i in range(8): k(f"v_rcp_f32 v{SM+4*i}, v{SM+4*i}")
    for g, (hh, t) in enumerate(groups):
        for sg, PP in enumerate((P1, P2)):
            for j in range(4):
                k(f"v_pk_mul_f32 {vr(PP+g*8+2*j,2)}, {vr(PP+g*8+2*j,2)}, {vr(SM+(g*2+sg)*4,2)} op_sel_hi:[1,0]")
            for fb in range(2):
                b = PP + g * 8 + fb * 4
                k(f"v_cvt_pk_bf16_f32 v{b}, v{b}, v{b+1}\nv_cvt_pk_bf16_f32 v{b+1}, v{b+2}, v{b+3}")
                k(f"ds_write_b64 v{A_PW}, {vr(b,2)} offset:{PHK + hh*17408 + t*16*136 + sg*64 + fb*32}")
    k.stamp("kp norm")
    k("s_waitcnt lgkmcnt(0)\ns_barrier")
    k.stamp("kp bar")
    FR = 190
    for s_ in range(4):
        for r in range(2):
            for fb in range(2): k(f"ds_read_b64_tr_b16 {vr(FR+s_*16+fb*4+2*r,2)}, v{A_PR} offset:{PHK + (32*s_+16*r)*136 + fb*32}")
            for db in range(2): k(f"ds_read_b64_tr_b16 {vr(FR+s_*16+8+db*4+2*r,2)}, v{A_VR} offset:{VV + (32*s_+16*r)*72 + db*32}")
    k(f"s_lshl_b32 s82, s{S_HP}, 2\ns_add_u32 s82, s82, s{S_WAVE}")
    k("s_lshl_b32 s86, s82, 15")
    k(f"s_lshl_b32 s84, s{S_RB1}, 10\ns_add_u32 s84, s84, s86\ns_add_u32 s85, s84, 16384")
    k("s_lshl_b32 s90, s82, 11")
    k(f"s_lshl_b32 s91, s82, {FS+4}\ns_add_u32 s91, s91, {F_KV}\ns_lshl_b32 s92, s{S_RB1}, {FS}\ns_add_u32 s92, s92, s91")
    k(f"v_and_b32 v{VT}, 15, v{LANE}\nv_cmp_eq_u32 vcc, s{S_RB1}, v{VT}")
    KV, ZZ = 64, 80
    for s_ in range(4):
        k(f"s_waitcnt lgkmcnt({min(15, 24 - 8*s_)})" if s_ < 3 else "s_waitcnt vmcnt(0) lgkmcnt(0)\ns_barrier")
        for fb in range(2):
            for db in range(2):
                d = vr(KV + (db * 2 + fb) * 4, 4)
                k(f"{MF} {d}, {vr(FR+s_*16+fb*4,4)}, {vr(FR+s_*16+8+db*4,4)}, {'0' if s_ == 0 else d}")
            d = vr(ZZ + fb * 4, 4)
            k(f"{MF} {d}, {vr(FR+s_*16+fb*4,4)}, {vr(ONES,4)}, {'0' if s_ == 0 else d}")
    k(f"v_lshlrev_b32 v{VT}, {FS}, v{VT}\nv_mov_b32 v{VT+1}, 1\nv_mov_b32 v{VT+2}, 0")
    k("s_nop 5")
    for db in range(2):
        for j in range(4): k(f"v_cvt_pk_bf16_f32 v{88+db*4+j}, v{KV+db*8+2*j}, v{KV+db*8+2*j+1}")
    k(f"buffer_store_dwordx4 {vr(88,4)}, v{L16}, {sr(SRD_B,4)}, s84 offen sc1")
    k(f"buffer_store_dwordx4 {vr(92,4)}, v{L16}, {sr(SRD_B,4)}, s85 offen sc1")
    k("s_and_saveexec_b64 s[96:97], vcc")
    k(f"buffer_store_dwordx4 {vr(ZZ,4)}, v{L16}, {sr(SRD_C,4)}, s90 offen sc1")
    k(f"buffer_store_dwordx4 {vr(ZZ+4,4)}, v{L16}, {sr(SRD_C,4)}, s90 offen offset:1024 sc1")
    k("s_mov_b64 exec, s[96:97]")
    k.stamp("kv stored")
    KV, ZZ, MW, MC = 72, 88, 32, 64
    q.late[opt.get("kv_ps", 1)] = [WVM([("pre", 0)]), f"buffer_store_dword v{VT+1}, v{VT+2}, {sr(SRD_F,4)}, s92 offen sc1"]
    gs = opt.get("kv_gs", 9)
    ld = f"buffer_load_dword v253, v{VT}, {sr(SRD_F,4)}, s91 offen sc1"
    m = Txt(); m.label = k.label
    okl = k.label("gok")
    m(f"v_cmp_eq_u32 vcc, 0, v253\ns_cmp_eq_u64 vcc, 0\ns_cbranch_scc1 {okl}")
    spin(m, [ld], [253], 0)
    m(f"{okl}:")
    q.late[gs - 2] = [VM(ld, ("kvf", 0))]
    gl = [f"buffer_load_dwordx4 {vr(ZZ,4)}, v{L16}, {sr(SRD_C,4)}, s90 offen sc1", f"buffer_load_dwordx4 {vr(ZZ+4,4)}, v{L16}, {sr(SRD_C,4)}, s90 offen offset:1024 sc1"]
    for i in range(32):
        if i % 4 == 0 and i: gl.append("s_add_u32 s86, s86, 4096")
        gl.append(f"buffer_load_dwordx4 {ar(4*i,4)}, v{L16}, {sr(SRD_B,4)}, s86 offen offset:{(i%4)*1024} sc1")
    n3 = -(-len(gl) // 3)
    q.late[gs] = [WVM([("kvf", 0)]), T("\n".join(m.L))] + gl[:n3]
    q.late[gs + 1] = gl[n3:2*n3]; q.late[gs + 2] = gl[2*n3:]
    t2 = Txt()
    g2 = setup_gemm24(t2, 2, opt, (110, 111, 112, LANE, L16, 98))
    q.late[5] = t2.L[:len(t2.L)//2]; q.late[6] = t2.L[len(t2.L)//2:] + [f"global_load_ushort v{MC+i}, v109, s[{P_C}:{P_C+1}] offset:{i*16}" for i in range(8)]
    assert gs - 2 > 6
    younger = []
    younger += g2.prefetch_txt(8)
    mbl = []
    for i in range(8): mbl += [f"buffer_load_dwordx4 {vr(MW+4*i,4)}, v115, {sr(SRD_D,4)}, s{S_MB} offen", f"s_add_u32 s{S_MB}, s{S_MB}, {8*12288}"]
    mpos = opt.get("mpos", "tail")
    if mpos == "tail": younger += mbl
    ny = sum(1 for x in younger if is_vm(x))
    rest = list(range(gs + 3, 16)); per = -(-len(younger) // len(rest))
    for j, st_ in enumerate(rest): q.late[st_] = younger[j*per:(j+1)*per]
    A_PH = 128
    q.last_reads = wph_reads(ar, A_PH)
    q.run(k)
    k.stamp("g1b done")
    srd(k, SRD_T, P_WS, S * D * 2, WS_O)
    k("s_waitcnt lgkmcnt(0)\ns_nop 3")
    qa = Txt(); fm_part1(qa, 0, lambda i: ar(A_PH + i * 4, 4))
    qa(f"s_waitcnt vmcnt({min(63, ny + 32)})")
    for sh in (8, 4, 2, 1):
        for j in range(8): qa(f"v_add_f32_dpp v{ZZ+j}, v{ZZ+j}, v{ZZ+j} row_ror:{sh} row_mask:0xf bank_mask:0xf")
    for x in qa.L: k(x)
    k.stamp("qp a")
    hs = g2.hs
    qb = Txt(); fm_part2(qb); fm_part3(qb, EK, range(2) if hs else range(4))
    red = []
    for i in range(32):
        db, pp = divmod(i, 16)
        for fb in range(2):
            d = vr(KV + (db * 2 + fb) * 4, 4)
            red.append((f"s_waitcnt vmcnt({ny + 28 - i})\n" if (i % 4 == 0 and fb == 0) else "") + f"{MF} {d}, {vr(SEL + (2 if fb == 0 else 0), 4)}, {ar(4*i,4)}, {'0' if pp == 0 else d}")
    cut = opt.get("q_cut", 150) if not hs else len(qb.L)
    for x in merge(qb.L[:cut], red, 2): k(x)
    if hs:
        k("s_nop 3")
        qb = Txt(); fm_part3(qb, EK, [2]); cut = 0
    k.stamp("qp merged")
    k(f"s_mul_i32 s82, s{S_WAVE}, 3072\ns_add_u32 s82, s82, {SH}")
    k(f"v_add_u32 v{VT+1}, s82, v{L16}\nv_add_u32 v{VT+2}, {SH}, v{L16}")
    k(f"v_and_b32 v{VT}, 1, v{LANE}\nv_cmp_eq_u32 vcc, 0, v{VT}")
    k("s_nop 4")
    for j in range(12): k(f"v_cvt_pk_bf16_f32 v{KV+j}, v{KV+2*j}, v{KV+2*j+1}")
    for j in range(4): k(f"v_cndmask_b32 v{KV+8+j}, v{ONES}, v{KV+8+j}, vcc")
    for j in range(3): k(f"ds_write_b128 v{VT+1}, {vr(KV+4*j,4)} offset:{j*1024}")
    for x in (merge(qb.L[cut:], mbl, 2) if mpos == "q" else qb.L[cut:]): k(x)
    k.stamp("qp rest")
    k("s_waitcnt lgkmcnt(0)\ns_barrier")
    k.stamp("qp bar")
    for i in range(12): k(f"ds_read_b128 {ar(4*i,4)}, v{VT+2} offset:{i*1024}")
    k(f"s_lshl_b32 s82, s{S_RB1}, 3\ns_lshl_b32 s83, s{S_WAVE}, 1\ns_add_u32 s82, s82, s83\ns_lshl_b32 s82, s82, 15")
    k(f"s_lshl_b32 s83, s{S_HP}, 11\ns_add_u32 s82, s82, s83\ns_add_u32 s83, s82, 0x8000")
    k(f"s_lshl_b32 s84, s{S_RB1}, 2\ns_add_u32 s84, s84, s{S_WAVE}\ns_lshl_b32 s84, s84, {FS+4}\ns_lshl_b32 s85, s{S_HP}, {FS}\ns_add_u32 s84, s84, s85\ns_add_u32 s84, s84, {F_O}")
    k("s_waitcnt lgkmcnt(0)")
    NB_ = 126
    def nbase(g): return NB_ + g * 24 if (not hs or g >= 2) else None
    def oregs(g):
        if hs and g < 2: return (0, 12) if g == 0 else (72, 84)
        return (NB_ + g * 24, NB_ + g * 24 + 12)
    def o_mfma(gl):
        for g in gl:
            hh, t = groups[g]
            for sg in range(2):
                for j in range(3):
                    k(f"{MF} {vr(oregs(g)[sg]+4*j,4)}, {ar(((hh*2+sg)*3+j)*4,4)}, {vr(EK+(g*2+sg)*4,4)}, 0")
    def o_fin(gl):
        for g in gl:
            hh, t = groups[g]
            n1, n2 = oregs(g)
            D1, S1, D2, S2 = n1 + 8, n1 + 9, n2 + 8, n2 + 9
            k(f"v_mul_f32 v{n1+10}, v{S1}, v{S2}")
            k(f"v_mul_f32 v{n1+10}, 0x358637bd, v{n1+10}")
            k(f"v_fmac_f32 v{n1+10}, v{D1}, v{S2}\nv_fmac_f32 v{n1+10}, v{D2}, v{S1}")
            k(f"v_rcp_f32 v{n1+10}, v{n1+10}")
            k("s_nop 0")
            k(f"v_mul_f32 v{D1}, v{S2}, v{n1+10}\nv_mul_f32 v{D2}, v{S1}, v{n1+10}")
            for j in range(4): k(f"v_pk_mul_f32 {vr(n1+2*j,2)}, {vr(n1+2*j,2)}, {vr(D1,2)} op_sel_hi:[1,0]")
            for j in range(4): k(f"v_pk_fma_f32 {vr(n1+2*j,2)}, {vr(n2+2*j,2)}, {vr(D2,2)}, {vr(n1+2*j,2)} op_sel_hi:[1,0,1]")
            for j in range(4): k(f"v_cvt_pk_bf16_f32 v{n2+j}, v{n1+2*j}, v{n1+2*j+1}")
            k(f"buffer_store_dwordx4 {vr(n2,4)}, v{L16}, {sr(SRD_T,4)}, s{82+t} offen offset:{hh*1024} sc1")
    if hs:
        o_mfma([0, 1]); k("s_nop 7"); o_fin([0, 1])
        mk0 = len(k.L)
        fm_part3(k, EK, [3])
        k("s_nop 1")
        o_mfma([2, 3]); k("s_nop 7")
        publish(k, 84, VT + 1, mk0)
        k(f"s_add_u32 s95, s84, {F_O2 - F_O}")
        o_fin([2, 3])
    else:
        o_mfma(range(4)); k("s_nop 7"); o_fin(range(4))
    k.stamp("o stored")
    mko = len(k.L)
    g2.V_X = 178
    srd(k, SRD_A, P_X, S * D * 2)
    V_XA = 100
    k(f"v_lshrrev_b32 v{VT+1}, 4, v{LANE}")
    k(f"v_and_b32 v{VT+2}, 15, v{LANE}\nv_lshlrev_b32 v{VT+2}, 11, v{VT+2}\nv_lshl_add_u32 v{V_XA}, v{VT+1}, 3, v{VT+2}")
    k(f"s_lshl_b32 s82, s{S_RB2}, 3\ns_lshl_b32 s83, s{S_WAVE}, 1\ns_add_u32 s82, s82, s83\ns_lshl_b32 s82, s82, 15\ns_lshl_b32 s83, s{S_NT}, 7\ns_add_u32 s82, s82, s83\ns_add_u32 s83, s82, 32768")
    for t in range(2):
        for b in range(4):
            k(f"buffer_load_dwordx2 {vr(g2.V_X+(t*4+b)*2,2)}, v{V_XA}, {sr(SRD_A,4)}, s{82+t} offen offset:{b*32}")
    k.g3 = setup_gemm3_early(k, opt, LANE, 20)
    if not hs: publish(k, 84, VT + 1, mko)
    k.stamp("o published")
    mark1 = len(k.L)
    CU, AU, TT = 0, 16, 24
    for i in range(8): k(f"v_mov_b32 v{CU+2*i}, v{MC+i}")
    silu_block(k, [CU + 2 * i for i in range(8)])
    for i in range(8):
        for d in range(4):
            k(f"v_lshlrev_b32 v{TT}, 16, v{MW+4*i+d}\nv_and_b32 v{TT+1}, 0xffff0000, v{MW+4*i+d}")
            if i == 0: k(f"v_pk_mul_f32 {vr(AU+2*d,2)}, {vr(TT,2)}, {vr(CU,2)} op_sel_hi:[1,0]")
            else: k(f"v_pk_fma_f32 {vr(AU+2*d,2)}, {vr(TT,2)}, {vr(CU+2*i,2)}, {vr(AU+2*d,2)} op_sel_hi:[1,0,1]")
    k("s_nop 1")
    for j in range(4): k(f"v_permlane32_swap_b32 v{AU+j}, v{AU+j+4}")
    k("s_nop 1")
    for j in range(4): k(f"v_add_f32 v{AU+j}, v{AU+j}, v{AU+j+4}")
    k("s_nop 1")
    for j in range(2): k(f"v_permlane16_swap_b32 v{AU+j}, v{AU+j+2}")
    k("s_nop 1")
    for j in range(2): k(f"v_add_f32 v{AU+j}, v{AU+j}, v{AU+j+2}")
    k("s_nop 1")
    for j in range(2): k(f"v_add_f32_dpp v{AU+j}, v{AU+j}, v{AU+j} row_ror:8 row_mask:0xf bank_mask:0xf")
    sprinkle(k, mark1, g3_early_units(k.g3, opt.get("g3_e2", 7), 254), skip=0)
    k(f"v_and_b32 v{TT}, 7, v{LANE}\nv_lshlrev_b32 v{TT}, 5, v{TT}\nv_lshrrev_b32 v{TT+1}, 5, v{LANE}\nv_lshl_add_u32 v{TT}, v{TT+1}, 4, v{TT}")
    k(f"v_bfe_u32 v{TT+1}, v{LANE}, 4, 1\nv_lshl_add_u32 v{TT}, v{TT+1}, 3, v{TT}")
    srd(k, SRD_D, P_WS, MP_BYTES, WS_MODP)
    k(f"v_or_b32 v{AU}, 1, v{AU}\nv_or_b32 v{AU+1}, 1, v{AU+1}")
    k(f"buffer_store_dwordx2 {vr(AU,2)}, v{TT}, {sr(SRD_D,4)}, s{S_MO} offen sc1")
    return g2

A_UT = 176
def silu_block(k, regs):
    for v in regs: k(f"v_lshlrev_b32 v{v}, 16, v{v}\nv_mul_f32 v{v+1}, {-LOG2E!r}, v{v}")
    for v in regs: k(f"v_exp_f32 v{v+1}, v{v+1}")
    k("s_nop 0")
    for v in regs: k(f"v_add_f32 v{v+1}, 1.0, v{v+1}")
    for v in regs: k(f"v_rcp_f32 v{v+1}, v{v+1}")
    k("s_nop 0")
    for v in regs:
        k(f"v_mul_f32 v{v}, v{v}, v{v+1}"); round_bf16(k, v)

def modb_loads(s_off, v_w, v_c):
    out = []
    for i in range(8):
        out.append([f"buffer_load_dwordx4 {ar(A_UT+4*i,4)}, v{v_w}, {sr(SRD_D,4)}, s{s_off} offen", f"s_add_u32 s{s_off}, s{s_off}, {8*12288}"])
    return out

def red32(k, x, t):
    red8(k, x)
    k(f"s_nop 1\nv_add_f32_dpp v{x}, v{x}, v{x} row_mirror row_mask:0xf bank_mask:0xf")
    k(f"v_mov_b32 v{t}, v{x}\ns_nop 1\nv_permlane16_swap_b32 v{x}, v{t}\ns_nop 1\nv_add_f32 v{x}, v{x}, v{t}")

def ids(k):
    k("v_lshrrev_b32 v1, 6, v0")
    k(f"s_and_b32 s{S_XCD}, s2, 7\ns_lshr_b32 s{S_IDX}, s2, 3")
    k(f"v_readfirstlane_b32 s{S_WAVE}, v1")
    k(f"s_bfe_u32 s{S_RB1}, s{S_XCD}, 0x10001\ns_lshl_b32 s{S_RB1}, s{S_RB1}, 3\ns_lshr_b32 s80, s{S_IDX}, 2\ns_add_u32 s{S_RB1}, s{S_RB1}, s80")
    k(f"s_lshr_b32 s{S_HP}, s{S_XCD}, 2\ns_lshl_b32 s{S_HP}, s{S_HP}, 2\ns_and_b32 s80, s{S_IDX}, 3\ns_add_u32 s{S_HP}, s{S_HP}, s80\ns_lshl_b32 s{S_HP}, s{S_HP}, 1\ns_and_b32 s80, s{S_XCD}, 1\ns_add_u32 s{S_HP}, s{S_HP}, s80")

def build_k0(instr=False, opt=None, name="mod_kernel", mega="mega_kernel"):
    opt = opt or {}
    k = Kernel(name, 256, 256, 4096, vgpr=128, sgpr=102)
    k.instr = instr; k.s_wave = S_WAVE
    stamp(k, 0)
    end = k.label("end")
    k(f"s_cmp_ge_u32 s2, 256\ns_cbranch_scc1 {end}")
    k("s_load_dwordx4 s[12:15], s[0:1], 64")
    k("s_load_dwordx8 s[4:11], s[0:1], 0")
    k("s_load_dwordx2 s[28:29], s[0:1], 96")
    ids(k)
    LANE, T, V_W = 104, 48, 105
    WA, CA, XR, XF, A0, SU = 64, 80, 84, 0, 32, 100
    k(f"v_and_b32 v{LANE}, 63, v0")
    k(f"v_lshrrev_b32 v{T+1}, 3, v{LANE}\nv_and_b32 v{T+2}, 7, v{LANE}")
    k(f"v_mul_u32_u24 v{V_W}, 12288, v{T+1}\nv_lshl_add_u32 v{V_W}, v{T+2}, 4, v{V_W}")
    k(f"s_lshl_b32 s64, s{S_RB1}, 6\ns_lshl_b32 s65, s{S_WAVE}, 4\ns_add_u32 s64, s64, s65")
    k(f"v_add_u32 v{T+3}, s64, v{T+1}\nv_lshlrev_b32 v{T+3}, 1, v{T+3}")
    k(f"s_mul_i32 s67, s64, 12288\ns_lshl_b32 s66, s{S_HP}, 7\ns_add_u32 s67, s67, s66\ns_add_u32 s68, s67, {8*12288}")
    k(f"v_lshrrev_b32 v{T+4}, 5, v{LANE}\nv_lshlrev_b32 v{T+4}, 11, v{T+4}\nv_and_b32 v{T+5}, 31, v{LANE}\nv_lshl_add_u32 v{T+4}, v{T+5}, 4, v{T+4}")
    k(f"s_lshl_b32 s69, s{S_RB1}, 4\ns_add_u32 s69, s69, s{S_HP}")
    k(f"s_lshl_b32 s70, s69, 14\ns_lshl_b32 s71, s{S_WAVE}, 12\ns_add_u32 s70, s70, s71")
    k("s_waitcnt lgkmcnt(0)")
    srd(k, SRD_D, 14, D * 6 * D * 2)
    srd(k, SRD_A, P_X, S * D * 2)
    for i in range(2): k(f"global_load_ushort v{CA+2*i}, v{T+3}, s[12:13] offset:{i*16}")
    for i in range(2):
        for v in range(2): k(f"buffer_load_dwordx4 {vr(WA+(i*2+v)*4,4)}, v{V_W}, {sr(SRD_D,4)}, s{67+i} offen offset:{v*2048}")
    for i in range(4): k(f"buffer_load_dwordx4 {vr(XR+4*i,4)}, v{T+4}, {sr(SRD_A,4)}, s70 offen offset:{i*512}")
    stamp(k, 1)
    lab = k.label("pc")
    k(f"s_getpc_b64 s[60:61]\n{lab}:")
    k(f"s_add_u32 s60, s60, {mega}-{lab}\ns_addc_u32 s61, s61, 0")
    k(f"v_lshlrev_b32 v{T+6}, 4, v{LANE}")
    for x in code_prefetch_txt(mega, T + 6, T + 7, 62, s_pc=60, junk="v110"): k(x)
    srd(k, SRD_B, P_WS, MP_BYTES, WS_MODP)
    srd(k, SRD_F, P_WS, FLAG_BYTES, WS_FLAG)
    srd(k, SRD_C, P_WS, S * 128, WS_STAT)
    k(f"v_mov_b32 v{T+8}, 0\nv_lshlrev_b32 v{T+9}, 2, v0\ns_lshl_b32 s62, s2, 10\ns_add_u32 s63, s62, {MP_B}")
    k(f"v_lshlrev_b32 v{T+10}, {FS}, v0\ns_lshl_b32 s66, s2, {FS+8}")
    k(f"buffer_store_dword v{T+8}, v{T+10}, {sr(SRD_F,4)}, s66 offen")
    k(f"buffer_store_dword v{T+8}, v{T+9}, {sr(SRD_C,4)}, s62 offen")
    k(f"buffer_store_dword v{T+8}, v{T+9}, {sr(SRD_B,4)}, s63 offen")
    young = 4
    k(f"s_lshl_b32 s62, s2, 2\ns_add_u32 s62, s62, s{S_WAVE}")
    for ptr, per, tag in ((P_WQKV, 6, "t_wq"), (P_WO, 2, "t_wo"), (14, 12, "t_wm")):
        if not opt.get(tag, 1): continue
        k(f"s_mul_i32 s63, s62, {per*1024}\ns_add_u32 s63, s63, 384")
        k(f"v_min_u32 v{T+14}, {per-1}, v{LANE}\nv_lshlrev_b32 v{T+14}, 10, v{T+14}\nv_add_u32 v{T+14}, s63, v{T+14}")
        k(f"global_load_dword v110, v{T+14}, s[{ptr}:{ptr+1}]")
        young += 1
    k(f"s_waitcnt vmcnt({young + 8})")
    silu_block(k, [CA, CA + 2])
    k(f"s_waitcnt vmcnt({young + 4})")
    for i in range(2):
        for v in range(2):
            for d in range(4):
                w_ = WA + (i * 2 + v) * 4 + d
                k(f"v_lshlrev_b32 v{T+10}, 16, v{w_}\nv_and_b32 v{T+11}, 0xffff0000, v{w_}")
                if i == 0: k(f"v_pk_mul_f32 {vr(A0+v*8+2*d,2)}, {vr(T+10,2)}, {vr(CA,2)} op_sel_hi:[1,0]")
                else: k(f"v_pk_fma_f32 {vr(A0+v*8+2*d,2)}, {vr(T+10,2)}, {vr(CA+2,2)}, {vr(A0+v*8+2*d,2)} op_sel_hi:[1,0,1]")
    k("s_nop 1")
    for j in range(8): k(f"v_permlane32_swap_b32 v{A0+j}, v{A0+8+j}")
    k("s_nop 1")
    for j in range(8): k(f"v_add_f32 v{A0+j}, v{A0+j}, v{A0+8+j}")
    k("s_nop 1")
    for j in range(4): k(f"v_permlane16_swap_b32 v{A0+j}, v{A0+4+j}")
    k("s_nop 1")
    for j in range(4): k(f"v_add_f32 v{A0+j}, v{A0+j}, v{A0+4+j}")
    k("s_nop 1")
    for j in range(4): k(f"v_add_f32_dpp v{A0+j}, v{A0+j}, v{A0+j} row_ror:8 row_mask:0xf bank_mask:0xf")
    k(f"v_lshrrev_b32 v{T+12}, 5, v{LANE}\nv_lshlrev_b32 v{T+13}, 8, v{T+12}\nv_lshl_add_u32 v{T+13}, v{T+2}, 5, v{T+13}")
    k(f"v_bfe_u32 v{T+10}, v{LANE}, 4, 1\nv_lshl_add_u32 v{T+13}, v{T+10}, 4, v{T+13}\ns_lshl_b32 s62, s{S_WAVE}, 9\nv_add_u32 v{T+13}, s62, v{T+13}")
    k(f"ds_write_b128 v{T+13}, {vr(A0,4)}")
    k("s_waitcnt lgkmcnt(0)\ns_barrier")
    nw0 = k.label("notw0")
    k(f"s_cmp_lg_u32 s{S_WAVE}, 0\ns_cbranch_scc1 {nw0}")
    k(f"v_lshlrev_b32 v{T+13}, 3, v{LANE}")
    for w in range(4): k(f"ds_read_b64 {vr(A0+2*w,2)}, v{T+13} offset:{w*512}")
    k(f"s_lshl_b32 s62, s{S_HP}, 13\ns_lshl_b32 s63, s{S_RB1}, 9\ns_add_u32 s63, s63, s62")
    k("s_waitcnt lgkmcnt(0)")
    k(f"v_pk_add_f32 {vr(A0,2)}, {vr(A0,2)}, {vr(A0+2,2)}\nv_pk_add_f32 {vr(A0+4,2)}, {vr(A0+4,2)}, {vr(A0+6,2)}\nv_pk_add_f32 {vr(A0,2)}, {vr(A0,2)}, {vr(A0+4,2)}")
    k(f"buffer_store_dwordx2 {vr(A0,2)}, v{T+13}, {sr(SRD_B,4)}, s63 offen")
    k(f"{nw0}:")
    stamp(k, 2)
    k(f"s_waitcnt vmcnt({young})")
    for d in range(16): k(f"v_lshlrev_b32 v{XF+2*d}, 16, v{XR+d}\nv_and_b32 v{XF+2*d+1}, 0xffff0000, v{XR+d}")
    k(f"v_pk_add_f32 {vr(SU,2)}, {vr(XF,2)}, {vr(XF+2,2)}")
    for d in range(2, 16): k(f"v_pk_add_f32 {vr(SU,2)}, {vr(SU,2)}, {vr(XF+2*d,2)}")
    k(f"v_add_f32 v{SU}, v{SU}, v{SU+1}")
    red32(k, SU, SU + 1)
    k(f"v_mul_f32 v{SU+2}, {-1.0/1024!r}, v{SU}")
    k(f"v_mov_b32 v{SU}, 0\nv_mov_b32 v{SU+1}, 0")
    for d in range(16):
        k(f"v_pk_add_f32 {vr(XF+2*d,2)}, {vr(XF+2*d,2)}, {vr(SU+2,2)} op_sel_hi:[1,0]")
        k(f"v_pk_fma_f32 {vr(SU,2)}, {vr(XF+2*d,2)}, {vr(XF+2*d,2)}, {vr(SU,2)}")
    k(f"v_add_f32 v{SU}, v{SU}, v{SU+1}")
    red32(k, SU, SU + 1)
    k(f"v_mov_b32 v{SU+1}, 0x3727c5ac\nv_fmac_f32 v{SU+1}, {1.0/1024!r}, v{SU}\nv_rsq_f32 v{SU+3}, v{SU+1}")
    k(f"s_lshl_b32 s62, s69, 6\ns_lshl_b32 s63, s{S_WAVE}, 4\ns_add_u32 s62, s62, s63\ns_add_u32 s62, s62, {MP_RS}\nv_lshlrev_b32 v{T+12}, 3, v{T+12}")
    k(f"buffer_store_dwordx2 {vr(SU+2,2)}, v{T+12}, {sr(SRD_B,4)}, s62 offen")
    stamp(k, 3)
    if instr: k("s_waitcnt vmcnt(0)")
    stamp(k, 4)
    stamp_flush(k, 28, 5, 4, slot=1)
    k(f"{end}:\ns_endpgm")
    return k

def phase_front_fused(k, opt, name):
    LANE, L16 = 104, 105
    T = 48
    V_W, V_C = 115, 109
    WA, CA, XR, XT_, XF, A0, SU, G, M, RS = 64, 80, 128, 144, 0, 200, 216, 160, 32, 84
    HL = 2 * 25344
    k(f"v_lshrrev_b32 v{T+1}, 3, v{LANE}\nv_and_b32 v{T+2}, 7, v{LANE}")
    k(f"v_mul_u32_u24 v{V_W}, 12288, v{T+1}\nv_lshl_add_u32 v{V_W}, v{T+2}, 4, v{V_W}")
    k(f"s_lshl_b32 s84, s{S_RB1}, 6")
    k(f"v_add_u32 v{V_C}, s84, v{T+1}\nv_lshlrev_b32 v{V_C}, 1, v{V_C}")
    k(f"s_lshl_b32 s85, s{S_WAVE}, 5\nv_add_u32 v{T+3}, s85, v{V_C}")
    k(f"s_mul_i32 s86, s84, 12288\ns_lshl_b32 s87, s{S_HP}, 7\ns_add_u32 s86, s86, s87")
    k(f"s_mul_i32 s87, s{S_WAVE}, {16*12288}\ns_add_u32 s87, s87, s86\ns_add_u32 s88, s87, {8*12288}")
    k(f"v_lshrrev_b32 v{T+4}, 5, v{LANE}\nv_lshlrev_b32 v{T+4}, 11, v{T+4}\nv_and_b32 v{T+5}, 31, v{LANE}\nv_lshl_add_u32 v{T+4}, v{T+5}, 4, v{T+4}")
    k(f"s_lshl_b32 s89, s{S_RB1}, 4\ns_add_u32 s89, s89, s{S_HP}")
    k(f"s_lshl_b32 s90, s89, 14\ns_lshl_b32 s91, s{S_WAVE}, 12\ns_add_u32 s90, s90, s91")
    k(f"v_mov_b32 v{T+8}, 0\nv_mov_b32 v{T+9}, 0\nv_mov_b32 v{T+10}, 0\nv_mov_b32 v{T+11}, 0\nv_mov_b32 v{T+12}, 1")
    k(f"v_lshlrev_b32 v{T+7}, {FS}, v{LANE}")
    k(f"s_lshl_b32 s93, s2, {FS+6}\ns_add_u32 s93, s93, {F_S0}\ns_cmp_lt_u32 s2, 4\ns_cselect_b32 s93, s93, 0x7ff00000\ns_cmp_eq_u32 s{S_WAVE}, 3\ns_cselect_b32 s93, s93, 0x7ff00000")
    k("s_waitcnt lgkmcnt(0)")
    srd(k, SRD_F, P_WS, FLAG_BYTES, WS_FLAG)
    k(f"buffer_store_dword v{T+8}, v{T+7}, {sr(SRD_F,4)}, s93 offen sc1")
    k(f"s_mov_b32 s{SRD_T}, s{P_DBG}\ns_mov_b32 s{SRD_T+1}, s{P_DBG+1}\ns_mov_b32 s{SRD_T+2}, 256\ns_mov_b32 s{SRD_T+3}, 0x20000")
    k("s_mov_b32 s95, s93")
    srd(k, SRD_D, P_WMOD, D * 6 * D * 2)
    srd(k, SRD_A, P_X, S * D * 2)
    for i in range(2): k(f"global_load_ushort v{CA+2*i}, v{T+3}, s[{P_C}:{P_C+1}] offset:{i*16}")
    for i in range(2):
        for v in range(2): k(f"buffer_load_dwordx4 {vr(WA+(i*2+v)*4,4)}, v{V_W}, {sr(SRD_D,4)}, s{87+i} offen offset:{v*2048}")
    for i in range(4): k(f"buffer_load_dwordx4 {vr(XR+4*i,4)}, v{T+4}, {sr(SRD_A,4)}, s90 offen offset:{i*512}")
    k.stamp("loads issued")
    srd(k, SRD_B, P_WS, MP_BYTES, WS_MODP)
    srd(k, SRD_C, P_WS, S * 128, WS_STAT)
    w3, jn = k.label("w3"), k.label("join")
    k(f"s_cmp_eq_u32 s{S_WAVE}, 3\ns_cbranch_scc1 {w3}")
    k(f"s_lshl_b32 s92, s2, 1\ns_add_u32 s92, s92, s{S_WAVE}\ns_sub_u32 s92, s92, 1")
    nt_ = k.label("notouch")
    k("s_mov_b32 s93, 0x7ff00000")
    for i in range(2): k(f"buffer_load_dword a233, v{V_W}, {sr(SRD_D,4)}, s93 offen")
    k(f"s_cmp_eq_u32 s{S_WAVE}, 0\ns_cbranch_scc1 {nt_}")
    for ptr, per in ((P_WQKV, 12), (P_WO, 4), (P_WMOD, 24)):
        k(f"s_mul_i32 s93, s92, {per}\nv_min_u32 v{T+14}, {per-1}, v{LANE}\nv_add_u32 v{T+14}, s93, v{T+14}")
        k(f"v_lshlrev_b32 v{T+14}, 10, v{T+14}")
        k(f"global_load_dword a232, v{T+14}, s[{ptr}:{ptr+1}] offset:384")
    k(f"s_branch {jn}")
    k(f"{nt_}:")
    for i in range(3): k(f"buffer_load_dword a233, v{V_W}, {sr(SRD_D,4)}, s93 offen")
    k(f"s_branch {jn}")
    k(f"{w3}:")
    nb = k.label("nboot")
    k(f"s_cmp_eq_u32 s95, 0x7ff00000\ns_cbranch_scc1 {nb}")
    k("s_lshl_b32 s93, s2, 2\ns_waitcnt vmcnt(10)")
    k(f"buffer_store_dword v{T+12}, v{T+8}, {sr(SRD_T,4)}, s93 offen sc1")
    k(f"{nb}:")
    k(f"v_and_b32 v{T+14}, 3, v{LANE}\nv_lshlrev_b32 v{T+14}, 4, v{T+14}")
    k(f"s_lshl_b32 s93, s{S_RB1}, 6\ns_add_u32 s93, s93, s{S_HP}\nv_add_u32 v{T+15}, s93, v{T+14}")
    k(f"s_lshl_b32 s93, s{S_HP}, 6\ns_add_u32 s93, s93, s{S_RB1}\ns_add_u32 s93, s93, 1024\nv_add_u32 v{T+14}, s93, v{T+14}")
    k(f"v_cmp_gt_u32 vcc, 4, v{LANE}\ns_mul_i32 s93, s2, 24\ns_add_u32 s93, s93, 2040")
    k(f"v_cndmask_b32 v{T+14}, v{T+14}, v{T+15}, vcc\nv_add_u32 v{T+15}, s93, v{LANE}")
    k(f"v_cmp_gt_u32 vcc, 8, v{LANE}\ns_nop 1\nv_cndmask_b32 v{T+14}, v{T+15}, v{T+14}, vcc")
    k(f"v_cmp_gt_u32 vcc, 32, v{LANE}\nv_mov_b32 v{T+15}, 0x100000\ns_nop 0\nv_cndmask_b32 v{T+14}, v{T+15}, v{T+14}, vcc")
    k(f"v_lshlrev_b32 v{T+14}, {FS}, v{T+14}")
    k(f"buffer_store_dword v{T+8}, v{T+14}, {sr(SRD_F,4)}, 0 offen sc1")
    k("s_mov_b32 s93, 0x7ff00000")
    for i in range(2): k(f"buffer_load_dword a233, v{V_W}, {sr(SRD_D,4)}, s93 offen")
    k("s_lshl_b32 s93, s2, 10")
    k(f"buffer_store_dwordx4 {vr(T+8,4)}, v{L16}, {sr(SRD_C,4)}, s93 offen sc1")
    k(f"s_add_u32 s93, s93, {MP_B}")
    k(f"buffer_store_dwordx4 {vr(T+8,4)}, v{L16}, {sr(SRD_B,4)}, s93 offen sc1")
    k(f"{jn}:")
    k(f"v_lshlrev_b32 v{T+5}, 11, v{T+1}\nv_lshl_add_u32 v{T+5}, v{T+2}, 4, v{T+5}")
    k(f"s_lshl_b32 s91, s{S_RB1}, 18\ns_lshl_b32 s92, s{S_WAVE}, 16\ns_add_u32 s91, s91, s92\ns_lshl_b32 s92, s{S_HP}, 7\ns_add_u32 s91, s91, s92")
    for i in range(4):
        k(f"buffer_load_dwordx4 {vr(XT_+4*i,4)}, v{T+5}, {sr(SRD_A,4)}, s91 offen")
        if i < 3: k("s_add_u32 s91, s91, 16384")
    k(f"s_lshl_b32 s94, s{S_WAVE}, 11\ns_add_u32 s{S_MB}, s86, s94\ns_add_u32 s{S_MB}, s{S_MB}, 4096")
    k(f"s_lshl_b32 s94, s{S_WAVE}, 16\ns_lshl_b32 s95, s{S_HP}, 12\ns_add_u32 s94, s94, s95\ns_lshl_b32 s95, s{S_RB1}, 8\ns_add_u32 s94, s94, s95\ns_add_u32 s{S_MO}, s94, {MP_B}")
    young = 9
    k.stamp("all issued")
    k(f"s_waitcnt vmcnt({young + 8})")
    k.stamp("c ready")
    silu_block(k, [CA, CA + 2])
    k(f"s_waitcnt vmcnt({young + 4})")
    k.stamp("w ready")
    for i in range(2):
        for v in range(2):
            for d in range(4):
                w_ = WA + (i * 2 + v) * 4 + d
                k(f"v_lshlrev_b32 v{T+14}, 16, v{w_}\nv_and_b32 v{T+15}, 0xffff0000, v{w_}")
                if i == 0: k(f"v_pk_mul_f32 {vr(A0+v*8+2*d,2)}, {vr(T+14,2)}, {vr(CA,2)} op_sel_hi:[1,0]")
                else: k(f"v_pk_fma_f32 {vr(A0+v*8+2*d,2)}, {vr(T+14,2)}, {vr(CA+2,2)}, {vr(A0+v*8+2*d,2)} op_sel_hi:[1,0,1]")
    k("s_nop 1")
    for j in range(8): k(f"v_permlane32_swap_b32 v{A0+j}, v{A0+8+j}")
    k("s_nop 1")
    for j in range(8): k(f"v_add_f32 v{A0+j}, v{A0+j}, v{A0+8+j}")
    k("s_nop 1")
    for j in range(4): k(f"v_permlane16_swap_b32 v{A0+j}, v{A0+4+j}")
    k("s_nop 1")
    for j in range(4): k(f"v_add_f32 v{A0+j}, v{A0+j}, v{A0+4+j}")
    k("s_nop 1")
    for j in range(4): k(f"v_add_f32_dpp v{A0+j}, v{A0+j}, v{A0+j} row_ror:8 row_mask:0xf bank_mask:0xf")
    k(f"v_lshrrev_b32 v{T+13}, 5, v{LANE}\nv_lshlrev_b32 v{T+14}, 8, v{T+13}\nv_lshl_add_u32 v{T+14}, v{T+2}, 5, v{T+14}")
    k(f"v_bfe_u32 v{T+15}, v{LANE}, 4, 1\nv_lshl_add_u32 v{T+14}, v{T+15}, 4, v{T+14}\ns_lshl_b32 s94, s{S_WAVE}, 9\nv_add_u32 v{T+14}, s94, v{T+14}")
    k(f"ds_write_b128 v{T+14}, {vr(A0,4)} offset:{HL}")
    k(f"s_waitcnt vmcnt({young})")
    for d in range(16): k(f"v_lshlrev_b32 v{XF+2*d}, 16, v{XR+d}\nv_and_b32 v{XF+2*d+1}, 0xffff0000, v{XR+d}")
    k(f"v_pk_add_f32 {vr(SU,2)}, {vr(XF,2)}, {vr(XF+2,2)}")
    for d in range(2, 16): k(f"v_pk_add_f32 {vr(SU,2)}, {vr(SU,2)}, {vr(XF+2*d,2)}")
    k(f"v_add_f32 v{SU}, v{SU}, v{SU+1}")
    red32(k, SU, SU + 1)
    k(f"v_mul_f32 v{SU+2}, {-1.0/1024!r}, v{SU}")
    k(f"v_mov_b32 v{SU}, 0\nv_mov_b32 v{SU+1}, 0")
    for d in range(16):
        k(f"v_pk_add_f32 {vr(XF+2*d,2)}, {vr(XF+2*d,2)}, {vr(SU+2,2)} op_sel_hi:[1,0]")
        k(f"v_pk_fma_f32 {vr(SU,2)}, {vr(XF+2*d,2)}, {vr(XF+2*d,2)}, {vr(SU,2)}")
    k(f"v_add_f32 v{SU}, v{SU}, v{SU+1}")
    red32(k, SU, SU + 1)
    k(f"v_mov_b32 v{SU+1}, 0x3727c5ac\nv_fmac_f32 v{SU+1}, {1.0/1024!r}, v{SU}\nv_rsq_f32 v{SU+3}, v{SU+1}")
    k(f"s_lshl_b32 s94, s{S_WAVE}, 4\nv_lshlrev_b32 v{T+13}, 3, v{T+13}\nv_add_u32 v{T+13}, s94, v{T+13}")
    k(f"ds_write_b64 v{T+13}, {vr(SU+2,2)} offset:{HL+2048}")
    n3 = k.label("not3")
    k(f"s_cmp_lg_u32 s{S_WAVE}, 3\ns_cbranch_scc1 {n3}")
    k(f"v_and_b32 v{T+14}, 3, v{LANE}\nv_lshlrev_b32 v{T+14}, 2, v{T+14}")
    spin(k, [f"buffer_load_dword v{T+13}, v{T+14}, {sr(SRD_T,4)}, 0 offen sc1"], [T + 13], 0)
    k(f"{n3}:")
    k("s_waitcnt lgkmcnt(0)\ns_barrier")
    k.stamp("partials")
    nw0 = k.label("notw0")
    k(f"v_lshlrev_b32 v{T+6}, 3, v{LANE}")
    k(f"s_cmp_lg_u32 s{S_WAVE}, 0\ns_cbranch_scc1 {nw0}")
    for w in range(4): k(f"ds_read_b64 {vr(A0+2*w,2)}, v{T+6} offset:{HL+w*512}")
    k(f"v_and_b32 v{T+9}, 0x38, v{T+6}")
    k(f"ds_read_b64 {vr(A0+8,2)}, v{T+9} offset:{HL+2048}")
    k(f"s_lshl_b32 s94, s{S_HP}, 13\ns_lshl_b32 s95, s{S_RB1}, 9\ns_add_u32 s95, s95, s94")
    k(f"s_lshl_b32 s90, s89, 6\ns_add_u32 s90, s90, {MP_RS}")
    k("s_waitcnt lgkmcnt(0)")
    k(f"v_pk_add_f32 {vr(A0,2)}, {vr(A0,2)}, {vr(A0+2,2)}\nv_pk_add_f32 {vr(A0+4,2)}, {vr(A0+4,2)}, {vr(A0+6,2)}\nv_pk_add_f32 {vr(A0,2)}, {vr(A0,2)}, {vr(A0+4,2)}")
    k(f"buffer_store_dwordx2 {vr(A0,2)}, v{T+6}, {sr(SRD_B,4)}, s95 offen sc1")
    k(f"buffer_store_dwordx2 {vr(A0+8,2)}, v{T+9}, {sr(SRD_B,4)}, s90 offen sc1")
    k(f"s_lshl_b32 s90, s89, {FS}\ns_add_u32 s90, s90, {F_S0}")
    k("s_waitcnt vmcnt(0)")
    k(f"buffer_store_dword v{T+12}, v{T+8}, {sr(SRD_F,4)}, s90 offen sc1")
    if opt.get("modb_front", 0):
        sk_ = k.label("skmf")
        k(f"s_branch {sk_}")
        k(f"{nw0}:")
        k("s_waitcnt vmcnt(0)")
        for g in modb_loads(S_MB, V_W, V_C):
            for x in g: k(x)
        k(f"s_mov_b32 s{S_MB}, 0x7ff00000")
        k(f"{sk_}:")
    else:
        k(f"{nw0}:")
    k.stamp("s0 published")
    split = opt.get("split", 1)
    g1 = (setup_gemm1s if split else setup_gemm1)(k, opt)
    srd(k, SRD_W, P_WQKV, D * 3 * D * 2)
    if not opt.get("modb_front", 0):
        k("s_waitcnt vmcnt(1)")
        k(f"s_cmp_eq_u32 s{S_WAVE}, 0\ns_cbranch_scc1 1\ns_waitcnt vmcnt(0)")
    for d in range(16): k(f"v_lshlrev_b32 v{XF+2*d}, 16, v{XT_+d}\nv_and_b32 v{XF+2*d+1}, 0xffff0000, v{XT_+d}")
    VS = T + 4
    k(f"v_lshrrev_b32 v{VS}, 2, v{T+2}\nv_lshlrev_b32 v{VS}, 10, v{VS}")
    k(f"v_and_b32 v{T+3}, 3, v{T+2}\nv_lshl_add_u32 v{VS}, v{T+3}, 8, v{VS}\nv_lshl_add_u32 v{VS}, v{T+1}, 4, v{VS}")
    k(f"s_lshl_b32 s86, s{S_RB1}, 3\ns_lshl_b32 s87, s{S_WAVE}, 1\ns_add_u32 s86, s86, s87\ns_lshl_b32 s86, s86, 15\ns_lshl_b32 s87, s{S_HP}, 11\ns_add_u32 s86, s86, s87\ns_add_u32 s87, s86, 0x8000")
    k(f"s_lshl_b32 s88, s{S_RB1}, 2\ns_add_u32 s88, s88, s{S_WAVE}\ns_lshl_b32 s88, s88, {FS+4}\ns_add_u32 s88, s88, {F_H}\ns_lshl_b32 s89, s{S_HP}, {FS}\ns_add_u32 s89, s89, s88")
    k(f"v_lshlrev_b32 v{T+5}, 5, v{T+2}")
    k(f"s_lshl_b32 s92, s{S_WAVE}, 8\nv_lshlrev_b32 v{T+7}, 3, v{T+1}\nv_add_u32 v{T+7}, s92, v{T+7}")
    nw1 = k.label("notw0b")
    k(f"s_cmp_lg_u32 s{S_WAVE}, 0\ns_cbranch_scc1 {nw1}")
    k(f"v_and_b32 v{T+9}, 15, v{LANE}\ns_lshl_b32 s92, s{S_RB1}, 4\nv_add_u32 v{T+10}, s92, v{T+9}\nv_lshlrev_b32 v{T+9}, 4, v{T+9}\nv_add_u32 v{T+9}, s{S_HP}, v{T+9}")
    k(f"v_and_b32 v{T+11}, 16, v{LANE}\nv_cmp_eq_u32 vcc, 0, v{T+11}\ns_mov_b32 s92, {F_S0}\ns_nop 0")
    k(f"v_cndmask_b32 v{T+9}, v{T+9}, v{T+10}, vcc\nv_lshlrev_b32 v{T+9}, {FS}, v{T+9}")
    spin(k, [f"buffer_load_dword v{T+13}, v{T+9}, {sr(SRD_F,4)}, s92 offen sc1"], [T + 13], 0)
    k(f"s_lshl_b32 s94, s{S_HP}, 13\ns_add_u32 s95, s94, 4096")
    for p_ in range(16): k(f"buffer_load_dwordx2 {vr(G+2*p_,2)}, v{T+6}, {sr(SRD_B,4)}, s{94+p_//8} offen offset:{(p_%8)*512} sc1")
    k(f"s_lshl_b32 s90, s{S_RB1}, 10\ns_add_u32 s90, s90, {MP_RS}")
    k(f"buffer_load_dwordx4 {vr(A0+8,4)}, v{L16}, {sr(SRD_B,4)}, s90 offen sc1")
    k(f"v_cmp_lt_u32 vcc, 31, v{LANE}")
    k("s_waitcnt vmcnt(1)")
    for st in (8, 4, 2, 1):
        for j in range(st): k(f"v_pk_add_f32 {vr(G+2*j,2)}, {vr(G+2*j,2)}, {vr(G+2*(j+st),2)}")
    k(f"v_cvt_pk_bf16_f32 v{G+2}, v{G}, v{G+1}\nv_lshlrev_b32 v{G}, 16, v{G+2}\nv_and_b32 v{G+1}, 0xffff0000, v{G+2}")
    k(f"v_pk_add_f32 {vr(G+4,2)}, {vr(G,2)}, 1.0 op_sel_hi:[1,0]")
    k(f"v_cvt_pk_bf16_f32 v{G+2}, v{G+4}, v{G+5}\nv_lshlrev_b32 v{G+4}, 16, v{G+2}\nv_and_b32 v{G+5}, 0xffff0000, v{G+2}")
    k(f"v_cndmask_b32 v{G}, v{G}, v{G+4}, vcc\nv_cndmask_b32 v{G+1}, v{G+1}, v{G+5}, vcc")
    k(f"ds_write_b64 v{T+6}, {vr(G,2)} offset:{HL+4096}")
    k("s_waitcnt vmcnt(0)")
    k(f"ds_write_b128 v{L16}, {vr(A0+8,4)} offset:{HL+5120}")
    k("s_waitcnt lgkmcnt(0)")
    k(f"{nw1}:")
    g1.prefetch(k, opt.get("h_pre0", 0))
    srd(k, SRD_T, P_WS, S * D * 2, WS_H)
    k("s_barrier")
    k.stamp("s0 ready")
    for h in range(2): k(f"ds_read_b128 {vr(M+4*h,4)}, v{T+5} offset:{HL+4096+h*16}\nds_read_b128 {vr(M+8+4*h,4)}, v{T+5} offset:{HL+4096+256+h*16}")
    for i in range(4): k(f"ds_read_b64 {vr(RS+2*i,2)}, v{T+7} offset:{HL+5120+i*64}")
    k("s_waitcnt lgkmcnt(0)")
    for i in range(4):
        for j in range(4): k(f"v_pk_add_f32 {vr(XF+8*i+2*j,2)}, {vr(XF+8*i+2*j,2)}, {vr(RS+2*i,2)} op_sel_hi:[1,0]")
        for j in range(4): k(f"v_pk_mul_f32 {vr(XF+8*i+2*j,2)}, {vr(XF+8*i+2*j,2)}, {vr(RS+2*i,2)} op_sel:[0,1] op_sel_hi:[1,1]")
        for j in range(4): k(f"v_pk_fma_f32 {vr(XF+8*i+2*j,2)}, {vr(XF+8*i+2*j,2)}, {vr(M+8+2*j,2)}, {vr(M+2*j,2)}")
        for j in range(4): k(f"v_cvt_pk_bf16_f32 v{XR+4*i+j}, v{XF+8*i+2*j}, v{XF+8*i+2*j+1}")
        k(f"buffer_store_dwordx4 {vr(XR+4*i,4)}, v{VS}, {sr(SRD_T,4)}, s{86 + i//2} offen offset:{(i%2)*128} sc1")
    k.stamp("h computed")
    mk = len(k.L)
    g1.prefetch(k, opt.get("h_pre1a", 4 if split else 6))
    publish(k, 89, T, mk)
    k.stamp("h published")
    g1.prefetch(k, opt.get("h_pre1", 8 if split else 6))
    if not split:
        k.g3 = setup_gemm3_early(k, opt, LANE, 56)
        for i in range(8): k(f"global_load_ushort {ar(A_UT+32+i,1)}, v{V_C}, s[{P_C}:{P_C+1}] offset:{i*16}")
    k(f"v_and_b32 v252, 15, v{LANE}\nv_lshlrev_b32 v252, {FS}, v252\ns_mov_b32 s93, s88")
    staged_wait(k, g1, opt.get("g1_T", 5 if split else 4), 252, 93, 253, one_prod)
    k.stamp("h ready")
    return g1

def phase_front(k, opt, name):
    LANE, L16 = 104, 105
    T = 48
    V_W, V_C = 115, 109
    RS, XR, XT_, XF, G, M = 64, 128, 144, 0, 160, 32
    HL = 2 * 25344
    k(f"v_and_b32 v{LANE}, 63, v0")
    k(f"v_lshrrev_b32 v{T+1}, 3, v{LANE}\nv_and_b32 v{T+2}, 7, v{LANE}")
    k(f"v_lshlrev_b32 v{T+5}, 11, v{T+1}\nv_lshl_add_u32 v{T+5}, v{T+2}, 4, v{T+5}")
    k(f"s_lshl_b32 s91, s{S_RB1}, 18\ns_lshl_b32 s92, s{S_WAVE}, 16\ns_add_u32 s91, s91, s92\ns_lshl_b32 s92, s{S_HP}, 7\ns_add_u32 s91, s91, s92")
    k(f"v_lshlrev_b32 v{T+8}, 3, v{LANE}\nv_lshlrev_b32 v{T+6}, 3, v{T+1}")
    k(f"s_lshl_b32 s94, s{S_HP}, 13\ns_add_u32 s95, s94, 4096")
    k(f"s_lshl_b32 s90, s{S_RB1}, 10\ns_lshl_b32 s93, s{S_WAVE}, 8\ns_add_u32 s90, s90, s93\ns_add_u32 s90, s90, {MP_RS}")
    k("s_waitcnt lgkmcnt(0)")
    srd(k, SRD_B, P_WS, MP_BYTES, WS_MODP)
    srd(k, SRD_A, P_X, S * D * 2)
    for p_ in range(16): k(f"buffer_load_dwordx2 {vr(G+2*p_,2)}, v{T+8}, {sr(SRD_B,4)}, s{94+p_//8} offen offset:{(p_%8)*512}")
    for i in range(4): k(f"buffer_load_dwordx2 {vr(RS+2*i,2)}, v{T+6}, {sr(SRD_B,4)}, s90 offen offset:{i*64}")
    for i in range(4):
        k(f"buffer_load_dwordx4 {vr(XT_+4*i,4)}, v{T+5}, {sr(SRD_A,4)}, s91 offen")
        if i < 3: k("s_add_u32 s91, s91, 16384")
    k.stamp("loads issued")
    def touch(ptr, per, vt, off=0):
        k(f"s_lshl_b32 s80, s2, 2\ns_add_u32 s80, s80, s{S_WAVE}\ns_mul_i32 s80, s80, {per*128}")
        if off: k(f"s_add_u32 s80, s80, {off}")
        k(f"v_min_u32 v{vt}, {per-1}, v{LANE}\nv_lshlrev_b32 v{vt}, 7, v{vt}\nv_add_u32 v{vt}, s80, v{vt}")
        k(f"global_load_dword a232, v{vt}, s[{ptr}:{ptr+1}]")
    nt0 = 0
    if opt.get("m_touch", 0) == 1: touch(P_WQKV, 48, 254); nt0 = 1
    g1 = setup_gemm1(k, opt)
    srd(k, SRD_W, P_WQKV, D * 3 * D * 2)
    n0 = opt.get("h_pre0", 6)
    g1.prefetch(k, n0)
    n0 += nt0
    srd(k, SRD_F, P_WS, FLAG_BYTES, WS_FLAG)
    srd(k, SRD_T, P_WS, S * D * 2, WS_H)
    VS = T + 4
    k(f"v_lshrrev_b32 v{VS}, 2, v{T+2}\nv_lshlrev_b32 v{VS}, 10, v{VS}")
    k(f"v_and_b32 v{T+3}, 3, v{T+2}\nv_lshl_add_u32 v{VS}, v{T+3}, 8, v{VS}\nv_lshl_add_u32 v{VS}, v{T+1}, 4, v{VS}")
    k(f"s_lshl_b32 s86, s{S_RB1}, 3\ns_lshl_b32 s87, s{S_WAVE}, 1\ns_add_u32 s86, s86, s87\ns_lshl_b32 s86, s86, 15\ns_lshl_b32 s87, s{S_HP}, 11\ns_add_u32 s86, s86, s87\ns_add_u32 s87, s86, 0x8000")
    k(f"s_lshl_b32 s88, s{S_WAVE}, 9\nv_add_u32 v{T+8}, s88, v{T+8}\nv_lshlrev_b32 v{T+5}, 5, v{T+2}\nv_add_u32 v{T+5}, s88, v{T+5}")
    k(f"s_lshl_b32 s88, s{S_RB1}, 2\ns_add_u32 s88, s88, s{S_WAVE}\ns_lshl_b32 s88, s88, {FS+4}\ns_add_u32 s88, s88, {F_H}\ns_lshl_b32 s89, s{S_HP}, {FS}\ns_add_u32 s89, s89, s88")
    k(f"v_cmp_lt_u32 vcc, 31, v{LANE}")
    k(f"s_waitcnt vmcnt({8 + n0})")
    for st in (8, 4, 2, 1):
        for j in range(st): k(f"v_pk_add_f32 {vr(G+2*j,2)}, {vr(G+2*j,2)}, {vr(G+2*(j+st),2)}")
    k(f"v_cvt_pk_bf16_f32 v{G+2}, v{G}, v{G+1}\nv_lshlrev_b32 v{G}, 16, v{G+2}\nv_and_b32 v{G+1}, 0xffff0000, v{G+2}")
    k(f"v_pk_add_f32 {vr(G+4,2)}, {vr(G,2)}, 1.0 op_sel_hi:[1,0]")
    k(f"v_cvt_pk_bf16_f32 v{G+2}, v{G+4}, v{G+5}\nv_lshlrev_b32 v{G+4}, 16, v{G+2}\nv_and_b32 v{G+5}, 0xffff0000, v{G+2}")
    k(f"v_cndmask_b32 v{G}, v{G}, v{G+4}, vcc\nv_cndmask_b32 v{G+1}, v{G+1}, v{G+5}, vcc")
    k(f"ds_write_b64 v{T+8}, {vr(G,2)} offset:{HL}")
    k("s_waitcnt lgkmcnt(0)")
    for h in range(2): k(f"ds_read_b128 {vr(M+4*h,4)}, v{T+5} offset:{HL+h*16}\nds_read_b128 {vr(M+8+4*h,4)}, v{T+5} offset:{HL+256+h*16}")
    for i in range(4):
        k(f"s_waitcnt vmcnt({3 - i + n0})")
        for d in range(4): k(f"v_lshlrev_b32 v{XF+8*i+2*d}, 16, v{XT_+4*i+d}\nv_and_b32 v{XF+8*i+2*d+1}, 0xffff0000, v{XT_+4*i+d}")
        for j in range(4): k(f"v_pk_add_f32 {vr(XF+8*i+2*j,2)}, {vr(XF+8*i+2*j,2)}, {vr(RS+2*i,2)} op_sel_hi:[1,0]")
        for j in range(4): k(f"v_pk_mul_f32 {vr(XF+8*i+2*j,2)}, {vr(XF+8*i+2*j,2)}, {vr(RS+2*i,2)} op_sel:[0,1] op_sel_hi:[1,1]")
    k("s_waitcnt lgkmcnt(0)")
    for i in range(4):
        for j in range(4): k(f"v_pk_fma_f32 {vr(XF+8*i+2*j,2)}, {vr(XF+8*i+2*j,2)}, {vr(M+8+2*j,2)}, {vr(M+2*j,2)}")
        for j in range(4): k(f"v_cvt_pk_bf16_f32 v{XR+4*i+j}, v{XF+8*i+2*j}, v{XF+8*i+2*j+1}")
        k(f"buffer_store_dwordx4 {vr(XR+4*i,4)}, v{VS}, {sr(SRD_T,4)}, s{86 + i//2} offen offset:{(i%2)*128} sc1")
    k.stamp("h computed")
    code_prefetch_setup(k, name)
    srd(k, SRD_D, P_WMOD, D * 6 * D * 2)
    k(f"v_mul_u32_u24 v{V_W}, 12288, v{T+1}\nv_lshl_add_u32 v{V_W}, v{T+2}, 4, v{V_W}")
    k(f"s_lshl_b32 s84, s{S_RB1}, 6\nv_add_u32 v{V_C}, s84, v{T+1}\nv_lshlrev_b32 v{V_C}, 1, v{V_C}")
    k(f"s_mul_i32 s86, s84, 12288\ns_lshl_b32 s87, s{S_HP}, 7\ns_add_u32 s86, s86, s87")
    k(f"s_lshl_b32 s94, s{S_WAVE}, 11\ns_add_u32 s{S_MB}, s86, s94\ns_add_u32 s{S_MB}, s{S_MB}, 4096")
    k(f"s_lshl_b32 s94, s{S_WAVE}, 16\ns_lshl_b32 s95, s{S_HP}, 12\ns_add_u32 s94, s94, s95\ns_lshl_b32 s95, s{S_RB1}, 8\ns_add_u32 s94, s94, s95\ns_add_u32 s{S_MO}, s94, {MP_B}")
    k.g3 = setup_gemm3_early(k, opt, LANE, 56)
    publish(k, 89, T)
    k.stamp("h published")
    if opt.get("m_touch", 0) == 2: touch(P_WQKV, 48, 254)
    k("s_barrier")
    g1.prefetch(k, opt.get("h_pre1", 12))
    for i in range(8): k(f"global_load_ushort {ar(A_UT+32+i,1)}, v{V_C}, s[{P_C}:{P_C+1}] offset:{i*16}")
    k(f"v_and_b32 v252, 15, v{LANE}\nv_lshlrev_b32 v252, {FS}, v252\ns_mov_b32 s93, s88")
    staged_wait(k, g1, opt.get("g1_T", 4), 252, 93, 253, one_prod)
    k.stamp("h ready")
    return g1

def setup_gemm24(k, which, opt, base):
    c = Sched(); common_gemm(c)
    K = 1024 if which == 2 else 3584
    NS, R = 4, opt.get(f"g{which}_R", 4)
    STAGE = 8448
    if isinstance(base, tuple): V_RD, V_DMA, V_TOK, LANE, L16, VT = base
    else:
        V_RD, V_DMA, V_TOK, LANE, L16, VT = base, base + 1, base + 2, base + 4, base + 5, base + 6
        lane_id(k, LANE)
        k(f"v_lshlrev_b32 v{L16}, 4, v{LANE}")
    c.LANE, c.L16 = LANE, L16
    hs = c.hs = opt.get("hsplit", 1) and opt.get("split", 1)
    order(c, k, opt, "g2", ["win", [8, 8], 0] if hs else ["win", [1, 1, 2, 4, 8], 1])
    if hs:
        c.w_off = lambda sd, kt: [T(x) for x in c.pos_txt(sd, kt)] + [T(f"s_mul_i32 s{sd}, s{sd}, {128*2048}")] + ([T(f"s_add_u32 s{sd}, s{sd}, {(32 - 8*128)*2048}")] if kt >= 8 else [])
        c.t_off = lambda sd, kt: [T(x) for x in c.pos_txt(sd, kt)] + [T(f"s_lshl_b32 s{sd}, s{sd}, 12")] + ([T(f"s_add_u32 s{sd}, s{sd}, {1024 - 8*4096}")] if kt >= 8 else [])
        c.sub_stride = 2048
    k(f"s_lshr_b32 s80, s{S_WAVE}, 1\ns_and_b32 s81, s{S_WAVE}, 1")
    k(f"s_lshl_b32 s82, s80, {6 if hs else 5}\ns_lshl_b32 s83, s81, 1\ns_add_u32 s82, s82, s83\ns_lshl_b32 s82, s82, 11")
    k(f"s_lshl_b32 s83, s{S_NT}, 7\ns_add_u32 s82, s82, s83")
    k(f"v_lshrrev_b32 v{VT}, 3, v{LANE}\nv_lshlrev_b32 v{VT}, 13, v{VT}")
    k(f"v_and_b32 v{VT+1}, 7, v{LANE}\nv_lshl_add_u32 v{VT}, v{VT+1}, 4, v{VT}")
    k(f"v_add_u32 v{V_DMA}, s82, v{VT}")
    k(f"v_bfe_u32 v{VT}, v{LANE}, 2, 2\nv_mul_u32_u24 v{VT}, 1056, v{VT}")
    k(f"v_lshrrev_b32 v{VT+1}, 4, v{LANE}\nv_lshl_add_u32 v{VT}, v{VT+1}, 7, v{VT}")
    k(f"v_and_b32 v{VT+1}, 3, v{LANE}\nv_lshl_add_u32 v{V_RD}, v{VT+1}, 3, v{VT}")
    k(f"v_add_u32 v{V_RD}, {L_R2}, v{V_RD}")
    k(f"s_lshl_b32 s82, s{S_RB2}, 3\ns_lshl_b32 s83, s{S_WAVE}, 1\ns_add_u32 s82, s82, s83\ns_mul_i32 s82, s82, {K//32*1024}")
    k(f"v_add_u32 v{V_TOK}, s82, v{L16}\nv_add_u32 v{V_TOK+1}, {K//32*1024}, v{V_TOK}")
    k(f"s_mul_i32 s{S_WB}, s80, 4224\ns_mul_i32 s82, s81, 2112\ns_add_u32 s{S_WB}, s{S_WB}, s82\ns_add_u32 s{S_WB}, s{S_WB}, {L_R2}")
    srd(k, SRD_W, P_WO if which == 2 else P_W2, K * D * 2)
    c.NB, c.TB, c.KS, c.SPK, c.KT, c.NS, c.R = 4, 2, 2, 1, K // 64, NS, R
    c.acc = lambda b, t: vr((b * 2 + t) * 4, 4)
    c.tf = lambda slot, ks, t: 64 + ((slot * 2 + ks) * 2 + t) * 4
    c.rd = lambda sl, b, sub, r: (V_RD, sl * STAGE + sub * 4224 + r * 512 + b * 32)
    c.slot_addr = lambda sl: sl * STAGE
    c.dma = [(V_DMA, 0, 0), (V_DMA, 1056, 2048)]
    c.v_tok = [V_TOK, V_TOK + 1]
    c.w_stride = 64 * 2048
    c.drop = opt.get(f"g{which}_drop", ())
    c.pro_units, c.ramp_rate, c.read_margin = opt.get(f"g{which}_pro", 12), opt.get(f"g{which}_ramp", 6), 4
    std_sched(c)
    return c

S_G80, S_G192 = 6, 7
def setup_gemm4p(k, opt, base):
    c = Sched(); common_gemm(c)
    HS = 8448; STAGE = 2 * HS
    L = 12; KT = 28; MAIN = KT - L
    V_RD, V_DE, V_DK, V_TOK, LANE, L16, VT = base, base + 2, base + 3, base + 4, base + 6, base + 7, base + 8
    c.LANE, c.L16, c.V_DE, c.V_DK, c.V_TOK = LANE, L16, V_DE, V_DK, V_TOK
    lane_id(k, LANE)
    k(f"v_lshlrev_b32 v{L16}, 4, v{LANE}")
    c.KT = KT
    order(c, k, opt, "g4", ["win", [4, 4, 8, 8, 4], 0])
    k(f"s_lshr_b32 s80, s{S_WAVE}, 1\ns_and_b32 s81, s{S_WAVE}, 1")
    k(f"s_mul_i32 s{S_G80}, s80, {80*2048}\ns_mul_i32 s{S_G192}, s80, {192*2048}")
    k("s_lshl_b32 s82, s80, 5\ns_lshl_b32 s83, s81, 1\ns_add_u32 s82, s82, s83")
    k(f"s_and_b32 s{S_TMP}, s{S_NT}, 1\ns_mul_i32 s83, s{S_TMP}, 1792\ns_add_u32 s82, s82, s83\ns_lshl_b32 s82, s82, 11")
    k(f"v_lshrrev_b32 v{VT}, 3, v{LANE}\nv_lshlrev_b32 v{VT}, 13, v{VT}")
    k(f"v_and_b32 v{VT+1}, 7, v{LANE}\nv_lshl_add_u32 v{VT}, v{VT+1}, 4, v{VT}")
    k(f"v_add_u32 v{VT}, s82, v{VT}")
    k(f"s_lshl_b32 s83, s{S_NT}, 7\nv_add_u32 v{V_DK}, s83, v{VT}\nv_xor_b32 v{V_DE}, 128, v{V_DK}")
    k(f"v_bfe_u32 v{VT}, v{LANE}, 2, 2\nv_mul_u32_u24 v{VT}, 1056, v{VT}")
    k(f"v_lshrrev_b32 v{VT+1}, 4, v{LANE}\nv_lshl_add_u32 v{VT}, v{VT+1}, 7, v{VT}")
    k(f"v_and_b32 v{VT+1}, 3, v{LANE}\nv_lshl_add_u32 v{V_RD+1}, v{VT+1}, 3, v{VT}")
    k(f"v_add_u32 v{V_RD}, {L_R2}, v{V_RD+1}")
    k(f"s_lshl_b32 s82, s{S_RB2}, 3\ns_lshl_b32 s83, s{S_WAVE}, 1\ns_add_u32 s82, s82, s83\ns_mul_i32 s82, s82, {112*1024}")
    k(f"s_mul_i32 s83, s{S_TMP}, {56*1024}\ns_add_u32 s82, s82, s83")
    k(f"v_add_u32 v{V_TOK}, s82, v{L16}\nv_add_u32 v{V_TOK+1}, {112*1024}, v{V_TOK}")
    k(f"s_mul_i32 s{S_WB}, s80, 4224\ns_mul_i32 s82, s81, 2112\ns_add_u32 s{S_WB}, s{S_WB}, s82")
    srd(k, SRD_W, P_W2, F * D * 2)
    c.drop = opt.get("g4_drop", ())
    V2E, V2K, V2T = 200, 201, 202
    c.V2 = (V2E, V2K, V2T)
    NS4 = opt.get("g4_NS", 4)
    slot_addr = [L_R2, L_R2 + STAGE] + [1024 + i * STAGE for i in range(6)]
    c.V_RD3 = 206; c.V_RD = V_RD
    def rd(sl, half, b, sub, r):
        off = half * HS + sub * 4224 + r * 512 + b * 32
        if sl < 2: return (V_RD, sl * STAGE + off)
        if sl < 5: return (V_RD + 1, slot_addr[sl] + off)
        return (c.V_RD3, slot_addr[sl] - slot_addr[5] + off)
    c.rd3_base = slot_addr[5]
    NT_ = 2 * L
    tf = lambda kt, sub, t: 64 + (((kt * 2 + sub) % NT_) * 2 + t) * 4
    acc = lambda b, t: vr((b * 2 + t) * 4, 4)
    c.wf = lambda buf, j: (buf * 8 + j) * 4
    typ = lambda kt: "A" if kt < 16 else ("B1" if kt < 24 else "B2")
    if opt.get("g4_fast", 0):
        base_pos = c.pos_txt
        def pos2(sd, kt):
            o = base_pos(sd, kt)
            if kt >= 16: return o
            t_ = S_PTMP
            o += [f"s_and_b32 s{t_}, s{sd}, 1", f"s_and_b32 s{sd}, s{sd}, 6", f"s_lshl_b32 s{sd}, s{sd}, 1"]
            o += [f"s_mul_i32 s{t_}, s{t_}, 3"] if kt < 8 else [f"s_add_u32 s{t_}, s{t_}, 1"]
            o += [f"s_add_u32 s{sd}, s{sd}, s{t_}"]
            return o
        c.pos_txt = pos2
    def w_off(sd, kt):
        o = [T(x) for x in c.pos_txt(sd, kt)]
        if typ(kt) == "A": o.append(T(f"s_mul_i32 s{sd}, s{sd}, {112*2048}"))
        elif typ(kt) == "B1": o += [T(f"s_mul_i32 s{sd}, s{sd}, {224*2048}"), T(f"s_add_u32 s{sd}, s{sd}, {(64 - 16*224)*2048}"), T(f"s_add_u32 s{sd}, s{sd}, s{S_G80}")]
        else: o += [T(f"s_mul_i32 s{sd}, s{sd}, {448*2048}"), T(f"s_add_u32 s{sd}, s{sd}, {(96 - 24*448)*2048}"), T(f"s_add_u32 s{sd}, s{sd}, s{S_G192}")]
        return o
    halves = [[("E", kt), ("K", kt)] for kt in range(MAIN)]
    halves += [[("E", MAIN + 2 * j), ("E", MAIN + 2 * j + 1)] for j in range(L // 2)]
    halves += [[("K", MAIN + 2 * j), ("K", MAIN + 2 * j + 1)] for j in range(L // 2)]
    cur = None; flip = 0
    for st, hv in enumerate(halves):
        us = []
        for h, (kind, kt) in enumerate(hv):
            pre = []
            if cur != kt:
                flip ^= 1; cur = kt; pre = w_off(c.s_kw + flip, kt)
            vo = (V2E if kind == 'E' else V2K) if typ(kt) == "B2" else (V_DE if kind == 'E' else V_DK)
            for i, goff in enumerate((0, 2048)):
                us.append((pre if i == 0 else []) + [T(f"s_add_u32 m0, s{S_WB}, {slot_addr[st % NS4] + h * HS + i * 1056 - goff}"),
                          VM(f"buffer_load_dwordx4 v{vo}, {sr(SRD_W,4)}, s{c.s_kw + flip} offen" + (f" offset:{goff}" if goff else "") + " lds", ("dma", st))])
        c.stage_units[st] = us; c.stage_slot[st] = st % NS4
        for j in range(2):
            frags = []; toks = []
            parts = [(0, j), (1, j)] if st < MAIN else [(j, 0), (j, 1)]
            for h, sub in parts:
                kind, kt = hv[h]
                if (kt, sub) not in toks: toks.append((kt, sub))
                for b in range(4):
                    va, o0 = rd(st % NS4, h, b, sub, 0); _, o1 = rd(st % NS4, h, b, sub, 1)
                    frags.append((va, o0, o1, [(acc(b + (0 if kind == 'E' else 4), t), tf(kt, sub, t)) for t in range(2)]))
            c.steps.append(dict(frags=frags, stages=[st], toks=toks))
    for kt in range(KT):
        sd = c.s_kt + kt % 2
        for sub in range(2):
            us = []
            for t in range(2):
                g = []
                if sub == 0 and t == 0:
                    g = [T(x) for x in c.pos_txt(sd, kt)]
                    if typ(kt) == "A": g.append(T(f"s_mul_i32 s{sd}, s{sd}, 3584"))
                    elif typ(kt) == "B1": g += [T(f"s_mul_i32 s{sd}, s{sd}, 7168"), T(f"s_add_u32 s{sd}, s{sd}, {2048 - 16*7168}")]
                    else: g += [T(f"s_mul_i32 s{sd}, s{sd}, 14336"), T(f"s_add_u32 s{sd}, s{sd}, {3072 - 24*14336}")]
                key = ("tok", (kt, sub))
                if typ(kt) == "B2":
                    if sub == 1 and t == 0: g.append(T(f"s_add_u32 s{sd}, s{sd}, 7168"))
                    g.append(VM(f"buffer_load_dwordx2 {ar(tf(kt, sub, t),2)}, v{V2T+t}, {sr(SRD_T,4)}, s{sd} offen sc1", key))
                    g.append(VM(f"buffer_load_dwordx2 {ar(tf(kt, sub, t)+2,2)}, v{V2T+t}, {sr(SRD_T,4)}, s{sd} offen offset:3584 sc1", key))
                else:
                    g.append(VM(f"buffer_load_dwordx4 {ar(tf(kt, sub, t),4)}, v{V_TOK+t}, {sr(SRD_T,4)}, s{sd} offen offset:{sub*(1024 if typ(kt) == 'A' else 3584)} sc1", key))
                us.append(g)
            c.tok_units[(kt, sub)] = us; c.tok_slot[(kt, sub)] = (kt * 2 + sub) % NT_
    c.pro_units, c.ramp_rate, c.read_margin, c.lookahead = opt.get("g4_pro", 12), opt.get("g4_ramp", 6), 4, opt.get("g4_la", 7)
    c.MAIN, c.L = MAIN, L
    return c

def phase_gemm4p(k, c, opt):
    LANE, L16 = c.LANE, c.L16
    VT = 72
    srd(k, SRD_T, P_WS, S * F * 2, WS_HH)
    srd(k, SRD_A, P_OUT, S * D * 2)
    srd(k, SRD_B, P_WS, 8 << 20, WS_P4)
    V_G, V_GA, V_XA, V_X, IMP, VF = 96, 76, 77, 80, 128, 78
    for j in range(16): k(f"v_accvgpr_read_b32 v{V_X+j}, a{A_X1+j}")
    k(f"v_and_b32 v{VT}, 15, v{LANE}\nv_lshlrev_b32 v{VT}, {FS}, v{VT}")
    k(f"s_lshl_b32 s84, s{S_RB2}, 1\ns_lshr_b32 s85, s{S_WAVE}, 1\ns_add_u32 s84, s84, s85\ns_lshl_b32 s84, s84, {FS+5}\ns_add_u32 s84, s84, {F_HH}")
    k(f"s_and_b32 s85, s{S_NT}, 1\ns_lshl_b32 s85, s85, {FS+4}\ns_add_u32 s84, s84, s85")
    k(f"v_mov_b32 v252, v{VT}")
    c.tile_of = lambda key: key[0]
    k(f"s_add_u32 s85, s84, {F_HB - F_HH}")
    staged_wait(k, c, opt.get("g4_T", 6), 252, 84, 253, one_prod, pub=(94, 204))
    add_gate(k, c, 16, f"buffer_load_dword v253, v252, {sr(SRD_F,4)}, s85 offen sc1", 253)
    k.stamp("hh ready")
    p = Txt()
    p(f"v_lshrrev_b32 v{VT}, 4, v{LANE}\nv_lshlrev_b32 v{V_GA}, 4, v{VT}\nv_add_u32 v{V_GA}, {L_MV}, v{V_GA}")
    p(f"v_and_b32 v{VT+1}, 15, v{LANE}\nv_lshlrev_b32 v{VT+1}, 11, v{VT+1}")
    p(f"v_and_b32 v{VT+2}, 1, v{VT}\nv_lshl_add_u32 v{VT+1}, v{VT+2}, 5, v{VT+1}")
    p(f"v_lshrrev_b32 v{VT+2}, 1, v{VT}\nv_lshl_add_u32 v{V_XA}, v{VT+2}, 4, v{VT+1}")
    p(f"s_lshl_b32 s86, s{S_RB2}, 3\ns_lshl_b32 s87, s{S_WAVE}, 1\ns_add_u32 s86, s86, s87\ns_lshl_b32 s86, s86, 15\ns_lshl_b32 s87, s{S_NT}, 7\ns_add_u32 s86, s86, s87\ns_add_u32 s87, s86, 32768")
    p(f"s_lshl_b32 s88, s{S_RB2}, 4\ns_add_u32 s88, s88, s{S_NT}\ns_lshl_b32 s88, s88, 2\ns_add_u32 s88, s88, s{S_WAVE}")
    p("s_xor_b32 s89, s88, 4")
    p(f"s_lshl_b32 s90, s88, 13\ns_add_u32 s91, s90, 4096\ns_lshl_b32 s92, s89, 13\ns_add_u32 s93, s92, 4096")
    p(f"s_lshl_b32 s88, s88, {FS}\ns_add_u32 s88, s88, {F_P4}\ns_lshl_b32 s89, s89, {FS}\ns_add_u32 s89, s89, {F_P4}")
    V2E, V2K, V2T = c.V2
    p(f"v_add_u32 v{c.V_RD3}, {c.rd3_base}, v{c.V_RD+1}")
    p(f"v_lshrrev_b32 v{VT}, 5, v{LANE}\nv_mul_u32_u24 v{VT}, {96*2048}, v{VT}\nv_add_u32 v{V2E}, v{c.V_DE}, v{VT}\nv_add_u32 v{V2K}, v{c.V_DK}, v{VT}")
    p(f"v_lshrrev_b32 v{VT}, 1, v{L16}\nv_sub_u32 v{V2T}, v{c.V_TOK}, v{VT}\nv_sub_u32 v{V2T+1}, v{c.V_TOK+1}, v{VT}")
    p(f"v_mov_b32 v{VT}, 1\nv_mov_b32 v{VT+1}, 0")
    c.pre_loop_txt = p.L
    N = len(c.steps); p2 = N - c.L
    for st_ in opt.get("cp4", []): c.late.setdefault(st_, []).extend(code_prefetch_txt(k.name, L16, 254, 80, junk="v240"))
    ex = [VM(f"buffer_store_dwordx4 {vr(4*j,4)}, v{L16}, {sr(SRD_B,4)}, s{90 + j//4} offen offset:{(j%4)*1024} sc1", ("exp", 0)) for j in range(8)]
    ne_ = opt.get("g4_ne", 2)
    for j in range(ne_): c.late[p2 + 1 + j] = ex[j * 8 // ne_:(j + 1) * 8 // ne_]
    c.late[p2 + opt.get("g4_fs", 6)] = [WVM([("exp", 0)]), f"buffer_store_dword v{VT}, v{VT+1}, {sr(SRD_F,4)}, s88 offen sc1"]
    c.late[N - 3] = [VM(f"buffer_load_dword v{VF}, v{VT+1}, {sr(SRD_F,4)}, s89 offen sc1", ("pf", 0))]
    c.last_reads = [f"ds_read_b128 {vr(V_G+4*b,4)}, v{V_GA} offset:{768+b*64}" for b in range(4)]
    m = Txt(); m.label = k.label
    okl = k.label("pok")
    m(f"v_cmp_eq_u32 vcc, 0, v{VF}\ns_cmp_eq_u64 vcc, 0\ns_cbranch_scc1 {okl}")
    spin(m, [f"buffer_load_dword v{VF}, v{VT+1}, {sr(SRD_F,4)}, s89 offen sc1"], [VF], 0)
    m(f"{okl}:")
    c.late[N - 1] = [WVM([("pf", 0)]), T("\n".join(m.L))] + [f"buffer_load_dwordx4 {vr(IMP+4*j,4)}, v{L16}, {sr(SRD_B,4)}, s{92 + j//4} offen offset:{(j%4)*1024} sc1" for j in range(8)]
    c.run(k)
    k.stamp("g4 loop done")
    A = lambda b, t: 32 + (b * 2 + t) * 4
    XT = 112
    XF = 160
    for j in range(16): k(f"v_lshlrev_b32 v{XF+2*j}, 16, v{V_X+j}\nv_and_b32 v{XF+2*j+1}, 0xffff0000, v{V_X+j}")
    k("s_waitcnt vmcnt(0) lgkmcnt(0)")
    for t in range(2):
        for b in range(4):
            for h in range(2): k(f"v_pk_add_f32 {vr(A(b,t)+2*h,2)}, {vr(A(b,t)+2*h,2)}, {vr(IMP+(b*2+t)*4+2*h,2)}")
            for h in range(2): k(f"v_pk_fma_f32 {vr(A(b,t)+2*h,2)}, {vr(A(b,t)+2*h,2)}, {vr(V_G+4*b+2*h,2)}, {vr(XF+(t*4+b)*4+2*h,2)}")
        PK = XT + t * 8
        for b in range(4): k(f"v_cvt_pk_bf16_f32 v{PK+2*b}, v{A(b,t)}, v{A(b,t)+1}\nv_cvt_pk_bf16_f32 v{PK+2*b+1}, v{A(b,t)+2}, v{A(b,t)+3}")
        k("s_nop 1")
        for s_ in range(2): k(f"v_permlane16_swap_b32 v{PK+4*s_}, v{PK+4*s_+2}\nv_permlane16_swap_b32 v{PK+4*s_+1}, v{PK+4*s_+3}")
        for s_ in range(2): k(f"buffer_store_dwordx4 {vr(PK+4*s_,4)}, v{V_XA}, {sr(SRD_A,4)}, s{86+t} offen offset:{s_*64}")

def phase_gemm1(k, c, opt):
    LANE, L16, VT = c.LANE, c.L16, c.VT
    PHK, VV, SH, UTX = 0, 34816, 114688, 126976
    A_PH = 160
    p = Txt()
    srd(p, SRD_A, P_WPHI, H * 2048)
    srd(p, SRD_B, P_WS, 2 << 20, WS_KVP)
    srd(p, SRD_C, P_WS, 128 << 10, WS_ZP)
    A_PW, A_VW, A_PR, A_VR, A_WR = 110, 111, 112, 113, 114
    p(f"s_lshr_b32 s80, s{S_WAVE}, 1\ns_and_b32 s81, s{S_WAVE}, 1")
    p(f"v_and_b32 v{VT}, 15, v{LANE}\ns_lshl_b32 s82, s{S_WAVE}, 5\nv_add_u32 v{VT}, s82, v{VT}")
    p(f"v_lshrrev_b32 v{VT+1}, 4, v{LANE}\nv_lshlrev_b32 v{VT+1}, 3, v{VT+1}")
    p(f"v_mul_u32_u24 v{A_PW}, 136, v{VT}\nv_add_u32 v{A_PW}, v{A_PW}, v{VT+1}")
    p(f"v_mul_u32_u24 v{A_VW}, 72, v{VT}\nv_add_u32 v{A_VW}, v{A_VW}, v{VT+1}")
    p(f"v_lshrrev_b32 v{VT}, 2, v{LANE}\nv_and_b32 v{VT+1}, 3, v{LANE}\nv_lshlrev_b32 v{VT+1}, 3, v{VT+1}")
    p(f"s_mul_i32 s82, s80, 17408\ns_lshl_b32 s83, s81, 6\ns_add_u32 s82, s82, s83")
    p(f"v_mul_u32_u24 v{A_PR}, 136, v{VT}\nv_add_u32 v{A_PR}, v{A_PR}, v{VT+1}\nv_add_u32 v{A_PR}, s82, v{A_PR}")
    p(f"s_mul_i32 s82, s80, 9216")
    p(f"v_mul_u32_u24 v{A_VR}, 72, v{VT}\nv_add_u32 v{A_VR}, v{A_VR}, v{VT+1}\nv_add_u32 v{A_VR}, s82, v{A_VR}")
    p(f"v_lshl_add_u32 v{A_WR}, v{VT}, 6, v{VT+1}\nv_add_u32 v{A_WR}, {L_WPH}, v{A_WR}")
    ONES, SEL = 116, 120
    for j in range(4): p(f"v_mov_b32 v{ONES+j}, 0x3f803f80")
    p(f"v_bfe_u32 v{VT}, v{LANE}, 2, 2\nv_lshrrev_b32 v{VT+1}, 4, v{LANE}")
    p(f"v_cmp_eq_u32 vcc, v{VT}, v{VT+1}")
    p(f"v_and_b32 v{VT}, 1, v{LANE}\nv_lshlrev_b32 v{VT}, 4, v{VT}\nv_mov_b32 v{VT+1}, 0x3f80\nv_lshlrev_b32 v{VT+1}, v{VT}, v{VT+1}")
    p(f"v_cndmask_b32 v{VT+1}, 0, v{VT+1}, vcc")
    p(f"v_and_b32 v{VT}, 2, v{LANE}\nv_cmp_eq_u32 vcc, 0, v{VT}")
    for j in (0, 1, 4, 5): p(f"v_mov_b32 v{SEL+j}, 0")
    p(f"v_cndmask_b32 v{SEL+2}, 0, v{VT+1}, vcc\nv_cndmask_b32 v{SEL+3}, v{VT+1}, 0, vcc")
    p(f"s_mov_b32 s94, {LOG2E!r}\ns_mov_b32 s95, {LOG2E!r}")
    p(f"s_lshl_b32 s84, s{S_HP}, 12\ns_lshl_b32 s85, s{S_WAVE}, 10\ns_add_u32 s84, s84, s85\ns_add_u32 s85, s85, {L_WPH}")
    c.pre_loop_txt = p.L
    c.late = {4: ["s_mov_b32 m0, s85", f"buffer_load_dwordx4 v{L16}, {sr(SRD_A,4)}, s84 offen lds"]}
    if opt.get("cpf", 1): c.late[22] = code_prefetch_txt(k.name, L16, 254, 80)
    ml = modb_loads(S_MB, 115, 109)
    ms = opt.get("modb_steps", [16] * 8)
    if opt.get("modb_front", 0):
        lb = k.label("skw0")
        c.late.setdefault(ms[0], []).append(T("\n".join([f"s_cmp_lg_u32 s{S_WAVE}, 0", f"s_cbranch_scc1 {lb}"] + [x for g in ml for x in g] + [f"{lb}:"])))
        ml = []
    else:
        for st_, g in zip(ms, ml): c.late.setdefault(st_, []).extend(g)
        ml = ml[len(ms):]
    c.last_reads = [f"ds_read_b64_tr_b16 {ar(A_PH+(hh*2+fb)*4+2*r,2)}, v{A_WR} offset:{hh*2048+r*1024+fb*32}" for hh in range(2) for fb in range(2) for r in range(2)]
    c.run(k)
    k.stamp("g1 loop done")
    A = lambda b, t: (b * 2 + t) * 4
    BF, P1, P2, MX, MN, EK = 126, 142, 174, 206, 214, 222
    groups = [(hh, t) for hh in range(2) for t in range(2)]
    def fm_part1(seg):
        for g, (hh, t) in enumerate(groups):
            for db in range(2):
                a = A(seg * 4 + hh * 2 + db, t)
                k(f"v_cvt_pk_bf16_f32 v{BF+g*4+db*2}, v{a}, v{a+1}\nv_cvt_pk_bf16_f32 v{BF+g*4+db*2+1}, v{a+2}, v{a+3}")
        k("s_nop 1")
        for g, (hh, t) in enumerate(groups):
            for fb in range(2):
                k(f"{MF} {vr(P1+g*8+fb*4,4)}, {ar(A_PH+(hh*2+fb)*4,4)}, {vr(BF+g*4,4)}, 0")
    def fm_part2():
        for op3, op2, M in (("v_max3_f32", "v_max_f32", MX), ("v_min3_f32", "v_min_f32", MN)):
            for g in range(4):
                b = P1 + g * 8
                k(f"{op3} v{M+2*g}, v{b}, v{b+1}, v{b+2}\n{op3} v{M+2*g}, v{M+2*g}, v{b+3}, v{b+4}\n{op3} v{M+2*g}, v{M+2*g}, v{b+5}, v{b+6}\n{op2} v{M+2*g}, v{M+2*g}, v{b+7}")
            treduce4(k, op2, [M + 2 * g for g in range(4)])
        for g in range(4):
            k(f"v_mul_f32 v{MX+2*g}, {-LOG2E!r}, v{MX+2*g}\nv_mul_f32 v{MN+2*g}, {LOG2E!r}, v{MN+2*g}")
    def fm_part3(E):
        for g in range(4):
            for j in range(4):
                b = g * 8 + 2 * j
                k(f"v_pk_fma_f32 {vr(P2+b,2)}, {vr(P1+b,2)}, s[94:95], {vr(MN+2*g,2)} op_sel_hi:[1,1,0] neg_lo:[1,0,0] neg_hi:[1,0,0]")
                k(f"v_pk_fma_f32 {vr(P1+b,2)}, {vr(P1+b,2)}, s[94:95], {vr(MX+2*g,2)} op_sel_hi:[1,1,0]")
            for j in range(8): k(f"v_exp_f32 v{P1+g*8+j}, v{P1+g*8+j}")
            for j in range(8): k(f"v_exp_f32 v{P2+g*8+j}, v{P2+g*8+j}")
            k("s_nop 0")
            for sg, PP in enumerate((P1, P2)):
                for j in range(4): k(f"v_cvt_pk_bf16_f32 v{E+(g*2+sg)*4+j}, v{PP+g*8+2*j}, v{PP+g*8+2*j+1}")
    for g in ml:
        for x in g: k(x)
    k("s_waitcnt lgkmcnt(0)\ns_nop 7")
    fm_part1(1)
    k("s_barrier")
    mark0 = len(k.L)
    for g, (hh, t) in enumerate(groups):
        for db in range(2):
            a = A(8 + hh * 2 + db, t)
            k(f"v_cvt_pk_bf16_f32 v{a}, v{a}, v{a+1}\nv_cvt_pk_bf16_f32 v{a+1}, v{a+2}, v{a+3}")
            k(f"ds_write_b64 v{A_VW}, {vr(a,2)} offset:{VV + hh*9216 + t*16*72 + db*32}")
    fm_part2()
    fm_part3(EK)
    SM = 32
    k("s_nop 1")
    for i in range(8): k(f"{MF} {vr(SM+4*i,4)}, {vr(ONES,4)}, {vr(EK+4*i,4)}, 0")
    k("s_nop 7")
    for i in range(8): k(f"v_rcp_f32 v{SM+4*i}, v{SM+4*i}")
    for g, (hh, t) in enumerate(groups):
        for sg, PP in enumerate((P1, P2)):
            for j in range(4):
                k(f"v_pk_mul_f32 {vr(PP+g*8+2*j,2)}, {vr(PP+g*8+2*j,2)}, {vr(SM+(g*2+sg)*4,2)} op_sel_hi:[1,0]")
            for fb in range(2):
                b = PP + g * 8 + fb * 4
                k(f"v_cvt_pk_bf16_f32 v{b}, v{b}, v{b+1}\nv_cvt_pk_bf16_f32 v{b+1}, v{b+2}, v{b+3}")
                k(f"ds_write_b64 v{A_PW}, {vr(b,2)} offset:{PHK + hh*17408 + t*16*136 + sg*64 + fb*32}")
    sprinkle(k, mark0, g3_early_units(k.g3, opt.get("g3_e1", 14), 254))
    k("s_waitcnt lgkmcnt(0)\ns_barrier")
    for s_ in range(4):
        for r in range(2):
            for fb in range(2): k(f"ds_read_b64_tr_b16 {ar(s_*16+fb*4+2*r,2)}, v{A_PR} offset:{PHK + (32*s_+16*r)*136 + fb*32}")
            for db in range(2): k(f"ds_read_b64_tr_b16 {ar(s_*16+8+db*4+2*r,2)}, v{A_VR} offset:{VV + (32*s_+16*r)*72 + db*32}")
    fm_part1(0)
    KV, ZZ = 64, 80
    for s_ in range(4):
        k(f"s_waitcnt lgkmcnt({min(15, 24 - 8*s_)})")
        for fb in range(2):
            for db in range(2):
                d = vr(KV + (db * 2 + fb) * 4, 4)
                k(f"{MF} {d}, {ar(s_*16+fb*4,4)}, {ar(s_*16+8+db*4,4)}, {'0' if s_ == 0 else d}")
            d = vr(ZZ + fb * 4, 4)
            k(f"{MF} {d}, {ar(s_*16+fb*4,4)}, {vr(ONES,4)}, {'0' if s_ == 0 else d}")
    k(f"s_lshl_b32 s82, s{S_HP}, 2\ns_add_u32 s82, s82, s{S_WAVE}")
    k("s_lshl_b32 s83, s82, 15")
    k(f"s_lshl_b32 s84, s{S_RB1}, 10\ns_add_u32 s84, s84, s83\ns_add_u32 s85, s84, 16384")
    k("s_lshl_b32 s90, s82, 11")
    k(f"s_lshl_b32 s91, s82, {FS+4}\ns_add_u32 s91, s91, {F_KV}\ns_lshl_b32 s92, s{S_RB1}, {FS}\ns_add_u32 s92, s92, s91")
    k(f"v_and_b32 v{VT}, 15, v{LANE}\nv_cmp_eq_u32 vcc, s{S_RB1}, v{VT}")
    k("s_nop 2")
    for db in range(2):
        for j in range(4): k(f"v_cvt_pk_bf16_f32 v{88+db*4+j}, v{KV+db*8+2*j}, v{KV+db*8+2*j+1}")
    k(f"buffer_store_dwordx4 {vr(88,4)}, v{L16}, {sr(SRD_B,4)}, s84 offen sc1")
    k(f"buffer_store_dwordx4 {vr(92,4)}, v{L16}, {sr(SRD_B,4)}, s85 offen sc1")
    k("s_and_saveexec_b64 s[96:97], vcc")
    k(f"buffer_store_dwordx4 {vr(ZZ,4)}, v{L16}, {sr(SRD_C,4)}, s90 offen sc1")
    k(f"buffer_store_dwordx4 {vr(ZZ+4,4)}, v{L16}, {sr(SRD_C,4)}, s90 offen offset:1024 sc1")
    k("s_mov_b64 exec, s[96:97]")
    k.stamp("kv stored")
    fm_part2()
    publish(k, 92, VT + 1)
    k.stamp("kv published")
    k("s_mov_b32 s93, s83")
    g2 = setup_gemm24(k, 2, opt, 96)
    k("s_mov_b32 s83, s93")
    g2.prefetch(k, 8)
    fm_part3(EK)
    k(f"v_lshlrev_b32 v{VT}, {FS}, v{VT}")
    wait_flags(k, [(VT, 91, 1)], VT + 1)
    k.stamp("kv ready")
    k(f"buffer_load_dwordx4 {vr(ZZ,4)}, v{L16}, {sr(SRD_C,4)}, s90 offen sc1")
    k(f"buffer_load_dwordx4 {vr(ZZ+4,4)}, v{L16}, {sr(SRD_C,4)}, s90 offen offset:1024 sc1")
    for i in range(32):
        if i % 4 == 0 and i: k("s_add_u32 s83, s83, 4096")
        k(f"buffer_load_dwordx4 {ar(4*i,4)}, v{L16}, {sr(SRD_B,4)}, s83 offen offset:{(i%4)*1024} sc1")
    srd(k, SRD_T, P_WS, S * D * 2, WS_O)
    k("s_waitcnt vmcnt(32)")
    for sh in (8, 4, 2, 1):
        for j in range(8): k(f"v_add_f32_dpp v{ZZ+j}, v{ZZ+j}, v{ZZ+j} row_ror:{sh} row_mask:0xf bank_mask:0xf")
    k(f"v_and_b32 v{VT+1}, 1, v{LANE}\nv_cmp_eq_u32 vcc, 0, v{VT+1}")
    for j in range(4): k(f"v_cvt_pk_bf16_f32 v{BF+8+j}, v{ZZ+2*j}, v{ZZ+2*j+1}")
    for j in range(4): k(f"v_cndmask_b32 v{BF+8+j}, v{ONES}, v{BF+8+j}, vcc")
    for i in range(32):
        db, pp = divmod(i, 16)
        if i % 2 == 0: k(f"s_waitcnt vmcnt({30 - i})")
        for fb in range(2):
            d = vr(KV + (db * 2 + fb) * 4, 4)
            k(f"{MF} {d}, {vr(SEL + (2 if fb == 0 else 0), 4)}, {ar(4*i,4)}, {'0' if pp == 0 else d}")
    k(f"s_mul_i32 s82, s{S_WAVE}, 3072\ns_add_u32 s82, s82, {SH}")
    k(f"v_add_u32 v{VT+1}, s82, v{L16}\nv_add_u32 v{VT+2}, {SH}, v{L16}")
    k("s_nop 6")
    for db in range(2):
        for j in range(4): k(f"v_cvt_pk_bf16_f32 v{BF+db*4+j}, v{KV+db*8+2*j}, v{KV+db*8+2*j+1}")
    for j in range(3): k(f"ds_write_b128 v{VT+1}, {vr(BF+4*j,4)} offset:{j*1024}")
    k("s_waitcnt lgkmcnt(0)\ns_barrier")
    for i in range(12): k(f"ds_read_b128 {ar(4*i,4)}, v{VT+2} offset:{i*1024}")
    k(f"s_lshl_b32 s82, s{S_RB1}, 3\ns_lshl_b32 s83, s{S_WAVE}, 1\ns_add_u32 s82, s82, s83\ns_lshl_b32 s82, s82, 15")
    k(f"s_lshl_b32 s83, s{S_HP}, 11\ns_add_u32 s82, s82, s83\ns_add_u32 s83, s82, 0x8000")
    k(f"s_lshl_b32 s84, s{S_RB1}, 2\ns_add_u32 s84, s84, s{S_WAVE}\ns_lshl_b32 s84, s84, {FS+4}\ns_lshl_b32 s85, s{S_HP}, {FS}\ns_add_u32 s84, s84, s85\ns_add_u32 s84, s84, {F_O}")
    k("s_waitcnt lgkmcnt(0)")
    for g, (hh, t) in enumerate(groups):
        for sg in range(2):
            for j in range(3):
                k(f"{MF} {vr((g*2+sg)*12+4*j,4)}, {ar(((hh*2+sg)*3+j)*4,4)}, {vr(EK+(g*2+sg)*4,4)}, 0")
    k("s_nop 7")
    for g, (hh, t) in enumerate(groups):
        n1, n2 = g * 24, g * 24 + 12
        D1, S1, D2, S2 = n1 + 8, n1 + 9, n2 + 8, n2 + 9
        k(f"v_mul_f32 v{n1+10}, v{S1}, v{S2}")
        k(f"v_mul_f32 v{n1+10}, 0x358637bd, v{n1+10}")
        k(f"v_fmac_f32 v{n1+10}, v{D1}, v{S2}\nv_fmac_f32 v{n1+10}, v{D2}, v{S1}")
        k(f"v_rcp_f32 v{n1+10}, v{n1+10}")
        k("s_nop 0")
        k(f"v_mul_f32 v{D1}, v{S2}, v{n1+10}\nv_mul_f32 v{D2}, v{S1}, v{n1+10}")
        for j in range(4): k(f"v_pk_mul_f32 {vr(n1+2*j,2)}, {vr(n1+2*j,2)}, {vr(D1,2)} op_sel_hi:[1,0]")
        for j in range(4): k(f"v_pk_fma_f32 {vr(n1+2*j,2)}, {vr(n2+2*j,2)}, {vr(D2,2)}, {vr(n1+2*j,2)} op_sel_hi:[1,0,1]")
        for j in range(4): k(f"v_cvt_pk_bf16_f32 v{n2+j}, v{n1+2*j}, v{n1+2*j+1}")
        k(f"buffer_store_dwordx4 {vr(n2,4)}, v{L16}, {sr(SRD_T,4)}, s{82+t} offen offset:{hh*1024} sc1")
    k.stamp("o stored")
    CU, AU, WW, TT = 128, 144, 152, 156
    for i in range(8): k(f"v_accvgpr_read_b32 v{CU+2*i}, a{A_UT+32+i}")
    silu_block(k, [CU + 2 * i for i in range(8)])
    mko = len(k.L)
    g2.V_X = 48
    srd(k, SRD_A, P_X, S * D * 2)
    V_XA = 47
    k(f"v_lshrrev_b32 v{VT+1}, 4, v{LANE}")
    k(f"v_and_b32 v{VT+2}, 15, v{LANE}\nv_lshlrev_b32 v{VT+2}, 11, v{VT+2}\nv_lshl_add_u32 v{V_XA}, v{VT+1}, 3, v{VT+2}")
    k(f"s_lshl_b32 s82, s{S_RB2}, 3\ns_lshl_b32 s83, s{S_WAVE}, 1\ns_add_u32 s82, s82, s83\ns_lshl_b32 s82, s82, 15\ns_lshl_b32 s83, s{S_NT}, 7\ns_add_u32 s82, s82, s83\ns_add_u32 s83, s82, 32768")
    for t in range(2):
        for b in range(4):
            k(f"buffer_load_dwordx2 {vr(g2.V_X+(t*4+b)*2,2)}, v{V_XA}, {sr(SRD_A,4)}, s{82+t} offen offset:{b*32}")
    publish(k, 84, VT + 2, mko)
    k.stamp("o published")
    mark1 = len(k.L)
    for j in range(8): k(f"v_mov_b32 v{AU+j}, 0")
    for i in range(8):
        for d in range(4): k(f"v_accvgpr_read_b32 v{WW+d}, a{A_UT+4*i+d}")
        for d in range(4):
            k(f"v_lshlrev_b32 v{TT}, 16, v{WW+d}\nv_and_b32 v{TT+1}, 0xffff0000, v{WW+d}")
            k(f"v_pk_fma_f32 {vr(AU+2*d,2)}, {vr(TT,2)}, {vr(CU+2*i,2)}, {vr(AU+2*d,2)} op_sel_hi:[1,0,1]")
    k("s_nop 1")
    for j in range(4): k(f"v_permlane32_swap_b32 v{AU+j}, v{AU+j+4}")
    k("s_nop 1")
    for j in range(4): k(f"v_add_f32 v{AU+j}, v{AU+j}, v{AU+j+4}")
    k("s_nop 1")
    for j in range(2): k(f"v_permlane16_swap_b32 v{AU+j}, v{AU+j+2}")
    k("s_nop 1")
    for j in range(2): k(f"v_add_f32 v{AU+j}, v{AU+j}, v{AU+j+2}")
    k("s_nop 1")
    for j in range(2): k(f"v_add_f32_dpp v{AU+j}, v{AU+j}, v{AU+j} row_ror:8 row_mask:0xf bank_mask:0xf")
    sprinkle(k, mark1, g3_early_units(k.g3, opt.get("g3_e2", 7), 254), skip=0)
    k(f"v_and_b32 v{TT}, 7, v{LANE}\nv_lshlrev_b32 v{TT}, 5, v{TT}\nv_lshrrev_b32 v{TT+1}, 5, v{LANE}\nv_lshl_add_u32 v{TT}, v{TT+1}, 4, v{TT}")
    k(f"v_bfe_u32 v{TT+1}, v{LANE}, 4, 1\nv_lshl_add_u32 v{TT}, v{TT+1}, 3, v{TT}")
    srd(k, SRD_D, P_WS, MP_BYTES, WS_MODP)
    k(f"v_or_b32 v{AU}, 1, v{AU}\nv_or_b32 v{AU+1}, 1, v{AU+1}")
    k(f"buffer_store_dwordx2 {vr(AU,2)}, v{TT}, {sr(SRD_D,4)}, s{S_MO} offen sc1")
    return g2

A_PARK = 224
S3_SRD, S3_WB, S3_KW = 64, 68, 69
def setup_gemm3_early(k, opt, LANE, VT):
    c = Sched(); common_gemm(c)
    NS, R = 4, 8
    STAGE = 28672
    V_RD, V_DMA, V_TOK = 224, 226, 233
    c.V_RD, c.V_DMA, c.V_TOK, c.LANE, c.L16, c.VT = V_RD, V_DMA, V_TOK, 237, 238, 248
    c.srd_w, c.s_wbase, c.s_kw = S3_SRD, S3_WB, S3_KW
    order(c, k, opt, 'g3', ['win', [4, 4, 8], 0])
    k(f"s_lshr_b32 s80, s{S_WAVE}, 1\ns_and_b32 s81, s{S_WAVE}, 1")
    k(f"s_mul_i32 s83, s80, {32*7168}\ns_mul_i32 s{S_TMP}, s{S_FT}, 224\ns_add_u32 s83, s83, s{S_TMP}")
    for i in range(7):
        k(f"v_add_u32 v{VT+2}, {i*64}, v{LANE}")
        k(f"v_mul_u32_u24 v{VT+3}, 4682, v{VT+2}")
        k(f"v_lshrrev_b32 v{VT+3}, 16, v{VT+3}")
        k(f"v_mul_u32_u24 v{VT+4}, 14, v{VT+3}")
        k(f"v_sub_u32 v{VT+4}, v{VT+2}, v{VT+4}")
        k(f"v_mul_u32_u24 v{VT+3}, 7168, v{VT+3}")
        k(f"v_lshl_add_u32 v{VT+3}, v{VT+4}, 4, v{VT+3}")
        k(f"v_add_u32 v{VT+3}, s83, v{VT+3}")
        k(f"v_accvgpr_write_b32 a{A_PARK+i}, v{VT+3}")
    k(f"s_mul_i32 s{S3_WB}, s81, 14336\ns_mul_i32 s82, s80, 7168\ns_add_u32 s{S3_WB}, s{S3_WB}, s82")
    k(f"s_cmp_eq_u32 s81, 0\ns_cselect_b32 s{S3_SRD}, s{P_W1}, s{P_W3}\ns_cselect_b32 s{S3_SRD+1}, s{P_W1+1}, s{P_W3+1}")
    k(f"s_mov_b32 s{S3_SRD+2}, {D*F*2}\ns_mov_b32 s{S3_SRD+3}, 0x20000")
    c.NB, c.TB, c.KS, c.SPK, c.KT, c.NS, c.R = 14, 4, 1, 2, 16, NS, R
    c.acc = lambda b, t: vr((b * 4 + t) * 4, 4)
    c.tf = lambda slot, ks, t: 112 + (slot * 4 + t) * 4
    ph = lambda sl: 3 - sl
    c.rd = lambda sl, b, sub, r: (V_RD + ph(sl) // 2, (ph(sl) % 2) * STAGE + (b % 2) * 14336 + (32 * sub + 16 * r) * 224 + 32 * (b // 2))
    c.slot_addr = lambda sl: ph(sl) * STAGE
    c.dma = [(V_DMA + i, i * 1024, 0) for i in range(7)]
    c.v_tok = [V_TOK + t for t in range(4)]
    c.w_stride = 64 * 7168
    c.drop = opt.get("g3_drop", ())
    c.pro_units, c.ramp_rate, c.read_margin = opt.get("g3_pro", 12), (lambda st: opt.get("g3_ramp", 12) if st < 6 else 8), 8
    c.lookahead = opt.get("g3_la", 4)
    std_sched(c)
    TL = c.TL = opt.get("g3_tail", 0)
    if TL:
        tail = c.steps[32 - TL:]
        c.steps = c.steps[:32 - TL] + [dict(st, frags=st["frags"][:8]) for st in tail] + [dict(st, frags=st["frags"][8:]) for st in tail]
    return c
def g3_early_units(c, n, vtmp):
    out = []
    for j in range(n):
        t = c.prefetch_txt(1)
        i = (c.pre_dma - 1) % 7
        ld = t[-1].replace(f"v{c.V_DMA+i},", f"v{vtmp},")
        out.append(t[:-1] + [f"v_accvgpr_read_b32 v{vtmp}, a{A_PARK+i}", ld])
    return out
def setup_gemm3_late(k, c):
    V_RD, V_DMA, V_TOK, LANE, L16, VT = c.V_RD, c.V_DMA, c.V_TOK, c.LANE, c.L16, c.VT
    lane_id(k, LANE)
    k(f"v_lshlrev_b32 v{L16}, 4, v{LANE}")
    for i in range(7): k(f"v_accvgpr_read_b32 v{V_DMA+i}, a{A_PARK+i}")
    k(f"v_lshrrev_b32 v{VT+3}, 2, v{LANE}\nv_mul_u32_u24 v{VT+3}, 224, v{VT+3}")
    k(f"v_and_b32 v{VT+4}, 3, v{LANE}\nv_lshl_add_u32 v{V_RD}, v{VT+4}, 3, v{VT+3}")
    k(f"v_add_u32 v{V_RD+1}, {2*28672}, v{V_RD}")
    k(f"s_lshl_b32 s82, s{S_RB3}, 4\ns_lshl_b32 s83, s{S_WAVE}, 2\ns_add_u32 s82, s82, s83\ns_lshl_b32 s82, s82, 15")
    k(f"v_add_u32 v{V_TOK}, s82, v{L16}")
    for t in range(1, 4): k(f"v_add_u32 v{V_TOK+t}, {t*0x8000}, v{V_TOK}")

def sprinkle(k, mark, groups, skip=4):
    if not groups: return
    seg = k.L[mark:]
    stepn = max(1, (len(seg) - skip) // len(groups))
    out, q = [], list(groups)
    for i, x in enumerate(seg):
        out.append(x)
        if q and i >= skip and (i - skip) % stepn == 0:
            assert not x.startswith("s_cmp") and not x.startswith("s_and_saveexec")
            out += q.pop(0)
    for g in q: out += g
    k.L[mark:] = out

A_X1 = 240
def phase_gemm2(k, c, opt):
    LANE, L16 = c.LANE, c.L16
    VT = 40
    k(f"v_and_b32 v252, 15, v{LANE}\nv_lshlrev_b32 v252, {FS}, v252")
    k(f"s_lshl_b32 s84, s{S_RB2}, 2\ns_add_u32 s84, s84, s{S_WAVE}\ns_lshl_b32 s84, s84, {FS+4}\ns_add_u32 s85, s84, {F_O}")
    if c.hs:
        k(f"s_add_u32 s94, s85, {F_O2 - F_O}")
        staged_wait(k, c, opt.get("g2_T", 5), 252, 85, 253, lambda sp, st: [f"s_lshl_b32 s{st}, s{sp}, 1", f"s_lshl_b32 s{st}, 3, s{st}"], pub=(95, 26))
        add_gate(k, c, 8, f"buffer_load_dword v253, v252, {sr(SRD_F,4)}, s94 offen sc1", 253)
    else:
        staged_wait(k, c, opt.get("g2_T", 6), 252, 85, 253, one_prod)
    k.stamp("o ready")
    V_G, V_C, V_S, V_GA = 64, 80, 136, 44
    p = Txt()
    srd(p, SRD_A, P_WS, S * D * 2, WS_Y)
    srd(p, SRD_B, P_WS, S * 128, WS_STAT)
    srd(p, SRD_D, P_WS, MP_BYTES, WS_MODP)
    p(f"v_lshrrev_b32 v{V_GA}, 4, v{LANE}\nv_lshlrev_b32 v{V_GA}, 4, v{V_GA}\nv_add_u32 v{V_GA}, {L_MV}, v{V_GA}")
    p(f"s_lshl_b32 s86, s{S_RB2}, 3\ns_lshl_b32 s87, s{S_WAVE}, 1\ns_add_u32 s86, s86, s87")
    p(f"s_lshl_b32 s88, s86, 15\ns_lshl_b32 s87, s{S_NT}, 11\ns_add_u32 s88, s88, s87\ns_add_u32 s89, s88, 32768")
    p(f"s_lshl_b32 s87, s{S_NT}, {FS}\ns_add_u32 s84, s84, s87\ns_add_u32 s84, s84, {F_Y}")
    p(f"s_lshl_b32 s91, s86, 11\ns_lshl_b32 s90, s{S_NT}, 8\ns_add_u32 s90, s90, s91")
    p(f"s_lshl_b32 s92, s{S_WAVE}, 16\ns_lshl_b32 s93, s{S_NT}, 12\ns_add_u32 s92, s92, s93\ns_add_u32 s92, s92, {MP_B}")
    p(f"v_lshlrev_b32 v{VT}, 2, v{LANE}")
    c.pre_loop_txt = p.L
    c.late = {}
    if opt.get("cpf", 1): c.late[6] = code_prefetch_txt(k.name, L16, 254, 80)
    m = Txt(); m.label = k.label
    MB_ = 160
    mld = [f"buffer_load_dword v{MB_+j}, v{VT}, {sr(SRD_D,4)}, s92 offen offset:{j*256} sc1" for j in range(16)]
    okm = k.label("mok")
    m(f"v_min_u32 v{MB_+16}, v{MB_}, v{MB_+1}")
    for j in range(2, 16, 2): m(f"v_min3_u32 v{MB_+16}, v{MB_+16}, v{MB_+j}, v{MB_+j+1}")
    m(f"v_cmp_eq_u32 vcc, 0, v{MB_+16}\ns_cmp_eq_u64 vcc, 0\ns_cbranch_scc1 {okm}")
    spin(m, mld, [MB_ + j for j in range(16)], MB_ + 16)
    m(f"{okm}:")
    mchk = "\n".join(m.L); m.L = []
    for st in (4, 2, 1):
        for j in range(st): m(f"v_pk_add_f32 {vr(MB_+2*j,2)}, {vr(MB_+2*j,2)}, {vr(MB_+2*(j+st),2)}")
    m(f"v_add_f32 v{MB_}, v{MB_}, v{MB_+1}")
    round_bf16(m, MB_)
    m(f"v_add_f32 v{MB_+1}, 1.0, v{MB_}"); round_bf16(m, MB_ + 1)
    m(f"s_cmp_eq_u32 s{S_WAVE}, 2\ns_cselect_b64 vcc, -1, 0")
    m(f"v_cndmask_b32 v{MB_}, v{MB_}, v{MB_+1}, vcc")
    m(f"s_lshl_b32 s92, s{S_WAVE}, 8\ns_add_u32 s92, s92, {L_MV}\nv_add_u32 v{VT}, s92, v{VT}")
    m(f"ds_write_b32 v{VT}, v{MB_}")
    ms_ = opt.get("g2_modstep", 13)
    c.late.setdefault(ms_ - 2, []).extend([VM(x, ("mv", 0)) for x in mld])
    k_ = [x for x in m.L]
    i_ = next(i for i, x in enumerate(k_) if x.startswith("s_cmp_eq_u32"))
    c.late[ms_] = [WVM([("mv", 0)]), T(mchk)] + k_[:i_] + ["\n".join(k_[i_:])]
    ne = opt.get("g3_e3", 7 if opt.get("split", 1) else 0)
    eu = [x for g in g3_early_units(k.g3, ne, 254) for x in g]
    c.late.setdefault(14, []).extend(eu[:len(eu)//2 // 1]); c.late.setdefault(15, []).extend(eu[len(eu)//2:])
    c.last_reads = ([f"ds_read_b128 {vr(V_G+4*b,4)}, v{V_GA} offset:{b*64}" for b in range(4)] + [f"ds_read_b128 {vr(V_C+4*b,4)}, v{V_GA} offset:{512+b*64}" for b in range(4)]
                    + [f"ds_read_b128 {vr(V_S+4*b,4)}, v{V_GA} offset:{256+b*64}" for b in range(4)])
    c.run(k)
    k.stamp("g2 loop done")
    k("s_waitcnt lgkmcnt(0)\ns_nop 7")
    A = lambda b, t: (b * 2 + t) * 4
    XT = 194; V_X = c.V_X
    for t in range(2):
        for b in range(4):
            xr = V_X + (t * 4 + b) * 2
            for h in range(2): k(f"v_lshlrev_b32 v{XT+2*h}, 16, v{xr+h}\nv_and_b32 v{XT+2*h+1}, 0xffff0000, v{xr+h}")
            for h in range(2): k(f"v_pk_fma_f32 {vr(A(b,t)+2*h,2)}, {vr(A(b,t)+2*h,2)}, {vr(V_G+4*b+2*h,2)}, {vr(XT+2*h,2)}")
        PK = XT + 4 + t * 8
        for b in range(4): k(f"v_cvt_pk_bf16_f32 v{PK+2*b}, v{A(b,t)}, v{A(b,t)+1}\nv_cvt_pk_bf16_f32 v{PK+2*b+1}, v{A(b,t)+2}, v{A(b,t)+3}")
        for b in range(4):
            for h in range(2): k(f"v_lshlrev_b32 v{A(b,t)+2*h}, 16, v{PK+2*b+h}\nv_and_b32 v{A(b,t)+2*h+1}, 0xffff0000, v{PK+2*b+h}")
    SU = [XT + 20, XT + 22]; M2 = [XT + 21, XT + 23]; TM = [XT + 24, XT + 25]; AC = [XT, XT + 2]; NM = [XT + 26, XT + 28]; DF = 32
    for t in range(2): k(f"v_pk_add_f32 {vr(AC[t],2)}, {vr(A(0,t),2)}, {vr(A(0,t)+2,2)}")
    for b in range(1, 4):
        for h in range(2):
            for t in range(2): k(f"v_pk_add_f32 {vr(AC[t],2)}, {vr(AC[t],2)}, {vr(A(b,t)+2*h,2)}")
    def allred2(X):
        for sw in ("v_permlane32_swap_b32", "v_permlane16_swap_b32"):
            for t in range(2): k(f"v_mov_b32 v{TM[t]}, v{X[t]}")
            k("s_nop 0")
            for t in range(2): k(f"{sw} v{X[t]}, v{TM[t]}")
            k("s_nop 0")
            for t in range(2): k(f"v_add_f32 v{X[t]}, v{X[t]}, v{TM[t]}")
    for t in range(2): k(f"v_add_f32 v{SU[t]}, v{AC[t]}, v{AC[t]+1}")
    allred2(SU)
    for t in range(2): k(f"v_mul_f32 v{NM[t]}, {-1.0/64!r}, v{SU[t]}\nv_mov_b32 v{AC[t]}, 0\nv_mov_b32 v{AC[t]+1}, 0")
    for b in range(4):
        for h in range(2):
            for t in range(2): k(f"v_pk_add_f32 {vr(DF+2*t,2)}, {vr(A(b,t)+2*h,2)}, {vr(NM[t],2)} op_sel_hi:[1,0]")
            for t in range(2): k(f"v_pk_fma_f32 {vr(AC[t],2)}, {vr(DF+2*t,2)}, {vr(DF+2*t,2)}, {vr(AC[t],2)}")
    for t in range(2): k(f"v_add_f32 v{M2[t]}, v{AC[t]}, v{AC[t]+1}")
    allred2(M2)
    k(f"v_cmp_gt_u32 vcc, 16, v{LANE}")
    k(f"v_lshlrev_b32 v{XT+2}, 3, v{LANE}\nv_lshrrev_b32 v{XT+3}, 4, v{LANE}")
    k(f"v_cndmask_b32 v{XT}, v{SU[1]}, v{SU[0]}, vcc\nv_cndmask_b32 v{XT+1}, v{M2[1]}, v{M2[0]}, vcc")
    k(f"v_and_b32 v45, 0x78, v{XT+2}\nv_lshl_add_u32 v45, v{XT+3}, 10, v45")
    k(f"v_or_b32 v{XT+1}, 1, v{XT+1}")
    k(f"v_cmp_gt_u32 vcc, 32, v{LANE}\ns_and_saveexec_b64 s[96:97], vcc")
    k(f"buffer_store_dwordx2 {vr(XT,2)}, v{XT+2}, {sr(SRD_B,4)}, s90 offen sc1")
    k("s_mov_b64 exec, s[96:97]")
    k.stamp("stat stored")
    for t in range(2):
        for b in range(4):
            for h in range(2): k(f"v_pk_mul_f32 {vr(A(b,t)+2*h,2)}, {vr(A(b,t)+2*h,2)}, {vr(V_C+4*b+2*h,2)}")
    for j in range(16): k(f"v_accvgpr_write_b32 a{A_X1+j}, v{XT+4+j}")
    g3 = k.g3
    setup_gemm3_late(k, g3)
    g3.prefetch(k, opt.get("g3_pre0", 0))
    ST = 48
    spin(k, [f"buffer_load_dwordx2 {vr(ST+t*8+j*2,2)}, v45, {sr(SRD_B,4)}, s91 offen offset:{t*128+j*256} sc1" for t in range(2) for j in range(4)],
         [ST + 2 * j + 1 for j in range(8)], XT)
    k.stamp("stat ready")
    for t in range(2):
        b = ST + t * 8
        k(f"v_add_f32 v{SU[t]}, v{b}, v{b+2}\nv_add_f32 v{TM[t]}, v{b+4}, v{b+6}\nv_add_f32 v{SU[t]}, v{SU[t]}, v{TM[t]}")
        k(f"v_add_f32 v{M2[t]}, v{b+1}, v{b+3}\nv_add_f32 v{TM[t]}, v{b+5}, v{b+7}\nv_add_f32 v{M2[t]}, v{M2[t]}, v{TM[t]}")
    allred2(SU)
    for t in range(2): k(f"v_mul_f32 v{SU[t]}, {-1.0/1024!r}, v{SU[t]}")
    for j in range(4):
        for t in range(2): k(f"v_fmamk_f32 v{ST+t*8+2*j}, v{ST+t*8+2*j}, {1.0/64!r}, v{SU[t]}")
        for t in range(2): k(f"v_mul_f32 v{ST+t*8+2*j}, v{ST+t*8+2*j}, v{ST+t*8+2*j}")
        for t in range(2): k(f"v_fmac_f32 v{M2[t]}, 0x42800000, v{ST+t*8+2*j}")
    allred2(M2)
    for t in range(2): k(f"v_mov_b32 v{TM[t]}, 0x3727c5ac\nv_fmac_f32 v{TM[t]}, {1.0/1024!r}, v{M2[t]}")
    for t in range(2): k(f"v_rsq_f32 v{NM[t]}, v{TM[t]}")
    k("s_nop 0")
    for t in range(2): k(f"v_mul_f32 v{NM[t]+1}, v{SU[t]}, v{NM[t]}")
    for t in range(2):
        YK = ST + t * 8
        for b in range(4):
            for h in range(2): k(f"v_pk_fma_f32 {vr(XT+2*h,2)}, {vr(V_C+4*b+2*h,2)}, {vr(NM[t],2)}, {vr(V_S+4*b+2*h,2)} op_sel:[0,1,0] op_sel_hi:[1,1,1]")
            for h in range(2): k(f"v_pk_fma_f32 {vr(XT+2*h,2)}, {vr(A(b,t)+2*h,2)}, {vr(NM[t],2)}, {vr(XT+2*h,2)} op_sel_hi:[1,0,1]")
            k(f"v_cvt_pk_bf16_f32 v{YK+2*b}, v{XT}, v{XT+1}\nv_cvt_pk_bf16_f32 v{YK+2*b+1}, v{XT+2}, v{XT+3}")
        for s_ in range(2): k(f"buffer_store_dwordx4 {vr(YK+4*s_,4)}, v{L16}, {sr(SRD_A,4)}, s{88+t} offen offset:{s_*1024} sc1")
    publish(k, 84, 40)
    k.stamp("y published")
    g3.prefetch(k, opt.get("g3_pre", 0))
    return g3

def phase_gemm3(k, c, opt):
    LANE, L16, VT = c.LANE, c.L16, c.VT
    NB, TB = 14, 4
    srd(k, SRD_T, P_WS, S * D * 2, WS_Y)
    srd(k, SRD_C, P_WS, S * F * 2, WS_HH)
    k(f"v_and_b32 v{VT}, 31, v{LANE}\nv_lshlrev_b32 v{VT}, {FS}, v{VT}")
    k(f"s_lshl_b32 s84, s{S_RB3}, 2\ns_add_u32 s84, s84, s{S_WAVE}")
    k(f"s_lshl_b32 s85, s84, {FS+5}\ns_add_u32 s85, s85, {F_Y}")
    staged_wait(k, c, opt.get("g3_T", 3), VT, 85, VT + 1, one_prod, dup16=True)
    k.stamp("y ready")
    p = Txt()
    p(f"s_mul_i32 s88, s84, {448*1024}\ns_mul_i32 s92, s{S_FT}, 3584\ns_add_u32 s88, s88, s92")
    for t in range(1, 4): p(f"s_add_u32 s{88+t}, s88, {t*112*1024}")
    p(f"s_lshl_b32 s93, s84, {FS+5}\ns_lshl_b32 s94, s{S_FT}, {FS}\ns_add_u32 s93, s93, s94\ns_add_u32 s94, s93, {F_HB}\ns_add_u32 s93, s93, {F_HH}")
    p(f"s_mov_b32 s86, {-LOG2E!r}\ns_mov_b32 s87, {-LOG2E!r}")
    SB = 241
    p(f"v_lshrrev_b32 v{SB}, 1, v{L16}")
    c.pre_loop_txt = p.L
    if opt.get("cpf", 1):
        for st_ in opt.get("cp3", [6, 22]): c.late.setdefault(st_, []).extend(code_prefetch_txt(k.name, L16, 254, 80, junk="v240"))
    if opt.get("w2touch", 1):
        ws_ = opt.get("w2steps", [16]); per = 56 // len(ws_)
        for j, st_ in enumerate(ws_):
            c.late.setdefault(st_, []).extend([f"s_lshl_b32 s80, s2, 2", f"s_add_u32 s80, s80, s{S_WAVE}", "s_mul_i32 s80, s80, 7168", f"s_add_u32 s80, s80, {j*per*128}",
                      f"v_min_u32 v253, {per-1}, v{LANE}", "v_lshlrev_b32 v253, 7, v253", "v_add_u32 v253, s80, v253",
                      f"global_load_dword v240, v253, s[{P_W2}:{P_W2+1}]"])
    t4 = Txt()
    g4 = setup_gemm4p(t4, opt, 242)
    half = len(t4.L) // 2
    c.late[19] = t4.L[:half]; c.late[20] = t4.L[half:]
    pf = g4.prefetch_txt(4); c.late[29] = pf
    pf = g4.prefetch_txt(4); c.late[30] = pf
    def G(s, t): return ((2 * s) * TB + t) * 4
    def Uu(s, t): return ((2 * s + 1) * TB + t) * 4
    def act(k, slots, t, scalar=False):
        if scalar:
            for s in slots:
                for r in range(4):
                    k(f"v_mul_f32 v{Uu(s,t)+r}, v{G(s,t)+r}, v{Uu(s,t)+r}")
                    k(f"v_mul_f32 v{G(s,t)+r}, s86, v{G(s,t)+r}")
            rs = [(s, r) for s in slots for r in range(4)]
            for i, (s, r) in enumerate(rs): k(f"v_exp_f32 v{G(s,t)+r}, v{G(s,t)+r}")
            for i, (s, r) in enumerate(rs): k(f"v_add_f32 v{G(s,t)+r}, 1.0, v{G(s,t)+r}")
            for i, (s, r) in enumerate(rs): k(f"v_rcp_f32 v{G(s,t)+r}, v{G(s,t)+r}")
            for i, (s, r) in enumerate(rs): k(f"v_mul_f32 v{Uu(s,t)+r}, v{Uu(s,t)+r}, v{G(s,t)+r}")
            return
        for s in slots:
            for h in range(2):
                k(f"v_pk_mul_f32 {vr(Uu(s,t)+2*h,2)}, {vr(G(s,t)+2*h,2)}, {vr(Uu(s,t)+2*h,2)}")
                k(f"v_pk_mul_f32 {vr(G(s,t)+2*h,2)}, {vr(G(s,t)+2*h,2)}, s[86:87]")
        for s in slots:
            for r in range(4): k(f"v_exp_f32 v{G(s,t)+r}, v{G(s,t)+r}")
        for s in slots:
            for h in range(2): k(f"v_pk_add_f32 {vr(G(s,t)+2*h,2)}, {vr(G(s,t)+2*h,2)}, 1.0 op_sel_hi:[1,0]")
        for s in slots:
            for r in range(4): k(f"v_rcp_f32 v{G(s,t)+r}, v{G(s,t)+r}")
        for s in slots:
            for h in range(2): k(f"v_pk_mul_f32 {vr(Uu(s,t)+2*h,2)}, {vr(Uu(s,t)+2*h,2)}, {vr(G(s,t)+2*h,2)}")
    def pair(k, pr, t, scalar=False):
        s0, s1 = 2 * pr, 2 * pr + 1
        act(k, [s0, s1], t, scalar)
        d = G(s0, t)
        k(f"v_cvt_pk_bf16_f32 v{d}, v{Uu(s0,t)}, v{Uu(s0,t)+1}\nv_cvt_pk_bf16_f32 v{d+1}, v{Uu(s0,t)+2}, v{Uu(s0,t)+3}")
        k(f"v_cvt_pk_bf16_f32 v{d+2}, v{Uu(s1,t)}, v{Uu(s1,t)+1}\nv_cvt_pk_bf16_f32 v{d+3}, v{Uu(s1,t)+2}, v{Uu(s1,t)+3}")
        k(f"buffer_store_dwordx4 {vr(d,4)}, v{L16}, {sr(SRD_C,4)}, s{88+t} offen offset:{pr*1024} sc1")
    ea = Txt(); eb = Txt()
    nin = opt.get("g3_nin", 8) if c.TL else 0
    for i, (pr, t) in enumerate([(pr, t) for pr in range(2) for t in range(TB)]):
        if i < nin: pair(ea, pr, t, opt.get("g3_scalar", 0))
        else: pair(eb, pr, t)
    if c.TL:
        nst = opt.get("g3_east", c.TL - 1)
        per = -(-len(ea.L) // nst)
        c.step_extra = lambda st: ea.L[(st - 32) * per:(st - 31) * per] if st >= 32 else []
    c.run(k)
    k.stamp("g3 loop done")
    if not c.TL: k("s_nop 7")
    k("s_barrier")
    mkE = len(k.L)
    for x in eb.L: k(x)
    grp = []
    for j in range(opt.get("g4_pa", 0)):
        t_ = g4.prefetch_txt(1); grp.append(t_[:-1] + ["s_nop 0", t_[-1]])
    sprinkle(k, mkE, grp)
    mkA = len(k.L)
    na = opt.get("g3_pubA", 2)
    for t in range(na): pair(k, 2, t)
    publish(k, 93, 252, mkA)
    k.stamp("hA published")
    mark3 = len(k.L)
    for t in range(na, TB): pair(k, 2, t)
    grp = []
    for j in range(opt.get("g4_pb", 8)):
        t_ = g4.prefetch_txt(1); grp.append(t_[:-1] + ["s_nop 0", t_[-1]])
    sprinkle(k, mark3, grp)
    for t in range(TB):
        act(k, [6], t)
        d = G(6, t)
        k(f"v_cvt_pk_bf16_f32 v{d}, v{Uu(6,t)}, v{Uu(6,t)+1}\nv_cvt_pk_bf16_f32 v{d+1}, v{Uu(6,t)+2}, v{Uu(6,t)+3}")
        k(f"buffer_store_dwordx2 {vr(d,2)}, v{SB}, {sr(SRD_C,4)}, s{88+t} offen offset:3072 sc1")
    k.stamp("hh stored")
    return g4

def phase_gemm4(k, c, opt):
    LANE, L16 = c.LANE, c.L16
    VT = 40
    srd(k, SRD_T, P_WS, S * F * 2, WS_HH)
    srd(k, SRD_A, P_OUT, S * D * 2)
    k(f"v_and_b32 v{VT}, 31, v{LANE}\nv_lshlrev_b32 v{VT}, 2, v{VT}")
    k(f"s_lshl_b32 s84, s{S_RB2}, 1\ns_lshr_b32 s85, s{S_WAVE}, 1\ns_add_u32 s84, s84, s85\ns_lshl_b32 s84, s84, {FS+5}\ns_add_u32 s84, s84, {F_HH}")
    wait_flags(k, [(VT, 84, 1)], VT + 1)
    k.stamp("hh ready")
    V_G, V_GA, V_XA, V_X = 64, 44, 45, 48
    p = Txt()
    p(f"v_lshrrev_b32 v{VT}, 4, v{LANE}\nv_lshlrev_b32 v{V_GA}, 4, v{VT}\nv_add_u32 v{V_GA}, {L_MV}, v{V_GA}")
    p(f"v_and_b32 v{VT+1}, 15, v{LANE}\nv_lshlrev_b32 v{VT+1}, 11, v{VT+1}")
    p(f"v_and_b32 v{VT+2}, 1, v{VT}\nv_lshl_add_u32 v{VT+1}, v{VT+2}, 5, v{VT+1}")
    p(f"v_lshrrev_b32 v{VT+2}, 1, v{VT}\nv_lshl_add_u32 v{V_XA}, v{VT+2}, 4, v{VT+1}")
    p(f"s_lshl_b32 s86, s{S_RB2}, 3\ns_lshl_b32 s87, s{S_WAVE}, 1\ns_add_u32 s86, s86, s87\ns_lshl_b32 s86, s86, 15\ns_lshl_b32 s87, s{S_NT}, 7\ns_add_u32 s86, s86, s87\ns_add_u32 s87, s86, 32768")
    for j in range(16): p(f"v_accvgpr_read_b32 v{V_X+j}, a{A_X1+j}")
    c.pre_loop_txt = p.L
    c.last_reads = [f"ds_read_b128 {vr(V_G+4*b,4)}, v{V_GA} offset:{768+b*64}" for b in range(4)]
    c.run(k)
    k.stamp("g4 loop done")
    k("s_waitcnt lgkmcnt(0)\ns_nop 7")
    A = lambda b, t: (b * 2 + t) * 4
    XT = 96
    for t in range(2):
        for b in range(4):
            xr = V_X + (t * 4 + b) * 2
            for h in range(2): k(f"v_lshlrev_b32 v{XT+2*h}, 16, v{xr+h}\nv_and_b32 v{XT+2*h+1}, 0xffff0000, v{xr+h}")
            for h in range(2): k(f"v_pk_fma_f32 {vr(A(b,t)+2*h,2)}, {vr(A(b,t)+2*h,2)}, {vr(V_G+4*b+2*h,2)}, {vr(XT+2*h,2)}")
        PK = XT + 4 + t * 8
        for b in range(4): k(f"v_cvt_pk_bf16_f32 v{PK+2*b}, v{A(b,t)}, v{A(b,t)+1}\nv_cvt_pk_bf16_f32 v{PK+2*b+1}, v{A(b,t)+2}, v{A(b,t)+3}")
        k("s_nop 1")
        for s_ in range(2): k(f"v_permlane16_swap_b32 v{PK+4*s_}, v{PK+4*s_+2}\nv_permlane16_swap_b32 v{PK+4*s_+1}, v{PK+4*s_+3}")
        for s_ in range(2): k(f"buffer_store_dwordx4 {vr(PK+4*s_,4)}, v{V_XA}, {sr(SRD_A,4)}, s{86+t} offen offset:{s_*64}")

def build_mega(instr=False, opt=None, name="mega_kernel"):
    opt = opt or {}
    k = Mega(name, 256, 256, LDS_TOTAL, vgpr=256, agpr=256, sgpr=102)
    k.instr = instr; k.names = []; k.only = opt.get("only")
    end = k.label("end")
    far = k.label("go")
    if opt.get("diag2") is not None: k("s_memrealtime s[72:73]")
    k(f"s_cmp_lt_u32 s2, 256\ns_cbranch_scc1 {far}\ns_endpgm\n{far}:")
    if opt.get("fused", 1):
        code_prefetch_setup(k, name)
        k("v_and_b32 v104, 63, v0\nv_lshlrev_b32 v105, 4, v104\nv_lshlrev_b32 v254, 5, v0")
        k("global_load_dword a232, v254, s[100:101]")
        k("s_load_dwordx2 s[96:97], s[0:1], 88")
        if opt.get("dbgout"): k("s_load_dwordx2 s[72:73], s[0:1], 88")
    k("s_load_dwordx8 s[4:11], s[0:1], 0")
    k("s_load_dwordx2 s[12:13], s[0:1], 64")
    k("s_load_dwordx2 s[14:15], s[0:1], 40")
    k("s_load_dwordx4 s[16:19], s[0:1], 48")
    k("s_load_dwordx2 s[98:99], s[0:1], 72")
    k("s_load_dwordx2 s[24:25], s[0:1], 80")
    k("s_load_dwordx2 s[28:29], s[0:1], 96")
    if instr: k(f"v_mov_b32 v{VSTAMP}, 0")
    ids(k)
    k(f"s_lshr_b32 s80, s{S_IDX}, 2\ns_add_u32 s{S_R4}, s80, s{S_IDX}\ns_and_b32 s81, s{S_IDX}, 3\ns_lshl_b32 s81, s81, 1\ns_add_u32 s{S_R8}, s80, s81")
    k(f"s_and_b32 s80, s{S_IDX}, 3\ns_lshl_b32 s{S_FT}, s{S_XCD}, 2\ns_add_u32 s{S_FT}, s{S_FT}, s80\ns_lshr_b32 s{S_RB3}, s{S_IDX}, 2")
    if opt.get("fused", 1):
        for x in code_prefetch_txt(name, 105, 254, 80): k(x)
    k.stamp("start")
    g1 = (phase_front_fused if opt.get("fused", 1) else phase_front)(k, opt, name)
    g2 = (phase_gemm1s if opt.get('split', 1) else phase_gemm1)(k, g1, opt)
    g3 = phase_gemm2(k, g2, opt)
    g4 = phase_gemm3(k, g3, opt)
    (phase_gemm4p if opt.get('g4_pair', 1) else phase_gemm4)(k, g4, opt)
    if opt.get("diag2") is not None:
        lp, sk = k.label("dg"), k.label("dgs")
        if opt["diag2"] >= 0: k(f"s_cmp_lg_u32 s2, {opt['diag2']}\ns_cbranch_scc1 {sk}")
        k(f"{lp}:\ns_memrealtime s[0:1]\ns_waitcnt lgkmcnt(0)\ns_sub_u32 s87, s0, s72\ns_cmp_lt_u32 s87, 10000\ns_cbranch_scc1 {lp}\n{sk}:")
    elif opt.get("diag"):
        a_, b_ = opt["diag"]
        k(f"v_readlane_b32 s84, v{VSTAMP}, 0\nv_readlane_b32 s85, v{VSTAMP}, {a_}\nv_readlane_b32 s86, v{VSTAMP}, {b_}\ns_nop 3")
        k("s_sub_u32 s86, s86, s85\ns_add_u32 s86, s86, 10000")
        lp = k.label("dg")
        k(f"{lp}:\ns_memrealtime s[0:1]\ns_waitcnt lgkmcnt(0)\ns_sub_u32 s87, s0, s84\ns_cmp_lt_u32 s87, s86\ns_cbranch_scc1 {lp}")
    elif instr:
        k("s_waitcnt vmcnt(0)")
        k.stamp("end")
        k(f"s_add_u32 s84, s{P_WS}, {WS_DBG}\ns_addc_u32 s85, s{P_WS+1}, 0\ns_mov_b32 s86, 0x100000\ns_mov_b32 s87, 0x20000")
        k(f"s_lshl_b32 s88, s2, 2\ns_add_u32 s88, s88, s{S_WAVE}\ns_lshl_b32 s88, s88, 8")
        lane_id(k, 1)
        k("v_lshlrev_b32 v1, 2, v1")
        k(f"buffer_store_dword v{VSTAMP}, v1, s[84:87], s88 offen")
        if opt.get("dbgout"):
            sk = k.label("nodbg")
            k(f"s_lshl_b32 s88, s2, 2\ns_add_u32 s88, s88, s{S_WAVE}\ns_cmp_lg_u32 s88, {opt['dbgout']*4}\ns_cbranch_scc1 {sk}")
            k("s_mov_b32 s84, s72\ns_mov_b32 s85, s73\ns_mov_b32 s86, 64\ns_mov_b32 s87, 0x20000")
            k(f"v_readlane_b32 s89, v{VSTAMP}, 0\ns_nop 3\nv_subrev_u32 v2, s89, v{VSTAMP}")
            k("buffer_store_dword v2, v1, s[84:87], 0 offen offset:12")
            k(f"{sk}:")
    k("s_endpgm")
    k(f"{name}_end:")
    return k
```

```python
import sys
from asmlib import *
from gemm import *
from layout import *
LOG2E = 1.4426950408889634
P_X, P_WQKV, P_WPHI, P_WO, P_W1, P_W3, P_W2, P_OUT, P_WS = 4, 6, 8, 10, 14, 16, 18, 24, 28
P_DBG, S_MB, S_MO = 96, 77, 79
P_C, P_WMOD = 12, 98
S_WAVE, S_XCD, S_IDX = 3, 30, 31
SRD_W, SRD_T, SRD_A, SRD_B, SRD_C, SRD_D, SRD_F = 32, 36, 40, 44, 48, 52, 56
S_KW, S_KT, S_WB, S_ROT, S_TMP, S_ROT2 = 60, 62, 76, 77, 78, 79
S_RB1, S_HP, S_RB2, S_NT, S_RB3, S_FT = 26, 27, 26, 27, 22, 23
S_R8, S_R4 = 20, 21
VSTAMP = 255
L_WPH, L_UTC = 110592, 105472
L_UT3, L_MV, L_R2 = 114688, 128000, 129792
LDS_TOTAL = 163584

class Mega(Kernel):
    nst = 0
    only = None
    def stamp(self, name=""):
        if not self.instr: return
        if self.only is not None and not any(name.startswith(o) for o in self.only): return
        if self.only is None and name[:3] in ("kp ", "qp "): return
        self("s_waitcnt lgkmcnt(0)\ns_memrealtime s[0:1]\ns_waitcnt lgkmcnt(0)")
        self(f"v_writelane_b32 v{VSTAMP}, s0, {self.nst}")
        self("s_nop 3\ns_memtime s[0:1]\ns_waitcnt lgkmcnt(0)")
        self(f"v_writelane_b32 v{VSTAMP}, s0, {self.nst + 32}")
        self.names.append(name); self.nst += 1

def lane_id(k, v):
    k(f"v_mbcnt_lo_u32_b32 v{v}, -1, 0\nv_mbcnt_hi_u32_b32 v{v}, -1, v{v}")

def code_prefetch_setup(k, name, s_pc=100):
    lab = k.label("pc")
    k(f"s_getpc_b64 s[{s_pc}:{s_pc+1}]")
    k(f"{lab}:")
    k(f"s_sub_u32 s{s_pc}, s{s_pc}, {lab}-{name}\ns_subb_u32 s{s_pc+1}, s{s_pc+1}, 0")
def code_prefetch_txt(name, v_l16, vt, s_tmp, s_idx=S_IDX, s_wave=S_WAVE, s_pc=100, junk="a232"):
    return [f"s_lshl_b32 s{s_tmp}, s{s_idx}, 2", f"s_add_u32 s{s_tmp}, s{s_tmp}, s{s_wave}", f"s_lshl_b32 s{s_tmp}, s{s_tmp}, 10",
            f"v_add_u32 v{vt}, s{s_tmp}, v{v_l16}", f"v_min_u32 v{vt}, {name}_end-{name}-4, v{vt}",
            f"global_load_dword {junk}, v{vt}, s[{s_pc}:{s_pc+1}]"]

def count_vm(k, mark):
    return sum(1 for x in k.L[mark:] if is_vm(x))
def publish(k, s_off, vt, mark=None):
    k(f"v_mov_b32 v{vt}, 1\nv_mov_b32 v{vt+1}, 0")
    n = 0 if mark is None else count_vm(k, mark)
    assert n < 64
    k(f"s_waitcnt vmcnt({n})")
    k(f"buffer_store_dword v{vt}, v{vt+1}, {sr(SRD_F,4)}, s{s_off} offen sc1")

def spin(k, loads, regs, vt, s_cnt=96):
    top, ok = k.label("poll"), k.label("ok")
    k(f"s_mov_b32 s{s_cnt}, 0")
    k(f"{top}:")
    for x in loads: k(x)
    k("s_waitcnt vmcnt(0)")
    if len(regs) == 1: k(f"v_cmp_eq_u32 vcc, 0, v{regs[0]}")
    else:
        k(f"v_min_u32 v{vt}, v{regs[0]}, v{regs[1]}")
        for x in regs[2:]: k(f"v_min_u32 v{vt}, v{vt}, v{x}")
        k(f"v_cmp_eq_u32 vcc, 0, v{vt}")
    k(f"s_add_u32 s{s_cnt}, s{s_cnt}, 1")
    k(f"s_cmp_eq_u64 vcc, 0\ns_cbranch_scc1 {ok}")
    k(f"s_sleep {SLEEP}\ns_cmp_lt_u32 s{s_cnt}, 0x40000\ns_cbranch_scc1 {top}")
    k(f"{ok}:")

def wait_flags(k, polls, vt, s_cnt=96):
    top, ok = k.label("poll"), k.label("ok")
    k(f"s_mov_b32 s{s_cnt}, 0")
    k(f"{top}:")
    r = vt
    regs = []
    for va, so, ndw in polls:
        if ndw == 4: r = (r + 1) // 2 * 2
        k(f"buffer_load_dword{'x4' if ndw == 4 else ''} {vr(r,ndw)}, v{va}, {sr(SRD_F,4)}, s{so} offen sc1")
        regs += list(range(r, r + ndw)); r += ndw
    k("s_waitcnt vmcnt(0)")
    for x in regs[1:]: k(f"v_min_u32 v{regs[0]}, v{regs[0]}, v{x}")
    k(f"v_cmp_eq_u32 vcc, 0, v{regs[0]}")
    k(f"s_add_u32 s{s_cnt}, s{s_cnt}, 1")
    k(f"s_cmp_eq_u64 vcc, 0\ns_cbranch_scc1 {ok}")
    k(f"s_sleep {SLEEP}\ns_cmp_lt_u32 s{s_cnt}, 0x40000\ns_cbranch_scc1 {top}")
    k(f"{ok}:")

def staged_wait(k, c, T_, v_addr, s_off, vf, prod_of, dup16=False, skip_first=0, s_m=97, pub=None):
    ld = f"buffer_load_dword v{vf}, v{v_addr}, {sr(SRD_F,4)}, s{s_off} offen sc1"
    if T_ is None:
        spin(k, [ld], [vf], 0); return
    k(f"s_mov_b32 s{s_m}, 0")
    for kt in range(skip_first, T_):
        for x in c.pos_txt(80, kt): k(x)
        for x in prod_of(80, 81): k(x)
        k(f"s_or_b32 s{s_m}, s{s_m}, s81")
    if dup16: k(f"s_lshl_b32 s81, s{s_m}, 16\ns_or_b32 s{s_m}, s{s_m}, s81")
    top, ok = k.label("poll"), k.label("ok")
    if pub:
        mk = len(k.L); k(ld); publish(k, pub[0], pub[1], mk)
        k("s_waitcnt vmcnt(1)")
        k(f"v_cmp_eq_u32 vcc, 0, v{vf}\ns_nop 0")
        k(f"s_and_b32 s81, vcc_lo, s{s_m}\ns_cbranch_scc0 {ok}")
    k(f"s_mov_b32 s96, 0\n{top}:")
    k(ld)
    k("s_waitcnt vmcnt(0)")
    k(f"v_cmp_eq_u32 vcc, 0, v{vf}")
    k("s_add_u32 s96, s96, 1")
    k(f"s_and_b32 s81, vcc_lo, s{s_m}\ns_cbranch_scc0 {ok}")
    k(f"s_sleep {SLEEP}\ns_cmp_lt_u32 s96, 0x40000\ns_cbranch_scc1 {top}")
    k(f"{ok}:")
    add_gate(k, c, T_, ld, vf)
def add_gate(k, c, tile, ld, vf):
    m = Txt(); m.label = k.label
    okl = k.label("gok")
    m(f"v_cmp_eq_u32 vcc, 0, v{vf}\ns_cmp_eq_u64 vcc, 0\ns_cbranch_scc1 {okl}")
    spin(m, [ld], [vf], 0)
    m(f"{okl}:")
    c.gates = list(c.gates) + [(tile, [VM(ld, ("gate", tile))], [WVM([("gate", tile)]), T("\n".join(m.L))])]
one_prod = lambda sp, st: [f"s_lshl_b32 s{st}, 1, s{sp}"]

def allreduce_q(k, op, x, tmp):
    k(f"v_mov_b32 v{tmp}, v{x}\ns_nop 1")
    k(f"v_permlane32_swap_b32 v{x}, v{tmp}")
    k(f"s_nop 1\n{op} v{x}, v{x}, v{tmp}")
    k(f"v_mov_b32 v{tmp}, v{x}\ns_nop 1")
    k(f"v_permlane16_swap_b32 v{x}, v{tmp}")
    k(f"s_nop 1\n{op} v{x}, v{x}, v{tmp}")

def treduce4(k, op, A):
    a, b, c, d = A
    k("s_nop 1")
    k(f"v_permlane32_swap_b32 v{a}, v{b}\nv_permlane32_swap_b32 v{c}, v{d}")
    k("s_nop 1")
    k(f"{op} v{a}, v{a}, v{b}\n{op} v{c}, v{c}, v{d}")
    k("s_nop 1")
    k(f"v_permlane16_swap_b32 v{a}, v{c}")
    k("s_nop 1")
    k(f"{op} v{a}, v{a}, v{c}")
    k(f"v_mov_b32 v{c}, v{a}")
    k("s_nop 1")
    k(f"v_permlane16_swap_b32 v{a}, v{c}")
    k("s_nop 1")
    k(f"v_mov_b32 v{b}, v{a}\nv_mov_b32 v{d}, v{c}")
    k("s_nop 1")
    k(f"v_permlane32_swap_b32 v{a}, v{b}\nv_permlane32_swap_b32 v{c}, v{d}")
    k("s_nop 1")

def treduce4x2(k, ops, As):
    A, B = Txt(), Txt()
    treduce4(A, ops[0], As[0]); treduce4(B, ops[1], As[1])
    def split(L):
        out, cur = [], []
        for x in L:
            if x.startswith("s_nop"): out.append(cur); cur = []
            else: cur.append(x)
        out.append(cur); return out
    for a, b in zip(split(A.L), split(B.L)):
        for x in a + b: k(x)
        k("s_nop 0" if len(a) >= 1 else "s_nop 1")

def red8(k, x):
    for m in ("quad_perm:[1,0,3,2]", "quad_perm:[2,3,0,1]", "row_half_mirror"):
        k(f"s_nop 1\nv_add_f32_dpp v{x}, v{x}, v{x} {m} row_mask:0xf bank_mask:0xf")

def round_bf16(k, v):
    k(f"v_cvt_pk_bf16_f32 v{v}, v{v}, v{v}\nv_and_b32 v{v}, 0xffff0000, v{v}")

S_DLA, S_DLB, S_PTMP = 71, 6, 75
def order(c, k, opt, tag, default):
    o = opt.get(tag + "_ord", default)
    c.first_flag = opt.get(tag + "_ff", "")
    c.tag = tag; c.stamp_every = opt.get(tag + "_se", 0)
    c.fine = opt.get(tag + "_fine", opt.get("fine", 0)); c.bar_frac = opt.get("bar_frac", 0.3)
    c.s_rot, c.s_rot2 = S_R8, S_R4
    if o[0] == "lead":
        c.lead_D, c.s_dl = o[1], S_DLA
    else:
        c.wins = win_mask(o[1])
        if o[2]:
            c.s_start = S_HP
            c.s_rot = c.s_rot2 = S_RB3
def common_gemm(c):
    c.srd_w, c.srd_t = SRD_W, SRD_T
    c.s_kw, c.s_kt, c.s_wbase, c.s_ptmp = S_KW, S_KT, S_WB, S_PTMP

def setup_gemm1(k, opt):
    c = Sched(); common_gemm(c)
    NS, R = opt.get("g1_NS", 4), opt.get("g1_R", 4)
    STAGE = 25344
    c.V_RD, c.V_DMA, c.V_TOK, c.LANE, c.L16, c.VT = 96, 98, 102, 104, 105, 106
    V_RD, V_DMA, V_TOK, LANE, L16, VT = c.V_RD, c.V_DMA, c.V_TOK, c.LANE, c.L16, 110
    k(f"v_lshlrev_b32 v{L16}, 4, v{LANE}")
    c.lead_D, c.s_dl = opt.get("D", 0), S_DLA
    if opt.get("uselead", 0): c.lead_init(k, S_R4, 81)
    c.lead_D = None
    order(c, k, opt, "g1", ["win", [8, 8], 0])
    k(f"s_lshr_b32 s80, s{S_WAVE}, 1\ns_and_b32 s81, s{S_WAVE}, 1")
    k(f"v_lshrrev_b32 v{VT+1}, 3, v{LANE}")
    k(f"v_and_b32 v{VT+2}, 4, v{VT+1}")
    k(f"v_bfe_u32 v{VT+3}, v{VT+1}, 1, 1\nv_or_b32 v{VT+2}, v{VT+2}, v{VT+3}")
    k(f"v_and_b32 v{VT+3}, 1, v{VT+1}\nv_lshl_or_b32 v{VT+2}, v{VT+3}, 1, v{VT+2}")
    k(f"v_mul_u32_u24 v{VT+2}, {4*6144}, v{VT+2}")
    k(f"v_and_b32 v{VT+3}, 7, v{LANE}\nv_lshl_add_u32 v{VT+2}, v{VT+3}, 4, v{VT+2}")
    k("s_lshl_b32 s82, s80, 5\ns_lshl_b32 s83, s81, 1\ns_add_u32 s82, s82, s83\ns_mul_i32 s82, s82, 6144")
    k(f"s_lshl_b32 s83, s{S_HP}, 7\ns_add_u32 s82, s82, s83")
    k(f"v_add_u32 v{V_DMA}, s82, v{VT+2}")
    k(f"v_add_u32 v{V_DMA+1}, 6144, v{V_DMA}\nv_add_u32 v{V_DMA+2}, 4096, v{V_DMA}\nv_add_u32 v{V_DMA+3}, {6144+4096}, v{V_DMA}")
    k(f"v_bfe_u32 v{VT+1}, v{LANE}, 2, 2\nv_mul_u32_u24 v{VT+1}, 1056, v{VT+1}")
    k(f"v_lshrrev_b32 v{VT+2}, 5, v{LANE}\nv_lshl_add_u32 v{VT+1}, v{VT+2}, 9, v{VT+1}")
    k(f"v_bfe_u32 v{VT+2}, v{LANE}, 4, 1\nv_lshl_add_u32 v{VT+1}, v{VT+2}, 7, v{VT+1}")
    k(f"v_and_b32 v{VT+3}, 3, v{LANE}\nv_lshl_add_u32 v{V_RD}, v{VT+3}, 3, v{VT+1}")
    k(f"v_add_u32 v{V_RD+1}, {2*STAGE}, v{V_RD}")
    k(f"s_lshl_b32 s82, s{S_RB1}, 3\ns_lshl_b32 s83, s{S_WAVE}, 1\ns_add_u32 s82, s82, s83\ns_lshl_b32 s82, s82, 15")
    k(f"v_add_u32 v{V_TOK}, s82, v{L16}\nv_add_u32 v{V_TOK+1}, 0x8000, v{V_TOK}")
    k(f"s_mul_i32 s{S_WB}, s80, 4224\ns_mul_i32 s82, s81, 2112\ns_add_u32 s{S_WB}, s{S_WB}, s82")
    c.NB, c.TB, c.KS, c.SPK, c.KT, c.NS, c.R = 12, 2, 1, 2, 16, NS, R
    c.acc = lambda b, t: vr((b * 2 + t) * 4, 4)
    c.tf = lambda slot, ks, t: 96 + (slot * 2 + t) * 4
    c.rd = lambda sl, b, sub, r: (V_RD + sl // 2, (sl % 2) * STAGE + (b // 4) * 8448 + sub * 4224 + r * 256 + (b % 4) * 32)
    c.slot_addr = lambda sl: sl * STAGE
    c.dma = [(V_DMA, 0, 0), (V_DMA + 1, 1056, 0), (V_DMA, 8448, 2048), (V_DMA + 1, 8448 + 1056, 2048), (V_DMA + 2, 16896, 0), (V_DMA + 3, 16896 + 1056, 0)]
    c.v_tok = [V_TOK, V_TOK + 1]
    c.w_stride = 64 * 6144
    c.drop = opt.get("g1_drop", ())
    c.pro_units, c.ramp_rate, c.read_margin = opt.get("g1_pro", 6), opt.get("g1_ramp", 6), opt.get("g1_rm", 6)
    std_sched(c)
    return c

def setup_gemm1s(k, opt):
    c = Sched(); common_gemm(c)
    HS = 8448; STAGE = 2 * HS
    c.V_RD, c.V_DMA, c.V_TOK, c.LANE, c.L16, c.VT = 96, 98, 102, 104, 105, 106
    V_RD, V_DMA, V_TOK, LANE, L16, VT = c.V_RD, c.V_DMA, c.V_TOK, c.LANE, c.L16, 110
    k(f"v_lshlrev_b32 v{L16}, 4, v{LANE}")
    order(c, k, opt, "g1", ["win", [8, 8], 0])
    k(f"s_lshr_b32 s80, s{S_WAVE}, 1\ns_and_b32 s81, s{S_WAVE}, 1")
    k(f"v_lshrrev_b32 v{VT+1}, 3, v{LANE}")
    k(f"v_and_b32 v{VT+2}, 4, v{VT+1}")
    k(f"v_bfe_u32 v{VT+3}, v{VT+1}, 1, 1\nv_or_b32 v{VT+2}, v{VT+2}, v{VT+3}")
    k(f"v_and_b32 v{VT+3}, 1, v{VT+1}\nv_lshl_or_b32 v{VT+2}, v{VT+3}, 1, v{VT+2}")
    k(f"v_mul_u32_u24 v{VT+2}, {4*6144}, v{VT+2}")
    k(f"v_and_b32 v{VT+3}, 7, v{LANE}\nv_lshl_add_u32 v{VT+2}, v{VT+3}, 4, v{VT+2}")
    k("s_lshl_b32 s82, s80, 5\ns_lshl_b32 s83, s81, 1\ns_add_u32 s82, s82, s83\ns_mul_i32 s82, s82, 6144")
    k(f"s_lshl_b32 s83, s{S_HP}, 7\ns_add_u32 s82, s82, s83")
    k(f"v_add_u32 v{V_DMA}, s82, v{VT+2}")
    k(f"v_add_u32 v{V_DMA+1}, 6144, v{V_DMA}\nv_add_u32 v{V_DMA+2}, 2048, v{V_DMA}\nv_add_u32 v{V_DMA+3}, {6144+2048}, v{V_DMA}")
    k(f"v_bfe_u32 v{VT+1}, v{LANE}, 2, 2\nv_mul_u32_u24 v{VT+1}, 1056, v{VT+1}")
    k(f"v_lshrrev_b32 v{VT+2}, 5, v{LANE}\nv_lshl_add_u32 v{VT+1}, v{VT+2}, 9, v{VT+1}")
    k(f"v_bfe_u32 v{VT+2}, v{LANE}, 4, 1\nv_lshl_add_u32 v{VT+1}, v{VT+2}, 7, v{VT+1}")
    k(f"v_and_b32 v{VT+3}, 3, v{LANE}\nv_lshl_add_u32 v{V_RD}, v{VT+3}, 3, v{VT+1}")
    k(f"v_add_u32 v{V_RD+1}, {2*STAGE}, v{V_RD}")
    k(f"s_lshl_b32 s82, s{S_RB1}, 3\ns_lshl_b32 s83, s{S_WAVE}, 1\ns_add_u32 s82, s82, s83\ns_lshl_b32 s82, s82, 15")
    k(f"v_add_u32 v{V_TOK}, s82, v{L16}\nv_add_u32 v{V_TOK+1}, 0x8000, v{V_TOK}")
    k(f"s_mul_i32 s{S_WB}, s80, 4224\ns_mul_i32 s82, s81, 2112\ns_add_u32 s{S_WB}, s{S_WB}, s82")
    c.NB, c.TB, c.KS, c.SPK, c.KT, c.NS, c.R = 8, 2, 1, 2, 16, 4, 32
    c.acc = lambda b, t: vr(32 + (b * 2 + t) * 4, 4)
    c.tf = lambda slot, ks, t: (slot * 2 + t) * 4
    c.rd = lambda sl, b, sub, r: (V_RD + sl // 2, (sl % 2) * STAGE + (b // 4) * HS + sub * 4224 + r * 256 + (b % 4) * 32)
    c.slot_addr = lambda sl: sl * STAGE
    c.dma = [(V_DMA + 2, 0, 0), (V_DMA + 3, 1056, 0), (V_DMA + 2, HS, 2048), (V_DMA + 3, HS + 1056, 2048)]
    c.v_tok = [V_TOK, V_TOK + 1]
    c.w_stride = 64 * 6144
    c.drop = opt.get("g1_drop", ())
    c.pro_units, c.ramp_rate, c.read_margin, c.lookahead = opt.get("g1_pro", 8), opt.get("g1_ramp", 5), 4, opt.get("g1_la", 6)
    c.wreg, c.wbase = vr, 128
    std_sched(c)
    q = Sched(); common_gemm(q)
    q.KT = 16; order(q, k, opt, "g1", ["win", [8, 8], 0]); q.tag = "g1b"; q.stamp_every = opt.get("g1b_se", 0)
    q.s_kw = 70
    QS = [67584 + i * HS for i in range(5)] + [L_R2 + i * HS for i in range(4)] + [i * HS for i in range(7)]
    q.Q1, q.Q2 = V_RD + 1, V_TOK
    def base(kt): return (q.Q1, 67584) if kt < 5 else ((q.Q2, L_R2) if kt < 9 else (V_RD, 0))
    for kt in range(16):
        sw = q.s_kw + kt % 2
        q.stage_units[kt] = [q.pos_items(sw, kt, c.w_stride) + [T(f"s_add_u32 m0, s{S_WB}, {QS[kt]}"), VM(f"buffer_load_dwordx4 v{V_DMA}, {sr(SRD_W,4)}, s{sw} offen lds", ("dma", kt))],
                             [T(f"s_add_u32 m0, s{S_WB}, {QS[kt] + 1056}"), VM(f"buffer_load_dwordx4 v{V_DMA+1}, {sr(SRD_W,4)}, s{sw} offen lds", ("dma", kt))]]
        q.stage_slot[kt] = kt
        va, b0 = base(kt)
        frags = [(va, QS[kt] - b0 + sub * 4224 + b * 32, QS[kt] - b0 + sub * 4224 + 256 + b * 32, [(vr((b * 2 + t) * 4, 4), ((kt * 2 + sub) * 2 + t) * 4) for t in range(2)]) for sub in range(2) for b in range(4)]
        q.steps.append(dict(frags=frags, stages=[kt] if kt != 9 else list(range(9, 16)), toks=[]))
    q.wf = lambda buf, j: (buf * 8 + j) * 4
    q.wreg, q.wbase = vr, 128
    q.pub0 = set(range(9)); q.pro_units = opt.get('q_pro', 2); q.ramp_rate = opt.get('q_ramp', 3); q.read_margin = 4; q.drop = c.drop
    c.q = q
    return c

def merge(a, b, ratio):
    out, b = [], list(b)
    for i, x in enumerate(a):
        out.append(x)
        if b and i % ratio == ratio - 1: out.append(b.pop(0))
    return out + b

def phase_gemm1s(k, c, opt):
    LANE, L16, VT = c.LANE, c.L16, c.VT
    q = c.q
    PHK, VV, SH = 0, 34816, 114688
    p = Txt()
    srd(p, SRD_A, P_WPHI, H * 2048)
    srd(p, SRD_B, P_WS, 2 << 20, WS_KVP)
    srd(p, SRD_C, P_WS, 128 << 10, WS_ZP)
    A_PW, A_VW, A_PR, A_VR, A_WR = 110, 111, 112, 113, 114
    p(f"s_lshr_b32 s80, s{S_WAVE}, 1\ns_and_b32 s81, s{S_WAVE}, 1")
    p(f"v_and_b32 v{VT}, 15, v{LANE}\ns_lshl_b32 s82, s{S_WAVE}, 5\nv_add_u32 v{VT}, s82, v{VT}")
    p(f"v_lshrrev_b32 v{VT+1}, 4, v{LANE}\nv_lshlrev_b32 v{VT+1}, 3, v{VT+1}")
    p(f"v_mul_u32_u24 v{A_PW}, 136, v{VT}\nv_add_u32 v{A_PW}, v{A_PW}, v{VT+1}")
    p(f"v_mul_u32_u24 v{A_VW}, 72, v{VT}\nv_add_u32 v{A_VW}, v{A_VW}, v{VT+1}")
    p(f"v_lshrrev_b32 v{VT}, 2, v{LANE}\nv_and_b32 v{VT+1}, 3, v{LANE}\nv_lshlrev_b32 v{VT+1}, 3, v{VT+1}")
    p(f"s_mul_i32 s82, s80, 17408\ns_lshl_b32 s83, s81, 6\ns_add_u32 s82, s82, s83")
    p(f"v_mul_u32_u24 v{A_PR}, 136, v{VT}\nv_add_u32 v{A_PR}, v{A_PR}, v{VT+1}\nv_add_u32 v{A_PR}, s82, v{A_PR}")
    p(f"s_mul_i32 s82, s80, 9216")
    p(f"v_mul_u32_u24 v{A_VR}, 72, v{VT}\nv_add_u32 v{A_VR}, v{A_VR}, v{VT+1}\nv_add_u32 v{A_VR}, s82, v{A_VR}")
    p(f"v_lshl_add_u32 v{A_WR}, v{VT}, 6, v{VT+1}\nv_add_u32 v{A_WR}, {L_WPH}, v{A_WR}")
    ONES, SEL = 116, 120
    for j in range(4): p(f"v_mov_b32 v{ONES+j}, 0x3f803f80")
    p(f"v_bfe_u32 v{VT}, v{LANE}, 2, 2\nv_lshrrev_b32 v{VT+1}, 4, v{LANE}")
    p(f"v_cmp_eq_u32 vcc, v{VT}, v{VT+1}")
    p(f"v_and_b32 v{VT}, 1, v{LANE}\nv_lshlrev_b32 v{VT}, 4, v{VT}\nv_mov_b32 v{VT+1}, 0x3f80\nv_lshlrev_b32 v{VT+1}, v{VT}, v{VT+1}")
    p(f"v_cndmask_b32 v{VT+1}, 0, v{VT+1}, vcc")
    p(f"v_and_b32 v{VT}, 2, v{LANE}\nv_cmp_eq_u32 vcc, 0, v{VT}")
    for j in (0, 1, 4, 5): p(f"v_mov_b32 v{SEL+j}, 0")
    p(f"v_cndmask_b32 v{SEL+2}, 0, v{VT+1}, vcc\nv_cndmask_b32 v{SEL+3}, v{VT+1}, 0, vcc")
    p(f"s_mov_b32 s94, {LOG2E!r}\ns_mov_b32 s95, {LOG2E!r}")
    p(f"s_lshl_b32 s84, s{S_HP}, 12\ns_lshl_b32 s85, s{S_WAVE}, 10\ns_add_u32 s84, s84, s85\ns_add_u32 s85, s85, {L_WPH}")
    c.pre_loop_txt = p.L
    c.late[4] = ["s_mov_b32 m0, s85", f"buffer_load_dwordx4 v{L16}, {sr(SRD_A,4)}, s84 offen lds"]
    for st_ in opt.get("cp1", [20]): c.late.setdefault(st_, []).extend(code_prefetch_txt(k.name, L16, 254, 80, junk="v31"))
    for st_ in opt.get("cp1b", []): q.late.setdefault(st_, []).extend(code_prefetch_txt(k.name, L16, 254, 80, junk="v252"))
    ts = opt.get("mt_step", None)
    if ts is not None:
        c.late.setdefault(ts, []).extend([f"v_mul_u32_u24 v254, 12288, v{LANE}", f"buffer_load_dword v31, v254, {sr(SRD_D,4)}, s{S_MB} offen"])
        if opt.get("wo_touch", 1):
            c.late[ts].extend([f"s_lshl_b32 s80, s2, 2", f"s_add_u32 s80, s80, s{S_WAVE}", "s_lshl_b32 s80, s80, 11",
                               f"v_and_b32 v254, 15, v{LANE}", "v_lshlrev_b32 v254, 7, v254", "v_add_u32 v254, s80, v254", f"global_load_dword v31, v254, s[{P_WO}:{P_WO+1}]"])
    nq = opt.get("q_in", 10)
    for j in range(nq // 2): c.late.setdefault(32 - nq // 2 + j, []).extend(q.prefetch_txt(2))
    wph_reads = lambda reg, b0: [f"ds_read_b64_tr_b16 {reg(b0+(hh*2+fb)*4+2*r,2)}, v{A_WR} offset:{hh*2048+r*1024+fb*32}" for hh in range(2) for fb in range(2) for r in range(2)]
    c.last_reads = wph_reads(vr, 0)
    c.run(k)
    k.stamp("g1 loop done")
    A = lambda b, t: (b * 2 + t) * 4
    BF, P1, P2, MX, MN, EK = 126, 142, 174, 206, 214, 222
    groups = [(hh, t) for hh in range(2) for t in range(2)]
    def fm_part1(k, seg, ph):
        for g, (hh, t) in enumerate(groups):
            for db in range(2):
                a = A(seg * 4 + hh * 2 + db, t)
                k(f"v_cvt_pk_bf16_f32 v{BF+g*4+db*2}, v{a}, v{a+1}\nv_cvt_pk_bf16_f32 v{BF+g*4+db*2+1}, v{a+2}, v{a+3}")
        k("s_nop 1")
        for g, (hh, t) in enumerate(groups):
            for fb in range(2):
                k(f"{MF} {vr(P1+g*8+fb*4,4)}, {ph(hh*2+fb)}, {vr(BF+g*4,4)}, 0")
    def fm_part2(k):
        for op3, op2, M in (("v_max3_f32", "v_max_f32", MX), ("v_min3_f32", "v_min_f32", MN)):
            for g in range(4):
                b = P1 + g * 8
                k(f"{op3} v{M+2*g}, v{b}, v{b+1}, v{b+2}\n{op3} v{M+2*g}, v{M+2*g}, v{b+3}, v{b+4}\n{op3} v{M+2*g}, v{M+2*g}, v{b+5}, v{b+6}\n{op2} v{M+2*g}, v{M+2*g}, v{b+7}")
        treduce4x2(k, ("v_max_f32", "v_min_f32"), ([MX + 2 * g for g in range(4)], [MN + 2 * g for g in range(4)]))
        for g in range(4):
            k(f"v_mul_f32 v{MX+2*g}, {-LOG2E!r}, v{MX+2*g}\nv_mul_f32 v{MN+2*g}, {LOG2E!r}, v{MN+2*g}")
    def fm_part3(k, E, gs_=range(4)):
        for g in gs_:
            for j in range(4):
                b = g * 8 + 2 * j
                k(f"v_pk_fma_f32 {vr(P2+b,2)}, {vr(P1+b,2)}, s[94:95], {vr(MN+2*g,2)} op_sel_hi:[1,1,0] neg_lo:[1,0,0] neg_hi:[1,0,0]")
                k(f"v_pk_fma_f32 {vr(P1+b,2)}, {vr(P1+b,2)}, s[94:95], {vr(MX+2*g,2)} op_sel_hi:[1,1,0]")
            for j in range(8): k(f"v_exp_f32 v{P1+g*8+j}, v{P1+g*8+j}")
            for j in range(8): k(f"v_exp_f32 v{P2+g*8+j}, v{P2+g*8+j}")
            k("s_nop 0")
            for sg, PP in enumerate((P1, P2)):
                for j in range(4): k(f"v_cvt_pk_bf16_f32 v{E+(g*2+sg)*4+j}, v{PP+g*8+2*j}, v{PP+g*8+2*j+1}")
    mark0 = len(k.L)
    k("s_waitcnt lgkmcnt(0)\ns_nop 7")
    fm_part1(k, 1, lambda i: vr(i * 4, 4))
    k("s_barrier")
    for g, (hh, t) in enumerate(groups):
        for db in range(2):
            a = A(8 + hh * 2 + db, t)
            k(f"v_cvt_pk_bf16_f32 v{a}, v{a}, v{a+1}\nv_cvt_pk_bf16_f32 v{a+1}, v{a+2}, v{a+3}")
            k(f"ds_write_b64 v{A_VW}, {vr(a,2)} offset:{VV + hh*9216 + t*16*72 + db*32}")
    fm_part2(k)
    grp = []
    for j in range(18 - q.pre_dma):
        t_ = q.prefetch_txt(1); grp.append(t_[:-1] + ["s_nop 0", t_[-1]])
    sprinkle(k, mark0, grp, skip=12)
    k.stamp("kp part2")
    fm_part3(k, EK)
    k.stamp("kp part3")
    SM = 32
    k("s_nop 1")
    for i in range(8): k(f"{MF} {vr(SM+4*i,4)}, {vr(ONES,4)}, {vr(EK+4*i,4)}, 0")
    k(f"v_add_u32 v{q.Q1}, 67584, v{c.V_RD}\nv_add_u32 v{q.Q2}, {L_R2}, v{c.V_RD}")
    k("s_nop 5")
    for i in range(8): k(f"v_rcp_f32 v{SM+4*i}, v{SM+4*i}")
    for g, (hh, t) in enumerate(groups):
        for sg, PP in enumerate((P1, P2)):
            for j in range(4):
                k(f"v_pk_mul_f32 {vr(PP+g*8+2*j,2)}, {vr(PP+g*8+2*j,2)}, {vr(SM+(g*2+sg)*4,2)} op_sel_hi:[1,0]")
            for fb in range(2):
                b = PP + g * 8 + fb * 4
                k(f"v_cvt_pk_bf16_f32 v{b}, v{b}, v{b+1}\nv_cvt_pk_bf16_f32 v{b+1}, v{b+2}, v{b+3}")
                k(f"ds_write_b64 v{A_PW}, {vr(b,2)} offset:{PHK + hh*17408 + t*16*136 + sg*64 + fb*32}")
    k.stamp("kp norm")
    k("s_waitcnt lgkmcnt(0)\ns_barrier")
    k.stamp("kp bar")
    FR = 190
    for s_ in range(4):
        for r in range(2):
            for fb in range(2): k(f"ds_read_b64_tr_b16 {vr(FR+s_*16+fb*4+2*r,2)}, v{A_PR} offset:{PHK + (32*s_+16*r)*136 + fb*32}")
            for db in range(2): k(f"ds_read_b64_tr_b16 {vr(FR+s_*16+8+db*4+2*r,2)}, v{A_VR} offset:{VV + (32*s_+16*r)*72 + db*32}")
    k(f"s_lshl_b32 s82, s{S_HP}, 2\ns_add_u32 s82, s82, s{S_WAVE}")
    k("s_lshl_b32 s86, s82, 15")
    k(f"s_lshl_b32 s84, s{S_RB1}, 10\ns_add_u32 s84, s84, s86\ns_add_u32 s85, s84, 16384")
    k("s_lshl_b32 s90, s82, 11")
    k(f"s_lshl_b32 s91, s82, {FS+4}\ns_add_u32 s91, s91, {F_KV}\ns_lshl_b32 s92, s{S_RB1}, {FS}\ns_add_u32 s92, s92, s91")
    k(f"v_and_b32 v{VT}, 15, v{LANE}\nv_cmp_eq_u32 vcc, s{S_RB1}, v{VT}")
    KV, ZZ = 64, 80
    for s_ in range(4):
        k(f"s_waitcnt lgkmcnt({min(15, 24 - 8*s_)})" if s_ < 3 else "s_waitcnt vmcnt(0) lgkmcnt(0)\ns_barrier")
        for fb in range(2):
            for db in range(2):
                d = vr(KV + (db * 2 + fb) * 4, 4)
                k(f"{MF} {d}, {vr(FR+s_*16+fb*4,4)}, {vr(FR+s_*16+8+db*4,4)}, {'0' if s_ == 0 else d}")
            d = vr(ZZ + fb * 4, 4)
            k(f"{MF} {d}, {vr(FR+s_*16+fb*4,4)}, {vr(ONES,4)}, {'0' if s_ == 0 else d}")
    k(f"v_lshlrev_b32 v{VT}, {FS}, v{VT}\nv_mov_b32 v{VT+1}, 1\nv_mov_b32 v{VT+2}, 0")
    k("s_nop 5")
    for db in range(2):
        for j in range(4): k(f"v_cvt_pk_bf16_f32 v{88+db*4+j}, v{KV+db*8+2*j}, v{KV+db*8+2*j+1}")
    k(f"buffer_store_dwordx4 {vr(88,4)}, v{L16}, {sr(SRD_B,4)}, s84 offen sc1")
    k(f"buffer_store_dwordx4 {vr(92,4)}, v{L16}, {sr(SRD_B,4)}, s85 offen sc1")
    k("s_and_saveexec_b64 s[96:97], vcc")
    k(f"buffer_store_dwordx4 {vr(ZZ,4)}, v{L16}, {sr(SRD_C,4)}, s90 offen sc1")
    k(f"buffer_store_dwordx4 {vr(ZZ+4,4)}, v{L16}, {sr(SRD_C,4)}, s90 offen offset:1024 sc1")
    k("s_mov_b64 exec, s[96:97]")
    k.stamp("kv stored")
    KV, ZZ, MW, MC = 72, 88, 32, 64
    q.late[opt.get("kv_ps", 1)] = [WVM([("pre", 0)]), f"buffer_store_dword v{VT+1}, v{VT+2}, {sr(SRD_F,4)}, s92 offen sc1"]
    gs = opt.get("kv_gs", 9)
    ld = f"buffer_load_dword v253, v{VT}, {sr(SRD_F,4)}, s91 offen sc1"
    m = Txt(); m.label = k.label
    okl = k.label("gok")
    m(f"v_cmp_eq_u32 vcc, 0, v253\ns_cmp_eq_u64 vcc, 0\ns_cbranch_scc1 {okl}")
    spin(m, [ld], [253], 0)
    m(f"{okl}:")
    q.late[gs - 2] = [VM(ld, ("kvf", 0))]
    gl = [f"buffer_load_dwordx4 {vr(ZZ,4)}, v{L16}, {sr(SRD_C,4)}, s90 offen sc1", f"buffer_load_dwordx4 {vr(ZZ+4,4)}, v{L16}, {sr(SRD_C,4)}, s90 offen offset:1024 sc1"]
    for i in range(32):
        if i % 4 == 0 and i: gl.append("s_add_u32 s86, s86, 4096")
        gl.append(f"buffer_load_dwordx4 {ar(4*i,4)}, v{L16}, {sr(SRD_B,4)}, s86 offen offset:{(i%4)*1024} sc1")
    n3 = -(-len(gl) // 3)
    q.late[gs] = [WVM([("kvf", 0)]), T("\n".join(m.L))] + gl[:n3]
    q.late[gs + 1] = gl[n3:2*n3]; q.late[gs + 2] = gl[2*n3:]
    t2 = Txt()
    g2 = setup_gemm24(t2, 2, opt, (110, 111, 112, LANE, L16, 98))
    q.late[5] = t2.L[:len(t2.L)//2]; q.late[6] = t2.L[len(t2.L)//2:] + [f"global_load_ushort v{MC+i}, v109, s[{P_C}:{P_C+1}] offset:{i*16}" for i in range(8)]
    assert gs - 2 > 6
    younger = []
    younger += g2.prefetch_txt(8)
    mbl = []
    for i in range(8): mbl += [f"buffer_load_dwordx4 {vr(MW+4*i,4)}, v115, {sr(SRD_D,4)}, s{S_MB} offen", f"s_add_u32 s{S_MB}, s{S_MB}, {8*12288}"]
    mpos = opt.get("mpos", "tail")
    if mpos == "tail": younger += mbl
    ny = sum(1 for x in younger if is_vm(x))
    rest = list(range(gs + 3, 16)); per = -(-len(younger) // len(rest))
    for j, st_ in enumerate(rest): q.late[st_] = younger[j*per:(j+1)*per]
    A_PH = 128
    q.last_reads = wph_reads(ar, A_PH)
    q.run(k)
    k.stamp("g1b done")
    srd(k, SRD_T, P_WS, S * D * 2, WS_O)
    k("s_waitcnt lgkmcnt(0)\ns_nop 3")
    qa = Txt(); fm_part1(qa, 0, lambda i: ar(A_PH + i * 4, 4))
    qa(f"s_waitcnt vmcnt({min(63, ny + 32)})")
    for sh in (8, 4, 2, 1):
        for j in range(8): qa(f"v_add_f32_dpp v{ZZ+j}, v{ZZ+j}, v{ZZ+j} row_ror:{sh} row_mask:0xf bank_mask:0xf")
    for x in qa.L: k(x)
    k.stamp("qp a")
    hs = g2.hs
    qb = Txt(); fm_part2(qb); fm_part3(qb, EK, range(2) if hs else range(4))
    red = []
    for i in range(32):
        db, pp = divmod(i, 16)
        for fb in range(2):
            d = vr(KV + (db * 2 + fb) * 4, 4)
            red.append((f"s_waitcnt vmcnt({ny + 28 - i})\n" if (i % 4 == 0 and fb == 0) else "") + f"{MF} {d}, {vr(SEL + (2 if fb == 0 else 0), 4)}, {ar(4*i,4)}, {'0' if pp == 0 else d}")
    cut = opt.get("q_cut", 150) if not hs else len(qb.L)
    for x in merge(qb.L[:cut], red, 2): k(x)
    if hs:
        k("s_nop 3")
        qb = Txt(); fm_part3(qb, EK, [2]); cut = 0
    k.stamp("qp merged")
    k(f"s_mul_i32 s82, s{S_WAVE}, 3072\ns_add_u32 s82, s82, {SH}")
    k(f"v_add_u32 v{VT+1}, s82, v{L16}\nv_add_u32 v{VT+2}, {SH}, v{L16}")
    k(f"v_and_b32 v{VT}, 1, v{LANE}\nv_cmp_eq_u32 vcc, 0, v{VT}")
    k("s_nop 4")
    for j in range(12): k(f"v_cvt_pk_bf16_f32 v{KV+j}, v{KV+2*j}, v{KV+2*j+1}")
    for j in range(4): k(f"v_cndmask_b32 v{KV+8+j}, v{ONES}, v{KV+8+j}, vcc")
    for j in range(3): k(f"ds_write_b128 v{VT+1}, {vr(KV+4*j,4)} offset:{j*1024}")
    for x in (merge(qb.L[cut:], mbl, 2) if mpos == "q" else qb.L[cut:]): k(x)
    k.stamp("qp rest")
    k("s_waitcnt lgkmcnt(0)\ns_barrier")
    k.stamp("qp bar")
    for i in range(12): k(f"ds_read_b128 {ar(4*i,4)}, v{VT+2} offset:{i*1024}")
    k(f"s_lshl_b32 s82, s{S_RB1}, 3\ns_lshl_b32 s83, s{S_WAVE}, 1\ns_add_u32 s82, s82, s83\ns_lshl_b32 s82, s82, 15")
    k(f"s_lshl_b32 s83, s{S_HP}, 11\ns_add_u32 s82, s82, s83\ns_add_u32 s83, s82, 0x8000")
    k(f"s_lshl_b32 s84, s{S_RB1}, 2\ns_add_u32 s84, s84, s{S_WAVE}\ns_lshl_b32 s84, s84, {FS+4}\ns_lshl_b32 s85, s{S_HP}, {FS}\ns_add_u32 s84, s84, s85\ns_add_u32 s84, s84, {F_O}")
    k("s_waitcnt lgkmcnt(0)")
    NB_ = 126
    def nbase(g): return NB_ + g * 24 if (not hs or g >= 2) else None
    def oregs(g):
        if hs and g < 2: return (0, 12) if g == 0 else (72, 84)
        return (NB_ + g * 24, NB_ + g * 24 + 12)
    def o_mfma(gl):
        for g in gl:
            hh, t = groups[g]
            for sg in range(2):
                for j in range(3):
                    k(f"{MF} {vr(oregs(g)[sg]+4*j,4)}, {ar(((hh*2+sg)*3+j)*4,4)}, {vr(EK+(g*2+sg)*4,4)}, 0")
    def o_fin(gl):
        for g in gl:
            hh, t = groups[g]
            n1, n2 = oregs(g)
            D1, S1, D2, S2 = n1 + 8, n1 + 9, n2 + 8, n2 + 9
            k(f"v_mul_f32 v{n1+10}, v{S1}, v{S2}")
            k(f"v_mul_f32 v{n1+10}, 0x358637bd, v{n1+10}")
            k(f"v_fmac_f32 v{n1+10}, v{D1}, v{S2}\nv_fmac_f32 v{n1+10}, v{D2}, v{S1}")
            k(f"v_rcp_f32 v{n1+10}, v{n1+10}")
            k("s_nop 0")
            k(f"v_mul_f32 v{D1}, v{S2}, v{n1+10}\nv_mul_f32 v{D2}, v{S1}, v{n1+10}")
            for j in range(4): k(f"v_pk_mul_f32 {vr(n1+2*j,2)}, {vr(n1+2*j,2)}, {vr(D1,2)} op_sel_hi:[1,0]")
            for j in range(4): k(f"v_pk_fma_f32 {vr(n1+2*j,2)}, {vr(n2+2*j,2)}, {vr(D2,2)}, {vr(n1+2*j,2)} op_sel_hi:[1,0,1]")
            for j in range(4): k(f"v_cvt_pk_bf16_f32 v{n2+j}, v{n1+2*j}, v{n1+2*j+1}")
            k(f"buffer_store_dwordx4 {vr(n2,4)}, v{L16}, {sr(SRD_T,4)}, s{82+t} offen offset:{hh*1024} sc1")
    if hs:
        o_mfma([0, 1]); k("s_nop 7"); o_fin([0, 1])
        mk0 = len(k.L)
        fm_part3(k, EK, [3])
        k("s_nop 1")
        o_mfma([2, 3]); k("s_nop 7")
        publish(k, 84, VT + 1, mk0)
        k(f"s_add_u32 s95, s84, {F_O2 - F_O}")
        o_fin([2, 3])
    else:
        o_mfma(range(4)); k("s_nop 7"); o_fin(range(4))
    k.stamp("o stored")
    mko = len(k.L)
    g2.V_X = 178
    srd(k, SRD_A, P_X, S * D * 2)
    V_XA = 100
    k(f"v_lshrrev_b32 v{VT+1}, 4, v{LANE}")
    k(f"v_and_b32 v{VT+2}, 15, v{LANE}\nv_lshlrev_b32 v{VT+2}, 11, v{VT+2}\nv_lshl_add_u32 v{V_XA}, v{VT+1}, 3, v{VT+2}")
    k(f"s_lshl_b32 s82, s{S_RB2}, 3\ns_lshl_b32 s83, s{S_WAVE}, 1\ns_add_u32 s82, s82, s83\ns_lshl_b32 s82, s82, 15\ns_lshl_b32 s83, s{S_NT}, 7\ns_add_u32 s82, s82, s83\ns_add_u32 s83, s82, 32768")
    for t in range(2):
        for b in range(4):
            k(f"buffer_load_dwordx2 {vr(g2.V_X+(t*4+b)*2,2)}, v{V_XA}, {sr(SRD_A,4)}, s{82+t} offen offset:{b*32}")
    k.g3 = setup_gemm3_early(k, opt, LANE, 20)
    if not hs: publish(k, 84, VT + 1, mko)
    k.stamp("o published")
    mark1 = len(k.L)
    CU, AU, TT = 0, 16, 24
    for i in range(8): k(f"v_mov_b32 v{CU+2*i}, v{MC+i}")
    silu_block(k, [CU + 2 * i for i in range(8)])
    for i in range(8):
        for d in range(4):
            k(f"v_lshlrev_b32 v{TT}, 16, v{MW+4*i+d}\nv_and_b32 v{TT+1}, 0xffff0000, v{MW+4*i+d}")
            if i == 0: k(f"v_pk_mul_f32 {vr(AU+2*d,2)}, {vr(TT,2)}, {vr(CU,2)} op_sel_hi:[1,0]")
            else: k(f"v_pk_fma_f32 {vr(AU+2*d,2)}, {vr(TT,2)}, {vr(CU+2*i,2)}, {vr(AU+2*d,2)} op_sel_hi:[1,0,1]")
    k("s_nop 1")
    for j in range(4): k(f"v_permlane32_swap_b32 v{AU+j}, v{AU+j+4}")
    k("s_nop 1")
    for j in range(4): k(f"v_add_f32 v{AU+j}, v{AU+j}, v{AU+j+4}")
    k("s_nop 1")
    for j in range(2): k(f"v_permlane16_swap_b32 v{AU+j}, v{AU+j+2}")
    k("s_nop 1")
    for j in range(2): k(f"v_add_f32 v{AU+j}, v{AU+j}, v{AU+j+2}")
    k("s_nop 1")
    for j in range(2): k(f"v_add_f32_dpp v{AU+j}, v{AU+j}, v{AU+j} row_ror:8 row_mask:0xf bank_mask:0xf")
    sprinkle(k, mark1, g3_early_units(k.g3, opt.get("g3_e2", 7), 254), skip=0)
    k(f"v_and_b32 v{TT}, 7, v{LANE}\nv_lshlrev_b32 v{TT}, 5, v{TT}\nv_lshrrev_b32 v{TT+1}, 5, v{LANE}\nv_lshl_add_u32 v{TT}, v{TT+1}, 4, v{TT}")
    k(f"v_bfe_u32 v{TT+1}, v{LANE}, 4, 1\nv_lshl_add_u32 v{TT}, v{TT+1}, 3, v{TT}")
    srd(k, SRD_D, P_WS, MP_BYTES, WS_MODP)
    k(f"v_or_b32 v{AU}, 1, v{AU}\nv_or_b32 v{AU+1}, 1, v{AU+1}")
    k(f"buffer_store_dwordx2 {vr(AU,2)}, v{TT}, {sr(SRD_D,4)}, s{S_MO} offen sc1")
    return g2

A_UT = 176
def silu_block(k, regs):
    for v in regs: k(f"v_lshlrev_b32 v{v}, 16, v{v}\nv_mul_f32 v{v+1}, {-LOG2E!r}, v{v}")
    for v in regs: k(f"v_exp_f32 v{v+1}, v{v+1}")
    k("s_nop 0")
    for v in regs: k(f"v_add_f32 v{v+1}, 1.0, v{v+1}")
    for v in regs: k(f"v_rcp_f32 v{v+1}, v{v+1}")
    k("s_nop 0")
    for v in regs:
        k(f"v_mul_f32 v{v}, v{v}, v{v+1}"); round_bf16(k, v)

def modb_loads(s_off, v_w, v_c):
    out = []
    for i in range(8):
        out.append([f"buffer_load_dwordx4 {ar(A_UT+4*i,4)}, v{v_w}, {sr(SRD_D,4)}, s{s_off} offen", f"s_add_u32 s{s_off}, s{s_off}, {8*12288}"])
    return out

def red32(k, x, t):
    red8(k, x)
    k(f"s_nop 1\nv_add_f32_dpp v{x}, v{x}, v{x} row_mirror row_mask:0xf bank_mask:0xf")
    k(f"v_mov_b32 v{t}, v{x}\ns_nop 1\nv_permlane16_swap_b32 v{x}, v{t}\ns_nop 1\nv_add_f32 v{x}, v{x}, v{t}")

def ids(k):
    k("v_lshrrev_b32 v1, 6, v0")
    k(f"s_and_b32 s{S_XCD}, s2, 7\ns_lshr_b32 s{S_IDX}, s2, 3")
    k(f"v_readfirstlane_b32 s{S_WAVE}, v1")
    k(f"s_bfe_u32 s{S_RB1}, s{S_XCD}, 0x10001\ns_lshl_b32 s{S_RB1}, s{S_RB1}, 3\ns_lshr_b32 s80, s{S_IDX}, 2\ns_add_u32 s{S_RB1}, s{S_RB1}, s80")
    k(f"s_lshr_b32 s{S_HP}, s{S_XCD}, 2\ns_lshl_b32 s{S_HP}, s{S_HP}, 2\ns_and_b32 s80, s{S_IDX}, 3\ns_add_u32 s{S_HP}, s{S_HP}, s80\ns_lshl_b32 s{S_HP}, s{S_HP}, 1\ns_and_b32 s80, s{S_XCD}, 1\ns_add_u32 s{S_HP}, s{S_HP}, s80")

def build_k0(instr=False, opt=None, name="mod_kernel", mega="mega_kernel"):
    opt = opt or {}
    k = Kernel(name, 256, 256, 4096, vgpr=128, sgpr=102)
    k.instr = instr; k.s_wave = S_WAVE
    stamp(k, 0)
    end = k.label("end")
    k(f"s_cmp_ge_u32 s2, 256\ns_cbranch_scc1 {end}")
    k("s_load_dwordx4 s[12:15], s[0:1], 64")
    k("s_load_dwordx8 s[4:11], s[0:1], 0")
    k("s_load_dwordx2 s[28:29], s[0:1], 96")
    ids(k)
    LANE, T, V_W = 104, 48, 105
    WA, CA, XR, XF, A0, SU = 64, 80, 84, 0, 32, 100
    k(f"v_and_b32 v{LANE}, 63, v0")
    k(f"v_lshrrev_b32 v{T+1}, 3, v{LANE}\nv_and_b32 v{T+2}, 7, v{LANE}")
    k(f"v_mul_u32_u24 v{V_W}, 12288, v{T+1}\nv_lshl_add_u32 v{V_W}, v{T+2}, 4, v{V_W}")
    k(f"s_lshl_b32 s64, s{S_RB1}, 6\ns_lshl_b32 s65, s{S_WAVE}, 4\ns_add_u32 s64, s64, s65")
    k(f"v_add_u32 v{T+3}, s64, v{T+1}\nv_lshlrev_b32 v{T+3}, 1, v{T+3}")
    k(f"s_mul_i32 s67, s64, 12288\ns_lshl_b32 s66, s{S_HP}, 7\ns_add_u32 s67, s67, s66\ns_add_u32 s68, s67, {8*12288}")
    k(f"v_lshrrev_b32 v{T+4}, 5, v{LANE}\nv_lshlrev_b32 v{T+4}, 11, v{T+4}\nv_and_b32 v{T+5}, 31, v{LANE}\nv_lshl_add_u32 v{T+4}, v{T+5}, 4, v{T+4}")
    k(f"s_lshl_b32 s69, s{S_RB1}, 4\ns_add_u32 s69, s69, s{S_HP}")
    k(f"s_lshl_b32 s70, s69, 14\ns_lshl_b32 s71, s{S_WAVE}, 12\ns_add_u32 s70, s70, s71")
    k("s_waitcnt lgkmcnt(0)")
    srd(k, SRD_D, 14, D * 6 * D * 2)
    srd(k, SRD_A, P_X, S * D * 2)
    for i in range(2): k(f"global_load_ushort v{CA+2*i}, v{T+3}, s[12:13] offset:{i*16}")
    for i in range(2):
        for v in range(2): k(f"buffer_load_dwordx4 {vr(WA+(i*2+v)*4,4)}, v{V_W}, {sr(SRD_D,4)}, s{67+i} offen offset:{v*2048}")
    for i in range(4): k(f"buffer_load_dwordx4 {vr(XR+4*i,4)}, v{T+4}, {sr(SRD_A,4)}, s70 offen offset:{i*512}")
    stamp(k, 1)
    lab = k.label("pc")
    k(f"s_getpc_b64 s[60:61]\n{lab}:")
    k(f"s_add_u32 s60, s60, {mega}-{lab}\ns_addc_u32 s61, s61, 0")
    k(f"v_lshlrev_b32 v{T+6}, 4, v{LANE}")
    for x in code_prefetch_txt(mega, T + 6, T + 7, 62, s_pc=60, junk="v110"): k(x)
    srd(k, SRD_B, P_WS, MP_BYTES, WS_MODP)
    srd(k, SRD_F, P_WS, FLAG_BYTES, WS_FLAG)
    srd(k, SRD_C, P_WS, S * 128, WS_STAT)
    k(f"v_mov_b32 v{T+8}, 0\nv_lshlrev_b32 v{T+9}, 2, v0\ns_lshl_b32 s62, s2, 10\ns_add_u32 s63, s62, {MP_B}")
    k(f"v_lshlrev_b32 v{T+10}, {FS}, v0\ns_lshl_b32 s66, s2, {FS+8}")
    k(f"buffer_store_dword v{T+8}, v{T+10}, {sr(SRD_F,4)}, s66 offen")
    k(f"buffer_store_dword v{T+8}, v{T+9}, {sr(SRD_C,4)}, s62 offen")
    k(f"buffer_store_dword v{T+8}, v{T+9}, {sr(SRD_B,4)}, s63 offen")
    young = 4
    k(f"s_lshl_b32 s62, s2, 2\ns_add_u32 s62, s62, s{S_WAVE}")
    for ptr, per, tag in ((P_WQKV, 6, "t_wq"), (P_WO, 2, "t_wo"), (14, 12, "t_wm")):
        if not opt.get(tag, 1): continue
        k(f"s_mul_i32 s63, s62, {per*1024}\ns_add_u32 s63, s63, 384")
        k(f"v_min_u32 v{T+14}, {per-1}, v{LANE}\nv_lshlrev_b32 v{T+14}, 10, v{T+14}\nv_add_u32 v{T+14}, s63, v{T+14}")
        k(f"global_load_dword v110, v{T+14}, s[{ptr}:{ptr+1}]")
        young += 1
    k(f"s_waitcnt vmcnt({young + 8})")
    silu_block(k, [CA, CA + 2])
    k(f"s_waitcnt vmcnt({young + 4})")
    for i in range(2):
        for v in range(2):
            for d in range(4):
                w_ = WA + (i * 2 + v) * 4 + d
                k(f"v_lshlrev_b32 v{T+10}, 16, v{w_}\nv_and_b32 v{T+11}, 0xffff0000, v{w_}")
                if i == 0: k(f"v_pk_mul_f32 {vr(A0+v*8+2*d,2)}, {vr(T+10,2)}, {vr(CA,2)} op_sel_hi:[1,0]")
                else: k(f"v_pk_fma_f32 {vr(A0+v*8+2*d,2)}, {vr(T+10,2)}, {vr(CA+2,2)}, {vr(A0+v*8+2*d,2)} op_sel_hi:[1,0,1]")
    k("s_nop 1")
    for j in range(8): k(f"v_permlane32_swap_b32 v{A0+j}, v{A0+8+j}")
    k("s_nop 1")
    for j in range(8): k(f"v_add_f32 v{A0+j}, v{A0+j}, v{A0+8+j}")
    k("s_nop 1")
    for j in range(4): k(f"v_permlane16_swap_b32 v{A0+j}, v{A0+4+j}")
    k("s_nop 1")
    for j in range(4): k(f"v_add_f32 v{A0+j}, v{A0+j}, v{A0+4+j}")
    k("s_nop 1")
    for j in range(4): k(f"v_add_f32_dpp v{A0+j}, v{A0+j}, v{A0+j} row_ror:8 row_mask:0xf bank_mask:0xf")
    k(f"v_lshrrev_b32 v{T+12}, 5, v{LANE}\nv_lshlrev_b32 v{T+13}, 8, v{T+12}\nv_lshl_add_u32 v{T+13}, v{T+2}, 5, v{T+13}")
    k(f"v_bfe_u32 v{T+10}, v{LANE}, 4, 1\nv_lshl_add_u32 v{T+13}, v{T+10}, 4, v{T+13}\ns_lshl_b32 s62, s{S_WAVE}, 9\nv_add_u32 v{T+13}, s62, v{T+13}")
    k(f"ds_write_b128 v{T+13}, {vr(A0,4)}")
    k("s_waitcnt lgkmcnt(0)\ns_barrier")
    nw0 = k.label("notw0")
    k(f"s_cmp_lg_u32 s{S_WAVE}, 0\ns_cbranch_scc1 {nw0}")
    k(f"v_lshlrev_b32 v{T+13}, 3, v{LANE}")
    for w in range(4): k(f"ds_read_b64 {vr(A0+2*w,2)}, v{T+13} offset:{w*512}")
    k(f"s_lshl_b32 s62, s{S_HP}, 13\ns_lshl_b32 s63, s{S_RB1}, 9\ns_add_u32 s63, s63, s62")
    k("s_waitcnt lgkmcnt(0)")
    k(f"v_pk_add_f32 {vr(A0,2)}, {vr(A0,2)}, {vr(A0+2,2)}\nv_pk_add_f32 {vr(A0+4,2)}, {vr(A0+4,2)}, {vr(A0+6,2)}\nv_pk_add_f32 {vr(A0,2)}, {vr(A0,2)}, {vr(A0+4,2)}")
    k(f"buffer_store_dwordx2 {vr(A0,2)}, v{T+13}, {sr(SRD_B,4)}, s63 offen")
    k(f"{nw0}:")
    stamp(k, 2)
    k(f"s_waitcnt vmcnt({young})")
    for d in range(16): k(f"v_lshlrev_b32 v{XF+2*d}, 16, v{XR+d}\nv_and_b32 v{XF+2*d+1}, 0xffff0000, v{XR+d}")
    k(f"v_pk_add_f32 {vr(SU,2)}, {vr(XF,2)}, {vr(XF+2,2)}")
    for d in range(2, 16): k(f"v_pk_add_f32 {vr(SU,2)}, {vr(SU,2)}, {vr(XF+2*d,2)}")
    k(f"v_add_f32 v{SU}, v{SU}, v{SU+1}")
    red32(k, SU, SU + 1)
    k(f"v_mul_f32 v{SU+2}, {-1.0/1024!r}, v{SU}")
    k(f"v_mov_b32 v{SU}, 0\nv_mov_b32 v{SU+1}, 0")
    for d in range(16):
        k(f"v_pk_add_f32 {vr(XF+2*d,2)}, {vr(XF+2*d,2)}, {vr(SU+2,2)} op_sel_hi:[1,0]")
        k(f"v_pk_fma_f32 {vr(SU,2)}, {vr(XF+2*d,2)}, {vr(XF+2*d,2)}, {vr(SU,2)}")
    k(f"v_add_f32 v{SU}, v{SU}, v{SU+1}")
    red32(k, SU, SU + 1)
    k(f"v_mov_b32 v{SU+1}, 0x3727c5ac\nv_fmac_f32 v{SU+1}, {1.0/1024!r}, v{SU}\nv_rsq_f32 v{SU+3}, v{SU+1}")
    k(f"s_lshl_b32 s62, s69, 6\ns_lshl_b32 s63, s{S_WAVE}, 4\ns_add_u32 s62, s62, s63\ns_add_u32 s62, s62, {MP_RS}\nv_lshlrev_b32 v{T+12}, 3, v{T+12}")
    k(f"buffer_store_dwordx2 {vr(SU+2,2)}, v{T+12}, {sr(SRD_B,4)}, s62 offen")
    stamp(k, 3)
    if instr: k("s_waitcnt vmcnt(0)")
    stamp(k, 4)
    stamp_flush(k, 28, 5, 4, slot=1)
    k(f"{end}:\ns_endpgm")
    return k

def phase_front_fused(k, opt, name):
    LANE, L16 = 104, 105
    T = 48
    V_W, V_C = 115, 109
    WA, CA, XR, XT_, XF, A0, SU, G, M, RS = 64, 80, 128, 144, 0, 200, 216, 160, 32, 84
    HL = 2 * 25344
    k(f"v_lshrrev_b32 v{T+1}, 3, v{LANE}\nv_and_b32 v{T+2}, 7, v{LANE}")
    k(f"v_mul_u32_u24 v{V_W}, 12288, v{T+1}\nv_lshl_add_u32 v{V_W}, v{T+2}, 4, v{V_W}")
    k(f"s_lshl_b32 s84, s{S_RB1}, 6")
    k(f"v_add_u32 v{V_C}, s84, v{T+1}\nv_lshlrev_b32 v{V_C}, 1, v{V_C}")
    k(f"s_lshl_b32 s85, s{S_WAVE}, 5\nv_add_u32 v{T+3}, s85, v{V_C}")
    k(f"s_mul_i32 s86, s84, 12288\ns_lshl_b32 s87, s{S_HP}, 7\ns_add_u32 s86, s86, s87")
    k(f"s_mul_i32 s87, s{S_WAVE}, {16*12288}\ns_add_u32 s87, s87, s86\ns_add_u32 s88, s87, {8*12288}")
    k(f"v_lshrrev_b32 v{T+4}, 5, v{LANE}\nv_lshlrev_b32 v{T+4}, 11, v{T+4}\nv_and_b32 v{T+5}, 31, v{LANE}\nv_lshl_add_u32 v{T+4}, v{T+5}, 4, v{T+4}")
    k(f"s_lshl_b32 s89, s{S_RB1}, 4\ns_add_u32 s89, s89, s{S_HP}")
    k(f"s_lshl_b32 s90, s89, 14\ns_lshl_b32 s91, s{S_WAVE}, 12\ns_add_u32 s90, s90, s91")
    k(f"v_mov_b32 v{T+8}, 0\nv_mov_b32 v{T+9}, 0\nv_mov_b32 v{T+10}, 0\nv_mov_b32 v{T+11}, 0\nv_mov_b32 v{T+12}, 1")
    k(f"v_lshlrev_b32 v{T+7}, {FS}, v{LANE}")
    k(f"s_lshl_b32 s93, s2, {FS+6}\ns_add_u32 s93, s93, {F_S0}\ns_cmp_lt_u32 s2, 4\ns_cselect_b32 s93, s93, 0x7ff00000\ns_cmp_eq_u32 s{S_WAVE}, 3\ns_cselect_b32 s93, s93, 0x7ff00000")
    k("s_waitcnt lgkmcnt(0)")
    srd(k, SRD_F, P_WS, FLAG_BYTES, WS_FLAG)
    k(f"buffer_store_dword v{T+8}, v{T+7}, {sr(SRD_F,4)}, s93 offen sc1")
    k(f"s_mov_b32 s{SRD_T}, s{P_DBG}\ns_mov_b32 s{SRD_T+1}, s{P_DBG+1}\ns_mov_b32 s{SRD_T+2}, 256\ns_mov_b32 s{SRD_T+3}, 0x20000")
    k("s_mov_b32 s95, s93")
    srd(k, SRD_D, P_WMOD, D * 6 * D * 2)
    srd(k, SRD_A, P_X, S * D * 2)
    for i in range(2): k(f"global_load_ushort v{CA+2*i}, v{T+3}, s[{P_C}:{P_C+1}] offset:{i*16}")
    for i in range(2):
        for v in range(2): k(f"buffer_load_dwordx4 {vr(WA+(i*2+v)*4,4)}, v{V_W}, {sr(SRD_D,4)}, s{87+i} offen offset:{v*2048}")
    for i in range(4): k(f"buffer_load_dwordx4 {vr(XR+4*i,4)}, v{T+4}, {sr(SRD_A,4)}, s90 offen offset:{i*512}")
    k.stamp("loads issued")
    srd(k, SRD_B, P_WS, MP_BYTES, WS_MODP)
    srd(k, SRD_C, P_WS, S * 128, WS_STAT)
    w3, jn = k.label("w3"), k.label("join")
    k(f"s_cmp_eq_u32 s{S_WAVE}, 3\ns_cbranch_scc1 {w3}")
    k(f"s_lshl_b32 s92, s2, 1\ns_add_u32 s92, s92, s{S_WAVE}\ns_sub_u32 s92, s92, 1")
    nt_ = k.label("notouch")
    k("s_mov_b32 s93, 0x7ff00000")
    for i in range(2): k(f"buffer_load_dword a233, v{V_W}, {sr(SRD_D,4)}, s93 offen")
    k(f"s_cmp_eq_u32 s{S_WAVE}, 0\ns_cbranch_scc1 {nt_}")
    for ptr, per in ((P_WQKV, 12), (P_WO, 4), (P_WMOD, 24)):
        k(f"s_mul_i32 s93, s92, {per}\nv_min_u32 v{T+14}, {per-1}, v{LANE}\nv_add_u32 v{T+14}, s93, v{T+14}")
        k(f"v_lshlrev_b32 v{T+14}, 10, v{T+14}")
        k(f"global_load_dword a232, v{T+14}, s[{ptr}:{ptr+1}] offset:384")
    k(f"s_branch {jn}")
    k(f"{nt_}:")
    for i in range(3): k(f"buffer_load_dword a233, v{V_W}, {sr(SRD_D,4)}, s93 offen")
    k(f"s_branch {jn}")
    k(f"{w3}:")
    nb = k.label("nboot")
    k(f"s_cmp_eq_u32 s95, 0x7ff00000\ns_cbranch_scc1 {nb}")
    k("s_lshl_b32 s93, s2, 2\ns_waitcnt vmcnt(10)")
    k(f"buffer_store_dword v{T+12}, v{T+8}, {sr(SRD_T,4)}, s93 offen sc1")
    k(f"{nb}:")
    k(f"v_and_b32 v{T+14}, 3, v{LANE}\nv_lshlrev_b32 v{T+14}, 4, v{T+14}")
    k(f"s_lshl_b32 s93, s{S_RB1}, 6\ns_add_u32 s93, s93, s{S_HP}\nv_add_u32 v{T+15}, s93, v{T+14}")
    k(f"s_lshl_b32 s93, s{S_HP}, 6\ns_add_u32 s93, s93, s{S_RB1}\ns_add_u32 s93, s93, 1024\nv_add_u32 v{T+14}, s93, v{T+14}")
    k(f"v_cmp_gt_u32 vcc, 4, v{LANE}\ns_mul_i32 s93, s2, 24\ns_add_u32 s93, s93, 2040")
    k(f"v_cndmask_b32 v{T+14}, v{T+14}, v{T+15}, vcc\nv_add_u32 v{T+15}, s93, v{LANE}")
    k(f"v_cmp_gt_u32 vcc, 8, v{LANE}\ns_nop 1\nv_cndmask_b32 v{T+14}, v{T+15}, v{T+14}, vcc")
    k(f"v_cmp_gt_u32 vcc, 32, v{LANE}\nv_mov_b32 v{T+15}, 0x100000\ns_nop 0\nv_cndmask_b32 v{T+14}, v{T+15}, v{T+14}, vcc")
    k(f"v_lshlrev_b32 v{T+14}, {FS}, v{T+14}")
    k(f"buffer_store_dword v{T+8}, v{T+14}, {sr(SRD_F,4)}, 0 offen sc1")
    k("s_mov_b32 s93, 0x7ff00000")
    for i in range(2): k(f"buffer_load_dword a233, v{V_W}, {sr(SRD_D,4)}, s93 offen")
    k("s_lshl_b32 s93, s2, 10")
    k(f"buffer_store_dwordx4 {vr(T+8,4)}, v{L16}, {sr(SRD_C,4)}, s93 offen sc1")
    k(f"s_add_u32 s93, s93, {MP_B}")
    k(f"buffer_store_dwordx4 {vr(T+8,4)}, v{L16}, {sr(SRD_B,4)}, s93 offen sc1")
    k(f"{jn}:")
    k(f"v_lshlrev_b32 v{T+5}, 11, v{T+1}\nv_lshl_add_u32 v{T+5}, v{T+2}, 4, v{T+5}")
    k(f"s_lshl_b32 s91, s{S_RB1}, 18\ns_lshl_b32 s92, s{S_WAVE}, 16\ns_add_u32 s91, s91, s92\ns_lshl_b32 s92, s{S_HP}, 7\ns_add_u32 s91, s91, s92")
    for i in range(4):
        k(f"buffer_load_dwordx4 {vr(XT_+4*i,4)}, v{T+5}, {sr(SRD_A,4)}, s91 offen")
        if i < 3: k("s_add_u32 s91, s91, 16384")
    k(f"s_lshl_b32 s94, s{S_WAVE}, 11\ns_add_u32 s{S_MB}, s86, s94\ns_add_u32 s{S_MB}, s{S_MB}, 4096")
    k(f"s_lshl_b32 s94, s{S_WAVE}, 16\ns_lshl_b32 s95, s{S_HP}, 12\ns_add_u32 s94, s94, s95\ns_lshl_b32 s95, s{S_RB1}, 8\ns_add_u32 s94, s94, s95\ns_add_u32 s{S_MO}, s94, {MP_B}")
    young = 9
    k.stamp("all issued")
    k(f"s_waitcnt vmcnt({young + 8})")
    k.stamp("c ready")
    silu_block(k, [CA, CA + 2])
    k(f"s_waitcnt vmcnt({young + 4})")
    k.stamp("w ready")
    for i in range(2):
        for v in range(2):
            for d in range(4):
                w_ = WA + (i * 2 + v) * 4 + d
                k(f"v_lshlrev_b32 v{T+14}, 16, v{w_}\nv_and_b32 v{T+15}, 0xffff0000, v{w_}")
                if i == 0: k(f"v_pk_mul_f32 {vr(A0+v*8+2*d,2)}, {vr(T+14,2)}, {vr(CA,2)} op_sel_hi:[1,0]")
                else: k(f"v_pk_fma_f32 {vr(A0+v*8+2*d,2)}, {vr(T+14,2)}, {vr(CA+2,2)}, {vr(A0+v*8+2*d,2)} op_sel_hi:[1,0,1]")
    k("s_nop 1")
    for j in range(8): k(f"v_permlane32_swap_b32 v{A0+j}, v{A0+8+j}")
    k("s_nop 1")
    for j in range(8): k(f"v_add_f32 v{A0+j}, v{A0+j}, v{A0+8+j}")
    k("s_nop 1")
    for j in range(4): k(f"v_permlane16_swap_b32 v{A0+j}, v{A0+4+j}")
    k("s_nop 1")
    for j in range(4): k(f"v_add_f32 v{A0+j}, v{A0+j}, v{A0+4+j}")
    k("s_nop 1")
    for j in range(4): k(f"v_add_f32_dpp v{A0+j}, v{A0+j}, v{A0+j} row_ror:8 row_mask:0xf bank_mask:0xf")
    k(f"v_lshrrev_b32 v{T+13}, 5, v{LANE}\nv_lshlrev_b32 v{T+14}, 8, v{T+13}\nv_lshl_add_u32 v{T+14}, v{T+2}, 5, v{T+14}")
    k(f"v_bfe_u32 v{T+15}, v{LANE}, 4, 1\nv_lshl_add_u32 v{T+14}, v{T+15}, 4, v{T+14}\ns_lshl_b32 s94, s{S_WAVE}, 9\nv_add_u32 v{T+14}, s94, v{T+14}")
    k(f"ds_write_b128 v{T+14}, {vr(A0,4)} offset:{HL}")
    k(f"s_waitcnt vmcnt({young})")
    for d in range(16): k(f"v_lshlrev_b32 v{XF+2*d}, 16, v{XR+d}\nv_and_b32 v{XF+2*d+1}, 0xffff0000, v{XR+d}")
    k(f"v_pk_add_f32 {vr(SU,2)}, {vr(XF,2)}, {vr(XF+2,2)}")
    for d in range(2, 16): k(f"v_pk_add_f32 {vr(SU,2)}, {vr(SU,2)}, {vr(XF+2*d,2)}")
    k(f"v_add_f32 v{SU}, v{SU}, v{SU+1}")
    red32(k, SU, SU + 1)
    k(f"v_mul_f32 v{SU+2}, {-1.0/1024!r}, v{SU}")
    k(f"v_mov_b32 v{SU}, 0\nv_mov_b32 v{SU+1}, 0")
    for d in range(16):
        k(f"v_pk_add_f32 {vr(XF+2*d,2)}, {vr(XF+2*d,2)}, {vr(SU+2,2)} op_sel_hi:[1,0]")
        k(f"v_pk_fma_f32 {vr(SU,2)}, {vr(XF+2*d,2)}, {vr(XF+2*d,2)}, {vr(SU,2)}")
    k(f"v_add_f32 v{SU}, v{SU}, v{SU+1}")
    red32(k, SU, SU + 1)
    k(f"v_mov_b32 v{SU+1}, 0x3727c5ac\nv_fmac_f32 v{SU+1}, {1.0/1024!r}, v{SU}\nv_rsq_f32 v{SU+3}, v{SU+1}")
    k(f"s_lshl_b32 s94, s{S_WAVE}, 4\nv_lshlrev_b32 v{T+13}, 3, v{T+13}\nv_add_u32 v{T+13}, s94, v{T+13}")
    k(f"ds_write_b64 v{T+13}, {vr(SU+2,2)} offset:{HL+2048}")
    n3 = k.label("not3")
    k(f"s_cmp_lg_u32 s{S_WAVE}, 3\ns_cbranch_scc1 {n3}")
    k(f"v_and_b32 v{T+14}, 3, v{LANE}\nv_lshlrev_b32 v{T+14}, 2, v{T+14}")
    spin(k, [f"buffer_load_dword v{T+13}, v{T+14}, {sr(SRD_T,4)}, 0 offen sc1"], [T + 13], 0)
    k(f"{n3}:")
    k("s_waitcnt lgkmcnt(0)\ns_barrier")
    k.stamp("partials")
    nw0 = k.label("notw0")
    k(f"v_lshlrev_b32 v{T+6}, 3, v{LANE}")
    k(f"s_cmp_lg_u32 s{S_WAVE}, 0\ns_cbranch_scc1 {nw0}")
    for w in range(4): k(f"ds_read_b64 {vr(A0+2*w,2)}, v{T+6} offset:{HL+w*512}")
    k(f"v_and_b32 v{T+9}, 0x38, v{T+6}")
    k(f"ds_read_b64 {vr(A0+8,2)}, v{T+9} offset:{HL+2048}")
    k(f"s_lshl_b32 s94, s{S_HP}, 13\ns_lshl_b32 s95, s{S_RB1}, 9\ns_add_u32 s95, s95, s94")
    k(f"s_lshl_b32 s90, s89, 6\ns_add_u32 s90, s90, {MP_RS}")
    k("s_waitcnt lgkmcnt(0)")
    k(f"v_pk_add_f32 {vr(A0,2)}, {vr(A0,2)}, {vr(A0+2,2)}\nv_pk_add_f32 {vr(A0+4,2)}, {vr(A0+4,2)}, {vr(A0+6,2)}\nv_pk_add_f32 {vr(A0,2)}, {vr(A0,2)}, {vr(A0+4,2)}")
    k(f"buffer_store_dwordx2 {vr(A0,2)}, v{T+6}, {sr(SRD_B,4)}, s95 offen sc1")
    k(f"buffer_store_dwordx2 {vr(A0+8,2)}, v{T+9}, {sr(SRD_B,4)}, s90 offen sc1")
    k(f"s_lshl_b32 s90, s89, {FS}\ns_add_u32 s90, s90, {F_S0}")
    k("s_waitcnt vmcnt(0)")
    k(f"buffer_store_dword v{T+12}, v{T+8}, {sr(SRD_F,4)}, s90 offen sc1")
    if opt.get("modb_front", 0):
        sk_ = k.label("skmf")
        k(f"s_branch {sk_}")
        k(f"{nw0}:")
        k("s_waitcnt vmcnt(0)")
        for g in modb_loads(S_MB, V_W, V_C):
            for x in g: k(x)
        k(f"s_mov_b32 s{S_MB}, 0x7ff00000")
        k(f"{sk_}:")
    else:
        k(f"{nw0}:")
    k.stamp("s0 published")
    split = opt.get("split", 1)
    g1 = (setup_gemm1s if split else setup_gemm1)(k, opt)
    srd(k, SRD_W, P_WQKV, D * 3 * D * 2)
    if not opt.get("modb_front", 0):
        k("s_waitcnt vmcnt(1)")
        k(f"s_cmp_eq_u32 s{S_WAVE}, 0\ns_cbranch_scc1 1\ns_waitcnt vmcnt(0)")
    for d in range(16): k(f"v_lshlrev_b32 v{XF+2*d}, 16, v{XT_+d}\nv_and_b32 v{XF+2*d+1}, 0xffff0000, v{XT_+d}")
    VS = T + 4
    k(f"v_lshrrev_b32 v{VS}, 2, v{T+2}\nv_lshlrev_b32 v{VS}, 10, v{VS}")
    k(f"v_and_b32 v{T+3}, 3, v{T+2}\nv_lshl_add_u32 v{VS}, v{T+3}, 8, v{VS}\nv_lshl_add_u32 v{VS}, v{T+1}, 4, v{VS}")
    k(f"s_lshl_b32 s86, s{S_RB1}, 3\ns_lshl_b32 s87, s{S_WAVE}, 1\ns_add_u32 s86, s86, s87\ns_lshl_b32 s86, s86, 15\ns_lshl_b32 s87, s{S_HP}, 11\ns_add_u32 s86, s86, s87\ns_add_u32 s87, s86, 0x8000")
    k(f"s_lshl_b32 s88, s{S_RB1}, 2\ns_add_u32 s88, s88, s{S_WAVE}\ns_lshl_b32 s88, s88, {FS+4}\ns_add_u32 s88, s88, {F_H}\ns_lshl_b32 s89, s{S_HP}, {FS}\ns_add_u32 s89, s89, s88")
    k(f"v_lshlrev_b32 v{T+5}, 5, v{T+2}")
    k(f"s_lshl_b32 s92, s{S_WAVE}, 8\nv_lshlrev_b32 v{T+7}, 3, v{T+1}\nv_add_u32 v{T+7}, s92, v{T+7}")
    nw1 = k.label("notw0b")
    k(f"s_cmp_lg_u32 s{S_WAVE}, 0\ns_cbranch_scc1 {nw1}")
    k(f"v_and_b32 v{T+9}, 15, v{LANE}\ns_lshl_b32 s92, s{S_RB1}, 4\nv_add_u32 v{T+10}, s92, v{T+9}\nv_lshlrev_b32 v{T+9}, 4, v{T+9}\nv_add_u32 v{T+9}, s{S_HP}, v{T+9}")
    k(f"v_and_b32 v{T+11}, 16, v{LANE}\nv_cmp_eq_u32 vcc, 0, v{T+11}\ns_mov_b32 s92, {F_S0}\ns_nop 0")
    k(f"v_cndmask_b32 v{T+9}, v{T+9}, v{T+10}, vcc\nv_lshlrev_b32 v{T+9}, {FS}, v{T+9}")
    spin(k, [f"buffer_load_dword v{T+13}, v{T+9}, {sr(SRD_F,4)}, s92 offen sc1"], [T + 13], 0)
    k(f"s_lshl_b32 s94, s{S_HP}, 13\ns_add_u32 s95, s94, 4096")
    for p_ in range(16): k(f"buffer_load_dwordx2 {vr(G+2*p_,2)}, v{T+6}, {sr(SRD_B,4)}, s{94+p_//8} offen offset:{(p_%8)*512} sc1")
    k(f"s_lshl_b32 s90, s{S_RB1}, 10\ns_add_u32 s90, s90, {MP_RS}")
    k(f"buffer_load_dwordx4 {vr(A0+8,4)}, v{L16}, {sr(SRD_B,4)}, s90 offen sc1")
    k(f"v_cmp_lt_u32 vcc, 31, v{LANE}")
    k("s_waitcnt vmcnt(1)")
    for st in (8, 4, 2, 1):
        for j in range(st): k(f"v_pk_add_f32 {vr(G+2*j,2)}, {vr(G+2*j,2)}, {vr(G+2*(j+st),2)}")
    k(f"v_cvt_pk_bf16_f32 v{G+2}, v{G}, v{G+1}\nv_lshlrev_b32 v{G}, 16, v{G+2}\nv_and_b32 v{G+1}, 0xffff0000, v{G+2}")
    k(f"v_pk_add_f32 {vr(G+4,2)}, {vr(G,2)}, 1.0 op_sel_hi:[1,0]")
    k(f"v_cvt_pk_bf16_f32 v{G+2}, v{G+4}, v{G+5}\nv_lshlrev_b32 v{G+4}, 16, v{G+2}\nv_and_b32 v{G+5}, 0xffff0000, v{G+2}")
    k(f"v_cndmask_b32 v{G}, v{G}, v{G+4}, vcc\nv_cndmask_b32 v{G+1}, v{G+1}, v{G+5}, vcc")
    k(f"ds_write_b64 v{T+6}, {vr(G,2)} offset:{HL+4096}")
    k("s_waitcnt vmcnt(0)")
    k(f"ds_write_b128 v{L16}, {vr(A0+8,4)} offset:{HL+5120}")
    k("s_waitcnt lgkmcnt(0)")
    k(f"{nw1}:")
    g1.prefetch(k, opt.get("h_pre0", 0))
    srd(k, SRD_T, P_WS, S * D * 2, WS_H)
    k("s_barrier")
    k.stamp("s0 ready")
    for h in range(2): k(f"ds_read_b128 {vr(M+4*h,4)}, v{T+5} offset:{HL+4096+h*16}\nds_read_b128 {vr(M+8+4*h,4)}, v{T+5} offset:{HL+4096+256+h*16}")
    for i in range(4): k(f"ds_read_b64 {vr(RS+2*i,2)}, v{T+7} offset:{HL+5120+i*64}")
    k("s_waitcnt lgkmcnt(0)")
    for i in range(4):
        for j in range(4): k(f"v_pk_add_f32 {vr(XF+8*i+2*j,2)}, {vr(XF+8*i+2*j,2)}, {vr(RS+2*i,2)} op_sel_hi:[1,0]")
        for j in range(4): k(f"v_pk_mul_f32 {vr(XF+8*i+2*j,2)}, {vr(XF+8*i+2*j,2)}, {vr(RS+2*i,2)} op_sel:[0,1] op_sel_hi:[1,1]")
        for j in range(4): k(f"v_pk_fma_f32 {vr(XF+8*i+2*j,2)}, {vr(XF+8*i+2*j,2)}, {vr(M+8+2*j,2)}, {vr(M+2*j,2)}")
        for j in range(4): k(f"v_cvt_pk_bf16_f32 v{XR+4*i+j}, v{XF+8*i+2*j}, v{XF+8*i+2*j+1}")
        k(f"buffer_store_dwordx4 {vr(XR+4*i,4)}, v{VS}, {sr(SRD_T,4)}, s{86 + i//2} offen offset:{(i%2)*128} sc1")
    k.stamp("h computed")
    mk = len(k.L)
    g1.prefetch(k, opt.get("h_pre1a", 4 if split else 6))
    publish(k, 89, T, mk)
    k.stamp("h published")
    g1.prefetch(k, opt.get("h_pre1", 8 if split else 6))
    if not split:
        k.g3 = setup_gemm3_early(k, opt, LANE, 56)
        for i in range(8): k(f"global_load_ushort {ar(A_UT+32+i,1)}, v{V_C}, s[{P_C}:{P_C+1}] offset:{i*16}")
    k(f"v_and_b32 v252, 15, v{LANE}\nv_lshlrev_b32 v252, {FS}, v252\ns_mov_b32 s93, s88")
    staged_wait(k, g1, opt.get("g1_T", 5 if split else 4), 252, 93, 253, one_prod)
    k.stamp("h ready")
    return g1

def phase_front(k, opt, name):
    LANE, L16 = 104, 105
    T = 48
    V_W, V_C = 115, 109
    RS, XR, XT_, XF, G, M = 64, 128, 144, 0, 160, 32
    HL = 2 * 25344
    k(f"v_and_b32 v{LANE}, 63, v0")
    k(f"v_lshrrev_b32 v{T+1}, 3, v{LANE}\nv_and_b32 v{T+2}, 7, v{LANE}")
    k(f"v_lshlrev_b32 v{T+5}, 11, v{T+1}\nv_lshl_add_u32 v{T+5}, v{T+2}, 4, v{T+5}")
    k(f"s_lshl_b32 s91, s{S_RB1}, 18\ns_lshl_b32 s92, s{S_WAVE}, 16\ns_add_u32 s91, s91, s92\ns_lshl_b32 s92, s{S_HP}, 7\ns_add_u32 s91, s91, s92")
    k(f"v_lshlrev_b32 v{T+8}, 3, v{LANE}\nv_lshlrev_b32 v{T+6}, 3, v{T+1}")
    k(f"s_lshl_b32 s94, s{S_HP}, 13\ns_add_u32 s95, s94, 4096")
    k(f"s_lshl_b32 s90, s{S_RB1}, 10\ns_lshl_b32 s93, s{S_WAVE}, 8\ns_add_u32 s90, s90, s93\ns_add_u32 s90, s90, {MP_RS}")
    k("s_waitcnt lgkmcnt(0)")
    srd(k, SRD_B, P_WS, MP_BYTES, WS_MODP)
    srd(k, SRD_A, P_X, S * D * 2)
    for p_ in range(16): k(f"buffer_load_dwordx2 {vr(G+2*p_,2)}, v{T+8}, {sr(SRD_B,4)}, s{94+p_//8} offen offset:{(p_%8)*512}")
    for i in range(4): k(f"buffer_load_dwordx2 {vr(RS+2*i,2)}, v{T+6}, {sr(SRD_B,4)}, s90 offen offset:{i*64}")
    for i in range(4):
        k(f"buffer_load_dwordx4 {vr(XT_+4*i,4)}, v{T+5}, {sr(SRD_A,4)}, s91 offen")
        if i < 3: k("s_add_u32 s91, s91, 16384")
    k.stamp("loads issued")
    def touch(ptr, per, vt, off=0):
        k(f"s_lshl_b32 s80, s2, 2\ns_add_u32 s80, s80, s{S_WAVE}\ns_mul_i32 s80, s80, {per*128}")
        if off: k(f"s_add_u32 s80, s80, {off}")
        k(f"v_min_u32 v{vt}, {per-1}, v{LANE}\nv_lshlrev_b32 v{vt}, 7, v{vt}\nv_add_u32 v{vt}, s80, v{vt}")
        k(f"global_load_dword a232, v{vt}, s[{ptr}:{ptr+1}]")
    nt0 = 0
    if opt.get("m_touch", 0) == 1: touch(P_WQKV, 48, 254); nt0 = 1
    g1 = setup_gemm1(k, opt)
    srd(k, SRD_W, P_WQKV, D * 3 * D * 2)
    n0 = opt.get("h_pre0", 6)
    g1.prefetch(k, n0)
    n0 += nt0
    srd(k, SRD_F, P_WS, FLAG_BYTES, WS_FLAG)
    srd(k, SRD_T, P_WS, S * D * 2, WS_H)
    VS = T + 4
    k(f"v_lshrrev_b32 v{VS}, 2, v{T+2}\nv_lshlrev_b32 v{VS}, 10, v{VS}")
    k(f"v_and_b32 v{T+3}, 3, v{T+2}\nv_lshl_add_u32 v{VS}, v{T+3}, 8, v{VS}\nv_lshl_add_u32 v{VS}, v{T+1}, 4, v{VS}")
    k(f"s_lshl_b32 s86, s{S_RB1}, 3\ns_lshl_b32 s87, s{S_WAVE}, 1\ns_add_u32 s86, s86, s87\ns_lshl_b32 s86, s86, 15\ns_lshl_b32 s87, s{S_HP}, 11\ns_add_u32 s86, s86, s87\ns_add_u32 s87, s86, 0x8000")
    k(f"s_lshl_b32 s88, s{S_WAVE}, 9\nv_add_u32 v{T+8}, s88, v{T+8}\nv_lshlrev_b32 v{T+5}, 5, v{T+2}\nv_add_u32 v{T+5}, s88, v{T+5}")
    k(f"s_lshl_b32 s88, s{S_RB1}, 2\ns_add_u32 s88, s88, s{S_WAVE}\ns_lshl_b32 s88, s88, {FS+4}\ns_add_u32 s88, s88, {F_H}\ns_lshl_b32 s89, s{S_HP}, {FS}\ns_add_u32 s89, s89, s88")
    k(f"v_cmp_lt_u32 vcc, 31, v{LANE}")
    k(f"s_waitcnt vmcnt({8 + n0})")
    for st in (8, 4, 2, 1):
        for j in range(st): k(f"v_pk_add_f32 {vr(G+2*j,2)}, {vr(G+2*j,2)}, {vr(G+2*(j+st),2)}")
    k(f"v_cvt_pk_bf16_f32 v{G+2}, v{G}, v{G+1}\nv_lshlrev_b32 v{G}, 16, v{G+2}\nv_and_b32 v{G+1}, 0xffff0000, v{G+2}")
    k(f"v_pk_add_f32 {vr(G+4,2)}, {vr(G,2)}, 1.0 op_sel_hi:[1,0]")
    k(f"v_cvt_pk_bf16_f32 v{G+2}, v{G+4}, v{G+5}\nv_lshlrev_b32 v{G+4}, 16, v{G+2}\nv_and_b32 v{G+5}, 0xffff0000, v{G+2}")
    k(f"v_cndmask_b32 v{G}, v{G}, v{G+4}, vcc\nv_cndmask_b32 v{G+1}, v{G+1}, v{G+5}, vcc")
    k(f"ds_write_b64 v{T+8}, {vr(G,2)} offset:{HL}")
    k("s_waitcnt lgkmcnt(0)")
    for h in range(2): k(f"ds_read_b128 {vr(M+4*h,4)}, v{T+5} offset:{HL+h*16}\nds_read_b128 {vr(M+8+4*h,4)}, v{T+5} offset:{HL+256+h*16}")
    for i in range(4):
        k(f"s_waitcnt vmcnt({3 - i + n0})")
        for d in range(4): k(f"v_lshlrev_b32 v{XF+8*i+2*d}, 16, v{XT_+4*i+d}\nv_and_b32 v{XF+8*i+2*d+1}, 0xffff0000, v{XT_+4*i+d}")
        for j in range(4): k(f"v_pk_add_f32 {vr(XF+8*i+2*j,2)}, {vr(XF+8*i+2*j,2)}, {vr(RS+2*i,2)} op_sel_hi:[1,0]")
        for j in range(4): k(f"v_pk_mul_f32 {vr(XF+8*i+2*j,2)}, {vr(XF+8*i+2*j,2)}, {vr(RS+2*i,2)} op_sel:[0,1] op_sel_hi:[1,1]")
    k("s_waitcnt lgkmcnt(0)")
    for i in range(4):
        for j in range(4): k(f"v_pk_fma_f32 {vr(XF+8*i+2*j,2)}, {vr(XF+8*i+2*j,2)}, {vr(M+8+2*j,2)}, {vr(M+2*j,2)}")
        for j in range(4): k(f"v_cvt_pk_bf16_f32 v{XR+4*i+j}, v{XF+8*i+2*j}, v{XF+8*i+2*j+1}")
        k(f"buffer_store_dwordx4 {vr(XR+4*i,4)}, v{VS}, {sr(SRD_T,4)}, s{86 + i//2} offen offset:{(i%2)*128} sc1")
    k.stamp("h computed")
    code_prefetch_setup(k, name)
    srd(k, SRD_D, P_WMOD, D * 6 * D * 2)
    k(f"v_mul_u32_u24 v{V_W}, 12288, v{T+1}\nv_lshl_add_u32 v{V_W}, v{T+2}, 4, v{V_W}")
    k(f"s_lshl_b32 s84, s{S_RB1}, 6\nv_add_u32 v{V_C}, s84, v{T+1}\nv_lshlrev_b32 v{V_C}, 1, v{V_C}")
    k(f"s_mul_i32 s86, s84, 12288\ns_lshl_b32 s87, s{S_HP}, 7\ns_add_u32 s86, s86, s87")
    k(f"s_lshl_b32 s94, s{S_WAVE}, 11\ns_add_u32 s{S_MB}, s86, s94\ns_add_u32 s{S_MB}, s{S_MB}, 4096")
    k(f"s_lshl_b32 s94, s{S_WAVE}, 16\ns_lshl_b32 s95, s{S_HP}, 12\ns_add_u32 s94, s94, s95\ns_lshl_b32 s95, s{S_RB1}, 8\ns_add_u32 s94, s94, s95\ns_add_u32 s{S_MO}, s94, {MP_B}")
    k.g3 = setup_gemm3_early(k, opt, LANE, 56)
    publish(k, 89, T)
    k.stamp("h published")
    if opt.get("m_touch", 0) == 2: touch(P_WQKV, 48, 254)
    k("s_barrier")
    g1.prefetch(k, opt.get("h_pre1", 12))
    for i in range(8): k(f"global_load_ushort {ar(A_UT+32+i,1)}, v{V_C}, s[{P_C}:{P_C+1}] offset:{i*16}")
    k(f"v_and_b32 v252, 15, v{LANE}\nv_lshlrev_b32 v252, {FS}, v252\ns_mov_b32 s93, s88")
    staged_wait(k, g1, opt.get("g1_T", 4), 252, 93, 253, one_prod)
    k.stamp("h ready")
    return g1

def setup_gemm24(k, which, opt, base):
    c = Sched(); common_gemm(c)
    K = 1024 if which == 2 else 3584
    NS, R = 4, opt.get(f"g{which}_R", 4)
    STAGE = 8448
    if isinstance(base, tuple): V_RD, V_DMA, V_TOK, LANE, L16, VT = base
    else:
        V_RD, V_DMA, V_TOK, LANE, L16, VT = base, base + 1, base + 2, base + 4, base + 5, base + 6
        lane_id(k, LANE)
        k(f"v_lshlrev_b32 v{L16}, 4, v{LANE}")
    c.LANE, c.L16 = LANE, L16
    hs = c.hs = opt.get("hsplit", 1) and opt.get("split", 1)
    order(c, k, opt, "g2", ["win", [8, 8], 0] if hs else ["win", [1, 1, 2, 4, 8], 1])
    if hs:
        c.w_off = lambda sd, kt: [T(x) for x in c.pos_txt(sd, kt)] + [T(f"s_mul_i32 s{sd}, s{sd}, {128*2048}")] + ([T(f"s_add_u32 s{sd}, s{sd}, {(32 - 8*128)*2048}")] if kt >= 8 else [])
        c.t_off = lambda sd, kt: [T(x) for x in c.pos_txt(sd, kt)] + [T(f"s_lshl_b32 s{sd}, s{sd}, 12")] + ([T(f"s_add_u32 s{sd}, s{sd}, {1024 - 8*4096}")] if kt >= 8 else [])
        c.sub_stride = 2048
    k(f"s_lshr_b32 s80, s{S_WAVE}, 1\ns_and_b32 s81, s{S_WAVE}, 1")
    k(f"s_lshl_b32 s82, s80, {6 if hs else 5}\ns_lshl_b32 s83, s81, 1\ns_add_u32 s82, s82, s83\ns_lshl_b32 s82, s82, 11")
    k(f"s_lshl_b32 s83, s{S_NT}, 7\ns_add_u32 s82, s82, s83")
    k(f"v_lshrrev_b32 v{VT}, 3, v{LANE}\nv_lshlrev_b32 v{VT}, 13, v{VT}")
    k(f"v_and_b32 v{VT+1}, 7, v{LANE}\nv_lshl_add_u32 v{VT}, v{VT+1}, 4, v{VT}")
    k(f"v_add_u32 v{V_DMA}, s82, v{VT}")
    k(f"v_bfe_u32 v{VT}, v{LANE}, 2, 2\nv_mul_u32_u24 v{VT}, 1056, v{VT}")
    k(f"v_lshrrev_b32 v{VT+1}, 4, v{LANE}\nv_lshl_add_u32 v{VT}, v{VT+1}, 7, v{VT}")
    k(f"v_and_b32 v{VT+1}, 3, v{LANE}\nv_lshl_add_u32 v{V_RD}, v{VT+1}, 3, v{VT}")
    k(f"v_add_u32 v{V_RD}, {L_R2}, v{V_RD}")
    k(f"s_lshl_b32 s82, s{S_RB2}, 3\ns_lshl_b32 s83, s{S_WAVE}, 1\ns_add_u32 s82, s82, s83\ns_mul_i32 s82, s82, {K//32*1024}")
    k(f"v_add_u32 v{V_TOK}, s82, v{L16}\nv_add_u32 v{V_TOK+1}, {K//32*1024}, v{V_TOK}")
    k(f"s_mul_i32 s{S_WB}, s80, 4224\ns_mul_i32 s82, s81, 2112\ns_add_u32 s{S_WB}, s{S_WB}, s82\ns_add_u32 s{S_WB}, s{S_WB}, {L_R2}")
    srd(k, SRD_W, P_WO if which == 2 else P_W2, K * D * 2)
    c.NB, c.TB, c.KS, c.SPK, c.KT, c.NS, c.R = 4, 2, 2, 1, K // 64, NS, R
    c.acc = lambda b, t: vr((b * 2 + t) * 4, 4)
    c.tf = lambda slot, ks, t: 64 + ((slot * 2 + ks) * 2 + t) * 4
    c.rd = lambda sl, b, sub, r: (V_RD, sl * STAGE + sub * 4224 + r * 512 + b * 32)
    c.slot_addr = lambda sl: sl * STAGE
    c.dma = [(V_DMA, 0, 0), (V_DMA, 1056, 2048)]
    c.v_tok = [V_TOK, V_TOK + 1]
    c.w_stride = 64 * 2048
    c.drop = opt.get(f"g{which}_drop", ())
    c.pro_units, c.ramp_rate, c.read_margin = opt.get(f"g{which}_pro", 12), opt.get(f"g{which}_ramp", 6), 4
    std_sched(c)
    return c

S_G80, S_G192 = 6, 7
def setup_gemm4p(k, opt, base):
    c = Sched(); common_gemm(c)
    HS = 8448; STAGE = 2 * HS
    L = 12; KT = 28; MAIN = KT - L
    V_RD, V_DE, V_DK, V_TOK, LANE, L16, VT = base, base + 2, base + 3, base + 4, base + 6, base + 7, base + 8
    c.LANE, c.L16, c.V_DE, c.V_DK, c.V_TOK = LANE, L16, V_DE, V_DK, V_TOK
    lane_id(k, LANE)
    k(f"v_lshlrev_b32 v{L16}, 4, v{LANE}")
    c.KT = KT
    order(c, k, opt, "g4", ["win", [4, 4, 8, 8, 4], 0])
    k(f"s_lshr_b32 s80, s{S_WAVE}, 1\ns_and_b32 s81, s{S_WAVE}, 1")
    k(f"s_mul_i32 s{S_G80}, s80, {80*2048}\ns_mul_i32 s{S_G192}, s80, {192*2048}")
    k("s_lshl_b32 s82, s80, 5\ns_lshl_b32 s83, s81, 1\ns_add_u32 s82, s82, s83")
    k(f"s_and_b32 s{S_TMP}, s{S_NT}, 1\ns_mul_i32 s83, s{S_TMP}, 1792\ns_add_u32 s82, s82, s83\ns_lshl_b32 s82, s82, 11")
    k(f"v_lshrrev_b32 v{VT}, 3, v{LANE}\nv_lshlrev_b32 v{VT}, 13, v{VT}")
    k(f"v_and_b32 v{VT+1}, 7, v{LANE}\nv_lshl_add_u32 v{VT}, v{VT+1}, 4, v{VT}")
    k(f"v_add_u32 v{VT}, s82, v{VT}")
    k(f"s_lshl_b32 s83, s{S_NT}, 7\nv_add_u32 v{V_DK}, s83, v{VT}\nv_xor_b32 v{V_DE}, 128, v{V_DK}")
    k(f"v_bfe_u32 v{VT}, v{LANE}, 2, 2\nv_mul_u32_u24 v{VT}, 1056, v{VT}")
    k(f"v_lshrrev_b32 v{VT+1}, 4, v{LANE}\nv_lshl_add_u32 v{VT}, v{VT+1}, 7, v{VT}")
    k(f"v_and_b32 v{VT+1}, 3, v{LANE}\nv_lshl_add_u32 v{V_RD+1}, v{VT+1}, 3, v{VT}")
    k(f"v_add_u32 v{V_RD}, {L_R2}, v{V_RD+1}")
    k(f"s_lshl_b32 s82, s{S_RB2}, 3\ns_lshl_b32 s83, s{S_WAVE}, 1\ns_add_u32 s82, s82, s83\ns_mul_i32 s82, s82, {112*1024}")
    k(f"s_mul_i32 s83, s{S_TMP}, {56*1024}\ns_add_u32 s82, s82, s83")
    k(f"v_add_u32 v{V_TOK}, s82, v{L16}\nv_add_u32 v{V_TOK+1}, {112*1024}, v{V_TOK}")
    k(f"s_mul_i32 s{S_WB}, s80, 4224\ns_mul_i32 s82, s81, 2112\ns_add_u32 s{S_WB}, s{S_WB}, s82")
    srd(k, SRD_W, P_W2, F * D * 2)
    c.drop = opt.get("g4_drop", ())
    V2E, V2K, V2T = 200, 201, 202
    c.V2 = (V2E, V2K, V2T)
    NS4 = opt.get("g4_NS", 4)
    slot_addr = [L_R2, L_R2 + STAGE] + [1024 + i * STAGE for i in range(6)]
    c.V_RD3 = 206; c.V_RD = V_RD
    def rd(sl, half, b, sub, r):
        off = half * HS + sub * 4224 + r * 512 + b * 32
        if sl < 2: return (V_RD, sl * STAGE + off)
        if sl < 5: return (V_RD + 1, slot_addr[sl] + off)
        return (c.V_RD3, slot_addr[sl] - slot_addr[5] + off)
    c.rd3_base = slot_addr[5]
    NT_ = 2 * L
    tf = lambda kt, sub, t: 64 + (((kt * 2 + sub) % NT_) * 2 + t) * 4
    acc = lambda b, t: vr((b * 2 + t) * 4, 4)
    c.wf = lambda buf, j: (buf * 8 + j) * 4
    typ = lambda kt: "A" if kt < 16 else ("B1" if kt < 24 else "B2")
    if opt.get("g4_fast", 0):
        base_pos = c.pos_txt
        def pos2(sd, kt):
            o = base_pos(sd, kt)
            if kt >= 16: return o
            t_ = S_PTMP
            o += [f"s_and_b32 s{t_}, s{sd}, 1", f"s_and_b32 s{sd}, s{sd}, 6", f"s_lshl_b32 s{sd}, s{sd}, 1"]
            o += [f"s_mul_i32 s{t_}, s{t_}, 3"] if kt < 8 else [f"s_add_u32 s{t_}, s{t_}, 1"]
            o += [f"s_add_u32 s{sd}, s{sd}, s{t_}"]
            return o
        c.pos_txt = pos2
    def w_off(sd, kt):
        o = [T(x) for x in c.pos_txt(sd, kt)]
        if typ(kt) == "A": o.append(T(f"s_mul_i32 s{sd}, s{sd}, {112*2048}"))
        elif typ(kt) == "B1": o += [T(f"s_mul_i32 s{sd}, s{sd}, {224*2048}"), T(f"s_add_u32 s{sd}, s{sd}, {(64 - 16*224)*2048}"), T(f"s_add_u32 s{sd}, s{sd}, s{S_G80}")]
        else: o += [T(f"s_mul_i32 s{sd}, s{sd}, {448*2048}"), T(f"s_add_u32 s{sd}, s{sd}, {(96 - 24*448)*2048}"), T(f"s_add_u32 s{sd}, s{sd}, s{S_G192}")]
        return o
    halves = [[("E", kt), ("K", kt)] for kt in range(MAIN)]
    halves += [[("E", MAIN + 2 * j), ("E", MAIN + 2 * j + 1)] for j in range(L // 2)]
    halves += [[("K", MAIN + 2 * j), ("K", MAIN + 2 * j + 1)] for j in range(L // 2)]
    cur = None; flip = 0
    for st, hv in enumerate(halves):
        us = []
        for h, (kind, kt) in enumerate(hv):
            pre = []
            if cur != kt:
                flip ^= 1; cur = kt; pre = w_off(c.s_kw + flip, kt)
            vo = (V2E if kind == 'E' else V2K) if typ(kt) == "B2" else (V_DE if kind == 'E' else V_DK)
            for i, goff in enumerate((0, 2048)):
                us.append((pre if i == 0 else []) + [T(f"s_add_u32 m0, s{S_WB}, {slot_addr[st % NS4] + h * HS + i * 1056 - goff}"),
                          VM(f"buffer_load_dwordx4 v{vo}, {sr(SRD_W,4)}, s{c.s_kw + flip} offen" + (f" offset:{goff}" if goff else "") + " lds", ("dma", st))])
        c.stage_units[st] = us; c.stage_slot[st] = st % NS4
        for j in range(2):
            frags = []; toks = []
            parts = [(0, j), (1, j)] if st < MAIN else [(j, 0), (j, 1)]
            for h, sub in parts:
                kind, kt = hv[h]
                if (kt, sub) not in toks: toks.append((kt, sub))
                for b in range(4):
                    va, o0 = rd(st % NS4, h, b, sub, 0); _, o1 = rd(st % NS4, h, b, sub, 1)
                    frags.append((va, o0, o1, [(acc(b + (0 if kind == 'E' else 4), t), tf(kt, sub, t)) for t in range(2)]))
            c.steps.append(dict(frags=frags, stages=[st], toks=toks))
    for kt in range(KT):
        sd = c.s_kt + kt % 2
        for sub in range(2):
            us = []
            for t in range(2):
                g = []
                if sub == 0 and t == 0:
                    g = [T(x) for x in c.pos_txt(sd, kt)]
                    if typ(kt) == "A": g.append(T(f"s_mul_i32 s{sd}, s{sd}, 3584"))
                    elif typ(kt) == "B1": g += [T(f"s_mul_i32 s{sd}, s{sd}, 7168"), T(f"s_add_u32 s{sd}, s{sd}, {2048 - 16*7168}")]
                    else: g += [T(f"s_mul_i32 s{sd}, s{sd}, 14336"), T(f"s_add_u32 s{sd}, s{sd}, {3072 - 24*14336}")]
                key = ("tok", (kt, sub))
                if typ(kt) == "B2":
                    if sub == 1 and t == 0: g.append(T(f"s_add_u32 s{sd}, s{sd}, 7168"))
                    g.append(VM(f"buffer_load_dwordx2 {ar(tf(kt, sub, t),2)}, v{V2T+t}, {sr(SRD_T,4)}, s{sd} offen sc1", key))
                    g.append(VM(f"buffer_load_dwordx2 {ar(tf(kt, sub, t)+2,2)}, v{V2T+t}, {sr(SRD_T,4)}, s{sd} offen offset:3584 sc1", key))
                else:
                    g.append(VM(f"buffer_load_dwordx4 {ar(tf(kt, sub, t),4)}, v{V_TOK+t}, {sr(SRD_T,4)}, s{sd} offen offset:{sub*(1024 if typ(kt) == 'A' else 3584)} sc1", key))
                us.append(g)
            c.tok_units[(kt, sub)] = us; c.tok_slot[(kt, sub)] = (kt * 2 + sub) % NT_
    c.pro_units, c.ramp_rate, c.read_margin, c.lookahead = opt.get("g4_pro", 12), opt.get("g4_ramp", 6), 4, opt.get("g4_la", 7)
    c.MAIN, c.L = MAIN, L
    return c

def phase_gemm4p(k, c, opt):
    LANE, L16 = c.LANE, c.L16
    VT = 72
    srd(k, SRD_T, P_WS, S * F * 2, WS_HH)
    srd(k, SRD_A, P_OUT, S * D * 2)
    srd(k, SRD_B, P_WS, 8 << 20, WS_P4)
    V_G, V_GA, V_XA, V_X, IMP, VF = 96, 76, 77, 80, 128, 78
    for j in range(16): k(f"v_accvgpr_read_b32 v{V_X+j}, a{A_X1+j}")
    k(f"v_and_b32 v{VT}, 15, v{LANE}\nv_lshlrev_b32 v{VT}, {FS}, v{VT}")
    k(f"s_lshl_b32 s84, s{S_RB2}, 1\ns_lshr_b32 s85, s{S_WAVE}, 1\ns_add_u32 s84, s84, s85\ns_lshl_b32 s84, s84, {FS+5}\ns_add_u32 s84, s84, {F_HH}")
    k(f"s_and_b32 s85, s{S_NT}, 1\ns_lshl_b32 s85, s85, {FS+4}\ns_add_u32 s84, s84, s85")
    k(f"v_mov_b32 v252, v{VT}")
    c.tile_of = lambda key: key[0]
    k(f"s_add_u32 s85, s84, {F_HB - F_HH}")
    staged_wait(k, c, opt.get("g4_T", 6), 252, 84, 253, one_prod, pub=(94, 204))
    add_gate(k, c, 16, f"buffer_load_dword v253, v252, {sr(SRD_F,4)}, s85 offen sc1", 253)
    k.stamp("hh ready")
    p = Txt()
    p(f"v_lshrrev_b32 v{VT}, 4, v{LANE}\nv_lshlrev_b32 v{V_GA}, 4, v{VT}\nv_add_u32 v{V_GA}, {L_MV}, v{V_GA}")
    p(f"v_and_b32 v{VT+1}, 15, v{LANE}\nv_lshlrev_b32 v{VT+1}, 11, v{VT+1}")
    p(f"v_and_b32 v{VT+2}, 1, v{VT}\nv_lshl_add_u32 v{VT+1}, v{VT+2}, 5, v{VT+1}")
    p(f"v_lshrrev_b32 v{VT+2}, 1, v{VT}\nv_lshl_add_u32 v{V_XA}, v{VT+2}, 4, v{VT+1}")
    p(f"s_lshl_b32 s86, s{S_RB2}, 3\ns_lshl_b32 s87, s{S_WAVE}, 1\ns_add_u32 s86, s86, s87\ns_lshl_b32 s86, s86, 15\ns_lshl_b32 s87, s{S_NT}, 7\ns_add_u32 s86, s86, s87\ns_add_u32 s87, s86, 32768")
    p(f"s_lshl_b32 s88, s{S_RB2}, 4\ns_add_u32 s88, s88, s{S_NT}\ns_lshl_b32 s88, s88, 2\ns_add_u32 s88, s88, s{S_WAVE}")
    p("s_xor_b32 s89, s88, 4")
    p(f"s_lshl_b32 s90, s88, 13\ns_add_u32 s91, s90, 4096\ns_lshl_b32 s92, s89, 13\ns_add_u32 s93, s92, 4096")
    p(f"s_lshl_b32 s88, s88, {FS}\ns_add_u32 s88, s88, {F_P4}\ns_lshl_b32 s89, s89, {FS}\ns_add_u32 s89, s89, {F_P4}")
    V2E, V2K, V2T = c.V2
    p(f"v_add_u32 v{c.V_RD3}, {c.rd3_base}, v{c.V_RD+1}")
    p(f"v_lshrrev_b32 v{VT}, 5, v{LANE}\nv_mul_u32_u24 v{VT}, {96*2048}, v{VT}\nv_add_u32 v{V2E}, v{c.V_DE}, v{VT}\nv_add_u32 v{V2K}, v{c.V_DK}, v{VT}")
    p(f"v_lshrrev_b32 v{VT}, 1, v{L16}\nv_sub_u32 v{V2T}, v{c.V_TOK}, v{VT}\nv_sub_u32 v{V2T+1}, v{c.V_TOK+1}, v{VT}")
    p(f"v_mov_b32 v{VT}, 1\nv_mov_b32 v{VT+1}, 0")
    c.pre_loop_txt = p.L
    N = len(c.steps); p2 = N - c.L
    for st_ in opt.get("cp4", []): c.late.setdefault(st_, []).extend(code_prefetch_txt(k.name, L16, 254, 80, junk="v240"))
    ex = [VM(f"buffer_store_dwordx4 {vr(4*j,4)}, v{L16}, {sr(SRD_B,4)}, s{90 + j//4} offen offset:{(j%4)*1024} sc1", ("exp", 0)) for j in range(8)]
    ne_ = opt.get("g4_ne", 2)
    for j in range(ne_): c.late[p2 + 1 + j] = ex[j * 8 // ne_:(j + 1) * 8 // ne_]
    c.late[p2 + opt.get("g4_fs", 6)] = [WVM([("exp", 0)]), f"buffer_store_dword v{VT}, v{VT+1}, {sr(SRD_F,4)}, s88 offen sc1"]
    c.late[N - 3] = [VM(f"buffer_load_dword v{VF}, v{VT+1}, {sr(SRD_F,4)}, s89 offen sc1", ("pf", 0))]
    c.last_reads = [f"ds_read_b128 {vr(V_G+4*b,4)}, v{V_GA} offset:{768+b*64}" for b in range(4)]
    m = Txt(); m.label = k.label
    okl = k.label("pok")
    m(f"v_cmp_eq_u32 vcc, 0, v{VF}\ns_cmp_eq_u64 vcc, 0\ns_cbranch_scc1 {okl}")
    spin(m, [f"buffer_load_dword v{VF}, v{VT+1}, {sr(SRD_F,4)}, s89 offen sc1"], [VF], 0)
    m(f"{okl}:")
    c.late[N - 1] = [WVM([("pf", 0)]), T("\n".join(m.L))] + [f"buffer_load_dwordx4 {vr(IMP+4*j,4)}, v{L16}, {sr(SRD_B,4)}, s{92 + j//4} offen offset:{(j%4)*1024} sc1" for j in range(8)]
    c.run(k)
    k.stamp("g4 loop done")
    A = lambda b, t: 32 + (b * 2 + t) * 4
    XT = 112
    XF = 160
    for j in range(16): k(f"v_lshlrev_b32 v{XF+2*j}, 16, v{V_X+j}\nv_and_b32 v{XF+2*j+1}, 0xffff0000, v{V_X+j}")
    k("s_waitcnt vmcnt(0) lgkmcnt(0)")
    for t in range(2):
        for b in range(4):
            for h in range(2): k(f"v_pk_add_f32 {vr(A(b,t)+2*h,2)}, {vr(A(b,t)+2*h,2)}, {vr(IMP+(b*2+t)*4+2*h,2)}")
            for h in range(2): k(f"v_pk_fma_f32 {vr(A(b,t)+2*h,2)}, {vr(A(b,t)+2*h,2)}, {vr(V_G+4*b+2*h,2)}, {vr(XF+(t*4+b)*4+2*h,2)}")
        PK = XT + t * 8
        for b in range(4): k(f"v_cvt_pk_bf16_f32 v{PK+2*b}, v{A(b,t)}, v{A(b,t)+1}\nv_cvt_pk_bf16_f32 v{PK+2*b+1}, v{A(b,t)+2}, v{A(b,t)+3}")
        k("s_nop 1")
        for s_ in range(2): k(f"v_permlane16_swap_b32 v{PK+4*s_}, v{PK+4*s_+2}\nv_permlane16_swap_b32 v{PK+4*s_+1}, v{PK+4*s_+3}")
        for s_ in range(2): k(f"buffer_store_dwordx4 {vr(PK+4*s_,4)}, v{V_XA}, {sr(SRD_A,4)}, s{86+t} offen offset:{s_*64}")

def phase_gemm1(k, c, opt):
    LANE, L16, VT = c.LANE, c.L16, c.VT
    PHK, VV, SH, UTX = 0, 34816, 114688, 126976
    A_PH = 160
    p = Txt()
    srd(p, SRD_A, P_WPHI, H * 2048)
    srd(p, SRD_B, P_WS, 2 << 20, WS_KVP)
    srd(p, SRD_C, P_WS, 128 << 10, WS_ZP)
    A_PW, A_VW, A_PR, A_VR, A_WR = 110, 111, 112, 113, 114
    p(f"s_lshr_b32 s80, s{S_WAVE}, 1\ns_and_b32 s81, s{S_WAVE}, 1")
    p(f"v_and_b32 v{VT}, 15, v{LANE}\ns_lshl_b32 s82, s{S_WAVE}, 5\nv_add_u32 v{VT}, s82, v{VT}")
    p(f"v_lshrrev_b32 v{VT+1}, 4, v{LANE}\nv_lshlrev_b32 v{VT+1}, 3, v{VT+1}")
    p(f"v_mul_u32_u24 v{A_PW}, 136, v{VT}\nv_add_u32 v{A_PW}, v{A_PW}, v{VT+1}")
    p(f"v_mul_u32_u24 v{A_VW}, 72, v{VT}\nv_add_u32 v{A_VW}, v{A_VW}, v{VT+1}")
    p(f"v_lshrrev_b32 v{VT}, 2, v{LANE}\nv_and_b32 v{VT+1}, 3, v{LANE}\nv_lshlrev_b32 v{VT+1}, 3, v{VT+1}")
    p(f"s_mul_i32 s82, s80, 17408\ns_lshl_b32 s83, s81, 6\ns_add_u32 s82, s82, s83")
    p(f"v_mul_u32_u24 v{A_PR}, 136, v{VT}\nv_add_u32 v{A_PR}, v{A_PR}, v{VT+1}\nv_add_u32 v{A_PR}, s82, v{A_PR}")
    p(f"s_mul_i32 s82, s80, 9216")
    p(f"v_mul_u32_u24 v{A_VR}, 72, v{VT}\nv_add_u32 v{A_VR}, v{A_VR}, v{VT+1}\nv_add_u32 v{A_VR}, s82, v{A_VR}")
    p(f"v_lshl_add_u32 v{A_WR}, v{VT}, 6, v{VT+1}\nv_add_u32 v{A_WR}, {L_WPH}, v{A_WR}")
    ONES, SEL = 116, 120
    for j in range(4): p(f"v_mov_b32 v{ONES+j}, 0x3f803f80")
    p(f"v_bfe_u32 v{VT}, v{LANE}, 2, 2\nv_lshrrev_b32 v{VT+1}, 4, v{LANE}")
    p(f"v_cmp_eq_u32 vcc, v{VT}, v{VT+1}")
    p(f"v_and_b32 v{VT}, 1, v{LANE}\nv_lshlrev_b32 v{VT}, 4, v{VT}\nv_mov_b32 v{VT+1}, 0x3f80\nv_lshlrev_b32 v{VT+1}, v{VT}, v{VT+1}")
    p(f"v_cndmask_b32 v{VT+1}, 0, v{VT+1}, vcc")
    p(f"v_and_b32 v{VT}, 2, v{LANE}\nv_cmp_eq_u32 vcc, 0, v{VT}")
    for j in (0, 1, 4, 5): p(f"v_mov_b32 v{SEL+j}, 0")
    p(f"v_cndmask_b32 v{SEL+2}, 0, v{VT+1}, vcc\nv_cndmask_b32 v{SEL+3}, v{VT+1}, 0, vcc")
    p(f"s_mov_b32 s94, {LOG2E!r}\ns_mov_b32 s95, {LOG2E!r}")
    p(f"s_lshl_b32 s84, s{S_HP}, 12\ns_lshl_b32 s85, s{S_WAVE}, 10\ns_add_u32 s84, s84, s85\ns_add_u32 s85, s85, {L_WPH}")
    c.pre_loop_txt = p.L
    c.late = {4: ["s_mov_b32 m0, s85", f"buffer_load_dwordx4 v{L16}, {sr(SRD_A,4)}, s84 offen lds"]}
    if opt.get("cpf", 1): c.late[22] = code_prefetch_txt(k.name, L16, 254, 80)
    ml = modb_loads(S_MB, 115, 109)
    ms = opt.get("modb_steps", [16] * 8)
    if opt.get("modb_front", 0):
        lb = k.label("skw0")
        c.late.setdefault(ms[0], []).append(T("\n".join([f"s_cmp_lg_u32 s{S_WAVE}, 0", f"s_cbranch_scc1 {lb}"] + [x for g in ml for x in g] + [f"{lb}:"])))
        ml = []
    else:
        for st_, g in zip(ms, ml): c.late.setdefault(st_, []).extend(g)
        ml = ml[len(ms):]
    c.last_reads = [f"ds_read_b64_tr_b16 {ar(A_PH+(hh*2+fb)*4+2*r,2)}, v{A_WR} offset:{hh*2048+r*1024+fb*32}" for hh in range(2) for fb in range(2) for r in range(2)]
    c.run(k)
    k.stamp("g1 loop done")
    A = lambda b, t: (b * 2 + t) * 4
    BF, P1, P2, MX, MN, EK = 126, 142, 174, 206, 214, 222
    groups = [(hh, t) for hh in range(2) for t in range(2)]
    def fm_part1(seg):
        for g, (hh, t) in enumerate(groups):
            for db in range(2):
                a = A(seg * 4 + hh * 2 + db, t)
                k(f"v_cvt_pk_bf16_f32 v{BF+g*4+db*2}, v{a}, v{a+1}\nv_cvt_pk_bf16_f32 v{BF+g*4+db*2+1}, v{a+2}, v{a+3}")
        k("s_nop 1")
        for g, (hh, t) in enumerate(groups):
            for fb in range(2):
                k(f"{MF} {vr(P1+g*8+fb*4,4)}, {ar(A_PH+(hh*2+fb)*4,4)}, {vr(BF+g*4,4)}, 0")
    def fm_part2():
        for op3, op2, M in (("v_max3_f32", "v_max_f32", MX), ("v_min3_f32", "v_min_f32", MN)):
            for g in range(4):
                b = P1 + g * 8
                k(f"{op3} v{M+2*g}, v{b}, v{b+1}, v{b+2}\n{op3} v{M+2*g}, v{M+2*g}, v{b+3}, v{b+4}\n{op3} v{M+2*g}, v{M+2*g}, v{b+5}, v{b+6}\n{op2} v{M+2*g}, v{M+2*g}, v{b+7}")
            treduce4(k, op2, [M + 2 * g for g in range(4)])
        for g in range(4):
            k(f"v_mul_f32 v{MX+2*g}, {-LOG2E!r}, v{MX+2*g}\nv_mul_f32 v{MN+2*g}, {LOG2E!r}, v{MN+2*g}")
    def fm_part3(E):
        for g in range(4):
            for j in range(4):
                b = g * 8 + 2 * j
                k(f"v_pk_fma_f32 {vr(P2+b,2)}, {vr(P1+b,2)}, s[94:95], {vr(MN+2*g,2)} op_sel_hi:[1,1,0] neg_lo:[1,0,0] neg_hi:[1,0,0]")
                k(f"v_pk_fma_f32 {vr(P1+b,2)}, {vr(P1+b,2)}, s[94:95], {vr(MX+2*g,2)} op_sel_hi:[1,1,0]")
            for j in range(8): k(f"v_exp_f32 v{P1+g*8+j}, v{P1+g*8+j}")
            for j in range(8): k(f"v_exp_f32 v{P2+g*8+j}, v{P2+g*8+j}")
            k("s_nop 0")
            for sg, PP in enumerate((P1, P2)):
                for j in range(4): k(f"v_cvt_pk_bf16_f32 v{E+(g*2+sg)*4+j}, v{PP+g*8+2*j}, v{PP+g*8+2*j+1}")
    for g in ml:
        for x in g: k(x)
    k("s_waitcnt lgkmcnt(0)\ns_nop 7")
    fm_part1(1)
    k("s_barrier")
    mark0 = len(k.L)
    for g, (hh, t) in enumerate(groups):
        for db in range(2):
            a = A(8 + hh * 2 + db, t)
            k(f"v_cvt_pk_bf16_f32 v{a}, v{a}, v{a+1}\nv_cvt_pk_bf16_f32 v{a+1}, v{a+2}, v{a+3}")
            k(f"ds_write_b64 v{A_VW}, {vr(a,2)} offset:{VV + hh*9216 + t*16*72 + db*32}")
    fm_part2()
    fm_part3(EK)
    SM = 32
    k("s_nop 1")
    for i in range(8): k(f"{MF} {vr(SM+4*i,4)}, {vr(ONES,4)}, {vr(EK+4*i,4)}, 0")
    k("s_nop 7")
    for i in range(8): k(f"v_rcp_f32 v{SM+4*i}, v{SM+4*i}")
    for g, (hh, t) in enumerate(groups):
        for sg, PP in enumerate((P1, P2)):
            for j in range(4):
                k(f"v_pk_mul_f32 {vr(PP+g*8+2*j,2)}, {vr(PP+g*8+2*j,2)}, {vr(SM+(g*2+sg)*4,2)} op_sel_hi:[1,0]")
            for fb in range(2):
                b = PP + g * 8 + fb * 4
                k(f"v_cvt_pk_bf16_f32 v{b}, v{b}, v{b+1}\nv_cvt_pk_bf16_f32 v{b+1}, v{b+2}, v{b+3}")
                k(f"ds_write_b64 v{A_PW}, {vr(b,2)} offset:{PHK + hh*17408 + t*16*136 + sg*64 + fb*32}")
    sprinkle(k, mark0, g3_early_units(k.g3, opt.get("g3_e1", 14), 254))
    k("s_waitcnt lgkmcnt(0)\ns_barrier")
    for s_ in range(4):
        for r in range(2):
            for fb in range(2): k(f"ds_read_b64_tr_b16 {ar(s_*16+fb*4+2*r,2)}, v{A_PR} offset:{PHK + (32*s_+16*r)*136 + fb*32}")
            for db in range(2): k(f"ds_read_b64_tr_b16 {ar(s_*16+8+db*4+2*r,2)}, v{A_VR} offset:{VV + (32*s_+16*r)*72 + db*32}")
    fm_part1(0)
    KV, ZZ = 64, 80
    for s_ in range(4):
        k(f"s_waitcnt lgkmcnt({min(15, 24 - 8*s_)})")
        for fb in range(2):
            for db in range(2):
                d = vr(KV + (db * 2 + fb) * 4, 4)
                k(f"{MF} {d}, {ar(s_*16+fb*4,4)}, {ar(s_*16+8+db*4,4)}, {'0' if s_ == 0 else d}")
            d = vr(ZZ + fb * 4, 4)
            k(f"{MF} {d}, {ar(s_*16+fb*4,4)}, {vr(ONES,4)}, {'0' if s_ == 0 else d}")
    k(f"s_lshl_b32 s82, s{S_HP}, 2\ns_add_u32 s82, s82, s{S_WAVE}")
    k("s_lshl_b32 s83, s82, 15")
    k(f"s_lshl_b32 s84, s{S_RB1}, 10\ns_add_u32 s84, s84, s83\ns_add_u32 s85, s84, 16384")
    k("s_lshl_b32 s90, s82, 11")
    k(f"s_lshl_b32 s91, s82, {FS+4}\ns_add_u32 s91, s91, {F_KV}\ns_lshl_b32 s92, s{S_RB1}, {FS}\ns_add_u32 s92, s92, s91")
    k(f"v_and_b32 v{VT}, 15, v{LANE}\nv_cmp_eq_u32 vcc, s{S_RB1}, v{VT}")
    k("s_nop 2")
    for db in range(2):
        for j in range(4): k(f"v_cvt_pk_bf16_f32 v{88+db*4+j}, v{KV+db*8+2*j}, v{KV+db*8+2*j+1}")
    k(f"buffer_store_dwordx4 {vr(88,4)}, v{L16}, {sr(SRD_B,4)}, s84 offen sc1")
    k(f"buffer_store_dwordx4 {vr(92,4)}, v{L16}, {sr(SRD_B,4)}, s85 offen sc1")
    k("s_and_saveexec_b64 s[96:97], vcc")
    k(f"buffer_store_dwordx4 {vr(ZZ,4)}, v{L16}, {sr(SRD_C,4)}, s90 offen sc1")
    k(f"buffer_store_dwordx4 {vr(ZZ+4,4)}, v{L16}, {sr(SRD_C,4)}, s90 offen offset:1024 sc1")
    k("s_mov_b64 exec, s[96:97]")
    k.stamp("kv stored")
    fm_part2()
    publish(k, 92, VT + 1)
    k.stamp("kv published")
    k("s_mov_b32 s93, s83")
    g2 = setup_gemm24(k, 2, opt, 96)
    k("s_mov_b32 s83, s93")
    g2.prefetch(k, 8)
    fm_part3(EK)
    k(f"v_lshlrev_b32 v{VT}, {FS}, v{VT}")
    wait_flags(k, [(VT, 91, 1)], VT + 1)
    k.stamp("kv ready")
    k(f"buffer_load_dwordx4 {vr(ZZ,4)}, v{L16}, {sr(SRD_C,4)}, s90 offen sc1")
    k(f"buffer_load_dwordx4 {vr(ZZ+4,4)}, v{L16}, {sr(SRD_C,4)}, s90 offen offset:1024 sc1")
    for i in range(32):
        if i % 4 == 0 and i: k("s_add_u32 s83, s83, 4096")
        k(f"buffer_load_dwordx4 {ar(4*i,4)}, v{L16}, {sr(SRD_B,4)}, s83 offen offset:{(i%4)*1024} sc1")
    srd(k, SRD_T, P_WS, S * D * 2, WS_O)
    k("s_waitcnt vmcnt(32)")
    for sh in (8, 4, 2, 1):
        for j in range(8): k(f"v_add_f32_dpp v{ZZ+j}, v{ZZ+j}, v{ZZ+j} row_ror:{sh} row_mask:0xf bank_mask:0xf")
    k(f"v_and_b32 v{VT+1}, 1, v{LANE}\nv_cmp_eq_u32 vcc, 0, v{VT+1}")
    for j in range(4): k(f"v_cvt_pk_bf16_f32 v{BF+8+j}, v{ZZ+2*j}, v{ZZ+2*j+1}")
    for j in range(4): k(f"v_cndmask_b32 v{BF+8+j}, v{ONES}, v{BF+8+j}, vcc")
    for i in range(32):
        db, pp = divmod(i, 16)
        if i % 2 == 0: k(f"s_waitcnt vmcnt({30 - i})")
        for fb in range(2):
            d = vr(KV + (db * 2 + fb) * 4, 4)
            k(f"{MF} {d}, {vr(SEL + (2 if fb == 0 else 0), 4)}, {ar(4*i,4)}, {'0' if pp == 0 else d}")
    k(f"s_mul_i32 s82, s{S_WAVE}, 3072\ns_add_u32 s82, s82, {SH}")
    k(f"v_add_u32 v{VT+1}, s82, v{L16}\nv_add_u32 v{VT+2}, {SH}, v{L16}")
    k("s_nop 6")
    for db in range(2):
        for j in range(4): k(f"v_cvt_pk_bf16_f32 v{BF+db*4+j}, v{KV+db*8+2*j}, v{KV+db*8+2*j+1}")
    for j in range(3): k(f"ds_write_b128 v{VT+1}, {vr(BF+4*j,4)} offset:{j*1024}")
    k("s_waitcnt lgkmcnt(0)\ns_barrier")
    for i in range(12): k(f"ds_read_b128 {ar(4*i,4)}, v{VT+2} offset:{i*1024}")
    k(f"s_lshl_b32 s82, s{S_RB1}, 3\ns_lshl_b32 s83, s{S_WAVE}, 1\ns_add_u32 s82, s82, s83\ns_lshl_b32 s82, s82, 15")
    k(f"s_lshl_b32 s83, s{S_HP}, 11\ns_add_u32 s82, s82, s83\ns_add_u32 s83, s82, 0x8000")
    k(f"s_lshl_b32 s84, s{S_RB1}, 2\ns_add_u32 s84, s84, s{S_WAVE}\ns_lshl_b32 s84, s84, {FS+4}\ns_lshl_b32 s85, s{S_HP}, {FS}\ns_add_u32 s84, s84, s85\ns_add_u32 s84, s84, {F_O}")
    k("s_waitcnt lgkmcnt(0)")
    for g, (hh, t) in enumerate(groups):
        for sg in range(2):
            for j in range(3):
                k(f"{MF} {vr((g*2+sg)*12+4*j,4)}, {ar(((hh*2+sg)*3+j)*4,4)}, {vr(EK+(g*2+sg)*4,4)}, 0")
    k("s_nop 7")
    for g, (hh, t) in enumerate(groups):
        n1, n2 = g * 24, g * 24 + 12
        D1, S1, D2, S2 = n1 + 8, n1 + 9, n2 + 8, n2 + 9
        k(f"v_mul_f32 v{n1+10}, v{S1}, v{S2}")
        k(f"v_mul_f32 v{n1+10}, 0x358637bd, v{n1+10}")
        k(f"v_fmac_f32 v{n1+10}, v{D1}, v{S2}\nv_fmac_f32 v{n1+10}, v{D2}, v{S1}")
        k(f"v_rcp_f32 v{n1+10}, v{n1+10}")
        k("s_nop 0")
        k(f"v_mul_f32 v{D1}, v{S2}, v{n1+10}\nv_mul_f32 v{D2}, v{S1}, v{n1+10}")
        for j in range(4): k(f"v_pk_mul_f32 {vr(n1+2*j,2)}, {vr(n1+2*j,2)}, {vr(D1,2)} op_sel_hi:[1,0]")
        for j in range(4): k(f"v_pk_fma_f32 {vr(n1+2*j,2)}, {vr(n2+2*j,2)}, {vr(D2,2)}, {vr(n1+2*j,2)} op_sel_hi:[1,0,1]")
        for j in range(4): k(f"v_cvt_pk_bf16_f32 v{n2+j}, v{n1+2*j}, v{n1+2*j+1}")
        k(f"buffer_store_dwordx4 {vr(n2,4)}, v{L16}, {sr(SRD_T,4)}, s{82+t} offen offset:{hh*1024} sc1")
    k.stamp("o stored")
    CU, AU, WW, TT = 128, 144, 152, 156
    for i in range(8): k(f"v_accvgpr_read_b32 v{CU+2*i}, a{A_UT+32+i}")
    silu_block(k, [CU + 2 * i for i in range(8)])
    mko = len(k.L)
    g2.V_X = 48
    srd(k, SRD_A, P_X, S * D * 2)
    V_XA = 47
    k(f"v_lshrrev_b32 v{VT+1}, 4, v{LANE}")
    k(f"v_and_b32 v{VT+2}, 15, v{LANE}\nv_lshlrev_b32 v{VT+2}, 11, v{VT+2}\nv_lshl_add_u32 v{V_XA}, v{VT+1}, 3, v{VT+2}")
    k(f"s_lshl_b32 s82, s{S_RB2}, 3\ns_lshl_b32 s83, s{S_WAVE}, 1\ns_add_u32 s82, s82, s83\ns_lshl_b32 s82, s82, 15\ns_lshl_b32 s83, s{S_NT}, 7\ns_add_u32 s82, s82, s83\ns_add_u32 s83, s82, 32768")
    for t in range(2):
        for b in range(4):
            k(f"buffer_load_dwordx2 {vr(g2.V_X+(t*4+b)*2,2)}, v{V_XA}, {sr(SRD_A,4)}, s{82+t} offen offset:{b*32}")
    publish(k, 84, VT + 2, mko)
    k.stamp("o published")
    mark1 = len(k.L)
    for j in range(8): k(f"v_mov_b32 v{AU+j}, 0")
    for i in range(8):
        for d in range(4): k(f"v_accvgpr_read_b32 v{WW+d}, a{A_UT+4*i+d}")
        for d in range(4):
            k(f"v_lshlrev_b32 v{TT}, 16, v{WW+d}\nv_and_b32 v{TT+1}, 0xffff0000, v{WW+d}")
            k(f"v_pk_fma_f32 {vr(AU+2*d,2)}, {vr(TT,2)}, {vr(CU+2*i,2)}, {vr(AU+2*d,2)} op_sel_hi:[1,0,1]")
    k("s_nop 1")
    for j in range(4): k(f"v_permlane32_swap_b32 v{AU+j}, v{AU+j+4}")
    k("s_nop 1")
    for j in range(4): k(f"v_add_f32 v{AU+j}, v{AU+j}, v{AU+j+4}")
    k("s_nop 1")
    for j in range(2): k(f"v_permlane16_swap_b32 v{AU+j}, v{AU+j+2}")
    k("s_nop 1")
    for j in range(2): k(f"v_add_f32 v{AU+j}, v{AU+j}, v{AU+j+2}")
    k("s_nop 1")
    for j in range(2): k(f"v_add_f32_dpp v{AU+j}, v{AU+j}, v{AU+j} row_ror:8 row_mask:0xf bank_mask:0xf")
    sprinkle(k, mark1, g3_early_units(k.g3, opt.get("g3_e2", 7), 254), skip=0)
    k(f"v_and_b32 v{TT}, 7, v{LANE}\nv_lshlrev_b32 v{TT}, 5, v{TT}\nv_lshrrev_b32 v{TT+1}, 5, v{LANE}\nv_lshl_add_u32 v{TT}, v{TT+1}, 4, v{TT}")
    k(f"v_bfe_u32 v{TT+1}, v{LANE}, 4, 1\nv_lshl_add_u32 v{TT}, v{TT+1}, 3, v{TT}")
    srd(k, SRD_D, P_WS, MP_BYTES, WS_MODP)
    k(f"v_or_b32 v{AU}, 1, v{AU}\nv_or_b32 v{AU+1}, 1, v{AU+1}")
    k(f"buffer_store_dwordx2 {vr(AU,2)}, v{TT}, {sr(SRD_D,4)}, s{S_MO} offen sc1")
    return g2

A_PARK = 224
S3_SRD, S3_WB, S3_KW = 64, 68, 69
def setup_gemm3_early(k, opt, LANE, VT):
    c = Sched(); common_gemm(c)
    NS, R = 4, 8
    STAGE = 28672
    V_RD, V_DMA, V_TOK = 224, 226, 233
    c.V_RD, c.V_DMA, c.V_TOK, c.LANE, c.L16, c.VT = V_RD, V_DMA, V_TOK, 237, 238, 248
    c.srd_w, c.s_wbase, c.s_kw = S3_SRD, S3_WB, S3_KW
    order(c, k, opt, 'g3', ['win', [4, 4, 8], 0])
    if opt.get("g3map", 0): c.s_rot, c.s_rot2 = 73, 72
    k(f"s_lshr_b32 s80, s{S_WAVE}, 1\ns_and_b32 s81, s{S_WAVE}, 1")
    k(f"s_mul_i32 s83, s80, {32*7168}\ns_mul_i32 s{S_TMP}, s{S_FT}, 224\ns_add_u32 s83, s83, s{S_TMP}")
    for i in range(7):
        k(f"v_add_u32 v{VT+2}, {i*64}, v{LANE}")
        k(f"v_mul_u32_u24 v{VT+3}, 4682, v{VT+2}")
        k(f"v_lshrrev_b32 v{VT+3}, 16, v{VT+3}")
        k(f"v_mul_u32_u24 v{VT+4}, 14, v{VT+3}")
        k(f"v_sub_u32 v{VT+4}, v{VT+2}, v{VT+4}")
        k(f"v_mul_u32_u24 v{VT+3}, 7168, v{VT+3}")
        k(f"v_lshl_add_u32 v{VT+3}, v{VT+4}, 4, v{VT+3}")
        k(f"v_add_u32 v{VT+3}, s83, v{VT+3}")
        k(f"v_accvgpr_write_b32 a{A_PARK+i}, v{VT+3}")
    k(f"s_mul_i32 s{S3_WB}, s81, 14336\ns_mul_i32 s82, s80, 7168\ns_add_u32 s{S3_WB}, s{S3_WB}, s82")
    k(f"s_cmp_eq_u32 s81, 0\ns_cselect_b32 s{S3_SRD}, s{P_W1}, s{P_W3}\ns_cselect_b32 s{S3_SRD+1}, s{P_W1+1}, s{P_W3+1}")
    k(f"s_mov_b32 s{S3_SRD+2}, {D*F*2}\ns_mov_b32 s{S3_SRD+3}, 0x20000")
    c.NB, c.TB, c.KS, c.SPK, c.KT, c.NS, c.R = 14, 4, 1, 2, 16, NS, R
    c.acc = lambda b, t: vr((b * 4 + t) * 4, 4)
    c.tf = lambda slot, ks, t: 112 + (slot * 4 + t) * 4
    ph = lambda sl: 3 - sl
    c.rd = lambda sl, b, sub, r: (V_RD + ph(sl) // 2, (ph(sl) % 2) * STAGE + (b % 2) * 14336 + (32 * sub + 16 * r) * 224 + 32 * (b // 2))
    c.slot_addr = lambda sl: ph(sl) * STAGE
    c.dma = [(V_DMA + i, i * 1024, 0) for i in range(7)]
    c.v_tok = [V_TOK + t for t in range(4)]
    c.w_stride = 64 * 7168
    c.drop = opt.get("g3_drop", ())
    c.pro_units, c.ramp_rate, c.read_margin = opt.get("g3_pro", 12), (lambda st: opt.get("g3_ramp", 12) if st < 6 else 8), 8
    c.lookahead = opt.get("g3_la", 4)
    std_sched(c)
    TL = c.TL = opt.get("g3_tail", 0)
    if TL:
        tail = c.steps[32 - TL:]
        c.steps = c.steps[:32 - TL] + [dict(st, frags=st["frags"][:8]) for st in tail] + [dict(st, frags=st["frags"][8:]) for st in tail]
    return c
def g3_early_units(c, n, vtmp):
    out = []
    for j in range(n):
        t = c.prefetch_txt(1)
        i = (c.pre_dma - 1) % 7
        ld = t[-1].replace(f"v{c.V_DMA+i},", f"v{vtmp},")
        out.append(t[:-1] + [f"v_accvgpr_read_b32 v{vtmp}, a{A_PARK+i}", ld])
    return out
def setup_gemm3_late(k, c):
    V_RD, V_DMA, V_TOK, LANE, L16, VT = c.V_RD, c.V_DMA, c.V_TOK, c.LANE, c.L16, c.VT
    lane_id(k, LANE)
    k(f"v_lshlrev_b32 v{L16}, 4, v{LANE}")
    for i in range(7): k(f"v_accvgpr_read_b32 v{V_DMA+i}, a{A_PARK+i}")
    k(f"v_lshrrev_b32 v{VT+3}, 2, v{LANE}\nv_mul_u32_u24 v{VT+3}, 224, v{VT+3}")
    k(f"v_and_b32 v{VT+4}, 3, v{LANE}\nv_lshl_add_u32 v{V_RD}, v{VT+4}, 3, v{VT+3}")
    k(f"v_add_u32 v{V_RD+1}, {2*28672}, v{V_RD}")
    k(f"s_lshl_b32 s82, s{S_RB3}, 4\ns_lshl_b32 s83, s{S_WAVE}, 2\ns_add_u32 s82, s82, s83\ns_lshl_b32 s82, s82, 15")
    k(f"v_add_u32 v{V_TOK}, s82, v{L16}")
    for t in range(1, 4): k(f"v_add_u32 v{V_TOK+t}, {t*0x8000}, v{V_TOK}")

def sprinkle(k, mark, groups, skip=4):
    if not groups: return
    seg = k.L[mark:]
    stepn = max(1, (len(seg) - skip) // len(groups))
    out, q = [], list(groups)
    for i, x in enumerate(seg):
        out.append(x)
        if q and i >= skip and (i - skip) % stepn == 0:
            assert not x.startswith("s_cmp") and not x.startswith("s_and_saveexec")
            out += q.pop(0)
    for g in q: out += g
    k.L[mark:] = out

A_X1 = 240
def phase_gemm2(k, c, opt):
    LANE, L16 = c.LANE, c.L16
    VT = 40
    k(f"v_and_b32 v252, 15, v{LANE}\nv_lshlrev_b32 v252, {FS}, v252")
    k(f"s_lshl_b32 s84, s{S_RB2}, 2\ns_add_u32 s84, s84, s{S_WAVE}\ns_lshl_b32 s84, s84, {FS+4}\ns_add_u32 s85, s84, {F_O}")
    if c.hs:
        k(f"s_add_u32 s94, s85, {F_O2 - F_O}")
        staged_wait(k, c, opt.get("g2_T", 5), 252, 85, 253, lambda sp, st: [f"s_lshl_b32 s{st}, s{sp}, 1", f"s_lshl_b32 s{st}, 3, s{st}"], pub=(95, 26))
        add_gate(k, c, 8, f"buffer_load_dword v253, v252, {sr(SRD_F,4)}, s94 offen sc1", 253)
    else:
        staged_wait(k, c, opt.get("g2_T", 6), 252, 85, 253, one_prod)
    k.stamp("o ready")
    V_G, V_C, V_S, V_GA = 64, 80, 136, 44
    p = Txt()
    srd(p, SRD_A, P_WS, S * D * 2, WS_Y)
    srd(p, SRD_B, P_WS, S * 128, WS_STAT)
    srd(p, SRD_D, P_WS, MP_BYTES, WS_MODP)
    p(f"v_lshrrev_b32 v{V_GA}, 4, v{LANE}\nv_lshlrev_b32 v{V_GA}, 4, v{V_GA}\nv_add_u32 v{V_GA}, {L_MV}, v{V_GA}")
    p(f"s_lshl_b32 s86, s{S_RB2}, 3\ns_lshl_b32 s87, s{S_WAVE}, 1\ns_add_u32 s86, s86, s87")
    p(f"s_lshl_b32 s88, s86, 15\ns_lshl_b32 s87, s{S_NT}, 11\ns_add_u32 s88, s88, s87\ns_add_u32 s89, s88, 32768")
    p(f"s_lshl_b32 s87, s{S_NT}, {FS}\ns_add_u32 s84, s84, s87\ns_add_u32 s84, s84, {F_Y}")
    p(f"s_lshl_b32 s91, s86, 11\ns_lshl_b32 s90, s{S_NT}, 8\ns_add_u32 s90, s90, s91")
    p(f"s_lshl_b32 s92, s{S_WAVE}, 16\ns_lshl_b32 s93, s{S_NT}, 12\ns_add_u32 s92, s92, s93\ns_add_u32 s92, s92, {MP_B}")
    p(f"v_lshlrev_b32 v{VT}, 2, v{LANE}")
    c.pre_loop_txt = p.L
    c.late = {}
    if opt.get("cpf", 1): c.late[6] = code_prefetch_txt(k.name, L16, 254, 80)
    m = Txt(); m.label = k.label
    MB_ = 160
    mld = [f"buffer_load_dword v{MB_+j}, v{VT}, {sr(SRD_D,4)}, s92 offen offset:{j*256} sc1" for j in range(16)]
    okm = k.label("mok")
    m(f"v_min_u32 v{MB_+16}, v{MB_}, v{MB_+1}")
    for j in range(2, 16, 2): m(f"v_min3_u32 v{MB_+16}, v{MB_+16}, v{MB_+j}, v{MB_+j+1}")
    m(f"v_cmp_eq_u32 vcc, 0, v{MB_+16}\ns_cmp_eq_u64 vcc, 0\ns_cbranch_scc1 {okm}")
    spin(m, mld, [MB_ + j for j in range(16)], MB_ + 16)
    m(f"{okm}:")
    mchk = "\n".join(m.L); m.L = []
    for st in (4, 2, 1):
        for j in range(st): m(f"v_pk_add_f32 {vr(MB_+2*j,2)}, {vr(MB_+2*j,2)}, {vr(MB_+2*(j+st),2)}")
    m(f"v_add_f32 v{MB_}, v{MB_}, v{MB_+1}")
    round_bf16(m, MB_)
    m(f"v_add_f32 v{MB_+1}, 1.0, v{MB_}"); round_bf16(m, MB_ + 1)
    m(f"s_cmp_eq_u32 s{S_WAVE}, 2\ns_cselect_b64 vcc, -1, 0")
    m(f"v_cndmask_b32 v{MB_}, v{MB_}, v{MB_+1}, vcc")
    m(f"s_lshl_b32 s92, s{S_WAVE}, 8\ns_add_u32 s92, s92, {L_MV}\nv_add_u32 v{VT}, s92, v{VT}")
    m(f"ds_write_b32 v{VT}, v{MB_}")
    ms_ = opt.get("g2_modstep", 13)
    c.late.setdefault(ms_ - 2, []).extend([VM(x, ("mv", 0)) for x in mld])
    k_ = [x for x in m.L]
    i_ = next(i for i, x in enumerate(k_) if x.startswith("s_cmp_eq_u32"))
    c.late[ms_] = [WVM([("mv", 0)]), T(mchk)] + k_[:i_] + ["\n".join(k_[i_:])]
    ne = opt.get("g3_e3", 7 if opt.get("split", 1) else 0)
    eu = [x for g in g3_early_units(k.g3, ne, 254) for x in g]
    c.late.setdefault(14, []).extend(eu[:len(eu)//2 // 1]); c.late.setdefault(15, []).extend(eu[len(eu)//2:])
    c.last_reads = ([f"ds_read_b128 {vr(V_G+4*b,4)}, v{V_GA} offset:{b*64}" for b in range(4)] + [f"ds_read_b128 {vr(V_C+4*b,4)}, v{V_GA} offset:{512+b*64}" for b in range(4)]
                    + [f"ds_read_b128 {vr(V_S+4*b,4)}, v{V_GA} offset:{256+b*64}" for b in range(4)])
    c.run(k)
    k.stamp("g2 loop done")
    k("s_waitcnt lgkmcnt(0)\ns_nop 7")
    A = lambda b, t: (b * 2 + t) * 4
    XT = 194; V_X = c.V_X
    for t in range(2):
        for b in range(4):
            xr = V_X + (t * 4 + b) * 2
            for h in range(2): k(f"v_lshlrev_b32 v{XT+2*h}, 16, v{xr+h}\nv_and_b32 v{XT+2*h+1}, 0xffff0000, v{xr+h}")
            for h in range(2): k(f"v_pk_fma_f32 {vr(A(b,t)+2*h,2)}, {vr(A(b,t)+2*h,2)}, {vr(V_G+4*b+2*h,2)}, {vr(XT+2*h,2)}")
        PK = XT + 4 + t * 8
        for b in range(4): k(f"v_cvt_pk_bf16_f32 v{PK+2*b}, v{A(b,t)}, v{A(b,t)+1}\nv_cvt_pk_bf16_f32 v{PK+2*b+1}, v{A(b,t)+2}, v{A(b,t)+3}")
        for b in range(4):
            for h in range(2): k(f"v_lshlrev_b32 v{A(b,t)+2*h}, 16, v{PK+2*b+h}\nv_and_b32 v{A(b,t)+2*h+1}, 0xffff0000, v{PK+2*b+h}")
    SU = [XT + 20, XT + 22]; M2 = [XT + 21, XT + 23]; TM = [XT + 24, XT + 25]; AC = [XT, XT + 2]; NM = [XT + 26, XT + 28]; DF = 32
    for t in range(2): k(f"v_pk_add_f32 {vr(AC[t],2)}, {vr(A(0,t),2)}, {vr(A(0,t)+2,2)}")
    for b in range(1, 4):
        for h in range(2):
            for t in range(2): k(f"v_pk_add_f32 {vr(AC[t],2)}, {vr(AC[t],2)}, {vr(A(b,t)+2*h,2)}")
    def allred2(X):
        for sw in ("v_permlane32_swap_b32", "v_permlane16_swap_b32"):
            for t in range(2): k(f"v_mov_b32 v{TM[t]}, v{X[t]}")
            k("s_nop 0")
            for t in range(2): k(f"{sw} v{X[t]}, v{TM[t]}")
            k("s_nop 0")
            for t in range(2): k(f"v_add_f32 v{X[t]}, v{X[t]}, v{TM[t]}")
    for t in range(2): k(f"v_add_f32 v{SU[t]}, v{AC[t]}, v{AC[t]+1}")
    allred2(SU)
    for t in range(2): k(f"v_mul_f32 v{NM[t]}, {-1.0/64!r}, v{SU[t]}\nv_mov_b32 v{AC[t]}, 0\nv_mov_b32 v{AC[t]+1}, 0")
    for b in range(4):
        for h in range(2):
            for t in range(2): k(f"v_pk_add_f32 {vr(DF+2*t,2)}, {vr(A(b,t)+2*h,2)}, {vr(NM[t],2)} op_sel_hi:[1,0]")
            for t in range(2): k(f"v_pk_fma_f32 {vr(AC[t],2)}, {vr(DF+2*t,2)}, {vr(DF+2*t,2)}, {vr(AC[t],2)}")
    for t in range(2): k(f"v_add_f32 v{M2[t]}, v{AC[t]}, v{AC[t]+1}")
    allred2(M2)
    k(f"v_cmp_gt_u32 vcc, 16, v{LANE}")
    k(f"v_lshlrev_b32 v{XT+2}, 3, v{LANE}\nv_lshrrev_b32 v{XT+3}, 4, v{LANE}")
    k(f"v_cndmask_b32 v{XT}, v{SU[1]}, v{SU[0]}, vcc\nv_cndmask_b32 v{XT+1}, v{M2[1]}, v{M2[0]}, vcc")
    k(f"v_and_b32 v45, 0x78, v{XT+2}\nv_lshl_add_u32 v45, v{XT+3}, 10, v45")
    k(f"v_or_b32 v{XT+1}, 1, v{XT+1}")
    k(f"v_cmp_gt_u32 vcc, 32, v{LANE}\ns_and_saveexec_b64 s[96:97], vcc")
    k(f"buffer_store_dwordx2 {vr(XT,2)}, v{XT+2}, {sr(SRD_B,4)}, s90 offen sc1")
    k("s_mov_b64 exec, s[96:97]")
    k.stamp("stat stored")
    for t in range(2):
        for b in range(4):
            for h in range(2): k(f"v_pk_mul_f32 {vr(A(b,t)+2*h,2)}, {vr(A(b,t)+2*h,2)}, {vr(V_C+4*b+2*h,2)}")
    for j in range(16): k(f"v_accvgpr_write_b32 a{A_X1+j}, v{XT+4+j}")
    g3 = k.g3
    setup_gemm3_late(k, g3)
    g3.prefetch(k, opt.get("g3_pre0", 0))
    ST = 48
    spin(k, [f"buffer_load_dwordx2 {vr(ST+t*8+j*2,2)}, v45, {sr(SRD_B,4)}, s91 offen offset:{t*128+j*256} sc1" for t in range(2) for j in range(4)],
         [ST + 2 * j + 1 for j in range(8)], XT)
    k.stamp("stat ready")
    for t in range(2):
        b = ST + t * 8
        k(f"v_add_f32 v{SU[t]}, v{b}, v{b+2}\nv_add_f32 v{TM[t]}, v{b+4}, v{b+6}\nv_add_f32 v{SU[t]}, v{SU[t]}, v{TM[t]}")
        k(f"v_add_f32 v{M2[t]}, v{b+1}, v{b+3}\nv_add_f32 v{TM[t]}, v{b+5}, v{b+7}\nv_add_f32 v{M2[t]}, v{M2[t]}, v{TM[t]}")
    allred2(SU)
    for t in range(2): k(f"v_mul_f32 v{SU[t]}, {-1.0/1024!r}, v{SU[t]}")
    for j in range(4):
        for t in range(2): k(f"v_fmamk_f32 v{ST+t*8+2*j}, v{ST+t*8+2*j}, {1.0/64!r}, v{SU[t]}")
        for t in range(2): k(f"v_mul_f32 v{ST+t*8+2*j}, v{ST+t*8+2*j}, v{ST+t*8+2*j}")
        for t in range(2): k(f"v_fmac_f32 v{M2[t]}, 0x42800000, v{ST+t*8+2*j}")
    allred2(M2)
    for t in range(2): k(f"v_mov_b32 v{TM[t]}, 0x3727c5ac\nv_fmac_f32 v{TM[t]}, {1.0/1024!r}, v{M2[t]}")
    for t in range(2): k(f"v_rsq_f32 v{NM[t]}, v{TM[t]}")
    k("s_nop 0")
    for t in range(2): k(f"v_mul_f32 v{NM[t]+1}, v{SU[t]}, v{NM[t]}")
    for t in range(2):
        YK = ST + t * 8
        for b in range(4):
            for h in range(2): k(f"v_pk_fma_f32 {vr(XT+2*h,2)}, {vr(V_C+4*b+2*h,2)}, {vr(NM[t],2)}, {vr(V_S+4*b+2*h,2)} op_sel:[0,1,0] op_sel_hi:[1,1,1]")
            for h in range(2): k(f"v_pk_fma_f32 {vr(XT+2*h,2)}, {vr(A(b,t)+2*h,2)}, {vr(NM[t],2)}, {vr(XT+2*h,2)} op_sel_hi:[1,0,1]")
            k(f"v_cvt_pk_bf16_f32 v{YK+2*b}, v{XT}, v{XT+1}\nv_cvt_pk_bf16_f32 v{YK+2*b+1}, v{XT+2}, v{XT+3}")
        for s_ in range(2): k(f"buffer_store_dwordx4 {vr(YK+4*s_,4)}, v{L16}, {sr(SRD_A,4)}, s{88+t} offen offset:{s_*1024} sc1")
    publish(k, 84, 40)
    k.stamp("y published")
    g3.prefetch(k, opt.get("g3_pre", 0))
    return g3

def phase_gemm3(k, c, opt):
    LANE, L16, VT = c.LANE, c.L16, c.VT
    NB, TB = 14, 4
    srd(k, SRD_T, P_WS, S * D * 2, WS_Y)
    srd(k, SRD_C, P_WS, S * F * 2, WS_HH)
    k(f"v_and_b32 v{VT}, 31, v{LANE}\nv_lshlrev_b32 v{VT}, {FS}, v{VT}")
    k(f"s_lshl_b32 s84, s{S_RB3}, 2\ns_add_u32 s84, s84, s{S_WAVE}")
    k(f"s_lshl_b32 s85, s84, {FS+5}\ns_add_u32 s85, s85, {F_Y}")
    staged_wait(k, c, opt.get("g3_T", 3), VT, 85, VT + 1, one_prod, dup16=True)
    k.stamp("y ready")
    p = Txt()
    p(f"s_mul_i32 s88, s84, {448*1024}\ns_mul_i32 s92, s{S_FT}, 3584\ns_add_u32 s88, s88, s92")
    for t in range(1, 4): p(f"s_add_u32 s{88+t}, s88, {t*112*1024}")
    p(f"s_lshl_b32 s93, s84, {FS+5}\ns_lshl_b32 s94, s{S_FT}, {FS}\ns_add_u32 s93, s93, s94\ns_add_u32 s94, s93, {F_HB}\ns_add_u32 s93, s93, {F_HH}")
    p(f"s_mov_b32 s86, {-LOG2E!r}\ns_mov_b32 s87, {-LOG2E!r}")
    SB = 241
    p(f"v_lshrrev_b32 v{SB}, 1, v{L16}")
    c.pre_loop_txt = p.L
    if opt.get("cpf", 1):
        for st_ in opt.get("cp3", [6, 22]): c.late.setdefault(st_, []).extend(code_prefetch_txt(k.name, L16, 254, 80, junk="v240"))
    if opt.get("w2touch", 1):
        ws_ = opt.get("w2steps", [16]); per = 56 // len(ws_)
        for j, st_ in enumerate(ws_):
            c.late.setdefault(st_, []).extend([f"s_lshl_b32 s80, s2, 2", f"s_add_u32 s80, s80, s{S_WAVE}", "s_mul_i32 s80, s80, 7168", f"s_add_u32 s80, s80, {j*per*128}",
                      f"v_min_u32 v253, {per-1}, v{LANE}", "v_lshlrev_b32 v253, 7, v253", "v_add_u32 v253, s80, v253",
                      f"global_load_dword v240, v253, s[{P_W2}:{P_W2+1}]"])
    for j, st_ in enumerate(opt.get("w2l2", [])):
        c.late.setdefault(st_, []).extend([
            f"s_lshl_b32 s80, s{S_IDX}, 2", f"s_add_u32 s80, s80, s{S_WAVE}", "s_mul_i32 s80, s80, 14", f"s_add_u32 s80, s80, {7*j}",
            f"s_and_b32 s81, s{S_XCD}, 1", "s_mul_i32 s81, s81, 1792", "s_add_u32 s80, s80, s81", "s_lshl_b32 s80, s80, 11",
            f"s_lshr_b32 s81, s{S_XCD}, 2", "s_lshl_b32 s81, s81, 10", "s_add_u32 s80, s80, s81",
            f"v_min_u32 v253, 55, v{LANE}", "v_lshrrev_b32 v254, 3, v253", "v_lshlrev_b32 v254, 11, v254", "v_and_b32 v253, 7, v253", "v_lshl_add_u32 v253, v253, 7, v254",
            "v_add_u32 v253, s80, v253", f"global_load_dword v240, v253, s[{P_W2}:{P_W2+1}]"])
    t4 = Txt()
    g4 = setup_gemm4p(t4, opt, 242)
    half = len(t4.L) // 2
    c.late[19] = t4.L[:half]; c.late[20] = t4.L[half:]
    pf = g4.prefetch_txt(4); c.late[29] = pf
    pf = g4.prefetch_txt(4); c.late[30] = pf
    def G(s, t): return ((2 * s) * TB + t) * 4
    def Uu(s, t): return ((2 * s + 1) * TB + t) * 4
    def act(k, slots, t, scalar=False):
        if scalar:
            for s in slots:
                for r in range(4):
                    k(f"v_mul_f32 v{Uu(s,t)+r}, v{G(s,t)+r}, v{Uu(s,t)+r}")
                    k(f"v_mul_f32 v{G(s,t)+r}, s86, v{G(s,t)+r}")
            rs = [(s, r) for s in slots for r in range(4)]
            for i, (s, r) in enumerate(rs): k(f"v_exp_f32 v{G(s,t)+r}, v{G(s,t)+r}")
            for i, (s, r) in enumerate(rs): k(f"v_add_f32 v{G(s,t)+r}, 1.0, v{G(s,t)+r}")
            for i, (s, r) in enumerate(rs): k(f"v_rcp_f32 v{G(s,t)+r}, v{G(s,t)+r}")
            for i, (s, r) in enumerate(rs): k(f"v_mul_f32 v{Uu(s,t)+r}, v{Uu(s,t)+r}, v{G(s,t)+r}")
            return
        for s in slots:
            for h in range(2):
                k(f"v_pk_mul_f32 {vr(Uu(s,t)+2*h,2)}, {vr(G(s,t)+2*h,2)}, {vr(Uu(s,t)+2*h,2)}")
                k(f"v_pk_mul_f32 {vr(G(s,t)+2*h,2)}, {vr(G(s,t)+2*h,2)}, s[86:87]")
        for s in slots:
            for r in range(4): k(f"v_exp_f32 v{G(s,t)+r}, v{G(s,t)+r}")
        for s in slots:
            for h in range(2): k(f"v_pk_add_f32 {vr(G(s,t)+2*h,2)}, {vr(G(s,t)+2*h,2)}, 1.0 op_sel_hi:[1,0]")
        for s in slots:
            for r in range(4): k(f"v_rcp_f32 v{G(s,t)+r}, v{G(s,t)+r}")
        for s in slots:
            for h in range(2): k(f"v_pk_mul_f32 {vr(Uu(s,t)+2*h,2)}, {vr(Uu(s,t)+2*h,2)}, {vr(G(s,t)+2*h,2)}")
    def pair(k, pr, t, scalar=False):
        s0, s1 = 2 * pr, 2 * pr + 1
        act(k, [s0, s1], t, scalar)
        d = G(s0, t)
        k(f"v_cvt_pk_bf16_f32 v{d}, v{Uu(s0,t)}, v{Uu(s0,t)+1}\nv_cvt_pk_bf16_f32 v{d+1}, v{Uu(s0,t)+2}, v{Uu(s0,t)+3}")
        k(f"v_cvt_pk_bf16_f32 v{d+2}, v{Uu(s1,t)}, v{Uu(s1,t)+1}\nv_cvt_pk_bf16_f32 v{d+3}, v{Uu(s1,t)+2}, v{Uu(s1,t)+3}")
        k(f"buffer_store_dwordx4 {vr(d,4)}, v{L16}, {sr(SRD_C,4)}, s{88+t} offen offset:{pr*1024} sc1")
        if opt.get("dbl", 0): k(f"buffer_store_dwordx4 {vr(d,4)}, v{L16}, {sr(SRD_C,4)}, s{88+t} offen offset:{pr*1024}")
    ea = Txt(); eb = Txt()
    nin = opt.get("g3_nin", 8) if c.TL else 0
    for i, (pr, t) in enumerate([(pr, t) for pr in range(2) for t in range(TB)]):
        if i < nin: pair(ea, pr, t, opt.get("g3_scalar", 0))
        else: pair(eb, pr, t)
    if c.TL:
        nst = opt.get("g3_east", c.TL - 1)
        per = -(-len(ea.L) // nst)
        c.step_extra = lambda st: ea.L[(st - 32) * per:(st - 31) * per] if st >= 32 else []
    c.run(k)
    k.stamp("g3 loop done")
    if not c.TL: k("s_nop 7")
    k("s_barrier")
    mkE = len(k.L)
    for x in eb.L: k(x)
    grp = []
    for j in range(opt.get("g4_pa", 0)):
        t_ = g4.prefetch_txt(1); grp.append(t_[:-1] + ["s_nop 0", t_[-1]])
    sprinkle(k, mkE, grp)
    mkA = len(k.L)
    na = opt.get("g3_pubA", 2)
    for t in range(na): pair(k, 2, t)
    publish(k, 93, 252, mkA)
    k.stamp("hA published")
    mark3 = len(k.L)
    for t in range(na, TB): pair(k, 2, t)
    grp = []
    for j in range(opt.get("g4_pb", 8)):
        t_ = g4.prefetch_txt(1); grp.append(t_[:-1] + ["s_nop 0", t_[-1]])
    sprinkle(k, mark3, grp)
    for t in range(TB):
        act(k, [6], t)
        d = G(6, t)
        k(f"v_cvt_pk_bf16_f32 v{d}, v{Uu(6,t)}, v{Uu(6,t)+1}\nv_cvt_pk_bf16_f32 v{d+1}, v{Uu(6,t)+2}, v{Uu(6,t)+3}")
        k(f"buffer_store_dwordx2 {vr(d,2)}, v{SB}, {sr(SRD_C,4)}, s{88+t} offen offset:3072 sc1")
    k.stamp("hh stored")
    return g4

def phase_gemm4(k, c, opt):
    LANE, L16 = c.LANE, c.L16
    VT = 40
    srd(k, SRD_T, P_WS, S * F * 2, WS_HH)
    srd(k, SRD_A, P_OUT, S * D * 2)
    k(f"v_and_b32 v{VT}, 31, v{LANE}\nv_lshlrev_b32 v{VT}, 2, v{VT}")
    k(f"s_lshl_b32 s84, s{S_RB2}, 1\ns_lshr_b32 s85, s{S_WAVE}, 1\ns_add_u32 s84, s84, s85\ns_lshl_b32 s84, s84, {FS+5}\ns_add_u32 s84, s84, {F_HH}")
    wait_flags(k, [(VT, 84, 1)], VT + 1)
    k.stamp("hh ready")
    V_G, V_GA, V_XA, V_X = 64, 44, 45, 48
    p = Txt()
    p(f"v_lshrrev_b32 v{VT}, 4, v{LANE}\nv_lshlrev_b32 v{V_GA}, 4, v{VT}\nv_add_u32 v{V_GA}, {L_MV}, v{V_GA}")
    p(f"v_and_b32 v{VT+1}, 15, v{LANE}\nv_lshlrev_b32 v{VT+1}, 11, v{VT+1}")
    p(f"v_and_b32 v{VT+2}, 1, v{VT}\nv_lshl_add_u32 v{VT+1}, v{VT+2}, 5, v{VT+1}")
    p(f"v_lshrrev_b32 v{VT+2}, 1, v{VT}\nv_lshl_add_u32 v{V_XA}, v{VT+2}, 4, v{VT+1}")
    p(f"s_lshl_b32 s86, s{S_RB2}, 3\ns_lshl_b32 s87, s{S_WAVE}, 1\ns_add_u32 s86, s86, s87\ns_lshl_b32 s86, s86, 15\ns_lshl_b32 s87, s{S_NT}, 7\ns_add_u32 s86, s86, s87\ns_add_u32 s87, s86, 32768")
    for j in range(16): p(f"v_accvgpr_read_b32 v{V_X+j}, a{A_X1+j}")
    c.pre_loop_txt = p.L
    c.last_reads = [f"ds_read_b128 {vr(V_G+4*b,4)}, v{V_GA} offset:{768+b*64}" for b in range(4)]
    c.run(k)
    k.stamp("g4 loop done")
    k("s_waitcnt lgkmcnt(0)\ns_nop 7")
    A = lambda b, t: (b * 2 + t) * 4
    XT = 96
    for t in range(2):
        for b in range(4):
            xr = V_X + (t * 4 + b) * 2
            for h in range(2): k(f"v_lshlrev_b32 v{XT+2*h}, 16, v{xr+h}\nv_and_b32 v{XT+2*h+1}, 0xffff0000, v{xr+h}")
            for h in range(2): k(f"v_pk_fma_f32 {vr(A(b,t)+2*h,2)}, {vr(A(b,t)+2*h,2)}, {vr(V_G+4*b+2*h,2)}, {vr(XT+2*h,2)}")
        PK = XT + 4 + t * 8
        for b in range(4): k(f"v_cvt_pk_bf16_f32 v{PK+2*b}, v{A(b,t)}, v{A(b,t)+1}\nv_cvt_pk_bf16_f32 v{PK+2*b+1}, v{A(b,t)+2}, v{A(b,t)+3}")
        k("s_nop 1")
        for s_ in range(2): k(f"v_permlane16_swap_b32 v{PK+4*s_}, v{PK+4*s_+2}\nv_permlane16_swap_b32 v{PK+4*s_+1}, v{PK+4*s_+3}")
        for s_ in range(2): k(f"buffer_store_dwordx4 {vr(PK+4*s_,4)}, v{V_XA}, {sr(SRD_A,4)}, s{86+t} offen offset:{s_*64}")

def build_mega(instr=False, opt=None, name="mega_kernel"):
    opt = opt or {}
    k = Mega(name, 256, 256, LDS_TOTAL, vgpr=256, agpr=256, sgpr=102)
    k.instr = instr; k.names = []; k.only = opt.get("only")
    end = k.label("end")
    far = k.label("go")
    if opt.get("diag2") is not None: k("s_memrealtime s[72:73]")
    k(f"s_cmp_lt_u32 s2, 256\ns_cbranch_scc1 {far}\ns_endpgm\n{far}:")
    if opt.get("fused", 1):
        code_prefetch_setup(k, name)
        k("v_and_b32 v104, 63, v0\nv_lshlrev_b32 v105, 4, v104\nv_lshlrev_b32 v254, 5, v0")
        k("global_load_dword a232, v254, s[100:101]")
        k("s_load_dwordx2 s[96:97], s[0:1], 88")
        if opt.get("dbgout"): k("s_load_dwordx2 s[72:73], s[0:1], 88")
    k("s_load_dwordx8 s[4:11], s[0:1], 0")
    k("s_load_dwordx2 s[12:13], s[0:1], 64")
    k("s_load_dwordx2 s[14:15], s[0:1], 40")
    k("s_load_dwordx4 s[16:19], s[0:1], 48")
    k("s_load_dwordx2 s[98:99], s[0:1], 72")
    k("s_load_dwordx2 s[24:25], s[0:1], 80")
    k("s_load_dwordx2 s[28:29], s[0:1], 96")
    if instr: k(f"v_mov_b32 v{VSTAMP}, 0")
    ids(k)
    k(f"s_lshr_b32 s80, s{S_IDX}, 2\ns_add_u32 s{S_R4}, s80, s{S_IDX}\ns_and_b32 s81, s{S_IDX}, 3\ns_lshl_b32 s81, s81, 1\ns_add_u32 s{S_R8}, s80, s81")
    if opt.get("g3map", 0):
        k(f"s_bfe_u32 s{S_RB3}, s{S_XCD}, 0x10001\ns_lshl_b32 s{S_RB3}, s{S_RB3}, 2\ns_lshr_b32 s80, s{S_IDX}, 3\ns_add_u32 s{S_RB3}, s{S_RB3}, s80")
        k(f"s_and_b32 s{S_FT}, s{S_XCD}, 1\ns_lshl_b32 s{S_FT}, s{S_FT}, 4\ns_lshr_b32 s81, s{S_XCD}, 2\ns_lshl_b32 s81, s81, 3\ns_add_u32 s{S_FT}, s{S_FT}, s81\ns_and_b32 s81, s{S_IDX}, 7\ns_add_u32 s{S_FT}, s{S_FT}, s81")
        k(f"s_add_u32 s72, s80, s{S_IDX}\ns_lshl_b32 s80, s80, 1\ns_add_u32 s73, s80, s{S_IDX}")
    else:
        k(f"s_and_b32 s80, s{S_IDX}, 3\ns_lshl_b32 s{S_FT}, s{S_XCD}, 2\ns_add_u32 s{S_FT}, s{S_FT}, s80\ns_lshr_b32 s{S_RB3}, s{S_IDX}, 2")
    if opt.get("fused", 1):
        for x in code_prefetch_txt(name, 105, 254, 80): k(x)
    k.stamp("start")
    g1 = (phase_front_fused if opt.get("fused", 1) else phase_front)(k, opt, name)
    g2 = (phase_gemm1s if opt.get('split', 1) else phase_gemm1)(k, g1, opt)
    g3 = phase_gemm2(k, g2, opt)
    g4 = phase_gemm3(k, g3, opt)
    (phase_gemm4p if opt.get('g4_pair', 1) else phase_gemm4)(k, g4, opt)
    if opt.get("diag2") is not None:
        lp, sk = k.label("dg"), k.label("dgs")
        if opt["diag2"] >= 0: k(f"s_cmp_lg_u32 s2, {opt['diag2']}\ns_cbranch_scc1 {sk}")
        k(f"{lp}:\ns_memrealtime s[0:1]\ns_waitcnt lgkmcnt(0)\ns_sub_u32 s87, s0, s72\ns_cmp_lt_u32 s87, 10000\ns_cbranch_scc1 {lp}\n{sk}:")
    elif opt.get("diag"):
        a_, b_ = opt["diag"]
        k(f"v_readlane_b32 s84, v{VSTAMP}, 0\nv_readlane_b32 s85, v{VSTAMP}, {a_}\nv_readlane_b32 s86, v{VSTAMP}, {b_}\ns_nop 3")
        k("s_sub_u32 s86, s86, s85\ns_add_u32 s86, s86, 10000")
        lp = k.label("dg")
        k(f"{lp}:\ns_memrealtime s[0:1]\ns_waitcnt lgkmcnt(0)\ns_sub_u32 s87, s0, s84\ns_cmp_lt_u32 s87, s86\ns_cbranch_scc1 {lp}")
    elif instr:
        k("s_waitcnt vmcnt(0)")
        k.stamp("end")
        k(f"s_add_u32 s84, s{P_WS}, {WS_DBG}\ns_addc_u32 s85, s{P_WS+1}, 0\ns_mov_b32 s86, 0x100000\ns_mov_b32 s87, 0x20000")
        k(f"s_lshl_b32 s88, s2, 2\ns_add_u32 s88, s88, s{S_WAVE}\ns_lshl_b32 s88, s88, 8")
        lane_id(k, 1)
        k("v_lshlrev_b32 v1, 2, v1")
        k(f"buffer_store_dword v{VSTAMP}, v1, s[84:87], s88 offen")
        if opt.get("dbgout"):
            sk = k.label("nodbg")
            k(f"s_lshl_b32 s88, s2, 2\ns_add_u32 s88, s88, s{S_WAVE}\ns_cmp_lg_u32 s88, {opt['dbgout']*4}\ns_cbranch_scc1 {sk}")
            k("s_mov_b32 s84, s72\ns_mov_b32 s85, s73\ns_mov_b32 s86, 64\ns_mov_b32 s87, 0x20000")
            k(f"v_readlane_b32 s89, v{VSTAMP}, 0\ns_nop 3\nv_subrev_u32 v2, s89, v{VSTAMP}")
            k("buffer_store_dword v2, v1, s[84:87], 0 offen offset:12")
            k(f"{sk}:")
    k("s_endpgm")
    k(f"{name}_end:")
    return k
```

```python
import sys
from asmlib import *
from gemm import *
from layout import *
LOG2E = 1.4426950408889634
P_X, P_WQKV, P_WPHI, P_WO, P_W1, P_W3, P_W2, P_OUT, P_WS = 4, 6, 8, 10, 14, 16, 18, 24, 28
P_DBG, S_MB, S_MO = 96, 77, 79
P_C, P_WMOD = 12, 98
S_WAVE, S_XCD, S_IDX = 3, 30, 31
SRD_W, SRD_T, SRD_A, SRD_B, SRD_C, SRD_D, SRD_F = 32, 36, 40, 44, 48, 52, 56
S_KW, S_KT, S_WB, S_ROT, S_TMP, S_ROT2 = 60, 62, 76, 77, 78, 79
S_RB1, S_HP, S_RB2, S_NT, S_RB3, S_FT = 26, 27, 26, 27, 22, 23
S_R8, S_R4 = 20, 21
VSTAMP = 255
L_WPH, L_UTC = 110592, 105472
L_UT3, L_MV, L_R2 = 114688, 128000, 129792
LDS_TOTAL = 163584

class Mega(Kernel):
    nst = 0
    only = None
    def stamp(self, name=""):
        if not self.instr: return
        if self.only is not None and not any(name.startswith(o) for o in self.only): return
        if self.only is None and name[:3] in ("kp ", "qp "): return
        self("s_waitcnt lgkmcnt(0)\ns_memrealtime s[0:1]\ns_waitcnt lgkmcnt(0)")
        self(f"v_writelane_b32 v{VSTAMP}, s0, {self.nst}")
        self("s_nop 3\ns_memtime s[0:1]\ns_waitcnt lgkmcnt(0)")
        self(f"v_writelane_b32 v{VSTAMP}, s0, {self.nst + 32}")
        self.names.append(name); self.nst += 1

def lane_id(k, v):
    k(f"v_mbcnt_lo_u32_b32 v{v}, -1, 0\nv_mbcnt_hi_u32_b32 v{v}, -1, v{v}")

def code_prefetch_setup(k, name, s_pc=100):
    lab = k.label("pc")
    k(f"s_getpc_b64 s[{s_pc}:{s_pc+1}]")
    k(f"{lab}:")
    k(f"s_sub_u32 s{s_pc}, s{s_pc}, {lab}-{name}\ns_subb_u32 s{s_pc+1}, s{s_pc+1}, 0")
def code_prefetch_txt(name, v_l16, vt, s_tmp, s_idx=S_IDX, s_wave=S_WAVE, s_pc=100, junk="a232"):
    return [f"s_lshl_b32 s{s_tmp}, s{s_idx}, 2", f"s_add_u32 s{s_tmp}, s{s_tmp}, s{s_wave}", f"s_lshl_b32 s{s_tmp}, s{s_tmp}, 10",
            f"v_add_u32 v{vt}, s{s_tmp}, v{v_l16}", f"v_min_u32 v{vt}, {name}_end-{name}-4, v{vt}",
            f"global_load_dword {junk}, v{vt}, s[{s_pc}:{s_pc+1}]"]

def count_vm(k, mark):
    return sum(1 for x in k.L[mark:] if is_vm(x))
def publish(k, s_off, vt, mark=None):
    k(f"v_mov_b32 v{vt}, 1\nv_mov_b32 v{vt+1}, 0")
    n = 0 if mark is None else count_vm(k, mark)
    assert n < 64
    k(f"s_waitcnt vmcnt({n})")
    k(f"buffer_store_dword v{vt}, v{vt+1}, {sr(SRD_F,4)}, s{s_off} offen sc1")

def spin(k, loads, regs, vt, s_cnt=96):
    top, ok = k.label("poll"), k.label("ok")
    k(f"s_mov_b32 s{s_cnt}, 0")
    k(f"{top}:")
    for x in loads: k(x)
    k("s_waitcnt vmcnt(0)")
    if len(regs) == 1: k(f"v_cmp_eq_u32 vcc, 0, v{regs[0]}")
    else:
        k(f"v_min_u32 v{vt}, v{regs[0]}, v{regs[1]}")
        for x in regs[2:]: k(f"v_min_u32 v{vt}, v{vt}, v{x}")
        k(f"v_cmp_eq_u32 vcc, 0, v{vt}")
    k(f"s_add_u32 s{s_cnt}, s{s_cnt}, 1")
    k(f"s_cmp_eq_u64 vcc, 0\ns_cbranch_scc1 {ok}")
    k(f"s_sleep {SLEEP}\ns_cmp_lt_u32 s{s_cnt}, 0x40000\ns_cbranch_scc1 {top}")
    k(f"{ok}:")

def wait_flags(k, polls, vt, s_cnt=96):
    top, ok = k.label("poll"), k.label("ok")
    k(f"s_mov_b32 s{s_cnt}, 0")
    k(f"{top}:")
    r = vt
    regs = []
    for va, so, ndw in polls:
        if ndw == 4: r = (r + 1) // 2 * 2
        k(f"buffer_load_dword{'x4' if ndw == 4 else ''} {vr(r,ndw)}, v{va}, {sr(SRD_F,4)}, s{so} offen sc1")
        regs += list(range(r, r + ndw)); r += ndw
    k("s_waitcnt vmcnt(0)")
    for x in regs[1:]: k(f"v_min_u32 v{regs[0]}, v{regs[0]}, v{x}")
    k(f"v_cmp_eq_u32 vcc, 0, v{regs[0]}")
    k(f"s_add_u32 s{s_cnt}, s{s_cnt}, 1")
    k(f"s_cmp_eq_u64 vcc, 0\ns_cbranch_scc1 {ok}")
    k(f"s_sleep {SLEEP}\ns_cmp_lt_u32 s{s_cnt}, 0x40000\ns_cbranch_scc1 {top}")
    k(f"{ok}:")

def staged_wait(k, c, T_, v_addr, s_off, vf, prod_of, dup16=False, skip_first=0, s_m=97, pub=None):
    ld = f"buffer_load_dword v{vf}, v{v_addr}, {sr(SRD_F,4)}, s{s_off} offen sc1"
    if T_ is None:
        spin(k, [ld], [vf], 0); return
    k(f"s_mov_b32 s{s_m}, 0")
    for kt in range(skip_first, T_):
        for x in c.pos_txt(80, kt): k(x)
        for x in prod_of(80, 81): k(x)
        k(f"s_or_b32 s{s_m}, s{s_m}, s81")
    if dup16: k(f"s_lshl_b32 s81, s{s_m}, 16\ns_or_b32 s{s_m}, s{s_m}, s81")
    top, ok = k.label("poll"), k.label("ok")
    if pub:
        mk = len(k.L); k(ld); publish(k, pub[0], pub[1], mk)
        k("s_waitcnt vmcnt(1)")
        k(f"v_cmp_eq_u32 vcc, 0, v{vf}\ns_nop 0")
        k(f"s_and_b32 s81, vcc_lo, s{s_m}\ns_cbranch_scc0 {ok}")
    k(f"s_mov_b32 s96, 0\n{top}:")
    k(ld)
    k("s_waitcnt vmcnt(0)")
    k(f"v_cmp_eq_u32 vcc, 0, v{vf}")
    k("s_add_u32 s96, s96, 1")
    k(f"s_and_b32 s81, vcc_lo, s{s_m}\ns_cbranch_scc0 {ok}")
    k(f"s_sleep {SLEEP}\ns_cmp_lt_u32 s96, 0x40000\ns_cbranch_scc1 {top}")
    k(f"{ok}:")
    add_gate(k, c, T_, ld, vf)
def add_gate(k, c, tile, ld, vf):
    m = Txt(); m.label = k.label
    okl = k.label("gok")
    m(f"v_cmp_eq_u32 vcc, 0, v{vf}\ns_cmp_eq_u64 vcc, 0\ns_cbranch_scc1 {okl}")
    spin(m, [ld], [vf], 0)
    m(f"{okl}:")
    c.gates = list(c.gates) + [(tile, [VM(ld, ("gate", tile))], [WVM([("gate", tile)]), T("\n".join(m.L))])]
one_prod = lambda sp, st: [f"s_lshl_b32 s{st}, 1, s{sp}"]

def allreduce_q(k, op, x, tmp):
    k(f"v_mov_b32 v{tmp}, v{x}\ns_nop 1")
    k(f"v_permlane32_swap_b32 v{x}, v{tmp}")
    k(f"s_nop 1\n{op} v{x}, v{x}, v{tmp}")
    k(f"v_mov_b32 v{tmp}, v{x}\ns_nop 1")
    k(f"v_permlane16_swap_b32 v{x}, v{tmp}")
    k(f"s_nop 1\n{op} v{x}, v{x}, v{tmp}")

def treduce4(k, op, A):
    a, b, c, d = A
    k("s_nop 1")
    k(f"v_permlane32_swap_b32 v{a}, v{b}\nv_permlane32_swap_b32 v{c}, v{d}")
    k("s_nop 1")
    k(f"{op} v{a}, v{a}, v{b}\n{op} v{c}, v{c}, v{d}")
    k("s_nop 1")
    k(f"v_permlane16_swap_b32 v{a}, v{c}")
    k("s_nop 1")
    k(f"{op} v{a}, v{a}, v{c}")
    k(f"v_mov_b32 v{c}, v{a}")
    k("s_nop 1")
    k(f"v_permlane16_swap_b32 v{a}, v{c}")
    k("s_nop 1")
    k(f"v_mov_b32 v{b}, v{a}\nv_mov_b32 v{d}, v{c}")
    k("s_nop 1")
    k(f"v_permlane32_swap_b32 v{a}, v{b}\nv_permlane32_swap_b32 v{c}, v{d}")
    k("s_nop 1")

def treduce4x2(k, ops, As):
    A, B = Txt(), Txt()
    treduce4(A, ops[0], As[0]); treduce4(B, ops[1], As[1])
    def split(L):
        out, cur = [], []
        for x in L:
            if x.startswith("s_nop"): out.append(cur); cur = []
            else: cur.append(x)
        out.append(cur); return out
    for a, b in zip(split(A.L), split(B.L)):
        for x in a + b: k(x)
        k("s_nop 0" if len(a) >= 1 else "s_nop 1")

def red8(k, x):
    for m in ("quad_perm:[1,0,3,2]", "quad_perm:[2,3,0,1]", "row_half_mirror"):
        k(f"s_nop 1\nv_add_f32_dpp v{x}, v{x}, v{x} {m} row_mask:0xf bank_mask:0xf")

def round_bf16(k, v):
    k(f"v_cvt_pk_bf16_f32 v{v}, v{v}, v{v}\nv_and_b32 v{v}, 0xffff0000, v{v}")

S_DLA, S_DLB, S_PTMP = 71, 6, 75
def order(c, k, opt, tag, default):
    o = opt.get(tag + "_ord", default)
    c.first_flag = opt.get(tag + "_ff", "")
    c.tag = tag; c.stamp_every = opt.get(tag + "_se", 0)
    c.fine = opt.get(tag + "_fine", opt.get("fine", 0)); c.bar_frac = opt.get("bar_frac", 0.3)
    c.s_rot, c.s_rot2 = S_R8, S_R4
    if o[0] == "lead":
        c.lead_D, c.s_dl = o[1], S_DLA
    else:
        c.wins = win_mask(o[1])
        if o[2]:
            c.s_start = S_HP
            c.s_rot = c.s_rot2 = S_RB3
def common_gemm(c):
    c.srd_w, c.srd_t = SRD_W, SRD_T
    c.s_kw, c.s_kt, c.s_wbase, c.s_ptmp = S_KW, S_KT, S_WB, S_PTMP

def setup_gemm1(k, opt):
    c = Sched(); common_gemm(c)
    NS, R = opt.get("g1_NS", 4), opt.get("g1_R", 4)
    STAGE = 25344
    c.V_RD, c.V_DMA, c.V_TOK, c.LANE, c.L16, c.VT = 96, 98, 102, 104, 105, 106
    V_RD, V_DMA, V_TOK, LANE, L16, VT = c.V_RD, c.V_DMA, c.V_TOK, c.LANE, c.L16, 110
    k(f"v_lshlrev_b32 v{L16}, 4, v{LANE}")
    c.lead_D, c.s_dl = opt.get("D", 0), S_DLA
    if opt.get("uselead", 0): c.lead_init(k, S_R4, 81)
    c.lead_D = None
    order(c, k, opt, "g1", ["win", [8, 8], 0])
    k(f"s_lshr_b32 s80, s{S_WAVE}, 1\ns_and_b32 s81, s{S_WAVE}, 1")
    k(f"v_lshrrev_b32 v{VT+1}, 3, v{LANE}")
    k(f"v_and_b32 v{VT+2}, 4, v{VT+1}")
    k(f"v_bfe_u32 v{VT+3}, v{VT+1}, 1, 1\nv_or_b32 v{VT+2}, v{VT+2}, v{VT+3}")
    k(f"v_and_b32 v{VT+3}, 1, v{VT+1}\nv_lshl_or_b32 v{VT+2}, v{VT+3}, 1, v{VT+2}")
    k(f"v_mul_u32_u24 v{VT+2}, {4*6144}, v{VT+2}")
    k(f"v_and_b32 v{VT+3}, 7, v{LANE}\nv_lshl_add_u32 v{VT+2}, v{VT+3}, 4, v{VT+2}")
    k("s_lshl_b32 s82, s80, 5\ns_lshl_b32 s83, s81, 1\ns_add_u32 s82, s82, s83\ns_mul_i32 s82, s82, 6144")
    k(f"s_lshl_b32 s83, s{S_HP}, 7\ns_add_u32 s82, s82, s83")
    k(f"v_add_u32 v{V_DMA}, s82, v{VT+2}")
    k(f"v_add_u32 v{V_DMA+1}, 6144, v{V_DMA}\nv_add_u32 v{V_DMA+2}, 4096, v{V_DMA}\nv_add_u32 v{V_DMA+3}, {6144+4096}, v{V_DMA}")
    k(f"v_bfe_u32 v{VT+1}, v{LANE}, 2, 2\nv_mul_u32_u24 v{VT+1}, 1056, v{VT+1}")
    k(f"v_lshrrev_b32 v{VT+2}, 5, v{LANE}\nv_lshl_add_u32 v{VT+1}, v{VT+2}, 9, v{VT+1}")
    k(f"v_bfe_u32 v{VT+2}, v{LANE}, 4, 1\nv_lshl_add_u32 v{VT+1}, v{VT+2}, 7, v{VT+1}")
    k(f"v_and_b32 v{VT+3}, 3, v{LANE}\nv_lshl_add_u32 v{V_RD}, v{VT+3}, 3, v{VT+1}")
    k(f"v_add_u32 v{V_RD+1}, {2*STAGE}, v{V_RD}")
    k(f"s_lshl_b32 s82, s{S_RB1}, 3\ns_lshl_b32 s83, s{S_WAVE}, 1\ns_add_u32 s82, s82, s83\ns_lshl_b32 s82, s82, 15")
    k(f"v_add_u32 v{V_TOK}, s82, v{L16}\nv_add_u32 v{V_TOK+1}, 0x8000, v{V_TOK}")
    k(f"s_mul_i32 s{S_WB}, s80, 4224\ns_mul_i32 s82, s81, 2112\ns_add_u32 s{S_WB}, s{S_WB}, s82")
    c.NB, c.TB, c.KS, c.SPK, c.KT, c.NS, c.R = 12, 2, 1, 2, 16, NS, R
    c.acc = lambda b, t: vr((b * 2 + t) * 4, 4)
    c.tf = lambda slot, ks, t: 96 + (slot * 2 + t) * 4
    c.rd = lambda sl, b, sub, r: (V_RD + sl // 2, (sl % 2) * STAGE + (b // 4) * 8448 + sub * 4224 + r * 256 + (b % 4) * 32)
    c.slot_addr = lambda sl: sl * STAGE
    c.dma = [(V_DMA, 0, 0), (V_DMA + 1, 1056, 0), (V_DMA, 8448, 2048), (V_DMA + 1, 8448 + 1056, 2048), (V_DMA + 2, 16896, 0), (V_DMA + 3, 16896 + 1056, 0)]
    c.v_tok = [V_TOK, V_TOK + 1]
    c.w_stride = 64 * 6144
    c.drop = opt.get("g1_drop", ())
    c.pro_units, c.ramp_rate, c.read_margin = opt.get("g1_pro", 6), opt.get("g1_ramp", 6), opt.get("g1_rm", 6)
    std_sched(c)
    return c

def setup_gemm1s(k, opt):
    c = Sched(); common_gemm(c)
    HS = 8448; STAGE = 2 * HS
    c.V_RD, c.V_DMA, c.V_TOK, c.LANE, c.L16, c.VT = 96, 98, 102, 104, 105, 106
    V_RD, V_DMA, V_TOK, LANE, L16, VT = c.V_RD, c.V_DMA, c.V_TOK, c.LANE, c.L16, 110
    k(f"v_lshlrev_b32 v{L16}, 4, v{LANE}")
    order(c, k, opt, "g1", ["win", [8, 8], 0])
    k(f"s_lshr_b32 s80, s{S_WAVE}, 1\ns_and_b32 s81, s{S_WAVE}, 1")
    k(f"v_lshrrev_b32 v{VT+1}, 3, v{LANE}")
    k(f"v_and_b32 v{VT+2}, 4, v{VT+1}")
    k(f"v_bfe_u32 v{VT+3}, v{VT+1}, 1, 1\nv_or_b32 v{VT+2}, v{VT+2}, v{VT+3}")
    k(f"v_and_b32 v{VT+3}, 1, v{VT+1}\nv_lshl_or_b32 v{VT+2}, v{VT+3}, 1, v{VT+2}")
    k(f"v_mul_u32_u24 v{VT+2}, {4*6144}, v{VT+2}")
    k(f"v_and_b32 v{VT+3}, 7, v{LANE}\nv_lshl_add_u32 v{VT+2}, v{VT+3}, 4, v{VT+2}")
    k("s_lshl_b32 s82, s80, 5\ns_lshl_b32 s83, s81, 1\ns_add_u32 s82, s82, s83\ns_mul_i32 s82, s82, 6144")
    k(f"s_lshl_b32 s83, s{S_HP}, 7\ns_add_u32 s82, s82, s83")
    k(f"v_add_u32 v{V_DMA}, s82, v{VT+2}")
    k(f"v_add_u32 v{V_DMA+1}, 6144, v{V_DMA}\nv_add_u32 v{V_DMA+2}, 2048, v{V_DMA}\nv_add_u32 v{V_DMA+3}, {6144+2048}, v{V_DMA}")
    k(f"v_bfe_u32 v{VT+1}, v{LANE}, 2, 2\nv_mul_u32_u24 v{VT+1}, 1056, v{VT+1}")
    k(f"v_lshrrev_b32 v{VT+2}, 5, v{LANE}\nv_lshl_add_u32 v{VT+1}, v{VT+2}, 9, v{VT+1}")
    k(f"v_bfe_u32 v{VT+2}, v{LANE}, 4, 1\nv_lshl_add_u32 v{VT+1}, v{VT+2}, 7, v{VT+1}")
    k(f"v_and_b32 v{VT+3}, 3, v{LANE}\nv_lshl_add_u32 v{V_RD}, v{VT+3}, 3, v{VT+1}")
    k(f"v_add_u32 v{V_RD+1}, {2*STAGE}, v{V_RD}")
    k(f"s_lshl_b32 s82, s{S_RB1}, 3\ns_lshl_b32 s83, s{S_WAVE}, 1\ns_add_u32 s82, s82, s83\ns_lshl_b32 s82, s82, 15")
    k(f"v_add_u32 v{V_TOK}, s82, v{L16}\nv_add_u32 v{V_TOK+1}, 0x8000, v{V_TOK}")
    k(f"s_mul_i32 s{S_WB}, s80, 4224\ns_mul_i32 s82, s81, 2112\ns_add_u32 s{S_WB}, s{S_WB}, s82")
    c.NB, c.TB, c.KS, c.SPK, c.KT, c.NS, c.R = 8, 2, 1, 2, 16, 4, 32
    c.acc = lambda b, t: vr(32 + (b * 2 + t) * 4, 4)
    c.tf = lambda slot, ks, t: (slot * 2 + t) * 4
    c.rd = lambda sl, b, sub, r: (V_RD + sl // 2, (sl % 2) * STAGE + (b // 4) * HS + sub * 4224 + r * 256 + (b % 4) * 32)
    c.slot_addr = lambda sl: sl * STAGE
    c.dma = [(V_DMA + 2, 0, 0), (V_DMA + 3, 1056, 0), (V_DMA + 2, HS, 2048), (V_DMA + 3, HS + 1056, 2048)]
    c.v_tok = [V_TOK, V_TOK + 1]
    c.w_stride = 64 * 6144
    c.drop = opt.get("g1_drop", ())
    c.pro_units, c.ramp_rate, c.read_margin, c.lookahead = opt.get("g1_pro", 8), opt.get("g1_ramp", 5), 4, opt.get("g1_la", 4)
    c.wreg, c.wbase = vr, 128
    std_sched(c)
    q = Sched(); common_gemm(q)
    q.KT = 16; order(q, k, opt, "g1", ["win", [8, 8], 0]); q.tag = "g1b"; q.stamp_every = opt.get("g1b_se", 0)
    q.s_kw = 70
    QS = [67584 + i * HS for i in range(5)] + [L_R2 + i * HS for i in range(4)] + [i * HS for i in range(7)]
    q.Q1, q.Q2 = V_RD + 1, V_TOK
    def base(kt): return (q.Q1, 67584) if kt < 5 else ((q.Q2, L_R2) if kt < 9 else (V_RD, 0))
    for kt in range(16):
        sw = q.s_kw + kt % 2
        q.stage_units[kt] = [q.pos_items(sw, kt, c.w_stride) + [T(f"s_add_u32 m0, s{S_WB}, {QS[kt]}"), VM(f"buffer_load_dwordx4 v{V_DMA}, {sr(SRD_W,4)}, s{sw} offen lds", ("dma", kt))],
                             [T(f"s_add_u32 m0, s{S_WB}, {QS[kt] + 1056}"), VM(f"buffer_load_dwordx4 v{V_DMA+1}, {sr(SRD_W,4)}, s{sw} offen lds", ("dma", kt))]]
        q.stage_slot[kt] = kt
        va, b0 = base(kt)
        frags = [(va, QS[kt] - b0 + sub * 4224 + b * 32, QS[kt] - b0 + sub * 4224 + 256 + b * 32, [(vr((b * 2 + t) * 4, 4), ((kt * 2 + sub) * 2 + t) * 4) for t in range(2)]) for sub in range(2) for b in range(4)]
        q.steps.append(dict(frags=frags, stages=[kt] if kt != 9 else list(range(9, 16)), toks=[]))
    q.wf = lambda buf, j: (buf * 8 + j) * 4
    q.wreg, q.wbase = vr, 128
    q.pub0 = set(range(9)); q.pro_units = opt.get('q_pro', 2); q.ramp_rate = opt.get('q_ramp', 3); q.read_margin = 4; q.drop = c.drop
    c.q = q
    return c

def merge(a, b, ratio):
    out, b = [], list(b)
    for i, x in enumerate(a):
        out.append(x)
        if b and i % ratio == ratio - 1: out.append(b.pop(0))
    return out + b

def phase_gemm1s(k, c, opt):
    LANE, L16, VT = c.LANE, c.L16, c.VT
    q = c.q
    PHK, VV, SH = 0, 34816, 114688
    p = Txt()
    srd(p, SRD_A, P_WPHI, H * 2048)
    srd(p, SRD_B, P_WS, 2 << 20, WS_KVP)
    srd(p, SRD_C, P_WS, 128 << 10, WS_ZP)
    A_PW, A_VW, A_PR, A_VR, A_WR = 110, 111, 112, 113, 114
    p(f"s_lshr_b32 s80, s{S_WAVE}, 1\ns_and_b32 s81, s{S_WAVE}, 1")
    p(f"v_and_b32 v{VT}, 15, v{LANE}\ns_lshl_b32 s82, s{S_WAVE}, 5\nv_add_u32 v{VT}, s82, v{VT}")
    p(f"v_lshrrev_b32 v{VT+1}, 4, v{LANE}\nv_lshlrev_b32 v{VT+1}, 3, v{VT+1}")
    p(f"v_mul_u32_u24 v{A_PW}, 136, v{VT}\nv_add_u32 v{A_PW}, v{A_PW}, v{VT+1}")
    p(f"v_mul_u32_u24 v{A_VW}, 72, v{VT}\nv_add_u32 v{A_VW}, v{A_VW}, v{VT+1}")
    p(f"v_lshrrev_b32 v{VT}, 2, v{LANE}\nv_and_b32 v{VT+1}, 3, v{LANE}\nv_lshlrev_b32 v{VT+1}, 3, v{VT+1}")
    p(f"s_mul_i32 s82, s80, 17408\ns_lshl_b32 s83, s81, 6\ns_add_u32 s82, s82, s83")
    p(f"v_mul_u32_u24 v{A_PR}, 136, v{VT}\nv_add_u32 v{A_PR}, v{A_PR}, v{VT+1}\nv_add_u32 v{A_PR}, s82, v{A_PR}")
    p(f"s_mul_i32 s82, s80, 9216")
    p(f"v_mul_u32_u24 v{A_VR}, 72, v{VT}\nv_add_u32 v{A_VR}, v{A_VR}, v{VT+1}\nv_add_u32 v{A_VR}, s82, v{A_VR}")
    p(f"v_lshl_add_u32 v{A_WR}, v{VT}, 6, v{VT+1}\nv_add_u32 v{A_WR}, {L_WPH}, v{A_WR}")
    ONES, SEL = 116, 120
    for j in range(4): p(f"v_mov_b32 v{ONES+j}, 0x3f803f80")
    p(f"v_bfe_u32 v{VT}, v{LANE}, 2, 2\nv_lshrrev_b32 v{VT+1}, 4, v{LANE}")
    p(f"v_cmp_eq_u32 vcc, v{VT}, v{VT+1}")
    p(f"v_and_b32 v{VT}, 1, v{LANE}\nv_lshlrev_b32 v{VT}, 4, v{VT}\nv_mov_b32 v{VT+1}, 0x3f80\nv_lshlrev_b32 v{VT+1}, v{VT}, v{VT+1}")
    p(f"v_cndmask_b32 v{VT+1}, 0, v{VT+1}, vcc")
    p(f"v_and_b32 v{VT}, 2, v{LANE}\nv_cmp_eq_u32 vcc, 0, v{VT}")
    for j in (0, 1, 4, 5): p(f"v_mov_b32 v{SEL+j}, 0")
    p(f"v_cndmask_b32 v{SEL+2}, 0, v{VT+1}, vcc\nv_cndmask_b32 v{SEL+3}, v{VT+1}, 0, vcc")
    p(f"s_mov_b32 s94, {LOG2E!r}\ns_mov_b32 s95, {LOG2E!r}")
    p(f"s_lshl_b32 s84, s{S_HP}, 12\ns_lshl_b32 s85, s{S_WAVE}, 10\ns_add_u32 s84, s84, s85\ns_add_u32 s85, s85, {L_WPH}")
    c.pre_loop_txt = p.L
    c.late[4] = ["s_mov_b32 m0, s85", f"buffer_load_dwordx4 v{L16}, {sr(SRD_A,4)}, s84 offen lds"]
    for st_ in opt.get("cp1", [20]): c.late.setdefault(st_, []).extend(code_prefetch_txt(k.name, L16, 254, 80, junk="v31"))
    for st_ in opt.get("cp1b", []): q.late.setdefault(st_, []).extend(code_prefetch_txt(k.name, L16, 254, 80, junk="v252"))
    ts = opt.get("mt_step", None)
    if ts is not None:
        c.late.setdefault(ts, []).extend([f"v_mul_u32_u24 v254, 12288, v{LANE}", f"buffer_load_dword v31, v254, {sr(SRD_D,4)}, s{S_MB} offen"])
        if opt.get("wo_touch", 1):
            c.late[ts].extend([f"s_lshl_b32 s80, s2, 2", f"s_add_u32 s80, s80, s{S_WAVE}", "s_lshl_b32 s80, s80, 11",
                               f"v_and_b32 v254, 15, v{LANE}", "v_lshlrev_b32 v254, 7, v254", "v_add_u32 v254, s80, v254", f"global_load_dword v31, v254, s[{P_WO}:{P_WO+1}]"])
    nq = opt.get("q_in", 10)
    for j in range(nq // 2): c.late.setdefault(32 - nq // 2 + j, []).extend(q.prefetch_txt(2))
    wph_reads = lambda reg, b0: [f"ds_read_b64_tr_b16 {reg(b0+(hh*2+fb)*4+2*r,2)}, v{A_WR} offset:{hh*2048+r*1024+fb*32}" for hh in range(2) for fb in range(2) for r in range(2)]
    c.last_reads = wph_reads(vr, 0)
    c.run(k)
    k.stamp("g1 loop done")
    A = lambda b, t: (b * 2 + t) * 4
    BF, P1, P2, MX, MN, EK = 126, 142, 174, 206, 214, 222
    groups = [(hh, t) for hh in range(2) for t in range(2)]
    def fm_part1(k, seg, ph):
        for g, (hh, t) in enumerate(groups):
            for db in range(2):
                a = A(seg * 4 + hh * 2 + db, t)
                k(f"v_cvt_pk_bf16_f32 v{BF+g*4+db*2}, v{a}, v{a+1}\nv_cvt_pk_bf16_f32 v{BF+g*4+db*2+1}, v{a+2}, v{a+3}")
        k("s_nop 1")
        for g, (hh, t) in enumerate(groups):
            for fb in range(2):
                k(f"{MF} {vr(P1+g*8+fb*4,4)}, {ph(hh*2+fb)}, {vr(BF+g*4,4)}, 0")
    def fm_part2(k):
        for op3, op2, M in (("v_max3_f32", "v_max_f32", MX), ("v_min3_f32", "v_min_f32", MN)):
            for g in range(4):
                b = P1 + g * 8
                k(f"{op3} v{M+2*g}, v{b}, v{b+1}, v{b+2}\n{op3} v{M+2*g}, v{M+2*g}, v{b+3}, v{b+4}\n{op3} v{M+2*g}, v{M+2*g}, v{b+5}, v{b+6}\n{op2} v{M+2*g}, v{M+2*g}, v{b+7}")
        treduce4x2(k, ("v_max_f32", "v_min_f32"), ([MX + 2 * g for g in range(4)], [MN + 2 * g for g in range(4)]))
        for g in range(4):
            k(f"v_mul_f32 v{MX+2*g}, {-LOG2E!r}, v{MX+2*g}\nv_mul_f32 v{MN+2*g}, {LOG2E!r}, v{MN+2*g}")
    def fm_part3(k, E, gs_=range(4)):
        for g in gs_:
            for j in range(4):
                b = g * 8 + 2 * j
                k(f"v_pk_fma_f32 {vr(P2+b,2)}, {vr(P1+b,2)}, s[94:95], {vr(MN+2*g,2)} op_sel_hi:[1,1,0] neg_lo:[1,0,0] neg_hi:[1,0,0]")
                k(f"v_pk_fma_f32 {vr(P1+b,2)}, {vr(P1+b,2)}, s[94:95], {vr(MX+2*g,2)} op_sel_hi:[1,1,0]")
            for j in range(8): k(f"v_exp_f32 v{P1+g*8+j}, v{P1+g*8+j}")
            for j in range(8): k(f"v_exp_f32 v{P2+g*8+j}, v{P2+g*8+j}")
            k("s_nop 0")
            for sg, PP in enumerate((P1, P2)):
                for j in range(4): k(f"v_cvt_pk_bf16_f32 v{E+(g*2+sg)*4+j}, v{PP+g*8+2*j}, v{PP+g*8+2*j+1}")
    mark0 = len(k.L)
    k("s_waitcnt lgkmcnt(0)\ns_nop 7")
    fm_part1(k, 1, lambda i: vr(i * 4, 4))
    k("s_barrier")
    for g, (hh, t) in enumerate(groups):
        for db in range(2):
            a = A(8 + hh * 2 + db, t)
            k(f"v_cvt_pk_bf16_f32 v{a}, v{a}, v{a+1}\nv_cvt_pk_bf16_f32 v{a+1}, v{a+2}, v{a+3}")
            k(f"ds_write_b64 v{A_VW}, {vr(a,2)} offset:{VV + hh*9216 + t*16*72 + db*32}")
    fm_part2(k)
    grp = []
    for j in range(18 - q.pre_dma):
        t_ = q.prefetch_txt(1); grp.append(t_[:-1] + ["s_nop 0", t_[-1]])
    sprinkle(k, mark0, grp, skip=12)
    k.stamp("kp part2")
    fm_part3(k, EK)
    k.stamp("kp part3")
    SM = 32
    k("s_nop 1")
    for i in range(8): k(f"{MF} {vr(SM+4*i,4)}, {vr(ONES,4)}, {vr(EK+4*i,4)}, 0")
    k(f"v_add_u32 v{q.Q1}, 67584, v{c.V_RD}\nv_add_u32 v{q.Q2}, {L_R2}, v{c.V_RD}")
    k("s_nop 5")
    for i in range(8): k(f"v_rcp_f32 v{SM+4*i}, v{SM+4*i}")
    for g, (hh, t) in enumerate(groups):
        for sg, PP in enumerate((P1, P2)):
            for j in range(4):
                k(f"v_pk_mul_f32 {vr(PP+g*8+2*j,2)}, {vr(PP+g*8+2*j,2)}, {vr(SM+(g*2+sg)*4,2)} op_sel_hi:[1,0]")
            for fb in range(2):
                b = PP + g * 8 + fb * 4
                k(f"v_cvt_pk_bf16_f32 v{b}, v{b}, v{b+1}\nv_cvt_pk_bf16_f32 v{b+1}, v{b+2}, v{b+3}")
                k(f"ds_write_b64 v{A_PW}, {vr(b,2)} offset:{PHK + hh*17408 + t*16*136 + sg*64 + fb*32}")
    k.stamp("kp norm")
    k("s_waitcnt lgkmcnt(0)\ns_barrier")
    k.stamp("kp bar")
    FR = 190
    for s_ in range(4):
        for r in range(2):
            for fb in range(2): k(f"ds_read_b64_tr_b16 {vr(FR+s_*16+fb*4+2*r,2)}, v{A_PR} offset:{PHK + (32*s_+16*r)*136 + fb*32}")
            for db in range(2): k(f"ds_read_b64_tr_b16 {vr(FR+s_*16+8+db*4+2*r,2)}, v{A_VR} offset:{VV + (32*s_+16*r)*72 + db*32}")
    k(f"s_lshl_b32 s82, s{S_HP}, 2\ns_add_u32 s82, s82, s{S_WAVE}")
    k("s_lshl_b32 s86, s82, 15")
    k(f"s_lshl_b32 s84, s{S_RB1}, 10\ns_add_u32 s84, s84, s86\ns_add_u32 s85, s84, 16384")
    k("s_lshl_b32 s90, s82, 11")
    k(f"s_lshl_b32 s91, s82, {FS+4}\ns_add_u32 s91, s91, {F_KV}\ns_lshl_b32 s92, s{S_RB1}, {FS}\ns_add_u32 s92, s92, s91")
    k(f"v_and_b32 v{VT}, 15, v{LANE}\nv_cmp_eq_u32 vcc, s{S_RB1}, v{VT}")
    KV, ZZ = 64, 80
    for s_ in range(4):
        k(f"s_waitcnt lgkmcnt({min(15, 24 - 8*s_)})" if s_ < 3 else "s_waitcnt vmcnt(0) lgkmcnt(0)\ns_barrier")
        for fb in range(2):
            for db in range(2):
                d = vr(KV + (db * 2 + fb) * 4, 4)
                k(f"{MF} {d}, {vr(FR+s_*16+fb*4,4)}, {vr(FR+s_*16+8+db*4,4)}, {'0' if s_ == 0 else d}")
            d = vr(ZZ + fb * 4, 4)
            k(f"{MF} {d}, {vr(FR+s_*16+fb*4,4)}, {vr(ONES,4)}, {'0' if s_ == 0 else d}")
    k(f"v_lshlrev_b32 v{VT}, {FS}, v{VT}\nv_mov_b32 v{VT+1}, 1\nv_mov_b32 v{VT+2}, 0")
    k("s_nop 5")
    for db in range(2):
        for j in range(4): k(f"v_cvt_pk_bf16_f32 v{88+db*4+j}, v{KV+db*8+2*j}, v{KV+db*8+2*j+1}")
    k(f"buffer_store_dwordx4 {vr(88,4)}, v{L16}, {sr(SRD_B,4)}, s84 offen sc1")
    k(f"buffer_store_dwordx4 {vr(92,4)}, v{L16}, {sr(SRD_B,4)}, s85 offen sc1")
    k("s_and_saveexec_b64 s[96:97], vcc")
    k(f"buffer_store_dwordx4 {vr(ZZ,4)}, v{L16}, {sr(SRD_C,4)}, s90 offen sc1")
    k(f"buffer_store_dwordx4 {vr(ZZ+4,4)}, v{L16}, {sr(SRD_C,4)}, s90 offen offset:1024 sc1")
    k("s_mov_b64 exec, s[96:97]")
    k.stamp("kv stored")
    KV, ZZ, MW, MC = 72, 88, 32, 64
    q.late[opt.get("kv_ps", 1)] = [WVM([("pre", 0)]), f"buffer_store_dword v{VT+1}, v{VT+2}, {sr(SRD_F,4)}, s92 offen sc1"]
    gs = opt.get("kv_gs", 9)
    ld = f"buffer_load_dword v253, v{VT}, {sr(SRD_F,4)}, s91 offen sc1"
    m = Txt(); m.label = k.label
    okl = k.label("gok")
    m(f"v_cmp_eq_u32 vcc, 0, v253\ns_cmp_eq_u64 vcc, 0\ns_cbranch_scc1 {okl}")
    spin(m, [ld], [253], 0)
    m(f"{okl}:")
    q.late[gs - 2] = [VM(ld, ("kvf", 0))]
    gl = [f"buffer_load_dwordx4 {vr(ZZ,4)}, v{L16}, {sr(SRD_C,4)}, s90 offen sc1", f"buffer_load_dwordx4 {vr(ZZ+4,4)}, v{L16}, {sr(SRD_C,4)}, s90 offen offset:1024 sc1"]
    for i in range(32):
        if i % 4 == 0 and i: gl.append("s_add_u32 s86, s86, 4096")
        gl.append(f"buffer_load_dwordx4 {ar(4*i,4)}, v{L16}, {sr(SRD_B,4)}, s86 offen offset:{(i%4)*1024} sc1")
    n3 = -(-len(gl) // 3)
    q.late[gs] = [WVM([("kvf", 0)]), T("\n".join(m.L))] + gl[:n3]
    q.late[gs + 1] = gl[n3:2*n3]; q.late[gs + 2] = gl[2*n3:]
    t2 = Txt()
    g2 = setup_gemm24(t2, 2, opt, (110, 111, 112, LANE, L16, 98))
    q.late[5] = t2.L[:len(t2.L)//2]; q.late[6] = t2.L[len(t2.L)//2:] + [f"global_load_ushort v{MC+i}, v109, s[{P_C}:{P_C+1}] offset:{i*16}" for i in range(8)]
    assert gs - 2 > 6
    younger = []
    younger += g2.prefetch_txt(8)
    mbl = []
    for i in range(8): mbl += [f"buffer_load_dwordx4 {vr(MW+4*i,4)}, v115, {sr(SRD_D,4)}, s{S_MB} offen", f"s_add_u32 s{S_MB}, s{S_MB}, {8*12288}"]
    mpos = opt.get("mpos", "tail")
    if mpos == "tail": younger += mbl
    ny = sum(1 for x in younger if is_vm(x))
    rest = list(range(gs + 3, 16)); per = -(-len(younger) // len(rest))
    for j, st_ in enumerate(rest): q.late[st_] = younger[j*per:(j+1)*per]
    A_PH = 128
    q.last_reads = wph_reads(ar, A_PH)
    q.run(k)
    k.stamp("g1b done")
    srd(k, SRD_T, P_WS, S * D * 2, WS_O)
    k("s_waitcnt lgkmcnt(0)\ns_nop 3")
    qa = Txt(); fm_part1(qa, 0, lambda i: ar(A_PH + i * 4, 4))
    qa(f"s_waitcnt vmcnt({min(63, ny + 32)})")
    for sh in (8, 4, 2, 1):
        for j in range(8): qa(f"v_add_f32_dpp v{ZZ+j}, v{ZZ+j}, v{ZZ+j} row_ror:{sh} row_mask:0xf bank_mask:0xf")
    for x in qa.L: k(x)
    k.stamp("qp a")
    hs = g2.hs
    qb = Txt(); fm_part2(qb); fm_part3(qb, EK, range(2) if hs else range(4))
    red = []
    for i in range(32):
        db, pp = divmod(i, 16)
        for fb in range(2):
            d = vr(KV + (db * 2 + fb) * 4, 4)
            red.append((f"s_waitcnt vmcnt({ny + 28 - i})\n" if (i % 4 == 0 and fb == 0) else "") + f"{MF} {d}, {vr(SEL + (2 if fb == 0 else 0), 4)}, {ar(4*i,4)}, {'0' if pp == 0 else d}")
    cut = opt.get("q_cut", 150) if not hs else len(qb.L)
    for x in merge(qb.L[:cut], red, 2): k(x)
    if hs:
        k("s_nop 3")
        qb = Txt(); fm_part3(qb, EK, [2]); cut = 0
    k.stamp("qp merged")
    k(f"s_mul_i32 s82, s{S_WAVE}, 3072\ns_add_u32 s82, s82, {SH}")
    k(f"v_add_u32 v{VT+1}, s82, v{L16}\nv_add_u32 v{VT+2}, {SH}, v{L16}")
    k(f"v_and_b32 v{VT}, 1, v{LANE}\nv_cmp_eq_u32 vcc, 0, v{VT}")
    k("s_nop 4")
    for j in range(12): k(f"v_cvt_pk_bf16_f32 v{KV+j}, v{KV+2*j}, v{KV+2*j+1}")
    for j in range(4): k(f"v_cndmask_b32 v{KV+8+j}, v{ONES}, v{KV+8+j}, vcc")
    for j in range(3): k(f"ds_write_b128 v{VT+1}, {vr(KV+4*j,4)} offset:{j*1024}")
    for x in (merge(qb.L[cut:], mbl, 2) if mpos == "q" else qb.L[cut:]): k(x)
    k.stamp("qp rest")
    k("s_waitcnt lgkmcnt(0)\ns_barrier")
    k.stamp("qp bar")
    for i in range(12): k(f"ds_read_b128 {ar(4*i,4)}, v{VT+2} offset:{i*1024}")
    k(f"s_lshl_b32 s82, s{S_RB1}, 3\ns_lshl_b32 s83, s{S_WAVE}, 1\ns_add_u32 s82, s82, s83\ns_lshl_b32 s82, s82, 15")
    k(f"s_lshl_b32 s83, s{S_HP}, 11\ns_add_u32 s82, s82, s83\ns_add_u32 s83, s82, 0x8000")
    k(f"s_lshl_b32 s84, s{S_RB1}, 2\ns_add_u32 s84, s84, s{S_WAVE}\ns_lshl_b32 s84, s84, {FS+4}\ns_lshl_b32 s85, s{S_HP}, {FS}\ns_add_u32 s84, s84, s85\ns_add_u32 s84, s84, {F_O}")
    k("s_waitcnt lgkmcnt(0)")
    NB_ = 126
    def nbase(g): return NB_ + g * 24 if (not hs or g >= 2) else None
    def oregs(g):
        if hs and g < 2: return (0, 12) if g == 0 else (72, 84)
        return (NB_ + g * 24, NB_ + g * 24 + 12)
    def o_mfma(gl):
        for g in gl:
            hh, t = groups[g]
            for sg in range(2):
                for j in range(3):
                    k(f"{MF} {vr(oregs(g)[sg]+4*j,4)}, {ar(((hh*2+sg)*3+j)*4,4)}, {vr(EK+(g*2+sg)*4,4)}, 0")
    def o_fin(gl):
        for g in gl:
            hh, t = groups[g]
            n1, n2 = oregs(g)
            D1, S1, D2, S2 = n1 + 8, n1 + 9, n2 + 8, n2 + 9
            k(f"v_mul_f32 v{n1+10}, v{S1}, v{S2}")
            k(f"v_mul_f32 v{n1+10}, 0x358637bd, v{n1+10}")
            k(f"v_fmac_f32 v{n1+10}, v{D1}, v{S2}\nv_fmac_f32 v{n1+10}, v{D2}, v{S1}")
            k(f"v_rcp_f32 v{n1+10}, v{n1+10}")
            k("s_nop 0")
            k(f"v_mul_f32 v{D1}, v{S2}, v{n1+10}\nv_mul_f32 v{D2}, v{S1}, v{n1+10}")
            for j in range(4): k(f"v_pk_mul_f32 {vr(n1+2*j,2)}, {vr(n1+2*j,2)}, {vr(D1,2)} op_sel_hi:[1,0]")
            for j in range(4): k(f"v_pk_fma_f32 {vr(n1+2*j,2)}, {vr(n2+2*j,2)}, {vr(D2,2)}, {vr(n1+2*j,2)} op_sel_hi:[1,0,1]")
            for j in range(4): k(f"v_cvt_pk_bf16_f32 v{n2+j}, v{n1+2*j}, v{n1+2*j+1}")
            k(f"buffer_store_dwordx4 {vr(n2,4)}, v{L16}, {sr(SRD_T,4)}, s{82+t} offen offset:{hh*1024} sc1")
    if hs:
        o_mfma([0, 1]); k("s_nop 7"); o_fin([0, 1])
        mk0 = len(k.L)
        fm_part3(k, EK, [3])
        k("s_nop 1")
        o_mfma([2, 3]); k("s_nop 7")
        publish(k, 84, VT + 1, mk0)
        k(f"s_add_u32 s95, s84, {F_O2 - F_O}")
        o_fin([2, 3])
    else:
        o_mfma(range(4)); k("s_nop 7"); o_fin(range(4))
    k.stamp("o stored")
    mko = len(k.L)
    g2.V_X = 178
    srd(k, SRD_A, P_X, S * D * 2)
    V_XA = 100
    k(f"v_lshrrev_b32 v{VT+1}, 4, v{LANE}")
    k(f"v_and_b32 v{VT+2}, 15, v{LANE}\nv_lshlrev_b32 v{VT+2}, 11, v{VT+2}\nv_lshl_add_u32 v{V_XA}, v{VT+1}, 3, v{VT+2}")
    k(f"s_lshl_b32 s82, s{S_RB2}, 3\ns_lshl_b32 s83, s{S_WAVE}, 1\ns_add_u32 s82, s82, s83\ns_lshl_b32 s82, s82, 15\ns_lshl_b32 s83, s{S_NT}, 7\ns_add_u32 s82, s82, s83\ns_add_u32 s83, s82, 32768")
    for t in range(2):
        for b in range(4):
            k(f"buffer_load_dwordx2 {vr(g2.V_X+(t*4+b)*2,2)}, v{V_XA}, {sr(SRD_A,4)}, s{82+t} offen offset:{b*32}")
    k.g3 = setup_gemm3_early(k, opt, LANE, 20)
    if not hs: publish(k, 84, VT + 1, mko)
    k.stamp("o published")
    mark1 = len(k.L)
    CU, AU, TT = 0, 16, 24
    for i in range(8): k(f"v_mov_b32 v{CU+2*i}, v{MC+i}")
    silu_block(k, [CU + 2 * i for i in range(8)])
    for i in range(8):
        for d in range(4):
            k(f"v_lshlrev_b32 v{TT}, 16, v{MW+4*i+d}\nv_and_b32 v{TT+1}, 0xffff0000, v{MW+4*i+d}")
            if i == 0: k(f"v_pk_mul_f32 {vr(AU+2*d,2)}, {vr(TT,2)}, {vr(CU,2)} op_sel_hi:[1,0]")
            else: k(f"v_pk_fma_f32 {vr(AU+2*d,2)}, {vr(TT,2)}, {vr(CU+2*i,2)}, {vr(AU+2*d,2)} op_sel_hi:[1,0,1]")
    k("s_nop 1")
    for j in range(4): k(f"v_permlane32_swap_b32 v{AU+j}, v{AU+j+4}")
    k("s_nop 1")
    for j in range(4): k(f"v_add_f32 v{AU+j}, v{AU+j}, v{AU+j+4}")
    k("s_nop 1")
    for j in range(2): k(f"v_permlane16_swap_b32 v{AU+j}, v{AU+j+2}")
    k("s_nop 1")
    for j in range(2): k(f"v_add_f32 v{AU+j}, v{AU+j}, v{AU+j+2}")
    k("s_nop 1")
    for j in range(2): k(f"v_add_f32_dpp v{AU+j}, v{AU+j}, v{AU+j} row_ror:8 row_mask:0xf bank_mask:0xf")
    sprinkle(k, mark1, g3_early_units(k.g3, opt.get("g3_e2", 7), 254), skip=0)
    k(f"v_and_b32 v{TT}, 7, v{LANE}\nv_lshlrev_b32 v{TT}, 5, v{TT}\nv_lshrrev_b32 v{TT+1}, 5, v{LANE}\nv_lshl_add_u32 v{TT}, v{TT+1}, 4, v{TT}")
    k(f"v_bfe_u32 v{TT+1}, v{LANE}, 4, 1\nv_lshl_add_u32 v{TT}, v{TT+1}, 3, v{TT}")
    srd(k, SRD_D, P_WS, MP_BYTES, WS_MODP)
    k(f"v_or_b32 v{AU}, 1, v{AU}\nv_or_b32 v{AU+1}, 1, v{AU+1}")
    k(f"buffer_store_dwordx2 {vr(AU,2)}, v{TT}, {sr(SRD_D,4)}, s{S_MO} offen sc1")
    return g2

A_UT = 176
def silu_block(k, regs):
    for v in regs: k(f"v_lshlrev_b32 v{v}, 16, v{v}\nv_mul_f32 v{v+1}, {-LOG2E!r}, v{v}")
    for v in regs: k(f"v_exp_f32 v{v+1}, v{v+1}")
    k("s_nop 0")
    for v in regs: k(f"v_add_f32 v{v+1}, 1.0, v{v+1}")
    for v in regs: k(f"v_rcp_f32 v{v+1}, v{v+1}")
    k("s_nop 0")
    for v in regs:
        k(f"v_mul_f32 v{v}, v{v}, v{v+1}"); round_bf16(k, v)

def modb_loads(s_off, v_w, v_c):
    out = []
    for i in range(8):
        out.append([f"buffer_load_dwordx4 {ar(A_UT+4*i,4)}, v{v_w}, {sr(SRD_D,4)}, s{s_off} offen", f"s_add_u32 s{s_off}, s{s_off}, {8*12288}"])
    return out

def red32(k, x, t):
    red8(k, x)
    k(f"s_nop 1\nv_add_f32_dpp v{x}, v{x}, v{x} row_mirror row_mask:0xf bank_mask:0xf")
    k(f"v_mov_b32 v{t}, v{x}\ns_nop 1\nv_permlane16_swap_b32 v{x}, v{t}\ns_nop 1\nv_add_f32 v{x}, v{x}, v{t}")

def ids(k):
    k("v_lshrrev_b32 v1, 6, v0")
    k(f"s_and_b32 s{S_XCD}, s2, 7\ns_lshr_b32 s{S_IDX}, s2, 3")
    k(f"v_readfirstlane_b32 s{S_WAVE}, v1")
    k(f"s_bfe_u32 s{S_RB1}, s{S_XCD}, 0x10001\ns_lshl_b32 s{S_RB1}, s{S_RB1}, 3\ns_lshr_b32 s80, s{S_IDX}, 2\ns_add_u32 s{S_RB1}, s{S_RB1}, s80")
    k(f"s_lshr_b32 s{S_HP}, s{S_XCD}, 2\ns_lshl_b32 s{S_HP}, s{S_HP}, 2\ns_and_b32 s80, s{S_IDX}, 3\ns_add_u32 s{S_HP}, s{S_HP}, s80\ns_lshl_b32 s{S_HP}, s{S_HP}, 1\ns_and_b32 s80, s{S_XCD}, 1\ns_add_u32 s{S_HP}, s{S_HP}, s80")

def build_k0(instr=False, opt=None, name="mod_kernel", mega="mega_kernel"):
    opt = opt or {}
    k = Kernel(name, 256, 256, 4096, vgpr=128, sgpr=102)
    k.instr = instr; k.s_wave = S_WAVE
    stamp(k, 0)
    end = k.label("end")
    k(f"s_cmp_ge_u32 s2, 256\ns_cbranch_scc1 {end}")
    k("s_load_dwordx4 s[12:15], s[0:1], 64")
    k("s_load_dwordx8 s[4:11], s[0:1], 0")
    k("s_load_dwordx2 s[28:29], s[0:1], 96")
    ids(k)
    LANE, T, V_W = 104, 48, 105
    WA, CA, XR, XF, A0, SU = 64, 80, 84, 0, 32, 100
    k(f"v_and_b32 v{LANE}, 63, v0")
    k(f"v_lshrrev_b32 v{T+1}, 3, v{LANE}\nv_and_b32 v{T+2}, 7, v{LANE}")
    k(f"v_mul_u32_u24 v{V_W}, 12288, v{T+1}\nv_lshl_add_u32 v{V_W}, v{T+2}, 4, v{V_W}")
    k(f"s_lshl_b32 s64, s{S_RB1}, 6\ns_lshl_b32 s65, s{S_WAVE}, 4\ns_add_u32 s64, s64, s65")
    k(f"v_add_u32 v{T+3}, s64, v{T+1}\nv_lshlrev_b32 v{T+3}, 1, v{T+3}")
    k(f"s_mul_i32 s67, s64, 12288\ns_lshl_b32 s66, s{S_HP}, 7\ns_add_u32 s67, s67, s66\ns_add_u32 s68, s67, {8*12288}")
    k(f"v_lshrrev_b32 v{T+4}, 5, v{LANE}\nv_lshlrev_b32 v{T+4}, 11, v{T+4}\nv_and_b32 v{T+5}, 31, v{LANE}\nv_lshl_add_u32 v{T+4}, v{T+5}, 4, v{T+4}")
    k(f"s_lshl_b32 s69, s{S_RB1}, 4\ns_add_u32 s69, s69, s{S_HP}")
    k(f"s_lshl_b32 s70, s69, 14\ns_lshl_b32 s71, s{S_WAVE}, 12\ns_add_u32 s70, s70, s71")
    k("s_waitcnt lgkmcnt(0)")
    srd(k, SRD_D, 14, D * 6 * D * 2)
    srd(k, SRD_A, P_X, S * D * 2)
    for i in range(2): k(f"global_load_ushort v{CA+2*i}, v{T+3}, s[12:13] offset:{i*16}")
    for i in range(2):
        for v in range(2): k(f"buffer_load_dwordx4 {vr(WA+(i*2+v)*4,4)}, v{V_W}, {sr(SRD_D,4)}, s{67+i} offen offset:{v*2048}")
    for i in range(4): k(f"buffer_load_dwordx4 {vr(XR+4*i,4)}, v{T+4}, {sr(SRD_A,4)}, s70 offen offset:{i*512}")
    stamp(k, 1)
    lab = k.label("pc")
    k(f"s_getpc_b64 s[60:61]\n{lab}:")
    k(f"s_add_u32 s60, s60, {mega}-{lab}\ns_addc_u32 s61, s61, 0")
    k(f"v_lshlrev_b32 v{T+6}, 4, v{LANE}")
    for x in code_prefetch_txt(mega, T + 6, T + 7, 62, s_pc=60, junk="v110"): k(x)
    srd(k, SRD_B, P_WS, MP_BYTES, WS_MODP)
    srd(k, SRD_F, P_WS, FLAG_BYTES, WS_FLAG)
    srd(k, SRD_C, P_WS, S * 128, WS_STAT)
    k(f"v_mov_b32 v{T+8}, 0\nv_lshlrev_b32 v{T+9}, 2, v0\ns_lshl_b32 s62, s2, 10\ns_add_u32 s63, s62, {MP_B}")
    k(f"v_lshlrev_b32 v{T+10}, {FS}, v0\ns_lshl_b32 s66, s2, {FS+8}")
    k(f"buffer_store_dword v{T+8}, v{T+10}, {sr(SRD_F,4)}, s66 offen")
    k(f"buffer_store_dword v{T+8}, v{T+9}, {sr(SRD_C,4)}, s62 offen")
    k(f"buffer_store_dword v{T+8}, v{T+9}, {sr(SRD_B,4)}, s63 offen")
    young = 4
    k(f"s_lshl_b32 s62, s2, 2\ns_add_u32 s62, s62, s{S_WAVE}")
    for ptr, per, tag in ((P_WQKV, 6, "t_wq"), (P_WO, 2, "t_wo"), (14, 12, "t_wm")):
        if not opt.get(tag, 1): continue
        k(f"s_mul_i32 s63, s62, {per*1024}\ns_add_u32 s63, s63, 384")
        k(f"v_min_u32 v{T+14}, {per-1}, v{LANE}\nv_lshlrev_b32 v{T+14}, 10, v{T+14}\nv_add_u32 v{T+14}, s63, v{T+14}")
        k(f"global_load_dword v110, v{T+14}, s[{ptr}:{ptr+1}]")
        young += 1
    k(f"s_waitcnt vmcnt({young + 8})")
    silu_block(k, [CA, CA + 2])
    k(f"s_waitcnt vmcnt({young + 4})")
    for i in range(2):
        for v in range(2):
            for d in range(4):
                w_ = WA + (i * 2 + v) * 4 + d
                k(f"v_lshlrev_b32 v{T+10}, 16, v{w_}\nv_and_b32 v{T+11}, 0xffff0000, v{w_}")
                if i == 0: k(f"v_pk_mul_f32 {vr(A0+v*8+2*d,2)}, {vr(T+10,2)}, {vr(CA,2)} op_sel_hi:[1,0]")
                else: k(f"v_pk_fma_f32 {vr(A0+v*8+2*d,2)}, {vr(T+10,2)}, {vr(CA+2,2)}, {vr(A0+v*8+2*d,2)} op_sel_hi:[1,0,1]")
    k("s_nop 1")
    for j in range(8): k(f"v_permlane32_swap_b32 v{A0+j}, v{A0+8+j}")
    k("s_nop 1")
    for j in range(8): k(f"v_add_f32 v{A0+j}, v{A0+j}, v{A0+8+j}")
    k("s_nop 1")
    for j in range(4): k(f"v_permlane16_swap_b32 v{A0+j}, v{A0+4+j}")
    k("s_nop 1")
    for j in range(4): k(f"v_add_f32 v{A0+j}, v{A0+j}, v{A0+4+j}")
    k("s_nop 1")
    for j in range(4): k(f"v_add_f32_dpp v{A0+j}, v{A0+j}, v{A0+j} row_ror:8 row_mask:0xf bank_mask:0xf")
    k(f"v_lshrrev_b32 v{T+12}, 5, v{LANE}\nv_lshlrev_b32 v{T+13}, 8, v{T+12}\nv_lshl_add_u32 v{T+13}, v{T+2}, 5, v{T+13}")
    k(f"v_bfe_u32 v{T+10}, v{LANE}, 4, 1\nv_lshl_add_u32 v{T+13}, v{T+10}, 4, v{T+13}\ns_lshl_b32 s62, s{S_WAVE}, 9\nv_add_u32 v{T+13}, s62, v{T+13}")
    k(f"ds_write_b128 v{T+13}, {vr(A0,4)}")
    k("s_waitcnt lgkmcnt(0)\ns_barrier")
    nw0 = k.label("notw0")
    k(f"s_cmp_lg_u32 s{S_WAVE}, 0\ns_cbranch_scc1 {nw0}")
    k(f"v_lshlrev_b32 v{T+13}, 3, v{LANE}")
    for w in range(4): k(f"ds_read_b64 {vr(A0+2*w,2)}, v{T+13} offset:{w*512}")
    k(f"s_lshl_b32 s62, s{S_HP}, 13\ns_lshl_b32 s63, s{S_RB1}, 9\ns_add_u32 s63, s63, s62")
    k("s_waitcnt lgkmcnt(0)")
    k(f"v_pk_add_f32 {vr(A0,2)}, {vr(A0,2)}, {vr(A0+2,2)}\nv_pk_add_f32 {vr(A0+4,2)}, {vr(A0+4,2)}, {vr(A0+6,2)}\nv_pk_add_f32 {vr(A0,2)}, {vr(A0,2)}, {vr(A0+4,2)}")
    k(f"buffer_store_dwordx2 {vr(A0,2)}, v{T+13}, {sr(SRD_B,4)}, s63 offen")
    k(f"{nw0}:")
    stamp(k, 2)
    k(f"s_waitcnt vmcnt({young})")
    for d in range(16): k(f"v_lshlrev_b32 v{XF+2*d}, 16, v{XR+d}\nv_and_b32 v{XF+2*d+1}, 0xffff0000, v{XR+d}")
    k(f"v_pk_add_f32 {vr(SU,2)}, {vr(XF,2)}, {vr(XF+2,2)}")
    for d in range(2, 16): k(f"v_pk_add_f32 {vr(SU,2)}, {vr(SU,2)}, {vr(XF+2*d,2)}")
    k(f"v_add_f32 v{SU}, v{SU}, v{SU+1}")
    red32(k, SU, SU + 1)
    k(f"v_mul_f32 v{SU+2}, {-1.0/1024!r}, v{SU}")
    k(f"v_mov_b32 v{SU}, 0\nv_mov_b32 v{SU+1}, 0")
    for d in range(16):
        k(f"v_pk_add_f32 {vr(XF+2*d,2)}, {vr(XF+2*d,2)}, {vr(SU+2,2)} op_sel_hi:[1,0]")
        k(f"v_pk_fma_f32 {vr(SU,2)}, {vr(XF+2*d,2)}, {vr(XF+2*d,2)}, {vr(SU,2)}")
    k(f"v_add_f32 v{SU}, v{SU}, v{SU+1}")
    red32(k, SU, SU + 1)
    k(f"v_mov_b32 v{SU+1}, 0x3727c5ac\nv_fmac_f32 v{SU+1}, {1.0/1024!r}, v{SU}\nv_rsq_f32 v{SU+3}, v{SU+1}")
    k(f"s_lshl_b32 s62, s69, 6\ns_lshl_b32 s63, s{S_WAVE}, 4\ns_add_u32 s62, s62, s63\ns_add_u32 s62, s62, {MP_RS}\nv_lshlrev_b32 v{T+12}, 3, v{T+12}")
    k(f"buffer_store_dwordx2 {vr(SU+2,2)}, v{T+12}, {sr(SRD_B,4)}, s62 offen")
    stamp(k, 3)
    if instr: k("s_waitcnt vmcnt(0)")
    stamp(k, 4)
    stamp_flush(k, 28, 5, 4, slot=1)
    k(f"{end}:\ns_endpgm")
    return k

def phase_front_fused(k, opt, name):
    LANE, L16 = 104, 105
    T = 48
    V_W, V_C = 115, 109
    WA, CA, XR, XT_, XF, A0, SU, G, M, RS = 64, 80, 128, 144, 0, 200, 216, 160, 32, 84
    HL = 2 * 25344
    k(f"v_lshrrev_b32 v{T+1}, 3, v{LANE}\nv_and_b32 v{T+2}, 7, v{LANE}")
    k(f"v_mul_u32_u24 v{V_W}, 12288, v{T+1}\nv_lshl_add_u32 v{V_W}, v{T+2}, 4, v{V_W}")
    k(f"s_lshl_b32 s84, s{S_RB1}, 6")
    k(f"v_add_u32 v{V_C}, s84, v{T+1}\nv_lshlrev_b32 v{V_C}, 1, v{V_C}")
    k(f"s_lshl_b32 s85, s{S_WAVE}, 5\nv_add_u32 v{T+3}, s85, v{V_C}")
    k(f"s_mul_i32 s86, s84, 12288\ns_lshl_b32 s87, s{S_HP}, 7\ns_add_u32 s86, s86, s87")
    k(f"s_mul_i32 s87, s{S_WAVE}, {16*12288}\ns_add_u32 s87, s87, s86\ns_add_u32 s88, s87, {8*12288}")
    k(f"v_lshrrev_b32 v{T+4}, 5, v{LANE}\nv_lshlrev_b32 v{T+4}, 11, v{T+4}\nv_and_b32 v{T+5}, 31, v{LANE}\nv_lshl_add_u32 v{T+4}, v{T+5}, 4, v{T+4}")
    k(f"s_lshl_b32 s89, s{S_RB1}, 4\ns_add_u32 s89, s89, s{S_HP}")
    k(f"s_lshl_b32 s90, s89, 14\ns_lshl_b32 s91, s{S_WAVE}, 12\ns_add_u32 s90, s90, s91")
    k(f"v_mov_b32 v{T+8}, 0\nv_mov_b32 v{T+9}, 0\nv_mov_b32 v{T+10}, 0\nv_mov_b32 v{T+11}, 0\nv_mov_b32 v{T+12}, 1")
    k(f"v_lshlrev_b32 v{T+7}, {FS}, v{LANE}")
    k(f"s_lshl_b32 s93, s2, {FS+6}\ns_add_u32 s93, s93, {F_S0}\ns_cmp_lt_u32 s2, 4\ns_cselect_b32 s93, s93, 0x7ff00000\ns_cmp_eq_u32 s{S_WAVE}, 3\ns_cselect_b32 s93, s93, 0x7ff00000")
    k("s_waitcnt lgkmcnt(0)")
    srd(k, SRD_F, P_WS, FLAG_BYTES, WS_FLAG)
    k(f"buffer_store_dword v{T+8}, v{T+7}, {sr(SRD_F,4)}, s93 offen sc1")
    k(f"s_mov_b32 s{SRD_T}, s{P_DBG}\ns_mov_b32 s{SRD_T+1}, s{P_DBG+1}\ns_mov_b32 s{SRD_T+2}, 256\ns_mov_b32 s{SRD_T+3}, 0x20000")
    k("s_mov_b32 s95, s93")
    srd(k, SRD_D, P_WMOD, D * 6 * D * 2)
    srd(k, SRD_A, P_X, S * D * 2)
    for i in range(2): k(f"global_load_ushort v{CA+2*i}, v{T+3}, s[{P_C}:{P_C+1}] offset:{i*16}")
    for i in range(2):
        for v in range(2): k(f"buffer_load_dwordx4 {vr(WA+(i*2+v)*4,4)}, v{V_W}, {sr(SRD_D,4)}, s{87+i} offen offset:{v*2048}")
    for i in range(4): k(f"buffer_load_dwordx4 {vr(XR+4*i,4)}, v{T+4}, {sr(SRD_A,4)}, s90 offen offset:{i*512}")
    k.stamp("loads issued")
    srd(k, SRD_B, P_WS, MP_BYTES, WS_MODP)
    srd(k, SRD_C, P_WS, S * 128, WS_STAT)
    w3, jn = k.label("w3"), k.label("join")
    k(f"s_cmp_eq_u32 s{S_WAVE}, 3\ns_cbranch_scc1 {w3}")
    k(f"s_lshl_b32 s92, s2, 1\ns_add_u32 s92, s92, s{S_WAVE}\ns_sub_u32 s92, s92, 1")
    nt_ = k.label("notouch")
    k("s_mov_b32 s93, 0x7ff00000")
    for i in range(2): k(f"buffer_load_dword a233, v{V_W}, {sr(SRD_D,4)}, s93 offen")
    k(f"s_cmp_eq_u32 s{S_WAVE}, 0\ns_cbranch_scc1 {nt_}")
    for ptr, per in ((P_WQKV, 12), (P_WO, 4), (P_WMOD, 24)):
        k(f"s_mul_i32 s93, s92, {per}\nv_min_u32 v{T+14}, {per-1}, v{LANE}\nv_add_u32 v{T+14}, s93, v{T+14}")
        k(f"v_lshlrev_b32 v{T+14}, 10, v{T+14}")
        k(f"global_load_dword a232, v{T+14}, s[{ptr}:{ptr+1}] offset:384")
    k(f"s_branch {jn}")
    k(f"{nt_}:")
    for i in range(3): k(f"buffer_load_dword a233, v{V_W}, {sr(SRD_D,4)}, s93 offen")
    k(f"s_branch {jn}")
    k(f"{w3}:")
    nb = k.label("nboot")
    k(f"s_cmp_eq_u32 s95, 0x7ff00000\ns_cbranch_scc1 {nb}")
    k("s_lshl_b32 s93, s2, 2\ns_waitcnt vmcnt(10)")
    k(f"buffer_store_dword v{T+12}, v{T+8}, {sr(SRD_T,4)}, s93 offen sc1")
    k(f"{nb}:")
    k(f"v_and_b32 v{T+14}, 3, v{LANE}\nv_lshlrev_b32 v{T+14}, 4, v{T+14}")
    k(f"s_lshl_b32 s93, s{S_RB1}, 6\ns_add_u32 s93, s93, s{S_HP}\nv_add_u32 v{T+15}, s93, v{T+14}")
    k(f"s_lshl_b32 s93, s{S_HP}, 6\ns_add_u32 s93, s93, s{S_RB1}\ns_add_u32 s93, s93, 1024\nv_add_u32 v{T+14}, s93, v{T+14}")
    k(f"v_cmp_gt_u32 vcc, 4, v{LANE}\ns_mul_i32 s93, s2, 24\ns_add_u32 s93, s93, 2040")
    k(f"v_cndmask_b32 v{T+14}, v{T+14}, v{T+15}, vcc\nv_add_u32 v{T+15}, s93, v{LANE}")
    k(f"v_cmp_gt_u32 vcc, 8, v{LANE}\ns_nop 1\nv_cndmask_b32 v{T+14}, v{T+15}, v{T+14}, vcc")
    k(f"v_cmp_gt_u32 vcc, 32, v{LANE}\nv_mov_b32 v{T+15}, 0x100000\ns_nop 0\nv_cndmask_b32 v{T+14}, v{T+15}, v{T+14}, vcc")
    k(f"v_lshlrev_b32 v{T+14}, {FS}, v{T+14}")
    k(f"buffer_store_dword v{T+8}, v{T+14}, {sr(SRD_F,4)}, 0 offen sc1")
    k("s_mov_b32 s93, 0x7ff00000")
    for i in range(2): k(f"buffer_load_dword a233, v{V_W}, {sr(SRD_D,4)}, s93 offen")
    k("s_lshl_b32 s93, s2, 10")
    k(f"buffer_store_dwordx4 {vr(T+8,4)}, v{L16}, {sr(SRD_C,4)}, s93 offen sc1")
    k(f"s_add_u32 s93, s93, {MP_B}")
    k(f"buffer_store_dwordx4 {vr(T+8,4)}, v{L16}, {sr(SRD_B,4)}, s93 offen sc1")
    k(f"{jn}:")
    k(f"v_lshlrev_b32 v{T+5}, 11, v{T+1}\nv_lshl_add_u32 v{T+5}, v{T+2}, 4, v{T+5}")
    k(f"s_lshl_b32 s91, s{S_RB1}, 18\ns_lshl_b32 s92, s{S_WAVE}, 16\ns_add_u32 s91, s91, s92\ns_lshl_b32 s92, s{S_HP}, 7\ns_add_u32 s91, s91, s92")
    for i in range(4):
        k(f"buffer_load_dwordx4 {vr(XT_+4*i,4)}, v{T+5}, {sr(SRD_A,4)}, s91 offen")
        if i < 3: k("s_add_u32 s91, s91, 16384")
    k(f"s_lshl_b32 s94, s{S_WAVE}, 11\ns_add_u32 s{S_MB}, s86, s94\ns_add_u32 s{S_MB}, s{S_MB}, 4096")
    k(f"s_lshl_b32 s94, s{S_WAVE}, 16\ns_lshl_b32 s95, s{S_HP}, 12\ns_add_u32 s94, s94, s95\ns_lshl_b32 s95, s{S_RB1}, 8\ns_add_u32 s94, s94, s95\ns_add_u32 s{S_MO}, s94, {MP_B}")
    young = 9
    k.stamp("all issued")
    k(f"s_waitcnt vmcnt({young + 8})")
    k.stamp("c ready")
    silu_block(k, [CA, CA + 2])
    k(f"s_waitcnt vmcnt({young + 4})")
    k.stamp("w ready")
    for i in range(2):
        for v in range(2):
            for d in range(4):
                w_ = WA + (i * 2 + v) * 4 + d
                k(f"v_lshlrev_b32 v{T+14}, 16, v{w_}\nv_and_b32 v{T+15}, 0xffff0000, v{w_}")
                if i == 0: k(f"v_pk_mul_f32 {vr(A0+v*8+2*d,2)}, {vr(T+14,2)}, {vr(CA,2)} op_sel_hi:[1,0]")
                else: k(f"v_pk_fma_f32 {vr(A0+v*8+2*d,2)}, {vr(T+14,2)}, {vr(CA+2,2)}, {vr(A0+v*8+2*d,2)} op_sel_hi:[1,0,1]")
    k("s_nop 1")
    for j in range(8): k(f"v_permlane32_swap_b32 v{A0+j}, v{A0+8+j}")
    k("s_nop 1")
    for j in range(8): k(f"v_add_f32 v{A0+j}, v{A0+j}, v{A0+8+j}")
    k("s_nop 1")
    for j in range(4): k(f"v_permlane16_swap_b32 v{A0+j}, v{A0+4+j}")
    k("s_nop 1")
    for j in range(4): k(f"v_add_f32 v{A0+j}, v{A0+j}, v{A0+4+j}")
    k("s_nop 1")
    for j in range(4): k(f"v_add_f32_dpp v{A0+j}, v{A0+j}, v{A0+j} row_ror:8 row_mask:0xf bank_mask:0xf")
    k(f"v_lshrrev_b32 v{T+13}, 5, v{LANE}\nv_lshlrev_b32 v{T+14}, 8, v{T+13}\nv_lshl_add_u32 v{T+14}, v{T+2}, 5, v{T+14}")
    k(f"v_bfe_u32 v{T+15}, v{LANE}, 4, 1\nv_lshl_add_u32 v{T+14}, v{T+15}, 4, v{T+14}\ns_lshl_b32 s94, s{S_WAVE}, 9\nv_add_u32 v{T+14}, s94, v{T+14}")
    k(f"ds_write_b128 v{T+14}, {vr(A0,4)} offset:{HL}")
    k(f"s_waitcnt vmcnt({young})")
    for d in range(16): k(f"v_lshlrev_b32 v{XF+2*d}, 16, v{XR+d}\nv_and_b32 v{XF+2*d+1}, 0xffff0000, v{XR+d}")
    k(f"v_pk_add_f32 {vr(SU,2)}, {vr(XF,2)}, {vr(XF+2,2)}")
    for d in range(2, 16): k(f"v_pk_add_f32 {vr(SU,2)}, {vr(SU,2)}, {vr(XF+2*d,2)}")
    k(f"v_add_f32 v{SU}, v{SU}, v{SU+1}")
    red32(k, SU, SU + 1)
    k(f"v_mul_f32 v{SU+2}, {-1.0/1024!r}, v{SU}")
    k(f"v_mov_b32 v{SU}, 0\nv_mov_b32 v{SU+1}, 0")
    for d in range(16):
        k(f"v_pk_add_f32 {vr(XF+2*d,2)}, {vr(XF+2*d,2)}, {vr(SU+2,2)} op_sel_hi:[1,0]")
        k(f"v_pk_fma_f32 {vr(SU,2)}, {vr(XF+2*d,2)}, {vr(XF+2*d,2)}, {vr(SU,2)}")
    k(f"v_add_f32 v{SU}, v{SU}, v{SU+1}")
    red32(k, SU, SU + 1)
    k(f"v_mov_b32 v{SU+1}, 0x3727c5ac\nv_fmac_f32 v{SU+1}, {1.0/1024!r}, v{SU}\nv_rsq_f32 v{SU+3}, v{SU+1}")
    k(f"s_lshl_b32 s94, s{S_WAVE}, 4\nv_lshlrev_b32 v{T+13}, 3, v{T+13}\nv_add_u32 v{T+13}, s94, v{T+13}")
    k(f"ds_write_b64 v{T+13}, {vr(SU+2,2)} offset:{HL+2048}")
    n3 = k.label("not3")
    k(f"s_cmp_lg_u32 s{S_WAVE}, 3\ns_cbranch_scc1 {n3}")
    k(f"v_and_b32 v{T+14}, 3, v{LANE}\nv_lshlrev_b32 v{T+14}, 2, v{T+14}")
    spin(k, [f"buffer_load_dword v{T+13}, v{T+14}, {sr(SRD_T,4)}, 0 offen sc1"], [T + 13], 0)
    k(f"{n3}:")
    k("s_waitcnt lgkmcnt(0)\ns_barrier")
    k.stamp("partials")
    nw0 = k.label("notw0")
    k(f"v_lshlrev_b32 v{T+6}, 3, v{LANE}")
    k(f"s_cmp_lg_u32 s{S_WAVE}, 0\ns_cbranch_scc1 {nw0}")
    for w in range(4): k(f"ds_read_b64 {vr(A0+2*w,2)}, v{T+6} offset:{HL+w*512}")
    k(f"v_and_b32 v{T+9}, 0x38, v{T+6}")
    k(f"ds_read_b64 {vr(A0+8,2)}, v{T+9} offset:{HL+2048}")
    k(f"s_lshl_b32 s94, s{S_HP}, 13\ns_lshl_b32 s95, s{S_RB1}, 9\ns_add_u32 s95, s95, s94")
    k(f"s_lshl_b32 s90, s89, 6\ns_add_u32 s90, s90, {MP_RS}")
    k("s_waitcnt lgkmcnt(0)")
    k(f"v_pk_add_f32 {vr(A0,2)}, {vr(A0,2)}, {vr(A0+2,2)}\nv_pk_add_f32 {vr(A0+4,2)}, {vr(A0+4,2)}, {vr(A0+6,2)}\nv_pk_add_f32 {vr(A0,2)}, {vr(A0,2)}, {vr(A0+4,2)}")
    k(f"buffer_store_dwordx2 {vr(A0,2)}, v{T+6}, {sr(SRD_B,4)}, s95 offen sc1")
    k(f"buffer_store_dwordx2 {vr(A0+8,2)}, v{T+9}, {sr(SRD_B,4)}, s90 offen sc1")
    k(f"s_lshl_b32 s90, s89, {FS}\ns_add_u32 s90, s90, {F_S0}")
    k("s_waitcnt vmcnt(0)")
    k(f"buffer_store_dword v{T+12}, v{T+8}, {sr(SRD_F,4)}, s90 offen sc1")
    if opt.get("modb_front", 0):
        sk_ = k.label("skmf")
        k(f"s_branch {sk_}")
        k(f"{nw0}:")
        k("s_waitcnt vmcnt(0)")
        for g in modb_loads(S_MB, V_W, V_C):
            for x in g: k(x)
        k(f"s_mov_b32 s{S_MB}, 0x7ff00000")
        k(f"{sk_}:")
    else:
        k(f"{nw0}:")
    k.stamp("s0 published")
    split = opt.get("split", 1)
    g1 = (setup_gemm1s if split else setup_gemm1)(k, opt)
    srd(k, SRD_W, P_WQKV, D * 3 * D * 2)
    if not opt.get("modb_front", 0):
        k("s_waitcnt vmcnt(1)")
        k(f"s_cmp_eq_u32 s{S_WAVE}, 0\ns_cbranch_scc1 1\ns_waitcnt vmcnt(0)")
    for d in range(16): k(f"v_lshlrev_b32 v{XF+2*d}, 16, v{XT_+d}\nv_and_b32 v{XF+2*d+1}, 0xffff0000, v{XT_+d}")
    VS = T + 4
    k(f"v_lshrrev_b32 v{VS}, 2, v{T+2}\nv_lshlrev_b32 v{VS}, 10, v{VS}")
    k(f"v_and_b32 v{T+3}, 3, v{T+2}\nv_lshl_add_u32 v{VS}, v{T+3}, 8, v{VS}\nv_lshl_add_u32 v{VS}, v{T+1}, 4, v{VS}")
    k(f"s_lshl_b32 s86, s{S_RB1}, 3\ns_lshl_b32 s87, s{S_WAVE}, 1\ns_add_u32 s86, s86, s87\ns_lshl_b32 s86, s86, 15\ns_lshl_b32 s87, s{S_HP}, 11\ns_add_u32 s86, s86, s87\ns_add_u32 s87, s86, 0x8000")
    k(f"s_lshl_b32 s88, s{S_RB1}, 2\ns_add_u32 s88, s88, s{S_WAVE}\ns_lshl_b32 s88, s88, {FS+4}\ns_add_u32 s88, s88, {F_H}\ns_lshl_b32 s89, s{S_HP}, {FS}\ns_add_u32 s89, s89, s88")
    k(f"v_lshlrev_b32 v{T+5}, 5, v{T+2}")
    k(f"s_lshl_b32 s92, s{S_WAVE}, 8\nv_lshlrev_b32 v{T+7}, 3, v{T+1}\nv_add_u32 v{T+7}, s92, v{T+7}")
    nw1 = k.label("notw0b")
    k(f"s_cmp_lg_u32 s{S_WAVE}, 0\ns_cbranch_scc1 {nw1}")
    k(f"v_and_b32 v{T+9}, 15, v{LANE}\ns_lshl_b32 s92, s{S_RB1}, 4\nv_add_u32 v{T+10}, s92, v{T+9}\nv_lshlrev_b32 v{T+9}, 4, v{T+9}\nv_add_u32 v{T+9}, s{S_HP}, v{T+9}")
    k(f"v_and_b32 v{T+11}, 16, v{LANE}\nv_cmp_eq_u32 vcc, 0, v{T+11}\ns_mov_b32 s92, {F_S0}\ns_nop 0")
    k(f"v_cndmask_b32 v{T+9}, v{T+9}, v{T+10}, vcc\nv_lshlrev_b32 v{T+9}, {FS}, v{T+9}")
    spin(k, [f"buffer_load_dword v{T+13}, v{T+9}, {sr(SRD_F,4)}, s92 offen sc1"], [T + 13], 0)
    k(f"s_lshl_b32 s94, s{S_HP}, 13\ns_add_u32 s95, s94, 4096")
    for p_ in range(16): k(f"buffer_load_dwordx2 {vr(G+2*p_,2)}, v{T+6}, {sr(SRD_B,4)}, s{94+p_//8} offen offset:{(p_%8)*512} sc1")
    k(f"s_lshl_b32 s90, s{S_RB1}, 10\ns_add_u32 s90, s90, {MP_RS}")
    k(f"buffer_load_dwordx4 {vr(A0+8,4)}, v{L16}, {sr(SRD_B,4)}, s90 offen sc1")
    k(f"v_cmp_lt_u32 vcc, 31, v{LANE}")
    k("s_waitcnt vmcnt(1)")
    for st in (8, 4, 2, 1):
        for j in range(st): k(f"v_pk_add_f32 {vr(G+2*j,2)}, {vr(G+2*j,2)}, {vr(G+2*(j+st),2)}")
    k(f"v_cvt_pk_bf16_f32 v{G+2}, v{G}, v{G+1}\nv_lshlrev_b32 v{G}, 16, v{G+2}\nv_and_b32 v{G+1}, 0xffff0000, v{G+2}")
    k(f"v_pk_add_f32 {vr(G+4,2)}, {vr(G,2)}, 1.0 op_sel_hi:[1,0]")
    k(f"v_cvt_pk_bf16_f32 v{G+2}, v{G+4}, v{G+5}\nv_lshlrev_b32 v{G+4}, 16, v{G+2}\nv_and_b32 v{G+5}, 0xffff0000, v{G+2}")
    k(f"v_cndmask_b32 v{G}, v{G}, v{G+4}, vcc\nv_cndmask_b32 v{G+1}, v{G+1}, v{G+5}, vcc")
    k(f"ds_write_b64 v{T+6}, {vr(G,2)} offset:{HL+4096}")
    k("s_waitcnt vmcnt(0)")
    k(f"ds_write_b128 v{L16}, {vr(A0+8,4)} offset:{HL+5120}")
    k("s_waitcnt lgkmcnt(0)")
    k(f"{nw1}:")
    g1.prefetch(k, opt.get("h_pre0", 0))
    srd(k, SRD_T, P_WS, S * D * 2, WS_H)
    k("s_barrier")
    k.stamp("s0 ready")
    for h in range(2): k(f"ds_read_b128 {vr(M+4*h,4)}, v{T+5} offset:{HL+4096+h*16}\nds_read_b128 {vr(M+8+4*h,4)}, v{T+5} offset:{HL+4096+256+h*16}")
    for i in range(4): k(f"ds_read_b64 {vr(RS+2*i,2)}, v{T+7} offset:{HL+5120+i*64}")
    k("s_waitcnt lgkmcnt(0)")
    for i in range(4):
        for j in range(4): k(f"v_pk_add_f32 {vr(XF+8*i+2*j,2)}, {vr(XF+8*i+2*j,2)}, {vr(RS+2*i,2)} op_sel_hi:[1,0]")
        for j in range(4): k(f"v_pk_mul_f32 {vr(XF+8*i+2*j,2)}, {vr(XF+8*i+2*j,2)}, {vr(RS+2*i,2)} op_sel:[0,1] op_sel_hi:[1,1]")
        for j in range(4): k(f"v_pk_fma_f32 {vr(XF+8*i+2*j,2)}, {vr(XF+8*i+2*j,2)}, {vr(M+8+2*j,2)}, {vr(M+2*j,2)}")
        for j in range(4): k(f"v_cvt_pk_bf16_f32 v{XR+4*i+j}, v{XF+8*i+2*j}, v{XF+8*i+2*j+1}")
        k(f"buffer_store_dwordx4 {vr(XR+4*i,4)}, v{VS}, {sr(SRD_T,4)}, s{86 + i//2} offen offset:{(i%2)*128} sc1")
    k.stamp("h computed")
    mk = len(k.L)
    g1.prefetch(k, opt.get("h_pre1a", 4 if split else 6))
    publish(k, 89, T, mk)
    k.stamp("h published")
    g1.prefetch(k, opt.get("h_pre1", 8 if split else 6))
    if not split:
        k.g3 = setup_gemm3_early(k, opt, LANE, 56)
        for i in range(8): k(f"global_load_ushort {ar(A_UT+32+i,1)}, v{V_C}, s[{P_C}:{P_C+1}] offset:{i*16}")
    k(f"v_and_b32 v252, 15, v{LANE}\nv_lshlrev_b32 v252, {FS}, v252\ns_mov_b32 s93, s88")
    staged_wait(k, g1, opt.get("g1_T", 4), 252, 93, 253, one_prod)
    k.stamp("h ready")
    return g1

def phase_front(k, opt, name):
    LANE, L16 = 104, 105
    T = 48
    V_W, V_C = 115, 109
    RS, XR, XT_, XF, G, M = 64, 128, 144, 0, 160, 32
    HL = 2 * 25344
    k(f"v_and_b32 v{LANE}, 63, v0")
    k(f"v_lshrrev_b32 v{T+1}, 3, v{LANE}\nv_and_b32 v{T+2}, 7, v{LANE}")
    k(f"v_lshlrev_b32 v{T+5}, 11, v{T+1}\nv_lshl_add_u32 v{T+5}, v{T+2}, 4, v{T+5}")
    k(f"s_lshl_b32 s91, s{S_RB1}, 18\ns_lshl_b32 s92, s{S_WAVE}, 16\ns_add_u32 s91, s91, s92\ns_lshl_b32 s92, s{S_HP}, 7\ns_add_u32 s91, s91, s92")
    k(f"v_lshlrev_b32 v{T+8}, 3, v{LANE}\nv_lshlrev_b32 v{T+6}, 3, v{T+1}")
    k(f"s_lshl_b32 s94, s{S_HP}, 13\ns_add_u32 s95, s94, 4096")
    k(f"s_lshl_b32 s90, s{S_RB1}, 10\ns_lshl_b32 s93, s{S_WAVE}, 8\ns_add_u32 s90, s90, s93\ns_add_u32 s90, s90, {MP_RS}")
    k("s_waitcnt lgkmcnt(0)")
    srd(k, SRD_B, P_WS, MP_BYTES, WS_MODP)
    srd(k, SRD_A, P_X, S * D * 2)
    for p_ in range(16): k(f"buffer_load_dwordx2 {vr(G+2*p_,2)}, v{T+8}, {sr(SRD_B,4)}, s{94+p_//8} offen offset:{(p_%8)*512}")
    for i in range(4): k(f"buffer_load_dwordx2 {vr(RS+2*i,2)}, v{T+6}, {sr(SRD_B,4)}, s90 offen offset:{i*64}")
    for i in range(4):
        k(f"buffer_load_dwordx4 {vr(XT_+4*i,4)}, v{T+5}, {sr(SRD_A,4)}, s91 offen")
        if i < 3: k("s_add_u32 s91, s91, 16384")
    k.stamp("loads issued")
    def touch(ptr, per, vt, off=0):
        k(f"s_lshl_b32 s80, s2, 2\ns_add_u32 s80, s80, s{S_WAVE}\ns_mul_i32 s80, s80, {per*128}")
        if off: k(f"s_add_u32 s80, s80, {off}")
        k(f"v_min_u32 v{vt}, {per-1}, v{LANE}\nv_lshlrev_b32 v{vt}, 7, v{vt}\nv_add_u32 v{vt}, s80, v{vt}")
        k(f"global_load_dword a232, v{vt}, s[{ptr}:{ptr+1}]")
    nt0 = 0
    if opt.get("m_touch", 0) == 1: touch(P_WQKV, 48, 254); nt0 = 1
    g1 = setup_gemm1(k, opt)
    srd(k, SRD_W, P_WQKV, D * 3 * D * 2)
    n0 = opt.get("h_pre0", 6)
    g1.prefetch(k, n0)
    n0 += nt0
    srd(k, SRD_F, P_WS, FLAG_BYTES, WS_FLAG)
    srd(k, SRD_T, P_WS, S * D * 2, WS_H)
    VS = T + 4
    k(f"v_lshrrev_b32 v{VS}, 2, v{T+2}\nv_lshlrev_b32 v{VS}, 10, v{VS}")
    k(f"v_and_b32 v{T+3}, 3, v{T+2}\nv_lshl_add_u32 v{VS}, v{T+3}, 8, v{VS}\nv_lshl_add_u32 v{VS}, v{T+1}, 4, v{VS}")
    k(f"s_lshl_b32 s86, s{S_RB1}, 3\ns_lshl_b32 s87, s{S_WAVE}, 1\ns_add_u32 s86, s86, s87\ns_lshl_b32 s86, s86, 15\ns_lshl_b32 s87, s{S_HP}, 11\ns_add_u32 s86, s86, s87\ns_add_u32 s87, s86, 0x8000")
    k(f"s_lshl_b32 s88, s{S_WAVE}, 9\nv_add_u32 v{T+8}, s88, v{T+8}\nv_lshlrev_b32 v{T+5}, 5, v{T+2}\nv_add_u32 v{T+5}, s88, v{T+5}")
    k(f"s_lshl_b32 s88, s{S_RB1}, 2\ns_add_u32 s88, s88, s{S_WAVE}\ns_lshl_b32 s88, s88, {FS+4}\ns_add_u32 s88, s88, {F_H}\ns_lshl_b32 s89, s{S_HP}, {FS}\ns_add_u32 s89, s89, s88")
    k(f"v_cmp_lt_u32 vcc, 31, v{LANE}")
    k(f"s_waitcnt vmcnt({8 + n0})")
    for st in (8, 4, 2, 1):
        for j in range(st): k(f"v_pk_add_f32 {vr(G+2*j,2)}, {vr(G+2*j,2)}, {vr(G+2*(j+st),2)}")
    k(f"v_cvt_pk_bf16_f32 v{G+2}, v{G}, v{G+1}\nv_lshlrev_b32 v{G}, 16, v{G+2}\nv_and_b32 v{G+1}, 0xffff0000, v{G+2}")
    k(f"v_pk_add_f32 {vr(G+4,2)}, {vr(G,2)}, 1.0 op_sel_hi:[1,0]")
    k(f"v_cvt_pk_bf16_f32 v{G+2}, v{G+4}, v{G+5}\nv_lshlrev_b32 v{G+4}, 16, v{G+2}\nv_and_b32 v{G+5}, 0xffff0000, v{G+2}")
    k(f"v_cndmask_b32 v{G}, v{G}, v{G+4}, vcc\nv_cndmask_b32 v{G+1}, v{G+1}, v{G+5}, vcc")
    k(f"ds_write_b64 v{T+8}, {vr(G,2)} offset:{HL}")
    k("s_waitcnt lgkmcnt(0)")
    for h in range(2): k(f"ds_read_b128 {vr(M+4*h,4)}, v{T+5} offset:{HL+h*16}\nds_read_b128 {vr(M+8+4*h,4)}, v{T+5} offset:{HL+256+h*16}")
    for i in range(4):
        k(f"s_waitcnt vmcnt({3 - i + n0})")
        for d in range(4): k(f"v_lshlrev_b32 v{XF+8*i+2*d}, 16, v{XT_+4*i+d}\nv_and_b32 v{XF+8*i+2*d+1}, 0xffff0000, v{XT_+4*i+d}")
        for j in range(4): k(f"v_pk_add_f32 {vr(XF+8*i+2*j,2)}, {vr(XF+8*i+2*j,2)}, {vr(RS+2*i,2)} op_sel_hi:[1,0]")
        for j in range(4): k(f"v_pk_mul_f32 {vr(XF+8*i+2*j,2)}, {vr(XF+8*i+2*j,2)}, {vr(RS+2*i,2)} op_sel:[0,1] op_sel_hi:[1,1]")
    k("s_waitcnt lgkmcnt(0)")
    for i in range(4):
        for j in range(4): k(f"v_pk_fma_f32 {vr(XF+8*i+2*j,2)}, {vr(XF+8*i+2*j,2)}, {vr(M+8+2*j,2)}, {vr(M+2*j,2)}")
        for j in range(4): k(f"v_cvt_pk_bf16_f32 v{XR+4*i+j}, v{XF+8*i+2*j}, v{XF+8*i+2*j+1}")
        k(f"buffer_store_dwordx4 {vr(XR+4*i,4)}, v{VS}, {sr(SRD_T,4)}, s{86 + i//2} offen offset:{(i%2)*128} sc1")
    k.stamp("h computed")
    code_prefetch_setup(k, name)
    srd(k, SRD_D, P_WMOD, D * 6 * D * 2)
    k(f"v_mul_u32_u24 v{V_W}, 12288, v{T+1}\nv_lshl_add_u32 v{V_W}, v{T+2}, 4, v{V_W}")
    k(f"s_lshl_b32 s84, s{S_RB1}, 6\nv_add_u32 v{V_C}, s84, v{T+1}\nv_lshlrev_b32 v{V_C}, 1, v{V_C}")
    k(f"s_mul_i32 s86, s84, 12288\ns_lshl_b32 s87, s{S_HP}, 7\ns_add_u32 s86, s86, s87")
    k(f"s_lshl_b32 s94, s{S_WAVE}, 11\ns_add_u32 s{S_MB}, s86, s94\ns_add_u32 s{S_MB}, s{S_MB}, 4096")
    k(f"s_lshl_b32 s94, s{S_WAVE}, 16\ns_lshl_b32 s95, s{S_HP}, 12\ns_add_u32 s94, s94, s95\ns_lshl_b32 s95, s{S_RB1}, 8\ns_add_u32 s94, s94, s95\ns_add_u32 s{S_MO}, s94, {MP_B}")
    k.g3 = setup_gemm3_early(k, opt, LANE, 56)
    publish(k, 89, T)
    k.stamp("h published")
    if opt.get("m_touch", 0) == 2: touch(P_WQKV, 48, 254)
    k("s_barrier")
    g1.prefetch(k, opt.get("h_pre1", 12))
    for i in range(8): k(f"global_load_ushort {ar(A_UT+32+i,1)}, v{V_C}, s[{P_C}:{P_C+1}] offset:{i*16}")
    k(f"v_and_b32 v252, 15, v{LANE}\nv_lshlrev_b32 v252, {FS}, v252\ns_mov_b32 s93, s88")
    staged_wait(k, g1, opt.get("g1_T", 4), 252, 93, 253, one_prod)
    k.stamp("h ready")
    return g1

def setup_gemm24(k, which, opt, base):
    c = Sched(); common_gemm(c)
    K = 1024 if which == 2 else 3584
    NS, R = 4, opt.get(f"g{which}_R", 4)
    STAGE = 8448
    if isinstance(base, tuple): V_RD, V_DMA, V_TOK, LANE, L16, VT = base
    else:
        V_RD, V_DMA, V_TOK, LANE, L16, VT = base, base + 1, base + 2, base + 4, base + 5, base + 6
        lane_id(k, LANE)
        k(f"v_lshlrev_b32 v{L16}, 4, v{LANE}")
    c.LANE, c.L16 = LANE, L16
    hs = c.hs = opt.get("hsplit", 1) and opt.get("split", 1)
    order(c, k, opt, "g2", ["win", [8, 8], 0] if hs else ["win", [1, 1, 2, 4, 8], 1])
    if hs:
        c.w_off = lambda sd, kt: [T(x) for x in c.pos_txt(sd, kt)] + [T(f"s_mul_i32 s{sd}, s{sd}, {128*2048}")] + ([T(f"s_add_u32 s{sd}, s{sd}, {(32 - 8*128)*2048}")] if kt >= 8 else [])
        c.t_off = lambda sd, kt: [T(x) for x in c.pos_txt(sd, kt)] + [T(f"s_lshl_b32 s{sd}, s{sd}, 12")] + ([T(f"s_add_u32 s{sd}, s{sd}, {1024 - 8*4096}")] if kt >= 8 else [])
        c.sub_stride = 2048
    k(f"s_lshr_b32 s80, s{S_WAVE}, 1\ns_and_b32 s81, s{S_WAVE}, 1")
    k(f"s_lshl_b32 s82, s80, {6 if hs else 5}\ns_lshl_b32 s83, s81, 1\ns_add_u32 s82, s82, s83\ns_lshl_b32 s82, s82, 11")
    k(f"s_lshl_b32 s83, s{S_NT}, 7\ns_add_u32 s82, s82, s83")
    k(f"v_lshrrev_b32 v{VT}, 3, v{LANE}\nv_lshlrev_b32 v{VT}, 13, v{VT}")
    k(f"v_and_b32 v{VT+1}, 7, v{LANE}\nv_lshl_add_u32 v{VT}, v{VT+1}, 4, v{VT}")
    k(f"v_add_u32 v{V_DMA}, s82, v{VT}")
    k(f"v_bfe_u32 v{VT}, v{LANE}, 2, 2\nv_mul_u32_u24 v{VT}, 1056, v{VT}")
    k(f"v_lshrrev_b32 v{VT+1}, 4, v{LANE}\nv_lshl_add_u32 v{VT}, v{VT+1}, 7, v{VT}")
    k(f"v_and_b32 v{VT+1}, 3, v{LANE}\nv_lshl_add_u32 v{V_RD}, v{VT+1}, 3, v{VT}")
    k(f"v_add_u32 v{V_RD}, {L_R2}, v{V_RD}")
    k(f"s_lshl_b32 s82, s{S_RB2}, 3\ns_lshl_b32 s83, s{S_WAVE}, 1\ns_add_u32 s82, s82, s83\ns_mul_i32 s82, s82, {K//32*1024}")
    k(f"v_add_u32 v{V_TOK}, s82, v{L16}\nv_add_u32 v{V_TOK+1}, {K//32*1024}, v{V_TOK}")
    k(f"s_mul_i32 s{S_WB}, s80, 4224\ns_mul_i32 s82, s81, 2112\ns_add_u32 s{S_WB}, s{S_WB}, s82\ns_add_u32 s{S_WB}, s{S_WB}, {L_R2}")
    srd(k, SRD_W, P_WO if which == 2 else P_W2, K * D * 2)
    c.NB, c.TB, c.KS, c.SPK, c.KT, c.NS, c.R = 4, 2, 2, 1, K // 64, NS, R
    c.acc = lambda b, t: vr((b * 2 + t) * 4, 4)
    c.tf = lambda slot, ks, t: 64 + ((slot * 2 + ks) * 2 + t) * 4
    c.rd = lambda sl, b, sub, r: (V_RD, sl * STAGE + sub * 4224 + r * 512 + b * 32)
    c.slot_addr = lambda sl: sl * STAGE
    c.dma = [(V_DMA, 0, 0), (V_DMA, 1056, 2048)]
    c.v_tok = [V_TOK, V_TOK + 1]
    c.w_stride = 64 * 2048
    c.drop = opt.get(f"g{which}_drop", ())
    c.pro_units, c.ramp_rate, c.read_margin = opt.get(f"g{which}_pro", 12), opt.get(f"g{which}_ramp", 6), 4
    std_sched(c)
    return c

S_G80, S_G192 = 6, 7
def setup_gemm4p(k, opt, base):
    c = Sched(); common_gemm(c)
    HS = 8448; STAGE = 2 * HS
    L = 12; KT = 28; MAIN = KT - L
    V_RD, V_DE, V_DK, V_TOK, LANE, L16, VT = base, base + 2, base + 3, base + 4, base + 6, base + 7, base + 8
    c.LANE, c.L16, c.V_DE, c.V_DK, c.V_TOK = LANE, L16, V_DE, V_DK, V_TOK
    lane_id(k, LANE)
    k(f"v_lshlrev_b32 v{L16}, 4, v{LANE}")
    c.KT = KT
    order(c, k, opt, "g4", ["win", [4, 4, 8, 8, 4], 0])
    k(f"s_lshr_b32 s80, s{S_WAVE}, 1\ns_and_b32 s81, s{S_WAVE}, 1")
    k(f"s_mul_i32 s{S_G80}, s80, {80*2048}\ns_mul_i32 s{S_G192}, s80, {192*2048}")
    k("s_lshl_b32 s82, s80, 5\ns_lshl_b32 s83, s81, 1\ns_add_u32 s82, s82, s83")
    k(f"s_and_b32 s{S_TMP}, s{S_NT}, 1\ns_mul_i32 s83, s{S_TMP}, 1792\ns_add_u32 s82, s82, s83\ns_lshl_b32 s82, s82, 11")
    k(f"v_lshrrev_b32 v{VT}, 3, v{LANE}\nv_lshlrev_b32 v{VT}, 13, v{VT}")
    k(f"v_and_b32 v{VT+1}, 7, v{LANE}\nv_lshl_add_u32 v{VT}, v{VT+1}, 4, v{VT}")
    k(f"v_add_u32 v{VT}, s82, v{VT}")
    k(f"s_lshl_b32 s83, s{S_NT}, 7\nv_add_u32 v{V_DK}, s83, v{VT}\nv_xor_b32 v{V_DE}, 128, v{V_DK}")
    k(f"v_bfe_u32 v{VT}, v{LANE}, 2, 2\nv_mul_u32_u24 v{VT}, 1056, v{VT}")
    k(f"v_lshrrev_b32 v{VT+1}, 4, v{LANE}\nv_lshl_add_u32 v{VT}, v{VT+1}, 7, v{VT}")
    k(f"v_and_b32 v{VT+1}, 3, v{LANE}\nv_lshl_add_u32 v{V_RD+1}, v{VT+1}, 3, v{VT}")
    k(f"v_add_u32 v{V_RD}, {L_R2}, v{V_RD+1}")
    k(f"s_lshl_b32 s82, s{S_RB2}, 3\ns_lshl_b32 s83, s{S_WAVE}, 1\ns_add_u32 s82, s82, s83\ns_mul_i32 s82, s82, {112*1024}")
    k(f"s_mul_i32 s83, s{S_TMP}, {56*1024}\ns_add_u32 s82, s82, s83")
    k(f"v_add_u32 v{V_TOK}, s82, v{L16}\nv_add_u32 v{V_TOK+1}, {112*1024}, v{V_TOK}")
    k(f"s_mul_i32 s{S_WB}, s80, 4224\ns_mul_i32 s82, s81, 2112\ns_add_u32 s{S_WB}, s{S_WB}, s82")
    srd(k, SRD_W, P_W2, F * D * 2)
    c.drop = opt.get("g4_drop", ())
    V2E, V2K, V2T = 200, 201, 202
    c.V2 = (V2E, V2K, V2T)
    NS4 = opt.get("g4_NS", 8)
    slot_addr = [L_R2, L_R2 + STAGE] + [1024 + i * STAGE for i in range(6)]
    c.V_RD3 = 206; c.V_RD = V_RD
    def rd(sl, half, b, sub, r):
        off = half * HS + sub * 4224 + r * 512 + b * 32
        if sl < 2: return (V_RD, sl * STAGE + off)
        if sl < 5: return (V_RD + 1, slot_addr[sl] + off)
        return (c.V_RD3, slot_addr[sl] - slot_addr[5] + off)
    c.rd3_base = slot_addr[5]
    NT_ = 2 * L
    tf = lambda kt, sub, t: 64 + (((kt * 2 + sub) % NT_) * 2 + t) * 4
    acc = lambda b, t: vr((b * 2 + t) * 4, 4)
    c.wf = lambda buf, j: (buf * 8 + j) * 4
    typ = lambda kt: "A" if kt < 16 else ("B1" if kt < 24 else "B2")
    if opt.get("g4_fast", 0):
        base_pos = c.pos_txt
        def pos2(sd, kt):
            o = base_pos(sd, kt)
            if kt >= 16: return o
            t_ = S_PTMP
            o += [f"s_and_b32 s{t_}, s{sd}, 1", f"s_and_b32 s{sd}, s{sd}, 6", f"s_lshl_b32 s{sd}, s{sd}, 1"]
            o += [f"s_mul_i32 s{t_}, s{t_}, 3"] if kt < 8 else [f"s_add_u32 s{t_}, s{t_}, 1"]
            o += [f"s_add_u32 s{sd}, s{sd}, s{t_}"]
            return o
        c.pos_txt = pos2
    def w_off(sd, kt):
        o = [T(x) for x in c.pos_txt(sd, kt)]
        if typ(kt) == "A": o.append(T(f"s_mul_i32 s{sd}, s{sd}, {112*2048}"))
        elif typ(kt) == "B1": o += [T(f"s_mul_i32 s{sd}, s{sd}, {224*2048}"), T(f"s_add_u32 s{sd}, s{sd}, {(64 - 16*224)*2048}"), T(f"s_add_u32 s{sd}, s{sd}, s{S_G80}")]
        else: o += [T(f"s_mul_i32 s{sd}, s{sd}, {448*2048}"), T(f"s_add_u32 s{sd}, s{sd}, {(96 - 24*448)*2048}"), T(f"s_add_u32 s{sd}, s{sd}, s{S_G192}")]
        return o
    halves = [[("E", kt), ("K", kt)] for kt in range(MAIN)]
    halves += [[("E", MAIN + 2 * j), ("E", MAIN + 2 * j + 1)] for j in range(L // 2)]
    halves += [[("K", MAIN + 2 * j), ("K", MAIN + 2 * j + 1)] for j in range(L // 2)]
    cur = None; flip = 0
    for st, hv in enumerate(halves):
        us = []
        for h, (kind, kt) in enumerate(hv):
            pre = []
            if cur != kt:
                flip ^= 1; cur = kt; pre = w_off(c.s_kw + flip, kt)
            vo = (V2E if kind == 'E' else V2K) if typ(kt) == "B2" else (V_DE if kind == 'E' else V_DK)
            for i, goff in enumerate((0, 2048)):
                us.append((pre if i == 0 else []) + [T(f"s_add_u32 m0, s{S_WB}, {slot_addr[st % NS4] + h * HS + i * 1056 - goff}"),
                          VM(f"buffer_load_dwordx4 v{vo}, {sr(SRD_W,4)}, s{c.s_kw + flip} offen" + (f" offset:{goff}" if goff else "") + " lds", ("dma", st))])
        c.stage_units[st] = us; c.stage_slot[st] = st % NS4
        for j in range(2):
            frags = []; toks = []
            parts = [(0, j), (1, j)] if st < MAIN else [(j, 0), (j, 1)]
            for h, sub in parts:
                kind, kt = hv[h]
                if (kt, sub) not in toks: toks.append((kt, sub))
                for b in range(4):
                    va, o0 = rd(st % NS4, h, b, sub, 0); _, o1 = rd(st % NS4, h, b, sub, 1)
                    frags.append((va, o0, o1, [(acc(b + (0 if kind == 'E' else 4), t), tf(kt, sub, t)) for t in range(2)]))
            c.steps.append(dict(frags=frags, stages=[st], toks=toks))
    for kt in range(KT):
        sd = c.s_kt + kt % 2
        for sub in range(2):
            us = []
            for t in range(2):
                g = []
                if sub == 0 and t == 0:
                    g = [T(x) for x in c.pos_txt(sd, kt)]
                    if typ(kt) == "A": g.append(T(f"s_mul_i32 s{sd}, s{sd}, 3584"))
                    elif typ(kt) == "B1": g += [T(f"s_mul_i32 s{sd}, s{sd}, 7168"), T(f"s_add_u32 s{sd}, s{sd}, {2048 - 16*7168}")]
                    else: g += [T(f"s_mul_i32 s{sd}, s{sd}, 14336"), T(f"s_add_u32 s{sd}, s{sd}, {3072 - 24*14336}")]
                key = ("tok", (kt, sub))
                if typ(kt) == "B2":
                    if sub == 1 and t == 0: g.append(T(f"s_add_u32 s{sd}, s{sd}, 7168"))
                    g.append(VM(f"buffer_load_dwordx2 {ar(tf(kt, sub, t),2)}, v{V2T+t}, {sr(SRD_T,4)}, s{sd} offen sc1", key))
                    g.append(VM(f"buffer_load_dwordx2 {ar(tf(kt, sub, t)+2,2)}, v{V2T+t}, {sr(SRD_T,4)}, s{sd} offen offset:3584 sc1", key))
                else:
                    g.append(VM(f"buffer_load_dwordx4 {ar(tf(kt, sub, t),4)}, v{V_TOK+t}, {sr(SRD_T,4)}, s{sd} offen offset:{sub*(1024 if typ(kt) == 'A' else 3584)} sc1", key))
                us.append(g)
            c.tok_units[(kt, sub)] = us; c.tok_slot[(kt, sub)] = (kt * 2 + sub) % NT_
    c.pro_units, c.ramp_rate, c.read_margin, c.lookahead = opt.get("g4_pro", 12), opt.get("g4_ramp", 5), 4, opt.get("g4_la", 20)
    c.MAIN, c.L = MAIN, L
    return c

def phase_gemm4p(k, c, opt):
    LANE, L16 = c.LANE, c.L16
    VT = 72
    srd(k, SRD_T, P_WS, S * F * 2, WS_HH)
    srd(k, SRD_A, P_OUT, S * D * 2)
    srd(k, SRD_B, P_WS, 8 << 20, WS_P4)
    V_G, V_GA, V_XA, V_X, IMP, VF = 96, 76, 77, 80, 128, 78
    for j in range(16): k(f"v_accvgpr_read_b32 v{V_X+j}, a{A_X1+j}")
    k(f"v_and_b32 v{VT}, 15, v{LANE}\nv_lshlrev_b32 v{VT}, {FS}, v{VT}")
    k(f"s_lshl_b32 s84, s{S_RB2}, 1\ns_lshr_b32 s85, s{S_WAVE}, 1\ns_add_u32 s84, s84, s85\ns_lshl_b32 s84, s84, {FS+5}\ns_add_u32 s84, s84, {F_HH}")
    k(f"s_and_b32 s85, s{S_NT}, 1\ns_lshl_b32 s85, s85, {FS+4}\ns_add_u32 s84, s84, s85")
    k(f"v_mov_b32 v252, v{VT}")
    c.tile_of = lambda key: key[0]
    k(f"s_add_u32 s85, s84, {F_HB - F_HH}")
    staged_wait(k, c, opt.get("g4_T", 8), 252, 84, 253, one_prod, pub=(94, 204))
    add_gate(k, c, 16, f"buffer_load_dword v253, v252, {sr(SRD_F,4)}, s85 offen sc1", 253)
    k.stamp("hh ready")
    p = Txt()
    p(f"v_lshrrev_b32 v{VT}, 4, v{LANE}\nv_lshlrev_b32 v{V_GA}, 4, v{VT}\nv_add_u32 v{V_GA}, {L_MV}, v{V_GA}")
    p(f"v_and_b32 v{VT+1}, 15, v{LANE}\nv_lshlrev_b32 v{VT+1}, 11, v{VT+1}")
    p(f"v_and_b32 v{VT+2}, 1, v{VT}\nv_lshl_add_u32 v{VT+1}, v{VT+2}, 5, v{VT+1}")
    p(f"v_lshrrev_b32 v{VT+2}, 1, v{VT}\nv_lshl_add_u32 v{V_XA}, v{VT+2}, 4, v{VT+1}")
    p(f"s_lshl_b32 s86, s{S_RB2}, 3\ns_lshl_b32 s87, s{S_WAVE}, 1\ns_add_u32 s86, s86, s87\ns_lshl_b32 s86, s86, 15\ns_lshl_b32 s87, s{S_NT}, 7\ns_add_u32 s86, s86, s87\ns_add_u32 s87, s86, 32768")
    p(f"s_lshl_b32 s88, s{S_RB2}, 4\ns_add_u32 s88, s88, s{S_NT}\ns_lshl_b32 s88, s88, 2\ns_add_u32 s88, s88, s{S_WAVE}")
    p("s_xor_b32 s89, s88, 4")
    p(f"s_lshl_b32 s90, s88, 13\ns_add_u32 s91, s90, 4096\ns_lshl_b32 s92, s89, 13\ns_add_u32 s93, s92, 4096")
    p(f"s_lshl_b32 s88, s88, {FS}\ns_add_u32 s88, s88, {F_P4}\ns_lshl_b32 s89, s89, {FS}\ns_add_u32 s89, s89, {F_P4}")
    V2E, V2K, V2T = c.V2
    p(f"v_add_u32 v{c.V_RD3}, {c.rd3_base}, v{c.V_RD+1}")
    p(f"v_lshrrev_b32 v{VT}, 5, v{LANE}\nv_mul_u32_u24 v{VT}, {96*2048}, v{VT}\nv_add_u32 v{V2E}, v{c.V_DE}, v{VT}\nv_add_u32 v{V2K}, v{c.V_DK}, v{VT}")
    p(f"v_lshrrev_b32 v{VT}, 1, v{L16}\nv_sub_u32 v{V2T}, v{c.V_TOK}, v{VT}\nv_sub_u32 v{V2T+1}, v{c.V_TOK+1}, v{VT}")
    p(f"v_mov_b32 v{VT}, 1\nv_mov_b32 v{VT+1}, 0")
    c.pre_loop_txt = p.L
    N = len(c.steps); p2 = N - c.L
    for st_ in opt.get("cp4", []): c.late.setdefault(st_, []).extend(code_prefetch_txt(k.name, L16, 254, 80, junk="v240"))
    ex = [VM(f"buffer_store_dwordx4 {vr(4*j,4)}, v{L16}, {sr(SRD_B,4)}, s{90 + j//4} offen offset:{(j%4)*1024} sc1", ("exp", 0)) for j in range(8)]
    ne_ = opt.get("g4_ne", 2)
    for j in range(ne_): c.late[p2 + 1 + j] = ex[j * 8 // ne_:(j + 1) * 8 // ne_]
    c.late[p2 + opt.get("g4_fs", 6)] = [WVM([("exp", 0)]), f"buffer_store_dword v{VT}, v{VT+1}, {sr(SRD_F,4)}, s88 offen sc1"]
    c.late[N - 3] = [VM(f"buffer_load_dword v{VF}, v{VT+1}, {sr(SRD_F,4)}, s89 offen sc1", ("pf", 0))]
    c.last_reads = [f"ds_read_b128 {vr(V_G+4*b,4)}, v{V_GA} offset:{768+b*64}" for b in range(4)]
    m = Txt(); m.label = k.label
    okl = k.label("pok")
    m(f"v_cmp_eq_u32 vcc, 0, v{VF}\ns_cmp_eq_u64 vcc, 0\ns_cbranch_scc1 {okl}")
    spin(m, [f"buffer_load_dword v{VF}, v{VT+1}, {sr(SRD_F,4)}, s89 offen sc1"], [VF], 0)
    m(f"{okl}:")
    c.late[N - 1] = [WVM([("pf", 0)]), T("\n".join(m.L))] + [f"buffer_load_dwordx4 {vr(IMP+4*j,4)}, v{L16}, {sr(SRD_B,4)}, s{92 + j//4} offen offset:{(j%4)*1024} sc1" for j in range(8)]
    c.run(k)
    k.stamp("g4 loop done")
    A = lambda b, t: 32 + (b * 2 + t) * 4
    XT = 112
    XF = 160
    for j in range(16): k(f"v_lshlrev_b32 v{XF+2*j}, 16, v{V_X+j}\nv_and_b32 v{XF+2*j+1}, 0xffff0000, v{V_X+j}")
    k("s_waitcnt vmcnt(0) lgkmcnt(0)")
    for t in range(2):
        for b in range(4):
            for h in range(2): k(f"v_pk_add_f32 {vr(A(b,t)+2*h,2)}, {vr(A(b,t)+2*h,2)}, {vr(IMP+(b*2+t)*4+2*h,2)}")
            for h in range(2): k(f"v_pk_fma_f32 {vr(A(b,t)+2*h,2)}, {vr(A(b,t)+2*h,2)}, {vr(V_G+4*b+2*h,2)}, {vr(XF+(t*4+b)*4+2*h,2)}")
        PK = XT + t * 8
        for b in range(4): k(f"v_cvt_pk_bf16_f32 v{PK+2*b}, v{A(b,t)}, v{A(b,t)+1}\nv_cvt_pk_bf16_f32 v{PK+2*b+1}, v{A(b,t)+2}, v{A(b,t)+3}")
        k("s_nop 1")
        for s_ in range(2): k(f"v_permlane16_swap_b32 v{PK+4*s_}, v{PK+4*s_+2}\nv_permlane16_swap_b32 v{PK+4*s_+1}, v{PK+4*s_+3}")
        for s_ in range(2): k(f"buffer_store_dwordx4 {vr(PK+4*s_,4)}, v{V_XA}, {sr(SRD_A,4)}, s{86+t} offen offset:{s_*64}")

def phase_gemm1(k, c, opt):
    LANE, L16, VT = c.LANE, c.L16, c.VT
    PHK, VV, SH, UTX = 0, 34816, 114688, 126976
    A_PH = 160
    p = Txt()
    srd(p, SRD_A, P_WPHI, H * 2048)
    srd(p, SRD_B, P_WS, 2 << 20, WS_KVP)
    srd(p, SRD_C, P_WS, 128 << 10, WS_ZP)
    A_PW, A_VW, A_PR, A_VR, A_WR = 110, 111, 112, 113, 114
    p(f"s_lshr_b32 s80, s{S_WAVE}, 1\ns_and_b32 s81, s{S_WAVE}, 1")
    p(f"v_and_b32 v{VT}, 15, v{LANE}\ns_lshl_b32 s82, s{S_WAVE}, 5\nv_add_u32 v{VT}, s82, v{VT}")
    p(f"v_lshrrev_b32 v{VT+1}, 4, v{LANE}\nv_lshlrev_b32 v{VT+1}, 3, v{VT+1}")
    p(f"v_mul_u32_u24 v{A_PW}, 136, v{VT}\nv_add_u32 v{A_PW}, v{A_PW}, v{VT+1}")
    p(f"v_mul_u32_u24 v{A_VW}, 72, v{VT}\nv_add_u32 v{A_VW}, v{A_VW}, v{VT+1}")
    p(f"v_lshrrev_b32 v{VT}, 2, v{LANE}\nv_and_b32 v{VT+1}, 3, v{LANE}\nv_lshlrev_b32 v{VT+1}, 3, v{VT+1}")
    p(f"s_mul_i32 s82, s80, 17408\ns_lshl_b32 s83, s81, 6\ns_add_u32 s82, s82, s83")
    p(f"v_mul_u32_u24 v{A_PR}, 136, v{VT}\nv_add_u32 v{A_PR}, v{A_PR}, v{VT+1}\nv_add_u32 v{A_PR}, s82, v{A_PR}")
    p(f"s_mul_i32 s82, s80, 9216")
    p(f"v_mul_u32_u24 v{A_VR}, 72, v{VT}\nv_add_u32 v{A_VR}, v{A_VR}, v{VT+1}\nv_add_u32 v{A_VR}, s82, v{A_VR}")
    p(f"v_lshl_add_u32 v{A_WR}, v{VT}, 6, v{VT+1}\nv_add_u32 v{A_WR}, {L_WPH}, v{A_WR}")
    ONES, SEL = 116, 120
    for j in range(4): p(f"v_mov_b32 v{ONES+j}, 0x3f803f80")
    p(f"v_bfe_u32 v{VT}, v{LANE}, 2, 2\nv_lshrrev_b32 v{VT+1}, 4, v{LANE}")
    p(f"v_cmp_eq_u32 vcc, v{VT}, v{VT+1}")
    p(f"v_and_b32 v{VT}, 1, v{LANE}\nv_lshlrev_b32 v{VT}, 4, v{VT}\nv_mov_b32 v{VT+1}, 0x3f80\nv_lshlrev_b32 v{VT+1}, v{VT}, v{VT+1}")
    p(f"v_cndmask_b32 v{VT+1}, 0, v{VT+1}, vcc")
    p(f"v_and_b32 v{VT}, 2, v{LANE}\nv_cmp_eq_u32 vcc, 0, v{VT}")
    for j in (0, 1, 4, 5): p(f"v_mov_b32 v{SEL+j}, 0")
    p(f"v_cndmask_b32 v{SEL+2}, 0, v{VT+1}, vcc\nv_cndmask_b32 v{SEL+3}, v{VT+1}, 0, vcc")
    p(f"s_mov_b32 s94, {LOG2E!r}\ns_mov_b32 s95, {LOG2E!r}")
    p(f"s_lshl_b32 s84, s{S_HP}, 12\ns_lshl_b32 s85, s{S_WAVE}, 10\ns_add_u32 s84, s84, s85\ns_add_u32 s85, s85, {L_WPH}")
    c.pre_loop_txt = p.L
    c.late = {4: ["s_mov_b32 m0, s85", f"buffer_load_dwordx4 v{L16}, {sr(SRD_A,4)}, s84 offen lds"]}
    if opt.get("cpf", 1): c.late[22] = code_prefetch_txt(k.name, L16, 254, 80)
    ml = modb_loads(S_MB, 115, 109)
    ms = opt.get("modb_steps", [16] * 8)
    if opt.get("modb_front", 0):
        lb = k.label("skw0")
        c.late.setdefault(ms[0], []).append(T("\n".join([f"s_cmp_lg_u32 s{S_WAVE}, 0", f"s_cbranch_scc1 {lb}"] + [x for g in ml for x in g] + [f"{lb}:"])))
        ml = []
    else:
        for st_, g in zip(ms, ml): c.late.setdefault(st_, []).extend(g)
        ml = ml[len(ms):]
    c.last_reads = [f"ds_read_b64_tr_b16 {ar(A_PH+(hh*2+fb)*4+2*r,2)}, v{A_WR} offset:{hh*2048+r*1024+fb*32}" for hh in range(2) for fb in range(2) for r in range(2)]
    c.run(k)
    k.stamp("g1 loop done")
    A = lambda b, t: (b * 2 + t) * 4
    BF, P1, P2, MX, MN, EK = 126, 142, 174, 206, 214, 222
    groups = [(hh, t) for hh in range(2) for t in range(2)]
    def fm_part1(seg):
        for g, (hh, t) in enumerate(groups):
            for db in range(2):
                a = A(seg * 4 + hh * 2 + db, t)
                k(f"v_cvt_pk_bf16_f32 v{BF+g*4+db*2}, v{a}, v{a+1}\nv_cvt_pk_bf16_f32 v{BF+g*4+db*2+1}, v{a+2}, v{a+3}")
        k("s_nop 1")
        for g, (hh, t) in enumerate(groups):
            for fb in range(2):
                k(f"{MF} {vr(P1+g*8+fb*4,4)}, {ar(A_PH+(hh*2+fb)*4,4)}, {vr(BF+g*4,4)}, 0")
    def fm_part2():
        for op3, op2, M in (("v_max3_f32", "v_max_f32", MX), ("v_min3_f32", "v_min_f32", MN)):
            for g in range(4):
                b = P1 + g * 8
                k(f"{op3} v{M+2*g}, v{b}, v{b+1}, v{b+2}\n{op3} v{M+2*g}, v{M+2*g}, v{b+3}, v{b+4}\n{op3} v{M+2*g}, v{M+2*g}, v{b+5}, v{b+6}\n{op2} v{M+2*g}, v{M+2*g}, v{b+7}")
            treduce4(k, op2, [M + 2 * g for g in range(4)])
        for g in range(4):
            k(f"v_mul_f32 v{MX+2*g}, {-LOG2E!r}, v{MX+2*g}\nv_mul_f32 v{MN+2*g}, {LOG2E!r}, v{MN+2*g}")
    def fm_part3(E):
        for g in range(4):
            for j in range(4):
                b = g * 8 + 2 * j
                k(f"v_pk_fma_f32 {vr(P2+b,2)}, {vr(P1+b,2)}, s[94:95], {vr(MN+2*g,2)} op_sel_hi:[1,1,0] neg_lo:[1,0,0] neg_hi:[1,0,0]")
                k(f"v_pk_fma_f32 {vr(P1+b,2)}, {vr(P1+b,2)}, s[94:95], {vr(MX+2*g,2)} op_sel_hi:[1,1,0]")
            for j in range(8): k(f"v_exp_f32 v{P1+g*8+j}, v{P1+g*8+j}")
            for j in range(8): k(f"v_exp_f32 v{P2+g*8+j}, v{P2+g*8+j}")
            k("s_nop 0")
            for sg, PP in enumerate((P1, P2)):
                for j in range(4): k(f"v_cvt_pk_bf16_f32 v{E+(g*2+sg)*4+j}, v{PP+g*8+2*j}, v{PP+g*8+2*j+1}")
    for g in ml:
        for x in g: k(x)
    k("s_waitcnt lgkmcnt(0)\ns_nop 7")
    fm_part1(1)
    k("s_barrier")
    mark0 = len(k.L)
    for g, (hh, t) in enumerate(groups):
        for db in range(2):
            a = A(8 + hh * 2 + db, t)
            k(f"v_cvt_pk_bf16_f32 v{a}, v{a}, v{a+1}\nv_cvt_pk_bf16_f32 v{a+1}, v{a+2}, v{a+3}")
            k(f"ds_write_b64 v{A_VW}, {vr(a,2)} offset:{VV + hh*9216 + t*16*72 + db*32}")
    fm_part2()
    fm_part3(EK)
    SM = 32
    k("s_nop 1")
    for i in range(8): k(f"{MF} {vr(SM+4*i,4)}, {vr(ONES,4)}, {vr(EK+4*i,4)}, 0")
    k("s_nop 7")
    for i in range(8): k(f"v_rcp_f32 v{SM+4*i}, v{SM+4*i}")
    for g, (hh, t) in enumerate(groups):
        for sg, PP in enumerate((P1, P2)):
            for j in range(4):
                k(f"v_pk_mul_f32 {vr(PP+g*8+2*j,2)}, {vr(PP+g*8+2*j,2)}, {vr(SM+(g*2+sg)*4,2)} op_sel_hi:[1,0]")
            for fb in range(2):
                b = PP + g * 8 + fb * 4
                k(f"v_cvt_pk_bf16_f32 v{b}, v{b}, v{b+1}\nv_cvt_pk_bf16_f32 v{b+1}, v{b+2}, v{b+3}")
                k(f"ds_write_b64 v{A_PW}, {vr(b,2)} offset:{PHK + hh*17408 + t*16*136 + sg*64 + fb*32}")
    sprinkle(k, mark0, g3_early_units(k.g3, opt.get("g3_e1", 14), 254))
    k("s_waitcnt lgkmcnt(0)\ns_barrier")
    for s_ in range(4):
        for r in range(2):
            for fb in range(2): k(f"ds_read_b64_tr_b16 {ar(s_*16+fb*4+2*r,2)}, v{A_PR} offset:{PHK + (32*s_+16*r)*136 + fb*32}")
            for db in range(2): k(f"ds_read_b64_tr_b16 {ar(s_*16+8+db*4+2*r,2)}, v{A_VR} offset:{VV + (32*s_+16*r)*72 + db*32}")
    fm_part1(0)
    KV, ZZ = 64, 80
    for s_ in range(4):
        k(f"s_waitcnt lgkmcnt({min(15, 24 - 8*s_)})")
        for fb in range(2):
            for db in range(2):
                d = vr(KV + (db * 2 + fb) * 4, 4)
                k(f"{MF} {d}, {ar(s_*16+fb*4,4)}, {ar(s_*16+8+db*4,4)}, {'0' if s_ == 0 else d}")
            d = vr(ZZ + fb * 4, 4)
            k(f"{MF} {d}, {ar(s_*16+fb*4,4)}, {vr(ONES,4)}, {'0' if s_ == 0 else d}")
    k(f"s_lshl_b32 s82, s{S_HP}, 2\ns_add_u32 s82, s82, s{S_WAVE}")
    k("s_lshl_b32 s83, s82, 15")
    k(f"s_lshl_b32 s84, s{S_RB1}, 10\ns_add_u32 s84, s84, s83\ns_add_u32 s85, s84, 16384")
    k("s_lshl_b32 s90, s82, 11")
    k(f"s_lshl_b32 s91, s82, {FS+4}\ns_add_u32 s91, s91, {F_KV}\ns_lshl_b32 s92, s{S_RB1}, {FS}\ns_add_u32 s92, s92, s91")
    k(f"v_and_b32 v{VT}, 15, v{LANE}\nv_cmp_eq_u32 vcc, s{S_RB1}, v{VT}")
    k("s_nop 2")
    for db in range(2):
        for j in range(4): k(f"v_cvt_pk_bf16_f32 v{88+db*4+j}, v{KV+db*8+2*j}, v{KV+db*8+2*j+1}")
    k(f"buffer_store_dwordx4 {vr(88,4)}, v{L16}, {sr(SRD_B,4)}, s84 offen sc1")
    k(f"buffer_store_dwordx4 {vr(92,4)}, v{L16}, {sr(SRD_B,4)}, s85 offen sc1")
    k("s_and_saveexec_b64 s[96:97], vcc")
    k(f"buffer_store_dwordx4 {vr(ZZ,4)}, v{L16}, {sr(SRD_C,4)}, s90 offen sc1")
    k(f"buffer_store_dwordx4 {vr(ZZ+4,4)}, v{L16}, {sr(SRD_C,4)}, s90 offen offset:1024 sc1")
    k("s_mov_b64 exec, s[96:97]")
    k.stamp("kv stored")
    fm_part2()
    publish(k, 92, VT + 1)
    k.stamp("kv published")
    k("s_mov_b32 s93, s83")
    g2 = setup_gemm24(k, 2, opt, 96)
    k("s_mov_b32 s83, s93")
    g2.prefetch(k, 8)
    fm_part3(EK)
    k(f"v_lshlrev_b32 v{VT}, {FS}, v{VT}")
    wait_flags(k, [(VT, 91, 1)], VT + 1)
    k.stamp("kv ready")
    k(f"buffer_load_dwordx4 {vr(ZZ,4)}, v{L16}, {sr(SRD_C,4)}, s90 offen sc1")
    k(f"buffer_load_dwordx4 {vr(ZZ+4,4)}, v{L16}, {sr(SRD_C,4)}, s90 offen offset:1024 sc1")
    for i in range(32):
        if i % 4 == 0 and i: k("s_add_u32 s83, s83, 4096")
        k(f"buffer_load_dwordx4 {ar(4*i,4)}, v{L16}, {sr(SRD_B,4)}, s83 offen offset:{(i%4)*1024} sc1")
    srd(k, SRD_T, P_WS, S * D * 2, WS_O)
    k("s_waitcnt vmcnt(32)")
    for sh in (8, 4, 2, 1):
        for j in range(8): k(f"v_add_f32_dpp v{ZZ+j}, v{ZZ+j}, v{ZZ+j} row_ror:{sh} row_mask:0xf bank_mask:0xf")
    k(f"v_and_b32 v{VT+1}, 1, v{LANE}\nv_cmp_eq_u32 vcc, 0, v{VT+1}")
    for j in range(4): k(f"v_cvt_pk_bf16_f32 v{BF+8+j}, v{ZZ+2*j}, v{ZZ+2*j+1}")
    for j in range(4): k(f"v_cndmask_b32 v{BF+8+j}, v{ONES}, v{BF+8+j}, vcc")
    for i in range(32):
        db, pp = divmod(i, 16)
        if i % 2 == 0: k(f"s_waitcnt vmcnt({30 - i})")
        for fb in range(2):
            d = vr(KV + (db * 2 + fb) * 4, 4)
            k(f"{MF} {d}, {vr(SEL + (2 if fb == 0 else 0), 4)}, {ar(4*i,4)}, {'0' if pp == 0 else d}")
    k(f"s_mul_i32 s82, s{S_WAVE}, 3072\ns_add_u32 s82, s82, {SH}")
    k(f"v_add_u32 v{VT+1}, s82, v{L16}\nv_add_u32 v{VT+2}, {SH}, v{L16}")
    k("s_nop 6")
    for db in range(2):
        for j in range(4): k(f"v_cvt_pk_bf16_f32 v{BF+db*4+j}, v{KV+db*8+2*j}, v{KV+db*8+2*j+1}")
    for j in range(3): k(f"ds_write_b128 v{VT+1}, {vr(BF+4*j,4)} offset:{j*1024}")
    k("s_waitcnt lgkmcnt(0)\ns_barrier")
    for i in range(12): k(f"ds_read_b128 {ar(4*i,4)}, v{VT+2} offset:{i*1024}")
    k(f"s_lshl_b32 s82, s{S_RB1}, 3\ns_lshl_b32 s83, s{S_WAVE}, 1\ns_add_u32 s82, s82, s83\ns_lshl_b32 s82, s82, 15")
    k(f"s_lshl_b32 s83, s{S_HP}, 11\ns_add_u32 s82, s82, s83\ns_add_u32 s83, s82, 0x8000")
    k(f"s_lshl_b32 s84, s{S_RB1}, 2\ns_add_u32 s84, s84, s{S_WAVE}\ns_lshl_b32 s84, s84, {FS+4}\ns_lshl_b32 s85, s{S_HP}, {FS}\ns_add_u32 s84, s84, s85\ns_add_u32 s84, s84, {F_O}")
    k("s_waitcnt lgkmcnt(0)")
    for g, (hh, t) in enumerate(groups):
        for sg in range(2):
            for j in range(3):
                k(f"{MF} {vr((g*2+sg)*12+4*j,4)}, {ar(((hh*2+sg)*3+j)*4,4)}, {vr(EK+(g*2+sg)*4,4)}, 0")
    k("s_nop 7")
    for g, (hh, t) in enumerate(groups):
        n1, n2 = g * 24, g * 24 + 12
        D1, S1, D2, S2 = n1 + 8, n1 + 9, n2 + 8, n2 + 9
        k(f"v_mul_f32 v{n1+10}, v{S1}, v{S2}")
        k(f"v_mul_f32 v{n1+10}, 0x358637bd, v{n1+10}")
        k(f"v_fmac_f32 v{n1+10}, v{D1}, v{S2}\nv_fmac_f32 v{n1+10}, v{D2}, v{S1}")
        k(f"v_rcp_f32 v{n1+10}, v{n1+10}")
        k("s_nop 0")
        k(f"v_mul_f32 v{D1}, v{S2}, v{n1+10}\nv_mul_f32 v{D2}, v{S1}, v{n1+10}")
        for j in range(4): k(f"v_pk_mul_f32 {vr(n1+2*j,2)}, {vr(n1+2*j,2)}, {vr(D1,2)} op_sel_hi:[1,0]")
        for j in range(4): k(f"v_pk_fma_f32 {vr(n1+2*j,2)}, {vr(n2+2*j,2)}, {vr(D2,2)}, {vr(n1+2*j,2)} op_sel_hi:[1,0,1]")
        for j in range(4): k(f"v_cvt_pk_bf16_f32 v{n2+j}, v{n1+2*j}, v{n1+2*j+1}")
        k(f"buffer_store_dwordx4 {vr(n2,4)}, v{L16}, {sr(SRD_T,4)}, s{82+t} offen offset:{hh*1024} sc1")
    k.stamp("o stored")
    CU, AU, WW, TT = 128, 144, 152, 156
    for i in range(8): k(f"v_accvgpr_read_b32 v{CU+2*i}, a{A_UT+32+i}")
    silu_block(k, [CU + 2 * i for i in range(8)])
    mko = len(k.L)
    g2.V_X = 48
    srd(k, SRD_A, P_X, S * D * 2)
    V_XA = 47
    k(f"v_lshrrev_b32 v{VT+1}, 4, v{LANE}")
    k(f"v_and_b32 v{VT+2}, 15, v{LANE}\nv_lshlrev_b32 v{VT+2}, 11, v{VT+2}\nv_lshl_add_u32 v{V_XA}, v{VT+1}, 3, v{VT+2}")
    k(f"s_lshl_b32 s82, s{S_RB2}, 3\ns_lshl_b32 s83, s{S_WAVE}, 1\ns_add_u32 s82, s82, s83\ns_lshl_b32 s82, s82, 15\ns_lshl_b32 s83, s{S_NT}, 7\ns_add_u32 s82, s82, s83\ns_add_u32 s83, s82, 32768")
    for t in range(2):
        for b in range(4):
            k(f"buffer_load_dwordx2 {vr(g2.V_X+(t*4+b)*2,2)}, v{V_XA}, {sr(SRD_A,4)}, s{82+t} offen offset:{b*32}")
    publish(k, 84, VT + 2, mko)
    k.stamp("o published")
    mark1 = len(k.L)
    for j in range(8): k(f"v_mov_b32 v{AU+j}, 0")
    for i in range(8):
        for d in range(4): k(f"v_accvgpr_read_b32 v{WW+d}, a{A_UT+4*i+d}")
        for d in range(4):
            k(f"v_lshlrev_b32 v{TT}, 16, v{WW+d}\nv_and_b32 v{TT+1}, 0xffff0000, v{WW+d}")
            k(f"v_pk_fma_f32 {vr(AU+2*d,2)}, {vr(TT,2)}, {vr(CU+2*i,2)}, {vr(AU+2*d,2)} op_sel_hi:[1,0,1]")
    k("s_nop 1")
    for j in range(4): k(f"v_permlane32_swap_b32 v{AU+j}, v{AU+j+4}")
    k("s_nop 1")
    for j in range(4): k(f"v_add_f32 v{AU+j}, v{AU+j}, v{AU+j+4}")
    k("s_nop 1")
    for j in range(2): k(f"v_permlane16_swap_b32 v{AU+j}, v{AU+j+2}")
    k("s_nop 1")
    for j in range(2): k(f"v_add_f32 v{AU+j}, v{AU+j}, v{AU+j+2}")
    k("s_nop 1")
    for j in range(2): k(f"v_add_f32_dpp v{AU+j}, v{AU+j}, v{AU+j} row_ror:8 row_mask:0xf bank_mask:0xf")
    sprinkle(k, mark1, g3_early_units(k.g3, opt.get("g3_e2", 7), 254), skip=0)
    k(f"v_and_b32 v{TT}, 7, v{LANE}\nv_lshlrev_b32 v{TT}, 5, v{TT}\nv_lshrrev_b32 v{TT+1}, 5, v{LANE}\nv_lshl_add_u32 v{TT}, v{TT+1}, 4, v{TT}")
    k(f"v_bfe_u32 v{TT+1}, v{LANE}, 4, 1\nv_lshl_add_u32 v{TT}, v{TT+1}, 3, v{TT}")
    srd(k, SRD_D, P_WS, MP_BYTES, WS_MODP)
    k(f"v_or_b32 v{AU}, 1, v{AU}\nv_or_b32 v{AU+1}, 1, v{AU+1}")
    k(f"buffer_store_dwordx2 {vr(AU,2)}, v{TT}, {sr(SRD_D,4)}, s{S_MO} offen sc1")
    return g2

A_PARK = 224
S3_SRD, S3_WB, S3_KW = 64, 68, 69
def setup_gemm3_early(k, opt, LANE, VT):
    c = Sched(); common_gemm(c)
    NS, R = 4, 8
    STAGE = 28672
    V_RD, V_DMA, V_TOK = 224, 226, 233
    c.V_RD, c.V_DMA, c.V_TOK, c.LANE, c.L16, c.VT = V_RD, V_DMA, V_TOK, 237, 238, 248
    c.srd_w, c.s_wbase, c.s_kw = S3_SRD, S3_WB, S3_KW
    order(c, k, opt, 'g3', ['win', [4, 4, 8], 0])
    if opt.get("g3map", 0): c.s_rot, c.s_rot2 = 73, 72
    k(f"s_lshr_b32 s80, s{S_WAVE}, 1\ns_and_b32 s81, s{S_WAVE}, 1")
    k(f"s_mul_i32 s83, s80, {32*7168}\ns_mul_i32 s{S_TMP}, s{S_FT}, 224\ns_add_u32 s83, s83, s{S_TMP}")
    for i in range(7):
        k(f"v_add_u32 v{VT+2}, {i*64}, v{LANE}")
        k(f"v_mul_u32_u24 v{VT+3}, 4682, v{VT+2}")
        k(f"v_lshrrev_b32 v{VT+3}, 16, v{VT+3}")
        k(f"v_mul_u32_u24 v{VT+4}, 14, v{VT+3}")
        k(f"v_sub_u32 v{VT+4}, v{VT+2}, v{VT+4}")
        k(f"v_mul_u32_u24 v{VT+3}, 7168, v{VT+3}")
        k(f"v_lshl_add_u32 v{VT+3}, v{VT+4}, 4, v{VT+3}")
        k(f"v_add_u32 v{VT+3}, s83, v{VT+3}")
        k(f"v_accvgpr_write_b32 a{A_PARK+i}, v{VT+3}")
    k(f"s_mul_i32 s{S3_WB}, s81, 14336\ns_mul_i32 s82, s80, 7168\ns_add_u32 s{S3_WB}, s{S3_WB}, s82")
    k(f"s_cmp_eq_u32 s81, 0\ns_cselect_b32 s{S3_SRD}, s{P_W1}, s{P_W3}\ns_cselect_b32 s{S3_SRD+1}, s{P_W1+1}, s{P_W3+1}")
    k(f"s_mov_b32 s{S3_SRD+2}, {D*F*2}\ns_mov_b32 s{S3_SRD+3}, 0x20000")
    c.NB, c.TB, c.KS, c.SPK, c.KT, c.NS, c.R = 14, 4, 1, 2, 16, NS, R
    c.acc = lambda b, t: vr((b * 4 + t) * 4, 4)
    c.tf = lambda slot, ks, t: 112 + (slot * 4 + t) * 4
    ph = lambda sl: 3 - sl
    c.rd = lambda sl, b, sub, r: (V_RD + ph(sl) // 2, (ph(sl) % 2) * STAGE + (b % 2) * 14336 + (32 * sub + 16 * r) * 224 + 32 * (b // 2))
    c.slot_addr = lambda sl: ph(sl) * STAGE
    c.dma = [(V_DMA + i, i * 1024, 0) for i in range(7)]
    c.v_tok = [V_TOK + t for t in range(4)]
    c.w_stride = 64 * 7168
    c.drop = opt.get("g3_drop", ())
    c.pro_units, c.ramp_rate, c.read_margin = opt.get("g3_pro", 8), (lambda st: opt.get("g3_ramp", 10) if st < 6 else 8), 8
    c.lookahead = opt.get("g3_la", 4)
    std_sched(c)
    TL = c.TL = opt.get("g3_tail", 0)
    if TL:
        tail = c.steps[32 - TL:]
        c.steps = c.steps[:32 - TL] + [dict(st, frags=st["frags"][:8]) for st in tail] + [dict(st, frags=st["frags"][8:]) for st in tail]
    return c
def g3_early_units(c, n, vtmp):
    out = []
    for j in range(n):
        t = c.prefetch_txt(1)
        i = (c.pre_dma - 1) % 7
        ld = t[-1].replace(f"v{c.V_DMA+i},", f"v{vtmp},")
        out.append(t[:-1] + [f"v_accvgpr_read_b32 v{vtmp}, a{A_PARK+i}", ld])
    return out
def setup_gemm3_late(k, c):
    V_RD, V_DMA, V_TOK, LANE, L16, VT = c.V_RD, c.V_DMA, c.V_TOK, c.LANE, c.L16, c.VT
    lane_id(k, LANE)
    k(f"v_lshlrev_b32 v{L16}, 4, v{LANE}")
    for i in range(7): k(f"v_accvgpr_read_b32 v{V_DMA+i}, a{A_PARK+i}")
    k(f"v_lshrrev_b32 v{VT+3}, 2, v{LANE}\nv_mul_u32_u24 v{VT+3}, 224, v{VT+3}")
    k(f"v_and_b32 v{VT+4}, 3, v{LANE}\nv_lshl_add_u32 v{V_RD}, v{VT+4}, 3, v{VT+3}")
    k(f"v_add_u32 v{V_RD+1}, {2*28672}, v{V_RD}")
    k(f"s_lshl_b32 s82, s{S_RB3}, 4\ns_lshl_b32 s83, s{S_WAVE}, 2\ns_add_u32 s82, s82, s83\ns_lshl_b32 s82, s82, 15")
    k(f"v_add_u32 v{V_TOK}, s82, v{L16}")
    for t in range(1, 4): k(f"v_add_u32 v{V_TOK+t}, {t*0x8000}, v{V_TOK}")

def sprinkle(k, mark, groups, skip=4):
    if not groups: return
    seg = k.L[mark:]
    stepn = max(1, (len(seg) - skip) // len(groups))
    out, q = [], list(groups)
    for i, x in enumerate(seg):
        out.append(x)
        if q and i >= skip and (i - skip) % stepn == 0:
            assert not x.startswith("s_cmp") and not x.startswith("s_and_saveexec")
            out += q.pop(0)
    for g in q: out += g
    k.L[mark:] = out

A_X1 = 240
def phase_gemm2(k, c, opt):
    LANE, L16 = c.LANE, c.L16
    VT = 40
    k(f"v_and_b32 v252, 15, v{LANE}\nv_lshlrev_b32 v252, {FS}, v252")
    k(f"s_lshl_b32 s84, s{S_RB2}, 2\ns_add_u32 s84, s84, s{S_WAVE}\ns_lshl_b32 s84, s84, {FS+4}\ns_add_u32 s85, s84, {F_O}")
    if c.hs:
        k(f"s_add_u32 s94, s85, {F_O2 - F_O}")
        staged_wait(k, c, opt.get("g2_T", 5), 252, 85, 253, lambda sp, st: [f"s_lshl_b32 s{st}, s{sp}, 1", f"s_lshl_b32 s{st}, 3, s{st}"], pub=(95, 26))
        add_gate(k, c, 8, f"buffer_load_dword v253, v252, {sr(SRD_F,4)}, s94 offen sc1", 253)
    else:
        staged_wait(k, c, opt.get("g2_T", 6), 252, 85, 253, one_prod)
    k.stamp("o ready")
    V_G, V_C, V_S, V_GA = 64, 80, 136, 44
    p = Txt()
    srd(p, SRD_A, P_WS, S * D * 2, WS_Y)
    srd(p, SRD_B, P_WS, S * 128, WS_STAT)
    srd(p, SRD_D, P_WS, MP_BYTES, WS_MODP)
    p(f"v_lshrrev_b32 v{V_GA}, 4, v{LANE}\nv_lshlrev_b32 v{V_GA}, 4, v{V_GA}\nv_add_u32 v{V_GA}, {L_MV}, v{V_GA}")
    p(f"s_lshl_b32 s86, s{S_RB2}, 3\ns_lshl_b32 s87, s{S_WAVE}, 1\ns_add_u32 s86, s86, s87")
    p(f"s_lshl_b32 s88, s86, 15\ns_lshl_b32 s87, s{S_NT}, 11\ns_add_u32 s88, s88, s87\ns_add_u32 s89, s88, 32768")
    p(f"s_lshl_b32 s87, s{S_NT}, {FS}\ns_add_u32 s84, s84, s87\ns_add_u32 s84, s84, {F_Y}")
    p(f"s_lshl_b32 s91, s86, 11\ns_lshl_b32 s90, s{S_NT}, 8\ns_add_u32 s90, s90, s91")
    p(f"s_lshl_b32 s92, s{S_WAVE}, 16\ns_lshl_b32 s93, s{S_NT}, 12\ns_add_u32 s92, s92, s93\ns_add_u32 s92, s92, {MP_B}")
    p(f"v_lshlrev_b32 v{VT}, 2, v{LANE}")
    c.pre_loop_txt = p.L
    c.late = {}
    if opt.get("cpf", 1): c.late[6] = code_prefetch_txt(k.name, L16, 254, 80)
    m = Txt(); m.label = k.label
    MB_ = 160
    mld = [f"buffer_load_dword v{MB_+j}, v{VT}, {sr(SRD_D,4)}, s92 offen offset:{j*256} sc1" for j in range(16)]
    okm = k.label("mok")
    m(f"v_min_u32 v{MB_+16}, v{MB_}, v{MB_+1}")
    for j in range(2, 16, 2): m(f"v_min3_u32 v{MB_+16}, v{MB_+16}, v{MB_+j}, v{MB_+j+1}")
    m(f"v_cmp_eq_u32 vcc, 0, v{MB_+16}\ns_cmp_eq_u64 vcc, 0\ns_cbranch_scc1 {okm}")
    spin(m, mld, [MB_ + j for j in range(16)], MB_ + 16)
    m(f"{okm}:")
    mchk = "\n".join(m.L); m.L = []
    for st in (4, 2, 1):
        for j in range(st): m(f"v_pk_add_f32 {vr(MB_+2*j,2)}, {vr(MB_+2*j,2)}, {vr(MB_+2*(j+st),2)}")
    m(f"v_add_f32 v{MB_}, v{MB_}, v{MB_+1}")
    round_bf16(m, MB_)
    m(f"v_add_f32 v{MB_+1}, 1.0, v{MB_}"); round_bf16(m, MB_ + 1)
    m(f"s_cmp_eq_u32 s{S_WAVE}, 2\ns_cselect_b64 vcc, -1, 0")
    m(f"v_cndmask_b32 v{MB_}, v{MB_}, v{MB_+1}, vcc")
    m(f"s_lshl_b32 s92, s{S_WAVE}, 8\ns_add_u32 s92, s92, {L_MV}\nv_add_u32 v{VT}, s92, v{VT}")
    m(f"ds_write_b32 v{VT}, v{MB_}")
    ms_ = opt.get("g2_modstep", 13)
    c.late.setdefault(ms_ - 2, []).extend([VM(x, ("mv", 0)) for x in mld])
    k_ = [x for x in m.L]
    i_ = next(i for i, x in enumerate(k_) if x.startswith("s_cmp_eq_u32"))
    c.late[ms_] = [WVM([("mv", 0)]), T(mchk)] + k_[:i_] + ["\n".join(k_[i_:])]
    ne = opt.get("g3_e3", 7 if opt.get("split", 1) else 0)
    eu = [x for g in g3_early_units(k.g3, ne, 254) for x in g]
    c.late.setdefault(14, []).extend(eu[:len(eu)//2 // 1]); c.late.setdefault(15, []).extend(eu[len(eu)//2:])
    c.last_reads = ([f"ds_read_b128 {vr(V_G+4*b,4)}, v{V_GA} offset:{b*64}" for b in range(4)] + [f"ds_read_b128 {vr(V_C+4*b,4)}, v{V_GA} offset:{512+b*64}" for b in range(4)]
                    + [f"ds_read_b128 {vr(V_S+4*b,4)}, v{V_GA} offset:{256+b*64}" for b in range(4)])
    c.run(k)
    k.stamp("g2 loop done")
    k("s_waitcnt lgkmcnt(0)\ns_nop 7")
    A = lambda b, t: (b * 2 + t) * 4
    XT = 194; V_X = c.V_X
    for t in range(2):
        for b in range(4):
            xr = V_X + (t * 4 + b) * 2
            for h in range(2): k(f"v_lshlrev_b32 v{XT+2*h}, 16, v{xr+h}\nv_and_b32 v{XT+2*h+1}, 0xffff0000, v{xr+h}")
            for h in range(2): k(f"v_pk_fma_f32 {vr(A(b,t)+2*h,2)}, {vr(A(b,t)+2*h,2)}, {vr(V_G+4*b+2*h,2)}, {vr(XT+2*h,2)}")
        PK = XT + 4 + t * 8
        for b in range(4): k(f"v_cvt_pk_bf16_f32 v{PK+2*b}, v{A(b,t)}, v{A(b,t)+1}\nv_cvt_pk_bf16_f32 v{PK+2*b+1}, v{A(b,t)+2}, v{A(b,t)+3}")
        for b in range(4):
            for h in range(2): k(f"v_lshlrev_b32 v{A(b,t)+2*h}, 16, v{PK+2*b+h}\nv_and_b32 v{A(b,t)+2*h+1}, 0xffff0000, v{PK+2*b+h}")
    SU = [XT + 20, XT + 22]; M2 = [XT + 21, XT + 23]; TM = [XT + 24, XT + 25]; AC = [XT, XT + 2]; NM = [XT + 26, XT + 28]; DF = 32
    for t in range(2): k(f"v_pk_add_f32 {vr(AC[t],2)}, {vr(A(0,t),2)}, {vr(A(0,t)+2,2)}")
    for b in range(1, 4):
        for h in range(2):
            for t in range(2): k(f"v_pk_add_f32 {vr(AC[t],2)}, {vr(AC[t],2)}, {vr(A(b,t)+2*h,2)}")
    def allred2(X):
        for sw in ("v_permlane32_swap_b32", "v_permlane16_swap_b32"):
            for t in range(2): k(f"v_mov_b32 v{TM[t]}, v{X[t]}")
            k("s_nop 0")
            for t in range(2): k(f"{sw} v{X[t]}, v{TM[t]}")
            k("s_nop 0")
            for t in range(2): k(f"v_add_f32 v{X[t]}, v{X[t]}, v{TM[t]}")
    for t in range(2): k(f"v_add_f32 v{SU[t]}, v{AC[t]}, v{AC[t]+1}")
    allred2(SU)
    for t in range(2): k(f"v_mul_f32 v{NM[t]}, {-1.0/64!r}, v{SU[t]}\nv_mov_b32 v{AC[t]}, 0\nv_mov_b32 v{AC[t]+1}, 0")
    for b in range(4):
        for h in range(2):
            for t in range(2): k(f"v_pk_add_f32 {vr(DF+2*t,2)}, {vr(A(b,t)+2*h,2)}, {vr(NM[t],2)} op_sel_hi:[1,0]")
            for t in range(2): k(f"v_pk_fma_f32 {vr(AC[t],2)}, {vr(DF+2*t,2)}, {vr(DF+2*t,2)}, {vr(AC[t],2)}")
    for t in range(2): k(f"v_add_f32 v{M2[t]}, v{AC[t]}, v{AC[t]+1}")
    allred2(M2)
    k(f"v_cmp_gt_u32 vcc, 16, v{LANE}")
    k(f"v_lshlrev_b32 v{XT+2}, 3, v{LANE}\nv_lshrrev_b32 v{XT+3}, 4, v{LANE}")
    k(f"v_cndmask_b32 v{XT}, v{SU[1]}, v{SU[0]}, vcc\nv_cndmask_b32 v{XT+1}, v{M2[1]}, v{M2[0]}, vcc")
    k(f"v_and_b32 v45, 0x78, v{XT+2}\nv_lshl_add_u32 v45, v{XT+3}, 10, v45")
    k(f"v_or_b32 v{XT+1}, 1, v{XT+1}")
    k(f"v_cmp_gt_u32 vcc, 32, v{LANE}\ns_and_saveexec_b64 s[96:97], vcc")
    k(f"buffer_store_dwordx2 {vr(XT,2)}, v{XT+2}, {sr(SRD_B,4)}, s90 offen sc1")
    k("s_mov_b64 exec, s[96:97]")
    k.stamp("stat stored")
    for t in range(2):
        for b in range(4):
            for h in range(2): k(f"v_pk_mul_f32 {vr(A(b,t)+2*h,2)}, {vr(A(b,t)+2*h,2)}, {vr(V_C+4*b+2*h,2)}")
    for j in range(16): k(f"v_accvgpr_write_b32 a{A_X1+j}, v{XT+4+j}")
    g3 = k.g3
    setup_gemm3_late(k, g3)
    g3.prefetch(k, opt.get("g3_pre0", 0))
    ST = 48
    spin(k, [f"buffer_load_dwordx2 {vr(ST+t*8+j*2,2)}, v45, {sr(SRD_B,4)}, s91 offen offset:{t*128+j*256} sc1" for t in range(2) for j in range(4)],
         [ST + 2 * j + 1 for j in range(8)], XT)
    k.stamp("stat ready")
    for t in range(2):
        b = ST + t * 8
        k(f"v_add_f32 v{SU[t]}, v{b}, v{b+2}\nv_add_f32 v{TM[t]}, v{b+4}, v{b+6}\nv_add_f32 v{SU[t]}, v{SU[t]}, v{TM[t]}")
        k(f"v_add_f32 v{M2[t]}, v{b+1}, v{b+3}\nv_add_f32 v{TM[t]}, v{b+5}, v{b+7}\nv_add_f32 v{M2[t]}, v{M2[t]}, v{TM[t]}")
    allred2(SU)
    for t in range(2): k(f"v_mul_f32 v{SU[t]}, {-1.0/1024!r}, v{SU[t]}")
    for j in range(4):
        for t in range(2): k(f"v_fmamk_f32 v{ST+t*8+2*j}, v{ST+t*8+2*j}, {1.0/64!r}, v{SU[t]}")
        for t in range(2): k(f"v_mul_f32 v{ST+t*8+2*j}, v{ST+t*8+2*j}, v{ST+t*8+2*j}")
        for t in range(2): k(f"v_fmac_f32 v{M2[t]}, 0x42800000, v{ST+t*8+2*j}")
    allred2(M2)
    for t in range(2): k(f"v_mov_b32 v{TM[t]}, 0x3727c5ac\nv_fmac_f32 v{TM[t]}, {1.0/1024!r}, v{M2[t]}")
    for t in range(2): k(f"v_rsq_f32 v{NM[t]}, v{TM[t]}")
    k("s_nop 0")
    for t in range(2): k(f"v_mul_f32 v{NM[t]+1}, v{SU[t]}, v{NM[t]}")
    for t in range(2):
        YK = ST + t * 8
        for b in range(4):
            for h in range(2): k(f"v_pk_fma_f32 {vr(XT+2*h,2)}, {vr(V_C+4*b+2*h,2)}, {vr(NM[t],2)}, {vr(V_S+4*b+2*h,2)} op_sel:[0,1,0] op_sel_hi:[1,1,1]")
            for h in range(2): k(f"v_pk_fma_f32 {vr(XT+2*h,2)}, {vr(A(b,t)+2*h,2)}, {vr(NM[t],2)}, {vr(XT+2*h,2)} op_sel_hi:[1,0,1]")
            k(f"v_cvt_pk_bf16_f32 v{YK+2*b}, v{XT}, v{XT+1}\nv_cvt_pk_bf16_f32 v{YK+2*b+1}, v{XT+2}, v{XT+3}")
        for s_ in range(2): k(f"buffer_store_dwordx4 {vr(YK+4*s_,4)}, v{L16}, {sr(SRD_A,4)}, s{88+t} offen offset:{s_*1024} sc1")
    publish(k, 84, 40)
    k.stamp("y published")
    g3.prefetch(k, opt.get("g3_pre", 0))
    return g3

def phase_gemm3(k, c, opt):
    LANE, L16, VT = c.LANE, c.L16, c.VT
    NB, TB = 14, 4
    srd(k, SRD_T, P_WS, S * D * 2, WS_Y)
    srd(k, SRD_C, P_WS, S * F * 2, WS_HH)
    k(f"v_and_b32 v{VT}, 31, v{LANE}\nv_lshlrev_b32 v{VT}, {FS}, v{VT}")
    k(f"s_lshl_b32 s84, s{S_RB3}, 2\ns_add_u32 s84, s84, s{S_WAVE}")
    k(f"s_lshl_b32 s85, s84, {FS+5}\ns_add_u32 s85, s85, {F_Y}")
    staged_wait(k, c, opt.get("g3_T", 3), VT, 85, VT + 1, one_prod, dup16=True)
    k.stamp("y ready")
    p = Txt()
    p(f"s_mul_i32 s88, s84, {448*1024}\ns_mul_i32 s92, s{S_FT}, 3584\ns_add_u32 s88, s88, s92")
    for t in range(1, 4): p(f"s_add_u32 s{88+t}, s88, {t*112*1024}")
    p(f"s_lshl_b32 s93, s84, {FS+5}\ns_lshl_b32 s94, s{S_FT}, {FS}\ns_add_u32 s93, s93, s94\ns_add_u32 s94, s93, {F_HB}\ns_add_u32 s93, s93, {F_HH}")
    p(f"s_mov_b32 s86, {-LOG2E!r}\ns_mov_b32 s87, {-LOG2E!r}")
    SB = 241
    p(f"v_lshrrev_b32 v{SB}, 1, v{L16}")
    c.pre_loop_txt = p.L
    if opt.get("cpf", 1):
        for st_ in opt.get("cp3", [6, 22]): c.late.setdefault(st_, []).extend(code_prefetch_txt(k.name, L16, 254, 80, junk="v240"))
    if opt.get("w2touch", 1):
        ws_ = opt.get("w2steps", [16]); per = 56 // len(ws_)
        for j, st_ in enumerate(ws_):
            c.late.setdefault(st_, []).extend([f"s_lshl_b32 s80, s2, 2", f"s_add_u32 s80, s80, s{S_WAVE}", "s_mul_i32 s80, s80, 7168", f"s_add_u32 s80, s80, {j*per*128}",
                      f"v_min_u32 v253, {per-1}, v{LANE}", "v_lshlrev_b32 v253, 7, v253", "v_add_u32 v253, s80, v253",
                      f"global_load_dword v240, v253, s[{P_W2}:{P_W2+1}]"])
    for j, st_ in enumerate(opt.get("w2l2", [27, 28])):
        c.late.setdefault(st_, []).extend([
            f"s_lshl_b32 s80, s{S_IDX}, 2", f"s_add_u32 s80, s80, s{S_WAVE}", "s_mul_i32 s80, s80, 14", f"s_add_u32 s80, s80, {7*j}",
            f"s_and_b32 s81, s{S_XCD}, 1", "s_mul_i32 s81, s81, 1792", "s_add_u32 s80, s80, s81", "s_lshl_b32 s80, s80, 11",
            f"s_lshr_b32 s81, s{S_XCD}, 2", "s_lshl_b32 s81, s81, 10", "s_add_u32 s80, s80, s81",
            f"v_min_u32 v253, 55, v{LANE}", "v_lshrrev_b32 v254, 3, v253", "v_lshlrev_b32 v254, 11, v254", "v_and_b32 v253, 7, v253", "v_lshl_add_u32 v253, v253, 7, v254",
            "v_add_u32 v253, s80, v253", f"global_load_dword v240, v253, s[{P_W2}:{P_W2+1}]"])
    t4 = Txt()
    g4 = setup_gemm4p(t4, opt, 242)
    half = len(t4.L) // 2
    c.late[19] = t4.L[:half]; c.late[20] = t4.L[half:]
    pf = g4.prefetch_txt(4); c.late[29] = pf
    pf = g4.prefetch_txt(4); c.late[30] = pf
    def G(s, t): return ((2 * s) * TB + t) * 4
    def Uu(s, t): return ((2 * s + 1) * TB + t) * 4
    def act(k, slots, t, scalar=False):
        if scalar:
            for s in slots:
                for r in range(4):
                    k(f"v_mul_f32 v{Uu(s,t)+r}, v{G(s,t)+r}, v{Uu(s,t)+r}")
                    k(f"v_mul_f32 v{G(s,t)+r}, s86, v{G(s,t)+r}")
            rs = [(s, r) for s in slots for r in range(4)]
            for i, (s, r) in enumerate(rs): k(f"v_exp_f32 v{G(s,t)+r}, v{G(s,t)+r}")
            for i, (s, r) in enumerate(rs): k(f"v_add_f32 v{G(s,t)+r}, 1.0, v{G(s,t)+r}")
            for i, (s, r) in enumerate(rs): k(f"v_rcp_f32 v{G(s,t)+r}, v{G(s,t)+r}")
            for i, (s, r) in enumerate(rs): k(f"v_mul_f32 v{Uu(s,t)+r}, v{Uu(s,t)+r}, v{G(s,t)+r}")
            return
        for s in slots:
            for h in range(2):
                k(f"v_pk_mul_f32 {vr(Uu(s,t)+2*h,2)}, {vr(G(s,t)+2*h,2)}, {vr(Uu(s,t)+2*h,2)}")
                k(f"v_pk_mul_f32 {vr(G(s,t)+2*h,2)}, {vr(G(s,t)+2*h,2)}, s[86:87]")
        for s in slots:
            for r in range(4): k(f"v_exp_f32 v{G(s,t)+r}, v{G(s,t)+r}")
        for s in slots:
            for h in range(2): k(f"v_pk_add_f32 {vr(G(s,t)+2*h,2)}, {vr(G(s,t)+2*h,2)}, 1.0 op_sel_hi:[1,0]")
        for s in slots:
            for r in range(4): k(f"v_rcp_f32 v{G(s,t)+r}, v{G(s,t)+r}")
        for s in slots:
            for h in range(2): k(f"v_pk_mul_f32 {vr(Uu(s,t)+2*h,2)}, {vr(Uu(s,t)+2*h,2)}, {vr(G(s,t)+2*h,2)}")
    def pair(k, pr, t, scalar=False):
        s0, s1 = 2 * pr, 2 * pr + 1
        act(k, [s0, s1], t, scalar)
        d = G(s0, t)
        k(f"v_cvt_pk_bf16_f32 v{d}, v{Uu(s0,t)}, v{Uu(s0,t)+1}\nv_cvt_pk_bf16_f32 v{d+1}, v{Uu(s0,t)+2}, v{Uu(s0,t)+3}")
        k(f"v_cvt_pk_bf16_f32 v{d+2}, v{Uu(s1,t)}, v{Uu(s1,t)+1}\nv_cvt_pk_bf16_f32 v{d+3}, v{Uu(s1,t)+2}, v{Uu(s1,t)+3}")
        k(f"buffer_store_dwordx4 {vr(d,4)}, v{L16}, {sr(SRD_C,4)}, s{88+t} offen offset:{pr*1024} sc1")
        if opt.get("dbl", 0): k(f"buffer_store_dwordx4 {vr(d,4)}, v{L16}, {sr(SRD_C,4)}, s{88+t} offen offset:{pr*1024}")
    ea = Txt(); eb = Txt()
    nin = opt.get("g3_nin", 8) if c.TL else 0
    for i, (pr, t) in enumerate([(pr, t) for pr in range(2) for t in range(TB)]):
        if i < nin: pair(ea, pr, t, opt.get("g3_scalar", 0))
        else: pair(eb, pr, t)
    if c.TL:
        nst = opt.get("g3_east", c.TL - 1)
        per = -(-len(ea.L) // nst)
        c.step_extra = lambda st: ea.L[(st - 32) * per:(st - 31) * per] if st >= 32 else []
    c.run(k)
    k.stamp("g3 loop done")
    if not c.TL: k("s_nop 7")
    k("s_barrier")
    mkE = len(k.L)
    for x in eb.L: k(x)
    grp = []
    for j in range(opt.get("g4_pa", 0)):
        t_ = g4.prefetch_txt(1); grp.append(t_[:-1] + ["s_nop 0", t_[-1]])
    sprinkle(k, mkE, grp)
    mkA = len(k.L)
    na = opt.get("g3_pubA", 2)
    for t in range(na): pair(k, 2, t)
    publish(k, 93, 252, mkA)
    k.stamp("hA published")
    mark3 = len(k.L)
    for t in range(na, TB): pair(k, 2, t)
    grp = []
    for j in range(opt.get("g4_pb", 8)):
        t_ = g4.prefetch_txt(1); grp.append(t_[:-1] + ["s_nop 0", t_[-1]])
    sprinkle(k, mark3, grp)
    for t in range(TB):
        act(k, [6], t)
        d = G(6, t)
        k(f"v_cvt_pk_bf16_f32 v{d}, v{Uu(6,t)}, v{Uu(6,t)+1}\nv_cvt_pk_bf16_f32 v{d+1}, v{Uu(6,t)+2}, v{Uu(6,t)+3}")
        k(f"buffer_store_dwordx2 {vr(d,2)}, v{SB}, {sr(SRD_C,4)}, s{88+t} offen offset:3072 sc1")
    k.stamp("hh stored")
    return g4

def phase_gemm4(k, c, opt):
    LANE, L16 = c.LANE, c.L16
    VT = 40
    srd(k, SRD_T, P_WS, S * F * 2, WS_HH)
    srd(k, SRD_A, P_OUT, S * D * 2)
    k(f"v_and_b32 v{VT}, 31, v{LANE}\nv_lshlrev_b32 v{VT}, 2, v{VT}")
    k(f"s_lshl_b32 s84, s{S_RB2}, 1\ns_lshr_b32 s85, s{S_WAVE}, 1\ns_add_u32 s84, s84, s85\ns_lshl_b32 s84, s84, {FS+5}\ns_add_u32 s84, s84, {F_HH}")
    wait_flags(k, [(VT, 84, 1)], VT + 1)
    k.stamp("hh ready")
    V_G, V_GA, V_XA, V_X = 64, 44, 45, 48
    p = Txt()
    p(f"v_lshrrev_b32 v{VT}, 4, v{LANE}\nv_lshlrev_b32 v{V_GA}, 4, v{VT}\nv_add_u32 v{V_GA}, {L_MV}, v{V_GA}")
    p(f"v_and_b32 v{VT+1}, 15, v{LANE}\nv_lshlrev_b32 v{VT+1}, 11, v{VT+1}")
    p(f"v_and_b32 v{VT+2}, 1, v{VT}\nv_lshl_add_u32 v{VT+1}, v{VT+2}, 5, v{VT+1}")
    p(f"v_lshrrev_b32 v{VT+2}, 1, v{VT}\nv_lshl_add_u32 v{V_XA}, v{VT+2}, 4, v{VT+1}")
    p(f"s_lshl_b32 s86, s{S_RB2}, 3\ns_lshl_b32 s87, s{S_WAVE}, 1\ns_add_u32 s86, s86, s87\ns_lshl_b32 s86, s86, 15\ns_lshl_b32 s87, s{S_NT}, 7\ns_add_u32 s86, s86, s87\ns_add_u32 s87, s86, 32768")
    for j in range(16): p(f"v_accvgpr_read_b32 v{V_X+j}, a{A_X1+j}")
    c.pre_loop_txt = p.L
    c.last_reads = [f"ds_read_b128 {vr(V_G+4*b,4)}, v{V_GA} offset:{768+b*64}" for b in range(4)]
    c.run(k)
    k.stamp("g4 loop done")
    k("s_waitcnt lgkmcnt(0)\ns_nop 7")
    A = lambda b, t: (b * 2 + t) * 4
    XT = 96
    for t in range(2):
        for b in range(4):
            xr = V_X + (t * 4 + b) * 2
            for h in range(2): k(f"v_lshlrev_b32 v{XT+2*h}, 16, v{xr+h}\nv_and_b32 v{XT+2*h+1}, 0xffff0000, v{xr+h}")
            for h in range(2): k(f"v_pk_fma_f32 {vr(A(b,t)+2*h,2)}, {vr(A(b,t)+2*h,2)}, {vr(V_G+4*b+2*h,2)}, {vr(XT+2*h,2)}")
        PK = XT + 4 + t * 8
        for b in range(4): k(f"v_cvt_pk_bf16_f32 v{PK+2*b}, v{A(b,t)}, v{A(b,t)+1}\nv_cvt_pk_bf16_f32 v{PK+2*b+1}, v{A(b,t)+2}, v{A(b,t)+3}")
        k("s_nop 1")
        for s_ in range(2): k(f"v_permlane16_swap_b32 v{PK+4*s_}, v{PK+4*s_+2}\nv_permlane16_swap_b32 v{PK+4*s_+1}, v{PK+4*s_+3}")
        for s_ in range(2): k(f"buffer_store_dwordx4 {vr(PK+4*s_,4)}, v{V_XA}, {sr(SRD_A,4)}, s{86+t} offen offset:{s_*64}")

def build_mega(instr=False, opt=None, name="mega_kernel"):
    opt = opt or {}
    k = Mega(name, 256, 256, LDS_TOTAL, vgpr=256, agpr=256, sgpr=102)
    k.instr = instr; k.names = []; k.only = opt.get("only")
    end = k.label("end")
    far = k.label("go")
    if opt.get("diag2") is not None: k("s_memrealtime s[72:73]")
    k(f"s_cmp_lt_u32 s2, 256\ns_cbranch_scc1 {far}\ns_endpgm\n{far}:")
    if opt.get("fused", 1):
        code_prefetch_setup(k, name)
        k("v_and_b32 v104, 63, v0\nv_lshlrev_b32 v105, 4, v104\nv_lshlrev_b32 v254, 5, v0")
        k("global_load_dword a232, v254, s[100:101]")
        k("s_load_dwordx2 s[96:97], s[0:1], 88")
        if opt.get("dbgout"): k("s_load_dwordx2 s[72:73], s[0:1], 88")
    k("s_load_dwordx8 s[4:11], s[0:1], 0")
    k("s_load_dwordx2 s[12:13], s[0:1], 64")
    k("s_load_dwordx2 s[14:15], s[0:1], 40")
    k("s_load_dwordx4 s[16:19], s[0:1], 48")
    k("s_load_dwordx2 s[98:99], s[0:1], 72")
    k("s_load_dwordx2 s[24:25], s[0:1], 80")
    k("s_load_dwordx2 s[28:29], s[0:1], 96")
    if instr: k(f"v_mov_b32 v{VSTAMP}, 0")
    ids(k)
    k(f"s_lshr_b32 s80, s{S_IDX}, 2\ns_add_u32 s{S_R4}, s80, s{S_IDX}\ns_and_b32 s81, s{S_IDX}, 3\ns_lshl_b32 s81, s81, 1\ns_add_u32 s{S_R8}, s80, s81")
    if opt.get("g3map", 0):
        k(f"s_bfe_u32 s{S_RB3}, s{S_XCD}, 0x10001\ns_lshl_b32 s{S_RB3}, s{S_RB3}, 2\ns_lshr_b32 s80, s{S_IDX}, 3\ns_add_u32 s{S_RB3}, s{S_RB3}, s80")
        k(f"s_and_b32 s{S_FT}, s{S_XCD}, 1\ns_lshl_b32 s{S_FT}, s{S_FT}, 4\ns_lshr_b32 s81, s{S_XCD}, 2\ns_lshl_b32 s81, s81, 3\ns_add_u32 s{S_FT}, s{S_FT}, s81\ns_and_b32 s81, s{S_IDX}, 7\ns_add_u32 s{S_FT}, s{S_FT}, s81")
        k(f"s_add_u32 s72, s80, s{S_IDX}\ns_lshl_b32 s80, s80, 1\ns_add_u32 s73, s80, s{S_IDX}")
    else:
        k(f"s_and_b32 s80, s{S_IDX}, 3\ns_lshl_b32 s{S_FT}, s{S_XCD}, 2\ns_add_u32 s{S_FT}, s{S_FT}, s80\ns_lshr_b32 s{S_RB3}, s{S_IDX}, 2")
    if opt.get("fused", 1):
        for x in code_prefetch_txt(name, 105, 254, 80): k(x)
    k.stamp("start")
    g1 = (phase_front_fused if opt.get("fused", 1) else phase_front)(k, opt, name)
    g2 = (phase_gemm1s if opt.get('split', 1) else phase_gemm1)(k, g1, opt)
    g3 = phase_gemm2(k, g2, opt)
    g4 = phase_gemm3(k, g3, opt)
    (phase_gemm4p if opt.get('g4_pair', 1) else phase_gemm4)(k, g4, opt)
    if opt.get("diag2") is not None:
        lp, sk = k.label("dg"), k.label("dgs")
        if opt["diag2"] >= 0: k(f"s_cmp_lg_u32 s2, {opt['diag2']}\ns_cbranch_scc1 {sk}")
        k(f"{lp}:\ns_memrealtime s[0:1]\ns_waitcnt lgkmcnt(0)\ns_sub_u32 s87, s0, s72\ns_cmp_lt_u32 s87, 10000\ns_cbranch_scc1 {lp}\n{sk}:")
    elif opt.get("diag"):
        a_, b_ = opt["diag"]
        k(f"v_readlane_b32 s84, v{VSTAMP}, 0\nv_readlane_b32 s85, v{VSTAMP}, {a_}\nv_readlane_b32 s86, v{VSTAMP}, {b_}\ns_nop 3")
        k("s_sub_u32 s86, s86, s85\ns_add_u32 s86, s86, 10000")
        lp = k.label("dg")
        k(f"{lp}:\ns_memrealtime s[0:1]\ns_waitcnt lgkmcnt(0)\ns_sub_u32 s87, s0, s84\ns_cmp_lt_u32 s87, s86\ns_cbranch_scc1 {lp}")
    elif instr:
        k("s_waitcnt vmcnt(0)")
        k.stamp("end")
        k(f"s_add_u32 s84, s{P_WS}, {WS_DBG}\ns_addc_u32 s85, s{P_WS+1}, 0\ns_mov_b32 s86, 0x100000\ns_mov_b32 s87, 0x20000")
        k(f"s_lshl_b32 s88, s2, 2\ns_add_u32 s88, s88, s{S_WAVE}\ns_lshl_b32 s88, s88, 8")
        lane_id(k, 1)
        k("v_lshlrev_b32 v1, 2, v1")
        k(f"buffer_store_dword v{VSTAMP}, v1, s[84:87], s88 offen")
        if opt.get("dbgout"):
            sk = k.label("nodbg")
            k(f"s_lshl_b32 s88, s2, 2\ns_add_u32 s88, s88, s{S_WAVE}\ns_cmp_lg_u32 s88, {opt['dbgout']*4}\ns_cbranch_scc1 {sk}")
            k("s_mov_b32 s84, s72\ns_mov_b32 s85, s73\ns_mov_b32 s86, 64\ns_mov_b32 s87, 0x20000")
            k(f"v_readlane_b32 s89, v{VSTAMP}, 0\ns_nop 3\nv_subrev_u32 v2, s89, v{VSTAMP}")
            k("buffer_store_dword v2, v1, s[84:87], 0 offen offset:12")
            k(f"{sk}:")
    k("s_endpgm")
    k(f"{name}_end:")
    return k
```

```python
from asmlib import *
MF = "v_mfma_f32_16x16x32_bf16"

class Item:
    __slots__ = ("kind", "txt", "key", "lgkm")
    def __init__(self, kind, txt=None, key=None, lgkm=None):
        self.kind = kind; self.txt = txt; self.key = key; self.lgkm = lgkm
def T(txt): return Item("txt", txt)
def VM(txt, key): return Item("vm", txt, key)
def WVM(keys, lgkm=None): return Item("wvm", None, keys, lgkm)
def is_vm(x): return x.startswith("buffer_") or x.startswith("global_")

class Txt:
    def __init__(self): self.L = []
    def __call__(self, s): self.L += [x.strip() for x in s.split("\n") if x.strip()]

def win_mask(sizes):
    out, b = [], 0
    for w in sizes:
        out += [(b, w - 1)] * w; b += w
    return out

class Sched:
    pro_units = 0; ramp_rate = 99; read_margin = 8; lookahead = 99
    step_extra = None; late = None; last_reads = (); pre_loop_txt = (); drop = ()
    pre_dma = 0
    gate_min = {}
    w_off = None; t_off = None; sub_stride = 1024
    first_flag = ''
    wreg = staticmethod(ar); wbase = 0
    pub0 = ()
    fine = 0
    bar_frac = 0.3
    stamp_every = 0; tag = ''
    def __init__(self):
        self.steps = []; self.stage_units = {}; self.stage_slot = {}; self.tok_units = {}; self.tok_slot = {}
        self.late = {}
    lead_D = None
    s_start = None
    gates = ()
    tile_of = staticmethod(lambda key: key)
    def lead_init(self, k, s_r, s_tmp):
        D = self.lead_D
        for m in range(4):
            d = self.s_dl + m
            k(f"s_sub_u32 s{s_tmp}, {m}, s{s_r}\ns_and_b32 s{s_tmp}, s{s_tmp}, 3")
            k(f"s_cmp_eq_u32 s{s_tmp}, 1\ns_cselect_b32 s{d}, {2+D}, {1+D}")
            k(f"s_cmp_eq_u32 s{s_tmp}, 0\ns_cselect_b32 s{d}, 0, s{d}")
    def pos_txt(self, s_dst, kt):
        KT = self.KT
        pow2 = KT & (KT - 1) == 0
        if self.lead_D is not None:
            assert self.s_start is None
            if kt < 2 + self.lead_D:
                return [f"s_sub_u32 s{s_dst}, {kt + KT}, s{self.s_dl + kt % 4}", f"s_sub_u32 s{self.s_ptmp}, s{s_dst}, {KT}", f"s_min_u32 s{s_dst}, s{s_dst}, s{self.s_ptmp}"]
            return [f"s_sub_u32 s{s_dst}, {kt}, s{self.s_dl + kt % 4}"]
        base, mask = self.wins[kt]
        if mask == 0:
            if self.s_start is None: return [f"s_mov_b32 s{s_dst}, {base}"]
            o = [f"s_add_u32 s{s_dst}, s{self.s_start}, {base}"]
        else:
            o = [f"s_add_u32 s{s_dst}, s{self.s_rot if mask > 3 else self.s_rot2}, {kt - base}", f"s_and_b32 s{s_dst}, s{s_dst}, {mask}"]
            if base: o.append(f"s_add_u32 s{s_dst}, s{s_dst}, {base}")
            if self.s_start is None: return o
            o.append(f"s_add_u32 s{s_dst}, s{s_dst}, s{self.s_start}")
        if pow2: o.append(f"s_and_b32 s{s_dst}, s{s_dst}, {KT-1}")
        else: o += [f"s_sub_u32 s{self.s_ptmp}, s{s_dst}, {KT}", f"s_min_u32 s{s_dst}, s{s_dst}, s{self.s_ptmp}"]
        return o
    def pos_items(self, s_dst, kt, stride):
        return [T(x) for x in self.pos_txt(s_dst, kt)] + [T(f"s_mul_i32 s{s_dst}, s{s_dst}, {stride}")]
    def _dma_list(self):
        return [(s, i) for s in sorted(self.stage_units) for i in range(len(self.stage_units[s]))]
    def prefetch(self, k, n):
        for s, i in self._dma_list()[self.pre_dma:self.pre_dma + n]:
            for x in self.stage_units[s][i]:
                if x.kind == "vm": k("s_nop 0")
                k(x.txt)
        self.pre_dma += n
    def prefetch_txt(self, n):
        t = Txt(); self.prefetch(t, n); return [x for x in t.L if x != "s_nop 0"]

    def run(self, k):
        c = self
        N = len(c.steps)
        sfirst, slast, tfirst, tlast = {}, {}, {}, {}
        for i, st in enumerate(c.steps):
            for s in st["stages"]: sfirst.setdefault(s, i); slast[s] = i
            for t in st["toks"]: tfirst.setdefault(t, i); tlast[t] = i
        bars = {}
        for s, f in sfirst.items():
            if s not in c.pub0: bars.setdefault(f - 1, []).append(s)
        barsteps = sorted(bars)
        units = {"dma": [], "tok": []}
        prev = {}
        skip = c.pre_dma
        for s in sorted(c.stage_units):
            sl = c.stage_slot[s]
            e = -1 if sl not in prev else min(b for b in barsteps if b >= slast[prev[sl]])
            prev[sl] = s
            for i, u in enumerate(c.stage_units[s]):
                if skip: skip -= 1; assert e == -1; continue
                units["dma"].append((sfirst[s] - 1, e, "dma", u))
        prev = {}
        for key in sorted(c.tok_units, key=lambda q: (tfirst[q], q)):
            sl = c.tok_slot[key]
            e = -1 if sl not in prev else tlast[prev[sl]] + 1
            e = max(e, tfirst[key] - c.lookahead, -1)
            for gt, gm in c.gate_min.items():
                if c.tile_of(key) >= gt: e = max(e, gm)
            prev[sl] = key
            for u in c.tok_units[key]: units["tok"].append((tfirst[key], e, "tok", u, c.tile_of(key)))
        issue = {}
        pos, cnt, cap = -1, 0, c.pro_units
        rate = c.ramp_rate if callable(c.ramp_rate) else (lambda s: c.ramp_rate)
        while units["dma"] or units["tok"]:
            cand = [q[0] for q in units.values() if q and q[0][1] <= pos]
            if cand and cnt < cap:
                u = min(cand, key=lambda u: (u[0], 0 if u[2] == "dma" else 1))
                issue.setdefault(pos, []).append(u); units[u[2]].pop(0); cnt += 1
                assert pos < u[0] or pos == -1, ("late unit", u[:3], pos)
            else:
                pos += 1; cnt = 0; cap = rate(pos)
        gate_at = {}
        for gt, gp, gi in c.gates:
            gs_ = min(st for st, us in issue.items() if any(u[2] == "tok" and u[4] >= gt for u in us))
            assert gs_ >= 1 and gs_ not in gate_at, gs_
            gate_at[gs_] = (gp, gi)
            if gt in c.gate_min: assert gs_ >= c.gate_min[gt], (gt, gs_)
        def read_items(step):
            out = []
            for j, (va, o0, o1, _) in enumerate(c.steps[step]["frags"]):
                for r, off in enumerate((o0, o1)):
                    assert 0 <= off < 65536, off
                    out.append(Item("ds", f"ds_read_b64_tr_b16 {c.wreg(c.wbase+c.wf(step % 2, j)+2*r,2)}, v{va} offset:{off}", (step, j)))
            return out
        def bar(step): return [WVM([("dma", s) for s in bars[step]], lgkm=(0 if c.fine else None)), T("s_barrier")]
        def conv(x):
            if isinstance(x, Item): return x
            return VM(x, ("extra", 0)) if is_vm(x) else T(x)
        pro = []
        for u in issue.get(-1, []):
            for x in u[3]:
                if x.kind == "vm" and x.txt.endswith("lds"): pro.append(T("s_nop 0"))
                pro.append(x)
        pro += [conv(x) for x in c.pre_loop_txt]
        pro += (bar(-1) if -1 in bars else []) + read_items(0)
        touched = set(c.acc_init) if hasattr(c, "acc_init") else set()
        def make_step(step):
            st = c.steps[step]
            newt = [("tok", t) for t in st["toks"] if tfirst[t] == step]
            out = [WVM(newt, lgkm=0)] if not c.fine else ([WVM(newt)] if newt else [])
            mf = []
            pre = {}
            nf = len(st["frags"])
            for j, (_, _, _, ms) in enumerate(st["frags"]):
                if c.fine and j % c.fine == 0: pre[len(mf)] = Item("wds", None, (step, min(nf - 1, j + c.fine - 1)))
                for acc, tr in (ms if j % 2 == 0 else ms[::-1]):
                    cin = acc if acc in touched else "0"
                    touched.add(acc)
                    mf.append(T(f"{MF} {acc}, {c.wreg(c.wbase+c.wf(step%2, j),4)}, {ar(tr,4)}, {cin}"))
            n = len(mf)
            gaps = [[] for _ in range(n)]
            g0 = 0
            if step in bars:
                gb = int(n * c.bar_frac) if c.fine else 0
                gaps[gb] += bar(step); g0 = gb + 1
            us = issue.get(step, [])
            a = [u for u in us if u[2] == "dma"]; b_ = [u for u in us if u[2] == "tok"]
            if us and min(u[0] for u in us) > step + 1:
                seq = []
                while a or b_:
                    if b_: seq.append(b_.pop(0))
                    if a: seq.append(a.pop(0))
            else: seq = us
            B = []
            if step in gate_at: B += [conv(x) for x in gate_at[step][1]]
            for u in seq: B += u[3]
            B += [conv(x) for x in c.late.get(step, [])]
            if step + 1 in gate_at: B = B[:len(gate_at[step][1]) if step in gate_at else 0] + [conv(x) for x in gate_at[step + 1][0]] + B[len(gate_at[step][1]) if step in gate_at else 0:]
            A = read_items(step + 1) if step + 1 < N else [T(x) for x in c.last_reads]
            X = [conv(x) for x in (c.step_extra(step) if c.step_extra else [])]
            want = []
            ra = max(1, n - (0 if c.fine else c.read_margin) - g0)
            for i, x in enumerate(A): want.append((g0 + i * ra / len(A), 0, i, x))
            for i, x in enumerate(B): want.append((g0 + (i + 0.5) * (n - g0) / len(B), 1, i, x))
            for i, x in enumerate(X): want.append((g0 + (i + 0.25) * (n - g0) / len(X), 2, i, x))
            want.sort(key=lambda w: (w[0], w[1], w[2]))
            cap = max(1, -(-len(want) // (n - g0)))
            g = g0
            for pos_, _, _, x in want:
                g = max(g, min(n - 1, int(pos_)))
                while g < n - 1 and len(gaps[g]) >= cap: g += 1
                gaps[g].append(x)
            for i in range(n):
                if i in pre: out.append(pre[i])
                out.append(mf[i])
                prev = None
                for x in gaps[i]:
                    if x.kind == "vm" and x.txt.endswith("lds") and prev is not None and prev.txt and " m0," in prev.txt:
                        out.append(T("s_nop 0"))
                    out.append(x); prev = x
            return out
        issued = []
        ds = []
        def emit(items):
            for x in items:
                if x.kind == "wds":
                    idx = [i for i, kk in enumerate(ds) if kk == x.key]
                    if idx:
                        n = min(15, len(ds) - 1 - idx[-1])
                        k(f"s_waitcnt lgkmcnt({n})")
                        del ds[:len(ds) - n]
                elif x.kind == "wvm":
                    if x.lgkm == 0: ds.clear()
                    n = 63
                    for key in x.key:
                        idx = [i for i, kk in enumerate(issued) if kk == key]
                        n = min(n, len(issued) - 1 - idx[-1] if idx else len(issued))
                    parts = ([f"vmcnt({n})"] if x.key else []) + ([f"lgkmcnt({x.lgkm})"] if x.lgkm is not None else [])
                    k("s_waitcnt " + " ".join(parts))
                else:
                    if x.kind == "vm": issued.append(x.key)
                    if x.kind == "ds": ds.append(x.key)
                    if any(d in x.txt for d in c.drop): continue
                    k(x.txt)
        emit(pro)
        for s in range(N):
            if c.stamp_every and s % c.stamp_every == 0: k.stamp(f"{c.tag} step {s}")
            emit(make_step(s))

def std_sched(c):
    NB, TB, KS, SPK, KT, NS, R = c.NB, c.TB, c.KS, c.SPK, c.KT, c.NS, c.R
    for kt in range(KT):
        us = []
        sw = c.s_kw + kt % 2
        for i, (vo, loff, goff) in enumerate(c.dma):
            g = (c.w_off(sw, kt) if c.w_off else c.pos_items(sw, kt, c.w_stride)) if i == 0 else []
            g += [T(f"s_add_u32 m0, s{c.s_wbase}, {c.slot_addr(kt % NS) + loff - goff}"),
                  VM(f"buffer_load_dwordx4 v{vo}, {sr(c.srd_w,4)}, s{sw} offen" + (f" offset:{goff}" if goff else "") + (c.first_flag if c.wins[kt][0] == kt else "") + " lds", ("dma", kt))]
            us.append(g)
        c.stage_units[kt] = us; c.stage_slot[kt] = kt % NS
        for sp in range(SPK):
            step = kt * SPK + sp
            us = []
            st_ = c.s_kt + kt % 2
            for ks in range(KS):
                for t in range(TB):
                    g = (c.t_off(st_, kt) if c.t_off else c.pos_items(st_, kt, SPK * KS * 1024)) if (sp == 0 and ks == 0 and t == 0) else []
                    g.append(VM(f"buffer_load_dwordx4 {ar(c.tf(step % R, ks, t),4)}, v{c.v_tok[t]}, {sr(c.srd_t,4)}, s{st_} offen offset:{(sp*KS+ks)*c.sub_stride} sc1", ("tok", step)))
                    us.append(g)
            c.tok_units[step] = us; c.tok_slot[step] = step % R
            frags = []
            for ks in range(KS):
                for b in range(NB):
                    va, o0 = c.rd(kt % NS, b, sp * KS + ks, 0); _, o1 = c.rd(kt % NS, b, sp * KS + ks, 1)
                    frags.append((va, o0, o1, [(c.acc(b, t), c.tf(step % R, ks, t)) for t in range(TB)]))
            c.steps.append(dict(frags=frags, stages=[kt], toks=[step]))
    c.wf = lambda buf, j: (buf * NB * KS + j) * 4
    c.tile_of = lambda key: key // SPK
```

```python
import sys
from asmlib import *
from gemm import *
from layout import *
LOG2E = 1.4426950408889634
P_X, P_WQKV, P_WPHI, P_WO, P_W1, P_W3, P_W2, P_OUT, P_WS = 4, 6, 8, 10, 14, 16, 18, 24, 28
P_DBG, S_MB, S_MO = 96, 77, 79
P_C, P_WMOD = 12, 98
S_WAVE, S_XCD, S_IDX = 3, 30, 31
SRD_W, SRD_T, SRD_A, SRD_B, SRD_C, SRD_D, SRD_F = 32, 36, 40, 44, 48, 52, 56
S_KW, S_KT, S_WB, S_ROT, S_TMP, S_ROT2 = 60, 62, 76, 77, 78, 79
S_RB1, S_HP, S_RB2, S_NT, S_RB3, S_FT = 26, 27, 26, 27, 22, 23
S_R8, S_R4 = 20, 21
VSTAMP = 255
L_WPH, L_UTC = 110592, 105472
L_UT3, L_MV, L_R2 = 114688, 128000, 129792
LDS_TOTAL = 163584

class Mega(Kernel):
    nst = 0
    only = None
    def stamp(self, name=""):
        if not self.instr: return
        if self.only is not None and not any(name.startswith(o) for o in self.only): return
        if self.only is None and name[:3] in ("kp ", "qp "): return
        self("s_waitcnt lgkmcnt(0)\ns_memrealtime s[0:1]\ns_waitcnt lgkmcnt(0)")
        self(f"v_writelane_b32 v{VSTAMP}, s0, {self.nst}")
        self("s_nop 3\ns_memtime s[0:1]\ns_waitcnt lgkmcnt(0)")
        self(f"v_writelane_b32 v{VSTAMP}, s0, {self.nst + 32}")
        self.names.append(name); self.nst += 1

def lane_id(k, v):
    k(f"v_mbcnt_lo_u32_b32 v{v}, -1, 0\nv_mbcnt_hi_u32_b32 v{v}, -1, v{v}")

def code_prefetch_setup(k, name, s_pc=100):
    lab = k.label("pc")
    k(f"s_getpc_b64 s[{s_pc}:{s_pc+1}]")
    k(f"{lab}:")
    k(f"s_sub_u32 s{s_pc}, s{s_pc}, {lab}-{name}\ns_subb_u32 s{s_pc+1}, s{s_pc+1}, 0")
def code_prefetch_txt(name, v_l16, vt, s_tmp, s_idx=S_IDX, s_wave=S_WAVE, s_pc=100, junk="a232"):
    return [f"s_lshl_b32 s{s_tmp}, s{s_idx}, 2", f"s_add_u32 s{s_tmp}, s{s_tmp}, s{s_wave}", f"s_lshl_b32 s{s_tmp}, s{s_tmp}, 10",
            f"v_add_u32 v{vt}, s{s_tmp}, v{v_l16}", f"v_min_u32 v{vt}, {name}_end-{name}-4, v{vt}",
            f"global_load_dword {junk}, v{vt}, s[{s_pc}:{s_pc+1}]"]

def count_vm(k, mark):
    return sum(1 for x in k.L[mark:] if is_vm(x))
def publish(k, s_off, vt, mark=None):
    k(f"v_mov_b32 v{vt}, 1\nv_mov_b32 v{vt+1}, 0")
    n = 0 if mark is None else count_vm(k, mark)
    assert n < 64
    k(f"s_waitcnt vmcnt({n})")
    k(f"buffer_store_dword v{vt}, v{vt+1}, {sr(SRD_F,4)}, s{s_off} offen sc1")

def spin(k, loads, regs, vt, s_cnt=96):
    top, ok = k.label("poll"), k.label("ok")
    k(f"s_mov_b32 s{s_cnt}, 0")
    k(f"{top}:")
    for x in loads: k(x)
    k("s_waitcnt vmcnt(0)")
    if len(regs) == 1: k(f"v_cmp_eq_u32 vcc, 0, v{regs[0]}")
    else:
        k(f"v_min_u32 v{vt}, v{regs[0]}, v{regs[1]}")
        for x in regs[2:]: k(f"v_min_u32 v{vt}, v{vt}, v{x}")
        k(f"v_cmp_eq_u32 vcc, 0, v{vt}")
    k(f"s_add_u32 s{s_cnt}, s{s_cnt}, 1")
    k(f"s_cmp_eq_u64 vcc, 0\ns_cbranch_scc1 {ok}")
    k(f"s_sleep {SLEEP}\ns_cmp_lt_u32 s{s_cnt}, 0x200000\ns_cbranch_scc1 {top}")
    k(f"{ok}:")

def wait_flags(k, polls, vt, s_cnt=96):
    top, ok = k.label("poll"), k.label("ok")
    k(f"s_mov_b32 s{s_cnt}, 0")
    k(f"{top}:")
    r = vt
    regs = []
    for va, so, ndw in polls:
        if ndw == 4: r = (r + 1) // 2 * 2
        k(f"buffer_load_dword{'x4' if ndw == 4 else ''} {vr(r,ndw)}, v{va}, {sr(SRD_F,4)}, s{so} offen sc1")
        regs += list(range(r, r + ndw)); r += ndw
    k("s_waitcnt vmcnt(0)")
    for x in regs[1:]: k(f"v_min_u32 v{regs[0]}, v{regs[0]}, v{x}")
    k(f"v_cmp_eq_u32 vcc, 0, v{regs[0]}")
    k(f"s_add_u32 s{s_cnt}, s{s_cnt}, 1")
    k(f"s_cmp_eq_u64 vcc, 0\ns_cbranch_scc1 {ok}")
    k(f"s_sleep {SLEEP}\ns_cmp_lt_u32 s{s_cnt}, 0x200000\ns_cbranch_scc1 {top}")
    k(f"{ok}:")

def staged_wait(k, c, T_, v_addr, s_off, vf, prod_of, dup16=False, skip_first=0, s_m=97, pub=None):
    ld = f"buffer_load_dword v{vf}, v{v_addr}, {sr(SRD_F,4)}, s{s_off} offen sc1"
    if T_ is None:
        spin(k, [ld], [vf], 0); return
    k(f"s_mov_b32 s{s_m}, 0")
    for kt in range(skip_first, T_):
        for x in c.pos_txt(80, kt): k(x)
        for x in prod_of(80, 81): k(x)
        k(f"s_or_b32 s{s_m}, s{s_m}, s81")
    if dup16: k(f"s_lshl_b32 s81, s{s_m}, 16\ns_or_b32 s{s_m}, s{s_m}, s81")
    top, ok = k.label("poll"), k.label("ok")
    if pub:
        mk = len(k.L); k(ld); publish(k, pub[0], pub[1], mk)
        k("s_waitcnt vmcnt(1)")
        k(f"v_cmp_eq_u32 vcc, 0, v{vf}\ns_nop 0")
        k(f"s_and_b32 s81, vcc_lo, s{s_m}\ns_cbranch_scc0 {ok}")
    k(f"s_mov_b32 s96, 0\n{top}:")
    k(ld)
    k("s_waitcnt vmcnt(0)")
    k(f"v_cmp_eq_u32 vcc, 0, v{vf}")
    k("s_add_u32 s96, s96, 1")
    k(f"s_and_b32 s81, vcc_lo, s{s_m}\ns_cbranch_scc0 {ok}")
    k(f"s_sleep {SLEEP}\ns_cmp_lt_u32 s96, 0x200000\ns_cbranch_scc1 {top}")
    k(f"{ok}:")
    add_gate(k, c, T_, ld, vf)
def add_gate(k, c, tile, ld, vf):
    m = Txt(); m.label = k.label
    okl = k.label("gok")
    m(f"v_cmp_eq_u32 vcc, 0, v{vf}\ns_cmp_eq_u64 vcc, 0\ns_cbranch_scc1 {okl}")
    spin(m, [ld], [vf], 0)
    m(f"{okl}:")
    c.gates = list(c.gates) + [(tile, [VM(ld, ("gate", tile))], [WVM([("gate", tile)]), T("\n".join(m.L))])]
one_prod = lambda sp, st: [f"s_lshl_b32 s{st}, 1, s{sp}"]

def allreduce_q(k, op, x, tmp):
    k(f"v_mov_b32 v{tmp}, v{x}\ns_nop 1")
    k(f"v_permlane32_swap_b32 v{x}, v{tmp}")
    k(f"s_nop 1\n{op} v{x}, v{x}, v{tmp}")
    k(f"v_mov_b32 v{tmp}, v{x}\ns_nop 1")
    k(f"v_permlane16_swap_b32 v{x}, v{tmp}")
    k(f"s_nop 1\n{op} v{x}, v{x}, v{tmp}")

def treduce4(k, op, A):
    a, b, c, d = A
    k("s_nop 1")
    k(f"v_permlane32_swap_b32 v{a}, v{b}\nv_permlane32_swap_b32 v{c}, v{d}")
    k("s_nop 1")
    k(f"{op} v{a}, v{a}, v{b}\n{op} v{c}, v{c}, v{d}")
    k("s_nop 1")
    k(f"v_permlane16_swap_b32 v{a}, v{c}")
    k("s_nop 1")
    k(f"{op} v{a}, v{a}, v{c}")
    k(f"v_mov_b32 v{c}, v{a}")
    k("s_nop 1")
    k(f"v_permlane16_swap_b32 v{a}, v{c}")
    k("s_nop 1")
    k(f"v_mov_b32 v{b}, v{a}\nv_mov_b32 v{d}, v{c}")
    k("s_nop 1")
    k(f"v_permlane32_swap_b32 v{a}, v{b}\nv_permlane32_swap_b32 v{c}, v{d}")
    k("s_nop 1")

def treduce4x2(k, ops, As):
    A, B = Txt(), Txt()
    treduce4(A, ops[0], As[0]); treduce4(B, ops[1], As[1])
    def split(L):
        out, cur = [], []
        for x in L:
            if x.startswith("s_nop"): out.append(cur); cur = []
            else: cur.append(x)
        out.append(cur); return out
    for a, b in zip(split(A.L), split(B.L)):
        for x in a + b: k(x)
        k("s_nop 0" if len(a) >= 1 else "s_nop 1")

def red8(k, x):
    for m in ("quad_perm:[1,0,3,2]", "quad_perm:[2,3,0,1]", "row_half_mirror"):
        k(f"s_nop 1\nv_add_f32_dpp v{x}, v{x}, v{x} {m} row_mask:0xf bank_mask:0xf")

def round_bf16(k, v):
    k(f"v_cvt_pk_bf16_f32 v{v}, v{v}, v{v}\nv_and_b32 v{v}, 0xffff0000, v{v}")

S_DLA, S_DLB, S_PTMP = 71, 6, 75
def order(c, k, opt, tag, default):
    o = opt.get(tag + "_ord", default)
    c.first_flag = opt.get(tag + "_ff", "")
    c.tag = tag; c.stamp_every = opt.get(tag + "_se", 0)
    c.fine = opt.get(tag + "_fine", opt.get("fine", 0)); c.bar_frac = opt.get("bar_frac", 0.3)
    c.s_rot, c.s_rot2 = S_R8, S_R4
    if o[0] == "lead":
        c.lead_D, c.s_dl = o[1], S_DLA
    else:
        c.wins = win_mask(o[1])
        if o[2]:
            c.s_start = S_HP
            c.s_rot = c.s_rot2 = S_RB3
def common_gemm(c):
    c.srd_w, c.srd_t = SRD_W, SRD_T
    c.s_kw, c.s_kt, c.s_wbase, c.s_ptmp = S_KW, S_KT, S_WB, S_PTMP

def setup_gemm1(k, opt):
    c = Sched(); common_gemm(c)
    NS, R = opt.get("g1_NS", 4), opt.get("g1_R", 4)
    STAGE = 25344
    c.V_RD, c.V_DMA, c.V_TOK, c.LANE, c.L16, c.VT = 96, 98, 102, 104, 105, 106
    V_RD, V_DMA, V_TOK, LANE, L16, VT = c.V_RD, c.V_DMA, c.V_TOK, c.LANE, c.L16, 110
    k(f"v_lshlrev_b32 v{L16}, 4, v{LANE}")
    c.lead_D, c.s_dl = opt.get("D", 0), S_DLA
    if opt.get("uselead", 0): c.lead_init(k, S_R4, 81)
    c.lead_D = None
    order(c, k, opt, "g1", ["win", [8, 8], 0])
    k(f"s_lshr_b32 s80, s{S_WAVE}, 1\ns_and_b32 s81, s{S_WAVE}, 1")
    k(f"v_lshrrev_b32 v{VT+1}, 3, v{LANE}")
    k(f"v_and_b32 v{VT+2}, 4, v{VT+1}")
    k(f"v_bfe_u32 v{VT+3}, v{VT+1}, 1, 1\nv_or_b32 v{VT+2}, v{VT+2}, v{VT+3}")
    k(f"v_and_b32 v{VT+3}, 1, v{VT+1}\nv_lshl_or_b32 v{VT+2}, v{VT+3}, 1, v{VT+2}")
    k(f"v_mul_u32_u24 v{VT+2}, {4*6144}, v{VT+2}")
    k(f"v_and_b32 v{VT+3}, 7, v{LANE}\nv_lshl_add_u32 v{VT+2}, v{VT+3}, 4, v{VT+2}")
    k("s_lshl_b32 s82, s80, 5\ns_lshl_b32 s83, s81, 1\ns_add_u32 s82, s82, s83\ns_mul_i32 s82, s82, 6144")
    k(f"s_lshl_b32 s83, s{S_HP}, 7\ns_add_u32 s82, s82, s83")
    k(f"v_add_u32 v{V_DMA}, s82, v{VT+2}")
    k(f"v_add_u32 v{V_DMA+1}, 6144, v{V_DMA}\nv_add_u32 v{V_DMA+2}, 4096, v{V_DMA}\nv_add_u32 v{V_DMA+3}, {6144+4096}, v{V_DMA}")
    k(f"v_bfe_u32 v{VT+1}, v{LANE}, 2, 2\nv_mul_u32_u24 v{VT+1}, 1056, v{VT+1}")
    k(f"v_lshrrev_b32 v{VT+2}, 5, v{LANE}\nv_lshl_add_u32 v{VT+1}, v{VT+2}, 9, v{VT+1}")
    k(f"v_bfe_u32 v{VT+2}, v{LANE}, 4, 1\nv_lshl_add_u32 v{VT+1}, v{VT+2}, 7, v{VT+1}")
    k(f"v_and_b32 v{VT+3}, 3, v{LANE}\nv_lshl_add_u32 v{V_RD}, v{VT+3}, 3, v{VT+1}")
    k(f"v_add_u32 v{V_RD+1}, {2*STAGE}, v{V_RD}")
    k(f"s_lshl_b32 s82, s{S_RB1}, 3\ns_lshl_b32 s83, s{S_WAVE}, 1\ns_add_u32 s82, s82, s83\ns_lshl_b32 s82, s82, 15")
    k(f"v_add_u32 v{V_TOK}, s82, v{L16}\nv_add_u32 v{V_TOK+1}, 0x8000, v{V_TOK}")
    k(f"s_mul_i32 s{S_WB}, s80, 4224\ns_mul_i32 s82, s81, 2112\ns_add_u32 s{S_WB}, s{S_WB}, s82")
    c.NB, c.TB, c.KS, c.SPK, c.KT, c.NS, c.R = 12, 2, 1, 2, 16, NS, R
    c.acc = lambda b, t: vr((b * 2 + t) * 4, 4)
    c.tf = lambda slot, ks, t: 96 + (slot * 2 + t) * 4
    c.rd = lambda sl, b, sub, r: (V_RD + sl // 2, (sl % 2) * STAGE + (b // 4) * 8448 + sub * 4224 + r * 256 + (b % 4) * 32)
    c.slot_addr = lambda sl: sl * STAGE
    c.dma = [(V_DMA, 0, 0), (V_DMA + 1, 1056, 0), (V_DMA, 8448, 2048), (V_DMA + 1, 8448 + 1056, 2048), (V_DMA + 2, 16896, 0), (V_DMA + 3, 16896 + 1056, 0)]
    c.v_tok = [V_TOK, V_TOK + 1]
    c.w_stride = 64 * 6144
    c.drop = opt.get("g1_drop", ())
    c.pro_units, c.ramp_rate, c.read_margin = opt.get("g1_pro", 6), opt.get("g1_ramp", 6), opt.get("g1_rm", 6)
    std_sched(c)
    return c

def setup_gemm1s(k, opt):
    c = Sched(); common_gemm(c)
    HS = 8448; STAGE = 2 * HS
    c.V_RD, c.V_DMA, c.V_TOK, c.LANE, c.L16, c.VT = 96, 98, 102, 104, 105, 106
    V_RD, V_DMA, V_TOK, LANE, L16, VT = c.V_RD, c.V_DMA, c.V_TOK, c.LANE, c.L16, 110
    k(f"v_lshlrev_b32 v{L16}, 4, v{LANE}")
    order(c, k, opt, "g1", ["win", [8, 8], 0])
    k(f"s_lshr_b32 s80, s{S_WAVE}, 1\ns_and_b32 s81, s{S_WAVE}, 1")
    k(f"v_lshrrev_b32 v{VT+1}, 3, v{LANE}")
    k(f"v_and_b32 v{VT+2}, 4, v{VT+1}")
    k(f"v_bfe_u32 v{VT+3}, v{VT+1}, 1, 1\nv_or_b32 v{VT+2}, v{VT+2}, v{VT+3}")
    k(f"v_and_b32 v{VT+3}, 1, v{VT+1}\nv_lshl_or_b32 v{VT+2}, v{VT+3}, 1, v{VT+2}")
    k(f"v_mul_u32_u24 v{VT+2}, {4*6144}, v{VT+2}")
    k(f"v_and_b32 v{VT+3}, 7, v{LANE}\nv_lshl_add_u32 v{VT+2}, v{VT+3}, 4, v{VT+2}")
    k("s_lshl_b32 s82, s80, 5\ns_lshl_b32 s83, s81, 1\ns_add_u32 s82, s82, s83\ns_mul_i32 s82, s82, 6144")
    k(f"s_lshl_b32 s83, s{S_HP}, 7\ns_add_u32 s82, s82, s83")
    k(f"v_add_u32 v{V_DMA}, s82, v{VT+2}")
    k(f"v_add_u32 v{V_DMA+1}, 6144, v{V_DMA}\nv_add_u32 v{V_DMA+2}, 2048, v{V_DMA}\nv_add_u32 v{V_DMA+3}, {6144+2048}, v{V_DMA}")
    k(f"v_bfe_u32 v{VT+1}, v{LANE}, 2, 2\nv_mul_u32_u24 v{VT+1}, 1056, v{VT+1}")
    k(f"v_lshrrev_b32 v{VT+2}, 5, v{LANE}\nv_lshl_add_u32 v{VT+1}, v{VT+2}, 9, v{VT+1}")
    k(f"v_bfe_u32 v{VT+2}, v{LANE}, 4, 1\nv_lshl_add_u32 v{VT+1}, v{VT+2}, 7, v{VT+1}")
    k(f"v_and_b32 v{VT+3}, 3, v{LANE}\nv_lshl_add_u32 v{V_RD}, v{VT+3}, 3, v{VT+1}")
    k(f"v_add_u32 v{V_RD+1}, {2*STAGE}, v{V_RD}")
    k(f"s_lshl_b32 s82, s{S_RB1}, 3\ns_lshl_b32 s83, s{S_WAVE}, 1\ns_add_u32 s82, s82, s83\ns_lshl_b32 s82, s82, 15")
    k(f"v_add_u32 v{V_TOK}, s82, v{L16}\nv_add_u32 v{V_TOK+1}, 0x8000, v{V_TOK}")
    k(f"s_mul_i32 s{S_WB}, s80, 4224\ns_mul_i32 s82, s81, 2112\ns_add_u32 s{S_WB}, s{S_WB}, s82")
    c.NB, c.TB, c.KS, c.SPK, c.KT, c.NS, c.R = 8, 2, 1, 2, 16, 4, 32
    c.acc = lambda b, t: vr(32 + (b * 2 + t) * 4, 4)
    c.tf = lambda slot, ks, t: (slot * 2 + t) * 4
    c.rd = lambda sl, b, sub, r: (V_RD + sl // 2, (sl % 2) * STAGE + (b // 4) * HS + sub * 4224 + r * 256 + (b % 4) * 32)
    c.slot_addr = lambda sl: sl * STAGE
    c.dma = [(V_DMA + 2, 0, 0), (V_DMA + 3, 1056, 0), (V_DMA + 2, HS, 2048), (V_DMA + 3, HS + 1056, 2048)]
    c.v_tok = [V_TOK, V_TOK + 1]
    c.w_stride = 64 * 6144
    c.drop = opt.get("g1_drop", ())
    c.pro_units, c.ramp_rate, c.read_margin, c.lookahead = opt.get("g1_pro", 8), opt.get("g1_ramp", 5), 4, opt.get("g1_la", 4)
    c.wreg, c.wbase = vr, 128
    std_sched(c)
    q = Sched(); common_gemm(q)
    q.KT = 16; order(q, k, opt, "g1", ["win", [8, 8], 0]); q.tag = "g1b"; q.stamp_every = opt.get("g1b_se", 0)
    q.s_kw = 70
    QS = [67584 + i * HS for i in range(5)] + [L_R2 + i * HS for i in range(4)] + [i * HS for i in range(7)]
    q.Q1, q.Q2 = V_RD + 1, V_TOK
    def base(kt): return (q.Q1, 67584) if kt < 5 else ((q.Q2, L_R2) if kt < 9 else (V_RD, 0))
    for kt in range(16):
        sw = q.s_kw + kt % 2
        q.stage_units[kt] = [q.pos_items(sw, kt, c.w_stride) + [T(f"s_add_u32 m0, s{S_WB}, {QS[kt]}"), VM(f"buffer_load_dwordx4 v{V_DMA}, {sr(SRD_W,4)}, s{sw} offen lds", ("dma", kt))],
                             [T(f"s_add_u32 m0, s{S_WB}, {QS[kt] + 1056}"), VM(f"buffer_load_dwordx4 v{V_DMA+1}, {sr(SRD_W,4)}, s{sw} offen lds", ("dma", kt))]]
        q.stage_slot[kt] = kt
        va, b0 = base(kt)
        frags = [(va, QS[kt] - b0 + sub * 4224 + b * 32, QS[kt] - b0 + sub * 4224 + 256 + b * 32, [(vr((b * 2 + t) * 4, 4), ((kt * 2 + sub) * 2 + t) * 4) for t in range(2)]) for sub in range(2) for b in range(4)]
        q.steps.append(dict(frags=frags, stages=[kt] if kt != 9 else list(range(9, 16)), toks=[]))
    q.wf = lambda buf, j: (buf * 8 + j) * 4
    q.wreg, q.wbase = vr, 128
    q.pub0 = set(range(9)); q.pro_units = opt.get('q_pro', 2); q.ramp_rate = opt.get('q_ramp', 3); q.read_margin = 4; q.drop = c.drop
    c.q = q
    return c

def merge(a, b, ratio):
    out, b = [], list(b)
    for i, x in enumerate(a):
        out.append(x)
        if b and i % ratio == ratio - 1: out.append(b.pop(0))
    return out + b

def phase_gemm1s(k, c, opt):
    LANE, L16, VT = c.LANE, c.L16, c.VT
    q = c.q
    PHK, VV, SH = 0, 34816, 114688
    p = Txt()
    srd(p, SRD_A, P_WPHI, H * 2048)
    srd(p, SRD_B, P_WS, 2 << 20, WS_KVP)
    srd(p, SRD_C, P_WS, 128 << 10, WS_ZP)
    A_PW, A_VW, A_PR, A_VR, A_WR = 110, 111, 112, 113, 114
    p(f"s_lshr_b32 s80, s{S_WAVE}, 1\ns_and_b32 s81, s{S_WAVE}, 1")
    p(f"v_and_b32 v{VT}, 15, v{LANE}\ns_lshl_b32 s82, s{S_WAVE}, 5\nv_add_u32 v{VT}, s82, v{VT}")
    p(f"v_lshrrev_b32 v{VT+1}, 4, v{LANE}\nv_lshlrev_b32 v{VT+1}, 3, v{VT+1}")
    p(f"v_mul_u32_u24 v{A_PW}, 136, v{VT}\nv_add_u32 v{A_PW}, v{A_PW}, v{VT+1}")
    p(f"v_mul_u32_u24 v{A_VW}, 72, v{VT}\nv_add_u32 v{A_VW}, v{A_VW}, v{VT+1}")
    p(f"v_lshrrev_b32 v{VT}, 2, v{LANE}\nv_and_b32 v{VT+1}, 3, v{LANE}\nv_lshlrev_b32 v{VT+1}, 3, v{VT+1}")
    p(f"s_mul_i32 s82, s80, 17408\ns_lshl_b32 s83, s81, 6\ns_add_u32 s82, s82, s83")
    p(f"v_mul_u32_u24 v{A_PR}, 136, v{VT}\nv_add_u32 v{A_PR}, v{A_PR}, v{VT+1}\nv_add_u32 v{A_PR}, s82, v{A_PR}")
    p(f"s_mul_i32 s82, s80, 9216")
    p(f"v_mul_u32_u24 v{A_VR}, 72, v{VT}\nv_add_u32 v{A_VR}, v{A_VR}, v{VT+1}\nv_add_u32 v{A_VR}, s82, v{A_VR}")
    p(f"v_lshl_add_u32 v{A_WR}, v{VT}, 6, v{VT+1}\nv_add_u32 v{A_WR}, {L_WPH}, v{A_WR}")
    ONES, SEL = 116, 120
    for j in range(4): p(f"v_mov_b32 v{ONES+j}, 0x3f803f80")
    p(f"v_bfe_u32 v{VT}, v{LANE}, 2, 2\nv_lshrrev_b32 v{VT+1}, 4, v{LANE}")
    p(f"v_cmp_eq_u32 vcc, v{VT}, v{VT+1}")
    p(f"v_and_b32 v{VT}, 1, v{LANE}\nv_lshlrev_b32 v{VT}, 4, v{VT}\nv_mov_b32 v{VT+1}, 0x3f80\nv_lshlrev_b32 v{VT+1}, v{VT}, v{VT+1}")
    p(f"v_cndmask_b32 v{VT+1}, 0, v{VT+1}, vcc")
    p(f"v_and_b32 v{VT}, 2, v{LANE}\nv_cmp_eq_u32 vcc, 0, v{VT}")
    for j in (0, 1, 4, 5): p(f"v_mov_b32 v{SEL+j}, 0")
    p(f"v_cndmask_b32 v{SEL+2}, 0, v{VT+1}, vcc\nv_cndmask_b32 v{SEL+3}, v{VT+1}, 0, vcc")
    p(f"s_mov_b32 s94, {LOG2E!r}\ns_mov_b32 s95, {LOG2E!r}")
    p(f"s_lshl_b32 s84, s{S_HP}, 12\ns_lshl_b32 s85, s{S_WAVE}, 10\ns_add_u32 s84, s84, s85\ns_add_u32 s85, s85, {L_WPH}")
    c.pre_loop_txt = p.L
    c.late[4] = ["s_mov_b32 m0, s85", f"buffer_load_dwordx4 v{L16}, {sr(SRD_A,4)}, s84 offen lds"]
    for st_ in opt.get("cp1", [20]): c.late.setdefault(st_, []).extend(code_prefetch_txt(k.name, L16, 254, 80, junk="v31"))
    for st_ in opt.get("cp1b", []): q.late.setdefault(st_, []).extend(code_prefetch_txt(k.name, L16, 254, 80, junk="v252"))
    ts = opt.get("mt_step", None)
    if ts is not None:
        c.late.setdefault(ts, []).extend([f"v_mul_u32_u24 v254, 12288, v{LANE}", f"buffer_load_dword v31, v254, {sr(SRD_D,4)}, s{S_MB} offen"])
        if opt.get("wo_touch", 1):
            c.late[ts].extend([f"s_lshl_b32 s80, s2, 2", f"s_add_u32 s80, s80, s{S_WAVE}", "s_lshl_b32 s80, s80, 11",
                               f"v_and_b32 v254, 15, v{LANE}", "v_lshlrev_b32 v254, 7, v254", "v_add_u32 v254, s80, v254", f"global_load_dword v31, v254, s[{P_WO}:{P_WO+1}]"])
    nq = opt.get("q_in", 10)
    for j in range(nq // 2): c.late.setdefault(32 - nq // 2 + j, []).extend(q.prefetch_txt(2))
    wph_reads = lambda reg, b0: [f"ds_read_b64_tr_b16 {reg(b0+(hh*2+fb)*4+2*r,2)}, v{A_WR} offset:{hh*2048+r*1024+fb*32}" for hh in range(2) for fb in range(2) for r in range(2)]
    c.last_reads = wph_reads(vr, 0)
    c.run(k)
    k.stamp("g1 loop done")
    A = lambda b, t: (b * 2 + t) * 4
    BF, P1, P2, MX, MN, EK = 126, 142, 174, 206, 214, 222
    groups = [(hh, t) for hh in range(2) for t in range(2)]
    def fm_part1(k, seg, ph):
        for g, (hh, t) in enumerate(groups):
            for db in range(2):
                a = A(seg * 4 + hh * 2 + db, t)
                k(f"v_cvt_pk_bf16_f32 v{BF+g*4+db*2}, v{a}, v{a+1}\nv_cvt_pk_bf16_f32 v{BF+g*4+db*2+1}, v{a+2}, v{a+3}")
        k("s_nop 1")
        for g, (hh, t) in enumerate(groups):
            for fb in range(2):
                k(f"{MF} {vr(P1+g*8+fb*4,4)}, {ph(hh*2+fb)}, {vr(BF+g*4,4)}, 0")
    def fm_part2(k):
        for op3, op2, M in (("v_max3_f32", "v_max_f32", MX), ("v_min3_f32", "v_min_f32", MN)):
            for g in range(4):
                b = P1 + g * 8
                k(f"{op3} v{M+2*g}, v{b}, v{b+1}, v{b+2}\n{op3} v{M+2*g}, v{M+2*g}, v{b+3}, v{b+4}\n{op3} v{M+2*g}, v{M+2*g}, v{b+5}, v{b+6}\n{op2} v{M+2*g}, v{M+2*g}, v{b+7}")
        treduce4x2(k, ("v_max_f32", "v_min_f32"), ([MX + 2 * g for g in range(4)], [MN + 2 * g for g in range(4)]))
        for g in range(4):
            k(f"v_mul_f32 v{MX+2*g}, {-LOG2E!r}, v{MX+2*g}\nv_mul_f32 v{MN+2*g}, {LOG2E!r}, v{MN+2*g}")
    def fm_part3(k, E, gs_=range(4)):
        for g in gs_:
            for j in range(4):
                b = g * 8 + 2 * j
                k(f"v_pk_fma_f32 {vr(P2+b,2)}, {vr(P1+b,2)}, s[94:95], {vr(MN+2*g,2)} op_sel_hi:[1,1,0] neg_lo:[1,0,0] neg_hi:[1,0,0]")
                k(f"v_pk_fma_f32 {vr(P1+b,2)}, {vr(P1+b,2)}, s[94:95], {vr(MX+2*g,2)} op_sel_hi:[1,1,0]")
            for j in range(8): k(f"v_exp_f32 v{P1+g*8+j}, v{P1+g*8+j}")
            for j in range(8): k(f"v_exp_f32 v{P2+g*8+j}, v{P2+g*8+j}")
            k("s_nop 0")
            for sg, PP in enumerate((P1, P2)):
                for j in range(4): k(f"v_cvt_pk_bf16_f32 v{E+(g*2+sg)*4+j}, v{PP+g*8+2*j}, v{PP+g*8+2*j+1}")
    mark0 = len(k.L)
    k("s_waitcnt lgkmcnt(0)\ns_nop 7")
    fm_part1(k, 1, lambda i: vr(i * 4, 4))
    k("s_barrier")
    for g, (hh, t) in enumerate(groups):
        for db in range(2):
            a = A(8 + hh * 2 + db, t)
            k(f"v_cvt_pk_bf16_f32 v{a}, v{a}, v{a+1}\nv_cvt_pk_bf16_f32 v{a+1}, v{a+2}, v{a+3}")
            k(f"ds_write_b64 v{A_VW}, {vr(a,2)} offset:{VV + hh*9216 + t*16*72 + db*32}")
    fm_part2(k)
    grp = []
    for j in range(18 - q.pre_dma):
        t_ = q.prefetch_txt(1); grp.append(t_[:-1] + ["s_nop 0", t_[-1]])
    sprinkle(k, mark0, grp, skip=12)
    k.stamp("kp part2")
    fm_part3(k, EK)
    k.stamp("kp part3")
    SM = 32
    k("s_nop 1")
    for i in range(8): k(f"{MF} {vr(SM+4*i,4)}, {vr(ONES,4)}, {vr(EK+4*i,4)}, 0")
    k(f"v_add_u32 v{q.Q1}, 67584, v{c.V_RD}\nv_add_u32 v{q.Q2}, {L_R2}, v{c.V_RD}")
    k("s_nop 5")
    for i in range(8): k(f"v_rcp_f32 v{SM+4*i}, v{SM+4*i}")
    for g, (hh, t) in enumerate(groups):
        for sg, PP in enumerate((P1, P2)):
            for j in range(4):
                k(f"v_pk_mul_f32 {vr(PP+g*8+2*j,2)}, {vr(PP+g*8+2*j,2)}, {vr(SM+(g*2+sg)*4,2)} op_sel_hi:[1,0]")
            for fb in range(2):
                b = PP + g * 8 + fb * 4
                k(f"v_cvt_pk_bf16_f32 v{b}, v{b}, v{b+1}\nv_cvt_pk_bf16_f32 v{b+1}, v{b+2}, v{b+3}")
                k(f"ds_write_b64 v{A_PW}, {vr(b,2)} offset:{PHK + hh*17408 + t*16*136 + sg*64 + fb*32}")
    k.stamp("kp norm")
    k("s_waitcnt lgkmcnt(0)\ns_barrier")
    k.stamp("kp bar")
    FR = 190
    for s_ in range(4):
        for r in range(2):
            for fb in range(2): k(f"ds_read_b64_tr_b16 {vr(FR+s_*16+fb*4+2*r,2)}, v{A_PR} offset:{PHK + (32*s_+16*r)*136 + fb*32}")
            for db in range(2): k(f"ds_read_b64_tr_b16 {vr(FR+s_*16+8+db*4+2*r,2)}, v{A_VR} offset:{VV + (32*s_+16*r)*72 + db*32}")
    k(f"s_lshl_b32 s82, s{S_HP}, 2\ns_add_u32 s82, s82, s{S_WAVE}")
    k("s_lshl_b32 s86, s82, 15")
    k(f"s_lshl_b32 s84, s{S_RB1}, 10\ns_add_u32 s84, s84, s86\ns_add_u32 s85, s84, 16384")
    k("s_lshl_b32 s90, s82, 11")
    k(f"s_lshl_b32 s91, s82, {FS+4}\ns_add_u32 s91, s91, {F_KV}\ns_lshl_b32 s92, s{S_RB1}, {FS}\ns_add_u32 s92, s92, s91")
    k(f"v_and_b32 v{VT}, 15, v{LANE}\nv_cmp_eq_u32 vcc, s{S_RB1}, v{VT}")
    KV, ZZ = 64, 80
    for s_ in range(4):
        k(f"s_waitcnt lgkmcnt({min(15, 24 - 8*s_)})" if s_ < 3 else "s_waitcnt vmcnt(0) lgkmcnt(0)\ns_barrier")
        for fb in range(2):
            for db in range(2):
                d = vr(KV + (db * 2 + fb) * 4, 4)
                k(f"{MF} {d}, {vr(FR+s_*16+fb*4,4)}, {vr(FR+s_*16+8+db*4,4)}, {'0' if s_ == 0 else d}")
            d = vr(ZZ + fb * 4, 4)
            k(f"{MF} {d}, {vr(FR+s_*16+fb*4,4)}, {vr(ONES,4)}, {'0' if s_ == 0 else d}")
    k(f"v_lshlrev_b32 v{VT}, {FS}, v{VT}\nv_mov_b32 v{VT+1}, 1\nv_mov_b32 v{VT+2}, 0")
    k("s_nop 5")
    for db in range(2):
        for j in range(4): k(f"v_cvt_pk_bf16_f32 v{88+db*4+j}, v{KV+db*8+2*j}, v{KV+db*8+2*j+1}")
    k(f"buffer_store_dwordx4 {vr(88,4)}, v{L16}, {sr(SRD_B,4)}, s84 offen sc1")
    k(f"buffer_store_dwordx4 {vr(92,4)}, v{L16}, {sr(SRD_B,4)}, s85 offen sc1")
    k("s_and_saveexec_b64 s[96:97], vcc")
    k(f"buffer_store_dwordx4 {vr(ZZ,4)}, v{L16}, {sr(SRD_C,4)}, s90 offen sc1")
    k(f"buffer_store_dwordx4 {vr(ZZ+4,4)}, v{L16}, {sr(SRD_C,4)}, s90 offen offset:1024 sc1")
    k("s_mov_b64 exec, s[96:97]")
    k.stamp("kv stored")
    KV, ZZ, MW, MC = 72, 88, 32, 64
    q.late[opt.get("kv_ps", 1)] = [WVM([("pre", 0)]), f"buffer_store_dword v{VT+1}, v{VT+2}, {sr(SRD_F,4)}, s92 offen sc1"]
    gs = opt.get("kv_gs", 9)
    ld = f"buffer_load_dword v253, v{VT}, {sr(SRD_F,4)}, s91 offen sc1"
    m = Txt(); m.label = k.label
    okl = k.label("gok")
    m(f"v_cmp_eq_u32 vcc, 0, v253\ns_cmp_eq_u64 vcc, 0\ns_cbranch_scc1 {okl}")
    spin(m, [ld], [253], 0)
    m(f"{okl}:")
    q.late[gs - 2] = [VM(ld, ("kvf", 0))]
    gl = [f"buffer_load_dwordx4 {vr(ZZ,4)}, v{L16}, {sr(SRD_C,4)}, s90 offen sc1", f"buffer_load_dwordx4 {vr(ZZ+4,4)}, v{L16}, {sr(SRD_C,4)}, s90 offen offset:1024 sc1"]
    for i in range(32):
        if i % 4 == 0 and i: gl.append("s_add_u32 s86, s86, 4096")
        gl.append(f"buffer_load_dwordx4 {ar(4*i,4)}, v{L16}, {sr(SRD_B,4)}, s86 offen offset:{(i%4)*1024} sc1")
    n3 = -(-len(gl) // 3)
    q.late[gs] = [WVM([("kvf", 0)]), T("\n".join(m.L))] + gl[:n3]
    q.late[gs + 1] = gl[n3:2*n3]; q.late[gs + 2] = gl[2*n3:]
    t2 = Txt()
    g2 = setup_gemm24(t2, 2, opt, (110, 111, 112, LANE, L16, 98))
    q.late[5] = t2.L[:len(t2.L)//2]; q.late[6] = t2.L[len(t2.L)//2:] + [f"global_load_ushort v{MC+i}, v109, s[{P_C}:{P_C+1}] offset:{i*16}" for i in range(8)]
    assert gs - 2 > 6
    younger = []
    younger += g2.prefetch_txt(8)
    mbl = []
    for i in range(8): mbl += [f"buffer_load_dwordx4 {vr(MW+4*i,4)}, v115, {sr(SRD_D,4)}, s{S_MB} offen", f"s_add_u32 s{S_MB}, s{S_MB}, {8*12288}"]
    mpos = opt.get("mpos", "tail")
    if mpos == "tail": younger += mbl
    ny = sum(1 for x in younger if is_vm(x))
    rest = list(range(gs + 3, 16)); per = -(-len(younger) // len(rest))
    for j, st_ in enumerate(rest): q.late[st_] = younger[j*per:(j+1)*per]
    A_PH = 128
    q.last_reads = wph_reads(ar, A_PH)
    q.run(k)
    k.stamp("g1b done")
    srd(k, SRD_T, P_WS, S * D * 2, WS_O)
    k("s_waitcnt lgkmcnt(0)\ns_nop 3")
    qa = Txt(); fm_part1(qa, 0, lambda i: ar(A_PH + i * 4, 4))
    qa(f"s_waitcnt vmcnt({min(63, ny + 32)})")
    for sh in (8, 4, 2, 1):
        for j in range(8): qa(f"v_add_f32_dpp v{ZZ+j}, v{ZZ+j}, v{ZZ+j} row_ror:{sh} row_mask:0xf bank_mask:0xf")
    for x in qa.L: k(x)
    k.stamp("qp a")
    hs = g2.hs
    qb = Txt(); fm_part2(qb); fm_part3(qb, EK, range(2) if hs else range(4))
    red = []
    for i in range(32):
        db, pp = divmod(i, 16)
        for fb in range(2):
            d = vr(KV + (db * 2 + fb) * 4, 4)
            red.append((f"s_waitcnt vmcnt({ny + 28 - i})\n" if (i % 4 == 0 and fb == 0) else "") + f"{MF} {d}, {vr(SEL + (2 if fb == 0 else 0), 4)}, {ar(4*i,4)}, {'0' if pp == 0 else d}")
    cut = opt.get("q_cut", 150) if not hs else len(qb.L)
    for x in merge(qb.L[:cut], red, 2): k(x)
    if hs:
        k("s_nop 3")
        qb = Txt(); fm_part3(qb, EK, [2]); cut = 0
    k.stamp("qp merged")
    k(f"s_mul_i32 s82, s{S_WAVE}, 3072\ns_add_u32 s82, s82, {SH}")
    k(f"v_add_u32 v{VT+1}, s82, v{L16}\nv_add_u32 v{VT+2}, {SH}, v{L16}")
    k(f"v_and_b32 v{VT}, 1, v{LANE}\nv_cmp_eq_u32 vcc, 0, v{VT}")
    k("s_nop 4")
    for j in range(12): k(f"v_cvt_pk_bf16_f32 v{KV+j}, v{KV+2*j}, v{KV+2*j+1}")
    for j in range(4): k(f"v_cndmask_b32 v{KV+8+j}, v{ONES}, v{KV+8+j}, vcc")
    for j in range(3): k(f"ds_write_b128 v{VT+1}, {vr(KV+4*j,4)} offset:{j*1024}")
    for x in (merge(qb.L[cut:], mbl, 2) if mpos == "q" else qb.L[cut:]): k(x)
    k.stamp("qp rest")
    k("s_waitcnt lgkmcnt(0)\ns_barrier")
    k.stamp("qp bar")
    for i in range(12): k(f"ds_read_b128 {ar(4*i,4)}, v{VT+2} offset:{i*1024}")
    k(f"s_lshl_b32 s82, s{S_RB1}, 3\ns_lshl_b32 s83, s{S_WAVE}, 1\ns_add_u32 s82, s82, s83\ns_lshl_b32 s82, s82, 15")
    k(f"s_lshl_b32 s83, s{S_HP}, 11\ns_add_u32 s82, s82, s83\ns_add_u32 s83, s82, 0x8000")
    k(f"s_lshl_b32 s84, s{S_RB1}, 2\ns_add_u32 s84, s84, s{S_WAVE}\ns_lshl_b32 s84, s84, {FS+4}\ns_lshl_b32 s85, s{S_HP}, {FS}\ns_add_u32 s84, s84, s85\ns_add_u32 s84, s84, {F_O}")
    k("s_waitcnt lgkmcnt(0)")
    NB_ = 126
    def nbase(g): return NB_ + g * 24 if (not hs or g >= 2) else None
    def oregs(g):
        if hs and g < 2: return (0, 12) if g == 0 else (72, 84)
        return (NB_ + g * 24, NB_ + g * 24 + 12)
    def o_mfma(gl):
        for g in gl:
            hh, t = groups[g]
            for sg in range(2):
                for j in range(3):
                    k(f"{MF} {vr(oregs(g)[sg]+4*j,4)}, {ar(((hh*2+sg)*3+j)*4,4)}, {vr(EK+(g*2+sg)*4,4)}, 0")
    def o_fin(gl):
        for g in gl:
            hh, t = groups[g]
            n1, n2 = oregs(g)
            D1, S1, D2, S2 = n1 + 8, n1 + 9, n2 + 8, n2 + 9
            k(f"v_mul_f32 v{n1+10}, v{S1}, v{S2}")
            k(f"v_mul_f32 v{n1+10}, 0x358637bd, v{n1+10}")
            k(f"v_fmac_f32 v{n1+10}, v{D1}, v{S2}\nv_fmac_f32 v{n1+10}, v{D2}, v{S1}")
            k(f"v_rcp_f32 v{n1+10}, v{n1+10}")
            k("s_nop 0")
            k(f"v_mul_f32 v{D1}, v{S2}, v{n1+10}\nv_mul_f32 v{D2}, v{S1}, v{n1+10}")
            for j in range(4): k(f"v_pk_mul_f32 {vr(n1+2*j,2)}, {vr(n1+2*j,2)}, {vr(D1,2)} op_sel_hi:[1,0]")
            for j in range(4): k(f"v_pk_fma_f32 {vr(n1+2*j,2)}, {vr(n2+2*j,2)}, {vr(D2,2)}, {vr(n1+2*j,2)} op_sel_hi:[1,0,1]")
            for j in range(4): k(f"v_cvt_pk_bf16_f32 v{n2+j}, v{n1+2*j}, v{n1+2*j+1}")
            k(f"buffer_store_dwordx4 {vr(n2,4)}, v{L16}, {sr(SRD_T,4)}, s{82+t} offen offset:{hh*1024} sc1")
    if hs:
        o_mfma([0, 1]); k("s_nop 7"); o_fin([0, 1])
        mk0 = len(k.L)
        fm_part3(k, EK, [3])
        k("s_nop 1")
        o_mfma([2, 3]); k("s_nop 7")
        publish(k, 84, VT + 1, mk0)
        k(f"s_add_u32 s95, s84, {F_O2 - F_O}")
        o_fin([2, 3])
    else:
        o_mfma(range(4)); k("s_nop 7"); o_fin(range(4))
    k.stamp("o stored")
    mko = len(k.L)
    g2.V_X = 178
    srd(k, SRD_A, P_X, S * D * 2)
    V_XA = 100
    k(f"v_lshrrev_b32 v{VT+1}, 4, v{LANE}")
    k(f"v_and_b32 v{VT+2}, 15, v{LANE}\nv_lshlrev_b32 v{VT+2}, 11, v{VT+2}\nv_lshl_add_u32 v{V_XA}, v{VT+1}, 3, v{VT+2}")
    k(f"s_lshl_b32 s82, s{S_RB2}, 3\ns_lshl_b32 s83, s{S_WAVE}, 1\ns_add_u32 s82, s82, s83\ns_lshl_b32 s82, s82, 15\ns_lshl_b32 s83, s{S_NT}, 7\ns_add_u32 s82, s82, s83\ns_add_u32 s83, s82, 32768")
    for t in range(2):
        for b in range(4):
            k(f"buffer_load_dwordx2 {vr(g2.V_X+(t*4+b)*2,2)}, v{V_XA}, {sr(SRD_A,4)}, s{82+t} offen offset:{b*32}")
    k.g3 = setup_gemm3_early(k, opt, LANE, 20)
    if not hs: publish(k, 84, VT + 1, mko)
    k.stamp("o published")
    mark1 = len(k.L)
    CU, AU, TT = 0, 16, 24
    for i in range(8): k(f"v_mov_b32 v{CU+2*i}, v{MC+i}")
    silu_block(k, [CU + 2 * i for i in range(8)])
    for i in range(8):
        for d in range(4):
            k(f"v_lshlrev_b32 v{TT}, 16, v{MW+4*i+d}\nv_and_b32 v{TT+1}, 0xffff0000, v{MW+4*i+d}")
            if i == 0: k(f"v_pk_mul_f32 {vr(AU+2*d,2)}, {vr(TT,2)}, {vr(CU,2)} op_sel_hi:[1,0]")
            else: k(f"v_pk_fma_f32 {vr(AU+2*d,2)}, {vr(TT,2)}, {vr(CU+2*i,2)}, {vr(AU+2*d,2)} op_sel_hi:[1,0,1]")
    k("s_nop 1")
    for j in range(4): k(f"v_permlane32_swap_b32 v{AU+j}, v{AU+j+4}")
    k("s_nop 1")
    for j in range(4): k(f"v_add_f32 v{AU+j}, v{AU+j}, v{AU+j+4}")
    k("s_nop 1")
    for j in range(2): k(f"v_permlane16_swap_b32 v{AU+j}, v{AU+j+2}")
    k("s_nop 1")
    for j in range(2): k(f"v_add_f32 v{AU+j}, v{AU+j}, v{AU+j+2}")
    k("s_nop 1")
    for j in range(2): k(f"v_add_f32_dpp v{AU+j}, v{AU+j}, v{AU+j} row_ror:8 row_mask:0xf bank_mask:0xf")
    sprinkle(k, mark1, g3_early_units(k.g3, opt.get("g3_e2", 7), 254), skip=0)
    k(f"v_and_b32 v{TT}, 7, v{LANE}\nv_lshlrev_b32 v{TT}, 5, v{TT}\nv_lshrrev_b32 v{TT+1}, 5, v{LANE}\nv_lshl_add_u32 v{TT}, v{TT+1}, 4, v{TT}")
    k(f"v_bfe_u32 v{TT+1}, v{LANE}, 4, 1\nv_lshl_add_u32 v{TT}, v{TT+1}, 3, v{TT}")
    srd(k, SRD_D, P_WS, MP_BYTES, WS_MODP)
    k(f"v_or_b32 v{AU}, 1, v{AU}\nv_or_b32 v{AU+1}, 1, v{AU+1}")
    k(f"buffer_store_dwordx2 {vr(AU,2)}, v{TT}, {sr(SRD_D,4)}, s{S_MO} offen sc1")
    return g2

A_UT = 176
def silu_block(k, regs):
    for v in regs: k(f"v_lshlrev_b32 v{v}, 16, v{v}\nv_mul_f32 v{v+1}, {-LOG2E!r}, v{v}")
    for v in regs: k(f"v_exp_f32 v{v+1}, v{v+1}")
    k("s_nop 0")
    for v in regs: k(f"v_add_f32 v{v+1}, 1.0, v{v+1}")
    for v in regs: k(f"v_rcp_f32 v{v+1}, v{v+1}")
    k("s_nop 0")
    for v in regs:
        k(f"v_mul_f32 v{v}, v{v}, v{v+1}"); round_bf16(k, v)

def modb_loads(s_off, v_w, v_c):
    out = []
    for i in range(8):
        out.append([f"buffer_load_dwordx4 {ar(A_UT+4*i,4)}, v{v_w}, {sr(SRD_D,4)}, s{s_off} offen", f"s_add_u32 s{s_off}, s{s_off}, {8*12288}"])
    return out

def red32(k, x, t):
    red8(k, x)
    k(f"s_nop 1\nv_add_f32_dpp v{x}, v{x}, v{x} row_mirror row_mask:0xf bank_mask:0xf")
    k(f"v_mov_b32 v{t}, v{x}\ns_nop 1\nv_permlane16_swap_b32 v{x}, v{t}\ns_nop 1\nv_add_f32 v{x}, v{x}, v{t}")

def ids(k):
    k("v_lshrrev_b32 v1, 6, v0")
    k(f"s_and_b32 s{S_XCD}, s2, 7\ns_lshr_b32 s{S_IDX}, s2, 3")
    k(f"v_readfirstlane_b32 s{S_WAVE}, v1")
    k(f"s_bfe_u32 s{S_RB1}, s{S_XCD}, 0x10001\ns_lshl_b32 s{S_RB1}, s{S_RB1}, 3\ns_lshr_b32 s80, s{S_IDX}, 2\ns_add_u32 s{S_RB1}, s{S_RB1}, s80")
    k(f"s_lshr_b32 s{S_HP}, s{S_XCD}, 2\ns_lshl_b32 s{S_HP}, s{S_HP}, 2\ns_and_b32 s80, s{S_IDX}, 3\ns_add_u32 s{S_HP}, s{S_HP}, s80\ns_lshl_b32 s{S_HP}, s{S_HP}, 1\ns_and_b32 s80, s{S_XCD}, 1\ns_add_u32 s{S_HP}, s{S_HP}, s80")

def build_k0(instr=False, opt=None, name="mod_kernel", mega="mega_kernel"):
    opt = opt or {}
    k = Kernel(name, 256, 256, 4096, vgpr=128, sgpr=102)
    k.instr = instr; k.s_wave = S_WAVE
    stamp(k, 0)
    end = k.label("end")
    k(f"s_cmp_ge_u32 s2, 256\ns_cbranch_scc1 {end}")
    k("s_load_dwordx4 s[12:15], s[0:1], 64")
    k("s_load_dwordx8 s[4:11], s[0:1], 0")
    k("s_load_dwordx2 s[28:29], s[0:1], 96")
    ids(k)
    LANE, T, V_W = 104, 48, 105
    WA, CA, XR, XF, A0, SU = 64, 80, 84, 0, 32, 100
    k(f"v_and_b32 v{LANE}, 63, v0")
    k(f"v_lshrrev_b32 v{T+1}, 3, v{LANE}\nv_and_b32 v{T+2}, 7, v{LANE}")
    k(f"v_mul_u32_u24 v{V_W}, 12288, v{T+1}\nv_lshl_add_u32 v{V_W}, v{T+2}, 4, v{V_W}")
    k(f"s_lshl_b32 s64, s{S_RB1}, 6\ns_lshl_b32 s65, s{S_WAVE}, 4\ns_add_u32 s64, s64, s65")
    k(f"v_add_u32 v{T+3}, s64, v{T+1}\nv_lshlrev_b32 v{T+3}, 1, v{T+3}")
    k(f"s_mul_i32 s67, s64, 12288\ns_lshl_b32 s66, s{S_HP}, 7\ns_add_u32 s67, s67, s66\ns_add_u32 s68, s67, {8*12288}")
    k(f"v_lshrrev_b32 v{T+4}, 5, v{LANE}\nv_lshlrev_b32 v{T+4}, 11, v{T+4}\nv_and_b32 v{T+5}, 31, v{LANE}\nv_lshl_add_u32 v{T+4}, v{T+5}, 4, v{T+4}")
    k(f"s_lshl_b32 s69, s{S_RB1}, 4\ns_add_u32 s69, s69, s{S_HP}")
    k(f"s_lshl_b32 s70, s69, 14\ns_lshl_b32 s71, s{S_WAVE}, 12\ns_add_u32 s70, s70, s71")
    k("s_waitcnt lgkmcnt(0)")
    srd(k, SRD_D, 14, D * 6 * D * 2)
    srd(k, SRD_A, P_X, S * D * 2)
    for i in range(2): k(f"global_load_ushort v{CA+2*i}, v{T+3}, s[12:13] offset:{i*16}")
    for i in range(2):
        for v in range(2): k(f"buffer_load_dwordx4 {vr(WA+(i*2+v)*4,4)}, v{V_W}, {sr(SRD_D,4)}, s{67+i} offen offset:{v*2048}")
    for i in range(4): k(f"buffer_load_dwordx4 {vr(XR+4*i,4)}, v{T+4}, {sr(SRD_A,4)}, s70 offen offset:{i*512}")
    stamp(k, 1)
    lab = k.label("pc")
    k(f"s_getpc_b64 s[60:61]\n{lab}:")
    k(f"s_add_u32 s60, s60, {mega}-{lab}\ns_addc_u32 s61, s61, 0")
    k(f"v_lshlrev_b32 v{T+6}, 4, v{LANE}")
    for x in code_prefetch_txt(mega, T + 6, T + 7, 62, s_pc=60, junk="v110"): k(x)
    srd(k, SRD_B, P_WS, MP_BYTES, WS_MODP)
    srd(k, SRD_F, P_WS, FLAG_BYTES, WS_FLAG)
    srd(k, SRD_C, P_WS, S * 128, WS_STAT)
    k(f"v_mov_b32 v{T+8}, 0\nv_lshlrev_b32 v{T+9}, 2, v0\ns_lshl_b32 s62, s2, 10\ns_add_u32 s63, s62, {MP_B}")
    k(f"v_lshlrev_b32 v{T+10}, {FS}, v0\ns_lshl_b32 s66, s2, {FS+8}")
    k(f"buffer_store_dword v{T+8}, v{T+10}, {sr(SRD_F,4)}, s66 offen")
    k(f"buffer_store_dword v{T+8}, v{T+9}, {sr(SRD_C,4)}, s62 offen")
    k(f"buffer_store_dword v{T+8}, v{T+9}, {sr(SRD_B,4)}, s63 offen")
    young = 4
    k(f"s_lshl_b32 s62, s2, 2\ns_add_u32 s62, s62, s{S_WAVE}")
    for ptr, per, tag in ((P_WQKV, 6, "t_wq"), (P_WO, 2, "t_wo"), (14, 12, "t_wm")):
        if not opt.get(tag, 1): continue
        k(f"s_mul_i32 s63, s62, {per*1024}\ns_add_u32 s63, s63, 384")
        k(f"v_min_u32 v{T+14}, {per-1}, v{LANE}\nv_lshlrev_b32 v{T+14}, 10, v{T+14}\nv_add_u32 v{T+14}, s63, v{T+14}")
        k(f"global_load_dword v110, v{T+14}, s[{ptr}:{ptr+1}]")
        young += 1
    k(f"s_waitcnt vmcnt({young + 8})")
    silu_block(k, [CA, CA + 2])
    k(f"s_waitcnt vmcnt({young + 4})")
    for i in range(2):
        for v in range(2):
            for d in range(4):
                w_ = WA + (i * 2 + v) * 4 + d
                k(f"v_lshlrev_b32 v{T+10}, 16, v{w_}\nv_and_b32 v{T+11}, 0xffff0000, v{w_}")
                if i == 0: k(f"v_pk_mul_f32 {vr(A0+v*8+2*d,2)}, {vr(T+10,2)}, {vr(CA,2)} op_sel_hi:[1,0]")
                else: k(f"v_pk_fma_f32 {vr(A0+v*8+2*d,2)}, {vr(T+10,2)}, {vr(CA+2,2)}, {vr(A0+v*8+2*d,2)} op_sel_hi:[1,0,1]")
    k("s_nop 1")
    for j in range(8): k(f"v_permlane32_swap_b32 v{A0+j}, v{A0+8+j}")
    k("s_nop 1")
    for j in range(8): k(f"v_add_f32 v{A0+j}, v{A0+j}, v{A0+8+j}")
    k("s_nop 1")
    for j in range(4): k(f"v_permlane16_swap_b32 v{A0+j}, v{A0+4+j}")
    k("s_nop 1")
    for j in range(4): k(f"v_add_f32 v{A0+j}, v{A0+j}, v{A0+4+j}")
    k("s_nop 1")
    for j in range(4): k(f"v_add_f32_dpp v{A0+j}, v{A0+j}, v{A0+j} row_ror:8 row_mask:0xf bank_mask:0xf")
    k(f"v_lshrrev_b32 v{T+12}, 5, v{LANE}\nv_lshlrev_b32 v{T+13}, 8, v{T+12}\nv_lshl_add_u32 v{T+13}, v{T+2}, 5, v{T+13}")
    k(f"v_bfe_u32 v{T+10}, v{LANE}, 4, 1\nv_lshl_add_u32 v{T+13}, v{T+10}, 4, v{T+13}\ns_lshl_b32 s62, s{S_WAVE}, 9\nv_add_u32 v{T+13}, s62, v{T+13}")
    k(f"ds_write_b128 v{T+13}, {vr(A0,4)}")
    k("s_waitcnt lgkmcnt(0)\ns_barrier")
    nw0 = k.label("notw0")
    k(f"s_cmp_lg_u32 s{S_WAVE}, 0\ns_cbranch_scc1 {nw0}")
    k(f"v_lshlrev_b32 v{T+13}, 3, v{LANE}")
    for w in range(4): k(f"ds_read_b64 {vr(A0+2*w,2)}, v{T+13} offset:{w*512}")
    k(f"s_lshl_b32 s62, s{S_HP}, 13\ns_lshl_b32 s63, s{S_RB1}, 9\ns_add_u32 s63, s63, s62")
    k("s_waitcnt lgkmcnt(0)")
    k(f"v_pk_add_f32 {vr(A0,2)}, {vr(A0,2)}, {vr(A0+2,2)}\nv_pk_add_f32 {vr(A0+4,2)}, {vr(A0+4,2)}, {vr(A0+6,2)}\nv_pk_add_f32 {vr(A0,2)}, {vr(A0,2)}, {vr(A0+4,2)}")
    k(f"buffer_store_dwordx2 {vr(A0,2)}, v{T+13}, {sr(SRD_B,4)}, s63 offen")
    k(f"{nw0}:")
    stamp(k, 2)
    k(f"s_waitcnt vmcnt({young})")
    for d in range(16): k(f"v_lshlrev_b32 v{XF+2*d}, 16, v{XR+d}\nv_and_b32 v{XF+2*d+1}, 0xffff0000, v{XR+d}")
    k(f"v_pk_add_f32 {vr(SU,2)}, {vr(XF,2)}, {vr(XF+2,2)}")
    for d in range(2, 16): k(f"v_pk_add_f32 {vr(SU,2)}, {vr(SU,2)}, {vr(XF+2*d,2)}")
    k(f"v_add_f32 v{SU}, v{SU}, v{SU+1}")
    red32(k, SU, SU + 1)
    k(f"v_mul_f32 v{SU+2}, {-1.0/1024!r}, v{SU}")
    k(f"v_mov_b32 v{SU}, 0\nv_mov_b32 v{SU+1}, 0")
    for d in range(16):
        k(f"v_pk_add_f32 {vr(XF+2*d,2)}, {vr(XF+2*d,2)}, {vr(SU+2,2)} op_sel_hi:[1,0]")
        k(f"v_pk_fma_f32 {vr(SU,2)}, {vr(XF+2*d,2)}, {vr(XF+2*d,2)}, {vr(SU,2)}")
    k(f"v_add_f32 v{SU}, v{SU}, v{SU+1}")
    red32(k, SU, SU + 1)
    k(f"v_mov_b32 v{SU+1}, 0x3727c5ac\nv_fmac_f32 v{SU+1}, {1.0/1024!r}, v{SU}\nv_rsq_f32 v{SU+3}, v{SU+1}")
    k(f"s_lshl_b32 s62, s69, 6\ns_lshl_b32 s63, s{S_WAVE}, 4\ns_add_u32 s62, s62, s63\ns_add_u32 s62, s62, {MP_RS}\nv_lshlrev_b32 v{T+12}, 3, v{T+12}")
    k(f"buffer_store_dwordx2 {vr(SU+2,2)}, v{T+12}, {sr(SRD_B,4)}, s62 offen")
    stamp(k, 3)
    if instr: k("s_waitcnt vmcnt(0)")
    stamp(k, 4)
    stamp_flush(k, 28, 5, 4, slot=1)
    k(f"{end}:\ns_endpgm")
    return k

def phase_front_fused(k, opt, name):
    LANE, L16 = 104, 105
    T = 48
    V_W, V_C = 115, 109
    WA, CA, XR, XT_, XF, A0, SU, G, M, RS = 64, 80, 128, 144, 0, 200, 216, 160, 32, 84
    HL = 2 * 25344
    k(f"v_lshrrev_b32 v{T+1}, 3, v{LANE}\nv_and_b32 v{T+2}, 7, v{LANE}")
    k(f"v_mul_u32_u24 v{V_W}, 12288, v{T+1}\nv_lshl_add_u32 v{V_W}, v{T+2}, 4, v{V_W}")
    k(f"s_lshl_b32 s84, s{S_RB1}, 6")
    k(f"v_add_u32 v{V_C}, s84, v{T+1}\nv_lshlrev_b32 v{V_C}, 1, v{V_C}")
    k(f"s_lshl_b32 s85, s{S_WAVE}, 5\nv_add_u32 v{T+3}, s85, v{V_C}")
    k(f"s_mul_i32 s86, s84, 12288\ns_lshl_b32 s87, s{S_HP}, 7\ns_add_u32 s86, s86, s87")
    k(f"s_mul_i32 s87, s{S_WAVE}, {16*12288}\ns_add_u32 s87, s87, s86\ns_add_u32 s88, s87, {8*12288}")
    k(f"v_lshrrev_b32 v{T+4}, 5, v{LANE}\nv_lshlrev_b32 v{T+4}, 11, v{T+4}\nv_and_b32 v{T+5}, 31, v{LANE}\nv_lshl_add_u32 v{T+4}, v{T+5}, 4, v{T+4}")
    k(f"s_lshl_b32 s89, s{S_RB1}, 4\ns_add_u32 s89, s89, s{S_HP}")
    k(f"s_lshl_b32 s90, s89, 14\ns_lshl_b32 s91, s{S_WAVE}, 12\ns_add_u32 s90, s90, s91")
    k(f"v_mov_b32 v{T+8}, 0\nv_mov_b32 v{T+9}, 0\nv_mov_b32 v{T+10}, 0\nv_mov_b32 v{T+11}, 0\nv_mov_b32 v{T+12}, 1")
    k(f"v_lshlrev_b32 v{T+7}, {FS}, v{LANE}")
    k(f"s_lshl_b32 s93, s2, {FS+6}\ns_add_u32 s93, s93, {F_S0}\ns_cmp_lt_u32 s2, 4\ns_cselect_b32 s93, s93, 0x7ff00000\ns_cmp_eq_u32 s{S_WAVE}, 3\ns_cselect_b32 s93, s93, 0x7ff00000")
    k("s_waitcnt lgkmcnt(0)")
    srd(k, SRD_F, P_WS, FLAG_BYTES, WS_FLAG)
    k(f"buffer_store_dword v{T+8}, v{T+7}, {sr(SRD_F,4)}, s93 offen sc1")
    k(f"s_mov_b32 s{SRD_T}, s{P_DBG}\ns_mov_b32 s{SRD_T+1}, s{P_DBG+1}\ns_mov_b32 s{SRD_T+2}, 256\ns_mov_b32 s{SRD_T+3}, 0x20000")
    k("s_mov_b32 s95, s93")
    srd(k, SRD_D, P_WMOD, D * 6 * D * 2)
    srd(k, SRD_A, P_X, S * D * 2)
    for i in range(2): k(f"global_load_ushort v{CA+2*i}, v{T+3}, s[{P_C}:{P_C+1}] offset:{i*16}")
    for i in range(2):
        for v in range(2): k(f"buffer_load_dwordx4 {vr(WA+(i*2+v)*4,4)}, v{V_W}, {sr(SRD_D,4)}, s{87+i} offen offset:{v*2048}")
    for i in range(4): k(f"buffer_load_dwordx4 {vr(XR+4*i,4)}, v{T+4}, {sr(SRD_A,4)}, s90 offen offset:{i*512}")
    k.stamp("loads issued")
    srd(k, SRD_B, P_WS, MP_BYTES, WS_MODP)
    srd(k, SRD_C, P_WS, S * 128, WS_STAT)
    w3, jn = k.label("w3"), k.label("join")
    k(f"s_cmp_eq_u32 s{S_WAVE}, 3\ns_cbranch_scc1 {w3}")
    k(f"s_lshl_b32 s92, s2, 1\ns_add_u32 s92, s92, s{S_WAVE}\ns_sub_u32 s92, s92, 1")
    nt_ = k.label("notouch")
    k("s_mov_b32 s93, 0x7ff00000")
    for i in range(2): k(f"buffer_load_dword a233, v{V_W}, {sr(SRD_D,4)}, s93 offen")
    k(f"s_cmp_eq_u32 s{S_WAVE}, 0\ns_cbranch_scc1 {nt_}")
    for ptr, per in ((P_WQKV, 12), (P_WO, 4), (P_WMOD, 24)):
        k(f"s_mul_i32 s93, s92, {per}\nv_min_u32 v{T+14}, {per-1}, v{LANE}\nv_add_u32 v{T+14}, s93, v{T+14}")
        k(f"v_lshlrev_b32 v{T+14}, 10, v{T+14}")
        k(f"global_load_dword a232, v{T+14}, s[{ptr}:{ptr+1}] offset:384")
    k(f"s_branch {jn}")
    k(f"{nt_}:")
    for i in range(3): k(f"buffer_load_dword a233, v{V_W}, {sr(SRD_D,4)}, s93 offen")
    k(f"s_branch {jn}")
    k(f"{w3}:")
    nb = k.label("nboot")
    k(f"s_cmp_eq_u32 s95, 0x7ff00000\ns_cbranch_scc1 {nb}")
    k("s_lshl_b32 s93, s2, 2\ns_waitcnt vmcnt(10)")
    k(f"buffer_store_dword v{T+12}, v{T+8}, {sr(SRD_T,4)}, s93 offen sc1")
    k(f"{nb}:")
    k(f"v_and_b32 v{T+14}, 3, v{LANE}\nv_lshlrev_b32 v{T+14}, 4, v{T+14}")
    k(f"s_lshl_b32 s93, s{S_RB1}, 6\ns_add_u32 s93, s93, s{S_HP}\nv_add_u32 v{T+15}, s93, v{T+14}")
    k(f"s_lshl_b32 s93, s{S_HP}, 6\ns_add_u32 s93, s93, s{S_RB1}\ns_add_u32 s93, s93, 1024\nv_add_u32 v{T+14}, s93, v{T+14}")
    k(f"v_cmp_gt_u32 vcc, 4, v{LANE}\ns_mul_i32 s93, s2, 24\ns_add_u32 s93, s93, 2040")
    k(f"v_cndmask_b32 v{T+14}, v{T+14}, v{T+15}, vcc\nv_add_u32 v{T+15}, s93, v{LANE}")
    k(f"v_cmp_gt_u32 vcc, 8, v{LANE}\ns_nop 1\nv_cndmask_b32 v{T+14}, v{T+15}, v{T+14}, vcc")
    k(f"v_cmp_gt_u32 vcc, 32, v{LANE}\nv_mov_b32 v{T+15}, 0x100000\ns_nop 0\nv_cndmask_b32 v{T+14}, v{T+15}, v{T+14}, vcc")
    k(f"v_lshlrev_b32 v{T+14}, {FS}, v{T+14}")
    k(f"buffer_store_dword v{T+8}, v{T+14}, {sr(SRD_F,4)}, 0 offen sc1")
    k("s_mov_b32 s93, 0x7ff00000")
    for i in range(2): k(f"buffer_load_dword a233, v{V_W}, {sr(SRD_D,4)}, s93 offen")
    k("s_lshl_b32 s93, s2, 10")
    k(f"buffer_store_dwordx4 {vr(T+8,4)}, v{L16}, {sr(SRD_C,4)}, s93 offen sc1")
    k(f"s_add_u32 s93, s93, {MP_B}")
    k(f"buffer_store_dwordx4 {vr(T+8,4)}, v{L16}, {sr(SRD_B,4)}, s93 offen sc1")
    k(f"{jn}:")
    k(f"v_lshlrev_b32 v{T+5}, 11, v{T+1}\nv_lshl_add_u32 v{T+5}, v{T+2}, 4, v{T+5}")
    k(f"s_lshl_b32 s91, s{S_RB1}, 18\ns_lshl_b32 s92, s{S_WAVE}, 16\ns_add_u32 s91, s91, s92\ns_lshl_b32 s92, s{S_HP}, 7\ns_add_u32 s91, s91, s92")
    for i in range(4):
        k(f"buffer_load_dwordx4 {vr(XT_+4*i,4)}, v{T+5}, {sr(SRD_A,4)}, s91 offen")
        if i < 3: k("s_add_u32 s91, s91, 16384")
    k(f"s_lshl_b32 s94, s{S_WAVE}, 11\ns_add_u32 s{S_MB}, s86, s94\ns_add_u32 s{S_MB}, s{S_MB}, 4096")
    k(f"s_lshl_b32 s94, s{S_WAVE}, 16\ns_lshl_b32 s95, s{S_HP}, 12\ns_add_u32 s94, s94, s95\ns_lshl_b32 s95, s{S_RB1}, 8\ns_add_u32 s94, s94, s95\ns_add_u32 s{S_MO}, s94, {MP_B}")
    young = 9
    k.stamp("all issued")
    k(f"s_waitcnt vmcnt({young + 8})")
    k.stamp("c ready")
    silu_block(k, [CA, CA + 2])
    k(f"s_waitcnt vmcnt({young + 4})")
    k.stamp("w ready")
    for i in range(2):
        for v in range(2):
            for d in range(4):
                w_ = WA + (i * 2 + v) * 4 + d
                k(f"v_lshlrev_b32 v{T+14}, 16, v{w_}\nv_and_b32 v{T+15}, 0xffff0000, v{w_}")
                if i == 0: k(f"v_pk_mul_f32 {vr(A0+v*8+2*d,2)}, {vr(T+14,2)}, {vr(CA,2)} op_sel_hi:[1,0]")
                else: k(f"v_pk_fma_f32 {vr(A0+v*8+2*d,2)}, {vr(T+14,2)}, {vr(CA+2,2)}, {vr(A0+v*8+2*d,2)} op_sel_hi:[1,0,1]")
    k("s_nop 1")
    for j in range(8): k(f"v_permlane32_swap_b32 v{A0+j}, v{A0+8+j}")
    k("s_nop 1")
    for j in range(8): k(f"v_add_f32 v{A0+j}, v{A0+j}, v{A0+8+j}")
    k("s_nop 1")
    for j in range(4): k(f"v_permlane16_swap_b32 v{A0+j}, v{A0+4+j}")
    k("s_nop 1")
    for j in range(4): k(f"v_add_f32 v{A0+j}, v{A0+j}, v{A0+4+j}")
    k("s_nop 1")
    for j in range(4): k(f"v_add_f32_dpp v{A0+j}, v{A0+j}, v{A0+j} row_ror:8 row_mask:0xf bank_mask:0xf")
    k(f"v_lshrrev_b32 v{T+13}, 5, v{LANE}\nv_lshlrev_b32 v{T+14}, 8, v{T+13}\nv_lshl_add_u32 v{T+14}, v{T+2}, 5, v{T+14}")
    k(f"v_bfe_u32 v{T+15}, v{LANE}, 4, 1\nv_lshl_add_u32 v{T+14}, v{T+15}, 4, v{T+14}\ns_lshl_b32 s94, s{S_WAVE}, 9\nv_add_u32 v{T+14}, s94, v{T+14}")
    k(f"ds_write_b128 v{T+14}, {vr(A0,4)} offset:{HL}")
    k(f"s_waitcnt vmcnt({young})")
    for d in range(16): k(f"v_lshlrev_b32 v{XF+2*d}, 16, v{XR+d}\nv_and_b32 v{XF+2*d+1}, 0xffff0000, v{XR+d}")
    k(f"v_pk_add_f32 {vr(SU,2)}, {vr(XF,2)}, {vr(XF+2,2)}")
    for d in range(2, 16): k(f"v_pk_add_f32 {vr(SU,2)}, {vr(SU,2)}, {vr(XF+2*d,2)}")
    k(f"v_add_f32 v{SU}, v{SU}, v{SU+1}")
    red32(k, SU, SU + 1)
    k(f"v_mul_f32 v{SU+2}, {-1.0/1024!r}, v{SU}")
    k(f"v_mov_b32 v{SU}, 0\nv_mov_b32 v{SU+1}, 0")
    for d in range(16):
        k(f"v_pk_add_f32 {vr(XF+2*d,2)}, {vr(XF+2*d,2)}, {vr(SU+2,2)} op_sel_hi:[1,0]")
        k(f"v_pk_fma_f32 {vr(SU,2)}, {vr(XF+2*d,2)}, {vr(XF+2*d,2)}, {vr(SU,2)}")
    k(f"v_add_f32 v{SU}, v{SU}, v{SU+1}")
    red32(k, SU, SU + 1)
    k(f"v_mov_b32 v{SU+1}, 0x3727c5ac\nv_fmac_f32 v{SU+1}, {1.0/1024!r}, v{SU}\nv_rsq_f32 v{SU+3}, v{SU+1}")
    k(f"s_lshl_b32 s94, s{S_WAVE}, 4\nv_lshlrev_b32 v{T+13}, 3, v{T+13}\nv_add_u32 v{T+13}, s94, v{T+13}")
    k(f"ds_write_b64 v{T+13}, {vr(SU+2,2)} offset:{HL+2048}")
    n3 = k.label("not3")
    k(f"s_cmp_lg_u32 s{S_WAVE}, 3\ns_cbranch_scc1 {n3}")
    k(f"v_and_b32 v{T+14}, 3, v{LANE}\nv_lshlrev_b32 v{T+14}, 2, v{T+14}")
    spin(k, [f"buffer_load_dword v{T+13}, v{T+14}, {sr(SRD_T,4)}, 0 offen sc1"], [T + 13], 0)
    k(f"{n3}:")
    k("s_waitcnt lgkmcnt(0)\ns_barrier")
    k.stamp("partials")
    nw0 = k.label("notw0")
    k(f"v_lshlrev_b32 v{T+6}, 3, v{LANE}")
    k(f"s_cmp_lg_u32 s{S_WAVE}, 0\ns_cbranch_scc1 {nw0}")
    for w in range(4): k(f"ds_read_b64 {vr(A0+2*w,2)}, v{T+6} offset:{HL+w*512}")
    k(f"v_and_b32 v{T+9}, 0x38, v{T+6}")
    k(f"ds_read_b64 {vr(A0+8,2)}, v{T+9} offset:{HL+2048}")
    k(f"s_lshl_b32 s94, s{S_HP}, 13\ns_lshl_b32 s95, s{S_RB1}, 9\ns_add_u32 s95, s95, s94")
    k(f"s_lshl_b32 s90, s89, 6\ns_add_u32 s90, s90, {MP_RS}")
    k("s_waitcnt lgkmcnt(0)")
    k(f"v_pk_add_f32 {vr(A0,2)}, {vr(A0,2)}, {vr(A0+2,2)}\nv_pk_add_f32 {vr(A0+4,2)}, {vr(A0+4,2)}, {vr(A0+6,2)}\nv_pk_add_f32 {vr(A0,2)}, {vr(A0,2)}, {vr(A0+4,2)}")
    k(f"buffer_store_dwordx2 {vr(A0,2)}, v{T+6}, {sr(SRD_B,4)}, s95 offen sc1")
    k(f"buffer_store_dwordx2 {vr(A0+8,2)}, v{T+9}, {sr(SRD_B,4)}, s90 offen sc1")
    k(f"s_lshl_b32 s90, s89, {FS}\ns_add_u32 s90, s90, {F_S0}")
    k("s_waitcnt vmcnt(0)")
    k(f"buffer_store_dword v{T+12}, v{T+8}, {sr(SRD_F,4)}, s90 offen sc1")
    if opt.get("modb_front", 0):
        sk_ = k.label("skmf")
        k(f"s_branch {sk_}")
        k(f"{nw0}:")
        k("s_waitcnt vmcnt(0)")
        for g in modb_loads(S_MB, V_W, V_C):
            for x in g: k(x)
        k(f"s_mov_b32 s{S_MB}, 0x7ff00000")
        k(f"{sk_}:")
    else:
        k(f"{nw0}:")
    k.stamp("s0 published")
    split = opt.get("split", 1)
    g1 = (setup_gemm1s if split else setup_gemm1)(k, opt)
    srd(k, SRD_W, P_WQKV, D * 3 * D * 2)
    if not opt.get("modb_front", 0):
        k("s_waitcnt vmcnt(1)")
        k(f"s_cmp_eq_u32 s{S_WAVE}, 0\ns_cbranch_scc1 1\ns_waitcnt vmcnt(0)")
    for d in range(16): k(f"v_lshlrev_b32 v{XF+2*d}, 16, v{XT_+d}\nv_and_b32 v{XF+2*d+1}, 0xffff0000, v{XT_+d}")
    VS = T + 4
    k(f"v_lshrrev_b32 v{VS}, 2, v{T+2}\nv_lshlrev_b32 v{VS}, 10, v{VS}")
    k(f"v_and_b32 v{T+3}, 3, v{T+2}\nv_lshl_add_u32 v{VS}, v{T+3}, 8, v{VS}\nv_lshl_add_u32 v{VS}, v{T+1}, 4, v{VS}")
    k(f"s_lshl_b32 s86, s{S_RB1}, 3\ns_lshl_b32 s87, s{S_WAVE}, 1\ns_add_u32 s86, s86, s87\ns_lshl_b32 s86, s86, 15\ns_lshl_b32 s87, s{S_HP}, 11\ns_add_u32 s86, s86, s87\ns_add_u32 s87, s86, 0x8000")
    k(f"s_lshl_b32 s88, s{S_RB1}, 2\ns_add_u32 s88, s88, s{S_WAVE}\ns_lshl_b32 s88, s88, {FS+4}\ns_add_u32 s88, s88, {F_H}\ns_lshl_b32 s89, s{S_HP}, {FS}\ns_add_u32 s89, s89, s88")
    k(f"v_lshlrev_b32 v{T+5}, 5, v{T+2}")
    k(f"s_lshl_b32 s92, s{S_WAVE}, 8\nv_lshlrev_b32 v{T+7}, 3, v{T+1}\nv_add_u32 v{T+7}, s92, v{T+7}")
    nw1 = k.label("notw0b")
    k(f"s_cmp_lg_u32 s{S_WAVE}, 0\ns_cbranch_scc1 {nw1}")
    k(f"v_and_b32 v{T+9}, 15, v{LANE}\ns_lshl_b32 s92, s{S_RB1}, 4\nv_add_u32 v{T+10}, s92, v{T+9}\nv_lshlrev_b32 v{T+9}, 4, v{T+9}\nv_add_u32 v{T+9}, s{S_HP}, v{T+9}")
    k(f"v_and_b32 v{T+11}, 16, v{LANE}\nv_cmp_eq_u32 vcc, 0, v{T+11}\ns_mov_b32 s92, {F_S0}\ns_nop 0")
    k(f"v_cndmask_b32 v{T+9}, v{T+9}, v{T+10}, vcc\nv_lshlrev_b32 v{T+9}, {FS}, v{T+9}")
    spin(k, [f"buffer_load_dword v{T+13}, v{T+9}, {sr(SRD_F,4)}, s92 offen sc1"], [T + 13], 0)
    k(f"s_lshl_b32 s94, s{S_HP}, 13\ns_add_u32 s95, s94, 4096")
    for p_ in range(16): k(f"buffer_load_dwordx2 {vr(G+2*p_,2)}, v{T+6}, {sr(SRD_B,4)}, s{94+p_//8} offen offset:{(p_%8)*512} sc1")
    k(f"s_lshl_b32 s90, s{S_RB1}, 10\ns_add_u32 s90, s90, {MP_RS}")
    k(f"buffer_load_dwordx4 {vr(A0+8,4)}, v{L16}, {sr(SRD_B,4)}, s90 offen sc1")
    k(f"v_cmp_lt_u32 vcc, 31, v{LANE}")
    k("s_waitcnt vmcnt(1)")
    for st in (8, 4, 2, 1):
        for j in range(st): k(f"v_pk_add_f32 {vr(G+2*j,2)}, {vr(G+2*j,2)}, {vr(G+2*(j+st),2)}")
    k(f"v_cvt_pk_bf16_f32 v{G+2}, v{G}, v{G+1}\nv_lshlrev_b32 v{G}, 16, v{G+2}\nv_and_b32 v{G+1}, 0xffff0000, v{G+2}")
    k(f"v_pk_add_f32 {vr(G+4,2)}, {vr(G,2)}, 1.0 op_sel_hi:[1,0]")
    k(f"v_cvt_pk_bf16_f32 v{G+2}, v{G+4}, v{G+5}\nv_lshlrev_b32 v{G+4}, 16, v{G+2}\nv_and_b32 v{G+5}, 0xffff0000, v{G+2}")
    k(f"v_cndmask_b32 v{G}, v{G}, v{G+4}, vcc\nv_cndmask_b32 v{G+1}, v{G+1}, v{G+5}, vcc")
    k(f"ds_write_b64 v{T+6}, {vr(G,2)} offset:{HL+4096}")
    k("s_waitcnt vmcnt(0)")
    k(f"ds_write_b128 v{L16}, {vr(A0+8,4)} offset:{HL+5120}")
    k("s_waitcnt lgkmcnt(0)")
    k(f"{nw1}:")
    g1.prefetch(k, opt.get("h_pre0", 0))
    srd(k, SRD_T, P_WS, S * D * 2, WS_H)
    k("s_barrier")
    k.stamp("s0 ready")
    for h in range(2): k(f"ds_read_b128 {vr(M+4*h,4)}, v{T+5} offset:{HL+4096+h*16}\nds_read_b128 {vr(M+8+4*h,4)}, v{T+5} offset:{HL+4096+256+h*16}")
    for i in range(4): k(f"ds_read_b64 {vr(RS+2*i,2)}, v{T+7} offset:{HL+5120+i*64}")
    k("s_waitcnt lgkmcnt(0)")
    for i in range(4):
        for j in range(4): k(f"v_pk_add_f32 {vr(XF+8*i+2*j,2)}, {vr(XF+8*i+2*j,2)}, {vr(RS+2*i,2)} op_sel_hi:[1,0]")
        for j in range(4): k(f"v_pk_mul_f32 {vr(XF+8*i+2*j,2)}, {vr(XF+8*i+2*j,2)}, {vr(RS+2*i,2)} op_sel:[0,1] op_sel_hi:[1,1]")
        for j in range(4): k(f"v_pk_fma_f32 {vr(XF+8*i+2*j,2)}, {vr(XF+8*i+2*j,2)}, {vr(M+8+2*j,2)}, {vr(M+2*j,2)}")
        for j in range(4): k(f"v_cvt_pk_bf16_f32 v{XR+4*i+j}, v{XF+8*i+2*j}, v{XF+8*i+2*j+1}")
        k(f"buffer_store_dwordx4 {vr(XR+4*i,4)}, v{VS}, {sr(SRD_T,4)}, s{86 + i//2} offen offset:{(i%2)*128} sc1")
    k.stamp("h computed")
    mk = len(k.L)
    g1.prefetch(k, opt.get("h_pre1a", 4 if split else 6))
    publish(k, 89, T, mk)
    k.stamp("h published")
    g1.prefetch(k, opt.get("h_pre1", 8 if split else 6))
    if not split:
        k.g3 = setup_gemm3_early(k, opt, LANE, 56)
        for i in range(8): k(f"global_load_ushort {ar(A_UT+32+i,1)}, v{V_C}, s[{P_C}:{P_C+1}] offset:{i*16}")
    k(f"v_and_b32 v252, 15, v{LANE}\nv_lshlrev_b32 v252, {FS}, v252\ns_mov_b32 s93, s88")
    staged_wait(k, g1, opt.get("g1_T", 4), 252, 93, 253, one_prod)
    k.stamp("h ready")
    return g1

def phase_front(k, opt, name):
    LANE, L16 = 104, 105
    T = 48
    V_W, V_C = 115, 109
    RS, XR, XT_, XF, G, M = 64, 128, 144, 0, 160, 32
    HL = 2 * 25344
    k(f"v_and_b32 v{LANE}, 63, v0")
    k(f"v_lshrrev_b32 v{T+1}, 3, v{LANE}\nv_and_b32 v{T+2}, 7, v{LANE}")
    k(f"v_lshlrev_b32 v{T+5}, 11, v{T+1}\nv_lshl_add_u32 v{T+5}, v{T+2}, 4, v{T+5}")
    k(f"s_lshl_b32 s91, s{S_RB1}, 18\ns_lshl_b32 s92, s{S_WAVE}, 16\ns_add_u32 s91, s91, s92\ns_lshl_b32 s92, s{S_HP}, 7\ns_add_u32 s91, s91, s92")
    k(f"v_lshlrev_b32 v{T+8}, 3, v{LANE}\nv_lshlrev_b32 v{T+6}, 3, v{T+1}")
    k(f"s_lshl_b32 s94, s{S_HP}, 13\ns_add_u32 s95, s94, 4096")
    k(f"s_lshl_b32 s90, s{S_RB1}, 10\ns_lshl_b32 s93, s{S_WAVE}, 8\ns_add_u32 s90, s90, s93\ns_add_u32 s90, s90, {MP_RS}")
    k("s_waitcnt lgkmcnt(0)")
    srd(k, SRD_B, P_WS, MP_BYTES, WS_MODP)
    srd(k, SRD_A, P_X, S * D * 2)
    for p_ in range(16): k(f"buffer_load_dwordx2 {vr(G+2*p_,2)}, v{T+8}, {sr(SRD_B,4)}, s{94+p_//8} offen offset:{(p_%8)*512}")
    for i in range(4): k(f"buffer_load_dwordx2 {vr(RS+2*i,2)}, v{T+6}, {sr(SRD_B,4)}, s90 offen offset:{i*64}")
    for i in range(4):
        k(f"buffer_load_dwordx4 {vr(XT_+4*i,4)}, v{T+5}, {sr(SRD_A,4)}, s91 offen")
        if i < 3: k("s_add_u32 s91, s91, 16384")
    k.stamp("loads issued")
    def touch(ptr, per, vt, off=0):
        k(f"s_lshl_b32 s80, s2, 2\ns_add_u32 s80, s80, s{S_WAVE}\ns_mul_i32 s80, s80, {per*128}")
        if off: k(f"s_add_u32 s80, s80, {off}")
        k(f"v_min_u32 v{vt}, {per-1}, v{LANE}\nv_lshlrev_b32 v{vt}, 7, v{vt}\nv_add_u32 v{vt}, s80, v{vt}")
        k(f"global_load_dword a232, v{vt}, s[{ptr}:{ptr+1}]")
    nt0 = 0
    if opt.get("m_touch", 0) == 1: touch(P_WQKV, 48, 254); nt0 = 1
    g1 = setup_gemm1(k, opt)
    srd(k, SRD_W, P_WQKV, D * 3 * D * 2)
    n0 = opt.get("h_pre0", 6)
    g1.prefetch(k, n0)
    n0 += nt0
    srd(k, SRD_F, P_WS, FLAG_BYTES, WS_FLAG)
    srd(k, SRD_T, P_WS, S * D * 2, WS_H)
    VS = T + 4
    k(f"v_lshrrev_b32 v{VS}, 2, v{T+2}\nv_lshlrev_b32 v{VS}, 10, v{VS}")
    k(f"v_and_b32 v{T+3}, 3, v{T+2}\nv_lshl_add_u32 v{VS}, v{T+3}, 8, v{VS}\nv_lshl_add_u32 v{VS}, v{T+1}, 4, v{VS}")
    k(f"s_lshl_b32 s86, s{S_RB1}, 3\ns_lshl_b32 s87, s{S_WAVE}, 1\ns_add_u32 s86, s86, s87\ns_lshl_b32 s86, s86, 15\ns_lshl_b32 s87, s{S_HP}, 11\ns_add_u32 s86, s86, s87\ns_add_u32 s87, s86, 0x8000")
    k(f"s_lshl_b32 s88, s{S_WAVE}, 9\nv_add_u32 v{T+8}, s88, v{T+8}\nv_lshlrev_b32 v{T+5}, 5, v{T+2}\nv_add_u32 v{T+5}, s88, v{T+5}")
    k(f"s_lshl_b32 s88, s{S_RB1}, 2\ns_add_u32 s88, s88, s{S_WAVE}\ns_lshl_b32 s88, s88, {FS+4}\ns_add_u32 s88, s88, {F_H}\ns_lshl_b32 s89, s{S_HP}, {FS}\ns_add_u32 s89, s89, s88")
    k(f"v_cmp_lt_u32 vcc, 31, v{LANE}")
    k(f"s_waitcnt vmcnt({8 + n0})")
    for st in (8, 4, 2, 1):
        for j in range(st): k(f"v_pk_add_f32 {vr(G+2*j,2)}, {vr(G+2*j,2)}, {vr(G+2*(j+st),2)}")
    k(f"v_cvt_pk_bf16_f32 v{G+2}, v{G}, v{G+1}\nv_lshlrev_b32 v{G}, 16, v{G+2}\nv_and_b32 v{G+1}, 0xffff0000, v{G+2}")
    k(f"v_pk_add_f32 {vr(G+4,2)}, {vr(G,2)}, 1.0 op_sel_hi:[1,0]")
    k(f"v_cvt_pk_bf16_f32 v{G+2}, v{G+4}, v{G+5}\nv_lshlrev_b32 v{G+4}, 16, v{G+2}\nv_and_b32 v{G+5}, 0xffff0000, v{G+2}")
    k(f"v_cndmask_b32 v{G}, v{G}, v{G+4}, vcc\nv_cndmask_b32 v{G+1}, v{G+1}, v{G+5}, vcc")
    k(f"ds_write_b64 v{T+8}, {vr(G,2)} offset:{HL}")
    k("s_waitcnt lgkmcnt(0)")
    for h in range(2): k(f"ds_read_b128 {vr(M+4*h,4)}, v{T+5} offset:{HL+h*16}\nds_read_b128 {vr(M+8+4*h,4)}, v{T+5} offset:{HL+256+h*16}")
    for i in range(4):
        k(f"s_waitcnt vmcnt({3 - i + n0})")
        for d in range(4): k(f"v_lshlrev_b32 v{XF+8*i+2*d}, 16, v{XT_+4*i+d}\nv_and_b32 v{XF+8*i+2*d+1}, 0xffff0000, v{XT_+4*i+d}")
        for j in range(4): k(f"v_pk_add_f32 {vr(XF+8*i+2*j,2)}, {vr(XF+8*i+2*j,2)}, {vr(RS+2*i,2)} op_sel_hi:[1,0]")
        for j in range(4): k(f"v_pk_mul_f32 {vr(XF+8*i+2*j,2)}, {vr(XF+8*i+2*j,2)}, {vr(RS+2*i,2)} op_sel:[0,1] op_sel_hi:[1,1]")
    k("s_waitcnt lgkmcnt(0)")
    for i in range(4):
        for j in range(4): k(f"v_pk_fma_f32 {vr(XF+8*i+2*j,2)}, {vr(XF+8*i+2*j,2)}, {vr(M+8+2*j,2)}, {vr(M+2*j,2)}")
        for j in range(4): k(f"v_cvt_pk_bf16_f32 v{XR+4*i+j}, v{XF+8*i+2*j}, v{XF+8*i+2*j+1}")
        k(f"buffer_store_dwordx4 {vr(XR+4*i,4)}, v{VS}, {sr(SRD_T,4)}, s{86 + i//2} offen offset:{(i%2)*128} sc1")
    k.stamp("h computed")
    code_prefetch_setup(k, name)
    srd(k, SRD_D, P_WMOD, D * 6 * D * 2)
    k(f"v_mul_u32_u24 v{V_W}, 12288, v{T+1}\nv_lshl_add_u32 v{V_W}, v{T+2}, 4, v{V_W}")
    k(f"s_lshl_b32 s84, s{S_RB1}, 6\nv_add_u32 v{V_C}, s84, v{T+1}\nv_lshlrev_b32 v{V_C}, 1, v{V_C}")
    k(f"s_mul_i32 s86, s84, 12288\ns_lshl_b32 s87, s{S_HP}, 7\ns_add_u32 s86, s86, s87")
    k(f"s_lshl_b32 s94, s{S_WAVE}, 11\ns_add_u32 s{S_MB}, s86, s94\ns_add_u32 s{S_MB}, s{S_MB}, 4096")
    k(f"s_lshl_b32 s94, s{S_WAVE}, 16\ns_lshl_b32 s95, s{S_HP}, 12\ns_add_u32 s94, s94, s95\ns_lshl_b32 s95, s{S_RB1}, 8\ns_add_u32 s94, s94, s95\ns_add_u32 s{S_MO}, s94, {MP_B}")
    k.g3 = setup_gemm3_early(k, opt, LANE, 56)
    publish(k, 89, T)
    k.stamp("h published")
    if opt.get("m_touch", 0) == 2: touch(P_WQKV, 48, 254)
    k("s_barrier")
    g1.prefetch(k, opt.get("h_pre1", 12))
    for i in range(8): k(f"global_load_ushort {ar(A_UT+32+i,1)}, v{V_C}, s[{P_C}:{P_C+1}] offset:{i*16}")
    k(f"v_and_b32 v252, 15, v{LANE}\nv_lshlrev_b32 v252, {FS}, v252\ns_mov_b32 s93, s88")
    staged_wait(k, g1, opt.get("g1_T", 4), 252, 93, 253, one_prod)
    k.stamp("h ready")
    return g1

def setup_gemm24(k, which, opt, base):
    c = Sched(); common_gemm(c)
    K = 1024 if which == 2 else 3584
    NS, R = 4, opt.get(f"g{which}_R", 4)
    STAGE = 8448
    if isinstance(base, tuple): V_RD, V_DMA, V_TOK, LANE, L16, VT = base
    else:
        V_RD, V_DMA, V_TOK, LANE, L16, VT = base, base + 1, base + 2, base + 4, base + 5, base + 6
        lane_id(k, LANE)
        k(f"v_lshlrev_b32 v{L16}, 4, v{LANE}")
    c.LANE, c.L16 = LANE, L16
    hs = c.hs = opt.get("hsplit", 1) and opt.get("split", 1)
    order(c, k, opt, "g2", ["win", [8, 8], 0] if hs else ["win", [1, 1, 2, 4, 8], 1])
    if hs:
        c.w_off = lambda sd, kt: [T(x) for x in c.pos_txt(sd, kt)] + [T(f"s_mul_i32 s{sd}, s{sd}, {128*2048}")] + ([T(f"s_add_u32 s{sd}, s{sd}, {(32 - 8*128)*2048}")] if kt >= 8 else [])
        c.t_off = lambda sd, kt: [T(x) for x in c.pos_txt(sd, kt)] + [T(f"s_lshl_b32 s{sd}, s{sd}, 12")] + ([T(f"s_add_u32 s{sd}, s{sd}, {1024 - 8*4096}")] if kt >= 8 else [])
        c.sub_stride = 2048
    k(f"s_lshr_b32 s80, s{S_WAVE}, 1\ns_and_b32 s81, s{S_WAVE}, 1")
    k(f"s_lshl_b32 s82, s80, {6 if hs else 5}\ns_lshl_b32 s83, s81, 1\ns_add_u32 s82, s82, s83\ns_lshl_b32 s82, s82, 11")
    k(f"s_lshl_b32 s83, s{S_NT}, 7\ns_add_u32 s82, s82, s83")
    k(f"v_lshrrev_b32 v{VT}, 3, v{LANE}\nv_lshlrev_b32 v{VT}, 13, v{VT}")
    k(f"v_and_b32 v{VT+1}, 7, v{LANE}\nv_lshl_add_u32 v{VT}, v{VT+1}, 4, v{VT}")
    k(f"v_add_u32 v{V_DMA}, s82, v{VT}")
    k(f"v_bfe_u32 v{VT}, v{LANE}, 2, 2\nv_mul_u32_u24 v{VT}, 1056, v{VT}")
    k(f"v_lshrrev_b32 v{VT+1}, 4, v{LANE}\nv_lshl_add_u32 v{VT}, v{VT+1}, 7, v{VT}")
    k(f"v_and_b32 v{VT+1}, 3, v{LANE}\nv_lshl_add_u32 v{V_RD}, v{VT+1}, 3, v{VT}")
    k(f"v_add_u32 v{V_RD}, {L_R2}, v{V_RD}")
    k(f"s_lshl_b32 s82, s{S_RB2}, 3\ns_lshl_b32 s83, s{S_WAVE}, 1\ns_add_u32 s82, s82, s83\ns_mul_i32 s82, s82, {K//32*1024}")
    k(f"v_add_u32 v{V_TOK}, s82, v{L16}\nv_add_u32 v{V_TOK+1}, {K//32*1024}, v{V_TOK}")
    k(f"s_mul_i32 s{S_WB}, s80, 4224\ns_mul_i32 s82, s81, 2112\ns_add_u32 s{S_WB}, s{S_WB}, s82\ns_add_u32 s{S_WB}, s{S_WB}, {L_R2}")
    srd(k, SRD_W, P_WO if which == 2 else P_W2, K * D * 2)
    c.NB, c.TB, c.KS, c.SPK, c.KT, c.NS, c.R = 4, 2, 2, 1, K // 64, NS, R
    c.acc = lambda b, t: vr((b * 2 + t) * 4, 4)
    c.tf = lambda slot, ks, t: 64 + ((slot * 2 + ks) * 2 + t) * 4
    c.rd = lambda sl, b, sub, r: (V_RD, sl * STAGE + sub * 4224 + r * 512 + b * 32)
    c.slot_addr = lambda sl: sl * STAGE
    c.dma = [(V_DMA, 0, 0), (V_DMA, 1056, 2048)]
    c.v_tok = [V_TOK, V_TOK + 1]
    c.w_stride = 64 * 2048
    c.drop = opt.get(f"g{which}_drop", ())
    c.pro_units, c.ramp_rate, c.read_margin = opt.get(f"g{which}_pro", 12), opt.get(f"g{which}_ramp", 6), 4
    std_sched(c)
    return c

S_G80, S_G192 = 6, 7
def setup_gemm4p(k, opt, base):
    c = Sched(); common_gemm(c)
    HS = 8448; STAGE = 2 * HS
    L = 12; KT = 28; MAIN = KT - L
    V_RD, V_DE, V_DK, V_TOK, LANE, L16, VT = base, base + 2, base + 3, base + 4, base + 6, base + 7, base + 8
    c.LANE, c.L16, c.V_DE, c.V_DK, c.V_TOK = LANE, L16, V_DE, V_DK, V_TOK
    lane_id(k, LANE)
    k(f"v_lshlrev_b32 v{L16}, 4, v{LANE}")
    c.KT = KT
    order(c, k, opt, "g4", ["win", [4, 4, 8, 8, 4], 0])
    k(f"s_lshr_b32 s80, s{S_WAVE}, 1\ns_and_b32 s81, s{S_WAVE}, 1")
    k(f"s_mul_i32 s{S_G80}, s80, {80*2048}\ns_mul_i32 s{S_G192}, s80, {192*2048}")
    k("s_lshl_b32 s82, s80, 5\ns_lshl_b32 s83, s81, 1\ns_add_u32 s82, s82, s83")
    k(f"s_and_b32 s{S_TMP}, s{S_NT}, 1\ns_mul_i32 s83, s{S_TMP}, 1792\ns_add_u32 s82, s82, s83\ns_lshl_b32 s82, s82, 11")
    k(f"v_lshrrev_b32 v{VT}, 3, v{LANE}\nv_lshlrev_b32 v{VT}, 13, v{VT}")
    k(f"v_and_b32 v{VT+1}, 7, v{LANE}\nv_lshl_add_u32 v{VT}, v{VT+1}, 4, v{VT}")
    k(f"v_add_u32 v{VT}, s82, v{VT}")
    k(f"s_lshl_b32 s83, s{S_NT}, 7\nv_add_u32 v{V_DK}, s83, v{VT}\nv_xor_b32 v{V_DE}, 128, v{V_DK}")
    k(f"v_bfe_u32 v{VT}, v{LANE}, 2, 2\nv_mul_u32_u24 v{VT}, 1056, v{VT}")
    k(f"v_lshrrev_b32 v{VT+1}, 4, v{LANE}\nv_lshl_add_u32 v{VT}, v{VT+1}, 7, v{VT}")
    k(f"v_and_b32 v{VT+1}, 3, v{LANE}\nv_lshl_add_u32 v{V_RD+1}, v{VT+1}, 3, v{VT}")
    k(f"v_add_u32 v{V_RD}, {L_R2}, v{V_RD+1}")
    k(f"s_lshl_b32 s82, s{S_RB2}, 3\ns_lshl_b32 s83, s{S_WAVE}, 1\ns_add_u32 s82, s82, s83\ns_mul_i32 s82, s82, {112*1024}")
    k(f"s_mul_i32 s83, s{S_TMP}, {56*1024}\ns_add_u32 s82, s82, s83")
    k(f"v_add_u32 v{V_TOK}, s82, v{L16}\nv_add_u32 v{V_TOK+1}, {112*1024}, v{V_TOK}")
    k(f"s_mul_i32 s{S_WB}, s80, 4224\ns_mul_i32 s82, s81, 2112\ns_add_u32 s{S_WB}, s{S_WB}, s82")
    srd(k, SRD_W, P_W2, F * D * 2)
    c.drop = opt.get("g4_drop", ())
    V2E, V2K, V2T = 64, 65, 66
    c.V2 = (V2E, V2K, V2T)
    NS4 = opt.get("g4_NS", 8)
    slot_addr = [L_R2, L_R2 + STAGE] + [1024 + i * STAGE for i in range(6)]
    c.V_RD3 = 68; c.V_RD = V_RD
    def rd(sl, half, b, sub, r):
        off = half * HS + sub * 4224 + r * 512 + b * 32
        if sl < 2: return (V_RD, sl * STAGE + off)
        if sl < 5: return (V_RD + 1, slot_addr[sl] + off)
        return (c.V_RD3, slot_addr[sl] - slot_addr[5] + off)
    c.rd3_base = slot_addr[5]
    NT_ = 2 * L
    tf = lambda kt, sub, t: 64 + (((kt * 2 + sub) % NT_) * 2 + t) * 4
    acc = lambda b, t: vr((b * 2 + t) * 4, 4)
    c.wf = lambda buf, j: (buf * 8 + j) * 4
    typ = lambda kt: "A" if kt < 16 else ("B1" if kt < 24 else "B2")
    if opt.get("g4_fast", 1):
        base_pos = c.pos_txt
        def pos2(sd, kt):
            o = base_pos(sd, kt)
            if kt >= 16: return o
            t_ = S_PTMP
            o += [f"s_and_b32 s{t_}, s{sd}, 1", f"s_and_b32 s{sd}, s{sd}, 6", f"s_lshl_b32 s{sd}, s{sd}, 1"]
            o += [f"s_mul_i32 s{t_}, s{t_}, 3"] if kt < 8 else [f"s_add_u32 s{t_}, s{t_}, 1"]
            o += [f"s_add_u32 s{sd}, s{sd}, s{t_}"]
            return o
        c.pos_txt = pos2
    def w_off(sd, kt):
        o = [T(x) for x in c.pos_txt(sd, kt)]
        if typ(kt) == "A": o.append(T(f"s_mul_i32 s{sd}, s{sd}, {112*2048}"))
        elif typ(kt) == "B1": o += [T(f"s_mul_i32 s{sd}, s{sd}, {224*2048}"), T(f"s_add_u32 s{sd}, s{sd}, {(64 - 16*224)*2048}"), T(f"s_add_u32 s{sd}, s{sd}, s{S_G80}")]
        else: o += [T(f"s_mul_i32 s{sd}, s{sd}, {448*2048}"), T(f"s_add_u32 s{sd}, s{sd}, {(96 - 24*448)*2048}"), T(f"s_add_u32 s{sd}, s{sd}, s{S_G192}")]
        return o
    halves = [[("E", kt), ("K", kt)] for kt in range(MAIN)]
    halves += [[("E", MAIN + 2 * j), ("E", MAIN + 2 * j + 1)] for j in range(L // 2)]
    halves += [[("K", MAIN + 2 * j), ("K", MAIN + 2 * j + 1)] for j in range(L // 2)]
    cur = None; flip = 0
    for st, hv in enumerate(halves):
        us = []
        for h, (kind, kt) in enumerate(hv):
            pre = []
            if cur != kt:
                flip ^= 1; cur = kt; pre = w_off(c.s_kw + flip, kt)
            vo = (V2E if kind == 'E' else V2K) if typ(kt) == "B2" else (V_DE if kind == 'E' else V_DK)
            for i, goff in enumerate((0, 2048)):
                us.append((pre if i == 0 else []) + [T(f"s_add_u32 m0, s{S_WB}, {slot_addr[st % NS4] + h * HS + i * 1056 - goff}"),
                          VM(f"buffer_load_dwordx4 v{vo}, {sr(SRD_W,4)}, s{c.s_kw + flip} offen" + (f" offset:{goff}" if goff else "") + " lds", ("dma", st))])
        c.stage_units[st] = us; c.stage_slot[st] = st % NS4
        for j in range(2):
            frags = []; toks = []
            parts = [(0, j), (1, j)] if st < MAIN else [(j, 0), (j, 1)]
            for h, sub in parts:
                kind, kt = hv[h]
                if (kt, sub) not in toks: toks.append((kt, sub))
                for b in range(4):
                    va, o0 = rd(st % NS4, h, b, sub, 0); _, o1 = rd(st % NS4, h, b, sub, 1)
                    frags.append((va, o0, o1, [(acc(b + (0 if kind == 'E' else 4), t), tf(kt, sub, t)) for t in range(2)]))
            c.steps.append(dict(frags=frags, stages=[st], toks=toks))
    for kt in range(KT):
        sd = c.s_kt + kt % 2
        for sub in range(2):
            us = []
            for t in range(2):
                g = []
                if sub == 0 and t == 0:
                    g = [T(x) for x in c.pos_txt(sd, kt)]
                    if typ(kt) == "A": g.append(T(f"s_mul_i32 s{sd}, s{sd}, 3584"))
                    elif typ(kt) == "B1": g += [T(f"s_mul_i32 s{sd}, s{sd}, 7168"), T(f"s_add_u32 s{sd}, s{sd}, {2048 - 16*7168}")]
                    else: g += [T(f"s_mul_i32 s{sd}, s{sd}, 14336"), T(f"s_add_u32 s{sd}, s{sd}, {3072 - 24*14336}")]
                key = ("tok", (kt, sub))
                if typ(kt) == "B2":
                    if sub == 1 and t == 0: g.append(T(f"s_add_u32 s{sd}, s{sd}, 7168"))
                    g.append(VM(f"buffer_load_dwordx2 {ar(tf(kt, sub, t),2)}, v{V2T+t}, {sr(SRD_T,4)}, s{sd} offen sc1", key))
                    g.append(VM(f"buffer_load_dwordx2 {ar(tf(kt, sub, t)+2,2)}, v{V2T+t}, {sr(SRD_T,4)}, s{sd} offen offset:3584 sc1", key))
                else:
                    g.append(VM(f"buffer_load_dwordx4 {ar(tf(kt, sub, t),4)}, v{V_TOK+t}, {sr(SRD_T,4)}, s{sd} offen offset:{sub*(1024 if typ(kt) == 'A' else 3584)} sc1", key))
                us.append(g)
            c.tok_units[(kt, sub)] = us; c.tok_slot[(kt, sub)] = (kt * 2 + sub) % NT_
    c.pro_units, c.ramp_rate, c.read_margin, c.lookahead = opt.get("g4_pro", 12), opt.get("g4_ramp", 5), 4, opt.get("g4_la", 12)
    c.MAIN, c.L = MAIN, L
    return c

def phase_gemm4p(k, c, opt):
    LANE, L16 = c.LANE, c.L16
    VT = 72
    srd(k, SRD_T, P_WS, S * F * 2, WS_HH)
    srd(k, SRD_A, P_OUT, S * D * 2)
    srd(k, SRD_B, P_WS, 8 << 20, WS_P4)
    V_G, V_GA, V_XA, V_X, IMP, VF = 96, 76, 77, 80, 128, 78
    for j in range(16): k(f"v_accvgpr_read_b32 v{V_X+j}, a{A_X1+j}")
    k(f"v_and_b32 v{VT}, 15, v{LANE}\nv_lshlrev_b32 v{VT}, {FS}, v{VT}")
    k(f"s_lshl_b32 s84, s{S_RB2}, 1\ns_lshr_b32 s85, s{S_WAVE}, 1\ns_add_u32 s84, s84, s85\ns_lshl_b32 s84, s84, {FS+5}\ns_add_u32 s84, s84, {F_HH}")
    k(f"s_and_b32 s85, s{S_NT}, 1\ns_lshl_b32 s85, s85, {FS+4}\ns_add_u32 s84, s84, s85")
    k(f"v_mov_b32 v252, v{VT}")
    c.tile_of = lambda key: key[0]
    k(f"s_add_u32 s85, s84, {F_HB - F_HH}")
    staged_wait(k, c, opt.get("g4_T", 8), 252, 84, 253, one_prod, pub=((93 if c.binl else 94), 70))
    add_gate(k, c, 16, f"buffer_load_dword v253, v252, {sr(SRD_F,4)}, s85 offen sc1", 253)
    k.stamp("hh ready")
    p = Txt()
    p(f"v_lshrrev_b32 v{VT}, 4, v{LANE}\nv_lshlrev_b32 v{V_GA}, 4, v{VT}\nv_add_u32 v{V_GA}, {L_MV}, v{V_GA}")
    p(f"v_and_b32 v{VT+1}, 15, v{LANE}\nv_lshlrev_b32 v{VT+1}, 11, v{VT+1}")
    p(f"v_and_b32 v{VT+2}, 1, v{VT}\nv_lshl_add_u32 v{VT+1}, v{VT+2}, 5, v{VT+1}")
    p(f"v_lshrrev_b32 v{VT+2}, 1, v{VT}\nv_lshl_add_u32 v{V_XA}, v{VT+2}, 4, v{VT+1}")
    p(f"s_lshl_b32 s86, s{S_RB2}, 3\ns_lshl_b32 s87, s{S_WAVE}, 1\ns_add_u32 s86, s86, s87\ns_lshl_b32 s86, s86, 15\ns_lshl_b32 s87, s{S_NT}, 7\ns_add_u32 s86, s86, s87\ns_add_u32 s87, s86, 32768")
    p(f"s_lshl_b32 s88, s{S_RB2}, 4\ns_add_u32 s88, s88, s{S_NT}\ns_lshl_b32 s88, s88, 2\ns_add_u32 s88, s88, s{S_WAVE}")
    p("s_xor_b32 s89, s88, 4")
    p(f"s_lshl_b32 s90, s88, 13\ns_add_u32 s91, s90, 4096\ns_lshl_b32 s92, s89, 13\ns_add_u32 s93, s92, 4096")
    p(f"s_lshl_b32 s88, s88, {FS}\ns_add_u32 s88, s88, {F_P4}\ns_lshl_b32 s89, s89, {FS}\ns_add_u32 s89, s89, {F_P4}")
    V2E, V2K, V2T = c.V2
    p(f"v_add_u32 v{c.V_RD3}, {c.rd3_base}, v{c.V_RD+1}")
    p(f"v_lshrrev_b32 v{VT}, 5, v{LANE}\nv_mul_u32_u24 v{VT}, {96*2048}, v{VT}\nv_add_u32 v{V2E}, v{c.V_DE}, v{VT}\nv_add_u32 v{V2K}, v{c.V_DK}, v{VT}")
    p(f"v_lshrrev_b32 v{VT}, 1, v{L16}\nv_sub_u32 v{V2T}, v{c.V_TOK}, v{VT}\nv_sub_u32 v{V2T+1}, v{c.V_TOK+1}, v{VT}")
    p(f"v_mov_b32 v{VT}, 1\nv_mov_b32 v{VT+1}, 0")
    c.pre_loop_txt = p.L
    N = len(c.steps); p2 = N - c.L
    if c.binl:
        nbs = opt.get("binl_steps", 10); per = -(-len(c.binl) // nbs)
        c.gate_min = {16: nbs + 2 + opt.get("binl_gap", 8)}
        items = [VM(x, ("hb", 0)) if is_vm(x) else T(x) for x in c.binl]
        c.step_extra = lambda st: items[st * per:(st + 1) * per]
        c.late.setdefault(nbs + 2, []).extend([WVM([("hb", 0)]), f"buffer_store_dword v{VT}, v{VT+1}, {sr(SRD_F,4)}, s94 offen sc1"])
    for st_ in opt.get("cp4", []): c.late.setdefault(st_, []).extend(code_prefetch_txt(k.name, L16, 254, 80, junk="v240"))
    ex = [VM(f"buffer_store_dwordx4 {vr(4*j,4)}, v{L16}, {sr(SRD_B,4)}, s{90 + j//4} offen offset:{(j%4)*1024} sc1", ("exp", 0)) for j in range(8)]
    ne_ = opt.get("g4_ne", 2)
    for j in range(ne_): c.late[p2 + 1 + j] = ex[j * 8 // ne_:(j + 1) * 8 // ne_]
    c.late[p2 + opt.get("g4_fs", 6)] = [WVM([("exp", 0)]), f"buffer_store_dword v{VT}, v{VT+1}, {sr(SRD_F,4)}, s88 offen sc1"]
    c.late[N - 3] = [VM(f"buffer_load_dword v{VF}, v{VT+1}, {sr(SRD_F,4)}, s89 offen sc1", ("pf", 0))]
    c.last_reads = [f"ds_read_b128 {vr(V_G+4*b,4)}, v{V_GA} offset:{768+b*64}" for b in range(4)]
    m = Txt(); m.label = k.label
    okl = k.label("pok")
    m(f"v_cmp_eq_u32 vcc, 0, v{VF}\ns_cmp_eq_u64 vcc, 0\ns_cbranch_scc1 {okl}")
    spin(m, [f"buffer_load_dword v{VF}, v{VT+1}, {sr(SRD_F,4)}, s89 offen sc1"], [VF], 0)
    m(f"{okl}:")
    c.late[N - 1] = [WVM([("pf", 0)]), T("\n".join(m.L))] + [f"buffer_load_dwordx4 {vr(IMP+4*j,4)}, v{L16}, {sr(SRD_B,4)}, s{92 + j//4} offen offset:{(j%4)*1024} sc1" for j in range(8)]
    c.run(k)
    k.stamp("g4 loop done")
    A = lambda b, t: 32 + (b * 2 + t) * 4
    XT = 112
    XF = 160
    for j in range(16): k(f"v_lshlrev_b32 v{XF+2*j}, 16, v{V_X+j}\nv_and_b32 v{XF+2*j+1}, 0xffff0000, v{V_X+j}")
    k("s_waitcnt vmcnt(0) lgkmcnt(0)")
    for t in range(2):
        for b in range(4):
            for h in range(2): k(f"v_pk_add_f32 {vr(A(b,t)+2*h,2)}, {vr(A(b,t)+2*h,2)}, {vr(IMP+(b*2+t)*4+2*h,2)}")
            for h in range(2): k(f"v_pk_fma_f32 {vr(A(b,t)+2*h,2)}, {vr(A(b,t)+2*h,2)}, {vr(V_G+4*b+2*h,2)}, {vr(XF+(t*4+b)*4+2*h,2)}")
        PK = XT + t * 8
        for b in range(4): k(f"v_cvt_pk_bf16_f32 v{PK+2*b}, v{A(b,t)}, v{A(b,t)+1}\nv_cvt_pk_bf16_f32 v{PK+2*b+1}, v{A(b,t)+2}, v{A(b,t)+3}")
        k("s_nop 1")
        for s_ in range(2): k(f"v_permlane16_swap_b32 v{PK+4*s_}, v{PK+4*s_+2}\nv_permlane16_swap_b32 v{PK+4*s_+1}, v{PK+4*s_+3}")
        for s_ in range(2): k(f"buffer_store_dwordx4 {vr(PK+4*s_,4)}, v{V_XA}, {sr(SRD_A,4)}, s{86+t} offen offset:{s_*64}")

def phase_gemm1(k, c, opt):
    LANE, L16, VT = c.LANE, c.L16, c.VT
    PHK, VV, SH, UTX = 0, 34816, 114688, 126976
    A_PH = 160
    p = Txt()
    srd(p, SRD_A, P_WPHI, H * 2048)
    srd(p, SRD_B, P_WS, 2 << 20, WS_KVP)
    srd(p, SRD_C, P_WS, 128 << 10, WS_ZP)
    A_PW, A_VW, A_PR, A_VR, A_WR = 110, 111, 112, 113, 114
    p(f"s_lshr_b32 s80, s{S_WAVE}, 1\ns_and_b32 s81, s{S_WAVE}, 1")
    p(f"v_and_b32 v{VT}, 15, v{LANE}\ns_lshl_b32 s82, s{S_WAVE}, 5\nv_add_u32 v{VT}, s82, v{VT}")
    p(f"v_lshrrev_b32 v{VT+1}, 4, v{LANE}\nv_lshlrev_b32 v{VT+1}, 3, v{VT+1}")
    p(f"v_mul_u32_u24 v{A_PW}, 136, v{VT}\nv_add_u32 v{A_PW}, v{A_PW}, v{VT+1}")
    p(f"v_mul_u32_u24 v{A_VW}, 72, v{VT}\nv_add_u32 v{A_VW}, v{A_VW}, v{VT+1}")
    p(f"v_lshrrev_b32 v{VT}, 2, v{LANE}\nv_and_b32 v{VT+1}, 3, v{LANE}\nv_lshlrev_b32 v{VT+1}, 3, v{VT+1}")
    p(f"s_mul_i32 s82, s80, 17408\ns_lshl_b32 s83, s81, 6\ns_add_u32 s82, s82, s83")
    p(f"v_mul_u32_u24 v{A_PR}, 136, v{VT}\nv_add_u32 v{A_PR}, v{A_PR}, v{VT+1}\nv_add_u32 v{A_PR}, s82, v{A_PR}")
    p(f"s_mul_i32 s82, s80, 9216")
    p(f"v_mul_u32_u24 v{A_VR}, 72, v{VT}\nv_add_u32 v{A_VR}, v{A_VR}, v{VT+1}\nv_add_u32 v{A_VR}, s82, v{A_VR}")
    p(f"v_lshl_add_u32 v{A_WR}, v{VT}, 6, v{VT+1}\nv_add_u32 v{A_WR}, {L_WPH}, v{A_WR}")
    ONES, SEL = 116, 120
    for j in range(4): p(f"v_mov_b32 v{ONES+j}, 0x3f803f80")
    p(f"v_bfe_u32 v{VT}, v{LANE}, 2, 2\nv_lshrrev_b32 v{VT+1}, 4, v{LANE}")
    p(f"v_cmp_eq_u32 vcc, v{VT}, v{VT+1}")
    p(f"v_and_b32 v{VT}, 1, v{LANE}\nv_lshlrev_b32 v{VT}, 4, v{VT}\nv_mov_b32 v{VT+1}, 0x3f80\nv_lshlrev_b32 v{VT+1}, v{VT}, v{VT+1}")
    p(f"v_cndmask_b32 v{VT+1}, 0, v{VT+1}, vcc")
    p(f"v_and_b32 v{VT}, 2, v{LANE}\nv_cmp_eq_u32 vcc, 0, v{VT}")
    for j in (0, 1, 4, 5): p(f"v_mov_b32 v{SEL+j}, 0")
    p(f"v_cndmask_b32 v{SEL+2}, 0, v{VT+1}, vcc\nv_cndmask_b32 v{SEL+3}, v{VT+1}, 0, vcc")
    p(f"s_mov_b32 s94, {LOG2E!r}\ns_mov_b32 s95, {LOG2E!r}")
    p(f"s_lshl_b32 s84, s{S_HP}, 12\ns_lshl_b32 s85, s{S_WAVE}, 10\ns_add_u32 s84, s84, s85\ns_add_u32 s85, s85, {L_WPH}")
    c.pre_loop_txt = p.L
    c.late = {4: ["s_mov_b32 m0, s85", f"buffer_load_dwordx4 v{L16}, {sr(SRD_A,4)}, s84 offen lds"]}
    if opt.get("cpf", 1): c.late[22] = code_prefetch_txt(k.name, L16, 254, 80)
    ml = modb_loads(S_MB, 115, 109)
    ms = opt.get("modb_steps", [16] * 8)
    if opt.get("modb_front", 0):
        lb = k.label("skw0")
        c.late.setdefault(ms[0], []).append(T("\n".join([f"s_cmp_lg_u32 s{S_WAVE}, 0", f"s_cbranch_scc1 {lb}"] + [x for g in ml for x in g] + [f"{lb}:"])))
        ml = []
    else:
        for st_, g in zip(ms, ml): c.late.setdefault(st_, []).extend(g)
        ml = ml[len(ms):]
    c.last_reads = [f"ds_read_b64_tr_b16 {ar(A_PH+(hh*2+fb)*4+2*r,2)}, v{A_WR} offset:{hh*2048+r*1024+fb*32}" for hh in range(2) for fb in range(2) for r in range(2)]
    c.run(k)
    k.stamp("g1 loop done")
    A = lambda b, t: (b * 2 + t) * 4
    BF, P1, P2, MX, MN, EK = 126, 142, 174, 206, 214, 222
    groups = [(hh, t) for hh in range(2) for t in range(2)]
    def fm_part1(seg):
        for g, (hh, t) in enumerate(groups):
            for db in range(2):
                a = A(seg * 4 + hh * 2 + db, t)
                k(f"v_cvt_pk_bf16_f32 v{BF+g*4+db*2}, v{a}, v{a+1}\nv_cvt_pk_bf16_f32 v{BF+g*4+db*2+1}, v{a+2}, v{a+3}")
        k("s_nop 1")
        for g, (hh, t) in enumerate(groups):
            for fb in range(2):
                k(f"{MF} {vr(P1+g*8+fb*4,4)}, {ar(A_PH+(hh*2+fb)*4,4)}, {vr(BF+g*4,4)}, 0")
    def fm_part2():
        for op3, op2, M in (("v_max3_f32", "v_max_f32", MX), ("v_min3_f32", "v_min_f32", MN)):
            for g in range(4):
                b = P1 + g * 8
                k(f"{op3} v{M+2*g}, v{b}, v{b+1}, v{b+2}\n{op3} v{M+2*g}, v{M+2*g}, v{b+3}, v{b+4}\n{op3} v{M+2*g}, v{M+2*g}, v{b+5}, v{b+6}\n{op2} v{M+2*g}, v{M+2*g}, v{b+7}")
            treduce4(k, op2, [M + 2 * g for g in range(4)])
        for g in range(4):
            k(f"v_mul_f32 v{MX+2*g}, {-LOG2E!r}, v{MX+2*g}\nv_mul_f32 v{MN+2*g}, {LOG2E!r}, v{MN+2*g}")
    def fm_part3(E):
        for g in range(4):
            for j in range(4):
                b = g * 8 + 2 * j
                k(f"v_pk_fma_f32 {vr(P2+b,2)}, {vr(P1+b,2)}, s[94:95], {vr(MN+2*g,2)} op_sel_hi:[1,1,0] neg_lo:[1,0,0] neg_hi:[1,0,0]")
                k(f"v_pk_fma_f32 {vr(P1+b,2)}, {vr(P1+b,2)}, s[94:95], {vr(MX+2*g,2)} op_sel_hi:[1,1,0]")
            for j in range(8): k(f"v_exp_f32 v{P1+g*8+j}, v{P1+g*8+j}")
            for j in range(8): k(f"v_exp_f32 v{P2+g*8+j}, v{P2+g*8+j}")
            k("s_nop 0")
            for sg, PP in enumerate((P1, P2)):
                for j in range(4): k(f"v_cvt_pk_bf16_f32 v{E+(g*2+sg)*4+j}, v{PP+g*8+2*j}, v{PP+g*8+2*j+1}")
    for g in ml:
        for x in g: k(x)
    k("s_waitcnt lgkmcnt(0)\ns_nop 7")
    fm_part1(1)
    k("s_barrier")
    mark0 = len(k.L)
    for g, (hh, t) in enumerate(groups):
        for db in range(2):
            a = A(8 + hh * 2 + db, t)
            k(f"v_cvt_pk_bf16_f32 v{a}, v{a}, v{a+1}\nv_cvt_pk_bf16_f32 v{a+1}, v{a+2}, v{a+3}")
            k(f"ds_write_b64 v{A_VW}, {vr(a,2)} offset:{VV + hh*9216 + t*16*72 + db*32}")
    fm_part2()
    fm_part3(EK)
    SM = 32
    k("s_nop 1")
    for i in range(8): k(f"{MF} {vr(SM+4*i,4)}, {vr(ONES,4)}, {vr(EK+4*i,4)}, 0")
    k("s_nop 7")
    for i in range(8): k(f"v_rcp_f32 v{SM+4*i}, v{SM+4*i}")
    for g, (hh, t) in enumerate(groups):
        for sg, PP in enumerate((P1, P2)):
            for j in range(4):
                k(f"v_pk_mul_f32 {vr(PP+g*8+2*j,2)}, {vr(PP+g*8+2*j,2)}, {vr(SM+(g*2+sg)*4,2)} op_sel_hi:[1,0]")
            for fb in range(2):
                b = PP + g * 8 + fb * 4
                k(f"v_cvt_pk_bf16_f32 v{b}, v{b}, v{b+1}\nv_cvt_pk_bf16_f32 v{b+1}, v{b+2}, v{b+3}")
                k(f"ds_write_b64 v{A_PW}, {vr(b,2)} offset:{PHK + hh*17408 + t*16*136 + sg*64 + fb*32}")
    sprinkle(k, mark0, g3_early_units(k.g3, opt.get("g3_e1", 14), 254))
    k("s_waitcnt lgkmcnt(0)\ns_barrier")
    for s_ in range(4):
        for r in range(2):
            for fb in range(2): k(f"ds_read_b64_tr_b16 {ar(s_*16+fb*4+2*r,2)}, v{A_PR} offset:{PHK + (32*s_+16*r)*136 + fb*32}")
            for db in range(2): k(f"ds_read_b64_tr_b16 {ar(s_*16+8+db*4+2*r,2)}, v{A_VR} offset:{VV + (32*s_+16*r)*72 + db*32}")
    fm_part1(0)
    KV, ZZ = 64, 80
    for s_ in range(4):
        k(f"s_waitcnt lgkmcnt({min(15, 24 - 8*s_)})")
        for fb in range(2):
            for db in range(2):
                d = vr(KV + (db * 2 + fb) * 4, 4)
                k(f"{MF} {d}, {ar(s_*16+fb*4,4)}, {ar(s_*16+8+db*4,4)}, {'0' if s_ == 0 else d}")
            d = vr(ZZ + fb * 4, 4)
            k(f"{MF} {d}, {ar(s_*16+fb*4,4)}, {vr(ONES,4)}, {'0' if s_ == 0 else d}")
    k(f"s_lshl_b32 s82, s{S_HP}, 2\ns_add_u32 s82, s82, s{S_WAVE}")
    k("s_lshl_b32 s83, s82, 15")
    k(f"s_lshl_b32 s84, s{S_RB1}, 10\ns_add_u32 s84, s84, s83\ns_add_u32 s85, s84, 16384")
    k("s_lshl_b32 s90, s82, 11")
    k(f"s_lshl_b32 s91, s82, {FS+4}\ns_add_u32 s91, s91, {F_KV}\ns_lshl_b32 s92, s{S_RB1}, {FS}\ns_add_u32 s92, s92, s91")
    k(f"v_and_b32 v{VT}, 15, v{LANE}\nv_cmp_eq_u32 vcc, s{S_RB1}, v{VT}")
    k("s_nop 2")
    for db in range(2):
        for j in range(4): k(f"v_cvt_pk_bf16_f32 v{88+db*4+j}, v{KV+db*8+2*j}, v{KV+db*8+2*j+1}")
    k(f"buffer_store_dwordx4 {vr(88,4)}, v{L16}, {sr(SRD_B,4)}, s84 offen sc1")
    k(f"buffer_store_dwordx4 {vr(92,4)}, v{L16}, {sr(SRD_B,4)}, s85 offen sc1")
    k("s_and_saveexec_b64 s[96:97], vcc")
    k(f"buffer_store_dwordx4 {vr(ZZ,4)}, v{L16}, {sr(SRD_C,4)}, s90 offen sc1")
    k(f"buffer_store_dwordx4 {vr(ZZ+4,4)}, v{L16}, {sr(SRD_C,4)}, s90 offen offset:1024 sc1")
    k("s_mov_b64 exec, s[96:97]")
    k.stamp("kv stored")
    fm_part2()
    publish(k, 92, VT + 1)
    k.stamp("kv published")
    k("s_mov_b32 s93, s83")
    g2 = setup_gemm24(k, 2, opt, 96)
    k("s_mov_b32 s83, s93")
    g2.prefetch(k, 8)
    fm_part3(EK)
    k(f"v_lshlrev_b32 v{VT}, {FS}, v{VT}")
    wait_flags(k, [(VT, 91, 1)], VT + 1)
    k.stamp("kv ready")
    k(f"buffer_load_dwordx4 {vr(ZZ,4)}, v{L16}, {sr(SRD_C,4)}, s90 offen sc1")
    k(f"buffer_load_dwordx4 {vr(ZZ+4,4)}, v{L16}, {sr(SRD_C,4)}, s90 offen offset:1024 sc1")
    for i in range(32):
        if i % 4 == 0 and i: k("s_add_u32 s83, s83, 4096")
        k(f"buffer_load_dwordx4 {ar(4*i,4)}, v{L16}, {sr(SRD_B,4)}, s83 offen offset:{(i%4)*1024} sc1")
    srd(k, SRD_T, P_WS, S * D * 2, WS_O)
    k("s_waitcnt vmcnt(32)")
    for sh in (8, 4, 2, 1):
        for j in range(8): k(f"v_add_f32_dpp v{ZZ+j}, v{ZZ+j}, v{ZZ+j} row_ror:{sh} row_mask:0xf bank_mask:0xf")
    k(f"v_and_b32 v{VT+1}, 1, v{LANE}\nv_cmp_eq_u32 vcc, 0, v{VT+1}")
    for j in range(4): k(f"v_cvt_pk_bf16_f32 v{BF+8+j}, v{ZZ+2*j}, v{ZZ+2*j+1}")
    for j in range(4): k(f"v_cndmask_b32 v{BF+8+j}, v{ONES}, v{BF+8+j}, vcc")
    for i in range(32):
        db, pp = divmod(i, 16)
        if i % 2 == 0: k(f"s_waitcnt vmcnt({30 - i})")
        for fb in range(2):
            d = vr(KV + (db * 2 + fb) * 4, 4)
            k(f"{MF} {d}, {vr(SEL + (2 if fb == 0 else 0), 4)}, {ar(4*i,4)}, {'0' if pp == 0 else d}")
    k(f"s_mul_i32 s82, s{S_WAVE}, 3072\ns_add_u32 s82, s82, {SH}")
    k(f"v_add_u32 v{VT+1}, s82, v{L16}\nv_add_u32 v{VT+2}, {SH}, v{L16}")
    k("s_nop 6")
    for db in range(2):
        for j in range(4): k(f"v_cvt_pk_bf16_f32 v{BF+db*4+j}, v{KV+db*8+2*j}, v{KV+db*8+2*j+1}")
    for j in range(3): k(f"ds_write_b128 v{VT+1}, {vr(BF+4*j,4)} offset:{j*1024}")
    k("s_waitcnt lgkmcnt(0)\ns_barrier")
    for i in range(12): k(f"ds_read_b128 {ar(4*i,4)}, v{VT+2} offset:{i*1024}")
    k(f"s_lshl_b32 s82, s{S_RB1}, 3\ns_lshl_b32 s83, s{S_WAVE}, 1\ns_add_u32 s82, s82, s83\ns_lshl_b32 s82, s82, 15")
    k(f"s_lshl_b32 s83, s{S_HP}, 11\ns_add_u32 s82, s82, s83\ns_add_u32 s83, s82, 0x8000")
    k(f"s_lshl_b32 s84, s{S_RB1}, 2\ns_add_u32 s84, s84, s{S_WAVE}\ns_lshl_b32 s84, s84, {FS+4}\ns_lshl_b32 s85, s{S_HP}, {FS}\ns_add_u32 s84, s84, s85\ns_add_u32 s84, s84, {F_O}")
    k("s_waitcnt lgkmcnt(0)")
    for g, (hh, t) in enumerate(groups):
        for sg in range(2):
            for j in range(3):
                k(f"{MF} {vr((g*2+sg)*12+4*j,4)}, {ar(((hh*2+sg)*3+j)*4,4)}, {vr(EK+(g*2+sg)*4,4)}, 0")
    k("s_nop 7")
    for g, (hh, t) in enumerate(groups):
        n1, n2 = g * 24, g * 24 + 12
        D1, S1, D2, S2 = n1 + 8, n1 + 9, n2 + 8, n2 + 9
        k(f"v_mul_f32 v{n1+10}, v{S1}, v{S2}")
        k(f"v_mul_f32 v{n1+10}, 0x358637bd, v{n1+10}")
        k(f"v_fmac_f32 v{n1+10}, v{D1}, v{S2}\nv_fmac_f32 v{n1+10}, v{D2}, v{S1}")
        k(f"v_rcp_f32 v{n1+10}, v{n1+10}")
        k("s_nop 0")
        k(f"v_mul_f32 v{D1}, v{S2}, v{n1+10}\nv_mul_f32 v{D2}, v{S1}, v{n1+10}")
        for j in range(4): k(f"v_pk_mul_f32 {vr(n1+2*j,2)}, {vr(n1+2*j,2)}, {vr(D1,2)} op_sel_hi:[1,0]")
        for j in range(4): k(f"v_pk_fma_f32 {vr(n1+2*j,2)}, {vr(n2+2*j,2)}, {vr(D2,2)}, {vr(n1+2*j,2)} op_sel_hi:[1,0,1]")
        for j in range(4): k(f"v_cvt_pk_bf16_f32 v{n2+j}, v{n1+2*j}, v{n1+2*j+1}")
        k(f"buffer_store_dwordx4 {vr(n2,4)}, v{L16}, {sr(SRD_T,4)}, s{82+t} offen offset:{hh*1024} sc1")
    k.stamp("o stored")
    CU, AU, WW, TT = 128, 144, 152, 156
    for i in range(8): k(f"v_accvgpr_read_b32 v{CU+2*i}, a{A_UT+32+i}")
    silu_block(k, [CU + 2 * i for i in range(8)])
    mko = len(k.L)
    g2.V_X = 48
    srd(k, SRD_A, P_X, S * D * 2)
    V_XA = 47
    k(f"v_lshrrev_b32 v{VT+1}, 4, v{LANE}")
    k(f"v_and_b32 v{VT+2}, 15, v{LANE}\nv_lshlrev_b32 v{VT+2}, 11, v{VT+2}\nv_lshl_add_u32 v{V_XA}, v{VT+1}, 3, v{VT+2}")
    k(f"s_lshl_b32 s82, s{S_RB2}, 3\ns_lshl_b32 s83, s{S_WAVE}, 1\ns_add_u32 s82, s82, s83\ns_lshl_b32 s82, s82, 15\ns_lshl_b32 s83, s{S_NT}, 7\ns_add_u32 s82, s82, s83\ns_add_u32 s83, s82, 32768")
    for t in range(2):
        for b in range(4):
            k(f"buffer_load_dwordx2 {vr(g2.V_X+(t*4+b)*2,2)}, v{V_XA}, {sr(SRD_A,4)}, s{82+t} offen offset:{b*32}")
    publish(k, 84, VT + 2, mko)
    k.stamp("o published")
    mark1 = len(k.L)
    for j in range(8): k(f"v_mov_b32 v{AU+j}, 0")
    for i in range(8):
        for d in range(4): k(f"v_accvgpr_read_b32 v{WW+d}, a{A_UT+4*i+d}")
        for d in range(4):
            k(f"v_lshlrev_b32 v{TT}, 16, v{WW+d}\nv_and_b32 v{TT+1}, 0xffff0000, v{WW+d}")
            k(f"v_pk_fma_f32 {vr(AU+2*d,2)}, {vr(TT,2)}, {vr(CU+2*i,2)}, {vr(AU+2*d,2)} op_sel_hi:[1,0,1]")
    k("s_nop 1")
    for j in range(4): k(f"v_permlane32_swap_b32 v{AU+j}, v{AU+j+4}")
    k("s_nop 1")
    for j in range(4): k(f"v_add_f32 v{AU+j}, v{AU+j}, v{AU+j+4}")
    k("s_nop 1")
    for j in range(2): k(f"v_permlane16_swap_b32 v{AU+j}, v{AU+j+2}")
    k("s_nop 1")
    for j in range(2): k(f"v_add_f32 v{AU+j}, v{AU+j}, v{AU+j+2}")
    k("s_nop 1")
    for j in range(2): k(f"v_add_f32_dpp v{AU+j}, v{AU+j}, v{AU+j} row_ror:8 row_mask:0xf bank_mask:0xf")
    sprinkle(k, mark1, g3_early_units(k.g3, opt.get("g3_e2", 7), 254), skip=0)
    k(f"v_and_b32 v{TT}, 7, v{LANE}\nv_lshlrev_b32 v{TT}, 5, v{TT}\nv_lshrrev_b32 v{TT+1}, 5, v{LANE}\nv_lshl_add_u32 v{TT}, v{TT+1}, 4, v{TT}")
    k(f"v_bfe_u32 v{TT+1}, v{LANE}, 4, 1\nv_lshl_add_u32 v{TT}, v{TT+1}, 3, v{TT}")
    srd(k, SRD_D, P_WS, MP_BYTES, WS_MODP)
    k(f"v_or_b32 v{AU}, 1, v{AU}\nv_or_b32 v{AU+1}, 1, v{AU+1}")
    k(f"buffer_store_dwordx2 {vr(AU,2)}, v{TT}, {sr(SRD_D,4)}, s{S_MO} offen sc1")
    return g2

A_PARK = 224
S3_SRD, S3_WB, S3_KW = 64, 68, 69
def setup_gemm3_early(k, opt, LANE, VT):
    c = Sched(); common_gemm(c)
    NS, R = 4, 8
    STAGE = 28672
    V_RD, V_DMA, V_TOK = 224, 226, 233
    c.V_RD, c.V_DMA, c.V_TOK, c.LANE, c.L16, c.VT = V_RD, V_DMA, V_TOK, 237, 238, 248
    c.srd_w, c.s_wbase, c.s_kw = S3_SRD, S3_WB, S3_KW
    order(c, k, opt, 'g3', ['win', [4, 4, 8], 0])
    if opt.get("g3map", 0): c.s_rot, c.s_rot2 = 73, 72
    k(f"s_lshr_b32 s80, s{S_WAVE}, 1\ns_and_b32 s81, s{S_WAVE}, 1")
    k(f"s_mul_i32 s83, s80, {32*7168}\ns_mul_i32 s{S_TMP}, s{S_FT}, 224\ns_add_u32 s83, s83, s{S_TMP}")
    for i in range(7):
        k(f"v_add_u32 v{VT+2}, {i*64}, v{LANE}")
        k(f"v_mul_u32_u24 v{VT+3}, 4682, v{VT+2}")
        k(f"v_lshrrev_b32 v{VT+3}, 16, v{VT+3}")
        k(f"v_mul_u32_u24 v{VT+4}, 14, v{VT+3}")
        k(f"v_sub_u32 v{VT+4}, v{VT+2}, v{VT+4}")
        k(f"v_mul_u32_u24 v{VT+3}, 7168, v{VT+3}")
        k(f"v_lshl_add_u32 v{VT+3}, v{VT+4}, 4, v{VT+3}")
        k(f"v_add_u32 v{VT+3}, s83, v{VT+3}")
        k(f"v_accvgpr_write_b32 a{A_PARK+i}, v{VT+3}")
    k(f"s_mul_i32 s{S3_WB}, s81, 14336\ns_mul_i32 s82, s80, 7168\ns_add_u32 s{S3_WB}, s{S3_WB}, s82")
    k(f"s_cmp_eq_u32 s81, 0\ns_cselect_b32 s{S3_SRD}, s{P_W1}, s{P_W3}\ns_cselect_b32 s{S3_SRD+1}, s{P_W1+1}, s{P_W3+1}")
    k(f"s_mov_b32 s{S3_SRD+2}, {D*F*2}\ns_mov_b32 s{S3_SRD+3}, 0x20000")
    c.NB, c.TB, c.KS, c.SPK, c.KT, c.NS, c.R = 14, 4, 1, 2, 16, NS, R
    c.acc = lambda b, t: vr((b * 4 + t) * 4, 4)
    c.tf = lambda slot, ks, t: 112 + (slot * 4 + t) * 4
    ph = lambda sl: 3 - sl
    c.rd = lambda sl, b, sub, r: (V_RD + ph(sl) // 2, (ph(sl) % 2) * STAGE + (b % 2) * 14336 + (32 * sub + 16 * r) * 224 + 32 * (b // 2))
    c.slot_addr = lambda sl: ph(sl) * STAGE
    c.dma = [(V_DMA + i, i * 1024, 0) for i in range(7)]
    c.v_tok = [V_TOK + t for t in range(4)]
    c.w_stride = 64 * 7168
    c.drop = opt.get("g3_drop", ())
    c.pro_units, c.ramp_rate, c.read_margin = opt.get("g3_pro", 8), (lambda st: opt.get("g3_ramp", 10) if st < 6 else 8), 8
    c.lookahead = opt.get("g3_la", 4)
    std_sched(c)
    TL = c.TL = opt.get("g3_tail", 0)
    if TL:
        tail = c.steps[32 - TL:]
        c.steps = c.steps[:32 - TL] + [dict(st, frags=st["frags"][:8]) for st in tail] + [dict(st, frags=st["frags"][8:]) for st in tail]
    return c
def g3_early_units(c, n, vtmp):
    out = []
    for j in range(n):
        t = c.prefetch_txt(1)
        i = (c.pre_dma - 1) % 7
        ld = t[-1].replace(f"v{c.V_DMA+i},", f"v{vtmp},")
        out.append(t[:-1] + [f"v_accvgpr_read_b32 v{vtmp}, a{A_PARK+i}", ld])
    return out
def setup_gemm3_late(k, c):
    V_RD, V_DMA, V_TOK, LANE, L16, VT = c.V_RD, c.V_DMA, c.V_TOK, c.LANE, c.L16, c.VT
    lane_id(k, LANE)
    k(f"v_lshlrev_b32 v{L16}, 4, v{LANE}")
    for i in range(7): k(f"v_accvgpr_read_b32 v{V_DMA+i}, a{A_PARK+i}")
    k(f"v_lshrrev_b32 v{VT+3}, 2, v{LANE}\nv_mul_u32_u24 v{VT+3}, 224, v{VT+3}")
    k(f"v_and_b32 v{VT+4}, 3, v{LANE}\nv_lshl_add_u32 v{V_RD}, v{VT+4}, 3, v{VT+3}")
    k(f"v_add_u32 v{V_RD+1}, {2*28672}, v{V_RD}")
    k(f"s_lshl_b32 s82, s{S_RB3}, 4\ns_lshl_b32 s83, s{S_WAVE}, 2\ns_add_u32 s82, s82, s83\ns_lshl_b32 s82, s82, 15")
    k(f"v_add_u32 v{V_TOK}, s82, v{L16}")
    for t in range(1, 4): k(f"v_add_u32 v{V_TOK+t}, {t*0x8000}, v{V_TOK}")

def sprinkle(k, mark, groups, skip=4):
    if not groups: return
    seg = k.L[mark:]
    stepn = max(1, (len(seg) - skip) // len(groups))
    out, q = [], list(groups)
    for i, x in enumerate(seg):
        out.append(x)
        if q and i >= skip and (i - skip) % stepn == 0:
            assert not x.startswith("s_cmp") and not x.startswith("s_and_saveexec")
            out += q.pop(0)
    for g in q: out += g
    k.L[mark:] = out

A_X1 = 240
def phase_gemm2(k, c, opt):
    LANE, L16 = c.LANE, c.L16
    VT = 40
    k(f"v_and_b32 v252, 15, v{LANE}\nv_lshlrev_b32 v252, {FS}, v252")
    k(f"s_lshl_b32 s84, s{S_RB2}, 2\ns_add_u32 s84, s84, s{S_WAVE}\ns_lshl_b32 s84, s84, {FS+4}\ns_add_u32 s85, s84, {F_O}")
    if c.hs:
        k(f"s_add_u32 s94, s85, {F_O2 - F_O}")
        staged_wait(k, c, opt.get("g2_T", 5), 252, 85, 253, lambda sp, st: [f"s_lshl_b32 s{st}, s{sp}, 1", f"s_lshl_b32 s{st}, 3, s{st}"], pub=(95, 26))
        add_gate(k, c, 8, f"buffer_load_dword v253, v252, {sr(SRD_F,4)}, s94 offen sc1", 253)
    else:
        staged_wait(k, c, opt.get("g2_T", 6), 252, 85, 253, one_prod)
    k.stamp("o ready")
    V_G, V_C, V_S, V_GA = 64, 80, 136, 44
    p = Txt()
    srd(p, SRD_A, P_WS, S * D * 2, WS_Y)
    srd(p, SRD_B, P_WS, S * 128, WS_STAT)
    srd(p, SRD_D, P_WS, MP_BYTES, WS_MODP)
    p(f"v_lshrrev_b32 v{V_GA}, 4, v{LANE}\nv_lshlrev_b32 v{V_GA}, 4, v{V_GA}\nv_add_u32 v{V_GA}, {L_MV}, v{V_GA}")
    p(f"s_lshl_b32 s86, s{S_RB2}, 3\ns_lshl_b32 s87, s{S_WAVE}, 1\ns_add_u32 s86, s86, s87")
    p(f"s_lshl_b32 s88, s86, 15\ns_lshl_b32 s87, s{S_NT}, 11\ns_add_u32 s88, s88, s87\ns_add_u32 s89, s88, 32768")
    p(f"s_lshl_b32 s87, s{S_NT}, {FS}\ns_add_u32 s84, s84, s87\ns_add_u32 s84, s84, {F_Y}")
    p(f"s_lshl_b32 s91, s86, 11\ns_lshl_b32 s90, s{S_NT}, 8\ns_add_u32 s90, s90, s91")
    p(f"s_lshl_b32 s92, s{S_WAVE}, 16\ns_lshl_b32 s93, s{S_NT}, 12\ns_add_u32 s92, s92, s93\ns_add_u32 s92, s92, {MP_B}")
    p(f"v_lshlrev_b32 v{VT}, 2, v{LANE}")
    c.pre_loop_txt = p.L
    c.late = {}
    if opt.get("cpf", 1): c.late[6] = code_prefetch_txt(k.name, L16, 254, 80)
    m = Txt(); m.label = k.label
    MB_ = 160
    mld = [f"buffer_load_dword v{MB_+j}, v{VT}, {sr(SRD_D,4)}, s92 offen offset:{j*256} sc1" for j in range(16)]
    okm = k.label("mok")
    m(f"v_min_u32 v{MB_+16}, v{MB_}, v{MB_+1}")
    for j in range(2, 16, 2): m(f"v_min3_u32 v{MB_+16}, v{MB_+16}, v{MB_+j}, v{MB_+j+1}")
    m(f"v_cmp_eq_u32 vcc, 0, v{MB_+16}\ns_cmp_eq_u64 vcc, 0\ns_cbranch_scc1 {okm}")
    spin(m, mld, [MB_ + j for j in range(16)], MB_ + 16)
    m(f"{okm}:")
    mchk = "\n".join(m.L); m.L = []
    for st in (4, 2, 1):
        for j in range(st): m(f"v_pk_add_f32 {vr(MB_+2*j,2)}, {vr(MB_+2*j,2)}, {vr(MB_+2*(j+st),2)}")
    m(f"v_add_f32 v{MB_}, v{MB_}, v{MB_+1}")
    round_bf16(m, MB_)
    m(f"v_add_f32 v{MB_+1}, 1.0, v{MB_}"); round_bf16(m, MB_ + 1)
    m(f"s_cmp_eq_u32 s{S_WAVE}, 2\ns_cselect_b64 vcc, -1, 0")
    m(f"v_cndmask_b32 v{MB_}, v{MB_}, v{MB_+1}, vcc")
    m(f"s_lshl_b32 s92, s{S_WAVE}, 8\ns_add_u32 s92, s92, {L_MV}\nv_add_u32 v{VT}, s92, v{VT}")
    m(f"ds_write_b32 v{VT}, v{MB_}")
    ms_ = opt.get("g2_modstep", 13)
    c.late.setdefault(ms_ - 2, []).extend([VM(x, ("mv", 0)) for x in mld])
    k_ = [x for x in m.L]
    i_ = next(i for i, x in enumerate(k_) if x.startswith("s_cmp_eq_u32"))
    c.late[ms_] = [WVM([("mv", 0)]), T(mchk)] + k_[:i_] + ["\n".join(k_[i_:])]
    ne = opt.get("g3_e3", 7 if opt.get("split", 1) else 0)
    eu = [x for g in g3_early_units(k.g3, ne, 254) for x in g]
    c.late.setdefault(14, []).extend(eu[:len(eu)//2 // 1]); c.late.setdefault(15, []).extend(eu[len(eu)//2:])
    c.last_reads = ([f"ds_read_b128 {vr(V_G+4*b,4)}, v{V_GA} offset:{b*64}" for b in range(4)] + [f"ds_read_b128 {vr(V_C+4*b,4)}, v{V_GA} offset:{512+b*64}" for b in range(4)]
                    + [f"ds_read_b128 {vr(V_S+4*b,4)}, v{V_GA} offset:{256+b*64}" for b in range(4)])
    c.run(k)
    k.stamp("g2 loop done")
    k("s_waitcnt lgkmcnt(0)\ns_nop 7")
    A = lambda b, t: (b * 2 + t) * 4
    XT = 194; V_X = c.V_X
    for t in range(2):
        for b in range(4):
            xr = V_X + (t * 4 + b) * 2
            for h in range(2): k(f"v_lshlrev_b32 v{XT+2*h}, 16, v{xr+h}\nv_and_b32 v{XT+2*h+1}, 0xffff0000, v{xr+h}")
            for h in range(2): k(f"v_pk_fma_f32 {vr(A(b,t)+2*h,2)}, {vr(A(b,t)+2*h,2)}, {vr(V_G+4*b+2*h,2)}, {vr(XT+2*h,2)}")
        PK = XT + 4 + t * 8
        for b in range(4): k(f"v_cvt_pk_bf16_f32 v{PK+2*b}, v{A(b,t)}, v{A(b,t)+1}\nv_cvt_pk_bf16_f32 v{PK+2*b+1}, v{A(b,t)+2}, v{A(b,t)+3}")
        for b in range(4):
            for h in range(2): k(f"v_lshlrev_b32 v{A(b,t)+2*h}, 16, v{PK+2*b+h}\nv_and_b32 v{A(b,t)+2*h+1}, 0xffff0000, v{PK+2*b+h}")
    SU = [XT + 20, XT + 22]; M2 = [XT + 21, XT + 23]; TM = [XT + 24, XT + 25]; AC = [XT, XT + 2]; NM = [XT + 26, XT + 28]; DF = 32
    for t in range(2): k(f"v_pk_add_f32 {vr(AC[t],2)}, {vr(A(0,t),2)}, {vr(A(0,t)+2,2)}")
    for b in range(1, 4):
        for h in range(2):
            for t in range(2): k(f"v_pk_add_f32 {vr(AC[t],2)}, {vr(AC[t],2)}, {vr(A(b,t)+2*h,2)}")
    def allred2(X):
        for sw in ("v_permlane32_swap_b32", "v_permlane16_swap_b32"):
            for t in range(2): k(f"v_mov_b32 v{TM[t]}, v{X[t]}")
            k("s_nop 0")
            for t in range(2): k(f"{sw} v{X[t]}, v{TM[t]}")
            k("s_nop 0")
            for t in range(2): k(f"v_add_f32 v{X[t]}, v{X[t]}, v{TM[t]}")
    for t in range(2): k(f"v_add_f32 v{SU[t]}, v{AC[t]}, v{AC[t]+1}")
    allred2(SU)
    for t in range(2): k(f"v_mul_f32 v{NM[t]}, {-1.0/64!r}, v{SU[t]}\nv_mov_b32 v{AC[t]}, 0\nv_mov_b32 v{AC[t]+1}, 0")
    for b in range(4):
        for h in range(2):
            for t in range(2): k(f"v_pk_add_f32 {vr(DF+2*t,2)}, {vr(A(b,t)+2*h,2)}, {vr(NM[t],2)} op_sel_hi:[1,0]")
            for t in range(2): k(f"v_pk_fma_f32 {vr(AC[t],2)}, {vr(DF+2*t,2)}, {vr(DF+2*t,2)}, {vr(AC[t],2)}")
    for t in range(2): k(f"v_add_f32 v{M2[t]}, v{AC[t]}, v{AC[t]+1}")
    allred2(M2)
    k(f"v_cmp_gt_u32 vcc, 16, v{LANE}")
    k(f"v_lshlrev_b32 v{XT+2}, 3, v{LANE}\nv_lshrrev_b32 v{XT+3}, 4, v{LANE}")
    k(f"v_cndmask_b32 v{XT}, v{SU[1]}, v{SU[0]}, vcc\nv_cndmask_b32 v{XT+1}, v{M2[1]}, v{M2[0]}, vcc")
    k(f"v_and_b32 v45, 0x78, v{XT+2}\nv_lshl_add_u32 v45, v{XT+3}, 10, v45")
    k(f"v_or_b32 v{XT+1}, 1, v{XT+1}")
    k(f"v_cmp_gt_u32 vcc, 32, v{LANE}\ns_and_saveexec_b64 s[96:97], vcc")
    k(f"buffer_store_dwordx2 {vr(XT,2)}, v{XT+2}, {sr(SRD_B,4)}, s90 offen sc1")
    k("s_mov_b64 exec, s[96:97]")
    k.stamp("stat stored")
    for t in range(2):
        for b in range(4):
            for h in range(2): k(f"v_pk_mul_f32 {vr(A(b,t)+2*h,2)}, {vr(A(b,t)+2*h,2)}, {vr(V_C+4*b+2*h,2)}")
    for j in range(16): k(f"v_accvgpr_write_b32 a{A_X1+j}, v{XT+4+j}")
    g3 = k.g3
    setup_gemm3_late(k, g3)
    g3.prefetch(k, opt.get("g3_pre0", 0))
    ST = 48
    spin(k, [f"buffer_load_dwordx2 {vr(ST+t*8+j*2,2)}, v45, {sr(SRD_B,4)}, s91 offen offset:{t*128+j*256} sc1" for t in range(2) for j in range(4)],
         [ST + 2 * j + 1 for j in range(8)], XT)
    k.stamp("stat ready")
    for t in range(2):
        b = ST + t * 8
        k(f"v_add_f32 v{SU[t]}, v{b}, v{b+2}\nv_add_f32 v{TM[t]}, v{b+4}, v{b+6}\nv_add_f32 v{SU[t]}, v{SU[t]}, v{TM[t]}")
        k(f"v_add_f32 v{M2[t]}, v{b+1}, v{b+3}\nv_add_f32 v{TM[t]}, v{b+5}, v{b+7}\nv_add_f32 v{M2[t]}, v{M2[t]}, v{TM[t]}")
    allred2(SU)
    for t in range(2): k(f"v_mul_f32 v{SU[t]}, {-1.0/1024!r}, v{SU[t]}")
    for j in range(4):
        for t in range(2): k(f"v_fmamk_f32 v{ST+t*8+2*j}, v{ST+t*8+2*j}, {1.0/64!r}, v{SU[t]}")
        for t in range(2): k(f"v_mul_f32 v{ST+t*8+2*j}, v{ST+t*8+2*j}, v{ST+t*8+2*j}")
        for t in range(2): k(f"v_fmac_f32 v{M2[t]}, 0x42800000, v{ST+t*8+2*j}")
    allred2(M2)
    for t in range(2): k(f"v_mov_b32 v{TM[t]}, 0x3727c5ac\nv_fmac_f32 v{TM[t]}, {1.0/1024!r}, v{M2[t]}")
    for t in range(2): k(f"v_rsq_f32 v{NM[t]}, v{TM[t]}")
    k("s_nop 0")
    for t in range(2): k(f"v_mul_f32 v{NM[t]+1}, v{SU[t]}, v{NM[t]}")
    for t in range(2):
        YK = ST + t * 8
        for b in range(4):
            for h in range(2): k(f"v_pk_fma_f32 {vr(XT+2*h,2)}, {vr(V_C+4*b+2*h,2)}, {vr(NM[t],2)}, {vr(V_S+4*b+2*h,2)} op_sel:[0,1,0] op_sel_hi:[1,1,1]")
            for h in range(2): k(f"v_pk_fma_f32 {vr(XT+2*h,2)}, {vr(A(b,t)+2*h,2)}, {vr(NM[t],2)}, {vr(XT+2*h,2)} op_sel_hi:[1,0,1]")
            k(f"v_cvt_pk_bf16_f32 v{YK+2*b}, v{XT}, v{XT+1}\nv_cvt_pk_bf16_f32 v{YK+2*b+1}, v{XT+2}, v{XT+3}")
        for s_ in range(2): k(f"buffer_store_dwordx4 {vr(YK+4*s_,4)}, v{L16}, {sr(SRD_A,4)}, s{88+t} offen offset:{s_*1024} sc1")
    publish(k, 84, 40)
    k.stamp("y published")
    g3.prefetch(k, opt.get("g3_pre", 0))
    return g3

def phase_gemm3(k, c, opt):
    LANE, L16, VT = c.LANE, c.L16, c.VT
    NB, TB = 14, 4
    srd(k, SRD_T, P_WS, S * D * 2, WS_Y)
    srd(k, SRD_C, P_WS, S * F * 2, WS_HH)
    k(f"v_and_b32 v{VT}, 31, v{LANE}\nv_lshlrev_b32 v{VT}, {FS}, v{VT}")
    k(f"s_lshl_b32 s84, s{S_RB3}, 2\ns_add_u32 s84, s84, s{S_WAVE}")
    k(f"s_lshl_b32 s85, s84, {FS+5}\ns_add_u32 s85, s85, {F_Y}")
    staged_wait(k, c, opt.get("g3_T", 3), VT, 85, VT + 1, one_prod, dup16=True)
    k.stamp("y ready")
    p = Txt()
    SO = 8
    p(f"s_mul_i32 s{SO}, s84, {448*1024}\ns_mul_i32 s92, s{S_FT}, 3584\ns_add_u32 s{SO}, s{SO}, s92")
    for t in range(1, 4): p(f"s_add_u32 s{SO+t}, s{SO}, {t*112*1024}")
    p(f"s_lshl_b32 s93, s84, {FS+5}\ns_lshl_b32 s94, s{S_FT}, {FS}\ns_add_u32 s93, s93, s94\ns_add_u32 s94, s93, {F_HB}\ns_add_u32 s93, s93, {F_HH}")
    p(f"s_mov_b32 s12, {-LOG2E!r}\ns_mov_b32 s13, {-LOG2E!r}")
    SB = 241
    p(f"v_lshrrev_b32 v{SB}, 1, v{L16}")
    c.pre_loop_txt = p.L
    if opt.get("cpf", 1):
        for st_ in opt.get("cp3", [6, 22]): c.late.setdefault(st_, []).extend(code_prefetch_txt(k.name, L16, 254, 80, junk="v240"))
    if opt.get("w2touch", 1):
        ws_ = opt.get("w2steps", [16]); per = 56 // len(ws_)
        for j, st_ in enumerate(ws_):
            c.late.setdefault(st_, []).extend([f"s_lshl_b32 s80, s2, 2", f"s_add_u32 s80, s80, s{S_WAVE}", "s_mul_i32 s80, s80, 7168", f"s_add_u32 s80, s80, {j*per*128}",
                      f"v_min_u32 v253, {per-1}, v{LANE}", "v_lshlrev_b32 v253, 7, v253", "v_add_u32 v253, s80, v253",
                      f"global_load_dword v240, v253, s[{P_W2}:{P_W2+1}]"])
    for j, st_ in enumerate(opt.get("w2l2", [27, 28])):
        c.late.setdefault(st_, []).extend([
            f"s_lshl_b32 s80, s{S_IDX}, 2", f"s_add_u32 s80, s80, s{S_WAVE}", "s_mul_i32 s80, s80, 14", f"s_add_u32 s80, s80, {7*j}",
            f"s_and_b32 s81, s{S_XCD}, 1", "s_mul_i32 s81, s81, 1792", "s_add_u32 s80, s80, s81", "s_lshl_b32 s80, s80, 11",
            f"s_lshr_b32 s81, s{S_XCD}, 2", "s_lshl_b32 s81, s81, 10", "s_add_u32 s80, s80, s81",
            f"v_min_u32 v253, 55, v{LANE}", "v_lshrrev_b32 v254, 3, v253", "v_lshlrev_b32 v254, 11, v254", "v_and_b32 v253, 7, v253", "v_lshl_add_u32 v253, v253, 7, v254",
            "v_add_u32 v253, s80, v253", f"global_load_dword v240, v253, s[{P_W2}:{P_W2+1}]"])
    t4 = Txt()
    g4 = setup_gemm4p(t4, opt, 242)
    half = len(t4.L) // 2
    c.late[19] = t4.L[:half]; c.late[20] = t4.L[half:]
    pf = g4.prefetch_txt(4); c.late[29] = pf
    pf = g4.prefetch_txt(4); c.late[30] = pf
    def G(s, t): return ((2 * s) * TB + t) * 4
    def Uu(s, t): return ((2 * s + 1) * TB + t) * 4
    def act(k, slots, t, scalar=False):
        if scalar:
            for s in slots:
                for r in range(4):
                    k(f"v_mul_f32 v{Uu(s,t)+r}, v{G(s,t)+r}, v{Uu(s,t)+r}")
                    k(f"v_mul_f32 v{G(s,t)+r}, s12, v{G(s,t)+r}")
            rs = [(s, r) for s in slots for r in range(4)]
            for i, (s, r) in enumerate(rs): k(f"v_exp_f32 v{G(s,t)+r}, v{G(s,t)+r}")
            for i, (s, r) in enumerate(rs): k(f"v_add_f32 v{G(s,t)+r}, 1.0, v{G(s,t)+r}")
            for i, (s, r) in enumerate(rs): k(f"v_rcp_f32 v{G(s,t)+r}, v{G(s,t)+r}")
            for i, (s, r) in enumerate(rs): k(f"v_mul_f32 v{Uu(s,t)+r}, v{Uu(s,t)+r}, v{G(s,t)+r}")
            return
        for s in slots:
            for h in range(2):
                k(f"v_pk_mul_f32 {vr(Uu(s,t)+2*h,2)}, {vr(G(s,t)+2*h,2)}, {vr(Uu(s,t)+2*h,2)}")
                k(f"v_pk_mul_f32 {vr(G(s,t)+2*h,2)}, {vr(G(s,t)+2*h,2)}, s[12:13]")
        for s in slots:
            for r in range(4): k(f"v_exp_f32 v{G(s,t)+r}, v{G(s,t)+r}")
        for s in slots:
            for h in range(2): k(f"v_pk_add_f32 {vr(G(s,t)+2*h,2)}, {vr(G(s,t)+2*h,2)}, 1.0 op_sel_hi:[1,0]")
        for s in slots:
            for r in range(4): k(f"v_rcp_f32 v{G(s,t)+r}, v{G(s,t)+r}")
        for s in slots:
            for h in range(2): k(f"v_pk_mul_f32 {vr(Uu(s,t)+2*h,2)}, {vr(Uu(s,t)+2*h,2)}, {vr(G(s,t)+2*h,2)}")
    def pair(k, pr, t, scalar=False):
        s0, s1 = 2 * pr, 2 * pr + 1
        act(k, [s0, s1], t, scalar)
        d = G(s0, t)
        k(f"v_cvt_pk_bf16_f32 v{d}, v{Uu(s0,t)}, v{Uu(s0,t)+1}\nv_cvt_pk_bf16_f32 v{d+1}, v{Uu(s0,t)+2}, v{Uu(s0,t)+3}")
        k(f"v_cvt_pk_bf16_f32 v{d+2}, v{Uu(s1,t)}, v{Uu(s1,t)+1}\nv_cvt_pk_bf16_f32 v{d+3}, v{Uu(s1,t)+2}, v{Uu(s1,t)+3}")
        k(f"buffer_store_dwordx4 {vr(d,4)}, v{L16}, {sr(SRD_C,4)}, s{SO+t} offen offset:{pr*1024} sc1")
        if opt.get("dbl", 0): k(f"buffer_store_dwordx4 {vr(d,4)}, v{L16}, {sr(SRD_C,4)}, s{SO+t} offen offset:{pr*1024}")
    ea = Txt(); eb = Txt()
    nin = opt.get("g3_nin", 8) if c.TL else 0
    for i, (pr, t) in enumerate([(pr, t) for pr in range(2) for t in range(TB)]):
        if i < nin: pair(ea, pr, t, opt.get("g3_scalar", 0))
        else: pair(eb, pr, t)
    if c.TL:
        nst = opt.get("g3_east", c.TL - 1)
        per = -(-len(ea.L) // nst)
        c.step_extra = lambda st: ea.L[(st - 32) * per:(st - 31) * per] if st >= 32 else []
    c.run(k)
    k.stamp("g3 loop done")
    if not c.TL: k("s_nop 7")
    k("s_barrier")
    mkE = len(k.L)
    for x in eb.L: k(x)
    grp = []
    for j in range(opt.get("g4_pa", 0)):
        t_ = g4.prefetch_txt(1); grp.append(t_[:-1] + ["s_nop 0", t_[-1]])
    sprinkle(k, mkE, grp)
    def single(k, t):
        act(k, [6], t)
        d = G(6, t)
        k(f"v_cvt_pk_bf16_f32 v{d}, v{Uu(6,t)}, v{Uu(6,t)+1}\nv_cvt_pk_bf16_f32 v{d+1}, v{Uu(6,t)+2}, v{Uu(6,t)+3}")
        k(f"buffer_store_dwordx2 {vr(d,2)}, v{SB}, {sr(SRD_C,4)}, s{SO+t} offen offset:3072 sc1")
    mkA = len(k.L)
    na = opt.get("g3_pubA", 2)
    g4.binl = None
    if opt.get("binl", 0):
        nb0 = opt.get("binl0", 1)
        bt = Txt()
        jobs = [(pair, (2, t)) for t in range(TB)] + [(single, (t,)) for t in range(TB)]
        g4.mkA = mkA
        for f_, a_ in jobs[:nb0]: f_(k, *a_)
        for f_, a_ in jobs[nb0:]: f_(bt, *a_)
        g4.binl = bt.L
    else:
        for t in range(na): pair(k, 2, t)
        publish(k, 93, 252, mkA)
        k.stamp("hA published")
        mark3 = len(k.L)
        for t in range(na, TB): pair(k, 2, t)
        grp = []
        for j in range(opt.get("g4_pb", 8)):
            t_ = g4.prefetch_txt(1); grp.append(t_[:-1] + ["s_nop 0", t_[-1]])
        sprinkle(k, mark3, grp)
        for t in range(TB): single(k, t)
    k.stamp("hh stored")
    return g4

def phase_gemm4(k, c, opt):
    LANE, L16 = c.LANE, c.L16
    VT = 40
    srd(k, SRD_T, P_WS, S * F * 2, WS_HH)
    srd(k, SRD_A, P_OUT, S * D * 2)
    k(f"v_and_b32 v{VT}, 31, v{LANE}\nv_lshlrev_b32 v{VT}, 2, v{VT}")
    k(f"s_lshl_b32 s84, s{S_RB2}, 1\ns_lshr_b32 s85, s{S_WAVE}, 1\ns_add_u32 s84, s84, s85\ns_lshl_b32 s84, s84, {FS+5}\ns_add_u32 s84, s84, {F_HH}")
    wait_flags(k, [(VT, 84, 1)], VT + 1)
    k.stamp("hh ready")
    V_G, V_GA, V_XA, V_X = 64, 44, 45, 48
    p = Txt()
    p(f"v_lshrrev_b32 v{VT}, 4, v{LANE}\nv_lshlrev_b32 v{V_GA}, 4, v{VT}\nv_add_u32 v{V_GA}, {L_MV}, v{V_GA}")
    p(f"v_and_b32 v{VT+1}, 15, v{LANE}\nv_lshlrev_b32 v{VT+1}, 11, v{VT+1}")
    p(f"v_and_b32 v{VT+2}, 1, v{VT}\nv_lshl_add_u32 v{VT+1}, v{VT+2}, 5, v{VT+1}")
    p(f"v_lshrrev_b32 v{VT+2}, 1, v{VT}\nv_lshl_add_u32 v{V_XA}, v{VT+2}, 4, v{VT+1}")
    p(f"s_lshl_b32 s86, s{S_RB2}, 3\ns_lshl_b32 s87, s{S_WAVE}, 1\ns_add_u32 s86, s86, s87\ns_lshl_b32 s86, s86, 15\ns_lshl_b32 s87, s{S_NT}, 7\ns_add_u32 s86, s86, s87\ns_add_u32 s87, s86, 32768")
    for j in range(16): p(f"v_accvgpr_read_b32 v{V_X+j}, a{A_X1+j}")
    c.pre_loop_txt = p.L
    c.last_reads = [f"ds_read_b128 {vr(V_G+4*b,4)}, v{V_GA} offset:{768+b*64}" for b in range(4)]
    c.run(k)
    k.stamp("g4 loop done")
    k("s_waitcnt lgkmcnt(0)\ns_nop 7")
    A = lambda b, t: (b * 2 + t) * 4
    XT = 96
    for t in range(2):
        for b in range(4):
            xr = V_X + (t * 4 + b) * 2
            for h in range(2): k(f"v_lshlrev_b32 v{XT+2*h}, 16, v{xr+h}\nv_and_b32 v{XT+2*h+1}, 0xffff0000, v{xr+h}")
            for h in range(2): k(f"v_pk_fma_f32 {vr(A(b,t)+2*h,2)}, {vr(A(b,t)+2*h,2)}, {vr(V_G+4*b+2*h,2)}, {vr(XT+2*h,2)}")
        PK = XT + 4 + t * 8
        for b in range(4): k(f"v_cvt_pk_bf16_f32 v{PK+2*b}, v{A(b,t)}, v{A(b,t)+1}\nv_cvt_pk_bf16_f32 v{PK+2*b+1}, v{A(b,t)+2}, v{A(b,t)+3}")
        k("s_nop 1")
        for s_ in range(2): k(f"v_permlane16_swap_b32 v{PK+4*s_}, v{PK+4*s_+2}\nv_permlane16_swap_b32 v{PK+4*s_+1}, v{PK+4*s_+3}")
        for s_ in range(2): k(f"buffer_store_dwordx4 {vr(PK+4*s_,4)}, v{V_XA}, {sr(SRD_A,4)}, s{86+t} offen offset:{s_*64}")

def build_mega(instr=False, opt=None, name="mega_kernel"):
    opt = opt or {}
    k = Mega(name, 256, 256, LDS_TOTAL, vgpr=256, agpr=256, sgpr=102)
    k.instr = instr; k.names = []; k.only = opt.get("only")
    end = k.label("end")
    far = k.label("go")
    if opt.get("diag2") is not None: k("s_memrealtime s[72:73]")
    k(f"s_cmp_lt_u32 s2, 256\ns_cbranch_scc1 {far}\ns_endpgm\n{far}:")
    if opt.get("fused", 1):
        code_prefetch_setup(k, name)
        k("v_and_b32 v104, 63, v0\nv_lshlrev_b32 v105, 4, v104\nv_lshlrev_b32 v254, 5, v0")
        k("global_load_dword a232, v254, s[100:101]")
        k("s_load_dwordx2 s[96:97], s[0:1], 88")
        if opt.get("dbgout"): k("s_load_dwordx2 s[72:73], s[0:1], 88")
    k("s_load_dwordx8 s[4:11], s[0:1], 0")
    k("s_load_dwordx2 s[12:13], s[0:1], 64")
    k("s_load_dwordx2 s[14:15], s[0:1], 40")
    k("s_load_dwordx4 s[16:19], s[0:1], 48")
    k("s_load_dwordx2 s[98:99], s[0:1], 72")
    k("s_load_dwordx2 s[24:25], s[0:1], 80")
    k("s_load_dwordx2 s[28:29], s[0:1], 96")
    if instr: k(f"v_mov_b32 v{VSTAMP}, 0")
    ids(k)
    k(f"s_lshr_b32 s80, s{S_IDX}, 2\ns_add_u32 s{S_R4}, s80, s{S_IDX}\ns_and_b32 s81, s{S_IDX}, 3\ns_lshl_b32 s81, s81, 1\ns_add_u32 s{S_R8}, s80, s81")
    if opt.get("g3map", 0):
        k(f"s_bfe_u32 s{S_RB3}, s{S_XCD}, 0x10001\ns_lshl_b32 s{S_RB3}, s{S_RB3}, 2\ns_lshr_b32 s80, s{S_IDX}, 3\ns_add_u32 s{S_RB3}, s{S_RB3}, s80")
        k(f"s_and_b32 s{S_FT}, s{S_XCD}, 1\ns_lshl_b32 s{S_FT}, s{S_FT}, 4\ns_lshr_b32 s81, s{S_XCD}, 2\ns_lshl_b32 s81, s81, 3\ns_add_u32 s{S_FT}, s{S_FT}, s81\ns_and_b32 s81, s{S_IDX}, 7\ns_add_u32 s{S_FT}, s{S_FT}, s81")
        k(f"s_add_u32 s72, s80, s{S_IDX}\ns_lshl_b32 s80, s80, 1\ns_add_u32 s73, s80, s{S_IDX}")
    else:
        k(f"s_and_b32 s80, s{S_IDX}, 3\ns_lshl_b32 s{S_FT}, s{S_XCD}, 2\ns_add_u32 s{S_FT}, s{S_FT}, s80\ns_lshr_b32 s{S_RB3}, s{S_IDX}, 2")
    if opt.get("fused", 1):
        for x in code_prefetch_txt(name, 105, 254, 80): k(x)
    k.stamp("start")
    g1 = (phase_front_fused if opt.get("fused", 1) else phase_front)(k, opt, name)
    g2 = (phase_gemm1s if opt.get('split', 1) else phase_gemm1)(k, g1, opt)
    g3 = phase_gemm2(k, g2, opt)
    g4 = phase_gemm3(k, g3, opt)
    (phase_gemm4p if opt.get('g4_pair', 1) else phase_gemm4)(k, g4, opt)
    if opt.get("diag2") is not None:
        lp, sk = k.label("dg"), k.label("dgs")
        if opt["diag2"] >= 0: k(f"s_cmp_lg_u32 s2, {opt['diag2']}\ns_cbranch_scc1 {sk}")
        k(f"{lp}:\ns_memrealtime s[0:1]\ns_waitcnt lgkmcnt(0)\ns_sub_u32 s87, s0, s72\ns_cmp_lt_u32 s87, 10000\ns_cbranch_scc1 {lp}\n{sk}:")
    elif opt.get("diag"):
        a_, b_ = opt["diag"]
        k(f"v_readlane_b32 s84, v{VSTAMP}, 0\nv_readlane_b32 s85, v{VSTAMP}, {a_}\nv_readlane_b32 s86, v{VSTAMP}, {b_}\ns_nop 3")
        k("s_sub_u32 s86, s86, s85\ns_add_u32 s86, s86, 10000")
        lp = k.label("dg")
        k(f"{lp}:\ns_memrealtime s[0:1]\ns_waitcnt lgkmcnt(0)\ns_sub_u32 s87, s0, s84\ns_cmp_lt_u32 s87, s86\ns_cbranch_scc1 {lp}")
    elif instr:
        k("s_waitcnt vmcnt(0)")
        k.stamp("end")
        k(f"s_add_u32 s84, s{P_WS}, {WS_DBG}\ns_addc_u32 s85, s{P_WS+1}, 0\ns_mov_b32 s86, 0x100000\ns_mov_b32 s87, 0x20000")
        k(f"s_lshl_b32 s88, s2, 2\ns_add_u32 s88, s88, s{S_WAVE}\ns_lshl_b32 s88, s88, 8")
        lane_id(k, 1)
        k("v_lshlrev_b32 v1, 2, v1")
        k(f"buffer_store_dword v{VSTAMP}, v1, s[84:87], s88 offen")
        if opt.get("dbgout"):
            sk = k.label("nodbg")
            k(f"s_lshl_b32 s88, s2, 2\ns_add_u32 s88, s88, s{S_WAVE}\ns_cmp_lg_u32 s88, {opt['dbgout']*4}\ns_cbranch_scc1 {sk}")
            k("s_mov_b32 s84, s72\ns_mov_b32 s85, s73\ns_mov_b32 s86, 64\ns_mov_b32 s87, 0x20000")
            k(f"v_readlane_b32 s89, v{VSTAMP}, 0\ns_nop 3\nv_subrev_u32 v2, s89, v{VSTAMP}")
            k("buffer_store_dword v2, v1, s[84:87], 0 offen offset:12")
            k(f"{sk}:")
    k("s_endpgm")
    k(f"{name}_end:")
    return k
```

```python
import re, sys
def regs(tok):
    tok = tok.strip().lstrip("-")
    m = re.fullmatch(r"([vas])\[(\d+):(\d+)\]", tok)
    if m: return {(m.group(1), i) for i in range(int(m.group(2)), int(m.group(3)) + 1)}
    m = re.fullmatch(r"([vas])(\d+)", tok)
    if m: return {(m.group(1), int(m.group(2)))}
    if tok in ("vcc", "vcc_lo"): return {("s", "vcc")}
    if tok == "m0": return {("s", "m0")}
    if tok == "exec": return {("s", "exec")}
    return set()
TRANS = ("v_exp_f32", "v_rcp_f32", "v_rsq_f32", "v_sqrt_f32", "v_log_f32")
def parse(l):
    l = l.strip(); op, _, rest = l.partition(" ")
    op = op.replace("_e64", "")
    ops = [t.strip() for t in rest.split(",")] if rest else []
    if ops: ops[-1] = ops[-1].split()[0] if ops[-1] else ""
    d = dict(op=op, txt=l, w=set(), r=set(), c=set(), kind="other")
    R = [regs(t) for t in ops]
    if op.startswith("v_mfma"):
        d.update(kind="mfma", w=R[0], r=R[1] | R[2] | R[3], c=R[3])
    elif op.startswith("v_cmp"):
        d.update(kind="valu", w=R[0], r=set().union(*R[1:]))
    elif op.startswith("v_permlane"):
        d.update(kind="valu", w=R[0] | R[1], r=R[0] | R[1])
    elif op.startswith("v_"):
        d.update(kind="valu", w=R[0], r=set().union(*R[1:]) if len(R) > 1 else set())
        if op.startswith("v_fmac") or op.startswith("v_writelane"): d["r"] |= R[0]
    elif op.startswith("buffer_store") :
        d.update(kind="vmem", r=set().union(*R), data=R[0])
    elif op.startswith("buffer_load") or op.startswith("global_load"):
        if l.endswith("lds"): d.update(kind="vmem", r=set().union(*R) | {("s", "m0")}, lds=True)
        else: d.update(kind="vmem", w=R[0], r=set().union(*R[1:]))
    elif op.startswith("ds_write"): d.update(kind="ds", r=set().union(*R))
    elif op.startswith("ds_read"): d.update(kind="ds", w=R[0], r=R[1])
    elif op.startswith("s_"):
        d.update(kind="salu")
        if R and not op.startswith("s_cmp") and not op.startswith("s_cbranch"): d["w"] = R[0]; d["r"] = set().union(*R[1:]) if len(R) > 1 else set()
        else: d["r"] = set().union(*R) if R else set()
    return d
def states(x): return int(x["txt"].split()[1]) + 1 if x["op"] == "s_nop" else 1
def need_of(p, c):
    need = 0
    vw = {x for x in p["w"] if x[0] in "va"}; sw = {x for x in p["w"] if x[0] == "s"}
    if p["kind"] == "valu":
        if c["op"].startswith("v_permlane") and vw & c["r"]: need = 2
        if p["op"].startswith("v_permlane") and c["kind"] == "valu" and vw & c["r"]: need = max(need, 1)
        if "_dpp" in c["op"] and vw & c["r"]: need = 2
        if c["kind"] == "mfma" and vw & c["r"]: need = 2
        if p["op"] in TRANS and c["kind"] in ("valu", "vmem", "ds") and c["op"] not in TRANS and vw & c["r"]: need = max(need, 1)
        if c["op"] in ("v_readfirstlane_b32", "v_readlane_b32") and vw & c["r"]: need = max(need, 1)
        if c["kind"] == "valu" and sw & c["r"]: need = 2
        if c["kind"] == "salu" and sw & c["r"]: need = max(need, 0)
        if c["kind"] == "vmem" and sw & c["r"]: need = 5
    if p["kind"] == "mfma":
        if c["kind"] in ("valu", "vmem", "ds") and p["w"] & (c["r"] | c["w"]): need = 8
        if c["kind"] == "mfma" and p["w"] & (c["r"] - c["c"]): need = 8
        if c["kind"] == "mfma" and (p["w"] & c["c"]) and p["w"] != c["c"]: need = 6
        if c["kind"] == "valu" and p["c"] & c["w"]: need = max(need, 3)
    if p["kind"] == "salu" and ("s", "m0") in p["w"] and c.get("lds"): need = 1
    if p["op"] == "buffer_store_dwordx4" and c["kind"] in ("valu", "mfma") and p["data"] & c["w"]: need = 2
    return need
def trim_nops(txt):
    L = txt.split("\n")
    idx = [i for i, l in enumerate(L) if (l.startswith("  ") and not l.strip().startswith(".")) or (l.endswith(":") and not l.startswith(";"))]
    I = [parse(L[i]) if L[i].startswith("  ") else dict(op="label", txt=L[i], w=set(), r=set(), c=set(), kind="label") for i in idx]
    saved = 0
    for n, x in enumerate(I):
        if x["op"] != "s_nop": continue
        lo, hi = max(0, n - 10), min(len(I), n + 11)
        if any(y["kind"] == "label" or "branch" in y["op"] for y in I[lo:hi]): continue
        req = 0
        db = 0
        for j in range(n - 1, lo - 1, -1):
            da = 0
            for m in range(n + 1, hi):
                req = max(req, need_of(I[j], I[m]) - db - da)
                da += states(I[m]) if I[m]["op"] != "dead" else 0
            db += states(I[j]) if I[j]["op"] != "dead" else 0
        have = states(x)
        if req < have:
            saved += have - req
            if req <= 0: x["op"] = "dead"; L[idx[n]] = None
            else: x["txt"] = f"s_nop {req-1}"; L[idx[n]] = f"  s_nop {req-1}"
    return "\n".join(l for l in L if l is not None), saved
```

```python
import sys
from asmlib import *
from gemm import *
from layout import *
LOG2E = 1.4426950408889634
P_X, P_WQKV, P_WPHI, P_WO, P_W1, P_W3, P_W2, P_OUT, P_WS = 4, 6, 8, 10, 14, 16, 18, 24, 28
P_DBG, S_MB, S_MO = 96, 77, 79
P_C, P_WMOD = 12, 98
S_WAVE, S_XCD, S_IDX = 3, 30, 31
SRD_W, SRD_T, SRD_A, SRD_B, SRD_C, SRD_D, SRD_F = 32, 36, 40, 44, 48, 52, 56
S_KW, S_KT, S_WB, S_ROT, S_TMP, S_ROT2 = 60, 62, 76, 77, 78, 79
S_RB1, S_HP, S_RB2, S_NT, S_RB3, S_FT = 26, 27, 26, 27, 22, 23
S_R8, S_R4 = 20, 21
VSTAMP = 255
L_WPH, L_UTC = 110592, 105472
L_UT3, L_MV, L_R2 = 114688, 128000, 129792
LDS_TOTAL = 163584

class Mega(Kernel):
    nst = 0
    only = None
    def stamp(self, name=""):
        if not self.instr: return
        if self.only is not None and not any(name.startswith(o) for o in self.only): return
        if self.only is None and name[:3] in ("kp ", "qp "): return
        self("s_waitcnt lgkmcnt(0)\ns_memrealtime s[0:1]\ns_waitcnt lgkmcnt(0)")
        self(f"v_writelane_b32 v{VSTAMP}, s0, {self.nst}")
        self("s_nop 3\ns_memtime s[0:1]\ns_waitcnt lgkmcnt(0)")
        self(f"v_writelane_b32 v{VSTAMP}, s0, {self.nst + 32}")
        self.names.append(name); self.nst += 1

def lane_id(k, v):
    k(f"v_mbcnt_lo_u32_b32 v{v}, -1, 0\nv_mbcnt_hi_u32_b32 v{v}, -1, v{v}")

def code_prefetch_setup(k, name, s_pc=100):
    lab = k.label("pc")
    k(f"s_getpc_b64 s[{s_pc}:{s_pc+1}]")
    k(f"{lab}:")
    k(f"s_sub_u32 s{s_pc}, s{s_pc}, {lab}-{name}\ns_subb_u32 s{s_pc+1}, s{s_pc+1}, 0")
def code_prefetch_txt(name, v_l16, vt, s_tmp, s_idx=S_IDX, s_wave=S_WAVE, s_pc=100, junk="a232"):
    return [f"s_lshl_b32 s{s_tmp}, s{s_idx}, 2", f"s_add_u32 s{s_tmp}, s{s_tmp}, s{s_wave}", f"s_lshl_b32 s{s_tmp}, s{s_tmp}, 10",
            f"v_add_u32 v{vt}, s{s_tmp}, v{v_l16}", f"v_min_u32 v{vt}, {name}_end-{name}-4, v{vt}",
            f"global_load_dword {junk}, v{vt}, s[{s_pc}:{s_pc+1}]"]

def count_vm(k, mark):
    return sum(1 for x in k.L[mark:] if is_vm(x))
def publish(k, s_off, vt, mark=None):
    k(f"v_mov_b32 v{vt}, 1\nv_mov_b32 v{vt+1}, 0")
    n = 0 if mark is None else count_vm(k, mark)
    assert n < 64
    k(f"s_waitcnt vmcnt({n})")
    k(f"buffer_store_dword v{vt}, v{vt+1}, {sr(SRD_F,4)}, s{s_off} offen sc1")

def spin(k, loads, regs, vt, s_cnt=96):
    top, ok = k.label("poll"), k.label("ok")
    k(f"s_mov_b32 s{s_cnt}, 0")
    k(f"{top}:")
    for x in loads: k(x)
    k("s_waitcnt vmcnt(0)")
    if len(regs) == 1: k(f"v_cmp_eq_u32 vcc, 0, v{regs[0]}")
    else:
        k(f"v_min_u32 v{vt}, v{regs[0]}, v{regs[1]}")
        for x in regs[2:]: k(f"v_min_u32 v{vt}, v{vt}, v{x}")
        k(f"v_cmp_eq_u32 vcc, 0, v{vt}")
    k(f"s_add_u32 s{s_cnt}, s{s_cnt}, 1")
    k(f"s_cmp_eq_u64 vcc, 0\ns_cbranch_scc1 {ok}")
    k(f"s_sleep {SLEEP}\ns_cmp_lt_u32 s{s_cnt}, 0x200000\ns_cbranch_scc1 {top}")
    k(f"{ok}:")

def wait_flags(k, polls, vt, s_cnt=96):
    top, ok = k.label("poll"), k.label("ok")
    k(f"s_mov_b32 s{s_cnt}, 0")
    k(f"{top}:")
    r = vt
    regs = []
    for va, so, ndw in polls:
        if ndw == 4: r = (r + 1) // 2 * 2
        k(f"buffer_load_dword{'x4' if ndw == 4 else ''} {vr(r,ndw)}, v{va}, {sr(SRD_F,4)}, s{so} offen sc1")
        regs += list(range(r, r + ndw)); r += ndw
    k("s_waitcnt vmcnt(0)")
    for x in regs[1:]: k(f"v_min_u32 v{regs[0]}, v{regs[0]}, v{x}")
    k(f"v_cmp_eq_u32 vcc, 0, v{regs[0]}")
    k(f"s_add_u32 s{s_cnt}, s{s_cnt}, 1")
    k(f"s_cmp_eq_u64 vcc, 0\ns_cbranch_scc1 {ok}")
    k(f"s_sleep {SLEEP}\ns_cmp_lt_u32 s{s_cnt}, 0x200000\ns_cbranch_scc1 {top}")
    k(f"{ok}:")

def staged_wait(k, c, T_, v_addr, s_off, vf, prod_of, dup16=False, skip_first=0, s_m=97, pub=None):
    ld = f"buffer_load_dword v{vf}, v{v_addr}, {sr(SRD_F,4)}, s{s_off} offen sc1"
    if T_ is None:
        spin(k, [ld], [vf], 0); return
    k(f"s_mov_b32 s{s_m}, 0")
    for kt in range(skip_first, T_):
        for x in c.pos_txt(80, kt): k(x)
        for x in prod_of(80, 81): k(x)
        k(f"s_or_b32 s{s_m}, s{s_m}, s81")
    if dup16: k(f"s_lshl_b32 s81, s{s_m}, 16\ns_or_b32 s{s_m}, s{s_m}, s81")
    top, ok = k.label("poll"), k.label("ok")
    if pub:
        mk = len(k.L); k(ld); publish(k, pub[0], pub[1], mk)
        k("s_waitcnt vmcnt(1)")
        k(f"v_cmp_eq_u32 vcc, 0, v{vf}\ns_nop 0")
        k(f"s_and_b32 s81, vcc_lo, s{s_m}\ns_cbranch_scc0 {ok}")
    k(f"s_mov_b32 s96, 0\n{top}:")
    k(ld)
    k("s_waitcnt vmcnt(0)")
    k(f"v_cmp_eq_u32 vcc, 0, v{vf}")
    k("s_add_u32 s96, s96, 1")
    k(f"s_and_b32 s81, vcc_lo, s{s_m}\ns_cbranch_scc0 {ok}")
    k(f"s_sleep {SLEEP}\ns_cmp_lt_u32 s96, 0x200000\ns_cbranch_scc1 {top}")
    k(f"{ok}:")
    add_gate(k, c, T_, ld, vf)
def add_gate(k, c, tile, ld, vf):
    m = Txt(); m.label = k.label
    okl = k.label("gok")
    m(f"v_cmp_eq_u32 vcc, 0, v{vf}\ns_cmp_eq_u64 vcc, 0\ns_cbranch_scc1 {okl}")
    spin(m, [ld], [vf], 0)
    m(f"{okl}:")
    c.gates = list(c.gates) + [(tile, [VM(ld, ("gate", tile))], [WVM([("gate", tile)]), T("\n".join(m.L))])]
one_prod = lambda sp, st: [f"s_lshl_b32 s{st}, 1, s{sp}"]

def allreduce_q(k, op, x, tmp):
    k(f"v_mov_b32 v{tmp}, v{x}\ns_nop 1")
    k(f"v_permlane32_swap_b32 v{x}, v{tmp}")
    k(f"s_nop 1\n{op} v{x}, v{x}, v{tmp}")
    k(f"v_mov_b32 v{tmp}, v{x}\ns_nop 1")
    k(f"v_permlane16_swap_b32 v{x}, v{tmp}")
    k(f"s_nop 1\n{op} v{x}, v{x}, v{tmp}")

def treduce4(k, op, A):
    a, b, c, d = A
    k("s_nop 1")
    k(f"v_permlane32_swap_b32 v{a}, v{b}\nv_permlane32_swap_b32 v{c}, v{d}")
    k("s_nop 1")
    k(f"{op} v{a}, v{a}, v{b}\n{op} v{c}, v{c}, v{d}")
    k("s_nop 1")
    k(f"v_permlane16_swap_b32 v{a}, v{c}")
    k("s_nop 1")
    k(f"{op} v{a}, v{a}, v{c}")
    k(f"v_mov_b32 v{c}, v{a}")
    k("s_nop 1")
    k(f"v_permlane16_swap_b32 v{a}, v{c}")
    k("s_nop 1")
    k(f"v_mov_b32 v{b}, v{a}\nv_mov_b32 v{d}, v{c}")
    k("s_nop 1")
    k(f"v_permlane32_swap_b32 v{a}, v{b}\nv_permlane32_swap_b32 v{c}, v{d}")
    k("s_nop 1")

def treduce4x2(k, ops, As):
    A, B = Txt(), Txt()
    treduce4(A, ops[0], As[0]); treduce4(B, ops[1], As[1])
    def split(L):
        out, cur = [], []
        for x in L:
            if x.startswith("s_nop"): out.append(cur); cur = []
            else: cur.append(x)
        out.append(cur); return out
    for a, b in zip(split(A.L), split(B.L)):
        for x in a + b: k(x)
        k("s_nop 0" if len(a) >= 1 else "s_nop 1")

def red8(k, x):
    for m in ("quad_perm:[1,0,3,2]", "quad_perm:[2,3,0,1]", "row_half_mirror"):
        k(f"s_nop 1\nv_add_f32_dpp v{x}, v{x}, v{x} {m} row_mask:0xf bank_mask:0xf")

def round_bf16(k, v):
    k(f"v_cvt_pk_bf16_f32 v{v}, v{v}, v{v}\nv_and_b32 v{v}, 0xffff0000, v{v}")

S_DLA, S_DLB, S_PTMP = 71, 6, 75
def order(c, k, opt, tag, default):
    o = opt.get(tag + "_ord", default)
    c.first_flag = opt.get(tag + "_ff", "")
    c.tag = tag; c.stamp_every = opt.get(tag + "_se", 0)
    c.fine = opt.get(tag + "_fine", opt.get("fine", 0)); c.bar_frac = opt.get("bar_frac", 0.3)
    c.s_rot, c.s_rot2 = S_R8, S_R4
    if o[0] == "lead":
        c.lead_D, c.s_dl = o[1], S_DLA
    else:
        c.wins = win_mask(o[1])
        if o[2]:
            c.s_start = S_HP
            c.s_rot = c.s_rot2 = S_RB3
def common_gemm(c):
    c.srd_w, c.srd_t = SRD_W, SRD_T
    c.s_kw, c.s_kt, c.s_wbase, c.s_ptmp = S_KW, S_KT, S_WB, S_PTMP

def setup_gemm1(k, opt):
    c = Sched(); common_gemm(c)
    NS, R = opt.get("g1_NS", 4), opt.get("g1_R", 4)
    STAGE = 25344
    c.V_RD, c.V_DMA, c.V_TOK, c.LANE, c.L16, c.VT = 96, 98, 102, 104, 105, 106
    V_RD, V_DMA, V_TOK, LANE, L16, VT = c.V_RD, c.V_DMA, c.V_TOK, c.LANE, c.L16, 110
    k(f"v_lshlrev_b32 v{L16}, 4, v{LANE}")
    c.lead_D, c.s_dl = opt.get("D", 0), S_DLA
    if opt.get("uselead", 0): c.lead_init(k, S_R4, 81)
    c.lead_D = None
    order(c, k, opt, "g1", ["win", [8, 8], 0])
    k(f"s_lshr_b32 s80, s{S_WAVE}, 1\ns_and_b32 s81, s{S_WAVE}, 1")
    k(f"v_lshrrev_b32 v{VT+1}, 3, v{LANE}")
    k(f"v_and_b32 v{VT+2}, 4, v{VT+1}")
    k(f"v_bfe_u32 v{VT+3}, v{VT+1}, 1, 1\nv_or_b32 v{VT+2}, v{VT+2}, v{VT+3}")
    k(f"v_and_b32 v{VT+3}, 1, v{VT+1}\nv_lshl_or_b32 v{VT+2}, v{VT+3}, 1, v{VT+2}")
    k(f"v_mul_u32_u24 v{VT+2}, {4*6144}, v{VT+2}")
    k(f"v_and_b32 v{VT+3}, 7, v{LANE}\nv_lshl_add_u32 v{VT+2}, v{VT+3}, 4, v{VT+2}")
    k("s_lshl_b32 s82, s80, 5\ns_lshl_b32 s83, s81, 1\ns_add_u32 s82, s82, s83\ns_mul_i32 s82, s82, 6144")
    k(f"s_lshl_b32 s83, s{S_HP}, 7\ns_add_u32 s82, s82, s83")
    k(f"v_add_u32 v{V_DMA}, s82, v{VT+2}")
    k(f"v_add_u32 v{V_DMA+1}, 6144, v{V_DMA}\nv_add_u32 v{V_DMA+2}, 4096, v{V_DMA}\nv_add_u32 v{V_DMA+3}, {6144+4096}, v{V_DMA}")
    k(f"v_bfe_u32 v{VT+1}, v{LANE}, 2, 2\nv_mul_u32_u24 v{VT+1}, 1056, v{VT+1}")
    k(f"v_lshrrev_b32 v{VT+2}, 5, v{LANE}\nv_lshl_add_u32 v{VT+1}, v{VT+2}, 9, v{VT+1}")
    k(f"v_bfe_u32 v{VT+2}, v{LANE}, 4, 1\nv_lshl_add_u32 v{VT+1}, v{VT+2}, 7, v{VT+1}")
    k(f"v_and_b32 v{VT+3}, 3, v{LANE}\nv_lshl_add_u32 v{V_RD}, v{VT+3}, 3, v{VT+1}")
    k(f"v_add_u32 v{V_RD+1}, {2*STAGE}, v{V_RD}")
    k(f"s_lshl_b32 s82, s{S_RB1}, 3\ns_lshl_b32 s83, s{S_WAVE}, 1\ns_add_u32 s82, s82, s83\ns_lshl_b32 s82, s82, 15")
    k(f"v_add_u32 v{V_TOK}, s82, v{L16}\nv_add_u32 v{V_TOK+1}, 0x8000, v{V_TOK}")
    k(f"s_mul_i32 s{S_WB}, s80, 4224\ns_mul_i32 s82, s81, 2112\ns_add_u32 s{S_WB}, s{S_WB}, s82")
    c.NB, c.TB, c.KS, c.SPK, c.KT, c.NS, c.R = 12, 2, 1, 2, 16, NS, R
    c.acc = lambda b, t: vr((b * 2 + t) * 4, 4)
    c.tf = lambda slot, ks, t: 96 + (slot * 2 + t) * 4
    c.rd = lambda sl, b, sub, r: (V_RD + sl // 2, (sl % 2) * STAGE + (b // 4) * 8448 + sub * 4224 + r * 256 + (b % 4) * 32)
    c.slot_addr = lambda sl: sl * STAGE
    c.dma = [(V_DMA, 0, 0), (V_DMA + 1, 1056, 0), (V_DMA, 8448, 2048), (V_DMA + 1, 8448 + 1056, 2048), (V_DMA + 2, 16896, 0), (V_DMA + 3, 16896 + 1056, 0)]
    c.v_tok = [V_TOK, V_TOK + 1]
    c.w_stride = 64 * 6144
    c.drop = opt.get("g1_drop", ())
    c.pro_units, c.ramp_rate, c.read_margin = opt.get("g1_pro", 6), opt.get("g1_ramp", 6), opt.get("g1_rm", 6)
    std_sched(c)
    return c

def setup_gemm1s(k, opt):
    c = Sched(); common_gemm(c)
    HS = 8448; STAGE = 2 * HS
    c.V_RD, c.V_DMA, c.V_TOK, c.LANE, c.L16, c.VT = 96, 98, 102, 104, 105, 106
    V_RD, V_DMA, V_TOK, LANE, L16, VT = c.V_RD, c.V_DMA, c.V_TOK, c.LANE, c.L16, 110
    k(f"v_lshlrev_b32 v{L16}, 4, v{LANE}")
    order(c, k, opt, "g1", ["win", [8, 8], 0])
    k(f"s_lshr_b32 s80, s{S_WAVE}, 1\ns_and_b32 s81, s{S_WAVE}, 1")
    k(f"v_lshrrev_b32 v{VT+1}, 3, v{LANE}")
    k(f"v_and_b32 v{VT+2}, 4, v{VT+1}")
    k(f"v_bfe_u32 v{VT+3}, v{VT+1}, 1, 1\nv_or_b32 v{VT+2}, v{VT+2}, v{VT+3}")
    k(f"v_and_b32 v{VT+3}, 1, v{VT+1}\nv_lshl_or_b32 v{VT+2}, v{VT+3}, 1, v{VT+2}")
    k(f"v_mul_u32_u24 v{VT+2}, {4*6144}, v{VT+2}")
    k(f"v_and_b32 v{VT+3}, 7, v{LANE}\nv_lshl_add_u32 v{VT+2}, v{VT+3}, 4, v{VT+2}")
    k("s_lshl_b32 s82, s80, 5\ns_lshl_b32 s83, s81, 1\ns_add_u32 s82, s82, s83\ns_mul_i32 s82, s82, 6144")
    k(f"s_lshl_b32 s83, s{S_HP}, 7\ns_add_u32 s82, s82, s83")
    k(f"v_add_u32 v{V_DMA}, s82, v{VT+2}")
    k(f"v_add_u32 v{V_DMA+1}, 6144, v{V_DMA}\nv_add_u32 v{V_DMA+2}, 2048, v{V_DMA}\nv_add_u32 v{V_DMA+3}, {6144+2048}, v{V_DMA}")
    k(f"v_bfe_u32 v{VT+1}, v{LANE}, 2, 2\nv_mul_u32_u24 v{VT+1}, 1056, v{VT+1}")
    k(f"v_lshrrev_b32 v{VT+2}, 5, v{LANE}\nv_lshl_add_u32 v{VT+1}, v{VT+2}, 9, v{VT+1}")
    k(f"v_bfe_u32 v{VT+2}, v{LANE}, 4, 1\nv_lshl_add_u32 v{VT+1}, v{VT+2}, 7, v{VT+1}")
    k(f"v_and_b32 v{VT+3}, 3, v{LANE}\nv_lshl_add_u32 v{V_RD}, v{VT+3}, 3, v{VT+1}")
    k(f"v_add_u32 v{V_RD+1}, {2*STAGE}, v{V_RD}")
    k(f"s_lshl_b32 s82, s{S_RB1}, 3\ns_lshl_b32 s83, s{S_WAVE}, 1\ns_add_u32 s82, s82, s83\ns_lshl_b32 s82, s82, 15")
    k(f"v_add_u32 v{V_TOK}, s82, v{L16}\nv_add_u32 v{V_TOK+1}, 0x8000, v{V_TOK}")
    k(f"s_mul_i32 s{S_WB}, s80, 4224\ns_mul_i32 s82, s81, 2112\ns_add_u32 s{S_WB}, s{S_WB}, s82")
    c.NB, c.TB, c.KS, c.SPK, c.KT, c.NS, c.R = 8, 2, 1, 2, 16, 4, 32
    c.acc = lambda b, t: vr(32 + (b * 2 + t) * 4, 4)
    c.tf = lambda slot, ks, t: (slot * 2 + t) * 4
    c.rd = lambda sl, b, sub, r: (V_RD + sl // 2, (sl % 2) * STAGE + (b // 4) * HS + sub * 4224 + r * 256 + (b % 4) * 32)
    c.slot_addr = lambda sl: sl * STAGE
    c.dma = [(V_DMA + 2, 0, 0), (V_DMA + 3, 1056, 0), (V_DMA + 2, HS, 2048), (V_DMA + 3, HS + 1056, 2048)]
    c.v_tok = [V_TOK, V_TOK + 1]
    c.w_stride = 64 * 6144
    c.drop = opt.get("g1_drop", ())
    c.pro_units, c.ramp_rate, c.read_margin, c.lookahead = opt.get("g1_pro", 8), opt.get("g1_ramp", 5), 4, opt.get("g1_la", 4)
    c.wreg, c.wbase = vr, 128
    std_sched(c)
    q = Sched(); common_gemm(q)
    q.KT = 16; order(q, k, opt, "g1", ["win", [8, 8], 0]); q.tag = "g1b"; q.stamp_every = opt.get("g1b_se", 0)
    q.s_kw = 70
    QS = [67584 + i * HS for i in range(5)] + [L_R2 + i * HS for i in range(4)] + [i * HS for i in range(7)]
    q.Q1, q.Q2 = V_RD + 1, V_TOK
    def base(kt): return (q.Q1, 67584) if kt < 5 else ((q.Q2, L_R2) if kt < 9 else (V_RD, 0))
    for kt in range(16):
        sw = q.s_kw + kt % 2
        q.stage_units[kt] = [q.pos_items(sw, kt, c.w_stride) + [T(f"s_add_u32 m0, s{S_WB}, {QS[kt]}"), VM(f"buffer_load_dwordx4 v{V_DMA}, {sr(SRD_W,4)}, s{sw} offen lds", ("dma", kt))],
                             [T(f"s_add_u32 m0, s{S_WB}, {QS[kt] + 1056}"), VM(f"buffer_load_dwordx4 v{V_DMA+1}, {sr(SRD_W,4)}, s{sw} offen lds", ("dma", kt))]]
        q.stage_slot[kt] = kt
        va, b0 = base(kt)
        frags = [(va, QS[kt] - b0 + sub * 4224 + b * 32, QS[kt] - b0 + sub * 4224 + 256 + b * 32, [(vr((b * 2 + t) * 4, 4), ((kt * 2 + sub) * 2 + t) * 4) for t in range(2)]) for sub in range(2) for b in range(4)]
        q.steps.append(dict(frags=frags, stages=[kt] if kt != 9 else list(range(9, 16)), toks=[]))
    q.wf = lambda buf, j: (buf * 8 + j) * 4
    q.wreg, q.wbase = vr, 128
    q.pub0 = set(range(9)); q.pro_units = opt.get('q_pro', 2); q.ramp_rate = opt.get('q_ramp', 3); q.read_margin = 4; q.drop = c.drop
    c.q = q
    return c

def merge(a, b, ratio):
    out, b = [], list(b)
    for i, x in enumerate(a):
        out.append(x)
        if b and i % ratio == ratio - 1: out.append(b.pop(0))
    return out + b

def phase_gemm1s(k, c, opt):
    LANE, L16, VT = c.LANE, c.L16, c.VT
    q = c.q
    PHK, VV, SH = 0, 34816, 114688
    p = Txt()
    srd(p, SRD_A, P_WPHI, H * 2048)
    srd(p, SRD_B, P_WS, 2 << 20, WS_KVP)
    srd(p, SRD_C, P_WS, 128 << 10, WS_ZP)
    A_PW, A_VW, A_PR, A_VR, A_WR = 110, 111, 112, 113, 114
    p(f"s_lshr_b32 s80, s{S_WAVE}, 1\ns_and_b32 s81, s{S_WAVE}, 1")
    p(f"v_and_b32 v{VT}, 15, v{LANE}\ns_lshl_b32 s82, s{S_WAVE}, 5\nv_add_u32 v{VT}, s82, v{VT}")
    p(f"v_lshrrev_b32 v{VT+1}, 4, v{LANE}\nv_lshlrev_b32 v{VT+1}, 3, v{VT+1}")
    p(f"v_mul_u32_u24 v{A_PW}, 136, v{VT}\nv_add_u32 v{A_PW}, v{A_PW}, v{VT+1}")
    p(f"v_mul_u32_u24 v{A_VW}, 72, v{VT}\nv_add_u32 v{A_VW}, v{A_VW}, v{VT+1}")
    p(f"v_lshrrev_b32 v{VT}, 2, v{LANE}\nv_and_b32 v{VT+1}, 3, v{LANE}\nv_lshlrev_b32 v{VT+1}, 3, v{VT+1}")
    p(f"s_mul_i32 s82, s80, 17408\ns_lshl_b32 s83, s81, 6\ns_add_u32 s82, s82, s83")
    p(f"v_mul_u32_u24 v{A_PR}, 136, v{VT}\nv_add_u32 v{A_PR}, v{A_PR}, v{VT+1}\nv_add_u32 v{A_PR}, s82, v{A_PR}")
    p(f"s_mul_i32 s82, s80, 9216")
    p(f"v_mul_u32_u24 v{A_VR}, 72, v{VT}\nv_add_u32 v{A_VR}, v{A_VR}, v{VT+1}\nv_add_u32 v{A_VR}, s82, v{A_VR}")
    p(f"v_lshl_add_u32 v{A_WR}, v{VT}, 6, v{VT+1}\nv_add_u32 v{A_WR}, {L_WPH}, v{A_WR}")
    ONES, SEL = 116, 120
    for j in range(4): p(f"v_mov_b32 v{ONES+j}, 0x3f803f80")
    p(f"v_bfe_u32 v{VT}, v{LANE}, 2, 2\nv_lshrrev_b32 v{VT+1}, 4, v{LANE}")
    p(f"v_cmp_eq_u32 vcc, v{VT}, v{VT+1}")
    p(f"v_and_b32 v{VT}, 1, v{LANE}\nv_lshlrev_b32 v{VT}, 4, v{VT}\nv_mov_b32 v{VT+1}, 0x3f80\nv_lshlrev_b32 v{VT+1}, v{VT}, v{VT+1}")
    p(f"v_cndmask_b32 v{VT+1}, 0, v{VT+1}, vcc")
    p(f"v_and_b32 v{VT}, 2, v{LANE}\nv_cmp_eq_u32 vcc, 0, v{VT}")
    for j in (0, 1, 4, 5): p(f"v_mov_b32 v{SEL+j}, 0")
    p(f"v_cndmask_b32 v{SEL+2}, 0, v{VT+1}, vcc\nv_cndmask_b32 v{SEL+3}, v{VT+1}, 0, vcc")
    p(f"s_mov_b32 s94, {LOG2E!r}\ns_mov_b32 s95, {LOG2E!r}")
    p(f"s_lshl_b32 s84, s{S_HP}, 12\ns_lshl_b32 s85, s{S_WAVE}, 10\ns_add_u32 s84, s84, s85\ns_add_u32 s85, s85, {L_WPH}")
    c.pre_loop_txt = p.L
    c.late[4] = ["s_mov_b32 m0, s85", f"buffer_load_dwordx4 v{L16}, {sr(SRD_A,4)}, s84 offen lds"]
    for st_ in opt.get("cp1", [20]): c.late.setdefault(st_, []).extend(code_prefetch_txt(k.name, L16, 254, 80, junk="v31"))
    for st_ in opt.get("cp1b", []): q.late.setdefault(st_, []).extend(code_prefetch_txt(k.name, L16, 254, 80, junk="v252"))
    ts = opt.get("mt_step", None)
    if ts is not None:
        c.late.setdefault(ts, []).extend([f"v_mul_u32_u24 v254, 12288, v{LANE}", f"buffer_load_dword v31, v254, {sr(SRD_D,4)}, s{S_MB} offen"])
        if opt.get("wo_touch", 1):
            c.late[ts].extend([f"s_lshl_b32 s80, s2, 2", f"s_add_u32 s80, s80, s{S_WAVE}", "s_lshl_b32 s80, s80, 11",
                               f"v_and_b32 v254, 15, v{LANE}", "v_lshlrev_b32 v254, 7, v254", "v_add_u32 v254, s80, v254", f"global_load_dword v31, v254, s[{P_WO}:{P_WO+1}]"])
    nq = opt.get("q_in", 10)
    for j in range(nq // 2): c.late.setdefault(32 - nq // 2 + j, []).extend(q.prefetch_txt(2))
    wph_reads = lambda reg, b0: [f"ds_read_b64_tr_b16 {reg(b0+(hh*2+fb)*4+2*r,2)}, v{A_WR} offset:{hh*2048+r*1024+fb*32}" for hh in range(2) for fb in range(2) for r in range(2)]
    c.last_reads = wph_reads(vr, 0)
    c.run(k)
    k.stamp("g1 loop done")
    A = lambda b, t: (b * 2 + t) * 4
    BF, P1, P2, MX, MN, EK = 126, 142, 174, 206, 214, 222
    groups = [(hh, t) for hh in range(2) for t in range(2)]
    def fm_part1(k, seg, ph):
        for g, (hh, t) in enumerate(groups):
            for db in range(2):
                a = A(seg * 4 + hh * 2 + db, t)
                k(f"v_cvt_pk_bf16_f32 v{BF+g*4+db*2}, v{a}, v{a+1}\nv_cvt_pk_bf16_f32 v{BF+g*4+db*2+1}, v{a+2}, v{a+3}")
        k("s_nop 1")
        for g, (hh, t) in enumerate(groups):
            for fb in range(2):
                k(f"{MF} {vr(P1+g*8+fb*4,4)}, {ph(hh*2+fb)}, {vr(BF+g*4,4)}, 0")
    def fm_part2(k):
        for op3, op2, M in (("v_max3_f32", "v_max_f32", MX), ("v_min3_f32", "v_min_f32", MN)):
            for g in range(4):
                b = P1 + g * 8
                k(f"{op3} v{M+2*g}, v{b}, v{b+1}, v{b+2}\n{op3} v{M+2*g}, v{M+2*g}, v{b+3}, v{b+4}\n{op3} v{M+2*g}, v{M+2*g}, v{b+5}, v{b+6}\n{op2} v{M+2*g}, v{M+2*g}, v{b+7}")
        treduce4x2(k, ("v_max_f32", "v_min_f32"), ([MX + 2 * g for g in range(4)], [MN + 2 * g for g in range(4)]))
        for g in range(4):
            k(f"v_mul_f32 v{MX+2*g}, {-LOG2E!r}, v{MX+2*g}\nv_mul_f32 v{MN+2*g}, {LOG2E!r}, v{MN+2*g}")
    def fm_part3(k, E, gs_=range(4)):
        for g in gs_:
            for j in range(4):
                b = g * 8 + 2 * j
                k(f"v_pk_fma_f32 {vr(P2+b,2)}, {vr(P1+b,2)}, s[94:95], {vr(MN+2*g,2)} op_sel_hi:[1,1,0] neg_lo:[1,0,0] neg_hi:[1,0,0]")
                k(f"v_pk_fma_f32 {vr(P1+b,2)}, {vr(P1+b,2)}, s[94:95], {vr(MX+2*g,2)} op_sel_hi:[1,1,0]")
            for j in range(8): k(f"v_exp_f32 v{P1+g*8+j}, v{P1+g*8+j}")
            for j in range(8): k(f"v_exp_f32 v{P2+g*8+j}, v{P2+g*8+j}")
            k("s_nop 0")
            for sg, PP in enumerate((P1, P2)):
                for j in range(4): k(f"v_cvt_pk_bf16_f32 v{E+(g*2+sg)*4+j}, v{PP+g*8+2*j}, v{PP+g*8+2*j+1}")
    mark0 = len(k.L)
    k("s_waitcnt lgkmcnt(0)\ns_nop 7")
    fm_part1(k, 1, lambda i: vr(i * 4, 4))
    k("s_barrier")
    for g, (hh, t) in enumerate(groups):
        for db in range(2):
            a = A(8 + hh * 2 + db, t)
            k(f"v_cvt_pk_bf16_f32 v{a}, v{a}, v{a+1}\nv_cvt_pk_bf16_f32 v{a+1}, v{a+2}, v{a+3}")
            k(f"ds_write_b64 v{A_VW}, {vr(a,2)} offset:{VV + hh*9216 + t*16*72 + db*32}")
    fm_part2(k)
    grp = []
    for j in range(18 - q.pre_dma):
        t_ = q.prefetch_txt(1); grp.append(t_[:-1] + ["s_nop 0", t_[-1]])
    sprinkle(k, mark0, grp, skip=12)
    k.stamp("kp part2")
    fm_part3(k, EK)
    k.stamp("kp part3")
    SM = 32
    k("s_nop 1")
    for i in range(8): k(f"{MF} {vr(SM+4*i,4)}, {vr(ONES,4)}, {vr(EK+4*i,4)}, 0")
    k(f"v_add_u32 v{q.Q1}, 67584, v{c.V_RD}\nv_add_u32 v{q.Q2}, {L_R2}, v{c.V_RD}")
    k("s_nop 5")
    for i in range(8): k(f"v_rcp_f32 v{SM+4*i}, v{SM+4*i}")
    for g, (hh, t) in enumerate(groups):
        for sg, PP in enumerate((P1, P2)):
            for j in range(4):
                k(f"v_pk_mul_f32 {vr(PP+g*8+2*j,2)}, {vr(PP+g*8+2*j,2)}, {vr(SM+(g*2+sg)*4,2)} op_sel_hi:[1,0]")
            for fb in range(2):
                b = PP + g * 8 + fb * 4
                k(f"v_cvt_pk_bf16_f32 v{b}, v{b}, v{b+1}\nv_cvt_pk_bf16_f32 v{b+1}, v{b+2}, v{b+3}")
                k(f"ds_write_b64 v{A_PW}, {vr(b,2)} offset:{PHK + hh*17408 + t*16*136 + sg*64 + fb*32}")
    k.stamp("kp norm")
    k("s_waitcnt lgkmcnt(0)\ns_barrier")
    k.stamp("kp bar")
    FR = 190
    for s_ in range(4):
        for r in range(2):
            for fb in range(2): k(f"ds_read_b64_tr_b16 {vr(FR+s_*16+fb*4+2*r,2)}, v{A_PR} offset:{PHK + (32*s_+16*r)*136 + fb*32}")
            for db in range(2): k(f"ds_read_b64_tr_b16 {vr(FR+s_*16+8+db*4+2*r,2)}, v{A_VR} offset:{VV + (32*s_+16*r)*72 + db*32}")
    k(f"s_lshl_b32 s82, s{S_HP}, 2\ns_add_u32 s82, s82, s{S_WAVE}")
    k("s_lshl_b32 s86, s82, 15")
    k(f"s_lshl_b32 s84, s{S_RB1}, 10\ns_add_u32 s84, s84, s86\ns_add_u32 s85, s84, 16384")
    k("s_lshl_b32 s90, s82, 11")
    k(f"s_lshl_b32 s91, s82, {FS+4}\ns_add_u32 s91, s91, {F_KV}\ns_lshl_b32 s92, s{S_RB1}, {FS}\ns_add_u32 s92, s92, s91")
    k(f"v_and_b32 v{VT}, 15, v{LANE}\nv_cmp_eq_u32 vcc, s{S_RB1}, v{VT}")
    KV, ZZ = 64, 80
    for s_ in range(4):
        k(f"s_waitcnt lgkmcnt({min(15, 24 - 8*s_)})" if s_ < 3 else "s_waitcnt vmcnt(0) lgkmcnt(0)\ns_barrier")
        for fb in range(2):
            for db in range(2):
                d = vr(KV + (db * 2 + fb) * 4, 4)
                k(f"{MF} {d}, {vr(FR+s_*16+fb*4,4)}, {vr(FR+s_*16+8+db*4,4)}, {'0' if s_ == 0 else d}")
            d = vr(ZZ + fb * 4, 4)
            k(f"{MF} {d}, {vr(FR+s_*16+fb*4,4)}, {vr(ONES,4)}, {'0' if s_ == 0 else d}")
    k(f"v_lshlrev_b32 v{VT}, {FS}, v{VT}\nv_mov_b32 v{VT+1}, 1\nv_mov_b32 v{VT+2}, 0")
    k("s_nop 5")
    for db in range(2):
        for j in range(4): k(f"v_cvt_pk_bf16_f32 v{88+db*4+j}, v{KV+db*8+2*j}, v{KV+db*8+2*j+1}")
    k(f"buffer_store_dwordx4 {vr(88,4)}, v{L16}, {sr(SRD_B,4)}, s84 offen sc1")
    k(f"buffer_store_dwordx4 {vr(92,4)}, v{L16}, {sr(SRD_B,4)}, s85 offen sc1")
    k("s_and_saveexec_b64 s[96:97], vcc")
    k(f"buffer_store_dwordx4 {vr(ZZ,4)}, v{L16}, {sr(SRD_C,4)}, s90 offen sc1")
    k(f"buffer_store_dwordx4 {vr(ZZ+4,4)}, v{L16}, {sr(SRD_C,4)}, s90 offen offset:1024 sc1")
    k("s_mov_b64 exec, s[96:97]")
    k.stamp("kv stored")
    KV, ZZ, MW, MC = 72, 88, 32, 64
    q.late[opt.get("kv_ps", 1)] = [WVM([("pre", 0)]), f"buffer_store_dword v{VT+1}, v{VT+2}, {sr(SRD_F,4)}, s92 offen sc1"]
    gs = opt.get("kv_gs", 9)
    ld = f"buffer_load_dword v253, v{VT}, {sr(SRD_F,4)}, s91 offen sc1"
    m = Txt(); m.label = k.label
    okl = k.label("gok")
    m(f"v_cmp_eq_u32 vcc, 0, v253\ns_cmp_eq_u64 vcc, 0\ns_cbranch_scc1 {okl}")
    spin(m, [ld], [253], 0)
    m(f"{okl}:")
    q.late[gs - 2] = [VM(ld, ("kvf", 0))]
    gl = [f"buffer_load_dwordx4 {vr(ZZ,4)}, v{L16}, {sr(SRD_C,4)}, s90 offen sc1", f"buffer_load_dwordx4 {vr(ZZ+4,4)}, v{L16}, {sr(SRD_C,4)}, s90 offen offset:1024 sc1"]
    for i in range(32):
        if i % 4 == 0 and i: gl.append("s_add_u32 s86, s86, 4096")
        gl.append(f"buffer_load_dwordx4 {ar(4*i,4)}, v{L16}, {sr(SRD_B,4)}, s86 offen offset:{(i%4)*1024} sc1")
    n3 = -(-len(gl) // 3)
    q.late[gs] = [WVM([("kvf", 0)]), T("\n".join(m.L))] + gl[:n3]
    q.late[gs + 1] = gl[n3:2*n3]; q.late[gs + 2] = gl[2*n3:]
    t2 = Txt()
    g2 = setup_gemm24(t2, 2, opt, (110, 111, 112, LANE, L16, 98))
    q.late[5] = t2.L[:len(t2.L)//2]; q.late[6] = t2.L[len(t2.L)//2:] + [f"global_load_ushort v{MC+i}, v109, s[{P_C}:{P_C+1}] offset:{i*16}" for i in range(8)]
    assert gs - 2 > 6
    younger = []
    younger += g2.prefetch_txt(8)
    mbl = []
    for i in range(8): mbl += [f"buffer_load_dwordx4 {vr(MW+4*i,4)}, v115, {sr(SRD_D,4)}, s{S_MB} offen", f"s_add_u32 s{S_MB}, s{S_MB}, {8*12288}"]
    mpos = opt.get("mpos", "tail")
    if mpos == "tail": younger += mbl
    ny = sum(1 for x in younger if is_vm(x))
    rest = list(range(gs + 3, 16)); per = -(-len(younger) // len(rest))
    for j, st_ in enumerate(rest): q.late[st_] = younger[j*per:(j+1)*per]
    A_PH = 128
    q.last_reads = wph_reads(ar, A_PH)
    q.run(k)
    k.stamp("g1b done")
    srd(k, SRD_T, P_WS, S * D * 2, WS_O)
    k("s_waitcnt lgkmcnt(0)\ns_nop 3")
    qa = Txt(); fm_part1(qa, 0, lambda i: ar(A_PH + i * 4, 4))
    qa(f"s_waitcnt vmcnt({min(63, ny + 32)})")
    for sh in (8, 4, 2, 1):
        for j in range(8): qa(f"v_add_f32_dpp v{ZZ+j}, v{ZZ+j}, v{ZZ+j} row_ror:{sh} row_mask:0xf bank_mask:0xf")
    for x in qa.L: k(x)
    k.stamp("qp a")
    hs = g2.hs
    qb = Txt(); fm_part2(qb); fm_part3(qb, EK, range(2) if hs else range(4))
    red = []
    for i in range(32):
        db, pp = divmod(i, 16)
        for fb in range(2):
            d = vr(KV + (db * 2 + fb) * 4, 4)
            red.append((f"s_waitcnt vmcnt({ny + 28 - i})\n" if (i % 4 == 0 and fb == 0) else "") + f"{MF} {d}, {vr(SEL + (2 if fb == 0 else 0), 4)}, {ar(4*i,4)}, {'0' if pp == 0 else d}")
    cut = opt.get("q_cut", 150) if not hs else len(qb.L)
    for x in merge(qb.L[:cut], red, 2): k(x)
    if hs:
        k("s_nop 3")
        qb = Txt(); fm_part3(qb, EK, [2]); cut = 0
    k.stamp("qp merged")
    k(f"s_mul_i32 s82, s{S_WAVE}, 3072\ns_add_u32 s82, s82, {SH}")
    k(f"v_add_u32 v{VT+1}, s82, v{L16}\nv_add_u32 v{VT+2}, {SH}, v{L16}")
    k(f"v_and_b32 v{VT}, 1, v{LANE}\nv_cmp_eq_u32 vcc, 0, v{VT}")
    k("s_nop 4")
    for j in range(12): k(f"v_cvt_pk_bf16_f32 v{KV+j}, v{KV+2*j}, v{KV+2*j+1}")
    for j in range(4): k(f"v_cndmask_b32 v{KV+8+j}, v{ONES}, v{KV+8+j}, vcc")
    for j in range(3): k(f"ds_write_b128 v{VT+1}, {vr(KV+4*j,4)} offset:{j*1024}")
    for x in (merge(qb.L[cut:], mbl, 2) if mpos == "q" else qb.L[cut:]): k(x)
    k.stamp("qp rest")
    k("s_waitcnt lgkmcnt(0)\ns_barrier")
    k.stamp("qp bar")
    for i in range(12): k(f"ds_read_b128 {ar(4*i,4)}, v{VT+2} offset:{i*1024}")
    k(f"s_lshl_b32 s82, s{S_RB1}, 3\ns_lshl_b32 s83, s{S_WAVE}, 1\ns_add_u32 s82, s82, s83\ns_lshl_b32 s82, s82, 15")
    k(f"s_lshl_b32 s83, s{S_HP}, 11\ns_add_u32 s82, s82, s83\ns_add_u32 s83, s82, 0x8000")
    k(f"s_lshl_b32 s84, s{S_RB1}, 2\ns_add_u32 s84, s84, s{S_WAVE}\ns_lshl_b32 s84, s84, {FS+4}\ns_lshl_b32 s85, s{S_HP}, {FS}\ns_add_u32 s84, s84, s85\ns_add_u32 s84, s84, {F_O}")
    k("s_waitcnt lgkmcnt(0)")
    NB_ = 126
    def nbase(g): return NB_ + g * 24 if (not hs or g >= 2) else None
    def oregs(g):
        if hs and g < 2: return (0, 12) if g == 0 else (72, 84)
        return (NB_ + g * 24, NB_ + g * 24 + 12)
    def o_mfma(gl):
        for g in gl:
            hh, t = groups[g]
            for sg in range(2):
                for j in range(3):
                    k(f"{MF} {vr(oregs(g)[sg]+4*j,4)}, {ar(((hh*2+sg)*3+j)*4,4)}, {vr(EK+(g*2+sg)*4,4)}, 0")
    def o_fin(gl):
        for g in gl:
            hh, t = groups[g]
            n1, n2 = oregs(g)
            D1, S1, D2, S2 = n1 + 8, n1 + 9, n2 + 8, n2 + 9
            k(f"v_mul_f32 v{n1+10}, v{S1}, v{S2}")
            k(f"v_mul_f32 v{n1+10}, 0x358637bd, v{n1+10}")
            k(f"v_fmac_f32 v{n1+10}, v{D1}, v{S2}\nv_fmac_f32 v{n1+10}, v{D2}, v{S1}")
            k(f"v_rcp_f32 v{n1+10}, v{n1+10}")
            k("s_nop 0")
            k(f"v_mul_f32 v{D1}, v{S2}, v{n1+10}\nv_mul_f32 v{D2}, v{S1}, v{n1+10}")
            for j in range(4): k(f"v_pk_mul_f32 {vr(n1+2*j,2)}, {vr(n1+2*j,2)}, {vr(D1,2)} op_sel_hi:[1,0]")
            for j in range(4): k(f"v_pk_fma_f32 {vr(n1+2*j,2)}, {vr(n2+2*j,2)}, {vr(D2,2)}, {vr(n1+2*j,2)} op_sel_hi:[1,0,1]")
            for j in range(4): k(f"v_cvt_pk_bf16_f32 v{n2+j}, v{n1+2*j}, v{n1+2*j+1}")
            k(f"buffer_store_dwordx4 {vr(n2,4)}, v{L16}, {sr(SRD_T,4)}, s{82+t} offen offset:{hh*1024} sc1")
    if hs:
        o_mfma([0, 1]); k("s_nop 7"); o_fin([0, 1])
        mk0 = len(k.L)
        fm_part3(k, EK, [3])
        k("s_nop 1")
        o_mfma([2, 3]); k("s_nop 7")
        publish(k, 84, VT + 1, mk0)
        k(f"s_add_u32 s95, s84, {F_O2 - F_O}")
        o_fin([2, 3])
    else:
        o_mfma(range(4)); k("s_nop 7"); o_fin(range(4))
    k.stamp("o stored")
    mko = len(k.L)
    g2.V_X = 178
    srd(k, SRD_A, P_X, S * D * 2)
    V_XA = 100
    k(f"v_lshrrev_b32 v{VT+1}, 4, v{LANE}")
    k(f"v_and_b32 v{VT+2}, 15, v{LANE}\nv_lshlrev_b32 v{VT+2}, 11, v{VT+2}\nv_lshl_add_u32 v{V_XA}, v{VT+1}, 3, v{VT+2}")
    k(f"s_lshl_b32 s82, s{S_RB2}, 3\ns_lshl_b32 s83, s{S_WAVE}, 1\ns_add_u32 s82, s82, s83\ns_lshl_b32 s82, s82, 15\ns_lshl_b32 s83, s{S_NT}, 7\ns_add_u32 s82, s82, s83\ns_add_u32 s83, s82, 32768")
    for t in range(2):
        for b in range(4):
            k(f"buffer_load_dwordx2 {vr(g2.V_X+(t*4+b)*2,2)}, v{V_XA}, {sr(SRD_A,4)}, s{82+t} offen offset:{b*32}")
    k.g3 = setup_gemm3_early(k, opt, LANE, 20)
    if not hs: publish(k, 84, VT + 1, mko)
    k.stamp("o published")
    mark1 = len(k.L)
    CU, AU, TT = 0, 16, 24
    for i in range(8): k(f"v_mov_b32 v{CU+2*i}, v{MC+i}")
    silu_block(k, [CU + 2 * i for i in range(8)])
    for i in range(8):
        for d in range(4):
            k(f"v_lshlrev_b32 v{TT}, 16, v{MW+4*i+d}\nv_and_b32 v{TT+1}, 0xffff0000, v{MW+4*i+d}")
            if i == 0: k(f"v_pk_mul_f32 {vr(AU+2*d,2)}, {vr(TT,2)}, {vr(CU,2)} op_sel_hi:[1,0]")
            else: k(f"v_pk_fma_f32 {vr(AU+2*d,2)}, {vr(TT,2)}, {vr(CU+2*i,2)}, {vr(AU+2*d,2)} op_sel_hi:[1,0,1]")
    k("s_nop 1")
    for j in range(4): k(f"v_permlane32_swap_b32 v{AU+j}, v{AU+j+4}")
    k("s_nop 1")
    for j in range(4): k(f"v_add_f32 v{AU+j}, v{AU+j}, v{AU+j+4}")
    k("s_nop 1")
    for j in range(2): k(f"v_permlane16_swap_b32 v{AU+j}, v{AU+j+2}")
    k("s_nop 1")
    for j in range(2): k(f"v_add_f32 v{AU+j}, v{AU+j}, v{AU+j+2}")
    k("s_nop 1")
    for j in range(2): k(f"v_add_f32_dpp v{AU+j}, v{AU+j}, v{AU+j} row_ror:8 row_mask:0xf bank_mask:0xf")
    sprinkle(k, mark1, g3_early_units(k.g3, opt.get("g3_e2", 7), 254), skip=0)
    k(f"v_and_b32 v{TT}, 7, v{LANE}\nv_lshlrev_b32 v{TT}, 5, v{TT}\nv_lshrrev_b32 v{TT+1}, 5, v{LANE}\nv_lshl_add_u32 v{TT}, v{TT+1}, 4, v{TT}")
    k(f"v_bfe_u32 v{TT+1}, v{LANE}, 4, 1\nv_lshl_add_u32 v{TT}, v{TT+1}, 3, v{TT}")
    srd(k, SRD_D, P_WS, MP_BYTES, WS_MODP)
    k(f"v_or_b32 v{AU}, 1, v{AU}\nv_or_b32 v{AU+1}, 1, v{AU+1}")
    k(f"buffer_store_dwordx2 {vr(AU,2)}, v{TT}, {sr(SRD_D,4)}, s{S_MO} offen sc1")
    return g2

A_UT = 176
def silu_block(k, regs):
    for v in regs: k(f"v_lshlrev_b32 v{v}, 16, v{v}\nv_mul_f32 v{v+1}, {-LOG2E!r}, v{v}")
    for v in regs: k(f"v_exp_f32 v{v+1}, v{v+1}")
    k("s_nop 0")
    for v in regs: k(f"v_add_f32 v{v+1}, 1.0, v{v+1}")
    for v in regs: k(f"v_rcp_f32 v{v+1}, v{v+1}")
    k("s_nop 0")
    for v in regs:
        k(f"v_mul_f32 v{v}, v{v}, v{v+1}"); round_bf16(k, v)

def modb_loads(s_off, v_w, v_c):
    out = []
    for i in range(8):
        out.append([f"buffer_load_dwordx4 {ar(A_UT+4*i,4)}, v{v_w}, {sr(SRD_D,4)}, s{s_off} offen", f"s_add_u32 s{s_off}, s{s_off}, {8*12288}"])
    return out

def red32(k, x, t):
    red8(k, x)
    k(f"s_nop 1\nv_add_f32_dpp v{x}, v{x}, v{x} row_mirror row_mask:0xf bank_mask:0xf")
    k(f"v_mov_b32 v{t}, v{x}\ns_nop 1\nv_permlane16_swap_b32 v{x}, v{t}\ns_nop 1\nv_add_f32 v{x}, v{x}, v{t}")

def ids(k):
    k("v_lshrrev_b32 v1, 6, v0")
    k(f"s_and_b32 s{S_XCD}, s2, 7\ns_lshr_b32 s{S_IDX}, s2, 3")
    k(f"v_readfirstlane_b32 s{S_WAVE}, v1")
    k(f"s_bfe_u32 s{S_RB1}, s{S_XCD}, 0x10001\ns_lshl_b32 s{S_RB1}, s{S_RB1}, 3\ns_lshr_b32 s80, s{S_IDX}, 2\ns_add_u32 s{S_RB1}, s{S_RB1}, s80")
    k(f"s_lshr_b32 s{S_HP}, s{S_XCD}, 2\ns_lshl_b32 s{S_HP}, s{S_HP}, 2\ns_and_b32 s80, s{S_IDX}, 3\ns_add_u32 s{S_HP}, s{S_HP}, s80\ns_lshl_b32 s{S_HP}, s{S_HP}, 1\ns_and_b32 s80, s{S_XCD}, 1\ns_add_u32 s{S_HP}, s{S_HP}, s80")

def build_k0(instr=False, opt=None, name="mod_kernel", mega="mega_kernel"):
    opt = opt or {}
    k = Kernel(name, 256, 256, 4096, vgpr=128, sgpr=102)
    k.instr = instr; k.s_wave = S_WAVE
    stamp(k, 0)
    end = k.label("end")
    k(f"s_cmp_ge_u32 s2, 256\ns_cbranch_scc1 {end}")
    k("s_load_dwordx4 s[12:15], s[0:1], 64")
    k("s_load_dwordx8 s[4:11], s[0:1], 0")
    k("s_load_dwordx2 s[28:29], s[0:1], 96")
    ids(k)
    LANE, T, V_W = 104, 48, 105
    WA, CA, XR, XF, A0, SU = 64, 80, 84, 0, 32, 100
    k(f"v_and_b32 v{LANE}, 63, v0")
    k(f"v_lshrrev_b32 v{T+1}, 3, v{LANE}\nv_and_b32 v{T+2}, 7, v{LANE}")
    k(f"v_mul_u32_u24 v{V_W}, 12288, v{T+1}\nv_lshl_add_u32 v{V_W}, v{T+2}, 4, v{V_W}")
    k(f"s_lshl_b32 s64, s{S_RB1}, 6\ns_lshl_b32 s65, s{S_WAVE}, 4\ns_add_u32 s64, s64, s65")
    k(f"v_add_u32 v{T+3}, s64, v{T+1}\nv_lshlrev_b32 v{T+3}, 1, v{T+3}")
    k(f"s_mul_i32 s67, s64, 12288\ns_lshl_b32 s66, s{S_HP}, 7\ns_add_u32 s67, s67, s66\ns_add_u32 s68, s67, {8*12288}")
    k(f"v_lshrrev_b32 v{T+4}, 5, v{LANE}\nv_lshlrev_b32 v{T+4}, 11, v{T+4}\nv_and_b32 v{T+5}, 31, v{LANE}\nv_lshl_add_u32 v{T+4}, v{T+5}, 4, v{T+4}")
    k(f"s_lshl_b32 s69, s{S_RB1}, 4\ns_add_u32 s69, s69, s{S_HP}")
    k(f"s_lshl_b32 s70, s69, 14\ns_lshl_b32 s71, s{S_WAVE}, 12\ns_add_u32 s70, s70, s71")
    k("s_waitcnt lgkmcnt(0)")
    srd(k, SRD_D, 14, D * 6 * D * 2)
    srd(k, SRD_A, P_X, S * D * 2)
    for i in range(2): k(f"global_load_ushort v{CA+2*i}, v{T+3}, s[12:13] offset:{i*16}")
    for i in range(2):
        for v in range(2): k(f"buffer_load_dwordx4 {vr(WA+(i*2+v)*4,4)}, v{V_W}, {sr(SRD_D,4)}, s{67+i} offen offset:{v*2048}")
    for i in range(4): k(f"buffer_load_dwordx4 {vr(XR+4*i,4)}, v{T+4}, {sr(SRD_A,4)}, s70 offen offset:{i*512}")
    stamp(k, 1)
    lab = k.label("pc")
    k(f"s_getpc_b64 s[60:61]\n{lab}:")
    k(f"s_add_u32 s60, s60, {mega}-{lab}\ns_addc_u32 s61, s61, 0")
    k(f"v_lshlrev_b32 v{T+6}, 4, v{LANE}")
    for x in code_prefetch_txt(mega, T + 6, T + 7, 62, s_pc=60, junk="v110"): k(x)
    srd(k, SRD_B, P_WS, MP_BYTES, WS_MODP)
    srd(k, SRD_F, P_WS, FLAG_BYTES, WS_FLAG)
    srd(k, SRD_C, P_WS, S * 128, WS_STAT)
    k(f"v_mov_b32 v{T+8}, 0\nv_lshlrev_b32 v{T+9}, 2, v0\ns_lshl_b32 s62, s2, 10\ns_add_u32 s63, s62, {MP_B}")
    k(f"v_lshlrev_b32 v{T+10}, {FS}, v0\ns_lshl_b32 s66, s2, {FS+8}")
    k(f"buffer_store_dword v{T+8}, v{T+10}, {sr(SRD_F,4)}, s66 offen")
    k(f"buffer_store_dword v{T+8}, v{T+9}, {sr(SRD_C,4)}, s62 offen")
    k(f"buffer_store_dword v{T+8}, v{T+9}, {sr(SRD_B,4)}, s63 offen")
    young = 4
    k(f"s_lshl_b32 s62, s2, 2\ns_add_u32 s62, s62, s{S_WAVE}")
    for ptr, per, tag in ((P_WQKV, 6, "t_wq"), (P_WO, 2, "t_wo"), (14, 12, "t_wm")):
        if not opt.get(tag, 1): continue
        k(f"s_mul_i32 s63, s62, {per*1024}\ns_add_u32 s63, s63, 384")
        k(f"v_min_u32 v{T+14}, {per-1}, v{LANE}\nv_lshlrev_b32 v{T+14}, 10, v{T+14}\nv_add_u32 v{T+14}, s63, v{T+14}")
        k(f"global_load_dword v110, v{T+14}, s[{ptr}:{ptr+1}]")
        young += 1
    k(f"s_waitcnt vmcnt({young + 8})")
    silu_block(k, [CA, CA + 2])
    k(f"s_waitcnt vmcnt({young + 4})")
    for i in range(2):
        for v in range(2):
            for d in range(4):
                w_ = WA + (i * 2 + v) * 4 + d
                k(f"v_lshlrev_b32 v{T+10}, 16, v{w_}\nv_and_b32 v{T+11}, 0xffff0000, v{w_}")
                if i == 0: k(f"v_pk_mul_f32 {vr(A0+v*8+2*d,2)}, {vr(T+10,2)}, {vr(CA,2)} op_sel_hi:[1,0]")
                else: k(f"v_pk_fma_f32 {vr(A0+v*8+2*d,2)}, {vr(T+10,2)}, {vr(CA+2,2)}, {vr(A0+v*8+2*d,2)} op_sel_hi:[1,0,1]")
    k("s_nop 1")
    for j in range(8): k(f"v_permlane32_swap_b32 v{A0+j}, v{A0+8+j}")
    k("s_nop 1")
    for j in range(8): k(f"v_add_f32 v{A0+j}, v{A0+j}, v{A0+8+j}")
    k("s_nop 1")
    for j in range(4): k(f"v_permlane16_swap_b32 v{A0+j}, v{A0+4+j}")
    k("s_nop 1")
    for j in range(4): k(f"v_add_f32 v{A0+j}, v{A0+j}, v{A0+4+j}")
    k("s_nop 1")
    for j in range(4): k(f"v_add_f32_dpp v{A0+j}, v{A0+j}, v{A0+j} row_ror:8 row_mask:0xf bank_mask:0xf")
    k(f"v_lshrrev_b32 v{T+12}, 5, v{LANE}\nv_lshlrev_b32 v{T+13}, 8, v{T+12}\nv_lshl_add_u32 v{T+13}, v{T+2}, 5, v{T+13}")
    k(f"v_bfe_u32 v{T+10}, v{LANE}, 4, 1\nv_lshl_add_u32 v{T+13}, v{T+10}, 4, v{T+13}\ns_lshl_b32 s62, s{S_WAVE}, 9\nv_add_u32 v{T+13}, s62, v{T+13}")
    k(f"ds_write_b128 v{T+13}, {vr(A0,4)}")
    k("s_waitcnt lgkmcnt(0)\ns_barrier")
    nw0 = k.label("notw0")
    k(f"s_cmp_lg_u32 s{S_WAVE}, 0\ns_cbranch_scc1 {nw0}")
    k(f"v_lshlrev_b32 v{T+13}, 3, v{LANE}")
    for w in range(4): k(f"ds_read_b64 {vr(A0+2*w,2)}, v{T+13} offset:{w*512}")
    k(f"s_lshl_b32 s62, s{S_HP}, 13\ns_lshl_b32 s63, s{S_RB1}, 9\ns_add_u32 s63, s63, s62")
    k("s_waitcnt lgkmcnt(0)")
    k(f"v_pk_add_f32 {vr(A0,2)}, {vr(A0,2)}, {vr(A0+2,2)}\nv_pk_add_f32 {vr(A0+4,2)}, {vr(A0+4,2)}, {vr(A0+6,2)}\nv_pk_add_f32 {vr(A0,2)}, {vr(A0,2)}, {vr(A0+4,2)}")
    k(f"buffer_store_dwordx2 {vr(A0,2)}, v{T+13}, {sr(SRD_B,4)}, s63 offen")
    k(f"{nw0}:")
    stamp(k, 2)
    k(f"s_waitcnt vmcnt({young})")
    for d in range(16): k(f"v_lshlrev_b32 v{XF+2*d}, 16, v{XR+d}\nv_and_b32 v{XF+2*d+1}, 0xffff0000, v{XR+d}")
    k(f"v_pk_add_f32 {vr(SU,2)}, {vr(XF,2)}, {vr(XF+2,2)}")
    for d in range(2, 16): k(f"v_pk_add_f32 {vr(SU,2)}, {vr(SU,2)}, {vr(XF+2*d,2)}")
    k(f"v_add_f32 v{SU}, v{SU}, v{SU+1}")
    red32(k, SU, SU + 1)
    k(f"v_mul_f32 v{SU+2}, {-1.0/1024!r}, v{SU}")
    k(f"v_mov_b32 v{SU}, 0\nv_mov_b32 v{SU+1}, 0")
    for d in range(16):
        k(f"v_pk_add_f32 {vr(XF+2*d,2)}, {vr(XF+2*d,2)}, {vr(SU+2,2)} op_sel_hi:[1,0]")
        k(f"v_pk_fma_f32 {vr(SU,2)}, {vr(XF+2*d,2)}, {vr(XF+2*d,2)}, {vr(SU,2)}")
    k(f"v_add_f32 v{SU}, v{SU}, v{SU+1}")
    red32(k, SU, SU + 1)
    k(f"v_mov_b32 v{SU+1}, 0x3727c5ac\nv_fmac_f32 v{SU+1}, {1.0/1024!r}, v{SU}\nv_rsq_f32 v{SU+3}, v{SU+1}")
    k(f"s_lshl_b32 s62, s69, 6\ns_lshl_b32 s63, s{S_WAVE}, 4\ns_add_u32 s62, s62, s63\ns_add_u32 s62, s62, {MP_RS}\nv_lshlrev_b32 v{T+12}, 3, v{T+12}")
    k(f"buffer_store_dwordx2 {vr(SU+2,2)}, v{T+12}, {sr(SRD_B,4)}, s62 offen")
    stamp(k, 3)
    if instr: k("s_waitcnt vmcnt(0)")
    stamp(k, 4)
    stamp_flush(k, 28, 5, 4, slot=1)
    k(f"{end}:\ns_endpgm")
    return k

def phase_front_fused(k, opt, name):
    LANE, L16 = 104, 105
    T = 48
    V_W, V_C = 115, 109
    WA, CA, XR, XT_, XF, A0, SU, G, M, RS = 64, 80, 128, 144, 0, 200, 216, 160, 32, 84
    HL = 2 * 25344
    k(f"v_lshrrev_b32 v{T+1}, 3, v{LANE}\nv_and_b32 v{T+2}, 7, v{LANE}")
    k(f"v_mul_u32_u24 v{V_W}, 12288, v{T+1}\nv_lshl_add_u32 v{V_W}, v{T+2}, 4, v{V_W}")
    k(f"s_lshl_b32 s84, s{S_RB1}, 6")
    k(f"v_add_u32 v{V_C}, s84, v{T+1}\nv_lshlrev_b32 v{V_C}, 1, v{V_C}")
    k(f"s_lshl_b32 s85, s{S_WAVE}, 5\nv_add_u32 v{T+3}, s85, v{V_C}")
    k(f"s_mul_i32 s86, s84, 12288\ns_lshl_b32 s87, s{S_HP}, 7\ns_add_u32 s86, s86, s87")
    k(f"s_mul_i32 s87, s{S_WAVE}, {16*12288}\ns_add_u32 s87, s87, s86\ns_add_u32 s88, s87, {8*12288}")
    k(f"v_lshrrev_b32 v{T+4}, 5, v{LANE}\nv_lshlrev_b32 v{T+4}, 11, v{T+4}\nv_and_b32 v{T+5}, 31, v{LANE}\nv_lshl_add_u32 v{T+4}, v{T+5}, 4, v{T+4}")
    k(f"s_lshl_b32 s89, s{S_RB1}, 4\ns_add_u32 s89, s89, s{S_HP}")
    k(f"s_lshl_b32 s90, s89, 14\ns_lshl_b32 s91, s{S_WAVE}, 12\ns_add_u32 s90, s90, s91")
    k(f"v_mov_b32 v{T+8}, 0\nv_mov_b32 v{T+9}, 0\nv_mov_b32 v{T+10}, 0\nv_mov_b32 v{T+11}, 0\nv_mov_b32 v{T+12}, 1")
    k(f"v_lshlrev_b32 v{T+7}, {FS}, v{LANE}")
    k(f"s_lshl_b32 s93, s2, {FS+6}\ns_add_u32 s93, s93, {F_S0}\ns_cmp_lt_u32 s2, 4\ns_cselect_b32 s93, s93, 0x7ff00000\ns_cmp_eq_u32 s{S_WAVE}, 3\ns_cselect_b32 s93, s93, 0x7ff00000")
    k("s_waitcnt lgkmcnt(0)")
    srd(k, SRD_F, P_WS, FLAG_BYTES, WS_FLAG)
    k(f"buffer_store_dword v{T+8}, v{T+7}, {sr(SRD_F,4)}, s93 offen sc1")
    k(f"s_mov_b32 s{SRD_T}, s{P_DBG}\ns_mov_b32 s{SRD_T+1}, s{P_DBG+1}\ns_mov_b32 s{SRD_T+2}, 256\ns_mov_b32 s{SRD_T+3}, 0x20000")
    k("s_mov_b32 s95, s93")
    srd(k, SRD_D, P_WMOD, D * 6 * D * 2)
    srd(k, SRD_A, P_X, S * D * 2)
    for i in range(2): k(f"global_load_ushort v{CA+2*i}, v{T+3}, s[{P_C}:{P_C+1}] offset:{i*16}")
    for i in range(2):
        for v in range(2): k(f"buffer_load_dwordx4 {vr(WA+(i*2+v)*4,4)}, v{V_W}, {sr(SRD_D,4)}, s{87+i} offen offset:{v*2048}")
    for i in range(4): k(f"buffer_load_dwordx4 {vr(XR+4*i,4)}, v{T+4}, {sr(SRD_A,4)}, s90 offen offset:{i*512}")
    k.stamp("loads issued")
    srd(k, SRD_B, P_WS, MP_BYTES, WS_MODP)
    srd(k, SRD_C, P_WS, S * 128, WS_STAT)
    w3, jn = k.label("w3"), k.label("join")
    k(f"s_cmp_eq_u32 s{S_WAVE}, 3\ns_cbranch_scc1 {w3}")
    k(f"s_lshl_b32 s92, s2, 1\ns_add_u32 s92, s92, s{S_WAVE}\ns_sub_u32 s92, s92, 1")
    nt_ = k.label("notouch")
    k("s_mov_b32 s93, 0x7ff00000")
    for i in range(2): k(f"buffer_load_dword a233, v{V_W}, {sr(SRD_D,4)}, s93 offen")
    k(f"s_cmp_eq_u32 s{S_WAVE}, 0\ns_cbranch_scc1 {nt_}")
    for ptr, per in ((P_WQKV, 12), (P_WO, 4), (P_WMOD, 24)):
        k(f"s_mul_i32 s93, s92, {per}\nv_min_u32 v{T+14}, {per-1}, v{LANE}\nv_add_u32 v{T+14}, s93, v{T+14}")
        k(f"v_lshlrev_b32 v{T+14}, 10, v{T+14}")
        k(f"global_load_dword a232, v{T+14}, s[{ptr}:{ptr+1}] offset:384")
    k(f"s_branch {jn}")
    k(f"{nt_}:")
    for i in range(3): k(f"buffer_load_dword a233, v{V_W}, {sr(SRD_D,4)}, s93 offen")
    k(f"s_branch {jn}")
    k(f"{w3}:")
    nb = k.label("nboot")
    k(f"s_cmp_eq_u32 s95, 0x7ff00000\ns_cbranch_scc1 {nb}")
    k("s_lshl_b32 s93, s2, 2\ns_waitcnt vmcnt(10)")
    k(f"buffer_store_dword v{T+12}, v{T+8}, {sr(SRD_T,4)}, s93 offen sc1")
    k(f"{nb}:")
    k(f"v_and_b32 v{T+14}, 3, v{LANE}\nv_lshlrev_b32 v{T+14}, 4, v{T+14}")
    k(f"s_lshl_b32 s93, s{S_RB1}, 6\ns_add_u32 s93, s93, s{S_HP}\nv_add_u32 v{T+15}, s93, v{T+14}")
    k(f"s_lshl_b32 s93, s{S_HP}, 6\ns_add_u32 s93, s93, s{S_RB1}\ns_add_u32 s93, s93, 1024\nv_add_u32 v{T+14}, s93, v{T+14}")
    k(f"v_cmp_gt_u32 vcc, 4, v{LANE}\ns_mul_i32 s93, s2, 24\ns_add_u32 s93, s93, 2040")
    k(f"v_cndmask_b32 v{T+14}, v{T+14}, v{T+15}, vcc\nv_add_u32 v{T+15}, s93, v{LANE}")
    k(f"v_cmp_gt_u32 vcc, 8, v{LANE}\ns_nop 1\nv_cndmask_b32 v{T+14}, v{T+15}, v{T+14}, vcc")
    k(f"v_cmp_gt_u32 vcc, 32, v{LANE}\nv_mov_b32 v{T+15}, 0x100000\ns_nop 0\nv_cndmask_b32 v{T+14}, v{T+15}, v{T+14}, vcc")
    k(f"v_lshlrev_b32 v{T+14}, {FS}, v{T+14}")
    k(f"buffer_store_dword v{T+8}, v{T+14}, {sr(SRD_F,4)}, 0 offen sc1")
    k("s_mov_b32 s93, 0x7ff00000")
    for i in range(2): k(f"buffer_load_dword a233, v{V_W}, {sr(SRD_D,4)}, s93 offen")
    k("s_lshl_b32 s93, s2, 10")
    k(f"buffer_store_dwordx4 {vr(T+8,4)}, v{L16}, {sr(SRD_C,4)}, s93 offen sc1")
    k(f"s_add_u32 s93, s93, {MP_B}")
    k(f"buffer_store_dwordx4 {vr(T+8,4)}, v{L16}, {sr(SRD_B,4)}, s93 offen sc1")
    k(f"{jn}:")
    k(f"v_lshlrev_b32 v{T+5}, 11, v{T+1}\nv_lshl_add_u32 v{T+5}, v{T+2}, 4, v{T+5}")
    k(f"s_lshl_b32 s91, s{S_RB1}, 18\ns_lshl_b32 s92, s{S_WAVE}, 16\ns_add_u32 s91, s91, s92\ns_lshl_b32 s92, s{S_HP}, 7\ns_add_u32 s91, s91, s92")
    for i in range(4):
        k(f"buffer_load_dwordx4 {vr(XT_+4*i,4)}, v{T+5}, {sr(SRD_A,4)}, s91 offen")
        if i < 3: k("s_add_u32 s91, s91, 16384")
    k(f"s_lshl_b32 s94, s{S_WAVE}, 11\ns_add_u32 s{S_MB}, s86, s94\ns_add_u32 s{S_MB}, s{S_MB}, 4096")
    k(f"s_lshl_b32 s94, s{S_WAVE}, 16\ns_lshl_b32 s95, s{S_HP}, 12\ns_add_u32 s94, s94, s95\ns_lshl_b32 s95, s{S_RB1}, 8\ns_add_u32 s94, s94, s95\ns_add_u32 s{S_MO}, s94, {MP_B}")
    young = 9
    k.stamp("all issued")
    k(f"s_waitcnt vmcnt({young + 8})")
    k.stamp("c ready")
    silu_block(k, [CA, CA + 2])
    k(f"s_waitcnt vmcnt({young + 4})")
    k.stamp("w ready")
    for i in range(2):
        for v in range(2):
            for d in range(4):
                w_ = WA + (i * 2 + v) * 4 + d
                k(f"v_lshlrev_b32 v{T+14}, 16, v{w_}\nv_and_b32 v{T+15}, 0xffff0000, v{w_}")
                if i == 0: k(f"v_pk_mul_f32 {vr(A0+v*8+2*d,2)}, {vr(T+14,2)}, {vr(CA,2)} op_sel_hi:[1,0]")
                else: k(f"v_pk_fma_f32 {vr(A0+v*8+2*d,2)}, {vr(T+14,2)}, {vr(CA+2,2)}, {vr(A0+v*8+2*d,2)} op_sel_hi:[1,0,1]")
    k("s_nop 1")
    for j in range(8): k(f"v_permlane32_swap_b32 v{A0+j}, v{A0+8+j}")
    k("s_nop 1")
    for j in range(8): k(f"v_add_f32 v{A0+j}, v{A0+j}, v{A0+8+j}")
    k("s_nop 1")
    for j in range(4): k(f"v_permlane16_swap_b32 v{A0+j}, v{A0+4+j}")
    k("s_nop 1")
    for j in range(4): k(f"v_add_f32 v{A0+j}, v{A0+j}, v{A0+4+j}")
    k("s_nop 1")
    for j in range(4): k(f"v_add_f32_dpp v{A0+j}, v{A0+j}, v{A0+j} row_ror:8 row_mask:0xf bank_mask:0xf")
    k(f"v_lshrrev_b32 v{T+13}, 5, v{LANE}\nv_lshlrev_b32 v{T+14}, 8, v{T+13}\nv_lshl_add_u32 v{T+14}, v{T+2}, 5, v{T+14}")
    k(f"v_bfe_u32 v{T+15}, v{LANE}, 4, 1\nv_lshl_add_u32 v{T+14}, v{T+15}, 4, v{T+14}\ns_lshl_b32 s94, s{S_WAVE}, 9\nv_add_u32 v{T+14}, s94, v{T+14}")
    k(f"ds_write_b128 v{T+14}, {vr(A0,4)} offset:{HL}")
    k(f"s_waitcnt vmcnt({young})")
    for d in range(16): k(f"v_lshlrev_b32 v{XF+2*d}, 16, v{XR+d}\nv_and_b32 v{XF+2*d+1}, 0xffff0000, v{XR+d}")
    k(f"v_pk_add_f32 {vr(SU,2)}, {vr(XF,2)}, {vr(XF+2,2)}")
    for d in range(2, 16): k(f"v_pk_add_f32 {vr(SU,2)}, {vr(SU,2)}, {vr(XF+2*d,2)}")
    k(f"v_add_f32 v{SU}, v{SU}, v{SU+1}")
    red32(k, SU, SU + 1)
    k(f"v_mul_f32 v{SU+2}, {-1.0/1024!r}, v{SU}")
    k(f"v_mov_b32 v{SU}, 0\nv_mov_b32 v{SU+1}, 0")
    for d in range(16):
        k(f"v_pk_add_f32 {vr(XF+2*d,2)}, {vr(XF+2*d,2)}, {vr(SU+2,2)} op_sel_hi:[1,0]")
        k(f"v_pk_fma_f32 {vr(SU,2)}, {vr(XF+2*d,2)}, {vr(XF+2*d,2)}, {vr(SU,2)}")
    k(f"v_add_f32 v{SU}, v{SU}, v{SU+1}")
    red32(k, SU, SU + 1)
    k(f"v_mov_b32 v{SU+1}, 0x3727c5ac\nv_fmac_f32 v{SU+1}, {1.0/1024!r}, v{SU}\nv_rsq_f32 v{SU+3}, v{SU+1}")
    k(f"s_lshl_b32 s94, s{S_WAVE}, 4\nv_lshlrev_b32 v{T+13}, 3, v{T+13}\nv_add_u32 v{T+13}, s94, v{T+13}")
    k(f"ds_write_b64 v{T+13}, {vr(SU+2,2)} offset:{HL+2048}")
    n3 = k.label("not3")
    k(f"s_cmp_lg_u32 s{S_WAVE}, 3\ns_cbranch_scc1 {n3}")
    k(f"v_and_b32 v{T+14}, 3, v{LANE}\nv_lshlrev_b32 v{T+14}, 2, v{T+14}")
    spin(k, [f"buffer_load_dword v{T+13}, v{T+14}, {sr(SRD_T,4)}, 0 offen sc1"], [T + 13], 0)
    k(f"{n3}:")
    k("s_waitcnt lgkmcnt(0)\ns_barrier")
    k.stamp("partials")
    nw0 = k.label("notw0")
    k(f"v_lshlrev_b32 v{T+6}, 3, v{LANE}")
    k(f"s_cmp_lg_u32 s{S_WAVE}, 0\ns_cbranch_scc1 {nw0}")
    for w in range(4): k(f"ds_read_b64 {vr(A0+2*w,2)}, v{T+6} offset:{HL+w*512}")
    k(f"v_and_b32 v{T+9}, 0x38, v{T+6}")
    k(f"ds_read_b64 {vr(A0+8,2)}, v{T+9} offset:{HL+2048}")
    k(f"s_lshl_b32 s94, s{S_HP}, 13\ns_lshl_b32 s95, s{S_RB1}, 9\ns_add_u32 s95, s95, s94")
    k(f"s_lshl_b32 s90, s89, 6\ns_add_u32 s90, s90, {MP_RS}")
    k("s_waitcnt lgkmcnt(0)")
    k(f"v_pk_add_f32 {vr(A0,2)}, {vr(A0,2)}, {vr(A0+2,2)}\nv_pk_add_f32 {vr(A0+4,2)}, {vr(A0+4,2)}, {vr(A0+6,2)}\nv_pk_add_f32 {vr(A0,2)}, {vr(A0,2)}, {vr(A0+4,2)}")
    k(f"buffer_store_dwordx2 {vr(A0,2)}, v{T+6}, {sr(SRD_B,4)}, s95 offen sc1")
    k(f"buffer_store_dwordx2 {vr(A0+8,2)}, v{T+9}, {sr(SRD_B,4)}, s90 offen sc1")
    k(f"s_lshl_b32 s90, s89, {FS}\ns_add_u32 s90, s90, {F_S0}")
    k("s_waitcnt vmcnt(0)")
    k(f"buffer_store_dword v{T+12}, v{T+8}, {sr(SRD_F,4)}, s90 offen sc1")
    if opt.get("modb_front", 0):
        sk_ = k.label("skmf")
        k(f"s_branch {sk_}")
        k(f"{nw0}:")
        k("s_waitcnt vmcnt(0)")
        for g in modb_loads(S_MB, V_W, V_C):
            for x in g: k(x)
        k(f"s_mov_b32 s{S_MB}, 0x7ff00000")
        k(f"{sk_}:")
    else:
        k(f"{nw0}:")
    k.stamp("s0 published")
    split = opt.get("split", 1)
    g1 = (setup_gemm1s if split else setup_gemm1)(k, opt)
    srd(k, SRD_W, P_WQKV, D * 3 * D * 2)
    if not opt.get("modb_front", 0):
        k("s_waitcnt vmcnt(1)")
        k(f"s_cmp_eq_u32 s{S_WAVE}, 0\ns_cbranch_scc1 1\ns_waitcnt vmcnt(0)")
    for d in range(16): k(f"v_lshlrev_b32 v{XF+2*d}, 16, v{XT_+d}\nv_and_b32 v{XF+2*d+1}, 0xffff0000, v{XT_+d}")
    VS = T + 4
    k(f"v_lshrrev_b32 v{VS}, 2, v{T+2}\nv_lshlrev_b32 v{VS}, 10, v{VS}")
    k(f"v_and_b32 v{T+3}, 3, v{T+2}\nv_lshl_add_u32 v{VS}, v{T+3}, 8, v{VS}\nv_lshl_add_u32 v{VS}, v{T+1}, 4, v{VS}")
    k(f"s_lshl_b32 s86, s{S_RB1}, 3\ns_lshl_b32 s87, s{S_WAVE}, 1\ns_add_u32 s86, s86, s87\ns_lshl_b32 s86, s86, 15\ns_lshl_b32 s87, s{S_HP}, 11\ns_add_u32 s86, s86, s87\ns_add_u32 s87, s86, 0x8000")
    k(f"s_lshl_b32 s88, s{S_RB1}, 2\ns_add_u32 s88, s88, s{S_WAVE}\ns_lshl_b32 s88, s88, {FS+4}\ns_add_u32 s88, s88, {F_H}\ns_lshl_b32 s89, s{S_HP}, {FS}\ns_add_u32 s89, s89, s88")
    k(f"v_lshlrev_b32 v{T+5}, 5, v{T+2}")
    k(f"s_lshl_b32 s92, s{S_WAVE}, 8\nv_lshlrev_b32 v{T+7}, 3, v{T+1}\nv_add_u32 v{T+7}, s92, v{T+7}")
    nw1 = k.label("notw0b")
    k(f"s_cmp_lg_u32 s{S_WAVE}, 0\ns_cbranch_scc1 {nw1}")
    k(f"v_and_b32 v{T+9}, 15, v{LANE}\ns_lshl_b32 s92, s{S_RB1}, 4\nv_add_u32 v{T+10}, s92, v{T+9}\nv_lshlrev_b32 v{T+9}, 4, v{T+9}\nv_add_u32 v{T+9}, s{S_HP}, v{T+9}")
    k(f"v_and_b32 v{T+11}, 16, v{LANE}\nv_cmp_eq_u32 vcc, 0, v{T+11}\ns_mov_b32 s92, {F_S0}\ns_nop 0")
    k(f"v_cndmask_b32 v{T+9}, v{T+9}, v{T+10}, vcc\nv_lshlrev_b32 v{T+9}, {FS}, v{T+9}")
    spin(k, [f"buffer_load_dword v{T+13}, v{T+9}, {sr(SRD_F,4)}, s92 offen sc1"], [T + 13], 0)
    k(f"s_lshl_b32 s94, s{S_HP}, 13\ns_add_u32 s95, s94, 4096")
    for p_ in range(16): k(f"buffer_load_dwordx2 {vr(G+2*p_,2)}, v{T+6}, {sr(SRD_B,4)}, s{94+p_//8} offen offset:{(p_%8)*512} sc1")
    k(f"s_lshl_b32 s90, s{S_RB1}, 10\ns_add_u32 s90, s90, {MP_RS}")
    k(f"buffer_load_dwordx4 {vr(A0+8,4)}, v{L16}, {sr(SRD_B,4)}, s90 offen sc1")
    k(f"v_cmp_lt_u32 vcc, 31, v{LANE}")
    k("s_waitcnt vmcnt(1)")
    for st in (8, 4, 2, 1):
        for j in range(st): k(f"v_pk_add_f32 {vr(G+2*j,2)}, {vr(G+2*j,2)}, {vr(G+2*(j+st),2)}")
    k(f"v_cvt_pk_bf16_f32 v{G+2}, v{G}, v{G+1}\nv_lshlrev_b32 v{G}, 16, v{G+2}\nv_and_b32 v{G+1}, 0xffff0000, v{G+2}")
    k(f"v_pk_add_f32 {vr(G+4,2)}, {vr(G,2)}, 1.0 op_sel_hi:[1,0]")
    k(f"v_cvt_pk_bf16_f32 v{G+2}, v{G+4}, v{G+5}\nv_lshlrev_b32 v{G+4}, 16, v{G+2}\nv_and_b32 v{G+5}, 0xffff0000, v{G+2}")
    k(f"v_cndmask_b32 v{G}, v{G}, v{G+4}, vcc\nv_cndmask_b32 v{G+1}, v{G+1}, v{G+5}, vcc")
    k(f"ds_write_b64 v{T+6}, {vr(G,2)} offset:{HL+4096}")
    k("s_waitcnt vmcnt(0)")
    k(f"ds_write_b128 v{L16}, {vr(A0+8,4)} offset:{HL+5120}")
    k("s_waitcnt lgkmcnt(0)")
    k(f"{nw1}:")
    g1.prefetch(k, opt.get("h_pre0", 0))
    srd(k, SRD_T, P_WS, S * D * 2, WS_H)
    k("s_barrier")
    k.stamp("s0 ready")
    for h in range(2): k(f"ds_read_b128 {vr(M+4*h,4)}, v{T+5} offset:{HL+4096+h*16}\nds_read_b128 {vr(M+8+4*h,4)}, v{T+5} offset:{HL+4096+256+h*16}")
    for i in range(4): k(f"ds_read_b64 {vr(RS+2*i,2)}, v{T+7} offset:{HL+5120+i*64}")
    k("s_waitcnt lgkmcnt(0)")
    for i in range(4):
        for j in range(4): k(f"v_pk_add_f32 {vr(XF+8*i+2*j,2)}, {vr(XF+8*i+2*j,2)}, {vr(RS+2*i,2)} op_sel_hi:[1,0]")
        for j in range(4): k(f"v_pk_mul_f32 {vr(XF+8*i+2*j,2)}, {vr(XF+8*i+2*j,2)}, {vr(RS+2*i,2)} op_sel:[0,1] op_sel_hi:[1,1]")
        for j in range(4): k(f"v_pk_fma_f32 {vr(XF+8*i+2*j,2)}, {vr(XF+8*i+2*j,2)}, {vr(M+8+2*j,2)}, {vr(M+2*j,2)}")
        for j in range(4): k(f"v_cvt_pk_bf16_f32 v{XR+4*i+j}, v{XF+8*i+2*j}, v{XF+8*i+2*j+1}")
        k(f"buffer_store_dwordx4 {vr(XR+4*i,4)}, v{VS}, {sr(SRD_T,4)}, s{86 + i//2} offen offset:{(i%2)*128} sc1")
    k.stamp("h computed")
    mk = len(k.L)
    g1.prefetch(k, opt.get("h_pre1a", 4 if split else 6))
    publish(k, 89, T, mk)
    k.stamp("h published")
    g1.prefetch(k, opt.get("h_pre1", 8 if split else 6))
    if not split:
        k.g3 = setup_gemm3_early(k, opt, LANE, 56)
        for i in range(8): k(f"global_load_ushort {ar(A_UT+32+i,1)}, v{V_C}, s[{P_C}:{P_C+1}] offset:{i*16}")
    k(f"v_and_b32 v252, 15, v{LANE}\nv_lshlrev_b32 v252, {FS}, v252\ns_mov_b32 s93, s88")
    staged_wait(k, g1, opt.get("g1_T", 4), 252, 93, 253, one_prod)
    k.stamp("h ready")
    return g1

def phase_front(k, opt, name):
    LANE, L16 = 104, 105
    T = 48
    V_W, V_C = 115, 109
    RS, XR, XT_, XF, G, M = 64, 128, 144, 0, 160, 32
    HL = 2 * 25344
    k(f"v_and_b32 v{LANE}, 63, v0")
    k(f"v_lshrrev_b32 v{T+1}, 3, v{LANE}\nv_and_b32 v{T+2}, 7, v{LANE}")
    k(f"v_lshlrev_b32 v{T+5}, 11, v{T+1}\nv_lshl_add_u32 v{T+5}, v{T+2}, 4, v{T+5}")
    k(f"s_lshl_b32 s91, s{S_RB1}, 18\ns_lshl_b32 s92, s{S_WAVE}, 16\ns_add_u32 s91, s91, s92\ns_lshl_b32 s92, s{S_HP}, 7\ns_add_u32 s91, s91, s92")
    k(f"v_lshlrev_b32 v{T+8}, 3, v{LANE}\nv_lshlrev_b32 v{T+6}, 3, v{T+1}")
    k(f"s_lshl_b32 s94, s{S_HP}, 13\ns_add_u32 s95, s94, 4096")
    k(f"s_lshl_b32 s90, s{S_RB1}, 10\ns_lshl_b32 s93, s{S_WAVE}, 8\ns_add_u32 s90, s90, s93\ns_add_u32 s90, s90, {MP_RS}")
    k("s_waitcnt lgkmcnt(0)")
    srd(k, SRD_B, P_WS, MP_BYTES, WS_MODP)
    srd(k, SRD_A, P_X, S * D * 2)
    for p_ in range(16): k(f"buffer_load_dwordx2 {vr(G+2*p_,2)}, v{T+8}, {sr(SRD_B,4)}, s{94+p_//8} offen offset:{(p_%8)*512}")
    for i in range(4): k(f"buffer_load_dwordx2 {vr(RS+2*i,2)}, v{T+6}, {sr(SRD_B,4)}, s90 offen offset:{i*64}")
    for i in range(4):
        k(f"buffer_load_dwordx4 {vr(XT_+4*i,4)}, v{T+5}, {sr(SRD_A,4)}, s91 offen")
        if i < 3: k("s_add_u32 s91, s91, 16384")
    k.stamp("loads issued")
    def touch(ptr, per, vt, off=0):
        k(f"s_lshl_b32 s80, s2, 2\ns_add_u32 s80, s80, s{S_WAVE}\ns_mul_i32 s80, s80, {per*128}")
        if off: k(f"s_add_u32 s80, s80, {off}")
        k(f"v_min_u32 v{vt}, {per-1}, v{LANE}\nv_lshlrev_b32 v{vt}, 7, v{vt}\nv_add_u32 v{vt}, s80, v{vt}")
        k(f"global_load_dword a232, v{vt}, s[{ptr}:{ptr+1}]")
    nt0 = 0
    if opt.get("m_touch", 0) == 1: touch(P_WQKV, 48, 254); nt0 = 1
    g1 = setup_gemm1(k, opt)
    srd(k, SRD_W, P_WQKV, D * 3 * D * 2)
    n0 = opt.get("h_pre0", 6)
    g1.prefetch(k, n0)
    n0 += nt0
    srd(k, SRD_F, P_WS, FLAG_BYTES, WS_FLAG)
    srd(k, SRD_T, P_WS, S * D * 2, WS_H)
    VS = T + 4
    k(f"v_lshrrev_b32 v{VS}, 2, v{T+2}\nv_lshlrev_b32 v{VS}, 10, v{VS}")
    k(f"v_and_b32 v{T+3}, 3, v{T+2}\nv_lshl_add_u32 v{VS}, v{T+3}, 8, v{VS}\nv_lshl_add_u32 v{VS}, v{T+1}, 4, v{VS}")
    k(f"s_lshl_b32 s86, s{S_RB1}, 3\ns_lshl_b32 s87, s{S_WAVE}, 1\ns_add_u32 s86, s86, s87\ns_lshl_b32 s86, s86, 15\ns_lshl_b32 s87, s{S_HP}, 11\ns_add_u32 s86, s86, s87\ns_add_u32 s87, s86, 0x8000")
    k(f"s_lshl_b32 s88, s{S_WAVE}, 9\nv_add_u32 v{T+8}, s88, v{T+8}\nv_lshlrev_b32 v{T+5}, 5, v{T+2}\nv_add_u32 v{T+5}, s88, v{T+5}")
    k(f"s_lshl_b32 s88, s{S_RB1}, 2\ns_add_u32 s88, s88, s{S_WAVE}\ns_lshl_b32 s88, s88, {FS+4}\ns_add_u32 s88, s88, {F_H}\ns_lshl_b32 s89, s{S_HP}, {FS}\ns_add_u32 s89, s89, s88")
    k(f"v_cmp_lt_u32 vcc, 31, v{LANE}")
    k(f"s_waitcnt vmcnt({8 + n0})")
    for st in (8, 4, 2, 1):
        for j in range(st): k(f"v_pk_add_f32 {vr(G+2*j,2)}, {vr(G+2*j,2)}, {vr(G+2*(j+st),2)}")
    k(f"v_cvt_pk_bf16_f32 v{G+2}, v{G}, v{G+1}\nv_lshlrev_b32 v{G}, 16, v{G+2}\nv_and_b32 v{G+1}, 0xffff0000, v{G+2}")
    k(f"v_pk_add_f32 {vr(G+4,2)}, {vr(G,2)}, 1.0 op_sel_hi:[1,0]")
    k(f"v_cvt_pk_bf16_f32 v{G+2}, v{G+4}, v{G+5}\nv_lshlrev_b32 v{G+4}, 16, v{G+2}\nv_and_b32 v{G+5}, 0xffff0000, v{G+2}")
    k(f"v_cndmask_b32 v{G}, v{G}, v{G+4}, vcc\nv_cndmask_b32 v{G+1}, v{G+1}, v{G+5}, vcc")
    k(f"ds_write_b64 v{T+8}, {vr(G,2)} offset:{HL}")
    k("s_waitcnt lgkmcnt(0)")
    for h in range(2): k(f"ds_read_b128 {vr(M+4*h,4)}, v{T+5} offset:{HL+h*16}\nds_read_b128 {vr(M+8+4*h,4)}, v{T+5} offset:{HL+256+h*16}")
    for i in range(4):
        k(f"s_waitcnt vmcnt({3 - i + n0})")
        for d in range(4): k(f"v_lshlrev_b32 v{XF+8*i+2*d}, 16, v{XT_+4*i+d}\nv_and_b32 v{XF+8*i+2*d+1}, 0xffff0000, v{XT_+4*i+d}")
        for j in range(4): k(f"v_pk_add_f32 {vr(XF+8*i+2*j,2)}, {vr(XF+8*i+2*j,2)}, {vr(RS+2*i,2)} op_sel_hi:[1,0]")
        for j in range(4): k(f"v_pk_mul_f32 {vr(XF+8*i+2*j,2)}, {vr(XF+8*i+2*j,2)}, {vr(RS+2*i,2)} op_sel:[0,1] op_sel_hi:[1,1]")
    k("s_waitcnt lgkmcnt(0)")
    for i in range(4):
        for j in range(4): k(f"v_pk_fma_f32 {vr(XF+8*i+2*j,2)}, {vr(XF+8*i+2*j,2)}, {vr(M+8+2*j,2)}, {vr(M+2*j,2)}")
        for j in range(4): k(f"v_cvt_pk_bf16_f32 v{XR+4*i+j}, v{XF+8*i+2*j}, v{XF+8*i+2*j+1}")
        k(f"buffer_store_dwordx4 {vr(XR+4*i,4)}, v{VS}, {sr(SRD_T,4)}, s{86 + i//2} offen offset:{(i%2)*128} sc1")
    k.stamp("h computed")
    code_prefetch_setup(k, name)
    srd(k, SRD_D, P_WMOD, D * 6 * D * 2)
    k(f"v_mul_u32_u24 v{V_W}, 12288, v{T+1}\nv_lshl_add_u32 v{V_W}, v{T+2}, 4, v{V_W}")
    k(f"s_lshl_b32 s84, s{S_RB1}, 6\nv_add_u32 v{V_C}, s84, v{T+1}\nv_lshlrev_b32 v{V_C}, 1, v{V_C}")
    k(f"s_mul_i32 s86, s84, 12288\ns_lshl_b32 s87, s{S_HP}, 7\ns_add_u32 s86, s86, s87")
    k(f"s_lshl_b32 s94, s{S_WAVE}, 11\ns_add_u32 s{S_MB}, s86, s94\ns_add_u32 s{S_MB}, s{S_MB}, 4096")
    k(f"s_lshl_b32 s94, s{S_WAVE}, 16\ns_lshl_b32 s95, s{S_HP}, 12\ns_add_u32 s94, s94, s95\ns_lshl_b32 s95, s{S_RB1}, 8\ns_add_u32 s94, s94, s95\ns_add_u32 s{S_MO}, s94, {MP_B}")
    k.g3 = setup_gemm3_early(k, opt, LANE, 56)
    publish(k, 89, T)
    k.stamp("h published")
    if opt.get("m_touch", 0) == 2: touch(P_WQKV, 48, 254)
    k("s_barrier")
    g1.prefetch(k, opt.get("h_pre1", 12))
    for i in range(8): k(f"global_load_ushort {ar(A_UT+32+i,1)}, v{V_C}, s[{P_C}:{P_C+1}] offset:{i*16}")
    k(f"v_and_b32 v252, 15, v{LANE}\nv_lshlrev_b32 v252, {FS}, v252\ns_mov_b32 s93, s88")
    staged_wait(k, g1, opt.get("g1_T", 4), 252, 93, 253, one_prod)
    k.stamp("h ready")
    return g1

def setup_gemm24(k, which, opt, base):
    c = Sched(); common_gemm(c)
    K = 1024 if which == 2 else 3584
    NS, R = 4, opt.get(f"g{which}_R", 4)
    STAGE = 8448
    if isinstance(base, tuple): V_RD, V_DMA, V_TOK, LANE, L16, VT = base
    else:
        V_RD, V_DMA, V_TOK, LANE, L16, VT = base, base + 1, base + 2, base + 4, base + 5, base + 6
        lane_id(k, LANE)
        k(f"v_lshlrev_b32 v{L16}, 4, v{LANE}")
    c.LANE, c.L16 = LANE, L16
    hs = c.hs = opt.get("hsplit", 1) and opt.get("split", 1)
    order(c, k, opt, "g2", ["win", [8, 8], 0] if hs else ["win", [1, 1, 2, 4, 8], 1])
    if hs:
        c.w_off = lambda sd, kt: [T(x) for x in c.pos_txt(sd, kt)] + [T(f"s_mul_i32 s{sd}, s{sd}, {128*2048}")] + ([T(f"s_add_u32 s{sd}, s{sd}, {(32 - 8*128)*2048}")] if kt >= 8 else [])
        c.t_off = lambda sd, kt: [T(x) for x in c.pos_txt(sd, kt)] + [T(f"s_lshl_b32 s{sd}, s{sd}, 12")] + ([T(f"s_add_u32 s{sd}, s{sd}, {1024 - 8*4096}")] if kt >= 8 else [])
        c.sub_stride = 2048
    k(f"s_lshr_b32 s80, s{S_WAVE}, 1\ns_and_b32 s81, s{S_WAVE}, 1")
    k(f"s_lshl_b32 s82, s80, {6 if hs else 5}\ns_lshl_b32 s83, s81, 1\ns_add_u32 s82, s82, s83\ns_lshl_b32 s82, s82, 11")
    k(f"s_lshl_b32 s83, s{S_NT}, 7\ns_add_u32 s82, s82, s83")
    k(f"v_lshrrev_b32 v{VT}, 3, v{LANE}\nv_lshlrev_b32 v{VT}, 13, v{VT}")
    k(f"v_and_b32 v{VT+1}, 7, v{LANE}\nv_lshl_add_u32 v{VT}, v{VT+1}, 4, v{VT}")
    k(f"v_add_u32 v{V_DMA}, s82, v{VT}")
    k(f"v_bfe_u32 v{VT}, v{LANE}, 2, 2\nv_mul_u32_u24 v{VT}, 1056, v{VT}")
    k(f"v_lshrrev_b32 v{VT+1}, 4, v{LANE}\nv_lshl_add_u32 v{VT}, v{VT+1}, 7, v{VT}")
    k(f"v_and_b32 v{VT+1}, 3, v{LANE}\nv_lshl_add_u32 v{V_RD}, v{VT+1}, 3, v{VT}")
    k(f"v_add_u32 v{V_RD}, {L_R2}, v{V_RD}")
    k(f"s_lshl_b32 s82, s{S_RB2}, 3\ns_lshl_b32 s83, s{S_WAVE}, 1\ns_add_u32 s82, s82, s83\ns_mul_i32 s82, s82, {K//32*1024}")
    k(f"v_add_u32 v{V_TOK}, s82, v{L16}\nv_add_u32 v{V_TOK+1}, {K//32*1024}, v{V_TOK}")
    k(f"s_mul_i32 s{S_WB}, s80, 4224\ns_mul_i32 s82, s81, 2112\ns_add_u32 s{S_WB}, s{S_WB}, s82\ns_add_u32 s{S_WB}, s{S_WB}, {L_R2}")
    srd(k, SRD_W, P_WO if which == 2 else P_W2, K * D * 2)
    c.NB, c.TB, c.KS, c.SPK, c.KT, c.NS, c.R = 4, 2, 2, 1, K // 64, NS, R
    c.acc = lambda b, t: vr((b * 2 + t) * 4, 4)
    c.tf = lambda slot, ks, t: 64 + ((slot * 2 + ks) * 2 + t) * 4
    c.rd = lambda sl, b, sub, r: (V_RD, sl * STAGE + sub * 4224 + r * 512 + b * 32)
    c.slot_addr = lambda sl: sl * STAGE
    c.dma = [(V_DMA, 0, 0), (V_DMA, 1056, 2048)]
    c.v_tok = [V_TOK, V_TOK + 1]
    c.w_stride = 64 * 2048
    c.drop = opt.get(f"g{which}_drop", ())
    c.pro_units, c.ramp_rate, c.read_margin = opt.get(f"g{which}_pro", 12), opt.get(f"g{which}_ramp", 6), 4
    std_sched(c)
    return c

S_G80, S_G192 = 6, 7
def setup_gemm4p(k, opt, base):
    c = Sched(); common_gemm(c)
    HS = 8448; STAGE = 2 * HS
    L = 12; KT = 28; MAIN = KT - L
    V_RD, V_DE, V_DK, V_TOK, LANE, L16, VT = base, base + 2, base + 3, base + 4, base + 6, base + 7, base + 8
    c.LANE, c.L16, c.V_DE, c.V_DK, c.V_TOK = LANE, L16, V_DE, V_DK, V_TOK
    lane_id(k, LANE)
    k(f"v_lshlrev_b32 v{L16}, 4, v{LANE}")
    c.KT = KT
    order(c, k, opt, "g4", ["win", [4, 4, 8, 8, 4], 0])
    k(f"s_lshr_b32 s80, s{S_WAVE}, 1\ns_and_b32 s81, s{S_WAVE}, 1")
    k(f"s_mul_i32 s{S_G80}, s80, {80*2048}\ns_mul_i32 s{S_G192}, s80, {192*2048}")
    k("s_lshl_b32 s82, s80, 5\ns_lshl_b32 s83, s81, 1\ns_add_u32 s82, s82, s83")
    k(f"s_and_b32 s{S_TMP}, s{S_NT}, 1\ns_mul_i32 s83, s{S_TMP}, 1792\ns_add_u32 s82, s82, s83\ns_lshl_b32 s82, s82, 11")
    k(f"v_lshrrev_b32 v{VT}, 3, v{LANE}\nv_lshlrev_b32 v{VT}, 13, v{VT}")
    k(f"v_and_b32 v{VT+1}, 7, v{LANE}\nv_lshl_add_u32 v{VT}, v{VT+1}, 4, v{VT}")
    k(f"v_add_u32 v{VT}, s82, v{VT}")
    k(f"s_lshl_b32 s83, s{S_NT}, 7\nv_add_u32 v{V_DK}, s83, v{VT}\nv_xor_b32 v{V_DE}, 128, v{V_DK}")
    k(f"v_bfe_u32 v{VT}, v{LANE}, 2, 2\nv_mul_u32_u24 v{VT}, 1056, v{VT}")
    k(f"v_lshrrev_b32 v{VT+1}, 4, v{LANE}\nv_lshl_add_u32 v{VT}, v{VT+1}, 7, v{VT}")
    k(f"v_and_b32 v{VT+1}, 3, v{LANE}\nv_lshl_add_u32 v{V_RD+1}, v{VT+1}, 3, v{VT}")
    k(f"v_add_u32 v{V_RD}, {L_R2}, v{V_RD+1}")
    k(f"s_lshl_b32 s82, s{S_RB2}, 3\ns_lshl_b32 s83, s{S_WAVE}, 1\ns_add_u32 s82, s82, s83\ns_mul_i32 s82, s82, {112*1024}")
    k(f"s_mul_i32 s83, s{S_TMP}, {56*1024}\ns_add_u32 s82, s82, s83")
    k(f"v_add_u32 v{V_TOK}, s82, v{L16}\nv_add_u32 v{V_TOK+1}, {112*1024}, v{V_TOK}")
    k(f"s_mul_i32 s{S_WB}, s80, 4224\ns_mul_i32 s82, s81, 2112\ns_add_u32 s{S_WB}, s{S_WB}, s82")
    srd(k, SRD_W, P_W2, F * D * 2)
    c.drop = opt.get("g4_drop", ())
    V2E, V2K, V2T = 64, 65, 66
    c.V2 = (V2E, V2K, V2T)
    NS4 = opt.get("g4_NS", 8)
    slot_addr = [L_R2, L_R2 + STAGE] + [1024 + i * STAGE for i in range(6)]
    c.V_RD3 = 68; c.V_RD = V_RD
    def rd(sl, half, b, sub, r):
        off = half * HS + sub * 4224 + r * 512 + b * 32
        if sl < 2: return (V_RD, sl * STAGE + off)
        if sl < 5: return (V_RD + 1, slot_addr[sl] + off)
        return (c.V_RD3, slot_addr[sl] - slot_addr[5] + off)
    c.rd3_base = slot_addr[5]
    NT_ = 2 * L
    tf = lambda kt, sub, t: 64 + (((kt * 2 + sub) % NT_) * 2 + t) * 4
    acc = lambda b, t: vr((b * 2 + t) * 4, 4)
    c.wf = lambda buf, j: (buf * 8 + j) * 4
    typ = lambda kt: "A" if kt < 16 else ("B1" if kt < 24 else "B2")
    if opt.get("g4_fast", 1):
        base_pos = c.pos_txt
        def pos2(sd, kt):
            o = base_pos(sd, kt)
            if kt >= 16: return o
            t_ = S_PTMP
            o += [f"s_and_b32 s{t_}, s{sd}, 1", f"s_and_b32 s{sd}, s{sd}, 6", f"s_lshl_b32 s{sd}, s{sd}, 1"]
            o += [f"s_mul_i32 s{t_}, s{t_}, 3"] if kt < 8 else [f"s_add_u32 s{t_}, s{t_}, 1"]
            o += [f"s_add_u32 s{sd}, s{sd}, s{t_}"]
            return o
        c.pos_txt = pos2
    def w_off(sd, kt):
        o = [T(x) for x in c.pos_txt(sd, kt)]
        if typ(kt) == "A": o.append(T(f"s_mul_i32 s{sd}, s{sd}, {112*2048}"))
        elif typ(kt) == "B1": o += [T(f"s_mul_i32 s{sd}, s{sd}, {224*2048}"), T(f"s_add_u32 s{sd}, s{sd}, {(64 - 16*224)*2048}"), T(f"s_add_u32 s{sd}, s{sd}, s{S_G80}")]
        else: o += [T(f"s_mul_i32 s{sd}, s{sd}, {448*2048}"), T(f"s_add_u32 s{sd}, s{sd}, {(96 - 24*448)*2048}"), T(f"s_add_u32 s{sd}, s{sd}, s{S_G192}")]
        return o
    halves = [[("E", kt), ("K", kt)] for kt in range(MAIN)]
    halves += [[("E", MAIN + 2 * j), ("E", MAIN + 2 * j + 1)] for j in range(L // 2)]
    halves += [[("K", MAIN + 2 * j), ("K", MAIN + 2 * j + 1)] for j in range(L // 2)]
    cur = None; flip = 0
    for st, hv in enumerate(halves):
        us = []
        for h, (kind, kt) in enumerate(hv):
            pre = []
            if cur != kt:
                flip ^= 1; cur = kt; pre = w_off(c.s_kw + flip, kt)
            vo = (V2E if kind == 'E' else V2K) if typ(kt) == "B2" else (V_DE if kind == 'E' else V_DK)
            for i, goff in enumerate((0, 2048)):
                us.append((pre if i == 0 else []) + [T(f"s_add_u32 m0, s{S_WB}, {slot_addr[st % NS4] + h * HS + i * 1056 - goff}"),
                          VM(f"buffer_load_dwordx4 v{vo}, {sr(SRD_W,4)}, s{c.s_kw + flip} offen" + (f" offset:{goff}" if goff else "") + " lds", ("dma", st))])
        c.stage_units[st] = us; c.stage_slot[st] = st % NS4
        for j in range(2):
            frags = []; toks = []
            parts = [(0, j), (1, j)] if st < MAIN else [(j, 0), (j, 1)]
            for h, sub in parts:
                kind, kt = hv[h]
                if (kt, sub) not in toks: toks.append((kt, sub))
                for b in range(4):
                    va, o0 = rd(st % NS4, h, b, sub, 0); _, o1 = rd(st % NS4, h, b, sub, 1)
                    frags.append((va, o0, o1, [(acc(b + (0 if kind == 'E' else 4), t), tf(kt, sub, t)) for t in range(2)]))
            c.steps.append(dict(frags=frags, stages=[st], toks=toks))
    for kt in range(KT):
        sd = c.s_kt + kt % 2
        for sub in range(2):
            us = []
            for t in range(2):
                g = []
                if sub == 0 and t == 0:
                    g = [T(x) for x in c.pos_txt(sd, kt)]
                    if typ(kt) == "A": g.append(T(f"s_mul_i32 s{sd}, s{sd}, 3584"))
                    elif typ(kt) == "B1": g += [T(f"s_mul_i32 s{sd}, s{sd}, 7168"), T(f"s_add_u32 s{sd}, s{sd}, {2048 - 16*7168}")]
                    else: g += [T(f"s_mul_i32 s{sd}, s{sd}, 14336"), T(f"s_add_u32 s{sd}, s{sd}, {3072 - 24*14336}")]
                key = ("tok", (kt, sub))
                if typ(kt) == "B2":
                    if sub == 1 and t == 0: g.append(T(f"s_add_u32 s{sd}, s{sd}, 7168"))
                    g.append(VM(f"buffer_load_dwordx2 {ar(tf(kt, sub, t),2)}, v{V2T+t}, {sr(SRD_T,4)}, s{sd} offen sc1", key))
                    g.append(VM(f"buffer_load_dwordx2 {ar(tf(kt, sub, t)+2,2)}, v{V2T+t}, {sr(SRD_T,4)}, s{sd} offen offset:3584 sc1", key))
                else:
                    g.append(VM(f"buffer_load_dwordx4 {ar(tf(kt, sub, t),4)}, v{V_TOK+t}, {sr(SRD_T,4)}, s{sd} offen offset:{sub*(1024 if typ(kt) == 'A' else 3584)} sc1", key))
                us.append(g)
            c.tok_units[(kt, sub)] = us; c.tok_slot[(kt, sub)] = (kt * 2 + sub) % NT_
    c.pro_units, c.ramp_rate, c.read_margin, c.lookahead = opt.get("g4_pro", 12), opt.get("g4_ramp", 5), 4, opt.get("g4_la", 12)
    c.MAIN, c.L = MAIN, L
    return c

def phase_gemm4p(k, c, opt):
    LANE, L16 = c.LANE, c.L16
    VT = 72
    srd(k, SRD_T, P_WS, S * F * 2, WS_HH)
    srd(k, SRD_A, P_OUT, S * D * 2)
    srd(k, SRD_B, P_WS, 8 << 20, WS_P4)
    V_G, V_GA, V_XA, V_X, IMP, VF = 96, 76, 77, 80, 128, 78
    for j in range(16): k(f"v_accvgpr_read_b32 v{V_X+j}, a{A_X1+j}")
    k(f"v_and_b32 v{VT}, 15, v{LANE}\nv_lshlrev_b32 v{VT}, {FS}, v{VT}")
    k(f"s_lshl_b32 s84, s{S_RB2}, 1\ns_lshr_b32 s85, s{S_WAVE}, 1\ns_add_u32 s84, s84, s85\ns_lshl_b32 s84, s84, {FS+5}\ns_add_u32 s84, s84, {F_HH}")
    k(f"s_and_b32 s85, s{S_NT}, 1\ns_lshl_b32 s85, s85, {FS+4}\ns_add_u32 s84, s84, s85")
    k(f"v_mov_b32 v252, v{VT}")
    c.tile_of = lambda key: key[0]
    k(f"s_add_u32 s85, s84, {F_HB - F_HH}")
    staged_wait(k, c, opt.get("g4_T", 8), 252, 84, 253, one_prod, pub=((93 if c.binl else 94), 70))
    add_gate(k, c, 16, f"buffer_load_dword v253, v252, {sr(SRD_F,4)}, s85 offen sc1", 253)
    k.stamp("hh ready")
    p = Txt()
    p(f"v_lshrrev_b32 v{VT}, 4, v{LANE}\nv_lshlrev_b32 v{V_GA}, 4, v{VT}\nv_add_u32 v{V_GA}, {L_MV}, v{V_GA}")
    p(f"v_and_b32 v{VT+1}, 15, v{LANE}\nv_lshlrev_b32 v{VT+1}, 11, v{VT+1}")
    p(f"v_and_b32 v{VT+2}, 1, v{VT}\nv_lshl_add_u32 v{VT+1}, v{VT+2}, 5, v{VT+1}")
    p(f"v_lshrrev_b32 v{VT+2}, 1, v{VT}\nv_lshl_add_u32 v{V_XA}, v{VT+2}, 4, v{VT+1}")
    p(f"s_lshl_b32 s86, s{S_RB2}, 3\ns_lshl_b32 s87, s{S_WAVE}, 1\ns_add_u32 s86, s86, s87\ns_lshl_b32 s86, s86, 15\ns_lshl_b32 s87, s{S_NT}, 7\ns_add_u32 s86, s86, s87\ns_add_u32 s87, s86, 32768")
    p(f"s_lshl_b32 s88, s{S_RB2}, 4\ns_add_u32 s88, s88, s{S_NT}\ns_lshl_b32 s88, s88, 2\ns_add_u32 s88, s88, s{S_WAVE}")
    p("s_xor_b32 s89, s88, 4")
    p(f"s_lshl_b32 s90, s88, 13\ns_add_u32 s91, s90, 4096\ns_lshl_b32 s92, s89, 13\ns_add_u32 s93, s92, 4096")
    p(f"s_lshl_b32 s88, s88, {FS}\ns_add_u32 s88, s88, {F_P4}\ns_lshl_b32 s89, s89, {FS}\ns_add_u32 s89, s89, {F_P4}")
    V2E, V2K, V2T = c.V2
    p(f"v_add_u32 v{c.V_RD3}, {c.rd3_base}, v{c.V_RD+1}")
    p(f"v_lshrrev_b32 v{VT}, 5, v{LANE}\nv_mul_u32_u24 v{VT}, {96*2048}, v{VT}\nv_add_u32 v{V2E}, v{c.V_DE}, v{VT}\nv_add_u32 v{V2K}, v{c.V_DK}, v{VT}")
    p(f"v_lshrrev_b32 v{VT}, 1, v{L16}\nv_sub_u32 v{V2T}, v{c.V_TOK}, v{VT}\nv_sub_u32 v{V2T+1}, v{c.V_TOK+1}, v{VT}")
    p(f"v_mov_b32 v{VT}, 1\nv_mov_b32 v{VT+1}, 0")
    c.pre_loop_txt = p.L
    N = len(c.steps); p2 = N - c.L
    if c.binl:
        nbs = opt.get("binl_steps", 10); per = -(-len(c.binl) // nbs)
        c.gate_min = {16: nbs + 2 + opt.get("binl_gap", 8)}
        items = [VM(x, ("hb", 0)) if is_vm(x) else T(x) for x in c.binl]
        c.step_extra = lambda st: items[st * per:(st + 1) * per]
        c.late.setdefault(nbs + 2, []).extend([WVM([("hb", 0)]), f"buffer_store_dword v{VT}, v{VT+1}, {sr(SRD_F,4)}, s94 offen sc1"])
    for st_ in opt.get("cp4", []): c.late.setdefault(st_, []).extend(code_prefetch_txt(k.name, L16, 254, 80, junk="v240"))
    ex = [VM(f"buffer_store_dwordx4 {vr(4*j,4)}, v{L16}, {sr(SRD_B,4)}, s{90 + j//4} offen offset:{(j%4)*1024} sc1", ("exp", 0)) for j in range(8)]
    ne_ = opt.get("g4_ne", 2)
    for j in range(ne_): c.late[p2 + 1 + j] = ex[j * 8 // ne_:(j + 1) * 8 // ne_]
    c.late[p2 + opt.get("g4_fs", 6)] = [WVM([("exp", 0)]), f"buffer_store_dword v{VT}, v{VT+1}, {sr(SRD_F,4)}, s88 offen sc1"]
    c.late[N - 3] = [VM(f"buffer_load_dword v{VF}, v{VT+1}, {sr(SRD_F,4)}, s89 offen sc1", ("pf", 0))]
    c.last_reads = [f"ds_read_b128 {vr(V_G+4*b,4)}, v{V_GA} offset:{768+b*64}" for b in range(4)]
    m = Txt(); m.label = k.label
    okl = k.label("pok")
    m(f"v_cmp_eq_u32 vcc, 0, v{VF}\ns_cmp_eq_u64 vcc, 0\ns_cbranch_scc1 {okl}")
    spin(m, [f"buffer_load_dword v{VF}, v{VT+1}, {sr(SRD_F,4)}, s89 offen sc1"], [VF], 0)
    m(f"{okl}:")
    c.late[N - 1] = [WVM([("pf", 0)]), T("\n".join(m.L))] + [f"buffer_load_dwordx4 {vr(IMP+4*j,4)}, v{L16}, {sr(SRD_B,4)}, s{92 + j//4} offen offset:{(j%4)*1024} sc1" for j in range(8)]
    c.run(k)
    k.stamp("g4 loop done")
    A = lambda b, t: 32 + (b * 2 + t) * 4
    XT = 112
    XF = 160
    for j in range(16): k(f"v_lshlrev_b32 v{XF+2*j}, 16, v{V_X+j}\nv_and_b32 v{XF+2*j+1}, 0xffff0000, v{V_X+j}")
    k("s_waitcnt vmcnt(0) lgkmcnt(0)")
    for t in range(2):
        for b in range(4):
            for h in range(2): k(f"v_pk_add_f32 {vr(A(b,t)+2*h,2)}, {vr(A(b,t)+2*h,2)}, {vr(IMP+(b*2+t)*4+2*h,2)}")
            for h in range(2): k(f"v_pk_fma_f32 {vr(A(b,t)+2*h,2)}, {vr(A(b,t)+2*h,2)}, {vr(V_G+4*b+2*h,2)}, {vr(XF+(t*4+b)*4+2*h,2)}")
        PK = XT + t * 8
        for b in range(4): k(f"v_cvt_pk_bf16_f32 v{PK+2*b}, v{A(b,t)}, v{A(b,t)+1}\nv_cvt_pk_bf16_f32 v{PK+2*b+1}, v{A(b,t)+2}, v{A(b,t)+3}")
        k("s_nop 1")
        for s_ in range(2): k(f"v_permlane16_swap_b32 v{PK+4*s_}, v{PK+4*s_+2}\nv_permlane16_swap_b32 v{PK+4*s_+1}, v{PK+4*s_+3}")
        for s_ in range(2): k(f"buffer_store_dwordx4 {vr(PK+4*s_,4)}, v{V_XA}, {sr(SRD_A,4)}, s{86+t} offen offset:{s_*64}")

def phase_gemm1(k, c, opt):
    LANE, L16, VT = c.LANE, c.L16, c.VT
    PHK, VV, SH, UTX = 0, 34816, 114688, 126976
    A_PH = 160
    p = Txt()
    srd(p, SRD_A, P_WPHI, H * 2048)
    srd(p, SRD_B, P_WS, 2 << 20, WS_KVP)
    srd(p, SRD_C, P_WS, 128 << 10, WS_ZP)
    A_PW, A_VW, A_PR, A_VR, A_WR = 110, 111, 112, 113, 114
    p(f"s_lshr_b32 s80, s{S_WAVE}, 1\ns_and_b32 s81, s{S_WAVE}, 1")
    p(f"v_and_b32 v{VT}, 15, v{LANE}\ns_lshl_b32 s82, s{S_WAVE}, 5\nv_add_u32 v{VT}, s82, v{VT}")
    p(f"v_lshrrev_b32 v{VT+1}, 4, v{LANE}\nv_lshlrev_b32 v{VT+1}, 3, v{VT+1}")
    p(f"v_mul_u32_u24 v{A_PW}, 136, v{VT}\nv_add_u32 v{A_PW}, v{A_PW}, v{VT+1}")
    p(f"v_mul_u32_u24 v{A_VW}, 72, v{VT}\nv_add_u32 v{A_VW}, v{A_VW}, v{VT+1}")
    p(f"v_lshrrev_b32 v{VT}, 2, v{LANE}\nv_and_b32 v{VT+1}, 3, v{LANE}\nv_lshlrev_b32 v{VT+1}, 3, v{VT+1}")
    p(f"s_mul_i32 s82, s80, 17408\ns_lshl_b32 s83, s81, 6\ns_add_u32 s82, s82, s83")
    p(f"v_mul_u32_u24 v{A_PR}, 136, v{VT}\nv_add_u32 v{A_PR}, v{A_PR}, v{VT+1}\nv_add_u32 v{A_PR}, s82, v{A_PR}")
    p(f"s_mul_i32 s82, s80, 9216")
    p(f"v_mul_u32_u24 v{A_VR}, 72, v{VT}\nv_add_u32 v{A_VR}, v{A_VR}, v{VT+1}\nv_add_u32 v{A_VR}, s82, v{A_VR}")
    p(f"v_lshl_add_u32 v{A_WR}, v{VT}, 6, v{VT+1}\nv_add_u32 v{A_WR}, {L_WPH}, v{A_WR}")
    ONES, SEL = 116, 120
    for j in range(4): p(f"v_mov_b32 v{ONES+j}, 0x3f803f80")
    p(f"v_bfe_u32 v{VT}, v{LANE}, 2, 2\nv_lshrrev_b32 v{VT+1}, 4, v{LANE}")
    p(f"v_cmp_eq_u32 vcc, v{VT}, v{VT+1}")
    p(f"v_and_b32 v{VT}, 1, v{LANE}\nv_lshlrev_b32 v{VT}, 4, v{VT}\nv_mov_b32 v{VT+1}, 0x3f80\nv_lshlrev_b32 v{VT+1}, v{VT}, v{VT+1}")
    p(f"v_cndmask_b32 v{VT+1}, 0, v{VT+1}, vcc")
    p(f"v_and_b32 v{VT}, 2, v{LANE}\nv_cmp_eq_u32 vcc, 0, v{VT}")
    for j in (0, 1, 4, 5): p(f"v_mov_b32 v{SEL+j}, 0")
    p(f"v_cndmask_b32 v{SEL+2}, 0, v{VT+1}, vcc\nv_cndmask_b32 v{SEL+3}, v{VT+1}, 0, vcc")
    p(f"s_mov_b32 s94, {LOG2E!r}\ns_mov_b32 s95, {LOG2E!r}")
    p(f"s_lshl_b32 s84, s{S_HP}, 12\ns_lshl_b32 s85, s{S_WAVE}, 10\ns_add_u32 s84, s84, s85\ns_add_u32 s85, s85, {L_WPH}")
    c.pre_loop_txt = p.L
    c.late = {4: ["s_mov_b32 m0, s85", f"buffer_load_dwordx4 v{L16}, {sr(SRD_A,4)}, s84 offen lds"]}
    if opt.get("cpf", 1): c.late[22] = code_prefetch_txt(k.name, L16, 254, 80)
    ml = modb_loads(S_MB, 115, 109)
    ms = opt.get("modb_steps", [16] * 8)
    if opt.get("modb_front", 0):
        lb = k.label("skw0")
        c.late.setdefault(ms[0], []).append(T("\n".join([f"s_cmp_lg_u32 s{S_WAVE}, 0", f"s_cbranch_scc1 {lb}"] + [x for g in ml for x in g] + [f"{lb}:"])))
        ml = []
    else:
        for st_, g in zip(ms, ml): c.late.setdefault(st_, []).extend(g)
        ml = ml[len(ms):]
    c.last_reads = [f"ds_read_b64_tr_b16 {ar(A_PH+(hh*2+fb)*4+2*r,2)}, v{A_WR} offset:{hh*2048+r*1024+fb*32}" for hh in range(2) for fb in range(2) for r in range(2)]
    c.run(k)
    k.stamp("g1 loop done")
    A = lambda b, t: (b * 2 + t) * 4
    BF, P1, P2, MX, MN, EK = 126, 142, 174, 206, 214, 222
    groups = [(hh, t) for hh in range(2) for t in range(2)]
    def fm_part1(seg):
        for g, (hh, t) in enumerate(groups):
            for db in range(2):
                a = A(seg * 4 + hh * 2 + db, t)
                k(f"v_cvt_pk_bf16_f32 v{BF+g*4+db*2}, v{a}, v{a+1}\nv_cvt_pk_bf16_f32 v{BF+g*4+db*2+1}, v{a+2}, v{a+3}")
        k("s_nop 1")
        for g, (hh, t) in enumerate(groups):
            for fb in range(2):
                k(f"{MF} {vr(P1+g*8+fb*4,4)}, {ar(A_PH+(hh*2+fb)*4,4)}, {vr(BF+g*4,4)}, 0")
    def fm_part2():
        for op3, op2, M in (("v_max3_f32", "v_max_f32", MX), ("v_min3_f32", "v_min_f32", MN)):
            for g in range(4):
                b = P1 + g * 8
                k(f"{op3} v{M+2*g}, v{b}, v{b+1}, v{b+2}\n{op3} v{M+2*g}, v{M+2*g}, v{b+3}, v{b+4}\n{op3} v{M+2*g}, v{M+2*g}, v{b+5}, v{b+6}\n{op2} v{M+2*g}, v{M+2*g}, v{b+7}")
            treduce4(k, op2, [M + 2 * g for g in range(4)])
        for g in range(4):
            k(f"v_mul_f32 v{MX+2*g}, {-LOG2E!r}, v{MX+2*g}\nv_mul_f32 v{MN+2*g}, {LOG2E!r}, v{MN+2*g}")
    def fm_part3(E):
        for g in range(4):
            for j in range(4):
                b = g * 8 + 2 * j
                k(f"v_pk_fma_f32 {vr(P2+b,2)}, {vr(P1+b,2)}, s[94:95], {vr(MN+2*g,2)} op_sel_hi:[1,1,0] neg_lo:[1,0,0] neg_hi:[1,0,0]")
                k(f"v_pk_fma_f32 {vr(P1+b,2)}, {vr(P1+b,2)}, s[94:95], {vr(MX+2*g,2)} op_sel_hi:[1,1,0]")
            for j in range(8): k(f"v_exp_f32 v{P1+g*8+j}, v{P1+g*8+j}")
            for j in range(8): k(f"v_exp_f32 v{P2+g*8+j}, v{P2+g*8+j}")
            k("s_nop 0")
            for sg, PP in enumerate((P1, P2)):
                for j in range(4): k(f"v_cvt_pk_bf16_f32 v{E+(g*2+sg)*4+j}, v{PP+g*8+2*j}, v{PP+g*8+2*j+1}")
    for g in ml:
        for x in g: k(x)
    k("s_waitcnt lgkmcnt(0)\ns_nop 7")
    fm_part1(1)
    k("s_barrier")
    mark0 = len(k.L)
    for g, (hh, t) in enumerate(groups):
        for db in range(2):
            a = A(8 + hh * 2 + db, t)
            k(f"v_cvt_pk_bf16_f32 v{a}, v{a}, v{a+1}\nv_cvt_pk_bf16_f32 v{a+1}, v{a+2}, v{a+3}")
            k(f"ds_write_b64 v{A_VW}, {vr(a,2)} offset:{VV + hh*9216 + t*16*72 + db*32}")
    fm_part2()
    fm_part3(EK)
    SM = 32
    k("s_nop 1")
    for i in range(8): k(f"{MF} {vr(SM+4*i,4)}, {vr(ONES,4)}, {vr(EK+4*i,4)}, 0")
    k("s_nop 7")
    for i in range(8): k(f"v_rcp_f32 v{SM+4*i}, v{SM+4*i}")
    for g, (hh, t) in enumerate(groups):
        for sg, PP in enumerate((P1, P2)):
            for j in range(4):
                k(f"v_pk_mul_f32 {vr(PP+g*8+2*j,2)}, {vr(PP+g*8+2*j,2)}, {vr(SM+(g*2+sg)*4,2)} op_sel_hi:[1,0]")
            for fb in range(2):
                b = PP + g * 8 + fb * 4
                k(f"v_cvt_pk_bf16_f32 v{b}, v{b}, v{b+1}\nv_cvt_pk_bf16_f32 v{b+1}, v{b+2}, v{b+3}")
                k(f"ds_write_b64 v{A_PW}, {vr(b,2)} offset:{PHK + hh*17408 + t*16*136 + sg*64 + fb*32}")
    sprinkle(k, mark0, g3_early_units(k.g3, opt.get("g3_e1", 14), 254))
    k("s_waitcnt lgkmcnt(0)\ns_barrier")
    for s_ in range(4):
        for r in range(2):
            for fb in range(2): k(f"ds_read_b64_tr_b16 {ar(s_*16+fb*4+2*r,2)}, v{A_PR} offset:{PHK + (32*s_+16*r)*136 + fb*32}")
            for db in range(2): k(f"ds_read_b64_tr_b16 {ar(s_*16+8+db*4+2*r,2)}, v{A_VR} offset:{VV + (32*s_+16*r)*72 + db*32}")
    fm_part1(0)
    KV, ZZ = 64, 80
    for s_ in range(4):
        k(f"s_waitcnt lgkmcnt({min(15, 24 - 8*s_)})")
        for fb in range(2):
            for db in range(2):
                d = vr(KV + (db * 2 + fb) * 4, 4)
                k(f"{MF} {d}, {ar(s_*16+fb*4,4)}, {ar(s_*16+8+db*4,4)}, {'0' if s_ == 0 else d}")
            d = vr(ZZ + fb * 4, 4)
            k(f"{MF} {d}, {ar(s_*16+fb*4,4)}, {vr(ONES,4)}, {'0' if s_ == 0 else d}")
    k(f"s_lshl_b32 s82, s{S_HP}, 2\ns_add_u32 s82, s82, s{S_WAVE}")
    k("s_lshl_b32 s83, s82, 15")
    k(f"s_lshl_b32 s84, s{S_RB1}, 10\ns_add_u32 s84, s84, s83\ns_add_u32 s85, s84, 16384")
    k("s_lshl_b32 s90, s82, 11")
    k(f"s_lshl_b32 s91, s82, {FS+4}\ns_add_u32 s91, s91, {F_KV}\ns_lshl_b32 s92, s{S_RB1}, {FS}\ns_add_u32 s92, s92, s91")
    k(f"v_and_b32 v{VT}, 15, v{LANE}\nv_cmp_eq_u32 vcc, s{S_RB1}, v{VT}")
    k("s_nop 2")
    for db in range(2):
        for j in range(4): k(f"v_cvt_pk_bf16_f32 v{88+db*4+j}, v{KV+db*8+2*j}, v{KV+db*8+2*j+1}")
    k(f"buffer_store_dwordx4 {vr(88,4)}, v{L16}, {sr(SRD_B,4)}, s84 offen sc1")
    k(f"buffer_store_dwordx4 {vr(92,4)}, v{L16}, {sr(SRD_B,4)}, s85 offen sc1")
    k("s_and_saveexec_b64 s[96:97], vcc")
    k(f"buffer_store_dwordx4 {vr(ZZ,4)}, v{L16}, {sr(SRD_C,4)}, s90 offen sc1")
    k(f"buffer_store_dwordx4 {vr(ZZ+4,4)}, v{L16}, {sr(SRD_C,4)}, s90 offen offset:1024 sc1")
    k("s_mov_b64 exec, s[96:97]")
    k.stamp("kv stored")
    fm_part2()
    publish(k, 92, VT + 1)
    k.stamp("kv published")
    k("s_mov_b32 s93, s83")
    g2 = setup_gemm24(k, 2, opt, 96)
    k("s_mov_b32 s83, s93")
    g2.prefetch(k, 8)
    fm_part3(EK)
    k(f"v_lshlrev_b32 v{VT}, {FS}, v{VT}")
    wait_flags(k, [(VT, 91, 1)], VT + 1)
    k.stamp("kv ready")
    k(f"buffer_load_dwordx4 {vr(ZZ,4)}, v{L16}, {sr(SRD_C,4)}, s90 offen sc1")
    k(f"buffer_load_dwordx4 {vr(ZZ+4,4)}, v{L16}, {sr(SRD_C,4)}, s90 offen offset:1024 sc1")
    for i in range(32):
        if i % 4 == 0 and i: k("s_add_u32 s83, s83, 4096")
        k(f"buffer_load_dwordx4 {ar(4*i,4)}, v{L16}, {sr(SRD_B,4)}, s83 offen offset:{(i%4)*1024} sc1")
    srd(k, SRD_T, P_WS, S * D * 2, WS_O)
    k("s_waitcnt vmcnt(32)")
    for sh in (8, 4, 2, 1):
        for j in range(8): k(f"v_add_f32_dpp v{ZZ+j}, v{ZZ+j}, v{ZZ+j} row_ror:{sh} row_mask:0xf bank_mask:0xf")
    k(f"v_and_b32 v{VT+1}, 1, v{LANE}\nv_cmp_eq_u32 vcc, 0, v{VT+1}")
    for j in range(4): k(f"v_cvt_pk_bf16_f32 v{BF+8+j}, v{ZZ+2*j}, v{ZZ+2*j+1}")
    for j in range(4): k(f"v_cndmask_b32 v{BF+8+j}, v{ONES}, v{BF+8+j}, vcc")
    for i in range(32):
        db, pp = divmod(i, 16)
        if i % 2 == 0: k(f"s_waitcnt vmcnt({30 - i})")
        for fb in range(2):
            d = vr(KV + (db * 2 + fb) * 4, 4)
            k(f"{MF} {d}, {vr(SEL + (2 if fb == 0 else 0), 4)}, {ar(4*i,4)}, {'0' if pp == 0 else d}")
    k(f"s_mul_i32 s82, s{S_WAVE}, 3072\ns_add_u32 s82, s82, {SH}")
    k(f"v_add_u32 v{VT+1}, s82, v{L16}\nv_add_u32 v{VT+2}, {SH}, v{L16}")
    k("s_nop 6")
    for db in range(2):
        for j in range(4): k(f"v_cvt_pk_bf16_f32 v{BF+db*4+j}, v{KV+db*8+2*j}, v{KV+db*8+2*j+1}")
    for j in range(3): k(f"ds_write_b128 v{VT+1}, {vr(BF+4*j,4)} offset:{j*1024}")
    k("s_waitcnt lgkmcnt(0)\ns_barrier")
    for i in range(12): k(f"ds_read_b128 {ar(4*i,4)}, v{VT+2} offset:{i*1024}")
    k(f"s_lshl_b32 s82, s{S_RB1}, 3\ns_lshl_b32 s83, s{S_WAVE}, 1\ns_add_u32 s82, s82, s83\ns_lshl_b32 s82, s82, 15")
    k(f"s_lshl_b32 s83, s{S_HP}, 11\ns_add_u32 s82, s82, s83\ns_add_u32 s83, s82, 0x8000")
    k(f"s_lshl_b32 s84, s{S_RB1}, 2\ns_add_u32 s84, s84, s{S_WAVE}\ns_lshl_b32 s84, s84, {FS+4}\ns_lshl_b32 s85, s{S_HP}, {FS}\ns_add_u32 s84, s84, s85\ns_add_u32 s84, s84, {F_O}")
    k("s_waitcnt lgkmcnt(0)")
    for g, (hh, t) in enumerate(groups):
        for sg in range(2):
            for j in range(3):
                k(f"{MF} {vr((g*2+sg)*12+4*j,4)}, {ar(((hh*2+sg)*3+j)*4,4)}, {vr(EK+(g*2+sg)*4,4)}, 0")
    k("s_nop 7")
    for g, (hh, t) in enumerate(groups):
        n1, n2 = g * 24, g * 24 + 12
        D1, S1, D2, S2 = n1 + 8, n1 + 9, n2 + 8, n2 + 9
        k(f"v_mul_f32 v{n1+10}, v{S1}, v{S2}")
        k(f"v_mul_f32 v{n1+10}, 0x358637bd, v{n1+10}")
        k(f"v_fmac_f32 v{n1+10}, v{D1}, v{S2}\nv_fmac_f32 v{n1+10}, v{D2}, v{S1}")
        k(f"v_rcp_f32 v{n1+10}, v{n1+10}")
        k("s_nop 0")
        k(f"v_mul_f32 v{D1}, v{S2}, v{n1+10}\nv_mul_f32 v{D2}, v{S1}, v{n1+10}")
        for j in range(4): k(f"v_pk_mul_f32 {vr(n1+2*j,2)}, {vr(n1+2*j,2)}, {vr(D1,2)} op_sel_hi:[1,0]")
        for j in range(4): k(f"v_pk_fma_f32 {vr(n1+2*j,2)}, {vr(n2+2*j,2)}, {vr(D2,2)}, {vr(n1+2*j,2)} op_sel_hi:[1,0,1]")
        for j in range(4): k(f"v_cvt_pk_bf16_f32 v{n2+j}, v{n1+2*j}, v{n1+2*j+1}")
        k(f"buffer_store_dwordx4 {vr(n2,4)}, v{L16}, {sr(SRD_T,4)}, s{82+t} offen offset:{hh*1024} sc1")
    k.stamp("o stored")
    CU, AU, WW, TT = 128, 144, 152, 156
    for i in range(8): k(f"v_accvgpr_read_b32 v{CU+2*i}, a{A_UT+32+i}")
    silu_block(k, [CU + 2 * i for i in range(8)])
    mko = len(k.L)
    g2.V_X = 48
    srd(k, SRD_A, P_X, S * D * 2)
    V_XA = 47
    k(f"v_lshrrev_b32 v{VT+1}, 4, v{LANE}")
    k(f"v_and_b32 v{VT+2}, 15, v{LANE}\nv_lshlrev_b32 v{VT+2}, 11, v{VT+2}\nv_lshl_add_u32 v{V_XA}, v{VT+1}, 3, v{VT+2}")
    k(f"s_lshl_b32 s82, s{S_RB2}, 3\ns_lshl_b32 s83, s{S_WAVE}, 1\ns_add_u32 s82, s82, s83\ns_lshl_b32 s82, s82, 15\ns_lshl_b32 s83, s{S_NT}, 7\ns_add_u32 s82, s82, s83\ns_add_u32 s83, s82, 32768")
    for t in range(2):
        for b in range(4):
            k(f"buffer_load_dwordx2 {vr(g2.V_X+(t*4+b)*2,2)}, v{V_XA}, {sr(SRD_A,4)}, s{82+t} offen offset:{b*32}")
    publish(k, 84, VT + 2, mko)
    k.stamp("o published")
    mark1 = len(k.L)
    for j in range(8): k(f"v_mov_b32 v{AU+j}, 0")
    for i in range(8):
        for d in range(4): k(f"v_accvgpr_read_b32 v{WW+d}, a{A_UT+4*i+d}")
        for d in range(4):
            k(f"v_lshlrev_b32 v{TT}, 16, v{WW+d}\nv_and_b32 v{TT+1}, 0xffff0000, v{WW+d}")
            k(f"v_pk_fma_f32 {vr(AU+2*d,2)}, {vr(TT,2)}, {vr(CU+2*i,2)}, {vr(AU+2*d,2)} op_sel_hi:[1,0,1]")
    k("s_nop 1")
    for j in range(4): k(f"v_permlane32_swap_b32 v{AU+j}, v{AU+j+4}")
    k("s_nop 1")
    for j in range(4): k(f"v_add_f32 v{AU+j}, v{AU+j}, v{AU+j+4}")
    k("s_nop 1")
    for j in range(2): k(f"v_permlane16_swap_b32 v{AU+j}, v{AU+j+2}")
    k("s_nop 1")
    for j in range(2): k(f"v_add_f32 v{AU+j}, v{AU+j}, v{AU+j+2}")
    k("s_nop 1")
    for j in range(2): k(f"v_add_f32_dpp v{AU+j}, v{AU+j}, v{AU+j} row_ror:8 row_mask:0xf bank_mask:0xf")
    sprinkle(k, mark1, g3_early_units(k.g3, opt.get("g3_e2", 7), 254), skip=0)
    k(f"v_and_b32 v{TT}, 7, v{LANE}\nv_lshlrev_b32 v{TT}, 5, v{TT}\nv_lshrrev_b32 v{TT+1}, 5, v{LANE}\nv_lshl_add_u32 v{TT}, v{TT+1}, 4, v{TT}")
    k(f"v_bfe_u32 v{TT+1}, v{LANE}, 4, 1\nv_lshl_add_u32 v{TT}, v{TT+1}, 3, v{TT}")
    srd(k, SRD_D, P_WS, MP_BYTES, WS_MODP)
    k(f"v_or_b32 v{AU}, 1, v{AU}\nv_or_b32 v{AU+1}, 1, v{AU+1}")
    k(f"buffer_store_dwordx2 {vr(AU,2)}, v{TT}, {sr(SRD_D,4)}, s{S_MO} offen sc1")
    return g2

A_PARK = 224
S3_SRD, S3_WB, S3_KW = 64, 68, 69
def setup_gemm3_early(k, opt, LANE, VT):
    c = Sched(); common_gemm(c)
    NS, R = 4, 8
    STAGE = 28672
    V_RD, V_DMA, V_TOK = 224, 226, 233
    c.V_RD, c.V_DMA, c.V_TOK, c.LANE, c.L16, c.VT = V_RD, V_DMA, V_TOK, 237, 238, 248
    c.srd_w, c.s_wbase, c.s_kw = S3_SRD, S3_WB, S3_KW
    order(c, k, opt, 'g3', ['win', [4, 4, 8], 0])
    if opt.get("g3map", 0): c.s_rot, c.s_rot2 = 73, 72
    k(f"s_lshr_b32 s80, s{S_WAVE}, 1\ns_and_b32 s81, s{S_WAVE}, 1")
    k(f"s_mul_i32 s83, s80, {32*7168}\ns_mul_i32 s{S_TMP}, s{S_FT}, 224\ns_add_u32 s83, s83, s{S_TMP}")
    for i in range(7):
        k(f"v_add_u32 v{VT+2}, {i*64}, v{LANE}")
        k(f"v_mul_u32_u24 v{VT+3}, 4682, v{VT+2}")
        k(f"v_lshrrev_b32 v{VT+3}, 16, v{VT+3}")
        k(f"v_mul_u32_u24 v{VT+4}, 14, v{VT+3}")
        k(f"v_sub_u32 v{VT+4}, v{VT+2}, v{VT+4}")
        k(f"v_mul_u32_u24 v{VT+3}, 7168, v{VT+3}")
        k(f"v_lshl_add_u32 v{VT+3}, v{VT+4}, 4, v{VT+3}")
        k(f"v_add_u32 v{VT+3}, s83, v{VT+3}")
        k(f"v_accvgpr_write_b32 a{A_PARK+i}, v{VT+3}")
    k(f"s_mul_i32 s{S3_WB}, s81, 14336\ns_mul_i32 s82, s80, 7168\ns_add_u32 s{S3_WB}, s{S3_WB}, s82")
    k(f"s_cmp_eq_u32 s81, 0\ns_cselect_b32 s{S3_SRD}, s{P_W1}, s{P_W3}\ns_cselect_b32 s{S3_SRD+1}, s{P_W1+1}, s{P_W3+1}")
    k(f"s_mov_b32 s{S3_SRD+2}, {D*F*2}\ns_mov_b32 s{S3_SRD+3}, 0x20000")
    c.NB, c.TB, c.KS, c.SPK, c.KT, c.NS, c.R = 14, 4, 1, 2, 16, NS, R
    c.acc = lambda b, t: vr((b * 4 + t) * 4, 4)
    c.tf = lambda slot, ks, t: 112 + (slot * 4 + t) * 4
    ph = lambda sl: 3 - sl
    c.rd = lambda sl, b, sub, r: (V_RD + ph(sl) // 2, (ph(sl) % 2) * STAGE + (b % 2) * 14336 + (32 * sub + 16 * r) * 224 + 32 * (b // 2))
    c.slot_addr = lambda sl: ph(sl) * STAGE
    c.dma = [(V_DMA + i, i * 1024, 0) for i in range(7)]
    c.v_tok = [V_TOK + t for t in range(4)]
    c.w_stride = 64 * 7168
    c.drop = opt.get("g3_drop", ())
    c.pro_units, c.ramp_rate, c.read_margin = opt.get("g3_pro", 8), (lambda st: opt.get("g3_ramp", 10) if st < 6 else 8), 8
    c.lookahead = opt.get("g3_la", 4)
    std_sched(c)
    TL = c.TL = opt.get("g3_tail", 0)
    if TL:
        tail = c.steps[32 - TL:]
        c.steps = c.steps[:32 - TL] + [dict(st, frags=st["frags"][:8]) for st in tail] + [dict(st, frags=st["frags"][8:]) for st in tail]
    return c
def g3_early_units(c, n, vtmp):
    out = []
    for j in range(n):
        t = c.prefetch_txt(1)
        i = (c.pre_dma - 1) % 7
        ld = t[-1].replace(f"v{c.V_DMA+i},", f"v{vtmp},")
        out.append(t[:-1] + [f"v_accvgpr_read_b32 v{vtmp}, a{A_PARK+i}", ld])
    return out
def setup_gemm3_late(k, c):
    V_RD, V_DMA, V_TOK, LANE, L16, VT = c.V_RD, c.V_DMA, c.V_TOK, c.LANE, c.L16, c.VT
    lane_id(k, LANE)
    k(f"v_lshlrev_b32 v{L16}, 4, v{LANE}")
    for i in range(7): k(f"v_accvgpr_read_b32 v{V_DMA+i}, a{A_PARK+i}")
    k(f"v_lshrrev_b32 v{VT+3}, 2, v{LANE}\nv_mul_u32_u24 v{VT+3}, 224, v{VT+3}")
    k(f"v_and_b32 v{VT+4}, 3, v{LANE}\nv_lshl_add_u32 v{V_RD}, v{VT+4}, 3, v{VT+3}")
    k(f"v_add_u32 v{V_RD+1}, {2*28672}, v{V_RD}")
    k(f"s_lshl_b32 s82, s{S_RB3}, 4\ns_lshl_b32 s83, s{S_WAVE}, 2\ns_add_u32 s82, s82, s83\ns_lshl_b32 s82, s82, 15")
    k(f"v_add_u32 v{V_TOK}, s82, v{L16}")
    for t in range(1, 4): k(f"v_add_u32 v{V_TOK+t}, {t*0x8000}, v{V_TOK}")

def sprinkle(k, mark, groups, skip=4):
    if not groups: return
    seg = k.L[mark:]
    stepn = max(1, (len(seg) - skip) // len(groups))
    out, q = [], list(groups)
    for i, x in enumerate(seg):
        out.append(x)
        if q and i >= skip and (i - skip) % stepn == 0:
            assert not x.startswith("s_cmp") and not x.startswith("s_and_saveexec")
            out += q.pop(0)
    for g in q: out += g
    k.L[mark:] = out

A_X1 = 240
def phase_gemm2(k, c, opt):
    LANE, L16 = c.LANE, c.L16
    VT = 40
    k(f"v_and_b32 v252, 15, v{LANE}\nv_lshlrev_b32 v252, {FS}, v252")
    k(f"s_lshl_b32 s84, s{S_RB2}, 2\ns_add_u32 s84, s84, s{S_WAVE}\ns_lshl_b32 s84, s84, {FS+4}\ns_add_u32 s85, s84, {F_O}")
    if c.hs:
        k(f"s_add_u32 s94, s85, {F_O2 - F_O}")
        staged_wait(k, c, opt.get("g2_T", 5), 252, 85, 253, lambda sp, st: [f"s_lshl_b32 s{st}, s{sp}, 1", f"s_lshl_b32 s{st}, 3, s{st}"], pub=(95, 26))
        add_gate(k, c, 8, f"buffer_load_dword v253, v252, {sr(SRD_F,4)}, s94 offen sc1", 253)
    else:
        staged_wait(k, c, opt.get("g2_T", 6), 252, 85, 253, one_prod)
    k.stamp("o ready")
    V_G, V_C, V_S, V_GA = 64, 80, 136, 44
    p = Txt()
    srd(p, SRD_A, P_WS, S * D * 2, WS_Y)
    srd(p, SRD_B, P_WS, S * 128, WS_STAT)
    srd(p, SRD_D, P_WS, MP_BYTES, WS_MODP)
    p(f"v_lshrrev_b32 v{V_GA}, 4, v{LANE}\nv_lshlrev_b32 v{V_GA}, 4, v{V_GA}\nv_add_u32 v{V_GA}, {L_MV}, v{V_GA}")
    p(f"s_lshl_b32 s86, s{S_RB2}, 3\ns_lshl_b32 s87, s{S_WAVE}, 1\ns_add_u32 s86, s86, s87")
    p(f"s_lshl_b32 s88, s86, 15\ns_lshl_b32 s87, s{S_NT}, 11\ns_add_u32 s88, s88, s87\ns_add_u32 s89, s88, 32768")
    p(f"s_lshl_b32 s87, s{S_NT}, {FS}\ns_add_u32 s84, s84, s87\ns_add_u32 s84, s84, {F_Y}")
    p(f"s_lshl_b32 s91, s86, 11\ns_lshl_b32 s90, s{S_NT}, 8\ns_add_u32 s90, s90, s91")
    p(f"s_lshl_b32 s92, s{S_WAVE}, 16\ns_lshl_b32 s93, s{S_NT}, 12\ns_add_u32 s92, s92, s93\ns_add_u32 s92, s92, {MP_B}")
    p(f"v_lshlrev_b32 v{VT}, 2, v{LANE}")
    for g in g3_early_units(k.g3, opt.get("g3_e2p", 0), 254): p.L += g
    c.pre_loop_txt = p.L
    c.late = {}
    for j, st_ in enumerate(opt.get("g3_e2s", [])):
        for g in g3_early_units(k.g3, 7 // len(opt["g3_e2s"]) + (1 if j < 7 % len(opt["g3_e2s"]) else 0), 254): c.late.setdefault(st_, []).extend(g)
    if opt.get("cpf", 1): c.late.setdefault(6, []).extend(code_prefetch_txt(k.name, L16, 254, 80))
    m = Txt(); m.label = k.label
    MB_ = 160
    mld = [f"buffer_load_dword v{MB_+j}, v{VT}, {sr(SRD_D,4)}, s92 offen offset:{j*256} sc1" for j in range(16)]
    okm = k.label("mok")
    m(f"v_min_u32 v{MB_+16}, v{MB_}, v{MB_+1}")
    for j in range(2, 16, 2): m(f"v_min3_u32 v{MB_+16}, v{MB_+16}, v{MB_+j}, v{MB_+j+1}")
    m(f"v_cmp_eq_u32 vcc, 0, v{MB_+16}\ns_cmp_eq_u64 vcc, 0\ns_cbranch_scc1 {okm}")
    spin(m, mld, [MB_ + j for j in range(16)], MB_ + 16)
    m(f"{okm}:")
    mchk = "\n".join(m.L); m.L = []
    for st in (4, 2, 1):
        for j in range(st): m(f"v_pk_add_f32 {vr(MB_+2*j,2)}, {vr(MB_+2*j,2)}, {vr(MB_+2*(j+st),2)}")
    m(f"v_add_f32 v{MB_}, v{MB_}, v{MB_+1}")
    round_bf16(m, MB_)
    m(f"v_add_f32 v{MB_+1}, 1.0, v{MB_}"); round_bf16(m, MB_ + 1)
    m(f"s_cmp_eq_u32 s{S_WAVE}, 2\ns_cselect_b64 vcc, -1, 0")
    m(f"v_cndmask_b32 v{MB_}, v{MB_}, v{MB_+1}, vcc")
    m(f"s_lshl_b32 s92, s{S_WAVE}, 8\ns_add_u32 s92, s92, {L_MV}\nv_add_u32 v{VT}, s92, v{VT}")
    m(f"ds_write_b32 v{VT}, v{MB_}")
    ms_ = opt.get("g2_modstep", 13)
    c.late.setdefault(ms_ - 2, []).extend([VM(x, ("mv", 0)) for x in mld])
    k_ = [x for x in m.L]
    i_ = next(i for i, x in enumerate(k_) if x.startswith("s_cmp_eq_u32"))
    c.late[ms_] = [WVM([("mv", 0)]), T(mchk)] + k_[:i_] + ["\n".join(k_[i_:])]
    ne = opt.get("g3_e3", 7 if opt.get("split", 1) else 0)
    eu = [x for g in g3_early_units(k.g3, ne, 254) for x in g]
    c.late.setdefault(14, []).extend(eu[:len(eu)//2 // 1]); c.late.setdefault(15, []).extend(eu[len(eu)//2:])
    c.last_reads = ([f"ds_read_b128 {vr(V_G+4*b,4)}, v{V_GA} offset:{b*64}" for b in range(4)] + [f"ds_read_b128 {vr(V_C+4*b,4)}, v{V_GA} offset:{512+b*64}" for b in range(4)]
                    + [f"ds_read_b128 {vr(V_S+4*b,4)}, v{V_GA} offset:{256+b*64}" for b in range(4)])
    c.run(k)
    k.stamp("g2 loop done")
    k("s_waitcnt lgkmcnt(0)\ns_nop 7")
    A = lambda b, t: (b * 2 + t) * 4
    XT = 194; V_X = c.V_X
    for t in range(2):
        for b in range(4):
            xr = V_X + (t * 4 + b) * 2
            for h in range(2): k(f"v_lshlrev_b32 v{XT+2*h}, 16, v{xr+h}\nv_and_b32 v{XT+2*h+1}, 0xffff0000, v{xr+h}")
            for h in range(2): k(f"v_pk_fma_f32 {vr(A(b,t)+2*h,2)}, {vr(A(b,t)+2*h,2)}, {vr(V_G+4*b+2*h,2)}, {vr(XT+2*h,2)}")
        PK = XT + 4 + t * 8
        for b in range(4): k(f"v_cvt_pk_bf16_f32 v{PK+2*b}, v{A(b,t)}, v{A(b,t)+1}\nv_cvt_pk_bf16_f32 v{PK+2*b+1}, v{A(b,t)+2}, v{A(b,t)+3}")
        for b in range(4):
            for h in range(2): k(f"v_lshlrev_b32 v{A(b,t)+2*h}, 16, v{PK+2*b+h}\nv_and_b32 v{A(b,t)+2*h+1}, 0xffff0000, v{PK+2*b+h}")
    SU = [XT + 20, XT + 22]; M2 = [XT + 21, XT + 23]; TM = [XT + 24, XT + 25]; AC = [XT, XT + 2]; NM = [XT + 26, XT + 28]; DF = 32
    for t in range(2): k(f"v_pk_add_f32 {vr(AC[t],2)}, {vr(A(0,t),2)}, {vr(A(0,t)+2,2)}")
    for b in range(1, 4):
        for h in range(2):
            for t in range(2): k(f"v_pk_add_f32 {vr(AC[t],2)}, {vr(AC[t],2)}, {vr(A(b,t)+2*h,2)}")
    def allred2(X):
        for sw in ("v_permlane32_swap_b32", "v_permlane16_swap_b32"):
            for t in range(2): k(f"v_mov_b32 v{TM[t]}, v{X[t]}")
            k("s_nop 0")
            for t in range(2): k(f"{sw} v{X[t]}, v{TM[t]}")
            k("s_nop 0")
            for t in range(2): k(f"v_add_f32 v{X[t]}, v{X[t]}, v{TM[t]}")
    for t in range(2): k(f"v_add_f32 v{SU[t]}, v{AC[t]}, v{AC[t]+1}")
    allred2(SU)
    for t in range(2): k(f"v_mul_f32 v{NM[t]}, {-1.0/64!r}, v{SU[t]}\nv_mov_b32 v{AC[t]}, 0\nv_mov_b32 v{AC[t]+1}, 0")
    for b in range(4):
        for h in range(2):
            for t in range(2): k(f"v_pk_add_f32 {vr(DF+2*t,2)}, {vr(A(b,t)+2*h,2)}, {vr(NM[t],2)} op_sel_hi:[1,0]")
            for t in range(2): k(f"v_pk_fma_f32 {vr(AC[t],2)}, {vr(DF+2*t,2)}, {vr(DF+2*t,2)}, {vr(AC[t],2)}")
    for t in range(2): k(f"v_add_f32 v{M2[t]}, v{AC[t]}, v{AC[t]+1}")
    allred2(M2)
    k(f"v_cmp_gt_u32 vcc, 16, v{LANE}")
    k(f"v_lshlrev_b32 v{XT+2}, 3, v{LANE}\nv_lshrrev_b32 v{XT+3}, 4, v{LANE}")
    k(f"v_cndmask_b32 v{XT}, v{SU[1]}, v{SU[0]}, vcc\nv_cndmask_b32 v{XT+1}, v{M2[1]}, v{M2[0]}, vcc")
    k(f"v_and_b32 v45, 0x78, v{XT+2}\nv_lshl_add_u32 v45, v{XT+3}, 10, v45")
    k(f"v_or_b32 v{XT+1}, 1, v{XT+1}")
    k(f"v_cmp_gt_u32 vcc, 32, v{LANE}\ns_and_saveexec_b64 s[96:97], vcc")
    k(f"buffer_store_dwordx2 {vr(XT,2)}, v{XT+2}, {sr(SRD_B,4)}, s90 offen sc1")
    k("s_mov_b64 exec, s[96:97]")
    k.stamp("stat stored")
    for t in range(2):
        for b in range(4):
            for h in range(2): k(f"v_pk_mul_f32 {vr(A(b,t)+2*h,2)}, {vr(A(b,t)+2*h,2)}, {vr(V_C+4*b+2*h,2)}")
    for j in range(16): k(f"v_accvgpr_write_b32 a{A_X1+j}, v{XT+4+j}")
    g3 = k.g3
    setup_gemm3_late(k, g3)
    g3.prefetch(k, opt.get("g3_pre0", 0))
    ST = 48
    spin(k, [f"buffer_load_dwordx2 {vr(ST+t*8+j*2,2)}, v45, {sr(SRD_B,4)}, s91 offen offset:{t*128+j*256} sc1" for t in range(2) for j in range(4)],
         [ST + 2 * j + 1 for j in range(8)], XT)
    k.stamp("stat ready")
    for t in range(2):
        b = ST + t * 8
        k(f"v_add_f32 v{SU[t]}, v{b}, v{b+2}\nv_add_f32 v{TM[t]}, v{b+4}, v{b+6}\nv_add_f32 v{SU[t]}, v{SU[t]}, v{TM[t]}")
        k(f"v_add_f32 v{M2[t]}, v{b+1}, v{b+3}\nv_add_f32 v{TM[t]}, v{b+5}, v{b+7}\nv_add_f32 v{M2[t]}, v{M2[t]}, v{TM[t]}")
    allred2(SU)
    for t in range(2): k(f"v_mul_f32 v{SU[t]}, {-1.0/1024!r}, v{SU[t]}")
    for j in range(4):
        for t in range(2): k(f"v_fmamk_f32 v{ST+t*8+2*j}, v{ST+t*8+2*j}, {1.0/64!r}, v{SU[t]}")
        for t in range(2): k(f"v_mul_f32 v{ST+t*8+2*j}, v{ST+t*8+2*j}, v{ST+t*8+2*j}")
        for t in range(2): k(f"v_fmac_f32 v{M2[t]}, 0x42800000, v{ST+t*8+2*j}")
    allred2(M2)
    for t in range(2): k(f"v_mov_b32 v{TM[t]}, 0x3727c5ac\nv_fmac_f32 v{TM[t]}, {1.0/1024!r}, v{M2[t]}")
    for t in range(2): k(f"v_rsq_f32 v{NM[t]}, v{TM[t]}")
    k("s_nop 0")
    for t in range(2): k(f"v_mul_f32 v{NM[t]+1}, v{SU[t]}, v{NM[t]}")
    for t in range(2):
        YK = ST + t * 8
        for b in range(4):
            for h in range(2): k(f"v_pk_fma_f32 {vr(XT+2*h,2)}, {vr(V_C+4*b+2*h,2)}, {vr(NM[t],2)}, {vr(V_S+4*b+2*h,2)} op_sel:[0,1,0] op_sel_hi:[1,1,1]")
            for h in range(2): k(f"v_pk_fma_f32 {vr(XT+2*h,2)}, {vr(A(b,t)+2*h,2)}, {vr(NM[t],2)}, {vr(XT+2*h,2)} op_sel_hi:[1,0,1]")
            k(f"v_cvt_pk_bf16_f32 v{YK+2*b}, v{XT}, v{XT+1}\nv_cvt_pk_bf16_f32 v{YK+2*b+1}, v{XT+2}, v{XT+3}")
        for s_ in range(2): k(f"buffer_store_dwordx4 {vr(YK+4*s_,4)}, v{L16}, {sr(SRD_A,4)}, s{88+t} offen offset:{s_*1024} sc1")
    publish(k, 84, 40)
    k.stamp("y published")
    g3.prefetch(k, opt.get("g3_pre", 0))
    return g3

def phase_gemm3(k, c, opt):
    LANE, L16, VT = c.LANE, c.L16, c.VT
    NB, TB = 14, 4
    srd(k, SRD_T, P_WS, S * D * 2, WS_Y)
    srd(k, SRD_C, P_WS, S * F * 2, WS_HH)
    k(f"v_and_b32 v{VT}, 31, v{LANE}\nv_lshlrev_b32 v{VT}, {FS}, v{VT}")
    k(f"s_lshl_b32 s84, s{S_RB3}, 2\ns_add_u32 s84, s84, s{S_WAVE}")
    k(f"s_lshl_b32 s85, s84, {FS+5}\ns_add_u32 s85, s85, {F_Y}")
    staged_wait(k, c, opt.get("g3_T", 3), VT, 85, VT + 1, one_prod, dup16=True)
    k.stamp("y ready")
    p = Txt()
    SO = 8
    p(f"s_mul_i32 s{SO}, s84, {448*1024}\ns_mul_i32 s92, s{S_FT}, 3584\ns_add_u32 s{SO}, s{SO}, s92")
    for t in range(1, 4): p(f"s_add_u32 s{SO+t}, s{SO}, {t*112*1024}")
    p(f"s_lshl_b32 s93, s84, {FS+5}\ns_lshl_b32 s94, s{S_FT}, {FS}\ns_add_u32 s93, s93, s94\ns_add_u32 s94, s93, {F_HB}\ns_add_u32 s93, s93, {F_HH}")
    p(f"s_mov_b32 s12, {-LOG2E!r}\ns_mov_b32 s13, {-LOG2E!r}")
    SB = 241
    p(f"v_lshrrev_b32 v{SB}, 1, v{L16}")
    c.pre_loop_txt = p.L
    if opt.get("cpf", 1):
        for st_ in opt.get("cp3", [6, 22]): c.late.setdefault(st_, []).extend(code_prefetch_txt(k.name, L16, 254, 80, junk="v240"))
    if opt.get("w2touch", 1):
        ws_ = opt.get("w2steps", [16]); per = 56 // len(ws_)
        for j, st_ in enumerate(ws_):
            c.late.setdefault(st_, []).extend([f"s_lshl_b32 s80, s2, 2", f"s_add_u32 s80, s80, s{S_WAVE}", "s_mul_i32 s80, s80, 7168", f"s_add_u32 s80, s80, {j*per*128}",
                      f"v_min_u32 v253, {per-1}, v{LANE}", "v_lshlrev_b32 v253, 7, v253", "v_add_u32 v253, s80, v253",
                      f"global_load_dword v240, v253, s[{P_W2}:{P_W2+1}]"])
    for j, st_ in enumerate(opt.get("w2l2", [27, 28])):
        c.late.setdefault(st_, []).extend([
            f"s_lshl_b32 s80, s{S_IDX}, 2", f"s_add_u32 s80, s80, s{S_WAVE}", "s_mul_i32 s80, s80, 14", f"s_add_u32 s80, s80, {7*j}",
            f"s_and_b32 s81, s{S_XCD}, 1", "s_mul_i32 s81, s81, 1792", "s_add_u32 s80, s80, s81", "s_lshl_b32 s80, s80, 11",
            f"s_lshr_b32 s81, s{S_XCD}, 2", "s_lshl_b32 s81, s81, 10", "s_add_u32 s80, s80, s81",
            f"v_min_u32 v253, 55, v{LANE}", "v_lshrrev_b32 v254, 3, v253", "v_lshlrev_b32 v254, 11, v254", "v_and_b32 v253, 7, v253", "v_lshl_add_u32 v253, v253, 7, v254",
            "v_add_u32 v253, s80, v253", f"global_load_dword v240, v253, s[{P_W2}:{P_W2+1}]"])
    t4 = Txt()
    g4 = setup_gemm4p(t4, opt, 242)
    half = len(t4.L) // 2
    c.late[19] = t4.L[:half]; c.late[20] = t4.L[half:]
    pf = g4.prefetch_txt(4); c.late[29] = pf
    pf = g4.prefetch_txt(4); c.late[30] = pf
    def G(s, t): return ((2 * s) * TB + t) * 4
    def Uu(s, t): return ((2 * s + 1) * TB + t) * 4
    def act(k, slots, t, scalar=False):
        if scalar:
            for s in slots:
                for r in range(4):
                    k(f"v_mul_f32 v{Uu(s,t)+r}, v{G(s,t)+r}, v{Uu(s,t)+r}")
                    k(f"v_mul_f32 v{G(s,t)+r}, s12, v{G(s,t)+r}")
            rs = [(s, r) for s in slots for r in range(4)]
            for i, (s, r) in enumerate(rs): k(f"v_exp_f32 v{G(s,t)+r}, v{G(s,t)+r}")
            for i, (s, r) in enumerate(rs): k(f"v_add_f32 v{G(s,t)+r}, 1.0, v{G(s,t)+r}")
            for i, (s, r) in enumerate(rs): k(f"v_rcp_f32 v{G(s,t)+r}, v{G(s,t)+r}")
            for i, (s, r) in enumerate(rs): k(f"v_mul_f32 v{Uu(s,t)+r}, v{Uu(s,t)+r}, v{G(s,t)+r}")
            return
        for s in slots:
            for h in range(2):
                k(f"v_pk_mul_f32 {vr(Uu(s,t)+2*h,2)}, {vr(G(s,t)+2*h,2)}, {vr(Uu(s,t)+2*h,2)}")
                k(f"v_pk_mul_f32 {vr(G(s,t)+2*h,2)}, {vr(G(s,t)+2*h,2)}, s[12:13]")
        for s in slots:
            for r in range(4): k(f"v_exp_f32 v{G(s,t)+r}, v{G(s,t)+r}")
        for s in slots:
            for h in range(2): k(f"v_pk_add_f32 {vr(G(s,t)+2*h,2)}, {vr(G(s,t)+2*h,2)}, 1.0 op_sel_hi:[1,0]")
        for s in slots:
            for r in range(4): k(f"v_rcp_f32 v{G(s,t)+r}, v{G(s,t)+r}")
        for s in slots:
            for h in range(2): k(f"v_pk_mul_f32 {vr(Uu(s,t)+2*h,2)}, {vr(Uu(s,t)+2*h,2)}, {vr(G(s,t)+2*h,2)}")
    def pair(k, pr, t, scalar=False):
        s0, s1 = 2 * pr, 2 * pr + 1
        act(k, [s0, s1], t, scalar)
        d = G(s0, t)
        k(f"v_cvt_pk_bf16_f32 v{d}, v{Uu(s0,t)}, v{Uu(s0,t)+1}\nv_cvt_pk_bf16_f32 v{d+1}, v{Uu(s0,t)+2}, v{Uu(s0,t)+3}")
        k(f"v_cvt_pk_bf16_f32 v{d+2}, v{Uu(s1,t)}, v{Uu(s1,t)+1}\nv_cvt_pk_bf16_f32 v{d+3}, v{Uu(s1,t)+2}, v{Uu(s1,t)+3}")
        k(f"buffer_store_dwordx4 {vr(d,4)}, v{L16}, {sr(SRD_C,4)}, s{SO+t} offen offset:{pr*1024} sc1")
        if opt.get("dbl", 0): k(f"buffer_store_dwordx4 {vr(d,4)}, v{L16}, {sr(SRD_C,4)}, s{SO+t} offen offset:{pr*1024}")
    ea = Txt(); eb = Txt()
    nin = opt.get("g3_nin", 8) if c.TL else 0
    for i, (pr, t) in enumerate([(pr, t) for pr in range(2) for t in range(TB)]):
        if i < nin: pair(ea, pr, t, opt.get("g3_scalar", 0))
        else: pair(eb, pr, t)
    if c.TL:
        nst = opt.get("g3_east", c.TL - 1)
        per = -(-len(ea.L) // nst)
        c.step_extra = lambda st: ea.L[(st - 32) * per:(st - 31) * per] if st >= 32 else []
    c.run(k)
    k.stamp("g3 loop done")
    if not c.TL: k("s_nop 7")
    k("s_barrier")
    mkE = len(k.L)
    for x in eb.L: k(x)
    grp = []
    for j in range(opt.get("g4_pa", 0)):
        t_ = g4.prefetch_txt(1); grp.append(t_[:-1] + ["s_nop 0", t_[-1]])
    sprinkle(k, mkE, grp)
    def single(k, t):
        act(k, [6], t)
        d = G(6, t)
        k(f"v_cvt_pk_bf16_f32 v{d}, v{Uu(6,t)}, v{Uu(6,t)+1}\nv_cvt_pk_bf16_f32 v{d+1}, v{Uu(6,t)+2}, v{Uu(6,t)+3}")
        k(f"buffer_store_dwordx2 {vr(d,2)}, v{SB}, {sr(SRD_C,4)}, s{SO+t} offen offset:3072 sc1")
    mkA = len(k.L)
    na = opt.get("g3_pubA", 2)
    g4.binl = None
    if opt.get("binl", 0):
        nb0 = opt.get("binl0", 1)
        bt = Txt()
        jobs = [(pair, (2, t)) for t in range(TB)] + [(single, (t,)) for t in range(TB)]
        g4.mkA = mkA
        for f_, a_ in jobs[:nb0]: f_(k, *a_)
        for f_, a_ in jobs[nb0:]: f_(bt, *a_)
        g4.binl = bt.L
    else:
        for t in range(na): pair(k, 2, t)
        publish(k, 93, 252, mkA)
        k.stamp("hA published")
        mark3 = len(k.L)
        for t in range(na, TB): pair(k, 2, t)
        grp = []
        for j in range(opt.get("g4_pb", 8)):
            t_ = g4.prefetch_txt(1); grp.append(t_[:-1] + ["s_nop 0", t_[-1]])
        sprinkle(k, mark3, grp)
        for t in range(TB): single(k, t)
    k.stamp("hh stored")
    return g4

def phase_gemm4(k, c, opt):
    LANE, L16 = c.LANE, c.L16
    VT = 40
    srd(k, SRD_T, P_WS, S * F * 2, WS_HH)
    srd(k, SRD_A, P_OUT, S * D * 2)
    k(f"v_and_b32 v{VT}, 31, v{LANE}\nv_lshlrev_b32 v{VT}, 2, v{VT}")
    k(f"s_lshl_b32 s84, s{S_RB2}, 1\ns_lshr_b32 s85, s{S_WAVE}, 1\ns_add_u32 s84, s84, s85\ns_lshl_b32 s84, s84, {FS+5}\ns_add_u32 s84, s84, {F_HH}")
    wait_flags(k, [(VT, 84, 1)], VT + 1)
    k.stamp("hh ready")
    V_G, V_GA, V_XA, V_X = 64, 44, 45, 48
    p = Txt()
    p(f"v_lshrrev_b32 v{VT}, 4, v{LANE}\nv_lshlrev_b32 v{V_GA}, 4, v{VT}\nv_add_u32 v{V_GA}, {L_MV}, v{V_GA}")
    p(f"v_and_b32 v{VT+1}, 15, v{LANE}\nv_lshlrev_b32 v{VT+1}, 11, v{VT+1}")
    p(f"v_and_b32 v{VT+2}, 1, v{VT}\nv_lshl_add_u32 v{VT+1}, v{VT+2}, 5, v{VT+1}")
    p(f"v_lshrrev_b32 v{VT+2}, 1, v{VT}\nv_lshl_add_u32 v{V_XA}, v{VT+2}, 4, v{VT+1}")
    p(f"s_lshl_b32 s86, s{S_RB2}, 3\ns_lshl_b32 s87, s{S_WAVE}, 1\ns_add_u32 s86, s86, s87\ns_lshl_b32 s86, s86, 15\ns_lshl_b32 s87, s{S_NT}, 7\ns_add_u32 s86, s86, s87\ns_add_u32 s87, s86, 32768")
    for j in range(16): p(f"v_accvgpr_read_b32 v{V_X+j}, a{A_X1+j}")
    c.pre_loop_txt = p.L
    c.last_reads = [f"ds_read_b128 {vr(V_G+4*b,4)}, v{V_GA} offset:{768+b*64}" for b in range(4)]
    c.run(k)
    k.stamp("g4 loop done")
    k("s_waitcnt lgkmcnt(0)\ns_nop 7")
    A = lambda b, t: (b * 2 + t) * 4
    XT = 96
    for t in range(2):
        for b in range(4):
            xr = V_X + (t * 4 + b) * 2
            for h in range(2): k(f"v_lshlrev_b32 v{XT+2*h}, 16, v{xr+h}\nv_and_b32 v{XT+2*h+1}, 0xffff0000, v{xr+h}")
            for h in range(2): k(f"v_pk_fma_f32 {vr(A(b,t)+2*h,2)}, {vr(A(b,t)+2*h,2)}, {vr(V_G+4*b+2*h,2)}, {vr(XT+2*h,2)}")
        PK = XT + 4 + t * 8
        for b in range(4): k(f"v_cvt_pk_bf16_f32 v{PK+2*b}, v{A(b,t)}, v{A(b,t)+1}\nv_cvt_pk_bf16_f32 v{PK+2*b+1}, v{A(b,t)+2}, v{A(b,t)+3}")
        k("s_nop 1")
        for s_ in range(2): k(f"v_permlane16_swap_b32 v{PK+4*s_}, v{PK+4*s_+2}\nv_permlane16_swap_b32 v{PK+4*s_+1}, v{PK+4*s_+3}")
        for s_ in range(2): k(f"buffer_store_dwordx4 {vr(PK+4*s_,4)}, v{V_XA}, {sr(SRD_A,4)}, s{86+t} offen offset:{s_*64}")

def build_mega(instr=False, opt=None, name="mega_kernel"):
    opt = opt or {}
    k = Mega(name, 256, 256, LDS_TOTAL, vgpr=256, agpr=256, sgpr=102)
    k.instr = instr; k.names = []; k.only = opt.get("only")
    end = k.label("end")
    far = k.label("go")
    if opt.get("diag2") is not None: k("s_memrealtime s[72:73]")
    k(f"s_cmp_lt_u32 s2, 256\ns_cbranch_scc1 {far}\ns_endpgm\n{far}:")
    if opt.get("fused", 1):
        code_prefetch_setup(k, name)
        k("v_and_b32 v104, 63, v0\nv_lshlrev_b32 v105, 4, v104\nv_lshlrev_b32 v254, 5, v0")
        k("global_load_dword a232, v254, s[100:101]")
        k("s_load_dwordx2 s[96:97], s[0:1], 88")
        if opt.get("dbgout"): k("s_load_dwordx2 s[72:73], s[0:1], 88")
    k("s_load_dwordx8 s[4:11], s[0:1], 0")
    k("s_load_dwordx2 s[12:13], s[0:1], 64")
    k("s_load_dwordx2 s[14:15], s[0:1], 40")
    k("s_load_dwordx4 s[16:19], s[0:1], 48")
    k("s_load_dwordx2 s[98:99], s[0:1], 72")
    k("s_load_dwordx2 s[24:25], s[0:1], 80")
    k("s_load_dwordx2 s[28:29], s[0:1], 96")
    if instr: k(f"v_mov_b32 v{VSTAMP}, 0")
    ids(k)
    k(f"s_lshr_b32 s80, s{S_IDX}, 2\ns_add_u32 s{S_R4}, s80, s{S_IDX}\ns_and_b32 s81, s{S_IDX}, 3\ns_lshl_b32 s81, s81, 1\ns_add_u32 s{S_R8}, s80, s81")
    if opt.get("g3map", 0):
        k(f"s_bfe_u32 s{S_RB3}, s{S_XCD}, 0x10001\ns_lshl_b32 s{S_RB3}, s{S_RB3}, 2\ns_lshr_b32 s80, s{S_IDX}, 3\ns_add_u32 s{S_RB3}, s{S_RB3}, s80")
        k(f"s_and_b32 s{S_FT}, s{S_XCD}, 1\ns_lshl_b32 s{S_FT}, s{S_FT}, 4\ns_lshr_b32 s81, s{S_XCD}, 2\ns_lshl_b32 s81, s81, 3\ns_add_u32 s{S_FT}, s{S_FT}, s81\ns_and_b32 s81, s{S_IDX}, 7\ns_add_u32 s{S_FT}, s{S_FT}, s81")
        k(f"s_add_u32 s72, s80, s{S_IDX}\ns_lshl_b32 s80, s80, 1\ns_add_u32 s73, s80, s{S_IDX}")
    else:
        k(f"s_and_b32 s80, s{S_IDX}, 3\ns_lshl_b32 s{S_FT}, s{S_XCD}, 2\ns_add_u32 s{S_FT}, s{S_FT}, s80\ns_lshr_b32 s{S_RB3}, s{S_IDX}, 2")
    if opt.get("fused", 1):
        for x in code_prefetch_txt(name, 105, 254, 80): k(x)
    k.stamp("start")
    g1 = (phase_front_fused if opt.get("fused", 1) else phase_front)(k, opt, name)
    g2 = (phase_gemm1s if opt.get('split', 1) else phase_gemm1)(k, g1, opt)
    g3 = phase_gemm2(k, g2, opt)
    g4 = phase_gemm3(k, g3, opt)
    (phase_gemm4p if opt.get('g4_pair', 1) else phase_gemm4)(k, g4, opt)
    if opt.get("diag2") is not None:
        lp, sk = k.label("dg"), k.label("dgs")
        if opt["diag2"] >= 0: k(f"s_cmp_lg_u32 s2, {opt['diag2']}\ns_cbranch_scc1 {sk}")
        k(f"{lp}:\ns_memrealtime s[0:1]\ns_waitcnt lgkmcnt(0)\ns_sub_u32 s87, s0, s72\ns_cmp_lt_u32 s87, 10000\ns_cbranch_scc1 {lp}\n{sk}:")
    elif opt.get("diag"):
        a_, b_ = opt["diag"]
        k(f"v_readlane_b32 s84, v{VSTAMP}, 0\nv_readlane_b32 s85, v{VSTAMP}, {a_}\nv_readlane_b32 s86, v{VSTAMP}, {b_}\ns_nop 3")
        k("s_sub_u32 s86, s86, s85\ns_add_u32 s86, s86, 10000")
        lp = k.label("dg")
        k(f"{lp}:\ns_memrealtime s[0:1]\ns_waitcnt lgkmcnt(0)\ns_sub_u32 s87, s0, s84\ns_cmp_lt_u32 s87, s86\ns_cbranch_scc1 {lp}")
    elif instr:
        k("s_waitcnt vmcnt(0)")
        k.stamp("end")
        k(f"s_add_u32 s84, s{P_WS}, {WS_DBG}\ns_addc_u32 s85, s{P_WS+1}, 0\ns_mov_b32 s86, 0x100000\ns_mov_b32 s87, 0x20000")
        k(f"s_lshl_b32 s88, s2, 2\ns_add_u32 s88, s88, s{S_WAVE}\ns_lshl_b32 s88, s88, 8")
        lane_id(k, 1)
        k("v_lshlrev_b32 v1, 2, v1")
        k(f"buffer_store_dword v{VSTAMP}, v1, s[84:87], s88 offen")
        if opt.get("dbgout"):
            sk = k.label("nodbg")
            k(f"s_lshl_b32 s88, s2, 2\ns_add_u32 s88, s88, s{S_WAVE}\ns_cmp_lg_u32 s88, {opt['dbgout']*4}\ns_cbranch_scc1 {sk}")
            k("s_mov_b32 s84, s72\ns_mov_b32 s85, s73\ns_mov_b32 s86, 64\ns_mov_b32 s87, 0x20000")
            k(f"v_readlane_b32 s89, v{VSTAMP}, 0\ns_nop 3\nv_subrev_u32 v2, s89, v{VSTAMP}")
            k("buffer_store_dword v2, v1, s[84:87], 0 offen offset:12")
            k(f"{sk}:")
    k("s_endpgm")
    k(f"{name}_end:")
    return k
```

```python
import sys
from asmlib import *
from gemm import *
from layout import *
LOG2E = 1.4426950408889634
P_X, P_WQKV, P_WPHI, P_WO, P_W1, P_W3, P_W2, P_OUT, P_WS = 4, 6, 8, 10, 14, 16, 18, 24, 28
P_DBG, S_MB, S_MO = 96, 77, 79
P_C, P_WMOD = 12, 98
S_WAVE, S_XCD, S_IDX = 3, 30, 31
SRD_W, SRD_T, SRD_A, SRD_B, SRD_C, SRD_D, SRD_F = 32, 36, 40, 44, 48, 52, 56
S_KW, S_KT, S_WB, S_ROT, S_TMP, S_ROT2 = 60, 62, 76, 77, 78, 79
S_RB1, S_HP, S_RB2, S_NT, S_RB3, S_FT = 26, 27, 26, 27, 22, 23
S_R8, S_R4 = 20, 21
VSTAMP = 255
L_WPH, L_UTC = 110592, 105472
L_UT3, L_MV, L_R2 = 114688, 128000, 129792
LDS_TOTAL = 163584

class Mega(Kernel):
    nst = 0
    only = None
    def stamp(self, name=""):
        if not self.instr: return
        if self.only is not None and not any(name.startswith(o) for o in self.only): return
        if self.only is None and name[:3] in ("kp ", "qp "): return
        self("s_waitcnt lgkmcnt(0)\ns_memrealtime s[0:1]\ns_waitcnt lgkmcnt(0)")
        self(f"v_writelane_b32 v{VSTAMP}, s0, {self.nst}")
        self("s_nop 3\ns_memtime s[0:1]\ns_waitcnt lgkmcnt(0)")
        self(f"v_writelane_b32 v{VSTAMP}, s0, {self.nst + 32}")
        self.names.append(name); self.nst += 1

def lane_id(k, v):
    k(f"v_mbcnt_lo_u32_b32 v{v}, -1, 0\nv_mbcnt_hi_u32_b32 v{v}, -1, v{v}")

def code_prefetch_setup(k, name, s_pc=100):
    lab = k.label("pc")
    k(f"s_getpc_b64 s[{s_pc}:{s_pc+1}]")
    k(f"{lab}:")
    k(f"s_sub_u32 s{s_pc}, s{s_pc}, {lab}-{name}\ns_subb_u32 s{s_pc+1}, s{s_pc+1}, 0")
def code_prefetch_txt(name, v_l16, vt, s_tmp, s_idx=S_IDX, s_wave=S_WAVE, s_pc=100, junk="a232"):
    return [f"s_lshl_b32 s{s_tmp}, s{s_idx}, 2", f"s_add_u32 s{s_tmp}, s{s_tmp}, s{s_wave}", f"s_lshl_b32 s{s_tmp}, s{s_tmp}, 10",
            f"v_add_u32 v{vt}, s{s_tmp}, v{v_l16}", f"v_min_u32 v{vt}, {name}_end-{name}-4, v{vt}",
            f"global_load_dword {junk}, v{vt}, s[{s_pc}:{s_pc+1}]"]

def count_vm(k, mark):
    return sum(1 for x in k.L[mark:] if is_vm(x))
def publish(k, s_off, vt, mark=None):
    k(f"v_mov_b32 v{vt}, 1\nv_mov_b32 v{vt+1}, 0")
    n = 0 if mark is None else count_vm(k, mark)
    assert n < 64
    k(f"s_waitcnt vmcnt({n})")
    k(f"buffer_store_dword v{vt}, v{vt+1}, {sr(SRD_F,4)}, s{s_off} offen sc1")

def spin(k, loads, regs, vt, s_cnt=96):
    top, ok = k.label("poll"), k.label("ok")
    k(f"s_mov_b32 s{s_cnt}, 0")
    k(f"{top}:")
    for x in loads: k(x)
    k("s_waitcnt vmcnt(0)")
    if len(regs) == 1: k(f"v_cmp_eq_u32 vcc, 0, v{regs[0]}")
    else:
        k(f"v_min_u32 v{vt}, v{regs[0]}, v{regs[1]}")
        for x in regs[2:]: k(f"v_min_u32 v{vt}, v{vt}, v{x}")
        k(f"v_cmp_eq_u32 vcc, 0, v{vt}")
    k(f"s_add_u32 s{s_cnt}, s{s_cnt}, 1")
    k(f"s_cmp_eq_u64 vcc, 0\ns_cbranch_scc1 {ok}")
    k(f"s_sleep {SLEEP}\ns_cmp_lt_u32 s{s_cnt}, 0x200000\ns_cbranch_scc1 {top}")
    k(f"{ok}:")

def wait_flags(k, polls, vt, s_cnt=96):
    top, ok = k.label("poll"), k.label("ok")
    k(f"s_mov_b32 s{s_cnt}, 0")
    k(f"{top}:")
    r = vt
    regs = []
    for va, so, ndw in polls:
        if ndw == 4: r = (r + 1) // 2 * 2
        k(f"buffer_load_dword{'x4' if ndw == 4 else ''} {vr(r,ndw)}, v{va}, {sr(SRD_F,4)}, s{so} offen sc1")
        regs += list(range(r, r + ndw)); r += ndw
    k("s_waitcnt vmcnt(0)")
    for x in regs[1:]: k(f"v_min_u32 v{regs[0]}, v{regs[0]}, v{x}")
    k(f"v_cmp_eq_u32 vcc, 0, v{regs[0]}")
    k(f"s_add_u32 s{s_cnt}, s{s_cnt}, 1")
    k(f"s_cmp_eq_u64 vcc, 0\ns_cbranch_scc1 {ok}")
    k(f"s_sleep {SLEEP}\ns_cmp_lt_u32 s{s_cnt}, 0x200000\ns_cbranch_scc1 {top}")
    k(f"{ok}:")

def staged_wait(k, c, T_, v_addr, s_off, vf, prod_of, dup16=False, skip_first=0, s_m=97, pub=None):
    ld = f"buffer_load_dword v{vf}, v{v_addr}, {sr(SRD_F,4)}, s{s_off} offen sc1"
    if T_ is None:
        spin(k, [ld], [vf], 0); return
    k(f"s_mov_b32 s{s_m}, 0")
    for kt in range(skip_first, T_):
        for x in c.pos_txt(80, kt): k(x)
        for x in prod_of(80, 81): k(x)
        k(f"s_or_b32 s{s_m}, s{s_m}, s81")
    if dup16: k(f"s_lshl_b32 s81, s{s_m}, 16\ns_or_b32 s{s_m}, s{s_m}, s81")
    top, ok = k.label("poll"), k.label("ok")
    if pub:
        mk = len(k.L); k(ld); publish(k, pub[0], pub[1], mk)
        k("s_waitcnt vmcnt(1)")
        k(f"v_cmp_eq_u32 vcc, 0, v{vf}\ns_nop 0")
        k(f"s_and_b32 s81, vcc_lo, s{s_m}\ns_cbranch_scc0 {ok}")
    k(f"s_mov_b32 s96, 0\n{top}:")
    k(ld)
    k("s_waitcnt vmcnt(0)")
    k(f"v_cmp_eq_u32 vcc, 0, v{vf}")
    k("s_add_u32 s96, s96, 1")
    k(f"s_and_b32 s81, vcc_lo, s{s_m}\ns_cbranch_scc0 {ok}")
    k(f"s_sleep {SLEEP}\ns_cmp_lt_u32 s96, 0x200000\ns_cbranch_scc1 {top}")
    k(f"{ok}:")
    add_gate(k, c, T_, ld, vf)
def add_gate(k, c, tile, ld, vf):
    m = Txt(); m.label = k.label
    okl = k.label("gok")
    m(f"v_cmp_eq_u32 vcc, 0, v{vf}\ns_cmp_eq_u64 vcc, 0\ns_cbranch_scc1 {okl}")
    spin(m, [ld], [vf], 0)
    m(f"{okl}:")
    c.gates = list(c.gates) + [(tile, [VM(ld, ("gate", tile))], [WVM([("gate", tile)]), T("\n".join(m.L))])]
one_prod = lambda sp, st: [f"s_lshl_b32 s{st}, 1, s{sp}"]

def allreduce_q(k, op, x, tmp):
    k(f"v_mov_b32 v{tmp}, v{x}\ns_nop 1")
    k(f"v_permlane32_swap_b32 v{x}, v{tmp}")
    k(f"s_nop 1\n{op} v{x}, v{x}, v{tmp}")
    k(f"v_mov_b32 v{tmp}, v{x}\ns_nop 1")
    k(f"v_permlane16_swap_b32 v{x}, v{tmp}")
    k(f"s_nop 1\n{op} v{x}, v{x}, v{tmp}")

def treduce4(k, op, A):
    a, b, c, d = A
    k("s_nop 1")
    k(f"v_permlane32_swap_b32 v{a}, v{b}\nv_permlane32_swap_b32 v{c}, v{d}")
    k("s_nop 1")
    k(f"{op} v{a}, v{a}, v{b}\n{op} v{c}, v{c}, v{d}")
    k("s_nop 1")
    k(f"v_permlane16_swap_b32 v{a}, v{c}")
    k("s_nop 1")
    k(f"{op} v{a}, v{a}, v{c}")
    k(f"v_mov_b32 v{c}, v{a}")
    k("s_nop 1")
    k(f"v_permlane16_swap_b32 v{a}, v{c}")
    k("s_nop 1")
    k(f"v_mov_b32 v{b}, v{a}\nv_mov_b32 v{d}, v{c}")
    k("s_nop 1")
    k(f"v_permlane32_swap_b32 v{a}, v{b}\nv_permlane32_swap_b32 v{c}, v{d}")
    k("s_nop 1")

def treduce4x2(k, ops, As):
    A, B = Txt(), Txt()
    treduce4(A, ops[0], As[0]); treduce4(B, ops[1], As[1])
    def split(L):
        out, cur = [], []
        for x in L:
            if x.startswith("s_nop"): out.append(cur); cur = []
            else: cur.append(x)
        out.append(cur); return out
    for a, b in zip(split(A.L), split(B.L)):
        for x in a + b: k(x)
        k("s_nop 0" if len(a) >= 1 else "s_nop 1")

def red8(k, x):
    for m in ("quad_perm:[1,0,3,2]", "quad_perm:[2,3,0,1]", "row_half_mirror"):
        k(f"s_nop 1\nv_add_f32_dpp v{x}, v{x}, v{x} {m} row_mask:0xf bank_mask:0xf")

def round_bf16(k, v):
    k(f"v_cvt_pk_bf16_f32 v{v}, v{v}, v{v}\nv_and_b32 v{v}, 0xffff0000, v{v}")

S_DLA, S_DLB, S_PTMP = 71, 6, 75
def order(c, k, opt, tag, default):
    o = opt.get(tag + "_ord", default)
    c.first_flag = opt.get(tag + "_ff", "")
    c.tag = tag; c.stamp_every = opt.get(tag + "_se", 0)
    c.fine = opt.get(tag + "_fine", opt.get("fine", 0)); c.bar_frac = opt.get("bar_frac", 0.3)
    c.s_rot, c.s_rot2 = S_R8, S_R4
    if o[0] == "lead":
        c.lead_D, c.s_dl = o[1], S_DLA
    else:
        c.wins = win_mask(o[1])
        if o[0] == "phase": c.phase = (S_RB3, S_IDX)
        elif o[2]:
            c.s_start = S_HP
            c.s_rot = c.s_rot2 = S_RB3
def common_gemm(c):
    c.srd_w, c.srd_t = SRD_W, SRD_T
    c.s_kw, c.s_kt, c.s_wbase, c.s_ptmp = S_KW, S_KT, S_WB, S_PTMP

def setup_gemm1(k, opt):
    c = Sched(); common_gemm(c)
    NS, R = opt.get("g1_NS", 4), opt.get("g1_R", 4)
    STAGE = 25344
    c.V_RD, c.V_DMA, c.V_TOK, c.LANE, c.L16, c.VT = 96, 98, 102, 104, 105, 106
    V_RD, V_DMA, V_TOK, LANE, L16, VT = c.V_RD, c.V_DMA, c.V_TOK, c.LANE, c.L16, 110
    k(f"v_lshlrev_b32 v{L16}, 4, v{LANE}")
    c.lead_D, c.s_dl = opt.get("D", 0), S_DLA
    if opt.get("uselead", 0): c.lead_init(k, S_R4, 81)
    c.lead_D = None
    order(c, k, opt, "g1", ["win", [8, 8], 0])
    k(f"s_lshr_b32 s80, s{S_WAVE}, 1\ns_and_b32 s81, s{S_WAVE}, 1")
    k(f"v_lshrrev_b32 v{VT+1}, 3, v{LANE}")
    k(f"v_and_b32 v{VT+2}, 4, v{VT+1}")
    k(f"v_bfe_u32 v{VT+3}, v{VT+1}, 1, 1\nv_or_b32 v{VT+2}, v{VT+2}, v{VT+3}")
    k(f"v_and_b32 v{VT+3}, 1, v{VT+1}\nv_lshl_or_b32 v{VT+2}, v{VT+3}, 1, v{VT+2}")
    k(f"v_mul_u32_u24 v{VT+2}, {4*6144}, v{VT+2}")
    k(f"v_and_b32 v{VT+3}, 7, v{LANE}\nv_lshl_add_u32 v{VT+2}, v{VT+3}, 4, v{VT+2}")
    k("s_lshl_b32 s82, s80, 5\ns_lshl_b32 s83, s81, 1\ns_add_u32 s82, s82, s83\ns_mul_i32 s82, s82, 6144")
    k(f"s_lshl_b32 s83, s{S_HP}, 7\ns_add_u32 s82, s82, s83")
    k(f"v_add_u32 v{V_DMA}, s82, v{VT+2}")
    k(f"v_add_u32 v{V_DMA+1}, 6144, v{V_DMA}\nv_add_u32 v{V_DMA+2}, 4096, v{V_DMA}\nv_add_u32 v{V_DMA+3}, {6144+4096}, v{V_DMA}")
    k(f"v_bfe_u32 v{VT+1}, v{LANE}, 2, 2\nv_mul_u32_u24 v{VT+1}, 1056, v{VT+1}")
    k(f"v_lshrrev_b32 v{VT+2}, 5, v{LANE}\nv_lshl_add_u32 v{VT+1}, v{VT+2}, 9, v{VT+1}")
    k(f"v_bfe_u32 v{VT+2}, v{LANE}, 4, 1\nv_lshl_add_u32 v{VT+1}, v{VT+2}, 7, v{VT+1}")
    k(f"v_and_b32 v{VT+3}, 3, v{LANE}\nv_lshl_add_u32 v{V_RD}, v{VT+3}, 3, v{VT+1}")
    k(f"v_add_u32 v{V_RD+1}, {2*STAGE}, v{V_RD}")
    k(f"s_lshl_b32 s82, s{S_RB1}, 3\ns_lshl_b32 s83, s{S_WAVE}, 1\ns_add_u32 s82, s82, s83\ns_lshl_b32 s82, s82, 15")
    k(f"v_add_u32 v{V_TOK}, s82, v{L16}\nv_add_u32 v{V_TOK+1}, 0x8000, v{V_TOK}")
    k(f"s_mul_i32 s{S_WB}, s80, 4224\ns_mul_i32 s82, s81, 2112\ns_add_u32 s{S_WB}, s{S_WB}, s82")
    c.NB, c.TB, c.KS, c.SPK, c.KT, c.NS, c.R = 12, 2, 1, 2, 16, NS, R
    c.acc = lambda b, t: vr((b * 2 + t) * 4, 4)
    c.tf = lambda slot, ks, t: 96 + (slot * 2 + t) * 4
    c.rd = lambda sl, b, sub, r: (V_RD + sl // 2, (sl % 2) * STAGE + (b // 4) * 8448 + sub * 4224 + r * 256 + (b % 4) * 32)
    c.slot_addr = lambda sl: sl * STAGE
    c.dma = [(V_DMA, 0, 0), (V_DMA + 1, 1056, 0), (V_DMA, 8448, 2048), (V_DMA + 1, 8448 + 1056, 2048), (V_DMA + 2, 16896, 0), (V_DMA + 3, 16896 + 1056, 0)]
    c.v_tok = [V_TOK, V_TOK + 1]
    c.w_stride = 64 * 6144
    c.drop = opt.get("g1_drop", ())
    c.pro_units, c.ramp_rate, c.read_margin = opt.get("g1_pro", 6), opt.get("g1_ramp", 6), opt.get("g1_rm", 6)
    std_sched(c)
    return c

def setup_gemm1s(k, opt):
    c = Sched(); common_gemm(c)
    HS = 8448; STAGE = 2 * HS
    c.V_RD, c.V_DMA, c.V_TOK, c.LANE, c.L16, c.VT = 96, 98, 102, 104, 105, 106
    V_RD, V_DMA, V_TOK, LANE, L16, VT = c.V_RD, c.V_DMA, c.V_TOK, c.LANE, c.L16, 110
    k(f"v_lshlrev_b32 v{L16}, 4, v{LANE}")
    order(c, k, opt, "g1", ["win", [8, 8], 0])
    k(f"s_lshr_b32 s80, s{S_WAVE}, 1\ns_and_b32 s81, s{S_WAVE}, 1")
    k(f"v_lshrrev_b32 v{VT+1}, 3, v{LANE}")
    k(f"v_and_b32 v{VT+2}, 4, v{VT+1}")
    k(f"v_bfe_u32 v{VT+3}, v{VT+1}, 1, 1\nv_or_b32 v{VT+2}, v{VT+2}, v{VT+3}")
    k(f"v_and_b32 v{VT+3}, 1, v{VT+1}\nv_lshl_or_b32 v{VT+2}, v{VT+3}, 1, v{VT+2}")
    k(f"v_mul_u32_u24 v{VT+2}, {4*6144}, v{VT+2}")
    k(f"v_and_b32 v{VT+3}, 7, v{LANE}\nv_lshl_add_u32 v{VT+2}, v{VT+3}, 4, v{VT+2}")
    k("s_lshl_b32 s82, s80, 5\ns_lshl_b32 s83, s81, 1\ns_add_u32 s82, s82, s83\ns_mul_i32 s82, s82, 6144")
    k(f"s_lshl_b32 s83, s{S_HP}, 7\ns_add_u32 s82, s82, s83")
    k(f"v_add_u32 v{V_DMA}, s82, v{VT+2}")
    k(f"v_add_u32 v{V_DMA+1}, 6144, v{V_DMA}\nv_add_u32 v{V_DMA+2}, 2048, v{V_DMA}\nv_add_u32 v{V_DMA+3}, {6144+2048}, v{V_DMA}")
    k(f"v_bfe_u32 v{VT+1}, v{LANE}, 2, 2\nv_mul_u32_u24 v{VT+1}, 1056, v{VT+1}")
    k(f"v_lshrrev_b32 v{VT+2}, 5, v{LANE}\nv_lshl_add_u32 v{VT+1}, v{VT+2}, 9, v{VT+1}")
    k(f"v_bfe_u32 v{VT+2}, v{LANE}, 4, 1\nv_lshl_add_u32 v{VT+1}, v{VT+2}, 7, v{VT+1}")
    k(f"v_and_b32 v{VT+3}, 3, v{LANE}\nv_lshl_add_u32 v{V_RD}, v{VT+3}, 3, v{VT+1}")
    k(f"v_add_u32 v{V_RD+1}, {2*STAGE}, v{V_RD}")
    k(f"s_lshl_b32 s82, s{S_RB1}, 3\ns_lshl_b32 s83, s{S_WAVE}, 1\ns_add_u32 s82, s82, s83\ns_lshl_b32 s82, s82, 15")
    k(f"v_add_u32 v{V_TOK}, s82, v{L16}\nv_add_u32 v{V_TOK+1}, 0x8000, v{V_TOK}")
    k(f"s_mul_i32 s{S_WB}, s80, 4224\ns_mul_i32 s82, s81, 2112\ns_add_u32 s{S_WB}, s{S_WB}, s82")
    c.NB, c.TB, c.KS, c.SPK, c.KT, c.NS, c.R = 8, 2, 1, 2, 16, 4, 32
    c.acc = lambda b, t: vr(32 + (b * 2 + t) * 4, 4)
    c.tf = lambda slot, ks, t: (slot * 2 + t) * 4
    c.rd = lambda sl, b, sub, r: (V_RD + sl // 2, (sl % 2) * STAGE + (b // 4) * HS + sub * 4224 + r * 256 + (b % 4) * 32)
    c.slot_addr = lambda sl: sl * STAGE
    c.dma = [(V_DMA + 2, 0, 0), (V_DMA + 3, 1056, 0), (V_DMA + 2, HS, 2048), (V_DMA + 3, HS + 1056, 2048)]
    c.v_tok = [V_TOK, V_TOK + 1]
    c.w_stride = 64 * 6144
    c.drop = opt.get("g1_drop", ())
    c.pro_units, c.ramp_rate, c.read_margin, c.lookahead = opt.get("g1_pro", 8), opt.get("g1_ramp", 5), 4, opt.get("g1_la", 4)
    c.wreg, c.wbase = vr, 128
    std_sched(c)
    q = Sched(); common_gemm(q)
    q.KT = 16; order(q, k, opt, "g1", ["win", [8, 8], 0]); q.tag = "g1b"; q.stamp_every = opt.get("g1b_se", 0)
    q.s_kw = 70
    QS = [67584 + i * HS for i in range(5)] + [L_R2 + i * HS for i in range(4)] + [i * HS for i in range(7)]
    q.Q1, q.Q2 = V_RD + 1, V_TOK
    def base(kt): return (q.Q1, 67584) if kt < 5 else ((q.Q2, L_R2) if kt < 9 else (V_RD, 0))
    for kt in range(16):
        sw = q.s_kw + kt % 2
        q.stage_units[kt] = [q.pos_items(sw, kt, c.w_stride) + [T(f"s_add_u32 m0, s{S_WB}, {QS[kt]}"), VM(f"buffer_load_dwordx4 v{V_DMA}, {sr(SRD_W,4)}, s{sw} offen lds", ("dma", kt))],
                             [T(f"s_add_u32 m0, s{S_WB}, {QS[kt] + 1056}"), VM(f"buffer_load_dwordx4 v{V_DMA+1}, {sr(SRD_W,4)}, s{sw} offen lds", ("dma", kt))]]
        q.stage_slot[kt] = kt
        va, b0 = base(kt)
        frags = [(va, QS[kt] - b0 + sub * 4224 + b * 32, QS[kt] - b0 + sub * 4224 + 256 + b * 32, [(vr((b * 2 + t) * 4, 4), ((kt * 2 + sub) * 2 + t) * 4) for t in range(2)]) for sub in range(2) for b in range(4)]
        q.steps.append(dict(frags=frags, stages=[kt] if kt != 9 else list(range(9, 16)), toks=[]))
    q.wf = lambda buf, j: (buf * 8 + j) * 4
    q.wreg, q.wbase = vr, 128
    q.pub0 = set(range(9)); q.pro_units = opt.get('q_pro', 2); q.ramp_rate = opt.get('q_ramp', 3); q.read_margin = 4; q.drop = c.drop
    c.q = q
    return c

def merge(a, b, ratio):
    out, b = [], list(b)
    for i, x in enumerate(a):
        out.append(x)
        if b and i % ratio == ratio - 1: out.append(b.pop(0))
    return out + b

def phase_gemm1s(k, c, opt):
    LANE, L16, VT = c.LANE, c.L16, c.VT
    q = c.q
    PHK, VV, SH = 0, 34816, 114688
    p = Txt()
    srd(p, SRD_A, P_WPHI, H * 2048)
    srd(p, SRD_B, P_WS, 2 << 20, WS_KVP)
    srd(p, SRD_C, P_WS, 128 << 10, WS_ZP)
    A_PW, A_VW, A_PR, A_VR, A_WR = 110, 111, 112, 113, 114
    p(f"s_lshr_b32 s80, s{S_WAVE}, 1\ns_and_b32 s81, s{S_WAVE}, 1")
    p(f"v_and_b32 v{VT}, 15, v{LANE}\ns_lshl_b32 s82, s{S_WAVE}, 5\nv_add_u32 v{VT}, s82, v{VT}")
    p(f"v_lshrrev_b32 v{VT+1}, 4, v{LANE}\nv_lshlrev_b32 v{VT+1}, 3, v{VT+1}")
    p(f"v_mul_u32_u24 v{A_PW}, 136, v{VT}\nv_add_u32 v{A_PW}, v{A_PW}, v{VT+1}")
    p(f"v_mul_u32_u24 v{A_VW}, 72, v{VT}\nv_add_u32 v{A_VW}, v{A_VW}, v{VT+1}")
    p(f"v_lshrrev_b32 v{VT}, 2, v{LANE}\nv_and_b32 v{VT+1}, 3, v{LANE}\nv_lshlrev_b32 v{VT+1}, 3, v{VT+1}")
    p(f"s_mul_i32 s82, s80, 17408\ns_lshl_b32 s83, s81, 6\ns_add_u32 s82, s82, s83")
    p(f"v_mul_u32_u24 v{A_PR}, 136, v{VT}\nv_add_u32 v{A_PR}, v{A_PR}, v{VT+1}\nv_add_u32 v{A_PR}, s82, v{A_PR}")
    p(f"s_mul_i32 s82, s80, 9216")
    p(f"v_mul_u32_u24 v{A_VR}, 72, v{VT}\nv_add_u32 v{A_VR}, v{A_VR}, v{VT+1}\nv_add_u32 v{A_VR}, s82, v{A_VR}")
    p(f"v_lshl_add_u32 v{A_WR}, v{VT}, 6, v{VT+1}\nv_add_u32 v{A_WR}, {L_WPH}, v{A_WR}")
    ONES, SEL = 116, 120
    for j in range(4): p(f"v_mov_b32 v{ONES+j}, 0x3f803f80")
    p(f"v_bfe_u32 v{VT}, v{LANE}, 2, 2\nv_lshrrev_b32 v{VT+1}, 4, v{LANE}")
    p(f"v_cmp_eq_u32 vcc, v{VT}, v{VT+1}")
    p(f"v_and_b32 v{VT}, 1, v{LANE}\nv_lshlrev_b32 v{VT}, 4, v{VT}\nv_mov_b32 v{VT+1}, 0x3f80\nv_lshlrev_b32 v{VT+1}, v{VT}, v{VT+1}")
    p(f"v_cndmask_b32 v{VT+1}, 0, v{VT+1}, vcc")
    p(f"v_and_b32 v{VT}, 2, v{LANE}\nv_cmp_eq_u32 vcc, 0, v{VT}")
    for j in (0, 1, 4, 5): p(f"v_mov_b32 v{SEL+j}, 0")
    p(f"v_cndmask_b32 v{SEL+2}, 0, v{VT+1}, vcc\nv_cndmask_b32 v{SEL+3}, v{VT+1}, 0, vcc")
    p(f"s_mov_b32 s94, {LOG2E!r}\ns_mov_b32 s95, {LOG2E!r}")
    p(f"s_lshl_b32 s84, s{S_HP}, 12\ns_lshl_b32 s85, s{S_WAVE}, 10\ns_add_u32 s84, s84, s85\ns_add_u32 s85, s85, {L_WPH}")
    c.pre_loop_txt = p.L
    c.late[4] = ["s_mov_b32 m0, s85", f"buffer_load_dwordx4 v{L16}, {sr(SRD_A,4)}, s84 offen lds"]
    for st_ in opt.get("cp1", [20]): c.late.setdefault(st_, []).extend(code_prefetch_txt(k.name, L16, 254, 80, junk="v31"))
    for st_ in opt.get("cp1b", []): q.late.setdefault(st_, []).extend(code_prefetch_txt(k.name, L16, 254, 80, junk="v252"))
    ts = opt.get("mt_step", None)
    if ts is not None:
        c.late.setdefault(ts, []).extend([f"v_mul_u32_u24 v254, 12288, v{LANE}", f"buffer_load_dword v31, v254, {sr(SRD_D,4)}, s{S_MB} offen"])
        if opt.get("wo_touch", 1):
            c.late[ts].extend([f"s_lshl_b32 s80, s2, 2", f"s_add_u32 s80, s80, s{S_WAVE}", "s_lshl_b32 s80, s80, 11",
                               f"v_and_b32 v254, 15, v{LANE}", "v_lshlrev_b32 v254, 7, v254", "v_add_u32 v254, s80, v254", f"global_load_dword v31, v254, s[{P_WO}:{P_WO+1}]"])
    nq = opt.get("q_in", 10)
    for j in range(nq // 2): c.late.setdefault(32 - nq // 2 + j, []).extend(q.prefetch_txt(2))
    wph_reads = lambda reg, b0: [f"ds_read_b64_tr_b16 {reg(b0+(hh*2+fb)*4+2*r,2)}, v{A_WR} offset:{hh*2048+r*1024+fb*32}" for hh in range(2) for fb in range(2) for r in range(2)]
    c.last_reads = wph_reads(vr, 0)
    c.run(k)
    k.stamp("g1 loop done")
    A = lambda b, t: (b * 2 + t) * 4
    BF, P1, P2, MX, MN, EK = 126, 142, 174, 206, 214, 222
    groups = [(hh, t) for hh in range(2) for t in range(2)]
    def fm_part1(k, seg, ph):
        for g, (hh, t) in enumerate(groups):
            for db in range(2):
                a = A(seg * 4 + hh * 2 + db, t)
                k(f"v_cvt_pk_bf16_f32 v{BF+g*4+db*2}, v{a}, v{a+1}\nv_cvt_pk_bf16_f32 v{BF+g*4+db*2+1}, v{a+2}, v{a+3}")
        k("s_nop 1")
        for g, (hh, t) in enumerate(groups):
            for fb in range(2):
                k(f"{MF} {vr(P1+g*8+fb*4,4)}, {ph(hh*2+fb)}, {vr(BF+g*4,4)}, 0")
    def fm_part2(k):
        for op3, op2, M in (("v_max3_f32", "v_max_f32", MX), ("v_min3_f32", "v_min_f32", MN)):
            for g in range(4):
                b = P1 + g * 8
                k(f"{op3} v{M+2*g}, v{b}, v{b+1}, v{b+2}\n{op3} v{M+2*g}, v{M+2*g}, v{b+3}, v{b+4}\n{op3} v{M+2*g}, v{M+2*g}, v{b+5}, v{b+6}\n{op2} v{M+2*g}, v{M+2*g}, v{b+7}")
        treduce4x2(k, ("v_max_f32", "v_min_f32"), ([MX + 2 * g for g in range(4)], [MN + 2 * g for g in range(4)]))
        for g in range(4):
            k(f"v_mul_f32 v{MX+2*g}, {-LOG2E!r}, v{MX+2*g}\nv_mul_f32 v{MN+2*g}, {LOG2E!r}, v{MN+2*g}")
    def fm_part3(k, E, gs_=range(4)):
        for g in gs_:
            for j in range(4):
                b = g * 8 + 2 * j
                k(f"v_pk_fma_f32 {vr(P2+b,2)}, {vr(P1+b,2)}, s[94:95], {vr(MN+2*g,2)} op_sel_hi:[1,1,0] neg_lo:[1,0,0] neg_hi:[1,0,0]")
                k(f"v_pk_fma_f32 {vr(P1+b,2)}, {vr(P1+b,2)}, s[94:95], {vr(MX+2*g,2)} op_sel_hi:[1,1,0]")
            for j in range(8): k(f"v_exp_f32 v{P1+g*8+j}, v{P1+g*8+j}")
            for j in range(8): k(f"v_exp_f32 v{P2+g*8+j}, v{P2+g*8+j}")
            k("s_nop 0")
            for sg, PP in enumerate((P1, P2)):
                for j in range(4): k(f"v_cvt_pk_bf16_f32 v{E+(g*2+sg)*4+j}, v{PP+g*8+2*j}, v{PP+g*8+2*j+1}")
    mark0 = len(k.L)
    k("s_waitcnt lgkmcnt(0)\ns_nop 7")
    fm_part1(k, 1, lambda i: vr(i * 4, 4))
    k("s_barrier")
    for g, (hh, t) in enumerate(groups):
        for db in range(2):
            a = A(8 + hh * 2 + db, t)
            k(f"v_cvt_pk_bf16_f32 v{a}, v{a}, v{a+1}\nv_cvt_pk_bf16_f32 v{a+1}, v{a+2}, v{a+3}")
            k(f"ds_write_b64 v{A_VW}, {vr(a,2)} offset:{VV + hh*9216 + t*16*72 + db*32}")
    fm_part2(k)
    grp = []
    for j in range(18 - q.pre_dma):
        t_ = q.prefetch_txt(1); grp.append(t_[:-1] + ["s_nop 0", t_[-1]])
    sprinkle(k, mark0, grp, skip=12)
    k.stamp("kp part2")
    fm_part3(k, EK)
    k.stamp("kp part3")
    SM = 32
    k("s_nop 1")
    for i in range(8): k(f"{MF} {vr(SM+4*i,4)}, {vr(ONES,4)}, {vr(EK+4*i,4)}, 0")
    k(f"v_add_u32 v{q.Q1}, 67584, v{c.V_RD}\nv_add_u32 v{q.Q2}, {L_R2}, v{c.V_RD}")
    k("s_nop 5")
    for i in range(8): k(f"v_rcp_f32 v{SM+4*i}, v{SM+4*i}")
    for g, (hh, t) in enumerate(groups):
        for sg, PP in enumerate((P1, P2)):
            for j in range(4):
                k(f"v_pk_mul_f32 {vr(PP+g*8+2*j,2)}, {vr(PP+g*8+2*j,2)}, {vr(SM+(g*2+sg)*4,2)} op_sel_hi:[1,0]")
            for fb in range(2):
                b = PP + g * 8 + fb * 4
                k(f"v_cvt_pk_bf16_f32 v{b}, v{b}, v{b+1}\nv_cvt_pk_bf16_f32 v{b+1}, v{b+2}, v{b+3}")
                k(f"ds_write_b64 v{A_PW}, {vr(b,2)} offset:{PHK + hh*17408 + t*16*136 + sg*64 + fb*32}")
    k.stamp("kp norm")
    k("s_waitcnt lgkmcnt(0)\ns_barrier")
    k.stamp("kp bar")
    FR = 190
    for s_ in range(4):
        for r in range(2):
            for fb in range(2): k(f"ds_read_b64_tr_b16 {vr(FR+s_*16+fb*4+2*r,2)}, v{A_PR} offset:{PHK + (32*s_+16*r)*136 + fb*32}")
            for db in range(2): k(f"ds_read_b64_tr_b16 {vr(FR+s_*16+8+db*4+2*r,2)}, v{A_VR} offset:{VV + (32*s_+16*r)*72 + db*32}")
    k(f"s_lshl_b32 s82, s{S_HP}, 2\ns_add_u32 s82, s82, s{S_WAVE}")
    k("s_lshl_b32 s86, s82, 15")
    k(f"s_lshl_b32 s84, s{S_RB1}, 10\ns_add_u32 s84, s84, s86\ns_add_u32 s85, s84, 16384")
    k("s_lshl_b32 s90, s82, 11")
    k(f"s_lshl_b32 s91, s82, {FS+4}\ns_add_u32 s91, s91, {F_KV}\ns_lshl_b32 s92, s{S_RB1}, {FS}\ns_add_u32 s92, s92, s91")
    k(f"v_and_b32 v{VT}, 15, v{LANE}\nv_cmp_eq_u32 vcc, s{S_RB1}, v{VT}")
    KV, ZZ = 64, 80
    for s_ in range(4):
        k(f"s_waitcnt lgkmcnt({min(15, 24 - 8*s_)})" if s_ < 3 else "s_waitcnt vmcnt(0) lgkmcnt(0)\ns_barrier")
        for fb in range(2):
            for db in range(2):
                d = vr(KV + (db * 2 + fb) * 4, 4)
                k(f"{MF} {d}, {vr(FR+s_*16+fb*4,4)}, {vr(FR+s_*16+8+db*4,4)}, {'0' if s_ == 0 else d}")
            d = vr(ZZ + fb * 4, 4)
            k(f"{MF} {d}, {vr(FR+s_*16+fb*4,4)}, {vr(ONES,4)}, {'0' if s_ == 0 else d}")
    k(f"v_lshlrev_b32 v{VT}, {FS}, v{VT}\nv_mov_b32 v{VT+1}, 1\nv_mov_b32 v{VT+2}, 0")
    k("s_nop 5")
    for db in range(2):
        for j in range(4): k(f"v_cvt_pk_bf16_f32 v{88+db*4+j}, v{KV+db*8+2*j}, v{KV+db*8+2*j+1}")
    k(f"buffer_store_dwordx4 {vr(88,4)}, v{L16}, {sr(SRD_B,4)}, s84 offen sc1")
    k(f"buffer_store_dwordx4 {vr(92,4)}, v{L16}, {sr(SRD_B,4)}, s85 offen sc1")
    k("s_and_saveexec_b64 s[96:97], vcc")
    k(f"buffer_store_dwordx4 {vr(ZZ,4)}, v{L16}, {sr(SRD_C,4)}, s90 offen sc1")
    k(f"buffer_store_dwordx4 {vr(ZZ+4,4)}, v{L16}, {sr(SRD_C,4)}, s90 offen offset:1024 sc1")
    k("s_mov_b64 exec, s[96:97]")
    k.stamp("kv stored")
    KV, ZZ, MW, MC = 72, 88, 32, 64
    q.late[opt.get("kv_ps", 1)] = [WVM([("pre", 0)]), f"buffer_store_dword v{VT+1}, v{VT+2}, {sr(SRD_F,4)}, s92 offen sc1"]
    gs = opt.get("kv_gs", 9)
    ld = f"buffer_load_dword v253, v{VT}, {sr(SRD_F,4)}, s91 offen sc1"
    m = Txt(); m.label = k.label
    okl = k.label("gok")
    m(f"v_cmp_eq_u32 vcc, 0, v253\ns_cmp_eq_u64 vcc, 0\ns_cbranch_scc1 {okl}")
    spin(m, [ld], [253], 0)
    m(f"{okl}:")
    q.late[gs - 2] = [VM(ld, ("kvf", 0))]
    gl = [f"buffer_load_dwordx4 {vr(ZZ,4)}, v{L16}, {sr(SRD_C,4)}, s90 offen sc1", f"buffer_load_dwordx4 {vr(ZZ+4,4)}, v{L16}, {sr(SRD_C,4)}, s90 offen offset:1024 sc1"]
    for i in range(32):
        if i % 4 == 0 and i: gl.append("s_add_u32 s86, s86, 4096")
        gl.append(f"buffer_load_dwordx4 {ar(4*i,4)}, v{L16}, {sr(SRD_B,4)}, s86 offen offset:{(i%4)*1024} sc1")
    n3 = -(-len(gl) // 3)
    q.late[gs] = [WVM([("kvf", 0)]), T("\n".join(m.L))] + gl[:n3]
    q.late[gs + 1] = gl[n3:2*n3]; q.late[gs + 2] = gl[2*n3:]
    t2 = Txt()
    g2 = setup_gemm24(t2, 2, opt, (110, 111, 112, LANE, L16, 98))
    q.late[5] = t2.L[:len(t2.L)//2]; q.late[6] = t2.L[len(t2.L)//2:] + [f"global_load_ushort v{MC+i}, v109, s[{P_C}:{P_C+1}] offset:{i*16}" for i in range(8)]
    assert gs - 2 > 6
    younger = []
    younger += g2.prefetch_txt(opt.get('g2_p1', 8))
    mbl = []
    for i in range(8): mbl += [f"buffer_load_dwordx4 {vr(MW+4*i,4)}, v115, {sr(SRD_D,4)}, s{S_MB} offen", f"s_add_u32 s{S_MB}, s{S_MB}, {8*12288}"]
    mpos = opt.get("mpos", "tail")
    if mpos == "tail": younger += mbl
    ny = sum(1 for x in younger if is_vm(x))
    rest = list(range(gs + 3, 16)); per = -(-len(younger) // len(rest))
    for j, st_ in enumerate(rest): q.late[st_] = younger[j*per:(j+1)*per]
    A_PH = 128
    q.last_reads = wph_reads(ar, A_PH)
    q.run(k)
    k.stamp("g1b done")
    srd(k, SRD_T, P_WS, S * D * 2, WS_O)
    k("s_waitcnt lgkmcnt(0)\ns_nop 3")
    qa = Txt(); fm_part1(qa, 0, lambda i: ar(A_PH + i * 4, 4))
    qa(f"s_waitcnt vmcnt({min(63, ny + 32)})")
    for sh in (8, 4, 2, 1):
        for j in range(8): qa(f"v_add_f32_dpp v{ZZ+j}, v{ZZ+j}, v{ZZ+j} row_ror:{sh} row_mask:0xf bank_mask:0xf")
    for x in qa.L: k(x)
    k.stamp("qp a")
    hs = g2.hs
    qb = Txt(); fm_part2(qb); fm_part3(qb, EK, range(2) if hs else range(4))
    red = []
    for i in range(32):
        db, pp = divmod(i, 16)
        for fb in range(2):
            d = vr(KV + (db * 2 + fb) * 4, 4)
            red.append((f"s_waitcnt vmcnt({ny + 28 - i})\n" if (i % 4 == 0 and fb == 0) else "") + f"{MF} {d}, {vr(SEL + (2 if fb == 0 else 0), 4)}, {ar(4*i,4)}, {'0' if pp == 0 else d}")
    cut = opt.get("q_cut", 150) if not hs else len(qb.L)
    for x in merge(qb.L[:cut], red, 2): k(x)
    if hs:
        k("s_nop 3")
        qb = Txt(); fm_part3(qb, EK, [2]); cut = 0
    k.stamp("qp merged")
    k(f"s_mul_i32 s82, s{S_WAVE}, 3072\ns_add_u32 s82, s82, {SH}")
    k(f"v_add_u32 v{VT+1}, s82, v{L16}\nv_add_u32 v{VT+2}, {SH}, v{L16}")
    k(f"v_and_b32 v{VT}, 1, v{LANE}\nv_cmp_eq_u32 vcc, 0, v{VT}")
    k("s_nop 4")
    for j in range(12): k(f"v_cvt_pk_bf16_f32 v{KV+j}, v{KV+2*j}, v{KV+2*j+1}")
    for j in range(4): k(f"v_cndmask_b32 v{KV+8+j}, v{ONES}, v{KV+8+j}, vcc")
    for j in range(3): k(f"ds_write_b128 v{VT+1}, {vr(KV+4*j,4)} offset:{j*1024}")
    for x in (merge(qb.L[cut:], mbl, 2) if mpos == "q" else qb.L[cut:]): k(x)
    k.stamp("qp rest")
    k("s_waitcnt lgkmcnt(0)\ns_barrier")
    k.stamp("qp bar")
    for i in range(12): k(f"ds_read_b128 {ar(4*i,4)}, v{VT+2} offset:{i*1024}")
    k(f"s_lshl_b32 s82, s{S_RB1}, 3\ns_lshl_b32 s83, s{S_WAVE}, 1\ns_add_u32 s82, s82, s83\ns_lshl_b32 s82, s82, 15")
    k(f"s_lshl_b32 s83, s{S_HP}, 11\ns_add_u32 s82, s82, s83\ns_add_u32 s83, s82, 0x8000")
    k(f"s_lshl_b32 s84, s{S_RB1}, 2\ns_add_u32 s84, s84, s{S_WAVE}\ns_lshl_b32 s84, s84, {FS+4}\ns_lshl_b32 s85, s{S_HP}, {FS}\ns_add_u32 s84, s84, s85\ns_add_u32 s84, s84, {F_O}")
    k("s_waitcnt lgkmcnt(0)")
    NB_ = 126
    def nbase(g): return NB_ + g * 24 if (not hs or g >= 2) else None
    def oregs(g):
        if hs and g < 2: return (0, 12) if g == 0 else (72, 84)
        return (NB_ + g * 24, NB_ + g * 24 + 12)
    def o_mfma(gl):
        for g in gl:
            hh, t = groups[g]
            for sg in range(2):
                for j in range(3):
                    k(f"{MF} {vr(oregs(g)[sg]+4*j,4)}, {ar(((hh*2+sg)*3+j)*4,4)}, {vr(EK+(g*2+sg)*4,4)}, 0")
    def o_fin(gl):
        for g in gl:
            hh, t = groups[g]
            n1, n2 = oregs(g)
            D1, S1, D2, S2 = n1 + 8, n1 + 9, n2 + 8, n2 + 9
            k(f"v_mul_f32 v{n1+10}, v{S1}, v{S2}")
            k(f"v_mul_f32 v{n1+10}, 0x358637bd, v{n1+10}")
            k(f"v_fmac_f32 v{n1+10}, v{D1}, v{S2}\nv_fmac_f32 v{n1+10}, v{D2}, v{S1}")
            k(f"v_rcp_f32 v{n1+10}, v{n1+10}")
            k("s_nop 0")
            k(f"v_mul_f32 v{D1}, v{S2}, v{n1+10}\nv_mul_f32 v{D2}, v{S1}, v{n1+10}")
            for j in range(4): k(f"v_pk_mul_f32 {vr(n1+2*j,2)}, {vr(n1+2*j,2)}, {vr(D1,2)} op_sel_hi:[1,0]")
            for j in range(4): k(f"v_pk_fma_f32 {vr(n1+2*j,2)}, {vr(n2+2*j,2)}, {vr(D2,2)}, {vr(n1+2*j,2)} op_sel_hi:[1,0,1]")
            for j in range(4): k(f"v_cvt_pk_bf16_f32 v{n2+j}, v{n1+2*j}, v{n1+2*j+1}")
            k(f"buffer_store_dwordx4 {vr(n2,4)}, v{L16}, {sr(SRD_T,4)}, s{82+t} offen offset:{hh*1024} sc1")
    if hs:
        o_mfma([0, 1]); k("s_nop 7"); o_fin([0, 1])
        mk0 = len(k.L)
        fm_part3(k, EK, [3])
        k("s_nop 1")
        o_mfma([2, 3]); k("s_nop 7")
        publish(k, 84, VT + 1, mk0)
        k(f"s_add_u32 s95, s84, {F_O2 - F_O}")
        o_fin([2, 3])
    else:
        o_mfma(range(4)); k("s_nop 7"); o_fin(range(4))
    k.stamp("o stored")
    mko = len(k.L)
    g2.V_X = 178
    srd(k, SRD_A, P_X, S * D * 2)
    V_XA = 100
    k(f"v_lshrrev_b32 v{VT+1}, 4, v{LANE}")
    k(f"v_and_b32 v{VT+2}, 15, v{LANE}\nv_lshlrev_b32 v{VT+2}, 11, v{VT+2}\nv_lshl_add_u32 v{V_XA}, v{VT+1}, 3, v{VT+2}")
    k(f"s_lshl_b32 s82, s{S_RB2}, 3\ns_lshl_b32 s83, s{S_WAVE}, 1\ns_add_u32 s82, s82, s83\ns_lshl_b32 s82, s82, 15\ns_lshl_b32 s83, s{S_NT}, 7\ns_add_u32 s82, s82, s83\ns_add_u32 s83, s82, 32768")
    for t in range(2):
        for b in range(4):
            k(f"buffer_load_dwordx2 {vr(g2.V_X+(t*4+b)*2,2)}, v{V_XA}, {sr(SRD_A,4)}, s{82+t} offen offset:{b*32}")
    k.g3 = setup_gemm3_early(k, opt, LANE, 20)
    if not hs: publish(k, 84, VT + 1, mko)
    k.stamp("o published")
    mark1 = len(k.L)
    CU, AU, TT = 0, 16, 24
    for i in range(8): k(f"v_mov_b32 v{CU+2*i}, v{MC+i}")
    silu_block(k, [CU + 2 * i for i in range(8)])
    for i in range(8):
        for d in range(4):
            k(f"v_lshlrev_b32 v{TT}, 16, v{MW+4*i+d}\nv_and_b32 v{TT+1}, 0xffff0000, v{MW+4*i+d}")
            if i == 0: k(f"v_pk_mul_f32 {vr(AU+2*d,2)}, {vr(TT,2)}, {vr(CU,2)} op_sel_hi:[1,0]")
            else: k(f"v_pk_fma_f32 {vr(AU+2*d,2)}, {vr(TT,2)}, {vr(CU+2*i,2)}, {vr(AU+2*d,2)} op_sel_hi:[1,0,1]")
    k("s_nop 1")
    for j in range(4): k(f"v_permlane32_swap_b32 v{AU+j}, v{AU+j+4}")
    k("s_nop 1")
    for j in range(4): k(f"v_add_f32 v{AU+j}, v{AU+j}, v{AU+j+4}")
    k("s_nop 1")
    for j in range(2): k(f"v_permlane16_swap_b32 v{AU+j}, v{AU+j+2}")
    k("s_nop 1")
    for j in range(2): k(f"v_add_f32 v{AU+j}, v{AU+j}, v{AU+j+2}")
    k("s_nop 1")
    for j in range(2): k(f"v_add_f32_dpp v{AU+j}, v{AU+j}, v{AU+j} row_ror:8 row_mask:0xf bank_mask:0xf")
    grp = g3_early_units(k.g3, opt.get("g3_e2", 0), 254)
    for j in range(opt.get("g2_p2", 0)):
        t_ = g2.prefetch_txt(1); grp.append(t_[:-1] + ["s_nop 0", t_[-1]])
    sprinkle(k, mark1, grp, skip=0)
    k(f"v_and_b32 v{TT}, 7, v{LANE}\nv_lshlrev_b32 v{TT}, 5, v{TT}\nv_lshrrev_b32 v{TT+1}, 5, v{LANE}\nv_lshl_add_u32 v{TT}, v{TT+1}, 4, v{TT}")
    k(f"v_bfe_u32 v{TT+1}, v{LANE}, 4, 1\nv_lshl_add_u32 v{TT}, v{TT+1}, 3, v{TT}")
    srd(k, SRD_D, P_WS, MP_BYTES, WS_MODP)
    k(f"v_or_b32 v{AU}, 1, v{AU}\nv_or_b32 v{AU+1}, 1, v{AU+1}")
    k(f"buffer_store_dwordx2 {vr(AU,2)}, v{TT}, {sr(SRD_D,4)}, s{S_MO} offen sc1")
    return g2

A_UT = 176
def silu_block(k, regs):
    for v in regs: k(f"v_lshlrev_b32 v{v}, 16, v{v}\nv_mul_f32 v{v+1}, {-LOG2E!r}, v{v}")
    for v in regs: k(f"v_exp_f32 v{v+1}, v{v+1}")
    k("s_nop 0")
    for v in regs: k(f"v_add_f32 v{v+1}, 1.0, v{v+1}")
    for v in regs: k(f"v_rcp_f32 v{v+1}, v{v+1}")
    k("s_nop 0")
    for v in regs:
        k(f"v_mul_f32 v{v}, v{v}, v{v+1}"); round_bf16(k, v)

def modb_loads(s_off, v_w, v_c):
    out = []
    for i in range(8):
        out.append([f"buffer_load_dwordx4 {ar(A_UT+4*i,4)}, v{v_w}, {sr(SRD_D,4)}, s{s_off} offen", f"s_add_u32 s{s_off}, s{s_off}, {8*12288}"])
    return out

def red32(k, x, t):
    red8(k, x)
    k(f"s_nop 1\nv_add_f32_dpp v{x}, v{x}, v{x} row_mirror row_mask:0xf bank_mask:0xf")
    k(f"v_mov_b32 v{t}, v{x}\ns_nop 1\nv_permlane16_swap_b32 v{x}, v{t}\ns_nop 1\nv_add_f32 v{x}, v{x}, v{t}")

def ids(k):
    k("v_lshrrev_b32 v1, 6, v0")
    k(f"s_and_b32 s{S_XCD}, s2, 7\ns_lshr_b32 s{S_IDX}, s2, 3")
    k(f"v_readfirstlane_b32 s{S_WAVE}, v1")
    k(f"s_bfe_u32 s{S_RB1}, s{S_XCD}, 0x10001\ns_lshl_b32 s{S_RB1}, s{S_RB1}, 3\ns_lshr_b32 s80, s{S_IDX}, 2\ns_add_u32 s{S_RB1}, s{S_RB1}, s80")
    k(f"s_lshr_b32 s{S_HP}, s{S_XCD}, 2\ns_lshl_b32 s{S_HP}, s{S_HP}, 2\ns_and_b32 s80, s{S_IDX}, 3\ns_add_u32 s{S_HP}, s{S_HP}, s80\ns_lshl_b32 s{S_HP}, s{S_HP}, 1\ns_and_b32 s80, s{S_XCD}, 1\ns_add_u32 s{S_HP}, s{S_HP}, s80")

def build_k0(instr=False, opt=None, name="mod_kernel", mega="mega_kernel"):
    opt = opt or {}
    k = Kernel(name, 256, 256, 4096, vgpr=128, sgpr=102)
    k.instr = instr; k.s_wave = S_WAVE
    stamp(k, 0)
    end = k.label("end")
    k(f"s_cmp_ge_u32 s2, 256\ns_cbranch_scc1 {end}")
    k("s_load_dwordx4 s[12:15], s[0:1], 64")
    k("s_load_dwordx8 s[4:11], s[0:1], 0")
    k("s_load_dwordx2 s[28:29], s[0:1], 96")
    ids(k)
    LANE, T, V_W = 104, 48, 105
    WA, CA, XR, XF, A0, SU = 64, 80, 84, 0, 32, 100
    k(f"v_and_b32 v{LANE}, 63, v0")
    k(f"v_lshrrev_b32 v{T+1}, 3, v{LANE}\nv_and_b32 v{T+2}, 7, v{LANE}")
    k(f"v_mul_u32_u24 v{V_W}, 12288, v{T+1}\nv_lshl_add_u32 v{V_W}, v{T+2}, 4, v{V_W}")
    k(f"s_lshl_b32 s64, s{S_RB1}, 6\ns_lshl_b32 s65, s{S_WAVE}, 4\ns_add_u32 s64, s64, s65")
    k(f"v_add_u32 v{T+3}, s64, v{T+1}\nv_lshlrev_b32 v{T+3}, 1, v{T+3}")
    k(f"s_mul_i32 s67, s64, 12288\ns_lshl_b32 s66, s{S_HP}, 7\ns_add_u32 s67, s67, s66\ns_add_u32 s68, s67, {8*12288}")
    k(f"v_lshrrev_b32 v{T+4}, 5, v{LANE}\nv_lshlrev_b32 v{T+4}, 11, v{T+4}\nv_and_b32 v{T+5}, 31, v{LANE}\nv_lshl_add_u32 v{T+4}, v{T+5}, 4, v{T+4}")
    k(f"s_lshl_b32 s69, s{S_RB1}, 4\ns_add_u32 s69, s69, s{S_HP}")
    k(f"s_lshl_b32 s70, s69, 14\ns_lshl_b32 s71, s{S_WAVE}, 12\ns_add_u32 s70, s70, s71")
    k("s_waitcnt lgkmcnt(0)")
    srd(k, SRD_D, 14, D * 6 * D * 2)
    srd(k, SRD_A, P_X, S * D * 2)
    for i in range(2): k(f"global_load_ushort v{CA+2*i}, v{T+3}, s[12:13] offset:{i*16}")
    for i in range(2):
        for v in range(2): k(f"buffer_load_dwordx4 {vr(WA+(i*2+v)*4,4)}, v{V_W}, {sr(SRD_D,4)}, s{67+i} offen offset:{v*2048}")
    for i in range(4): k(f"buffer_load_dwordx4 {vr(XR+4*i,4)}, v{T+4}, {sr(SRD_A,4)}, s70 offen offset:{i*512}")
    stamp(k, 1)
    lab = k.label("pc")
    k(f"s_getpc_b64 s[60:61]\n{lab}:")
    k(f"s_add_u32 s60, s60, {mega}-{lab}\ns_addc_u32 s61, s61, 0")
    k(f"v_lshlrev_b32 v{T+6}, 4, v{LANE}")
    for x in code_prefetch_txt(mega, T + 6, T + 7, 62, s_pc=60, junk="v110"): k(x)
    srd(k, SRD_B, P_WS, MP_BYTES, WS_MODP)
    srd(k, SRD_F, P_WS, FLAG_BYTES, WS_FLAG)
    srd(k, SRD_C, P_WS, S * 128, WS_STAT)
    k(f"v_mov_b32 v{T+8}, 0\nv_lshlrev_b32 v{T+9}, 2, v0\ns_lshl_b32 s62, s2, 10\ns_add_u32 s63, s62, {MP_B}")
    k(f"v_lshlrev_b32 v{T+10}, {FS}, v0\ns_lshl_b32 s66, s2, {FS+8}")
    k(f"buffer_store_dword v{T+8}, v{T+10}, {sr(SRD_F,4)}, s66 offen")
    k(f"buffer_store_dword v{T+8}, v{T+9}, {sr(SRD_C,4)}, s62 offen")
    k(f"buffer_store_dword v{T+8}, v{T+9}, {sr(SRD_B,4)}, s63 offen")
    young = 4
    k(f"s_lshl_b32 s62, s2, 2\ns_add_u32 s62, s62, s{S_WAVE}")
    for ptr, per, tag in ((P_WQKV, 6, "t_wq"), (P_WO, 2, "t_wo"), (14, 12, "t_wm")):
        if not opt.get(tag, 1): continue
        k(f"s_mul_i32 s63, s62, {per*1024}\ns_add_u32 s63, s63, 384")
        k(f"v_min_u32 v{T+14}, {per-1}, v{LANE}\nv_lshlrev_b32 v{T+14}, 10, v{T+14}\nv_add_u32 v{T+14}, s63, v{T+14}")
        k(f"global_load_dword v110, v{T+14}, s[{ptr}:{ptr+1}]")
        young += 1
    k(f"s_waitcnt vmcnt({young + 8})")
    silu_block(k, [CA, CA + 2])
    k(f"s_waitcnt vmcnt({young + 4})")
    for i in range(2):
        for v in range(2):
            for d in range(4):
                w_ = WA + (i * 2 + v) * 4 + d
                k(f"v_lshlrev_b32 v{T+10}, 16, v{w_}\nv_and_b32 v{T+11}, 0xffff0000, v{w_}")
                if i == 0: k(f"v_pk_mul_f32 {vr(A0+v*8+2*d,2)}, {vr(T+10,2)}, {vr(CA,2)} op_sel_hi:[1,0]")
                else: k(f"v_pk_fma_f32 {vr(A0+v*8+2*d,2)}, {vr(T+10,2)}, {vr(CA+2,2)}, {vr(A0+v*8+2*d,2)} op_sel_hi:[1,0,1]")
    k("s_nop 1")
    for j in range(8): k(f"v_permlane32_swap_b32 v{A0+j}, v{A0+8+j}")
    k("s_nop 1")
    for j in range(8): k(f"v_add_f32 v{A0+j}, v{A0+j}, v{A0+8+j}")
    k("s_nop 1")
    for j in range(4): k(f"v_permlane16_swap_b32 v{A0+j}, v{A0+4+j}")
    k("s_nop 1")
    for j in range(4): k(f"v_add_f32 v{A0+j}, v{A0+j}, v{A0+4+j}")
    k("s_nop 1")
    for j in range(4): k(f"v_add_f32_dpp v{A0+j}, v{A0+j}, v{A0+j} row_ror:8 row_mask:0xf bank_mask:0xf")
    k(f"v_lshrrev_b32 v{T+12}, 5, v{LANE}\nv_lshlrev_b32 v{T+13}, 8, v{T+12}\nv_lshl_add_u32 v{T+13}, v{T+2}, 5, v{T+13}")
    k(f"v_bfe_u32 v{T+10}, v{LANE}, 4, 1\nv_lshl_add_u32 v{T+13}, v{T+10}, 4, v{T+13}\ns_lshl_b32 s62, s{S_WAVE}, 9\nv_add_u32 v{T+13}, s62, v{T+13}")
    k(f"ds_write_b128 v{T+13}, {vr(A0,4)}")
    k("s_waitcnt lgkmcnt(0)\ns_barrier")
    nw0 = k.label("notw0")
    k(f"s_cmp_lg_u32 s{S_WAVE}, 0\ns_cbranch_scc1 {nw0}")
    k(f"v_lshlrev_b32 v{T+13}, 3, v{LANE}")
    for w in range(4): k(f"ds_read_b64 {vr(A0+2*w,2)}, v{T+13} offset:{w*512}")
    k(f"s_lshl_b32 s62, s{S_HP}, 13\ns_lshl_b32 s63, s{S_RB1}, 9\ns_add_u32 s63, s63, s62")
    k("s_waitcnt lgkmcnt(0)")
    k(f"v_pk_add_f32 {vr(A0,2)}, {vr(A0,2)}, {vr(A0+2,2)}\nv_pk_add_f32 {vr(A0+4,2)}, {vr(A0+4,2)}, {vr(A0+6,2)}\nv_pk_add_f32 {vr(A0,2)}, {vr(A0,2)}, {vr(A0+4,2)}")
    k(f"buffer_store_dwordx2 {vr(A0,2)}, v{T+13}, {sr(SRD_B,4)}, s63 offen")
    k(f"{nw0}:")
    stamp(k, 2)
    k(f"s_waitcnt vmcnt({young})")
    for d in range(16): k(f"v_lshlrev_b32 v{XF+2*d}, 16, v{XR+d}\nv_and_b32 v{XF+2*d+1}, 0xffff0000, v{XR+d}")
    k(f"v_pk_add_f32 {vr(SU,2)}, {vr(XF,2)}, {vr(XF+2,2)}")
    for d in range(2, 16): k(f"v_pk_add_f32 {vr(SU,2)}, {vr(SU,2)}, {vr(XF+2*d,2)}")
    k(f"v_add_f32 v{SU}, v{SU}, v{SU+1}")
    red32(k, SU, SU + 1)
    k(f"v_mul_f32 v{SU+2}, {-1.0/1024!r}, v{SU}")
    k(f"v_mov_b32 v{SU}, 0\nv_mov_b32 v{SU+1}, 0")
    for d in range(16):
        k(f"v_pk_add_f32 {vr(XF+2*d,2)}, {vr(XF+2*d,2)}, {vr(SU+2,2)} op_sel_hi:[1,0]")
        k(f"v_pk_fma_f32 {vr(SU,2)}, {vr(XF+2*d,2)}, {vr(XF+2*d,2)}, {vr(SU,2)}")
    k(f"v_add_f32 v{SU}, v{SU}, v{SU+1}")
    red32(k, SU, SU + 1)
    k(f"v_mov_b32 v{SU+1}, 0x3727c5ac\nv_fmac_f32 v{SU+1}, {1.0/1024!r}, v{SU}\nv_rsq_f32 v{SU+3}, v{SU+1}")
    k(f"s_lshl_b32 s62, s69, 6\ns_lshl_b32 s63, s{S_WAVE}, 4\ns_add_u32 s62, s62, s63\ns_add_u32 s62, s62, {MP_RS}\nv_lshlrev_b32 v{T+12}, 3, v{T+12}")
    k(f"buffer_store_dwordx2 {vr(SU+2,2)}, v{T+12}, {sr(SRD_B,4)}, s62 offen")
    stamp(k, 3)
    if instr: k("s_waitcnt vmcnt(0)")
    stamp(k, 4)
    stamp_flush(k, 28, 5, 4, slot=1)
    k(f"{end}:\ns_endpgm")
    return k

def phase_front_fused(k, opt, name):
    LANE, L16 = 104, 105
    T = 48
    V_W, V_C = 115, 109
    WA, CA, XR, XT_, XF, A0, SU, G, M, RS = 64, 80, 128, 144, 0, 200, 216, 160, 32, 84
    HL = 2 * 25344
    k(f"v_lshrrev_b32 v{T+1}, 3, v{LANE}\nv_and_b32 v{T+2}, 7, v{LANE}")
    k(f"v_mul_u32_u24 v{V_W}, 12288, v{T+1}\nv_lshl_add_u32 v{V_W}, v{T+2}, 4, v{V_W}")
    k(f"s_lshl_b32 s84, s{S_RB1}, 6")
    k(f"v_add_u32 v{V_C}, s84, v{T+1}\nv_lshlrev_b32 v{V_C}, 1, v{V_C}")
    k(f"s_lshl_b32 s85, s{S_WAVE}, 5\nv_add_u32 v{T+3}, s85, v{V_C}")
    k(f"s_mul_i32 s86, s84, 12288\ns_lshl_b32 s87, s{S_HP}, 7\ns_add_u32 s86, s86, s87")
    k(f"s_mul_i32 s87, s{S_WAVE}, {16*12288}\ns_add_u32 s87, s87, s86\ns_add_u32 s88, s87, {8*12288}")
    k(f"v_lshrrev_b32 v{T+4}, 5, v{LANE}\nv_lshlrev_b32 v{T+4}, 11, v{T+4}\nv_and_b32 v{T+5}, 31, v{LANE}\nv_lshl_add_u32 v{T+4}, v{T+5}, 4, v{T+4}")
    k(f"s_lshl_b32 s89, s{S_RB1}, 4\ns_add_u32 s89, s89, s{S_HP}")
    k(f"s_lshl_b32 s90, s89, 14\ns_lshl_b32 s91, s{S_WAVE}, 12\ns_add_u32 s90, s90, s91")
    k(f"v_mov_b32 v{T+8}, 0\nv_mov_b32 v{T+9}, 0\nv_mov_b32 v{T+10}, 0\nv_mov_b32 v{T+11}, 0\nv_mov_b32 v{T+12}, 1")
    k(f"v_lshlrev_b32 v{T+7}, {FS}, v{LANE}")
    k(f"s_lshl_b32 s93, s2, {FS+6}\ns_add_u32 s93, s93, {F_S0}\ns_cmp_lt_u32 s2, 4\ns_cselect_b32 s93, s93, 0x7ff00000\ns_cmp_eq_u32 s{S_WAVE}, 3\ns_cselect_b32 s93, s93, 0x7ff00000")
    k("s_waitcnt lgkmcnt(0)")
    srd(k, SRD_F, P_WS, FLAG_BYTES, WS_FLAG)
    k(f"buffer_store_dword v{T+8}, v{T+7}, {sr(SRD_F,4)}, s93 offen sc1")
    k(f"s_mov_b32 s{SRD_T}, s{P_DBG}\ns_mov_b32 s{SRD_T+1}, s{P_DBG+1}\ns_mov_b32 s{SRD_T+2}, 256\ns_mov_b32 s{SRD_T+3}, 0x20000")
    k("s_mov_b32 s95, s93")
    srd(k, SRD_D, P_WMOD, D * 6 * D * 2)
    srd(k, SRD_A, P_X, S * D * 2)
    for i in range(2): k(f"global_load_ushort v{CA+2*i}, v{T+3}, s[{P_C}:{P_C+1}] offset:{i*16}")
    for i in range(2):
        for v in range(2): k(f"buffer_load_dwordx4 {vr(WA+(i*2+v)*4,4)}, v{V_W}, {sr(SRD_D,4)}, s{87+i} offen offset:{v*2048}")
    for i in range(4): k(f"buffer_load_dwordx4 {vr(XR+4*i,4)}, v{T+4}, {sr(SRD_A,4)}, s90 offen offset:{i*512}")
    k.stamp("loads issued")
    srd(k, SRD_B, P_WS, MP_BYTES, WS_MODP)
    srd(k, SRD_C, P_WS, S * 128, WS_STAT)
    w3, jn = k.label("w3"), k.label("join")
    k(f"s_cmp_eq_u32 s{S_WAVE}, 3\ns_cbranch_scc1 {w3}")
    k(f"s_lshl_b32 s92, s2, 1\ns_add_u32 s92, s92, s{S_WAVE}\ns_sub_u32 s92, s92, 1")
    nt_ = k.label("notouch")
    k("s_mov_b32 s93, 0x7ff00000")
    for i in range(2): k(f"buffer_load_dword a233, v{V_W}, {sr(SRD_D,4)}, s93 offen")
    k(f"s_cmp_eq_u32 s{S_WAVE}, 0\ns_cbranch_scc1 {nt_}")
    for ptr, per in ((P_WQKV, 12), (P_WO, 4), (P_WMOD, 24)):
        k(f"s_mul_i32 s93, s92, {per}\nv_min_u32 v{T+14}, {per-1}, v{LANE}\nv_add_u32 v{T+14}, s93, v{T+14}")
        k(f"v_lshlrev_b32 v{T+14}, 10, v{T+14}")
        k(f"global_load_dword a232, v{T+14}, s[{ptr}:{ptr+1}] offset:384")
    k(f"s_branch {jn}")
    k(f"{nt_}:")
    for i in range(3): k(f"buffer_load_dword a233, v{V_W}, {sr(SRD_D,4)}, s93 offen")
    k(f"s_branch {jn}")
    k(f"{w3}:")
    nb = k.label("nboot")
    k(f"s_cmp_eq_u32 s95, 0x7ff00000\ns_cbranch_scc1 {nb}")
    k("s_lshl_b32 s93, s2, 2\ns_waitcnt vmcnt(10)")
    k(f"buffer_store_dword v{T+12}, v{T+8}, {sr(SRD_T,4)}, s93 offen sc1")
    k(f"{nb}:")
    k(f"v_and_b32 v{T+14}, 3, v{LANE}\nv_lshlrev_b32 v{T+14}, 4, v{T+14}")
    k(f"s_lshl_b32 s93, s{S_RB1}, 6\ns_add_u32 s93, s93, s{S_HP}\nv_add_u32 v{T+15}, s93, v{T+14}")
    k(f"s_lshl_b32 s93, s{S_HP}, 6\ns_add_u32 s93, s93, s{S_RB1}\ns_add_u32 s93, s93, 1024\nv_add_u32 v{T+14}, s93, v{T+14}")
    k(f"v_cmp_gt_u32 vcc, 4, v{LANE}\ns_mul_i32 s93, s2, 24\ns_add_u32 s93, s93, 2040")
    k(f"v_cndmask_b32 v{T+14}, v{T+14}, v{T+15}, vcc\nv_add_u32 v{T+15}, s93, v{LANE}")
    k(f"v_cmp_gt_u32 vcc, 8, v{LANE}\ns_nop 1\nv_cndmask_b32 v{T+14}, v{T+15}, v{T+14}, vcc")
    k(f"v_cmp_gt_u32 vcc, 32, v{LANE}\nv_mov_b32 v{T+15}, 0x100000\ns_nop 0\nv_cndmask_b32 v{T+14}, v{T+15}, v{T+14}, vcc")
    k(f"v_lshlrev_b32 v{T+14}, {FS}, v{T+14}")
    k(f"buffer_store_dword v{T+8}, v{T+14}, {sr(SRD_F,4)}, 0 offen sc1")
    k("s_mov_b32 s93, 0x7ff00000")
    for i in range(2): k(f"buffer_load_dword a233, v{V_W}, {sr(SRD_D,4)}, s93 offen")
    k("s_lshl_b32 s93, s2, 10")
    k(f"buffer_store_dwordx4 {vr(T+8,4)}, v{L16}, {sr(SRD_C,4)}, s93 offen sc1")
    k(f"s_add_u32 s93, s93, {MP_B}")
    k(f"buffer_store_dwordx4 {vr(T+8,4)}, v{L16}, {sr(SRD_B,4)}, s93 offen sc1")
    k(f"{jn}:")
    k(f"v_lshlrev_b32 v{T+5}, 11, v{T+1}\nv_lshl_add_u32 v{T+5}, v{T+2}, 4, v{T+5}")
    k(f"s_lshl_b32 s91, s{S_RB1}, 18\ns_lshl_b32 s92, s{S_WAVE}, 16\ns_add_u32 s91, s91, s92\ns_lshl_b32 s92, s{S_HP}, 7\ns_add_u32 s91, s91, s92")
    for i in range(4):
        k(f"buffer_load_dwordx4 {vr(XT_+4*i,4)}, v{T+5}, {sr(SRD_A,4)}, s91 offen")
        if i < 3: k("s_add_u32 s91, s91, 16384")
    k(f"s_lshl_b32 s94, s{S_WAVE}, 11\ns_add_u32 s{S_MB}, s86, s94\ns_add_u32 s{S_MB}, s{S_MB}, 4096")
    k(f"s_lshl_b32 s94, s{S_WAVE}, 16\ns_lshl_b32 s95, s{S_HP}, 12\ns_add_u32 s94, s94, s95\ns_lshl_b32 s95, s{S_RB1}, 8\ns_add_u32 s94, s94, s95\ns_add_u32 s{S_MO}, s94, {MP_B}")
    young = 9
    k.stamp("all issued")
    k(f"s_waitcnt vmcnt({young + 8})")
    k.stamp("c ready")
    silu_block(k, [CA, CA + 2])
    k(f"s_waitcnt vmcnt({young + 4})")
    k.stamp("w ready")
    for i in range(2):
        for v in range(2):
            for d in range(4):
                w_ = WA + (i * 2 + v) * 4 + d
                k(f"v_lshlrev_b32 v{T+14}, 16, v{w_}\nv_and_b32 v{T+15}, 0xffff0000, v{w_}")
                if i == 0: k(f"v_pk_mul_f32 {vr(A0+v*8+2*d,2)}, {vr(T+14,2)}, {vr(CA,2)} op_sel_hi:[1,0]")
                else: k(f"v_pk_fma_f32 {vr(A0+v*8+2*d,2)}, {vr(T+14,2)}, {vr(CA+2,2)}, {vr(A0+v*8+2*d,2)} op_sel_hi:[1,0,1]")
    k("s_nop 1")
    for j in range(8): k(f"v_permlane32_swap_b32 v{A0+j}, v{A0+8+j}")
    k("s_nop 1")
    for j in range(8): k(f"v_add_f32 v{A0+j}, v{A0+j}, v{A0+8+j}")
    k("s_nop 1")
    for j in range(4): k(f"v_permlane16_swap_b32 v{A0+j}, v{A0+4+j}")
    k("s_nop 1")
    for j in range(4): k(f"v_add_f32 v{A0+j}, v{A0+j}, v{A0+4+j}")
    k("s_nop 1")
    for j in range(4): k(f"v_add_f32_dpp v{A0+j}, v{A0+j}, v{A0+j} row_ror:8 row_mask:0xf bank_mask:0xf")
    k(f"v_lshrrev_b32 v{T+13}, 5, v{LANE}\nv_lshlrev_b32 v{T+14}, 8, v{T+13}\nv_lshl_add_u32 v{T+14}, v{T+2}, 5, v{T+14}")
    k(f"v_bfe_u32 v{T+15}, v{LANE}, 4, 1\nv_lshl_add_u32 v{T+14}, v{T+15}, 4, v{T+14}\ns_lshl_b32 s94, s{S_WAVE}, 9\nv_add_u32 v{T+14}, s94, v{T+14}")
    k(f"ds_write_b128 v{T+14}, {vr(A0,4)} offset:{HL}")
    k(f"s_waitcnt vmcnt({young})")
    for d in range(16): k(f"v_lshlrev_b32 v{XF+2*d}, 16, v{XR+d}\nv_and_b32 v{XF+2*d+1}, 0xffff0000, v{XR+d}")
    k(f"v_pk_add_f32 {vr(SU,2)}, {vr(XF,2)}, {vr(XF+2,2)}")
    for d in range(2, 16): k(f"v_pk_add_f32 {vr(SU,2)}, {vr(SU,2)}, {vr(XF+2*d,2)}")
    k(f"v_add_f32 v{SU}, v{SU}, v{SU+1}")
    red32(k, SU, SU + 1)
    k(f"v_mul_f32 v{SU+2}, {-1.0/1024!r}, v{SU}")
    k(f"v_mov_b32 v{SU}, 0\nv_mov_b32 v{SU+1}, 0")
    for d in range(16):
        k(f"v_pk_add_f32 {vr(XF+2*d,2)}, {vr(XF+2*d,2)}, {vr(SU+2,2)} op_sel_hi:[1,0]")
        k(f"v_pk_fma_f32 {vr(SU,2)}, {vr(XF+2*d,2)}, {vr(XF+2*d,2)}, {vr(SU,2)}")
    k(f"v_add_f32 v{SU}, v{SU}, v{SU+1}")
    red32(k, SU, SU + 1)
    k(f"v_mov_b32 v{SU+1}, 0x3727c5ac\nv_fmac_f32 v{SU+1}, {1.0/1024!r}, v{SU}\nv_rsq_f32 v{SU+3}, v{SU+1}")
    k(f"s_lshl_b32 s94, s{S_WAVE}, 4\nv_lshlrev_b32 v{T+13}, 3, v{T+13}\nv_add_u32 v{T+13}, s94, v{T+13}")
    k(f"ds_write_b64 v{T+13}, {vr(SU+2,2)} offset:{HL+2048}")
    n3 = k.label("not3")
    k(f"s_cmp_lg_u32 s{S_WAVE}, 3\ns_cbranch_scc1 {n3}")
    k(f"v_and_b32 v{T+14}, 3, v{LANE}\nv_lshlrev_b32 v{T+14}, 2, v{T+14}")
    spin(k, [f"buffer_load_dword v{T+13}, v{T+14}, {sr(SRD_T,4)}, 0 offen sc1"], [T + 13], 0)
    k(f"{n3}:")
    k("s_waitcnt lgkmcnt(0)\ns_barrier")
    k.stamp("partials")
    nw0 = k.label("notw0")
    k(f"v_lshlrev_b32 v{T+6}, 3, v{LANE}")
    k(f"s_cmp_lg_u32 s{S_WAVE}, 0\ns_cbranch_scc1 {nw0}")
    for w in range(4): k(f"ds_read_b64 {vr(A0+2*w,2)}, v{T+6} offset:{HL+w*512}")
    k(f"v_and_b32 v{T+9}, 0x38, v{T+6}")
    k(f"ds_read_b64 {vr(A0+8,2)}, v{T+9} offset:{HL+2048}")
    k(f"s_lshl_b32 s94, s{S_HP}, 13\ns_lshl_b32 s95, s{S_RB1}, 9\ns_add_u32 s95, s95, s94")
    k(f"s_lshl_b32 s90, s89, 6\ns_add_u32 s90, s90, {MP_RS}")
    k("s_waitcnt lgkmcnt(0)")
    k(f"v_pk_add_f32 {vr(A0,2)}, {vr(A0,2)}, {vr(A0+2,2)}\nv_pk_add_f32 {vr(A0+4,2)}, {vr(A0+4,2)}, {vr(A0+6,2)}\nv_pk_add_f32 {vr(A0,2)}, {vr(A0,2)}, {vr(A0+4,2)}")
    k(f"buffer_store_dwordx2 {vr(A0,2)}, v{T+6}, {sr(SRD_B,4)}, s95 offen sc1")
    k(f"buffer_store_dwordx2 {vr(A0+8,2)}, v{T+9}, {sr(SRD_B,4)}, s90 offen sc1")
    k(f"s_lshl_b32 s90, s89, {FS}\ns_add_u32 s90, s90, {F_S0}")
    k("s_waitcnt vmcnt(0)")
    k(f"buffer_store_dword v{T+12}, v{T+8}, {sr(SRD_F,4)}, s90 offen sc1")
    if opt.get("modb_front", 0):
        sk_ = k.label("skmf")
        k(f"s_branch {sk_}")
        k(f"{nw0}:")
        k("s_waitcnt vmcnt(0)")
        for g in modb_loads(S_MB, V_W, V_C):
            for x in g: k(x)
        k(f"s_mov_b32 s{S_MB}, 0x7ff00000")
        k(f"{sk_}:")
    else:
        k(f"{nw0}:")
    k.stamp("s0 published")
    split = opt.get("split", 1)
    g1 = (setup_gemm1s if split else setup_gemm1)(k, opt)
    srd(k, SRD_W, P_WQKV, D * 3 * D * 2)
    if not opt.get("modb_front", 0):
        k("s_waitcnt vmcnt(1)")
        k(f"s_cmp_eq_u32 s{S_WAVE}, 0\ns_cbranch_scc1 1\ns_waitcnt vmcnt(0)")
    for d in range(16): k(f"v_lshlrev_b32 v{XF+2*d}, 16, v{XT_+d}\nv_and_b32 v{XF+2*d+1}, 0xffff0000, v{XT_+d}")
    VS = T + 4
    k(f"v_lshrrev_b32 v{VS}, 2, v{T+2}\nv_lshlrev_b32 v{VS}, 10, v{VS}")
    k(f"v_and_b32 v{T+3}, 3, v{T+2}\nv_lshl_add_u32 v{VS}, v{T+3}, 8, v{VS}\nv_lshl_add_u32 v{VS}, v{T+1}, 4, v{VS}")
    k(f"s_lshl_b32 s86, s{S_RB1}, 3\ns_lshl_b32 s87, s{S_WAVE}, 1\ns_add_u32 s86, s86, s87\ns_lshl_b32 s86, s86, 15\ns_lshl_b32 s87, s{S_HP}, 11\ns_add_u32 s86, s86, s87\ns_add_u32 s87, s86, 0x8000")
    k(f"s_lshl_b32 s88, s{S_RB1}, 2\ns_add_u32 s88, s88, s{S_WAVE}\ns_lshl_b32 s88, s88, {FS+4}\ns_add_u32 s88, s88, {F_H}\ns_lshl_b32 s89, s{S_HP}, {FS}\ns_add_u32 s89, s89, s88")
    k(f"v_lshlrev_b32 v{T+5}, 5, v{T+2}")
    k(f"s_lshl_b32 s92, s{S_WAVE}, 8\nv_lshlrev_b32 v{T+7}, 3, v{T+1}\nv_add_u32 v{T+7}, s92, v{T+7}")
    nw1 = k.label("notw0b")
    k(f"s_cmp_lg_u32 s{S_WAVE}, 0\ns_cbranch_scc1 {nw1}")
    k(f"v_and_b32 v{T+9}, 15, v{LANE}\ns_lshl_b32 s92, s{S_RB1}, 4\nv_add_u32 v{T+10}, s92, v{T+9}\nv_lshlrev_b32 v{T+9}, 4, v{T+9}\nv_add_u32 v{T+9}, s{S_HP}, v{T+9}")
    k(f"v_and_b32 v{T+11}, 16, v{LANE}\nv_cmp_eq_u32 vcc, 0, v{T+11}\ns_mov_b32 s92, {F_S0}\ns_nop 0")
    k(f"v_cndmask_b32 v{T+9}, v{T+9}, v{T+10}, vcc\nv_lshlrev_b32 v{T+9}, {FS}, v{T+9}")
    spin(k, [f"buffer_load_dword v{T+13}, v{T+9}, {sr(SRD_F,4)}, s92 offen sc1"], [T + 13], 0)
    k(f"s_lshl_b32 s94, s{S_HP}, 13\ns_add_u32 s95, s94, 4096")
    for p_ in range(16): k(f"buffer_load_dwordx2 {vr(G+2*p_,2)}, v{T+6}, {sr(SRD_B,4)}, s{94+p_//8} offen offset:{(p_%8)*512} sc1")
    k(f"s_lshl_b32 s90, s{S_RB1}, 10\ns_add_u32 s90, s90, {MP_RS}")
    k(f"buffer_load_dwordx4 {vr(A0+8,4)}, v{L16}, {sr(SRD_B,4)}, s90 offen sc1")
    k(f"v_cmp_lt_u32 vcc, 31, v{LANE}")
    k("s_waitcnt vmcnt(1)")
    for st in (8, 4, 2, 1):
        for j in range(st): k(f"v_pk_add_f32 {vr(G+2*j,2)}, {vr(G+2*j,2)}, {vr(G+2*(j+st),2)}")
    k(f"v_cvt_pk_bf16_f32 v{G+2}, v{G}, v{G+1}\nv_lshlrev_b32 v{G}, 16, v{G+2}\nv_and_b32 v{G+1}, 0xffff0000, v{G+2}")
    k(f"v_pk_add_f32 {vr(G+4,2)}, {vr(G,2)}, 1.0 op_sel_hi:[1,0]")
    k(f"v_cvt_pk_bf16_f32 v{G+2}, v{G+4}, v{G+5}\nv_lshlrev_b32 v{G+4}, 16, v{G+2}\nv_and_b32 v{G+5}, 0xffff0000, v{G+2}")
    k(f"v_cndmask_b32 v{G}, v{G}, v{G+4}, vcc\nv_cndmask_b32 v{G+1}, v{G+1}, v{G+5}, vcc")
    k(f"ds_write_b64 v{T+6}, {vr(G,2)} offset:{HL+4096}")
    k("s_waitcnt vmcnt(0)")
    k(f"ds_write_b128 v{L16}, {vr(A0+8,4)} offset:{HL+5120}")
    k("s_waitcnt lgkmcnt(0)")
    k(f"{nw1}:")
    g1.prefetch(k, opt.get("h_pre0", 0))
    srd(k, SRD_T, P_WS, S * D * 2, WS_H)
    k("s_barrier")
    k.stamp("s0 ready")
    for h in range(2): k(f"ds_read_b128 {vr(M+4*h,4)}, v{T+5} offset:{HL+4096+h*16}\nds_read_b128 {vr(M+8+4*h,4)}, v{T+5} offset:{HL+4096+256+h*16}")
    for i in range(4): k(f"ds_read_b64 {vr(RS+2*i,2)}, v{T+7} offset:{HL+5120+i*64}")
    k("s_waitcnt lgkmcnt(0)")
    for i in range(4):
        for j in range(4): k(f"v_pk_add_f32 {vr(XF+8*i+2*j,2)}, {vr(XF+8*i+2*j,2)}, {vr(RS+2*i,2)} op_sel_hi:[1,0]")
        for j in range(4): k(f"v_pk_mul_f32 {vr(XF+8*i+2*j,2)}, {vr(XF+8*i+2*j,2)}, {vr(RS+2*i,2)} op_sel:[0,1] op_sel_hi:[1,1]")
        for j in range(4): k(f"v_pk_fma_f32 {vr(XF+8*i+2*j,2)}, {vr(XF+8*i+2*j,2)}, {vr(M+8+2*j,2)}, {vr(M+2*j,2)}")
        for j in range(4): k(f"v_cvt_pk_bf16_f32 v{XR+4*i+j}, v{XF+8*i+2*j}, v{XF+8*i+2*j+1}")
        k(f"buffer_store_dwordx4 {vr(XR+4*i,4)}, v{VS}, {sr(SRD_T,4)}, s{86 + i//2} offen offset:{(i%2)*128} sc1")
    k.stamp("h computed")
    mk = len(k.L)
    g1.prefetch(k, opt.get("h_pre1a", 4 if split else 6))
    publish(k, 89, T, mk)
    k.stamp("h published")
    g1.prefetch(k, opt.get("h_pre1", 8 if split else 6))
    if not split:
        k.g3 = setup_gemm3_early(k, opt, LANE, 56)
        for i in range(8): k(f"global_load_ushort {ar(A_UT+32+i,1)}, v{V_C}, s[{P_C}:{P_C+1}] offset:{i*16}")
    k(f"v_and_b32 v252, 15, v{LANE}\nv_lshlrev_b32 v252, {FS}, v252\ns_mov_b32 s93, s88")
    staged_wait(k, g1, opt.get("g1_T", 4), 252, 93, 253, one_prod)
    k.stamp("h ready")
    return g1

def phase_front(k, opt, name):
    LANE, L16 = 104, 105
    T = 48
    V_W, V_C = 115, 109
    RS, XR, XT_, XF, G, M = 64, 128, 144, 0, 160, 32
    HL = 2 * 25344
    k(f"v_and_b32 v{LANE}, 63, v0")
    k(f"v_lshrrev_b32 v{T+1}, 3, v{LANE}\nv_and_b32 v{T+2}, 7, v{LANE}")
    k(f"v_lshlrev_b32 v{T+5}, 11, v{T+1}\nv_lshl_add_u32 v{T+5}, v{T+2}, 4, v{T+5}")
    k(f"s_lshl_b32 s91, s{S_RB1}, 18\ns_lshl_b32 s92, s{S_WAVE}, 16\ns_add_u32 s91, s91, s92\ns_lshl_b32 s92, s{S_HP}, 7\ns_add_u32 s91, s91, s92")
    k(f"v_lshlrev_b32 v{T+8}, 3, v{LANE}\nv_lshlrev_b32 v{T+6}, 3, v{T+1}")
    k(f"s_lshl_b32 s94, s{S_HP}, 13\ns_add_u32 s95, s94, 4096")
    k(f"s_lshl_b32 s90, s{S_RB1}, 10\ns_lshl_b32 s93, s{S_WAVE}, 8\ns_add_u32 s90, s90, s93\ns_add_u32 s90, s90, {MP_RS}")
    k("s_waitcnt lgkmcnt(0)")
    srd(k, SRD_B, P_WS, MP_BYTES, WS_MODP)
    srd(k, SRD_A, P_X, S * D * 2)
    for p_ in range(16): k(f"buffer_load_dwordx2 {vr(G+2*p_,2)}, v{T+8}, {sr(SRD_B,4)}, s{94+p_//8} offen offset:{(p_%8)*512}")
    for i in range(4): k(f"buffer_load_dwordx2 {vr(RS+2*i,2)}, v{T+6}, {sr(SRD_B,4)}, s90 offen offset:{i*64}")
    for i in range(4):
        k(f"buffer_load_dwordx4 {vr(XT_+4*i,4)}, v{T+5}, {sr(SRD_A,4)}, s91 offen")
        if i < 3: k("s_add_u32 s91, s91, 16384")
    k.stamp("loads issued")
    def touch(ptr, per, vt, off=0):
        k(f"s_lshl_b32 s80, s2, 2\ns_add_u32 s80, s80, s{S_WAVE}\ns_mul_i32 s80, s80, {per*128}")
        if off: k(f"s_add_u32 s80, s80, {off}")
        k(f"v_min_u32 v{vt}, {per-1}, v{LANE}\nv_lshlrev_b32 v{vt}, 7, v{vt}\nv_add_u32 v{vt}, s80, v{vt}")
        k(f"global_load_dword a232, v{vt}, s[{ptr}:{ptr+1}]")
    nt0 = 0
    if opt.get("m_touch", 0) == 1: touch(P_WQKV, 48, 254); nt0 = 1
    g1 = setup_gemm1(k, opt)
    srd(k, SRD_W, P_WQKV, D * 3 * D * 2)
    n0 = opt.get("h_pre0", 6)
    g1.prefetch(k, n0)
    n0 += nt0
    srd(k, SRD_F, P_WS, FLAG_BYTES, WS_FLAG)
    srd(k, SRD_T, P_WS, S * D * 2, WS_H)
    VS = T + 4
    k(f"v_lshrrev_b32 v{VS}, 2, v{T+2}\nv_lshlrev_b32 v{VS}, 10, v{VS}")
    k(f"v_and_b32 v{T+3}, 3, v{T+2}\nv_lshl_add_u32 v{VS}, v{T+3}, 8, v{VS}\nv_lshl_add_u32 v{VS}, v{T+1}, 4, v{VS}")
    k(f"s_lshl_b32 s86, s{S_RB1}, 3\ns_lshl_b32 s87, s{S_WAVE}, 1\ns_add_u32 s86, s86, s87\ns_lshl_b32 s86, s86, 15\ns_lshl_b32 s87, s{S_HP}, 11\ns_add_u32 s86, s86, s87\ns_add_u32 s87, s86, 0x8000")
    k(f"s_lshl_b32 s88, s{S_WAVE}, 9\nv_add_u32 v{T+8}, s88, v{T+8}\nv_lshlrev_b32 v{T+5}, 5, v{T+2}\nv_add_u32 v{T+5}, s88, v{T+5}")
    k(f"s_lshl_b32 s88, s{S_RB1}, 2\ns_add_u32 s88, s88, s{S_WAVE}\ns_lshl_b32 s88, s88, {FS+4}\ns_add_u32 s88, s88, {F_H}\ns_lshl_b32 s89, s{S_HP}, {FS}\ns_add_u32 s89, s89, s88")
    k(f"v_cmp_lt_u32 vcc, 31, v{LANE}")
    k(f"s_waitcnt vmcnt({8 + n0})")
    for st in (8, 4, 2, 1):
        for j in range(st): k(f"v_pk_add_f32 {vr(G+2*j,2)}, {vr(G+2*j,2)}, {vr(G+2*(j+st),2)}")
    k(f"v_cvt_pk_bf16_f32 v{G+2}, v{G}, v{G+1}\nv_lshlrev_b32 v{G}, 16, v{G+2}\nv_and_b32 v{G+1}, 0xffff0000, v{G+2}")
    k(f"v_pk_add_f32 {vr(G+4,2)}, {vr(G,2)}, 1.0 op_sel_hi:[1,0]")
    k(f"v_cvt_pk_bf16_f32 v{G+2}, v{G+4}, v{G+5}\nv_lshlrev_b32 v{G+4}, 16, v{G+2}\nv_and_b32 v{G+5}, 0xffff0000, v{G+2}")
    k(f"v_cndmask_b32 v{G}, v{G}, v{G+4}, vcc\nv_cndmask_b32 v{G+1}, v{G+1}, v{G+5}, vcc")
    k(f"ds_write_b64 v{T+8}, {vr(G,2)} offset:{HL}")
    k("s_waitcnt lgkmcnt(0)")
    for h in range(2): k(f"ds_read_b128 {vr(M+4*h,4)}, v{T+5} offset:{HL+h*16}\nds_read_b128 {vr(M+8+4*h,4)}, v{T+5} offset:{HL+256+h*16}")
    for i in range(4):
        k(f"s_waitcnt vmcnt({3 - i + n0})")
        for d in range(4): k(f"v_lshlrev_b32 v{XF+8*i+2*d}, 16, v{XT_+4*i+d}\nv_and_b32 v{XF+8*i+2*d+1}, 0xffff0000, v{XT_+4*i+d}")
        for j in range(4): k(f"v_pk_add_f32 {vr(XF+8*i+2*j,2)}, {vr(XF+8*i+2*j,2)}, {vr(RS+2*i,2)} op_sel_hi:[1,0]")
        for j in range(4): k(f"v_pk_mul_f32 {vr(XF+8*i+2*j,2)}, {vr(XF+8*i+2*j,2)}, {vr(RS+2*i,2)} op_sel:[0,1] op_sel_hi:[1,1]")
    k("s_waitcnt lgkmcnt(0)")
    for i in range(4):
        for j in range(4): k(f"v_pk_fma_f32 {vr(XF+8*i+2*j,2)}, {vr(XF+8*i+2*j,2)}, {vr(M+8+2*j,2)}, {vr(M+2*j,2)}")
        for j in range(4): k(f"v_cvt_pk_bf16_f32 v{XR+4*i+j}, v{XF+8*i+2*j}, v{XF+8*i+2*j+1}")
        k(f"buffer_store_dwordx4 {vr(XR+4*i,4)}, v{VS}, {sr(SRD_T,4)}, s{86 + i//2} offen offset:{(i%2)*128} sc1")
    k.stamp("h computed")
    code_prefetch_setup(k, name)
    srd(k, SRD_D, P_WMOD, D * 6 * D * 2)
    k(f"v_mul_u32_u24 v{V_W}, 12288, v{T+1}\nv_lshl_add_u32 v{V_W}, v{T+2}, 4, v{V_W}")
    k(f"s_lshl_b32 s84, s{S_RB1}, 6\nv_add_u32 v{V_C}, s84, v{T+1}\nv_lshlrev_b32 v{V_C}, 1, v{V_C}")
    k(f"s_mul_i32 s86, s84, 12288\ns_lshl_b32 s87, s{S_HP}, 7\ns_add_u32 s86, s86, s87")
    k(f"s_lshl_b32 s94, s{S_WAVE}, 11\ns_add_u32 s{S_MB}, s86, s94\ns_add_u32 s{S_MB}, s{S_MB}, 4096")
    k(f"s_lshl_b32 s94, s{S_WAVE}, 16\ns_lshl_b32 s95, s{S_HP}, 12\ns_add_u32 s94, s94, s95\ns_lshl_b32 s95, s{S_RB1}, 8\ns_add_u32 s94, s94, s95\ns_add_u32 s{S_MO}, s94, {MP_B}")
    k.g3 = setup_gemm3_early(k, opt, LANE, 56)
    publish(k, 89, T)
    k.stamp("h published")
    if opt.get("m_touch", 0) == 2: touch(P_WQKV, 48, 254)
    k("s_barrier")
    g1.prefetch(k, opt.get("h_pre1", 12))
    for i in range(8): k(f"global_load_ushort {ar(A_UT+32+i,1)}, v{V_C}, s[{P_C}:{P_C+1}] offset:{i*16}")
    k(f"v_and_b32 v252, 15, v{LANE}\nv_lshlrev_b32 v252, {FS}, v252\ns_mov_b32 s93, s88")
    staged_wait(k, g1, opt.get("g1_T", 4), 252, 93, 253, one_prod)
    k.stamp("h ready")
    return g1

def setup_gemm24(k, which, opt, base):
    c = Sched(); common_gemm(c)
    K = 1024 if which == 2 else 3584
    NS, R = opt.get("g2_NS", 4), opt.get(f"g{which}_R", 4)
    STAGE = 8448
    if isinstance(base, tuple): V_RD, V_DMA, V_TOK, LANE, L16, VT = base
    else:
        V_RD, V_DMA, V_TOK, LANE, L16, VT = base, base + 1, base + 2, base + 4, base + 5, base + 6
        lane_id(k, LANE)
        k(f"v_lshlrev_b32 v{L16}, 4, v{LANE}")
    c.LANE, c.L16 = LANE, L16
    hs = c.hs = opt.get("hsplit", 1) and opt.get("split", 1)
    order(c, k, opt, "g2", ["win", [8, 8], 0] if hs else ["win", [1, 1, 2, 4, 8], 1])
    if hs:
        c.w_off = lambda sd, kt: [T(x) for x in c.pos_txt(sd, kt)] + [T(f"s_mul_i32 s{sd}, s{sd}, {128*2048}")] + ([T(f"s_add_u32 s{sd}, s{sd}, {(32 - 8*128)*2048}")] if kt >= 8 else [])
        c.t_off = lambda sd, kt: [T(x) for x in c.pos_txt(sd, kt)] + [T(f"s_lshl_b32 s{sd}, s{sd}, 12")] + ([T(f"s_add_u32 s{sd}, s{sd}, {1024 - 8*4096}")] if kt >= 8 else [])
        c.sub_stride = 2048
    k(f"s_lshr_b32 s80, s{S_WAVE}, 1\ns_and_b32 s81, s{S_WAVE}, 1")
    k(f"s_lshl_b32 s82, s80, {6 if hs else 5}\ns_lshl_b32 s83, s81, 1\ns_add_u32 s82, s82, s83\ns_lshl_b32 s82, s82, 11")
    k(f"s_lshl_b32 s83, s{S_NT}, 7\ns_add_u32 s82, s82, s83")
    k(f"v_lshrrev_b32 v{VT}, 3, v{LANE}\nv_lshlrev_b32 v{VT}, 13, v{VT}")
    k(f"v_and_b32 v{VT+1}, 7, v{LANE}\nv_lshl_add_u32 v{VT}, v{VT+1}, 4, v{VT}")
    k(f"v_add_u32 v{V_DMA}, s82, v{VT}")
    k(f"v_bfe_u32 v{VT}, v{LANE}, 2, 2\nv_mul_u32_u24 v{VT}, 1056, v{VT}")
    k(f"v_lshrrev_b32 v{VT+1}, 4, v{LANE}\nv_lshl_add_u32 v{VT}, v{VT+1}, 7, v{VT}")
    k(f"v_and_b32 v{VT+1}, 3, v{LANE}\nv_lshl_add_u32 v{V_RD}, v{VT+1}, 3, v{VT}")
    k(f"v_add_u32 v{V_RD}, {L_R2}, v{V_RD}")
    c.V_RDX = V_RD
    k(f"s_lshl_b32 s82, s{S_RB2}, 3\ns_lshl_b32 s83, s{S_WAVE}, 1\ns_add_u32 s82, s82, s83\ns_mul_i32 s82, s82, {K//32*1024}")
    k(f"v_add_u32 v{V_TOK}, s82, v{L16}\nv_add_u32 v{V_TOK+1}, {K//32*1024}, v{V_TOK}")
    k(f"s_mul_i32 s{S_WB}, s80, 4224\ns_mul_i32 s82, s81, 2112\ns_add_u32 s{S_WB}, s{S_WB}, s82\ns_add_u32 s{S_WB}, s{S_WB}, {L_R2}")
    srd(k, SRD_W, P_WO if which == 2 else P_W2, K * D * 2)
    c.NB, c.TB, c.KS, c.SPK, c.KT, c.NS, c.R = 4, 2, 2, 1, K // 64, NS, R
    c.acc = lambda b, t: vr((b * 2 + t) * 4, 4)
    c.tf = lambda slot, ks, t: 64 + ((slot * 2 + ks) * 2 + t) * 4
    def sl_(sl): return (V_RD, 0, sl) if sl < 4 else ((42, 67584 - L_R2, sl - 4) if sl < 9 else (43, 1024 - L_R2, sl - 9))
    c.rd = lambda sl, b, sub, r: (sl_(sl)[0], sl_(sl)[2] * STAGE + sub * 4224 + r * 512 + b * 32)
    c.slot_addr = lambda sl: sl_(sl)[1] + sl_(sl)[2] * STAGE
    c.dma = [(V_DMA, 0, 0), (V_DMA, 1056, 2048)]
    c.v_tok = [V_TOK, V_TOK + 1]
    c.w_stride = 64 * 2048
    c.drop = opt.get(f"g{which}_drop", ())
    c.pro_units, c.ramp_rate, c.read_margin = opt.get(f"g{which}_pro", 12), opt.get(f"g{which}_ramp", 6), 4
    std_sched(c)
    return c

S_G80, S_G192 = 6, 7
def setup_gemm4p(k, opt, base):
    c = Sched(); common_gemm(c)
    HS = 8448; STAGE = 2 * HS
    L = 12; KT = 28; MAIN = KT - L
    V_RD, V_DE, V_DK, V_TOK, LANE, L16, VT = base, base + 2, base + 3, base + 4, base + 6, base + 7, base + 8
    c.LANE, c.L16, c.V_DE, c.V_DK, c.V_TOK = LANE, L16, V_DE, V_DK, V_TOK
    lane_id(k, LANE)
    k(f"v_lshlrev_b32 v{L16}, 4, v{LANE}")
    c.KT = KT
    order(c, k, opt, "g4", ["win", [4, 4, 8, 8, 4], 0])
    k(f"s_lshr_b32 s80, s{S_WAVE}, 1\ns_and_b32 s81, s{S_WAVE}, 1")
    k(f"s_mul_i32 s{S_G80}, s80, {80*2048}\ns_mul_i32 s{S_G192}, s80, {192*2048}")
    k("s_lshl_b32 s82, s80, 5\ns_lshl_b32 s83, s81, 1\ns_add_u32 s82, s82, s83")
    k(f"s_and_b32 s{S_TMP}, s{S_NT}, 1\ns_mul_i32 s83, s{S_TMP}, 1792\ns_add_u32 s82, s82, s83\ns_lshl_b32 s82, s82, 11")
    k(f"v_lshrrev_b32 v{VT}, 3, v{LANE}\nv_lshlrev_b32 v{VT}, 13, v{VT}")
    k(f"v_and_b32 v{VT+1}, 7, v{LANE}\nv_lshl_add_u32 v{VT}, v{VT+1}, 4, v{VT}")
    k(f"v_add_u32 v{VT}, s82, v{VT}")
    k(f"s_lshl_b32 s83, s{S_NT}, 7\nv_add_u32 v{V_DK}, s83, v{VT}\nv_xor_b32 v{V_DE}, 128, v{V_DK}")
    k(f"v_bfe_u32 v{VT}, v{LANE}, 2, 2\nv_mul_u32_u24 v{VT}, 1056, v{VT}")
    k(f"v_lshrrev_b32 v{VT+1}, 4, v{LANE}\nv_lshl_add_u32 v{VT}, v{VT+1}, 7, v{VT}")
    k(f"v_and_b32 v{VT+1}, 3, v{LANE}\nv_lshl_add_u32 v{V_RD+1}, v{VT+1}, 3, v{VT}")
    k(f"v_add_u32 v{V_RD}, {L_R2}, v{V_RD+1}")
    k(f"s_lshl_b32 s82, s{S_RB2}, 3\ns_lshl_b32 s83, s{S_WAVE}, 1\ns_add_u32 s82, s82, s83\ns_mul_i32 s82, s82, {112*1024}")
    k(f"s_mul_i32 s83, s{S_TMP}, {56*1024}\ns_add_u32 s82, s82, s83")
    k(f"v_add_u32 v{V_TOK}, s82, v{L16}\nv_add_u32 v{V_TOK+1}, {112*1024}, v{V_TOK}")
    k(f"s_mul_i32 s{S_WB}, s80, 4224\ns_mul_i32 s82, s81, 2112\ns_add_u32 s{S_WB}, s{S_WB}, s82")
    srd(k, SRD_W, P_W2, F * D * 2)
    c.drop = opt.get("g4_drop", ())
    V2E, V2K, V2T = 64, 65, 66
    c.V2 = (V2E, V2K, V2T)
    NS4 = opt.get("g4_NS", 8)
    slot_addr = [L_R2, L_R2 + STAGE] + [1024 + i * STAGE for i in range(6)]
    c.V_RD3 = 68; c.V_RD = V_RD
    def rd(sl, half, b, sub, r):
        off = half * HS + sub * 4224 + r * 512 + b * 32
        if sl < 2: return (V_RD, sl * STAGE + off)
        if sl < 5: return (V_RD + 1, slot_addr[sl] + off)
        return (c.V_RD3, slot_addr[sl] - slot_addr[5] + off)
    c.rd3_base = slot_addr[5]
    NT_ = 2 * L
    tf = lambda kt, sub, t: 64 + (((kt * 2 + sub) % NT_) * 2 + t) * 4
    acc = lambda b, t: vr((b * 2 + t) * 4, 4)
    c.wf = lambda buf, j: (buf * 8 + j) * 4
    typ = lambda kt: "A" if kt < 16 else ("B1" if kt < 24 else "B2")
    if opt.get("g4_fast", 1):
        base_pos = c.pos_txt
        def pos2(sd, kt):
            o = base_pos(sd, kt)
            if kt >= 16: return o
            t_ = S_PTMP
            o += [f"s_and_b32 s{t_}, s{sd}, 1", f"s_and_b32 s{sd}, s{sd}, 6", f"s_lshl_b32 s{sd}, s{sd}, 1"]
            o += [f"s_mul_i32 s{t_}, s{t_}, 3"] if kt < 8 else [f"s_add_u32 s{t_}, s{t_}, 1"]
            o += [f"s_add_u32 s{sd}, s{sd}, s{t_}"]
            return o
        c.pos_txt = pos2
    def w_off(sd, kt):
        o = [T(x) for x in c.pos_txt(sd, kt)]
        if typ(kt) == "A": o.append(T(f"s_mul_i32 s{sd}, s{sd}, {112*2048}"))
        elif typ(kt) == "B1": o += [T(f"s_mul_i32 s{sd}, s{sd}, {224*2048}"), T(f"s_add_u32 s{sd}, s{sd}, {(64 - 16*224)*2048}"), T(f"s_add_u32 s{sd}, s{sd}, s{S_G80}")]
        else: o += [T(f"s_mul_i32 s{sd}, s{sd}, {448*2048}"), T(f"s_add_u32 s{sd}, s{sd}, {(96 - 24*448)*2048}"), T(f"s_add_u32 s{sd}, s{sd}, s{S_G192}")]
        return o
    halves = [[("E", kt), ("K", kt)] for kt in range(MAIN)]
    halves += [[("E", MAIN + 2 * j), ("E", MAIN + 2 * j + 1)] for j in range(L // 2)]
    halves += [[("K", MAIN + 2 * j), ("K", MAIN + 2 * j + 1)] for j in range(L // 2)]
    cur = None; flip = 0
    for st, hv in enumerate(halves):
        us = []
        for h, (kind, kt) in enumerate(hv):
            pre = []
            if cur != kt:
                flip ^= 1; cur = kt; pre = w_off(c.s_kw + flip, kt)
            vo = (V2E if kind == 'E' else V2K) if typ(kt) == "B2" else (V_DE if kind == 'E' else V_DK)
            for i, goff in enumerate((0, 2048)):
                us.append((pre if i == 0 else []) + [T(f"s_add_u32 m0, s{S_WB}, {slot_addr[st % NS4] + h * HS + i * 1056 - goff}"),
                          VM(f"buffer_load_dwordx4 v{vo}, {sr(SRD_W,4)}, s{c.s_kw + flip} offen" + (f" offset:{goff}" if goff else "") + " lds", ("dma", st))])
        c.stage_units[st] = us; c.stage_slot[st] = st % NS4
        for j in range(2):
            frags = []; toks = []
            parts = [(0, j), (1, j)] if st < MAIN else [(j, 0), (j, 1)]
            for h, sub in parts:
                kind, kt = hv[h]
                if (kt, sub) not in toks: toks.append((kt, sub))
                for b in range(4):
                    va, o0 = rd(st % NS4, h, b, sub, 0); _, o1 = rd(st % NS4, h, b, sub, 1)
                    frags.append((va, o0, o1, [(acc(b + (0 if kind == 'E' else 4), t), tf(kt, sub, t)) for t in range(2)]))
            c.steps.append(dict(frags=frags, stages=[st], toks=toks))
    for kt in range(KT):
        sd = c.s_kt + kt % 2
        for sub in range(2):
            us = []
            for t in range(2):
                g = []
                if sub == 0 and t == 0:
                    g = [T(x) for x in c.pos_txt(sd, kt)]
                    if typ(kt) == "A": g.append(T(f"s_mul_i32 s{sd}, s{sd}, 3584"))
                    elif typ(kt) == "B1": g += [T(f"s_mul_i32 s{sd}, s{sd}, 7168"), T(f"s_add_u32 s{sd}, s{sd}, {2048 - 16*7168}")]
                    else: g += [T(f"s_mul_i32 s{sd}, s{sd}, 14336"), T(f"s_add_u32 s{sd}, s{sd}, {3072 - 24*14336}")]
                key = ("tok", (kt, sub))
                if typ(kt) == "B2":
                    if sub == 1 and t == 0: g.append(T(f"s_add_u32 s{sd}, s{sd}, 7168"))
                    g.append(VM(f"buffer_load_dwordx2 {ar(tf(kt, sub, t),2)}, v{V2T+t}, {sr(SRD_T,4)}, s{sd} offen sc1", key))
                    g.append(VM(f"buffer_load_dwordx2 {ar(tf(kt, sub, t)+2,2)}, v{V2T+t}, {sr(SRD_T,4)}, s{sd} offen offset:3584 sc1", key))
                else:
                    g.append(VM(f"buffer_load_dwordx4 {ar(tf(kt, sub, t),4)}, v{V_TOK+t}, {sr(SRD_T,4)}, s{sd} offen offset:{sub*(1024 if typ(kt) == 'A' else 3584)} sc1", key))
                us.append(g)
            c.tok_units[(kt, sub)] = us; c.tok_slot[(kt, sub)] = (kt * 2 + sub) % NT_
    c.pro_units, c.ramp_rate, c.read_margin, c.lookahead = opt.get("g4_pro", 12), opt.get("g4_ramp", 5), 4, opt.get("g4_la", 12)
    c.MAIN, c.L = MAIN, L
    return c

def phase_gemm4p(k, c, opt):
    LANE, L16 = c.LANE, c.L16
    VT = 72
    srd(k, SRD_T, P_WS, S * F * 2, WS_HH)
    srd(k, SRD_A, P_OUT, S * D * 2)
    srd(k, SRD_B, P_WS, 8 << 20, WS_P4)
    V_G, V_GA, V_XA, V_X, IMP, VF = 96, 76, 77, 80, 128, 78
    for j in range(16): k(f"v_accvgpr_read_b32 v{V_X+j}, a{A_X1+j}")
    k(f"v_and_b32 v{VT}, 15, v{LANE}\nv_lshlrev_b32 v{VT}, {FS}, v{VT}")
    k(f"s_lshl_b32 s84, s{S_RB2}, 1\ns_lshr_b32 s85, s{S_WAVE}, 1\ns_add_u32 s84, s84, s85\ns_lshl_b32 s84, s84, {FS+5}\ns_add_u32 s84, s84, {F_HH}")
    k(f"s_and_b32 s85, s{S_NT}, 1\ns_lshl_b32 s85, s85, {FS+4}\ns_add_u32 s84, s84, s85")
    k(f"v_mov_b32 v252, v{VT}")
    c.tile_of = lambda key: key[0]
    k(f"s_add_u32 s85, s84, {F_HB - F_HH}")
    staged_wait(k, c, opt.get("g4_T", 8), 252, 84, 253, one_prod, pub=((93 if c.binl else 94), 70))
    add_gate(k, c, 16, f"buffer_load_dword v253, v252, {sr(SRD_F,4)}, s85 offen sc1", 253)
    k.stamp("hh ready")
    p = Txt()
    p(f"v_lshrrev_b32 v{VT}, 4, v{LANE}\nv_lshlrev_b32 v{V_GA}, 4, v{VT}\nv_add_u32 v{V_GA}, {L_MV}, v{V_GA}")
    p(f"v_and_b32 v{VT+1}, 15, v{LANE}\nv_lshlrev_b32 v{VT+1}, 11, v{VT+1}")
    p(f"v_and_b32 v{VT+2}, 1, v{VT}\nv_lshl_add_u32 v{VT+1}, v{VT+2}, 5, v{VT+1}")
    p(f"v_lshrrev_b32 v{VT+2}, 1, v{VT}\nv_lshl_add_u32 v{V_XA}, v{VT+2}, 4, v{VT+1}")
    p(f"s_lshl_b32 s86, s{S_RB2}, 3\ns_lshl_b32 s87, s{S_WAVE}, 1\ns_add_u32 s86, s86, s87\ns_lshl_b32 s86, s86, 15\ns_lshl_b32 s87, s{S_NT}, 7\ns_add_u32 s86, s86, s87\ns_add_u32 s87, s86, 32768")
    p(f"s_lshl_b32 s88, s{S_RB2}, 4\ns_add_u32 s88, s88, s{S_NT}\ns_lshl_b32 s88, s88, 2\ns_add_u32 s88, s88, s{S_WAVE}")
    p("s_xor_b32 s89, s88, 4")
    p(f"s_lshl_b32 s90, s88, 13\ns_add_u32 s91, s90, 4096\ns_lshl_b32 s92, s89, 13\ns_add_u32 s93, s92, 4096")
    p(f"s_lshl_b32 s88, s88, {FS}\ns_add_u32 s88, s88, {F_P4}\ns_lshl_b32 s89, s89, {FS}\ns_add_u32 s89, s89, {F_P4}")
    V2E, V2K, V2T = c.V2
    p(f"v_add_u32 v{c.V_RD3}, {c.rd3_base}, v{c.V_RD+1}")
    p(f"v_lshrrev_b32 v{VT}, 5, v{LANE}\nv_mul_u32_u24 v{VT}, {96*2048}, v{VT}\nv_add_u32 v{V2E}, v{c.V_DE}, v{VT}\nv_add_u32 v{V2K}, v{c.V_DK}, v{VT}")
    p(f"v_lshrrev_b32 v{VT}, 1, v{L16}\nv_sub_u32 v{V2T}, v{c.V_TOK}, v{VT}\nv_sub_u32 v{V2T+1}, v{c.V_TOK+1}, v{VT}")
    p(f"v_mov_b32 v{VT}, 1\nv_mov_b32 v{VT+1}, 0")
    c.pre_loop_txt = p.L
    N = len(c.steps); p2 = N - c.L
    if c.binl:
        nbs = opt.get("binl_steps", 10); per = -(-len(c.binl) // nbs)
        c.gate_min = {16: nbs + 2 + opt.get("binl_gap", 8)}
        items = [VM(x, ("hb", 0)) if is_vm(x) else T(x) for x in c.binl]
        c.step_extra = lambda st: items[st * per:(st + 1) * per]
        c.late.setdefault(nbs + 2, []).extend([WVM([("hb", 0)]), f"buffer_store_dword v{VT}, v{VT+1}, {sr(SRD_F,4)}, s94 offen sc1"])
    for st_ in opt.get("cp4", []): c.late.setdefault(st_, []).extend(code_prefetch_txt(k.name, L16, 254, 80, junk="v240"))
    ex = [VM(f"buffer_store_dwordx4 {vr(4*j,4)}, v{L16}, {sr(SRD_B,4)}, s{90 + j//4} offen offset:{(j%4)*1024} sc1", ("exp", 0)) for j in range(8)]
    ne_ = opt.get("g4_ne", 2)
    for j in range(ne_): c.late[p2 + 1 + j] = ex[j * 8 // ne_:(j + 1) * 8 // ne_]
    c.late[p2 + opt.get("g4_fs", 6)] = [WVM([("exp", 0)]), f"buffer_store_dword v{VT}, v{VT+1}, {sr(SRD_F,4)}, s88 offen sc1"]
    c.late[N - 3] = [VM(f"buffer_load_dword v{VF}, v{VT+1}, {sr(SRD_F,4)}, s89 offen sc1", ("pf", 0))]
    c.last_reads = [f"ds_read_b128 {vr(V_G+4*b,4)}, v{V_GA} offset:{768+b*64}" for b in range(4)]
    m = Txt(); m.label = k.label
    okl = k.label("pok")
    m(f"v_cmp_eq_u32 vcc, 0, v{VF}\ns_cmp_eq_u64 vcc, 0\ns_cbranch_scc1 {okl}")
    spin(m, [f"buffer_load_dword v{VF}, v{VT+1}, {sr(SRD_F,4)}, s89 offen sc1"], [VF], 0)
    m(f"{okl}:")
    c.late[N - 1] = [WVM([("pf", 0)]), T("\n".join(m.L))] + [f"buffer_load_dwordx4 {vr(IMP+4*j,4)}, v{L16}, {sr(SRD_B,4)}, s{92 + j//4} offen offset:{(j%4)*1024} sc1" for j in range(8)]
    c.run(k)
    k.stamp("g4 loop done")
    A = lambda b, t: 32 + (b * 2 + t) * 4
    XT = 112
    XF = 160
    for j in range(16): k(f"v_lshlrev_b32 v{XF+2*j}, 16, v{V_X+j}\nv_and_b32 v{XF+2*j+1}, 0xffff0000, v{V_X+j}")
    k("s_waitcnt vmcnt(0) lgkmcnt(0)")
    for t in range(2):
        for b in range(4):
            for h in range(2): k(f"v_pk_add_f32 {vr(A(b,t)+2*h,2)}, {vr(A(b,t)+2*h,2)}, {vr(IMP+(b*2+t)*4+2*h,2)}")
            for h in range(2): k(f"v_pk_fma_f32 {vr(A(b,t)+2*h,2)}, {vr(A(b,t)+2*h,2)}, {vr(V_G+4*b+2*h,2)}, {vr(XF+(t*4+b)*4+2*h,2)}")
        PK = XT + t * 8
        for b in range(4): k(f"v_cvt_pk_bf16_f32 v{PK+2*b}, v{A(b,t)}, v{A(b,t)+1}\nv_cvt_pk_bf16_f32 v{PK+2*b+1}, v{A(b,t)+2}, v{A(b,t)+3}")
        k("s_nop 1")
        for s_ in range(2): k(f"v_permlane16_swap_b32 v{PK+4*s_}, v{PK+4*s_+2}\nv_permlane16_swap_b32 v{PK+4*s_+1}, v{PK+4*s_+3}")
        for s_ in range(2): k(f"buffer_store_dwordx4 {vr(PK+4*s_,4)}, v{V_XA}, {sr(SRD_A,4)}, s{86+t} offen offset:{s_*64}")

def phase_gemm1(k, c, opt):
    LANE, L16, VT = c.LANE, c.L16, c.VT
    PHK, VV, SH, UTX = 0, 34816, 114688, 126976
    A_PH = 160
    p = Txt()
    srd(p, SRD_A, P_WPHI, H * 2048)
    srd(p, SRD_B, P_WS, 2 << 20, WS_KVP)
    srd(p, SRD_C, P_WS, 128 << 10, WS_ZP)
    A_PW, A_VW, A_PR, A_VR, A_WR = 110, 111, 112, 113, 114
    p(f"s_lshr_b32 s80, s{S_WAVE}, 1\ns_and_b32 s81, s{S_WAVE}, 1")
    p(f"v_and_b32 v{VT}, 15, v{LANE}\ns_lshl_b32 s82, s{S_WAVE}, 5\nv_add_u32 v{VT}, s82, v{VT}")
    p(f"v_lshrrev_b32 v{VT+1}, 4, v{LANE}\nv_lshlrev_b32 v{VT+1}, 3, v{VT+1}")
    p(f"v_mul_u32_u24 v{A_PW}, 136, v{VT}\nv_add_u32 v{A_PW}, v{A_PW}, v{VT+1}")
    p(f"v_mul_u32_u24 v{A_VW}, 72, v{VT}\nv_add_u32 v{A_VW}, v{A_VW}, v{VT+1}")
    p(f"v_lshrrev_b32 v{VT}, 2, v{LANE}\nv_and_b32 v{VT+1}, 3, v{LANE}\nv_lshlrev_b32 v{VT+1}, 3, v{VT+1}")
    p(f"s_mul_i32 s82, s80, 17408\ns_lshl_b32 s83, s81, 6\ns_add_u32 s82, s82, s83")
    p(f"v_mul_u32_u24 v{A_PR}, 136, v{VT}\nv_add_u32 v{A_PR}, v{A_PR}, v{VT+1}\nv_add_u32 v{A_PR}, s82, v{A_PR}")
    p(f"s_mul_i32 s82, s80, 9216")
    p(f"v_mul_u32_u24 v{A_VR}, 72, v{VT}\nv_add_u32 v{A_VR}, v{A_VR}, v{VT+1}\nv_add_u32 v{A_VR}, s82, v{A_VR}")
    p(f"v_lshl_add_u32 v{A_WR}, v{VT}, 6, v{VT+1}\nv_add_u32 v{A_WR}, {L_WPH}, v{A_WR}")
    ONES, SEL = 116, 120
    for j in range(4): p(f"v_mov_b32 v{ONES+j}, 0x3f803f80")
    p(f"v_bfe_u32 v{VT}, v{LANE}, 2, 2\nv_lshrrev_b32 v{VT+1}, 4, v{LANE}")
    p(f"v_cmp_eq_u32 vcc, v{VT}, v{VT+1}")
    p(f"v_and_b32 v{VT}, 1, v{LANE}\nv_lshlrev_b32 v{VT}, 4, v{VT}\nv_mov_b32 v{VT+1}, 0x3f80\nv_lshlrev_b32 v{VT+1}, v{VT}, v{VT+1}")
    p(f"v_cndmask_b32 v{VT+1}, 0, v{VT+1}, vcc")
    p(f"v_and_b32 v{VT}, 2, v{LANE}\nv_cmp_eq_u32 vcc, 0, v{VT}")
    for j in (0, 1, 4, 5): p(f"v_mov_b32 v{SEL+j}, 0")
    p(f"v_cndmask_b32 v{SEL+2}, 0, v{VT+1}, vcc\nv_cndmask_b32 v{SEL+3}, v{VT+1}, 0, vcc")
    p(f"s_mov_b32 s94, {LOG2E!r}\ns_mov_b32 s95, {LOG2E!r}")
    p(f"s_lshl_b32 s84, s{S_HP}, 12\ns_lshl_b32 s85, s{S_WAVE}, 10\ns_add_u32 s84, s84, s85\ns_add_u32 s85, s85, {L_WPH}")
    c.pre_loop_txt = p.L
    c.late = {4: ["s_mov_b32 m0, s85", f"buffer_load_dwordx4 v{L16}, {sr(SRD_A,4)}, s84 offen lds"]}
    if opt.get("cpf", 1): c.late[22] = code_prefetch_txt(k.name, L16, 254, 80)
    ml = modb_loads(S_MB, 115, 109)
    ms = opt.get("modb_steps", [16] * 8)
    if opt.get("modb_front", 0):
        lb = k.label("skw0")
        c.late.setdefault(ms[0], []).append(T("\n".join([f"s_cmp_lg_u32 s{S_WAVE}, 0", f"s_cbranch_scc1 {lb}"] + [x for g in ml for x in g] + [f"{lb}:"])))
        ml = []
    else:
        for st_, g in zip(ms, ml): c.late.setdefault(st_, []).extend(g)
        ml = ml[len(ms):]
    c.last_reads = [f"ds_read_b64_tr_b16 {ar(A_PH+(hh*2+fb)*4+2*r,2)}, v{A_WR} offset:{hh*2048+r*1024+fb*32}" for hh in range(2) for fb in range(2) for r in range(2)]
    c.run(k)
    k.stamp("g1 loop done")
    A = lambda b, t: (b * 2 + t) * 4
    BF, P1, P2, MX, MN, EK = 126, 142, 174, 206, 214, 222
    groups = [(hh, t) for hh in range(2) for t in range(2)]
    def fm_part1(seg):
        for g, (hh, t) in enumerate(groups):
            for db in range(2):
                a = A(seg * 4 + hh * 2 + db, t)
                k(f"v_cvt_pk_bf16_f32 v{BF+g*4+db*2}, v{a}, v{a+1}\nv_cvt_pk_bf16_f32 v{BF+g*4+db*2+1}, v{a+2}, v{a+3}")
        k("s_nop 1")
        for g, (hh, t) in enumerate(groups):
            for fb in range(2):
                k(f"{MF} {vr(P1+g*8+fb*4,4)}, {ar(A_PH+(hh*2+fb)*4,4)}, {vr(BF+g*4,4)}, 0")
    def fm_part2():
        for op3, op2, M in (("v_max3_f32", "v_max_f32", MX), ("v_min3_f32", "v_min_f32", MN)):
            for g in range(4):
                b = P1 + g * 8
                k(f"{op3} v{M+2*g}, v{b}, v{b+1}, v{b+2}\n{op3} v{M+2*g}, v{M+2*g}, v{b+3}, v{b+4}\n{op3} v{M+2*g}, v{M+2*g}, v{b+5}, v{b+6}\n{op2} v{M+2*g}, v{M+2*g}, v{b+7}")
            treduce4(k, op2, [M + 2 * g for g in range(4)])
        for g in range(4):
            k(f"v_mul_f32 v{MX+2*g}, {-LOG2E!r}, v{MX+2*g}\nv_mul_f32 v{MN+2*g}, {LOG2E!r}, v{MN+2*g}")
    def fm_part3(E):
        for g in range(4):
            for j in range(4):
                b = g * 8 + 2 * j
                k(f"v_pk_fma_f32 {vr(P2+b,2)}, {vr(P1+b,2)}, s[94:95], {vr(MN+2*g,2)} op_sel_hi:[1,1,0] neg_lo:[1,0,0] neg_hi:[1,0,0]")
                k(f"v_pk_fma_f32 {vr(P1+b,2)}, {vr(P1+b,2)}, s[94:95], {vr(MX+2*g,2)} op_sel_hi:[1,1,0]")
            for j in range(8): k(f"v_exp_f32 v{P1+g*8+j}, v{P1+g*8+j}")
            for j in range(8): k(f"v_exp_f32 v{P2+g*8+j}, v{P2+g*8+j}")
            k("s_nop 0")
            for sg, PP in enumerate((P1, P2)):
                for j in range(4): k(f"v_cvt_pk_bf16_f32 v{E+(g*2+sg)*4+j}, v{PP+g*8+2*j}, v{PP+g*8+2*j+1}")
    for g in ml:
        for x in g: k(x)
    k("s_waitcnt lgkmcnt(0)\ns_nop 7")
    fm_part1(1)
    k("s_barrier")
    mark0 = len(k.L)
    for g, (hh, t) in enumerate(groups):
        for db in range(2):
            a = A(8 + hh * 2 + db, t)
            k(f"v_cvt_pk_bf16_f32 v{a}, v{a}, v{a+1}\nv_cvt_pk_bf16_f32 v{a+1}, v{a+2}, v{a+3}")
            k(f"ds_write_b64 v{A_VW}, {vr(a,2)} offset:{VV + hh*9216 + t*16*72 + db*32}")
    fm_part2()
    fm_part3(EK)
    SM = 32
    k("s_nop 1")
    for i in range(8): k(f"{MF} {vr(SM+4*i,4)}, {vr(ONES,4)}, {vr(EK+4*i,4)}, 0")
    k("s_nop 7")
    for i in range(8): k(f"v_rcp_f32 v{SM+4*i}, v{SM+4*i}")
    for g, (hh, t) in enumerate(groups):
        for sg, PP in enumerate((P1, P2)):
            for j in range(4):
                k(f"v_pk_mul_f32 {vr(PP+g*8+2*j,2)}, {vr(PP+g*8+2*j,2)}, {vr(SM+(g*2+sg)*4,2)} op_sel_hi:[1,0]")
            for fb in range(2):
                b = PP + g * 8 + fb * 4
                k(f"v_cvt_pk_bf16_f32 v{b}, v{b}, v{b+1}\nv_cvt_pk_bf16_f32 v{b+1}, v{b+2}, v{b+3}")
                k(f"ds_write_b64 v{A_PW}, {vr(b,2)} offset:{PHK + hh*17408 + t*16*136 + sg*64 + fb*32}")
    sprinkle(k, mark0, g3_early_units(k.g3, opt.get("g3_e1", 14), 254))
    k("s_waitcnt lgkmcnt(0)\ns_barrier")
    for s_ in range(4):
        for r in range(2):
            for fb in range(2): k(f"ds_read_b64_tr_b16 {ar(s_*16+fb*4+2*r,2)}, v{A_PR} offset:{PHK + (32*s_+16*r)*136 + fb*32}")
            for db in range(2): k(f"ds_read_b64_tr_b16 {ar(s_*16+8+db*4+2*r,2)}, v{A_VR} offset:{VV + (32*s_+16*r)*72 + db*32}")
    fm_part1(0)
    KV, ZZ = 64, 80
    for s_ in range(4):
        k(f"s_waitcnt lgkmcnt({min(15, 24 - 8*s_)})")
        for fb in range(2):
            for db in range(2):
                d = vr(KV + (db * 2 + fb) * 4, 4)
                k(f"{MF} {d}, {ar(s_*16+fb*4,4)}, {ar(s_*16+8+db*4,4)}, {'0' if s_ == 0 else d}")
            d = vr(ZZ + fb * 4, 4)
            k(f"{MF} {d}, {ar(s_*16+fb*4,4)}, {vr(ONES,4)}, {'0' if s_ == 0 else d}")
    k(f"s_lshl_b32 s82, s{S_HP}, 2\ns_add_u32 s82, s82, s{S_WAVE}")
    k("s_lshl_b32 s83, s82, 15")
    k(f"s_lshl_b32 s84, s{S_RB1}, 10\ns_add_u32 s84, s84, s83\ns_add_u32 s85, s84, 16384")
    k("s_lshl_b32 s90, s82, 11")
    k(f"s_lshl_b32 s91, s82, {FS+4}\ns_add_u32 s91, s91, {F_KV}\ns_lshl_b32 s92, s{S_RB1}, {FS}\ns_add_u32 s92, s92, s91")
    k(f"v_and_b32 v{VT}, 15, v{LANE}\nv_cmp_eq_u32 vcc, s{S_RB1}, v{VT}")
    k("s_nop 2")
    for db in range(2):
        for j in range(4): k(f"v_cvt_pk_bf16_f32 v{88+db*4+j}, v{KV+db*8+2*j}, v{KV+db*8+2*j+1}")
    k(f"buffer_store_dwordx4 {vr(88,4)}, v{L16}, {sr(SRD_B,4)}, s84 offen sc1")
    k(f"buffer_store_dwordx4 {vr(92,4)}, v{L16}, {sr(SRD_B,4)}, s85 offen sc1")
    k("s_and_saveexec_b64 s[96:97], vcc")
    k(f"buffer_store_dwordx4 {vr(ZZ,4)}, v{L16}, {sr(SRD_C,4)}, s90 offen sc1")
    k(f"buffer_store_dwordx4 {vr(ZZ+4,4)}, v{L16}, {sr(SRD_C,4)}, s90 offen offset:1024 sc1")
    k("s_mov_b64 exec, s[96:97]")
    k.stamp("kv stored")
    fm_part2()
    publish(k, 92, VT + 1)
    k.stamp("kv published")
    k("s_mov_b32 s93, s83")
    g2 = setup_gemm24(k, 2, opt, 96)
    k("s_mov_b32 s83, s93")
    g2.prefetch(k, 8)
    fm_part3(EK)
    k(f"v_lshlrev_b32 v{VT}, {FS}, v{VT}")
    wait_flags(k, [(VT, 91, 1)], VT + 1)
    k.stamp("kv ready")
    k(f"buffer_load_dwordx4 {vr(ZZ,4)}, v{L16}, {sr(SRD_C,4)}, s90 offen sc1")
    k(f"buffer_load_dwordx4 {vr(ZZ+4,4)}, v{L16}, {sr(SRD_C,4)}, s90 offen offset:1024 sc1")
    for i in range(32):
        if i % 4 == 0 and i: k("s_add_u32 s83, s83, 4096")
        k(f"buffer_load_dwordx4 {ar(4*i,4)}, v{L16}, {sr(SRD_B,4)}, s83 offen offset:{(i%4)*1024} sc1")
    srd(k, SRD_T, P_WS, S * D * 2, WS_O)
    k("s_waitcnt vmcnt(32)")
    for sh in (8, 4, 2, 1):
        for j in range(8): k(f"v_add_f32_dpp v{ZZ+j}, v{ZZ+j}, v{ZZ+j} row_ror:{sh} row_mask:0xf bank_mask:0xf")
    k(f"v_and_b32 v{VT+1}, 1, v{LANE}\nv_cmp_eq_u32 vcc, 0, v{VT+1}")
    for j in range(4): k(f"v_cvt_pk_bf16_f32 v{BF+8+j}, v{ZZ+2*j}, v{ZZ+2*j+1}")
    for j in range(4): k(f"v_cndmask_b32 v{BF+8+j}, v{ONES}, v{BF+8+j}, vcc")
    for i in range(32):
        db, pp = divmod(i, 16)
        if i % 2 == 0: k(f"s_waitcnt vmcnt({30 - i})")
        for fb in range(2):
            d = vr(KV + (db * 2 + fb) * 4, 4)
            k(f"{MF} {d}, {vr(SEL + (2 if fb == 0 else 0), 4)}, {ar(4*i,4)}, {'0' if pp == 0 else d}")
    k(f"s_mul_i32 s82, s{S_WAVE}, 3072\ns_add_u32 s82, s82, {SH}")
    k(f"v_add_u32 v{VT+1}, s82, v{L16}\nv_add_u32 v{VT+2}, {SH}, v{L16}")
    k("s_nop 6")
    for db in range(2):
        for j in range(4): k(f"v_cvt_pk_bf16_f32 v{BF+db*4+j}, v{KV+db*8+2*j}, v{KV+db*8+2*j+1}")
    for j in range(3): k(f"ds_write_b128 v{VT+1}, {vr(BF+4*j,4)} offset:{j*1024}")
    k("s_waitcnt lgkmcnt(0)\ns_barrier")
    for i in range(12): k(f"ds_read_b128 {ar(4*i,4)}, v{VT+2} offset:{i*1024}")
    k(f"s_lshl_b32 s82, s{S_RB1}, 3\ns_lshl_b32 s83, s{S_WAVE}, 1\ns_add_u32 s82, s82, s83\ns_lshl_b32 s82, s82, 15")
    k(f"s_lshl_b32 s83, s{S_HP}, 11\ns_add_u32 s82, s82, s83\ns_add_u32 s83, s82, 0x8000")
    k(f"s_lshl_b32 s84, s{S_RB1}, 2\ns_add_u32 s84, s84, s{S_WAVE}\ns_lshl_b32 s84, s84, {FS+4}\ns_lshl_b32 s85, s{S_HP}, {FS}\ns_add_u32 s84, s84, s85\ns_add_u32 s84, s84, {F_O}")
    k("s_waitcnt lgkmcnt(0)")
    for g, (hh, t) in enumerate(groups):
        for sg in range(2):
            for j in range(3):
                k(f"{MF} {vr((g*2+sg)*12+4*j,4)}, {ar(((hh*2+sg)*3+j)*4,4)}, {vr(EK+(g*2+sg)*4,4)}, 0")
    k("s_nop 7")
    for g, (hh, t) in enumerate(groups):
        n1, n2 = g * 24, g * 24 + 12
        D1, S1, D2, S2 = n1 + 8, n1 + 9, n2 + 8, n2 + 9
        k(f"v_mul_f32 v{n1+10}, v{S1}, v{S2}")
        k(f"v_mul_f32 v{n1+10}, 0x358637bd, v{n1+10}")
        k(f"v_fmac_f32 v{n1+10}, v{D1}, v{S2}\nv_fmac_f32 v{n1+10}, v{D2}, v{S1}")
        k(f"v_rcp_f32 v{n1+10}, v{n1+10}")
        k("s_nop 0")
        k(f"v_mul_f32 v{D1}, v{S2}, v{n1+10}\nv_mul_f32 v{D2}, v{S1}, v{n1+10}")
        for j in range(4): k(f"v_pk_mul_f32 {vr(n1+2*j,2)}, {vr(n1+2*j,2)}, {vr(D1,2)} op_sel_hi:[1,0]")
        for j in range(4): k(f"v_pk_fma_f32 {vr(n1+2*j,2)}, {vr(n2+2*j,2)}, {vr(D2,2)}, {vr(n1+2*j,2)} op_sel_hi:[1,0,1]")
        for j in range(4): k(f"v_cvt_pk_bf16_f32 v{n2+j}, v{n1+2*j}, v{n1+2*j+1}")
        k(f"buffer_store_dwordx4 {vr(n2,4)}, v{L16}, {sr(SRD_T,4)}, s{82+t} offen offset:{hh*1024} sc1")
    k.stamp("o stored")
    CU, AU, WW, TT = 128, 144, 152, 156
    for i in range(8): k(f"v_accvgpr_read_b32 v{CU+2*i}, a{A_UT+32+i}")
    silu_block(k, [CU + 2 * i for i in range(8)])
    mko = len(k.L)
    g2.V_X = 48
    srd(k, SRD_A, P_X, S * D * 2)
    V_XA = 47
    k(f"v_lshrrev_b32 v{VT+1}, 4, v{LANE}")
    k(f"v_and_b32 v{VT+2}, 15, v{LANE}\nv_lshlrev_b32 v{VT+2}, 11, v{VT+2}\nv_lshl_add_u32 v{V_XA}, v{VT+1}, 3, v{VT+2}")
    k(f"s_lshl_b32 s82, s{S_RB2}, 3\ns_lshl_b32 s83, s{S_WAVE}, 1\ns_add_u32 s82, s82, s83\ns_lshl_b32 s82, s82, 15\ns_lshl_b32 s83, s{S_NT}, 7\ns_add_u32 s82, s82, s83\ns_add_u32 s83, s82, 32768")
    for t in range(2):
        for b in range(4):
            k(f"buffer_load_dwordx2 {vr(g2.V_X+(t*4+b)*2,2)}, v{V_XA}, {sr(SRD_A,4)}, s{82+t} offen offset:{b*32}")
    publish(k, 84, VT + 2, mko)
    k.stamp("o published")
    mark1 = len(k.L)
    for j in range(8): k(f"v_mov_b32 v{AU+j}, 0")
    for i in range(8):
        for d in range(4): k(f"v_accvgpr_read_b32 v{WW+d}, a{A_UT+4*i+d}")
        for d in range(4):
            k(f"v_lshlrev_b32 v{TT}, 16, v{WW+d}\nv_and_b32 v{TT+1}, 0xffff0000, v{WW+d}")
            k(f"v_pk_fma_f32 {vr(AU+2*d,2)}, {vr(TT,2)}, {vr(CU+2*i,2)}, {vr(AU+2*d,2)} op_sel_hi:[1,0,1]")
    k("s_nop 1")
    for j in range(4): k(f"v_permlane32_swap_b32 v{AU+j}, v{AU+j+4}")
    k("s_nop 1")
    for j in range(4): k(f"v_add_f32 v{AU+j}, v{AU+j}, v{AU+j+4}")
    k("s_nop 1")
    for j in range(2): k(f"v_permlane16_swap_b32 v{AU+j}, v{AU+j+2}")
    k("s_nop 1")
    for j in range(2): k(f"v_add_f32 v{AU+j}, v{AU+j}, v{AU+j+2}")
    k("s_nop 1")
    for j in range(2): k(f"v_add_f32_dpp v{AU+j}, v{AU+j}, v{AU+j} row_ror:8 row_mask:0xf bank_mask:0xf")
    sprinkle(k, mark1, g3_early_units(k.g3, opt.get("g3_e2", 7), 254), skip=0)
    k(f"v_and_b32 v{TT}, 7, v{LANE}\nv_lshlrev_b32 v{TT}, 5, v{TT}\nv_lshrrev_b32 v{TT+1}, 5, v{LANE}\nv_lshl_add_u32 v{TT}, v{TT+1}, 4, v{TT}")
    k(f"v_bfe_u32 v{TT+1}, v{LANE}, 4, 1\nv_lshl_add_u32 v{TT}, v{TT+1}, 3, v{TT}")
    srd(k, SRD_D, P_WS, MP_BYTES, WS_MODP)
    k(f"v_or_b32 v{AU}, 1, v{AU}\nv_or_b32 v{AU+1}, 1, v{AU+1}")
    k(f"buffer_store_dwordx2 {vr(AU,2)}, v{TT}, {sr(SRD_D,4)}, s{S_MO} offen sc1")
    return g2

A_PARK = 224
S3_SRD, S3_WB, S3_KW = 64, 68, 69
def setup_gemm3_early(k, opt, LANE, VT):
    c = Sched(); common_gemm(c)
    NS, R = 4, 8
    STAGE = 28672
    V_RD, V_DMA, V_TOK = 224, 226, 233
    c.V_RD, c.V_DMA, c.V_TOK, c.LANE, c.L16, c.VT = V_RD, V_DMA, V_TOK, 237, 238, 248
    c.srd_w, c.s_wbase, c.s_kw = S3_SRD, S3_WB, S3_KW
    order(c, k, opt, 'g3', ['win', [4, 4, 8], 0])
    if opt.get("g3map", 0): c.s_rot, c.s_rot2 = 73, 72
    k(f"s_lshr_b32 s80, s{S_WAVE}, 1\ns_and_b32 s81, s{S_WAVE}, 1")
    k(f"s_mul_i32 s83, s80, {32*7168}\ns_mul_i32 s{S_TMP}, s{S_FT}, 224\ns_add_u32 s83, s83, s{S_TMP}")
    for i in range(7):
        k(f"v_add_u32 v{VT+2}, {i*64}, v{LANE}")
        k(f"v_mul_u32_u24 v{VT+3}, 4682, v{VT+2}")
        k(f"v_lshrrev_b32 v{VT+3}, 16, v{VT+3}")
        k(f"v_mul_u32_u24 v{VT+4}, 14, v{VT+3}")
        k(f"v_sub_u32 v{VT+4}, v{VT+2}, v{VT+4}")
        k(f"v_mul_u32_u24 v{VT+3}, 7168, v{VT+3}")
        k(f"v_lshl_add_u32 v{VT+3}, v{VT+4}, 4, v{VT+3}")
        k(f"v_add_u32 v{VT+3}, s83, v{VT+3}")
        k(f"v_accvgpr_write_b32 a{A_PARK+i}, v{VT+3}")
    k(f"s_mul_i32 s{S3_WB}, s81, 14336\ns_mul_i32 s82, s80, 7168\ns_add_u32 s{S3_WB}, s{S3_WB}, s82")
    k(f"s_cmp_eq_u32 s81, 0\ns_cselect_b32 s{S3_SRD}, s{P_W1}, s{P_W3}\ns_cselect_b32 s{S3_SRD+1}, s{P_W1+1}, s{P_W3+1}")
    k(f"s_mov_b32 s{S3_SRD+2}, {D*F*2}\ns_mov_b32 s{S3_SRD+3}, 0x20000")
    c.NB, c.TB, c.KS, c.SPK, c.KT, c.NS, c.R = 14, 4, 1, 2, 16, NS, R
    c.acc = lambda b, t: vr((b * 4 + t) * 4, 4)
    c.tf = lambda slot, ks, t: 112 + (slot * 4 + t) * 4
    ph = lambda sl: 3 - sl
    c.rd = lambda sl, b, sub, r: (V_RD + ph(sl) // 2, (ph(sl) % 2) * STAGE + (b % 2) * 14336 + (32 * sub + 16 * r) * 224 + 32 * (b // 2))
    c.slot_addr = lambda sl: ph(sl) * STAGE
    c.dma = [(V_DMA + i, i * 1024, 0) for i in range(7)]
    c.v_tok = [V_TOK + t for t in range(4)]
    c.w_stride = 64 * 7168
    c.drop = opt.get("g3_drop", ())
    c.pro_units, c.ramp_rate, c.read_margin = opt.get("g3_pro", 8), (lambda st: opt.get("g3_ramp", 10) if st < 6 else 8), 8
    c.lookahead = opt.get("g3_la", 4)
    std_sched(c)
    TL = c.TL = opt.get("g3_tail", 0)
    if TL:
        tail = c.steps[32 - TL:]
        c.steps = c.steps[:32 - TL] + [dict(st, frags=st["frags"][:8]) for st in tail] + [dict(st, frags=st["frags"][8:]) for st in tail]
    return c
def g3_early_units(c, n, vtmp):
    out = []
    for j in range(n):
        t = c.prefetch_txt(1)
        i = (c.pre_dma - 1) % 7
        ld = t[-1].replace(f"v{c.V_DMA+i},", f"v{vtmp},")
        out.append(t[:-1] + [f"v_accvgpr_read_b32 v{vtmp}, a{A_PARK+i}", ld])
    return out
def setup_gemm3_late(k, c):
    V_RD, V_DMA, V_TOK, LANE, L16, VT = c.V_RD, c.V_DMA, c.V_TOK, c.LANE, c.L16, c.VT
    lane_id(k, LANE)
    k(f"v_lshlrev_b32 v{L16}, 4, v{LANE}")
    for i in range(7): k(f"v_accvgpr_read_b32 v{V_DMA+i}, a{A_PARK+i}")
    k(f"v_lshrrev_b32 v{VT+3}, 2, v{LANE}\nv_mul_u32_u24 v{VT+3}, 224, v{VT+3}")
    k(f"v_and_b32 v{VT+4}, 3, v{LANE}\nv_lshl_add_u32 v{V_RD}, v{VT+4}, 3, v{VT+3}")
    k(f"v_add_u32 v{V_RD+1}, {2*28672}, v{V_RD}")
    k(f"s_lshl_b32 s82, s{S_RB3}, 4\ns_lshl_b32 s83, s{S_WAVE}, 2\ns_add_u32 s82, s82, s83\ns_lshl_b32 s82, s82, 15")
    k(f"v_add_u32 v{V_TOK}, s82, v{L16}")
    for t in range(1, 4): k(f"v_add_u32 v{V_TOK+t}, {t*0x8000}, v{V_TOK}")

def sprinkle(k, mark, groups, skip=4):
    if not groups: return
    seg = k.L[mark:]
    stepn = max(1, (len(seg) - skip) // len(groups))
    out, q = [], list(groups)
    for i, x in enumerate(seg):
        out.append(x)
        if q and i >= skip and (i - skip) % stepn == 0:
            assert not x.startswith("s_cmp") and not x.startswith("s_and_saveexec")
            out += q.pop(0)
    for g in q: out += g
    k.L[mark:] = out

A_X1 = 240
def phase_gemm2(k, c, opt):
    LANE, L16 = c.LANE, c.L16
    VT = 40
    k(f"v_and_b32 v252, 15, v{LANE}\nv_lshlrev_b32 v252, {FS}, v252")
    k(f"s_lshl_b32 s84, s{S_RB2}, 2\ns_add_u32 s84, s84, s{S_WAVE}\ns_lshl_b32 s84, s84, {FS+4}\ns_add_u32 s85, s84, {F_O}")
    if c.hs:
        k(f"s_add_u32 s94, s85, {F_O2 - F_O}")
        staged_wait(k, c, opt.get("g2_T", 5), 252, 85, 253, lambda sp, st: [f"s_lshl_b32 s{st}, s{sp}, 1", f"s_lshl_b32 s{st}, 3, s{st}"], pub=(95, 26))
        add_gate(k, c, 8, f"buffer_load_dword v253, v252, {sr(SRD_F,4)}, s94 offen sc1", 253)
    else:
        staged_wait(k, c, opt.get("g2_T", 6), 252, 85, 253, one_prod)
    k.stamp("o ready")
    V_G, V_C, V_S, V_GA = 64, 80, 136, 44
    p = Txt()
    srd(p, SRD_A, P_WS, S * D * 2, WS_Y)
    srd(p, SRD_B, P_WS, S * 128, WS_STAT)
    srd(p, SRD_D, P_WS, MP_BYTES, WS_MODP)
    p(f"v_lshrrev_b32 v{V_GA}, 4, v{LANE}\nv_lshlrev_b32 v{V_GA}, 4, v{V_GA}\nv_add_u32 v{V_GA}, {L_MV}, v{V_GA}")
    p(f"s_lshl_b32 s86, s{S_RB2}, 3\ns_lshl_b32 s87, s{S_WAVE}, 1\ns_add_u32 s86, s86, s87")
    p(f"s_lshl_b32 s88, s86, 15\ns_lshl_b32 s87, s{S_NT}, 11\ns_add_u32 s88, s88, s87\ns_add_u32 s89, s88, 32768")
    p(f"s_lshl_b32 s87, s{S_NT}, {FS}\ns_add_u32 s84, s84, s87\ns_add_u32 s84, s84, {F_Y}")
    p(f"s_lshl_b32 s91, s86, 11\ns_lshl_b32 s90, s{S_NT}, 8\ns_add_u32 s90, s90, s91")
    p(f"s_lshl_b32 s92, s{S_WAVE}, 16\ns_lshl_b32 s93, s{S_NT}, 12\ns_add_u32 s92, s92, s93\ns_add_u32 s92, s92, {MP_B}")
    p(f"v_lshlrev_b32 v{VT}, 2, v{LANE}")
    p(f"v_add_u32 v42, {67584 - L_R2}, v{c.V_RDX}\nv_add_u32 v43, {1024 - L_R2}, v{c.V_RDX}")
    for g in g3_early_units(k.g3, opt.get("g3_e2p", 0), 254): p.L += g
    c.pre_loop_txt = p.L
    c.late = {}
    for j, st_ in enumerate(opt.get("g3_e2s", [])):
        for g in g3_early_units(k.g3, 7 // len(opt["g3_e2s"]) + (1 if j < 7 % len(opt["g3_e2s"]) else 0), 254): c.late.setdefault(st_, []).extend(g)
    if opt.get("cpf", 1): c.late.setdefault(6, []).extend(code_prefetch_txt(k.name, L16, 254, 80))
    m = Txt(); m.label = k.label
    MB_ = 160
    mld = [f"buffer_load_dword v{MB_+j}, v{VT}, {sr(SRD_D,4)}, s92 offen offset:{j*256} sc1" for j in range(16)]
    okm = k.label("mok")
    m(f"v_min_u32 v{MB_+16}, v{MB_}, v{MB_+1}")
    for j in range(2, 16, 2): m(f"v_min3_u32 v{MB_+16}, v{MB_+16}, v{MB_+j}, v{MB_+j+1}")
    m(f"v_cmp_eq_u32 vcc, 0, v{MB_+16}\ns_cmp_eq_u64 vcc, 0\ns_cbranch_scc1 {okm}")
    spin(m, mld, [MB_ + j for j in range(16)], MB_ + 16)
    m(f"{okm}:")
    mchk = "\n".join(m.L); m.L = []
    for st in (4, 2, 1):
        for j in range(st): m(f"v_pk_add_f32 {vr(MB_+2*j,2)}, {vr(MB_+2*j,2)}, {vr(MB_+2*(j+st),2)}")
    m(f"v_add_f32 v{MB_}, v{MB_}, v{MB_+1}")
    round_bf16(m, MB_)
    m(f"v_add_f32 v{MB_+1}, 1.0, v{MB_}"); round_bf16(m, MB_ + 1)
    m(f"s_cmp_eq_u32 s{S_WAVE}, 2\ns_cselect_b64 vcc, -1, 0")
    m(f"v_cndmask_b32 v{MB_}, v{MB_}, v{MB_+1}, vcc")
    m(f"s_lshl_b32 s92, s{S_WAVE}, 8\ns_add_u32 s92, s92, {L_MV}\nv_add_u32 v{VT}, s92, v{VT}")
    m(f"ds_write_b32 v{VT}, v{MB_}")
    ms_ = opt.get("g2_modstep", 13)
    c.late.setdefault(ms_ - 2, []).extend([VM(x, ("mv", 0)) for x in mld])
    k_ = [x for x in m.L]
    i_ = next(i for i, x in enumerate(k_) if x.startswith("s_cmp_eq_u32"))
    c.late[ms_] = [WVM([("mv", 0)]), T(mchk)] + k_[:i_] + ["\n".join(k_[i_:])]
    ne = opt.get("g3_e3", 0)
    eu = [x for g in g3_early_units(k.g3, ne, 254) for x in g]
    c.late.setdefault(14, []).extend(eu[:len(eu)//2 // 1]); c.late.setdefault(15, []).extend(eu[len(eu)//2:])
    c.last_reads = ([f"ds_read_b128 {vr(V_G+4*b,4)}, v{V_GA} offset:{b*64}" for b in range(4)] + [f"ds_read_b128 {vr(V_C+4*b,4)}, v{V_GA} offset:{512+b*64}" for b in range(4)]
                    + [f"ds_read_b128 {vr(V_S+4*b,4)}, v{V_GA} offset:{256+b*64}" for b in range(4)])
    c.run(k)
    k.stamp("g2 loop done")
    k("s_waitcnt lgkmcnt(0)\ns_nop 7")
    A = lambda b, t: (b * 2 + t) * 4
    XT = 194; V_X = c.V_X
    for t in range(2):
        for b in range(4):
            xr = V_X + (t * 4 + b) * 2
            for h in range(2): k(f"v_lshlrev_b32 v{XT+2*h}, 16, v{xr+h}\nv_and_b32 v{XT+2*h+1}, 0xffff0000, v{xr+h}")
            for h in range(2): k(f"v_pk_fma_f32 {vr(A(b,t)+2*h,2)}, {vr(A(b,t)+2*h,2)}, {vr(V_G+4*b+2*h,2)}, {vr(XT+2*h,2)}")
        PK = XT + 4 + t * 8
        for b in range(4): k(f"v_cvt_pk_bf16_f32 v{PK+2*b}, v{A(b,t)}, v{A(b,t)+1}\nv_cvt_pk_bf16_f32 v{PK+2*b+1}, v{A(b,t)+2}, v{A(b,t)+3}")
        for b in range(4):
            for h in range(2): k(f"v_lshlrev_b32 v{A(b,t)+2*h}, 16, v{PK+2*b+h}\nv_and_b32 v{A(b,t)+2*h+1}, 0xffff0000, v{PK+2*b+h}")
    SU = [XT + 20, XT + 22]; M2 = [XT + 21, XT + 23]; TM = [XT + 24, XT + 25]; AC = [XT, XT + 2]; NM = [XT + 26, XT + 28]; DF = 32
    for t in range(2): k(f"v_pk_add_f32 {vr(AC[t],2)}, {vr(A(0,t),2)}, {vr(A(0,t)+2,2)}")
    for b in range(1, 4):
        for h in range(2):
            for t in range(2): k(f"v_pk_add_f32 {vr(AC[t],2)}, {vr(AC[t],2)}, {vr(A(b,t)+2*h,2)}")
    def allred2(X):
        for sw in ("v_permlane32_swap_b32", "v_permlane16_swap_b32"):
            for t in range(2): k(f"v_mov_b32 v{TM[t]}, v{X[t]}")
            k("s_nop 0")
            for t in range(2): k(f"{sw} v{X[t]}, v{TM[t]}")
            k("s_nop 0")
            for t in range(2): k(f"v_add_f32 v{X[t]}, v{X[t]}, v{TM[t]}")
    for t in range(2): k(f"v_add_f32 v{SU[t]}, v{AC[t]}, v{AC[t]+1}")
    allred2(SU)
    for t in range(2): k(f"v_mul_f32 v{NM[t]}, {-1.0/64!r}, v{SU[t]}\nv_mov_b32 v{AC[t]}, 0\nv_mov_b32 v{AC[t]+1}, 0")
    for b in range(4):
        for h in range(2):
            for t in range(2): k(f"v_pk_add_f32 {vr(DF+2*t,2)}, {vr(A(b,t)+2*h,2)}, {vr(NM[t],2)} op_sel_hi:[1,0]")
            for t in range(2): k(f"v_pk_fma_f32 {vr(AC[t],2)}, {vr(DF+2*t,2)}, {vr(DF+2*t,2)}, {vr(AC[t],2)}")
    for t in range(2): k(f"v_add_f32 v{M2[t]}, v{AC[t]}, v{AC[t]+1}")
    allred2(M2)
    k(f"v_cmp_gt_u32 vcc, 16, v{LANE}")
    k(f"v_lshlrev_b32 v{XT+2}, 3, v{LANE}\nv_lshrrev_b32 v{XT+3}, 4, v{LANE}")
    k(f"v_cndmask_b32 v{XT}, v{SU[1]}, v{SU[0]}, vcc\nv_cndmask_b32 v{XT+1}, v{M2[1]}, v{M2[0]}, vcc")
    k(f"v_and_b32 v45, 0x78, v{XT+2}\nv_lshl_add_u32 v45, v{XT+3}, 10, v45")
    k(f"v_or_b32 v{XT+1}, 1, v{XT+1}")
    k(f"v_cmp_gt_u32 vcc, 32, v{LANE}\ns_and_saveexec_b64 s[96:97], vcc")
    k(f"buffer_store_dwordx2 {vr(XT,2)}, v{XT+2}, {sr(SRD_B,4)}, s90 offen sc1")
    k("s_mov_b64 exec, s[96:97]")
    k.stamp("stat stored")
    if c.NS > 4: k("s_barrier")
    if opt.get("g3_first", 0):
        setup_gemm3_late(k, k.g3); k.g3.prefetch(k, opt["g3_first"])
    for t in range(2):
        for b in range(4):
            for h in range(2): k(f"v_pk_mul_f32 {vr(A(b,t)+2*h,2)}, {vr(A(b,t)+2*h,2)}, {vr(V_C+4*b+2*h,2)}")
    for j in range(16): k(f"v_accvgpr_write_b32 a{A_X1+j}, v{XT+4+j}")
    g3 = k.g3
    if not opt.get("g3_first", 0): setup_gemm3_late(k, g3)
    g3.prefetch(k, opt.get("g3_pre0", 14))
    ST = 48
    spin(k, [f"buffer_load_dwordx2 {vr(ST+t*8+j*2,2)}, v45, {sr(SRD_B,4)}, s91 offen offset:{t*128+j*256} sc1" for t in range(2) for j in range(4)],
         [ST + 2 * j + 1 for j in range(8)], XT)
    k.stamp("stat ready")
    for t in range(2):
        b = ST + t * 8
        k(f"v_add_f32 v{SU[t]}, v{b}, v{b+2}\nv_add_f32 v{TM[t]}, v{b+4}, v{b+6}\nv_add_f32 v{SU[t]}, v{SU[t]}, v{TM[t]}")
        k(f"v_add_f32 v{M2[t]}, v{b+1}, v{b+3}\nv_add_f32 v{TM[t]}, v{b+5}, v{b+7}\nv_add_f32 v{M2[t]}, v{M2[t]}, v{TM[t]}")
    allred2(SU)
    for t in range(2): k(f"v_mul_f32 v{SU[t]}, {-1.0/1024!r}, v{SU[t]}")
    for j in range(4):
        for t in range(2): k(f"v_fmamk_f32 v{ST+t*8+2*j}, v{ST+t*8+2*j}, {1.0/64!r}, v{SU[t]}")
        for t in range(2): k(f"v_mul_f32 v{ST+t*8+2*j}, v{ST+t*8+2*j}, v{ST+t*8+2*j}")
        for t in range(2): k(f"v_fmac_f32 v{M2[t]}, 0x42800000, v{ST+t*8+2*j}")
    allred2(M2)
    for t in range(2): k(f"v_mov_b32 v{TM[t]}, 0x3727c5ac\nv_fmac_f32 v{TM[t]}, {1.0/1024!r}, v{M2[t]}")
    for t in range(2): k(f"v_rsq_f32 v{NM[t]}, v{TM[t]}")
    k("s_nop 0")
    for t in range(2): k(f"v_mul_f32 v{NM[t]+1}, v{SU[t]}, v{NM[t]}")
    for t in range(2):
        YK = ST + t * 8
        for b in range(4):
            for h in range(2): k(f"v_pk_fma_f32 {vr(XT+2*h,2)}, {vr(V_C+4*b+2*h,2)}, {vr(NM[t],2)}, {vr(V_S+4*b+2*h,2)} op_sel:[0,1,0] op_sel_hi:[1,1,1]")
            for h in range(2): k(f"v_pk_fma_f32 {vr(XT+2*h,2)}, {vr(A(b,t)+2*h,2)}, {vr(NM[t],2)}, {vr(XT+2*h,2)} op_sel_hi:[1,0,1]")
            k(f"v_cvt_pk_bf16_f32 v{YK+2*b}, v{XT}, v{XT+1}\nv_cvt_pk_bf16_f32 v{YK+2*b+1}, v{XT+2}, v{XT+3}")
        for s_ in range(2): k(f"buffer_store_dwordx4 {vr(YK+4*s_,4)}, v{L16}, {sr(SRD_A,4)}, s{88+t} offen offset:{s_*1024} sc1")
    publish(k, 84, 40)
    k.stamp("y published")
    g3.prefetch(k, opt.get("g3_pre", 0))
    return g3

def phase_gemm3(k, c, opt):
    LANE, L16, VT = c.LANE, c.L16, c.VT
    NB, TB = 14, 4
    srd(k, SRD_T, P_WS, S * D * 2, WS_Y)
    srd(k, SRD_C, P_WS, S * F * 2, WS_HH)
    k(f"v_and_b32 v{VT}, 31, v{LANE}\nv_lshlrev_b32 v{VT}, {FS}, v{VT}")
    k(f"s_lshl_b32 s84, s{S_RB3}, 2\ns_add_u32 s84, s84, s{S_WAVE}")
    k(f"s_lshl_b32 s85, s84, {FS+5}\ns_add_u32 s85, s85, {F_Y}")
    staged_wait(k, c, opt.get("g3_T", 3), VT, 85, VT + 1, one_prod, dup16=True)
    k.stamp("y ready")
    p = Txt()
    SO = 8
    p(f"s_mul_i32 s{SO}, s84, {448*1024}\ns_mul_i32 s92, s{S_FT}, 3584\ns_add_u32 s{SO}, s{SO}, s92")
    for t in range(1, 4): p(f"s_add_u32 s{SO+t}, s{SO}, {t*112*1024}")
    p(f"s_lshl_b32 s93, s84, {FS+5}\ns_lshl_b32 s94, s{S_FT}, {FS}\ns_add_u32 s93, s93, s94\ns_add_u32 s94, s93, {F_HB}\ns_add_u32 s93, s93, {F_HH}")
    p(f"s_mov_b32 s12, {-LOG2E!r}\ns_mov_b32 s13, {-LOG2E!r}")
    SB = 241
    p(f"v_lshrrev_b32 v{SB}, 1, v{L16}")
    c.pre_loop_txt = p.L
    if opt.get("cpf", 1):
        for st_ in opt.get("cp3", [6, 22]): c.late.setdefault(st_, []).extend(code_prefetch_txt(k.name, L16, 254, 80, junk="v240"))
    if opt.get("w2touch", 1):
        ws_ = opt.get("w2steps", [16]); per = 56 // len(ws_)
        for j, st_ in enumerate(ws_):
            c.late.setdefault(st_, []).extend([f"s_lshl_b32 s80, s2, 2", f"s_add_u32 s80, s80, s{S_WAVE}", "s_mul_i32 s80, s80, 7168", f"s_add_u32 s80, s80, {j*per*128}",
                      f"v_min_u32 v253, {per-1}, v{LANE}", "v_lshlrev_b32 v253, 7, v253", "v_add_u32 v253, s80, v253",
                      f"global_load_dword v240, v253, s[{P_W2}:{P_W2+1}]"])
    for j, st_ in enumerate(opt.get("w2l2", [27, 28])):
        c.late.setdefault(st_, []).extend([
            f"s_lshl_b32 s80, s{S_IDX}, 2", f"s_add_u32 s80, s80, s{S_WAVE}", "s_mul_i32 s80, s80, 14", f"s_add_u32 s80, s80, {7*j}",
            f"s_and_b32 s81, s{S_XCD}, 1", "s_mul_i32 s81, s81, 1792", "s_add_u32 s80, s80, s81", "s_lshl_b32 s80, s80, 11",
            f"s_lshr_b32 s81, s{S_XCD}, 2", "s_lshl_b32 s81, s81, 10", "s_add_u32 s80, s80, s81",
            f"v_min_u32 v253, 55, v{LANE}", "v_lshrrev_b32 v254, 3, v253", "v_lshlrev_b32 v254, 11, v254", "v_and_b32 v253, 7, v253", "v_lshl_add_u32 v253, v253, 7, v254",
            "v_add_u32 v253, s80, v253", f"global_load_dword v240, v253, s[{P_W2}:{P_W2+1}]"])
    t4 = Txt()
    g4 = setup_gemm4p(t4, opt, 242)
    half = len(t4.L) // 2
    c.late[19] = t4.L[:half]; c.late[20] = t4.L[half:]
    pf = g4.prefetch_txt(4); c.late[29] = pf
    pf = g4.prefetch_txt(4); c.late[30] = pf
    def G(s, t): return ((2 * s) * TB + t) * 4
    def Uu(s, t): return ((2 * s + 1) * TB + t) * 4
    def act(k, slots, t, scalar=False):
        if scalar:
            for s in slots:
                for r in range(4):
                    k(f"v_mul_f32 v{Uu(s,t)+r}, v{G(s,t)+r}, v{Uu(s,t)+r}")
                    k(f"v_mul_f32 v{G(s,t)+r}, s12, v{G(s,t)+r}")
            rs = [(s, r) for s in slots for r in range(4)]
            for i, (s, r) in enumerate(rs): k(f"v_exp_f32 v{G(s,t)+r}, v{G(s,t)+r}")
            for i, (s, r) in enumerate(rs): k(f"v_add_f32 v{G(s,t)+r}, 1.0, v{G(s,t)+r}")
            for i, (s, r) in enumerate(rs): k(f"v_rcp_f32 v{G(s,t)+r}, v{G(s,t)+r}")
            for i, (s, r) in enumerate(rs): k(f"v_mul_f32 v{Uu(s,t)+r}, v{Uu(s,t)+r}, v{G(s,t)+r}")
            return
        for s in slots:
            for h in range(2):
                k(f"v_pk_mul_f32 {vr(Uu(s,t)+2*h,2)}, {vr(G(s,t)+2*h,2)}, {vr(Uu(s,t)+2*h,2)}")
                k(f"v_pk_mul_f32 {vr(G(s,t)+2*h,2)}, {vr(G(s,t)+2*h,2)}, s[12:13]")
        for s in slots:
            for r in range(4): k(f"v_exp_f32 v{G(s,t)+r}, v{G(s,t)+r}")
        for s in slots:
            for h in range(2): k(f"v_pk_add_f32 {vr(G(s,t)+2*h,2)}, {vr(G(s,t)+2*h,2)}, 1.0 op_sel_hi:[1,0]")
        for s in slots:
            for r in range(4): k(f"v_rcp_f32 v{G(s,t)+r}, v{G(s,t)+r}")
        for s in slots:
            for h in range(2): k(f"v_pk_mul_f32 {vr(Uu(s,t)+2*h,2)}, {vr(Uu(s,t)+2*h,2)}, {vr(G(s,t)+2*h,2)}")
    def pair(k, pr, t, scalar=False):
        s0, s1 = 2 * pr, 2 * pr + 1
        act(k, [s0, s1], t, scalar)
        d = G(s0, t)
        k(f"v_cvt_pk_bf16_f32 v{d}, v{Uu(s0,t)}, v{Uu(s0,t)+1}\nv_cvt_pk_bf16_f32 v{d+1}, v{Uu(s0,t)+2}, v{Uu(s0,t)+3}")
        k(f"v_cvt_pk_bf16_f32 v{d+2}, v{Uu(s1,t)}, v{Uu(s1,t)+1}\nv_cvt_pk_bf16_f32 v{d+3}, v{Uu(s1,t)+2}, v{Uu(s1,t)+3}")
        k(f"buffer_store_dwordx4 {vr(d,4)}, v{L16}, {sr(SRD_C,4)}, s{SO+t} offen offset:{pr*1024} sc1")
        if opt.get("dbl", 0): k(f"buffer_store_dwordx4 {vr(d,4)}, v{L16}, {sr(SRD_C,4)}, s{SO+t} offen offset:{pr*1024}")
    ea = Txt(); eb = Txt()
    nin = opt.get("g3_nin", 8) if c.TL else 0
    for i, (pr, t) in enumerate([(pr, t) for pr in range(2) for t in range(TB)]):
        if i < nin: pair(ea, pr, t, opt.get("g3_scalar", 0))
        else: pair(eb, pr, t)
    if c.TL:
        nst = opt.get("g3_east", c.TL - 1)
        per = -(-len(ea.L) // nst)
        c.step_extra = lambda st: ea.L[(st - 32) * per:(st - 31) * per] if st >= 32 else []
    c.run(k)
    k.stamp("g3 loop done")
    if not c.TL: k("s_nop 7")
    k("s_barrier")
    mkE = len(k.L)
    for x in eb.L: k(x)
    grp = []
    for j in range(opt.get("g4_pa", 0)):
        t_ = g4.prefetch_txt(1); grp.append(t_[:-1] + ["s_nop 0", t_[-1]])
    sprinkle(k, mkE, grp)
    def single(k, t):
        act(k, [6], t)
        d = G(6, t)
        k(f"v_cvt_pk_bf16_f32 v{d}, v{Uu(6,t)}, v{Uu(6,t)+1}\nv_cvt_pk_bf16_f32 v{d+1}, v{Uu(6,t)+2}, v{Uu(6,t)+3}")
        k(f"buffer_store_dwordx2 {vr(d,2)}, v{SB}, {sr(SRD_C,4)}, s{SO+t} offen offset:3072 sc1")
    mkA = len(k.L)
    na = opt.get("g3_pubA", 2)
    g4.binl = None
    if opt.get("binl", 0):
        nb0 = opt.get("binl0", 1)
        bt = Txt()
        jobs = [(pair, (2, t)) for t in range(TB)] + [(single, (t,)) for t in range(TB)]
        g4.mkA = mkA
        for f_, a_ in jobs[:nb0]: f_(k, *a_)
        for f_, a_ in jobs[nb0:]: f_(bt, *a_)
        g4.binl = bt.L
    else:
        for t in range(na): pair(k, 2, t)
        publish(k, 93, 252, mkA)
        k.stamp("hA published")
        mark3 = len(k.L)
        for t in range(na, TB): pair(k, 2, t)
        grp = []
        for j in range(opt.get("g4_pb", 8)):
            t_ = g4.prefetch_txt(1); grp.append(t_[:-1] + ["s_nop 0", t_[-1]])
        sprinkle(k, mark3, grp)
        for t in range(TB): single(k, t)
    k.stamp("hh stored")
    return g4

def phase_gemm4(k, c, opt):
    LANE, L16 = c.LANE, c.L16
    VT = 40
    srd(k, SRD_T, P_WS, S * F * 2, WS_HH)
    srd(k, SRD_A, P_OUT, S * D * 2)
    k(f"v_and_b32 v{VT}, 31, v{LANE}\nv_lshlrev_b32 v{VT}, 2, v{VT}")
    k(f"s_lshl_b32 s84, s{S_RB2}, 1\ns_lshr_b32 s85, s{S_WAVE}, 1\ns_add_u32 s84, s84, s85\ns_lshl_b32 s84, s84, {FS+5}\ns_add_u32 s84, s84, {F_HH}")
    wait_flags(k, [(VT, 84, 1)], VT + 1)
    k.stamp("hh ready")
    V_G, V_GA, V_XA, V_X = 64, 44, 45, 48
    p = Txt()
    p(f"v_lshrrev_b32 v{VT}, 4, v{LANE}\nv_lshlrev_b32 v{V_GA}, 4, v{VT}\nv_add_u32 v{V_GA}, {L_MV}, v{V_GA}")
    p(f"v_and_b32 v{VT+1}, 15, v{LANE}\nv_lshlrev_b32 v{VT+1}, 11, v{VT+1}")
    p(f"v_and_b32 v{VT+2}, 1, v{VT}\nv_lshl_add_u32 v{VT+1}, v{VT+2}, 5, v{VT+1}")
    p(f"v_lshrrev_b32 v{VT+2}, 1, v{VT}\nv_lshl_add_u32 v{V_XA}, v{VT+2}, 4, v{VT+1}")
    p(f"s_lshl_b32 s86, s{S_RB2}, 3\ns_lshl_b32 s87, s{S_WAVE}, 1\ns_add_u32 s86, s86, s87\ns_lshl_b32 s86, s86, 15\ns_lshl_b32 s87, s{S_NT}, 7\ns_add_u32 s86, s86, s87\ns_add_u32 s87, s86, 32768")
    for j in range(16): p(f"v_accvgpr_read_b32 v{V_X+j}, a{A_X1+j}")
    c.pre_loop_txt = p.L
    c.last_reads = [f"ds_read_b128 {vr(V_G+4*b,4)}, v{V_GA} offset:{768+b*64}" for b in range(4)]
    c.run(k)
    k.stamp("g4 loop done")
    k("s_waitcnt lgkmcnt(0)\ns_nop 7")
    A = lambda b, t: (b * 2 + t) * 4
    XT = 96
    for t in range(2):
        for b in range(4):
            xr = V_X + (t * 4 + b) * 2
            for h in range(2): k(f"v_lshlrev_b32 v{XT+2*h}, 16, v{xr+h}\nv_and_b32 v{XT+2*h+1}, 0xffff0000, v{xr+h}")
            for h in range(2): k(f"v_pk_fma_f32 {vr(A(b,t)+2*h,2)}, {vr(A(b,t)+2*h,2)}, {vr(V_G+4*b+2*h,2)}, {vr(XT+2*h,2)}")
        PK = XT + 4 + t * 8
        for b in range(4): k(f"v_cvt_pk_bf16_f32 v{PK+2*b}, v{A(b,t)}, v{A(b,t)+1}\nv_cvt_pk_bf16_f32 v{PK+2*b+1}, v{A(b,t)+2}, v{A(b,t)+3}")
        k("s_nop 1")
        for s_ in range(2): k(f"v_permlane16_swap_b32 v{PK+4*s_}, v{PK+4*s_+2}\nv_permlane16_swap_b32 v{PK+4*s_+1}, v{PK+4*s_+3}")
        for s_ in range(2): k(f"buffer_store_dwordx4 {vr(PK+4*s_,4)}, v{V_XA}, {sr(SRD_A,4)}, s{86+t} offen offset:{s_*64}")

def build_mega(instr=False, opt=None, name="mega_kernel"):
    opt = opt or {}
    k = Mega(name, 256, 256, LDS_TOTAL, vgpr=256, agpr=256, sgpr=102)
    k.instr = instr; k.names = []; k.only = opt.get("only")
    end = k.label("end")
    far = k.label("go")
    if opt.get("diag2") is not None: k("s_memrealtime s[72:73]")
    k(f"s_cmp_lt_u32 s2, 256\ns_cbranch_scc1 {far}\ns_endpgm\n{far}:")
    if opt.get("fused", 1):
        code_prefetch_setup(k, name)
        k("v_and_b32 v104, 63, v0\nv_lshlrev_b32 v105, 4, v104\nv_lshlrev_b32 v254, 5, v0")
        k("global_load_dword a232, v254, s[100:101]")
        k("s_load_dwordx2 s[96:97], s[0:1], 88")
        if opt.get("dbgout"): k("s_load_dwordx2 s[72:73], s[0:1], 88")
    k("s_load_dwordx8 s[4:11], s[0:1], 0")
    k("s_load_dwordx2 s[12:13], s[0:1], 64")
    k("s_load_dwordx2 s[14:15], s[0:1], 40")
    k("s_load_dwordx4 s[16:19], s[0:1], 48")
    k("s_load_dwordx2 s[98:99], s[0:1], 72")
    k("s_load_dwordx2 s[24:25], s[0:1], 80")
    k("s_load_dwordx2 s[28:29], s[0:1], 96")
    if instr: k(f"v_mov_b32 v{VSTAMP}, 0")
    ids(k)
    k(f"s_lshr_b32 s80, s{S_IDX}, 2\ns_add_u32 s{S_R4}, s80, s{S_IDX}\ns_and_b32 s81, s{S_IDX}, 3\ns_lshl_b32 s81, s81, 1\ns_add_u32 s{S_R8}, s80, s81")
    if opt.get("g3map", 0):
        k(f"s_bfe_u32 s{S_RB3}, s{S_XCD}, 0x10001\ns_lshl_b32 s{S_RB3}, s{S_RB3}, 2\ns_lshr_b32 s80, s{S_IDX}, 3\ns_add_u32 s{S_RB3}, s{S_RB3}, s80")
        k(f"s_and_b32 s{S_FT}, s{S_XCD}, 1\ns_lshl_b32 s{S_FT}, s{S_FT}, 4\ns_lshr_b32 s81, s{S_XCD}, 2\ns_lshl_b32 s81, s81, 3\ns_add_u32 s{S_FT}, s{S_FT}, s81\ns_and_b32 s81, s{S_IDX}, 7\ns_add_u32 s{S_FT}, s{S_FT}, s81")
        k(f"s_add_u32 s72, s80, s{S_IDX}\ns_lshl_b32 s80, s80, 1\ns_add_u32 s73, s80, s{S_IDX}")
    else:
        k(f"s_and_b32 s80, s{S_IDX}, 3\ns_lshl_b32 s{S_FT}, s{S_XCD}, 2\ns_add_u32 s{S_FT}, s{S_FT}, s80\ns_lshr_b32 s{S_RB3}, s{S_IDX}, 2")
    if opt.get("fused", 1):
        for x in code_prefetch_txt(name, 105, 254, 80): k(x)
    k.stamp("start")
    g1 = (phase_front_fused if opt.get("fused", 1) else phase_front)(k, opt, name)
    g2 = (phase_gemm1s if opt.get('split', 1) else phase_gemm1)(k, g1, opt)
    g3 = phase_gemm2(k, g2, opt)
    g4 = phase_gemm3(k, g3, opt)
    (phase_gemm4p if opt.get('g4_pair', 1) else phase_gemm4)(k, g4, opt)
    if opt.get("diag2") is not None:
        lp, sk = k.label("dg"), k.label("dgs")
        if opt["diag2"] >= 0: k(f"s_cmp_lg_u32 s2, {opt['diag2']}\ns_cbranch_scc1 {sk}")
        k(f"{lp}:\ns_memrealtime s[0:1]\ns_waitcnt lgkmcnt(0)\ns_sub_u32 s87, s0, s72\ns_cmp_lt_u32 s87, 10000\ns_cbranch_scc1 {lp}\n{sk}:")
    elif opt.get("diag"):
        a_, b_ = opt["diag"]
        k(f"v_readlane_b32 s84, v{VSTAMP}, 0\nv_readlane_b32 s85, v{VSTAMP}, {a_}\nv_readlane_b32 s86, v{VSTAMP}, {b_}\ns_nop 3")
        k("s_sub_u32 s86, s86, s85\ns_add_u32 s86, s86, 10000")
        lp = k.label("dg")
        k(f"{lp}:\ns_memrealtime s[0:1]\ns_waitcnt lgkmcnt(0)\ns_sub_u32 s87, s0, s84\ns_cmp_lt_u32 s87, s86\ns_cbranch_scc1 {lp}")
    elif instr:
        k("s_waitcnt vmcnt(0)")
        k.stamp("end")
        k(f"s_add_u32 s84, s{P_WS}, {WS_DBG}\ns_addc_u32 s85, s{P_WS+1}, 0\ns_mov_b32 s86, 0x100000\ns_mov_b32 s87, 0x20000")
        k(f"s_lshl_b32 s88, s2, 2\ns_add_u32 s88, s88, s{S_WAVE}\ns_lshl_b32 s88, s88, 8")
        lane_id(k, 1)
        k("v_lshlrev_b32 v1, 2, v1")
        k(f"buffer_store_dword v{VSTAMP}, v1, s[84:87], s88 offen")
        if opt.get("dbgout"):
            sk = k.label("nodbg")
            k(f"s_lshl_b32 s88, s2, 2\ns_add_u32 s88, s88, s{S_WAVE}\ns_cmp_lg_u32 s88, {opt['dbgout']*4}\ns_cbranch_scc1 {sk}")
            k("s_mov_b32 s84, s72\ns_mov_b32 s85, s73\ns_mov_b32 s86, 64\ns_mov_b32 s87, 0x20000")
            k(f"v_readlane_b32 s89, v{VSTAMP}, 0\ns_nop 3\nv_subrev_u32 v2, s89, v{VSTAMP}")
            k("buffer_store_dword v2, v1, s[84:87], 0 offen offset:12")
            k(f"{sk}:")
    k("s_endpgm")
    k(f"{name}_end:")
    return k
```

```python
from asmlib import *
MF = "v_mfma_f32_16x16x32_bf16"

class Item:
    __slots__ = ("kind", "txt", "key", "lgkm")
    def __init__(self, kind, txt=None, key=None, lgkm=None):
        self.kind = kind; self.txt = txt; self.key = key; self.lgkm = lgkm
def T(txt): return Item("txt", txt)
def VM(txt, key): return Item("vm", txt, key)
def WVM(keys, lgkm=None): return Item("wvm", None, keys, lgkm)
def is_vm(x): return x.startswith("buffer_") or x.startswith("global_")

class Txt:
    def __init__(self): self.L = []
    def __call__(self, s): self.L += [x.strip() for x in s.split("\n") if x.strip()]

def win_mask(sizes):
    out, b = [], 0
    for w in sizes:
        out += [(b, w - 1)] * w; b += w
    return out

class Sched:
    pro_units = 0; ramp_rate = 99; read_margin = 8; lookahead = 99
    step_extra = None; late = None; last_reads = (); pre_loop_txt = (); drop = ()
    pre_dma = 0
    phase = None
    gate_min = {}
    w_off = None; t_off = None; sub_stride = 1024
    first_flag = ''
    wreg = staticmethod(ar); wbase = 0
    pub0 = ()
    fine = 0
    bar_frac = 0.3
    stamp_every = 0; tag = ''
    def __init__(self):
        self.steps = []; self.stage_units = {}; self.stage_slot = {}; self.tok_units = {}; self.tok_slot = {}
        self.late = {}
    lead_D = None
    s_start = None
    gates = ()
    tile_of = staticmethod(lambda key: key)
    def lead_init(self, k, s_r, s_tmp):
        D = self.lead_D
        for m in range(4):
            d = self.s_dl + m
            k(f"s_sub_u32 s{s_tmp}, {m}, s{s_r}\ns_and_b32 s{s_tmp}, s{s_tmp}, 3")
            k(f"s_cmp_eq_u32 s{s_tmp}, 1\ns_cselect_b32 s{d}, {2+D}, {1+D}")
            k(f"s_cmp_eq_u32 s{s_tmp}, 0\ns_cselect_b32 s{d}, 0, s{d}")
    def pos_txt(self, s_dst, kt):
        KT = self.KT
        pow2 = KT & (KT - 1) == 0
        if self.lead_D is not None:
            assert self.s_start is None
            if kt < 2 + self.lead_D:
                return [f"s_sub_u32 s{s_dst}, {kt + KT}, s{self.s_dl + kt % 4}", f"s_sub_u32 s{self.s_ptmp}, s{s_dst}, {KT}", f"s_min_u32 s{s_dst}, s{s_dst}, s{self.s_ptmp}"]
            return [f"s_sub_u32 s{s_dst}, {kt}, s{self.s_dl + kt % 4}"]
        base, mask = self.wins[kt]
        if self.phase is not None:
            s_phi, s_r = self.phase
            t_ = self.s_ptmp
            o = [f"s_add_u32 s{s_dst}, s{s_phi}, {kt - base}", f"s_add_u32 s{t_}, s{s_dst}, s{s_r}", f"s_and_b32 s{t_}, s{t_}, 3",
                 f"s_and_b32 s{s_dst}, s{s_dst}, {mask & ~3}", f"s_or_b32 s{s_dst}, s{s_dst}, s{t_}"]
            if base: o.append(f"s_add_u32 s{s_dst}, s{s_dst}, {base}")
            return o
        if mask == 0:
            if self.s_start is None: return [f"s_mov_b32 s{s_dst}, {base}"]
            o = [f"s_add_u32 s{s_dst}, s{self.s_start}, {base}"]
        else:
            o = [f"s_add_u32 s{s_dst}, s{self.s_rot if mask > 3 else self.s_rot2}, {kt - base}", f"s_and_b32 s{s_dst}, s{s_dst}, {mask}"]
            if base: o.append(f"s_add_u32 s{s_dst}, s{s_dst}, {base}")
            if self.s_start is None: return o
            o.append(f"s_add_u32 s{s_dst}, s{s_dst}, s{self.s_start}")
        if pow2: o.append(f"s_and_b32 s{s_dst}, s{s_dst}, {KT-1}")
        else: o += [f"s_sub_u32 s{self.s_ptmp}, s{s_dst}, {KT}", f"s_min_u32 s{s_dst}, s{s_dst}, s{self.s_ptmp}"]
        return o
    def pos_items(self, s_dst, kt, stride):
        return [T(x) for x in self.pos_txt(s_dst, kt)] + [T(f"s_mul_i32 s{s_dst}, s{s_dst}, {stride}")]
    def _dma_list(self):
        return [(s, i) for s in sorted(self.stage_units) for i in range(len(self.stage_units[s]))]
    def prefetch(self, k, n):
        for s, i in self._dma_list()[self.pre_dma:self.pre_dma + n]:
            for x in self.stage_units[s][i]:
                if x.kind == "vm": k("s_nop 0")
                k(x.txt)
        self.pre_dma += n
    def prefetch_txt(self, n):
        t = Txt(); self.prefetch(t, n); return [x for x in t.L if x != "s_nop 0"]

    def run(self, k):
        c = self
        N = len(c.steps)
        sfirst, slast, tfirst, tlast = {}, {}, {}, {}
        for i, st in enumerate(c.steps):
            for s in st["stages"]: sfirst.setdefault(s, i); slast[s] = i
            for t in st["toks"]: tfirst.setdefault(t, i); tlast[t] = i
        bars = {}
        for s, f in sfirst.items():
            if s not in c.pub0: bars.setdefault(f - 1, []).append(s)
        barsteps = sorted(bars)
        units = {"dma": [], "tok": []}
        prev = {}
        skip = c.pre_dma
        for s in sorted(c.stage_units):
            sl = c.stage_slot[s]
            e = -1 if sl not in prev else min(b for b in barsteps if b >= slast[prev[sl]])
            prev[sl] = s
            for i, u in enumerate(c.stage_units[s]):
                if skip: skip -= 1; assert e == -1; continue
                units["dma"].append((sfirst[s] - 1, e, "dma", u))
        prev = {}
        for key in sorted(c.tok_units, key=lambda q: (tfirst[q], q)):
            sl = c.tok_slot[key]
            e = -1 if sl not in prev else tlast[prev[sl]] + 1
            e = max(e, tfirst[key] - c.lookahead, -1)
            for gt, gm in c.gate_min.items():
                if c.tile_of(key) >= gt: e = max(e, gm)
            prev[sl] = key
            for u in c.tok_units[key]: units["tok"].append((tfirst[key], e, "tok", u, c.tile_of(key)))
        issue = {}
        pos, cnt, cap = -1, 0, c.pro_units
        rate = c.ramp_rate if callable(c.ramp_rate) else (lambda s: c.ramp_rate)
        while units["dma"] or units["tok"]:
            cand = [q[0] for q in units.values() if q and q[0][1] <= pos]
            if cand and cnt < cap:
                u = min(cand, key=lambda u: (u[0], 0 if u[2] == "dma" else 1))
                issue.setdefault(pos, []).append(u); units[u[2]].pop(0); cnt += 1
                assert pos < u[0] or pos == -1, ("late unit", u[:3], pos)
            else:
                pos += 1; cnt = 0; cap = rate(pos)
        gate_at = {}
        for gt, gp, gi in c.gates:
            gs_ = min(st for st, us in issue.items() if any(u[2] == "tok" and u[4] >= gt for u in us))
            assert gs_ >= 1 and gs_ not in gate_at, gs_
            gate_at[gs_] = (gp, gi)
            if gt in c.gate_min: assert gs_ >= c.gate_min[gt], (gt, gs_)
        def read_items(step):
            out = []
            for j, (va, o0, o1, _) in enumerate(c.steps[step]["frags"]):
                for r, off in enumerate((o0, o1)):
                    assert 0 <= off < 65536, off
                    out.append(Item("ds", f"ds_read_b64_tr_b16 {c.wreg(c.wbase+c.wf(step % 2, j)+2*r,2)}, v{va} offset:{off}", (step, j)))
            return out
        def bar(step): return [WVM([("dma", s) for s in bars[step]], lgkm=(0 if c.fine else None)), T("s_barrier")]
        def conv(x):
            if isinstance(x, Item): return x
            return VM(x, ("extra", 0)) if is_vm(x) else T(x)
        pro = []
        for u in issue.get(-1, []):
            for x in u[3]:
                if x.kind == "vm" and x.txt.endswith("lds"): pro.append(T("s_nop 0"))
                pro.append(x)
        pro += [conv(x) for x in c.pre_loop_txt]
        pro += (bar(-1) if -1 in bars else []) + read_items(0)
        touched = set(c.acc_init) if hasattr(c, "acc_init") else set()
        def make_step(step):
            st = c.steps[step]
            newt = [("tok", t) for t in st["toks"] if tfirst[t] == step]
            out = [WVM(newt, lgkm=0)] if not c.fine else ([WVM(newt)] if newt else [])
            mf = []
            pre = {}
            nf = len(st["frags"])
            for j, (_, _, _, ms) in enumerate(st["frags"]):
                if c.fine and j % c.fine == 0: pre[len(mf)] = Item("wds", None, (step, min(nf - 1, j + c.fine - 1)))
                for acc, tr in (ms if j % 2 == 0 else ms[::-1]):
                    cin = acc if acc in touched else "0"
                    touched.add(acc)
                    mf.append(T(f"{MF} {acc}, {c.wreg(c.wbase+c.wf(step%2, j),4)}, {ar(tr,4)}, {cin}"))
            n = len(mf)
            gaps = [[] for _ in range(n)]
            g0 = 0
            if step in bars:
                gb = int(n * c.bar_frac) if c.fine else 0
                gaps[gb] += bar(step); g0 = gb + 1
            us = issue.get(step, [])
            a = [u for u in us if u[2] == "dma"]; b_ = [u for u in us if u[2] == "tok"]
            if us and min(u[0] for u in us) > step + 1:
                seq = []
                while a or b_:
                    if b_: seq.append(b_.pop(0))
                    if a: seq.append(a.pop(0))
            else: seq = us
            B = []
            if step in gate_at: B += [conv(x) for x in gate_at[step][1]]
            for u in seq: B += u[3]
            B += [conv(x) for x in c.late.get(step, [])]
            if step + 1 in gate_at: B = B[:len(gate_at[step][1]) if step in gate_at else 0] + [conv(x) for x in gate_at[step + 1][0]] + B[len(gate_at[step][1]) if step in gate_at else 0:]
            A = read_items(step + 1) if step + 1 < N else [T(x) for x in c.last_reads]
            X = [conv(x) for x in (c.step_extra(step) if c.step_extra else [])]
            want = []
            ra = max(1, n - (0 if c.fine else c.read_margin) - g0)
            for i, x in enumerate(A): want.append((g0 + i * ra / len(A), 0, i, x))
            for i, x in enumerate(B): want.append((g0 + (i + 0.5) * (n - g0) / len(B), 1, i, x))
            for i, x in enumerate(X): want.append((g0 + (i + 0.25) * (n - g0) / len(X), 2, i, x))
            want.sort(key=lambda w: (w[0], w[1], w[2]))
            cap = max(1, -(-len(want) // (n - g0)))
            g = g0
            for pos_, _, _, x in want:
                g = max(g, min(n - 1, int(pos_)))
                while g < n - 1 and len(gaps[g]) >= cap: g += 1
                gaps[g].append(x)
            for i in range(n):
                if i in pre: out.append(pre[i])
                out.append(mf[i])
                prev = None
                for x in gaps[i]:
                    if x.kind == "vm" and x.txt.endswith("lds") and prev is not None and prev.txt and " m0," in prev.txt:
                        out.append(T("s_nop 0"))
                    out.append(x); prev = x
            return out
        issued = []
        ds = []
        def emit(items):
            for x in items:
                if x.kind == "wds":
                    idx = [i for i, kk in enumerate(ds) if kk == x.key]
                    if idx:
                        n = min(15, len(ds) - 1 - idx[-1])
                        k(f"s_waitcnt lgkmcnt({n})")
                        del ds[:len(ds) - n]
                elif x.kind == "wvm":
                    if x.lgkm == 0: ds.clear()
                    n = 63
                    for key in x.key:
                        idx = [i for i, kk in enumerate(issued) if kk == key]
                        n = min(n, len(issued) - 1 - idx[-1] if idx else len(issued))
                    parts = ([f"vmcnt({n})"] if x.key else []) + ([f"lgkmcnt({x.lgkm})"] if x.lgkm is not None else [])
                    k("s_waitcnt " + " ".join(parts))
                else:
                    if x.kind == "vm": issued.append(x.key)
                    if x.kind == "ds": ds.append(x.key)
                    if any(d in x.txt for d in c.drop): continue
                    k(x.txt)
        emit(pro)
        for s in range(N):
            if c.stamp_every and s % c.stamp_every == 0: k.stamp(f"{c.tag} step {s}")
            emit(make_step(s))

def std_sched(c):
    NB, TB, KS, SPK, KT, NS, R = c.NB, c.TB, c.KS, c.SPK, c.KT, c.NS, c.R
    for kt in range(KT):
        us = []
        sw = c.s_kw + kt % 2
        for i, (vo, loff, goff) in enumerate(c.dma):
            g = (c.w_off(sw, kt) if c.w_off else c.pos_items(sw, kt, c.w_stride)) if i == 0 else []
            g += [T(f"s_add_u32 m0, s{c.s_wbase}, {c.slot_addr(kt % NS) + loff - goff}"),
                  VM(f"buffer_load_dwordx4 v{vo}, {sr(c.srd_w,4)}, s{sw} offen" + (f" offset:{goff}" if goff else "") + (c.first_flag if c.wins[kt][0] == kt else "") + " lds", ("dma", kt))]
            us.append(g)
        c.stage_units[kt] = us; c.stage_slot[kt] = kt % NS
        for sp in range(SPK):
            step = kt * SPK + sp
            us = []
            st_ = c.s_kt + kt % 2
            for ks in range(KS):
                for t in range(TB):
                    g = (c.t_off(st_, kt) if c.t_off else c.pos_items(st_, kt, SPK * KS * 1024)) if (sp == 0 and ks == 0 and t == 0) else []
                    g.append(VM(f"buffer_load_dwordx4 {ar(c.tf(step % R, ks, t),4)}, v{c.v_tok[t]}, {sr(c.srd_t,4)}, s{st_} offen offset:{(sp*KS+ks)*c.sub_stride} sc1", ("tok", step)))
                    us.append(g)
            c.tok_units[step] = us; c.tok_slot[step] = step % R
            frags = []
            for ks in range(KS):
                for b in range(NB):
                    va, o0 = c.rd(kt % NS, b, sp * KS + ks, 0); _, o1 = c.rd(kt % NS, b, sp * KS + ks, 1)
                    frags.append((va, o0, o1, [(c.acc(b, t), c.tf(step % R, ks, t)) for t in range(TB)]))
            c.steps.append(dict(frags=frags, stages=[kt], toks=[step]))
    c.wf = lambda buf, j: (buf * NB * KS + j) * 4
    c.tile_of = lambda key: key // SPK
```

```python
import sys
from asmlib import *
from gemm import *
from layout import *
LOG2E = 1.4426950408889634
P_X, P_WQKV, P_WPHI, P_WO, P_W1, P_W3, P_W2, P_OUT, P_WS = 4, 6, 8, 10, 14, 16, 18, 24, 28
P_DBG, S_MB, S_MO = 96, 77, 79
P_C, P_WMOD = 12, 98
S_WAVE, S_XCD, S_IDX = 3, 30, 31
SRD_W, SRD_T, SRD_A, SRD_B, SRD_C, SRD_D, SRD_F = 32, 36, 40, 44, 48, 52, 56
S_KW, S_KT, S_WB, S_ROT, S_TMP, S_ROT2 = 60, 62, 76, 77, 78, 79
S_RB1, S_HP, S_RB2, S_NT, S_RB3, S_FT = 26, 27, 26, 27, 22, 23
S_R8, S_R4 = 20, 21
VSTAMP = 255
L_WPH, L_UTC = 110592, 105472
L_UT3, L_MV, L_R2 = 114688, 128000, 129792
LDS_TOTAL = 163584

class Mega(Kernel):
    nst = 0
    only = None
    def stamp(self, name=""):
        if not self.instr: return
        if self.only is not None and not any(name.startswith(o) for o in self.only): return
        if self.only is None and name[:3] in ("kp ", "qp "): return
        self("s_waitcnt lgkmcnt(0)\ns_memrealtime s[0:1]\ns_waitcnt lgkmcnt(0)")
        self(f"v_writelane_b32 v{VSTAMP}, s0, {self.nst}")
        self("s_nop 3\ns_memtime s[0:1]\ns_waitcnt lgkmcnt(0)")
        self(f"v_writelane_b32 v{VSTAMP}, s0, {self.nst + 32}")
        self.names.append(name); self.nst += 1

def lane_id(k, v):
    k(f"v_mbcnt_lo_u32_b32 v{v}, -1, 0\nv_mbcnt_hi_u32_b32 v{v}, -1, v{v}")

def code_prefetch_setup(k, name, s_pc=100):
    lab = k.label("pc")
    k(f"s_getpc_b64 s[{s_pc}:{s_pc+1}]")
    k(f"{lab}:")
    k(f"s_sub_u32 s{s_pc}, s{s_pc}, {lab}-{name}\ns_subb_u32 s{s_pc+1}, s{s_pc+1}, 0")
def code_prefetch_txt(name, v_l16, vt, s_tmp, s_idx=S_IDX, s_wave=S_WAVE, s_pc=100, junk="a232"):
    return [f"s_lshl_b32 s{s_tmp}, s{s_idx}, 2", f"s_add_u32 s{s_tmp}, s{s_tmp}, s{s_wave}", f"s_lshl_b32 s{s_tmp}, s{s_tmp}, 10",
            f"v_add_u32 v{vt}, s{s_tmp}, v{v_l16}", f"v_min_u32 v{vt}, {name}_end-{name}-4, v{vt}",
            f"global_load_dword {junk}, v{vt}, s[{s_pc}:{s_pc+1}]"]

def count_vm(k, mark):
    return sum(1 for x in k.L[mark:] if is_vm(x))
def publish(k, s_off, vt, mark=None):
    k(f"v_mov_b32 v{vt}, 1\nv_mov_b32 v{vt+1}, 0")
    n = 0 if mark is None else count_vm(k, mark)
    assert n < 64
    k(f"s_waitcnt vmcnt({n})")
    k(f"buffer_store_dword v{vt}, v{vt+1}, {sr(SRD_F,4)}, s{s_off} offen sc1")

def spin(k, loads, regs, vt, s_cnt=96):
    top, ok = k.label("poll"), k.label("ok")
    k(f"s_mov_b32 s{s_cnt}, 0")
    k(f"{top}:")
    for x in loads: k(x)
    k("s_waitcnt vmcnt(0)")
    if len(regs) == 1: k(f"v_cmp_eq_u32 vcc, 0, v{regs[0]}")
    else:
        k(f"v_min_u32 v{vt}, v{regs[0]}, v{regs[1]}")
        for x in regs[2:]: k(f"v_min_u32 v{vt}, v{vt}, v{x}")
        k(f"v_cmp_eq_u32 vcc, 0, v{vt}")
    k(f"s_add_u32 s{s_cnt}, s{s_cnt}, 1")
    k(f"s_cmp_eq_u64 vcc, 0\ns_cbranch_scc1 {ok}")
    k(f"s_sleep {SLEEP}\ns_cmp_lt_u32 s{s_cnt}, 0x200000\ns_cbranch_scc1 {top}")
    k(f"{ok}:")

def wait_flags(k, polls, vt, s_cnt=96):
    top, ok = k.label("poll"), k.label("ok")
    k(f"s_mov_b32 s{s_cnt}, 0")
    k(f"{top}:")
    r = vt
    regs = []
    for va, so, ndw in polls:
        if ndw == 4: r = (r + 1) // 2 * 2
        k(f"buffer_load_dword{'x4' if ndw == 4 else ''} {vr(r,ndw)}, v{va}, {sr(SRD_F,4)}, s{so} offen sc1")
        regs += list(range(r, r + ndw)); r += ndw
    k("s_waitcnt vmcnt(0)")
    for x in regs[1:]: k(f"v_min_u32 v{regs[0]}, v{regs[0]}, v{x}")
    k(f"v_cmp_eq_u32 vcc, 0, v{regs[0]}")
    k(f"s_add_u32 s{s_cnt}, s{s_cnt}, 1")
    k(f"s_cmp_eq_u64 vcc, 0\ns_cbranch_scc1 {ok}")
    k(f"s_sleep {SLEEP}\ns_cmp_lt_u32 s{s_cnt}, 0x200000\ns_cbranch_scc1 {top}")
    k(f"{ok}:")

def staged_wait(k, c, T_, v_addr, s_off, vf, prod_of, dup16=False, skip_first=0, s_m=97, pub=None):
    ld = f"buffer_load_dword v{vf}, v{v_addr}, {sr(SRD_F,4)}, s{s_off} offen sc1"
    if T_ is None:
        spin(k, [ld], [vf], 0); return
    k(f"s_mov_b32 s{s_m}, 0")
    for kt in range(skip_first, T_):
        for x in c.pos_txt(80, kt): k(x)
        for x in prod_of(80, 81): k(x)
        k(f"s_or_b32 s{s_m}, s{s_m}, s81")
    if dup16: k(f"s_lshl_b32 s81, s{s_m}, 16\ns_or_b32 s{s_m}, s{s_m}, s81")
    top, ok = k.label("poll"), k.label("ok")
    if pub:
        mk = len(k.L); k(ld); publish(k, pub[0], pub[1], mk)
        k("s_waitcnt vmcnt(1)")
        k(f"v_cmp_eq_u32 vcc, 0, v{vf}\ns_nop 0")
        k(f"s_and_b32 s81, vcc_lo, s{s_m}\ns_cbranch_scc0 {ok}")
    k(f"s_mov_b32 s96, 0\n{top}:")
    k(ld)
    k("s_waitcnt vmcnt(0)")
    k(f"v_cmp_eq_u32 vcc, 0, v{vf}")
    k("s_add_u32 s96, s96, 1")
    k(f"s_and_b32 s81, vcc_lo, s{s_m}\ns_cbranch_scc0 {ok}")
    k(f"s_sleep {SLEEP}\ns_cmp_lt_u32 s96, 0x200000\ns_cbranch_scc1 {top}")
    k(f"{ok}:")
    add_gate(k, c, T_, ld, vf)
def add_gate(k, c, tile, ld, vf):
    m = Txt(); m.label = k.label
    okl = k.label("gok")
    m(f"v_cmp_eq_u32 vcc, 0, v{vf}\ns_cmp_eq_u64 vcc, 0\ns_cbranch_scc1 {okl}")
    spin(m, [ld], [vf], 0)
    m(f"{okl}:")
    c.gates = list(c.gates) + [(tile, [VM(ld, ("gate", tile))], [WVM([("gate", tile)]), T("\n".join(m.L))])]
one_prod = lambda sp, st: [f"s_lshl_b32 s{st}, 1, s{sp}"]

def allreduce_q(k, op, x, tmp):
    k(f"v_mov_b32 v{tmp}, v{x}\ns_nop 1")
    k(f"v_permlane32_swap_b32 v{x}, v{tmp}")
    k(f"s_nop 1\n{op} v{x}, v{x}, v{tmp}")
    k(f"v_mov_b32 v{tmp}, v{x}\ns_nop 1")
    k(f"v_permlane16_swap_b32 v{x}, v{tmp}")
    k(f"s_nop 1\n{op} v{x}, v{x}, v{tmp}")

def treduce4(k, op, A):
    a, b, c, d = A
    k("s_nop 1")
    k(f"v_permlane32_swap_b32 v{a}, v{b}\nv_permlane32_swap_b32 v{c}, v{d}")
    k("s_nop 1")
    k(f"{op} v{a}, v{a}, v{b}\n{op} v{c}, v{c}, v{d}")
    k("s_nop 1")
    k(f"v_permlane16_swap_b32 v{a}, v{c}")
    k("s_nop 1")
    k(f"{op} v{a}, v{a}, v{c}")
    k(f"v_mov_b32 v{c}, v{a}")
    k("s_nop 1")
    k(f"v_permlane16_swap_b32 v{a}, v{c}")
    k("s_nop 1")
    k(f"v_mov_b32 v{b}, v{a}\nv_mov_b32 v{d}, v{c}")
    k("s_nop 1")
    k(f"v_permlane32_swap_b32 v{a}, v{b}\nv_permlane32_swap_b32 v{c}, v{d}")
    k("s_nop 1")

def treduce4x2(k, ops, As):
    A, B = Txt(), Txt()
    treduce4(A, ops[0], As[0]); treduce4(B, ops[1], As[1])
    def split(L):
        out, cur = [], []
        for x in L:
            if x.startswith("s_nop"): out.append(cur); cur = []
            else: cur.append(x)
        out.append(cur); return out
    for a, b in zip(split(A.L), split(B.L)):
        for x in a + b: k(x)
        k("s_nop 0" if len(a) >= 1 else "s_nop 1")

def red8(k, x):
    for m in ("quad_perm:[1,0,3,2]", "quad_perm:[2,3,0,1]", "row_half_mirror"):
        k(f"s_nop 1\nv_add_f32_dpp v{x}, v{x}, v{x} {m} row_mask:0xf bank_mask:0xf")

def round_bf16(k, v):
    k(f"v_cvt_pk_bf16_f32 v{v}, v{v}, v{v}\nv_and_b32 v{v}, 0xffff0000, v{v}")

S_DLA, S_DLB, S_PTMP = 71, 6, 75
def order(c, k, opt, tag, default):
    o = opt.get(tag + "_ord", default)
    c.first_flag = opt.get(tag + "_ff", "")
    c.tag = tag; c.stamp_every = opt.get(tag + "_se", 0)
    c.fine = opt.get(tag + "_fine", opt.get("fine", 0)); c.bar_frac = opt.get("bar_frac", 0.3)
    c.s_rot, c.s_rot2 = S_R8, S_R4
    if o[0] == "lead":
        c.lead_D, c.s_dl = o[1], S_DLA
    else:
        c.wins = win_mask(o[1])
        if o[0] == "phase": c.phase = (S_RB3, S_IDX)
        elif o[2]:
            c.s_start = S_HP
            c.s_rot = c.s_rot2 = S_RB3
def common_gemm(c):
    c.srd_w, c.srd_t = SRD_W, SRD_T
    c.s_kw, c.s_kt, c.s_wbase, c.s_ptmp = S_KW, S_KT, S_WB, S_PTMP

def setup_gemm1(k, opt):
    c = Sched(); common_gemm(c)
    NS, R = opt.get("g1_NS", 4), opt.get("g1_R", 4)
    STAGE = 25344
    c.V_RD, c.V_DMA, c.V_TOK, c.LANE, c.L16, c.VT = 96, 98, 102, 104, 105, 106
    V_RD, V_DMA, V_TOK, LANE, L16, VT = c.V_RD, c.V_DMA, c.V_TOK, c.LANE, c.L16, 110
    k(f"v_lshlrev_b32 v{L16}, 4, v{LANE}")
    c.lead_D, c.s_dl = opt.get("D", 0), S_DLA
    if opt.get("uselead", 0): c.lead_init(k, S_R4, 81)
    c.lead_D = None
    order(c, k, opt, "g1", ["win", [8, 8], 0])
    k(f"s_lshr_b32 s80, s{S_WAVE}, 1\ns_and_b32 s81, s{S_WAVE}, 1")
    k(f"v_lshrrev_b32 v{VT+1}, 3, v{LANE}")
    k(f"v_and_b32 v{VT+2}, 4, v{VT+1}")
    k(f"v_bfe_u32 v{VT+3}, v{VT+1}, 1, 1\nv_or_b32 v{VT+2}, v{VT+2}, v{VT+3}")
    k(f"v_and_b32 v{VT+3}, 1, v{VT+1}\nv_lshl_or_b32 v{VT+2}, v{VT+3}, 1, v{VT+2}")
    k(f"v_mul_u32_u24 v{VT+2}, {4*6144}, v{VT+2}")
    k(f"v_and_b32 v{VT+3}, 7, v{LANE}\nv_lshl_add_u32 v{VT+2}, v{VT+3}, 4, v{VT+2}")
    k("s_lshl_b32 s82, s80, 5\ns_lshl_b32 s83, s81, 1\ns_add_u32 s82, s82, s83\ns_mul_i32 s82, s82, 6144")
    k(f"s_lshl_b32 s83, s{S_HP}, 7\ns_add_u32 s82, s82, s83")
    k(f"v_add_u32 v{V_DMA}, s82, v{VT+2}")
    k(f"v_add_u32 v{V_DMA+1}, 6144, v{V_DMA}\nv_add_u32 v{V_DMA+2}, 4096, v{V_DMA}\nv_add_u32 v{V_DMA+3}, {6144+4096}, v{V_DMA}")
    k(f"v_bfe_u32 v{VT+1}, v{LANE}, 2, 2\nv_mul_u32_u24 v{VT+1}, 1056, v{VT+1}")
    k(f"v_lshrrev_b32 v{VT+2}, 5, v{LANE}\nv_lshl_add_u32 v{VT+1}, v{VT+2}, 9, v{VT+1}")
    k(f"v_bfe_u32 v{VT+2}, v{LANE}, 4, 1\nv_lshl_add_u32 v{VT+1}, v{VT+2}, 7, v{VT+1}")
    k(f"v_and_b32 v{VT+3}, 3, v{LANE}\nv_lshl_add_u32 v{V_RD}, v{VT+3}, 3, v{VT+1}")
    k(f"v_add_u32 v{V_RD+1}, {2*STAGE}, v{V_RD}")
    k(f"s_lshl_b32 s82, s{S_RB1}, 3\ns_lshl_b32 s83, s{S_WAVE}, 1\ns_add_u32 s82, s82, s83\ns_lshl_b32 s82, s82, 15")
    k(f"v_add_u32 v{V_TOK}, s82, v{L16}\nv_add_u32 v{V_TOK+1}, 0x8000, v{V_TOK}")
    k(f"s_mul_i32 s{S_WB}, s80, 4224\ns_mul_i32 s82, s81, 2112\ns_add_u32 s{S_WB}, s{S_WB}, s82")
    c.NB, c.TB, c.KS, c.SPK, c.KT, c.NS, c.R = 12, 2, 1, 2, 16, NS, R
    c.acc = lambda b, t: vr((b * 2 + t) * 4, 4)
    c.tf = lambda slot, ks, t: 96 + (slot * 2 + t) * 4
    c.rd = lambda sl, b, sub, r: (V_RD + sl // 2, (sl % 2) * STAGE + (b // 4) * 8448 + sub * 4224 + r * 256 + (b % 4) * 32)
    c.slot_addr = lambda sl: sl * STAGE
    c.dma = [(V_DMA, 0, 0), (V_DMA + 1, 1056, 0), (V_DMA, 8448, 2048), (V_DMA + 1, 8448 + 1056, 2048), (V_DMA + 2, 16896, 0), (V_DMA + 3, 16896 + 1056, 0)]
    c.v_tok = [V_TOK, V_TOK + 1]
    c.w_stride = 64 * 6144
    c.drop = opt.get("g1_drop", ())
    c.pro_units, c.ramp_rate, c.read_margin = opt.get("g1_pro", 6), opt.get("g1_ramp", 6), opt.get("g1_rm", 6)
    std_sched(c)
    return c

def setup_gemm1s(k, opt):
    c = Sched(); common_gemm(c)
    HS = 8448; STAGE = 2 * HS
    c.V_RD, c.V_DMA, c.V_TOK, c.LANE, c.L16, c.VT = 96, 98, 102, 104, 105, 106
    V_RD, V_DMA, V_TOK, LANE, L16, VT = c.V_RD, c.V_DMA, c.V_TOK, c.LANE, c.L16, 110
    k(f"v_lshlrev_b32 v{L16}, 4, v{LANE}")
    order(c, k, opt, "g1", ["phase", [8, 8], 0])
    k(f"s_lshr_b32 s80, s{S_WAVE}, 1\ns_and_b32 s81, s{S_WAVE}, 1")
    k(f"v_lshrrev_b32 v{VT+1}, 3, v{LANE}")
    k(f"v_and_b32 v{VT+2}, 4, v{VT+1}")
    k(f"v_bfe_u32 v{VT+3}, v{VT+1}, 1, 1\nv_or_b32 v{VT+2}, v{VT+2}, v{VT+3}")
    k(f"v_and_b32 v{VT+3}, 1, v{VT+1}\nv_lshl_or_b32 v{VT+2}, v{VT+3}, 1, v{VT+2}")
    k(f"v_mul_u32_u24 v{VT+2}, {4*6144}, v{VT+2}")
    k(f"v_and_b32 v{VT+3}, 7, v{LANE}\nv_lshl_add_u32 v{VT+2}, v{VT+3}, 4, v{VT+2}")
    k("s_lshl_b32 s82, s80, 5\ns_lshl_b32 s83, s81, 1\ns_add_u32 s82, s82, s83\ns_mul_i32 s82, s82, 6144")
    k(f"s_lshl_b32 s83, s{S_HP}, 7\ns_add_u32 s82, s82, s83")
    k(f"v_add_u32 v{V_DMA}, s82, v{VT+2}")
    k(f"v_add_u32 v{V_DMA+1}, 6144, v{V_DMA}\nv_add_u32 v{V_DMA+2}, 2048, v{V_DMA}\nv_add_u32 v{V_DMA+3}, {6144+2048}, v{V_DMA}")
    k(f"v_bfe_u32 v{VT+1}, v{LANE}, 2, 2\nv_mul_u32_u24 v{VT+1}, 1056, v{VT+1}")
    k(f"v_lshrrev_b32 v{VT+2}, 5, v{LANE}\nv_lshl_add_u32 v{VT+1}, v{VT+2}, 9, v{VT+1}")
    k(f"v_bfe_u32 v{VT+2}, v{LANE}, 4, 1\nv_lshl_add_u32 v{VT+1}, v{VT+2}, 7, v{VT+1}")
    k(f"v_and_b32 v{VT+3}, 3, v{LANE}\nv_lshl_add_u32 v{V_RD}, v{VT+3}, 3, v{VT+1}")
    k(f"v_add_u32 v{V_RD+1}, {2*STAGE}, v{V_RD}")
    k(f"s_lshl_b32 s82, s{S_RB1}, 3\ns_lshl_b32 s83, s{S_WAVE}, 1\ns_add_u32 s82, s82, s83\ns_lshl_b32 s82, s82, 15")
    k(f"v_add_u32 v{V_TOK}, s82, v{L16}\nv_add_u32 v{V_TOK+1}, 0x8000, v{V_TOK}")
    k(f"s_mul_i32 s{S_WB}, s80, 4224\ns_mul_i32 s82, s81, 2112\ns_add_u32 s{S_WB}, s{S_WB}, s82")
    c.NB, c.TB, c.KS, c.SPK, c.KT, c.NS, c.R = 8, 2, 1, 2, 16, 4, 32
    c.acc = lambda b, t: vr(32 + (b * 2 + t) * 4, 4)
    c.tf = lambda slot, ks, t: (slot * 2 + t) * 4
    c.rd = lambda sl, b, sub, r: (V_RD + sl // 2, (sl % 2) * STAGE + (b // 4) * HS + sub * 4224 + r * 256 + (b % 4) * 32)
    c.slot_addr = lambda sl: sl * STAGE
    c.dma = [(V_DMA + 2, 0, 0), (V_DMA + 3, 1056, 0), (V_DMA + 2, HS, 2048), (V_DMA + 3, HS + 1056, 2048)]
    c.v_tok = [V_TOK, V_TOK + 1]
    c.w_stride = 64 * 6144
    c.drop = opt.get("g1_drop", ())
    c.pro_units, c.ramp_rate, c.read_margin, c.lookahead = opt.get("g1_pro", 8), opt.get("g1_ramp", 5), 4, opt.get("g1_la", 4)
    c.wreg, c.wbase = vr, 128
    std_sched(c)
    q = Sched(); common_gemm(q)
    q.KT = 16; order(q, k, opt, "g1", ["phase", [8, 8], 0]); q.tag = "g1b"; q.stamp_every = opt.get("g1b_se", 0)
    q.s_kw = 70
    QS = [67584 + i * HS for i in range(5)] + [L_R2 + i * HS for i in range(4)] + [i * HS for i in range(7)]
    q.Q1, q.Q2 = V_RD + 1, V_TOK
    def base(kt): return (q.Q1, 67584) if kt < 5 else ((q.Q2, L_R2) if kt < 9 else (V_RD, 0))
    for kt in range(16):
        sw = q.s_kw + kt % 2
        q.stage_units[kt] = [q.pos_items(sw, kt, c.w_stride) + [T(f"s_add_u32 m0, s{S_WB}, {QS[kt]}"), VM(f"buffer_load_dwordx4 v{V_DMA}, {sr(SRD_W,4)}, s{sw} offen lds", ("dma", kt))],
                             [T(f"s_add_u32 m0, s{S_WB}, {QS[kt] + 1056}"), VM(f"buffer_load_dwordx4 v{V_DMA+1}, {sr(SRD_W,4)}, s{sw} offen lds", ("dma", kt))]]
        q.stage_slot[kt] = kt
        va, b0 = base(kt)
        frags = [(va, QS[kt] - b0 + sub * 4224 + b * 32, QS[kt] - b0 + sub * 4224 + 256 + b * 32, [(vr((b * 2 + t) * 4, 4), ((kt * 2 + sub) * 2 + t) * 4) for t in range(2)]) for sub in range(2) for b in range(4)]
        q.steps.append(dict(frags=frags, stages=[kt] if kt != 9 else list(range(9, 16)), toks=[]))
    q.wf = lambda buf, j: (buf * 8 + j) * 4
    q.wreg, q.wbase = vr, 128
    q.pub0 = set(range(9)); q.pro_units = opt.get('q_pro', 2); q.ramp_rate = opt.get('q_ramp', 3); q.read_margin = 4; q.drop = c.drop
    c.q = q
    return c

def merge(a, b, ratio):
    out, b = [], list(b)
    for i, x in enumerate(a):
        out.append(x)
        if b and i % ratio == ratio - 1: out.append(b.pop(0))
    return out + b

def phase_gemm1s(k, c, opt):
    LANE, L16, VT = c.LANE, c.L16, c.VT
    q = c.q
    PHK, VV, SH = 0, 34816, 114688
    p = Txt()
    srd(p, SRD_A, P_WPHI, H * 2048)
    srd(p, SRD_B, P_WS, 2 << 20, WS_KVP)
    srd(p, SRD_C, P_WS, 128 << 10, WS_ZP)
    A_PW, A_VW, A_PR, A_VR, A_WR = 110, 111, 112, 113, 114
    p(f"s_lshr_b32 s80, s{S_WAVE}, 1\ns_and_b32 s81, s{S_WAVE}, 1")
    p(f"v_and_b32 v{VT}, 15, v{LANE}\ns_lshl_b32 s82, s{S_WAVE}, 5\nv_add_u32 v{VT}, s82, v{VT}")
    p(f"v_lshrrev_b32 v{VT+1}, 4, v{LANE}\nv_lshlrev_b32 v{VT+1}, 3, v{VT+1}")
    p(f"v_mul_u32_u24 v{A_PW}, 136, v{VT}\nv_add_u32 v{A_PW}, v{A_PW}, v{VT+1}")
    p(f"v_mul_u32_u24 v{A_VW}, 72, v{VT}\nv_add_u32 v{A_VW}, v{A_VW}, v{VT+1}")
    p(f"v_lshrrev_b32 v{VT}, 2, v{LANE}\nv_and_b32 v{VT+1}, 3, v{LANE}\nv_lshlrev_b32 v{VT+1}, 3, v{VT+1}")
    p(f"s_mul_i32 s82, s80, 17408\ns_lshl_b32 s83, s81, 6\ns_add_u32 s82, s82, s83")
    p(f"v_mul_u32_u24 v{A_PR}, 136, v{VT}\nv_add_u32 v{A_PR}, v{A_PR}, v{VT+1}\nv_add_u32 v{A_PR}, s82, v{A_PR}")
    p(f"s_mul_i32 s82, s80, 9216")
    p(f"v_mul_u32_u24 v{A_VR}, 72, v{VT}\nv_add_u32 v{A_VR}, v{A_VR}, v{VT+1}\nv_add_u32 v{A_VR}, s82, v{A_VR}")
    p(f"v_lshl_add_u32 v{A_WR}, v{VT}, 6, v{VT+1}\nv_add_u32 v{A_WR}, {L_WPH}, v{A_WR}")
    ONES, SEL = 116, 120
    for j in range(4): p(f"v_mov_b32 v{ONES+j}, 0x3f803f80")
    p(f"v_bfe_u32 v{VT}, v{LANE}, 2, 2\nv_lshrrev_b32 v{VT+1}, 4, v{LANE}")
    p(f"v_cmp_eq_u32 vcc, v{VT}, v{VT+1}")
    p(f"v_and_b32 v{VT}, 1, v{LANE}\nv_lshlrev_b32 v{VT}, 4, v{VT}\nv_mov_b32 v{VT+1}, 0x3f80\nv_lshlrev_b32 v{VT+1}, v{VT}, v{VT+1}")
    p(f"v_cndmask_b32 v{VT+1}, 0, v{VT+1}, vcc")
    p(f"v_and_b32 v{VT}, 2, v{LANE}\nv_cmp_eq_u32 vcc, 0, v{VT}")
    for j in (0, 1, 4, 5): p(f"v_mov_b32 v{SEL+j}, 0")
    p(f"v_cndmask_b32 v{SEL+2}, 0, v{VT+1}, vcc\nv_cndmask_b32 v{SEL+3}, v{VT+1}, 0, vcc")
    p(f"s_mov_b32 s94, {LOG2E!r}\ns_mov_b32 s95, {LOG2E!r}")
    p(f"s_lshl_b32 s84, s{S_HP}, 12\ns_lshl_b32 s85, s{S_WAVE}, 10\ns_add_u32 s84, s84, s85\ns_add_u32 s85, s85, {L_WPH}")
    c.pre_loop_txt = p.L
    c.late[4] = ["s_mov_b32 m0, s85", f"buffer_load_dwordx4 v{L16}, {sr(SRD_A,4)}, s84 offen lds"]
    for st_ in opt.get("cp1", [20]): c.late.setdefault(st_, []).extend(code_prefetch_txt(k.name, L16, 254, 80, junk="v31"))
    for st_ in opt.get("cp1b", []): q.late.setdefault(st_, []).extend(code_prefetch_txt(k.name, L16, 254, 80, junk="v252"))
    ts = opt.get("mt_step", None)
    if ts is not None:
        c.late.setdefault(ts, []).extend([f"v_mul_u32_u24 v254, 12288, v{LANE}", f"buffer_load_dword v31, v254, {sr(SRD_D,4)}, s{S_MB} offen"])
        if opt.get("wo_touch", 1):
            c.late[ts].extend([f"s_lshl_b32 s80, s2, 2", f"s_add_u32 s80, s80, s{S_WAVE}", "s_lshl_b32 s80, s80, 11",
                               f"v_and_b32 v254, 15, v{LANE}", "v_lshlrev_b32 v254, 7, v254", "v_add_u32 v254, s80, v254", f"global_load_dword v31, v254, s[{P_WO}:{P_WO+1}]"])
    nq = opt.get("q_in", 10)
    for j in range(nq // 2): c.late.setdefault(32 - nq // 2 + j, []).extend(q.prefetch_txt(2))
    wph_reads = lambda reg, b0: [f"ds_read_b64_tr_b16 {reg(b0+(hh*2+fb)*4+2*r,2)}, v{A_WR} offset:{hh*2048+r*1024+fb*32}" for hh in range(2) for fb in range(2) for r in range(2)]
    c.last_reads = wph_reads(vr, 0)
    c.run(k)
    k.stamp("g1 loop done")
    A = lambda b, t: (b * 2 + t) * 4
    BF, P1, P2, MX, MN, EK = 126, 142, 174, 206, 214, 222
    groups = [(hh, t) for hh in range(2) for t in range(2)]
    def fm_part1(k, seg, ph):
        for g, (hh, t) in enumerate(groups):
            for db in range(2):
                a = A(seg * 4 + hh * 2 + db, t)
                k(f"v_cvt_pk_bf16_f32 v{BF+g*4+db*2}, v{a}, v{a+1}\nv_cvt_pk_bf16_f32 v{BF+g*4+db*2+1}, v{a+2}, v{a+3}")
        k("s_nop 1")
        for g, (hh, t) in enumerate(groups):
            for fb in range(2):
                k(f"{MF} {vr(P1+g*8+fb*4,4)}, {ph(hh*2+fb)}, {vr(BF+g*4,4)}, 0")
    def fm_part2(k):
        for op3, op2, M in (("v_max3_f32", "v_max_f32", MX), ("v_min3_f32", "v_min_f32", MN)):
            for g in range(4):
                b = P1 + g * 8
                k(f"{op3} v{M+2*g}, v{b}, v{b+1}, v{b+2}\n{op3} v{M+2*g}, v{M+2*g}, v{b+3}, v{b+4}\n{op3} v{M+2*g}, v{M+2*g}, v{b+5}, v{b+6}\n{op2} v{M+2*g}, v{M+2*g}, v{b+7}")
        treduce4x2(k, ("v_max_f32", "v_min_f32"), ([MX + 2 * g for g in range(4)], [MN + 2 * g for g in range(4)]))
        for g in range(4):
            k(f"v_mul_f32 v{MX+2*g}, {-LOG2E!r}, v{MX+2*g}\nv_mul_f32 v{MN+2*g}, {LOG2E!r}, v{MN+2*g}")
    def fm_part3(k, E, gs_=range(4)):
        for g in gs_:
            for j in range(4):
                b = g * 8 + 2 * j
                k(f"v_pk_fma_f32 {vr(P2+b,2)}, {vr(P1+b,2)}, s[94:95], {vr(MN+2*g,2)} op_sel_hi:[1,1,0] neg_lo:[1,0,0] neg_hi:[1,0,0]")
                k(f"v_pk_fma_f32 {vr(P1+b,2)}, {vr(P1+b,2)}, s[94:95], {vr(MX+2*g,2)} op_sel_hi:[1,1,0]")
            for j in range(8): k(f"v_exp_f32 v{P1+g*8+j}, v{P1+g*8+j}")
            for j in range(8): k(f"v_exp_f32 v{P2+g*8+j}, v{P2+g*8+j}")
            k("s_nop 0")
            for sg, PP in enumerate((P1, P2)):
                for j in range(4): k(f"v_cvt_pk_bf16_f32 v{E+(g*2+sg)*4+j}, v{PP+g*8+2*j}, v{PP+g*8+2*j+1}")
    mark0 = len(k.L)
    k("s_waitcnt lgkmcnt(0)\ns_nop 7")
    fm_part1(k, 1, lambda i: vr(i * 4, 4))
    k("s_barrier")
    for g, (hh, t) in enumerate(groups):
        for db in range(2):
            a = A(8 + hh * 2 + db, t)
            k(f"v_cvt_pk_bf16_f32 v{a}, v{a}, v{a+1}\nv_cvt_pk_bf16_f32 v{a+1}, v{a+2}, v{a+3}")
            k(f"ds_write_b64 v{A_VW}, {vr(a,2)} offset:{VV + hh*9216 + t*16*72 + db*32}")
    fm_part2(k)
    grp = []
    for j in range(18 - q.pre_dma):
        t_ = q.prefetch_txt(1); grp.append(t_[:-1] + ["s_nop 0", t_[-1]])
    sprinkle(k, mark0, grp, skip=12)
    k.stamp("kp part2")
    fm_part3(k, EK)
    k.stamp("kp part3")
    SM = 32
    k("s_nop 1")
    for i in range(8): k(f"{MF} {vr(SM+4*i,4)}, {vr(ONES,4)}, {vr(EK+4*i,4)}, 0")
    k(f"v_add_u32 v{q.Q1}, 67584, v{c.V_RD}\nv_add_u32 v{q.Q2}, {L_R2}, v{c.V_RD}")
    k("s_nop 5")
    for i in range(8): k(f"v_rcp_f32 v{SM+4*i}, v{SM+4*i}")
    for g, (hh, t) in enumerate(groups):
        for sg, PP in enumerate((P1, P2)):
            for j in range(4):
                k(f"v_pk_mul_f32 {vr(PP+g*8+2*j,2)}, {vr(PP+g*8+2*j,2)}, {vr(SM+(g*2+sg)*4,2)} op_sel_hi:[1,0]")
            for fb in range(2):
                b = PP + g * 8 + fb * 4
                k(f"v_cvt_pk_bf16_f32 v{b}, v{b}, v{b+1}\nv_cvt_pk_bf16_f32 v{b+1}, v{b+2}, v{b+3}")
                k(f"ds_write_b64 v{A_PW}, {vr(b,2)} offset:{PHK + hh*17408 + t*16*136 + sg*64 + fb*32}")
    k.stamp("kp norm")
    k("s_waitcnt lgkmcnt(0)\ns_barrier")
    k.stamp("kp bar")
    FR = 190
    for s_ in range(4):
        for r in range(2):
            for fb in range(2): k(f"ds_read_b64_tr_b16 {vr(FR+s_*16+fb*4+2*r,2)}, v{A_PR} offset:{PHK + (32*s_+16*r)*136 + fb*32}")
            for db in range(2): k(f"ds_read_b64_tr_b16 {vr(FR+s_*16+8+db*4+2*r,2)}, v{A_VR} offset:{VV + (32*s_+16*r)*72 + db*32}")
    k(f"s_lshl_b32 s82, s{S_HP}, 2\ns_add_u32 s82, s82, s{S_WAVE}")
    k("s_lshl_b32 s86, s82, 15")
    k(f"s_lshl_b32 s84, s{S_RB1}, 10\ns_add_u32 s84, s84, s86\ns_add_u32 s85, s84, 16384")
    k("s_lshl_b32 s90, s82, 11")
    k(f"s_lshl_b32 s91, s82, {FS+4}\ns_add_u32 s91, s91, {F_KV}\ns_lshl_b32 s92, s{S_RB1}, {FS}\ns_add_u32 s92, s92, s91")
    k(f"v_and_b32 v{VT}, 15, v{LANE}\nv_cmp_eq_u32 vcc, s{S_RB1}, v{VT}")
    KV, ZZ = 64, 80
    for s_ in range(4):
        k(f"s_waitcnt lgkmcnt({min(15, 24 - 8*s_)})" if s_ < 3 else "s_waitcnt vmcnt(0) lgkmcnt(0)\ns_barrier")
        for fb in range(2):
            for db in range(2):
                d = vr(KV + (db * 2 + fb) * 4, 4)
                k(f"{MF} {d}, {vr(FR+s_*16+fb*4,4)}, {vr(FR+s_*16+8+db*4,4)}, {'0' if s_ == 0 else d}")
            d = vr(ZZ + fb * 4, 4)
            k(f"{MF} {d}, {vr(FR+s_*16+fb*4,4)}, {vr(ONES,4)}, {'0' if s_ == 0 else d}")
    k(f"v_lshlrev_b32 v{VT}, {FS}, v{VT}\nv_mov_b32 v{VT+1}, 1\nv_mov_b32 v{VT+2}, 0")
    k("s_nop 5")
    for db in range(2):
        for j in range(4): k(f"v_cvt_pk_bf16_f32 v{88+db*4+j}, v{KV+db*8+2*j}, v{KV+db*8+2*j+1}")
    k(f"buffer_store_dwordx4 {vr(88,4)}, v{L16}, {sr(SRD_B,4)}, s84 offen sc1")
    k(f"buffer_store_dwordx4 {vr(92,4)}, v{L16}, {sr(SRD_B,4)}, s85 offen sc1")
    k("s_and_saveexec_b64 s[96:97], vcc")
    k(f"buffer_store_dwordx4 {vr(ZZ,4)}, v{L16}, {sr(SRD_C,4)}, s90 offen sc1")
    k(f"buffer_store_dwordx4 {vr(ZZ+4,4)}, v{L16}, {sr(SRD_C,4)}, s90 offen offset:1024 sc1")
    k("s_mov_b64 exec, s[96:97]")
    k.stamp("kv stored")
    KV, ZZ, MW, MC = 72, 88, 32, 64
    q.late[opt.get("kv_ps", 1)] = [WVM([("pre", 0)]), f"buffer_store_dword v{VT+1}, v{VT+2}, {sr(SRD_F,4)}, s92 offen sc1"]
    gs = opt.get("kv_gs", 9)
    ld = f"buffer_load_dword v253, v{VT}, {sr(SRD_F,4)}, s91 offen sc1"
    m = Txt(); m.label = k.label
    okl = k.label("gok")
    m(f"v_cmp_eq_u32 vcc, 0, v253\ns_cmp_eq_u64 vcc, 0\ns_cbranch_scc1 {okl}")
    spin(m, [ld], [253], 0)
    m(f"{okl}:")
    q.late[gs - 2] = [VM(ld, ("kvf", 0))]
    gl = [f"buffer_load_dwordx4 {vr(ZZ,4)}, v{L16}, {sr(SRD_C,4)}, s90 offen sc1", f"buffer_load_dwordx4 {vr(ZZ+4,4)}, v{L16}, {sr(SRD_C,4)}, s90 offen offset:1024 sc1"]
    for i in range(32):
        if i % 4 == 0 and i: gl.append("s_add_u32 s86, s86, 4096")
        gl.append(f"buffer_load_dwordx4 {ar(4*i,4)}, v{L16}, {sr(SRD_B,4)}, s86 offen offset:{(i%4)*1024} sc1")
    n3 = -(-len(gl) // 3)
    q.late[gs] = [WVM([("kvf", 0)]), T("\n".join(m.L))] + gl[:n3]
    q.late[gs + 1] = gl[n3:2*n3]; q.late[gs + 2] = gl[2*n3:]
    t2 = Txt()
    g2 = setup_gemm24(t2, 2, opt, (110, 111, 112, LANE, L16, 98))
    q.late[5] = t2.L[:len(t2.L)//2]; q.late[6] = t2.L[len(t2.L)//2:] + [f"global_load_ushort v{MC+i}, v109, s[{P_C}:{P_C+1}] offset:{i*16}" for i in range(8)]
    assert gs - 2 > 6
    younger = []
    younger += g2.prefetch_txt(opt.get('g2_p1', 8))
    mbl = []
    for i in range(8): mbl += [f"buffer_load_dwordx4 {vr(MW+4*i,4)}, v115, {sr(SRD_D,4)}, s{S_MB} offen", f"s_add_u32 s{S_MB}, s{S_MB}, {8*12288}"]
    mpos = opt.get("mpos", "tail")
    if mpos == "tail": younger += mbl
    ny = sum(1 for x in younger if is_vm(x))
    rest = list(range(gs + 3, 16)); per = -(-len(younger) // len(rest))
    for j, st_ in enumerate(rest): q.late[st_] = younger[j*per:(j+1)*per]
    A_PH = 128
    q.last_reads = wph_reads(ar, A_PH)
    q.run(k)
    k.stamp("g1b done")
    srd(k, SRD_T, P_WS, S * D * 2, WS_O)
    k("s_waitcnt lgkmcnt(0)\ns_nop 3")
    qa = Txt(); fm_part1(qa, 0, lambda i: ar(A_PH + i * 4, 4))
    qa(f"s_waitcnt vmcnt({min(63, ny + 32)})")
    for sh in (8, 4, 2, 1):
        for j in range(8): qa(f"v_add_f32_dpp v{ZZ+j}, v{ZZ+j}, v{ZZ+j} row_ror:{sh} row_mask:0xf bank_mask:0xf")
    for x in qa.L: k(x)
    k.stamp("qp a")
    hs = g2.hs
    qb = Txt(); fm_part2(qb); fm_part3(qb, EK, range(2) if hs else range(4))
    red = []
    for i in range(32):
        db, pp = divmod(i, 16)
        for fb in range(2):
            d = vr(KV + (db * 2 + fb) * 4, 4)
            red.append((f"s_waitcnt vmcnt({ny + 28 - i})\n" if (i % 4 == 0 and fb == 0) else "") + f"{MF} {d}, {vr(SEL + (2 if fb == 0 else 0), 4)}, {ar(4*i,4)}, {'0' if pp == 0 else d}")
    cut = opt.get("q_cut", 150) if not hs else len(qb.L)
    for x in merge(qb.L[:cut], red, 2): k(x)
    if hs:
        k("s_nop 3")
        qb = Txt(); fm_part3(qb, EK, [2]); cut = 0
    k.stamp("qp merged")
    k(f"s_mul_i32 s82, s{S_WAVE}, 3072\ns_add_u32 s82, s82, {SH}")
    k(f"v_add_u32 v{VT+1}, s82, v{L16}\nv_add_u32 v{VT+2}, {SH}, v{L16}")
    k(f"v_and_b32 v{VT}, 1, v{LANE}\nv_cmp_eq_u32 vcc, 0, v{VT}")
    k("s_nop 4")
    for j in range(12): k(f"v_cvt_pk_bf16_f32 v{KV+j}, v{KV+2*j}, v{KV+2*j+1}")
    for j in range(4): k(f"v_cndmask_b32 v{KV+8+j}, v{ONES}, v{KV+8+j}, vcc")
    for j in range(3): k(f"ds_write_b128 v{VT+1}, {vr(KV+4*j,4)} offset:{j*1024}")
    for x in (merge(qb.L[cut:], mbl, 2) if mpos == "q" else qb.L[cut:]): k(x)
    k.stamp("qp rest")
    k("s_waitcnt lgkmcnt(0)\ns_barrier")
    k.stamp("qp bar")
    for i in range(12): k(f"ds_read_b128 {ar(4*i,4)}, v{VT+2} offset:{i*1024}")
    k(f"s_lshl_b32 s82, s{S_RB1}, 3\ns_lshl_b32 s83, s{S_WAVE}, 1\ns_add_u32 s82, s82, s83\ns_lshl_b32 s82, s82, 15")
    k(f"s_lshl_b32 s83, s{S_HP}, 11\ns_add_u32 s82, s82, s83\ns_add_u32 s83, s82, 0x8000")
    k(f"s_lshl_b32 s84, s{S_RB1}, 2\ns_add_u32 s84, s84, s{S_WAVE}\ns_lshl_b32 s84, s84, {FS+4}\ns_lshl_b32 s85, s{S_HP}, {FS}\ns_add_u32 s84, s84, s85\ns_add_u32 s84, s84, {F_O}")
    k("s_waitcnt lgkmcnt(0)")
    NB_ = 126
    def nbase(g): return NB_ + g * 24 if (not hs or g >= 2) else None
    def oregs(g):
        if hs and g < 2: return (0, 12) if g == 0 else (72, 84)
        return (NB_ + g * 24, NB_ + g * 24 + 12)
    def o_mfma(gl):
        for g in gl:
            hh, t = groups[g]
            for sg in range(2):
                for j in range(3):
                    k(f"{MF} {vr(oregs(g)[sg]+4*j,4)}, {ar(((hh*2+sg)*3+j)*4,4)}, {vr(EK+(g*2+sg)*4,4)}, 0")
    def o_fin(gl):
        for g in gl:
            hh, t = groups[g]
            n1, n2 = oregs(g)
            D1, S1, D2, S2 = n1 + 8, n1 + 9, n2 + 8, n2 + 9
            k(f"v_mul_f32 v{n1+10}, v{S1}, v{S2}")
            k(f"v_mul_f32 v{n1+10}, 0x358637bd, v{n1+10}")
            k(f"v_fmac_f32 v{n1+10}, v{D1}, v{S2}\nv_fmac_f32 v{n1+10}, v{D2}, v{S1}")
            k(f"v_rcp_f32 v{n1+10}, v{n1+10}")
            k("s_nop 0")
            k(f"v_mul_f32 v{D1}, v{S2}, v{n1+10}\nv_mul_f32 v{D2}, v{S1}, v{n1+10}")
            for j in range(4): k(f"v_pk_mul_f32 {vr(n1+2*j,2)}, {vr(n1+2*j,2)}, {vr(D1,2)} op_sel_hi:[1,0]")
            for j in range(4): k(f"v_pk_fma_f32 {vr(n1+2*j,2)}, {vr(n2+2*j,2)}, {vr(D2,2)}, {vr(n1+2*j,2)} op_sel_hi:[1,0,1]")
            for j in range(4): k(f"v_cvt_pk_bf16_f32 v{n2+j}, v{n1+2*j}, v{n1+2*j+1}")
            k(f"buffer_store_dwordx4 {vr(n2,4)}, v{L16}, {sr(SRD_T,4)}, s{82+t} offen offset:{hh*1024} sc1")
    if hs:
        o_mfma([0, 1]); k("s_nop 7"); o_fin([0, 1])
        mk0 = len(k.L)
        fm_part3(k, EK, [3])
        k("s_nop 1")
        o_mfma([2, 3]); k("s_nop 7")
        publish(k, 84, VT + 1, mk0)
        k(f"s_add_u32 s95, s84, {F_O2 - F_O}")
        o_fin([2, 3])
    else:
        o_mfma(range(4)); k("s_nop 7"); o_fin(range(4))
    k.stamp("o stored")
    mko = len(k.L)
    g2.V_X = 178
    srd(k, SRD_A, P_X, S * D * 2)
    V_XA = 100
    k(f"v_lshrrev_b32 v{VT+1}, 4, v{LANE}")
    k(f"v_and_b32 v{VT+2}, 15, v{LANE}\nv_lshlrev_b32 v{VT+2}, 11, v{VT+2}\nv_lshl_add_u32 v{V_XA}, v{VT+1}, 3, v{VT+2}")
    k(f"s_lshl_b32 s82, s{S_RB2}, 3\ns_lshl_b32 s83, s{S_WAVE}, 1\ns_add_u32 s82, s82, s83\ns_lshl_b32 s82, s82, 15\ns_lshl_b32 s83, s{S_NT}, 7\ns_add_u32 s82, s82, s83\ns_add_u32 s83, s82, 32768")
    for t in range(2):
        for b in range(4):
            k(f"buffer_load_dwordx2 {vr(g2.V_X+(t*4+b)*2,2)}, v{V_XA}, {sr(SRD_A,4)}, s{82+t} offen offset:{b*32}")
    k.g3 = setup_gemm3_early(k, opt, LANE, 20)
    if not hs: publish(k, 84, VT + 1, mko)
    k.stamp("o published")
    mark1 = len(k.L)
    CU, AU, TT = 0, 16, 24
    for i in range(8): k(f"v_mov_b32 v{CU+2*i}, v{MC+i}")
    silu_block(k, [CU + 2 * i for i in range(8)])
    for i in range(8):
        for d in range(4):
            k(f"v_lshlrev_b32 v{TT}, 16, v{MW+4*i+d}\nv_and_b32 v{TT+1}, 0xffff0000, v{MW+4*i+d}")
            if i == 0: k(f"v_pk_mul_f32 {vr(AU+2*d,2)}, {vr(TT,2)}, {vr(CU,2)} op_sel_hi:[1,0]")
            else: k(f"v_pk_fma_f32 {vr(AU+2*d,2)}, {vr(TT,2)}, {vr(CU+2*i,2)}, {vr(AU+2*d,2)} op_sel_hi:[1,0,1]")
    k("s_nop 1")
    for j in range(4): k(f"v_permlane32_swap_b32 v{AU+j}, v{AU+j+4}")
    k("s_nop 1")
    for j in range(4): k(f"v_add_f32 v{AU+j}, v{AU+j}, v{AU+j+4}")
    k("s_nop 1")
    for j in range(2): k(f"v_permlane16_swap_b32 v{AU+j}, v{AU+j+2}")
    k("s_nop 1")
    for j in range(2): k(f"v_add_f32 v{AU+j}, v{AU+j}, v{AU+j+2}")
    k("s_nop 1")
    for j in range(2): k(f"v_add_f32_dpp v{AU+j}, v{AU+j}, v{AU+j} row_ror:8 row_mask:0xf bank_mask:0xf")
    grp = g3_early_units(k.g3, opt.get("g3_e2", 0), 254)
    for j in range(opt.get("g2_p2", 0)):
        t_ = g2.prefetch_txt(1); grp.append(t_[:-1] + ["s_nop 0", t_[-1]])
    sprinkle(k, mark1, grp, skip=0)
    k(f"v_and_b32 v{TT}, 7, v{LANE}\nv_lshlrev_b32 v{TT}, 5, v{TT}\nv_lshrrev_b32 v{TT+1}, 5, v{LANE}\nv_lshl_add_u32 v{TT}, v{TT+1}, 4, v{TT}")
    k(f"v_bfe_u32 v{TT+1}, v{LANE}, 4, 1\nv_lshl_add_u32 v{TT}, v{TT+1}, 3, v{TT}")
    srd(k, SRD_D, P_WS, MP_BYTES, WS_MODP)
    k(f"v_or_b32 v{AU}, 1, v{AU}\nv_or_b32 v{AU+1}, 1, v{AU+1}")
    k(f"buffer_store_dwordx2 {vr(AU,2)}, v{TT}, {sr(SRD_D,4)}, s{S_MO} offen sc1")
    return g2

A_UT = 176
def silu_block(k, regs):
    for v in regs: k(f"v_lshlrev_b32 v{v}, 16, v{v}\nv_mul_f32 v{v+1}, {-LOG2E!r}, v{v}")
    for v in regs: k(f"v_exp_f32 v{v+1}, v{v+1}")
    k("s_nop 0")
    for v in regs: k(f"v_add_f32 v{v+1}, 1.0, v{v+1}")
    for v in regs: k(f"v_rcp_f32 v{v+1}, v{v+1}")
    k("s_nop 0")
    for v in regs:
        k(f"v_mul_f32 v{v}, v{v}, v{v+1}"); round_bf16(k, v)

def modb_loads(s_off, v_w, v_c):
    out = []
    for i in range(8):
        out.append([f"buffer_load_dwordx4 {ar(A_UT+4*i,4)}, v{v_w}, {sr(SRD_D,4)}, s{s_off} offen", f"s_add_u32 s{s_off}, s{s_off}, {8*12288}"])
    return out

def red32(k, x, t):
    red8(k, x)
    k(f"s_nop 1\nv_add_f32_dpp v{x}, v{x}, v{x} row_mirror row_mask:0xf bank_mask:0xf")
    k(f"v_mov_b32 v{t}, v{x}\ns_nop 1\nv_permlane16_swap_b32 v{x}, v{t}\ns_nop 1\nv_add_f32 v{x}, v{x}, v{t}")

def ids(k):
    k("v_lshrrev_b32 v1, 6, v0")
    k(f"s_and_b32 s{S_XCD}, s2, 7\ns_lshr_b32 s{S_IDX}, s2, 3")
    k(f"v_readfirstlane_b32 s{S_WAVE}, v1")
    k(f"s_bfe_u32 s{S_RB1}, s{S_XCD}, 0x10001\ns_lshl_b32 s{S_RB1}, s{S_RB1}, 3\ns_lshr_b32 s80, s{S_IDX}, 2\ns_add_u32 s{S_RB1}, s{S_RB1}, s80")
    k(f"s_lshr_b32 s{S_HP}, s{S_XCD}, 2\ns_lshl_b32 s{S_HP}, s{S_HP}, 2\ns_and_b32 s80, s{S_IDX}, 3\ns_add_u32 s{S_HP}, s{S_HP}, s80\ns_lshl_b32 s{S_HP}, s{S_HP}, 1\ns_and_b32 s80, s{S_XCD}, 1\ns_add_u32 s{S_HP}, s{S_HP}, s80")

def build_k0(instr=False, opt=None, name="mod_kernel", mega="mega_kernel"):
    opt = opt or {}
    k = Kernel(name, 256, 256, 4096, vgpr=128, sgpr=102)
    k.instr = instr; k.s_wave = S_WAVE
    stamp(k, 0)
    end = k.label("end")
    k(f"s_cmp_ge_u32 s2, 256\ns_cbranch_scc1 {end}")
    k("s_load_dwordx4 s[12:15], s[0:1], 64")
    k("s_load_dwordx8 s[4:11], s[0:1], 0")
    k("s_load_dwordx2 s[28:29], s[0:1], 96")
    ids(k)
    LANE, T, V_W = 104, 48, 105
    WA, CA, XR, XF, A0, SU = 64, 80, 84, 0, 32, 100
    k(f"v_and_b32 v{LANE}, 63, v0")
    k(f"v_lshrrev_b32 v{T+1}, 3, v{LANE}\nv_and_b32 v{T+2}, 7, v{LANE}")
    k(f"v_mul_u32_u24 v{V_W}, 12288, v{T+1}\nv_lshl_add_u32 v{V_W}, v{T+2}, 4, v{V_W}")
    k(f"s_lshl_b32 s64, s{S_RB1}, 6\ns_lshl_b32 s65, s{S_WAVE}, 4\ns_add_u32 s64, s64, s65")
    k(f"v_add_u32 v{T+3}, s64, v{T+1}\nv_lshlrev_b32 v{T+3}, 1, v{T+3}")
    k(f"s_mul_i32 s67, s64, 12288\ns_lshl_b32 s66, s{S_HP}, 7\ns_add_u32 s67, s67, s66\ns_add_u32 s68, s67, {8*12288}")
    k(f"v_lshrrev_b32 v{T+4}, 5, v{LANE}\nv_lshlrev_b32 v{T+4}, 11, v{T+4}\nv_and_b32 v{T+5}, 31, v{LANE}\nv_lshl_add_u32 v{T+4}, v{T+5}, 4, v{T+4}")
    k(f"s_lshl_b32 s69, s{S_RB1}, 4\ns_add_u32 s69, s69, s{S_HP}")
    k(f"s_lshl_b32 s70, s69, 14\ns_lshl_b32 s71, s{S_WAVE}, 12\ns_add_u32 s70, s70, s71")
    k("s_waitcnt lgkmcnt(0)")
    srd(k, SRD_D, 14, D * 6 * D * 2)
    srd(k, SRD_A, P_X, S * D * 2)
    for i in range(2): k(f"global_load_ushort v{CA+2*i}, v{T+3}, s[12:13] offset:{i*16}")
    for i in range(2):
        for v in range(2): k(f"buffer_load_dwordx4 {vr(WA+(i*2+v)*4,4)}, v{V_W}, {sr(SRD_D,4)}, s{67+i} offen offset:{v*2048}")
    for i in range(4): k(f"buffer_load_dwordx4 {vr(XR+4*i,4)}, v{T+4}, {sr(SRD_A,4)}, s70 offen offset:{i*512}")
    stamp(k, 1)
    lab = k.label("pc")
    k(f"s_getpc_b64 s[60:61]\n{lab}:")
    k(f"s_add_u32 s60, s60, {mega}-{lab}\ns_addc_u32 s61, s61, 0")
    k(f"v_lshlrev_b32 v{T+6}, 4, v{LANE}")
    for x in code_prefetch_txt(mega, T + 6, T + 7, 62, s_pc=60, junk="v110"): k(x)
    srd(k, SRD_B, P_WS, MP_BYTES, WS_MODP)
    srd(k, SRD_F, P_WS, FLAG_BYTES, WS_FLAG)
    srd(k, SRD_C, P_WS, S * 128, WS_STAT)
    k(f"v_mov_b32 v{T+8}, 0\nv_lshlrev_b32 v{T+9}, 2, v0\ns_lshl_b32 s62, s2, 10\ns_add_u32 s63, s62, {MP_B}")
    k(f"v_lshlrev_b32 v{T+10}, {FS}, v0\ns_lshl_b32 s66, s2, {FS+8}")
    k(f"buffer_store_dword v{T+8}, v{T+10}, {sr(SRD_F,4)}, s66 offen")
    k(f"buffer_store_dword v{T+8}, v{T+9}, {sr(SRD_C,4)}, s62 offen")
    k(f"buffer_store_dword v{T+8}, v{T+9}, {sr(SRD_B,4)}, s63 offen")
    young = 4
    k(f"s_lshl_b32 s62, s2, 2\ns_add_u32 s62, s62, s{S_WAVE}")
    for ptr, per, tag in ((P_WQKV, 6, "t_wq"), (P_WO, 2, "t_wo"), (14, 12, "t_wm")):
        if not opt.get(tag, 1): continue
        k(f"s_mul_i32 s63, s62, {per*1024}\ns_add_u32 s63, s63, 384")
        k(f"v_min_u32 v{T+14}, {per-1}, v{LANE}\nv_lshlrev_b32 v{T+14}, 10, v{T+14}\nv_add_u32 v{T+14}, s63, v{T+14}")
        k(f"global_load_dword v110, v{T+14}, s[{ptr}:{ptr+1}]")
        young += 1
    k(f"s_waitcnt vmcnt({young + 8})")
    silu_block(k, [CA, CA + 2])
    k(f"s_waitcnt vmcnt({young + 4})")
    for i in range(2):
        for v in range(2):
            for d in range(4):
                w_ = WA + (i * 2 + v) * 4 + d
                k(f"v_lshlrev_b32 v{T+10}, 16, v{w_}\nv_and_b32 v{T+11}, 0xffff0000, v{w_}")
                if i == 0: k(f"v_pk_mul_f32 {vr(A0+v*8+2*d,2)}, {vr(T+10,2)}, {vr(CA,2)} op_sel_hi:[1,0]")
                else: k(f"v_pk_fma_f32 {vr(A0+v*8+2*d,2)}, {vr(T+10,2)}, {vr(CA+2,2)}, {vr(A0+v*8+2*d,2)} op_sel_hi:[1,0,1]")
    k("s_nop 1")
    for j in range(8): k(f"v_permlane32_swap_b32 v{A0+j}, v{A0+8+j}")
    k("s_nop 1")
    for j in range(8): k(f"v_add_f32 v{A0+j}, v{A0+j}, v{A0+8+j}")
    k("s_nop 1")
    for j in range(4): k(f"v_permlane16_swap_b32 v{A0+j}, v{A0+4+j}")
    k("s_nop 1")
    for j in range(4): k(f"v_add_f32 v{A0+j}, v{A0+j}, v{A0+4+j}")
    k("s_nop 1")
    for j in range(4): k(f"v_add_f32_dpp v{A0+j}, v{A0+j}, v{A0+j} row_ror:8 row_mask:0xf bank_mask:0xf")
    k(f"v_lshrrev_b32 v{T+12}, 5, v{LANE}\nv_lshlrev_b32 v{T+13}, 8, v{T+12}\nv_lshl_add_u32 v{T+13}, v{T+2}, 5, v{T+13}")
    k(f"v_bfe_u32 v{T+10}, v{LANE}, 4, 1\nv_lshl_add_u32 v{T+13}, v{T+10}, 4, v{T+13}\ns_lshl_b32 s62, s{S_WAVE}, 9\nv_add_u32 v{T+13}, s62, v{T+13}")
    k(f"ds_write_b128 v{T+13}, {vr(A0,4)}")
    k("s_waitcnt lgkmcnt(0)\ns_barrier")
    nw0 = k.label("notw0")
    k(f"s_cmp_lg_u32 s{S_WAVE}, 0\ns_cbranch_scc1 {nw0}")
    k(f"v_lshlrev_b32 v{T+13}, 3, v{LANE}")
    for w in range(4): k(f"ds_read_b64 {vr(A0+2*w,2)}, v{T+13} offset:{w*512}")
    k(f"s_lshl_b32 s62, s{S_HP}, 13\ns_lshl_b32 s63, s{S_RB1}, 9\ns_add_u32 s63, s63, s62")
    k("s_waitcnt lgkmcnt(0)")
    k(f"v_pk_add_f32 {vr(A0,2)}, {vr(A0,2)}, {vr(A0+2,2)}\nv_pk_add_f32 {vr(A0+4,2)}, {vr(A0+4,2)}, {vr(A0+6,2)}\nv_pk_add_f32 {vr(A0,2)}, {vr(A0,2)}, {vr(A0+4,2)}")
    k(f"buffer_store_dwordx2 {vr(A0,2)}, v{T+13}, {sr(SRD_B,4)}, s63 offen")
    k(f"{nw0}:")
    stamp(k, 2)
    k(f"s_waitcnt vmcnt({young})")
    for d in range(16): k(f"v_lshlrev_b32 v{XF+2*d}, 16, v{XR+d}\nv_and_b32 v{XF+2*d+1}, 0xffff0000, v{XR+d}")
    k(f"v_pk_add_f32 {vr(SU,2)}, {vr(XF,2)}, {vr(XF+2,2)}")
    for d in range(2, 16): k(f"v_pk_add_f32 {vr(SU,2)}, {vr(SU,2)}, {vr(XF+2*d,2)}")
    k(f"v_add_f32 v{SU}, v{SU}, v{SU+1}")
    red32(k, SU, SU + 1)
    k(f"v_mul_f32 v{SU+2}, {-1.0/1024!r}, v{SU}")
    k(f"v_mov_b32 v{SU}, 0\nv_mov_b32 v{SU+1}, 0")
    for d in range(16):
        k(f"v_pk_add_f32 {vr(XF+2*d,2)}, {vr(XF+2*d,2)}, {vr(SU+2,2)} op_sel_hi:[1,0]")
        k(f"v_pk_fma_f32 {vr(SU,2)}, {vr(XF+2*d,2)}, {vr(XF+2*d,2)}, {vr(SU,2)}")
    k(f"v_add_f32 v{SU}, v{SU}, v{SU+1}")
    red32(k, SU, SU + 1)
    k(f"v_mov_b32 v{SU+1}, 0x3727c5ac\nv_fmac_f32 v{SU+1}, {1.0/1024!r}, v{SU}\nv_rsq_f32 v{SU+3}, v{SU+1}")
    k(f"s_lshl_b32 s62, s69, 6\ns_lshl_b32 s63, s{S_WAVE}, 4\ns_add_u32 s62, s62, s63\ns_add_u32 s62, s62, {MP_RS}\nv_lshlrev_b32 v{T+12}, 3, v{T+12}")
    k(f"buffer_store_dwordx2 {vr(SU+2,2)}, v{T+12}, {sr(SRD_B,4)}, s62 offen")
    stamp(k, 3)
    if instr: k("s_waitcnt vmcnt(0)")
    stamp(k, 4)
    stamp_flush(k, 28, 5, 4, slot=1)
    k(f"{end}:\ns_endpgm")
    return k

def phase_front_fused(k, opt, name):
    LANE, L16 = 104, 105
    T = 48
    V_W, V_C = 115, 109
    WA, CA, XR, XT_, XF, A0, SU, G, M, RS = 64, 80, 128, 144, 0, 200, 216, 160, 32, 84
    HL = 2 * 25344
    k(f"v_lshrrev_b32 v{T+1}, 3, v{LANE}\nv_and_b32 v{T+2}, 7, v{LANE}")
    k(f"v_mul_u32_u24 v{V_W}, 12288, v{T+1}\nv_lshl_add_u32 v{V_W}, v{T+2}, 4, v{V_W}")
    k(f"s_lshl_b32 s84, s{S_RB1}, 6")
    k(f"v_add_u32 v{V_C}, s84, v{T+1}\nv_lshlrev_b32 v{V_C}, 1, v{V_C}")
    k(f"s_lshl_b32 s85, s{S_WAVE}, 5\nv_add_u32 v{T+3}, s85, v{V_C}")
    k(f"s_mul_i32 s86, s84, 12288\ns_lshl_b32 s87, s{S_HP}, 7\ns_add_u32 s86, s86, s87")
    k(f"s_mul_i32 s87, s{S_WAVE}, {16*12288}\ns_add_u32 s87, s87, s86\ns_add_u32 s88, s87, {8*12288}")
    k(f"v_lshrrev_b32 v{T+4}, 5, v{LANE}\nv_lshlrev_b32 v{T+4}, 11, v{T+4}\nv_and_b32 v{T+5}, 31, v{LANE}\nv_lshl_add_u32 v{T+4}, v{T+5}, 4, v{T+4}")
    k(f"s_lshl_b32 s89, s{S_RB1}, 4\ns_add_u32 s89, s89, s{S_HP}")
    k(f"s_lshl_b32 s90, s89, 14\ns_lshl_b32 s91, s{S_WAVE}, 12\ns_add_u32 s90, s90, s91")
    k(f"v_mov_b32 v{T+8}, 0\nv_mov_b32 v{T+9}, 0\nv_mov_b32 v{T+10}, 0\nv_mov_b32 v{T+11}, 0\nv_mov_b32 v{T+12}, 1")
    k(f"v_lshlrev_b32 v{T+7}, {FS}, v{LANE}")
    k(f"s_lshl_b32 s93, s2, {FS+6}\ns_add_u32 s93, s93, {F_S0}\ns_cmp_lt_u32 s2, 4\ns_cselect_b32 s93, s93, 0x7ff00000\ns_cmp_eq_u32 s{S_WAVE}, 3\ns_cselect_b32 s93, s93, 0x7ff00000")
    k("s_waitcnt lgkmcnt(0)")
    srd(k, SRD_F, P_WS, FLAG_BYTES, WS_FLAG)
    k(f"buffer_store_dword v{T+8}, v{T+7}, {sr(SRD_F,4)}, s93 offen sc1")
    k(f"s_mov_b32 s{SRD_T}, s{P_DBG}\ns_mov_b32 s{SRD_T+1}, s{P_DBG+1}\ns_mov_b32 s{SRD_T+2}, 256\ns_mov_b32 s{SRD_T+3}, 0x20000")
    k("s_mov_b32 s95, s93")
    srd(k, SRD_D, P_WMOD, D * 6 * D * 2)
    srd(k, SRD_A, P_X, S * D * 2)
    for i in range(2): k(f"global_load_ushort v{CA+2*i}, v{T+3}, s[{P_C}:{P_C+1}] offset:{i*16}")
    for i in range(2):
        for v in range(2): k(f"buffer_load_dwordx4 {vr(WA+(i*2+v)*4,4)}, v{V_W}, {sr(SRD_D,4)}, s{87+i} offen offset:{v*2048}")
    for i in range(4): k(f"buffer_load_dwordx4 {vr(XR+4*i,4)}, v{T+4}, {sr(SRD_A,4)}, s90 offen offset:{i*512}")
    k.stamp("loads issued")
    srd(k, SRD_B, P_WS, MP_BYTES, WS_MODP)
    srd(k, SRD_C, P_WS, S * 128, WS_STAT)
    w3, jn = k.label("w3"), k.label("join")
    k(f"s_cmp_eq_u32 s{S_WAVE}, 3\ns_cbranch_scc1 {w3}")
    k(f"s_lshl_b32 s92, s2, 1\ns_add_u32 s92, s92, s{S_WAVE}\ns_sub_u32 s92, s92, 1")
    nt_ = k.label("notouch")
    k("s_mov_b32 s93, 0x7ff00000")
    for i in range(2): k(f"buffer_load_dword a233, v{V_W}, {sr(SRD_D,4)}, s93 offen")
    k(f"s_cmp_eq_u32 s{S_WAVE}, 0\ns_cbranch_scc1 {nt_}")
    for ptr, per in ((P_WQKV, 12), (P_WO, 4), (P_WMOD, 24)):
        k(f"s_mul_i32 s93, s92, {per}\nv_min_u32 v{T+14}, {per-1}, v{LANE}\nv_add_u32 v{T+14}, s93, v{T+14}")
        k(f"v_lshlrev_b32 v{T+14}, 10, v{T+14}")
        k(f"global_load_dword a232, v{T+14}, s[{ptr}:{ptr+1}] offset:384")
    k(f"s_branch {jn}")
    k(f"{nt_}:")
    for i in range(3): k(f"buffer_load_dword a233, v{V_W}, {sr(SRD_D,4)}, s93 offen")
    k(f"s_branch {jn}")
    k(f"{w3}:")
    nb = k.label("nboot")
    k(f"s_cmp_eq_u32 s95, 0x7ff00000\ns_cbranch_scc1 {nb}")
    k("s_lshl_b32 s93, s2, 2\ns_waitcnt vmcnt(10)")
    k(f"buffer_store_dword v{T+12}, v{T+8}, {sr(SRD_T,4)}, s93 offen sc1")
    k(f"{nb}:")
    k(f"v_and_b32 v{T+14}, 3, v{LANE}\nv_lshlrev_b32 v{T+14}, 4, v{T+14}")
    k(f"s_lshl_b32 s93, s{S_RB1}, 6\ns_add_u32 s93, s93, s{S_HP}\nv_add_u32 v{T+15}, s93, v{T+14}")
    k(f"s_lshl_b32 s93, s{S_HP}, 6\ns_add_u32 s93, s93, s{S_RB1}\ns_add_u32 s93, s93, 1024\nv_add_u32 v{T+14}, s93, v{T+14}")
    k(f"v_cmp_gt_u32 vcc, 4, v{LANE}\ns_mul_i32 s93, s2, 24\ns_add_u32 s93, s93, 2040")
    k(f"v_cndmask_b32 v{T+14}, v{T+14}, v{T+15}, vcc\nv_add_u32 v{T+15}, s93, v{LANE}")
    k(f"v_cmp_gt_u32 vcc, 8, v{LANE}\ns_nop 1\nv_cndmask_b32 v{T+14}, v{T+15}, v{T+14}, vcc")
    k(f"v_cmp_gt_u32 vcc, 32, v{LANE}\nv_mov_b32 v{T+15}, 0x100000\ns_nop 0\nv_cndmask_b32 v{T+14}, v{T+15}, v{T+14}, vcc")
    k(f"v_lshlrev_b32 v{T+14}, {FS}, v{T+14}")
    k(f"buffer_store_dword v{T+8}, v{T+14}, {sr(SRD_F,4)}, 0 offen sc1")
    k("s_mov_b32 s93, 0x7ff00000")
    for i in range(2): k(f"buffer_load_dword a233, v{V_W}, {sr(SRD_D,4)}, s93 offen")
    k("s_lshl_b32 s93, s2, 10")
    k(f"buffer_store_dwordx4 {vr(T+8,4)}, v{L16}, {sr(SRD_C,4)}, s93 offen sc1")
    k(f"s_add_u32 s93, s93, {MP_B}")
    k(f"buffer_store_dwordx4 {vr(T+8,4)}, v{L16}, {sr(SRD_B,4)}, s93 offen sc1")
    k(f"{jn}:")
    k(f"v_lshlrev_b32 v{T+5}, 11, v{T+1}\nv_lshl_add_u32 v{T+5}, v{T+2}, 4, v{T+5}")
    k(f"s_lshl_b32 s91, s{S_RB1}, 18\ns_lshl_b32 s92, s{S_WAVE}, 16\ns_add_u32 s91, s91, s92\ns_lshl_b32 s92, s{S_HP}, 7\ns_add_u32 s91, s91, s92")
    for i in range(4):
        k(f"buffer_load_dwordx4 {vr(XT_+4*i,4)}, v{T+5}, {sr(SRD_A,4)}, s91 offen")
        if i < 3: k("s_add_u32 s91, s91, 16384")
    k(f"s_lshl_b32 s94, s{S_WAVE}, 11\ns_add_u32 s{S_MB}, s86, s94\ns_add_u32 s{S_MB}, s{S_MB}, 4096")
    k(f"s_lshl_b32 s94, s{S_WAVE}, 16\ns_lshl_b32 s95, s{S_HP}, 12\ns_add_u32 s94, s94, s95\ns_lshl_b32 s95, s{S_RB1}, 8\ns_add_u32 s94, s94, s95\ns_add_u32 s{S_MO}, s94, {MP_B}")
    young = 9
    k.stamp("all issued")
    k(f"s_waitcnt vmcnt({young + 8})")
    k.stamp("c ready")
    silu_block(k, [CA, CA + 2])
    k(f"s_waitcnt vmcnt({young + 4})")
    k.stamp("w ready")
    for i in range(2):
        for v in range(2):
            for d in range(4):
                w_ = WA + (i * 2 + v) * 4 + d
                k(f"v_lshlrev_b32 v{T+14}, 16, v{w_}\nv_and_b32 v{T+15}, 0xffff0000, v{w_}")
                if i == 0: k(f"v_pk_mul_f32 {vr(A0+v*8+2*d,2)}, {vr(T+14,2)}, {vr(CA,2)} op_sel_hi:[1,0]")
                else: k(f"v_pk_fma_f32 {vr(A0+v*8+2*d,2)}, {vr(T+14,2)}, {vr(CA+2,2)}, {vr(A0+v*8+2*d,2)} op_sel_hi:[1,0,1]")
    k("s_nop 1")
    for j in range(8): k(f"v_permlane32_swap_b32 v{A0+j}, v{A0+8+j}")
    k("s_nop 1")
    for j in range(8): k(f"v_add_f32 v{A0+j}, v{A0+j}, v{A0+8+j}")
    k("s_nop 1")
    for j in range(4): k(f"v_permlane16_swap_b32 v{A0+j}, v{A0+4+j}")
    k("s_nop 1")
    for j in range(4): k(f"v_add_f32 v{A0+j}, v{A0+j}, v{A0+4+j}")
    k("s_nop 1")
    for j in range(4): k(f"v_add_f32_dpp v{A0+j}, v{A0+j}, v{A0+j} row_ror:8 row_mask:0xf bank_mask:0xf")
    k(f"v_lshrrev_b32 v{T+13}, 5, v{LANE}\nv_lshlrev_b32 v{T+14}, 8, v{T+13}\nv_lshl_add_u32 v{T+14}, v{T+2}, 5, v{T+14}")
    k(f"v_bfe_u32 v{T+15}, v{LANE}, 4, 1\nv_lshl_add_u32 v{T+14}, v{T+15}, 4, v{T+14}\ns_lshl_b32 s94, s{S_WAVE}, 9\nv_add_u32 v{T+14}, s94, v{T+14}")
    k(f"ds_write_b128 v{T+14}, {vr(A0,4)} offset:{HL}")
    k(f"s_waitcnt vmcnt({young})")
    for d in range(16): k(f"v_lshlrev_b32 v{XF+2*d}, 16, v{XR+d}\nv_and_b32 v{XF+2*d+1}, 0xffff0000, v{XR+d}")
    k(f"v_pk_add_f32 {vr(SU,2)}, {vr(XF,2)}, {vr(XF+2,2)}")
    for d in range(2, 16): k(f"v_pk_add_f32 {vr(SU,2)}, {vr(SU,2)}, {vr(XF+2*d,2)}")
    k(f"v_add_f32 v{SU}, v{SU}, v{SU+1}")
    red32(k, SU, SU + 1)
    k(f"v_mul_f32 v{SU+2}, {-1.0/1024!r}, v{SU}")
    k(f"v_mov_b32 v{SU}, 0\nv_mov_b32 v{SU+1}, 0")
    for d in range(16):
        k(f"v_pk_add_f32 {vr(XF+2*d,2)}, {vr(XF+2*d,2)}, {vr(SU+2,2)} op_sel_hi:[1,0]")
        k(f"v_pk_fma_f32 {vr(SU,2)}, {vr(XF+2*d,2)}, {vr(XF+2*d,2)}, {vr(SU,2)}")
    k(f"v_add_f32 v{SU}, v{SU}, v{SU+1}")
    red32(k, SU, SU + 1)
    k(f"v_mov_b32 v{SU+1}, 0x3727c5ac\nv_fmac_f32 v{SU+1}, {1.0/1024!r}, v{SU}\nv_rsq_f32 v{SU+3}, v{SU+1}")
    k(f"s_lshl_b32 s94, s{S_WAVE}, 4\nv_lshlrev_b32 v{T+13}, 3, v{T+13}\nv_add_u32 v{T+13}, s94, v{T+13}")
    k(f"ds_write_b64 v{T+13}, {vr(SU+2,2)} offset:{HL+2048}")
    n3 = k.label("not3")
    k(f"s_cmp_lg_u32 s{S_WAVE}, 3\ns_cbranch_scc1 {n3}")
    k(f"v_and_b32 v{T+14}, 3, v{LANE}\nv_lshlrev_b32 v{T+14}, 2, v{T+14}")
    spin(k, [f"buffer_load_dword v{T+13}, v{T+14}, {sr(SRD_T,4)}, 0 offen sc1"], [T + 13], 0)
    k(f"{n3}:")
    k("s_waitcnt lgkmcnt(0)\ns_barrier")
    k.stamp("partials")
    nw0 = k.label("notw0")
    k(f"v_lshlrev_b32 v{T+6}, 3, v{LANE}")
    k(f"s_cmp_lg_u32 s{S_WAVE}, 0\ns_cbranch_scc1 {nw0}")
    for w in range(4): k(f"ds_read_b64 {vr(A0+2*w,2)}, v{T+6} offset:{HL+w*512}")
    k(f"v_and_b32 v{T+9}, 0x38, v{T+6}")
    k(f"ds_read_b64 {vr(A0+8,2)}, v{T+9} offset:{HL+2048}")
    k(f"s_lshl_b32 s94, s{S_HP}, 13\ns_lshl_b32 s95, s{S_RB1}, 9\ns_add_u32 s95, s95, s94")
    k(f"s_lshl_b32 s90, s89, 6\ns_add_u32 s90, s90, {MP_RS}")
    k("s_waitcnt lgkmcnt(0)")
    k(f"v_pk_add_f32 {vr(A0,2)}, {vr(A0,2)}, {vr(A0+2,2)}\nv_pk_add_f32 {vr(A0+4,2)}, {vr(A0+4,2)}, {vr(A0+6,2)}\nv_pk_add_f32 {vr(A0,2)}, {vr(A0,2)}, {vr(A0+4,2)}")
    k(f"buffer_store_dwordx2 {vr(A0,2)}, v{T+6}, {sr(SRD_B,4)}, s95 offen sc1")
    k(f"buffer_store_dwordx2 {vr(A0+8,2)}, v{T+9}, {sr(SRD_B,4)}, s90 offen sc1")
    k(f"s_lshl_b32 s90, s89, {FS}\ns_add_u32 s90, s90, {F_S0}")
    k("s_waitcnt vmcnt(0)")
    k(f"buffer_store_dword v{T+12}, v{T+8}, {sr(SRD_F,4)}, s90 offen sc1")
    if opt.get("modb_front", 0):
        sk_ = k.label("skmf")
        k(f"s_branch {sk_}")
        k(f"{nw0}:")
        k("s_waitcnt vmcnt(0)")
        for g in modb_loads(S_MB, V_W, V_C):
            for x in g: k(x)
        k(f"s_mov_b32 s{S_MB}, 0x7ff00000")
        k(f"{sk_}:")
    else:
        k(f"{nw0}:")
    k.stamp("s0 published")
    split = opt.get("split", 1)
    g1 = (setup_gemm1s if split else setup_gemm1)(k, opt)
    srd(k, SRD_W, P_WQKV, D * 3 * D * 2)
    if not opt.get("modb_front", 0):
        k("s_waitcnt vmcnt(1)")
        k(f"s_cmp_eq_u32 s{S_WAVE}, 0\ns_cbranch_scc1 1\ns_waitcnt vmcnt(0)")
    for d in range(16): k(f"v_lshlrev_b32 v{XF+2*d}, 16, v{XT_+d}\nv_and_b32 v{XF+2*d+1}, 0xffff0000, v{XT_+d}")
    VS = T + 4
    k(f"v_lshrrev_b32 v{VS}, 2, v{T+2}\nv_lshlrev_b32 v{VS}, 10, v{VS}")
    k(f"v_and_b32 v{T+3}, 3, v{T+2}\nv_lshl_add_u32 v{VS}, v{T+3}, 8, v{VS}\nv_lshl_add_u32 v{VS}, v{T+1}, 4, v{VS}")
    k(f"s_lshl_b32 s86, s{S_RB1}, 3\ns_lshl_b32 s87, s{S_WAVE}, 1\ns_add_u32 s86, s86, s87\ns_lshl_b32 s86, s86, 15\ns_lshl_b32 s87, s{S_HP}, 11\ns_add_u32 s86, s86, s87\ns_add_u32 s87, s86, 0x8000")
    k(f"s_lshl_b32 s88, s{S_RB1}, 2\ns_add_u32 s88, s88, s{S_WAVE}\ns_lshl_b32 s88, s88, {FS+4}\ns_add_u32 s88, s88, {F_H}\ns_lshl_b32 s89, s{S_HP}, {FS}\ns_add_u32 s89, s89, s88")
    k(f"v_lshlrev_b32 v{T+5}, 5, v{T+2}")
    k(f"s_lshl_b32 s92, s{S_WAVE}, 8\nv_lshlrev_b32 v{T+7}, 3, v{T+1}\nv_add_u32 v{T+7}, s92, v{T+7}")
    nw1 = k.label("notw0b")
    k(f"s_cmp_lg_u32 s{S_WAVE}, 0\ns_cbranch_scc1 {nw1}")
    k(f"v_and_b32 v{T+9}, 15, v{LANE}\ns_lshl_b32 s92, s{S_RB1}, 4\nv_add_u32 v{T+10}, s92, v{T+9}\nv_lshlrev_b32 v{T+9}, 4, v{T+9}\nv_add_u32 v{T+9}, s{S_HP}, v{T+9}")
    k(f"v_and_b32 v{T+11}, 16, v{LANE}\nv_cmp_eq_u32 vcc, 0, v{T+11}\ns_mov_b32 s92, {F_S0}\ns_nop 0")
    k(f"v_cndmask_b32 v{T+9}, v{T+9}, v{T+10}, vcc\nv_lshlrev_b32 v{T+9}, {FS}, v{T+9}")
    spin(k, [f"buffer_load_dword v{T+13}, v{T+9}, {sr(SRD_F,4)}, s92 offen sc1"], [T + 13], 0)
    k(f"s_lshl_b32 s94, s{S_HP}, 13\ns_add_u32 s95, s94, 4096")
    for p_ in range(16): k(f"buffer_load_dwordx2 {vr(G+2*p_,2)}, v{T+6}, {sr(SRD_B,4)}, s{94+p_//8} offen offset:{(p_%8)*512} sc1")
    k(f"s_lshl_b32 s90, s{S_RB1}, 10\ns_add_u32 s90, s90, {MP_RS}")
    k(f"buffer_load_dwordx4 {vr(A0+8,4)}, v{L16}, {sr(SRD_B,4)}, s90 offen sc1")
    k(f"v_cmp_lt_u32 vcc, 31, v{LANE}")
    k("s_waitcnt vmcnt(1)")
    for st in (8, 4, 2, 1):
        for j in range(st): k(f"v_pk_add_f32 {vr(G+2*j,2)}, {vr(G+2*j,2)}, {vr(G+2*(j+st),2)}")
    k(f"v_cvt_pk_bf16_f32 v{G+2}, v{G}, v{G+1}\nv_lshlrev_b32 v{G}, 16, v{G+2}\nv_and_b32 v{G+1}, 0xffff0000, v{G+2}")
    k(f"v_pk_add_f32 {vr(G+4,2)}, {vr(G,2)}, 1.0 op_sel_hi:[1,0]")
    k(f"v_cvt_pk_bf16_f32 v{G+2}, v{G+4}, v{G+5}\nv_lshlrev_b32 v{G+4}, 16, v{G+2}\nv_and_b32 v{G+5}, 0xffff0000, v{G+2}")
    k(f"v_cndmask_b32 v{G}, v{G}, v{G+4}, vcc\nv_cndmask_b32 v{G+1}, v{G+1}, v{G+5}, vcc")
    k(f"ds_write_b64 v{T+6}, {vr(G,2)} offset:{HL+4096}")
    k("s_waitcnt vmcnt(0)")
    k(f"ds_write_b128 v{L16}, {vr(A0+8,4)} offset:{HL+5120}")
    k("s_waitcnt lgkmcnt(0)")
    k(f"{nw1}:")
    g1.prefetch(k, opt.get("h_pre0", 0))
    srd(k, SRD_T, P_WS, S * D * 2, WS_H)
    k("s_barrier")
    k.stamp("s0 ready")
    for h in range(2): k(f"ds_read_b128 {vr(M+4*h,4)}, v{T+5} offset:{HL+4096+h*16}\nds_read_b128 {vr(M+8+4*h,4)}, v{T+5} offset:{HL+4096+256+h*16}")
    for i in range(4): k(f"ds_read_b64 {vr(RS+2*i,2)}, v{T+7} offset:{HL+5120+i*64}")
    k("s_waitcnt lgkmcnt(0)")
    for i in range(4):
        for j in range(4): k(f"v_pk_add_f32 {vr(XF+8*i+2*j,2)}, {vr(XF+8*i+2*j,2)}, {vr(RS+2*i,2)} op_sel_hi:[1,0]")
        for j in range(4): k(f"v_pk_mul_f32 {vr(XF+8*i+2*j,2)}, {vr(XF+8*i+2*j,2)}, {vr(RS+2*i,2)} op_sel:[0,1] op_sel_hi:[1,1]")
        for j in range(4): k(f"v_pk_fma_f32 {vr(XF+8*i+2*j,2)}, {vr(XF+8*i+2*j,2)}, {vr(M+8+2*j,2)}, {vr(M+2*j,2)}")
        for j in range(4): k(f"v_cvt_pk_bf16_f32 v{XR+4*i+j}, v{XF+8*i+2*j}, v{XF+8*i+2*j+1}")
        k(f"buffer_store_dwordx4 {vr(XR+4*i,4)}, v{VS}, {sr(SRD_T,4)}, s{86 + i//2} offen offset:{(i%2)*128} sc1")
    k.stamp("h computed")
    mk = len(k.L)
    g1.prefetch(k, opt.get("h_pre1a", 4 if split else 6))
    publish(k, 89, T, mk)
    k.stamp("h published")
    g1.prefetch(k, opt.get("h_pre1", 8 if split else 6))
    if not split:
        k.g3 = setup_gemm3_early(k, opt, LANE, 56)
        for i in range(8): k(f"global_load_ushort {ar(A_UT+32+i,1)}, v{V_C}, s[{P_C}:{P_C+1}] offset:{i*16}")
    k(f"v_and_b32 v252, 15, v{LANE}\nv_lshlrev_b32 v252, {FS}, v252\ns_mov_b32 s93, s88")
    staged_wait(k, g1, opt.get("g1_T", 4), 252, 93, 253, one_prod)
    k.stamp("h ready")
    return g1

def phase_front(k, opt, name):
    LANE, L16 = 104, 105
    T = 48
    V_W, V_C = 115, 109
    RS, XR, XT_, XF, G, M = 64, 128, 144, 0, 160, 32
    HL = 2 * 25344
    k(f"v_and_b32 v{LANE}, 63, v0")
    k(f"v_lshrrev_b32 v{T+1}, 3, v{LANE}\nv_and_b32 v{T+2}, 7, v{LANE}")
    k(f"v_lshlrev_b32 v{T+5}, 11, v{T+1}\nv_lshl_add_u32 v{T+5}, v{T+2}, 4, v{T+5}")
    k(f"s_lshl_b32 s91, s{S_RB1}, 18\ns_lshl_b32 s92, s{S_WAVE}, 16\ns_add_u32 s91, s91, s92\ns_lshl_b32 s92, s{S_HP}, 7\ns_add_u32 s91, s91, s92")
    k(f"v_lshlrev_b32 v{T+8}, 3, v{LANE}\nv_lshlrev_b32 v{T+6}, 3, v{T+1}")
    k(f"s_lshl_b32 s94, s{S_HP}, 13\ns_add_u32 s95, s94, 4096")
    k(f"s_lshl_b32 s90, s{S_RB1}, 10\ns_lshl_b32 s93, s{S_WAVE}, 8\ns_add_u32 s90, s90, s93\ns_add_u32 s90, s90, {MP_RS}")
    k("s_waitcnt lgkmcnt(0)")
    srd(k, SRD_B, P_WS, MP_BYTES, WS_MODP)
    srd(k, SRD_A, P_X, S * D * 2)
    for p_ in range(16): k(f"buffer_load_dwordx2 {vr(G+2*p_,2)}, v{T+8}, {sr(SRD_B,4)}, s{94+p_//8} offen offset:{(p_%8)*512}")
    for i in range(4): k(f"buffer_load_dwordx2 {vr(RS+2*i,2)}, v{T+6}, {sr(SRD_B,4)}, s90 offen offset:{i*64}")
    for i in range(4):
        k(f"buffer_load_dwordx4 {vr(XT_+4*i,4)}, v{T+5}, {sr(SRD_A,4)}, s91 offen")
        if i < 3: k("s_add_u32 s91, s91, 16384")
    k.stamp("loads issued")
    def touch(ptr, per, vt, off=0):
        k(f"s_lshl_b32 s80, s2, 2\ns_add_u32 s80, s80, s{S_WAVE}\ns_mul_i32 s80, s80, {per*128}")
        if off: k(f"s_add_u32 s80, s80, {off}")
        k(f"v_min_u32 v{vt}, {per-1}, v{LANE}\nv_lshlrev_b32 v{vt}, 7, v{vt}\nv_add_u32 v{vt}, s80, v{vt}")
        k(f"global_load_dword a232, v{vt}, s[{ptr}:{ptr+1}]")
    nt0 = 0
    if opt.get("m_touch", 0) == 1: touch(P_WQKV, 48, 254); nt0 = 1
    g1 = setup_gemm1(k, opt)
    srd(k, SRD_W, P_WQKV, D * 3 * D * 2)
    n0 = opt.get("h_pre0", 6)
    g1.prefetch(k, n0)
    n0 += nt0
    srd(k, SRD_F, P_WS, FLAG_BYTES, WS_FLAG)
    srd(k, SRD_T, P_WS, S * D * 2, WS_H)
    VS = T + 4
    k(f"v_lshrrev_b32 v{VS}, 2, v{T+2}\nv_lshlrev_b32 v{VS}, 10, v{VS}")
    k(f"v_and_b32 v{T+3}, 3, v{T+2}\nv_lshl_add_u32 v{VS}, v{T+3}, 8, v{VS}\nv_lshl_add_u32 v{VS}, v{T+1}, 4, v{VS}")
    k(f"s_lshl_b32 s86, s{S_RB1}, 3\ns_lshl_b32 s87, s{S_WAVE}, 1\ns_add_u32 s86, s86, s87\ns_lshl_b32 s86, s86, 15\ns_lshl_b32 s87, s{S_HP}, 11\ns_add_u32 s86, s86, s87\ns_add_u32 s87, s86, 0x8000")
    k(f"s_lshl_b32 s88, s{S_WAVE}, 9\nv_add_u32 v{T+8}, s88, v{T+8}\nv_lshlrev_b32 v{T+5}, 5, v{T+2}\nv_add_u32 v{T+5}, s88, v{T+5}")
    k(f"s_lshl_b32 s88, s{S_RB1}, 2\ns_add_u32 s88, s88, s{S_WAVE}\ns_lshl_b32 s88, s88, {FS+4}\ns_add_u32 s88, s88, {F_H}\ns_lshl_b32 s89, s{S_HP}, {FS}\ns_add_u32 s89, s89, s88")
    k(f"v_cmp_lt_u32 vcc, 31, v{LANE}")
    k(f"s_waitcnt vmcnt({8 + n0})")
    for st in (8, 4, 2, 1):
        for j in range(st): k(f"v_pk_add_f32 {vr(G+2*j,2)}, {vr(G+2*j,2)}, {vr(G+2*(j+st),2)}")
    k(f"v_cvt_pk_bf16_f32 v{G+2}, v{G}, v{G+1}\nv_lshlrev_b32 v{G}, 16, v{G+2}\nv_and_b32 v{G+1}, 0xffff0000, v{G+2}")
    k(f"v_pk_add_f32 {vr(G+4,2)}, {vr(G,2)}, 1.0 op_sel_hi:[1,0]")
    k(f"v_cvt_pk_bf16_f32 v{G+2}, v{G+4}, v{G+5}\nv_lshlrev_b32 v{G+4}, 16, v{G+2}\nv_and_b32 v{G+5}, 0xffff0000, v{G+2}")
    k(f"v_cndmask_b32 v{G}, v{G}, v{G+4}, vcc\nv_cndmask_b32 v{G+1}, v{G+1}, v{G+5}, vcc")
    k(f"ds_write_b64 v{T+8}, {vr(G,2)} offset:{HL}")
    k("s_waitcnt lgkmcnt(0)")
    for h in range(2): k(f"ds_read_b128 {vr(M+4*h,4)}, v{T+5} offset:{HL+h*16}\nds_read_b128 {vr(M+8+4*h,4)}, v{T+5} offset:{HL+256+h*16}")
    for i in range(4):
        k(f"s_waitcnt vmcnt({3 - i + n0})")
        for d in range(4): k(f"v_lshlrev_b32 v{XF+8*i+2*d}, 16, v{XT_+4*i+d}\nv_and_b32 v{XF+8*i+2*d+1}, 0xffff0000, v{XT_+4*i+d}")
        for j in range(4): k(f"v_pk_add_f32 {vr(XF+8*i+2*j,2)}, {vr(XF+8*i+2*j,2)}, {vr(RS+2*i,2)} op_sel_hi:[1,0]")
        for j in range(4): k(f"v_pk_mul_f32 {vr(XF+8*i+2*j,2)}, {vr(XF+8*i+2*j,2)}, {vr(RS+2*i,2)} op_sel:[0,1] op_sel_hi:[1,1]")
    k("s_waitcnt lgkmcnt(0)")
    for i in range(4):
        for j in range(4): k(f"v_pk_fma_f32 {vr(XF+8*i+2*j,2)}, {vr(XF+8*i+2*j,2)}, {vr(M+8+2*j,2)}, {vr(M+2*j,2)}")
        for j in range(4): k(f"v_cvt_pk_bf16_f32 v{XR+4*i+j}, v{XF+8*i+2*j}, v{XF+8*i+2*j+1}")
        k(f"buffer_store_dwordx4 {vr(XR+4*i,4)}, v{VS}, {sr(SRD_T,4)}, s{86 + i//2} offen offset:{(i%2)*128} sc1")
    k.stamp("h computed")
    code_prefetch_setup(k, name)
    srd(k, SRD_D, P_WMOD, D * 6 * D * 2)
    k(f"v_mul_u32_u24 v{V_W}, 12288, v{T+1}\nv_lshl_add_u32 v{V_W}, v{T+2}, 4, v{V_W}")
    k(f"s_lshl_b32 s84, s{S_RB1}, 6\nv_add_u32 v{V_C}, s84, v{T+1}\nv_lshlrev_b32 v{V_C}, 1, v{V_C}")
    k(f"s_mul_i32 s86, s84, 12288\ns_lshl_b32 s87, s{S_HP}, 7\ns_add_u32 s86, s86, s87")
    k(f"s_lshl_b32 s94, s{S_WAVE}, 11\ns_add_u32 s{S_MB}, s86, s94\ns_add_u32 s{S_MB}, s{S_MB}, 4096")
    k(f"s_lshl_b32 s94, s{S_WAVE}, 16\ns_lshl_b32 s95, s{S_HP}, 12\ns_add_u32 s94, s94, s95\ns_lshl_b32 s95, s{S_RB1}, 8\ns_add_u32 s94, s94, s95\ns_add_u32 s{S_MO}, s94, {MP_B}")
    k.g3 = setup_gemm3_early(k, opt, LANE, 56)
    publish(k, 89, T)
    k.stamp("h published")
    if opt.get("m_touch", 0) == 2: touch(P_WQKV, 48, 254)
    k("s_barrier")
    g1.prefetch(k, opt.get("h_pre1", 12))
    for i in range(8): k(f"global_load_ushort {ar(A_UT+32+i,1)}, v{V_C}, s[{P_C}:{P_C+1}] offset:{i*16}")
    k(f"v_and_b32 v252, 15, v{LANE}\nv_lshlrev_b32 v252, {FS}, v252\ns_mov_b32 s93, s88")
    staged_wait(k, g1, opt.get("g1_T", 4), 252, 93, 253, one_prod)
    k.stamp("h ready")
    return g1

def setup_gemm24(k, which, opt, base):
    c = Sched(); common_gemm(c)
    K = 1024 if which == 2 else 3584
    NS, R = opt.get("g2_NS", 4), opt.get(f"g{which}_R", 4)
    STAGE = 8448
    if isinstance(base, tuple): V_RD, V_DMA, V_TOK, LANE, L16, VT = base
    else:
        V_RD, V_DMA, V_TOK, LANE, L16, VT = base, base + 1, base + 2, base + 4, base + 5, base + 6
        lane_id(k, LANE)
        k(f"v_lshlrev_b32 v{L16}, 4, v{LANE}")
    c.LANE, c.L16 = LANE, L16
    hs = c.hs = opt.get("hsplit", 1) and opt.get("split", 1)
    order(c, k, opt, "g2", ["win", [8, 8], 0] if hs else ["win", [1, 1, 2, 4, 8], 1])
    if hs:
        c.w_off = lambda sd, kt: [T(x) for x in c.pos_txt(sd, kt)] + [T(f"s_mul_i32 s{sd}, s{sd}, {128*2048}")] + ([T(f"s_add_u32 s{sd}, s{sd}, {(32 - 8*128)*2048}")] if kt >= 8 else [])
        c.t_off = lambda sd, kt: [T(x) for x in c.pos_txt(sd, kt)] + [T(f"s_lshl_b32 s{sd}, s{sd}, 12")] + ([T(f"s_add_u32 s{sd}, s{sd}, {1024 - 8*4096}")] if kt >= 8 else [])
        c.sub_stride = 2048
    k(f"s_lshr_b32 s80, s{S_WAVE}, 1\ns_and_b32 s81, s{S_WAVE}, 1")
    k(f"s_lshl_b32 s82, s80, {6 if hs else 5}\ns_lshl_b32 s83, s81, 1\ns_add_u32 s82, s82, s83\ns_lshl_b32 s82, s82, 11")
    k(f"s_lshl_b32 s83, s{S_NT}, 7\ns_add_u32 s82, s82, s83")
    k(f"v_lshrrev_b32 v{VT}, 3, v{LANE}\nv_lshlrev_b32 v{VT}, 13, v{VT}")
    k(f"v_and_b32 v{VT+1}, 7, v{LANE}\nv_lshl_add_u32 v{VT}, v{VT+1}, 4, v{VT}")
    k(f"v_add_u32 v{V_DMA}, s82, v{VT}")
    k(f"v_bfe_u32 v{VT}, v{LANE}, 2, 2\nv_mul_u32_u24 v{VT}, 1056, v{VT}")
    k(f"v_lshrrev_b32 v{VT+1}, 4, v{LANE}\nv_lshl_add_u32 v{VT}, v{VT+1}, 7, v{VT}")
    k(f"v_and_b32 v{VT+1}, 3, v{LANE}\nv_lshl_add_u32 v{V_RD}, v{VT+1}, 3, v{VT}")
    k(f"v_add_u32 v{V_RD}, {L_R2}, v{V_RD}")
    c.V_RDX = V_RD
    k(f"s_lshl_b32 s82, s{S_RB2}, 3\ns_lshl_b32 s83, s{S_WAVE}, 1\ns_add_u32 s82, s82, s83\ns_mul_i32 s82, s82, {K//32*1024}")
    k(f"v_add_u32 v{V_TOK}, s82, v{L16}\nv_add_u32 v{V_TOK+1}, {K//32*1024}, v{V_TOK}")
    k(f"s_mul_i32 s{S_WB}, s80, 4224\ns_mul_i32 s82, s81, 2112\ns_add_u32 s{S_WB}, s{S_WB}, s82\ns_add_u32 s{S_WB}, s{S_WB}, {L_R2}")
    srd(k, SRD_W, P_WO if which == 2 else P_W2, K * D * 2)
    c.NB, c.TB, c.KS, c.SPK, c.KT, c.NS, c.R = 4, 2, 2, 1, K // 64, NS, R
    c.acc = lambda b, t: vr((b * 2 + t) * 4, 4)
    c.tf = lambda slot, ks, t: 64 + ((slot * 2 + ks) * 2 + t) * 4
    def sl_(sl): return (V_RD, 0, sl) if sl < 4 else ((42, 67584 - L_R2, sl - 4) if sl < 9 else (43, 1024 - L_R2, sl - 9))
    c.rd = lambda sl, b, sub, r: (sl_(sl)[0], sl_(sl)[2] * STAGE + sub * 4224 + r * 512 + b * 32)
    c.slot_addr = lambda sl: sl_(sl)[1] + sl_(sl)[2] * STAGE
    c.dma = [(V_DMA, 0, 0), (V_DMA, 1056, 2048)]
    c.v_tok = [V_TOK, V_TOK + 1]
    c.w_stride = 64 * 2048
    c.drop = opt.get(f"g{which}_drop", ())
    c.pro_units, c.ramp_rate, c.read_margin = opt.get(f"g{which}_pro", 12), opt.get(f"g{which}_ramp", 6), 4
    std_sched(c)
    return c

S_G80, S_G192 = 6, 7
def setup_gemm4p(k, opt, base):
    c = Sched(); common_gemm(c)
    HS = 8448; STAGE = 2 * HS
    L = 12; KT = 28; MAIN = KT - L
    V_RD, V_DE, V_DK, V_TOK, LANE, L16, VT = base, base + 2, base + 3, base + 4, base + 6, base + 7, base + 8
    c.LANE, c.L16, c.V_DE, c.V_DK, c.V_TOK = LANE, L16, V_DE, V_DK, V_TOK
    lane_id(k, LANE)
    k(f"v_lshlrev_b32 v{L16}, 4, v{LANE}")
    c.KT = KT
    order(c, k, opt, "g4", ["win", [4, 4, 8, 8, 4], 0])
    k(f"s_lshr_b32 s80, s{S_WAVE}, 1\ns_and_b32 s81, s{S_WAVE}, 1")
    k(f"s_mul_i32 s{S_G80}, s80, {80*2048}\ns_mul_i32 s{S_G192}, s80, {192*2048}")
    k("s_lshl_b32 s82, s80, 5\ns_lshl_b32 s83, s81, 1\ns_add_u32 s82, s82, s83")
    k(f"s_and_b32 s{S_TMP}, s{S_NT}, 1\ns_mul_i32 s83, s{S_TMP}, 1792\ns_add_u32 s82, s82, s83\ns_lshl_b32 s82, s82, 11")
    k(f"v_lshrrev_b32 v{VT}, 3, v{LANE}\nv_lshlrev_b32 v{VT}, 13, v{VT}")
    k(f"v_and_b32 v{VT+1}, 7, v{LANE}\nv_lshl_add_u32 v{VT}, v{VT+1}, 4, v{VT}")
    k(f"v_add_u32 v{VT}, s82, v{VT}")
    k(f"s_lshl_b32 s83, s{S_NT}, 7\nv_add_u32 v{V_DK}, s83, v{VT}\nv_xor_b32 v{V_DE}, 128, v{V_DK}")
    k(f"v_bfe_u32 v{VT}, v{LANE}, 2, 2\nv_mul_u32_u24 v{VT}, 1056, v{VT}")
    k(f"v_lshrrev_b32 v{VT+1}, 4, v{LANE}\nv_lshl_add_u32 v{VT}, v{VT+1}, 7, v{VT}")
    k(f"v_and_b32 v{VT+1}, 3, v{LANE}\nv_lshl_add_u32 v{V_RD+1}, v{VT+1}, 3, v{VT}")
    k(f"v_add_u32 v{V_RD}, {L_R2}, v{V_RD+1}")
    k(f"s_lshl_b32 s82, s{S_RB2}, 3\ns_lshl_b32 s83, s{S_WAVE}, 1\ns_add_u32 s82, s82, s83\ns_mul_i32 s82, s82, {112*1024}")
    k(f"s_mul_i32 s83, s{S_TMP}, {56*1024}\ns_add_u32 s82, s82, s83")
    k(f"v_add_u32 v{V_TOK}, s82, v{L16}\nv_add_u32 v{V_TOK+1}, {112*1024}, v{V_TOK}")
    k(f"s_mul_i32 s{S_WB}, s80, 4224\ns_mul_i32 s82, s81, 2112\ns_add_u32 s{S_WB}, s{S_WB}, s82")
    srd(k, SRD_W, P_W2, F * D * 2)
    c.drop = opt.get("g4_drop", ())
    V2E, V2K, V2T = 64, 65, 66
    c.V2 = (V2E, V2K, V2T)
    NS4 = opt.get("g4_NS", 8)
    slot_addr = [L_R2, L_R2 + STAGE] + [1024 + i * STAGE for i in range(6)]
    c.V_RD3 = 68; c.V_RD = V_RD
    def rd(sl, half, b, sub, r):
        off = half * HS + sub * 4224 + r * 512 + b * 32
        if sl < 2: return (V_RD, sl * STAGE + off)
        if sl < 5: return (V_RD + 1, slot_addr[sl] + off)
        return (c.V_RD3, slot_addr[sl] - slot_addr[5] + off)
    c.rd3_base = slot_addr[5]
    NT_ = 2 * L
    tf = lambda kt, sub, t: 64 + (((kt * 2 + sub) % NT_) * 2 + t) * 4
    acc = lambda b, t: vr((b * 2 + t) * 4, 4)
    c.wf = lambda buf, j: (buf * 8 + j) * 4
    typ = lambda kt: "A" if kt < 16 else ("B1" if kt < 24 else "B2")
    if opt.get("g4_fast", 1):
        base_pos = c.pos_txt
        def pos2(sd, kt):
            o = base_pos(sd, kt)
            if kt >= 16: return o
            t_ = S_PTMP
            o += [f"s_and_b32 s{t_}, s{sd}, 1", f"s_and_b32 s{sd}, s{sd}, 6", f"s_lshl_b32 s{sd}, s{sd}, 1"]
            o += [f"s_mul_i32 s{t_}, s{t_}, 3"] if kt < 8 else [f"s_add_u32 s{t_}, s{t_}, 1"]
            o += [f"s_add_u32 s{sd}, s{sd}, s{t_}"]
            return o
        c.pos_txt = pos2
    def w_off(sd, kt):
        o = [T(x) for x in c.pos_txt(sd, kt)]
        if typ(kt) == "A": o.append(T(f"s_mul_i32 s{sd}, s{sd}, {112*2048}"))
        elif typ(kt) == "B1": o += [T(f"s_mul_i32 s{sd}, s{sd}, {224*2048}"), T(f"s_add_u32 s{sd}, s{sd}, {(64 - 16*224)*2048}"), T(f"s_add_u32 s{sd}, s{sd}, s{S_G80}")]
        else: o += [T(f"s_mul_i32 s{sd}, s{sd}, {448*2048}"), T(f"s_add_u32 s{sd}, s{sd}, {(96 - 24*448)*2048}"), T(f"s_add_u32 s{sd}, s{sd}, s{S_G192}")]
        return o
    tab = opt.get("g4_tab", 1) and opt.get("g4_fast", 1) and "g4_ord" not in opt
    VW, VTT = 239, 232
    c.tabtxt = []
    if tab:
        t_ = Txt(); X, Y, Z = VT, VT + 1, 253
        t_(f"v_add_u32 v{X}, s{S_R4}, v{LANE}\nv_and_b32 v{X}, 3, v{X}\nv_and_b32 v{Y}, -4, v{LANE}\nv_or_b32 v{X}, v{X}, v{Y}")
        t_(f"v_add_u32 v{Y}, s{S_R8}, v{LANE}\nv_and_b32 v{Y}, 7, v{Y}\nv_and_b32 v{Z}, -8, v{LANE}\nv_or_b32 v{Y}, v{Y}, v{Z}")
        t_(f"v_subrev_u32 v{Z}, 8, v{LANE}\nv_cmp_gt_u32 vcc, 16, v{Z}\ns_nop 1\nv_cndmask_b32 v{X}, v{X}, v{Y}, vcc")
        t_(f"v_and_b32 v{Y}, 1, v{X}\nv_mul_u32_u24 v{Z}, 3, v{Y}\nv_add_u32 v{Y}, 1, v{Y}\nv_cmp_gt_u32 vcc, 8, v{LANE}\ns_nop 1\nv_cndmask_b32 v{Y}, v{Y}, v{Z}, vcc")
        t_(f"v_and_b32 v{Z}, 6, v{X}\nv_lshl_add_u32 v{Y}, v{Z}, 1, v{Y}")
        t_(f"v_mul_u32_u24 v{VW}, {112*2048}, v{Y}\nv_mul_u32_u24 v{VTT}, 3584, v{Y}")
        t_(f"v_subrev_u32 v{Y}, 16, v{X}\nv_mul_u32_u24 v{Z}, {224*2048}, v{Y}\nv_add_u32 v{Z}, {64*2048}, v{Z}\nv_add_u32 v{Z}, s{S_G80}, v{Z}")
        t_(f"v_cmp_lt_u32 vcc, 15, v{LANE}\nv_mul_u32_u24 v{Y}, 7168, v{Y}\nv_add_u32 v{Y}, 2048, v{Y}\nv_cndmask_b32 v{VW}, v{VW}, v{Z}, vcc\nv_cndmask_b32 v{VTT}, v{VTT}, v{Y}, vcc")
        t_(f"v_subrev_u32 v{Y}, 24, v{X}\nv_mul_u32_u24 v{Z}, {448*2048}, v{Y}\nv_add_u32 v{Z}, {96*2048}, v{Z}\nv_add_u32 v{Z}, s{S_G192}, v{Z}")
        t_(f"v_cmp_lt_u32 vcc, 23, v{LANE}\nv_mul_u32_u24 v{Y}, 14336, v{Y}\nv_add_u32 v{Y}, 3072, v{Y}\nv_cndmask_b32 v{VW}, v{VW}, v{Z}, vcc\nv_cndmask_b32 v{VTT}, v{VTT}, v{Y}, vcc")
        c.tabtxt = t_.L
    halves = [[("E", kt), ("K", kt)] for kt in range(MAIN)]
    halves += [[("E", MAIN + 2 * j), ("E", MAIN + 2 * j + 1)] for j in range(L // 2)]
    halves += [[("K", MAIN + 2 * j), ("K", MAIN + 2 * j + 1)] for j in range(L // 2)]
    seq = []
    for hv in halves:
        for _, kt in hv:
            if not seq or seq[-1] != kt: seq.append(kt)
    nseq = 0
    cur = None; flip = 0
    for st, hv in enumerate(halves):
        us = []
        for h, (kind, kt) in enumerate(hv):
            pre = []; post = []
            if cur != kt:
                flip ^= 1; cur = kt
                if not tab or nseq < opt.get("g4_tab0", 8): pre = w_off(c.s_kw + flip, kt)
                nseq += 1
                if tab and opt.get("g4_tab0", 8) <= nseq < len(seq): post = [T(f"v_readlane_b32 s{c.s_kw + (flip ^ 1)}, v{VW}, {seq[nseq]}")]
            vo = (V2E if kind == 'E' else V2K) if typ(kt) == "B2" else (V_DE if kind == 'E' else V_DK)
            for i, goff in enumerate((0, 2048)):
                us.append((pre if i == 0 else []) + [T(f"s_add_u32 m0, s{S_WB}, {slot_addr[st % NS4] + h * HS + i * 1056 - goff}"),
                          VM(f"buffer_load_dwordx4 v{vo}, {sr(SRD_W,4)}, s{c.s_kw + flip} offen" + (f" offset:{goff}" if goff else "") + " lds", ("dma", st))] + (post if i == 0 else []))
        c.stage_units[st] = us; c.stage_slot[st] = st % NS4
        for j in range(2):
            frags = []; toks = []
            parts = [(0, j), (1, j)] if st < MAIN else [(j, 0), (j, 1)]
            for h, sub in parts:
                kind, kt = hv[h]
                if (kt, sub) not in toks: toks.append((kt, sub))
                for b in range(4):
                    va, o0 = rd(st % NS4, h, b, sub, 0); _, o1 = rd(st % NS4, h, b, sub, 1)
                    frags.append((va, o0, o1, [(acc(b + (0 if kind == 'E' else 4), t), tf(kt, sub, t)) for t in range(2)]))
            c.steps.append(dict(frags=frags, stages=[st], toks=toks))
    for kt in range(KT):
        sd = c.s_kt + kt % 2
        for sub in range(2):
            us = []
            for t in range(2):
                g = []
                if sub == 0 and t == 0 and (not tab or kt < 4):
                    g = [T(x) for x in c.pos_txt(sd, kt)]
                    if typ(kt) == "A": g.append(T(f"s_mul_i32 s{sd}, s{sd}, 3584"))
                    elif typ(kt) == "B1": g += [T(f"s_mul_i32 s{sd}, s{sd}, 7168"), T(f"s_add_u32 s{sd}, s{sd}, {2048 - 16*7168}")]
                    else: g += [T(f"s_mul_i32 s{sd}, s{sd}, 14336"), T(f"s_add_u32 s{sd}, s{sd}, {3072 - 24*14336}")]
                key = ("tok", (kt, sub))
                if typ(kt) == "B2":
                    if sub == 1 and t == 0: g.append(T(f"s_add_u32 s{sd}, s{sd}, 7168"))
                    g.append(VM(f"buffer_load_dwordx2 {ar(tf(kt, sub, t),2)}, v{V2T+t}, {sr(SRD_T,4)}, s{sd} offen sc1", key))
                    g.append(VM(f"buffer_load_dwordx2 {ar(tf(kt, sub, t)+2,2)}, v{V2T+t}, {sr(SRD_T,4)}, s{sd} offen offset:3584 sc1", key))
                else:
                    g.append(VM(f"buffer_load_dwordx4 {ar(tf(kt, sub, t),4)}, v{V_TOK+t}, {sr(SRD_T,4)}, s{sd} offen offset:{sub*(1024 if typ(kt) == 'A' else 3584)} sc1", key))
                if tab and sub == 0 and t == 0 and 4 <= kt + 1 < KT: g.append(T(f"v_readlane_b32 s{c.s_kt + (kt + 1) % 2}, v{VTT}, {kt + 1}"))
                us.append(g)
            c.tok_units[(kt, sub)] = us; c.tok_slot[(kt, sub)] = (kt * 2 + sub) % NT_
    c.pro_units, c.ramp_rate, c.read_margin, c.lookahead = opt.get("g4_pro", 12), opt.get("g4_ramp", 5), 4, opt.get("g4_la", 12)
    c.MAIN, c.L = MAIN, L
    return c

def phase_gemm4p(k, c, opt):
    LANE, L16 = c.LANE, c.L16
    VT = 72
    srd(k, SRD_T, P_WS, S * F * 2, WS_HH)
    srd(k, SRD_A, P_OUT, S * D * 2)
    srd(k, SRD_B, P_WS, 8 << 20, WS_P4)
    V_G, V_GA, V_XA, V_X, IMP, VF = 96, 76, 77, 80, 128, 78
    for j in range(16): k(f"v_accvgpr_read_b32 v{V_X+j}, a{A_X1+j}")
    k(f"v_and_b32 v{VT}, 15, v{LANE}\nv_lshlrev_b32 v{VT}, {FS}, v{VT}")
    k(f"s_lshl_b32 s84, s{S_RB2}, 1\ns_lshr_b32 s85, s{S_WAVE}, 1\ns_add_u32 s84, s84, s85\ns_lshl_b32 s84, s84, {FS+5}\ns_add_u32 s84, s84, {F_HH}")
    k(f"s_and_b32 s85, s{S_NT}, 1\ns_lshl_b32 s85, s85, {FS+4}\ns_add_u32 s84, s84, s85")
    k(f"v_mov_b32 v252, v{VT}")
    c.tile_of = lambda key: key[0]
    k(f"s_add_u32 s85, s84, {F_HB - F_HH}")
    staged_wait(k, c, opt.get("g4_T", 8), 252, 84, 253, one_prod, pub=((93 if c.binl else 94), 70))
    add_gate(k, c, 16, f"buffer_load_dword v253, v252, {sr(SRD_F,4)}, s85 offen sc1", 253)
    k.stamp("hh ready")
    p = Txt()
    p(f"v_lshrrev_b32 v{VT}, 4, v{LANE}\nv_lshlrev_b32 v{V_GA}, 4, v{VT}\nv_add_u32 v{V_GA}, {L_MV}, v{V_GA}")
    p(f"v_and_b32 v{VT+1}, 15, v{LANE}\nv_lshlrev_b32 v{VT+1}, 11, v{VT+1}")
    p(f"v_and_b32 v{VT+2}, 1, v{VT}\nv_lshl_add_u32 v{VT+1}, v{VT+2}, 5, v{VT+1}")
    p(f"v_lshrrev_b32 v{VT+2}, 1, v{VT}\nv_lshl_add_u32 v{V_XA}, v{VT+2}, 4, v{VT+1}")
    p(f"s_lshl_b32 s86, s{S_RB2}, 3\ns_lshl_b32 s87, s{S_WAVE}, 1\ns_add_u32 s86, s86, s87\ns_lshl_b32 s86, s86, 15\ns_lshl_b32 s87, s{S_NT}, 7\ns_add_u32 s86, s86, s87\ns_add_u32 s87, s86, 32768")
    p(f"s_lshl_b32 s88, s{S_RB2}, 4\ns_add_u32 s88, s88, s{S_NT}\ns_lshl_b32 s88, s88, 2\ns_add_u32 s88, s88, s{S_WAVE}")
    p("s_xor_b32 s89, s88, 4")
    p(f"s_lshl_b32 s90, s88, 13\ns_add_u32 s91, s90, 4096\ns_lshl_b32 s92, s89, 13\ns_add_u32 s93, s92, 4096")
    p(f"s_lshl_b32 s88, s88, {FS}\ns_add_u32 s88, s88, {F_P4}\ns_lshl_b32 s89, s89, {FS}\ns_add_u32 s89, s89, {F_P4}")
    V2E, V2K, V2T = c.V2
    p(f"v_add_u32 v{c.V_RD3}, {c.rd3_base}, v{c.V_RD+1}")
    p(f"v_lshrrev_b32 v{VT}, 5, v{LANE}\nv_mul_u32_u24 v{VT}, {96*2048}, v{VT}\nv_add_u32 v{V2E}, v{c.V_DE}, v{VT}\nv_add_u32 v{V2K}, v{c.V_DK}, v{VT}")
    p(f"v_lshrrev_b32 v{VT}, 1, v{L16}\nv_sub_u32 v{V2T}, v{c.V_TOK}, v{VT}\nv_sub_u32 v{V2T+1}, v{c.V_TOK+1}, v{VT}")
    p(f"v_mov_b32 v{VT}, 1\nv_mov_b32 v{VT+1}, 0")
    c.pre_loop_txt = p.L
    N = len(c.steps); p2 = N - c.L
    if c.binl:
        nbs = opt.get("binl_steps", 10); per = -(-len(c.binl) // nbs)
        c.gate_min = {16: nbs + 2 + opt.get("binl_gap", 8)}
        items = [VM(x, ("hb", 0)) if is_vm(x) else T(x) for x in c.binl]
        c.step_extra = lambda st: items[st * per:(st + 1) * per]
        c.late.setdefault(nbs + 2, []).extend([WVM([("hb", 0)]), f"buffer_store_dword v{VT}, v{VT+1}, {sr(SRD_F,4)}, s94 offen sc1"])
    for st_ in opt.get("cp4", []): c.late.setdefault(st_, []).extend(code_prefetch_txt(k.name, L16, 254, 80, junk="v240"))
    ex = [VM(f"buffer_store_dwordx4 {vr(4*j,4)}, v{L16}, {sr(SRD_B,4)}, s{90 + j//4} offen offset:{(j%4)*1024} sc1", ("exp", 0)) for j in range(8)]
    ne_ = opt.get("g4_ne", 2)
    for j in range(ne_): c.late[p2 + 1 + j] = ex[j * 8 // ne_:(j + 1) * 8 // ne_]
    c.late[p2 + opt.get("g4_fs", 6)] = [WVM([("exp", 0)]), f"buffer_store_dword v{VT}, v{VT+1}, {sr(SRD_F,4)}, s88 offen sc1"]
    c.late[N - 3] = [VM(f"buffer_load_dword v{VF}, v{VT+1}, {sr(SRD_F,4)}, s89 offen sc1", ("pf", 0))]
    c.last_reads = [f"ds_read_b128 {vr(V_G+4*b,4)}, v{V_GA} offset:{768+b*64}" for b in range(4)]
    m = Txt(); m.label = k.label
    okl = k.label("pok")
    m(f"v_cmp_eq_u32 vcc, 0, v{VF}\ns_cmp_eq_u64 vcc, 0\ns_cbranch_scc1 {okl}")
    spin(m, [f"buffer_load_dword v{VF}, v{VT+1}, {sr(SRD_F,4)}, s89 offen sc1"], [VF], 0)
    m(f"{okl}:")
    c.late[N - 1] = [WVM([("pf", 0)]), T("\n".join(m.L))] + [f"buffer_load_dwordx4 {vr(IMP+4*j,4)}, v{L16}, {sr(SRD_B,4)}, s{92 + j//4} offen offset:{(j%4)*1024} sc1" for j in range(8)]
    c.run(k)
    k.stamp("g4 loop done")
    A = lambda b, t: 32 + (b * 2 + t) * 4
    XT = 112
    XF = 160
    for j in range(16): k(f"v_lshlrev_b32 v{XF+2*j}, 16, v{V_X+j}\nv_and_b32 v{XF+2*j+1}, 0xffff0000, v{V_X+j}")
    k("s_waitcnt vmcnt(0) lgkmcnt(0)")
    for t in range(2):
        for b in range(4):
            for h in range(2): k(f"v_pk_add_f32 {vr(A(b,t)+2*h,2)}, {vr(A(b,t)+2*h,2)}, {vr(IMP+(b*2+t)*4+2*h,2)}")
            for h in range(2): k(f"v_pk_fma_f32 {vr(A(b,t)+2*h,2)}, {vr(A(b,t)+2*h,2)}, {vr(V_G+4*b+2*h,2)}, {vr(XF+(t*4+b)*4+2*h,2)}")
        PK = XT + t * 8
        for b in range(4): k(f"v_cvt_pk_bf16_f32 v{PK+2*b}, v{A(b,t)}, v{A(b,t)+1}\nv_cvt_pk_bf16_f32 v{PK+2*b+1}, v{A(b,t)+2}, v{A(b,t)+3}")
        k("s_nop 1")
        for s_ in range(2): k(f"v_permlane16_swap_b32 v{PK+4*s_}, v{PK+4*s_+2}\nv_permlane16_swap_b32 v{PK+4*s_+1}, v{PK+4*s_+3}")
        for s_ in range(2): k(f"buffer_store_dwordx4 {vr(PK+4*s_,4)}, v{V_XA}, {sr(SRD_A,4)}, s{86+t} offen offset:{s_*64}")

def phase_gemm1(k, c, opt):
    LANE, L16, VT = c.LANE, c.L16, c.VT
    PHK, VV, SH, UTX = 0, 34816, 114688, 126976
    A_PH = 160
    p = Txt()
    srd(p, SRD_A, P_WPHI, H * 2048)
    srd(p, SRD_B, P_WS, 2 << 20, WS_KVP)
    srd(p, SRD_C, P_WS, 128 << 10, WS_ZP)
    A_PW, A_VW, A_PR, A_VR, A_WR = 110, 111, 112, 113, 114
    p(f"s_lshr_b32 s80, s{S_WAVE}, 1\ns_and_b32 s81, s{S_WAVE}, 1")
    p(f"v_and_b32 v{VT}, 15, v{LANE}\ns_lshl_b32 s82, s{S_WAVE}, 5\nv_add_u32 v{VT}, s82, v{VT}")
    p(f"v_lshrrev_b32 v{VT+1}, 4, v{LANE}\nv_lshlrev_b32 v{VT+1}, 3, v{VT+1}")
    p(f"v_mul_u32_u24 v{A_PW}, 136, v{VT}\nv_add_u32 v{A_PW}, v{A_PW}, v{VT+1}")
    p(f"v_mul_u32_u24 v{A_VW}, 72, v{VT}\nv_add_u32 v{A_VW}, v{A_VW}, v{VT+1}")
    p(f"v_lshrrev_b32 v{VT}, 2, v{LANE}\nv_and_b32 v{VT+1}, 3, v{LANE}\nv_lshlrev_b32 v{VT+1}, 3, v{VT+1}")
    p(f"s_mul_i32 s82, s80, 17408\ns_lshl_b32 s83, s81, 6\ns_add_u32 s82, s82, s83")
    p(f"v_mul_u32_u24 v{A_PR}, 136, v{VT}\nv_add_u32 v{A_PR}, v{A_PR}, v{VT+1}\nv_add_u32 v{A_PR}, s82, v{A_PR}")
    p(f"s_mul_i32 s82, s80, 9216")
    p(f"v_mul_u32_u24 v{A_VR}, 72, v{VT}\nv_add_u32 v{A_VR}, v{A_VR}, v{VT+1}\nv_add_u32 v{A_VR}, s82, v{A_VR}")
    p(f"v_lshl_add_u32 v{A_WR}, v{VT}, 6, v{VT+1}\nv_add_u32 v{A_WR}, {L_WPH}, v{A_WR}")
    ONES, SEL = 116, 120
    for j in range(4): p(f"v_mov_b32 v{ONES+j}, 0x3f803f80")
    p(f"v_bfe_u32 v{VT}, v{LANE}, 2, 2\nv_lshrrev_b32 v{VT+1}, 4, v{LANE}")
    p(f"v_cmp_eq_u32 vcc, v{VT}, v{VT+1}")
    p(f"v_and_b32 v{VT}, 1, v{LANE}\nv_lshlrev_b32 v{VT}, 4, v{VT}\nv_mov_b32 v{VT+1}, 0x3f80\nv_lshlrev_b32 v{VT+1}, v{VT}, v{VT+1}")
    p(f"v_cndmask_b32 v{VT+1}, 0, v{VT+1}, vcc")
    p(f"v_and_b32 v{VT}, 2, v{LANE}\nv_cmp_eq_u32 vcc, 0, v{VT}")
    for j in (0, 1, 4, 5): p(f"v_mov_b32 v{SEL+j}, 0")
    p(f"v_cndmask_b32 v{SEL+2}, 0, v{VT+1}, vcc\nv_cndmask_b32 v{SEL+3}, v{VT+1}, 0, vcc")
    p(f"s_mov_b32 s94, {LOG2E!r}\ns_mov_b32 s95, {LOG2E!r}")
    p(f"s_lshl_b32 s84, s{S_HP}, 12\ns_lshl_b32 s85, s{S_WAVE}, 10\ns_add_u32 s84, s84, s85\ns_add_u32 s85, s85, {L_WPH}")
    c.pre_loop_txt = p.L
    c.late = {4: ["s_mov_b32 m0, s85", f"buffer_load_dwordx4 v{L16}, {sr(SRD_A,4)}, s84 offen lds"]}
    if opt.get("cpf", 1): c.late[22] = code_prefetch_txt(k.name, L16, 254, 80)
    ml = modb_loads(S_MB, 115, 109)
    ms = opt.get("modb_steps", [16] * 8)
    if opt.get("modb_front", 0):
        lb = k.label("skw0")
        c.late.setdefault(ms[0], []).append(T("\n".join([f"s_cmp_lg_u32 s{S_WAVE}, 0", f"s_cbranch_scc1 {lb}"] + [x for g in ml for x in g] + [f"{lb}:"])))
        ml = []
    else:
        for st_, g in zip(ms, ml): c.late.setdefault(st_, []).extend(g)
        ml = ml[len(ms):]
    c.last_reads = [f"ds_read_b64_tr_b16 {ar(A_PH+(hh*2+fb)*4+2*r,2)}, v{A_WR} offset:{hh*2048+r*1024+fb*32}" for hh in range(2) for fb in range(2) for r in range(2)]
    c.run(k)
    k.stamp("g1 loop done")
    A = lambda b, t: (b * 2 + t) * 4
    BF, P1, P2, MX, MN, EK = 126, 142, 174, 206, 214, 222
    groups = [(hh, t) for hh in range(2) for t in range(2)]
    def fm_part1(seg):
        for g, (hh, t) in enumerate(groups):
            for db in range(2):
                a = A(seg * 4 + hh * 2 + db, t)
                k(f"v_cvt_pk_bf16_f32 v{BF+g*4+db*2}, v{a}, v{a+1}\nv_cvt_pk_bf16_f32 v{BF+g*4+db*2+1}, v{a+2}, v{a+3}")
        k("s_nop 1")
        for g, (hh, t) in enumerate(groups):
            for fb in range(2):
                k(f"{MF} {vr(P1+g*8+fb*4,4)}, {ar(A_PH+(hh*2+fb)*4,4)}, {vr(BF+g*4,4)}, 0")
    def fm_part2():
        for op3, op2, M in (("v_max3_f32", "v_max_f32", MX), ("v_min3_f32", "v_min_f32", MN)):
            for g in range(4):
                b = P1 + g * 8
                k(f"{op3} v{M+2*g}, v{b}, v{b+1}, v{b+2}\n{op3} v{M+2*g}, v{M+2*g}, v{b+3}, v{b+4}\n{op3} v{M+2*g}, v{M+2*g}, v{b+5}, v{b+6}\n{op2} v{M+2*g}, v{M+2*g}, v{b+7}")
            treduce4(k, op2, [M + 2 * g for g in range(4)])
        for g in range(4):
            k(f"v_mul_f32 v{MX+2*g}, {-LOG2E!r}, v{MX+2*g}\nv_mul_f32 v{MN+2*g}, {LOG2E!r}, v{MN+2*g}")
    def fm_part3(E):
        for g in range(4):
            for j in range(4):
                b = g * 8 + 2 * j
                k(f"v_pk_fma_f32 {vr(P2+b,2)}, {vr(P1+b,2)}, s[94:95], {vr(MN+2*g,2)} op_sel_hi:[1,1,0] neg_lo:[1,0,0] neg_hi:[1,0,0]")
                k(f"v_pk_fma_f32 {vr(P1+b,2)}, {vr(P1+b,2)}, s[94:95], {vr(MX+2*g,2)} op_sel_hi:[1,1,0]")
            for j in range(8): k(f"v_exp_f32 v{P1+g*8+j}, v{P1+g*8+j}")
            for j in range(8): k(f"v_exp_f32 v{P2+g*8+j}, v{P2+g*8+j}")
            k("s_nop 0")
            for sg, PP in enumerate((P1, P2)):
                for j in range(4): k(f"v_cvt_pk_bf16_f32 v{E+(g*2+sg)*4+j}, v{PP+g*8+2*j}, v{PP+g*8+2*j+1}")
    for g in ml:
        for x in g: k(x)
    k("s_waitcnt lgkmcnt(0)\ns_nop 7")
    fm_part1(1)
    k("s_barrier")
    mark0 = len(k.L)
    for g, (hh, t) in enumerate(groups):
        for db in range(2):
            a = A(8 + hh * 2 + db, t)
            k(f"v_cvt_pk_bf16_f32 v{a}, v{a}, v{a+1}\nv_cvt_pk_bf16_f32 v{a+1}, v{a+2}, v{a+3}")
            k(f"ds_write_b64 v{A_VW}, {vr(a,2)} offset:{VV + hh*9216 + t*16*72 + db*32}")
    fm_part2()
    fm_part3(EK)
    SM = 32
    k("s_nop 1")
    for i in range(8): k(f"{MF} {vr(SM+4*i,4)}, {vr(ONES,4)}, {vr(EK+4*i,4)}, 0")
    k("s_nop 7")
    for i in range(8): k(f"v_rcp_f32 v{SM+4*i}, v{SM+4*i}")
    for g, (hh, t) in enumerate(groups):
        for sg, PP in enumerate((P1, P2)):
            for j in range(4):
                k(f"v_pk_mul_f32 {vr(PP+g*8+2*j,2)}, {vr(PP+g*8+2*j,2)}, {vr(SM+(g*2+sg)*4,2)} op_sel_hi:[1,0]")
            for fb in range(2):
                b = PP + g * 8 + fb * 4
                k(f"v_cvt_pk_bf16_f32 v{b}, v{b}, v{b+1}\nv_cvt_pk_bf16_f32 v{b+1}, v{b+2}, v{b+3}")
                k(f"ds_write_b64 v{A_PW}, {vr(b,2)} offset:{PHK + hh*17408 + t*16*136 + sg*64 + fb*32}")
    sprinkle(k, mark0, g3_early_units(k.g3, opt.get("g3_e1", 14), 254))
    k("s_waitcnt lgkmcnt(0)\ns_barrier")
    for s_ in range(4):
        for r in range(2):
            for fb in range(2): k(f"ds_read_b64_tr_b16 {ar(s_*16+fb*4+2*r,2)}, v{A_PR} offset:{PHK + (32*s_+16*r)*136 + fb*32}")
            for db in range(2): k(f"ds_read_b64_tr_b16 {ar(s_*16+8+db*4+2*r,2)}, v{A_VR} offset:{VV + (32*s_+16*r)*72 + db*32}")
    fm_part1(0)
    KV, ZZ = 64, 80
    for s_ in range(4):
        k(f"s_waitcnt lgkmcnt({min(15, 24 - 8*s_)})")
        for fb in range(2):
            for db in range(2):
                d = vr(KV + (db * 2 + fb) * 4, 4)
                k(f"{MF} {d}, {ar(s_*16+fb*4,4)}, {ar(s_*16+8+db*4,4)}, {'0' if s_ == 0 else d}")
            d = vr(ZZ + fb * 4, 4)
            k(f"{MF} {d}, {ar(s_*16+fb*4,4)}, {vr(ONES,4)}, {'0' if s_ == 0 else d}")
    k(f"s_lshl_b32 s82, s{S_HP}, 2\ns_add_u32 s82, s82, s{S_WAVE}")
    k("s_lshl_b32 s83, s82, 15")
    k(f"s_lshl_b32 s84, s{S_RB1}, 10\ns_add_u32 s84, s84, s83\ns_add_u32 s85, s84, 16384")
    k("s_lshl_b32 s90, s82, 11")
    k(f"s_lshl_b32 s91, s82, {FS+4}\ns_add_u32 s91, s91, {F_KV}\ns_lshl_b32 s92, s{S_RB1}, {FS}\ns_add_u32 s92, s92, s91")
    k(f"v_and_b32 v{VT}, 15, v{LANE}\nv_cmp_eq_u32 vcc, s{S_RB1}, v{VT}")
    k("s_nop 2")
    for db in range(2):
        for j in range(4): k(f"v_cvt_pk_bf16_f32 v{88+db*4+j}, v{KV+db*8+2*j}, v{KV+db*8+2*j+1}")
    k(f"buffer_store_dwordx4 {vr(88,4)}, v{L16}, {sr(SRD_B,4)}, s84 offen sc1")
    k(f"buffer_store_dwordx4 {vr(92,4)}, v{L16}, {sr(SRD_B,4)}, s85 offen sc1")
    k("s_and_saveexec_b64 s[96:97], vcc")
    k(f"buffer_store_dwordx4 {vr(ZZ,4)}, v{L16}, {sr(SRD_C,4)}, s90 offen sc1")
    k(f"buffer_store_dwordx4 {vr(ZZ+4,4)}, v{L16}, {sr(SRD_C,4)}, s90 offen offset:1024 sc1")
    k("s_mov_b64 exec, s[96:97]")
    k.stamp("kv stored")
    fm_part2()
    publish(k, 92, VT + 1)
    k.stamp("kv published")
    k("s_mov_b32 s93, s83")
    g2 = setup_gemm24(k, 2, opt, 96)
    k("s_mov_b32 s83, s93")
    g2.prefetch(k, 8)
    fm_part3(EK)
    k(f"v_lshlrev_b32 v{VT}, {FS}, v{VT}")
    wait_flags(k, [(VT, 91, 1)], VT + 1)
    k.stamp("kv ready")
    k(f"buffer_load_dwordx4 {vr(ZZ,4)}, v{L16}, {sr(SRD_C,4)}, s90 offen sc1")
    k(f"buffer_load_dwordx4 {vr(ZZ+4,4)}, v{L16}, {sr(SRD_C,4)}, s90 offen offset:1024 sc1")
    for i in range(32):
        if i % 4 == 0 and i: k("s_add_u32 s83, s83, 4096")
        k(f"buffer_load_dwordx4 {ar(4*i,4)}, v{L16}, {sr(SRD_B,4)}, s83 offen offset:{(i%4)*1024} sc1")
    srd(k, SRD_T, P_WS, S * D * 2, WS_O)
    k("s_waitcnt vmcnt(32)")
    for sh in (8, 4, 2, 1):
        for j in range(8): k(f"v_add_f32_dpp v{ZZ+j}, v{ZZ+j}, v{ZZ+j} row_ror:{sh} row_mask:0xf bank_mask:0xf")
    k(f"v_and_b32 v{VT+1}, 1, v{LANE}\nv_cmp_eq_u32 vcc, 0, v{VT+1}")
    for j in range(4): k(f"v_cvt_pk_bf16_f32 v{BF+8+j}, v{ZZ+2*j}, v{ZZ+2*j+1}")
    for j in range(4): k(f"v_cndmask_b32 v{BF+8+j}, v{ONES}, v{BF+8+j}, vcc")
    for i in range(32):
        db, pp = divmod(i, 16)
        if i % 2 == 0: k(f"s_waitcnt vmcnt({30 - i})")
        for fb in range(2):
            d = vr(KV + (db * 2 + fb) * 4, 4)
            k(f"{MF} {d}, {vr(SEL + (2 if fb == 0 else 0), 4)}, {ar(4*i,4)}, {'0' if pp == 0 else d}")
    k(f"s_mul_i32 s82, s{S_WAVE}, 3072\ns_add_u32 s82, s82, {SH}")
    k(f"v_add_u32 v{VT+1}, s82, v{L16}\nv_add_u32 v{VT+2}, {SH}, v{L16}")
    k("s_nop 6")
    for db in range(2):
        for j in range(4): k(f"v_cvt_pk_bf16_f32 v{BF+db*4+j}, v{KV+db*8+2*j}, v{KV+db*8+2*j+1}")
    for j in range(3): k(f"ds_write_b128 v{VT+1}, {vr(BF+4*j,4)} offset:{j*1024}")
    k("s_waitcnt lgkmcnt(0)\ns_barrier")
    for i in range(12): k(f"ds_read_b128 {ar(4*i,4)}, v{VT+2} offset:{i*1024}")
    k(f"s_lshl_b32 s82, s{S_RB1}, 3\ns_lshl_b32 s83, s{S_WAVE}, 1\ns_add_u32 s82, s82, s83\ns_lshl_b32 s82, s82, 15")
    k(f"s_lshl_b32 s83, s{S_HP}, 11\ns_add_u32 s82, s82, s83\ns_add_u32 s83, s82, 0x8000")
    k(f"s_lshl_b32 s84, s{S_RB1}, 2\ns_add_u32 s84, s84, s{S_WAVE}\ns_lshl_b32 s84, s84, {FS+4}\ns_lshl_b32 s85, s{S_HP}, {FS}\ns_add_u32 s84, s84, s85\ns_add_u32 s84, s84, {F_O}")
    k("s_waitcnt lgkmcnt(0)")
    for g, (hh, t) in enumerate(groups):
        for sg in range(2):
            for j in range(3):
                k(f"{MF} {vr((g*2+sg)*12+4*j,4)}, {ar(((hh*2+sg)*3+j)*4,4)}, {vr(EK+(g*2+sg)*4,4)}, 0")
    k("s_nop 7")
    for g, (hh, t) in enumerate(groups):
        n1, n2 = g * 24, g * 24 + 12
        D1, S1, D2, S2 = n1 + 8, n1 + 9, n2 + 8, n2 + 9
        k(f"v_mul_f32 v{n1+10}, v{S1}, v{S2}")
        k(f"v_mul_f32 v{n1+10}, 0x358637bd, v{n1+10}")
        k(f"v_fmac_f32 v{n1+10}, v{D1}, v{S2}\nv_fmac_f32 v{n1+10}, v{D2}, v{S1}")
        k(f"v_rcp_f32 v{n1+10}, v{n1+10}")
        k("s_nop 0")
        k(f"v_mul_f32 v{D1}, v{S2}, v{n1+10}\nv_mul_f32 v{D2}, v{S1}, v{n1+10}")
        for j in range(4): k(f"v_pk_mul_f32 {vr(n1+2*j,2)}, {vr(n1+2*j,2)}, {vr(D1,2)} op_sel_hi:[1,0]")
        for j in range(4): k(f"v_pk_fma_f32 {vr(n1+2*j,2)}, {vr(n2+2*j,2)}, {vr(D2,2)}, {vr(n1+2*j,2)} op_sel_hi:[1,0,1]")
        for j in range(4): k(f"v_cvt_pk_bf16_f32 v{n2+j}, v{n1+2*j}, v{n1+2*j+1}")
        k(f"buffer_store_dwordx4 {vr(n2,4)}, v{L16}, {sr(SRD_T,4)}, s{82+t} offen offset:{hh*1024} sc1")
    k.stamp("o stored")
    CU, AU, WW, TT = 128, 144, 152, 156
    for i in range(8): k(f"v_accvgpr_read_b32 v{CU+2*i}, a{A_UT+32+i}")
    silu_block(k, [CU + 2 * i for i in range(8)])
    mko = len(k.L)
    g2.V_X = 48
    srd(k, SRD_A, P_X, S * D * 2)
    V_XA = 47
    k(f"v_lshrrev_b32 v{VT+1}, 4, v{LANE}")
    k(f"v_and_b32 v{VT+2}, 15, v{LANE}\nv_lshlrev_b32 v{VT+2}, 11, v{VT+2}\nv_lshl_add_u32 v{V_XA}, v{VT+1}, 3, v{VT+2}")
    k(f"s_lshl_b32 s82, s{S_RB2}, 3\ns_lshl_b32 s83, s{S_WAVE}, 1\ns_add_u32 s82, s82, s83\ns_lshl_b32 s82, s82, 15\ns_lshl_b32 s83, s{S_NT}, 7\ns_add_u32 s82, s82, s83\ns_add_u32 s83, s82, 32768")
    for t in range(2):
        for b in range(4):
            k(f"buffer_load_dwordx2 {vr(g2.V_X+(t*4+b)*2,2)}, v{V_XA}, {sr(SRD_A,4)}, s{82+t} offen offset:{b*32}")
    publish(k, 84, VT + 2, mko)
    k.stamp("o published")
    mark1 = len(k.L)
    for j in range(8): k(f"v_mov_b32 v{AU+j}, 0")
    for i in range(8):
        for d in range(4): k(f"v_accvgpr_read_b32 v{WW+d}, a{A_UT+4*i+d}")
        for d in range(4):
            k(f"v_lshlrev_b32 v{TT}, 16, v{WW+d}\nv_and_b32 v{TT+1}, 0xffff0000, v{WW+d}")
            k(f"v_pk_fma_f32 {vr(AU+2*d,2)}, {vr(TT,2)}, {vr(CU+2*i,2)}, {vr(AU+2*d,2)} op_sel_hi:[1,0,1]")
    k("s_nop 1")
    for j in range(4): k(f"v_permlane32_swap_b32 v{AU+j}, v{AU+j+4}")
    k("s_nop 1")
    for j in range(4): k(f"v_add_f32 v{AU+j}, v{AU+j}, v{AU+j+4}")
    k("s_nop 1")
    for j in range(2): k(f"v_permlane16_swap_b32 v{AU+j}, v{AU+j+2}")
    k("s_nop 1")
    for j in range(2): k(f"v_add_f32 v{AU+j}, v{AU+j}, v{AU+j+2}")
    k("s_nop 1")
    for j in range(2): k(f"v_add_f32_dpp v{AU+j}, v{AU+j}, v{AU+j} row_ror:8 row_mask:0xf bank_mask:0xf")
    sprinkle(k, mark1, g3_early_units(k.g3, opt.get("g3_e2", 7), 254), skip=0)
    k(f"v_and_b32 v{TT}, 7, v{LANE}\nv_lshlrev_b32 v{TT}, 5, v{TT}\nv_lshrrev_b32 v{TT+1}, 5, v{LANE}\nv_lshl_add_u32 v{TT}, v{TT+1}, 4, v{TT}")
    k(f"v_bfe_u32 v{TT+1}, v{LANE}, 4, 1\nv_lshl_add_u32 v{TT}, v{TT+1}, 3, v{TT}")
    srd(k, SRD_D, P_WS, MP_BYTES, WS_MODP)
    k(f"v_or_b32 v{AU}, 1, v{AU}\nv_or_b32 v{AU+1}, 1, v{AU+1}")
    k(f"buffer_store_dwordx2 {vr(AU,2)}, v{TT}, {sr(SRD_D,4)}, s{S_MO} offen sc1")
    return g2

A_PARK = 224
S3_SRD, S3_WB, S3_KW = 64, 68, 69
def setup_gemm3_early(k, opt, LANE, VT):
    c = Sched(); common_gemm(c)
    NS, R = 4, 8
    STAGE = 28672
    V_RD, V_DMA, V_TOK = 224, 226, 233
    c.V_RD, c.V_DMA, c.V_TOK, c.LANE, c.L16, c.VT = V_RD, V_DMA, V_TOK, 237, 238, 248
    c.srd_w, c.s_wbase, c.s_kw = S3_SRD, S3_WB, S3_KW
    order(c, k, opt, 'g3', ['win', [4, 4, 8], 0])
    if opt.get("g3map", 0): c.s_rot, c.s_rot2 = 73, 72
    k(f"s_lshr_b32 s80, s{S_WAVE}, 1\ns_and_b32 s81, s{S_WAVE}, 1")
    k(f"s_mul_i32 s83, s80, {32*7168}\ns_mul_i32 s{S_TMP}, s{S_FT}, 224\ns_add_u32 s83, s83, s{S_TMP}")
    for i in range(7):
        k(f"v_add_u32 v{VT+2}, {i*64}, v{LANE}")
        k(f"v_mul_u32_u24 v{VT+3}, 4682, v{VT+2}")
        k(f"v_lshrrev_b32 v{VT+3}, 16, v{VT+3}")
        k(f"v_mul_u32_u24 v{VT+4}, 14, v{VT+3}")
        k(f"v_sub_u32 v{VT+4}, v{VT+2}, v{VT+4}")
        k(f"v_mul_u32_u24 v{VT+3}, 7168, v{VT+3}")
        k(f"v_lshl_add_u32 v{VT+3}, v{VT+4}, 4, v{VT+3}")
        k(f"v_add_u32 v{VT+3}, s83, v{VT+3}")
        k(f"v_accvgpr_write_b32 a{A_PARK+i}, v{VT+3}")
    k(f"s_mul_i32 s{S3_WB}, s81, 14336\ns_mul_i32 s82, s80, 7168\ns_add_u32 s{S3_WB}, s{S3_WB}, s82")
    k(f"s_cmp_eq_u32 s81, 0\ns_cselect_b32 s{S3_SRD}, s{P_W1}, s{P_W3}\ns_cselect_b32 s{S3_SRD+1}, s{P_W1+1}, s{P_W3+1}")
    k(f"s_mov_b32 s{S3_SRD+2}, {D*F*2}\ns_mov_b32 s{S3_SRD+3}, 0x20000")
    c.NB, c.TB, c.KS, c.SPK, c.KT, c.NS, c.R = 14, 4, 1, 2, 16, NS, R
    c.acc = lambda b, t: vr((b * 4 + t) * 4, 4)
    c.tf = lambda slot, ks, t: 112 + (slot * 4 + t) * 4
    ph = lambda sl: 3 - sl
    c.rd = lambda sl, b, sub, r: (V_RD + ph(sl) // 2, (ph(sl) % 2) * STAGE + (b % 2) * 14336 + (32 * sub + 16 * r) * 224 + 32 * (b // 2))
    c.slot_addr = lambda sl: ph(sl) * STAGE
    c.dma = [(V_DMA + i, i * 1024, 0) for i in range(7)]
    c.v_tok = [V_TOK + t for t in range(4)]
    c.w_stride = 64 * 7168
    c.drop = opt.get("g3_drop", ())
    c.pro_units, c.ramp_rate, c.read_margin = opt.get("g3_pro", 8), (lambda st: opt.get("g3_ramp", 10) if st < 6 else 8), 8
    c.lookahead = opt.get("g3_la", 4)
    std_sched(c)
    TL = c.TL = opt.get("g3_tail", 0)
    if TL:
        tail = c.steps[32 - TL:]
        c.steps = c.steps[:32 - TL] + [dict(st, frags=st["frags"][:8]) for st in tail] + [dict(st, frags=st["frags"][8:]) for st in tail]
    return c
def g3_early_units(c, n, vtmp):
    out = []
    for j in range(n):
        t = c.prefetch_txt(1)
        i = (c.pre_dma - 1) % 7
        ld = t[-1].replace(f"v{c.V_DMA+i},", f"v{vtmp},")
        out.append(t[:-1] + [f"v_accvgpr_read_b32 v{vtmp}, a{A_PARK+i}", ld])
    return out
def setup_gemm3_late(k, c):
    V_RD, V_DMA, V_TOK, LANE, L16, VT = c.V_RD, c.V_DMA, c.V_TOK, c.LANE, c.L16, c.VT
    lane_id(k, LANE)
    k(f"v_lshlrev_b32 v{L16}, 4, v{LANE}")
    for i in range(7): k(f"v_accvgpr_read_b32 v{V_DMA+i}, a{A_PARK+i}")
    k(f"v_lshrrev_b32 v{VT+3}, 2, v{LANE}\nv_mul_u32_u24 v{VT+3}, 224, v{VT+3}")
    k(f"v_and_b32 v{VT+4}, 3, v{LANE}\nv_lshl_add_u32 v{V_RD}, v{VT+4}, 3, v{VT+3}")
    k(f"v_add_u32 v{V_RD+1}, {2*28672}, v{V_RD}")
    k(f"s_lshl_b32 s82, s{S_RB3}, 4\ns_lshl_b32 s83, s{S_WAVE}, 2\ns_add_u32 s82, s82, s83\ns_lshl_b32 s82, s82, 15")
    k(f"v_add_u32 v{V_TOK}, s82, v{L16}")
    for t in range(1, 4): k(f"v_add_u32 v{V_TOK+t}, {t*0x8000}, v{V_TOK}")

def sprinkle(k, mark, groups, skip=4):
    if not groups: return
    seg = k.L[mark:]
    stepn = max(1, (len(seg) - skip) // len(groups))
    out, q = [], list(groups)
    for i, x in enumerate(seg):
        out.append(x)
        if q and i >= skip and (i - skip) % stepn == 0:
            assert not x.startswith("s_cmp") and not x.startswith("s_and_saveexec")
            out += q.pop(0)
    for g in q: out += g
    k.L[mark:] = out

A_X1 = 240
def phase_gemm2(k, c, opt):
    LANE, L16 = c.LANE, c.L16
    VT = 40
    k(f"v_and_b32 v252, 15, v{LANE}\nv_lshlrev_b32 v252, {FS}, v252")
    k(f"s_lshl_b32 s84, s{S_RB2}, 2\ns_add_u32 s84, s84, s{S_WAVE}\ns_lshl_b32 s84, s84, {FS+4}\ns_add_u32 s85, s84, {F_O}")
    if c.hs:
        k(f"s_add_u32 s94, s85, {F_O2 - F_O}")
        staged_wait(k, c, opt.get("g2_T", 5), 252, 85, 253, lambda sp, st: [f"s_lshl_b32 s{st}, s{sp}, 1", f"s_lshl_b32 s{st}, 3, s{st}"], pub=(95, 26))
        add_gate(k, c, 8, f"buffer_load_dword v253, v252, {sr(SRD_F,4)}, s94 offen sc1", 253)
    else:
        staged_wait(k, c, opt.get("g2_T", 6), 252, 85, 253, one_prod)
    k.stamp("o ready")
    V_G, V_C, V_S, V_GA = 64, 80, 136, 44
    p = Txt()
    srd(p, SRD_A, P_WS, S * D * 2, WS_Y)
    srd(p, SRD_B, P_WS, S * 128, WS_STAT)
    srd(p, SRD_D, P_WS, MP_BYTES, WS_MODP)
    p(f"v_lshrrev_b32 v{V_GA}, 4, v{LANE}\nv_lshlrev_b32 v{V_GA}, 4, v{V_GA}\nv_add_u32 v{V_GA}, {L_MV}, v{V_GA}")
    p(f"s_lshl_b32 s86, s{S_RB2}, 3\ns_lshl_b32 s87, s{S_WAVE}, 1\ns_add_u32 s86, s86, s87")
    p(f"s_lshl_b32 s88, s86, 15\ns_lshl_b32 s87, s{S_NT}, 11\ns_add_u32 s88, s88, s87\ns_add_u32 s89, s88, 32768")
    p(f"s_lshl_b32 s87, s{S_NT}, {FS}\ns_add_u32 s84, s84, s87\ns_add_u32 s84, s84, {F_Y}")
    p(f"s_lshl_b32 s91, s86, 11\ns_lshl_b32 s90, s{S_NT}, 8\ns_add_u32 s90, s90, s91")
    p(f"s_lshl_b32 s92, s{S_WAVE}, 16\ns_lshl_b32 s93, s{S_NT}, 12\ns_add_u32 s92, s92, s93\ns_add_u32 s92, s92, {MP_B}")
    p(f"v_lshlrev_b32 v{VT}, 2, v{LANE}")
    p(f"v_add_u32 v42, {67584 - L_R2}, v{c.V_RDX}\nv_add_u32 v43, {1024 - L_R2}, v{c.V_RDX}")
    for g in g3_early_units(k.g3, opt.get("g3_e2p", 0), 254): p.L += g
    c.pre_loop_txt = p.L
    c.late = {}
    for j, st_ in enumerate(opt.get("g3_e2s", [])):
        for g in g3_early_units(k.g3, 7 // len(opt["g3_e2s"]) + (1 if j < 7 % len(opt["g3_e2s"]) else 0), 254): c.late.setdefault(st_, []).extend(g)
    if opt.get("cpf", 1): c.late.setdefault(6, []).extend(code_prefetch_txt(k.name, L16, 254, 80))
    m = Txt(); m.label = k.label
    MB_ = 160
    mld = [f"buffer_load_dword v{MB_+j}, v{VT}, {sr(SRD_D,4)}, s92 offen offset:{j*256} sc1" for j in range(16)]
    okm = k.label("mok")
    m(f"v_min_u32 v{MB_+16}, v{MB_}, v{MB_+1}")
    for j in range(2, 16, 2): m(f"v_min3_u32 v{MB_+16}, v{MB_+16}, v{MB_+j}, v{MB_+j+1}")
    m(f"v_cmp_eq_u32 vcc, 0, v{MB_+16}\ns_cmp_eq_u64 vcc, 0\ns_cbranch_scc1 {okm}")
    spin(m, mld, [MB_ + j for j in range(16)], MB_ + 16)
    m(f"{okm}:")
    mchk = "\n".join(m.L); m.L = []
    for st in (4, 2, 1):
        for j in range(st): m(f"v_pk_add_f32 {vr(MB_+2*j,2)}, {vr(MB_+2*j,2)}, {vr(MB_+2*(j+st),2)}")
    m(f"v_add_f32 v{MB_}, v{MB_}, v{MB_+1}")
    round_bf16(m, MB_)
    m(f"v_add_f32 v{MB_+1}, 1.0, v{MB_}"); round_bf16(m, MB_ + 1)
    m(f"s_cmp_eq_u32 s{S_WAVE}, 2\ns_cselect_b64 vcc, -1, 0")
    m(f"v_cndmask_b32 v{MB_}, v{MB_}, v{MB_+1}, vcc")
    m(f"s_lshl_b32 s92, s{S_WAVE}, 8\ns_add_u32 s92, s92, {L_MV}\nv_add_u32 v{VT}, s92, v{VT}")
    m(f"ds_write_b32 v{VT}, v{MB_}")
    ms_ = opt.get("g2_modstep", 13)
    c.late.setdefault(ms_ - 2, []).extend([VM(x, ("mv", 0)) for x in mld])
    k_ = [x for x in m.L]
    i_ = next(i for i, x in enumerate(k_) if x.startswith("s_cmp_eq_u32"))
    c.late[ms_] = [WVM([("mv", 0)]), T(mchk)] + k_[:i_] + ["\n".join(k_[i_:])]
    ne = opt.get("g3_e3", 0)
    eu = [x for g in g3_early_units(k.g3, ne, 254) for x in g]
    c.late.setdefault(14, []).extend(eu[:len(eu)//2 // 1]); c.late.setdefault(15, []).extend(eu[len(eu)//2:])
    c.last_reads = ([f"ds_read_b128 {vr(V_G+4*b,4)}, v{V_GA} offset:{b*64}" for b in range(4)] + [f"ds_read_b128 {vr(V_C+4*b,4)}, v{V_GA} offset:{512+b*64}" for b in range(4)]
                    + [f"ds_read_b128 {vr(V_S+4*b,4)}, v{V_GA} offset:{256+b*64}" for b in range(4)])
    c.run(k)
    k.stamp("g2 loop done")
    k("s_waitcnt lgkmcnt(0)\ns_nop 7")
    A = lambda b, t: (b * 2 + t) * 4
    XT = 194; V_X = c.V_X
    for t in range(2):
        for b in range(4):
            xr = V_X + (t * 4 + b) * 2
            for h in range(2): k(f"v_lshlrev_b32 v{XT+2*h}, 16, v{xr+h}\nv_and_b32 v{XT+2*h+1}, 0xffff0000, v{xr+h}")
            for h in range(2): k(f"v_pk_fma_f32 {vr(A(b,t)+2*h,2)}, {vr(A(b,t)+2*h,2)}, {vr(V_G+4*b+2*h,2)}, {vr(XT+2*h,2)}")
        PK = XT + 4 + t * 8
        for b in range(4): k(f"v_cvt_pk_bf16_f32 v{PK+2*b}, v{A(b,t)}, v{A(b,t)+1}\nv_cvt_pk_bf16_f32 v{PK+2*b+1}, v{A(b,t)+2}, v{A(b,t)+3}")
        for b in range(4):
            for h in range(2): k(f"v_lshlrev_b32 v{A(b,t)+2*h}, 16, v{PK+2*b+h}\nv_and_b32 v{A(b,t)+2*h+1}, 0xffff0000, v{PK+2*b+h}")
    SU = [XT + 20, XT + 22]; M2 = [XT + 21, XT + 23]; TM = [XT + 24, XT + 25]; AC = [XT, XT + 2]; NM = [XT + 26, XT + 28]; DF = 32
    for t in range(2): k(f"v_pk_add_f32 {vr(AC[t],2)}, {vr(A(0,t),2)}, {vr(A(0,t)+2,2)}")
    for b in range(1, 4):
        for h in range(2):
            for t in range(2): k(f"v_pk_add_f32 {vr(AC[t],2)}, {vr(AC[t],2)}, {vr(A(b,t)+2*h,2)}")
    def allred2(X):
        for sw in ("v_permlane32_swap_b32", "v_permlane16_swap_b32"):
            for t in range(2): k(f"v_mov_b32 v{TM[t]}, v{X[t]}")
            k("s_nop 0")
            for t in range(2): k(f"{sw} v{X[t]}, v{TM[t]}")
            k("s_nop 0")
            for t in range(2): k(f"v_add_f32 v{X[t]}, v{X[t]}, v{TM[t]}")
    for t in range(2): k(f"v_add_f32 v{SU[t]}, v{AC[t]}, v{AC[t]+1}")
    allred2(SU)
    for t in range(2): k(f"v_mul_f32 v{NM[t]}, {-1.0/64!r}, v{SU[t]}\nv_mov_b32 v{AC[t]}, 0\nv_mov_b32 v{AC[t]+1}, 0")
    for b in range(4):
        for h in range(2):
            for t in range(2): k(f"v_pk_add_f32 {vr(DF+2*t,2)}, {vr(A(b,t)+2*h,2)}, {vr(NM[t],2)} op_sel_hi:[1,0]")
            for t in range(2): k(f"v_pk_fma_f32 {vr(AC[t],2)}, {vr(DF+2*t,2)}, {vr(DF+2*t,2)}, {vr(AC[t],2)}")
    for t in range(2): k(f"v_add_f32 v{M2[t]}, v{AC[t]}, v{AC[t]+1}")
    allred2(M2)
    k(f"v_cmp_gt_u32 vcc, 16, v{LANE}")
    k(f"v_lshlrev_b32 v{XT+2}, 3, v{LANE}\nv_lshrrev_b32 v{XT+3}, 4, v{LANE}")
    k(f"v_cndmask_b32 v{XT}, v{SU[1]}, v{SU[0]}, vcc\nv_cndmask_b32 v{XT+1}, v{M2[1]}, v{M2[0]}, vcc")
    k(f"v_and_b32 v45, 0x78, v{XT+2}\nv_lshl_add_u32 v45, v{XT+3}, 10, v45")
    k(f"v_or_b32 v{XT+1}, 1, v{XT+1}")
    k(f"v_cmp_gt_u32 vcc, 32, v{LANE}\ns_and_saveexec_b64 s[96:97], vcc")
    k(f"buffer_store_dwordx2 {vr(XT,2)}, v{XT+2}, {sr(SRD_B,4)}, s90 offen sc1")
    k("s_mov_b64 exec, s[96:97]")
    k.stamp("stat stored")
    if c.NS > 4: k("s_barrier")
    if opt.get("g3_first", 0):
        setup_gemm3_late(k, k.g3); k.g3.prefetch(k, opt["g3_first"])
    for t in range(2):
        for b in range(4):
            for h in range(2): k(f"v_pk_mul_f32 {vr(A(b,t)+2*h,2)}, {vr(A(b,t)+2*h,2)}, {vr(V_C+4*b+2*h,2)}")
    for j in range(16): k(f"v_accvgpr_write_b32 a{A_X1+j}, v{XT+4+j}")
    g3 = k.g3
    if not opt.get("g3_first", 0): setup_gemm3_late(k, g3)
    g3.prefetch(k, opt.get("g3_pre0", 14))
    ST = 48
    spin(k, [f"buffer_load_dwordx2 {vr(ST+t*8+j*2,2)}, v45, {sr(SRD_B,4)}, s91 offen offset:{t*128+j*256} sc1" for t in range(2) for j in range(4)],
         [ST + 2 * j + 1 for j in range(8)], XT)
    k.stamp("stat ready")
    for t in range(2):
        b = ST + t * 8
        k(f"v_add_f32 v{SU[t]}, v{b}, v{b+2}\nv_add_f32 v{TM[t]}, v{b+4}, v{b+6}\nv_add_f32 v{SU[t]}, v{SU[t]}, v{TM[t]}")
        k(f"v_add_f32 v{M2[t]}, v{b+1}, v{b+3}\nv_add_f32 v{TM[t]}, v{b+5}, v{b+7}\nv_add_f32 v{M2[t]}, v{M2[t]}, v{TM[t]}")
    allred2(SU)
    for t in range(2): k(f"v_mul_f32 v{SU[t]}, {-1.0/1024!r}, v{SU[t]}")
    for j in range(4):
        for t in range(2): k(f"v_fmamk_f32 v{ST+t*8+2*j}, v{ST+t*8+2*j}, {1.0/64!r}, v{SU[t]}")
        for t in range(2): k(f"v_mul_f32 v{ST+t*8+2*j}, v{ST+t*8+2*j}, v{ST+t*8+2*j}")
        for t in range(2): k(f"v_fmac_f32 v{M2[t]}, 0x42800000, v{ST+t*8+2*j}")
    allred2(M2)
    for t in range(2): k(f"v_mov_b32 v{TM[t]}, 0x3727c5ac\nv_fmac_f32 v{TM[t]}, {1.0/1024!r}, v{M2[t]}")
    for t in range(2): k(f"v_rsq_f32 v{NM[t]}, v{TM[t]}")
    k("s_nop 0")
    for t in range(2): k(f"v_mul_f32 v{NM[t]+1}, v{SU[t]}, v{NM[t]}")
    for t in range(2):
        YK = ST + t * 8
        for b in range(4):
            for h in range(2): k(f"v_pk_fma_f32 {vr(XT+2*h,2)}, {vr(V_C+4*b+2*h,2)}, {vr(NM[t],2)}, {vr(V_S+4*b+2*h,2)} op_sel:[0,1,0] op_sel_hi:[1,1,1]")
            for h in range(2): k(f"v_pk_fma_f32 {vr(XT+2*h,2)}, {vr(A(b,t)+2*h,2)}, {vr(NM[t],2)}, {vr(XT+2*h,2)} op_sel_hi:[1,0,1]")
            k(f"v_cvt_pk_bf16_f32 v{YK+2*b}, v{XT}, v{XT+1}\nv_cvt_pk_bf16_f32 v{YK+2*b+1}, v{XT+2}, v{XT+3}")
        for s_ in range(2): k(f"buffer_store_dwordx4 {vr(YK+4*s_,4)}, v{L16}, {sr(SRD_A,4)}, s{88+t} offen offset:{s_*1024} sc1")
    publish(k, 84, 40)
    k.stamp("y published")
    g3.prefetch(k, opt.get("g3_pre", 0))
    return g3

def phase_gemm3(k, c, opt):
    LANE, L16, VT = c.LANE, c.L16, c.VT
    NB, TB = 14, 4
    srd(k, SRD_T, P_WS, S * D * 2, WS_Y)
    srd(k, SRD_C, P_WS, S * F * 2, WS_HH)
    k(f"v_and_b32 v{VT}, 31, v{LANE}\nv_lshlrev_b32 v{VT}, {FS}, v{VT}")
    k(f"s_lshl_b32 s84, s{S_RB3}, 2\ns_add_u32 s84, s84, s{S_WAVE}")
    k(f"s_lshl_b32 s85, s84, {FS+5}\ns_add_u32 s85, s85, {F_Y}")
    staged_wait(k, c, opt.get("g3_T", 3), VT, 85, VT + 1, one_prod, dup16=True)
    k.stamp("y ready")
    p = Txt()
    SO = 8
    p(f"s_mul_i32 s{SO}, s84, {448*1024}\ns_mul_i32 s92, s{S_FT}, 3584\ns_add_u32 s{SO}, s{SO}, s92")
    for t in range(1, 4): p(f"s_add_u32 s{SO+t}, s{SO}, {t*112*1024}")
    p(f"s_lshl_b32 s93, s84, {FS+5}\ns_lshl_b32 s94, s{S_FT}, {FS}\ns_add_u32 s93, s93, s94\ns_add_u32 s94, s93, {F_HB}\ns_add_u32 s93, s93, {F_HH}")
    p(f"s_mov_b32 s12, {-LOG2E!r}\ns_mov_b32 s13, {-LOG2E!r}")
    SB = 241
    p(f"v_lshrrev_b32 v{SB}, 1, v{L16}")
    c.pre_loop_txt = p.L
    if opt.get("cpf", 1):
        for st_ in opt.get("cp3", [6, 22]): c.late.setdefault(st_, []).extend(code_prefetch_txt(k.name, L16, 254, 80, junk="v240"))
    if opt.get("w2touch", 1):
        ws_ = opt.get("w2steps", [16]); per = 56 // len(ws_)
        for j, st_ in enumerate(ws_):
            c.late.setdefault(st_, []).extend([f"s_lshl_b32 s80, s2, 2", f"s_add_u32 s80, s80, s{S_WAVE}", "s_mul_i32 s80, s80, 7168", f"s_add_u32 s80, s80, {j*per*128}",
                      f"v_min_u32 v253, {per-1}, v{LANE}", "v_lshlrev_b32 v253, 7, v253", "v_add_u32 v253, s80, v253",
                      f"global_load_dword v240, v253, s[{P_W2}:{P_W2+1}]"])
    for j, st_ in enumerate(opt.get("w2l2", [27, 28])):
        c.late.setdefault(st_, []).extend([
            f"s_lshl_b32 s80, s{S_IDX}, 2", f"s_add_u32 s80, s80, s{S_WAVE}", "s_mul_i32 s80, s80, 14", f"s_add_u32 s80, s80, {7*j}",
            f"s_and_b32 s81, s{S_XCD}, 1", "s_mul_i32 s81, s81, 1792", "s_add_u32 s80, s80, s81", "s_lshl_b32 s80, s80, 11",
            f"s_lshr_b32 s81, s{S_XCD}, 2", "s_lshl_b32 s81, s81, 10", "s_add_u32 s80, s80, s81",
            f"v_min_u32 v253, 55, v{LANE}", "v_lshrrev_b32 v254, 3, v253", "v_lshlrev_b32 v254, 11, v254", "v_and_b32 v253, 7, v253", "v_lshl_add_u32 v253, v253, 7, v254",
            "v_add_u32 v253, s80, v253", f"global_load_dword v240, v253, s[{P_W2}:{P_W2+1}]"])
    t4 = Txt()
    g4 = setup_gemm4p(t4, opt, 242)
    half = len(t4.L) // 2
    c.late[19] = t4.L[:half]; c.late[20] = t4.L[half:]
    pf = g4.prefetch_txt(4); c.late[29] = pf
    pf = g4.prefetch_txt(4); c.late[30] = pf
    c.late.setdefault(31, []).extend(g4.tabtxt)
    def G(s, t): return ((2 * s) * TB + t) * 4
    def Uu(s, t): return ((2 * s + 1) * TB + t) * 4
    def act(k, slots, t, scalar=False):
        if scalar:
            for s in slots:
                for r in range(4):
                    k(f"v_mul_f32 v{Uu(s,t)+r}, v{G(s,t)+r}, v{Uu(s,t)+r}")
                    k(f"v_mul_f32 v{G(s,t)+r}, s12, v{G(s,t)+r}")
            rs = [(s, r) for s in slots for r in range(4)]
            for i, (s, r) in enumerate(rs): k(f"v_exp_f32 v{G(s,t)+r}, v{G(s,t)+r}")
            for i, (s, r) in enumerate(rs): k(f"v_add_f32 v{G(s,t)+r}, 1.0, v{G(s,t)+r}")
            for i, (s, r) in enumerate(rs): k(f"v_rcp_f32 v{G(s,t)+r}, v{G(s,t)+r}")
            for i, (s, r) in enumerate(rs): k(f"v_mul_f32 v{Uu(s,t)+r}, v{Uu(s,t)+r}, v{G(s,t)+r}")
            return
        for s in slots:
            for h in range(2):
                k(f"v_pk_mul_f32 {vr(Uu(s,t)+2*h,2)}, {vr(G(s,t)+2*h,2)}, {vr(Uu(s,t)+2*h,2)}")
                k(f"v_pk_mul_f32 {vr(G(s,t)+2*h,2)}, {vr(G(s,t)+2*h,2)}, s[12:13]")
        for s in slots:
            for r in range(4): k(f"v_exp_f32 v{G(s,t)+r}, v{G(s,t)+r}")
        for s in slots:
            for h in range(2): k(f"v_pk_add_f32 {vr(G(s,t)+2*h,2)}, {vr(G(s,t)+2*h,2)}, 1.0 op_sel_hi:[1,0]")
        for s in slots:
            for r in range(4): k(f"v_rcp_f32 v{G(s,t)+r}, v{G(s,t)+r}")
        for s in slots:
            for h in range(2): k(f"v_pk_mul_f32 {vr(Uu(s,t)+2*h,2)}, {vr(Uu(s,t)+2*h,2)}, {vr(G(s,t)+2*h,2)}")
    def pair(k, pr, t, scalar=False):
        s0, s1 = 2 * pr, 2 * pr + 1
        act(k, [s0, s1], t, scalar)
        d = G(s0, t)
        k(f"v_cvt_pk_bf16_f32 v{d}, v{Uu(s0,t)}, v{Uu(s0,t)+1}\nv_cvt_pk_bf16_f32 v{d+1}, v{Uu(s0,t)+2}, v{Uu(s0,t)+3}")
        k(f"v_cvt_pk_bf16_f32 v{d+2}, v{Uu(s1,t)}, v{Uu(s1,t)+1}\nv_cvt_pk_bf16_f32 v{d+3}, v{Uu(s1,t)+2}, v{Uu(s1,t)+3}")
        k(f"buffer_store_dwordx4 {vr(d,4)}, v{L16}, {sr(SRD_C,4)}, s{SO+t} offen offset:{pr*1024} sc1")
        if opt.get("dbl", 0): k(f"buffer_store_dwordx4 {vr(d,4)}, v{L16}, {sr(SRD_C,4)}, s{SO+t} offen offset:{pr*1024}")
    ea = Txt(); eb = Txt()
    nin = opt.get("g3_nin", 8) if c.TL else 0
    for i, (pr, t) in enumerate([(pr, t) for pr in range(2) for t in range(TB)]):
        if i < nin: pair(ea, pr, t, opt.get("g3_scalar", 0))
        else: pair(eb, pr, t)
    if c.TL:
        nst = opt.get("g3_east", c.TL - 1)
        per = -(-len(ea.L) // nst)
        c.step_extra = lambda st: ea.L[(st - 32) * per:(st - 31) * per] if st >= 32 else []
    c.run(k)
    k.stamp("g3 loop done")
    if not c.TL: k("s_nop 7")
    k("s_barrier")
    mkE = len(k.L)
    for x in eb.L: k(x)
    grp = []
    for j in range(opt.get("g4_pa", 0)):
        t_ = g4.prefetch_txt(1); grp.append(t_[:-1] + ["s_nop 0", t_[-1]])
    sprinkle(k, mkE, grp)
    def single(k, t):
        act(k, [6], t)
        d = G(6, t)
        k(f"v_cvt_pk_bf16_f32 v{d}, v{Uu(6,t)}, v{Uu(6,t)+1}\nv_cvt_pk_bf16_f32 v{d+1}, v{Uu(6,t)+2}, v{Uu(6,t)+3}")
        k(f"buffer_store_dwordx2 {vr(d,2)}, v{SB}, {sr(SRD_C,4)}, s{SO+t} offen offset:3072 sc1")
    mkA = len(k.L)
    na = opt.get("g3_pubA", 2)
    g4.binl = None
    if opt.get("binl", 0):
        nb0 = opt.get("binl0", 1)
        bt = Txt()
        jobs = [(pair, (2, t)) for t in range(TB)] + [(single, (t,)) for t in range(TB)]
        g4.mkA = mkA
        for f_, a_ in jobs[:nb0]: f_(k, *a_)
        for f_, a_ in jobs[nb0:]: f_(bt, *a_)
        g4.binl = bt.L
    else:
        for t in range(na): pair(k, 2, t)
        publish(k, 93, 252, mkA)
        k.stamp("hA published")
        mark3 = len(k.L)
        for t in range(na, TB): pair(k, 2, t)
        grp = []
        for j in range(opt.get("g4_pb", 8)):
            t_ = g4.prefetch_txt(1); grp.append(t_[:-1] + ["s_nop 0", t_[-1]])
        sprinkle(k, mark3, grp)
        for t in range(TB): single(k, t)
    k.stamp("hh stored")
    return g4

def phase_gemm4(k, c, opt):
    LANE, L16 = c.LANE, c.L16
    VT = 40
    srd(k, SRD_T, P_WS, S * F * 2, WS_HH)
    srd(k, SRD_A, P_OUT, S * D * 2)
    k(f"v_and_b32 v{VT}, 31, v{LANE}\nv_lshlrev_b32 v{VT}, 2, v{VT}")
    k(f"s_lshl_b32 s84, s{S_RB2}, 1\ns_lshr_b32 s85, s{S_WAVE}, 1\ns_add_u32 s84, s84, s85\ns_lshl_b32 s84, s84, {FS+5}\ns_add_u32 s84, s84, {F_HH}")
    wait_flags(k, [(VT, 84, 1)], VT + 1)
    k.stamp("hh ready")
    V_G, V_GA, V_XA, V_X = 64, 44, 45, 48
    p = Txt()
    p(f"v_lshrrev_b32 v{VT}, 4, v{LANE}\nv_lshlrev_b32 v{V_GA}, 4, v{VT}\nv_add_u32 v{V_GA}, {L_MV}, v{V_GA}")
    p(f"v_and_b32 v{VT+1}, 15, v{LANE}\nv_lshlrev_b32 v{VT+1}, 11, v{VT+1}")
    p(f"v_and_b32 v{VT+2}, 1, v{VT}\nv_lshl_add_u32 v{VT+1}, v{VT+2}, 5, v{VT+1}")
    p(f"v_lshrrev_b32 v{VT+2}, 1, v{VT}\nv_lshl_add_u32 v{V_XA}, v{VT+2}, 4, v{VT+1}")
    p(f"s_lshl_b32 s86, s{S_RB2}, 3\ns_lshl_b32 s87, s{S_WAVE}, 1\ns_add_u32 s86, s86, s87\ns_lshl_b32 s86, s86, 15\ns_lshl_b32 s87, s{S_NT}, 7\ns_add_u32 s86, s86, s87\ns_add_u32 s87, s86, 32768")
    for j in range(16): p(f"v_accvgpr_read_b32 v{V_X+j}, a{A_X1+j}")
    c.pre_loop_txt = p.L
    c.last_reads = [f"ds_read_b128 {vr(V_G+4*b,4)}, v{V_GA} offset:{768+b*64}" for b in range(4)]
    c.run(k)
    k.stamp("g4 loop done")
    k("s_waitcnt lgkmcnt(0)\ns_nop 7")
    A = lambda b, t: (b * 2 + t) * 4
    XT = 96
    for t in range(2):
        for b in range(4):
            xr = V_X + (t * 4 + b) * 2
            for h in range(2): k(f"v_lshlrev_b32 v{XT+2*h}, 16, v{xr+h}\nv_and_b32 v{XT+2*h+1}, 0xffff0000, v{xr+h}")
            for h in range(2): k(f"v_pk_fma_f32 {vr(A(b,t)+2*h,2)}, {vr(A(b,t)+2*h,2)}, {vr(V_G+4*b+2*h,2)}, {vr(XT+2*h,2)}")
        PK = XT + 4 + t * 8
        for b in range(4): k(f"v_cvt_pk_bf16_f32 v{PK+2*b}, v{A(b,t)}, v{A(b,t)+1}\nv_cvt_pk_bf16_f32 v{PK+2*b+1}, v{A(b,t)+2}, v{A(b,t)+3}")
        k("s_nop 1")
        for s_ in range(2): k(f"v_permlane16_swap_b32 v{PK+4*s_}, v{PK+4*s_+2}\nv_permlane16_swap_b32 v{PK+4*s_+1}, v{PK+4*s_+3}")
        for s_ in range(2): k(f"buffer_store_dwordx4 {vr(PK+4*s_,4)}, v{V_XA}, {sr(SRD_A,4)}, s{86+t} offen offset:{s_*64}")

def build_mega(instr=False, opt=None, name="mega_kernel"):
    opt = opt or {}
    k = Mega(name, 256, 256, LDS_TOTAL, vgpr=256, agpr=256, sgpr=102)
    k.instr = instr; k.names = []; k.only = opt.get("only")
    end = k.label("end")
    far = k.label("go")
    if opt.get("diag2") is not None: k("s_memrealtime s[72:73]")
    k(f"s_cmp_lt_u32 s2, 256\ns_cbranch_scc1 {far}\ns_endpgm\n{far}:")
    if opt.get("fused", 1):
        code_prefetch_setup(k, name)
        k("v_and_b32 v104, 63, v0\nv_lshlrev_b32 v105, 4, v104\nv_lshlrev_b32 v254, 5, v0")
        k("global_load_dword a232, v254, s[100:101]")
        k("s_load_dwordx2 s[96:97], s[0:1], 88")
        if opt.get("dbgout"): k("s_load_dwordx2 s[72:73], s[0:1], 88")
    k("s_load_dwordx8 s[4:11], s[0:1], 0")
    k("s_load_dwordx2 s[12:13], s[0:1], 64")
    k("s_load_dwordx2 s[14:15], s[0:1], 40")
    k("s_load_dwordx4 s[16:19], s[0:1], 48")
    k("s_load_dwordx2 s[98:99], s[0:1], 72")
    k("s_load_dwordx2 s[24:25], s[0:1], 80")
    k("s_load_dwordx2 s[28:29], s[0:1], 96")
    if instr: k(f"v_mov_b32 v{VSTAMP}, 0")
    ids(k)
    k(f"s_lshr_b32 s80, s{S_IDX}, 2\ns_add_u32 s{S_R4}, s80, s{S_IDX}\ns_and_b32 s81, s{S_IDX}, 3\ns_lshl_b32 s81, s81, 1\ns_add_u32 s{S_R8}, s80, s81")
    if opt.get("g3map", 0):
        k(f"s_bfe_u32 s{S_RB3}, s{S_XCD}, 0x10001\ns_lshl_b32 s{S_RB3}, s{S_RB3}, 2\ns_lshr_b32 s80, s{S_IDX}, 3\ns_add_u32 s{S_RB3}, s{S_RB3}, s80")
        k(f"s_and_b32 s{S_FT}, s{S_XCD}, 1\ns_lshl_b32 s{S_FT}, s{S_FT}, 4\ns_lshr_b32 s81, s{S_XCD}, 2\ns_lshl_b32 s81, s81, 3\ns_add_u32 s{S_FT}, s{S_FT}, s81\ns_and_b32 s81, s{S_IDX}, 7\ns_add_u32 s{S_FT}, s{S_FT}, s81")
        k(f"s_add_u32 s72, s80, s{S_IDX}\ns_lshl_b32 s80, s80, 1\ns_add_u32 s73, s80, s{S_IDX}")
    else:
        k(f"s_and_b32 s80, s{S_IDX}, 3\ns_lshl_b32 s{S_FT}, s{S_XCD}, 2\ns_add_u32 s{S_FT}, s{S_FT}, s80\ns_lshr_b32 s{S_RB3}, s{S_IDX}, 2")
    if opt.get("fused", 1):
        for x in code_prefetch_txt(name, 105, 254, 80): k(x)
    k.stamp("start")
    g1 = (phase_front_fused if opt.get("fused", 1) else phase_front)(k, opt, name)
    g2 = (phase_gemm1s if opt.get('split', 1) else phase_gemm1)(k, g1, opt)
    g3 = phase_gemm2(k, g2, opt)
    g4 = phase_gemm3(k, g3, opt)
    (phase_gemm4p if opt.get('g4_pair', 1) else phase_gemm4)(k, g4, opt)
    if opt.get("diag2") is not None:
        lp, sk = k.label("dg"), k.label("dgs")
        if opt["diag2"] >= 0: k(f"s_cmp_lg_u32 s2, {opt['diag2']}\ns_cbranch_scc1 {sk}")
        k(f"{lp}:\ns_memrealtime s[0:1]\ns_waitcnt lgkmcnt(0)\ns_sub_u32 s87, s0, s72\ns_cmp_lt_u32 s87, 10000\ns_cbranch_scc1 {lp}\n{sk}:")
    elif opt.get("diag"):
        a_, b_ = opt["diag"]
        k(f"v_readlane_b32 s84, v{VSTAMP}, 0\nv_readlane_b32 s85, v{VSTAMP}, {a_}\nv_readlane_b32 s86, v{VSTAMP}, {b_}\ns_nop 3")
        k("s_sub_u32 s86, s86, s85\ns_add_u32 s86, s86, 10000")
        lp = k.label("dg")
        k(f"{lp}:\ns_memrealtime s[0:1]\ns_waitcnt lgkmcnt(0)\ns_sub_u32 s87, s0, s84\ns_cmp_lt_u32 s87, s86\ns_cbranch_scc1 {lp}")
    elif instr:
        k("s_waitcnt vmcnt(0)")
        k.stamp("end")
        k(f"s_add_u32 s84, s{P_WS}, {WS_DBG}\ns_addc_u32 s85, s{P_WS+1}, 0\ns_mov_b32 s86, 0x100000\ns_mov_b32 s87, 0x20000")
        k(f"s_lshl_b32 s88, s2, 2\ns_add_u32 s88, s88, s{S_WAVE}\ns_lshl_b32 s88, s88, 8")
        lane_id(k, 1)
        k("v_lshlrev_b32 v1, 2, v1")
        k(f"buffer_store_dword v{VSTAMP}, v1, s[84:87], s88 offen")
        if opt.get("dbgout"):
            sk = k.label("nodbg")
            k(f"s_lshl_b32 s88, s2, 2\ns_add_u32 s88, s88, s{S_WAVE}\ns_cmp_lg_u32 s88, {opt['dbgout']*4}\ns_cbranch_scc1 {sk}")
            k("s_mov_b32 s84, s72\ns_mov_b32 s85, s73\ns_mov_b32 s86, 64\ns_mov_b32 s87, 0x20000")
            k(f"v_readlane_b32 s89, v{VSTAMP}, 0\ns_nop 3\nv_subrev_u32 v2, s89, v{VSTAMP}")
            k("buffer_store_dword v2, v1, s[84:87], 0 offen offset:12")
            k(f"{sk}:")
    k("s_endpgm")
    k(f"{name}_end:")
    return k
```

```python
import sys, json
from asmlib import *
from layout import *
from mega import build_mega, build_k0
import re
def postproc(txt, opt):
    nt = opt.get("nt", ["mod"])
    out = []
    for l in txt.split("\n"):
        if "buffer_load_dwordx4" in l and " sc1" not in l:
            if "g3" in nt and "s[64:67]" in l: l = l.replace(" lds", " nt lds")
            if "w" in nt and "s[32:35]" in l: l = l.replace(" lds", " nt lds")
            if "mod" in nt and "s[52:55]" in l: l = l + " nt"
            if "x" in nt and "s[40:43]" in l and not l.endswith("lds"): l = l + " nt"
        if opt.get("plain_tok") and "buffer_load_dwordx" in l and "s[36:39]" in l: l = l.replace(" sc1", opt["plain_tok"].replace("_", " ").rstrip())
        if opt.get("out_flag") and "buffer_store_dwordx4" in l and "s[40:43]" in l and "sc1" not in l: l = l + opt["out_flag"]
        if opt.get("no_c3") and "v_lshlrev_b32 v62, 10, v62" in l: l = "  v_mov_b32 v62, 0"
        if opt.get("no_code") and "v_min_u32 v254," in l and "_end" in l: l = "  v_mov_b32 v254, 0"
        if opt.get("no_code") and "v_lshlrev_b32 v254, 5, v0" in l: l = "  v_mov_b32 v254, 0"
        out.append(l)
    res, cur = [], None
    for l in out:
        t = l.strip()
        if t.endswith(":") or "branch" in t: cur = None
        elif t.startswith("s_") and " " in t:
            dst = t.split()[1].rstrip(",")
            if dst == "m0":
                if t == cur and opt.get("m0opt", 1): continue
                cur = t if t.startswith("s_add_u32 m0") else None
            elif cur and dst == cur.split()[2].rstrip(","): cur = None
        res.append(l)
    return "\n".join(res)
def make(path, instr, opt=None, hdr=""):
    m = build_mega(instr=instr, opt=opt)
    ks = [m] if (opt or {}).get('fused', 1) else [build_k0(instr=instr, opt=opt), m]
    if instr:
        b = Kernel("block_kernel", 8, 64, 0, vgpr=8, sgpr=16)
        b("s_mov_b32 s4, 0\nL_blk:\ns_sleep 127\ns_add_u32 s4, s4, 1\ns_cmp_lt_u32 s4, 100\ns_cbranch_scc1 L_blk\ns_endpgm")
        ks = [b] + ks
        json.dump(m.names, open(path.replace(".s", ".json"), "w"))
    txt = build_file(ks, hdr)
    txt = postproc(txt, opt or {})
    if (opt or {}).get('trim', 0) and not instr:
        from trim import trim_nops
        txt, sv = trim_nops(txt)
    if (opt or {}).get('align', 1):
        from align import align
        txt, nw, nn = align(txt, 'mega_kernel')
    open(path, "w").write(txt)
if __name__ == "__main__":
    variants = json.loads(sys.argv[1]) if len(sys.argv) > 1 else {}
    for n, o in variants.items(): make(f"mv_{n}.s", True, o)
    if len(sys.argv) > 2 and sys.argv[2] == "only": sys.exit(0)
    make("mega_i.s", True)
    hdr = open("adaLN_cond__linear_kernel_hedgehog__glu_gated_swiglu__prompt.s.ref").read().split("; Override")[0]
    make("mega.s", False, hdr=hdr)
```

```python
from asmlib import *
MF = "v_mfma_f32_16x16x32_bf16"

class Item:
    __slots__ = ("kind", "txt", "key", "lgkm")
    def __init__(self, kind, txt=None, key=None, lgkm=None):
        self.kind = kind; self.txt = txt; self.key = key; self.lgkm = lgkm
def T(txt): return Item("txt", txt)
def VM(txt, key): return Item("vm", txt, key)
def WVM(keys, lgkm=None): return Item("wvm", None, keys, lgkm)
def is_vm(x): return x.startswith("buffer_") or x.startswith("global_")

class Txt:
    def __init__(self): self.L = []
    def __call__(self, s): self.L += [x.strip() for x in s.split("\n") if x.strip()]

def win_mask(sizes):
    out, b = [], 0
    for w in sizes:
        out += [(b, w - 1)] * w; b += w
    return out

class Sched:
    pro_units = 0; ramp_rate = 99; read_margin = 8; lookahead = 99
    step_extra = None; late = None; last_reads = (); pre_loop_txt = (); drop = ()
    pre_dma = 0
    tab = None; tab0 = 5
    phase = None
    gate_min = {}
    w_off = None; t_off = None; sub_stride = 1024
    first_flag = ''
    wreg = staticmethod(ar); wbase = 0
    pub0 = ()
    fine = 0
    bar_frac = 0.3
    stamp_every = 0; tag = ''
    def __init__(self):
        self.steps = []; self.stage_units = {}; self.stage_slot = {}; self.tok_units = {}; self.tok_slot = {}
        self.late = {}
    lead_D = None
    s_start = None
    gates = ()
    tile_of = staticmethod(lambda key: key)
    def lead_init(self, k, s_r, s_tmp):
        D = self.lead_D
        for m in range(4):
            d = self.s_dl + m
            k(f"s_sub_u32 s{s_tmp}, {m}, s{s_r}\ns_and_b32 s{s_tmp}, s{s_tmp}, 3")
            k(f"s_cmp_eq_u32 s{s_tmp}, 1\ns_cselect_b32 s{d}, {2+D}, {1+D}")
            k(f"s_cmp_eq_u32 s{s_tmp}, 0\ns_cselect_b32 s{d}, 0, s{d}")
    def pos_txt(self, s_dst, kt):
        KT = self.KT
        pow2 = KT & (KT - 1) == 0
        if self.lead_D is not None:
            assert self.s_start is None
            if kt < 2 + self.lead_D:
                return [f"s_sub_u32 s{s_dst}, {kt + KT}, s{self.s_dl + kt % 4}", f"s_sub_u32 s{self.s_ptmp}, s{s_dst}, {KT}", f"s_min_u32 s{s_dst}, s{s_dst}, s{self.s_ptmp}"]
            return [f"s_sub_u32 s{s_dst}, {kt}, s{self.s_dl + kt % 4}"]
        base, mask = self.wins[kt]
        if self.phase is not None:
            s_phi, s_r = self.phase
            t_ = self.s_ptmp
            o = [f"s_add_u32 s{s_dst}, s{s_phi}, {kt - base}", f"s_add_u32 s{t_}, s{s_dst}, s{s_r}", f"s_and_b32 s{t_}, s{t_}, 3",
                 f"s_and_b32 s{s_dst}, s{s_dst}, {mask & ~3}", f"s_or_b32 s{s_dst}, s{s_dst}, s{t_}"]
            if base: o.append(f"s_add_u32 s{s_dst}, s{s_dst}, {base}")
            return o
        if mask == 0:
            if self.s_start is None: return [f"s_mov_b32 s{s_dst}, {base}"]
            o = [f"s_add_u32 s{s_dst}, s{self.s_start}, {base}"]
        else:
            o = [f"s_add_u32 s{s_dst}, s{self.s_rot if mask > 3 else self.s_rot2}, {kt - base}", f"s_and_b32 s{s_dst}, s{s_dst}, {mask}"]
            if base: o.append(f"s_add_u32 s{s_dst}, s{s_dst}, {base}")
            if self.s_start is None: return o
            o.append(f"s_add_u32 s{s_dst}, s{s_dst}, s{self.s_start}")
        if pow2: o.append(f"s_and_b32 s{s_dst}, s{s_dst}, {KT-1}")
        else: o += [f"s_sub_u32 s{self.s_ptmp}, s{s_dst}, {KT}", f"s_min_u32 s{s_dst}, s{s_dst}, s{self.s_ptmp}"]
        return o
    def pos_items(self, s_dst, kt, stride):
        return [T(x) for x in self.pos_txt(s_dst, kt)] + [T(f"s_mul_i32 s{s_dst}, s{s_dst}, {stride}")]
    def _dma_list(self):
        return [(s, i) for s in sorted(self.stage_units) for i in range(len(self.stage_units[s]))]
    def prefetch(self, k, n):
        for s, i in self._dma_list()[self.pre_dma:self.pre_dma + n]:
            for x in self.stage_units[s][i]:
                if x.kind == "vm": k("s_nop 0")
                k(x.txt)
        self.pre_dma += n
    def prefetch_txt(self, n):
        t = Txt(); self.prefetch(t, n); return [x for x in t.L if x != "s_nop 0"]

    def run(self, k):
        c = self
        N = len(c.steps)
        sfirst, slast, tfirst, tlast = {}, {}, {}, {}
        for i, st in enumerate(c.steps):
            for s in st["stages"]: sfirst.setdefault(s, i); slast[s] = i
            for t in st["toks"]: tfirst.setdefault(t, i); tlast[t] = i
        bars = {}
        for s, f in sfirst.items():
            if s not in c.pub0: bars.setdefault(f - 1, []).append(s)
        barsteps = sorted(bars)
        units = {"dma": [], "tok": []}
        prev = {}
        skip = c.pre_dma
        for s in sorted(c.stage_units):
            sl = c.stage_slot[s]
            e = -1 if sl not in prev else min(b for b in barsteps if b >= slast[prev[sl]])
            prev[sl] = s
            for i, u in enumerate(c.stage_units[s]):
                if skip: skip -= 1; assert e == -1; continue
                units["dma"].append((sfirst[s] - 1, e, "dma", u))
        prev = {}
        for key in sorted(c.tok_units, key=lambda q: (tfirst[q], q)):
            sl = c.tok_slot[key]
            e = -1 if sl not in prev else tlast[prev[sl]] + 1
            e = max(e, tfirst[key] - c.lookahead, -1)
            for gt, gm in c.gate_min.items():
                if c.tile_of(key) >= gt: e = max(e, gm)
            prev[sl] = key
            for u in c.tok_units[key]: units["tok"].append((tfirst[key], e, "tok", u, c.tile_of(key)))
        issue = {}
        pos, cnt, cap = -1, 0, c.pro_units
        rate = c.ramp_rate if callable(c.ramp_rate) else (lambda s: c.ramp_rate)
        while units["dma"] or units["tok"]:
            cand = [q[0] for q in units.values() if q and q[0][1] <= pos]
            if cand and cnt < cap:
                u = min(cand, key=lambda u: (u[0], 0 if u[2] == "dma" else 1))
                issue.setdefault(pos, []).append(u); units[u[2]].pop(0); cnt += 1
                assert pos < u[0] or pos == -1, ("late unit", u[:3], pos)
            else:
                pos += 1; cnt = 0; cap = rate(pos)
        gate_at = {}
        for gt, gp, gi in c.gates:
            gs_ = min(st for st, us in issue.items() if any(u[2] == "tok" and u[4] >= gt for u in us))
            assert gs_ >= 1 and gs_ not in gate_at, gs_
            gate_at[gs_] = (gp, gi)
            if gt in c.gate_min: assert gs_ >= c.gate_min[gt], (gt, gs_)
        def read_items(step):
            out = []
            for j, (va, o0, o1, _) in enumerate(c.steps[step]["frags"]):
                for r, off in enumerate((o0, o1)):
                    assert 0 <= off < 65536, off
                    out.append(Item("ds", f"ds_read_b64_tr_b16 {c.wreg(c.wbase+c.wf(step % 2, j)+2*r,2)}, v{va} offset:{off}", (step, j)))
            return out
        def bar(step): return [WVM([("dma", s) for s in bars[step]], lgkm=(0 if c.fine else None)), T("s_barrier")]
        def conv(x):
            if isinstance(x, Item): return x
            return VM(x, ("extra", 0)) if is_vm(x) else T(x)
        pro = []
        for u in issue.get(-1, []):
            for x in u[3]:
                if x.kind == "vm" and x.txt.endswith("lds"): pro.append(T("s_nop 0"))
                pro.append(x)
        pro += [conv(x) for x in c.pre_loop_txt]
        pro += (bar(-1) if -1 in bars else []) + read_items(0)
        touched = set(c.acc_init) if hasattr(c, "acc_init") else set()
        def make_step(step):
            st = c.steps[step]
            newt = [("tok", t) for t in st["toks"] if tfirst[t] == step]
            out = [WVM(newt, lgkm=0)] if not c.fine else ([WVM(newt)] if newt else [])
            mf = []
            pre = {}
            nf = len(st["frags"])
            for j, (_, _, _, ms) in enumerate(st["frags"]):
                if c.fine and j % c.fine == 0: pre[len(mf)] = Item("wds", None, (step, min(nf - 1, j + c.fine - 1)))
                for acc, tr in (ms if j % 2 == 0 else ms[::-1]):
                    cin = acc if acc in touched else "0"
                    touched.add(acc)
                    mf.append(T(f"{MF} {acc}, {c.wreg(c.wbase+c.wf(step%2, j),4)}, {ar(tr,4)}, {cin}"))
            n = len(mf)
            gaps = [[] for _ in range(n)]
            g0 = 0
            if step in bars:
                gb = int(n * c.bar_frac) if c.fine else 0
                gaps[gb] += bar(step); g0 = gb + 1
            us = issue.get(step, [])
            a = [u for u in us if u[2] == "dma"]; b_ = [u for u in us if u[2] == "tok"]
            if us and min(u[0] for u in us) > step + 1:
                seq = []
                while a or b_:
                    if b_: seq.append(b_.pop(0))
                    if a: seq.append(a.pop(0))
            else: seq = us
            B = []
            if step in gate_at: B += [conv(x) for x in gate_at[step][1]]
            for u in seq: B += u[3]
            B += [conv(x) for x in c.late.get(step, [])]
            if step + 1 in gate_at: B = B[:len(gate_at[step][1]) if step in gate_at else 0] + [conv(x) for x in gate_at[step + 1][0]] + B[len(gate_at[step][1]) if step in gate_at else 0:]
            A = read_items(step + 1) if step + 1 < N else [T(x) for x in c.last_reads]
            X = [conv(x) for x in (c.step_extra(step) if c.step_extra else [])]
            want = []
            ra = max(1, n - (0 if c.fine else c.read_margin) - g0)
            for i, x in enumerate(A): want.append((g0 + i * ra / len(A), 0, i, x))
            for i, x in enumerate(B): want.append((g0 + (i + 0.5) * (n - g0) / len(B), 1, i, x))
            for i, x in enumerate(X): want.append((g0 + (i + 0.25) * (n - g0) / len(X), 2, i, x))
            want.sort(key=lambda w: (w[0], w[1], w[2]))
            cap = max(1, -(-len(want) // (n - g0)))
            g = g0
            for pos_, _, _, x in want:
                g = max(g, min(n - 1, int(pos_)))
                while g < n - 1 and len(gaps[g]) >= cap: g += 1
                gaps[g].append(x)
            for i in range(n):
                if i in pre: out.append(pre[i])
                out.append(mf[i])
                prev = None
                for x in gaps[i]:
                    if x.kind == "vm" and x.txt.endswith("lds") and prev is not None and prev.txt and " m0," in prev.txt:
                        out.append(T("s_nop 0"))
                    out.append(x); prev = x
            return out
        issued = []
        ds = []
        def emit(items):
            for x in items:
                if x.kind == "wds":
                    idx = [i for i, kk in enumerate(ds) if kk == x.key]
                    if idx:
                        n = min(15, len(ds) - 1 - idx[-1])
                        k(f"s_waitcnt lgkmcnt({n})")
                        del ds[:len(ds) - n]
                elif x.kind == "wvm":
                    if x.lgkm == 0: ds.clear()
                    n = 63
                    for key in x.key:
                        idx = [i for i, kk in enumerate(issued) if kk == key]
                        n = min(n, len(issued) - 1 - idx[-1] if idx else len(issued))
                    parts = ([f"vmcnt({n})"] if x.key else []) + ([f"lgkmcnt({x.lgkm})"] if x.lgkm is not None else [])
                    k("s_waitcnt " + " ".join(parts))
                else:
                    if x.kind == "vm": issued.append(x.key)
                    if x.kind == "ds": ds.append(x.key)
                    if any(d in x.txt for d in c.drop): continue
                    k(x.txt)
        emit(pro)
        for s in range(N):
            if c.stamp_every and s % c.stamp_every == 0: k.stamp(f"{c.tag} step {s}")
            emit(make_step(s))

def std_sched(c):
    NB, TB, KS, SPK, KT, NS, R = c.NB, c.TB, c.KS, c.SPK, c.KT, c.NS, c.R
    for kt in range(KT):
        us = []
        sw = c.s_kw + kt % 2
        for i, d_ in enumerate(c.dma):
            vo, loff, goff = d_[:3]
            usetab = c.tab is not None and kt >= c.tab0
            g = (c.w_off(sw, kt) if c.w_off else c.pos_items(sw, kt, c.w_stride)) if (i == 0 and not usetab) else []
            if len(d_) < 4 or d_[3]: g += [T(f"s_add_u32 m0, s{c.s_wbase}, {c.slot_addr(kt % NS) + loff - goff}")]
            g += [VM(f"buffer_load_dwordx4 v{vo}, {sr(c.srd_w,4)}, s{sw} offen" + (f" offset:{goff}" if goff else "") + " lds", ("dma", kt))]
            if i == 0 and c.tab is not None and c.tab0 <= kt + 1 < KT: g.append(T(f"v_readlane_b32 s{c.s_kw + (kt + 1) % 2}, v{c.tab[0]}, {kt + 1}"))
            if len(d_) == 4 and not d_[3]: us[-1] = us[-1] + g
            else: us.append(g)
        c.stage_units[kt] = us; c.stage_slot[kt] = kt % NS
        for sp in range(SPK):
            step = kt * SPK + sp
            us = []
            st_ = c.s_kt + kt % 2
            for ks in range(KS):
                for t in range(TB):
                    first = sp == 0 and ks == 0 and t == 0
                    g = (c.t_off(st_, kt) if c.t_off else c.pos_items(st_, kt, SPK * KS * 1024)) if (first and not (c.tab is not None and kt >= c.tab0)) else []
                    g.append(VM(f"buffer_load_dwordx4 {ar(c.tf(step % R, ks, t),4)}, v{c.v_tok[t]}, {sr(c.srd_t,4)}, s{st_} offen offset:{(sp*KS+ks)*c.sub_stride} sc1", ("tok", step)))
                    if first and c.tab is not None and c.tab0 <= kt + 1 < KT: g.append(T(f"v_readlane_b32 s{c.s_kt + (kt + 1) % 2}, v{c.tab[1]}, {kt + 1}"))
                    us.append(g)
            c.tok_units[step] = us; c.tok_slot[step] = step % R
            frags = []
            for ks in range(KS):
                for b in range(NB):
                    va, o0 = c.rd(kt % NS, b, sp * KS + ks, 0); _, o1 = c.rd(kt % NS, b, sp * KS + ks, 1)
                    frags.append((va, o0, o1, [(c.acc(b, t), c.tf(step % R, ks, t)) for t in range(TB)]))
            c.steps.append(dict(frags=frags, stages=[kt], toks=[step]))
    c.wf = lambda buf, j: (buf * NB * KS + j) * 4
    c.tile_of = lambda key: key // SPK
```

```python
import sys
from asmlib import *
from gemm import *
from layout import *
LOG2E = 1.4426950408889634
P_X, P_WQKV, P_WPHI, P_WO, P_W1, P_W3, P_W2, P_OUT, P_WS = 4, 6, 8, 10, 14, 16, 18, 24, 28
P_DBG, S_MB, S_MO = 96, 77, 79
P_C, P_WMOD = 12, 98
S_WAVE, S_XCD, S_IDX = 3, 30, 31
SRD_W, SRD_T, SRD_A, SRD_B, SRD_C, SRD_D, SRD_F = 32, 36, 40, 44, 48, 52, 56
S_KW, S_KT, S_WB, S_ROT, S_TMP, S_ROT2 = 60, 62, 76, 77, 78, 79
S_RB1, S_HP, S_RB2, S_NT, S_RB3, S_FT = 26, 27, 26, 27, 22, 23
S_R8, S_R4 = 20, 21
VSTAMP = 255
L_WPH, L_UTC = 110592, 105472
L_UT3, L_MV, L_R2 = 114688, 128000, 129792
LDS_TOTAL = 163584

class Mega(Kernel):
    nst = 0
    only = None
    def stamp(self, name=""):
        if not self.instr: return
        if self.only is not None and not any(name.startswith(o) for o in self.only): return
        if self.only is None and name[:3] in ("kp ", "qp "): return
        self("s_waitcnt lgkmcnt(0)\ns_memrealtime s[0:1]\ns_waitcnt lgkmcnt(0)")
        self(f"v_writelane_b32 v{VSTAMP}, s0, {self.nst}")
        self("s_nop 3\ns_memtime s[0:1]\ns_waitcnt lgkmcnt(0)")
        self(f"v_writelane_b32 v{VSTAMP}, s0, {self.nst + 32}")
        self.names.append(name); self.nst += 1

def lane_id(k, v):
    k(f"v_mbcnt_lo_u32_b32 v{v}, -1, 0\nv_mbcnt_hi_u32_b32 v{v}, -1, v{v}")

def code_prefetch_setup(k, name, s_pc=100):
    lab = k.label("pc")
    k(f"s_getpc_b64 s[{s_pc}:{s_pc+1}]")
    k(f"{lab}:")
    k(f"s_sub_u32 s{s_pc}, s{s_pc}, {lab}-{name}\ns_subb_u32 s{s_pc+1}, s{s_pc+1}, 0")
def code_prefetch_txt(name, v_l16, vt, s_tmp, s_idx=S_IDX, s_wave=S_WAVE, s_pc=100, junk="a232"):
    return [f"s_lshl_b32 s{s_tmp}, s{s_idx}, 2", f"s_add_u32 s{s_tmp}, s{s_tmp}, s{s_wave}", f"s_lshl_b32 s{s_tmp}, s{s_tmp}, 10",
            f"v_add_u32 v{vt}, s{s_tmp}, v{v_l16}", f"v_min_u32 v{vt}, {name}_end-{name}-4, v{vt}",
            f"global_load_dword {junk}, v{vt}, s[{s_pc}:{s_pc+1}]"]

def count_vm(k, mark):
    return sum(1 for x in k.L[mark:] if is_vm(x))
def publish(k, s_off, vt, mark=None):
    k(f"v_mov_b32 v{vt}, 1\nv_mov_b32 v{vt+1}, 0")
    n = 0 if mark is None else count_vm(k, mark)
    assert n < 64
    k(f"s_waitcnt vmcnt({n})")
    k(f"buffer_store_dword v{vt}, v{vt+1}, {sr(SRD_F,4)}, s{s_off} offen sc1")

def spin(k, loads, regs, vt, s_cnt=96):
    top, ok = k.label("poll"), k.label("ok")
    k(f"s_mov_b32 s{s_cnt}, 0")
    k(f"{top}:")
    for x in loads: k(x)
    k("s_waitcnt vmcnt(0)")
    if len(regs) == 1: k(f"v_cmp_eq_u32 vcc, 0, v{regs[0]}")
    else:
        k(f"v_min_u32 v{vt}, v{regs[0]}, v{regs[1]}")
        for x in regs[2:]: k(f"v_min_u32 v{vt}, v{vt}, v{x}")
        k(f"v_cmp_eq_u32 vcc, 0, v{vt}")
    k(f"s_add_u32 s{s_cnt}, s{s_cnt}, 1")
    k(f"s_cmp_eq_u64 vcc, 0\ns_cbranch_scc1 {ok}")
    k(f"s_sleep {SLEEP}\ns_cmp_lt_u32 s{s_cnt}, 0x200000\ns_cbranch_scc1 {top}")
    k(f"{ok}:")

def wait_flags(k, polls, vt, s_cnt=96):
    top, ok = k.label("poll"), k.label("ok")
    k(f"s_mov_b32 s{s_cnt}, 0")
    k(f"{top}:")
    r = vt
    regs = []
    for va, so, ndw in polls:
        if ndw == 4: r = (r + 1) // 2 * 2
        k(f"buffer_load_dword{'x4' if ndw == 4 else ''} {vr(r,ndw)}, v{va}, {sr(SRD_F,4)}, s{so} offen sc1")
        regs += list(range(r, r + ndw)); r += ndw
    k("s_waitcnt vmcnt(0)")
    for x in regs[1:]: k(f"v_min_u32 v{regs[0]}, v{regs[0]}, v{x}")
    k(f"v_cmp_eq_u32 vcc, 0, v{regs[0]}")
    k(f"s_add_u32 s{s_cnt}, s{s_cnt}, 1")
    k(f"s_cmp_eq_u64 vcc, 0\ns_cbranch_scc1 {ok}")
    k(f"s_sleep {SLEEP}\ns_cmp_lt_u32 s{s_cnt}, 0x200000\ns_cbranch_scc1 {top}")
    k(f"{ok}:")

def staged_wait(k, c, T_, v_addr, s_off, vf, prod_of, dup16=False, skip_first=0, s_m=97, pub=None):
    ld = f"buffer_load_dword v{vf}, v{v_addr}, {sr(SRD_F,4)}, s{s_off} offen sc1"
    if T_ is None:
        spin(k, [ld], [vf], 0); return
    k(f"s_mov_b32 s{s_m}, 0")
    for kt in range(skip_first, T_):
        for x in c.pos_txt(80, kt): k(x)
        for x in prod_of(80, 81): k(x)
        k(f"s_or_b32 s{s_m}, s{s_m}, s81")
    if dup16: k(f"s_lshl_b32 s81, s{s_m}, 16\ns_or_b32 s{s_m}, s{s_m}, s81")
    top, ok = k.label("poll"), k.label("ok")
    if pub:
        mk = len(k.L); k(ld); publish(k, pub[0], pub[1], mk)
        k("s_waitcnt vmcnt(1)")
        k(f"v_cmp_eq_u32 vcc, 0, v{vf}\ns_nop 0")
        k(f"s_and_b32 s81, vcc_lo, s{s_m}\ns_cbranch_scc0 {ok}")
    k(f"s_mov_b32 s96, 0\n{top}:")
    k(ld)
    k("s_waitcnt vmcnt(0)")
    k(f"v_cmp_eq_u32 vcc, 0, v{vf}")
    k("s_add_u32 s96, s96, 1")
    k(f"s_and_b32 s81, vcc_lo, s{s_m}\ns_cbranch_scc0 {ok}")
    k(f"s_sleep {SLEEP}\ns_cmp_lt_u32 s96, 0x200000\ns_cbranch_scc1 {top}")
    k(f"{ok}:")
    add_gate(k, c, T_, ld, vf)
def add_gate(k, c, tile, ld, vf):
    m = Txt(); m.label = k.label
    okl = k.label("gok")
    m(f"v_cmp_eq_u32 vcc, 0, v{vf}\ns_cmp_eq_u64 vcc, 0\ns_cbranch_scc1 {okl}")
    spin(m, [ld], [vf], 0)
    m(f"{okl}:")
    c.gates = list(c.gates) + [(tile, [VM(ld, ("gate", tile))], [WVM([("gate", tile)]), T("\n".join(m.L))])]
one_prod = lambda sp, st: [f"s_lshl_b32 s{st}, 1, s{sp}"]

def allreduce_q(k, op, x, tmp):
    k(f"v_mov_b32 v{tmp}, v{x}\ns_nop 1")
    k(f"v_permlane32_swap_b32 v{x}, v{tmp}")
    k(f"s_nop 1\n{op} v{x}, v{x}, v{tmp}")
    k(f"v_mov_b32 v{tmp}, v{x}\ns_nop 1")
    k(f"v_permlane16_swap_b32 v{x}, v{tmp}")
    k(f"s_nop 1\n{op} v{x}, v{x}, v{tmp}")

def treduce4(k, op, A):
    a, b, c, d = A
    k("s_nop 1")
    k(f"v_permlane32_swap_b32 v{a}, v{b}\nv_permlane32_swap_b32 v{c}, v{d}")
    k("s_nop 1")
    k(f"{op} v{a}, v{a}, v{b}\n{op} v{c}, v{c}, v{d}")
    k("s_nop 1")
    k(f"v_permlane16_swap_b32 v{a}, v{c}")
    k("s_nop 1")
    k(f"{op} v{a}, v{a}, v{c}")
    k(f"v_mov_b32 v{c}, v{a}")
    k("s_nop 1")
    k(f"v_permlane16_swap_b32 v{a}, v{c}")
    k("s_nop 1")
    k(f"v_mov_b32 v{b}, v{a}\nv_mov_b32 v{d}, v{c}")
    k("s_nop 1")
    k(f"v_permlane32_swap_b32 v{a}, v{b}\nv_permlane32_swap_b32 v{c}, v{d}")
    k("s_nop 1")

def treduce4x2(k, ops, As):
    A, B = Txt(), Txt()
    treduce4(A, ops[0], As[0]); treduce4(B, ops[1], As[1])
    def split(L):
        out, cur = [], []
        for x in L:
            if x.startswith("s_nop"): out.append(cur); cur = []
            else: cur.append(x)
        out.append(cur); return out
    for a, b in zip(split(A.L), split(B.L)):
        for x in a + b: k(x)
        k("s_nop 0" if len(a) >= 1 else "s_nop 1")

def red8(k, x):
    for m in ("quad_perm:[1,0,3,2]", "quad_perm:[2,3,0,1]", "row_half_mirror"):
        k(f"s_nop 1\nv_add_f32_dpp v{x}, v{x}, v{x} {m} row_mask:0xf bank_mask:0xf")

def round_bf16(k, v):
    k(f"v_cvt_pk_bf16_f32 v{v}, v{v}, v{v}\nv_and_b32 v{v}, 0xffff0000, v{v}")

S_DLA, S_DLB, S_PTMP = 71, 6, 75
def order(c, k, opt, tag, default):
    o = opt.get(tag + "_ord", default)
    c.first_flag = opt.get(tag + "_ff", ""); c.fake32 = opt.get(tag + "_f32", 0)
    c.tag = tag; c.stamp_every = opt.get(tag + "_se", 0)
    c.fine = opt.get(tag + "_fine", opt.get("fine", 0)); c.bar_frac = opt.get("bar_frac", 0.3)
    c.s_rot, c.s_rot2 = S_R8, S_R4
    if o[0] == "lead":
        c.lead_D, c.s_dl = o[1], S_DLA
    else:
        c.wins = win_mask(o[1])
        if o[0] == "phase": c.phase = (S_RB3, S_IDX)
        elif o[2]:
            c.s_start = S_HP
            c.s_rot = c.s_rot2 = S_RB3
def common_gemm(c):
    c.srd_w, c.srd_t = SRD_W, SRD_T
    c.s_kw, c.s_kt, c.s_wbase, c.s_ptmp = S_KW, S_KT, S_WB, S_PTMP

def setup_gemm1(k, opt):
    c = Sched(); common_gemm(c)
    NS, R = opt.get("g1_NS", 4), opt.get("g1_R", 4)
    STAGE = 25344
    c.V_RD, c.V_DMA, c.V_TOK, c.LANE, c.L16, c.VT = 96, 98, 102, 104, 105, 106
    V_RD, V_DMA, V_TOK, LANE, L16, VT = c.V_RD, c.V_DMA, c.V_TOK, c.LANE, c.L16, 110
    k(f"v_lshlrev_b32 v{L16}, 4, v{LANE}")
    c.lead_D, c.s_dl = opt.get("D", 0), S_DLA
    if opt.get("uselead", 0): c.lead_init(k, S_R4, 81)
    c.lead_D = None
    order(c, k, opt, "g1", ["win", [8, 8], 0])
    k(f"s_lshr_b32 s80, s{S_WAVE}, 1\ns_and_b32 s81, s{S_WAVE}, 1")
    k(f"v_lshrrev_b32 v{VT+1}, 3, v{LANE}")
    k(f"v_and_b32 v{VT+2}, 4, v{VT+1}")
    k(f"v_bfe_u32 v{VT+3}, v{VT+1}, 1, 1\nv_or_b32 v{VT+2}, v{VT+2}, v{VT+3}")
    k(f"v_and_b32 v{VT+3}, 1, v{VT+1}\nv_lshl_or_b32 v{VT+2}, v{VT+3}, 1, v{VT+2}")
    k(f"v_mul_u32_u24 v{VT+2}, {4*6144}, v{VT+2}")
    k(f"v_and_b32 v{VT+3}, 7, v{LANE}\nv_lshl_add_u32 v{VT+2}, v{VT+3}, 4, v{VT+2}")
    k("s_lshl_b32 s82, s80, 5\ns_lshl_b32 s83, s81, 1\ns_add_u32 s82, s82, s83\ns_mul_i32 s82, s82, 6144")
    k(f"s_lshl_b32 s83, s{S_HP}, 7\ns_add_u32 s82, s82, s83")
    k(f"v_add_u32 v{V_DMA}, s82, v{VT+2}")
    k(f"v_add_u32 v{V_DMA+1}, 6144, v{V_DMA}\nv_add_u32 v{V_DMA+2}, 4096, v{V_DMA}\nv_add_u32 v{V_DMA+3}, {6144+4096}, v{V_DMA}")
    k(f"v_bfe_u32 v{VT+1}, v{LANE}, 2, 2\nv_mul_u32_u24 v{VT+1}, 1056, v{VT+1}")
    k(f"v_lshrrev_b32 v{VT+2}, 5, v{LANE}\nv_lshl_add_u32 v{VT+1}, v{VT+2}, 9, v{VT+1}")
    k(f"v_bfe_u32 v{VT+2}, v{LANE}, 4, 1\nv_lshl_add_u32 v{VT+1}, v{VT+2}, 7, v{VT+1}")
    k(f"v_and_b32 v{VT+3}, 3, v{LANE}\nv_lshl_add_u32 v{V_RD}, v{VT+3}, 3, v{VT+1}")
    k(f"v_add_u32 v{V_RD+1}, {2*STAGE}, v{V_RD}")
    k(f"s_lshl_b32 s82, s{S_RB1}, 3\ns_lshl_b32 s83, s{S_WAVE}, 1\ns_add_u32 s82, s82, s83\ns_lshl_b32 s82, s82, 15")
    k(f"v_add_u32 v{V_TOK}, s82, v{L16}\nv_add_u32 v{V_TOK+1}, 0x8000, v{V_TOK}")
    k(f"s_mul_i32 s{S_WB}, s80, 4224\ns_mul_i32 s82, s81, 2112\ns_add_u32 s{S_WB}, s{S_WB}, s82")
    c.NB, c.TB, c.KS, c.SPK, c.KT, c.NS, c.R = 12, 2, 1, 2, 16, NS, R
    c.acc = lambda b, t: vr((b * 2 + t) * 4, 4)
    c.tf = lambda slot, ks, t: 96 + (slot * 2 + t) * 4
    c.rd = lambda sl, b, sub, r: (V_RD + sl // 2, (sl % 2) * STAGE + (b // 4) * 8448 + sub * 4224 + r * 256 + (b % 4) * 32)
    c.slot_addr = lambda sl: sl * STAGE
    c.dma = [(V_DMA, 0, 0), (V_DMA + 1, 1056, 0), (V_DMA, 8448, 2048), (V_DMA + 1, 8448 + 1056, 2048), (V_DMA + 2, 16896, 0), (V_DMA + 3, 16896 + 1056, 0)]
    c.v_tok = [V_TOK, V_TOK + 1]
    c.w_stride = 64 * 6144
    c.drop = opt.get("g1_drop", ())
    c.pro_units, c.ramp_rate, c.read_margin = opt.get("g1_pro", 6), opt.get("g1_ramp", 6), opt.get("g1_rm", 6)
    std_sched(c)
    return c

def setup_gemm1s(k, opt):
    c = Sched(); common_gemm(c)
    HS = 8448; STAGE = 2 * HS
    c.V_RD, c.V_DMA, c.V_TOK, c.LANE, c.L16, c.VT = 96, 98, 102, 104, 105, 106
    V_RD, V_DMA, V_TOK, LANE, L16, VT = c.V_RD, c.V_DMA, c.V_TOK, c.LANE, c.L16, 110
    k(f"v_lshlrev_b32 v{L16}, 4, v{LANE}")
    order(c, k, opt, "g1", ["phase", [8, 8], 0])
    k(f"s_lshr_b32 s80, s{S_WAVE}, 1\ns_and_b32 s81, s{S_WAVE}, 1")
    k(f"v_lshrrev_b32 v{VT+1}, 3, v{LANE}")
    k(f"v_and_b32 v{VT+2}, 4, v{VT+1}")
    k(f"v_bfe_u32 v{VT+3}, v{VT+1}, 1, 1\nv_or_b32 v{VT+2}, v{VT+2}, v{VT+3}")
    k(f"v_and_b32 v{VT+3}, 1, v{VT+1}\nv_lshl_or_b32 v{VT+2}, v{VT+3}, 1, v{VT+2}")
    k(f"v_mul_u32_u24 v{VT+2}, {4*6144}, v{VT+2}")
    k(f"v_and_b32 v{VT+3}, 7, v{LANE}\nv_lshl_add_u32 v{VT+2}, v{VT+3}, 4, v{VT+2}")
    k("s_lshl_b32 s82, s80, 5\ns_lshl_b32 s83, s81, 1\ns_add_u32 s82, s82, s83\ns_mul_i32 s82, s82, 6144")
    k(f"s_lshl_b32 s83, s{S_HP}, 7\ns_add_u32 s82, s82, s83")
    k(f"v_add_u32 v{V_DMA}, s82, v{VT+2}")
    k(f"v_add_u32 v{V_DMA+1}, {6144-1056}, v{V_DMA}\nv_add_u32 v{V_DMA+2}, 2048, v{V_DMA}\nv_add_u32 v{V_DMA+3}, {6144+2048-1056}, v{V_DMA}")
    k(f"v_bfe_u32 v{VT+1}, v{LANE}, 2, 2\nv_mul_u32_u24 v{VT+1}, 1056, v{VT+1}")
    k(f"v_lshrrev_b32 v{VT+2}, 5, v{LANE}\nv_lshl_add_u32 v{VT+1}, v{VT+2}, 9, v{VT+1}")
    k(f"v_bfe_u32 v{VT+2}, v{LANE}, 4, 1\nv_lshl_add_u32 v{VT+1}, v{VT+2}, 7, v{VT+1}")
    k(f"v_and_b32 v{VT+3}, 3, v{LANE}\nv_lshl_add_u32 v{V_RD}, v{VT+3}, 3, v{VT+1}")
    k(f"v_add_u32 v{V_RD+1}, {2*STAGE}, v{V_RD}")
    k(f"s_lshl_b32 s82, s{S_RB1}, 3\ns_lshl_b32 s83, s{S_WAVE}, 1\ns_add_u32 s82, s82, s83\ns_lshl_b32 s82, s82, 15")
    k(f"v_add_u32 v{V_TOK}, s82, v{L16}\nv_add_u32 v{V_TOK+1}, 0x8000, v{V_TOK}")
    k(f"s_mul_i32 s{S_WB}, s80, 4224\ns_mul_i32 s82, s81, 2112\ns_add_u32 s{S_WB}, s{S_WB}, s82")
    c.NB, c.TB, c.KS, c.SPK, c.KT, c.NS, c.R = 8, 2, 1, 2, 16, 4, 32
    c.acc = lambda b, t: vr(32 + (b * 2 + t) * 4, 4)
    c.tf = lambda slot, ks, t: (slot * 2 + t) * 4
    c.rd = lambda sl, b, sub, r: (V_RD + sl // 2, (sl % 2) * STAGE + (b // 4) * HS + sub * 4224 + r * 256 + (b % 4) * 32)
    c.slot_addr = lambda sl: sl * STAGE
    c.dma = [(V_DMA + 2, 0, 0), (V_DMA + 3, 1056, 1056), (V_DMA + 2, HS, 2048), (V_DMA + 3, HS + 1056, 3104)]
    c.v_tok = [V_TOK, V_TOK + 1]
    c.w_stride = 64 * 6144
    c.drop = opt.get("g1_drop", ())
    c.pro_units, c.ramp_rate, c.read_margin, c.lookahead = opt.get("g1_pro", 8), opt.get("g1_ramp", 5), 4, opt.get("g1_la", 4)
    c.wreg, c.wbase = vr, 128
    c.tabtxt = []
    if opt.get("g1_tab", 1) and "g1_ord" not in opt:
        c.tab = (28, 29)
        c.tabtxt = [f"v_add_u32 v28, s{S_RB3}, v{LANE}", f"v_add_u32 v29, s{S_IDX}, v28", "v_and_b32 v29, 3, v29", "v_and_b32 v28, 4, v28", "v_or_b32 v28, v28, v29",
                    f"v_and_b32 v29, 8, v{LANE}", "v_or_b32 v28, v28, v29", "v_lshlrev_b32 v29, 11, v28", f"v_mul_u32_u24 v28, {64*6144}, v28"]
    std_sched(c)
    q = Sched(); common_gemm(q)
    q.KT = 16; order(q, k, opt, "g1", ["phase", [8, 8], 0]); q.tag = "g1b"; q.stamp_every = opt.get("g1b_se", 0)
    q.s_kw = 70
    QS = [67584 + i * HS for i in range(5)] + [L_R2 + i * HS for i in range(4)] + [i * HS for i in range(7)]
    q.Q1, q.Q2 = V_RD + 1, V_TOK
    def base(kt): return (q.Q1, 67584) if kt < 5 else ((q.Q2, L_R2) if kt < 9 else (V_RD, 0))
    for kt in range(16):
        sw = q.s_kw + kt % 2
        q.stage_units[kt] = [q.pos_items(sw, kt, c.w_stride) + [T(f"s_add_u32 m0, s{S_WB}, {QS[kt]}"), VM(f"buffer_load_dwordx4 v{V_DMA}, {sr(SRD_W,4)}, s{sw} offen lds", ("dma", kt))],
                             [T(f"s_add_u32 m0, s{S_WB}, {QS[kt]}"), VM(f"buffer_load_dwordx4 v{V_DMA+1}, {sr(SRD_W,4)}, s{sw} offen offset:1056 lds", ("dma", kt))]]
        q.stage_slot[kt] = kt
        va, b0 = base(kt)
        frags = [(va, QS[kt] - b0 + sub * 4224 + b * 32, QS[kt] - b0 + sub * 4224 + 256 + b * 32, [(vr((b * 2 + t) * 4, 4), ((kt * 2 + sub) * 2 + t) * 4) for t in range(2)]) for sub in range(2) for b in range(4)]
        q.steps.append(dict(frags=frags, stages=[kt] if kt != 9 else list(range(9, 16)), toks=[]))
    q.wf = lambda buf, j: (buf * 8 + j) * 4
    q.wreg, q.wbase = vr, 128
    q.pub0 = set(range(9)); q.pro_units = opt.get('q_pro', 2); q.ramp_rate = opt.get('q_ramp', 3); q.read_margin = 4; q.drop = c.drop
    c.q = q
    return c

def merge(a, b, ratio):
    out, b = [], list(b)
    for i, x in enumerate(a):
        out.append(x)
        if b and i % ratio == ratio - 1: out.append(b.pop(0))
    return out + b

def phase_gemm1s(k, c, opt):
    LANE, L16, VT = c.LANE, c.L16, c.VT
    q = c.q
    PHK, VV, SH = 0, 34816, 114688
    p = Txt()
    srd(p, SRD_A, P_WPHI, H * 2048)
    srd(p, SRD_B, P_WS, 2 << 20, WS_KVP)
    srd(p, SRD_C, P_WS, 128 << 10, WS_ZP)
    A_PW, A_VW, A_PR, A_VR, A_WR = 110, 111, 112, 113, 114
    p(f"s_lshr_b32 s80, s{S_WAVE}, 1\ns_and_b32 s81, s{S_WAVE}, 1")
    p(f"v_and_b32 v{VT}, 15, v{LANE}\ns_lshl_b32 s82, s{S_WAVE}, 5\nv_add_u32 v{VT}, s82, v{VT}")
    p(f"v_lshrrev_b32 v{VT+1}, 4, v{LANE}\nv_lshlrev_b32 v{VT+1}, 3, v{VT+1}")
    p(f"v_mul_u32_u24 v{A_PW}, 136, v{VT}\nv_add_u32 v{A_PW}, v{A_PW}, v{VT+1}")
    p(f"v_mul_u32_u24 v{A_VW}, 72, v{VT}\nv_add_u32 v{A_VW}, v{A_VW}, v{VT+1}")
    p(f"v_lshrrev_b32 v{VT}, 2, v{LANE}\nv_and_b32 v{VT+1}, 3, v{LANE}\nv_lshlrev_b32 v{VT+1}, 3, v{VT+1}")
    p(f"s_mul_i32 s82, s80, 17408\ns_lshl_b32 s83, s81, 6\ns_add_u32 s82, s82, s83")
    p(f"v_mul_u32_u24 v{A_PR}, 136, v{VT}\nv_add_u32 v{A_PR}, v{A_PR}, v{VT+1}\nv_add_u32 v{A_PR}, s82, v{A_PR}")
    p(f"s_mul_i32 s82, s80, 9216")
    p(f"v_mul_u32_u24 v{A_VR}, 72, v{VT}\nv_add_u32 v{A_VR}, v{A_VR}, v{VT+1}\nv_add_u32 v{A_VR}, s82, v{A_VR}")
    p(f"v_lshl_add_u32 v{A_WR}, v{VT}, 6, v{VT+1}\nv_add_u32 v{A_WR}, {L_WPH}, v{A_WR}")
    ONES, SEL = 116, 120
    for j in range(4): p(f"v_mov_b32 v{ONES+j}, 0x3f803f80")
    p(f"v_bfe_u32 v{VT}, v{LANE}, 2, 2\nv_lshrrev_b32 v{VT+1}, 4, v{LANE}")
    p(f"v_cmp_eq_u32 vcc, v{VT}, v{VT+1}")
    p(f"v_and_b32 v{VT}, 1, v{LANE}\nv_lshlrev_b32 v{VT}, 4, v{VT}\nv_mov_b32 v{VT+1}, 0x3f80\nv_lshlrev_b32 v{VT+1}, v{VT}, v{VT+1}")
    p(f"v_cndmask_b32 v{VT+1}, 0, v{VT+1}, vcc")
    p(f"v_and_b32 v{VT}, 2, v{LANE}\nv_cmp_eq_u32 vcc, 0, v{VT}")
    for j in (0, 1, 4, 5): p(f"v_mov_b32 v{SEL+j}, 0")
    p(f"v_cndmask_b32 v{SEL+2}, 0, v{VT+1}, vcc\nv_cndmask_b32 v{SEL+3}, v{VT+1}, 0, vcc")
    p(f"s_mov_b32 s94, {LOG2E!r}\ns_mov_b32 s95, {LOG2E!r}")
    p(f"s_lshl_b32 s84, s{S_HP}, 12\ns_lshl_b32 s85, s{S_WAVE}, 10\ns_add_u32 s84, s84, s85\ns_add_u32 s85, s85, {L_WPH}")
    c.pre_loop_txt = c.tabtxt + p.L
    c.late[4] = ["s_mov_b32 m0, s85", f"buffer_load_dwordx4 v{L16}, {sr(SRD_A,4)}, s84 offen lds"]
    for st_ in opt.get("cp1", [20]): c.late.setdefault(st_, []).extend(code_prefetch_txt(k.name, L16, 254, 80, junk="v31"))
    for st_ in opt.get("cp1b", []): q.late.setdefault(st_, []).extend(code_prefetch_txt(k.name, L16, 254, 80, junk="v252"))
    ts = opt.get("mt_step", None)
    if ts is not None:
        c.late.setdefault(ts, []).extend([f"v_mul_u32_u24 v254, 12288, v{LANE}", f"buffer_load_dword v31, v254, {sr(SRD_D,4)}, s{S_MB} offen"])
        if opt.get("wo_touch", 1):
            c.late[ts].extend([f"s_lshl_b32 s80, s2, 2", f"s_add_u32 s80, s80, s{S_WAVE}", "s_lshl_b32 s80, s80, 11",
                               f"v_and_b32 v254, 15, v{LANE}", "v_lshlrev_b32 v254, 7, v254", "v_add_u32 v254, s80, v254", f"global_load_dword v31, v254, s[{P_WO}:{P_WO+1}]"])
    nq = opt.get("q_in", 10)
    for j in range(nq // 2): c.late.setdefault(32 - nq // 2 + j, []).extend(q.prefetch_txt(2))
    wph_reads = lambda reg, b0: [f"ds_read_b64_tr_b16 {reg(b0+(hh*2+fb)*4+2*r,2)}, v{A_WR} offset:{hh*2048+r*1024+fb*32}" for hh in range(2) for fb in range(2) for r in range(2)]
    c.last_reads = wph_reads(vr, 0)
    c.run(k)
    k.stamp("g1 loop done")
    A = lambda b, t: (b * 2 + t) * 4
    BF, P1, P2, MX, MN, EK = 126, 142, 174, 206, 214, 222
    groups = [(hh, t) for hh in range(2) for t in range(2)]
    def fm_part1(k, seg, ph):
        for g, (hh, t) in enumerate(groups):
            for db in range(2):
                a = A(seg * 4 + hh * 2 + db, t)
                k(f"v_cvt_pk_bf16_f32 v{BF+g*4+db*2}, v{a}, v{a+1}\nv_cvt_pk_bf16_f32 v{BF+g*4+db*2+1}, v{a+2}, v{a+3}")
        k("s_nop 1")
        for g, (hh, t) in enumerate(groups):
            for fb in range(2):
                k(f"{MF} {vr(P1+g*8+fb*4,4)}, {ph(hh*2+fb)}, {vr(BF+g*4,4)}, 0")
    def fm_part2(k):
        for op3, op2, M in (("v_max3_f32", "v_max_f32", MX), ("v_min3_f32", "v_min_f32", MN)):
            for g in range(4):
                b = P1 + g * 8
                k(f"{op3} v{M+2*g}, v{b}, v{b+1}, v{b+2}\n{op3} v{M+2*g}, v{M+2*g}, v{b+3}, v{b+4}\n{op3} v{M+2*g}, v{M+2*g}, v{b+5}, v{b+6}\n{op2} v{M+2*g}, v{M+2*g}, v{b+7}")
        treduce4x2(k, ("v_max_f32", "v_min_f32"), ([MX + 2 * g for g in range(4)], [MN + 2 * g for g in range(4)]))
        for g in range(4):
            k(f"v_mul_f32 v{MX+2*g}, {-LOG2E!r}, v{MX+2*g}\nv_mul_f32 v{MN+2*g}, {LOG2E!r}, v{MN+2*g}")
    def fm_part3(k, E, gs_=range(4)):
        for g in gs_:
            for j in range(4):
                b = g * 8 + 2 * j
                k(f"v_pk_fma_f32 {vr(P2+b,2)}, {vr(P1+b,2)}, s[94:95], {vr(MN+2*g,2)} op_sel_hi:[1,1,0] neg_lo:[1,0,0] neg_hi:[1,0,0]")
                k(f"v_pk_fma_f32 {vr(P1+b,2)}, {vr(P1+b,2)}, s[94:95], {vr(MX+2*g,2)} op_sel_hi:[1,1,0]")
            for j in range(8): k(f"v_exp_f32 v{P1+g*8+j}, v{P1+g*8+j}")
            for j in range(8): k(f"v_exp_f32 v{P2+g*8+j}, v{P2+g*8+j}")
            k("s_nop 0")
            for sg, PP in enumerate((P1, P2)):
                for j in range(4): k(f"v_cvt_pk_bf16_f32 v{E+(g*2+sg)*4+j}, v{PP+g*8+2*j}, v{PP+g*8+2*j+1}")
    mark0 = len(k.L)
    k("s_waitcnt lgkmcnt(0)\ns_nop 7")
    fm_part1(k, 1, lambda i: vr(i * 4, 4))
    k("s_barrier")
    for g, (hh, t) in enumerate(groups):
        for db in range(2):
            a = A(8 + hh * 2 + db, t)
            k(f"v_cvt_pk_bf16_f32 v{a}, v{a}, v{a+1}\nv_cvt_pk_bf16_f32 v{a+1}, v{a+2}, v{a+3}")
            k(f"ds_write_b64 v{A_VW}, {vr(a,2)} offset:{VV + hh*9216 + t*16*72 + db*32}")
    fm_part2(k)
    grp = []
    for j in range(18 - q.pre_dma):
        t_ = q.prefetch_txt(1); grp.append(t_[:-1] + ["s_nop 0", t_[-1]])
    sprinkle(k, mark0, grp, skip=12)
    k.stamp("kp part2")
    fm_part3(k, EK)
    k.stamp("kp part3")
    SM = 32
    k("s_nop 1")
    for i in range(8): k(f"{MF} {vr(SM+4*i,4)}, {vr(ONES,4)}, {vr(EK+4*i,4)}, 0")
    k(f"v_add_u32 v{q.Q1}, 67584, v{c.V_RD}\nv_add_u32 v{q.Q2}, {L_R2}, v{c.V_RD}")
    k("s_nop 5")
    for i in range(8): k(f"v_rcp_f32 v{SM+4*i}, v{SM+4*i}")
    for g, (hh, t) in enumerate(groups):
        for sg, PP in enumerate((P1, P2)):
            for j in range(4):
                k(f"v_pk_mul_f32 {vr(PP+g*8+2*j,2)}, {vr(PP+g*8+2*j,2)}, {vr(SM+(g*2+sg)*4,2)} op_sel_hi:[1,0]")
            for fb in range(2):
                b = PP + g * 8 + fb * 4
                k(f"v_cvt_pk_bf16_f32 v{b}, v{b}, v{b+1}\nv_cvt_pk_bf16_f32 v{b+1}, v{b+2}, v{b+3}")
                k(f"ds_write_b64 v{A_PW}, {vr(b,2)} offset:{PHK + hh*17408 + t*16*136 + sg*64 + fb*32}")
    k.stamp("kp norm")
    k("s_waitcnt lgkmcnt(0)\ns_barrier")
    k.stamp("kp bar")
    FR = 190
    for s_ in range(4):
        for r in range(2):
            for fb in range(2): k(f"ds_read_b64_tr_b16 {vr(FR+s_*16+fb*4+2*r,2)}, v{A_PR} offset:{PHK + (32*s_+16*r)*136 + fb*32}")
            for db in range(2): k(f"ds_read_b64_tr_b16 {vr(FR+s_*16+8+db*4+2*r,2)}, v{A_VR} offset:{VV + (32*s_+16*r)*72 + db*32}")
    k(f"s_lshl_b32 s82, s{S_HP}, 2\ns_add_u32 s82, s82, s{S_WAVE}")
    k("s_lshl_b32 s86, s82, 15")
    k(f"s_lshl_b32 s84, s{S_RB1}, 10\ns_add_u32 s84, s84, s86\ns_add_u32 s85, s84, 16384")
    k("s_lshl_b32 s90, s82, 11")
    k(f"s_lshl_b32 s91, s82, {FS+4}\ns_add_u32 s91, s91, {F_KV}\ns_lshl_b32 s92, s{S_RB1}, {FS}\ns_add_u32 s92, s92, s91")
    k(f"v_and_b32 v{VT}, 15, v{LANE}\nv_cmp_eq_u32 vcc, s{S_RB1}, v{VT}")
    KV, ZZ = 64, 80
    for s_ in range(4):
        k(f"s_waitcnt lgkmcnt({min(15, 24 - 8*s_)})" if s_ < 3 else "s_waitcnt vmcnt(0) lgkmcnt(0)\ns_barrier")
        for fb in range(2):
            for db in range(2):
                d = vr(KV + (db * 2 + fb) * 4, 4)
                k(f"{MF} {d}, {vr(FR+s_*16+fb*4,4)}, {vr(FR+s_*16+8+db*4,4)}, {'0' if s_ == 0 else d}")
            d = vr(ZZ + fb * 4, 4)
            k(f"{MF} {d}, {vr(FR+s_*16+fb*4,4)}, {vr(ONES,4)}, {'0' if s_ == 0 else d}")
    k(f"v_lshlrev_b32 v{VT}, {FS}, v{VT}\nv_mov_b32 v{VT+1}, 1\nv_mov_b32 v{VT+2}, 0")
    k("s_nop 5")
    for db in range(2):
        for j in range(4): k(f"v_cvt_pk_bf16_f32 v{88+db*4+j}, v{KV+db*8+2*j}, v{KV+db*8+2*j+1}")
    k(f"buffer_store_dwordx4 {vr(88,4)}, v{L16}, {sr(SRD_B,4)}, s84 offen sc1")
    k(f"buffer_store_dwordx4 {vr(92,4)}, v{L16}, {sr(SRD_B,4)}, s85 offen sc1")
    k("s_and_saveexec_b64 s[96:97], vcc")
    k(f"buffer_store_dwordx4 {vr(ZZ,4)}, v{L16}, {sr(SRD_C,4)}, s90 offen sc1")
    k(f"buffer_store_dwordx4 {vr(ZZ+4,4)}, v{L16}, {sr(SRD_C,4)}, s90 offen offset:1024 sc1")
    k("s_mov_b64 exec, s[96:97]")
    k.stamp("kv stored")
    KV, ZZ, MW, MC = 72, 88, 32, 64
    q.late[opt.get("kv_ps", 1)] = [WVM([("pre", 0)]), f"buffer_store_dword v{VT+1}, v{VT+2}, {sr(SRD_F,4)}, s92 offen sc1"]
    gs = opt.get("kv_gs", 9)
    ld = f"buffer_load_dword v253, v{VT}, {sr(SRD_F,4)}, s91 offen sc1"
    m = Txt(); m.label = k.label
    okl = k.label("gok")
    m(f"v_cmp_eq_u32 vcc, 0, v253\ns_cmp_eq_u64 vcc, 0\ns_cbranch_scc1 {okl}")
    spin(m, [ld], [253], 0)
    m(f"{okl}:")
    q.late[gs - 2] = [VM(ld, ("kvf", 0))]
    gl = [f"buffer_load_dwordx4 {vr(ZZ,4)}, v{L16}, {sr(SRD_C,4)}, s90 offen sc1", f"buffer_load_dwordx4 {vr(ZZ+4,4)}, v{L16}, {sr(SRD_C,4)}, s90 offen offset:1024 sc1"]
    for i in range(32):
        if i % 4 == 0 and i: gl.append("s_add_u32 s86, s86, 4096")
        gl.append(f"buffer_load_dwordx4 {ar(4*i,4)}, v{L16}, {sr(SRD_B,4)}, s86 offen offset:{(i%4)*1024} sc1")
    n3 = -(-len(gl) // 3)
    q.late[gs] = [WVM([("kvf", 0)]), T("\n".join(m.L))] + gl[:n3]
    q.late[gs + 1] = gl[n3:2*n3]; q.late[gs + 2] = gl[2*n3:]
    t2 = Txt()
    g2 = setup_gemm24(t2, 2, opt, (110, 111, 112, LANE, L16, 98))
    q.late[5] = t2.L[:len(t2.L)//2]; q.late[6] = t2.L[len(t2.L)//2:] + [f"global_load_ushort v{MC+i}, v109, s[{P_C}:{P_C+1}] offset:{i*16}" for i in range(8)]
    assert gs - 2 > 6
    younger = []
    younger += g2.prefetch_txt(opt.get('g2_p1', 8))
    mbl = []
    for i in range(8): mbl += [f"buffer_load_dwordx4 {vr(MW+4*i,4)}, v115, {sr(SRD_D,4)}, s{S_MB} offen", f"s_add_u32 s{S_MB}, s{S_MB}, {8*12288}"]
    mpos = opt.get("mpos", "tail")
    if mpos == "tail": younger += mbl
    ny = sum(1 for x in younger if is_vm(x))
    rest = list(range(gs + 3, 16)); per = -(-len(younger) // len(rest))
    for j, st_ in enumerate(rest): q.late[st_] = younger[j*per:(j+1)*per]
    A_PH = 128
    q.last_reads = wph_reads(ar, A_PH)
    q.run(k)
    k.stamp("g1b done")
    srd(k, SRD_T, P_WS, S * D * 2, WS_O)
    k("s_waitcnt lgkmcnt(0)\ns_nop 3")
    qa = Txt(); fm_part1(qa, 0, lambda i: ar(A_PH + i * 4, 4))
    qa(f"s_waitcnt vmcnt({min(63, ny + 32)})")
    for sh in (8, 4, 2, 1):
        for j in range(8): qa(f"v_add_f32_dpp v{ZZ+j}, v{ZZ+j}, v{ZZ+j} row_ror:{sh} row_mask:0xf bank_mask:0xf")
    for x in qa.L: k(x)
    k.stamp("qp a")
    hs = g2.hs
    qb = Txt(); fm_part2(qb); fm_part3(qb, EK, range(2) if hs else range(4))
    red = []
    for i in range(32):
        db, pp = divmod(i, 16)
        for fb in range(2):
            d = vr(KV + (db * 2 + fb) * 4, 4)
            red.append((f"s_waitcnt vmcnt({ny + 28 - i})\n" if (i % 4 == 0 and fb == 0) else "") + f"{MF} {d}, {vr(SEL + (2 if fb == 0 else 0), 4)}, {ar(4*i,4)}, {'0' if pp == 0 else d}")
    cut = opt.get("q_cut", 150) if not hs else len(qb.L)
    for x in merge(qb.L[:cut], red, 2): k(x)
    if hs:
        k("s_nop 3")
        qb = Txt(); fm_part3(qb, EK, [2]); cut = 0
    k.stamp("qp merged")
    k(f"s_mul_i32 s82, s{S_WAVE}, 3072\ns_add_u32 s82, s82, {SH}")
    k(f"v_add_u32 v{VT+1}, s82, v{L16}\nv_add_u32 v{VT+2}, {SH}, v{L16}")
    k(f"v_and_b32 v{VT}, 1, v{LANE}\nv_cmp_eq_u32 vcc, 0, v{VT}")
    k("s_nop 4")
    for j in range(12): k(f"v_cvt_pk_bf16_f32 v{KV+j}, v{KV+2*j}, v{KV+2*j+1}")
    for j in range(4): k(f"v_cndmask_b32 v{KV+8+j}, v{ONES}, v{KV+8+j}, vcc")
    for j in range(3): k(f"ds_write_b128 v{VT+1}, {vr(KV+4*j,4)} offset:{j*1024}")
    for x in (merge(qb.L[cut:], mbl, 2) if mpos == "q" else qb.L[cut:]): k(x)
    k.stamp("qp rest")
    k("s_waitcnt lgkmcnt(0)\ns_barrier")
    k.stamp("qp bar")
    for i in range(12): k(f"ds_read_b128 {ar(4*i,4)}, v{VT+2} offset:{i*1024}")
    k(f"s_lshl_b32 s82, s{S_RB1}, 3\ns_lshl_b32 s83, s{S_WAVE}, 1\ns_add_u32 s82, s82, s83\ns_lshl_b32 s82, s82, 15")
    k(f"s_lshl_b32 s83, s{S_HP}, 11\ns_add_u32 s82, s82, s83\ns_add_u32 s83, s82, 0x8000")
    k(f"s_lshl_b32 s84, s{S_RB1}, 2\ns_add_u32 s84, s84, s{S_WAVE}\ns_lshl_b32 s84, s84, {FS+4}\ns_lshl_b32 s85, s{S_HP}, {FS}\ns_add_u32 s84, s84, s85\ns_add_u32 s84, s84, {F_O}")
    k("s_waitcnt lgkmcnt(0)")
    NB_ = 126
    def nbase(g): return NB_ + g * 24 if (not hs or g >= 2) else None
    def oregs(g):
        if hs and g < 2: return (0, 12) if g == 0 else (72, 84)
        return (NB_ + g * 24, NB_ + g * 24 + 12)
    def o_mfma(gl):
        for g in gl:
            hh, t = groups[g]
            for sg in range(2):
                for j in range(3):
                    k(f"{MF} {vr(oregs(g)[sg]+4*j,4)}, {ar(((hh*2+sg)*3+j)*4,4)}, {vr(EK+(g*2+sg)*4,4)}, 0")
    def o_fin(gl):
        for g in gl:
            hh, t = groups[g]
            n1, n2 = oregs(g)
            D1, S1, D2, S2 = n1 + 8, n1 + 9, n2 + 8, n2 + 9
            k(f"v_mul_f32 v{n1+10}, v{S1}, v{S2}")
            k(f"v_mul_f32 v{n1+10}, 0x358637bd, v{n1+10}")
            k(f"v_fmac_f32 v{n1+10}, v{D1}, v{S2}\nv_fmac_f32 v{n1+10}, v{D2}, v{S1}")
            k(f"v_rcp_f32 v{n1+10}, v{n1+10}")
            k("s_nop 0")
            k(f"v_mul_f32 v{D1}, v{S2}, v{n1+10}\nv_mul_f32 v{D2}, v{S1}, v{n1+10}")
            for j in range(4): k(f"v_pk_mul_f32 {vr(n1+2*j,2)}, {vr(n1+2*j,2)}, {vr(D1,2)} op_sel_hi:[1,0]")
            for j in range(4): k(f"v_pk_fma_f32 {vr(n1+2*j,2)}, {vr(n2+2*j,2)}, {vr(D2,2)}, {vr(n1+2*j,2)} op_sel_hi:[1,0,1]")
            for j in range(4): k(f"v_cvt_pk_bf16_f32 v{n2+j}, v{n1+2*j}, v{n1+2*j+1}")
            k(f"buffer_store_dwordx4 {vr(n2,4)}, v{L16}, {sr(SRD_T,4)}, s{82+t} offen offset:{hh*1024} sc1")
    if hs:
        o_mfma([0, 1]); k("s_nop 7"); o_fin([0, 1])
        mk0 = len(k.L)
        fm_part3(k, EK, [3])
        k("s_nop 1")
        o_mfma([2, 3]); k("s_nop 7")
        publish(k, 84, VT + 1, mk0)
        k(f"s_add_u32 s95, s84, {F_O2 - F_O}")
        o_fin([2, 3])
    else:
        o_mfma(range(4)); k("s_nop 7"); o_fin(range(4))
    k.stamp("o stored")
    mko = len(k.L)
    g2.V_X = 178
    srd(k, SRD_A, P_X, S * D * 2)
    V_XA = 100
    k(f"v_lshrrev_b32 v{VT+1}, 4, v{LANE}")
    k(f"v_and_b32 v{VT+2}, 15, v{LANE}\nv_lshlrev_b32 v{VT+2}, 11, v{VT+2}\nv_lshl_add_u32 v{V_XA}, v{VT+1}, 3, v{VT+2}")
    k(f"s_lshl_b32 s82, s{S_RB2}, 3\ns_lshl_b32 s83, s{S_WAVE}, 1\ns_add_u32 s82, s82, s83\ns_lshl_b32 s82, s82, 15\ns_lshl_b32 s83, s{S_NT}, 7\ns_add_u32 s82, s82, s83\ns_add_u32 s83, s82, 32768")
    for t in range(2):
        for b in range(4):
            k(f"buffer_load_dwordx2 {vr(g2.V_X+(t*4+b)*2,2)}, v{V_XA}, {sr(SRD_A,4)}, s{82+t} offen offset:{b*32}")
    k.g3 = setup_gemm3_early(k, opt, LANE, 20)
    if not hs: publish(k, 84, VT + 1, mko)
    k.stamp("o published")
    mark1 = len(k.L)
    CU, AU, TT = 0, 16, 24
    for i in range(8): k(f"v_mov_b32 v{CU+2*i}, v{MC+i}")
    silu_block(k, [CU + 2 * i for i in range(8)])
    for i in range(8):
        for d in range(4):
            k(f"v_lshlrev_b32 v{TT}, 16, v{MW+4*i+d}\nv_and_b32 v{TT+1}, 0xffff0000, v{MW+4*i+d}")
            if i == 0: k(f"v_pk_mul_f32 {vr(AU+2*d,2)}, {vr(TT,2)}, {vr(CU,2)} op_sel_hi:[1,0]")
            else: k(f"v_pk_fma_f32 {vr(AU+2*d,2)}, {vr(TT,2)}, {vr(CU+2*i,2)}, {vr(AU+2*d,2)} op_sel_hi:[1,0,1]")
    k("s_nop 1")
    for j in range(4): k(f"v_permlane32_swap_b32 v{AU+j}, v{AU+j+4}")
    k("s_nop 1")
    for j in range(4): k(f"v_add_f32 v{AU+j}, v{AU+j}, v{AU+j+4}")
    k("s_nop 1")
    for j in range(2): k(f"v_permlane16_swap_b32 v{AU+j}, v{AU+j+2}")
    k("s_nop 1")
    for j in range(2): k(f"v_add_f32 v{AU+j}, v{AU+j}, v{AU+j+2}")
    k("s_nop 1")
    for j in range(2): k(f"v_add_f32_dpp v{AU+j}, v{AU+j}, v{AU+j} row_ror:8 row_mask:0xf bank_mask:0xf")
    grp = g3_early_units(k.g3, opt.get("g3_e2", 0), 254)
    for j in range(opt.get("g2_p2", 0)):
        t_ = g2.prefetch_txt(1); grp.append(t_[:-1] + ["s_nop 0", t_[-1]])
    sprinkle(k, mark1, grp, skip=0)
    k(f"v_and_b32 v{TT}, 7, v{LANE}\nv_lshlrev_b32 v{TT}, 5, v{TT}\nv_lshrrev_b32 v{TT+1}, 5, v{LANE}\nv_lshl_add_u32 v{TT}, v{TT+1}, 4, v{TT}")
    k(f"v_bfe_u32 v{TT+1}, v{LANE}, 4, 1\nv_lshl_add_u32 v{TT}, v{TT+1}, 3, v{TT}")
    srd(k, SRD_D, P_WS, MP_BYTES, WS_MODP)
    k(f"v_or_b32 v{AU}, 1, v{AU}\nv_or_b32 v{AU+1}, 1, v{AU+1}")
    k(f"buffer_store_dwordx2 {vr(AU,2)}, v{TT}, {sr(SRD_D,4)}, s{S_MO} offen sc1")
    return g2

A_UT = 176
def silu_block(k, regs):
    for v in regs: k(f"v_lshlrev_b32 v{v}, 16, v{v}\nv_mul_f32 v{v+1}, {-LOG2E!r}, v{v}")
    for v in regs: k(f"v_exp_f32 v{v+1}, v{v+1}")
    k("s_nop 0")
    for v in regs: k(f"v_add_f32 v{v+1}, 1.0, v{v+1}")
    for v in regs: k(f"v_rcp_f32 v{v+1}, v{v+1}")
    k("s_nop 0")
    for v in regs:
        k(f"v_mul_f32 v{v}, v{v}, v{v+1}"); round_bf16(k, v)

def modb_loads(s_off, v_w, v_c):
    out = []
    for i in range(8):
        out.append([f"buffer_load_dwordx4 {ar(A_UT+4*i,4)}, v{v_w}, {sr(SRD_D,4)}, s{s_off} offen", f"s_add_u32 s{s_off}, s{s_off}, {8*12288}"])
    return out

def red32(k, x, t):
    red8(k, x)
    k(f"s_nop 1\nv_add_f32_dpp v{x}, v{x}, v{x} row_mirror row_mask:0xf bank_mask:0xf")
    k(f"v_mov_b32 v{t}, v{x}\ns_nop 1\nv_permlane16_swap_b32 v{x}, v{t}\ns_nop 1\nv_add_f32 v{x}, v{x}, v{t}")

def ids(k):
    k("v_lshrrev_b32 v1, 6, v0")
    k(f"s_and_b32 s{S_XCD}, s2, 7\ns_lshr_b32 s{S_IDX}, s2, 3")
    k(f"v_readfirstlane_b32 s{S_WAVE}, v1")
    k(f"s_bfe_u32 s{S_RB1}, s{S_XCD}, 0x10001\ns_lshl_b32 s{S_RB1}, s{S_RB1}, 3\ns_lshr_b32 s80, s{S_IDX}, 2\ns_add_u32 s{S_RB1}, s{S_RB1}, s80")
    k(f"s_lshr_b32 s{S_HP}, s{S_XCD}, 2\ns_lshl_b32 s{S_HP}, s{S_HP}, 2\ns_and_b32 s80, s{S_IDX}, 3\ns_add_u32 s{S_HP}, s{S_HP}, s80\ns_lshl_b32 s{S_HP}, s{S_HP}, 1\ns_and_b32 s80, s{S_XCD}, 1\ns_add_u32 s{S_HP}, s{S_HP}, s80")

def build_k0(instr=False, opt=None, name="mod_kernel", mega="mega_kernel"):
    opt = opt or {}
    k = Kernel(name, 256, 256, 4096, vgpr=128, sgpr=102)
    k.instr = instr; k.s_wave = S_WAVE
    stamp(k, 0)
    end = k.label("end")
    k(f"s_cmp_ge_u32 s2, 256\ns_cbranch_scc1 {end}")
    k("s_load_dwordx4 s[12:15], s[0:1], 64")
    k("s_load_dwordx8 s[4:11], s[0:1], 0")
    k("s_load_dwordx2 s[28:29], s[0:1], 96")
    ids(k)
    LANE, T, V_W = 104, 48, 105
    WA, CA, XR, XF, A0, SU = 64, 80, 84, 0, 32, 100
    k(f"v_and_b32 v{LANE}, 63, v0")
    k(f"v_lshrrev_b32 v{T+1}, 3, v{LANE}\nv_and_b32 v{T+2}, 7, v{LANE}")
    k(f"v_mul_u32_u24 v{V_W}, 12288, v{T+1}\nv_lshl_add_u32 v{V_W}, v{T+2}, 4, v{V_W}")
    k(f"s_lshl_b32 s64, s{S_RB1}, 6\ns_lshl_b32 s65, s{S_WAVE}, 4\ns_add_u32 s64, s64, s65")
    k(f"v_add_u32 v{T+3}, s64, v{T+1}\nv_lshlrev_b32 v{T+3}, 1, v{T+3}")
    k(f"s_mul_i32 s67, s64, 12288\ns_lshl_b32 s66, s{S_HP}, 7\ns_add_u32 s67, s67, s66\ns_add_u32 s68, s67, {8*12288}")
    k(f"v_lshrrev_b32 v{T+4}, 5, v{LANE}\nv_lshlrev_b32 v{T+4}, 11, v{T+4}\nv_and_b32 v{T+5}, 31, v{LANE}\nv_lshl_add_u32 v{T+4}, v{T+5}, 4, v{T+4}")
    k(f"s_lshl_b32 s69, s{S_RB1}, 4\ns_add_u32 s69, s69, s{S_HP}")
    k(f"s_lshl_b32 s70, s69, 14\ns_lshl_b32 s71, s{S_WAVE}, 12\ns_add_u32 s70, s70, s71")
    k("s_waitcnt lgkmcnt(0)")
    srd(k, SRD_D, 14, D * 6 * D * 2)
    srd(k, SRD_A, P_X, S * D * 2)
    for i in range(2): k(f"global_load_ushort v{CA+2*i}, v{T+3}, s[12:13] offset:{i*16}")
    for i in range(2):
        for v in range(2): k(f"buffer_load_dwordx4 {vr(WA+(i*2+v)*4,4)}, v{V_W}, {sr(SRD_D,4)}, s{67+i} offen offset:{v*2048}")
    for i in range(4): k(f"buffer_load_dwordx4 {vr(XR+4*i,4)}, v{T+4}, {sr(SRD_A,4)}, s70 offen offset:{i*512}")
    stamp(k, 1)
    lab = k.label("pc")
    k(f"s_getpc_b64 s[60:61]\n{lab}:")
    k(f"s_add_u32 s60, s60, {mega}-{lab}\ns_addc_u32 s61, s61, 0")
    k(f"v_lshlrev_b32 v{T+6}, 4, v{LANE}")
    for x in code_prefetch_txt(mega, T + 6, T + 7, 62, s_pc=60, junk="v110"): k(x)
    srd(k, SRD_B, P_WS, MP_BYTES, WS_MODP)
    srd(k, SRD_F, P_WS, FLAG_BYTES, WS_FLAG)
    srd(k, SRD_C, P_WS, S * 128, WS_STAT)
    k(f"v_mov_b32 v{T+8}, 0\nv_lshlrev_b32 v{T+9}, 2, v0\ns_lshl_b32 s62, s2, 10\ns_add_u32 s63, s62, {MP_B}")
    k(f"v_lshlrev_b32 v{T+10}, {FS}, v0\ns_lshl_b32 s66, s2, {FS+8}")
    k(f"buffer_store_dword v{T+8}, v{T+10}, {sr(SRD_F,4)}, s66 offen")
    k(f"buffer_store_dword v{T+8}, v{T+9}, {sr(SRD_C,4)}, s62 offen")
    k(f"buffer_store_dword v{T+8}, v{T+9}, {sr(SRD_B,4)}, s63 offen")
    young = 4
    k(f"s_lshl_b32 s62, s2, 2\ns_add_u32 s62, s62, s{S_WAVE}")
    for ptr, per, tag in ((P_WQKV, 6, "t_wq"), (P_WO, 2, "t_wo"), (14, 12, "t_wm")):
        if not opt.get(tag, 1): continue
        k(f"s_mul_i32 s63, s62, {per*1024}\ns_add_u32 s63, s63, 384")
        k(f"v_min_u32 v{T+14}, {per-1}, v{LANE}\nv_lshlrev_b32 v{T+14}, 10, v{T+14}\nv_add_u32 v{T+14}, s63, v{T+14}")
        k(f"global_load_dword v110, v{T+14}, s[{ptr}:{ptr+1}]")
        young += 1
    k(f"s_waitcnt vmcnt({young + 8})")
    silu_block(k, [CA, CA + 2])
    k(f"s_waitcnt vmcnt({young + 4})")
    for i in range(2):
        for v in range(2):
            for d in range(4):
                w_ = WA + (i * 2 + v) * 4 + d
                k(f"v_lshlrev_b32 v{T+10}, 16, v{w_}\nv_and_b32 v{T+11}, 0xffff0000, v{w_}")
                if i == 0: k(f"v_pk_mul_f32 {vr(A0+v*8+2*d,2)}, {vr(T+10,2)}, {vr(CA,2)} op_sel_hi:[1,0]")
                else: k(f"v_pk_fma_f32 {vr(A0+v*8+2*d,2)}, {vr(T+10,2)}, {vr(CA+2,2)}, {vr(A0+v*8+2*d,2)} op_sel_hi:[1,0,1]")
    k("s_nop 1")
    for j in range(8): k(f"v_permlane32_swap_b32 v{A0+j}, v{A0+8+j}")
    k("s_nop 1")
    for j in range(8): k(f"v_add_f32 v{A0+j}, v{A0+j}, v{A0+8+j}")
    k("s_nop 1")
    for j in range(4): k(f"v_permlane16_swap_b32 v{A0+j}, v{A0+4+j}")
    k("s_nop 1")
    for j in range(4): k(f"v_add_f32 v{A0+j}, v{A0+j}, v{A0+4+j}")
    k("s_nop 1")
    for j in range(4): k(f"v_add_f32_dpp v{A0+j}, v{A0+j}, v{A0+j} row_ror:8 row_mask:0xf bank_mask:0xf")
    k(f"v_lshrrev_b32 v{T+12}, 5, v{LANE}\nv_lshlrev_b32 v{T+13}, 8, v{T+12}\nv_lshl_add_u32 v{T+13}, v{T+2}, 5, v{T+13}")
    k(f"v_bfe_u32 v{T+10}, v{LANE}, 4, 1\nv_lshl_add_u32 v{T+13}, v{T+10}, 4, v{T+13}\ns_lshl_b32 s62, s{S_WAVE}, 9\nv_add_u32 v{T+13}, s62, v{T+13}")
    k(f"ds_write_b128 v{T+13}, {vr(A0,4)}")
    k("s_waitcnt lgkmcnt(0)\ns_barrier")
    nw0 = k.label("notw0")
    k(f"s_cmp_lg_u32 s{S_WAVE}, 0\ns_cbranch_scc1 {nw0}")
    k(f"v_lshlrev_b32 v{T+13}, 3, v{LANE}")
    for w in range(4): k(f"ds_read_b64 {vr(A0+2*w,2)}, v{T+13} offset:{w*512}")
    k(f"s_lshl_b32 s62, s{S_HP}, 13\ns_lshl_b32 s63, s{S_RB1}, 9\ns_add_u32 s63, s63, s62")
    k("s_waitcnt lgkmcnt(0)")
    k(f"v_pk_add_f32 {vr(A0,2)}, {vr(A0,2)}, {vr(A0+2,2)}\nv_pk_add_f32 {vr(A0+4,2)}, {vr(A0+4,2)}, {vr(A0+6,2)}\nv_pk_add_f32 {vr(A0,2)}, {vr(A0,2)}, {vr(A0+4,2)}")
    k(f"buffer_store_dwordx2 {vr(A0,2)}, v{T+13}, {sr(SRD_B,4)}, s63 offen")
    k(f"{nw0}:")
    stamp(k, 2)
    k(f"s_waitcnt vmcnt({young})")
    for d in range(16): k(f"v_lshlrev_b32 v{XF+2*d}, 16, v{XR+d}\nv_and_b32 v{XF+2*d+1}, 0xffff0000, v{XR+d}")
    k(f"v_pk_add_f32 {vr(SU,2)}, {vr(XF,2)}, {vr(XF+2,2)}")
    for d in range(2, 16): k(f"v_pk_add_f32 {vr(SU,2)}, {vr(SU,2)}, {vr(XF+2*d,2)}")
    k(f"v_add_f32 v{SU}, v{SU}, v{SU+1}")
    red32(k, SU, SU + 1)
    k(f"v_mul_f32 v{SU+2}, {-1.0/1024!r}, v{SU}")
    k(f"v_mov_b32 v{SU}, 0\nv_mov_b32 v{SU+1}, 0")
    for d in range(16):
        k(f"v_pk_add_f32 {vr(XF+2*d,2)}, {vr(XF+2*d,2)}, {vr(SU+2,2)} op_sel_hi:[1,0]")
        k(f"v_pk_fma_f32 {vr(SU,2)}, {vr(XF+2*d,2)}, {vr(XF+2*d,2)}, {vr(SU,2)}")
    k(f"v_add_f32 v{SU}, v{SU}, v{SU+1}")
    red32(k, SU, SU + 1)
    k(f"v_mov_b32 v{SU+1}, 0x3727c5ac\nv_fmac_f32 v{SU+1}, {1.0/1024!r}, v{SU}\nv_rsq_f32 v{SU+3}, v{SU+1}")
    k(f"s_lshl_b32 s62, s69, 6\ns_lshl_b32 s63, s{S_WAVE}, 4\ns_add_u32 s62, s62, s63\ns_add_u32 s62, s62, {MP_RS}\nv_lshlrev_b32 v{T+12}, 3, v{T+12}")
    k(f"buffer_store_dwordx2 {vr(SU+2,2)}, v{T+12}, {sr(SRD_B,4)}, s62 offen")
    stamp(k, 3)
    if instr: k("s_waitcnt vmcnt(0)")
    stamp(k, 4)
    stamp_flush(k, 28, 5, 4, slot=1)
    k(f"{end}:\ns_endpgm")
    return k

def phase_front_fused(k, opt, name):
    LANE, L16 = 104, 105
    T = 48
    V_W, V_C = 115, 109
    WA, CA, XR, XT_, XF, A0, SU, G, M, RS = 64, 80, 128, 144, 0, 200, 216, 160, 32, 84
    HL = 2 * 25344
    k(f"v_lshrrev_b32 v{T+1}, 3, v{LANE}\nv_and_b32 v{T+2}, 7, v{LANE}")
    k(f"v_mul_u32_u24 v{V_W}, 12288, v{T+1}\nv_lshl_add_u32 v{V_W}, v{T+2}, 4, v{V_W}")
    k(f"s_lshl_b32 s84, s{S_RB1}, 6")
    k(f"v_add_u32 v{V_C}, s84, v{T+1}\nv_lshlrev_b32 v{V_C}, 1, v{V_C}")
    k(f"s_lshl_b32 s85, s{S_WAVE}, 5\nv_add_u32 v{T+3}, s85, v{V_C}")
    k(f"s_mul_i32 s86, s84, 12288\ns_lshl_b32 s87, s{S_HP}, 7\ns_add_u32 s86, s86, s87")
    k(f"s_mul_i32 s87, s{S_WAVE}, {16*12288}\ns_add_u32 s87, s87, s86\ns_add_u32 s88, s87, {8*12288}")
    k(f"v_lshrrev_b32 v{T+4}, 5, v{LANE}\nv_lshlrev_b32 v{T+4}, 11, v{T+4}\nv_and_b32 v{T+5}, 31, v{LANE}\nv_lshl_add_u32 v{T+4}, v{T+5}, 4, v{T+4}")
    k(f"s_lshl_b32 s89, s{S_RB1}, 4\ns_add_u32 s89, s89, s{S_HP}")
    k(f"s_lshl_b32 s90, s89, 14\ns_lshl_b32 s91, s{S_WAVE}, 12\ns_add_u32 s90, s90, s91")
    k(f"v_mov_b32 v{T+8}, 0\nv_mov_b32 v{T+9}, 0\nv_mov_b32 v{T+10}, 0\nv_mov_b32 v{T+11}, 0\nv_mov_b32 v{T+12}, 1")
    k(f"v_lshlrev_b32 v{T+7}, {FS}, v{LANE}")
    k(f"s_lshl_b32 s93, s2, {FS+6}\ns_add_u32 s93, s93, {F_S0}\ns_cmp_lt_u32 s2, 4\ns_cselect_b32 s93, s93, 0x7ff00000\ns_cmp_eq_u32 s{S_WAVE}, 3\ns_cselect_b32 s93, s93, 0x7ff00000")
    k("s_waitcnt lgkmcnt(0)")
    srd(k, SRD_F, P_WS, FLAG_BYTES, WS_FLAG)
    k(f"buffer_store_dword v{T+8}, v{T+7}, {sr(SRD_F,4)}, s93 offen sc1")
    k(f"s_mov_b32 s{SRD_T}, s{P_DBG}\ns_mov_b32 s{SRD_T+1}, s{P_DBG+1}\ns_mov_b32 s{SRD_T+2}, 256\ns_mov_b32 s{SRD_T+3}, 0x20000")
    k("s_mov_b32 s95, s93")
    srd(k, SRD_D, P_WMOD, D * 6 * D * 2)
    srd(k, SRD_A, P_X, S * D * 2)
    for i in range(2): k(f"global_load_ushort v{CA+2*i}, v{T+3}, s[{P_C}:{P_C+1}] offset:{i*16}")
    for i in range(2):
        for v in range(2): k(f"buffer_load_dwordx4 {vr(WA+(i*2+v)*4,4)}, v{V_W}, {sr(SRD_D,4)}, s{87+i} offen offset:{v*2048}")
    for i in range(4): k(f"buffer_load_dwordx4 {vr(XR+4*i,4)}, v{T+4}, {sr(SRD_A,4)}, s90 offen offset:{i*512}")
    k.stamp("loads issued")
    srd(k, SRD_B, P_WS, MP_BYTES, WS_MODP)
    srd(k, SRD_C, P_WS, S * 128, WS_STAT)
    w3, jn = k.label("w3"), k.label("join")
    k(f"s_cmp_eq_u32 s{S_WAVE}, 3\ns_cbranch_scc1 {w3}")
    k(f"s_lshl_b32 s92, s2, 1\ns_add_u32 s92, s92, s{S_WAVE}\ns_sub_u32 s92, s92, 1")
    nt_ = k.label("notouch")
    k("s_mov_b32 s93, 0x7ff00000")
    for i in range(2): k(f"buffer_load_dword a233, v{V_W}, {sr(SRD_D,4)}, s93 offen")
    k(f"s_cmp_eq_u32 s{S_WAVE}, 0\ns_cbranch_scc1 {nt_}")
    for ptr, per in ((P_WQKV, 12), (P_WO, 4), (P_WMOD, 24)):
        k(f"s_mul_i32 s93, s92, {per}\nv_min_u32 v{T+14}, {per-1}, v{LANE}\nv_add_u32 v{T+14}, s93, v{T+14}")
        k(f"v_lshlrev_b32 v{T+14}, 10, v{T+14}")
        k(f"global_load_dword a232, v{T+14}, s[{ptr}:{ptr+1}] offset:384")
    k(f"s_branch {jn}")
    k(f"{nt_}:")
    for i in range(3): k(f"buffer_load_dword a233, v{V_W}, {sr(SRD_D,4)}, s93 offen")
    k(f"s_branch {jn}")
    k(f"{w3}:")
    nb = k.label("nboot")
    k(f"s_cmp_eq_u32 s95, 0x7ff00000\ns_cbranch_scc1 {nb}")
    k("s_lshl_b32 s93, s2, 2\ns_waitcnt vmcnt(10)")
    k(f"buffer_store_dword v{T+12}, v{T+8}, {sr(SRD_T,4)}, s93 offen sc1")
    k(f"{nb}:")
    k(f"v_and_b32 v{T+14}, 3, v{LANE}\nv_lshlrev_b32 v{T+14}, 4, v{T+14}")
    k(f"s_lshl_b32 s93, s{S_RB1}, 6\ns_add_u32 s93, s93, s{S_HP}\nv_add_u32 v{T+15}, s93, v{T+14}")
    k(f"s_lshl_b32 s93, s{S_HP}, 6\ns_add_u32 s93, s93, s{S_RB1}\ns_add_u32 s93, s93, 1024\nv_add_u32 v{T+14}, s93, v{T+14}")
    k(f"v_cmp_gt_u32 vcc, 4, v{LANE}\ns_mul_i32 s93, s2, 24\ns_add_u32 s93, s93, 2040")
    k(f"v_cndmask_b32 v{T+14}, v{T+14}, v{T+15}, vcc\nv_add_u32 v{T+15}, s93, v{LANE}")
    k(f"v_cmp_gt_u32 vcc, 8, v{LANE}\ns_nop 1\nv_cndmask_b32 v{T+14}, v{T+15}, v{T+14}, vcc")
    k(f"v_cmp_gt_u32 vcc, 32, v{LANE}\nv_mov_b32 v{T+15}, 0x100000\ns_nop 0\nv_cndmask_b32 v{T+14}, v{T+15}, v{T+14}, vcc")
    k(f"v_lshlrev_b32 v{T+14}, {FS}, v{T+14}")
    k(f"buffer_store_dword v{T+8}, v{T+14}, {sr(SRD_F,4)}, 0 offen sc1")
    k("s_mov_b32 s93, 0x7ff00000")
    for i in range(2): k(f"buffer_load_dword a233, v{V_W}, {sr(SRD_D,4)}, s93 offen")
    k("s_lshl_b32 s93, s2, 10")
    k(f"buffer_store_dwordx4 {vr(T+8,4)}, v{L16}, {sr(SRD_C,4)}, s93 offen sc1")
    k(f"s_add_u32 s93, s93, {MP_B}")
    k(f"buffer_store_dwordx4 {vr(T+8,4)}, v{L16}, {sr(SRD_B,4)}, s93 offen sc1")
    k(f"{jn}:")
    k(f"v_lshlrev_b32 v{T+5}, 11, v{T+1}\nv_lshl_add_u32 v{T+5}, v{T+2}, 4, v{T+5}")
    k(f"s_lshl_b32 s91, s{S_RB1}, 18\ns_lshl_b32 s92, s{S_WAVE}, 16\ns_add_u32 s91, s91, s92\ns_lshl_b32 s92, s{S_HP}, 7\ns_add_u32 s91, s91, s92")
    for i in range(4):
        k(f"buffer_load_dwordx4 {vr(XT_+4*i,4)}, v{T+5}, {sr(SRD_A,4)}, s91 offen")
        if i < 3: k("s_add_u32 s91, s91, 16384")
    k(f"s_lshl_b32 s94, s{S_WAVE}, 11\ns_add_u32 s{S_MB}, s86, s94\ns_add_u32 s{S_MB}, s{S_MB}, 4096")
    k(f"s_lshl_b32 s94, s{S_WAVE}, 16\ns_lshl_b32 s95, s{S_HP}, 12\ns_add_u32 s94, s94, s95\ns_lshl_b32 s95, s{S_RB1}, 8\ns_add_u32 s94, s94, s95\ns_add_u32 s{S_MO}, s94, {MP_B}")
    young = 9
    k.stamp("all issued")
    k(f"s_waitcnt vmcnt({young + 8})")
    k.stamp("c ready")
    silu_block(k, [CA, CA + 2])
    k(f"s_waitcnt vmcnt({young + 4})")
    k.stamp("w ready")
    for i in range(2):
        for v in range(2):
            for d in range(4):
                w_ = WA + (i * 2 + v) * 4 + d
                k(f"v_lshlrev_b32 v{T+14}, 16, v{w_}\nv_and_b32 v{T+15}, 0xffff0000, v{w_}")
                if i == 0: k(f"v_pk_mul_f32 {vr(A0+v*8+2*d,2)}, {vr(T+14,2)}, {vr(CA,2)} op_sel_hi:[1,0]")
                else: k(f"v_pk_fma_f32 {vr(A0+v*8+2*d,2)}, {vr(T+14,2)}, {vr(CA+2,2)}, {vr(A0+v*8+2*d,2)} op_sel_hi:[1,0,1]")
    k("s_nop 1")
    for j in range(8): k(f"v_permlane32_swap_b32 v{A0+j}, v{A0+8+j}")
    k("s_nop 1")
    for j in range(8): k(f"v_add_f32 v{A0+j}, v{A0+j}, v{A0+8+j}")
    k("s_nop 1")
    for j in range(4): k(f"v_permlane16_swap_b32 v{A0+j}, v{A0+4+j}")
    k("s_nop 1")
    for j in range(4): k(f"v_add_f32 v{A0+j}, v{A0+j}, v{A0+4+j}")
    k("s_nop 1")
    for j in range(4): k(f"v_add_f32_dpp v{A0+j}, v{A0+j}, v{A0+j} row_ror:8 row_mask:0xf bank_mask:0xf")
    k(f"v_lshrrev_b32 v{T+13}, 5, v{LANE}\nv_lshlrev_b32 v{T+14}, 8, v{T+13}\nv_lshl_add_u32 v{T+14}, v{T+2}, 5, v{T+14}")
    k(f"v_bfe_u32 v{T+15}, v{LANE}, 4, 1\nv_lshl_add_u32 v{T+14}, v{T+15}, 4, v{T+14}\ns_lshl_b32 s94, s{S_WAVE}, 9\nv_add_u32 v{T+14}, s94, v{T+14}")
    k(f"ds_write_b128 v{T+14}, {vr(A0,4)} offset:{HL}")
    k(f"s_waitcnt vmcnt({young})")
    for d in range(16): k(f"v_lshlrev_b32 v{XF+2*d}, 16, v{XR+d}\nv_and_b32 v{XF+2*d+1}, 0xffff0000, v{XR+d}")
    k(f"v_pk_add_f32 {vr(SU,2)}, {vr(XF,2)}, {vr(XF+2,2)}")
    for d in range(2, 16): k(f"v_pk_add_f32 {vr(SU,2)}, {vr(SU,2)}, {vr(XF+2*d,2)}")
    k(f"v_add_f32 v{SU}, v{SU}, v{SU+1}")
    red32(k, SU, SU + 1)
    k(f"v_mul_f32 v{SU+2}, {-1.0/1024!r}, v{SU}")
    k(f"v_mov_b32 v{SU}, 0\nv_mov_b32 v{SU+1}, 0")
    for d in range(16):
        k(f"v_pk_add_f32 {vr(XF+2*d,2)}, {vr(XF+2*d,2)}, {vr(SU+2,2)} op_sel_hi:[1,0]")
        k(f"v_pk_fma_f32 {vr(SU,2)}, {vr(XF+2*d,2)}, {vr(XF+2*d,2)}, {vr(SU,2)}")
    k(f"v_add_f32 v{SU}, v{SU}, v{SU+1}")
    red32(k, SU, SU + 1)
    k(f"v_mov_b32 v{SU+1}, 0x3727c5ac\nv_fmac_f32 v{SU+1}, {1.0/1024!r}, v{SU}\nv_rsq_f32 v{SU+3}, v{SU+1}")
    k(f"s_lshl_b32 s94, s{S_WAVE}, 4\nv_lshlrev_b32 v{T+13}, 3, v{T+13}\nv_add_u32 v{T+13}, s94, v{T+13}")
    k(f"ds_write_b64 v{T+13}, {vr(SU+2,2)} offset:{HL+2048}")
    n3 = k.label("not3")
    k(f"s_cmp_lg_u32 s{S_WAVE}, 3\ns_cbranch_scc1 {n3}")
    k(f"v_and_b32 v{T+14}, 3, v{LANE}\nv_lshlrev_b32 v{T+14}, 2, v{T+14}")
    spin(k, [f"buffer_load_dword v{T+13}, v{T+14}, {sr(SRD_T,4)}, 0 offen sc1"], [T + 13], 0)
    k(f"{n3}:")
    k("s_waitcnt lgkmcnt(0)\ns_barrier")
    k.stamp("partials")
    nw0 = k.label("notw0")
    k(f"v_lshlrev_b32 v{T+6}, 3, v{LANE}")
    k(f"s_cmp_lg_u32 s{S_WAVE}, 0\ns_cbranch_scc1 {nw0}")
    for w in range(4): k(f"ds_read_b64 {vr(A0+2*w,2)}, v{T+6} offset:{HL+w*512}")
    k(f"v_and_b32 v{T+9}, 0x38, v{T+6}")
    k(f"ds_read_b64 {vr(A0+8,2)}, v{T+9} offset:{HL+2048}")
    k(f"s_lshl_b32 s94, s{S_HP}, 13\ns_lshl_b32 s95, s{S_RB1}, 9\ns_add_u32 s95, s95, s94")
    k(f"s_lshl_b32 s90, s89, 6\ns_add_u32 s90, s90, {MP_RS}")
    k("s_waitcnt lgkmcnt(0)")
    k(f"v_pk_add_f32 {vr(A0,2)}, {vr(A0,2)}, {vr(A0+2,2)}\nv_pk_add_f32 {vr(A0+4,2)}, {vr(A0+4,2)}, {vr(A0+6,2)}\nv_pk_add_f32 {vr(A0,2)}, {vr(A0,2)}, {vr(A0+4,2)}")
    k(f"buffer_store_dwordx2 {vr(A0,2)}, v{T+6}, {sr(SRD_B,4)}, s95 offen sc1")
    k(f"buffer_store_dwordx2 {vr(A0+8,2)}, v{T+9}, {sr(SRD_B,4)}, s90 offen sc1")
    k(f"s_lshl_b32 s90, s89, {FS}\ns_add_u32 s90, s90, {F_S0}")
    k("s_waitcnt vmcnt(0)")
    k(f"buffer_store_dword v{T+12}, v{T+8}, {sr(SRD_F,4)}, s90 offen sc1")
    if opt.get("modb_front", 0):
        sk_ = k.label("skmf")
        k(f"s_branch {sk_}")
        k(f"{nw0}:")
        k("s_waitcnt vmcnt(0)")
        for g in modb_loads(S_MB, V_W, V_C):
            for x in g: k(x)
        k(f"s_mov_b32 s{S_MB}, 0x7ff00000")
        k(f"{sk_}:")
    else:
        k(f"{nw0}:")
    k.stamp("s0 published")
    split = opt.get("split", 1)
    g1 = (setup_gemm1s if split else setup_gemm1)(k, opt)
    srd(k, SRD_W, P_WQKV, D * 3 * D * 2)
    if not opt.get("modb_front", 0):
        k("s_waitcnt vmcnt(1)")
        k(f"s_cmp_eq_u32 s{S_WAVE}, 0\ns_cbranch_scc1 1\ns_waitcnt vmcnt(0)")
    for d in range(16): k(f"v_lshlrev_b32 v{XF+2*d}, 16, v{XT_+d}\nv_and_b32 v{XF+2*d+1}, 0xffff0000, v{XT_+d}")
    VS = T + 4
    k(f"v_lshrrev_b32 v{VS}, 2, v{T+2}\nv_lshlrev_b32 v{VS}, 10, v{VS}")
    k(f"v_and_b32 v{T+3}, 3, v{T+2}\nv_lshl_add_u32 v{VS}, v{T+3}, 8, v{VS}\nv_lshl_add_u32 v{VS}, v{T+1}, 4, v{VS}")
    k(f"s_lshl_b32 s86, s{S_RB1}, 3\ns_lshl_b32 s87, s{S_WAVE}, 1\ns_add_u32 s86, s86, s87\ns_lshl_b32 s86, s86, 15\ns_lshl_b32 s87, s{S_HP}, 11\ns_add_u32 s86, s86, s87\ns_add_u32 s87, s86, 0x8000")
    k(f"s_lshl_b32 s88, s{S_RB1}, 2\ns_add_u32 s88, s88, s{S_WAVE}\ns_lshl_b32 s88, s88, {FS+4}\ns_add_u32 s88, s88, {F_H}\ns_lshl_b32 s89, s{S_HP}, {FS}\ns_add_u32 s89, s89, s88")
    k(f"v_lshlrev_b32 v{T+5}, 5, v{T+2}")
    k(f"s_lshl_b32 s92, s{S_WAVE}, 8\nv_lshlrev_b32 v{T+7}, 3, v{T+1}\nv_add_u32 v{T+7}, s92, v{T+7}")
    nw1 = k.label("notw0b")
    k(f"s_cmp_lg_u32 s{S_WAVE}, 0\ns_cbranch_scc1 {nw1}")
    k(f"v_and_b32 v{T+9}, 15, v{LANE}\ns_lshl_b32 s92, s{S_RB1}, 4\nv_add_u32 v{T+10}, s92, v{T+9}\nv_lshlrev_b32 v{T+9}, 4, v{T+9}\nv_add_u32 v{T+9}, s{S_HP}, v{T+9}")
    k(f"v_and_b32 v{T+11}, 16, v{LANE}\nv_cmp_eq_u32 vcc, 0, v{T+11}\ns_mov_b32 s92, {F_S0}\ns_nop 0")
    k(f"v_cndmask_b32 v{T+9}, v{T+9}, v{T+10}, vcc\nv_lshlrev_b32 v{T+9}, {FS}, v{T+9}")
    spin(k, [f"buffer_load_dword v{T+13}, v{T+9}, {sr(SRD_F,4)}, s92 offen sc1"], [T + 13], 0)
    k(f"s_lshl_b32 s94, s{S_HP}, 13\ns_add_u32 s95, s94, 4096")
    for p_ in range(16): k(f"buffer_load_dwordx2 {vr(G+2*p_,2)}, v{T+6}, {sr(SRD_B,4)}, s{94+p_//8} offen offset:{(p_%8)*512} sc1")
    k(f"s_lshl_b32 s90, s{S_RB1}, 10\ns_add_u32 s90, s90, {MP_RS}")
    k(f"buffer_load_dwordx4 {vr(A0+8,4)}, v{L16}, {sr(SRD_B,4)}, s90 offen sc1")
    k(f"v_cmp_lt_u32 vcc, 31, v{LANE}")
    k("s_waitcnt vmcnt(1)")
    for st in (8, 4, 2, 1):
        for j in range(st): k(f"v_pk_add_f32 {vr(G+2*j,2)}, {vr(G+2*j,2)}, {vr(G+2*(j+st),2)}")
    k(f"v_cvt_pk_bf16_f32 v{G+2}, v{G}, v{G+1}\nv_lshlrev_b32 v{G}, 16, v{G+2}\nv_and_b32 v{G+1}, 0xffff0000, v{G+2}")
    k(f"v_pk_add_f32 {vr(G+4,2)}, {vr(G,2)}, 1.0 op_sel_hi:[1,0]")
    k(f"v_cvt_pk_bf16_f32 v{G+2}, v{G+4}, v{G+5}\nv_lshlrev_b32 v{G+4}, 16, v{G+2}\nv_and_b32 v{G+5}, 0xffff0000, v{G+2}")
    k(f"v_cndmask_b32 v{G}, v{G}, v{G+4}, vcc\nv_cndmask_b32 v{G+1}, v{G+1}, v{G+5}, vcc")
    k(f"ds_write_b64 v{T+6}, {vr(G,2)} offset:{HL+4096}")
    k("s_waitcnt vmcnt(0)")
    k(f"ds_write_b128 v{L16}, {vr(A0+8,4)} offset:{HL+5120}")
    k("s_waitcnt lgkmcnt(0)")
    k(f"{nw1}:")
    g1.prefetch(k, opt.get("h_pre0", 0))
    srd(k, SRD_T, P_WS, S * D * 2, WS_H)
    k("s_barrier")
    k.stamp("s0 ready")
    for h in range(2): k(f"ds_read_b128 {vr(M+4*h,4)}, v{T+5} offset:{HL+4096+h*16}\nds_read_b128 {vr(M+8+4*h,4)}, v{T+5} offset:{HL+4096+256+h*16}")
    for i in range(4): k(f"ds_read_b64 {vr(RS+2*i,2)}, v{T+7} offset:{HL+5120+i*64}")
    k("s_waitcnt lgkmcnt(0)")
    for i in range(4):
        for j in range(4): k(f"v_pk_add_f32 {vr(XF+8*i+2*j,2)}, {vr(XF+8*i+2*j,2)}, {vr(RS+2*i,2)} op_sel_hi:[1,0]")
        for j in range(4): k(f"v_pk_mul_f32 {vr(XF+8*i+2*j,2)}, {vr(XF+8*i+2*j,2)}, {vr(RS+2*i,2)} op_sel:[0,1] op_sel_hi:[1,1]")
        for j in range(4): k(f"v_pk_fma_f32 {vr(XF+8*i+2*j,2)}, {vr(XF+8*i+2*j,2)}, {vr(M+8+2*j,2)}, {vr(M+2*j,2)}")
        for j in range(4): k(f"v_cvt_pk_bf16_f32 v{XR+4*i+j}, v{XF+8*i+2*j}, v{XF+8*i+2*j+1}")
        k(f"buffer_store_dwordx4 {vr(XR+4*i,4)}, v{VS}, {sr(SRD_T,4)}, s{86 + i//2} offen offset:{(i%2)*128} sc1")
    k.stamp("h computed")
    mk = len(k.L)
    g1.prefetch(k, opt.get("h_pre1a", 4 if split else 6))
    publish(k, 89, T, mk)
    k.stamp("h published")
    g1.prefetch(k, opt.get("h_pre1", 8 if split else 6))
    if not split:
        k.g3 = setup_gemm3_early(k, opt, LANE, 56)
        for i in range(8): k(f"global_load_ushort {ar(A_UT+32+i,1)}, v{V_C}, s[{P_C}:{P_C+1}] offset:{i*16}")
    k(f"v_and_b32 v252, 15, v{LANE}\nv_lshlrev_b32 v252, {FS}, v252\ns_mov_b32 s93, s88")
    staged_wait(k, g1, opt.get("g1_T", 4), 252, 93, 253, one_prod)
    k.stamp("h ready")
    return g1

def phase_front(k, opt, name):
    LANE, L16 = 104, 105
    T = 48
    V_W, V_C = 115, 109
    RS, XR, XT_, XF, G, M = 64, 128, 144, 0, 160, 32
    HL = 2 * 25344
    k(f"v_and_b32 v{LANE}, 63, v0")
    k(f"v_lshrrev_b32 v{T+1}, 3, v{LANE}\nv_and_b32 v{T+2}, 7, v{LANE}")
    k(f"v_lshlrev_b32 v{T+5}, 11, v{T+1}\nv_lshl_add_u32 v{T+5}, v{T+2}, 4, v{T+5}")
    k(f"s_lshl_b32 s91, s{S_RB1}, 18\ns_lshl_b32 s92, s{S_WAVE}, 16\ns_add_u32 s91, s91, s92\ns_lshl_b32 s92, s{S_HP}, 7\ns_add_u32 s91, s91, s92")
    k(f"v_lshlrev_b32 v{T+8}, 3, v{LANE}\nv_lshlrev_b32 v{T+6}, 3, v{T+1}")
    k(f"s_lshl_b32 s94, s{S_HP}, 13\ns_add_u32 s95, s94, 4096")
    k(f"s_lshl_b32 s90, s{S_RB1}, 10\ns_lshl_b32 s93, s{S_WAVE}, 8\ns_add_u32 s90, s90, s93\ns_add_u32 s90, s90, {MP_RS}")
    k("s_waitcnt lgkmcnt(0)")
    srd(k, SRD_B, P_WS, MP_BYTES, WS_MODP)
    srd(k, SRD_A, P_X, S * D * 2)
    for p_ in range(16): k(f"buffer_load_dwordx2 {vr(G+2*p_,2)}, v{T+8}, {sr(SRD_B,4)}, s{94+p_//8} offen offset:{(p_%8)*512}")
    for i in range(4): k(f"buffer_load_dwordx2 {vr(RS+2*i,2)}, v{T+6}, {sr(SRD_B,4)}, s90 offen offset:{i*64}")
    for i in range(4):
        k(f"buffer_load_dwordx4 {vr(XT_+4*i,4)}, v{T+5}, {sr(SRD_A,4)}, s91 offen")
        if i < 3: k("s_add_u32 s91, s91, 16384")
    k.stamp("loads issued")
    def touch(ptr, per, vt, off=0):
        k(f"s_lshl_b32 s80, s2, 2\ns_add_u32 s80, s80, s{S_WAVE}\ns_mul_i32 s80, s80, {per*128}")
        if off: k(f"s_add_u32 s80, s80, {off}")
        k(f"v_min_u32 v{vt}, {per-1}, v{LANE}\nv_lshlrev_b32 v{vt}, 7, v{vt}\nv_add_u32 v{vt}, s80, v{vt}")
        k(f"global_load_dword a232, v{vt}, s[{ptr}:{ptr+1}]")
    nt0 = 0
    if opt.get("m_touch", 0) == 1: touch(P_WQKV, 48, 254); nt0 = 1
    g1 = setup_gemm1(k, opt)
    srd(k, SRD_W, P_WQKV, D * 3 * D * 2)
    n0 = opt.get("h_pre0", 6)
    g1.prefetch(k, n0)
    n0 += nt0
    srd(k, SRD_F, P_WS, FLAG_BYTES, WS_FLAG)
    srd(k, SRD_T, P_WS, S * D * 2, WS_H)
    VS = T + 4
    k(f"v_lshrrev_b32 v{VS}, 2, v{T+2}\nv_lshlrev_b32 v{VS}, 10, v{VS}")
    k(f"v_and_b32 v{T+3}, 3, v{T+2}\nv_lshl_add_u32 v{VS}, v{T+3}, 8, v{VS}\nv_lshl_add_u32 v{VS}, v{T+1}, 4, v{VS}")
    k(f"s_lshl_b32 s86, s{S_RB1}, 3\ns_lshl_b32 s87, s{S_WAVE}, 1\ns_add_u32 s86, s86, s87\ns_lshl_b32 s86, s86, 15\ns_lshl_b32 s87, s{S_HP}, 11\ns_add_u32 s86, s86, s87\ns_add_u32 s87, s86, 0x8000")
    k(f"s_lshl_b32 s88, s{S_WAVE}, 9\nv_add_u32 v{T+8}, s88, v{T+8}\nv_lshlrev_b32 v{T+5}, 5, v{T+2}\nv_add_u32 v{T+5}, s88, v{T+5}")
    k(f"s_lshl_b32 s88, s{S_RB1}, 2\ns_add_u32 s88, s88, s{S_WAVE}\ns_lshl_b32 s88, s88, {FS+4}\ns_add_u32 s88, s88, {F_H}\ns_lshl_b32 s89, s{S_HP}, {FS}\ns_add_u32 s89, s89, s88")
    k(f"v_cmp_lt_u32 vcc, 31, v{LANE}")
    k(f"s_waitcnt vmcnt({8 + n0})")
    for st in (8, 4, 2, 1):
        for j in range(st): k(f"v_pk_add_f32 {vr(G+2*j,2)}, {vr(G+2*j,2)}, {vr(G+2*(j+st),2)}")
    k(f"v_cvt_pk_bf16_f32 v{G+2}, v{G}, v{G+1}\nv_lshlrev_b32 v{G}, 16, v{G+2}\nv_and_b32 v{G+1}, 0xffff0000, v{G+2}")
    k(f"v_pk_add_f32 {vr(G+4,2)}, {vr(G,2)}, 1.0 op_sel_hi:[1,0]")
    k(f"v_cvt_pk_bf16_f32 v{G+2}, v{G+4}, v{G+5}\nv_lshlrev_b32 v{G+4}, 16, v{G+2}\nv_and_b32 v{G+5}, 0xffff0000, v{G+2}")
    k(f"v_cndmask_b32 v{G}, v{G}, v{G+4}, vcc\nv_cndmask_b32 v{G+1}, v{G+1}, v{G+5}, vcc")
    k(f"ds_write_b64 v{T+8}, {vr(G,2)} offset:{HL}")
    k("s_waitcnt lgkmcnt(0)")
    for h in range(2): k(f"ds_read_b128 {vr(M+4*h,4)}, v{T+5} offset:{HL+h*16}\nds_read_b128 {vr(M+8+4*h,4)}, v{T+5} offset:{HL+256+h*16}")
    for i in range(4):
        k(f"s_waitcnt vmcnt({3 - i + n0})")
        for d in range(4): k(f"v_lshlrev_b32 v{XF+8*i+2*d}, 16, v{XT_+4*i+d}\nv_and_b32 v{XF+8*i+2*d+1}, 0xffff0000, v{XT_+4*i+d}")
        for j in range(4): k(f"v_pk_add_f32 {vr(XF+8*i+2*j,2)}, {vr(XF+8*i+2*j,2)}, {vr(RS+2*i,2)} op_sel_hi:[1,0]")
        for j in range(4): k(f"v_pk_mul_f32 {vr(XF+8*i+2*j,2)}, {vr(XF+8*i+2*j,2)}, {vr(RS+2*i,2)} op_sel:[0,1] op_sel_hi:[1,1]")
    k("s_waitcnt lgkmcnt(0)")
    for i in range(4):
        for j in range(4): k(f"v_pk_fma_f32 {vr(XF+8*i+2*j,2)}, {vr(XF+8*i+2*j,2)}, {vr(M+8+2*j,2)}, {vr(M+2*j,2)}")
        for j in range(4): k(f"v_cvt_pk_bf16_f32 v{XR+4*i+j}, v{XF+8*i+2*j}, v{XF+8*i+2*j+1}")
        k(f"buffer_store_dwordx4 {vr(XR+4*i,4)}, v{VS}, {sr(SRD_T,4)}, s{86 + i//2} offen offset:{(i%2)*128} sc1")
    k.stamp("h computed")
    code_prefetch_setup(k, name)
    srd(k, SRD_D, P_WMOD, D * 6 * D * 2)
    k(f"v_mul_u32_u24 v{V_W}, 12288, v{T+1}\nv_lshl_add_u32 v{V_W}, v{T+2}, 4, v{V_W}")
    k(f"s_lshl_b32 s84, s{S_RB1}, 6\nv_add_u32 v{V_C}, s84, v{T+1}\nv_lshlrev_b32 v{V_C}, 1, v{V_C}")
    k(f"s_mul_i32 s86, s84, 12288\ns_lshl_b32 s87, s{S_HP}, 7\ns_add_u32 s86, s86, s87")
    k(f"s_lshl_b32 s94, s{S_WAVE}, 11\ns_add_u32 s{S_MB}, s86, s94\ns_add_u32 s{S_MB}, s{S_MB}, 4096")
    k(f"s_lshl_b32 s94, s{S_WAVE}, 16\ns_lshl_b32 s95, s{S_HP}, 12\ns_add_u32 s94, s94, s95\ns_lshl_b32 s95, s{S_RB1}, 8\ns_add_u32 s94, s94, s95\ns_add_u32 s{S_MO}, s94, {MP_B}")
    k.g3 = setup_gemm3_early(k, opt, LANE, 56)
    publish(k, 89, T)
    k.stamp("h published")
    if opt.get("m_touch", 0) == 2: touch(P_WQKV, 48, 254)
    k("s_barrier")
    g1.prefetch(k, opt.get("h_pre1", 12))
    for i in range(8): k(f"global_load_ushort {ar(A_UT+32+i,1)}, v{V_C}, s[{P_C}:{P_C+1}] offset:{i*16}")
    k(f"v_and_b32 v252, 15, v{LANE}\nv_lshlrev_b32 v252, {FS}, v252\ns_mov_b32 s93, s88")
    staged_wait(k, g1, opt.get("g1_T", 4), 252, 93, 253, one_prod)
    k.stamp("h ready")
    return g1

def setup_gemm24(k, which, opt, base):
    c = Sched(); common_gemm(c)
    K = 1024 if which == 2 else 3584
    NS, R = opt.get("g2_NS", 4), opt.get(f"g{which}_R", 4)
    STAGE = 8448
    if isinstance(base, tuple): V_RD, V_DMA, V_TOK, LANE, L16, VT = base
    else:
        V_RD, V_DMA, V_TOK, LANE, L16, VT = base, base + 1, base + 2, base + 4, base + 5, base + 6
        lane_id(k, LANE)
        k(f"v_lshlrev_b32 v{L16}, 4, v{LANE}")
    c.LANE, c.L16 = LANE, L16
    hs = c.hs = opt.get("hsplit", 1) and opt.get("split", 1)
    order(c, k, opt, "g2", ["win", [8, 8], 0] if hs else ["win", [1, 1, 2, 4, 8], 1])
    if hs:
        c.w_off = lambda sd, kt: [T(x) for x in c.pos_txt(sd, kt)] + [T(f"s_mul_i32 s{sd}, s{sd}, {128*2048}")] + ([T(f"s_add_u32 s{sd}, s{sd}, {(32 - 8*128)*2048}")] if kt >= 8 else [])
        c.t_off = lambda sd, kt: [T(x) for x in c.pos_txt(sd, kt)] + [T(f"s_lshl_b32 s{sd}, s{sd}, 12")] + ([T(f"s_add_u32 s{sd}, s{sd}, {1024 - 8*4096}")] if kt >= 8 else [])
        c.sub_stride = 2048
    k(f"s_lshr_b32 s80, s{S_WAVE}, 1\ns_and_b32 s81, s{S_WAVE}, 1")
    k(f"s_lshl_b32 s82, s80, {6 if hs else 5}\ns_lshl_b32 s83, s81, 1\ns_add_u32 s82, s82, s83\ns_lshl_b32 s82, s82, 11")
    k(f"s_lshl_b32 s83, s{S_NT}, 7\ns_add_u32 s82, s82, s83")
    k(f"v_lshrrev_b32 v{VT}, 3, v{LANE}\nv_lshlrev_b32 v{VT}, 13, v{VT}")
    k(f"v_and_b32 v{VT+1}, 7, v{LANE}\nv_lshl_add_u32 v{VT}, v{VT+1}, 4, v{VT}")
    k(f"v_add_u32 v{V_DMA}, s82, v{VT}")
    V_DM2 = 101
    k(f"v_add_u32 v{V_DM2}, {2048-1056}, v{V_DMA}")
    k(f"v_bfe_u32 v{VT}, v{LANE}, 2, 2\nv_mul_u32_u24 v{VT}, 1056, v{VT}")
    k(f"v_lshrrev_b32 v{VT+1}, 4, v{LANE}\nv_lshl_add_u32 v{VT}, v{VT+1}, 7, v{VT}")
    k(f"v_and_b32 v{VT+1}, 3, v{LANE}\nv_lshl_add_u32 v{V_RD}, v{VT+1}, 3, v{VT}")
    k(f"v_add_u32 v{V_RD}, {L_R2}, v{V_RD}")
    if hs and opt.get("g2_tab", 1) and "g2_ord" not in opt:
        c.tab = (VT, VT + 1)
        k(f"v_add_u32 v{VT}, s{S_R8}, v{LANE}\nv_and_b32 v{VT}, 7, v{VT}\nv_lshlrev_b32 v{VT}, 2, v{VT}\nv_bfe_u32 v{VT+1}, v{LANE}, 3, 1\nv_or_b32 v{VT}, v{VT}, v{VT+1}")
        k(f"v_lshlrev_b32 v{VT+1}, 10, v{VT}\nv_lshlrev_b32 v{VT}, 16, v{VT}")
    c.V_RDX = V_RD
    k(f"s_lshl_b32 s82, s{S_RB2}, 3\ns_lshl_b32 s83, s{S_WAVE}, 1\ns_add_u32 s82, s82, s83\ns_mul_i32 s82, s82, {K//32*1024}")
    k(f"v_add_u32 v{V_TOK}, s82, v{L16}\nv_add_u32 v{V_TOK+1}, {K//32*1024}, v{V_TOK}")
    k(f"s_mul_i32 s{S_WB}, s80, 4224\ns_mul_i32 s82, s81, 2112\ns_add_u32 s{S_WB}, s{S_WB}, s82\ns_add_u32 s{S_WB}, s{S_WB}, {L_R2}")
    srd(k, SRD_W, P_WO if which == 2 else P_W2, K * D * 2)
    c.NB, c.TB, c.KS, c.SPK, c.KT, c.NS, c.R = 4, 2, 2, 1, K // 64, NS, R
    c.acc = lambda b, t: vr((b * 2 + t) * 4, 4)
    c.tf = lambda slot, ks, t: 64 + ((slot * 2 + ks) * 2 + t) * 4
    def sl_(sl): return (V_RD, 0, sl) if sl < 4 else ((42, 67584 - L_R2, sl - 4) if sl < 9 else (43, 1024 - L_R2, sl - 9))
    c.rd = lambda sl, b, sub, r: (sl_(sl)[0], sl_(sl)[2] * STAGE + sub * 4224 + r * 512 + b * 32)
    c.slot_addr = lambda sl: sl_(sl)[1] + sl_(sl)[2] * STAGE
    c.dma = [(V_DMA, 0, 0), (V_DM2, 1056, 1056)]
    c.v_tok = [V_TOK, V_TOK + 1]
    c.w_stride = 64 * 2048
    c.drop = opt.get(f"g{which}_drop", ())
    c.pro_units, c.ramp_rate, c.read_margin = opt.get(f"g{which}_pro", 12), opt.get(f"g{which}_ramp", 6), 4
    std_sched(c)
    return c

S_G80, S_G192 = 6, 7
def setup_gemm4p(k, opt, base):
    c = Sched(); common_gemm(c)
    HS = 8448; STAGE = 2 * HS
    L = 12; KT = 28; MAIN = KT - L
    V_RD, V_DE, V_DK, V_TOK, LANE, L16, VT = base, base + 2, base + 3, base + 4, base + 6, base + 7, base + 8
    c.LANE, c.L16, c.V_DE, c.V_DK, c.V_TOK = LANE, L16, V_DE, V_DK, V_TOK
    lane_id(k, LANE)
    k(f"v_lshlrev_b32 v{L16}, 4, v{LANE}")
    c.KT = KT
    order(c, k, opt, "g4", ["win", [4, 4, 8, 8, 4], 0])
    k(f"s_lshr_b32 s80, s{S_WAVE}, 1\ns_and_b32 s81, s{S_WAVE}, 1")
    k(f"s_mul_i32 s{S_G80}, s80, {80*2048}\ns_mul_i32 s{S_G192}, s80, {192*2048}")
    k("s_lshl_b32 s82, s80, 5\ns_lshl_b32 s83, s81, 1\ns_add_u32 s82, s82, s83")
    k(f"s_and_b32 s{S_TMP}, s{S_NT}, 1\ns_mul_i32 s83, s{S_TMP}, 1792\ns_add_u32 s82, s82, s83\ns_lshl_b32 s82, s82, 11")
    k(f"v_lshrrev_b32 v{VT}, 3, v{LANE}\nv_lshlrev_b32 v{VT}, 13, v{VT}")
    k(f"v_and_b32 v{VT+1}, 7, v{LANE}\nv_lshl_add_u32 v{VT}, v{VT+1}, 4, v{VT}")
    k(f"v_add_u32 v{VT}, s82, v{VT}")
    k(f"s_lshl_b32 s83, s{S_NT}, 7\nv_add_u32 v{V_DK}, s83, v{VT}\nv_xor_b32 v{V_DE}, 128, v{V_DK}")
    k(f"v_bfe_u32 v{VT}, v{LANE}, 2, 2\nv_mul_u32_u24 v{VT}, 1056, v{VT}")
    k(f"v_lshrrev_b32 v{VT+1}, 4, v{LANE}\nv_lshl_add_u32 v{VT}, v{VT+1}, 7, v{VT}")
    k(f"v_and_b32 v{VT+1}, 3, v{LANE}\nv_lshl_add_u32 v{V_RD+1}, v{VT+1}, 3, v{VT}")
    k(f"v_add_u32 v{V_RD}, {L_R2}, v{V_RD+1}")
    k(f"s_lshl_b32 s82, s{S_RB2}, 3\ns_lshl_b32 s83, s{S_WAVE}, 1\ns_add_u32 s82, s82, s83\ns_mul_i32 s82, s82, {112*1024}")
    k(f"s_mul_i32 s83, s{S_TMP}, {56*1024}\ns_add_u32 s82, s82, s83")
    k(f"v_add_u32 v{V_TOK}, s82, v{L16}\nv_add_u32 v{V_TOK+1}, {112*1024}, v{V_TOK}")
    k(f"s_mul_i32 s{S_WB}, s80, 4224\ns_mul_i32 s82, s81, 2112\ns_add_u32 s{S_WB}, s{S_WB}, s82")
    srd(k, SRD_W, P_W2, F * D * 2)
    c.drop = opt.get("g4_drop", ())
    V2E, V2K, V2T = 64, 65, 66
    c.V2 = (V2E, V2K, V2T)
    NS4 = opt.get("g4_NS", 8)
    slot_addr = [L_R2, L_R2 + STAGE] + [1024 + i * STAGE for i in range(6)]
    c.V_RD3 = 68; c.V_RD = V_RD
    def rd(sl, half, b, sub, r):
        off = half * HS + sub * 4224 + r * 512 + b * 32
        if sl < 2: return (V_RD, sl * STAGE + off)
        if sl < 5: return (V_RD + 1, slot_addr[sl] + off)
        return (c.V_RD3, slot_addr[sl] - slot_addr[5] + off)
    c.rd3_base = slot_addr[5]
    NT_ = 2 * L
    tf = lambda kt, sub, t: 64 + (((kt * 2 + sub) % NT_) * 2 + t) * 4
    acc = lambda b, t: vr((b * 2 + t) * 4, 4)
    c.wf = lambda buf, j: (buf * 8 + j) * 4
    typ = lambda kt: "A" if kt < 16 else ("B1" if kt < 24 else "B2")
    if opt.get("g4_fast", 1):
        base_pos = c.pos_txt
        def pos2(sd, kt):
            o = base_pos(sd, kt)
            if kt >= 16: return o
            t_ = S_PTMP
            o += [f"s_and_b32 s{t_}, s{sd}, 1", f"s_and_b32 s{sd}, s{sd}, 6", f"s_lshl_b32 s{sd}, s{sd}, 1"]
            o += [f"s_mul_i32 s{t_}, s{t_}, 3"] if kt < 8 else [f"s_add_u32 s{t_}, s{t_}, 1"]
            o += [f"s_add_u32 s{sd}, s{sd}, s{t_}"]
            return o
        c.pos_txt = pos2
    def w_off(sd, kt):
        o = [T(x) for x in c.pos_txt(sd, kt)]
        if typ(kt) == "A": o.append(T(f"s_mul_i32 s{sd}, s{sd}, {112*2048}"))
        elif typ(kt) == "B1": o += [T(f"s_mul_i32 s{sd}, s{sd}, {224*2048}"), T(f"s_add_u32 s{sd}, s{sd}, {(64 - 16*224)*2048}"), T(f"s_add_u32 s{sd}, s{sd}, s{S_G80}")]
        else: o += [T(f"s_mul_i32 s{sd}, s{sd}, {448*2048}"), T(f"s_add_u32 s{sd}, s{sd}, {(96 - 24*448)*2048}"), T(f"s_add_u32 s{sd}, s{sd}, s{S_G192}")]
        return o
    tab = opt.get("g4_tab", 1) and opt.get("g4_fast", 1) and "g4_ord" not in opt
    VW, VTT = 239, 232
    c.tabtxt = []
    if tab:
        t_ = Txt(); X, Y, Z = VT, VT + 1, 253
        t_(f"v_add_u32 v{X}, s{S_R4}, v{LANE}\nv_and_b32 v{X}, 3, v{X}\nv_and_b32 v{Y}, -4, v{LANE}\nv_or_b32 v{X}, v{X}, v{Y}")
        t_(f"v_add_u32 v{Y}, s{S_R8}, v{LANE}\nv_and_b32 v{Y}, 7, v{Y}\nv_and_b32 v{Z}, -8, v{LANE}\nv_or_b32 v{Y}, v{Y}, v{Z}")
        t_(f"v_subrev_u32 v{Z}, 8, v{LANE}\nv_cmp_gt_u32 vcc, 16, v{Z}\ns_nop 1\nv_cndmask_b32 v{X}, v{X}, v{Y}, vcc")
        t_(f"v_and_b32 v{Y}, 1, v{X}\nv_mul_u32_u24 v{Z}, 3, v{Y}\nv_add_u32 v{Y}, 1, v{Y}\nv_cmp_gt_u32 vcc, 8, v{LANE}\ns_nop 1\nv_cndmask_b32 v{Y}, v{Y}, v{Z}, vcc")
        t_(f"v_and_b32 v{Z}, 6, v{X}\nv_lshl_add_u32 v{Y}, v{Z}, 1, v{Y}")
        t_(f"v_mul_u32_u24 v{VW}, {112*2048}, v{Y}\nv_mul_u32_u24 v{VTT}, 3584, v{Y}")
        t_(f"v_subrev_u32 v{Y}, 16, v{X}\nv_mul_u32_u24 v{Z}, {224*2048}, v{Y}\nv_add_u32 v{Z}, {64*2048}, v{Z}\nv_add_u32 v{Z}, s{S_G80}, v{Z}")
        t_(f"v_cmp_lt_u32 vcc, 15, v{LANE}\nv_mul_u32_u24 v{Y}, 7168, v{Y}\nv_add_u32 v{Y}, 2048, v{Y}\nv_cndmask_b32 v{VW}, v{VW}, v{Z}, vcc\nv_cndmask_b32 v{VTT}, v{VTT}, v{Y}, vcc")
        t_(f"v_subrev_u32 v{Y}, 24, v{X}\nv_mul_u32_u24 v{Z}, {448*2048}, v{Y}\nv_add_u32 v{Z}, {96*2048}, v{Z}\nv_add_u32 v{Z}, s{S_G192}, v{Z}")
        t_(f"v_cmp_lt_u32 vcc, 23, v{LANE}\nv_mul_u32_u24 v{Y}, 14336, v{Y}\nv_add_u32 v{Y}, 3072, v{Y}\nv_cndmask_b32 v{VW}, v{VW}, v{Z}, vcc\nv_cndmask_b32 v{VTT}, v{VTT}, v{Y}, vcc")
        c.tabtxt = t_.L
    halves = [[("E", kt), ("K", kt)] for kt in range(MAIN)]
    halves += [[("E", MAIN + 2 * j), ("E", MAIN + 2 * j + 1)] for j in range(L // 2)]
    halves += [[("K", MAIN + 2 * j), ("K", MAIN + 2 * j + 1)] for j in range(L // 2)]
    seq = []
    for hv in halves:
        for _, kt in hv:
            if not seq or seq[-1] != kt: seq.append(kt)
    nseq = 0
    cur = None; flip = 0
    for st, hv in enumerate(halves):
        us = []
        for h, (kind, kt) in enumerate(hv):
            pre = []; post = []
            if cur != kt:
                flip ^= 1; cur = kt
                if not tab or nseq < opt.get("g4_tab0", 8): pre = w_off(c.s_kw + flip, kt)
                nseq += 1
                if tab and opt.get("g4_tab0", 8) <= nseq < len(seq): post = [T(f"v_readlane_b32 s{c.s_kw + (flip ^ 1)}, v{VW}, {seq[nseq]}")]
            vo = (V2E if kind == 'E' else V2K) if typ(kt) == "B2" else (V_DE if kind == 'E' else V_DK)
            alt = {V_DE: 69, V_DK: 75, V2E: 79, V2K: 71}[vo] if st >= 4 else None
            for i, goff in enumerate((0, 2048)):
                if i == 1 and alt is not None: vo, goff = alt, 1056
                us.append((pre if i == 0 else []) + [T(f"s_add_u32 m0, s{S_WB}, {slot_addr[st % NS4] + h * HS + i * 1056 - goff}"),
                          VM(f"buffer_load_dwordx4 v{vo}, {sr(SRD_W,4)}, s{c.s_kw + flip} offen" + (f" offset:{goff}" if goff else "") + " lds", ("dma", st))] + (post if i == 0 else []))
        c.stage_units[st] = us; c.stage_slot[st] = st % NS4
        for j in range(2):
            frags = []; toks = []
            parts = [(0, j), (1, j)] if st < MAIN else [(j, 0), (j, 1)]
            for h, sub in parts:
                kind, kt = hv[h]
                if (kt, sub) not in toks: toks.append((kt, sub))
                for b in range(4):
                    va, o0 = rd(st % NS4, h, b, sub, 0); _, o1 = rd(st % NS4, h, b, sub, 1)
                    frags.append((va, o0, o1, [(acc(b + (0 if kind == 'E' else 4), t), tf(kt, sub, t)) for t in range(2)]))
            c.steps.append(dict(frags=frags, stages=[st], toks=toks))
    for kt in range(KT):
        sd = c.s_kt + kt % 2
        for sub in range(2):
            us = []
            for t in range(2):
                g = []
                if sub == 0 and t == 0 and (not tab or kt < 4):
                    g = [T(x) for x in c.pos_txt(sd, kt)]
                    if typ(kt) == "A": g.append(T(f"s_mul_i32 s{sd}, s{sd}, 3584"))
                    elif typ(kt) == "B1": g += [T(f"s_mul_i32 s{sd}, s{sd}, 7168"), T(f"s_add_u32 s{sd}, s{sd}, {2048 - 16*7168}")]
                    else: g += [T(f"s_mul_i32 s{sd}, s{sd}, 14336"), T(f"s_add_u32 s{sd}, s{sd}, {3072 - 24*14336}")]
                key = ("tok", (kt, sub))
                if typ(kt) == "B2":
                    if sub == 1 and t == 0: g.append(T(f"s_add_u32 s{sd}, s{sd}, 7168"))
                    g.append(VM(f"buffer_load_dwordx2 {ar(tf(kt, sub, t),2)}, v{V2T+t}, {sr(SRD_T,4)}, s{sd} offen sc1", key))
                    g.append(VM(f"buffer_load_dwordx2 {ar(tf(kt, sub, t)+2,2)}, v{V2T+t}, {sr(SRD_T,4)}, s{sd} offen offset:3584 sc1", key))
                else:
                    g.append(VM(f"buffer_load_dwordx4 {ar(tf(kt, sub, t),4)}, v{V_TOK+t}, {sr(SRD_T,4)}, s{sd} offen offset:{sub*(1024 if typ(kt) == 'A' else 3584)} sc1", key))
                if tab and sub == 0 and t == 0 and 4 <= kt + 1 < KT: g.append(T(f"v_readlane_b32 s{c.s_kt + (kt + 1) % 2}, v{VTT}, {kt + 1}"))
                us.append(g)
            c.tok_units[(kt, sub)] = us; c.tok_slot[(kt, sub)] = (kt * 2 + sub) % NT_
    c.pro_units, c.ramp_rate, c.read_margin, c.lookahead = opt.get("g4_pro", 12), opt.get("g4_ramp", 5), 4, opt.get("g4_la", 12)
    c.MAIN, c.L = MAIN, L
    return c

def phase_gemm4p(k, c, opt):
    LANE, L16 = c.LANE, c.L16
    VT = 72
    srd(k, SRD_T, P_WS, S * F * 2, WS_HH)
    srd(k, SRD_A, P_OUT, S * D * 2)
    srd(k, SRD_B, P_WS, 8 << 20, WS_P4)
    V_G, V_GA, V_XA, V_X, IMP, VF = 96, 76, 77, 80, 128, 78
    for j in range(16): k(f"v_accvgpr_read_b32 v{V_X+j}, a{A_X1+j}")
    k(f"v_and_b32 v{VT}, 15, v{LANE}\nv_lshlrev_b32 v{VT}, {FS}, v{VT}")
    k(f"s_lshl_b32 s84, s{S_RB2}, 1\ns_lshr_b32 s85, s{S_WAVE}, 1\ns_add_u32 s84, s84, s85\ns_lshl_b32 s84, s84, {FS+5}\ns_add_u32 s84, s84, {F_HH}")
    k(f"s_and_b32 s85, s{S_NT}, 1\ns_lshl_b32 s85, s85, {FS+4}\ns_add_u32 s84, s84, s85")
    k(f"v_mov_b32 v252, v{VT}")
    c.tile_of = lambda key: key[0]
    k(f"s_add_u32 s85, s84, {F_HB - F_HH}")
    staged_wait(k, c, opt.get("g4_T", 8), 252, 84, 253, one_prod, pub=((93 if c.binl else 94), 70))
    add_gate(k, c, 16, f"buffer_load_dword v253, v252, {sr(SRD_F,4)}, s85 offen sc1", 253)
    k.stamp("hh ready")
    p = Txt()
    p(f"v_lshrrev_b32 v{VT}, 4, v{LANE}\nv_lshlrev_b32 v{V_GA}, 4, v{VT}\nv_add_u32 v{V_GA}, {L_MV}, v{V_GA}")
    p(f"v_and_b32 v{VT+1}, 15, v{LANE}\nv_lshlrev_b32 v{VT+1}, 11, v{VT+1}")
    p(f"v_and_b32 v{VT+2}, 1, v{VT}\nv_lshl_add_u32 v{VT+1}, v{VT+2}, 5, v{VT+1}")
    p(f"v_lshrrev_b32 v{VT+2}, 1, v{VT}\nv_lshl_add_u32 v{V_XA}, v{VT+2}, 4, v{VT+1}")
    p(f"s_lshl_b32 s86, s{S_RB2}, 3\ns_lshl_b32 s87, s{S_WAVE}, 1\ns_add_u32 s86, s86, s87\ns_lshl_b32 s86, s86, 15\ns_lshl_b32 s87, s{S_NT}, 7\ns_add_u32 s86, s86, s87\ns_add_u32 s87, s86, 32768")
    p(f"s_lshl_b32 s88, s{S_RB2}, 4\ns_add_u32 s88, s88, s{S_NT}\ns_lshl_b32 s88, s88, 2\ns_add_u32 s88, s88, s{S_WAVE}")
    p("s_xor_b32 s89, s88, 4")
    p(f"s_lshl_b32 s90, s88, 13\ns_add_u32 s91, s90, 4096\ns_lshl_b32 s92, s89, 13\ns_add_u32 s93, s92, 4096")
    p(f"s_lshl_b32 s88, s88, {FS}\ns_add_u32 s88, s88, {F_P4}\ns_lshl_b32 s89, s89, {FS}\ns_add_u32 s89, s89, {F_P4}")
    V2E, V2K, V2T = c.V2
    p(f"v_add_u32 v{c.V_RD3}, {c.rd3_base}, v{c.V_RD+1}")
    p(f"v_lshrrev_b32 v{VT}, 5, v{LANE}\nv_mul_u32_u24 v{VT}, {96*2048}, v{VT}\nv_add_u32 v{V2E}, v{c.V_DE}, v{VT}\nv_add_u32 v{V2K}, v{c.V_DK}, v{VT}")
    p(f"v_add_u32 v69, {2048-1056}, v{c.V_DE}\nv_add_u32 v75, {2048-1056}, v{c.V_DK}\nv_add_u32 v79, {2048-1056}, v{V2E}\nv_add_u32 v71, {2048-1056}, v{V2K}")
    p(f"v_lshrrev_b32 v{VT}, 1, v{L16}\nv_sub_u32 v{V2T}, v{c.V_TOK}, v{VT}\nv_sub_u32 v{V2T+1}, v{c.V_TOK+1}, v{VT}")
    p(f"v_mov_b32 v{VT}, 1\nv_mov_b32 v{VT+1}, 0")
    c.pre_loop_txt = p.L
    N = len(c.steps); p2 = N - c.L
    if c.binl:
        nbs = opt.get("binl_steps", 10); per = -(-len(c.binl) // nbs)
        c.gate_min = {16: nbs + 2 + opt.get("binl_gap", 8)}
        items = [VM(x, ("hb", 0)) if is_vm(x) else T(x) for x in c.binl]
        c.step_extra = lambda st: items[st * per:(st + 1) * per]
        c.late.setdefault(nbs + 2, []).extend([WVM([("hb", 0)]), f"buffer_store_dword v{VT}, v{VT+1}, {sr(SRD_F,4)}, s94 offen sc1"])
    for st_ in opt.get("cp4", []): c.late.setdefault(st_, []).extend(code_prefetch_txt(k.name, L16, 254, 80, junk="v240"))
    ex = [VM(f"buffer_store_dwordx4 {vr(4*j,4)}, v{L16}, {sr(SRD_B,4)}, s{90 + j//4} offen offset:{(j%4)*1024} sc1", ("exp", 0)) for j in range(8)]
    ne_ = opt.get("g4_ne", 2)
    for j in range(ne_): c.late[p2 + 1 + j] = ex[j * 8 // ne_:(j + 1) * 8 // ne_]
    c.late[p2 + opt.get("g4_fs", 6)] = [WVM([("exp", 0)]), f"buffer_store_dword v{VT}, v{VT+1}, {sr(SRD_F,4)}, s88 offen sc1"]
    c.late[N - 3] = [VM(f"buffer_load_dword v{VF}, v{VT+1}, {sr(SRD_F,4)}, s89 offen sc1", ("pf", 0))]
    c.last_reads = [f"ds_read_b128 {vr(V_G+4*b,4)}, v{V_GA} offset:{768+b*64}" for b in range(4)]
    m = Txt(); m.label = k.label
    okl = k.label("pok")
    m(f"v_cmp_eq_u32 vcc, 0, v{VF}\ns_cmp_eq_u64 vcc, 0\ns_cbranch_scc1 {okl}")
    spin(m, [f"buffer_load_dword v{VF}, v{VT+1}, {sr(SRD_F,4)}, s89 offen sc1"], [VF], 0)
    m(f"{okl}:")
    c.late[N - 1] = [WVM([("pf", 0)]), T("\n".join(m.L))] + [f"buffer_load_dwordx4 {vr(IMP+4*j,4)}, v{L16}, {sr(SRD_B,4)}, s{92 + j//4} offen offset:{(j%4)*1024} sc1" for j in range(8)]
    c.run(k)
    k.stamp("g4 loop done")
    A = lambda b, t: 32 + (b * 2 + t) * 4
    XT = 112
    XF = 160
    for j in range(16): k(f"v_lshlrev_b32 v{XF+2*j}, 16, v{V_X+j}\nv_and_b32 v{XF+2*j+1}, 0xffff0000, v{V_X+j}")
    k("s_waitcnt vmcnt(0) lgkmcnt(0)")
    for t in range(2):
        for b in range(4):
            for h in range(2): k(f"v_pk_add_f32 {vr(A(b,t)+2*h,2)}, {vr(A(b,t)+2*h,2)}, {vr(IMP+(b*2+t)*4+2*h,2)}")
            for h in range(2): k(f"v_pk_fma_f32 {vr(A(b,t)+2*h,2)}, {vr(A(b,t)+2*h,2)}, {vr(V_G+4*b+2*h,2)}, {vr(XF+(t*4+b)*4+2*h,2)}")
        PK = XT + t * 8
        for b in range(4): k(f"v_cvt_pk_bf16_f32 v{PK+2*b}, v{A(b,t)}, v{A(b,t)+1}\nv_cvt_pk_bf16_f32 v{PK+2*b+1}, v{A(b,t)+2}, v{A(b,t)+3}")
        k("s_nop 1")
        for s_ in range(2): k(f"v_permlane16_swap_b32 v{PK+4*s_}, v{PK+4*s_+2}\nv_permlane16_swap_b32 v{PK+4*s_+1}, v{PK+4*s_+3}")
        for s_ in range(2): k(f"buffer_store_dwordx4 {vr(PK+4*s_,4)}, v{V_XA}, {sr(SRD_A,4)}, s{86+t} offen offset:{s_*64}")

def phase_gemm1(k, c, opt):
    LANE, L16, VT = c.LANE, c.L16, c.VT
    PHK, VV, SH, UTX = 0, 34816, 114688, 126976
    A_PH = 160
    p = Txt()
    srd(p, SRD_A, P_WPHI, H * 2048)
    srd(p, SRD_B, P_WS, 2 << 20, WS_KVP)
    srd(p, SRD_C, P_WS, 128 << 10, WS_ZP)
    A_PW, A_VW, A_PR, A_VR, A_WR = 110, 111, 112, 113, 114
    p(f"s_lshr_b32 s80, s{S_WAVE}, 1\ns_and_b32 s81, s{S_WAVE}, 1")
    p(f"v_and_b32 v{VT}, 15, v{LANE}\ns_lshl_b32 s82, s{S_WAVE}, 5\nv_add_u32 v{VT}, s82, v{VT}")
    p(f"v_lshrrev_b32 v{VT+1}, 4, v{LANE}\nv_lshlrev_b32 v{VT+1}, 3, v{VT+1}")
    p(f"v_mul_u32_u24 v{A_PW}, 136, v{VT}\nv_add_u32 v{A_PW}, v{A_PW}, v{VT+1}")
    p(f"v_mul_u32_u24 v{A_VW}, 72, v{VT}\nv_add_u32 v{A_VW}, v{A_VW}, v{VT+1}")
    p(f"v_lshrrev_b32 v{VT}, 2, v{LANE}\nv_and_b32 v{VT+1}, 3, v{LANE}\nv_lshlrev_b32 v{VT+1}, 3, v{VT+1}")
    p(f"s_mul_i32 s82, s80, 17408\ns_lshl_b32 s83, s81, 6\ns_add_u32 s82, s82, s83")
    p(f"v_mul_u32_u24 v{A_PR}, 136, v{VT}\nv_add_u32 v{A_PR}, v{A_PR}, v{VT+1}\nv_add_u32 v{A_PR}, s82, v{A_PR}")
    p(f"s_mul_i32 s82, s80, 9216")
    p(f"v_mul_u32_u24 v{A_VR}, 72, v{VT}\nv_add_u32 v{A_VR}, v{A_VR}, v{VT+1}\nv_add_u32 v{A_VR}, s82, v{A_VR}")
    p(f"v_lshl_add_u32 v{A_WR}, v{VT}, 6, v{VT+1}\nv_add_u32 v{A_WR}, {L_WPH}, v{A_WR}")
    ONES, SEL = 116, 120
    for j in range(4): p(f"v_mov_b32 v{ONES+j}, 0x3f803f80")
    p(f"v_bfe_u32 v{VT}, v{LANE}, 2, 2\nv_lshrrev_b32 v{VT+1}, 4, v{LANE}")
    p(f"v_cmp_eq_u32 vcc, v{VT}, v{VT+1}")
    p(f"v_and_b32 v{VT}, 1, v{LANE}\nv_lshlrev_b32 v{VT}, 4, v{VT}\nv_mov_b32 v{VT+1}, 0x3f80\nv_lshlrev_b32 v{VT+1}, v{VT}, v{VT+1}")
    p(f"v_cndmask_b32 v{VT+1}, 0, v{VT+1}, vcc")
    p(f"v_and_b32 v{VT}, 2, v{LANE}\nv_cmp_eq_u32 vcc, 0, v{VT}")
    for j in (0, 1, 4, 5): p(f"v_mov_b32 v{SEL+j}, 0")
    p(f"v_cndmask_b32 v{SEL+2}, 0, v{VT+1}, vcc\nv_cndmask_b32 v{SEL+3}, v{VT+1}, 0, vcc")
    p(f"s_mov_b32 s94, {LOG2E!r}\ns_mov_b32 s95, {LOG2E!r}")
    p(f"s_lshl_b32 s84, s{S_HP}, 12\ns_lshl_b32 s85, s{S_WAVE}, 10\ns_add_u32 s84, s84, s85\ns_add_u32 s85, s85, {L_WPH}")
    c.pre_loop_txt = p.L
    c.late = {4: ["s_mov_b32 m0, s85", f"buffer_load_dwordx4 v{L16}, {sr(SRD_A,4)}, s84 offen lds"]}
    if opt.get("cpf", 1): c.late[22] = code_prefetch_txt(k.name, L16, 254, 80)
    ml = modb_loads(S_MB, 115, 109)
    ms = opt.get("modb_steps", [16] * 8)
    if opt.get("modb_front", 0):
        lb = k.label("skw0")
        c.late.setdefault(ms[0], []).append(T("\n".join([f"s_cmp_lg_u32 s{S_WAVE}, 0", f"s_cbranch_scc1 {lb}"] + [x for g in ml for x in g] + [f"{lb}:"])))
        ml = []
    else:
        for st_, g in zip(ms, ml): c.late.setdefault(st_, []).extend(g)
        ml = ml[len(ms):]
    c.last_reads = [f"ds_read_b64_tr_b16 {ar(A_PH+(hh*2+fb)*4+2*r,2)}, v{A_WR} offset:{hh*2048+r*1024+fb*32}" for hh in range(2) for fb in range(2) for r in range(2)]
    c.run(k)
    k.stamp("g1 loop done")
    A = lambda b, t: (b * 2 + t) * 4
    BF, P1, P2, MX, MN, EK = 126, 142, 174, 206, 214, 222
    groups = [(hh, t) for hh in range(2) for t in range(2)]
    def fm_part1(seg):
        for g, (hh, t) in enumerate(groups):
            for db in range(2):
                a = A(seg * 4 + hh * 2 + db, t)
                k(f"v_cvt_pk_bf16_f32 v{BF+g*4+db*2}, v{a}, v{a+1}\nv_cvt_pk_bf16_f32 v{BF+g*4+db*2+1}, v{a+2}, v{a+3}")
        k("s_nop 1")
        for g, (hh, t) in enumerate(groups):
            for fb in range(2):
                k(f"{MF} {vr(P1+g*8+fb*4,4)}, {ar(A_PH+(hh*2+fb)*4,4)}, {vr(BF+g*4,4)}, 0")
    def fm_part2():
        for op3, op2, M in (("v_max3_f32", "v_max_f32", MX), ("v_min3_f32", "v_min_f32", MN)):
            for g in range(4):
                b = P1 + g * 8
                k(f"{op3} v{M+2*g}, v{b}, v{b+1}, v{b+2}\n{op3} v{M+2*g}, v{M+2*g}, v{b+3}, v{b+4}\n{op3} v{M+2*g}, v{M+2*g}, v{b+5}, v{b+6}\n{op2} v{M+2*g}, v{M+2*g}, v{b+7}")
            treduce4(k, op2, [M + 2 * g for g in range(4)])
        for g in range(4):
            k(f"v_mul_f32 v{MX+2*g}, {-LOG2E!r}, v{MX+2*g}\nv_mul_f32 v{MN+2*g}, {LOG2E!r}, v{MN+2*g}")
    def fm_part3(E):
        for g in range(4):
            for j in range(4):
                b = g * 8 + 2 * j
                k(f"v_pk_fma_f32 {vr(P2+b,2)}, {vr(P1+b,2)}, s[94:95], {vr(MN+2*g,2)} op_sel_hi:[1,1,0] neg_lo:[1,0,0] neg_hi:[1,0,0]")
                k(f"v_pk_fma_f32 {vr(P1+b,2)}, {vr(P1+b,2)}, s[94:95], {vr(MX+2*g,2)} op_sel_hi:[1,1,0]")
            for j in range(8): k(f"v_exp_f32 v{P1+g*8+j}, v{P1+g*8+j}")
            for j in range(8): k(f"v_exp_f32 v{P2+g*8+j}, v{P2+g*8+j}")
            k("s_nop 0")
            for sg, PP in enumerate((P1, P2)):
                for j in range(4): k(f"v_cvt_pk_bf16_f32 v{E+(g*2+sg)*4+j}, v{PP+g*8+2*j}, v{PP+g*8+2*j+1}")
    for g in ml:
        for x in g: k(x)
    k("s_waitcnt lgkmcnt(0)\ns_nop 7")
    fm_part1(1)
    k("s_barrier")
    mark0 = len(k.L)
    for g, (hh, t) in enumerate(groups):
        for db in range(2):
            a = A(8 + hh * 2 + db, t)
            k(f"v_cvt_pk_bf16_f32 v{a}, v{a}, v{a+1}\nv_cvt_pk_bf16_f32 v{a+1}, v{a+2}, v{a+3}")
            k(f"ds_write_b64 v{A_VW}, {vr(a,2)} offset:{VV + hh*9216 + t*16*72 + db*32}")
    fm_part2()
    fm_part3(EK)
    SM = 32
    k("s_nop 1")
    for i in range(8): k(f"{MF} {vr(SM+4*i,4)}, {vr(ONES,4)}, {vr(EK+4*i,4)}, 0")
    k("s_nop 7")
    for i in range(8): k(f"v_rcp_f32 v{SM+4*i}, v{SM+4*i}")
    for g, (hh, t) in enumerate(groups):
        for sg, PP in enumerate((P1, P2)):
            for j in range(4):
                k(f"v_pk_mul_f32 {vr(PP+g*8+2*j,2)}, {vr(PP+g*8+2*j,2)}, {vr(SM+(g*2+sg)*4,2)} op_sel_hi:[1,0]")
            for fb in range(2):
                b = PP + g * 8 + fb * 4
                k(f"v_cvt_pk_bf16_f32 v{b}, v{b}, v{b+1}\nv_cvt_pk_bf16_f32 v{b+1}, v{b+2}, v{b+3}")
                k(f"ds_write_b64 v{A_PW}, {vr(b,2)} offset:{PHK + hh*17408 + t*16*136 + sg*64 + fb*32}")
    sprinkle(k, mark0, g3_early_units(k.g3, opt.get("g3_e1", 14), 254))
    k("s_waitcnt lgkmcnt(0)\ns_barrier")
    for s_ in range(4):
        for r in range(2):
            for fb in range(2): k(f"ds_read_b64_tr_b16 {ar(s_*16+fb*4+2*r,2)}, v{A_PR} offset:{PHK + (32*s_+16*r)*136 + fb*32}")
            for db in range(2): k(f"ds_read_b64_tr_b16 {ar(s_*16+8+db*4+2*r,2)}, v{A_VR} offset:{VV + (32*s_+16*r)*72 + db*32}")
    fm_part1(0)
    KV, ZZ = 64, 80
    for s_ in range(4):
        k(f"s_waitcnt lgkmcnt({min(15, 24 - 8*s_)})")
        for fb in range(2):
            for db in range(2):
                d = vr(KV + (db * 2 + fb) * 4, 4)
                k(f"{MF} {d}, {ar(s_*16+fb*4,4)}, {ar(s_*16+8+db*4,4)}, {'0' if s_ == 0 else d}")
            d = vr(ZZ + fb * 4, 4)
            k(f"{MF} {d}, {ar(s_*16+fb*4,4)}, {vr(ONES,4)}, {'0' if s_ == 0 else d}")
    k(f"s_lshl_b32 s82, s{S_HP}, 2\ns_add_u32 s82, s82, s{S_WAVE}")
    k("s_lshl_b32 s83, s82, 15")
    k(f"s_lshl_b32 s84, s{S_RB1}, 10\ns_add_u32 s84, s84, s83\ns_add_u32 s85, s84, 16384")
    k("s_lshl_b32 s90, s82, 11")
    k(f"s_lshl_b32 s91, s82, {FS+4}\ns_add_u32 s91, s91, {F_KV}\ns_lshl_b32 s92, s{S_RB1}, {FS}\ns_add_u32 s92, s92, s91")
    k(f"v_and_b32 v{VT}, 15, v{LANE}\nv_cmp_eq_u32 vcc, s{S_RB1}, v{VT}")
    k("s_nop 2")
    for db in range(2):
        for j in range(4): k(f"v_cvt_pk_bf16_f32 v{88+db*4+j}, v{KV+db*8+2*j}, v{KV+db*8+2*j+1}")
    k(f"buffer_store_dwordx4 {vr(88,4)}, v{L16}, {sr(SRD_B,4)}, s84 offen sc1")
    k(f"buffer_store_dwordx4 {vr(92,4)}, v{L16}, {sr(SRD_B,4)}, s85 offen sc1")
    k("s_and_saveexec_b64 s[96:97], vcc")
    k(f"buffer_store_dwordx4 {vr(ZZ,4)}, v{L16}, {sr(SRD_C,4)}, s90 offen sc1")
    k(f"buffer_store_dwordx4 {vr(ZZ+4,4)}, v{L16}, {sr(SRD_C,4)}, s90 offen offset:1024 sc1")
    k("s_mov_b64 exec, s[96:97]")
    k.stamp("kv stored")
    fm_part2()
    publish(k, 92, VT + 1)
    k.stamp("kv published")
    k("s_mov_b32 s93, s83")
    g2 = setup_gemm24(k, 2, opt, 96)
    k("s_mov_b32 s83, s93")
    g2.prefetch(k, 8)
    fm_part3(EK)
    k(f"v_lshlrev_b32 v{VT}, {FS}, v{VT}")
    wait_flags(k, [(VT, 91, 1)], VT + 1)
    k.stamp("kv ready")
    k(f"buffer_load_dwordx4 {vr(ZZ,4)}, v{L16}, {sr(SRD_C,4)}, s90 offen sc1")
    k(f"buffer_load_dwordx4 {vr(ZZ+4,4)}, v{L16}, {sr(SRD_C,4)}, s90 offen offset:1024 sc1")
    for i in range(32):
        if i % 4 == 0 and i: k("s_add_u32 s83, s83, 4096")
        k(f"buffer_load_dwordx4 {ar(4*i,4)}, v{L16}, {sr(SRD_B,4)}, s83 offen offset:{(i%4)*1024} sc1")
    srd(k, SRD_T, P_WS, S * D * 2, WS_O)
    k("s_waitcnt vmcnt(32)")
    for sh in (8, 4, 2, 1):
        for j in range(8): k(f"v_add_f32_dpp v{ZZ+j}, v{ZZ+j}, v{ZZ+j} row_ror:{sh} row_mask:0xf bank_mask:0xf")
    k(f"v_and_b32 v{VT+1}, 1, v{LANE}\nv_cmp_eq_u32 vcc, 0, v{VT+1}")
    for j in range(4): k(f"v_cvt_pk_bf16_f32 v{BF+8+j}, v{ZZ+2*j}, v{ZZ+2*j+1}")
    for j in range(4): k(f"v_cndmask_b32 v{BF+8+j}, v{ONES}, v{BF+8+j}, vcc")
    for i in range(32):
        db, pp = divmod(i, 16)
        if i % 2 == 0: k(f"s_waitcnt vmcnt({30 - i})")
        for fb in range(2):
            d = vr(KV + (db * 2 + fb) * 4, 4)
            k(f"{MF} {d}, {vr(SEL + (2 if fb == 0 else 0), 4)}, {ar(4*i,4)}, {'0' if pp == 0 else d}")
    k(f"s_mul_i32 s82, s{S_WAVE}, 3072\ns_add_u32 s82, s82, {SH}")
    k(f"v_add_u32 v{VT+1}, s82, v{L16}\nv_add_u32 v{VT+2}, {SH}, v{L16}")
    k("s_nop 6")
    for db in range(2):
        for j in range(4): k(f"v_cvt_pk_bf16_f32 v{BF+db*4+j}, v{KV+db*8+2*j}, v{KV+db*8+2*j+1}")
    for j in range(3): k(f"ds_write_b128 v{VT+1}, {vr(BF+4*j,4)} offset:{j*1024}")
    k("s_waitcnt lgkmcnt(0)\ns_barrier")
    for i in range(12): k(f"ds_read_b128 {ar(4*i,4)}, v{VT+2} offset:{i*1024}")
    k(f"s_lshl_b32 s82, s{S_RB1}, 3\ns_lshl_b32 s83, s{S_WAVE}, 1\ns_add_u32 s82, s82, s83\ns_lshl_b32 s82, s82, 15")
    k(f"s_lshl_b32 s83, s{S_HP}, 11\ns_add_u32 s82, s82, s83\ns_add_u32 s83, s82, 0x8000")
    k(f"s_lshl_b32 s84, s{S_RB1}, 2\ns_add_u32 s84, s84, s{S_WAVE}\ns_lshl_b32 s84, s84, {FS+4}\ns_lshl_b32 s85, s{S_HP}, {FS}\ns_add_u32 s84, s84, s85\ns_add_u32 s84, s84, {F_O}")
    k("s_waitcnt lgkmcnt(0)")
    for g, (hh, t) in enumerate(groups):
        for sg in range(2):
            for j in range(3):
                k(f"{MF} {vr((g*2+sg)*12+4*j,4)}, {ar(((hh*2+sg)*3+j)*4,4)}, {vr(EK+(g*2+sg)*4,4)}, 0")
    k("s_nop 7")
    for g, (hh, t) in enumerate(groups):
        n1, n2 = g * 24, g * 24 + 12
        D1, S1, D2, S2 = n1 + 8, n1 + 9, n2 + 8, n2 + 9
        k(f"v_mul_f32 v{n1+10}, v{S1}, v{S2}")
        k(f"v_mul_f32 v{n1+10}, 0x358637bd, v{n1+10}")
        k(f"v_fmac_f32 v{n1+10}, v{D1}, v{S2}\nv_fmac_f32 v{n1+10}, v{D2}, v{S1}")
        k(f"v_rcp_f32 v{n1+10}, v{n1+10}")
        k("s_nop 0")
        k(f"v_mul_f32 v{D1}, v{S2}, v{n1+10}\nv_mul_f32 v{D2}, v{S1}, v{n1+10}")
        for j in range(4): k(f"v_pk_mul_f32 {vr(n1+2*j,2)}, {vr(n1+2*j,2)}, {vr(D1,2)} op_sel_hi:[1,0]")
        for j in range(4): k(f"v_pk_fma_f32 {vr(n1+2*j,2)}, {vr(n2+2*j,2)}, {vr(D2,2)}, {vr(n1+2*j,2)} op_sel_hi:[1,0,1]")
        for j in range(4): k(f"v_cvt_pk_bf16_f32 v{n2+j}, v{n1+2*j}, v{n1+2*j+1}")
        k(f"buffer_store_dwordx4 {vr(n2,4)}, v{L16}, {sr(SRD_T,4)}, s{82+t} offen offset:{hh*1024} sc1")
    k.stamp("o stored")
    CU, AU, WW, TT = 128, 144, 152, 156
    for i in range(8): k(f"v_accvgpr_read_b32 v{CU+2*i}, a{A_UT+32+i}")
    silu_block(k, [CU + 2 * i for i in range(8)])
    mko = len(k.L)
    g2.V_X = 48
    srd(k, SRD_A, P_X, S * D * 2)
    V_XA = 47
    k(f"v_lshrrev_b32 v{VT+1}, 4, v{LANE}")
    k(f"v_and_b32 v{VT+2}, 15, v{LANE}\nv_lshlrev_b32 v{VT+2}, 11, v{VT+2}\nv_lshl_add_u32 v{V_XA}, v{VT+1}, 3, v{VT+2}")
    k(f"s_lshl_b32 s82, s{S_RB2}, 3\ns_lshl_b32 s83, s{S_WAVE}, 1\ns_add_u32 s82, s82, s83\ns_lshl_b32 s82, s82, 15\ns_lshl_b32 s83, s{S_NT}, 7\ns_add_u32 s82, s82, s83\ns_add_u32 s83, s82, 32768")
    for t in range(2):
        for b in range(4):
            k(f"buffer_load_dwordx2 {vr(g2.V_X+(t*4+b)*2,2)}, v{V_XA}, {sr(SRD_A,4)}, s{82+t} offen offset:{b*32}")
    publish(k, 84, VT + 2, mko)
    k.stamp("o published")
    mark1 = len(k.L)
    for j in range(8): k(f"v_mov_b32 v{AU+j}, 0")
    for i in range(8):
        for d in range(4): k(f"v_accvgpr_read_b32 v{WW+d}, a{A_UT+4*i+d}")
        for d in range(4):
            k(f"v_lshlrev_b32 v{TT}, 16, v{WW+d}\nv_and_b32 v{TT+1}, 0xffff0000, v{WW+d}")
            k(f"v_pk_fma_f32 {vr(AU+2*d,2)}, {vr(TT,2)}, {vr(CU+2*i,2)}, {vr(AU+2*d,2)} op_sel_hi:[1,0,1]")
    k("s_nop 1")
    for j in range(4): k(f"v_permlane32_swap_b32 v{AU+j}, v{AU+j+4}")
    k("s_nop 1")
    for j in range(4): k(f"v_add_f32 v{AU+j}, v{AU+j}, v{AU+j+4}")
    k("s_nop 1")
    for j in range(2): k(f"v_permlane16_swap_b32 v{AU+j}, v{AU+j+2}")
    k("s_nop 1")
    for j in range(2): k(f"v_add_f32 v{AU+j}, v{AU+j}, v{AU+j+2}")
    k("s_nop 1")
    for j in range(2): k(f"v_add_f32_dpp v{AU+j}, v{AU+j}, v{AU+j} row_ror:8 row_mask:0xf bank_mask:0xf")
    sprinkle(k, mark1, g3_early_units(k.g3, opt.get("g3_e2", 7), 254), skip=0)
    k(f"v_and_b32 v{TT}, 7, v{LANE}\nv_lshlrev_b32 v{TT}, 5, v{TT}\nv_lshrrev_b32 v{TT+1}, 5, v{LANE}\nv_lshl_add_u32 v{TT}, v{TT+1}, 4, v{TT}")
    k(f"v_bfe_u32 v{TT+1}, v{LANE}, 4, 1\nv_lshl_add_u32 v{TT}, v{TT+1}, 3, v{TT}")
    srd(k, SRD_D, P_WS, MP_BYTES, WS_MODP)
    k(f"v_or_b32 v{AU}, 1, v{AU}\nv_or_b32 v{AU+1}, 1, v{AU+1}")
    k(f"buffer_store_dwordx2 {vr(AU,2)}, v{TT}, {sr(SRD_D,4)}, s{S_MO} offen sc1")
    return g2

A_PARK = 224
S3_SRD, S3_WB, S3_KW = 64, 68, 69
def setup_gemm3_early(k, opt, LANE, VT):
    c = Sched(); common_gemm(c)
    NS, R = 4, 8
    STAGE = 28672
    V_RD, V_DMA, V_TOK = 224, 226, 233
    c.V_RD, c.V_DMA, c.V_TOK, c.LANE, c.L16, c.VT = V_RD, V_DMA, V_TOK, 237, 238, 248
    c.srd_w, c.s_wbase, c.s_kw = S3_SRD, S3_WB, S3_KW
    order(c, k, opt, 'g3', ['win', [4, 4, 8], 0])
    if opt.get("g3map", 0): c.s_rot, c.s_rot2 = 73, 72
    k(f"s_lshr_b32 s80, s{S_WAVE}, 1\ns_and_b32 s81, s{S_WAVE}, 1")
    k(f"s_mul_i32 s83, s80, {32*7168}\ns_mul_i32 s{S_TMP}, s{S_FT}, 224\ns_add_u32 s83, s83, s{S_TMP}")
    for i in range(7):
        k(f"v_add_u32 v{VT+2}, {i*64}, v{LANE}")
        k(f"v_mul_u32_u24 v{VT+3}, 4682, v{VT+2}")
        k(f"v_lshrrev_b32 v{VT+3}, 16, v{VT+3}")
        k(f"v_mul_u32_u24 v{VT+4}, 14, v{VT+3}")
        k(f"v_sub_u32 v{VT+4}, v{VT+2}, v{VT+4}")
        k(f"v_mul_u32_u24 v{VT+3}, 7168, v{VT+3}")
        k(f"v_lshl_add_u32 v{VT+3}, v{VT+4}, 4, v{VT+3}")
        k(f"v_add_u32 v{VT+3}, s83, v{VT+3}")
        if i % 4: k(f"v_subrev_u32 v{VT+3}, {(i%4)*1024}, v{VT+3}")
        k(f"v_accvgpr_write_b32 a{A_PARK+i}, v{VT+3}")
    k(f"s_mul_i32 s{S3_WB}, s81, 14336\ns_mul_i32 s82, s80, 7168\ns_add_u32 s{S3_WB}, s{S3_WB}, s82")
    k(f"s_cmp_eq_u32 s81, 0\ns_cselect_b32 s{S3_SRD}, s{P_W1}, s{P_W3}\ns_cselect_b32 s{S3_SRD+1}, s{P_W1+1}, s{P_W3+1}")
    k(f"s_mov_b32 s{S3_SRD+2}, {D*F*2}\ns_mov_b32 s{S3_SRD+3}, 0x20000")
    c.NB, c.TB, c.KS, c.SPK, c.KT, c.NS, c.R = 14, 4, 1, 2, 16, NS, R
    c.acc = lambda b, t: vr((b * 4 + t) * 4, 4)
    c.tf = lambda slot, ks, t: 112 + (slot * 4 + t) * 4
    ph = lambda sl: 3 - sl
    c.rd = lambda sl, b, sub, r: (V_RD + ph(sl) // 2, (ph(sl) % 2) * STAGE + (b % 2) * 14336 + (32 * sub + 16 * r) * 224 + 32 * (b // 2))
    c.slot_addr = lambda sl: ph(sl) * STAGE
    c.dma = [(V_DMA + i, i * 1024, (i % 4) * 1024) for i in range(7)]
    c.v_tok = [V_TOK + t for t in range(4)]
    c.w_stride = 64 * 7168
    c.drop = opt.get("g3_drop", ())
    c.pro_units, c.ramp_rate, c.read_margin = opt.get("g3_pro", 8), (lambda st: opt.get("g3_ramp", 10) if st < 6 else 8), 8
    c.lookahead = opt.get("g3_la", 4)
    std_sched(c)
    TL = c.TL = opt.get("g3_tail", 0)
    if TL:
        tail = c.steps[32 - TL:]
        c.steps = c.steps[:32 - TL] + [dict(st, frags=st["frags"][:8]) for st in tail] + [dict(st, frags=st["frags"][8:]) for st in tail]
    return c
def g3_early_units(c, n, vtmp):
    out = []
    for j in range(n):
        t = c.prefetch_txt(1)
        i = (c.pre_dma - 1) % 7
        ld = t[-1].replace(f"v{c.V_DMA+i},", f"v{vtmp},")
        out.append(t[:-1] + [f"v_accvgpr_read_b32 v{vtmp}, a{A_PARK+i}", ld])
    return out
def setup_gemm3_late(k, c):
    V_RD, V_DMA, V_TOK, LANE, L16, VT = c.V_RD, c.V_DMA, c.V_TOK, c.LANE, c.L16, c.VT
    lane_id(k, LANE)
    k(f"v_lshlrev_b32 v{L16}, 4, v{LANE}")
    for i in range(7): k(f"v_accvgpr_read_b32 v{V_DMA+i}, a{A_PARK+i}")
    k(f"v_lshrrev_b32 v{VT+3}, 2, v{LANE}\nv_mul_u32_u24 v{VT+3}, 224, v{VT+3}")
    k(f"v_and_b32 v{VT+4}, 3, v{LANE}\nv_lshl_add_u32 v{V_RD}, v{VT+4}, 3, v{VT+3}")
    k(f"v_add_u32 v{V_RD+1}, {2*28672}, v{V_RD}")
    k(f"s_lshl_b32 s82, s{S_RB3}, 4\ns_lshl_b32 s83, s{S_WAVE}, 2\ns_add_u32 s82, s82, s83\ns_lshl_b32 s82, s82, 15")
    k(f"v_add_u32 v{V_TOK}, s82, v{L16}")
    for t in range(1, 4): k(f"v_add_u32 v{V_TOK+t}, {t*0x8000}, v{V_TOK}")

def sprinkle(k, mark, groups, skip=4):
    if not groups: return
    seg = k.L[mark:]
    stepn = max(1, (len(seg) - skip) // len(groups))
    out, q = [], list(groups)
    for i, x in enumerate(seg):
        out.append(x)
        if q and i >= skip and (i - skip) % stepn == 0:
            assert not x.startswith("s_cmp") and not x.startswith("s_and_saveexec")
            out += q.pop(0)
    for g in q: out += g
    k.L[mark:] = out

A_X1 = 240
def phase_gemm2(k, c, opt):
    LANE, L16 = c.LANE, c.L16
    VT = 40
    k(f"v_and_b32 v252, 15, v{LANE}\nv_lshlrev_b32 v252, {FS}, v252")
    k(f"s_lshl_b32 s84, s{S_RB2}, 2\ns_add_u32 s84, s84, s{S_WAVE}\ns_lshl_b32 s84, s84, {FS+4}\ns_add_u32 s85, s84, {F_O}")
    if c.hs:
        k(f"s_add_u32 s94, s85, {F_O2 - F_O}")
        staged_wait(k, c, opt.get("g2_T", 5), 252, 85, 253, lambda sp, st: [f"s_lshl_b32 s{st}, s{sp}, 1", f"s_lshl_b32 s{st}, 3, s{st}"], pub=(95, 26))
        add_gate(k, c, 8, f"buffer_load_dword v253, v252, {sr(SRD_F,4)}, s94 offen sc1", 253)
    else:
        staged_wait(k, c, opt.get("g2_T", 6), 252, 85, 253, one_prod)
    k.stamp("o ready")
    V_G, V_C, V_S, V_GA = 64, 80, 136, 44
    p = Txt()
    srd(p, SRD_A, P_WS, S * D * 2, WS_Y)
    srd(p, SRD_B, P_WS, S * 128, WS_STAT)
    srd(p, SRD_D, P_WS, MP_BYTES, WS_MODP)
    p(f"v_lshrrev_b32 v{V_GA}, 4, v{LANE}\nv_lshlrev_b32 v{V_GA}, 4, v{V_GA}\nv_add_u32 v{V_GA}, {L_MV}, v{V_GA}")
    p(f"s_lshl_b32 s86, s{S_RB2}, 3\ns_lshl_b32 s87, s{S_WAVE}, 1\ns_add_u32 s86, s86, s87")
    p(f"s_lshl_b32 s88, s86, 15\ns_lshl_b32 s87, s{S_NT}, 11\ns_add_u32 s88, s88, s87\ns_add_u32 s89, s88, 32768")
    p(f"s_lshl_b32 s87, s{S_NT}, {FS}\ns_add_u32 s84, s84, s87\ns_add_u32 s84, s84, {F_Y}")
    p(f"s_lshl_b32 s91, s86, 11\ns_lshl_b32 s90, s{S_NT}, 8\ns_add_u32 s90, s90, s91")
    p(f"s_lshl_b32 s92, s{S_WAVE}, 16\ns_lshl_b32 s93, s{S_NT}, 12\ns_add_u32 s92, s92, s93\ns_add_u32 s92, s92, {MP_B}")
    p(f"v_lshlrev_b32 v{VT}, 2, v{LANE}")
    p(f"v_add_u32 v42, {67584 - L_R2}, v{c.V_RDX}\nv_add_u32 v43, {1024 - L_R2}, v{c.V_RDX}")
    for g in g3_early_units(k.g3, opt.get("g3_e2p", 0), 254): p.L += g
    c.pre_loop_txt = p.L
    c.late = {}
    for j, st_ in enumerate(opt.get("g3_e2s", [])):
        for g in g3_early_units(k.g3, 7 // len(opt["g3_e2s"]) + (1 if j < 7 % len(opt["g3_e2s"]) else 0), 254): c.late.setdefault(st_, []).extend(g)
    if opt.get("cpf", 1): c.late.setdefault(6, []).extend(code_prefetch_txt(k.name, L16, 254, 80))
    m = Txt(); m.label = k.label
    MB_ = 160
    mld = [f"buffer_load_dword v{MB_+j}, v{VT}, {sr(SRD_D,4)}, s92 offen offset:{j*256} sc1" for j in range(16)]
    okm = k.label("mok")
    m(f"v_min_u32 v{MB_+16}, v{MB_}, v{MB_+1}")
    for j in range(2, 16, 2): m(f"v_min3_u32 v{MB_+16}, v{MB_+16}, v{MB_+j}, v{MB_+j+1}")
    m(f"v_cmp_eq_u32 vcc, 0, v{MB_+16}\ns_cmp_eq_u64 vcc, 0\ns_cbranch_scc1 {okm}")
    spin(m, mld, [MB_ + j for j in range(16)], MB_ + 16)
    m(f"{okm}:")
    mchk = "\n".join(m.L); m.L = []
    for st in (4, 2, 1):
        for j in range(st): m(f"v_pk_add_f32 {vr(MB_+2*j,2)}, {vr(MB_+2*j,2)}, {vr(MB_+2*(j+st),2)}")
    m(f"v_add_f32 v{MB_}, v{MB_}, v{MB_+1}")
    round_bf16(m, MB_)
    m(f"v_add_f32 v{MB_+1}, 1.0, v{MB_}"); round_bf16(m, MB_ + 1)
    m(f"s_cmp_eq_u32 s{S_WAVE}, 2\ns_cselect_b64 vcc, -1, 0")
    m(f"v_cndmask_b32 v{MB_}, v{MB_}, v{MB_+1}, vcc")
    m(f"s_lshl_b32 s92, s{S_WAVE}, 8\ns_add_u32 s92, s92, {L_MV}\nv_add_u32 v{VT}, s92, v{VT}")
    m(f"ds_write_b32 v{VT}, v{MB_}")
    ms_ = opt.get("g2_modstep", 13)
    c.late.setdefault(ms_ - 2, []).extend([VM(x, ("mv", 0)) for x in mld])
    k_ = [x for x in m.L]
    i_ = next(i for i, x in enumerate(k_) if x.startswith("s_cmp_eq_u32"))
    c.late[ms_] = [WVM([("mv", 0)]), T(mchk)] + k_[:i_] + ["\n".join(k_[i_:])]
    ne = opt.get("g3_e3", 0)
    eu = [x for g in g3_early_units(k.g3, ne, 254) for x in g]
    c.late.setdefault(14, []).extend(eu[:len(eu)//2 // 1]); c.late.setdefault(15, []).extend(eu[len(eu)//2:])
    c.last_reads = ([f"ds_read_b128 {vr(V_G+4*b,4)}, v{V_GA} offset:{b*64}" for b in range(4)] + [f"ds_read_b128 {vr(V_C+4*b,4)}, v{V_GA} offset:{512+b*64}" for b in range(4)]
                    + [f"ds_read_b128 {vr(V_S+4*b,4)}, v{V_GA} offset:{256+b*64}" for b in range(4)])
    c.run(k)
    k.stamp("g2 loop done")
    k("s_waitcnt lgkmcnt(0)\ns_nop 7")
    A = lambda b, t: (b * 2 + t) * 4
    XT = 194; V_X = c.V_X
    for t in range(2):
        for b in range(4):
            xr = V_X + (t * 4 + b) * 2
            for h in range(2): k(f"v_lshlrev_b32 v{XT+2*h}, 16, v{xr+h}\nv_and_b32 v{XT+2*h+1}, 0xffff0000, v{xr+h}")
            for h in range(2): k(f"v_pk_fma_f32 {vr(A(b,t)+2*h,2)}, {vr(A(b,t)+2*h,2)}, {vr(V_G+4*b+2*h,2)}, {vr(XT+2*h,2)}")
        PK = XT + 4 + t * 8
        for b in range(4): k(f"v_cvt_pk_bf16_f32 v{PK+2*b}, v{A(b,t)}, v{A(b,t)+1}\nv_cvt_pk_bf16_f32 v{PK+2*b+1}, v{A(b,t)+2}, v{A(b,t)+3}")
        for b in range(4):
            for h in range(2): k(f"v_lshlrev_b32 v{A(b,t)+2*h}, 16, v{PK+2*b+h}\nv_and_b32 v{A(b,t)+2*h+1}, 0xffff0000, v{PK+2*b+h}")
    SU = [XT + 20, XT + 22]; M2 = [XT + 21, XT + 23]; TM = [XT + 24, XT + 25]; AC = [XT, XT + 2]; NM = [XT + 26, XT + 28]; DF = 32
    for t in range(2): k(f"v_pk_add_f32 {vr(AC[t],2)}, {vr(A(0,t),2)}, {vr(A(0,t)+2,2)}")
    for b in range(1, 4):
        for h in range(2):
            for t in range(2): k(f"v_pk_add_f32 {vr(AC[t],2)}, {vr(AC[t],2)}, {vr(A(b,t)+2*h,2)}")
    def allred2(X):
        for sw in ("v_permlane32_swap_b32", "v_permlane16_swap_b32"):
            for t in range(2): k(f"v_mov_b32 v{TM[t]}, v{X[t]}")
            k("s_nop 0")
            for t in range(2): k(f"{sw} v{X[t]}, v{TM[t]}")
            k("s_nop 0")
            for t in range(2): k(f"v_add_f32 v{X[t]}, v{X[t]}, v{TM[t]}")
    for t in range(2): k(f"v_add_f32 v{SU[t]}, v{AC[t]}, v{AC[t]+1}")
    allred2(SU)
    for t in range(2): k(f"v_mul_f32 v{NM[t]}, {-1.0/64!r}, v{SU[t]}\nv_mov_b32 v{AC[t]}, 0\nv_mov_b32 v{AC[t]+1}, 0")
    for b in range(4):
        for h in range(2):
            for t in range(2): k(f"v_pk_add_f32 {vr(DF+2*t,2)}, {vr(A(b,t)+2*h,2)}, {vr(NM[t],2)} op_sel_hi:[1,0]")
            for t in range(2): k(f"v_pk_fma_f32 {vr(AC[t],2)}, {vr(DF+2*t,2)}, {vr(DF+2*t,2)}, {vr(AC[t],2)}")
    for t in range(2): k(f"v_add_f32 v{M2[t]}, v{AC[t]}, v{AC[t]+1}")
    allred2(M2)
    k(f"v_cmp_gt_u32 vcc, 16, v{LANE}")
    k(f"v_lshlrev_b32 v{XT+2}, 3, v{LANE}\nv_lshrrev_b32 v{XT+3}, 4, v{LANE}")
    k(f"v_cndmask_b32 v{XT}, v{SU[1]}, v{SU[0]}, vcc\nv_cndmask_b32 v{XT+1}, v{M2[1]}, v{M2[0]}, vcc")
    k(f"v_and_b32 v45, 0x78, v{XT+2}\nv_lshl_add_u32 v45, v{XT+3}, 10, v45")
    k(f"v_or_b32 v{XT+1}, 1, v{XT+1}")
    k(f"v_cmp_gt_u32 vcc, 32, v{LANE}\ns_and_saveexec_b64 s[96:97], vcc")
    k(f"buffer_store_dwordx2 {vr(XT,2)}, v{XT+2}, {sr(SRD_B,4)}, s90 offen sc1")
    k("s_mov_b64 exec, s[96:97]")
    k.stamp("stat stored")
    if c.NS > 4: k("s_barrier")
    if opt.get("g3_first", 0):
        setup_gemm3_late(k, k.g3); k.g3.prefetch(k, opt["g3_first"])
    for t in range(2):
        for b in range(4):
            for h in range(2): k(f"v_pk_mul_f32 {vr(A(b,t)+2*h,2)}, {vr(A(b,t)+2*h,2)}, {vr(V_C+4*b+2*h,2)}")
    for j in range(16): k(f"v_accvgpr_write_b32 a{A_X1+j}, v{XT+4+j}")
    g3 = k.g3
    if not opt.get("g3_first", 0): setup_gemm3_late(k, g3)
    g3.prefetch(k, opt.get("g3_pre0", 14))
    ST = 48
    spin(k, [f"buffer_load_dwordx2 {vr(ST+t*8+j*2,2)}, v45, {sr(SRD_B,4)}, s91 offen offset:{t*128+j*256} sc1" for t in range(2) for j in range(4)],
         [ST + 2 * j + 1 for j in range(8)], XT)
    k.stamp("stat ready")
    for t in range(2):
        b = ST + t * 8
        k(f"v_add_f32 v{SU[t]}, v{b}, v{b+2}\nv_add_f32 v{TM[t]}, v{b+4}, v{b+6}\nv_add_f32 v{SU[t]}, v{SU[t]}, v{TM[t]}")
        k(f"v_add_f32 v{M2[t]}, v{b+1}, v{b+3}\nv_add_f32 v{TM[t]}, v{b+5}, v{b+7}\nv_add_f32 v{M2[t]}, v{M2[t]}, v{TM[t]}")
    allred2(SU)
    for t in range(2): k(f"v_mul_f32 v{SU[t]}, {-1.0/1024!r}, v{SU[t]}")
    for j in range(4):
        for t in range(2): k(f"v_fmamk_f32 v{ST+t*8+2*j}, v{ST+t*8+2*j}, {1.0/64!r}, v{SU[t]}")
        for t in range(2): k(f"v_mul_f32 v{ST+t*8+2*j}, v{ST+t*8+2*j}, v{ST+t*8+2*j}")
        for t in range(2): k(f"v_fmac_f32 v{M2[t]}, 0x42800000, v{ST+t*8+2*j}")
    allred2(M2)
    for t in range(2): k(f"v_mov_b32 v{TM[t]}, 0x3727c5ac\nv_fmac_f32 v{TM[t]}, {1.0/1024!r}, v{M2[t]}")
    for t in range(2): k(f"v_rsq_f32 v{NM[t]}, v{TM[t]}")
    k("s_nop 0")
    for t in range(2): k(f"v_mul_f32 v{NM[t]+1}, v{SU[t]}, v{NM[t]}")
    for t in range(2):
        YK = ST + t * 8
        for b in range(4):
            for h in range(2): k(f"v_pk_fma_f32 {vr(XT+2*h,2)}, {vr(V_C+4*b+2*h,2)}, {vr(NM[t],2)}, {vr(V_S+4*b+2*h,2)} op_sel:[0,1,0] op_sel_hi:[1,1,1]")
            for h in range(2): k(f"v_pk_fma_f32 {vr(XT+2*h,2)}, {vr(A(b,t)+2*h,2)}, {vr(NM[t],2)}, {vr(XT+2*h,2)} op_sel_hi:[1,0,1]")
            k(f"v_cvt_pk_bf16_f32 v{YK+2*b}, v{XT}, v{XT+1}\nv_cvt_pk_bf16_f32 v{YK+2*b+1}, v{XT+2}, v{XT+3}")
        for s_ in range(2): k(f"buffer_store_dwordx4 {vr(YK+4*s_,4)}, v{L16}, {sr(SRD_A,4)}, s{88+t} offen offset:{s_*1024} sc1")
    publish(k, 84, 40)
    k.stamp("y published")
    g3.prefetch(k, opt.get("g3_pre", 0))
    return g3

def phase_gemm3(k, c, opt):
    LANE, L16, VT = c.LANE, c.L16, c.VT
    NB, TB = 14, 4
    srd(k, SRD_T, P_WS, S * D * 2, WS_Y)
    srd(k, SRD_C, P_WS, S * F * 2, WS_HH)
    k(f"v_and_b32 v{VT}, 31, v{LANE}\nv_lshlrev_b32 v{VT}, {FS}, v{VT}")
    k(f"s_lshl_b32 s84, s{S_RB3}, 2\ns_add_u32 s84, s84, s{S_WAVE}")
    k(f"s_lshl_b32 s85, s84, {FS+5}\ns_add_u32 s85, s85, {F_Y}")
    staged_wait(k, c, opt.get("g3_T", 3), VT, 85, VT + 1, one_prod, dup16=True)
    k.stamp("y ready")
    p = Txt()
    SO = 8
    p(f"s_mul_i32 s{SO}, s84, {448*1024}\ns_mul_i32 s92, s{S_FT}, 3584\ns_add_u32 s{SO}, s{SO}, s92")
    for t in range(1, 4): p(f"s_add_u32 s{SO+t}, s{SO}, {t*112*1024}")
    p(f"s_lshl_b32 s93, s84, {FS+5}\ns_lshl_b32 s94, s{S_FT}, {FS}\ns_add_u32 s93, s93, s94\ns_add_u32 s94, s93, {F_HB}\ns_add_u32 s93, s93, {F_HH}")
    p(f"s_mov_b32 s12, {-LOG2E!r}\ns_mov_b32 s13, {-LOG2E!r}")
    SB = 241
    p(f"v_lshrrev_b32 v{SB}, 1, v{L16}")
    c.pre_loop_txt = p.L
    if opt.get("cpf", 1):
        for st_ in opt.get("cp3", [6, 22]): c.late.setdefault(st_, []).extend(code_prefetch_txt(k.name, L16, 254, 80, junk="v240"))
    if opt.get("w2touch", 1):
        ws_ = opt.get("w2steps", [16]); per = 56 // len(ws_)
        for j, st_ in enumerate(ws_):
            c.late.setdefault(st_, []).extend([f"s_lshl_b32 s80, s2, 2", f"s_add_u32 s80, s80, s{S_WAVE}", "s_mul_i32 s80, s80, 7168", f"s_add_u32 s80, s80, {j*per*128}",
                      f"v_min_u32 v253, {per-1}, v{LANE}", "v_lshlrev_b32 v253, 7, v253", "v_add_u32 v253, s80, v253",
                      f"global_load_dword v240, v253, s[{P_W2}:{P_W2+1}]"])
    for j, st_ in enumerate(opt.get("w2l2", [27, 28])):
        c.late.setdefault(st_, []).extend([
            f"s_lshl_b32 s80, s{S_IDX}, 2", f"s_add_u32 s80, s80, s{S_WAVE}", "s_mul_i32 s80, s80, 14", f"s_add_u32 s80, s80, {7*j}",
            f"s_and_b32 s81, s{S_XCD}, 1", "s_mul_i32 s81, s81, 1792", "s_add_u32 s80, s80, s81", "s_lshl_b32 s80, s80, 11",
            f"s_lshr_b32 s81, s{S_XCD}, 2", "s_lshl_b32 s81, s81, 10", "s_add_u32 s80, s80, s81",
            f"v_min_u32 v253, 55, v{LANE}", "v_lshrrev_b32 v254, 3, v253", "v_lshlrev_b32 v254, 11, v254", "v_and_b32 v253, 7, v253", "v_lshl_add_u32 v253, v253, 7, v254",
            "v_add_u32 v253, s80, v253", f"global_load_dword v240, v253, s[{P_W2}:{P_W2+1}]"])
    t4 = Txt()
    g4 = setup_gemm4p(t4, opt, 242)
    half = len(t4.L) // 2
    c.late[19] = t4.L[:half]; c.late[20] = t4.L[half:]
    pf = g4.prefetch_txt(4); c.late[29] = pf
    pf = g4.prefetch_txt(4); c.late[30] = pf
    c.late.setdefault(31, []).extend(g4.tabtxt)
    def G(s, t): return ((2 * s) * TB + t) * 4
    def Uu(s, t): return ((2 * s + 1) * TB + t) * 4
    def act(k, slots, t, scalar=False):
        if scalar:
            for s in slots:
                for r in range(4):
                    k(f"v_mul_f32 v{Uu(s,t)+r}, v{G(s,t)+r}, v{Uu(s,t)+r}")
                    k(f"v_mul_f32 v{G(s,t)+r}, s12, v{G(s,t)+r}")
            rs = [(s, r) for s in slots for r in range(4)]
            for i, (s, r) in enumerate(rs): k(f"v_exp_f32 v{G(s,t)+r}, v{G(s,t)+r}")
            for i, (s, r) in enumerate(rs): k(f"v_add_f32 v{G(s,t)+r}, 1.0, v{G(s,t)+r}")
            for i, (s, r) in enumerate(rs): k(f"v_rcp_f32 v{G(s,t)+r}, v{G(s,t)+r}")
            for i, (s, r) in enumerate(rs): k(f"v_mul_f32 v{Uu(s,t)+r}, v{Uu(s,t)+r}, v{G(s,t)+r}")
            return
        for s in slots:
            for h in range(2):
                k(f"v_pk_mul_f32 {vr(Uu(s,t)+2*h,2)}, {vr(G(s,t)+2*h,2)}, {vr(Uu(s,t)+2*h,2)}")
                k(f"v_pk_mul_f32 {vr(G(s,t)+2*h,2)}, {vr(G(s,t)+2*h,2)}, s[12:13]")
        for s in slots:
            for r in range(4): k(f"v_exp_f32 v{G(s,t)+r}, v{G(s,t)+r}")
        for s in slots:
            for h in range(2): k(f"v_pk_add_f32 {vr(G(s,t)+2*h,2)}, {vr(G(s,t)+2*h,2)}, 1.0 op_sel_hi:[1,0]")
        for s in slots:
            for r in range(4): k(f"v_rcp_f32 v{G(s,t)+r}, v{G(s,t)+r}")
        for s in slots:
            for h in range(2): k(f"v_pk_mul_f32 {vr(Uu(s,t)+2*h,2)}, {vr(Uu(s,t)+2*h,2)}, {vr(G(s,t)+2*h,2)}")
    def pair(k, pr, t, scalar=False):
        s0, s1 = 2 * pr, 2 * pr + 1
        act(k, [s0, s1], t, scalar)
        d = G(s0, t)
        k(f"v_cvt_pk_bf16_f32 v{d}, v{Uu(s0,t)}, v{Uu(s0,t)+1}\nv_cvt_pk_bf16_f32 v{d+1}, v{Uu(s0,t)+2}, v{Uu(s0,t)+3}")
        k(f"v_cvt_pk_bf16_f32 v{d+2}, v{Uu(s1,t)}, v{Uu(s1,t)+1}\nv_cvt_pk_bf16_f32 v{d+3}, v{Uu(s1,t)+2}, v{Uu(s1,t)+3}")
        k(f"buffer_store_dwordx4 {vr(d,4)}, v{L16}, {sr(SRD_C,4)}, s{SO+t} offen offset:{pr*1024} sc1")
        if opt.get("dbl", 0): k(f"buffer_store_dwordx4 {vr(d,4)}, v{L16}, {sr(SRD_C,4)}, s{SO+t} offen offset:{pr*1024}")
    ea = Txt(); eb = Txt()
    nin = opt.get("g3_nin", 8) if c.TL else 0
    for i, (pr, t) in enumerate([(pr, t) for pr in range(2) for t in range(TB)]):
        if i < nin: pair(ea, pr, t, opt.get("g3_scalar", 0))
        else: pair(eb, pr, t)
    if c.TL:
        nst = opt.get("g3_east", c.TL - 1)
        per = -(-len(ea.L) // nst)
        c.step_extra = lambda st: ea.L[(st - 32) * per:(st - 31) * per] if st >= 32 else []
    c.run(k)
    k.stamp("g3 loop done")
    if not c.TL: k("s_nop 7")
    k("s_barrier")
    mkE = len(k.L)
    for x in eb.L: k(x)
    grp = []
    for j in range(opt.get("g4_pa", 0)):
        t_ = g4.prefetch_txt(1); grp.append(t_[:-1] + ["s_nop 0", t_[-1]])
    sprinkle(k, mkE, grp)
    def single(k, t):
        act(k, [6], t)
        d = G(6, t)
        k(f"v_cvt_pk_bf16_f32 v{d}, v{Uu(6,t)}, v{Uu(6,t)+1}\nv_cvt_pk_bf16_f32 v{d+1}, v{Uu(6,t)+2}, v{Uu(6,t)+3}")
        k(f"buffer_store_dwordx2 {vr(d,2)}, v{SB}, {sr(SRD_C,4)}, s{SO+t} offen offset:3072 sc1")
    mkA = len(k.L)
    na = opt.get("g3_pubA", 2)
    g4.binl = None
    if opt.get("binl", 0):
        nb0 = opt.get("binl0", 1)
        bt = Txt()
        jobs = [(pair, (2, t)) for t in range(TB)] + [(single, (t,)) for t in range(TB)]
        g4.mkA = mkA
        for f_, a_ in jobs[:nb0]: f_(k, *a_)
        for f_, a_ in jobs[nb0:]: f_(bt, *a_)
        g4.binl = bt.L
    else:
        for t in range(na): pair(k, 2, t)
        publish(k, 93, 252, mkA)
        k.stamp("hA published")
        mark3 = len(k.L)
        for t in range(na, TB): pair(k, 2, t)
        grp = []
        for j in range(opt.get("g4_pb", 8)):
            t_ = g4.prefetch_txt(1); grp.append(t_[:-1] + ["s_nop 0", t_[-1]])
        sprinkle(k, mark3, grp)
        for t in range(TB): single(k, t)
    k.stamp("hh stored")
    return g4

def phase_gemm4(k, c, opt):
    LANE, L16 = c.LANE, c.L16
    VT = 40
    srd(k, SRD_T, P_WS, S * F * 2, WS_HH)
    srd(k, SRD_A, P_OUT, S * D * 2)
    k(f"v_and_b32 v{VT}, 31, v{LANE}\nv_lshlrev_b32 v{VT}, 2, v{VT}")
    k(f"s_lshl_b32 s84, s{S_RB2}, 1\ns_lshr_b32 s85, s{S_WAVE}, 1\ns_add_u32 s84, s84, s85\ns_lshl_b32 s84, s84, {FS+5}\ns_add_u32 s84, s84, {F_HH}")
    wait_flags(k, [(VT, 84, 1)], VT + 1)
    k.stamp("hh ready")
    V_G, V_GA, V_XA, V_X = 64, 44, 45, 48
    p = Txt()
    p(f"v_lshrrev_b32 v{VT}, 4, v{LANE}\nv_lshlrev_b32 v{V_GA}, 4, v{VT}\nv_add_u32 v{V_GA}, {L_MV}, v{V_GA}")
    p(f"v_and_b32 v{VT+1}, 15, v{LANE}\nv_lshlrev_b32 v{VT+1}, 11, v{VT+1}")
    p(f"v_and_b32 v{VT+2}, 1, v{VT}\nv_lshl_add_u32 v{VT+1}, v{VT+2}, 5, v{VT+1}")
    p(f"v_lshrrev_b32 v{VT+2}, 1, v{VT}\nv_lshl_add_u32 v{V_XA}, v{VT+2}, 4, v{VT+1}")
    p(f"s_lshl_b32 s86, s{S_RB2}, 3\ns_lshl_b32 s87, s{S_WAVE}, 1\ns_add_u32 s86, s86, s87\ns_lshl_b32 s86, s86, 15\ns_lshl_b32 s87, s{S_NT}, 7\ns_add_u32 s86, s86, s87\ns_add_u32 s87, s86, 32768")
    for j in range(16): p(f"v_accvgpr_read_b32 v{V_X+j}, a{A_X1+j}")
    c.pre_loop_txt = p.L
    c.last_reads = [f"ds_read_b128 {vr(V_G+4*b,4)}, v{V_GA} offset:{768+b*64}" for b in range(4)]
    c.run(k)
    k.stamp("g4 loop done")
    k("s_waitcnt lgkmcnt(0)\ns_nop 7")
    A = lambda b, t: (b * 2 + t) * 4
    XT = 96
    for t in range(2):
        for b in range(4):
            xr = V_X + (t * 4 + b) * 2
            for h in range(2): k(f"v_lshlrev_b32 v{XT+2*h}, 16, v{xr+h}\nv_and_b32 v{XT+2*h+1}, 0xffff0000, v{xr+h}")
            for h in range(2): k(f"v_pk_fma_f32 {vr(A(b,t)+2*h,2)}, {vr(A(b,t)+2*h,2)}, {vr(V_G+4*b+2*h,2)}, {vr(XT+2*h,2)}")
        PK = XT + 4 + t * 8
        for b in range(4): k(f"v_cvt_pk_bf16_f32 v{PK+2*b}, v{A(b,t)}, v{A(b,t)+1}\nv_cvt_pk_bf16_f32 v{PK+2*b+1}, v{A(b,t)+2}, v{A(b,t)+3}")
        k("s_nop 1")
        for s_ in range(2): k(f"v_permlane16_swap_b32 v{PK+4*s_}, v{PK+4*s_+2}\nv_permlane16_swap_b32 v{PK+4*s_+1}, v{PK+4*s_+3}")
        for s_ in range(2): k(f"buffer_store_dwordx4 {vr(PK+4*s_,4)}, v{V_XA}, {sr(SRD_A,4)}, s{86+t} offen offset:{s_*64}")

def build_mega(instr=False, opt=None, name="mega_kernel"):
    opt = opt or {}
    k = Mega(name, 256, 256, LDS_TOTAL, vgpr=256, agpr=256, sgpr=102)
    k.instr = instr; k.names = []; k.only = opt.get("only")
    end = k.label("end")
    far = k.label("go")
    if opt.get("diag2") is not None: k("s_memrealtime s[72:73]")
    k(f"s_cmp_lt_u32 s2, 256\ns_cbranch_scc1 {far}\ns_endpgm\n{far}:")
    if opt.get("fused", 1):
        code_prefetch_setup(k, name)
        k("v_and_b32 v104, 63, v0\nv_lshlrev_b32 v105, 4, v104\nv_lshlrev_b32 v254, 5, v0")
        k("global_load_dword a232, v254, s[100:101]")
        k("s_load_dwordx2 s[96:97], s[0:1], 88")
        if opt.get("dbgout"): k("s_load_dwordx2 s[72:73], s[0:1], 88")
    k("s_load_dwordx8 s[4:11], s[0:1], 0")
    k("s_load_dwordx2 s[12:13], s[0:1], 64")
    k("s_load_dwordx2 s[14:15], s[0:1], 40")
    k("s_load_dwordx4 s[16:19], s[0:1], 48")
    k("s_load_dwordx2 s[98:99], s[0:1], 72")
    k("s_load_dwordx2 s[24:25], s[0:1], 80")
    k("s_load_dwordx2 s[28:29], s[0:1], 96")
    if instr: k(f"v_mov_b32 v{VSTAMP}, 0")
    ids(k)
    k(f"s_lshr_b32 s80, s{S_IDX}, 2\ns_add_u32 s{S_R4}, s80, s{S_IDX}\ns_and_b32 s81, s{S_IDX}, 3\ns_lshl_b32 s81, s81, 1\ns_add_u32 s{S_R8}, s80, s81")
    if opt.get("g3map", 0):
        k(f"s_bfe_u32 s{S_RB3}, s{S_XCD}, 0x10001\ns_lshl_b32 s{S_RB3}, s{S_RB3}, 2\ns_lshr_b32 s80, s{S_IDX}, 3\ns_add_u32 s{S_RB3}, s{S_RB3}, s80")
        k(f"s_and_b32 s{S_FT}, s{S_XCD}, 1\ns_lshl_b32 s{S_FT}, s{S_FT}, 4\ns_lshr_b32 s81, s{S_XCD}, 2\ns_lshl_b32 s81, s81, 3\ns_add_u32 s{S_FT}, s{S_FT}, s81\ns_and_b32 s81, s{S_IDX}, 7\ns_add_u32 s{S_FT}, s{S_FT}, s81")
        k(f"s_add_u32 s72, s80, s{S_IDX}\ns_lshl_b32 s80, s80, 1\ns_add_u32 s73, s80, s{S_IDX}")
    else:
        k(f"s_and_b32 s80, s{S_IDX}, 3\ns_lshl_b32 s{S_FT}, s{S_XCD}, 2\ns_add_u32 s{S_FT}, s{S_FT}, s80\ns_lshr_b32 s{S_RB3}, s{S_IDX}, 2")
    if opt.get("fused", 1):
        for x in code_prefetch_txt(name, 105, 254, 80): k(x)
    k.stamp("start")
    g1 = (phase_front_fused if opt.get("fused", 1) else phase_front)(k, opt, name)
    g2 = (phase_gemm1s if opt.get('split', 1) else phase_gemm1)(k, g1, opt)
    g3 = phase_gemm2(k, g2, opt)
    g4 = phase_gemm3(k, g3, opt)
    (phase_gemm4p if opt.get('g4_pair', 1) else phase_gemm4)(k, g4, opt)
    if opt.get("diag2") is not None:
        lp, sk = k.label("dg"), k.label("dgs")
        if opt["diag2"] >= 0: k(f"s_cmp_lg_u32 s2, {opt['diag2']}\ns_cbranch_scc1 {sk}")
        k(f"{lp}:\ns_memrealtime s[0:1]\ns_waitcnt lgkmcnt(0)\ns_sub_u32 s87, s0, s72\ns_cmp_lt_u32 s87, 10000\ns_cbranch_scc1 {lp}\n{sk}:")
    elif opt.get("diag"):
        a_, b_ = opt["diag"]
        k(f"v_readlane_b32 s84, v{VSTAMP}, 0\nv_readlane_b32 s85, v{VSTAMP}, {a_}\nv_readlane_b32 s86, v{VSTAMP}, {b_}\ns_nop 3")
        k("s_sub_u32 s86, s86, s85\ns_add_u32 s86, s86, 10000")
        lp = k.label("dg")
        k(f"{lp}:\ns_memrealtime s[0:1]\ns_waitcnt lgkmcnt(0)\ns_sub_u32 s87, s0, s84\ns_cmp_lt_u32 s87, s86\ns_cbranch_scc1 {lp}")
    elif instr:
        k("s_waitcnt vmcnt(0)")
        k.stamp("end")
        k(f"s_add_u32 s84, s{P_WS}, {WS_DBG}\ns_addc_u32 s85, s{P_WS+1}, 0\ns_mov_b32 s86, 0x100000\ns_mov_b32 s87, 0x20000")
        k(f"s_lshl_b32 s88, s2, 2\ns_add_u32 s88, s88, s{S_WAVE}\ns_lshl_b32 s88, s88, 8")
        lane_id(k, 1)
        k("v_lshlrev_b32 v1, 2, v1")
        k(f"buffer_store_dword v{VSTAMP}, v1, s[84:87], s88 offen")
        if opt.get("dbgout"):
            sk = k.label("nodbg")
            k(f"s_lshl_b32 s88, s2, 2\ns_add_u32 s88, s88, s{S_WAVE}\ns_cmp_lg_u32 s88, {opt['dbgout']*4}\ns_cbranch_scc1 {sk}")
            k("s_mov_b32 s84, s72\ns_mov_b32 s85, s73\ns_mov_b32 s86, 64\ns_mov_b32 s87, 0x20000")
            k(f"v_readlane_b32 s89, v{VSTAMP}, 0\ns_nop 3\nv_subrev_u32 v2, s89, v{VSTAMP}")
            k("buffer_store_dword v2, v1, s[84:87], 0 offen offset:12")
            k(f"{sk}:")
    k("s_endpgm")
    k(f"{name}_end:")
    return k
```

```python
from asmlib import *
MF = "v_mfma_f32_16x16x32_bf16"

class Item:
    __slots__ = ("kind", "txt", "key", "lgkm")
    def __init__(self, kind, txt=None, key=None, lgkm=None):
        self.kind = kind; self.txt = txt; self.key = key; self.lgkm = lgkm
def T(txt): return Item("txt", txt)
def VM(txt, key): return Item("vm", txt, key)
def WVM(keys, lgkm=None): return Item("wvm", None, keys, lgkm)
def is_vm(x): return x.startswith("buffer_") or x.startswith("global_")

class Txt:
    def __init__(self): self.L = []
    def __call__(self, s): self.L += [x.strip() for x in s.split("\n") if x.strip()]

def win_mask(sizes):
    out, b = [], 0
    for w in sizes:
        out += [(b, w - 1)] * w; b += w
    return out

class Sched:
    pro_units = 0; ramp_rate = 99; read_margin = 8; lookahead = 99
    step_extra = None; late = None; last_reads = (); pre_loop_txt = (); drop = ()
    pre_dma = 0
    fake32 = 0
    tab = None; tab0 = 5
    phase = None
    gate_min = {}
    w_off = None; t_off = None; sub_stride = 1024
    first_flag = ''
    wreg = staticmethod(ar); wbase = 0
    pub0 = ()
    fine = 0
    bar_frac = 0.3
    stamp_every = 0; tag = ''
    def __init__(self):
        self.steps = []; self.stage_units = {}; self.stage_slot = {}; self.tok_units = {}; self.tok_slot = {}
        self.late = {}
    lead_D = None
    s_start = None
    gates = ()
    tile_of = staticmethod(lambda key: key)
    def lead_init(self, k, s_r, s_tmp):
        D = self.lead_D
        for m in range(4):
            d = self.s_dl + m
            k(f"s_sub_u32 s{s_tmp}, {m}, s{s_r}\ns_and_b32 s{s_tmp}, s{s_tmp}, 3")
            k(f"s_cmp_eq_u32 s{s_tmp}, 1\ns_cselect_b32 s{d}, {2+D}, {1+D}")
            k(f"s_cmp_eq_u32 s{s_tmp}, 0\ns_cselect_b32 s{d}, 0, s{d}")
    def pos_txt(self, s_dst, kt):
        KT = self.KT
        pow2 = KT & (KT - 1) == 0
        if self.lead_D is not None:
            assert self.s_start is None
            if kt < 2 + self.lead_D:
                return [f"s_sub_u32 s{s_dst}, {kt + KT}, s{self.s_dl + kt % 4}", f"s_sub_u32 s{self.s_ptmp}, s{s_dst}, {KT}", f"s_min_u32 s{s_dst}, s{s_dst}, s{self.s_ptmp}"]
            return [f"s_sub_u32 s{s_dst}, {kt}, s{self.s_dl + kt % 4}"]
        base, mask = self.wins[kt]
        if self.phase is not None:
            s_phi, s_r = self.phase
            t_ = self.s_ptmp
            o = [f"s_add_u32 s{s_dst}, s{s_phi}, {kt - base}", f"s_add_u32 s{t_}, s{s_dst}, s{s_r}", f"s_and_b32 s{t_}, s{t_}, 3",
                 f"s_and_b32 s{s_dst}, s{s_dst}, {mask & ~3}", f"s_or_b32 s{s_dst}, s{s_dst}, s{t_}"]
            if base: o.append(f"s_add_u32 s{s_dst}, s{s_dst}, {base}")
            return o
        if mask == 0:
            if self.s_start is None: return [f"s_mov_b32 s{s_dst}, {base}"]
            o = [f"s_add_u32 s{s_dst}, s{self.s_start}, {base}"]
        else:
            o = [f"s_add_u32 s{s_dst}, s{self.s_rot if mask > 3 else self.s_rot2}, {kt - base}", f"s_and_b32 s{s_dst}, s{s_dst}, {mask}"]
            if base: o.append(f"s_add_u32 s{s_dst}, s{s_dst}, {base}")
            if self.s_start is None: return o
            o.append(f"s_add_u32 s{s_dst}, s{s_dst}, s{self.s_start}")
        if pow2: o.append(f"s_and_b32 s{s_dst}, s{s_dst}, {KT-1}")
        else: o += [f"s_sub_u32 s{self.s_ptmp}, s{s_dst}, {KT}", f"s_min_u32 s{s_dst}, s{s_dst}, s{self.s_ptmp}"]
        return o
    def pos_items(self, s_dst, kt, stride):
        return [T(x) for x in self.pos_txt(s_dst, kt)] + [T(f"s_mul_i32 s{s_dst}, s{s_dst}, {stride}")]
    def _dma_list(self):
        return [(s, i) for s in sorted(self.stage_units) for i in range(len(self.stage_units[s]))]
    def prefetch(self, k, n):
        for s, i in self._dma_list()[self.pre_dma:self.pre_dma + n]:
            for x in self.stage_units[s][i]:
                if x.kind == "vm": k("s_nop 0")
                k(x.txt)
        self.pre_dma += n
    def prefetch_txt(self, n):
        t = Txt(); self.prefetch(t, n); return [x for x in t.L if x != "s_nop 0"]

    def run(self, k):
        c = self
        N = len(c.steps)
        sfirst, slast, tfirst, tlast = {}, {}, {}, {}
        for i, st in enumerate(c.steps):
            for s in st["stages"]: sfirst.setdefault(s, i); slast[s] = i
            for t in st["toks"]: tfirst.setdefault(t, i); tlast[t] = i
        bars = {}
        for s, f in sfirst.items():
            if s not in c.pub0: bars.setdefault(f - 1, []).append(s)
        barsteps = sorted(bars)
        units = {"dma": [], "tok": []}
        prev = {}
        skip = c.pre_dma
        for s in sorted(c.stage_units):
            sl = c.stage_slot[s]
            e = -1 if sl not in prev else min(b for b in barsteps if b >= slast[prev[sl]])
            prev[sl] = s
            for i, u in enumerate(c.stage_units[s]):
                if skip: skip -= 1; assert e == -1; continue
                units["dma"].append((sfirst[s] - 1, e, "dma", u))
        prev = {}
        for key in sorted(c.tok_units, key=lambda q: (tfirst[q], q)):
            sl = c.tok_slot[key]
            e = -1 if sl not in prev else tlast[prev[sl]] + 1
            e = max(e, tfirst[key] - c.lookahead, -1)
            for gt, gm in c.gate_min.items():
                if c.tile_of(key) >= gt: e = max(e, gm)
            prev[sl] = key
            for u in c.tok_units[key]: units["tok"].append((tfirst[key], e, "tok", u, c.tile_of(key)))
        issue = {}
        pos, cnt, cap = -1, 0, c.pro_units
        rate = c.ramp_rate if callable(c.ramp_rate) else (lambda s: c.ramp_rate)
        while units["dma"] or units["tok"]:
            cand = [q[0] for q in units.values() if q and q[0][1] <= pos]
            if cand and cnt < cap:
                u = min(cand, key=lambda u: (u[0], 0 if u[2] == "dma" else 1))
                issue.setdefault(pos, []).append(u); units[u[2]].pop(0); cnt += 1
                assert pos < u[0] or pos == -1, ("late unit", u[:3], pos)
            else:
                pos += 1; cnt = 0; cap = rate(pos)
        gate_at = {}
        for gt, gp, gi in c.gates:
            gs_ = min(st for st, us in issue.items() if any(u[2] == "tok" and u[4] >= gt for u in us))
            assert gs_ >= 1 and gs_ not in gate_at, gs_
            gate_at[gs_] = (gp, gi)
            if gt in c.gate_min: assert gs_ >= c.gate_min[gt], (gt, gs_)
        def read_items(step):
            out = []
            for j, (va, o0, o1, _) in enumerate(c.steps[step]["frags"]):
                for r, off in enumerate((o0, o1)):
                    assert 0 <= off < 65536, off
                    out.append(Item("ds", f"ds_read_b64_tr_b16 {c.wreg(c.wbase+c.wf(step % 2, j)+2*r,2)}, v{va} offset:{off}", (step, j)))
            return out
        def bar(step): return [WVM([("dma", s) for s in bars[step]], lgkm=(0 if c.fine else None)), T("s_barrier")]
        def conv(x):
            if isinstance(x, Item): return x
            return VM(x, ("extra", 0)) if is_vm(x) else T(x)
        pro = []
        for u in issue.get(-1, []):
            for x in u[3]:
                if x.kind == "vm" and x.txt.endswith("lds"): pro.append(T("s_nop 0"))
                pro.append(x)
        pro += [conv(x) for x in c.pre_loop_txt]
        pro += (bar(-1) if -1 in bars else []) + read_items(0)
        touched = set(c.acc_init) if hasattr(c, "acc_init") else set()
        def make_step(step):
            st = c.steps[step]
            newt = [("tok", t) for t in st["toks"] if tfirst[t] == step]
            out = [WVM(newt, lgkm=0)] if not c.fine else ([WVM(newt)] if newt else [])
            mf = []
            pre = {}
            nf = len(st["frags"])
            for j, (_, _, _, ms) in enumerate(st["frags"]):
                if c.fine and j % c.fine == 0: pre[len(mf)] = Item("wds", None, (step, min(nf - 1, j + c.fine - 1)))
                for acc, tr in (ms if j % 2 == 0 else ms[::-1]):
                    cin = acc if acc in touched else "0"
                    touched.add(acc)
                    mf.append(T(f"{MF} {acc}, {c.wreg(c.wbase+c.wf(step%2, j),4)}, {ar(tr,4)}, {cin}"))
            if c.fake32:
                import re
                m2 = []
                for i in range(0, len(mf), 2):
                    o = mf[i].txt.split(", ")
                    b0 = int(re.search(r"v\[(\d+):", o[0]).group(1)) // 16 * 16
                    m2.append(T(f"v_mfma_f32_32x32x16_bf16 v[{b0}:{b0+15}], {o[1]}, {o[2]}, " + ("0" if step == 0 else f"v[{b0}:{b0+15}]")))
                mf = m2
            n = len(mf)
            gaps = [[] for _ in range(n)]
            g0 = 0
            if step in bars:
                gb = int(n * c.bar_frac) if c.fine else 0
                gaps[gb] += bar(step); g0 = gb + 1
            us = issue.get(step, [])
            a = [u for u in us if u[2] == "dma"]; b_ = [u for u in us if u[2] == "tok"]
            if us and min(u[0] for u in us) > step + 1:
                seq = []
                while a or b_:
                    if b_: seq.append(b_.pop(0))
                    if a: seq.append(a.pop(0))
            else: seq = us
            B = []
            if step in gate_at: B += [conv(x) for x in gate_at[step][1]]
            for u in seq: B += u[3]
            B += [conv(x) for x in c.late.get(step, [])]
            if step + 1 in gate_at: B = B[:len(gate_at[step][1]) if step in gate_at else 0] + [conv(x) for x in gate_at[step + 1][0]] + B[len(gate_at[step][1]) if step in gate_at else 0:]
            A = read_items(step + 1) if step + 1 < N else [T(x) for x in c.last_reads]
            X = [conv(x) for x in (c.step_extra(step) if c.step_extra else [])]
            want = []
            ra = max(1, n - (0 if c.fine else c.read_margin // (2 if c.fake32 else 1)) - g0)
            for i, x in enumerate(A): want.append((g0 + i * ra / len(A), 0, i, x))
            for i, x in enumerate(B): want.append((g0 + (i + 0.5) * (n - g0) / len(B), 1, i, x))
            for i, x in enumerate(X): want.append((g0 + (i + 0.25) * (n - g0) / len(X), 2, i, x))
            want.sort(key=lambda w: (w[0], w[1], w[2]))
            cap = max(1, -(-len(want) // (n - g0)))
            g = g0
            for pos_, _, _, x in want:
                g = max(g, min(n - 1, int(pos_)))
                while g < n - 1 and len(gaps[g]) >= cap: g += 1
                gaps[g].append(x)
            for i in range(n):
                if i in pre: out.append(pre[i])
                out.append(mf[i])
                prev = None
                for x in gaps[i]:
                    if x.kind == "vm" and x.txt.endswith("lds") and prev is not None and prev.txt and " m0," in prev.txt:
                        out.append(T("s_nop 0"))
                    out.append(x); prev = x
            return out
        issued = []
        ds = []
        def emit(items):
            for x in items:
                if x.kind == "wds":
                    idx = [i for i, kk in enumerate(ds) if kk == x.key]
                    if idx:
                        n = min(15, len(ds) - 1 - idx[-1])
                        k(f"s_waitcnt lgkmcnt({n})")
                        del ds[:len(ds) - n]
                elif x.kind == "wvm":
                    if x.lgkm == 0: ds.clear()
                    n = 63
                    for key in x.key:
                        idx = [i for i, kk in enumerate(issued) if kk == key]
                        n = min(n, len(issued) - 1 - idx[-1] if idx else len(issued))
                    parts = ([f"vmcnt({n})"] if x.key else []) + ([f"lgkmcnt({x.lgkm})"] if x.lgkm is not None else [])
                    k("s_waitcnt " + " ".join(parts))
                else:
                    if x.kind == "vm": issued.append(x.key)
                    if x.kind == "ds": ds.append(x.key)
                    if any(d in x.txt for d in c.drop): continue
                    k(x.txt)
        emit(pro)
        for s in range(N):
            if c.stamp_every and s % c.stamp_every == 0: k.stamp(f"{c.tag} step {s}")
            emit(make_step(s))

def std_sched(c):
    NB, TB, KS, SPK, KT, NS, R = c.NB, c.TB, c.KS, c.SPK, c.KT, c.NS, c.R
    for kt in range(KT):
        us = []
        sw = c.s_kw + kt % 2
        for i, d_ in enumerate(c.dma):
            vo, loff, goff = d_[:3]
            usetab = c.tab is not None and kt >= c.tab0
            g = (c.w_off(sw, kt) if c.w_off else c.pos_items(sw, kt, c.w_stride)) if (i == 0 and not usetab) else []
            if len(d_) < 4 or d_[3]: g += [T(f"s_add_u32 m0, s{c.s_wbase}, {c.slot_addr(kt % NS) + loff - goff}")]
            g += [VM(f"buffer_load_dwordx4 v{vo}, {sr(c.srd_w,4)}, s{sw} offen" + (f" offset:{goff}" if goff else "") + " lds", ("dma", kt))]
            if i == 0 and c.tab is not None and c.tab0 <= kt + 1 < KT: g.append(T(f"v_readlane_b32 s{c.s_kw + (kt + 1) % 2}, v{c.tab[0]}, {kt + 1}"))
            if len(d_) == 4 and not d_[3]: us[-1] = us[-1] + g
            else: us.append(g)
        c.stage_units[kt] = us; c.stage_slot[kt] = kt % NS
        for sp in range(SPK):
            step = kt * SPK + sp
            us = []
            st_ = c.s_kt + kt % 2
            for ks in range(KS):
                for t in range(TB):
                    first = sp == 0 and ks == 0 and t == 0
                    g = (c.t_off(st_, kt) if c.t_off else c.pos_items(st_, kt, SPK * KS * 1024)) if (first and not (c.tab is not None and kt >= c.tab0)) else []
                    g.append(VM(f"buffer_load_dwordx4 {ar(c.tf(step % R, ks, t),4)}, v{c.v_tok[t]}, {sr(c.srd_t,4)}, s{st_} offen offset:{(sp*KS+ks)*c.sub_stride} sc1", ("tok", step)))
                    if first and c.tab is not None and c.tab0 <= kt + 1 < KT: g.append(T(f"v_readlane_b32 s{c.s_kt + (kt + 1) % 2}, v{c.tab[1]}, {kt + 1}"))
                    us.append(g)
            c.tok_units[step] = us; c.tok_slot[step] = step % R
            frags = []
            for ks in range(KS):
                for b in range(NB):
                    va, o0 = c.rd(kt % NS, b, sp * KS + ks, 0); _, o1 = c.rd(kt % NS, b, sp * KS + ks, 1)
                    frags.append((va, o0, o1, [(c.acc(b, t), c.tf(step % R, ks, t)) for t in range(TB)]))
            c.steps.append(dict(frags=frags, stages=[kt], toks=[step]))
    c.wf = lambda buf, j: (buf * NB * KS + j) * 4
    c.tile_of = lambda key: key // SPK
```

```python
import sys
from asmlib import *
from gemm import *
from layout import *
LOG2E = 1.4426950408889634
P_X, P_WQKV, P_WPHI, P_WO, P_W1, P_W3, P_W2, P_OUT, P_WS = 4, 6, 8, 10, 14, 16, 18, 24, 28
P_DBG, S_MB, S_MO = 96, 77, 79
P_C, P_WMOD = 12, 98
S_WAVE, S_XCD, S_IDX = 3, 30, 31
SRD_W, SRD_T, SRD_A, SRD_B, SRD_C, SRD_D, SRD_F = 32, 36, 40, 44, 48, 52, 56
S_KW, S_KT, S_WB, S_ROT, S_TMP, S_ROT2 = 60, 62, 76, 77, 78, 79
S_RB1, S_HP, S_RB2, S_NT, S_RB3, S_FT = 26, 27, 26, 27, 22, 23
S_R8, S_R4 = 20, 21
VSTAMP = 255
L_WPH, L_UTC = 110592, 105472
L_UT3, L_MV, L_R2 = 114688, 128000, 129792
LDS_TOTAL = 163584

class Mega(Kernel):
    nst = 0
    only = None
    def stamp(self, name=""):
        if not self.instr: return
        if self.only is not None and not any(name.startswith(o) for o in self.only): return
        if self.only is None and name[:3] in ("kp ", "qp "): return
        self("s_waitcnt lgkmcnt(0)\ns_memrealtime s[0:1]\ns_waitcnt lgkmcnt(0)")
        self(f"v_writelane_b32 v{VSTAMP}, s0, {self.nst}")
        self("s_nop 3\ns_memtime s[0:1]\ns_waitcnt lgkmcnt(0)")
        self(f"v_writelane_b32 v{VSTAMP}, s0, {self.nst + 32}")
        self.names.append(name); self.nst += 1

def lane_id(k, v):
    k(f"v_mbcnt_lo_u32_b32 v{v}, -1, 0\nv_mbcnt_hi_u32_b32 v{v}, -1, v{v}")

def code_prefetch_setup(k, name, s_pc=100):
    lab = k.label("pc")
    k(f"s_getpc_b64 s[{s_pc}:{s_pc+1}]")
    k(f"{lab}:")
    k(f"s_sub_u32 s{s_pc}, s{s_pc}, {lab}-{name}\ns_subb_u32 s{s_pc+1}, s{s_pc+1}, 0")
def code_prefetch_txt(name, v_l16, vt, s_tmp, s_idx=S_IDX, s_wave=S_WAVE, s_pc=100, junk="a232"):
    return [f"s_lshl_b32 s{s_tmp}, s{s_idx}, 2", f"s_add_u32 s{s_tmp}, s{s_tmp}, s{s_wave}", f"s_lshl_b32 s{s_tmp}, s{s_tmp}, 10",
            f"v_add_u32 v{vt}, s{s_tmp}, v{v_l16}", f"v_min_u32 v{vt}, {name}_end-{name}-4, v{vt}",
            f"global_load_dword {junk}, v{vt}, s[{s_pc}:{s_pc+1}]"]

def count_vm(k, mark):
    return sum(1 for x in k.L[mark:] if is_vm(x))
def publish(k, s_off, vt, mark=None):
    k(f"v_mov_b32 v{vt}, 1\nv_mov_b32 v{vt+1}, 0")
    n = 0 if mark is None else count_vm(k, mark)
    assert n < 64
    k(f"s_waitcnt vmcnt({n})")
    k(f"buffer_store_dword v{vt}, v{vt+1}, {sr(SRD_F,4)}, s{s_off} offen sc1")

def spin(k, loads, regs, vt, s_cnt=96):
    top, ok = k.label("poll"), k.label("ok")
    k(f"s_mov_b32 s{s_cnt}, 0")
    k(f"{top}:")
    for x in loads: k(x)
    k("s_waitcnt vmcnt(0)")
    if len(regs) == 1: k(f"v_cmp_eq_u32 vcc, 0, v{regs[0]}")
    else:
        k(f"v_min_u32 v{vt}, v{regs[0]}, v{regs[1]}")
        for x in regs[2:]: k(f"v_min_u32 v{vt}, v{vt}, v{x}")
        k(f"v_cmp_eq_u32 vcc, 0, v{vt}")
    k(f"s_add_u32 s{s_cnt}, s{s_cnt}, 1")
    k(f"s_cmp_eq_u64 vcc, 0\ns_cbranch_scc1 {ok}")
    k(f"s_sleep {SLEEP}\ns_cmp_lt_u32 s{s_cnt}, 0x200000\ns_cbranch_scc1 {top}")
    k(f"{ok}:")

def wait_flags(k, polls, vt, s_cnt=96):
    top, ok = k.label("poll"), k.label("ok")
    k(f"s_mov_b32 s{s_cnt}, 0")
    k(f"{top}:")
    r = vt
    regs = []
    for va, so, ndw in polls:
        if ndw == 4: r = (r + 1) // 2 * 2
        k(f"buffer_load_dword{'x4' if ndw == 4 else ''} {vr(r,ndw)}, v{va}, {sr(SRD_F,4)}, s{so} offen sc1")
        regs += list(range(r, r + ndw)); r += ndw
    k("s_waitcnt vmcnt(0)")
    for x in regs[1:]: k(f"v_min_u32 v{regs[0]}, v{regs[0]}, v{x}")
    k(f"v_cmp_eq_u32 vcc, 0, v{regs[0]}")
    k(f"s_add_u32 s{s_cnt}, s{s_cnt}, 1")
    k(f"s_cmp_eq_u64 vcc, 0\ns_cbranch_scc1 {ok}")
    k(f"s_sleep {SLEEP}\ns_cmp_lt_u32 s{s_cnt}, 0x200000\ns_cbranch_scc1 {top}")
    k(f"{ok}:")

def staged_wait(k, c, T_, v_addr, s_off, vf, prod_of, dup16=False, skip_first=0, s_m=97, pub=None):
    ld = f"buffer_load_dword v{vf}, v{v_addr}, {sr(SRD_F,4)}, s{s_off} offen sc1"
    if T_ is None:
        spin(k, [ld], [vf], 0); return
    k(f"s_mov_b32 s{s_m}, 0")
    for kt in range(skip_first, T_):
        for x in c.pos_txt(80, kt): k(x)
        for x in prod_of(80, 81): k(x)
        k(f"s_or_b32 s{s_m}, s{s_m}, s81")
    if dup16: k(f"s_lshl_b32 s81, s{s_m}, 16\ns_or_b32 s{s_m}, s{s_m}, s81")
    top, ok = k.label("poll"), k.label("ok")
    if pub:
        mk = len(k.L); k(ld); publish(k, pub[0], pub[1], mk)
        k("s_waitcnt vmcnt(1)")
        k(f"v_cmp_eq_u32 vcc, 0, v{vf}\ns_nop 0")
        k(f"s_and_b32 s81, vcc_lo, s{s_m}\ns_cbranch_scc0 {ok}")
    k(f"s_mov_b32 s96, 0\n{top}:")
    k(ld)
    k("s_waitcnt vmcnt(0)")
    k(f"v_cmp_eq_u32 vcc, 0, v{vf}")
    k("s_add_u32 s96, s96, 1")
    k(f"s_and_b32 s81, vcc_lo, s{s_m}\ns_cbranch_scc0 {ok}")
    k(f"s_sleep {SLEEP}\ns_cmp_lt_u32 s96, 0x200000\ns_cbranch_scc1 {top}")
    k(f"{ok}:")
    add_gate(k, c, T_, ld, vf)
def add_gate(k, c, tile, ld, vf):
    m = Txt(); m.label = k.label
    okl = k.label("gok")
    m(f"v_cmp_eq_u32 vcc, 0, v{vf}\ns_cmp_eq_u64 vcc, 0\ns_cbranch_scc1 {okl}")
    spin(m, [ld], [vf], 0)
    m(f"{okl}:")
    c.gates = list(c.gates) + [(tile, [VM(ld, ("gate", tile))], [WVM([("gate", tile)]), T("\n".join(m.L))])]
one_prod = lambda sp, st: [f"s_lshl_b32 s{st}, 1, s{sp}"]

def allreduce_q(k, op, x, tmp):
    k(f"v_mov_b32 v{tmp}, v{x}\ns_nop 1")
    k(f"v_permlane32_swap_b32 v{x}, v{tmp}")
    k(f"s_nop 1\n{op} v{x}, v{x}, v{tmp}")
    k(f"v_mov_b32 v{tmp}, v{x}\ns_nop 1")
    k(f"v_permlane16_swap_b32 v{x}, v{tmp}")
    k(f"s_nop 1\n{op} v{x}, v{x}, v{tmp}")

def treduce4(k, op, A):
    a, b, c, d = A
    k("s_nop 1")
    k(f"v_permlane32_swap_b32 v{a}, v{b}\nv_permlane32_swap_b32 v{c}, v{d}")
    k("s_nop 1")
    k(f"{op} v{a}, v{a}, v{b}\n{op} v{c}, v{c}, v{d}")
    k("s_nop 1")
    k(f"v_permlane16_swap_b32 v{a}, v{c}")
    k("s_nop 1")
    k(f"{op} v{a}, v{a}, v{c}")
    k(f"v_mov_b32 v{c}, v{a}")
    k("s_nop 1")
    k(f"v_permlane16_swap_b32 v{a}, v{c}")
    k("s_nop 1")
    k(f"v_mov_b32 v{b}, v{a}\nv_mov_b32 v{d}, v{c}")
    k("s_nop 1")
    k(f"v_permlane32_swap_b32 v{a}, v{b}\nv_permlane32_swap_b32 v{c}, v{d}")
    k("s_nop 1")

def treduce4x2(k, ops, As):
    A, B = Txt(), Txt()
    treduce4(A, ops[0], As[0]); treduce4(B, ops[1], As[1])
    def split(L):
        out, cur = [], []
        for x in L:
            if x.startswith("s_nop"): out.append(cur); cur = []
            else: cur.append(x)
        out.append(cur); return out
    for a, b in zip(split(A.L), split(B.L)):
        for x in a + b: k(x)
        k("s_nop 0" if len(a) >= 1 else "s_nop 1")

def red8(k, x):
    for m in ("quad_perm:[1,0,3,2]", "quad_perm:[2,3,0,1]", "row_half_mirror"):
        k(f"s_nop 1\nv_add_f32_dpp v{x}, v{x}, v{x} {m} row_mask:0xf bank_mask:0xf")

def round_bf16(k, v):
    k(f"v_cvt_pk_bf16_f32 v{v}, v{v}, v{v}\nv_and_b32 v{v}, 0xffff0000, v{v}")

S_DLA, S_DLB, S_PTMP = 71, 6, 75
def order(c, k, opt, tag, default):
    o = opt.get(tag + "_ord", default)
    c.first_flag = opt.get(tag + "_ff", ""); c.fake32 = opt.get(tag + "_f32", 0)
    c.tag = tag; c.stamp_every = opt.get(tag + "_se", 0)
    c.fine = opt.get(tag + "_fine", opt.get("fine", 0)); c.bar_frac = opt.get("bar_frac", 0.3)
    c.s_rot, c.s_rot2 = S_R8, S_R4
    if o[0] == "lead":
        c.lead_D, c.s_dl = o[1], S_DLA
    else:
        c.wins = win_mask(o[1])
        if o[0] == "phase": c.phase = (S_RB3, S_IDX)
        elif o[2]:
            c.s_start = S_HP
            c.s_rot = c.s_rot2 = S_RB3
def common_gemm(c):
    c.srd_w, c.srd_t = SRD_W, SRD_T
    c.s_kw, c.s_kt, c.s_wbase, c.s_ptmp = S_KW, S_KT, S_WB, S_PTMP

def setup_gemm1(k, opt):
    c = Sched(); common_gemm(c)
    NS, R = opt.get("g1_NS", 4), opt.get("g1_R", 4)
    STAGE = 25344
    c.V_RD, c.V_DMA, c.V_TOK, c.LANE, c.L16, c.VT = 96, 98, 102, 104, 105, 106
    V_RD, V_DMA, V_TOK, LANE, L16, VT = c.V_RD, c.V_DMA, c.V_TOK, c.LANE, c.L16, 110
    k(f"v_lshlrev_b32 v{L16}, 4, v{LANE}")
    c.lead_D, c.s_dl = opt.get("D", 0), S_DLA
    if opt.get("uselead", 0): c.lead_init(k, S_R4, 81)
    c.lead_D = None
    order(c, k, opt, "g1", ["win", [8, 8], 0])
    k(f"s_lshr_b32 s80, s{S_WAVE}, 1\ns_and_b32 s81, s{S_WAVE}, 1")
    k(f"v_lshrrev_b32 v{VT+1}, 3, v{LANE}")
    k(f"v_and_b32 v{VT+2}, 4, v{VT+1}")
    k(f"v_bfe_u32 v{VT+3}, v{VT+1}, 1, 1\nv_or_b32 v{VT+2}, v{VT+2}, v{VT+3}")
    k(f"v_and_b32 v{VT+3}, 1, v{VT+1}\nv_lshl_or_b32 v{VT+2}, v{VT+3}, 1, v{VT+2}")
    k(f"v_mul_u32_u24 v{VT+2}, {4*6144}, v{VT+2}")
    k(f"v_and_b32 v{VT+3}, 7, v{LANE}\nv_lshl_add_u32 v{VT+2}, v{VT+3}, 4, v{VT+2}")
    k("s_lshl_b32 s82, s80, 5\ns_lshl_b32 s83, s81, 1\ns_add_u32 s82, s82, s83\ns_mul_i32 s82, s82, 6144")
    k(f"s_lshl_b32 s83, s{S_HP}, 7\ns_add_u32 s82, s82, s83")
    k(f"v_add_u32 v{V_DMA}, s82, v{VT+2}")
    k(f"v_add_u32 v{V_DMA+1}, 6144, v{V_DMA}\nv_add_u32 v{V_DMA+2}, 4096, v{V_DMA}\nv_add_u32 v{V_DMA+3}, {6144+4096}, v{V_DMA}")
    k(f"v_bfe_u32 v{VT+1}, v{LANE}, 2, 2\nv_mul_u32_u24 v{VT+1}, 1056, v{VT+1}")
    k(f"v_lshrrev_b32 v{VT+2}, 5, v{LANE}\nv_lshl_add_u32 v{VT+1}, v{VT+2}, 9, v{VT+1}")
    k(f"v_bfe_u32 v{VT+2}, v{LANE}, 4, 1\nv_lshl_add_u32 v{VT+1}, v{VT+2}, 7, v{VT+1}")
    k(f"v_and_b32 v{VT+3}, 3, v{LANE}\nv_lshl_add_u32 v{V_RD}, v{VT+3}, 3, v{VT+1}")
    k(f"v_add_u32 v{V_RD+1}, {2*STAGE}, v{V_RD}")
    k(f"s_lshl_b32 s82, s{S_RB1}, 3\ns_lshl_b32 s83, s{S_WAVE}, 1\ns_add_u32 s82, s82, s83\ns_lshl_b32 s82, s82, 15")
    k(f"v_add_u32 v{V_TOK}, s82, v{L16}\nv_add_u32 v{V_TOK+1}, 0x8000, v{V_TOK}")
    k(f"s_mul_i32 s{S_WB}, s80, 4224\ns_mul_i32 s82, s81, 2112\ns_add_u32 s{S_WB}, s{S_WB}, s82")
    c.NB, c.TB, c.KS, c.SPK, c.KT, c.NS, c.R = 12, 2, 1, 2, 16, NS, R
    c.acc = lambda b, t: vr((b * 2 + t) * 4, 4)
    c.tf = lambda slot, ks, t: 96 + (slot * 2 + t) * 4
    c.rd = lambda sl, b, sub, r: (V_RD + sl // 2, (sl % 2) * STAGE + (b // 4) * 8448 + sub * 4224 + r * 256 + (b % 4) * 32)
    c.slot_addr = lambda sl: sl * STAGE
    c.dma = [(V_DMA, 0, 0), (V_DMA + 1, 1056, 0), (V_DMA, 8448, 2048), (V_DMA + 1, 8448 + 1056, 2048), (V_DMA + 2, 16896, 0), (V_DMA + 3, 16896 + 1056, 0)]
    c.v_tok = [V_TOK, V_TOK + 1]
    c.w_stride = 64 * 6144
    c.drop = opt.get("g1_drop", ())
    c.pro_units, c.ramp_rate, c.read_margin = opt.get("g1_pro", 6), opt.get("g1_ramp", 6), opt.get("g1_rm", 6)
    std_sched(c)
    return c

def setup_gemm1s(k, opt):
    c = Sched(); common_gemm(c)
    HS = 8448; STAGE = 2 * HS
    c.V_RD, c.V_DMA, c.V_TOK, c.LANE, c.L16, c.VT = 96, 98, 102, 104, 105, 106
    V_RD, V_DMA, V_TOK, LANE, L16, VT = c.V_RD, c.V_DMA, c.V_TOK, c.LANE, c.L16, 110
    k(f"v_lshlrev_b32 v{L16}, 4, v{LANE}")
    order(c, k, opt, "g1", ["phase", [8, 8], 0])
    k(f"s_lshr_b32 s80, s{S_WAVE}, 1\ns_and_b32 s81, s{S_WAVE}, 1")
    k(f"v_lshrrev_b32 v{VT+1}, 3, v{LANE}")
    k(f"v_and_b32 v{VT+2}, 4, v{VT+1}")
    k(f"v_bfe_u32 v{VT+3}, v{VT+1}, 1, 1\nv_or_b32 v{VT+2}, v{VT+2}, v{VT+3}")
    k(f"v_and_b32 v{VT+3}, 1, v{VT+1}\nv_lshl_or_b32 v{VT+2}, v{VT+3}, 1, v{VT+2}")
    k(f"v_mul_u32_u24 v{VT+2}, {4*6144}, v{VT+2}")
    k(f"v_and_b32 v{VT+3}, 7, v{LANE}\nv_lshl_add_u32 v{VT+2}, v{VT+3}, 4, v{VT+2}")
    k("s_lshl_b32 s82, s80, 5\ns_lshl_b32 s83, s81, 1\ns_add_u32 s82, s82, s83\ns_mul_i32 s82, s82, 6144")
    k(f"s_lshl_b32 s83, s{S_HP}, 7\ns_add_u32 s82, s82, s83")
    k(f"v_add_u32 v{V_DMA}, s82, v{VT+2}")
    k(f"v_add_u32 v{V_DMA+1}, {6144-1056}, v{V_DMA}\nv_add_u32 v{V_DMA+2}, 2048, v{V_DMA}\nv_add_u32 v{V_DMA+3}, {6144+2048-1056}, v{V_DMA}")
    k(f"v_bfe_u32 v{VT+1}, v{LANE}, 2, 2\nv_mul_u32_u24 v{VT+1}, 1056, v{VT+1}")
    k(f"v_lshrrev_b32 v{VT+2}, 5, v{LANE}\nv_lshl_add_u32 v{VT+1}, v{VT+2}, 9, v{VT+1}")
    k(f"v_bfe_u32 v{VT+2}, v{LANE}, 4, 1\nv_lshl_add_u32 v{VT+1}, v{VT+2}, 7, v{VT+1}")
    k(f"v_and_b32 v{VT+3}, 3, v{LANE}\nv_lshl_add_u32 v{V_RD}, v{VT+3}, 3, v{VT+1}")
    k(f"v_add_u32 v{V_RD+1}, {2*STAGE}, v{V_RD}")
    k(f"s_lshl_b32 s82, s{S_RB1}, 3\ns_lshl_b32 s83, s{S_WAVE}, 1\ns_add_u32 s82, s82, s83\ns_lshl_b32 s82, s82, 15")
    k(f"v_add_u32 v{V_TOK}, s82, v{L16}\nv_add_u32 v{V_TOK+1}, 0x8000, v{V_TOK}")
    k(f"s_mul_i32 s{S_WB}, s80, 4224\ns_mul_i32 s82, s81, 2112\ns_add_u32 s{S_WB}, s{S_WB}, s82")
    c.NB, c.TB, c.KS, c.SPK, c.KT, c.NS, c.R = 8, 2, 1, 2, 16, 4, 32
    c.acc = lambda b, t: vr(32 + (b * 2 + t) * 4, 4)
    c.tf = lambda slot, ks, t: (slot * 2 + t) * 4
    c.rd = lambda sl, b, sub, r: (V_RD + sl // 2, (sl % 2) * STAGE + (b // 4) * HS + sub * 4224 + r * 256 + (b % 4) * 32)
    c.slot_addr = lambda sl: sl * STAGE
    c.dma = [(V_DMA + 2, 0, 0), (V_DMA + 3, 1056, 1056), (V_DMA + 2, HS, 2048), (V_DMA + 3, HS + 1056, 3104)]
    c.v_tok = [V_TOK, V_TOK + 1]
    c.w_stride = 64 * 6144
    c.drop = opt.get("g1_drop", ())
    c.pro_units, c.ramp_rate, c.read_margin, c.lookahead = opt.get("g1_pro", 8), opt.get("g1_ramp", 5), 4, opt.get("g1_la", 4)
    c.wreg, c.wbase = vr, 128
    c.tabtxt = []
    if opt.get("g1_tab", 1) and "g1_ord" not in opt:
        c.tab = (28, 29)
        c.tabtxt = [f"v_add_u32 v28, s{S_RB3}, v{LANE}", f"v_add_u32 v29, s{S_IDX}, v28", "v_and_b32 v29, 3, v29", "v_and_b32 v28, 4, v28", "v_or_b32 v28, v28, v29",
                    f"v_and_b32 v29, 8, v{LANE}", "v_or_b32 v28, v28, v29", "v_lshlrev_b32 v29, 11, v28", f"v_mul_u32_u24 v28, {64*6144}, v28"]
    std_sched(c)
    q = Sched(); common_gemm(q)
    q.KT = 16; order(q, k, opt, "g1", ["phase", [8, 8], 0]); q.tag = "g1b"; q.stamp_every = opt.get("g1b_se", 0)
    q.s_kw = 70
    QS = [67584 + i * HS for i in range(5)] + [L_R2 + i * HS for i in range(4)] + [i * HS for i in range(7)]
    q.Q1, q.Q2 = V_RD + 1, V_TOK
    def base(kt): return (q.Q1, 67584) if kt < 5 else ((q.Q2, L_R2) if kt < 9 else (V_RD, 0))
    for kt in range(16):
        sw = q.s_kw + kt % 2
        q.stage_units[kt] = [q.pos_items(sw, kt, c.w_stride) + [T(f"s_add_u32 m0, s{S_WB}, {QS[kt]}"), VM(f"buffer_load_dwordx4 v{V_DMA}, {sr(SRD_W,4)}, s{sw} offen lds", ("dma", kt))],
                             [T(f"s_add_u32 m0, s{S_WB}, {QS[kt]}"), VM(f"buffer_load_dwordx4 v{V_DMA+1}, {sr(SRD_W,4)}, s{sw} offen offset:1056 lds", ("dma", kt))]]
        q.stage_slot[kt] = kt
        va, b0 = base(kt)
        frags = [(va, QS[kt] - b0 + sub * 4224 + b * 32, QS[kt] - b0 + sub * 4224 + 256 + b * 32, [(vr((b * 2 + t) * 4, 4), ((kt * 2 + sub) * 2 + t) * 4) for t in range(2)]) for sub in range(2) for b in range(4)]
        q.steps.append(dict(frags=frags, stages=[kt] if kt != 9 else list(range(9, 16)), toks=[]))
    q.wf = lambda buf, j: (buf * 8 + j) * 4
    q.wreg, q.wbase = vr, 128
    q.pub0 = set(range(9)); q.pro_units = opt.get('q_pro', 2); q.ramp_rate = opt.get('q_ramp', 3); q.read_margin = 4; q.drop = c.drop
    c.q = q
    return c

def merge(a, b, ratio):
    out, b = [], list(b)
    for i, x in enumerate(a):
        out.append(x)
        if b and i % ratio == ratio - 1: out.append(b.pop(0))
    return out + b

def phase_gemm1s(k, c, opt):
    LANE, L16, VT = c.LANE, c.L16, c.VT
    q = c.q
    PHK, VV, SH = 0, 34816, 114688
    p = Txt()
    srd(p, SRD_A, P_WPHI, H * 2048)
    srd(p, SRD_B, P_WS, 2 << 20, WS_KVP)
    srd(p, SRD_C, P_WS, 128 << 10, WS_ZP)
    A_PW, A_VW, A_PR, A_VR, A_WR = 110, 111, 112, 113, 114
    p(f"s_lshr_b32 s80, s{S_WAVE}, 1\ns_and_b32 s81, s{S_WAVE}, 1")
    p(f"v_and_b32 v{VT}, 15, v{LANE}\ns_lshl_b32 s82, s{S_WAVE}, 5\nv_add_u32 v{VT}, s82, v{VT}")
    p(f"v_lshrrev_b32 v{VT+1}, 4, v{LANE}\nv_lshlrev_b32 v{VT+1}, 3, v{VT+1}")
    p(f"v_mul_u32_u24 v{A_PW}, 136, v{VT}\nv_add_u32 v{A_PW}, v{A_PW}, v{VT+1}")
    p(f"v_mul_u32_u24 v{A_VW}, 72, v{VT}\nv_add_u32 v{A_VW}, v{A_VW}, v{VT+1}")
    p(f"v_lshrrev_b32 v{VT}, 2, v{LANE}\nv_and_b32 v{VT+1}, 3, v{LANE}\nv_lshlrev_b32 v{VT+1}, 3, v{VT+1}")
    p(f"s_mul_i32 s82, s80, 17408\ns_lshl_b32 s83, s81, 6\ns_add_u32 s82, s82, s83")
    p(f"v_mul_u32_u24 v{A_PR}, 136, v{VT}\nv_add_u32 v{A_PR}, v{A_PR}, v{VT+1}\nv_add_u32 v{A_PR}, s82, v{A_PR}")
    p(f"s_mul_i32 s82, s80, 9216")
    p(f"v_mul_u32_u24 v{A_VR}, 72, v{VT}\nv_add_u32 v{A_VR}, v{A_VR}, v{VT+1}\nv_add_u32 v{A_VR}, s82, v{A_VR}")
    p(f"v_lshl_add_u32 v{A_WR}, v{VT}, 6, v{VT+1}\nv_add_u32 v{A_WR}, {L_WPH}, v{A_WR}")
    ONES, SEL = 116, 120
    for j in range(4): p(f"v_mov_b32 v{ONES+j}, 0x3f803f80")
    p(f"v_bfe_u32 v{VT}, v{LANE}, 2, 2\nv_lshrrev_b32 v{VT+1}, 4, v{LANE}")
    p(f"v_cmp_eq_u32 vcc, v{VT}, v{VT+1}")
    p(f"v_and_b32 v{VT}, 1, v{LANE}\nv_lshlrev_b32 v{VT}, 4, v{VT}\nv_mov_b32 v{VT+1}, 0x3f80\nv_lshlrev_b32 v{VT+1}, v{VT}, v{VT+1}")
    p(f"v_cndmask_b32 v{VT+1}, 0, v{VT+1}, vcc")
    p(f"v_and_b32 v{VT}, 2, v{LANE}\nv_cmp_eq_u32 vcc, 0, v{VT}")
    for j in (0, 1, 4, 5): p(f"v_mov_b32 v{SEL+j}, 0")
    p(f"v_cndmask_b32 v{SEL+2}, 0, v{VT+1}, vcc\nv_cndmask_b32 v{SEL+3}, v{VT+1}, 0, vcc")
    p(f"s_mov_b32 s94, {LOG2E!r}\ns_mov_b32 s95, {LOG2E!r}")
    p(f"s_lshl_b32 s84, s{S_HP}, 12\ns_lshl_b32 s85, s{S_WAVE}, 10\ns_add_u32 s84, s84, s85\ns_add_u32 s85, s85, {L_WPH}")
    c.pre_loop_txt = c.tabtxt + p.L
    c.late[4] = ["s_mov_b32 m0, s85", f"buffer_load_dwordx4 v{L16}, {sr(SRD_A,4)}, s84 offen lds"]
    for st_ in opt.get("cp1", [20]): c.late.setdefault(st_, []).extend(code_prefetch_txt(k.name, L16, 254, 80, junk="v31"))
    for st_ in opt.get("cp1b", []): q.late.setdefault(st_, []).extend(code_prefetch_txt(k.name, L16, 254, 80, junk="v252"))
    ts = opt.get("mt_step", None)
    if ts is not None:
        c.late.setdefault(ts, []).extend([f"v_mul_u32_u24 v254, 12288, v{LANE}", f"buffer_load_dword v31, v254, {sr(SRD_D,4)}, s{S_MB} offen"])
        if opt.get("wo_touch", 1):
            c.late[ts].extend([f"s_lshl_b32 s80, s2, 2", f"s_add_u32 s80, s80, s{S_WAVE}", "s_lshl_b32 s80, s80, 11",
                               f"v_and_b32 v254, 15, v{LANE}", "v_lshlrev_b32 v254, 7, v254", "v_add_u32 v254, s80, v254", f"global_load_dword v31, v254, s[{P_WO}:{P_WO+1}]"])
    nq = opt.get("q_in", 10)
    for j in range(nq // 2): c.late.setdefault(32 - nq // 2 + j, []).extend(q.prefetch_txt(2))
    wph_reads = lambda reg, b0: [f"ds_read_b64_tr_b16 {reg(b0+(hh*2+fb)*4+2*r,2)}, v{A_WR} offset:{hh*2048+r*1024+fb*32}" for hh in range(2) for fb in range(2) for r in range(2)]
    c.last_reads = wph_reads(vr, 0)
    c.run(k)
    k.stamp("g1 loop done")
    A = lambda b, t: (b * 2 + t) * 4
    BF, P1, P2, MX, MN, EK = 126, 142, 174, 206, 214, 222
    groups = [(hh, t) for hh in range(2) for t in range(2)]
    def fm_part1(k, seg, ph):
        for g, (hh, t) in enumerate(groups):
            for db in range(2):
                a = A(seg * 4 + hh * 2 + db, t)
                k(f"v_cvt_pk_bf16_f32 v{BF+g*4+db*2}, v{a}, v{a+1}\nv_cvt_pk_bf16_f32 v{BF+g*4+db*2+1}, v{a+2}, v{a+3}")
        k("s_nop 1")
        for g, (hh, t) in enumerate(groups):
            for fb in range(2):
                k(f"{MF} {vr(P1+g*8+fb*4,4)}, {ph(hh*2+fb)}, {vr(BF+g*4,4)}, 0")
    def fm_part2(k):
        for op3, op2, M in (("v_max3_f32", "v_max_f32", MX), ("v_min3_f32", "v_min_f32", MN)):
            for g in range(4):
                b = P1 + g * 8
                k(f"{op3} v{M+2*g}, v{b}, v{b+1}, v{b+2}\n{op3} v{M+2*g}, v{M+2*g}, v{b+3}, v{b+4}\n{op3} v{M+2*g}, v{M+2*g}, v{b+5}, v{b+6}\n{op2} v{M+2*g}, v{M+2*g}, v{b+7}")
        treduce4x2(k, ("v_max_f32", "v_min_f32"), ([MX + 2 * g for g in range(4)], [MN + 2 * g for g in range(4)]))
        for g in range(4):
            k(f"v_mul_f32 v{MX+2*g}, {-LOG2E!r}, v{MX+2*g}\nv_mul_f32 v{MN+2*g}, {LOG2E!r}, v{MN+2*g}")
    def fm_part3(k, E, gs_=range(4)):
        for g in gs_:
            for j in range(4):
                b = g * 8 + 2 * j
                k(f"v_pk_fma_f32 {vr(P2+b,2)}, {vr(P1+b,2)}, s[94:95], {vr(MN+2*g,2)} op_sel_hi:[1,1,0] neg_lo:[1,0,0] neg_hi:[1,0,0]")
                k(f"v_pk_fma_f32 {vr(P1+b,2)}, {vr(P1+b,2)}, s[94:95], {vr(MX+2*g,2)} op_sel_hi:[1,1,0]")
            for j in range(8): k(f"v_exp_f32 v{P1+g*8+j}, v{P1+g*8+j}")
            for j in range(8): k(f"v_exp_f32 v{P2+g*8+j}, v{P2+g*8+j}")
            k("s_nop 0")
            for sg, PP in enumerate((P1, P2)):
                for j in range(4): k(f"v_cvt_pk_bf16_f32 v{E+(g*2+sg)*4+j}, v{PP+g*8+2*j}, v{PP+g*8+2*j+1}")
    mark0 = len(k.L)
    k("s_waitcnt lgkmcnt(0)\ns_nop 7")
    fm_part1(k, 1, lambda i: vr(i * 4, 4))
    k("s_barrier")
    for g, (hh, t) in enumerate(groups):
        for db in range(2):
            a = A(8 + hh * 2 + db, t)
            k(f"v_cvt_pk_bf16_f32 v{a}, v{a}, v{a+1}\nv_cvt_pk_bf16_f32 v{a+1}, v{a+2}, v{a+3}")
            k(f"ds_write_b64 v{A_VW}, {vr(a,2)} offset:{VV + hh*9216 + t*16*72 + db*32}")
    fm_part2(k)
    grp = []
    for j in range(18 - q.pre_dma):
        t_ = q.prefetch_txt(1); grp.append(t_[:-1] + ["s_nop 0", t_[-1]])
    sprinkle(k, mark0, grp, skip=12)
    k.stamp("kp part2")
    fm_part3(k, EK)
    k.stamp("kp part3")
    SM = 32
    k("s_nop 1")
    for i in range(8): k(f"{MF} {vr(SM+4*i,4)}, {vr(ONES,4)}, {vr(EK+4*i,4)}, 0")
    k(f"v_add_u32 v{q.Q1}, 67584, v{c.V_RD}\nv_add_u32 v{q.Q2}, {L_R2}, v{c.V_RD}")
    k("s_nop 5")
    for i in range(8): k(f"v_rcp_f32 v{SM+4*i}, v{SM+4*i}")
    for g, (hh, t) in enumerate(groups):
        for sg, PP in enumerate((P1, P2)):
            for j in range(4):
                k(f"v_pk_mul_f32 {vr(PP+g*8+2*j,2)}, {vr(PP+g*8+2*j,2)}, {vr(SM+(g*2+sg)*4,2)} op_sel_hi:[1,0]")
            for fb in range(2):
                b = PP + g * 8 + fb * 4
                k(f"v_cvt_pk_bf16_f32 v{b}, v{b}, v{b+1}\nv_cvt_pk_bf16_f32 v{b+1}, v{b+2}, v{b+3}")
                k(f"ds_write_b64 v{A_PW}, {vr(b,2)} offset:{PHK + hh*17408 + t*16*136 + sg*64 + fb*32}")
    k.stamp("kp norm")
    k("s_waitcnt lgkmcnt(0)\ns_barrier")
    k.stamp("kp bar")
    FR = 190
    for s_ in range(4):
        for r in range(2):
            for fb in range(2): k(f"ds_read_b64_tr_b16 {vr(FR+s_*16+fb*4+2*r,2)}, v{A_PR} offset:{PHK + (32*s_+16*r)*136 + fb*32}")
            for db in range(2): k(f"ds_read_b64_tr_b16 {vr(FR+s_*16+8+db*4+2*r,2)}, v{A_VR} offset:{VV + (32*s_+16*r)*72 + db*32}")
    k(f"s_lshl_b32 s82, s{S_HP}, 2\ns_add_u32 s82, s82, s{S_WAVE}")
    k("s_lshl_b32 s86, s82, 15")
    k(f"s_lshl_b32 s84, s{S_RB1}, 10\ns_add_u32 s84, s84, s86\ns_add_u32 s85, s84, 16384")
    k("s_lshl_b32 s90, s82, 11")
    k(f"s_lshl_b32 s91, s82, {FS+4}\ns_add_u32 s91, s91, {F_KV}\ns_lshl_b32 s92, s{S_RB1}, {FS}\ns_add_u32 s92, s92, s91")
    k(f"v_and_b32 v{VT}, 15, v{LANE}\nv_cmp_eq_u32 vcc, s{S_RB1}, v{VT}")
    KV, ZZ = 64, 80
    for s_ in range(4):
        k(f"s_waitcnt lgkmcnt({min(15, 24 - 8*s_)})" if s_ < 3 else "s_waitcnt vmcnt(0) lgkmcnt(0)\ns_barrier")
        for fb in range(2):
            for db in range(2):
                d = vr(KV + (db * 2 + fb) * 4, 4)
                k(f"{MF} {d}, {vr(FR+s_*16+fb*4,4)}, {vr(FR+s_*16+8+db*4,4)}, {'0' if s_ == 0 else d}")
            d = vr(ZZ + fb * 4, 4)
            k(f"{MF} {d}, {vr(FR+s_*16+fb*4,4)}, {vr(ONES,4)}, {'0' if s_ == 0 else d}")
    k(f"v_lshlrev_b32 v{VT}, {FS}, v{VT}\nv_mov_b32 v{VT+1}, 1\nv_mov_b32 v{VT+2}, 0")
    k("s_nop 5")
    for db in range(2):
        for j in range(4): k(f"v_cvt_pk_bf16_f32 v{88+db*4+j}, v{KV+db*8+2*j}, v{KV+db*8+2*j+1}")
    k(f"buffer_store_dwordx4 {vr(88,4)}, v{L16}, {sr(SRD_B,4)}, s84 offen sc1")
    k(f"buffer_store_dwordx4 {vr(92,4)}, v{L16}, {sr(SRD_B,4)}, s85 offen sc1")
    k("s_and_saveexec_b64 s[96:97], vcc")
    k(f"buffer_store_dwordx4 {vr(ZZ,4)}, v{L16}, {sr(SRD_C,4)}, s90 offen sc1")
    k(f"buffer_store_dwordx4 {vr(ZZ+4,4)}, v{L16}, {sr(SRD_C,4)}, s90 offen offset:1024 sc1")
    k("s_mov_b64 exec, s[96:97]")
    k.stamp("kv stored")
    KV, ZZ, MW, MC = 72, 88, 32, 64
    q.late[opt.get("kv_ps", 1)] = [WVM([("pre", 0)]), f"buffer_store_dword v{VT+1}, v{VT+2}, {sr(SRD_F,4)}, s92 offen sc1"]
    gs = opt.get("kv_gs", 9)
    ld = f"buffer_load_dword v253, v{VT}, {sr(SRD_F,4)}, s91 offen sc1"
    m = Txt(); m.label = k.label
    okl = k.label("gok")
    m(f"v_cmp_eq_u32 vcc, 0, v253\ns_cmp_eq_u64 vcc, 0\ns_cbranch_scc1 {okl}")
    spin(m, [ld], [253], 0)
    m(f"{okl}:")
    q.late[gs - 2] = [VM(ld, ("kvf", 0))]
    gl = [f"buffer_load_dwordx4 {vr(ZZ,4)}, v{L16}, {sr(SRD_C,4)}, s90 offen sc1", f"buffer_load_dwordx4 {vr(ZZ+4,4)}, v{L16}, {sr(SRD_C,4)}, s90 offen offset:1024 sc1"]
    for i in range(32):
        if i % 4 == 0 and i: gl.append("s_add_u32 s86, s86, 4096")
        gl.append(f"buffer_load_dwordx4 {ar(4*i,4)}, v{L16}, {sr(SRD_B,4)}, s86 offen offset:{(i%4)*1024} sc1")
    n3 = -(-len(gl) // 3)
    q.late[gs] = [WVM([("kvf", 0)]), T("\n".join(m.L))] + gl[:n3]
    q.late[gs + 1] = gl[n3:2*n3]; q.late[gs + 2] = gl[2*n3:]
    t2 = Txt()
    g2 = setup_gemm24(t2, 2, opt, (110, 111, 112, LANE, L16, 98))
    q.late[5] = t2.L[:len(t2.L)//2]; q.late[6] = t2.L[len(t2.L)//2:] + [f"global_load_ushort v{MC+i}, v109, s[{P_C}:{P_C+1}] offset:{i*16}" for i in range(8)]
    assert gs - 2 > 6
    younger = []
    younger += g2.prefetch_txt(opt.get('g2_p1', 8))
    mbl = []
    for i in range(8): mbl += [f"buffer_load_dwordx4 {vr(MW+4*i,4)}, v115, {sr(SRD_D,4)}, s{S_MB} offen", f"s_add_u32 s{S_MB}, s{S_MB}, {8*12288}"]
    mpos = opt.get("mpos", "tail")
    if mpos == "tail": younger += mbl
    ny = sum(1 for x in younger if is_vm(x))
    rest = list(range(gs + 3, 16)); per = -(-len(younger) // len(rest))
    for j, st_ in enumerate(rest): q.late[st_] = younger[j*per:(j+1)*per]
    A_PH = 128
    q.last_reads = wph_reads(ar, A_PH)
    q.run(k)
    k.stamp("g1b done")
    srd(k, SRD_T, P_WS, S * D * 2, WS_O)
    k("s_waitcnt lgkmcnt(0)\ns_nop 3")
    qa = Txt(); fm_part1(qa, 0, lambda i: ar(A_PH + i * 4, 4))
    qa(f"s_waitcnt vmcnt({min(63, ny + 32)})")
    for sh in (8, 4, 2, 1):
        for j in range(8): qa(f"v_add_f32_dpp v{ZZ+j}, v{ZZ+j}, v{ZZ+j} row_ror:{sh} row_mask:0xf bank_mask:0xf")
    for x in qa.L: k(x)
    k.stamp("qp a")
    hs = g2.hs
    qb = Txt(); fm_part2(qb); fm_part3(qb, EK, range(2) if hs else range(4))
    red = []
    for i in range(32):
        db, pp = divmod(i, 16)
        for fb in range(2):
            d = vr(KV + (db * 2 + fb) * 4, 4)
            red.append((f"s_waitcnt vmcnt({ny + 28 - i})\n" if (i % 4 == 0 and fb == 0) else "") + f"{MF} {d}, {vr(SEL + (2 if fb == 0 else 0), 4)}, {ar(4*i,4)}, {'0' if pp == 0 else d}")
    cut = opt.get("q_cut", 150) if not hs else len(qb.L)
    for x in merge(qb.L[:cut], red, 2): k(x)
    if hs:
        k("s_nop 3")
        qb = Txt(); fm_part3(qb, EK, [2]); cut = 0
    k.stamp("qp merged")
    k(f"s_mul_i32 s82, s{S_WAVE}, 3072\ns_add_u32 s82, s82, {SH}")
    k(f"v_add_u32 v{VT+1}, s82, v{L16}\nv_add_u32 v{VT+2}, {SH}, v{L16}")
    k(f"v_and_b32 v{VT}, 1, v{LANE}\nv_cmp_eq_u32 vcc, 0, v{VT}")
    k("s_nop 4")
    for j in range(12): k(f"v_cvt_pk_bf16_f32 v{KV+j}, v{KV+2*j}, v{KV+2*j+1}")
    for j in range(4): k(f"v_cndmask_b32 v{KV+8+j}, v{ONES}, v{KV+8+j}, vcc")
    for j in range(3): k(f"ds_write_b128 v{VT+1}, {vr(KV+4*j,4)} offset:{j*1024}")
    for x in (merge(qb.L[cut:], mbl, 2) if mpos == "q" else qb.L[cut:]): k(x)
    k.stamp("qp rest")
    k("s_waitcnt lgkmcnt(0)\ns_barrier")
    k.stamp("qp bar")
    for i in range(12): k(f"ds_read_b128 {ar(4*i,4)}, v{VT+2} offset:{i*1024}")
    k(f"s_lshl_b32 s82, s{S_RB1}, 3\ns_lshl_b32 s83, s{S_WAVE}, 1\ns_add_u32 s82, s82, s83\ns_lshl_b32 s82, s82, 15")
    k(f"s_lshl_b32 s83, s{S_HP}, 11\ns_add_u32 s82, s82, s83\ns_add_u32 s83, s82, 0x8000")
    k(f"s_lshl_b32 s84, s{S_RB1}, 2\ns_add_u32 s84, s84, s{S_WAVE}\ns_lshl_b32 s84, s84, {FS+4}\ns_lshl_b32 s85, s{S_HP}, {FS}\ns_add_u32 s84, s84, s85\ns_add_u32 s84, s84, {F_O}")
    k("s_waitcnt lgkmcnt(0)")
    NB_ = 126
    def nbase(g): return NB_ + g * 24 if (not hs or g >= 2) else None
    def oregs(g):
        if hs and g < 2: return (0, 12) if g == 0 else (72, 84)
        return (NB_ + g * 24, NB_ + g * 24 + 12)
    def o_mfma(gl):
        for g in gl:
            hh, t = groups[g]
            for sg in range(2):
                for j in range(3):
                    k(f"{MF} {vr(oregs(g)[sg]+4*j,4)}, {ar(((hh*2+sg)*3+j)*4,4)}, {vr(EK+(g*2+sg)*4,4)}, 0")
    def o_fin(gl):
        for g in gl:
            hh, t = groups[g]
            n1, n2 = oregs(g)
            D1, S1, D2, S2 = n1 + 8, n1 + 9, n2 + 8, n2 + 9
            k(f"v_mul_f32 v{n1+10}, v{S1}, v{S2}")
            k(f"v_mul_f32 v{n1+10}, 0x358637bd, v{n1+10}")
            k(f"v_fmac_f32 v{n1+10}, v{D1}, v{S2}\nv_fmac_f32 v{n1+10}, v{D2}, v{S1}")
            k(f"v_rcp_f32 v{n1+10}, v{n1+10}")
            k("s_nop 0")
            k(f"v_mul_f32 v{D1}, v{S2}, v{n1+10}\nv_mul_f32 v{D2}, v{S1}, v{n1+10}")
            for j in range(4): k(f"v_pk_mul_f32 {vr(n1+2*j,2)}, {vr(n1+2*j,2)}, {vr(D1,2)} op_sel_hi:[1,0]")
            for j in range(4): k(f"v_pk_fma_f32 {vr(n1+2*j,2)}, {vr(n2+2*j,2)}, {vr(D2,2)}, {vr(n1+2*j,2)} op_sel_hi:[1,0,1]")
            for j in range(4): k(f"v_cvt_pk_bf16_f32 v{n2+j}, v{n1+2*j}, v{n1+2*j+1}")
            k(f"buffer_store_dwordx4 {vr(n2,4)}, v{L16}, {sr(SRD_T,4)}, s{82+t} offen offset:{hh*1024} sc1")
    if hs:
        o_mfma([0, 1]); k("s_nop 7"); o_fin([0, 1])
        mk0 = len(k.L)
        fm_part3(k, EK, [3])
        k("s_nop 1")
        o_mfma([2, 3]); k("s_nop 7")
        publish(k, 84, VT + 1, mk0)
        k(f"s_add_u32 s95, s84, {F_O2 - F_O}")
        o_fin([2, 3])
    else:
        o_mfma(range(4)); k("s_nop 7"); o_fin(range(4))
    k.stamp("o stored")
    mko = len(k.L)
    g2.V_X = 178
    srd(k, SRD_A, P_X, S * D * 2)
    V_XA = 100
    k(f"v_lshrrev_b32 v{VT+1}, 4, v{LANE}")
    k(f"v_and_b32 v{VT+2}, 15, v{LANE}\nv_lshlrev_b32 v{VT+2}, 11, v{VT+2}\nv_lshl_add_u32 v{V_XA}, v{VT+1}, 3, v{VT+2}")
    k(f"s_lshl_b32 s82, s{S_RB2}, 3\ns_lshl_b32 s83, s{S_WAVE}, 1\ns_add_u32 s82, s82, s83\ns_lshl_b32 s82, s82, 15\ns_lshl_b32 s83, s{S_NT}, 7\ns_add_u32 s82, s82, s83\ns_add_u32 s83, s82, 32768")
    for t in range(2):
        for b in range(4):
            k(f"buffer_load_dwordx2 {vr(g2.V_X+(t*4+b)*2,2)}, v{V_XA}, {sr(SRD_A,4)}, s{82+t} offen offset:{b*32}")
    k.g3 = setup_gemm3_early(k, opt, LANE, 20)
    if not hs: publish(k, 84, VT + 1, mko)
    k.stamp("o published")
    mark1 = len(k.L)
    CU, AU, TT = 0, 16, 24
    for i in range(8): k(f"v_mov_b32 v{CU+2*i}, v{MC+i}")
    silu_block(k, [CU + 2 * i for i in range(8)])
    for i in range(8):
        for d in range(4):
            k(f"v_lshlrev_b32 v{TT}, 16, v{MW+4*i+d}\nv_and_b32 v{TT+1}, 0xffff0000, v{MW+4*i+d}")
            if i == 0: k(f"v_pk_mul_f32 {vr(AU+2*d,2)}, {vr(TT,2)}, {vr(CU,2)} op_sel_hi:[1,0]")
            else: k(f"v_pk_fma_f32 {vr(AU+2*d,2)}, {vr(TT,2)}, {vr(CU+2*i,2)}, {vr(AU+2*d,2)} op_sel_hi:[1,0,1]")
    k("s_nop 1")
    for j in range(4): k(f"v_permlane32_swap_b32 v{AU+j}, v{AU+j+4}")
    k("s_nop 1")
    for j in range(4): k(f"v_add_f32 v{AU+j}, v{AU+j}, v{AU+j+4}")
    k("s_nop 1")
    for j in range(2): k(f"v_permlane16_swap_b32 v{AU+j}, v{AU+j+2}")
    k("s_nop 1")
    for j in range(2): k(f"v_add_f32 v{AU+j}, v{AU+j}, v{AU+j+2}")
    k("s_nop 1")
    for j in range(2): k(f"v_add_f32_dpp v{AU+j}, v{AU+j}, v{AU+j} row_ror:8 row_mask:0xf bank_mask:0xf")
    grp = g3_early_units(k.g3, opt.get("g3_e2", 0), 254)
    for j in range(opt.get("g2_p2", 0)):
        t_ = g2.prefetch_txt(1); grp.append(t_[:-1] + ["s_nop 0", t_[-1]])
    sprinkle(k, mark1, grp, skip=0)
    k(f"v_and_b32 v{TT}, 7, v{LANE}\nv_lshlrev_b32 v{TT}, 5, v{TT}\nv_lshrrev_b32 v{TT+1}, 5, v{LANE}\nv_lshl_add_u32 v{TT}, v{TT+1}, 4, v{TT}")
    k(f"v_bfe_u32 v{TT+1}, v{LANE}, 4, 1\nv_lshl_add_u32 v{TT}, v{TT+1}, 3, v{TT}")
    srd(k, SRD_D, P_WS, MP_BYTES, WS_MODP)
    k(f"v_or_b32 v{AU}, 1, v{AU}\nv_or_b32 v{AU+1}, 1, v{AU+1}")
    k(f"buffer_store_dwordx2 {vr(AU,2)}, v{TT}, {sr(SRD_D,4)}, s{S_MO} offen sc1")
    return g2

A_UT = 176
def silu_block(k, regs):
    for v in regs: k(f"v_lshlrev_b32 v{v}, 16, v{v}\nv_mul_f32 v{v+1}, {-LOG2E!r}, v{v}")
    for v in regs: k(f"v_exp_f32 v{v+1}, v{v+1}")
    k("s_nop 0")
    for v in regs: k(f"v_add_f32 v{v+1}, 1.0, v{v+1}")
    for v in regs: k(f"v_rcp_f32 v{v+1}, v{v+1}")
    k("s_nop 0")
    for v in regs:
        k(f"v_mul_f32 v{v}, v{v}, v{v+1}"); round_bf16(k, v)

def modb_loads(s_off, v_w, v_c):
    out = []
    for i in range(8):
        out.append([f"buffer_load_dwordx4 {ar(A_UT+4*i,4)}, v{v_w}, {sr(SRD_D,4)}, s{s_off} offen", f"s_add_u32 s{s_off}, s{s_off}, {8*12288}"])
    return out

def red32(k, x, t):
    red8(k, x)
    k(f"s_nop 1\nv_add_f32_dpp v{x}, v{x}, v{x} row_mirror row_mask:0xf bank_mask:0xf")
    k(f"v_mov_b32 v{t}, v{x}\ns_nop 1\nv_permlane16_swap_b32 v{x}, v{t}\ns_nop 1\nv_add_f32 v{x}, v{x}, v{t}")

def ids(k):
    k("v_lshrrev_b32 v1, 6, v0")
    k(f"s_and_b32 s{S_XCD}, s2, 7\ns_lshr_b32 s{S_IDX}, s2, 3")
    k(f"v_readfirstlane_b32 s{S_WAVE}, v1")
    k(f"s_bfe_u32 s{S_RB1}, s{S_XCD}, 0x10001\ns_lshl_b32 s{S_RB1}, s{S_RB1}, 3\ns_lshr_b32 s80, s{S_IDX}, 2\ns_add_u32 s{S_RB1}, s{S_RB1}, s80")
    k(f"s_lshr_b32 s{S_HP}, s{S_XCD}, 2\ns_lshl_b32 s{S_HP}, s{S_HP}, 2\ns_and_b32 s80, s{S_IDX}, 3\ns_add_u32 s{S_HP}, s{S_HP}, s80\ns_lshl_b32 s{S_HP}, s{S_HP}, 1\ns_and_b32 s80, s{S_XCD}, 1\ns_add_u32 s{S_HP}, s{S_HP}, s80")

def build_k0(instr=False, opt=None, name="mod_kernel", mega="mega_kernel"):
    opt = opt or {}
    k = Kernel(name, 256, 256, 4096, vgpr=128, sgpr=102)
    k.instr = instr; k.s_wave = S_WAVE
    stamp(k, 0)
    end = k.label("end")
    k(f"s_cmp_ge_u32 s2, 256\ns_cbranch_scc1 {end}")
    k("s_load_dwordx4 s[12:15], s[0:1], 64")
    k("s_load_dwordx8 s[4:11], s[0:1], 0")
    k("s_load_dwordx2 s[28:29], s[0:1], 96")
    ids(k)
    LANE, T, V_W = 104, 48, 105
    WA, CA, XR, XF, A0, SU = 64, 80, 84, 0, 32, 100
    k(f"v_and_b32 v{LANE}, 63, v0")
    k(f"v_lshrrev_b32 v{T+1}, 3, v{LANE}\nv_and_b32 v{T+2}, 7, v{LANE}")
    k(f"v_mul_u32_u24 v{V_W}, 12288, v{T+1}\nv_lshl_add_u32 v{V_W}, v{T+2}, 4, v{V_W}")
    k(f"s_lshl_b32 s64, s{S_RB1}, 6\ns_lshl_b32 s65, s{S_WAVE}, 4\ns_add_u32 s64, s64, s65")
    k(f"v_add_u32 v{T+3}, s64, v{T+1}\nv_lshlrev_b32 v{T+3}, 1, v{T+3}")
    k(f"s_mul_i32 s67, s64, 12288\ns_lshl_b32 s66, s{S_HP}, 7\ns_add_u32 s67, s67, s66\ns_add_u32 s68, s67, {8*12288}")
    k(f"v_lshrrev_b32 v{T+4}, 5, v{LANE}\nv_lshlrev_b32 v{T+4}, 11, v{T+4}\nv_and_b32 v{T+5}, 31, v{LANE}\nv_lshl_add_u32 v{T+4}, v{T+5}, 4, v{T+4}")
    k(f"s_lshl_b32 s69, s{S_RB1}, 4\ns_add_u32 s69, s69, s{S_HP}")
    k(f"s_lshl_b32 s70, s69, 14\ns_lshl_b32 s71, s{S_WAVE}, 12\ns_add_u32 s70, s70, s71")
    k("s_waitcnt lgkmcnt(0)")
    srd(k, SRD_D, 14, D * 6 * D * 2)
    srd(k, SRD_A, P_X, S * D * 2)
    for i in range(2): k(f"global_load_ushort v{CA+2*i}, v{T+3}, s[12:13] offset:{i*16}")
    for i in range(2):
        for v in range(2): k(f"buffer_load_dwordx4 {vr(WA+(i*2+v)*4,4)}, v{V_W}, {sr(SRD_D,4)}, s{67+i} offen offset:{v*2048}")
    for i in range(4): k(f"buffer_load_dwordx4 {vr(XR+4*i,4)}, v{T+4}, {sr(SRD_A,4)}, s70 offen offset:{i*512}")
    stamp(k, 1)
    lab = k.label("pc")
    k(f"s_getpc_b64 s[60:61]\n{lab}:")
    k(f"s_add_u32 s60, s60, {mega}-{lab}\ns_addc_u32 s61, s61, 0")
    k(f"v_lshlrev_b32 v{T+6}, 4, v{LANE}")
    for x in code_prefetch_txt(mega, T + 6, T + 7, 62, s_pc=60, junk="v110"): k(x)
    srd(k, SRD_B, P_WS, MP_BYTES, WS_MODP)
    srd(k, SRD_F, P_WS, FLAG_BYTES, WS_FLAG)
    srd(k, SRD_C, P_WS, S * 128, WS_STAT)
    k(f"v_mov_b32 v{T+8}, 0\nv_lshlrev_b32 v{T+9}, 2, v0\ns_lshl_b32 s62, s2, 10\ns_add_u32 s63, s62, {MP_B}")
    k(f"v_lshlrev_b32 v{T+10}, {FS}, v0\ns_lshl_b32 s66, s2, {FS+8}")
    k(f"buffer_store_dword v{T+8}, v{T+10}, {sr(SRD_F,4)}, s66 offen")
    k(f"buffer_store_dword v{T+8}, v{T+9}, {sr(SRD_C,4)}, s62 offen")
    k(f"buffer_store_dword v{T+8}, v{T+9}, {sr(SRD_B,4)}, s63 offen")
    young = 4
    k(f"s_lshl_b32 s62, s2, 2\ns_add_u32 s62, s62, s{S_WAVE}")
    for ptr, per, tag in ((P_WQKV, 6, "t_wq"), (P_WO, 2, "t_wo"), (14, 12, "t_wm")):
        if not opt.get(tag, 1): continue
        k(f"s_mul_i32 s63, s62, {per*1024}\ns_add_u32 s63, s63, 384")
        k(f"v_min_u32 v{T+14}, {per-1}, v{LANE}\nv_lshlrev_b32 v{T+14}, 10, v{T+14}\nv_add_u32 v{T+14}, s63, v{T+14}")
        k(f"global_load_dword v110, v{T+14}, s[{ptr}:{ptr+1}]")
        young += 1
    k(f"s_waitcnt vmcnt({young + 8})")
    silu_block(k, [CA, CA + 2])
    k(f"s_waitcnt vmcnt({young + 4})")
    for i in range(2):
        for v in range(2):
            for d in range(4):
                w_ = WA + (i * 2 + v) * 4 + d
                k(f"v_lshlrev_b32 v{T+10}, 16, v{w_}\nv_and_b32 v{T+11}, 0xffff0000, v{w_}")
                if i == 0: k(f"v_pk_mul_f32 {vr(A0+v*8+2*d,2)}, {vr(T+10,2)}, {vr(CA,2)} op_sel_hi:[1,0]")
                else: k(f"v_pk_fma_f32 {vr(A0+v*8+2*d,2)}, {vr(T+10,2)}, {vr(CA+2,2)}, {vr(A0+v*8+2*d,2)} op_sel_hi:[1,0,1]")
    k("s_nop 1")
    for j in range(8): k(f"v_permlane32_swap_b32 v{A0+j}, v{A0+8+j}")
    k("s_nop 1")
    for j in range(8): k(f"v_add_f32 v{A0+j}, v{A0+j}, v{A0+8+j}")
    k("s_nop 1")
    for j in range(4): k(f"v_permlane16_swap_b32 v{A0+j}, v{A0+4+j}")
    k("s_nop 1")
    for j in range(4): k(f"v_add_f32 v{A0+j}, v{A0+j}, v{A0+4+j}")
    k("s_nop 1")
    for j in range(4): k(f"v_add_f32_dpp v{A0+j}, v{A0+j}, v{A0+j} row_ror:8 row_mask:0xf bank_mask:0xf")
    k(f"v_lshrrev_b32 v{T+12}, 5, v{LANE}\nv_lshlrev_b32 v{T+13}, 8, v{T+12}\nv_lshl_add_u32 v{T+13}, v{T+2}, 5, v{T+13}")
    k(f"v_bfe_u32 v{T+10}, v{LANE}, 4, 1\nv_lshl_add_u32 v{T+13}, v{T+10}, 4, v{T+13}\ns_lshl_b32 s62, s{S_WAVE}, 9\nv_add_u32 v{T+13}, s62, v{T+13}")
    k(f"ds_write_b128 v{T+13}, {vr(A0,4)}")
    k("s_waitcnt lgkmcnt(0)\ns_barrier")
    nw0 = k.label("notw0")
    k(f"s_cmp_lg_u32 s{S_WAVE}, 0\ns_cbranch_scc1 {nw0}")
    k(f"v_lshlrev_b32 v{T+13}, 3, v{LANE}")
    for w in range(4): k(f"ds_read_b64 {vr(A0+2*w,2)}, v{T+13} offset:{w*512}")
    k(f"s_lshl_b32 s62, s{S_HP}, 13\ns_lshl_b32 s63, s{S_RB1}, 9\ns_add_u32 s63, s63, s62")
    k("s_waitcnt lgkmcnt(0)")
    k(f"v_pk_add_f32 {vr(A0,2)}, {vr(A0,2)}, {vr(A0+2,2)}\nv_pk_add_f32 {vr(A0+4,2)}, {vr(A0+4,2)}, {vr(A0+6,2)}\nv_pk_add_f32 {vr(A0,2)}, {vr(A0,2)}, {vr(A0+4,2)}")
    k(f"buffer_store_dwordx2 {vr(A0,2)}, v{T+13}, {sr(SRD_B,4)}, s63 offen")
    k(f"{nw0}:")
    stamp(k, 2)
    k(f"s_waitcnt vmcnt({young})")
    for d in range(16): k(f"v_lshlrev_b32 v{XF+2*d}, 16, v{XR+d}\nv_and_b32 v{XF+2*d+1}, 0xffff0000, v{XR+d}")
    k(f"v_pk_add_f32 {vr(SU,2)}, {vr(XF,2)}, {vr(XF+2,2)}")
    for d in range(2, 16): k(f"v_pk_add_f32 {vr(SU,2)}, {vr(SU,2)}, {vr(XF+2*d,2)}")
    k(f"v_add_f32 v{SU}, v{SU}, v{SU+1}")
    red32(k, SU, SU + 1)
    k(f"v_mul_f32 v{SU+2}, {-1.0/1024!r}, v{SU}")
    k(f"v_mov_b32 v{SU}, 0\nv_mov_b32 v{SU+1}, 0")
    for d in range(16):
        k(f"v_pk_add_f32 {vr(XF+2*d,2)}, {vr(XF+2*d,2)}, {vr(SU+2,2)} op_sel_hi:[1,0]")
        k(f"v_pk_fma_f32 {vr(SU,2)}, {vr(XF+2*d,2)}, {vr(XF+2*d,2)}, {vr(SU,2)}")
    k(f"v_add_f32 v{SU}, v{SU}, v{SU+1}")
    red32(k, SU, SU + 1)
    k(f"v_mov_b32 v{SU+1}, 0x3727c5ac\nv_fmac_f32 v{SU+1}, {1.0/1024!r}, v{SU}\nv_rsq_f32 v{SU+3}, v{SU+1}")
    k(f"s_lshl_b32 s62, s69, 6\ns_lshl_b32 s63, s{S_WAVE}, 4\ns_add_u32 s62, s62, s63\ns_add_u32 s62, s62, {MP_RS}\nv_lshlrev_b32 v{T+12}, 3, v{T+12}")
    k(f"buffer_store_dwordx2 {vr(SU+2,2)}, v{T+12}, {sr(SRD_B,4)}, s62 offen")
    stamp(k, 3)
    if instr: k("s_waitcnt vmcnt(0)")
    stamp(k, 4)
    stamp_flush(k, 28, 5, 4, slot=1)
    k(f"{end}:\ns_endpgm")
    return k

def phase_front_fused(k, opt, name):
    LANE, L16 = 104, 105
    T = 48
    V_W, V_C = 115, 109
    WA, CA, XR, XT_, XF, A0, SU, G, M, RS = 64, 80, 128, 144, 0, 200, 216, 160, 32, 84
    HL = 2 * 25344
    k(f"v_lshrrev_b32 v{T+1}, 3, v{LANE}\nv_and_b32 v{T+2}, 7, v{LANE}")
    k(f"v_mul_u32_u24 v{V_W}, 12288, v{T+1}\nv_lshl_add_u32 v{V_W}, v{T+2}, 4, v{V_W}")
    k(f"s_lshl_b32 s84, s{S_RB1}, 6")
    k(f"v_add_u32 v{V_C}, s84, v{T+1}\nv_lshlrev_b32 v{V_C}, 1, v{V_C}")
    k(f"s_lshl_b32 s85, s{S_WAVE}, 5\nv_add_u32 v{T+3}, s85, v{V_C}")
    k(f"s_mul_i32 s86, s84, 12288\ns_lshl_b32 s87, s{S_HP}, 7\ns_add_u32 s86, s86, s87")
    k(f"s_mul_i32 s87, s{S_WAVE}, {16*12288}\ns_add_u32 s87, s87, s86\ns_add_u32 s88, s87, {8*12288}")
    k(f"v_lshrrev_b32 v{T+4}, 5, v{LANE}\nv_lshlrev_b32 v{T+4}, 11, v{T+4}\nv_and_b32 v{T+5}, 31, v{LANE}\nv_lshl_add_u32 v{T+4}, v{T+5}, 4, v{T+4}")
    k(f"s_lshl_b32 s89, s{S_RB1}, 4\ns_add_u32 s89, s89, s{S_HP}")
    k(f"s_lshl_b32 s90, s89, 14\ns_lshl_b32 s91, s{S_WAVE}, 12\ns_add_u32 s90, s90, s91")
    k(f"v_mov_b32 v{T+8}, 0\nv_mov_b32 v{T+9}, 0\nv_mov_b32 v{T+10}, 0\nv_mov_b32 v{T+11}, 0\nv_mov_b32 v{T+12}, 1")
    k(f"v_lshlrev_b32 v{T+7}, {FS}, v{LANE}")
    k(f"s_lshl_b32 s93, s2, {FS+6}\ns_add_u32 s93, s93, {F_S0}\ns_cmp_lt_u32 s2, 4\ns_cselect_b32 s93, s93, 0x7ff00000\ns_cmp_eq_u32 s{S_WAVE}, 3\ns_cselect_b32 s93, s93, 0x7ff00000")
    k("s_waitcnt lgkmcnt(0)")
    srd(k, SRD_F, P_WS, FLAG_BYTES, WS_FLAG)
    k(f"buffer_store_dword v{T+8}, v{T+7}, {sr(SRD_F,4)}, s93 offen sc1")
    k(f"s_mov_b32 s{SRD_T}, s{P_DBG}\ns_mov_b32 s{SRD_T+1}, s{P_DBG+1}\ns_mov_b32 s{SRD_T+2}, 256\ns_mov_b32 s{SRD_T+3}, 0x20000")
    k("s_mov_b32 s95, s93")
    srd(k, SRD_D, P_WMOD, D * 6 * D * 2)
    srd(k, SRD_A, P_X, S * D * 2)
    for i in range(2): k(f"global_load_ushort v{CA+2*i}, v{T+3}, s[{P_C}:{P_C+1}] offset:{i*16}")
    for i in range(2):
        for v in range(2): k(f"buffer_load_dwordx4 {vr(WA+(i*2+v)*4,4)}, v{V_W}, {sr(SRD_D,4)}, s{87+i} offen offset:{v*2048}")
    for i in range(4): k(f"buffer_load_dwordx4 {vr(XR+4*i,4)}, v{T+4}, {sr(SRD_A,4)}, s90 offen offset:{i*512}")
    k.stamp("loads issued")
    srd(k, SRD_B, P_WS, MP_BYTES, WS_MODP)
    srd(k, SRD_C, P_WS, S * 128, WS_STAT)
    w3, jn = k.label("w3"), k.label("join")
    k(f"s_cmp_eq_u32 s{S_WAVE}, 3\ns_cbranch_scc1 {w3}")
    k(f"s_lshl_b32 s92, s2, 1\ns_add_u32 s92, s92, s{S_WAVE}\ns_sub_u32 s92, s92, 1")
    nt_ = k.label("notouch")
    k("s_mov_b32 s93, 0x7ff00000")
    for i in range(2): k(f"buffer_load_dword a233, v{V_W}, {sr(SRD_D,4)}, s93 offen")
    k(f"s_cmp_eq_u32 s{S_WAVE}, 0\ns_cbranch_scc1 {nt_}")
    for ptr, per in ((P_WQKV, 12), (P_WO, 4), (P_WMOD, 24)):
        k(f"s_mul_i32 s93, s92, {per}\nv_min_u32 v{T+14}, {per-1}, v{LANE}\nv_add_u32 v{T+14}, s93, v{T+14}")
        k(f"v_lshlrev_b32 v{T+14}, 10, v{T+14}")
        k(f"global_load_dword a232, v{T+14}, s[{ptr}:{ptr+1}] offset:384")
    k(f"s_branch {jn}")
    k(f"{nt_}:")
    for i in range(3): k(f"buffer_load_dword a233, v{V_W}, {sr(SRD_D,4)}, s93 offen")
    k(f"s_branch {jn}")
    k(f"{w3}:")
    nb = k.label("nboot")
    k(f"s_cmp_eq_u32 s95, 0x7ff00000\ns_cbranch_scc1 {nb}")
    k("s_lshl_b32 s93, s2, 2\ns_waitcnt vmcnt(10)")
    k(f"buffer_store_dword v{T+12}, v{T+8}, {sr(SRD_T,4)}, s93 offen sc1")
    k(f"{nb}:")
    k(f"v_and_b32 v{T+14}, 3, v{LANE}\nv_lshlrev_b32 v{T+14}, 4, v{T+14}")
    k(f"s_lshl_b32 s93, s{S_RB1}, 6\ns_add_u32 s93, s93, s{S_HP}\nv_add_u32 v{T+15}, s93, v{T+14}")
    k(f"s_lshl_b32 s93, s{S_HP}, 6\ns_add_u32 s93, s93, s{S_RB1}\ns_add_u32 s93, s93, 1024\nv_add_u32 v{T+14}, s93, v{T+14}")
    k(f"v_cmp_gt_u32 vcc, 4, v{LANE}\ns_mul_i32 s93, s2, 24\ns_add_u32 s93, s93, 2040")
    k(f"v_cndmask_b32 v{T+14}, v{T+14}, v{T+15}, vcc\nv_add_u32 v{T+15}, s93, v{LANE}")
    k(f"v_cmp_gt_u32 vcc, 8, v{LANE}\ns_nop 1\nv_cndmask_b32 v{T+14}, v{T+15}, v{T+14}, vcc")
    k(f"v_cmp_gt_u32 vcc, 32, v{LANE}\nv_mov_b32 v{T+15}, 0x100000\ns_nop 0\nv_cndmask_b32 v{T+14}, v{T+15}, v{T+14}, vcc")
    k(f"v_lshlrev_b32 v{T+14}, {FS}, v{T+14}")
    k(f"buffer_store_dword v{T+8}, v{T+14}, {sr(SRD_F,4)}, 0 offen sc1")
    k("s_mov_b32 s93, 0x7ff00000")
    for i in range(2): k(f"buffer_load_dword a233, v{V_W}, {sr(SRD_D,4)}, s93 offen")
    k("s_lshl_b32 s93, s2, 10")
    k(f"buffer_store_dwordx4 {vr(T+8,4)}, v{L16}, {sr(SRD_C,4)}, s93 offen sc1")
    k(f"s_add_u32 s93, s93, {MP_B}")
    k(f"buffer_store_dwordx4 {vr(T+8,4)}, v{L16}, {sr(SRD_B,4)}, s93 offen sc1")
    k(f"{jn}:")
    k(f"v_lshlrev_b32 v{T+5}, 11, v{T+1}\nv_lshl_add_u32 v{T+5}, v{T+2}, 4, v{T+5}")
    k(f"s_lshl_b32 s91, s{S_RB1}, 18\ns_lshl_b32 s92, s{S_WAVE}, 16\ns_add_u32 s91, s91, s92\ns_lshl_b32 s92, s{S_HP}, 7\ns_add_u32 s91, s91, s92")
    for i in range(4):
        k(f"buffer_load_dwordx4 {vr(XT_+4*i,4)}, v{T+5}, {sr(SRD_A,4)}, s91 offen")
        if i < 3: k("s_add_u32 s91, s91, 16384")
    k(f"s_lshl_b32 s94, s{S_WAVE}, 11\ns_add_u32 s{S_MB}, s86, s94\ns_add_u32 s{S_MB}, s{S_MB}, 4096")
    k(f"s_lshl_b32 s94, s{S_WAVE}, 16\ns_lshl_b32 s95, s{S_HP}, 12\ns_add_u32 s94, s94, s95\ns_lshl_b32 s95, s{S_RB1}, 8\ns_add_u32 s94, s94, s95\ns_add_u32 s{S_MO}, s94, {MP_B}")
    young = 9
    k.stamp("all issued")
    k(f"s_waitcnt vmcnt({young + 8})")
    k.stamp("c ready")
    silu_block(k, [CA, CA + 2])
    k(f"s_waitcnt vmcnt({young + 4})")
    k.stamp("w ready")
    for i in range(2):
        for v in range(2):
            for d in range(4):
                w_ = WA + (i * 2 + v) * 4 + d
                k(f"v_lshlrev_b32 v{T+14}, 16, v{w_}\nv_and_b32 v{T+15}, 0xffff0000, v{w_}")
                if i == 0: k(f"v_pk_mul_f32 {vr(A0+v*8+2*d,2)}, {vr(T+14,2)}, {vr(CA,2)} op_sel_hi:[1,0]")
                else: k(f"v_pk_fma_f32 {vr(A0+v*8+2*d,2)}, {vr(T+14,2)}, {vr(CA+2,2)}, {vr(A0+v*8+2*d,2)} op_sel_hi:[1,0,1]")
    k("s_nop 1")
    for j in range(8): k(f"v_permlane32_swap_b32 v{A0+j}, v{A0+8+j}")
    k("s_nop 1")
    for j in range(8): k(f"v_add_f32 v{A0+j}, v{A0+j}, v{A0+8+j}")
    k("s_nop 1")
    for j in range(4): k(f"v_permlane16_swap_b32 v{A0+j}, v{A0+4+j}")
    k("s_nop 1")
    for j in range(4): k(f"v_add_f32 v{A0+j}, v{A0+j}, v{A0+4+j}")
    k("s_nop 1")
    for j in range(4): k(f"v_add_f32_dpp v{A0+j}, v{A0+j}, v{A0+j} row_ror:8 row_mask:0xf bank_mask:0xf")
    k(f"v_lshrrev_b32 v{T+13}, 5, v{LANE}\nv_lshlrev_b32 v{T+14}, 8, v{T+13}\nv_lshl_add_u32 v{T+14}, v{T+2}, 5, v{T+14}")
    k(f"v_bfe_u32 v{T+15}, v{LANE}, 4, 1\nv_lshl_add_u32 v{T+14}, v{T+15}, 4, v{T+14}\ns_lshl_b32 s94, s{S_WAVE}, 9\nv_add_u32 v{T+14}, s94, v{T+14}")
    k(f"ds_write_b128 v{T+14}, {vr(A0,4)} offset:{HL}")
    k(f"s_waitcnt vmcnt({young})")
    for d in range(16): k(f"v_lshlrev_b32 v{XF+2*d}, 16, v{XR+d}\nv_and_b32 v{XF+2*d+1}, 0xffff0000, v{XR+d}")
    k(f"v_pk_add_f32 {vr(SU,2)}, {vr(XF,2)}, {vr(XF+2,2)}")
    for d in range(2, 16): k(f"v_pk_add_f32 {vr(SU,2)}, {vr(SU,2)}, {vr(XF+2*d,2)}")
    k(f"v_add_f32 v{SU}, v{SU}, v{SU+1}")
    red32(k, SU, SU + 1)
    k(f"v_mul_f32 v{SU+2}, {-1.0/1024!r}, v{SU}")
    k(f"v_mov_b32 v{SU}, 0\nv_mov_b32 v{SU+1}, 0")
    for d in range(16):
        k(f"v_pk_add_f32 {vr(XF+2*d,2)}, {vr(XF+2*d,2)}, {vr(SU+2,2)} op_sel_hi:[1,0]")
        k(f"v_pk_fma_f32 {vr(SU,2)}, {vr(XF+2*d,2)}, {vr(XF+2*d,2)}, {vr(SU,2)}")
    k(f"v_add_f32 v{SU}, v{SU}, v{SU+1}")
    red32(k, SU, SU + 1)
    k(f"v_mov_b32 v{SU+1}, 0x3727c5ac\nv_fmac_f32 v{SU+1}, {1.0/1024!r}, v{SU}\nv_rsq_f32 v{SU+3}, v{SU+1}")
    k(f"s_lshl_b32 s94, s{S_WAVE}, 4\nv_lshlrev_b32 v{T+13}, 3, v{T+13}\nv_add_u32 v{T+13}, s94, v{T+13}")
    k(f"ds_write_b64 v{T+13}, {vr(SU+2,2)} offset:{HL+2048}")
    n3 = k.label("not3")
    k(f"s_cmp_lg_u32 s{S_WAVE}, 3\ns_cbranch_scc1 {n3}")
    k(f"v_and_b32 v{T+14}, 3, v{LANE}\nv_lshlrev_b32 v{T+14}, 2, v{T+14}")
    spin(k, [f"buffer_load_dword v{T+13}, v{T+14}, {sr(SRD_T,4)}, 0 offen sc1"], [T + 13], 0)
    k(f"{n3}:")
    k("s_waitcnt lgkmcnt(0)\ns_barrier")
    k.stamp("partials")
    nw0 = k.label("notw0")
    k(f"v_lshlrev_b32 v{T+6}, 3, v{LANE}")
    k(f"s_cmp_lg_u32 s{S_WAVE}, 0\ns_cbranch_scc1 {nw0}")
    for w in range(4): k(f"ds_read_b64 {vr(A0+2*w,2)}, v{T+6} offset:{HL+w*512}")
    k(f"v_and_b32 v{T+9}, 0x38, v{T+6}")
    k(f"ds_read_b64 {vr(A0+8,2)}, v{T+9} offset:{HL+2048}")
    k(f"s_lshl_b32 s94, s{S_HP}, 13\ns_lshl_b32 s95, s{S_RB1}, 9\ns_add_u32 s95, s95, s94")
    k(f"s_lshl_b32 s90, s89, 6\ns_add_u32 s90, s90, {MP_RS}")
    k("s_waitcnt lgkmcnt(0)")
    k(f"v_pk_add_f32 {vr(A0,2)}, {vr(A0,2)}, {vr(A0+2,2)}\nv_pk_add_f32 {vr(A0+4,2)}, {vr(A0+4,2)}, {vr(A0+6,2)}\nv_pk_add_f32 {vr(A0,2)}, {vr(A0,2)}, {vr(A0+4,2)}")
    k(f"buffer_store_dwordx2 {vr(A0,2)}, v{T+6}, {sr(SRD_B,4)}, s95 offen sc1")
    k(f"buffer_store_dwordx2 {vr(A0+8,2)}, v{T+9}, {sr(SRD_B,4)}, s90 offen sc1")
    k(f"s_lshl_b32 s90, s89, {FS}\ns_add_u32 s90, s90, {F_S0}")
    k("s_waitcnt vmcnt(0)")
    k(f"buffer_store_dword v{T+12}, v{T+8}, {sr(SRD_F,4)}, s90 offen sc1")
    if opt.get("modb_front", 0):
        sk_ = k.label("skmf")
        k(f"s_branch {sk_}")
        k(f"{nw0}:")
        k("s_waitcnt vmcnt(0)")
        for g in modb_loads(S_MB, V_W, V_C):
            for x in g: k(x)
        k(f"s_mov_b32 s{S_MB}, 0x7ff00000")
        k(f"{sk_}:")
    elif opt.get("wq_l2", 0):
        sk_ = k.label("skq")
        k(f"s_branch {sk_}")
        k(f"{nw0}:")
        srd(k, SRD_W, P_WQKV, D * 3 * D * 2)
        k("s_waitcnt vmcnt(0)")
        k(f"s_lshr_b32 s92, s{S_IDX}, 2\ns_mul_i32 s92, s92, {128*6144}\ns_lshl_b32 s93, s{S_WAVE}, 11\ns_add_u32 s92, s92, s93\ns_lshl_b32 s93, s{S_HP}, 7\ns_add_u32 s92, s92, s93\ns_sub_u32 s92, s92, 2048")
        k(f"v_mul_u32_u24 v{T+14}, 6144, v{LANE}\ns_add_u32 s93, s92, {64*6144}")
        k(f"buffer_load_dword a232, v{T+14}, {sr(SRD_W,4)}, s92 offen")
        if opt["wq_l2"] > 1: k(f"buffer_load_dword a232, v{T+14}, {sr(SRD_W,4)}, s93 offen")
        k(f"{sk_}:")
    else:
        k(f"{nw0}:")
    k.stamp("s0 published")
    split = opt.get("split", 1)
    g1 = (setup_gemm1s if split else setup_gemm1)(k, opt)
    srd(k, SRD_W, P_WQKV, D * 3 * D * 2)
    if not opt.get("modb_front", 0) and not opt.get("wq_l2", 0):
        k("s_waitcnt vmcnt(1)")
        k(f"s_cmp_eq_u32 s{S_WAVE}, 0\ns_cbranch_scc1 1\ns_waitcnt vmcnt(0)")
    for d in range(16): k(f"v_lshlrev_b32 v{XF+2*d}, 16, v{XT_+d}\nv_and_b32 v{XF+2*d+1}, 0xffff0000, v{XT_+d}")
    VS = T + 4
    k(f"v_lshrrev_b32 v{VS}, 2, v{T+2}\nv_lshlrev_b32 v{VS}, 10, v{VS}")
    k(f"v_and_b32 v{T+3}, 3, v{T+2}\nv_lshl_add_u32 v{VS}, v{T+3}, 8, v{VS}\nv_lshl_add_u32 v{VS}, v{T+1}, 4, v{VS}")
    k(f"s_lshl_b32 s86, s{S_RB1}, 3\ns_lshl_b32 s87, s{S_WAVE}, 1\ns_add_u32 s86, s86, s87\ns_lshl_b32 s86, s86, 15\ns_lshl_b32 s87, s{S_HP}, 11\ns_add_u32 s86, s86, s87\ns_add_u32 s87, s86, 0x8000")
    k(f"s_lshl_b32 s88, s{S_RB1}, 2\ns_add_u32 s88, s88, s{S_WAVE}\ns_lshl_b32 s88, s88, {FS+4}\ns_add_u32 s88, s88, {F_H}\ns_lshl_b32 s89, s{S_HP}, {FS}\ns_add_u32 s89, s89, s88")
    k(f"v_lshlrev_b32 v{T+5}, 5, v{T+2}")
    k(f"s_lshl_b32 s92, s{S_WAVE}, 8\nv_lshlrev_b32 v{T+7}, 3, v{T+1}\nv_add_u32 v{T+7}, s92, v{T+7}")
    nw1 = k.label("notw0b")
    k(f"s_cmp_lg_u32 s{S_WAVE}, 0\ns_cbranch_scc1 {nw1}")
    k(f"v_and_b32 v{T+9}, 15, v{LANE}\ns_lshl_b32 s92, s{S_RB1}, 4\nv_add_u32 v{T+10}, s92, v{T+9}\nv_lshlrev_b32 v{T+9}, 4, v{T+9}\nv_add_u32 v{T+9}, s{S_HP}, v{T+9}")
    k(f"v_and_b32 v{T+11}, 16, v{LANE}\nv_cmp_eq_u32 vcc, 0, v{T+11}\ns_mov_b32 s92, {F_S0}\ns_nop 0")
    k(f"v_cndmask_b32 v{T+9}, v{T+9}, v{T+10}, vcc\nv_lshlrev_b32 v{T+9}, {FS}, v{T+9}")
    spin(k, [f"buffer_load_dword v{T+13}, v{T+9}, {sr(SRD_F,4)}, s92 offen sc1"], [T + 13], 0)
    k(f"s_lshl_b32 s94, s{S_HP}, 13\ns_add_u32 s95, s94, 4096")
    for p_ in range(16): k(f"buffer_load_dwordx2 {vr(G+2*p_,2)}, v{T+6}, {sr(SRD_B,4)}, s{94+p_//8} offen offset:{(p_%8)*512} sc1")
    k(f"s_lshl_b32 s90, s{S_RB1}, 10\ns_add_u32 s90, s90, {MP_RS}")
    k(f"buffer_load_dwordx4 {vr(A0+8,4)}, v{L16}, {sr(SRD_B,4)}, s90 offen sc1")
    k(f"v_cmp_lt_u32 vcc, 31, v{LANE}")
    k("s_waitcnt vmcnt(1)")
    for st in (8, 4, 2, 1):
        for j in range(st): k(f"v_pk_add_f32 {vr(G+2*j,2)}, {vr(G+2*j,2)}, {vr(G+2*(j+st),2)}")
    k(f"v_cvt_pk_bf16_f32 v{G+2}, v{G}, v{G+1}\nv_lshlrev_b32 v{G}, 16, v{G+2}\nv_and_b32 v{G+1}, 0xffff0000, v{G+2}")
    k(f"v_pk_add_f32 {vr(G+4,2)}, {vr(G,2)}, 1.0 op_sel_hi:[1,0]")
    k(f"v_cvt_pk_bf16_f32 v{G+2}, v{G+4}, v{G+5}\nv_lshlrev_b32 v{G+4}, 16, v{G+2}\nv_and_b32 v{G+5}, 0xffff0000, v{G+2}")
    k(f"v_cndmask_b32 v{G}, v{G}, v{G+4}, vcc\nv_cndmask_b32 v{G+1}, v{G+1}, v{G+5}, vcc")
    k(f"ds_write_b64 v{T+6}, {vr(G,2)} offset:{HL+4096}")
    k("s_waitcnt vmcnt(0)")
    k(f"ds_write_b128 v{L16}, {vr(A0+8,4)} offset:{HL+5120}")
    k("s_waitcnt lgkmcnt(0)")
    k(f"{nw1}:")
    g1.prefetch(k, opt.get("h_pre0", 0))
    srd(k, SRD_T, P_WS, S * D * 2, WS_H)
    k("s_barrier")
    k.stamp("s0 ready")
    for h in range(2): k(f"ds_read_b128 {vr(M+4*h,4)}, v{T+5} offset:{HL+4096+h*16}\nds_read_b128 {vr(M+8+4*h,4)}, v{T+5} offset:{HL+4096+256+h*16}")
    for i in range(4): k(f"ds_read_b64 {vr(RS+2*i,2)}, v{T+7} offset:{HL+5120+i*64}")
    k("s_waitcnt lgkmcnt(0)")
    for i in range(4):
        for j in range(4): k(f"v_pk_add_f32 {vr(XF+8*i+2*j,2)}, {vr(XF+8*i+2*j,2)}, {vr(RS+2*i,2)} op_sel_hi:[1,0]")
        for j in range(4): k(f"v_pk_mul_f32 {vr(XF+8*i+2*j,2)}, {vr(XF+8*i+2*j,2)}, {vr(RS+2*i,2)} op_sel:[0,1] op_sel_hi:[1,1]")
        for j in range(4): k(f"v_pk_fma_f32 {vr(XF+8*i+2*j,2)}, {vr(XF+8*i+2*j,2)}, {vr(M+8+2*j,2)}, {vr(M+2*j,2)}")
        for j in range(4): k(f"v_cvt_pk_bf16_f32 v{XR+4*i+j}, v{XF+8*i+2*j}, v{XF+8*i+2*j+1}")
        k(f"buffer_store_dwordx4 {vr(XR+4*i,4)}, v{VS}, {sr(SRD_T,4)}, s{86 + i//2} offen offset:{(i%2)*128} sc1")
    k.stamp("h computed")
    mk = len(k.L)
    g1.prefetch(k, opt.get("h_pre1a", 4 if split else 6))
    publish(k, 89, T, mk)
    k.stamp("h published")
    g1.prefetch(k, opt.get("h_pre1", 8 if split else 6))
    if not split:
        k.g3 = setup_gemm3_early(k, opt, LANE, 56)
        for i in range(8): k(f"global_load_ushort {ar(A_UT+32+i,1)}, v{V_C}, s[{P_C}:{P_C+1}] offset:{i*16}")
    k(f"v_and_b32 v252, 15, v{LANE}\nv_lshlrev_b32 v252, {FS}, v252\ns_mov_b32 s93, s88")
    staged_wait(k, g1, opt.get("g1_T", 4), 252, 93, 253, one_prod)
    k.stamp("h ready")
    return g1

def phase_front(k, opt, name):
    LANE, L16 = 104, 105
    T = 48
    V_W, V_C = 115, 109
    RS, XR, XT_, XF, G, M = 64, 128, 144, 0, 160, 32
    HL = 2 * 25344
    k(f"v_and_b32 v{LANE}, 63, v0")
    k(f"v_lshrrev_b32 v{T+1}, 3, v{LANE}\nv_and_b32 v{T+2}, 7, v{LANE}")
    k(f"v_lshlrev_b32 v{T+5}, 11, v{T+1}\nv_lshl_add_u32 v{T+5}, v{T+2}, 4, v{T+5}")
    k(f"s_lshl_b32 s91, s{S_RB1}, 18\ns_lshl_b32 s92, s{S_WAVE}, 16\ns_add_u32 s91, s91, s92\ns_lshl_b32 s92, s{S_HP}, 7\ns_add_u32 s91, s91, s92")
    k(f"v_lshlrev_b32 v{T+8}, 3, v{LANE}\nv_lshlrev_b32 v{T+6}, 3, v{T+1}")
    k(f"s_lshl_b32 s94, s{S_HP}, 13\ns_add_u32 s95, s94, 4096")
    k(f"s_lshl_b32 s90, s{S_RB1}, 10\ns_lshl_b32 s93, s{S_WAVE}, 8\ns_add_u32 s90, s90, s93\ns_add_u32 s90, s90, {MP_RS}")
    k("s_waitcnt lgkmcnt(0)")
    srd(k, SRD_B, P_WS, MP_BYTES, WS_MODP)
    srd(k, SRD_A, P_X, S * D * 2)
    for p_ in range(16): k(f"buffer_load_dwordx2 {vr(G+2*p_,2)}, v{T+8}, {sr(SRD_B,4)}, s{94+p_//8} offen offset:{(p_%8)*512}")
    for i in range(4): k(f"buffer_load_dwordx2 {vr(RS+2*i,2)}, v{T+6}, {sr(SRD_B,4)}, s90 offen offset:{i*64}")
    for i in range(4):
        k(f"buffer_load_dwordx4 {vr(XT_+4*i,4)}, v{T+5}, {sr(SRD_A,4)}, s91 offen")
        if i < 3: k("s_add_u32 s91, s91, 16384")
    k.stamp("loads issued")
    def touch(ptr, per, vt, off=0):
        k(f"s_lshl_b32 s80, s2, 2\ns_add_u32 s80, s80, s{S_WAVE}\ns_mul_i32 s80, s80, {per*128}")
        if off: k(f"s_add_u32 s80, s80, {off}")
        k(f"v_min_u32 v{vt}, {per-1}, v{LANE}\nv_lshlrev_b32 v{vt}, 7, v{vt}\nv_add_u32 v{vt}, s80, v{vt}")
        k(f"global_load_dword a232, v{vt}, s[{ptr}:{ptr+1}]")
    nt0 = 0
    if opt.get("m_touch", 0) == 1: touch(P_WQKV, 48, 254); nt0 = 1
    g1 = setup_gemm1(k, opt)
    srd(k, SRD_W, P_WQKV, D * 3 * D * 2)
    n0 = opt.get("h_pre0", 6)
    g1.prefetch(k, n0)
    n0 += nt0
    srd(k, SRD_F, P_WS, FLAG_BYTES, WS_FLAG)
    srd(k, SRD_T, P_WS, S * D * 2, WS_H)
    VS = T + 4
    k(f"v_lshrrev_b32 v{VS}, 2, v{T+2}\nv_lshlrev_b32 v{VS}, 10, v{VS}")
    k(f"v_and_b32 v{T+3}, 3, v{T+2}\nv_lshl_add_u32 v{VS}, v{T+3}, 8, v{VS}\nv_lshl_add_u32 v{VS}, v{T+1}, 4, v{VS}")
    k(f"s_lshl_b32 s86, s{S_RB1}, 3\ns_lshl_b32 s87, s{S_WAVE}, 1\ns_add_u32 s86, s86, s87\ns_lshl_b32 s86, s86, 15\ns_lshl_b32 s87, s{S_HP}, 11\ns_add_u32 s86, s86, s87\ns_add_u32 s87, s86, 0x8000")
    k(f"s_lshl_b32 s88, s{S_WAVE}, 9\nv_add_u32 v{T+8}, s88, v{T+8}\nv_lshlrev_b32 v{T+5}, 5, v{T+2}\nv_add_u32 v{T+5}, s88, v{T+5}")
    k(f"s_lshl_b32 s88, s{S_RB1}, 2\ns_add_u32 s88, s88, s{S_WAVE}\ns_lshl_b32 s88, s88, {FS+4}\ns_add_u32 s88, s88, {F_H}\ns_lshl_b32 s89, s{S_HP}, {FS}\ns_add_u32 s89, s89, s88")
    k(f"v_cmp_lt_u32 vcc, 31, v{LANE}")
    k(f"s_waitcnt vmcnt({8 + n0})")
    for st in (8, 4, 2, 1):
        for j in range(st): k(f"v_pk_add_f32 {vr(G+2*j,2)}, {vr(G+2*j,2)}, {vr(G+2*(j+st),2)}")
    k(f"v_cvt_pk_bf16_f32 v{G+2}, v{G}, v{G+1}\nv_lshlrev_b32 v{G}, 16, v{G+2}\nv_and_b32 v{G+1}, 0xffff0000, v{G+2}")
    k(f"v_pk_add_f32 {vr(G+4,2)}, {vr(G,2)}, 1.0 op_sel_hi:[1,0]")
    k(f"v_cvt_pk_bf16_f32 v{G+2}, v{G+4}, v{G+5}\nv_lshlrev_b32 v{G+4}, 16, v{G+2}\nv_and_b32 v{G+5}, 0xffff0000, v{G+2}")
    k(f"v_cndmask_b32 v{G}, v{G}, v{G+4}, vcc\nv_cndmask_b32 v{G+1}, v{G+1}, v{G+5}, vcc")
    k(f"ds_write_b64 v{T+8}, {vr(G,2)} offset:{HL}")
    k("s_waitcnt lgkmcnt(0)")
    for h in range(2): k(f"ds_read_b128 {vr(M+4*h,4)}, v{T+5} offset:{HL+h*16}\nds_read_b128 {vr(M+8+4*h,4)}, v{T+5} offset:{HL+256+h*16}")
    for i in range(4):
        k(f"s_waitcnt vmcnt({3 - i + n0})")
        for d in range(4): k(f"v_lshlrev_b32 v{XF+8*i+2*d}, 16, v{XT_+4*i+d}\nv_and_b32 v{XF+8*i+2*d+1}, 0xffff0000, v{XT_+4*i+d}")
        for j in range(4): k(f"v_pk_add_f32 {vr(XF+8*i+2*j,2)}, {vr(XF+8*i+2*j,2)}, {vr(RS+2*i,2)} op_sel_hi:[1,0]")
        for j in range(4): k(f"v_pk_mul_f32 {vr(XF+8*i+2*j,2)}, {vr(XF+8*i+2*j,2)}, {vr(RS+2*i,2)} op_sel:[0,1] op_sel_hi:[1,1]")
    k("s_waitcnt lgkmcnt(0)")
    for i in range(4):
        for j in range(4): k(f"v_pk_fma_f32 {vr(XF+8*i+2*j,2)}, {vr(XF+8*i+2*j,2)}, {vr(M+8+2*j,2)}, {vr(M+2*j,2)}")
        for j in range(4): k(f"v_cvt_pk_bf16_f32 v{XR+4*i+j}, v{XF+8*i+2*j}, v{XF+8*i+2*j+1}")
        k(f"buffer_store_dwordx4 {vr(XR+4*i,4)}, v{VS}, {sr(SRD_T,4)}, s{86 + i//2} offen offset:{(i%2)*128} sc1")
    k.stamp("h computed")
    code_prefetch_setup(k, name)
    srd(k, SRD_D, P_WMOD, D * 6 * D * 2)
    k(f"v_mul_u32_u24 v{V_W}, 12288, v{T+1}\nv_lshl_add_u32 v{V_W}, v{T+2}, 4, v{V_W}")
    k(f"s_lshl_b32 s84, s{S_RB1}, 6\nv_add_u32 v{V_C}, s84, v{T+1}\nv_lshlrev_b32 v{V_C}, 1, v{V_C}")
    k(f"s_mul_i32 s86, s84, 12288\ns_lshl_b32 s87, s{S_HP}, 7\ns_add_u32 s86, s86, s87")
    k(f"s_lshl_b32 s94, s{S_WAVE}, 11\ns_add_u32 s{S_MB}, s86, s94\ns_add_u32 s{S_MB}, s{S_MB}, 4096")
    k(f"s_lshl_b32 s94, s{S_WAVE}, 16\ns_lshl_b32 s95, s{S_HP}, 12\ns_add_u32 s94, s94, s95\ns_lshl_b32 s95, s{S_RB1}, 8\ns_add_u32 s94, s94, s95\ns_add_u32 s{S_MO}, s94, {MP_B}")
    k.g3 = setup_gemm3_early(k, opt, LANE, 56)
    publish(k, 89, T)
    k.stamp("h published")
    if opt.get("m_touch", 0) == 2: touch(P_WQKV, 48, 254)
    k("s_barrier")
    g1.prefetch(k, opt.get("h_pre1", 12))
    for i in range(8): k(f"global_load_ushort {ar(A_UT+32+i,1)}, v{V_C}, s[{P_C}:{P_C+1}] offset:{i*16}")
    k(f"v_and_b32 v252, 15, v{LANE}\nv_lshlrev_b32 v252, {FS}, v252\ns_mov_b32 s93, s88")
    staged_wait(k, g1, opt.get("g1_T", 4), 252, 93, 253, one_prod)
    k.stamp("h ready")
    return g1

def setup_gemm24(k, which, opt, base):
    c = Sched(); common_gemm(c)
    K = 1024 if which == 2 else 3584
    NS, R = opt.get("g2_NS", 4), opt.get(f"g{which}_R", 4)
    STAGE = 8448
    if isinstance(base, tuple): V_RD, V_DMA, V_TOK, LANE, L16, VT = base
    else:
        V_RD, V_DMA, V_TOK, LANE, L16, VT = base, base + 1, base + 2, base + 4, base + 5, base + 6
        lane_id(k, LANE)
        k(f"v_lshlrev_b32 v{L16}, 4, v{LANE}")
    c.LANE, c.L16 = LANE, L16
    hs = c.hs = opt.get("hsplit", 1) and opt.get("split", 1)
    order(c, k, opt, "g2", ["win", [8, 8], 0] if hs else ["win", [1, 1, 2, 4, 8], 1])
    if hs:
        c.w_off = lambda sd, kt: [T(x) for x in c.pos_txt(sd, kt)] + [T(f"s_mul_i32 s{sd}, s{sd}, {128*2048}")] + ([T(f"s_add_u32 s{sd}, s{sd}, {(32 - 8*128)*2048}")] if kt >= 8 else [])
        c.t_off = lambda sd, kt: [T(x) for x in c.pos_txt(sd, kt)] + [T(f"s_lshl_b32 s{sd}, s{sd}, 12")] + ([T(f"s_add_u32 s{sd}, s{sd}, {1024 - 8*4096}")] if kt >= 8 else [])
        c.sub_stride = 2048
    k(f"s_lshr_b32 s80, s{S_WAVE}, 1\ns_and_b32 s81, s{S_WAVE}, 1")
    k(f"s_lshl_b32 s82, s80, {6 if hs else 5}\ns_lshl_b32 s83, s81, 1\ns_add_u32 s82, s82, s83\ns_lshl_b32 s82, s82, 11")
    k(f"s_lshl_b32 s83, s{S_NT}, 7\ns_add_u32 s82, s82, s83")
    k(f"v_lshrrev_b32 v{VT}, 3, v{LANE}\nv_lshlrev_b32 v{VT}, 13, v{VT}")
    k(f"v_and_b32 v{VT+1}, 7, v{LANE}\nv_lshl_add_u32 v{VT}, v{VT+1}, 4, v{VT}")
    k(f"v_add_u32 v{V_DMA}, s82, v{VT}")
    V_DM2 = 101
    k(f"v_add_u32 v{V_DM2}, {2048-1056}, v{V_DMA}")
    k(f"v_bfe_u32 v{VT}, v{LANE}, 2, 2\nv_mul_u32_u24 v{VT}, 1056, v{VT}")
    k(f"v_lshrrev_b32 v{VT+1}, 4, v{LANE}\nv_lshl_add_u32 v{VT}, v{VT+1}, 7, v{VT}")
    k(f"v_and_b32 v{VT+1}, 3, v{LANE}\nv_lshl_add_u32 v{V_RD}, v{VT+1}, 3, v{VT}")
    k(f"v_add_u32 v{V_RD}, {L_R2}, v{V_RD}")
    if hs and opt.get("g2_tab", 1) and "g2_ord" not in opt:
        c.tab = (VT, VT + 1)
        k(f"v_add_u32 v{VT}, s{S_R8}, v{LANE}\nv_and_b32 v{VT}, 7, v{VT}\nv_lshlrev_b32 v{VT}, 2, v{VT}\nv_bfe_u32 v{VT+1}, v{LANE}, 3, 1\nv_or_b32 v{VT}, v{VT}, v{VT+1}")
        k(f"v_lshlrev_b32 v{VT+1}, 10, v{VT}\nv_lshlrev_b32 v{VT}, 16, v{VT}")
    c.V_RDX = V_RD
    k(f"s_lshl_b32 s82, s{S_RB2}, 3\ns_lshl_b32 s83, s{S_WAVE}, 1\ns_add_u32 s82, s82, s83\ns_mul_i32 s82, s82, {K//32*1024}")
    k(f"v_add_u32 v{V_TOK}, s82, v{L16}\nv_add_u32 v{V_TOK+1}, {K//32*1024}, v{V_TOK}")
    k(f"s_mul_i32 s{S_WB}, s80, 4224\ns_mul_i32 s82, s81, 2112\ns_add_u32 s{S_WB}, s{S_WB}, s82\ns_add_u32 s{S_WB}, s{S_WB}, {L_R2}")
    srd(k, SRD_W, P_WO if which == 2 else P_W2, K * D * 2)
    c.NB, c.TB, c.KS, c.SPK, c.KT, c.NS, c.R = 4, 2, 2, 1, K // 64, NS, R
    c.acc = lambda b, t: vr((b * 2 + t) * 4, 4)
    c.tf = lambda slot, ks, t: 64 + ((slot * 2 + ks) * 2 + t) * 4
    def sl_(sl): return (V_RD, 0, sl) if sl < 4 else ((42, 67584 - L_R2, sl - 4) if sl < 9 else (43, 1024 - L_R2, sl - 9))
    c.rd = lambda sl, b, sub, r: (sl_(sl)[0], sl_(sl)[2] * STAGE + sub * 4224 + r * 512 + b * 32)
    c.slot_addr = lambda sl: sl_(sl)[1] + sl_(sl)[2] * STAGE
    c.dma = [(V_DMA, 0, 0), (V_DM2, 1056, 1056)]
    c.v_tok = [V_TOK, V_TOK + 1]
    c.w_stride = 64 * 2048
    c.drop = opt.get(f"g{which}_drop", ())
    c.pro_units, c.ramp_rate, c.read_margin = opt.get(f"g{which}_pro", 12), opt.get(f"g{which}_ramp", 6), 4
    std_sched(c)
    return c

S_G80, S_G192 = 6, 7
def setup_gemm4p(k, opt, base):
    c = Sched(); common_gemm(c)
    HS = 8448; STAGE = 2 * HS
    L = 12; KT = 28; MAIN = KT - L
    V_RD, V_DE, V_DK, V_TOK, LANE, L16, VT = base, base + 2, base + 3, base + 4, base + 6, base + 7, base + 8
    c.LANE, c.L16, c.V_DE, c.V_DK, c.V_TOK = LANE, L16, V_DE, V_DK, V_TOK
    lane_id(k, LANE)
    k(f"v_lshlrev_b32 v{L16}, 4, v{LANE}")
    c.KT = KT
    order(c, k, opt, "g4", ["win", [4, 4, 8, 8, 4], 0])
    k(f"s_lshr_b32 s80, s{S_WAVE}, 1\ns_and_b32 s81, s{S_WAVE}, 1")
    k(f"s_mul_i32 s{S_G80}, s80, {80*2048}\ns_mul_i32 s{S_G192}, s80, {192*2048}")
    k("s_lshl_b32 s82, s80, 5\ns_lshl_b32 s83, s81, 1\ns_add_u32 s82, s82, s83")
    k(f"s_and_b32 s{S_TMP}, s{S_NT}, 1\ns_mul_i32 s83, s{S_TMP}, 1792\ns_add_u32 s82, s82, s83\ns_lshl_b32 s82, s82, 11")
    k(f"v_lshrrev_b32 v{VT}, 3, v{LANE}\nv_lshlrev_b32 v{VT}, 13, v{VT}")
    k(f"v_and_b32 v{VT+1}, 7, v{LANE}\nv_lshl_add_u32 v{VT}, v{VT+1}, 4, v{VT}")
    k(f"v_add_u32 v{VT}, s82, v{VT}")
    k(f"s_lshl_b32 s83, s{S_NT}, 7\nv_add_u32 v{V_DK}, s83, v{VT}\nv_xor_b32 v{V_DE}, 128, v{V_DK}")
    k(f"v_bfe_u32 v{VT}, v{LANE}, 2, 2\nv_mul_u32_u24 v{VT}, 1056, v{VT}")
    k(f"v_lshrrev_b32 v{VT+1}, 4, v{LANE}\nv_lshl_add_u32 v{VT}, v{VT+1}, 7, v{VT}")
    k(f"v_and_b32 v{VT+1}, 3, v{LANE}\nv_lshl_add_u32 v{V_RD+1}, v{VT+1}, 3, v{VT}")
    k(f"v_add_u32 v{V_RD}, {L_R2}, v{V_RD+1}")
    k(f"s_lshl_b32 s82, s{S_RB2}, 3\ns_lshl_b32 s83, s{S_WAVE}, 1\ns_add_u32 s82, s82, s83\ns_mul_i32 s82, s82, {112*1024}")
    k(f"s_mul_i32 s83, s{S_TMP}, {56*1024}\ns_add_u32 s82, s82, s83")
    k(f"v_add_u32 v{V_TOK}, s82, v{L16}\nv_add_u32 v{V_TOK+1}, {112*1024}, v{V_TOK}")
    k(f"s_mul_i32 s{S_WB}, s80, 4224\ns_mul_i32 s82, s81, 2112\ns_add_u32 s{S_WB}, s{S_WB}, s82")
    srd(k, SRD_W, P_W2, F * D * 2)
    c.drop = opt.get("g4_drop", ())
    V2E, V2K, V2T = 64, 65, 66
    c.V2 = (V2E, V2K, V2T)
    NS4 = opt.get("g4_NS", 8)
    slot_addr = [L_R2, L_R2 + STAGE] + [1024 + i * STAGE for i in range(6)]
    c.V_RD3 = 68; c.V_RD = V_RD
    def rd(sl, half, b, sub, r):
        off = half * HS + sub * 4224 + r * 512 + b * 32
        if sl < 2: return (V_RD, sl * STAGE + off)
        if sl < 5: return (V_RD + 1, slot_addr[sl] + off)
        return (c.V_RD3, slot_addr[sl] - slot_addr[5] + off)
    c.rd3_base = slot_addr[5]
    NT_ = 2 * L
    tf = lambda kt, sub, t: 64 + (((kt * 2 + sub) % NT_) * 2 + t) * 4
    acc = lambda b, t: vr((b * 2 + t) * 4, 4)
    c.wf = lambda buf, j: (buf * 8 + j) * 4
    typ = lambda kt: "A" if kt < 16 else ("B1" if kt < 24 else "B2")
    if opt.get("g4_fast", 1):
        base_pos = c.pos_txt
        def pos2(sd, kt):
            o = base_pos(sd, kt)
            if kt >= 16: return o
            t_ = S_PTMP
            o += [f"s_and_b32 s{t_}, s{sd}, 1", f"s_and_b32 s{sd}, s{sd}, 6", f"s_lshl_b32 s{sd}, s{sd}, 1"]
            o += [f"s_mul_i32 s{t_}, s{t_}, 3"] if kt < 8 else [f"s_add_u32 s{t_}, s{t_}, 1"]
            o += [f"s_add_u32 s{sd}, s{sd}, s{t_}"]
            return o
        c.pos_txt = pos2
    def w_off(sd, kt):
        o = [T(x) for x in c.pos_txt(sd, kt)]
        if typ(kt) == "A": o.append(T(f"s_mul_i32 s{sd}, s{sd}, {112*2048}"))
        elif typ(kt) == "B1": o += [T(f"s_mul_i32 s{sd}, s{sd}, {224*2048}"), T(f"s_add_u32 s{sd}, s{sd}, {(64 - 16*224)*2048}"), T(f"s_add_u32 s{sd}, s{sd}, s{S_G80}")]
        else: o += [T(f"s_mul_i32 s{sd}, s{sd}, {448*2048}"), T(f"s_add_u32 s{sd}, s{sd}, {(96 - 24*448)*2048}"), T(f"s_add_u32 s{sd}, s{sd}, s{S_G192}")]
        return o
    tab = opt.get("g4_tab", 1) and opt.get("g4_fast", 1) and "g4_ord" not in opt
    VW, VTT = 239, 232
    c.tabtxt = []
    if tab:
        t_ = Txt(); X, Y, Z = VT, VT + 1, 253
        t_(f"v_add_u32 v{X}, s{S_R4}, v{LANE}\nv_and_b32 v{X}, 3, v{X}\nv_and_b32 v{Y}, -4, v{LANE}\nv_or_b32 v{X}, v{X}, v{Y}")
        t_(f"v_add_u32 v{Y}, s{S_R8}, v{LANE}\nv_and_b32 v{Y}, 7, v{Y}\nv_and_b32 v{Z}, -8, v{LANE}\nv_or_b32 v{Y}, v{Y}, v{Z}")
        t_(f"v_subrev_u32 v{Z}, 8, v{LANE}\nv_cmp_gt_u32 vcc, 16, v{Z}\ns_nop 1\nv_cndmask_b32 v{X}, v{X}, v{Y}, vcc")
        t_(f"v_and_b32 v{Y}, 1, v{X}\nv_mul_u32_u24 v{Z}, 3, v{Y}\nv_add_u32 v{Y}, 1, v{Y}\nv_cmp_gt_u32 vcc, 8, v{LANE}\ns_nop 1\nv_cndmask_b32 v{Y}, v{Y}, v{Z}, vcc")
        t_(f"v_and_b32 v{Z}, 6, v{X}\nv_lshl_add_u32 v{Y}, v{Z}, 1, v{Y}")
        t_(f"v_mul_u32_u24 v{VW}, {112*2048}, v{Y}\nv_mul_u32_u24 v{VTT}, 3584, v{Y}")
        t_(f"v_subrev_u32 v{Y}, 16, v{X}\nv_mul_u32_u24 v{Z}, {224*2048}, v{Y}\nv_add_u32 v{Z}, {64*2048}, v{Z}\nv_add_u32 v{Z}, s{S_G80}, v{Z}")
        t_(f"v_cmp_lt_u32 vcc, 15, v{LANE}\nv_mul_u32_u24 v{Y}, 7168, v{Y}\nv_add_u32 v{Y}, 2048, v{Y}\nv_cndmask_b32 v{VW}, v{VW}, v{Z}, vcc\nv_cndmask_b32 v{VTT}, v{VTT}, v{Y}, vcc")
        t_(f"v_subrev_u32 v{Y}, 24, v{X}\nv_mul_u32_u24 v{Z}, {448*2048}, v{Y}\nv_add_u32 v{Z}, {96*2048}, v{Z}\nv_add_u32 v{Z}, s{S_G192}, v{Z}")
        t_(f"v_cmp_lt_u32 vcc, 23, v{LANE}\nv_mul_u32_u24 v{Y}, 14336, v{Y}\nv_add_u32 v{Y}, 3072, v{Y}\nv_cndmask_b32 v{VW}, v{VW}, v{Z}, vcc\nv_cndmask_b32 v{VTT}, v{VTT}, v{Y}, vcc")
        c.tabtxt = t_.L
    halves = [[("E", kt), ("K", kt)] for kt in range(MAIN)]
    halves += [[("E", MAIN + 2 * j), ("E", MAIN + 2 * j + 1)] for j in range(L // 2)]
    halves += [[("K", MAIN + 2 * j), ("K", MAIN + 2 * j + 1)] for j in range(L // 2)]
    seq = []
    for hv in halves:
        for _, kt in hv:
            if not seq or seq[-1] != kt: seq.append(kt)
    nseq = 0
    cur = None; flip = 0
    for st, hv in enumerate(halves):
        us = []
        for h, (kind, kt) in enumerate(hv):
            pre = []; post = []
            if cur != kt:
                flip ^= 1; cur = kt
                if not tab or nseq < opt.get("g4_tab0", 8): pre = w_off(c.s_kw + flip, kt)
                nseq += 1
                if tab and opt.get("g4_tab0", 8) <= nseq < len(seq): post = [T(f"v_readlane_b32 s{c.s_kw + (flip ^ 1)}, v{VW}, {seq[nseq]}")]
            vo = (V2E if kind == 'E' else V2K) if typ(kt) == "B2" else (V_DE if kind == 'E' else V_DK)
            alt = {V_DE: 69, V_DK: 75, V2E: 79, V2K: 71}[vo] if st >= 4 else None
            for i, goff in enumerate((0, 2048)):
                if i == 1 and alt is not None: vo, goff = alt, 1056
                us.append((pre if i == 0 else []) + [T(f"s_add_u32 m0, s{S_WB}, {slot_addr[st % NS4] + h * HS + i * 1056 - goff}"),
                          VM(f"buffer_load_dwordx4 v{vo}, {sr(SRD_W,4)}, s{c.s_kw + flip} offen" + (f" offset:{goff}" if goff else "") + " lds", ("dma", st))] + (post if i == 0 else []))
        c.stage_units[st] = us; c.stage_slot[st] = st % NS4
        for j in range(2):
            frags = []; toks = []
            parts = [(0, j), (1, j)] if st < MAIN else [(j, 0), (j, 1)]
            for h, sub in parts:
                kind, kt = hv[h]
                if (kt, sub) not in toks: toks.append((kt, sub))
                for b in range(4):
                    va, o0 = rd(st % NS4, h, b, sub, 0); _, o1 = rd(st % NS4, h, b, sub, 1)
                    frags.append((va, o0, o1, [(acc(b + (0 if kind == 'E' else 4), t), tf(kt, sub, t)) for t in range(2)]))
            c.steps.append(dict(frags=frags, stages=[st], toks=toks))
    for kt in range(KT):
        sd = c.s_kt + kt % 2
        for sub in range(2):
            us = []
            for t in range(2):
                g = []
                if sub == 0 and t == 0 and (not tab or kt < 4):
                    g = [T(x) for x in c.pos_txt(sd, kt)]
                    if typ(kt) == "A": g.append(T(f"s_mul_i32 s{sd}, s{sd}, 3584"))
                    elif typ(kt) == "B1": g += [T(f"s_mul_i32 s{sd}, s{sd}, 7168"), T(f"s_add_u32 s{sd}, s{sd}, {2048 - 16*7168}")]
                    else: g += [T(f"s_mul_i32 s{sd}, s{sd}, 14336"), T(f"s_add_u32 s{sd}, s{sd}, {3072 - 24*14336}")]
                key = ("tok", (kt, sub))
                if typ(kt) == "B2":
                    if sub == 1 and t == 0: g.append(T(f"s_add_u32 s{sd}, s{sd}, 7168"))
                    g.append(VM(f"buffer_load_dwordx2 {ar(tf(kt, sub, t),2)}, v{V2T+t}, {sr(SRD_T,4)}, s{sd} offen sc1", key))
                    g.append(VM(f"buffer_load_dwordx2 {ar(tf(kt, sub, t)+2,2)}, v{V2T+t}, {sr(SRD_T,4)}, s{sd} offen offset:3584 sc1", key))
                else:
                    g.append(VM(f"buffer_load_dwordx4 {ar(tf(kt, sub, t),4)}, v{V_TOK+t}, {sr(SRD_T,4)}, s{sd} offen offset:{sub*(1024 if typ(kt) == 'A' else 3584)} sc1", key))
                if tab and sub == 0 and t == 0 and 4 <= kt + 1 < KT: g.append(T(f"v_readlane_b32 s{c.s_kt + (kt + 1) % 2}, v{VTT}, {kt + 1}"))
                us.append(g)
            c.tok_units[(kt, sub)] = us; c.tok_slot[(kt, sub)] = (kt * 2 + sub) % NT_
    c.pro_units, c.ramp_rate, c.read_margin, c.lookahead = opt.get("g4_pro", 12), opt.get("g4_ramp", 5), 4, opt.get("g4_la", 12)
    c.MAIN, c.L = MAIN, L
    return c

def phase_gemm4p(k, c, opt):
    LANE, L16 = c.LANE, c.L16
    VT = 72
    srd(k, SRD_T, P_WS, S * F * 2, WS_HH)
    srd(k, SRD_A, P_OUT, S * D * 2)
    srd(k, SRD_B, P_WS, 8 << 20, WS_P4)
    V_G, V_GA, V_XA, V_X, IMP, VF = 96, 76, 77, 80, 128, 78
    for j in range(16): k(f"v_accvgpr_read_b32 v{V_X+j}, a{A_X1+j}")
    k(f"v_and_b32 v{VT}, 15, v{LANE}\nv_lshlrev_b32 v{VT}, {FS}, v{VT}")
    k(f"s_lshl_b32 s84, s{S_RB2}, 1\ns_lshr_b32 s85, s{S_WAVE}, 1\ns_add_u32 s84, s84, s85\ns_lshl_b32 s84, s84, {FS+5}\ns_add_u32 s84, s84, {F_HH}")
    k(f"s_and_b32 s85, s{S_NT}, 1\ns_lshl_b32 s85, s85, {FS+4}\ns_add_u32 s84, s84, s85")
    k(f"v_mov_b32 v252, v{VT}")
    c.tile_of = lambda key: key[0]
    k(f"s_add_u32 s85, s84, {F_HB - F_HH}")
    staged_wait(k, c, opt.get("g4_T", 8), 252, 84, 253, one_prod, pub=((93 if c.binl else 94), 70))
    add_gate(k, c, 16, f"buffer_load_dword v253, v252, {sr(SRD_F,4)}, s85 offen sc1", 253)
    k.stamp("hh ready")
    p = Txt()
    p(f"v_lshrrev_b32 v{VT}, 4, v{LANE}\nv_lshlrev_b32 v{V_GA}, 4, v{VT}\nv_add_u32 v{V_GA}, {L_MV}, v{V_GA}")
    p(f"v_and_b32 v{VT+1}, 15, v{LANE}\nv_lshlrev_b32 v{VT+1}, 11, v{VT+1}")
    p(f"v_and_b32 v{VT+2}, 1, v{VT}\nv_lshl_add_u32 v{VT+1}, v{VT+2}, 5, v{VT+1}")
    p(f"v_lshrrev_b32 v{VT+2}, 1, v{VT}\nv_lshl_add_u32 v{V_XA}, v{VT+2}, 4, v{VT+1}")
    p(f"s_lshl_b32 s86, s{S_RB2}, 3\ns_lshl_b32 s87, s{S_WAVE}, 1\ns_add_u32 s86, s86, s87\ns_lshl_b32 s86, s86, 15\ns_lshl_b32 s87, s{S_NT}, 7\ns_add_u32 s86, s86, s87\ns_add_u32 s87, s86, 32768")
    p(f"s_lshl_b32 s88, s{S_RB2}, 4\ns_add_u32 s88, s88, s{S_NT}\ns_lshl_b32 s88, s88, 2\ns_add_u32 s88, s88, s{S_WAVE}")
    p("s_xor_b32 s89, s88, 4")
    p(f"s_lshl_b32 s90, s88, 13\ns_add_u32 s91, s90, 4096\ns_lshl_b32 s92, s89, 13\ns_add_u32 s93, s92, 4096")
    p(f"s_lshl_b32 s88, s88, {FS}\ns_add_u32 s88, s88, {F_P4}\ns_lshl_b32 s89, s89, {FS}\ns_add_u32 s89, s89, {F_P4}")
    V2E, V2K, V2T = c.V2
    p(f"v_add_u32 v{c.V_RD3}, {c.rd3_base}, v{c.V_RD+1}")
    p(f"v_lshrrev_b32 v{VT}, 5, v{LANE}\nv_mul_u32_u24 v{VT}, {96*2048}, v{VT}\nv_add_u32 v{V2E}, v{c.V_DE}, v{VT}\nv_add_u32 v{V2K}, v{c.V_DK}, v{VT}")
    p(f"v_add_u32 v69, {2048-1056}, v{c.V_DE}\nv_add_u32 v75, {2048-1056}, v{c.V_DK}\nv_add_u32 v79, {2048-1056}, v{V2E}\nv_add_u32 v71, {2048-1056}, v{V2K}")
    p(f"v_lshrrev_b32 v{VT}, 1, v{L16}\nv_sub_u32 v{V2T}, v{c.V_TOK}, v{VT}\nv_sub_u32 v{V2T+1}, v{c.V_TOK+1}, v{VT}")
    p(f"v_mov_b32 v{VT}, 1\nv_mov_b32 v{VT+1}, 0")
    c.pre_loop_txt = p.L
    N = len(c.steps); p2 = N - c.L
    if c.binl:
        nbs = opt.get("binl_steps", 10); per = -(-len(c.binl) // nbs)
        c.gate_min = {16: nbs + 2 + opt.get("binl_gap", 8)}
        items = [VM(x, ("hb", 0)) if is_vm(x) else T(x) for x in c.binl]
        c.step_extra = lambda st: items[st * per:(st + 1) * per]
        c.late.setdefault(nbs + 2, []).extend([WVM([("hb", 0)]), f"buffer_store_dword v{VT}, v{VT+1}, {sr(SRD_F,4)}, s94 offen sc1"])
    for st_ in opt.get("cp4", []): c.late.setdefault(st_, []).extend(code_prefetch_txt(k.name, L16, 254, 80, junk="v240"))
    ex = [VM(f"buffer_store_dwordx4 {vr(4*j,4)}, v{L16}, {sr(SRD_B,4)}, s{90 + j//4} offen offset:{(j%4)*1024} sc1", ("exp", 0)) for j in range(8)]
    ne_ = opt.get("g4_ne", 2)
    for j in range(ne_): c.late[p2 + 1 + j] = ex[j * 8 // ne_:(j + 1) * 8 // ne_]
    c.late[p2 + opt.get("g4_fs", 6)] = [WVM([("exp", 0)]), f"buffer_store_dword v{VT}, v{VT+1}, {sr(SRD_F,4)}, s88 offen sc1"]
    c.late[N - 3] = [VM(f"buffer_load_dword v{VF}, v{VT+1}, {sr(SRD_F,4)}, s89 offen sc1", ("pf", 0))]
    c.last_reads = [f"ds_read_b128 {vr(V_G+4*b,4)}, v{V_GA} offset:{768+b*64}" for b in range(4)]
    m = Txt(); m.label = k.label
    okl = k.label("pok")
    m(f"v_cmp_eq_u32 vcc, 0, v{VF}\ns_cmp_eq_u64 vcc, 0\ns_cbranch_scc1 {okl}")
    spin(m, [f"buffer_load_dword v{VF}, v{VT+1}, {sr(SRD_F,4)}, s89 offen sc1"], [VF], 0)
    m(f"{okl}:")
    c.late[N - 1] = [WVM([("pf", 0)]), T("\n".join(m.L))] + [f"buffer_load_dwordx4 {vr(IMP+4*j,4)}, v{L16}, {sr(SRD_B,4)}, s{92 + j//4} offen offset:{(j%4)*1024} sc1" for j in range(8)]
    c.run(k)
    k.stamp("g4 loop done")
    A = lambda b, t: 32 + (b * 2 + t) * 4
    XT = 112
    XF = 160
    for j in range(16): k(f"v_lshlrev_b32 v{XF+2*j}, 16, v{V_X+j}\nv_and_b32 v{XF+2*j+1}, 0xffff0000, v{V_X+j}")
    k("s_waitcnt vmcnt(0) lgkmcnt(0)")
    for t in range(2):
        for b in range(4):
            for h in range(2): k(f"v_pk_add_f32 {vr(A(b,t)+2*h,2)}, {vr(A(b,t)+2*h,2)}, {vr(IMP+(b*2+t)*4+2*h,2)}")
            for h in range(2): k(f"v_pk_fma_f32 {vr(A(b,t)+2*h,2)}, {vr(A(b,t)+2*h,2)}, {vr(V_G+4*b+2*h,2)}, {vr(XF+(t*4+b)*4+2*h,2)}")
        PK = XT + t * 8
        for b in range(4): k(f"v_cvt_pk_bf16_f32 v{PK+2*b}, v{A(b,t)}, v{A(b,t)+1}\nv_cvt_pk_bf16_f32 v{PK+2*b+1}, v{A(b,t)+2}, v{A(b,t)+3}")
        k("s_nop 1")
        for s_ in range(2): k(f"v_permlane16_swap_b32 v{PK+4*s_}, v{PK+4*s_+2}\nv_permlane16_swap_b32 v{PK+4*s_+1}, v{PK+4*s_+3}")
        for s_ in range(2): k(f"buffer_store_dwordx4 {vr(PK+4*s_,4)}, v{V_XA}, {sr(SRD_A,4)}, s{86+t} offen offset:{s_*64}")

def phase_gemm1(k, c, opt):
    LANE, L16, VT = c.LANE, c.L16, c.VT
    PHK, VV, SH, UTX = 0, 34816, 114688, 126976
    A_PH = 160
    p = Txt()
    srd(p, SRD_A, P_WPHI, H * 2048)
    srd(p, SRD_B, P_WS, 2 << 20, WS_KVP)
    srd(p, SRD_C, P_WS, 128 << 10, WS_ZP)
    A_PW, A_VW, A_PR, A_VR, A_WR = 110, 111, 112, 113, 114
    p(f"s_lshr_b32 s80, s{S_WAVE}, 1\ns_and_b32 s81, s{S_WAVE}, 1")
    p(f"v_and_b32 v{VT}, 15, v{LANE}\ns_lshl_b32 s82, s{S_WAVE}, 5\nv_add_u32 v{VT}, s82, v{VT}")
    p(f"v_lshrrev_b32 v{VT+1}, 4, v{LANE}\nv_lshlrev_b32 v{VT+1}, 3, v{VT+1}")
    p(f"v_mul_u32_u24 v{A_PW}, 136, v{VT}\nv_add_u32 v{A_PW}, v{A_PW}, v{VT+1}")
    p(f"v_mul_u32_u24 v{A_VW}, 72, v{VT}\nv_add_u32 v{A_VW}, v{A_VW}, v{VT+1}")
    p(f"v_lshrrev_b32 v{VT}, 2, v{LANE}\nv_and_b32 v{VT+1}, 3, v{LANE}\nv_lshlrev_b32 v{VT+1}, 3, v{VT+1}")
    p(f"s_mul_i32 s82, s80, 17408\ns_lshl_b32 s83, s81, 6\ns_add_u32 s82, s82, s83")
    p(f"v_mul_u32_u24 v{A_PR}, 136, v{VT}\nv_add_u32 v{A_PR}, v{A_PR}, v{VT+1}\nv_add_u32 v{A_PR}, s82, v{A_PR}")
    p(f"s_mul_i32 s82, s80, 9216")
    p(f"v_mul_u32_u24 v{A_VR}, 72, v{VT}\nv_add_u32 v{A_VR}, v{A_VR}, v{VT+1}\nv_add_u32 v{A_VR}, s82, v{A_VR}")
    p(f"v_lshl_add_u32 v{A_WR}, v{VT}, 6, v{VT+1}\nv_add_u32 v{A_WR}, {L_WPH}, v{A_WR}")
    ONES, SEL = 116, 120
    for j in range(4): p(f"v_mov_b32 v{ONES+j}, 0x3f803f80")
    p(f"v_bfe_u32 v{VT}, v{LANE}, 2, 2\nv_lshrrev_b32 v{VT+1}, 4, v{LANE}")
    p(f"v_cmp_eq_u32 vcc, v{VT}, v{VT+1}")
    p(f"v_and_b32 v{VT}, 1, v{LANE}\nv_lshlrev_b32 v{VT}, 4, v{VT}\nv_mov_b32 v{VT+1}, 0x3f80\nv_lshlrev_b32 v{VT+1}, v{VT}, v{VT+1}")
    p(f"v_cndmask_b32 v{VT+1}, 0, v{VT+1}, vcc")
    p(f"v_and_b32 v{VT}, 2, v{LANE}\nv_cmp_eq_u32 vcc, 0, v{VT}")
    for j in (0, 1, 4, 5): p(f"v_mov_b32 v{SEL+j}, 0")
    p(f"v_cndmask_b32 v{SEL+2}, 0, v{VT+1}, vcc\nv_cndmask_b32 v{SEL+3}, v{VT+1}, 0, vcc")
    p(f"s_mov_b32 s94, {LOG2E!r}\ns_mov_b32 s95, {LOG2E!r}")
    p(f"s_lshl_b32 s84, s{S_HP}, 12\ns_lshl_b32 s85, s{S_WAVE}, 10\ns_add_u32 s84, s84, s85\ns_add_u32 s85, s85, {L_WPH}")
    c.pre_loop_txt = p.L
    c.late = {4: ["s_mov_b32 m0, s85", f"buffer_load_dwordx4 v{L16}, {sr(SRD_A,4)}, s84 offen lds"]}
    if opt.get("cpf", 1): c.late[22] = code_prefetch_txt(k.name, L16, 254, 80)
    ml = modb_loads(S_MB, 115, 109)
    ms = opt.get("modb_steps", [16] * 8)
    if opt.get("modb_front", 0):
        lb = k.label("skw0")
        c.late.setdefault(ms[0], []).append(T("\n".join([f"s_cmp_lg_u32 s{S_WAVE}, 0", f"s_cbranch_scc1 {lb}"] + [x for g in ml for x in g] + [f"{lb}:"])))
        ml = []
    else:
        for st_, g in zip(ms, ml): c.late.setdefault(st_, []).extend(g)
        ml = ml[len(ms):]
    c.last_reads = [f"ds_read_b64_tr_b16 {ar(A_PH+(hh*2+fb)*4+2*r,2)}, v{A_WR} offset:{hh*2048+r*1024+fb*32}" for hh in range(2) for fb in range(2) for r in range(2)]
    c.run(k)
    k.stamp("g1 loop done")
    A = lambda b, t: (b * 2 + t) * 4
    BF, P1, P2, MX, MN, EK = 126, 142, 174, 206, 214, 222
    groups = [(hh, t) for hh in range(2) for t in range(2)]
    def fm_part1(seg):
        for g, (hh, t) in enumerate(groups):
            for db in range(2):
                a = A(seg * 4 + hh * 2 + db, t)
                k(f"v_cvt_pk_bf16_f32 v{BF+g*4+db*2}, v{a}, v{a+1}\nv_cvt_pk_bf16_f32 v{BF+g*4+db*2+1}, v{a+2}, v{a+3}")
        k("s_nop 1")
        for g, (hh, t) in enumerate(groups):
            for fb in range(2):
                k(f"{MF} {vr(P1+g*8+fb*4,4)}, {ar(A_PH+(hh*2+fb)*4,4)}, {vr(BF+g*4,4)}, 0")
    def fm_part2():
        for op3, op2, M in (("v_max3_f32", "v_max_f32", MX), ("v_min3_f32", "v_min_f32", MN)):
            for g in range(4):
                b = P1 + g * 8
                k(f"{op3} v{M+2*g}, v{b}, v{b+1}, v{b+2}\n{op3} v{M+2*g}, v{M+2*g}, v{b+3}, v{b+4}\n{op3} v{M+2*g}, v{M+2*g}, v{b+5}, v{b+6}\n{op2} v{M+2*g}, v{M+2*g}, v{b+7}")
            treduce4(k, op2, [M + 2 * g for g in range(4)])
        for g in range(4):
            k(f"v_mul_f32 v{MX+2*g}, {-LOG2E!r}, v{MX+2*g}\nv_mul_f32 v{MN+2*g}, {LOG2E!r}, v{MN+2*g}")
    def fm_part3(E):
        for g in range(4):
            for j in range(4):
                b = g * 8 + 2 * j
                k(f"v_pk_fma_f32 {vr(P2+b,2)}, {vr(P1+b,2)}, s[94:95], {vr(MN+2*g,2)} op_sel_hi:[1,1,0] neg_lo:[1,0,0] neg_hi:[1,0,0]")
                k(f"v_pk_fma_f32 {vr(P1+b,2)}, {vr(P1+b,2)}, s[94:95], {vr(MX+2*g,2)} op_sel_hi:[1,1,0]")
            for j in range(8): k(f"v_exp_f32 v{P1+g*8+j}, v{P1+g*8+j}")
            for j in range(8): k(f"v_exp_f32 v{P2+g*8+j}, v{P2+g*8+j}")
            k("s_nop 0")
            for sg, PP in enumerate((P1, P2)):
                for j in range(4): k(f"v_cvt_pk_bf16_f32 v{E+(g*2+sg)*4+j}, v{PP+g*8+2*j}, v{PP+g*8+2*j+1}")
    for g in ml:
        for x in g: k(x)
    k("s_waitcnt lgkmcnt(0)\ns_nop 7")
    fm_part1(1)
    k("s_barrier")
    mark0 = len(k.L)
    for g, (hh, t) in enumerate(groups):
        for db in range(2):
            a = A(8 + hh * 2 + db, t)
            k(f"v_cvt_pk_bf16_f32 v{a}, v{a}, v{a+1}\nv_cvt_pk_bf16_f32 v{a+1}, v{a+2}, v{a+3}")
            k(f"ds_write_b64 v{A_VW}, {vr(a,2)} offset:{VV + hh*9216 + t*16*72 + db*32}")
    fm_part2()
    fm_part3(EK)
    SM = 32
    k("s_nop 1")
    for i in range(8): k(f"{MF} {vr(SM+4*i,4)}, {vr(ONES,4)}, {vr(EK+4*i,4)}, 0")
    k("s_nop 7")
    for i in range(8): k(f"v_rcp_f32 v{SM+4*i}, v{SM+4*i}")
    for g, (hh, t) in enumerate(groups):
        for sg, PP in enumerate((P1, P2)):
            for j in range(4):
                k(f"v_pk_mul_f32 {vr(PP+g*8+2*j,2)}, {vr(PP+g*8+2*j,2)}, {vr(SM+(g*2+sg)*4,2)} op_sel_hi:[1,0]")
            for fb in range(2):
                b = PP + g * 8 + fb * 4
                k(f"v_cvt_pk_bf16_f32 v{b}, v{b}, v{b+1}\nv_cvt_pk_bf16_f32 v{b+1}, v{b+2}, v{b+3}")
                k(f"ds_write_b64 v{A_PW}, {vr(b,2)} offset:{PHK + hh*17408 + t*16*136 + sg*64 + fb*32}")
    sprinkle(k, mark0, g3_early_units(k.g3, opt.get("g3_e1", 14), 254))
    k("s_waitcnt lgkmcnt(0)\ns_barrier")
    for s_ in range(4):
        for r in range(2):
            for fb in range(2): k(f"ds_read_b64_tr_b16 {ar(s_*16+fb*4+2*r,2)}, v{A_PR} offset:{PHK + (32*s_+16*r)*136 + fb*32}")
            for db in range(2): k(f"ds_read_b64_tr_b16 {ar(s_*16+8+db*4+2*r,2)}, v{A_VR} offset:{VV + (32*s_+16*r)*72 + db*32}")
    fm_part1(0)
    KV, ZZ = 64, 80
    for s_ in range(4):
        k(f"s_waitcnt lgkmcnt({min(15, 24 - 8*s_)})")
        for fb in range(2):
            for db in range(2):
                d = vr(KV + (db * 2 + fb) * 4, 4)
                k(f"{MF} {d}, {ar(s_*16+fb*4,4)}, {ar(s_*16+8+db*4,4)}, {'0' if s_ == 0 else d}")
            d = vr(ZZ + fb * 4, 4)
            k(f"{MF} {d}, {ar(s_*16+fb*4,4)}, {vr(ONES,4)}, {'0' if s_ == 0 else d}")
    k(f"s_lshl_b32 s82, s{S_HP}, 2\ns_add_u32 s82, s82, s{S_WAVE}")
    k("s_lshl_b32 s83, s82, 15")
    k(f"s_lshl_b32 s84, s{S_RB1}, 10\ns_add_u32 s84, s84, s83\ns_add_u32 s85, s84, 16384")
    k("s_lshl_b32 s90, s82, 11")
    k(f"s_lshl_b32 s91, s82, {FS+4}\ns_add_u32 s91, s91, {F_KV}\ns_lshl_b32 s92, s{S_RB1}, {FS}\ns_add_u32 s92, s92, s91")
    k(f"v_and_b32 v{VT}, 15, v{LANE}\nv_cmp_eq_u32 vcc, s{S_RB1}, v{VT}")
    k("s_nop 2")
    for db in range(2):
        for j in range(4): k(f"v_cvt_pk_bf16_f32 v{88+db*4+j}, v{KV+db*8+2*j}, v{KV+db*8+2*j+1}")
    k(f"buffer_store_dwordx4 {vr(88,4)}, v{L16}, {sr(SRD_B,4)}, s84 offen sc1")
    k(f"buffer_store_dwordx4 {vr(92,4)}, v{L16}, {sr(SRD_B,4)}, s85 offen sc1")
    k("s_and_saveexec_b64 s[96:97], vcc")
    k(f"buffer_store_dwordx4 {vr(ZZ,4)}, v{L16}, {sr(SRD_C,4)}, s90 offen sc1")
    k(f"buffer_store_dwordx4 {vr(ZZ+4,4)}, v{L16}, {sr(SRD_C,4)}, s90 offen offset:1024 sc1")
    k("s_mov_b64 exec, s[96:97]")
    k.stamp("kv stored")
    fm_part2()
    publish(k, 92, VT + 1)
    k.stamp("kv published")
    k("s_mov_b32 s93, s83")
    g2 = setup_gemm24(k, 2, opt, 96)
    k("s_mov_b32 s83, s93")
    g2.prefetch(k, 8)
    fm_part3(EK)
    k(f"v_lshlrev_b32 v{VT}, {FS}, v{VT}")
    wait_flags(k, [(VT, 91, 1)], VT + 1)
    k.stamp("kv ready")
    k(f"buffer_load_dwordx4 {vr(ZZ,4)}, v{L16}, {sr(SRD_C,4)}, s90 offen sc1")
    k(f"buffer_load_dwordx4 {vr(ZZ+4,4)}, v{L16}, {sr(SRD_C,4)}, s90 offen offset:1024 sc1")
    for i in range(32):
        if i % 4 == 0 and i: k("s_add_u32 s83, s83, 4096")
        k(f"buffer_load_dwordx4 {ar(4*i,4)}, v{L16}, {sr(SRD_B,4)}, s83 offen offset:{(i%4)*1024} sc1")
    srd(k, SRD_T, P_WS, S * D * 2, WS_O)
    k("s_waitcnt vmcnt(32)")
    for sh in (8, 4, 2, 1):
        for j in range(8): k(f"v_add_f32_dpp v{ZZ+j}, v{ZZ+j}, v{ZZ+j} row_ror:{sh} row_mask:0xf bank_mask:0xf")
    k(f"v_and_b32 v{VT+1}, 1, v{LANE}\nv_cmp_eq_u32 vcc, 0, v{VT+1}")
    for j in range(4): k(f"v_cvt_pk_bf16_f32 v{BF+8+j}, v{ZZ+2*j}, v{ZZ+2*j+1}")
    for j in range(4): k(f"v_cndmask_b32 v{BF+8+j}, v{ONES}, v{BF+8+j}, vcc")
    for i in range(32):
        db, pp = divmod(i, 16)
        if i % 2 == 0: k(f"s_waitcnt vmcnt({30 - i})")
        for fb in range(2):
            d = vr(KV + (db * 2 + fb) * 4, 4)
            k(f"{MF} {d}, {vr(SEL + (2 if fb == 0 else 0), 4)}, {ar(4*i,4)}, {'0' if pp == 0 else d}")
    k(f"s_mul_i32 s82, s{S_WAVE}, 3072\ns_add_u32 s82, s82, {SH}")
    k(f"v_add_u32 v{VT+1}, s82, v{L16}\nv_add_u32 v{VT+2}, {SH}, v{L16}")
    k("s_nop 6")
    for db in range(2):
        for j in range(4): k(f"v_cvt_pk_bf16_f32 v{BF+db*4+j}, v{KV+db*8+2*j}, v{KV+db*8+2*j+1}")
    for j in range(3): k(f"ds_write_b128 v{VT+1}, {vr(BF+4*j,4)} offset:{j*1024}")
    k("s_waitcnt lgkmcnt(0)\ns_barrier")
    for i in range(12): k(f"ds_read_b128 {ar(4*i,4)}, v{VT+2} offset:{i*1024}")
    k(f"s_lshl_b32 s82, s{S_RB1}, 3\ns_lshl_b32 s83, s{S_WAVE}, 1\ns_add_u32 s82, s82, s83\ns_lshl_b32 s82, s82, 15")
    k(f"s_lshl_b32 s83, s{S_HP}, 11\ns_add_u32 s82, s82, s83\ns_add_u32 s83, s82, 0x8000")
    k(f"s_lshl_b32 s84, s{S_RB1}, 2\ns_add_u32 s84, s84, s{S_WAVE}\ns_lshl_b32 s84, s84, {FS+4}\ns_lshl_b32 s85, s{S_HP}, {FS}\ns_add_u32 s84, s84, s85\ns_add_u32 s84, s84, {F_O}")
    k("s_waitcnt lgkmcnt(0)")
    for g, (hh, t) in enumerate(groups):
        for sg in range(2):
            for j in range(3):
                k(f"{MF} {vr((g*2+sg)*12+4*j,4)}, {ar(((hh*2+sg)*3+j)*4,4)}, {vr(EK+(g*2+sg)*4,4)}, 0")
    k("s_nop 7")
    for g, (hh, t) in enumerate(groups):
        n1, n2 = g * 24, g * 24 + 12
        D1, S1, D2, S2 = n1 + 8, n1 + 9, n2 + 8, n2 + 9
        k(f"v_mul_f32 v{n1+10}, v{S1}, v{S2}")
        k(f"v_mul_f32 v{n1+10}, 0x358637bd, v{n1+10}")
        k(f"v_fmac_f32 v{n1+10}, v{D1}, v{S2}\nv_fmac_f32 v{n1+10}, v{D2}, v{S1}")
        k(f"v_rcp_f32 v{n1+10}, v{n1+10}")
        k("s_nop 0")
        k(f"v_mul_f32 v{D1}, v{S2}, v{n1+10}\nv_mul_f32 v{D2}, v{S1}, v{n1+10}")
        for j in range(4): k(f"v_pk_mul_f32 {vr(n1+2*j,2)}, {vr(n1+2*j,2)}, {vr(D1,2)} op_sel_hi:[1,0]")
        for j in range(4): k(f"v_pk_fma_f32 {vr(n1+2*j,2)}, {vr(n2+2*j,2)}, {vr(D2,2)}, {vr(n1+2*j,2)} op_sel_hi:[1,0,1]")
        for j in range(4): k(f"v_cvt_pk_bf16_f32 v{n2+j}, v{n1+2*j}, v{n1+2*j+1}")
        k(f"buffer_store_dwordx4 {vr(n2,4)}, v{L16}, {sr(SRD_T,4)}, s{82+t} offen offset:{hh*1024} sc1")
    k.stamp("o stored")
    CU, AU, WW, TT = 128, 144, 152, 156
    for i in range(8): k(f"v_accvgpr_read_b32 v{CU+2*i}, a{A_UT+32+i}")
    silu_block(k, [CU + 2 * i for i in range(8)])
    mko = len(k.L)
    g2.V_X = 48
    srd(k, SRD_A, P_X, S * D * 2)
    V_XA = 47
    k(f"v_lshrrev_b32 v{VT+1}, 4, v{LANE}")
    k(f"v_and_b32 v{VT+2}, 15, v{LANE}\nv_lshlrev_b32 v{VT+2}, 11, v{VT+2}\nv_lshl_add_u32 v{V_XA}, v{VT+1}, 3, v{VT+2}")
    k(f"s_lshl_b32 s82, s{S_RB2}, 3\ns_lshl_b32 s83, s{S_WAVE}, 1\ns_add_u32 s82, s82, s83\ns_lshl_b32 s82, s82, 15\ns_lshl_b32 s83, s{S_NT}, 7\ns_add_u32 s82, s82, s83\ns_add_u32 s83, s82, 32768")
    for t in range(2):
        for b in range(4):
            k(f"buffer_load_dwordx2 {vr(g2.V_X+(t*4+b)*2,2)}, v{V_XA}, {sr(SRD_A,4)}, s{82+t} offen offset:{b*32}")
    publish(k, 84, VT + 2, mko)
    k.stamp("o published")
    mark1 = len(k.L)
    for j in range(8): k(f"v_mov_b32 v{AU+j}, 0")
    for i in range(8):
        for d in range(4): k(f"v_accvgpr_read_b32 v{WW+d}, a{A_UT+4*i+d}")
        for d in range(4):
            k(f"v_lshlrev_b32 v{TT}, 16, v{WW+d}\nv_and_b32 v{TT+1}, 0xffff0000, v{WW+d}")
            k(f"v_pk_fma_f32 {vr(AU+2*d,2)}, {vr(TT,2)}, {vr(CU+2*i,2)}, {vr(AU+2*d,2)} op_sel_hi:[1,0,1]")
    k("s_nop 1")
    for j in range(4): k(f"v_permlane32_swap_b32 v{AU+j}, v{AU+j+4}")
    k("s_nop 1")
    for j in range(4): k(f"v_add_f32 v{AU+j}, v{AU+j}, v{AU+j+4}")
    k("s_nop 1")
    for j in range(2): k(f"v_permlane16_swap_b32 v{AU+j}, v{AU+j+2}")
    k("s_nop 1")
    for j in range(2): k(f"v_add_f32 v{AU+j}, v{AU+j}, v{AU+j+2}")
    k("s_nop 1")
    for j in range(2): k(f"v_add_f32_dpp v{AU+j}, v{AU+j}, v{AU+j} row_ror:8 row_mask:0xf bank_mask:0xf")
    sprinkle(k, mark1, g3_early_units(k.g3, opt.get("g3_e2", 7), 254), skip=0)
    k(f"v_and_b32 v{TT}, 7, v{LANE}\nv_lshlrev_b32 v{TT}, 5, v{TT}\nv_lshrrev_b32 v{TT+1}, 5, v{LANE}\nv_lshl_add_u32 v{TT}, v{TT+1}, 4, v{TT}")
    k(f"v_bfe_u32 v{TT+1}, v{LANE}, 4, 1\nv_lshl_add_u32 v{TT}, v{TT+1}, 3, v{TT}")
    srd(k, SRD_D, P_WS, MP_BYTES, WS_MODP)
    k(f"v_or_b32 v{AU}, 1, v{AU}\nv_or_b32 v{AU+1}, 1, v{AU+1}")
    k(f"buffer_store_dwordx2 {vr(AU,2)}, v{TT}, {sr(SRD_D,4)}, s{S_MO} offen sc1")
    return g2

A_PARK = 224
S3_SRD, S3_WB, S3_KW = 64, 68, 69
def setup_gemm3_early(k, opt, LANE, VT):
    c = Sched(); common_gemm(c)
    NS, R = 4, 8
    STAGE = 28672
    V_RD, V_DMA, V_TOK = 224, 226, 233
    c.V_RD, c.V_DMA, c.V_TOK, c.LANE, c.L16, c.VT = V_RD, V_DMA, V_TOK, 237, 238, 248
    c.srd_w, c.s_wbase, c.s_kw = S3_SRD, S3_WB, S3_KW
    order(c, k, opt, 'g3', ['win', [4, 4, 8], 0])
    if opt.get("g3map", 0): c.s_rot, c.s_rot2 = 73, 72
    k(f"s_lshr_b32 s80, s{S_WAVE}, 1\ns_and_b32 s81, s{S_WAVE}, 1")
    k(f"s_mul_i32 s83, s80, {32*7168}\ns_mul_i32 s{S_TMP}, s{S_FT}, 224\ns_add_u32 s83, s83, s{S_TMP}")
    for i in range(7):
        k(f"v_add_u32 v{VT+2}, {i*64}, v{LANE}")
        k(f"v_mul_u32_u24 v{VT+3}, 4682, v{VT+2}")
        k(f"v_lshrrev_b32 v{VT+3}, 16, v{VT+3}")
        k(f"v_mul_u32_u24 v{VT+4}, 14, v{VT+3}")
        k(f"v_sub_u32 v{VT+4}, v{VT+2}, v{VT+4}")
        k(f"v_mul_u32_u24 v{VT+3}, 7168, v{VT+3}")
        k(f"v_lshl_add_u32 v{VT+3}, v{VT+4}, 4, v{VT+3}")
        k(f"v_add_u32 v{VT+3}, s83, v{VT+3}")
        if i % 4: k(f"v_subrev_u32 v{VT+3}, {(i%4)*1024}, v{VT+3}")
        k(f"v_accvgpr_write_b32 a{A_PARK+i}, v{VT+3}")
    k(f"s_mul_i32 s{S3_WB}, s81, 14336\ns_mul_i32 s82, s80, 7168\ns_add_u32 s{S3_WB}, s{S3_WB}, s82")
    k(f"s_cmp_eq_u32 s81, 0\ns_cselect_b32 s{S3_SRD}, s{P_W1}, s{P_W3}\ns_cselect_b32 s{S3_SRD+1}, s{P_W1+1}, s{P_W3+1}")
    k(f"s_mov_b32 s{S3_SRD+2}, {D*F*2}\ns_mov_b32 s{S3_SRD+3}, 0x20000")
    c.NB, c.TB, c.KS, c.SPK, c.KT, c.NS, c.R = 14, 4, 1, 2, 16, NS, R
    c.acc = lambda b, t: vr((b * 4 + t) * 4, 4)
    c.tf = lambda slot, ks, t: 112 + (slot * 4 + t) * 4
    ph = lambda sl: 3 - sl
    c.rd = lambda sl, b, sub, r: (V_RD + ph(sl) // 2, (ph(sl) % 2) * STAGE + (b % 2) * 14336 + (32 * sub + 16 * r) * 224 + 32 * (b // 2))
    c.slot_addr = lambda sl: ph(sl) * STAGE
    c.dma = [(V_DMA + i, i * 1024, (i % 4) * 1024) for i in range(7)]
    c.v_tok = [V_TOK + t for t in range(4)]
    c.w_stride = 64 * 7168
    c.drop = opt.get("g3_drop", ())
    c.pro_units, c.ramp_rate, c.read_margin = opt.get("g3_pro", 8), (lambda st: opt.get("g3_ramp", 10) if st < 6 else 8), 8
    c.lookahead = opt.get("g3_la", 4)
    std_sched(c)
    TL = c.TL = opt.get("g3_tail", 0)
    if TL:
        tail = c.steps[32 - TL:]
        c.steps = c.steps[:32 - TL] + [dict(st, frags=st["frags"][:8]) for st in tail] + [dict(st, frags=st["frags"][8:]) for st in tail]
    return c
def g3_early_units(c, n, vtmp):
    out = []
    for j in range(n):
        t = c.prefetch_txt(1)
        i = (c.pre_dma - 1) % 7
        ld = t[-1].replace(f"v{c.V_DMA+i},", f"v{vtmp},")
        out.append(t[:-1] + [f"v_accvgpr_read_b32 v{vtmp}, a{A_PARK+i}", ld])
    return out
def setup_gemm3_late(k, c):
    V_RD, V_DMA, V_TOK, LANE, L16, VT = c.V_RD, c.V_DMA, c.V_TOK, c.LANE, c.L16, c.VT
    lane_id(k, LANE)
    k(f"v_lshlrev_b32 v{L16}, 4, v{LANE}")
    for i in range(7): k(f"v_accvgpr_read_b32 v{V_DMA+i}, a{A_PARK+i}")
    k(f"v_lshrrev_b32 v{VT+3}, 2, v{LANE}\nv_mul_u32_u24 v{VT+3}, 224, v{VT+3}")
    k(f"v_and_b32 v{VT+4}, 3, v{LANE}\nv_lshl_add_u32 v{V_RD}, v{VT+4}, 3, v{VT+3}")
    k(f"v_add_u32 v{V_RD+1}, {2*28672}, v{V_RD}")
    k(f"s_lshl_b32 s82, s{S_RB3}, 4\ns_lshl_b32 s83, s{S_WAVE}, 2\ns_add_u32 s82, s82, s83\ns_lshl_b32 s82, s82, 15")
    k(f"v_add_u32 v{V_TOK}, s82, v{L16}")
    for t in range(1, 4): k(f"v_add_u32 v{V_TOK+t}, {t*0x8000}, v{V_TOK}")

def sprinkle(k, mark, groups, skip=4):
    if not groups: return
    seg = k.L[mark:]
    stepn = max(1, (len(seg) - skip) // len(groups))
    out, q = [], list(groups)
    for i, x in enumerate(seg):
        out.append(x)
        if q and i >= skip and (i - skip) % stepn == 0:
            assert not x.startswith("s_cmp") and not x.startswith("s_and_saveexec")
            out += q.pop(0)
    for g in q: out += g
    k.L[mark:] = out

A_X1 = 240
def phase_gemm2(k, c, opt):
    LANE, L16 = c.LANE, c.L16
    VT = 40
    k(f"v_and_b32 v252, 15, v{LANE}\nv_lshlrev_b32 v252, {FS}, v252")
    k(f"s_lshl_b32 s84, s{S_RB2}, 2\ns_add_u32 s84, s84, s{S_WAVE}\ns_lshl_b32 s84, s84, {FS+4}\ns_add_u32 s85, s84, {F_O}")
    if c.hs:
        k(f"s_add_u32 s94, s85, {F_O2 - F_O}")
        staged_wait(k, c, opt.get("g2_T", 5), 252, 85, 253, lambda sp, st: [f"s_lshl_b32 s{st}, s{sp}, 1", f"s_lshl_b32 s{st}, 3, s{st}"], pub=(95, 26))
        add_gate(k, c, 8, f"buffer_load_dword v253, v252, {sr(SRD_F,4)}, s94 offen sc1", 253)
    else:
        staged_wait(k, c, opt.get("g2_T", 6), 252, 85, 253, one_prod)
    k.stamp("o ready")
    V_G, V_C, V_S, V_GA = 64, 80, 136, 44
    p = Txt()
    srd(p, SRD_A, P_WS, S * D * 2, WS_Y)
    srd(p, SRD_B, P_WS, S * 128, WS_STAT)
    srd(p, SRD_D, P_WS, MP_BYTES, WS_MODP)
    p(f"v_lshrrev_b32 v{V_GA}, 4, v{LANE}\nv_lshlrev_b32 v{V_GA}, 4, v{V_GA}\nv_add_u32 v{V_GA}, {L_MV}, v{V_GA}")
    p(f"s_lshl_b32 s86, s{S_RB2}, 3\ns_lshl_b32 s87, s{S_WAVE}, 1\ns_add_u32 s86, s86, s87")
    p(f"s_lshl_b32 s88, s86, 15\ns_lshl_b32 s87, s{S_NT}, 11\ns_add_u32 s88, s88, s87\ns_add_u32 s89, s88, 32768")
    p(f"s_lshl_b32 s87, s{S_NT}, {FS}\ns_add_u32 s84, s84, s87\ns_add_u32 s84, s84, {F_Y}")
    p(f"s_lshl_b32 s91, s86, 11\ns_lshl_b32 s90, s{S_NT}, 8\ns_add_u32 s90, s90, s91")
    p(f"s_lshl_b32 s92, s{S_WAVE}, 16\ns_lshl_b32 s93, s{S_NT}, 12\ns_add_u32 s92, s92, s93\ns_add_u32 s92, s92, {MP_B}")
    p(f"v_lshlrev_b32 v{VT}, 2, v{LANE}")
    p(f"v_add_u32 v42, {67584 - L_R2}, v{c.V_RDX}\nv_add_u32 v43, {1024 - L_R2}, v{c.V_RDX}")
    for g in g3_early_units(k.g3, opt.get("g3_e2p", 0), 254): p.L += g
    c.pre_loop_txt = p.L
    c.late = {}
    for j, st_ in enumerate(opt.get("g3_e2s", [])):
        for g in g3_early_units(k.g3, 7 // len(opt["g3_e2s"]) + (1 if j < 7 % len(opt["g3_e2s"]) else 0), 254): c.late.setdefault(st_, []).extend(g)
    if opt.get("cpf", 1): c.late.setdefault(6, []).extend(code_prefetch_txt(k.name, L16, 254, 80))
    m = Txt(); m.label = k.label
    MB_ = 160
    mld = [f"buffer_load_dword v{MB_+j}, v{VT}, {sr(SRD_D,4)}, s92 offen offset:{j*256} sc1" for j in range(16)]
    okm = k.label("mok")
    m(f"v_min_u32 v{MB_+16}, v{MB_}, v{MB_+1}")
    for j in range(2, 16, 2): m(f"v_min3_u32 v{MB_+16}, v{MB_+16}, v{MB_+j}, v{MB_+j+1}")
    m(f"v_cmp_eq_u32 vcc, 0, v{MB_+16}\ns_cmp_eq_u64 vcc, 0\ns_cbranch_scc1 {okm}")
    spin(m, mld, [MB_ + j for j in range(16)], MB_ + 16)
    m(f"{okm}:")
    mchk = "\n".join(m.L); m.L = []
    for st in (4, 2, 1):
        for j in range(st): m(f"v_pk_add_f32 {vr(MB_+2*j,2)}, {vr(MB_+2*j,2)}, {vr(MB_+2*(j+st),2)}")
    m(f"v_add_f32 v{MB_}, v{MB_}, v{MB_+1}")
    round_bf16(m, MB_)
    m(f"v_add_f32 v{MB_+1}, 1.0, v{MB_}"); round_bf16(m, MB_ + 1)
    m(f"s_cmp_eq_u32 s{S_WAVE}, 2\ns_cselect_b64 vcc, -1, 0")
    m(f"v_cndmask_b32 v{MB_}, v{MB_}, v{MB_+1}, vcc")
    m(f"s_lshl_b32 s92, s{S_WAVE}, 8\ns_add_u32 s92, s92, {L_MV}\nv_add_u32 v{VT}, s92, v{VT}")
    m(f"ds_write_b32 v{VT}, v{MB_}")
    ms_ = opt.get("g2_modstep", 13)
    c.late.setdefault(ms_ - 2, []).extend([VM(x, ("mv", 0)) for x in mld])
    k_ = [x for x in m.L]
    i_ = next(i for i, x in enumerate(k_) if x.startswith("s_cmp_eq_u32"))
    c.late[ms_] = [WVM([("mv", 0)]), T(mchk)] + k_[:i_] + ["\n".join(k_[i_:])]
    ne = opt.get("g3_e3", 0)
    eu = [x for g in g3_early_units(k.g3, ne, 254) for x in g]
    c.late.setdefault(14, []).extend(eu[:len(eu)//2 // 1]); c.late.setdefault(15, []).extend(eu[len(eu)//2:])
    c.last_reads = ([f"ds_read_b128 {vr(V_G+4*b,4)}, v{V_GA} offset:{b*64}" for b in range(4)] + [f"ds_read_b128 {vr(V_C+4*b,4)}, v{V_GA} offset:{512+b*64}" for b in range(4)]
                    + [f"ds_read_b128 {vr(V_S+4*b,4)}, v{V_GA} offset:{256+b*64}" for b in range(4)])
    c.run(k)
    k.stamp("g2 loop done")
    k("s_waitcnt lgkmcnt(0)\ns_nop 7")
    A = lambda b, t: (b * 2 + t) * 4
    XT = 194; V_X = c.V_X
    for t in range(2):
        for b in range(4):
            xr = V_X + (t * 4 + b) * 2
            for h in range(2): k(f"v_lshlrev_b32 v{XT+2*h}, 16, v{xr+h}\nv_and_b32 v{XT+2*h+1}, 0xffff0000, v{xr+h}")
            for h in range(2): k(f"v_pk_fma_f32 {vr(A(b,t)+2*h,2)}, {vr(A(b,t)+2*h,2)}, {vr(V_G+4*b+2*h,2)}, {vr(XT+2*h,2)}")
        PK = XT + 4 + t * 8
        for b in range(4): k(f"v_cvt_pk_bf16_f32 v{PK+2*b}, v{A(b,t)}, v{A(b,t)+1}\nv_cvt_pk_bf16_f32 v{PK+2*b+1}, v{A(b,t)+2}, v{A(b,t)+3}")
        for b in range(4):
            for h in range(2): k(f"v_lshlrev_b32 v{A(b,t)+2*h}, 16, v{PK+2*b+h}\nv_and_b32 v{A(b,t)+2*h+1}, 0xffff0000, v{PK+2*b+h}")
    SU = [XT + 20, XT + 22]; M2 = [XT + 21, XT + 23]; TM = [XT + 24, XT + 25]; AC = [XT, XT + 2]; NM = [XT + 26, XT + 28]; DF = 32
    for t in range(2): k(f"v_pk_add_f32 {vr(AC[t],2)}, {vr(A(0,t),2)}, {vr(A(0,t)+2,2)}")
    for b in range(1, 4):
        for h in range(2):
            for t in range(2): k(f"v_pk_add_f32 {vr(AC[t],2)}, {vr(AC[t],2)}, {vr(A(b,t)+2*h,2)}")
    def allred2(X):
        for sw in ("v_permlane32_swap_b32", "v_permlane16_swap_b32"):
            for t in range(2): k(f"v_mov_b32 v{TM[t]}, v{X[t]}")
            k("s_nop 0")
            for t in range(2): k(f"{sw} v{X[t]}, v{TM[t]}")
            k("s_nop 0")
            for t in range(2): k(f"v_add_f32 v{X[t]}, v{X[t]}, v{TM[t]}")
    for t in range(2): k(f"v_add_f32 v{SU[t]}, v{AC[t]}, v{AC[t]+1}")
    allred2(SU)
    for t in range(2): k(f"v_mul_f32 v{NM[t]}, {-1.0/64!r}, v{SU[t]}\nv_mov_b32 v{AC[t]}, 0\nv_mov_b32 v{AC[t]+1}, 0")
    for b in range(4):
        for h in range(2):
            for t in range(2): k(f"v_pk_add_f32 {vr(DF+2*t,2)}, {vr(A(b,t)+2*h,2)}, {vr(NM[t],2)} op_sel_hi:[1,0]")
            for t in range(2): k(f"v_pk_fma_f32 {vr(AC[t],2)}, {vr(DF+2*t,2)}, {vr(DF+2*t,2)}, {vr(AC[t],2)}")
    for t in range(2): k(f"v_add_f32 v{M2[t]}, v{AC[t]}, v{AC[t]+1}")
    allred2(M2)
    k(f"v_cmp_gt_u32 vcc, 16, v{LANE}")
    k(f"v_lshlrev_b32 v{XT+2}, 3, v{LANE}\nv_lshrrev_b32 v{XT+3}, 4, v{LANE}")
    k(f"v_cndmask_b32 v{XT}, v{SU[1]}, v{SU[0]}, vcc\nv_cndmask_b32 v{XT+1}, v{M2[1]}, v{M2[0]}, vcc")
    k(f"v_and_b32 v45, 0x78, v{XT+2}\nv_lshl_add_u32 v45, v{XT+3}, 10, v45")
    k(f"v_or_b32 v{XT+1}, 1, v{XT+1}")
    k(f"v_cmp_gt_u32 vcc, 32, v{LANE}\ns_and_saveexec_b64 s[96:97], vcc")
    k(f"buffer_store_dwordx2 {vr(XT,2)}, v{XT+2}, {sr(SRD_B,4)}, s90 offen sc1")
    k("s_mov_b64 exec, s[96:97]")
    k.stamp("stat stored")
    if c.NS > 4: k("s_barrier")
    if opt.get("g3_first", 0):
        setup_gemm3_late(k, k.g3); k.g3.prefetch(k, opt["g3_first"])
    for t in range(2):
        for b in range(4):
            for h in range(2): k(f"v_pk_mul_f32 {vr(A(b,t)+2*h,2)}, {vr(A(b,t)+2*h,2)}, {vr(V_C+4*b+2*h,2)}")
    for j in range(16): k(f"v_accvgpr_write_b32 a{A_X1+j}, v{XT+4+j}")
    g3 = k.g3
    if not opt.get("g3_first", 0): setup_gemm3_late(k, g3)
    g3.prefetch(k, opt.get("g3_pre0", 14))
    ST = 48
    spin(k, [f"buffer_load_dwordx2 {vr(ST+t*8+j*2,2)}, v45, {sr(SRD_B,4)}, s91 offen offset:{t*128+j*256} sc1" for t in range(2) for j in range(4)],
         [ST + 2 * j + 1 for j in range(8)], XT)
    k.stamp("stat ready")
    for t in range(2):
        b = ST + t * 8
        k(f"v_add_f32 v{SU[t]}, v{b}, v{b+2}\nv_add_f32 v{TM[t]}, v{b+4}, v{b+6}\nv_add_f32 v{SU[t]}, v{SU[t]}, v{TM[t]}")
        k(f"v_add_f32 v{M2[t]}, v{b+1}, v{b+3}\nv_add_f32 v{TM[t]}, v{b+5}, v{b+7}\nv_add_f32 v{M2[t]}, v{M2[t]}, v{TM[t]}")
    allred2(SU)
    for t in range(2): k(f"v_mul_f32 v{SU[t]}, {-1.0/1024!r}, v{SU[t]}")
    for j in range(4):
        for t in range(2): k(f"v_fmamk_f32 v{ST+t*8+2*j}, v{ST+t*8+2*j}, {1.0/64!r}, v{SU[t]}")
        for t in range(2): k(f"v_mul_f32 v{ST+t*8+2*j}, v{ST+t*8+2*j}, v{ST+t*8+2*j}")
        for t in range(2): k(f"v_fmac_f32 v{M2[t]}, 0x42800000, v{ST+t*8+2*j}")
    allred2(M2)
    for t in range(2): k(f"v_mov_b32 v{TM[t]}, 0x3727c5ac\nv_fmac_f32 v{TM[t]}, {1.0/1024!r}, v{M2[t]}")
    for t in range(2): k(f"v_rsq_f32 v{NM[t]}, v{TM[t]}")
    k("s_nop 0")
    for t in range(2): k(f"v_mul_f32 v{NM[t]+1}, v{SU[t]}, v{NM[t]}")
    for t in range(2):
        YK = ST + t * 8
        for b in range(4):
            for h in range(2): k(f"v_pk_fma_f32 {vr(XT+2*h,2)}, {vr(V_C+4*b+2*h,2)}, {vr(NM[t],2)}, {vr(V_S+4*b+2*h,2)} op_sel:[0,1,0] op_sel_hi:[1,1,1]")
            for h in range(2): k(f"v_pk_fma_f32 {vr(XT+2*h,2)}, {vr(A(b,t)+2*h,2)}, {vr(NM[t],2)}, {vr(XT+2*h,2)} op_sel_hi:[1,0,1]")
            k(f"v_cvt_pk_bf16_f32 v{YK+2*b}, v{XT}, v{XT+1}\nv_cvt_pk_bf16_f32 v{YK+2*b+1}, v{XT+2}, v{XT+3}")
        for s_ in range(2): k(f"buffer_store_dwordx4 {vr(YK+4*s_,4)}, v{L16}, {sr(SRD_A,4)}, s{88+t} offen offset:{s_*1024} sc1")
    publish(k, 84, 40)
    k.stamp("y published")
    g3.prefetch(k, opt.get("g3_pre", 0))
    return g3

def phase_gemm3(k, c, opt):
    LANE, L16, VT = c.LANE, c.L16, c.VT
    NB, TB = 14, 4
    srd(k, SRD_T, P_WS, S * D * 2, WS_Y)
    srd(k, SRD_C, P_WS, S * F * 2, WS_HH)
    k(f"v_and_b32 v{VT}, 31, v{LANE}\nv_lshlrev_b32 v{VT}, {FS}, v{VT}")
    k(f"s_lshl_b32 s84, s{S_RB3}, 2\ns_add_u32 s84, s84, s{S_WAVE}")
    k(f"s_lshl_b32 s85, s84, {FS+5}\ns_add_u32 s85, s85, {F_Y}")
    staged_wait(k, c, opt.get("g3_T", 3), VT, 85, VT + 1, one_prod, dup16=True)
    k.stamp("y ready")
    p = Txt()
    SO = 8
    p(f"s_mul_i32 s{SO}, s84, {448*1024}\ns_mul_i32 s92, s{S_FT}, 3584\ns_add_u32 s{SO}, s{SO}, s92")
    for t in range(1, 4): p(f"s_add_u32 s{SO+t}, s{SO}, {t*112*1024}")
    p(f"s_lshl_b32 s93, s84, {FS+5}\ns_lshl_b32 s94, s{S_FT}, {FS}\ns_add_u32 s93, s93, s94\ns_add_u32 s94, s93, {F_HB}\ns_add_u32 s93, s93, {F_HH}")
    p(f"s_mov_b32 s12, {-LOG2E!r}\ns_mov_b32 s13, {-LOG2E!r}")
    SB = 241
    p(f"v_lshrrev_b32 v{SB}, 1, v{L16}")
    c.pre_loop_txt = p.L
    if opt.get("cpf", 1):
        for st_ in opt.get("cp3", [6, 22]): c.late.setdefault(st_, []).extend(code_prefetch_txt(k.name, L16, 254, 80, junk="v240"))
    if opt.get("w2touch", 0):
        ws_ = opt.get("w2steps", [16]); per = 56 // len(ws_)
        for j, st_ in enumerate(ws_):
            c.late.setdefault(st_, []).extend([f"s_lshl_b32 s80, s2, 2", f"s_add_u32 s80, s80, s{S_WAVE}", "s_mul_i32 s80, s80, 7168", f"s_add_u32 s80, s80, {j*per*128}",
                      f"v_min_u32 v253, {per-1}, v{LANE}", "v_lshlrev_b32 v253, 7, v253", "v_add_u32 v253, s80, v253",
                      f"global_load_dword v240, v253, s[{P_W2}:{P_W2+1}]"])
    for j, st_ in enumerate(opt.get("w2l2", [27, 28])):
        c.late.setdefault(st_, []).extend([
            f"s_lshl_b32 s80, s{S_IDX}, 2", f"s_add_u32 s80, s80, s{S_WAVE}", "s_mul_i32 s80, s80, 14", f"s_add_u32 s80, s80, {7*j}",
            f"s_and_b32 s81, s{S_XCD}, 1", "s_mul_i32 s81, s81, 1792", "s_add_u32 s80, s80, s81", "s_lshl_b32 s80, s80, 11",
            f"s_lshr_b32 s81, s{S_XCD}, 2", "s_lshl_b32 s81, s81, 10", "s_add_u32 s80, s80, s81",
            f"v_min_u32 v253, 55, v{LANE}", "v_lshrrev_b32 v254, 3, v253", "v_lshlrev_b32 v254, 11, v254", "v_and_b32 v253, 7, v253", "v_lshl_add_u32 v253, v253, 7, v254",
            "v_add_u32 v253, s80, v253", f"global_load_dword v240, v253, s[{P_W2}:{P_W2+1}]"])
    t4 = Txt()
    g4 = setup_gemm4p(t4, opt, 242)
    half = len(t4.L) // 2
    c.late[19] = t4.L[:half]; c.late[20] = t4.L[half:]
    pf = g4.prefetch_txt(4); c.late[29] = pf
    pf = g4.prefetch_txt(4); c.late[30] = pf
    c.late.setdefault(31, []).extend(g4.tabtxt)
    def G(s, t): return ((2 * s) * TB + t) * 4
    def Uu(s, t): return ((2 * s + 1) * TB + t) * 4
    def act(k, slots, t, scalar=False):
        if scalar:
            for s in slots:
                for r in range(4):
                    k(f"v_mul_f32 v{Uu(s,t)+r}, v{G(s,t)+r}, v{Uu(s,t)+r}")
                    k(f"v_mul_f32 v{G(s,t)+r}, s12, v{G(s,t)+r}")
            rs = [(s, r) for s in slots for r in range(4)]
            for i, (s, r) in enumerate(rs): k(f"v_exp_f32 v{G(s,t)+r}, v{G(s,t)+r}")
            for i, (s, r) in enumerate(rs): k(f"v_add_f32 v{G(s,t)+r}, 1.0, v{G(s,t)+r}")
            for i, (s, r) in enumerate(rs): k(f"v_rcp_f32 v{G(s,t)+r}, v{G(s,t)+r}")
            for i, (s, r) in enumerate(rs): k(f"v_mul_f32 v{Uu(s,t)+r}, v{Uu(s,t)+r}, v{G(s,t)+r}")
            return
        for s in slots:
            for h in range(2):
                k(f"v_pk_mul_f32 {vr(Uu(s,t)+2*h,2)}, {vr(G(s,t)+2*h,2)}, {vr(Uu(s,t)+2*h,2)}")
                k(f"v_pk_mul_f32 {vr(G(s,t)+2*h,2)}, {vr(G(s,t)+2*h,2)}, s[12:13]")
        for s in slots:
            for r in range(4): k(f"v_exp_f32 v{G(s,t)+r}, v{G(s,t)+r}")
        for s in slots:
            for h in range(2): k(f"v_pk_add_f32 {vr(G(s,t)+2*h,2)}, {vr(G(s,t)+2*h,2)}, 1.0 op_sel_hi:[1,0]")
        for s in slots:
            for r in range(4): k(f"v_rcp_f32 v{G(s,t)+r}, v{G(s,t)+r}")
        for s in slots:
            for h in range(2): k(f"v_pk_mul_f32 {vr(Uu(s,t)+2*h,2)}, {vr(Uu(s,t)+2*h,2)}, {vr(G(s,t)+2*h,2)}")
    def pair(k, pr, t, scalar=False):
        s0, s1 = 2 * pr, 2 * pr + 1
        act(k, [s0, s1], t, scalar)
        d = G(s0, t)
        k(f"v_cvt_pk_bf16_f32 v{d}, v{Uu(s0,t)}, v{Uu(s0,t)+1}\nv_cvt_pk_bf16_f32 v{d+1}, v{Uu(s0,t)+2}, v{Uu(s0,t)+3}")
        k(f"v_cvt_pk_bf16_f32 v{d+2}, v{Uu(s1,t)}, v{Uu(s1,t)+1}\nv_cvt_pk_bf16_f32 v{d+3}, v{Uu(s1,t)+2}, v{Uu(s1,t)+3}")
        k(f"buffer_store_dwordx4 {vr(d,4)}, v{L16}, {sr(SRD_C,4)}, s{SO+t} offen offset:{pr*1024} sc1")
        if opt.get("dbl", 0): k(f"buffer_store_dwordx4 {vr(d,4)}, v{L16}, {sr(SRD_C,4)}, s{SO+t} offen offset:{pr*1024}")
    ea = Txt(); eb = Txt()
    nin = opt.get("g3_nin", 8) if c.TL else 0
    for i, (pr, t) in enumerate([(pr, t) for pr in range(2) for t in range(TB)]):
        if i < nin: pair(ea, pr, t, opt.get("g3_scalar", 0))
        else: pair(eb, pr, t)
    if c.TL:
        nst = opt.get("g3_east", c.TL - 1)
        per = -(-len(ea.L) // nst)
        c.step_extra = lambda st: ea.L[(st - 32) * per:(st - 31) * per] if st >= 32 else []
    c.run(k)
    k.stamp("g3 loop done")
    if not c.TL: k("s_nop 7")
    k("s_barrier")
    mkE = len(k.L)
    for x in eb.L: k(x)
    grp = []
    for j in range(opt.get("g4_pa", 0)):
        t_ = g4.prefetch_txt(1); grp.append(t_[:-1] + ["s_nop 0", t_[-1]])
    sprinkle(k, mkE, grp)
    def single(k, t):
        act(k, [6], t)
        d = G(6, t)
        k(f"v_cvt_pk_bf16_f32 v{d}, v{Uu(6,t)}, v{Uu(6,t)+1}\nv_cvt_pk_bf16_f32 v{d+1}, v{Uu(6,t)+2}, v{Uu(6,t)+3}")
        k(f"buffer_store_dwordx2 {vr(d,2)}, v{SB}, {sr(SRD_C,4)}, s{SO+t} offen offset:3072 sc1")
    mkA = len(k.L)
    na = opt.get("g3_pubA", 2)
    g4.binl = None
    if opt.get("binl", 0):
        nb0 = opt.get("binl0", 1)
        bt = Txt()
        jobs = [(pair, (2, t)) for t in range(TB)] + [(single, (t,)) for t in range(TB)]
        g4.mkA = mkA
        for f_, a_ in jobs[:nb0]: f_(k, *a_)
        for f_, a_ in jobs[nb0:]: f_(bt, *a_)
        g4.binl = bt.L
    else:
        for t in range(na): pair(k, 2, t)
        publish(k, 93, 252, mkA)
        k.stamp("hA published")
        mark3 = len(k.L)
        for t in range(na, TB): pair(k, 2, t)
        grp = []
        for j in range(opt.get("g4_pb", 8)):
            t_ = g4.prefetch_txt(1); grp.append(t_[:-1] + ["s_nop 0", t_[-1]])
        sprinkle(k, mark3, grp)
        for t in range(TB): single(k, t)
    k.stamp("hh stored")
    return g4

def phase_gemm4(k, c, opt):
    LANE, L16 = c.LANE, c.L16
    VT = 40
    srd(k, SRD_T, P_WS, S * F * 2, WS_HH)
    srd(k, SRD_A, P_OUT, S * D * 2)
    k(f"v_and_b32 v{VT}, 31, v{LANE}\nv_lshlrev_b32 v{VT}, 2, v{VT}")
    k(f"s_lshl_b32 s84, s{S_RB2}, 1\ns_lshr_b32 s85, s{S_WAVE}, 1\ns_add_u32 s84, s84, s85\ns_lshl_b32 s84, s84, {FS+5}\ns_add_u32 s84, s84, {F_HH}")
    wait_flags(k, [(VT, 84, 1)], VT + 1)
    k.stamp("hh ready")
    V_G, V_GA, V_XA, V_X = 64, 44, 45, 48
    p = Txt()
    p(f"v_lshrrev_b32 v{VT}, 4, v{LANE}\nv_lshlrev_b32 v{V_GA}, 4, v{VT}\nv_add_u32 v{V_GA}, {L_MV}, v{V_GA}")
    p(f"v_and_b32 v{VT+1}, 15, v{LANE}\nv_lshlrev_b32 v{VT+1}, 11, v{VT+1}")
    p(f"v_and_b32 v{VT+2}, 1, v{VT}\nv_lshl_add_u32 v{VT+1}, v{VT+2}, 5, v{VT+1}")
    p(f"v_lshrrev_b32 v{VT+2}, 1, v{VT}\nv_lshl_add_u32 v{V_XA}, v{VT+2}, 4, v{VT+1}")
    p(f"s_lshl_b32 s86, s{S_RB2}, 3\ns_lshl_b32 s87, s{S_WAVE}, 1\ns_add_u32 s86, s86, s87\ns_lshl_b32 s86, s86, 15\ns_lshl_b32 s87, s{S_NT}, 7\ns_add_u32 s86, s86, s87\ns_add_u32 s87, s86, 32768")
    for j in range(16): p(f"v_accvgpr_read_b32 v{V_X+j}, a{A_X1+j}")
    c.pre_loop_txt = p.L
    c.last_reads = [f"ds_read_b128 {vr(V_G+4*b,4)}, v{V_GA} offset:{768+b*64}" for b in range(4)]
    c.run(k)
    k.stamp("g4 loop done")
    k("s_waitcnt lgkmcnt(0)\ns_nop 7")
    A = lambda b, t: (b * 2 + t) * 4
    XT = 96
    for t in range(2):
        for b in range(4):
            xr = V_X + (t * 4 + b) * 2
            for h in range(2): k(f"v_lshlrev_b32 v{XT+2*h}, 16, v{xr+h}\nv_and_b32 v{XT+2*h+1}, 0xffff0000, v{xr+h}")
            for h in range(2): k(f"v_pk_fma_f32 {vr(A(b,t)+2*h,2)}, {vr(A(b,t)+2*h,2)}, {vr(V_G+4*b+2*h,2)}, {vr(XT+2*h,2)}")
        PK = XT + 4 + t * 8
        for b in range(4): k(f"v_cvt_pk_bf16_f32 v{PK+2*b}, v{A(b,t)}, v{A(b,t)+1}\nv_cvt_pk_bf16_f32 v{PK+2*b+1}, v{A(b,t)+2}, v{A(b,t)+3}")
        k("s_nop 1")
        for s_ in range(2): k(f"v_permlane16_swap_b32 v{PK+4*s_}, v{PK+4*s_+2}\nv_permlane16_swap_b32 v{PK+4*s_+1}, v{PK+4*s_+3}")
        for s_ in range(2): k(f"buffer_store_dwordx4 {vr(PK+4*s_,4)}, v{V_XA}, {sr(SRD_A,4)}, s{86+t} offen offset:{s_*64}")

def build_mega(instr=False, opt=None, name="mega_kernel"):
    opt = opt or {}
    k = Mega(name, 256, 256, LDS_TOTAL, vgpr=256, agpr=256, sgpr=102)
    k.instr = instr; k.names = []; k.only = opt.get("only")
    end = k.label("end")
    far = k.label("go")
    if opt.get("diag2") is not None: k("s_memrealtime s[72:73]")
    k(f"s_cmp_lt_u32 s2, 256\ns_cbranch_scc1 {far}\ns_endpgm\n{far}:")
    if opt.get("fused", 1):
        code_prefetch_setup(k, name)
        k("v_and_b32 v104, 63, v0\nv_lshlrev_b32 v105, 4, v104\nv_lshlrev_b32 v254, 5, v0")
        k("global_load_dword a232, v254, s[100:101]")
        k("s_load_dwordx2 s[96:97], s[0:1], 88")
        if opt.get("dbgout"): k("s_load_dwordx2 s[72:73], s[0:1], 88")
    k("s_load_dwordx8 s[4:11], s[0:1], 0")
    k("s_load_dwordx2 s[12:13], s[0:1], 64")
    k("s_load_dwordx2 s[14:15], s[0:1], 40")
    k("s_load_dwordx4 s[16:19], s[0:1], 48")
    k("s_load_dwordx2 s[98:99], s[0:1], 72")
    k("s_load_dwordx2 s[24:25], s[0:1], 80")
    k("s_load_dwordx2 s[28:29], s[0:1], 96")
    if instr: k(f"v_mov_b32 v{VSTAMP}, 0")
    ids(k)
    k(f"s_lshr_b32 s80, s{S_IDX}, 2\ns_add_u32 s{S_R4}, s80, s{S_IDX}\ns_and_b32 s81, s{S_IDX}, 3\ns_lshl_b32 s81, s81, 1\ns_add_u32 s{S_R8}, s80, s81")
    if opt.get("g3map", 0):
        k(f"s_bfe_u32 s{S_RB3}, s{S_XCD}, 0x10001\ns_lshl_b32 s{S_RB3}, s{S_RB3}, 2\ns_lshr_b32 s80, s{S_IDX}, 3\ns_add_u32 s{S_RB3}, s{S_RB3}, s80")
        k(f"s_and_b32 s{S_FT}, s{S_XCD}, 1\ns_lshl_b32 s{S_FT}, s{S_FT}, 4\ns_lshr_b32 s81, s{S_XCD}, 2\ns_lshl_b32 s81, s81, 3\ns_add_u32 s{S_FT}, s{S_FT}, s81\ns_and_b32 s81, s{S_IDX}, 7\ns_add_u32 s{S_FT}, s{S_FT}, s81")
        k(f"s_add_u32 s72, s80, s{S_IDX}\ns_lshl_b32 s80, s80, 1\ns_add_u32 s73, s80, s{S_IDX}")
    else:
        k(f"s_and_b32 s80, s{S_IDX}, 3\ns_lshl_b32 s{S_FT}, s{S_XCD}, 2\ns_add_u32 s{S_FT}, s{S_FT}, s80\ns_lshr_b32 s{S_RB3}, s{S_IDX}, 2")
    if opt.get("fused", 1):
        for x in code_prefetch_txt(name, 105, 254, 80): k(x)
    k.stamp("start")
    g1 = (phase_front_fused if opt.get("fused", 1) else phase_front)(k, opt, name)
    g2 = (phase_gemm1s if opt.get('split', 1) else phase_gemm1)(k, g1, opt)
    g3 = phase_gemm2(k, g2, opt)
    g4 = phase_gemm3(k, g3, opt)
    (phase_gemm4p if opt.get('g4_pair', 1) else phase_gemm4)(k, g4, opt)
    if opt.get("diag2") is not None:
        lp, sk = k.label("dg"), k.label("dgs")
        if opt["diag2"] >= 0: k(f"s_cmp_lg_u32 s2, {opt['diag2']}\ns_cbranch_scc1 {sk}")
        k(f"{lp}:\ns_memrealtime s[0:1]\ns_waitcnt lgkmcnt(0)\ns_sub_u32 s87, s0, s72\ns_cmp_lt_u32 s87, 10000\ns_cbranch_scc1 {lp}\n{sk}:")
    elif opt.get("diag"):
        a_, b_ = opt["diag"]
        k(f"v_readlane_b32 s84, v{VSTAMP}, 0\nv_readlane_b32 s85, v{VSTAMP}, {a_}\nv_readlane_b32 s86, v{VSTAMP}, {b_}\ns_nop 3")
        k("s_sub_u32 s86, s86, s85\ns_add_u32 s86, s86, 10000")
        lp = k.label("dg")
        k(f"{lp}:\ns_memrealtime s[0:1]\ns_waitcnt lgkmcnt(0)\ns_sub_u32 s87, s0, s84\ns_cmp_lt_u32 s87, s86\ns_cbranch_scc1 {lp}")
    elif instr:
        k("s_waitcnt vmcnt(0)")
        k.stamp("end")
        k(f"s_add_u32 s84, s{P_WS}, {WS_DBG}\ns_addc_u32 s85, s{P_WS+1}, 0\ns_mov_b32 s86, 0x100000\ns_mov_b32 s87, 0x20000")
        k(f"s_lshl_b32 s88, s2, 2\ns_add_u32 s88, s88, s{S_WAVE}\ns_lshl_b32 s88, s88, 8")
        lane_id(k, 1)
        k("v_lshlrev_b32 v1, 2, v1")
        k(f"buffer_store_dword v{VSTAMP}, v1, s[84:87], s88 offen")
        if opt.get("dbgout"):
            sk = k.label("nodbg")
            k(f"s_lshl_b32 s88, s2, 2\ns_add_u32 s88, s88, s{S_WAVE}\ns_cmp_lg_u32 s88, {opt['dbgout']*4}\ns_cbranch_scc1 {sk}")
            k("s_mov_b32 s84, s72\ns_mov_b32 s85, s73\ns_mov_b32 s86, 64\ns_mov_b32 s87, 0x20000")
            k(f"v_readlane_b32 s89, v{VSTAMP}, 0\ns_nop 3\nv_subrev_u32 v2, s89, v{VSTAMP}")
            k("buffer_store_dword v2, v1, s[84:87], 0 offen offset:12")
            k(f"{sk}:")
    k("s_endpgm")
    k(f"{name}_end:")
    return k
```
